```python
import torch

def _softmax(x, axis=-1):
    return torch.softmax(x, dim=axis)
def _gelu(x):
    return torch.nn.functional.gelu(x, approximate="tanh")
def _silu(x):
    return torch.nn.functional.silu(x)
def _sigmoid(x):
    return torch.sigmoid(x)
def _layernorm(x, axis=-1, eps=1e-5):
    m = x.mean(dim=axis, keepdim=True)
    v = x.var(dim=axis, keepdim=True, unbiased=False)
    return (x - m) / torch.sqrt(v + eps)
def _scatter_add(tgt, idx, src, axis=0):
    return tgt.clone().index_add_(axis, idx, src)
def _segment_sum(src, seg, n):
    out = torch.zeros((n,) + src.shape[1:], dtype=src.dtype)
    return out.index_add_(0, seg, src)
def _pad(x, pw):
    flat = tuple(v for pair in reversed(pw) for v in pair)
    return torch.nn.functional.pad(x, flat)

kernel_name = 'gated_mix__ssm_conv_h3__compressed_kv_cla__prompt'

def setup_inputs():

    _w = (lambda a: (lambda t: t.to(torch.bfloat16) if t.is_floating_point() else t)(torch.as_tensor(a)))
    def _A_setup():
        B, S, D = 1, 2048, 512
        ks = 4
        return {
            "q": _w((lambda *s: torch.randn(*s, dtype=torch.bfloat16) * 0.05)(B, S, D)),
            "k": _w((lambda *s: torch.randn(*s, dtype=torch.bfloat16) * 0.4)(B, S, D)),
            "v": _w((lambda *s: torch.randn(*s, dtype=torch.bfloat16) * 0.4)(B, S, D)),
            "shift_k": _w((lambda *s: torch.randn(*s, dtype=torch.bfloat16) * 0.4)(D, ks) * 0.5),
            "ssm_k": _w((lambda *s: torch.randn(*s, dtype=torch.bfloat16) * 0.8)(D, S) * (1.0 / S ** 0.5)),
            "ssm_D": _w((lambda *s: torch.randn(*s, dtype=torch.bfloat16) * 0.4)(D)),
        }
    _A_in = _A_setup()

    def _B_setup():
        B, H, Sq, Sk, D, M = 1, 32, 2048, 2048, 128, 512
        Dc = 4 * D
        return {
            "x": _w((lambda *s: torch.randn(*s, dtype=torch.bfloat16) * 0.05)(B, Sq, M)),
            "c_kv": _w((lambda *s: torch.randn(*s, dtype=torch.bfloat16) * 0.4)(B, Sk, Dc)),
            "w_q": _w((lambda *s: torch.randn(*s, dtype=torch.bfloat16) * 6.4)(M, H, D) * (M ** -0.5)),
            "w_uk": _w((lambda *s: torch.randn(*s, dtype=torch.bfloat16) * 6.4)(Dc, H, D) * (Dc ** -0.5)),
            "w_uv": _w((lambda *s: torch.randn(*s, dtype=torch.bfloat16) * 0.4)(Dc, H, D) * (Dc ** -0.5)),
            "w_o": _w((lambda *s: torch.randn(*s, dtype=torch.bfloat16) * 0.4)(H, D, M) * ((H * D) ** -0.5)),
        }
    _B_in = _B_setup()

    return {
        "A_q": _A_in["q"],
        "A_k": _A_in["k"],
        "A_v": _A_in["v"],
        "A_shift_k": _A_in["shift_k"],
        "A_ssm_k": _A_in["ssm_k"],
        "A_ssm_D": _A_in["ssm_D"],
        "B_x": _B_in["x"],
        "B_c_kv": _B_in["c_kv"],
        "B_w_q": _B_in["w_q"],
        "B_w_uk": _B_in["w_uk"],
        "B_w_uv": _B_in["w_uv"],
        "B_w_o": _B_in["w_o"],
        "gate_w": _w((lambda *s: torch.randn(*s, dtype=torch.bfloat16) * 0.05)(512) * 16.0),
    }

def reference(A_q, A_k, A_v, A_shift_k, A_ssm_k, A_ssm_D, B_x, B_c_kv, B_w_q, B_w_uk, B_w_uv, B_w_o, gate_w):
    def _A_ref(q, k, v, shift_k, ssm_k, ssm_D):
        B, S, D = q.shape
        ks = shift_k.shape[-1]
        k_pad = _pad(k, ((0, 0), (ks - 1, 0), (0, 0)))
        k_shift = torch.zeros_like(k)
        for t in range(ks):
            k_shift = k_shift + k_pad[:, t:t + S, :] * shift_k[:, ks - 1 - t][None, None, :]
        kv = k_shift * v
        L = 2 * S
        kv_pad = _pad(kv, ((0, 0), (0, S), (0, 0)))
        kf_pad = _pad(ssm_k, ((0, 0), (0, S)))
        kv_f = (lambda x, axes=(-2,-1): torch.fft.rfft2(x.float(), dim=axes))(kv_pad[:, None, :, :], axes=(1, 2))
        kf_f = (lambda x, axes=(-2,-1): torch.fft.rfft2(x.float(), dim=axes))(kf_pad[:, None, :], axes=(1, 2))
        kf_f = (lambda x, *d: x.permute(*d))(kf_f, 1, 2, 0)
        y_f = kv_f * kf_f[None, :, :, :]
        y = (lambda x, s, axes=(-2,-1): torch.fft.irfft2(x, s=s, dim=axes).to(torch.bfloat16))(y_f, (1, L), axes=(1, 2))[:, 0, :S, :]
        y = y + kv * ssm_D[None, None, :]
        return q * y

    def _B_ref(x, c_kv, w_q, w_uk, w_uv, w_o):
        B, Sq, M = x.shape[0], x.shape[1], x.shape[2]
        Sk = c_kv.shape[1]
        H, D = w_q.shape[1], w_q.shape[2]
        q = torch.einsum("bqm,mhd->bhqd", x, w_q)
        k = torch.einsum("bkc,chd->bhkd", c_kv, w_uk)
        v = torch.einsum("bkc,chd->bhkd", c_kv, w_uv)
        scores = torch.einsum("bhqd,bhkd->bhqk", q, k) * (D ** -0.5)
        off = Sk - Sq
        qi = torch.arange(Sq)[:, None]
        kj = torch.arange(Sk)[None, :]
        cmask = kj <= (qi + off)
        scores = torch.where(cmask[None, None], scores, -1e9)
        p = _softmax(scores, axis=-1)
        ctx = torch.einsum("bhqk,bhkd->bhqd", p, v)
        return torch.einsum("bhqd,hdm->bqm", ctx, w_o)

    x = A_q
    g = _sigmoid((x * gate_w).sum(-1, keepdims=True))
    a = _A_ref(x, A_k, A_v, A_shift_k, A_ssm_k, A_ssm_D)
    b = _B_ref(x, B_c_kv, B_w_q, B_w_uk, B_w_uv, B_w_o)
    return g * a + (1 - g) * b
```

```python
import re

def v(a, n=1):
    return f"v{a}" if n == 1 else f"v[{a}:{a+n-1}]"
def s(a, n=1):
    return f"s{a}" if n == 1 else f"s[{a}:{a+n-1}]"

_REG = re.compile(r"^-?(?:abs\()?\|?([vsa])(\d+)\|?\)?$")
_RNG = re.compile(r"^-?(?:abs\()?\|?([vsa])\[(\d+):(\d+)\]\|?\)?$")

def regs_of(op):
    op = op.strip()
    if op == "vcc": return {("s", "vcc_lo"), ("s", "vcc_hi")}
    if op in ("vcc_lo", "vcc_hi"): return {("s", op)}
    if op == "exec": return {("s", "exec_lo"), ("s", "exec_hi")}
    if op in ("exec_lo", "exec_hi"): return {("s", op)}
    if op == "m0": return {("s", "m0")}
    m = _REG.match(op)
    if m: return {(m.group(1), int(m.group(2)))}
    m = _RNG.match(op)
    if m: return {(m.group(1), i) for i in range(int(m.group(2)), int(m.group(3)) + 1)}
    return set()

TRANS = ("v_exp_f32", "v_log_f32", "v_rcp_f32", "v_rsq_f32", "v_sqrt_f32", "v_sin_f32", "v_cos_f32", "v_rcp_iflag_f32")

class Ins:
    def __init__(self, text):
        self.text = text
        t = text.split(";")[0].strip()
        t = re.sub(r"quad_perm:\[[^\]]*\]", "quad_perm", t)
        t = re.sub(r"op_sel(_hi)?:\[[^\]]*\]", "op_sel", t)
        t = re.sub(r"hwreg\([^)]*\)", "hwreg", t)
        parts = t.split(None, 1)
        self.op = parts[0]
        rest = parts[1] if len(parts) > 1 else ""
        ops = [o.strip() for o in rest.split(",")] if rest else []
        self.mods = []
        if ops:
            last = ops[-1].split()
            ops[-1] = last[0] if last else ""
            self.mods = last[1:]
            ops = [o.split()[0] if o.split() else o for o in ops]
        self.ops = ops
        op = self.op
        base = op.replace("_e32", "").replace("_e64", "").replace("_dpp", "").replace("_sdwa", "")
        self.base = base
        self.is_mfma = op.startswith("v_mfma")
        self.is_valu = op.startswith("v_") and not self.is_mfma
        self.is_trans = base in TRANS
        self.is_ds = op.startswith("ds_")
        self.is_vmem = op.startswith(("buffer_", "global_", "flat_"))
        self.is_salu = op.startswith("s_")
        self.is_dpp = "_dpp" in op or any(m.startswith(("row_", "quad_perm", "wave_")) for m in self.mods)
        self.is_permlane = op.startswith("v_permlane")
        self.is_lds_dma = self.is_vmem and ("lds" in self.mods or "_lds_" in op)
        self.w = set(); self.r = set()
        self.srcA = self.srcB = self.srcC = set()
        self.store_data = set()
        R = regs_of
        if self.is_mfma:
            self.w = R(ops[0]); self.srcA = R(ops[1]); self.srcB = R(ops[2]); self.srcC = R(ops[3])
            self.r = self.srcA | self.srcB | self.srcC
            self.passes = 8 if "32x32x16" in op else (4 if "16x16x32" in op else None)
            assert self.passes, op
        elif self.is_valu:
            if base == "v_nop":
                pass
            elif self.is_permlane:
                self.w = R(ops[0]) | R(ops[1]); self.r = set(self.w)
            elif base.startswith(("v_add_co", "v_sub_co", "v_subrev_co", "v_addc_co", "v_subb_co", "v_mad_u64_u32", "v_div_scale")):
                self.w = R(ops[0]) | R(ops[1])
                for o in ops[2:]: self.r |= R(o)
            else:
                self.w = R(ops[0])
                for o in ops[1:]: self.r |= R(o)
                if base.startswith(("v_fmac", "v_mac", "v_dot2c", "v_pk_fmac", "v_writelane")): self.r |= self.w
                if base.startswith("v_cmpx"): self.w |= R("exec")
                if base == "v_cndmask_b32" and len(ops) == 3: self.r |= R("vcc")
                if self.is_dpp: self.r |= self.w
        elif self.is_ds:
            if op.startswith(("ds_read", "ds_bpermute", "ds_permute", "ds_swizzle")):
                self.w = R(ops[0])
                for o in ops[1:]: self.r |= R(o)
            else:
                for o in ops: self.r |= R(o)
        elif self.is_vmem:
            if op.startswith(("buffer_wbl2", "buffer_inv")):
                pass
            elif self.is_lds_dma:
                for o in ops: self.r |= R(o)
                self.r |= R("m0")
            elif "_load" in op:
                self.w = R(ops[0])
                for o in ops[1:]: self.r |= R(o)
            elif "_atomic" in op:
                for o in ops: self.r |= R(o)
                if "sc0" in self.mods: self.w = R(ops[0])
            else:
                for o in ops: self.r |= R(o)
                if op.endswith(("x3", "x4")):
                    self.store_data = R(ops[0]) if op.startswith("buffer_") else R(ops[1])
        elif self.is_salu:
            nodst = ("s_cmp", "s_waitcnt", "s_branch", "s_cbranch", "s_barrier", "s_nop", "s_setprio", "s_sleep", "s_endpgm", "s_bitcmp", "s_setreg", "s_sethalt")
            if op.startswith(nodst):
                for o in ops: self.r |= R(o)
            else:
                self.w = R(ops[0])
                for o in ops[1:]: self.r |= R(o)
                if "saveexec" in op: self.w |= R("exec")
        self.states = 1
        if op == "s_nop": self.states = int(ops[0], 0) + 1
        self.target = ops[0] if op.startswith(("s_branch", "s_cbranch")) else None
        self.ends = op in ("s_branch", "s_endpgm", "s_setpc_b64")
        if op == "s_call_b64": self.target = ops[1]

def need(p, c):
    n = 0
    pv = {x for x in p.w if x[0] in "va"}
    ps = {x for x in p.w if x[0] == "s"}
    if p.is_valu:
        if c.is_mfma and (pv & c.r): n = max(n, 2)
        if c.is_mfma and (ps & {("s", "exec_lo"), ("s", "exec_hi")}): n = max(n, 4)
        if c.is_vmem and (ps & c.r): n = max(n, 5)
        if c.is_valu and (ps & c.r):
            n = max(n, 4 if c.base in ("v_readlane_b32", "v_writelane_b32", "v_div_fmas_f32") else 2)
        if c.is_valu and c.base == "v_div_fmas_f32" and (ps & {("s", "vcc_lo"), ("s", "vcc_hi")}): n = max(n, 4)
        if c.base in ("v_readlane_b32", "v_readfirstlane_b32") and (pv & c.r): n = max(n, 1)
        if p.is_trans and c.is_valu and not c.is_trans and (pv & c.r): n = max(n, 1)
        if p.is_trans and c.is_valu and (pv & c.r): n = max(n, 1)
        if (c.is_permlane or c.is_dpp) and (pv & c.r): n = max(n, 2)
        if (ps & {("s", "exec_lo"), ("s", "exec_hi")}):
            if c.is_dpp: n = max(n, 5)
            if c.is_permlane or c.base in ("v_readlane_b32", "v_readfirstlane_b32", "v_writelane_b32"): n = max(n, 4)
        if ("op_sel" in p.text or "_sdwa" in p.op) and c.is_valu and (pv & (c.r | c.w)): n = max(n, 1)
        if c.is_salu and (ps & c.r): n = max(n, 1)
    if p.base.startswith("v_dot") and (pv & (c.r | c.w)):
        same_c = c.base == p.base and not (pv & (regs_of(c.ops[1]) | regs_of(c.ops[2])))
        if not same_c: n = max(n, 3)
    if p.is_mfma:
        big = p.passes == 8
        if c.is_mfma:
            if p.w & (c.srcA | c.srcB): n = max(n, 12 if big else 8)
            if p.w & c.srcC:
                if not (p.w == c.srcC and p.passes == c.passes): n = max(n, 10 if big else 6)
            if (p.w & c.w) and not (p.w == c.srcC): n = max(n, 12 if big else 8) if not (p.w == c.w and p.passes == c.passes) else max(n, 0)
        elif c.is_valu or c.is_vmem or c.is_ds:
            if p.w & (c.r | c.w): n = max(n, 12 if big else 8)
            if c.is_valu and (p.srcC & c.w): n = max(n, 7 if big else 3)
    if p.store_data and (p.store_data & c.w): n = max(n, 2 if c.is_valu else 1)
    if p.is_salu and (("s", "m0") in p.w) and c.is_lds_dma: n = max(n, 1)
    return n

class Asm:
    def __init__(self):
        self.items = []
        self.uid = 0
    def I(self, text): self.items.append(("i", Ins(text)))
    def L(self, name): self.items.append(("l", name))
    def T(self, text): self.items.append(("t", text))
    def C(self, text): self.items.append(("t", "    ; " + text))
    def label(self, pfx="L"):
        self.uid += 1
        return f"{pfx}_{self.uid}"
    def fix_hazards(self, verbose=False):
        MAXW = 12
        total = 0
        items = self.items
        def maps():
            lab = {it[1]: i for i, it in enumerate(items) if it[0] == "l"}
            srcs = {}
            for i, it in enumerate(items):
                if it[0] == "i" and it[1].target is not None:
                    srcs.setdefault(lab[it[1].target], []).append(i)
            return srcs
        def preds(i, srcs):
            out = []; j = i - 1
            while j >= 0:
                it = items[j]
                if it[0] == "l":
                    out.extend(srcs.get(j, []))
                    if it[1].endswith("_kernel"): break
                elif it[0] == "i":
                    if not it[1].ends: out.append(j)
                    break
                j -= 1
            return out
        changed = True
        while changed:
            changed = False
            srcs = maps()
            i = 0
            while i < len(items):
                it = items[i]
                if it[0] != "i" or it[1].op == "s_nop":
                    i += 1; continue
                c = it[1]
                worst = 0
                stack = [(p, 0) for p in preds(i, srcs)]
                seen = {}
                while stack:
                    j, dist = stack.pop()
                    if j in seen and seen[j] <= dist: continue
                    seen[j] = dist
                    p = items[j][1]
                    nd = need(p, c)
                    if nd > dist: worst = max(worst, nd - dist)
                    d2 = dist + p.states
                    if d2 < MAXW:
                        for q in preds(j, srcs): stack.append((q, d2))
                if worst > 0:
                    if verbose: print("nop", worst, "before", c.text)
                    items.insert(i, ("i", Ins(f"s_nop {worst-1}")))
                    srcs = maps()
                    total += 1
                    changed = True
                    i += 1
                i += 1
        return total
    def text(self):
        out = []
        for k, x in self.items:
            if k == "i": out.append("    " + x.text)
            elif k == "l": out.append(x + ":")
            else: out.append(x)
        return "\n".join(out) + "\n"


class Cnt:
    def __init__(self, a, name, maxv):
        self.a = a; self.name = name; self.maxv = maxv
        self.issued = 0; self.done = 0
    def issue(self, n=1):
        self.issued += n
        return self.issued
    def wait(self, tok):
        if tok <= self.done: return
        n = min(self.issued - tok, self.maxv)
        self.a.I(f"s_waitcnt {self.name}({n})")
        self.done = self.issued - n
    def mark_all_done(self):
        self.done = self.issued
```

```python
import sys, math
sys.path.insert(0, "gen")
from asmlib import *

NAME = "gated_mix__ssm_conv_h3__compressed_kv_cla__prompt"
MB = 1 << 20
KV_OFF, Q_OFF, CTX_OFF, KVT_OFF, YT_OFF, G_OFF = 0, 32*MB, 48*MB, 64*MB, 66*MB, 68*MB
STAMP_OFF = 69*MB
WS_SIZE = 70*MB
P = dict(q=64, k=66, v=68, shift=70, ssmk=72, ssmD=74, bx=76, ckv=78, wq=80, wuk=82, wuv=84, wo=86, gate=88, out=90, dbg=92, ws=94)
SW, SHEAD, SIDX, SWK = 3, 4, 5, 6
RA, RB, RC, RWS, RD, RE = 8, 12, 16, 20, 24, 28
MFMA = "v_mfma_f32_32x32x16_bf16"
LOG2E = 1.4426950408889634
def f2u(x):
    import struct
    return "0x%08x" % struct.unpack("<I", struct.pack("<f", x))[0]

class G:
    def __init__(self, opts):
        self.a = Asm()
        self.o = opts
        self.vm = Cnt(self.a, "vmcnt", 63)
        self.lg = Cnt(self.a, "lgkmcnt", 15)
        self.st = " sc1" if opts.get("sc1") else ""
        self.ld = " sc1" if opts.get("sc1") else ""
    def I(self, t): self.a.I(t)
    def srd(self, r, ptr, nbytes):
        I = self.I
        I(f"s_mov_b32 s{r}, s{P[ptr]}")
        I(f"s_mov_b32 s{r+1}, s{P[ptr]+1}")
        I(f"s_mov_b32 s{r+2}, {nbytes}")
        I(f"s_mov_b32 s{r+3}, 0x00020000")
    def begin(self, kname):
        a = self.a; I = self.I
        a.T(f".globl {kname}\n.p2align 8\n.type {kname},@function")
        a.L(kname)
        self.endl = a.label("END")
        I("s_cmp_ge_u32 s2, 256")
        I(f"s_cbranch_scc1 {self.endl}")
        I("s_load_dwordx16 s[64:79], s[0:1], 0")
        I("s_load_dwordx16 s[80:95], s[0:1], 64")
        I("v_lshrrev_b32 v1, 6, v0")
        I("v_and_b32 v0, 63, v0")
        I(f"v_readfirstlane_b32 s{SW}, v1")
        I("s_and_b32 s7, s2, 7")
        I("s_lshl_b32 s7, s7, 2")
        I(f"s_lshr_b32 s{SIDX}, s2, 3")
        I(f"s_lshr_b32 s{SHEAD}, s{SIDX}, 3")
        I(f"s_add_u32 s{SHEAD}, s{SHEAD}, s7")
        I(f"s_and_b32 s{SIDX}, s{SIDX}, 7")
        I(f"s_lshl_b32 s{SWK}, s{SW}, 10")
        I("s_waitcnt lgkmcnt(0)")
        self.srd(RWS, "ws", WS_SIZE)
        self.vm.mark_all_done(); self.lg.mark_all_done()
    def end(self):
        self.a.L(self.endl)
        self.I("s_endpgm")
    def stamp(self, i, va=2, dyn=None):
        if not self.o.get("stamp"): return
        I = self.I
        I("s_memrealtime s[96:97]")
        I("s_memtime s[100:101]")
        I("s_lshl_b32 s98, s2, 3")
        I(f"s_add_u32 s98, s98, s{SW}")
        I("s_lshl_b32 s98, s98, 7")
        I(f"s_add_u32 s98, s98, {STAMP_OFF + 4*i}")
        if dyn is not None:
            I(f"s_lshl_b32 s99, s{dyn}, 4")
            I("s_add_u32 s98, s98, s99")
        I("s_waitcnt lgkmcnt(0)")
        I(f"v_mov_b32 v{va}, s96")
        I(f"v_mov_b32 v{va+1}, 0")
        I(f"buffer_store_dword v{va}, v{va+1}, s[{RWS}:{RWS+3}], s98 offen"); self.vm.issue()
        I(f"v_mov_b32 v{va}, s100")
        I(f"buffer_store_dword v{va}, v{va+1}, s[{RWS}:{RWS+3}], s98 offen offset:64"); self.vm.issue()
    def barrier(self):
        self.I("s_barrier")

    def proj(self):
        a = self.a; I = self.I; vm = self.vm; lg = self.lg
        PREP = 131072
        ACC = 128
        QACC = 64
        FX = [16, 40]; FW = [32, 56]
        VXA = 4
        VWA = 8
        VOX, VOW = 10, 11
        VST = 12
        self.stamp(0)
        T = 64
        self.srd(RD, "k", 2*MB); self.srd(RE, "v", 2*MB)
        self.srd(RA, "shift", 4096); self.srd(RB, "q", 2*MB); self.srd(RC, "gate", 1024)
        I("s_lshr_b32 s32, s2, 3")
        I("s_and_b32 s33, s2, 7")
        I("s_lshl_b32 s34, s32, 6")
        I(f"s_lshl_b32 s35, s{SW}, 3")
        I("s_add_u32 s35, s35, s34")
        I("v_lshrrev_b32 v1, 5, v0")
        I("v_and_b32 v2, 31, v0")
        I("v_lshl_add_u32 v3, v1, 2, s35")
        I("v_lshlrev_b32 v3, 10, v3")
        I("s_lshl_b32 s36, s33, 7")
        I("v_lshl_add_u32 v13, v2, 2, s36")
        I(f"v_add_u32 v{T}, v3, v13")
        for i in range(3):
            I(f"v_subrev_u32 v{T+1+i}, {3072-1024*i}, v{T}")
        KR = T + 4
        VR = T + 11
        SH = T + 16
        XG = T + 20; GW = T + 24
        for i in range(3):
            I(f"buffer_load_dword v{KR+i}, v{T+1+i}, s[{RD}:{RD+3}], 0 offen"); vm.issue()
        for i in range(4):
            I(f"buffer_load_dword v{KR+3+i}, v{T}, s[{RD}:{RD+3}], 0 offen offset:{1024*i}"); vm.issue()
        for i in range(4):
            I(f"buffer_load_dword v{VR+i}, v{T}, s[{RE}:{RE+3}], 0 offen offset:{1024*i}"); vm.issue()
        I("v_lshlrev_b32 v14, 2, v13")
        I(f"buffer_load_dwordx4 {v(SH,4)}, v14, s[{RA}:{RA+3}], 0 offen"); vm.issue()
        I(f"v_lshlrev_b32 v{VST}, 4, v0")
        I("s_lshl_b32 s37, s2, 3")
        I(f"s_add_u32 s37, s37, s{SW}")
        I("s_lshl_b32 s38, s37, 10")
        I(f"buffer_load_dwordx4 {v(XG,4)}, v{VST}, s[{RB}:{RB+3}], s38 offen"); vm.issue()
        I(f"buffer_load_dwordx4 {v(GW,4)}, v{VST}, s[{RC}:{RC+3}], 0 offen"); tprep = vm.issue()
        self.srd(RA, "ckv", 2*MB); self.srd(RB, "wuk", 4*MB); self.srd(RC, "wuv", 4*MB)
        self.srd(RD, "q", 2*MB); self.srd(RE, "wq", 4*MB)
        I("v_lshrrev_b32 v13, 3, v0")
        I(f"s_lshl_b32 s40, s{SW}, 3")
        I("v_add_u32 v13, s40, v13")
        I("v_lshlrev_b32 v13, 10, v13")
        I("v_lshrrev_b32 v14, 4, v0")
        I(f"s_and_b32 s40, s{SW}, 1")
        I("s_lshl_b32 s40, s40, 2")
        I("v_add_u32 v15, s40, v14")
        I("v_and_b32 v3, 7, v0")
        I("v_xor_b32 v15, v15, v3")
        I(f"v_lshl_add_u32 v{VOX}, v15, 4, v13")
        I(f"s_lshl_b32 s40, s{SW}, 2")
        I("v_add_u32 v13, s40, v14")
        I("v_lshlrev_b32 v13, 13, v13")
        I("v_lshlrev_b32 v15, 2, v14")
        I("v_and_b32 v3, 15, v0")
        I("v_xor_b32 v15, v15, v3")
        I("v_lshl_add_u32 v13, v15, 4, v13")
        I(f"s_lshl_b32 s40, s{SHEAD}, 8")
        I(f"v_add_u32 v{VOW}, s40, v13")
        I(f"s_lshl_b32 s44, s{SIDX}, 18")
        for i in range(1, 4): I(f"s_add_u32 s{44+i}, s44, {65536*i}")
        I(f"s_lshl_b32 s48, s{SIDX}, 17")
        I("s_add_u32 s49, s48, 65536")
        I(f"s_sub_u32 s50, 15, s{SIDX}")
        I("s_lshl_b32 s50, s50, 17")
        I("s_add_u32 s51, s50, 65536")
        def dma_list(t):
            L = []
            if self.o.get("nodma") and t >= 2: return L
            buf = t & 1
            isq = t >= 8
            tt = t - 8 if isq else t
            for i in range(4):
                def f(i=i):
                    I(f"s_add_u32 m0, s{SWK}, {buf*32768 + i*8192}")
                    I(f"s_add_u32 s41, s{(48 if isq else 44)+i}, {tt*128}")
                    r = RD if isq else RA
                    I(f"buffer_load_dwordx4 v{VOX}, s[{r}:{r+3}], s41 offen lds"); vm.issue()
                L.append(f)
            for mat in range(1 if isq else 2):
                for i in range(2):
                    def f(i=i, mat=mat):
                        I(f"s_add_u32 m0, s{SWK}, {65536 + buf*32768 + mat*16384 + i*8192}")
                        I(f"s_mov_b32 s41, {tt*524288 + i*262144}")
                        r = RE if isq else (RB, RC)[mat]
                        I(f"buffer_load_dwordx4 v{VOW}, s[{r}:{r+3}], s41 offen lds"); vm.issue()
                    L.append(f)
            return L
        dtok = {}
        for f in dma_list(0): f()
        dtok[0] = vm.issued
        for f in dma_list(1): f()
        dtok[1] = vm.issued
        def frag_addrs(rowbase_s, dt_s, matoff_s):
            I("v_and_b32 v13, 31, v0")
            I(f"v_add_u32 v13, s{rowbase_s}, v13")
            I("v_lshrrev_b32 v14, 1, v13")
            I("v_and_b32 v14, 7, v14")
            I("v_lshrrev_b32 v15, 5, v0")
            I("v_xor_b32 v14, v14, v15")
            I("v_lshlrev_b32 v14, 4, v14")
            I(f"v_lshl_add_u32 v{VXA}, v13, 7, v14")
            for k in range(1, 4): I(f"v_xor_b32 v{VXA+k}, {k<<5}, v{VXA}")
            I("v_bfe_u32 v13, v0, 2, 2")
            I("v_lshl_add_u32 v14, v15, 3, v13")
            I("v_lshlrev_b32 v14, 8, v14")
            I("v_bfe_u32 v15, v0, 4, 1")
            I("v_lshl_add_u32 v14, v15, 5, v14")
            I("v_and_b32 v15, 3, v0")
            I("v_lshl_add_u32 v14, v15, 3, v14")
            I(f"v_add_u32 v14, s{matoff_s}, v14")
            I(f"v_xor_b32 v13, s{dt_s}, v13")
            I(f"v_lshl_add_u32 v{VWA}, v13, 6, v14")
            I(f"v_xor_b32 v{VWA+1}, 64, v{VWA}")
        I(f"s_and_b32 s42, s{SW}, 1")
        I("s_lshl_b32 s42, s42, 7")
        I(f"s_and_b32 s43, s{SW}, 2")
        I(f"s_lshr_b32 s52, s{SW}, 2")
        I("s_lshl_b32 s53, s52, 14")
        I("s_add_u32 s53, s53, 65536")
        frag_addrs(42, 43, 53)
        for r in range(128): I(f"v_mov_b32 v{ACC+r}, 0")
        vm.wait(tprep)
        KU = T + 28
        SU = T + 36; O = T + 40; VU = T + 44; PK = T + 46
        I("v_lshrrev_b32 v1, 5, v0")
        I("v_and_b32 v2, 31, v0")
        I("v_mul_u32_u24 v13, 288, v2")
        I("v_xor_b32 v1, 1, v1")
        I("v_lshl_add_u32 v13, v1, 3, v13")
        I(f"s_lshl_b32 s40, s{SW}, 4")
        I(f"s_add_u32 s40, s40, {PREP}")
        I("v_add_u32 v13, s40, v13")
        for c in range(2):
            def unp(d, sreg, half):
                if half == 0: I(f"v_lshlrev_b32 v{d}, 16, v{sreg}")
                else: I(f"v_and_b32 v{d}, 0xffff0000, v{sreg}")
            for i in range(7): unp(KU+i, KR+i, c)
            for j in range(4): unp(SU+j, SH + 2*c + (j >> 1), j & 1)
            for o in range(4):
                I(f"v_mul_f32 v{O+o}, v{KU+o}, v{SU+3}")
                for j in (2, 1, 0):
                    I(f"v_fmac_f32 v{O+o}, v{KU+o+3-j}, v{SU+j}")
                unp(VU, VR+o, c)
                I(f"v_mul_f32 v{O+o}, v{O+o}, v{VU}")
            I(f"v_cvt_pk_bf16_f32 v{PK}, v{O+3}, v{O+2}")
            I(f"v_cvt_pk_bf16_f32 v{PK+1}, v{O+1}, v{O}")
            I(f"ds_write_b64 v13, {v(PK,2)} offset:{144*c}"); lg.issue()
            PK += 2
        Z = T + 52
        I(f"v_dot2_f32_bf16 v{Z}, v{XG}, v{GW}, 0")
        for i in range(1, 4): I(f"v_dot2_f32_bf16 v{Z}, v{XG+i}, v{GW+i}, v{Z}")
        for m in ("quad_perm:[1,0,3,2] row_mask:0xf", "quad_perm:[2,3,0,1] row_mask:0xf", "row_half_mirror row_mask:0xf", "row_mirror row_mask:0xf",
                  "row_bcast:15 row_mask:0xa", "row_bcast:31 row_mask:0xc"):
            I(f"v_add_f32_dpp v{Z}, v{Z}, v{Z} {m} bank_mask:0xf")
        I(f"v_mul_f32 v{Z}, {f2u(-LOG2E)}, v{Z}")
        I(f"v_exp_f32 v{Z}, v{Z}")
        I(f"v_add_f32 v{Z}, 1.0, v{Z}")
        I(f"v_rcp_f32 v{Z}, v{Z}")
        I("s_lshl_b32 s38, s37, 2")
        I(f"s_add_u32 s38, s38, {G_OFF}")
        I(f"v_mov_b32 v{Z+1}, 0")
        I("s_mov_b32 exec_lo, 0")
        I("s_mov_b32 exec_hi, 0x80000000")
        I(f"buffer_store_dword v{Z}, v{Z+1}, s[{RWS}:{RWS+3}], s38 offen{self.st}"); vm.issue()
        I("s_mov_b64 exec, -1")
        vm.wait(dtok[0]); lg.wait(lg.issued)
        self.barrier()
        I("v_lshrrev_b32 v13, 3, v0")
        I(f"s_lshl_b32 s40, s{SW}, 3")
        I("v_add_u32 v13, s40, v13")
        I("v_and_b32 v14, 7, v0")
        I("v_lshlrev_b32 v14, 4, v14")
        I("v_mul_u32_u24 v15, 144, v13")
        I("v_add_u32 v15, v15, v14")
        I(f"v_add_u32 v15, {PREP}, v15")
        I(f"ds_read_b128 {v(T,4)}, v15"); tk = lg.issue()
        I("v_lshl_add_u32 v13, v13, 12, v14")
        I("s_lshl_b32 s38, s33, 18")
        I("s_lshl_b32 s39, s34, 1")
        I("s_add_u32 s38, s38, s39")
        I(f"s_add_u32 s38, s38, {KVT_OFF}")
        lg.wait(tk)
        I(f"buffer_store_dwordx4 {v(T,4)}, v13, s[{RWS}:{RWS+3}], s38 offen{self.st}"); vm.issue()

        self.stamp(1)
        def reads(t, k, MT):
            st = k & 1; buf = t & 1; toks = {}
            L = []
            def rx(mt):
                I(f"ds_read_b128 {v(FX[st]+4*mt,4)}, v{VXA+k} offset:{buf*32768+mt*4096}"); toks[("x",mt)] = lg.issue()
            def rw(dt, h):
                I(f"ds_read_b64_tr_b16 {v(FW[st]+4*dt+2*h,2)}, v{VWA+dt} offset:{buf*32768+k*4096+h*1024}"); toks[("w",dt)] = lg.issue()
            L.append(lambda: rx(0)); L.append(lambda: rw(0,0)); L.append(lambda: rw(0,1))
            L.append(lambda: rw(1,0)); L.append(lambda: rw(1,1))
            for mt in range(1, MT): L.append(lambda mt=mt: rx(mt))
            return L, toks
        def step(k, toks, MT, acc, swap, fillers, per):
            st = k & 1
            for mt in range(MT):
                for dt in range(2):
                    lg.wait(max(toks[("x",mt)], toks[("w",dt)]))
                    d = v(acc + 16*(2*mt+dt), 16); X = v(FX[st]+4*mt,4); W = v(FW[st]+4*dt,4)
                    if swap: I(f"{MFMA} {d}, {X}, {W}, {d}")
                    else:    I(f"{MFMA} {d}, {W}, {X}, {d}")
                    for _ in range(per):
                        if fillers: fillers.pop(0)()
            while fillers: fillers.pop(0)()

        LV = a.label("VW"); LJ = a.label("KVJ")
        save = (vm.issued, vm.done, lg.issued, lg.done)
        I("s_cmp_eq_u32 s52, 1")
        I(f"s_cbranch_scc1 {LV}")
        for swap in (0, 1):
            if swap:
                a.L(LV)
                vm.issued, vm.done, lg.issued, lg.done = save
            L, toks = reads(0, 0, 4)
            for f in L: f()
            for t in range(8):
                for k in range(4):
                    if k < 3:
                        L, nt = reads(t, k+1, 4)
                        step(k, toks, 4, ACC, swap, L, 2)
                        toks = nt
                    else:
                        lg.wait(lg.issued); vm.wait(dtok[t+1]); self.barrier()
                        if t < 7:
                            L, nt = reads(t+1, 0, 4)
                            D = dma_list(t+2)
                            F = []
                            for i in range(8):
                                F.append(L[i])
                                if i < len(D): F.append(D[i])
                            step(k, toks, 4, ACC, swap, F, 2)
                            dtok[t+2] = vm.issued
                            toks = nt
                        else:
                            step(k, toks, 4, ACC, swap, dma_list(9), 1)
                            dtok[9] = vm.issued
            if not swap: I(f"s_branch {LJ}")
        a.L(LJ)
        self.stamp(2)
        I(f"s_and_b32 s42, s{SW}, 3")
        I("s_lshl_b32 s42, s42, 6")
        I(f"s_lshr_b32 s43, s{SW}, 2")
        I("s_lshl_b32 s43, s43, 1")
        I("s_mov_b32 s53, 65536")
        frag_addrs(42, 43, 53)
        for r in range(64): I(f"v_mov_b32 v{QACC+r}, 0")
        I(f"s_lshl_b32 s54, s{SHEAD}, 4")
        I(f"s_lshl_b32 s55, s{SIDX}, 1")
        I("s_add_u32 s54, s54, s55")
        I(f"s_and_b32 s55, s{SW}, 1")
        I("s_add_u32 s54, s54, s55")
        I("s_lshl_b32 s54, s54, 16")
        I("s_lshl_b32 s55, s52, 15")
        I("s_add_u32 s54, s54, s55")
        if KV_OFF: I(f"s_add_u32 s54, s54, {KV_OFF}")
        I(f"s_and_b32 s55, s{SW}, 2")
        I("s_lshr_b32 s56, 2048, s52")
        I("s_lshl_b32 s57, s52, 1")
        I("s_lshl_b32 s57, 1024, s57")
        I("s_mul_i32 s55, s55, s56")
        I("s_add_u32 s54, s54, s55")
        def kv_out(tile):
            mt, dt = tile >> 1, tile & 1
            b = ACC + 16*tile
            L = []
            for i in range(8):
                L.append(lambda i=i: I(f"v_cvt_pk_bf16_f32 v{b+i}, v{b+2*i}, v{b+2*i+1}"))
            def st(half):
                I(f"s_add_u32 s41, s54, {mt*8192}")
                if dt: I("s_add_u32 s41, s41, s56")
                if half: I("s_add_u32 s41, s41, s57")
                I(f"buffer_store_dwordx4 {v(b+4*half,4)}, v{VST}, s[{RWS}:{RWS+3}], s41 offen{self.st}"); vm.issue()
            if not self.o.get("nost"): L.append(lambda: st(0)); L.append(lambda: st(1))
            return L
        L, toks = reads(8, 0, 2)
        for f in L: f()
        for t in range(8, 16):
            KO = kv_out(t - 8)
            for k in range(4):
                if k < 3:
                    L, nt = reads(t, k+1, 2)
                    ex = [KO[0:4], KO[4:8], KO[8:10]][k]
                    step(k, toks, 2, QACC, 0, L + ex, 3)
                    toks = nt
                elif t < 15:
                    lg.wait(lg.issued); vm.wait(dtok[t+1]); self.barrier()
                    L, nt = reads(t+1, 0, 2)
                    D = dma_list(t+2) if t + 2 < 16 else []
                    F = []
                    for i in range(6):
                        F.append(L[i])
                        if i < len(D): F.append(D[i])
                    step(k, toks, 2, QACC, 0, F, 3)
                    dtok[t+2] = vm.issued
                    toks = nt
                else:
                    step(k, toks, 2, QACC, 0, [], 0)
        self.stamp(3)
        I(f"s_sub_u32 s55, 15, s{SIDX}")
        I(f"s_and_b32 s56, s{SW}, 2")
        I("s_cmp_eq_u32 s56, 0")
        I(f"s_cselect_b32 s55, s{SIDX}, s55")
        I("s_lshl_b32 s55, s55, 2")
        I(f"s_and_b32 s56, s{SW}, 1")
        I("s_lshl_b32 s56, s56, 1")
        I("s_add_u32 s55, s55, s56")
        I(f"s_lshl_b32 s56, s{SHEAD}, 6")
        I("s_add_u32 s55, s55, s56")
        I("s_lshl_b32 s55, s55, 13")
        I("s_lshl_b32 s56, s43, 11")
        I("s_add_u32 s55, s55, s56")
        I(f"s_add_u32 s55, s55, {Q_OFF}")
        I("s_add_u32 s56, s55, 8192")
        I(f"s_mov_b32 s57, {f2u(LOG2E / math.sqrt(128.0))}")
        for tile in range(4):
            rt, dt = tile >> 1, tile & 1
            b = QACC + 16*tile
            for i in range(16): I(f"v_mul_f32 v{b+i}, s57, v{b+i}")
            for i in range(8): I(f"v_cvt_pk_bf16_f32 v{b+i}, v{b+2*i}, v{b+2*i+1}")
            for half in range(2):
                I(f"buffer_store_dwordx4 {v(b+4*half,4)}, v{VST}, s[{RWS}:{RWS+3}], s{55+rt} offen offset:{dt*2048+half*1024}"); vm.issue()
        self.stamp(4)
        if self.o.get("stamp"):
            vm.wait(vm.issued)
            self.stamp(5)

    def attn(self):
        a = self.a; I = self.I; vm = self.vm; lg = self.lg
        ML = 131072
        O = 192; QF = 160; NM = 144; S = [112, 128]; PP = [96, 104]; RING = 64; NR = 8
        E = 56
        VK, VV, VL16, LRUN, LU, THR, NINF, TMP = 4, 5, 6, 7, 8, 9, 10, 12
        SR, SG, SN, ST, SKO, SVO, SKM, SVM, SBLK, SHB, STH, SPASS = 32, 33, 34, 35, 36, 37, 38, 39, 40, 41, 42, 43
        self.stamp(6)
        I(f"s_and_b32 s{SR}, s{SW}, 3")
        I(f"s_lshr_b32 s{SG}, s{SW}, 2")
        I(f"v_lshlrev_b32 v{VL16}, 4, v0")
        I(f"s_lshl_b32 s44, s{SG}, 14")
        I(f"v_add_u32 v{VK}, s44, v{VL16}")
        I(f"v_add_u32 v{VV}, 0x10000, v{VK}")
        I(f"v_xor_b32 v{VV}, 0x8000, v{VV}")
        I(f"s_lshl_b32 s{SHB}, s{SHEAD}, 20")
        if KV_OFF: I(f"s_add_u32 s{SHB}, s{SHB}, {KV_OFF}")
        I(f"s_lshl_b32 s44, s{SW}, 12")
        I(f"s_add_u32 s{SHB}, s{SHB}, s44")
        I(f"s_mov_b32 s{SKM}, s44")
        I(f"s_add_u32 s{SVM}, s44, 0x10000")
        I(f"s_mov_b32 s{STH}, {f2u(4096.0)}")
        I(f"v_mov_b32 v{NINF}, 0xff800000")
        I(f"v_and_b32 v{THR}, 31, v0")
        I(f"s_lshl_b32 s44, s{SR}, 5")
        I(f"s_lshl_b32 s45, s{SG}, 6")
        I("s_sub_u32 s44, s44, s45")
        I(f"v_add_u32 v{THR}, s44, v{THR}")
        I(f"v_lshrrev_b32 v{TMP}, 5, v0")
        I(f"v_lshlrev_b32 v{TMP}, 2, v{TMP}")
        I(f"v_sub_u32 v{THR}, v{THR}, v{TMP}")
        def dma4(sm, so):
            L = []
            def first():
                I(f"s_mov_b32 m0, s{sm}")
                I(f"s_xor_b32 s{sm}, s{sm}, 0x8000")
                I(f"buffer_load_dwordx4 v{VL16}, s[{RWS}:{RWS+3}], s{so} offen{self.ld} lds"); vm.issue()
            L.append(first)
            for i in range(1, 4):
                def f(i=i):
                    I(f"buffer_load_dwordx4 v{VL16}, s[{RWS}:{RWS+3}], s{so} offen offset:{1024*i}{self.ld} lds"); vm.issue()
                L.append(f)
            return L
        def loadq():
            I(f"s_lshl_b32 s44, s{SHEAD}, 6")
            I(f"s_lshl_b32 s45, s{SBLK}, 2")
            I("s_add_u32 s44, s44, s45")
            I(f"s_add_u32 s44, s44, s{SR}")
            I("s_lshl_b32 s44, s44, 13")
            I(f"s_add_u32 s44, s44, {Q_OFF}")
            I("s_add_u32 s45, s44, 4096")
            for ds in range(8):
                I(f"buffer_load_dwordx4 {v(QF+4*ds,4)}, v{VL16}, s[{RWS}:{RWS+3}], s{44+(ds>>2)} offen offset:{1024*(ds&3)}"); vm.issue()
        I(f"s_mov_b32 s{SBLK}, s{SIDX}")
        I(f"s_mov_b32 s{SPASS}, 0")
        I(f"s_mov_b32 s{SKO}, s{SHB}")
        for f in dma4(SKM, SKO): f()
        loadq()

        self.ring_n = 0
        def rd(kind, sl, idx):
            h = {}
            def f():
                slot = self.ring_n % NR; self.ring_n += 1
                h["reg"] = RING + 4*slot
                addr = VK if kind == "k" else VV
                I(f"ds_read_b128 {v(h['reg'],4)}, v{addr} offset:{sl*8192+idx*1024}")
                h["tok"] = lg.issue()
            return f, h
        def mf_qk(sb, ds, h, czero=False):
            lg.wait(h["tok"])
            c = (("0" if czero else v(NM,16)) if ds == 0 else v(S[sb],16))
            I(f"{MFMA} {v(S[sb],16)}, {v(h['reg'],4)}, {v(QF+4*ds,4)}, {c}")
        def mf_pv(pb, idx, h):
            ks, dt = idx >> 2, idx & 3
            if "tok" in h: lg.wait(h["tok"])
            I(f"{MFMA} {v(O+16*dt,16)}, {v(h['reg'],4)}, {v(PP[pb]+4*ks,4)}, {v(O+16*dt,16)}")
        def sm_ops(sb):
            L = []
            ex = lambda i: (lambda: I(f"v_exp_f32 v{E+(i&7)}, v{S[sb]+i}"))
            def post(j):
                r = []
                e0, e1 = E + ((2*j) & 7), E + ((2*j+1) & 7)
                if j == 0:
                    r.append(lambda: I(f"v_add_f32 v{LU}, v{e0}, v{e1}"))
                else:
                    r.append(lambda: I(f"v_add_f32 v{LU}, v{LU}, v{e0}"))
                    r.append(lambda: I(f"v_add_f32 v{LU}, v{LU}, v{e1}"))
                r.insert(1 if j else 0, lambda: I(f"v_cvt_pk_bf16_f32 v{PP[sb]+j}, v{e0}, v{e1}"))
                return r
            L += [ex(0), ex(1)]
            for j in range(8):
                p = post(j)
                if j < 7:
                    L += [ex(2*j+2), p[0], ex(2*j+3)] + p[1:]
                else:
                    L += p
            return L
        def mask(sb, sl):
            prs = [46, 48, 50, 52]
            for r0 in range(0, 16, 4):
                for r in range(r0, r0+4):
                    c = (r & 3) + 8*(r >> 2) + 32*sl
                    I(f"v_cmp_lt_i32 s[{prs[r&3]}:{prs[r&3]+1}], v{THR}, {c}")
                for r in range(r0, r0+4):
                    I(f"v_cndmask_b32 v{S[sb]+r}, v{S[sb]+r}, v{NINF}, s[{prs[r&3]}:{prs[r&3]+1}]")
        def rowmax(sb, dst):
            b = S[sb]
            I(f"v_max3_f32 v{dst}, v{b}, v{b+1}, v{b+2}")
            for i in range(3, 15, 2): I(f"v_max3_f32 v{dst}, v{dst}, v{b+i}, v{b+i+1}")
            I(f"v_max_f32 v{dst}, v{dst}, v{b+15}")
            I(f"v_mov_b32 v{dst+1}, v{dst}")
            I(f"v_permlane32_swap_b32 v{dst}, v{dst+1}")
            I(f"v_max_f32 v{dst}, v{dst}, v{dst+1}")
        rare = []
        def check(sb, tail=None):
            lr = a.label("RARE"); lb = a.label("BACK")
            I(f"v_cmp_nge_f32 vcc, s{STH}, v{LU}")
            I(f"s_cbranch_vccnz {lr}")
            a.L(lb)
            I(f"v_add_f32 v{LRUN}, v{LRUN}, v{LU}")
            rare.append((lr, lb, sb, tail))
        def stream(mf, fill_lists):
            n = len(mf)
            slots = [[] for _ in range(n + 1)]
            for (s0, e0, cl) in fill_lists:
                m = e0 - s0
                for j, c in enumerate(cl):
                    slots[s0 + 1 + (j * m) // len(cl)].append(c)
            for c in slots[0]: c()
            for i in range(n):
                mf[i]()
                for c in slots[i+1]: c()
        def next_ko():
            I(f"s_lshl_b32 s44, s{ST}, 16")
            I(f"s_add_u32 s{SVO}, s{SHB}, s44")
            I(f"s_add_u32 s{SKO}, s{SVO}, 0x10000")
            I(f"s_add_u32 s{SVO}, s{SVO}, 0x8000")
            I(f"s_add_u32 s{ST}, s{ST}, 1")
            I(f"s_cmp_eq_u32 s{ST}, s{SN}")
            I(f"s_cselect_b32 s{SKO}, s{SHB}, s{SKO}")
        def sync_point():
            I("s_waitcnt vmcnt(0) lgkmcnt(0)"); vm.mark_all_done(); lg.mark_all_done()
            self.barrier()

        LBLK = a.label("BLK"); LLOOP = a.label("LOOP"); LDRAIN = a.label("DRAIN")
        a.L(LBLK)
        I(f"s_add_u32 s{SN}, s{SBLK}, 1")
        I(f"s_mov_b32 s{ST}, 0")
        sync_point()
        self.stamp(8, dyn=SPASS)
        self.ring_n = 0
        next_ko()
        R = [rd("k", 0, i) for i in range(8)] + [rd("k", 1, i) for i in range(8)]
        for f, h in R[:7]: f()
        D = dma4(SKM, SKO) + dma4(SVM, SVO)
        stream([lambda i=i: mf_qk(0, i, R[i][1], True) for i in range(8)],
               [(0, 8, [f for f, h in R[7:15]]), (0, 8, D), (0, 8, [lambda r=r: I(f"v_mov_b32 v{O+r}, 0") for r in range(32)])])
        for r in range(32, 64): I(f"v_mov_b32 v{O+r}, 0")
        lm = a.label("NOMASK0")
        I(f"s_cmp_lg_u32 s{SN}, 1")
        I(f"s_cbranch_scc1 {lm}")
        mask(0, 0)
        a.L(lm)
        rowmax(0, TMP)
        I(f"v_max_f32 v{TMP}, {f2u(-1e30)}, v{TMP}")
        for r in range(16): I(f"v_sub_f32 v{NM+r}, 0, v{TMP}")
        for r in range(16): I(f"v_sub_f32 v{S[0]+r}, v{S[0]+r}, v{TMP}")
        stream([lambda i=i: mf_qk(1, i, R[8+i][1]) for i in range(8)],
               [(0, 1, [R[15][0]]), (0, 8, sm_ops(0))])
        I(f"v_mov_b32 v{LRUN}, v{LU}")
        assert self.ring_n % NR == 0
        for r in range(16): I(f"v_mov_b32 v{RING+16+r}, 0")
        for r in range(4): I(f"v_mov_b32 v{PP[1]+4+r}, 0")
        tailh = [{"reg": RING + 4*(4+i)} for i in range(4)]
        I(f"v_xor_b32 v{VK}, 0x8000, v{VK}")
        I(f"v_xor_b32 v{VV}, 0x8000, v{VV}")
        sync_point()
        self.stamp(9, dyn=SPASS)
        I(f"s_cmp_eq_u32 s{ST}, s{SN}")
        I(f"s_cbranch_scc1 {LDRAIN}")
        a.L(LLOOP)
        self.ring_n = 0
        R = ([rd("k", 0, i) for i in range(8)] + [rd("v", 0, i) for i in range(8)] +
             [rd("k", 1, i) for i in range(8)] + [rd("v", 1, i) for i in range(8)])
        rf = [f for f, h in R]
        for f in rf[0:4]: f()
        next_ko()
        D = dma4(SKM, SKO) + dma4(SVM, SVO)
        mfs = [lambda i=i: mf_pv(1, 4+i, tailh[i]) for i in range(4)]
        mfs += [lambda i=i: mf_qk(0, i, R[i][1]) for i in range(8)] + [lambda i=i: mf_pv(0, i, R[8+i][1]) for i in range(8)]
        stream(mfs, [(1, 20, rf[4:23]), (0, 8, D), (4, 20, sm_ops(1))])
        check(1)
        lm = a.label("NOMASKB")
        I(f"s_cmp_lg_u32 s{ST}, s{SN}")
        I(f"s_cbranch_scc1 {lm}")
        mask(0, 0)
        a.L(lm)
        mfs = [lambda i=i: mf_qk(1, i, R[16+i][1]) for i in range(8)] + [lambda i=i: mf_pv(1, i, R[24+i][1]) for i in range(4)]
        stream(mfs, [(0, 9, rf[23:32]), (0, 12, sm_ops(0))])
        assert [R[28+i][1]["reg"] for i in range(4)] == [h["reg"] for h in tailh]
        check(0, tail=True)
        I(f"v_xor_b32 v{VK}, 0x8000, v{VK}")
        I(f"v_xor_b32 v{VV}, 0x8000, v{VV}")
        sync_point()
        I(f"s_cmp_lg_u32 s{ST}, s{SN}")
        I(f"s_cbranch_scc1 {LLOOP}")
        a.L(LDRAIN)
        self.stamp(10, dyn=SPASS)
        self.ring_n = 0
        R = [rd("v", 0, i) for i in range(8)] + [rd("v", 1, i) for i in range(8)]
        rf = [f for f, h in R]
        for f in rf[0:4]: f()
        I(f"s_mov_b32 s54, s{SBLK}")
        I(f"s_sub_u32 s{SBLK}, 15, s{SIDX}")
        loadq()
        mask(1, 1)
        mfs = [lambda i=i: mf_pv(1, 4+i, tailh[i]) for i in range(4)] + [lambda i=i: mf_pv(0, i, R[i][1]) for i in range(8)]
        stream(mfs, [(1, 12, rf[4:15]), (4, 12, sm_ops(1))])
        check(1)
        stream([lambda i=i: mf_pv(1, i, R[8+i][1]) for i in range(8)], [(0, 1, rf[15:16])])
        self.stamp(11, dyn=SPASS)
        I(f"v_mov_b32 v{TMP}, v{LRUN}")
        I(f"v_permlane32_swap_b32 v{TMP}, v{LRUN}")
        I(f"v_add_f32 v{NM+1}, v{TMP}, v{LRUN}")
        I(f"v_lshrrev_b32 v{TMP}, 1, v{VL16}")
        I(f"s_lshl_b32 s44, s{SW}, 9")
        I(f"s_add_u32 s44, s44, {ML}")
        I(f"v_add_u32 v{TMP}, s44, v{TMP}")
        I(f"ds_write_b64 v{TMP}, {v(NM,2)}"); lg.issue()
        I(f"v_xor_b32 v{TMP}, 0x800, v{TMP}")
        I(f"s_and_b32 s44, s{SKM}, 0x8000")
        I(f"s_and_b32 s45, s{SVM}, 0x18000")
        I(f"s_lshl_b32 s46, s{SR}, 13")
        I("s_add_u32 s44, s44, s46")
        I("s_add_u32 s45, s45, s46")
        I(f"s_cmp_eq_u32 s{SG}, 0")
        I("s_cselect_b32 s46, s44, s45")
        I("s_cselect_b32 s47, s45, s44")
        I(f"v_add_u32 v{TMP+1}, s46, v{VL16}")
        I(f"v_add_u32 v{TMP+2}, s47, v{VL16}")
        I(f"s_lshl_b32 s54, s54, 2")
        I(f"s_add_u32 s54, s54, s{SR}")
        I("s_lshl_b32 s54, s54, 5")
        I(f"s_add_u32 s54, s54, s{SHEAD}")
        I("s_lshl_b32 s54, s54, 13")
        I(f"s_lshl_b32 s44, s{SG}, 12")
        I("s_add_u32 s54, s54, s44")
        I(f"s_add_u32 s54, s54, {CTX_OFF}")
        lg1 = a.label("MG1"); lj = a.label("MGJ")
        I(f"s_cmp_eq_u32 s{SG}, 1")
        I(f"s_cbranch_scc1 {lg1}")
        save = (vm.issued, vm.done, lg.issued, lg.done)
        PR = 64
        for g in (0, 1):
            if g:
                a.L(lg1); vm.issued, vm.done, lg.issued, lg.done = save
            own = O + 32*g; snd = O + 32*(1-g)
            for i in range(8):
                I(f"ds_write_b128 v{TMP+1}, {v(snd+4*i,4)} offset:{1024*i}"); lg.issue()
            lg.wait(lg.issued)
            self.barrier()
            I(f"ds_read_b64 {v(96,2)}, v{TMP}"); t0 = lg.issue()
            tk = []
            for i in range(8):
                I(f"ds_read_b128 {v(PR+4*i,4)}, v{TMP+2} offset:{1024*i}"); tk.append(lg.issue())
            lg.wait(t0)
            I(f"v_min_f32 v98, v{NM}, v96")
            I(f"v_sub_f32 v99, v98, v{NM}")
            I(f"v_sub_f32 v100, v98, v96")
            I("v_exp_f32 v99, v99")
            I("v_exp_f32 v100, v100")
            I(f"v_mul_f32 v101, v99, v{NM+1}")
            I("v_fmac_f32 v101, v100, v97")
            I("v_rcp_f32 v101, v101")
            I("v_mul_f32 v99, v99, v101")
            I("v_mul_f32 v100, v100, v101")
            for i in range(32): I(f"v_mul_f32 v{own+i}, v{own+i}, v99")
            for q in range(4):
                lg.wait(tk[2*q+1])
                for i in range(8*q, 8*q+8): I(f"v_fmac_f32 v{own+i}, v{PR+i}, v100")
                for i in range(4): I(f"v_cvt_pk_bf16_f32 v{PR+8*q+i}, v{own+8*q+2*i}, v{own+8*q+2*i+1}")
                I(f"buffer_store_dwordx4 {v(PR+8*q,4)}, v{VL16}, s[{RWS}:{RWS+3}], s54 offen offset:{1024*q}{self.st}"); vm.issue()
            if not g: I(f"s_branch {lj}")
        a.L(lj)
        I(f"s_add_u32 s{SPASS}, s{SPASS}, 1")
        I(f"s_cmp_eq_u32 s{SPASS}, 1")
        I(f"s_cbranch_scc1 {LBLK}")
        ldone = a.label("ATTDONE")
        I(f"s_branch {ldone}")
        for (lr, lb, sb, tail) in rare:
            a.L(lr)
            I("s_waitcnt lgkmcnt(0)")
            if tail:
                for i in range(4): mf_pv(1, 4+i, tailh[i])
                for r in range(4): I(f"v_mov_b32 v{PP[1]+4+r}, 0")
            I("s_nop 15")
            rowmax(sb, TMP)
            I(f"v_max_f32 v{TMP}, 0, v{TMP}")
            I(f"v_exp_f32 v{TMP+1}, -v{TMP}")
            for r in range(16): I(f"v_sub_f32 v{NM+r}, v{NM+r}, v{TMP}")
            for r in range(16): I(f"v_sub_f32 v{S[0]+r}, v{S[0]+r}, v{TMP}")
            for r in range(16): I(f"v_sub_f32 v{S[1]+r}, v{S[1]+r}, v{TMP}")
            for r in range(64): I(f"v_mul_f32 v{O+r}, v{O+r}, v{TMP+1}")
            I(f"v_mul_f32 v{LRUN}, v{LRUN}, v{TMP+1}")
            for c in sm_ops(sb): c()
            I("s_nop 1")
            I(f"s_branch {lb}")
        a.L(ldone)
        self.stamp(7)

    def ssm(self):
        a = self.a; I = self.I; vm = self.vm; lg = self.lg
        RBUF = 32768
        ACC = 64; FR = 96
        VL16, VA, VB, T = 6, 4, 5, 12
        SC, SJ, SB, SCH = 32, 33, 34, 35
        self.stamp(0 if self.o.get("only_ssm") else 1)
        self.srd(RA, "ssmk", 2*MB)
        I(f"s_lshl_b32 s40, s2, 2")
        I(f"s_load_dword s41, s[{P['ssmD']}:{P['ssmD']+1}], s40")
        I(f"s_lshr_b32 s{SC}, s{SW}, 2")
        I(f"s_and_b32 s{SJ}, s{SW}, 3")
        I(f"s_mul_i32 s{SB}, s{SC}, 12288")
        I(f"s_lshl_b32 s{SCH}, s2, 1")
        I(f"s_add_u32 s{SCH}, s{SCH}, s{SC}")
        I(f"s_lshl_b32 s{SCH}, s{SCH}, 12")
        I(f"v_lshlrev_b32 v{VL16}, 4, v0")
        I(f"v_lshlrev_b32 v{T}, 6, v0")
        I(f"s_mul_i32 s42, s{SJ}, 1536")
        I(f"s_add_u32 s42, s42, s{SB}")
        I("s_add_u32 m0, s42, 512")
        I(f"s_lshl_b32 s43, s{SJ}, 4")
        I(f"s_add_u32 s43, s43, s{SCH}")
        I(f"s_add_u32 s43, s43, {KVT_OFF}")
        I(f"buffer_load_dwordx4 v{T}, s[{RWS}:{RWS+3}], s43 offen{self.ld} lds"); vm.issue()
        I(f"s_lshl_b32 s43, s{SJ}, 10")
        I(f"s_add_u32 s44, s43, s{SB}")
        I("s_add_u32 m0, s44, 6208")
        I(f"s_add_u32 s43, s43, s{SCH}")
        I(f"buffer_load_dwordx4 v{VL16}, s[{RA}:{RA+3}], s43 offen lds"); vm.issue()
        I(f"v_mov_b32 v{T+2}, 0"); I(f"v_mov_b32 v{T+3}, 0")
        I(f"v_lshl_add_u32 v{T+1}, v0, 3, s42")
        I(f"ds_write_b64 v{T+1}, {v(T+2,2)}"); lg.issue()
        I(f"v_and_b32 v{T+1}, 15, v0")
        I(f"v_lshl_add_u32 v{T+1}, v{T+1}, 2, s{SB}")
        I(f"ds_write_b32 v{T+1}, v{T+2} offset:6144"); lg.issue()
        I(f"v_and_b32 v{T}, 31, v0")
        I(f"v_lshrrev_b32 v{T+1}, 5, v0")
        I(f"s_lshl_b32 s43, s{SJ}, 9")
        I(f"s_add_u32 s43, s43, s{SB}")
        I("s_add_u32 s43, s43, 6162")
        I(f"v_lshl_add_u32 v{VA}, v{T}, 1, s43")
        I(f"v_lshlrev_b32 v{T+2}, 4, v{T+1}")
        I(f"v_sub_u32 v{VA}, v{VA}, v{T+2}")
        I(f"s_lshl_b32 s43, s{SJ}, 7")
        I(f"s_sub_u32 s43, s{SB}, s43")
        I("s_add_u32 s43, s43, 400")
        I(f"v_lshl_add_u32 v{VB}, v{T}, 4, s43")
        I(f"v_mul_u32_u24 v{T+2}, 1536, v{T+1}")
        I(f"v_add_u32 v{VB}, v{VB}, v{T+2}")
        for r in range(32): I(f"v_mov_b32 v{ACC+r}, 0")
        I("s_waitcnt vmcnt(0) lgkmcnt(0)"); vm.mark_all_done(); lg.mark_all_done()
        self.barrier()
        steps = [(dd, ks) for dd in range(8) for ks in range(2)]
        toks = {}
        def reads(n):
            dd, ks = steps[n]; b = FR + 16*(n & 3)
            L = []
            def r(k, reg, addr, off):
                def f():
                    I(f"ds_read_b128 {v(reg,4)}, v{addr} offset:{off}"); toks[(n, k)] = lg.issue()
                return f
            L.append(r(0, b, VA, 64*dd + 32*(1-ks)))
            L.append(r(1, b+4, VB, ks*3072 + (7-dd)*16))
            L.append(r(2, b+8, VB, ks*3072 + (7-dd)*16 + 512))
            L.append(r(3, b+12, VA, 64*dd + 32*(1-ks) + 2048))
            return L
        for n in range(2):
            for f in reads(n): f()
        for n in range(16):
            b = FR + 16*(n & 3)
            L = reads(n+2) if n + 2 < 16 else []
            lg.wait(toks[(n,1)])
            I(f"{MFMA} {v(ACC,16)}, {v(b,4)}, {v(b+4,4)}, {v(ACC,16)}")
            for f in L[0:2]: f()
            lg.wait(toks[(n,2)])
            I(f"{MFMA} {v(ACC+16,16)}, {v(b,4)}, {v(b+8,4)}, {v(ACC+16,16)}")
            for f in L[2:3]: f()
            lg.wait(toks[(n,3)])
            I(f"{MFMA} {v(ACC+16,16)}, {v(b+12,4)}, {v(b+4,4)}, {v(ACC+16,16)}")
            for f in L[3:4]: f()
        I(f"s_lshl_b32 s43, s{SW}, 13")
        I(f"s_add_u32 s43, s43, {RBUF}")
        I(f"v_add_u32 v{T+2}, s43, v{VL16}")
        for i in range(8):
            I(f"ds_write_b128 v{T+2}, {v(ACC+4*i,4)} offset:{1024*i}"); lg.issue()
        I(f"s_lshl_b32 s43, s{SC}, 15")
        I(f"s_lshl_b32 s44, s{SJ}, 11")
        I("s_add_u32 s43, s43, s44")
        I(f"s_add_u32 s43, s43, {RBUF}")
        I(f"v_add_u32 v{T+2}, s43, v{VL16}")
        I(f"s_and_b32 s43, s{SJ}, 1")
        I("s_mul_i32 s44, s43, 3072")
        I(f"s_lshr_b32 s45, s{SJ}, 1")
        I("s_lshl_b32 s46, s45, 9")
        I("s_add_u32 s44, s44, s46")
        I(f"s_add_u32 s44, s44, s{SB}")
        I("s_add_u32 s44, s44, 520")
        I(f"v_lshl_add_u32 v{T+3}, v{T}, 4, s44")
        I(f"v_lshlrev_b32 v{VA}, 3, v{T+1}")
        I(f"v_sub_u32 v{T+3}, v{T+3}, v{VA}")
        I(f"v_lshlrev_b32 v{VB}, 6, v{T}")
        I(f"v_lshl_add_u32 v{VB}, v{T+1}, 4, v{VB}")
        I("s_lshl_b32 s45, s45, 11")
        I("s_lshl_b32 s43, s43, 5")
        I("s_add_u32 s45, s45, s43")
        I(f"s_add_u32 s45, s45, s{SCH}")
        I(f"s_add_u32 s45, s45, {YT_OFF}")
        I("s_lshl_b32 s43, s41, 16")
        I("s_and_b32 s44, s41, 0xffff0000")
        I(f"s_cmp_eq_u32 s{SC}, 0")
        I("s_cselect_b32 s41, s43, s44")
        lg.wait(lg.issued)
        self.barrier()
        for p in range(4):
            for gq in range(2):
                I(f"ds_read_b128 {v(FR+8*p+4*gq,4)}, v{T+2} offset:{8192*p+1024*gq}"); lg.issue()
        for gq in range(2):
            I(f"ds_read_b64 {v(ACC+2*gq,2)}, v{T+3} offset:{1536*gq}"); lg.issue()
        lg.wait(lg.issued)
        for i in range(8):
            I(f"v_add_f32 v{FR+i}, v{FR+i}, v{FR+8+i}")
            I(f"v_add_f32 v{FR+16+i}, v{FR+16+i}, v{FR+24+i}")
        for i in range(8): I(f"v_add_f32 v{FR+i}, v{FR+i}, v{FR+16+i}")
        for gq in range(2):
            for r in range(4):
                srcr = ACC + 2*gq + (1 - (r >> 1))
                if r & 1: I(f"v_lshlrev_b32 v{ACC+8}, 16, v{srcr}")
                else:     I(f"v_and_b32 v{ACC+8}, 0xffff0000, v{srcr}")
                I(f"v_fma_f32 v{FR+4*gq+r}, v{ACC+8}, s41, v{FR+4*gq+r}")
        for i in range(4): I(f"v_cvt_pk_bf16_f32 v{ACC+12+i}, v{FR+2*i}, v{FR+2*i+1}")
        I(f"v_permlane32_swap_b32 v{ACC+12}, v{ACC+14}")
        I(f"v_permlane32_swap_b32 v{ACC+13}, v{ACC+15}")
        I(f"buffer_store_dwordx4 {v(ACC+12,4)}, v{VB}, s[{RWS}:{RWS+3}], s45 offen{self.st}"); vm.issue()
        self.stamp(2)

    def outp(self):
        a = self.a; I = self.I; vm = self.vm; lg = self.lg
        YT = 131072
        ACC = 192; CX = 128; WF = 96; DP = 6
        VL16, VOW, VWA, T = 6, 4, 8, 12
        XR, GR = 16, 20
        self.stamp(3)
        self.srd(RA, "wo", 4*MB); self.srd(RB, "q", 2*MB); self.srd(RC, "out", 2*MB)
        I(f"v_lshlrev_b32 v{VL16}, 4, v0")
        I(f"v_lshrrev_b32 v{T}, 3, v0")
        I(f"v_bfe_u32 v{T+1}, v0, 4, 1")
        I(f"v_lshlrev_b32 v{T+1}, 2, v{T+1}")
        I(f"v_and_b32 v{T+2}, 7, v0")
        I(f"v_xor_b32 v{T+1}, v{T+1}, v{T+2}")
        I(f"v_lshlrev_b32 v{T+1}, 4, v{T+1}")
        I(f"v_lshl_add_u32 v{VOW}, v{T}, 10, v{T+1}")
        I(f"s_lshl_b32 s32, s{SW}, 19")
        I(f"s_lshl_b32 s33, s{SIDX}, 7")
        I("s_add_u32 s32, s32, s33")
        I(f"s_lshl_b32 s34, s{SW}, 14")
        I(f"s_lshl_b32 s35, s{SHEAD}, 19")
        I(f"s_lshl_b32 s36, s{SW}, 15")
        I("s_add_u32 s35, s35, s36")
        I(f"s_add_u32 s35, s35, {CTX_OFF}")
        wtok = {}; ctok = {}
        def loads(i):
            for hh in range(2):
                I(f"s_add_u32 m0, s34, {(i%8)*2048 + hh*1024}")
                I(f"s_add_u32 s37, s32, {i*16384 + hh*8192}")
                I(f"buffer_load_dwordx4 v{VOW}, s[{RA}:{RA+3}], s37 offen lds"); wtok[i] = vm.issue()
            for st in range(2):
                I(f"s_add_u32 s37, s35, {st*262144 + (i//4)*4096}")
                I(f"buffer_load_dwordx4 {v(CX+8*(i%8)+4*st,4)}, v{VL16}, s[{RWS}:{RWS+3}], s37 offen offset:{(i%4)*1024}{self.ld}"); ctok[i] = vm.issue()
        for i in range(DP): loads(i)
        I(f"v_bfe_u32 v{T}, v0, 2, 2")
        I(f"v_lshrrev_b32 v{T+1}, 5, v0")
        I(f"v_lshl_add_u32 v{T+2}, v{T+1}, 2, v{T}")
        I(f"v_lshlrev_b32 v{T+2}, 7, v{T+2}")
        I(f"v_bfe_u32 v{T+3}, v0, 3, 1")
        I(f"v_lshl_add_u32 v{T+2}, v{T+3}, 6, v{T+2}")
        I(f"v_bfe_u32 v{T+3}, v0, 4, 1")
        I(f"v_lshl_add_u32 v{T+2}, v{T+3}, 5, v{T+2}")
        I(f"v_and_b32 v{T+3}, 3, v0")
        I(f"v_lshl_add_u32 v{T+2}, v{T+3}, 3, v{T+2}")
        I(f"v_add_u32 v{VWA}, s34, v{T+2}")
        I(f"v_xor_b32 v{VWA+1}, 64, v{VWA}")
        for r in range(64): I(f"v_mov_b32 v{ACC+r}, 0")
        rtok = {}
        def trreads(i):
            vm.wait(wtok[i])
            for mt in range(2):
                for hh in range(2):
                    I(f"ds_read_b64_tr_b16 {v(WF+8*(i&1)+4*mt+2*hh,2)}, v{VWA+mt} offset:{(i%8)*2048+hh*1024}"); rtok[(i,mt)] = lg.issue()
        trreads(0)
        for i in range(32):
            if i + DP < 32: loads(i + DP)
            if i + DP == 32:
                I(f"v_lshrrev_b32 v{T}, 3, v0")
                I(f"v_and_b32 v{T+1}, 7, v0")
                I(f"v_lshlrev_b32 v{T+1}, 4, v{T+1}")
                I(f"v_lshl_add_u32 v{T}, v{T}, 12, v{T+1}")
                I(f"s_add_u32 m0, s{SWK}, {YT}")
                I(f"s_lshl_b32 s37, s{SIDX}, 18")
                I(f"s_lshl_b32 s38, s{SW}, 15")
                I("s_add_u32 s37, s37, s38")
                I(f"s_lshl_b32 s38, s{SHEAD}, 7")
                I("s_add_u32 s37, s37, s38")
                I(f"s_add_u32 s37, s37, {YT_OFF}")
                I(f"buffer_load_dwordx4 v{T}, s[{RWS}:{RWS+3}], s37 offen{self.ld} lds"); vm.issue()
                I(f"v_and_b32 v{T+1}, 15, v0")
                I(f"s_lshr_b32 s38, s{SW}, 1")
                I("s_lshl_b32 s38, s38, 4")
                I(f"s_lshl_b32 s39, s{SHEAD}, 6")
                I("s_add_u32 s39, s39, s38")
                I(f"v_add_u32 v{T+1}, s39, v{T+1}")
                I(f"v_lshlrev_b32 v{T+2}, 2, v{T+1}")
                I(f"s_mov_b32 s40, {G_OFF}")
                I(f"buffer_load_dword v{GR}, v{T+2}, s[{RWS}:{RWS+3}], s40 offen{self.ld}"); vm.issue()
                I(f"v_lshrrev_b32 v{T+2}, 4, v0")
                I(f"v_lshlrev_b32 v{T+2}, 4, v{T+2}")
                I(f"v_lshl_add_u32 v10, v{T+1}, 10, v{T+2}")
                I(f"s_and_b32 s40, s{SW}, 1")
                I("s_lshl_b32 s40, s40, 6")
                I("s_add_u32 s40, s40, s33")
                I(f"buffer_load_dwordx4 {v(XR,4)}, v10, s[{RB}:{RB+3}], s40 offen"); vm.issue()
            if i + 1 < 32: trreads(i + 1)
            vm.wait(ctok[i])
            for mt in range(2):
                lg.wait(rtok[(i,mt)])
                for st in range(2):
                    d = v(ACC + 16*(2*mt+st), 16)
                    I(f"{MFMA} {d}, {v(WF+8*(i&1)+4*mt,4)}, {v(CX+8*(i%8)+4*st,4)}, {d}")
        self.stamp(4)
        I(f"v_and_b32 v{T}, 31, v0")
        I(f"v_lshrrev_b32 v{T+1}, 5, v0")
        I(f"v_and_b32 v{T+2}, 15, v0")
        I(f"v_xor_b32 v{T+1}, v{T+1}, v{T+2}")
        I(f"v_lshlrev_b32 v{T+1}, 4, v{T+1}")
        I(f"v_lshl_add_u32 v{T}, v{T}, 8, v{T+1}")
        I(f"v_add_u32 v{T}, s34, v{T}")
        for mt in range(2):
            for gq in range(4):
                I(f"v_xor_b32 v{T+1}, {(8*mt+2*gq)*16}, v{T}")
                for st in range(2):
                    I(f"ds_write_b128 v{T+1}, {v(ACC+16*(2*mt+st)+4*gq,4)} offset:{8192*st}"); lg.issue()
        I(f"v_lshrrev_b32 v{T}, 4, v0")
        I(f"s_and_b32 s41, s{SW}, 1")
        I("s_lshl_b32 s42, s41, 3")
        I(f"v_lshl_add_u32 v{T+1}, v{T}, 1, s42")
        I(f"v_xor_b32 v{T+1}, v{T+1}, v{T+2}")
        I(f"v_lshlrev_b32 v{T+1}, 4, v{T+1}")
        I(f"v_add_u32 v{T+3}, s38, v{T+2}")
        I(f"v_lshl_add_u32 v24, v{T+3}, 8, v{T+1}")
        I("v_xor_b32 v25, 16, v24")
        I("v_add_u32 v26, 0x10000, v24")
        I("v_add_u32 v27, 0x10000, v25")
        I("s_lshl_b32 s42, s41, 5")
        I(f"v_lshl_add_u32 v{T}, v{T}, 3, s42")
        I(f"v_bfe_u32 v{T+1}, v0, 2, 2")
        I(f"v_add_u32 v{T}, v{T}, v{T+1}")
        I(f"v_lshlrev_b32 v{T}, 7, v{T}")
        I(f"v_and_b32 v{T+1}, 3, v0")
        I(f"v_lshl_add_u32 v{T}, v{T+1}, 3, v{T}")
        I("s_lshl_b32 s42, s38, 1")
        I(f"s_add_u32 s42, s42, {YT}")
        I(f"v_add_u32 v28, s42, v{T}")
        I("s_waitcnt vmcnt(0) lgkmcnt(0)"); vm.mark_all_done(); lg.mark_all_done()
        self.barrier()
        tk = []
        I(f"ds_read_b64_tr_b16 {v(32,2)}, v28"); lg.issue()
        I(f"ds_read_b64_tr_b16 {v(34,2)}, v28 offset:512"); ty = lg.issue()
        for p in range(8):
            for hh in range(2):
                I(f"ds_read_b128 {v(CX+8*p+4*hh,4)}, v{24+hh+2*(p>>2)} offset:{16384*(p&3)}")
                lg.issue()
            tk.append(lg.issued)
            if p == 5:
                lg.wait(ty)
                for e in range(8):
                    if e & 1:
                        I(f"v_and_b32 v36, 0xffff0000, v{XR+(e>>1)}"); I(f"v_and_b32 v37, 0xffff0000, v{32+(e>>1)}")
                    else:
                        I(f"v_lshlrev_b32 v36, 16, v{XR+(e>>1)}"); I(f"v_lshlrev_b32 v37, 16, v{32+(e>>1)}")
                    I(f"v_mul_f32 v{40+e}, v36, v37")
                    I(f"v_mul_f32 v{40+e}, v{40+e}, v{GR}")
                I(f"v_sub_f32 v{GR}, 1.0, v{GR}")
        for p in range(1, 8):
            lg.wait(tk[p])
            for e in range(8): I(f"v_add_f32 v{CX+e}, v{CX+e}, v{CX+8*p+e}")
        for e in range(8): I(f"v_fmac_f32 v{40+e}, v{CX+e}, v{GR}")
        for e in range(4): I(f"v_cvt_pk_bf16_f32 v{36+e}, v{40+2*e}, v{40+2*e+1}")
        I(f"buffer_store_dwordx4 {v(36,4)}, v10, s[{RC}:{RC+3}], s40 offen"); vm.issue()
        self.stamp(5)

def kd(kname):
    return f""".amdhsa_kernel {kname}
  .amdhsa_next_free_vgpr 256
  .amdhsa_next_free_sgpr 102
  .amdhsa_accum_offset 256
  .amdhsa_group_segment_fixed_size 0
  .amdhsa_kernarg_size 128
  .amdhsa_user_sgpr_count 2
  .amdhsa_user_sgpr_kernarg_segment_ptr 1
  .amdhsa_system_sgpr_workgroup_id_x 1
.end_amdhsa_kernel
"""

def build(kernels, opts):
    g = G(opts)
    for kname, lds, phases in kernels:
        g.begin(kname)
        for ph in phases: getattr(g, ph)()
        g.end()
    n = g.a.fix_hazards()
    head = "".join(f"; @launch kernel={k} grid=(256,1,1) block=(512,1,1) lds={lds}\n" for k, lds, _ in kernels)
    txt = head + '.amdgcn_target "amdgcn-amd-amdhsa--gfx950"\n.text\n' + g.a.text()
    txt += '.section .rodata,"a"\n'
    for k, _, _ in kernels: txt += ".p2align 6\n" + kd(k)
    ninstr = sum(1 for it in g.a.items if it[0] == "i")
    print(f"instructions {ninstr}, nops inserted {n}", file=sys.stderr)
    return txt

if __name__ == "__main__":
    out = sys.argv[1]
    kernels = [("ka_kernel", 131072 + 64*144, ["proj"]), ("kb_kernel", 131072 + 4096, ["attn"]),
               ("kc_kernel", 98304, ["ssm"]), ("kd_kernel", 131072 + 8192, ["outp"])]
    opts = {x: True for x in sys.argv[2:]}
    open(out, "w").write(build(kernels, opts))
```

```python
import sys, math, struct
sys.path.insert(0, "gen")
from asmlib import *

NAME = "gated_mix__ssm_conv_h3__compressed_kv_cla__prompt"
MB = 1 << 20
KV_OFF, Q_OFF, CTX_OFF, KVT_OFF, YT_OFF, G_OFF = 0, 32*MB, 48*MB, 64*MB, 66*MB, 68*MB
FLG_OFF = 68*MB + 65536
FK_OFF, FC_OFF, FY_OFF = FLG_OFF, FLG_OFF + 4096, FLG_OFF + 6144
STAMP_OFF = 69*MB
WS_SIZE = 70*MB
P = dict(q=64, k=66, v=68, shift=70, ssmk=72, ssmD=74, bx=76, ckv=78, wq=80, wuk=82, wuv=84, wo=86, gate=88, out=90, dbg=92, ws=94)
SW, SHEAD, SIDX, SWK, SF = 3, 4, 5, 6, 7
RA, RB, RC, RWS, RD, RE, RT, RDBG = 8, 12, 16, 20, 24, 28, 56, 60
MFMA = "v_mfma_f32_32x32x16_bf16"
LOG2E = 1.4426950408889634
F_KV, F_CA, F_CB, F_Y = 1, 2, 4, 8
def f2u(x): return "0x%08x" % struct.unpack("<I", struct.pack("<f", x))[0]
def rep4(b): return b * 0x01010101

class G:
    def __init__(self, opts):
        self.a = Asm(); self.o = opts
        self.vm = Cnt(self.a, "vmcnt", 63); self.lg = Cnt(self.a, "lgkmcnt", 15)
        self.st = "" if opts.get("plainst") else " sc1"; self.ld = "" if opts.get("plainld") else " sc1"
    def I(self, t): self.a.I(t)
    def srd(self, r, ptr, nbytes):
        I = self.I
        I(f"s_mov_b32 s{r}, s{P[ptr]}"); I(f"s_mov_b32 s{r+1}, s{P[ptr]+1}")
        I(f"s_mov_b32 s{r+2}, {nbytes}"); I(f"s_mov_b32 s{r+3}, 0x00020000")
    def save(self): return (self.vm.issued, self.vm.done, self.lg.issued, self.lg.done)
    def restore(self, s_): self.vm.issued, self.vm.done, self.lg.issued, self.lg.done = s_
    def stream(self, mf, fills):
        n = len(mf); slots = [[] for _ in range(n + 1)]
        for (s0, e0, cl) in fills:
            m = e0 - s0
            for j, c in enumerate(cl): slots[s0 + 1 + (j * m) // len(cl)].append(c)
        for c in slots[0]: c()
        for i in range(n):
            mf[i]()
            for c in slots[i+1]: c()
    def stamp(self, i, dyn=None):
        if not self.o.get("stamp"): return
        I = self.I
        I("s_memrealtime s[96:97]"); I("s_memtime s[100:101]")
        I("s_lshl_b32 s98, s2, 3"); I(f"s_add_u32 s98, s98, s{SW}"); I("s_lshl_b32 s98, s98, 8")
        I(f"s_add_u32 s98, s98, {STAMP_OFF + 4*i}")
        if dyn is not None:
            I(f"s_lshl_b32 s99, s{dyn}, 4"); I("s_add_u32 s98, s98, s99")
        I("s_waitcnt lgkmcnt(0)")
        I("v_mov_b32 v2, s96"); I("v_mov_b32 v3, 0")
        I(f"buffer_store_dword v2, v3, s[{RWS}:{RWS+3}], s98 offen")
        I("v_mov_b32 v2, s100")
        I(f"buffer_store_dword v2, v3, s[{RWS}:{RWS+3}], s98 offen offset:128")
    OOB = 0x40000000
    def publish(self, soff, val=1, srd=RWS, byte=False):
        I = self.I
        self.oob_sel()
        I(f"v_mov_b32 v2, {val}"); I("v_mov_b32 v3, s99")
        I(f"buffer_store_{'byte' if byte else 'dword'} v2, v3, s[{srd}:{srd+3}], s{soff} offen sc1"); self.vm.issue()
    def oob_sel(self):
        self.I(f"s_cmp_eq_u32 s{SW}, 0"); self.I(f"s_cselect_b32 s99, 0, {self.OOB}")
    def poll_issue(self, vd, vaddr, soff, srd=RWS):
        self.I(f"buffer_load_dword v{vd}, v{vaddr}, s[{srd}:{srd+3}], {soff} offen sc1"); return self.vm.issue()
    def poll_check(self, vd, vaddr, soff, want, srd=RWS):
        a = self.a; I = self.I
        l = a.label("PCK"); lp = a.label("POLL")
        I(f"s_mov_b32 s98, {want}"); I("s_mov_b32 s99, 20000")
        a.L(lp)
        I(f"v_and_b32 v{vd}, s98, v{vd}"); I(f"v_cmp_ne_u32 vcc, s98, v{vd}"); I(f"s_cbranch_vccz {l}")
        I("s_sleep 2")
        I(f"buffer_load_dword v{vd}, v{vaddr}, s[{srd}:{srd+3}], {soff} offen sc1")
        I("s_sub_u32 s99, s99, 1"); I("s_cmp_lg_u32 s99, 0"); I("s_waitcnt vmcnt(0)"); I(f"s_cbranch_scc1 {lp}")
        a.L(l)
    def barrier(self): self.I("s_barrier")
    def sync_all(self):
        self.I("s_waitcnt vmcnt(0) lgkmcnt(0)"); self.vm.mark_all_done(); self.lg.mark_all_done(); self.barrier()

    def begin(self, kname):
        a = self.a; I = self.I
        a.T(f".globl {kname}\n.p2align 8\n.type {kname},@function"); a.L(kname)
        self.endl = a.label("END")
        I("s_load_dwordx16 s[64:79], s[0:1], 0"); I("s_load_dwordx16 s[80:95], s[0:1], 64")
        I("s_cmp_ge_u32 s2, 256"); I(f"s_cbranch_scc1 {self.endl}")
        I("v_lshrrev_b32 v1, 6, v0"); I("v_and_b32 v0, 63, v0"); I(f"v_readfirstlane_b32 s{SW}, v1")
        I("s_and_b32 s7, s2, 7"); I("s_lshl_b32 s7, s7, 2")
        I(f"s_lshr_b32 s{SIDX}, s2, 3"); I(f"s_lshr_b32 s{SHEAD}, s{SIDX}, 3"); I(f"s_add_u32 s{SHEAD}, s{SHEAD}, s7")
        I(f"s_and_b32 s{SIDX}, s{SIDX}, 7"); I(f"s_lshl_b32 s{SWK}, s{SW}, 10")
        I(f"s_lshl_b32 s{SF}, s{SHEAD}, 3"); I(f"s_add_u32 s{SF}, s{SF}, s{SIDX}")
    def end(self):
        self.a.L(self.endl); self.I("s_endpgm")

    def proj(self):
        a = self.a; I = self.I; vm = self.vm; lg = self.lg
        PREP = 114688; QA_LDS = 65536
        ACCS = [64, 128]
        FX = [16, 32]; FW = [24, 40]
        VXA = 4; VWA = 8; VOX, VOW = 10, 11; VST = 12; VXH = 48
        T = 192
        I("v_lshrrev_b32 v13, 3, v0"); I(f"s_lshl_b32 s40, s{SW}, 3"); I("v_add_u32 v13, s40, v13"); I("v_lshlrev_b32 v13, 10, v13")
        I("v_lshrrev_b32 v14, 4, v0"); I(f"s_and_b32 s40, s{SW}, 1"); I("s_lshl_b32 s40, s40, 2"); I("v_add_u32 v15, s40, v14")
        I("v_and_b32 v3, 7, v0"); I("v_xor_b32 v15, v15, v3"); I(f"v_lshl_add_u32 v{VOX}, v15, 4, v13")
        I(f"s_lshl_b32 s40, s{SW}, 2"); I("v_add_u32 v13, s40, v14"); I("v_lshlrev_b32 v13, 13, v13")
        I("v_lshlrev_b32 v15, 2, v14"); I("v_and_b32 v3, 15, v0"); I("v_xor_b32 v15, v15, v3")
        I("v_lshl_add_u32 v13, v15, 4, v13"); I(f"s_lshl_b32 s40, s{SHEAD}, 8"); I(f"v_add_u32 v{VOW}, s40, v13")
        I(f"v_lshlrev_b32 v{VST}, 4, v0")
        I(f"s_lshl_b32 s44, s{SIDX}, 18")
        for i in range(1, 4): I(f"s_add_u32 s{44+i}, s44, {65536*i}")
        I("s_waitcnt lgkmcnt(0)")
        self.srd(RA, "ckv", 2*MB); self.srd(RB, "wuk", 4*MB)
        def xbase(t): return (32768, 131072, 0)[t % 3]
        def wbase(t): return 65536 + (t % 3)*16384
        def dma_list(t):
            L = []
            if t > 23: return L
            ph, tt = t >> 3, t & 7
            for i in range(2):
                def f(i=i):
                    I(f"s_add_u32 m0, s{SWK}, {wbase(t) + i*8192}"); I(f"s_mov_b32 s41, {tt*524288 + i*262144}")
                    r = (RB, RC, RE)[ph]
                    I(f"buffer_load_dwordx4 v{VOW}, s[{r}:{r+3}], s41 offen lds"); vm.issue()
                L.append(f)
            for i in range(4):
                def f(i=i):
                    I(f"s_add_u32 m0, s{SWK}, {xbase(t) + i*8192}"); I(f"s_add_u32 s41, s{(48 if ph == 2 else 44)+i}, {tt*128}")
                    r = RD if ph == 2 else RA
                    I(f"buffer_load_dwordx4 v{VOX}, s[{r}:{r+3}], s41 offen lds"); vm.issue()
                L.append(f)
            return L
        dtok = {}
        for t in range(3):
            for f in dma_list(t): f()
            dtok[t] = vm.issued
        self.srd(RWS, "ws", WS_SIZE); self.srd(RDBG, "dbg", 256); self.srd(RC, "wuv", 4*MB)
        self.stamp(0)
        I(f"s_lshl_b32 s48, s{SIDX}, 17"); I("s_add_u32 s49, s48, 65536")
        I(f"s_sub_u32 s50, 15, s{SIDX}"); I("s_lshl_b32 s50, s50, 17"); I("s_add_u32 s51, s50, 65536")
        I(f"s_and_b32 s42, s{SW}, 3"); I("s_lshl_b32 s42, s42, 6"); I(f"s_lshr_b32 s43, s{SW}, 2"); I("s_lshl_b32 s43, s43, 1")
        I("v_and_b32 v13, 31, v0"); I("v_add_u32 v13, s42, v13")
        I("v_lshrrev_b32 v14, 1, v13"); I("v_and_b32 v14, 7, v14"); I("v_lshrrev_b32 v15, 5, v0")
        I("v_xor_b32 v14, v14, v15"); I("v_lshlrev_b32 v14, 4, v14"); I(f"v_lshl_add_u32 v{VXA}, v13, 7, v14")
        for k in range(1, 4): I(f"v_xor_b32 v{VXA+k}, {k<<5}, v{VXA}")
        for k in range(4): I(f"v_add_u32 v{VXH+k}, 0x20000, v{VXA+k}")
        I("v_bfe_u32 v13, v0, 2, 2"); I("v_lshl_add_u32 v14, v15, 3, v13"); I("v_lshlrev_b32 v14, 8, v14")
        I("v_bfe_u32 v15, v0, 4, 1"); I("v_lshl_add_u32 v14, v15, 5, v14")
        I("v_and_b32 v15, 3, v0"); I("v_lshl_add_u32 v14, v15, 3, v14"); I("v_add_u32 v14, 0x10000, v14")
        I("v_xor_b32 v13, s43, v13"); I(f"v_lshl_add_u32 v{VWA}, v13, 6, v14"); I(f"v_xor_b32 v{VWA+1}, 64, v{VWA}")
        I(f"s_lshl_b32 s54, s{SHEAD}, 4"); I(f"s_lshl_b32 s55, s{SIDX}, 1"); I("s_add_u32 s54, s54, s55")
        I(f"s_bfe_u32 s55, s{SW}, 0x10001"); I("s_add_u32 s54, s54, s55"); I("s_lshl_b32 s54, s54, 16")
        I(f"s_and_b32 s55, s{SW}, 1"); I("s_lshl_b32 s55, s55, 14"); I("s_add_u32 s54, s54, s55")
        I("s_lshl_b32 s55, s43, 10"); I("s_add_u32 s52, s54, s55"); I("s_add_u32 s52, s52, 0x8000")
        I("s_lshl_b32 s55, s43, 11"); I("s_add_u32 s54, s54, s55")

        KR = T + 4; VR = T + 11; SH = T + 16; XG = T + 20; GW = T + 24
        def prep_loads():
            L = []; E = lambda t: L.append(lambda: I(t))
            def V(t):
                def f(): I(t); vm.issue()
                L.append(f)
            E(f"s_lshl_b32 s40, s{SHEAD}, 7"); E(f"s_lshl_b32 s39, s{SIDX}, 2"); E("s_add_u32 s40, s40, s39"); E(f"s_add_u32 s40, s40, {FK_OFF}")
            E(f"v_mov_b32 v2, s40")
            E(f"s_lshl_b32 s40, s{SIDX}, 7"); E(f"s_lshl_b32 s39, s{SHEAD}, 2"); E("s_add_u32 s40, s40, s39"); E(f"s_add_u32 s40, s40, {FC_OFF}")
            E("v_writelane_b32 v2, s40, 1")
            E(f"s_sub_u32 s40, 15, s{SIDX}"); E("s_lshl_b32 s40, s40, 7"); E("s_add_u32 s40, s40, s39"); E(f"s_add_u32 s40, s40, {FC_OFF}")
            E("v_writelane_b32 v2, s40, 2")
            E(f"s_lshl_b32 s40, s{SF}, 2"); E(f"s_add_u32 s40, s40, {FY_OFF}"); E("v_writelane_b32 v2, s40, 3"); E("v_mov_b32 v3, 0")
            L.append(self.oob_sel); E("v_add_u32 v2, s99, v2")
            V(f"buffer_store_dword v3, v2, s[{RWS}:{RWS+3}], 0 offen sc1")
            E("s_lshr_b32 s32, s2, 3"); E("s_and_b32 s33, s2, 7"); E("s_lshl_b32 s34, s32, 6")
            E(f"s_lshl_b32 s35, s{SW}, 3"); E("s_add_u32 s35, s35, s34")
            E("v_lshrrev_b32 v13, 5, v0"); E("v_and_b32 v14, 31, v0"); E("v_lshl_add_u32 v15, v13, 2, s35"); E("v_lshlrev_b32 v15, 10, v15")
            E("s_lshl_b32 s36, s33, 7"); E("v_lshl_add_u32 v14, v14, 2, s36"); E(f"v_add_u32 v{T}, v15, v14")
            for i in range(3): E(f"v_subrev_u32 v{T+1+i}, {3072-1024*i}, v{T}")
            E("v_lshlrev_b32 v14, 2, v14")
            E("s_lshl_b32 s37, s2, 3"); E(f"s_add_u32 s37, s37, s{SW}"); E("s_lshl_b32 s38, s37, 10")
            L.append(lambda: self.srd(RD, "k", 2*MB)); L.append(lambda: self.srd(RE, "v", 2*MB)); L.append(lambda: self.srd(RT, "shift", 4096))
            for i in range(3): V(f"buffer_load_dword v{KR+i}, v{T+1+i}, s[{RD}:{RD+3}], 0 offen")
            for i in range(4): V(f"buffer_load_dword v{KR+3+i}, v{T}, s[{RD}:{RD+3}], 0 offen offset:{1024*i}")
            for i in range(4): V(f"buffer_load_dword v{VR+i}, v{T}, s[{RE}:{RE+3}], 0 offen offset:{1024*i}")
            V(f"buffer_load_dwordx4 {v(SH,4)}, v14, s[{RT}:{RT+3}], 0 offen")
            L.append(lambda: self.srd(RD, "q", 2*MB)); L.append(lambda: self.srd(RE, "wq", 4*MB)); L.append(lambda: self.srd(RT, "gate", 1024))
            V(f"buffer_load_dwordx4 {v(XG,4)}, v{VST}, s[{RD}:{RD+3}], s38 offen")
            V(f"buffer_load_dwordx4 {v(GW,4)}, v{VST}, s[{RT}:{RT+3}], 0 offen")
            return L
        def prep_ops():
            L = []; E = lambda t: L.append(lambda: I(t))
            KU = T + 28; SU = T + 36; O = T + 40; VU = T + 44; PK = T + 46
            E("v_lshrrev_b32 v14, 5, v0"); E("v_and_b32 v15, 31, v0"); E("v_mul_u32_u24 v13, 288, v15")
            E("v_xor_b32 v14, 1, v14"); E("v_lshl_add_u32 v13, v14, 3, v13")
            E(f"s_lshl_b32 s40, s{SW}, 4"); E(f"s_add_u32 s40, s40, {PREP}"); E("v_add_u32 v13, s40, v13")
            for c in range(2):
                def unp(d, sreg, half): E(f"v_lshlrev_b32 v{d}, 16, v{sreg}" if half == 0 else f"v_and_b32 v{d}, 0xffff0000, v{sreg}")
                for i in range(7): unp(KU+i, KR+i, c)
                for j in range(4): unp(SU+j, SH + 2*c + (j >> 1), j & 1)
                for o in range(4):
                    E(f"v_mul_f32 v{O+o}, v{KU+o}, v{SU+3}")
                    for j in (2, 1, 0): E(f"v_fmac_f32 v{O+o}, v{KU+o+3-j}, v{SU+j}")
                    unp(VU, VR+o, c)
                    E(f"v_mul_f32 v{O+o}, v{O+o}, v{VU}")
                E(f"v_cvt_pk_bf16_f32 v{PK}, v{O+3}, v{O+2}"); E(f"v_cvt_pk_bf16_f32 v{PK+1}, v{O+1}, v{O}")
                def w(PK=PK, c=c):
                    I(f"ds_write_b64 v13, {v(PK,2)} offset:{144*c}"); lg.issue()
                L.append(w); PK += 2
            Z = T + 52
            E(f"v_dot2_f32_bf16 v{Z}, v{XG}, v{GW}, 0")
            for i in range(1, 4): E(f"v_dot2_f32_bf16 v{Z}, v{XG+i}, v{GW+i}, v{Z}")
            for m in ("quad_perm:[1,0,3,2] row_mask:0xf", "quad_perm:[2,3,0,1] row_mask:0xf", "row_half_mirror row_mask:0xf", "row_mirror row_mask:0xf",
                      "row_bcast:15 row_mask:0xa", "row_bcast:31 row_mask:0xc"):
                E(f"v_add_f32_dpp v{Z}, v{Z}, v{Z} {m} bank_mask:0xf")
            E(f"v_readlane_b32 s40, v{Z}, 63"); E(f"v_mov_b32 v{Z+1}, {f2u(-LOG2E)}"); E(f"v_mul_f32 v{Z}, s40, v{Z+1}")
            E(f"v_exp_f32 v{Z}, v{Z}"); E(f"v_add_f32 v{Z}, 1.0, v{Z}"); E(f"v_rcp_f32 v{Z}, v{Z}")
            E("s_lshl_b32 s38, s37, 2"); E(f"s_add_u32 s38, s38, {G_OFF}"); E(f"v_mov_b32 v{Z+1}, 0")
            def gs():
                I(f"buffer_store_dword v{Z}, v{Z+1}, s[{RWS}:{RWS+3}], s38 offen{self.st}"); vm.issue()
            L.append(gs)
            return L
        def prep_out():
            L = []; E = lambda t: L.append(lambda: I(t)); h = {}
            E("v_lshrrev_b32 v13, 3, v0"); E(f"s_lshl_b32 s40, s{SW}, 3"); E("v_add_u32 v13, s40, v13")
            E("v_and_b32 v14, 7, v0"); E("v_lshlrev_b32 v14, 4, v14"); E("v_mul_u32_u24 v15, 144, v13")
            E("v_add_u32 v15, v15, v14"); E(f"v_add_u32 v15, {PREP}, v15")
            def r():
                I(f"ds_read_b128 {v(T,4)}, v15"); h["t"] = lg.issue()
            L.append(r)
            E("v_lshl_add_u32 v13, v13, 12, v14"); E("s_lshl_b32 s38, s33, 18"); E("s_lshl_b32 s39, s34, 1")
            E("s_add_u32 s38, s38, s39"); E(f"s_add_u32 s38, s38, {KVT_OFF}")
            def st():
                lg.wait(h["t"])
                I(f"buffer_store_dwordx4 {v(T,4)}, v13, s[{RWS}:{RWS+3}], s38 offen{self.st}"); h["st"] = vm.issue()
            L.append(st)
            return L, h
        def reads(t, k):
            st = k & 1; toks = {}
            xb = xbase(t); va = VXA if xb < 65536 else VXH
            def rx(mt):
                I(f"ds_read_b128 {v(FX[st]+4*mt,4)}, v{va+k} offset:{(xb & 65535)+mt*4096}"); toks[("x",mt)] = lg.issue()
            def rw(dt, h):
                I(f"ds_read_b64_tr_b16 {v(FW[st]+4*dt+2*h,2)}, v{VWA+dt} offset:{wbase(t)-65536+k*4096+h*1024}"); toks[("w",dt)] = lg.issue()
            return [lambda: rx(0), lambda: rw(0,0), lambda: rw(0,1), lambda: rw(1,0), lambda: rw(1,1), lambda: rx(1)], toks
        def mfs(t, k, toks):
            st = k & 1; L = []; ph = t >> 3; acc = ACCS[ph & 1]; first = (t & 7) == 0 and k == 0
            for mt in range(2):
                for dt in range(2):
                    def f(mt=mt, dt=dt):
                        lg.wait(max(toks[("x",mt)], toks[("w",dt)]))
                        d = v(acc + 16*(2*mt+dt), 16); X = v(FX[st]+4*mt,4); W = v(FW[st]+4*dt,4)
                        c = "0" if first else d
                        I(f"{MFMA} {d}, {X}, {W}, {c}" if ph == 1 else f"{MFMA} {d}, {W}, {X}, {c}")
                    L.append(f)
            return L
        def kv_out(ph):
            acc = ACCS[ph & 1]; out = []
            for tile in range(4):
                rt, dt = tile >> 1, tile & 1; b = acc + 16*tile
                for half in range(2):
                    pk = [lambda i=i, b=b: I(f"v_cvt_pk_bf16_f32 v{b+i}, v{b+2*i}, v{b+2*i+1}") for i in range(4*half, 4*half+4)]
                    off = rt*8192 + (dt*2048 + half*1024 if ph == 0 else half*4096 + dt*1024)
                    def st(b=b, half=half, off=off):
                        if self.o.get("nost"): return
                        I(f"s_add_u32 s41, s{(54, 52)[ph]}, {off}")
                        I(f"buffer_store_dwordx4 {v(b+4*half,4)}, v{VST}, s[{RWS}:{RWS+3}], s41 offen{self.st}"); vm.issue()
                    out.append(pk + [st])
            return out
        side = {}
        def spread(ops, t0, t1):
            sl = [(t, k) for t in range(t0, t1) for k in range(3)]
            n = len(ops)
            for j, key in enumerate(sl): side.setdefault(key, []).extend(ops[n*j//len(sl): n*(j+1)//len(sl)])
        spread(prep_loads(), 0, 1); spread(prep_ops(), 3, 6)
        P1, hp = prep_out(); spread(P1, 6, 7)
        VS = self.o.get("vstages", 6)
        for ph, t0, t1 in ((0, 8, 16), (1, 16, 16 + VS)):
            pieces = kv_out(ph); sl = [(t, k) for t in range(t0, t1) for k in range(3)]
            for j, pc in enumerate(pieces): side.setdefault(sl[(j * len(sl)) // 8 + (1 if j == 0 else 0)], []).extend(pc)
        def fkoff():
            I(f"s_lshl_b32 s40, s{SHEAD}, 7"); I(f"s_lshl_b32 s41, s{SIDX}, 2"); I("s_add_u32 s40, s40, s41"); I(f"s_add_u32 s40, s40, {FK_OFF}")
        def w0only(fn):
            l = a.label("NP"); I(f"s_cmp_lg_u32 s{SW}, 0"); I(f"s_cbranch_scc1 {l}"); fn(); a.L(l)

        vm.wait(dtok[0]); self.barrier()
        self.stamp(1)
        L, toks = reads(0, 0)
        for f in L: f()
        mark = {}
        pend = []
        for t in range(24):
            for k in range(4):
                M = mfs(t, k, toks)
                if k < 3:
                    L, nt = reads(t, k+1)
                    D, pend = pend[:self.o.get("dper", 2)], pend[self.o.get("dper", 2):]
                    fl = [(0, 3, L)]
                    if D: fl.append((0, 4, D))
                    if side.get((t, k)): fl.append((0, 4, side[(t, k)]))
                    self.stream(M, fl); toks = nt
                    if not pend and (t + 2) not in dtok: dtok[t+2] = vm.issued
                    if k == 2: mark[t] = vm.issued
                    if t == 17 and k == 0:
                        self.oob_sel(); I("v_lshl_add_u32 v13, v0, 2, s99"); td = self.poll_issue(14, 13, "0", RDBG)
                    if t == 20 and k == 0:
                        self.oob_sel(); I("v_and_b32 v13, 7, v0"); I("v_lshl_add_u32 v13, v13, 2, s99")
                        I(f"s_lshl_b32 s53, s{SHEAD}, 7"); I(f"s_add_u32 s53, s53, {FK_OFF}")
                        tp = self.poll_issue(15, 13, "s53")
                elif t < 23:
                    assert not pend
                    if t == 19: vm.wait(td); w0only(lambda: self.poll_check(14, 13, "0", rep4(1), RDBG))
                    if t == 21: vm.wait(tp); w0only(lambda: self.poll_check(15, 13, "s53", 1))
                    lg.wait(lg.issued); vm.wait(dtok[t+1])
                    if t == 2: vm.wait(mark[0])
                    if t == 8: vm.wait(hp["st"])
                    if t == 17: vm.wait(mark[15])
                    if t == 16 + VS: vm.wait(mark[15 + VS])
                    self.barrier()
                    if self.o.get("pstamp") and t % 2 == 1: self.stamp(17 + t // 2); vm.issue(2)
                    if t == 8: self.publish(SF, 1, RDBG, True)
                    if t == 17: fkoff(); self.publish(40, 1)
                    if t == 16 + VS: fkoff(); self.publish(40, 3)
                    L, nt = reads(t+1, 0)
                    pend = dma_list(t+3)
                    if t == 21:
                        def k0(i):
                            I(f"s_lshl_b32 s40, s{SW}, 12"); I("s_add_u32 m0, s40, 0x8000")
                            I(f"s_lshl_b32 s41, s{SHEAD}, 20"); I("s_add_u32 s41, s41, s40")
                            I(f"buffer_load_dwordx4 v{VST}, s[{RWS}:{RWS+3}], s41 offen offset:{1024*i}{self.ld} lds"); vm.issue()
                        pend = [lambda i=i: k0(i) for i in range(4)]
                    D, pend = pend[:self.o.get("dper", 2)], pend[self.o.get("dper", 2):]
                    self.stream(M, [(0, 3, L)] + ([(0, 4, D)] if D else [])); toks = nt
                    if not pend: dtok[t+3] = vm.issued
                else:
                    self.stream(M, [])
            if t == 7: self.stamp(2)
        self.stamp(3)
        QACC = ACCS[0]
        I(f"s_and_b32 s55, s{SW}, 2"); I("s_lshl_b32 s55, s55, 15"); I(f"s_add_u32 s55, s55, {QA_LDS}")
        I(f"s_and_b32 s54, s{SW}, 1"); I("s_lshl_b32 s54, s54, 14"); I("s_add_u32 s55, s55, s54")
        I("s_lshl_b32 s54, s43, 11"); I("s_add_u32 s55, s55, s54")
        I(f"v_add_u32 v14, s55, v{VST}")
        I(f"s_mov_b32 s57, {f2u(LOG2E / math.sqrt(128.0))}")
        for tile in range(4):
            rt, dt = tile >> 1, tile & 1; b = QACC + 16*tile
            for i in range(16): I(f"v_mul_f32 v{b+i}, s57, v{b+i}")
            for i in range(8): I(f"v_cvt_pk_bf16_f32 v{b+i}, v{b+2*i}, v{b+2*i+1}")
            for half in range(2):
                I(f"ds_write_b128 v14, {v(b+4*half,4)} offset:{rt*8192+dt*2048+half*1024}"); lg.issue()
            if tile == 2: self.tv = self.poll_issue(15, 13, "s53")
        lg.wait(lg.issued); self.barrier()
        self.vcheck = lambda: w0only(lambda: self.poll_check(15, 13, "s53", 3))

    def attn(self):
        a = self.a; I = self.I; vm = self.vm; lg = self.lg; stream = self.stream
        ML = 131072; QA_LDS = 65536; QB_LDS = 131072
        O = 192; QF = 160; NM = 144; S = [112, 128]; PP = [96, 104]; RING = 64; NR = 8; E = 56; PK = 16
        VK, VV, VL16, LRUN, LU, THR, NINF, VQ, TMP, LA = 4, 5, 6, 7, 8, 9, 10, 11, 12, 48
        SR, SG, SC1, SC2, SKO, SVO, SKM, SVM, STH = 32, 33, 34, 35, 36, 37, 38, 39, 42
        SMK, SFIN, SCA, SM1 = 54, 55, 59, 58
        DC = self.o.get("dmacost", 40); WEV = self.o.get("wev", 2)
        I(f"s_and_b32 s{SR}, s{SW}, 3"); I(f"s_lshr_b32 s{SG}, s{SW}, 2")
        I(f"v_lshlrev_b32 v{VL16}, 4, v0")
        I(f"s_lshl_b32 s44, s{SR}, 13"); I(f"s_add_u32 s44, s44, {QB_LDS}"); I(f"v_add_u32 v{VQ}, s44, v{VL16}")
        I(f"s_lshl_b32 s45, s{SG}, 16"); I(f"v_subrev_u32 v{TMP}, s45, v{VQ}")
        def loadq(va):
            for ds in range(8):
                I(f"ds_read_b128 {v(QF+4*ds,4)}, v{va} offset:{1024*ds}"); lg.issue()
        loadq(TMP)
        I(f"s_mov_b32 s{SC1}, s{SIDX}")
        I(f"s_lshl_b32 s{SC2}, s{SIDX}, 1"); I(f"s_sub_u32 s{SC2}, 14, s{SC2}")
        I(f"s_cmp_eq_u32 s{SG}, 1"); I(f"s_cselect_b32 s{SM1}, 0, -1")
        I(f"s_lshl_b32 s43, s{SW}, 12"); I(f"s_lshl_b32 s{SVO}, s{SHEAD}, 20"); I(f"s_add_u32 s{SVO}, s{SVO}, s43")
        I(f"s_add_u32 s{SKO}, s{SVO}, 0x10000"); I(f"s_add_u32 s{SVO}, s{SVO}, 0x8000")
        I(f"s_mov_b32 s{SKM}, s43"); I(f"s_add_u32 s{SVM}, s43, 0x10000")
        I(f"s_mov_b32 s{STH}, {f2u(4096.0)}"); I(f"v_mov_b32 v{NINF}, 0xff800000")
        I(f"v_and_b32 v{THR}, 31, v0"); I(f"s_lshl_b32 s44, s{SR}, 5"); I(f"v_add_u32 v{THR}, s44, v{THR}")
        I(f"v_lshrrev_b32 v{TMP}, 5, v0"); I(f"v_lshlrev_b32 v{TMP}, 2, v{TMP}"); I(f"v_sub_u32 v{THR}, v{THR}, v{TMP}")
        I(f"v_add_u32 v{VK}, 0x8000, v{VL16}")
        I(f"s_lshl_b32 s{SCA}, s{SIDX}, 2"); I(f"s_add_u32 s{SCA}, s{SCA}, s{SR}"); I(f"s_lshl_b32 s{SCA}, s{SCA}, 5"); I(f"s_add_u32 s{SCA}, s{SCA}, s{SHEAD}")
        I(f"s_lshl_b32 s{SCA}, s{SCA}, 13"); I(f"s_add_u32 s{SCA}, s{SCA}, {CTX_OFF}")
        I(f"s_mov_b32 s{SFIN}, 0")
        for r in range(64): I(f"v_mov_b32 v{O+r}, 0")
        I("s_waitcnt vmcnt(0)")
        self.vcheck()
        if self.o.get("prio"):
            l = a.label("PR"); I(f"s_cmp_eq_u32 s{SG}, {self.o['prio']-1}"); I(f"s_cbranch_scc0 {l}"); I("s_setprio 1"); a.L(l)

        op = lambda t, c=4: (lambda: I(t), c)
        def dma4(kind):
            sm, so = (SKM, SKO) if kind == "k" else (SVM, SVO)
            def d(i):
                def f():
                    if i == 0: I(f"s_mov_b32 m0, s{sm}"); I(f"s_xor_b32 s{sm}, s{sm}, 0x8000")
                    if not (self.o.get("a_nodma") and i):
                        I(f"buffer_load_dwordx4 v{VL16}, s[{RWS}:{RWS+3}], s{so} offen offset:{1024*i}{self.ld} lds")
                    if i == 3: I(f"s_add_u32 s{so}, s{so}, 0x10000")
                return (f, DC + (8 if i == 0 else 4 if i == 3 else 0))
            return [d(i) for i in range(4)]
        self.ring_n = 0
        def rd(kind, sl, idx):
            h = {}
            def f():
                slot = self.ring_n % NR; self.ring_n += 1
                h["reg"] = RING + 4*slot
                I(f"ds_read_b128 {v(h['reg'],4)}, v{VK if kind == 'k' else VV} offset:{sl*8192+idx*1024}"); h["tok"] = lg.issue()
            return f, h
        def wait_for(R, i):
            if R[i][1]["tok"] <= lg.done: return
            j = i
            while j + 1 < len(R) and j + 1 < i + WEV and "tok" in R[j+1][1] and R[j+1][1]["tok"] > R[i][1]["tok"]: j += 1
            lg.wait(R[j][1]["tok"])
        def mf_qk(sb, ds, R, i, czero=False):
            wait_for(R, i)
            c = (("0" if czero else v(NM,16)) if ds == 0 else v(S[sb],16))
            I(f"{MFMA} {v(S[sb],16)}, {v(R[i][1]['reg'],4)}, {v(QF+4*ds,4)}, {c}")
        def mf_pv(pb, idx, R, i=None, reg=None):
            ks, dt = idx >> 2, idx & 3
            if reg is None: wait_for(R, i); reg = R[i][1]["reg"]
            I(f"{MFMA} {v(O+16*dt,16)}, {v(reg,4)}, {v(PP[pb]+4*ks,4)}, {v(O+16*dt,16)}")
        def sm_ops(sb):
            L = []
            ex = lambda i: op(f"v_exp_f32 v{E+(i&7)}, v{S[sb]+i}", 8)
            def post(j):
                r = []; e0, e1 = E + ((2*j) & 7), E + ((2*j+1) & 7)
                if j == 0: r.append(op(f"v_add_f32 v{LU}, v{e0}, v{e1}"))
                else: r += [op(f"v_add_f32 v{LU}, v{LU}, v{e0}"), op(f"v_add_f32 v{LU}, v{LU}, v{e1}")]
                r.insert(1 if j else 0, op(f"v_cvt_pk_bf16_f32 v{PP[sb]+j}, v{e0}, v{e1}"))
                return r
            L += [ex(0), ex(1)]
            for j in range(8):
                p = post(j)
                L += ([ex(2*j+2), p[0], ex(2*j+3)] + p[1:]) if j < 7 else p
            if self.o.get("a_nosm"): L = [(lambda: None, 0) if i > 3 else x for i, x in enumerate(L)]
            return L
        def sched(M, fixed, chain):
            n = len(M); fc = [sum(c for _, c in fixed.get(g, [])) for g in range(n)]
            tot = sum(c for _, c in chain)
            lo, hi = 0.0, 4000.0
            for _ in range(40):
                lev = (lo + hi) / 2
                if sum(max(0, lev - f) for f in fc) >= tot: hi = lev
                else: lo = lev
            k = 0; credit = 0.0
            for g in range(n):
                M[g]()
                for c, _ in fixed.get(g, []): c()
                credit += max(0, hi - fc[g])
                while k < len(chain) and (g == n - 1 or chain[k][1] <= credit + 2):
                    chain[k][0](); credit -= chain[k][1]; k += 1
        def put(fixed, g, items): fixed.setdefault(g, []).extend(items)
        SPL = self.o.get("spl", 26)
        ool = []
        def rarely(cmp_, body):
            lo = a.label("OOL"); lb = a.label("RET")
            I(cmp_); I(f"s_cbranch_scc1 {lo}"); a.L(lb)
            ool.append((lo, lb, body))
        def mask_body(sb, koff):
            prs = [46, 48, 50, 52]
            if koff >= 64:
                I(f"v_subrev_u32 v{TMP+3}, 64, v{THR}"); tr = TMP + 3; koff -= 64
            elif koff < 0:
                I(f"s_lshl_b32 s44, s{SG}, 6"); I(f"v_subrev_u32 v{TMP+3}, s44, v{THR}"); tr = TMP + 3; koff = -koff - 1
            else: tr = THR
            for r0 in range(0, 16, 4):
                for r in range(r0, r0+4):
                    I(f"v_cmp_lt_i32 s[{prs[r&3]}:{prs[r&3]+1}], v{tr}, {(r & 3) + 8*(r >> 2) + koff}")
                for r in range(r0, r0+4):
                    I(f"v_cndmask_b32 v{S[sb]+r}, v{S[sb]+r}, v{NINF}, s[{prs[r&3]}:{prs[r&3]+1}]")
        def rowmax(sb, dst):
            b = S[sb]
            I(f"v_max3_f32 v{dst}, v{b}, v{b+1}, v{b+2}")
            for i in range(3, 15, 2): I(f"v_max3_f32 v{dst}, v{dst}, v{b+i}, v{b+i+1}")
            I(f"v_max_f32 v{dst}, v{dst}, v{b+15}"); I(f"v_mov_b32 v{dst+1}, v{dst}")
            I(f"v_permlane32_swap_b32 v{dst}, v{dst+1}"); I(f"v_max_f32 v{dst}, v{dst}, v{dst+1}")
        def init_max():
            rowmax(0, TMP)
            I(f"v_max_f32 v{TMP}, {f2u(-1e30)}, v{TMP}")
            for r in range(16): I(f"v_sub_f32 v{NM+r}, 0, v{TMP}")
            return [op(f"v_sub_f32 v{S[0]+r}, v{S[0]+r}, v{TMP}") for r in range(16)]
        rare = []
        def check(sb, other=True):
            def f():
                lr = a.label("RARE"); lb = a.label("BACK")
                I(f"v_cmp_nge_f32 vcc, s{STH}, v{LU}")
                if self.o.get("a_nocheck"): I("s_mov_b64 vcc, 0")
                I(f"s_cbranch_vccnz {lr}"); a.L(lb)
                I(f"v_add_f32 v{LRUN}, v{LRUN}, v{LU}")
                rare.append((lr, lb, sb, other))
            return f
        def fin_body():
            I(f"v_mov_b32 v{TMP}, v{LA}"); I(f"s_mov_b32 s{SFIN}, 2"); I("s_nop 0")
            I(f"v_permlane32_swap_b32 v{TMP}, v{LA}"); I(f"v_add_f32 v{TMP}, v{TMP}, v{LA}"); I(f"v_rcp_f32 v{TMP}, v{TMP}")
            for q in range(8):
                for i in range(8*q, 8*q+8): I(f"v_mul_f32 v{O+i}, v{O+i}, v{TMP}")
                for i in range(4): I(f"v_cvt_pk_bf16_f32 v{PK+4*q+i}, v{O+8*q+2*i}, v{O+8*q+2*i+1}")
                for i in range(8*q, 8*q+8): I(f"v_mov_b32 v{O+i}, 0")
        def st_body():
            I(f"s_add_u32 s44, s{SCA}, 4096"); I(f"s_mov_b32 s{SFIN}, 3")
            for q in range(8):
                I(f"buffer_store_dwordx4 {v(PK+4*q,4)}, v{VL16}, s[{RWS}:{RWS+3}], s{SCA if q < 4 else 44} offen offset:{1024*(q&3)}{self.st}")
        TR = [RING + 4*(2+i) for i in range(6)]
        def head(R, vmw, with_mfma=True, post=()):
            rf = [(f, 4) for f, h in R]; sm2 = sm_ops(0)[SPL:]
            nop = lambda: None
            def first():
                I("s_waitcnt lgkmcnt(4)"); mf_pv(1, 2, None, reg=TR[0])
            M = [first] + [lambda i=i: mf_pv(1, 2+i, None, reg=TR[i]) for i in range(1, 6)] if with_mfma else [nop]*6
            nb = self.o.get("nb", 4)
            sched(M[:2], {}, sm2[:nb])
            vmw(); I("s_waitcnt lgkmcnt(0)"); lg.mark_all_done(); self.barrier(); self.ring_n = 0
            fx = {0: rf[0:2], 1: rf[2:5], 2: rf[5:6], 3: rf[6:7] + [(nop, 12 + 8*len(post))]}
            sched(M[2:], fx, sm2[nb:])
            check(0)()
            for p in post: p()
        def mk_reads():
            return ([rd("k", 0, i) for i in range(8)] + [rd("v", 0, i) for i in range(8)] +
                    [rd("k", 1, i) for i in range(8)] + [rd("v", 1, i) for i in range(8)])
        def mid(R, dmas, kx, mb=None, trans=False, endops=()):
            rf = [(f, 4) for f, h in R]
            M = [lambda i=i: mf_qk(0, i, R, i, trans) for i in range(8)] + [lambda i=i: mf_pv(0, i, R, 8+i) for i in range(8)]
            fx = {}
            for g in range(16): put(fx, g, [rf[7+g]])
            D = sum((dma4(k) for k in dmas), [])
            DS = self.o.get("dstep", 2)
            spill = []
            for n, d in enumerate(D):
                g = n * DS * (2 if len(D) == 4 else 1)
                if g < 15: put(fx, g, [d])
                else: spill.append((g - 16 if g >= 16 else 0, d))
            put(fx, 15, [(lambda: None, 20)])
            sched(M, fx, sm_ops(1))
            check(1, other=not trans)()
            if mb: mb()
            pre = []
            if trans:
                I(f"v_mov_b32 v{LA}, v{LRUN}"); I(f"v_mov_b32 v{LRUN}, 0"); I(f"s_mov_b32 s{SFIN}, 1")
                pre = init_max()
            M = [lambda i=i: mf_qk(1, i, R, 16+i) for i in range(8)] + [lambda i=i: mf_pv(1, i, R, 24+i) for i in range(2)]
            fx = {}
            for g in range(9): put(fx, g, [rf[23+g]])
            for g, d in spill: put(fx, g, [d])
            put(fx, 8, [op(f"v_xor_b32 v{VV}, 0x18000, v{VK}")] + kx)
            for n, e in enumerate(endops): put(fx, 7 - n, [e])
            put(fx, 9, [(lambda: None, 16)])
            sched(M, fx, pre + sm_ops(0)[:SPL])
            assert [R[26+i][1]["reg"] for i in range(6)] == TR
        vm4 = lambda: I("s_waitcnt vmcnt(4)")
        vm0 = lambda: I("s_waitcnt vmcnt(0)")
        def vm08():
            lo = a.label("W8"); lb = a.label("W8R")
            I(f"s_cmp_eq_u32 s{SFIN}, 3"); I(f"s_cbranch_scc1 {lo}"); I("s_waitcnt vmcnt(0)"); a.L(lb)
            def b(): I("s_waitcnt vmcnt(8)"); I(f"s_mov_b32 s{SFIN}, 4")
            ool.append((lo, lb, b))
        m1 = lambda sb, ko: (lambda: rarely(f"s_cmp_eq_u32 s{SC1}, s{SM1}", lambda: mask_body(sb, ko)))
        m2 = lambda sb, ko: (lambda: rarely(f"s_cmp_eq_u32 s{SC2}, 0", lambda: mask_body(sb, ko)))
        fin = lambda: rarely(f"s_cmp_eq_u32 s{SFIN}, 1", fin_body)
        sta = (lambda: rarely(f"s_cmp_eq_u32 s{SFIN}, 2", st_body), 8)

        LEV = a.label("EVEN"); LODM = a.label("ODDM"); LTRANS = a.label("TRANS"); LP2 = a.label("P2"); LP2B = a.label("P2B"); LDRAIN = a.label("DRAIN")
        I("s_waitcnt lgkmcnt(0)"); lg.mark_all_done(); self.barrier()
        self.stamp(8)
        self.ring_n = 0
        R = [rd("k", 0, i) for i in range(8)] + [rd("k", 1, i) for i in range(8)]
        for f, h in R[:7]: f()
        D = dma4("v") + dma4("k")
        sched([lambda i=i: mf_qk(0, i, R, i, True) for i in range(8)], {g: [(R[7+g][0], 4), D[g]] for g in range(8)}, [])
        m1(0, 0)()
        pre = init_max()
        I(f"v_mov_b32 v{LRUN}, 0")
        sched([lambda i=i: mf_qk(1, i, R, 8+i) for i in range(8)],
              {0: [(R[15][0], 4)], 4: [op(f"v_xor_b32 v{VV}, 0x18000, v{VK}"), op(f"v_xor_b32 v{VK}, 0x4000, v{VK}")]}, pre + sm_ops(0)[:SPL])
        R = mk_reads()
        head(R, vm4, False, post=[m1(1, 32)])
        svm = self.save()
        I(f"s_branch {LODM}")
        a.L(LEV)
        R = mk_reads(); head(R, vm4)
        mid(R, "k", [op(f"v_xor_b32 v{VK}, 0x4000, v{VK}")], mb=m1(0, 0))
        R = mk_reads(); head(R, vm4, post=[m1(1, 32)])
        assert self.lg.issued - self.lg.done == svm[2] - svm[3]
        a.L(LODM)
        mid(R, "v", [op(f"v_xor_b32 v{VK}, 0xc000, v{VK}")], mb=m1(0, 64), endops=[op(f"s_sub_u32 s{SC1}, s{SC1}, 1")])
        I(f"s_cmp_lg_u32 s{SC1}, -1"); I(f"s_cbranch_scc1 {LEV}")
        I(f"s_cmp_eq_u32 s{SG}, 1"); I(f"s_cbranch_scc1 {LTRANS}")
        svt = self.save()
        R = mk_reads(); head(R, vm4)
        mid(R, "k", [op(f"v_xor_b32 v{VK}, 0x8000, v{VK}")], mb=m2(0, -1))
        a.L(LP2B)
        I(f"s_cmp_eq_u32 s{SC2}, 0"); I(f"s_cbranch_scc1 {LDRAIN}")
        a.L(LP2)
        R = mk_reads(); head(R, vm08, post=[fin, lambda: I(f"s_sub_u32 s{SC2}, s{SC2}, 1")])
        mid(R, "kv", [op(f"v_xor_b32 v{VK}, 0x8000, v{VK}")], mb=m2(0, -1), endops=[sta])
        I(f"s_cmp_lg_u32 s{SC2}, 0"); I(f"s_cbranch_scc1 {LP2}")
        a.L(LDRAIN)
        self.stamp(10)
        R2 = [rd("v", 0, i) for i in range(8)] + [rd("v", 1, i) for i in range(8)]
        rf = [(f, 4) for f, h in R2]
        head(R2, vm08, post=[fin, sta[0]])
        mask_body(1, -33)
        sched([lambda i=i: mf_pv(0, i, R2, i) for i in range(8)], {g: [rf[7+g]] for g in range(8)}, sm_ops(1))
        check(1)()
        pre = []; E_ = lambda t: pre.append(op(t))
        E_(f"v_mov_b32 v{TMP}, v{LRUN}"); E_(f"s_lshl_b32 s44, s{SW}, 9"); E_(f"s_add_u32 s44, s44, {ML}")
        E_(f"v_permlane32_swap_b32 v{TMP}, v{LRUN}"); E_(f"v_add_f32 v{NM+1}, v{TMP}, v{LRUN}")
        E_(f"v_lshrrev_b32 v{TMP}, 1, v{VL16}"); E_(f"v_add_u32 v{TMP}, s44, v{TMP}")
        def wml():
            I(f"ds_write_b64 v{TMP}, {v(NM,2)}"); lg.issue()
        pre.append((wml, 4))
        E_(f"v_xor_b32 v{TMP}, 0x800, v{TMP}")
        E_(f"s_lshl_b32 s46, s{SW}, 13"); E_(f"v_add_u32 v{TMP+1}, s46, v{VL16}"); E_(f"v_xor_b32 v{TMP+2}, 0x8000, v{TMP+1}")
        E_(f"s_sub_u32 s54, 15, s{SIDX}"); E_(f"s_lshl_b32 s54, s54, 2"); E_(f"s_add_u32 s54, s54, s{SR}"); E_("s_lshl_b32 s54, s54, 5"); E_(f"s_add_u32 s54, s54, s{SHEAD}")
        E_("s_lshl_b32 s54, s54, 13"); E_(f"s_lshl_b32 s44, s{SG}, 12"); E_("s_add_u32 s54, s54, s44"); E_(f"s_add_u32 s54, s54, {CTX_OFF}")
        sched([lambda i=i: mf_pv(1, i, R2, 8+i) for i in range(8)], {0: [rf[15]]}, pre)
        self.stamp(11)
        lg1 = a.label("MG1"); lj = a.label("MGJ")
        I(f"s_cmp_eq_u32 s{SG}, 1"); I(f"s_cbranch_scc1 {lg1}")
        sv2 = self.save(); PR = 64
        for g in (0, 1):
            if g: a.L(lg1); self.restore(sv2)
            own = O + 32*g; snd = O + 32*(1-g)
            for i in range(8):
                I(f"ds_write_b128 v{TMP+1}, {v(snd+4*i,4)} offset:{1024*i}"); lg.issue()
            lg.wait(lg.issued); self.barrier()
            I(f"ds_read_b64 {v(96,2)}, v{TMP}"); t0 = lg.issue()
            tk = []
            for i in range(8):
                I(f"ds_read_b128 {v(PR+4*i,4)}, v{TMP+2} offset:{1024*i}"); tk.append(lg.issue())
            lg.wait(t0)
            I(f"v_min_f32 v98, v{NM}, v96"); I(f"v_sub_f32 v99, v98, v{NM}"); I(f"v_sub_f32 v100, v98, v96")
            I("v_exp_f32 v99, v99"); I("v_exp_f32 v100, v100")
            I(f"v_mul_f32 v101, v99, v{NM+1}"); I("v_fmac_f32 v101, v100, v97"); I("v_rcp_f32 v101, v101")
            I("v_mul_f32 v99, v99, v101"); I("v_mul_f32 v100, v100, v101")
            for q in range(4):
                for i in range(8*q, 8*q+8): I(f"v_mul_f32 v{own+i}, v{own+i}, v99")
                lg.wait(tk[2*q+1])
                for i in range(8*q, 8*q+8): I(f"v_fmac_f32 v{own+i}, v{PR+i}, v100")
                for i in range(4): I(f"v_cvt_pk_bf16_f32 v{snd+4*q+i}, v{own+8*q+2*i}, v{own+8*q+2*i+1}")
                I(f"buffer_store_dwordx4 {v(snd+4*q,4)}, v{VL16}, s[{RWS}:{RWS+3}], s54 offen offset:{1024*q}{self.st}"); vm.issue()
            if not g: I(f"s_branch {lj}")
        a.L(lj)
        self.stamp(4)
        def cold():
            a.L(LTRANS)
            self.restore(svt)
            loadq(VQ); I("s_waitcnt lgkmcnt(0)")
            I(f"v_xor_b32 v{VK}, 0x4000, v{VK}")
            R = mk_reads(); head(R, vm4, post=[lambda: mask_body(1, 96)])
            mid(R, "k", [op(f"v_xor_b32 v{VK}, 0x8000, v{VK}")], mb=m2(0, -1), trans=True)
            I(f"s_branch {LP2B}")
            for (lo, lb, body) in ool:
                a.L(lo); body(); I(f"s_branch {lb}")
            for (lr, lb, sb, other) in rare:
                a.L(lr)
                I("s_nop 15")
                rowmax(sb, TMP)
                I(f"v_max_f32 v{TMP}, 0, v{TMP}"); I(f"v_exp_f32 v{TMP+1}, -v{TMP}")
                for r in range(16): I(f"v_sub_f32 v{NM+r}, v{NM+r}, v{TMP}")
                for r in range(16): I(f"v_sub_f32 v{S[sb]+r}, v{S[sb]+r}, v{TMP}")
                if other:
                    for r in range(16): I(f"v_sub_f32 v{S[1-sb]+r}, v{S[1-sb]+r}, v{TMP}")
                for r in range(64): I(f"v_mul_f32 v{O+r}, v{O+r}, v{TMP+1}")
                I(f"v_mul_f32 v{LRUN}, v{LRUN}, v{TMP+1}")
                for c, _ in sm_ops(sb): c()
                I("s_nop 1"); I(f"s_branch {lb}")
        self.attn_rare = cold

    def tailp(self):
        a = self.a; I = self.I; vm = self.vm; lg = self.lg
        HB = 16384; HC = 4416; HCH = 8*HC; CNT = 12288; RBUF = 16384
        ACC = 64; FR = 96
        VL16, VA, VB, T = 6, 4, 5, 12
        SC, SJ, SB, SCH, SHB_ = 32, 33, 34, 35, 36
        OACC = 192; CX = 128; WF = 96; VOW, VWL, VWH = 7, 8, 10; XR, GR = 16, 20
        self.srd(RA, "wo", 4*MB); self.srd(RB, "ssmk", 2*MB); self.srd(RC, "out", 2*MB); self.srd(RD, "q", 2*MB)
        I(f"s_lshl_b32 s40, s{SF}, 2")
        I(f"s_load_dword s55, s[{P['ssmD']}:{P['ssmD']+1}], s40")
        I(f"s_lshr_b32 s{SC}, s{SW}, 2"); I(f"s_and_b32 s{SJ}, s{SW}, 3")
        I(f"s_mul_i32 s{SB}, s{SC}, 6144"); I(f"s_mul_i32 s{SHB_}, s{SC}, {HCH}"); I(f"s_add_u32 s{SHB_}, s{SHB_}, {HB}")
        I(f"s_lshl_b32 s{SCH}, s{SF}, 1"); I(f"s_add_u32 s{SCH}, s{SCH}, s{SC}"); I(f"s_lshl_b32 s{SCH}, s{SCH}, 12")
        I("s_waitcnt lgkmcnt(0)"); lg.mark_all_done()
        self.barrier()
        for rr in range(2):
            I(f"s_lshl_b32 s42, s{SJ}, 1"); I(f"s_add_u32 s42, s42, {rr}")
            I(f"s_mul_i32 s43, s42, {HC}"); I(f"s_add_u32 s43, s43, s{SHB_}"); I("s_add_u32 m0, s43, 80")
            I("s_lshl_b32 s42, s42, 1"); I(f"s_add_u32 s42, s42, s{SCH}"); I("s_add_u32 s42, s42, 2")
            for i in range(4):
                I(f"buffer_load_dwordx4 v{VL16}, s[{RB}:{RB+3}], s42 offen offset:{1024*i} lds"); vm.issue()
        I(f"v_lshlrev_b32 v{T}, 6, v0")
        I(f"s_mul_i32 s42, s{SJ}, 1536"); I(f"s_add_u32 s42, s42, s{SB}"); I("s_add_u32 m0, s42, 512")
        I(f"s_lshl_b32 s43, s{SJ}, 4"); I(f"s_add_u32 s43, s43, s{SCH}"); I(f"s_add_u32 s43, s43, {KVT_OFF}")
        I(f"buffer_load_dwordx4 v{T}, s[{RWS}:{RWS+3}], s43 offen{self.ld} lds"); vm.issue()
        I(f"v_and_b32 v{T+1}, 7, v0"); I(f"v_lshlrev_b32 v{T+1}, 1, v{T+1}")
        I(f"buffer_load_ushort v16, v{T+1}, s[{RB}:{RB+3}], s{SCH} offen"); th = vm.issue()
        I(f"v_lshrrev_b32 v{T}, 3, v0"); I(f"v_bfe_u32 v{T+2}, v0, 4, 1"); I(f"v_lshlrev_b32 v{T+2}, 2, v{T+2}")
        I(f"v_and_b32 v{T+3}, 7, v0"); I(f"v_xor_b32 v{T+2}, v{T+2}, v{T+3}"); I(f"v_lshlrev_b32 v{T+2}, 4, v{T+2}")
        I(f"v_lshl_add_u32 v{VOW}, v{T}, 10, v{T+2}")
        I(f"s_lshl_b32 s46, s{SW}, 19"); I(f"s_lshl_b32 s47, s{SIDX}, 7"); I("s_add_u32 s46, s46, s47")
        I(f"s_lshl_b32 s48, s{SW}, 13"); I("s_add_u32 s48, s48, 0x18000")
        I(f"s_mul_i32 s49, s{SW}, 10240"); I("s_add_u32 s49, s49, 16384")
        I(f"s_lshl_b32 s50, s{SHEAD}, 19"); I(f"s_lshl_b32 s51, s{SW}, 15"); I("s_add_u32 s50, s50, s51"); I(f"s_add_u32 s50, s50, {CTX_OFF}")
        NS = 9
        def slot(i):
            j = i % NS
            return (48, VWH, j*2048) if j < 4 else (49, VWL, (j-4)*2048)
        wtok = {}; ctok = {}
        def wload(i):
            sb, _, off = slot(i)
            for hh in range(2):
                I(f"s_add_u32 m0, s{sb}, {off + hh*1024}"); I(f"s_add_u32 s37, s46, {i*16384 + hh*8192}")
                I(f"buffer_load_dwordx4 v{VOW}, s[{RA}:{RA+3}], s37 offen lds"); wtok[i] = vm.issue()
        def cload(i):
            for st in range(2):
                I(f"s_add_u32 s37, s50, {st*262144 + (i//4)*4096}")
                I(f"buffer_load_dwordx4 {v(CX+8*(i%8)+4*st,4)}, v{VL16}, s[{RWS}:{RWS+3}], s37 offen offset:{(i%4)*1024}{self.ld}"); ctok[i] = vm.issue()
        for i in range(4): wload(i)
        I(f"v_mov_b32 v{T+2}, 0"); I(f"v_mov_b32 v{T+3}, 0")
        I(f"v_lshl_add_u32 v{T}, v0, 3, s42")
        I(f"ds_write_b64 v{T}, {v(T+2,2)}"); lg.issue()
        I(f"v_mov_b32 v{T}, {CNT}"); I(f"ds_write_b32 v{T}, v{T+2}"); lg.issue()
        I(f"v_lshrrev_b32 v17, 5, v0"); I(f"s_lshl_b32 s43, s{SJ}, 1"); I("v_add_u32 v17, s43, v17")
        I(f"v_mul_u32_u24 v18, {HC}, v17"); I(f"v_add_u32 v18, s{SHB_}, v18")
        I("v_and_b32 v19, 31, v0"); I("v_min_u32 v19, 19, v19"); I("v_lshl_add_u32 v19, v19, 2, v18")
        I(f"ds_write_b32 v19, v{T+2}"); lg.issue()
        I(f"v_lshlrev_b32 v17, 1, v17"); I(f"v_sub_u32 v18, v18, v17"); I(f"v_add_u32 v18, v18, v{T+1}")
        vm.wait(th)
        I("ds_write_b16 v18, v16 offset:78"); lg.issue()
        I(f"v_and_b32 v{T}, 31, v0"); I(f"v_lshrrev_b32 v{T+1}, 5, v0")
        I(f"v_and_b32 v{T+2}, 7, v0"); I(f"v_mul_u32_u24 v{VA}, {HC}, v{T+2}")
        I(f"v_bfe_u32 v{T+2}, v0, 3, 2"); I(f"v_sub_u32 v{T+2}, v{T+2}, v{T+1}"); I(f"v_lshl_add_u32 v{VA}, v{T+2}, 4, v{VA}")
        I(f"s_lshl_b32 s43, s{SJ}, 9"); I(f"s_add_u32 s43, s43, s{SHB_}"); I("s_add_u32 s43, s43, 32")
        I(f"v_add_u32 v{VA}, s43, v{VA}")
        I(f"s_lshl_b32 s43, s{SJ}, 7"); I(f"s_sub_u32 s43, s{SB}, s43"); I("s_add_u32 s43, s43, 400")
        I(f"v_lshl_add_u32 v{VB}, v{T}, 4, s43"); I(f"v_mul_u32_u24 v{T+2}, 1536, v{T+1}"); I(f"v_add_u32 v{VB}, v{VB}, v{T+2}")
        lg.wait(lg.issued); self.barrier()
        I(f"s_sub_u32 s44, 15, s{SIDX}"); I("s_lshl_b32 s44, s44, 7"); I(f"s_lshl_b32 s45, s{SHEAD}, 2"); I("s_add_u32 s44, s44, s45"); I(f"s_add_u32 s44, s44, {FC_OFF}")
        self.publish(44)
        I(f"s_lshl_b32 s44, s{SIDX}, 7"); I("s_add_u32 s44, s44, s45"); I(f"s_add_u32 s44, s44, {FC_OFF}")
        self.publish(44)
        self.stamp(5)
        steps = [(dd, ks) for dd in range(8) for ks in range(2)]
        toks = {}
        def reads(n):
            dd, ks = steps[n]; b = FR + 16*(n & 3)
            def r(k, reg, addr, off):
                def f():
                    I(f"ds_read_b128 {v(reg,4)}, v{addr} offset:{off}"); toks[(n, k)] = lg.issue()
                return f
            return [r(0, b, VA, 64*dd + 32*(1-ks)), r(1, b+4, VB, ks*3072 + (7-dd)*16),
                    r(2, b+8, VB, ks*3072 + (7-dd)*16 + 512), r(3, b+12, VA, 64*dd + 32*(1-ks) + 2048)]
        for n in range(2):
            for f in reads(n): f()
        for n in range(16):
            b = FR + 16*(n & 3); L = reads(n+2) if n + 2 < 16 else []
            c0 = "0" if n == 0 else v(ACC,16); c1 = "0" if n == 0 else v(ACC+16,16)
            lg.wait(toks[(n,1)]); I(f"{MFMA} {v(ACC,16)}, {v(b,4)}, {v(b+4,4)}, {c0}")
            for f in L[0:2]: f()
            lg.wait(toks[(n,2)]); I(f"{MFMA} {v(ACC+16,16)}, {v(b,4)}, {v(b+8,4)}, {c1}")
            for f in L[2:3]: f()
            lg.wait(toks[(n,3)]); I(f"{MFMA} {v(ACC+16,16)}, {v(b+12,4)}, {v(b+4,4)}, {v(ACC+16,16)}")
            for f in L[3:4]: f()
        I(f"s_lshl_b32 s43, s{SW}, 13"); I(f"s_add_u32 s43, s43, {RBUF}"); I(f"v_add_u32 v{T+2}, s43, v{VL16}")
        self.barrier()
        for i in range(8):
            I(f"ds_write_b128 v{T+2}, {v(ACC+4*i,4)} offset:{1024*i}"); lg.issue()
        I(f"s_lshl_b32 s43, s{SC}, 15"); I(f"s_lshl_b32 s44, s{SJ}, 11"); I("s_add_u32 s43, s43, s44"); I(f"s_add_u32 s43, s43, {RBUF}")
        I(f"v_add_u32 v{T+2}, s43, v{VL16}")
        I(f"s_and_b32 s43, s{SJ}, 1"); I("s_mul_i32 s44, s43, 3072"); I(f"s_lshr_b32 s45, s{SJ}, 1"); I("s_lshl_b32 s41, s45, 9")
        I("s_add_u32 s44, s44, s41"); I(f"s_add_u32 s44, s44, s{SB}"); I("s_add_u32 s44, s44, 520")
        I(f"v_lshl_add_u32 v{T+3}, v{T}, 4, s44"); I(f"v_lshlrev_b32 v{VA}, 3, v{T+1}"); I(f"v_sub_u32 v{T+3}, v{T+3}, v{VA}")
        I(f"v_lshlrev_b32 v{VB}, 6, v{T}"); I(f"v_lshl_add_u32 v{VB}, v{T+1}, 4, v{VB}")
        I("s_lshl_b32 s45, s45, 11"); I("s_lshl_b32 s43, s43, 5"); I("s_add_u32 s45, s45, s43"); I(f"s_add_u32 s45, s45, s{SCH}"); I(f"s_add_u32 s45, s45, {YT_OFF}")
        I("s_lshl_b32 s43, s55, 16"); I("s_and_b32 s44, s55, 0xffff0000"); I(f"s_cmp_eq_u32 s{SC}, 0"); I("s_cselect_b32 s55, s43, s44")
        I(f"s_lshr_b32 s53, s{SHEAD}, 1"); I("s_lshl_b32 s53, s53, 7"); I(f"s_add_u32 s53, s53, {FC_OFF}")
        self.oob_sel(); I("v_and_b32 v17, 31, v0"); I("v_lshl_add_u32 v17, v17, 2, s99")
        tcx = self.poll_issue(18, 17, "s53")
        lg.wait(lg.issued); self.barrier()
        for p in range(4):
            for gq in range(2):
                I(f"ds_read_b128 {v(FR+8*p+4*gq,4)}, v{T+2} offset:{8192*p+1024*gq}"); lg.issue()
        for gq in range(2):
            I(f"ds_read_b64 {v(ACC+2*gq,2)}, v{T+3} offset:{1536*gq}"); lg.issue()
        lg.wait(lg.issued)
        for i in range(8):
            I(f"v_add_f32 v{FR+i}, v{FR+i}, v{FR+8+i}"); I(f"v_add_f32 v{FR+16+i}, v{FR+16+i}, v{FR+24+i}")
        for i in range(8): I(f"v_add_f32 v{FR+i}, v{FR+i}, v{FR+16+i}")
        for gq in range(2):
            for r in range(4):
                srcr = ACC + 2*gq + (1 - (r >> 1))
                I(f"v_lshlrev_b32 v{ACC+8}, 16, v{srcr}" if r & 1 else f"v_and_b32 v{ACC+8}, 0xffff0000, v{srcr}")
                I(f"v_fma_f32 v{FR+4*gq+r}, v{ACC+8}, s55, v{FR+4*gq+r}")
        for i in range(4): I(f"v_cvt_pk_bf16_f32 v{ACC+12+i}, v{FR+2*i}, v{FR+2*i+1}")
        I(f"v_permlane32_swap_b32 v{ACC+12}, v{ACC+14}"); I(f"v_permlane32_swap_b32 v{ACC+13}, v{ACC+15}")
        I(f"buffer_store_dwordx4 {v(ACC+12,4)}, v{VB}, s[{RWS}:{RWS+3}], s45 offen{self.st}"); ty = vm.issue()
        vm.wait(tcx)
        l = a.label("NP"); I(f"s_cmp_lg_u32 s{SW}, 0"); I(f"s_cbranch_scc1 {l}")
        self.poll_check(18, 17, "s53", 1)
        a.L(l)
        vm.wait(ty); self.barrier()
        I(f"s_lshl_b32 s44, s{SF}, 2"); I(f"s_add_u32 s44, s44, {FY_OFF}")
        self.publish(44)
        self.stamp(6)
        DPC = 7
        for i in range(4): cload(i)
        for i in range(4, DPC):
            wload(i); cload(i)
        I(f"v_bfe_u32 v{T}, v0, 2, 2"); I(f"v_lshrrev_b32 v{T+1}, 5, v0"); I(f"v_lshl_add_u32 v{T+2}, v{T+1}, 2, v{T}")
        I(f"v_lshlrev_b32 v{T+2}, 7, v{T+2}"); I(f"v_bfe_u32 v{T+3}, v0, 3, 1"); I(f"v_lshl_add_u32 v{T+2}, v{T+3}, 6, v{T+2}")
        I(f"v_bfe_u32 v{T+3}, v0, 4, 1"); I(f"v_lshl_add_u32 v{T+2}, v{T+3}, 5, v{T+2}")
        I(f"v_and_b32 v{T+3}, 3, v0"); I(f"v_lshl_add_u32 v{T+2}, v{T+3}, 3, v{T+2}")
        I(f"v_add_u32 v{VWH}, s48, v{T+2}"); I(f"v_xor_b32 v{VWH+1}, 64, v{VWH}")
        I(f"v_add_u32 v{VWL}, s49, v{T+2}"); I(f"v_xor_b32 v{VWL+1}, 64, v{VWL}")
        rtok = {}
        def trreads(i):
            vm.wait(wtok[i]); _, va, off = slot(i)
            for mt in range(2):
                for hh in range(2):
                    I(f"ds_read_b64_tr_b16 {v(WF+8*(i&1)+4*mt+2*hh,2)}, v{va+mt} offset:{off+hh*1024}"); rtok[(i,mt)] = lg.issue()
        trreads(0)
        YT = 0
        for i in range(32):
            if i % 4 == 0 and self.o.get("ostamp"): self.stamp(17 + i // 4)
            if i + DPC < 32: wload(i + DPC); cload(i + DPC)
            if i == 18:
                I(f"s_lshl_b32 s53, s{SIDX}, 7"); I(f"s_lshl_b32 s42, s{SW}, 4"); I("s_add_u32 s53, s53, s42"); I(f"s_add_u32 s53, s53, {FY_OFF}")
                I("v_and_b32 v22, 3, v0"); I("v_lshlrev_b32 v22, 2, v22")
                tf = self.poll_issue(21, 22, "s53")
            if i + DPC == 32:
                vm.wait(tf); self.poll_check(21, 22, "s53", 1)
                I(f"v_lshrrev_b32 v{T}, 3, v0"); I(f"v_and_b32 v{T+1}, 7, v0"); I(f"v_lshlrev_b32 v{T+1}, 4, v{T+1}")
                I(f"v_lshl_add_u32 v{T}, v{T}, 12, v{T+1}")
                I(f"s_add_u32 m0, s{SWK}, {YT}")
                I(f"s_lshl_b32 s37, s{SIDX}, 18"); I(f"s_lshl_b32 s38, s{SW}, 15"); I("s_add_u32 s37, s37, s38")
                I(f"s_lshl_b32 s38, s{SHEAD}, 7"); I("s_add_u32 s37, s37, s38"); I(f"s_add_u32 s37, s37, {YT_OFF}")
                I(f"buffer_load_dwordx4 v{T}, s[{RWS}:{RWS+3}], s37 offen{self.ld} lds"); vm.issue()
                I(f"v_and_b32 v{T+1}, 15, v0"); I(f"s_lshr_b32 s38, s{SW}, 1"); I("s_lshl_b32 s38, s38, 4")
                I(f"s_lshl_b32 s39, s{SHEAD}, 6"); I("s_add_u32 s39, s39, s38"); I(f"v_add_u32 v{T+1}, s39, v{T+1}")
                I(f"v_lshlrev_b32 v{T+2}, 2, v{T+1}"); I(f"s_mov_b32 s40, {G_OFF}")
                I(f"buffer_load_dword v{GR}, v{T+2}, s[{RWS}:{RWS+3}], s40 offen{self.ld}"); vm.issue()
                I(f"v_lshrrev_b32 v{T+2}, 4, v0"); I(f"v_lshlrev_b32 v{T+2}, 4, v{T+2}"); I(f"v_lshl_add_u32 v23, v{T+1}, 10, v{T+2}")
                I(f"s_and_b32 s40, s{SW}, 1"); I("s_lshl_b32 s40, s40, 6"); I("s_add_u32 s40, s40, s47")
                I(f"buffer_load_dwordx4 {v(XR,4)}, v23, s[{RD}:{RD+3}], s40 offen"); vm.issue()
            if i + 1 < 32: trreads(i + 1)
            vm.wait(ctok[i])
            for mt in range(2):
                lg.wait(rtok[(i,mt)])
                for st in range(2):
                    d = v(OACC + 16*(2*mt+st), 16)
                    I(f"{MFMA} {d}, {v(WF+8*(i&1)+4*mt,4)}, {v(CX+8*(i%8)+4*st,4)}, {'0' if i == 0 else d}")
        self.stamp(7)
        PB = 32768
        I(f"v_and_b32 v{T}, 31, v0"); I(f"v_lshrrev_b32 v{T+1}, 5, v0"); I(f"v_and_b32 v{T+2}, 15, v0")
        I(f"v_xor_b32 v{T+1}, v{T+1}, v{T+2}"); I(f"v_lshlrev_b32 v{T+1}, 4, v{T+1}"); I(f"v_lshl_add_u32 v{T}, v{T}, 8, v{T+1}")
        I(f"s_lshl_b32 s34, s{SW}, 14"); I(f"s_add_u32 s34, s34, {PB}"); I(f"v_add_u32 v{T}, s34, v{T}")
        self.barrier()
        for mt in range(2):
            for gq in range(4):
                I(f"v_xor_b32 v{T+1}, {(8*mt+2*gq)*16}, v{T}")
                for st in range(2):
                    I(f"ds_write_b128 v{T+1}, {v(OACC+16*(2*mt+st)+4*gq,4)} offset:{8192*st}"); lg.issue()
        I(f"v_lshrrev_b32 v{T}, 4, v0"); I(f"s_and_b32 s41, s{SW}, 1"); I("s_lshl_b32 s42, s41, 3")
        I(f"v_lshl_add_u32 v{T+1}, v{T}, 1, s42"); I(f"v_xor_b32 v{T+1}, v{T+1}, v{T+2}"); I(f"v_lshlrev_b32 v{T+1}, 4, v{T+1}")
        I(f"v_add_u32 v{T+3}, s38, v{T+2}"); I(f"v_lshl_add_u32 v24, v{T+3}, 8, v{T+1}"); I(f"v_add_u32 v24, {PB}, v24")
        I("v_xor_b32 v25, 16, v24"); I("v_add_u32 v26, 0x10000, v24"); I("v_add_u32 v27, 0x10000, v25")
        I("s_lshl_b32 s42, s41, 5"); I(f"v_lshl_add_u32 v{T}, v{T}, 3, s42"); I(f"v_bfe_u32 v{T+1}, v0, 2, 2")
        I(f"v_add_u32 v{T}, v{T}, v{T+1}"); I(f"v_lshlrev_b32 v{T}, 7, v{T}"); I(f"v_and_b32 v{T+1}, 3, v0")
        I(f"v_lshl_add_u32 v{T}, v{T+1}, 3, v{T}"); I("s_lshl_b32 s42, s38, 1"); I(f"v_add_u32 v28, s42, v{T}")
        self.sync_all()
        tk = []
        I(f"ds_read_b64_tr_b16 {v(32,2)}, v28 offset:{YT}"); lg.issue()
        I(f"ds_read_b64_tr_b16 {v(34,2)}, v28 offset:{YT+512}"); ty2 = lg.issue()
        for p in range(8):
            for hh in range(2):
                I(f"ds_read_b128 {v(CX+8*p+4*hh,4)}, v{24+hh+2*(p>>2)} offset:{16384*(p&3)}"); lg.issue()
            tk.append(lg.issued)
            if p == 5:
                lg.wait(ty2)
                for e in range(8):
                    if e & 1: I(f"v_and_b32 v36, 0xffff0000, v{XR+(e>>1)}"); I(f"v_and_b32 v37, 0xffff0000, v{32+(e>>1)}")
                    else: I(f"v_lshlrev_b32 v36, 16, v{XR+(e>>1)}"); I(f"v_lshlrev_b32 v37, 16, v{32+(e>>1)}")
                    I(f"v_mul_f32 v{40+e}, v36, v37"); I(f"v_mul_f32 v{40+e}, v{40+e}, v{GR}")
                I(f"v_sub_f32 v{GR}, 1.0, v{GR}")
        for p in range(1, 8):
            lg.wait(tk[p])
            for e in range(8): I(f"v_add_f32 v{CX+e}, v{CX+e}, v{CX+8*p+e}")
        for e in range(8): I(f"v_fmac_f32 v{40+e}, v{CX+e}, v{GR}")
        for e in range(4): I(f"v_cvt_pk_bf16_f32 v{36+e}, v{40+2*e}, v{40+2*e+1}")
        I(f"buffer_store_dwordx4 {v(36,4)}, v23, s[{RC}:{RC+3}], s40 offen"); vm.issue()
        self.stamp(16)

def build(opts):
    g = G(opts); k = NAME + "_kernel"
    g.begin(k); g.proj(); g.attn(); g.tailp(); g.end(); g.attn_rare()
    n = g.a.fix_hazards()
    txt = "; @launch grid=(256,1,1) block=(512,1,1) lds=163840\n"
    txt += '.amdgcn_target "amdgcn-amd-amdhsa--gfx950"\n.text\n' + g.a.text()
    txt += f""".section .rodata,"a"
.p2align 6
.amdhsa_kernel {k}
  .amdhsa_next_free_vgpr 256
  .amdhsa_next_free_sgpr 102
  .amdhsa_accum_offset 256
  .amdhsa_group_segment_fixed_size 0
  .amdhsa_kernarg_size 128
  .amdhsa_user_sgpr_count 2
  .amdhsa_user_sgpr_kernarg_segment_ptr 1
  .amdhsa_system_sgpr_workgroup_id_x 1
.end_amdhsa_kernel
"""
    print(f"instructions {sum(1 for it in g.a.items if it[0] == 'i')}, nops inserted {n}", file=sys.stderr)
    return txt

if __name__ == "__main__":
    opts = {}
    for x in sys.argv[2:]:
        if "=" in x: k_, v_ = x.split("="); opts[k_] = int(v_)
        else: opts[x] = True
    open(sys.argv[1], "w").write(build(opts))
```

```python
import sys, math, struct
sys.path.insert(0, "gen")
from asmlib import *

NAME = "gated_mix__ssm_conv_h3__compressed_kv_cla__prompt"
MB = 1 << 20
KV_OFF, Q_OFF, CTX_OFF, KVT_OFF, YT_OFF, G_OFF = 0, 32*MB, 48*MB, 64*MB, 66*MB, 68*MB
WOT_OFF = 32*MB
FLG_OFF = 68*MB + 65536
FK_OFF, FY_OFF, FC_OFF = FLG_OFF, FLG_OFF + 4096, FLG_OFF + 8192
STAMP_OFF = 69*MB
WS_SIZE = 70*MB
P = dict(q=64, k=66, v=68, shift=70, ssmk=72, ssmD=74, bx=76, ckv=78, wq=80, wuk=82, wuv=84, wo=86, gate=88, out=90, dbg=92, ws=94)
SW, SHEAD, SIDX, SWK, SF = 3, 4, 5, 6, 7
RA, RB, RC, RWS, RD, RE, RT, RDBG = 8, 12, 16, 20, 24, 28, 56, 60
MFMA = "v_mfma_f32_32x32x16_bf16"
LOG2E = 1.4426950408889634
F_KV, F_CA, F_CB, F_Y = 1, 2, 4, 8
def f2u(x): return "0x%08x" % struct.unpack("<I", struct.pack("<f", x))[0]
def rep4(b): return b * 0x01010101

class G:
    def __init__(self, opts):
        self.a = Asm(); self.o = opts
        self.vm = Cnt(self.a, "vmcnt", 63); self.lg = Cnt(self.a, "lgkmcnt", 15)
        self.st = "" if opts.get("plainst") else (" sc1 nt" if opts.get("ntst") else " sc1"); self.ld = "" if opts.get("plainld") else " sc1"
    def I(self, t): self.a.I(t)
    def srd(self, r, ptr, nbytes):
        I = self.I
        I(f"s_mov_b32 s{r}, s{P[ptr]}"); I(f"s_mov_b32 s{r+1}, s{P[ptr]+1}")
        I(f"s_mov_b32 s{r+2}, {nbytes}"); I(f"s_mov_b32 s{r+3}, 0x00020000")
    def save(self): return (self.vm.issued, self.vm.done, self.lg.issued, self.lg.done)
    def restore(self, s_): self.vm.issued, self.vm.done, self.lg.issued, self.lg.done = s_
    def stream(self, mf, fills):
        n = len(mf); slots = [[] for _ in range(n + 1)]
        for (s0, e0, cl) in fills:
            m = e0 - s0
            for j, c in enumerate(cl): slots[s0 + 1 + (j * m) // len(cl)].append(c)
        for c in slots[0]: c()
        for i in range(n):
            mf[i]()
            for c in slots[i+1]: c()
    def stamp(self, i, dyn=None):
        if not self.o.get("stamp"): return
        I = self.I
        I("s_memrealtime s[96:97]"); I("s_memtime s[100:101]")
        I("s_lshl_b32 s98, s2, 3"); I(f"s_add_u32 s98, s98, s{SW}"); I("s_lshl_b32 s98, s98, 8")
        I(f"s_add_u32 s98, s98, {STAMP_OFF + 4*i}")
        if dyn is not None:
            I(f"s_lshl_b32 s99, s{dyn}, 4"); I("s_add_u32 s98, s98, s99")
        I("s_waitcnt lgkmcnt(0)")
        I("v_mov_b32 v2, s96"); I("v_mov_b32 v3, 0")
        I(f"buffer_store_dword v2, v3, s[{RWS}:{RWS+3}], s98 offen")
        I("v_mov_b32 v2, s100")
        I(f"buffer_store_dword v2, v3, s[{RWS}:{RWS+3}], s98 offen offset:128")
    OOB = 0x40000000
    def publish(self, soff, val=1, srd=RWS, byte=False, idx=None):
        I = self.I
        self.oob_sel()
        if idx is not None: I(f"s_cmp_eq_u32 s{SIDX}, {idx}"); I(f"s_cselect_b32 s99, s99, {self.OOB}")
        I(f"v_mov_b32 v2, {val}"); I("v_mov_b32 v3, s99")
        I(f"buffer_store_{'byte' if byte else 'dword'} v2, v3, s[{srd}:{srd+3}], s{soff} offen sc1"); self.vm.issue()
    def oob_sel(self):
        self.I(f"s_cmp_eq_u32 s{SW}, 0"); self.I(f"s_cselect_b32 s99, 0, {self.OOB}")
    def poll_issue(self, vd, vaddr, soff, srd=RWS):
        self.I(f"buffer_load_dword v{vd}, v{vaddr}, s[{srd}:{srd+3}], {soff} offen sc1"); return self.vm.issue()
    def poll_check(self, vd, vaddr, soff, want, srd=RWS):
        a = self.a; I = self.I
        l = a.label("PCK"); lp = a.label("POLL")
        I(f"s_mov_b32 s98, {want}"); I("s_mov_b32 s99, 20000")
        a.L(lp)
        I(f"v_and_b32 v{vd}, s98, v{vd}"); I(f"v_cmp_ne_u32 vcc, s98, v{vd}"); I(f"s_cbranch_vccz {l}")
        I("s_sleep 2")
        I(f"buffer_load_dword v{vd}, v{vaddr}, s[{srd}:{srd+3}], {soff} offen sc1")
        I("s_sub_u32 s99, s99, 1"); I("s_cmp_lg_u32 s99, 0"); I("s_waitcnt vmcnt(0)"); I(f"s_cbranch_scc1 {lp}")
        a.L(l)
    def barrier(self): self.I("s_barrier")
    def sync_all(self):
        self.I("s_waitcnt vmcnt(0) lgkmcnt(0)"); self.vm.mark_all_done(); self.lg.mark_all_done(); self.barrier()

    def begin(self, kname):
        a = self.a; I = self.I
        a.T(f".globl {kname}\n.p2align 8\n.type {kname},@function"); a.L(kname)
        self.endl = a.label("END")
        if self.o.get("stamp"): I("s_memrealtime s[30:31]")
        I("s_load_dwordx16 s[64:79], s[0:1], 0"); I("s_load_dwordx16 s[80:95], s[0:1], 64")
        I("s_cmp_ge_u32 s2, 256"); I(f"s_cbranch_scc1 {self.endl}")
        I("v_lshrrev_b32 v1, 6, v0"); I("v_and_b32 v0, 63, v0"); I(f"v_readfirstlane_b32 s{SW}, v1")
        I("s_and_b32 s7, s2, 7"); I("s_lshl_b32 s7, s7, 2")
        I(f"s_lshr_b32 s{SIDX}, s2, 3"); I(f"s_lshr_b32 s{SHEAD}, s{SIDX}, 3"); I(f"s_add_u32 s{SHEAD}, s{SHEAD}, s7")
        I(f"s_and_b32 s{SIDX}, s{SIDX}, 7"); I(f"s_lshl_b32 s{SWK}, s{SW}, 10")
        I(f"s_lshl_b32 s{SF}, s{SHEAD}, 3"); I(f"s_add_u32 s{SF}, s{SF}, s{SIDX}")
    def end(self):
        self.a.L(self.endl); self.I("s_endpgm")

    def proj(self):
        a = self.a; I = self.I; vm = self.vm; lg = self.lg
        PREP = 114688; QA_LDS = 65536
        ACCS = [64, 128]
        FX = [16, 32]; FW = [24, 40]
        VXA = 4; VWA = 8; VOX, VOW = 10, 11; VST = 12; VXH = 48
        T = 192
        I("v_lshrrev_b32 v13, 3, v0"); I(f"s_lshl_b32 s40, s{SW}, 3"); I("v_add_u32 v13, s40, v13"); I("v_lshlrev_b32 v13, 10, v13")
        I("v_lshrrev_b32 v14, 4, v0"); I(f"s_and_b32 s40, s{SW}, 1"); I("s_lshl_b32 s40, s40, 2"); I("v_add_u32 v15, s40, v14")
        I("v_and_b32 v3, 7, v0"); I("v_xor_b32 v15, v15, v3"); I(f"v_lshl_add_u32 v{VOX}, v15, 4, v13")
        I(f"s_lshl_b32 s40, s{SW}, 2"); I("v_add_u32 v13, s40, v14"); I("v_lshlrev_b32 v13, 13, v13")
        I("v_lshlrev_b32 v15, 2, v14"); I("v_and_b32 v3, 15, v0"); I("v_xor_b32 v15, v15, v3")
        I("v_lshl_add_u32 v13, v15, 4, v13"); I(f"s_lshl_b32 s40, s{SHEAD}, 8"); I(f"v_add_u32 v{VOW}, s40, v13")
        I(f"v_lshlrev_b32 v{VST}, 4, v0")
        I(f"s_lshl_b32 s44, s{SIDX}, 18")
        for i in range(1, 4): I(f"s_add_u32 s{44+i}, s44, {65536*i}")
        I("s_waitcnt lgkmcnt(0)")
        if self.o.get("stamp"): I("s_memrealtime s[28:29]")
        self.srd(RA, "ckv", 2*MB); self.srd(RB, "wuk", 4*MB)
        def xbase(t): return (32768, 131072, 0)[t % 3]
        def wbase(t): return 65536 + (t % 3)*16384
        def dma_list(t):
            L = []
            if t > 23: return L
            ph, tt = t >> 3, t & 7
            for i in range(2):
                def f(i=i):
                    I(f"s_add_u32 m0, s{SWK}, {wbase(t) + i*8192}"); I(f"s_mov_b32 s41, {tt*524288 + i*262144}")
                    r = (RB, RC, RE)[ph]
                    I(f"buffer_load_dwordx4 v{VOW}, s[{r}:{r+3}], s41 offen lds"); vm.issue()
                L.append(f)
            for i in range(4):
                def f(i=i):
                    I(f"s_add_u32 m0, s{SWK}, {xbase(t) + i*8192}"); I(f"s_add_u32 s41, s{(48 if ph == 2 else 44)+i}, {tt*128}")
                    r = RD if ph == 2 else RA
                    I(f"buffer_load_dwordx4 v{VOX}, s[{r}:{r+3}], s41 offen lds"); vm.issue()
                L.append(f)
            return L
        dtok = {}
        for f in dma_list(0): f()
        dtok[0] = vm.issued
        self.srd(RWS, "ws", WS_SIZE); self.srd(RDBG, "dbg", 256); self.srd(RC, "wuv", 4*MB)
        self.stamp(31)
        if self.o.get("stamp"):
            I("v_mov_b32 v2, s30"); I("s_sub_u32 s98, s98, 124"); I(f"buffer_store_dword v2, v3, s[{RWS}:{RWS+3}], s98 offen")
            I("v_mov_b32 v2, s28"); I(f"buffer_store_dword v2, v3, s[{RWS}:{RWS+3}], s98 offen offset:120")
        I(f"s_lshl_b32 s48, s{SIDX}, 17"); I("s_add_u32 s49, s48, 65536")
        I(f"s_sub_u32 s50, 15, s{SIDX}"); I("s_lshl_b32 s50, s50, 17"); I("s_add_u32 s51, s50, 65536")
        I(f"s_and_b32 s42, s{SW}, 3"); I("s_lshl_b32 s42, s42, 6"); I(f"s_lshr_b32 s43, s{SW}, 2"); I("s_lshl_b32 s43, s43, 1")
        I("v_and_b32 v13, 31, v0"); I("v_add_u32 v13, s42, v13")
        I("v_lshrrev_b32 v14, 1, v13"); I("v_and_b32 v14, 7, v14"); I("v_lshrrev_b32 v15, 5, v0")
        I("v_xor_b32 v14, v14, v15"); I("v_lshlrev_b32 v14, 4, v14"); I(f"v_lshl_add_u32 v{VXA}, v13, 7, v14")
        for k in range(1, 4): I(f"v_xor_b32 v{VXA+k}, {k<<5}, v{VXA}")
        for k in range(4): I(f"v_add_u32 v{VXH+k}, 0x20000, v{VXA+k}")
        I("v_bfe_u32 v13, v0, 2, 2"); I("v_lshl_add_u32 v14, v15, 3, v13"); I("v_lshlrev_b32 v14, 8, v14")
        I("v_bfe_u32 v15, v0, 4, 1"); I("v_lshl_add_u32 v14, v15, 5, v14")
        I("v_and_b32 v15, 3, v0"); I("v_lshl_add_u32 v14, v15, 3, v14"); I("v_add_u32 v14, 0x10000, v14")
        I("v_xor_b32 v13, s43, v13"); I(f"v_lshl_add_u32 v{VWA}, v13, 6, v14"); I(f"v_xor_b32 v{VWA+1}, 64, v{VWA}")
        I(f"s_lshl_b32 s54, s{SHEAD}, 4"); I(f"s_lshl_b32 s55, s{SIDX}, 1"); I("s_add_u32 s54, s54, s55")
        I(f"s_bfe_u32 s55, s{SW}, 0x10001"); I("s_add_u32 s54, s54, s55"); I("s_lshl_b32 s54, s54, 16")
        I(f"s_and_b32 s55, s{SW}, 1"); I("s_lshl_b32 s55, s55, 14"); I("s_add_u32 s54, s54, s55")
        I("s_lshl_b32 s55, s43, 10"); I("s_add_u32 s52, s54, s55"); I("s_add_u32 s52, s52, 0x8000")
        I("s_lshl_b32 s55, s43, 11"); I("s_add_u32 s54, s54, s55")

        if self.o.get("hotst"):
            I(f"s_and_b32 s54, s54, {self.o['hotst']*MB-1}"); I(f"s_and_b32 s52, s52, {self.o['hotst']*MB-1}")
        KR = T + 4; VR = T + 11; SH = T + 16; XG = T + 20; GW = T + 24
        hl = {}
        def prep_loads():
            L = []
            def E(t): L.append(lambda: I(t))
            def V(t):
                def f(): I(t); vm.issue()
                L.append(f)
            E(f"s_lshl_b32 s40, s{SHEAD}, 7"); E(f"s_lshl_b32 s39, s{SIDX}, 2"); E("s_add_u32 s40, s40, s39"); E(f"s_add_u32 s40, s40, {FK_OFF}")
            E(f"v_mov_b32 v2, s40")
            E(f"s_lshr_b32 s39, s{SHEAD}, 2"); E("s_lshl_b32 s39, s39, 7"); E(f"s_and_b32 s40, s{SHEAD}, 3"); E("s_lshl_b32 s40, s40, 2"); E("s_add_u32 s39, s39, s40")
            E(f"s_lshl_b32 s40, s{SIDX}, 10"); E("s_add_u32 s40, s40, s39"); E(f"s_add_u32 s40, s40, {FC_OFF}")
            E("v_writelane_b32 v2, s40, 1")
            E(f"s_sub_u32 s40, 15, s{SIDX}"); E("s_lshl_b32 s40, s40, 10"); E("s_add_u32 s40, s40, s39"); E(f"s_add_u32 s40, s40, {FC_OFF}")
            E("v_writelane_b32 v2, s40, 2")
            E(f"s_lshl_b32 s40, s{SF}, 2"); E(f"s_add_u32 s40, s40, {FY_OFF}"); E("v_writelane_b32 v2, s40, 3"); E("v_mov_b32 v3, 0")
            L.append(self.oob_sel); E("v_add_u32 v2, s99, v2")
            V(f"buffer_store_dword v3, v2, s[{RWS}:{RWS+3}], 0 offen sc1")
            E("s_lshl_b32 s37, s2, 3"); E(f"s_add_u32 s37, s37, s{SW}"); E("s_lshl_b32 s38, s37, 10")
            L.append(lambda: self.srd(RD, "q", 2*MB)); L.append(lambda: self.srd(RE, "wq", 4*MB)); L.append(lambda: self.srd(RT, "gate", 1024))
            V(f"buffer_load_dwordx4 {v(XG,4)}, v{VST}, s[{RD}:{RD+3}], s38 offen")
            V(f"buffer_load_dwordx4 {v(GW,4)}, v{VST}, s[{RT}:{RT+3}], 0 offen")
            L2 = L; L = []
            E("s_lshr_b32 s32, s2, 3"); E("s_and_b32 s33, s2, 7"); E("s_lshl_b32 s34, s32, 6")
            E(f"s_lshl_b32 s35, s{SW}, 3"); E("s_add_u32 s35, s35, s34")
            E("v_lshrrev_b32 v13, 5, v0"); E("v_and_b32 v14, 31, v0"); E("v_lshl_add_u32 v15, v13, 2, s35"); E("v_lshlrev_b32 v15, 10, v15")
            E("s_lshl_b32 s36, s33, 7"); E("v_lshl_add_u32 v14, v14, 2, s36"); E(f"v_add_u32 v{T}, v15, v14")
            for i in range(3): E(f"v_subrev_u32 v{T+1+i}, {3072-1024*i}, v{T}")
            E("v_lshlrev_b32 v14, 2, v14")
            L.append(lambda: self.srd(RT, "k", 2*MB))
            for i in range(3): V(f"buffer_load_dword v{KR+i}, v{T+1+i}, s[{RT}:{RT+3}], 0 offen")
            for i in range(4): V(f"buffer_load_dword v{KR+3+i}, v{T}, s[{RT}:{RT+3}], 0 offen offset:{1024*i}")
            L.append(lambda: self.srd(RT, "v", 2*MB))
            for i in range(4): V(f"buffer_load_dword v{VR+i}, v{T}, s[{RT}:{RT+3}], 0 offen offset:{1024*i}")
            L.append(lambda: self.srd(RT, "shift", 4096))
            V(f"buffer_load_dwordx4 {v(SH,4)}, v14, s[{RT}:{RT+3}], 0 offen")
            def mk(): hl["t"] = vm.issued
            L.append(mk)
            return L2, L
        def prep_ops():
            L = []; E = lambda t: L.append(lambda: I(t))
            KU = T + 28; SU = T + 36; O = T + 40; VU = T + 44; PK = T + 46
            L.append(lambda: vm.wait(hl["t"]))
            E("v_lshrrev_b32 v14, 5, v0"); E("v_and_b32 v15, 31, v0"); E("v_mul_u32_u24 v13, 288, v15")
            E("v_xor_b32 v14, 1, v14"); E("v_lshl_add_u32 v13, v14, 3, v13")
            E(f"s_lshl_b32 s40, s{SW}, 4"); E(f"s_add_u32 s40, s40, {PREP}"); E("v_add_u32 v13, s40, v13")
            for c in range(2):
                def unp(d, sreg, half): E(f"v_lshlrev_b32 v{d}, 16, v{sreg}" if half == 0 else f"v_and_b32 v{d}, 0xffff0000, v{sreg}")
                for i in range(7): unp(KU+i, KR+i, c)
                for j in range(4): unp(SU+j, SH + 2*c + (j >> 1), j & 1)
                for o in range(4):
                    E(f"v_mul_f32 v{O+o}, v{KU+o}, v{SU+3}")
                    for j in (2, 1, 0): E(f"v_fmac_f32 v{O+o}, v{KU+o+3-j}, v{SU+j}")
                    unp(VU, VR+o, c)
                    E(f"v_mul_f32 v{O+o}, v{O+o}, v{VU}")
                E(f"v_cvt_pk_bf16_f32 v{PK}, v{O+3}, v{O+2}"); E(f"v_cvt_pk_bf16_f32 v{PK+1}, v{O+1}, v{O}")
                def w(PK=PK, c=c):
                    I(f"ds_write_b64 v13, {v(PK,2)} offset:{144*c}"); lg.issue()
                L.append(w); PK += 2
            Z = T + 52
            E(f"v_dot2_f32_bf16 v{Z}, v{XG}, v{GW}, 0")
            for i in range(1, 4): E(f"v_dot2_f32_bf16 v{Z}, v{XG+i}, v{GW+i}, v{Z}")
            for m in ("quad_perm:[1,0,3,2] row_mask:0xf", "quad_perm:[2,3,0,1] row_mask:0xf", "row_half_mirror row_mask:0xf", "row_mirror row_mask:0xf",
                      "row_bcast:15 row_mask:0xa", "row_bcast:31 row_mask:0xc"):
                E(f"v_add_f32_dpp v{Z}, v{Z}, v{Z} {m} bank_mask:0xf")
            E(f"v_readlane_b32 s40, v{Z}, 63"); E(f"v_mov_b32 v{Z+1}, {f2u(-LOG2E)}"); E(f"v_mul_f32 v{Z}, s40, v{Z+1}")
            E(f"v_exp_f32 v{Z}, v{Z}"); E(f"v_add_f32 v{Z}, 1.0, v{Z}"); E(f"v_rcp_f32 v{Z}, v{Z}")
            E("s_lshl_b32 s38, s37, 2"); E(f"s_add_u32 s38, s38, {G_OFF}"); E(f"v_mov_b32 v{Z+1}, 0")
            def gs():
                I(f"buffer_store_dword v{Z}, v{Z+1}, s[{RWS}:{RWS+3}], s38 offen{self.st}"); vm.issue()
            L.append(gs)
            return L
        def prep_out():
            L = []; E = lambda t: L.append(lambda: I(t)); h = {}
            E("v_lshrrev_b32 v13, 3, v0"); E(f"s_lshl_b32 s40, s{SW}, 3"); E("v_add_u32 v13, s40, v13")
            E("v_and_b32 v14, 7, v0"); E("v_lshlrev_b32 v14, 4, v14"); E("v_mul_u32_u24 v15, 144, v13")
            E("v_add_u32 v15, v15, v14"); E(f"v_add_u32 v15, {PREP}, v15")
            def r():
                I(f"ds_read_b128 {v(T,4)}, v15"); h["t"] = lg.issue()
            L.append(r)
            E("v_lshl_add_u32 v13, v13, 12, v14"); E("s_lshl_b32 s38, s33, 18"); E("s_lshl_b32 s39, s34, 1")
            E("s_add_u32 s38, s38, s39"); E(f"s_add_u32 s38, s38, {KVT_OFF}")
            def st():
                lg.wait(h["t"])
                I(f"buffer_store_dwordx4 {v(T,4)}, v13, s[{RWS}:{RWS+3}], s38 offen{self.st}"); h["st"] = vm.issue()
            L.append(st)
            return L, h
        def reads(t, k):
            st = k & 1; toks = {}
            xb = xbase(t); va = VXA if xb < 65536 else VXH
            def rx(mt):
                I(f"ds_read_b128 {v(FX[st]+4*mt,4)}, v{va+k} offset:{(xb & 65535)+mt*4096}"); toks[("x",mt)] = lg.issue()
            def rw(dt, h):
                I(f"ds_read_b64_tr_b16 {v(FW[st]+4*dt+2*h,2)}, v{VWA+dt} offset:{wbase(t)-65536+k*4096+h*1024}"); toks[("w",dt)] = lg.issue()
            return [lambda: rx(0), lambda: rw(0,0), lambda: rw(0,1), lambda: rw(1,0), lambda: rw(1,1), lambda: rx(1)], toks
        def mfs(t, k, toks):
            st = k & 1; L = []; ph = t >> 3; acc = ACCS[ph & 1]; first = (t & 7) == 0 and k == 0
            for mt in range(2):
                for dt in range(2):
                    def f(mt=mt, dt=dt):
                        lg.wait(max(toks[("x",mt)], toks[("w",dt)]))
                        d = v(acc + 16*(2*mt+dt), 16); X = v(FX[st]+4*mt,4); W = v(FW[st]+4*dt,4)
                        c = "0" if first else d
                        I(f"{MFMA} {d}, {X}, {W}, {c}" if ph == 1 else f"{MFMA} {d}, {W}, {X}, {c}")
                    L.append(f)
            return L
        def kv_out(ph):
            acc = ACCS[ph & 1]; out = []
            for tile in range(4):
                rt, dt = tile >> 1, tile & 1; b = acc + 16*tile
                for half in range(2):
                    pk = [lambda i=i, b=b: I(f"v_cvt_pk_bf16_f32 v{b+i}, v{b+2*i}, v{b+2*i+1}") for i in range(4*half, 4*half+4)]
                    if ph == 0: pk = [lambda i=i, b=b: I(f"v_mul_f32 v{b+i}, {f2u(LOG2E / math.sqrt(128.0))}, v{b+i}") for i in range(8*half, 8*half+8)] + pk
                    off = rt*8192 + (dt*2048 + half*1024 if ph == 0 else half*4096 + dt*1024)
                    def st(b=b, half=half, off=off):
                        if self.o.get("nost"): return
                        I(f"s_add_u32 s41, s{(54, 52)[ph]}, {off}")
                        I(f"buffer_store_dwordx4 {v(b+4*half,4)}, v{VST}, s[{RWS}:{RWS+3}], s41 offen{self.st}"); vm.issue()
                    out.append(pk + [st])
            return out
        side = {}; late = {}
        def spread(ops, t0, t1):
            sl = [(t, k) for t in range(t0, t1) for k in range(3)]
            n = len(ops)
            for j, key in enumerate(sl): side.setdefault(key, []).extend(ops[n*j//len(sl): n*(j+1)//len(sl)])
        PL = self.o.get("pl", 8); PW = self.o.get("pw", 7); KS = self.o.get("ks", 10)
        LA_, LB_ = prep_loads(); spread(LA_, self.o.get("pg", 0), self.o.get("pg", 0) + 1); spread(LB_, PL, PL + 1); spread(prep_ops(), PL + 4, PL + 7)
        P1, hp = prep_out(); spread(P1, PL + 7, PL + 8)
        if self.o.get("noside"):
            side.clear(); spread(LA_, 0, 1); hp["st"] = 0
        def wo_job():
            A = []; B = []; h = {}
            EA = lambda t: A.append(lambda: I(t)); EB = lambda t: B.append(lambda: I(t))
            A.append(lambda: self.srd(RT, "wo", 4*MB))
            EA("v_lshrrev_b32 v52, 3, v0"); EA("v_bfe_u32 v53, v0, 4, 1"); EA("v_lshlrev_b32 v53, 2, v53"); EA("v_and_b32 v54, 7, v0")
            EA("v_xor_b32 v53, v53, v54"); EA("v_lshlrev_b32 v53, 4, v53"); EA("v_lshl_add_u32 v52, v52, 10, v53")
            EA(f"s_lshl_b32 s55, s{SF}, 14"); EA(f"s_lshl_b32 s39, s{SW}, 7"); EA("s_add_u32 s55, s55, s39"); EA(f"s_lshl_b32 s53, s{SW}, 11"); EA(f"s_add_u32 s53, s53, {PREP}")
            for hh in range(2):
                def f(hh=hh):
                    I(f"s_add_u32 m0, s53, {hh*1024}"); I(f"s_add_u32 s39, s55, {hh*8192}")
                    I(f"buffer_load_dwordx4 v52, s[{RT}:{RT+3}], s39 offen lds"); h["d"] = vm.issue()
                A.append(f)
            EB("v_bfe_u32 v52, v0, 2, 2"); EB("v_lshrrev_b32 v53, 5, v0"); EB("v_lshl_add_u32 v52, v53, 2, v52"); EB("v_lshlrev_b32 v52, 7, v52")
            EB("v_bfe_u32 v53, v0, 3, 1"); EB("v_lshl_add_u32 v52, v53, 6, v52"); EB("v_bfe_u32 v53, v0, 4, 1"); EB("v_lshl_add_u32 v52, v53, 5, v52")
            EB("v_and_b32 v53, 3, v0"); EB("v_lshl_add_u32 v52, v53, 3, v52"); EB("v_add_u32 v52, s53, v52"); EB("v_xor_b32 v53, 64, v52")
            def rd():
                assert vm.done >= h["d"]
                for mt in range(2):
                    for hh in range(2):
                        I(f"ds_read_b64_tr_b16 {v(T+56+4*mt+2*hh,2)}, v{52+mt} offset:{hh*1024}"); h["r"] = lg.issue()
            B.append(rd)
            EB(f"s_lshl_b32 s55, s{SW}, 8"); EB(f"s_add_u32 s55, s55, s{SF}"); EB("s_lshl_b32 s55, s55, 11"); EB(f"s_add_u32 s55, s55, {WOT_OFF}")
            def st():
                lg.wait(h["r"])
                for mt in range(2):
                    I(f"buffer_store_dwordx4 {v(T+56+4*mt,4)}, v{VST}, s[{RWS}:{RWS+3}], s55 offen offset:{mt*1024}{self.st}"); h["st"] = vm.issue()
            B.append(st)
            return A, B, h
        WA, WB, hw = wo_job()
        if self.o.get("noside"): hw["st"] = 0
        else: spread(WA, PW, PW + 1); spread(WB, PW + 3, PW + 4)
        def wtouch(r, half, wv):
            def f():
                I(f"s_cmp_eq_u32 s{SW}, {wv}"); I(f"s_cselect_b32 s99, 0, {self.OOB}")
                I(f"s_lshl_b32 s40, s{SIDX}, 19"); I(f"s_lshl_b32 s39, s{SHEAD}, 8"); I("s_add_u32 s40, s40, s39"); I(f"s_add_u32 s40, s40, {half*32*8192}")
                I("v_lshrrev_b32 v3, 1, v0"); I("v_lshlrev_b32 v3, 13, v3"); I("v_and_b32 v2, 1, v0"); I("v_lshl_add_u32 v3, v2, 7, v3"); I("v_add_u32 v3, s99, v3")
                I(f"buffer_load_dword v1, v3, s[{r}:{r+3}], s40 offen"); vm.issue()
            return f
        def ftouch(r, i, wv):
            def f():
                I(f"s_cmp_eq_u32 s{SW}, {wv}"); I(f"s_cselect_b32 s99, 0, {self.OOB}"); I("v_add_u32 v3, s99, v55")
                I(f"s_add_u32 s41, s42, {i*524288}")
                I(f"buffer_load_dword v1, v3, s[{r}:{r+3}], s41 offen"); vm.issue()
            return f
        if not self.o.get("fine"):
            t0 = self.o.get("wt", 1); t1 = self.o.get("wt2", 4)
            for j, (r, half) in enumerate(((RC, 0), (RC, 1), (RE, 0), (RE, 1))): side.setdefault(((t0 + j) if j < 2 else (t1 + j - 2), 2), []).append(wtouch(r, half, j))
        else:
            FT = []; EF = lambda t: FT.append(lambda: I(t))
            EF("v_lshrrev_b32 v55, 1, v0"); EF("v_lshlrev_b32 v55, 13, v55"); EF("v_and_b32 v54, 1, v0"); EF("v_lshl_add_u32 v55, v54, 7, v55")
            EF("v_lshrrev_b32 v54, 4, v0"); EF("v_lshl_add_u32 v55, v54, 28, v55")
            EF(f"s_lshl_b32 s42, s{SIDX}, 16"); EF(f"s_lshl_b32 s36, s{SHEAD}, 8"); EF("s_add_u32 s42, s42, s36")
            side.setdefault((0, 0), []).extend(FT)
            ft = self.o.get("ft", 1); fk = self.o.get("fk", 2)
            for i in range(8):
                side.setdefault((ft + i, 2), []).append(ftouch(RC, i, i)); side.setdefault((ft + i, 0), []).append(ftouch(RE, i, (i + 4) & 7))
        VS = self.o.get("vstages", 5)
        for ph, t0, t1 in ((0, KS, 16), (1, 16, 16 + VS)):
            pieces = kv_out(ph); sl = [(t, k) for t in range(t0, t1) for k in range(3)]
            for j, pc in enumerate(pieces):
                tt = t0 + (j * (t1 - t0)) // 8
                hh = len(pc) - 5
                side.setdefault((tt, 0), []).extend(pc[:hh]); side.setdefault((tt, 1), []).extend(pc[hh:-1]); late.setdefault(tt, []).append(pc[-1])
        QE = []; EQ = lambda t: QE.append(lambda: I(t))
        EQ(f"s_and_b32 s55, s{SW}, 2"); EQ("s_lshl_b32 s55, s55, 15"); EQ(f"s_add_u32 s55, s55, {QA_LDS}")
        EQ(f"s_and_b32 s54, s{SW}, 1"); EQ("s_lshl_b32 s54, s54, 14"); EQ("s_add_u32 s55, s55, s54")
        EQ("s_lshl_b32 s54, s43, 11"); EQ("s_add_u32 s55, s55, s54"); EQ(f"v_add_u32 v14, s55, v{VST}"); EQ("v_mov_b32 v54, v13")
        spread(QE, 23, 24)
        spread([lambda r=r: I(f"v_mov_b64 {v(192+2*r,2)}, 0") for r in range(32)], 22, 24)
        def fkoff():
            I(f"s_lshl_b32 s40, s{SHEAD}, 7"); I(f"s_lshl_b32 s41, s{SIDX}, 2"); I("s_add_u32 s40, s40, s41"); I(f"s_add_u32 s40, s40, {FK_OFF}")
        def w0only(fn):
            l = a.label("NP"); I(f"s_cmp_lg_u32 s{SW}, 0"); I(f"s_cbranch_scc1 {l}"); fn(); a.L(l)

        def ctouch():
            I(f"s_cmp_eq_u32 s{SW}, 0"); I(f"s_cselect_b32 s99, 0, {self.OOB}"); I("v_lshl_add_u32 v3, v0, 7, s99"); I("s_lshl_b32 s40, s2, 13")
            I(f"buffer_load_dword v1, v3, s[{RA}:{RA+3}], s40 offen"); vm.issue()
        if self.o.get("ct", 1):
            lp = a.label("PC")
            I(f"s_getpc_b64 s[{RT}:{RT+1}]"); a.L(lp)
            I(f"s_mov_b32 s{RT+2}, CODE_END-{lp}"); I(f"s_mov_b32 s{RT+3}, 0x00020000")
            I(f"s_cmp_eq_u32 s{SW}, 7"); I(f"s_cselect_b32 s99, 0, {self.OOB}"); I(f"s_and_b32 s40, s{SF}, 7"); I("s_lshl_b32 s40, s40, 13"); I("s_add_u32 s99, s99, s40")
            I("v_lshl_add_u32 v3, v0, 7, s99")
            I(f"buffer_load_dword v1, v3, s[{RT}:{RT+3}], 0 offen"); vm.issue()
        if self.o.get("sb", 1): self.barrier()
        for f in dma_list(1): f()
        dtok[1] = vm.issued
        T0 = [wtouch(RB, 0, 1), wtouch(RB, 1, 2), ctouch] if not self.o.get("not0k") else []
        if self.o.get("t0pre"):
            for f in T0: f()
            T0 = []
        vm.wait(dtok[0]); self.barrier()
        self.stamp(1)
        L, toks = reads(0, 0)
        for f in L: f()
        for f in T0: f()
        mark = {}; TD = max(PL + 9, PW + 5); TZ = self.o.get("pg", 0) + 2
        pend = dma_list(2)
        for t in range(24):
            for k in range(4):
                M = mfs(t, k, toks)
                if k < 3:
                    L, nt = reads(t, k+1)
                    D, pend = pend[:self.o.get("dper", 2)], pend[self.o.get("dper", 2):]
                    fl = [(0, 3, L)]
                    if D: fl.append((0, 4, D))
                    if side.get((t, k)): fl.append((0, 4, side[(t, k)]))
                    if k == 2 and late.get(t): fl.append((0, 4, late[t]))
                    self.stream(M, fl); toks = nt
                    if not pend and (t + 2) not in dtok: dtok[t+2] = vm.issued
                    if k == 2: mark[t] = vm.issued
                    if t == 17 and k == 0:
                        self.oob_sel(); I("v_lshl_add_u32 v13, v0, 2, s99"); td = self.poll_issue(14, 13, "0", RDBG)
                    if t == 20 and k == 0:
                        self.oob_sel(); I("v_and_b32 v13, 7, v0"); I("v_lshl_add_u32 v13, v13, 2, s99")
                        I(f"s_lshl_b32 s53, s{SHEAD}, 7"); I(f"s_add_u32 s53, s53, {FK_OFF}")
                        tp = self.poll_issue(15, 13, "s53")
                elif t < 23:
                    assert not pend
                    if t == 19: vm.wait(td); w0only(lambda: self.poll_check(14, 13, "0", rep4(1), RDBG))
                    if t == 21: vm.wait(tp); w0only(lambda: self.poll_check(15, 13, "s53", 1))
                    lg.wait(lg.issued); vm.wait(dtok[t+1])
                    if t == TZ: vm.wait(mark[TZ-2])
                    if t == TD: vm.wait(max(hw["st"], hp["st"]))
                    if t == 17: vm.wait(mark[15])
                    if t == 16 + VS: vm.wait(mark[15 + VS])
                    self.barrier()
                    ps = self.o.get("pstamp")
                    if ps is not None and 0 <= t - int(ps) + 1 < 13: self.stamp(17 + t - int(ps) + 1); vm.issue(2)
                    if TZ <= t < TZ + 8: self.publish(SF, 1, RDBG, True, idx=t - TZ)
                    if t == TD:
                        I(f"s_lshl_b32 s40, s{SF}, 2"); I(f"s_add_u32 s40, s40, {FY_OFF}"); self.publish(40, 2)
                    if t == 17: fkoff(); self.publish(40, 1)
                    if t == 16 + VS: fkoff(); self.publish(40, 3)
                    L, nt = reads(t+1, 0)
                    pend = dma_list(t+3)
                    if t == 21:
                        def k0(i):
                            I(f"s_lshl_b32 s40, s{SW}, 12"); I("s_add_u32 m0, s40, 0x8000")
                            I(f"s_lshl_b32 s41, s{SHEAD}, 20"); I("s_add_u32 s41, s41, s40")
                            I(f"buffer_load_dwordx4 v{VST}, s[{RWS}:{RWS+3}], s41 offen offset:{1024*i}{self.ld} lds"); vm.issue()
                        pend = [lambda i=i: k0(i) for i in range(4)]
                    D, pend = pend[:self.o.get("dper", 2)], pend[self.o.get("dper", 2):]
                    self.stream(M, [(0, 3, L)] + ([(0, 4, D)] if D else [])); toks = nt
                    if not pend: dtok[t+3] = vm.issued
                else:
                    self.stream(M, [])
            if t == 7: self.stamp(2)
        self.stamp(3)
        def side_check():
            l = a.label("SCK"); lp = a.label("SPL")
            I("s_mov_b32 s99, 20000"); a.L(lp)
            I("v_and_b32 v40, v40, v41"); I("v_and_b32 v42, v42, v43"); I("v_and_b32 v40, v40, v42"); I("v_and_b32 v40, 2, v40")
            I("v_cmp_ne_u32 vcc, 2, v40"); I(f"s_cbranch_vccz {l}"); I("s_sleep 2")
            I(f"buffer_load_dwordx4 v[40:43], v52, s[{RWS}:{RWS+3}], s51 offen sc1")
            I("s_sub_u32 s99, s99, 1"); I("s_cmp_lg_u32 s99, 0"); I("s_waitcnt vmcnt(0)"); I(f"s_cbranch_scc1 {lp}")
            a.L(l)
        def vc():
            self.poll_check(55, 54, "s53", 3); side_check()
        QACC = ACCS[0]
        self.poll_issue(55, 54, "s53")
        self.oob_sel(); I("v_lshl_add_u32 v52, v0, 4, s99"); I(f"s_mov_b32 s51, {FY_OFF}")
        I(f"buffer_load_dwordx4 v[40:43], v52, s[{RWS}:{RWS+3}], s51 offen sc1"); vm.issue()
        for tile in range(4):
            rt, dt = tile >> 1, tile & 1; b = QACC + 16*tile
            for i in range(8): I(f"v_cvt_pk_bf16_f32 v{b+i}, v{b+2*i}, v{b+2*i+1}")
            for half in range(2):
                I(f"ds_write_b128 v14, {v(b+4*half,4)} offset:{rt*8192+dt*2048+half*1024}"); lg.issue()
        self.attn_setup()
        vm.wait(vm.issued); w0only(vc)
        lg.wait(lg.issued); self.barrier()

    def attn_setup(self): self.attn(True)
    def attn(self, setup=False):
        a = self.a; I = self.I; vm = self.vm; lg = self.lg; stream = self.stream
        ML = 159744; QA_LDS = 65536; QB_LDS = 131072
        O = 192; QF = 160; NM = 144; S = [112, 128]; PP = [96, 104]; RING = 64; NR = 8; E = 56; PK = 16
        VK, VV, VL16, LRUN, LU, THR, NINF, VQ, TMP, LA = 4, 5, 6, 7, 8, 9, 10, 11, 12, 48
        SR, SG, SC1, SC2, SKO, SVO, SKM, SVM, STH = 32, 33, 34, 35, 36, 37, 38, 39, 42
        SMK, SFIN, SCA, SM1 = 54, 55, 59, 58
        DC = self.o.get("dmacost", 16); WEV = self.o.get("wev", 2)
        if setup:
            I(f"s_and_b32 s{SR}, s{SW}, 3"); I(f"s_lshr_b32 s{SG}, s{SW}, 2")
            I(f"v_lshlrev_b32 v{VL16}, 4, v0")
            I(f"s_lshl_b32 s44, s{SR}, 13"); I(f"s_add_u32 s44, s44, {QB_LDS}"); I(f"v_add_u32 v{VQ}, s44, v{VL16}")
            I(f"s_lshl_b32 s45, s{SG}, 16"); I(f"v_subrev_u32 v{TMP+1}, s45, v{VQ}")
            I(f"s_mov_b32 s{SC1}, s{SIDX}")
            I(f"s_lshl_b32 s{SC2}, s{SIDX}, 1"); I(f"s_sub_u32 s{SC2}, 14, s{SC2}")
            I(f"s_cmp_eq_u32 s{SG}, 1"); I(f"s_cselect_b32 s{SM1}, 0, -1")
            I(f"s_lshl_b32 s43, s{SW}, 12"); I(f"s_lshl_b32 s{SVO}, s{SHEAD}, 20"); I(f"s_add_u32 s{SVO}, s{SVO}, s43")
            I(f"s_add_u32 s{SKO}, s{SVO}, 0x10000"); I(f"s_add_u32 s{SVO}, s{SVO}, 0x8000")
            I(f"s_mov_b32 s{SKM}, s43"); I(f"s_add_u32 s{SVM}, s43, 0x18000")
            I(f"s_mov_b32 s{STH}, {f2u(4096.0)}"); I(f"v_mov_b32 v{NINF}, 0xff800000")
            I(f"v_and_b32 v{THR}, 31, v0"); I(f"s_lshl_b32 s44, s{SR}, 5"); I(f"v_add_u32 v{THR}, s44, v{THR}")
            I(f"v_lshrrev_b32 v{TMP}, 5, v0"); I(f"v_lshlrev_b32 v{TMP}, 2, v{TMP}"); I(f"v_sub_u32 v{THR}, v{THR}, v{TMP}")
            I(f"v_add_u32 v{VK}, 0x8000, v{VL16}")
            I(f"s_lshl_b32 s{SCA}, s{SIDX}, 2"); I(f"s_add_u32 s{SCA}, s{SCA}, s{SR}"); I(f"s_lshl_b32 s{SCA}, s{SCA}, 5"); I(f"s_add_u32 s{SCA}, s{SCA}, s{SHEAD}")
            I(f"s_lshl_b32 s{SCA}, s{SCA}, 13"); I(f"s_add_u32 s{SCA}, s{SCA}, {CTX_OFF}")
            I(f"s_mov_b32 s{SFIN}, 0")
            if self.o.get("map84", 1):
                I(f"s_lshr_b32 s56, s{SF}, 6"); I("s_lshl_b32 s56, s56, 3"); I(f"s_bfe_u32 s44, s{SF}, 0x30002"); I("s_add_u32 s56, s56, s44")
                I(f"s_bfe_u32 s57, s{SF}, 0x10005"); I("s_lshl_b32 s57, s57, 2"); I(f"s_and_b32 s44, s{SF}, 3"); I("s_add_u32 s57, s57, s44")
                I(f"s_and_b32 s40, s{SF}, 63"); I("s_lshl_b32 s40, s40, 16")
            else:
                I(f"s_mov_b32 s56, s{SHEAD}"); I(f"s_mov_b32 s57, s{SIDX}")
                I(f"s_and_b32 s40, s{SF}, 31"); I("s_lshl_b32 s40, s40, 17")
            I(f"s_lshl_b32 s44, s{SW}, 13"); I("s_add_u32 s40, s40, s44"); I(f"s_add_u32 s40, s40, {WOT_OFF}")
            I("v_lshlrev_b32 v49, 7, v0")
            self.srd(RB, "ssmk", 2*MB)
            if not self.o.get("noprio"):
                l = a.label("PR"); I(f"s_cmp_eq_u32 s{SG}, 1"); I(f"s_cbranch_scc0 {l}"); I("s_setprio 1"); a.L(l)
            return
        def loadq(va):
            qt = []
            for ds in range(8):
                I(f"ds_read_b128 {v(QF+4*ds,4)}, v{va} offset:{1024*ds}"); qt.append(lg.issue())
            return qt
        op = lambda t, c=4: (lambda: I(t), c)
        def dma4(kind):
            sm, so = (SKM, SKO) if kind == "k" else (SVM, SVO)
            def d(i):
                def f():
                    if i == 0: I(f"s_mov_b32 m0, s{sm}"); I(f"s_xor_b32 s{sm}, s{sm}, 0x8000")
                    if not (self.o.get("a_nodma") and i):
                        I(f"buffer_load_dwordx4 v{VL16}, s[{RWS}:{RWS+3}], s{so} offen offset:{1024*i}{self.ld} lds")
                    if i == 3: I(f"s_add_u32 s{so}, s{so}, 0x10000")
                return (f, DC + (8 if i == 0 else 4 if i == 3 else 0))
            return [d(i) for i in range(4)]
        self.ring_n = 0
        def rd(kind, sl, idx):
            h = {}
            def f():
                slot = self.ring_n % NR; self.ring_n += 1
                h["reg"] = RING + 4*slot
                I(f"ds_read_b128 {v(h['reg'],4)}, v{VK if kind == 'k' else VV} offset:{sl*8192+idx*1024}"); h["tok"] = lg.issue()
            return f, h
        def wait_for(R, i):
            if R[i][1]["tok"] <= lg.done: return
            j = i
            while j + 1 < len(R) and j + 1 < i + WEV and "tok" in R[j+1][1] and R[j+1][1]["tok"] > R[i][1]["tok"]: j += 1
            lg.wait(R[j][1]["tok"])
        def mf_qk(sb, ds, R, i, czero=False):
            wait_for(R, i)
            c = (("0" if czero else v(NM,16)) if ds == 0 else v(S[sb],16))
            I(f"{MFMA} {v(S[sb],16)}, {v(R[i][1]['reg'],4)}, {v(QF+4*ds,4)}, {c}")
        def mf_pv(pb, idx, R, i=None, reg=None):
            ks, dt = idx >> 2, idx & 3
            if reg is None: wait_for(R, i); reg = R[i][1]["reg"]
            I(f"{MFMA} {v(O+16*dt,16)}, {v(reg,4)}, {v(PP[pb]+4*ks,4)}, {v(O+16*dt,16)}")
        def sm_ops(sb):
            L = []
            ex = lambda i: op(f"v_exp_f32 v{E+(i&7)}, v{S[sb]+i}", 8)
            def post(j):
                r = []; e0, e1 = E + ((2*j) & 7), E + ((2*j+1) & 7)
                if j == 0: r.append(op(f"v_add_f32 v{LU}, v{e0}, v{e1}"))
                else: r += [op(f"v_add_f32 v{LU}, v{LU}, v{e0}"), op(f"v_add_f32 v{LU}, v{LU}, v{e1}")]
                r.insert(1 if j else 0, op(f"v_cvt_pk_bf16_f32 v{PP[sb]+j}, v{e0}, v{e1}"))
                return r
            L += [ex(0), ex(1)]
            for j in range(8):
                p = post(j)
                L += ([ex(2*j+2), p[0], ex(2*j+3)] + p[1:]) if j < 7 else p
            if self.o.get("a_nosm"): L = [(lambda: None, 0) if i > 3 else x for i, x in enumerate(L)]
            return L
        def sched(M, fixed, chain):
            n = len(M); fc = [sum(c for _, c in fixed.get(g, [])) for g in range(n)]
            tot = sum(c for _, c in chain)
            lo, hi = 0.0, 4000.0
            for _ in range(40):
                lev = (lo + hi) / 2
                if sum(max(0, lev - f) for f in fc) >= tot: hi = lev
                else: lo = lev
            k = 0; credit = 0.0
            for g in range(n):
                M[g]()
                for c, _ in fixed.get(g, []): c()
                credit += max(0, hi - fc[g])
                while k < len(chain) and (g == n - 1 or chain[k][1] <= credit + 2):
                    chain[k][0](); credit -= chain[k][1]; k += 1
        def put(fixed, g, items): fixed.setdefault(g, []).extend(items)
        SPL = self.o.get("spl", 26)
        ool = []
        def rarely(cmp_, body):
            lo = a.label("OOL"); lb = a.label("RET")
            I(cmp_); I(f"s_cbranch_scc1 {lo}"); a.L(lb)
            ool.append((lo, lb, body))
        def mask_body(sb, koff):
            prs = [46, 48, 50, 52]
            if koff >= 64:
                I(f"v_subrev_u32 v{TMP+3}, 64, v{THR}"); tr = TMP + 3; koff -= 64
            elif koff < 0:
                I(f"s_lshl_b32 s44, s{SG}, 6"); I(f"v_subrev_u32 v{TMP+3}, s44, v{THR}"); tr = TMP + 3; koff = -koff - 1
            else: tr = THR
            for r0 in range(0, 16, 4):
                for r in range(r0, r0+4):
                    I(f"v_cmp_lt_i32 s[{prs[r&3]}:{prs[r&3]+1}], v{tr}, {(r & 3) + 8*(r >> 2) + koff}")
                for r in range(r0, r0+4):
                    I(f"v_cndmask_b32 v{S[sb]+r}, v{S[sb]+r}, v{NINF}, s[{prs[r&3]}:{prs[r&3]+1}]")
        def rowmax(sb, dst):
            b = S[sb]
            I(f"v_max3_f32 v{dst}, v{b}, v{b+1}, v{b+2}")
            for i in range(3, 15, 2): I(f"v_max3_f32 v{dst}, v{dst}, v{b+i}, v{b+i+1}")
            I(f"v_max_f32 v{dst}, v{dst}, v{b+15}"); I(f"v_mov_b32 v{dst+1}, v{dst}")
            I(f"v_permlane32_swap_b32 v{dst}, v{dst+1}"); I(f"v_max_f32 v{dst}, v{dst}, v{dst+1}")
        def init_max():
            rowmax(0, TMP)
            I(f"v_max_f32 v{TMP}, {f2u(-1e30)}, v{TMP}")
            for r in range(16): I(f"v_sub_f32 v{NM+r}, 0, v{TMP}")
            return [op(f"v_sub_f32 v{S[0]+r}, v{S[0]+r}, v{TMP}") for r in range(16)]
        rare = []
        def check(sb, other=True):
            def f():
                lr = a.label("RARE"); lb = a.label("BACK")
                I(f"v_cmp_nge_f32 vcc, s{STH}, v{LU}")
                if self.o.get("a_nocheck"): I("s_mov_b64 vcc, 0")
                I(f"s_cbranch_vccnz {lr}"); a.L(lb)
                I(f"v_add_f32 v{LRUN}, v{LRUN}, v{LU}")
                rare.append((lr, lb, sb, other))
            return f
        def fin_body():
            I(f"v_mov_b32 v{TMP}, v{LA}"); I(f"s_mov_b32 s{SFIN}, 2"); I("s_nop 0")
            I(f"v_permlane32_swap_b32 v{TMP}, v{LA}"); I(f"v_add_f32 v{TMP}, v{TMP}, v{LA}"); I(f"v_rcp_f32 v{TMP}, v{TMP}"); I(f"v_mov_b32 v{TMP+1}, v{TMP}")
            for q in range(8):
                for i in range(8*q, 8*q+8, 2): I(f"v_pk_mul_f32 {v(O+i,2)}, {v(O+i,2)}, {v(TMP,2)}")
                for i in range(4): I(f"v_cvt_pk_bf16_f32 v{PK+4*q+i}, v{O+8*q+2*i}, v{O+8*q+2*i+1}")
                for i in range(8*q, 8*q+8, 2): I(f"v_mov_b64 {v(O+i,2)}, 0")
        def st_body():
            I(f"s_add_u32 s44, s{SCA}, 4096"); I(f"s_mov_b32 s{SFIN}, 3")
            for q in range(8):
                I(f"buffer_store_dwordx4 {v(PK+4*q,4)}, v{VL16}, s[{RWS}:{RWS+3}], s{SCA if q < 4 else 44} offen offset:{1024*(q&3)}{self.st}")
        TR = [RING + 4*(2+i) for i in range(6)]
        def head(R, vmw, with_mfma=True, post=()):
            rf = [(f, 4) for f, h in R]; sm2 = sm_ops(0)[SPL:]
            nop = lambda: None
            def first():
                I("s_waitcnt lgkmcnt(4)"); mf_pv(1, 2, None, reg=TR[0])
            M = [first] + [lambda i=i: mf_pv(1, 2+i, None, reg=TR[i]) for i in range(1, 6)] if with_mfma else [nop]*6
            nb = self.o.get("nb", 4)
            sched(M[:2], {}, sm2[:nb])
            vmw(); I("s_waitcnt lgkmcnt(0)"); lg.mark_all_done(); self.barrier(); self.ring_n = 0
            fx = {0: rf[0:2], 1: rf[2:5], 2: rf[5:6], 3: rf[6:7] + [(nop, 12 + 8*len(post))]}
            sched(M[2:], fx, sm2[nb:])
            check(0)()
            for p in post: p()
        def mk_reads():
            return ([rd("k", 0, i) for i in range(8)] + [rd("v", 0, i) for i in range(8)] +
                    [rd("k", 1, i) for i in range(8)] + [rd("v", 1, i) for i in range(8)])
        def mid(R, dmas, kx, mb=None, trans=False, endops=()):
            rf = [(f, 4) for f, h in R]
            M = [lambda i=i: mf_qk(0, i, R, i, trans) for i in range(8)] + [lambda i=i: mf_pv(0, i, R, 8+i) for i in range(8)]
            fx = {}
            for g in range(16): put(fx, g, [rf[7+g]])
            D = sum((dma4(k) for k in dmas), [])
            DS = self.o.get("dstep", 2)
            spill = []
            for n, d in enumerate(D):
                g = n * DS * (2 if len(D) == 4 else 1)
                if g < 15: put(fx, g, [d])
                else: spill.append((g - 16 if g >= 16 else 0, d))
            put(fx, 15, [(lambda: None, 20)])
            sched(M, fx, sm_ops(1))
            check(1, other=not trans)()
            if mb: mb()
            pre = []
            if trans:
                I(f"v_mov_b32 v{LA}, v{LRUN}"); I(f"v_mov_b32 v{LRUN}, 0"); I(f"s_mov_b32 s{SFIN}, 1")
                pre = init_max()
            M = [lambda i=i: mf_qk(1, i, R, 16+i) for i in range(8)] + [lambda i=i: mf_pv(1, i, R, 24+i) for i in range(2)]
            fx = {}
            for g in range(9): put(fx, g, [rf[23+g]])
            for g, d in spill: put(fx, g, [d])
            put(fx, 8, [op(f"v_xor_b32 v{VV}, 0x10000, v{VK}")] + kx)
            for n, e in enumerate(endops): put(fx, 7 - n, [e])
            put(fx, 9, [(lambda: None, 16)])
            sched(M, fx, pre + sm_ops(0)[:SPL])
            assert [R[26+i][1]["reg"] for i in range(6)] == TR
        vm4 = lambda: I("s_waitcnt vmcnt(4)")
        vm0 = lambda: I("s_waitcnt vmcnt(0)")
        def vm08():
            lo = a.label("W8"); lb = a.label("W8R")
            I(f"s_cmp_eq_u32 s{SFIN}, 3"); I(f"s_cbranch_scc1 {lo}"); I("s_waitcnt vmcnt(%d)" % self.o.get("a_vm", 0)); a.L(lb)
            def b(): I("s_waitcnt vmcnt(8)"); I(f"s_mov_b32 s{SFIN}, 4")
            ool.append((lo, lb, b))
        m1 = lambda sb, ko: (lambda: rarely(f"s_cmp_eq_u32 s{SC1}, s{SM1}", lambda: mask_body(sb, ko)))
        m2 = lambda sb, ko: (lambda: rarely(f"s_cmp_eq_u32 s{SC2}, 0", lambda: mask_body(sb, ko)))
        fin = lambda: rarely(f"s_cmp_eq_u32 s{SFIN}, 1", fin_body)
        sta = (lambda: rarely(f"s_cmp_eq_u32 s{SFIN}, 2", st_body), 8)

        def wt_body():
            I(f"buffer_load_dword v1, v49, s[{RWS}:{RWS+3}], s40 offen{self.ld}")
            if not self.o.get("map84", 1):
                I("s_add_u32 s40, s40, 0x10000"); I(f"buffer_load_dword v1, v49, s[{RWS}:{RWS+3}], s40 offen{self.ld}")
        WTN = self.o.get("wtn", -1)
        wtl = (lambda: rarely(f"s_cmp_eq_u32 s{SC2}, {WTN}", wt_body)) if WTN >= 0 else (lambda: None)
        wtf = (lambda: rarely(f"s_cmp_le_u32 s{SC2}, {WTN}", wt_body)) if WTN >= 0 else (lambda: None)
        LEV = a.label("EVEN"); LODM = a.label("ODDM"); LTRANS = a.label("TRANS"); LP2 = a.label("P2"); LP2B = a.label("P2B"); LDRAIN = a.label("DRAIN")
        self.stamp(8)
        self.ring_n = 0
        R = [rd("k", 0, i) for i in range(8)] + [rd("k", 1, i) for i in range(8)]
        for i in range(7):
            I(f"ds_read_b128 {v(QF+4*i,4)}, v{TMP+1} offset:{1024*i}"); lg.issue()
            R[i][0]()
        def q7():
            I(f"ds_read_b128 {v(QF+28,4)}, v{TMP+1} offset:{1024*7}"); lg.issue()
        if self.o.get("stouch", 1):
            I(f"s_lshl_b32 s44, s{SF}, 13"); I(f"s_add_u32 s44, s44, s{SWK}")
            I(f"buffer_load_dwordx4 v[44:47], v{VL16}, s[{RB}:{RB+3}], s44 offen")
        D = dma4("v") + dma4("k")
        sched([lambda i=i: mf_qk(0, i, R, i, True) for i in range(8)], {g: ([(q7, 4)] if g == 0 else []) + [(R[7+g][0], 4), D[g]] for g in range(8)}, [])
        m1(0, 0)()
        pre = init_max()
        I(f"v_mov_b32 v{LRUN}, 0")
        fx = {}
        put(fx, 0, [(R[15][0], 4)]); put(fx, 4, [op(f"v_xor_b32 v{VV}, 0x10000, v{VK}"), op(f"v_xor_b32 v{VK}, 0x4000, v{VK}")])
        sched([lambda i=i: mf_qk(1, i, R, 8+i) for i in range(8)], fx, pre + sm_ops(0)[:SPL])
        R = mk_reads()
        head(R, vm4, False, post=[m1(1, 32)])
        svm = self.save()
        I(f"s_branch {LODM}")
        a.L(LEV)
        R = mk_reads(); head(R, vm4)
        mid(R, "k", [op(f"v_xor_b32 v{VK}, 0x4000, v{VK}")], mb=m1(0, 0))
        R = mk_reads(); head(R, vm4, post=[m1(1, 32)])
        assert self.lg.issued - self.lg.done == svm[2] - svm[3]
        a.L(LODM)
        mid(R, "v", [op(f"v_xor_b32 v{VK}, 0xc000, v{VK}")], mb=m1(0, 64), endops=[op(f"s_sub_u32 s{SC1}, s{SC1}, 1")])
        I(f"s_cmp_lg_u32 s{SC1}, -1"); I(f"s_cbranch_scc1 {LEV}")
        I(f"s_cmp_eq_u32 s{SG}, 1"); I(f"s_cbranch_scc1 {LTRANS}")
        svt = self.save()
        R = mk_reads(); head(R, vm4, post=[wtf])
        mid(R, "k", [op(f"v_xor_b32 v{VK}, 0x8000, v{VK}")], mb=m2(0, -1))
        a.L(LP2B)
        I(f"s_cmp_eq_u32 s{SC2}, 0"); I(f"s_cbranch_scc1 {LDRAIN}")
        a.L(LP2)
        R = mk_reads(); head(R, vm08, post=[fin, lambda: I(f"s_sub_u32 s{SC2}, s{SC2}, 1"), wtl])
        mid(R, "kv", [op(f"v_xor_b32 v{VK}, 0x8000, v{VK}")], mb=m2(0, -1), endops=[sta])
        I(f"s_cmp_lg_u32 s{SC2}, 0"); I(f"s_cbranch_scc1 {LP2}")
        a.L(LDRAIN)
        self.stamp(10)
        R2 = [rd("v", 0, i) for i in range(8)] + [rd("v", 1, i) for i in range(8)]
        rf = [(f, 4) for f, h in R2]
        head(R2, vm08, post=[fin, sta[0]])
        mask_body(1, -33)
        ts, ts2, ts3 = self.tail_setup(); n8 = (len(ts) + 4) // 5
        fx = {g: [rf[7+g]] + ts[g*n8:(g+1)*n8] for g in range(8)}
        for g in range(3):
            if g < len(ts2): put(fx, 5 + g, [ts2[g]])
        sched([lambda i=i: mf_pv(0, i, R2, i) for i in range(8)], fx, sm_ops(1))
        check(1)()
        pre = []; E_ = lambda t: pre.append(op(t))
        E_(f"v_mov_b32 v{TMP}, v{LRUN}"); E_(f"s_lshl_b32 s44, s{SW}, 9"); E_(f"s_add_u32 s44, s44, {ML}")
        E_(f"v_permlane32_swap_b32 v{TMP}, v{LRUN}"); E_(f"v_add_f32 v{NM+1}, v{TMP}, v{LRUN}")
        E_(f"v_lshrrev_b32 v{TMP}, 1, v{VL16}"); E_(f"v_add_u32 v{TMP}, s44, v{TMP}")
        def wml():
            I(f"ds_write_b64 v{TMP}, {v(NM,2)}"); lg.issue()
        pre.append((wml, 4))
        E_(f"v_xor_b32 v{TMP}, 0x800, v{TMP}")
        E_(f"s_lshl_b32 s46, s{SW}, 13"); E_(f"v_add_u32 v{TMP+1}, s46, v{VL16}"); E_(f"v_xor_b32 v{TMP+2}, 0x8000, v{TMP+1}")
        E_(f"s_sub_u32 s54, 15, s{SIDX}"); E_(f"s_lshl_b32 s54, s54, 2"); E_(f"s_add_u32 s54, s54, s{SR}"); E_("s_lshl_b32 s54, s54, 5"); E_(f"s_add_u32 s54, s54, s{SHEAD}")
        E_("s_lshl_b32 s54, s54, 13"); E_(f"s_lshl_b32 s44, s{SG}, 12"); E_("s_add_u32 s54, s54, s44"); E_(f"s_add_u32 s54, s54, {CTX_OFF}")
        fx = {0: [rf[15]]}
        for g, x in enumerate(ts2[3:]): put(fx, g, [x])
        sched([lambda i=i: mf_pv(1, i, R2, 8+i) for i in range(8)], fx, pre + ts3)
        self.stamp(11)
        lg1 = a.label("MG1"); lj = a.label("MGJ")
        I(f"s_cmp_eq_u32 s{SG}, 1"); I(f"s_cbranch_scc1 {lg1}")
        sv2 = self.save(); PR = 64
        for g in (0, 1):
            if g: a.L(lg1); self.restore(sv2)
            own = O + 32*g; snd = O + 32*(1-g)
            for i in range(8):
                I(f"ds_write_b128 v{TMP+1}, {v(snd+4*i,4)} offset:{1024*i}"); lg.issue()
            lg.wait(lg.issued); self.barrier()
            I(f"ds_read_b64 {v(96,2)}, v{TMP}"); t0 = lg.issue()
            tk = []
            for i in range(8):
                I(f"ds_read_b128 {v(PR+4*i,4)}, v{TMP+2} offset:{1024*i}"); tk.append(lg.issue())
            lg.wait(t0)
            I(f"v_min_f32 v98, v{NM}, v96"); I(f"v_sub_f32 v99, v98, v{NM}"); I(f"v_sub_f32 v100, v98, v96")
            I("v_exp_f32 v99, v99"); I("v_exp_f32 v100, v100")
            I(f"v_mul_f32 v101, v99, v{NM+1}"); I("v_fmac_f32 v101, v100, v97"); I("v_rcp_f32 v101, v101")
            I("v_mul_f32 v102, v99, v101"); I("v_mul_f32 v103, v99, v101"); I("v_mul_f32 v104, v100, v101"); I("v_mul_f32 v105, v100, v101")
            for q in range(4):
                for i in range(8*q, 8*q+8, 2): I(f"v_pk_mul_f32 {v(own+i,2)}, {v(own+i,2)}, v[102:103]")
                lg.wait(tk[2*q+1])
                for i in range(8*q, 8*q+8, 2): I(f"v_pk_fma_f32 {v(own+i,2)}, {v(PR+i,2)}, v[104:105], {v(own+i,2)}")
                for i in range(4): I(f"v_cvt_pk_bf16_f32 v{snd+4*q+i}, v{own+8*q+2*i}, v{own+8*q+2*i+1}")
                I(f"buffer_store_dwordx4 {v(snd+4*q,4)}, v{VL16}, s[{RWS}:{RWS+3}], s54 offen offset:{1024*q}{self.st}"); self.tctx = vm.issue()
            if not g: I(f"s_branch {lj}")
        a.L(lj)
        I("s_setprio 0")
        self.stamp(4)
        def cold():
            a.L(LTRANS)
            self.restore(svt)
            loadq(VQ); I("s_waitcnt lgkmcnt(0)")
            I(f"v_xor_b32 v{VK}, 0x4000, v{VK}")
            R = mk_reads(); head(R, vm4, post=[lambda: mask_body(1, 96), wtf])
            mid(R, "k", [op(f"v_xor_b32 v{VK}, 0x8000, v{VK}")], mb=m2(0, -1), trans=True)
            I(f"s_branch {LP2B}")
            for (lo, lb, body) in ool:
                a.L(lo); body(); I(f"s_branch {lb}")
            for (lr, lb, sb, other) in rare:
                a.L(lr)
                I("s_nop 15")
                rowmax(sb, TMP)
                I(f"v_max_f32 v{TMP}, 0, v{TMP}"); I(f"v_exp_f32 v{TMP+1}, -v{TMP}")
                for r in range(16): I(f"v_sub_f32 v{NM+r}, v{NM+r}, v{TMP}")
                for r in range(16): I(f"v_sub_f32 v{S[sb]+r}, v{S[sb]+r}, v{TMP}")
                if other:
                    for r in range(16): I(f"v_sub_f32 v{S[1-sb]+r}, v{S[1-sb]+r}, v{TMP}")
                for r in range(64): I(f"v_mul_f32 v{O+r}, v{O+r}, v{TMP+1}")
                I(f"v_mul_f32 v{LRUN}, v{LRUN}, v{TMP+1}")
                for c, _ in sm_ops(sb): c()
                I("s_nop 1"); I(f"s_branch {lb}")
        self.attn_rare = cold

    HB = 65536; HC = 4416; XB = 136192; YB = 148480
    SC, SJ, SB, SCH, SHB_, SWO, SCX = 34, 35, 36, 37, 38, 39, 40
    WS_ = [16, 24, 32, 40, 176, 184, 56, 80, 88, 96, 104, 144, 152, 160]
    CS_ = [168, 112, 120, 128, 136, 64, 72]
    NL = 4
    def tail_setup(self):
        I = self.I; L = []; E = lambda t: L.append((lambda: I(t), 4))
        SC, SJ, SB, SCH, SHB_, SWO, SCX = self.SC, self.SJ, self.SB, self.SCH, self.SHB_, self.SWO, self.SCX
        self.wtok = {}; self.wslot = dict(enumerate(self.WS_))
        E(f"s_lshr_b32 s{SC}, s{SW}, 2"); E(f"s_and_b32 s{SJ}, s{SW}, 3")
        E(f"s_lshl_b32 s{SCH}, s{SF}, 1"); E(f"s_add_u32 s{SCH}, s{SCH}, s{SC}"); E(f"s_lshl_b32 s{SCH}, s{SCH}, 12")
        E(f"s_lshl_b32 s60, s{SJ}, 10"); E("v_add_u32 v50, s60, v6"); E("v_subrev_u32 v51, 16, v50")
        E(f"s_add_u32 s60, s{SCH}, {KVT_OFF}")
        def ld(t):
            def f(): I(t); self.th = self.vm.issue()
            L.append((f, 16))
        ld(f"buffer_load_dwordx4 {v(160,4)}, v51, s[{RB}:{RB+3}], s{SCH} offen")
        ld(f"buffer_load_dwordx4 {v(164,4)}, v50, s[{RB}:{RB+3}], s{SCH} offen")
        ld(f"buffer_load_dwordx4 {v(168,4)}, v50, s[{RWS}:{RWS+3}], s60 offen{self.ld}")
        E(f"s_lshl_b32 s{SWO}, s57, 19"); E(f"s_lshl_b32 s60, s{SW}, 16"); E(f"s_add_u32 s{SWO}, s{SWO}, s60"); E(f"s_add_u32 s{SWO}, s{SWO}, {WOT_OFF}")
        L2 = [(lambda i=i: self.wload(i), 36) for i in range(self.o.get("we", 6))]
        L3 = []; L, Lx = L3, L
        E = lambda t: L3.append((lambda: I(t), 4))
        E(f"s_mul_i32 s{SB}, s{SC}, 6144"); E(f"s_add_u32 s{SB}, s{SB}, {self.XB}")
        E(f"s_mul_i32 s{SHB_}, s{SC}, {8*self.HC}"); E(f"s_add_u32 s{SHB_}, s{SHB_}, {self.HB}")
        E(f"s_lshl_b32 s{SCX}, s56, 19"); E(f"s_lshl_b32 s60, s{SW}, 15"); E(f"s_add_u32 s{SCX}, s{SCX}, s60"); E(f"s_add_u32 s{SCX}, s{SCX}, {CTX_OFF}")
        return Lx, L2, L3
    def wreg(self, i):
        return self.WS_[i % len(self.WS_)]
    def wload(self, i):
        I = self.I; r = self.wslot[i]
        I(f"s_add_u32 s61, s{self.SWO}, {i*2048}")
        for mt in range(2):
            I(f"buffer_load_dwordx4 {v(r+4*mt,4)}, v6, s[{RWS}:{RWS+3}], s61 offen offset:{mt*1024}{self.ld}"); self.wtok[i] = self.vm.issue()
    def tail_early(self):
        I = self.I; vm = self.vm; lg = self.lg; HC = self.HC
        SJ, SB, SCH, SHB_ = self.SJ, self.SB, self.SCH, self.SHB_
        Ee, Eo, Oe, Oo = 160, 113, 122, 131
        vm.wait(self.th)
        for k in range(7): I(f"v_alignbit_b32 v{Oe+k}, v{Ee+k+1}, v{Ee+k}, 16")
        for k in range(1, 7): I(f"v_alignbit_b32 v{Oo+k}, v{Ee+k+1}, v{Ee+k}, 16")
        for k in range(1, 7): I(f"v_mov_b32 v{Eo+k}, v{Ee+k}")
        I(f"s_add_u32 s60, s{SHB_}, 64"); I("v_add_u32 v51, s60, v50")
        for r in range(8):
            sft = 1 + r; k = sft >> 1
            base = ((Oe, Oo) if sft & 1 else (Ee, Eo))[k & 1]
            I(f"ds_write_b128 v51, {v(base+k,4)} offset:{r*HC}"); lg.issue()
        I("v_and_b32 v51, 3, v0"); I("v_mul_u32_u24 v52, 1536, v51"); I("v_lshrrev_b32 v53, 6, v50"); I("v_lshl_add_u32 v52, v53, 4, v52")
        I(f"s_add_u32 s60, s{SB}, 512"); I("v_add_u32 v52, s60, v52")
        I(f"ds_write_b128 v52, {v(168,4)}"); lg.issue()
        for r in range(2): I(f"v_mov_b64 {v(172+2*r,2)}, 0")
        I("v_bfe_u32 v52, v0, 2, 3"); I(f"v_mul_u32_u24 v52, {HC}, v52"); I("v_lshl_add_u32 v52, v51, 4, v52"); I(f"v_add_u32 v52, s{SHB_}, v52")
        I(f"ds_write_b128 v52, {v(172,4)}"); lg.issue()
        I(f"s_mul_i32 s60, s{SJ}, 1536"); I(f"s_add_u32 s60, s60, s{SB}"); I("v_lshl_add_u32 v52, v0, 3, s60")
        I(f"ds_write_b64 v52, {v(172,2)}"); lg.issue()
    def tailp(self):
        a = self.a; I = self.I; vm = self.vm; lg = self.lg
        HB, HC, YB = self.HB, self.HC, self.YB
        SC, SJ, SB, SCH, SHB_, SWO, SCX = self.SC, self.SJ, self.SB, self.SCH, self.SHB_, self.SWO, self.SCX
        ACC = 192; FRS = [224, 240, 64]; RD_ = 224
        VL16, VA, VB, T, VP, VPA, VO, GR, VLW, XR = 6, 4, 5, 12, 7, 8, 9, 10, 11, 48
        OACC = 192
        NW, NCX, NL = len(self.WS_), len(self.CS_), self.o.get("nl", self.NL)
        wtok = self.wtok; ctok = {}; wslot = self.wslot; cslot = dict(enumerate(self.CS_))
        I(f"s_lshr_b32 s53, s56, 1"); I("s_lshl_b32 s53, s53, 10"); I(f"s_lshl_b32 s44, s{SW}, 7"); I("s_add_u32 s53, s53, s44"); I(f"s_add_u32 s53, s53, {FC_OFF}")
        I(f"v_and_b32 v{VPA}, 3, v0"); I(f"v_lshlrev_b32 v{VPA}, 2, v{VPA}")
        P0 = self.o.get("p0", 0)
        tc0 = self.poll_issue(VP, VPA, "s53") if P0 else self.tctx
        self.tail_early()
        PUBN = self.o.get("pubn", 1)
        I(f"s_lshr_b32 s45, s{SHEAD}, 2"); I("s_lshl_b32 s45, s45, 7"); I(f"s_and_b32 s44, s{SHEAD}, 3"); I("s_lshl_b32 s44, s44, 2"); I("s_add_u32 s45, s45, s44")
        I(f"s_sub_u32 s44, 15, s{SIDX}"); I("s_lshl_b32 s44, s44, 10"); I("s_add_u32 s46, s44, s45"); I(f"s_add_u32 s46, s46, {FC_OFF}")
        I(f"s_lshl_b32 s44, s{SIDX}, 10"); I("s_add_u32 s47, s44, s45"); I(f"s_add_u32 s47, s47, {FC_OFF}")
        self.srd(RC, "out", 2*MB); self.srd(RD, "q", 2*MB)
        I(f"s_lshl_b32 s44, s{SF}, 2"); I(f"s_load_dword s55, s[{P['ssmD']}:{P['ssmD']+1}], s44")
        I(f"v_and_b32 v{T}, 31, v0"); I(f"v_lshrrev_b32 v{T+1}, 5, v0")
        I(f"v_and_b32 v{T+2}, 7, v0"); I(f"v_mul_u32_u24 v{VA}, {HC}, v{T+2}")
        I(f"v_bfe_u32 v{T+2}, v0, 3, 2"); I(f"v_sub_u32 v{T+2}, v{T+2}, v{T+1}"); I(f"v_lshl_add_u32 v{VA}, v{T+2}, 4, v{VA}")
        I(f"s_lshl_b32 s43, s{SJ}, 9"); I(f"s_add_u32 s43, s43, s{SHB_}"); I("s_add_u32 s43, s43, 32"); I(f"v_add_u32 v{VA}, s43, v{VA}")
        I(f"s_lshl_b32 s43, s{SJ}, 7"); I(f"s_sub_u32 s43, s{SB}, s43"); I("s_add_u32 s43, s43, 400")
        I(f"v_lshl_add_u32 v{VB}, v{T}, 4, s43"); I(f"v_mul_u32_u24 v{T+2}, 1536, v{T+1}"); I(f"v_add_u32 v{VB}, v{VB}, v{T+2}")
        I(f"s_lshl_b32 s51, s{SW}, 13"); I(f"v_add_u32 v{VLW}, s51, v{VL16}")
        I("s_waitcnt lgkmcnt(0)"); lg.mark_all_done(); self.barrier()
        self.stamp(5)
        def cload(i):
            r = cslot[i]
            I(f"s_add_u32 s62, s{SCX}, {(i//4)*4096}"); I("s_add_u32 s63, s62, 0x40000")
            for st in range(2):
                I(f"buffer_load_dwordx4 {v(r+4*st,4)}, v{VL16}, s[{RWS}:{RWS+3}], s{62+st} offen offset:{(i%4)*1024}{self.ld}"); ctok[i] = vm.issue()
        ltok = {}
        def lstage(j):
            I(f"s_add_u32 m0, s51, {j*2048}"); I(f"s_add_u32 s61, s{SWO}, {(NW+j)*2048}")
            for mt in range(2):
                I(f"buffer_load_dwordx4 v{VL16}, s[{RWS}:{RWS+3}], s61 offen offset:{mt*1024}{self.ld} lds"); ltok[j] = vm.issue()
        def early(lo, hi, level):
            le = a.label("NE")
            I(f"s_cmp_lg_u32 s50, {level}"); I(f"s_cbranch_scc1 {le}")
            sv = self.save()
            for i in range(lo, hi): cload(i)
            self.restore(sv); I(f"s_mov_b32 s50, {level+1}")
            a.L(le)
        def seen():
            I(f"v_and_b32 v{VP}, 1, v{VP}"); I(f"v_cmp_ne_u32 vcc, 1, v{VP}"); I("s_cmp_eq_u64 vcc, 0"); I("s_cselect_b32 s52, 1, 0"); I("s_max_u32 s50, s50, s52")
        I("s_mov_b32 s50, 0")
        wl = [lambda i=i: self.wload(i) for i in range(NW) if i not in wtok] + [lambda j=j: lstage(j) for j in range(NL)]
        steps = [(dd, ks) for dd in range(8) for ks in range(2)]
        toks = {}
        def reads(n):
            dd, ks = steps[n]; b = FRS[n % 3]
            def r(k, reg, addr, off):
                def f():
                    I(f"ds_read_b128 {v(reg,4)}, v{addr} offset:{off}"); toks[(n, k)] = lg.issue()
                return f
            return [r(0, b, VA, 64*dd + 32*(1-ks)), r(1, b+4, VB, ks*3072 + (7-dd)*16),
                    r(2, b+8, VB, ks*3072 + (7-dd)*16 + 512), r(3, b+12, VA, 64*dd + 32*(1-ks) + 2048)]
        for n in range(2):
            for f in reads(n): f()
        for n in range(16):
            b = FRS[n % 3]; L = reads(n+2) if n + 2 < 16 else []
            c0 = "0" if n == 0 else v(ACC,16); c1 = "0" if n == 0 else v(ACC+16,16)
            lg.wait(toks[(n,1)]); I(f"{MFMA} {v(ACC,16)}, {v(b,4)}, {v(b+4,4)}, {c0}")
            for f in L[0:2]: f()
            lg.wait(toks[(n,2)]); I(f"{MFMA} {v(ACC+16,16)}, {v(b,4)}, {v(b+8,4)}, {c1}")
            for f in L[2:3]: f()
            lg.wait(toks[(n,3)]); I(f"{MFMA} {v(ACC+16,16)}, {v(b+12,4)}, {v(b+4,4)}, {v(ACC+16,16)}")
            for f in L[3:4]: f()
            if n == PUBN:
                vm.wait(tc0); self.barrier(); self.publish(46); self.publish(47)
                if P0: seen()
            if n >= PUBN and n < 14:
                for _ in range(-(-len(wl) // (14 - n))): wl.pop(0)()
            if n == self.o.get("p1", 12): tc1 = self.poll_issue(VP, VPA, "s53")
            if n == 14 and P0: early(0, NCX - 2, 1)
        assert not wl
        I(f"s_add_u32 s43, s51, {HB}"); I(f"v_add_u32 v{T+2}, s43, v{VL16}")
        self.barrier()
        for i in range(8):
            I(f"ds_write_b128 v{T+2}, {v(ACC+4*i,4)} offset:{1024*i}"); lg.issue()
        I(f"s_lshl_b32 s43, s{SC}, 15"); I(f"s_lshl_b32 s44, s{SJ}, 11"); I("s_add_u32 s43, s43, s44"); I(f"s_add_u32 s43, s43, {HB}"); I(f"v_add_u32 v{T+2}, s43, v{VL16}")
        I(f"s_and_b32 s43, s{SJ}, 1"); I("s_mul_i32 s44, s43, 3072"); I(f"s_lshr_b32 s45, s{SJ}, 1"); I("s_lshl_b32 s41, s45, 9")
        I("s_add_u32 s44, s44, s41"); I(f"s_add_u32 s44, s44, s{SB}"); I("s_add_u32 s44, s44, 520")
        I(f"v_lshl_add_u32 v{T+3}, v{T}, 4, s44"); I(f"v_lshlrev_b32 v{VA}, 3, v{T+1}"); I(f"v_sub_u32 v{T+3}, v{T+3}, v{VA}")
        I(f"v_lshlrev_b32 v{VB}, 6, v{T}"); I(f"v_lshl_add_u32 v{VB}, v{T+1}, 4, v{VB}")
        I("s_lshl_b32 s45, s45, 11"); I("s_lshl_b32 s43, s43, 5"); I("s_add_u32 s45, s45, s43"); I(f"s_lshl_b32 s43, s{SC}, 12"); I("s_add_u32 s45, s45, s43")
        I(f"s_add_u32 s45, s45, {YB}"); I(f"v_add_u32 v{VB}, s45, v{VB}")
        I("s_lshl_b32 s43, s55, 16"); I("s_and_b32 s44, s55, 0xffff0000"); I(f"s_cmp_eq_u32 s{SC}, 0"); I("s_cselect_b32 s55, s43, s44")
        lg.wait(lg.issued); self.barrier()
        self.stamp(12)
        for p in range(4):
            for gq in range(2):
                I(f"ds_read_b128 {v(RD_+8*p+4*gq,4)}, v{T+2} offset:{8192*p+1024*gq}"); lg.issue()
        for gq in range(2):
            I(f"ds_read_b64 {v(ACC+2*gq,2)}, v{T+3} offset:{1536*gq}"); lg.issue()
        lk = a.label("SK"); I("s_cmp_lg_u32 s50, 0"); I(f"s_cbranch_scc1 {lk}")
        sv = self.save(); vm.wait(tc1); seen(); self.restore(sv); early(0, NCX - 2, 1)
        a.L(lk)
        early(NCX - 2, NCX, 2)
        lg.wait(lg.issued)
        for i in range(0, 8, 2):
            I(f"v_pk_add_f32 {v(RD_+i,2)}, {v(RD_+i,2)}, {v(RD_+8+i,2)}"); I(f"v_pk_add_f32 {v(RD_+16+i,2)}, {v(RD_+16+i,2)}, {v(RD_+24+i,2)}")
        for i in range(0, 8, 2): I(f"v_pk_add_f32 {v(RD_+i,2)}, {v(RD_+i,2)}, {v(RD_+16+i,2)}")
        for gq in range(2):
            for r in range(4):
                srcr = ACC + 2*gq + (1 - (r >> 1))
                I(f"v_lshlrev_b32 v{ACC+8}, 16, v{srcr}" if r & 1 else f"v_and_b32 v{ACC+8}, 0xffff0000, v{srcr}")
                I(f"v_fma_f32 v{RD_+4*gq+r}, v{ACC+8}, s55, v{RD_+4*gq+r}")
        for i in range(4): I(f"v_cvt_pk_bf16_f32 v{ACC+12+i}, v{RD_+2*i}, v{RD_+2*i+1}")
        I(f"v_permlane32_swap_b32 v{ACC+12}, v{ACC+14}"); I(f"v_permlane32_swap_b32 v{ACC+13}, v{ACC+15}")
        I(f"ds_write_b128 v{VB}, {v(ACC+12,4)}"); lg.issue()
        lg.wait(lg.issued); self.barrier()
        ly = a.label("NY")
        I(f"s_cmp_lg_u32 s{SW}, 0"); I(f"s_cbranch_scc1 {ly}")
        I(f"v_add_u32 v{T}, {YB}, v{VL16}")
        for i in range(8): I(f"ds_read_b128 {v(RD_+4*i,4)}, v{T} offset:{1024*i}")
        I(f"s_lshl_b32 s44, s{SF}, 13"); I(f"s_add_u32 s44, s44, {YT_OFF}"); I("s_add_u32 s45, s44, 4096")
        I("s_waitcnt lgkmcnt(0)")
        for i in range(8): I(f"buffer_store_dwordx4 {v(RD_+4*i,4)}, v{VL16}, s[{RWS}:{RWS+3}], s{44+(i>>2)} offen offset:{1024*(i&3)}{self.st}")
        a.L(ly)
        ll = a.label("NL")
        I("s_cmp_eq_u32 s50, 3"); I(f"s_cbranch_scc1 {ll}")
        self.poll_check(VP, VPA, "s53", 1)
        for i in range(NCX): cload(i)
        a.L(ll)
        self.stamp(6)
        YT = self.XB
        lrd = {}; ypub = False; ymark = vm.issued; free = []; fresh = []; nw = NW; nw2 = NW + NL; nc = NCX
        for i in range(32):
            if i % 4 == 0 and self.o.get("ostamp"): self.stamp(17 + i // 4)
            if i == 14:
                I(f"s_lshl_b32 s53, s57, 7"); I(f"s_lshl_b32 s42, s{SW}, 4"); I("s_add_u32 s53, s53, s42"); I(f"s_add_u32 s53, s53, {FY_OFF}")
                tf = self.poll_issue(VP, VPA, "s53")
            if i == 24:
                vm.wait(tf); self.poll_check(VP, VPA, "s53", 1)
                I(f"v_lshrrev_b32 v{T}, 3, v0"); I(f"v_and_b32 v{T+1}, 7, v0"); I(f"v_lshlrev_b32 v{T+1}, 4, v{T+1}")
                I(f"v_lshl_add_u32 v{T}, v{T}, 12, v{T+1}")
                I(f"s_add_u32 m0, s{SWK}, {YT}")
                I(f"s_lshl_b32 s44, s57, 18"); I(f"s_lshl_b32 s45, s{SW}, 15"); I("s_add_u32 s44, s44, s45")
                I(f"s_lshl_b32 s45, s56, 7"); I("s_add_u32 s44, s44, s45"); I(f"s_add_u32 s44, s44, {YT_OFF}")
                I(f"buffer_load_dwordx4 v{T}, s[{RWS}:{RWS+3}], s44 offen{self.ld} lds"); vm.issue()
                I(f"v_and_b32 v{T+1}, 15, v0"); I(f"s_lshr_b32 s48, s{SW}, 1"); I("s_lshl_b32 s48, s48, 4")
                I(f"s_lshl_b32 s45, s56, 6"); I("s_add_u32 s45, s45, s48"); I(f"v_add_u32 v{T+1}, s45, v{T+1}")
                I(f"v_lshlrev_b32 v{T+2}, 2, v{T+1}"); I(f"s_mov_b32 s45, {G_OFF}")
                I(f"buffer_load_dword v{GR}, v{T+2}, s[{RWS}:{RWS+3}], s45 offen{self.ld}"); vm.issue()
                I(f"v_lshrrev_b32 v{T+2}, 4, v0"); I(f"v_lshlrev_b32 v{T+2}, 4, v{T+2}"); I(f"v_lshl_add_u32 v{VO}, v{T+1}, 10, v{T+2}")
                I(f"s_and_b32 s49, s{SW}, 1"); I("s_lshl_b32 s49, s49, 6"); I(f"s_lshl_b32 s45, s57, 7"); I("s_add_u32 s49, s49, s45")
                I(f"buffer_load_dwordx4 {v(XR,4)}, v{VO}, s[{RD}:{RD+3}], s49 offen"); vm.issue()
            vm.wait(max(ctok[i], wtok.get(i, 0)))
            if i in lrd: lg.wait(lrd[i])
            if not ypub and vm.done > ymark:
                ypub = True
                I(f"s_lshl_b32 s44, s{SF}, 2"); I(f"s_add_u32 s44, s44, {FY_OFF}"); self.publish(44, 3)
            for mt in range(2):
                for st in range(2):
                    d = v(OACC + 16*(2*mt+st), 16)
                    I(f"{MFMA} {d}, {v(wslot[i]+4*mt,4)}, {v(cslot[i]+4*st,4)}, {'0' if i == 0 else d}")
            lagged, fresh = fresh, [wslot[i], cslot[i]]
            free += fresh
            while free:
                if nw < NW + NL and nw - i <= 3:
                    j = nw - NW; assert vm.done >= ltok[j]
                    r = free.pop(0); wslot[nw] = r
                    I("s_nop 3")
                    for mt in range(2):
                        I(f"ds_read_b128 {v(r+4*mt,4)}, v{VLW} offset:{j*2048+mt*1024}"); lrd[nw] = lg.issue()
                    nw += 1
                elif nc < 32 and (nc <= nw2 or nw2 >= 32):
                    cslot[nc] = free.pop(0); cload(nc); nc += 1
                elif nw2 < 32:
                    wslot[nw2] = free.pop(0); self.wload(nw2); nw2 += 1
                else: break
        self.stamp(7)
        I(f"v_and_b32 v{T}, 31, v0"); I(f"v_lshrrev_b32 v{T+1}, 5, v0"); I(f"v_and_b32 v{T+2}, 15, v0")
        I(f"v_xor_b32 v{T+1}, v{T+1}, v{T+2}"); I(f"v_lshlrev_b32 v{T+1}, 4, v{T+1}"); I(f"v_lshl_add_u32 v{T}, v{T}, 8, v{T+1}")
        I(f"v_add_u32 v{T}, s51, v{T}")
        for mt in range(2):
            for gq in range(4):
                I(f"v_xor_b32 v{T+1}, {(8*mt+2*gq)*16}, v{T}"); I(f"v_add_u32 v{T+3}, 0x10000, v{T+1}")
                for st in range(2):
                    I(f"ds_write_b128 v{T+1+2*st}, {v(OACC+16*(2*mt+st)+4*gq,4)}"); lg.issue()
        I(f"v_lshrrev_b32 v{T}, 4, v0"); I(f"s_and_b32 s41, s{SW}, 1"); I("s_lshl_b32 s42, s41, 3")
        I(f"v_lshl_add_u32 v{T+1}, v{T}, 1, s42"); I(f"v_xor_b32 v{T+1}, v{T+1}, v{T+2}"); I(f"v_lshlrev_b32 v{T+1}, 4, v{T+1}")
        I("s_and_b32 s43, s48, 16"); I(f"v_add_u32 v{T+3}, s43, v{T+2}"); I(f"v_lshl_add_u32 v24, v{T+3}, 8, v{T+1}")
        I("s_lshr_b32 s43, s48, 5"); I("s_lshl_b32 s43, s43, 16"); I("v_add_u32 v24, s43, v24"); I("v_xor_b32 v25, 16, v24")
        I("s_lshl_b32 s42, s41, 5"); I(f"v_lshl_add_u32 v{T}, v{T}, 3, s42"); I(f"v_bfe_u32 v{T+1}, v0, 2, 2")
        I(f"v_add_u32 v{T}, v{T}, v{T+1}"); I(f"v_lshlrev_b32 v{T}, 7, v{T}"); I(f"v_and_b32 v{T+1}, 3, v0")
        I(f"v_lshl_add_u32 v{T}, v{T+1}, 3, v{T}"); I("s_lshl_b32 s42, s48, 1"); I(f"s_add_u32 s42, s42, {YT}"); I(f"v_add_u32 v28, s42, v{T}")
        self.sync_all()
        CX = 128; tk = []
        I(f"ds_read_b64_tr_b16 {v(100,2)}, v28"); lg.issue()
        I(f"ds_read_b64_tr_b16 {v(102,2)}, v28 offset:512"); ty2 = lg.issue()
        for p in range(8):
            for hh in range(2):
                I(f"ds_read_b128 {v(CX+8*p+4*hh,4)}, v{24+hh} offset:{8192*p}"); lg.issue()
            tk.append(lg.issued)
            if p == 5:
                lg.wait(ty2)
                for e in range(8):
                    if e & 1: I(f"v_and_b32 v104, 0xffff0000, v{XR+(e>>1)}"); I(f"v_and_b32 v105, 0xffff0000, v{100+(e>>1)}")
                    else: I(f"v_lshlrev_b32 v104, 16, v{XR+(e>>1)}"); I(f"v_lshlrev_b32 v105, 16, v{100+(e>>1)}")
                    I(f"v_mul_f32 v{112+e}, v104, v105"); I(f"v_mul_f32 v{112+e}, v{112+e}, v{GR}")
                I(f"v_sub_f32 v{GR}, 1.0, v{GR}")
        for p in range(1, 8):
            lg.wait(tk[p])
            for e in range(0, 8, 2): I(f"v_pk_add_f32 {v(CX+e,2)}, {v(CX+e,2)}, {v(CX+8*p+e,2)}")
        for e in range(8): I(f"v_fmac_f32 v{112+e}, v{CX+e}, v{GR}")
        for e in range(4): I(f"v_cvt_pk_bf16_f32 v{108+e}, v{112+2*e}, v{112+2*e+1}")
        I(f"buffer_store_dwordx4 {v(108,4)}, v{VO}, s[{RC}:{RC+3}], s49 offen"); vm.issue()
        self.stamp(16)

def build(opts):
    g = G(opts); k = NAME + "_kernel"
    g.begin(k); g.proj(); g.attn(); g.tailp(); g.end(); g.attn_rare(); g.a.L("CODE_END"); g.a.I("s_endpgm")
    n = g.a.fix_hazards()
    txt = "; @launch grid=(256,1,1) block=(512,1,1) lds=163840\n"
    txt += '.amdgcn_target "amdgcn-amd-amdhsa--gfx950"\n.text\n' + g.a.text()
    txt += f""".section .rodata,"a"
.p2align 6
.amdhsa_kernel {k}
  .amdhsa_next_free_vgpr 256
  .amdhsa_next_free_sgpr 102
  .amdhsa_accum_offset 256
  .amdhsa_group_segment_fixed_size 0
  .amdhsa_kernarg_size 128
  .amdhsa_user_sgpr_count 2
  .amdhsa_user_sgpr_kernarg_segment_ptr 1
  .amdhsa_system_sgpr_workgroup_id_x 1
.end_amdhsa_kernel
"""
    print(f"instructions {sum(1 for it in g.a.items if it[0] == 'i')}, nops inserted {n}", file=sys.stderr)
    return txt

if __name__ == "__main__":
    opts = {}
    for x in sys.argv[2:]:
        if "=" in x: k_, v_ = x.split("="); opts[k_] = int(v_)
        else: opts[x] = True
    open(sys.argv[1], "w").write(build(opts))
```

```python
import sys, math, struct
sys.path.insert(0, "gen")
from asmlib import *

NAME = "gated_mix__ssm_conv_h3__compressed_kv_cla__prompt"
MB = 1 << 20
KV_OFF, Q_OFF, CTX_OFF, KVT_OFF, YT_OFF, G_OFF = 0, 32*MB, 48*MB, 64*MB, 66*MB, 68*MB
WOT_OFF = 32*MB
FLG_OFF = 68*MB + 65536
FK_OFF, FC_OFF, FY_OFF = FLG_OFF, FLG_OFF + 4096, FLG_OFF + 6144
STAMP_OFF = 69*MB
WS_SIZE = 70*MB
P = dict(q=64, k=66, v=68, shift=70, ssmk=72, ssmD=74, bx=76, ckv=78, wq=80, wuk=82, wuv=84, wo=86, gate=88, out=90, dbg=92, ws=94)
SW, SHEAD, SIDX, SWK, SF = 3, 4, 5, 6, 7
RA, RB, RC, RWS, RD, RE, RT, RDBG = 8, 12, 16, 20, 24, 28, 56, 60
MFMA = "v_mfma_f32_32x32x16_bf16"
LOG2E = 1.4426950408889634
F_KV, F_CA, F_CB, F_Y = 1, 2, 4, 8
def f2u(x): return "0x%08x" % struct.unpack("<I", struct.pack("<f", x))[0]
def rep4(b): return b * 0x01010101

class G:
    def __init__(self, opts):
        self.a = Asm(); self.o = opts
        self.vm = Cnt(self.a, "vmcnt", 63); self.lg = Cnt(self.a, "lgkmcnt", 15)
        self.st = "" if opts.get("plainst") else (" sc1 nt" if opts.get("ntst") else " sc1"); self.ld = "" if opts.get("plainld") else " sc1"
    def I(self, t): self.a.I(t)
    def srd(self, r, ptr, nbytes):
        I = self.I
        I(f"s_mov_b32 s{r}, s{P[ptr]}"); I(f"s_mov_b32 s{r+1}, s{P[ptr]+1}")
        I(f"s_mov_b32 s{r+2}, {nbytes}"); I(f"s_mov_b32 s{r+3}, 0x00020000")
    def save(self): return (self.vm.issued, self.vm.done, self.lg.issued, self.lg.done)
    def restore(self, s_): self.vm.issued, self.vm.done, self.lg.issued, self.lg.done = s_
    def stream(self, mf, fills):
        n = len(mf); slots = [[] for _ in range(n + 1)]
        for (s0, e0, cl) in fills:
            m = e0 - s0
            for j, c in enumerate(cl): slots[s0 + 1 + (j * m) // len(cl)].append(c)
        for c in slots[0]: c()
        for i in range(n):
            mf[i]()
            for c in slots[i+1]: c()
    def stamp(self, i, dyn=None):
        if not self.o.get("stamp"): return
        I = self.I
        I("s_memrealtime s[96:97]"); I("s_memtime s[100:101]")
        I("s_lshl_b32 s98, s2, 3"); I(f"s_add_u32 s98, s98, s{SW}"); I("s_lshl_b32 s98, s98, 8")
        I(f"s_add_u32 s98, s98, {STAMP_OFF + 4*i}")
        if dyn is not None:
            I(f"s_lshl_b32 s99, s{dyn}, 4"); I("s_add_u32 s98, s98, s99")
        I("s_waitcnt lgkmcnt(0)")
        I("v_mov_b32 v2, s96"); I("v_mov_b32 v3, 0")
        I(f"buffer_store_dword v2, v3, s[{RWS}:{RWS+3}], s98 offen")
        I("v_mov_b32 v2, s100")
        I(f"buffer_store_dword v2, v3, s[{RWS}:{RWS+3}], s98 offen offset:128")
    OOB = 0x40000000
    def publish(self, soff, val=1, srd=RWS, byte=False, idx=None):
        I = self.I
        self.oob_sel()
        if idx is not None: I(f"s_cmp_eq_u32 s{SIDX}, {idx}"); I(f"s_cselect_b32 s99, s99, {self.OOB}")
        I(f"v_mov_b32 v2, {val}"); I("v_mov_b32 v3, s99")
        I(f"buffer_store_{'byte' if byte else 'dword'} v2, v3, s[{srd}:{srd+3}], s{soff} offen sc1"); self.vm.issue()
    def oob_sel(self):
        self.I(f"s_cmp_eq_u32 s{SW}, 0"); self.I(f"s_cselect_b32 s99, 0, {self.OOB}")
    def poll_issue(self, vd, vaddr, soff, srd=RWS):
        self.I(f"buffer_load_dword v{vd}, v{vaddr}, s[{srd}:{srd+3}], {soff} offen sc1"); return self.vm.issue()
    def poll_check(self, vd, vaddr, soff, want, srd=RWS):
        a = self.a; I = self.I
        l = a.label("PCK"); lp = a.label("POLL")
        I(f"s_mov_b32 s98, {want}"); I("s_mov_b32 s99, 20000")
        a.L(lp)
        I(f"v_and_b32 v{vd}, s98, v{vd}"); I(f"v_cmp_ne_u32 vcc, s98, v{vd}"); I(f"s_cbranch_vccz {l}")
        I("s_sleep 2")
        I(f"buffer_load_dword v{vd}, v{vaddr}, s[{srd}:{srd+3}], {soff} offen sc1")
        I("s_sub_u32 s99, s99, 1"); I("s_cmp_lg_u32 s99, 0"); I("s_waitcnt vmcnt(0)"); I(f"s_cbranch_scc1 {lp}")
        a.L(l)
    def barrier(self): self.I("s_barrier")
    def sync_all(self):
        self.I("s_waitcnt vmcnt(0) lgkmcnt(0)"); self.vm.mark_all_done(); self.lg.mark_all_done(); self.barrier()

    def begin(self, kname):
        a = self.a; I = self.I
        a.T(f".globl {kname}\n.p2align 8\n.type {kname},@function"); a.L(kname)
        self.endl = a.label("END")
        if self.o.get("stamp"): I("s_memrealtime s[30:31]")
        I("s_load_dwordx16 s[64:79], s[0:1], 0"); I("s_load_dwordx16 s[80:95], s[0:1], 64")
        I("s_cmp_ge_u32 s2, 256"); I(f"s_cbranch_scc1 {self.endl}")
        I("v_lshrrev_b32 v1, 6, v0"); I("v_and_b32 v0, 63, v0"); I(f"v_readfirstlane_b32 s{SW}, v1")
        I("s_and_b32 s7, s2, 7"); I("s_lshl_b32 s7, s7, 2")
        I(f"s_lshr_b32 s{SIDX}, s2, 3"); I(f"s_lshr_b32 s{SHEAD}, s{SIDX}, 3"); I(f"s_add_u32 s{SHEAD}, s{SHEAD}, s7")
        I(f"s_and_b32 s{SIDX}, s{SIDX}, 7"); I(f"s_lshl_b32 s{SWK}, s{SW}, 10")
        I(f"s_lshl_b32 s{SF}, s{SHEAD}, 3"); I(f"s_add_u32 s{SF}, s{SF}, s{SIDX}")
    def end(self):
        self.a.L(self.endl); self.I("s_endpgm")

    def proj(self):
        a = self.a; I = self.I; vm = self.vm; lg = self.lg
        PREP = 114688; QA_LDS = 65536
        ACCS = [64, 128]
        FX = [16, 32]; FW = [24, 40]
        VXA = 4; VWA = 8; VOX, VOW = 10, 11; VST = 12; VXH = 48
        T = 192
        I("v_lshrrev_b32 v13, 3, v0"); I(f"s_lshl_b32 s40, s{SW}, 3"); I("v_add_u32 v13, s40, v13"); I("v_lshlrev_b32 v13, 10, v13")
        I("v_lshrrev_b32 v14, 4, v0"); I(f"s_and_b32 s40, s{SW}, 1"); I("s_lshl_b32 s40, s40, 2"); I("v_add_u32 v15, s40, v14")
        I("v_and_b32 v3, 7, v0"); I("v_xor_b32 v15, v15, v3"); I(f"v_lshl_add_u32 v{VOX}, v15, 4, v13")
        I(f"s_lshl_b32 s40, s{SW}, 2"); I("v_add_u32 v13, s40, v14"); I("v_lshlrev_b32 v13, 13, v13")
        I("v_lshlrev_b32 v15, 2, v14"); I("v_and_b32 v3, 15, v0"); I("v_xor_b32 v15, v15, v3")
        I("v_lshl_add_u32 v13, v15, 4, v13"); I(f"s_lshl_b32 s40, s{SHEAD}, 8"); I(f"v_add_u32 v{VOW}, s40, v13")
        I(f"v_lshlrev_b32 v{VST}, 4, v0")
        I(f"s_lshl_b32 s44, s{SIDX}, 18")
        for i in range(1, 4): I(f"s_add_u32 s{44+i}, s44, {65536*i}")
        I("s_waitcnt lgkmcnt(0)")
        if self.o.get("stamp"): I("s_memrealtime s[28:29]")
        self.srd(RA, "ckv", 2*MB); self.srd(RB, "wuk", 4*MB)
        def xbase(t): return (32768, 131072, 0)[t % 3]
        def wbase(t): return 65536 + (t % 3)*16384
        def dma_list(t):
            L = []
            if t > 23: return L
            ph, tt = t >> 3, t & 7
            for i in range(2):
                def f(i=i):
                    I(f"s_add_u32 m0, s{SWK}, {wbase(t) + i*8192}"); I(f"s_mov_b32 s41, {tt*524288 + i*262144}")
                    r = (RB, RC, RE)[ph]
                    I(f"buffer_load_dwordx4 v{VOW}, s[{r}:{r+3}], s41 offen lds"); vm.issue()
                L.append(f)
            for i in range(4):
                def f(i=i):
                    I(f"s_add_u32 m0, s{SWK}, {xbase(t) + i*8192}"); I(f"s_add_u32 s41, s{(48 if ph == 2 else 44)+i}, {tt*128}")
                    r = RD if ph == 2 else RA
                    I(f"buffer_load_dwordx4 v{VOX}, s[{r}:{r+3}], s41 offen lds"); vm.issue()
                L.append(f)
            return L
        dtok = {}
        for f in dma_list(0): f()
        dtok[0] = vm.issued
        self.srd(RWS, "ws", WS_SIZE); self.srd(RDBG, "dbg", 256); self.srd(RC, "wuv", 4*MB)
        self.stamp(31)
        if self.o.get("stamp"):
            I("v_mov_b32 v2, s30"); I("s_sub_u32 s98, s98, 124"); I(f"buffer_store_dword v2, v3, s[{RWS}:{RWS+3}], s98 offen")
            I("v_mov_b32 v2, s28"); I(f"buffer_store_dword v2, v3, s[{RWS}:{RWS+3}], s98 offen offset:120")
        I(f"s_lshl_b32 s48, s{SIDX}, 17"); I("s_add_u32 s49, s48, 65536")
        I(f"s_sub_u32 s50, 15, s{SIDX}"); I("s_lshl_b32 s50, s50, 17"); I("s_add_u32 s51, s50, 65536")
        I(f"s_and_b32 s42, s{SW}, 3"); I("s_lshl_b32 s42, s42, 6"); I(f"s_lshr_b32 s43, s{SW}, 2"); I("s_lshl_b32 s43, s43, 1")
        I("v_and_b32 v13, 31, v0"); I("v_add_u32 v13, s42, v13")
        I("v_lshrrev_b32 v14, 1, v13"); I("v_and_b32 v14, 7, v14"); I("v_lshrrev_b32 v15, 5, v0")
        I("v_xor_b32 v14, v14, v15"); I("v_lshlrev_b32 v14, 4, v14"); I(f"v_lshl_add_u32 v{VXA}, v13, 7, v14")
        for k in range(1, 4): I(f"v_xor_b32 v{VXA+k}, {k<<5}, v{VXA}")
        for k in range(4): I(f"v_add_u32 v{VXH+k}, 0x20000, v{VXA+k}")
        I("v_bfe_u32 v13, v0, 2, 2"); I("v_lshl_add_u32 v14, v15, 3, v13"); I("v_lshlrev_b32 v14, 8, v14")
        I("v_bfe_u32 v15, v0, 4, 1"); I("v_lshl_add_u32 v14, v15, 5, v14")
        I("v_and_b32 v15, 3, v0"); I("v_lshl_add_u32 v14, v15, 3, v14"); I("v_add_u32 v14, 0x10000, v14")
        I("v_xor_b32 v13, s43, v13"); I(f"v_lshl_add_u32 v{VWA}, v13, 6, v14"); I(f"v_xor_b32 v{VWA+1}, 64, v{VWA}")
        I(f"s_lshl_b32 s54, s{SHEAD}, 4"); I(f"s_lshl_b32 s55, s{SIDX}, 1"); I("s_add_u32 s54, s54, s55")
        I(f"s_bfe_u32 s55, s{SW}, 0x10001"); I("s_add_u32 s54, s54, s55"); I("s_lshl_b32 s54, s54, 16")
        I(f"s_and_b32 s55, s{SW}, 1"); I("s_lshl_b32 s55, s55, 14"); I("s_add_u32 s54, s54, s55")
        I("s_lshl_b32 s55, s43, 10"); I("s_add_u32 s52, s54, s55"); I("s_add_u32 s52, s52, 0x8000")
        I("s_lshl_b32 s55, s43, 11"); I("s_add_u32 s54, s54, s55")

        if self.o.get("hotst"):
            I(f"s_and_b32 s54, s54, {self.o['hotst']*MB-1}"); I(f"s_and_b32 s52, s52, {self.o['hotst']*MB-1}")
        KR = T + 4; VR = T + 11; SH = T + 16; XG = T + 20; GW = T + 24
        hl = {}
        def prep_loads():
            L = []
            def E(t): L.append(lambda: I(t))
            def V(t):
                def f(): I(t); vm.issue()
                L.append(f)
            E(f"s_lshl_b32 s40, s{SHEAD}, 7"); E(f"s_lshl_b32 s39, s{SIDX}, 2"); E("s_add_u32 s40, s40, s39"); E(f"s_add_u32 s40, s40, {FK_OFF}")
            E(f"v_mov_b32 v2, s40")
            E(f"s_lshl_b32 s40, s{SIDX}, 7"); E(f"s_lshl_b32 s39, s{SHEAD}, 2"); E("s_add_u32 s40, s40, s39"); E(f"s_add_u32 s40, s40, {FC_OFF}")
            E("v_writelane_b32 v2, s40, 1")
            E(f"s_sub_u32 s40, 15, s{SIDX}"); E("s_lshl_b32 s40, s40, 7"); E("s_add_u32 s40, s40, s39"); E(f"s_add_u32 s40, s40, {FC_OFF}")
            E("v_writelane_b32 v2, s40, 2")
            E(f"s_lshl_b32 s40, s{SF}, 2"); E(f"s_add_u32 s40, s40, {FY_OFF}"); E("v_writelane_b32 v2, s40, 3"); E("v_mov_b32 v3, 0")
            L.append(self.oob_sel); E("v_add_u32 v2, s99, v2")
            V(f"buffer_store_dword v3, v2, s[{RWS}:{RWS+3}], 0 offen sc1")
            E("s_lshl_b32 s37, s2, 3"); E(f"s_add_u32 s37, s37, s{SW}"); E("s_lshl_b32 s38, s37, 10")
            L.append(lambda: self.srd(RD, "q", 2*MB)); L.append(lambda: self.srd(RE, "wq", 4*MB)); L.append(lambda: self.srd(RT, "gate", 1024))
            V(f"buffer_load_dwordx4 {v(XG,4)}, v{VST}, s[{RD}:{RD+3}], s38 offen")
            V(f"buffer_load_dwordx4 {v(GW,4)}, v{VST}, s[{RT}:{RT+3}], 0 offen")
            L2 = L; L = []
            E("s_lshr_b32 s32, s2, 3"); E("s_and_b32 s33, s2, 7"); E("s_lshl_b32 s34, s32, 6")
            E(f"s_lshl_b32 s35, s{SW}, 3"); E("s_add_u32 s35, s35, s34")
            E("v_lshrrev_b32 v13, 5, v0"); E("v_and_b32 v14, 31, v0"); E("v_lshl_add_u32 v15, v13, 2, s35"); E("v_lshlrev_b32 v15, 10, v15")
            E("s_lshl_b32 s36, s33, 7"); E("v_lshl_add_u32 v14, v14, 2, s36"); E(f"v_add_u32 v{T}, v15, v14")
            for i in range(3): E(f"v_subrev_u32 v{T+1+i}, {3072-1024*i}, v{T}")
            E("v_lshlrev_b32 v14, 2, v14")
            L.append(lambda: self.srd(RT, "k", 2*MB))
            for i in range(3): V(f"buffer_load_dword v{KR+i}, v{T+1+i}, s[{RT}:{RT+3}], 0 offen")
            for i in range(4): V(f"buffer_load_dword v{KR+3+i}, v{T}, s[{RT}:{RT+3}], 0 offen offset:{1024*i}")
            L.append(lambda: self.srd(RT, "v", 2*MB))
            for i in range(4): V(f"buffer_load_dword v{VR+i}, v{T}, s[{RT}:{RT+3}], 0 offen offset:{1024*i}")
            L.append(lambda: self.srd(RT, "shift", 4096))
            V(f"buffer_load_dwordx4 {v(SH,4)}, v14, s[{RT}:{RT+3}], 0 offen")
            def mk(): hl["t"] = vm.issued
            L.append(mk)
            return L2, L
        def prep_ops():
            L = []; E = lambda t: L.append(lambda: I(t))
            KU = T + 28; SU = T + 36; O = T + 40; VU = T + 44; PK = T + 46
            L.append(lambda: vm.wait(hl["t"]))
            E("v_lshrrev_b32 v14, 5, v0"); E("v_and_b32 v15, 31, v0"); E("v_mul_u32_u24 v13, 288, v15")
            E("v_xor_b32 v14, 1, v14"); E("v_lshl_add_u32 v13, v14, 3, v13")
            E(f"s_lshl_b32 s40, s{SW}, 4"); E(f"s_add_u32 s40, s40, {PREP}"); E("v_add_u32 v13, s40, v13")
            for c in range(2):
                def unp(d, sreg, half): E(f"v_lshlrev_b32 v{d}, 16, v{sreg}" if half == 0 else f"v_and_b32 v{d}, 0xffff0000, v{sreg}")
                for i in range(7): unp(KU+i, KR+i, c)
                for j in range(4): unp(SU+j, SH + 2*c + (j >> 1), j & 1)
                for o in range(4):
                    E(f"v_mul_f32 v{O+o}, v{KU+o}, v{SU+3}")
                    for j in (2, 1, 0): E(f"v_fmac_f32 v{O+o}, v{KU+o+3-j}, v{SU+j}")
                    unp(VU, VR+o, c)
                    E(f"v_mul_f32 v{O+o}, v{O+o}, v{VU}")
                E(f"v_cvt_pk_bf16_f32 v{PK}, v{O+3}, v{O+2}"); E(f"v_cvt_pk_bf16_f32 v{PK+1}, v{O+1}, v{O}")
                def w(PK=PK, c=c):
                    I(f"ds_write_b64 v13, {v(PK,2)} offset:{144*c}"); lg.issue()
                L.append(w); PK += 2
            Z = T + 52
            E(f"v_dot2_f32_bf16 v{Z}, v{XG}, v{GW}, 0")
            for i in range(1, 4): E(f"v_dot2_f32_bf16 v{Z}, v{XG+i}, v{GW+i}, v{Z}")
            for m in ("quad_perm:[1,0,3,2] row_mask:0xf", "quad_perm:[2,3,0,1] row_mask:0xf", "row_half_mirror row_mask:0xf", "row_mirror row_mask:0xf",
                      "row_bcast:15 row_mask:0xa", "row_bcast:31 row_mask:0xc"):
                E(f"v_add_f32_dpp v{Z}, v{Z}, v{Z} {m} bank_mask:0xf")
            E(f"v_readlane_b32 s40, v{Z}, 63"); E(f"v_mov_b32 v{Z+1}, {f2u(-LOG2E)}"); E(f"v_mul_f32 v{Z}, s40, v{Z+1}")
            E(f"v_exp_f32 v{Z}, v{Z}"); E(f"v_add_f32 v{Z}, 1.0, v{Z}"); E(f"v_rcp_f32 v{Z}, v{Z}")
            E("s_lshl_b32 s38, s37, 2"); E(f"s_add_u32 s38, s38, {G_OFF}"); E(f"v_mov_b32 v{Z+1}, 0")
            def gs():
                I(f"buffer_store_dword v{Z}, v{Z+1}, s[{RWS}:{RWS+3}], s38 offen{self.st}"); vm.issue()
            L.append(gs)
            return L
        def prep_out():
            L = []; E = lambda t: L.append(lambda: I(t)); h = {}
            E("v_lshrrev_b32 v13, 3, v0"); E(f"s_lshl_b32 s40, s{SW}, 3"); E("v_add_u32 v13, s40, v13")
            E("v_and_b32 v14, 7, v0"); E("v_lshlrev_b32 v14, 4, v14"); E("v_mul_u32_u24 v15, 144, v13")
            E("v_add_u32 v15, v15, v14"); E(f"v_add_u32 v15, {PREP}, v15")
            def r():
                I(f"ds_read_b128 {v(T,4)}, v15"); h["t"] = lg.issue()
            L.append(r)
            E("v_lshl_add_u32 v13, v13, 12, v14"); E("s_lshl_b32 s38, s33, 18"); E("s_lshl_b32 s39, s34, 1")
            E("s_add_u32 s38, s38, s39"); E(f"s_add_u32 s38, s38, {KVT_OFF}")
            def st():
                lg.wait(h["t"])
                I(f"buffer_store_dwordx4 {v(T,4)}, v13, s[{RWS}:{RWS+3}], s38 offen{self.st}"); h["st"] = vm.issue()
            L.append(st)
            return L, h
        def reads(t, k):
            st = k & 1; toks = {}
            xb = xbase(t); va = VXA if xb < 65536 else VXH
            def rx(mt):
                I(f"ds_read_b128 {v(FX[st]+4*mt,4)}, v{va+k} offset:{(xb & 65535)+mt*4096}"); toks[("x",mt)] = lg.issue()
            def rw(dt, h):
                I(f"ds_read_b64_tr_b16 {v(FW[st]+4*dt+2*h,2)}, v{VWA+dt} offset:{wbase(t)-65536+k*4096+h*1024}"); toks[("w",dt)] = lg.issue()
            return [lambda: rx(0), lambda: rw(0,0), lambda: rw(0,1), lambda: rw(1,0), lambda: rw(1,1), lambda: rx(1)], toks
        def mfs(t, k, toks):
            st = k & 1; L = []; ph = t >> 3; acc = ACCS[ph & 1]; first = (t & 7) == 0 and k == 0
            for mt in range(2):
                for dt in range(2):
                    def f(mt=mt, dt=dt):
                        lg.wait(max(toks[("x",mt)], toks[("w",dt)]))
                        d = v(acc + 16*(2*mt+dt), 16); X = v(FX[st]+4*mt,4); W = v(FW[st]+4*dt,4)
                        c = "0" if first else d
                        I(f"{MFMA} {d}, {X}, {W}, {c}" if ph == 1 else f"{MFMA} {d}, {W}, {X}, {c}")
                    L.append(f)
            return L
        def kv_out(ph):
            acc = ACCS[ph & 1]; out = []
            for tile in range(4):
                rt, dt = tile >> 1, tile & 1; b = acc + 16*tile
                for half in range(2):
                    pk = [lambda i=i, b=b: I(f"v_cvt_pk_bf16_f32 v{b+i}, v{b+2*i}, v{b+2*i+1}") for i in range(4*half, 4*half+4)]
                    if ph == 0: pk = [lambda i=i, b=b: I(f"v_mul_f32 v{b+i}, {f2u(LOG2E / math.sqrt(128.0))}, v{b+i}") for i in range(8*half, 8*half+8)] + pk
                    off = rt*8192 + (dt*2048 + half*1024 if ph == 0 else half*4096 + dt*1024)
                    def st(b=b, half=half, off=off):
                        if self.o.get("nost"): return
                        I(f"s_add_u32 s41, s{(54, 52)[ph]}, {off}")
                        I(f"buffer_store_dwordx4 {v(b+4*half,4)}, v{VST}, s[{RWS}:{RWS+3}], s41 offen{self.st}"); vm.issue()
                    out.append(pk + [st])
            return out
        side = {}; late = {}
        def spread(ops, t0, t1):
            sl = [(t, k) for t in range(t0, t1) for k in range(3)]
            n = len(ops)
            for j, key in enumerate(sl): side.setdefault(key, []).extend(ops[n*j//len(sl): n*(j+1)//len(sl)])
        PL = self.o.get("pl", 8); PW = self.o.get("pw", 7); KS = self.o.get("ks", 10)
        LA_, LB_ = prep_loads(); spread(LA_, self.o.get("pg", 0), self.o.get("pg", 0) + 1); spread(LB_, PL, PL + 1); spread(prep_ops(), PL + 4, PL + 7)
        P1, hp = prep_out(); spread(P1, PL + 7, PL + 8)
        if self.o.get("noside"):
            side.clear(); spread(LA_, 0, 1); hp["st"] = 0
        def wo_job():
            A = []; B = []; h = {}
            EA = lambda t: A.append(lambda: I(t)); EB = lambda t: B.append(lambda: I(t))
            A.append(lambda: self.srd(RT, "wo", 4*MB))
            EA("v_lshrrev_b32 v52, 3, v0"); EA("v_bfe_u32 v53, v0, 4, 1"); EA("v_lshlrev_b32 v53, 2, v53"); EA("v_and_b32 v54, 7, v0")
            EA("v_xor_b32 v53, v53, v54"); EA("v_lshlrev_b32 v53, 4, v53"); EA("v_lshl_add_u32 v52, v52, 10, v53")
            EA(f"s_lshl_b32 s55, s{SF}, 14"); EA(f"s_lshl_b32 s39, s{SW}, 7"); EA("s_add_u32 s55, s55, s39"); EA(f"s_lshl_b32 s53, s{SW}, 11"); EA(f"s_add_u32 s53, s53, {PREP}")
            for hh in range(2):
                def f(hh=hh):
                    I(f"s_add_u32 m0, s53, {hh*1024}"); I(f"s_add_u32 s39, s55, {hh*8192}")
                    I(f"buffer_load_dwordx4 v52, s[{RT}:{RT+3}], s39 offen lds"); h["d"] = vm.issue()
                A.append(f)
            EB("v_bfe_u32 v52, v0, 2, 2"); EB("v_lshrrev_b32 v53, 5, v0"); EB("v_lshl_add_u32 v52, v53, 2, v52"); EB("v_lshlrev_b32 v52, 7, v52")
            EB("v_bfe_u32 v53, v0, 3, 1"); EB("v_lshl_add_u32 v52, v53, 6, v52"); EB("v_bfe_u32 v53, v0, 4, 1"); EB("v_lshl_add_u32 v52, v53, 5, v52")
            EB("v_and_b32 v53, 3, v0"); EB("v_lshl_add_u32 v52, v53, 3, v52"); EB("v_add_u32 v52, s53, v52"); EB("v_xor_b32 v53, 64, v52")
            def rd():
                assert vm.done >= h["d"]
                for mt in range(2):
                    for hh in range(2):
                        I(f"ds_read_b64_tr_b16 {v(T+56+4*mt+2*hh,2)}, v{52+mt} offset:{hh*1024}"); h["r"] = lg.issue()
            B.append(rd)
            EB(f"s_lshl_b32 s55, s{SW}, 8"); EB(f"s_add_u32 s55, s55, s{SF}"); EB("s_lshl_b32 s55, s55, 11"); EB(f"s_add_u32 s55, s55, {WOT_OFF}")
            def st():
                lg.wait(h["r"])
                for mt in range(2):
                    I(f"buffer_store_dwordx4 {v(T+56+4*mt,4)}, v{VST}, s[{RWS}:{RWS+3}], s55 offen offset:{mt*1024}{self.st}"); h["st"] = vm.issue()
            B.append(st)
            return A, B, h
        WA, WB, hw = wo_job()
        if self.o.get("noside"): hw["st"] = 0
        else: spread(WA, PW, PW + 1); spread(WB, PW + 3, PW + 4)
        def wtouch(r, half, wv):
            def f():
                I(f"s_cmp_eq_u32 s{SW}, {wv}"); I(f"s_cselect_b32 s99, 0, {self.OOB}")
                I(f"s_lshl_b32 s40, s{SIDX}, 19"); I(f"s_lshl_b32 s39, s{SHEAD}, 8"); I("s_add_u32 s40, s40, s39"); I(f"s_add_u32 s40, s40, {half*32*8192}")
                I("v_lshrrev_b32 v3, 1, v0"); I("v_lshlrev_b32 v3, 13, v3"); I("v_and_b32 v2, 1, v0"); I("v_lshl_add_u32 v3, v2, 7, v3"); I("v_add_u32 v3, s99, v3")
                I(f"buffer_load_dword v1, v3, s[{r}:{r+3}], s40 offen"); vm.issue()
            return f
        def ftouch(r, i, wv):
            def f():
                I(f"s_cmp_eq_u32 s{SW}, {wv}"); I(f"s_cselect_b32 s99, 0, {self.OOB}"); I("v_add_u32 v3, s99, v55")
                I(f"s_add_u32 s41, s42, {i*524288}")
                I(f"buffer_load_dword v1, v3, s[{r}:{r+3}], s41 offen"); vm.issue()
            return f
        if self.o.get("coarse"):
            t0 = self.o.get("wt", 1); t1 = self.o.get("wt2", 4)
            for j, (r, half) in enumerate(((RC, 0), (RC, 1), (RE, 0), (RE, 1))): side.setdefault(((t0 + j) if j < 2 else (t1 + j - 2), 2), []).append(wtouch(r, half, j))
        else:
            FT = []; EF = lambda t: FT.append(lambda: I(t))
            EF("v_lshrrev_b32 v55, 1, v0"); EF("v_lshlrev_b32 v55, 13, v55"); EF("v_and_b32 v54, 1, v0"); EF("v_lshl_add_u32 v55, v54, 7, v55")
            EF("v_lshrrev_b32 v54, 4, v0"); EF("v_lshl_add_u32 v55, v54, 28, v55")
            EF(f"s_lshl_b32 s42, s{SIDX}, 16"); EF(f"s_lshl_b32 s36, s{SHEAD}, 8"); EF("s_add_u32 s42, s42, s36")
            side.setdefault((0, 0), []).extend(FT)
            ft = self.o.get("ft", 1); fk = self.o.get("fk", 2)
            for i in range(8):
                side.setdefault((ft + i, 2), []).append(ftouch(RC, i, i)); side.setdefault((ft + i, 0), []).append(ftouch(RE, i, (i + 4) & 7))
        VS = self.o.get("vstages", 5)
        for ph, t0, t1 in ((0, KS, 16), (1, 16, 16 + VS)):
            pieces = kv_out(ph); sl = [(t, k) for t in range(t0, t1) for k in range(3)]
            for j, pc in enumerate(pieces):
                tt = t0 + (j * (t1 - t0)) // 8
                hh = len(pc) - 5
                side.setdefault((tt, 0), []).extend(pc[:hh]); side.setdefault((tt, 1), []).extend(pc[hh:-1]); late.setdefault(tt, []).append(pc[-1])
        QE = []; EQ = lambda t: QE.append(lambda: I(t))
        EQ(f"s_and_b32 s55, s{SW}, 2"); EQ("s_lshl_b32 s55, s55, 15"); EQ(f"s_add_u32 s55, s55, {QA_LDS}")
        EQ(f"s_and_b32 s54, s{SW}, 1"); EQ("s_lshl_b32 s54, s54, 14"); EQ("s_add_u32 s55, s55, s54")
        EQ("s_lshl_b32 s54, s43, 11"); EQ("s_add_u32 s55, s55, s54"); EQ(f"v_add_u32 v14, s55, v{VST}"); EQ("v_mov_b32 v54, v13")
        spread(QE, 23, 24)
        spread([lambda r=r: I(f"v_mov_b64 {v(192+2*r,2)}, 0") for r in range(32)], 22, 24)
        def fkoff():
            I(f"s_lshl_b32 s40, s{SHEAD}, 7"); I(f"s_lshl_b32 s41, s{SIDX}, 2"); I("s_add_u32 s40, s40, s41"); I(f"s_add_u32 s40, s40, {FK_OFF}")
        def w0only(fn):
            l = a.label("NP"); I(f"s_cmp_lg_u32 s{SW}, 0"); I(f"s_cbranch_scc1 {l}"); fn(); a.L(l)

        def ctouch():
            I(f"s_cmp_eq_u32 s{SW}, 0"); I(f"s_cselect_b32 s99, 0, {self.OOB}"); I("v_lshl_add_u32 v3, v0, 7, s99"); I("s_lshl_b32 s40, s2, 13")
            I(f"buffer_load_dword v1, v3, s[{RA}:{RA+3}], s40 offen"); vm.issue()
        if self.o.get("sb", 1): self.barrier()
        for f in dma_list(1): f()
        dtok[1] = vm.issued
        T0 = [wtouch(RB, 0, 1), wtouch(RB, 1, 2), ctouch] if not self.o.get("not0k") else []
        if self.o.get("t0pre"):
            for f in T0: f()
            T0 = []
        vm.wait(dtok[0]); self.barrier()
        self.stamp(1)
        L, toks = reads(0, 0)
        for f in L: f()
        for f in T0: f()
        mark = {}; TD = max(PL + 9, PW + 5); TZ = self.o.get("pg", 0) + 2
        pend = dma_list(2)
        for t in range(24):
            for k in range(4):
                M = mfs(t, k, toks)
                if k < 3:
                    L, nt = reads(t, k+1)
                    D, pend = pend[:self.o.get("dper", 2)], pend[self.o.get("dper", 2):]
                    fl = [(0, 3, L)]
                    if D: fl.append((0, 4, D))
                    if side.get((t, k)): fl.append((0, 4, side[(t, k)]))
                    if k == 2 and late.get(t): fl.append((0, 4, late[t]))
                    self.stream(M, fl); toks = nt
                    if not pend and (t + 2) not in dtok: dtok[t+2] = vm.issued
                    if k == 2: mark[t] = vm.issued
                    if t == 17 and k == 0:
                        self.oob_sel(); I("v_lshl_add_u32 v13, v0, 2, s99"); td = self.poll_issue(14, 13, "0", RDBG)
                    if t == 20 and k == 0:
                        self.oob_sel(); I("v_and_b32 v13, 7, v0"); I("v_lshl_add_u32 v13, v13, 2, s99")
                        I(f"s_lshl_b32 s53, s{SHEAD}, 7"); I(f"s_add_u32 s53, s53, {FK_OFF}")
                        tp = self.poll_issue(15, 13, "s53")
                elif t < 23:
                    assert not pend
                    if t == 19: vm.wait(td); w0only(lambda: self.poll_check(14, 13, "0", rep4(1), RDBG))
                    if t == 21: vm.wait(tp); w0only(lambda: self.poll_check(15, 13, "s53", 1))
                    lg.wait(lg.issued); vm.wait(dtok[t+1])
                    if t == TZ: vm.wait(mark[TZ-2])
                    if t == TD: vm.wait(max(hw["st"], hp["st"]))
                    if t == 17: vm.wait(mark[15])
                    if t == 16 + VS: vm.wait(mark[15 + VS])
                    self.barrier()
                    ps = self.o.get("pstamp")
                    if ps is not None and 0 <= t - int(ps) + 1 < 13: self.stamp(17 + t - int(ps) + 1); vm.issue(2)
                    if TZ <= t < TZ + 8: self.publish(SF, 1, RDBG, True, idx=t - TZ)
                    if t == TD:
                        I(f"s_lshl_b32 s40, s{SF}, 2"); I(f"s_add_u32 s40, s40, {FY_OFF}"); self.publish(40, 2)
                    if t == 17: fkoff(); self.publish(40, 1)
                    if t == 16 + VS: fkoff(); self.publish(40, 3)
                    L, nt = reads(t+1, 0)
                    pend = dma_list(t+3)
                    if t == 21:
                        def k0(i):
                            I(f"s_lshl_b32 s40, s{SW}, 12"); I("s_add_u32 m0, s40, 0x8000")
                            I(f"s_lshl_b32 s41, s{SHEAD}, 20"); I("s_add_u32 s41, s41, s40")
                            I(f"buffer_load_dwordx4 v{VST}, s[{RWS}:{RWS+3}], s41 offen offset:{1024*i}{self.ld} lds"); vm.issue()
                        pend = [lambda i=i: k0(i) for i in range(4)]
                    D, pend = pend[:self.o.get("dper", 2)], pend[self.o.get("dper", 2):]
                    self.stream(M, [(0, 3, L)] + ([(0, 4, D)] if D else [])); toks = nt
                    if not pend: dtok[t+3] = vm.issued
                else:
                    self.stream(M, [])
            if t == 7: self.stamp(2)
        self.stamp(3)
        def side_check():
            l = a.label("SCK"); lp = a.label("SPL")
            I("s_mov_b32 s99, 20000"); a.L(lp)
            I("v_and_b32 v40, v40, v41"); I("v_and_b32 v42, v42, v43"); I("v_and_b32 v40, v40, v42"); I("v_and_b32 v40, 2, v40")
            I("v_cmp_ne_u32 vcc, 2, v40"); I(f"s_cbranch_vccz {l}"); I("s_sleep 2")
            I(f"buffer_load_dwordx4 v[40:43], v52, s[{RWS}:{RWS+3}], s51 offen sc1")
            I("s_sub_u32 s99, s99, 1"); I("s_cmp_lg_u32 s99, 0"); I("s_waitcnt vmcnt(0)"); I(f"s_cbranch_scc1 {lp}")
            a.L(l)
        def vc():
            self.poll_check(55, 54, "s53", 3); side_check()
        QACC = ACCS[0]
        self.poll_issue(55, 54, "s53")
        self.oob_sel(); I("v_lshl_add_u32 v52, v0, 4, s99"); I(f"s_mov_b32 s51, {FY_OFF}")
        I(f"buffer_load_dwordx4 v[40:43], v52, s[{RWS}:{RWS+3}], s51 offen sc1"); vm.issue()
        for tile in range(4):
            rt, dt = tile >> 1, tile & 1; b = QACC + 16*tile
            for i in range(8): I(f"v_cvt_pk_bf16_f32 v{b+i}, v{b+2*i}, v{b+2*i+1}")
            for half in range(2):
                I(f"ds_write_b128 v14, {v(b+4*half,4)} offset:{rt*8192+dt*2048+half*1024}"); lg.issue()
        self.attn_setup()
        vm.wait(vm.issued); w0only(vc)
        lg.wait(lg.issued); self.barrier()

    def attn_setup(self): self.attn(True)
    def attn(self, setup=False):
        a = self.a; I = self.I; vm = self.vm; lg = self.lg; stream = self.stream
        ML = 159744; QA_LDS = 65536; QB_LDS = 131072
        O = 192; QF = 160; NM = 144; S = [112, 128]; PP = [96, 104]; RING = 64; NR = 8; E = 56; PK = 16
        VK, VV, VL16, LRUN, LU, THR, NINF, VQ, TMP, LA = 4, 5, 6, 7, 8, 9, 10, 11, 12, 48
        SR, SG, SC1, SC2, SKO, SVO, SKM, SVM, STH = 32, 33, 34, 35, 36, 37, 38, 39, 42
        SMK, SFIN, SCA, SM1 = 54, 55, 59, 58
        DC = self.o.get("dmacost", 16); WEV = self.o.get("wev", 2)
        if setup:
            I(f"s_and_b32 s{SR}, s{SW}, 3"); I(f"s_lshr_b32 s{SG}, s{SW}, 2")
            I(f"v_lshlrev_b32 v{VL16}, 4, v0")
            I(f"s_lshl_b32 s44, s{SR}, 13"); I(f"s_add_u32 s44, s44, {QB_LDS}"); I(f"v_add_u32 v{VQ}, s44, v{VL16}")
            I(f"s_lshl_b32 s45, s{SG}, 16"); I(f"v_subrev_u32 v{TMP+1}, s45, v{VQ}")
            I(f"s_mov_b32 s{SC1}, s{SIDX}")
            I(f"s_lshl_b32 s{SC2}, s{SIDX}, 1"); I(f"s_sub_u32 s{SC2}, 14, s{SC2}")
            I(f"s_cmp_eq_u32 s{SG}, 1"); I(f"s_cselect_b32 s{SM1}, 0, -1")
            I(f"s_lshl_b32 s43, s{SW}, 12"); I(f"s_lshl_b32 s{SVO}, s{SHEAD}, 20"); I(f"s_add_u32 s{SVO}, s{SVO}, s43")
            I(f"s_add_u32 s{SKO}, s{SVO}, 0x10000"); I(f"s_add_u32 s{SVO}, s{SVO}, 0x8000")
            I(f"s_mov_b32 s{SKM}, s43"); I(f"s_add_u32 s{SVM}, s43, 0x18000")
            I(f"s_mov_b32 s{STH}, {f2u(4096.0)}"); I(f"v_mov_b32 v{NINF}, 0xff800000")
            I(f"v_and_b32 v{THR}, 31, v0"); I(f"s_lshl_b32 s44, s{SR}, 5"); I(f"v_add_u32 v{THR}, s44, v{THR}")
            I(f"v_lshrrev_b32 v{TMP}, 5, v0"); I(f"v_lshlrev_b32 v{TMP}, 2, v{TMP}"); I(f"v_sub_u32 v{THR}, v{THR}, v{TMP}")
            I(f"v_add_u32 v{VK}, 0x8000, v{VL16}")
            I(f"s_lshl_b32 s{SCA}, s{SIDX}, 2"); I(f"s_add_u32 s{SCA}, s{SCA}, s{SR}"); I(f"s_lshl_b32 s{SCA}, s{SCA}, 5"); I(f"s_add_u32 s{SCA}, s{SCA}, s{SHEAD}")
            I(f"s_lshl_b32 s{SCA}, s{SCA}, 13"); I(f"s_add_u32 s{SCA}, s{SCA}, {CTX_OFF}")
            I(f"s_mov_b32 s{SFIN}, 0")
            if not self.o.get("noprio"):
                l = a.label("PR"); I(f"s_cmp_eq_u32 s{SG}, 1"); I(f"s_cbranch_scc0 {l}"); I("s_setprio 1"); a.L(l)
            return
        def loadq(va):
            qt = []
            for ds in range(8):
                I(f"ds_read_b128 {v(QF+4*ds,4)}, v{va} offset:{1024*ds}"); qt.append(lg.issue())
            return qt
        op = lambda t, c=4: (lambda: I(t), c)
        def dma4(kind):
            sm, so = (SKM, SKO) if kind == "k" else (SVM, SVO)
            def d(i):
                def f():
                    if i == 0: I(f"s_mov_b32 m0, s{sm}"); I(f"s_xor_b32 s{sm}, s{sm}, 0x8000")
                    if not (self.o.get("a_nodma") and i):
                        I(f"buffer_load_dwordx4 v{VL16}, s[{RWS}:{RWS+3}], s{so} offen offset:{1024*i}{self.ld} lds")
                    if i == 3: I(f"s_add_u32 s{so}, s{so}, 0x10000")
                return (f, DC + (8 if i == 0 else 4 if i == 3 else 0))
            return [d(i) for i in range(4)]
        self.ring_n = 0
        def rd(kind, sl, idx):
            h = {}
            def f():
                slot = self.ring_n % NR; self.ring_n += 1
                h["reg"] = RING + 4*slot
                I(f"ds_read_b128 {v(h['reg'],4)}, v{VK if kind == 'k' else VV} offset:{sl*8192+idx*1024}"); h["tok"] = lg.issue()
            return f, h
        def wait_for(R, i):
            if R[i][1]["tok"] <= lg.done: return
            j = i
            while j + 1 < len(R) and j + 1 < i + WEV and "tok" in R[j+1][1] and R[j+1][1]["tok"] > R[i][1]["tok"]: j += 1
            lg.wait(R[j][1]["tok"])
        def mf_qk(sb, ds, R, i, czero=False):
            wait_for(R, i)
            c = (("0" if czero else v(NM,16)) if ds == 0 else v(S[sb],16))
            I(f"{MFMA} {v(S[sb],16)}, {v(R[i][1]['reg'],4)}, {v(QF+4*ds,4)}, {c}")
        def mf_pv(pb, idx, R, i=None, reg=None):
            ks, dt = idx >> 2, idx & 3
            if reg is None: wait_for(R, i); reg = R[i][1]["reg"]
            I(f"{MFMA} {v(O+16*dt,16)}, {v(reg,4)}, {v(PP[pb]+4*ks,4)}, {v(O+16*dt,16)}")
        def sm_ops(sb):
            L = []
            ex = lambda i: op(f"v_exp_f32 v{E+(i&7)}, v{S[sb]+i}", 8)
            def post(j):
                r = []; e0, e1 = E + ((2*j) & 7), E + ((2*j+1) & 7)
                if j == 0: r.append(op(f"v_add_f32 v{LU}, v{e0}, v{e1}"))
                else: r += [op(f"v_add_f32 v{LU}, v{LU}, v{e0}"), op(f"v_add_f32 v{LU}, v{LU}, v{e1}")]
                r.insert(1 if j else 0, op(f"v_cvt_pk_bf16_f32 v{PP[sb]+j}, v{e0}, v{e1}"))
                return r
            L += [ex(0), ex(1)]
            for j in range(8):
                p = post(j)
                L += ([ex(2*j+2), p[0], ex(2*j+3)] + p[1:]) if j < 7 else p
            if self.o.get("a_nosm"): L = [(lambda: None, 0) if i > 3 else x for i, x in enumerate(L)]
            return L
        def sched(M, fixed, chain):
            n = len(M); fc = [sum(c for _, c in fixed.get(g, [])) for g in range(n)]
            tot = sum(c for _, c in chain)
            lo, hi = 0.0, 4000.0
            for _ in range(40):
                lev = (lo + hi) / 2
                if sum(max(0, lev - f) for f in fc) >= tot: hi = lev
                else: lo = lev
            k = 0; credit = 0.0
            for g in range(n):
                M[g]()
                for c, _ in fixed.get(g, []): c()
                credit += max(0, hi - fc[g])
                while k < len(chain) and (g == n - 1 or chain[k][1] <= credit + 2):
                    chain[k][0](); credit -= chain[k][1]; k += 1
        def put(fixed, g, items): fixed.setdefault(g, []).extend(items)
        SPL = self.o.get("spl", 26)
        ool = []
        def rarely(cmp_, body):
            lo = a.label("OOL"); lb = a.label("RET")
            I(cmp_); I(f"s_cbranch_scc1 {lo}"); a.L(lb)
            ool.append((lo, lb, body))
        def mask_body(sb, koff):
            prs = [46, 48, 50, 52]
            if koff >= 64:
                I(f"v_subrev_u32 v{TMP+3}, 64, v{THR}"); tr = TMP + 3; koff -= 64
            elif koff < 0:
                I(f"s_lshl_b32 s44, s{SG}, 6"); I(f"v_subrev_u32 v{TMP+3}, s44, v{THR}"); tr = TMP + 3; koff = -koff - 1
            else: tr = THR
            for r0 in range(0, 16, 4):
                for r in range(r0, r0+4):
                    I(f"v_cmp_lt_i32 s[{prs[r&3]}:{prs[r&3]+1}], v{tr}, {(r & 3) + 8*(r >> 2) + koff}")
                for r in range(r0, r0+4):
                    I(f"v_cndmask_b32 v{S[sb]+r}, v{S[sb]+r}, v{NINF}, s[{prs[r&3]}:{prs[r&3]+1}]")
        def rowmax(sb, dst):
            b = S[sb]
            I(f"v_max3_f32 v{dst}, v{b}, v{b+1}, v{b+2}")
            for i in range(3, 15, 2): I(f"v_max3_f32 v{dst}, v{dst}, v{b+i}, v{b+i+1}")
            I(f"v_max_f32 v{dst}, v{dst}, v{b+15}"); I(f"v_mov_b32 v{dst+1}, v{dst}")
            I(f"v_permlane32_swap_b32 v{dst}, v{dst+1}"); I(f"v_max_f32 v{dst}, v{dst}, v{dst+1}")
        def init_max():
            rowmax(0, TMP)
            I(f"v_max_f32 v{TMP}, {f2u(-1e30)}, v{TMP}")
            for r in range(16): I(f"v_sub_f32 v{NM+r}, 0, v{TMP}")
            return [op(f"v_sub_f32 v{S[0]+r}, v{S[0]+r}, v{TMP}") for r in range(16)]
        rare = []
        def check(sb, other=True):
            def f():
                lr = a.label("RARE"); lb = a.label("BACK")
                I(f"v_cmp_nge_f32 vcc, s{STH}, v{LU}")
                if self.o.get("a_nocheck"): I("s_mov_b64 vcc, 0")
                I(f"s_cbranch_vccnz {lr}"); a.L(lb)
                I(f"v_add_f32 v{LRUN}, v{LRUN}, v{LU}")
                rare.append((lr, lb, sb, other))
            return f
        def fin_body():
            I(f"v_mov_b32 v{TMP}, v{LA}"); I(f"s_mov_b32 s{SFIN}, 2"); I("s_nop 0")
            I(f"v_permlane32_swap_b32 v{TMP}, v{LA}"); I(f"v_add_f32 v{TMP}, v{TMP}, v{LA}"); I(f"v_rcp_f32 v{TMP}, v{TMP}"); I(f"v_mov_b32 v{TMP+1}, v{TMP}")
            for q in range(8):
                for i in range(8*q, 8*q+8, 2): I(f"v_pk_mul_f32 {v(O+i,2)}, {v(O+i,2)}, {v(TMP,2)}")
                for i in range(4): I(f"v_cvt_pk_bf16_f32 v{PK+4*q+i}, v{O+8*q+2*i}, v{O+8*q+2*i+1}")
                for i in range(8*q, 8*q+8, 2): I(f"v_mov_b64 {v(O+i,2)}, 0")
        def st_body():
            I(f"s_add_u32 s44, s{SCA}, 4096"); I(f"s_mov_b32 s{SFIN}, 3")
            for q in range(8):
                I(f"buffer_store_dwordx4 {v(PK+4*q,4)}, v{VL16}, s[{RWS}:{RWS+3}], s{SCA if q < 4 else 44} offen offset:{1024*(q&3)}{self.st}")
        TR = [RING + 4*(2+i) for i in range(6)]
        def head(R, vmw, with_mfma=True, post=()):
            rf = [(f, 4) for f, h in R]; sm2 = sm_ops(0)[SPL:]
            nop = lambda: None
            def first():
                I("s_waitcnt lgkmcnt(4)"); mf_pv(1, 2, None, reg=TR[0])
            M = [first] + [lambda i=i: mf_pv(1, 2+i, None, reg=TR[i]) for i in range(1, 6)] if with_mfma else [nop]*6
            nb = self.o.get("nb", 4)
            sched(M[:2], {}, sm2[:nb])
            vmw(); I("s_waitcnt lgkmcnt(0)"); lg.mark_all_done(); self.barrier(); self.ring_n = 0
            fx = {0: rf[0:2], 1: rf[2:5], 2: rf[5:6], 3: rf[6:7] + [(nop, 12 + 8*len(post))]}
            sched(M[2:], fx, sm2[nb:])
            check(0)()
            for p in post: p()
        def mk_reads():
            return ([rd("k", 0, i) for i in range(8)] + [rd("v", 0, i) for i in range(8)] +
                    [rd("k", 1, i) for i in range(8)] + [rd("v", 1, i) for i in range(8)])
        def mid(R, dmas, kx, mb=None, trans=False, endops=()):
            rf = [(f, 4) for f, h in R]
            M = [lambda i=i: mf_qk(0, i, R, i, trans) for i in range(8)] + [lambda i=i: mf_pv(0, i, R, 8+i) for i in range(8)]
            fx = {}
            for g in range(16): put(fx, g, [rf[7+g]])
            D = sum((dma4(k) for k in dmas), [])
            DS = self.o.get("dstep", 2)
            spill = []
            for n, d in enumerate(D):
                g = n * DS * (2 if len(D) == 4 else 1)
                if g < 15: put(fx, g, [d])
                else: spill.append((g - 16 if g >= 16 else 0, d))
            put(fx, 15, [(lambda: None, 20)])
            sched(M, fx, sm_ops(1))
            check(1, other=not trans)()
            if mb: mb()
            pre = []
            if trans:
                I(f"v_mov_b32 v{LA}, v{LRUN}"); I(f"v_mov_b32 v{LRUN}, 0"); I(f"s_mov_b32 s{SFIN}, 1")
                pre = init_max()
            M = [lambda i=i: mf_qk(1, i, R, 16+i) for i in range(8)] + [lambda i=i: mf_pv(1, i, R, 24+i) for i in range(2)]
            fx = {}
            for g in range(9): put(fx, g, [rf[23+g]])
            for g, d in spill: put(fx, g, [d])
            put(fx, 8, [op(f"v_xor_b32 v{VV}, 0x10000, v{VK}")] + kx)
            for n, e in enumerate(endops): put(fx, 7 - n, [e])
            put(fx, 9, [(lambda: None, 16)])
            sched(M, fx, pre + sm_ops(0)[:SPL])
            assert [R[26+i][1]["reg"] for i in range(6)] == TR
        vm4 = lambda: I("s_waitcnt vmcnt(4)")
        vm0 = lambda: I("s_waitcnt vmcnt(0)")
        def vm08():
            lo = a.label("W8"); lb = a.label("W8R")
            I(f"s_cmp_eq_u32 s{SFIN}, 3"); I(f"s_cbranch_scc1 {lo}"); I("s_waitcnt vmcnt(%d)" % self.o.get("a_vm", 0)); a.L(lb)
            def b(): I("s_waitcnt vmcnt(8)"); I(f"s_mov_b32 s{SFIN}, 4")
            ool.append((lo, lb, b))
        m1 = lambda sb, ko: (lambda: rarely(f"s_cmp_eq_u32 s{SC1}, s{SM1}", lambda: mask_body(sb, ko)))
        m2 = lambda sb, ko: (lambda: rarely(f"s_cmp_eq_u32 s{SC2}, 0", lambda: mask_body(sb, ko)))
        fin = lambda: rarely(f"s_cmp_eq_u32 s{SFIN}, 1", fin_body)
        sta = (lambda: rarely(f"s_cmp_eq_u32 s{SFIN}, 2", st_body), 8)

        LEV = a.label("EVEN"); LODM = a.label("ODDM"); LTRANS = a.label("TRANS"); LP2 = a.label("P2"); LP2B = a.label("P2B"); LDRAIN = a.label("DRAIN")
        self.stamp(8)
        self.ring_n = 0
        R = [rd("k", 0, i) for i in range(8)] + [rd("k", 1, i) for i in range(8)]
        for i in range(7):
            I(f"ds_read_b128 {v(QF+4*i,4)}, v{TMP+1} offset:{1024*i}"); lg.issue()
            R[i][0]()
        def q7():
            I(f"ds_read_b128 {v(QF+28,4)}, v{TMP+1} offset:{1024*7}"); lg.issue()
        D = dma4("v") + dma4("k")
        sched([lambda i=i: mf_qk(0, i, R, i, True) for i in range(8)], {g: ([(q7, 4)] if g == 0 else []) + [(R[7+g][0], 4), D[g]] for g in range(8)}, [])
        m1(0, 0)()
        pre = init_max()
        I(f"v_mov_b32 v{LRUN}, 0")
        fx = {}
        put(fx, 0, [(R[15][0], 4)]); put(fx, 4, [op(f"v_xor_b32 v{VV}, 0x10000, v{VK}"), op(f"v_xor_b32 v{VK}, 0x4000, v{VK}")])
        sched([lambda i=i: mf_qk(1, i, R, 8+i) for i in range(8)], fx, pre + sm_ops(0)[:SPL])
        R = mk_reads()
        head(R, vm4, False, post=[m1(1, 32)])
        svm = self.save()
        I(f"s_branch {LODM}")
        a.L(LEV)
        R = mk_reads(); head(R, vm4)
        mid(R, "k", [op(f"v_xor_b32 v{VK}, 0x4000, v{VK}")], mb=m1(0, 0))
        R = mk_reads(); head(R, vm4, post=[m1(1, 32)])
        assert self.lg.issued - self.lg.done == svm[2] - svm[3]
        a.L(LODM)
        mid(R, "v", [op(f"v_xor_b32 v{VK}, 0xc000, v{VK}")], mb=m1(0, 64), endops=[op(f"s_sub_u32 s{SC1}, s{SC1}, 1")])
        I(f"s_cmp_lg_u32 s{SC1}, -1"); I(f"s_cbranch_scc1 {LEV}")
        I(f"s_cmp_eq_u32 s{SG}, 1"); I(f"s_cbranch_scc1 {LTRANS}")
        svt = self.save()
        R = mk_reads(); head(R, vm4)
        mid(R, "k", [op(f"v_xor_b32 v{VK}, 0x8000, v{VK}")], mb=m2(0, -1))
        a.L(LP2B)
        I(f"s_cmp_eq_u32 s{SC2}, 0"); I(f"s_cbranch_scc1 {LDRAIN}")
        a.L(LP2)
        R = mk_reads(); head(R, vm08, post=[fin, lambda: I(f"s_sub_u32 s{SC2}, s{SC2}, 1")])
        mid(R, "kv", [op(f"v_xor_b32 v{VK}, 0x8000, v{VK}")], mb=m2(0, -1), endops=[sta])
        I(f"s_cmp_lg_u32 s{SC2}, 0"); I(f"s_cbranch_scc1 {LP2}")
        a.L(LDRAIN)
        self.stamp(10)
        R2 = [rd("v", 0, i) for i in range(8)] + [rd("v", 1, i) for i in range(8)]
        rf = [(f, 4) for f, h in R2]
        head(R2, vm08, post=[fin, sta[0]])
        mask_body(1, -33)
        ts = self.tail_setup(); n8 = (len(ts) + 7) // 8
        sched([lambda i=i: mf_pv(0, i, R2, i) for i in range(8)], {g: [rf[7+g]] + ts[g*n8:(g+1)*n8] for g in range(8)}, sm_ops(1))
        check(1)()
        pre = []; E_ = lambda t: pre.append(op(t))
        E_(f"v_mov_b32 v{TMP}, v{LRUN}"); E_(f"s_lshl_b32 s44, s{SW}, 9"); E_(f"s_add_u32 s44, s44, {ML}")
        E_(f"v_permlane32_swap_b32 v{TMP}, v{LRUN}"); E_(f"v_add_f32 v{NM+1}, v{TMP}, v{LRUN}")
        E_(f"v_lshrrev_b32 v{TMP}, 1, v{VL16}"); E_(f"v_add_u32 v{TMP}, s44, v{TMP}")
        def wml():
            I(f"ds_write_b64 v{TMP}, {v(NM,2)}"); lg.issue()
        pre.append((wml, 4))
        E_(f"v_xor_b32 v{TMP}, 0x800, v{TMP}")
        E_(f"s_lshl_b32 s46, s{SW}, 13"); E_(f"v_add_u32 v{TMP+1}, s46, v{VL16}"); E_(f"v_xor_b32 v{TMP+2}, 0x8000, v{TMP+1}")
        E_(f"s_sub_u32 s54, 15, s{SIDX}"); E_(f"s_lshl_b32 s54, s54, 2"); E_(f"s_add_u32 s54, s54, s{SR}"); E_("s_lshl_b32 s54, s54, 5"); E_(f"s_add_u32 s54, s54, s{SHEAD}")
        E_("s_lshl_b32 s54, s54, 13"); E_(f"s_lshl_b32 s44, s{SG}, 12"); E_("s_add_u32 s54, s54, s44"); E_(f"s_add_u32 s54, s54, {CTX_OFF}")
        sched([lambda i=i: mf_pv(1, i, R2, 8+i) for i in range(8)], {0: [rf[15]]}, pre)
        self.stamp(11)
        lg1 = a.label("MG1"); lj = a.label("MGJ")
        I(f"s_cmp_eq_u32 s{SG}, 1"); I(f"s_cbranch_scc1 {lg1}")
        sv2 = self.save(); PR = 64
        for g in (0, 1):
            if g: a.L(lg1); self.restore(sv2)
            own = O + 32*g; snd = O + 32*(1-g)
            for i in range(8):
                I(f"ds_write_b128 v{TMP+1}, {v(snd+4*i,4)} offset:{1024*i}"); lg.issue()
            lg.wait(lg.issued); self.barrier()
            I(f"ds_read_b64 {v(96,2)}, v{TMP}"); t0 = lg.issue()
            tk = []
            for i in range(8):
                I(f"ds_read_b128 {v(PR+4*i,4)}, v{TMP+2} offset:{1024*i}"); tk.append(lg.issue())
            lg.wait(t0)
            I(f"v_min_f32 v98, v{NM}, v96"); I(f"v_sub_f32 v99, v98, v{NM}"); I(f"v_sub_f32 v100, v98, v96")
            I("v_exp_f32 v99, v99"); I("v_exp_f32 v100, v100")
            I(f"v_mul_f32 v101, v99, v{NM+1}"); I("v_fmac_f32 v101, v100, v97"); I("v_rcp_f32 v101, v101")
            I("v_mul_f32 v102, v99, v101"); I("v_mul_f32 v103, v99, v101"); I("v_mul_f32 v104, v100, v101"); I("v_mul_f32 v105, v100, v101")
            for q in range(4):
                for i in range(8*q, 8*q+8, 2): I(f"v_pk_mul_f32 {v(own+i,2)}, {v(own+i,2)}, v[102:103]")
                lg.wait(tk[2*q+1])
                for i in range(8*q, 8*q+8, 2): I(f"v_pk_fma_f32 {v(own+i,2)}, {v(PR+i,2)}, v[104:105], {v(own+i,2)}")
                for i in range(4): I(f"v_cvt_pk_bf16_f32 v{snd+4*q+i}, v{own+8*q+2*i}, v{own+8*q+2*i+1}")
                I(f"buffer_store_dwordx4 {v(snd+4*q,4)}, v{VL16}, s[{RWS}:{RWS+3}], s54 offen offset:{1024*q}{self.st}"); self.tctx = vm.issue()
            if not g: I(f"s_branch {lj}")
        a.L(lj)
        I("s_setprio 0")
        self.stamp(4)
        def cold():
            a.L(LTRANS)
            self.restore(svt)
            loadq(VQ); I("s_waitcnt lgkmcnt(0)")
            I(f"v_xor_b32 v{VK}, 0x4000, v{VK}")
            R = mk_reads(); head(R, vm4, post=[lambda: mask_body(1, 96)])
            mid(R, "k", [op(f"v_xor_b32 v{VK}, 0x8000, v{VK}")], mb=m2(0, -1), trans=True)
            I(f"s_branch {LP2B}")
            for (lo, lb, body) in ool:
                a.L(lo); body(); I(f"s_branch {lb}")
            for (lr, lb, sb, other) in rare:
                a.L(lr)
                I("s_nop 15")
                rowmax(sb, TMP)
                I(f"v_max_f32 v{TMP}, 0, v{TMP}"); I(f"v_exp_f32 v{TMP+1}, -v{TMP}")
                for r in range(16): I(f"v_sub_f32 v{NM+r}, v{NM+r}, v{TMP}")
                for r in range(16): I(f"v_sub_f32 v{S[sb]+r}, v{S[sb]+r}, v{TMP}")
                if other:
                    for r in range(16): I(f"v_sub_f32 v{S[1-sb]+r}, v{S[1-sb]+r}, v{TMP}")
                for r in range(64): I(f"v_mul_f32 v{O+r}, v{O+r}, v{TMP+1}")
                I(f"v_mul_f32 v{LRUN}, v{LRUN}, v{TMP+1}")
                for c, _ in sm_ops(sb): c()
                I("s_nop 1"); I(f"s_branch {lb}")
        self.attn_rare = cold

    HB = 65536; HC = 4416; XB = 136192; YB = 148480
    SC, SJ, SB, SCH, SHB_, SWO, SCX = 34, 35, 36, 37, 38, 39, 40
    WR = 152; NW = 13; CXR = 96; NCX = 7
    def tail_setup(self):
        I = self.I; L = []; E = lambda t: L.append((lambda: I(t), 4))
        SC, SJ, SB, SCH, SHB_, SWO, SCX = self.SC, self.SJ, self.SB, self.SCH, self.SHB_, self.SWO, self.SCX
        L.append((lambda: self.srd(RB, "ssmk", 2*MB), 16))
        E(f"s_lshr_b32 s{SC}, s{SW}, 2"); E(f"s_and_b32 s{SJ}, s{SW}, 3")
        E(f"s_mul_i32 s{SB}, s{SC}, 6144"); E(f"s_add_u32 s{SB}, s{SB}, {self.XB}")
        E(f"s_mul_i32 s{SHB_}, s{SC}, {8*self.HC}"); E(f"s_add_u32 s{SHB_}, s{SHB_}, {self.HB}")
        E(f"s_lshl_b32 s{SCH}, s{SF}, 1"); E(f"s_add_u32 s{SCH}, s{SCH}, s{SC}"); E(f"s_lshl_b32 s{SCH}, s{SCH}, 12")
        E(f"s_lshl_b32 s{SWO}, s{SIDX}, 19"); E(f"s_lshl_b32 s60, s{SW}, 16"); E(f"s_add_u32 s{SWO}, s{SWO}, s60"); E(f"s_add_u32 s{SWO}, s{SWO}, {WOT_OFF}")
        E(f"s_lshl_b32 s{SCX}, s{SHEAD}, 19"); E(f"s_lshl_b32 s60, s{SW}, 15"); E(f"s_add_u32 s{SCX}, s{SCX}, s60"); E(f"s_add_u32 s{SCX}, s{SCX}, {CTX_OFF}")
        E(f"s_lshl_b32 s60, s{SJ}, 10"); E("v_add_u32 v50, s60, v6"); E("v_subrev_u32 v51, 16, v50")
        E(f"s_add_u32 s60, s{SCH}, {KVT_OFF}")
        def ld(t):
            def f(): I(t); self.th = self.vm.issue()
            L.append((f, 16))
        ld(f"buffer_load_dwordx4 {v(160,4)}, v51, s[{RB}:{RB+3}], s{SCH} offen")
        ld(f"buffer_load_dwordx4 {v(164,4)}, v50, s[{RB}:{RB+3}], s{SCH} offen")
        ld(f"buffer_load_dwordx4 {v(168,4)}, v50, s[{RWS}:{RWS+3}], s60 offen{self.ld}")
        return L
    def wload(self, i, force=False):
        I = self.I; r = self.WR + 8*(i % self.NW)
        if i % 2 == 0 or force or i == self.NW: I(f"s_add_u32 s61, s{self.SWO}, {(i & ~1)*2048}")
        for mt in range(2):
            I(f"buffer_load_dwordx4 {v(r+4*mt,4)}, v6, s[{RWS}:{RWS+3}], s61 offen offset:{(i%2)*2048+mt*1024}{self.ld}"); self.wtok[i] = self.vm.issue()
    def tail_early(self):
        I = self.I; vm = self.vm; lg = self.lg; HC = self.HC
        SJ, SB, SCH, SHB_ = self.SJ, self.SB, self.SCH, self.SHB_
        Ee, Eo, Oe, Oo = 160, 113, 122, 131
        vm.wait(self.th)
        for k in range(7): I(f"v_alignbit_b32 v{Oe+k}, v{Ee+k+1}, v{Ee+k}, 16")
        for k in range(1, 7): I(f"v_alignbit_b32 v{Oo+k}, v{Ee+k+1}, v{Ee+k}, 16")
        for k in range(1, 7): I(f"v_mov_b32 v{Eo+k}, v{Ee+k}")
        I(f"s_add_u32 s60, s{SHB_}, 64"); I("v_add_u32 v51, s60, v50")
        for r in range(8):
            sft = 1 + r; k = sft >> 1
            base = ((Oe, Oo) if sft & 1 else (Ee, Eo))[k & 1]
            I(f"ds_write_b128 v51, {v(base+k,4)} offset:{r*HC}"); lg.issue()
        I("v_and_b32 v51, 3, v0"); I("v_mul_u32_u24 v52, 1536, v51"); I("v_lshrrev_b32 v53, 6, v50"); I("v_lshl_add_u32 v52, v53, 4, v52")
        I(f"s_add_u32 s60, s{SB}, 512"); I("v_add_u32 v52, s60, v52")
        I(f"ds_write_b128 v52, {v(168,4)}"); lg.issue()
        for r in range(4): I(f"v_mov_b32 v{172+r}, 0")
        I("v_bfe_u32 v52, v0, 2, 3"); I(f"v_mul_u32_u24 v52, {HC}, v52"); I("v_lshl_add_u32 v52, v51, 4, v52"); I(f"v_add_u32 v52, s{SHB_}, v52")
        I(f"ds_write_b128 v52, {v(172,4)}"); lg.issue()
        I(f"s_mul_i32 s60, s{SJ}, 1536"); I(f"s_add_u32 s60, s60, s{SB}"); I("v_lshl_add_u32 v52, v0, 3, s60")
        I(f"ds_write_b64 v52, {v(172,2)}"); lg.issue()
    def tailp(self):
        a = self.a; I = self.I; vm = self.vm; lg = self.lg
        HB, HC, YB = self.HB, self.HC, self.YB; RBUF = HB
        SC, SJ, SB, SCH, SHB_, SWO, SCX = self.SC, self.SJ, self.SB, self.SCH, self.SHB_, self.SWO, self.SCX
        ACC = 32; FR = 64; NF = 3
        VL16, VA, VB, T = 6, 4, 5, 12
        OACC = 32; XR, GR = 16, 20
        WR, NW, CXR, NCX = self.WR, self.NW, self.CXR, self.NCX
        self.wtok = {}; wtok = self.wtok; ctok = {}
        self.tail_early()
        wl = list(range(NW)); PUBN = self.o.get("pubn", 1)
        I(f"s_sub_u32 s44, 15, s{SIDX}"); I("s_lshl_b32 s44, s44, 7"); I(f"s_lshl_b32 s45, s{SHEAD}, 2"); I("s_add_u32 s46, s44, s45"); I(f"s_add_u32 s46, s46, {FC_OFF}")
        I(f"s_lshl_b32 s44, s{SIDX}, 7"); I("s_add_u32 s47, s44, s45"); I(f"s_add_u32 s47, s47, {FC_OFF}")
        self.srd(RC, "out", 2*MB); self.srd(RD, "q", 2*MB)
        I(f"s_lshl_b32 s44, s{SF}, 2"); I(f"s_load_dword s55, s[{P['ssmD']}:{P['ssmD']+1}], s44")
        I(f"v_and_b32 v{T}, 31, v0"); I(f"v_lshrrev_b32 v{T+1}, 5, v0")
        I(f"v_and_b32 v{T+2}, 7, v0"); I(f"v_mul_u32_u24 v{VA}, {HC}, v{T+2}")
        I(f"v_bfe_u32 v{T+2}, v0, 3, 2"); I(f"v_sub_u32 v{T+2}, v{T+2}, v{T+1}"); I(f"v_lshl_add_u32 v{VA}, v{T+2}, 4, v{VA}")
        I(f"s_lshl_b32 s43, s{SJ}, 9"); I(f"s_add_u32 s43, s43, s{SHB_}"); I("s_add_u32 s43, s43, 32"); I(f"v_add_u32 v{VA}, s43, v{VA}")
        I(f"s_lshl_b32 s43, s{SJ}, 7"); I(f"s_sub_u32 s43, s{SB}, s43"); I("s_add_u32 s43, s43, 400")
        I(f"v_lshl_add_u32 v{VB}, v{T}, 4, s43"); I(f"v_mul_u32_u24 v{T+2}, 1536, v{T+1}"); I(f"v_add_u32 v{VB}, v{VB}, v{T+2}")
        I("s_waitcnt lgkmcnt(0)"); lg.mark_all_done(); self.barrier()
        self.stamp(5)
        steps = [(dd, ks) for dd in range(8) for ks in range(2)]
        toks = {}
        def reads(n):
            dd, ks = steps[n]; b = FR + 16*(n % NF)
            def r(k, reg, addr, off):
                def f():
                    I(f"ds_read_b128 {v(reg,4)}, v{addr} offset:{off}"); toks[(n, k)] = lg.issue()
                return f
            return [r(0, b, VA, 64*dd + 32*(1-ks)), r(1, b+4, VB, ks*3072 + (7-dd)*16),
                    r(2, b+8, VB, ks*3072 + (7-dd)*16 + 512), r(3, b+12, VA, 64*dd + 32*(1-ks) + 2048)]
        for n in range(2):
            for f in reads(n): f()
        for n in range(16):
            b = FR + 16*(n % NF); L = reads(n+2) if n + 2 < 16 else []
            c0 = "0" if n == 0 else v(ACC,16); c1 = "0" if n == 0 else v(ACC+16,16)
            lg.wait(toks[(n,1)]); I(f"{MFMA} {v(ACC,16)}, {v(b,4)}, {v(b+4,4)}, {c0}")
            for f in L[0:2]: f()
            lg.wait(toks[(n,2)]); I(f"{MFMA} {v(ACC+16,16)}, {v(b,4)}, {v(b+8,4)}, {c1}")
            for f in L[2:3]: f()
            lg.wait(toks[(n,3)]); I(f"{MFMA} {v(ACC+16,16)}, {v(b+12,4)}, {v(b+4,4)}, {v(ACC+16,16)}")
            for f in L[3:4]: f()
            if n == PUBN:
                vm.wait(self.tctx); self.barrier(); self.publish(46); self.publish(47)
            if n >= PUBN:
                for _ in range(-(-len(wl) // (16 - n))): self.wload(wl.pop(0), True)
            if n == 12:
                I(f"s_lshr_b32 s53, s{SHEAD}, 1"); I("s_lshl_b32 s53, s53, 7"); I(f"s_lshl_b32 s44, s{SW}, 4"); I("s_add_u32 s53, s53, s44"); I(f"s_add_u32 s53, s53, {FC_OFF}")
                I("v_and_b32 v22, 3, v0"); I("v_lshlrev_b32 v22, 2, v22")
                tc0 = self.poll_issue(21, 22, "s53")
        assert not wl
        def cload(i):
            r = CXR + 8*((i + 2) % NCX)
            if i % 4 == 0:
                I(f"s_add_u32 s62, s{SCX}, {(i//4)*4096}"); I("s_add_u32 s63, s62, 0x40000")
            for st in range(2):
                I(f"buffer_load_dwordx4 {v(r+4*st,4)}, v{VL16}, s[{RWS}:{RWS+3}], s{62+st} offen offset:{(i%4)*1024}{self.ld}"); ctok[i] = vm.issue()
        I(f"s_lshl_b32 s43, s{SW}, 13"); I(f"v_add_u32 v{T+2}, s43, v{VL16}")
        for i in range(8):
            I(f"ds_write_b128 v{T+2}, {v(ACC+4*i,4)} offset:{1024*i}"); lg.issue()
        I(f"s_lshl_b32 s43, s{SC}, 15"); I(f"s_lshl_b32 s44, s{SJ}, 11"); I("s_add_u32 s43, s43, s44"); I(f"v_add_u32 v{T+2}, s43, v{VL16}")
        I(f"s_and_b32 s43, s{SJ}, 1"); I("s_mul_i32 s44, s43, 3072"); I(f"s_lshr_b32 s45, s{SJ}, 1"); I("s_lshl_b32 s41, s45, 9")
        I("s_add_u32 s44, s44, s41"); I(f"s_add_u32 s44, s44, s{SB}"); I("s_add_u32 s44, s44, 520")
        I(f"v_lshl_add_u32 v{T+3}, v{T}, 4, s44"); I(f"v_lshlrev_b32 v{VA}, 3, v{T+1}"); I(f"v_sub_u32 v{T+3}, v{T+3}, v{VA}")
        I(f"v_lshlrev_b32 v{VB}, 6, v{T}"); I(f"v_lshl_add_u32 v{VB}, v{T+1}, 4, v{VB}")
        I("s_lshl_b32 s45, s45, 11"); I("s_lshl_b32 s43, s43, 5"); I("s_add_u32 s45, s45, s43"); I(f"s_lshl_b32 s43, s{SC}, 12"); I("s_add_u32 s45, s45, s43")
        I(f"s_add_u32 s45, s45, {HB}"); I(f"v_add_u32 v{VB}, s45, v{VB}")
        I("s_lshl_b32 s43, s55, 16"); I("s_and_b32 s44, s55, 0xffff0000"); I(f"s_cmp_eq_u32 s{SC}, 0"); I("s_cselect_b32 s55, s43, s44")
        lg.wait(lg.issued); self.barrier()
        self.stamp(12)
        vm.wait(tc0)
        le = a.label("NE")
        I("v_and_b32 v21, 1, v21"); I("v_cmp_ne_u32 vcc, 1, v21"); I("s_mov_b32 s50, 0"); I(f"s_cbranch_vccnz {le}")
        sv = self.save(); I("s_mov_b32 s50, 1")
        for i in range(NCX): cload(i)
        self.restore(sv)
        a.L(le)
        for p in range(4):
            for gq in range(2):
                I(f"ds_read_b128 {v(FR+8*p+4*gq,4)}, v{T+2} offset:{8192*p+1024*gq}"); lg.issue()
        for gq in range(2):
            I(f"ds_read_b64 {v(ACC+2*gq,2)}, v{T+3} offset:{1536*gq}"); lg.issue()
        lg.wait(lg.issued)
        for i in range(8):
            I(f"v_add_f32 v{FR+i}, v{FR+i}, v{FR+8+i}"); I(f"v_add_f32 v{FR+16+i}, v{FR+16+i}, v{FR+24+i}")
        for i in range(8): I(f"v_add_f32 v{FR+i}, v{FR+i}, v{FR+16+i}")
        for gq in range(2):
            for r in range(4):
                srcr = ACC + 2*gq + (1 - (r >> 1))
                I(f"v_lshlrev_b32 v{ACC+8}, 16, v{srcr}" if r & 1 else f"v_and_b32 v{ACC+8}, 0xffff0000, v{srcr}")
                I(f"v_fma_f32 v{FR+4*gq+r}, v{ACC+8}, s55, v{FR+4*gq+r}")
        for i in range(4): I(f"v_cvt_pk_bf16_f32 v{ACC+12+i}, v{FR+2*i}, v{FR+2*i+1}")
        I(f"v_permlane32_swap_b32 v{ACC+12}, v{ACC+14}"); I(f"v_permlane32_swap_b32 v{ACC+13}, v{ACC+15}")
        I(f"ds_write_b128 v{VB}, {v(ACC+12,4)}"); lg.issue()
        lg.wait(lg.issued); self.barrier()
        ly = a.label("NY")
        I(f"s_cmp_lg_u32 s{SW}, 0"); I(f"s_cbranch_scc1 {ly}")
        I(f"v_add_u32 v{T}, {HB}, v{VL16}")
        for i in range(8): I(f"ds_read_b128 {v(FR+4*i,4)}, v{T} offset:{1024*i}")
        I(f"s_lshl_b32 s44, s{SF}, 13"); I(f"s_add_u32 s44, s44, {YT_OFF}"); I("s_add_u32 s45, s44, 4096")
        I("s_waitcnt lgkmcnt(0)")
        for i in range(8): I(f"buffer_store_dwordx4 {v(FR+4*i,4)}, v{VL16}, s[{RWS}:{RWS+3}], s{44+(i>>2)} offen offset:{1024*(i&3)}{self.st}")
        I("s_waitcnt vmcnt(0)")
        I(f"s_lshl_b32 s44, s{SF}, 2"); I(f"s_add_u32 s44, s44, {FY_OFF}")
        sv = self.save(); self.publish(44, 3); self.restore(sv)
        a.L(ly)
        ll = a.label("NL")
        I("s_cmp_eq_u32 s50, 1"); I(f"s_cbranch_scc1 {ll}")
        self.poll_check(21, 22, "s53", 1)
        for i in range(NCX): cload(i)
        a.L(ll)
        self.stamp(6)
        YT = YB
        for i in range(32):
            if i % 4 == 0 and self.o.get("ostamp"): self.stamp(17 + i // 4)
            if i == 14:
                I(f"s_lshl_b32 s53, s{SIDX}, 7"); I(f"s_lshl_b32 s42, s{SW}, 4"); I("s_add_u32 s53, s53, s42"); I(f"s_add_u32 s53, s53, {FY_OFF}")
                tf = self.poll_issue(21, 22, "s53")
            if i == 24:
                vm.wait(tf); self.poll_check(21, 22, "s53", 1)
                I(f"v_lshrrev_b32 v{T}, 3, v0"); I(f"v_and_b32 v{T+1}, 7, v0"); I(f"v_lshlrev_b32 v{T+1}, 4, v{T+1}")
                I(f"v_lshl_add_u32 v{T}, v{T}, 12, v{T+1}")
                I(f"s_add_u32 m0, s{SWK}, {YT}")
                I(f"s_lshl_b32 s44, s{SIDX}, 18"); I(f"s_lshl_b32 s45, s{SW}, 15"); I("s_add_u32 s44, s44, s45")
                I(f"s_lshl_b32 s45, s{SHEAD}, 7"); I("s_add_u32 s44, s44, s45"); I(f"s_add_u32 s44, s44, {YT_OFF}")
                I(f"buffer_load_dwordx4 v{T}, s[{RWS}:{RWS+3}], s44 offen{self.ld} lds"); vm.issue()
                I(f"v_and_b32 v{T+1}, 15, v0"); I(f"s_lshr_b32 s48, s{SW}, 1"); I("s_lshl_b32 s48, s48, 4")
                I(f"s_lshl_b32 s45, s{SHEAD}, 6"); I("s_add_u32 s45, s45, s48"); I(f"v_add_u32 v{T+1}, s45, v{T+1}")
                I(f"v_lshlrev_b32 v{T+2}, 2, v{T+1}"); I(f"s_mov_b32 s45, {G_OFF}")
                I(f"buffer_load_dword v{GR}, v{T+2}, s[{RWS}:{RWS+3}], s45 offen{self.ld}"); vm.issue()
                I(f"v_lshrrev_b32 v{T+2}, 4, v0"); I(f"v_lshlrev_b32 v{T+2}, 4, v{T+2}"); I(f"v_lshl_add_u32 v23, v{T+1}, 10, v{T+2}")
                I(f"s_and_b32 s49, s{SW}, 1"); I("s_lshl_b32 s49, s49, 6"); I(f"s_lshl_b32 s45, s{SIDX}, 7"); I("s_add_u32 s49, s49, s45")
                I(f"buffer_load_dwordx4 {v(XR,4)}, v23, s[{RD}:{RD+3}], s49 offen"); vm.issue()
            vm.wait(max(ctok[i], wtok[i]))
            for mt in range(2):
                for st in range(2):
                    d = v(OACC + 16*(2*mt+st), 16)
                    I(f"{MFMA} {d}, {v(WR+8*(i%NW)+4*mt,4)}, {v(CXR+8*((i+2)%NCX)+4*st,4)}, {'0' if i == 0 else d}")
            if i + NCX < 32: cload(i + NCX)
            if i + NW < 32: self.wload(i + NW)
        self.stamp(7)
        I(f"v_and_b32 v{T}, 31, v0"); I(f"v_lshrrev_b32 v{T+1}, 5, v0"); I(f"v_and_b32 v{T+2}, 15, v0")
        I(f"v_xor_b32 v{T+1}, v{T+1}, v{T+2}"); I(f"v_lshlrev_b32 v{T+1}, 4, v{T+1}"); I(f"v_lshl_add_u32 v{T}, v{T}, 8, v{T+1}")
        I(f"s_xor_b32 s44, s{SW}, 4"); I("s_lshl_b32 s44, s44, 14"); I(f"v_add_u32 v{T}, s44, v{T}")
        for mt in range(2):
            for gq in range(4):
                I(f"v_xor_b32 v{T+1}, {(8*mt+2*gq)*16}, v{T}")
                for st in range(2):
                    I(f"ds_write_b128 v{T+1}, {v(OACC+16*(2*mt+st)+4*gq,4)} offset:{8192*st}"); lg.issue()
        I(f"v_lshrrev_b32 v{T}, 4, v0"); I(f"s_and_b32 s41, s{SW}, 1"); I("s_lshl_b32 s42, s41, 3")
        I(f"v_lshl_add_u32 v{T+1}, v{T}, 1, s42"); I(f"v_xor_b32 v{T+1}, v{T+1}, v{T+2}"); I(f"v_lshlrev_b32 v{T+1}, 4, v{T+1}")
        I(f"v_add_u32 v{T+3}, s48, v{T+2}"); I(f"v_lshl_add_u32 v24, v{T+3}, 8, v{T+1}")
        I("v_xor_b32 v25, 16, v24"); I("v_add_u32 v26, 0x10000, v24"); I("v_add_u32 v27, 0x10000, v25")
        I("s_lshl_b32 s42, s41, 5"); I(f"v_lshl_add_u32 v{T}, v{T}, 3, s42"); I(f"v_bfe_u32 v{T+1}, v0, 2, 2")
        I(f"v_add_u32 v{T}, v{T}, v{T+1}"); I(f"v_lshlrev_b32 v{T}, 7, v{T}"); I(f"v_and_b32 v{T+1}, 3, v0")
        I(f"v_lshl_add_u32 v{T}, v{T+1}, 3, v{T}"); I("s_lshl_b32 s42, s48, 1"); I(f"s_add_u32 s42, s42, {YT}"); I(f"v_add_u32 v28, s42, v{T}")
        self.sync_all()
        CX = 128; tk = []
        I(f"ds_read_b64_tr_b16 {v(100,2)}, v28"); lg.issue()
        I(f"ds_read_b64_tr_b16 {v(102,2)}, v28 offset:512"); ty2 = lg.issue()
        for p in range(8):
            for hh in range(2):
                I(f"ds_read_b128 {v(CX+8*p+4*hh,4)}, v{24+hh+2*(p>>2)} offset:{16384*(p&3)}"); lg.issue()
            tk.append(lg.issued)
            if p == 5:
                lg.wait(ty2)
                for e in range(8):
                    if e & 1: I(f"v_and_b32 v104, 0xffff0000, v{XR+(e>>1)}"); I(f"v_and_b32 v105, 0xffff0000, v{100+(e>>1)}")
                    else: I(f"v_lshlrev_b32 v104, 16, v{XR+(e>>1)}"); I(f"v_lshlrev_b32 v105, 16, v{100+(e>>1)}")
                    I(f"v_mul_f32 v{112+e}, v104, v105"); I(f"v_mul_f32 v{112+e}, v{112+e}, v{GR}")
                I(f"v_sub_f32 v{GR}, 1.0, v{GR}")
        for p in range(1, 8):
            lg.wait(tk[p])
            for e in range(8): I(f"v_add_f32 v{CX+e}, v{CX+e}, v{CX+8*p+e}")
        for e in range(8): I(f"v_fmac_f32 v{112+e}, v{CX+e}, v{GR}")
        for e in range(4): I(f"v_cvt_pk_bf16_f32 v{108+e}, v{112+2*e}, v{112+2*e+1}")
        I(f"buffer_store_dwordx4 {v(108,4)}, v23, s[{RC}:{RC+3}], s49 offen"); vm.issue()
        self.stamp(16)

def build(opts):
    g = G(opts); k = NAME + "_kernel"
    g.begin(k); g.proj(); g.attn(); g.tailp(); g.end(); g.attn_rare()
    n = g.a.fix_hazards()
    txt = "; @launch grid=(256,1,1) block=(512,1,1) lds=163840\n"
    txt += '.amdgcn_target "amdgcn-amd-amdhsa--gfx950"\n.text\n' + g.a.text()
    txt += f""".section .rodata,"a"
.p2align 6
.amdhsa_kernel {k}
  .amdhsa_next_free_vgpr 256
  .amdhsa_next_free_sgpr 102
  .amdhsa_accum_offset 256
  .amdhsa_group_segment_fixed_size 0
  .amdhsa_kernarg_size 128
  .amdhsa_user_sgpr_count 2
  .amdhsa_user_sgpr_kernarg_segment_ptr 1
  .amdhsa_system_sgpr_workgroup_id_x 1
.end_amdhsa_kernel
"""
    print(f"instructions {sum(1 for it in g.a.items if it[0] == 'i')}, nops inserted {n}", file=sys.stderr)
    return txt

if __name__ == "__main__":
    opts = {}
    for x in sys.argv[2:]:
        if "=" in x: k_, v_ = x.split("="); opts[k_] = int(v_)
        else: opts[x] = True
    open(sys.argv[1], "w").write(build(opts))
```

```python
import sys, math, struct
sys.path.insert(0, "gen")
from asmlib import *

NAME = "gated_mix__ssm_conv_h3__compressed_kv_cla__prompt"
MB = 1 << 20
KV_OFF, Q_OFF, CTX_OFF, KVT_OFF, YT_OFF, G_OFF = 0, 32*MB, 48*MB, 64*MB, 66*MB, 68*MB
WOT_OFF = 32*MB
FLG_OFF = 68*MB + 65536
FK_OFF, FY_OFF, FC_OFF = FLG_OFF, FLG_OFF + 4096, FLG_OFF + 8192
STAMP_OFF = 69*MB
WS_SIZE = 70*MB
P = dict(q=64, k=66, v=68, shift=70, ssmk=72, ssmD=74, bx=76, ckv=78, wq=80, wuk=82, wuv=84, wo=86, gate=88, out=90, dbg=92, ws=94)
SW, SHEAD, SIDX, SWK, SF = 3, 4, 5, 6, 7
RA, RB, RC, RWS, RD, RE, RT, RDBG = 8, 12, 16, 20, 24, 28, 56, 60
MFMA = "v_mfma_f32_32x32x16_bf16"
LOG2E = 1.4426950408889634
F_KV, F_CA, F_CB, F_Y = 1, 2, 4, 8
def f2u(x): return "0x%08x" % struct.unpack("<I", struct.pack("<f", x))[0]
def rep4(b): return b * 0x01010101

class G:
    def __init__(self, opts):
        self.a = Asm(); self.o = opts
        self.vm = Cnt(self.a, "vmcnt", 63); self.lg = Cnt(self.a, "lgkmcnt", 15)
        self.st = "" if opts.get("plainst") else (" sc1 nt" if opts.get("ntst") else " sc1"); self.ld = "" if opts.get("plainld") else " sc1"
    def I(self, t): self.a.I(t)
    def srd(self, r, ptr, nbytes):
        I = self.I
        I(f"s_mov_b32 s{r}, s{P[ptr]}"); I(f"s_mov_b32 s{r+1}, s{P[ptr]+1}")
        I(f"s_mov_b32 s{r+2}, {nbytes}"); I(f"s_mov_b32 s{r+3}, 0x00020000")
    def save(self): return (self.vm.issued, self.vm.done, self.lg.issued, self.lg.done)
    def restore(self, s_): self.vm.issued, self.vm.done, self.lg.issued, self.lg.done = s_
    def stream(self, mf, fills):
        n = len(mf); slots = [[] for _ in range(n + 1)]
        for (s0, e0, cl) in fills:
            m = e0 - s0
            for j, c in enumerate(cl): slots[s0 + 1 + (j * m) // len(cl)].append(c)
        for c in slots[0]: c()
        for i in range(n):
            mf[i]()
            for c in slots[i+1]: c()
    def stamp(self, i, dyn=None):
        if not self.o.get("stamp"): return
        I = self.I
        I("s_memrealtime s[96:97]"); I("s_memtime s[100:101]")
        I("s_lshl_b32 s98, s2, 3"); I(f"s_add_u32 s98, s98, s{SW}"); I("s_lshl_b32 s98, s98, 8")
        I(f"s_add_u32 s98, s98, {STAMP_OFF + 4*i}")
        if dyn is not None:
            I(f"s_lshl_b32 s99, s{dyn}, 4"); I("s_add_u32 s98, s98, s99")
        I("s_waitcnt lgkmcnt(0)")
        I("v_mov_b32 v2, s96"); I("v_mov_b32 v3, 0")
        I(f"buffer_store_dword v2, v3, s[{RWS}:{RWS+3}], s98 offen")
        I("v_mov_b32 v2, s100")
        I(f"buffer_store_dword v2, v3, s[{RWS}:{RWS+3}], s98 offen offset:128")
    OOB = 0x40000000
    def publish(self, soff, val=1, srd=RWS, byte=False, idx=None):
        I = self.I
        self.oob_sel()
        if idx is not None: I(f"s_cmp_eq_u32 s{SIDX}, {idx}"); I(f"s_cselect_b32 s99, s99, {self.OOB}")
        I(f"v_mov_b32 v2, {val}"); I("v_mov_b32 v3, s99")
        I(f"buffer_store_{'byte' if byte else 'dword'} v2, v3, s[{srd}:{srd+3}], s{soff} offen sc1"); self.vm.issue()
    def oob_sel(self):
        self.I(f"s_cmp_eq_u32 s{SW}, 0"); self.I(f"s_cselect_b32 s99, 0, {self.OOB}")
    def poll_issue(self, vd, vaddr, soff, srd=RWS):
        self.I(f"buffer_load_dword v{vd}, v{vaddr}, s[{srd}:{srd+3}], {soff} offen sc1"); return self.vm.issue()
    def poll_check(self, vd, vaddr, soff, want, srd=RWS):
        a = self.a; I = self.I
        l = a.label("PCK"); lp = a.label("POLL")
        I(f"s_mov_b32 s98, {want}"); I("s_mov_b32 s99, 20000")
        a.L(lp)
        I(f"v_and_b32 v{vd}, s98, v{vd}"); I(f"v_cmp_ne_u32 vcc, s98, v{vd}"); I(f"s_cbranch_vccz {l}")
        I("s_sleep 2")
        I(f"buffer_load_dword v{vd}, v{vaddr}, s[{srd}:{srd+3}], {soff} offen sc1")
        I("s_sub_u32 s99, s99, 1"); I("s_cmp_lg_u32 s99, 0"); I("s_waitcnt vmcnt(0)"); I(f"s_cbranch_scc1 {lp}")
        a.L(l)
    def barrier(self): self.I("s_barrier")
    def sync_all(self):
        self.I("s_waitcnt vmcnt(0) lgkmcnt(0)"); self.vm.mark_all_done(); self.lg.mark_all_done(); self.barrier()

    def begin(self, kname):
        a = self.a; I = self.I
        a.T(f".globl {kname}\n.p2align 8\n.type {kname},@function"); a.L(kname)
        self.endl = a.label("END")
        if self.o.get("stamp"): I("s_memrealtime s[30:31]")
        I("s_load_dwordx16 s[64:79], s[0:1], 0"); I("s_load_dwordx16 s[80:95], s[0:1], 64")
        I("s_cmp_ge_u32 s2, 256"); I(f"s_cbranch_scc1 {self.endl}")
        I("v_lshrrev_b32 v1, 6, v0"); I("v_and_b32 v0, 63, v0"); I(f"v_readfirstlane_b32 s{SW}, v1")
        I("s_and_b32 s7, s2, 7"); I("s_lshl_b32 s7, s7, 2")
        I(f"s_lshr_b32 s{SIDX}, s2, 3"); I(f"s_lshr_b32 s{SHEAD}, s{SIDX}, 3"); I(f"s_add_u32 s{SHEAD}, s{SHEAD}, s7")
        I(f"s_and_b32 s{SIDX}, s{SIDX}, 7"); I(f"s_lshl_b32 s{SWK}, s{SW}, 10")
        I(f"s_lshl_b32 s{SF}, s{SHEAD}, 3"); I(f"s_add_u32 s{SF}, s{SF}, s{SIDX}")
    def end(self):
        self.a.L(self.endl); self.I("s_endpgm")

    def proj(self):
        a = self.a; I = self.I; vm = self.vm; lg = self.lg
        PREP = 114688; QA_LDS = 65536
        ACCS = [64, 128]
        FX = [16, 32]; FW = [24, 40]
        VXA = 4; VWA = 8; VOX, VOW = 10, 11; VST = 12; VXH = 48
        T = 192
        I("v_lshrrev_b32 v13, 3, v0"); I(f"s_lshl_b32 s40, s{SW}, 3"); I("v_add_u32 v13, s40, v13"); I("v_lshlrev_b32 v13, 10, v13")
        I("v_lshrrev_b32 v14, 4, v0"); I(f"s_and_b32 s40, s{SW}, 1"); I("s_lshl_b32 s40, s40, 2"); I("v_add_u32 v15, s40, v14")
        I("v_and_b32 v3, 7, v0"); I("v_xor_b32 v15, v15, v3"); I(f"v_lshl_add_u32 v{VOX}, v15, 4, v13")
        I(f"s_lshl_b32 s40, s{SW}, 2"); I("v_add_u32 v13, s40, v14"); I("v_lshlrev_b32 v13, 13, v13")
        I("v_lshlrev_b32 v15, 2, v14"); I("v_and_b32 v3, 15, v0"); I("v_xor_b32 v15, v15, v3")
        I("v_lshl_add_u32 v13, v15, 4, v13"); I(f"s_lshl_b32 s40, s{SHEAD}, 8"); I(f"v_add_u32 v{VOW}, s40, v13")
        I(f"v_lshlrev_b32 v{VST}, 4, v0")
        I(f"s_lshl_b32 s44, s{SIDX}, 18")
        for i in range(1, 4): I(f"s_add_u32 s{44+i}, s44, {65536*i}")
        I("s_waitcnt lgkmcnt(0)")
        if self.o.get("stamp"): I("s_memrealtime s[28:29]")
        self.srd(RA, "ckv", 2*MB); self.srd(RB, "wuk", 4*MB)
        def xbase(t): return (32768, 131072, 0)[t % 3]
        def wbase(t): return 65536 + (t % 3)*16384
        def dma_list(t):
            L = []
            if t > 23: return L
            ph, tt = t >> 3, t & 7
            for i in range(2):
                def f(i=i):
                    I(f"s_add_u32 m0, s{SWK}, {wbase(t) + i*8192}"); I(f"s_mov_b32 s41, {tt*524288 + i*262144}")
                    r = (RB, RC, RE)[ph]
                    I(f"buffer_load_dwordx4 v{VOW}, s[{r}:{r+3}], s41 offen lds"); vm.issue()
                L.append(f)
            for i in range(4):
                def f(i=i):
                    I(f"s_add_u32 m0, s{SWK}, {xbase(t) + i*8192}"); I(f"s_add_u32 s41, s{(48 if ph == 2 else 44)+i}, {tt*128}")
                    r = RD if ph == 2 else RA
                    I(f"buffer_load_dwordx4 v{VOX}, s[{r}:{r+3}], s41 offen lds"); vm.issue()
                L.append(f)
            return L
        dtok = {}
        for f in dma_list(0): f()
        dtok[0] = vm.issued
        self.srd(RWS, "ws", WS_SIZE); self.srd(RDBG, "dbg", 256); self.srd(RC, "wuv", 4*MB)
        self.stamp(31)
        if self.o.get("stamp"):
            I("v_mov_b32 v2, s30"); I("s_sub_u32 s98, s98, 124"); I(f"buffer_store_dword v2, v3, s[{RWS}:{RWS+3}], s98 offen")
            I("v_mov_b32 v2, s28"); I(f"buffer_store_dword v2, v3, s[{RWS}:{RWS+3}], s98 offen offset:120")
        I(f"s_lshl_b32 s48, s{SIDX}, 17"); I("s_add_u32 s49, s48, 65536")
        I(f"s_sub_u32 s50, 15, s{SIDX}"); I("s_lshl_b32 s50, s50, 17"); I("s_add_u32 s51, s50, 65536")
        I(f"s_and_b32 s42, s{SW}, 3"); I("s_lshl_b32 s42, s42, 6"); I(f"s_lshr_b32 s43, s{SW}, 2"); I("s_lshl_b32 s43, s43, 1")
        I("v_and_b32 v13, 31, v0"); I("v_add_u32 v13, s42, v13")
        I("v_lshrrev_b32 v14, 1, v13"); I("v_and_b32 v14, 7, v14"); I("v_lshrrev_b32 v15, 5, v0")
        I("v_xor_b32 v14, v14, v15"); I("v_lshlrev_b32 v14, 4, v14"); I(f"v_lshl_add_u32 v{VXA}, v13, 7, v14")
        for k in range(1, 4): I(f"v_xor_b32 v{VXA+k}, {k<<5}, v{VXA}")
        for k in range(4): I(f"v_add_u32 v{VXH+k}, 0x20000, v{VXA+k}")
        I("v_bfe_u32 v13, v0, 2, 2"); I("v_lshl_add_u32 v14, v15, 3, v13"); I("v_lshlrev_b32 v14, 8, v14")
        I("v_bfe_u32 v15, v0, 4, 1"); I("v_lshl_add_u32 v14, v15, 5, v14")
        I("v_and_b32 v15, 3, v0"); I("v_lshl_add_u32 v14, v15, 3, v14"); I("v_add_u32 v14, 0x10000, v14")
        I("v_xor_b32 v13, s43, v13"); I(f"v_lshl_add_u32 v{VWA}, v13, 6, v14"); I(f"v_xor_b32 v{VWA+1}, 64, v{VWA}")
        I(f"s_lshl_b32 s54, s{SHEAD}, 4"); I(f"s_lshl_b32 s55, s{SIDX}, 1"); I("s_add_u32 s54, s54, s55")
        I(f"s_bfe_u32 s55, s{SW}, 0x10001"); I("s_add_u32 s54, s54, s55"); I("s_lshl_b32 s54, s54, 16")
        I(f"s_and_b32 s55, s{SW}, 1"); I("s_lshl_b32 s55, s55, 14"); I("s_add_u32 s54, s54, s55")
        I("s_lshl_b32 s55, s43, 10"); I("s_add_u32 s52, s54, s55"); I("s_add_u32 s52, s52, 0x8000")
        I("s_lshl_b32 s55, s43, 11"); I("s_add_u32 s54, s54, s55")

        if self.o.get("hotst"):
            I(f"s_and_b32 s54, s54, {self.o['hotst']*MB-1}"); I(f"s_and_b32 s52, s52, {self.o['hotst']*MB-1}")
        KR = T + 4; VR = T + 11; SH = T + 16; XG = T + 20; GW = T + 24
        hl = {}
        def prep_loads():
            L = []
            def E(t): L.append(lambda: I(t))
            def V(t):
                def f(): I(t); vm.issue()
                L.append(f)
            E(f"s_lshl_b32 s40, s{SHEAD}, 7"); E(f"s_lshl_b32 s39, s{SIDX}, 2"); E("s_add_u32 s40, s40, s39"); E(f"s_add_u32 s40, s40, {FK_OFF}")
            E(f"v_mov_b32 v2, s40")
            E(f"s_lshr_b32 s39, s{SHEAD}, 2"); E("s_lshl_b32 s39, s39, 7"); E(f"s_and_b32 s40, s{SHEAD}, 3"); E("s_lshl_b32 s40, s40, 2"); E("s_add_u32 s39, s39, s40")
            E(f"s_lshl_b32 s40, s{SIDX}, 10"); E("s_add_u32 s40, s40, s39"); E(f"s_add_u32 s40, s40, {FC_OFF}")
            E("v_writelane_b32 v2, s40, 1")
            E(f"s_sub_u32 s40, 15, s{SIDX}"); E("s_lshl_b32 s40, s40, 10"); E("s_add_u32 s40, s40, s39"); E(f"s_add_u32 s40, s40, {FC_OFF}")
            E("v_writelane_b32 v2, s40, 2")
            E(f"s_lshl_b32 s40, s{SF}, 2"); E(f"s_add_u32 s40, s40, {FY_OFF}"); E("v_writelane_b32 v2, s40, 3"); E("v_mov_b32 v3, 0")
            L.append(self.oob_sel); E("v_add_u32 v2, s99, v2")
            V(f"buffer_store_dword v3, v2, s[{RWS}:{RWS+3}], 0 offen sc1")
            E("s_lshl_b32 s37, s2, 3"); E(f"s_add_u32 s37, s37, s{SW}"); E("s_lshl_b32 s38, s37, 10")
            L.append(lambda: self.srd(RD, "q", 2*MB)); L.append(lambda: self.srd(RE, "wq", 4*MB)); L.append(lambda: self.srd(RT, "gate", 1024))
            V(f"buffer_load_dwordx4 {v(XG,4)}, v{VST}, s[{RD}:{RD+3}], s38 offen")
            V(f"buffer_load_dwordx4 {v(GW,4)}, v{VST}, s[{RT}:{RT+3}], 0 offen")
            L2 = L; L = []
            E("s_lshr_b32 s32, s2, 3"); E("s_and_b32 s33, s2, 7"); E("s_lshl_b32 s34, s32, 6")
            E(f"s_lshl_b32 s35, s{SW}, 3"); E("s_add_u32 s35, s35, s34")
            E("v_lshrrev_b32 v13, 5, v0"); E("v_and_b32 v14, 31, v0"); E("v_lshl_add_u32 v15, v13, 2, s35"); E("v_lshlrev_b32 v15, 10, v15")
            E("s_lshl_b32 s36, s33, 7"); E("v_lshl_add_u32 v14, v14, 2, s36"); E(f"v_add_u32 v{T}, v15, v14")
            for i in range(3): E(f"v_subrev_u32 v{T+1+i}, {3072-1024*i}, v{T}")
            E("v_lshlrev_b32 v14, 2, v14")
            L.append(lambda: self.srd(RT, "k", 2*MB))
            for i in range(3): V(f"buffer_load_dword v{KR+i}, v{T+1+i}, s[{RT}:{RT+3}], 0 offen")
            for i in range(4): V(f"buffer_load_dword v{KR+3+i}, v{T}, s[{RT}:{RT+3}], 0 offen offset:{1024*i}")
            L.append(lambda: self.srd(RT, "v", 2*MB))
            for i in range(4): V(f"buffer_load_dword v{VR+i}, v{T}, s[{RT}:{RT+3}], 0 offen offset:{1024*i}")
            L.append(lambda: self.srd(RT, "shift", 4096))
            V(f"buffer_load_dwordx4 {v(SH,4)}, v14, s[{RT}:{RT+3}], 0 offen")
            def mk(): hl["t"] = vm.issued
            L.append(mk)
            return L2, L
        def prep_ops():
            L = []; E = lambda t: L.append(lambda: I(t))
            KU = T + 28; SU = T + 36; O = T + 40; VU = T + 44; PK = T + 46
            L.append(lambda: vm.wait(hl["t"]))
            E("v_lshrrev_b32 v14, 5, v0"); E("v_and_b32 v15, 31, v0"); E("v_mul_u32_u24 v13, 288, v15")
            E("v_xor_b32 v14, 1, v14"); E("v_lshl_add_u32 v13, v14, 3, v13")
            E(f"s_lshl_b32 s40, s{SW}, 4"); E(f"s_add_u32 s40, s40, {PREP}"); E("v_add_u32 v13, s40, v13")
            for c in range(2):
                def unp(d, sreg, half): E(f"v_lshlrev_b32 v{d}, 16, v{sreg}" if half == 0 else f"v_and_b32 v{d}, 0xffff0000, v{sreg}")
                for i in range(7): unp(KU+i, KR+i, c)
                for j in range(4): unp(SU+j, SH + 2*c + (j >> 1), j & 1)
                for o in range(4):
                    E(f"v_mul_f32 v{O+o}, v{KU+o}, v{SU+3}")
                    for j in (2, 1, 0): E(f"v_fmac_f32 v{O+o}, v{KU+o+3-j}, v{SU+j}")
                    unp(VU, VR+o, c)
                    E(f"v_mul_f32 v{O+o}, v{O+o}, v{VU}")
                E(f"v_cvt_pk_bf16_f32 v{PK}, v{O+3}, v{O+2}"); E(f"v_cvt_pk_bf16_f32 v{PK+1}, v{O+1}, v{O}")
                def w(PK=PK, c=c):
                    I(f"ds_write_b64 v13, {v(PK,2)} offset:{144*c}"); lg.issue()
                L.append(w); PK += 2
            Z = T + 52
            E(f"v_dot2_f32_bf16 v{Z}, v{XG}, v{GW}, 0")
            for i in range(1, 4): E(f"v_dot2_f32_bf16 v{Z}, v{XG+i}, v{GW+i}, v{Z}")
            for m in ("quad_perm:[1,0,3,2] row_mask:0xf", "quad_perm:[2,3,0,1] row_mask:0xf", "row_half_mirror row_mask:0xf", "row_mirror row_mask:0xf",
                      "row_bcast:15 row_mask:0xa", "row_bcast:31 row_mask:0xc"):
                E(f"v_add_f32_dpp v{Z}, v{Z}, v{Z} {m} bank_mask:0xf")
            E(f"v_readlane_b32 s40, v{Z}, 63"); E(f"v_mov_b32 v{Z+1}, {f2u(-LOG2E)}"); E(f"v_mul_f32 v{Z}, s40, v{Z+1}")
            E(f"v_exp_f32 v{Z}, v{Z}"); E(f"v_add_f32 v{Z}, 1.0, v{Z}"); E(f"v_rcp_f32 v{Z}, v{Z}")
            E("s_lshl_b32 s38, s37, 2"); E(f"s_add_u32 s38, s38, {G_OFF}"); E(f"v_mov_b32 v{Z+1}, 0")
            def gs():
                I(f"buffer_store_dword v{Z}, v{Z+1}, s[{RWS}:{RWS+3}], s38 offen{self.st}"); vm.issue()
            L.append(gs)
            return L
        def prep_out():
            L = []; E = lambda t: L.append(lambda: I(t)); h = {}
            E("v_lshrrev_b32 v13, 3, v0"); E(f"s_lshl_b32 s40, s{SW}, 3"); E("v_add_u32 v13, s40, v13")
            E("v_and_b32 v14, 7, v0"); E("v_lshlrev_b32 v14, 4, v14"); E("v_mul_u32_u24 v15, 144, v13")
            E("v_add_u32 v15, v15, v14"); E(f"v_add_u32 v15, {PREP}, v15")
            def r():
                I(f"ds_read_b128 {v(T,4)}, v15"); h["t"] = lg.issue()
            L.append(r)
            E("v_lshl_add_u32 v13, v13, 12, v14"); E("s_lshl_b32 s38, s33, 18"); E("s_lshl_b32 s39, s34, 1")
            E("s_add_u32 s38, s38, s39"); E(f"s_add_u32 s38, s38, {KVT_OFF}")
            def st():
                lg.wait(h["t"])
                I(f"buffer_store_dwordx4 {v(T,4)}, v13, s[{RWS}:{RWS+3}], s38 offen{self.st}"); h["st"] = vm.issue()
            L.append(st)
            return L, h
        def reads(t, k):
            st = k & 1; toks = {}
            xb = xbase(t); va = VXA if xb < 65536 else VXH
            def rx(mt):
                I(f"ds_read_b128 {v(FX[st]+4*mt,4)}, v{va+k} offset:{(xb & 65535)+mt*4096}"); toks[("x",mt)] = lg.issue()
            def rw(dt, h):
                I(f"ds_read_b64_tr_b16 {v(FW[st]+4*dt+2*h,2)}, v{VWA+dt} offset:{wbase(t)-65536+k*4096+h*1024}"); toks[("w",dt)] = lg.issue()
            return [lambda: rx(0), lambda: rw(0,0), lambda: rw(0,1), lambda: rw(1,0), lambda: rw(1,1), lambda: rx(1)], toks
        def mfs(t, k, toks):
            st = k & 1; L = []; ph = t >> 3; acc = ACCS[ph & 1]; first = (t & 7) == 0 and k == 0
            for mt in range(2):
                for dt in range(2):
                    def f(mt=mt, dt=dt):
                        lg.wait(max(toks[("x",mt)], toks[("w",dt)]))
                        d = v(acc + 16*(2*mt+dt), 16); X = v(FX[st]+4*mt,4); W = v(FW[st]+4*dt,4)
                        c = "0" if first else d
                        I(f"{MFMA} {d}, {X}, {W}, {c}" if ph == 1 else f"{MFMA} {d}, {W}, {X}, {c}")
                    L.append(f)
            return L
        def kv_out(ph):
            acc = ACCS[ph & 1]; out = []
            for tile in range(4):
                rt, dt = tile >> 1, tile & 1; b = acc + 16*tile
                for half in range(2):
                    pk = [lambda i=i, b=b: I(f"v_cvt_pk_bf16_f32 v{b+i}, v{b+2*i}, v{b+2*i+1}") for i in range(4*half, 4*half+4)]
                    if ph == 0: pk = [lambda i=i, b=b: I(f"v_mul_f32 v{b+i}, {f2u(LOG2E / math.sqrt(128.0))}, v{b+i}") for i in range(8*half, 8*half+8)] + pk
                    off = rt*8192 + (dt*2048 + half*1024 if ph == 0 else half*4096 + dt*1024)
                    def st(b=b, half=half, off=off):
                        if self.o.get("nost"): return
                        I(f"s_add_u32 s41, s{(54, 52)[ph]}, {off}")
                        I(f"buffer_store_dwordx4 {v(b+4*half,4)}, v{VST}, s[{RWS}:{RWS+3}], s41 offen{self.st}"); vm.issue()
                    out.append(pk + [st])
            return out
        side = {}; late = {}
        def spread(ops, t0, t1):
            sl = [(t, k) for t in range(t0, t1) for k in range(3)]
            n = len(ops)
            for j, key in enumerate(sl): side.setdefault(key, []).extend(ops[n*j//len(sl): n*(j+1)//len(sl)])
        PL = self.o.get("pl", 8); PW = self.o.get("pw", 7); KS = self.o.get("ks", 10)
        LA_, LB_ = prep_loads(); spread(LA_, self.o.get("pg", 0), self.o.get("pg", 0) + 1); spread(LB_, PL, PL + 1); spread(prep_ops(), PL + 4, PL + 7)
        P1, hp = prep_out(); spread(P1, PL + 7, PL + 8)
        if self.o.get("noside"):
            side.clear(); spread(LA_, 0, 1); hp["st"] = 0
        def wo_job():
            A = []; B = []; h = {}
            EA = lambda t: A.append(lambda: I(t)); EB = lambda t: B.append(lambda: I(t))
            A.append(lambda: self.srd(RT, "wo", 4*MB))
            EA("v_lshrrev_b32 v52, 3, v0"); EA("v_bfe_u32 v53, v0, 4, 1"); EA("v_lshlrev_b32 v53, 2, v53"); EA("v_and_b32 v54, 7, v0")
            EA("v_xor_b32 v53, v53, v54"); EA("v_lshlrev_b32 v53, 4, v53"); EA("v_lshl_add_u32 v52, v52, 10, v53")
            EA(f"s_lshl_b32 s55, s{SF}, 14"); EA(f"s_lshl_b32 s39, s{SW}, 7"); EA("s_add_u32 s55, s55, s39"); EA(f"s_lshl_b32 s53, s{SW}, 11"); EA(f"s_add_u32 s53, s53, {PREP}")
            for hh in range(2):
                def f(hh=hh):
                    I(f"s_add_u32 m0, s53, {hh*1024}"); I(f"s_add_u32 s39, s55, {hh*8192}")
                    I(f"buffer_load_dwordx4 v52, s[{RT}:{RT+3}], s39 offen lds"); h["d"] = vm.issue()
                A.append(f)
            EB("v_bfe_u32 v52, v0, 2, 2"); EB("v_lshrrev_b32 v53, 5, v0"); EB("v_lshl_add_u32 v52, v53, 2, v52"); EB("v_lshlrev_b32 v52, 7, v52")
            EB("v_bfe_u32 v53, v0, 3, 1"); EB("v_lshl_add_u32 v52, v53, 6, v52"); EB("v_bfe_u32 v53, v0, 4, 1"); EB("v_lshl_add_u32 v52, v53, 5, v52")
            EB("v_and_b32 v53, 3, v0"); EB("v_lshl_add_u32 v52, v53, 3, v52"); EB("v_add_u32 v52, s53, v52"); EB("v_xor_b32 v53, 64, v52")
            def rd():
                assert vm.done >= h["d"]
                for mt in range(2):
                    for hh in range(2):
                        I(f"ds_read_b64_tr_b16 {v(T+56+4*mt+2*hh,2)}, v{52+mt} offset:{hh*1024}"); h["r"] = lg.issue()
            B.append(rd)
            EB(f"s_lshl_b32 s55, s{SW}, 8"); EB(f"s_add_u32 s55, s55, s{SF}"); EB("s_lshl_b32 s55, s55, 11"); EB(f"s_add_u32 s55, s55, {WOT_OFF}")
            def st():
                lg.wait(h["r"])
                for mt in range(2):
                    I(f"buffer_store_dwordx4 {v(T+56+4*mt,4)}, v{VST}, s[{RWS}:{RWS+3}], s55 offen offset:{mt*1024}{self.st}"); h["st"] = vm.issue()
            B.append(st)
            return A, B, h
        WA, WB, hw = wo_job()
        if self.o.get("noside"): hw["st"] = 0
        else: spread(WA, PW, PW + 1); spread(WB, PW + 3, PW + 4)
        def wtouch(r, half, wv):
            def f():
                I(f"s_cmp_eq_u32 s{SW}, {wv}"); I(f"s_cselect_b32 s99, 0, {self.OOB}")
                I(f"s_lshl_b32 s40, s{SIDX}, 19"); I(f"s_lshl_b32 s39, s{SHEAD}, 8"); I("s_add_u32 s40, s40, s39"); I(f"s_add_u32 s40, s40, {half*32*8192}")
                I("v_lshrrev_b32 v3, 1, v0"); I("v_lshlrev_b32 v3, 13, v3"); I("v_and_b32 v2, 1, v0"); I("v_lshl_add_u32 v3, v2, 7, v3"); I("v_add_u32 v3, s99, v3")
                I(f"buffer_load_dword v1, v3, s[{r}:{r+3}], s40 offen"); vm.issue()
            return f
        def ftouch(r, i, wv):
            def f():
                I(f"s_cmp_eq_u32 s{SW}, {wv}"); I(f"s_cselect_b32 s99, 0, {self.OOB}"); I("v_add_u32 v3, s99, v55")
                I(f"s_add_u32 s41, s42, {i*524288}")
                I(f"buffer_load_dword v1, v3, s[{r}:{r+3}], s41 offen"); vm.issue()
            return f
        if not self.o.get("fine"):
            t0 = self.o.get("wt", 1); t1 = self.o.get("wt2", 4)
            for j, (r, half) in enumerate(((RC, 0), (RC, 1), (RE, 0), (RE, 1))): side.setdefault(((t0 + j) if j < 2 else (t1 + j - 2), 2), []).append(wtouch(r, half, j))
        else:
            FT = []; EF = lambda t: FT.append(lambda: I(t))
            EF("v_lshrrev_b32 v55, 1, v0"); EF("v_lshlrev_b32 v55, 13, v55"); EF("v_and_b32 v54, 1, v0"); EF("v_lshl_add_u32 v55, v54, 7, v55")
            EF("v_lshrrev_b32 v54, 4, v0"); EF("v_lshl_add_u32 v55, v54, 28, v55")
            EF(f"s_lshl_b32 s42, s{SIDX}, 16"); EF(f"s_lshl_b32 s36, s{SHEAD}, 8"); EF("s_add_u32 s42, s42, s36")
            side.setdefault((0, 0), []).extend(FT)
            ft = self.o.get("ft", 1); fk = self.o.get("fk", 2)
            for i in range(8):
                side.setdefault((ft + i, 2), []).append(ftouch(RC, i, i)); side.setdefault((ft + i, 0), []).append(ftouch(RE, i, (i + 4) & 7))
        VS = self.o.get("vstages", 5)
        for ph, t0, t1 in ((0, KS, 16), (1, 16, 16 + VS)):
            pieces = kv_out(ph); sl = [(t, k) for t in range(t0, t1) for k in range(3)]
            for j, pc in enumerate(pieces):
                tt = t0 + (j * (t1 - t0)) // 8
                hh = len(pc) - 5
                side.setdefault((tt, 0), []).extend(pc[:hh]); side.setdefault((tt, 1), []).extend(pc[hh:-1]); late.setdefault(tt, []).append(pc[-1])
        QE = []; EQ = lambda t: QE.append(lambda: I(t))
        EQ(f"s_and_b32 s55, s{SW}, 2"); EQ("s_lshl_b32 s55, s55, 15"); EQ(f"s_add_u32 s55, s55, {QA_LDS}")
        EQ(f"s_and_b32 s54, s{SW}, 1"); EQ("s_lshl_b32 s54, s54, 14"); EQ("s_add_u32 s55, s55, s54")
        EQ("s_lshl_b32 s54, s43, 11"); EQ("s_add_u32 s55, s55, s54"); EQ(f"v_add_u32 v14, s55, v{VST}"); EQ("v_mov_b32 v54, v13")
        spread(QE, 23, 24)
        spread([lambda r=r: I(f"v_mov_b64 {v(192+2*r,2)}, 0") for r in range(32)], 22, 24)
        def fkoff():
            I(f"s_lshl_b32 s40, s{SHEAD}, 7"); I(f"s_lshl_b32 s41, s{SIDX}, 2"); I("s_add_u32 s40, s40, s41"); I(f"s_add_u32 s40, s40, {FK_OFF}")
        def w0only(fn):
            l = a.label("NP"); I(f"s_cmp_lg_u32 s{SW}, 0"); I(f"s_cbranch_scc1 {l}"); fn(); a.L(l)

        def ctouch():
            I(f"s_cmp_eq_u32 s{SW}, 0"); I(f"s_cselect_b32 s99, 0, {self.OOB}"); I("v_lshl_add_u32 v3, v0, 7, s99"); I("s_lshl_b32 s40, s2, 13")
            I(f"buffer_load_dword v1, v3, s[{RA}:{RA+3}], s40 offen"); vm.issue()
        if self.o.get("ct", 1):
            lp = a.label("PC")
            I(f"s_getpc_b64 s[{RT}:{RT+1}]"); a.L(lp)
            I(f"s_mov_b32 s{RT+2}, CODE_END-{lp}"); I(f"s_mov_b32 s{RT+3}, 0x00020000")
            I(f"s_cmp_eq_u32 s{SW}, 7"); I(f"s_cselect_b32 s99, 0, {self.OOB}"); I(f"s_and_b32 s40, s{SF}, 7"); I("s_lshl_b32 s40, s40, 13"); I("s_add_u32 s99, s99, s40")
            I("v_lshl_add_u32 v3, v0, 7, s99")
            I(f"buffer_load_dword v1, v3, s[{RT}:{RT+3}], 0 offen"); vm.issue()
        if self.o.get("sb", 1): self.barrier()
        for f in dma_list(1): f()
        dtok[1] = vm.issued
        T0 = [wtouch(RB, 0, 1), wtouch(RB, 1, 2), ctouch] if not self.o.get("not0k") else []
        if self.o.get("t0pre"):
            for f in T0: f()
            T0 = []
        vm.wait(dtok[0]); self.barrier()
        self.stamp(1)
        L, toks = reads(0, 0)
        for f in L: f()
        for f in T0: f()
        mark = {}; TD = max(PL + 9, PW + 5); TZ = self.o.get("pg", 0) + 2
        pend = dma_list(2)
        for t in range(24):
            for k in range(4):
                M = mfs(t, k, toks)
                if k < 3:
                    L, nt = reads(t, k+1)
                    D, pend = pend[:self.o.get("dper", 2)], pend[self.o.get("dper", 2):]
                    fl = [(0, 3, L)]
                    if D: fl.append((0, 4, D))
                    if side.get((t, k)): fl.append((0, 4, side[(t, k)]))
                    if k == 2 and late.get(t): fl.append((0, 4, late[t]))
                    self.stream(M, fl); toks = nt
                    if not pend and (t + 2) not in dtok: dtok[t+2] = vm.issued
                    if k == 2: mark[t] = vm.issued
                    if t == 17 and k == 0:
                        self.oob_sel(); I("v_lshl_add_u32 v13, v0, 2, s99"); td = self.poll_issue(14, 13, "0", RDBG)
                    if t == 20 and k == 0:
                        self.oob_sel(); I("v_and_b32 v13, 7, v0"); I("v_lshl_add_u32 v13, v13, 2, s99")
                        I(f"s_lshl_b32 s53, s{SHEAD}, 7"); I(f"s_add_u32 s53, s53, {FK_OFF}")
                        tp = self.poll_issue(15, 13, "s53")
                elif t < 23:
                    assert not pend
                    if t == 19: vm.wait(td); w0only(lambda: self.poll_check(14, 13, "0", rep4(1), RDBG))
                    if t == 21: vm.wait(tp); w0only(lambda: self.poll_check(15, 13, "s53", 1))
                    lg.wait(lg.issued); vm.wait(dtok[t+1])
                    if t == TZ: vm.wait(mark[TZ-2])
                    if t == TD: vm.wait(max(hw["st"], hp["st"]))
                    if t == 17: vm.wait(mark[15])
                    if t == 16 + VS: vm.wait(mark[15 + VS])
                    self.barrier()
                    ps = self.o.get("pstamp")
                    if ps is not None and 0 <= t - int(ps) + 1 < 13: self.stamp(17 + t - int(ps) + 1); vm.issue(2)
                    if TZ <= t < TZ + 8: self.publish(SF, 1, RDBG, True, idx=t - TZ)
                    if t == TD:
                        I(f"s_lshl_b32 s40, s{SF}, 2"); I(f"s_add_u32 s40, s40, {FY_OFF}"); self.publish(40, 2)
                    if t == 17: fkoff(); self.publish(40, 1)
                    if t == 16 + VS: fkoff(); self.publish(40, 3)
                    L, nt = reads(t+1, 0)
                    pend = dma_list(t+3)
                    if t == 21:
                        def k0(i):
                            I(f"s_lshl_b32 s40, s{SW}, 12"); I("s_add_u32 m0, s40, 0x8000")
                            I(f"s_lshl_b32 s41, s{SHEAD}, 20"); I("s_add_u32 s41, s41, s40")
                            I(f"buffer_load_dwordx4 v{VST}, s[{RWS}:{RWS+3}], s41 offen offset:{1024*i}{self.ld} lds"); vm.issue()
                        pend = [lambda i=i: k0(i) for i in range(4)]
                    D, pend = pend[:self.o.get("dper", 2)], pend[self.o.get("dper", 2):]
                    self.stream(M, [(0, 3, L)] + ([(0, 4, D)] if D else [])); toks = nt
                    if not pend: dtok[t+3] = vm.issued
                else:
                    self.stream(M, [])
            if t == 7: self.stamp(2)
        self.stamp(3)
        def side_check():
            l = a.label("SCK"); lp = a.label("SPL")
            I("s_mov_b32 s99, 20000"); a.L(lp)
            I("v_and_b32 v40, v40, v41"); I("v_and_b32 v42, v42, v43"); I("v_and_b32 v40, v40, v42"); I("v_and_b32 v40, 2, v40")
            I("v_cmp_ne_u32 vcc, 2, v40"); I(f"s_cbranch_vccz {l}"); I("s_sleep 2")
            I(f"buffer_load_dwordx4 v[40:43], v52, s[{RWS}:{RWS+3}], s51 offen sc1")
            I("s_sub_u32 s99, s99, 1"); I("s_cmp_lg_u32 s99, 0"); I("s_waitcnt vmcnt(0)"); I(f"s_cbranch_scc1 {lp}")
            a.L(l)
        def vc():
            self.poll_check(55, 54, "s53", 3); side_check()
        QACC = ACCS[0]
        self.poll_issue(55, 54, "s53")
        self.oob_sel(); I("v_lshl_add_u32 v52, v0, 4, s99"); I(f"s_mov_b32 s51, {FY_OFF}")
        I(f"buffer_load_dwordx4 v[40:43], v52, s[{RWS}:{RWS+3}], s51 offen sc1"); vm.issue()
        for tile in range(4):
            rt, dt = tile >> 1, tile & 1; b = QACC + 16*tile
            for i in range(8): I(f"v_cvt_pk_bf16_f32 v{b+i}, v{b+2*i}, v{b+2*i+1}")
            for half in range(2):
                I(f"ds_write_b128 v14, {v(b+4*half,4)} offset:{rt*8192+dt*2048+half*1024}"); lg.issue()
        self.attn_setup()
        vm.wait(vm.issued); w0only(vc)
        lg.wait(lg.issued); self.barrier()

    def attn_setup(self): self.attn(True)
    def attn(self, setup=False):
        a = self.a; I = self.I; vm = self.vm; lg = self.lg; stream = self.stream
        ML = 159744; QA_LDS = 65536; QB_LDS = 131072
        O = 192; QF = 160; NM = 144; S = [112, 128]; PP = [96, 104]; RING = 64; NR = 8; E = 56; PK = 16
        VK, VV, VL16, LRUN, LU, THR, NINF, VQ, TMP, LA = 4, 5, 6, 7, 8, 9, 10, 11, 12, 48
        SR, SG, SC1, SC2, SKO, SVO, SKM, SVM, STH = 32, 33, 34, 35, 36, 37, 38, 39, 42
        SMK, SFIN, SCA, SM1 = 54, 55, 59, 58
        DC = self.o.get("dmacost", 16); WEV = self.o.get("wev", 2)
        if setup:
            I(f"s_and_b32 s{SR}, s{SW}, 3"); I(f"s_lshr_b32 s{SG}, s{SW}, 2")
            I(f"v_lshlrev_b32 v{VL16}, 4, v0")
            I(f"s_lshl_b32 s44, s{SR}, 13"); I(f"s_add_u32 s44, s44, {QB_LDS}"); I(f"v_add_u32 v{VQ}, s44, v{VL16}")
            I(f"s_lshl_b32 s45, s{SG}, 16"); I(f"v_subrev_u32 v{TMP+1}, s45, v{VQ}")
            I(f"s_mov_b32 s{SC1}, s{SIDX}")
            I(f"s_lshl_b32 s{SC2}, s{SIDX}, 1"); I(f"s_sub_u32 s{SC2}, 14, s{SC2}")
            I(f"s_cmp_eq_u32 s{SG}, 1"); I(f"s_cselect_b32 s{SM1}, 0, -1")
            I(f"s_lshl_b32 s43, s{SW}, 12"); I(f"s_lshl_b32 s{SVO}, s{SHEAD}, 20"); I(f"s_add_u32 s{SVO}, s{SVO}, s43")
            I(f"s_add_u32 s{SKO}, s{SVO}, 0x10000"); I(f"s_add_u32 s{SVO}, s{SVO}, 0x8000")
            I(f"s_mov_b32 s{SKM}, s43"); I(f"s_add_u32 s{SVM}, s43, 0x18000")
            I(f"s_mov_b32 s{STH}, {f2u(4096.0)}"); I(f"v_mov_b32 v{NINF}, 0xff800000")
            I(f"v_and_b32 v{THR}, 31, v0"); I(f"s_lshl_b32 s44, s{SR}, 5"); I(f"v_add_u32 v{THR}, s44, v{THR}")
            I(f"v_lshrrev_b32 v{TMP}, 5, v0"); I(f"v_lshlrev_b32 v{TMP}, 2, v{TMP}"); I(f"v_sub_u32 v{THR}, v{THR}, v{TMP}")
            I(f"v_add_u32 v{VK}, 0x8000, v{VL16}")
            I(f"s_lshl_b32 s{SCA}, s{SIDX}, 2"); I(f"s_add_u32 s{SCA}, s{SCA}, s{SR}"); I(f"s_lshl_b32 s{SCA}, s{SCA}, 5"); I(f"s_add_u32 s{SCA}, s{SCA}, s{SHEAD}")
            I(f"s_lshl_b32 s{SCA}, s{SCA}, 13"); I(f"s_add_u32 s{SCA}, s{SCA}, {CTX_OFF}")
            I(f"s_mov_b32 s{SFIN}, 0")
            if self.o.get("map84", 1):
                I(f"s_lshr_b32 s56, s{SF}, 6"); I("s_lshl_b32 s56, s56, 3"); I(f"s_bfe_u32 s44, s{SF}, 0x30002"); I("s_add_u32 s56, s56, s44")
                I(f"s_bfe_u32 s57, s{SF}, 0x10005"); I("s_lshl_b32 s57, s57, 2"); I(f"s_and_b32 s44, s{SF}, 3"); I("s_add_u32 s57, s57, s44")
                I(f"s_and_b32 s40, s{SF}, 63"); I("s_lshl_b32 s40, s40, 16")
            else:
                I(f"s_mov_b32 s56, s{SHEAD}"); I(f"s_mov_b32 s57, s{SIDX}")
                I(f"s_and_b32 s40, s{SF}, 31"); I("s_lshl_b32 s40, s40, 17")
            I(f"s_lshl_b32 s44, s{SW}, 13"); I("s_add_u32 s40, s40, s44"); I(f"s_add_u32 s40, s40, {WOT_OFF}")
            I("v_lshlrev_b32 v49, 7, v0")
            self.srd(RB, "ssmk", 2*MB)
            if not self.o.get("noprio"):
                l = a.label("PR"); I(f"s_cmp_eq_u32 s{SG}, 1"); I(f"s_cbranch_scc0 {l}"); I("s_setprio 1"); a.L(l)
            return
        def loadq(va):
            qt = []
            for ds in range(8):
                I(f"ds_read_b128 {v(QF+4*ds,4)}, v{va} offset:{1024*ds}"); qt.append(lg.issue())
            return qt
        op = lambda t, c=4: (lambda: I(t), c)
        def dma4(kind):
            sm, so = (SKM, SKO) if kind == "k" else (SVM, SVO)
            def d(i):
                def f():
                    if i == 0: I(f"s_mov_b32 m0, s{sm}"); I(f"s_xor_b32 s{sm}, s{sm}, 0x8000")
                    if not (self.o.get("a_nodma") and i):
                        I(f"buffer_load_dwordx4 v{VL16}, s[{RWS}:{RWS+3}], s{so} offen offset:{1024*i}{self.ld} lds")
                    if i == 3: I(f"s_add_u32 s{so}, s{so}, 0x10000")
                return (f, DC + (8 if i == 0 else 4 if i == 3 else 0))
            return [d(i) for i in range(4)]
        self.ring_n = 0
        def rd(kind, sl, idx):
            h = {}
            def f():
                slot = self.ring_n % NR; self.ring_n += 1
                h["reg"] = RING + 4*slot
                I(f"ds_read_b128 {v(h['reg'],4)}, v{VK if kind == 'k' else VV} offset:{sl*8192+idx*1024}"); h["tok"] = lg.issue()
            return f, h
        def wait_for(R, i):
            if R[i][1]["tok"] <= lg.done: return
            j = i
            while j + 1 < len(R) and j + 1 < i + WEV and "tok" in R[j+1][1] and R[j+1][1]["tok"] > R[i][1]["tok"]: j += 1
            lg.wait(R[j][1]["tok"])
        def mf_qk(sb, ds, R, i, czero=False):
            wait_for(R, i)
            c = (("0" if czero else v(NM,16)) if ds == 0 else v(S[sb],16))
            I(f"{MFMA} {v(S[sb],16)}, {v(R[i][1]['reg'],4)}, {v(QF+4*ds,4)}, {c}")
        def mf_pv(pb, idx, R, i=None, reg=None):
            ks, dt = idx >> 2, idx & 3
            if reg is None: wait_for(R, i); reg = R[i][1]["reg"]
            I(f"{MFMA} {v(O+16*dt,16)}, {v(reg,4)}, {v(PP[pb]+4*ks,4)}, {v(O+16*dt,16)}")
        def sm_ops(sb):
            L = []
            ex = lambda i: op(f"v_exp_f32 v{E+(i&7)}, v{S[sb]+i}", 8)
            def post(j):
                r = []; e0, e1 = E + ((2*j) & 7), E + ((2*j+1) & 7)
                if j == 0: r.append(op(f"v_add_f32 v{LU}, v{e0}, v{e1}"))
                else: r += [op(f"v_add_f32 v{LU}, v{LU}, v{e0}"), op(f"v_add_f32 v{LU}, v{LU}, v{e1}")]
                r.insert(1 if j else 0, op(f"v_cvt_pk_bf16_f32 v{PP[sb]+j}, v{e0}, v{e1}"))
                return r
            L += [ex(0), ex(1)]
            for j in range(8):
                p = post(j)
                L += ([ex(2*j+2), p[0], ex(2*j+3)] + p[1:]) if j < 7 else p
            if self.o.get("a_nosm"): L = [(lambda: None, 0) if i > 3 else x for i, x in enumerate(L)]
            return L
        def sched(M, fixed, chain):
            n = len(M); fc = [sum(c for _, c in fixed.get(g, [])) for g in range(n)]
            tot = sum(c for _, c in chain)
            lo, hi = 0.0, 4000.0
            for _ in range(40):
                lev = (lo + hi) / 2
                if sum(max(0, lev - f) for f in fc) >= tot: hi = lev
                else: lo = lev
            k = 0; credit = 0.0
            for g in range(n):
                M[g]()
                for c, _ in fixed.get(g, []): c()
                credit += max(0, hi - fc[g])
                while k < len(chain) and (g == n - 1 or chain[k][1] <= credit + 2):
                    chain[k][0](); credit -= chain[k][1]; k += 1
        def put(fixed, g, items): fixed.setdefault(g, []).extend(items)
        SPL = self.o.get("spl", 26)
        ool = []
        def rarely(cmp_, body):
            lo = a.label("OOL"); lb = a.label("RET")
            I(cmp_); I(f"s_cbranch_scc1 {lo}"); a.L(lb)
            ool.append((lo, lb, body))
        def mask_body(sb, koff):
            prs = [46, 48, 50, 52]
            if koff >= 64:
                I(f"v_subrev_u32 v{TMP+3}, 64, v{THR}"); tr = TMP + 3; koff -= 64
            elif koff < 0:
                I(f"s_lshl_b32 s44, s{SG}, 6"); I(f"v_subrev_u32 v{TMP+3}, s44, v{THR}"); tr = TMP + 3; koff = -koff - 1
            else: tr = THR
            for r0 in range(0, 16, 4):
                for r in range(r0, r0+4):
                    I(f"v_cmp_lt_i32 s[{prs[r&3]}:{prs[r&3]+1}], v{tr}, {(r & 3) + 8*(r >> 2) + koff}")
                for r in range(r0, r0+4):
                    I(f"v_cndmask_b32 v{S[sb]+r}, v{S[sb]+r}, v{NINF}, s[{prs[r&3]}:{prs[r&3]+1}]")
        def rowmax(sb, dst):
            b = S[sb]
            I(f"v_max3_f32 v{dst}, v{b}, v{b+1}, v{b+2}")
            for i in range(3, 15, 2): I(f"v_max3_f32 v{dst}, v{dst}, v{b+i}, v{b+i+1}")
            I(f"v_max_f32 v{dst}, v{dst}, v{b+15}"); I(f"v_mov_b32 v{dst+1}, v{dst}")
            I(f"v_permlane32_swap_b32 v{dst}, v{dst+1}"); I(f"v_max_f32 v{dst}, v{dst}, v{dst+1}")
        def init_max():
            rowmax(0, TMP)
            I(f"v_max_f32 v{TMP}, {f2u(-1e30)}, v{TMP}")
            for r in range(16): I(f"v_sub_f32 v{NM+r}, 0, v{TMP}")
            return [op(f"v_sub_f32 v{S[0]+r}, v{S[0]+r}, v{TMP}") for r in range(16)]
        rare = []
        def check(sb, other=True):
            def f():
                lr = a.label("RARE"); lb = a.label("BACK")
                I(f"v_cmp_nge_f32 vcc, s{STH}, v{LU}")
                if self.o.get("a_nocheck"): I("s_mov_b64 vcc, 0")
                I(f"s_cbranch_vccnz {lr}"); a.L(lb)
                I(f"v_add_f32 v{LRUN}, v{LRUN}, v{LU}")
                rare.append((lr, lb, sb, other))
            return f
        def fin_body():
            I(f"v_mov_b32 v{TMP}, v{LA}"); I(f"s_mov_b32 s{SFIN}, 2"); I("s_nop 0")
            I(f"v_permlane32_swap_b32 v{TMP}, v{LA}"); I(f"v_add_f32 v{TMP}, v{TMP}, v{LA}"); I(f"v_rcp_f32 v{TMP}, v{TMP}"); I(f"v_mov_b32 v{TMP+1}, v{TMP}")
            for q in range(8):
                for i in range(8*q, 8*q+8, 2): I(f"v_pk_mul_f32 {v(O+i,2)}, {v(O+i,2)}, {v(TMP,2)}")
                for i in range(4): I(f"v_cvt_pk_bf16_f32 v{PK+4*q+i}, v{O+8*q+2*i}, v{O+8*q+2*i+1}")
                for i in range(8*q, 8*q+8, 2): I(f"v_mov_b64 {v(O+i,2)}, 0")
        def st_body():
            I(f"s_add_u32 s44, s{SCA}, 4096"); I(f"s_mov_b32 s{SFIN}, 3")
            for q in range(8):
                I(f"buffer_store_dwordx4 {v(PK+4*q,4)}, v{VL16}, s[{RWS}:{RWS+3}], s{SCA if q < 4 else 44} offen offset:{1024*(q&3)}{self.st}")
        TR = [RING + 4*(2+i) for i in range(6)]
        def head(R, vmw, with_mfma=True, post=()):
            rf = [(f, 4) for f, h in R]; sm2 = sm_ops(0)[SPL:]
            nop = lambda: None
            def first():
                I("s_waitcnt lgkmcnt(4)"); mf_pv(1, 2, None, reg=TR[0])
            M = [first] + [lambda i=i: mf_pv(1, 2+i, None, reg=TR[i]) for i in range(1, 6)] if with_mfma else [nop]*6
            nb = self.o.get("nb", 4)
            sched(M[:2], {}, sm2[:nb])
            vmw(); I("s_waitcnt lgkmcnt(0)"); lg.mark_all_done(); self.barrier(); self.ring_n = 0
            fx = {0: rf[0:2], 1: rf[2:5], 2: rf[5:6], 3: rf[6:7] + [(nop, 12 + 8*len(post))]}
            sched(M[2:], fx, sm2[nb:])
            check(0)()
            for p in post: p()
        def mk_reads():
            return ([rd("k", 0, i) for i in range(8)] + [rd("v", 0, i) for i in range(8)] +
                    [rd("k", 1, i) for i in range(8)] + [rd("v", 1, i) for i in range(8)])
        def mid(R, dmas, kx, mb=None, trans=False, endops=()):
            rf = [(f, 4) for f, h in R]
            M = [lambda i=i: mf_qk(0, i, R, i, trans) for i in range(8)] + [lambda i=i: mf_pv(0, i, R, 8+i) for i in range(8)]
            fx = {}
            for g in range(16): put(fx, g, [rf[7+g]])
            D = sum((dma4(k) for k in dmas), [])
            DS = self.o.get("dstep", 2)
            spill = []
            for n, d in enumerate(D):
                g = n * DS * (2 if len(D) == 4 else 1)
                if g < 15: put(fx, g, [d])
                else: spill.append((g - 16 if g >= 16 else 0, d))
            put(fx, 15, [(lambda: None, 20)])
            sched(M, fx, sm_ops(1))
            check(1, other=not trans)()
            if mb: mb()
            pre = []
            if trans:
                I(f"v_mov_b32 v{LA}, v{LRUN}"); I(f"v_mov_b32 v{LRUN}, 0"); I(f"s_mov_b32 s{SFIN}, 1")
                pre = init_max()
            M = [lambda i=i: mf_qk(1, i, R, 16+i) for i in range(8)] + [lambda i=i: mf_pv(1, i, R, 24+i) for i in range(2)]
            fx = {}
            for g in range(9): put(fx, g, [rf[23+g]])
            for g, d in spill: put(fx, g, [d])
            put(fx, 8, [op(f"v_xor_b32 v{VV}, 0x10000, v{VK}")] + kx)
            for n, e in enumerate(endops): put(fx, 7 - n, [e])
            put(fx, 9, [(lambda: None, 16)])
            sched(M, fx, pre + sm_ops(0)[:SPL])
            assert [R[26+i][1]["reg"] for i in range(6)] == TR
        vm4 = lambda: I("s_waitcnt vmcnt(4)")
        vm0 = lambda: I("s_waitcnt vmcnt(0)")
        def vm08():
            lo = a.label("W8"); lb = a.label("W8R")
            I(f"s_cmp_eq_u32 s{SFIN}, 3"); I(f"s_cbranch_scc1 {lo}"); I("s_waitcnt vmcnt(%d)" % self.o.get("a_vm", 0)); a.L(lb)
            def b(): I("s_waitcnt vmcnt(8)"); I(f"s_mov_b32 s{SFIN}, 4")
            ool.append((lo, lb, b))
        m1 = lambda sb, ko: (lambda: rarely(f"s_cmp_eq_u32 s{SC1}, s{SM1}", lambda: mask_body(sb, ko)))
        m2 = lambda sb, ko: (lambda: rarely(f"s_cmp_eq_u32 s{SC2}, 0", lambda: mask_body(sb, ko)))
        fin = lambda: rarely(f"s_cmp_eq_u32 s{SFIN}, 1", fin_body)
        sta = (lambda: rarely(f"s_cmp_eq_u32 s{SFIN}, 2", st_body), 8)

        def wt_body():
            I(f"buffer_load_dword v1, v49, s[{RWS}:{RWS+3}], s40 offen{self.ld}")
            if not self.o.get("map84", 1):
                I("s_add_u32 s40, s40, 0x10000"); I(f"buffer_load_dword v1, v49, s[{RWS}:{RWS+3}], s40 offen{self.ld}")
        WTN = self.o.get("wtn", -1)
        wtl = (lambda: rarely(f"s_cmp_eq_u32 s{SC2}, {WTN}", wt_body)) if WTN >= 0 else (lambda: None)
        wtf = (lambda: rarely(f"s_cmp_le_u32 s{SC2}, {WTN}", wt_body)) if WTN >= 0 else (lambda: None)
        LEV = a.label("EVEN"); LODM = a.label("ODDM"); LTRANS = a.label("TRANS"); LP2 = a.label("P2"); LP2B = a.label("P2B"); LDRAIN = a.label("DRAIN")
        self.stamp(8)
        self.ring_n = 0
        R = [rd("k", 0, i) for i in range(8)] + [rd("k", 1, i) for i in range(8)]
        for i in range(7):
            I(f"ds_read_b128 {v(QF+4*i,4)}, v{TMP+1} offset:{1024*i}"); lg.issue()
            R[i][0]()
        def q7():
            I(f"ds_read_b128 {v(QF+28,4)}, v{TMP+1} offset:{1024*7}"); lg.issue()
        if self.o.get("stouch", 1):
            I(f"s_lshl_b32 s44, s{SF}, 13"); I(f"s_add_u32 s44, s44, s{SWK}")
            I(f"buffer_load_dwordx4 v[44:47], v{VL16}, s[{RB}:{RB+3}], s44 offen")
        D = dma4("v") + dma4("k")
        sched([lambda i=i: mf_qk(0, i, R, i, True) for i in range(8)], {g: ([(q7, 4)] if g == 0 else []) + [(R[7+g][0], 4), D[g]] for g in range(8)}, [])
        m1(0, 0)()
        pre = init_max()
        I(f"v_mov_b32 v{LRUN}, 0")
        fx = {}
        put(fx, 0, [(R[15][0], 4)]); put(fx, 4, [op(f"v_xor_b32 v{VV}, 0x10000, v{VK}"), op(f"v_xor_b32 v{VK}, 0x4000, v{VK}")])
        sched([lambda i=i: mf_qk(1, i, R, 8+i) for i in range(8)], fx, pre + sm_ops(0)[:SPL])
        R = mk_reads()
        head(R, vm4, False, post=[m1(1, 32)])
        svm = self.save()
        I(f"s_branch {LODM}")
        a.L(LEV)
        R = mk_reads(); head(R, vm4)
        mid(R, "k", [op(f"v_xor_b32 v{VK}, 0x4000, v{VK}")], mb=m1(0, 0))
        R = mk_reads(); head(R, vm4, post=[m1(1, 32)])
        assert self.lg.issued - self.lg.done == svm[2] - svm[3]
        a.L(LODM)
        mid(R, "v", [op(f"v_xor_b32 v{VK}, 0xc000, v{VK}")], mb=m1(0, 64), endops=[op(f"s_sub_u32 s{SC1}, s{SC1}, 1")])
        I(f"s_cmp_lg_u32 s{SC1}, -1"); I(f"s_cbranch_scc1 {LEV}")
        I(f"s_cmp_eq_u32 s{SG}, 1"); I(f"s_cbranch_scc1 {LTRANS}")
        svt = self.save()
        R = mk_reads(); head(R, vm4, post=[wtf])
        mid(R, "k", [op(f"v_xor_b32 v{VK}, 0x8000, v{VK}")], mb=m2(0, -1))
        a.L(LP2B)
        I(f"s_cmp_eq_u32 s{SC2}, 0"); I(f"s_cbranch_scc1 {LDRAIN}")
        a.L(LP2)
        R = mk_reads(); head(R, vm08, post=[fin, lambda: I(f"s_sub_u32 s{SC2}, s{SC2}, 1"), wtl])
        mid(R, "kv", [op(f"v_xor_b32 v{VK}, 0x8000, v{VK}")], mb=m2(0, -1), endops=[sta])
        I(f"s_cmp_lg_u32 s{SC2}, 0"); I(f"s_cbranch_scc1 {LP2}")
        a.L(LDRAIN)
        self.stamp(10)
        R2 = [rd("v", 0, i) for i in range(8)] + [rd("v", 1, i) for i in range(8)]
        rf = [(f, 4) for f, h in R2]
        head(R2, vm08, post=[fin, sta[0]])
        mask_body(1, -33)
        ts, ts2, ts3 = self.tail_setup(); n8 = (len(ts) + 4) // 5
        fx = {g: [rf[7+g]] + ts[g*n8:(g+1)*n8] for g in range(8)}
        for g in range(3):
            if g < len(ts2): put(fx, 5 + g, [ts2[g]])
        sched([lambda i=i: mf_pv(0, i, R2, i) for i in range(8)], fx, sm_ops(1))
        check(1)()
        pre = []; E_ = lambda t: pre.append(op(t))
        E_(f"v_mov_b32 v{TMP}, v{LRUN}"); E_(f"s_lshl_b32 s44, s{SW}, 9"); E_(f"s_add_u32 s44, s44, {ML}")
        E_(f"v_permlane32_swap_b32 v{TMP}, v{LRUN}"); E_(f"v_add_f32 v{NM+1}, v{TMP}, v{LRUN}")
        E_(f"v_lshrrev_b32 v{TMP}, 1, v{VL16}"); E_(f"v_add_u32 v{TMP}, s44, v{TMP}")
        def wml():
            I(f"ds_write_b64 v{TMP}, {v(NM,2)}"); lg.issue()
        pre.append((wml, 4))
        E_(f"v_xor_b32 v{TMP}, 0x800, v{TMP}")
        E_(f"s_lshl_b32 s46, s{SW}, 13"); E_(f"v_add_u32 v{TMP+1}, s46, v{VL16}"); E_(f"v_xor_b32 v{TMP+2}, 0x8000, v{TMP+1}")
        E_(f"s_sub_u32 s54, 15, s{SIDX}"); E_(f"s_lshl_b32 s54, s54, 2"); E_(f"s_add_u32 s54, s54, s{SR}"); E_("s_lshl_b32 s54, s54, 5"); E_(f"s_add_u32 s54, s54, s{SHEAD}")
        E_("s_lshl_b32 s54, s54, 13"); E_(f"s_lshl_b32 s44, s{SG}, 12"); E_("s_add_u32 s54, s54, s44"); E_(f"s_add_u32 s54, s54, {CTX_OFF}")
        fx = {0: [rf[15]]}
        for g, x in enumerate(ts2[3:]): put(fx, g, [x])
        sched([lambda i=i: mf_pv(1, i, R2, 8+i) for i in range(8)], fx, pre + ts3)
        self.stamp(11)
        lg1 = a.label("MG1"); lj = a.label("MGJ")
        I(f"s_cmp_eq_u32 s{SG}, 1"); I(f"s_cbranch_scc1 {lg1}")
        sv2 = self.save(); PR = 64
        for g in (0, 1):
            if g: a.L(lg1); self.restore(sv2)
            own = O + 32*g; snd = O + 32*(1-g)
            for i in range(8):
                I(f"ds_write_b128 v{TMP+1}, {v(snd+4*i,4)} offset:{1024*i}"); lg.issue()
            lg.wait(lg.issued); self.barrier()
            I(f"ds_read_b64 {v(96,2)}, v{TMP}"); t0 = lg.issue()
            tk = []
            for i in range(8):
                I(f"ds_read_b128 {v(PR+4*i,4)}, v{TMP+2} offset:{1024*i}"); tk.append(lg.issue())
            lg.wait(t0)
            I(f"v_min_f32 v98, v{NM}, v96"); I(f"v_sub_f32 v99, v98, v{NM}"); I(f"v_sub_f32 v100, v98, v96")
            I("v_exp_f32 v99, v99"); I("v_exp_f32 v100, v100")
            I(f"v_mul_f32 v101, v99, v{NM+1}"); I("v_fmac_f32 v101, v100, v97"); I("v_rcp_f32 v101, v101")
            I("v_mul_f32 v102, v99, v101"); I("v_mul_f32 v103, v99, v101"); I("v_mul_f32 v104, v100, v101"); I("v_mul_f32 v105, v100, v101")
            for q in range(4):
                for i in range(8*q, 8*q+8, 2): I(f"v_pk_mul_f32 {v(own+i,2)}, {v(own+i,2)}, v[102:103]")
                lg.wait(tk[2*q+1])
                for i in range(8*q, 8*q+8, 2): I(f"v_pk_fma_f32 {v(own+i,2)}, {v(PR+i,2)}, v[104:105], {v(own+i,2)}")
                for i in range(4): I(f"v_cvt_pk_bf16_f32 v{snd+4*q+i}, v{own+8*q+2*i}, v{own+8*q+2*i+1}")
                I(f"buffer_store_dwordx4 {v(snd+4*q,4)}, v{VL16}, s[{RWS}:{RWS+3}], s54 offen offset:{1024*q}{self.st}"); self.tctx = vm.issue()
            if not g: I(f"s_branch {lj}")
        a.L(lj)
        I("s_setprio 0")
        self.stamp(4)
        def cold():
            a.L(LTRANS)
            self.restore(svt)
            loadq(VQ); I("s_waitcnt lgkmcnt(0)")
            I(f"v_xor_b32 v{VK}, 0x4000, v{VK}")
            R = mk_reads(); head(R, vm4, post=[lambda: mask_body(1, 96), wtf])
            mid(R, "k", [op(f"v_xor_b32 v{VK}, 0x8000, v{VK}")], mb=m2(0, -1), trans=True)
            I(f"s_branch {LP2B}")
            for (lo, lb, body) in ool:
                a.L(lo); body(); I(f"s_branch {lb}")
            for (lr, lb, sb, other) in rare:
                a.L(lr)
                I("s_nop 15")
                rowmax(sb, TMP)
                I(f"v_max_f32 v{TMP}, 0, v{TMP}"); I(f"v_exp_f32 v{TMP+1}, -v{TMP}")
                for r in range(16): I(f"v_sub_f32 v{NM+r}, v{NM+r}, v{TMP}")
                for r in range(16): I(f"v_sub_f32 v{S[sb]+r}, v{S[sb]+r}, v{TMP}")
                if other:
                    for r in range(16): I(f"v_sub_f32 v{S[1-sb]+r}, v{S[1-sb]+r}, v{TMP}")
                for r in range(64): I(f"v_mul_f32 v{O+r}, v{O+r}, v{TMP+1}")
                I(f"v_mul_f32 v{LRUN}, v{LRUN}, v{TMP+1}")
                for c, _ in sm_ops(sb): c()
                I("s_nop 1"); I(f"s_branch {lb}")
        self.attn_rare = cold

    HB = 65536; HC = 4416; XB = 136192; YB = 148480
    SC, SJ, SB, SCH, SHB_, SWO, SCX = 34, 35, 36, 37, 38, 39, 40
    WS_ = [16, 24, 32, 40, 176, 184, 56, 80, 88, 96, 104, 144, 152, 160]
    CS_ = [168, 112, 120, 128, 136, 64, 72]
    NL = 4
    def tail_setup(self):
        I = self.I; L = []; E = lambda t: L.append((lambda: I(t), 4))
        SC, SJ, SB, SCH, SHB_, SWO, SCX = self.SC, self.SJ, self.SB, self.SCH, self.SHB_, self.SWO, self.SCX
        self.wtok = {}; self.wslot = dict(enumerate(self.WS_))
        E(f"s_lshr_b32 s{SC}, s{SW}, 2"); E(f"s_and_b32 s{SJ}, s{SW}, 3")
        E(f"s_lshl_b32 s{SCH}, s{SF}, 1"); E(f"s_add_u32 s{SCH}, s{SCH}, s{SC}"); E(f"s_lshl_b32 s{SCH}, s{SCH}, 12")
        E(f"s_lshl_b32 s60, s{SJ}, 10"); E("v_add_u32 v50, s60, v6"); E("v_subrev_u32 v51, 16, v50")
        E(f"s_add_u32 s60, s{SCH}, {KVT_OFF}")
        def ld(t):
            def f(): I(t); self.th = self.vm.issue()
            L.append((f, 16))
        ld(f"buffer_load_dwordx4 {v(160,4)}, v51, s[{RB}:{RB+3}], s{SCH} offen")
        ld(f"buffer_load_dwordx4 {v(164,4)}, v50, s[{RB}:{RB+3}], s{SCH} offen")
        ld(f"buffer_load_dwordx4 {v(168,4)}, v50, s[{RWS}:{RWS+3}], s60 offen{self.ld}")
        E(f"s_lshl_b32 s{SWO}, s57, 19"); E(f"s_lshl_b32 s60, s{SW}, 16"); E(f"s_add_u32 s{SWO}, s{SWO}, s60"); E(f"s_add_u32 s{SWO}, s{SWO}, {WOT_OFF}")
        L2 = [(lambda i=i: self.wload(i), 36) for i in range(self.o.get("we", 6))]
        L3 = []; L, Lx = L3, L
        E = lambda t: L3.append((lambda: I(t), 4))
        E(f"s_mul_i32 s{SB}, s{SC}, 6144"); E(f"s_add_u32 s{SB}, s{SB}, {self.XB}")
        E(f"s_mul_i32 s{SHB_}, s{SC}, {8*self.HC}"); E(f"s_add_u32 s{SHB_}, s{SHB_}, {self.HB}")
        E(f"s_lshl_b32 s{SCX}, s56, 19"); E(f"s_lshl_b32 s60, s{SW}, 15"); E(f"s_add_u32 s{SCX}, s{SCX}, s60"); E(f"s_add_u32 s{SCX}, s{SCX}, {CTX_OFF}")
        return Lx, L2, L3
    def wreg(self, i):
        return self.WS_[i % len(self.WS_)]
    def wload(self, i):
        I = self.I; r = self.wslot[i]
        I(f"s_add_u32 s61, s{self.SWO}, {i*2048}")
        for mt in range(2):
            I(f"buffer_load_dwordx4 {v(r+4*mt,4)}, v6, s[{RWS}:{RWS+3}], s61 offen offset:{mt*1024}{self.ld}"); self.wtok[i] = self.vm.issue()
    def tail_early(self):
        I = self.I; vm = self.vm; lg = self.lg; HC = self.HC
        SJ, SB, SCH, SHB_ = self.SJ, self.SB, self.SCH, self.SHB_
        Ee, Eo, Oe, Oo = 160, 113, 122, 131
        vm.wait(self.th)
        for k in range(7): I(f"v_alignbit_b32 v{Oe+k}, v{Ee+k+1}, v{Ee+k}, 16")
        for k in range(1, 7): I(f"v_alignbit_b32 v{Oo+k}, v{Ee+k+1}, v{Ee+k}, 16")
        for k in range(1, 7): I(f"v_mov_b32 v{Eo+k}, v{Ee+k}")
        I(f"s_add_u32 s60, s{SHB_}, 64"); I("v_add_u32 v51, s60, v50")
        for r in range(8):
            sft = 1 + r; k = sft >> 1
            base = ((Oe, Oo) if sft & 1 else (Ee, Eo))[k & 1]
            I(f"ds_write_b128 v51, {v(base+k,4)} offset:{r*HC}"); lg.issue()
        I("v_and_b32 v51, 3, v0"); I("v_mul_u32_u24 v52, 1536, v51"); I("v_lshrrev_b32 v53, 6, v50"); I("v_lshl_add_u32 v52, v53, 4, v52")
        I(f"s_add_u32 s60, s{SB}, 512"); I("v_add_u32 v52, s60, v52")
        I(f"ds_write_b128 v52, {v(168,4)}"); lg.issue()
        for r in range(2): I(f"v_mov_b64 {v(172+2*r,2)}, 0")
        I("v_bfe_u32 v52, v0, 2, 3"); I(f"v_mul_u32_u24 v52, {HC}, v52"); I("v_lshl_add_u32 v52, v51, 4, v52"); I(f"v_add_u32 v52, s{SHB_}, v52")
        I(f"ds_write_b128 v52, {v(172,4)}"); lg.issue()
        I(f"s_mul_i32 s60, s{SJ}, 1536"); I(f"s_add_u32 s60, s60, s{SB}"); I("v_lshl_add_u32 v52, v0, 3, s60")
        I(f"ds_write_b64 v52, {v(172,2)}"); lg.issue()
    def tailp(self):
        a = self.a; I = self.I; vm = self.vm; lg = self.lg
        HB, HC, YB = self.HB, self.HC, self.YB
        SC, SJ, SB, SCH, SHB_, SWO, SCX = self.SC, self.SJ, self.SB, self.SCH, self.SHB_, self.SWO, self.SCX
        ACC = 192; FRS = [224, 240, 64]; RD_ = 224
        VL16, VA, VB, T, VP, VPA, VO, GR, VLW, XR = 6, 4, 5, 12, 7, 8, 9, 10, 11, 48
        OACC = 192
        NW, NCX, NL = len(self.WS_), len(self.CS_), self.o.get("nl", self.NL)
        wtok = self.wtok; ctok = {}; wslot = self.wslot; cslot = dict(enumerate(self.CS_))
        I(f"s_lshr_b32 s53, s56, 1"); I("s_lshl_b32 s53, s53, 10"); I(f"s_lshl_b32 s44, s{SW}, 7"); I("s_add_u32 s53, s53, s44"); I(f"s_add_u32 s53, s53, {FC_OFF}")
        I(f"v_and_b32 v{VPA}, 3, v0"); I(f"v_lshlrev_b32 v{VPA}, 2, v{VPA}")
        P0 = self.o.get("p0", 0)
        tc0 = self.poll_issue(VP, VPA, "s53") if P0 else self.tctx
        self.tail_early()
        PUBN = self.o.get("pubn", 1)
        I(f"s_lshr_b32 s45, s{SHEAD}, 2"); I("s_lshl_b32 s45, s45, 7"); I(f"s_and_b32 s44, s{SHEAD}, 3"); I("s_lshl_b32 s44, s44, 2"); I("s_add_u32 s45, s45, s44")
        I(f"s_sub_u32 s44, 15, s{SIDX}"); I("s_lshl_b32 s44, s44, 10"); I("s_add_u32 s46, s44, s45"); I(f"s_add_u32 s46, s46, {FC_OFF}")
        I(f"s_lshl_b32 s44, s{SIDX}, 10"); I("s_add_u32 s47, s44, s45"); I(f"s_add_u32 s47, s47, {FC_OFF}")
        self.srd(RC, "out", 2*MB); self.srd(RD, "q", 2*MB)
        I(f"s_lshl_b32 s44, s{SF}, 2"); I(f"s_load_dword s55, s[{P['ssmD']}:{P['ssmD']+1}], s44")
        I(f"v_and_b32 v{T}, 31, v0"); I(f"v_lshrrev_b32 v{T+1}, 5, v0")
        I(f"v_and_b32 v{T+2}, 7, v0"); I(f"v_mul_u32_u24 v{VA}, {HC}, v{T+2}")
        I(f"v_bfe_u32 v{T+2}, v0, 3, 2"); I(f"v_sub_u32 v{T+2}, v{T+2}, v{T+1}"); I(f"v_lshl_add_u32 v{VA}, v{T+2}, 4, v{VA}")
        I(f"s_lshl_b32 s43, s{SJ}, 9"); I(f"s_add_u32 s43, s43, s{SHB_}"); I("s_add_u32 s43, s43, 32"); I(f"v_add_u32 v{VA}, s43, v{VA}")
        I(f"s_lshl_b32 s43, s{SJ}, 7"); I(f"s_sub_u32 s43, s{SB}, s43"); I("s_add_u32 s43, s43, 400")
        I(f"v_lshl_add_u32 v{VB}, v{T}, 4, s43"); I(f"v_mul_u32_u24 v{T+2}, 1536, v{T+1}"); I(f"v_add_u32 v{VB}, v{VB}, v{T+2}")
        I(f"s_lshl_b32 s51, s{SW}, 13"); I(f"v_add_u32 v{VLW}, s51, v{VL16}")
        I("s_waitcnt lgkmcnt(0)"); lg.mark_all_done(); self.barrier()
        self.stamp(5)
        def cload(i):
            r = cslot[i]
            I(f"s_add_u32 s62, s{SCX}, {(i//4)*4096}"); I("s_add_u32 s63, s62, 0x40000")
            for st in range(2):
                I(f"buffer_load_dwordx4 {v(r+4*st,4)}, v{VL16}, s[{RWS}:{RWS+3}], s{62+st} offen offset:{(i%4)*1024}{self.ld}"); ctok[i] = vm.issue()
        ltok = {}
        def lstage(j):
            I(f"s_add_u32 m0, s51, {j*2048}"); I(f"s_add_u32 s61, s{SWO}, {(NW+j)*2048}")
            for mt in range(2):
                I(f"buffer_load_dwordx4 v{VL16}, s[{RWS}:{RWS+3}], s61 offen offset:{mt*1024}{self.ld} lds"); ltok[j] = vm.issue()
        def early(lo, hi, level):
            le = a.label("NE")
            I(f"s_cmp_lg_u32 s50, {level}"); I(f"s_cbranch_scc1 {le}")
            sv = self.save()
            for i in range(lo, hi): cload(i)
            self.restore(sv); I(f"s_mov_b32 s50, {level+1}")
            a.L(le)
        def seen():
            I(f"v_and_b32 v{VP}, 1, v{VP}"); I(f"v_cmp_ne_u32 vcc, 1, v{VP}"); I("s_cmp_eq_u64 vcc, 0"); I("s_cselect_b32 s52, 1, 0"); I("s_max_u32 s50, s50, s52")
        I("s_mov_b32 s50, 0")
        wl = [lambda i=i: self.wload(i) for i in range(NW) if i not in wtok] + [lambda j=j: lstage(j) for j in range(NL)]
        steps = [(dd, ks) for dd in range(8) for ks in range(2)]
        toks = {}
        def reads(n):
            dd, ks = steps[n]; b = FRS[n % 3]
            def r(k, reg, addr, off):
                def f():
                    I(f"ds_read_b128 {v(reg,4)}, v{addr} offset:{off}"); toks[(n, k)] = lg.issue()
                return f
            return [r(0, b, VA, 64*dd + 32*(1-ks)), r(1, b+4, VB, ks*3072 + (7-dd)*16),
                    r(2, b+8, VB, ks*3072 + (7-dd)*16 + 512), r(3, b+12, VA, 64*dd + 32*(1-ks) + 2048)]
        for n in range(2):
            for f in reads(n): f()
        for n in range(16):
            b = FRS[n % 3]; L = reads(n+2) if n + 2 < 16 else []
            c0 = "0" if n == 0 else v(ACC,16); c1 = "0" if n == 0 else v(ACC+16,16)
            lg.wait(toks[(n,1)]); I(f"{MFMA} {v(ACC,16)}, {v(b,4)}, {v(b+4,4)}, {c0}")
            for f in L[0:2]: f()
            lg.wait(toks[(n,2)]); I(f"{MFMA} {v(ACC+16,16)}, {v(b,4)}, {v(b+8,4)}, {c1}")
            for f in L[2:3]: f()
            lg.wait(toks[(n,3)]); I(f"{MFMA} {v(ACC+16,16)}, {v(b+12,4)}, {v(b+4,4)}, {v(ACC+16,16)}")
            for f in L[3:4]: f()
            if n == PUBN:
                vm.wait(tc0); self.barrier(); self.publish(46); self.publish(47)
                if P0: seen()
            if n >= PUBN and n < 14:
                for _ in range(-(-len(wl) // (14 - n))): wl.pop(0)()
            if n == self.o.get("p1", 12): tc1 = self.poll_issue(VP, VPA, "s53")
            if n == 14 and P0: early(0, NCX - 2, 1)
        assert not wl
        I(f"s_add_u32 s43, s51, {HB}"); I(f"v_add_u32 v{T+2}, s43, v{VL16}")
        self.barrier()
        for i in range(8):
            I(f"ds_write_b128 v{T+2}, {v(ACC+4*i,4)} offset:{1024*i}"); lg.issue()
        I(f"s_lshl_b32 s43, s{SC}, 15"); I(f"s_lshl_b32 s44, s{SJ}, 11"); I("s_add_u32 s43, s43, s44"); I(f"s_add_u32 s43, s43, {HB}"); I(f"v_add_u32 v{T+2}, s43, v{VL16}")
        I(f"s_and_b32 s43, s{SJ}, 1"); I("s_mul_i32 s44, s43, 3072"); I(f"s_lshr_b32 s45, s{SJ}, 1"); I("s_lshl_b32 s41, s45, 9")
        I("s_add_u32 s44, s44, s41"); I(f"s_add_u32 s44, s44, s{SB}"); I("s_add_u32 s44, s44, 520")
        I(f"v_lshl_add_u32 v{T+3}, v{T}, 4, s44"); I(f"v_lshlrev_b32 v{VA}, 3, v{T+1}"); I(f"v_sub_u32 v{T+3}, v{T+3}, v{VA}")
        I(f"v_lshlrev_b32 v{VB}, 6, v{T}"); I(f"v_lshl_add_u32 v{VB}, v{T+1}, 4, v{VB}")
        I("s_lshl_b32 s45, s45, 11"); I("s_lshl_b32 s43, s43, 5"); I("s_add_u32 s45, s45, s43"); I(f"s_lshl_b32 s43, s{SC}, 12"); I("s_add_u32 s45, s45, s43")
        I(f"s_add_u32 s45, s45, {YB}"); I(f"v_add_u32 v{VB}, s45, v{VB}")
        I("s_lshl_b32 s43, s55, 16"); I("s_and_b32 s44, s55, 0xffff0000"); I(f"s_cmp_eq_u32 s{SC}, 0"); I("s_cselect_b32 s55, s43, s44")
        lg.wait(lg.issued); self.barrier()
        self.stamp(12)
        for p in range(4):
            for gq in range(2):
                I(f"ds_read_b128 {v(RD_+8*p+4*gq,4)}, v{T+2} offset:{8192*p+1024*gq}"); lg.issue()
        for gq in range(2):
            I(f"ds_read_b64 {v(ACC+2*gq,2)}, v{T+3} offset:{1536*gq}"); lg.issue()
        lk = a.label("SK"); I("s_cmp_lg_u32 s50, 0"); I(f"s_cbranch_scc1 {lk}")
        sv = self.save(); vm.wait(tc1); seen(); self.restore(sv); early(0, NCX - 2, 1)
        a.L(lk)
        early(NCX - 2, NCX, 2)
        lg.wait(lg.issued)
        for i in range(0, 8, 2):
            I(f"v_pk_add_f32 {v(RD_+i,2)}, {v(RD_+i,2)}, {v(RD_+8+i,2)}"); I(f"v_pk_add_f32 {v(RD_+16+i,2)}, {v(RD_+16+i,2)}, {v(RD_+24+i,2)}")
        for i in range(0, 8, 2): I(f"v_pk_add_f32 {v(RD_+i,2)}, {v(RD_+i,2)}, {v(RD_+16+i,2)}")
        for gq in range(2):
            for r in range(4):
                srcr = ACC + 2*gq + (1 - (r >> 1))
                I(f"v_lshlrev_b32 v{ACC+8}, 16, v{srcr}" if r & 1 else f"v_and_b32 v{ACC+8}, 0xffff0000, v{srcr}")
                I(f"v_fma_f32 v{RD_+4*gq+r}, v{ACC+8}, s55, v{RD_+4*gq+r}")
        for i in range(4): I(f"v_cvt_pk_bf16_f32 v{ACC+12+i}, v{RD_+2*i}, v{RD_+2*i+1}")
        I(f"v_permlane32_swap_b32 v{ACC+12}, v{ACC+14}"); I(f"v_permlane32_swap_b32 v{ACC+13}, v{ACC+15}")
        I(f"ds_write_b128 v{VB}, {v(ACC+12,4)}"); lg.issue()
        lg.wait(lg.issued); self.barrier()
        ly = a.label("NY")
        I(f"s_cmp_lg_u32 s{SW}, 0"); I(f"s_cbranch_scc1 {ly}")
        I(f"v_add_u32 v{T}, {YB}, v{VL16}")
        for i in range(8): I(f"ds_read_b128 {v(RD_+4*i,4)}, v{T} offset:{1024*i}")
        I(f"s_lshl_b32 s44, s{SF}, 13"); I(f"s_add_u32 s44, s44, {YT_OFF}"); I("s_add_u32 s45, s44, 4096")
        I("s_waitcnt lgkmcnt(0)")
        for i in range(8): I(f"buffer_store_dwordx4 {v(RD_+4*i,4)}, v{VL16}, s[{RWS}:{RWS+3}], s{44+(i>>2)} offen offset:{1024*(i&3)}{self.st}")
        a.L(ly)
        ll = a.label("NL")
        I("s_cmp_eq_u32 s50, 3"); I(f"s_cbranch_scc1 {ll}")
        self.poll_check(VP, VPA, "s53", 1)
        for i in range(NCX): cload(i)
        a.L(ll)
        self.stamp(6)
        YT = self.XB
        lrd = {}; ypub = False; ymark = vm.issued; free = []; fresh = []; nw = NW; nw2 = NW + NL; nc = NCX
        for i in range(32):
            if i % 4 == 0 and self.o.get("ostamp"): self.stamp(17 + i // 4)
            if i == 14:
                I(f"s_lshl_b32 s53, s57, 7"); I(f"s_lshl_b32 s42, s{SW}, 4"); I("s_add_u32 s53, s53, s42"); I(f"s_add_u32 s53, s53, {FY_OFF}")
                tf = self.poll_issue(VP, VPA, "s53")
            if i == 24:
                vm.wait(tf); self.poll_check(VP, VPA, "s53", 1)
                I(f"v_lshrrev_b32 v{T}, 3, v0"); I(f"v_and_b32 v{T+1}, 7, v0"); I(f"v_lshlrev_b32 v{T+1}, 4, v{T+1}")
                I(f"v_lshl_add_u32 v{T}, v{T}, 12, v{T+1}")
                I(f"s_add_u32 m0, s{SWK}, {YT}")
                I(f"s_lshl_b32 s44, s57, 18"); I(f"s_lshl_b32 s45, s{SW}, 15"); I("s_add_u32 s44, s44, s45")
                I(f"s_lshl_b32 s45, s56, 7"); I("s_add_u32 s44, s44, s45"); I(f"s_add_u32 s44, s44, {YT_OFF}")
                I(f"buffer_load_dwordx4 v{T}, s[{RWS}:{RWS+3}], s44 offen{self.ld} lds"); vm.issue()
                I(f"v_and_b32 v{T+1}, 15, v0"); I(f"s_lshr_b32 s48, s{SW}, 1"); I("s_lshl_b32 s48, s48, 4")
                I(f"s_lshl_b32 s45, s56, 6"); I("s_add_u32 s45, s45, s48"); I(f"v_add_u32 v{T+1}, s45, v{T+1}")
                I(f"v_lshlrev_b32 v{T+2}, 2, v{T+1}"); I(f"s_mov_b32 s45, {G_OFF}")
                I(f"buffer_load_dword v{GR}, v{T+2}, s[{RWS}:{RWS+3}], s45 offen{self.ld}"); vm.issue()
                I(f"v_lshrrev_b32 v{T+2}, 4, v0"); I(f"v_lshlrev_b32 v{T+2}, 4, v{T+2}"); I(f"v_lshl_add_u32 v{VO}, v{T+1}, 10, v{T+2}")
                I(f"s_and_b32 s49, s{SW}, 1"); I("s_lshl_b32 s49, s49, 6"); I(f"s_lshl_b32 s45, s57, 7"); I("s_add_u32 s49, s49, s45")
                I(f"buffer_load_dwordx4 {v(XR,4)}, v{VO}, s[{RD}:{RD+3}], s49 offen"); vm.issue()
            vm.wait(max(ctok[i], wtok.get(i, 0)))
            if i in lrd: lg.wait(lrd[i])
            if not ypub and vm.done > ymark:
                ypub = True
                I(f"s_lshl_b32 s44, s{SF}, 2"); I(f"s_add_u32 s44, s44, {FY_OFF}"); self.publish(44, 3)
            for mt in range(2):
                for st in range(2):
                    d = v(OACC + 16*(2*mt+st), 16)
                    I(f"{MFMA} {d}, {v(wslot[i]+4*mt,4)}, {v(cslot[i]+4*st,4)}, {'0' if i == 0 else d}")
            lagged, fresh = fresh, [wslot[i], cslot[i]]
            free += fresh
            while free:
                if nw < NW + NL and nw - i <= 3:
                    j = nw - NW; assert vm.done >= ltok[j]
                    r = free.pop(0); wslot[nw] = r
                    I("s_nop 3")
                    for mt in range(2):
                        I(f"ds_read_b128 {v(r+4*mt,4)}, v{VLW} offset:{j*2048+mt*1024}"); lrd[nw] = lg.issue()
                    nw += 1
                elif nc < 32 and (nc <= nw2 or nw2 >= 32):
                    cslot[nc] = free.pop(0); cload(nc); nc += 1
                elif nw2 < 32:
                    wslot[nw2] = free.pop(0); self.wload(nw2); nw2 += 1
                else: break
        self.stamp(7)
        I(f"v_and_b32 v{T}, 31, v0"); I(f"v_lshrrev_b32 v{T+1}, 5, v0"); I(f"v_and_b32 v{T+2}, 15, v0")
        I(f"v_xor_b32 v{T+1}, v{T+1}, v{T+2}"); I(f"v_lshlrev_b32 v{T+1}, 4, v{T+1}"); I(f"v_lshl_add_u32 v{T}, v{T}, 8, v{T+1}")
        I(f"v_add_u32 v{T}, s51, v{T}")
        for mt in range(2):
            for gq in range(4):
                I(f"v_xor_b32 v{T+1}, {(8*mt+2*gq)*16}, v{T}"); I(f"v_add_u32 v{T+3}, 0x10000, v{T+1}")
                for st in range(2):
                    I(f"ds_write_b128 v{T+1+2*st}, {v(OACC+16*(2*mt+st)+4*gq,4)}"); lg.issue()
        I(f"v_lshrrev_b32 v{T}, 4, v0"); I(f"s_and_b32 s41, s{SW}, 1"); I("s_lshl_b32 s42, s41, 3")
        I(f"v_lshl_add_u32 v{T+1}, v{T}, 1, s42"); I(f"v_xor_b32 v{T+1}, v{T+1}, v{T+2}"); I(f"v_lshlrev_b32 v{T+1}, 4, v{T+1}")
        I("s_and_b32 s43, s48, 16"); I(f"v_add_u32 v{T+3}, s43, v{T+2}"); I(f"v_lshl_add_u32 v24, v{T+3}, 8, v{T+1}")
        I("s_lshr_b32 s43, s48, 5"); I("s_lshl_b32 s43, s43, 16"); I("v_add_u32 v24, s43, v24"); I("v_xor_b32 v25, 16, v24")
        I("s_lshl_b32 s42, s41, 5"); I(f"v_lshl_add_u32 v{T}, v{T}, 3, s42"); I(f"v_bfe_u32 v{T+1}, v0, 2, 2")
        I(f"v_add_u32 v{T}, v{T}, v{T+1}"); I(f"v_lshlrev_b32 v{T}, 7, v{T}"); I(f"v_and_b32 v{T+1}, 3, v0")
        I(f"v_lshl_add_u32 v{T}, v{T+1}, 3, v{T}"); I("s_lshl_b32 s42, s48, 1"); I(f"s_add_u32 s42, s42, {YT}"); I(f"v_add_u32 v28, s42, v{T}")
        self.sync_all()
        CX = 128; tk = []
        I(f"ds_read_b64_tr_b16 {v(100,2)}, v28"); lg.issue()
        I(f"ds_read_b64_tr_b16 {v(102,2)}, v28 offset:512"); ty2 = lg.issue()
        for p in range(8):
            for hh in range(2):
                I(f"ds_read_b128 {v(CX+8*p+4*hh,4)}, v{24+hh} offset:{8192*p}"); lg.issue()
            tk.append(lg.issued)
            if p == 5:
                lg.wait(ty2)
                for e in range(8):
                    if e & 1: I(f"v_and_b32 v104, 0xffff0000, v{XR+(e>>1)}"); I(f"v_and_b32 v105, 0xffff0000, v{100+(e>>1)}")
                    else: I(f"v_lshlrev_b32 v104, 16, v{XR+(e>>1)}"); I(f"v_lshlrev_b32 v105, 16, v{100+(e>>1)}")
                    I(f"v_mul_f32 v{112+e}, v104, v105"); I(f"v_mul_f32 v{112+e}, v{112+e}, v{GR}")
                I(f"v_sub_f32 v{GR}, 1.0, v{GR}")
        for p in range(1, 8):
            lg.wait(tk[p])
            for e in range(0, 8, 2): I(f"v_pk_add_f32 {v(CX+e,2)}, {v(CX+e,2)}, {v(CX+8*p+e,2)}")
        for e in range(8): I(f"v_fmac_f32 v{112+e}, v{CX+e}, v{GR}")
        for e in range(4): I(f"v_cvt_pk_bf16_f32 v{108+e}, v{112+2*e}, v{112+2*e+1}")
        I(f"buffer_store_dwordx4 {v(108,4)}, v{VO}, s[{RC}:{RC+3}], s49 offen"); vm.issue()
        self.stamp(16)
        if self.o.get("dbgout") is not None:
            l = a.label("DB")
            I(f"s_cmp_lg_u32 s2, {self.o['dbgout']}"); I(f"s_cbranch_scc1 {l}"); I(f"s_cmp_lg_u32 s{SW}, 0"); I(f"s_cbranch_scc1 {l}")
            I("s_waitcnt vmcnt(0)")
            order = [0, 1, 2, 3, 8, 10, 11, 4, 5, 12, 6, 7, 16]
            I("v_mov_b32 v20, 0")
            for j, i in enumerate(order):
                I(f"s_mov_b32 s44, {4*i}"); I(f"v_writelane_b32 v20, s44, {j}")
            I(f"s_lshl_b32 s44, s2, 11"); I(f"s_add_u32 s44, s44, {STAMP_OFF}")
            I(f"buffer_load_dword v21, v20, s[{RWS}:{RWS+3}], s44 offen sc1"); I("s_waitcnt vmcnt(0)")
            I("v_readfirstlane_b32 s45, v21"); I("v_subrev_u32 v21, s45, v21")
            self.srd(RDBG, "dbg", 64); I("v_lshlrev_b32 v22, 2, v0")
            I(f"buffer_store_dword v21, v22, s[{RDBG}:{RDBG+3}], 0 offen")
            a.L(l)

def build(opts):
    g = G(opts); k = NAME + "_kernel"
    g.begin(k); g.proj(); g.attn(); g.tailp(); g.end(); g.attn_rare(); g.a.L("CODE_END"); g.a.I("s_endpgm")
    n = g.a.fix_hazards()
    txt = "; @launch grid=(256,1,1) block=(512,1,1) lds=163840\n"
    txt += '.amdgcn_target "amdgcn-amd-amdhsa--gfx950"\n.text\n' + g.a.text()
    txt += f""".section .rodata,"a"
.p2align 6
.amdhsa_kernel {k}
  .amdhsa_next_free_vgpr 256
  .amdhsa_next_free_sgpr 102
  .amdhsa_accum_offset 256
  .amdhsa_group_segment_fixed_size 0
  .amdhsa_kernarg_size 128
  .amdhsa_user_sgpr_count 2
  .amdhsa_user_sgpr_kernarg_segment_ptr 1
  .amdhsa_system_sgpr_workgroup_id_x 1
.end_amdhsa_kernel
"""
    print(f"instructions {sum(1 for it in g.a.items if it[0] == 'i')}, nops inserted {n}", file=sys.stderr)
    return txt

if __name__ == "__main__":
    opts = {}
    for x in sys.argv[2:]:
        if "=" in x: k_, v_ = x.split("="); opts[k_] = int(v_)
        else: opts[x] = True
    open(sys.argv[1], "w").write(build(opts))
```

```python
import sys, math, struct
sys.path.insert(0, "gen")
from asmlib import *

NAME = "gated_mix__ssm_conv_h3__compressed_kv_cla__prompt"
MB = 1 << 20
KV_OFF, Q_OFF, CTX_OFF, KVT_OFF, YT_OFF, G_OFF = 0, 32*MB, 48*MB, 64*MB, 66*MB, 68*MB
WOT_OFF = 32*MB
FLG_OFF = 68*MB + 65536
FK_OFF, FY_OFF, FC_OFF = FLG_OFF, FLG_OFF + 4096, FLG_OFF + 8192
STAMP_OFF = 69*MB
WS_SIZE = 70*MB
P = dict(q=64, k=66, v=68, shift=70, ssmk=72, ssmD=74, bx=76, ckv=78, wq=80, wuk=82, wuv=84, wo=86, gate=88, out=90, dbg=92, ws=94)
SW, SHEAD, SIDX, SWK, SF = 3, 4, 5, 6, 7
RA, RB, RC, RWS, RD, RE, RT, RDBG = 8, 12, 16, 20, 24, 28, 56, 60
MFMA = "v_mfma_f32_32x32x16_bf16"
LOG2E = 1.4426950408889634
F_KV, F_CA, F_CB, F_Y = 1, 2, 4, 8
def f2u(x): return "0x%08x" % struct.unpack("<I", struct.pack("<f", x))[0]
def rep4(b): return b * 0x01010101

class G:
    def __init__(self, opts):
        self.a = Asm(); self.o = opts
        self.vm = Cnt(self.a, "vmcnt", 63); self.lg = Cnt(self.a, "lgkmcnt", 15)
        self.st = "" if opts.get("plainst") else (" sc1 nt" if opts.get("ntst") else " sc1"); self.ld = "" if opts.get("plainld") else " sc1"
    def I(self, t): self.a.I(t)
    def srd(self, r, ptr, nbytes):
        I = self.I
        I(f"s_mov_b32 s{r}, s{P[ptr]}"); I(f"s_mov_b32 s{r+1}, s{P[ptr]+1}")
        I(f"s_mov_b32 s{r+2}, {nbytes}"); I(f"s_mov_b32 s{r+3}, 0x00020000")
    def save(self): return (self.vm.issued, self.vm.done, self.lg.issued, self.lg.done)
    def restore(self, s_): self.vm.issued, self.vm.done, self.lg.issued, self.lg.done = s_
    def stream(self, mf, fills):
        n = len(mf); slots = [[] for _ in range(n + 1)]
        for (s0, e0, cl) in fills:
            m = e0 - s0
            for j, c in enumerate(cl): slots[s0 + 1 + (j * m) // len(cl)].append(c)
        for c in slots[0]: c()
        for i in range(n):
            mf[i]()
            for c in slots[i+1]: c()
    def stamp(self, i, dyn=None):
        if not self.o.get("stamp"): return
        I = self.I
        I("s_memrealtime s[96:97]"); I("s_memtime s[100:101]")
        I("s_lshl_b32 s98, s2, 3"); I(f"s_add_u32 s98, s98, s{SW}"); I("s_lshl_b32 s98, s98, 8")
        I(f"s_add_u32 s98, s98, {STAMP_OFF + 4*i}")
        if dyn is not None:
            I(f"s_lshl_b32 s99, s{dyn}, 4"); I("s_add_u32 s98, s98, s99")
        I("s_waitcnt lgkmcnt(0)")
        I("v_mov_b32 v2, s96"); I("v_mov_b32 v3, 0")
        I(f"buffer_store_dword v2, v3, s[{RWS}:{RWS+3}], s98 offen")
        I("v_mov_b32 v2, s100")
        I(f"buffer_store_dword v2, v3, s[{RWS}:{RWS+3}], s98 offen offset:128")
    OOB = 0x40000000
    def publish(self, soff, val=1, srd=RWS, byte=False, idx=None):
        I = self.I
        self.oob_sel()
        if idx is not None: I(f"s_cmp_eq_u32 s{SIDX}, {idx}"); I(f"s_cselect_b32 s99, s99, {self.OOB}")
        I(f"v_mov_b32 v2, {val}"); I("v_mov_b32 v3, s99")
        I(f"buffer_store_{'byte' if byte else 'dword'} v2, v3, s[{srd}:{srd+3}], s{soff} offen sc1"); self.vm.issue()
    def oob_sel(self):
        self.I(f"s_cmp_eq_u32 s{SW}, 0"); self.I(f"s_cselect_b32 s99, 0, {self.OOB}")
    def poll_issue(self, vd, vaddr, soff, srd=RWS):
        self.I(f"buffer_load_dword v{vd}, v{vaddr}, s[{srd}:{srd+3}], {soff} offen sc1"); return self.vm.issue()
    def poll_check(self, vd, vaddr, soff, want, srd=RWS):
        a = self.a; I = self.I
        l = a.label("PCK"); lp = a.label("POLL")
        I(f"s_mov_b32 s98, {want}"); I("s_mov_b32 s99, 20000")
        a.L(lp)
        I(f"v_and_b32 v{vd}, s98, v{vd}"); I(f"v_cmp_ne_u32 vcc, s98, v{vd}"); I(f"s_cbranch_vccz {l}")
        I("s_sleep 2")
        I(f"buffer_load_dword v{vd}, v{vaddr}, s[{srd}:{srd+3}], {soff} offen sc1")
        I("s_sub_u32 s99, s99, 1"); I("s_cmp_lg_u32 s99, 0"); I("s_waitcnt vmcnt(0)"); I(f"s_cbranch_scc1 {lp}")
        a.L(l)
    def barrier(self): self.I("s_barrier")
    def sync_all(self):
        self.I("s_waitcnt vmcnt(0) lgkmcnt(0)"); self.vm.mark_all_done(); self.lg.mark_all_done(); self.barrier()

    def begin(self, kname):
        a = self.a; I = self.I
        a.T(f".globl {kname}\n.p2align 8\n.type {kname},@function"); a.L(kname)
        self.endl = a.label("END")
        if self.o.get("stamp"): I("s_memrealtime s[30:31]")
        I("s_load_dwordx16 s[64:79], s[0:1], 0"); I("s_load_dwordx16 s[80:95], s[0:1], 64")
        I("s_cmp_ge_u32 s2, 256"); I(f"s_cbranch_scc1 {self.endl}")
        I("v_lshrrev_b32 v1, 6, v0"); I("v_and_b32 v0, 63, v0"); I(f"v_readfirstlane_b32 s{SW}, v1")
        I("s_and_b32 s7, s2, 7"); I("s_lshl_b32 s7, s7, 2")
        I(f"s_lshr_b32 s{SIDX}, s2, 3"); I(f"s_lshr_b32 s{SHEAD}, s{SIDX}, 3"); I(f"s_add_u32 s{SHEAD}, s{SHEAD}, s7")
        I(f"s_and_b32 s{SIDX}, s{SIDX}, 7"); I(f"s_lshl_b32 s{SWK}, s{SW}, 10")
        I(f"s_lshl_b32 s{SF}, s{SHEAD}, 3"); I(f"s_add_u32 s{SF}, s{SF}, s{SIDX}")
    def end(self):
        self.a.L(self.endl); self.I("s_endpgm")

    def proj(self):
        a = self.a; I = self.I; vm = self.vm; lg = self.lg
        PREP = 114688; QA_LDS = 65536
        ACCS = [64, 128]
        FX = [16, 32]; FW = [24, 40]
        VXA = 4; VWA = 8; VOX, VOW = 10, 11; VST = 12; VXH = 48
        T = 192
        I("v_lshrrev_b32 v13, 3, v0"); I(f"s_lshl_b32 s40, s{SW}, 3"); I("v_add_u32 v13, s40, v13"); I("v_lshlrev_b32 v13, 10, v13")
        I("v_lshrrev_b32 v14, 4, v0"); I(f"s_and_b32 s40, s{SW}, 1"); I("s_lshl_b32 s40, s40, 2"); I("v_add_u32 v15, s40, v14")
        I("v_and_b32 v3, 7, v0"); I("v_xor_b32 v15, v15, v3"); I(f"v_lshl_add_u32 v{VOX}, v15, 4, v13")
        I(f"s_lshl_b32 s40, s{SW}, 2"); I("v_add_u32 v13, s40, v14"); I("v_lshlrev_b32 v13, 13, v13")
        I("v_lshlrev_b32 v15, 2, v14"); I("v_and_b32 v3, 15, v0"); I("v_xor_b32 v15, v15, v3")
        I("v_lshl_add_u32 v13, v15, 4, v13"); I(f"s_lshl_b32 s40, s{SHEAD}, 8"); I(f"v_add_u32 v{VOW}, s40, v13")
        I(f"v_lshlrev_b32 v{VST}, 4, v0")
        I(f"s_lshl_b32 s44, s{SIDX}, 18")
        for i in range(1, 4): I(f"s_add_u32 s{44+i}, s44, {65536*i}")
        I("s_waitcnt lgkmcnt(0)")
        if self.o.get("stamp"): I("s_memrealtime s[28:29]")
        self.srd(RA, "ckv", 2*MB); self.srd(RB, "wuk", 4*MB)
        def xbase(t): return (32768, 131072, 0)[t % 3]
        def wbase(t): return 65536 + (t % 3)*16384
        def dma_list(t):
            L = []
            if t > 23: return L
            ph, tt = t >> 3, t & 7
            for i in range(2):
                def f(i=i):
                    I(f"s_add_u32 m0, s{SWK}, {wbase(t) + i*8192}"); I(f"s_mov_b32 s41, {tt*524288 + i*262144}")
                    r = (RB, RC, RE)[ph]
                    I(f"buffer_load_dwordx4 v{VOW}, s[{r}:{r+3}], s41 offen lds"); vm.issue()
                L.append(f)
            for i in range(4):
                def f(i=i):
                    I(f"s_add_u32 m0, s{SWK}, {xbase(t) + i*8192}"); I(f"s_add_u32 s41, s{(48 if ph == 2 else 44)+i}, {tt*128}")
                    r = RD if ph == 2 else RA
                    I(f"buffer_load_dwordx4 v{VOX}, s[{r}:{r+3}], s41 offen lds"); vm.issue()
                L.append(f)
            return L
        dtok = {}
        for f in dma_list(0): f()
        dtok[0] = vm.issued
        self.srd(RWS, "ws", WS_SIZE); self.srd(RDBG, "dbg", 256); self.srd(RC, "wuv", 4*MB)
        self.stamp(31)
        if self.o.get("stamp"):
            I("v_mov_b32 v2, s30"); I("s_sub_u32 s98, s98, 124"); I(f"buffer_store_dword v2, v3, s[{RWS}:{RWS+3}], s98 offen")
            I("v_mov_b32 v2, s28"); I(f"buffer_store_dword v2, v3, s[{RWS}:{RWS+3}], s98 offen offset:120")
        I(f"s_lshl_b32 s48, s{SIDX}, 17"); I("s_add_u32 s49, s48, 65536")
        I(f"s_sub_u32 s50, 15, s{SIDX}"); I("s_lshl_b32 s50, s50, 17"); I("s_add_u32 s51, s50, 65536")
        I(f"s_and_b32 s42, s{SW}, 3"); I("s_lshl_b32 s42, s42, 6"); I(f"s_lshr_b32 s43, s{SW}, 2"); I("s_lshl_b32 s43, s43, 1")
        I("v_and_b32 v13, 31, v0"); I("v_add_u32 v13, s42, v13")
        I("v_lshrrev_b32 v14, 1, v13"); I("v_and_b32 v14, 7, v14"); I("v_lshrrev_b32 v15, 5, v0")
        I("v_xor_b32 v14, v14, v15"); I("v_lshlrev_b32 v14, 4, v14"); I(f"v_lshl_add_u32 v{VXA}, v13, 7, v14")
        for k in range(1, 4): I(f"v_xor_b32 v{VXA+k}, {k<<5}, v{VXA}")
        for k in range(4): I(f"v_add_u32 v{VXH+k}, 0x20000, v{VXA+k}")
        I("v_bfe_u32 v13, v0, 2, 2"); I("v_lshl_add_u32 v14, v15, 3, v13"); I("v_lshlrev_b32 v14, 8, v14")
        I("v_bfe_u32 v15, v0, 4, 1"); I("v_lshl_add_u32 v14, v15, 5, v14")
        I("v_and_b32 v15, 3, v0"); I("v_lshl_add_u32 v14, v15, 3, v14"); I("v_add_u32 v14, 0x10000, v14")
        I("v_xor_b32 v13, s43, v13"); I(f"v_lshl_add_u32 v{VWA}, v13, 6, v14"); I(f"v_xor_b32 v{VWA+1}, 64, v{VWA}")
        I(f"s_lshl_b32 s54, s{SHEAD}, 4"); I(f"s_lshl_b32 s55, s{SIDX}, 1"); I("s_add_u32 s54, s54, s55")
        I(f"s_bfe_u32 s55, s{SW}, 0x10001"); I("s_add_u32 s54, s54, s55"); I("s_lshl_b32 s54, s54, 16")
        I(f"s_and_b32 s55, s{SW}, 1"); I("s_lshl_b32 s55, s55, 14"); I("s_add_u32 s54, s54, s55")
        I("s_lshl_b32 s55, s43, 10"); I("s_add_u32 s52, s54, s55"); I("s_add_u32 s52, s52, 0x8000")
        I("s_lshl_b32 s55, s43, 11"); I("s_add_u32 s54, s54, s55")

        if self.o.get("hotst"):
            I(f"s_and_b32 s54, s54, {self.o['hotst']*MB-1}"); I(f"s_and_b32 s52, s52, {self.o['hotst']*MB-1}")
        XG = T; GW = T + 4; hl = {}
        def gate_loads():
            L = []
            def E(t): L.append(lambda: I(t))
            def V(t):
                def f(): I(t); hl["t"] = vm.issue()
                L.append(f)
            E(f"s_lshl_b32 s40, s{SHEAD}, 7"); E(f"s_lshl_b32 s39, s{SIDX}, 2"); E("s_add_u32 s40, s40, s39"); E(f"s_add_u32 s40, s40, {FK_OFF}")
            E(f"v_mov_b32 v13, s40")
            E(f"s_lshr_b32 s39, s{SHEAD}, 2"); E("s_lshl_b32 s39, s39, 7"); E(f"s_and_b32 s40, s{SHEAD}, 3"); E("s_lshl_b32 s40, s40, 2"); E("s_add_u32 s39, s39, s40")
            E(f"s_lshl_b32 s40, s{SIDX}, 10"); E("s_add_u32 s40, s40, s39"); E(f"s_add_u32 s40, s40, {FC_OFF}")
            E("v_writelane_b32 v13, s40, 1")
            E(f"s_sub_u32 s40, 15, s{SIDX}"); E("s_lshl_b32 s40, s40, 10"); E("s_add_u32 s40, s40, s39"); E(f"s_add_u32 s40, s40, {FC_OFF}")
            E("v_writelane_b32 v13, s40, 2")
            E(f"s_lshl_b32 s40, s{SF}, 2"); E(f"s_add_u32 s40, s40, {FY_OFF}"); E("v_writelane_b32 v13, s40, 3"); E("v_mov_b32 v14, 0")
            def oo(): self.oob_sel(); I("v_add_u32 v13, s99, v13")
            L.append(oo)
            V(f"buffer_store_dword v14, v13, s[{RWS}:{RWS+3}], 0 offen sc1")
            E("s_lshl_b32 s37, s2, 3"); E(f"s_add_u32 s37, s37, s{SW}"); E("s_lshl_b32 s38, s37, 10")
            L.append(lambda: self.srd(RD, "q", 2*MB)); L.append(lambda: self.srd(RE, "wq", 4*MB)); L.append(lambda: self.srd(RT, "gate", 1024))
            V(f"buffer_load_dwordx4 {v(XG,4)}, v{VST}, s[{RD}:{RD+3}], s38 offen")
            V(f"buffer_load_dwordx4 {v(GW,4)}, v{VST}, s[{RT}:{RT+3}], 0 offen")
            return L
        def gate_ops():
            L = []; E = lambda t: L.append(lambda: I(t)); Z = T + 8
            L.append(lambda: vm.wait(hl["t"]))
            E(f"v_dot2_f32_bf16 v{Z}, v{XG}, v{GW}, 0")
            for i in range(1, 4): E(f"v_dot2_f32_bf16 v{Z}, v{XG+i}, v{GW+i}, v{Z}")
            for m in ("quad_perm:[1,0,3,2] row_mask:0xf", "quad_perm:[2,3,0,1] row_mask:0xf", "row_half_mirror row_mask:0xf", "row_mirror row_mask:0xf",
                      "row_bcast:15 row_mask:0xa", "row_bcast:31 row_mask:0xc"):
                E(f"v_add_f32_dpp v{Z}, v{Z}, v{Z} {m} bank_mask:0xf")
            E(f"v_readlane_b32 s36, v{Z}, 63"); E(f"v_mov_b32 v{Z+1}, {f2u(-LOG2E)}"); E(f"v_mul_f32 v{Z}, s36, v{Z+1}")
            E(f"v_exp_f32 v{Z}, v{Z}"); E(f"v_add_f32 v{Z}, 1.0, v{Z}"); E(f"v_rcp_f32 v{Z}, v{Z}")
            E("s_lshl_b32 s38, s37, 2"); E(f"s_add_u32 s38, s38, {G_OFF}"); E(f"v_mov_b32 v{Z+1}, 0")
            def gs():
                I(f"buffer_store_dword v{Z}, v{Z+1}, s[{RWS}:{RWS+3}], s38 offen{self.st}"); vm.issue()
            L.append(gs)
            return L
        def reads(t, k):
            st = k & 1; toks = {}
            xb = xbase(t); va = VXA if xb < 65536 else VXH
            def rx(mt):
                I(f"ds_read_b128 {v(FX[st]+4*mt,4)}, v{va+k} offset:{(xb & 65535)+mt*4096}"); toks[("x",mt)] = lg.issue()
            def rw(dt, h):
                I(f"ds_read_b64_tr_b16 {v(FW[st]+4*dt+2*h,2)}, v{VWA+dt} offset:{wbase(t)-65536+k*4096+h*1024}"); toks[("w",dt)] = lg.issue()
            return [lambda: rx(0), lambda: rw(0,0), lambda: rw(0,1), lambda: rw(1,0), lambda: rw(1,1), lambda: rx(1)], toks
        def mfs(t, k, toks):
            st = k & 1; L = []; ph = t >> 3; acc = ACCS[ph & 1]; first = (t & 7) == 0 and k == 0
            for mt in range(2):
                for dt in range(2):
                    def f(mt=mt, dt=dt):
                        lg.wait(max(toks[("x",mt)], toks[("w",dt)]))
                        d = v(acc + 16*(2*mt+dt), 16); X = v(FX[st]+4*mt,4); W = v(FW[st]+4*dt,4)
                        c = "0" if first else d
                        I(f"{MFMA} {d}, {X}, {W}, {c}" if ph == 1 else f"{MFMA} {d}, {W}, {X}, {c}")
                    L.append(f)
            return L
        def kv_out(ph):
            acc = ACCS[ph & 1]; out = []
            for tile in range(4):
                rt, dt = tile >> 1, tile & 1; b = acc + 16*tile
                for half in range(2):
                    pk = [lambda i=i, b=b: I(f"v_cvt_pk_bf16_f32 v{b+i}, v{b+2*i}, v{b+2*i+1}") for i in range(4*half, 4*half+4)]
                    if ph == 0: pk = [lambda i=i, b=b: I(f"v_mul_f32 v{b+i}, {f2u(LOG2E / math.sqrt(128.0))}, v{b+i}") for i in range(8*half, 8*half+8)] + pk
                    off = rt*8192 + (dt*2048 + half*1024 if ph == 0 else half*4096 + dt*1024)
                    def st(b=b, half=half, off=off):
                        if self.o.get("nost"): return
                        I(f"s_add_u32 s41, s{(54, 52)[ph]}, {off}")
                        I(f"buffer_store_dwordx4 {v(b+4*half,4)}, v{VST}, s[{RWS}:{RWS+3}], s41 offen{self.st}"); vm.issue()
                    out.append(pk + [st])
            return out
        side = {}; late = {}
        def spread(ops, t0, t1):
            sl = [(t, k) for t in range(t0, t1) for k in range(3)]
            n = len(ops)
            for j, key in enumerate(sl): side.setdefault(key, []).extend(ops[n*j//len(sl): n*(j+1)//len(sl)])
        KS = self.o.get("ks", 8); PG = self.o.get("pg", 0)
        spread(gate_loads(), PG, PG + 1); spread(gate_ops(), PG + 3, PG + 5)
        def wtouch(r, half, wv):
            def f():
                I(f"s_cmp_eq_u32 s{SW}, {wv}"); I(f"s_cselect_b32 s99, 0, {self.OOB}")
                I(f"s_lshl_b32 s40, s{SIDX}, 19"); I(f"s_lshl_b32 s39, s{SHEAD}, 8"); I("s_add_u32 s40, s40, s39"); I(f"s_add_u32 s40, s40, {half*32*8192}")
                I("v_lshrrev_b32 v3, 1, v0"); I("v_lshlrev_b32 v3, 13, v3"); I("v_and_b32 v2, 1, v0"); I("v_lshl_add_u32 v3, v2, 7, v3"); I("v_add_u32 v3, s99, v3")
                I(f"buffer_load_dword v1, v3, s[{r}:{r+3}], s40 offen"); vm.issue()
            return f
        t0 = self.o.get("wt", 1); t1 = self.o.get("wt2", 4)
        for j, (r, half) in enumerate(((RC, 0), (RC, 1), (RE, 0), (RE, 1))): side.setdefault(((t0 + j) if j < 2 else (t1 + j - 2), 2), []).append(wtouch(r, half, j))
        VS = self.o.get("vstages", 5)
        for ph, t0, t1 in ((0, KS, 16), (1, 16, 16 + VS)):
            pieces = kv_out(ph); sl = [(t, k) for t in range(t0, t1) for k in range(3)]
            for j, pc in enumerate(pieces):
                tt = t0 + (j * (t1 - t0)) // 8
                hh = len(pc) - 5
                side.setdefault((tt, 0), []).extend(pc[:hh]); side.setdefault((tt, 1), []).extend(pc[hh:-1]); late.setdefault(tt, []).append(pc[-1])
        QE = []; EQ = lambda t: QE.append(lambda: I(t))
        EQ(f"s_and_b32 s55, s{SW}, 2"); EQ("s_lshl_b32 s55, s55, 15"); EQ(f"s_add_u32 s55, s55, {QA_LDS}")
        EQ(f"s_and_b32 s54, s{SW}, 1"); EQ("s_lshl_b32 s54, s54, 14"); EQ("s_add_u32 s55, s55, s54")
        EQ("s_lshl_b32 s54, s43, 11"); EQ("s_add_u32 s55, s55, s54"); EQ(f"v_add_u32 v14, s55, v{VST}"); EQ("v_mov_b32 v54, v13")
        spread(QE, 23, 24)
        spread([lambda r=r: I(f"v_mov_b64 {v(192+2*r,2)}, 0") for r in range(32)], 22, 24)
        def fkoff():
            I(f"s_lshl_b32 s40, s{SHEAD}, 7"); I(f"s_lshl_b32 s41, s{SIDX}, 2"); I("s_add_u32 s40, s40, s41"); I(f"s_add_u32 s40, s40, {FK_OFF}")
        def w0only(fn):
            l = a.label("NP"); I(f"s_cmp_lg_u32 s{SW}, 0"); I(f"s_cbranch_scc1 {l}"); fn(); a.L(l)

        def ctouch():
            I(f"s_cmp_eq_u32 s{SW}, 0"); I(f"s_cselect_b32 s99, 0, {self.OOB}"); I("v_lshl_add_u32 v3, v0, 7, s99"); I("s_lshl_b32 s40, s2, 13")
            I(f"buffer_load_dword v1, v3, s[{RA}:{RA+3}], s40 offen"); vm.issue()
        if self.o.get("ct", 1):
            lp = a.label("PC")
            I(f"s_getpc_b64 s[{RT}:{RT+1}]"); a.L(lp)
            I(f"s_mov_b32 s{RT+2}, CODE_END-{lp}"); I(f"s_mov_b32 s{RT+3}, 0x00020000")
            I(f"s_cmp_eq_u32 s{SW}, 7"); I(f"s_cselect_b32 s99, 0, {self.OOB}"); I(f"s_and_b32 s40, s{SF}, 7"); I("s_lshl_b32 s40, s40, 13"); I("s_add_u32 s99, s99, s40")
            I("v_lshl_add_u32 v3, v0, 7, s99")
            I(f"buffer_load_dword v1, v3, s[{RT}:{RT+3}], 0 offen"); vm.issue()
        if self.o.get("sb", 1): self.barrier()
        for f in dma_list(1): f()
        dtok[1] = vm.issued
        T0 = [wtouch(RB, 0, 1), wtouch(RB, 1, 2), ctouch] if not self.o.get("not0k") else []
        if self.o.get("t0pre"):
            for f in T0: f()
            T0 = []
        vm.wait(dtok[0]); self.barrier()
        self.stamp(1)
        L, toks = reads(0, 0)
        for f in L: f()
        for f in T0: f()
        mark = {}; TZ = PG + 2
        pend = dma_list(2)
        for t in range(24):
            for k in range(4):
                M = mfs(t, k, toks)
                if k < 3:
                    L, nt = reads(t, k+1)
                    D, pend = pend[:self.o.get("dper", 2)], pend[self.o.get("dper", 2):]
                    fl = [(0, 3, L)]
                    if D: fl.append((0, 4, D))
                    if side.get((t, k)): fl.append((0, 4, side[(t, k)]))
                    if k == 2 and late.get(t): fl.append((0, 4, late[t]))
                    self.stream(M, fl); toks = nt
                    if not pend and (t + 2) not in dtok: dtok[t+2] = vm.issued
                    if k == 2: mark[t] = vm.issued
                    if t == 17 and k == 0:
                        self.oob_sel(); I("v_lshl_add_u32 v13, v0, 2, s99"); td = self.poll_issue(14, 13, "0", RDBG)
                    if t == 20 and k == 0:
                        self.oob_sel(); I("v_and_b32 v13, 7, v0"); I("v_lshl_add_u32 v13, v13, 2, s99")
                        I(f"s_lshl_b32 s53, s{SHEAD}, 7"); I(f"s_add_u32 s53, s53, {FK_OFF}")
                        tp = self.poll_issue(15, 13, "s53")
                elif t < 23:
                    assert not pend
                    if t == 19: vm.wait(td); w0only(lambda: self.poll_check(14, 13, "0", rep4(1), RDBG))
                    if t == 21: vm.wait(tp); w0only(lambda: self.poll_check(15, 13, "s53", 1))
                    lg.wait(lg.issued); vm.wait(dtok[t+1])
                    if t == TZ: vm.wait(mark[TZ-2])
                    if t == 17: vm.wait(mark[15])
                    if t == 16 + VS: vm.wait(mark[15 + VS])
                    self.barrier()
                    ps = self.o.get("pstamp")
                    if ps is not None and 0 <= t - int(ps) + 1 < 13: self.stamp(17 + t - int(ps) + 1); vm.issue(2)
                    PB = []
                    if TZ <= t < TZ + 8: PB.append(lambda t=t: self.publish(SF, 1, RDBG, True, idx=t - TZ))
                    if t == 17: PB.append(lambda: (fkoff(), self.publish(40, 1)))
                    if t == 16 + VS: PB.append(lambda: (fkoff(), self.publish(40, 3)))
                    L, nt = reads(t+1, 0)
                    pend = dma_list(t+3)
                    if t == 21:
                        def k0(i):
                            I(f"s_lshl_b32 s40, s{SW}, 12"); I("s_add_u32 m0, s40, 0x8000")
                            I(f"s_lshl_b32 s41, s{SHEAD}, 20"); I("s_add_u32 s41, s41, s40")
                            I(f"buffer_load_dwordx4 v{VST}, s[{RWS}:{RWS+3}], s41 offen offset:{1024*i}{self.ld} lds"); vm.issue()
                        pend = [lambda i=i: k0(i) for i in range(4)]
                    D, pend = pend[:self.o.get("dper", 2)], pend[self.o.get("dper", 2):]
                    self.stream(M, [(0, 3, L)] + ([(1, 2, PB)] if PB else []) + ([(0, 4, D)] if D else [])); toks = nt
                    if not pend: dtok[t+3] = vm.issued
                else:
                    self.stream(M, [])
            if t == 7: self.stamp(2)
        self.stamp(3)
        def vc(): self.poll_check(55, 54, "s53", 3)
        QACC = ACCS[0]
        self.poll_issue(55, 54, "s53")
        for tile in range(4):
            rt, dt = tile >> 1, tile & 1; b = QACC + 16*tile
            for i in range(8): I(f"v_cvt_pk_bf16_f32 v{b+i}, v{b+2*i}, v{b+2*i+1}")
            for half in range(2):
                I(f"ds_write_b128 v14, {v(b+4*half,4)} offset:{rt*8192+dt*2048+half*1024}"); lg.issue()
        self.attn_setup()
        vm.wait(vm.issued); w0only(vc)
        lg.wait(lg.issued); self.barrier()

    def attn_setup(self): self.attn(True)
    def attn(self, setup=False):
        a = self.a; I = self.I; vm = self.vm; lg = self.lg; stream = self.stream
        ML = 159744; QA_LDS = 65536; QB_LDS = 131072
        O = 192; QF = 160; NM = 144; S = [112, 128]; PP = [96, 104]; RING = 64; NR = 8; E = 56; PK = 16
        VK, VV, VL16, LRUN, LU, THR, NINF, VQ, TMP, LA = 4, 5, 6, 7, 8, 9, 10, 11, 12, 14
        SR, SG, SC1, SC2, SKO, SVO, SKM, SVM, STH = 32, 33, 34, 35, 36, 37, 38, 39, 42
        SMK, SFIN, SCA, SM1 = 54, 55, 59, 58
        DC = self.o.get("dmacost", 16); WEV = self.o.get("wev", 2)
        if setup:
            I(f"s_and_b32 s{SR}, s{SW}, 3"); I(f"s_lshr_b32 s{SG}, s{SW}, 2")
            I(f"v_lshlrev_b32 v{VL16}, 4, v0")
            I(f"s_lshl_b32 s44, s{SR}, 13"); I(f"s_add_u32 s44, s44, {QB_LDS}"); I(f"v_add_u32 v{VQ}, s44, v{VL16}")
            I(f"s_lshl_b32 s45, s{SG}, 16"); I(f"v_subrev_u32 v{TMP+1}, s45, v{VQ}")
            I(f"s_mov_b32 s{SC1}, s{SIDX}")
            I(f"s_lshl_b32 s{SC2}, s{SIDX}, 1"); I(f"s_sub_u32 s{SC2}, 14, s{SC2}")
            I(f"s_cmp_eq_u32 s{SG}, 1"); I(f"s_cselect_b32 s{SM1}, 0, -1")
            I(f"s_lshl_b32 s43, s{SW}, 12"); I(f"s_lshl_b32 s{SVO}, s{SHEAD}, 20"); I(f"s_add_u32 s{SVO}, s{SVO}, s43")
            I(f"s_add_u32 s{SKO}, s{SVO}, 0x10000"); I(f"s_add_u32 s{SVO}, s{SVO}, 0x8000")
            I(f"s_mov_b32 s{SKM}, s43"); I(f"s_add_u32 s{SVM}, s43, 0x18000")
            I(f"s_mov_b32 s{STH}, {f2u(4096.0)}"); I(f"v_mov_b32 v{NINF}, 0xff800000")
            I(f"v_and_b32 v{THR}, 31, v0"); I(f"s_lshl_b32 s44, s{SR}, 5"); I(f"v_add_u32 v{THR}, s44, v{THR}")
            I(f"v_lshrrev_b32 v{TMP}, 5, v0"); I(f"v_lshlrev_b32 v{TMP}, 2, v{TMP}"); I(f"v_sub_u32 v{THR}, v{THR}, v{TMP}")
            I(f"v_add_u32 v{VK}, 0x8000, v{VL16}")
            I(f"s_lshl_b32 s{SCA}, s{SIDX}, 2"); I(f"s_add_u32 s{SCA}, s{SCA}, s{SR}"); I(f"s_lshl_b32 s{SCA}, s{SCA}, 5"); I(f"s_add_u32 s{SCA}, s{SCA}, s{SHEAD}")
            I(f"s_lshl_b32 s{SCA}, s{SCA}, 13"); I(f"s_add_u32 s{SCA}, s{SCA}, {CTX_OFF}")
            I(f"s_mov_b32 s{SFIN}, 0")
            if self.o.get("map84", 1):
                I(f"s_lshr_b32 s56, s{SF}, 6"); I("s_lshl_b32 s56, s56, 3"); I(f"s_bfe_u32 s44, s{SF}, 0x30002"); I("s_add_u32 s56, s56, s44")
                I(f"s_bfe_u32 s57, s{SF}, 0x10005"); I("s_lshl_b32 s57, s57, 2"); I(f"s_and_b32 s44, s{SF}, 3"); I("s_add_u32 s57, s57, s44")
                I(f"s_and_b32 s40, s{SF}, 63"); I("s_lshl_b32 s40, s40, 16")
            else:
                I(f"s_mov_b32 s56, s{SHEAD}"); I(f"s_mov_b32 s57, s{SIDX}")
                I(f"s_and_b32 s40, s{SF}, 31"); I("s_lshl_b32 s40, s40, 17")
            I(f"s_lshl_b32 s44, s{SW}, 13"); I("s_add_u32 s40, s40, s44"); I(f"s_add_u32 s40, s40, {WOT_OFF}")
            self.srd(RB, "ssmk", 2*MB); self.srd(RA, "k", 2*MB); self.srd(RC, "v", 2*MB); self.srd(RD, "shift", 4096); self.srd(RE, "wo", 4*MB)
            I("s_mov_b32 s41, 0")
            if not self.o.get("noprio"):
                l = a.label("PR"); I(f"s_cmp_eq_u32 s{SG}, 1"); I(f"s_cbranch_scc0 {l}"); I("s_setprio 1"); a.L(l)
            return
        def loadq(va):
            qt = []
            for ds in range(8):
                I(f"ds_read_b128 {v(QF+4*ds,4)}, v{va} offset:{1024*ds}"); qt.append(lg.issue())
            return qt
        op = lambda t, c=4: (lambda: I(t), c)
        def dma4(kind):
            sm, so = (SKM, SKO) if kind == "k" else (SVM, SVO)
            def d(i):
                def f():
                    if i == 0: I(f"s_mov_b32 m0, s{sm}"); I(f"s_xor_b32 s{sm}, s{sm}, 0x8000")
                    if not (self.o.get("a_nodma") and i):
                        I(f"buffer_load_dwordx4 v{VL16}, s[{RWS}:{RWS+3}], s{so} offen offset:{1024*i}{self.ld} lds")
                    if i == 3: I(f"s_add_u32 s{so}, s{so}, 0x10000")
                return (f, DC + (8 if i == 0 else 4 if i == 3 else 0))
            return [d(i) for i in range(4)]
        self.ring_n = 0
        def rd(kind, sl, idx):
            h = {}
            def f():
                slot = self.ring_n % NR; self.ring_n += 1
                h["reg"] = RING + 4*slot
                I(f"ds_read_b128 {v(h['reg'],4)}, v{VK if kind == 'k' else VV} offset:{sl*8192+idx*1024}"); h["tok"] = lg.issue()
            return f, h
        def wait_for(R, i):
            if R[i][1]["tok"] <= lg.done: return
            j = i
            while j + 1 < len(R) and j + 1 < i + WEV and "tok" in R[j+1][1] and R[j+1][1]["tok"] > R[i][1]["tok"]: j += 1
            lg.wait(R[j][1]["tok"])
        def mf_qk(sb, ds, R, i, czero=False):
            wait_for(R, i)
            c = (("0" if czero else v(NM,16)) if ds == 0 else v(S[sb],16))
            I(f"{MFMA} {v(S[sb],16)}, {v(R[i][1]['reg'],4)}, {v(QF+4*ds,4)}, {c}")
        def mf_pv(pb, idx, R, i=None, reg=None):
            ks, dt = idx >> 2, idx & 3
            if reg is None: wait_for(R, i); reg = R[i][1]["reg"]
            I(f"{MFMA} {v(O+16*dt,16)}, {v(reg,4)}, {v(PP[pb]+4*ks,4)}, {v(O+16*dt,16)}")
        def sm_ops(sb):
            L = []
            ex = lambda i: op(f"v_exp_f32 v{E+(i&7)}, v{S[sb]+i}", 8)
            def post(j):
                r = []; e0, e1 = E + ((2*j) & 7), E + ((2*j+1) & 7)
                if j == 0: r.append(op(f"v_add_f32 v{LU}, v{e0}, v{e1}"))
                else: r += [op(f"v_add_f32 v{LU}, v{LU}, v{e0}"), op(f"v_add_f32 v{LU}, v{LU}, v{e1}")]
                r.insert(1 if j else 0, op(f"v_cvt_pk_bf16_f32 v{PP[sb]+j}, v{e0}, v{e1}"))
                return r
            L += [ex(0), ex(1)]
            for j in range(8):
                p = post(j)
                L += ([ex(2*j+2), p[0], ex(2*j+3)] + p[1:]) if j < 7 else p
            if self.o.get("a_nosm"): L = [(lambda: None, 0) if i > 3 else x for i, x in enumerate(L)]
            return L
        def sched(M, fixed, chain):
            n = len(M); fc = [sum(c for _, c in fixed.get(g, [])) for g in range(n)]
            tot = sum(c for _, c in chain)
            lo, hi = 0.0, 4000.0
            for _ in range(40):
                lev = (lo + hi) / 2
                if sum(max(0, lev - f) for f in fc) >= tot: hi = lev
                else: lo = lev
            k = 0; credit = 0.0
            for g in range(n):
                M[g]()
                for c, _ in fixed.get(g, []): c()
                credit += max(0, hi - fc[g])
                while k < len(chain) and (g == n - 1 or chain[k][1] <= credit + 2):
                    chain[k][0](); credit -= chain[k][1]; k += 1
        def put(fixed, g, items): fixed.setdefault(g, []).extend(items)
        SPL = self.o.get("spl", 26)
        ool = []
        def rarely(cmp_, body):
            lo = a.label("OOL"); lb = a.label("RET")
            I(cmp_); I(f"s_cbranch_scc1 {lo}"); a.L(lb)
            ool.append((lo, lb, body))
        def mask_body(sb, koff):
            prs = [46, 48, 50, 52]
            if koff >= 64:
                I(f"v_subrev_u32 v{TMP+3}, 64, v{THR}"); tr = TMP + 3; koff -= 64
            elif koff < 0:
                I(f"s_lshl_b32 s44, s{SG}, 6"); I(f"v_subrev_u32 v{TMP+3}, s44, v{THR}"); tr = TMP + 3; koff = -koff - 1
            else: tr = THR
            for r0 in range(0, 16, 4):
                for r in range(r0, r0+4):
                    I(f"v_cmp_lt_i32 s[{prs[r&3]}:{prs[r&3]+1}], v{tr}, {(r & 3) + 8*(r >> 2) + koff}")
                for r in range(r0, r0+4):
                    I(f"v_cndmask_b32 v{S[sb]+r}, v{S[sb]+r}, v{NINF}, s[{prs[r&3]}:{prs[r&3]+1}]")
        def rowmax(sb, dst):
            b = S[sb]
            I(f"v_max3_f32 v{dst}, v{b}, v{b+1}, v{b+2}")
            for i in range(3, 15, 2): I(f"v_max3_f32 v{dst}, v{dst}, v{b+i}, v{b+i+1}")
            I(f"v_max_f32 v{dst}, v{dst}, v{b+15}"); I(f"v_mov_b32 v{dst+1}, v{dst}")
            I(f"v_permlane32_swap_b32 v{dst}, v{dst+1}"); I(f"v_max_f32 v{dst}, v{dst}, v{dst+1}")
        def init_max():
            rowmax(0, TMP)
            I(f"v_max_f32 v{TMP}, {f2u(-1e30)}, v{TMP}")
            for r in range(16): I(f"v_sub_f32 v{NM+r}, 0, v{TMP}")
            return [op(f"v_sub_f32 v{S[0]+r}, v{S[0]+r}, v{TMP}") for r in range(16)]
        rare = []
        def check(sb, other=True):
            def f():
                lr = a.label("RARE"); lb = a.label("BACK")
                I(f"v_cmp_nge_f32 vcc, s{STH}, v{LU}")
                if self.o.get("a_nocheck"): I("s_mov_b64 vcc, 0")
                I(f"s_cbranch_vccnz {lr}"); a.L(lb)
                I(f"v_add_f32 v{LRUN}, v{LRUN}, v{LU}")
                rare.append((lr, lb, sb, other))
            return f
        def fin_body():
            I(f"v_mov_b32 v{TMP}, v{LA}"); I(f"s_mov_b32 s{SFIN}, 2"); I("s_nop 0")
            I(f"v_permlane32_swap_b32 v{TMP}, v{LA}"); I(f"v_add_f32 v{TMP}, v{TMP}, v{LA}"); I(f"v_rcp_f32 v{TMP}, v{TMP}"); I(f"v_mov_b32 v{TMP+1}, v{TMP}")
            for q in range(8):
                for i in range(8*q, 8*q+8, 2): I(f"v_pk_mul_f32 {v(O+i,2)}, {v(O+i,2)}, {v(TMP,2)}")
                for i in range(4): I(f"v_cvt_pk_bf16_f32 v{PK+4*q+i}, v{O+8*q+2*i}, v{O+8*q+2*i+1}")
                for i in range(8*q, 8*q+8, 2): I(f"v_mov_b64 {v(O+i,2)}, 0")
        def st_body():
            I(f"s_add_u32 s44, s{SCA}, 4096"); I(f"s_mov_b32 s{SFIN}, 3")
            for q in range(8):
                I(f"buffer_store_dwordx4 {v(PK+4*q,4)}, v{VL16}, s[{RWS}:{RWS+3}], s{SCA if q < 4 else 44} offen offset:{1024*(q&3)}{self.st}")
        TR = [RING + 4*(2+i) for i in range(6)]
        def head(R, vmw, with_mfma=True, post=()):
            rf = [(f, 4) for f, h in R]; sm2 = sm_ops(0)[SPL:]
            nop = lambda: None
            def first():
                I("s_waitcnt lgkmcnt(4)"); mf_pv(1, 2, None, reg=TR[0])
            M = [first] + [lambda i=i: mf_pv(1, 2+i, None, reg=TR[i]) for i in range(1, 6)] if with_mfma else [nop]*6
            nb = self.o.get("nb", 4)
            sched(M[:2], {}, sm2[:nb])
            vmw(); I("s_waitcnt lgkmcnt(0)"); lg.mark_all_done(); self.barrier(); self.ring_n = 0
            fx = {0: rf[0:2], 1: rf[2:5], 2: rf[5:6], 3: rf[6:7] + [(nop, 12 + 8*len(post))]}
            sched(M[2:], fx, sm2[nb:])
            check(0)()
            for p in post: p()
        def mk_reads():
            return ([rd("k", 0, i) for i in range(8)] + [rd("v", 0, i) for i in range(8)] +
                    [rd("k", 1, i) for i in range(8)] + [rd("v", 1, i) for i in range(8)])
        def mid(R, dmas, kx, mb=None, trans=False, endops=(), extra=None):
            rf = [(f, 4) for f, h in R]
            M = [lambda i=i: mf_qk(0, i, R, i, trans) for i in range(8)] + [lambda i=i: mf_pv(0, i, R, 8+i) for i in range(8)]
            fx = {}
            for g in range(16): put(fx, g, [rf[7+g]])
            D = sum((dma4(k) for k in dmas), [])
            DS = self.o.get("dstep", 2)
            spill = []
            for n, d in enumerate(D):
                g = n * DS * (2 if len(D) == 4 and not extra else 1)
                if g < 15: put(fx, g, [d])
                else: spill.append((g - 16 if g >= 16 else 0, d))
            put(fx, 15, [(lambda: None, 20)])
            if extra:
                X0 = self.o.get("x0", 8); ng = 16 - X0 + 9; per = -(-len(extra) // ng)
                put(fx, X0, [op("s_waitcnt vmcnt(4)")])
                for g in range(X0, 16): put(fx, g, extra[(g-X0)*per:(g-X0+1)*per])
                for g in range(9): spill += [(g, x) for x in extra[(16-X0+g)*per:(16-X0+g+1)*per]]
            sched(M, fx, sm_ops(1))
            check(1, other=not trans)()
            if mb: mb()
            pre = []
            if trans:
                I(f"v_mov_b32 v{LA}, v{LRUN}"); I(f"v_mov_b32 v{LRUN}, 0"); I(f"s_mov_b32 s{SFIN}, 1")
                pre = init_max()
            M = [lambda i=i: mf_qk(1, i, R, 16+i) for i in range(8)] + [lambda i=i: mf_pv(1, i, R, 24+i) for i in range(2)]
            fx = {}
            for g in range(9): put(fx, g, [rf[23+g]])
            for g, d in spill: put(fx, g, [d])
            put(fx, 8, [op(f"v_xor_b32 v{VV}, 0x10000, v{VK}")] + kx)
            for n, e in enumerate(endops): put(fx, 7 - n, [e])
            put(fx, 9, [(lambda: None, 16)])
            sched(M, fx, pre + sm_ops(0)[:SPL])
            assert [R[26+i][1]["reg"] for i in range(6)] == TR
        vm4 = lambda: I("s_waitcnt vmcnt(4)")
        vm0 = lambda: I("s_waitcnt vmcnt(0)")
        def vm08():
            lo = a.label("W8"); lb = a.label("W8R")
            I(f"s_cmp_eq_u32 s{SFIN}, 3"); I(f"s_cbranch_scc1 {lo}"); I("s_waitcnt vmcnt(%d)" % self.o.get("a_vm", 0)); a.L(lb)
            def b(): I("s_waitcnt vmcnt(8)"); I(f"s_mov_b32 s{SFIN}, 4")
            ool.append((lo, lb, b))
        m1 = lambda sb, ko: (lambda: rarely(f"s_cmp_eq_u32 s{SC1}, s{SM1}", lambda: mask_body(sb, ko)))
        fin = lambda: rarely(f"s_cmp_eq_u32 s{SFIN}, 1", fin_body)
        sta = (lambda: rarely(f"s_cmp_eq_u32 s{SFIN}, 2", st_body), 8)

        KR, VR, SH, WO, AD = 16, 23, 28, 32, 40
        def side_loads():
            L = []; E = lambda t: L.append(op(t)); V = lambda t: L.append(op(t, DC))
            E(f"v_lshrrev_b32 v{AD}, 5, v0"); E(f"v_and_b32 v{AD+1}, 31, v0"); E(f"v_lshlrev_b32 v{AD+2}, 12, v{AD}"); E(f"v_lshl_add_u32 v{AD+2}, v{AD+1}, 2, v{AD+2}")
            E(f"s_lshl_b32 s60, s{SF}, 14"); E(f"s_lshl_b32 s61, s{SW}, 7"); E("s_add_u32 s60, s60, s61"); E("s_add_u32 s61, s60, 8192")
            for j in range(8): V(f"buffer_load_dword v{WO+j}, v{AD+2}, s[{RE}:{RE+3}], s{60+(j>>2)} offen offset:{1024*(j&3)}")
            E("s_lshr_b32 s62, s2, 3"); E("s_lshl_b32 s62, s62, 16"); E(f"s_lshl_b32 s63, s{SW}, 13"); E("s_add_u32 s62, s62, s63")
            E("s_and_b32 s63, s2, 7"); E("s_lshl_b32 s63, s63, 7"); E("s_add_u32 s62, s62, s63"); E(f"v_add_u32 v{AD+3}, s62, v{AD+2}")
            for i in range(3): E(f"v_subrev_u32 v{AD+4+i}, {3072-1024*i}, v{AD+3}")
            E("s_lshl_b32 s63, s63, 2"); E(f"v_lshl_add_u32 v{AD+7}, v{AD+1}, 4, s63")
            for i in range(3): V(f"buffer_load_dword v{KR+i}, v{AD+4+i}, s[{RA}:{RA+3}], 0 offen")
            for i in range(4): V(f"buffer_load_dword v{KR+3+i}, v{AD+3}, s[{RA}:{RA+3}], 0 offen offset:{1024*i}")
            for i in range(4): V(f"buffer_load_dword v{VR+i}, v{AD+3}, s[{RC}:{RC+3}], 0 offen offset:{1024*i}")
            V(f"buffer_load_dwordx4 {v(SH,4)}, v{AD+7}, s[{RD}:{RD+3}], 0 offen")
            E(f"s_lshl_b32 s60, s{SF}, 13"); E(f"s_add_u32 s60, s60, s{SWK}"); E(f"v_and_b32 v27, 7, v0"); E("v_lshlrev_b32 v27, 7, v27")
            V(f"buffer_load_dword v1, v27, s[{RB}:{RB+3}], s60 offen")
            return L
        NSL = 21
        def side_math():
            L = []; E = lambda t: L.append(op(t)); V = lambda t: L.append(op(t, DC))
            W2 = 48
            E("s_mov_b32 s60, 0x05040100"); E("s_mov_b32 s61, 0x07060302")
            for j in range(4): E(f"v_perm_b32 v{W2+j}, v{WO+2*j+1}, v{WO+2*j}, s60")
            for j in range(4): E(f"v_perm_b32 v{W2+4+j}, v{WO+2*j+1}, v{WO+2*j}, s61")
            E(f"s_lshl_b32 s60, s{SW}, 8"); E(f"s_add_u32 s60, s60, s{SF}"); E("s_lshl_b32 s60, s60, 11"); E(f"s_add_u32 s60, s60, {WOT_OFF}")
            for mt in range(2): V(f"buffer_store_dwordx4 {v(W2+4*mt,4)}, v{VL16}, s[{RWS}:{RWS+3}], s60 offen offset:{1024*mt}{self.st}")
            KU, SU, OO, VU, PQ = 32, 42, 48, 39, 52
            for c in range(2):
                def unp(d, sreg, half): E(f"v_lshlrev_b32 v{d}, 16, v{sreg}" if half == 0 else f"v_and_b32 v{d}, 0xffff0000, v{sreg}")
                for i in range(7): unp(KU+i, KR+i, c)
                for j in range(4): unp(SU+j, SH + 2*c + (j >> 1), j & 1)
                for o in range(4):
                    E(f"v_mul_f32 v{OO+o}, v{KU+o}, v{SU+3}")
                    for j in (2, 1, 0): E(f"v_fmac_f32 v{OO+o}, v{KU+o+3-j}, v{SU+j}")
                    unp(VU, VR+o, c)
                    E(f"v_mul_f32 v{OO+o}, v{OO+o}, v{VU}")
                d = PQ + 2*(1-c)
                E(f"v_cvt_pk_bf16_f32 v{d}, v{OO+3}, v{OO+2}"); E(f"v_cvt_pk_bf16_f32 v{d+1}, v{OO+1}, v{OO}")
            E(f"v_lshlrev_b32 v{AD+1}, 5, v{AD+1}"); E(f"v_lshl_add_u32 v{AD+1}, v{AD}, 4, v{AD+1}")
            E(f"v_permlane32_swap_b32 v{PQ+2}, v{PQ}"); E(f"v_permlane32_swap_b32 v{PQ+3}, v{PQ+1}")
            E("s_lshr_b32 s60, s2, 3"); E("s_lshl_b32 s60, s60, 16"); E(f"s_lshl_b32 s61, s{SW}, 13"); E("s_add_u32 s60, s60, s61")
            E("s_and_b32 s61, s2, 7"); E("s_lshl_b32 s61, s61, 10"); E("s_add_u32 s60, s60, s61"); E(f"s_add_u32 s60, s60, {KVT_OFF}")
            V(f"buffer_store_dwordx4 {v(PQ,4)}, v{AD+1}, s[{RWS}:{RWS+3}], s60 offen{self.st}")
            return L
        def spub_body():
            l1 = a.label("SM"); l2 = a.label("SP")
            I("s_add_u32 s41, s41, 1"); I(f"s_add_u32 s44, s41, s{SG}"); I("s_cmp_lg_u32 s44, 2"); I(f"s_cbranch_scc1 {l1}")
            for c, _ in side_math(): c()
            a.L(l1)
            I("s_cmp_lg_u32 s41, 4"); I(f"s_cbranch_scc1 {l2}")
            I(f"s_lshl_b32 s44, s{SF}, 2"); I(f"s_add_u32 s44, s44, {FY_OFF}")
            sv = self.save(); self.publish(44, 2); self.restore(sv)
            a.L(l2)
        spub = lambda: rarely("s_cmp_lt_u32 s41, 4", spub_body)
        def snap():
            self.oob_sel(); I("v_lshl_add_u32 v49, v0, 4, s99"); I(f"s_mov_b32 s60, {FY_OFF}")
            I(f"buffer_load_dwordx4 v[52:55], v49, s[{RWS}:{RWS+3}], s60 offen sc1")
        def side_check():
            l = a.label("SCK"); lp = a.label("SPL")
            I(f"s_cmp_lg_u32 s{SW}, 0"); I(f"s_cbranch_scc1 {l}")
            I("s_mov_b32 s99, 20000"); a.L(lp)
            I("v_and_b32 v52, v52, v53"); I("v_and_b32 v54, v54, v55"); I("v_and_b32 v52, v52, v54"); I("v_and_b32 v52, 2, v52")
            I("v_cmp_ne_u32 vcc, 2, v52"); I(f"s_cbranch_vccz {l}"); I("s_sleep 2")
            I(f"buffer_load_dwordx4 v[52:55], v49, s[{RWS}:{RWS+3}], s60 offen sc1")
            I("s_sub_u32 s99, s99, 1"); I("s_cmp_lg_u32 s99, 0"); I("s_waitcnt vmcnt(0)"); I(f"s_cbranch_scc1 {lp}")
            a.L(l)
        m2 = lambda sb, ko: (lambda: rarely(f"s_cmp_eq_u32 s{SC2}, 0", lambda: (snap(), mask_body(sb, ko))))
        LEV = a.label("EVEN"); LODM = a.label("ODDM"); LTRANS = a.label("TRANS"); LP2 = a.label("P2"); LP2B = a.label("P2B"); LDRAIN = a.label("DRAIN")
        self.stamp(8)
        self.ring_n = 0
        R = [rd("k", 0, i) for i in range(8)] + [rd("k", 1, i) for i in range(8)]
        for i in range(7):
            I(f"ds_read_b128 {v(QF+4*i,4)}, v{TMP+1} offset:{1024*i}"); lg.issue()
            R[i][0]()
        def q7():
            I(f"ds_read_b128 {v(QF+28,4)}, v{TMP+1} offset:{1024*7}"); lg.issue()
        D = dma4("v") + dma4("k")
        sched([lambda i=i: mf_qk(0, i, R, i, True) for i in range(8)], {g: ([(q7, 4)] if g == 0 else []) + [(R[7+g][0], 4), D[g]] for g in range(8)}, [])
        m1(0, 0)()
        pre = init_max()
        I(f"v_mov_b32 v{LRUN}, 0")
        fx = {}
        put(fx, 0, [(R[15][0], 4)]); put(fx, 4, [op(f"v_xor_b32 v{VV}, 0x10000, v{VK}"), op(f"v_xor_b32 v{VK}, 0x4000, v{VK}")])
        SLd = side_loads(); n8 = (len(SLd) + 7) // 8
        for g in range(8): put(fx, g, SLd[g*n8:(g+1)*n8])
        sched([lambda i=i: mf_qk(1, i, R, 8+i) for i in range(8)], fx, pre + sm_ops(0)[:SPL])
        R = mk_reads()
        head(R, lambda: I(f"s_waitcnt vmcnt({4+NSL})"), False, post=[m1(1, 32)])
        svm = self.save()
        I(f"s_branch {LODM}")
        a.L(LEV)
        R = mk_reads(); head(R, vm4)
        mid(R, "k", [op(f"v_xor_b32 v{VK}, 0x4000, v{VK}")], mb=m1(0, 0))
        R = mk_reads(); head(R, vm4, post=[m1(1, 32), spub])
        assert self.lg.issued - self.lg.done == svm[2] - svm[3]
        a.L(LODM)
        mid(R, "v", [op(f"v_xor_b32 v{VK}, 0xc000, v{VK}")], mb=m1(0, 64), endops=[op(f"s_sub_u32 s{SC1}, s{SC1}, 1")])
        I(f"s_cmp_lg_u32 s{SC1}, -1"); I(f"s_cbranch_scc1 {LEV}")
        I(f"s_cmp_eq_u32 s{SG}, 1"); I(f"s_cbranch_scc1 {LTRANS}")
        svt = self.save()
        R = mk_reads(); head(R, vm4)
        mid(R, "k", [op(f"v_xor_b32 v{VK}, 0x8000, v{VK}")], mb=m2(0, -1))
        a.L(LP2B)
        I(f"s_cmp_eq_u32 s{SC2}, 0"); I(f"s_cbranch_scc1 {LDRAIN}")
        a.L(LP2)
        R = mk_reads(); head(R, vm08, post=[spub, fin, lambda: I(f"s_sub_u32 s{SC2}, s{SC2}, 1")])
        mid(R, "kv", [op(f"v_xor_b32 v{VK}, 0x8000, v{VK}")], mb=m2(0, -1), endops=[sta])
        I(f"s_cmp_lg_u32 s{SC2}, 0"); I(f"s_cbranch_scc1 {LP2}")
        a.L(LDRAIN)
        self.stamp(10)
        R2 = [rd("v", 0, i) for i in range(8)] + [rd("v", 1, i) for i in range(8)]
        rf = [(f, 4) for f, h in R2]
        head(R2, lambda: (vm08(), side_check()), post=[fin, sta[0]])
        mask_body(1, -33)
        ts, ts2, ts3 = self.tail_setup(); n8 = (len(ts) + 4) // 5
        fx = {g: [rf[7+g]] + ts[g*n8:(g+1)*n8] for g in range(8)}
        for g in range(3):
            if g < len(ts2): put(fx, 5 + g, [ts2[g]])
        sched([lambda i=i: mf_pv(0, i, R2, i) for i in range(8)], fx, sm_ops(1))
        check(1)()
        pre = []; E_ = lambda t: pre.append(op(t))
        E_(f"v_mov_b32 v{TMP}, v{LRUN}"); E_(f"s_lshl_b32 s44, s{SW}, 9"); E_(f"s_add_u32 s44, s44, {ML}")
        E_(f"v_permlane32_swap_b32 v{TMP}, v{LRUN}"); E_(f"v_add_f32 v{NM+1}, v{TMP}, v{LRUN}")
        E_(f"v_lshrrev_b32 v{TMP}, 1, v{VL16}"); E_(f"v_add_u32 v{TMP}, s44, v{TMP}")
        def wml():
            I(f"ds_write_b64 v{TMP}, {v(NM,2)}"); lg.issue()
        pre.append((wml, 4))
        E_(f"v_xor_b32 v{TMP}, 0x800, v{TMP}")
        E_(f"s_lshl_b32 s46, s{SW}, 13"); E_(f"v_add_u32 v{TMP+1}, s46, v{VL16}"); E_(f"v_xor_b32 v{TMP+2}, 0x8000, v{TMP+1}")
        E_(f"s_sub_u32 s54, 15, s{SIDX}"); E_(f"s_lshl_b32 s54, s54, 2"); E_(f"s_add_u32 s54, s54, s{SR}"); E_("s_lshl_b32 s54, s54, 5"); E_(f"s_add_u32 s54, s54, s{SHEAD}")
        E_("s_lshl_b32 s54, s54, 13"); E_(f"s_lshl_b32 s44, s{SG}, 12"); E_("s_add_u32 s54, s54, s44"); E_(f"s_add_u32 s54, s54, {CTX_OFF}")
        fx = {0: [rf[15]]}
        for g, x in enumerate(ts2[3:]): put(fx, g, [x])
        sched([lambda i=i: mf_pv(1, i, R2, 8+i) for i in range(8)], fx, pre + ts3)
        self.stamp(11)
        lg1 = a.label("MG1"); lj = a.label("MGJ")
        I(f"s_cmp_eq_u32 s{SG}, 1"); I(f"s_cbranch_scc1 {lg1}")
        sv2 = self.save(); PR = 64
        for g in (0, 1):
            if g: a.L(lg1); self.restore(sv2)
            own = O + 32*g; snd = O + 32*(1-g)
            for i in range(8):
                I(f"ds_write_b128 v{TMP+1}, {v(snd+4*i,4)} offset:{1024*i}"); lg.issue()
            lg.wait(lg.issued); self.barrier()
            I(f"ds_read_b64 {v(96,2)}, v{TMP}"); t0 = lg.issue()
            tk = []
            for i in range(8):
                I(f"ds_read_b128 {v(PR+4*i,4)}, v{TMP+2} offset:{1024*i}"); tk.append(lg.issue())
            lg.wait(t0)
            I(f"v_min_f32 v98, v{NM}, v96"); I(f"v_sub_f32 v99, v98, v{NM}"); I(f"v_sub_f32 v100, v98, v96")
            I("v_exp_f32 v99, v99"); I("v_exp_f32 v100, v100")
            I(f"v_mul_f32 v101, v99, v{NM+1}"); I("v_fmac_f32 v101, v100, v97"); I("v_rcp_f32 v101, v101")
            I("v_mul_f32 v102, v99, v101"); I("v_mul_f32 v103, v99, v101"); I("v_mul_f32 v104, v100, v101"); I("v_mul_f32 v105, v100, v101")
            for q in range(4):
                for i in range(8*q, 8*q+8, 2): I(f"v_pk_mul_f32 {v(own+i,2)}, {v(own+i,2)}, v[102:103]")
                lg.wait(tk[2*q+1])
                for i in range(8*q, 8*q+8, 2): I(f"v_pk_fma_f32 {v(own+i,2)}, {v(PR+i,2)}, v[104:105], {v(own+i,2)}")
                for i in range(4): I(f"v_cvt_pk_bf16_f32 v{snd+4*q+i}, v{own+8*q+2*i}, v{own+8*q+2*i+1}")
                I(f"buffer_store_dwordx4 {v(snd+4*q,4)}, v{VL16}, s[{RWS}:{RWS+3}], s54 offen offset:{1024*q}{self.st}"); self.tctx = vm.issue()
            if not g: I(f"s_branch {lj}")
        a.L(lj)
        I("s_setprio 0")
        self.stamp(4)
        def cold():
            a.L(LTRANS)
            self.restore(svt)
            loadq(VQ); I("s_waitcnt lgkmcnt(0)")
            I(f"v_xor_b32 v{VK}, 0x4000, v{VK}")
            R = mk_reads(); head(R, vm4, post=[lambda: mask_body(1, 96)])
            mid(R, "k", [op(f"v_xor_b32 v{VK}, 0x8000, v{VK}")], mb=m2(0, -1), trans=True)
            I(f"s_branch {LP2B}")
            for (lo, lb, body) in ool:
                a.L(lo); body(); I(f"s_branch {lb}")
            for (lr, lb, sb, other) in rare:
                a.L(lr)
                I("s_nop 15")
                rowmax(sb, TMP)
                I(f"v_max_f32 v{TMP}, 0, v{TMP}"); I(f"v_exp_f32 v{TMP+1}, -v{TMP}")
                for r in range(16): I(f"v_sub_f32 v{NM+r}, v{NM+r}, v{TMP}")
                for r in range(16): I(f"v_sub_f32 v{S[sb]+r}, v{S[sb]+r}, v{TMP}")
                if other:
                    for r in range(16): I(f"v_sub_f32 v{S[1-sb]+r}, v{S[1-sb]+r}, v{TMP}")
                for r in range(64): I(f"v_mul_f32 v{O+r}, v{O+r}, v{TMP+1}")
                I(f"v_mul_f32 v{LRUN}, v{LRUN}, v{TMP+1}")
                for c, _ in sm_ops(sb): c()
                I("s_nop 1"); I(f"s_branch {lb}")
        self.attn_rare = cold

    HB = 65536; HC = 4416; XB = 136192; YB = 148480
    SC, SJ, SB, SCH, SHB_, SWO, SCX = 34, 35, 36, 37, 38, 39, 40
    WS_ = [16, 24, 32, 40, 176, 184, 56, 80, 88, 96, 104, 144, 152, 160]
    CS_ = [168, 112, 120, 128, 136, 64, 72]
    NL = 4
    def tail_setup(self):
        I = self.I; L = []; E = lambda t: L.append((lambda: I(t), 4))
        SC, SJ, SB, SCH, SHB_, SWO, SCX = self.SC, self.SJ, self.SB, self.SCH, self.SHB_, self.SWO, self.SCX
        self.wtok = {}; self.wslot = dict(enumerate(self.WS_))
        E(f"s_lshr_b32 s{SC}, s{SW}, 2"); E(f"s_and_b32 s{SJ}, s{SW}, 3")
        E(f"s_lshl_b32 s{SCH}, s{SF}, 1"); E(f"s_add_u32 s{SCH}, s{SCH}, s{SC}"); E(f"s_lshl_b32 s{SCH}, s{SCH}, 12")
        E(f"s_lshl_b32 s60, s{SJ}, 10"); E("v_add_u32 v50, s60, v6"); E("v_subrev_u32 v51, 16, v50")
        E(f"s_lshr_b32 s60, s{SCH}, 8"); E(f"s_add_u32 s60, s60, {KVT_OFF}"); E("v_lshlrev_b32 v52, 9, v50")
        def ld(t):
            def f(): I(t); self.th = self.vm.issue()
            L.append((f, 16))
        ld(f"buffer_load_dwordx4 {v(160,4)}, v51, s[{RB}:{RB+3}], s{SCH} offen")
        ld(f"buffer_load_dwordx4 {v(164,4)}, v50, s[{RB}:{RB+3}], s{SCH} offen")
        ld(f"buffer_load_dwordx4 {v(168,4)}, v52, s[{RWS}:{RWS+3}], s60 offen{self.ld}")
        E(f"s_lshl_b32 s{SWO}, s57, 19"); E(f"s_lshl_b32 s60, s{SW}, 16"); E(f"s_add_u32 s{SWO}, s{SWO}, s60"); E(f"s_add_u32 s{SWO}, s{SWO}, {WOT_OFF}")
        L2 = [(lambda i=i: self.wload(i), 36) for i in range(self.o.get("we", 6))]
        L3 = []; L, Lx = L3, L
        E = lambda t: L3.append((lambda: I(t), 4))
        E(f"s_mul_i32 s{SB}, s{SC}, 6144"); E(f"s_add_u32 s{SB}, s{SB}, {self.XB}")
        E(f"s_mul_i32 s{SHB_}, s{SC}, {8*self.HC}"); E(f"s_add_u32 s{SHB_}, s{SHB_}, {self.HB}")
        E(f"s_lshl_b32 s{SCX}, s56, 19"); E(f"s_lshl_b32 s60, s{SW}, 15"); E(f"s_add_u32 s{SCX}, s{SCX}, s60"); E(f"s_add_u32 s{SCX}, s{SCX}, {CTX_OFF}")
        return Lx, L2, L3
    def wreg(self, i):
        return self.WS_[i % len(self.WS_)]
    def wload(self, i):
        I = self.I; r = self.wslot[i]
        I(f"s_add_u32 s61, s{self.SWO}, {i*2048}")
        for mt in range(2):
            I(f"buffer_load_dwordx4 {v(r+4*mt,4)}, v6, s[{RWS}:{RWS+3}], s61 offen offset:{mt*1024}{self.ld}"); self.wtok[i] = self.vm.issue()
    def tail_early(self):
        I = self.I; vm = self.vm; lg = self.lg; HC = self.HC
        SJ, SB, SCH, SHB_ = self.SJ, self.SB, self.SCH, self.SHB_
        Ee, Eo, Oe, Oo = 160, 113, 122, 131
        vm.wait(self.th)
        for k in range(7): I(f"v_alignbit_b32 v{Oe+k}, v{Ee+k+1}, v{Ee+k}, 16")
        for k in range(1, 7): I(f"v_alignbit_b32 v{Oo+k}, v{Ee+k+1}, v{Ee+k}, 16")
        for k in range(1, 7): I(f"v_mov_b32 v{Eo+k}, v{Ee+k}")
        I(f"s_add_u32 s60, s{SHB_}, 64"); I("v_add_u32 v51, s60, v50")
        for r in range(8):
            sft = 1 + r; k = sft >> 1
            base = ((Oe, Oo) if sft & 1 else (Ee, Eo))[k & 1]
            I(f"ds_write_b128 v51, {v(base+k,4)} offset:{r*HC}"); lg.issue()
        I("v_and_b32 v51, 3, v0"); I("v_mul_u32_u24 v52, 1536, v51"); I("v_lshrrev_b32 v53, 6, v50"); I("v_lshl_add_u32 v52, v53, 4, v52")
        I(f"s_add_u32 s60, s{SB}, 512"); I("v_add_u32 v52, s60, v52")
        I(f"ds_write_b128 v52, {v(168,4)}"); lg.issue()
        for r in range(2): I(f"v_mov_b64 {v(172+2*r,2)}, 0")
        I("v_bfe_u32 v52, v0, 2, 3"); I(f"v_mul_u32_u24 v52, {HC}, v52"); I("v_lshl_add_u32 v52, v51, 4, v52"); I(f"v_add_u32 v52, s{SHB_}, v52")
        I(f"ds_write_b128 v52, {v(172,4)}"); lg.issue()
        I(f"s_mul_i32 s60, s{SJ}, 1536"); I(f"s_add_u32 s60, s60, s{SB}"); I("v_lshl_add_u32 v52, v0, 3, s60")
        I(f"ds_write_b64 v52, {v(172,2)}"); lg.issue()
    def tailp(self):
        a = self.a; I = self.I; vm = self.vm; lg = self.lg
        HB, HC, YB = self.HB, self.HC, self.YB
        SC, SJ, SB, SCH, SHB_, SWO, SCX = self.SC, self.SJ, self.SB, self.SCH, self.SHB_, self.SWO, self.SCX
        ACC = 192; FRS = [224, 240, 64]; RD_ = 224
        VL16, VA, VB, T, VP, VPA, VO, GR, VLW, XR = 6, 4, 5, 12, 7, 8, 9, 10, 11, 48
        OACC = 192
        NW, NCX, NL = len(self.WS_), len(self.CS_), self.o.get("nl", self.NL)
        wtok = self.wtok; ctok = {}; wslot = self.wslot; cslot = dict(enumerate(self.CS_))
        I(f"s_lshr_b32 s53, s56, 1"); I("s_lshl_b32 s53, s53, 10"); I(f"s_lshl_b32 s44, s{SW}, 7"); I("s_add_u32 s53, s53, s44"); I(f"s_add_u32 s53, s53, {FC_OFF}")
        I(f"v_and_b32 v{VPA}, 3, v0"); I(f"v_lshlrev_b32 v{VPA}, 2, v{VPA}")
        P0 = self.o.get("p0", 0)
        tc0 = self.poll_issue(VP, VPA, "s53") if P0 else self.tctx
        self.tail_early()
        PUBN = self.o.get("pubn", 1)
        I(f"s_lshr_b32 s45, s{SHEAD}, 2"); I("s_lshl_b32 s45, s45, 7"); I(f"s_and_b32 s44, s{SHEAD}, 3"); I("s_lshl_b32 s44, s44, 2"); I("s_add_u32 s45, s45, s44")
        I(f"s_sub_u32 s44, 15, s{SIDX}"); I("s_lshl_b32 s44, s44, 10"); I("s_add_u32 s46, s44, s45"); I(f"s_add_u32 s46, s46, {FC_OFF}")
        I(f"s_lshl_b32 s44, s{SIDX}, 10"); I("s_add_u32 s47, s44, s45"); I(f"s_add_u32 s47, s47, {FC_OFF}")
        self.srd(RC, "out", 2*MB); self.srd(RD, "q", 2*MB)
        I(f"s_lshl_b32 s44, s{SF}, 2"); I(f"s_load_dword s55, s[{P['ssmD']}:{P['ssmD']+1}], s44")
        I(f"v_and_b32 v{T}, 31, v0"); I(f"v_lshrrev_b32 v{T+1}, 5, v0")
        I(f"v_and_b32 v{T+2}, 7, v0"); I(f"v_mul_u32_u24 v{VA}, {HC}, v{T+2}")
        I(f"v_bfe_u32 v{T+2}, v0, 3, 2"); I(f"v_sub_u32 v{T+2}, v{T+2}, v{T+1}"); I(f"v_lshl_add_u32 v{VA}, v{T+2}, 4, v{VA}")
        I(f"s_lshl_b32 s43, s{SJ}, 9"); I(f"s_add_u32 s43, s43, s{SHB_}"); I("s_add_u32 s43, s43, 32"); I(f"v_add_u32 v{VA}, s43, v{VA}")
        I(f"s_lshl_b32 s43, s{SJ}, 7"); I(f"s_sub_u32 s43, s{SB}, s43"); I("s_add_u32 s43, s43, 400")
        I(f"v_lshl_add_u32 v{VB}, v{T}, 4, s43"); I(f"v_mul_u32_u24 v{T+2}, 1536, v{T+1}"); I(f"v_add_u32 v{VB}, v{VB}, v{T+2}")
        I(f"s_lshl_b32 s51, s{SW}, 13"); I(f"v_add_u32 v{VLW}, s51, v{VL16}")
        I("s_waitcnt lgkmcnt(0)"); lg.mark_all_done(); self.barrier()
        self.stamp(5)
        def cload(i):
            r = cslot[i]
            I(f"s_add_u32 s62, s{SCX}, {(i//4)*4096}"); I("s_add_u32 s63, s62, 0x40000")
            for st in range(2):
                I(f"buffer_load_dwordx4 {v(r+4*st,4)}, v{VL16}, s[{RWS}:{RWS+3}], s{62+st} offen offset:{(i%4)*1024}{self.ld}"); ctok[i] = vm.issue()
        ltok = {}
        def lstage(j):
            I(f"s_add_u32 m0, s51, {j*2048}"); I(f"s_add_u32 s61, s{SWO}, {(NW+j)*2048}")
            for mt in range(2):
                I(f"buffer_load_dwordx4 v{VL16}, s[{RWS}:{RWS+3}], s61 offen offset:{mt*1024}{self.ld} lds"); ltok[j] = vm.issue()
        def early(lo, hi, level):
            le = a.label("NE")
            I(f"s_cmp_lg_u32 s50, {level}"); I(f"s_cbranch_scc1 {le}")
            sv = self.save()
            for i in range(lo, hi): cload(i)
            self.restore(sv); I(f"s_mov_b32 s50, {level+1}")
            a.L(le)
        def seen():
            I(f"v_and_b32 v{VP}, 1, v{VP}"); I(f"v_cmp_ne_u32 vcc, 1, v{VP}"); I("s_cmp_eq_u64 vcc, 0"); I("s_cselect_b32 s52, 1, 0"); I("s_max_u32 s50, s50, s52")
        I("s_mov_b32 s50, 0")
        wl = [lambda i=i: self.wload(i) for i in range(NW) if i not in wtok] + [lambda j=j: lstage(j) for j in range(NL)]
        steps = [(dd, ks) for dd in range(8) for ks in range(2)]
        toks = {}
        def reads(n):
            dd, ks = steps[n]; b = FRS[n % 3]
            def r(k, reg, addr, off):
                def f():
                    I(f"ds_read_b128 {v(reg,4)}, v{addr} offset:{off}"); toks[(n, k)] = lg.issue()
                return f
            return [r(0, b, VA, 64*dd + 32*(1-ks)), r(1, b+4, VB, ks*3072 + (7-dd)*16),
                    r(2, b+8, VB, ks*3072 + (7-dd)*16 + 512), r(3, b+12, VA, 64*dd + 32*(1-ks) + 2048)]
        for n in range(2):
            for f in reads(n): f()
        for n in range(16):
            b = FRS[n % 3]; L = reads(n+2) if n + 2 < 16 else []
            c0 = "0" if n == 0 else v(ACC,16); c1 = "0" if n == 0 else v(ACC+16,16)
            lg.wait(toks[(n,1)]); I(f"{MFMA} {v(ACC,16)}, {v(b,4)}, {v(b+4,4)}, {c0}")
            for f in L[0:2]: f()
            lg.wait(toks[(n,2)]); I(f"{MFMA} {v(ACC+16,16)}, {v(b,4)}, {v(b+8,4)}, {c1}")
            for f in L[2:3]: f()
            lg.wait(toks[(n,3)]); I(f"{MFMA} {v(ACC+16,16)}, {v(b+12,4)}, {v(b+4,4)}, {v(ACC+16,16)}")
            for f in L[3:4]: f()
            if n == PUBN:
                vm.wait(tc0); self.barrier(); self.publish(46); self.publish(47)
                if P0: seen()
            if n >= PUBN and n < 14:
                for _ in range(-(-len(wl) // (14 - n))): wl.pop(0)()
            if n == self.o.get("p1", 12): tc1 = self.poll_issue(VP, VPA, "s53")
            if n == 14 and P0: early(0, NCX - 2, 1)
        assert not wl
        I(f"s_add_u32 s43, s51, {HB}"); I(f"v_add_u32 v{T+2}, s43, v{VL16}")
        self.barrier()
        for i in range(8):
            I(f"ds_write_b128 v{T+2}, {v(ACC+4*i,4)} offset:{1024*i}"); lg.issue()
        I(f"s_lshl_b32 s43, s{SC}, 15"); I(f"s_lshl_b32 s44, s{SJ}, 11"); I("s_add_u32 s43, s43, s44"); I(f"s_add_u32 s43, s43, {HB}"); I(f"v_add_u32 v{T+2}, s43, v{VL16}")
        I(f"s_and_b32 s43, s{SJ}, 1"); I("s_mul_i32 s44, s43, 3072"); I(f"s_lshr_b32 s45, s{SJ}, 1"); I("s_lshl_b32 s41, s45, 9")
        I("s_add_u32 s44, s44, s41"); I(f"s_add_u32 s44, s44, s{SB}"); I("s_add_u32 s44, s44, 520")
        I(f"v_lshl_add_u32 v{T+3}, v{T}, 4, s44"); I(f"v_lshlrev_b32 v{VA}, 3, v{T+1}"); I(f"v_sub_u32 v{T+3}, v{T+3}, v{VA}")
        I(f"v_lshlrev_b32 v{VB}, 6, v{T}"); I(f"v_lshl_add_u32 v{VB}, v{T+1}, 4, v{VB}")
        I("s_lshl_b32 s45, s45, 11"); I("s_lshl_b32 s43, s43, 5"); I("s_add_u32 s45, s45, s43"); I(f"s_lshl_b32 s43, s{SC}, 12"); I("s_add_u32 s45, s45, s43")
        I(f"s_add_u32 s45, s45, {YB}"); I(f"v_add_u32 v{VB}, s45, v{VB}")
        I("s_lshl_b32 s43, s55, 16"); I("s_and_b32 s44, s55, 0xffff0000"); I(f"s_cmp_eq_u32 s{SC}, 0"); I("s_cselect_b32 s55, s43, s44")
        lg.wait(lg.issued); self.barrier()
        self.stamp(12)
        for p in range(4):
            for gq in range(2):
                I(f"ds_read_b128 {v(RD_+8*p+4*gq,4)}, v{T+2} offset:{8192*p+1024*gq}"); lg.issue()
        for gq in range(2):
            I(f"ds_read_b64 {v(ACC+2*gq,2)}, v{T+3} offset:{1536*gq}"); lg.issue()
        lk = a.label("SK"); I("s_cmp_lg_u32 s50, 0"); I(f"s_cbranch_scc1 {lk}")
        sv = self.save(); vm.wait(tc1); seen(); self.restore(sv); early(0, NCX - 2, 1)
        a.L(lk)
        early(NCX - 2, NCX, 2)
        lg.wait(lg.issued)
        for i in range(0, 8, 2):
            I(f"v_pk_add_f32 {v(RD_+i,2)}, {v(RD_+i,2)}, {v(RD_+8+i,2)}"); I(f"v_pk_add_f32 {v(RD_+16+i,2)}, {v(RD_+16+i,2)}, {v(RD_+24+i,2)}")
        for i in range(0, 8, 2): I(f"v_pk_add_f32 {v(RD_+i,2)}, {v(RD_+i,2)}, {v(RD_+16+i,2)}")
        for gq in range(2):
            for r in range(4):
                srcr = ACC + 2*gq + (1 - (r >> 1))
                I(f"v_lshlrev_b32 v{ACC+8}, 16, v{srcr}" if r & 1 else f"v_and_b32 v{ACC+8}, 0xffff0000, v{srcr}")
                I(f"v_fma_f32 v{RD_+4*gq+r}, v{ACC+8}, s55, v{RD_+4*gq+r}")
        for i in range(4): I(f"v_cvt_pk_bf16_f32 v{ACC+12+i}, v{RD_+2*i}, v{RD_+2*i+1}")
        I(f"v_permlane32_swap_b32 v{ACC+12}, v{ACC+14}"); I(f"v_permlane32_swap_b32 v{ACC+13}, v{ACC+15}")
        I(f"ds_write_b128 v{VB}, {v(ACC+12,4)}"); lg.issue()
        lg.wait(lg.issued); self.barrier()
        ly = a.label("NY")
        I(f"s_cmp_lg_u32 s{SW}, 0"); I(f"s_cbranch_scc1 {ly}")
        I(f"v_add_u32 v{T}, {YB}, v{VL16}")
        for i in range(8): I(f"ds_read_b128 {v(RD_+4*i,4)}, v{T} offset:{1024*i}")
        I(f"s_lshl_b32 s44, s{SF}, 13"); I(f"s_add_u32 s44, s44, {YT_OFF}"); I("s_add_u32 s45, s44, 4096")
        I("s_waitcnt lgkmcnt(0)")
        for i in range(8): I(f"buffer_store_dwordx4 {v(RD_+4*i,4)}, v{VL16}, s[{RWS}:{RWS+3}], s{44+(i>>2)} offen offset:{1024*(i&3)}{self.st}")
        a.L(ly)
        ll = a.label("NL")
        I("s_cmp_eq_u32 s50, 3"); I(f"s_cbranch_scc1 {ll}")
        self.poll_check(VP, VPA, "s53", 1)
        for i in range(NCX): cload(i)
        a.L(ll)
        self.stamp(6)
        YT = self.XB
        lrd = {}; ypub = False; ymark = vm.issued; free = []; fresh = []; nw = NW; nw2 = NW + NL; nc = NCX
        for i in range(32):
            if i % 4 == 0 and self.o.get("ostamp"): self.stamp(17 + i // 4)
            if i == 14:
                I(f"s_lshl_b32 s53, s57, 7"); I(f"s_lshl_b32 s42, s{SW}, 4"); I("s_add_u32 s53, s53, s42"); I(f"s_add_u32 s53, s53, {FY_OFF}")
                tf = self.poll_issue(VP, VPA, "s53")
            if i == 24:
                vm.wait(tf); self.poll_check(VP, VPA, "s53", 1)
                I(f"v_lshrrev_b32 v{T}, 3, v0"); I(f"v_and_b32 v{T+1}, 7, v0"); I(f"v_lshlrev_b32 v{T+1}, 4, v{T+1}")
                I(f"v_lshl_add_u32 v{T}, v{T}, 12, v{T+1}")
                I(f"s_add_u32 m0, s{SWK}, {YT}")
                I(f"s_lshl_b32 s44, s57, 18"); I(f"s_lshl_b32 s45, s{SW}, 15"); I("s_add_u32 s44, s44, s45")
                I(f"s_lshl_b32 s45, s56, 7"); I("s_add_u32 s44, s44, s45"); I(f"s_add_u32 s44, s44, {YT_OFF}")
                I(f"buffer_load_dwordx4 v{T}, s[{RWS}:{RWS+3}], s44 offen{self.ld} lds"); vm.issue()
                I(f"v_and_b32 v{T+1}, 15, v0"); I(f"s_lshr_b32 s48, s{SW}, 1"); I("s_lshl_b32 s48, s48, 4")
                I(f"s_lshl_b32 s45, s56, 6"); I("s_add_u32 s45, s45, s48"); I(f"v_add_u32 v{T+1}, s45, v{T+1}")
                I(f"v_lshlrev_b32 v{T+2}, 2, v{T+1}"); I(f"s_mov_b32 s45, {G_OFF}")
                I(f"buffer_load_dword v{GR}, v{T+2}, s[{RWS}:{RWS+3}], s45 offen{self.ld}"); vm.issue()
                I(f"v_lshrrev_b32 v{T+2}, 4, v0"); I(f"v_lshlrev_b32 v{T+2}, 4, v{T+2}"); I(f"v_lshl_add_u32 v{VO}, v{T+1}, 10, v{T+2}")
                I(f"s_and_b32 s49, s{SW}, 1"); I("s_lshl_b32 s49, s49, 6"); I(f"s_lshl_b32 s45, s57, 7"); I("s_add_u32 s49, s49, s45")
                I(f"buffer_load_dwordx4 {v(XR,4)}, v{VO}, s[{RD}:{RD+3}], s49 offen"); vm.issue()
            vm.wait(max(ctok[i], wtok.get(i, 0)))
            if i in lrd: lg.wait(lrd[i])
            if not ypub and vm.done > ymark:
                ypub = True
                I(f"s_lshl_b32 s44, s{SF}, 2"); I(f"s_add_u32 s44, s44, {FY_OFF}"); self.publish(44, 3)
            for mt in range(2):
                for st in range(2):
                    d = v(OACC + 16*(2*mt+st), 16)
                    I(f"{MFMA} {d}, {v(wslot[i]+4*mt,4)}, {v(cslot[i]+4*st,4)}, {'0' if i == 0 else d}")
            lagged, fresh = fresh, [wslot[i], cslot[i]]
            free += fresh
            while free:
                if nw < NW + NL and nw - i <= 3:
                    j = nw - NW; assert vm.done >= ltok[j]
                    r = free.pop(0); wslot[nw] = r
                    I("s_nop 3")
                    for mt in range(2):
                        I(f"ds_read_b128 {v(r+4*mt,4)}, v{VLW} offset:{j*2048+mt*1024}"); lrd[nw] = lg.issue()
                    nw += 1
                elif nc < 32 and (nc <= nw2 or nw2 >= 32):
                    cslot[nc] = free.pop(0); cload(nc); nc += 1
                elif nw2 < 32:
                    wslot[nw2] = free.pop(0); self.wload(nw2); nw2 += 1
                else: break
        self.stamp(7)
        I(f"v_and_b32 v{T}, 31, v0"); I(f"v_lshrrev_b32 v{T+1}, 5, v0"); I(f"v_and_b32 v{T+2}, 15, v0")
        I(f"v_lshlrev_b32 v{T+1}, 1, v{T+1}")
        I(f"v_xor_b32 v{T+1}, v{T+1}, v{T+2}"); I(f"v_lshlrev_b32 v{T+1}, 4, v{T+1}"); I(f"v_lshl_add_u32 v{T}, v{T}, 8, v{T+1}")
        I(f"v_add_u32 v{T}, s51, v{T}")
        for mt in range(2):
            for gq in range(4):
                I(f"v_xor_b32 v{T+1}, {(4*gq+mt)*16}, v{T}"); I(f"v_add_u32 v{T+3}, 0x10000, v{T+1}")
                for st in range(2):
                    I(f"ds_write_b128 v{T+1+2*st}, {v(OACC+16*(2*mt+st)+4*gq,4)}"); lg.issue()
        I(f"v_lshrrev_b32 v{T}, 4, v0"); I(f"s_and_b32 s41, s{SW}, 1"); I("s_lshl_b32 s42, s41, 3")
        I(f"v_lshl_add_u32 v{T+1}, v{T}, 1, s42"); I(f"v_xor_b32 v{T+1}, v{T+1}, v{T+2}"); I(f"v_lshlrev_b32 v{T+1}, 4, v{T+1}")
        I("s_and_b32 s43, s48, 16"); I(f"v_add_u32 v{T+3}, s43, v{T+2}"); I(f"v_lshl_add_u32 v24, v{T+3}, 8, v{T+1}")
        I("s_lshr_b32 s43, s48, 5"); I("s_lshl_b32 s43, s43, 16"); I("v_add_u32 v24, s43, v24"); I("v_xor_b32 v25, 16, v24")
        I("s_lshl_b32 s42, s41, 5"); I(f"v_lshl_add_u32 v{T}, v{T}, 3, s42"); I(f"v_bfe_u32 v{T+1}, v0, 2, 2")
        I(f"v_add_u32 v{T}, v{T}, v{T+1}"); I(f"v_lshlrev_b32 v{T}, 7, v{T}"); I(f"v_and_b32 v{T+1}, 3, v0")
        I(f"v_lshl_add_u32 v{T}, v{T+1}, 3, v{T}"); I("s_lshl_b32 s42, s48, 1"); I(f"s_add_u32 s42, s42, {YT}"); I(f"v_add_u32 v28, s42, v{T}")
        self.sync_all()
        CX = 128; tk = []
        I(f"ds_read_b64_tr_b16 {v(100,2)}, v28"); lg.issue()
        I(f"ds_read_b64_tr_b16 {v(102,2)}, v28 offset:512"); ty2 = lg.issue()
        for p in range(8):
            for hh in range(2):
                I(f"ds_read_b128 {v(CX+8*p+4*hh,4)}, v{24+hh} offset:{8192*p}"); lg.issue()
            tk.append(lg.issued)
            if p == 5:
                lg.wait(ty2)
                for e in range(8):
                    if e & 1: I(f"v_and_b32 v104, 0xffff0000, v{XR+(e>>1)}"); I(f"v_and_b32 v105, 0xffff0000, v{100+(e>>1)}")
                    else: I(f"v_lshlrev_b32 v104, 16, v{XR+(e>>1)}"); I(f"v_lshlrev_b32 v105, 16, v{100+(e>>1)}")
                    I(f"v_mul_f32 v{112+e}, v104, v105"); I(f"v_mul_f32 v{112+e}, v{112+e}, v{GR}")
                I(f"v_sub_f32 v{GR}, 1.0, v{GR}")
        for p in range(1, 8):
            lg.wait(tk[p])
            for e in range(0, 8, 2): I(f"v_pk_add_f32 {v(CX+e,2)}, {v(CX+e,2)}, {v(CX+8*p+e,2)}")
        for e in range(8): I(f"v_fmac_f32 v{112+e}, v{CX+4*(e&1)+(e>>1)}, v{GR}")
        for e in range(4): I(f"v_cvt_pk_bf16_f32 v{108+e}, v{112+2*e}, v{112+2*e+1}")
        I(f"buffer_store_dwordx4 {v(108,4)}, v{VO}, s[{RC}:{RC+3}], s49 offen{' sc1' if self.o.get('outsc1') else ' nt' if self.o.get('outnt') else ''}"); vm.issue()
        self.stamp(16)
        if self.o.get("dbgout") is not None:
            l = a.label("DB")
            I(f"s_cmp_lg_u32 s2, {self.o['dbgout']}"); I(f"s_cbranch_scc1 {l}"); I(f"s_cmp_lg_u32 s{SW}, 0"); I(f"s_cbranch_scc1 {l}")
            I("s_waitcnt vmcnt(0)")
            order = [0, 1, 2, 3, 8, 10, 11, 4, 5, 12, 6, 7, 16]
            I("v_mov_b32 v20, 0")
            for j, i in enumerate(order):
                I(f"s_mov_b32 s44, {4*i}"); I(f"v_writelane_b32 v20, s44, {j}")
            I(f"s_lshl_b32 s44, s2, 11"); I(f"s_add_u32 s44, s44, {STAMP_OFF}")
            I(f"buffer_load_dword v21, v20, s[{RWS}:{RWS+3}], s44 offen sc1"); I("s_waitcnt vmcnt(0)")
            I("v_readfirstlane_b32 s45, v21"); I("v_subrev_u32 v21, s45, v21")
            self.srd(RDBG, "dbg", 64); I("v_lshlrev_b32 v22, 2, v0")
            I(f"buffer_store_dword v21, v22, s[{RDBG}:{RDBG+3}], 0 offen")
            a.L(l)

def build(opts):
    g = G(opts); k = NAME + "_kernel"
    g.begin(k); g.proj(); g.attn(); g.tailp(); g.end(); g.attn_rare(); g.a.L("CODE_END"); g.a.I("s_endpgm")
    n = g.a.fix_hazards()
    txt = "; @launch grid=(256,1,1) block=(512,1,1) lds=163840\n"
    txt += '.amdgcn_target "amdgcn-amd-amdhsa--gfx950"\n.text\n' + g.a.text()
    txt += f""".section .rodata,"a"
.p2align 6
.amdhsa_kernel {k}
  .amdhsa_next_free_vgpr 256
  .amdhsa_next_free_sgpr 102
  .amdhsa_accum_offset 256
  .amdhsa_group_segment_fixed_size 0
  .amdhsa_kernarg_size 128
  .amdhsa_user_sgpr_count 2
  .amdhsa_user_sgpr_kernarg_segment_ptr 1
  .amdhsa_system_sgpr_workgroup_id_x 1
.end_amdhsa_kernel
"""
    print(f"instructions {sum(1 for it in g.a.items if it[0] == 'i')}, nops inserted {n}", file=sys.stderr)
    return txt

if __name__ == "__main__":
    opts = {}
    for x in sys.argv[2:]:
        if "=" in x: k_, v_ = x.split("="); opts[k_] = int(v_)
        else: opts[x] = True
    open(sys.argv[1], "w").write(build(opts))
```

```python
import sys, math, struct
sys.path.insert(0, "gen")
from asmlib import *

NAME = "gated_mix__ssm_conv_h3__compressed_kv_cla__prompt"
MB = 1 << 20
KV_OFF, Q_OFF, CTX_OFF, KVT_OFF, YT_OFF, G_OFF = 0, 32*MB, 48*MB, 64*MB, 66*MB, 68*MB
WOT_OFF = 32*MB
FLG_OFF = 68*MB + 65536
FK_OFF, FY_OFF, FC_OFF = FLG_OFF, FLG_OFF + 4096, FLG_OFF + 8192
STAMP_OFF = 69*MB
WS_SIZE = 70*MB
P = dict(q=64, k=66, v=68, shift=70, ssmk=72, ssmD=74, bx=76, ckv=78, wq=80, wuk=82, wuv=84, wo=86, gate=88, out=90, dbg=92, ws=94)
SW, SHEAD, SIDX, SWK, SF = 3, 4, 5, 6, 7
RA, RB, RC, RWS, RD, RE, RT, RDBG = 8, 12, 16, 20, 24, 28, 56, 60
MFMA = "v_mfma_f32_32x32x16_bf16"
LOG2E = 1.4426950408889634
F_KV, F_CA, F_CB, F_Y = 1, 2, 4, 8
def f2u(x): return "0x%08x" % struct.unpack("<I", struct.pack("<f", x))[0]
def rep4(b): return b * 0x01010101

class G:
    def __init__(self, opts):
        self.a = Asm(); self.o = opts
        self.vm = Cnt(self.a, "vmcnt", 63); self.lg = Cnt(self.a, "lgkmcnt", 15)
        self.st = "" if opts.get("plainst") else (" sc1 nt" if opts.get("ntst") else " sc1"); self.ld = "" if opts.get("plainld") else " sc1"
    def I(self, t): self.a.I(t)
    def srd(self, r, ptr, nbytes):
        I = self.I
        I(f"s_mov_b32 s{r}, s{P[ptr]}"); I(f"s_mov_b32 s{r+1}, s{P[ptr]+1}")
        I(f"s_mov_b32 s{r+2}, {nbytes}"); I(f"s_mov_b32 s{r+3}, 0x00020000")
    def save(self): return (self.vm.issued, self.vm.done, self.lg.issued, self.lg.done)
    def restore(self, s_): self.vm.issued, self.vm.done, self.lg.issued, self.lg.done = s_
    def stream(self, mf, fills):
        n = len(mf); slots = [[] for _ in range(n + 1)]
        for (s0, e0, cl) in fills:
            m = e0 - s0
            for j, c in enumerate(cl): slots[s0 + 1 + (j * m) // len(cl)].append(c)
        for c in slots[0]: c()
        for i in range(n):
            mf[i]()
            for c in slots[i+1]: c()
    def stamp(self, i, dyn=None):
        if self.o.get("echo") == i:
            self.I("s_memrealtime s[100:101]"); self.I("s_waitcnt lgkmcnt(0)")
        if not self.o.get("stamp"): return
        I = self.I
        I("s_memrealtime s[96:97]"); I("s_memtime s[100:101]")
        I("s_lshl_b32 s98, s2, 3"); I(f"s_add_u32 s98, s98, s{SW}"); I("s_lshl_b32 s98, s98, 8")
        I(f"s_add_u32 s98, s98, {STAMP_OFF + 4*i}")
        if dyn is not None:
            I(f"s_lshl_b32 s99, s{dyn}, 4"); I("s_add_u32 s98, s98, s99")
        I("s_waitcnt lgkmcnt(0)")
        I("v_mov_b32 v2, s96"); I("v_mov_b32 v3, 0")
        I(f"buffer_store_dword v2, v3, s[{RWS}:{RWS+3}], s98 offen")
        I("v_mov_b32 v2, s100")
        I(f"buffer_store_dword v2, v3, s[{RWS}:{RWS+3}], s98 offen offset:128")
    OOB = 0x40000000
    def publish(self, soff, val=1, srd=RWS, byte=False, idx=None):
        I = self.I
        self.oob_sel()
        if idx is not None: I(f"s_cmp_eq_u32 s{SIDX}, {idx}"); I(f"s_cselect_b32 s99, s99, {self.OOB}")
        I(f"v_mov_b32 v2, {val}"); I("v_mov_b32 v3, s99")
        I(f"buffer_store_{'byte' if byte else 'dword'} v2, v3, s[{srd}:{srd+3}], s{soff} offen sc1"); self.vm.issue()
    def oob_sel(self):
        self.I(f"s_cmp_eq_u32 s{SW}, 0"); self.I(f"s_cselect_b32 s99, 0, {self.OOB}")
    def poll_issue(self, vd, vaddr, soff, srd=RWS):
        self.I(f"buffer_load_dword v{vd}, v{vaddr}, s[{srd}:{srd+3}], {soff} offen sc1"); return self.vm.issue()
    def poll_check(self, vd, vaddr, soff, want, srd=RWS):
        a = self.a; I = self.I
        l = a.label("PCK"); lp = a.label("POLL")
        I(f"s_mov_b32 s98, {want}"); I("s_mov_b32 s99, 20000")
        a.L(lp)
        I(f"v_and_b32 v{vd}, s98, v{vd}"); I(f"v_cmp_ne_u32 vcc, s98, v{vd}"); I(f"s_cbranch_vccz {l}")
        I("s_sleep 2")
        I(f"buffer_load_dword v{vd}, v{vaddr}, s[{srd}:{srd+3}], {soff} offen sc1")
        I("s_sub_u32 s99, s99, 1"); I("s_cmp_lg_u32 s99, 0"); I("s_waitcnt vmcnt(0)"); I(f"s_cbranch_scc1 {lp}")
        a.L(l)
    def barrier(self): self.I("s_barrier")
    def sync_all(self):
        self.I("s_waitcnt vmcnt(0) lgkmcnt(0)"); self.vm.mark_all_done(); self.lg.mark_all_done(); self.barrier()

    def begin(self, kname):
        a = self.a; I = self.I
        a.T(f".globl {kname}\n.p2align 8\n.type {kname},@function"); a.L(kname)
        self.endl = a.label("END")
        if self.o.get("stamp"): I("s_memrealtime s[30:31]")
        if self.o.get("echo"): I("s_memrealtime s[96:97]")
        I("s_load_dwordx16 s[64:79], s[0:1], 0"); I("s_load_dwordx16 s[80:95], s[0:1], 64")
        I("s_cmp_ge_u32 s2, 256"); I(f"s_cbranch_scc1 {self.endl}")
        I("v_lshrrev_b32 v1, 6, v0"); I("v_and_b32 v0, 63, v0"); I(f"v_readfirstlane_b32 s{SW}, v1")
        I("s_and_b32 s7, s2, 7"); I("s_lshl_b32 s7, s7, 2")
        I(f"s_lshr_b32 s{SIDX}, s2, 3"); I(f"s_lshr_b32 s{SHEAD}, s{SIDX}, 3"); I(f"s_add_u32 s{SHEAD}, s{SHEAD}, s7")
        I(f"s_and_b32 s{SIDX}, s{SIDX}, 7"); I(f"s_lshl_b32 s{SWK}, s{SW}, 10")
        I(f"s_lshl_b32 s{SF}, s{SHEAD}, 3"); I(f"s_add_u32 s{SF}, s{SF}, s{SIDX}")
    def end(self):
        self.a.L(self.endl); self.I("s_endpgm")

    def proj(self):
        a = self.a; I = self.I; vm = self.vm; lg = self.lg
        PREP = 114688; QA_LDS = 65536
        ACCS = [64, 128]
        FX = [16, 32]; FW = [24, 40]
        VXA = 4; VWA = 8; VOX, VOW = 10, 11; VST = 12; VXH = 48
        T = 192
        I("v_lshrrev_b32 v13, 3, v0"); I(f"s_lshl_b32 s40, s{SW}, 3"); I("v_add_u32 v13, s40, v13"); I("v_lshlrev_b32 v13, 10, v13")
        I("v_lshrrev_b32 v14, 4, v0"); I(f"s_and_b32 s40, s{SW}, 1"); I("s_lshl_b32 s40, s40, 2"); I("v_add_u32 v15, s40, v14")
        I("v_and_b32 v3, 7, v0"); I("v_xor_b32 v15, v15, v3"); I(f"v_lshl_add_u32 v{VOX}, v15, 4, v13")
        I(f"s_lshl_b32 s40, s{SW}, 2"); I("v_add_u32 v13, s40, v14"); I("v_lshlrev_b32 v13, 13, v13")
        I("v_lshlrev_b32 v15, 2, v14"); I("v_and_b32 v3, 15, v0"); I("v_xor_b32 v15, v15, v3")
        I("v_lshl_add_u32 v13, v15, 4, v13"); I(f"s_lshl_b32 s40, s{SHEAD}, 8"); I(f"v_add_u32 v{VOW}, s40, v13")
        I(f"v_lshlrev_b32 v{VST}, 4, v0")
        I(f"s_lshl_b32 s44, s{SIDX}, 18")
        for i in range(1, 4): I(f"s_add_u32 s{44+i}, s44, {65536*i}")
        I("s_waitcnt lgkmcnt(0)")
        if self.o.get("stamp"): I("s_memrealtime s[28:29]")
        self.srd(RA, "ckv", 2*MB); self.srd(RB, "wuk", 4*MB)
        def xbase(t): return (32768, 131072, 0)[t % 3]
        def wbase(t): return 65536 + (t % 3)*16384
        def dma_list(t):
            L = []
            if t > 23: return L
            ph, tt = t >> 3, t & 7
            for i in range(2):
                def f(i=i):
                    I(f"s_add_u32 m0, s{SWK}, {wbase(t) + i*8192}"); I(f"s_mov_b32 s41, {tt*524288 + i*262144}")
                    r = (RB, RC, RE)[ph]
                    I(f"buffer_load_dwordx4 v{VOW}, s[{r}:{r+3}], s41 offen lds"); vm.issue()
                L.append(f)
            for i in range(4):
                def f(i=i):
                    I(f"s_add_u32 m0, s{SWK}, {xbase(t) + i*8192}"); I(f"s_add_u32 s41, s{(48 if ph == 2 else 44)+i}, {tt*128}")
                    r = RD if ph == 2 else RA
                    I(f"buffer_load_dwordx4 v{VOX}, s[{r}:{r+3}], s41 offen lds"); vm.issue()
                L.append(f)
            return L
        dtok = {}
        for f in dma_list(0): f()
        dtok[0] = vm.issued
        self.srd(RWS, "ws", WS_SIZE); self.srd(RDBG, "dbg", 256); self.srd(RC, "wuv", 4*MB)
        self.stamp(31)
        if self.o.get("stamp"):
            I("v_mov_b32 v2, s30"); I("s_sub_u32 s98, s98, 124"); I(f"buffer_store_dword v2, v3, s[{RWS}:{RWS+3}], s98 offen")
            I("v_mov_b32 v2, s28"); I(f"buffer_store_dword v2, v3, s[{RWS}:{RWS+3}], s98 offen offset:120")
        I(f"s_lshl_b32 s48, s{SIDX}, 17"); I("s_add_u32 s49, s48, 65536")
        I(f"s_sub_u32 s50, 15, s{SIDX}"); I("s_lshl_b32 s50, s50, 17"); I("s_add_u32 s51, s50, 65536")
        I(f"s_and_b32 s42, s{SW}, 3"); I("s_lshl_b32 s42, s42, 6"); I(f"s_lshr_b32 s43, s{SW}, 2"); I("s_lshl_b32 s43, s43, 1")
        I("v_and_b32 v13, 31, v0"); I("v_add_u32 v13, s42, v13")
        I("v_lshrrev_b32 v14, 1, v13"); I("v_and_b32 v14, 7, v14"); I("v_lshrrev_b32 v15, 5, v0")
        I("v_xor_b32 v14, v14, v15"); I("v_lshlrev_b32 v14, 4, v14"); I(f"v_lshl_add_u32 v{VXA}, v13, 7, v14")
        for k in range(1, 4): I(f"v_xor_b32 v{VXA+k}, {k<<5}, v{VXA}")
        for k in range(4): I(f"v_add_u32 v{VXH+k}, 0x20000, v{VXA+k}")
        I("v_bfe_u32 v13, v0, 2, 2"); I("v_lshl_add_u32 v14, v15, 3, v13"); I("v_lshlrev_b32 v14, 8, v14")
        I("v_bfe_u32 v15, v0, 4, 1"); I("v_lshl_add_u32 v14, v15, 5, v14")
        I("v_and_b32 v15, 3, v0"); I("v_lshl_add_u32 v14, v15, 3, v14"); I("v_add_u32 v14, 0x10000, v14")
        I("v_xor_b32 v13, s43, v13"); I(f"v_lshl_add_u32 v{VWA}, v13, 6, v14"); I(f"v_xor_b32 v{VWA+1}, 64, v{VWA}")
        I(f"s_lshl_b32 s54, s{SHEAD}, 4"); I(f"s_lshl_b32 s55, s{SIDX}, 1"); I("s_add_u32 s54, s54, s55")
        I(f"s_bfe_u32 s55, s{SW}, 0x10001"); I("s_add_u32 s54, s54, s55"); I("s_lshl_b32 s54, s54, 16")
        I(f"s_and_b32 s55, s{SW}, 1"); I("s_lshl_b32 s55, s55, 14"); I("s_add_u32 s54, s54, s55")
        I("s_lshl_b32 s55, s43, 10"); I("s_add_u32 s52, s54, s55"); I("s_add_u32 s52, s52, 0x8000")
        I("s_lshl_b32 s55, s43, 11"); I("s_add_u32 s54, s54, s55")

        if self.o.get("hotst"):
            I(f"s_and_b32 s54, s54, {self.o['hotst']*MB-1}"); I(f"s_and_b32 s52, s52, {self.o['hotst']*MB-1}")
        XG = T; GW = T + 4; hl = {}
        def gate_loads():
            L = []
            def E(t): L.append(lambda: I(t))
            def V(t):
                def f(): I(t); hl["t"] = vm.issue()
                L.append(f)
            E(f"s_lshl_b32 s40, s{SHEAD}, 7"); E(f"s_lshl_b32 s39, s{SIDX}, 2"); E("s_add_u32 s40, s40, s39"); E(f"s_add_u32 s40, s40, {FK_OFF}")
            E(f"v_mov_b32 v13, s40")
            E(f"s_lshr_b32 s39, s{SHEAD}, 2"); E("s_lshl_b32 s39, s39, 7"); E(f"s_and_b32 s40, s{SHEAD}, 3"); E("s_lshl_b32 s40, s40, 2"); E("s_add_u32 s39, s39, s40")
            E(f"s_lshl_b32 s40, s{SIDX}, 10"); E("s_add_u32 s40, s40, s39"); E(f"s_add_u32 s40, s40, {FC_OFF}")
            E("v_writelane_b32 v13, s40, 1")
            E(f"s_sub_u32 s40, 15, s{SIDX}"); E("s_lshl_b32 s40, s40, 10"); E("s_add_u32 s40, s40, s39"); E(f"s_add_u32 s40, s40, {FC_OFF}")
            E("v_writelane_b32 v13, s40, 2")
            E(f"s_lshl_b32 s40, s{SF}, 2"); E(f"s_add_u32 s40, s40, {FY_OFF}"); E("v_writelane_b32 v13, s40, 3"); E("v_mov_b32 v14, 0")
            def oo(): self.oob_sel(); I("v_add_u32 v13, s99, v13")
            L.append(oo)
            V(f"buffer_store_dword v14, v13, s[{RWS}:{RWS+3}], 0 offen sc1")
            E("s_lshl_b32 s37, s2, 3"); E(f"s_add_u32 s37, s37, s{SW}"); E("s_lshl_b32 s38, s37, 10")
            L.append(lambda: self.srd(RD, "q", 2*MB)); L.append(lambda: self.srd(RE, "wq", 4*MB)); L.append(lambda: self.srd(RT, "gate", 1024))
            V(f"buffer_load_dwordx4 {v(XG,4)}, v{VST}, s[{RD}:{RD+3}], s38 offen")
            V(f"buffer_load_dwordx4 {v(GW,4)}, v{VST}, s[{RT}:{RT+3}], 0 offen")
            return L
        def gate_ops():
            L = []; E = lambda t: L.append(lambda: I(t)); Z = T + 8
            L.append(lambda: vm.wait(hl["t"]))
            E(f"v_dot2_f32_bf16 v{Z}, v{XG}, v{GW}, 0")
            for i in range(1, 4): E(f"v_dot2_f32_bf16 v{Z}, v{XG+i}, v{GW+i}, v{Z}")
            for m in ("quad_perm:[1,0,3,2] row_mask:0xf", "quad_perm:[2,3,0,1] row_mask:0xf", "row_half_mirror row_mask:0xf", "row_mirror row_mask:0xf",
                      "row_bcast:15 row_mask:0xa", "row_bcast:31 row_mask:0xc"):
                E(f"v_add_f32_dpp v{Z}, v{Z}, v{Z} {m} bank_mask:0xf")
            E(f"v_readlane_b32 s36, v{Z}, 63"); E(f"v_mov_b32 v{Z+1}, {f2u(-LOG2E)}"); E(f"v_mul_f32 v{Z}, s36, v{Z+1}")
            E(f"v_exp_f32 v{Z}, v{Z}"); E(f"v_add_f32 v{Z}, 1.0, v{Z}"); E(f"v_rcp_f32 v{Z}, v{Z}")
            E("s_lshl_b32 s38, s37, 2"); E(f"s_add_u32 s38, s38, {G_OFF}"); E(f"v_mov_b32 v{Z+1}, 0")
            def gs():
                I(f"buffer_store_dword v{Z}, v{Z+1}, s[{RWS}:{RWS+3}], s38 offen{self.st}"); vm.issue()
            L.append(gs)
            return L
        def reads(t, k):
            st = k & 1; toks = {}
            xb = xbase(t); va = VXA if xb < 65536 else VXH
            def rx(mt):
                I(f"ds_read_b128 {v(FX[st]+4*mt,4)}, v{va+k} offset:{(xb & 65535)+mt*4096}"); toks[("x",mt)] = lg.issue()
            def rw(dt, h):
                I(f"ds_read_b64_tr_b16 {v(FW[st]+4*dt+2*h,2)}, v{VWA+dt} offset:{wbase(t)-65536+k*4096+h*1024}"); toks[("w",dt)] = lg.issue()
            return [lambda: rx(0), lambda: rw(0,0), lambda: rw(0,1), lambda: rw(1,0), lambda: rw(1,1), lambda: rx(1)], toks
        def mfs(t, k, toks):
            st = k & 1; L = []; ph = t >> 3; acc = ACCS[ph & 1]; first = (t & 7) == 0 and k == 0
            for mt in range(2):
                for dt in range(2):
                    def f(mt=mt, dt=dt):
                        lg.wait(max(toks[("x",mt)], toks[("w",dt)]))
                        d = v(acc + 16*(2*mt+dt), 16); X = v(FX[st]+4*mt,4); W = v(FW[st]+4*dt,4)
                        c = "0" if first else d
                        I(f"{MFMA} {d}, {X}, {W}, {c}" if ph == 1 else f"{MFMA} {d}, {W}, {X}, {c}")
                    L.append(f)
            return L
        def kv_out(ph):
            acc = ACCS[ph & 1]; out = []
            for tile in range(4):
                rt, dt = tile >> 1, tile & 1; b = acc + 16*tile
                for half in range(2):
                    pk = [lambda i=i, b=b: I(f"v_cvt_pk_bf16_f32 v{b+i}, v{b+2*i}, v{b+2*i+1}") for i in range(4*half, 4*half+4)]
                    if ph == 0: pk = [lambda i=i, b=b: I(f"v_mul_f32 v{b+i}, {f2u(LOG2E / math.sqrt(128.0))}, v{b+i}") for i in range(8*half, 8*half+8)] + pk
                    off = rt*8192 + (dt*2048 + half*1024 if ph == 0 else half*4096 + dt*1024)
                    def st(b=b, half=half, off=off):
                        if self.o.get("nost"): return
                        I(f"s_add_u32 s41, s{(54, 52)[ph]}, {off}")
                        I(f"buffer_store_dwordx4 {v(b+4*half,4)}, v{VST}, s[{RWS}:{RWS+3}], s41 offen{self.st}"); vm.issue()
                    out.append(pk + [st])
            return out
        side = {}; late = {}
        def spread(ops, t0, t1):
            sl = [(t, k) for t in range(t0, t1) for k in range(3)]
            n = len(ops)
            for j, key in enumerate(sl): side.setdefault(key, []).extend(ops[n*j//len(sl): n*(j+1)//len(sl)])
        KS = self.o.get("ks", 8); PG = self.o.get("pg", 0)
        spread(gate_loads(), PG, PG + 1); spread(gate_ops(), PG + 3, PG + 5)
        def wtouch(r, half, wv):
            def f():
                I(f"s_cmp_eq_u32 s{SW}, {wv}"); I(f"s_cselect_b32 s99, 0, {self.OOB}")
                I(f"s_lshl_b32 s40, s{SIDX}, 19"); I(f"s_lshl_b32 s39, s{SHEAD}, 8"); I("s_add_u32 s40, s40, s39"); I(f"s_add_u32 s40, s40, {half*32*8192}")
                I("v_lshrrev_b32 v3, 1, v0"); I("v_lshlrev_b32 v3, 13, v3"); I("v_and_b32 v2, 1, v0"); I("v_lshl_add_u32 v3, v2, 7, v3"); I("v_add_u32 v3, s99, v3")
                I(f"buffer_load_dword v1, v3, s[{r}:{r+3}], s40 offen"); vm.issue()
            return f
        t0 = self.o.get("wt", 1); t1 = self.o.get("wt2", 4)
        for j, (r, half) in enumerate(((RC, 0), (RC, 1), (RE, 0), (RE, 1))): side.setdefault(((t0 + j) if j < 2 else (t1 + j - 2), 2), []).append(wtouch(r, half, j))
        VS = self.o.get("vstages", 5)
        for ph, t0, t1 in ((0, KS, 16), (1, 16, 16 + VS)):
            pieces = kv_out(ph); sl = [(t, k) for t in range(t0, t1) for k in range(3)]
            for j, pc in enumerate(pieces):
                tt = t0 + (j * (t1 - t0)) // 8
                hh = len(pc) - 5
                side.setdefault((tt, 0), []).extend(pc[:hh]); side.setdefault((tt, 1), []).extend(pc[hh:-1]); late.setdefault(tt, []).append(pc[-1])
        QE = []; EQ = lambda t: QE.append(lambda: I(t))
        EQ(f"s_and_b32 s55, s{SW}, 2"); EQ("s_lshl_b32 s55, s55, 15"); EQ(f"s_add_u32 s55, s55, {QA_LDS}")
        EQ(f"s_and_b32 s54, s{SW}, 1"); EQ("s_lshl_b32 s54, s54, 14"); EQ("s_add_u32 s55, s55, s54")
        EQ("s_lshl_b32 s54, s43, 11"); EQ("s_add_u32 s55, s55, s54"); EQ(f"v_add_u32 v14, s55, v{VST}"); EQ("v_mov_b32 v54, v13")
        spread(QE, 23, 24)
        spread([lambda r=r: I(f"v_mov_b64 {v(192+2*r,2)}, 0") for r in range(32)], 22, 24)
        def fkoff():
            I(f"s_lshl_b32 s40, s{SHEAD}, 7"); I(f"s_lshl_b32 s41, s{SIDX}, 2"); I("s_add_u32 s40, s40, s41"); I(f"s_add_u32 s40, s40, {FK_OFF}")
        def w0only(fn):
            l = a.label("NP"); I(f"s_cmp_lg_u32 s{SW}, 0"); I(f"s_cbranch_scc1 {l}"); fn(); a.L(l)

        def ctouch():
            I(f"s_cmp_eq_u32 s{SW}, 0"); I(f"s_cselect_b32 s99, 0, {self.OOB}"); I("v_lshl_add_u32 v3, v0, 7, s99"); I("s_lshl_b32 s40, s2, 13")
            I(f"buffer_load_dword v1, v3, s[{RA}:{RA+3}], s40 offen"); vm.issue()
        if self.o.get("ct", 1):
            lp = a.label("PC")
            I(f"s_getpc_b64 s[{RT}:{RT+1}]"); a.L(lp)
            I(f"s_mov_b32 s{RT+2}, CODE_END-{lp}"); I(f"s_mov_b32 s{RT+3}, 0x00020000")
            I(f"s_cmp_eq_u32 s{SW}, 7"); I(f"s_cselect_b32 s99, 0, {self.OOB}"); I(f"s_and_b32 s40, s{SF}, 7"); I("s_lshl_b32 s40, s40, 13"); I("s_add_u32 s99, s99, s40")
            I("v_lshl_add_u32 v3, v0, 7, s99")
            I(f"buffer_load_dword v1, v3, s[{RT}:{RT+3}], 0 offen"); vm.issue()
        if self.o.get("sb", 1): self.barrier()
        for f in dma_list(1): f()
        dtok[1] = vm.issued
        T0 = [wtouch(RB, 0, 1), wtouch(RB, 1, 2), ctouch] if not self.o.get("not0k") else []
        if self.o.get("t0pre"):
            for f in T0: f()
            T0 = []
        vm.wait(dtok[0]); self.barrier()
        self.stamp(1)
        L, toks = reads(0, 0)
        for f in L: f()
        for f in T0: f()
        mark = {}; TZ = PG + 2
        pend = dma_list(2)
        for t in range(24):
            for k in range(4):
                M = mfs(t, k, toks)
                if k < 3:
                    L, nt = reads(t, k+1)
                    D, pend = pend[:self.o.get("dper", 2)], pend[self.o.get("dper", 2):]
                    fl = [(0, 3, L)]
                    if D: fl.append((0, 4, D))
                    if side.get((t, k)): fl.append((0, 4, side[(t, k)]))
                    if k == 2 and late.get(t): fl.append((0, 4, late[t]))
                    self.stream(M, fl); toks = nt
                    if not pend and (t + 2) not in dtok: dtok[t+2] = vm.issued
                    if k == 2: mark[t] = vm.issued
                    if t == 17 and k == 0:
                        self.oob_sel(); I("v_lshl_add_u32 v13, v0, 2, s99"); td = self.poll_issue(14, 13, "0", RDBG)
                    if t == 20 and k == 0:
                        self.oob_sel(); I("v_and_b32 v13, 7, v0"); I("v_lshl_add_u32 v13, v13, 2, s99")
                        I(f"s_lshl_b32 s53, s{SHEAD}, 7"); I(f"s_add_u32 s53, s53, {FK_OFF}")
                        tp = self.poll_issue(15, 13, "s53")
                elif t < 23:
                    assert not pend
                    if t == 19: vm.wait(td); w0only(lambda: self.poll_check(14, 13, "0", rep4(1), RDBG))
                    if t == 21: vm.wait(tp); w0only(lambda: self.poll_check(15, 13, "s53", 1))
                    lg.wait(lg.issued); vm.wait(dtok[t+1])
                    if t == TZ: vm.wait(mark[TZ-2])
                    if t == 17: vm.wait(mark[15])
                    if t == 16 + VS: vm.wait(mark[15 + VS])
                    self.barrier()
                    ps = self.o.get("pstamp")
                    if ps is not None and 0 <= t - int(ps) + 1 < 13: self.stamp(17 + t - int(ps) + 1); vm.issue(2)
                    PB = []
                    if TZ <= t < TZ + 8: PB.append(lambda t=t: self.publish(SF, 1, RDBG, True, idx=t - TZ))
                    if t == 17: PB.append(lambda: (fkoff(), self.publish(40, 1)))
                    if t == 16 + VS: PB.append(lambda: (fkoff(), self.publish(40, 3)))
                    L, nt = reads(t+1, 0)
                    pend = dma_list(t+3)
                    if t == 21:
                        def k0(i):
                            I(f"s_lshl_b32 s40, s{SW}, 12"); I("s_add_u32 m0, s40, 0x8000")
                            I(f"s_lshl_b32 s41, s{SHEAD}, 20"); I("s_add_u32 s41, s41, s40")
                            I(f"buffer_load_dwordx4 v{VST}, s[{RWS}:{RWS+3}], s41 offen offset:{1024*i}{self.ld} lds"); vm.issue()
                        pend = [lambda i=i: k0(i) for i in range(4)]
                    D, pend = pend[:self.o.get("dper", 2)], pend[self.o.get("dper", 2):]
                    self.stream(M, [(0, 3, L)] + ([(1, 2, PB)] if PB else []) + ([(0, 4, D)] if D else [])); toks = nt
                    if not pend: dtok[t+3] = vm.issued
                else:
                    self.stream(M, [])
            if t == 7: self.stamp(2)
        self.stamp(3)
        def vc(): self.poll_check(55, 54, "s53", 3)
        QACC = ACCS[0]
        self.poll_issue(55, 54, "s53")
        for tile in range(4):
            rt, dt = tile >> 1, tile & 1; b = QACC + 16*tile
            for i in range(8): I(f"v_cvt_pk_bf16_f32 v{b+i}, v{b+2*i}, v{b+2*i+1}")
            for half in range(2):
                I(f"ds_write_b128 v14, {v(b+4*half,4)} offset:{rt*8192+dt*2048+half*1024}"); lg.issue()
        self.attn_setup()
        vm.wait(vm.issued); w0only(vc)
        lg.wait(lg.issued); self.barrier()

    def attn_setup(self): self.attn(True)
    def attn(self, setup=False):
        a = self.a; I = self.I; vm = self.vm; lg = self.lg; stream = self.stream
        ML = 159744; QA_LDS = 65536; QB_LDS = 131072
        O = 192; QF = 160; NM = 144; S = [112, 128]; PP = [96, 104]; RING = 64; NR = 8; E = 56; PK = 16
        VK, VV, VL16, LRUN, LU, THR, NINF, VQ, TMP, LA = 4, 5, 6, 7, 8, 9, 10, 11, 12, 14
        SR, SG, SC1, SC2, SKO, SVO, SKM, SVM, STH = 32, 33, 34, 35, 36, 37, 38, 39, 42
        SMK, SFIN, SCA, SM1 = 54, 55, 59, 58
        DC = self.o.get("dmacost", 16); WEV = self.o.get("wev", 2)
        if setup:
            I(f"s_and_b32 s{SR}, s{SW}, 3"); I(f"s_lshr_b32 s{SG}, s{SW}, 2")
            I(f"v_lshlrev_b32 v{VL16}, 4, v0")
            I(f"s_lshl_b32 s44, s{SR}, 13"); I(f"s_add_u32 s44, s44, {QB_LDS}"); I(f"v_add_u32 v{VQ}, s44, v{VL16}")
            I(f"s_lshl_b32 s45, s{SG}, 16"); I(f"v_subrev_u32 v{TMP+1}, s45, v{VQ}")
            I(f"s_mov_b32 s{SC1}, s{SIDX}")
            I(f"s_lshl_b32 s{SC2}, s{SIDX}, 1"); I(f"s_sub_u32 s{SC2}, 14, s{SC2}")
            I(f"s_cmp_eq_u32 s{SG}, 1"); I(f"s_cselect_b32 s{SM1}, 0, -1")
            I(f"s_lshl_b32 s43, s{SW}, 12"); I(f"s_lshl_b32 s{SVO}, s{SHEAD}, 20"); I(f"s_add_u32 s{SVO}, s{SVO}, s43")
            I(f"s_add_u32 s{SKO}, s{SVO}, 0x10000"); I(f"s_add_u32 s{SVO}, s{SVO}, 0x8000")
            I(f"s_mov_b32 s{SKM}, s43"); I(f"s_add_u32 s{SVM}, s43, 0x18000")
            I(f"s_mov_b32 s{STH}, {f2u(4096.0)}"); I(f"v_mov_b32 v{NINF}, 0xff800000")
            I(f"v_and_b32 v{THR}, 31, v0"); I(f"s_lshl_b32 s44, s{SR}, 5"); I(f"v_add_u32 v{THR}, s44, v{THR}")
            I(f"v_lshrrev_b32 v{TMP}, 5, v0"); I(f"v_lshlrev_b32 v{TMP}, 2, v{TMP}"); I(f"v_sub_u32 v{THR}, v{THR}, v{TMP}")
            I(f"v_add_u32 v{VK}, 0x8000, v{VL16}")
            I(f"s_lshl_b32 s{SCA}, s{SIDX}, 2"); I(f"s_add_u32 s{SCA}, s{SCA}, s{SR}"); I(f"s_lshl_b32 s{SCA}, s{SCA}, 5"); I(f"s_add_u32 s{SCA}, s{SCA}, s{SHEAD}")
            I(f"s_lshl_b32 s{SCA}, s{SCA}, 13"); I(f"s_add_u32 s{SCA}, s{SCA}, {CTX_OFF}")
            I(f"s_mov_b32 s{SFIN}, 0")
            if self.o.get("map84", 1):
                I(f"s_lshr_b32 s56, s{SF}, 6"); I("s_lshl_b32 s56, s56, 3"); I(f"s_bfe_u32 s44, s{SF}, 0x30002"); I("s_add_u32 s56, s56, s44")
                I(f"s_bfe_u32 s57, s{SF}, 0x10005"); I("s_lshl_b32 s57, s57, 2"); I(f"s_and_b32 s44, s{SF}, 3"); I("s_add_u32 s57, s57, s44")
                I(f"s_and_b32 s40, s{SF}, 63"); I("s_lshl_b32 s40, s40, 16")
            else:
                I(f"s_mov_b32 s56, s{SHEAD}"); I(f"s_mov_b32 s57, s{SIDX}")
                I(f"s_and_b32 s40, s{SF}, 31"); I("s_lshl_b32 s40, s40, 17")
            I(f"s_lshl_b32 s44, s{SW}, 13"); I("s_add_u32 s40, s40, s44"); I(f"s_add_u32 s40, s40, {WOT_OFF}")
            self.srd(RB, "ssmk", 2*MB); self.srd(RA, "k", 2*MB); self.srd(RC, "v", 2*MB); self.srd(RD, "shift", 4096); self.srd(RE, "wo", 4*MB)
            I("s_mov_b32 s41, 0")
            if not self.o.get("noprio"):
                l = a.label("PR"); I(f"s_cmp_eq_u32 s{SG}, 1"); I(f"s_cbranch_scc0 {l}"); I("s_setprio 1"); a.L(l)
            return
        def loadq(va):
            qt = []
            for ds in range(8):
                I(f"ds_read_b128 {v(QF+4*ds,4)}, v{va} offset:{1024*ds}"); qt.append(lg.issue())
            return qt
        op = lambda t, c=4: (lambda: I(t), c)
        def dma4(kind):
            sm, so = (SKM, SKO) if kind == "k" else (SVM, SVO)
            def d(i):
                def f():
                    if i == 0: I(f"s_mov_b32 m0, s{sm}"); I(f"s_xor_b32 s{sm}, s{sm}, 0x8000")
                    if not (self.o.get("a_nodma") and i):
                        I(f"buffer_load_dwordx4 v{VL16}, s[{RWS}:{RWS+3}], s{so} offen offset:{1024*i}{self.ld} lds")
                    if i == 3: I(f"s_add_u32 s{so}, s{so}, 0x10000")
                return (f, DC + (8 if i == 0 else 4 if i == 3 else 0))
            return [d(i) for i in range(4)]
        self.ring_n = 0
        def rd(kind, sl, idx):
            h = {}
            def f():
                slot = self.ring_n % NR; self.ring_n += 1
                h["reg"] = RING + 4*slot
                I(f"ds_read_b128 {v(h['reg'],4)}, v{VK if kind == 'k' else VV} offset:{sl*8192+idx*1024}"); h["tok"] = lg.issue()
            return f, h
        def wait_for(R, i):
            if R[i][1]["tok"] <= lg.done: return
            j = i
            while j + 1 < len(R) and j + 1 < i + WEV and "tok" in R[j+1][1] and R[j+1][1]["tok"] > R[i][1]["tok"]: j += 1
            lg.wait(R[j][1]["tok"])
        def mf_qk(sb, ds, R, i, czero=False):
            wait_for(R, i)
            c = (("0" if czero else v(NM,16)) if ds == 0 else v(S[sb],16))
            I(f"{MFMA} {v(S[sb],16)}, {v(R[i][1]['reg'],4)}, {v(QF+4*ds,4)}, {c}")
        def mf_pv(pb, idx, R, i=None, reg=None):
            ks, dt = idx >> 2, idx & 3
            if reg is None: wait_for(R, i); reg = R[i][1]["reg"]
            I(f"{MFMA} {v(O+16*dt,16)}, {v(reg,4)}, {v(PP[pb]+4*ks,4)}, {v(O+16*dt,16)}")
        def sm_ops(sb):
            L = []
            ex = lambda i: op(f"v_exp_f32 v{E+(i&7)}, v{S[sb]+i}", 8)
            def post(j):
                r = []; e0, e1 = E + ((2*j) & 7), E + ((2*j+1) & 7)
                if j == 0: r.append(op(f"v_add_f32 v{LU}, v{e0}, v{e1}"))
                else: r += [op(f"v_add_f32 v{LU}, v{LU}, v{e0}"), op(f"v_add_f32 v{LU}, v{LU}, v{e1}")]
                r.insert(1 if j else 0, op(f"v_cvt_pk_bf16_f32 v{PP[sb]+j}, v{e0}, v{e1}"))
                return r
            L += [ex(0), ex(1)]
            for j in range(8):
                p = post(j)
                L += ([ex(2*j+2), p[0], ex(2*j+3)] + p[1:]) if j < 7 else p
            if self.o.get("a_nosm"): L = [(lambda: None, 0) if i > 3 else x for i, x in enumerate(L)]
            return L
        def sched(M, fixed, chain):
            n = len(M); fc = [sum(c for _, c in fixed.get(g, [])) for g in range(n)]
            tot = sum(c for _, c in chain)
            lo, hi = 0.0, 4000.0
            for _ in range(40):
                lev = (lo + hi) / 2
                if sum(max(0, lev - f) for f in fc) >= tot: hi = lev
                else: lo = lev
            k = 0; credit = 0.0
            for g in range(n):
                M[g]()
                for c, _ in fixed.get(g, []): c()
                credit += max(0, hi - fc[g])
                while k < len(chain) and (g == n - 1 or chain[k][1] <= credit + 2):
                    chain[k][0](); credit -= chain[k][1]; k += 1
        def put(fixed, g, items): fixed.setdefault(g, []).extend(items)
        SPL = self.o.get("spl", 26)
        ool = []
        def rarely(cmp_, body):
            lo = a.label("OOL"); lb = a.label("RET")
            I(cmp_); I(f"s_cbranch_scc1 {lo}"); a.L(lb)
            ool.append((lo, lb, body))
        def mask_body(sb, koff):
            prs = [46, 48, 50, 52]
            if koff >= 64:
                I(f"v_subrev_u32 v{TMP+3}, 64, v{THR}"); tr = TMP + 3; koff -= 64
            elif koff < 0:
                I(f"s_lshl_b32 s44, s{SG}, 6"); I(f"v_subrev_u32 v{TMP+3}, s44, v{THR}"); tr = TMP + 3; koff = -koff - 1
            else: tr = THR
            for r0 in range(0, 16, 4):
                for r in range(r0, r0+4):
                    I(f"v_cmp_lt_i32 s[{prs[r&3]}:{prs[r&3]+1}], v{tr}, {(r & 3) + 8*(r >> 2) + koff}")
                for r in range(r0, r0+4):
                    I(f"v_cndmask_b32 v{S[sb]+r}, v{S[sb]+r}, v{NINF}, s[{prs[r&3]}:{prs[r&3]+1}]")
        def rowmax(sb, dst):
            b = S[sb]
            I(f"v_max3_f32 v{dst}, v{b}, v{b+1}, v{b+2}")
            for i in range(3, 15, 2): I(f"v_max3_f32 v{dst}, v{dst}, v{b+i}, v{b+i+1}")
            I(f"v_max_f32 v{dst}, v{dst}, v{b+15}"); I(f"v_mov_b32 v{dst+1}, v{dst}")
            I(f"v_permlane32_swap_b32 v{dst}, v{dst+1}"); I(f"v_max_f32 v{dst}, v{dst}, v{dst+1}")
        def init_max():
            rowmax(0, TMP)
            I(f"v_max_f32 v{TMP}, {f2u(-1e30)}, v{TMP}")
            for r in range(16): I(f"v_sub_f32 v{NM+r}, 0, v{TMP}")
            return [op(f"v_sub_f32 v{S[0]+r}, v{S[0]+r}, v{TMP}") for r in range(16)]
        rare = []
        def check(sb, other=True):
            def f():
                lr = a.label("RARE"); lb = a.label("BACK")
                I(f"v_cmp_nge_f32 vcc, s{STH}, v{LU}")
                if self.o.get("a_nocheck"): I("s_mov_b64 vcc, 0")
                I(f"s_cbranch_vccnz {lr}"); a.L(lb)
                I(f"v_add_f32 v{LRUN}, v{LRUN}, v{LU}")
                rare.append((lr, lb, sb, other))
            return f
        def fin_body():
            I(f"v_mov_b32 v{TMP}, v{LA}"); I(f"s_mov_b32 s{SFIN}, 2"); I("s_nop 0")
            I(f"v_permlane32_swap_b32 v{TMP}, v{LA}"); I(f"v_add_f32 v{TMP}, v{TMP}, v{LA}"); I(f"v_rcp_f32 v{TMP}, v{TMP}"); I(f"v_mov_b32 v{TMP+1}, v{TMP}")
            for q in range(8):
                for i in range(8*q, 8*q+8, 2): I(f"v_pk_mul_f32 {v(O+i,2)}, {v(O+i,2)}, {v(TMP,2)}")
                for i in range(4): I(f"v_cvt_pk_bf16_f32 v{PK+4*q+i}, v{O+8*q+2*i}, v{O+8*q+2*i+1}")
                for i in range(8*q, 8*q+8, 2): I(f"v_mov_b64 {v(O+i,2)}, 0")
        def st_body():
            I(f"s_add_u32 s44, s{SCA}, 4096"); I(f"s_mov_b32 s{SFIN}, 3")
            for q in range(8):
                I(f"buffer_store_dwordx4 {v(PK+4*q,4)}, v{VL16}, s[{RWS}:{RWS+3}], s{SCA if q < 4 else 44} offen offset:{1024*(q&3)}{self.st}")
        TR = [RING + 4*(2+i) for i in range(6)]
        def head(R, vmw, with_mfma=True, post=()):
            rf = [(f, 4) for f, h in R]; sm2 = sm_ops(0)[SPL:]
            nop = lambda: None
            def first():
                I("s_waitcnt lgkmcnt(4)"); mf_pv(1, 2, None, reg=TR[0])
            M = [first] + [lambda i=i: mf_pv(1, 2+i, None, reg=TR[i]) for i in range(1, 6)] if with_mfma else [nop]*6
            nb = self.o.get("nb", 4)
            sched(M[:2], {}, sm2[:nb])
            vmw(); I("s_waitcnt lgkmcnt(0)"); lg.mark_all_done(); self.barrier(); self.ring_n = 0
            fx = {0: rf[0:2], 1: rf[2:5], 2: rf[5:6], 3: rf[6:7] + [(nop, 12 + 8*len(post))]}
            sched(M[2:], fx, sm2[nb:])
            check(0)()
            for p in post: p()
        def mk_reads():
            return ([rd("k", 0, i) for i in range(8)] + [rd("v", 0, i) for i in range(8)] +
                    [rd("k", 1, i) for i in range(8)] + [rd("v", 1, i) for i in range(8)])
        def mid(R, dmas, kx, mb=None, trans=False, endops=(), extra=None):
            rf = [(f, 4) for f, h in R]
            M = [lambda i=i: mf_qk(0, i, R, i, trans) for i in range(8)] + [lambda i=i: mf_pv(0, i, R, 8+i) for i in range(8)]
            fx = {}
            for g in range(16): put(fx, g, [rf[7+g]])
            D = sum((dma4(k) for k in dmas), [])
            DS = self.o.get("dstep", 2)
            spill = []
            for n, d in enumerate(D):
                g = n * DS * (2 if len(D) == 4 and not extra else 1)
                if g < 15: put(fx, g, [d])
                else: spill.append((g - 16 if g >= 16 else 0, d))
            put(fx, 15, [(lambda: None, 20)])
            if extra:
                X0 = self.o.get("x0", 8); ng = 16 - X0 + 9; per = -(-len(extra) // ng)
                put(fx, X0, [op("s_waitcnt vmcnt(4)")])
                for g in range(X0, 16): put(fx, g, extra[(g-X0)*per:(g-X0+1)*per])
                for g in range(9): spill += [(g, x) for x in extra[(16-X0+g)*per:(16-X0+g+1)*per]]
            sched(M, fx, sm_ops(1))
            check(1, other=not trans)()
            if mb: mb()
            pre = []
            if trans:
                I(f"v_mov_b32 v{LA}, v{LRUN}"); I(f"v_mov_b32 v{LRUN}, 0"); I(f"s_mov_b32 s{SFIN}, 1")
                pre = init_max()
            M = [lambda i=i: mf_qk(1, i, R, 16+i) for i in range(8)] + [lambda i=i: mf_pv(1, i, R, 24+i) for i in range(2)]
            fx = {}
            for g in range(9): put(fx, g, [rf[23+g]])
            for g, d in spill: put(fx, g, [d])
            put(fx, 8, [op(f"v_xor_b32 v{VV}, 0x10000, v{VK}")] + kx)
            for n, e in enumerate(endops): put(fx, 7 - n, [e])
            put(fx, 9, [(lambda: None, 16)])
            sched(M, fx, pre + sm_ops(0)[:SPL])
            assert [R[26+i][1]["reg"] for i in range(6)] == TR
        vm4 = lambda: I("s_waitcnt vmcnt(4)")
        vm0 = lambda: I("s_waitcnt vmcnt(0)")
        def vm08():
            lo = a.label("W8"); lb = a.label("W8R")
            I(f"s_cmp_eq_u32 s{SFIN}, 3"); I(f"s_cbranch_scc1 {lo}"); I("s_waitcnt vmcnt(%d)" % self.o.get("a_vm", 0)); a.L(lb)
            def b(): I("s_waitcnt vmcnt(8)"); I(f"s_mov_b32 s{SFIN}, 4")
            ool.append((lo, lb, b))
        m1 = lambda sb, ko: (lambda: rarely(f"s_cmp_eq_u32 s{SC1}, s{SM1}", lambda: mask_body(sb, ko)))
        fin = lambda: rarely(f"s_cmp_eq_u32 s{SFIN}, 1", fin_body)
        sta = (lambda: rarely(f"s_cmp_eq_u32 s{SFIN}, 2", st_body), 8)

        KR, VR, SH, WO, AD = 16, 23, 28, 32, 40
        def side_loads():
            L = []; E = lambda t: L.append(op(t)); V = lambda t: L.append(op(t, DC))
            E(f"v_lshrrev_b32 v{AD}, 5, v0"); E(f"v_and_b32 v{AD+1}, 31, v0"); E(f"v_lshlrev_b32 v{AD+2}, 12, v{AD}"); E(f"v_lshl_add_u32 v{AD+2}, v{AD+1}, 2, v{AD+2}")
            E(f"s_lshl_b32 s60, s{SF}, 14"); E(f"s_lshl_b32 s61, s{SW}, 7"); E("s_add_u32 s60, s60, s61"); E("s_add_u32 s61, s60, 8192")
            for j in range(8): V(f"buffer_load_dword v{WO+j}, v{AD+2}, s[{RE}:{RE+3}], s{60+(j>>2)} offen offset:{1024*(j&3)}")
            E("s_lshr_b32 s62, s2, 3"); E("s_lshl_b32 s62, s62, 16"); E(f"s_lshl_b32 s63, s{SW}, 13"); E("s_add_u32 s62, s62, s63")
            E("s_and_b32 s63, s2, 7"); E("s_lshl_b32 s63, s63, 7"); E("s_add_u32 s62, s62, s63"); E(f"v_add_u32 v{AD+3}, s62, v{AD+2}")
            for i in range(3): E(f"v_subrev_u32 v{AD+4+i}, {3072-1024*i}, v{AD+3}")
            E("s_lshl_b32 s63, s63, 2"); E(f"v_lshl_add_u32 v{AD+7}, v{AD+1}, 4, s63")
            for i in range(3): V(f"buffer_load_dword v{KR+i}, v{AD+4+i}, s[{RA}:{RA+3}], 0 offen")
            for i in range(4): V(f"buffer_load_dword v{KR+3+i}, v{AD+3}, s[{RA}:{RA+3}], 0 offen offset:{1024*i}")
            for i in range(4): V(f"buffer_load_dword v{VR+i}, v{AD+3}, s[{RC}:{RC+3}], 0 offen offset:{1024*i}")
            V(f"buffer_load_dwordx4 {v(SH,4)}, v{AD+7}, s[{RD}:{RD+3}], 0 offen")
            E(f"s_lshl_b32 s60, s{SF}, 13"); E(f"s_add_u32 s60, s60, s{SWK}"); E(f"v_and_b32 v27, 7, v0"); E("v_lshlrev_b32 v27, 7, v27")
            V(f"buffer_load_dword v1, v27, s[{RB}:{RB+3}], s60 offen")
            return L
        NSL = 21
        def side_math():
            L = []; E = lambda t: L.append(op(t)); V = lambda t: L.append(op(t, DC))
            W2 = 48
            E("s_mov_b32 s60, 0x05040100"); E("s_mov_b32 s61, 0x07060302")
            for j in range(4): E(f"v_perm_b32 v{W2+j}, v{WO+2*j+1}, v{WO+2*j}, s60")
            for j in range(4): E(f"v_perm_b32 v{W2+4+j}, v{WO+2*j+1}, v{WO+2*j}, s61")
            E(f"s_lshl_b32 s60, s{SW}, 8"); E(f"s_add_u32 s60, s60, s{SF}"); E("s_lshl_b32 s60, s60, 11"); E(f"s_add_u32 s60, s60, {WOT_OFF}")
            for mt in range(2): V(f"buffer_store_dwordx4 {v(W2+4*mt,4)}, v{VL16}, s[{RWS}:{RWS+3}], s60 offen offset:{1024*mt}{self.st}")
            KU, SU, OO, VU, PQ = 32, 42, 48, 39, 52
            for c in range(2):
                def unp(d, sreg, half): E(f"v_lshlrev_b32 v{d}, 16, v{sreg}" if half == 0 else f"v_and_b32 v{d}, 0xffff0000, v{sreg}")
                for i in range(7): unp(KU+i, KR+i, c)
                for j in range(4): unp(SU+j, SH + 2*c + (j >> 1), j & 1)
                for o in range(4):
                    E(f"v_mul_f32 v{OO+o}, v{KU+o}, v{SU+3}")
                    for j in (2, 1, 0): E(f"v_fmac_f32 v{OO+o}, v{KU+o+3-j}, v{SU+j}")
                    unp(VU, VR+o, c)
                    E(f"v_mul_f32 v{OO+o}, v{OO+o}, v{VU}")
                d = PQ + 2*(1-c)
                E(f"v_cvt_pk_bf16_f32 v{d}, v{OO+3}, v{OO+2}"); E(f"v_cvt_pk_bf16_f32 v{d+1}, v{OO+1}, v{OO}")
            E(f"v_lshlrev_b32 v{AD+1}, 5, v{AD+1}"); E(f"v_lshl_add_u32 v{AD+1}, v{AD}, 4, v{AD+1}")
            E(f"v_permlane32_swap_b32 v{PQ+2}, v{PQ}"); E(f"v_permlane32_swap_b32 v{PQ+3}, v{PQ+1}")
            E("s_lshr_b32 s60, s2, 3"); E("s_lshl_b32 s60, s60, 16"); E(f"s_lshl_b32 s61, s{SW}, 13"); E("s_add_u32 s60, s60, s61")
            E("s_and_b32 s61, s2, 7"); E("s_lshl_b32 s61, s61, 10"); E("s_add_u32 s60, s60, s61"); E(f"s_add_u32 s60, s60, {KVT_OFF}")
            V(f"buffer_store_dwordx4 {v(PQ,4)}, v{AD+1}, s[{RWS}:{RWS+3}], s60 offen{self.st}")
            return L
        def spub_body():
            l1 = a.label("SM"); l2 = a.label("SP")
            I("s_add_u32 s41, s41, 1"); I(f"s_add_u32 s44, s41, s{SG}"); I("s_cmp_lg_u32 s44, 2"); I(f"s_cbranch_scc1 {l1}")
            for c, _ in side_math(): c()
            a.L(l1)
            I("s_cmp_lg_u32 s41, 4"); I(f"s_cbranch_scc1 {l2}")
            I(f"s_lshl_b32 s44, s{SF}, 2"); I(f"s_add_u32 s44, s44, {FY_OFF}")
            sv = self.save(); self.publish(44, 2); self.restore(sv)
            a.L(l2)
        spub = lambda: rarely("s_cmp_lt_u32 s41, 4", spub_body)
        def snap():
            self.oob_sel(); I("v_lshl_add_u32 v49, v0, 4, s99"); I(f"s_mov_b32 s60, {FY_OFF}")
            I(f"buffer_load_dwordx4 v[52:55], v49, s[{RWS}:{RWS+3}], s60 offen sc1")
        def side_check():
            l = a.label("SCK"); lp = a.label("SPL")
            I(f"s_cmp_lg_u32 s{SW}, 0"); I(f"s_cbranch_scc1 {l}")
            I("s_mov_b32 s99, 20000"); a.L(lp)
            I("v_and_b32 v52, v52, v53"); I("v_and_b32 v54, v54, v55"); I("v_and_b32 v52, v52, v54"); I("v_and_b32 v52, 2, v52")
            I("v_cmp_ne_u32 vcc, 2, v52"); I(f"s_cbranch_vccz {l}"); I("s_sleep 2")
            I(f"buffer_load_dwordx4 v[52:55], v49, s[{RWS}:{RWS+3}], s60 offen sc1")
            I("s_sub_u32 s99, s99, 1"); I("s_cmp_lg_u32 s99, 0"); I("s_waitcnt vmcnt(0)"); I(f"s_cbranch_scc1 {lp}")
            a.L(l)
        m2 = lambda sb, ko: (lambda: rarely(f"s_cmp_eq_u32 s{SC2}, 0", lambda: (snap(), mask_body(sb, ko))))
        LEV = a.label("EVEN"); LODM = a.label("ODDM"); LTRANS = a.label("TRANS"); LP2 = a.label("P2"); LP2B = a.label("P2B"); LDRAIN = a.label("DRAIN")
        self.stamp(8)
        self.ring_n = 0
        R = [rd("k", 0, i) for i in range(8)] + [rd("k", 1, i) for i in range(8)]
        for i in range(7):
            I(f"ds_read_b128 {v(QF+4*i,4)}, v{TMP+1} offset:{1024*i}"); lg.issue()
            R[i][0]()
        def q7():
            I(f"ds_read_b128 {v(QF+28,4)}, v{TMP+1} offset:{1024*7}"); lg.issue()
        D = dma4("v") + dma4("k")
        sched([lambda i=i: mf_qk(0, i, R, i, True) for i in range(8)], {g: ([(q7, 4)] if g == 0 else []) + [(R[7+g][0], 4), D[g]] for g in range(8)}, [])
        m1(0, 0)()
        pre = init_max()
        I(f"v_mov_b32 v{LRUN}, 0")
        fx = {}
        put(fx, 0, [(R[15][0], 4)]); put(fx, 4, [op(f"v_xor_b32 v{VV}, 0x10000, v{VK}"), op(f"v_xor_b32 v{VK}, 0x4000, v{VK}")])
        SLd = side_loads(); n8 = (len(SLd) + 7) // 8
        for g in range(8): put(fx, g, SLd[g*n8:(g+1)*n8])
        sched([lambda i=i: mf_qk(1, i, R, 8+i) for i in range(8)], fx, pre + sm_ops(0)[:SPL])
        R = mk_reads()
        head(R, lambda: I(f"s_waitcnt vmcnt({4+NSL})"), False, post=[m1(1, 32)])
        svm = self.save()
        I(f"s_branch {LODM}")
        a.L(LEV)
        R = mk_reads(); head(R, vm4)
        mid(R, "k", [op(f"v_xor_b32 v{VK}, 0x4000, v{VK}")], mb=m1(0, 0))
        R = mk_reads(); head(R, vm4, post=[m1(1, 32), spub])
        assert self.lg.issued - self.lg.done == svm[2] - svm[3]
        a.L(LODM)
        mid(R, "v", [op(f"v_xor_b32 v{VK}, 0xc000, v{VK}")], mb=m1(0, 64), endops=[op(f"s_sub_u32 s{SC1}, s{SC1}, 1")])
        I(f"s_cmp_lg_u32 s{SC1}, -1"); I(f"s_cbranch_scc1 {LEV}")
        I(f"s_cmp_eq_u32 s{SG}, 1"); I(f"s_cbranch_scc1 {LTRANS}")
        svt = self.save()
        R = mk_reads(); head(R, vm4)
        mid(R, "k", [op(f"v_xor_b32 v{VK}, 0x8000, v{VK}")], mb=m2(0, -1))
        a.L(LP2B)
        I(f"s_cmp_eq_u32 s{SC2}, 0"); I(f"s_cbranch_scc1 {LDRAIN}")
        a.L(LP2)
        R = mk_reads(); head(R, vm08, post=[spub, fin, lambda: I(f"s_sub_u32 s{SC2}, s{SC2}, 1")])
        mid(R, "kv", [op(f"v_xor_b32 v{VK}, 0x8000, v{VK}")], mb=m2(0, -1), endops=[sta])
        I(f"s_cmp_lg_u32 s{SC2}, 0"); I(f"s_cbranch_scc1 {LP2}")
        a.L(LDRAIN)
        self.stamp(10)
        R2 = [rd("v", 0, i) for i in range(8)] + [rd("v", 1, i) for i in range(8)]
        rf = [(f, 4) for f, h in R2]
        head(R2, lambda: (vm08(), side_check()), post=[fin, sta[0]])
        mask_body(1, -33)
        ts, ts2, ts3 = self.tail_setup(); n8 = (len(ts) + 4) // 5
        fx = {g: [rf[7+g]] + ts[g*n8:(g+1)*n8] for g in range(8)}
        for g in range(3):
            if g < len(ts2): put(fx, 5 + g, [ts2[g]])
        sched([lambda i=i: mf_pv(0, i, R2, i) for i in range(8)], fx, sm_ops(1))
        check(1)()
        pre = []; E_ = lambda t: pre.append(op(t))
        E_(f"v_mov_b32 v{TMP}, v{LRUN}"); E_(f"s_lshl_b32 s44, s{SW}, 9"); E_(f"s_add_u32 s44, s44, {ML}")
        E_(f"v_permlane32_swap_b32 v{TMP}, v{LRUN}"); E_(f"v_add_f32 v{NM+1}, v{TMP}, v{LRUN}")
        E_(f"v_lshrrev_b32 v{TMP}, 1, v{VL16}"); E_(f"v_add_u32 v{TMP}, s44, v{TMP}")
        def wml():
            I(f"ds_write_b64 v{TMP}, {v(NM,2)}"); lg.issue()
        pre.append((wml, 4))
        E_(f"v_xor_b32 v{TMP}, 0x800, v{TMP}")
        E_(f"s_lshl_b32 s46, s{SW}, 13"); E_(f"v_add_u32 v{TMP+1}, s46, v{VL16}"); E_(f"v_xor_b32 v{TMP+2}, 0x8000, v{TMP+1}")
        E_(f"s_sub_u32 s54, 15, s{SIDX}"); E_(f"s_lshl_b32 s54, s54, 2"); E_(f"s_add_u32 s54, s54, s{SR}"); E_("s_lshl_b32 s54, s54, 5"); E_(f"s_add_u32 s54, s54, s{SHEAD}")
        E_("s_lshl_b32 s54, s54, 13"); E_(f"s_lshl_b32 s44, s{SG}, 12"); E_("s_add_u32 s54, s54, s44"); E_(f"s_add_u32 s54, s54, {CTX_OFF}")
        fx = {0: [rf[15]]}
        for g, x in enumerate(ts2[3:]): put(fx, g, [x])
        sched([lambda i=i: mf_pv(1, i, R2, 8+i) for i in range(8)], fx, pre + ts3)
        self.stamp(11)
        lg1 = a.label("MG1"); lj = a.label("MGJ")
        I(f"s_cmp_eq_u32 s{SG}, 1"); I(f"s_cbranch_scc1 {lg1}")
        sv2 = self.save(); PR = 64
        for g in (0, 1):
            if g: a.L(lg1); self.restore(sv2)
            own = O + 32*g; snd = O + 32*(1-g)
            for i in range(8):
                I(f"ds_write_b128 v{TMP+1}, {v(snd+4*i,4)} offset:{1024*i}"); lg.issue()
            lg.wait(lg.issued); self.barrier()
            I(f"ds_read_b64 {v(96,2)}, v{TMP}"); t0 = lg.issue()
            tk = []
            for i in range(8):
                I(f"ds_read_b128 {v(PR+4*i,4)}, v{TMP+2} offset:{1024*i}"); tk.append(lg.issue())
            lg.wait(t0)
            I(f"v_min_f32 v98, v{NM}, v96"); I(f"v_sub_f32 v99, v98, v{NM}"); I(f"v_sub_f32 v100, v98, v96")
            I("v_exp_f32 v99, v99"); I("v_exp_f32 v100, v100")
            I(f"v_mul_f32 v101, v99, v{NM+1}"); I("v_fmac_f32 v101, v100, v97"); I("v_rcp_f32 v101, v101")
            I("v_mul_f32 v102, v99, v101"); I("v_mul_f32 v103, v99, v101"); I("v_mul_f32 v104, v100, v101"); I("v_mul_f32 v105, v100, v101")
            for q in range(4):
                for i in range(8*q, 8*q+8, 2): I(f"v_pk_mul_f32 {v(own+i,2)}, {v(own+i,2)}, v[102:103]")
                lg.wait(tk[2*q+1])
                for i in range(8*q, 8*q+8, 2): I(f"v_pk_fma_f32 {v(own+i,2)}, {v(PR+i,2)}, v[104:105], {v(own+i,2)}")
                for i in range(4): I(f"v_cvt_pk_bf16_f32 v{snd+4*q+i}, v{own+8*q+2*i}, v{own+8*q+2*i+1}")
                I(f"buffer_store_dwordx4 {v(snd+4*q,4)}, v{VL16}, s[{RWS}:{RWS+3}], s54 offen offset:{1024*q}{self.st}"); self.tctx = vm.issue()
            if not g: I(f"s_branch {lj}")
        a.L(lj)
        I("s_setprio 0")
        self.stamp(4)
        def cold():
            a.L(LTRANS)
            self.restore(svt)
            loadq(VQ); I("s_waitcnt lgkmcnt(0)")
            I(f"v_xor_b32 v{VK}, 0x4000, v{VK}")
            R = mk_reads(); head(R, vm4, post=[lambda: mask_body(1, 96)])
            mid(R, "k", [op(f"v_xor_b32 v{VK}, 0x8000, v{VK}")], mb=m2(0, -1), trans=True)
            I(f"s_branch {LP2B}")
            for (lo, lb, body) in ool:
                a.L(lo); body(); I(f"s_branch {lb}")
            for (lr, lb, sb, other) in rare:
                a.L(lr)
                I("s_nop 15")
                rowmax(sb, TMP)
                I(f"v_max_f32 v{TMP}, 0, v{TMP}"); I(f"v_exp_f32 v{TMP+1}, -v{TMP}")
                for r in range(16): I(f"v_sub_f32 v{NM+r}, v{NM+r}, v{TMP}")
                for r in range(16): I(f"v_sub_f32 v{S[sb]+r}, v{S[sb]+r}, v{TMP}")
                if other:
                    for r in range(16): I(f"v_sub_f32 v{S[1-sb]+r}, v{S[1-sb]+r}, v{TMP}")
                for r in range(64): I(f"v_mul_f32 v{O+r}, v{O+r}, v{TMP+1}")
                I(f"v_mul_f32 v{LRUN}, v{LRUN}, v{TMP+1}")
                for c, _ in sm_ops(sb): c()
                I("s_nop 1"); I(f"s_branch {lb}")
        self.attn_rare = cold

    HB = 65536; HC = 4416; XB = 136192; YB = 148480
    SC, SJ, SB, SCH, SHB_, SWO, SCX = 34, 35, 36, 37, 38, 39, 40
    WS_ = [16, 24, 32, 40, 176, 184, 56, 80, 88, 96, 104, 144, 152, 160]
    CS_ = [168, 112, 120, 128, 136, 64, 72]
    NL = 4
    def tail_setup(self):
        I = self.I; L = []; E = lambda t: L.append((lambda: I(t), 4))
        SC, SJ, SB, SCH, SHB_, SWO, SCX = self.SC, self.SJ, self.SB, self.SCH, self.SHB_, self.SWO, self.SCX
        self.wtok = {}; self.wslot = dict(enumerate(self.WS_))
        E(f"s_lshr_b32 s{SC}, s{SW}, 2"); E(f"s_and_b32 s{SJ}, s{SW}, 3")
        E(f"s_lshl_b32 s{SCH}, s{SF}, 1"); E(f"s_add_u32 s{SCH}, s{SCH}, s{SC}"); E(f"s_lshl_b32 s{SCH}, s{SCH}, 12")
        E(f"s_lshl_b32 s60, s{SJ}, 10"); E("v_add_u32 v50, s60, v6"); E("v_subrev_u32 v51, 16, v50")
        E(f"s_lshr_b32 s60, s{SCH}, 8"); E(f"s_add_u32 s60, s60, {KVT_OFF}"); E("v_lshlrev_b32 v52, 9, v50")
        def ld(t):
            def f(): I(t); self.th = self.vm.issue()
            L.append((f, 16))
        ld(f"buffer_load_dwordx4 {v(160,4)}, v51, s[{RB}:{RB+3}], s{SCH} offen")
        ld(f"buffer_load_dwordx4 {v(164,4)}, v50, s[{RB}:{RB+3}], s{SCH} offen")
        ld(f"buffer_load_dwordx4 {v(168,4)}, v52, s[{RWS}:{RWS+3}], s60 offen{self.ld}")
        E(f"s_lshl_b32 s{SWO}, s57, 19"); E(f"s_lshl_b32 s60, s{SW}, 16"); E(f"s_add_u32 s{SWO}, s{SWO}, s60"); E(f"s_add_u32 s{SWO}, s{SWO}, {WOT_OFF}")
        L2 = [(lambda i=i: self.wload(i), 36) for i in range(self.o.get("we", 6))]
        L3 = []; L, Lx = L3, L
        E = lambda t: L3.append((lambda: I(t), 4))
        E(f"s_mul_i32 s{SB}, s{SC}, 6144"); E(f"s_add_u32 s{SB}, s{SB}, {self.XB}")
        E(f"s_mul_i32 s{SHB_}, s{SC}, {8*self.HC}"); E(f"s_add_u32 s{SHB_}, s{SHB_}, {self.HB}")
        E(f"s_lshl_b32 s{SCX}, s56, 19"); E(f"s_lshl_b32 s60, s{SW}, 15"); E(f"s_add_u32 s{SCX}, s{SCX}, s60"); E(f"s_add_u32 s{SCX}, s{SCX}, {CTX_OFF}")
        return Lx, L2, L3
    def wreg(self, i):
        return self.WS_[i % len(self.WS_)]
    def wload(self, i):
        I = self.I; r = self.wslot[i]
        I(f"s_add_u32 s61, s{self.SWO}, {i*2048}")
        for mt in range(2):
            I(f"buffer_load_dwordx4 {v(r+4*mt,4)}, v6, s[{RWS}:{RWS+3}], s61 offen offset:{mt*1024}{self.ld}"); self.wtok[i] = self.vm.issue()
    def tail_early(self):
        I = self.I; vm = self.vm; lg = self.lg; HC = self.HC
        SJ, SB, SCH, SHB_ = self.SJ, self.SB, self.SCH, self.SHB_
        Ee, Eo, Oe, Oo = 160, 113, 122, 131
        vm.wait(self.th)
        for k in range(7): I(f"v_alignbit_b32 v{Oe+k}, v{Ee+k+1}, v{Ee+k}, 16")
        for k in range(1, 7): I(f"v_alignbit_b32 v{Oo+k}, v{Ee+k+1}, v{Ee+k}, 16")
        for k in range(1, 7): I(f"v_mov_b32 v{Eo+k}, v{Ee+k}")
        I(f"s_add_u32 s60, s{SHB_}, 64"); I("v_add_u32 v51, s60, v50")
        for r in range(8):
            sft = 1 + r; k = sft >> 1
            base = ((Oe, Oo) if sft & 1 else (Ee, Eo))[k & 1]
            I(f"ds_write_b128 v51, {v(base+k,4)} offset:{r*HC}"); lg.issue()
        I("v_and_b32 v51, 3, v0"); I("v_mul_u32_u24 v52, 1536, v51"); I("v_lshrrev_b32 v53, 6, v50"); I("v_lshl_add_u32 v52, v53, 4, v52")
        I(f"s_add_u32 s60, s{SB}, 512"); I("v_add_u32 v52, s60, v52")
        I(f"ds_write_b128 v52, {v(168,4)}"); lg.issue()
        for r in range(2): I(f"v_mov_b64 {v(172+2*r,2)}, 0")
        I("v_bfe_u32 v52, v0, 2, 3"); I(f"v_mul_u32_u24 v52, {HC}, v52"); I("v_lshl_add_u32 v52, v51, 4, v52"); I(f"v_add_u32 v52, s{SHB_}, v52")
        I(f"ds_write_b128 v52, {v(172,4)}"); lg.issue()
        I(f"s_mul_i32 s60, s{SJ}, 1536"); I(f"s_add_u32 s60, s60, s{SB}"); I("v_lshl_add_u32 v52, v0, 3, s60")
        I(f"ds_write_b64 v52, {v(172,2)}"); lg.issue()
    def tailp(self):
        a = self.a; I = self.I; vm = self.vm; lg = self.lg
        HB, HC, YB = self.HB, self.HC, self.YB
        SC, SJ, SB, SCH, SHB_, SWO, SCX = self.SC, self.SJ, self.SB, self.SCH, self.SHB_, self.SWO, self.SCX
        ACC = 192; FRS = [224, 240, 64]; RD_ = 224
        VL16, VA, VB, T, VP, VPA, VO, GR, VLW, XR = 6, 4, 5, 12, 7, 8, 9, 10, 11, 48
        OACC = 192
        NW, NCX, NL = len(self.WS_), len(self.CS_), self.o.get("nl", self.NL)
        wtok = self.wtok; ctok = {}; wslot = self.wslot; cslot = dict(enumerate(self.CS_))
        I(f"s_lshr_b32 s53, s56, 1"); I("s_lshl_b32 s53, s53, 10"); I(f"s_lshl_b32 s44, s{SW}, 7"); I("s_add_u32 s53, s53, s44"); I(f"s_add_u32 s53, s53, {FC_OFF}")
        I(f"v_and_b32 v{VPA}, 3, v0"); I(f"v_lshlrev_b32 v{VPA}, 2, v{VPA}")
        P0 = self.o.get("p0", 0)
        tc0 = self.poll_issue(VP, VPA, "s53") if P0 else self.tctx
        self.tail_early()
        PUBN = self.o.get("pubn", 1)
        I(f"s_lshr_b32 s45, s{SHEAD}, 2"); I("s_lshl_b32 s45, s45, 7"); I(f"s_and_b32 s44, s{SHEAD}, 3"); I("s_lshl_b32 s44, s44, 2"); I("s_add_u32 s45, s45, s44")
        I(f"s_sub_u32 s44, 15, s{SIDX}"); I("s_lshl_b32 s44, s44, 10"); I("s_add_u32 s46, s44, s45"); I(f"s_add_u32 s46, s46, {FC_OFF}")
        I(f"s_lshl_b32 s44, s{SIDX}, 10"); I("s_add_u32 s47, s44, s45"); I(f"s_add_u32 s47, s47, {FC_OFF}")
        self.srd(RC, "out", 2*MB); self.srd(RD, "q", 2*MB)
        I(f"s_lshl_b32 s44, s{SF}, 2"); I(f"s_load_dword s55, s[{P['ssmD']}:{P['ssmD']+1}], s44")
        I(f"v_and_b32 v{T}, 31, v0"); I(f"v_lshrrev_b32 v{T+1}, 5, v0")
        I(f"v_and_b32 v{T+2}, 7, v0"); I(f"v_mul_u32_u24 v{VA}, {HC}, v{T+2}")
        I(f"v_bfe_u32 v{T+2}, v0, 3, 2"); I(f"v_sub_u32 v{T+2}, v{T+2}, v{T+1}"); I(f"v_lshl_add_u32 v{VA}, v{T+2}, 4, v{VA}")
        I(f"s_lshl_b32 s43, s{SJ}, 9"); I(f"s_add_u32 s43, s43, s{SHB_}"); I("s_add_u32 s43, s43, 32"); I(f"v_add_u32 v{VA}, s43, v{VA}")
        I(f"s_lshl_b32 s43, s{SJ}, 7"); I(f"s_sub_u32 s43, s{SB}, s43"); I("s_add_u32 s43, s43, 400")
        I(f"v_lshl_add_u32 v{VB}, v{T}, 4, s43"); I(f"v_mul_u32_u24 v{T+2}, 1536, v{T+1}"); I(f"v_add_u32 v{VB}, v{VB}, v{T+2}")
        I(f"s_lshl_b32 s51, s{SW}, 13"); I(f"v_add_u32 v{VLW}, s51, v{VL16}")
        I("s_waitcnt lgkmcnt(0)"); lg.mark_all_done(); self.barrier()
        self.stamp(5)
        def cload(i):
            r = cslot[i]
            I(f"s_add_u32 s62, s{SCX}, {(i//4)*4096}"); I("s_add_u32 s63, s62, 0x40000")
            for st in range(2):
                I(f"buffer_load_dwordx4 {v(r+4*st,4)}, v{VL16}, s[{RWS}:{RWS+3}], s{62+st} offen offset:{(i%4)*1024}{self.ld}"); ctok[i] = vm.issue()
        ltok = {}
        def lstage(j):
            I(f"s_add_u32 m0, s51, {j*2048}"); I(f"s_add_u32 s61, s{SWO}, {(NW+j)*2048}")
            for mt in range(2):
                I(f"buffer_load_dwordx4 v{VL16}, s[{RWS}:{RWS+3}], s61 offen offset:{mt*1024}{self.ld} lds"); ltok[j] = vm.issue()
        def early(lo, hi, level):
            le = a.label("NE")
            I(f"s_cmp_lg_u32 s50, {level}"); I(f"s_cbranch_scc1 {le}")
            sv = self.save()
            for i in range(lo, hi): cload(i)
            self.restore(sv); I(f"s_mov_b32 s50, {level+1}")
            a.L(le)
        def seen():
            I(f"v_and_b32 v{VP}, 1, v{VP}"); I(f"v_cmp_ne_u32 vcc, 1, v{VP}"); I("s_cmp_eq_u64 vcc, 0"); I("s_cselect_b32 s52, 1, 0"); I("s_max_u32 s50, s50, s52")
        I("s_mov_b32 s50, 0")
        wl = [lambda i=i: self.wload(i) for i in range(NW) if i not in wtok] + [lambda j=j: lstage(j) for j in range(NL)]
        steps = [(dd, ks) for dd in range(8) for ks in range(2)]
        toks = {}
        def reads(n):
            dd, ks = steps[n]; b = FRS[n % 3]
            def r(k, reg, addr, off):
                def f():
                    I(f"ds_read_b128 {v(reg,4)}, v{addr} offset:{off}"); toks[(n, k)] = lg.issue()
                return f
            return [r(0, b, VA, 64*dd + 32*(1-ks)), r(1, b+4, VB, ks*3072 + (7-dd)*16),
                    r(2, b+8, VB, ks*3072 + (7-dd)*16 + 512), r(3, b+12, VA, 64*dd + 32*(1-ks) + 2048)]
        for n in range(2):
            for f in reads(n): f()
        for n in range(16):
            b = FRS[n % 3]; L = reads(n+2) if n + 2 < 16 else []
            c0 = "0" if n == 0 else v(ACC,16); c1 = "0" if n == 0 else v(ACC+16,16)
            lg.wait(toks[(n,1)]); I(f"{MFMA} {v(ACC,16)}, {v(b,4)}, {v(b+4,4)}, {c0}")
            for f in L[0:2]: f()
            lg.wait(toks[(n,2)]); I(f"{MFMA} {v(ACC+16,16)}, {v(b,4)}, {v(b+8,4)}, {c1}")
            for f in L[2:3]: f()
            lg.wait(toks[(n,3)]); I(f"{MFMA} {v(ACC+16,16)}, {v(b+12,4)}, {v(b+4,4)}, {v(ACC+16,16)}")
            for f in L[3:4]: f()
            if n == PUBN:
                vm.wait(tc0); self.barrier(); self.publish(46); self.publish(47)
                if P0: seen()
            if n >= PUBN and n < 14:
                for _ in range(-(-len(wl) // (14 - n))): wl.pop(0)()
            if n == self.o.get("p1", 12): tc1 = self.poll_issue(VP, VPA, "s53")
            if n == 14 and P0: early(0, NCX - 2, 1)
        assert not wl
        I(f"s_add_u32 s43, s51, {HB}"); I(f"v_add_u32 v{T+2}, s43, v{VL16}")
        self.barrier()
        for i in range(8):
            I(f"ds_write_b128 v{T+2}, {v(ACC+4*i,4)} offset:{1024*i}"); lg.issue()
        I(f"s_lshl_b32 s43, s{SC}, 15"); I(f"s_lshl_b32 s44, s{SJ}, 11"); I("s_add_u32 s43, s43, s44"); I(f"s_add_u32 s43, s43, {HB}"); I(f"v_add_u32 v{T+2}, s43, v{VL16}")
        I(f"s_and_b32 s43, s{SJ}, 1"); I("s_mul_i32 s44, s43, 3072"); I(f"s_lshr_b32 s45, s{SJ}, 1"); I("s_lshl_b32 s41, s45, 9")
        I("s_add_u32 s44, s44, s41"); I(f"s_add_u32 s44, s44, s{SB}"); I("s_add_u32 s44, s44, 520")
        I(f"v_lshl_add_u32 v{T+3}, v{T}, 4, s44"); I(f"v_lshlrev_b32 v{VA}, 3, v{T+1}"); I(f"v_sub_u32 v{T+3}, v{T+3}, v{VA}")
        I(f"v_lshlrev_b32 v{VB}, 6, v{T}"); I(f"v_lshl_add_u32 v{VB}, v{T+1}, 4, v{VB}")
        I("s_lshl_b32 s45, s45, 11"); I("s_lshl_b32 s43, s43, 5"); I("s_add_u32 s45, s45, s43"); I(f"s_lshl_b32 s43, s{SC}, 12"); I("s_add_u32 s45, s45, s43")
        I(f"s_add_u32 s45, s45, {YB}"); I(f"v_add_u32 v{VB}, s45, v{VB}")
        I("s_lshl_b32 s43, s55, 16"); I("s_and_b32 s44, s55, 0xffff0000"); I(f"s_cmp_eq_u32 s{SC}, 0"); I("s_cselect_b32 s55, s43, s44")
        lg.wait(lg.issued); self.barrier()
        self.stamp(12)
        for p in range(4):
            for gq in range(2):
                I(f"ds_read_b128 {v(RD_+8*p+4*gq,4)}, v{T+2} offset:{8192*p+1024*gq}"); lg.issue()
        for gq in range(2):
            I(f"ds_read_b64 {v(ACC+2*gq,2)}, v{T+3} offset:{1536*gq}"); lg.issue()
        lk = a.label("SK"); I("s_cmp_lg_u32 s50, 0"); I(f"s_cbranch_scc1 {lk}")
        sv = self.save(); vm.wait(tc1); seen(); self.restore(sv); early(0, NCX - 2, 1)
        a.L(lk)
        early(NCX - 2, NCX, 2)
        lg.wait(lg.issued)
        for i in range(0, 8, 2):
            I(f"v_pk_add_f32 {v(RD_+i,2)}, {v(RD_+i,2)}, {v(RD_+8+i,2)}"); I(f"v_pk_add_f32 {v(RD_+16+i,2)}, {v(RD_+16+i,2)}, {v(RD_+24+i,2)}")
        for i in range(0, 8, 2): I(f"v_pk_add_f32 {v(RD_+i,2)}, {v(RD_+i,2)}, {v(RD_+16+i,2)}")
        for gq in range(2):
            for r in range(4):
                srcr = ACC + 2*gq + (1 - (r >> 1))
                I(f"v_lshlrev_b32 v{ACC+8}, 16, v{srcr}" if r & 1 else f"v_and_b32 v{ACC+8}, 0xffff0000, v{srcr}")
                I(f"v_fma_f32 v{RD_+4*gq+r}, v{ACC+8}, s55, v{RD_+4*gq+r}")
        for i in range(4): I(f"v_cvt_pk_bf16_f32 v{ACC+12+i}, v{RD_+2*i}, v{RD_+2*i+1}")
        I(f"v_permlane32_swap_b32 v{ACC+12}, v{ACC+14}"); I(f"v_permlane32_swap_b32 v{ACC+13}, v{ACC+15}")
        I(f"ds_write_b128 v{VB}, {v(ACC+12,4)}"); lg.issue()
        lg.wait(lg.issued); self.barrier()
        ly = a.label("NY")
        I(f"s_cmp_lg_u32 s{SW}, 0"); I(f"s_cbranch_scc1 {ly}")
        I(f"v_add_u32 v{T}, {YB}, v{VL16}")
        for i in range(8): I(f"ds_read_b128 {v(RD_+4*i,4)}, v{T} offset:{1024*i}")
        I(f"s_lshl_b32 s44, s{SF}, 13"); I(f"s_add_u32 s44, s44, {YT_OFF}"); I("s_add_u32 s45, s44, 4096")
        I("s_waitcnt lgkmcnt(0)")
        for i in range(8): I(f"buffer_store_dwordx4 {v(RD_+4*i,4)}, v{VL16}, s[{RWS}:{RWS+3}], s{44+(i>>2)} offen offset:{1024*(i&3)}{self.st}")
        a.L(ly)
        ll = a.label("NL")
        I("s_cmp_eq_u32 s50, 3"); I(f"s_cbranch_scc1 {ll}")
        self.poll_check(VP, VPA, "s53", 1)
        for i in range(NCX): cload(i)
        a.L(ll)
        self.stamp(6)
        YT = self.XB
        lrd = {}; ypub = False; ymark = vm.issued; free = []; fresh = []; nw = NW; nw2 = NW + NL; nc = NCX
        for i in range(32):
            if i % 4 == 0 and self.o.get("ostamp"): self.stamp(17 + i // 4)
            if i == 14:
                I(f"s_lshl_b32 s53, s57, 7"); I(f"s_lshl_b32 s42, s{SW}, 4"); I("s_add_u32 s53, s53, s42"); I(f"s_add_u32 s53, s53, {FY_OFF}")
                tf = self.poll_issue(VP, VPA, "s53")
            if i == 24:
                vm.wait(tf); self.poll_check(VP, VPA, "s53", 1)
                I(f"v_lshrrev_b32 v{T}, 3, v0"); I(f"v_and_b32 v{T+1}, 7, v0"); I(f"v_lshlrev_b32 v{T+1}, 4, v{T+1}")
                I(f"v_lshl_add_u32 v{T}, v{T}, 12, v{T+1}")
                I(f"s_add_u32 m0, s{SWK}, {YT}")
                I(f"s_lshl_b32 s44, s57, 18"); I(f"s_lshl_b32 s45, s{SW}, 15"); I("s_add_u32 s44, s44, s45")
                I(f"s_lshl_b32 s45, s56, 7"); I("s_add_u32 s44, s44, s45"); I(f"s_add_u32 s44, s44, {YT_OFF}")
                I(f"buffer_load_dwordx4 v{T}, s[{RWS}:{RWS+3}], s44 offen{self.ld} lds"); vm.issue()
                I(f"v_and_b32 v{T+1}, 15, v0"); I(f"s_lshr_b32 s48, s{SW}, 1"); I("s_lshl_b32 s48, s48, 4")
                I(f"s_lshl_b32 s45, s56, 6"); I("s_add_u32 s45, s45, s48"); I(f"v_add_u32 v{T+1}, s45, v{T+1}")
                I(f"v_lshlrev_b32 v{T+2}, 2, v{T+1}"); I(f"s_mov_b32 s45, {G_OFF}")
                I(f"buffer_load_dword v{GR}, v{T+2}, s[{RWS}:{RWS+3}], s45 offen{self.ld}"); vm.issue()
                I(f"v_lshrrev_b32 v{T+2}, 4, v0"); I(f"v_lshlrev_b32 v{T+2}, 4, v{T+2}"); I(f"v_lshl_add_u32 v{VO}, v{T+1}, 10, v{T+2}")
                I(f"s_and_b32 s49, s{SW}, 1"); I("s_lshl_b32 s49, s49, 6"); I(f"s_lshl_b32 s45, s57, 7"); I("s_add_u32 s49, s49, s45")
                I(f"buffer_load_dwordx4 {v(XR,4)}, v{VO}, s[{RD}:{RD+3}], s49 offen"); vm.issue()
            vm.wait(max(ctok[i], wtok.get(i, 0)))
            if i in lrd: lg.wait(lrd[i])
            if not ypub and vm.done > ymark:
                ypub = True
                I(f"s_lshl_b32 s44, s{SF}, 2"); I(f"s_add_u32 s44, s44, {FY_OFF}"); self.publish(44, 3)
            for mt in range(2):
                for st in range(2):
                    d = v(OACC + 16*(2*mt+st), 16)
                    I(f"{MFMA} {d}, {v(wslot[i]+4*mt,4)}, {v(cslot[i]+4*st,4)}, {'0' if i == 0 else d}")
            lagged, fresh = fresh, [wslot[i], cslot[i]]
            free += fresh
            while free:
                if nw < NW + NL and nw - i <= 3:
                    j = nw - NW; assert vm.done >= ltok[j]
                    r = free.pop(0); wslot[nw] = r
                    I("s_nop 3")
                    for mt in range(2):
                        I(f"ds_read_b128 {v(r+4*mt,4)}, v{VLW} offset:{j*2048+mt*1024}"); lrd[nw] = lg.issue()
                    nw += 1
                elif nc < 32 and (nc <= nw2 or nw2 >= 32):
                    cslot[nc] = free.pop(0); cload(nc); nc += 1
                elif nw2 < 32:
                    wslot[nw2] = free.pop(0); self.wload(nw2); nw2 += 1
                else: break
        self.stamp(7)
        I(f"v_and_b32 v{T}, 31, v0"); I(f"v_lshrrev_b32 v{T+1}, 5, v0"); I(f"v_and_b32 v{T+2}, 15, v0")
        I(f"v_lshlrev_b32 v{T+1}, 1, v{T+1}")
        I(f"v_xor_b32 v{T+1}, v{T+1}, v{T+2}"); I(f"v_lshlrev_b32 v{T+1}, 4, v{T+1}"); I(f"v_lshl_add_u32 v{T}, v{T}, 8, v{T+1}")
        I(f"v_add_u32 v{T}, s51, v{T}")
        for mt in range(2):
            for gq in range(4):
                I(f"v_xor_b32 v{T+1}, {(4*gq+mt)*16}, v{T}"); I(f"v_add_u32 v{T+3}, 0x10000, v{T+1}")
                for st in range(2):
                    I(f"ds_write_b128 v{T+1+2*st}, {v(OACC+16*(2*mt+st)+4*gq,4)}"); lg.issue()
        I(f"v_lshrrev_b32 v{T}, 4, v0"); I(f"s_and_b32 s41, s{SW}, 1"); I("s_lshl_b32 s42, s41, 3")
        I(f"v_lshl_add_u32 v{T+1}, v{T}, 1, s42"); I(f"v_xor_b32 v{T+1}, v{T+1}, v{T+2}"); I(f"v_lshlrev_b32 v{T+1}, 4, v{T+1}")
        I("s_and_b32 s43, s48, 16"); I(f"v_add_u32 v{T+3}, s43, v{T+2}"); I(f"v_lshl_add_u32 v24, v{T+3}, 8, v{T+1}")
        I("s_lshr_b32 s43, s48, 5"); I("s_lshl_b32 s43, s43, 16"); I("v_add_u32 v24, s43, v24"); I("v_xor_b32 v25, 16, v24")
        I("s_lshl_b32 s42, s41, 5"); I(f"v_lshl_add_u32 v{T}, v{T}, 3, s42"); I(f"v_bfe_u32 v{T+1}, v0, 2, 2")
        I(f"v_add_u32 v{T}, v{T}, v{T+1}"); I(f"v_lshlrev_b32 v{T}, 7, v{T}"); I(f"v_and_b32 v{T+1}, 3, v0")
        I(f"v_lshl_add_u32 v{T}, v{T+1}, 3, v{T}"); I("s_lshl_b32 s42, s48, 1"); I(f"s_add_u32 s42, s42, {YT}"); I(f"v_add_u32 v28, s42, v{T}")
        self.sync_all()
        CX = 128; tk = []
        I(f"ds_read_b64_tr_b16 {v(100,2)}, v28"); lg.issue()
        I(f"ds_read_b64_tr_b16 {v(102,2)}, v28 offset:512"); ty2 = lg.issue()
        for p in range(8):
            for hh in range(2):
                I(f"ds_read_b128 {v(CX+8*p+4*hh,4)}, v{24+hh} offset:{8192*p}"); lg.issue()
            tk.append(lg.issued)
            if p == 5:
                lg.wait(ty2)
                for e in range(8):
                    if e & 1: I(f"v_and_b32 v104, 0xffff0000, v{XR+(e>>1)}"); I(f"v_and_b32 v105, 0xffff0000, v{100+(e>>1)}")
                    else: I(f"v_lshlrev_b32 v104, 16, v{XR+(e>>1)}"); I(f"v_lshlrev_b32 v105, 16, v{100+(e>>1)}")
                    I(f"v_mul_f32 v{112+e}, v104, v105"); I(f"v_mul_f32 v{112+e}, v{112+e}, v{GR}")
                I(f"v_sub_f32 v{GR}, 1.0, v{GR}")
        for p in range(1, 8):
            lg.wait(tk[p])
            for e in range(0, 8, 2): I(f"v_pk_add_f32 {v(CX+e,2)}, {v(CX+e,2)}, {v(CX+8*p+e,2)}")
        for e in range(8): I(f"v_fmac_f32 v{112+e}, v{CX+4*(e&1)+(e>>1)}, v{GR}")
        for e in range(4): I(f"v_cvt_pk_bf16_f32 v{108+e}, v{112+2*e}, v{112+2*e+1}")
        I(f"buffer_store_dwordx4 {v(108,4)}, v{VO}, s[{RC}:{RC+3}], s49 offen{' sc1' if self.o.get('outsc1') else ' nt' if self.o.get('outnt') else ''}"); vm.issue()
        self.stamp(16)
        if self.o.get("echo"):
            lp = a.label("EC")
            I("s_sub_u32 s100, s100, s96"); I("s_memrealtime s[96:97]"); I("s_waitcnt lgkmcnt(0)")
            a.L(lp)
            I("s_memrealtime s[98:99]"); I("s_waitcnt lgkmcnt(0)"); I("s_sub_u32 s98, s98, s96"); I("s_cmp_lt_u32 s98, s100"); I(f"s_cbranch_scc1 {lp}")
        if self.o.get("dbgout") is not None:
            l = a.label("DB")
            I(f"s_cmp_lg_u32 s2, {self.o['dbgout']}"); I(f"s_cbranch_scc1 {l}"); I(f"s_cmp_lg_u32 s{SW}, 0"); I(f"s_cbranch_scc1 {l}")
            I("s_waitcnt vmcnt(0)")
            order = [0, 1, 2, 3, 8, 10, 11, 4, 5, 12, 6, 7, 16]
            I("v_mov_b32 v20, 0")
            for j, i in enumerate(order):
                I(f"s_mov_b32 s44, {4*i}"); I(f"v_writelane_b32 v20, s44, {j}")
            I(f"s_lshl_b32 s44, s2, 11"); I(f"s_add_u32 s44, s44, {STAMP_OFF}")
            I(f"buffer_load_dword v21, v20, s[{RWS}:{RWS+3}], s44 offen sc1"); I("s_waitcnt vmcnt(0)")
            I("v_readfirstlane_b32 s45, v21"); I("v_subrev_u32 v21, s45, v21")
            self.srd(RDBG, "dbg", 64); I("v_lshlrev_b32 v22, 2, v0")
            I(f"buffer_store_dword v21, v22, s[{RDBG}:{RDBG+3}], 0 offen")
            a.L(l)

def build(opts):
    g = G(opts); k = NAME + "_kernel"
    g.begin(k); g.proj(); g.attn(); g.tailp(); g.end(); g.attn_rare(); g.a.L("CODE_END"); g.a.I("s_endpgm")
    n = g.a.fix_hazards()
    txt = "; @launch grid=(256,1,1) block=(512,1,1) lds=163840\n"
    txt += '.amdgcn_target "amdgcn-amd-amdhsa--gfx950"\n.text\n' + g.a.text()
    txt += f""".section .rodata,"a"
.p2align 6
.amdhsa_kernel {k}
  .amdhsa_next_free_vgpr 256
  .amdhsa_next_free_sgpr 102
  .amdhsa_accum_offset 256
  .amdhsa_group_segment_fixed_size 0
  .amdhsa_kernarg_size 128
  .amdhsa_user_sgpr_count 2
  .amdhsa_user_sgpr_kernarg_segment_ptr 1
  .amdhsa_system_sgpr_workgroup_id_x 1
.end_amdhsa_kernel
"""
    print(f"instructions {sum(1 for it in g.a.items if it[0] == 'i')}, nops inserted {n}", file=sys.stderr)
    return txt

if __name__ == "__main__":
    opts = {}
    for x in sys.argv[2:]:
        if "=" in x: k_, v_ = x.split("="); opts[k_] = int(v_)
        else: opts[x] = True
    open(sys.argv[1], "w").write(build(opts))
```

```python
import sys, math, struct
sys.path.insert(0, "gen")
from asmlib import *

NAME = "gated_mix__ssm_conv_h3__compressed_kv_cla__prompt"
MB = 1 << 20
KV_OFF, Q_OFF, CTX_OFF, KVT_OFF, YT_OFF, G_OFF = 0, 32*MB, 48*MB, 64*MB, 66*MB, 68*MB
WOT_OFF = 32*MB
FLG_OFF = 68*MB + 65536
FK_OFF, FY_OFF, FC_OFF = FLG_OFF, FLG_OFF + 4096, FLG_OFF + 8192
STAMP_OFF = 69*MB
WS_SIZE = 70*MB
P = dict(q=64, k=66, v=68, shift=70, ssmk=72, ssmD=74, bx=76, ckv=78, wq=80, wuk=82, wuv=84, wo=86, gate=88, out=90, dbg=92, ws=94)
SW, SHEAD, SIDX, SWK, SF = 3, 4, 5, 6, 7
RA, RB, RC, RWS, RD, RE, RT, RDBG = 8, 12, 16, 20, 24, 28, 56, 60
MFMA = "v_mfma_f32_32x32x16_bf16"
LOG2E = 1.4426950408889634
F_KV, F_CA, F_CB, F_Y = 1, 2, 4, 8
def f2u(x): return "0x%08x" % struct.unpack("<I", struct.pack("<f", x))[0]
def rep4(b): return b * 0x01010101

class G:
    def __init__(self, opts):
        self.a = Asm(); self.o = opts
        self.vm = Cnt(self.a, "vmcnt", 63); self.lg = Cnt(self.a, "lgkmcnt", 15)
        self.st = "" if opts.get("plainst") else (" sc1 nt" if opts.get("ntst") else " sc1"); self.ld = "" if opts.get("plainld") else " sc1"
    def I(self, t): self.a.I(t)
    def srd(self, r, ptr, nbytes):
        I = self.I
        I(f"s_mov_b32 s{r}, s{P[ptr]}"); I(f"s_mov_b32 s{r+1}, s{P[ptr]+1}")
        I(f"s_mov_b32 s{r+2}, {nbytes}"); I(f"s_mov_b32 s{r+3}, 0x00020000")
    def save(self): return (self.vm.issued, self.vm.done, self.lg.issued, self.lg.done)
    def restore(self, s_): self.vm.issued, self.vm.done, self.lg.issued, self.lg.done = s_
    def stream(self, mf, fills):
        n = len(mf); slots = [[] for _ in range(n + 1)]
        for (s0, e0, cl) in fills:
            m = e0 - s0
            for j, c in enumerate(cl): slots[s0 + 1 + (j * m) // len(cl)].append(c)
        for c in slots[0]: c()
        for i in range(n):
            mf[i]()
            for c in slots[i+1]: c()
    def stamp(self, i, dyn=None):
        if self.o.get("echo") == i:
            self.I("s_memrealtime s[100:101]"); self.I("s_waitcnt lgkmcnt(0)")
        if not self.o.get("stamp"): return
        I = self.I
        I("s_memrealtime s[96:97]"); I("s_memtime s[100:101]")
        I("s_lshl_b32 s98, s2, 3"); I(f"s_add_u32 s98, s98, s{SW}"); I("s_lshl_b32 s98, s98, 8")
        I(f"s_add_u32 s98, s98, {STAMP_OFF + 4*i}")
        if dyn is not None:
            I(f"s_lshl_b32 s99, s{dyn}, 4"); I("s_add_u32 s98, s98, s99")
        I("s_waitcnt lgkmcnt(0)")
        I("v_mov_b32 v2, s96"); I("v_mov_b32 v3, 0")
        I(f"buffer_store_dword v2, v3, s[{RWS}:{RWS+3}], s98 offen")
        I("v_mov_b32 v2, s100")
        I(f"buffer_store_dword v2, v3, s[{RWS}:{RWS+3}], s98 offen offset:128")
    OOB = 0x40000000
    def publish(self, soff, val=1, srd=RWS, byte=False, idx=None):
        I = self.I
        self.oob_sel()
        if idx is not None: I(f"s_cmp_eq_u32 s{SIDX}, {idx}"); I(f"s_cselect_b32 s99, s99, {self.OOB}")
        I(f"v_mov_b32 v2, {val}"); I("v_mov_b32 v3, s99")
        I(f"buffer_store_{'byte' if byte else 'dword'} v2, v3, s[{srd}:{srd+3}], s{soff} offen sc1"); self.vm.issue()
    def oob_sel(self):
        self.I(f"s_cmp_eq_u32 s{SW}, 0"); self.I(f"s_cselect_b32 s99, 0, {self.OOB}")
    def poll_issue(self, vd, vaddr, soff, srd=RWS):
        self.I(f"buffer_load_dword v{vd}, v{vaddr}, s[{srd}:{srd+3}], {soff} offen sc1"); return self.vm.issue()
    def poll_check(self, vd, vaddr, soff, want, srd=RWS):
        a = self.a; I = self.I
        l = a.label("PCK"); lp = a.label("POLL")
        I(f"s_mov_b32 s98, {want}"); I("s_mov_b32 s99, 20000")
        a.L(lp)
        I(f"v_and_b32 v{vd}, s98, v{vd}"); I(f"v_cmp_ne_u32 vcc, s98, v{vd}"); I(f"s_cbranch_vccz {l}")
        I("s_sleep 2")
        I(f"buffer_load_dword v{vd}, v{vaddr}, s[{srd}:{srd+3}], {soff} offen sc1")
        I("s_sub_u32 s99, s99, 1"); I("s_cmp_lg_u32 s99, 0"); I("s_waitcnt vmcnt(0)"); I(f"s_cbranch_scc1 {lp}")
        a.L(l)
    def barrier(self): self.I("s_barrier")
    def sync_all(self):
        self.I("s_waitcnt vmcnt(0) lgkmcnt(0)"); self.vm.mark_all_done(); self.lg.mark_all_done(); self.barrier()

    def begin(self, kname):
        a = self.a; I = self.I
        a.T(f".globl {kname}\n.p2align 8\n.type {kname},@function"); a.L(kname)
        self.endl = a.label("END")
        if self.o.get("stamp"): I("s_memrealtime s[30:31]")
        if self.o.get("echo"): I("s_memrealtime s[96:97]")
        I("s_load_dwordx16 s[64:79], s[0:1], 0"); I("s_load_dwordx16 s[80:95], s[0:1], 64")
        I("s_cmp_ge_u32 s2, 256"); I(f"s_cbranch_scc1 {self.endl}")
        I("v_lshrrev_b32 v1, 6, v0"); I("v_and_b32 v0, 63, v0"); I(f"v_readfirstlane_b32 s{SW}, v1")
        I("s_and_b32 s7, s2, 7"); I("s_lshl_b32 s7, s7, 2")
        I(f"s_lshr_b32 s{SIDX}, s2, 3"); I(f"s_lshr_b32 s{SHEAD}, s{SIDX}, 3"); I(f"s_add_u32 s{SHEAD}, s{SHEAD}, s7")
        I(f"s_and_b32 s{SIDX}, s{SIDX}, 7"); I(f"s_lshl_b32 s{SWK}, s{SW}, 10")
        I(f"s_lshl_b32 s{SF}, s{SHEAD}, 3"); I(f"s_add_u32 s{SF}, s{SF}, s{SIDX}")
    def end(self):
        self.a.L(self.endl); self.I("s_endpgm")

    def proj(self):
        a = self.a; I = self.I; vm = self.vm; lg = self.lg
        PREP = 114688; QA_LDS = 65536
        ACCS = [64, 128]
        FX = [16, 32]; FW = [24, 40]
        VXA = 4; VWA = 8; VOX, VOW = 10, 11; VST = 12; VXH = 48
        T = 192
        I("v_lshrrev_b32 v13, 3, v0"); I(f"s_lshl_b32 s40, s{SW}, 3"); I("v_add_u32 v13, s40, v13"); I("v_lshlrev_b32 v13, 10, v13")
        I("v_lshrrev_b32 v14, 4, v0"); I(f"s_and_b32 s40, s{SW}, 1"); I("s_lshl_b32 s40, s40, 2"); I("v_add_u32 v15, s40, v14")
        I("v_and_b32 v3, 7, v0"); I("v_xor_b32 v15, v15, v3"); I(f"v_lshl_add_u32 v{VOX}, v15, 4, v13")
        I(f"s_lshl_b32 s40, s{SW}, 2"); I("v_add_u32 v13, s40, v14"); I("v_lshlrev_b32 v13, 13, v13")
        I("v_lshlrev_b32 v15, 2, v14"); I("v_and_b32 v3, 15, v0"); I("v_xor_b32 v15, v15, v3")
        I("v_lshl_add_u32 v13, v15, 4, v13"); I(f"s_lshl_b32 s40, s{SHEAD}, 8"); I(f"v_add_u32 v{VOW}, s40, v13")
        I(f"v_lshlrev_b32 v{VST}, 4, v0")
        I(f"s_lshl_b32 s44, s{SIDX}, 18")
        for i in range(1, 4): I(f"s_add_u32 s{44+i}, s44, {65536*i}")
        I("s_waitcnt lgkmcnt(0)")
        if self.o.get("stamp"): I("s_memrealtime s[28:29]")
        self.srd(RA, "ckv", 2*MB); self.srd(RB, "wuk", 4*MB)
        def xbase(t): return (32768, 131072, 0)[t % 3]
        def wbase(t): return 65536 + (t % 3)*16384
        def dma_list(t):
            L = []
            if t > 23: return L
            ph, tt = t >> 3, t & 7
            for i in range(2):
                def f(i=i):
                    I(f"s_add_u32 m0, s{SWK}, {wbase(t) + i*8192}"); I(f"s_mov_b32 s41, {tt*524288 + i*262144}")
                    r = (RB, RC, RE)[ph]
                    I(f"buffer_load_dwordx4 v{VOW}, s[{r}:{r+3}], s41 offen lds"); vm.issue()
                L.append(f)
            for i in range(4):
                def f(i=i):
                    I(f"s_add_u32 m0, s{SWK}, {xbase(t) + i*8192}"); I(f"s_add_u32 s41, s{(48 if ph == 2 else 44)+i}, {tt*128}")
                    r = RD if ph == 2 else RA
                    I(f"buffer_load_dwordx4 v{VOX}, s[{r}:{r+3}], s41 offen lds"); vm.issue()
                L.append(f)
            return L
        dtok = {}
        for f in dma_list(0): f()
        dtok[0] = vm.issued
        self.srd(RWS, "ws", WS_SIZE); self.srd(RDBG, "dbg", 256); self.srd(RC, "wuv", 4*MB)
        self.stamp(31)
        if self.o.get("stamp"):
            I("v_mov_b32 v2, s30"); I("s_sub_u32 s98, s98, 124"); I(f"buffer_store_dword v2, v3, s[{RWS}:{RWS+3}], s98 offen")
            I("v_mov_b32 v2, s28"); I(f"buffer_store_dword v2, v3, s[{RWS}:{RWS+3}], s98 offen offset:120")
        I(f"s_lshl_b32 s48, s{SIDX}, 17"); I("s_add_u32 s49, s48, 65536")
        I(f"s_sub_u32 s50, 15, s{SIDX}"); I("s_lshl_b32 s50, s50, 17"); I("s_add_u32 s51, s50, 65536")
        I(f"s_and_b32 s42, s{SW}, 3"); I("s_lshl_b32 s42, s42, 6"); I(f"s_lshr_b32 s43, s{SW}, 2"); I("s_lshl_b32 s43, s43, 1")
        I("v_and_b32 v13, 31, v0"); I("v_add_u32 v13, s42, v13")
        I("v_lshrrev_b32 v14, 1, v13"); I("v_and_b32 v14, 7, v14"); I("v_lshrrev_b32 v15, 5, v0")
        I("v_xor_b32 v14, v14, v15"); I("v_lshlrev_b32 v14, 4, v14"); I(f"v_lshl_add_u32 v{VXA}, v13, 7, v14")
        for k in range(1, 4): I(f"v_xor_b32 v{VXA+k}, {k<<5}, v{VXA}")
        for k in range(4): I(f"v_add_u32 v{VXH+k}, 0x20000, v{VXA+k}")
        I("v_bfe_u32 v13, v0, 2, 2"); I("v_lshl_add_u32 v14, v15, 3, v13"); I("v_lshlrev_b32 v14, 8, v14")
        I("v_bfe_u32 v15, v0, 4, 1"); I("v_lshl_add_u32 v14, v15, 5, v14")
        I("v_and_b32 v15, 3, v0"); I("v_lshl_add_u32 v14, v15, 3, v14"); I("v_add_u32 v14, 0x10000, v14")
        I("v_xor_b32 v13, s43, v13"); I(f"v_lshl_add_u32 v{VWA}, v13, 6, v14"); I(f"v_xor_b32 v{VWA+1}, 64, v{VWA}")
        I(f"s_lshl_b32 s54, s{SHEAD}, 4"); I(f"s_lshl_b32 s55, s{SIDX}, 1"); I("s_add_u32 s54, s54, s55")
        I(f"s_bfe_u32 s55, s{SW}, 0x10001"); I("s_add_u32 s54, s54, s55"); I("s_lshl_b32 s54, s54, 16")
        I(f"s_and_b32 s55, s{SW}, 1"); I("s_lshl_b32 s55, s55, 14"); I("s_add_u32 s54, s54, s55")
        I("s_lshl_b32 s55, s43, 10"); I("s_add_u32 s52, s54, s55"); I("s_add_u32 s52, s52, 0x8000")
        I("s_lshl_b32 s55, s43, 11"); I("s_add_u32 s54, s54, s55")

        if self.o.get("hotst"):
            I(f"s_and_b32 s54, s54, {self.o['hotst']*MB-1}"); I(f"s_and_b32 s52, s52, {self.o['hotst']*MB-1}")
        XG = T; GW = T + 4; hl = {}
        def gate_loads():
            L = []
            def E(t): L.append(lambda: I(t))
            def V(t):
                def f(): I(t); hl["t"] = vm.issue()
                L.append(f)
            E(f"s_lshl_b32 s40, s{SHEAD}, 7"); E(f"s_lshl_b32 s39, s{SIDX}, 2"); E("s_add_u32 s40, s40, s39"); E(f"s_add_u32 s40, s40, {FK_OFF}")
            E(f"v_mov_b32 v13, s40")
            E(f"s_lshr_b32 s39, s{SHEAD}, 2"); E("s_lshl_b32 s39, s39, 7"); E(f"s_and_b32 s40, s{SHEAD}, 3"); E("s_lshl_b32 s40, s40, 2"); E("s_add_u32 s39, s39, s40")
            E(f"s_lshl_b32 s40, s{SIDX}, 10"); E("s_add_u32 s40, s40, s39"); E(f"s_add_u32 s40, s40, {FC_OFF}")
            E("v_writelane_b32 v13, s40, 1")
            E(f"s_sub_u32 s40, 15, s{SIDX}"); E("s_lshl_b32 s40, s40, 10"); E("s_add_u32 s40, s40, s39"); E(f"s_add_u32 s40, s40, {FC_OFF}")
            E("v_writelane_b32 v13, s40, 2")
            E(f"s_lshl_b32 s40, s{SF}, 2"); E(f"s_add_u32 s40, s40, {FY_OFF}"); E("v_writelane_b32 v13, s40, 3"); E("v_mov_b32 v14, 0")
            def oo(): self.oob_sel(); I("v_add_u32 v13, s99, v13")
            L.append(oo)
            V(f"buffer_store_dword v14, v13, s[{RWS}:{RWS+3}], 0 offen sc1")
            E("s_lshl_b32 s37, s2, 3"); E(f"s_add_u32 s37, s37, s{SW}"); E("s_lshl_b32 s38, s37, 10")
            L.append(lambda: self.srd(RD, "q", 2*MB)); L.append(lambda: self.srd(RE, "wq", 4*MB)); L.append(lambda: self.srd(RT, "gate", 1024))
            V(f"buffer_load_dwordx4 {v(XG,4)}, v{VST}, s[{RD}:{RD+3}], s38 offen")
            V(f"buffer_load_dwordx4 {v(GW,4)}, v{VST}, s[{RT}:{RT+3}], 0 offen")
            return L
        def gate_ops():
            L = []; E = lambda t: L.append(lambda: I(t)); Z = T + 8
            L.append(lambda: vm.wait(hl["t"]))
            E(f"v_dot2_f32_bf16 v{Z}, v{XG}, v{GW}, 0")
            for i in range(1, 4): E(f"v_dot2_f32_bf16 v{Z}, v{XG+i}, v{GW+i}, v{Z}")
            for m in ("quad_perm:[1,0,3,2] row_mask:0xf", "quad_perm:[2,3,0,1] row_mask:0xf", "row_half_mirror row_mask:0xf", "row_mirror row_mask:0xf",
                      "row_bcast:15 row_mask:0xa", "row_bcast:31 row_mask:0xc"):
                E(f"v_add_f32_dpp v{Z}, v{Z}, v{Z} {m} bank_mask:0xf")
            E(f"v_readlane_b32 s36, v{Z}, 63"); E(f"v_mov_b32 v{Z+1}, {f2u(-LOG2E)}"); E(f"v_mul_f32 v{Z}, s36, v{Z+1}")
            E(f"v_exp_f32 v{Z}, v{Z}"); E(f"v_add_f32 v{Z}, 1.0, v{Z}"); E(f"v_rcp_f32 v{Z}, v{Z}")
            E("s_lshl_b32 s38, s37, 2"); E(f"s_add_u32 s38, s38, {G_OFF}"); E(f"v_mov_b32 v{Z+1}, 0")
            def gs():
                I(f"buffer_store_dword v{Z}, v{Z+1}, s[{RWS}:{RWS+3}], s38 offen{self.st}"); vm.issue()
            L.append(gs)
            return L
        def reads(t, k):
            st = k & 1; toks = {}
            xb = xbase(t); va = VXA if xb < 65536 else VXH
            def rx(mt):
                I(f"ds_read_b128 {v(FX[st]+4*mt,4)}, v{va+k} offset:{(xb & 65535)+mt*4096}"); toks[("x",mt)] = lg.issue()
            def rw(dt, h):
                I(f"ds_read_b64_tr_b16 {v(FW[st]+4*dt+2*h,2)}, v{VWA+dt} offset:{wbase(t)-65536+k*4096+h*1024}"); toks[("w",dt)] = lg.issue()
            return [lambda: rx(0), lambda: rw(0,0), lambda: rw(0,1), lambda: rw(1,0), lambda: rw(1,1), lambda: rx(1)], toks
        def mfs(t, k, toks):
            st = k & 1; L = []; ph = t >> 3; acc = ACCS[ph & 1]; first = (t & 7) == 0 and k == 0
            for mt in range(2):
                for dt in range(2):
                    def f(mt=mt, dt=dt):
                        lg.wait(max(toks[("x",mt)], toks[("w",dt)]))
                        d = v(acc + 16*(2*mt+dt), 16); X = v(FX[st]+4*mt,4); W = v(FW[st]+4*dt,4)
                        c = "0" if first else d
                        I(f"{MFMA} {d}, {X}, {W}, {c}" if ph == 1 else f"{MFMA} {d}, {W}, {X}, {c}")
                    L.append(f)
            return L
        def kv_out(ph):
            acc = ACCS[ph & 1]; out = []
            for tile in range(4):
                rt, dt = tile >> 1, tile & 1; b = acc + 16*tile
                for half in range(2):
                    pk = [lambda i=i, b=b: I(f"v_cvt_pk_bf16_f32 v{b+i}, v{b+2*i}, v{b+2*i+1}") for i in range(4*half, 4*half+4)]
                    if ph == 0: pk = [lambda i=i, b=b: I(f"v_mul_f32 v{b+i}, {f2u(LOG2E / math.sqrt(128.0))}, v{b+i}") for i in range(8*half, 8*half+8)] + pk
                    off = rt*8192 + (dt*2048 + half*1024 if ph == 0 else half*4096 + dt*1024)
                    def st(b=b, half=half, off=off):
                        if self.o.get("nost"): return
                        I(f"s_add_u32 s41, s{(54, 52)[ph]}, {off}")
                        I(f"buffer_store_dwordx4 {v(b+4*half,4)}, v{VST}, s[{RWS}:{RWS+3}], s41 offen{self.st}"); vm.issue()
                    out.append(pk + [st])
            return out
        side = {}; late = {}
        def spread(ops, t0, t1):
            sl = [(t, k) for t in range(t0, t1) for k in range(3)]
            n = len(ops)
            for j, key in enumerate(sl): side.setdefault(key, []).extend(ops[n*j//len(sl): n*(j+1)//len(sl)])
        KS = self.o.get("ks", 8); PG = self.o.get("pg", 0)
        spread(gate_loads(), PG, PG + 1); spread(gate_ops(), PG + 3, PG + 5)
        def wtouch(r, half, wv):
            def f():
                I(f"s_cmp_eq_u32 s{SW}, {wv}"); I(f"s_cselect_b32 s99, 0, {self.OOB}")
                I(f"s_lshl_b32 s40, s{SIDX}, 19"); I(f"s_lshl_b32 s39, s{SHEAD}, 8"); I("s_add_u32 s40, s40, s39"); I(f"s_add_u32 s40, s40, {half*32*8192}")
                I("v_lshrrev_b32 v3, 1, v0"); I("v_lshlrev_b32 v3, 13, v3"); I("v_and_b32 v2, 1, v0"); I("v_lshl_add_u32 v3, v2, 7, v3"); I("v_add_u32 v3, s99, v3")
                I(f"buffer_load_dword v1, v3, s[{r}:{r+3}], s40 offen"); vm.issue()
            return f
        t0 = self.o.get("wt", 1); t1 = self.o.get("wt2", 4)
        for j, (r, half) in enumerate(((RC, 0), (RC, 1), (RE, 0), (RE, 1)) if not self.o.get("nowt") else ()): side.setdefault(((t0 + j) if j < 2 else (t1 + j - 2), 2), []).append(wtouch(r, half, j))
        VS = self.o.get("vstages", 5)
        for ph, t0, t1 in ((0, KS, 16), (1, 16, 16 + VS)):
            pieces = kv_out(ph); sl = [(t, k) for t in range(t0, t1) for k in range(3)]
            for j, pc in enumerate(pieces):
                tt = t0 + (j * (t1 - t0)) // 8
                hh = len(pc) - 5
                side.setdefault((tt, 0), []).extend(pc[:hh]); side.setdefault((tt, 1), []).extend(pc[hh:-1]); late.setdefault(tt, []).append(pc[-1])
        QE = []; EQ = lambda t: QE.append(lambda: I(t))
        EQ(f"s_and_b32 s55, s{SW}, 2"); EQ("s_lshl_b32 s55, s55, 15"); EQ(f"s_add_u32 s55, s55, {QA_LDS}")
        EQ(f"s_and_b32 s54, s{SW}, 1"); EQ("s_lshl_b32 s54, s54, 14"); EQ("s_add_u32 s55, s55, s54")
        EQ("s_lshl_b32 s54, s43, 11"); EQ("s_add_u32 s55, s55, s54"); EQ(f"v_add_u32 v14, s55, v{VST}"); EQ("v_mov_b32 v54, v13")
        spread(QE, 23, 24)
        spread([lambda r=r: I(f"v_mov_b64 {v(192+2*r,2)}, 0") for r in range(32)], 22, 24)
        def fkoff():
            I(f"s_lshl_b32 s40, s{SHEAD}, 7"); I(f"s_lshl_b32 s41, s{SIDX}, 2"); I("s_add_u32 s40, s40, s41"); I(f"s_add_u32 s40, s40, {FK_OFF}")
        def w0only(fn):
            l = a.label("NP"); I(f"s_cmp_lg_u32 s{SW}, 0"); I(f"s_cbranch_scc1 {l}"); fn(); a.L(l)

        def ctouch():
            I(f"s_cmp_eq_u32 s{SW}, 0"); I(f"s_cselect_b32 s99, 0, {self.OOB}"); I("v_lshl_add_u32 v3, v0, 7, s99"); I("s_lshl_b32 s40, s2, 13")
            I(f"buffer_load_dword v1, v3, s[{RA}:{RA+3}], s40 offen"); vm.issue()
        if self.o.get("ct", 1):
            lp = a.label("PC")
            I(f"s_getpc_b64 s[{RT}:{RT+1}]"); a.L(lp)
            I(f"s_mov_b32 s{RT+2}, CODE_END-{lp}"); I(f"s_mov_b32 s{RT+3}, 0x00020000")
            I(f"s_cmp_eq_u32 s{SW}, 7"); I(f"s_cselect_b32 s99, 0, {self.OOB}"); I(f"s_and_b32 s40, s{SF}, 7"); I("s_lshl_b32 s40, s40, 13"); I("s_add_u32 s99, s99, s40")
            I("v_lshl_add_u32 v3, v0, 7, s99")
            I(f"buffer_load_dword v1, v3, s[{RT}:{RT+3}], 0 offen"); vm.issue()
        if self.o.get("sb", 1): self.barrier()
        for f in dma_list(1): f()
        dtok[1] = vm.issued
        T0 = [wtouch(RB, 0, 1), wtouch(RB, 1, 2), ctouch] if self.o.get("t0k") else []
        if self.o.get("t0pre"):
            for f in T0: f()
            T0 = []
        vm.wait(dtok[0]); self.barrier()
        self.stamp(1)
        L, toks = reads(0, 0)
        for f in L: f()
        for f in T0: f()
        mark = {}; TZ = PG + 2
        pend = dma_list(2)
        for t in range(24):
            for k in range(4):
                M = mfs(t, k, toks)
                if k < 3:
                    L, nt = reads(t, k+1)
                    D, pend = pend[:self.o.get("dper", 2)], pend[self.o.get("dper", 2):]
                    fl = [(0, 3, L)]
                    if D: fl.append((0, 4, D))
                    if side.get((t, k)): fl.append((0, 4, side[(t, k)]))
                    if k == 2 and late.get(t): fl.append((0, 4, late[t]))
                    self.stream(M, fl); toks = nt
                    if not pend and (t + 2) not in dtok: dtok[t+2] = vm.issued
                    if k == 2: mark[t] = vm.issued
                    if t == 17 and k == 0:
                        self.oob_sel(); I("v_lshl_add_u32 v13, v0, 2, s99"); td = self.poll_issue(14, 13, "0", RDBG)
                    if t == 20 and k == 0:
                        self.oob_sel(); I("v_and_b32 v13, 7, v0"); I("v_lshl_add_u32 v13, v13, 2, s99")
                        I(f"s_lshl_b32 s53, s{SHEAD}, 7"); I(f"s_add_u32 s53, s53, {FK_OFF}")
                        tp = self.poll_issue(15, 13, "s53")
                elif t < 23:
                    assert not pend
                    if t == 19: vm.wait(td); w0only(lambda: self.poll_check(14, 13, "0", rep4(1), RDBG))
                    if t == 21: vm.wait(tp); w0only(lambda: self.poll_check(15, 13, "s53", 1))
                    lg.wait(lg.issued); vm.wait(dtok[t+1])
                    if t == TZ: vm.wait(mark[TZ-2])
                    if t == 17: vm.wait(mark[15])
                    if t == 16 + VS: vm.wait(mark[15 + VS])
                    self.barrier()
                    ps = self.o.get("pstamp")
                    if ps is not None and 0 <= t - int(ps) + 1 < 13: self.stamp(17 + t - int(ps) + 1); vm.issue(2)
                    PB = []
                    if TZ <= t < TZ + 8: PB.append(lambda t=t: self.publish(SF, 1, RDBG, True, idx=t - TZ))
                    if t == 17: PB.append(lambda: (fkoff(), self.publish(40, 1)))
                    if t == 16 + VS: PB.append(lambda: (fkoff(), self.publish(40, 3)))
                    L, nt = reads(t+1, 0)
                    pend = dma_list(t+3)
                    if t == 21:
                        def k0(i):
                            I(f"s_lshl_b32 s40, s{SW}, 12"); I("s_add_u32 m0, s40, 0x8000")
                            I(f"s_lshl_b32 s41, s{SHEAD}, 20"); I("s_add_u32 s41, s41, s40")
                            I(f"buffer_load_dwordx4 v{VST}, s[{RWS}:{RWS+3}], s41 offen offset:{1024*i}{self.ld} lds"); vm.issue()
                        pend = [lambda i=i: k0(i) for i in range(4)]
                    D, pend = pend[:self.o.get("dper", 2)], pend[self.o.get("dper", 2):]
                    self.stream(M, [(0, 3, L)] + ([(1, 2, PB)] if PB else []) + ([(0, 4, D)] if D else [])); toks = nt
                    if not pend: dtok[t+3] = vm.issued
                else:
                    self.stream(M, [])
            if t == 7: self.stamp(2)
        self.stamp(3)
        def vc(): self.poll_check(55, 54, "s53", 3)
        QACC = ACCS[0]
        self.poll_issue(55, 54, "s53")
        for tile in range(4):
            rt, dt = tile >> 1, tile & 1; b = QACC + 16*tile
            for i in range(8): I(f"v_cvt_pk_bf16_f32 v{b+i}, v{b+2*i}, v{b+2*i+1}")
            for half in range(2):
                I(f"ds_write_b128 v14, {v(b+4*half,4)} offset:{rt*8192+dt*2048+half*1024}"); lg.issue()
        self.attn_setup()
        vm.wait(vm.issued); w0only(vc)
        lg.wait(lg.issued); self.barrier()

    def attn_setup(self): self.attn(True)
    def attn(self, setup=False):
        a = self.a; I = self.I; vm = self.vm; lg = self.lg; stream = self.stream
        ML = 159744; QA_LDS = 65536; QB_LDS = 131072
        O = 192; QF = 160; NM = 144; S = [112, 128]; PP = [96, 104]; RING = 64; NR = 8; E = 56; PK = 16
        VK, VV, VL16, LRUN, LU, THR, NINF, VQ, TMP, LA = 4, 5, 6, 7, 8, 9, 10, 11, 12, 14
        SR, SG, SC1, SC2, SKO, SVO, SKM, SVM, STH = 32, 33, 34, 35, 36, 37, 38, 39, 42
        SMK, SFIN, SCA, SM1 = 54, 55, 59, 58
        DC = self.o.get("dmacost", 16); WEV = self.o.get("wev", 2)
        if setup:
            I(f"s_and_b32 s{SR}, s{SW}, 3"); I(f"s_lshr_b32 s{SG}, s{SW}, 2")
            I(f"v_lshlrev_b32 v{VL16}, 4, v0")
            I(f"s_lshl_b32 s44, s{SR}, 13"); I(f"s_add_u32 s44, s44, {QB_LDS}"); I(f"v_add_u32 v{VQ}, s44, v{VL16}")
            I(f"s_lshl_b32 s45, s{SG}, 16"); I(f"v_subrev_u32 v{TMP+1}, s45, v{VQ}")
            I(f"s_mov_b32 s{SC1}, s{SIDX}")
            I(f"s_lshl_b32 s{SC2}, s{SIDX}, 1"); I(f"s_sub_u32 s{SC2}, 14, s{SC2}")
            I(f"s_cmp_eq_u32 s{SG}, 1"); I(f"s_cselect_b32 s{SM1}, 0, -1")
            I(f"s_lshl_b32 s43, s{SW}, 12"); I(f"s_lshl_b32 s{SVO}, s{SHEAD}, 20"); I(f"s_add_u32 s{SVO}, s{SVO}, s43")
            I(f"s_add_u32 s{SKO}, s{SVO}, 0x10000"); I(f"s_add_u32 s{SVO}, s{SVO}, 0x8000")
            I(f"s_mov_b32 s{SKM}, s43"); I(f"s_add_u32 s{SVM}, s43, 0x18000")
            I(f"s_mov_b32 s{STH}, {f2u(4096.0)}"); I(f"v_mov_b32 v{NINF}, 0xff800000")
            I(f"v_and_b32 v{THR}, 31, v0"); I(f"s_lshl_b32 s44, s{SR}, 5"); I(f"v_add_u32 v{THR}, s44, v{THR}")
            I(f"v_lshrrev_b32 v{TMP}, 5, v0"); I(f"v_lshlrev_b32 v{TMP}, 2, v{TMP}"); I(f"v_sub_u32 v{THR}, v{THR}, v{TMP}")
            I(f"v_add_u32 v{VK}, 0x8000, v{VL16}")
            I(f"s_lshl_b32 s{SCA}, s{SIDX}, 2"); I(f"s_add_u32 s{SCA}, s{SCA}, s{SR}"); I(f"s_lshl_b32 s{SCA}, s{SCA}, 5"); I(f"s_add_u32 s{SCA}, s{SCA}, s{SHEAD}")
            I(f"s_lshl_b32 s{SCA}, s{SCA}, 13"); I(f"s_add_u32 s{SCA}, s{SCA}, {CTX_OFF}")
            I(f"s_mov_b32 s{SFIN}, 0")
            if self.o.get("map84", 1):
                I(f"s_lshr_b32 s56, s{SF}, 6"); I("s_lshl_b32 s56, s56, 3"); I(f"s_bfe_u32 s44, s{SF}, 0x30002"); I("s_add_u32 s56, s56, s44")
                I(f"s_bfe_u32 s57, s{SF}, 0x10005"); I("s_lshl_b32 s57, s57, 2"); I(f"s_and_b32 s44, s{SF}, 3"); I("s_add_u32 s57, s57, s44")
                I(f"s_and_b32 s40, s{SF}, 63"); I("s_lshl_b32 s40, s40, 16")
            else:
                I(f"s_mov_b32 s56, s{SHEAD}"); I(f"s_mov_b32 s57, s{SIDX}")
                I(f"s_and_b32 s40, s{SF}, 31"); I("s_lshl_b32 s40, s40, 17")
            I(f"s_lshl_b32 s44, s{SW}, 13"); I("s_add_u32 s40, s40, s44"); I(f"s_add_u32 s40, s40, {WOT_OFF}")
            self.srd(RB, "ssmk", 2*MB); self.srd(RA, "k", 2*MB); self.srd(RC, "v", 2*MB); self.srd(RD, "shift", 4096); self.srd(RE, "wo", 4*MB)
            I("s_mov_b32 s41, 0")
            if not self.o.get("noprio"):
                l = a.label("PR"); I(f"s_cmp_eq_u32 s{SG}, 1"); I(f"s_cbranch_scc0 {l}"); I("s_setprio 1"); a.L(l)
            return
        def loadq(va):
            qt = []
            for ds in range(8):
                I(f"ds_read_b128 {v(QF+4*ds,4)}, v{va} offset:{1024*ds}"); qt.append(lg.issue())
            return qt
        op = lambda t, c=4: (lambda: I(t), c)
        def dma4(kind):
            sm, so = (SKM, SKO) if kind == "k" else (SVM, SVO)
            def d(i):
                def f():
                    if i == 0: I(f"s_mov_b32 m0, s{sm}"); I(f"s_xor_b32 s{sm}, s{sm}, 0x8000")
                    if not (self.o.get("a_nodma") and i):
                        I(f"buffer_load_dwordx4 v{VL16}, s[{RWS}:{RWS+3}], s{so} offen offset:{1024*i}{self.ld} lds")
                    if i == 3: I(f"s_add_u32 s{so}, s{so}, 0x10000")
                return (f, DC + (8 if i == 0 else 4 if i == 3 else 0))
            return [d(i) for i in range(4)]
        self.ring_n = 0
        def rd(kind, sl, idx):
            h = {}
            def f():
                slot = self.ring_n % NR; self.ring_n += 1
                h["reg"] = RING + 4*slot
                I(f"ds_read_b128 {v(h['reg'],4)}, v{VK if kind == 'k' else VV} offset:{sl*8192+idx*1024}"); h["tok"] = lg.issue()
            return f, h
        def wait_for(R, i):
            if R[i][1]["tok"] <= lg.done: return
            j = i
            while j + 1 < len(R) and j + 1 < i + WEV and "tok" in R[j+1][1] and R[j+1][1]["tok"] > R[i][1]["tok"]: j += 1
            lg.wait(R[j][1]["tok"])
        def mf_qk(sb, ds, R, i, czero=False):
            wait_for(R, i)
            c = (("0" if czero else v(NM,16)) if ds == 0 else v(S[sb],16))
            I(f"{MFMA} {v(S[sb],16)}, {v(R[i][1]['reg'],4)}, {v(QF+4*ds,4)}, {c}")
        def mf_pv(pb, idx, R, i=None, reg=None):
            ks, dt = idx >> 2, idx & 3
            if reg is None: wait_for(R, i); reg = R[i][1]["reg"]
            I(f"{MFMA} {v(O+16*dt,16)}, {v(reg,4)}, {v(PP[pb]+4*ks,4)}, {v(O+16*dt,16)}")
        def sm_ops(sb):
            L = []
            ex = lambda i: op(f"v_exp_f32 v{E+(i&7)}, v{S[sb]+i}", 8)
            def post(j):
                r = []; e0, e1 = E + ((2*j) & 7), E + ((2*j+1) & 7)
                if j == 0: r.append(op(f"v_add_f32 v{LU}, v{e0}, v{e1}"))
                else: r += [op(f"v_add_f32 v{LU}, v{LU}, v{e0}"), op(f"v_add_f32 v{LU}, v{LU}, v{e1}")]
                r.insert(1 if j else 0, op(f"v_cvt_pk_bf16_f32 v{PP[sb]+j}, v{e0}, v{e1}"))
                return r
            L += [ex(0), ex(1)]
            for j in range(8):
                p = post(j)
                L += ([ex(2*j+2), p[0], ex(2*j+3)] + p[1:]) if j < 7 else p
            if self.o.get("a_nosm"): L = [(lambda: None, 0) if i > 3 else x for i, x in enumerate(L)]
            return L
        def sched(M, fixed, chain):
            n = len(M); fc = [sum(c for _, c in fixed.get(g, [])) for g in range(n)]
            tot = sum(c for _, c in chain)
            lo, hi = 0.0, 4000.0
            for _ in range(40):
                lev = (lo + hi) / 2
                if sum(max(0, lev - f) for f in fc) >= tot: hi = lev
                else: lo = lev
            k = 0; credit = 0.0
            for g in range(n):
                M[g]()
                for c, _ in fixed.get(g, []): c()
                credit += max(0, hi - fc[g])
                while k < len(chain) and (g == n - 1 or chain[k][1] <= credit + 2):
                    chain[k][0](); credit -= chain[k][1]; k += 1
        def put(fixed, g, items): fixed.setdefault(g, []).extend(items)
        SPL = self.o.get("spl", 26)
        ool = []
        def rarely(cmp_, body):
            lo = a.label("OOL"); lb = a.label("RET")
            I(cmp_); I(f"s_cbranch_scc1 {lo}"); a.L(lb)
            ool.append((lo, lb, body))
        def mask_body(sb, koff):
            prs = [46, 48, 50, 52]
            if koff >= 64:
                I(f"v_subrev_u32 v{TMP+3}, 64, v{THR}"); tr = TMP + 3; koff -= 64
            elif koff < 0:
                I(f"s_lshl_b32 s44, s{SG}, 6"); I(f"v_subrev_u32 v{TMP+3}, s44, v{THR}"); tr = TMP + 3; koff = -koff - 1
            else: tr = THR
            for r0 in range(0, 16, 4):
                for r in range(r0, r0+4):
                    I(f"v_cmp_lt_i32 s[{prs[r&3]}:{prs[r&3]+1}], v{tr}, {(r & 3) + 8*(r >> 2) + koff}")
                for r in range(r0, r0+4):
                    I(f"v_cndmask_b32 v{S[sb]+r}, v{S[sb]+r}, v{NINF}, s[{prs[r&3]}:{prs[r&3]+1}]")
        def rowmax(sb, dst):
            b = S[sb]
            I(f"v_max3_f32 v{dst}, v{b}, v{b+1}, v{b+2}")
            for i in range(3, 15, 2): I(f"v_max3_f32 v{dst}, v{dst}, v{b+i}, v{b+i+1}")
            I(f"v_max_f32 v{dst}, v{dst}, v{b+15}"); I(f"v_mov_b32 v{dst+1}, v{dst}")
            I(f"v_permlane32_swap_b32 v{dst}, v{dst+1}"); I(f"v_max_f32 v{dst}, v{dst}, v{dst+1}")
        def init_max():
            rowmax(0, TMP)
            I(f"v_max_f32 v{TMP}, {f2u(-1e30)}, v{TMP}")
            for r in range(16): I(f"v_sub_f32 v{NM+r}, 0, v{TMP}")
            return [op(f"v_sub_f32 v{S[0]+r}, v{S[0]+r}, v{TMP}") for r in range(16)]
        rare = []
        def check(sb, other=True):
            def f():
                lr = a.label("RARE"); lb = a.label("BACK")
                I(f"v_cmp_nge_f32 vcc, s{STH}, v{LU}")
                if self.o.get("a_nocheck"): I("s_mov_b64 vcc, 0")
                I(f"s_cbranch_vccnz {lr}"); a.L(lb)
                I(f"v_add_f32 v{LRUN}, v{LRUN}, v{LU}")
                rare.append((lr, lb, sb, other))
            return f
        def fin_body():
            I(f"v_mov_b32 v{TMP}, v{LA}"); I(f"s_mov_b32 s{SFIN}, 2"); I("s_nop 0")
            I(f"v_permlane32_swap_b32 v{TMP}, v{LA}"); I(f"v_add_f32 v{TMP}, v{TMP}, v{LA}"); I(f"v_rcp_f32 v{TMP}, v{TMP}"); I(f"v_mov_b32 v{TMP+1}, v{TMP}")
            for q in range(8):
                for i in range(8*q, 8*q+8, 2): I(f"v_pk_mul_f32 {v(O+i,2)}, {v(O+i,2)}, {v(TMP,2)}")
                for i in range(4): I(f"v_cvt_pk_bf16_f32 v{PK+4*q+i}, v{O+8*q+2*i}, v{O+8*q+2*i+1}")
                for i in range(8*q, 8*q+8, 2): I(f"v_mov_b64 {v(O+i,2)}, 0")
        def st_body():
            I(f"s_add_u32 s44, s{SCA}, 4096"); I(f"s_mov_b32 s{SFIN}, 3")
            for q in range(8):
                I(f"buffer_store_dwordx4 {v(PK+4*q,4)}, v{VL16}, s[{RWS}:{RWS+3}], s{SCA if q < 4 else 44} offen offset:{1024*(q&3)}{self.st}")
        TR = [RING + 4*(2+i) for i in range(6)]
        def head(R, vmw, with_mfma=True, post=()):
            rf = [(f, 4) for f, h in R]; sm2 = sm_ops(0)[SPL:]
            nop = lambda: None
            def first():
                I("s_waitcnt lgkmcnt(4)"); mf_pv(1, 2, None, reg=TR[0])
            M = [first] + [lambda i=i: mf_pv(1, 2+i, None, reg=TR[i]) for i in range(1, 6)] if with_mfma else [nop]*6
            nb = self.o.get("nb", 4)
            sched(M[:2], {}, sm2[:nb])
            vmw(); I("s_waitcnt lgkmcnt(0)"); lg.mark_all_done(); self.barrier(); self.ring_n = 0
            fx = {0: rf[0:2], 1: rf[2:5], 2: rf[5:6], 3: rf[6:7] + [(nop, 12 + 8*len(post))]}
            sched(M[2:], fx, sm2[nb:])
            check(0)()
            for p in post: p()
        def mk_reads():
            return ([rd("k", 0, i) for i in range(8)] + [rd("v", 0, i) for i in range(8)] +
                    [rd("k", 1, i) for i in range(8)] + [rd("v", 1, i) for i in range(8)])
        def mid(R, dmas, kx, mb=None, trans=False, endops=(), extra=None):
            rf = [(f, 4) for f, h in R]
            M = [lambda i=i: mf_qk(0, i, R, i, trans) for i in range(8)] + [lambda i=i: mf_pv(0, i, R, 8+i) for i in range(8)]
            fx = {}
            for g in range(16): put(fx, g, [rf[7+g]])
            D = sum((dma4(k) for k in dmas), [])
            DS = self.o.get("dstep", 2)
            spill = []
            for n, d in enumerate(D):
                g = n * DS * (2 if len(D) == 4 and not extra else 1)
                if g < 15: put(fx, g, [d])
                else: spill.append((g - 16 if g >= 16 else 0, d))
            put(fx, 15, [(lambda: None, 20)])
            if extra:
                X0 = self.o.get("x0", 8); ng = 16 - X0 + 9; per = -(-len(extra) // ng)
                put(fx, X0, [op("s_waitcnt vmcnt(4)")])
                for g in range(X0, 16): put(fx, g, extra[(g-X0)*per:(g-X0+1)*per])
                for g in range(9): spill += [(g, x) for x in extra[(16-X0+g)*per:(16-X0+g+1)*per]]
            sched(M, fx, sm_ops(1))
            check(1, other=not trans)()
            if mb: mb()
            pre = []
            if trans:
                I(f"v_mov_b32 v{LA}, v{LRUN}"); I(f"v_mov_b32 v{LRUN}, 0"); I(f"s_mov_b32 s{SFIN}, 1")
                pre = init_max()
            M = [lambda i=i: mf_qk(1, i, R, 16+i) for i in range(8)] + [lambda i=i: mf_pv(1, i, R, 24+i) for i in range(2)]
            fx = {}
            for g in range(9): put(fx, g, [rf[23+g]])
            for g, d in spill: put(fx, g, [d])
            put(fx, 8, [op(f"v_xor_b32 v{VV}, 0x10000, v{VK}")] + kx)
            for n, e in enumerate(endops): put(fx, 7 - n, [e])
            put(fx, 9, [(lambda: None, 16)])
            sched(M, fx, pre + sm_ops(0)[:SPL])
            assert [R[26+i][1]["reg"] for i in range(6)] == TR
        vm4 = lambda: I("s_waitcnt vmcnt(4)")
        vm0 = lambda: I("s_waitcnt vmcnt(0)")
        def vm08():
            lo = a.label("W8"); lb = a.label("W8R")
            I(f"s_cmp_eq_u32 s{SFIN}, 3"); I(f"s_cbranch_scc1 {lo}"); I("s_waitcnt vmcnt(%d)" % self.o.get("a_vm", 0)); a.L(lb)
            def b(): I("s_waitcnt vmcnt(8)"); I(f"s_mov_b32 s{SFIN}, 4")
            ool.append((lo, lb, b))
        m1 = lambda sb, ko: (lambda: rarely(f"s_cmp_eq_u32 s{SC1}, s{SM1}", lambda: mask_body(sb, ko)))
        fin = lambda: rarely(f"s_cmp_eq_u32 s{SFIN}, 1", fin_body)
        sta = (lambda: rarely(f"s_cmp_eq_u32 s{SFIN}, 2", st_body), 8)

        KR, VR, SH, WO, AD = 16, 23, 28, 32, 40
        def side_loads():
            L = []; E = lambda t: L.append(op(t)); V = lambda t: L.append(op(t, DC))
            E(f"v_lshrrev_b32 v{AD}, 5, v0"); E(f"v_and_b32 v{AD+1}, 31, v0"); E(f"v_lshlrev_b32 v{AD+2}, 12, v{AD}"); E(f"v_lshl_add_u32 v{AD+2}, v{AD+1}, 2, v{AD+2}")
            E(f"s_lshl_b32 s60, s{SF}, 14"); E(f"s_lshl_b32 s61, s{SW}, 7"); E("s_add_u32 s60, s60, s61"); E("s_add_u32 s61, s60, 8192")
            for j in range(8): V(f"buffer_load_dword v{WO+j}, v{AD+2}, s[{RE}:{RE+3}], s{60+(j>>2)} offen offset:{1024*(j&3)}")
            E("s_lshr_b32 s62, s2, 3"); E("s_lshl_b32 s62, s62, 16"); E(f"s_lshl_b32 s63, s{SW}, 13"); E("s_add_u32 s62, s62, s63")
            E("s_and_b32 s63, s2, 7"); E("s_lshl_b32 s63, s63, 7"); E("s_add_u32 s62, s62, s63"); E(f"v_add_u32 v{AD+3}, s62, v{AD+2}")
            for i in range(3): E(f"v_subrev_u32 v{AD+4+i}, {3072-1024*i}, v{AD+3}")
            E("s_lshl_b32 s63, s63, 2"); E(f"v_lshl_add_u32 v{AD+7}, v{AD+1}, 4, s63")
            for i in range(3): V(f"buffer_load_dword v{KR+i}, v{AD+4+i}, s[{RA}:{RA+3}], 0 offen")
            for i in range(4): V(f"buffer_load_dword v{KR+3+i}, v{AD+3}, s[{RA}:{RA+3}], 0 offen offset:{1024*i}")
            for i in range(4): V(f"buffer_load_dword v{VR+i}, v{AD+3}, s[{RC}:{RC+3}], 0 offen offset:{1024*i}")
            V(f"buffer_load_dwordx4 {v(SH,4)}, v{AD+7}, s[{RD}:{RD+3}], 0 offen")
            E(f"s_lshl_b32 s60, s{SF}, 13"); E(f"s_add_u32 s60, s60, s{SWK}"); E(f"v_and_b32 v27, 7, v0"); E("v_lshlrev_b32 v27, 7, v27")
            V(f"buffer_load_dword v1, v27, s[{RB}:{RB+3}], s60 offen")
            return L
        NSL = 21
        def side_math():
            L = []; E = lambda t: L.append(op(t)); V = lambda t: L.append(op(t, DC))
            W2 = 48
            E("s_mov_b32 s60, 0x05040100"); E("s_mov_b32 s61, 0x07060302")
            for j in range(4): E(f"v_perm_b32 v{W2+j}, v{WO+2*j+1}, v{WO+2*j}, s60")
            for j in range(4): E(f"v_perm_b32 v{W2+4+j}, v{WO+2*j+1}, v{WO+2*j}, s61")
            E(f"s_lshl_b32 s60, s{SW}, 8"); E(f"s_add_u32 s60, s60, s{SF}"); E("s_lshl_b32 s60, s60, 11"); E(f"s_add_u32 s60, s60, {WOT_OFF}")
            for mt in range(2): V(f"buffer_store_dwordx4 {v(W2+4*mt,4)}, v{VL16}, s[{RWS}:{RWS+3}], s60 offen offset:{1024*mt}{self.st}")
            KU, SU, OO, VU, PQ = 32, 42, 48, 39, 52
            for c in range(2):
                def unp(d, sreg, half): E(f"v_lshlrev_b32 v{d}, 16, v{sreg}" if half == 0 else f"v_and_b32 v{d}, 0xffff0000, v{sreg}")
                for i in range(7): unp(KU+i, KR+i, c)
                for j in range(4): unp(SU+j, SH + 2*c + (j >> 1), j & 1)
                for o in range(4):
                    E(f"v_mul_f32 v{OO+o}, v{KU+o}, v{SU+3}")
                    for j in (2, 1, 0): E(f"v_fmac_f32 v{OO+o}, v{KU+o+3-j}, v{SU+j}")
                    unp(VU, VR+o, c)
                    E(f"v_mul_f32 v{OO+o}, v{OO+o}, v{VU}")
                d = PQ + 2*(1-c)
                E(f"v_cvt_pk_bf16_f32 v{d}, v{OO+3}, v{OO+2}"); E(f"v_cvt_pk_bf16_f32 v{d+1}, v{OO+1}, v{OO}")
            E(f"v_lshlrev_b32 v{AD+1}, 5, v{AD+1}"); E(f"v_lshl_add_u32 v{AD+1}, v{AD}, 4, v{AD+1}")
            E(f"v_permlane32_swap_b32 v{PQ+2}, v{PQ}"); E(f"v_permlane32_swap_b32 v{PQ+3}, v{PQ+1}")
            E("s_lshr_b32 s60, s2, 3"); E("s_lshl_b32 s60, s60, 16"); E(f"s_lshl_b32 s61, s{SW}, 13"); E("s_add_u32 s60, s60, s61")
            E("s_and_b32 s61, s2, 7"); E("s_lshl_b32 s61, s61, 10"); E("s_add_u32 s60, s60, s61"); E(f"s_add_u32 s60, s60, {KVT_OFF}")
            V(f"buffer_store_dwordx4 {v(PQ,4)}, v{AD+1}, s[{RWS}:{RWS+3}], s60 offen{self.st}")
            return L
        def spub_body():
            l1 = a.label("SM"); l2 = a.label("SP")
            I("s_add_u32 s41, s41, 1"); I(f"s_add_u32 s44, s41, s{SG}"); I("s_cmp_lg_u32 s44, 2"); I(f"s_cbranch_scc1 {l1}")
            for c, _ in side_math(): c()
            a.L(l1)
            I("s_cmp_lg_u32 s41, 4"); I(f"s_cbranch_scc1 {l2}")
            I(f"s_lshl_b32 s44, s{SF}, 2"); I(f"s_add_u32 s44, s44, {FY_OFF}")
            sv = self.save(); self.publish(44, 2); self.restore(sv)
            a.L(l2)
        spub = lambda: rarely("s_cmp_lt_u32 s41, 4", spub_body)
        def snap():
            self.oob_sel(); I("v_lshl_add_u32 v49, v0, 4, s99"); I(f"s_mov_b32 s60, {FY_OFF}")
            I(f"buffer_load_dwordx4 v[52:55], v49, s[{RWS}:{RWS+3}], s60 offen sc1")
        def side_check():
            l = a.label("SCK"); lp = a.label("SPL")
            I(f"s_cmp_lg_u32 s{SW}, 0"); I(f"s_cbranch_scc1 {l}")
            I("s_mov_b32 s99, 20000"); a.L(lp)
            I("v_and_b32 v52, v52, v53"); I("v_and_b32 v54, v54, v55"); I("v_and_b32 v52, v52, v54"); I("v_and_b32 v52, 2, v52")
            I("v_cmp_ne_u32 vcc, 2, v52"); I(f"s_cbranch_vccz {l}"); I("s_sleep 2")
            I(f"buffer_load_dwordx4 v[52:55], v49, s[{RWS}:{RWS+3}], s60 offen sc1")
            I("s_sub_u32 s99, s99, 1"); I("s_cmp_lg_u32 s99, 0"); I("s_waitcnt vmcnt(0)"); I(f"s_cbranch_scc1 {lp}")
            a.L(l)
        m2 = lambda sb, ko: (lambda: rarely(f"s_cmp_eq_u32 s{SC2}, 0", lambda: (snap(), mask_body(sb, ko))))
        LEV = a.label("EVEN"); LODM = a.label("ODDM"); LTRANS = a.label("TRANS"); LP2 = a.label("P2"); LP2B = a.label("P2B"); LDRAIN = a.label("DRAIN")
        self.stamp(8)
        self.ring_n = 0
        R = [rd("k", 0, i) for i in range(8)] + [rd("k", 1, i) for i in range(8)]
        for i in range(7):
            I(f"ds_read_b128 {v(QF+4*i,4)}, v{TMP+1} offset:{1024*i}"); lg.issue()
            R[i][0]()
        def q7():
            I(f"ds_read_b128 {v(QF+28,4)}, v{TMP+1} offset:{1024*7}"); lg.issue()
        D = dma4("v") + dma4("k")
        sched([lambda i=i: mf_qk(0, i, R, i, True) for i in range(8)], {g: ([(q7, 4)] if g == 0 else []) + [(R[7+g][0], 4), D[g]] for g in range(8)}, [])
        m1(0, 0)()
        pre = init_max()
        I(f"v_mov_b32 v{LRUN}, 0")
        fx = {}
        put(fx, 0, [(R[15][0], 4)]); put(fx, 4, [op(f"v_xor_b32 v{VV}, 0x10000, v{VK}"), op(f"v_xor_b32 v{VK}, 0x4000, v{VK}")])
        SLd = side_loads(); n8 = (len(SLd) + 7) // 8
        for g in range(8): put(fx, g, SLd[g*n8:(g+1)*n8])
        sched([lambda i=i: mf_qk(1, i, R, 8+i) for i in range(8)], fx, pre + sm_ops(0)[:SPL])
        R = mk_reads()
        head(R, lambda: I(f"s_waitcnt vmcnt({4+NSL})"), False, post=[m1(1, 32)])
        svm = self.save()
        I(f"s_branch {LODM}")
        a.L(LEV)
        R = mk_reads(); head(R, vm4)
        mid(R, "k", [op(f"v_xor_b32 v{VK}, 0x4000, v{VK}")], mb=m1(0, 0))
        R = mk_reads(); head(R, vm4, post=[m1(1, 32), spub])
        assert self.lg.issued - self.lg.done == svm[2] - svm[3]
        a.L(LODM)
        mid(R, "v", [op(f"v_xor_b32 v{VK}, 0xc000, v{VK}")], mb=m1(0, 64), endops=[op(f"s_sub_u32 s{SC1}, s{SC1}, 1")])
        I(f"s_cmp_lg_u32 s{SC1}, -1"); I(f"s_cbranch_scc1 {LEV}")
        I(f"s_cmp_eq_u32 s{SG}, 1"); I(f"s_cbranch_scc1 {LTRANS}")
        svt = self.save()
        R = mk_reads(); head(R, vm4)
        mid(R, "k", [op(f"v_xor_b32 v{VK}, 0x8000, v{VK}")], mb=m2(0, -1))
        a.L(LP2B)
        I(f"s_cmp_eq_u32 s{SC2}, 0"); I(f"s_cbranch_scc1 {LDRAIN}")
        a.L(LP2)
        R = mk_reads(); head(R, vm08, post=[spub, fin, lambda: I(f"s_sub_u32 s{SC2}, s{SC2}, 1")])
        mid(R, "kv", [op(f"v_xor_b32 v{VK}, 0x8000, v{VK}")], mb=m2(0, -1), endops=[sta])
        I(f"s_cmp_lg_u32 s{SC2}, 0"); I(f"s_cbranch_scc1 {LP2}")
        a.L(LDRAIN)
        self.stamp(10)
        R2 = [rd("v", 0, i) for i in range(8)] + [rd("v", 1, i) for i in range(8)]
        rf = [(f, 4) for f, h in R2]
        head(R2, lambda: (vm08(), side_check()), post=[fin, sta[0]])
        mask_body(1, -33)
        ts, ts2, ts3 = self.tail_setup(); n8 = (len(ts) + 4) // 5
        fx = {g: [rf[7+g]] + ts[g*n8:(g+1)*n8] for g in range(8)}
        for g in range(3):
            if g < len(ts2): put(fx, 5 + g, [ts2[g]])
        sched([lambda i=i: mf_pv(0, i, R2, i) for i in range(8)], fx, sm_ops(1))
        check(1)()
        pre = []; E_ = lambda t: pre.append(op(t))
        E_(f"v_mov_b32 v{TMP}, v{LRUN}"); E_(f"s_lshl_b32 s44, s{SW}, 9"); E_(f"s_add_u32 s44, s44, {ML}")
        E_(f"v_permlane32_swap_b32 v{TMP}, v{LRUN}"); E_(f"v_add_f32 v{NM+1}, v{TMP}, v{LRUN}")
        E_(f"v_lshrrev_b32 v{TMP}, 1, v{VL16}"); E_(f"v_add_u32 v{TMP}, s44, v{TMP}")
        def wml():
            I(f"ds_write_b64 v{TMP}, {v(NM,2)}"); lg.issue()
        pre.append((wml, 4))
        E_(f"v_xor_b32 v{TMP}, 0x800, v{TMP}")
        E_(f"s_lshl_b32 s46, s{SW}, 13"); E_(f"v_add_u32 v{TMP+1}, s46, v{VL16}"); E_(f"v_xor_b32 v{TMP+2}, 0x8000, v{TMP+1}")
        E_(f"s_sub_u32 s54, 15, s{SIDX}"); E_(f"s_lshl_b32 s54, s54, 2"); E_(f"s_add_u32 s54, s54, s{SR}"); E_("s_lshl_b32 s54, s54, 5"); E_(f"s_add_u32 s54, s54, s{SHEAD}")
        E_("s_lshl_b32 s54, s54, 13"); E_(f"s_lshl_b32 s44, s{SG}, 12"); E_("s_add_u32 s54, s54, s44"); E_(f"s_add_u32 s54, s54, {CTX_OFF}")
        fx = {0: [rf[15]]}
        for g, x in enumerate(ts2[3:]): put(fx, g, [x])
        sched([lambda i=i: mf_pv(1, i, R2, 8+i) for i in range(8)], fx, pre + ts3)
        self.stamp(11)
        lg1 = a.label("MG1"); lj = a.label("MGJ")
        I(f"s_cmp_eq_u32 s{SG}, 1"); I(f"s_cbranch_scc1 {lg1}")
        sv2 = self.save(); PR = 64
        for g in (0, 1):
            if g: a.L(lg1); self.restore(sv2)
            own = O + 32*g; snd = O + 32*(1-g)
            for i in range(8):
                I(f"ds_write_b128 v{TMP+1}, {v(snd+4*i,4)} offset:{1024*i}"); lg.issue()
            lg.wait(lg.issued); self.barrier()
            I(f"ds_read_b64 {v(96,2)}, v{TMP}"); t0 = lg.issue()
            tk = []
            for i in range(8):
                I(f"ds_read_b128 {v(PR+4*i,4)}, v{TMP+2} offset:{1024*i}"); tk.append(lg.issue())
            lg.wait(t0)
            I(f"v_min_f32 v98, v{NM}, v96"); I(f"v_sub_f32 v99, v98, v{NM}"); I(f"v_sub_f32 v100, v98, v96")
            I("v_exp_f32 v99, v99"); I("v_exp_f32 v100, v100")
            I(f"v_mul_f32 v101, v99, v{NM+1}"); I("v_fmac_f32 v101, v100, v97"); I("v_rcp_f32 v101, v101")
            I("v_mul_f32 v102, v99, v101"); I("v_mul_f32 v103, v99, v101"); I("v_mul_f32 v104, v100, v101"); I("v_mul_f32 v105, v100, v101")
            for q in range(4):
                for i in range(8*q, 8*q+8, 2): I(f"v_pk_mul_f32 {v(own+i,2)}, {v(own+i,2)}, v[102:103]")
                lg.wait(tk[2*q+1])
                for i in range(8*q, 8*q+8, 2): I(f"v_pk_fma_f32 {v(own+i,2)}, {v(PR+i,2)}, v[104:105], {v(own+i,2)}")
                for i in range(4): I(f"v_cvt_pk_bf16_f32 v{snd+4*q+i}, v{own+8*q+2*i}, v{own+8*q+2*i+1}")
                I(f"buffer_store_dwordx4 {v(snd+4*q,4)}, v{VL16}, s[{RWS}:{RWS+3}], s54 offen offset:{1024*q}{self.st}"); self.tctx = vm.issue()
            if not g: I(f"s_branch {lj}")
        a.L(lj)
        I("s_setprio 0")
        self.stamp(4)
        def cold():
            a.L(LTRANS)
            self.restore(svt)
            loadq(VQ); I("s_waitcnt lgkmcnt(0)")
            I(f"v_xor_b32 v{VK}, 0x4000, v{VK}")
            R = mk_reads(); head(R, vm4, post=[lambda: mask_body(1, 96)])
            mid(R, "k", [op(f"v_xor_b32 v{VK}, 0x8000, v{VK}")], mb=m2(0, -1), trans=True)
            I(f"s_branch {LP2B}")
            for (lo, lb, body) in ool:
                a.L(lo); body(); I(f"s_branch {lb}")
            for (lr, lb, sb, other) in rare:
                a.L(lr)
                I("s_nop 15")
                rowmax(sb, TMP)
                I(f"v_max_f32 v{TMP}, 0, v{TMP}"); I(f"v_exp_f32 v{TMP+1}, -v{TMP}")
                for r in range(16): I(f"v_sub_f32 v{NM+r}, v{NM+r}, v{TMP}")
                for r in range(16): I(f"v_sub_f32 v{S[sb]+r}, v{S[sb]+r}, v{TMP}")
                if other:
                    for r in range(16): I(f"v_sub_f32 v{S[1-sb]+r}, v{S[1-sb]+r}, v{TMP}")
                for r in range(64): I(f"v_mul_f32 v{O+r}, v{O+r}, v{TMP+1}")
                I(f"v_mul_f32 v{LRUN}, v{LRUN}, v{TMP+1}")
                for c, _ in sm_ops(sb): c()
                I("s_nop 1"); I(f"s_branch {lb}")
        self.attn_rare = cold

    HB = 65536; HC = 4416; XB = 136192; YB = 148480
    SC, SJ, SB, SCH, SHB_, SWO, SCX = 34, 35, 36, 37, 38, 39, 40
    WS_ = [16, 24, 32, 40, 176, 184, 56, 80, 88, 96, 104, 144, 152, 160]
    CS_ = [168, 112, 120, 128, 136, 64, 72]
    NL = 4
    def tail_setup(self):
        I = self.I; L = []; E = lambda t: L.append((lambda: I(t), 4))
        SC, SJ, SB, SCH, SHB_, SWO, SCX = self.SC, self.SJ, self.SB, self.SCH, self.SHB_, self.SWO, self.SCX
        self.wtok = {}; self.wslot = dict(enumerate(self.WS_))
        E(f"s_lshr_b32 s{SC}, s{SW}, 2"); E(f"s_and_b32 s{SJ}, s{SW}, 3")
        E(f"s_lshl_b32 s{SCH}, s{SF}, 1"); E(f"s_add_u32 s{SCH}, s{SCH}, s{SC}"); E(f"s_lshl_b32 s{SCH}, s{SCH}, 12")
        E(f"s_lshl_b32 s60, s{SJ}, 10"); E("v_add_u32 v50, s60, v6"); E("v_subrev_u32 v51, 16, v50")
        E(f"s_lshr_b32 s60, s{SCH}, 8"); E(f"s_add_u32 s60, s60, {KVT_OFF}"); E("v_lshlrev_b32 v52, 9, v50")
        def ld(t):
            def f(): I(t); self.th = self.vm.issue()
            L.append((f, 16))
        ld(f"buffer_load_dwordx4 {v(160,4)}, v51, s[{RB}:{RB+3}], s{SCH} offen")
        ld(f"buffer_load_dwordx4 {v(164,4)}, v50, s[{RB}:{RB+3}], s{SCH} offen")
        ld(f"buffer_load_dwordx4 {v(168,4)}, v52, s[{RWS}:{RWS+3}], s60 offen{self.ld}")
        E(f"s_lshl_b32 s{SWO}, s57, 19"); E(f"s_lshl_b32 s60, s{SW}, 16"); E(f"s_add_u32 s{SWO}, s{SWO}, s60"); E(f"s_add_u32 s{SWO}, s{SWO}, {WOT_OFF}")
        L2 = [(lambda i=i: self.wload(i), 36) for i in range(self.o.get("we", 0))]
        L3 = []; L, Lx = L3, L
        E = lambda t: L3.append((lambda: I(t), 4))
        E(f"s_mul_i32 s{SB}, s{SC}, 6144"); E(f"s_add_u32 s{SB}, s{SB}, {self.XB}")
        E(f"s_mul_i32 s{SHB_}, s{SC}, {8*self.HC}"); E(f"s_add_u32 s{SHB_}, s{SHB_}, {self.HB}")
        E(f"s_lshl_b32 s{SCX}, s56, 19"); E(f"s_lshl_b32 s60, s{SW}, 15"); E(f"s_add_u32 s{SCX}, s{SCX}, s60"); E(f"s_add_u32 s{SCX}, s{SCX}, {CTX_OFF}")
        return Lx, L2, L3
    def wreg(self, i):
        return self.WS_[i % len(self.WS_)]
    def wload(self, i):
        I = self.I; r = self.wslot[i]
        I(f"s_add_u32 s61, s{self.SWO}, {i*2048}")
        for mt in range(2):
            I(f"buffer_load_dwordx4 {v(r+4*mt,4)}, v6, s[{RWS}:{RWS+3}], s61 offen offset:{mt*1024}{self.ld}"); self.wtok[i] = self.vm.issue()
    def tail_early(self):
        I = self.I; vm = self.vm; lg = self.lg; HC = self.HC
        SJ, SB, SCH, SHB_ = self.SJ, self.SB, self.SCH, self.SHB_
        Ee, Eo, Oe, Oo = 160, 113, 122, 131
        vm.wait(self.th)
        for k in range(7): I(f"v_alignbit_b32 v{Oe+k}, v{Ee+k+1}, v{Ee+k}, 16")
        for k in range(1, 7): I(f"v_alignbit_b32 v{Oo+k}, v{Ee+k+1}, v{Ee+k}, 16")
        for k in range(1, 7): I(f"v_mov_b32 v{Eo+k}, v{Ee+k}")
        I(f"s_add_u32 s60, s{SHB_}, 64"); I("v_add_u32 v51, s60, v50")
        for r in range(8):
            sft = 1 + r; k = sft >> 1
            base = ((Oe, Oo) if sft & 1 else (Ee, Eo))[k & 1]
            I(f"ds_write_b128 v51, {v(base+k,4)} offset:{r*HC}"); lg.issue()
        I("v_and_b32 v51, 3, v0"); I("v_mul_u32_u24 v52, 1536, v51"); I("v_lshrrev_b32 v53, 6, v50"); I("v_lshl_add_u32 v52, v53, 4, v52")
        I(f"s_add_u32 s60, s{SB}, 512"); I("v_add_u32 v52, s60, v52")
        I(f"ds_write_b128 v52, {v(168,4)}"); lg.issue()
        for r in range(2): I(f"v_mov_b64 {v(172+2*r,2)}, 0")
        I("v_bfe_u32 v52, v0, 2, 3"); I(f"v_mul_u32_u24 v52, {HC}, v52"); I("v_lshl_add_u32 v52, v51, 4, v52"); I(f"v_add_u32 v52, s{SHB_}, v52")
        I(f"ds_write_b128 v52, {v(172,4)}"); lg.issue()
        I(f"s_mul_i32 s60, s{SJ}, 1536"); I(f"s_add_u32 s60, s60, s{SB}"); I("v_lshl_add_u32 v52, v0, 3, s60")
        I(f"ds_write_b64 v52, {v(172,2)}"); lg.issue()
    def tailp(self):
        a = self.a; I = self.I; vm = self.vm; lg = self.lg
        HB, HC, YB = self.HB, self.HC, self.YB
        SC, SJ, SB, SCH, SHB_, SWO, SCX = self.SC, self.SJ, self.SB, self.SCH, self.SHB_, self.SWO, self.SCX
        ACC = 192; FRS = [224, 240, 64]; RD_ = 224
        VL16, VA, VB, T, VP, VPA, VO, GR, VLW, XR = 6, 4, 5, 12, 7, 8, 9, 10, 11, 48
        OACC = 192
        NW, NCX, NL = len(self.WS_), len(self.CS_), self.o.get("nl", 0)
        wtok = self.wtok; ctok = {}; wslot = self.wslot; cslot = dict(enumerate(self.CS_))
        I(f"s_lshr_b32 s53, s56, 1"); I("s_lshl_b32 s53, s53, 10"); I(f"s_lshl_b32 s44, s{SW}, 7"); I("s_add_u32 s53, s53, s44"); I(f"s_add_u32 s53, s53, {FC_OFF}")
        I(f"v_and_b32 v{VPA}, 3, v0"); I(f"v_lshlrev_b32 v{VPA}, 2, v{VPA}")
        P0 = self.o.get("p0", 0)
        tc0 = self.poll_issue(VP, VPA, "s53") if P0 else self.tctx
        self.tail_early()
        PUBN = self.o.get("pubn", 1)
        I(f"s_lshr_b32 s45, s{SHEAD}, 2"); I("s_lshl_b32 s45, s45, 7"); I(f"s_and_b32 s44, s{SHEAD}, 3"); I("s_lshl_b32 s44, s44, 2"); I("s_add_u32 s45, s45, s44")
        I(f"s_sub_u32 s44, 15, s{SIDX}"); I("s_lshl_b32 s44, s44, 10"); I("s_add_u32 s46, s44, s45"); I(f"s_add_u32 s46, s46, {FC_OFF}")
        I(f"s_lshl_b32 s44, s{SIDX}, 10"); I("s_add_u32 s47, s44, s45"); I(f"s_add_u32 s47, s47, {FC_OFF}")
        self.srd(RC, "out", 2*MB); self.srd(RD, "q", 2*MB)
        I(f"s_lshl_b32 s44, s{SF}, 2"); I(f"s_load_dword s55, s[{P['ssmD']}:{P['ssmD']+1}], s44")
        I(f"v_and_b32 v{T}, 31, v0"); I(f"v_lshrrev_b32 v{T+1}, 5, v0")
        I(f"v_and_b32 v{T+2}, 7, v0"); I(f"v_mul_u32_u24 v{VA}, {HC}, v{T+2}")
        I(f"v_bfe_u32 v{T+2}, v0, 3, 2"); I(f"v_sub_u32 v{T+2}, v{T+2}, v{T+1}"); I(f"v_lshl_add_u32 v{VA}, v{T+2}, 4, v{VA}")
        I(f"s_lshl_b32 s43, s{SJ}, 9"); I(f"s_add_u32 s43, s43, s{SHB_}"); I("s_add_u32 s43, s43, 32"); I(f"v_add_u32 v{VA}, s43, v{VA}")
        I(f"s_lshl_b32 s43, s{SJ}, 7"); I(f"s_sub_u32 s43, s{SB}, s43"); I("s_add_u32 s43, s43, 400")
        I(f"v_lshl_add_u32 v{VB}, v{T}, 4, s43"); I(f"v_mul_u32_u24 v{T+2}, 1536, v{T+1}"); I(f"v_add_u32 v{VB}, v{VB}, v{T+2}")
        I(f"s_lshl_b32 s51, s{SW}, 13"); I(f"v_add_u32 v{VLW}, s51, v{VL16}")
        I("s_waitcnt lgkmcnt(0)"); lg.mark_all_done(); self.barrier()
        self.stamp(5)
        def cload(i):
            r = cslot[i]
            I(f"s_add_u32 s62, s{SCX}, {(i//4)*4096}"); I("s_add_u32 s63, s62, 0x40000")
            for st in range(2):
                I(f"buffer_load_dwordx4 {v(r+4*st,4)}, v{VL16}, s[{RWS}:{RWS+3}], s{62+st} offen offset:{(i%4)*1024}{self.ld}"); ctok[i] = vm.issue()
        ltok = {}
        def lstage(j):
            I(f"s_add_u32 m0, s51, {j*2048}"); I(f"s_add_u32 s61, s{SWO}, {(NW+j)*2048}")
            for mt in range(2):
                I(f"buffer_load_dwordx4 v{VL16}, s[{RWS}:{RWS+3}], s61 offen offset:{mt*1024}{self.ld} lds"); ltok[j] = vm.issue()
        def early(lo, hi, level):
            le = a.label("NE")
            I(f"s_cmp_lg_u32 s50, {level}"); I(f"s_cbranch_scc1 {le}")
            sv = self.save()
            for i in range(lo, hi): cload(i)
            self.restore(sv); I(f"s_mov_b32 s50, {level+1}")
            a.L(le)
        def seen():
            I(f"v_and_b32 v{VP}, 1, v{VP}"); I(f"v_cmp_ne_u32 vcc, 1, v{VP}"); I("s_cmp_eq_u64 vcc, 0"); I("s_cselect_b32 s52, 1, 0"); I("s_max_u32 s50, s50, s52")
        I("s_mov_b32 s50, 0")
        wl = [lambda i=i: self.wload(i) for i in range(NW) if i not in wtok] + [lambda j=j: lstage(j) for j in range(NL)]
        steps = [(dd, ks) for dd in range(8) for ks in range(2)]
        toks = {}
        def reads(n):
            dd, ks = steps[n]; b = FRS[n % 3]
            def r(k, reg, addr, off):
                def f():
                    I(f"ds_read_b128 {v(reg,4)}, v{addr} offset:{off}"); toks[(n, k)] = lg.issue()
                return f
            return [r(0, b, VA, 64*dd + 32*(1-ks)), r(1, b+4, VB, ks*3072 + (7-dd)*16),
                    r(2, b+8, VB, ks*3072 + (7-dd)*16 + 512), r(3, b+12, VA, 64*dd + 32*(1-ks) + 2048)]
        for n in range(2):
            for f in reads(n): f()
        for n in range(16):
            b = FRS[n % 3]; L = reads(n+2) if n + 2 < 16 else []
            c0 = "0" if n == 0 else v(ACC,16); c1 = "0" if n == 0 else v(ACC+16,16)
            lg.wait(toks[(n,1)]); I(f"{MFMA} {v(ACC,16)}, {v(b,4)}, {v(b+4,4)}, {c0}")
            for f in L[0:2]: f()
            lg.wait(toks[(n,2)]); I(f"{MFMA} {v(ACC+16,16)}, {v(b,4)}, {v(b+8,4)}, {c1}")
            for f in L[2:3]: f()
            lg.wait(toks[(n,3)]); I(f"{MFMA} {v(ACC+16,16)}, {v(b+12,4)}, {v(b+4,4)}, {v(ACC+16,16)}")
            for f in L[3:4]: f()
            if n == PUBN:
                vm.wait(tc0); self.barrier(); self.publish(46); self.publish(47)
                if P0: seen()
            if n >= PUBN and n < 14:
                for _ in range(-(-len(wl) // (14 - n))): wl.pop(0)()
            if n == self.o.get("p1", 12): tc1 = self.poll_issue(VP, VPA, "s53")
            if n == 14 and P0: early(0, NCX - 2, 1)
        assert not wl
        I(f"s_add_u32 s43, s51, {HB}"); I(f"v_add_u32 v{T+2}, s43, v{VL16}")
        self.barrier()
        for i in range(8):
            I(f"ds_write_b128 v{T+2}, {v(ACC+4*i,4)} offset:{1024*i}"); lg.issue()
        I(f"s_lshl_b32 s43, s{SC}, 15"); I(f"s_lshl_b32 s44, s{SJ}, 11"); I("s_add_u32 s43, s43, s44"); I(f"s_add_u32 s43, s43, {HB}"); I(f"v_add_u32 v{T+2}, s43, v{VL16}")
        I(f"s_and_b32 s43, s{SJ}, 1"); I("s_mul_i32 s44, s43, 3072"); I(f"s_lshr_b32 s45, s{SJ}, 1"); I("s_lshl_b32 s41, s45, 9")
        I("s_add_u32 s44, s44, s41"); I(f"s_add_u32 s44, s44, s{SB}"); I("s_add_u32 s44, s44, 520")
        I(f"v_lshl_add_u32 v{T+3}, v{T}, 4, s44"); I(f"v_lshlrev_b32 v{VA}, 3, v{T+1}"); I(f"v_sub_u32 v{T+3}, v{T+3}, v{VA}")
        I(f"v_lshlrev_b32 v{VB}, 6, v{T}"); I(f"v_lshl_add_u32 v{VB}, v{T+1}, 4, v{VB}")
        I("s_lshl_b32 s45, s45, 11"); I("s_lshl_b32 s43, s43, 5"); I("s_add_u32 s45, s45, s43"); I(f"s_lshl_b32 s43, s{SC}, 12"); I("s_add_u32 s45, s45, s43")
        I(f"s_add_u32 s45, s45, {YB}"); I(f"v_add_u32 v{VB}, s45, v{VB}")
        I("s_lshl_b32 s43, s55, 16"); I("s_and_b32 s44, s55, 0xffff0000"); I(f"s_cmp_eq_u32 s{SC}, 0"); I("s_cselect_b32 s55, s43, s44")
        lg.wait(lg.issued); self.barrier()
        self.stamp(12)
        for p in range(4):
            for gq in range(2):
                I(f"ds_read_b128 {v(RD_+8*p+4*gq,4)}, v{T+2} offset:{8192*p+1024*gq}"); lg.issue()
        for gq in range(2):
            I(f"ds_read_b64 {v(ACC+2*gq,2)}, v{T+3} offset:{1536*gq}"); lg.issue()
        lk = a.label("SK"); I("s_cmp_lg_u32 s50, 0"); I(f"s_cbranch_scc1 {lk}")
        sv = self.save(); vm.wait(tc1); seen(); self.restore(sv); early(0, NCX - 2, 1)
        a.L(lk)
        early(NCX - 2, NCX, 2)
        lg.wait(lg.issued)
        for i in range(0, 8, 2):
            I(f"v_pk_add_f32 {v(RD_+i,2)}, {v(RD_+i,2)}, {v(RD_+8+i,2)}"); I(f"v_pk_add_f32 {v(RD_+16+i,2)}, {v(RD_+16+i,2)}, {v(RD_+24+i,2)}")
        for i in range(0, 8, 2): I(f"v_pk_add_f32 {v(RD_+i,2)}, {v(RD_+i,2)}, {v(RD_+16+i,2)}")
        for gq in range(2):
            for r in range(4):
                srcr = ACC + 2*gq + (1 - (r >> 1))
                I(f"v_lshlrev_b32 v{ACC+8}, 16, v{srcr}" if r & 1 else f"v_and_b32 v{ACC+8}, 0xffff0000, v{srcr}")
                I(f"v_fma_f32 v{RD_+4*gq+r}, v{ACC+8}, s55, v{RD_+4*gq+r}")
        for i in range(4): I(f"v_cvt_pk_bf16_f32 v{ACC+12+i}, v{RD_+2*i}, v{RD_+2*i+1}")
        I(f"v_permlane32_swap_b32 v{ACC+12}, v{ACC+14}"); I(f"v_permlane32_swap_b32 v{ACC+13}, v{ACC+15}")
        I(f"ds_write_b128 v{VB}, {v(ACC+12,4)}"); lg.issue()
        lg.wait(lg.issued); self.barrier()
        ly = a.label("NY")
        I(f"s_cmp_lg_u32 s{SW}, 0"); I(f"s_cbranch_scc1 {ly}")
        I(f"v_add_u32 v{T}, {YB}, v{VL16}")
        for i in range(8): I(f"ds_read_b128 {v(RD_+4*i,4)}, v{T} offset:{1024*i}")
        I(f"s_lshl_b32 s44, s{SF}, 13"); I(f"s_add_u32 s44, s44, {YT_OFF}"); I("s_add_u32 s45, s44, 4096")
        I("s_waitcnt lgkmcnt(0)")
        for i in range(8): I(f"buffer_store_dwordx4 {v(RD_+4*i,4)}, v{VL16}, s[{RWS}:{RWS+3}], s{44+(i>>2)} offen offset:{1024*(i&3)}{self.st}")
        a.L(ly)
        ll = a.label("NL")
        I("s_cmp_eq_u32 s50, 3"); I(f"s_cbranch_scc1 {ll}")
        self.poll_check(VP, VPA, "s53", 1)
        for i in range(NCX): cload(i)
        a.L(ll)
        self.stamp(6)
        YT = self.XB
        lrd = {}; ypub = False; ymark = vm.issued; free = []; fresh = []; nw = NW; nw2 = NW + NL; nc = NCX
        for i in range(32):
            if i % 4 == 0 and self.o.get("ostamp"): self.stamp(17 + i // 4)
            if i == 14:
                I(f"s_lshl_b32 s53, s57, 7"); I(f"s_lshl_b32 s42, s{SW}, 4"); I("s_add_u32 s53, s53, s42"); I(f"s_add_u32 s53, s53, {FY_OFF}")
                tf = self.poll_issue(VP, VPA, "s53")
            if i == 24:
                vm.wait(tf); self.poll_check(VP, VPA, "s53", 1)
                I(f"v_lshrrev_b32 v{T}, 3, v0"); I(f"v_and_b32 v{T+1}, 7, v0"); I(f"v_lshlrev_b32 v{T+1}, 4, v{T+1}")
                I(f"v_lshl_add_u32 v{T}, v{T}, 12, v{T+1}")
                I(f"s_add_u32 m0, s{SWK}, {YT}")
                I(f"s_lshl_b32 s44, s57, 18"); I(f"s_lshl_b32 s45, s{SW}, 15"); I("s_add_u32 s44, s44, s45")
                I(f"s_lshl_b32 s45, s56, 7"); I("s_add_u32 s44, s44, s45"); I(f"s_add_u32 s44, s44, {YT_OFF}")
                I(f"buffer_load_dwordx4 v{T}, s[{RWS}:{RWS+3}], s44 offen{self.ld} lds"); vm.issue()
                I(f"v_and_b32 v{T+1}, 15, v0"); I(f"s_lshr_b32 s48, s{SW}, 1"); I("s_lshl_b32 s48, s48, 4")
                I(f"s_lshl_b32 s45, s56, 6"); I("s_add_u32 s45, s45, s48"); I(f"v_add_u32 v{T+1}, s45, v{T+1}")
                I(f"v_lshlrev_b32 v{T+2}, 2, v{T+1}"); I(f"s_mov_b32 s45, {G_OFF}")
                I(f"buffer_load_dword v{GR}, v{T+2}, s[{RWS}:{RWS+3}], s45 offen{self.ld}"); vm.issue()
                I(f"v_lshrrev_b32 v{T+2}, 4, v0"); I(f"v_lshlrev_b32 v{T+2}, 4, v{T+2}"); I(f"v_lshl_add_u32 v{VO}, v{T+1}, 10, v{T+2}")
                I(f"s_and_b32 s49, s{SW}, 1"); I("s_lshl_b32 s49, s49, 6"); I(f"s_lshl_b32 s45, s57, 7"); I("s_add_u32 s49, s49, s45")
                I(f"buffer_load_dwordx4 {v(XR,4)}, v{VO}, s[{RD}:{RD+3}], s49 offen"); vm.issue()
            vm.wait(max(ctok[i], wtok.get(i, 0)))
            if i in lrd: lg.wait(lrd[i])
            if not ypub and vm.done > ymark:
                ypub = True
                I(f"s_lshl_b32 s44, s{SF}, 2"); I(f"s_add_u32 s44, s44, {FY_OFF}"); self.publish(44, 3)
            for mt in range(2):
                for st in range(2):
                    d = v(OACC + 16*(2*mt+st), 16)
                    I(f"{MFMA} {d}, {v(wslot[i]+4*mt,4)}, {v(cslot[i]+4*st,4)}, {'0' if i == 0 else d}")
            lagged, fresh = fresh, [wslot[i], cslot[i]]
            free += fresh
            while free:
                if nw < NW + NL and nw - i <= 3:
                    j = nw - NW; assert vm.done >= ltok[j]
                    r = free.pop(0); wslot[nw] = r
                    I("s_nop 3")
                    for mt in range(2):
                        I(f"ds_read_b128 {v(r+4*mt,4)}, v{VLW} offset:{j*2048+mt*1024}"); lrd[nw] = lg.issue()
                    nw += 1
                elif nc < 32 and (nc <= nw2 or nw2 >= 32):
                    cslot[nc] = free.pop(0); cload(nc); nc += 1
                elif nw2 < 32:
                    wslot[nw2] = free.pop(0); self.wload(nw2); nw2 += 1
                else: break
        self.stamp(7)
        I(f"v_and_b32 v{T}, 31, v0"); I(f"v_lshrrev_b32 v{T+1}, 5, v0"); I(f"v_and_b32 v{T+2}, 15, v0")
        I(f"v_lshlrev_b32 v{T+1}, 1, v{T+1}")
        I(f"v_xor_b32 v{T+1}, v{T+1}, v{T+2}"); I(f"v_lshlrev_b32 v{T+1}, 4, v{T+1}"); I(f"v_lshl_add_u32 v{T}, v{T}, 8, v{T+1}")
        I(f"v_add_u32 v{T}, s51, v{T}")
        for mt in range(2):
            for gq in range(4):
                I(f"v_xor_b32 v{T+1}, {(4*gq+mt)*16}, v{T}"); I(f"v_add_u32 v{T+3}, 0x10000, v{T+1}")
                for st in range(2):
                    I(f"ds_write_b128 v{T+1+2*st}, {v(OACC+16*(2*mt+st)+4*gq,4)}"); lg.issue()
        I(f"v_lshrrev_b32 v{T}, 4, v0"); I(f"s_and_b32 s41, s{SW}, 1"); I("s_lshl_b32 s42, s41, 3")
        I(f"v_lshl_add_u32 v{T+1}, v{T}, 1, s42"); I(f"v_xor_b32 v{T+1}, v{T+1}, v{T+2}"); I(f"v_lshlrev_b32 v{T+1}, 4, v{T+1}")
        I("s_and_b32 s43, s48, 16"); I(f"v_add_u32 v{T+3}, s43, v{T+2}"); I(f"v_lshl_add_u32 v24, v{T+3}, 8, v{T+1}")
        I("s_lshr_b32 s43, s48, 5"); I("s_lshl_b32 s43, s43, 16"); I("v_add_u32 v24, s43, v24"); I("v_xor_b32 v25, 16, v24")
        I("s_lshl_b32 s42, s41, 5"); I(f"v_lshl_add_u32 v{T}, v{T}, 3, s42"); I(f"v_bfe_u32 v{T+1}, v0, 2, 2")
        I(f"v_add_u32 v{T}, v{T}, v{T+1}"); I(f"v_lshlrev_b32 v{T}, 7, v{T}"); I(f"v_and_b32 v{T+1}, 3, v0")
        I(f"v_lshl_add_u32 v{T}, v{T+1}, 3, v{T}"); I("s_lshl_b32 s42, s48, 1"); I(f"s_add_u32 s42, s42, {YT}"); I(f"v_add_u32 v28, s42, v{T}")
        self.sync_all()
        CX = 128; tk = []
        I(f"ds_read_b64_tr_b16 {v(100,2)}, v28"); lg.issue()
        I(f"ds_read_b64_tr_b16 {v(102,2)}, v28 offset:512"); ty2 = lg.issue()
        for p in range(8):
            for hh in range(2):
                I(f"ds_read_b128 {v(CX+8*p+4*hh,4)}, v{24+hh} offset:{8192*p}"); lg.issue()
            tk.append(lg.issued)
            if p == 5:
                lg.wait(ty2)
                for e in range(8):
                    if e & 1: I(f"v_and_b32 v104, 0xffff0000, v{XR+(e>>1)}"); I(f"v_and_b32 v105, 0xffff0000, v{100+(e>>1)}")
                    else: I(f"v_lshlrev_b32 v104, 16, v{XR+(e>>1)}"); I(f"v_lshlrev_b32 v105, 16, v{100+(e>>1)}")
                    I(f"v_mul_f32 v{112+e}, v104, v105"); I(f"v_mul_f32 v{112+e}, v{112+e}, v{GR}")
                I(f"v_sub_f32 v{GR}, 1.0, v{GR}")
        for p in range(1, 8):
            lg.wait(tk[p])
            for e in range(0, 8, 2): I(f"v_pk_add_f32 {v(CX+e,2)}, {v(CX+e,2)}, {v(CX+8*p+e,2)}")
        for e in range(8): I(f"v_fmac_f32 v{112+e}, v{CX+4*(e&1)+(e>>1)}, v{GR}")
        for e in range(4): I(f"v_cvt_pk_bf16_f32 v{108+e}, v{112+2*e}, v{112+2*e+1}")
        I(f"buffer_store_dwordx4 {v(108,4)}, v{VO}, s[{RC}:{RC+3}], s49 offen{' sc1' if self.o.get('outsc1') else ' nt' if self.o.get('outnt') else ''}"); vm.issue()
        self.stamp(16)
        if self.o.get("echo"):
            lp = a.label("EC")
            I("s_sub_u32 s100, s100, s96"); I("s_memrealtime s[96:97]"); I("s_waitcnt lgkmcnt(0)")
            a.L(lp)
            I("s_memrealtime s[98:99]"); I("s_waitcnt lgkmcnt(0)"); I("s_sub_u32 s98, s98, s96"); I("s_cmp_lt_u32 s98, s100"); I(f"s_cbranch_scc1 {lp}")
        if self.o.get("dbgout") is not None:
            l = a.label("DB")
            I(f"s_cmp_lg_u32 s2, {self.o['dbgout']}"); I(f"s_cbranch_scc1 {l}"); I(f"s_cmp_lg_u32 s{SW}, 0"); I(f"s_cbranch_scc1 {l}")
            I("s_waitcnt vmcnt(0)")
            order = [0, 1, 2, 3, 8, 10, 11, 4, 5, 12, 6, 7, 16]
            I("v_mov_b32 v20, 0")
            for j, i in enumerate(order):
                I(f"s_mov_b32 s44, {4*i}"); I(f"v_writelane_b32 v20, s44, {j}")
            I(f"s_lshl_b32 s44, s2, 11"); I(f"s_add_u32 s44, s44, {STAMP_OFF}")
            I(f"buffer_load_dword v21, v20, s[{RWS}:{RWS+3}], s44 offen sc1"); I("s_waitcnt vmcnt(0)")
            I("v_readfirstlane_b32 s45, v21"); I("v_subrev_u32 v21, s45, v21")
            self.srd(RDBG, "dbg", 64); I("v_lshlrev_b32 v22, 2, v0")
            I(f"buffer_store_dword v21, v22, s[{RDBG}:{RDBG+3}], 0 offen")
            a.L(l)

def build(opts):
    g = G(opts); k = NAME + "_kernel"
    g.begin(k); g.proj(); g.attn(); g.tailp(); g.end(); g.attn_rare(); g.a.L("CODE_END"); g.a.I("s_endpgm")
    n = g.a.fix_hazards()
    txt = "; @launch grid=(256,1,1) block=(512,1,1) lds=163840\n"
    txt += '.amdgcn_target "amdgcn-amd-amdhsa--gfx950"\n.text\n' + g.a.text()
    txt += f""".section .rodata,"a"
.p2align 6
.amdhsa_kernel {k}
  .amdhsa_next_free_vgpr 256
  .amdhsa_next_free_sgpr 102
  .amdhsa_accum_offset 256
  .amdhsa_group_segment_fixed_size 0
  .amdhsa_kernarg_size 128
  .amdhsa_user_sgpr_count 2
  .amdhsa_user_sgpr_kernarg_segment_ptr 1
  .amdhsa_system_sgpr_workgroup_id_x 1
.end_amdhsa_kernel
"""
    print(f"instructions {sum(1 for it in g.a.items if it[0] == 'i')}, nops inserted {n}", file=sys.stderr)
    return txt

if __name__ == "__main__":
    opts = {}
    for x in sys.argv[2:]:
        if "=" in x: k_, v_ = x.split("="); opts[k_] = int(v_)
        else: opts[x] = True
    open(sys.argv[1], "w").write(build(opts))
```

```python
import sys, math, struct
sys.path.insert(0, "gen")
from asmlib import *

NAME = "gated_mix__ssm_conv_h3__compressed_kv_cla__prompt"
MB = 1 << 20
KV_OFF, Q_OFF, CTX_OFF, KVT_OFF, YT_OFF, G_OFF = 0, 32*MB, 48*MB, 64*MB, 66*MB, 68*MB
WOT_OFF = 32*MB
FLG_OFF = 68*MB + 65536
FK_OFF, FY_OFF, FC_OFF = FLG_OFF, FLG_OFF + 4096, FLG_OFF + 8192
STAMP_OFF = 69*MB
WS_SIZE = 70*MB
P = dict(q=64, k=66, v=68, shift=70, ssmk=72, ssmD=74, bx=76, ckv=78, wq=80, wuk=82, wuv=84, wo=86, gate=88, out=90, dbg=92, ws=94)
SW, SHEAD, SIDX, SWK, SF = 3, 4, 5, 6, 7
RA, RB, RC, RWS, RD, RE, RT, RDBG = 8, 12, 16, 20, 24, 28, 56, 60
MFMA = "v_mfma_f32_32x32x16_bf16"
LOG2E = 1.4426950408889634
F_KV, F_CA, F_CB, F_Y = 1, 2, 4, 8
def f2u(x): return "0x%08x" % struct.unpack("<I", struct.pack("<f", x))[0]
def rep4(b): return b * 0x01010101

class G:
    def __init__(self, opts):
        self.a = Asm(); self.o = opts
        self.vm = Cnt(self.a, "vmcnt", 63); self.lg = Cnt(self.a, "lgkmcnt", 15)
        self.st = "" if opts.get("plainst") else (" sc1 nt" if opts.get("ntst") else " sc1"); self.ld = "" if opts.get("plainld") else " sc1"
    def I(self, t): self.a.I(t)
    def srd(self, r, ptr, nbytes):
        I = self.I
        I(f"s_mov_b32 s{r}, s{P[ptr]}"); I(f"s_mov_b32 s{r+1}, s{P[ptr]+1}")
        I(f"s_mov_b32 s{r+2}, {nbytes}"); I(f"s_mov_b32 s{r+3}, 0x00020000")
    def save(self): return (self.vm.issued, self.vm.done, self.lg.issued, self.lg.done)
    def restore(self, s_): self.vm.issued, self.vm.done, self.lg.issued, self.lg.done = s_
    def stream(self, mf, fills):
        n = len(mf); slots = [[] for _ in range(n + 1)]
        for (s0, e0, cl) in fills:
            m = e0 - s0
            for j, c in enumerate(cl): slots[s0 + 1 + (j * m) // len(cl)].append(c)
        for c in slots[0]: c()
        for i in range(n):
            mf[i]()
            for c in slots[i+1]: c()
    def stamp(self, i, dyn=None):
        if self.o.get("echo") == i:
            self.I("s_memrealtime s[100:101]"); self.I("s_waitcnt lgkmcnt(0)")
        if not self.o.get("stamp"): return
        I = self.I
        I("s_memrealtime s[96:97]"); I("s_memtime s[100:101]")
        I("s_lshl_b32 s98, s2, 3"); I(f"s_add_u32 s98, s98, s{SW}"); I("s_lshl_b32 s98, s98, 8")
        I(f"s_add_u32 s98, s98, {STAMP_OFF + 4*i}")
        if dyn is not None:
            I(f"s_lshl_b32 s99, s{dyn}, 4"); I("s_add_u32 s98, s98, s99")
        I("s_waitcnt lgkmcnt(0)")
        I("v_mov_b32 v2, s96"); I("v_mov_b32 v3, 0")
        I(f"buffer_store_dword v2, v3, s[{RWS}:{RWS+3}], s98 offen")
        I("v_mov_b32 v2, s100")
        I(f"buffer_store_dword v2, v3, s[{RWS}:{RWS+3}], s98 offen offset:128")
    OOB = 0x40000000
    def publish(self, soff, val=1, srd=RWS, byte=False, idx=None):
        I = self.I
        self.oob_sel()
        if idx is not None: I(f"s_cmp_eq_u32 s{SIDX}, {idx}"); I(f"s_cselect_b32 s99, s99, {self.OOB}")
        I(f"v_mov_b32 v2, {val}"); I("v_mov_b32 v3, s99")
        I(f"buffer_store_{'byte' if byte else 'dword'} v2, v3, s[{srd}:{srd+3}], s{soff} offen sc1"); self.vm.issue()
    def oob_sel(self):
        self.I(f"s_cmp_eq_u32 s{SW}, 0"); self.I(f"s_cselect_b32 s99, 0, {self.OOB}")
    def poll_issue(self, vd, vaddr, soff, srd=RWS):
        self.I(f"buffer_load_dword v{vd}, v{vaddr}, s[{srd}:{srd+3}], {soff} offen sc1"); return self.vm.issue()
    def poll_check(self, vd, vaddr, soff, want, srd=RWS):
        a = self.a; I = self.I
        l = a.label("PCK"); lp = a.label("POLL")
        I(f"s_mov_b32 s98, {want}"); I("s_mov_b32 s99, 20000")
        a.L(lp)
        I(f"v_and_b32 v{vd}, s98, v{vd}"); I(f"v_cmp_ne_u32 vcc, s98, v{vd}"); I(f"s_cbranch_vccz {l}")
        I("s_sleep 2")
        I(f"buffer_load_dword v{vd}, v{vaddr}, s[{srd}:{srd+3}], {soff} offen sc1")
        I("s_sub_u32 s99, s99, 1"); I("s_cmp_lg_u32 s99, 0"); I("s_waitcnt vmcnt(0)"); I(f"s_cbranch_scc1 {lp}")
        a.L(l)
    def barrier(self): self.I("s_barrier")
    def sync_all(self):
        self.I("s_waitcnt vmcnt(0) lgkmcnt(0)"); self.vm.mark_all_done(); self.lg.mark_all_done(); self.barrier()

    def begin(self, kname):
        a = self.a; I = self.I
        a.T(f".globl {kname}\n.p2align 8\n.type {kname},@function"); a.L(kname)
        self.endl = a.label("END")
        if self.o.get("stamp"): I("s_memrealtime s[30:31]")
        if self.o.get("echo"): I("s_memrealtime s[96:97]")
        I("s_load_dwordx16 s[64:79], s[0:1], 0"); I("s_load_dwordx16 s[80:95], s[0:1], 64")
        I("s_cmp_ge_u32 s2, 256"); I(f"s_cbranch_scc1 {self.endl}")
        I("v_lshrrev_b32 v1, 6, v0"); I("v_and_b32 v0, 63, v0"); I(f"v_readfirstlane_b32 s{SW}, v1")
        I("s_and_b32 s7, s2, 7"); I("s_lshl_b32 s7, s7, 2")
        I(f"s_lshr_b32 s{SIDX}, s2, 3"); I(f"s_lshr_b32 s{SHEAD}, s{SIDX}, 3"); I(f"s_add_u32 s{SHEAD}, s{SHEAD}, s7")
        I(f"s_and_b32 s{SIDX}, s{SIDX}, 7"); I(f"s_lshl_b32 s{SWK}, s{SW}, 10")
        I(f"s_lshl_b32 s{SF}, s{SHEAD}, 3"); I(f"s_add_u32 s{SF}, s{SF}, s{SIDX}")
    def end(self):
        self.a.L(self.endl); self.I("s_endpgm")

    def proj(self):
        a = self.a; I = self.I; vm = self.vm; lg = self.lg
        PREP = 114688; QA_LDS = 65536
        ACCS = [64, 128]
        FX = [16, 32]; FW = [24, 40]
        VXA = 4; VWA = 8; VOX, VOW = 10, 11; VST = 12; VXH = 48
        T = 192
        I("v_lshrrev_b32 v13, 3, v0"); I(f"s_lshl_b32 s40, s{SW}, 3"); I("v_add_u32 v13, s40, v13"); I("v_lshlrev_b32 v13, 10, v13")
        I("v_lshrrev_b32 v14, 4, v0"); I(f"s_and_b32 s40, s{SW}, 1"); I("s_lshl_b32 s40, s40, 2"); I("v_add_u32 v15, s40, v14")
        I("v_and_b32 v3, 7, v0"); I("v_xor_b32 v15, v15, v3"); I(f"v_lshl_add_u32 v{VOX}, v15, 4, v13")
        I(f"s_lshl_b32 s40, s{SW}, 2"); I("v_add_u32 v13, s40, v14"); I("v_lshlrev_b32 v13, 13, v13")
        I("v_lshlrev_b32 v15, 2, v14"); I("v_and_b32 v3, 15, v0"); I("v_xor_b32 v15, v15, v3")
        I("v_lshl_add_u32 v13, v15, 4, v13"); I(f"s_lshl_b32 s40, s{SHEAD}, 8"); I(f"v_add_u32 v{VOW}, s40, v13")
        I(f"v_lshlrev_b32 v{VST}, 4, v0")
        I(f"s_lshl_b32 s44, s{SIDX}, 18")
        for i in range(1, 4): I(f"s_add_u32 s{44+i}, s44, {65536*i}")
        I("s_waitcnt lgkmcnt(0)")
        if self.o.get("stamp"): I("s_memrealtime s[28:29]")
        self.srd(RA, "ckv", 2*MB); self.srd(RB, "wuk", 4*MB)
        def xbase(t): return (32768, 131072, 0)[t % 3]
        def wbase(t): return 65536 + (t % 3)*16384
        def dma_list(t):
            L = []
            if t > 23: return L
            ph, tt = t >> 3, t & 7
            for i in range(2):
                def f(i=i):
                    I(f"s_add_u32 m0, s{SWK}, {wbase(t) + i*8192}"); I(f"s_mov_b32 s41, {tt*524288 + i*262144}")
                    r = (RB, RC, RE)[ph]
                    I(f"buffer_load_dwordx4 v{VOW}, s[{r}:{r+3}], s41 offen lds"); vm.issue()
                L.append(f)
            for i in range(4):
                def f(i=i):
                    I(f"s_add_u32 m0, s{SWK}, {xbase(t) + i*8192}"); I(f"s_add_u32 s41, s{(48 if ph == 2 else 44)+i}, {tt*128}")
                    r = RD if ph == 2 else RA
                    I(f"buffer_load_dwordx4 v{VOX}, s[{r}:{r+3}], s41 offen lds"); vm.issue()
                L.append(f)
            return L
        dtok = {}
        for f in dma_list(0): f()
        dtok[0] = vm.issued
        self.srd(RWS, "ws", WS_SIZE); self.srd(RDBG, "dbg", 256); self.srd(RC, "wuv", 4*MB)
        self.stamp(31)
        if self.o.get("stamp"):
            I("v_mov_b32 v2, s30"); I("s_sub_u32 s98, s98, 124"); I(f"buffer_store_dword v2, v3, s[{RWS}:{RWS+3}], s98 offen")
            I("v_mov_b32 v2, s28"); I(f"buffer_store_dword v2, v3, s[{RWS}:{RWS+3}], s98 offen offset:120")
        I(f"s_lshl_b32 s48, s{SIDX}, 17"); I("s_add_u32 s49, s48, 65536")
        I(f"s_sub_u32 s50, 15, s{SIDX}"); I("s_lshl_b32 s50, s50, 17"); I("s_add_u32 s51, s50, 65536")
        I(f"s_and_b32 s42, s{SW}, 3"); I("s_lshl_b32 s42, s42, 6"); I(f"s_lshr_b32 s43, s{SW}, 2"); I("s_lshl_b32 s43, s43, 1")
        I("v_and_b32 v13, 31, v0"); I("v_add_u32 v13, s42, v13")
        I("v_lshrrev_b32 v14, 1, v13"); I("v_and_b32 v14, 7, v14"); I("v_lshrrev_b32 v15, 5, v0")
        I("v_xor_b32 v14, v14, v15"); I("v_lshlrev_b32 v14, 4, v14"); I(f"v_lshl_add_u32 v{VXA}, v13, 7, v14")
        for k in range(1, 4): I(f"v_xor_b32 v{VXA+k}, {k<<5}, v{VXA}")
        for k in range(4): I(f"v_add_u32 v{VXH+k}, 0x20000, v{VXA+k}")
        I("v_bfe_u32 v13, v0, 2, 2"); I("v_lshl_add_u32 v14, v15, 3, v13"); I("v_lshlrev_b32 v14, 8, v14")
        I("v_bfe_u32 v15, v0, 4, 1"); I("v_lshl_add_u32 v14, v15, 5, v14")
        I("v_and_b32 v15, 3, v0"); I("v_lshl_add_u32 v14, v15, 3, v14"); I("v_add_u32 v14, 0x10000, v14")
        I("v_xor_b32 v13, s43, v13"); I(f"v_lshl_add_u32 v{VWA}, v13, 6, v14"); I(f"v_xor_b32 v{VWA+1}, 64, v{VWA}")
        I(f"s_lshl_b32 s54, s{SHEAD}, 4"); I(f"s_lshl_b32 s55, s{SIDX}, 1"); I("s_add_u32 s54, s54, s55")
        I(f"s_bfe_u32 s55, s{SW}, 0x10001"); I("s_add_u32 s54, s54, s55"); I("s_lshl_b32 s54, s54, 16")
        I(f"s_and_b32 s55, s{SW}, 1"); I("s_lshl_b32 s55, s55, 14"); I("s_add_u32 s54, s54, s55")
        I("s_lshl_b32 s55, s43, 10"); I("s_add_u32 s52, s54, s55"); I("s_add_u32 s52, s52, 0x8000")
        I("s_lshl_b32 s55, s43, 11"); I("s_add_u32 s54, s54, s55")

        if self.o.get("hotst"):
            I(f"s_and_b32 s54, s54, {self.o['hotst']*MB-1}"); I(f"s_and_b32 s52, s52, {self.o['hotst']*MB-1}")
        XG = T; GW = T + 4; hl = {}
        def gate_loads():
            L = []
            def E(t): L.append(lambda: I(t))
            def V(t):
                def f(): I(t); hl["t"] = vm.issue()
                L.append(f)
            E(f"s_lshl_b32 s40, s{SHEAD}, 7"); E(f"s_lshl_b32 s39, s{SIDX}, 2"); E("s_add_u32 s40, s40, s39"); E(f"s_add_u32 s40, s40, {FK_OFF}")
            E(f"v_mov_b32 v13, s40")
            E(f"s_lshr_b32 s39, s{SHEAD}, 2"); E("s_lshl_b32 s39, s39, 7"); E(f"s_and_b32 s40, s{SHEAD}, 3"); E("s_lshl_b32 s40, s40, 2"); E("s_add_u32 s39, s39, s40")
            E(f"s_lshl_b32 s40, s{SIDX}, 10"); E("s_add_u32 s40, s40, s39"); E(f"s_add_u32 s40, s40, {FC_OFF}")
            E("v_writelane_b32 v13, s40, 1")
            E(f"s_sub_u32 s40, 15, s{SIDX}"); E("s_lshl_b32 s40, s40, 10"); E("s_add_u32 s40, s40, s39"); E(f"s_add_u32 s40, s40, {FC_OFF}")
            E("v_writelane_b32 v13, s40, 2")
            E(f"s_lshl_b32 s40, s{SF}, 2"); E(f"s_add_u32 s40, s40, {FY_OFF}"); E("v_writelane_b32 v13, s40, 3"); E("v_mov_b32 v14, 0")
            def oo(): self.oob_sel(); I("v_add_u32 v13, s99, v13")
            L.append(oo)
            V(f"buffer_store_dword v14, v13, s[{RWS}:{RWS+3}], 0 offen sc1")
            E("s_lshl_b32 s37, s2, 3"); E(f"s_add_u32 s37, s37, s{SW}"); E("s_lshl_b32 s38, s37, 10")
            L.append(lambda: self.srd(RD, "q", 2*MB)); L.append(lambda: self.srd(RE, "wq", 4*MB)); L.append(lambda: self.srd(RT, "gate", 1024))
            V(f"buffer_load_dwordx4 {v(XG,4)}, v{VST}, s[{RD}:{RD+3}], s38 offen")
            V(f"buffer_load_dwordx4 {v(GW,4)}, v{VST}, s[{RT}:{RT+3}], 0 offen")
            return L
        def gate_ops():
            L = []; E = lambda t: L.append(lambda: I(t)); Z = T + 8
            L.append(lambda: vm.wait(hl["t"]))
            E(f"v_dot2_f32_bf16 v{Z}, v{XG}, v{GW}, 0")
            for i in range(1, 4): E(f"v_dot2_f32_bf16 v{Z}, v{XG+i}, v{GW+i}, v{Z}")
            for m in ("quad_perm:[1,0,3,2] row_mask:0xf", "quad_perm:[2,3,0,1] row_mask:0xf", "row_half_mirror row_mask:0xf", "row_mirror row_mask:0xf",
                      "row_bcast:15 row_mask:0xa", "row_bcast:31 row_mask:0xc"):
                E(f"v_add_f32_dpp v{Z}, v{Z}, v{Z} {m} bank_mask:0xf")
            E(f"v_readlane_b32 s36, v{Z}, 63"); E(f"v_mov_b32 v{Z+1}, {f2u(-LOG2E)}"); E(f"v_mul_f32 v{Z}, s36, v{Z+1}")
            E(f"v_exp_f32 v{Z}, v{Z}"); E(f"v_add_f32 v{Z}, 1.0, v{Z}"); E(f"v_rcp_f32 v{Z}, v{Z}")
            E("s_lshl_b32 s38, s37, 2"); E(f"s_add_u32 s38, s38, {G_OFF}"); E(f"v_mov_b32 v{Z+1}, 0")
            def gs():
                I(f"buffer_store_dword v{Z}, v{Z+1}, s[{RWS}:{RWS+3}], s38 offen{self.st}"); vm.issue()
            L.append(gs)
            return L
        def reads(t, k):
            st = k & 1; toks = {}
            xb = xbase(t); va = VXA if xb < 65536 else VXH
            def rx(mt):
                I(f"ds_read_b128 {v(FX[st]+4*mt,4)}, v{va+k} offset:{(xb & 65535)+mt*4096}"); toks[("x",mt)] = lg.issue()
            def rw(dt, h):
                I(f"ds_read_b64_tr_b16 {v(FW[st]+4*dt+2*h,2)}, v{VWA+dt} offset:{wbase(t)-65536+k*4096+h*1024}"); toks[("w",dt)] = lg.issue()
            return [lambda: rx(0), lambda: rw(0,0), lambda: rw(0,1), lambda: rw(1,0), lambda: rw(1,1), lambda: rx(1)], toks
        def mfs(t, k, toks):
            st = k & 1; L = []; ph = t >> 3; acc = ACCS[ph & 1]; first = (t & 7) == 0 and k == 0
            for mt in range(2):
                for dt in range(2):
                    def f(mt=mt, dt=dt):
                        lg.wait(max(toks[("x",mt)], toks[("w",dt)]))
                        d = v(acc + 16*(2*mt+dt), 16); X = v(FX[st]+4*mt,4); W = v(FW[st]+4*dt,4)
                        c = "0" if first else d
                        I(f"{MFMA} {d}, {X}, {W}, {c}" if ph == 1 else f"{MFMA} {d}, {W}, {X}, {c}")
                    L.append(f)
            return L
        def kv_out(ph):
            acc = ACCS[ph & 1]; out = []
            for tile in range(4):
                rt, dt = tile >> 1, tile & 1; b = acc + 16*tile
                for half in range(2):
                    pk = [lambda i=i, b=b: I(f"v_cvt_pk_bf16_f32 v{b+i}, v{b+2*i}, v{b+2*i+1}") for i in range(4*half, 4*half+4)]
                    if ph == 0: pk = [lambda i=i, b=b: I(f"v_mul_f32 v{b+i}, {f2u(LOG2E / math.sqrt(128.0))}, v{b+i}") for i in range(8*half, 8*half+8)] + pk
                    off = rt*8192 + (dt*2048 + half*1024 if ph == 0 else half*4096 + dt*1024)
                    def st(b=b, half=half, off=off):
                        if self.o.get("nost"): return
                        I(f"s_add_u32 s41, s{(54, 52)[ph]}, {off}")
                        I(f"buffer_store_dwordx4 {v(b+4*half,4)}, v{VST}, s[{RWS}:{RWS+3}], s41 offen{self.st}"); vm.issue()
                    out.append(pk + [st])
            return out
        side = {}; late = {}
        def spread(ops, t0, t1):
            sl = [(t, k) for t in range(t0, t1) for k in range(3)]
            n = len(ops)
            for j, key in enumerate(sl): side.setdefault(key, []).extend(ops[n*j//len(sl): n*(j+1)//len(sl)])
        KS = self.o.get("ks", 8); PG = self.o.get("pg", 0)
        spread(gate_loads(), PG, PG + 1); spread(gate_ops(), PG + 3, PG + 5)
        def wtouch(r, half, wv):
            def f():
                I(f"s_cmp_eq_u32 s{SW}, {wv}"); I(f"s_cselect_b32 s99, 0, {self.OOB}")
                I(f"s_lshl_b32 s40, s{SIDX}, 19"); I(f"s_lshl_b32 s39, s{SHEAD}, 8"); I("s_add_u32 s40, s40, s39"); I(f"s_add_u32 s40, s40, {half*32*8192}")
                I("v_lshrrev_b32 v3, 1, v0"); I("v_lshlrev_b32 v3, 13, v3"); I("v_and_b32 v2, 1, v0"); I("v_lshl_add_u32 v3, v2, 7, v3"); I("v_add_u32 v3, s99, v3")
                I(f"buffer_load_dword v1, v3, s[{r}:{r+3}], s40 offen"); vm.issue()
            return f
        t0 = self.o.get("wt", 1); t1 = self.o.get("wt2", 4)
        for j, (r, half) in enumerate(((RC, 0), (RC, 1), (RE, 0), (RE, 1)) if not self.o.get("nowt") else ()): side.setdefault(((t0 + j) if j < 2 else (t1 + j - 2), 2), []).append(wtouch(r, half, j))
        def xtouch(lo, hi):
            def f():
                I(f"s_sub_u32 s40, s{SW}, {lo}"); I(f"s_cmp_lt_u32 s40, {hi-lo}"); I(f"s_cselect_b32 s99, 0, {self.OOB}"); I("v_lshl_add_u32 v3, v0, 7, s99")
                I(f"s_bitcmp1_b32 s{SHEAD}, 1"); I("s_cselect_b32 s40, s50, s48"); I(f"s_and_b32 s41, s{SHEAD}, 1"); I("s_lshl_b32 s41, s41, 16"); I("s_add_u32 s40, s40, s41")
                I(f"s_lshl_b32 s41, s{SW}, 13"); I("s_add_u32 s40, s40, s41")
                I(f"buffer_load_dword v1, v3, s[{RD}:{RD+3}], s40 offen"); vm.issue()
            return f
        if self.o.get("xt") is not None:
            xt = self.o["xt"]; xn = self.o.get("xn", 4)
            for j in range(xn): side.setdefault((xt + j, 1), []).append(xtouch(8*j//xn, 8*(j+1)//xn))
        VS = self.o.get("vstages", 5)
        for ph, t0, t1 in ((0, KS, 16), (1, 16, 16 + VS)):
            pieces = kv_out(ph); sl = [(t, k) for t in range(t0, t1) for k in range(3)]
            for j, pc in enumerate(pieces):
                tt = t0 + (j * (t1 - t0)) // 8
                hh = len(pc) - 5
                side.setdefault((tt, 0), []).extend(pc[:hh]); side.setdefault((tt, 1), []).extend(pc[hh:-1]); late.setdefault(tt, []).append(pc[-1])
        QE = []; EQ = lambda t: QE.append(lambda: I(t))
        EQ(f"s_and_b32 s55, s{SW}, 2"); EQ("s_lshl_b32 s55, s55, 15"); EQ(f"s_add_u32 s55, s55, {QA_LDS}")
        EQ(f"s_and_b32 s54, s{SW}, 1"); EQ("s_lshl_b32 s54, s54, 14"); EQ("s_add_u32 s55, s55, s54")
        EQ("s_lshl_b32 s54, s43, 11"); EQ("s_add_u32 s55, s55, s54"); EQ(f"v_add_u32 v14, s55, v{VST}"); EQ("v_mov_b32 v54, v13")
        spread(QE, 23, 24)
        spread([lambda r=r: I(f"v_mov_b64 {v(192+2*r,2)}, 0") for r in range(32)], 22, 24)
        def fkoff():
            I(f"s_lshl_b32 s40, s{SHEAD}, 7"); I(f"s_lshl_b32 s41, s{SIDX}, 2"); I("s_add_u32 s40, s40, s41"); I(f"s_add_u32 s40, s40, {FK_OFF}")
        def w0only(fn):
            l = a.label("NP"); I(f"s_cmp_lg_u32 s{SW}, 0"); I(f"s_cbranch_scc1 {l}"); fn(); a.L(l)

        def ctouch():
            I(f"s_cmp_eq_u32 s{SW}, 0"); I(f"s_cselect_b32 s99, 0, {self.OOB}"); I("v_lshl_add_u32 v3, v0, 7, s99"); I("s_lshl_b32 s40, s2, 13")
            I(f"buffer_load_dword v1, v3, s[{RA}:{RA+3}], s40 offen"); vm.issue()
        if self.o.get("ct", 1):
            lp = a.label("PC")
            I(f"s_getpc_b64 s[{RT}:{RT+1}]"); a.L(lp)
            I(f"s_mov_b32 s{RT+2}, CODE_END-{lp}"); I(f"s_mov_b32 s{RT+3}, 0x00020000")
            I(f"s_cmp_eq_u32 s{SW}, 7"); I(f"s_cselect_b32 s99, 0, {self.OOB}"); I(f"s_and_b32 s40, s{SF}, 7"); I("s_lshl_b32 s40, s40, 13"); I("s_add_u32 s99, s99, s40")
            I("v_lshl_add_u32 v3, v0, 7, s99")
            I(f"buffer_load_dword v1, v3, s[{RT}:{RT+3}], 0 offen"); vm.issue()
        if self.o.get("sb", 1): self.barrier()
        for f in dma_list(1): f()
        dtok[1] = vm.issued
        T0 = [wtouch(RB, 0, 1), wtouch(RB, 1, 2), ctouch] if self.o.get("t0k") else []
        if self.o.get("t0pre"):
            for f in T0: f()
            T0 = []
        vm.wait(dtok[0]); self.barrier()
        self.stamp(1)
        L, toks = reads(0, 0)
        for f in L: f()
        for f in T0: f()
        mark = {}; TZ = PG + 2
        pend = dma_list(2)
        for t in range(24):
            for k in range(4):
                M = mfs(t, k, toks)
                if k < 3:
                    L, nt = reads(t, k+1)
                    D, pend = pend[:self.o.get("dper", 2)], pend[self.o.get("dper", 2):]
                    fl = [(0, 3, L)]
                    if D: fl.append((0, 4, D))
                    if side.get((t, k)): fl.append((0, 4, side[(t, k)]))
                    if k == 2 and late.get(t): fl.append((0, 4, late[t]))
                    self.stream(M, fl); toks = nt
                    if not pend and (t + 2) not in dtok: dtok[t+2] = vm.issued
                    if k == 2: mark[t] = vm.issued
                    if t == 17 and k == 0:
                        self.oob_sel(); I("v_lshl_add_u32 v13, v0, 2, s99"); td = self.poll_issue(14, 13, "0", RDBG)
                    if t == 20 and k == 0:
                        self.oob_sel(); I("v_and_b32 v13, 7, v0"); I("v_lshl_add_u32 v13, v13, 2, s99")
                        I(f"s_lshl_b32 s53, s{SHEAD}, 7"); I(f"s_add_u32 s53, s53, {FK_OFF}")
                        tp = self.poll_issue(15, 13, "s53")
                elif t < 23:
                    assert not pend
                    if t == 19: vm.wait(td); w0only(lambda: self.poll_check(14, 13, "0", rep4(1), RDBG))
                    if t == 21: vm.wait(tp); w0only(lambda: self.poll_check(15, 13, "s53", 1))
                    lg.wait(lg.issued); vm.wait(dtok[t+1])
                    if t == TZ: vm.wait(mark[TZ-2])
                    if t == 17: vm.wait(mark[15])
                    if t == 16 + VS: vm.wait(mark[15 + VS])
                    self.barrier()
                    ps = self.o.get("pstamp")
                    if ps is not None and 0 <= t - int(ps) + 1 < 13: self.stamp(17 + t - int(ps) + 1); vm.issue(2)
                    PB = []
                    if TZ <= t < TZ + 8: PB.append(lambda t=t: self.publish(SF, 1, RDBG, True, idx=t - TZ))
                    if t == 17: PB.append(lambda: (fkoff(), self.publish(40, 1)))
                    if t == 16 + VS: PB.append(lambda: (fkoff(), self.publish(40, 3)))
                    L, nt = reads(t+1, 0)
                    pend = dma_list(t+3)
                    if t == 21:
                        def k0(i):
                            I(f"s_lshl_b32 s40, s{SW}, 12"); I("s_add_u32 m0, s40, 0x8000")
                            I(f"s_lshl_b32 s41, s{SHEAD}, 20"); I("s_add_u32 s41, s41, s40")
                            I(f"buffer_load_dwordx4 v{VST}, s[{RWS}:{RWS+3}], s41 offen offset:{1024*i}{self.ld} lds"); vm.issue()
                        pend = [lambda i=i: k0(i) for i in range(4)]
                    D, pend = pend[:self.o.get("dper", 2)], pend[self.o.get("dper", 2):]
                    self.stream(M, [(0, 3, L)] + ([(1, 2, PB)] if PB else []) + ([(0, 4, D)] if D else [])); toks = nt
                    if not pend: dtok[t+3] = vm.issued
                else:
                    self.stream(M, [])
            if t == 7: self.stamp(2)
        self.stamp(3)
        def vc(): self.poll_check(55, 54, "s53", 3)
        QACC = ACCS[0]
        self.poll_issue(55, 54, "s53")
        for tile in range(4):
            rt, dt = tile >> 1, tile & 1; b = QACC + 16*tile
            for i in range(8): I(f"v_cvt_pk_bf16_f32 v{b+i}, v{b+2*i}, v{b+2*i+1}")
            for half in range(2):
                I(f"ds_write_b128 v14, {v(b+4*half,4)} offset:{rt*8192+dt*2048+half*1024}"); lg.issue()
        self.attn_setup()
        vm.wait(vm.issued); w0only(vc)
        lg.wait(lg.issued); self.barrier()

    def attn_setup(self): self.attn(True)
    def attn(self, setup=False):
        a = self.a; I = self.I; vm = self.vm; lg = self.lg; stream = self.stream
        ML = 159744; QA_LDS = 65536; QB_LDS = 131072
        O = 192; QF = 160; NM = 144; S = [112, 128]; PP = [96, 104]; RING = 64; NR = 8; E = 56; PK = 16
        VK, VV, VL16, LRUN, LU, THR, NINF, VQ, TMP, LA = 4, 5, 6, 7, 8, 9, 10, 11, 12, 14
        SR, SG, SC1, SC2, SKO, SVO, SKM, SVM, STH = 32, 33, 34, 35, 36, 37, 38, 39, 42
        SMK, SFIN, SCA, SM1 = 54, 55, 59, 58
        DC = self.o.get("dmacost", 16); WEV = self.o.get("wev", 2)
        if setup:
            I(f"s_and_b32 s{SR}, s{SW}, 3"); I(f"s_lshr_b32 s{SG}, s{SW}, 2")
            I(f"v_lshlrev_b32 v{VL16}, 4, v0")
            I(f"s_lshl_b32 s44, s{SR}, 13"); I(f"s_add_u32 s44, s44, {QB_LDS}"); I(f"v_add_u32 v{VQ}, s44, v{VL16}")
            I(f"s_lshl_b32 s45, s{SG}, 16"); I(f"v_subrev_u32 v{TMP+1}, s45, v{VQ}")
            I(f"s_mov_b32 s{SC1}, s{SIDX}")
            I(f"s_lshl_b32 s{SC2}, s{SIDX}, 1"); I(f"s_sub_u32 s{SC2}, 14, s{SC2}")
            I(f"s_cmp_eq_u32 s{SG}, 1"); I(f"s_cselect_b32 s{SM1}, 0, -1")
            I(f"s_lshl_b32 s43, s{SW}, 12"); I(f"s_lshl_b32 s{SVO}, s{SHEAD}, 20"); I(f"s_add_u32 s{SVO}, s{SVO}, s43")
            I(f"s_add_u32 s{SKO}, s{SVO}, 0x10000"); I(f"s_add_u32 s{SVO}, s{SVO}, 0x8000")
            I(f"s_mov_b32 s{SKM}, s43"); I(f"s_add_u32 s{SVM}, s43, 0x18000")
            I(f"s_mov_b32 s{STH}, {f2u(4096.0)}"); I(f"v_mov_b32 v{NINF}, 0xff800000")
            I(f"v_and_b32 v{THR}, 31, v0"); I(f"s_lshl_b32 s44, s{SR}, 5"); I(f"v_add_u32 v{THR}, s44, v{THR}")
            I(f"v_lshrrev_b32 v{TMP}, 5, v0"); I(f"v_lshlrev_b32 v{TMP}, 2, v{TMP}"); I(f"v_sub_u32 v{THR}, v{THR}, v{TMP}")
            I(f"v_add_u32 v{VK}, 0x8000, v{VL16}")
            I(f"s_lshl_b32 s{SCA}, s{SIDX}, 2"); I(f"s_add_u32 s{SCA}, s{SCA}, s{SR}"); I(f"s_lshl_b32 s{SCA}, s{SCA}, 5"); I(f"s_add_u32 s{SCA}, s{SCA}, s{SHEAD}")
            I(f"s_lshl_b32 s{SCA}, s{SCA}, 13"); I(f"s_add_u32 s{SCA}, s{SCA}, {CTX_OFF}")
            I(f"s_mov_b32 s{SFIN}, 0")
            if self.o.get("map84", 1):
                I(f"s_lshr_b32 s56, s{SF}, 6"); I("s_lshl_b32 s56, s56, 3"); I(f"s_bfe_u32 s44, s{SF}, 0x30002"); I("s_add_u32 s56, s56, s44")
                I(f"s_bfe_u32 s57, s{SF}, 0x10005"); I("s_lshl_b32 s57, s57, 2"); I(f"s_and_b32 s44, s{SF}, 3"); I("s_add_u32 s57, s57, s44")
                I(f"s_and_b32 s40, s{SF}, 63"); I("s_lshl_b32 s40, s40, 16")
            else:
                I(f"s_mov_b32 s56, s{SHEAD}"); I(f"s_mov_b32 s57, s{SIDX}")
                I(f"s_and_b32 s40, s{SF}, 31"); I("s_lshl_b32 s40, s40, 17")
            I(f"s_lshl_b32 s44, s{SW}, 13"); I("s_add_u32 s40, s40, s44"); I(f"s_add_u32 s40, s40, {WOT_OFF}")
            self.srd(RB, "ssmk", 2*MB); self.srd(RA, "k", 2*MB); self.srd(RC, "v", 2*MB); self.srd(RD, "shift", 4096); self.srd(RE, "wo", 4*MB)
            I("s_mov_b32 s41, 0")
            if not self.o.get("noprio"):
                l = a.label("PR"); I(f"s_cmp_eq_u32 s{SG}, 1"); I(f"s_cbranch_scc0 {l}"); I("s_setprio 1"); a.L(l)
            return
        def loadq(va):
            qt = []
            for ds in range(8):
                I(f"ds_read_b128 {v(QF+4*ds,4)}, v{va} offset:{1024*ds}"); qt.append(lg.issue())
            return qt
        op = lambda t, c=4: (lambda: I(t), c)
        def dma4(kind):
            sm, so = (SKM, SKO) if kind == "k" else (SVM, SVO)
            def d(i):
                def f():
                    if i == 0: I(f"s_mov_b32 m0, s{sm}"); I(f"s_xor_b32 s{sm}, s{sm}, 0x8000")
                    if not (self.o.get("a_nodma") and i):
                        I(f"buffer_load_dwordx4 v{VL16}, s[{RWS}:{RWS+3}], s{so} offen offset:{1024*i}{self.ld} lds")
                    if i == 3: I(f"s_add_u32 s{so}, s{so}, 0x10000")
                return (f, DC + (8 if i == 0 else 4 if i == 3 else 0))
            return [d(i) for i in range(4)]
        self.ring_n = 0
        def rd(kind, sl, idx):
            h = {}
            def f():
                slot = self.ring_n % NR; self.ring_n += 1
                h["reg"] = RING + 4*slot
                I(f"ds_read_b128 {v(h['reg'],4)}, v{VK if kind == 'k' else VV} offset:{sl*8192+idx*1024}"); h["tok"] = lg.issue()
            return f, h
        def wait_for(R, i):
            if R[i][1]["tok"] <= lg.done: return
            j = i
            while j + 1 < len(R) and j + 1 < i + WEV and "tok" in R[j+1][1] and R[j+1][1]["tok"] > R[i][1]["tok"]: j += 1
            lg.wait(R[j][1]["tok"])
        def mf_qk(sb, ds, R, i, czero=False):
            wait_for(R, i)
            c = (("0" if czero else v(NM,16)) if ds == 0 else v(S[sb],16))
            I(f"{MFMA} {v(S[sb],16)}, {v(R[i][1]['reg'],4)}, {v(QF+4*ds,4)}, {c}")
        def mf_pv(pb, idx, R, i=None, reg=None):
            ks, dt = idx >> 2, idx & 3
            if reg is None: wait_for(R, i); reg = R[i][1]["reg"]
            I(f"{MFMA} {v(O+16*dt,16)}, {v(reg,4)}, {v(PP[pb]+4*ks,4)}, {v(O+16*dt,16)}")
        def sm_ops(sb):
            L = []
            ex = lambda i: op(f"v_exp_f32 v{E+(i&7)}, v{S[sb]+i}", 8)
            def post(j):
                r = []; e0, e1 = E + ((2*j) & 7), E + ((2*j+1) & 7)
                if j == 0: r.append(op(f"v_add_f32 v{LU}, v{e0}, v{e1}"))
                else: r += [op(f"v_add_f32 v{LU}, v{LU}, v{e0}"), op(f"v_add_f32 v{LU}, v{LU}, v{e1}")]
                r.insert(1 if j else 0, op(f"v_cvt_pk_bf16_f32 v{PP[sb]+j}, v{e0}, v{e1}"))
                return r
            L += [ex(0), ex(1)]
            for j in range(8):
                p = post(j)
                L += ([ex(2*j+2), p[0], ex(2*j+3)] + p[1:]) if j < 7 else p
            if self.o.get("a_nosm"): L = [(lambda: None, 0) if i > 3 else x for i, x in enumerate(L)]
            return L
        def sched(M, fixed, chain):
            n = len(M); fc = [sum(c for _, c in fixed.get(g, [])) for g in range(n)]
            tot = sum(c for _, c in chain)
            lo, hi = 0.0, 4000.0
            for _ in range(40):
                lev = (lo + hi) / 2
                if sum(max(0, lev - f) for f in fc) >= tot: hi = lev
                else: lo = lev
            k = 0; credit = 0.0
            for g in range(n):
                M[g]()
                for c, _ in fixed.get(g, []): c()
                credit += max(0, hi - fc[g])
                while k < len(chain) and (g == n - 1 or chain[k][1] <= credit + 2):
                    chain[k][0](); credit -= chain[k][1]; k += 1
        def put(fixed, g, items): fixed.setdefault(g, []).extend(items)
        SPL = self.o.get("spl", 26)
        ool = []
        def rarely(cmp_, body):
            lo = a.label("OOL"); lb = a.label("RET")
            I(cmp_); I(f"s_cbranch_scc1 {lo}"); a.L(lb)
            ool.append((lo, lb, body))
        def mask_body(sb, koff):
            prs = [46, 48, 50, 52]
            if koff >= 64:
                I(f"v_subrev_u32 v{TMP+3}, 64, v{THR}"); tr = TMP + 3; koff -= 64
            elif koff < 0:
                I(f"s_lshl_b32 s44, s{SG}, 6"); I(f"v_subrev_u32 v{TMP+3}, s44, v{THR}"); tr = TMP + 3; koff = -koff - 1
            else: tr = THR
            for r0 in range(0, 16, 4):
                for r in range(r0, r0+4):
                    I(f"v_cmp_lt_i32 s[{prs[r&3]}:{prs[r&3]+1}], v{tr}, {(r & 3) + 8*(r >> 2) + koff}")
                for r in range(r0, r0+4):
                    I(f"v_cndmask_b32 v{S[sb]+r}, v{S[sb]+r}, v{NINF}, s[{prs[r&3]}:{prs[r&3]+1}]")
        def rowmax(sb, dst):
            b = S[sb]
            I(f"v_max3_f32 v{dst}, v{b}, v{b+1}, v{b+2}")
            for i in range(3, 15, 2): I(f"v_max3_f32 v{dst}, v{dst}, v{b+i}, v{b+i+1}")
            I(f"v_max_f32 v{dst}, v{dst}, v{b+15}"); I(f"v_mov_b32 v{dst+1}, v{dst}")
            I(f"v_permlane32_swap_b32 v{dst}, v{dst+1}"); I(f"v_max_f32 v{dst}, v{dst}, v{dst+1}")
        def init_max():
            rowmax(0, TMP)
            I(f"v_max_f32 v{TMP}, {f2u(-1e30)}, v{TMP}")
            for r in range(16): I(f"v_sub_f32 v{NM+r}, 0, v{TMP}")
            return [op(f"v_sub_f32 v{S[0]+r}, v{S[0]+r}, v{TMP}") for r in range(16)]
        rare = []
        def check(sb, other=True):
            def f():
                lr = a.label("RARE"); lb = a.label("BACK")
                I(f"v_cmp_nge_f32 vcc, s{STH}, v{LU}")
                if self.o.get("a_nocheck"): I("s_mov_b64 vcc, 0")
                I(f"s_cbranch_vccnz {lr}"); a.L(lb)
                I(f"v_add_f32 v{LRUN}, v{LRUN}, v{LU}")
                rare.append((lr, lb, sb, other))
            return f
        def fin_body():
            I(f"v_mov_b32 v{TMP}, v{LA}"); I(f"s_mov_b32 s{SFIN}, 2"); I("s_nop 0")
            I(f"v_permlane32_swap_b32 v{TMP}, v{LA}"); I(f"v_add_f32 v{TMP}, v{TMP}, v{LA}"); I(f"v_rcp_f32 v{TMP}, v{TMP}"); I(f"v_mov_b32 v{TMP+1}, v{TMP}")
            for q in range(8):
                for i in range(8*q, 8*q+8, 2): I(f"v_pk_mul_f32 {v(O+i,2)}, {v(O+i,2)}, {v(TMP,2)}")
                for i in range(4): I(f"v_cvt_pk_bf16_f32 v{PK+4*q+i}, v{O+8*q+2*i}, v{O+8*q+2*i+1}")
                for i in range(8*q, 8*q+8, 2): I(f"v_mov_b64 {v(O+i,2)}, 0")
        def st_body():
            I(f"s_add_u32 s44, s{SCA}, 4096"); I(f"s_mov_b32 s{SFIN}, 3")
            for q in range(8):
                I(f"buffer_store_dwordx4 {v(PK+4*q,4)}, v{VL16}, s[{RWS}:{RWS+3}], s{SCA if q < 4 else 44} offen offset:{1024*(q&3)}{self.st}")
        TR = [RING + 4*(2+i) for i in range(6)]
        def head(R, vmw, with_mfma=True, post=()):
            rf = [(f, 4) for f, h in R]; sm2 = sm_ops(0)[SPL:]
            nop = lambda: None
            def first():
                I("s_waitcnt lgkmcnt(4)"); mf_pv(1, 2, None, reg=TR[0])
            M = [first] + [lambda i=i: mf_pv(1, 2+i, None, reg=TR[i]) for i in range(1, 6)] if with_mfma else [nop]*6
            nb = self.o.get("nb", 4)
            sched(M[:2], {}, sm2[:nb])
            vmw(); I("s_waitcnt lgkmcnt(0)"); lg.mark_all_done(); self.barrier(); self.ring_n = 0
            fx = {0: rf[0:2], 1: rf[2:5], 2: rf[5:6], 3: rf[6:7] + [(nop, 12 + 8*len(post))]}
            sched(M[2:], fx, sm2[nb:])
            check(0)()
            for p in post: p()
        def mk_reads():
            return ([rd("k", 0, i) for i in range(8)] + [rd("v", 0, i) for i in range(8)] +
                    [rd("k", 1, i) for i in range(8)] + [rd("v", 1, i) for i in range(8)])
        def mid(R, dmas, kx, mb=None, trans=False, endops=(), extra=None):
            rf = [(f, 4) for f, h in R]
            M = [lambda i=i: mf_qk(0, i, R, i, trans) for i in range(8)] + [lambda i=i: mf_pv(0, i, R, 8+i) for i in range(8)]
            fx = {}
            for g in range(16): put(fx, g, [rf[7+g]])
            D = sum((dma4(k) for k in dmas), [])
            DS = self.o.get("dstep", 2)
            spill = []
            for n, d in enumerate(D):
                g = n * DS * (2 if len(D) == 4 and not extra else 1)
                if g < 15: put(fx, g, [d])
                else: spill.append((g - 16 if g >= 16 else 0, d))
            put(fx, 15, [(lambda: None, 20)])
            if extra:
                X0 = self.o.get("x0", 8); ng = 16 - X0 + 9; per = -(-len(extra) // ng)
                put(fx, X0, [op("s_waitcnt vmcnt(4)")])
                for g in range(X0, 16): put(fx, g, extra[(g-X0)*per:(g-X0+1)*per])
                for g in range(9): spill += [(g, x) for x in extra[(16-X0+g)*per:(16-X0+g+1)*per]]
            sched(M, fx, sm_ops(1))
            check(1, other=not trans)()
            if mb: mb()
            pre = []
            if trans:
                I(f"v_mov_b32 v{LA}, v{LRUN}"); I(f"v_mov_b32 v{LRUN}, 0"); I(f"s_mov_b32 s{SFIN}, 1")
                pre = init_max()
            M = [lambda i=i: mf_qk(1, i, R, 16+i) for i in range(8)] + [lambda i=i: mf_pv(1, i, R, 24+i) for i in range(2)]
            fx = {}
            for g in range(9): put(fx, g, [rf[23+g]])
            for g, d in spill: put(fx, g, [d])
            put(fx, 8, [op(f"v_xor_b32 v{VV}, 0x10000, v{VK}")] + kx)
            for n, e in enumerate(endops): put(fx, 7 - n, [e])
            put(fx, 9, [(lambda: None, 16)])
            sched(M, fx, pre + sm_ops(0)[:SPL])
            assert [R[26+i][1]["reg"] for i in range(6)] == TR
        vm4 = lambda: I("s_waitcnt vmcnt(4)")
        vm0 = lambda: I("s_waitcnt vmcnt(0)")
        def vm08():
            lo = a.label("W8"); lb = a.label("W8R")
            I(f"s_cmp_eq_u32 s{SFIN}, 3"); I(f"s_cbranch_scc1 {lo}"); I("s_waitcnt vmcnt(%d)" % self.o.get("a_vm", 0)); a.L(lb)
            def b(): I("s_waitcnt vmcnt(8)"); I(f"s_mov_b32 s{SFIN}, 4")
            ool.append((lo, lb, b))
        m1 = lambda sb, ko: (lambda: rarely(f"s_cmp_eq_u32 s{SC1}, s{SM1}", lambda: mask_body(sb, ko)))
        fin = lambda: rarely(f"s_cmp_eq_u32 s{SFIN}, 1", fin_body)
        sta = (lambda: rarely(f"s_cmp_eq_u32 s{SFIN}, 2", st_body), 8)

        KR, VR, SH, WO, AD = 16, 23, 28, 32, 40
        def side_loads():
            L = []; E = lambda t: L.append(op(t)); V = lambda t: L.append(op(t, DC))
            E(f"v_lshrrev_b32 v{AD}, 5, v0"); E(f"v_and_b32 v{AD+1}, 31, v0"); E(f"v_lshlrev_b32 v{AD+2}, 12, v{AD}"); E(f"v_lshl_add_u32 v{AD+2}, v{AD+1}, 2, v{AD+2}")
            E(f"s_lshl_b32 s60, s{SF}, 14"); E(f"s_lshl_b32 s61, s{SW}, 7"); E("s_add_u32 s60, s60, s61"); E("s_add_u32 s61, s60, 8192")
            for j in range(8): V(f"buffer_load_dword v{WO+j}, v{AD+2}, s[{RE}:{RE+3}], s{60+(j>>2)} offen offset:{1024*(j&3)}")
            E("s_lshr_b32 s62, s2, 3"); E("s_lshl_b32 s62, s62, 16"); E(f"s_lshl_b32 s63, s{SW}, 13"); E("s_add_u32 s62, s62, s63")
            E("s_and_b32 s63, s2, 7"); E("s_lshl_b32 s63, s63, 7"); E("s_add_u32 s62, s62, s63"); E(f"v_add_u32 v{AD+3}, s62, v{AD+2}")
            for i in range(3): E(f"v_subrev_u32 v{AD+4+i}, {3072-1024*i}, v{AD+3}")
            E("s_lshl_b32 s63, s63, 2"); E(f"v_lshl_add_u32 v{AD+7}, v{AD+1}, 4, s63")
            for i in range(3): V(f"buffer_load_dword v{KR+i}, v{AD+4+i}, s[{RA}:{RA+3}], 0 offen")
            for i in range(4): V(f"buffer_load_dword v{KR+3+i}, v{AD+3}, s[{RA}:{RA+3}], 0 offen offset:{1024*i}")
            for i in range(4): V(f"buffer_load_dword v{VR+i}, v{AD+3}, s[{RC}:{RC+3}], 0 offen offset:{1024*i}")
            V(f"buffer_load_dwordx4 {v(SH,4)}, v{AD+7}, s[{RD}:{RD+3}], 0 offen")
            E(f"s_lshl_b32 s60, s{SF}, 13"); E(f"s_add_u32 s60, s60, s{SWK}"); E(f"v_and_b32 v27, 7, v0"); E("v_lshlrev_b32 v27, 7, v27")
            V(f"buffer_load_dword v1, v27, s[{RB}:{RB+3}], s60 offen")
            return L
        NSL = 21
        def side_math():
            L = []; E = lambda t: L.append(op(t)); V = lambda t: L.append(op(t, DC))
            W2 = 48
            E("s_mov_b32 s60, 0x05040100"); E("s_mov_b32 s61, 0x07060302")
            for j in range(4): E(f"v_perm_b32 v{W2+j}, v{WO+2*j+1}, v{WO+2*j}, s60")
            for j in range(4): E(f"v_perm_b32 v{W2+4+j}, v{WO+2*j+1}, v{WO+2*j}, s61")
            E(f"s_lshl_b32 s60, s{SW}, 8"); E(f"s_add_u32 s60, s60, s{SF}"); E("s_lshl_b32 s60, s60, 11"); E(f"s_add_u32 s60, s60, {WOT_OFF}")
            for mt in range(2): V(f"buffer_store_dwordx4 {v(W2+4*mt,4)}, v{VL16}, s[{RWS}:{RWS+3}], s60 offen offset:{1024*mt}{self.st}")
            KU, SU, OO, VU, PQ = 32, 42, 48, 39, 52
            for c in range(2):
                def unp(d, sreg, half): E(f"v_lshlrev_b32 v{d}, 16, v{sreg}" if half == 0 else f"v_and_b32 v{d}, 0xffff0000, v{sreg}")
                for i in range(7): unp(KU+i, KR+i, c)
                for j in range(4): unp(SU+j, SH + 2*c + (j >> 1), j & 1)
                for o in range(4):
                    E(f"v_mul_f32 v{OO+o}, v{KU+o}, v{SU+3}")
                    for j in (2, 1, 0): E(f"v_fmac_f32 v{OO+o}, v{KU+o+3-j}, v{SU+j}")
                    unp(VU, VR+o, c)
                    E(f"v_mul_f32 v{OO+o}, v{OO+o}, v{VU}")
                d = PQ + 2*(1-c)
                E(f"v_cvt_pk_bf16_f32 v{d}, v{OO+3}, v{OO+2}"); E(f"v_cvt_pk_bf16_f32 v{d+1}, v{OO+1}, v{OO}")
            E(f"v_lshlrev_b32 v{AD+1}, 5, v{AD+1}"); E(f"v_lshl_add_u32 v{AD+1}, v{AD}, 4, v{AD+1}")
            E(f"v_permlane32_swap_b32 v{PQ+2}, v{PQ}"); E(f"v_permlane32_swap_b32 v{PQ+3}, v{PQ+1}")
            E("s_lshr_b32 s60, s2, 3"); E("s_lshl_b32 s60, s60, 16"); E(f"s_lshl_b32 s61, s{SW}, 13"); E("s_add_u32 s60, s60, s61")
            E("s_and_b32 s61, s2, 7"); E("s_lshl_b32 s61, s61, 10"); E("s_add_u32 s60, s60, s61"); E(f"s_add_u32 s60, s60, {KVT_OFF}")
            V(f"buffer_store_dwordx4 {v(PQ,4)}, v{AD+1}, s[{RWS}:{RWS+3}], s60 offen{self.st}")
            return L
        def spub_body():
            l1 = a.label("SM"); l2 = a.label("SP")
            I("s_add_u32 s41, s41, 1"); I(f"s_add_u32 s44, s41, s{SG}"); I("s_cmp_lg_u32 s44, 2"); I(f"s_cbranch_scc1 {l1}")
            for c, _ in side_math(): c()
            a.L(l1)
            I("s_cmp_lg_u32 s41, 4"); I(f"s_cbranch_scc1 {l2}")
            I(f"s_lshl_b32 s44, s{SF}, 2"); I(f"s_add_u32 s44, s44, {FY_OFF}")
            sv = self.save(); self.publish(44, 2); self.restore(sv)
            a.L(l2)
        spub = lambda: rarely("s_cmp_lt_u32 s41, 4", spub_body)
        def snap():
            self.oob_sel(); I("v_lshl_add_u32 v49, v0, 4, s99"); I(f"s_mov_b32 s60, {FY_OFF}")
            I(f"buffer_load_dwordx4 v[52:55], v49, s[{RWS}:{RWS+3}], s60 offen sc1")
        def side_check():
            l = a.label("SCK"); lp = a.label("SPL")
            I(f"s_cmp_lg_u32 s{SW}, 0"); I(f"s_cbranch_scc1 {l}")
            I("s_mov_b32 s99, 20000"); a.L(lp)
            I("v_and_b32 v52, v52, v53"); I("v_and_b32 v54, v54, v55"); I("v_and_b32 v52, v52, v54"); I("v_and_b32 v52, 2, v52")
            I("v_cmp_ne_u32 vcc, 2, v52"); I(f"s_cbranch_vccz {l}"); I("s_sleep 2")
            I(f"buffer_load_dwordx4 v[52:55], v49, s[{RWS}:{RWS+3}], s60 offen sc1")
            I("s_sub_u32 s99, s99, 1"); I("s_cmp_lg_u32 s99, 0"); I("s_waitcnt vmcnt(0)"); I(f"s_cbranch_scc1 {lp}")
            a.L(l)
        m2 = lambda sb, ko: (lambda: rarely(f"s_cmp_eq_u32 s{SC2}, 0", lambda: (snap(), mask_body(sb, ko))))
        LEV = a.label("EVEN"); LODM = a.label("ODDM"); LTRANS = a.label("TRANS"); LP2 = a.label("P2"); LP2B = a.label("P2B"); LDRAIN = a.label("DRAIN")
        self.stamp(8)
        self.ring_n = 0
        R = [rd("k", 0, i) for i in range(8)] + [rd("k", 1, i) for i in range(8)]
        for i in range(7):
            I(f"ds_read_b128 {v(QF+4*i,4)}, v{TMP+1} offset:{1024*i}"); lg.issue()
            R[i][0]()
        def q7():
            I(f"ds_read_b128 {v(QF+28,4)}, v{TMP+1} offset:{1024*7}"); lg.issue()
        D = dma4("v") + dma4("k")
        sched([lambda i=i: mf_qk(0, i, R, i, True) for i in range(8)], {g: ([(q7, 4)] if g == 0 else []) + [(R[7+g][0], 4), D[g]] for g in range(8)}, [])
        m1(0, 0)()
        pre = init_max()
        I(f"v_mov_b32 v{LRUN}, 0")
        fx = {}
        put(fx, 0, [(R[15][0], 4)]); put(fx, 4, [op(f"v_xor_b32 v{VV}, 0x10000, v{VK}"), op(f"v_xor_b32 v{VK}, 0x4000, v{VK}")])
        SLd = side_loads(); n8 = (len(SLd) + 7) // 8
        for g in range(8): put(fx, g, SLd[g*n8:(g+1)*n8])
        sched([lambda i=i: mf_qk(1, i, R, 8+i) for i in range(8)], fx, pre + sm_ops(0)[:SPL])
        R = mk_reads()
        head(R, lambda: I(f"s_waitcnt vmcnt({4+NSL})"), False, post=[m1(1, 32)])
        svm = self.save()
        I(f"s_branch {LODM}")
        a.L(LEV)
        R = mk_reads(); head(R, vm4)
        mid(R, "k", [op(f"v_xor_b32 v{VK}, 0x4000, v{VK}")], mb=m1(0, 0))
        R = mk_reads(); head(R, vm4, post=[m1(1, 32), spub])
        assert self.lg.issued - self.lg.done == svm[2] - svm[3]
        a.L(LODM)
        mid(R, "v", [op(f"v_xor_b32 v{VK}, 0xc000, v{VK}")], mb=m1(0, 64), endops=[op(f"s_sub_u32 s{SC1}, s{SC1}, 1")])
        I(f"s_cmp_lg_u32 s{SC1}, -1"); I(f"s_cbranch_scc1 {LEV}")
        I(f"s_cmp_eq_u32 s{SG}, 1"); I(f"s_cbranch_scc1 {LTRANS}")
        svt = self.save()
        R = mk_reads(); head(R, vm4)
        mid(R, "k", [op(f"v_xor_b32 v{VK}, 0x8000, v{VK}")], mb=m2(0, -1))
        a.L(LP2B)
        I(f"s_cmp_eq_u32 s{SC2}, 0"); I(f"s_cbranch_scc1 {LDRAIN}")
        a.L(LP2)
        R = mk_reads(); head(R, vm08, post=[spub, fin, lambda: I(f"s_sub_u32 s{SC2}, s{SC2}, 1")])
        mid(R, "kv", [op(f"v_xor_b32 v{VK}, 0x8000, v{VK}")], mb=m2(0, -1), endops=[sta])
        I(f"s_cmp_lg_u32 s{SC2}, 0"); I(f"s_cbranch_scc1 {LP2}")
        a.L(LDRAIN)
        self.stamp(10)
        R2 = [rd("v", 0, i) for i in range(8)] + [rd("v", 1, i) for i in range(8)]
        rf = [(f, 4) for f, h in R2]
        head(R2, lambda: (vm08(), side_check()), post=[fin, sta[0]])
        mask_body(1, -33)
        ts, ts2, ts3 = self.tail_setup(); n8 = (len(ts) + 4) // 5
        fx = {g: [rf[7+g]] + ts[g*n8:(g+1)*n8] for g in range(8)}
        for g in range(3):
            if g < len(ts2): put(fx, 5 + g, [ts2[g]])
        sched([lambda i=i: mf_pv(0, i, R2, i) for i in range(8)], fx, sm_ops(1))
        check(1)()
        pre = []; E_ = lambda t: pre.append(op(t))
        E_(f"v_mov_b32 v{TMP}, v{LRUN}"); E_(f"s_lshl_b32 s44, s{SW}, 9"); E_(f"s_add_u32 s44, s44, {ML}")
        E_(f"v_permlane32_swap_b32 v{TMP}, v{LRUN}"); E_(f"v_add_f32 v{NM+1}, v{TMP}, v{LRUN}")
        E_(f"v_lshrrev_b32 v{TMP}, 1, v{VL16}"); E_(f"v_add_u32 v{TMP}, s44, v{TMP}")
        def wml():
            I(f"ds_write_b64 v{TMP}, {v(NM,2)}"); lg.issue()
        pre.append((wml, 4))
        E_(f"v_xor_b32 v{TMP}, 0x800, v{TMP}")
        E_(f"s_lshl_b32 s46, s{SW}, 13"); E_(f"v_add_u32 v{TMP+1}, s46, v{VL16}"); E_(f"v_xor_b32 v{TMP+2}, 0x8000, v{TMP+1}")
        E_(f"s_sub_u32 s54, 15, s{SIDX}"); E_(f"s_lshl_b32 s54, s54, 2"); E_(f"s_add_u32 s54, s54, s{SR}"); E_("s_lshl_b32 s54, s54, 5"); E_(f"s_add_u32 s54, s54, s{SHEAD}")
        E_("s_lshl_b32 s54, s54, 13"); E_(f"s_lshl_b32 s44, s{SG}, 12"); E_("s_add_u32 s54, s54, s44"); E_(f"s_add_u32 s54, s54, {CTX_OFF}")
        fx = {0: [rf[15]]}
        for g, x in enumerate(ts2[3:]): put(fx, g, [x])
        sched([lambda i=i: mf_pv(1, i, R2, 8+i) for i in range(8)], fx, pre + ts3)
        self.stamp(11)
        lg1 = a.label("MG1"); lj = a.label("MGJ")
        I(f"s_cmp_eq_u32 s{SG}, 1"); I(f"s_cbranch_scc1 {lg1}")
        sv2 = self.save(); PR = 64
        for g in (0, 1):
            if g: a.L(lg1); self.restore(sv2)
            own = O + 32*g; snd = O + 32*(1-g)
            for i in range(8):
                I(f"ds_write_b128 v{TMP+1}, {v(snd+4*i,4)} offset:{1024*i}"); lg.issue()
            lg.wait(lg.issued); self.barrier()
            I(f"ds_read_b64 {v(96,2)}, v{TMP}"); t0 = lg.issue()
            tk = []
            for i in range(8):
                I(f"ds_read_b128 {v(PR+4*i,4)}, v{TMP+2} offset:{1024*i}"); tk.append(lg.issue())
            lg.wait(t0)
            I(f"v_min_f32 v98, v{NM}, v96"); I(f"v_sub_f32 v99, v98, v{NM}"); I(f"v_sub_f32 v100, v98, v96")
            I("v_exp_f32 v99, v99"); I("v_exp_f32 v100, v100")
            I(f"v_mul_f32 v101, v99, v{NM+1}"); I("v_fmac_f32 v101, v100, v97"); I("v_rcp_f32 v101, v101")
            I("v_mul_f32 v102, v99, v101"); I("v_mul_f32 v103, v99, v101"); I("v_mul_f32 v104, v100, v101"); I("v_mul_f32 v105, v100, v101")
            for q in range(4):
                for i in range(8*q, 8*q+8, 2): I(f"v_pk_mul_f32 {v(own+i,2)}, {v(own+i,2)}, v[102:103]")
                lg.wait(tk[2*q+1])
                for i in range(8*q, 8*q+8, 2): I(f"v_pk_fma_f32 {v(own+i,2)}, {v(PR+i,2)}, v[104:105], {v(own+i,2)}")
                for i in range(4): I(f"v_cvt_pk_bf16_f32 v{snd+4*q+i}, v{own+8*q+2*i}, v{own+8*q+2*i+1}")
                I(f"buffer_store_dwordx4 {v(snd+4*q,4)}, v{VL16}, s[{RWS}:{RWS+3}], s54 offen offset:{1024*q}{self.st}"); self.tctx = vm.issue()
            if not g: I(f"s_branch {lj}")
        a.L(lj)
        I("s_setprio 0")
        self.stamp(4)
        def cold():
            a.L(LTRANS)
            self.restore(svt)
            loadq(VQ); I("s_waitcnt lgkmcnt(0)")
            I(f"v_xor_b32 v{VK}, 0x4000, v{VK}")
            R = mk_reads(); head(R, vm4, post=[lambda: mask_body(1, 96)])
            mid(R, "k", [op(f"v_xor_b32 v{VK}, 0x8000, v{VK}")], mb=m2(0, -1), trans=True)
            I(f"s_branch {LP2B}")
            for (lo, lb, body) in ool:
                a.L(lo); body(); I(f"s_branch {lb}")
            for (lr, lb, sb, other) in rare:
                a.L(lr)
                I("s_nop 15")
                rowmax(sb, TMP)
                I(f"v_max_f32 v{TMP}, 0, v{TMP}"); I(f"v_exp_f32 v{TMP+1}, -v{TMP}")
                for r in range(16): I(f"v_sub_f32 v{NM+r}, v{NM+r}, v{TMP}")
                for r in range(16): I(f"v_sub_f32 v{S[sb]+r}, v{S[sb]+r}, v{TMP}")
                if other:
                    for r in range(16): I(f"v_sub_f32 v{S[1-sb]+r}, v{S[1-sb]+r}, v{TMP}")
                for r in range(64): I(f"v_mul_f32 v{O+r}, v{O+r}, v{TMP+1}")
                I(f"v_mul_f32 v{LRUN}, v{LRUN}, v{TMP+1}")
                for c, _ in sm_ops(sb): c()
                I("s_nop 1"); I(f"s_branch {lb}")
        self.attn_rare = cold

    HB = 65536; HC = 4416; XB = 136192; YB = 148480
    SC, SJ, SB, SCH, SHB_, SWO, SCX = 34, 35, 36, 37, 38, 39, 40
    WS_ = [16, 24, 32, 40, 176, 184, 56, 80, 88, 96, 104, 144, 152, 160]
    CS_ = [168, 112, 120, 128, 136, 64, 72]
    NL = 4
    def tail_setup(self):
        I = self.I; L = []; E = lambda t: L.append((lambda: I(t), 4))
        SC, SJ, SB, SCH, SHB_, SWO, SCX = self.SC, self.SJ, self.SB, self.SCH, self.SHB_, self.SWO, self.SCX
        self.wtok = {}; self.wslot = dict(enumerate(self.WS_))
        E(f"s_lshr_b32 s{SC}, s{SW}, 2"); E(f"s_and_b32 s{SJ}, s{SW}, 3")
        E(f"s_lshl_b32 s{SCH}, s{SF}, 1"); E(f"s_add_u32 s{SCH}, s{SCH}, s{SC}"); E(f"s_lshl_b32 s{SCH}, s{SCH}, 12")
        E(f"s_lshl_b32 s60, s{SJ}, 10"); E("v_add_u32 v50, s60, v6"); E("v_subrev_u32 v51, 16, v50")
        E(f"s_lshr_b32 s60, s{SCH}, 8"); E(f"s_add_u32 s60, s60, {KVT_OFF}"); E("v_lshlrev_b32 v52, 9, v50")
        def ld(t):
            def f(): I(t); self.th = self.vm.issue()
            L.append((f, 16))
        ld(f"buffer_load_dwordx4 {v(160,4)}, v51, s[{RB}:{RB+3}], s{SCH} offen")
        ld(f"buffer_load_dwordx4 {v(164,4)}, v50, s[{RB}:{RB+3}], s{SCH} offen")
        ld(f"buffer_load_dwordx4 {v(168,4)}, v52, s[{RWS}:{RWS+3}], s60 offen{self.ld}")
        E(f"s_lshl_b32 s{SWO}, s57, 19"); E(f"s_lshl_b32 s60, s{SW}, 16"); E(f"s_add_u32 s{SWO}, s{SWO}, s60"); E(f"s_add_u32 s{SWO}, s{SWO}, {WOT_OFF}")
        L2 = [(lambda i=i: self.wload(i), 36) for i in range(self.o.get("we", 0))]
        L3 = []; L, Lx = L3, L
        E = lambda t: L3.append((lambda: I(t), 4))
        E(f"s_mul_i32 s{SB}, s{SC}, 6144"); E(f"s_add_u32 s{SB}, s{SB}, {self.XB}")
        E(f"s_mul_i32 s{SHB_}, s{SC}, {8*self.HC}"); E(f"s_add_u32 s{SHB_}, s{SHB_}, {self.HB}")
        E(f"s_lshl_b32 s{SCX}, s56, 19"); E(f"s_lshl_b32 s60, s{SW}, 15"); E(f"s_add_u32 s{SCX}, s{SCX}, s60"); E(f"s_add_u32 s{SCX}, s{SCX}, {CTX_OFF}")
        return Lx, L2, L3
    def wreg(self, i):
        return self.WS_[i % len(self.WS_)]
    def wload(self, i):
        I = self.I; r = self.wslot[i]
        I(f"s_add_u32 s61, s{self.SWO}, {i*2048}")
        for mt in range(2):
            I(f"buffer_load_dwordx4 {v(r+4*mt,4)}, v6, s[{RWS}:{RWS+3}], s61 offen offset:{mt*1024}{self.ld}"); self.wtok[i] = self.vm.issue()
    def tail_early(self):
        I = self.I; vm = self.vm; lg = self.lg; HC = self.HC
        SJ, SB, SCH, SHB_ = self.SJ, self.SB, self.SCH, self.SHB_
        Ee, Eo, Oe, Oo = 160, 113, 122, 131
        vm.wait(self.th)
        for k in range(7): I(f"v_alignbit_b32 v{Oe+k}, v{Ee+k+1}, v{Ee+k}, 16")
        for k in range(1, 7): I(f"v_alignbit_b32 v{Oo+k}, v{Ee+k+1}, v{Ee+k}, 16")
        for k in range(1, 7): I(f"v_mov_b32 v{Eo+k}, v{Ee+k}")
        I(f"s_add_u32 s60, s{SHB_}, 64"); I("v_add_u32 v51, s60, v50")
        for r in range(8):
            sft = 1 + r; k = sft >> 1
            base = ((Oe, Oo) if sft & 1 else (Ee, Eo))[k & 1]
            I(f"ds_write_b128 v51, {v(base+k,4)} offset:{r*HC}"); lg.issue()
        I("v_and_b32 v51, 3, v0"); I("v_mul_u32_u24 v52, 1536, v51"); I("v_lshrrev_b32 v53, 6, v50"); I("v_lshl_add_u32 v52, v53, 4, v52")
        I(f"s_add_u32 s60, s{SB}, 512"); I("v_add_u32 v52, s60, v52")
        I(f"ds_write_b128 v52, {v(168,4)}"); lg.issue()
        for r in range(2): I(f"v_mov_b64 {v(172+2*r,2)}, 0")
        I("v_bfe_u32 v52, v0, 2, 3"); I(f"v_mul_u32_u24 v52, {HC}, v52"); I("v_lshl_add_u32 v52, v51, 4, v52"); I(f"v_add_u32 v52, s{SHB_}, v52")
        I(f"ds_write_b128 v52, {v(172,4)}"); lg.issue()
        I(f"s_mul_i32 s60, s{SJ}, 1536"); I(f"s_add_u32 s60, s60, s{SB}"); I("v_lshl_add_u32 v52, v0, 3, s60")
        I(f"ds_write_b64 v52, {v(172,2)}"); lg.issue()
    def tailp(self):
        a = self.a; I = self.I; vm = self.vm; lg = self.lg
        HB, HC, YB = self.HB, self.HC, self.YB
        SC, SJ, SB, SCH, SHB_, SWO, SCX = self.SC, self.SJ, self.SB, self.SCH, self.SHB_, self.SWO, self.SCX
        ACC = 192; FRS = [224, 240, 64]; RD_ = 224
        VL16, VA, VB, T, VP, VPA, VO, GR, VLW, XR = 6, 4, 5, 12, 7, 8, 9, 10, 11, 48
        OACC = 192
        NW, NCX, NL = len(self.WS_), len(self.CS_), self.o.get("nl", 0)
        wtok = self.wtok; ctok = {}; wslot = self.wslot; cslot = dict(enumerate(self.CS_))
        I(f"s_lshr_b32 s53, s56, 1"); I("s_lshl_b32 s53, s53, 10"); I(f"s_lshl_b32 s44, s{SW}, 7"); I("s_add_u32 s53, s53, s44"); I(f"s_add_u32 s53, s53, {FC_OFF}")
        I(f"v_and_b32 v{VPA}, 3, v0"); I(f"v_lshlrev_b32 v{VPA}, 2, v{VPA}")
        P0 = self.o.get("p0", 0)
        tc0 = self.poll_issue(VP, VPA, "s53") if P0 else self.tctx
        self.tail_early()
        PUBN = self.o.get("pubn", 1)
        I(f"s_lshr_b32 s45, s{SHEAD}, 2"); I("s_lshl_b32 s45, s45, 7"); I(f"s_and_b32 s44, s{SHEAD}, 3"); I("s_lshl_b32 s44, s44, 2"); I("s_add_u32 s45, s45, s44")
        I(f"s_sub_u32 s44, 15, s{SIDX}"); I("s_lshl_b32 s44, s44, 10"); I("s_add_u32 s46, s44, s45"); I(f"s_add_u32 s46, s46, {FC_OFF}")
        I(f"s_lshl_b32 s44, s{SIDX}, 10"); I("s_add_u32 s47, s44, s45"); I(f"s_add_u32 s47, s47, {FC_OFF}")
        self.srd(RC, "out", 2*MB); self.srd(RD, "q", 2*MB)
        I(f"s_lshl_b32 s44, s{SF}, 2"); I(f"s_load_dword s55, s[{P['ssmD']}:{P['ssmD']+1}], s44")
        I(f"v_and_b32 v{T}, 31, v0"); I(f"v_lshrrev_b32 v{T+1}, 5, v0")
        I(f"v_and_b32 v{T+2}, 7, v0"); I(f"v_mul_u32_u24 v{VA}, {HC}, v{T+2}")
        I(f"v_bfe_u32 v{T+2}, v0, 3, 2"); I(f"v_sub_u32 v{T+2}, v{T+2}, v{T+1}"); I(f"v_lshl_add_u32 v{VA}, v{T+2}, 4, v{VA}")
        I(f"s_lshl_b32 s43, s{SJ}, 9"); I(f"s_add_u32 s43, s43, s{SHB_}"); I("s_add_u32 s43, s43, 32"); I(f"v_add_u32 v{VA}, s43, v{VA}")
        I(f"s_lshl_b32 s43, s{SJ}, 7"); I(f"s_sub_u32 s43, s{SB}, s43"); I("s_add_u32 s43, s43, 400")
        I(f"v_lshl_add_u32 v{VB}, v{T}, 4, s43"); I(f"v_mul_u32_u24 v{T+2}, 1536, v{T+1}"); I(f"v_add_u32 v{VB}, v{VB}, v{T+2}")
        I(f"s_lshl_b32 s51, s{SW}, 13"); I(f"v_add_u32 v{VLW}, s51, v{VL16}")
        I("s_waitcnt lgkmcnt(0)"); lg.mark_all_done(); self.barrier()
        self.stamp(5)
        def cload(i):
            r = cslot[i]
            I(f"s_add_u32 s62, s{SCX}, {(i//4)*4096}"); I("s_add_u32 s63, s62, 0x40000")
            for st in range(2):
                I(f"buffer_load_dwordx4 {v(r+4*st,4)}, v{VL16}, s[{RWS}:{RWS+3}], s{62+st} offen offset:{(i%4)*1024}{self.ld}"); ctok[i] = vm.issue()
        ltok = {}
        def lstage(j):
            I(f"s_add_u32 m0, s51, {j*2048}"); I(f"s_add_u32 s61, s{SWO}, {(NW+j)*2048}")
            for mt in range(2):
                I(f"buffer_load_dwordx4 v{VL16}, s[{RWS}:{RWS+3}], s61 offen offset:{mt*1024}{self.ld} lds"); ltok[j] = vm.issue()
        def early(lo, hi, level):
            le = a.label("NE")
            I(f"s_cmp_lg_u32 s50, {level}"); I(f"s_cbranch_scc1 {le}")
            sv = self.save()
            for i in range(lo, hi): cload(i)
            self.restore(sv); I(f"s_mov_b32 s50, {level+1}")
            a.L(le)
        def seen():
            I(f"v_and_b32 v{VP}, 1, v{VP}"); I(f"v_cmp_ne_u32 vcc, 1, v{VP}"); I("s_cmp_eq_u64 vcc, 0"); I("s_cselect_b32 s52, 1, 0"); I("s_max_u32 s50, s50, s52")
        I("s_mov_b32 s50, 0")
        wl = [lambda i=i: self.wload(i) for i in range(NW) if i not in wtok] + [lambda j=j: lstage(j) for j in range(NL)]
        steps = [(dd, ks) for dd in range(8) for ks in range(2)]
        toks = {}
        def reads(n):
            dd, ks = steps[n]; b = FRS[n % 3]
            def r(k, reg, addr, off):
                def f():
                    I(f"ds_read_b128 {v(reg,4)}, v{addr} offset:{off}"); toks[(n, k)] = lg.issue()
                return f
            return [r(0, b, VA, 64*dd + 32*(1-ks)), r(1, b+4, VB, ks*3072 + (7-dd)*16),
                    r(2, b+8, VB, ks*3072 + (7-dd)*16 + 512), r(3, b+12, VA, 64*dd + 32*(1-ks) + 2048)]
        for n in range(2):
            for f in reads(n): f()
        for n in range(16):
            b = FRS[n % 3]; L = reads(n+2) if n + 2 < 16 else []
            c0 = "0" if n == 0 else v(ACC,16); c1 = "0" if n == 0 else v(ACC+16,16)
            lg.wait(toks[(n,1)]); I(f"{MFMA} {v(ACC,16)}, {v(b,4)}, {v(b+4,4)}, {c0}")
            for f in L[0:2]: f()
            lg.wait(toks[(n,2)]); I(f"{MFMA} {v(ACC+16,16)}, {v(b,4)}, {v(b+8,4)}, {c1}")
            for f in L[2:3]: f()
            lg.wait(toks[(n,3)]); I(f"{MFMA} {v(ACC+16,16)}, {v(b+12,4)}, {v(b+4,4)}, {v(ACC+16,16)}")
            for f in L[3:4]: f()
            if n == PUBN:
                vm.wait(tc0); self.barrier(); self.publish(46); self.publish(47)
                if P0: seen()
            if n >= PUBN and n < 14:
                for _ in range(-(-len(wl) // (14 - n))): wl.pop(0)()
            if n == self.o.get("p1", 12): tc1 = self.poll_issue(VP, VPA, "s53")
            if n == 14 and P0: early(0, NCX - 2, 1)
        assert not wl
        I(f"s_add_u32 s43, s51, {HB}"); I(f"v_add_u32 v{T+2}, s43, v{VL16}")
        self.barrier()
        for i in range(8):
            I(f"ds_write_b128 v{T+2}, {v(ACC+4*i,4)} offset:{1024*i}"); lg.issue()
        I(f"s_lshl_b32 s43, s{SC}, 15"); I(f"s_lshl_b32 s44, s{SJ}, 11"); I("s_add_u32 s43, s43, s44"); I(f"s_add_u32 s43, s43, {HB}"); I(f"v_add_u32 v{T+2}, s43, v{VL16}")
        I(f"s_and_b32 s43, s{SJ}, 1"); I("s_mul_i32 s44, s43, 3072"); I(f"s_lshr_b32 s45, s{SJ}, 1"); I("s_lshl_b32 s41, s45, 9")
        I("s_add_u32 s44, s44, s41"); I(f"s_add_u32 s44, s44, s{SB}"); I("s_add_u32 s44, s44, 520")
        I(f"v_lshl_add_u32 v{T+3}, v{T}, 4, s44"); I(f"v_lshlrev_b32 v{VA}, 3, v{T+1}"); I(f"v_sub_u32 v{T+3}, v{T+3}, v{VA}")
        I(f"v_lshlrev_b32 v{VB}, 6, v{T}"); I(f"v_lshl_add_u32 v{VB}, v{T+1}, 4, v{VB}")
        I("s_lshl_b32 s45, s45, 11"); I("s_lshl_b32 s43, s43, 5"); I("s_add_u32 s45, s45, s43"); I(f"s_lshl_b32 s43, s{SC}, 12"); I("s_add_u32 s45, s45, s43")
        I(f"s_add_u32 s45, s45, {YB}"); I(f"v_add_u32 v{VB}, s45, v{VB}")
        I("s_lshl_b32 s43, s55, 16"); I("s_and_b32 s44, s55, 0xffff0000"); I(f"s_cmp_eq_u32 s{SC}, 0"); I("s_cselect_b32 s55, s43, s44")
        lg.wait(lg.issued); self.barrier()
        self.stamp(12)
        for p in range(4):
            for gq in range(2):
                I(f"ds_read_b128 {v(RD_+8*p+4*gq,4)}, v{T+2} offset:{8192*p+1024*gq}"); lg.issue()
        for gq in range(2):
            I(f"ds_read_b64 {v(ACC+2*gq,2)}, v{T+3} offset:{1536*gq}"); lg.issue()
        lk = a.label("SK"); I("s_cmp_lg_u32 s50, 0"); I(f"s_cbranch_scc1 {lk}")
        sv = self.save(); vm.wait(tc1); seen(); self.restore(sv); early(0, NCX - 2, 1)
        a.L(lk)
        early(NCX - 2, NCX, 2)
        lg.wait(lg.issued)
        for i in range(0, 8, 2):
            I(f"v_pk_add_f32 {v(RD_+i,2)}, {v(RD_+i,2)}, {v(RD_+8+i,2)}"); I(f"v_pk_add_f32 {v(RD_+16+i,2)}, {v(RD_+16+i,2)}, {v(RD_+24+i,2)}")
        for i in range(0, 8, 2): I(f"v_pk_add_f32 {v(RD_+i,2)}, {v(RD_+i,2)}, {v(RD_+16+i,2)}")
        for gq in range(2):
            for r in range(4):
                srcr = ACC + 2*gq + (1 - (r >> 1))
                I(f"v_lshlrev_b32 v{ACC+8}, 16, v{srcr}" if r & 1 else f"v_and_b32 v{ACC+8}, 0xffff0000, v{srcr}")
                I(f"v_fma_f32 v{RD_+4*gq+r}, v{ACC+8}, s55, v{RD_+4*gq+r}")
        for i in range(4): I(f"v_cvt_pk_bf16_f32 v{ACC+12+i}, v{RD_+2*i}, v{RD_+2*i+1}")
        I(f"v_permlane32_swap_b32 v{ACC+12}, v{ACC+14}"); I(f"v_permlane32_swap_b32 v{ACC+13}, v{ACC+15}")
        I(f"ds_write_b128 v{VB}, {v(ACC+12,4)}"); lg.issue()
        lg.wait(lg.issued); self.barrier()
        ly = a.label("NY")
        I(f"s_cmp_lg_u32 s{SW}, 0"); I(f"s_cbranch_scc1 {ly}")
        I(f"v_add_u32 v{T}, {YB}, v{VL16}")
        for i in range(8): I(f"ds_read_b128 {v(RD_+4*i,4)}, v{T} offset:{1024*i}")
        I(f"s_lshl_b32 s44, s{SF}, 13"); I(f"s_add_u32 s44, s44, {YT_OFF}"); I("s_add_u32 s45, s44, 4096")
        I("s_waitcnt lgkmcnt(0)")
        for i in range(8): I(f"buffer_store_dwordx4 {v(RD_+4*i,4)}, v{VL16}, s[{RWS}:{RWS+3}], s{44+(i>>2)} offen offset:{1024*(i&3)}{self.st}")
        a.L(ly)
        ll = a.label("NL")
        I("s_cmp_eq_u32 s50, 3"); I(f"s_cbranch_scc1 {ll}")
        self.poll_check(VP, VPA, "s53", 1)
        for i in range(NCX): cload(i)
        a.L(ll)
        self.stamp(6)
        YT = self.XB
        lrd = {}; ypub = False; ymark = vm.issued; free = []; fresh = []; nw = NW; nw2 = NW + NL; nc = NCX
        for i in range(32):
            if i % 4 == 0 and self.o.get("ostamp"): self.stamp(17 + i // 4)
            if i == 14:
                I(f"s_lshl_b32 s53, s57, 7"); I(f"s_lshl_b32 s42, s{SW}, 4"); I("s_add_u32 s53, s53, s42"); I(f"s_add_u32 s53, s53, {FY_OFF}")
                tf = self.poll_issue(VP, VPA, "s53")
            if i == 24:
                vm.wait(tf); self.poll_check(VP, VPA, "s53", 1)
                I(f"v_lshrrev_b32 v{T}, 3, v0"); I(f"v_and_b32 v{T+1}, 7, v0"); I(f"v_lshlrev_b32 v{T+1}, 4, v{T+1}")
                I(f"v_lshl_add_u32 v{T}, v{T}, 12, v{T+1}")
                I(f"s_add_u32 m0, s{SWK}, {YT}")
                I(f"s_lshl_b32 s44, s57, 18"); I(f"s_lshl_b32 s45, s{SW}, 15"); I("s_add_u32 s44, s44, s45")
                I(f"s_lshl_b32 s45, s56, 7"); I("s_add_u32 s44, s44, s45"); I(f"s_add_u32 s44, s44, {YT_OFF}")
                I(f"buffer_load_dwordx4 v{T}, s[{RWS}:{RWS+3}], s44 offen{self.ld} lds"); vm.issue()
                I(f"v_and_b32 v{T+1}, 15, v0"); I(f"s_lshr_b32 s48, s{SW}, 1"); I("s_lshl_b32 s48, s48, 4")
                I(f"s_lshl_b32 s45, s56, 6"); I("s_add_u32 s45, s45, s48"); I(f"v_add_u32 v{T+1}, s45, v{T+1}")
                I(f"v_lshlrev_b32 v{T+2}, 2, v{T+1}"); I(f"s_mov_b32 s45, {G_OFF}")
                I(f"buffer_load_dword v{GR}, v{T+2}, s[{RWS}:{RWS+3}], s45 offen{self.ld}"); vm.issue()
                I(f"v_lshrrev_b32 v{T+2}, 4, v0"); I(f"v_lshlrev_b32 v{T+2}, 4, v{T+2}"); I(f"v_lshl_add_u32 v{VO}, v{T+1}, 10, v{T+2}")
                I(f"s_and_b32 s49, s{SW}, 1"); I("s_lshl_b32 s49, s49, 6"); I(f"s_lshl_b32 s45, s57, 7"); I("s_add_u32 s49, s49, s45")
                I(f"buffer_load_dwordx4 {v(XR,4)}, v{VO}, s[{RD}:{RD+3}], s49 offen"); vm.issue()
            vm.wait(max(ctok[i], wtok.get(i, 0)))
            if i in lrd: lg.wait(lrd[i])
            if not ypub and vm.done > ymark:
                ypub = True
                I(f"s_lshl_b32 s44, s{SF}, 2"); I(f"s_add_u32 s44, s44, {FY_OFF}"); self.publish(44, 3)
            for mt in range(2):
                for st in range(2):
                    d = v(OACC + 16*(2*mt+st), 16)
                    I(f"{MFMA} {d}, {v(wslot[i]+4*mt,4)}, {v(cslot[i]+4*st,4)}, {'0' if i == 0 else d}")
            lagged, fresh = fresh, [wslot[i], cslot[i]]
            free += fresh
            while free:
                if nw < NW + NL and nw - i <= 3:
                    j = nw - NW; assert vm.done >= ltok[j]
                    r = free.pop(0); wslot[nw] = r
                    I("s_nop 3")
                    for mt in range(2):
                        I(f"ds_read_b128 {v(r+4*mt,4)}, v{VLW} offset:{j*2048+mt*1024}"); lrd[nw] = lg.issue()
                    nw += 1
                elif nc < 32 and (nc <= nw2 or nw2 >= 32):
                    cslot[nc] = free.pop(0); cload(nc); nc += 1
                elif nw2 < 32:
                    wslot[nw2] = free.pop(0); self.wload(nw2); nw2 += 1
                else: break
        self.stamp(7)
        I(f"v_and_b32 v{T}, 31, v0"); I(f"v_lshrrev_b32 v{T+1}, 5, v0"); I(f"v_and_b32 v{T+2}, 15, v0")
        I(f"v_lshlrev_b32 v{T+1}, 1, v{T+1}")
        I(f"v_xor_b32 v{T+1}, v{T+1}, v{T+2}"); I(f"v_lshlrev_b32 v{T+1}, 4, v{T+1}"); I(f"v_lshl_add_u32 v{T}, v{T}, 8, v{T+1}")
        I(f"v_add_u32 v{T}, s51, v{T}")
        for mt in range(2):
            for gq in range(4):
                I(f"v_xor_b32 v{T+1}, {(4*gq+mt)*16}, v{T}"); I(f"v_add_u32 v{T+3}, 0x10000, v{T+1}")
                for st in range(2):
                    I(f"ds_write_b128 v{T+1+2*st}, {v(OACC+16*(2*mt+st)+4*gq,4)}"); lg.issue()
        I(f"v_lshrrev_b32 v{T}, 4, v0"); I(f"s_and_b32 s41, s{SW}, 1"); I("s_lshl_b32 s42, s41, 3")
        I(f"v_lshl_add_u32 v{T+1}, v{T}, 1, s42"); I(f"v_xor_b32 v{T+1}, v{T+1}, v{T+2}"); I(f"v_lshlrev_b32 v{T+1}, 4, v{T+1}")
        I("s_and_b32 s43, s48, 16"); I(f"v_add_u32 v{T+3}, s43, v{T+2}"); I(f"v_lshl_add_u32 v24, v{T+3}, 8, v{T+1}")
        I("s_lshr_b32 s43, s48, 5"); I("s_lshl_b32 s43, s43, 16"); I("v_add_u32 v24, s43, v24"); I("v_xor_b32 v25, 16, v24")
        I("s_lshl_b32 s42, s41, 5"); I(f"v_lshl_add_u32 v{T}, v{T}, 3, s42"); I(f"v_bfe_u32 v{T+1}, v0, 2, 2")
        I(f"v_add_u32 v{T}, v{T}, v{T+1}"); I(f"v_lshlrev_b32 v{T}, 7, v{T}"); I(f"v_and_b32 v{T+1}, 3, v0")
        I(f"v_lshl_add_u32 v{T}, v{T+1}, 3, v{T}"); I("s_lshl_b32 s42, s48, 1"); I(f"s_add_u32 s42, s42, {YT}"); I(f"v_add_u32 v28, s42, v{T}")
        self.sync_all()
        CX = 128; tk = []
        I(f"ds_read_b64_tr_b16 {v(100,2)}, v28"); lg.issue()
        I(f"ds_read_b64_tr_b16 {v(102,2)}, v28 offset:512"); ty2 = lg.issue()
        for p in range(8):
            for hh in range(2):
                I(f"ds_read_b128 {v(CX+8*p+4*hh,4)}, v{24+hh} offset:{8192*p}"); lg.issue()
            tk.append(lg.issued)
            if p == 5:
                lg.wait(ty2)
                for e in range(8):
                    if e & 1: I(f"v_and_b32 v104, 0xffff0000, v{XR+(e>>1)}"); I(f"v_and_b32 v105, 0xffff0000, v{100+(e>>1)}")
                    else: I(f"v_lshlrev_b32 v104, 16, v{XR+(e>>1)}"); I(f"v_lshlrev_b32 v105, 16, v{100+(e>>1)}")
                    I(f"v_mul_f32 v{112+e}, v104, v105"); I(f"v_mul_f32 v{112+e}, v{112+e}, v{GR}")
                I(f"v_sub_f32 v{GR}, 1.0, v{GR}")
        for p in range(1, 8):
            lg.wait(tk[p])
            for e in range(0, 8, 2): I(f"v_pk_add_f32 {v(CX+e,2)}, {v(CX+e,2)}, {v(CX+8*p+e,2)}")
        for e in range(8): I(f"v_fmac_f32 v{112+e}, v{CX+4*(e&1)+(e>>1)}, v{GR}")
        for e in range(4): I(f"v_cvt_pk_bf16_f32 v{108+e}, v{112+2*e}, v{112+2*e+1}")
        I(f"buffer_store_dwordx4 {v(108,4)}, v{VO}, s[{RC}:{RC+3}], s49 offen{' sc1' if self.o.get('outsc1') else ' nt' if self.o.get('outnt') else ''}"); vm.issue()
        self.stamp(16)
        if self.o.get("echo"):
            lp = a.label("EC")
            I("s_sub_u32 s100, s100, s96"); I("s_memrealtime s[96:97]"); I("s_waitcnt lgkmcnt(0)")
            a.L(lp)
            I("s_memrealtime s[98:99]"); I("s_waitcnt lgkmcnt(0)"); I("s_sub_u32 s98, s98, s96"); I("s_cmp_lt_u32 s98, s100"); I(f"s_cbranch_scc1 {lp}")
        if self.o.get("dbgout") is not None:
            l = a.label("DB")
            I(f"s_cmp_lg_u32 s2, {self.o['dbgout']}"); I(f"s_cbranch_scc1 {l}"); I(f"s_cmp_lg_u32 s{SW}, 0"); I(f"s_cbranch_scc1 {l}")
            I("s_waitcnt vmcnt(0)")
            order = [0, 1, 2, 3, 8, 10, 11, 4, 5, 12, 6, 7, 16]
            I("v_mov_b32 v20, 0")
            for j, i in enumerate(order):
                I(f"s_mov_b32 s44, {4*i}"); I(f"v_writelane_b32 v20, s44, {j}")
            I(f"s_lshl_b32 s44, s2, 11"); I(f"s_add_u32 s44, s44, {STAMP_OFF}")
            I(f"buffer_load_dword v21, v20, s[{RWS}:{RWS+3}], s44 offen sc1"); I("s_waitcnt vmcnt(0)")
            I("v_readfirstlane_b32 s45, v21"); I("v_subrev_u32 v21, s45, v21")
            self.srd(RDBG, "dbg", 64); I("v_lshlrev_b32 v22, 2, v0")
            I(f"buffer_store_dword v21, v22, s[{RDBG}:{RDBG+3}], 0 offen")
            a.L(l)

def build(opts):
    g = G(opts); k = NAME + "_kernel"
    g.begin(k); g.proj(); g.attn(); g.tailp(); g.end(); g.attn_rare(); g.a.L("CODE_END"); g.a.I("s_endpgm")
    n = g.a.fix_hazards()
    txt = "; @launch grid=(256,1,1) block=(512,1,1) lds=163840\n"
    txt += '.amdgcn_target "amdgcn-amd-amdhsa--gfx950"\n.text\n' + g.a.text()
    txt += f""".section .rodata,"a"
.p2align 6
.amdhsa_kernel {k}
  .amdhsa_next_free_vgpr 256
  .amdhsa_next_free_sgpr 102
  .amdhsa_accum_offset 256
  .amdhsa_group_segment_fixed_size 0
  .amdhsa_kernarg_size 128
  .amdhsa_user_sgpr_count 2
  .amdhsa_user_sgpr_kernarg_segment_ptr 1
  .amdhsa_system_sgpr_workgroup_id_x 1
.end_amdhsa_kernel
"""
    print(f"instructions {sum(1 for it in g.a.items if it[0] == 'i')}, nops inserted {n}", file=sys.stderr)
    return txt

if __name__ == "__main__":
    opts = {}
    for x in sys.argv[2:]:
        if "=" in x: k_, v_ = x.split("="); opts[k_] = int(v_)
        else: opts[x] = True
    open(sys.argv[1], "w").write(build(opts))
```

```python
import sys, math, struct
sys.path.insert(0, "gen")
from asmlib import *

NAME = "gated_mix__ssm_conv_h3__compressed_kv_cla__prompt"
MB = 1 << 20
KV_OFF, Q_OFF, CTX_OFF, KVT_OFF, YT_OFF, G_OFF = 0, 32*MB, 48*MB, 64*MB, 66*MB, 68*MB
WOT_OFF = 32*MB
FLG_OFF = 68*MB + 65536
FK_OFF, FY_OFF, FC_OFF = FLG_OFF, FLG_OFF + 4096, FLG_OFF + 8192
STAMP_OFF = 69*MB
WS_SIZE = 70*MB
P = dict(q=64, k=66, v=68, shift=70, ssmk=72, ssmD=74, bx=76, ckv=78, wq=80, wuk=82, wuv=84, wo=86, gate=88, out=90, dbg=92, ws=94)
SW, SHEAD, SIDX, SWK, SF = 3, 4, 5, 6, 7
RA, RB, RC, RWS, RD, RE, RT, RDBG = 8, 12, 16, 20, 24, 28, 56, 60
MFMA = "v_mfma_f32_32x32x16_bf16"
LOG2E = 1.4426950408889634
F_KV, F_CA, F_CB, F_Y = 1, 2, 4, 8
def f2u(x): return "0x%08x" % struct.unpack("<I", struct.pack("<f", x))[0]
def rep4(b): return b * 0x01010101

class G:
    def __init__(self, opts):
        self.a = Asm(); self.o = opts
        self.vm = Cnt(self.a, "vmcnt", 63); self.lg = Cnt(self.a, "lgkmcnt", 15)
        self.st = "" if opts.get("plainst") else (" sc1 nt" if opts.get("ntst") else " sc1"); self.ld = "" if opts.get("plainld") else " sc1"
    def I(self, t): self.a.I(t)
    def srd(self, r, ptr, nbytes):
        I = self.I
        I(f"s_mov_b32 s{r}, s{P[ptr]}"); I(f"s_mov_b32 s{r+1}, s{P[ptr]+1}")
        I(f"s_mov_b32 s{r+2}, {nbytes}"); I(f"s_mov_b32 s{r+3}, 0x00020000")
    def save(self): return (self.vm.issued, self.vm.done, self.lg.issued, self.lg.done)
    def restore(self, s_): self.vm.issued, self.vm.done, self.lg.issued, self.lg.done = s_
    def stream(self, mf, fills):
        n = len(mf); slots = [[] for _ in range(n + 1)]
        for (s0, e0, cl) in fills:
            m = e0 - s0
            for j, c in enumerate(cl): slots[s0 + 1 + (j * m) // len(cl)].append(c)
        for c in slots[0]: c()
        for i in range(n):
            mf[i]()
            for c in slots[i+1]: c()
    def stamp(self, i, dyn=None):
        if self.o.get("echo") == i:
            self.I("s_memrealtime s[100:101]"); self.I("s_waitcnt lgkmcnt(0)")
        if not self.o.get("stamp"): return
        I = self.I
        I("s_memrealtime s[96:97]"); I("s_memtime s[100:101]")
        I("s_lshl_b32 s98, s2, 3"); I(f"s_add_u32 s98, s98, s{SW}"); I("s_lshl_b32 s98, s98, 8")
        I(f"s_add_u32 s98, s98, {STAMP_OFF + 4*i}")
        if dyn is not None:
            I(f"s_lshl_b32 s99, s{dyn}, 4"); I("s_add_u32 s98, s98, s99")
        I("s_waitcnt lgkmcnt(0)")
        I("v_mov_b32 v2, s96"); I("v_mov_b32 v3, 0")
        I(f"buffer_store_dword v2, v3, s[{RWS}:{RWS+3}], s98 offen")
        I("v_mov_b32 v2, s100")
        I(f"buffer_store_dword v2, v3, s[{RWS}:{RWS+3}], s98 offen offset:128")
    OOB = 0x40000000
    def publish(self, soff, val=1, srd=RWS, byte=False, idx=None):
        I = self.I
        self.oob_sel()
        if idx is not None: I(f"s_cmp_eq_u32 s{SIDX}, {idx}"); I(f"s_cselect_b32 s99, s99, {self.OOB}")
        I(f"v_mov_b32 v2, {val}"); I("v_mov_b32 v3, s99")
        I(f"buffer_store_{'byte' if byte else 'dword'} v2, v3, s[{srd}:{srd+3}], s{soff} offen sc1"); self.vm.issue()
    def oob_sel(self):
        self.I(f"s_cmp_eq_u32 s{SW}, 0"); self.I(f"s_cselect_b32 s99, 0, {self.OOB}")
    def poll_issue(self, vd, vaddr, soff, srd=RWS):
        self.I(f"buffer_load_dword v{vd}, v{vaddr}, s[{srd}:{srd+3}], {soff} offen sc1"); return self.vm.issue()
    def poll_check(self, vd, vaddr, soff, want, srd=RWS):
        a = self.a; I = self.I
        l = a.label("PCK"); lp = a.label("POLL")
        I(f"s_mov_b32 s98, {want}"); I("s_mov_b32 s99, 20000")
        a.L(lp)
        I(f"v_and_b32 v{vd}, s98, v{vd}"); I(f"v_cmp_ne_u32 vcc, s98, v{vd}"); I(f"s_cbranch_vccz {l}")
        I("s_sleep 2")
        I(f"buffer_load_dword v{vd}, v{vaddr}, s[{srd}:{srd+3}], {soff} offen sc1")
        I("s_sub_u32 s99, s99, 1"); I("s_cmp_lg_u32 s99, 0"); I("s_waitcnt vmcnt(0)"); I(f"s_cbranch_scc1 {lp}")
        a.L(l)
    def barrier(self): self.I("s_barrier")
    def sync_all(self):
        self.I("s_waitcnt vmcnt(0) lgkmcnt(0)"); self.vm.mark_all_done(); self.lg.mark_all_done(); self.barrier()

    def begin(self, kname):
        a = self.a; I = self.I
        a.T(f".globl {kname}\n.p2align 8\n.type {kname},@function"); a.L(kname)
        self.endl = a.label("END")
        if self.o.get("stamp"): I("s_memrealtime s[30:31]")
        if self.o.get("echo"): I("s_memrealtime s[96:97]")
        I("s_load_dwordx16 s[64:79], s[0:1], 0"); I("s_load_dwordx16 s[80:95], s[0:1], 64")
        I("s_cmp_ge_u32 s2, 256"); I(f"s_cbranch_scc1 {self.endl}")
        I("v_lshrrev_b32 v1, 6, v0"); I("v_and_b32 v0, 63, v0"); I(f"v_readfirstlane_b32 s{SW}, v1")
        I("s_and_b32 s7, s2, 7"); I("s_lshl_b32 s7, s7, 2")
        I(f"s_lshr_b32 s{SIDX}, s2, 3"); I(f"s_lshr_b32 s{SHEAD}, s{SIDX}, 3"); I(f"s_add_u32 s{SHEAD}, s{SHEAD}, s7")
        I(f"s_and_b32 s{SIDX}, s{SIDX}, 7"); I(f"s_lshl_b32 s{SWK}, s{SW}, 10")
        I(f"s_lshl_b32 s{SF}, s{SHEAD}, 3"); I(f"s_add_u32 s{SF}, s{SF}, s{SIDX}")
    def end(self):
        self.a.L(self.endl); self.I("s_endpgm")

    def proj(self):
        a = self.a; I = self.I; vm = self.vm; lg = self.lg
        PREP = 114688; QA_LDS = 65536
        ACCS = [64, 128]
        FX = [16, 32]; FW = [24, 40]
        VXA = 4; VWA = 8; VOX, VOW = 10, 11; VST = 12; VXH = 48
        T = 192
        I("v_lshrrev_b32 v13, 3, v0"); I(f"s_lshl_b32 s40, s{SW}, 3"); I("v_add_u32 v13, s40, v13"); I("v_lshlrev_b32 v13, 10, v13")
        I("v_lshrrev_b32 v14, 4, v0"); I(f"s_and_b32 s40, s{SW}, 1"); I("s_lshl_b32 s40, s40, 2"); I("v_add_u32 v15, s40, v14")
        I("v_and_b32 v3, 7, v0"); I("v_xor_b32 v15, v15, v3"); I(f"v_lshl_add_u32 v{VOX}, v15, 4, v13")
        I(f"s_lshl_b32 s40, s{SW}, 2"); I("v_add_u32 v13, s40, v14"); I("v_lshlrev_b32 v13, 13, v13")
        I("v_lshlrev_b32 v15, 2, v14"); I("v_and_b32 v3, 15, v0"); I("v_xor_b32 v15, v15, v3")
        I("v_lshl_add_u32 v13, v15, 4, v13"); I(f"s_lshl_b32 s40, s{SHEAD}, 8"); I(f"v_add_u32 v{VOW}, s40, v13")
        I(f"v_lshlrev_b32 v{VST}, 4, v0")
        I(f"s_lshl_b32 s44, s{SIDX}, 18")
        for i in range(1, 4): I(f"s_add_u32 s{44+i}, s44, {65536*i}")
        I("s_waitcnt lgkmcnt(0)")
        if self.o.get("stamp"): I("s_memrealtime s[28:29]")
        self.srd(RA, "ckv", 2*MB); self.srd(RB, "wuk", 4*MB)
        def xbase(t): return (32768, 131072, 0)[t % 3]
        def wbase(t): return 65536 + (t % 3)*16384
        def dma_list(t):
            L = []
            if t > 23: return L
            ph, tt = t >> 3, t & 7
            for i in range(2):
                def f(i=i):
                    I(f"s_add_u32 m0, s{SWK}, {wbase(t) + i*8192}"); I(f"s_mov_b32 s41, {tt*524288 + i*262144}")
                    r = (RB, RC, RE)[ph]
                    I(f"buffer_load_dwordx4 v{VOW}, s[{r}:{r+3}], s41 offen lds"); vm.issue()
                L.append(f)
            for i in range(4):
                def f(i=i):
                    I(f"s_add_u32 m0, s{SWK}, {xbase(t) + i*8192}"); I(f"s_add_u32 s41, s{(48 if ph == 2 else 44)+i}, {tt*128}")
                    r = RD if ph == 2 else RA
                    I(f"buffer_load_dwordx4 v{VOX}, s[{r}:{r+3}], s41 offen lds"); vm.issue()
                L.append(f)
            return L
        dtok = {}
        for f in dma_list(0): f()
        dtok[0] = vm.issued
        self.srd(RWS, "ws", WS_SIZE); self.srd(RDBG, "dbg", 256); self.srd(RC, "wuv", 4*MB)
        self.stamp(31)
        if self.o.get("stamp"):
            I("v_mov_b32 v2, s30"); I("s_sub_u32 s98, s98, 124"); I(f"buffer_store_dword v2, v3, s[{RWS}:{RWS+3}], s98 offen")
            I("v_mov_b32 v2, s28"); I(f"buffer_store_dword v2, v3, s[{RWS}:{RWS+3}], s98 offen offset:120")
        I(f"s_lshl_b32 s48, s{SIDX}, 17"); I("s_add_u32 s49, s48, 65536")
        I(f"s_sub_u32 s50, 15, s{SIDX}"); I("s_lshl_b32 s50, s50, 17"); I("s_add_u32 s51, s50, 65536")
        I(f"s_and_b32 s42, s{SW}, 3"); I("s_lshl_b32 s42, s42, 6"); I(f"s_lshr_b32 s43, s{SW}, 2"); I("s_lshl_b32 s43, s43, 1")
        I("v_and_b32 v13, 31, v0"); I("v_add_u32 v13, s42, v13")
        I("v_lshrrev_b32 v14, 1, v13"); I("v_and_b32 v14, 7, v14"); I("v_lshrrev_b32 v15, 5, v0")
        I("v_xor_b32 v14, v14, v15"); I("v_lshlrev_b32 v14, 4, v14"); I(f"v_lshl_add_u32 v{VXA}, v13, 7, v14")
        for k in range(1, 4): I(f"v_xor_b32 v{VXA+k}, {k<<5}, v{VXA}")
        for k in range(4): I(f"v_add_u32 v{VXH+k}, 0x20000, v{VXA+k}")
        I("v_bfe_u32 v13, v0, 2, 2"); I("v_lshl_add_u32 v14, v15, 3, v13"); I("v_lshlrev_b32 v14, 8, v14")
        I("v_bfe_u32 v15, v0, 4, 1"); I("v_lshl_add_u32 v14, v15, 5, v14")
        I("v_and_b32 v15, 3, v0"); I("v_lshl_add_u32 v14, v15, 3, v14"); I("v_add_u32 v14, 0x10000, v14")
        I("v_xor_b32 v13, s43, v13"); I(f"v_lshl_add_u32 v{VWA}, v13, 6, v14"); I(f"v_xor_b32 v{VWA+1}, 64, v{VWA}")
        I(f"s_lshl_b32 s54, s{SHEAD}, 4"); I(f"s_lshl_b32 s55, s{SIDX}, 1"); I("s_add_u32 s54, s54, s55")
        I(f"s_bfe_u32 s55, s{SW}, 0x10001"); I("s_add_u32 s54, s54, s55"); I("s_lshl_b32 s54, s54, 16")
        I(f"s_and_b32 s55, s{SW}, 1"); I("s_lshl_b32 s55, s55, 14"); I("s_add_u32 s54, s54, s55")
        I("s_lshl_b32 s55, s43, 10"); I("s_add_u32 s52, s54, s55"); I("s_add_u32 s52, s52, 0x8000")
        I("s_lshl_b32 s55, s43, 11"); I("s_add_u32 s54, s54, s55")

        if self.o.get("hotst"):
            I(f"s_and_b32 s54, s54, {self.o['hotst']*MB-1}"); I(f"s_and_b32 s52, s52, {self.o['hotst']*MB-1}")
        XG = T; GW = T + 4; hl = {}
        def gate_loads():
            L = []
            def E(t): L.append(lambda: I(t))
            def V(t):
                def f(): I(t); hl["t"] = vm.issue()
                L.append(f)
            E(f"s_lshl_b32 s40, s{SHEAD}, 7"); E(f"s_lshl_b32 s39, s{SIDX}, 2"); E("s_add_u32 s40, s40, s39"); E(f"s_add_u32 s40, s40, {FK_OFF}")
            E(f"v_mov_b32 v13, s40")
            E(f"s_lshr_b32 s39, s{SHEAD}, 2"); E("s_lshl_b32 s39, s39, 7"); E(f"s_and_b32 s40, s{SHEAD}, 3"); E("s_lshl_b32 s40, s40, 2"); E("s_add_u32 s39, s39, s40")
            E(f"s_lshl_b32 s40, s{SIDX}, 10"); E("s_add_u32 s40, s40, s39"); E(f"s_add_u32 s40, s40, {FC_OFF}")
            E("v_writelane_b32 v13, s40, 1")
            E(f"s_sub_u32 s40, 15, s{SIDX}"); E("s_lshl_b32 s40, s40, 10"); E("s_add_u32 s40, s40, s39"); E(f"s_add_u32 s40, s40, {FC_OFF}")
            E("v_writelane_b32 v13, s40, 2")
            E(f"s_lshl_b32 s40, s{SF}, 2"); E(f"s_add_u32 s40, s40, {FY_OFF}"); E("v_writelane_b32 v13, s40, 3"); E("v_mov_b32 v14, 0")
            def oo(): self.oob_sel(); I("v_add_u32 v13, s99, v13")
            L.append(oo)
            V(f"buffer_store_dword v14, v13, s[{RWS}:{RWS+3}], 0 offen sc1")
            E("s_lshl_b32 s37, s2, 3"); E(f"s_add_u32 s37, s37, s{SW}"); E("s_lshl_b32 s38, s37, 10")
            L.append(lambda: self.srd(RD, "q", 2*MB)); L.append(lambda: self.srd(RE, "wq", 4*MB)); L.append(lambda: self.srd(RT, "gate", 1024))
            V(f"buffer_load_dwordx4 {v(XG,4)}, v{VST}, s[{RD}:{RD+3}], s38 offen")
            V(f"buffer_load_dwordx4 {v(GW,4)}, v{VST}, s[{RT}:{RT+3}], 0 offen")
            return L
        def gate_ops():
            L = []; E = lambda t: L.append(lambda: I(t)); Z = T + 8
            L.append(lambda: vm.wait(hl["t"]))
            E(f"v_dot2_f32_bf16 v{Z}, v{XG}, v{GW}, 0")
            for i in range(1, 4): E(f"v_dot2_f32_bf16 v{Z}, v{XG+i}, v{GW+i}, v{Z}")
            for m in ("quad_perm:[1,0,3,2] row_mask:0xf", "quad_perm:[2,3,0,1] row_mask:0xf", "row_half_mirror row_mask:0xf", "row_mirror row_mask:0xf",
                      "row_bcast:15 row_mask:0xa", "row_bcast:31 row_mask:0xc"):
                E(f"v_add_f32_dpp v{Z}, v{Z}, v{Z} {m} bank_mask:0xf")
            E(f"v_readlane_b32 s36, v{Z}, 63"); E(f"v_mov_b32 v{Z+1}, {f2u(-LOG2E)}"); E(f"v_mul_f32 v{Z}, s36, v{Z+1}")
            E(f"v_exp_f32 v{Z}, v{Z}"); E(f"v_add_f32 v{Z}, 1.0, v{Z}"); E(f"v_rcp_f32 v{Z}, v{Z}")
            E("s_lshl_b32 s38, s37, 2"); E(f"s_add_u32 s38, s38, {G_OFF}"); E(f"v_mov_b32 v{Z+1}, 0")
            def gs():
                I(f"buffer_store_dword v{Z}, v{Z+1}, s[{RWS}:{RWS+3}], s38 offen{self.st}"); vm.issue()
            L.append(gs)
            return L
        def reads(t, k):
            st = k & 1; toks = {}
            xb = xbase(t); va = VXA if xb < 65536 else VXH
            def rx(mt):
                I(f"ds_read_b128 {v(FX[st]+4*mt,4)}, v{va+k} offset:{(xb & 65535)+mt*4096}"); toks[("x",mt)] = lg.issue()
            def rw(dt, h):
                I(f"ds_read_b64_tr_b16 {v(FW[st]+4*dt+2*h,2)}, v{VWA+dt} offset:{wbase(t)-65536+k*4096+h*1024}"); toks[("w",dt)] = lg.issue()
            return [lambda: rx(0), lambda: rw(0,0), lambda: rw(0,1), lambda: rw(1,0), lambda: rw(1,1), lambda: rx(1)], toks
        def mfs(t, k, toks):
            st = k & 1; L = []; ph = t >> 3; acc = ACCS[ph & 1]; first = (t & 7) == 0 and k == 0
            for mt in range(2):
                for dt in range(2):
                    def f(mt=mt, dt=dt):
                        lg.wait(max(toks[("x",mt)], toks[("w",dt)]))
                        d = v(acc + 16*(2*mt+dt), 16); X = v(FX[st]+4*mt,4); W = v(FW[st]+4*dt,4)
                        c = "0" if first else d
                        I(f"{MFMA} {d}, {X}, {W}, {c}" if ph == 1 else f"{MFMA} {d}, {W}, {X}, {c}")
                    L.append(f)
            return L
        def kv_out(ph):
            acc = ACCS[ph & 1]; out = []
            for tile in range(4):
                rt, dt = tile >> 1, tile & 1; b = acc + 16*tile
                for half in range(2):
                    pk = [lambda i=i, b=b: I(f"v_cvt_pk_bf16_f32 v{b+i}, v{b+2*i}, v{b+2*i+1}") for i in range(4*half, 4*half+4)]
                    if ph == 0: pk = [lambda i=i, b=b: I(f"v_mul_f32 v{b+i}, {f2u(LOG2E / math.sqrt(128.0))}, v{b+i}") for i in range(8*half, 8*half+8)] + pk
                    off = rt*8192 + (dt*2048 + half*1024 if ph == 0 else half*4096 + dt*1024)
                    def st(b=b, half=half, off=off):
                        if self.o.get("nost"): return
                        I(f"s_add_u32 s41, s{(54, 52)[ph]}, {off}")
                        I(f"buffer_store_dwordx4 {v(b+4*half,4)}, v{VST}, s[{RWS}:{RWS+3}], s41 offen{self.st}"); vm.issue()
                    out.append(pk + [st])
            return out
        side = {}; late = {}
        def spread(ops, t0, t1):
            sl = [(t, k) for t in range(t0, t1) for k in range(3)]
            n = len(ops)
            for j, key in enumerate(sl): side.setdefault(key, []).extend(ops[n*j//len(sl): n*(j+1)//len(sl)])
        KS = self.o.get("ks", 8); PG = self.o.get("pg", 0)
        spread(gate_loads(), PG, PG + 1); spread(gate_ops(), PG + 3, PG + 5)
        def wtouch(r, half, wv):
            def f():
                I(f"s_cmp_eq_u32 s{SW}, {wv}"); I(f"s_cselect_b32 s99, 0, {self.OOB}")
                I(f"s_lshl_b32 s40, s{SIDX}, 19"); I(f"s_lshl_b32 s39, s{SHEAD}, 8"); I("s_add_u32 s40, s40, s39"); I(f"s_add_u32 s40, s40, {half*32*8192}")
                I("v_lshrrev_b32 v3, 1, v0"); I("v_lshlrev_b32 v3, 13, v3"); I("v_and_b32 v2, 1, v0"); I("v_lshl_add_u32 v3, v2, 7, v3"); I("v_add_u32 v3, s99, v3")
                I(f"buffer_load_dword v1, v3, s[{r}:{r+3}], s40 offen"); vm.issue()
            return f
        t0 = self.o.get("wt", 1); t1 = self.o.get("wt2", 4)
        for j, (r, half) in enumerate(((RC, 0), (RC, 1), (RE, 0), (RE, 1)) if not self.o.get("nowt") else ()): side.setdefault(((t0 + j) if j < 2 else (t1 + j - 2), 2), []).append(wtouch(r, half, j))
        def xtouch(lo, hi):
            def f():
                I(f"s_sub_u32 s40, s{SW}, {lo}"); I(f"s_cmp_lt_u32 s40, {hi-lo}"); I(f"s_cselect_b32 s99, 0, {self.OOB}"); I("v_lshl_add_u32 v3, v0, 7, s99")
                I(f"s_bitcmp1_b32 s{SHEAD}, 1"); I("s_cselect_b32 s40, s50, s48"); I(f"s_and_b32 s41, s{SHEAD}, 1"); I("s_lshl_b32 s41, s41, 16"); I("s_add_u32 s40, s40, s41")
                I(f"s_lshl_b32 s41, s{SW}, 13"); I("s_add_u32 s40, s40, s41")
                I(f"buffer_load_dword v1, v3, s[{RD}:{RD+3}], s40 offen"); vm.issue()
            return f
        if self.o.get("xt") is not None:
            xt = self.o["xt"]; xn = self.o.get("xn", 4)
            for j in range(xn): side.setdefault((xt + j, 1), []).append(xtouch(8*j//xn, 8*(j+1)//xn))
        VS = self.o.get("vstages", 5)
        for ph, t0, t1 in ((0, KS, 16), (1, 16, 16 + VS)):
            pieces = kv_out(ph); sl = [(t, k) for t in range(t0, t1) for k in range(3)]
            for j, pc in enumerate(pieces):
                tt = t0 + (j * (t1 - t0)) // 8
                hh = len(pc) - 5
                side.setdefault((tt, 0), []).extend(pc[:hh]); side.setdefault((tt, 1), []).extend(pc[hh:-1]); late.setdefault(tt, []).append(pc[-1])
        QE = []; EQ = lambda t: QE.append(lambda: I(t))
        EQ(f"s_and_b32 s55, s{SW}, 2"); EQ("s_lshl_b32 s55, s55, 15"); EQ(f"s_add_u32 s55, s55, {QA_LDS}")
        EQ(f"s_and_b32 s54, s{SW}, 1"); EQ("s_lshl_b32 s54, s54, 14"); EQ("s_add_u32 s55, s55, s54")
        EQ("s_lshl_b32 s54, s43, 11"); EQ("s_add_u32 s55, s55, s54"); EQ(f"v_add_u32 v14, s55, v{VST}"); EQ("v_mov_b32 v54, v13")
        spread(QE, 23, 24)
        spread([lambda r=r: I(f"v_mov_b64 {v(192+2*r,2)}, 0") for r in range(32)], 22, 24)
        def fkoff():
            I(f"s_lshl_b32 s40, s{SHEAD}, 7"); I(f"s_lshl_b32 s41, s{SIDX}, 2"); I("s_add_u32 s40, s40, s41"); I(f"s_add_u32 s40, s40, {FK_OFF}")
        def w0only(fn):
            l = a.label("NP"); I(f"s_cmp_lg_u32 s{SW}, 0"); I(f"s_cbranch_scc1 {l}"); fn(); a.L(l)

        def ctouch():
            I(f"s_cmp_eq_u32 s{SW}, 0"); I(f"s_cselect_b32 s99, 0, {self.OOB}"); I("v_lshl_add_u32 v3, v0, 7, s99"); I("s_lshl_b32 s40, s2, 13")
            I(f"buffer_load_dword v1, v3, s[{RA}:{RA+3}], s40 offen"); vm.issue()
        if self.o.get("ct", 0):
            lp = a.label("PC")
            I(f"s_getpc_b64 s[{RT}:{RT+1}]"); a.L(lp)
            I(f"s_mov_b32 s{RT+2}, CODE_END-{lp}"); I(f"s_mov_b32 s{RT+3}, 0x00020000")
            I(f"s_cmp_eq_u32 s{SW}, 7"); I(f"s_cselect_b32 s99, 0, {self.OOB}"); I(f"s_and_b32 s40, s{SF}, 7"); I("s_lshl_b32 s40, s40, 13"); I("s_add_u32 s99, s99, s40")
            I("v_lshl_add_u32 v3, v0, 7, s99")
            I(f"buffer_load_dword v1, v3, s[{RT}:{RT+3}], 0 offen"); vm.issue()
        if self.o.get("sb", 1): self.barrier()
        for f in dma_list(1): f()
        dtok[1] = vm.issued
        T0 = [wtouch(RB, 0, 1), wtouch(RB, 1, 2), ctouch] if self.o.get("t0k") else []
        if self.o.get("t0pre"):
            for f in T0: f()
            T0 = []
        vm.wait(dtok[0]); self.barrier()
        self.stamp(1)
        L, toks = reads(0, 0)
        for f in L: f()
        for f in T0: f()
        mark = {}; TZ = PG + 2
        pend = dma_list(2)
        for t in range(24):
            for k in range(4):
                M = mfs(t, k, toks)
                if k < 3:
                    L, nt = reads(t, k+1)
                    D, pend = pend[:self.o.get("dper", 2)], pend[self.o.get("dper", 2):]
                    fl = [(0, 3, L)]
                    if D: fl.append((0, 4, D))
                    if side.get((t, k)): fl.append((0, 4, side[(t, k)]))
                    if k == 2 and late.get(t): fl.append((0, 4, late[t]))
                    self.stream(M, fl); toks = nt
                    if not pend and (t + 2) not in dtok: dtok[t+2] = vm.issued
                    if k == 2: mark[t] = vm.issued
                    if t == 17 and k == 0:
                        self.oob_sel(); I("v_lshl_add_u32 v13, v0, 2, s99"); td = self.poll_issue(14, 13, "0", RDBG)
                    if t == 20 and k == 0:
                        self.oob_sel(); I("v_and_b32 v13, 7, v0"); I("v_lshl_add_u32 v13, v13, 2, s99")
                        I(f"s_lshl_b32 s53, s{SHEAD}, 7"); I(f"s_add_u32 s53, s53, {FK_OFF}")
                        tp = self.poll_issue(15, 13, "s53")
                elif t < 23:
                    assert not pend
                    if t == 19: vm.wait(td); w0only(lambda: self.poll_check(14, 13, "0", rep4(1), RDBG))
                    if t == 21: vm.wait(tp); w0only(lambda: self.poll_check(15, 13, "s53", 1))
                    lg.wait(lg.issued); vm.wait(dtok[t+1])
                    if t == TZ: vm.wait(mark[TZ-2])
                    if t == 17: vm.wait(mark[15])
                    if t == 16 + VS: vm.wait(mark[15 + VS])
                    self.barrier()
                    ps = self.o.get("pstamp")
                    if ps is not None and 0 <= t - int(ps) + 1 < 13: self.stamp(17 + t - int(ps) + 1); vm.issue(2)
                    PB = []
                    if TZ <= t < TZ + 8: PB.append(lambda t=t: self.publish(SF, 1, RDBG, True, idx=t - TZ))
                    if t == 17: PB.append(lambda: (fkoff(), self.publish(40, 1)))
                    if t == 16 + VS: PB.append(lambda: (fkoff(), self.publish(40, 3)))
                    L, nt = reads(t+1, 0)
                    pend = dma_list(t+3)
                    if t == 21:
                        def k0(i):
                            I(f"s_lshl_b32 s40, s{SW}, 12"); I("s_add_u32 m0, s40, 0x8000")
                            I(f"s_lshl_b32 s41, s{SHEAD}, 20"); I("s_add_u32 s41, s41, s40")
                            I(f"buffer_load_dwordx4 v{VST}, s[{RWS}:{RWS+3}], s41 offen offset:{1024*i}{self.ld} lds"); vm.issue()
                        pend = [lambda i=i: k0(i) for i in range(4)]
                    D, pend = pend[:self.o.get("dper", 2)], pend[self.o.get("dper", 2):]
                    self.stream(M, [(0, 3, L)] + ([(1, 2, PB)] if PB else []) + ([(0, 4, D)] if D else [])); toks = nt
                    if not pend: dtok[t+3] = vm.issued
                else:
                    self.stream(M, [])
            if t == 7: self.stamp(2)
            if t == 12: self.stamp(13)
            if t == 3: self.stamp(14)
            if t == 20: self.stamp(15)
        self.stamp(3)
        def vc(): self.poll_check(55, 54, "s53", 3)
        QACC = ACCS[0]
        self.poll_issue(55, 54, "s53")
        for tile in range(4):
            rt, dt = tile >> 1, tile & 1; b = QACC + 16*tile
            for i in range(8): I(f"v_cvt_pk_bf16_f32 v{b+i}, v{b+2*i}, v{b+2*i+1}")
            for half in range(2):
                I(f"ds_write_b128 v14, {v(b+4*half,4)} offset:{rt*8192+dt*2048+half*1024}"); lg.issue()
        self.attn_setup()
        vm.wait(vm.issued); w0only(vc)
        lg.wait(lg.issued); self.barrier()

    def attn_setup(self): self.attn(True)
    def attn(self, setup=False):
        a = self.a; I = self.I; vm = self.vm; lg = self.lg; stream = self.stream
        ML = 159744; QA_LDS = 65536; QB_LDS = 131072
        O = 192; QF = 160; NM = 144; S = [112, 128]; PP = [96, 104]; RING = 64; NR = 8; E = 56; PK = 16
        VK, VV, VL16, LRUN, LU, THR, NINF, VQ, TMP, LA = 4, 5, 6, 7, 8, 9, 10, 11, 12, 14
        SR, SG, SC1, SC2, SKO, SVO, SKM, SVM, STH = 32, 33, 34, 35, 36, 37, 38, 39, 42
        SMK, SFIN, SCA, SM1 = 54, 55, 59, 58
        DC = self.o.get("dmacost", 16); WEV = self.o.get("wev", 2)
        if setup:
            I(f"s_and_b32 s{SR}, s{SW}, 3"); I(f"s_lshr_b32 s{SG}, s{SW}, 2")
            I(f"v_lshlrev_b32 v{VL16}, 4, v0")
            I(f"s_lshl_b32 s44, s{SR}, 13"); I(f"s_add_u32 s44, s44, {QB_LDS}"); I(f"v_add_u32 v{VQ}, s44, v{VL16}")
            I(f"s_lshl_b32 s45, s{SG}, 16"); I(f"v_subrev_u32 v{TMP+1}, s45, v{VQ}")
            I(f"s_mov_b32 s{SC1}, s{SIDX}")
            I(f"s_lshl_b32 s{SC2}, s{SIDX}, 1"); I(f"s_sub_u32 s{SC2}, 14, s{SC2}")
            I(f"s_cmp_eq_u32 s{SG}, 1"); I(f"s_cselect_b32 s{SM1}, 0, -1")
            I(f"s_lshl_b32 s43, s{SW}, 12"); I(f"s_lshl_b32 s{SVO}, s{SHEAD}, 20"); I(f"s_add_u32 s{SVO}, s{SVO}, s43")
            I(f"s_add_u32 s{SKO}, s{SVO}, 0x10000"); I(f"s_add_u32 s{SVO}, s{SVO}, 0x8000")
            I(f"s_mov_b32 s{SKM}, s43"); I(f"s_add_u32 s{SVM}, s43, 0x18000")
            I(f"s_mov_b32 s{STH}, {f2u(4096.0)}"); I(f"v_mov_b32 v{NINF}, 0xff800000")
            I(f"v_and_b32 v{THR}, 31, v0"); I(f"s_lshl_b32 s44, s{SR}, 5"); I(f"v_add_u32 v{THR}, s44, v{THR}")
            I(f"v_lshrrev_b32 v{TMP}, 5, v0"); I(f"v_lshlrev_b32 v{TMP}, 2, v{TMP}"); I(f"v_sub_u32 v{THR}, v{THR}, v{TMP}")
            I(f"v_add_u32 v{VK}, 0x8000, v{VL16}")
            I(f"s_lshl_b32 s{SCA}, s{SIDX}, 2"); I(f"s_add_u32 s{SCA}, s{SCA}, s{SR}"); I(f"s_lshl_b32 s{SCA}, s{SCA}, 5"); I(f"s_add_u32 s{SCA}, s{SCA}, s{SHEAD}")
            I(f"s_lshl_b32 s{SCA}, s{SCA}, 13"); I(f"s_add_u32 s{SCA}, s{SCA}, {CTX_OFF}")
            I(f"s_mov_b32 s{SFIN}, 0")
            if self.o.get("map84", 1):
                I(f"s_lshr_b32 s56, s{SF}, 6"); I("s_lshl_b32 s56, s56, 3"); I(f"s_bfe_u32 s44, s{SF}, 0x30002"); I("s_add_u32 s56, s56, s44")
                I(f"s_bfe_u32 s57, s{SF}, 0x10005"); I("s_lshl_b32 s57, s57, 2"); I(f"s_and_b32 s44, s{SF}, 3"); I("s_add_u32 s57, s57, s44")
                I(f"s_and_b32 s40, s{SF}, 63"); I("s_lshl_b32 s40, s40, 16")
            else:
                I(f"s_mov_b32 s56, s{SHEAD}"); I(f"s_mov_b32 s57, s{SIDX}")
                I(f"s_and_b32 s40, s{SF}, 31"); I("s_lshl_b32 s40, s40, 17")
            I(f"s_lshl_b32 s44, s{SW}, 13"); I("s_add_u32 s40, s40, s44"); I(f"s_add_u32 s40, s40, {WOT_OFF}")
            self.srd(RB, "ssmk", 2*MB); self.srd(RA, "k", 2*MB); self.srd(RC, "v", 2*MB); self.srd(RD, "shift", 4096); self.srd(RE, "wo", 4*MB)
            I("s_mov_b32 s41, 0")
            if not self.o.get("noprio"):
                l = a.label("PR"); I(f"s_cmp_eq_u32 s{SG}, 1"); I(f"s_cbranch_scc0 {l}"); I("s_setprio 1"); a.L(l)
            return
        def loadq(va):
            qt = []
            for ds in range(8):
                I(f"ds_read_b128 {v(QF+4*ds,4)}, v{va} offset:{1024*ds}"); qt.append(lg.issue())
            return qt
        op = lambda t, c=4: (lambda: I(t), c)
        def dma4(kind):
            sm, so = (SKM, SKO) if kind == "k" else (SVM, SVO)
            def d(i):
                def f():
                    if i == 0: I(f"s_mov_b32 m0, s{sm}"); I(f"s_xor_b32 s{sm}, s{sm}, 0x8000")
                    if not (self.o.get("a_nodma") and i):
                        I(f"buffer_load_dwordx4 v{VL16}, s[{RWS}:{RWS+3}], s{so} offen offset:{1024*i}{self.ld} lds")
                    if i == 3: I(f"s_add_u32 s{so}, s{so}, 0x10000")
                return (f, DC + (8 if i == 0 else 4 if i == 3 else 0))
            return [d(i) for i in range(4)]
        self.ring_n = 0
        def rd(kind, sl, idx):
            h = {}
            def f():
                slot = self.ring_n % NR; self.ring_n += 1
                h["reg"] = RING + 4*slot
                I(f"ds_read_b128 {v(h['reg'],4)}, v{VK if kind == 'k' else VV} offset:{sl*8192+idx*1024}"); h["tok"] = lg.issue()
            return f, h
        def wait_for(R, i):
            if R[i][1]["tok"] <= lg.done: return
            j = i
            while j + 1 < len(R) and j + 1 < i + WEV and "tok" in R[j+1][1] and R[j+1][1]["tok"] > R[i][1]["tok"]: j += 1
            lg.wait(R[j][1]["tok"])
        def mf_qk(sb, ds, R, i, czero=False):
            wait_for(R, i)
            c = (("0" if czero else v(NM,16)) if ds == 0 else v(S[sb],16))
            I(f"{MFMA} {v(S[sb],16)}, {v(R[i][1]['reg'],4)}, {v(QF+4*ds,4)}, {c}")
        def mf_pv(pb, idx, R, i=None, reg=None):
            ks, dt = idx >> 2, idx & 3
            if reg is None: wait_for(R, i); reg = R[i][1]["reg"]
            I(f"{MFMA} {v(O+16*dt,16)}, {v(reg,4)}, {v(PP[pb]+4*ks,4)}, {v(O+16*dt,16)}")
        def sm_ops(sb):
            L = []
            ex = lambda i: op(f"v_exp_f32 v{E+(i&7)}, v{S[sb]+i}", 8)
            def post(j):
                r = []; e0, e1 = E + ((2*j) & 7), E + ((2*j+1) & 7)
                if j == 0: r.append(op(f"v_add_f32 v{LU}, v{e0}, v{e1}"))
                else: r += [op(f"v_add_f32 v{LU}, v{LU}, v{e0}"), op(f"v_add_f32 v{LU}, v{LU}, v{e1}")]
                r.insert(1 if j else 0, op(f"v_cvt_pk_bf16_f32 v{PP[sb]+j}, v{e0}, v{e1}"))
                return r
            L += [ex(0), ex(1)]
            for j in range(8):
                p = post(j)
                L += ([ex(2*j+2), p[0], ex(2*j+3)] + p[1:]) if j < 7 else p
            if self.o.get("a_nosm"): L = [(lambda: None, 0) if i > 3 else x for i, x in enumerate(L)]
            return L
        def sched(M, fixed, chain):
            n = len(M); fc = [sum(c for _, c in fixed.get(g, [])) for g in range(n)]
            tot = sum(c for _, c in chain)
            lo, hi = 0.0, 4000.0
            for _ in range(40):
                lev = (lo + hi) / 2
                if sum(max(0, lev - f) for f in fc) >= tot: hi = lev
                else: lo = lev
            k = 0; credit = 0.0
            for g in range(n):
                M[g]()
                for c, _ in fixed.get(g, []): c()
                credit += max(0, hi - fc[g])
                while k < len(chain) and (g == n - 1 or chain[k][1] <= credit + 2):
                    chain[k][0](); credit -= chain[k][1]; k += 1
        def put(fixed, g, items): fixed.setdefault(g, []).extend(items)
        SPL = self.o.get("spl", 26)
        ool = []
        def rarely(cmp_, body):
            lo = a.label("OOL"); lb = a.label("RET")
            I(cmp_); I(f"s_cbranch_scc1 {lo}"); a.L(lb)
            ool.append((lo, lb, body))
        def mask_body(sb, koff):
            prs = [46, 48, 50, 52]
            if koff >= 64:
                I(f"v_subrev_u32 v{TMP+3}, 64, v{THR}"); tr = TMP + 3; koff -= 64
            elif koff < 0:
                I(f"s_lshl_b32 s44, s{SG}, 6"); I(f"v_subrev_u32 v{TMP+3}, s44, v{THR}"); tr = TMP + 3; koff = -koff - 1
            else: tr = THR
            for r0 in range(0, 16, 4):
                for r in range(r0, r0+4):
                    I(f"v_cmp_lt_i32 s[{prs[r&3]}:{prs[r&3]+1}], v{tr}, {(r & 3) + 8*(r >> 2) + koff}")
                for r in range(r0, r0+4):
                    I(f"v_cndmask_b32 v{S[sb]+r}, v{S[sb]+r}, v{NINF}, s[{prs[r&3]}:{prs[r&3]+1}]")
        def rowmax(sb, dst):
            b = S[sb]
            I(f"v_max3_f32 v{dst}, v{b}, v{b+1}, v{b+2}")
            for i in range(3, 15, 2): I(f"v_max3_f32 v{dst}, v{dst}, v{b+i}, v{b+i+1}")
            I(f"v_max_f32 v{dst}, v{dst}, v{b+15}"); I(f"v_mov_b32 v{dst+1}, v{dst}")
            I(f"v_permlane32_swap_b32 v{dst}, v{dst+1}"); I(f"v_max_f32 v{dst}, v{dst}, v{dst+1}")
        def init_max():
            rowmax(0, TMP)
            I(f"v_max_f32 v{TMP}, {f2u(-1e30)}, v{TMP}")
            for r in range(16): I(f"v_sub_f32 v{NM+r}, 0, v{TMP}")
            return [op(f"v_sub_f32 v{S[0]+r}, v{S[0]+r}, v{TMP}") for r in range(16)]
        rare = []
        def check(sb, other=True):
            def f():
                lr = a.label("RARE"); lb = a.label("BACK")
                I(f"v_cmp_nge_f32 vcc, s{STH}, v{LU}")
                if self.o.get("a_nocheck"): I("s_mov_b64 vcc, 0")
                I(f"s_cbranch_vccnz {lr}"); a.L(lb)
                I(f"v_add_f32 v{LRUN}, v{LRUN}, v{LU}")
                rare.append((lr, lb, sb, other))
            return f
        def fin_body():
            I(f"v_mov_b32 v{TMP}, v{LA}"); I(f"s_mov_b32 s{SFIN}, 2"); I("s_nop 0")
            I(f"v_permlane32_swap_b32 v{TMP}, v{LA}"); I(f"v_add_f32 v{TMP}, v{TMP}, v{LA}"); I(f"v_rcp_f32 v{TMP}, v{TMP}"); I(f"v_mov_b32 v{TMP+1}, v{TMP}")
            for q in range(8):
                for i in range(8*q, 8*q+8, 2): I(f"v_pk_mul_f32 {v(O+i,2)}, {v(O+i,2)}, {v(TMP,2)}")
                for i in range(4): I(f"v_cvt_pk_bf16_f32 v{PK+4*q+i}, v{O+8*q+2*i}, v{O+8*q+2*i+1}")
                for i in range(8*q, 8*q+8, 2): I(f"v_mov_b64 {v(O+i,2)}, 0")
        def st_body():
            I(f"s_add_u32 s44, s{SCA}, 4096"); I(f"s_mov_b32 s{SFIN}, 3")
            for q in range(8):
                I(f"buffer_store_dwordx4 {v(PK+4*q,4)}, v{VL16}, s[{RWS}:{RWS+3}], s{SCA if q < 4 else 44} offen offset:{1024*(q&3)}{self.st}")
        TR = [RING + 4*(2+i) for i in range(6)]
        def head(R, vmw, with_mfma=True, post=()):
            rf = [(f, 4) for f, h in R]; sm2 = sm_ops(0)[SPL:]
            nop = lambda: None
            def first():
                I("s_waitcnt lgkmcnt(4)"); mf_pv(1, 2, None, reg=TR[0])
            M = [first] + [lambda i=i: mf_pv(1, 2+i, None, reg=TR[i]) for i in range(1, 6)] if with_mfma else [nop]*6
            nb = self.o.get("nb", 4)
            sched(M[:2], {}, sm2[:nb])
            vmw(); I("s_waitcnt lgkmcnt(0)"); lg.mark_all_done(); self.barrier(); self.ring_n = 0
            fx = {0: rf[0:2], 1: rf[2:5], 2: rf[5:6], 3: rf[6:7] + [(nop, 12 + 8*len(post))]}
            sched(M[2:], fx, sm2[nb:])
            check(0)()
            for p in post: p()
        def mk_reads():
            return ([rd("k", 0, i) for i in range(8)] + [rd("v", 0, i) for i in range(8)] +
                    [rd("k", 1, i) for i in range(8)] + [rd("v", 1, i) for i in range(8)])
        def mid(R, dmas, kx, mb=None, trans=False, endops=(), extra=None):
            rf = [(f, 4) for f, h in R]
            M = [lambda i=i: mf_qk(0, i, R, i, trans) for i in range(8)] + [lambda i=i: mf_pv(0, i, R, 8+i) for i in range(8)]
            fx = {}
            for g in range(16): put(fx, g, [rf[7+g]])
            D = sum((dma4(k) for k in dmas), [])
            DS = self.o.get("dstep", 2)
            spill = []
            for n, d in enumerate(D):
                g = n * DS * (2 if len(D) == 4 and not extra else 1)
                if g < 15: put(fx, g, [d])
                else: spill.append((g - 16 if g >= 16 else 0, d))
            put(fx, 15, [(lambda: None, 20)])
            if extra:
                X0 = self.o.get("x0", 8); ng = 16 - X0 + 9; per = -(-len(extra) // ng)
                put(fx, X0, [op("s_waitcnt vmcnt(4)")])
                for g in range(X0, 16): put(fx, g, extra[(g-X0)*per:(g-X0+1)*per])
                for g in range(9): spill += [(g, x) for x in extra[(16-X0+g)*per:(16-X0+g+1)*per]]
            sched(M, fx, sm_ops(1))
            check(1, other=not trans)()
            if mb: mb()
            pre = []
            if trans:
                I(f"v_mov_b32 v{LA}, v{LRUN}"); I(f"v_mov_b32 v{LRUN}, 0"); I(f"s_mov_b32 s{SFIN}, 1")
                pre = init_max()
            M = [lambda i=i: mf_qk(1, i, R, 16+i) for i in range(8)] + [lambda i=i: mf_pv(1, i, R, 24+i) for i in range(2)]
            fx = {}
            for g in range(9): put(fx, g, [rf[23+g]])
            for g, d in spill: put(fx, g, [d])
            put(fx, 8, [op(f"v_xor_b32 v{VV}, 0x10000, v{VK}")] + kx)
            for n, e in enumerate(endops): put(fx, 7 - n, [e])
            put(fx, 9, [(lambda: None, 16)])
            sched(M, fx, pre + sm_ops(0)[:SPL])
            assert [R[26+i][1]["reg"] for i in range(6)] == TR
        vm4 = lambda: I("s_waitcnt vmcnt(4)")
        vm0 = lambda: I("s_waitcnt vmcnt(0)")
        def vm08():
            lo = a.label("W8"); lb = a.label("W8R")
            I(f"s_cmp_eq_u32 s{SFIN}, 3"); I(f"s_cbranch_scc1 {lo}"); I("s_waitcnt vmcnt(%d)" % self.o.get("a_vm", 0)); a.L(lb)
            def b(): I("s_waitcnt vmcnt(8)"); I(f"s_mov_b32 s{SFIN}, 4")
            ool.append((lo, lb, b))
        m1 = lambda sb, ko: (lambda: rarely(f"s_cmp_eq_u32 s{SC1}, s{SM1}", lambda: mask_body(sb, ko)))
        fin = lambda: rarely(f"s_cmp_eq_u32 s{SFIN}, 1", fin_body)
        sta = (lambda: rarely(f"s_cmp_eq_u32 s{SFIN}, 2", st_body), 8)

        KR, VR, SH, WO, AD = 16, 23, 28, 32, 40
        def side_loads():
            L = []; E = lambda t: L.append(op(t)); V = lambda t: L.append(op(t, DC))
            E(f"v_lshrrev_b32 v{AD}, 5, v0"); E(f"v_and_b32 v{AD+1}, 31, v0"); E(f"v_lshlrev_b32 v{AD+2}, 12, v{AD}"); E(f"v_lshl_add_u32 v{AD+2}, v{AD+1}, 2, v{AD+2}")
            E(f"s_lshl_b32 s60, s{SF}, 14"); E(f"s_lshl_b32 s61, s{SW}, 7"); E("s_add_u32 s60, s60, s61"); E("s_add_u32 s61, s60, 8192")
            for j in range(8): V(f"buffer_load_dword v{WO+j}, v{AD+2}, s[{RE}:{RE+3}], s{60+(j>>2)} offen offset:{1024*(j&3)}")
            E("s_lshr_b32 s62, s2, 3"); E("s_lshl_b32 s62, s62, 16"); E(f"s_lshl_b32 s63, s{SW}, 13"); E("s_add_u32 s62, s62, s63")
            E("s_and_b32 s63, s2, 7"); E("s_lshl_b32 s63, s63, 7"); E("s_add_u32 s62, s62, s63"); E(f"v_add_u32 v{AD+3}, s62, v{AD+2}")
            for i in range(3): E(f"v_subrev_u32 v{AD+4+i}, {3072-1024*i}, v{AD+3}")
            E("s_lshl_b32 s63, s63, 2"); E(f"v_lshl_add_u32 v{AD+7}, v{AD+1}, 4, s63")
            for i in range(3): V(f"buffer_load_dword v{KR+i}, v{AD+4+i}, s[{RA}:{RA+3}], 0 offen")
            for i in range(4): V(f"buffer_load_dword v{KR+3+i}, v{AD+3}, s[{RA}:{RA+3}], 0 offen offset:{1024*i}")
            for i in range(4): V(f"buffer_load_dword v{VR+i}, v{AD+3}, s[{RC}:{RC+3}], 0 offen offset:{1024*i}")
            V(f"buffer_load_dwordx4 {v(SH,4)}, v{AD+7}, s[{RD}:{RD+3}], 0 offen")
            E(f"s_lshl_b32 s60, s{SF}, 13"); E(f"s_add_u32 s60, s60, s{SWK}"); E(f"v_and_b32 v27, 7, v0"); E("v_lshlrev_b32 v27, 7, v27")
            V(f"buffer_load_dword v1, v27, s[{RB}:{RB+3}], s60 offen")
            return L
        NSL = 21
        def side_math():
            L = []; E = lambda t: L.append(op(t)); V = lambda t: L.append(op(t, DC))
            W2 = 48
            E("s_mov_b32 s60, 0x05040100"); E("s_mov_b32 s61, 0x07060302")
            for j in range(4): E(f"v_perm_b32 v{W2+j}, v{WO+2*j+1}, v{WO+2*j}, s60")
            for j in range(4): E(f"v_perm_b32 v{W2+4+j}, v{WO+2*j+1}, v{WO+2*j}, s61")
            E(f"s_lshl_b32 s60, s{SW}, 8"); E(f"s_add_u32 s60, s60, s{SF}"); E("s_lshl_b32 s60, s60, 11"); E(f"s_add_u32 s60, s60, {WOT_OFF}")
            for mt in range(2): V(f"buffer_store_dwordx4 {v(W2+4*mt,4)}, v{VL16}, s[{RWS}:{RWS+3}], s60 offen offset:{1024*mt}{self.st}")
            KU, SU, OO, VU, PQ = 32, 42, 48, 39, 52
            for c in range(2):
                def unp(d, sreg, half): E(f"v_lshlrev_b32 v{d}, 16, v{sreg}" if half == 0 else f"v_and_b32 v{d}, 0xffff0000, v{sreg}")
                for i in range(7): unp(KU+i, KR+i, c)
                for j in range(4): unp(SU+j, SH + 2*c + (j >> 1), j & 1)
                for o in range(4):
                    E(f"v_mul_f32 v{OO+o}, v{KU+o}, v{SU+3}")
                    for j in (2, 1, 0): E(f"v_fmac_f32 v{OO+o}, v{KU+o+3-j}, v{SU+j}")
                    unp(VU, VR+o, c)
                    E(f"v_mul_f32 v{OO+o}, v{OO+o}, v{VU}")
                d = PQ + 2*(1-c)
                E(f"v_cvt_pk_bf16_f32 v{d}, v{OO+3}, v{OO+2}"); E(f"v_cvt_pk_bf16_f32 v{d+1}, v{OO+1}, v{OO}")
            E(f"v_lshlrev_b32 v{AD+1}, 5, v{AD+1}"); E(f"v_lshl_add_u32 v{AD+1}, v{AD}, 4, v{AD+1}")
            E(f"v_permlane32_swap_b32 v{PQ+2}, v{PQ}"); E(f"v_permlane32_swap_b32 v{PQ+3}, v{PQ+1}")
            E("s_lshr_b32 s60, s2, 3"); E("s_lshl_b32 s60, s60, 16"); E(f"s_lshl_b32 s61, s{SW}, 13"); E("s_add_u32 s60, s60, s61")
            E("s_and_b32 s61, s2, 7"); E("s_lshl_b32 s61, s61, 10"); E("s_add_u32 s60, s60, s61"); E(f"s_add_u32 s60, s60, {KVT_OFF}")
            V(f"buffer_store_dwordx4 {v(PQ,4)}, v{AD+1}, s[{RWS}:{RWS+3}], s60 offen{self.st}")
            return L
        def spub_body():
            l1 = a.label("SM"); l2 = a.label("SP")
            I("s_add_u32 s41, s41, 1"); I(f"s_add_u32 s44, s41, s{SG}"); I("s_cmp_lg_u32 s44, 2"); I(f"s_cbranch_scc1 {l1}")
            for c, _ in side_math(): c()
            a.L(l1)
            I("s_cmp_lg_u32 s41, 4"); I(f"s_cbranch_scc1 {l2}")
            I(f"s_lshl_b32 s44, s{SF}, 2"); I(f"s_add_u32 s44, s44, {FY_OFF}")
            sv = self.save(); self.publish(44, 2); self.restore(sv)
            a.L(l2)
        spub = lambda: rarely("s_cmp_lt_u32 s41, 4", spub_body)
        def snap():
            self.oob_sel(); I("v_lshl_add_u32 v49, v0, 4, s99"); I(f"s_mov_b32 s60, {FY_OFF}")
            I(f"buffer_load_dwordx4 v[52:55], v49, s[{RWS}:{RWS+3}], s60 offen sc1")
        def side_check():
            l = a.label("SCK"); lp = a.label("SPL")
            I(f"s_cmp_lg_u32 s{SW}, 0"); I(f"s_cbranch_scc1 {l}")
            I("s_mov_b32 s99, 20000"); a.L(lp)
            I("v_and_b32 v52, v52, v53"); I("v_and_b32 v54, v54, v55"); I("v_and_b32 v52, v52, v54"); I("v_and_b32 v52, 2, v52")
            I("v_cmp_ne_u32 vcc, 2, v52"); I(f"s_cbranch_vccz {l}"); I("s_sleep 2")
            I(f"buffer_load_dwordx4 v[52:55], v49, s[{RWS}:{RWS+3}], s60 offen sc1")
            I("s_sub_u32 s99, s99, 1"); I("s_cmp_lg_u32 s99, 0"); I("s_waitcnt vmcnt(0)"); I(f"s_cbranch_scc1 {lp}")
            a.L(l)
        m2 = lambda sb, ko: (lambda: rarely(f"s_cmp_eq_u32 s{SC2}, 0", lambda: (snap(), mask_body(sb, ko))))
        LEV = a.label("EVEN"); LODM = a.label("ODDM"); LTRANS = a.label("TRANS"); LP2 = a.label("P2"); LP2B = a.label("P2B"); LDRAIN = a.label("DRAIN")
        self.stamp(8)
        self.ring_n = 0
        R = [rd("k", 0, i) for i in range(8)] + [rd("k", 1, i) for i in range(8)]
        for i in range(7):
            I(f"ds_read_b128 {v(QF+4*i,4)}, v{TMP+1} offset:{1024*i}"); lg.issue()
            R[i][0]()
        def q7():
            I(f"ds_read_b128 {v(QF+28,4)}, v{TMP+1} offset:{1024*7}"); lg.issue()
        D = dma4("v") + dma4("k")
        sched([lambda i=i: mf_qk(0, i, R, i, True) for i in range(8)], {g: ([(q7, 4)] if g == 0 else []) + [(R[7+g][0], 4), D[g]] for g in range(8)}, [])
        m1(0, 0)()
        pre = init_max()
        I(f"v_mov_b32 v{LRUN}, 0")
        fx = {}
        put(fx, 0, [(R[15][0], 4)]); put(fx, 4, [op(f"v_xor_b32 v{VV}, 0x10000, v{VK}"), op(f"v_xor_b32 v{VK}, 0x4000, v{VK}")])
        SLd = side_loads(); n8 = (len(SLd) + 7) // 8
        for g in range(8): put(fx, g, SLd[g*n8:(g+1)*n8])
        sched([lambda i=i: mf_qk(1, i, R, 8+i) for i in range(8)], fx, pre + sm_ops(0)[:SPL])
        R = mk_reads()
        head(R, lambda: I(f"s_waitcnt vmcnt({4+NSL})"), False, post=[m1(1, 32)])
        svm = self.save()
        I(f"s_branch {LODM}")
        a.L(LEV)
        R = mk_reads(); head(R, vm4)
        mid(R, "k", [op(f"v_xor_b32 v{VK}, 0x4000, v{VK}")], mb=m1(0, 0))
        R = mk_reads(); head(R, vm4, post=[m1(1, 32), spub])
        assert self.lg.issued - self.lg.done == svm[2] - svm[3]
        a.L(LODM)
        mid(R, "v", [op(f"v_xor_b32 v{VK}, 0xc000, v{VK}")], mb=m1(0, 64), endops=[op(f"s_sub_u32 s{SC1}, s{SC1}, 1")])
        I(f"s_cmp_lg_u32 s{SC1}, -1"); I(f"s_cbranch_scc1 {LEV}")
        I(f"s_cmp_eq_u32 s{SG}, 1"); I(f"s_cbranch_scc1 {LTRANS}")
        svt = self.save()
        R = mk_reads(); head(R, vm4)
        mid(R, "k", [op(f"v_xor_b32 v{VK}, 0x8000, v{VK}")], mb=m2(0, -1))
        a.L(LP2B)
        I(f"s_cmp_eq_u32 s{SC2}, 0"); I(f"s_cbranch_scc1 {LDRAIN}")
        a.L(LP2)
        R = mk_reads(); head(R, vm08, post=[spub, fin, lambda: I(f"s_sub_u32 s{SC2}, s{SC2}, 1")])
        mid(R, "kv", [op(f"v_xor_b32 v{VK}, 0x8000, v{VK}")], mb=m2(0, -1), endops=[sta])
        I(f"s_cmp_lg_u32 s{SC2}, 0"); I(f"s_cbranch_scc1 {LP2}")
        a.L(LDRAIN)
        self.stamp(10)
        R2 = [rd("v", 0, i) for i in range(8)] + [rd("v", 1, i) for i in range(8)]
        rf = [(f, 4) for f, h in R2]
        head(R2, lambda: (vm08(), side_check()), post=[fin, sta[0]])
        mask_body(1, -33)
        ts, ts2, ts3 = self.tail_setup(); n8 = (len(ts) + 4) // 5
        fx = {g: [rf[7+g]] + ts[g*n8:(g+1)*n8] for g in range(8)}
        for g in range(3):
            if g < len(ts2): put(fx, 5 + g, [ts2[g]])
        sched([lambda i=i: mf_pv(0, i, R2, i) for i in range(8)], fx, sm_ops(1))
        check(1)()
        pre = []; E_ = lambda t: pre.append(op(t))
        E_(f"v_mov_b32 v{TMP}, v{LRUN}"); E_(f"s_lshl_b32 s44, s{SW}, 9"); E_(f"s_add_u32 s44, s44, {ML}")
        E_(f"v_permlane32_swap_b32 v{TMP}, v{LRUN}"); E_(f"v_add_f32 v{NM+1}, v{TMP}, v{LRUN}")
        E_(f"v_lshrrev_b32 v{TMP}, 1, v{VL16}"); E_(f"v_add_u32 v{TMP}, s44, v{TMP}")
        def wml():
            I(f"ds_write_b64 v{TMP}, {v(NM,2)}"); lg.issue()
        pre.append((wml, 4))
        E_(f"v_xor_b32 v{TMP}, 0x800, v{TMP}")
        E_(f"s_lshl_b32 s46, s{SW}, 13"); E_(f"v_add_u32 v{TMP+1}, s46, v{VL16}"); E_(f"v_xor_b32 v{TMP+2}, 0x8000, v{TMP+1}")
        E_(f"s_sub_u32 s54, 15, s{SIDX}"); E_(f"s_lshl_b32 s54, s54, 2"); E_(f"s_add_u32 s54, s54, s{SR}"); E_("s_lshl_b32 s54, s54, 5"); E_(f"s_add_u32 s54, s54, s{SHEAD}")
        E_("s_lshl_b32 s54, s54, 13"); E_(f"s_lshl_b32 s44, s{SG}, 12"); E_("s_add_u32 s54, s54, s44"); E_(f"s_add_u32 s54, s54, {CTX_OFF}")
        fx = {0: [rf[15]]}
        for g, x in enumerate(ts2[3:]): put(fx, g, [x])
        sched([lambda i=i: mf_pv(1, i, R2, 8+i) for i in range(8)], fx, pre + ts3)
        self.stamp(11)
        lg1 = a.label("MG1"); lj = a.label("MGJ")
        I(f"s_cmp_eq_u32 s{SG}, 1"); I(f"s_cbranch_scc1 {lg1}")
        sv2 = self.save(); PR = 64
        for g in (0, 1):
            if g: a.L(lg1); self.restore(sv2)
            own = O + 32*g; snd = O + 32*(1-g)
            for i in range(8):
                I(f"ds_write_b128 v{TMP+1}, {v(snd+4*i,4)} offset:{1024*i}"); lg.issue()
            lg.wait(lg.issued); self.barrier()
            I(f"ds_read_b64 {v(96,2)}, v{TMP}"); t0 = lg.issue()
            tk = []
            for i in range(8):
                I(f"ds_read_b128 {v(PR+4*i,4)}, v{TMP+2} offset:{1024*i}"); tk.append(lg.issue())
            lg.wait(t0)
            I(f"v_min_f32 v98, v{NM}, v96"); I(f"v_sub_f32 v99, v98, v{NM}"); I(f"v_sub_f32 v100, v98, v96")
            I("v_exp_f32 v99, v99"); I("v_exp_f32 v100, v100")
            I(f"v_mul_f32 v101, v99, v{NM+1}"); I("v_fmac_f32 v101, v100, v97"); I("v_rcp_f32 v101, v101")
            I("v_mul_f32 v102, v99, v101"); I("v_mul_f32 v103, v99, v101"); I("v_mul_f32 v104, v100, v101"); I("v_mul_f32 v105, v100, v101")
            for q in range(4):
                for i in range(8*q, 8*q+8, 2): I(f"v_pk_mul_f32 {v(own+i,2)}, {v(own+i,2)}, v[102:103]")
                lg.wait(tk[2*q+1])
                for i in range(8*q, 8*q+8, 2): I(f"v_pk_fma_f32 {v(own+i,2)}, {v(PR+i,2)}, v[104:105], {v(own+i,2)}")
                for i in range(4): I(f"v_cvt_pk_bf16_f32 v{snd+4*q+i}, v{own+8*q+2*i}, v{own+8*q+2*i+1}")
                I(f"buffer_store_dwordx4 {v(snd+4*q,4)}, v{VL16}, s[{RWS}:{RWS+3}], s54 offen offset:{1024*q}{self.st}"); self.tctx = vm.issue()
            if not g: I(f"s_branch {lj}")
        a.L(lj)
        I("s_setprio 0")
        self.stamp(4)
        def cold():
            a.L(LTRANS)
            self.restore(svt)
            loadq(VQ); I("s_waitcnt lgkmcnt(0)")
            I(f"v_xor_b32 v{VK}, 0x4000, v{VK}")
            R = mk_reads(); head(R, vm4, post=[lambda: mask_body(1, 96)])
            mid(R, "k", [op(f"v_xor_b32 v{VK}, 0x8000, v{VK}")], mb=m2(0, -1), trans=True)
            I(f"s_branch {LP2B}")
            for (lo, lb, body) in ool:
                a.L(lo); body(); I(f"s_branch {lb}")
            for (lr, lb, sb, other) in rare:
                a.L(lr)
                I("s_nop 15")
                rowmax(sb, TMP)
                I(f"v_max_f32 v{TMP}, 0, v{TMP}"); I(f"v_exp_f32 v{TMP+1}, -v{TMP}")
                for r in range(16): I(f"v_sub_f32 v{NM+r}, v{NM+r}, v{TMP}")
                for r in range(16): I(f"v_sub_f32 v{S[sb]+r}, v{S[sb]+r}, v{TMP}")
                if other:
                    for r in range(16): I(f"v_sub_f32 v{S[1-sb]+r}, v{S[1-sb]+r}, v{TMP}")
                for r in range(64): I(f"v_mul_f32 v{O+r}, v{O+r}, v{TMP+1}")
                I(f"v_mul_f32 v{LRUN}, v{LRUN}, v{TMP+1}")
                for c, _ in sm_ops(sb): c()
                I("s_nop 1"); I(f"s_branch {lb}")
        self.attn_rare = cold

    HB = 65536; HC = 4416; XB = 136192; YB = 148480
    SC, SJ, SB, SCH, SHB_, SWO, SCX = 34, 35, 36, 37, 38, 39, 40
    WS_ = [16, 24, 32, 40, 176, 184, 56, 80, 88, 96, 104, 144, 152, 160]
    CS_ = [168, 112, 120, 128, 136, 64, 72]
    NL = 4
    def tail_setup(self):
        I = self.I; L = []; E = lambda t: L.append((lambda: I(t), 4))
        SC, SJ, SB, SCH, SHB_, SWO, SCX = self.SC, self.SJ, self.SB, self.SCH, self.SHB_, self.SWO, self.SCX
        self.wtok = {}; self.wslot = dict(enumerate(self.WS_))
        E(f"s_lshr_b32 s{SC}, s{SW}, 2"); E(f"s_and_b32 s{SJ}, s{SW}, 3")
        E(f"s_lshl_b32 s{SCH}, s{SF}, 1"); E(f"s_add_u32 s{SCH}, s{SCH}, s{SC}"); E(f"s_lshl_b32 s{SCH}, s{SCH}, 12")
        E(f"s_lshl_b32 s60, s{SJ}, 10"); E("v_add_u32 v50, s60, v6"); E("v_subrev_u32 v51, 16, v50")
        E(f"s_lshr_b32 s60, s{SCH}, 8"); E(f"s_add_u32 s60, s60, {KVT_OFF}"); E("v_lshlrev_b32 v52, 9, v50")
        def ld(t):
            def f(): I(t); self.th = self.vm.issue()
            L.append((f, 16))
        ld(f"buffer_load_dwordx4 {v(160,4)}, v51, s[{RB}:{RB+3}], s{SCH} offen")
        ld(f"buffer_load_dwordx4 {v(164,4)}, v50, s[{RB}:{RB+3}], s{SCH} offen")
        ld(f"buffer_load_dwordx4 {v(168,4)}, v52, s[{RWS}:{RWS+3}], s60 offen{self.ld}")
        E(f"s_lshl_b32 s{SWO}, s57, 19"); E(f"s_lshl_b32 s60, s{SW}, 16"); E(f"s_add_u32 s{SWO}, s{SWO}, s60"); E(f"s_add_u32 s{SWO}, s{SWO}, {WOT_OFF}")
        L2 = [(lambda i=i: self.wload(i), 36) for i in range(self.o.get("we", 0))]
        L3 = []; L, Lx = L3, L
        E = lambda t: L3.append((lambda: I(t), 4))
        E(f"s_mul_i32 s{SB}, s{SC}, 6144"); E(f"s_add_u32 s{SB}, s{SB}, {self.XB}")
        E(f"s_mul_i32 s{SHB_}, s{SC}, {8*self.HC}"); E(f"s_add_u32 s{SHB_}, s{SHB_}, {self.HB}")
        E(f"s_lshl_b32 s{SCX}, s56, 19"); E(f"s_lshl_b32 s60, s{SW}, 15"); E(f"s_add_u32 s{SCX}, s{SCX}, s60"); E(f"s_add_u32 s{SCX}, s{SCX}, {CTX_OFF}")
        return Lx, L2, L3
    def wreg(self, i):
        return self.WS_[i % len(self.WS_)]
    def wload(self, i):
        I = self.I; r = self.wslot[i]
        I(f"s_add_u32 s61, s{self.SWO}, {i*2048}")
        for mt in range(2):
            I(f"buffer_load_dwordx4 {v(r+4*mt,4)}, v6, s[{RWS}:{RWS+3}], s61 offen offset:{mt*1024}{self.ld}"); self.wtok[i] = self.vm.issue()
    def tail_early(self):
        I = self.I; vm = self.vm; lg = self.lg; HC = self.HC
        SJ, SB, SCH, SHB_ = self.SJ, self.SB, self.SCH, self.SHB_
        Ee, Eo, Oe, Oo = 160, 113, 122, 131
        vm.wait(self.th)
        for k in range(7): I(f"v_alignbit_b32 v{Oe+k}, v{Ee+k+1}, v{Ee+k}, 16")
        for k in range(1, 7): I(f"v_alignbit_b32 v{Oo+k}, v{Ee+k+1}, v{Ee+k}, 16")
        for k in range(1, 7): I(f"v_mov_b32 v{Eo+k}, v{Ee+k}")
        I(f"s_add_u32 s60, s{SHB_}, 64"); I("v_add_u32 v51, s60, v50")
        for r in range(8):
            sft = 1 + r; k = sft >> 1
            base = ((Oe, Oo) if sft & 1 else (Ee, Eo))[k & 1]
            I(f"ds_write_b128 v51, {v(base+k,4)} offset:{r*HC}"); lg.issue()
        I("v_and_b32 v51, 3, v0"); I("v_mul_u32_u24 v52, 1536, v51"); I("v_lshrrev_b32 v53, 6, v50"); I("v_lshl_add_u32 v52, v53, 4, v52")
        I(f"s_add_u32 s60, s{SB}, 512"); I("v_add_u32 v52, s60, v52")
        I(f"ds_write_b128 v52, {v(168,4)}"); lg.issue()
        for r in range(2): I(f"v_mov_b64 {v(172+2*r,2)}, 0")
        I("v_bfe_u32 v52, v0, 2, 3"); I(f"v_mul_u32_u24 v52, {HC}, v52"); I("v_lshl_add_u32 v52, v51, 4, v52"); I(f"v_add_u32 v52, s{SHB_}, v52")
        I(f"ds_write_b128 v52, {v(172,4)}"); lg.issue()
        I(f"s_mul_i32 s60, s{SJ}, 1536"); I(f"s_add_u32 s60, s60, s{SB}"); I("v_lshl_add_u32 v52, v0, 3, s60")
        I(f"ds_write_b64 v52, {v(172,2)}"); lg.issue()
    def tailp(self):
        a = self.a; I = self.I; vm = self.vm; lg = self.lg
        HB, HC, YB = self.HB, self.HC, self.YB
        SC, SJ, SB, SCH, SHB_, SWO, SCX = self.SC, self.SJ, self.SB, self.SCH, self.SHB_, self.SWO, self.SCX
        ACC = 192; FRS = [224, 240, 64]; RD_ = 224
        VL16, VA, VB, T, VP, VPA, VO, GR, VLW, XR = 6, 4, 5, 12, 7, 8, 9, 10, 11, 48
        OACC = 192
        NW, NCX, NL = len(self.WS_), len(self.CS_), self.o.get("nl", 0)
        wtok = self.wtok; ctok = {}; wslot = self.wslot; cslot = dict(enumerate(self.CS_))
        I(f"s_lshr_b32 s53, s56, 1"); I("s_lshl_b32 s53, s53, 10"); I(f"s_lshl_b32 s44, s{SW}, 7"); I("s_add_u32 s53, s53, s44"); I(f"s_add_u32 s53, s53, {FC_OFF}")
        I(f"v_and_b32 v{VPA}, 3, v0"); I(f"v_lshlrev_b32 v{VPA}, 2, v{VPA}")
        P0 = self.o.get("p0", 0)
        tc0 = self.poll_issue(VP, VPA, "s53") if P0 else self.tctx
        self.tail_early()
        PUBN = self.o.get("pubn", 1)
        I(f"s_lshr_b32 s45, s{SHEAD}, 2"); I("s_lshl_b32 s45, s45, 7"); I(f"s_and_b32 s44, s{SHEAD}, 3"); I("s_lshl_b32 s44, s44, 2"); I("s_add_u32 s45, s45, s44")
        I(f"s_sub_u32 s44, 15, s{SIDX}"); I("s_lshl_b32 s44, s44, 10"); I("s_add_u32 s46, s44, s45"); I(f"s_add_u32 s46, s46, {FC_OFF}")
        I(f"s_lshl_b32 s44, s{SIDX}, 10"); I("s_add_u32 s47, s44, s45"); I(f"s_add_u32 s47, s47, {FC_OFF}")
        self.srd(RC, "out", 2*MB); self.srd(RD, "q", 2*MB)
        I(f"s_lshl_b32 s44, s{SF}, 2"); I(f"s_load_dword s55, s[{P['ssmD']}:{P['ssmD']+1}], s44")
        I(f"v_and_b32 v{T}, 31, v0"); I(f"v_lshrrev_b32 v{T+1}, 5, v0")
        I(f"v_and_b32 v{T+2}, 7, v0"); I(f"v_mul_u32_u24 v{VA}, {HC}, v{T+2}")
        I(f"v_bfe_u32 v{T+2}, v0, 3, 2"); I(f"v_sub_u32 v{T+2}, v{T+2}, v{T+1}"); I(f"v_lshl_add_u32 v{VA}, v{T+2}, 4, v{VA}")
        I(f"s_lshl_b32 s43, s{SJ}, 9"); I(f"s_add_u32 s43, s43, s{SHB_}"); I("s_add_u32 s43, s43, 32"); I(f"v_add_u32 v{VA}, s43, v{VA}")
        I(f"s_lshl_b32 s43, s{SJ}, 7"); I(f"s_sub_u32 s43, s{SB}, s43"); I("s_add_u32 s43, s43, 400")
        I(f"v_lshl_add_u32 v{VB}, v{T}, 4, s43"); I(f"v_mul_u32_u24 v{T+2}, 1536, v{T+1}"); I(f"v_add_u32 v{VB}, v{VB}, v{T+2}")
        I(f"s_lshl_b32 s51, s{SW}, 13"); I(f"v_add_u32 v{VLW}, s51, v{VL16}")
        I("s_waitcnt lgkmcnt(0)"); lg.mark_all_done(); self.barrier()
        self.stamp(5)
        def cload(i):
            r = cslot[i]
            I(f"s_add_u32 s62, s{SCX}, {(i//4)*4096}"); I("s_add_u32 s63, s62, 0x40000")
            for st in range(2):
                I(f"buffer_load_dwordx4 {v(r+4*st,4)}, v{VL16}, s[{RWS}:{RWS+3}], s{62+st} offen offset:{(i%4)*1024}{self.ld}"); ctok[i] = vm.issue()
        ltok = {}
        def lstage(j):
            I(f"s_add_u32 m0, s51, {j*2048}"); I(f"s_add_u32 s61, s{SWO}, {(NW+j)*2048}")
            for mt in range(2):
                I(f"buffer_load_dwordx4 v{VL16}, s[{RWS}:{RWS+3}], s61 offen offset:{mt*1024}{self.ld} lds"); ltok[j] = vm.issue()
        def early(lo, hi, level):
            le = a.label("NE")
            I(f"s_cmp_lg_u32 s50, {level}"); I(f"s_cbranch_scc1 {le}")
            sv = self.save()
            for i in range(lo, hi): cload(i)
            self.restore(sv); I(f"s_mov_b32 s50, {level+1}")
            a.L(le)
        def seen():
            I(f"v_and_b32 v{VP}, 1, v{VP}"); I(f"v_cmp_ne_u32 vcc, 1, v{VP}"); I("s_cmp_eq_u64 vcc, 0"); I("s_cselect_b32 s52, 1, 0"); I("s_max_u32 s50, s50, s52")
        I("s_mov_b32 s50, 0")
        wl = [lambda i=i: self.wload(i) for i in range(NW) if i not in wtok] + [lambda j=j: lstage(j) for j in range(NL)]
        steps = [(dd, ks) for dd in range(8) for ks in range(2)]
        toks = {}
        def reads(n):
            dd, ks = steps[n]; b = FRS[n % 3]
            def r(k, reg, addr, off):
                def f():
                    I(f"ds_read_b128 {v(reg,4)}, v{addr} offset:{off}"); toks[(n, k)] = lg.issue()
                return f
            return [r(0, b, VA, 64*dd + 32*(1-ks)), r(1, b+4, VB, ks*3072 + (7-dd)*16),
                    r(2, b+8, VB, ks*3072 + (7-dd)*16 + 512), r(3, b+12, VA, 64*dd + 32*(1-ks) + 2048)]
        for n in range(2):
            for f in reads(n): f()
        for n in range(16):
            b = FRS[n % 3]; L = reads(n+2) if n + 2 < 16 else []
            c0 = "0" if n == 0 else v(ACC,16); c1 = "0" if n == 0 else v(ACC+16,16)
            lg.wait(toks[(n,1)]); I(f"{MFMA} {v(ACC,16)}, {v(b,4)}, {v(b+4,4)}, {c0}")
            for f in L[0:2]: f()
            lg.wait(toks[(n,2)]); I(f"{MFMA} {v(ACC+16,16)}, {v(b,4)}, {v(b+8,4)}, {c1}")
            for f in L[2:3]: f()
            lg.wait(toks[(n,3)]); I(f"{MFMA} {v(ACC+16,16)}, {v(b+12,4)}, {v(b+4,4)}, {v(ACC+16,16)}")
            for f in L[3:4]: f()
            if n == PUBN:
                vm.wait(tc0); self.barrier(); self.publish(46); self.publish(47)
                if P0: seen()
            if n >= PUBN and n < 14:
                for _ in range(-(-len(wl) // (14 - n))): wl.pop(0)()
            if n == self.o.get("p1", 12): tc1 = self.poll_issue(VP, VPA, "s53")
            if n == 14 and P0: early(0, NCX - 2, 1)
        assert not wl
        I(f"s_add_u32 s43, s51, {HB}"); I(f"v_add_u32 v{T+2}, s43, v{VL16}")
        self.barrier()
        for i in range(8):
            I(f"ds_write_b128 v{T+2}, {v(ACC+4*i,4)} offset:{1024*i}"); lg.issue()
        I(f"s_lshl_b32 s43, s{SC}, 15"); I(f"s_lshl_b32 s44, s{SJ}, 11"); I("s_add_u32 s43, s43, s44"); I(f"s_add_u32 s43, s43, {HB}"); I(f"v_add_u32 v{T+2}, s43, v{VL16}")
        I(f"s_and_b32 s43, s{SJ}, 1"); I("s_mul_i32 s44, s43, 3072"); I(f"s_lshr_b32 s45, s{SJ}, 1"); I("s_lshl_b32 s41, s45, 9")
        I("s_add_u32 s44, s44, s41"); I(f"s_add_u32 s44, s44, s{SB}"); I("s_add_u32 s44, s44, 520")
        I(f"v_lshl_add_u32 v{T+3}, v{T}, 4, s44"); I(f"v_lshlrev_b32 v{VA}, 3, v{T+1}"); I(f"v_sub_u32 v{T+3}, v{T+3}, v{VA}")
        I(f"v_lshlrev_b32 v{VB}, 6, v{T}"); I(f"v_lshl_add_u32 v{VB}, v{T+1}, 4, v{VB}")
        I("s_lshl_b32 s45, s45, 11"); I("s_lshl_b32 s43, s43, 5"); I("s_add_u32 s45, s45, s43"); I(f"s_lshl_b32 s43, s{SC}, 12"); I("s_add_u32 s45, s45, s43")
        I(f"s_add_u32 s45, s45, {YB}"); I(f"v_add_u32 v{VB}, s45, v{VB}")
        I("s_lshl_b32 s43, s55, 16"); I("s_and_b32 s44, s55, 0xffff0000"); I(f"s_cmp_eq_u32 s{SC}, 0"); I("s_cselect_b32 s55, s43, s44")
        lg.wait(lg.issued); self.barrier()
        self.stamp(12)
        for p in range(4):
            for gq in range(2):
                I(f"ds_read_b128 {v(RD_+8*p+4*gq,4)}, v{T+2} offset:{8192*p+1024*gq}"); lg.issue()
        for gq in range(2):
            I(f"ds_read_b64 {v(ACC+2*gq,2)}, v{T+3} offset:{1536*gq}"); lg.issue()
        lk = a.label("SK"); I("s_cmp_lg_u32 s50, 0"); I(f"s_cbranch_scc1 {lk}")
        sv = self.save(); vm.wait(tc1); seen(); self.restore(sv); early(0, NCX - 2, 1)
        a.L(lk)
        early(NCX - 2, NCX, 2)
        lg.wait(lg.issued)
        for i in range(0, 8, 2):
            I(f"v_pk_add_f32 {v(RD_+i,2)}, {v(RD_+i,2)}, {v(RD_+8+i,2)}"); I(f"v_pk_add_f32 {v(RD_+16+i,2)}, {v(RD_+16+i,2)}, {v(RD_+24+i,2)}")
        for i in range(0, 8, 2): I(f"v_pk_add_f32 {v(RD_+i,2)}, {v(RD_+i,2)}, {v(RD_+16+i,2)}")
        for gq in range(2):
            for r in range(4):
                srcr = ACC + 2*gq + (1 - (r >> 1))
                I(f"v_lshlrev_b32 v{ACC+8}, 16, v{srcr}" if r & 1 else f"v_and_b32 v{ACC+8}, 0xffff0000, v{srcr}")
                I(f"v_fma_f32 v{RD_+4*gq+r}, v{ACC+8}, s55, v{RD_+4*gq+r}")
        for i in range(4): I(f"v_cvt_pk_bf16_f32 v{ACC+12+i}, v{RD_+2*i}, v{RD_+2*i+1}")
        I(f"v_permlane32_swap_b32 v{ACC+12}, v{ACC+14}"); I(f"v_permlane32_swap_b32 v{ACC+13}, v{ACC+15}")
        I(f"ds_write_b128 v{VB}, {v(ACC+12,4)}"); lg.issue()
        lg.wait(lg.issued); self.barrier()
        ly = a.label("NY")
        I(f"s_cmp_lg_u32 s{SW}, 0"); I(f"s_cbranch_scc1 {ly}")
        I(f"v_add_u32 v{T}, {YB}, v{VL16}")
        for i in range(8): I(f"ds_read_b128 {v(RD_+4*i,4)}, v{T} offset:{1024*i}")
        I(f"s_lshl_b32 s44, s{SF}, 13"); I(f"s_add_u32 s44, s44, {YT_OFF}"); I("s_add_u32 s45, s44, 4096")
        I("s_waitcnt lgkmcnt(0)")
        for i in range(8): I(f"buffer_store_dwordx4 {v(RD_+4*i,4)}, v{VL16}, s[{RWS}:{RWS+3}], s{44+(i>>2)} offen offset:{1024*(i&3)}{self.st}")
        a.L(ly)
        ll = a.label("NL")
        I("s_cmp_eq_u32 s50, 3"); I(f"s_cbranch_scc1 {ll}")
        self.poll_check(VP, VPA, "s53", 1)
        for i in range(NCX): cload(i)
        a.L(ll)
        self.stamp(6)
        YT = self.XB
        lrd = {}; ypub = False; ymark = vm.issued; free = []; fresh = []; nw = NW; nw2 = NW + NL; nc = NCX
        for i in range(32):
            if i % 4 == 0 and self.o.get("ostamp"): self.stamp(17 + i // 4)
            if i == 14:
                I(f"s_lshl_b32 s53, s57, 7"); I(f"s_lshl_b32 s42, s{SW}, 4"); I("s_add_u32 s53, s53, s42"); I(f"s_add_u32 s53, s53, {FY_OFF}")
                tf = self.poll_issue(VP, VPA, "s53")
            if i == 24:
                vm.wait(tf); self.poll_check(VP, VPA, "s53", 1)
                I(f"v_lshrrev_b32 v{T}, 3, v0"); I(f"v_and_b32 v{T+1}, 7, v0"); I(f"v_lshlrev_b32 v{T+1}, 4, v{T+1}")
                I(f"v_lshl_add_u32 v{T}, v{T}, 12, v{T+1}")
                I(f"s_add_u32 m0, s{SWK}, {YT}")
                I(f"s_lshl_b32 s44, s57, 18"); I(f"s_lshl_b32 s45, s{SW}, 15"); I("s_add_u32 s44, s44, s45")
                I(f"s_lshl_b32 s45, s56, 7"); I("s_add_u32 s44, s44, s45"); I(f"s_add_u32 s44, s44, {YT_OFF}")
                I(f"buffer_load_dwordx4 v{T}, s[{RWS}:{RWS+3}], s44 offen{self.ld} lds"); vm.issue()
                I(f"v_and_b32 v{T+1}, 15, v0"); I(f"s_lshr_b32 s48, s{SW}, 1"); I("s_lshl_b32 s48, s48, 4")
                I(f"s_lshl_b32 s45, s56, 6"); I("s_add_u32 s45, s45, s48"); I(f"v_add_u32 v{T+1}, s45, v{T+1}")
                I(f"v_lshlrev_b32 v{T+2}, 2, v{T+1}"); I(f"s_mov_b32 s45, {G_OFF}")
                I(f"buffer_load_dword v{GR}, v{T+2}, s[{RWS}:{RWS+3}], s45 offen{self.ld}"); vm.issue()
                I(f"v_lshrrev_b32 v{T+2}, 4, v0"); I(f"v_lshlrev_b32 v{T+2}, 4, v{T+2}"); I(f"v_lshl_add_u32 v{VO}, v{T+1}, 10, v{T+2}")
                I(f"s_and_b32 s49, s{SW}, 1"); I("s_lshl_b32 s49, s49, 6"); I(f"s_lshl_b32 s45, s57, 7"); I("s_add_u32 s49, s49, s45")
                I(f"buffer_load_dwordx4 {v(XR,4)}, v{VO}, s[{RD}:{RD+3}], s49 offen"); vm.issue()
            vm.wait(max(ctok[i], wtok.get(i, 0)))
            if i in lrd: lg.wait(lrd[i])
            if not ypub and vm.done > ymark:
                ypub = True
                I(f"s_lshl_b32 s44, s{SF}, 2"); I(f"s_add_u32 s44, s44, {FY_OFF}"); self.publish(44, 3)
            for mt in range(2):
                for st in range(2):
                    d = v(OACC + 16*(2*mt+st), 16)
                    I(f"{MFMA} {d}, {v(wslot[i]+4*mt,4)}, {v(cslot[i]+4*st,4)}, {'0' if i == 0 else d}")
            lagged, fresh = fresh, [wslot[i], cslot[i]]
            free += fresh
            while free:
                if nw < NW + NL and nw - i <= 3:
                    j = nw - NW; assert vm.done >= ltok[j]
                    r = free.pop(0); wslot[nw] = r
                    I("s_nop 3")
                    for mt in range(2):
                        I(f"ds_read_b128 {v(r+4*mt,4)}, v{VLW} offset:{j*2048+mt*1024}"); lrd[nw] = lg.issue()
                    nw += 1
                elif nc < 32 and (nc <= nw2 or nw2 >= 32):
                    cslot[nc] = free.pop(0); cload(nc); nc += 1
                elif nw2 < 32:
                    wslot[nw2] = free.pop(0); self.wload(nw2); nw2 += 1
                else: break
        self.stamp(7)
        I(f"v_and_b32 v{T}, 31, v0"); I(f"v_lshrrev_b32 v{T+1}, 5, v0"); I(f"v_and_b32 v{T+2}, 15, v0")
        I(f"v_lshlrev_b32 v{T+1}, 1, v{T+1}")
        I(f"v_xor_b32 v{T+1}, v{T+1}, v{T+2}"); I(f"v_lshlrev_b32 v{T+1}, 4, v{T+1}"); I(f"v_lshl_add_u32 v{T}, v{T}, 8, v{T+1}")
        I(f"v_add_u32 v{T}, s51, v{T}")
        for mt in range(2):
            for gq in range(4):
                I(f"v_xor_b32 v{T+1}, {(4*gq+mt)*16}, v{T}"); I(f"v_add_u32 v{T+3}, 0x10000, v{T+1}")
                for st in range(2):
                    I(f"ds_write_b128 v{T+1+2*st}, {v(OACC+16*(2*mt+st)+4*gq,4)}"); lg.issue()
        I(f"v_lshrrev_b32 v{T}, 4, v0"); I(f"s_and_b32 s41, s{SW}, 1"); I("s_lshl_b32 s42, s41, 3")
        I(f"v_lshl_add_u32 v{T+1}, v{T}, 1, s42"); I(f"v_xor_b32 v{T+1}, v{T+1}, v{T+2}"); I(f"v_lshlrev_b32 v{T+1}, 4, v{T+1}")
        I("s_and_b32 s43, s48, 16"); I(f"v_add_u32 v{T+3}, s43, v{T+2}"); I(f"v_lshl_add_u32 v24, v{T+3}, 8, v{T+1}")
        I("s_lshr_b32 s43, s48, 5"); I("s_lshl_b32 s43, s43, 16"); I("v_add_u32 v24, s43, v24"); I("v_xor_b32 v25, 16, v24")
        I("s_lshl_b32 s42, s41, 5"); I(f"v_lshl_add_u32 v{T}, v{T}, 3, s42"); I(f"v_bfe_u32 v{T+1}, v0, 2, 2")
        I(f"v_add_u32 v{T}, v{T}, v{T+1}"); I(f"v_lshlrev_b32 v{T}, 7, v{T}"); I(f"v_and_b32 v{T+1}, 3, v0")
        I(f"v_lshl_add_u32 v{T}, v{T+1}, 3, v{T}"); I("s_lshl_b32 s42, s48, 1"); I(f"s_add_u32 s42, s42, {YT}"); I(f"v_add_u32 v28, s42, v{T}")
        self.sync_all()
        CX = 128; tk = []
        I(f"ds_read_b64_tr_b16 {v(100,2)}, v28"); lg.issue()
        I(f"ds_read_b64_tr_b16 {v(102,2)}, v28 offset:512"); ty2 = lg.issue()
        for p in range(8):
            for hh in range(2):
                I(f"ds_read_b128 {v(CX+8*p+4*hh,4)}, v{24+hh} offset:{8192*p}"); lg.issue()
            tk.append(lg.issued)
            if p == 5:
                lg.wait(ty2)
                for e in range(8):
                    if e & 1: I(f"v_and_b32 v104, 0xffff0000, v{XR+(e>>1)}"); I(f"v_and_b32 v105, 0xffff0000, v{100+(e>>1)}")
                    else: I(f"v_lshlrev_b32 v104, 16, v{XR+(e>>1)}"); I(f"v_lshlrev_b32 v105, 16, v{100+(e>>1)}")
                    I(f"v_mul_f32 v{112+e}, v104, v105"); I(f"v_mul_f32 v{112+e}, v{112+e}, v{GR}")
                I(f"v_sub_f32 v{GR}, 1.0, v{GR}")
        for p in range(1, 8):
            lg.wait(tk[p])
            for e in range(0, 8, 2): I(f"v_pk_add_f32 {v(CX+e,2)}, {v(CX+e,2)}, {v(CX+8*p+e,2)}")
        for e in range(8): I(f"v_fmac_f32 v{112+e}, v{CX+4*(e&1)+(e>>1)}, v{GR}")
        for e in range(4): I(f"v_cvt_pk_bf16_f32 v{108+e}, v{112+2*e}, v{112+2*e+1}")
        I(f"buffer_store_dwordx4 {v(108,4)}, v{VO}, s[{RC}:{RC+3}], s49 offen{' sc1' if not self.o.get('outpl') else ' nt' if self.o.get('outnt') else ''}"); vm.issue()
        self.stamp(16)
        if self.o.get("echo"):
            lp = a.label("EC")
            I("s_sub_u32 s100, s100, s96"); I("s_memrealtime s[96:97]"); I("s_waitcnt lgkmcnt(0)")
            a.L(lp)
            I("s_memrealtime s[98:99]"); I("s_waitcnt lgkmcnt(0)"); I("s_sub_u32 s98, s98, s96"); I("s_cmp_lt_u32 s98, s100"); I(f"s_cbranch_scc1 {lp}")
        if self.o.get("dbgout") is not None:
            l = a.label("DB")
            I(f"s_cmp_lg_u32 s2, {self.o['dbgout']}"); I(f"s_cbranch_scc1 {l}"); I(f"s_cmp_lg_u32 s{SW}, 0"); I(f"s_cbranch_scc1 {l}")
            I("s_waitcnt vmcnt(0)")
            order = [0, 1, 2, 3, 8, 10, 11, 4, 5, 12, 6, 7, 16]
            I("v_mov_b32 v20, 0")
            for j, i in enumerate(order):
                I(f"s_mov_b32 s44, {4*i}"); I(f"v_writelane_b32 v20, s44, {j}")
            I(f"s_lshl_b32 s44, s2, 11"); I(f"s_add_u32 s44, s44, {STAMP_OFF}")
            I(f"buffer_load_dword v21, v20, s[{RWS}:{RWS+3}], s44 offen sc1"); I("s_waitcnt vmcnt(0)")
            I("v_readfirstlane_b32 s45, v21"); I("v_subrev_u32 v21, s45, v21")
            self.srd(RDBG, "dbg", 64); I("v_lshlrev_b32 v22, 2, v0")
            I(f"buffer_store_dword v21, v22, s[{RDBG}:{RDBG+3}], 0 offen")
            a.L(l)

def build(opts):
    g = G(opts); k = NAME + "_kernel"
    g.begin(k); g.proj(); g.attn(); g.tailp(); g.end(); g.attn_rare(); g.a.L("CODE_END"); g.a.I("s_endpgm")
    n = g.a.fix_hazards()
    txt = "; @launch grid=(256,1,1) block=(512,1,1) lds=163840\n"
    txt += '.amdgcn_target "amdgcn-amd-amdhsa--gfx950"\n.text\n' + g.a.text()
    txt += f""".section .rodata,"a"
.p2align 6
.amdhsa_kernel {k}
  .amdhsa_next_free_vgpr 256
  .amdhsa_next_free_sgpr 102
  .amdhsa_accum_offset 256
  .amdhsa_group_segment_fixed_size 0
  .amdhsa_kernarg_size 128
  .amdhsa_user_sgpr_count 2
  .amdhsa_user_sgpr_kernarg_segment_ptr 1
  .amdhsa_system_sgpr_workgroup_id_x 1
.end_amdhsa_kernel
"""
    print(f"instructions {sum(1 for it in g.a.items if it[0] == 'i')}, nops inserted {n}", file=sys.stderr)
    return txt

if __name__ == "__main__":
    opts = {}
    for x in sys.argv[2:]:
        if "=" in x: k_, v_ = x.split("="); opts[k_] = int(v_)
        else: opts[x] = True
    open(sys.argv[1], "w").write(build(opts))
```

```python
import sys, math, struct
sys.path.insert(0, "gen")
from asmlib import *

NAME = "gated_mix__ssm_conv_h3__compressed_kv_cla__prompt"
MB = 1 << 20
KV_OFF, Q_OFF, CTX_OFF, KVT_OFF, YT_OFF, G_OFF = 0, 32*MB, 48*MB, 64*MB, 66*MB, 68*MB
WOT_OFF = 32*MB
FLG_OFF = 68*MB + 65536
FK_OFF, FY_OFF, FC_OFF = FLG_OFF, FLG_OFF + 4096, FLG_OFF + 8192
STAMP_OFF = 69*MB
WS_SIZE = 70*MB
P = dict(q=64, k=66, v=68, shift=70, ssmk=72, ssmD=74, bx=76, ckv=78, wq=80, wuk=82, wuv=84, wo=86, gate=88, out=90, dbg=92, ws=94)
SW, SHEAD, SIDX, SWK, SF = 3, 4, 5, 6, 7
RA, RB, RC, RWS, RD, RE, RT, RDBG = 8, 12, 16, 20, 24, 28, 56, 60
MFMA = "v_mfma_f32_32x32x16_bf16"
LOG2E = 1.4426950408889634
F_KV, F_CA, F_CB, F_Y = 1, 2, 4, 8
def f2u(x): return "0x%08x" % struct.unpack("<I", struct.pack("<f", x))[0]
def rep4(b): return b * 0x01010101

class G:
    def __init__(self, opts):
        self.a = Asm(); self.o = opts
        self.vm = Cnt(self.a, "vmcnt", 63); self.lg = Cnt(self.a, "lgkmcnt", 15)
        self.st = "" if opts.get("plainst") else (" sc1 nt" if opts.get("ntst") else " sc1"); self.ld = "" if opts.get("plainld") else " sc1"
    def I(self, t): self.a.I(t)
    def srd(self, r, ptr, nbytes):
        I = self.I
        I(f"s_mov_b32 s{r}, s{P[ptr]}"); I(f"s_mov_b32 s{r+1}, s{P[ptr]+1}")
        I(f"s_mov_b32 s{r+2}, {nbytes}"); I(f"s_mov_b32 s{r+3}, 0x00020000")
    def save(self): return (self.vm.issued, self.vm.done, self.lg.issued, self.lg.done)
    def restore(self, s_): self.vm.issued, self.vm.done, self.lg.issued, self.lg.done = s_
    def stream(self, mf, fills):
        n = len(mf); slots = [[] for _ in range(n + 1)]
        for (s0, e0, cl) in fills:
            m = e0 - s0
            for j, c in enumerate(cl): slots[s0 + 1 + (j * m) // len(cl)].append(c)
        for c in slots[0]: c()
        for i in range(n):
            mf[i]()
            for c in slots[i+1]: c()
    def stamp(self, i, dyn=None):
        if self.o.get("echo") == i:
            self.I("s_memrealtime s[100:101]"); self.I("s_waitcnt lgkmcnt(0)")
        if not self.o.get("stamp"): return
        I = self.I
        I("s_memrealtime s[96:97]"); I("s_memtime s[100:101]")
        I("s_lshl_b32 s98, s2, 3"); I(f"s_add_u32 s98, s98, s{SW}"); I("s_lshl_b32 s98, s98, 8")
        I(f"s_add_u32 s98, s98, {STAMP_OFF + 4*i}")
        if dyn is not None:
            I(f"s_lshl_b32 s99, s{dyn}, 4"); I("s_add_u32 s98, s98, s99")
        I("s_waitcnt lgkmcnt(0)")
        I("v_mov_b32 v2, s96"); I("v_mov_b32 v3, 0")
        I(f"buffer_store_dword v2, v3, s[{RWS}:{RWS+3}], s98 offen")
        I("v_mov_b32 v2, s100")
        I(f"buffer_store_dword v2, v3, s[{RWS}:{RWS+3}], s98 offen offset:128")
    OOB = 0x40000000
    def publish(self, soff, val=1, srd=RWS, byte=False, idx=None):
        I = self.I
        self.oob_sel()
        if idx is not None: I(f"s_cmp_eq_u32 s{SIDX}, {idx}"); I(f"s_cselect_b32 s99, s99, {self.OOB}")
        I(f"v_mov_b32 v2, {val}"); I("v_mov_b32 v3, s99")
        I(f"buffer_store_{'byte' if byte else 'dword'} v2, v3, s[{srd}:{srd+3}], s{soff} offen sc1"); self.vm.issue()
    def oob_sel(self):
        self.I(f"s_cmp_eq_u32 s{SW}, 0"); self.I(f"s_cselect_b32 s99, 0, {self.OOB}")
    def poll_issue(self, vd, vaddr, soff, srd=RWS):
        self.I(f"buffer_load_dword v{vd}, v{vaddr}, s[{srd}:{srd+3}], {soff} offen sc1"); return self.vm.issue()
    def poll_check(self, vd, vaddr, soff, want, srd=RWS):
        a = self.a; I = self.I
        l = a.label("PCK"); lp = a.label("POLL")
        I(f"s_mov_b32 s98, {want}"); I("s_mov_b32 s99, 20000")
        a.L(lp)
        I(f"v_and_b32 v{vd}, s98, v{vd}"); I(f"v_cmp_ne_u32 vcc, s98, v{vd}"); I(f"s_cbranch_vccz {l}")
        I("s_sleep 2")
        I(f"buffer_load_dword v{vd}, v{vaddr}, s[{srd}:{srd+3}], {soff} offen sc1")
        I("s_sub_u32 s99, s99, 1"); I("s_cmp_lg_u32 s99, 0"); I("s_waitcnt vmcnt(0)"); I(f"s_cbranch_scc1 {lp}")
        a.L(l)
    def barrier(self): self.I("s_barrier")
    def sync_all(self):
        self.I("s_waitcnt vmcnt(0) lgkmcnt(0)"); self.vm.mark_all_done(); self.lg.mark_all_done(); self.barrier()

    def begin(self, kname):
        a = self.a; I = self.I
        a.T(f".globl {kname}\n.p2align 8\n.type {kname},@function"); a.L(kname)
        self.endl = a.label("END")
        if self.o.get("stamp"): I("s_memrealtime s[30:31]")
        if self.o.get("echo"): I("s_memrealtime s[96:97]")
        I("s_load_dwordx16 s[64:79], s[0:1], 0"); I("s_load_dwordx16 s[80:95], s[0:1], 64")
        I("s_cmp_ge_u32 s2, 256"); I(f"s_cbranch_scc1 {self.endl}")
        I("v_lshrrev_b32 v1, 6, v0"); I("v_and_b32 v0, 63, v0"); I(f"v_readfirstlane_b32 s{SW}, v1")
        I("s_and_b32 s7, s2, 7"); I("s_lshl_b32 s7, s7, 2")
        I(f"s_lshr_b32 s{SIDX}, s2, 3"); I(f"s_lshr_b32 s{SHEAD}, s{SIDX}, 3"); I(f"s_add_u32 s{SHEAD}, s{SHEAD}, s7")
        I(f"s_and_b32 s{SIDX}, s{SIDX}, 7"); I(f"s_lshl_b32 s{SWK}, s{SW}, 10")
        I(f"s_lshl_b32 s{SF}, s{SHEAD}, 3"); I(f"s_add_u32 s{SF}, s{SF}, s{SIDX}")
    def end(self):
        self.a.L(self.endl); self.I("s_endpgm")

    def proj(self):
        a = self.a; I = self.I; vm = self.vm; lg = self.lg
        PREP = 114688; QA_LDS = 65536
        ACCS = [64, 128]
        FX = [16, 32]; FW = [24, 40]
        VXA = 4; VWA = 8; VOX, VOW = 10, 11; VST = 12; VXH = 48
        T = 192
        I("v_lshrrev_b32 v13, 3, v0"); I(f"s_lshl_b32 s40, s{SW}, 3"); I("v_add_u32 v13, s40, v13"); I("v_lshlrev_b32 v13, 10, v13")
        I("v_lshrrev_b32 v14, 4, v0"); I(f"s_and_b32 s40, s{SW}, 1"); I("s_lshl_b32 s40, s40, 2"); I("v_add_u32 v15, s40, v14")
        I("v_and_b32 v3, 7, v0"); I("v_xor_b32 v15, v15, v3"); I(f"v_lshl_add_u32 v{VOX}, v15, 4, v13")
        I(f"s_lshl_b32 s40, s{SW}, 2"); I("v_add_u32 v13, s40, v14"); I("v_lshlrev_b32 v13, 13, v13")
        I("v_lshlrev_b32 v15, 2, v14"); I("v_and_b32 v3, 15, v0"); I("v_xor_b32 v15, v15, v3")
        I("v_lshl_add_u32 v13, v15, 4, v13"); I(f"s_lshl_b32 s40, s{SHEAD}, 8"); I(f"v_add_u32 v{VOW}, s40, v13")
        I(f"v_lshlrev_b32 v{VST}, 4, v0")
        I(f"s_lshl_b32 s44, s{SIDX}, 18")
        for i in range(1, 4): I(f"s_add_u32 s{44+i}, s44, {65536*i}")
        I("s_waitcnt lgkmcnt(0)")
        if self.o.get("stamp"): I("s_memrealtime s[28:29]")
        self.srd(RA, "ckv", 2*MB); self.srd(RB, "wuk", 4*MB)
        W4 = self.o.get("w4", 1); REV = self.o.get("rev", 1)
        def chunk(t): return 15 - t if (REV and 8 <= t < 16) else t & 7
        def xbase(t):
            if REV and t < 8: return (32768, 131072, 0)[(15 - t) % 3]
            return (32768, 131072, 0)[t % 3]
        def wbase(t): return 65536 + (t % (4 if W4 else 3))*16384
        def dma_w(t):
            L = []
            if t > 23: return L
            ph, tt = t >> 3, chunk(t)
            for i in range(2):
                def f(i=i):
                    I(f"s_add_u32 m0, s{SWK}, {wbase(t) + i*8192}"); I(f"s_mov_b32 s41, {tt*524288 + i*262144}")
                    r = (RB, RC, RE)[ph]
                    I(f"buffer_load_dwordx4 v{VOW}, s[{r}:{r+3}], s41 offen lds"); vm.issue()
                L.append(f)
            return L
        def dma_x(t):
            L = []
            if t > 23 or (REV and 8 <= t <= 10): return L
            ph, tt = t >> 3, chunk(t)
            for i in range(4):
                def f(i=i):
                    I(f"s_add_u32 m0, s{SWK}, {xbase(t) + i*8192}"); I(f"s_add_u32 s41, s{(48 if ph == 2 else 44)+i}, {tt*128}")
                    r = RD if ph == 2 else RA
                    I(f"buffer_load_dwordx4 v{VOX}, s[{r}:{r+3}], s41 offen lds"); vm.issue()
                L.append(f)
            return L
        def dma_list(t):
            def mk(): dtok[t] = vm.issued
            if not W4: return dma_w(t) + dma_x(t) + [mk]
            return (dma_w(t) if t < 3 else []) + dma_x(t) + [mk] + (dma_w(t+1) if t >= 2 else [])
        dtok = {}
        for f in dma_list(0): f()
        self.srd(RWS, "ws", WS_SIZE); self.srd(RDBG, "dbg", 256); self.srd(RC, "wuv", 4*MB)
        self.stamp(31)
        if self.o.get("stamp"):
            I("v_mov_b32 v2, s30"); I("s_sub_u32 s98, s98, 124"); I(f"buffer_store_dword v2, v3, s[{RWS}:{RWS+3}], s98 offen")
            I("v_mov_b32 v2, s28"); I(f"buffer_store_dword v2, v3, s[{RWS}:{RWS+3}], s98 offen offset:120")
        I(f"s_lshl_b32 s48, s{SIDX}, 17"); I("s_add_u32 s49, s48, 65536")
        I(f"s_sub_u32 s50, 15, s{SIDX}"); I("s_lshl_b32 s50, s50, 17"); I("s_add_u32 s51, s50, 65536")
        I(f"s_and_b32 s42, s{SW}, 3"); I("s_lshl_b32 s42, s42, 6"); I(f"s_lshr_b32 s43, s{SW}, 2"); I("s_lshl_b32 s43, s43, 1")
        I("v_and_b32 v13, 31, v0"); I("v_add_u32 v13, s42, v13")
        I("v_lshrrev_b32 v14, 1, v13"); I("v_and_b32 v14, 7, v14"); I("v_lshrrev_b32 v15, 5, v0")
        I("v_xor_b32 v14, v14, v15"); I("v_lshlrev_b32 v14, 4, v14"); I(f"v_lshl_add_u32 v{VXA}, v13, 7, v14")
        for k in range(1, 4): I(f"v_xor_b32 v{VXA+k}, {k<<5}, v{VXA}")
        for k in range(4): I(f"v_add_u32 v{VXH+k}, 0x20000, v{VXA+k}")
        I("v_bfe_u32 v13, v0, 2, 2"); I("v_lshl_add_u32 v14, v15, 3, v13"); I("v_lshlrev_b32 v14, 8, v14")
        I("v_bfe_u32 v15, v0, 4, 1"); I("v_lshl_add_u32 v14, v15, 5, v14")
        I("v_and_b32 v15, 3, v0"); I("v_lshl_add_u32 v14, v15, 3, v14"); I("v_add_u32 v14, 0x10000, v14")
        I("v_xor_b32 v13, s43, v13"); I(f"v_lshl_add_u32 v{VWA}, v13, 6, v14"); I(f"v_xor_b32 v{VWA+1}, 64, v{VWA}")
        I(f"s_lshl_b32 s54, s{SHEAD}, 4"); I(f"s_lshl_b32 s55, s{SIDX}, 1"); I("s_add_u32 s54, s54, s55")
        I(f"s_bfe_u32 s55, s{SW}, 0x10001"); I("s_add_u32 s54, s54, s55"); I("s_lshl_b32 s54, s54, 16")
        I(f"s_and_b32 s55, s{SW}, 1"); I("s_lshl_b32 s55, s55, 14"); I("s_add_u32 s54, s54, s55")
        I("s_lshl_b32 s55, s43, 10"); I("s_add_u32 s52, s54, s55"); I("s_add_u32 s52, s52, 0x8000")
        I("s_lshl_b32 s55, s43, 11"); I("s_add_u32 s54, s54, s55")

        if self.o.get("hotst"):
            I(f"s_and_b32 s54, s54, {self.o['hotst']*MB-1}"); I(f"s_and_b32 s52, s52, {self.o['hotst']*MB-1}")
        XG = T; GW = T + 4; hl = {}
        def gate_loads():
            L = []
            def E(t): L.append(lambda: I(t))
            def V(t):
                def f(): I(t); hl["t"] = vm.issue()
                L.append(f)
            E(f"s_lshl_b32 s40, s{SHEAD}, 7"); E(f"s_lshl_b32 s39, s{SIDX}, 2"); E("s_add_u32 s40, s40, s39"); E(f"s_add_u32 s40, s40, {FK_OFF}")
            E(f"v_mov_b32 v13, s40")
            E(f"s_lshr_b32 s39, s{SHEAD}, 2"); E("s_lshl_b32 s39, s39, 7"); E(f"s_and_b32 s40, s{SHEAD}, 3"); E("s_lshl_b32 s40, s40, 2"); E("s_add_u32 s39, s39, s40")
            E(f"s_lshl_b32 s40, s{SIDX}, 10"); E("s_add_u32 s40, s40, s39"); E(f"s_add_u32 s40, s40, {FC_OFF}")
            E("v_writelane_b32 v13, s40, 1")
            E(f"s_sub_u32 s40, 15, s{SIDX}"); E("s_lshl_b32 s40, s40, 10"); E("s_add_u32 s40, s40, s39"); E(f"s_add_u32 s40, s40, {FC_OFF}")
            E("v_writelane_b32 v13, s40, 2")
            E(f"s_lshl_b32 s40, s{SF}, 2"); E(f"s_add_u32 s40, s40, {FY_OFF}"); E("v_writelane_b32 v13, s40, 3"); E("v_mov_b32 v14, 0")
            def oo(): self.oob_sel(); I("v_add_u32 v13, s99, v13")
            L.append(oo)
            V(f"buffer_store_dword v14, v13, s[{RWS}:{RWS+3}], 0 offen sc1")
            E("s_lshl_b32 s37, s2, 3"); E(f"s_add_u32 s37, s37, s{SW}"); E("s_lshl_b32 s38, s37, 10")
            L.append(lambda: self.srd(RD, "q", 2*MB)); L.append(lambda: self.srd(RE, "wq", 4*MB)); L.append(lambda: self.srd(RT, "gate", 1024))
            V(f"buffer_load_dwordx4 {v(XG,4)}, v{VST}, s[{RD}:{RD+3}], s38 offen")
            V(f"buffer_load_dwordx4 {v(GW,4)}, v{VST}, s[{RT}:{RT+3}], 0 offen")
            return L
        def gate_ops():
            L = []; E = lambda t: L.append(lambda: I(t)); Z = T + 8
            L.append(lambda: vm.wait(hl["t"]))
            E(f"v_dot2_f32_bf16 v{Z}, v{XG}, v{GW}, 0")
            for i in range(1, 4): E(f"v_dot2_f32_bf16 v{Z}, v{XG+i}, v{GW+i}, v{Z}")
            for m in ("quad_perm:[1,0,3,2] row_mask:0xf", "quad_perm:[2,3,0,1] row_mask:0xf", "row_half_mirror row_mask:0xf", "row_mirror row_mask:0xf",
                      "row_bcast:15 row_mask:0xa", "row_bcast:31 row_mask:0xc"):
                E(f"v_add_f32_dpp v{Z}, v{Z}, v{Z} {m} bank_mask:0xf")
            E(f"v_readlane_b32 s36, v{Z}, 63"); E(f"v_mov_b32 v{Z+1}, {f2u(-LOG2E)}"); E(f"v_mul_f32 v{Z}, s36, v{Z+1}")
            E(f"v_exp_f32 v{Z}, v{Z}"); E(f"v_add_f32 v{Z}, 1.0, v{Z}"); E(f"v_rcp_f32 v{Z}, v{Z}")
            E("s_lshl_b32 s38, s37, 2"); E(f"s_add_u32 s38, s38, {G_OFF}"); E(f"v_mov_b32 v{Z+1}, 0")
            def gs():
                I(f"buffer_store_dword v{Z}, v{Z+1}, s[{RWS}:{RWS+3}], s38 offen{self.st}"); vm.issue()
            L.append(gs)
            return L
        def reads(t, k):
            st = k & 1; toks = {}
            xb = xbase(t); va = VXA if xb < 65536 else VXH
            def rx(mt):
                I(f"ds_read_b128 {v(FX[st]+4*mt,4)}, v{va+k} offset:{(xb & 65535)+mt*4096}"); toks[("x",mt)] = lg.issue()
            def rw(dt, h):
                I(f"ds_read_b64_tr_b16 {v(FW[st]+4*dt+2*h,2)}, v{VWA+dt} offset:{wbase(t)-65536+k*4096+h*1024}"); toks[("w",dt)] = lg.issue()
            return [lambda: rx(0), lambda: rw(0,0), lambda: rw(0,1), lambda: rw(1,0), lambda: rw(1,1), lambda: rx(1)], toks
        def mfs(t, k, toks):
            st = k & 1; L = []; ph = t >> 3; acc = ACCS[ph & 1]; first = (t & 7) == 0 and k == 0
            for mt in range(2):
                for dt in range(2):
                    def f(mt=mt, dt=dt):
                        lg.wait(max(toks[("x",mt)], toks[("w",dt)]))
                        d = v(acc + 16*(2*mt+dt), 16); X = v(FX[st]+4*mt,4); W = v(FW[st]+4*dt,4)
                        c = "0" if first else d
                        I(f"{MFMA} {d}, {X}, {W}, {c}" if ph == 1 else f"{MFMA} {d}, {W}, {X}, {c}")
                    L.append(f)
            return L
        def kv_out(ph):
            acc = ACCS[ph & 1]; out = []
            for tile in range(4):
                rt, dt = tile >> 1, tile & 1; b = acc + 16*tile
                for half in range(2):
                    pk = [lambda i=i, b=b: I(f"v_cvt_pk_bf16_f32 v{b+i}, v{b+2*i}, v{b+2*i+1}") for i in range(4*half, 4*half+4)]
                    if ph == 0: pk = [lambda i=i, b=b: I(f"v_mul_f32 v{b+i}, {f2u(LOG2E / math.sqrt(128.0))}, v{b+i}") for i in range(8*half, 8*half+8)] + pk
                    off = rt*8192 + (dt*2048 + half*1024 if ph == 0 else half*4096 + dt*1024)
                    def st(b=b, half=half, off=off):
                        if self.o.get("nost"): return
                        I(f"s_add_u32 s41, s{(54, 52)[ph]}, {off}")
                        I(f"buffer_store_dwordx4 {v(b+4*half,4)}, v{VST}, s[{RWS}:{RWS+3}], s41 offen{self.st}"); vm.issue()
                    out.append(pk + [st])
            return out
        side = {}; late = {}
        def spread(ops, t0, t1):
            sl = [(t, k) for t in range(t0, t1) for k in range(3)]
            n = len(ops)
            for j, key in enumerate(sl): side.setdefault(key, []).extend(ops[n*j//len(sl): n*(j+1)//len(sl)])
        KS = self.o.get("ks", 8); PG = self.o.get("pg", 0)
        spread(gate_loads(), PG, PG + 1); spread(gate_ops(), PG + 3, PG + 5)
        def wtouch(r, half, wv):
            def f():
                I(f"s_cmp_eq_u32 s{SW}, {wv}"); I(f"s_cselect_b32 s99, 0, {self.OOB}")
                I(f"s_lshl_b32 s40, s{SIDX}, 19"); I(f"s_lshl_b32 s39, s{SHEAD}, 8"); I("s_add_u32 s40, s40, s39"); I(f"s_add_u32 s40, s40, {half*32*8192}")
                I("v_lshrrev_b32 v3, 1, v0"); I("v_lshlrev_b32 v3, 13, v3"); I("v_and_b32 v2, 1, v0"); I("v_lshl_add_u32 v3, v2, 7, v3"); I("v_add_u32 v3, s99, v3")
                I(f"buffer_load_dword v1, v3, s[{r}:{r+3}], s40 offen"); vm.issue()
            return f
        t0 = self.o.get("wt", 1); t1 = self.o.get("wt2", 4)
        for j, (r, half) in enumerate(((RC, 0), (RC, 1), (RE, 0), (RE, 1)) if not self.o.get("nowt") else ()): side.setdefault(((t0 + j) if j < 2 else (t1 + j - 2), 2), []).append(wtouch(r, half, j))
        def xtouch(lo, hi):
            def f():
                I(f"s_sub_u32 s40, s{SW}, {lo}"); I(f"s_cmp_lt_u32 s40, {hi-lo}"); I(f"s_cselect_b32 s99, 0, {self.OOB}"); I("v_lshl_add_u32 v3, v0, 7, s99")
                I(f"s_bitcmp1_b32 s{SHEAD}, 1"); I("s_cselect_b32 s40, s50, s48"); I(f"s_and_b32 s41, s{SHEAD}, 1"); I("s_lshl_b32 s41, s41, 16"); I("s_add_u32 s40, s40, s41")
                I(f"s_lshl_b32 s41, s{SW}, 13"); I("s_add_u32 s40, s40, s41")
                I(f"buffer_load_dword v1, v3, s[{RD}:{RD+3}], s40 offen"); vm.issue()
            return f
        if self.o.get("xt") is not None:
            xt = self.o["xt"]; xn = self.o.get("xn", 4)
            for j in range(xn): side.setdefault((xt + j, 1), []).append(xtouch(8*j//xn, 8*(j+1)//xn))
        VS = self.o.get("vstages", 5)
        for ph, t0, t1 in ((0, KS, 16), (1, 16, 16 + VS)):
            pieces = kv_out(ph); sl = [(t, k) for t in range(t0, t1) for k in range(3)]
            for j, pc in enumerate(pieces):
                tt = t0 + (j * (t1 - t0)) // 8
                hh = len(pc) - 5
                side.setdefault((tt, 0), []).extend(pc[:hh]); side.setdefault((tt, 1), []).extend(pc[hh:-1]); late.setdefault(tt, []).append(pc[-1])
        QE = []; EQ = lambda t: QE.append(lambda: I(t))
        EQ(f"s_and_b32 s55, s{SW}, 2"); EQ("s_lshl_b32 s55, s55, 15"); EQ(f"s_add_u32 s55, s55, {QA_LDS}")
        EQ(f"s_and_b32 s54, s{SW}, 1"); EQ("s_lshl_b32 s54, s54, 14"); EQ("s_add_u32 s55, s55, s54")
        EQ("s_lshl_b32 s54, s43, 11"); EQ("s_add_u32 s55, s55, s54"); EQ(f"v_add_u32 v14, s55, v{VST}"); EQ("v_mov_b32 v54, v13")
        spread(QE, 23, 24)
        spread([lambda r=r: I(f"v_mov_b64 {v(192+2*r,2)}, 0") for r in range(32)], 22, 24)
        def fkoff():
            I(f"s_lshl_b32 s40, s{SHEAD}, 7"); I(f"s_lshl_b32 s41, s{SIDX}, 2"); I("s_add_u32 s40, s40, s41"); I(f"s_add_u32 s40, s40, {FK_OFF}")
        def w0only(fn):
            l = a.label("NP"); I(f"s_cmp_lg_u32 s{SW}, 0"); I(f"s_cbranch_scc1 {l}"); fn(); a.L(l)

        def ctouch():
            I(f"s_cmp_eq_u32 s{SW}, 0"); I(f"s_cselect_b32 s99, 0, {self.OOB}"); I("v_lshl_add_u32 v3, v0, 7, s99"); I("s_lshl_b32 s40, s2, 13")
            I(f"buffer_load_dword v1, v3, s[{RA}:{RA+3}], s40 offen"); vm.issue()
        if self.o.get("ct", 0):
            lp = a.label("PC")
            I(f"s_getpc_b64 s[{RT}:{RT+1}]"); a.L(lp)
            I(f"s_mov_b32 s{RT+2}, CODE_END-{lp}"); I(f"s_mov_b32 s{RT+3}, 0x00020000")
            I(f"s_cmp_eq_u32 s{SW}, 7"); I(f"s_cselect_b32 s99, 0, {self.OOB}"); I(f"s_and_b32 s40, s{SF}, 7"); I("s_lshl_b32 s40, s40, 13"); I("s_add_u32 s99, s99, s40")
            I("v_lshl_add_u32 v3, v0, 7, s99")
            I(f"buffer_load_dword v1, v3, s[{RT}:{RT+3}], 0 offen"); vm.issue()
        if self.o.get("sb", 1): self.barrier()
        for f in dma_list(1): f()
        T0 = [wtouch(RB, 0, 1), wtouch(RB, 1, 2), ctouch] if self.o.get("t0k") else []
        if self.o.get("t0pre"):
            for f in T0: f()
            T0 = []
        vm.wait(dtok[0]); self.barrier()
        self.stamp(1)
        L, toks = reads(0, 0)
        for f in L: f()
        for f in T0: f()
        mark = {}; TZ = PG + 2
        pend = dma_list(2)
        for t in range(24):
            for k in range(4):
                M = mfs(t, k, toks)
                if k < 3:
                    L, nt = reads(t, k+1)
                    nd = -(-len(pend) // max(1, (3 if t == 0 else self.o.get("dsteps", 2)) - k))
                    D, pend = pend[:nd], pend[nd:]
                    fl = [(0, 3, L)]
                    if D: fl.append((0, 4, D))
                    if side.get((t, k)): fl.append((0, 4, side[(t, k)]))
                    if k == 2 and late.get(t): fl.append((0, 4, late[t]))
                    self.stream(M, fl); toks = nt
                    if k == 2: mark[t] = vm.issued
                    if t == 17 and k == 0:
                        self.oob_sel(); I("v_lshl_add_u32 v13, v0, 2, s99"); td = self.poll_issue(14, 13, "0", RDBG)
                    if t == 20 and k == 0:
                        self.oob_sel(); I("v_and_b32 v13, 7, v0"); I("v_lshl_add_u32 v13, v13, 2, s99")
                        I(f"s_lshl_b32 s53, s{SHEAD}, 7"); I(f"s_add_u32 s53, s53, {FK_OFF}")
                        tp = self.poll_issue(15, 13, "s53")
                elif t < 23:
                    assert not pend
                    if t == 19: vm.wait(td); w0only(lambda: self.poll_check(14, 13, "0", rep4(1), RDBG))
                    if t == 21: vm.wait(tp); w0only(lambda: self.poll_check(15, 13, "s53", 1))
                    lg.wait(lg.issued); vm.wait(dtok[t+1])
                    if t == TZ: vm.wait(mark[TZ-2])
                    if t == 17: vm.wait(mark[15])
                    if t == 16 + VS: vm.wait(mark[15 + VS])
                    self.barrier()
                    ps = self.o.get("pstamp")
                    if ps is not None and 0 <= t - int(ps) + 1 < 13: self.stamp(17 + t - int(ps) + 1); vm.issue(2)
                    PB = []
                    if TZ <= t < TZ + 8: PB.append(lambda t=t: self.publish(SF, 1, RDBG, True, idx=t - TZ))
                    if t == 17: PB.append(lambda: (fkoff(), self.publish(40, 1)))
                    if t == 16 + VS: PB.append(lambda: (fkoff(), self.publish(40, 3)))
                    L, nt = reads(t+1, 0)
                    pend = dma_list(t+3)
                    if t == 21:
                        def k0(i):
                            I(f"s_lshl_b32 s40, s{SW}, 12"); I("s_add_u32 m0, s40, 0x8000")
                            I(f"s_lshl_b32 s41, s{SHEAD}, 20"); I("s_add_u32 s41, s41, s40")
                            I(f"buffer_load_dwordx4 v{VST}, s[{RWS}:{RWS+3}], s41 offen offset:{1024*i}{self.ld} lds"); vm.issue()
                        pend = [lambda i=i: k0(i) for i in range(4)]
                    nd = len(pend) // (self.o.get("dsteps", 2) + 1)
                    D, pend = pend[:nd], pend[nd:]
                    self.stream(M, [(0, 3, L)] + ([(1, 2, PB)] if PB else []) + ([(0, 4, D)] if D else [])); toks = nt
                else:
                    self.stream(M, [])
            if t == 7: self.stamp(2)
            if t == 12: self.stamp(13)
            if t == 3: self.stamp(14)
            if t == 20: self.stamp(15)
        self.stamp(3)
        def vc(): self.poll_check(55, 54, "s53", 3)
        QACC = ACCS[0]
        self.poll_issue(55, 54, "s53")
        for tile in range(4):
            rt, dt = tile >> 1, tile & 1; b = QACC + 16*tile
            for i in range(8): I(f"v_cvt_pk_bf16_f32 v{b+i}, v{b+2*i}, v{b+2*i+1}")
            for half in range(2):
                I(f"ds_write_b128 v14, {v(b+4*half,4)} offset:{rt*8192+dt*2048+half*1024}"); lg.issue()
        self.attn_setup()
        vm.wait(vm.issued); w0only(vc)
        lg.wait(lg.issued); self.barrier()

    def attn_setup(self): self.attn(True)
    def attn(self, setup=False):
        a = self.a; I = self.I; vm = self.vm; lg = self.lg; stream = self.stream
        ML = 159744; QA_LDS = 65536; QB_LDS = 131072
        O = 192; QF = 160; NM = 144; S = [112, 128]; PP = [96, 104]; RING = 64; NR = 8; E = 56; PK = 16
        VK, VV, VL16, LRUN, LU, THR, NINF, VQ, TMP, LA = 4, 5, 6, 7, 8, 9, 10, 11, 12, 14
        SR, SG, SC1, SC2, SKO, SVO, SKM, SVM, STH = 32, 33, 34, 35, 36, 37, 38, 39, 42
        SMK, SFIN, SCA, SM1 = 54, 55, 59, 58
        DC = self.o.get("dmacost", 16); WEV = self.o.get("wev", 2)
        if setup:
            I(f"s_and_b32 s{SR}, s{SW}, 3"); I(f"s_lshr_b32 s{SG}, s{SW}, 2")
            I(f"v_lshlrev_b32 v{VL16}, 4, v0")
            I(f"s_lshl_b32 s44, s{SR}, 13"); I(f"s_add_u32 s44, s44, {QB_LDS}"); I(f"v_add_u32 v{VQ}, s44, v{VL16}")
            I(f"s_lshl_b32 s45, s{SG}, 16"); I(f"v_subrev_u32 v{TMP+1}, s45, v{VQ}")
            I(f"s_mov_b32 s{SC1}, s{SIDX}")
            I(f"s_lshl_b32 s{SC2}, s{SIDX}, 1"); I(f"s_sub_u32 s{SC2}, 14, s{SC2}")
            I(f"s_cmp_eq_u32 s{SG}, 1"); I(f"s_cselect_b32 s{SM1}, 0, -1")
            I(f"s_lshl_b32 s43, s{SW}, 12"); I(f"s_lshl_b32 s{SVO}, s{SHEAD}, 20"); I(f"s_add_u32 s{SVO}, s{SVO}, s43")
            I(f"s_add_u32 s{SKO}, s{SVO}, 0x10000"); I(f"s_add_u32 s{SVO}, s{SVO}, 0x8000")
            I(f"s_mov_b32 s{SKM}, s43"); I(f"s_add_u32 s{SVM}, s43, 0x18000")
            I(f"s_mov_b32 s{STH}, {f2u(4096.0)}"); I(f"v_mov_b32 v{NINF}, 0xff800000")
            I(f"v_and_b32 v{THR}, 31, v0"); I(f"s_lshl_b32 s44, s{SR}, 5"); I(f"v_add_u32 v{THR}, s44, v{THR}")
            I(f"v_lshrrev_b32 v{TMP}, 5, v0"); I(f"v_lshlrev_b32 v{TMP}, 2, v{TMP}"); I(f"v_sub_u32 v{THR}, v{THR}, v{TMP}")
            I(f"v_add_u32 v{VK}, 0x8000, v{VL16}")
            I(f"s_lshl_b32 s{SCA}, s{SIDX}, 2"); I(f"s_add_u32 s{SCA}, s{SCA}, s{SR}"); I(f"s_lshl_b32 s{SCA}, s{SCA}, 5"); I(f"s_add_u32 s{SCA}, s{SCA}, s{SHEAD}")
            I(f"s_lshl_b32 s{SCA}, s{SCA}, 13"); I(f"s_add_u32 s{SCA}, s{SCA}, {CTX_OFF}")
            I(f"s_mov_b32 s{SFIN}, 0")
            if self.o.get("map84", 1):
                I(f"s_lshr_b32 s56, s{SF}, 6"); I("s_lshl_b32 s56, s56, 3"); I(f"s_bfe_u32 s44, s{SF}, 0x30002"); I("s_add_u32 s56, s56, s44")
                I(f"s_bfe_u32 s57, s{SF}, 0x10005"); I("s_lshl_b32 s57, s57, 2"); I(f"s_and_b32 s44, s{SF}, 3"); I("s_add_u32 s57, s57, s44")
                I(f"s_and_b32 s40, s{SF}, 63"); I("s_lshl_b32 s40, s40, 16")
            else:
                I(f"s_mov_b32 s56, s{SHEAD}"); I(f"s_mov_b32 s57, s{SIDX}")
                I(f"s_and_b32 s40, s{SF}, 31"); I("s_lshl_b32 s40, s40, 17")
            I(f"s_lshl_b32 s44, s{SW}, 13"); I("s_add_u32 s40, s40, s44"); I(f"s_add_u32 s40, s40, {WOT_OFF}")
            self.srd(RB, "ssmk", 2*MB); self.srd(RA, "k", 2*MB); self.srd(RC, "v", 2*MB); self.srd(RD, "shift", 4096); self.srd(RE, "wo", 4*MB)
            I("s_mov_b32 s41, 0")
            if not self.o.get("noprio"):
                l = a.label("PR"); I(f"s_cmp_eq_u32 s{SG}, 1"); I(f"s_cbranch_scc0 {l}"); I("s_setprio 1"); a.L(l)
            return
        def loadq(va):
            qt = []
            for ds in range(8):
                I(f"ds_read_b128 {v(QF+4*ds,4)}, v{va} offset:{1024*ds}"); qt.append(lg.issue())
            return qt
        op = lambda t, c=4: (lambda: I(t), c)
        def dma4(kind):
            sm, so = (SKM, SKO) if kind == "k" else (SVM, SVO)
            def d(i):
                def f():
                    if i == 0: I(f"s_mov_b32 m0, s{sm}"); I(f"s_xor_b32 s{sm}, s{sm}, 0x8000")
                    if not (self.o.get("a_nodma") and i):
                        I(f"buffer_load_dwordx4 v{VL16}, s[{RWS}:{RWS+3}], s{so} offen offset:{1024*i}{self.ld} lds")
                    if i == 3: I(f"s_add_u32 s{so}, s{so}, 0x10000")
                return (f, DC + (8 if i == 0 else 4 if i == 3 else 0))
            return [d(i) for i in range(4)]
        self.ring_n = 0
        def rd(kind, sl, idx):
            h = {}
            def f():
                slot = self.ring_n % NR; self.ring_n += 1
                h["reg"] = RING + 4*slot
                I(f"ds_read_b128 {v(h['reg'],4)}, v{VK if kind == 'k' else VV} offset:{sl*8192+idx*1024}"); h["tok"] = lg.issue()
            return f, h
        def wait_for(R, i):
            if R[i][1]["tok"] <= lg.done: return
            j = i
            while j + 1 < len(R) and j + 1 < i + WEV and "tok" in R[j+1][1] and R[j+1][1]["tok"] > R[i][1]["tok"]: j += 1
            lg.wait(R[j][1]["tok"])
        def mf_qk(sb, ds, R, i, czero=False):
            wait_for(R, i)
            c = (("0" if czero else v(NM,16)) if ds == 0 else v(S[sb],16))
            I(f"{MFMA} {v(S[sb],16)}, {v(R[i][1]['reg'],4)}, {v(QF+4*ds,4)}, {c}")
        def mf_pv(pb, idx, R, i=None, reg=None):
            ks, dt = idx >> 2, idx & 3
            if reg is None: wait_for(R, i); reg = R[i][1]["reg"]
            I(f"{MFMA} {v(O+16*dt,16)}, {v(reg,4)}, {v(PP[pb]+4*ks,4)}, {v(O+16*dt,16)}")
        def sm_ops(sb):
            L = []
            ex = lambda i: op(f"v_exp_f32 v{E+(i&7)}, v{S[sb]+i}", 8)
            def post(j):
                r = []; e0, e1 = E + ((2*j) & 7), E + ((2*j+1) & 7)
                if j == 0: r.append(op(f"v_add_f32 v{LU}, v{e0}, v{e1}"))
                else: r += [op(f"v_add_f32 v{LU}, v{LU}, v{e0}"), op(f"v_add_f32 v{LU}, v{LU}, v{e1}")]
                r.insert(1 if j else 0, op(f"v_cvt_pk_bf16_f32 v{PP[sb]+j}, v{e0}, v{e1}"))
                return r
            L += [ex(0), ex(1)]
            for j in range(8):
                p = post(j)
                L += ([ex(2*j+2), p[0], ex(2*j+3)] + p[1:]) if j < 7 else p
            if self.o.get("a_nosm"): L = [(lambda: None, 0) if i > 3 else x for i, x in enumerate(L)]
            return L
        def sched(M, fixed, chain):
            n = len(M); fc = [sum(c for _, c in fixed.get(g, [])) for g in range(n)]
            tot = sum(c for _, c in chain)
            lo, hi = 0.0, 4000.0
            for _ in range(40):
                lev = (lo + hi) / 2
                if sum(max(0, lev - f) for f in fc) >= tot: hi = lev
                else: lo = lev
            k = 0; credit = 0.0
            for g in range(n):
                M[g]()
                for c, _ in fixed.get(g, []): c()
                credit += max(0, hi - fc[g])
                while k < len(chain) and (g == n - 1 or chain[k][1] <= credit + 2):
                    chain[k][0](); credit -= chain[k][1]; k += 1
        def put(fixed, g, items): fixed.setdefault(g, []).extend(items)
        SPL = self.o.get("spl", 26)
        ool = []
        def rarely(cmp_, body):
            lo = a.label("OOL"); lb = a.label("RET")
            I(cmp_); I(f"s_cbranch_scc1 {lo}"); a.L(lb)
            ool.append((lo, lb, body))
        def mask_body(sb, koff):
            prs = [46, 48, 50, 52]
            if koff >= 64:
                I(f"v_subrev_u32 v{TMP+3}, 64, v{THR}"); tr = TMP + 3; koff -= 64
            elif koff < 0:
                I(f"s_lshl_b32 s44, s{SG}, 6"); I(f"v_subrev_u32 v{TMP+3}, s44, v{THR}"); tr = TMP + 3; koff = -koff - 1
            else: tr = THR
            for r0 in range(0, 16, 4):
                for r in range(r0, r0+4):
                    I(f"v_cmp_lt_i32 s[{prs[r&3]}:{prs[r&3]+1}], v{tr}, {(r & 3) + 8*(r >> 2) + koff}")
                for r in range(r0, r0+4):
                    I(f"v_cndmask_b32 v{S[sb]+r}, v{S[sb]+r}, v{NINF}, s[{prs[r&3]}:{prs[r&3]+1}]")
        def rowmax(sb, dst):
            b = S[sb]
            I(f"v_max3_f32 v{dst}, v{b}, v{b+1}, v{b+2}")
            for i in range(3, 15, 2): I(f"v_max3_f32 v{dst}, v{dst}, v{b+i}, v{b+i+1}")
            I(f"v_max_f32 v{dst}, v{dst}, v{b+15}"); I(f"v_mov_b32 v{dst+1}, v{dst}")
            I(f"v_permlane32_swap_b32 v{dst}, v{dst+1}"); I(f"v_max_f32 v{dst}, v{dst}, v{dst+1}")
        def init_max():
            rowmax(0, TMP)
            I(f"v_max_f32 v{TMP}, {f2u(-1e30)}, v{TMP}")
            for r in range(16): I(f"v_sub_f32 v{NM+r}, 0, v{TMP}")
            return [op(f"v_sub_f32 v{S[0]+r}, v{S[0]+r}, v{TMP}") for r in range(16)]
        rare = []
        def check(sb, other=True):
            def f():
                lr = a.label("RARE"); lb = a.label("BACK")
                I(f"v_cmp_nge_f32 vcc, s{STH}, v{LU}")
                if self.o.get("a_nocheck"): I("s_mov_b64 vcc, 0")
                I(f"s_cbranch_vccnz {lr}"); a.L(lb)
                I(f"v_add_f32 v{LRUN}, v{LRUN}, v{LU}")
                rare.append((lr, lb, sb, other))
            return f
        def fin_body():
            I(f"v_mov_b32 v{TMP}, v{LA}"); I(f"s_mov_b32 s{SFIN}, 2"); I("s_nop 0")
            I(f"v_permlane32_swap_b32 v{TMP}, v{LA}"); I(f"v_add_f32 v{TMP}, v{TMP}, v{LA}"); I(f"v_rcp_f32 v{TMP}, v{TMP}"); I(f"v_mov_b32 v{TMP+1}, v{TMP}")
            for q in range(8):
                for i in range(8*q, 8*q+8, 2): I(f"v_pk_mul_f32 {v(O+i,2)}, {v(O+i,2)}, {v(TMP,2)}")
                for i in range(4): I(f"v_cvt_pk_bf16_f32 v{PK+4*q+i}, v{O+8*q+2*i}, v{O+8*q+2*i+1}")
                for i in range(8*q, 8*q+8, 2): I(f"v_mov_b64 {v(O+i,2)}, 0")
        def st_body():
            I(f"s_add_u32 s44, s{SCA}, 4096"); I(f"s_mov_b32 s{SFIN}, 3")
            for q in range(8):
                I(f"buffer_store_dwordx4 {v(PK+4*q,4)}, v{VL16}, s[{RWS}:{RWS+3}], s{SCA if q < 4 else 44} offen offset:{1024*(q&3)}{self.st}")
        TR = [RING + 4*(2+i) for i in range(6)]
        def head(R, vmw, with_mfma=True, post=()):
            rf = [(f, 4) for f, h in R]; sm2 = sm_ops(0)[SPL:]
            nop = lambda: None
            def first():
                I("s_waitcnt lgkmcnt(4)"); mf_pv(1, 2, None, reg=TR[0])
            M = [first] + [lambda i=i: mf_pv(1, 2+i, None, reg=TR[i]) for i in range(1, 6)] if with_mfma else [nop]*6
            nb = self.o.get("nb", 4)
            sched(M[:2], {}, sm2[:nb])
            vmw(); I("s_waitcnt lgkmcnt(0)"); lg.mark_all_done(); self.barrier(); self.ring_n = 0
            fx = {0: rf[0:2], 1: rf[2:5], 2: rf[5:6], 3: rf[6:7] + [(nop, 12 + 8*len(post))]}
            sched(M[2:], fx, sm2[nb:])
            check(0)()
            for p in post: p()
        def mk_reads():
            return ([rd("k", 0, i) for i in range(8)] + [rd("v", 0, i) for i in range(8)] +
                    [rd("k", 1, i) for i in range(8)] + [rd("v", 1, i) for i in range(8)])
        def mid(R, dmas, kx, mb=None, trans=False, endops=(), extra=None):
            rf = [(f, 4) for f, h in R]
            M = [lambda i=i: mf_qk(0, i, R, i, trans) for i in range(8)] + [lambda i=i: mf_pv(0, i, R, 8+i) for i in range(8)]
            fx = {}
            for g in range(16): put(fx, g, [rf[7+g]])
            D = sum((dma4(k) for k in dmas), [])
            DS = self.o.get("dstep", 2)
            spill = []
            for n, d in enumerate(D):
                g = n * DS * (2 if len(D) == 4 and not extra else 1)
                if g < 15: put(fx, g, [d])
                else: spill.append((g - 16 if g >= 16 else 0, d))
            put(fx, 15, [(lambda: None, 20)])
            if extra:
                X0 = self.o.get("x0", 8); ng = 16 - X0 + 9; per = -(-len(extra) // ng)
                put(fx, X0, [op("s_waitcnt vmcnt(4)")])
                for g in range(X0, 16): put(fx, g, extra[(g-X0)*per:(g-X0+1)*per])
                for g in range(9): spill += [(g, x) for x in extra[(16-X0+g)*per:(16-X0+g+1)*per]]
            sched(M, fx, sm_ops(1))
            check(1, other=not trans)()
            if mb: mb()
            pre = []
            if trans:
                I(f"v_mov_b32 v{LA}, v{LRUN}"); I(f"v_mov_b32 v{LRUN}, 0"); I(f"s_mov_b32 s{SFIN}, 1")
                pre = init_max()
            M = [lambda i=i: mf_qk(1, i, R, 16+i) for i in range(8)] + [lambda i=i: mf_pv(1, i, R, 24+i) for i in range(2)]
            fx = {}
            for g in range(9): put(fx, g, [rf[23+g]])
            for g, d in spill: put(fx, g, [d])
            put(fx, 8, [op(f"v_xor_b32 v{VV}, 0x10000, v{VK}")] + kx)
            for n, e in enumerate(endops): put(fx, 7 - n, [e])
            put(fx, 9, [(lambda: None, 16)])
            sched(M, fx, pre + sm_ops(0)[:SPL])
            assert [R[26+i][1]["reg"] for i in range(6)] == TR
        vm4 = lambda: I("s_waitcnt vmcnt(4)")
        vm0 = lambda: I("s_waitcnt vmcnt(0)")
        def vm08():
            lo = a.label("W8"); lb = a.label("W8R")
            I(f"s_cmp_eq_u32 s{SFIN}, 3"); I(f"s_cbranch_scc1 {lo}"); I("s_waitcnt vmcnt(%d)" % self.o.get("a_vm", 0)); a.L(lb)
            def b(): I("s_waitcnt vmcnt(8)"); I(f"s_mov_b32 s{SFIN}, 4")
            ool.append((lo, lb, b))
        m1 = lambda sb, ko: (lambda: rarely(f"s_cmp_eq_u32 s{SC1}, s{SM1}", lambda: mask_body(sb, ko)))
        fin = lambda: rarely(f"s_cmp_eq_u32 s{SFIN}, 1", fin_body)
        sta = (lambda: rarely(f"s_cmp_eq_u32 s{SFIN}, 2", st_body), 8)

        KR, VR, SH, WO, AD = 16, 23, 28, 32, 40
        def side_loads():
            L = []; E = lambda t: L.append(op(t)); V = lambda t: L.append(op(t, DC))
            E(f"v_lshrrev_b32 v{AD}, 5, v0"); E(f"v_and_b32 v{AD+1}, 31, v0"); E(f"v_lshlrev_b32 v{AD+2}, 12, v{AD}"); E(f"v_lshl_add_u32 v{AD+2}, v{AD+1}, 2, v{AD+2}")
            E(f"s_lshl_b32 s60, s{SF}, 14"); E(f"s_lshl_b32 s61, s{SW}, 7"); E("s_add_u32 s60, s60, s61"); E("s_add_u32 s61, s60, 8192")
            for j in range(8): V(f"buffer_load_dword v{WO+j}, v{AD+2}, s[{RE}:{RE+3}], s{60+(j>>2)} offen offset:{1024*(j&3)}")
            E("s_lshr_b32 s62, s2, 3"); E("s_lshl_b32 s62, s62, 16"); E(f"s_lshl_b32 s63, s{SW}, 13"); E("s_add_u32 s62, s62, s63")
            E("s_and_b32 s63, s2, 7"); E("s_lshl_b32 s63, s63, 7"); E("s_add_u32 s62, s62, s63"); E(f"v_add_u32 v{AD+3}, s62, v{AD+2}")
            for i in range(3): E(f"v_subrev_u32 v{AD+4+i}, {3072-1024*i}, v{AD+3}")
            E("s_lshl_b32 s63, s63, 2"); E(f"v_lshl_add_u32 v{AD+7}, v{AD+1}, 4, s63")
            for i in range(3): V(f"buffer_load_dword v{KR+i}, v{AD+4+i}, s[{RA}:{RA+3}], 0 offen")
            for i in range(4): V(f"buffer_load_dword v{KR+3+i}, v{AD+3}, s[{RA}:{RA+3}], 0 offen offset:{1024*i}")
            for i in range(4): V(f"buffer_load_dword v{VR+i}, v{AD+3}, s[{RC}:{RC+3}], 0 offen offset:{1024*i}")
            V(f"buffer_load_dwordx4 {v(SH,4)}, v{AD+7}, s[{RD}:{RD+3}], 0 offen")
            E(f"s_lshl_b32 s60, s{SF}, 13"); E(f"s_add_u32 s60, s60, s{SWK}"); E(f"v_and_b32 v27, 7, v0"); E("v_lshlrev_b32 v27, 7, v27")
            V(f"buffer_load_dword v1, v27, s[{RB}:{RB+3}], s60 offen")
            return L
        NSL = 21
        def side_math():
            L = []; E = lambda t: L.append(op(t)); V = lambda t: L.append(op(t, DC))
            W2 = 48
            E("s_mov_b32 s60, 0x05040100"); E("s_mov_b32 s61, 0x07060302")
            for j in range(4): E(f"v_perm_b32 v{W2+j}, v{WO+2*j+1}, v{WO+2*j}, s60")
            for j in range(4): E(f"v_perm_b32 v{W2+4+j}, v{WO+2*j+1}, v{WO+2*j}, s61")
            E(f"s_lshl_b32 s60, s{SW}, 8"); E(f"s_add_u32 s60, s60, s{SF}"); E("s_lshl_b32 s60, s60, 11"); E(f"s_add_u32 s60, s60, {WOT_OFF}")
            for mt in range(2): V(f"buffer_store_dwordx4 {v(W2+4*mt,4)}, v{VL16}, s[{RWS}:{RWS+3}], s60 offen offset:{1024*mt}{self.st}")
            KU, SU, OO, VU, PQ = 32, 42, 48, 39, 52
            for c in range(2):
                def unp(d, sreg, half): E(f"v_lshlrev_b32 v{d}, 16, v{sreg}" if half == 0 else f"v_and_b32 v{d}, 0xffff0000, v{sreg}")
                for i in range(7): unp(KU+i, KR+i, c)
                for j in range(4): unp(SU+j, SH + 2*c + (j >> 1), j & 1)
                for o in range(4):
                    E(f"v_mul_f32 v{OO+o}, v{KU+o}, v{SU+3}")
                    for j in (2, 1, 0): E(f"v_fmac_f32 v{OO+o}, v{KU+o+3-j}, v{SU+j}")
                    unp(VU, VR+o, c)
                    E(f"v_mul_f32 v{OO+o}, v{OO+o}, v{VU}")
                d = PQ + 2*(1-c)
                E(f"v_cvt_pk_bf16_f32 v{d}, v{OO+3}, v{OO+2}"); E(f"v_cvt_pk_bf16_f32 v{d+1}, v{OO+1}, v{OO}")
            E(f"v_lshlrev_b32 v{AD+1}, 5, v{AD+1}"); E(f"v_lshl_add_u32 v{AD+1}, v{AD}, 4, v{AD+1}")
            E(f"v_permlane32_swap_b32 v{PQ+2}, v{PQ}"); E(f"v_permlane32_swap_b32 v{PQ+3}, v{PQ+1}")
            E("s_lshr_b32 s60, s2, 3"); E("s_lshl_b32 s60, s60, 16"); E(f"s_lshl_b32 s61, s{SW}, 13"); E("s_add_u32 s60, s60, s61")
            E("s_and_b32 s61, s2, 7"); E("s_lshl_b32 s61, s61, 10"); E("s_add_u32 s60, s60, s61"); E(f"s_add_u32 s60, s60, {KVT_OFF}")
            V(f"buffer_store_dwordx4 {v(PQ,4)}, v{AD+1}, s[{RWS}:{RWS+3}], s60 offen{self.st}")
            return L
        def spub_body():
            l1 = a.label("SM"); l2 = a.label("SP")
            I("s_add_u32 s41, s41, 1"); I(f"s_add_u32 s44, s41, s{SG}"); I("s_cmp_lg_u32 s44, 2"); I(f"s_cbranch_scc1 {l1}")
            for c, _ in side_math(): c()
            a.L(l1)
            I("s_cmp_lg_u32 s41, 4"); I(f"s_cbranch_scc1 {l2}")
            I(f"s_lshl_b32 s44, s{SF}, 2"); I(f"s_add_u32 s44, s44, {FY_OFF}")
            sv = self.save(); self.publish(44, 2); self.restore(sv)
            a.L(l2)
        spub = lambda: rarely("s_cmp_lt_u32 s41, 4", spub_body)
        def snap():
            self.oob_sel(); I("v_lshl_add_u32 v49, v0, 4, s99"); I(f"s_mov_b32 s60, {FY_OFF}")
            I(f"buffer_load_dwordx4 v[52:55], v49, s[{RWS}:{RWS+3}], s60 offen sc1")
        def side_check():
            l = a.label("SCK"); lp = a.label("SPL")
            I(f"s_cmp_lg_u32 s{SW}, 0"); I(f"s_cbranch_scc1 {l}")
            I("s_mov_b32 s99, 20000"); a.L(lp)
            I("v_and_b32 v52, v52, v53"); I("v_and_b32 v54, v54, v55"); I("v_and_b32 v52, v52, v54"); I("v_and_b32 v52, 2, v52")
            I("v_cmp_ne_u32 vcc, 2, v52"); I(f"s_cbranch_vccz {l}"); I("s_sleep 2")
            I(f"buffer_load_dwordx4 v[52:55], v49, s[{RWS}:{RWS+3}], s60 offen sc1")
            I("s_sub_u32 s99, s99, 1"); I("s_cmp_lg_u32 s99, 0"); I("s_waitcnt vmcnt(0)"); I(f"s_cbranch_scc1 {lp}")
            a.L(l)
        m2 = lambda sb, ko: (lambda: rarely(f"s_cmp_eq_u32 s{SC2}, 0", lambda: (snap(), mask_body(sb, ko))))
        LEV = a.label("EVEN"); LODM = a.label("ODDM"); LTRANS = a.label("TRANS"); LP2 = a.label("P2"); LP2B = a.label("P2B"); LDRAIN = a.label("DRAIN")
        self.stamp(8)
        self.ring_n = 0
        R = [rd("k", 0, i) for i in range(8)] + [rd("k", 1, i) for i in range(8)]
        for i in range(7):
            I(f"ds_read_b128 {v(QF+4*i,4)}, v{TMP+1} offset:{1024*i}"); lg.issue()
            R[i][0]()
        def q7():
            I(f"ds_read_b128 {v(QF+28,4)}, v{TMP+1} offset:{1024*7}"); lg.issue()
        D = dma4("v") + dma4("k")
        sched([lambda i=i: mf_qk(0, i, R, i, True) for i in range(8)], {g: ([(q7, 4)] if g == 0 else []) + [(R[7+g][0], 4), D[g]] for g in range(8)}, [])
        m1(0, 0)()
        pre = init_max()
        I(f"v_mov_b32 v{LRUN}, 0")
        fx = {}
        put(fx, 0, [(R[15][0], 4)]); put(fx, 4, [op(f"v_xor_b32 v{VV}, 0x10000, v{VK}"), op(f"v_xor_b32 v{VK}, 0x4000, v{VK}")])
        SLd = side_loads(); n8 = (len(SLd) + 7) // 8
        for g in range(8): put(fx, g, SLd[g*n8:(g+1)*n8])
        sched([lambda i=i: mf_qk(1, i, R, 8+i) for i in range(8)], fx, pre + sm_ops(0)[:SPL])
        R = mk_reads()
        head(R, lambda: I(f"s_waitcnt vmcnt({4+NSL})"), False, post=[m1(1, 32)])
        svm = self.save()
        I(f"s_branch {LODM}")
        a.L(LEV)
        R = mk_reads(); head(R, vm4)
        mid(R, "k", [op(f"v_xor_b32 v{VK}, 0x4000, v{VK}")], mb=m1(0, 0))
        R = mk_reads(); head(R, vm4, post=[m1(1, 32), spub])
        assert self.lg.issued - self.lg.done == svm[2] - svm[3]
        a.L(LODM)
        mid(R, "v", [op(f"v_xor_b32 v{VK}, 0xc000, v{VK}")], mb=m1(0, 64), endops=[op(f"s_sub_u32 s{SC1}, s{SC1}, 1")])
        I(f"s_cmp_lg_u32 s{SC1}, -1"); I(f"s_cbranch_scc1 {LEV}")
        I(f"s_cmp_eq_u32 s{SG}, 1"); I(f"s_cbranch_scc1 {LTRANS}")
        svt = self.save()
        R = mk_reads(); head(R, vm4)
        mid(R, "k", [op(f"v_xor_b32 v{VK}, 0x8000, v{VK}")], mb=m2(0, -1))
        a.L(LP2B)
        I(f"s_cmp_eq_u32 s{SC2}, 0"); I(f"s_cbranch_scc1 {LDRAIN}")
        a.L(LP2)
        R = mk_reads(); head(R, vm08, post=[spub, fin, lambda: I(f"s_sub_u32 s{SC2}, s{SC2}, 1")])
        mid(R, "kv", [op(f"v_xor_b32 v{VK}, 0x8000, v{VK}")], mb=m2(0, -1), endops=[sta])
        I(f"s_cmp_lg_u32 s{SC2}, 0"); I(f"s_cbranch_scc1 {LP2}")
        a.L(LDRAIN)
        self.stamp(10)
        R2 = [rd("v", 0, i) for i in range(8)] + [rd("v", 1, i) for i in range(8)]
        rf = [(f, 4) for f, h in R2]
        head(R2, lambda: (vm08(), side_check()), post=[fin, sta[0]])
        mask_body(1, -33)
        ts, ts2, ts3 = self.tail_setup(); n8 = (len(ts) + 4) // 5
        fx = {g: [rf[7+g]] + ts[g*n8:(g+1)*n8] for g in range(8)}
        for g in range(3):
            if g < len(ts2): put(fx, 5 + g, [ts2[g]])
        sched([lambda i=i: mf_pv(0, i, R2, i) for i in range(8)], fx, sm_ops(1))
        check(1)()
        pre = []; E_ = lambda t: pre.append(op(t))
        E_(f"v_mov_b32 v{TMP}, v{LRUN}"); E_(f"s_lshl_b32 s44, s{SW}, 9"); E_(f"s_add_u32 s44, s44, {ML}")
        E_(f"v_permlane32_swap_b32 v{TMP}, v{LRUN}"); E_(f"v_add_f32 v{NM+1}, v{TMP}, v{LRUN}")
        E_(f"v_lshrrev_b32 v{TMP}, 1, v{VL16}"); E_(f"v_add_u32 v{TMP}, s44, v{TMP}")
        def wml():
            I(f"ds_write_b64 v{TMP}, {v(NM,2)}"); lg.issue()
        pre.append((wml, 4))
        E_(f"v_xor_b32 v{TMP}, 0x800, v{TMP}")
        E_(f"s_lshl_b32 s46, s{SW}, 13"); E_(f"v_add_u32 v{TMP+1}, s46, v{VL16}"); E_(f"v_xor_b32 v{TMP+2}, 0x8000, v{TMP+1}")
        E_(f"s_sub_u32 s54, 15, s{SIDX}"); E_(f"s_lshl_b32 s54, s54, 2"); E_(f"s_add_u32 s54, s54, s{SR}"); E_("s_lshl_b32 s54, s54, 5"); E_(f"s_add_u32 s54, s54, s{SHEAD}")
        E_("s_lshl_b32 s54, s54, 13"); E_(f"s_lshl_b32 s44, s{SG}, 12"); E_("s_add_u32 s54, s54, s44"); E_(f"s_add_u32 s54, s54, {CTX_OFF}")
        fx = {0: [rf[15]]}
        for g, x in enumerate(ts2[3:]): put(fx, g, [x])
        sched([lambda i=i: mf_pv(1, i, R2, 8+i) for i in range(8)], fx, pre + ts3)
        self.stamp(11)
        lg1 = a.label("MG1"); lj = a.label("MGJ")
        I(f"s_cmp_eq_u32 s{SG}, 1"); I(f"s_cbranch_scc1 {lg1}")
        sv2 = self.save(); PR = 64
        for g in (0, 1):
            if g: a.L(lg1); self.restore(sv2)
            own = O + 32*g; snd = O + 32*(1-g)
            for i in range(8):
                I(f"ds_write_b128 v{TMP+1}, {v(snd+4*i,4)} offset:{1024*i}"); lg.issue()
            lg.wait(lg.issued); self.barrier()
            I(f"ds_read_b64 {v(96,2)}, v{TMP}"); t0 = lg.issue()
            tk = []
            for i in range(8):
                I(f"ds_read_b128 {v(PR+4*i,4)}, v{TMP+2} offset:{1024*i}"); tk.append(lg.issue())
            lg.wait(t0)
            I(f"v_min_f32 v98, v{NM}, v96"); I(f"v_sub_f32 v99, v98, v{NM}"); I(f"v_sub_f32 v100, v98, v96")
            I("v_exp_f32 v99, v99"); I("v_exp_f32 v100, v100")
            I(f"v_mul_f32 v101, v99, v{NM+1}"); I("v_fmac_f32 v101, v100, v97"); I("v_rcp_f32 v101, v101")
            I("v_mul_f32 v102, v99, v101"); I("v_mul_f32 v103, v99, v101"); I("v_mul_f32 v104, v100, v101"); I("v_mul_f32 v105, v100, v101")
            for q in range(4):
                for i in range(8*q, 8*q+8, 2): I(f"v_pk_mul_f32 {v(own+i,2)}, {v(own+i,2)}, v[102:103]")
                lg.wait(tk[2*q+1])
                for i in range(8*q, 8*q+8, 2): I(f"v_pk_fma_f32 {v(own+i,2)}, {v(PR+i,2)}, v[104:105], {v(own+i,2)}")
                for i in range(4): I(f"v_cvt_pk_bf16_f32 v{snd+4*q+i}, v{own+8*q+2*i}, v{own+8*q+2*i+1}")
                I(f"buffer_store_dwordx4 {v(snd+4*q,4)}, v{VL16}, s[{RWS}:{RWS+3}], s54 offen offset:{1024*q}{self.st}"); self.tctx = vm.issue()
            if not g: I(f"s_branch {lj}")
        a.L(lj)
        I("s_setprio 0")
        self.stamp(4)
        def cold():
            a.L(LTRANS)
            self.restore(svt)
            loadq(VQ); I("s_waitcnt lgkmcnt(0)")
            I(f"v_xor_b32 v{VK}, 0x4000, v{VK}")
            R = mk_reads(); head(R, vm4, post=[lambda: mask_body(1, 96)])
            mid(R, "k", [op(f"v_xor_b32 v{VK}, 0x8000, v{VK}")], mb=m2(0, -1), trans=True)
            I(f"s_branch {LP2B}")
            for (lo, lb, body) in ool:
                a.L(lo); body(); I(f"s_branch {lb}")
            for (lr, lb, sb, other) in rare:
                a.L(lr)
                I("s_nop 15")
                rowmax(sb, TMP)
                I(f"v_max_f32 v{TMP}, 0, v{TMP}"); I(f"v_exp_f32 v{TMP+1}, -v{TMP}")
                for r in range(16): I(f"v_sub_f32 v{NM+r}, v{NM+r}, v{TMP}")
                for r in range(16): I(f"v_sub_f32 v{S[sb]+r}, v{S[sb]+r}, v{TMP}")
                if other:
                    for r in range(16): I(f"v_sub_f32 v{S[1-sb]+r}, v{S[1-sb]+r}, v{TMP}")
                for r in range(64): I(f"v_mul_f32 v{O+r}, v{O+r}, v{TMP+1}")
                I(f"v_mul_f32 v{LRUN}, v{LRUN}, v{TMP+1}")
                for c, _ in sm_ops(sb): c()
                I("s_nop 1"); I(f"s_branch {lb}")
        self.attn_rare = cold

    HB = 65536; HC = 4416; XB = 136192; YB = 148480
    SC, SJ, SB, SCH, SHB_, SWO, SCX = 34, 35, 36, 37, 38, 39, 40
    WS_ = [16, 24, 32, 40, 176, 184, 56, 80, 88, 96, 104, 144, 152, 160]
    CS_ = [168, 112, 120, 128, 136, 64, 72]
    NL = 4
    def tail_setup(self):
        I = self.I; L = []; E = lambda t: L.append((lambda: I(t), 4))
        SC, SJ, SB, SCH, SHB_, SWO, SCX = self.SC, self.SJ, self.SB, self.SCH, self.SHB_, self.SWO, self.SCX
        self.wtok = {}; self.wslot = dict(enumerate(self.WS_))
        E(f"s_lshr_b32 s{SC}, s{SW}, 2"); E(f"s_and_b32 s{SJ}, s{SW}, 3")
        E(f"s_lshl_b32 s{SCH}, s{SF}, 1"); E(f"s_add_u32 s{SCH}, s{SCH}, s{SC}"); E(f"s_lshl_b32 s{SCH}, s{SCH}, 12")
        E(f"s_lshl_b32 s60, s{SJ}, 10"); E("v_add_u32 v50, s60, v6"); E("v_subrev_u32 v51, 16, v50")
        E(f"s_lshr_b32 s60, s{SCH}, 8"); E(f"s_add_u32 s60, s60, {KVT_OFF}"); E("v_lshlrev_b32 v52, 9, v50")
        def ld(t):
            def f(): I(t); self.th = self.vm.issue()
            L.append((f, 16))
        ld(f"buffer_load_dwordx4 {v(160,4)}, v51, s[{RB}:{RB+3}], s{SCH} offen")
        ld(f"buffer_load_dwordx4 {v(164,4)}, v50, s[{RB}:{RB+3}], s{SCH} offen")
        ld(f"buffer_load_dwordx4 {v(168,4)}, v52, s[{RWS}:{RWS+3}], s60 offen{self.ld}")
        E(f"s_lshl_b32 s{SWO}, s57, 19"); E(f"s_lshl_b32 s60, s{SW}, 16"); E(f"s_add_u32 s{SWO}, s{SWO}, s60"); E(f"s_add_u32 s{SWO}, s{SWO}, {WOT_OFF}")
        L2 = [(lambda i=i: self.wload(i), 36) for i in range(self.o.get("we", 0))]
        L3 = []; L, Lx = L3, L
        E = lambda t: L3.append((lambda: I(t), 4))
        E(f"s_mul_i32 s{SB}, s{SC}, 6144"); E(f"s_add_u32 s{SB}, s{SB}, {self.XB}")
        E(f"s_mul_i32 s{SHB_}, s{SC}, {8*self.HC}"); E(f"s_add_u32 s{SHB_}, s{SHB_}, {self.HB}")
        E(f"s_lshl_b32 s{SCX}, s56, 19"); E(f"s_lshl_b32 s60, s{SW}, 15"); E(f"s_add_u32 s{SCX}, s{SCX}, s60"); E(f"s_add_u32 s{SCX}, s{SCX}, {CTX_OFF}")
        return Lx, L2, L3
    def wreg(self, i):
        return self.WS_[i % len(self.WS_)]
    def wload(self, i):
        I = self.I; r = self.wslot[i]
        I(f"s_add_u32 s61, s{self.SWO}, {i*2048}")
        for mt in range(2):
            I(f"buffer_load_dwordx4 {v(r+4*mt,4)}, v6, s[{RWS}:{RWS+3}], s61 offen offset:{mt*1024}{self.ld}"); self.wtok[i] = self.vm.issue()
    def tail_early(self):
        I = self.I; vm = self.vm; lg = self.lg; HC = self.HC
        SJ, SB, SCH, SHB_ = self.SJ, self.SB, self.SCH, self.SHB_
        Ee, Eo, Oe, Oo = 160, 113, 122, 131
        vm.wait(self.th)
        for k in range(7): I(f"v_alignbit_b32 v{Oe+k}, v{Ee+k+1}, v{Ee+k}, 16")
        for k in range(1, 7): I(f"v_alignbit_b32 v{Oo+k}, v{Ee+k+1}, v{Ee+k}, 16")
        for k in range(1, 7): I(f"v_mov_b32 v{Eo+k}, v{Ee+k}")
        I(f"s_add_u32 s60, s{SHB_}, 64"); I("v_add_u32 v51, s60, v50")
        for r in range(8):
            sft = 1 + r; k = sft >> 1
            base = ((Oe, Oo) if sft & 1 else (Ee, Eo))[k & 1]
            I(f"ds_write_b128 v51, {v(base+k,4)} offset:{r*HC}"); lg.issue()
        I("v_and_b32 v51, 3, v0"); I("v_mul_u32_u24 v52, 1536, v51"); I("v_lshrrev_b32 v53, 6, v50"); I("v_lshl_add_u32 v52, v53, 4, v52")
        I(f"s_add_u32 s60, s{SB}, 512"); I("v_add_u32 v52, s60, v52")
        I(f"ds_write_b128 v52, {v(168,4)}"); lg.issue()
        for r in range(2): I(f"v_mov_b64 {v(172+2*r,2)}, 0")
        I("v_bfe_u32 v52, v0, 2, 3"); I(f"v_mul_u32_u24 v52, {HC}, v52"); I("v_lshl_add_u32 v52, v51, 4, v52"); I(f"v_add_u32 v52, s{SHB_}, v52")
        I(f"ds_write_b128 v52, {v(172,4)}"); lg.issue()
        I(f"s_mul_i32 s60, s{SJ}, 1536"); I(f"s_add_u32 s60, s60, s{SB}"); I("v_lshl_add_u32 v52, v0, 3, s60")
        I(f"ds_write_b64 v52, {v(172,2)}"); lg.issue()
    def tailp(self):
        a = self.a; I = self.I; vm = self.vm; lg = self.lg
        HB, HC, YB = self.HB, self.HC, self.YB
        SC, SJ, SB, SCH, SHB_, SWO, SCX = self.SC, self.SJ, self.SB, self.SCH, self.SHB_, self.SWO, self.SCX
        ACC = 192; FRS = [224, 240, 64]; RD_ = 224
        VL16, VA, VB, T, VP, VPA, VO, GR, VLW, XR = 6, 4, 5, 12, 7, 8, 9, 10, 11, 48
        OACC = 192
        NW, NCX, NL = len(self.WS_), len(self.CS_), self.o.get("nl", 0)
        wtok = self.wtok; ctok = {}; wslot = self.wslot; cslot = dict(enumerate(self.CS_))
        I(f"s_lshr_b32 s53, s56, 1"); I("s_lshl_b32 s53, s53, 10"); I(f"s_lshl_b32 s44, s{SW}, 7"); I("s_add_u32 s53, s53, s44"); I(f"s_add_u32 s53, s53, {FC_OFF}")
        I(f"v_and_b32 v{VPA}, 3, v0"); I(f"v_lshlrev_b32 v{VPA}, 2, v{VPA}")
        P0 = self.o.get("p0", 0)
        tc0 = self.poll_issue(VP, VPA, "s53") if P0 else self.tctx
        self.tail_early()
        PUBN = self.o.get("pubn", 1)
        I(f"s_lshr_b32 s45, s{SHEAD}, 2"); I("s_lshl_b32 s45, s45, 7"); I(f"s_and_b32 s44, s{SHEAD}, 3"); I("s_lshl_b32 s44, s44, 2"); I("s_add_u32 s45, s45, s44")
        I(f"s_sub_u32 s44, 15, s{SIDX}"); I("s_lshl_b32 s44, s44, 10"); I("s_add_u32 s46, s44, s45"); I(f"s_add_u32 s46, s46, {FC_OFF}")
        I(f"s_lshl_b32 s44, s{SIDX}, 10"); I("s_add_u32 s47, s44, s45"); I(f"s_add_u32 s47, s47, {FC_OFF}")
        self.srd(RC, "out", 2*MB); self.srd(RD, "q", 2*MB)
        I(f"s_lshl_b32 s44, s{SF}, 2"); I(f"s_load_dword s55, s[{P['ssmD']}:{P['ssmD']+1}], s44")
        I(f"v_and_b32 v{T}, 31, v0"); I(f"v_lshrrev_b32 v{T+1}, 5, v0")
        I(f"v_and_b32 v{T+2}, 7, v0"); I(f"v_mul_u32_u24 v{VA}, {HC}, v{T+2}")
        I(f"v_bfe_u32 v{T+2}, v0, 3, 2"); I(f"v_sub_u32 v{T+2}, v{T+2}, v{T+1}"); I(f"v_lshl_add_u32 v{VA}, v{T+2}, 4, v{VA}")
        I(f"s_lshl_b32 s43, s{SJ}, 9"); I(f"s_add_u32 s43, s43, s{SHB_}"); I("s_add_u32 s43, s43, 32"); I(f"v_add_u32 v{VA}, s43, v{VA}")
        I(f"s_lshl_b32 s43, s{SJ}, 7"); I(f"s_sub_u32 s43, s{SB}, s43"); I("s_add_u32 s43, s43, 400")
        I(f"v_lshl_add_u32 v{VB}, v{T}, 4, s43"); I(f"v_mul_u32_u24 v{T+2}, 1536, v{T+1}"); I(f"v_add_u32 v{VB}, v{VB}, v{T+2}")
        I(f"s_lshl_b32 s51, s{SW}, 13"); I(f"v_add_u32 v{VLW}, s51, v{VL16}")
        I("s_waitcnt lgkmcnt(0)"); lg.mark_all_done(); self.barrier()
        self.stamp(5)
        def cload(i):
            r = cslot[i]
            I(f"s_add_u32 s62, s{SCX}, {(i//4)*4096}"); I("s_add_u32 s63, s62, 0x40000")
            for st in range(2):
                I(f"buffer_load_dwordx4 {v(r+4*st,4)}, v{VL16}, s[{RWS}:{RWS+3}], s{62+st} offen offset:{(i%4)*1024}{self.ld}"); ctok[i] = vm.issue()
        ltok = {}
        def lstage(j):
            I(f"s_add_u32 m0, s51, {j*2048}"); I(f"s_add_u32 s61, s{SWO}, {(NW+j)*2048}")
            for mt in range(2):
                I(f"buffer_load_dwordx4 v{VL16}, s[{RWS}:{RWS+3}], s61 offen offset:{mt*1024}{self.ld} lds"); ltok[j] = vm.issue()
        def early(lo, hi, level):
            le = a.label("NE")
            I(f"s_cmp_lg_u32 s50, {level}"); I(f"s_cbranch_scc1 {le}")
            sv = self.save()
            for i in range(lo, hi): cload(i)
            self.restore(sv); I(f"s_mov_b32 s50, {level+1}")
            a.L(le)
        def seen():
            I(f"v_and_b32 v{VP}, 1, v{VP}"); I(f"v_cmp_ne_u32 vcc, 1, v{VP}"); I("s_cmp_eq_u64 vcc, 0"); I("s_cselect_b32 s52, 1, 0"); I("s_max_u32 s50, s50, s52")
        I("s_mov_b32 s50, 0")
        wl = [lambda i=i: self.wload(i) for i in range(NW) if i not in wtok] + [lambda j=j: lstage(j) for j in range(NL)]
        steps = [(dd, ks) for dd in range(8) for ks in range(2)]
        toks = {}
        def reads(n):
            dd, ks = steps[n]; b = FRS[n % 3]
            def r(k, reg, addr, off):
                def f():
                    I(f"ds_read_b128 {v(reg,4)}, v{addr} offset:{off}"); toks[(n, k)] = lg.issue()
                return f
            return [r(0, b, VA, 64*dd + 32*(1-ks)), r(1, b+4, VB, ks*3072 + (7-dd)*16),
                    r(2, b+8, VB, ks*3072 + (7-dd)*16 + 512), r(3, b+12, VA, 64*dd + 32*(1-ks) + 2048)]
        for n in range(2):
            for f in reads(n): f()
        for n in range(16):
            b = FRS[n % 3]; L = reads(n+2) if n + 2 < 16 else []
            c0 = "0" if n == 0 else v(ACC,16); c1 = "0" if n == 0 else v(ACC+16,16)
            lg.wait(toks[(n,1)]); I(f"{MFMA} {v(ACC,16)}, {v(b,4)}, {v(b+4,4)}, {c0}")
            for f in L[0:2]: f()
            lg.wait(toks[(n,2)]); I(f"{MFMA} {v(ACC+16,16)}, {v(b,4)}, {v(b+8,4)}, {c1}")
            for f in L[2:3]: f()
            lg.wait(toks[(n,3)]); I(f"{MFMA} {v(ACC+16,16)}, {v(b+12,4)}, {v(b+4,4)}, {v(ACC+16,16)}")
            for f in L[3:4]: f()
            if n == PUBN:
                vm.wait(tc0); self.barrier(); self.publish(46); self.publish(47)
                if P0: seen()
            if n >= PUBN and n < 14:
                for _ in range(-(-len(wl) // (14 - n))): wl.pop(0)()
            if n == self.o.get("p1", 12): tc1 = self.poll_issue(VP, VPA, "s53")
            if n == 14 and P0: early(0, NCX - 2, 1)
        assert not wl
        I(f"s_add_u32 s43, s51, {HB}"); I(f"v_add_u32 v{T+2}, s43, v{VL16}")
        self.barrier()
        for i in range(8):
            I(f"ds_write_b128 v{T+2}, {v(ACC+4*i,4)} offset:{1024*i}"); lg.issue()
        I(f"s_lshl_b32 s43, s{SC}, 15"); I(f"s_lshl_b32 s44, s{SJ}, 11"); I("s_add_u32 s43, s43, s44"); I(f"s_add_u32 s43, s43, {HB}"); I(f"v_add_u32 v{T+2}, s43, v{VL16}")
        I(f"s_and_b32 s43, s{SJ}, 1"); I("s_mul_i32 s44, s43, 3072"); I(f"s_lshr_b32 s45, s{SJ}, 1"); I("s_lshl_b32 s41, s45, 9")
        I("s_add_u32 s44, s44, s41"); I(f"s_add_u32 s44, s44, s{SB}"); I("s_add_u32 s44, s44, 520")
        I(f"v_lshl_add_u32 v{T+3}, v{T}, 4, s44"); I(f"v_lshlrev_b32 v{VA}, 3, v{T+1}"); I(f"v_sub_u32 v{T+3}, v{T+3}, v{VA}")
        I(f"v_lshlrev_b32 v{VB}, 6, v{T}"); I(f"v_lshl_add_u32 v{VB}, v{T+1}, 4, v{VB}")
        I("s_lshl_b32 s45, s45, 11"); I("s_lshl_b32 s43, s43, 5"); I("s_add_u32 s45, s45, s43"); I(f"s_lshl_b32 s43, s{SC}, 12"); I("s_add_u32 s45, s45, s43")
        I(f"s_add_u32 s45, s45, {YB}"); I(f"v_add_u32 v{VB}, s45, v{VB}")
        I("s_lshl_b32 s43, s55, 16"); I("s_and_b32 s44, s55, 0xffff0000"); I(f"s_cmp_eq_u32 s{SC}, 0"); I("s_cselect_b32 s55, s43, s44")
        lg.wait(lg.issued); self.barrier()
        self.stamp(12)
        for p in range(4):
            for gq in range(2):
                I(f"ds_read_b128 {v(RD_+8*p+4*gq,4)}, v{T+2} offset:{8192*p+1024*gq}"); lg.issue()
        for gq in range(2):
            I(f"ds_read_b64 {v(ACC+2*gq,2)}, v{T+3} offset:{1536*gq}"); lg.issue()
        lk = a.label("SK"); I("s_cmp_lg_u32 s50, 0"); I(f"s_cbranch_scc1 {lk}")
        sv = self.save(); vm.wait(tc1); seen(); self.restore(sv); early(0, NCX - 2, 1)
        a.L(lk)
        early(NCX - 2, NCX, 2)
        lg.wait(lg.issued)
        for i in range(0, 8, 2):
            I(f"v_pk_add_f32 {v(RD_+i,2)}, {v(RD_+i,2)}, {v(RD_+8+i,2)}"); I(f"v_pk_add_f32 {v(RD_+16+i,2)}, {v(RD_+16+i,2)}, {v(RD_+24+i,2)}")
        for i in range(0, 8, 2): I(f"v_pk_add_f32 {v(RD_+i,2)}, {v(RD_+i,2)}, {v(RD_+16+i,2)}")
        for gq in range(2):
            for r in range(4):
                srcr = ACC + 2*gq + (1 - (r >> 1))
                I(f"v_lshlrev_b32 v{ACC+8}, 16, v{srcr}" if r & 1 else f"v_and_b32 v{ACC+8}, 0xffff0000, v{srcr}")
                I(f"v_fma_f32 v{RD_+4*gq+r}, v{ACC+8}, s55, v{RD_+4*gq+r}")
        for i in range(4): I(f"v_cvt_pk_bf16_f32 v{ACC+12+i}, v{RD_+2*i}, v{RD_+2*i+1}")
        I(f"v_permlane32_swap_b32 v{ACC+12}, v{ACC+14}"); I(f"v_permlane32_swap_b32 v{ACC+13}, v{ACC+15}")
        I(f"ds_write_b128 v{VB}, {v(ACC+12,4)}"); lg.issue()
        lg.wait(lg.issued); self.barrier()
        ly = a.label("NY")
        I(f"s_cmp_lg_u32 s{SW}, 0"); I(f"s_cbranch_scc1 {ly}")
        I(f"v_add_u32 v{T}, {YB}, v{VL16}")
        for i in range(8): I(f"ds_read_b128 {v(RD_+4*i,4)}, v{T} offset:{1024*i}")
        I(f"s_lshl_b32 s44, s{SF}, 13"); I(f"s_add_u32 s44, s44, {YT_OFF}"); I("s_add_u32 s45, s44, 4096")
        I("s_waitcnt lgkmcnt(0)")
        for i in range(8): I(f"buffer_store_dwordx4 {v(RD_+4*i,4)}, v{VL16}, s[{RWS}:{RWS+3}], s{44+(i>>2)} offen offset:{1024*(i&3)}{self.st}")
        a.L(ly)
        ll = a.label("NL")
        I("s_cmp_eq_u32 s50, 3"); I(f"s_cbranch_scc1 {ll}")
        self.poll_check(VP, VPA, "s53", 1)
        for i in range(NCX): cload(i)
        a.L(ll)
        self.stamp(6)
        YT = self.XB
        lrd = {}; ypub = False; ymark = vm.issued; free = []; fresh = []; nw = NW; nw2 = NW + NL; nc = NCX
        for i in range(32):
            if i % 4 == 0 and self.o.get("ostamp"): self.stamp(17 + i // 4)
            if i == 14:
                I(f"s_lshl_b32 s53, s57, 7"); I(f"s_lshl_b32 s42, s{SW}, 4"); I("s_add_u32 s53, s53, s42"); I(f"s_add_u32 s53, s53, {FY_OFF}")
                tf = self.poll_issue(VP, VPA, "s53")
            if i == 24:
                vm.wait(tf); self.poll_check(VP, VPA, "s53", 1)
                I(f"v_lshrrev_b32 v{T}, 3, v0"); I(f"v_and_b32 v{T+1}, 7, v0"); I(f"v_lshlrev_b32 v{T+1}, 4, v{T+1}")
                I(f"v_lshl_add_u32 v{T}, v{T}, 12, v{T+1}")
                I(f"s_add_u32 m0, s{SWK}, {YT}")
                I(f"s_lshl_b32 s44, s57, 18"); I(f"s_lshl_b32 s45, s{SW}, 15"); I("s_add_u32 s44, s44, s45")
                I(f"s_lshl_b32 s45, s56, 7"); I("s_add_u32 s44, s44, s45"); I(f"s_add_u32 s44, s44, {YT_OFF}")
                I(f"buffer_load_dwordx4 v{T}, s[{RWS}:{RWS+3}], s44 offen{self.ld} lds"); vm.issue()
                I(f"v_and_b32 v{T+1}, 15, v0"); I(f"s_lshr_b32 s48, s{SW}, 1"); I("s_lshl_b32 s48, s48, 4")
                I(f"s_lshl_b32 s45, s56, 6"); I("s_add_u32 s45, s45, s48"); I(f"v_add_u32 v{T+1}, s45, v{T+1}")
                I(f"v_lshlrev_b32 v{T+2}, 2, v{T+1}"); I(f"s_mov_b32 s45, {G_OFF}")
                I(f"buffer_load_dword v{GR}, v{T+2}, s[{RWS}:{RWS+3}], s45 offen{self.ld}"); vm.issue()
                I(f"v_lshrrev_b32 v{T+2}, 4, v0"); I(f"v_lshlrev_b32 v{T+2}, 4, v{T+2}"); I(f"v_lshl_add_u32 v{VO}, v{T+1}, 10, v{T+2}")
                I(f"s_and_b32 s49, s{SW}, 1"); I("s_lshl_b32 s49, s49, 6"); I(f"s_lshl_b32 s45, s57, 7"); I("s_add_u32 s49, s49, s45")
                I(f"buffer_load_dwordx4 {v(XR,4)}, v{VO}, s[{RD}:{RD+3}], s49 offen"); vm.issue()
            vm.wait(max(ctok[i], wtok.get(i, 0)))
            if i in lrd: lg.wait(lrd[i])
            if not ypub and vm.done > ymark:
                ypub = True
                I(f"s_lshl_b32 s44, s{SF}, 2"); I(f"s_add_u32 s44, s44, {FY_OFF}"); self.publish(44, 3)
            for mt in range(2):
                for st in range(2):
                    d = v(OACC + 16*(2*mt+st), 16)
                    I(f"{MFMA} {d}, {v(wslot[i]+4*mt,4)}, {v(cslot[i]+4*st,4)}, {'0' if i == 0 else d}")
            lagged, fresh = fresh, [wslot[i], cslot[i]]
            free += fresh
            while free:
                if nw < NW + NL and nw - i <= 3:
                    j = nw - NW; assert vm.done >= ltok[j]
                    r = free.pop(0); wslot[nw] = r
                    I("s_nop 3")
                    for mt in range(2):
                        I(f"ds_read_b128 {v(r+4*mt,4)}, v{VLW} offset:{j*2048+mt*1024}"); lrd[nw] = lg.issue()
                    nw += 1
                elif nc < 32 and (nc <= nw2 or nw2 >= 32):
                    cslot[nc] = free.pop(0); cload(nc); nc += 1
                elif nw2 < 32:
                    wslot[nw2] = free.pop(0); self.wload(nw2); nw2 += 1
                else: break
        self.stamp(7)
        I(f"v_and_b32 v{T}, 31, v0"); I(f"v_lshrrev_b32 v{T+1}, 5, v0"); I(f"v_and_b32 v{T+2}, 15, v0")
        I(f"v_lshlrev_b32 v{T+1}, 1, v{T+1}")
        I(f"v_xor_b32 v{T+1}, v{T+1}, v{T+2}"); I(f"v_lshlrev_b32 v{T+1}, 4, v{T+1}"); I(f"v_lshl_add_u32 v{T}, v{T}, 8, v{T+1}")
        I(f"v_add_u32 v{T}, s51, v{T}")
        for mt in range(2):
            for gq in range(4):
                I(f"v_xor_b32 v{T+1}, {(4*gq+mt)*16}, v{T}"); I(f"v_add_u32 v{T+3}, 0x10000, v{T+1}")
                for st in range(2):
                    I(f"ds_write_b128 v{T+1+2*st}, {v(OACC+16*(2*mt+st)+4*gq,4)}"); lg.issue()
        I(f"v_lshrrev_b32 v{T}, 4, v0"); I(f"s_and_b32 s41, s{SW}, 1"); I("s_lshl_b32 s42, s41, 3")
        I(f"v_lshl_add_u32 v{T+1}, v{T}, 1, s42"); I(f"v_xor_b32 v{T+1}, v{T+1}, v{T+2}"); I(f"v_lshlrev_b32 v{T+1}, 4, v{T+1}")
        I("s_and_b32 s43, s48, 16"); I(f"v_add_u32 v{T+3}, s43, v{T+2}"); I(f"v_lshl_add_u32 v24, v{T+3}, 8, v{T+1}")
        I("s_lshr_b32 s43, s48, 5"); I("s_lshl_b32 s43, s43, 16"); I("v_add_u32 v24, s43, v24"); I("v_xor_b32 v25, 16, v24")
        I("s_lshl_b32 s42, s41, 5"); I(f"v_lshl_add_u32 v{T}, v{T}, 3, s42"); I(f"v_bfe_u32 v{T+1}, v0, 2, 2")
        I(f"v_add_u32 v{T}, v{T}, v{T+1}"); I(f"v_lshlrev_b32 v{T}, 7, v{T}"); I(f"v_and_b32 v{T+1}, 3, v0")
        I(f"v_lshl_add_u32 v{T}, v{T+1}, 3, v{T}"); I("s_lshl_b32 s42, s48, 1"); I(f"s_add_u32 s42, s42, {YT}"); I(f"v_add_u32 v28, s42, v{T}")
        self.sync_all()
        CX = 128; tk = []
        I(f"ds_read_b64_tr_b16 {v(100,2)}, v28"); lg.issue()
        I(f"ds_read_b64_tr_b16 {v(102,2)}, v28 offset:512"); ty2 = lg.issue()
        for p in range(8):
            for hh in range(2):
                I(f"ds_read_b128 {v(CX+8*p+4*hh,4)}, v{24+hh} offset:{8192*p}"); lg.issue()
            tk.append(lg.issued)
            if p == 5:
                lg.wait(ty2)
                for e in range(8):
                    if e & 1: I(f"v_and_b32 v104, 0xffff0000, v{XR+(e>>1)}"); I(f"v_and_b32 v105, 0xffff0000, v{100+(e>>1)}")
                    else: I(f"v_lshlrev_b32 v104, 16, v{XR+(e>>1)}"); I(f"v_lshlrev_b32 v105, 16, v{100+(e>>1)}")
                    I(f"v_mul_f32 v{112+e}, v104, v105"); I(f"v_mul_f32 v{112+e}, v{112+e}, v{GR}")
                I(f"v_sub_f32 v{GR}, 1.0, v{GR}")
        for p in range(1, 8):
            lg.wait(tk[p])
            for e in range(0, 8, 2): I(f"v_pk_add_f32 {v(CX+e,2)}, {v(CX+e,2)}, {v(CX+8*p+e,2)}")
        for e in range(8): I(f"v_fmac_f32 v{112+e}, v{CX+4*(e&1)+(e>>1)}, v{GR}")
        for e in range(4): I(f"v_cvt_pk_bf16_f32 v{108+e}, v{112+2*e}, v{112+2*e+1}")
        I(f"buffer_store_dwordx4 {v(108,4)}, v{VO}, s[{RC}:{RC+3}], s49 offen{' sc1' if not self.o.get('outpl') else ' nt' if self.o.get('outnt') else ''}"); vm.issue()
        self.stamp(16)
        if self.o.get("echo"):
            lp = a.label("EC")
            I("s_sub_u32 s100, s100, s96"); I("s_memrealtime s[96:97]"); I("s_waitcnt lgkmcnt(0)")
            a.L(lp)
            I("s_memrealtime s[98:99]"); I("s_waitcnt lgkmcnt(0)"); I("s_sub_u32 s98, s98, s96"); I("s_cmp_lt_u32 s98, s100"); I(f"s_cbranch_scc1 {lp}")
        if self.o.get("dbgout") is not None:
            l = a.label("DB")
            I(f"s_cmp_lg_u32 s2, {self.o['dbgout']}"); I(f"s_cbranch_scc1 {l}"); I(f"s_cmp_lg_u32 s{SW}, 0"); I(f"s_cbranch_scc1 {l}")
            I("s_waitcnt vmcnt(0)")
            order = [0, 1, 2, 3, 8, 10, 11, 4, 5, 12, 6, 7, 16]
            I("v_mov_b32 v20, 0")
            for j, i in enumerate(order):
                I(f"s_mov_b32 s44, {4*i}"); I(f"v_writelane_b32 v20, s44, {j}")
            I(f"s_lshl_b32 s44, s2, 11"); I(f"s_add_u32 s44, s44, {STAMP_OFF}")
            I(f"buffer_load_dword v21, v20, s[{RWS}:{RWS+3}], s44 offen sc1"); I("s_waitcnt vmcnt(0)")
            I("v_readfirstlane_b32 s45, v21"); I("v_subrev_u32 v21, s45, v21")
            self.srd(RDBG, "dbg", 64); I("v_lshlrev_b32 v22, 2, v0")
            I(f"buffer_store_dword v21, v22, s[{RDBG}:{RDBG+3}], 0 offen")
            a.L(l)

def build(opts):
    g = G(opts); k = NAME + "_kernel"
    g.begin(k); g.proj(); g.attn(); g.tailp(); g.end(); g.attn_rare(); g.a.L("CODE_END"); g.a.I("s_endpgm")
    n = g.a.fix_hazards()
    txt = "; @launch grid=(256,1,1) block=(512,1,1) lds=163840\n"
    txt += '.amdgcn_target "amdgcn-amd-amdhsa--gfx950"\n.text\n' + g.a.text()
    txt += f""".section .rodata,"a"
.p2align 6
.amdhsa_kernel {k}
  .amdhsa_next_free_vgpr 256
  .amdhsa_next_free_sgpr 102
  .amdhsa_accum_offset 256
  .amdhsa_group_segment_fixed_size 0
  .amdhsa_kernarg_size 128
  .amdhsa_user_sgpr_count 2
  .amdhsa_user_sgpr_kernarg_segment_ptr 1
  .amdhsa_system_sgpr_workgroup_id_x 1
.end_amdhsa_kernel
"""
    print(f"instructions {sum(1 for it in g.a.items if it[0] == 'i')}, nops inserted {n}", file=sys.stderr)
    return txt

if __name__ == "__main__":
    opts = {}
    for x in sys.argv[2:]:
        if "=" in x: k_, v_ = x.split("="); opts[k_] = int(v_)
        else: opts[x] = True
    open(sys.argv[1], "w").write(build(opts))
```

```python
import sys, math, struct
sys.path.insert(0, "gen")
from asmlib import *

NAME = "gated_mix__ssm_conv_h3__compressed_kv_cla__prompt"
MB = 1 << 20
KV_OFF, Q_OFF, CTX_OFF, KVT_OFF, YT_OFF, G_OFF = 0, 32*MB, 48*MB, 64*MB, 66*MB, 68*MB
WOT_OFF = 32*MB
FLG_OFF = 68*MB + 65536
FK_OFF, FY_OFF, FC_OFF = FLG_OFF, FLG_OFF + 4096, FLG_OFF + 8192
STAMP_OFF = 69*MB
WS_SIZE = 70*MB
P = dict(q=64, k=66, v=68, shift=70, ssmk=72, ssmD=74, bx=76, ckv=78, wq=80, wuk=82, wuv=84, wo=86, gate=88, out=90, dbg=92, ws=94)
SW, SHEAD, SIDX, SWK, SF = 3, 4, 5, 6, 7
RA, RB, RC, RWS, RD, RE, RT, RDBG = 8, 12, 16, 20, 24, 28, 56, 60
MFMA = "v_mfma_f32_32x32x16_bf16"
LOG2E = 1.4426950408889634
F_KV, F_CA, F_CB, F_Y = 1, 2, 4, 8
def f2u(x): return "0x%08x" % struct.unpack("<I", struct.pack("<f", x))[0]
def rep4(b): return b * 0x01010101

class G:
    def __init__(self, opts):
        self.a = Asm(); self.o = opts
        self.vm = Cnt(self.a, "vmcnt", 63); self.lg = Cnt(self.a, "lgkmcnt", 15)
        self.st = "" if opts.get("plainst") else (" sc1 nt" if opts.get("ntst") else " sc1"); self.ld = "" if opts.get("plainld") else " sc1"
    def I(self, t): self.a.I(t)
    def srd(self, r, ptr, nbytes):
        I = self.I
        I(f"s_mov_b32 s{r}, s{P[ptr]}"); I(f"s_mov_b32 s{r+1}, s{P[ptr]+1}")
        I(f"s_mov_b32 s{r+2}, {nbytes}"); I(f"s_mov_b32 s{r+3}, 0x00020000")
    def save(self): return (self.vm.issued, self.vm.done, self.lg.issued, self.lg.done)
    def restore(self, s_): self.vm.issued, self.vm.done, self.lg.issued, self.lg.done = s_
    def stream(self, mf, fills):
        n = len(mf); slots = [[] for _ in range(n + 1)]
        for (s0, e0, cl) in fills:
            m = e0 - s0
            for j, c in enumerate(cl): slots[s0 + 1 + (j * m) // len(cl)].append(c)
        for c in slots[0]: c()
        for i in range(n):
            mf[i]()
            for c in slots[i+1]: c()
    def stamp(self, i, dyn=None):
        if self.o.get("echo") == i:
            self.I("s_memrealtime s[100:101]"); self.I("s_waitcnt lgkmcnt(0)")
        if not self.o.get("stamp"): return
        I = self.I
        I("s_memrealtime s[96:97]"); I("s_memtime s[100:101]")
        I("s_lshl_b32 s98, s2, 3"); I(f"s_add_u32 s98, s98, s{SW}"); I("s_lshl_b32 s98, s98, 8")
        I(f"s_add_u32 s98, s98, {STAMP_OFF + 4*i}")
        if dyn is not None:
            I(f"s_lshl_b32 s99, s{dyn}, 4"); I("s_add_u32 s98, s98, s99")
        I("s_waitcnt lgkmcnt(0)")
        I("v_mov_b32 v2, s96"); I("v_mov_b32 v3, 0")
        I(f"buffer_store_dword v2, v3, s[{RWS}:{RWS+3}], s98 offen")
        I("v_mov_b32 v2, s100")
        I(f"buffer_store_dword v2, v3, s[{RWS}:{RWS+3}], s98 offen offset:128")
    OOB = 0x40000000
    def publish(self, soff, val=1, srd=RWS, byte=False, idx=None):
        I = self.I
        self.oob_sel()
        if idx is not None: I(f"s_cmp_eq_u32 s{SIDX}, {idx}"); I(f"s_cselect_b32 s99, s99, {self.OOB}")
        I(f"v_mov_b32 v2, {val}"); I("v_mov_b32 v3, s99")
        I(f"buffer_store_{'byte' if byte else 'dword'} v2, v3, s[{srd}:{srd+3}], s{soff} offen sc1"); self.vm.issue()
    def oob_sel(self):
        self.I(f"s_cmp_eq_u32 s{SW}, 0"); self.I(f"s_cselect_b32 s99, 0, {self.OOB}")
    def poll_issue(self, vd, vaddr, soff, srd=RWS):
        self.I(f"buffer_load_dword v{vd}, v{vaddr}, s[{srd}:{srd+3}], {soff} offen sc1"); return self.vm.issue()
    def poll_check(self, vd, vaddr, soff, want, srd=RWS):
        a = self.a; I = self.I
        l = a.label("PCK"); lp = a.label("POLL")
        I(f"s_mov_b32 s98, {want}"); I("s_mov_b32 s99, 20000")
        a.L(lp)
        I(f"v_and_b32 v{vd}, s98, v{vd}"); I(f"v_cmp_ne_u32 vcc, s98, v{vd}"); I(f"s_cbranch_vccz {l}")
        I("s_sleep 2")
        I(f"buffer_load_dword v{vd}, v{vaddr}, s[{srd}:{srd+3}], {soff} offen sc1")
        I("s_sub_u32 s99, s99, 1"); I("s_cmp_lg_u32 s99, 0"); I("s_waitcnt vmcnt(0)"); I(f"s_cbranch_scc1 {lp}")
        a.L(l)
    def barrier(self): self.I("s_barrier")
    def sync_all(self):
        self.I("s_waitcnt vmcnt(0) lgkmcnt(0)"); self.vm.mark_all_done(); self.lg.mark_all_done(); self.barrier()

    def begin(self, kname):
        a = self.a; I = self.I
        a.T(f".globl {kname}\n.p2align 8\n.type {kname},@function"); a.L(kname)
        self.endl = a.label("END")
        if self.o.get("stamp"): I("s_memrealtime s[30:31]")
        if self.o.get("echo"): I("s_memrealtime s[96:97]")
        I("s_load_dwordx16 s[64:79], s[0:1], 0"); I("s_load_dwordx16 s[80:95], s[0:1], 64")
        I("s_cmp_ge_u32 s2, 256"); I(f"s_cbranch_scc1 {self.endl}")
        I("v_lshrrev_b32 v1, 6, v0"); I("v_and_b32 v0, 63, v0"); I(f"v_readfirstlane_b32 s{SW}, v1")
        I("s_and_b32 s7, s2, 7"); I("s_lshl_b32 s7, s7, 2")
        I(f"s_lshr_b32 s{SIDX}, s2, 3"); I(f"s_lshr_b32 s{SHEAD}, s{SIDX}, 3"); I(f"s_add_u32 s{SHEAD}, s{SHEAD}, s7")
        I(f"s_and_b32 s{SIDX}, s{SIDX}, 7"); I(f"s_lshl_b32 s{SWK}, s{SW}, 10")
        I(f"s_lshl_b32 s{SF}, s{SHEAD}, 3"); I(f"s_add_u32 s{SF}, s{SF}, s{SIDX}")
    def end(self):
        self.a.L(self.endl); self.I("s_endpgm")

    def proj(self):
        a = self.a; I = self.I; vm = self.vm; lg = self.lg
        QA_LDS = 65536
        ACC = {"K": 64, "V": 128, "Q": 64}; KP = 192
        FX = [16, 40]; FW = [24, 48]
        VXA = 4; VWA = 8; VOX, VOW = 10, 11; VST = 12; VXH = 224; T = 232
        NB = self.o.get("nb2", 0)
        ST = [("KV", c) for c in range(NB)] + [("K", c) for c in range(NB, 8)] + [("V", c) for c in range(7, NB - 1, -1)] + [("Q", c) for c in range(8)]
        NS = len(ST); TK = 7; TV = NS - 9; TQ = NS - 8
        I("v_lshrrev_b32 v13, 3, v0"); I(f"s_lshl_b32 s40, s{SW}, 3"); I("v_add_u32 v13, s40, v13"); I("v_lshlrev_b32 v13, 10, v13")
        I("v_lshrrev_b32 v14, 4, v0"); I(f"s_and_b32 s40, s{SW}, 1"); I("s_lshl_b32 s40, s40, 2"); I("v_add_u32 v15, s40, v14")
        I("v_and_b32 v3, 7, v0"); I("v_xor_b32 v15, v15, v3"); I(f"v_lshl_add_u32 v{VOX}, v15, 4, v13")
        I(f"s_lshl_b32 s40, s{SW}, 2"); I("v_add_u32 v13, s40, v14"); I("v_lshlrev_b32 v13, 13, v13")
        I("v_lshlrev_b32 v15, 2, v14"); I("v_and_b32 v3, 15, v0"); I("v_xor_b32 v15, v15, v3")
        I("v_lshl_add_u32 v13, v15, 4, v13"); I(f"s_lshl_b32 s40, s{SHEAD}, 8"); I(f"v_add_u32 v{VOW}, s40, v13")
        I(f"v_lshlrev_b32 v{VST}, 4, v0")
        I(f"s_lshl_b32 s44, s{SIDX}, 18")
        for i in range(1, 4): I(f"s_add_u32 s{44+i}, s44, {65536*i}")
        ROT = self.o.get("rot", 2)
        if ROT == 0: I("s_mov_b32 s33, 0")
        elif ROT == 1: I(f"s_mov_b32 s33, s{SIDX}")
        elif ROT == 2: I(f"s_lshr_b32 s33, s{SHEAD}, 2"); I(f"s_add_u32 s33, s33, s{SIDX}")
        elif ROT == 3: I(f"s_lshr_b32 s33, s{SHEAD}, 2"); I(f"s_add_u32 s33, s33, s{SIDX}"); I(f"s_lshl_b32 s34, s{SHEAD}, 1"); I("s_add_u32 s33, s33, s34")
        elif ROT == 4: I(f"s_lshr_b32 s33, s{SHEAD}, 2")
        I("s_waitcnt lgkmcnt(0)")
        if self.o.get("stamp"): I("s_memrealtime s[28:29]")
        self.srd(RA, "ckv", 2*MB); self.srd(RB, "wuk", 4*MB); self.srd(RC, "wuv", 4*MB)
        def xbase(t):
            k, c = ST[t]
            return (32768, 131072, 0)[((16 + c) if k == "Q" else (15 - c + NB)) % 3]
        units = [(t, m) for t in range(NS) for m in ST[t][0]]
        uidx = {u: i for i, u in enumerate(units)}
        def wbase(t, m): return 65536 + (uidx[(t, m)] % 4)*16384
        items = []
        lastx = {}
        for t in range(NS):
            k, c = ST[t]
            for m in k:
                u = uidx[(t, m)]
                def w(i, t=t, m=m, c=c):
                    if i == 0: I(f"s_add_u32 s34, s33, {c}"); I("s_and_b32 s34, s34, 7"); I("s_lshl_b32 s34, s34, 19")
                    I(f"s_add_u32 m0, s{SWK}, {wbase(t, m) + i*8192}"); I(f"s_add_u32 s41, s34, {i*262144}")
                    r = {"K": RB, "V": RC, "Q": RE}[m]
                    I(f"buffer_load_dwordx4 v{VOW}, s[{r}:{r+3}], s41 offen lds"); dtok[t] = vm.issue()
                items.append((t, units[u-4][0] if u >= 4 else -1, [lambda i=i, w=w: w(i) for i in range(2)]))
            key = ("Q" if k == "Q" else "C", c); prev = lastx.get(xbase(t))
            if prev is None or prev[1] != key:
                def x(i, t=t, k=k, c=c):
                    if i == 0: I(f"s_add_u32 s35, s33, {c}"); I("s_and_b32 s35, s35, 7"); I("s_lshl_b32 s35, s35, 7")
                    I(f"s_add_u32 m0, s{SWK}, {xbase(t) + i*8192}"); I(f"s_add_u32 s41, s{(48 if k == 'Q' else 44)+i}, s35")
                    r = RD if k == "Q" else RA
                    I(f"buffer_load_dwordx4 v{VOX}, s[{r}:{r+3}], s41 offen lds"); dtok[t] = vm.issue()
                items.append((t, prev[0] if prev else -1, [lambda i=i, x=x: x(i) for i in range(4)]))
            lastx[xbase(t)] = (t, key)
        dtok = {}
        def take(done, upto=99):
            out = []
            for it in list(items):
                if it[1] <= done and it[0] <= upto: out += it[2]; items.remove(it)
            return out
        for f in take(-1, 0): f()
        self.srd(RWS, "ws", WS_SIZE); self.srd(RDBG, "dbg", 256)
        self.stamp(31)
        if self.o.get("stamp"):
            I("v_mov_b32 v2, s30"); I("s_sub_u32 s98, s98, 124"); I(f"buffer_store_dword v2, v3, s[{RWS}:{RWS+3}], s98 offen")
            I("v_mov_b32 v2, s28"); I(f"buffer_store_dword v2, v3, s[{RWS}:{RWS+3}], s98 offen offset:120")
        I(f"s_lshl_b32 s48, s{SIDX}, 17"); I("s_add_u32 s49, s48, 65536")
        I(f"s_sub_u32 s50, 15, s{SIDX}"); I("s_lshl_b32 s50, s50, 17"); I("s_add_u32 s51, s50, 65536")
        I(f"s_and_b32 s42, s{SW}, 3"); I("s_lshl_b32 s42, s42, 6"); I(f"s_lshr_b32 s43, s{SW}, 2"); I("s_lshl_b32 s43, s43, 1")
        I("v_and_b32 v13, 31, v0"); I("v_add_u32 v13, s42, v13")
        I("v_lshrrev_b32 v14, 1, v13"); I("v_and_b32 v14, 7, v14"); I("v_lshrrev_b32 v15, 5, v0")
        I("v_xor_b32 v14, v14, v15"); I("v_lshlrev_b32 v14, 4, v14"); I(f"v_lshl_add_u32 v{VXA}, v13, 7, v14")
        for k in range(1, 4): I(f"v_xor_b32 v{VXA+k}, {k<<5}, v{VXA}")
        for k in range(4): I(f"v_add_u32 v{VXH+k}, 0x20000, v{VXA+k}")
        I("v_bfe_u32 v13, v0, 2, 2"); I("v_lshl_add_u32 v14, v15, 3, v13"); I("v_lshlrev_b32 v14, 8, v14")
        I("v_bfe_u32 v15, v0, 4, 1"); I("v_lshl_add_u32 v14, v15, 5, v14")
        I("v_and_b32 v15, 3, v0"); I("v_lshl_add_u32 v14, v15, 3, v14"); I("v_add_u32 v14, 0x10000, v14")
        I("v_xor_b32 v13, s43, v13"); I(f"v_lshl_add_u32 v{VWA}, v13, 6, v14"); I(f"v_xor_b32 v{VWA+1}, 64, v{VWA}")
        I(f"s_lshl_b32 s54, s{SHEAD}, 4"); I(f"s_lshl_b32 s55, s{SIDX}, 1"); I("s_add_u32 s54, s54, s55")
        I(f"s_bfe_u32 s55, s{SW}, 0x10001"); I("s_add_u32 s54, s54, s55"); I("s_lshl_b32 s54, s54, 16")
        I(f"s_and_b32 s55, s{SW}, 1"); I("s_lshl_b32 s55, s55, 14"); I("s_add_u32 s54, s54, s55")
        I("s_lshl_b32 s55, s43, 10"); I("s_add_u32 s52, s54, s55"); I("s_add_u32 s52, s52, 0x8000")
        I("s_lshl_b32 s55, s43, 11"); I("s_add_u32 s54, s54, s55")
        XG = T; GW = T + 4; hl = {}
        def gate_loads():
            L = []
            def E(t): L.append(lambda: I(t))
            def V(t):
                def f(): I(t); hl["t"] = vm.issue()
                L.append(f)
            E(f"s_lshl_b32 s40, s{SHEAD}, 7"); E(f"s_lshl_b32 s39, s{SIDX}, 2"); E("s_add_u32 s40, s40, s39"); E(f"s_add_u32 s40, s40, {FK_OFF}")
            E(f"v_mov_b32 v13, s40")
            E(f"s_lshr_b32 s39, s{SHEAD}, 2"); E("s_lshl_b32 s39, s39, 7"); E(f"s_and_b32 s40, s{SHEAD}, 3"); E("s_lshl_b32 s40, s40, 2"); E("s_add_u32 s39, s39, s40")
            E(f"s_lshl_b32 s40, s{SIDX}, 10"); E("s_add_u32 s40, s40, s39"); E(f"s_add_u32 s40, s40, {FC_OFF}")
            E("v_writelane_b32 v13, s40, 1")
            E(f"s_sub_u32 s40, 15, s{SIDX}"); E("s_lshl_b32 s40, s40, 10"); E("s_add_u32 s40, s40, s39"); E(f"s_add_u32 s40, s40, {FC_OFF}")
            E("v_writelane_b32 v13, s40, 2")
            E(f"s_lshl_b32 s40, s{SF}, 2"); E(f"s_add_u32 s40, s40, {FY_OFF}"); E("v_writelane_b32 v13, s40, 3"); E("v_mov_b32 v14, 0")
            def oo(): self.oob_sel(); I("v_add_u32 v13, s99, v13")
            L.append(oo)
            V(f"buffer_store_dword v14, v13, s[{RWS}:{RWS+3}], 0 offen sc1")
            E("s_lshl_b32 s37, s2, 3"); E(f"s_add_u32 s37, s37, s{SW}"); E("s_lshl_b32 s38, s37, 10")
            L.append(lambda: self.srd(RD, "q", 2*MB)); L.append(lambda: self.srd(RE, "wq", 4*MB)); L.append(lambda: self.srd(RT, "gate", 1024))
            V(f"buffer_load_dwordx4 {v(XG,4)}, v{VST}, s[{RD}:{RD+3}], s38 offen")
            V(f"buffer_load_dwordx4 {v(GW,4)}, v{VST}, s[{RT}:{RT+3}], 0 offen")
            return L
        def gate_ops():
            L = []; E = lambda t: L.append(lambda: I(t)); Z = T + 8
            L.append(lambda: vm.wait(hl["t"]))
            E(f"v_dot2_f32_bf16 v{Z}, v{XG}, v{GW}, 0")
            for i in range(1, 4): E(f"v_dot2_f32_bf16 v{Z}, v{XG+i}, v{GW+i}, v{Z}")
            for m in ("quad_perm:[1,0,3,2] row_mask:0xf", "quad_perm:[2,3,0,1] row_mask:0xf", "row_half_mirror row_mask:0xf", "row_mirror row_mask:0xf",
                      "row_bcast:15 row_mask:0xa", "row_bcast:31 row_mask:0xc"):
                E(f"v_add_f32_dpp v{Z}, v{Z}, v{Z} {m} bank_mask:0xf")
            E(f"v_readlane_b32 s36, v{Z}, 63"); E(f"v_mov_b32 v{Z+1}, {f2u(-LOG2E)}"); E(f"v_mul_f32 v{Z}, s36, v{Z+1}")
            E(f"v_exp_f32 v{Z}, v{Z}"); E(f"v_add_f32 v{Z}, 1.0, v{Z}"); E(f"v_rcp_f32 v{Z}, v{Z}")
            E("s_lshl_b32 s38, s37, 2"); E(f"s_add_u32 s38, s38, {G_OFF}"); E(f"v_mov_b32 v{Z+1}, 0")
            def gs():
                I(f"buffer_store_dword v{Z}, v{Z+1}, s[{RWS}:{RWS+3}], s38 offen{self.st}"); vm.issue()
            L.append(gs)
            return L
        def reads(t, k):
            st = k & 1; toks = {}
            xb = xbase(t); va = VXA if xb < 65536 else VXH
            def rx(mt):
                I(f"ds_read_b128 {v(FX[st]+4*mt,4)}, v{va+k} offset:{(xb & 65535)+mt*4096}"); toks[("x",mt)] = lg.issue()
            def rw(j, dt, h):
                m = ST[t][0][j]
                I(f"ds_read_b64_tr_b16 {v(FW[st]+8*j+4*dt+2*h,2)}, v{VWA+dt} offset:{wbase(t, m)-65536+k*4096+h*1024}"); toks[("w",j,dt)] = lg.issue()
            L = [lambda: rx(0), lambda: rw(0,0,0), lambda: rw(0,0,1), lambda: rw(0,1,0), lambda: rw(0,1,1), lambda: rx(1)]
            if len(ST[t][0]) == 2: L += [lambda: rw(1,0,0), lambda: rw(1,0,1), lambda: rw(1,1,0), lambda: rw(1,1,1)]
            return L, toks
        seen = set()
        def mfs(t, k, toks):
            st = k & 1; L = []
            for j, m in enumerate(ST[t][0]):
                first = m not in seen; seen.add(m)
                for mt in range(2):
                    for dt in range(2):
                        def f(mt=mt, dt=dt, j=j, m=m, first=first):
                            lg.wait(max(toks[("x",mt)], toks[("w",j,dt)]))
                            d = v(ACC[m] + 16*(2*mt+dt), 16); X = v(FX[st]+4*mt,4); W = v(FW[st]+8*j+4*dt,4)
                            c = "0" if first else d
                            I(f"{MFMA} {d}, {X}, {W}, {c}" if m == "V" else f"{MFMA} {d}, {W}, {X}, {c}")
                        L.append(f)
            return L
        def kv_out(m):
            acc = ACC[m]; out = []
            for tile in range(4):
                rt, dt = tile >> 1, tile & 1; b = acc + 16*tile
                for half in range(2):
                    d = KP + 8*tile + 4*half if m == "K" else b + 4*half
                    pk = [lambda i=i, b=b, d=d, half=half: I(f"v_cvt_pk_bf16_f32 v{d+i}, v{b+8*half+2*i}, v{b+8*half+2*i+1}") for i in range(4)]
                    if m == "K": pk = [lambda i=i, b=b: I(f"v_mul_f32 v{b+i}, {f2u(LOG2E / math.sqrt(128.0))}, v{b+i}") for i in range(8*half, 8*half+8)] + pk
                    off = rt*8192 + (dt*2048 + half*1024 if m == "K" else half*4096 + dt*1024)
                    def st(d=d, off=off):
                        if self.o.get("nost"): return
                        I(f"s_add_u32 s41, s{54 if m == 'K' else 52}, {off}")
                        I(f"buffer_store_dwordx4 {v(d,4)}, v{VST}, s[{RWS}:{RWS+3}], s41 offen{self.st}"); vm.issue()
                    out.append((pk, st))
            return out
        side = {}; late = {}
        def spread(ops, t0, t1, dst=side, ks=(0, 1, 2)):
            sl = [(t, k) for t in range(t0, t1) for k in ks]; n = len(ops)
            for j, key in enumerate(sl): dst.setdefault(key, []).extend(ops[n*j//len(sl): n*(j+1)//len(sl)])
        PG = self.o.get("pg", 0)
        spread(gate_loads(), PG, PG + 1); spread(gate_ops(), PG + 3, PG + 4)
        def wtouch(r, half, wv):
            def f():
                I(f"s_cmp_eq_u32 s{SW}, {wv}"); I(f"s_cselect_b32 s99, 0, {self.OOB}")
                I(f"s_lshl_b32 s40, s{SIDX}, 19"); I(f"s_lshl_b32 s39, s{SHEAD}, 8"); I("s_add_u32 s40, s40, s39"); I(f"s_add_u32 s40, s40, {half*32*8192}")
                I("v_lshrrev_b32 v3, 1, v0"); I("v_lshlrev_b32 v3, 13, v3"); I("v_and_b32 v2, 1, v0"); I("v_lshl_add_u32 v3, v2, 7, v3"); I("v_add_u32 v3, s99, v3")
                I(f"buffer_load_dword v1, v3, s[{r}:{r+3}], s40 offen"); vm.issue()
            return f
        for nm, r, dflt in (("tk", RB, -1), ("tv", RC, 1), ("tq", RE, 3)):
            t0 = self.o.get(nm, dflt)
            if t0 >= 0:
                for half in range(2): side.setdefault((t0 + half, 2), []).append(wtouch(r, half, half))
        KN = self.o.get("kn", 8); VD = self.o.get("vd", 0); VN = self.o.get("vn", 5)
        KO = kv_out("K"); VO = kv_out("V")
        spread(sum((p for p, _ in KO), []), TK + 1, min(TK + 3, TQ), ks=(0, 1))
        npk = 2 * (min(TK + 3, TQ) - TK - 1)
        spread([s_ for _, s_ in KO], TK + 1, TK + 1 + KN, dst=late, ks=(2,))
        assert len(late[(TK + 1, 2)]) <= 8 * 2 // npk
        spread(sum((p for p, _ in VO), []), TQ, TQ + 1, ks=(0, 1))
        spread([s_ for _, s_ in VO], TQ + VD, TQ + VD + VN, dst=late, ks=(2,))
        PK_, PV_ = TK + KN + 2, TQ + VD + VN
        assert PK_ <= NS - 5 and PV_ <= NS - 2
        QE = []; EQ = lambda t: QE.append(lambda: I(t))
        EQ(f"s_and_b32 s55, s{SW}, 2"); EQ("s_lshl_b32 s55, s55, 15"); EQ(f"s_add_u32 s55, s55, {QA_LDS}")
        EQ(f"s_and_b32 s54, s{SW}, 1"); EQ("s_lshl_b32 s54, s54, 14"); EQ("s_add_u32 s55, s55, s54")
        EQ("s_lshl_b32 s54, s43, 11"); EQ("s_add_u32 s55, s55, s54"); EQ(f"v_add_u32 v14, s55, v{VST}")
        spread(QE, NS - 1, NS)
        spread([lambda r=r: I(f"v_mov_b64 {v(192+2*r,2)}, 0") for r in range(32)], NS - 1, NS)
        def fkoff():
            I(f"s_lshl_b32 s40, s{SHEAD}, 7"); I(f"s_lshl_b32 s41, s{SIDX}, 2"); I("s_add_u32 s40, s40, s41"); I(f"s_add_u32 s40, s40, {FK_OFF}")
        def w0only(fn):
            l = a.label("NP"); I(f"s_cmp_lg_u32 s{SW}, 0"); I(f"s_cbranch_scc1 {l}"); fn(); a.L(l)
        def k0(i):
            I(f"s_lshl_b32 s40, s{SW}, 12"); I("s_add_u32 m0, s40, 0x8000")
            I(f"s_lshl_b32 s41, s{SHEAD}, 20"); I("s_add_u32 s41, s41, s40")
            I(f"buffer_load_dwordx4 v{VST}, s[{RWS}:{RWS+3}], s41 offen offset:{1024*i}{self.ld} lds"); vm.issue()
        self.barrier()
        for f in take(-1, 1): f()
        vm.wait(dtok[0]); self.barrier()
        self.stamp(1)
        L, toks = reads(0, 0)
        for f in L: f()
        mark = {}; TZ = PG + 2; DS = self.o.get("dsteps", 3)
        pend = take(-1)
        for t in range(NS):
            for k in range(4):
                M = mfs(t, k, toks); n = len(M); PB = []
                if k == 3 and t < NS - 1:
                    assert not pend
                    if t == NS - 5: vm.wait(td); w0only(lambda: self.poll_check(14, 13, "0", rep4(1), RDBG))
                    if t == NS - 3: vm.wait(tp); w0only(lambda: self.poll_check(15, 13, "s53", 1))
                    lg.wait(lg.issued); vm.wait(dtok[t+1])
                    if t == TZ: vm.wait(mark[TZ-2])
                    if t == PK_: vm.wait(mark[TK + KN])
                    if t == PV_: vm.wait(mark[PV_ - 1])
                    self.barrier()
                    ps = self.o.get("pstamp")
                    if ps is not None and 0 <= t - int(ps) + 1 < 13: self.stamp(17 + t - int(ps) + 1); vm.issue(2)
                    if TZ <= t < TZ + 8: PB.append(lambda t=t: self.publish(SF, 1, RDBG, True, idx=t - TZ))
                    if t == PK_: PB.append(lambda: (fkoff(), self.publish(40, 1)))
                    if t == PV_: PB.append(lambda: (fkoff(), self.publish(40, 3)))
                    pend = take(t)
                    if t == NS - 3: pend += [lambda i=i: k0(i) for i in range(4)]
                    nd = len(pend) // (DS + 1)
                else:
                    nd = -(-len(pend) // max(1, (3 if t == 0 else DS) - k))
                D, pend = pend[:nd], pend[nd:]
                fl = []
                if not (t == NS - 1 and k == 3):
                    L, nt = reads(t, k+1) if k < 3 else reads(t+1, 0)
                    fl.append((0, max(3, n - 2) if n > 4 else 3, L))
                if PB: fl.append((1, 2, PB))
                if D: fl.append((0, n, D))
                if side.get((t, k)): fl.append((0, n, side[(t, k)]))
                if late.get((t, k)): fl.append((n - 2, n, late[(t, k)]))
                self.stream(M, fl); toks = nt
                if k == 2: mark[t] = vm.issued
                if t == NS - 7 and k == 0:
                    self.oob_sel(); I("v_lshl_add_u32 v13, v0, 2, s99"); td = self.poll_issue(14, 13, "0", RDBG)
                if t == NS - 4 and k == 0:
                    self.oob_sel(); I("v_and_b32 v13, 7, v0"); I("v_lshl_add_u32 v13, v13, 2, s99")
                    I(f"s_lshl_b32 s53, s{SHEAD}, 7"); I(f"s_add_u32 s53, s53, {FK_OFF}")
                    tp = self.poll_issue(15, 13, "s53")
            if t == TK: self.stamp(2)
            if t == TV: self.stamp(13)
        assert not items
        self.stamp(3)
        I("v_mov_b32 v62, v13")
        self.poll_issue(63, 62, "s53")
        for tile in range(4):
            rt, dt = tile >> 1, tile & 1; b = ACC["Q"] + 16*tile
            for i in range(8): I(f"v_cvt_pk_bf16_f32 v{b+i}, v{b+2*i}, v{b+2*i+1}")
            for half in range(2):
                I(f"ds_write_b128 v14, {v(b+4*half,4)} offset:{rt*8192+dt*2048+half*1024}"); lg.issue()
        self.attn_setup()
        vm.wait(vm.issued); w0only(lambda: self.poll_check(63, 62, "s53", 3))
        lg.wait(lg.issued); self.barrier()

    def attn_setup(self): self.attn(True)
    def attn(self, setup=False):
        a = self.a; I = self.I; vm = self.vm; lg = self.lg; stream = self.stream
        ML = 159744; QA_LDS = 65536; QB_LDS = 131072
        O = 192; QF = 160; NM = 144; S = [112, 128]; PP = [96, 104]; RING = 64; NR = 8; E = 56; PK = 16
        VK, VV, VL16, LRUN, LU, THR, NINF, VQ, TMP, LA = 4, 5, 6, 7, 8, 9, 10, 11, 12, 14
        SR, SG, SC1, SC2, SKO, SVO, SKM, SVM, STH = 32, 33, 34, 35, 36, 37, 38, 39, 42
        SMK, SFIN, SCA, SM1 = 54, 55, 59, 58
        DC = self.o.get("dmacost", 16); WEV = self.o.get("wev", 2)
        if setup:
            I(f"s_and_b32 s{SR}, s{SW}, 3"); I(f"s_lshr_b32 s{SG}, s{SW}, 2")
            I(f"v_lshlrev_b32 v{VL16}, 4, v0")
            I(f"s_lshl_b32 s44, s{SR}, 13"); I(f"s_add_u32 s44, s44, {QB_LDS}"); I(f"v_add_u32 v{VQ}, s44, v{VL16}")
            I(f"s_lshl_b32 s45, s{SG}, 16"); I(f"v_subrev_u32 v{TMP+1}, s45, v{VQ}")
            I(f"s_mov_b32 s{SC1}, s{SIDX}")
            I(f"s_lshl_b32 s{SC2}, s{SIDX}, 1"); I(f"s_sub_u32 s{SC2}, 14, s{SC2}")
            I(f"s_cmp_eq_u32 s{SG}, 1"); I(f"s_cselect_b32 s{SM1}, 0, -1")
            I(f"s_lshl_b32 s43, s{SW}, 12"); I(f"s_lshl_b32 s{SVO}, s{SHEAD}, 20"); I(f"s_add_u32 s{SVO}, s{SVO}, s43")
            I(f"s_add_u32 s{SKO}, s{SVO}, 0x10000"); I(f"s_add_u32 s{SVO}, s{SVO}, 0x8000")
            I(f"s_mov_b32 s{SKM}, s43"); I(f"s_add_u32 s{SVM}, s43, 0x18000")
            I(f"s_mov_b32 s{STH}, {f2u(4096.0)}"); I(f"v_mov_b32 v{NINF}, 0xff800000")
            I(f"v_and_b32 v{THR}, 31, v0"); I(f"s_lshl_b32 s44, s{SR}, 5"); I(f"v_add_u32 v{THR}, s44, v{THR}")
            I(f"v_lshrrev_b32 v{TMP}, 5, v0"); I(f"v_lshlrev_b32 v{TMP}, 2, v{TMP}"); I(f"v_sub_u32 v{THR}, v{THR}, v{TMP}")
            I(f"v_add_u32 v{VK}, 0x8000, v{VL16}")
            I(f"s_lshl_b32 s{SCA}, s{SIDX}, 2"); I(f"s_add_u32 s{SCA}, s{SCA}, s{SR}"); I(f"s_lshl_b32 s{SCA}, s{SCA}, 5"); I(f"s_add_u32 s{SCA}, s{SCA}, s{SHEAD}")
            I(f"s_lshl_b32 s{SCA}, s{SCA}, 13"); I(f"s_add_u32 s{SCA}, s{SCA}, {CTX_OFF}")
            I(f"s_mov_b32 s{SFIN}, 0")
            if self.o.get("map84", 1):
                I(f"s_lshr_b32 s56, s{SF}, 6"); I("s_lshl_b32 s56, s56, 3"); I(f"s_bfe_u32 s44, s{SF}, 0x30002"); I("s_add_u32 s56, s56, s44")
                I(f"s_bfe_u32 s57, s{SF}, 0x10005"); I("s_lshl_b32 s57, s57, 2"); I(f"s_and_b32 s44, s{SF}, 3"); I("s_add_u32 s57, s57, s44")
                I(f"s_and_b32 s40, s{SF}, 63"); I("s_lshl_b32 s40, s40, 16")
            else:
                I(f"s_mov_b32 s56, s{SHEAD}"); I(f"s_mov_b32 s57, s{SIDX}")
                I(f"s_and_b32 s40, s{SF}, 31"); I("s_lshl_b32 s40, s40, 17")
            I(f"s_lshl_b32 s44, s{SW}, 13"); I("s_add_u32 s40, s40, s44"); I(f"s_add_u32 s40, s40, {WOT_OFF}")
            self.srd(RB, "ssmk", 2*MB); self.srd(RA, "k", 2*MB); self.srd(RC, "v", 2*MB); self.srd(RD, "shift", 4096); self.srd(RE, "wo", 4*MB)
            I("s_mov_b32 s41, 0")
            if not self.o.get("noprio"):
                l = a.label("PR"); I(f"s_cmp_eq_u32 s{SG}, 1"); I(f"s_cbranch_scc0 {l}"); I("s_setprio 1"); a.L(l)
            return
        def loadq(va):
            qt = []
            for ds in range(8):
                I(f"ds_read_b128 {v(QF+4*ds,4)}, v{va} offset:{1024*ds}"); qt.append(lg.issue())
            return qt
        op = lambda t, c=4: (lambda: I(t), c)
        def dma4(kind):
            sm, so = (SKM, SKO) if kind == "k" else (SVM, SVO)
            def d(i):
                def f():
                    if i == 0: I(f"s_mov_b32 m0, s{sm}"); I(f"s_xor_b32 s{sm}, s{sm}, 0x8000")
                    if not (self.o.get("a_nodma") and i):
                        I(f"buffer_load_dwordx4 v{VL16}, s[{RWS}:{RWS+3}], s{so} offen offset:{1024*i}{self.ld} lds")
                    if i == 3: I(f"s_add_u32 s{so}, s{so}, 0x10000")
                return (f, DC + (8 if i == 0 else 4 if i == 3 else 0))
            return [d(i) for i in range(4)]
        self.ring_n = 0
        def rd(kind, sl, idx):
            h = {}
            def f():
                slot = self.ring_n % NR; self.ring_n += 1
                h["reg"] = RING + 4*slot
                I(f"ds_read_b128 {v(h['reg'],4)}, v{VK if kind == 'k' else VV} offset:{sl*8192+idx*1024}"); h["tok"] = lg.issue()
            return f, h
        def wait_for(R, i):
            if R[i][1]["tok"] <= lg.done: return
            j = i
            while j + 1 < len(R) and j + 1 < i + WEV and "tok" in R[j+1][1] and R[j+1][1]["tok"] > R[i][1]["tok"]: j += 1
            lg.wait(R[j][1]["tok"])
        def mf_qk(sb, ds, R, i, czero=False):
            wait_for(R, i)
            c = (("0" if czero else v(NM,16)) if ds == 0 else v(S[sb],16))
            I(f"{MFMA} {v(S[sb],16)}, {v(R[i][1]['reg'],4)}, {v(QF+4*ds,4)}, {c}")
        def mf_pv(pb, idx, R, i=None, reg=None):
            ks, dt = idx >> 2, idx & 3
            if reg is None: wait_for(R, i); reg = R[i][1]["reg"]
            I(f"{MFMA} {v(O+16*dt,16)}, {v(reg,4)}, {v(PP[pb]+4*ks,4)}, {v(O+16*dt,16)}")
        def sm_ops(sb):
            L = []
            ex = lambda i: op(f"v_exp_f32 v{E+(i&7)}, v{S[sb]+i}", 8)
            def post(j):
                r = []; e0, e1 = E + ((2*j) & 7), E + ((2*j+1) & 7)
                if j == 0: r.append(op(f"v_add_f32 v{LU}, v{e0}, v{e1}"))
                else: r += [op(f"v_add_f32 v{LU}, v{LU}, v{e0}"), op(f"v_add_f32 v{LU}, v{LU}, v{e1}")]
                r.insert(1 if j else 0, op(f"v_cvt_pk_bf16_f32 v{PP[sb]+j}, v{e0}, v{e1}"))
                return r
            L += [ex(0), ex(1)]
            for j in range(8):
                p = post(j)
                L += ([ex(2*j+2), p[0], ex(2*j+3)] + p[1:]) if j < 7 else p
            if self.o.get("a_nosm"): L = [(lambda: None, 0) if i > 3 else x for i, x in enumerate(L)]
            return L
        def sched(M, fixed, chain):
            n = len(M); fc = [sum(c for _, c in fixed.get(g, [])) for g in range(n)]
            tot = sum(c for _, c in chain)
            lo, hi = 0.0, 4000.0
            for _ in range(40):
                lev = (lo + hi) / 2
                if sum(max(0, lev - f) for f in fc) >= tot: hi = lev
                else: lo = lev
            k = 0; credit = 0.0
            for g in range(n):
                M[g]()
                for c, _ in fixed.get(g, []): c()
                credit += max(0, hi - fc[g])
                while k < len(chain) and (g == n - 1 or chain[k][1] <= credit + 2):
                    chain[k][0](); credit -= chain[k][1]; k += 1
        def put(fixed, g, items): fixed.setdefault(g, []).extend(items)
        SPL = self.o.get("spl", 26)
        ool = []
        def rarely(cmp_, body):
            lo = a.label("OOL"); lb = a.label("RET")
            I(cmp_); I(f"s_cbranch_scc1 {lo}"); a.L(lb)
            ool.append((lo, lb, body))
        def mask_body(sb, koff):
            prs = [46, 48, 50, 52]
            if koff >= 64:
                I(f"v_subrev_u32 v{TMP+3}, 64, v{THR}"); tr = TMP + 3; koff -= 64
            elif koff < 0:
                I(f"s_lshl_b32 s44, s{SG}, 6"); I(f"v_subrev_u32 v{TMP+3}, s44, v{THR}"); tr = TMP + 3; koff = -koff - 1
            else: tr = THR
            for r0 in range(0, 16, 4):
                for r in range(r0, r0+4):
                    I(f"v_cmp_lt_i32 s[{prs[r&3]}:{prs[r&3]+1}], v{tr}, {(r & 3) + 8*(r >> 2) + koff}")
                for r in range(r0, r0+4):
                    I(f"v_cndmask_b32 v{S[sb]+r}, v{S[sb]+r}, v{NINF}, s[{prs[r&3]}:{prs[r&3]+1}]")
        def rowmax(sb, dst):
            b = S[sb]
            I(f"v_max3_f32 v{dst}, v{b}, v{b+1}, v{b+2}")
            for i in range(3, 15, 2): I(f"v_max3_f32 v{dst}, v{dst}, v{b+i}, v{b+i+1}")
            I(f"v_max_f32 v{dst}, v{dst}, v{b+15}"); I(f"v_mov_b32 v{dst+1}, v{dst}")
            I(f"v_permlane32_swap_b32 v{dst}, v{dst+1}"); I(f"v_max_f32 v{dst}, v{dst}, v{dst+1}")
        def init_max():
            rowmax(0, TMP)
            I(f"v_max_f32 v{TMP}, {f2u(-1e30)}, v{TMP}")
            for r in range(16): I(f"v_sub_f32 v{NM+r}, 0, v{TMP}")
            return [op(f"v_sub_f32 v{S[0]+r}, v{S[0]+r}, v{TMP}") for r in range(16)]
        rare = []
        def check(sb, other=True):
            def f():
                lr = a.label("RARE"); lb = a.label("BACK")
                I(f"v_cmp_nge_f32 vcc, s{STH}, v{LU}")
                if self.o.get("a_nocheck"): I("s_mov_b64 vcc, 0")
                I(f"s_cbranch_vccnz {lr}"); a.L(lb)
                I(f"v_add_f32 v{LRUN}, v{LRUN}, v{LU}")
                rare.append((lr, lb, sb, other))
            return f
        def fin_body():
            I(f"v_mov_b32 v{TMP}, v{LA}"); I(f"s_mov_b32 s{SFIN}, 2"); I("s_nop 0")
            I(f"v_permlane32_swap_b32 v{TMP}, v{LA}"); I(f"v_add_f32 v{TMP}, v{TMP}, v{LA}"); I(f"v_rcp_f32 v{TMP}, v{TMP}"); I(f"v_mov_b32 v{TMP+1}, v{TMP}")
            for q in range(8):
                for i in range(8*q, 8*q+8, 2): I(f"v_pk_mul_f32 {v(O+i,2)}, {v(O+i,2)}, {v(TMP,2)}")
                for i in range(4): I(f"v_cvt_pk_bf16_f32 v{PK+4*q+i}, v{O+8*q+2*i}, v{O+8*q+2*i+1}")
                for i in range(8*q, 8*q+8, 2): I(f"v_mov_b64 {v(O+i,2)}, 0")
        def st_body():
            I(f"s_add_u32 s44, s{SCA}, 4096"); I(f"s_mov_b32 s{SFIN}, 3")
            for q in range(8):
                I(f"buffer_store_dwordx4 {v(PK+4*q,4)}, v{VL16}, s[{RWS}:{RWS+3}], s{SCA if q < 4 else 44} offen offset:{1024*(q&3)}{self.st}")
        TR = [RING + 4*(2+i) for i in range(6)]
        def head(R, vmw, with_mfma=True, post=()):
            rf = [(f, 4) for f, h in R]; sm2 = sm_ops(0)[SPL:]
            nop = lambda: None
            def first():
                I("s_waitcnt lgkmcnt(4)"); mf_pv(1, 2, None, reg=TR[0])
            M = [first] + [lambda i=i: mf_pv(1, 2+i, None, reg=TR[i]) for i in range(1, 6)] if with_mfma else [nop]*6
            nb = self.o.get("nb", 4)
            sched(M[:2], {}, sm2[:nb])
            vmw(); I("s_waitcnt lgkmcnt(0)"); lg.mark_all_done(); self.barrier(); self.ring_n = 0
            fx = {0: rf[0:2], 1: rf[2:5], 2: rf[5:6], 3: rf[6:7] + [(nop, 12 + 8*len(post))]}
            sched(M[2:], fx, sm2[nb:])
            check(0)()
            for p in post: p()
        def mk_reads():
            return ([rd("k", 0, i) for i in range(8)] + [rd("v", 0, i) for i in range(8)] +
                    [rd("k", 1, i) for i in range(8)] + [rd("v", 1, i) for i in range(8)])
        def mid(R, dmas, kx, mb=None, trans=False, endops=(), extra=None):
            rf = [(f, 4) for f, h in R]
            M = [lambda i=i: mf_qk(0, i, R, i, trans) for i in range(8)] + [lambda i=i: mf_pv(0, i, R, 8+i) for i in range(8)]
            fx = {}
            for g in range(16): put(fx, g, [rf[7+g]])
            D = sum((dma4(k) for k in dmas), [])
            DS = self.o.get("dstep", 2)
            spill = []
            for n, d in enumerate(D):
                g = n * DS * (2 if len(D) == 4 and not extra else 1)
                if g < 15: put(fx, g, [d])
                else: spill.append((g - 16 if g >= 16 else 0, d))
            put(fx, 15, [(lambda: None, 20)])
            if extra:
                X0 = self.o.get("x0", 8); ng = 16 - X0 + 9; per = -(-len(extra) // ng)
                put(fx, X0, [op("s_waitcnt vmcnt(4)")])
                for g in range(X0, 16): put(fx, g, extra[(g-X0)*per:(g-X0+1)*per])
                for g in range(9): spill += [(g, x) for x in extra[(16-X0+g)*per:(16-X0+g+1)*per]]
            sched(M, fx, sm_ops(1))
            check(1, other=not trans)()
            if mb: mb()
            pre = []
            if trans:
                I(f"v_mov_b32 v{LA}, v{LRUN}"); I(f"v_mov_b32 v{LRUN}, 0"); I(f"s_mov_b32 s{SFIN}, 1")
                pre = init_max()
            M = [lambda i=i: mf_qk(1, i, R, 16+i) for i in range(8)] + [lambda i=i: mf_pv(1, i, R, 24+i) for i in range(2)]
            fx = {}
            for g in range(9): put(fx, g, [rf[23+g]])
            for g, d in spill: put(fx, g, [d])
            put(fx, 8, [op(f"v_xor_b32 v{VV}, 0x10000, v{VK}")] + kx)
            for n, e in enumerate(endops): put(fx, 7 - n, [e])
            put(fx, 9, [(lambda: None, 16)])
            sched(M, fx, pre + sm_ops(0)[:SPL])
            assert [R[26+i][1]["reg"] for i in range(6)] == TR
        vm4 = lambda: I("s_waitcnt vmcnt(4)")
        vm0 = lambda: I("s_waitcnt vmcnt(0)")
        def vm08():
            lo = a.label("W8"); lb = a.label("W8R")
            I(f"s_cmp_eq_u32 s{SFIN}, 3"); I(f"s_cbranch_scc1 {lo}"); I("s_waitcnt vmcnt(%d)" % self.o.get("a_vm", 0)); a.L(lb)
            def b(): I("s_waitcnt vmcnt(8)"); I(f"s_mov_b32 s{SFIN}, 4")
            ool.append((lo, lb, b))
        m1 = lambda sb, ko: (lambda: rarely(f"s_cmp_eq_u32 s{SC1}, s{SM1}", lambda: mask_body(sb, ko)))
        fin = lambda: rarely(f"s_cmp_eq_u32 s{SFIN}, 1", fin_body)
        sta = (lambda: rarely(f"s_cmp_eq_u32 s{SFIN}, 2", st_body), 8)

        KR, VR, SH, WO, AD = 16, 23, 28, 32, 40
        def side_loads():
            L = []; E = lambda t: L.append(op(t)); V = lambda t: L.append(op(t, DC))
            E(f"v_lshrrev_b32 v{AD}, 5, v0"); E(f"v_and_b32 v{AD+1}, 31, v0"); E(f"v_lshlrev_b32 v{AD+2}, 12, v{AD}"); E(f"v_lshl_add_u32 v{AD+2}, v{AD+1}, 2, v{AD+2}")
            E(f"s_lshl_b32 s60, s{SF}, 14"); E(f"s_lshl_b32 s61, s{SW}, 7"); E("s_add_u32 s60, s60, s61"); E("s_add_u32 s61, s60, 8192")
            for j in range(8): V(f"buffer_load_dword v{WO+j}, v{AD+2}, s[{RE}:{RE+3}], s{60+(j>>2)} offen offset:{1024*(j&3)}")
            E("s_lshr_b32 s62, s2, 3"); E("s_lshl_b32 s62, s62, 16"); E(f"s_lshl_b32 s63, s{SW}, 13"); E("s_add_u32 s62, s62, s63")
            E("s_and_b32 s63, s2, 7"); E("s_lshl_b32 s63, s63, 7"); E("s_add_u32 s62, s62, s63"); E(f"v_add_u32 v{AD+3}, s62, v{AD+2}")
            for i in range(3): E(f"v_subrev_u32 v{AD+4+i}, {3072-1024*i}, v{AD+3}")
            E("s_lshl_b32 s63, s63, 2"); E(f"v_lshl_add_u32 v{AD+7}, v{AD+1}, 4, s63")
            for i in range(3): V(f"buffer_load_dword v{KR+i}, v{AD+4+i}, s[{RA}:{RA+3}], 0 offen")
            for i in range(4): V(f"buffer_load_dword v{KR+3+i}, v{AD+3}, s[{RA}:{RA+3}], 0 offen offset:{1024*i}")
            for i in range(4): V(f"buffer_load_dword v{VR+i}, v{AD+3}, s[{RC}:{RC+3}], 0 offen offset:{1024*i}")
            V(f"buffer_load_dwordx4 {v(SH,4)}, v{AD+7}, s[{RD}:{RD+3}], 0 offen")
            E(f"s_lshl_b32 s60, s{SF}, 13"); E(f"s_add_u32 s60, s60, s{SWK}"); E(f"v_and_b32 v27, 7, v0"); E("v_lshlrev_b32 v27, 7, v27")
            V(f"buffer_load_dword v1, v27, s[{RB}:{RB+3}], s60 offen")
            return L
        NSL = 21
        def side_math():
            L = []; E = lambda t: L.append(op(t)); V = lambda t: L.append(op(t, DC))
            W2 = 48
            E("s_mov_b32 s60, 0x05040100"); E("s_mov_b32 s61, 0x07060302")
            for j in range(4): E(f"v_perm_b32 v{W2+j}, v{WO+2*j+1}, v{WO+2*j}, s60")
            for j in range(4): E(f"v_perm_b32 v{W2+4+j}, v{WO+2*j+1}, v{WO+2*j}, s61")
            E(f"s_lshl_b32 s60, s{SW}, 8"); E(f"s_add_u32 s60, s60, s{SF}"); E("s_lshl_b32 s60, s60, 11"); E(f"s_add_u32 s60, s60, {WOT_OFF}")
            for mt in range(2): V(f"buffer_store_dwordx4 {v(W2+4*mt,4)}, v{VL16}, s[{RWS}:{RWS+3}], s60 offen offset:{1024*mt}{self.st}")
            KU, SU, OO, VU, PQ = 32, 42, 48, 39, 52
            for c in range(2):
                def unp(d, sreg, half): E(f"v_lshlrev_b32 v{d}, 16, v{sreg}" if half == 0 else f"v_and_b32 v{d}, 0xffff0000, v{sreg}")
                for i in range(7): unp(KU+i, KR+i, c)
                for j in range(4): unp(SU+j, SH + 2*c + (j >> 1), j & 1)
                for o in range(4):
                    E(f"v_mul_f32 v{OO+o}, v{KU+o}, v{SU+3}")
                    for j in (2, 1, 0): E(f"v_fmac_f32 v{OO+o}, v{KU+o+3-j}, v{SU+j}")
                    unp(VU, VR+o, c)
                    E(f"v_mul_f32 v{OO+o}, v{OO+o}, v{VU}")
                d = PQ + 2*(1-c)
                E(f"v_cvt_pk_bf16_f32 v{d}, v{OO+3}, v{OO+2}"); E(f"v_cvt_pk_bf16_f32 v{d+1}, v{OO+1}, v{OO}")
            E(f"v_lshlrev_b32 v{AD+1}, 5, v{AD+1}"); E(f"v_lshl_add_u32 v{AD+1}, v{AD}, 4, v{AD+1}")
            E(f"v_permlane32_swap_b32 v{PQ+2}, v{PQ}"); E(f"v_permlane32_swap_b32 v{PQ+3}, v{PQ+1}")
            E("s_lshr_b32 s60, s2, 3"); E("s_lshl_b32 s60, s60, 16"); E(f"s_lshl_b32 s61, s{SW}, 13"); E("s_add_u32 s60, s60, s61")
            E("s_and_b32 s61, s2, 7"); E("s_lshl_b32 s61, s61, 10"); E("s_add_u32 s60, s60, s61"); E(f"s_add_u32 s60, s60, {KVT_OFF}")
            V(f"buffer_store_dwordx4 {v(PQ,4)}, v{AD+1}, s[{RWS}:{RWS+3}], s60 offen{self.st}")
            return L
        def spub_body():
            l1 = a.label("SM"); l2 = a.label("SP")
            I("s_add_u32 s41, s41, 1"); I(f"s_add_u32 s44, s41, s{SG}"); I("s_cmp_lg_u32 s44, 2"); I(f"s_cbranch_scc1 {l1}")
            for c, _ in side_math(): c()
            a.L(l1)
            I("s_cmp_lg_u32 s41, 4"); I(f"s_cbranch_scc1 {l2}")
            I(f"s_lshl_b32 s44, s{SF}, 2"); I(f"s_add_u32 s44, s44, {FY_OFF}")
            sv = self.save(); self.publish(44, 2); self.restore(sv)
            a.L(l2)
        spub = lambda: rarely("s_cmp_lt_u32 s41, 4", spub_body)
        def snap():
            self.oob_sel(); I("v_lshl_add_u32 v49, v0, 4, s99"); I(f"s_mov_b32 s60, {FY_OFF}")
            I(f"buffer_load_dwordx4 v[52:55], v49, s[{RWS}:{RWS+3}], s60 offen sc1")
        def side_check():
            l = a.label("SCK"); lp = a.label("SPL")
            I(f"s_cmp_lg_u32 s{SW}, 0"); I(f"s_cbranch_scc1 {l}")
            I("s_mov_b32 s99, 20000"); a.L(lp)
            I("v_and_b32 v52, v52, v53"); I("v_and_b32 v54, v54, v55"); I("v_and_b32 v52, v52, v54"); I("v_and_b32 v52, 2, v52")
            I("v_cmp_ne_u32 vcc, 2, v52"); I(f"s_cbranch_vccz {l}"); I("s_sleep 2")
            I(f"buffer_load_dwordx4 v[52:55], v49, s[{RWS}:{RWS+3}], s60 offen sc1")
            I("s_sub_u32 s99, s99, 1"); I("s_cmp_lg_u32 s99, 0"); I("s_waitcnt vmcnt(0)"); I(f"s_cbranch_scc1 {lp}")
            a.L(l)
        m2 = lambda sb, ko: (lambda: rarely(f"s_cmp_eq_u32 s{SC2}, 0", lambda: (snap(), mask_body(sb, ko))))
        LEV = a.label("EVEN"); LODM = a.label("ODDM"); LTRANS = a.label("TRANS"); LP2 = a.label("P2"); LP2B = a.label("P2B"); LDRAIN = a.label("DRAIN")
        self.stamp(8)
        self.ring_n = 0
        R = [rd("k", 0, i) for i in range(8)] + [rd("k", 1, i) for i in range(8)]
        for i in range(7):
            I(f"ds_read_b128 {v(QF+4*i,4)}, v{TMP+1} offset:{1024*i}"); lg.issue()
            R[i][0]()
        def q7():
            I(f"ds_read_b128 {v(QF+28,4)}, v{TMP+1} offset:{1024*7}"); lg.issue()
        D = dma4("v") + dma4("k")
        sched([lambda i=i: mf_qk(0, i, R, i, True) for i in range(8)], {g: ([(q7, 4)] if g == 0 else []) + [(R[7+g][0], 4), D[g]] for g in range(8)}, [])
        m1(0, 0)()
        pre = init_max()
        I(f"v_mov_b32 v{LRUN}, 0")
        fx = {}
        put(fx, 0, [(R[15][0], 4)]); put(fx, 4, [op(f"v_xor_b32 v{VV}, 0x10000, v{VK}"), op(f"v_xor_b32 v{VK}, 0x4000, v{VK}")])
        SLd = side_loads(); n8 = (len(SLd) + 7) // 8
        for g in range(8): put(fx, g, SLd[g*n8:(g+1)*n8])
        sched([lambda i=i: mf_qk(1, i, R, 8+i) for i in range(8)], fx, pre + sm_ops(0)[:SPL])
        R = mk_reads()
        head(R, lambda: I(f"s_waitcnt vmcnt({4+NSL})"), False, post=[m1(1, 32)])
        svm = self.save()
        I(f"s_branch {LODM}")
        a.L(LEV)
        R = mk_reads(); head(R, vm4)
        mid(R, "k", [op(f"v_xor_b32 v{VK}, 0x4000, v{VK}")], mb=m1(0, 0))
        R = mk_reads(); head(R, vm4, post=[m1(1, 32), spub])
        assert self.lg.issued - self.lg.done == svm[2] - svm[3]
        a.L(LODM)
        mid(R, "v", [op(f"v_xor_b32 v{VK}, 0xc000, v{VK}")], mb=m1(0, 64), endops=[op(f"s_sub_u32 s{SC1}, s{SC1}, 1")])
        I(f"s_cmp_lg_u32 s{SC1}, -1"); I(f"s_cbranch_scc1 {LEV}")
        I(f"s_cmp_eq_u32 s{SG}, 1"); I(f"s_cbranch_scc1 {LTRANS}")
        svt = self.save()
        R = mk_reads(); head(R, vm4)
        mid(R, "k", [op(f"v_xor_b32 v{VK}, 0x8000, v{VK}")], mb=m2(0, -1))
        a.L(LP2B)
        I(f"s_cmp_eq_u32 s{SC2}, 0"); I(f"s_cbranch_scc1 {LDRAIN}")
        a.L(LP2)
        R = mk_reads(); head(R, vm08, post=[spub, fin, lambda: I(f"s_sub_u32 s{SC2}, s{SC2}, 1")])
        mid(R, "kv", [op(f"v_xor_b32 v{VK}, 0x8000, v{VK}")], mb=m2(0, -1), endops=[sta])
        I(f"s_cmp_lg_u32 s{SC2}, 0"); I(f"s_cbranch_scc1 {LP2}")
        a.L(LDRAIN)
        self.stamp(10)
        R2 = [rd("v", 0, i) for i in range(8)] + [rd("v", 1, i) for i in range(8)]
        rf = [(f, 4) for f, h in R2]
        head(R2, lambda: (vm08(), side_check()), post=[fin, sta[0]])
        mask_body(1, -33)
        ts, ts2, ts3 = self.tail_setup(); n8 = (len(ts) + 4) // 5
        fx = {g: [rf[7+g]] + ts[g*n8:(g+1)*n8] for g in range(8)}
        for g in range(3):
            if g < len(ts2): put(fx, 5 + g, [ts2[g]])
        sched([lambda i=i: mf_pv(0, i, R2, i) for i in range(8)], fx, sm_ops(1))
        check(1)()
        pre = []; E_ = lambda t: pre.append(op(t))
        E_(f"v_mov_b32 v{TMP}, v{LRUN}"); E_(f"s_lshl_b32 s44, s{SW}, 9"); E_(f"s_add_u32 s44, s44, {ML}")
        E_(f"v_permlane32_swap_b32 v{TMP}, v{LRUN}"); E_(f"v_add_f32 v{NM+1}, v{TMP}, v{LRUN}")
        E_(f"v_lshrrev_b32 v{TMP}, 1, v{VL16}"); E_(f"v_add_u32 v{TMP}, s44, v{TMP}")
        def wml():
            I(f"ds_write_b64 v{TMP}, {v(NM,2)}"); lg.issue()
        pre.append((wml, 4))
        E_(f"v_xor_b32 v{TMP}, 0x800, v{TMP}")
        E_(f"s_lshl_b32 s46, s{SW}, 13"); E_(f"v_add_u32 v{TMP+1}, s46, v{VL16}"); E_(f"v_xor_b32 v{TMP+2}, 0x8000, v{TMP+1}")
        E_(f"s_sub_u32 s54, 15, s{SIDX}"); E_(f"s_lshl_b32 s54, s54, 2"); E_(f"s_add_u32 s54, s54, s{SR}"); E_("s_lshl_b32 s54, s54, 5"); E_(f"s_add_u32 s54, s54, s{SHEAD}")
        E_("s_lshl_b32 s54, s54, 13"); E_(f"s_lshl_b32 s44, s{SG}, 12"); E_("s_add_u32 s54, s54, s44"); E_(f"s_add_u32 s54, s54, {CTX_OFF}")
        fx = {0: [rf[15]]}
        for g, x in enumerate(ts2[3:]): put(fx, g, [x])
        sched([lambda i=i: mf_pv(1, i, R2, 8+i) for i in range(8)], fx, pre + ts3)
        self.stamp(11)
        lg1 = a.label("MG1"); lj = a.label("MGJ")
        I(f"s_cmp_eq_u32 s{SG}, 1"); I(f"s_cbranch_scc1 {lg1}")
        sv2 = self.save(); PR = 64
        for g in (0, 1):
            if g: a.L(lg1); self.restore(sv2)
            own = O + 32*g; snd = O + 32*(1-g)
            for i in range(8):
                I(f"ds_write_b128 v{TMP+1}, {v(snd+4*i,4)} offset:{1024*i}"); lg.issue()
            lg.wait(lg.issued); self.barrier()
            I(f"ds_read_b64 {v(96,2)}, v{TMP}"); t0 = lg.issue()
            tk = []
            for i in range(8):
                I(f"ds_read_b128 {v(PR+4*i,4)}, v{TMP+2} offset:{1024*i}"); tk.append(lg.issue())
            lg.wait(t0)
            I(f"v_min_f32 v98, v{NM}, v96"); I(f"v_sub_f32 v99, v98, v{NM}"); I(f"v_sub_f32 v100, v98, v96")
            I("v_exp_f32 v99, v99"); I("v_exp_f32 v100, v100")
            I(f"v_mul_f32 v101, v99, v{NM+1}"); I("v_fmac_f32 v101, v100, v97"); I("v_rcp_f32 v101, v101")
            I("v_mul_f32 v102, v99, v101"); I("v_mul_f32 v103, v99, v101"); I("v_mul_f32 v104, v100, v101"); I("v_mul_f32 v105, v100, v101")
            for q in range(4):
                for i in range(8*q, 8*q+8, 2): I(f"v_pk_mul_f32 {v(own+i,2)}, {v(own+i,2)}, v[102:103]")
                lg.wait(tk[2*q+1])
                for i in range(8*q, 8*q+8, 2): I(f"v_pk_fma_f32 {v(own+i,2)}, {v(PR+i,2)}, v[104:105], {v(own+i,2)}")
                for i in range(4): I(f"v_cvt_pk_bf16_f32 v{snd+4*q+i}, v{own+8*q+2*i}, v{own+8*q+2*i+1}")
                I(f"buffer_store_dwordx4 {v(snd+4*q,4)}, v{VL16}, s[{RWS}:{RWS+3}], s54 offen offset:{1024*q}{self.st}"); self.tctx = vm.issue()
            if not g: I(f"s_branch {lj}")
        a.L(lj)
        I("s_setprio 0")
        self.stamp(4)
        def cold():
            a.L(LTRANS)
            self.restore(svt)
            loadq(VQ); I("s_waitcnt lgkmcnt(0)")
            I(f"v_xor_b32 v{VK}, 0x4000, v{VK}")
            R = mk_reads(); head(R, vm4, post=[lambda: mask_body(1, 96)])
            mid(R, "k", [op(f"v_xor_b32 v{VK}, 0x8000, v{VK}")], mb=m2(0, -1), trans=True)
            I(f"s_branch {LP2B}")
            for (lo, lb, body) in ool:
                a.L(lo); body(); I(f"s_branch {lb}")
            for (lr, lb, sb, other) in rare:
                a.L(lr)
                I("s_nop 15")
                rowmax(sb, TMP)
                I(f"v_max_f32 v{TMP}, 0, v{TMP}"); I(f"v_exp_f32 v{TMP+1}, -v{TMP}")
                for r in range(16): I(f"v_sub_f32 v{NM+r}, v{NM+r}, v{TMP}")
                for r in range(16): I(f"v_sub_f32 v{S[sb]+r}, v{S[sb]+r}, v{TMP}")
                if other:
                    for r in range(16): I(f"v_sub_f32 v{S[1-sb]+r}, v{S[1-sb]+r}, v{TMP}")
                for r in range(64): I(f"v_mul_f32 v{O+r}, v{O+r}, v{TMP+1}")
                I(f"v_mul_f32 v{LRUN}, v{LRUN}, v{TMP+1}")
                for c, _ in sm_ops(sb): c()
                I("s_nop 1"); I(f"s_branch {lb}")
        self.attn_rare = cold

    HB = 65536; HC = 4416; XB = 136192; YB = 148480
    SC, SJ, SB, SCH, SHB_, SWO, SCX = 34, 35, 36, 37, 38, 39, 40
    WS_ = [16, 24, 32, 40, 176, 184, 56, 80, 88, 96, 104, 144, 152, 160]
    CS_ = [168, 112, 120, 128, 136, 64, 72]
    NL = 4
    def tail_setup(self):
        I = self.I; L = []; E = lambda t: L.append((lambda: I(t), 4))
        SC, SJ, SB, SCH, SHB_, SWO, SCX = self.SC, self.SJ, self.SB, self.SCH, self.SHB_, self.SWO, self.SCX
        self.wtok = {}; self.wslot = dict(enumerate(self.WS_))
        E(f"s_lshr_b32 s{SC}, s{SW}, 2"); E(f"s_and_b32 s{SJ}, s{SW}, 3")
        E(f"s_lshl_b32 s{SCH}, s{SF}, 1"); E(f"s_add_u32 s{SCH}, s{SCH}, s{SC}"); E(f"s_lshl_b32 s{SCH}, s{SCH}, 12")
        E(f"s_lshl_b32 s60, s{SJ}, 10"); E("v_add_u32 v50, s60, v6"); E("v_subrev_u32 v51, 16, v50")
        E(f"s_lshr_b32 s60, s{SCH}, 8"); E(f"s_add_u32 s60, s60, {KVT_OFF}"); E("v_lshlrev_b32 v52, 9, v50")
        def ld(t):
            def f(): I(t); self.th = self.vm.issue()
            L.append((f, 16))
        ld(f"buffer_load_dwordx4 {v(160,4)}, v51, s[{RB}:{RB+3}], s{SCH} offen")
        ld(f"buffer_load_dwordx4 {v(164,4)}, v50, s[{RB}:{RB+3}], s{SCH} offen")
        ld(f"buffer_load_dwordx4 {v(168,4)}, v52, s[{RWS}:{RWS+3}], s60 offen{self.ld}")
        E(f"s_lshl_b32 s{SWO}, s57, 19"); E(f"s_lshl_b32 s60, s{SW}, 16"); E(f"s_add_u32 s{SWO}, s{SWO}, s60"); E(f"s_add_u32 s{SWO}, s{SWO}, {WOT_OFF}")
        L2 = [(lambda i=i: self.wload(i), 36) for i in range(self.o.get("we", 0))]
        L3 = []; L, Lx = L3, L
        E = lambda t: L3.append((lambda: I(t), 4))
        E(f"s_mul_i32 s{SB}, s{SC}, 6144"); E(f"s_add_u32 s{SB}, s{SB}, {self.XB}")
        E(f"s_mul_i32 s{SHB_}, s{SC}, {8*self.HC}"); E(f"s_add_u32 s{SHB_}, s{SHB_}, {self.HB}")
        E(f"s_lshl_b32 s{SCX}, s56, 19"); E(f"s_lshl_b32 s60, s{SW}, 15"); E(f"s_add_u32 s{SCX}, s{SCX}, s60"); E(f"s_add_u32 s{SCX}, s{SCX}, {CTX_OFF}")
        return Lx, L2, L3
    def wreg(self, i):
        return self.WS_[i % len(self.WS_)]
    def wload(self, i):
        I = self.I; r = self.wslot[i]
        I(f"s_add_u32 s61, s{self.SWO}, {i*2048}")
        for mt in range(2):
            I(f"buffer_load_dwordx4 {v(r+4*mt,4)}, v6, s[{RWS}:{RWS+3}], s61 offen offset:{mt*1024}{self.ld}"); self.wtok[i] = self.vm.issue()
    def tail_early(self):
        I = self.I; vm = self.vm; lg = self.lg; HC = self.HC
        SJ, SB, SCH, SHB_ = self.SJ, self.SB, self.SCH, self.SHB_
        Ee, Eo, Oe, Oo = 160, 113, 122, 131
        vm.wait(self.th)
        for k in range(7): I(f"v_alignbit_b32 v{Oe+k}, v{Ee+k+1}, v{Ee+k}, 16")
        for k in range(1, 7): I(f"v_alignbit_b32 v{Oo+k}, v{Ee+k+1}, v{Ee+k}, 16")
        for k in range(1, 7): I(f"v_mov_b32 v{Eo+k}, v{Ee+k}")
        I(f"s_add_u32 s60, s{SHB_}, 64"); I("v_add_u32 v51, s60, v50")
        for r in range(8):
            sft = 1 + r; k = sft >> 1
            base = ((Oe, Oo) if sft & 1 else (Ee, Eo))[k & 1]
            I(f"ds_write_b128 v51, {v(base+k,4)} offset:{r*HC}"); lg.issue()
        I("v_and_b32 v51, 3, v0"); I("v_mul_u32_u24 v52, 1536, v51"); I("v_lshrrev_b32 v53, 6, v50"); I("v_lshl_add_u32 v52, v53, 4, v52")
        I(f"s_add_u32 s60, s{SB}, 512"); I("v_add_u32 v52, s60, v52")
        I(f"ds_write_b128 v52, {v(168,4)}"); lg.issue()
        for r in range(2): I(f"v_mov_b64 {v(172+2*r,2)}, 0")
        I("v_bfe_u32 v52, v0, 2, 3"); I(f"v_mul_u32_u24 v52, {HC}, v52"); I("v_lshl_add_u32 v52, v51, 4, v52"); I(f"v_add_u32 v52, s{SHB_}, v52")
        I(f"ds_write_b128 v52, {v(172,4)}"); lg.issue()
        I(f"s_mul_i32 s60, s{SJ}, 1536"); I(f"s_add_u32 s60, s60, s{SB}"); I("v_lshl_add_u32 v52, v0, 3, s60")
        I(f"ds_write_b64 v52, {v(172,2)}"); lg.issue()
    def tailp(self):
        a = self.a; I = self.I; vm = self.vm; lg = self.lg
        HB, HC, YB = self.HB, self.HC, self.YB
        SC, SJ, SB, SCH, SHB_, SWO, SCX = self.SC, self.SJ, self.SB, self.SCH, self.SHB_, self.SWO, self.SCX
        ACC = 192; FRS = [224, 240, 64]; RD_ = 224
        VL16, VA, VB, T, VP, VPA, VO, GR, VLW, XR = 6, 4, 5, 12, 7, 8, 9, 10, 11, 48
        OACC = 192
        NW, NCX, NL = len(self.WS_), len(self.CS_), self.o.get("nl", 0)
        wtok = self.wtok; ctok = {}; wslot = self.wslot; cslot = dict(enumerate(self.CS_))
        I(f"s_lshr_b32 s53, s56, 1"); I("s_lshl_b32 s53, s53, 10"); I(f"s_lshl_b32 s44, s{SW}, 7"); I("s_add_u32 s53, s53, s44"); I(f"s_add_u32 s53, s53, {FC_OFF}")
        I(f"v_and_b32 v{VPA}, 3, v0"); I(f"v_lshlrev_b32 v{VPA}, 2, v{VPA}")
        P0 = self.o.get("p0", 0)
        tc0 = self.poll_issue(VP, VPA, "s53") if P0 else self.tctx
        self.tail_early()
        PUBN = self.o.get("pubn", 1)
        I(f"s_lshr_b32 s45, s{SHEAD}, 2"); I("s_lshl_b32 s45, s45, 7"); I(f"s_and_b32 s44, s{SHEAD}, 3"); I("s_lshl_b32 s44, s44, 2"); I("s_add_u32 s45, s45, s44")
        I(f"s_sub_u32 s44, 15, s{SIDX}"); I("s_lshl_b32 s44, s44, 10"); I("s_add_u32 s46, s44, s45"); I(f"s_add_u32 s46, s46, {FC_OFF}")
        I(f"s_lshl_b32 s44, s{SIDX}, 10"); I("s_add_u32 s47, s44, s45"); I(f"s_add_u32 s47, s47, {FC_OFF}")
        self.srd(RC, "out", 2*MB); self.srd(RD, "q", 2*MB)
        I(f"s_lshl_b32 s44, s{SF}, 2"); I(f"s_load_dword s55, s[{P['ssmD']}:{P['ssmD']+1}], s44")
        I(f"v_and_b32 v{T}, 31, v0"); I(f"v_lshrrev_b32 v{T+1}, 5, v0")
        I(f"v_and_b32 v{T+2}, 7, v0"); I(f"v_mul_u32_u24 v{VA}, {HC}, v{T+2}")
        I(f"v_bfe_u32 v{T+2}, v0, 3, 2"); I(f"v_sub_u32 v{T+2}, v{T+2}, v{T+1}"); I(f"v_lshl_add_u32 v{VA}, v{T+2}, 4, v{VA}")
        I(f"s_lshl_b32 s43, s{SJ}, 9"); I(f"s_add_u32 s43, s43, s{SHB_}"); I("s_add_u32 s43, s43, 32"); I(f"v_add_u32 v{VA}, s43, v{VA}")
        I(f"s_lshl_b32 s43, s{SJ}, 7"); I(f"s_sub_u32 s43, s{SB}, s43"); I("s_add_u32 s43, s43, 400")
        I(f"v_lshl_add_u32 v{VB}, v{T}, 4, s43"); I(f"v_mul_u32_u24 v{T+2}, 1536, v{T+1}"); I(f"v_add_u32 v{VB}, v{VB}, v{T+2}")
        I(f"s_lshl_b32 s51, s{SW}, 13"); I(f"v_add_u32 v{VLW}, s51, v{VL16}")
        I("s_waitcnt lgkmcnt(0)"); lg.mark_all_done(); self.barrier()
        self.stamp(5)
        def cload(i):
            r = cslot[i]
            I(f"s_add_u32 s62, s{SCX}, {(i//4)*4096}"); I("s_add_u32 s63, s62, 0x40000")
            for st in range(2):
                I(f"buffer_load_dwordx4 {v(r+4*st,4)}, v{VL16}, s[{RWS}:{RWS+3}], s{62+st} offen offset:{(i%4)*1024}{self.ld}"); ctok[i] = vm.issue()
        ltok = {}
        def lstage(j):
            I(f"s_add_u32 m0, s51, {j*2048}"); I(f"s_add_u32 s61, s{SWO}, {(NW+j)*2048}")
            for mt in range(2):
                I(f"buffer_load_dwordx4 v{VL16}, s[{RWS}:{RWS+3}], s61 offen offset:{mt*1024}{self.ld} lds"); ltok[j] = vm.issue()
        def early(lo, hi, level):
            le = a.label("NE")
            I(f"s_cmp_lg_u32 s50, {level}"); I(f"s_cbranch_scc1 {le}")
            sv = self.save()
            for i in range(lo, hi): cload(i)
            self.restore(sv); I(f"s_mov_b32 s50, {level+1}")
            a.L(le)
        def seen():
            I(f"v_and_b32 v{VP}, 1, v{VP}"); I(f"v_cmp_ne_u32 vcc, 1, v{VP}"); I("s_cmp_eq_u64 vcc, 0"); I("s_cselect_b32 s52, 1, 0"); I("s_max_u32 s50, s50, s52")
        I("s_mov_b32 s50, 0")
        wl = [lambda i=i: self.wload(i) for i in range(NW) if i not in wtok] + [lambda j=j: lstage(j) for j in range(NL)]
        steps = [(dd, ks) for dd in range(8) for ks in range(2)]
        toks = {}
        def reads(n):
            dd, ks = steps[n]; b = FRS[n % 3]
            def r(k, reg, addr, off):
                def f():
                    I(f"ds_read_b128 {v(reg,4)}, v{addr} offset:{off}"); toks[(n, k)] = lg.issue()
                return f
            return [r(0, b, VA, 64*dd + 32*(1-ks)), r(1, b+4, VB, ks*3072 + (7-dd)*16),
                    r(2, b+8, VB, ks*3072 + (7-dd)*16 + 512), r(3, b+12, VA, 64*dd + 32*(1-ks) + 2048)]
        for n in range(2):
            for f in reads(n): f()
        for n in range(16):
            b = FRS[n % 3]; L = reads(n+2) if n + 2 < 16 else []
            c0 = "0" if n == 0 else v(ACC,16); c1 = "0" if n == 0 else v(ACC+16,16)
            lg.wait(toks[(n,1)]); I(f"{MFMA} {v(ACC,16)}, {v(b,4)}, {v(b+4,4)}, {c0}")
            for f in L[0:2]: f()
            lg.wait(toks[(n,2)]); I(f"{MFMA} {v(ACC+16,16)}, {v(b,4)}, {v(b+8,4)}, {c1}")
            for f in L[2:3]: f()
            lg.wait(toks[(n,3)]); I(f"{MFMA} {v(ACC+16,16)}, {v(b+12,4)}, {v(b+4,4)}, {v(ACC+16,16)}")
            for f in L[3:4]: f()
            if n == PUBN:
                vm.wait(tc0); self.barrier(); self.publish(46); self.publish(47)
                if P0: seen()
            if n >= PUBN and n < 14:
                for _ in range(-(-len(wl) // (14 - n))): wl.pop(0)()
            if n == self.o.get("p1", 12): tc1 = self.poll_issue(VP, VPA, "s53")
            if n == 14 and P0: early(0, NCX - 2, 1)
        assert not wl
        I(f"s_add_u32 s43, s51, {HB}"); I(f"v_add_u32 v{T+2}, s43, v{VL16}")
        self.barrier()
        for i in range(8):
            I(f"ds_write_b128 v{T+2}, {v(ACC+4*i,4)} offset:{1024*i}"); lg.issue()
        I(f"s_lshl_b32 s43, s{SC}, 15"); I(f"s_lshl_b32 s44, s{SJ}, 11"); I("s_add_u32 s43, s43, s44"); I(f"s_add_u32 s43, s43, {HB}"); I(f"v_add_u32 v{T+2}, s43, v{VL16}")
        I(f"s_and_b32 s43, s{SJ}, 1"); I("s_mul_i32 s44, s43, 3072"); I(f"s_lshr_b32 s45, s{SJ}, 1"); I("s_lshl_b32 s41, s45, 9")
        I("s_add_u32 s44, s44, s41"); I(f"s_add_u32 s44, s44, s{SB}"); I("s_add_u32 s44, s44, 520")
        I(f"v_lshl_add_u32 v{T+3}, v{T}, 4, s44"); I(f"v_lshlrev_b32 v{VA}, 3, v{T+1}"); I(f"v_sub_u32 v{T+3}, v{T+3}, v{VA}")
        I(f"v_lshlrev_b32 v{VB}, 6, v{T}"); I(f"v_lshl_add_u32 v{VB}, v{T+1}, 4, v{VB}")
        I("s_lshl_b32 s45, s45, 11"); I("s_lshl_b32 s43, s43, 5"); I("s_add_u32 s45, s45, s43"); I(f"s_lshl_b32 s43, s{SC}, 12"); I("s_add_u32 s45, s45, s43")
        I(f"s_add_u32 s45, s45, {YB}"); I(f"v_add_u32 v{VB}, s45, v{VB}")
        I("s_lshl_b32 s43, s55, 16"); I("s_and_b32 s44, s55, 0xffff0000"); I(f"s_cmp_eq_u32 s{SC}, 0"); I("s_cselect_b32 s55, s43, s44")
        lg.wait(lg.issued); self.barrier()
        self.stamp(12)
        for p in range(4):
            for gq in range(2):
                I(f"ds_read_b128 {v(RD_+8*p+4*gq,4)}, v{T+2} offset:{8192*p+1024*gq}"); lg.issue()
        for gq in range(2):
            I(f"ds_read_b64 {v(ACC+2*gq,2)}, v{T+3} offset:{1536*gq}"); lg.issue()
        lk = a.label("SK"); I("s_cmp_lg_u32 s50, 0"); I(f"s_cbranch_scc1 {lk}")
        sv = self.save(); vm.wait(tc1); seen(); self.restore(sv); early(0, NCX - 2, 1)
        a.L(lk)
        early(NCX - 2, NCX, 2)
        lg.wait(lg.issued)
        for i in range(0, 8, 2):
            I(f"v_pk_add_f32 {v(RD_+i,2)}, {v(RD_+i,2)}, {v(RD_+8+i,2)}"); I(f"v_pk_add_f32 {v(RD_+16+i,2)}, {v(RD_+16+i,2)}, {v(RD_+24+i,2)}")
        for i in range(0, 8, 2): I(f"v_pk_add_f32 {v(RD_+i,2)}, {v(RD_+i,2)}, {v(RD_+16+i,2)}")
        for gq in range(2):
            for r in range(4):
                srcr = ACC + 2*gq + (1 - (r >> 1))
                I(f"v_lshlrev_b32 v{ACC+8}, 16, v{srcr}" if r & 1 else f"v_and_b32 v{ACC+8}, 0xffff0000, v{srcr}")
                I(f"v_fma_f32 v{RD_+4*gq+r}, v{ACC+8}, s55, v{RD_+4*gq+r}")
        for i in range(4): I(f"v_cvt_pk_bf16_f32 v{ACC+12+i}, v{RD_+2*i}, v{RD_+2*i+1}")
        I(f"v_permlane32_swap_b32 v{ACC+12}, v{ACC+14}"); I(f"v_permlane32_swap_b32 v{ACC+13}, v{ACC+15}")
        I(f"ds_write_b128 v{VB}, {v(ACC+12,4)}"); lg.issue()
        lg.wait(lg.issued); self.barrier()
        ly = a.label("NY")
        I(f"s_cmp_lg_u32 s{SW}, 0"); I(f"s_cbranch_scc1 {ly}")
        I(f"v_add_u32 v{T}, {YB}, v{VL16}")
        for i in range(8): I(f"ds_read_b128 {v(RD_+4*i,4)}, v{T} offset:{1024*i}")
        I(f"s_lshl_b32 s44, s{SF}, 13"); I(f"s_add_u32 s44, s44, {YT_OFF}"); I("s_add_u32 s45, s44, 4096")
        I("s_waitcnt lgkmcnt(0)")
        for i in range(8): I(f"buffer_store_dwordx4 {v(RD_+4*i,4)}, v{VL16}, s[{RWS}:{RWS+3}], s{44+(i>>2)} offen offset:{1024*(i&3)}{self.st}")
        a.L(ly)
        ll = a.label("NL")
        I("s_cmp_eq_u32 s50, 3"); I(f"s_cbranch_scc1 {ll}")
        self.poll_check(VP, VPA, "s53", 1)
        for i in range(NCX): cload(i)
        a.L(ll)
        self.stamp(6)
        YT = self.XB
        lrd = {}; ypub = False; ymark = vm.issued; free = []; fresh = []; nw = NW; nw2 = NW + NL; nc = NCX
        for i in range(32):
            if i % 4 == 0 and self.o.get("ostamp"): self.stamp(17 + i // 4)
            if i == 14:
                I(f"s_lshl_b32 s53, s57, 7"); I(f"s_lshl_b32 s42, s{SW}, 4"); I("s_add_u32 s53, s53, s42"); I(f"s_add_u32 s53, s53, {FY_OFF}")
                tf = self.poll_issue(VP, VPA, "s53")
            if i == 24:
                vm.wait(tf); self.poll_check(VP, VPA, "s53", 1)
                I(f"v_lshrrev_b32 v{T}, 3, v0"); I(f"v_and_b32 v{T+1}, 7, v0"); I(f"v_lshlrev_b32 v{T+1}, 4, v{T+1}")
                I(f"v_lshl_add_u32 v{T}, v{T}, 12, v{T+1}")
                I(f"s_add_u32 m0, s{SWK}, {YT}")
                I(f"s_lshl_b32 s44, s57, 18"); I(f"s_lshl_b32 s45, s{SW}, 15"); I("s_add_u32 s44, s44, s45")
                I(f"s_lshl_b32 s45, s56, 7"); I("s_add_u32 s44, s44, s45"); I(f"s_add_u32 s44, s44, {YT_OFF}")
                I(f"buffer_load_dwordx4 v{T}, s[{RWS}:{RWS+3}], s44 offen{self.ld} lds"); vm.issue()
                I(f"v_and_b32 v{T+1}, 15, v0"); I(f"s_lshr_b32 s48, s{SW}, 1"); I("s_lshl_b32 s48, s48, 4")
                I(f"s_lshl_b32 s45, s56, 6"); I("s_add_u32 s45, s45, s48"); I(f"v_add_u32 v{T+1}, s45, v{T+1}")
                I(f"v_lshlrev_b32 v{T+2}, 2, v{T+1}"); I(f"s_mov_b32 s45, {G_OFF}")
                I(f"buffer_load_dword v{GR}, v{T+2}, s[{RWS}:{RWS+3}], s45 offen{self.ld}"); vm.issue()
                I(f"v_lshrrev_b32 v{T+2}, 4, v0"); I(f"v_lshlrev_b32 v{T+2}, 4, v{T+2}"); I(f"v_lshl_add_u32 v{VO}, v{T+1}, 10, v{T+2}")
                I(f"s_and_b32 s49, s{SW}, 1"); I("s_lshl_b32 s49, s49, 6"); I(f"s_lshl_b32 s45, s57, 7"); I("s_add_u32 s49, s49, s45")
                I(f"buffer_load_dwordx4 {v(XR,4)}, v{VO}, s[{RD}:{RD+3}], s49 offen"); vm.issue()
            vm.wait(max(ctok[i], wtok.get(i, 0)))
            if i in lrd: lg.wait(lrd[i])
            if not ypub and vm.done > ymark:
                ypub = True
                I(f"s_lshl_b32 s44, s{SF}, 2"); I(f"s_add_u32 s44, s44, {FY_OFF}"); self.publish(44, 3)
            for mt in range(2):
                for st in range(2):
                    d = v(OACC + 16*(2*mt+st), 16)
                    I(f"{MFMA} {d}, {v(wslot[i]+4*mt,4)}, {v(cslot[i]+4*st,4)}, {'0' if i == 0 else d}")
            lagged, fresh = fresh, [wslot[i], cslot[i]]
            free += fresh
            while free:
                if nw < NW + NL and nw - i <= 3:
                    j = nw - NW; assert vm.done >= ltok[j]
                    r = free.pop(0); wslot[nw] = r
                    I("s_nop 3")
                    for mt in range(2):
                        I(f"ds_read_b128 {v(r+4*mt,4)}, v{VLW} offset:{j*2048+mt*1024}"); lrd[nw] = lg.issue()
                    nw += 1
                elif nc < 32 and (nc <= nw2 or nw2 >= 32):
                    cslot[nc] = free.pop(0); cload(nc); nc += 1
                elif nw2 < 32:
                    wslot[nw2] = free.pop(0); self.wload(nw2); nw2 += 1
                else: break
        self.stamp(7)
        I(f"v_and_b32 v{T}, 31, v0"); I(f"v_lshrrev_b32 v{T+1}, 5, v0"); I(f"v_and_b32 v{T+2}, 15, v0")
        I(f"v_lshlrev_b32 v{T+1}, 1, v{T+1}")
        I(f"v_xor_b32 v{T+1}, v{T+1}, v{T+2}"); I(f"v_lshlrev_b32 v{T+1}, 4, v{T+1}"); I(f"v_lshl_add_u32 v{T}, v{T}, 8, v{T+1}")
        I(f"v_add_u32 v{T}, s51, v{T}")
        for mt in range(2):
            for gq in range(4):
                I(f"v_xor_b32 v{T+1}, {(4*gq+mt)*16}, v{T}"); I(f"v_add_u32 v{T+3}, 0x10000, v{T+1}")
                for st in range(2):
                    I(f"ds_write_b128 v{T+1+2*st}, {v(OACC+16*(2*mt+st)+4*gq,4)}"); lg.issue()
        I(f"v_lshrrev_b32 v{T}, 4, v0"); I(f"s_and_b32 s41, s{SW}, 1"); I("s_lshl_b32 s42, s41, 3")
        I(f"v_lshl_add_u32 v{T+1}, v{T}, 1, s42"); I(f"v_xor_b32 v{T+1}, v{T+1}, v{T+2}"); I(f"v_lshlrev_b32 v{T+1}, 4, v{T+1}")
        I("s_and_b32 s43, s48, 16"); I(f"v_add_u32 v{T+3}, s43, v{T+2}"); I(f"v_lshl_add_u32 v24, v{T+3}, 8, v{T+1}")
        I("s_lshr_b32 s43, s48, 5"); I("s_lshl_b32 s43, s43, 16"); I("v_add_u32 v24, s43, v24"); I("v_xor_b32 v25, 16, v24")
        I("s_lshl_b32 s42, s41, 5"); I(f"v_lshl_add_u32 v{T}, v{T}, 3, s42"); I(f"v_bfe_u32 v{T+1}, v0, 2, 2")
        I(f"v_add_u32 v{T}, v{T}, v{T+1}"); I(f"v_lshlrev_b32 v{T}, 7, v{T}"); I(f"v_and_b32 v{T+1}, 3, v0")
        I(f"v_lshl_add_u32 v{T}, v{T+1}, 3, v{T}"); I("s_lshl_b32 s42, s48, 1"); I(f"s_add_u32 s42, s42, {YT}"); I(f"v_add_u32 v28, s42, v{T}")
        self.sync_all()
        CX = 128; tk = []
        I(f"ds_read_b64_tr_b16 {v(100,2)}, v28"); lg.issue()
        I(f"ds_read_b64_tr_b16 {v(102,2)}, v28 offset:512"); ty2 = lg.issue()
        for p in range(8):
            for hh in range(2):
                I(f"ds_read_b128 {v(CX+8*p+4*hh,4)}, v{24+hh} offset:{8192*p}"); lg.issue()
            tk.append(lg.issued)
            if p == 5:
                lg.wait(ty2)
                for e in range(8):
                    if e & 1: I(f"v_and_b32 v104, 0xffff0000, v{XR+(e>>1)}"); I(f"v_and_b32 v105, 0xffff0000, v{100+(e>>1)}")
                    else: I(f"v_lshlrev_b32 v104, 16, v{XR+(e>>1)}"); I(f"v_lshlrev_b32 v105, 16, v{100+(e>>1)}")
                    I(f"v_mul_f32 v{112+e}, v104, v105"); I(f"v_mul_f32 v{112+e}, v{112+e}, v{GR}")
                I(f"v_sub_f32 v{GR}, 1.0, v{GR}")
        for p in range(1, 8):
            lg.wait(tk[p])
            for e in range(0, 8, 2): I(f"v_pk_add_f32 {v(CX+e,2)}, {v(CX+e,2)}, {v(CX+8*p+e,2)}")
        for e in range(8): I(f"v_fmac_f32 v{112+e}, v{CX+4*(e&1)+(e>>1)}, v{GR}")
        for e in range(4): I(f"v_cvt_pk_bf16_f32 v{108+e}, v{112+2*e}, v{112+2*e+1}")
        I(f"buffer_store_dwordx4 {v(108,4)}, v{VO}, s[{RC}:{RC+3}], s49 offen{' sc1' if not self.o.get('outpl') else ' nt' if self.o.get('outnt') else ''}"); vm.issue()
        self.stamp(16)
        if self.o.get("echo"):
            lp = a.label("EC")
            I("s_sub_u32 s100, s100, s96"); I("s_memrealtime s[96:97]"); I("s_waitcnt lgkmcnt(0)")
            a.L(lp)
            I("s_memrealtime s[98:99]"); I("s_waitcnt lgkmcnt(0)"); I("s_sub_u32 s98, s98, s96"); I("s_cmp_lt_u32 s98, s100"); I(f"s_cbranch_scc1 {lp}")
        if self.o.get("dbgout") is not None:
            l = a.label("DB")
            I(f"s_cmp_lg_u32 s2, {self.o['dbgout']}"); I(f"s_cbranch_scc1 {l}"); I(f"s_cmp_lg_u32 s{SW}, 0"); I(f"s_cbranch_scc1 {l}")
            I("s_waitcnt vmcnt(0)")
            order = [0, 1, 2, 3, 8, 10, 11, 4, 5, 12, 6, 7, 16]
            I("v_mov_b32 v20, 0")
            for j, i in enumerate(order):
                I(f"s_mov_b32 s44, {4*i}"); I(f"v_writelane_b32 v20, s44, {j}")
            I(f"s_lshl_b32 s44, s2, 11"); I(f"s_add_u32 s44, s44, {STAMP_OFF}")
            I(f"buffer_load_dword v21, v20, s[{RWS}:{RWS+3}], s44 offen sc1"); I("s_waitcnt vmcnt(0)")
            I("v_readfirstlane_b32 s45, v21"); I("v_subrev_u32 v21, s45, v21")
            self.srd(RDBG, "dbg", 64); I("v_lshlrev_b32 v22, 2, v0")
            I(f"buffer_store_dword v21, v22, s[{RDBG}:{RDBG+3}], 0 offen")
            a.L(l)

def build(opts):
    g = G(opts); k = NAME + "_kernel"
    g.begin(k); g.proj(); g.attn(); g.tailp(); g.end(); g.attn_rare(); g.a.L("CODE_END"); g.a.I("s_endpgm")
    n = g.a.fix_hazards()
    txt = "; @launch grid=(256,1,1) block=(512,1,1) lds=163840\n"
    txt += '.amdgcn_target "amdgcn-amd-amdhsa--gfx950"\n.text\n' + g.a.text()
    txt += f""".section .rodata,"a"
.p2align 6
.amdhsa_kernel {k}
  .amdhsa_next_free_vgpr 256
  .amdhsa_next_free_sgpr 102
  .amdhsa_accum_offset 256
  .amdhsa_group_segment_fixed_size 0
  .amdhsa_kernarg_size 128
  .amdhsa_user_sgpr_count 2
  .amdhsa_user_sgpr_kernarg_segment_ptr 1
  .amdhsa_system_sgpr_workgroup_id_x 1
.end_amdhsa_kernel
"""
    print(f"instructions {sum(1 for it in g.a.items if it[0] == 'i')}, nops inserted {n}", file=sys.stderr)
    return txt

if __name__ == "__main__":
    opts = {}
    for x in sys.argv[2:]:
        if "=" in x: k_, v_ = x.split("="); opts[k_] = int(v_)
        else: opts[x] = True
    open(sys.argv[1], "w").write(build(opts))
```

```python
import sys, math, struct
sys.path.insert(0, "gen")
from asmlib import *

NAME = "gated_mix__ssm_conv_h3__compressed_kv_cla__prompt"
MB = 1 << 20
KV_OFF, Q_OFF, CTX_OFF, KVT_OFF, YT_OFF, G_OFF = 0, 32*MB, 48*MB, 64*MB, 66*MB, 68*MB
WOT_OFF = 32*MB
FLG_OFF = 68*MB + 65536
FK_OFF, FY_OFF, FC_OFF = FLG_OFF, FLG_OFF + 4096, FLG_OFF + 8192
STAMP_OFF = 69*MB
WS_SIZE = 70*MB
P = dict(q=64, k=66, v=68, shift=70, ssmk=72, ssmD=74, bx=76, ckv=78, wq=80, wuk=82, wuv=84, wo=86, gate=88, out=90, dbg=92, ws=94)
SW, SHEAD, SIDX, SWK, SF = 3, 4, 5, 6, 7
RA, RB, RC, RWS, RD, RE, RT, RDBG = 8, 12, 16, 20, 24, 28, 56, 60
MFMA = "v_mfma_f32_32x32x16_bf16"
LOG2E = 1.4426950408889634
F_KV, F_CA, F_CB, F_Y = 1, 2, 4, 8
def f2u(x): return "0x%08x" % struct.unpack("<I", struct.pack("<f", x))[0]
def rep4(b): return b * 0x01010101

class G:
    def __init__(self, opts):
        self.a = Asm(); self.o = opts
        self.vm = Cnt(self.a, "vmcnt", 63); self.lg = Cnt(self.a, "lgkmcnt", 15)
        self.st = "" if opts.get("plainst") else (" sc1 nt" if opts.get("ntst") else " sc1"); self.ld = "" if opts.get("plainld") else " sc1"
    def I(self, t): self.a.I(t)
    def srd(self, r, ptr, nbytes):
        I = self.I
        I(f"s_mov_b32 s{r}, s{P[ptr]}"); I(f"s_mov_b32 s{r+1}, s{P[ptr]+1}")
        I(f"s_mov_b32 s{r+2}, {nbytes}"); I(f"s_mov_b32 s{r+3}, 0x00020000")
    def save(self): return (self.vm.issued, self.vm.done, self.lg.issued, self.lg.done)
    def restore(self, s_): self.vm.issued, self.vm.done, self.lg.issued, self.lg.done = s_
    def stream(self, mf, fills):
        n = len(mf); slots = [[] for _ in range(n + 1)]
        for (s0, e0, cl) in fills:
            m = e0 - s0
            for j, c in enumerate(cl): slots[s0 + 1 + (j * m) // len(cl)].append(c)
        for c in slots[0]: c()
        for i in range(n):
            mf[i]()
            for c in slots[i+1]: c()
    def stamp(self, i, dyn=None):
        if self.o.get("echo") == i:
            self.I("s_memtime s[100:101]" if self.o.get("cyc") else "s_memrealtime s[100:101]"); self.I("s_waitcnt lgkmcnt(0)")
        if not self.o.get("stamp"): return
        I = self.I
        I("s_memrealtime s[96:97]"); I("s_memtime s[100:101]")
        I("s_lshl_b32 s98, s2, 3"); I(f"s_add_u32 s98, s98, s{SW}"); I("s_lshl_b32 s98, s98, 8")
        I(f"s_add_u32 s98, s98, {STAMP_OFF + 4*i}")
        if dyn is not None:
            I(f"s_lshl_b32 s99, s{dyn}, 4"); I("s_add_u32 s98, s98, s99")
        I("s_waitcnt lgkmcnt(0)")
        I("v_mov_b32 v2, s96"); I("v_mov_b32 v3, 0")
        I(f"buffer_store_dword v2, v3, s[{RWS}:{RWS+3}], s98 offen")
        I("v_mov_b32 v2, s100")
        I(f"buffer_store_dword v2, v3, s[{RWS}:{RWS+3}], s98 offen offset:128")
    OOB = 0x40000000
    def publish(self, soff, val=1, srd=RWS, byte=False, idx=None):
        I = self.I
        self.oob_sel()
        if idx is not None: I(f"s_cmp_eq_u32 s{SIDX}, {idx}"); I(f"s_cselect_b32 s99, s99, {self.OOB}")
        I(f"v_mov_b32 v2, {val}"); I("v_mov_b32 v3, s99")
        I(f"buffer_store_{'byte' if byte else 'dword'} v2, v3, s[{srd}:{srd+3}], s{soff} offen sc1"); self.vm.issue()
    def oob_sel(self):
        self.I(f"s_cmp_eq_u32 s{SW}, 0"); self.I(f"s_cselect_b32 s99, 0, {self.OOB}")
    def poll_issue(self, vd, vaddr, soff, srd=RWS):
        self.I(f"buffer_load_dword v{vd}, v{vaddr}, s[{srd}:{srd+3}], {soff} offen sc1"); return self.vm.issue()
    def poll_check(self, vd, vaddr, soff, want, srd=RWS):
        a = self.a; I = self.I
        l = a.label("PCK"); lp = a.label("POLL")
        I(f"s_mov_b32 s98, {want}"); I("s_mov_b32 s99, 20000")
        a.L(lp)
        I(f"v_and_b32 v{vd}, s98, v{vd}"); I(f"v_cmp_ne_u32 vcc, s98, v{vd}"); I(f"s_cbranch_vccz {l}")
        I("s_sleep 2")
        I(f"buffer_load_dword v{vd}, v{vaddr}, s[{srd}:{srd+3}], {soff} offen sc1")
        I("s_sub_u32 s99, s99, 1"); I("s_cmp_lg_u32 s99, 0"); I("s_waitcnt vmcnt(0)"); I(f"s_cbranch_scc1 {lp}")
        a.L(l)
    def barrier(self): self.I("s_barrier")
    def sync_all(self):
        self.I("s_waitcnt vmcnt(0) lgkmcnt(0)"); self.vm.mark_all_done(); self.lg.mark_all_done(); self.barrier()

    def begin(self, kname):
        a = self.a; I = self.I
        a.T(f".globl {kname}\n.p2align 8\n.type {kname},@function"); a.L(kname)
        self.endl = a.label("END")
        if self.o.get("stamp"): I("s_memrealtime s[30:31]")
        if self.o.get("echo"): I("s_memtime s[96:97]" if self.o.get("cyc") else "s_memrealtime s[96:97]")
        I("s_load_dwordx16 s[64:79], s[0:1], 0"); I("s_load_dwordx16 s[80:95], s[0:1], 64")
        I("s_cmp_ge_u32 s2, 256"); I(f"s_cbranch_scc1 {self.endl}")
        I("v_lshrrev_b32 v1, 6, v0"); I("v_and_b32 v0, 63, v0"); I(f"v_readfirstlane_b32 s{SW}, v1")
        I("s_and_b32 s7, s2, 7"); I("s_lshl_b32 s7, s7, 2")
        I(f"s_lshr_b32 s{SIDX}, s2, 3"); I(f"s_lshr_b32 s{SHEAD}, s{SIDX}, 3"); I(f"s_add_u32 s{SHEAD}, s{SHEAD}, s7")
        I(f"s_and_b32 s{SIDX}, s{SIDX}, 7"); I(f"s_lshl_b32 s{SWK}, s{SW}, 10")
        I(f"s_lshl_b32 s{SF}, s{SHEAD}, 3"); I(f"s_add_u32 s{SF}, s{SF}, s{SIDX}")
    def end(self):
        self.a.L(self.endl); self.I("s_endpgm")

    def proj(self):
        a = self.a; I = self.I; vm = self.vm; lg = self.lg
        QA_LDS = 65536
        ACC = {"K": 64, "V": 128, "Q": 64}; KP = 192
        FX = [16, 40]; FW = [24, 48]
        VXA = 4; VWA = 8; VOX, VOW = 10, 11; VST = 12; VXH = 224; T = 232
        NB = self.o.get("nb2", 0)
        ST = [("KV", c) for c in range(NB)] + [("K", c) for c in range(NB, 8)] + [("V", c) for c in range(7, NB - 1, -1)] + [("Q", c) for c in range(8)]
        NS = len(ST); TK = 7; TV = NS - 9; TQ = NS - 8
        I("v_lshrrev_b32 v13, 3, v0"); I(f"s_lshl_b32 s40, s{SW}, 3"); I("v_add_u32 v13, s40, v13"); I("v_lshlrev_b32 v13, 10, v13")
        I("v_lshrrev_b32 v14, 4, v0"); I(f"s_and_b32 s40, s{SW}, 1"); I("s_lshl_b32 s40, s40, 2"); I("v_add_u32 v15, s40, v14")
        I("v_and_b32 v3, 7, v0"); I("v_xor_b32 v15, v15, v3"); I(f"v_lshl_add_u32 v{VOX}, v15, 4, v13")
        I(f"s_lshl_b32 s40, s{SW}, 2"); I("v_add_u32 v13, s40, v14"); I("v_lshlrev_b32 v13, 13, v13")
        I("v_lshlrev_b32 v15, 2, v14"); I("v_and_b32 v3, 15, v0"); I("v_xor_b32 v15, v15, v3")
        I("v_lshl_add_u32 v13, v15, 4, v13"); I(f"s_lshl_b32 s40, s{SHEAD}, 8"); I(f"v_add_u32 v{VOW}, s40, v13")
        I(f"v_lshlrev_b32 v{VST}, 4, v0")
        I(f"s_lshl_b32 s44, s{SIDX}, 18")
        for i in range(1, 4): I(f"s_add_u32 s{44+i}, s44, {65536*i}")
        ROT = self.o.get("rot", 2)
        if ROT == 0: I("s_mov_b32 s33, 0")
        elif ROT == 1: I(f"s_mov_b32 s33, s{SIDX}")
        elif ROT == 2: I(f"s_lshr_b32 s33, s{SHEAD}, 2"); I(f"s_add_u32 s33, s33, s{SIDX}")
        elif ROT == 3: I(f"s_lshr_b32 s33, s{SHEAD}, 2"); I(f"s_add_u32 s33, s33, s{SIDX}"); I(f"s_lshl_b32 s34, s{SHEAD}, 1"); I("s_add_u32 s33, s33, s34")
        elif ROT == 4: I(f"s_lshr_b32 s33, s{SHEAD}, 2")
        I("s_waitcnt lgkmcnt(0)")
        if self.o.get("stamp"): I("s_memrealtime s[28:29]")
        self.srd(RA, "ckv", 2*MB); self.srd(RB, "wuk", 4*MB); self.srd(RC, "wuv", 4*MB)
        def xbase(t):
            k, c = ST[t]
            return (32768, 131072, 0)[((16 + c) if k == "Q" else (15 - c + NB)) % 3]
        units = [(t, m) for t in range(NS) for m in ST[t][0]]
        uidx = {u: i for i, u in enumerate(units)}
        def wbase(t, m): return 65536 + (uidx[(t, m)] % 4)*16384
        items = []
        lastx = {}
        for t in range(NS):
            k, c = ST[t]
            for m in k:
                u = uidx[(t, m)]
                def w(i, t=t, m=m, c=c):
                    if i == 0: I(f"s_add_u32 s34, s33, {c}"); I("s_and_b32 s34, s34, 7"); I("s_lshl_b32 s34, s34, 19")
                    I(f"s_add_u32 m0, s{SWK}, {wbase(t, m) + i*8192}"); I(f"s_add_u32 s41, s34, {i*262144}")
                    r = {"K": RB, "V": RC, "Q": RE}[m]
                    I(f"buffer_load_dwordx4 v{VOW}, s[{r}:{r+3}], s41 offen lds"); dtok[t] = vm.issue()
                items.append((t, units[u-4][0] if u >= 4 else -1, [lambda i=i, w=w: w(i) for i in range(2)]))
            key = ("Q" if k == "Q" else "C", c); prev = lastx.get(xbase(t))
            if prev is None or prev[1] != key:
                def x(i, t=t, k=k, c=c):
                    if i == 0: I(f"s_add_u32 s35, s33, {c}"); I("s_and_b32 s35, s35, 7"); I("s_lshl_b32 s35, s35, 7")
                    I(f"s_add_u32 m0, s{SWK}, {xbase(t) + i*8192}"); I(f"s_add_u32 s41, s{(48 if k == 'Q' else 44)+i}, s35")
                    r = RD if k == "Q" else RA
                    I(f"buffer_load_dwordx4 v{VOX}, s[{r}:{r+3}], s41 offen lds"); dtok[t] = vm.issue()
                items.append((t, prev[0] if prev else -1, [lambda i=i, x=x: x(i) for i in range(4)]))
            lastx[xbase(t)] = (t, key)
        dtok = {}
        def take(done, upto=99):
            out = []
            for it in list(items):
                if it[1] <= done and it[0] <= upto: out += it[2]; items.remove(it)
            return out
        for f in take(-1, 0): f()
        self.srd(RWS, "ws", WS_SIZE); self.srd(RDBG, "dbg", 256)
        self.stamp(31)
        if self.o.get("stamp"):
            I("v_mov_b32 v2, s30"); I("s_sub_u32 s98, s98, 124"); I(f"buffer_store_dword v2, v3, s[{RWS}:{RWS+3}], s98 offen")
            I("v_mov_b32 v2, s28"); I(f"buffer_store_dword v2, v3, s[{RWS}:{RWS+3}], s98 offen offset:120")
        I(f"s_lshl_b32 s48, s{SIDX}, 17"); I("s_add_u32 s49, s48, 65536")
        I(f"s_sub_u32 s50, 15, s{SIDX}"); I("s_lshl_b32 s50, s50, 17"); I("s_add_u32 s51, s50, 65536")
        I(f"s_and_b32 s42, s{SW}, 3"); I("s_lshl_b32 s42, s42, 6"); I(f"s_lshr_b32 s43, s{SW}, 2"); I("s_lshl_b32 s43, s43, 1")
        I("v_and_b32 v13, 31, v0"); I("v_add_u32 v13, s42, v13")
        I("v_lshrrev_b32 v14, 1, v13"); I("v_and_b32 v14, 7, v14"); I("v_lshrrev_b32 v15, 5, v0")
        I("v_xor_b32 v14, v14, v15"); I("v_lshlrev_b32 v14, 4, v14"); I(f"v_lshl_add_u32 v{VXA}, v13, 7, v14")
        for k in range(1, 4): I(f"v_xor_b32 v{VXA+k}, {k<<5}, v{VXA}")
        for k in range(4): I(f"v_add_u32 v{VXH+k}, 0x20000, v{VXA+k}")
        I("v_bfe_u32 v13, v0, 2, 2"); I("v_lshl_add_u32 v14, v15, 3, v13"); I("v_lshlrev_b32 v14, 8, v14")
        I("v_bfe_u32 v15, v0, 4, 1"); I("v_lshl_add_u32 v14, v15, 5, v14")
        I("v_and_b32 v15, 3, v0"); I("v_lshl_add_u32 v14, v15, 3, v14"); I("v_add_u32 v14, 0x10000, v14")
        I("v_xor_b32 v13, s43, v13"); I(f"v_lshl_add_u32 v{VWA}, v13, 6, v14"); I(f"v_xor_b32 v{VWA+1}, 64, v{VWA}")
        I(f"s_lshl_b32 s54, s{SHEAD}, 4"); I(f"s_lshl_b32 s55, s{SIDX}, 1"); I("s_add_u32 s54, s54, s55")
        I(f"s_bfe_u32 s55, s{SW}, 0x10001"); I("s_add_u32 s54, s54, s55"); I("s_lshl_b32 s54, s54, 16")
        I(f"s_and_b32 s55, s{SW}, 1"); I("s_lshl_b32 s55, s55, 14"); I("s_add_u32 s54, s54, s55")
        I("s_lshl_b32 s55, s43, 10"); I("s_add_u32 s52, s54, s55"); I("s_add_u32 s52, s52, 0x8000")
        I("s_lshl_b32 s55, s43, 11"); I("s_add_u32 s54, s54, s55")
        XG = T; GW = T + 4; hl = {}
        def gate_loads():
            L = []
            def E(t): L.append(lambda: I(t))
            def V(t):
                def f(): I(t); hl["t"] = vm.issue()
                L.append(f)
            E(f"s_lshl_b32 s40, s{SHEAD}, 7"); E(f"s_lshl_b32 s39, s{SIDX}, 2"); E("s_add_u32 s40, s40, s39"); E(f"s_add_u32 s40, s40, {FK_OFF}")
            E(f"v_mov_b32 v13, s40")
            E(f"s_lshr_b32 s39, s{SHEAD}, 2"); E("s_lshl_b32 s39, s39, 7"); E(f"s_and_b32 s40, s{SHEAD}, 3"); E("s_lshl_b32 s40, s40, 2"); E("s_add_u32 s39, s39, s40")
            E(f"s_lshl_b32 s40, s{SIDX}, 10"); E("s_add_u32 s40, s40, s39"); E(f"s_add_u32 s40, s40, {FC_OFF}")
            E("v_writelane_b32 v13, s40, 1")
            E(f"s_sub_u32 s40, 15, s{SIDX}"); E("s_lshl_b32 s40, s40, 10"); E("s_add_u32 s40, s40, s39"); E(f"s_add_u32 s40, s40, {FC_OFF}")
            E("v_writelane_b32 v13, s40, 2")
            E(f"s_lshl_b32 s40, s{SF}, 2"); E(f"s_add_u32 s40, s40, {FY_OFF}"); E("v_writelane_b32 v13, s40, 3"); E("v_mov_b32 v14, 0")
            def oo(): self.oob_sel(); I("v_add_u32 v13, s99, v13")
            L.append(oo)
            V(f"buffer_store_dword v14, v13, s[{RWS}:{RWS+3}], 0 offen sc1")
            E("s_lshl_b32 s37, s2, 3"); E(f"s_add_u32 s37, s37, s{SW}"); E("s_lshl_b32 s38, s37, 10")
            L.append(lambda: self.srd(RD, "q", 2*MB)); L.append(lambda: self.srd(RE, "wq", 4*MB)); L.append(lambda: self.srd(RT, "gate", 1024))
            V(f"buffer_load_dwordx4 {v(XG,4)}, v{VST}, s[{RD}:{RD+3}], s38 offen")
            V(f"buffer_load_dwordx4 {v(GW,4)}, v{VST}, s[{RT}:{RT+3}], 0 offen")
            return L
        def gate_ops():
            L = []; E = lambda t: L.append(lambda: I(t)); Z = T + 8
            L.append(lambda: vm.wait(hl["t"]))
            E(f"v_dot2_f32_bf16 v{Z}, v{XG}, v{GW}, 0")
            for i in range(1, 4): E(f"v_dot2_f32_bf16 v{Z}, v{XG+i}, v{GW+i}, v{Z}")
            for m in ("quad_perm:[1,0,3,2] row_mask:0xf", "quad_perm:[2,3,0,1] row_mask:0xf", "row_half_mirror row_mask:0xf", "row_mirror row_mask:0xf",
                      "row_bcast:15 row_mask:0xa", "row_bcast:31 row_mask:0xc"):
                E(f"v_add_f32_dpp v{Z}, v{Z}, v{Z} {m} bank_mask:0xf")
            E(f"v_readlane_b32 s36, v{Z}, 63"); E(f"v_mov_b32 v{Z+1}, {f2u(-LOG2E)}"); E(f"v_mul_f32 v{Z}, s36, v{Z+1}")
            E(f"v_exp_f32 v{Z}, v{Z}"); E(f"v_add_f32 v{Z}, 1.0, v{Z}"); E(f"v_rcp_f32 v{Z}, v{Z}")
            E("s_lshl_b32 s38, s37, 2"); E(f"s_add_u32 s38, s38, {G_OFF}"); E(f"v_mov_b32 v{Z+1}, 0")
            def gs():
                I(f"buffer_store_dword v{Z}, v{Z+1}, s[{RWS}:{RWS+3}], s38 offen{self.st}"); vm.issue()
            L.append(gs)
            return L
        def reads(t, k):
            st = k & 1; toks = {}
            xb = xbase(t); va = VXA if xb < 65536 else VXH
            def rx(mt):
                I(f"ds_read_b128 {v(FX[st]+4*mt,4)}, v{va+k} offset:{(xb & 65535)+mt*4096}"); toks[("x",mt)] = lg.issue()
            def rw(j, dt, h):
                m = ST[t][0][j]
                I(f"ds_read_b64_tr_b16 {v(FW[st]+8*j+4*dt+2*h,2)}, v{VWA+dt} offset:{wbase(t, m)-65536+k*4096+h*1024}"); toks[("w",j,dt)] = lg.issue()
            L = [lambda: rx(0), lambda: rw(0,0,0), lambda: rw(0,0,1), lambda: rw(0,1,0), lambda: rw(0,1,1), lambda: rx(1)]
            if len(ST[t][0]) == 2: L += [lambda: rw(1,0,0), lambda: rw(1,0,1), lambda: rw(1,1,0), lambda: rw(1,1,1)]
            return L, toks
        seen = set()
        def mfs(t, k, toks):
            st = k & 1; L = []
            for j, m in enumerate(ST[t][0]):
                first = m not in seen; seen.add(m)
                for mt in range(2):
                    for dt in range(2):
                        def f(mt=mt, dt=dt, j=j, m=m, first=first):
                            lg.wait(max(toks[("x",mt)], toks[("w",j,dt)]))
                            d = v(ACC[m] + 16*(2*mt+dt), 16); X = v(FX[st]+4*mt,4); W = v(FW[st]+8*j+4*dt,4)
                            c = "0" if first else d
                            I(f"{MFMA} {d}, {X}, {W}, {c}" if m == "V" else f"{MFMA} {d}, {W}, {X}, {c}")
                        L.append(f)
            return L
        def kv_out(m):
            acc = ACC[m]; out = []
            for tile in range(4):
                rt, dt = tile >> 1, tile & 1; b = acc + 16*tile
                for half in range(2):
                    d = KP + 8*tile + 4*half if m == "K" else b + 4*half
                    pk = [lambda i=i, b=b, d=d, half=half: I(f"v_cvt_pk_bf16_f32 v{d+i}, v{b+8*half+2*i}, v{b+8*half+2*i+1}") for i in range(4)]
                    if m == "K": pk = [lambda i=i, b=b: I(f"v_mul_f32 v{b+i}, {f2u(LOG2E / math.sqrt(128.0))}, v{b+i}") for i in range(8*half, 8*half+8)] + pk
                    off = rt*8192 + (dt*2048 + half*1024 if m == "K" else half*4096 + dt*1024)
                    def st(d=d, off=off):
                        if self.o.get("nost"): return
                        I(f"s_add_u32 s41, s{54 if m == 'K' else 52}, {off}")
                        I(f"buffer_store_dwordx4 {v(d,4)}, v{VST}, s[{RWS}:{RWS+3}], s41 offen{self.st}"); vm.issue()
                    out.append((pk, st))
            return out
        side = {}; late = {}
        def spread(ops, t0, t1, dst=side, ks=(0, 1, 2)):
            sl = [(t, k) for t in range(t0, t1) for k in ks]; n = len(ops)
            for j, key in enumerate(sl): dst.setdefault(key, []).extend(ops[n*j//len(sl): n*(j+1)//len(sl)])
        PG = self.o.get("pg", 0)
        spread(gate_loads(), PG, PG + 1); spread(gate_ops(), PG + 3, PG + 4)
        def wtouch(r, half, wv):
            def f():
                I(f"s_cmp_eq_u32 s{SW}, {wv}"); I(f"s_cselect_b32 s99, 0, {self.OOB}")
                I(f"s_lshl_b32 s40, s{SIDX}, 19"); I(f"s_lshl_b32 s39, s{SHEAD}, 8"); I("s_add_u32 s40, s40, s39"); I(f"s_add_u32 s40, s40, {half*32*8192}")
                I("v_lshrrev_b32 v3, 1, v0"); I("v_lshlrev_b32 v3, 13, v3"); I("v_and_b32 v2, 1, v0"); I("v_lshl_add_u32 v3, v2, 7, v3"); I("v_add_u32 v3, s99, v3")
                I(f"buffer_load_dword v1, v3, s[{r}:{r+3}], s40 offen"); vm.issue()
            return f
        for nm, r, dflt in (("tk", RB, -1), ("tv", RC, 1), ("tq", RE, 3)):
            t0 = self.o.get(nm, dflt)
            if t0 >= 0:
                for half in range(2): side.setdefault((t0 + half, 2), []).append(wtouch(r, half, half))
        KN = self.o.get("kn", 8); VD = self.o.get("vd", 0); VN = self.o.get("vn", 5)
        KO = kv_out("K"); VO = kv_out("V")
        spread(sum((p for p, _ in KO), []), TK + 1, min(TK + 3, TQ), ks=(0, 1))
        npk = 2 * (min(TK + 3, TQ) - TK - 1)
        spread([s_ for _, s_ in KO], TK + 1, TK + 1 + KN, dst=late, ks=(2,))
        assert len(late[(TK + 1, 2)]) <= 8 * 2 // npk
        spread(sum((p for p, _ in VO), []), TQ, TQ + 1, ks=(0, 1))
        spread([s_ for _, s_ in VO], TQ + VD, TQ + VD + VN, dst=late, ks=(2,))
        PK_, PV_ = TK + KN + 2, TQ + VD + VN
        assert PK_ <= NS - 5 and PV_ <= NS - 2
        QE = []; EQ = lambda t: QE.append(lambda: I(t))
        EQ(f"s_and_b32 s55, s{SW}, 2"); EQ("s_lshl_b32 s55, s55, 15"); EQ(f"s_add_u32 s55, s55, {QA_LDS}")
        EQ(f"s_and_b32 s54, s{SW}, 1"); EQ("s_lshl_b32 s54, s54, 14"); EQ("s_add_u32 s55, s55, s54")
        EQ("s_lshl_b32 s54, s43, 11"); EQ("s_add_u32 s55, s55, s54"); EQ(f"v_add_u32 v14, s55, v{VST}")
        spread(QE, NS - 1, NS)
        spread([lambda r=r: I(f"v_mov_b64 {v(192+2*r,2)}, 0") for r in range(32)], NS - 1, NS)
        def fkoff():
            I(f"s_lshl_b32 s40, s{SHEAD}, 7"); I(f"s_lshl_b32 s41, s{SIDX}, 2"); I("s_add_u32 s40, s40, s41"); I(f"s_add_u32 s40, s40, {FK_OFF}")
        def w0only(fn):
            l = a.label("NP"); I(f"s_cmp_lg_u32 s{SW}, 0"); I(f"s_cbranch_scc1 {l}"); fn(); a.L(l)
        def k0(i):
            I(f"s_lshl_b32 s40, s{SW}, 12"); I("s_add_u32 m0, s40, 0x8000")
            I(f"s_lshl_b32 s41, s{SHEAD}, 20"); I("s_add_u32 s41, s41, s40")
            I(f"buffer_load_dwordx4 v{VST}, s[{RWS}:{RWS+3}], s41 offen offset:{1024*i}{self.ld} lds"); vm.issue()
        self.barrier()
        for f in take(-1, 1): f()
        vm.wait(dtok[0]); self.barrier()
        self.stamp(1)
        L, toks = reads(0, 0)
        for f in L: f()
        mark = {}; TZ = PG + 2; DS = self.o.get("dsteps", 3)
        pend = take(-1)
        for t in range(NS):
            for k in range(4):
                M = mfs(t, k, toks); n = len(M); PB = []
                if k == 3 and t < NS - 1:
                    assert not pend
                    if t == NS - 5: vm.wait(td); w0only(lambda: self.poll_check(14, 13, "0", rep4(1), RDBG))
                    if t == NS - 3: vm.wait(tp); w0only(lambda: self.poll_check(15, 13, "s53", 1))
                    lg.wait(lg.issued); vm.wait(dtok[t+1])
                    if t == TZ: vm.wait(mark[TZ-2])
                    if t == PK_: vm.wait(mark[TK + KN])
                    if t == PV_: vm.wait(mark[PV_ - 1])
                    self.barrier()
                    ps = self.o.get("pstamp")
                    if ps is not None and 0 <= t - int(ps) + 1 < 13: self.stamp(17 + t - int(ps) + 1); vm.issue(2)
                    if TZ <= t < TZ + 8: PB.append(lambda t=t: self.publish(SF, 1, RDBG, True, idx=t - TZ))
                    if t == PK_: PB.append(lambda: (fkoff(), self.publish(40, 1)))
                    if t == PV_: PB.append(lambda: (fkoff(), self.publish(40, 3)))
                    pend = take(t)
                    if t == NS - 3: pend += [lambda i=i: k0(i) for i in range(4)]
                    nd = len(pend) // (DS + 1)
                else:
                    nd = -(-len(pend) // max(1, (3 if t == 0 else DS) - k))
                D, pend = pend[:nd], pend[nd:]
                fl = []
                if not (t == NS - 1 and k == 3):
                    L, nt = reads(t, k+1) if k < 3 else reads(t+1, 0)
                    fl.append((0, max(3, n - 2) if n > 4 else 3, L))
                if PB: fl.append((1, 2, PB))
                if D: fl.append((0, n, D))
                if side.get((t, k)): fl.append((0, n, side[(t, k)]))
                if late.get((t, k)): fl.append((n - 2, n, late[(t, k)]))
                self.stream(M, fl); toks = nt
                if k == 2: mark[t] = vm.issued
                if t == NS - 7 and k == 0:
                    self.oob_sel(); I("v_lshl_add_u32 v13, v0, 2, s99"); td = self.poll_issue(14, 13, "0", RDBG)
                if t == NS - 4 and k == 0:
                    self.oob_sel(); I("v_and_b32 v13, 7, v0"); I("v_lshl_add_u32 v13, v13, 2, s99")
                    I(f"s_lshl_b32 s53, s{SHEAD}, 7"); I(f"s_add_u32 s53, s53, {FK_OFF}")
                    tp = self.poll_issue(15, 13, "s53")
            if t == TK: self.stamp(2)
            if t == TV: self.stamp(13)
        assert not items
        self.stamp(3)
        I("v_mov_b32 v62, v13")
        self.poll_issue(63, 62, "s53")
        for tile in range(4):
            rt, dt = tile >> 1, tile & 1; b = ACC["Q"] + 16*tile
            for i in range(8): I(f"v_cvt_pk_bf16_f32 v{b+i}, v{b+2*i}, v{b+2*i+1}")
            for half in range(2):
                I(f"ds_write_b128 v14, {v(b+4*half,4)} offset:{rt*8192+dt*2048+half*1024}"); lg.issue()
        self.attn_setup()
        vm.wait(vm.issued); w0only(lambda: self.poll_check(63, 62, "s53", 3))
        lg.wait(lg.issued); self.barrier()

    def attn_setup(self): self.attn(True)
    def attn(self, setup=False):
        a = self.a; I = self.I; vm = self.vm; lg = self.lg; stream = self.stream
        ML = 159744; QA_LDS = 65536; QB_LDS = 131072
        O = 192; QF = 160; NM = 144; S = [112, 128]; PP = [96, 104]; RING = 64; NR = 8; E = 56; PK = 16
        VK, VV, VL16, LRUN, LU, THR, NINF, VQ, TMP, LA = 4, 5, 6, 7, 8, 9, 10, 11, 12, 14
        SR, SG, SC1, SC2, SKO, SVO, SKM, SVM, STH = 32, 33, 34, 35, 36, 37, 38, 39, 42
        SMK, SFIN, SCA, SM1 = 54, 55, 59, 58
        DC = self.o.get("dmacost", 16); WEV = self.o.get("wev", 2)
        if setup:
            I(f"s_and_b32 s{SR}, s{SW}, 3"); I(f"s_lshr_b32 s{SG}, s{SW}, 2")
            I(f"v_lshlrev_b32 v{VL16}, 4, v0")
            I(f"s_lshl_b32 s44, s{SR}, 13"); I(f"s_add_u32 s44, s44, {QB_LDS}"); I(f"v_add_u32 v{VQ}, s44, v{VL16}")
            I(f"s_lshl_b32 s45, s{SG}, 16"); I(f"v_subrev_u32 v{TMP+1}, s45, v{VQ}")
            I(f"s_mov_b32 s{SC1}, s{SIDX}")
            I(f"s_lshl_b32 s{SC2}, s{SIDX}, 1"); I(f"s_sub_u32 s{SC2}, 14, s{SC2}")
            I(f"s_cmp_eq_u32 s{SG}, 1"); I(f"s_cselect_b32 s{SM1}, 0, -1")
            I(f"s_lshl_b32 s43, s{SW}, 12"); I(f"s_lshl_b32 s{SVO}, s{SHEAD}, 20"); I(f"s_add_u32 s{SVO}, s{SVO}, s43")
            I(f"s_add_u32 s{SKO}, s{SVO}, 0x10000"); I(f"s_add_u32 s{SVO}, s{SVO}, 0x8000")
            I(f"s_mov_b32 s{SKM}, s43"); I(f"s_add_u32 s{SVM}, s43, 0x18000")
            I(f"s_mov_b32 s{STH}, {f2u(4096.0)}"); I(f"v_mov_b32 v{NINF}, 0xff800000")
            I(f"v_and_b32 v{THR}, 31, v0"); I(f"s_lshl_b32 s44, s{SR}, 5"); I(f"v_add_u32 v{THR}, s44, v{THR}")
            I(f"v_lshrrev_b32 v{TMP}, 5, v0"); I(f"v_lshlrev_b32 v{TMP}, 2, v{TMP}"); I(f"v_sub_u32 v{THR}, v{THR}, v{TMP}")
            I(f"v_add_u32 v{VK}, 0x8000, v{VL16}")
            I(f"s_lshl_b32 s{SCA}, s{SIDX}, 2"); I(f"s_add_u32 s{SCA}, s{SCA}, s{SR}"); I(f"s_lshl_b32 s{SCA}, s{SCA}, 5"); I(f"s_add_u32 s{SCA}, s{SCA}, s{SHEAD}")
            I(f"s_lshl_b32 s{SCA}, s{SCA}, 13"); I(f"s_add_u32 s{SCA}, s{SCA}, {CTX_OFF}")
            I(f"s_mov_b32 s{SFIN}, 0")
            if self.o.get("map84", 1):
                I(f"s_lshr_b32 s56, s{SF}, 6"); I("s_lshl_b32 s56, s56, 3"); I(f"s_bfe_u32 s44, s{SF}, 0x30002"); I("s_add_u32 s56, s56, s44")
                I(f"s_bfe_u32 s57, s{SF}, 0x10005"); I("s_lshl_b32 s57, s57, 2"); I(f"s_and_b32 s44, s{SF}, 3"); I("s_add_u32 s57, s57, s44")
                I(f"s_and_b32 s40, s{SF}, 63"); I("s_lshl_b32 s40, s40, 16")
            else:
                I(f"s_mov_b32 s56, s{SHEAD}"); I(f"s_mov_b32 s57, s{SIDX}")
                I(f"s_and_b32 s40, s{SF}, 31"); I("s_lshl_b32 s40, s40, 17")
            I(f"s_lshl_b32 s44, s{SW}, 13"); I("s_add_u32 s40, s40, s44"); I(f"s_add_u32 s40, s40, {WOT_OFF}")
            self.srd(RB, "ssmk", 2*MB); self.srd(RA, "k", 2*MB); self.srd(RC, "v", 2*MB); self.srd(RD, "shift", 4096); self.srd(RE, "wo", 4*MB)
            I("s_mov_b32 s41, 0")
            if not self.o.get("noprio"):
                l = a.label("PR"); I(f"s_cmp_eq_u32 s{SG}, 1"); I(f"s_cbranch_scc0 {l}"); I("s_setprio 1"); a.L(l)
            return
        def loadq(va):
            qt = []
            for ds in range(8):
                I(f"ds_read_b128 {v(QF+4*ds,4)}, v{va} offset:{1024*ds}"); qt.append(lg.issue())
            return qt
        op = lambda t, c=4: (lambda: I(t), c)
        def dma4(kind):
            sm, so = (SKM, SKO) if kind == "k" else (SVM, SVO)
            def d(i):
                def f():
                    if i == 0: I(f"s_mov_b32 m0, s{sm}"); I(f"s_xor_b32 s{sm}, s{sm}, 0x8000")
                    if not (self.o.get("a_nodma") and i):
                        I(f"buffer_load_dwordx4 v{VL16}, s[{RWS}:{RWS+3}], s{so} offen offset:{1024*i}{self.ld} lds")
                    if i == 3: I(f"s_add_u32 s{so}, s{so}, 0x10000")
                return (f, DC + (8 if i == 0 else 4 if i == 3 else 0))
            return [d(i) for i in range(4)]
        self.ring_n = 0
        def rd(kind, sl, idx):
            h = {}
            def f():
                slot = self.ring_n % NR; self.ring_n += 1
                h["reg"] = RING + 4*slot
                I(f"ds_read_b128 {v(h['reg'],4)}, v{VK if kind == 'k' else VV} offset:{sl*8192+idx*1024}"); h["tok"] = lg.issue()
            return f, h
        def wait_for(R, i):
            if R[i][1]["tok"] <= lg.done: return
            j = i
            while j + 1 < len(R) and j + 1 < i + WEV and "tok" in R[j+1][1] and R[j+1][1]["tok"] > R[i][1]["tok"]: j += 1
            lg.wait(R[j][1]["tok"])
        def mf_qk(sb, ds, R, i, czero=False):
            wait_for(R, i)
            c = (("0" if czero else v(NM,16)) if ds == 0 else v(S[sb],16))
            I(f"{MFMA} {v(S[sb],16)}, {v(R[i][1]['reg'],4)}, {v(QF+4*ds,4)}, {c}")
        def mf_pv(pb, idx, R, i=None, reg=None):
            ks, dt = idx >> 2, idx & 3
            if reg is None: wait_for(R, i); reg = R[i][1]["reg"]
            I(f"{MFMA} {v(O+16*dt,16)}, {v(reg,4)}, {v(PP[pb]+4*ks,4)}, {v(O+16*dt,16)}")
        def sm_ops(sb):
            L = []
            ex = lambda i: op(f"v_exp_f32 v{E+(i&7)}, v{S[sb]+i}", 8)
            def post(j):
                r = []; e0, e1 = E + ((2*j) & 7), E + ((2*j+1) & 7)
                if j == 0: r.append(op(f"v_add_f32 v{LU}, v{e0}, v{e1}"))
                else: r += [op(f"v_add_f32 v{LU}, v{LU}, v{e0}"), op(f"v_add_f32 v{LU}, v{LU}, v{e1}")]
                r.insert(1 if j else 0, op(f"v_cvt_pk_bf16_f32 v{PP[sb]+j}, v{e0}, v{e1}"))
                return r
            L += [ex(0), ex(1)]
            for j in range(8):
                p = post(j)
                L += ([ex(2*j+2), p[0], ex(2*j+3)] + p[1:]) if j < 7 else p
            if self.o.get("a_nosm"): L = [(lambda: None, 0) if i > 3 else x for i, x in enumerate(L)]
            return L
        def sched(M, fixed, chain):
            n = len(M); fc = [sum(c for _, c in fixed.get(g, [])) for g in range(n)]
            tot = sum(c for _, c in chain)
            lo, hi = 0.0, 4000.0
            for _ in range(40):
                lev = (lo + hi) / 2
                if sum(max(0, lev - f) for f in fc) >= tot: hi = lev
                else: lo = lev
            k = 0; credit = 0.0
            for g in range(n):
                M[g]()
                for c, _ in fixed.get(g, []): c()
                credit += max(0, hi - fc[g])
                while k < len(chain) and (g == n - 1 or chain[k][1] <= credit + 2):
                    chain[k][0](); credit -= chain[k][1]; k += 1
        def put(fixed, g, items): fixed.setdefault(g, []).extend(items)
        SPL = self.o.get("spl", 26)
        ool = []
        def rarely(cmp_, body):
            lo = a.label("OOL"); lb = a.label("RET")
            I(cmp_); I(f"s_cbranch_scc1 {lo}"); a.L(lb)
            ool.append((lo, lb, body))
        def mask_body(sb, koff):
            prs = [46, 48, 50, 52]
            if koff >= 64:
                I(f"v_subrev_u32 v{TMP+3}, 64, v{THR}"); tr = TMP + 3; koff -= 64
            elif koff < 0:
                I(f"s_lshl_b32 s44, s{SG}, 6"); I(f"v_subrev_u32 v{TMP+3}, s44, v{THR}"); tr = TMP + 3; koff = -koff - 1
            else: tr = THR
            for r0 in range(0, 16, 4):
                for r in range(r0, r0+4):
                    I(f"v_cmp_lt_i32 s[{prs[r&3]}:{prs[r&3]+1}], v{tr}, {(r & 3) + 8*(r >> 2) + koff}")
                for r in range(r0, r0+4):
                    I(f"v_cndmask_b32 v{S[sb]+r}, v{S[sb]+r}, v{NINF}, s[{prs[r&3]}:{prs[r&3]+1}]")
        def rowmax(sb, dst):
            b = S[sb]
            I(f"v_max3_f32 v{dst}, v{b}, v{b+1}, v{b+2}")
            for i in range(3, 15, 2): I(f"v_max3_f32 v{dst}, v{dst}, v{b+i}, v{b+i+1}")
            I(f"v_max_f32 v{dst}, v{dst}, v{b+15}"); I(f"v_mov_b32 v{dst+1}, v{dst}")
            I(f"v_permlane32_swap_b32 v{dst}, v{dst+1}"); I(f"v_max_f32 v{dst}, v{dst}, v{dst+1}")
        def init_max():
            rowmax(0, TMP)
            I(f"v_max_f32 v{TMP}, {f2u(-1e30)}, v{TMP}")
            for r in range(16): I(f"v_sub_f32 v{NM+r}, 0, v{TMP}")
            return [op(f"v_sub_f32 v{S[0]+r}, v{S[0]+r}, v{TMP}") for r in range(16)]
        rare = []
        def check(sb, other=True):
            def f():
                lr = a.label("RARE"); lb = a.label("BACK")
                I(f"v_cmp_nge_f32 vcc, s{STH}, v{LU}")
                if self.o.get("a_nocheck"): I("s_mov_b64 vcc, 0")
                I(f"s_cbranch_vccnz {lr}"); a.L(lb)
                I(f"v_add_f32 v{LRUN}, v{LRUN}, v{LU}")
                rare.append((lr, lb, sb, other))
            return f
        def fin_body():
            I(f"v_mov_b32 v{TMP}, v{LA}"); I(f"s_mov_b32 s{SFIN}, 2"); I("s_nop 0")
            I(f"v_permlane32_swap_b32 v{TMP}, v{LA}"); I(f"v_add_f32 v{TMP}, v{TMP}, v{LA}"); I(f"v_rcp_f32 v{TMP}, v{TMP}"); I(f"v_mov_b32 v{TMP+1}, v{TMP}")
            for q in range(8):
                for i in range(8*q, 8*q+8, 2): I(f"v_pk_mul_f32 {v(O+i,2)}, {v(O+i,2)}, {v(TMP,2)}")
                for i in range(4): I(f"v_cvt_pk_bf16_f32 v{PK+4*q+i}, v{O+8*q+2*i}, v{O+8*q+2*i+1}")
                for i in range(8*q, 8*q+8, 2): I(f"v_mov_b64 {v(O+i,2)}, 0")
        def st_body():
            I(f"s_add_u32 s44, s{SCA}, 4096"); I(f"s_mov_b32 s{SFIN}, 3")
            for q in range(8):
                I(f"buffer_store_dwordx4 {v(PK+4*q,4)}, v{VL16}, s[{RWS}:{RWS+3}], s{SCA if q < 4 else 44} offen offset:{1024*(q&3)}{self.st}")
        TR = [RING + 4*(2+i) for i in range(6)]
        def head(R, vmw, with_mfma=True, post=()):
            rf = [(f, 4) for f, h in R]; sm2 = sm_ops(0)[SPL:]
            nop = lambda: None
            def first():
                I("s_waitcnt lgkmcnt(4)"); mf_pv(1, 2, None, reg=TR[0])
            M = [first] + [lambda i=i: mf_pv(1, 2+i, None, reg=TR[i]) for i in range(1, 6)] if with_mfma else [nop]*6
            nb = self.o.get("nb", 4)
            sched(M[:2], {}, sm2[:nb])
            vmw(); I("s_waitcnt lgkmcnt(0)"); lg.mark_all_done(); self.barrier(); self.ring_n = 0
            fx = {0: rf[0:2], 1: rf[2:5], 2: rf[5:6], 3: rf[6:7] + [(nop, 12 + 8*len(post))]}
            sched(M[2:], fx, sm2[nb:])
            check(0)()
            for p in post: p()
        def mk_reads():
            return ([rd("k", 0, i) for i in range(8)] + [rd("v", 0, i) for i in range(8)] +
                    [rd("k", 1, i) for i in range(8)] + [rd("v", 1, i) for i in range(8)])
        def mid(R, dmas, kx, mb=None, trans=False, endops=(), extra=None):
            rf = [(f, 4) for f, h in R]
            M = [lambda i=i: mf_qk(0, i, R, i, trans) for i in range(8)] + [lambda i=i: mf_pv(0, i, R, 8+i) for i in range(8)]
            fx = {}
            for g in range(16): put(fx, g, [rf[7+g]])
            D = sum((dma4(k) for k in dmas), [])
            DS = self.o.get("dstep", 2)
            spill = []
            for n, d in enumerate(D):
                g = n * DS * (2 if len(D) == 4 and not extra else 1)
                if g < 15: put(fx, g, [d])
                else: spill.append((g - 16 if g >= 16 else 0, d))
            put(fx, 15, [(lambda: None, 20)])
            if extra:
                X0 = self.o.get("x0", 8); ng = 16 - X0 + 9; per = -(-len(extra) // ng)
                put(fx, X0, [op("s_waitcnt vmcnt(4)")])
                for g in range(X0, 16): put(fx, g, extra[(g-X0)*per:(g-X0+1)*per])
                for g in range(9): spill += [(g, x) for x in extra[(16-X0+g)*per:(16-X0+g+1)*per]]
            sched(M, fx, sm_ops(1))
            check(1, other=not trans)()
            if mb: mb()
            pre = []
            if trans:
                I(f"v_mov_b32 v{LA}, v{LRUN}"); I(f"v_mov_b32 v{LRUN}, 0"); I(f"s_mov_b32 s{SFIN}, 1")
                pre = init_max()
            M = [lambda i=i: mf_qk(1, i, R, 16+i) for i in range(8)] + [lambda i=i: mf_pv(1, i, R, 24+i) for i in range(2)]
            fx = {}
            for g in range(9): put(fx, g, [rf[23+g]])
            for g, d in spill: put(fx, g, [d])
            put(fx, 8, [op(f"v_xor_b32 v{VV}, 0x10000, v{VK}")] + kx)
            for n, e in enumerate(endops): put(fx, 7 - n, [e])
            put(fx, 9, [(lambda: None, 16)])
            sched(M, fx, pre + sm_ops(0)[:SPL])
            assert [R[26+i][1]["reg"] for i in range(6)] == TR
        vm4 = lambda: I("s_waitcnt vmcnt(4)")
        vm0 = lambda: I("s_waitcnt vmcnt(0)")
        def vm08():
            lo = a.label("W8"); lb = a.label("W8R")
            I(f"s_cmp_eq_u32 s{SFIN}, 3"); I(f"s_cbranch_scc1 {lo}"); I("s_waitcnt vmcnt(%d)" % self.o.get("a_vm", 0)); a.L(lb)
            def b(): I("s_waitcnt vmcnt(8)"); I(f"s_mov_b32 s{SFIN}, 4")
            ool.append((lo, lb, b))
        m1 = lambda sb, ko: (lambda: rarely(f"s_cmp_eq_u32 s{SC1}, s{SM1}", lambda: mask_body(sb, ko)))
        fin = lambda: rarely(f"s_cmp_eq_u32 s{SFIN}, 1", fin_body)
        sta = (lambda: rarely(f"s_cmp_eq_u32 s{SFIN}, 2", st_body), 8)

        KR, VR, SH, WO, AD = 16, 23, 28, 32, 40
        def side_loads():
            L = []; E = lambda t: L.append(op(t)); V = lambda t: L.append(op(t, DC))
            E(f"v_lshrrev_b32 v{AD}, 5, v0"); E(f"v_and_b32 v{AD+1}, 31, v0"); E(f"v_lshlrev_b32 v{AD+2}, 12, v{AD}"); E(f"v_lshl_add_u32 v{AD+2}, v{AD+1}, 2, v{AD+2}")
            E(f"s_lshl_b32 s60, s{SF}, 14"); E(f"s_lshl_b32 s61, s{SW}, 7"); E("s_add_u32 s60, s60, s61"); E("s_add_u32 s61, s60, 8192")
            for j in range(8): V(f"buffer_load_dword v{WO+j}, v{AD+2}, s[{RE}:{RE+3}], s{60+(j>>2)} offen offset:{1024*(j&3)}")
            E("s_lshr_b32 s62, s2, 3"); E("s_lshl_b32 s62, s62, 16"); E(f"s_lshl_b32 s63, s{SW}, 13"); E("s_add_u32 s62, s62, s63")
            E("s_and_b32 s63, s2, 7"); E("s_lshl_b32 s63, s63, 7"); E("s_add_u32 s62, s62, s63"); E(f"v_add_u32 v{AD+3}, s62, v{AD+2}")
            for i in range(3): E(f"v_subrev_u32 v{AD+4+i}, {3072-1024*i}, v{AD+3}")
            E("s_lshl_b32 s63, s63, 2"); E(f"v_lshl_add_u32 v{AD+7}, v{AD+1}, 4, s63")
            for i in range(3): V(f"buffer_load_dword v{KR+i}, v{AD+4+i}, s[{RA}:{RA+3}], 0 offen")
            for i in range(4): V(f"buffer_load_dword v{KR+3+i}, v{AD+3}, s[{RA}:{RA+3}], 0 offen offset:{1024*i}")
            for i in range(4): V(f"buffer_load_dword v{VR+i}, v{AD+3}, s[{RC}:{RC+3}], 0 offen offset:{1024*i}")
            V(f"buffer_load_dwordx4 {v(SH,4)}, v{AD+7}, s[{RD}:{RD+3}], 0 offen")
            E(f"s_lshl_b32 s60, s{SF}, 13"); E(f"s_add_u32 s60, s60, s{SWK}"); E(f"v_and_b32 v27, 7, v0"); E("v_lshlrev_b32 v27, 7, v27")
            V(f"buffer_load_dword v1, v27, s[{RB}:{RB+3}], s60 offen")
            return L
        NSL = 21
        def side_math():
            L = []; E = lambda t: L.append(op(t)); V = lambda t: L.append(op(t, DC))
            W2 = 48
            E("s_mov_b32 s60, 0x05040100"); E("s_mov_b32 s61, 0x07060302")
            for j in range(4): E(f"v_perm_b32 v{W2+j}, v{WO+2*j+1}, v{WO+2*j}, s60")
            for j in range(4): E(f"v_perm_b32 v{W2+4+j}, v{WO+2*j+1}, v{WO+2*j}, s61")
            E(f"s_lshl_b32 s60, s{SW}, 8"); E(f"s_add_u32 s60, s60, s{SF}"); E("s_lshl_b32 s60, s60, 11"); E(f"s_add_u32 s60, s60, {WOT_OFF}")
            for mt in range(2): V(f"buffer_store_dwordx4 {v(W2+4*mt,4)}, v{VL16}, s[{RWS}:{RWS+3}], s60 offen offset:{1024*mt}{self.st}")
            KU, SU, OO, VU, PQ = 32, 42, 48, 39, 52
            for c in range(2):
                def unp(d, sreg, half): E(f"v_lshlrev_b32 v{d}, 16, v{sreg}" if half == 0 else f"v_and_b32 v{d}, 0xffff0000, v{sreg}")
                for i in range(7): unp(KU+i, KR+i, c)
                for j in range(4): unp(SU+j, SH + 2*c + (j >> 1), j & 1)
                for o in range(4):
                    E(f"v_mul_f32 v{OO+o}, v{KU+o}, v{SU+3}")
                    for j in (2, 1, 0): E(f"v_fmac_f32 v{OO+o}, v{KU+o+3-j}, v{SU+j}")
                    unp(VU, VR+o, c)
                    E(f"v_mul_f32 v{OO+o}, v{OO+o}, v{VU}")
                d = PQ + 2*(1-c)
                E(f"v_cvt_pk_bf16_f32 v{d}, v{OO+3}, v{OO+2}"); E(f"v_cvt_pk_bf16_f32 v{d+1}, v{OO+1}, v{OO}")
            E(f"v_lshlrev_b32 v{AD+1}, 5, v{AD+1}"); E(f"v_lshl_add_u32 v{AD+1}, v{AD}, 4, v{AD+1}")
            E(f"v_permlane32_swap_b32 v{PQ+2}, v{PQ}"); E(f"v_permlane32_swap_b32 v{PQ+3}, v{PQ+1}")
            E("s_lshr_b32 s60, s2, 3"); E("s_lshl_b32 s60, s60, 16"); E(f"s_lshl_b32 s61, s{SW}, 13"); E("s_add_u32 s60, s60, s61")
            E("s_and_b32 s61, s2, 7"); E("s_lshl_b32 s61, s61, 10"); E("s_add_u32 s60, s60, s61"); E(f"s_add_u32 s60, s60, {KVT_OFF}")
            V(f"buffer_store_dwordx4 {v(PQ,4)}, v{AD+1}, s[{RWS}:{RWS+3}], s60 offen{self.st}")
            return L
        def spub_body():
            l1 = a.label("SM"); l2 = a.label("SP")
            I("s_add_u32 s41, s41, 1"); I(f"s_add_u32 s44, s41, s{SG}"); I("s_cmp_lg_u32 s44, 2"); I(f"s_cbranch_scc1 {l1}")
            for c, _ in side_math(): c()
            a.L(l1)
            I("s_cmp_lg_u32 s41, 4"); I(f"s_cbranch_scc1 {l2}")
            I(f"s_lshl_b32 s44, s{SF}, 2"); I(f"s_add_u32 s44, s44, {FY_OFF}")
            sv = self.save(); self.publish(44, 2); self.restore(sv)
            a.L(l2)
        spub = lambda: rarely("s_cmp_lt_u32 s41, 4", spub_body)
        def snap():
            self.oob_sel(); I("v_lshl_add_u32 v49, v0, 4, s99"); I(f"s_mov_b32 s60, {FY_OFF}")
            I(f"buffer_load_dwordx4 v[52:55], v49, s[{RWS}:{RWS+3}], s60 offen sc1")
        def side_check():
            l = a.label("SCK"); lp = a.label("SPL")
            I(f"s_cmp_lg_u32 s{SW}, 0"); I(f"s_cbranch_scc1 {l}")
            I("s_mov_b32 s99, 20000"); a.L(lp)
            I("v_and_b32 v52, v52, v53"); I("v_and_b32 v54, v54, v55"); I("v_and_b32 v52, v52, v54"); I("v_and_b32 v52, 2, v52")
            I("v_cmp_ne_u32 vcc, 2, v52"); I(f"s_cbranch_vccz {l}"); I("s_sleep 2")
            I(f"buffer_load_dwordx4 v[52:55], v49, s[{RWS}:{RWS+3}], s60 offen sc1")
            I("s_sub_u32 s99, s99, 1"); I("s_cmp_lg_u32 s99, 0"); I("s_waitcnt vmcnt(0)"); I(f"s_cbranch_scc1 {lp}")
            a.L(l)
        m2 = lambda sb, ko: (lambda: rarely(f"s_cmp_eq_u32 s{SC2}, 0", lambda: (snap(), mask_body(sb, ko))))
        LEV = a.label("EVEN"); LODM = a.label("ODDM"); LTRANS = a.label("TRANS"); LP2 = a.label("P2"); LP2B = a.label("P2B"); LDRAIN = a.label("DRAIN")
        self.stamp(8)
        self.ring_n = 0
        R = [rd("k", 0, i) for i in range(8)] + [rd("k", 1, i) for i in range(8)]
        for i in range(7):
            I(f"ds_read_b128 {v(QF+4*i,4)}, v{TMP+1} offset:{1024*i}"); lg.issue()
            R[i][0]()
        def q7():
            I(f"ds_read_b128 {v(QF+28,4)}, v{TMP+1} offset:{1024*7}"); lg.issue()
        D = dma4("v") + dma4("k")
        sched([lambda i=i: mf_qk(0, i, R, i, True) for i in range(8)], {g: ([(q7, 4)] if g == 0 else []) + [(R[7+g][0], 4), D[g]] for g in range(8)}, [])
        m1(0, 0)()
        pre = init_max()
        I(f"v_mov_b32 v{LRUN}, 0")
        fx = {}
        put(fx, 0, [(R[15][0], 4)]); put(fx, 4, [op(f"v_xor_b32 v{VV}, 0x10000, v{VK}"), op(f"v_xor_b32 v{VK}, 0x4000, v{VK}")])
        SLd = side_loads(); n8 = (len(SLd) + 7) // 8
        for g in range(8): put(fx, g, SLd[g*n8:(g+1)*n8])
        sched([lambda i=i: mf_qk(1, i, R, 8+i) for i in range(8)], fx, pre + sm_ops(0)[:SPL])
        R = mk_reads()
        head(R, lambda: I(f"s_waitcnt vmcnt({4+NSL})"), False, post=[m1(1, 32)])
        svm = self.save()
        I(f"s_branch {LODM}")
        a.L(LEV)
        R = mk_reads(); head(R, vm4)
        mid(R, "k", [op(f"v_xor_b32 v{VK}, 0x4000, v{VK}")], mb=m1(0, 0))
        R = mk_reads(); head(R, vm4, post=[m1(1, 32), spub])
        assert self.lg.issued - self.lg.done == svm[2] - svm[3]
        a.L(LODM)
        mid(R, "v", [op(f"v_xor_b32 v{VK}, 0xc000, v{VK}")], mb=m1(0, 64), endops=[op(f"s_sub_u32 s{SC1}, s{SC1}, 1")])
        I(f"s_cmp_lg_u32 s{SC1}, -1"); I(f"s_cbranch_scc1 {LEV}")
        I(f"s_cmp_eq_u32 s{SG}, 1"); I(f"s_cbranch_scc1 {LTRANS}")
        svt = self.save()
        R = mk_reads(); head(R, vm4)
        mid(R, "k", [op(f"v_xor_b32 v{VK}, 0x8000, v{VK}")], mb=m2(0, -1))
        a.L(LP2B)
        I(f"s_cmp_eq_u32 s{SC2}, 0"); I(f"s_cbranch_scc1 {LDRAIN}")
        a.L(LP2)
        R = mk_reads(); head(R, vm08, post=[spub, fin, lambda: I(f"s_sub_u32 s{SC2}, s{SC2}, 1")])
        mid(R, "kv", [op(f"v_xor_b32 v{VK}, 0x8000, v{VK}")], mb=m2(0, -1), endops=[sta])
        I(f"s_cmp_lg_u32 s{SC2}, 0"); I(f"s_cbranch_scc1 {LP2}")
        a.L(LDRAIN)
        self.stamp(10)
        R2 = [rd("v", 0, i) for i in range(8)] + [rd("v", 1, i) for i in range(8)]
        rf = [(f, 4) for f, h in R2]
        head(R2, lambda: (vm08(), side_check()), post=[fin, sta[0]])
        mask_body(1, -33)
        ts, ts2, ts3 = self.tail_setup(); n8 = (len(ts) + 4) // 5
        fx = {g: [rf[7+g]] + ts[g*n8:(g+1)*n8] for g in range(8)}
        for g in range(3):
            if g < len(ts2): put(fx, 5 + g, [ts2[g]])
        sched([lambda i=i: mf_pv(0, i, R2, i) for i in range(8)], fx, sm_ops(1))
        check(1)()
        pre = []; E_ = lambda t: pre.append(op(t))
        E_(f"v_mov_b32 v{TMP}, v{LRUN}"); E_(f"s_lshl_b32 s44, s{SW}, 9"); E_(f"s_add_u32 s44, s44, {ML}")
        E_(f"v_permlane32_swap_b32 v{TMP}, v{LRUN}"); E_(f"v_add_f32 v{NM+1}, v{TMP}, v{LRUN}")
        E_(f"v_lshrrev_b32 v{TMP}, 1, v{VL16}"); E_(f"v_add_u32 v{TMP}, s44, v{TMP}")
        def wml():
            I(f"ds_write_b64 v{TMP}, {v(NM,2)}"); lg.issue()
        pre.append((wml, 4))
        E_(f"v_xor_b32 v{TMP}, 0x800, v{TMP}")
        E_(f"s_lshl_b32 s46, s{SW}, 13"); E_(f"v_add_u32 v{TMP+1}, s46, v{VL16}"); E_(f"v_xor_b32 v{TMP+2}, 0x8000, v{TMP+1}")
        E_(f"s_sub_u32 s54, 15, s{SIDX}"); E_(f"s_lshl_b32 s54, s54, 2"); E_(f"s_add_u32 s54, s54, s{SR}"); E_("s_lshl_b32 s54, s54, 5"); E_(f"s_add_u32 s54, s54, s{SHEAD}")
        E_("s_lshl_b32 s54, s54, 13"); E_(f"s_lshl_b32 s44, s{SG}, 12"); E_("s_add_u32 s54, s54, s44"); E_(f"s_add_u32 s54, s54, {CTX_OFF}")
        fx = {0: [rf[15]]}
        for g, x in enumerate(ts2[3:]): put(fx, g, [x])
        sched([lambda i=i: mf_pv(1, i, R2, 8+i) for i in range(8)], fx, pre + ts3)
        self.stamp(11)
        lg1 = a.label("MG1"); lj = a.label("MGJ")
        I(f"s_cmp_eq_u32 s{SG}, 1"); I(f"s_cbranch_scc1 {lg1}")
        sv2 = self.save(); PR = 64
        for g in (0, 1):
            if g: a.L(lg1); self.restore(sv2)
            own = O + 32*g; snd = O + 32*(1-g)
            for i in range(8):
                I(f"ds_write_b128 v{TMP+1}, {v(snd+4*i,4)} offset:{1024*i}"); lg.issue()
            lg.wait(lg.issued); self.barrier()
            I(f"ds_read_b64 {v(96,2)}, v{TMP}"); t0 = lg.issue()
            tk = []
            for i in range(8):
                I(f"ds_read_b128 {v(PR+4*i,4)}, v{TMP+2} offset:{1024*i}"); tk.append(lg.issue())
            lg.wait(t0)
            I(f"v_min_f32 v98, v{NM}, v96"); I(f"v_sub_f32 v99, v98, v{NM}"); I(f"v_sub_f32 v100, v98, v96")
            I("v_exp_f32 v99, v99"); I("v_exp_f32 v100, v100")
            I(f"v_mul_f32 v101, v99, v{NM+1}"); I("v_fmac_f32 v101, v100, v97"); I("v_rcp_f32 v101, v101")
            I("v_mul_f32 v102, v99, v101"); I("v_mul_f32 v103, v99, v101"); I("v_mul_f32 v104, v100, v101"); I("v_mul_f32 v105, v100, v101")
            for q in range(4):
                for i in range(8*q, 8*q+8, 2): I(f"v_pk_mul_f32 {v(own+i,2)}, {v(own+i,2)}, v[102:103]")
                lg.wait(tk[2*q+1])
                for i in range(8*q, 8*q+8, 2): I(f"v_pk_fma_f32 {v(own+i,2)}, {v(PR+i,2)}, v[104:105], {v(own+i,2)}")
                for i in range(4): I(f"v_cvt_pk_bf16_f32 v{snd+4*q+i}, v{own+8*q+2*i}, v{own+8*q+2*i+1}")
                I(f"buffer_store_dwordx4 {v(snd+4*q,4)}, v{VL16}, s[{RWS}:{RWS+3}], s54 offen offset:{1024*q}{self.st}"); self.tctx = vm.issue()
            if not g: I(f"s_branch {lj}")
        a.L(lj)
        I("s_setprio 0")
        self.stamp(4)
        def cold():
            a.L(LTRANS)
            self.restore(svt)
            loadq(VQ); I("s_waitcnt lgkmcnt(0)")
            I(f"v_xor_b32 v{VK}, 0x4000, v{VK}")
            R = mk_reads(); head(R, vm4, post=[lambda: mask_body(1, 96)])
            mid(R, "k", [op(f"v_xor_b32 v{VK}, 0x8000, v{VK}")], mb=m2(0, -1), trans=True)
            I(f"s_branch {LP2B}")
            for (lo, lb, body) in ool:
                a.L(lo); body(); I(f"s_branch {lb}")
            for (lr, lb, sb, other) in rare:
                a.L(lr)
                I("s_nop 15")
                rowmax(sb, TMP)
                I(f"v_max_f32 v{TMP}, 0, v{TMP}"); I(f"v_exp_f32 v{TMP+1}, -v{TMP}")
                for r in range(16): I(f"v_sub_f32 v{NM+r}, v{NM+r}, v{TMP}")
                for r in range(16): I(f"v_sub_f32 v{S[sb]+r}, v{S[sb]+r}, v{TMP}")
                if other:
                    for r in range(16): I(f"v_sub_f32 v{S[1-sb]+r}, v{S[1-sb]+r}, v{TMP}")
                for r in range(64): I(f"v_mul_f32 v{O+r}, v{O+r}, v{TMP+1}")
                I(f"v_mul_f32 v{LRUN}, v{LRUN}, v{TMP+1}")
                for c, _ in sm_ops(sb): c()
                I("s_nop 1"); I(f"s_branch {lb}")
        self.attn_rare = cold

    HB = 65536; HC = 4416; XB = 136192; YB = 148480
    SC, SJ, SB, SCH, SHB_, SWO, SCX = 34, 35, 36, 37, 38, 39, 40
    WS_ = [16, 24, 32, 40, 176, 184, 56, 80, 88, 96, 104, 144, 152, 160]
    CS_ = [168, 112, 120, 128, 136, 64, 72]
    NL = 4
    def tail_setup(self):
        I = self.I; L = []; E = lambda t: L.append((lambda: I(t), 4))
        SC, SJ, SB, SCH, SHB_, SWO, SCX = self.SC, self.SJ, self.SB, self.SCH, self.SHB_, self.SWO, self.SCX
        self.wtok = {}; self.wslot = dict(enumerate(self.WS_))
        E(f"s_lshr_b32 s{SC}, s{SW}, 2"); E(f"s_and_b32 s{SJ}, s{SW}, 3")
        E(f"s_lshl_b32 s{SCH}, s{SF}, 1"); E(f"s_add_u32 s{SCH}, s{SCH}, s{SC}"); E(f"s_lshl_b32 s{SCH}, s{SCH}, 12")
        E(f"s_lshl_b32 s60, s{SJ}, 10"); E("v_add_u32 v50, s60, v6"); E("v_subrev_u32 v51, 16, v50")
        E(f"s_lshr_b32 s60, s{SCH}, 8"); E(f"s_add_u32 s60, s60, {KVT_OFF}"); E("v_lshlrev_b32 v52, 9, v50")
        def ld(t):
            def f(): I(t); self.th = self.vm.issue()
            L.append((f, 16))
        ld(f"buffer_load_dwordx4 {v(160,4)}, v51, s[{RB}:{RB+3}], s{SCH} offen")
        ld(f"buffer_load_dwordx4 {v(164,4)}, v50, s[{RB}:{RB+3}], s{SCH} offen")
        ld(f"buffer_load_dwordx4 {v(168,4)}, v52, s[{RWS}:{RWS+3}], s60 offen{self.ld}")
        E(f"s_lshl_b32 s{SWO}, s57, 19"); E(f"s_lshl_b32 s60, s{SW}, 16"); E(f"s_add_u32 s{SWO}, s{SWO}, s60"); E(f"s_add_u32 s{SWO}, s{SWO}, {WOT_OFF}")
        L2 = [(lambda i=i: self.wload(i), 36) for i in range(self.o.get("we", 0))]
        L3 = []; L, Lx = L3, L
        E = lambda t: L3.append((lambda: I(t), 4))
        E(f"s_mul_i32 s{SB}, s{SC}, 6144"); E(f"s_add_u32 s{SB}, s{SB}, {self.XB}")
        E(f"s_mul_i32 s{SHB_}, s{SC}, {8*self.HC}"); E(f"s_add_u32 s{SHB_}, s{SHB_}, {self.HB}")
        E(f"s_lshl_b32 s{SCX}, s56, 19"); E(f"s_lshl_b32 s60, s{SW}, 15"); E(f"s_add_u32 s{SCX}, s{SCX}, s60"); E(f"s_add_u32 s{SCX}, s{SCX}, {CTX_OFF}")
        return Lx, L2, L3
    def wreg(self, i):
        return self.WS_[i % len(self.WS_)]
    def wload(self, i):
        I = self.I; r = self.wslot[i]
        I(f"s_add_u32 s61, s{self.SWO}, {i*2048}")
        for mt in range(2):
            I(f"buffer_load_dwordx4 {v(r+4*mt,4)}, v6, s[{RWS}:{RWS+3}], s61 offen offset:{mt*1024}{self.ld}"); self.wtok[i] = self.vm.issue()
    def tail_early(self):
        I = self.I; vm = self.vm; lg = self.lg; HC = self.HC
        SJ, SB, SCH, SHB_ = self.SJ, self.SB, self.SCH, self.SHB_
        Ee, Eo, Oe, Oo = 160, 113, 122, 131
        vm.wait(self.th)
        for k in range(7): I(f"v_alignbit_b32 v{Oe+k}, v{Ee+k+1}, v{Ee+k}, 16")
        for k in range(1, 7): I(f"v_alignbit_b32 v{Oo+k}, v{Ee+k+1}, v{Ee+k}, 16")
        for k in range(1, 7): I(f"v_mov_b32 v{Eo+k}, v{Ee+k}")
        I(f"s_add_u32 s60, s{SHB_}, 64"); I("v_add_u32 v51, s60, v50")
        for r in range(8):
            sft = 1 + r; k = sft >> 1
            base = ((Oe, Oo) if sft & 1 else (Ee, Eo))[k & 1]
            I(f"ds_write_b128 v51, {v(base+k,4)} offset:{r*HC}"); lg.issue()
        I("v_and_b32 v51, 3, v0"); I("v_mul_u32_u24 v52, 1536, v51"); I("v_lshrrev_b32 v53, 6, v50"); I("v_lshl_add_u32 v52, v53, 4, v52")
        I(f"s_add_u32 s60, s{SB}, 512"); I("v_add_u32 v52, s60, v52")
        I(f"ds_write_b128 v52, {v(168,4)}"); lg.issue()
        for r in range(2): I(f"v_mov_b64 {v(172+2*r,2)}, 0")
        I("v_bfe_u32 v52, v0, 2, 3"); I(f"v_mul_u32_u24 v52, {HC}, v52"); I("v_lshl_add_u32 v52, v51, 4, v52"); I(f"v_add_u32 v52, s{SHB_}, v52")
        I(f"ds_write_b128 v52, {v(172,4)}"); lg.issue()
        I(f"s_mul_i32 s60, s{SJ}, 1536"); I(f"s_add_u32 s60, s60, s{SB}"); I("v_lshl_add_u32 v52, v0, 3, s60")
        I(f"ds_write_b64 v52, {v(172,2)}"); lg.issue()
    def tailp(self):
        a = self.a; I = self.I; vm = self.vm; lg = self.lg
        HB, HC, YB = self.HB, self.HC, self.YB
        SC, SJ, SB, SCH, SHB_, SWO, SCX = self.SC, self.SJ, self.SB, self.SCH, self.SHB_, self.SWO, self.SCX
        ACC = 192; FRS = [224, 240, 64]; RD_ = 224
        VL16, VA, VB, T, VP, VPA, VO, GR, VLW, XR = 6, 4, 5, 12, 7, 8, 9, 10, 11, 48
        OACC = 192
        NW, NCX, NL = len(self.WS_), len(self.CS_), self.o.get("nl", 0)
        wtok = self.wtok; ctok = {}; wslot = self.wslot; cslot = dict(enumerate(self.CS_))
        I(f"s_lshr_b32 s53, s56, 1"); I("s_lshl_b32 s53, s53, 10"); I(f"s_lshl_b32 s44, s{SW}, 7"); I("s_add_u32 s53, s53, s44"); I(f"s_add_u32 s53, s53, {FC_OFF}")
        I(f"v_and_b32 v{VPA}, 3, v0"); I(f"v_lshlrev_b32 v{VPA}, 2, v{VPA}")
        P0 = self.o.get("p0", 0)
        tc0 = self.poll_issue(VP, VPA, "s53") if P0 else self.tctx
        self.tail_early()
        PUBN = self.o.get("pubn", 1)
        I(f"s_lshr_b32 s45, s{SHEAD}, 2"); I("s_lshl_b32 s45, s45, 7"); I(f"s_and_b32 s44, s{SHEAD}, 3"); I("s_lshl_b32 s44, s44, 2"); I("s_add_u32 s45, s45, s44")
        I(f"s_sub_u32 s44, 15, s{SIDX}"); I("s_lshl_b32 s44, s44, 10"); I("s_add_u32 s46, s44, s45"); I(f"s_add_u32 s46, s46, {FC_OFF}")
        I(f"s_lshl_b32 s44, s{SIDX}, 10"); I("s_add_u32 s47, s44, s45"); I(f"s_add_u32 s47, s47, {FC_OFF}")
        self.srd(RC, "out", 2*MB); self.srd(RD, "q", 2*MB)
        I(f"s_lshl_b32 s44, s{SF}, 2"); I(f"s_load_dword s55, s[{P['ssmD']}:{P['ssmD']+1}], s44")
        I(f"v_and_b32 v{T}, 31, v0"); I(f"v_lshrrev_b32 v{T+1}, 5, v0")
        I(f"v_and_b32 v{T+2}, 7, v0"); I(f"v_mul_u32_u24 v{VA}, {HC}, v{T+2}")
        I(f"v_bfe_u32 v{T+2}, v0, 3, 2"); I(f"v_sub_u32 v{T+2}, v{T+2}, v{T+1}"); I(f"v_lshl_add_u32 v{VA}, v{T+2}, 4, v{VA}")
        I(f"s_lshl_b32 s43, s{SJ}, 9"); I(f"s_add_u32 s43, s43, s{SHB_}"); I("s_add_u32 s43, s43, 32"); I(f"v_add_u32 v{VA}, s43, v{VA}")
        I(f"s_lshl_b32 s43, s{SJ}, 7"); I(f"s_sub_u32 s43, s{SB}, s43"); I("s_add_u32 s43, s43, 400")
        I(f"v_lshl_add_u32 v{VB}, v{T}, 4, s43"); I(f"v_mul_u32_u24 v{T+2}, 1536, v{T+1}"); I(f"v_add_u32 v{VB}, v{VB}, v{T+2}")
        I(f"s_lshl_b32 s51, s{SW}, 13"); I(f"v_add_u32 v{VLW}, s51, v{VL16}")
        I("s_waitcnt lgkmcnt(0)"); lg.mark_all_done(); self.barrier()
        self.stamp(5)
        def cload(i):
            r = cslot[i]
            I(f"s_add_u32 s62, s{SCX}, {(i//4)*4096}"); I("s_add_u32 s63, s62, 0x40000")
            for st in range(2):
                I(f"buffer_load_dwordx4 {v(r+4*st,4)}, v{VL16}, s[{RWS}:{RWS+3}], s{62+st} offen offset:{(i%4)*1024}{self.ld}"); ctok[i] = vm.issue()
        ltok = {}
        def lstage(j):
            I(f"s_add_u32 m0, s51, {j*2048}"); I(f"s_add_u32 s61, s{SWO}, {(NW+j)*2048}")
            for mt in range(2):
                I(f"buffer_load_dwordx4 v{VL16}, s[{RWS}:{RWS+3}], s61 offen offset:{mt*1024}{self.ld} lds"); ltok[j] = vm.issue()
        def early(lo, hi, level):
            le = a.label("NE")
            I(f"s_cmp_lg_u32 s50, {level}"); I(f"s_cbranch_scc1 {le}")
            sv = self.save()
            for i in range(lo, hi): cload(i)
            self.restore(sv); I(f"s_mov_b32 s50, {level+1}")
            a.L(le)
        def seen():
            I(f"v_and_b32 v{VP}, 1, v{VP}"); I(f"v_cmp_ne_u32 vcc, 1, v{VP}"); I("s_cmp_eq_u64 vcc, 0"); I("s_cselect_b32 s52, 1, 0"); I("s_max_u32 s50, s50, s52")
        I("s_mov_b32 s50, 0")
        wl = [lambda i=i: self.wload(i) for i in range(NW) if i not in wtok] + [lambda j=j: lstage(j) for j in range(NL)]
        steps = [(dd, ks) for dd in range(8) for ks in range(2)]
        toks = {}
        def reads(n):
            dd, ks = steps[n]; b = FRS[n % 3]
            def r(k, reg, addr, off):
                def f():
                    I(f"ds_read_b128 {v(reg,4)}, v{addr} offset:{off}"); toks[(n, k)] = lg.issue()
                return f
            return [r(0, b, VA, 64*dd + 32*(1-ks)), r(1, b+4, VB, ks*3072 + (7-dd)*16),
                    r(2, b+8, VB, ks*3072 + (7-dd)*16 + 512), r(3, b+12, VA, 64*dd + 32*(1-ks) + 2048)]
        for n in range(2):
            for f in reads(n): f()
        for n in range(16):
            b = FRS[n % 3]; L = reads(n+2) if n + 2 < 16 else []
            c0 = "0" if n == 0 else v(ACC,16); c1 = "0" if n == 0 else v(ACC+16,16)
            lg.wait(toks[(n,1)]); I(f"{MFMA} {v(ACC,16)}, {v(b,4)}, {v(b+4,4)}, {c0}")
            for f in L[0:2]: f()
            lg.wait(toks[(n,2)]); I(f"{MFMA} {v(ACC+16,16)}, {v(b,4)}, {v(b+8,4)}, {c1}")
            for f in L[2:3]: f()
            lg.wait(toks[(n,3)]); I(f"{MFMA} {v(ACC+16,16)}, {v(b+12,4)}, {v(b+4,4)}, {v(ACC+16,16)}")
            for f in L[3:4]: f()
            if n == PUBN:
                vm.wait(tc0); self.barrier(); self.publish(46); self.publish(47)
                if P0: seen()
            if n >= PUBN and n < 14:
                for _ in range(-(-len(wl) // (14 - n))): wl.pop(0)()
            if n == self.o.get("p1", 12): tc1 = self.poll_issue(VP, VPA, "s53")
            if n == 14 and P0: early(0, NCX - 2, 1)
        assert not wl
        I(f"s_add_u32 s43, s51, {HB}"); I(f"v_add_u32 v{T+2}, s43, v{VL16}")
        self.barrier()
        for i in range(8):
            I(f"ds_write_b128 v{T+2}, {v(ACC+4*i,4)} offset:{1024*i}"); lg.issue()
        I(f"s_lshl_b32 s43, s{SC}, 15"); I(f"s_lshl_b32 s44, s{SJ}, 11"); I("s_add_u32 s43, s43, s44"); I(f"s_add_u32 s43, s43, {HB}"); I(f"v_add_u32 v{T+2}, s43, v{VL16}")
        I(f"s_and_b32 s43, s{SJ}, 1"); I("s_mul_i32 s44, s43, 3072"); I(f"s_lshr_b32 s45, s{SJ}, 1"); I("s_lshl_b32 s41, s45, 9")
        I("s_add_u32 s44, s44, s41"); I(f"s_add_u32 s44, s44, s{SB}"); I("s_add_u32 s44, s44, 520")
        I(f"v_lshl_add_u32 v{T+3}, v{T}, 4, s44"); I(f"v_lshlrev_b32 v{VA}, 3, v{T+1}"); I(f"v_sub_u32 v{T+3}, v{T+3}, v{VA}")
        I(f"v_lshlrev_b32 v{VB}, 6, v{T}"); I(f"v_lshl_add_u32 v{VB}, v{T+1}, 4, v{VB}")
        I("s_lshl_b32 s45, s45, 11"); I("s_lshl_b32 s43, s43, 5"); I("s_add_u32 s45, s45, s43"); I(f"s_lshl_b32 s43, s{SC}, 12"); I("s_add_u32 s45, s45, s43")
        I(f"s_add_u32 s45, s45, {YB}"); I(f"v_add_u32 v{VB}, s45, v{VB}")
        I("s_lshl_b32 s43, s55, 16"); I("s_and_b32 s44, s55, 0xffff0000"); I(f"s_cmp_eq_u32 s{SC}, 0"); I("s_cselect_b32 s55, s43, s44")
        lg.wait(lg.issued); self.barrier()
        self.stamp(12)
        for p in range(4):
            for gq in range(2):
                I(f"ds_read_b128 {v(RD_+8*p+4*gq,4)}, v{T+2} offset:{8192*p+1024*gq}"); lg.issue()
        for gq in range(2):
            I(f"ds_read_b64 {v(ACC+2*gq,2)}, v{T+3} offset:{1536*gq}"); lg.issue()
        lk = a.label("SK"); I("s_cmp_lg_u32 s50, 0"); I(f"s_cbranch_scc1 {lk}")
        sv = self.save(); vm.wait(tc1); seen(); self.restore(sv); early(0, NCX - 2, 1)
        a.L(lk)
        early(NCX - 2, NCX, 2)
        lg.wait(lg.issued)
        for i in range(0, 8, 2):
            I(f"v_pk_add_f32 {v(RD_+i,2)}, {v(RD_+i,2)}, {v(RD_+8+i,2)}"); I(f"v_pk_add_f32 {v(RD_+16+i,2)}, {v(RD_+16+i,2)}, {v(RD_+24+i,2)}")
        for i in range(0, 8, 2): I(f"v_pk_add_f32 {v(RD_+i,2)}, {v(RD_+i,2)}, {v(RD_+16+i,2)}")
        for gq in range(2):
            for r in range(4):
                srcr = ACC + 2*gq + (1 - (r >> 1))
                I(f"v_lshlrev_b32 v{ACC+8}, 16, v{srcr}" if r & 1 else f"v_and_b32 v{ACC+8}, 0xffff0000, v{srcr}")
                I(f"v_fma_f32 v{RD_+4*gq+r}, v{ACC+8}, s55, v{RD_+4*gq+r}")
        for i in range(4): I(f"v_cvt_pk_bf16_f32 v{ACC+12+i}, v{RD_+2*i}, v{RD_+2*i+1}")
        I(f"v_permlane32_swap_b32 v{ACC+12}, v{ACC+14}"); I(f"v_permlane32_swap_b32 v{ACC+13}, v{ACC+15}")
        I(f"ds_write_b128 v{VB}, {v(ACC+12,4)}"); lg.issue()
        lg.wait(lg.issued); self.barrier()
        ly = a.label("NY")
        I(f"s_cmp_lg_u32 s{SW}, 0"); I(f"s_cbranch_scc1 {ly}")
        I(f"v_add_u32 v{T}, {YB}, v{VL16}")
        for i in range(8): I(f"ds_read_b128 {v(RD_+4*i,4)}, v{T} offset:{1024*i}")
        I(f"s_lshl_b32 s44, s{SF}, 13"); I(f"s_add_u32 s44, s44, {YT_OFF}"); I("s_add_u32 s45, s44, 4096")
        I("s_waitcnt lgkmcnt(0)")
        for i in range(8): I(f"buffer_store_dwordx4 {v(RD_+4*i,4)}, v{VL16}, s[{RWS}:{RWS+3}], s{44+(i>>2)} offen offset:{1024*(i&3)}{self.st}")
        a.L(ly)
        ll = a.label("NL")
        I("s_cmp_eq_u32 s50, 3"); I(f"s_cbranch_scc1 {ll}")
        self.poll_check(VP, VPA, "s53", 1)
        for i in range(NCX): cload(i)
        a.L(ll)
        self.stamp(6)
        YT = self.XB
        lrd = {}; ypub = False; ymark = vm.issued; free = []; fresh = []; nw = NW; nw2 = NW + NL; nc = NCX
        for i in range(32):
            if i % 4 == 0 and self.o.get("ostamp"): self.stamp(17 + i // 4)
            if i == 14:
                I(f"s_lshl_b32 s53, s57, 7"); I(f"s_lshl_b32 s42, s{SW}, 4"); I("s_add_u32 s53, s53, s42"); I(f"s_add_u32 s53, s53, {FY_OFF}")
                tf = self.poll_issue(VP, VPA, "s53")
            if i == 24:
                vm.wait(tf); self.poll_check(VP, VPA, "s53", 1)
                I(f"v_lshrrev_b32 v{T}, 3, v0"); I(f"v_and_b32 v{T+1}, 7, v0"); I(f"v_lshlrev_b32 v{T+1}, 4, v{T+1}")
                I(f"v_lshl_add_u32 v{T}, v{T}, 12, v{T+1}")
                I(f"s_add_u32 m0, s{SWK}, {YT}")
                I(f"s_lshl_b32 s44, s57, 18"); I(f"s_lshl_b32 s45, s{SW}, 15"); I("s_add_u32 s44, s44, s45")
                I(f"s_lshl_b32 s45, s56, 7"); I("s_add_u32 s44, s44, s45"); I(f"s_add_u32 s44, s44, {YT_OFF}")
                I(f"buffer_load_dwordx4 v{T}, s[{RWS}:{RWS+3}], s44 offen{self.ld} lds"); vm.issue()
                I(f"v_and_b32 v{T+1}, 15, v0"); I(f"s_lshr_b32 s48, s{SW}, 1"); I("s_lshl_b32 s48, s48, 4")
                I(f"s_lshl_b32 s45, s56, 6"); I("s_add_u32 s45, s45, s48"); I(f"v_add_u32 v{T+1}, s45, v{T+1}")
                I(f"v_lshlrev_b32 v{T+2}, 2, v{T+1}"); I(f"s_mov_b32 s45, {G_OFF}")
                I(f"buffer_load_dword v{GR}, v{T+2}, s[{RWS}:{RWS+3}], s45 offen{self.ld}"); vm.issue()
                I(f"v_lshrrev_b32 v{T+2}, 4, v0"); I(f"v_lshlrev_b32 v{T+2}, 4, v{T+2}"); I(f"v_lshl_add_u32 v{VO}, v{T+1}, 10, v{T+2}")
                I(f"s_and_b32 s49, s{SW}, 1"); I("s_lshl_b32 s49, s49, 6"); I(f"s_lshl_b32 s45, s57, 7"); I("s_add_u32 s49, s49, s45")
                I(f"buffer_load_dwordx4 {v(XR,4)}, v{VO}, s[{RD}:{RD+3}], s49 offen"); vm.issue()
            vm.wait(max(ctok[i], wtok.get(i, 0)))
            if i in lrd: lg.wait(lrd[i])
            if not ypub and vm.done > ymark:
                ypub = True
                I(f"s_lshl_b32 s44, s{SF}, 2"); I(f"s_add_u32 s44, s44, {FY_OFF}"); self.publish(44, 3)
            for mt in range(2):
                for st in range(2):
                    d = v(OACC + 16*(2*mt+st), 16)
                    I(f"{MFMA} {d}, {v(wslot[i]+4*mt,4)}, {v(cslot[i]+4*st,4)}, {'0' if i == 0 else d}")
            lagged, fresh = fresh, [wslot[i], cslot[i]]
            free += fresh
            while free:
                if nw < NW + NL and nw - i <= 3:
                    j = nw - NW; assert vm.done >= ltok[j]
                    r = free.pop(0); wslot[nw] = r
                    I("s_nop 3")
                    for mt in range(2):
                        I(f"ds_read_b128 {v(r+4*mt,4)}, v{VLW} offset:{j*2048+mt*1024}"); lrd[nw] = lg.issue()
                    nw += 1
                elif nc < 32 and (nc <= nw2 or nw2 >= 32):
                    cslot[nc] = free.pop(0); cload(nc); nc += 1
                elif nw2 < 32:
                    wslot[nw2] = free.pop(0); self.wload(nw2); nw2 += 1
                else: break
        self.stamp(7)
        I(f"v_and_b32 v{T}, 31, v0"); I(f"v_lshrrev_b32 v{T+1}, 5, v0"); I(f"v_and_b32 v{T+2}, 15, v0")
        I(f"v_lshlrev_b32 v{T+1}, 1, v{T+1}")
        I(f"v_xor_b32 v{T+1}, v{T+1}, v{T+2}"); I(f"v_lshlrev_b32 v{T+1}, 4, v{T+1}"); I(f"v_lshl_add_u32 v{T}, v{T}, 8, v{T+1}")
        I(f"v_add_u32 v{T}, s51, v{T}")
        for mt in range(2):
            for gq in range(4):
                I(f"v_xor_b32 v{T+1}, {(4*gq+mt)*16}, v{T}"); I(f"v_add_u32 v{T+3}, 0x10000, v{T+1}")
                for st in range(2):
                    I(f"ds_write_b128 v{T+1+2*st}, {v(OACC+16*(2*mt+st)+4*gq,4)}"); lg.issue()
        I(f"v_lshrrev_b32 v{T}, 4, v0"); I(f"s_and_b32 s41, s{SW}, 1"); I("s_lshl_b32 s42, s41, 3")
        I(f"v_lshl_add_u32 v{T+1}, v{T}, 1, s42"); I(f"v_xor_b32 v{T+1}, v{T+1}, v{T+2}"); I(f"v_lshlrev_b32 v{T+1}, 4, v{T+1}")
        I("s_and_b32 s43, s48, 16"); I(f"v_add_u32 v{T+3}, s43, v{T+2}"); I(f"v_lshl_add_u32 v24, v{T+3}, 8, v{T+1}")
        I("s_lshr_b32 s43, s48, 5"); I("s_lshl_b32 s43, s43, 16"); I("v_add_u32 v24, s43, v24"); I("v_xor_b32 v25, 16, v24")
        I("s_lshl_b32 s42, s41, 5"); I(f"v_lshl_add_u32 v{T}, v{T}, 3, s42"); I(f"v_bfe_u32 v{T+1}, v0, 2, 2")
        I(f"v_add_u32 v{T}, v{T}, v{T+1}"); I(f"v_lshlrev_b32 v{T}, 7, v{T}"); I(f"v_and_b32 v{T+1}, 3, v0")
        I(f"v_lshl_add_u32 v{T}, v{T+1}, 3, v{T}"); I("s_lshl_b32 s42, s48, 1"); I(f"s_add_u32 s42, s42, {YT}"); I(f"v_add_u32 v28, s42, v{T}")
        self.sync_all()
        CX = 128; tk = []
        I(f"ds_read_b64_tr_b16 {v(100,2)}, v28"); lg.issue()
        I(f"ds_read_b64_tr_b16 {v(102,2)}, v28 offset:512"); ty2 = lg.issue()
        for p in range(8):
            for hh in range(2):
                I(f"ds_read_b128 {v(CX+8*p+4*hh,4)}, v{24+hh} offset:{8192*p}"); lg.issue()
            tk.append(lg.issued)
            if p == 5:
                lg.wait(ty2)
                for e in range(8):
                    if e & 1: I(f"v_and_b32 v104, 0xffff0000, v{XR+(e>>1)}"); I(f"v_and_b32 v105, 0xffff0000, v{100+(e>>1)}")
                    else: I(f"v_lshlrev_b32 v104, 16, v{XR+(e>>1)}"); I(f"v_lshlrev_b32 v105, 16, v{100+(e>>1)}")
                    I(f"v_mul_f32 v{112+e}, v104, v105"); I(f"v_mul_f32 v{112+e}, v{112+e}, v{GR}")
                I(f"v_sub_f32 v{GR}, 1.0, v{GR}")
        for p in range(1, 8):
            lg.wait(tk[p])
            for e in range(0, 8, 2): I(f"v_pk_add_f32 {v(CX+e,2)}, {v(CX+e,2)}, {v(CX+8*p+e,2)}")
        for e in range(8): I(f"v_fmac_f32 v{112+e}, v{CX+4*(e&1)+(e>>1)}, v{GR}")
        for e in range(4): I(f"v_cvt_pk_bf16_f32 v{108+e}, v{112+2*e}, v{112+2*e+1}")
        I(f"buffer_store_dwordx4 {v(108,4)}, v{VO}, s[{RC}:{RC+3}], s49 offen{' sc1' if not self.o.get('outpl') else ' nt' if self.o.get('outnt') else ''}"); vm.issue()
        self.stamp(16)
        if self.o.get("echo"):
            lp = a.label("EC")
            I("s_sub_u32 s100, s100, s96")
            if self.o.get("cyc"): I("s_lshr_b32 s100, s100, 4")
            I("s_memrealtime s[96:97]"); I("s_waitcnt lgkmcnt(0)")
            a.L(lp)
            I("s_memrealtime s[98:99]"); I("s_waitcnt lgkmcnt(0)"); I("s_sub_u32 s98, s98, s96"); I("s_cmp_lt_u32 s98, s100"); I(f"s_cbranch_scc1 {lp}")
        if self.o.get("dbgout") is not None:
            l = a.label("DB")
            I(f"s_cmp_lg_u32 s2, {self.o['dbgout']}"); I(f"s_cbranch_scc1 {l}"); I(f"s_cmp_lg_u32 s{SW}, 0"); I(f"s_cbranch_scc1 {l}")
            I("s_waitcnt vmcnt(0)")
            order = [0, 1, 2, 3, 8, 10, 11, 4, 5, 12, 6, 7, 16]
            I("v_mov_b32 v20, 0")
            for j, i in enumerate(order):
                I(f"s_mov_b32 s44, {4*i}"); I(f"v_writelane_b32 v20, s44, {j}")
            I(f"s_lshl_b32 s44, s2, 11"); I(f"s_add_u32 s44, s44, {STAMP_OFF}")
            I(f"buffer_load_dword v21, v20, s[{RWS}:{RWS+3}], s44 offen sc1"); I("s_waitcnt vmcnt(0)")
            I("v_readfirstlane_b32 s45, v21"); I("v_subrev_u32 v21, s45, v21")
            self.srd(RDBG, "dbg", 64); I("v_lshlrev_b32 v22, 2, v0")
            I(f"buffer_store_dword v21, v22, s[{RDBG}:{RDBG+3}], 0 offen")
            a.L(l)

def build(opts):
    g = G(opts); k = NAME + "_kernel"
    g.begin(k); g.proj(); g.attn(); g.tailp(); g.end(); g.attn_rare(); g.a.L("CODE_END"); g.a.I("s_endpgm")
    n = g.a.fix_hazards()
    txt = "; @launch grid=(256,1,1) block=(512,1,1) lds=163840\n"
    txt += '.amdgcn_target "amdgcn-amd-amdhsa--gfx950"\n.text\n' + g.a.text()
    txt += f""".section .rodata,"a"
.p2align 6
.amdhsa_kernel {k}
  .amdhsa_next_free_vgpr 256
  .amdhsa_next_free_sgpr 102
  .amdhsa_accum_offset 256
  .amdhsa_group_segment_fixed_size 0
  .amdhsa_kernarg_size 128
  .amdhsa_user_sgpr_count 2
  .amdhsa_user_sgpr_kernarg_segment_ptr 1
  .amdhsa_system_sgpr_workgroup_id_x 1
.end_amdhsa_kernel
"""
    print(f"instructions {sum(1 for it in g.a.items if it[0] == 'i')}, nops inserted {n}", file=sys.stderr)
    return txt

if __name__ == "__main__":
    opts = {}
    for x in sys.argv[2:]:
        if "=" in x: k_, v_ = x.split("="); opts[k_] = int(v_)
        else: opts[x] = True
    open(sys.argv[1], "w").write(build(opts))
```

```python
import sys, math, struct
sys.path.insert(0, "gen")
from asmlib import *

NAME = "gated_mix__ssm_conv_h3__compressed_kv_cla__prompt"
MB = 1 << 20
KV_OFF, Q_OFF, CTX_OFF, KVT_OFF, YT_OFF, G_OFF = 0, 32*MB, 48*MB, 64*MB, 66*MB, 68*MB
WOT_OFF = 32*MB
FLG_OFF = 68*MB + 65536
FK_OFF, FY_OFF, FC_OFF = FLG_OFF, FLG_OFF + 4096, FLG_OFF + 8192
STAMP_OFF = 69*MB
WS_SIZE = 70*MB
P = dict(q=64, k=66, v=68, shift=70, ssmk=72, ssmD=74, bx=76, ckv=78, wq=80, wuk=82, wuv=84, wo=86, gate=88, out=90, dbg=92, ws=94)
SW, SHEAD, SIDX, SWK, SF = 3, 4, 5, 6, 7
RA, RB, RC, RWS, RD, RE, RT, RDBG = 8, 12, 16, 20, 24, 28, 56, 60
MFMA = "v_mfma_f32_32x32x16_bf16"
LOG2E = 1.4426950408889634
F_KV, F_CA, F_CB, F_Y = 1, 2, 4, 8
def f2u(x): return "0x%08x" % struct.unpack("<I", struct.pack("<f", x))[0]
def rep4(b): return b * 0x01010101

class G:
    def __init__(self, opts):
        self.a = Asm(); self.o = opts
        self.vm = Cnt(self.a, "vmcnt", 63); self.lg = Cnt(self.a, "lgkmcnt", 15)
        self.st = "" if opts.get("plainst") else (" sc1 nt" if opts.get("ntst") else " sc1"); self.ld = "" if opts.get("plainld") else " sc1"
    def I(self, t): self.a.I(t)
    def srd(self, r, ptr, nbytes):
        I = self.I
        I(f"s_mov_b32 s{r}, s{P[ptr]}"); I(f"s_mov_b32 s{r+1}, s{P[ptr]+1}")
        I(f"s_mov_b32 s{r+2}, {nbytes}"); I(f"s_mov_b32 s{r+3}, 0x00020000")
    def save(self): return (self.vm.issued, self.vm.done, self.lg.issued, self.lg.done)
    def restore(self, s_): self.vm.issued, self.vm.done, self.lg.issued, self.lg.done = s_
    def stream(self, mf, fills):
        n = len(mf); slots = [[] for _ in range(n + 1)]
        for (s0, e0, cl) in fills:
            m = e0 - s0
            for j, c in enumerate(cl): slots[s0 + 1 + (j * m) // len(cl)].append(c)
        for c in slots[0]: c()
        for i in range(n):
            mf[i]()
            for c in slots[i+1]: c()
    def stamp(self, i, dyn=None):
        if self.o.get("echo") == i:
            self.I("s_memtime s[100:101]" if self.o.get("cyc") else "s_memrealtime s[100:101]"); self.I("s_waitcnt lgkmcnt(0)")
        if not self.o.get("stamp"): return
        I = self.I
        I("s_memrealtime s[96:97]"); I("s_memtime s[100:101]")
        I("s_lshl_b32 s98, s2, 3"); I(f"s_add_u32 s98, s98, s{SW}"); I("s_lshl_b32 s98, s98, 8")
        I(f"s_add_u32 s98, s98, {STAMP_OFF + 4*i}")
        if dyn is not None:
            I(f"s_lshl_b32 s99, s{dyn}, 4"); I("s_add_u32 s98, s98, s99")
        I("s_waitcnt lgkmcnt(0)")
        I("v_mov_b32 v2, s96"); I("v_mov_b32 v3, 0")
        I(f"buffer_store_dword v2, v3, s[{RWS}:{RWS+3}], s98 offen")
        I("v_mov_b32 v2, s100")
        I(f"buffer_store_dword v2, v3, s[{RWS}:{RWS+3}], s98 offen offset:128")
    OOB = 0x40000000
    def publish(self, soff, val=1, srd=RWS, byte=False, idx=None):
        I = self.I
        self.oob_sel()
        if idx is not None: I(f"s_cmp_eq_u32 s{SIDX}, {idx}"); I(f"s_cselect_b32 s99, s99, {self.OOB}")
        I(f"v_mov_b32 v2, {val}"); I("v_mov_b32 v3, s99")
        I(f"buffer_store_{'byte' if byte else 'dword'} v2, v3, s[{srd}:{srd+3}], s{soff} offen sc1"); self.vm.issue()
    def oob_sel(self):
        self.I(f"s_cmp_eq_u32 s{SW}, 0"); self.I(f"s_cselect_b32 s99, 0, {self.OOB}")
    def poll_issue(self, vd, vaddr, soff, srd=RWS):
        self.I(f"buffer_load_dword v{vd}, v{vaddr}, s[{srd}:{srd+3}], {soff} offen sc1"); return self.vm.issue()
    def poll_check(self, vd, vaddr, soff, want, srd=RWS):
        a = self.a; I = self.I
        l = a.label("PCK"); lp = a.label("POLL")
        I(f"s_mov_b32 s98, {want}"); I("s_mov_b32 s99, 20000")
        a.L(lp)
        I(f"v_and_b32 v{vd}, s98, v{vd}"); I(f"v_cmp_ne_u32 vcc, s98, v{vd}"); I(f"s_cbranch_vccz {l}")
        I("s_sleep 2")
        I(f"buffer_load_dword v{vd}, v{vaddr}, s[{srd}:{srd+3}], {soff} offen sc1")
        I("s_sub_u32 s99, s99, 1"); I("s_cmp_lg_u32 s99, 0"); I("s_waitcnt vmcnt(0)"); I(f"s_cbranch_scc1 {lp}")
        a.L(l)
    def barrier(self): self.I("s_barrier")
    def sync_all(self):
        self.I("s_waitcnt vmcnt(0) lgkmcnt(0)"); self.vm.mark_all_done(); self.lg.mark_all_done(); self.barrier()

    def begin(self, kname):
        a = self.a; I = self.I
        a.T(f".globl {kname}\n.p2align 8\n.type {kname},@function"); a.L(kname)
        self.endl = a.label("END")
        if self.o.get("stamp"): I("s_memrealtime s[30:31]")
        if self.o.get("echo"): I("s_memtime s[96:97]" if self.o.get("cyc") else "s_memrealtime s[96:97]")
        I("s_load_dwordx16 s[64:79], s[0:1], 0"); I("s_load_dwordx16 s[80:95], s[0:1], 64")
        I("s_cmp_ge_u32 s2, 256"); I(f"s_cbranch_scc1 {self.endl}")
        I("v_lshrrev_b32 v1, 6, v0"); I("v_and_b32 v0, 63, v0"); I(f"v_readfirstlane_b32 s{SW}, v1")
        I("s_and_b32 s7, s2, 7"); I("s_lshl_b32 s7, s7, 2")
        I(f"s_lshr_b32 s{SIDX}, s2, 3"); I(f"s_lshr_b32 s{SHEAD}, s{SIDX}, 3"); I(f"s_add_u32 s{SHEAD}, s{SHEAD}, s7")
        I(f"s_and_b32 s{SIDX}, s{SIDX}, 7"); I(f"s_lshl_b32 s{SWK}, s{SW}, 10")
        I(f"s_lshl_b32 s{SF}, s{SHEAD}, 3"); I(f"s_add_u32 s{SF}, s{SF}, s{SIDX}")
    def end(self):
        self.a.L(self.endl); self.I("s_endpgm")

    def proj(self):
        a = self.a; I = self.I; vm = self.vm; lg = self.lg
        QA_LDS = 65536
        ACC = {"K": 64, "V": 128, "Q": 64}; KP = 192
        FX = [16, 40]; FW = [24, 48]
        VXA = 4; VWA = 8; VOX, VOW = 10, 11; VST = 12; VXH = 224; T = 232
        NB = self.o.get("nb2", 0)
        ST = [("KV", c) for c in range(NB)] + [("K", c) for c in range(NB, 8)] + [("V", c) for c in range(7, NB - 1, -1)] + [("Q", c) for c in range(8)]
        NS = len(ST); TK = 7; TV = NS - 9; TQ = NS - 8
        I("v_lshrrev_b32 v13, 3, v0"); I(f"s_lshl_b32 s40, s{SW}, 3"); I("v_add_u32 v13, s40, v13"); I("v_lshlrev_b32 v13, 10, v13")
        I("v_lshrrev_b32 v14, 4, v0"); I(f"s_and_b32 s40, s{SW}, 1"); I("s_lshl_b32 s40, s40, 2"); I("v_add_u32 v15, s40, v14")
        I("v_and_b32 v3, 7, v0"); I("v_xor_b32 v15, v15, v3"); I(f"v_lshl_add_u32 v{VOX}, v15, 4, v13")
        I(f"s_lshl_b32 s40, s{SW}, 2"); I("v_add_u32 v13, s40, v14"); I("v_lshlrev_b32 v13, 13, v13")
        I("v_lshlrev_b32 v15, 2, v14"); I("v_and_b32 v3, 15, v0"); I("v_xor_b32 v15, v15, v3")
        I("v_lshl_add_u32 v13, v15, 4, v13"); I(f"s_lshl_b32 s40, s{SHEAD}, 8"); I(f"v_add_u32 v{VOW}, s40, v13")
        I(f"v_lshlrev_b32 v{VST}, 4, v0")
        I(f"s_lshl_b32 s44, s{SIDX}, 18")
        for i in range(1, 4): I(f"s_add_u32 s{44+i}, s44, {65536*i}")
        ROT = self.o.get("rot", 2)
        if ROT == 0: I("s_mov_b32 s33, 0")
        elif ROT == 1: I(f"s_mov_b32 s33, s{SIDX}")
        elif ROT == 2: I(f"s_lshr_b32 s33, s{SHEAD}, 2"); I(f"s_add_u32 s33, s33, s{SIDX}")
        elif ROT == 3: I(f"s_lshr_b32 s33, s{SHEAD}, 2"); I(f"s_add_u32 s33, s33, s{SIDX}"); I(f"s_lshl_b32 s34, s{SHEAD}, 1"); I("s_add_u32 s33, s33, s34")
        elif ROT == 4: I(f"s_lshr_b32 s33, s{SHEAD}, 2")
        I("s_waitcnt lgkmcnt(0)")
        if self.o.get("stamp"): I("s_memrealtime s[28:29]")
        self.srd(RA, "ckv", 2*MB); self.srd(RB, "wuk", 4*MB); self.srd(RC, "wuv", 4*MB)
        def xbase(t):
            k, c = ST[t]
            return (32768, 131072, 0)[((16 + c) if k == "Q" else (15 - c + NB)) % 3]
        units = [(t, m) for t in range(NS) for m in ST[t][0]]
        uidx = {u: i for i, u in enumerate(units)}
        def wbase(t, m): return 65536 + (uidx[(t, m)] % 4)*16384
        items = []
        lastx = {}
        for t in range(NS):
            k, c = ST[t]
            for m in k:
                u = uidx[(t, m)]
                def w(i, t=t, m=m, c=c):
                    if i == 0: I(f"s_add_u32 s34, s33, {c}"); I("s_and_b32 s34, s34, 7"); I("s_lshl_b32 s34, s34, 19")
                    I(f"s_add_u32 m0, s{SWK}, {wbase(t, m) + i*8192}"); I(f"s_add_u32 s41, s34, {i*262144}")
                    r = {"K": RB, "V": RC, "Q": RE}[m]
                    I(f"buffer_load_dwordx4 v{VOW}, s[{r}:{r+3}], s41 offen lds"); dtok[t] = vm.issue()
                items.append((t, units[u-4][0] if u >= 4 else -1, [lambda i=i, w=w: w(i) for i in range(2)]))
            key = ("Q" if k == "Q" else "C", c); prev = lastx.get(xbase(t))
            if prev is None or prev[1] != key:
                def x(i, t=t, k=k, c=c):
                    if i == 0: I(f"s_add_u32 s35, s33, {c}"); I("s_and_b32 s35, s35, 7"); I("s_lshl_b32 s35, s35, 7")
                    I(f"s_add_u32 m0, s{SWK}, {xbase(t) + i*8192}"); I(f"s_add_u32 s41, s{(48 if k == 'Q' else 44)+i}, s35")
                    r = RD if k == "Q" else RA
                    I(f"buffer_load_dwordx4 v{VOX}, s[{r}:{r+3}], s41 offen lds"); dtok[t] = vm.issue()
                items.append((t, prev[0] if prev else -1, [lambda i=i, x=x: x(i) for i in range(4)]))
            lastx[xbase(t)] = (t, key)
        dtok = {}
        def take(done, upto=99):
            out = []
            for it in list(items):
                if it[1] <= done and it[0] <= upto: out += it[2]; items.remove(it)
            return out
        for f in take(-1, 0): f()
        self.srd(RWS, "ws", WS_SIZE); self.srd(RDBG, "dbg", 256)
        self.stamp(31)
        if self.o.get("stamp"):
            I("v_mov_b32 v2, s30"); I("s_sub_u32 s98, s98, 124"); I(f"buffer_store_dword v2, v3, s[{RWS}:{RWS+3}], s98 offen")
            I("v_mov_b32 v2, s28"); I(f"buffer_store_dword v2, v3, s[{RWS}:{RWS+3}], s98 offen offset:120")
        I(f"s_lshl_b32 s48, s{SIDX}, 17"); I("s_add_u32 s49, s48, 65536")
        I(f"s_sub_u32 s50, 15, s{SIDX}"); I("s_lshl_b32 s50, s50, 17"); I("s_add_u32 s51, s50, 65536")
        I(f"s_and_b32 s42, s{SW}, 3"); I("s_lshl_b32 s42, s42, 6"); I(f"s_lshr_b32 s43, s{SW}, 2"); I("s_lshl_b32 s43, s43, 1")
        I("v_and_b32 v13, 31, v0"); I("v_add_u32 v13, s42, v13")
        I("v_lshrrev_b32 v14, 1, v13"); I("v_and_b32 v14, 7, v14"); I("v_lshrrev_b32 v15, 5, v0")
        I("v_xor_b32 v14, v14, v15"); I("v_lshlrev_b32 v14, 4, v14"); I(f"v_lshl_add_u32 v{VXA}, v13, 7, v14")
        for k in range(1, 4): I(f"v_xor_b32 v{VXA+k}, {k<<5}, v{VXA}")
        for k in range(4): I(f"v_add_u32 v{VXH+k}, 0x20000, v{VXA+k}")
        I("v_bfe_u32 v13, v0, 2, 2"); I("v_lshl_add_u32 v14, v15, 3, v13"); I("v_lshlrev_b32 v14, 8, v14")
        I("v_bfe_u32 v15, v0, 4, 1"); I("v_lshl_add_u32 v14, v15, 5, v14")
        I("v_and_b32 v15, 3, v0"); I("v_lshl_add_u32 v14, v15, 3, v14"); I("v_add_u32 v14, 0x10000, v14")
        I("v_xor_b32 v13, s43, v13"); I(f"v_lshl_add_u32 v{VWA}, v13, 6, v14"); I(f"v_xor_b32 v{VWA+1}, 64, v{VWA}")
        I(f"s_lshl_b32 s54, s{SHEAD}, 4"); I(f"s_lshl_b32 s55, s{SIDX}, 1"); I("s_add_u32 s54, s54, s55")
        I(f"s_bfe_u32 s55, s{SW}, 0x10001"); I("s_add_u32 s54, s54, s55"); I("s_lshl_b32 s54, s54, 16")
        I(f"s_and_b32 s55, s{SW}, 1"); I("s_lshl_b32 s55, s55, 14"); I("s_add_u32 s54, s54, s55")
        I("s_lshl_b32 s55, s43, 10"); I("s_add_u32 s52, s54, s55"); I("s_add_u32 s52, s52, 0x8000")
        I("s_lshl_b32 s55, s43, 11"); I("s_add_u32 s54, s54, s55")
        XG = T; GW = T + 4; hl = {}
        def gate_loads():
            L = []
            def E(t): L.append(lambda: I(t))
            def V(t):
                def f(): I(t); hl["t"] = vm.issue()
                L.append(f)
            E(f"s_lshl_b32 s40, s{SHEAD}, 7"); E(f"s_lshl_b32 s39, s{SIDX}, 2"); E("s_add_u32 s40, s40, s39"); E(f"s_add_u32 s40, s40, {FK_OFF}")
            E(f"v_mov_b32 v13, s40")
            E(f"s_lshr_b32 s39, s{SHEAD}, 2"); E("s_lshl_b32 s39, s39, 7"); E(f"s_and_b32 s40, s{SHEAD}, 3"); E("s_lshl_b32 s40, s40, 2"); E("s_add_u32 s39, s39, s40")
            E(f"s_lshl_b32 s40, s{SIDX}, 10"); E("s_add_u32 s40, s40, s39"); E(f"s_add_u32 s40, s40, {FC_OFF}")
            E("v_writelane_b32 v13, s40, 1")
            E(f"s_sub_u32 s40, 15, s{SIDX}"); E("s_lshl_b32 s40, s40, 10"); E("s_add_u32 s40, s40, s39"); E(f"s_add_u32 s40, s40, {FC_OFF}")
            E("v_writelane_b32 v13, s40, 2")
            E(f"s_lshl_b32 s40, s{SF}, 2"); E(f"s_add_u32 s40, s40, {FY_OFF}"); E("v_writelane_b32 v13, s40, 3"); E("v_mov_b32 v14, 0")
            def oo(): self.oob_sel(); I("v_add_u32 v13, s99, v13")
            L.append(oo)
            V(f"buffer_store_dword v14, v13, s[{RWS}:{RWS+3}], 0 offen sc1")
            E("s_lshl_b32 s37, s2, 3"); E(f"s_add_u32 s37, s37, s{SW}"); E("s_lshl_b32 s38, s37, 10")
            L.append(lambda: self.srd(RD, "q", 2*MB)); L.append(lambda: self.srd(RE, "wq", 4*MB)); L.append(lambda: self.srd(RT, "gate", 1024))
            V(f"buffer_load_dwordx4 {v(XG,4)}, v{VST}, s[{RD}:{RD+3}], s38 offen")
            V(f"buffer_load_dwordx4 {v(GW,4)}, v{VST}, s[{RT}:{RT+3}], 0 offen")
            return L
        def gate_ops():
            L = []; E = lambda t: L.append(lambda: I(t)); Z = T + 8
            L.append(lambda: vm.wait(hl["t"]))
            E(f"v_dot2_f32_bf16 v{Z}, v{XG}, v{GW}, 0")
            for i in range(1, 4): E(f"v_dot2_f32_bf16 v{Z}, v{XG+i}, v{GW+i}, v{Z}")
            for m in ("quad_perm:[1,0,3,2] row_mask:0xf", "quad_perm:[2,3,0,1] row_mask:0xf", "row_half_mirror row_mask:0xf", "row_mirror row_mask:0xf",
                      "row_bcast:15 row_mask:0xa", "row_bcast:31 row_mask:0xc"):
                E(f"v_add_f32_dpp v{Z}, v{Z}, v{Z} {m} bank_mask:0xf")
            E(f"v_readlane_b32 s36, v{Z}, 63"); E(f"v_mov_b32 v{Z+1}, {f2u(-LOG2E)}"); E(f"v_mul_f32 v{Z}, s36, v{Z+1}")
            E(f"v_exp_f32 v{Z}, v{Z}"); E(f"v_add_f32 v{Z}, 1.0, v{Z}"); E(f"v_rcp_f32 v{Z}, v{Z}")
            E("s_lshl_b32 s38, s37, 2"); E(f"s_add_u32 s38, s38, {G_OFF}"); E(f"v_mov_b32 v{Z+1}, 0")
            def gs():
                I(f"buffer_store_dword v{Z}, v{Z+1}, s[{RWS}:{RWS+3}], s38 offen{self.st}"); vm.issue()
            L.append(gs)
            return L
        def reads(t, k):
            st = k & 1; toks = {}
            xb = xbase(t); va = VXA if xb < 65536 else VXH
            def rx(mt):
                I(f"ds_read_b128 {v(FX[st]+4*mt,4)}, v{va+k} offset:{(xb & 65535)+mt*4096}"); toks[("x",mt)] = lg.issue()
            def rw(j, dt, h):
                m = ST[t][0][j]
                I(f"ds_read_b64_tr_b16 {v(FW[st]+8*j+4*dt+2*h,2)}, v{VWA+dt} offset:{wbase(t, m)-65536+k*4096+h*1024}"); toks[("w",j,dt)] = lg.issue()
            L = [lambda: rx(0), lambda: rw(0,0,0), lambda: rw(0,0,1), lambda: rw(0,1,0), lambda: rw(0,1,1), lambda: rx(1)]
            if len(ST[t][0]) == 2: L += [lambda: rw(1,0,0), lambda: rw(1,0,1), lambda: rw(1,1,0), lambda: rw(1,1,1)]
            return L, toks
        seen = set()
        def mfs(t, k, toks):
            st = k & 1; L = []
            for j, m in enumerate(ST[t][0]):
                first = m not in seen; seen.add(m)
                for mt in range(2):
                    for dt in range(2):
                        def f(mt=mt, dt=dt, j=j, m=m, first=first):
                            lg.wait(max(toks[("x",mt)], toks[("w",j,dt)]))
                            d = v(ACC[m] + 16*(2*mt+dt), 16); X = v(FX[st]+4*mt,4); W = v(FW[st]+8*j+4*dt,4)
                            c = "0" if first else d
                            I(f"{MFMA} {d}, {X}, {W}, {c}" if m == "V" else f"{MFMA} {d}, {W}, {X}, {c}")
                        L.append(f)
            return L
        def kv_out(m):
            acc = ACC[m]; out = []
            for tile in range(4):
                rt, dt = tile >> 1, tile & 1; b = acc + 16*tile
                for half in range(2):
                    d = KP + 8*tile + 4*half if m == "K" else b + 4*half
                    pk = [lambda i=i, b=b, d=d, half=half: I(f"v_cvt_pk_bf16_f32 v{d+i}, v{b+8*half+2*i}, v{b+8*half+2*i+1}") for i in range(4)]
                    if m == "K": pk = [lambda i=i, b=b: I(f"v_mul_f32 v{b+i}, {f2u(LOG2E / math.sqrt(128.0))}, v{b+i}") for i in range(8*half, 8*half+8)] + pk
                    off = rt*8192 + (dt*2048 + half*1024 if m == "K" else half*4096 + dt*1024)
                    def st(d=d, off=off):
                        if self.o.get("nost"): return
                        I(f"s_add_u32 s41, s{54 if m == 'K' else 52}, {off}")
                        I(f"buffer_store_dwordx4 {v(d,4)}, v{VST}, s[{RWS}:{RWS+3}], s41 offen{self.st}"); vm.issue()
                    out.append((pk, st))
            return out
        side = {}; late = {}
        def spread(ops, t0, t1, dst=side, ks=(0, 1, 2)):
            sl = [(t, k) for t in range(t0, t1) for k in ks]; n = len(ops)
            for j, key in enumerate(sl): dst.setdefault(key, []).extend(ops[n*j//len(sl): n*(j+1)//len(sl)])
        PG = self.o.get("pg", 0)
        spread(gate_loads(), PG, PG + 1); spread(gate_ops(), PG + 3, PG + 4)
        def wtouch(r, half, wv):
            def f():
                I(f"s_cmp_eq_u32 s{SW}, {wv}"); I(f"s_cselect_b32 s99, 0, {self.OOB}")
                I(f"s_lshl_b32 s40, s{SIDX}, 19"); I(f"s_lshl_b32 s39, s{SHEAD}, 8"); I("s_add_u32 s40, s40, s39"); I(f"s_add_u32 s40, s40, {half*32*8192}")
                I("v_lshrrev_b32 v3, 1, v0"); I("v_lshlrev_b32 v3, 13, v3"); I("v_and_b32 v2, 1, v0"); I("v_lshl_add_u32 v3, v2, 7, v3"); I("v_add_u32 v3, s99, v3")
                I(f"buffer_load_dword v1, v3, s[{r}:{r+3}], s40 offen"); vm.issue()
            return f
        for nm, r, dflt in (("tk", RB, -1), ("tv", RC, 1), ("tq", RE, 3)):
            t0 = self.o.get(nm, dflt)
            if t0 >= 0:
                for half in range(2): side.setdefault((t0 + half, 2), []).append(wtouch(r, half, half))
        KN = self.o.get("kn", 8); VD = self.o.get("vd", 0); VN = self.o.get("vn", 5)
        KO = kv_out("K"); VO = kv_out("V")
        spread(sum((p for p, _ in KO), []), TK + 1, min(TK + 3, TQ), ks=(0, 1))
        npk = 2 * (min(TK + 3, TQ) - TK - 1)
        spread([s_ for _, s_ in KO], TK + 1, TK + 1 + KN, dst=late, ks=(2,))
        assert len(late[(TK + 1, 2)]) <= 8 * 2 // npk
        spread(sum((p for p, _ in VO), []), TQ, TQ + 1, ks=(0, 1))
        spread([s_ for _, s_ in VO], TQ + VD, TQ + VD + VN, dst=late, ks=(2,))
        PK_, PV_ = TK + KN + 2, TQ + VD + VN
        assert PK_ <= NS - 5 and PV_ <= NS - 2
        QE = []; EQ = lambda t: QE.append(lambda: I(t))
        EQ(f"s_and_b32 s55, s{SW}, 2"); EQ("s_lshl_b32 s55, s55, 15"); EQ(f"s_add_u32 s55, s55, {QA_LDS}")
        EQ(f"s_and_b32 s54, s{SW}, 1"); EQ("s_lshl_b32 s54, s54, 14"); EQ("s_add_u32 s55, s55, s54")
        EQ("s_lshl_b32 s54, s43, 11"); EQ("s_add_u32 s55, s55, s54"); EQ(f"v_add_u32 v14, s55, v{VST}")
        spread(QE, NS - 1, NS)
        spread([lambda r=r: I(f"v_mov_b64 {v(192+2*r,2)}, 0") for r in range(32)], NS - 1, NS)
        def fkoff():
            I(f"s_lshl_b32 s40, s{SHEAD}, 7"); I(f"s_lshl_b32 s41, s{SIDX}, 2"); I("s_add_u32 s40, s40, s41"); I(f"s_add_u32 s40, s40, {FK_OFF}")
        def w0only(fn):
            l = a.label("NP"); I(f"s_cmp_lg_u32 s{SW}, 0"); I(f"s_cbranch_scc1 {l}"); fn(); a.L(l)
        def k0(i):
            I(f"s_lshl_b32 s40, s{SW}, 12"); I("s_add_u32 m0, s40, 0x8000")
            I(f"s_lshl_b32 s41, s{SHEAD}, 20"); I("s_add_u32 s41, s41, s40")
            I(f"buffer_load_dwordx4 v{VST}, s[{RWS}:{RWS+3}], s41 offen offset:{1024*i}{self.ld} lds"); vm.issue()
        self.barrier()
        for f in take(-1, 1): f()
        vm.wait(dtok[0]); self.barrier()
        self.stamp(1)
        L, toks = reads(0, 0)
        for f in L: f()
        mark = {}; TZ = PG + 2; DS = self.o.get("dsteps", 3)
        pend = take(-1)
        for t in range(NS):
            for k in range(4):
                M = mfs(t, k, toks); n = len(M); PB = []
                if k == 3 and t < NS - 1:
                    assert not pend
                    if t == NS - 5: vm.wait(td); w0only(lambda: self.poll_check(14, 13, "0", rep4(1), RDBG))
                    if t == NS - 3: vm.wait(tp); w0only(lambda: self.poll_check(15, 13, "s53", 1))
                    lg.wait(lg.issued); vm.wait(dtok[t+1])
                    if t == TZ: vm.wait(mark[TZ-2])
                    if t == PK_: vm.wait(mark[TK + KN])
                    if t == PV_: vm.wait(mark[PV_ - 1])
                    self.barrier()
                    ps = self.o.get("pstamp")
                    if ps is not None and 0 <= t - int(ps) + 1 < 13: self.stamp(17 + t - int(ps) + 1); vm.issue(2)
                    if TZ <= t < TZ + 8: PB.append(lambda t=t: self.publish(SF, 1, RDBG, True, idx=t - TZ))
                    if t == PK_: PB.append(lambda: (fkoff(), self.publish(40, 1)))
                    if t == PV_: PB.append(lambda: (fkoff(), self.publish(40, 3)))
                    pend = take(t)
                    if t == NS - 3: pend += [lambda i=i: k0(i) for i in range(4)]
                    nd = len(pend) // (DS + 1)
                else:
                    nd = -(-len(pend) // max(1, (3 if t == 0 else DS) - k))
                D, pend = pend[:nd], pend[nd:]
                fl = []
                if not (t == NS - 1 and k == 3):
                    L, nt = reads(t, k+1) if k < 3 else reads(t+1, 0)
                    fl.append((0, max(3, n - 2) if n > 4 else 3, L))
                if PB: fl.append((1, 2, PB))
                if D: fl.append((0, n, D))
                if side.get((t, k)): fl.append((0, n, side[(t, k)]))
                if late.get((t, k)): fl.append((n - 2, n, late[(t, k)]))
                self.stream(M, fl); toks = nt
                if k == 2: mark[t] = vm.issued
                if t == NS - 7 and k == 0:
                    self.oob_sel(); I("v_lshl_add_u32 v13, v0, 2, s99"); td = self.poll_issue(14, 13, "0", RDBG)
                if t == NS - 4 and k == 0:
                    self.oob_sel(); I("v_and_b32 v13, 7, v0"); I("v_lshl_add_u32 v13, v13, 2, s99")
                    I(f"s_lshl_b32 s53, s{SHEAD}, 7"); I(f"s_add_u32 s53, s53, {FK_OFF}")
                    tp = self.poll_issue(15, 13, "s53")
            if t == TK: self.stamp(2)
            if t == TV: self.stamp(13)
        assert not items
        self.stamp(3)
        I("v_mov_b32 v62, v13")
        self.poll_issue(63, 62, "s53")
        for tile in range(4):
            rt, dt = tile >> 1, tile & 1; b = ACC["Q"] + 16*tile
            for i in range(8): I(f"v_cvt_pk_bf16_f32 v{b+i}, v{b+2*i}, v{b+2*i+1}")
            for half in range(2):
                I(f"ds_write_b128 v14, {v(b+4*half,4)} offset:{rt*8192+dt*2048+half*1024}"); lg.issue()
        self.attn_setup()
        vm.wait(vm.issued); w0only(lambda: self.poll_check(63, 62, "s53", 3))
        lg.wait(lg.issued); self.barrier()

    def attn_setup(self): self.attn(True)
    def attn(self, setup=False):
        a = self.a; I = self.I; vm = self.vm; lg = self.lg; stream = self.stream
        ML = 159744; QA_LDS = 65536; QB_LDS = 131072
        O = 192; QF = 160; NM = 144; S = [112, 128]; PP = [96, 104]; RING = 64; NR = 8; E = 56; PK = 16
        VK, VV, VL16, LRUN, LU, THR, NINF, VQ, TMP, LA = 4, 5, 6, 7, 8, 9, 10, 11, 12, 14
        SR, SG, SC1, SC2, SKO, SVO, SKM, SVM, STH = 32, 33, 34, 35, 36, 37, 38, 39, 42
        SMK, SFIN, SCA, SM1 = 54, 55, 59, 58
        DC = self.o.get("dmacost", 16); WEV = self.o.get("wev", 2)
        if setup:
            I(f"s_lshr_b32 s{SG}, s{SW}, 2"); I(f"s_mul_i32 s{SR}, s{SG}, 7"); I(f"s_xor_b32 s{SR}, s{SR}, s{SW}")
            I(f"v_lshlrev_b32 v{VL16}, 4, v0")
            I(f"s_lshl_b32 s44, s{SR}, 13"); I(f"s_add_u32 s44, s44, {QB_LDS}"); I(f"v_add_u32 v{VQ}, s44, v{VL16}")
            I(f"s_lshl_b32 s45, s{SG}, 16"); I(f"v_subrev_u32 v{TMP+1}, s45, v{VQ}")
            I(f"s_mov_b32 s{SC1}, s{SIDX}")
            I(f"s_lshl_b32 s{SC2}, s{SIDX}, 1"); I(f"s_sub_u32 s{SC2}, 14, s{SC2}")
            I(f"s_cmp_eq_u32 s{SG}, 1"); I(f"s_cselect_b32 s{SM1}, 0, -1")
            I(f"s_lshl_b32 s43, s{SW}, 12"); I(f"s_lshl_b32 s{SVO}, s{SHEAD}, 20"); I(f"s_add_u32 s{SVO}, s{SVO}, s43")
            I(f"s_add_u32 s{SKO}, s{SVO}, 0x10000"); I(f"s_add_u32 s{SVO}, s{SVO}, 0x8000")
            I(f"s_mov_b32 s{SKM}, s43"); I(f"s_add_u32 s{SVM}, s43, 0x18000")
            I(f"s_mov_b32 s{STH}, {f2u(4096.0)}"); I(f"v_mov_b32 v{NINF}, 0xff800000")
            I(f"v_and_b32 v{THR}, 31, v0"); I(f"s_lshl_b32 s44, s{SR}, 5"); I(f"v_add_u32 v{THR}, s44, v{THR}")
            I(f"v_lshrrev_b32 v{TMP}, 5, v0"); I(f"v_lshlrev_b32 v{TMP}, 2, v{TMP}"); I(f"v_sub_u32 v{THR}, v{THR}, v{TMP}")
            I(f"v_add_u32 v{VK}, 0x8000, v{VL16}")
            I(f"s_lshl_b32 s{SCA}, s{SIDX}, 2"); I(f"s_add_u32 s{SCA}, s{SCA}, s{SR}"); I(f"s_lshl_b32 s{SCA}, s{SCA}, 5"); I(f"s_add_u32 s{SCA}, s{SCA}, s{SHEAD}")
            I(f"s_lshl_b32 s{SCA}, s{SCA}, 13"); I(f"s_add_u32 s{SCA}, s{SCA}, {CTX_OFF}")
            I(f"s_mov_b32 s{SFIN}, 0")
            if self.o.get("map84", 1):
                I(f"s_lshr_b32 s56, s{SF}, 6"); I("s_lshl_b32 s56, s56, 3"); I(f"s_bfe_u32 s44, s{SF}, 0x30002"); I("s_add_u32 s56, s56, s44")
                I(f"s_bfe_u32 s57, s{SF}, 0x10005"); I("s_lshl_b32 s57, s57, 2"); I(f"s_and_b32 s44, s{SF}, 3"); I("s_add_u32 s57, s57, s44")
                I(f"s_and_b32 s40, s{SF}, 63"); I("s_lshl_b32 s40, s40, 16")
            else:
                I(f"s_mov_b32 s56, s{SHEAD}"); I(f"s_mov_b32 s57, s{SIDX}")
                I(f"s_and_b32 s40, s{SF}, 31"); I("s_lshl_b32 s40, s40, 17")
            I(f"s_lshl_b32 s44, s{SW}, 13"); I("s_add_u32 s40, s40, s44"); I(f"s_add_u32 s40, s40, {WOT_OFF}")
            self.srd(RB, "ssmk", 2*MB); self.srd(RA, "k", 2*MB); self.srd(RC, "v", 2*MB); self.srd(RD, "shift", 4096); self.srd(RE, "wo", 4*MB)
            I("s_mov_b32 s41, 0")
            if not self.o.get("noprio"):
                l = a.label("PR"); I(f"s_cmp_eq_u32 s{SG}, 1"); I(f"s_cbranch_scc0 {l}"); I("s_setprio 1"); a.L(l)
            return
        def loadq(va):
            qt = []
            for ds in range(8):
                I(f"ds_read_b128 {v(QF+4*ds,4)}, v{va} offset:{1024*ds}"); qt.append(lg.issue())
            return qt
        op = lambda t, c=4: (lambda: I(t), c)
        def dma4(kind):
            sm, so = (SKM, SKO) if kind == "k" else (SVM, SVO)
            def d(i):
                def f():
                    if i == 0: I(f"s_mov_b32 m0, s{sm}"); I(f"s_xor_b32 s{sm}, s{sm}, 0x8000")
                    if not (self.o.get("a_nodma") and i):
                        I(f"buffer_load_dwordx4 v{VL16}, s[{RWS}:{RWS+3}], s{so} offen offset:{1024*i}{self.ld} lds")
                    if i == 3: I(f"s_add_u32 s{so}, s{so}, 0x10000")
                return (f, DC + (8 if i == 0 else 4 if i == 3 else 0))
            return [d(i) for i in range(4)]
        self.ring_n = 0
        def rd(kind, sl, idx):
            h = {}
            def f():
                slot = self.ring_n % NR; self.ring_n += 1
                h["reg"] = RING + 4*slot
                I(f"ds_read_b128 {v(h['reg'],4)}, v{VK if kind == 'k' else VV} offset:{sl*8192+idx*1024}"); h["tok"] = lg.issue()
            return f, h
        def wait_for(R, i):
            if R[i][1]["tok"] <= lg.done: return
            j = i
            while j + 1 < len(R) and j + 1 < i + WEV and "tok" in R[j+1][1] and R[j+1][1]["tok"] > R[i][1]["tok"]: j += 1
            lg.wait(R[j][1]["tok"])
        def mf_qk(sb, ds, R, i, czero=False):
            wait_for(R, i)
            c = (("0" if czero else v(NM,16)) if ds == 0 else v(S[sb],16))
            I(f"{MFMA} {v(S[sb],16)}, {v(R[i][1]['reg'],4)}, {v(QF+4*ds,4)}, {c}")
        def mf_pv(pb, idx, R, i=None, reg=None):
            ks, dt = idx >> 2, idx & 3
            if reg is None: wait_for(R, i); reg = R[i][1]["reg"]
            I(f"{MFMA} {v(O+16*dt,16)}, {v(reg,4)}, {v(PP[pb]+4*ks,4)}, {v(O+16*dt,16)}")
        def sm_ops(sb):
            L = []
            ex = lambda i: op(f"v_exp_f32 v{E+(i&7)}, v{S[sb]+i}", 8)
            def post(j):
                r = []; e0, e1 = E + ((2*j) & 7), E + ((2*j+1) & 7)
                if j == 0: r.append(op(f"v_add_f32 v{LU}, v{e0}, v{e1}"))
                else: r += [op(f"v_add_f32 v{LU}, v{LU}, v{e0}"), op(f"v_add_f32 v{LU}, v{LU}, v{e1}")]
                r.insert(1 if j else 0, op(f"v_cvt_pk_bf16_f32 v{PP[sb]+j}, v{e0}, v{e1}"))
                return r
            L += [ex(0), ex(1)]
            for j in range(8):
                p = post(j)
                L += ([ex(2*j+2), p[0], ex(2*j+3)] + p[1:]) if j < 7 else p
            if self.o.get("a_nosm"): L = [(lambda: None, 0) if i > 3 else x for i, x in enumerate(L)]
            return L
        def sched(M, fixed, chain):
            n = len(M); fc = [sum(c for _, c in fixed.get(g, [])) for g in range(n)]
            tot = sum(c for _, c in chain)
            lo, hi = 0.0, 4000.0
            for _ in range(40):
                lev = (lo + hi) / 2
                if sum(max(0, lev - f) for f in fc) >= tot: hi = lev
                else: lo = lev
            k = 0; credit = 0.0
            for g in range(n):
                M[g]()
                for c, _ in fixed.get(g, []): c()
                credit += max(0, hi - fc[g])
                while k < len(chain) and (g == n - 1 or chain[k][1] <= credit + 2):
                    chain[k][0](); credit -= chain[k][1]; k += 1
        def put(fixed, g, items): fixed.setdefault(g, []).extend(items)
        SPL = self.o.get("spl", 26)
        ool = []
        def rarely(cmp_, body):
            lo = a.label("OOL"); lb = a.label("RET")
            I(cmp_); I(f"s_cbranch_scc1 {lo}"); a.L(lb)
            ool.append((lo, lb, body))
        def mask_ops(sb, koff):
            prs = [46, 48, 50, 52]; L = []
            if koff >= 64:
                L.append(op(f"v_subrev_u32 v{TMP+3}, 64, v{THR}")); tr = TMP + 3; koff -= 64
            elif koff < 0:
                L += [op(f"s_lshl_b32 s45, s{SG}, 6"), op(f"v_subrev_u32 v{TMP+3}, s45, v{THR}")]; tr = TMP + 3; koff = -koff - 1
            else: tr = THR
            for r0 in range(0, 16, 4):
                for r in range(r0, r0+4): L.append(op(f"v_cmp_lt_i32 s[{prs[r&3]}:{prs[r&3]+1}], v{tr}, {(r & 3) + 8*(r >> 2) + koff}"))
                for r in range(r0, r0+4): L.append(op(f"v_cndmask_b32 v{S[sb]+r}, v{S[sb]+r}, v{NINF}, s[{prs[r&3]}:{prs[r&3]+1}]"))
            return L
        def mask_body(sb, koff):
            for c, _ in mask_ops(sb, koff): c()
        def rowmax(sb, dst):
            b = S[sb]
            I(f"v_max3_f32 v{dst}, v{b}, v{b+1}, v{b+2}")
            for i in range(3, 15, 2): I(f"v_max3_f32 v{dst}, v{dst}, v{b+i}, v{b+i+1}")
            I(f"v_max_f32 v{dst}, v{dst}, v{b+15}"); I(f"v_mov_b32 v{dst+1}, v{dst}")
            I(f"v_permlane32_swap_b32 v{dst}, v{dst+1}"); I(f"v_max_f32 v{dst}, v{dst}, v{dst+1}")
        def init_max():
            rowmax(0, TMP)
            I(f"v_max_f32 v{TMP}, {f2u(-1e30)}, v{TMP}")
            for r in range(16): I(f"v_sub_f32 v{NM+r}, 0, v{TMP}")
            return [op(f"v_sub_f32 v{S[0]+r}, v{S[0]+r}, v{TMP}") for r in range(16)]
        rare = []
        def check(sb, other=True):
            def f():
                lr = a.label("RARE"); lb = a.label("BACK")
                I(f"v_cmp_nge_f32 vcc, s{STH}, v{LU}")
                if self.o.get("a_nocheck"): I("s_mov_b64 vcc, 0")
                I(f"s_cbranch_vccnz {lr}"); a.L(lb)
                I(f"v_add_f32 v{LRUN}, v{LRUN}, v{LU}")
                rare.append((lr, lb, sb, other))
            return f
        def fin_body():
            I(f"v_mov_b32 v{TMP}, v{LA}"); I(f"s_mov_b32 s{SFIN}, 2"); I("s_nop 0")
            I(f"v_permlane32_swap_b32 v{TMP}, v{LA}"); I(f"v_add_f32 v{TMP}, v{TMP}, v{LA}"); I(f"v_rcp_f32 v{TMP}, v{TMP}"); I(f"v_mov_b32 v{TMP+1}, v{TMP}")
            for q in range(8):
                for i in range(8*q, 8*q+8, 2): I(f"v_pk_mul_f32 {v(O+i,2)}, {v(O+i,2)}, {v(TMP,2)}")
                for i in range(4): I(f"v_cvt_pk_bf16_f32 v{PK+4*q+i}, v{O+8*q+2*i}, v{O+8*q+2*i+1}")
                for i in range(8*q, 8*q+8, 2): I(f"v_mov_b64 {v(O+i,2)}, 0")
        def st_body():
            I(f"s_add_u32 s44, s{SCA}, 4096"); I(f"s_mov_b32 s{SFIN}, 3")
            for q in range(8):
                I(f"buffer_store_dwordx4 {v(PK+4*q,4)}, v{VL16}, s[{RWS}:{RWS+3}], s{SCA if q < 4 else 44} offen offset:{1024*(q&3)}{self.st}")
        TR = [RING + 4*(2+i) for i in range(6)]
        def head(R, vmw, with_mfma=True, post=(), more=()):
            rf = [(f, 4) for f, h in R]; sm2 = sm_ops(0)[SPL:]
            nop = lambda: None
            def first():
                I("s_waitcnt lgkmcnt(4)"); mf_pv(1, 2, None, reg=TR[0])
            M = [first] + [lambda i=i: mf_pv(1, 2+i, None, reg=TR[i]) for i in range(1, 6)] if with_mfma else [nop]*6
            nb = self.o.get("nb", 4)
            more = list(more); m0 = len(more) // 3
            sched(M[:2], {}, sm2[:nb] + more[:m0])
            vmw(); I("s_waitcnt lgkmcnt(0)"); lg.mark_all_done(); self.barrier(); self.ring_n = 0
            fx = {0: rf[0:2], 1: rf[2:5], 2: rf[5:6], 3: rf[6:7] + [(nop, 12 + 8*len(post))]}
            sched(M[2:], fx, sm2[nb:] + more[m0:])
            check(0)()
            for p in post: p()
        def mk_reads():
            return ([rd("k", 0, i) for i in range(8)] + [rd("v", 0, i) for i in range(8)] +
                    [rd("k", 1, i) for i in range(8)] + [rd("v", 1, i) for i in range(8)])
        def mid(R, dmas, kx, mb=None, trans=False, endops=(), extra=None):
            rf = [(f, 4) for f, h in R]
            M = [lambda i=i: mf_qk(0, i, R, i, trans) for i in range(8)] + [lambda i=i: mf_pv(0, i, R, 8+i) for i in range(8)]
            fx = {}
            for g in range(16): put(fx, g, [rf[7+g]])
            D = sum((dma4(k) for k in dmas), [])
            DS = self.o.get("dstep", 2)
            spill = []
            for n, d in enumerate(D):
                g = n * DS * (2 if len(D) == 4 and not extra else 1)
                if g < 15: put(fx, g, [d])
                else: spill.append((g - 16 if g >= 16 else 0, d))
            put(fx, 15, [(lambda: None, 20)])
            if extra:
                X0 = self.o.get("x0", 8); ng = 16 - X0 + 9; per = -(-len(extra) // ng)
                put(fx, X0, [op("s_waitcnt vmcnt(4)")])
                for g in range(X0, 16): put(fx, g, extra[(g-X0)*per:(g-X0+1)*per])
                for g in range(9): spill += [(g, x) for x in extra[(16-X0+g)*per:(16-X0+g+1)*per]]
            sched(M, fx, sm_ops(1))
            check(1, other=not trans)()
            if mb: mb()
            pre = []
            if trans:
                I(f"v_mov_b32 v{LA}, v{LRUN}"); I(f"v_mov_b32 v{LRUN}, 0"); I(f"s_mov_b32 s{SFIN}, 1")
                pre = init_max()
            M = [lambda i=i: mf_qk(1, i, R, 16+i) for i in range(8)] + [lambda i=i: mf_pv(1, i, R, 24+i) for i in range(2)]
            fx = {}
            for g in range(9): put(fx, g, [rf[23+g]])
            for g, d in spill: put(fx, g, [d])
            put(fx, 8, [op(f"v_xor_b32 v{VV}, 0x10000, v{VK}")] + kx)
            for n, e in enumerate(endops): put(fx, 7 - n, [e])
            put(fx, 9, [(lambda: None, 16)])
            sched(M, fx, pre + sm_ops(0)[:SPL])
            assert [R[26+i][1]["reg"] for i in range(6)] == TR
        vm4 = lambda: I("s_waitcnt vmcnt(4)")
        vm0 = lambda: I("s_waitcnt vmcnt(0)")
        def vm08():
            lo = a.label("W8"); lb = a.label("W8R")
            I(f"s_cmp_eq_u32 s{SFIN}, 3"); I(f"s_cbranch_scc1 {lo}"); I("s_waitcnt vmcnt(%d)" % self.o.get("a_vm", 0)); a.L(lb)
            def b(): I("s_waitcnt vmcnt(8)"); I(f"s_mov_b32 s{SFIN}, 4")
            ool.append((lo, lb, b))
        m1 = lambda sb, ko: (lambda: rarely(f"s_cmp_eq_u32 s{SC1}, s{SM1}", lambda: mask_body(sb, ko)))
        fin = lambda: rarely(f"s_cmp_eq_u32 s{SFIN}, 1", fin_body)
        sta = (lambda: rarely(f"s_cmp_eq_u32 s{SFIN}, 2", st_body), 8)

        KR, VR, SH, WO, AD = 16, 23, 28, 32, 40
        def side_loads():
            L = []; E = lambda t: L.append(op(t)); V = lambda t: L.append(op(t, DC))
            E(f"v_lshrrev_b32 v{AD}, 5, v0"); E(f"v_and_b32 v{AD+1}, 31, v0"); E(f"v_lshlrev_b32 v{AD+2}, 12, v{AD}"); E(f"v_lshl_add_u32 v{AD+2}, v{AD+1}, 2, v{AD+2}")
            E(f"s_lshl_b32 s60, s{SF}, 14"); E(f"s_lshl_b32 s61, s{SW}, 7"); E("s_add_u32 s60, s60, s61"); E("s_add_u32 s61, s60, 8192")
            for j in range(8): V(f"buffer_load_dword v{WO+j}, v{AD+2}, s[{RE}:{RE+3}], s{60+(j>>2)} offen offset:{1024*(j&3)}")
            E("s_lshr_b32 s62, s2, 3"); E("s_lshl_b32 s62, s62, 16"); E(f"s_lshl_b32 s63, s{SW}, 13"); E("s_add_u32 s62, s62, s63")
            E("s_and_b32 s63, s2, 7"); E("s_lshl_b32 s63, s63, 7"); E("s_add_u32 s62, s62, s63"); E(f"v_add_u32 v{AD+3}, s62, v{AD+2}")
            for i in range(3): E(f"v_subrev_u32 v{AD+4+i}, {3072-1024*i}, v{AD+3}")
            E("s_lshl_b32 s63, s63, 2"); E(f"v_lshl_add_u32 v{AD+7}, v{AD+1}, 4, s63")
            for i in range(3): V(f"buffer_load_dword v{KR+i}, v{AD+4+i}, s[{RA}:{RA+3}], 0 offen")
            for i in range(4): V(f"buffer_load_dword v{KR+3+i}, v{AD+3}, s[{RA}:{RA+3}], 0 offen offset:{1024*i}")
            for i in range(4): V(f"buffer_load_dword v{VR+i}, v{AD+3}, s[{RC}:{RC+3}], 0 offen offset:{1024*i}")
            V(f"buffer_load_dwordx4 {v(SH,4)}, v{AD+7}, s[{RD}:{RD+3}], 0 offen")
            E(f"s_lshl_b32 s60, s{SF}, 13"); E(f"s_add_u32 s60, s60, s{SWK}"); E(f"v_and_b32 v27, 7, v0"); E("v_lshlrev_b32 v27, 7, v27")
            V(f"buffer_load_dword v1, v27, s[{RB}:{RB+3}], s60 offen")
            return L
        NSL = 21
        def side_math():
            L = []; E = lambda t: L.append(op(t)); V = lambda t: L.append(op(t, DC))
            W2 = 48
            E("s_mov_b32 s60, 0x05040100"); E("s_mov_b32 s61, 0x07060302")
            for j in range(4): E(f"v_perm_b32 v{W2+j}, v{WO+2*j+1}, v{WO+2*j}, s60")
            for j in range(4): E(f"v_perm_b32 v{W2+4+j}, v{WO+2*j+1}, v{WO+2*j}, s61")
            E(f"s_lshl_b32 s60, s{SW}, 8"); E(f"s_add_u32 s60, s60, s{SF}"); E("s_lshl_b32 s60, s60, 11"); E(f"s_add_u32 s60, s60, {WOT_OFF}")
            for mt in range(2): V(f"buffer_store_dwordx4 {v(W2+4*mt,4)}, v{VL16}, s[{RWS}:{RWS+3}], s60 offen offset:{1024*mt}{self.st}")
            KU, SU, OO, VU, PQ = 32, 42, 48, 39, 52
            for c in range(2):
                def unp(d, sreg, half): E(f"v_lshlrev_b32 v{d}, 16, v{sreg}" if half == 0 else f"v_and_b32 v{d}, 0xffff0000, v{sreg}")
                for i in range(7): unp(KU+i, KR+i, c)
                for j in range(4): unp(SU+j, SH + 2*c + (j >> 1), j & 1)
                for o in range(4):
                    E(f"v_mul_f32 v{OO+o}, v{KU+o}, v{SU+3}")
                    for j in (2, 1, 0): E(f"v_fmac_f32 v{OO+o}, v{KU+o+3-j}, v{SU+j}")
                    unp(VU, VR+o, c)
                    E(f"v_mul_f32 v{OO+o}, v{OO+o}, v{VU}")
                d = PQ + 2*(1-c)
                E(f"v_cvt_pk_bf16_f32 v{d}, v{OO+3}, v{OO+2}"); E(f"v_cvt_pk_bf16_f32 v{d+1}, v{OO+1}, v{OO}")
            E(f"v_lshlrev_b32 v{AD+1}, 5, v{AD+1}"); E(f"v_lshl_add_u32 v{AD+1}, v{AD}, 4, v{AD+1}")
            E(f"v_permlane32_swap_b32 v{PQ+2}, v{PQ}"); E(f"v_permlane32_swap_b32 v{PQ+3}, v{PQ+1}")
            E("s_lshr_b32 s60, s2, 3"); E("s_lshl_b32 s60, s60, 16"); E(f"s_lshl_b32 s61, s{SW}, 13"); E("s_add_u32 s60, s60, s61")
            E("s_and_b32 s61, s2, 7"); E("s_lshl_b32 s61, s61, 10"); E("s_add_u32 s60, s60, s61"); E(f"s_add_u32 s60, s60, {KVT_OFF}")
            V(f"buffer_store_dwordx4 {v(PQ,4)}, v{AD+1}, s[{RWS}:{RWS+3}], s60 offen{self.st}")
            return L
        def spub_body():
            l1 = a.label("SM"); l2 = a.label("SP")
            I("s_add_u32 s41, s41, 1"); I(f"s_add_u32 s44, s41, s{SG}"); I("s_cmp_lg_u32 s44, 2"); I(f"s_cbranch_scc1 {l1}")
            for c, _ in side_math(): c()
            a.L(l1)
            I("s_cmp_lg_u32 s41, 4"); I(f"s_cbranch_scc1 {l2}")
            I(f"s_lshl_b32 s44, s{SF}, 2"); I(f"s_add_u32 s44, s44, {FY_OFF}")
            sv = self.save(); self.publish(44, 2); self.restore(sv)
            a.L(l2)
        spub = lambda: rarely("s_cmp_lt_u32 s41, 4", spub_body)
        def snap():
            I(f"s_mov_b32 s61, {FY_OFF}"); I(f"buffer_load_dwordx4 v[52:55], v{VL16}, s[{RWS}:{RWS+3}], s61 offen sc1")
        def side_check():
            lo = a.label("SCK"); lb = a.label("SCR")
            def test():
                I("v_and_b32 v52, v52, v53"); I("v_and_b32 v54, v54, v55"); I("v_and_b32 v52, v52, v54"); I("v_and_b32 v52, 2, v52"); I("v_cmp_ne_u32 vcc, 2, v52")
            test(); I(f"s_cbranch_vccnz {lo}"); a.L(lb)
            def spin():
                lp = a.label("SPL")
                I("s_mov_b32 s99, 20000"); a.L(lp)
                I("s_sleep 2"); I(f"buffer_load_dwordx4 v[52:55], v{VL16}, s[{RWS}:{RWS+3}], s61 offen sc1"); I("s_waitcnt vmcnt(0)")
                test(); I(f"s_cbranch_vccz {lb}")
                I("s_sub_u32 s99, s99, 1"); I("s_cmp_lg_u32 s99, 0"); I(f"s_cbranch_scc1 {lp}")
            ool.append((lo, lb, spin))
        m2 = lambda sb, ko: (lambda: rarely(f"s_cmp_eq_u32 s{SC2}, 0", lambda: (snap(), mask_body(sb, ko))))
        LEV = a.label("EVEN"); LODM = a.label("ODDM"); LTRANS = a.label("TRANS"); LP2 = a.label("P2"); LP2B = a.label("P2B"); LDRAIN = a.label("DRAIN")
        self.stamp(8)
        self.ring_n = 0
        R = [rd("k", 0, i) for i in range(8)] + [rd("k", 1, i) for i in range(8)]
        for i in range(7):
            I(f"ds_read_b128 {v(QF+4*i,4)}, v{TMP+1} offset:{1024*i}"); lg.issue()
            R[i][0]()
        def q7():
            I(f"ds_read_b128 {v(QF+28,4)}, v{TMP+1} offset:{1024*7}"); lg.issue()
        D = dma4("v") + dma4("k")
        sched([lambda i=i: mf_qk(0, i, R, i, True) for i in range(8)], {g: ([(q7, 4)] if g == 0 else []) + [(R[7+g][0], 4), D[g]] for g in range(8)}, [])
        m1(0, 0)()
        pre = init_max()
        I(f"v_mov_b32 v{LRUN}, 0")
        fx = {}
        put(fx, 0, [(R[15][0], 4)]); put(fx, 4, [op(f"v_xor_b32 v{VV}, 0x10000, v{VK}"), op(f"v_xor_b32 v{VK}, 0x4000, v{VK}")])
        SLd = side_loads(); n8 = (len(SLd) + 7) // 8
        for g in range(8): put(fx, g, SLd[g*n8:(g+1)*n8])
        sched([lambda i=i: mf_qk(1, i, R, 8+i) for i in range(8)], fx, pre + sm_ops(0)[:SPL])
        R = mk_reads()
        head(R, lambda: I(f"s_waitcnt vmcnt({4+NSL})"), False, post=[m1(1, 32)])
        svm = self.save()
        I(f"s_branch {LODM}")
        a.L(LEV)
        R = mk_reads(); head(R, vm4)
        mid(R, "k", [op(f"v_xor_b32 v{VK}, 0x4000, v{VK}")], mb=m1(0, 0))
        R = mk_reads(); head(R, vm4, post=[m1(1, 32), spub])
        assert self.lg.issued - self.lg.done == svm[2] - svm[3]
        a.L(LODM)
        mid(R, "v", [op(f"v_xor_b32 v{VK}, 0xc000, v{VK}")], mb=m1(0, 64), endops=[op(f"s_sub_u32 s{SC1}, s{SC1}, 1")])
        I(f"s_cmp_lg_u32 s{SC1}, -1"); I(f"s_cbranch_scc1 {LEV}")
        I(f"s_cmp_eq_u32 s{SG}, 1"); I(f"s_cbranch_scc1 {LTRANS}")
        svt = self.save()
        R = mk_reads(); head(R, vm4)
        mid(R, "k", [op(f"v_xor_b32 v{VK}, 0x8000, v{VK}")], mb=m2(0, -1))
        a.L(LP2B)
        I(f"s_cmp_eq_u32 s{SC2}, 0"); I(f"s_cbranch_scc1 {LDRAIN}")
        a.L(LP2)
        R = mk_reads(); head(R, vm08, post=[spub, fin, lambda: I(f"s_sub_u32 s{SC2}, s{SC2}, 1")])
        mid(R, "kv", [op(f"v_xor_b32 v{VK}, 0x8000, v{VK}")], mb=m2(0, -1), endops=[sta])
        I(f"s_cmp_lg_u32 s{SC2}, 0"); I(f"s_cbranch_scc1 {LP2}")
        a.L(LDRAIN)
        self.stamp(10)
        R2 = [rd("v", 0, i) for i in range(8)] + [rd("v", 1, i) for i in range(8)]
        rf = [(f, 4) for f, h in R2]
        ts, ts2, ts3 = self.tail_setup()
        tsa = [x for x in ts if x[1] == 4]; tsl = [x for x in ts if x[1] != 4]
        for c, _ in tsa[:11]: c()
        head(R2, lambda: (vm08(), side_check(), [c() for c, _ in tsl]), post=[fin, sta[0]], more=mask_ops(1, -33))
        ts = tsa[11:]
        pre = []; E_ = lambda t: pre.append(op(t))
        E_(f"s_lshl_b32 s44, s{SW}, 9"); E_(f"s_add_u32 s44, s44, {ML}"); E_(f"v_lshrrev_b32 v54, 1, v{VL16}"); E_(f"v_add_u32 v54, s44, v54")
        E_(f"s_lshl_b32 s46, s{SW}, 13"); E_(f"v_add_u32 v55, s46, v{VL16}")
        E_(f"s_sub_u32 s54, 15, s{SIDX}"); E_(f"s_lshl_b32 s54, s54, 2"); E_(f"s_add_u32 s54, s54, s{SR}"); E_("s_lshl_b32 s54, s54, 5"); E_(f"s_add_u32 s54, s54, s{SHEAD}")
        E_("s_lshl_b32 s54, s54, 13"); E_(f"s_lshl_b32 s44, s{SG}, 12"); E_("s_add_u32 s54, s54, s44"); E_(f"s_add_u32 s54, s54, {CTX_OFF}")
        def lsum():
            L = [op(f"v_mov_b32 v{TMP}, v{LRUN}"), op("s_nop 0"), op(f"v_permlane32_swap_b32 v{TMP}, v{LRUN}"), op(f"v_add_f32 v{NM+1}, v{TMP}, v{LRUN}")]
            def wml():
                I(f"ds_write_b64 v54, {v(NM,2)}"); lg.issue()
            return L + [(wml, 4)]
        def osend(g, i):
            def f():
                I(f"ds_write_b128 v55, {v(O+32*(1-g)+4*i,4)} offset:{1024*i}"); lg.issue()
            return (f, 16)
        lj = a.label("MGJ"); LM = [a.label("MG0"), a.label("MG1")]; LFB = [a.label("FB0"), a.label("FB1")]; LSK = a.label("SKIP"); LS1 = a.label("SK1")
        I(f"s_lshl_b32 s45, s{SG}, 1"); I(f"s_sub_u32 s45, s{SR}, s45"); I("s_cmp_lt_i32 s45, 1"); I(f"s_cbranch_scc1 {LSK}")
        svd = self.save(); rnd = self.ring_n
        setup = ts + pre + ts3; n8 = (len(setup) + 7) // 8
        fx = {g: [rf[7+g]] + setup[g*n8:(g+1)*n8] for g in range(8)}
        sched([lambda i=i: mf_pv(0, i, R2, i) for i in range(8)], fx, sm_ops(1))
        check(1)()
        rf[15][0]()
        I(f"s_cmp_eq_u32 s{SG}, 1"); I(f"s_cbranch_scc1 {LFB[1]}")
        sv2 = self.save(); PR = 64
        for g in (0, 1):
            if g: a.L(LFB[1]); self.restore(sv2)
            own = O + 32*g; snd = O + 32*(1-g)
            sd = [2*(1-g), 2*(1-g)+1]; od = [2*g, 2*g+1]
            order = [sd[0], sd[1], 4+sd[0], 4+sd[1], od[0], od[1], 4+od[0], 4+od[1]]
            def mfb(idx):
                lg.wait(R2[8+idx][1]["tok"]); mf_pv(1, idx, None, reg=R2[8+idx][1]["reg"])
            fx = {5: [osend(g, 0), osend(g, 1)], 6: [osend(g, i) for i in (2, 3, 4)], 7: [osend(g, i) for i in (5, 6, 7)]}
            sched([lambda i=i: mfb(i) for i in order], fx, lsum() + self.tail_valu())
            a.L(LM[g])
            I(f"v_xor_b32 v54, 0xe00, v54"); I(f"v_xor_b32 v55, 0xe000, v55")
            I("s_waitcnt lgkmcnt(0)"); lg.mark_all_done(); self.barrier()
            I(f"ds_read_b64 {v(96,2)}, v54"); t0 = lg.issue()
            tk = []
            for i in range(8):
                I(f"ds_read_b128 {v(PR+4*i,4)}, v55 offset:{1024*i}"); tk.append(lg.issue())
            lg.wait(t0)
            I(f"v_min_f32 v98, v{NM}, v96"); I(f"v_sub_f32 v99, v98, v{NM}"); I(f"v_sub_f32 v100, v98, v96")
            I("v_exp_f32 v99, v99"); I("v_exp_f32 v100, v100")
            I(f"v_mul_f32 v101, v99, v{NM+1}"); I("v_fmac_f32 v101, v100, v97"); I("v_rcp_f32 v101, v101")
            I("v_mul_f32 v102, v99, v101"); I("v_mul_f32 v103, v99, v101"); I("v_mul_f32 v104, v100, v101"); I("v_mul_f32 v105, v100, v101")
            tw = self.tail_writes()
            for q in range(4):
                for i in range(8*q, 8*q+8, 2): I(f"v_pk_mul_f32 {v(own+i,2)}, {v(own+i,2)}, v[102:103]")
                lg.wait(tk[2*q+1])
                for c in tw[3*q:3*q+3]: c()
                for i in range(8*q, 8*q+8, 2): I(f"v_pk_fma_f32 {v(own+i,2)}, {v(PR+i,2)}, v[104:105], {v(own+i,2)}")
                for i in range(4): I(f"v_cvt_pk_bf16_f32 v{snd+4*q+i}, v{own+8*q+2*i}, v{own+8*q+2*i+1}")
                I(f"buffer_store_dwordx4 {v(snd+4*q,4)}, v{VL16}, s[{RWS}:{RWS+3}], s54 offen offset:{1024*q}{self.st}"); self.tctx = vm.issue()
            if not g: I(f"s_branch {lj}")
        def skip_path():
            keep = self.save(); tctx = self.tctx; th = self.th
            a.L(LSK); self.restore(svd); self.ring_n = rnd
            I("s_cmp_lt_i32 s45, 0"); I(f"s_cbranch_scc1 {LS1}")
            rf[7][0]()
            for i in range(8): mf_pv(0, i, R2[:8], i)
            a.L(LS1)
            for c, _ in setup + lsum() + self.tail_valu(): c()
            l1 = a.label("SG1"); I(f"s_cmp_eq_u32 s{SG}, 1"); I(f"s_cbranch_scc1 {l1}")
            for g in (0, 1):
                if g: a.L(l1)
                for i in range(8): osend(g, i)[0]()
                I(f"s_branch {LM[g]}")
            self.restore(keep); self.tctx = tctx; self.th = th
        a.L(lj)
        I("s_setprio 0")
        self.stamp(4)
        def cold():
            a.L(LTRANS)
            self.restore(svt)
            loadq(VQ); I("s_waitcnt lgkmcnt(0)")
            I(f"v_xor_b32 v{VK}, 0x4000, v{VK}")
            R = mk_reads(); head(R, vm4, more=mask_ops(1, 96))
            mid(R, "k", [op(f"v_xor_b32 v{VK}, 0x8000, v{VK}")], mb=m2(0, -1), trans=True)
            I(f"s_branch {LP2B}")
            skip_path()
            for (lo, lb, body) in ool:
                a.L(lo); body(); I(f"s_branch {lb}")
            for (lr, lb, sb, other) in rare:
                a.L(lr)
                I("s_nop 15")
                rowmax(sb, TMP)
                I(f"v_max_f32 v{TMP}, 0, v{TMP}"); I(f"v_exp_f32 v{TMP+1}, -v{TMP}")
                for r in range(16): I(f"v_sub_f32 v{NM+r}, v{NM+r}, v{TMP}")
                for r in range(16): I(f"v_sub_f32 v{S[sb]+r}, v{S[sb]+r}, v{TMP}")
                if other:
                    for r in range(16): I(f"v_sub_f32 v{S[1-sb]+r}, v{S[1-sb]+r}, v{TMP}")
                for r in range(64): I(f"v_mul_f32 v{O+r}, v{O+r}, v{TMP+1}")
                I(f"v_mul_f32 v{LRUN}, v{LRUN}, v{TMP+1}")
                for c, _ in sm_ops(sb): c()
                I("s_nop 1"); I(f"s_branch {lb}")
        self.attn_rare = cold

    HB = 65536; HC = 4416; XB = 136192; YB = 148480
    SC, SJ, SB, SCH, SHB_, SWO, SCX = 34, 35, 36, 37, 38, 39, 40
    WS_ = [16, 24, 32, 40, 176, 184, 56, 80, 88, 96, 104, 144, 152, 160]
    CS_ = [168, 112, 120, 128, 136, 64, 72]
    NL = 4
    def tail_setup(self):
        I = self.I; L = []; E = lambda t: L.append((lambda: I(t), 4))
        SC, SJ, SB, SCH, SHB_, SWO, SCX = self.SC, self.SJ, self.SB, self.SCH, self.SHB_, self.SWO, self.SCX
        self.wtok = {}; self.wslot = dict(enumerate(self.WS_))
        E(f"s_lshr_b32 s{SC}, s{SW}, 2"); E(f"s_and_b32 s{SJ}, s{SW}, 3")
        E(f"s_lshl_b32 s{SCH}, s{SF}, 1"); E(f"s_add_u32 s{SCH}, s{SCH}, s{SC}"); E(f"s_lshl_b32 s{SCH}, s{SCH}, 12")
        E(f"s_lshl_b32 s60, s{SJ}, 10"); E("v_add_u32 v50, s60, v6"); E("v_subrev_u32 v51, 16, v50")
        E(f"s_lshr_b32 s60, s{SCH}, 8"); E(f"s_add_u32 s60, s60, {KVT_OFF}"); E("v_lshlrev_b32 v49, 9, v50")
        def ld(t):
            def f(): I(t); self.th = self.vm.issue()
            L.append((f, 16))
        ld(f"buffer_load_dwordx4 {v(160,4)}, v51, s[{RB}:{RB+3}], s{SCH} offen")
        ld(f"buffer_load_dwordx4 {v(164,4)}, v50, s[{RB}:{RB+3}], s{SCH} offen")
        ld(f"buffer_load_dwordx4 {v(168,4)}, v49, s[{RWS}:{RWS+3}], s60 offen{self.ld}")
        E(f"s_lshl_b32 s{SWO}, s57, 19"); E(f"s_lshl_b32 s60, s{SW}, 16"); E(f"s_add_u32 s{SWO}, s{SWO}, s60"); E(f"s_add_u32 s{SWO}, s{SWO}, {WOT_OFF}")
        L2 = [(lambda i=i: self.wload(i), 36) for i in range(self.o.get("we", 0))]
        L3 = []; L, Lx = L3, L
        E = lambda t: L3.append((lambda: I(t), 4))
        E(f"s_mul_i32 s{SB}, s{SC}, 6144"); E(f"s_add_u32 s{SB}, s{SB}, {self.XB}")
        E(f"s_mul_i32 s{SHB_}, s{SC}, {8*self.HC}"); E(f"s_add_u32 s{SHB_}, s{SHB_}, {self.HB}")
        E(f"s_lshl_b32 s{SCX}, s56, 19"); E(f"s_lshl_b32 s60, s{SW}, 15"); E(f"s_add_u32 s{SCX}, s{SCX}, s60"); E(f"s_add_u32 s{SCX}, s{SCX}, {CTX_OFF}")
        return Lx, L2, L3
    def wreg(self, i):
        return self.WS_[i % len(self.WS_)]
    def wload(self, i):
        I = self.I; r = self.wslot[i]
        I(f"s_add_u32 s61, s{self.SWO}, {i*2048}")
        for mt in range(2):
            I(f"buffer_load_dwordx4 {v(r+4*mt,4)}, v6, s[{RWS}:{RWS+3}], s61 offen offset:{mt*1024}{self.ld}"); self.wtok[i] = self.vm.issue()
    def tail_valu(self):
        I = self.I; HC = self.HC; L = []; E = lambda t: L.append((lambda: I(t), 4))
        SJ, SB, SHB_ = self.SJ, self.SB, self.SHB_
        Ee, Eo, Oe, Oo = 160, 113, 122, 131
        E(f"s_add_u32 s60, s{SHB_}, 64"); E("v_add_u32 v138, s60, v50")
        E("v_and_b32 v51, 3, v0"); E("v_mul_u32_u24 v139, 1536, v51"); E("v_lshrrev_b32 v53, 6, v50"); E("v_lshl_add_u32 v139, v53, 4, v139")
        E(f"s_add_u32 s60, s{SB}, 512"); E("v_add_u32 v139, s60, v139")
        for r in range(2): E(f"v_mov_b64 {v(172+2*r,2)}, 0")
        E("v_bfe_u32 v140, v0, 2, 3"); E(f"v_mul_u32_u24 v140, {HC}, v140"); E("v_lshl_add_u32 v140, v51, 4, v140"); E(f"v_add_u32 v140, s{SHB_}, v140")
        E(f"s_mul_i32 s60, s{SJ}, 1536"); E(f"s_add_u32 s60, s60, s{SB}"); E("v_lshl_add_u32 v141, v0, 3, s60")
        E("s_waitcnt vmcnt(1)")
        for k in range(7): E(f"v_alignbit_b32 v{Oe+k}, v{Ee+k+1}, v{Ee+k}, 16")
        for k in range(1, 7): E(f"v_alignbit_b32 v{Oo+k}, v{Ee+k+1}, v{Ee+k}, 16")
        for k in range(1, 7): E(f"v_mov_b32 v{Eo+k}, v{Ee+k}")
        return L
    def tail_writes(self):
        I = self.I; lg = self.lg; HC = self.HC; L = []
        Ee, Eo, Oe, Oo = 160, 113, 122, 131
        def W(t, pre=None):
            def f():
                if pre: pre()
                I(t); lg.issue()
            L.append(f)
        for r in range(8):
            sft = 1 + r; k = sft >> 1
            base = ((Oe, Oo) if sft & 1 else (Ee, Eo))[k & 1]
            W(f"ds_write_b128 v138, {v(base+k,4)} offset:{r*HC}")
        W(f"ds_write_b128 v140, {v(172,4)}"); W(f"ds_write_b64 v141, {v(172,2)}")
        W(f"ds_write_b128 v139, {v(168,4)}", lambda: self.vm.wait(self.th))
        return L
    def tailp(self):
        a = self.a; I = self.I; vm = self.vm; lg = self.lg
        HB, HC, YB = self.HB, self.HC, self.YB
        SC, SJ, SB, SCH, SHB_, SWO, SCX = self.SC, self.SJ, self.SB, self.SCH, self.SHB_, self.SWO, self.SCX
        ACC = 192; FRS = [224, 240, 64]; RD_ = 224
        VL16, VA, VB, T, VP, VPA, VO, GR, VLW, XR = 6, 4, 5, 12, 7, 8, 9, 10, 11, 48
        OACC = 192
        NW, NCX, NL = len(self.WS_), len(self.CS_), self.o.get("nl", 0)
        wtok = self.wtok; ctok = {}; wslot = self.wslot; cslot = dict(enumerate(self.CS_))
        I(f"s_lshr_b32 s53, s56, 1"); I("s_lshl_b32 s53, s53, 10"); I(f"s_lshl_b32 s44, s{SW}, 7"); I("s_add_u32 s53, s53, s44"); I(f"s_add_u32 s53, s53, {FC_OFF}")
        I(f"v_and_b32 v{VPA}, 3, v0"); I(f"v_lshlrev_b32 v{VPA}, 2, v{VPA}")
        P0 = self.o.get("p0", 0)
        tc0 = self.poll_issue(VP, VPA, "s53") if P0 else self.tctx
        PUBN = self.o.get("pubn", 1)
        I(f"s_lshr_b32 s45, s{SHEAD}, 2"); I("s_lshl_b32 s45, s45, 7"); I(f"s_and_b32 s44, s{SHEAD}, 3"); I("s_lshl_b32 s44, s44, 2"); I("s_add_u32 s45, s45, s44")
        I(f"s_sub_u32 s44, 15, s{SIDX}"); I("s_lshl_b32 s44, s44, 10"); I("s_add_u32 s46, s44, s45"); I(f"s_add_u32 s46, s46, {FC_OFF}")
        I(f"s_lshl_b32 s44, s{SIDX}, 10"); I("s_add_u32 s47, s44, s45"); I(f"s_add_u32 s47, s47, {FC_OFF}")
        self.srd(RC, "out", 2*MB); self.srd(RD, "q", 2*MB)
        I(f"s_lshl_b32 s44, s{SF}, 2"); I(f"s_load_dword s55, s[{P['ssmD']}:{P['ssmD']+1}], s44")
        I(f"v_and_b32 v{T}, 31, v0"); I(f"v_lshrrev_b32 v{T+1}, 5, v0")
        I(f"v_and_b32 v{T+2}, 7, v0"); I(f"v_mul_u32_u24 v{VA}, {HC}, v{T+2}")
        I(f"v_bfe_u32 v{T+2}, v0, 3, 2"); I(f"v_sub_u32 v{T+2}, v{T+2}, v{T+1}"); I(f"v_lshl_add_u32 v{VA}, v{T+2}, 4, v{VA}")
        I(f"s_lshl_b32 s43, s{SJ}, 9"); I(f"s_add_u32 s43, s43, s{SHB_}"); I("s_add_u32 s43, s43, 32"); I(f"v_add_u32 v{VA}, s43, v{VA}")
        I(f"s_lshl_b32 s43, s{SJ}, 7"); I(f"s_sub_u32 s43, s{SB}, s43"); I("s_add_u32 s43, s43, 400")
        I(f"v_lshl_add_u32 v{VB}, v{T}, 4, s43"); I(f"v_mul_u32_u24 v{T+2}, 1536, v{T+1}"); I(f"v_add_u32 v{VB}, v{VB}, v{T+2}")
        I(f"s_lshl_b32 s51, s{SW}, 13"); I(f"v_add_u32 v{VLW}, s51, v{VL16}")
        I("s_waitcnt lgkmcnt(0)"); lg.mark_all_done(); self.barrier()
        self.stamp(5)
        def cload(i):
            r = cslot[i]
            I(f"s_add_u32 s62, s{SCX}, {(i//4)*4096}"); I("s_add_u32 s63, s62, 0x40000")
            for st in range(2):
                I(f"buffer_load_dwordx4 {v(r+4*st,4)}, v{VL16}, s[{RWS}:{RWS+3}], s{62+st} offen offset:{(i%4)*1024}{self.ld}"); ctok[i] = vm.issue()
        ltok = {}
        def lstage(j):
            I(f"s_add_u32 m0, s51, {j*2048}"); I(f"s_add_u32 s61, s{SWO}, {(NW+j)*2048}")
            for mt in range(2):
                I(f"buffer_load_dwordx4 v{VL16}, s[{RWS}:{RWS+3}], s61 offen offset:{mt*1024}{self.ld} lds"); ltok[j] = vm.issue()
        def early(lo, hi, level):
            le = a.label("NE")
            I(f"s_cmp_lg_u32 s50, {level}"); I(f"s_cbranch_scc1 {le}")
            sv = self.save()
            for i in range(lo, hi): cload(i)
            self.restore(sv); I(f"s_mov_b32 s50, {level+1}")
            a.L(le)
        def seen():
            I(f"v_and_b32 v{VP}, 1, v{VP}"); I(f"v_cmp_ne_u32 vcc, 1, v{VP}"); I("s_cmp_eq_u64 vcc, 0"); I("s_cselect_b32 s52, 1, 0"); I("s_max_u32 s50, s50, s52")
        I("s_mov_b32 s50, 0")
        wl = [lambda i=i: self.wload(i) for i in range(NW) if i not in wtok] + [lambda j=j: lstage(j) for j in range(NL)]
        steps = [(dd, ks) for dd in range(8) for ks in range(2)]
        toks = {}
        def reads(n):
            dd, ks = steps[n]; b = FRS[n % 3]
            def r(k, reg, addr, off):
                def f():
                    I(f"ds_read_b128 {v(reg,4)}, v{addr} offset:{off}"); toks[(n, k)] = lg.issue()
                return f
            return [r(0, b, VA, 64*dd + 32*(1-ks)), r(1, b+4, VB, ks*3072 + (7-dd)*16),
                    r(2, b+8, VB, ks*3072 + (7-dd)*16 + 512), r(3, b+12, VA, 64*dd + 32*(1-ks) + 2048)]
        for n in range(2):
            for f in reads(n): f()
        for n in range(16):
            b = FRS[n % 3]; L = reads(n+2) if n + 2 < 16 else []
            c0 = "0" if n == 0 else v(ACC,16); c1 = "0" if n == 0 else v(ACC+16,16)
            lg.wait(toks[(n,1)]); I(f"{MFMA} {v(ACC,16)}, {v(b,4)}, {v(b+4,4)}, {c0}")
            for f in L[0:2]: f()
            lg.wait(toks[(n,2)]); I(f"{MFMA} {v(ACC+16,16)}, {v(b,4)}, {v(b+8,4)}, {c1}")
            for f in L[2:3]: f()
            lg.wait(toks[(n,3)]); I(f"{MFMA} {v(ACC+16,16)}, {v(b+12,4)}, {v(b+4,4)}, {v(ACC+16,16)}")
            for f in L[3:4]: f()
            if n == PUBN:
                vm.wait(tc0); self.barrier(); self.publish(46); self.publish(47)
                if P0: seen()
            if n >= PUBN and n < 14:
                for _ in range(-(-len(wl) // (14 - n))): wl.pop(0)()
            if n == self.o.get("p1", 12): tc1 = self.poll_issue(VP, VPA, "s53")
            if n == 14 and P0: early(0, NCX - 2, 1)
        assert not wl
        I(f"s_add_u32 s43, s51, {HB}"); I(f"v_add_u32 v{T+2}, s43, v{VL16}")
        self.barrier()
        for i in range(8):
            I(f"ds_write_b128 v{T+2}, {v(ACC+4*i,4)} offset:{1024*i}"); lg.issue()
        I(f"s_lshl_b32 s43, s{SC}, 15"); I(f"s_lshl_b32 s44, s{SJ}, 11"); I("s_add_u32 s43, s43, s44"); I(f"s_add_u32 s43, s43, {HB}"); I(f"v_add_u32 v{T+2}, s43, v{VL16}")
        I(f"s_and_b32 s43, s{SJ}, 1"); I("s_mul_i32 s44, s43, 3072"); I(f"s_lshr_b32 s45, s{SJ}, 1"); I("s_lshl_b32 s41, s45, 9")
        I("s_add_u32 s44, s44, s41"); I(f"s_add_u32 s44, s44, s{SB}"); I("s_add_u32 s44, s44, 520")
        I(f"v_lshl_add_u32 v{T+3}, v{T}, 4, s44"); I(f"v_lshlrev_b32 v{VA}, 3, v{T+1}"); I(f"v_sub_u32 v{T+3}, v{T+3}, v{VA}")
        I(f"v_lshlrev_b32 v{VB}, 6, v{T}"); I(f"v_lshl_add_u32 v{VB}, v{T+1}, 4, v{VB}")
        I("s_lshl_b32 s45, s45, 11"); I("s_lshl_b32 s43, s43, 5"); I("s_add_u32 s45, s45, s43"); I(f"s_lshl_b32 s43, s{SC}, 12"); I("s_add_u32 s45, s45, s43")
        I(f"s_add_u32 s45, s45, {YB}"); I(f"v_add_u32 v{VB}, s45, v{VB}")
        I("s_lshl_b32 s43, s55, 16"); I("s_and_b32 s44, s55, 0xffff0000"); I(f"s_cmp_eq_u32 s{SC}, 0"); I("s_cselect_b32 s55, s43, s44")
        lg.wait(lg.issued); self.barrier()
        self.stamp(12)
        for p in range(4):
            for gq in range(2):
                I(f"ds_read_b128 {v(RD_+8*p+4*gq,4)}, v{T+2} offset:{8192*p+1024*gq}"); lg.issue()
        for gq in range(2):
            I(f"ds_read_b64 {v(ACC+2*gq,2)}, v{T+3} offset:{1536*gq}"); lg.issue()
        lk = a.label("SK"); I("s_cmp_lg_u32 s50, 0"); I(f"s_cbranch_scc1 {lk}")
        sv = self.save(); vm.wait(tc1); seen(); self.restore(sv); early(0, NCX - 2, 1)
        a.L(lk)
        early(NCX - 2, NCX, 2)
        lg.wait(lg.issued)
        for i in range(0, 8, 2):
            I(f"v_pk_add_f32 {v(RD_+i,2)}, {v(RD_+i,2)}, {v(RD_+8+i,2)}"); I(f"v_pk_add_f32 {v(RD_+16+i,2)}, {v(RD_+16+i,2)}, {v(RD_+24+i,2)}")
        for i in range(0, 8, 2): I(f"v_pk_add_f32 {v(RD_+i,2)}, {v(RD_+i,2)}, {v(RD_+16+i,2)}")
        for gq in range(2):
            for r in range(4):
                srcr = ACC + 2*gq + (1 - (r >> 1))
                I(f"v_lshlrev_b32 v{ACC+8}, 16, v{srcr}" if r & 1 else f"v_and_b32 v{ACC+8}, 0xffff0000, v{srcr}")
                I(f"v_fma_f32 v{RD_+4*gq+r}, v{ACC+8}, s55, v{RD_+4*gq+r}")
        for i in range(4): I(f"v_cvt_pk_bf16_f32 v{ACC+12+i}, v{RD_+2*i}, v{RD_+2*i+1}")
        I(f"v_permlane32_swap_b32 v{ACC+12}, v{ACC+14}"); I(f"v_permlane32_swap_b32 v{ACC+13}, v{ACC+15}")
        I(f"ds_write_b128 v{VB}, {v(ACC+12,4)}"); lg.issue()
        lg.wait(lg.issued); self.barrier()
        ly = a.label("NY")
        I(f"s_cmp_lg_u32 s{SW}, 0"); I(f"s_cbranch_scc1 {ly}")
        I(f"v_add_u32 v{T}, {YB}, v{VL16}")
        for i in range(8): I(f"ds_read_b128 {v(RD_+4*i,4)}, v{T} offset:{1024*i}")
        I(f"s_lshl_b32 s44, s{SF}, 13"); I(f"s_add_u32 s44, s44, {YT_OFF}"); I("s_add_u32 s45, s44, 4096")
        I("s_waitcnt lgkmcnt(0)")
        for i in range(8): I(f"buffer_store_dwordx4 {v(RD_+4*i,4)}, v{VL16}, s[{RWS}:{RWS+3}], s{44+(i>>2)} offen offset:{1024*(i&3)}{self.st}")
        a.L(ly)
        ll = a.label("NL")
        I("s_cmp_eq_u32 s50, 3"); I(f"s_cbranch_scc1 {ll}")
        self.poll_check(VP, VPA, "s53", 1)
        for i in range(NCX): cload(i)
        a.L(ll)
        self.stamp(6)
        YT = self.XB
        lrd = {}; ypub = False; ymark = vm.issued; free = []; fresh = []; nw = NW; nw2 = NW + NL; nc = NCX
        for i in range(32):
            if i % 4 == 0 and self.o.get("ostamp"): self.stamp(17 + i // 4)
            if i == 14:
                I(f"s_lshl_b32 s53, s57, 7"); I(f"s_lshl_b32 s42, s{SW}, 4"); I("s_add_u32 s53, s53, s42"); I(f"s_add_u32 s53, s53, {FY_OFF}")
                tf = self.poll_issue(VP, VPA, "s53")
            if i == 24:
                vm.wait(tf); self.poll_check(VP, VPA, "s53", 1)
                I(f"v_lshrrev_b32 v{T}, 3, v0"); I(f"v_and_b32 v{T+1}, 7, v0"); I(f"v_lshlrev_b32 v{T+1}, 4, v{T+1}")
                I(f"v_lshl_add_u32 v{T}, v{T}, 12, v{T+1}")
                I(f"s_add_u32 m0, s{SWK}, {YT}")
                I(f"s_lshl_b32 s44, s57, 18"); I(f"s_lshl_b32 s45, s{SW}, 15"); I("s_add_u32 s44, s44, s45")
                I(f"s_lshl_b32 s45, s56, 7"); I("s_add_u32 s44, s44, s45"); I(f"s_add_u32 s44, s44, {YT_OFF}")
                I(f"buffer_load_dwordx4 v{T}, s[{RWS}:{RWS+3}], s44 offen{self.ld} lds"); vm.issue()
                I(f"v_and_b32 v{T+1}, 15, v0"); I(f"s_lshr_b32 s48, s{SW}, 1"); I("s_lshl_b32 s48, s48, 4")
                I(f"s_lshl_b32 s45, s56, 6"); I("s_add_u32 s45, s45, s48"); I(f"v_add_u32 v{T+1}, s45, v{T+1}")
                I(f"v_lshlrev_b32 v{T+2}, 2, v{T+1}"); I(f"s_mov_b32 s45, {G_OFF}")
                I(f"buffer_load_dword v{GR}, v{T+2}, s[{RWS}:{RWS+3}], s45 offen{self.ld}"); vm.issue()
                I(f"v_lshrrev_b32 v{T+2}, 4, v0"); I(f"v_lshlrev_b32 v{T+2}, 4, v{T+2}"); I(f"v_lshl_add_u32 v{VO}, v{T+1}, 10, v{T+2}")
                I(f"s_and_b32 s49, s{SW}, 1"); I("s_lshl_b32 s49, s49, 6"); I(f"s_lshl_b32 s45, s57, 7"); I("s_add_u32 s49, s49, s45")
                I(f"buffer_load_dwordx4 {v(XR,4)}, v{VO}, s[{RD}:{RD+3}], s49 offen"); vm.issue()
            vm.wait(max(ctok[i], wtok.get(i, 0)))
            if i in lrd: lg.wait(lrd[i])
            if not ypub and vm.done > ymark:
                ypub = True
                I(f"s_lshl_b32 s44, s{SF}, 2"); I(f"s_add_u32 s44, s44, {FY_OFF}"); self.publish(44, 3)
            for mt in range(2):
                for st in range(2):
                    d = v(OACC + 16*(2*mt+st), 16)
                    I(f"{MFMA} {d}, {v(wslot[i]+4*mt,4)}, {v(cslot[i]+4*st,4)}, {'0' if i == 0 else d}")
            lagged, fresh = fresh, [wslot[i], cslot[i]]
            free += fresh
            while free:
                if nw < NW + NL and nw - i <= 3:
                    j = nw - NW; assert vm.done >= ltok[j]
                    r = free.pop(0); wslot[nw] = r
                    I("s_nop 3")
                    for mt in range(2):
                        I(f"ds_read_b128 {v(r+4*mt,4)}, v{VLW} offset:{j*2048+mt*1024}"); lrd[nw] = lg.issue()
                    nw += 1
                elif nc < 32 and (nc <= nw2 or nw2 >= 32):
                    cslot[nc] = free.pop(0); cload(nc); nc += 1
                elif nw2 < 32:
                    wslot[nw2] = free.pop(0); self.wload(nw2); nw2 += 1
                else: break
        self.stamp(7)
        I(f"v_and_b32 v{T}, 31, v0"); I(f"v_lshrrev_b32 v{T+1}, 5, v0"); I(f"v_and_b32 v{T+2}, 15, v0")
        I(f"v_lshlrev_b32 v{T+1}, 1, v{T+1}")
        I(f"v_xor_b32 v{T+1}, v{T+1}, v{T+2}"); I(f"v_lshlrev_b32 v{T+1}, 4, v{T+1}"); I(f"v_lshl_add_u32 v{T}, v{T}, 8, v{T+1}")
        I(f"v_add_u32 v{T}, s51, v{T}")
        for mt in range(2):
            for gq in range(4):
                I(f"v_xor_b32 v{T+1}, {(4*gq+mt)*16}, v{T}"); I(f"v_add_u32 v{T+3}, 0x10000, v{T+1}")
                for st in range(2):
                    I(f"ds_write_b128 v{T+1+2*st}, {v(OACC+16*(2*mt+st)+4*gq,4)}"); lg.issue()
        I(f"v_lshrrev_b32 v{T}, 4, v0"); I(f"s_and_b32 s41, s{SW}, 1"); I("s_lshl_b32 s42, s41, 3")
        I(f"v_lshl_add_u32 v{T+1}, v{T}, 1, s42"); I(f"v_xor_b32 v{T+1}, v{T+1}, v{T+2}"); I(f"v_lshlrev_b32 v{T+1}, 4, v{T+1}")
        I("s_and_b32 s43, s48, 16"); I(f"v_add_u32 v{T+3}, s43, v{T+2}"); I(f"v_lshl_add_u32 v24, v{T+3}, 8, v{T+1}")
        I("s_lshr_b32 s43, s48, 5"); I("s_lshl_b32 s43, s43, 16"); I("v_add_u32 v24, s43, v24"); I("v_xor_b32 v25, 16, v24")
        I("s_lshl_b32 s42, s41, 5"); I(f"v_lshl_add_u32 v{T}, v{T}, 3, s42"); I(f"v_bfe_u32 v{T+1}, v0, 2, 2")
        I(f"v_add_u32 v{T}, v{T}, v{T+1}"); I(f"v_lshlrev_b32 v{T}, 7, v{T}"); I(f"v_and_b32 v{T+1}, 3, v0")
        I(f"v_lshl_add_u32 v{T}, v{T+1}, 3, v{T}"); I("s_lshl_b32 s42, s48, 1"); I(f"s_add_u32 s42, s42, {YT}"); I(f"v_add_u32 v28, s42, v{T}")
        self.sync_all()
        CX = 128; tk = []
        I(f"ds_read_b64_tr_b16 {v(100,2)}, v28"); lg.issue()
        I(f"ds_read_b64_tr_b16 {v(102,2)}, v28 offset:512"); ty2 = lg.issue()
        for p in range(8):
            for hh in range(2):
                I(f"ds_read_b128 {v(CX+8*p+4*hh,4)}, v{24+hh} offset:{8192*p}"); lg.issue()
            tk.append(lg.issued)
            if p == 5:
                lg.wait(ty2)
                for e in range(8):
                    if e & 1: I(f"v_and_b32 v104, 0xffff0000, v{XR+(e>>1)}"); I(f"v_and_b32 v105, 0xffff0000, v{100+(e>>1)}")
                    else: I(f"v_lshlrev_b32 v104, 16, v{XR+(e>>1)}"); I(f"v_lshlrev_b32 v105, 16, v{100+(e>>1)}")
                    I(f"v_mul_f32 v{112+e}, v104, v105"); I(f"v_mul_f32 v{112+e}, v{112+e}, v{GR}")
                I(f"v_sub_f32 v{GR}, 1.0, v{GR}")
        for p in range(1, 8):
            lg.wait(tk[p])
            for e in range(0, 8, 2): I(f"v_pk_add_f32 {v(CX+e,2)}, {v(CX+e,2)}, {v(CX+8*p+e,2)}")
        for e in range(8): I(f"v_fmac_f32 v{112+e}, v{CX+4*(e&1)+(e>>1)}, v{GR}")
        for e in range(4): I(f"v_cvt_pk_bf16_f32 v{108+e}, v{112+2*e}, v{112+2*e+1}")
        I(f"buffer_store_dwordx4 {v(108,4)}, v{VO}, s[{RC}:{RC+3}], s49 offen{' sc1' if not self.o.get('outpl') else ' nt' if self.o.get('outnt') else ''}"); vm.issue()
        self.stamp(16)
        if self.o.get("echo"):
            lp = a.label("EC")
            I("s_sub_u32 s100, s100, s96")
            if self.o.get("cyc"): I("s_lshr_b32 s100, s100, 4")
            I("s_memrealtime s[96:97]"); I("s_waitcnt lgkmcnt(0)")
            a.L(lp)
            I("s_memrealtime s[98:99]"); I("s_waitcnt lgkmcnt(0)"); I("s_sub_u32 s98, s98, s96"); I("s_cmp_lt_u32 s98, s100"); I(f"s_cbranch_scc1 {lp}")
        if self.o.get("dbgout") is not None:
            l = a.label("DB")
            I(f"s_cmp_lg_u32 s2, {self.o['dbgout']}"); I(f"s_cbranch_scc1 {l}"); I(f"s_cmp_lg_u32 s{SW}, 0"); I(f"s_cbranch_scc1 {l}")
            I("s_waitcnt vmcnt(0)")
            order = [0, 1, 2, 3, 8, 10, 11, 4, 5, 12, 6, 7, 16]
            I("v_mov_b32 v20, 0")
            for j, i in enumerate(order):
                I(f"s_mov_b32 s44, {4*i}"); I(f"v_writelane_b32 v20, s44, {j}")
            I(f"s_lshl_b32 s44, s2, 11"); I(f"s_add_u32 s44, s44, {STAMP_OFF}")
            I(f"buffer_load_dword v21, v20, s[{RWS}:{RWS+3}], s44 offen sc1"); I("s_waitcnt vmcnt(0)")
            I("v_readfirstlane_b32 s45, v21"); I("v_subrev_u32 v21, s45, v21")
            self.srd(RDBG, "dbg", 64); I("v_lshlrev_b32 v22, 2, v0")
            I(f"buffer_store_dword v21, v22, s[{RDBG}:{RDBG+3}], 0 offen")
            a.L(l)

def build(opts):
    g = G(opts); k = NAME + "_kernel"
    g.begin(k); g.a.T("; MARK p"); g.proj(); g.a.T("; MARK a"); g.attn(); g.a.T("; MARK t"); g.tailp(); g.end(); g.a.T("; MARK a"); g.attn_rare(); g.a.T("; MARK t"); g.a.L("CODE_END"); g.a.I("s_endpgm")
    n = g.a.fix_hazards()
    txt = "; @launch grid=(256,1,1) block=(512,1,1) lds=163840\n"
    txt += '.amdgcn_target "amdgcn-amd-amdhsa--gfx950"\n.text\n' + g.a.text()
    txt += f""".section .rodata,"a"
.p2align 6
.amdhsa_kernel {k}
  .amdhsa_next_free_vgpr 256
  .amdhsa_next_free_sgpr 102
  .amdhsa_accum_offset 256
  .amdhsa_group_segment_fixed_size 0
  .amdhsa_kernarg_size 128
  .amdhsa_user_sgpr_count 2
  .amdhsa_user_sgpr_kernarg_segment_ptr 1
  .amdhsa_system_sgpr_workgroup_id_x 1
.end_amdhsa_kernel
"""
    print(f"instructions {sum(1 for it in g.a.items if it[0] == 'i')}, nops inserted {n}", file=sys.stderr)
    return txt

if __name__ == "__main__":
    opts = {}
    for x in sys.argv[2:]:
        if "=" in x: k_, v_ = x.split("="); opts[k_] = int(v_)
        else: opts[x] = True
    open(sys.argv[1], "w").write(build(opts))
```

```python
import sys, math, struct
sys.path.insert(0, "gen")
from asmlib import *

NAME = "gated_mix__ssm_conv_h3__compressed_kv_cla__prompt"
MB = 1 << 20
KV_OFF, Q_OFF, CTX_OFF, KVT_OFF, YT_OFF, G_OFF = 0, 32*MB, 48*MB, 64*MB, 66*MB, 68*MB
XC_OFF = 40*MB
WOT_OFF = 32*MB
FLG_OFF = 68*MB + 65536
FK_OFF, FY_OFF, FC_OFF = FLG_OFF, FLG_OFF + 4096, FLG_OFF + 8192
STAMP_OFF = 69*MB
WS_SIZE = 70*MB
P = dict(q=64, k=66, v=68, shift=70, ssmk=72, ssmD=74, bx=76, ckv=78, wq=80, wuk=82, wuv=84, wo=86, gate=88, out=90, dbg=92, ws=94)
SW, SHEAD, SIDX, SWK, SF = 3, 4, 5, 6, 7
RA, RB, RC, RWS, RD, RE, RT, RDBG = 8, 12, 16, 20, 24, 28, 56, 60
MFMA = "v_mfma_f32_32x32x16_bf16"
LOG2E = 1.4426950408889634
F_KV, F_CA, F_CB, F_Y = 1, 2, 4, 8
def f2u(x): return "0x%08x" % struct.unpack("<I", struct.pack("<f", x))[0]
def rep4(b): return b * 0x01010101

class G:
    def __init__(self, opts):
        self.a = Asm(); self.o = opts
        self.vm = Cnt(self.a, "vmcnt", 63); self.lg = Cnt(self.a, "lgkmcnt", 15)
        self.st = "" if opts.get("plainst") else (" sc1 nt" if opts.get("ntst") else " sc1"); self.ld = "" if opts.get("plainld") else " sc1"
    def I(self, t): self.a.I(t)
    def srd(self, r, ptr, nbytes):
        I = self.I
        I(f"s_mov_b32 s{r}, s{P[ptr]}"); I(f"s_mov_b32 s{r+1}, s{P[ptr]+1}")
        I(f"s_mov_b32 s{r+2}, {nbytes}"); I(f"s_mov_b32 s{r+3}, 0x00020000")
    def save(self): return (self.vm.issued, self.vm.done, self.lg.issued, self.lg.done)
    def restore(self, s_): self.vm.issued, self.vm.done, self.lg.issued, self.lg.done = s_
    def stream(self, mf, fills):
        n = len(mf); slots = [[] for _ in range(n + 1)]
        for (s0, e0, cl) in fills:
            m = e0 - s0
            for j, c in enumerate(cl): slots[s0 + 1 + (j * m) // len(cl)].append(c)
        for c in slots[0]: c()
        for i in range(n):
            mf[i]()
            for c in slots[i+1]: c()
    def stamp(self, i, dyn=None):
        if self.o.get("echo") == i:
            self.I("s_memtime s[100:101]" if self.o.get("cyc") else "s_memrealtime s[100:101]"); self.I("s_waitcnt lgkmcnt(0)")
        if not self.o.get("stamp"): return
        I = self.I
        I("s_memrealtime s[96:97]"); I("s_memtime s[100:101]")
        I("s_lshl_b32 s98, s2, 3"); I(f"s_add_u32 s98, s98, s{SW}"); I("s_lshl_b32 s98, s98, 8")
        I(f"s_add_u32 s98, s98, {STAMP_OFF + 4*i}")
        if dyn is not None:
            I(f"s_lshl_b32 s99, s{dyn}, 4"); I("s_add_u32 s98, s98, s99")
        I("s_waitcnt lgkmcnt(0)")
        I("v_mov_b32 v2, s96"); I("v_mov_b32 v3, 0")
        I(f"buffer_store_dword v2, v3, s[{RWS}:{RWS+3}], s98 offen")
        I("v_mov_b32 v2, s100")
        I(f"buffer_store_dword v2, v3, s[{RWS}:{RWS+3}], s98 offen offset:128")
    OOB = 0x40000000
    def publish(self, soff, val=1, srd=RWS, byte=False, idx=None):
        I = self.I
        self.oob_sel()
        if idx is not None: I(f"s_and_b32 s98, s{SIDX}, 3"); I(f"s_cmp_eq_u32 s98, {idx}"); I(f"s_cselect_b32 s99, s99, {self.OOB}")
        I(f"v_mov_b32 v2, {val}"); I("v_mov_b32 v3, s99")
        I(f"buffer_store_{'byte' if byte else 'dword'} v2, v3, s[{srd}:{srd+3}], s{soff} offen sc1"); self.vm.issue()
    def oob_sel(self):
        self.I(f"s_cmp_eq_u32 s{SW}, 0"); self.I(f"s_cselect_b32 s99, 0, {self.OOB}")
    def poll_issue(self, vd, vaddr, soff, srd=RWS):
        self.I(f"buffer_load_dword v{vd}, v{vaddr}, s[{srd}:{srd+3}], {soff} offen sc1"); return self.vm.issue()
    def poll_check(self, vd, vaddr, soff, want, srd=RWS):
        a = self.a; I = self.I
        l = a.label("PCK"); lp = a.label("POLL")
        I(f"s_mov_b32 s98, {want}"); I("s_mov_b32 s99, 20000")
        a.L(lp)
        I(f"v_and_b32 v{vd}, s98, v{vd}"); I(f"v_cmp_ne_u32 vcc, s98, v{vd}"); I(f"s_cbranch_vccz {l}")
        I("s_sleep 2")
        I(f"buffer_load_dword v{vd}, v{vaddr}, s[{srd}:{srd+3}], {soff} offen sc1")
        I("s_sub_u32 s99, s99, 1"); I("s_cmp_lg_u32 s99, 0"); I("s_waitcnt vmcnt(0)"); I(f"s_cbranch_scc1 {lp}")
        a.L(l)
    def barrier(self): self.I("s_barrier")
    def sync_all(self):
        self.I("s_waitcnt vmcnt(0) lgkmcnt(0)"); self.vm.mark_all_done(); self.lg.mark_all_done(); self.barrier()

    def begin(self, kname):
        a = self.a; I = self.I
        a.T(f".globl {kname}\n.p2align 8\n.type {kname},@function"); a.L(kname)
        self.endl = a.label("END")
        if self.o.get("stamp"): I("s_memrealtime s[30:31]")
        if self.o.get("echo"): I("s_memtime s[96:97]" if self.o.get("cyc") else "s_memrealtime s[96:97]")
        I("s_load_dwordx16 s[64:79], s[0:1], 0"); I("s_load_dwordx16 s[80:95], s[0:1], 64")
        I("s_cmp_ge_u32 s2, 256"); I(f"s_cbranch_scc1 {self.endl}")
        I("v_lshrrev_b32 v1, 6, v0"); I("v_and_b32 v0, 63, v0"); I(f"v_readfirstlane_b32 s{SW}, v1")
        I("s_and_b32 s7, s2, 7"); I("s_lshl_b32 s7, s7, 2")
        I(f"s_lshr_b32 s{SIDX}, s2, 3"); I(f"s_lshr_b32 s{SHEAD}, s{SIDX}, 3"); I(f"s_add_u32 s{SHEAD}, s{SHEAD}, s7")
        I(f"s_and_b32 s{SIDX}, s{SIDX}, 7"); I(f"s_lshl_b32 s{SWK}, s{SW}, 10")
        I(f"s_lshl_b32 s{SF}, s{SHEAD}, 3"); I(f"s_add_u32 s{SF}, s{SF}, s{SIDX}")
    def end(self):
        self.a.L(self.endl); self.I("s_endpgm")

    def proj(self):
        a = self.a; I = self.I; vm = self.vm; lg = self.lg
        QA_LDS = 65536
        ACC = {"K": 64, "V": 128, "Q": 64}; KP = 192
        FX = [16, 40]; FW = [24, 48]
        VXA = 4; VWA = 8; VOX, VOW = 10, 11; VST = 12; VXH = 224; T = 232
        NB = 0; XC = self.o.get("xc", 1)
        ST = [("KV", c) for c in range(NB)] + [("K", c) for c in range(NB, 8)] + [("V", c) for c in range(7, NB - 1, -1)] + [("Q", c) for c in range(8)]
        NS = len(ST); TK = 7; TV = NS - 9; TQ = NS - 8
        I("v_lshrrev_b32 v13, 3, v0"); I(f"s_lshl_b32 s40, s{SW}, 3"); I("v_add_u32 v13, s40, v13"); I("v_lshlrev_b32 v13, 10, v13")
        I("v_lshrrev_b32 v14, 4, v0"); I(f"s_and_b32 s40, s{SW}, 1"); I("s_lshl_b32 s40, s40, 2"); I("v_add_u32 v15, s40, v14")
        I("v_and_b32 v3, 7, v0"); I("v_xor_b32 v15, v15, v3"); I(f"v_lshl_add_u32 v{VOX}, v15, 4, v13")
        I(f"s_lshl_b32 s40, s{SW}, 2"); I("v_add_u32 v13, s40, v14"); I("v_lshlrev_b32 v13, 13, v13")
        I("v_lshlrev_b32 v15, 2, v14"); I("v_and_b32 v3, 15, v0"); I("v_xor_b32 v15, v15, v3")
        I("v_lshl_add_u32 v13, v15, 4, v13"); I(f"s_lshl_b32 s40, s{SHEAD}, 8"); I(f"v_add_u32 v{VOW}, s40, v13")
        I(f"v_lshlrev_b32 v{VST}, 4, v0")
        I(f"s_lshl_b32 s44, s{SIDX}, 18")
        for i in range(1, 4): I(f"s_add_u32 s{44+i}, s44, {65536*i}")
        ROT = self.o.get("rot", 2)
        if ROT == 0: I("s_mov_b32 s33, 0")
        elif ROT == 1: I(f"s_mov_b32 s33, s{SIDX}")
        elif ROT == 2: I(f"s_lshr_b32 s33, s{SHEAD}, 2"); I(f"s_add_u32 s33, s33, s{SIDX}")
        elif ROT == 3: I(f"s_lshr_b32 s33, s{SHEAD}, 2"); I(f"s_add_u32 s33, s33, s{SIDX}"); I(f"s_lshl_b32 s34, s{SHEAD}, 1"); I("s_add_u32 s33, s33, s34")
        elif ROT == 4: I(f"s_lshr_b32 s33, s{SHEAD}, 2")
        I("s_waitcnt lgkmcnt(0)")
        if self.o.get("stamp"): I("s_memrealtime s[28:29]")
        self.srd(RA, "ckv", 2*MB); self.srd(RB, "wuk", 4*MB); self.srd(RC, "wuv", 4*MB)
        def xbase(t):
            k, c = ST[t]
            return (32768, 131072, 0)[((16 + c) if k == "Q" else (15 - c + NB)) % 3]
        units = [(t, m) for t in range(NS) for m in ST[t][0]]
        uidx = {u: i for i, u in enumerate(units)}
        def wbase(t, m): return 65536 + (uidx[(t, m)] % 4)*16384
        items = []
        lastx = {}
        for t in range(NS):
            k, c = ST[t]
            for m in k:
                u = uidx[(t, m)]
                def w(i, t=t, m=m, c=c):
                    if i == 0: I(f"s_add_u32 s34, s33, {c}"); I("s_and_b32 s34, s34, 7"); I("s_lshl_b32 s34, s34, 19")
                    I(f"s_add_u32 m0, s{SWK}, {wbase(t, m) + i*8192}"); I(f"s_add_u32 s41, s34, {i*262144}")
                    r = {"K": RB, "V": RC, "Q": RE}[m]
                    I(f"buffer_load_dwordx4 v{VOW}, s[{r}:{r+3}], s41 offen lds"); dtok[t] = vm.issue()
                items.append((t, units[u-4][0] if u >= 4 else -1, [lambda i=i, w=w: w(i) for i in range(2)]))
            key = ("Q" if k == "Q" else "C", c); prev = lastx.get(xbase(t))
            if prev is None or prev[1] != key:
                def x(i, t=t, k=k, c=c):
                    if i == 0: I(f"s_add_u32 s35, s33, {c}"); I("s_and_b32 s35, s35, 7"); I("s_lshl_b32 s35, s35, 7")
                    I(f"s_add_u32 m0, s{SWK}, {xbase(t) + i*8192}"); I(f"s_add_u32 s41, s{(48 if k == 'Q' else 44)+i}, s35")
                    r = (RWS if XC else RD) if k == "Q" else RA
                    I(f"buffer_load_dwordx4 v{VOX}, s[{r}:{r+3}], s41 offen{self.ld if (XC and k == 'Q') else ''} lds"); dtok[t] = vm.issue()
                items.append((t, prev[0] if prev else -1, [lambda i=i, x=x: x(i) for i in range(4)]))
            lastx[xbase(t)] = (t, key)
        dtok = {}
        def take(done, upto=99):
            out = []
            for it in list(items):
                if it[1] <= done and it[0] <= upto: out += it[2]; items.remove(it)
            return out
        for f in take(-1, 0): f()
        self.srd(RWS, "ws", WS_SIZE); self.srd(RDBG, "dbg", 256)
        self.stamp(31)
        if self.o.get("stamp"):
            I("v_mov_b32 v2, s30"); I("s_sub_u32 s98, s98, 124"); I(f"buffer_store_dword v2, v3, s[{RWS}:{RWS+3}], s98 offen")
            I("v_mov_b32 v2, s28"); I(f"buffer_store_dword v2, v3, s[{RWS}:{RWS+3}], s98 offen offset:120")
        I(f"s_lshl_b32 s48, s{SIDX}, 17"); I("s_add_u32 s49, s48, 65536")
        I(f"s_sub_u32 s50, 15, s{SIDX}"); I("s_lshl_b32 s50, s50, 17"); I("s_add_u32 s51, s50, 65536")
        if XC:
            for i in range(4): I(f"s_add_u32 s{48+i}, s{48+i}, {XC_OFF}")
        I(f"s_and_b32 s42, s{SW}, 3"); I("s_lshl_b32 s42, s42, 6"); I(f"s_lshr_b32 s43, s{SW}, 2"); I("s_lshl_b32 s43, s43, 1")
        I("v_and_b32 v13, 31, v0"); I("v_add_u32 v13, s42, v13")
        I("v_lshrrev_b32 v14, 1, v13"); I("v_and_b32 v14, 7, v14"); I("v_lshrrev_b32 v15, 5, v0")
        I("v_xor_b32 v14, v14, v15"); I("v_lshlrev_b32 v14, 4, v14"); I(f"v_lshl_add_u32 v{VXA}, v13, 7, v14")
        for k in range(1, 4): I(f"v_xor_b32 v{VXA+k}, {k<<5}, v{VXA}")
        for k in range(4): I(f"v_add_u32 v{VXH+k}, 0x20000, v{VXA+k}")
        I("v_bfe_u32 v13, v0, 2, 2"); I("v_lshl_add_u32 v14, v15, 3, v13"); I("v_lshlrev_b32 v14, 8, v14")
        I("v_bfe_u32 v15, v0, 4, 1"); I("v_lshl_add_u32 v14, v15, 5, v14")
        I("v_and_b32 v15, 3, v0"); I("v_lshl_add_u32 v14, v15, 3, v14"); I("v_add_u32 v14, 0x10000, v14")
        I("v_xor_b32 v13, s43, v13"); I(f"v_lshl_add_u32 v{VWA}, v13, 6, v14"); I(f"v_xor_b32 v{VWA+1}, 64, v{VWA}")
        I(f"s_lshl_b32 s54, s{SHEAD}, 4"); I(f"s_lshl_b32 s55, s{SIDX}, 1"); I("s_add_u32 s54, s54, s55")
        I(f"s_bfe_u32 s55, s{SW}, 0x10001"); I("s_add_u32 s54, s54, s55"); I("s_lshl_b32 s54, s54, 16")
        I(f"s_and_b32 s55, s{SW}, 1"); I("s_lshl_b32 s55, s55, 14"); I("s_add_u32 s54, s54, s55")
        I("s_lshl_b32 s55, s43, 10"); I("s_add_u32 s52, s54, s55"); I("s_add_u32 s52, s52, 0x8000")
        I("s_lshl_b32 s55, s43, 11"); I("s_add_u32 s54, s54, s55")
        XG = T; GW = T + 4; hl = {}
        def gate_loads():
            L = []
            def E(t): L.append(lambda: I(t))
            def V(t):
                def f(): I(t); hl["t"] = vm.issue()
                L.append(f)
            E(f"s_lshl_b32 s40, s{SHEAD}, 7"); E(f"s_lshl_b32 s39, s{SIDX}, 2"); E("s_add_u32 s40, s40, s39"); E(f"s_add_u32 s40, s40, {FK_OFF}")
            E(f"v_mov_b32 v13, s40")
            E(f"s_lshr_b32 s39, s{SHEAD}, 2"); E("s_lshl_b32 s39, s39, 7"); E(f"s_and_b32 s40, s{SHEAD}, 3"); E("s_lshl_b32 s40, s40, 2"); E("s_add_u32 s39, s39, s40")
            E(f"s_lshl_b32 s40, s{SIDX}, 10"); E("s_add_u32 s40, s40, s39"); E(f"s_add_u32 s40, s40, {FC_OFF}")
            E("v_writelane_b32 v13, s40, 1")
            E(f"s_sub_u32 s40, 15, s{SIDX}"); E("s_lshl_b32 s40, s40, 10"); E("s_add_u32 s40, s40, s39"); E(f"s_add_u32 s40, s40, {FC_OFF}")
            E("v_writelane_b32 v13, s40, 2")
            E(f"s_lshl_b32 s40, s{SF}, 2"); E(f"s_add_u32 s40, s40, {FY_OFF}"); E("v_writelane_b32 v13, s40, 3"); E("v_mov_b32 v14, 0")
            def oo(): self.oob_sel(); I("v_add_u32 v13, s99, v13")
            L.append(oo)
            V(f"buffer_store_dword v14, v13, s[{RWS}:{RWS+3}], 0 offen sc1")
            E("s_lshl_b32 s37, s2, 3"); E(f"s_add_u32 s37, s37, s{SW}"); E("s_lshl_b32 s38, s37, 10")
            L.append(lambda: self.srd(RD, "q", 2*MB)); L.append(lambda: self.srd(RE, "wq", 4*MB)); L.append(lambda: self.srd(RT, "gate", 1024))
            V(f"buffer_load_dwordx4 {v(XG,4)}, v{VST}, s[{RD}:{RD+3}], s38 offen")
            V(f"buffer_load_dwordx4 {v(GW,4)}, v{VST}, s[{RT}:{RT+3}], 0 offen")
            return L
        def gate_ops():
            L = []; E = lambda t: L.append(lambda: I(t)); Z = T + 8
            L.append(lambda: vm.wait(hl["t"]))
            def xs():
                I(f"s_add_u32 s38, s38, {XC_OFF}"); I(f"buffer_store_dwordx4 {v(XG,4)}, v{VST}, s[{RWS}:{RWS+3}], s38 offen{self.st}"); vm.issue()
            if XC: L.append(xs)
            E(f"v_dot2_f32_bf16 v{Z}, v{XG}, v{GW}, 0")
            for i in range(1, 4): E(f"v_dot2_f32_bf16 v{Z}, v{XG+i}, v{GW+i}, v{Z}")
            for m in ("quad_perm:[1,0,3,2] row_mask:0xf", "quad_perm:[2,3,0,1] row_mask:0xf", "row_half_mirror row_mask:0xf", "row_mirror row_mask:0xf",
                      "row_bcast:15 row_mask:0xa", "row_bcast:31 row_mask:0xc"):
                E(f"v_add_f32_dpp v{Z}, v{Z}, v{Z} {m} bank_mask:0xf")
            E(f"v_readlane_b32 s36, v{Z}, 63"); E(f"v_mov_b32 v{Z+1}, {f2u(-LOG2E)}"); E(f"v_mul_f32 v{Z}, s36, v{Z+1}")
            E(f"v_exp_f32 v{Z}, v{Z}"); E(f"v_add_f32 v{Z}, 1.0, v{Z}"); E(f"v_rcp_f32 v{Z}, v{Z}")
            E("s_lshl_b32 s38, s37, 2"); E(f"s_add_u32 s38, s38, {G_OFF}"); E(f"v_mov_b32 v{Z+1}, 0")
            def gs():
                I(f"buffer_store_dword v{Z}, v{Z+1}, s[{RWS}:{RWS+3}], s38 offen{self.st}"); vm.issue()
            L.append(gs)
            return L
        def reads(t, k):
            st = k & 1; toks = {}
            xb = xbase(t); va = VXA if xb < 65536 else VXH
            def rx(mt):
                I(f"ds_read_b128 {v(FX[st]+4*mt,4)}, v{va+k} offset:{(xb & 65535)+mt*4096}"); toks[("x",mt)] = lg.issue()
            def rw(j, dt, h):
                m = ST[t][0][j]
                I(f"ds_read_b64_tr_b16 {v(FW[st]+8*j+4*dt+2*h,2)}, v{VWA+dt} offset:{wbase(t, m)-65536+k*4096+h*1024}"); toks[("w",j,dt)] = lg.issue()
            L = [lambda: rx(0), lambda: rw(0,0,0), lambda: rw(0,0,1), lambda: rw(0,1,0), lambda: rw(0,1,1), lambda: rx(1)]
            if len(ST[t][0]) == 2: L += [lambda: rw(1,0,0), lambda: rw(1,0,1), lambda: rw(1,1,0), lambda: rw(1,1,1)]
            return L, toks
        seen = set()
        def mfs(t, k, toks):
            st = k & 1; L = []
            for j, m in enumerate(ST[t][0]):
                first = m not in seen; seen.add(m)
                for mt in range(2):
                    for dt in range(2):
                        def f(mt=mt, dt=dt, j=j, m=m, first=first):
                            lg.wait(max(toks[("x",mt)], toks[("w",j,dt)]))
                            d = v(ACC[m] + 16*(2*mt+dt), 16); X = v(FX[st]+4*mt,4); W = v(FW[st]+8*j+4*dt,4)
                            c = "0" if first else d
                            I(f"{MFMA} {d}, {X}, {W}, {c}" if m == "V" else f"{MFMA} {d}, {W}, {X}, {c}")
                        L.append(f)
            return L
        def kv_out(m):
            acc = ACC[m]; out = []
            for tile in range(4):
                rt, dt = tile >> 1, tile & 1; b = acc + 16*tile
                for half in range(2):
                    d = KP + 8*tile + 4*half if m == "K" else b + 4*half
                    pk = [lambda i=i, b=b, d=d, half=half: I(f"v_cvt_pk_bf16_f32 v{d+i}, v{b+8*half+2*i}, v{b+8*half+2*i+1}") for i in range(4)]
                    if m == "K": pk = [lambda i=i, b=b: I(f"v_mul_f32 v{b+i}, {f2u(LOG2E / math.sqrt(128.0))}, v{b+i}") for i in range(8*half, 8*half+8)] + pk
                    off = rt*8192 + (dt*2048 + half*1024 if m == "K" else half*4096 + dt*1024)
                    def st(d=d, off=off):
                        if self.o.get("nost"): return
                        I(f"s_add_u32 s41, s{54 if m == 'K' else 52}, {off}")
                        I(f"buffer_store_dwordx4 {v(d,4)}, v{VST}, s[{RWS}:{RWS+3}], s41 offen{self.st}"); vm.issue()
                    out.append((pk, st))
            return out
        side = {}; late = {}
        def spread(ops, t0, t1, dst=side, ks=(0, 1, 2)):
            sl = [(t, k) for t in range(t0, t1) for k in ks]; n = len(ops)
            for j, key in enumerate(sl): dst.setdefault(key, []).extend(ops[n*j//len(sl): n*(j+1)//len(sl)])
        PG = self.o.get("pg", 0)
        spread(gate_loads(), PG, PG + 1); spread(gate_ops(), PG + 2, PG + 3)
        def wtouch(r, half, wv):
            def f():
                I(f"s_cmp_eq_u32 s{SW}, {wv}"); I(f"s_cselect_b32 s99, 0, {self.OOB}")
                I(f"s_lshl_b32 s40, s{SIDX}, 19"); I(f"s_lshl_b32 s39, s{SHEAD}, 8"); I("s_add_u32 s40, s40, s39"); I(f"s_add_u32 s40, s40, {half*32*8192}")
                I("v_lshrrev_b32 v3, 1, v0"); I("v_lshlrev_b32 v3, 13, v3"); I("v_and_b32 v2, 1, v0"); I("v_lshl_add_u32 v3, v2, 7, v3"); I("v_add_u32 v3, s99, v3")
                I(f"buffer_load_dword v1, v3, s[{r}:{r+3}], s40 offen"); vm.issue()
            return f
        for nm, r, dflt in (("tk", RB, -1), ("tv", RC, 1), ("tq", RE, 3)):
            t0 = self.o.get(nm, dflt)
            if t0 >= 0:
                for half in range(2): side.setdefault((t0 + half, 2), []).append(wtouch(r, half, half))
        KN = self.o.get("kn", 8); VD = self.o.get("vd", 0); VN = self.o.get("vn", 5)
        KO = kv_out("K"); VO = kv_out("V")
        spread(sum((p for p, _ in KO), []), TK + 1, min(TK + 3, TQ), ks=(0, 1))
        npk = 2 * (min(TK + 3, TQ) - TK - 1)
        spread([s_ for _, s_ in KO], TK + 1, TK + 1 + KN, dst=late, ks=(2,))
        assert len(late[(TK + 1, 2)]) <= 8 * 2 // npk
        spread(sum((p for p, _ in VO), []), TQ, TQ + 1, ks=(0, 1))
        spread([s_ for _, s_ in VO], TQ + VD, TQ + VD + VN, dst=late, ks=(2,))
        PK_, PV_ = TK + KN + 2, TQ + VD + VN
        assert PK_ <= NS - 5 and PV_ <= NS - 2
        QE = []; EQ = lambda t: QE.append(lambda: I(t))
        EQ(f"s_and_b32 s55, s{SW}, 2"); EQ("s_lshl_b32 s55, s55, 15"); EQ(f"s_add_u32 s55, s55, {QA_LDS}")
        EQ(f"s_and_b32 s54, s{SW}, 1"); EQ("s_lshl_b32 s54, s54, 14"); EQ("s_add_u32 s55, s55, s54")
        EQ("s_lshl_b32 s54, s43, 11"); EQ("s_add_u32 s55, s55, s54"); EQ(f"v_add_u32 v14, s55, v{VST}")
        spread(QE, NS - 1, NS)
        spread([lambda r=r: I(f"v_mov_b64 {v(192+2*r,2)}, 0") for r in range(32)], NS - 1, NS)
        def fkoff():
            I(f"s_lshl_b32 s40, s{SHEAD}, 7"); I(f"s_lshl_b32 s41, s{SIDX}, 2"); I("s_add_u32 s40, s40, s41"); I(f"s_add_u32 s40, s40, {FK_OFF}")
        def w0only(fn):
            l = a.label("NP"); I(f"s_cmp_lg_u32 s{SW}, 0"); I(f"s_cbranch_scc1 {l}"); fn(); a.L(l)
        def k0(i):
            I(f"s_lshl_b32 s40, s{SW}, 12"); I("s_add_u32 m0, s40, 0x8000")
            I(f"s_lshl_b32 s41, s{SHEAD}, 20"); I("s_add_u32 s41, s41, s40")
            I(f"buffer_load_dwordx4 v{VST}, s[{RWS}:{RWS+3}], s41 offen offset:{1024*i}{self.ld} lds"); vm.issue()
        self.barrier()
        for f in take(-1, 1): f()
        vm.wait(dtok[0]); self.barrier()
        self.stamp(1)
        L, toks = reads(0, 0)
        for f in L: f()
        mark = {}; TZ = PG + 4; TS = 10; DS = self.o.get("dsteps", 3)
        pend = take(-1)
        for t in range(NS):
            for k in range(4):
                M = mfs(t, k, toks); n = len(M); PB = []
                if k == 3 and t < NS - 1:
                    assert not pend
                    if t == TS + 2: vm.wait(td); w0only(lambda: self.poll_check(14, 13, "0", rep4(1), RDBG))
                    if t == NS - 3: vm.wait(tp); w0only(lambda: self.poll_check(15, 13, "s53", 1))
                    lg.wait(lg.issued); vm.wait(dtok[t+1])
                    if t == TZ: vm.wait(mark[TZ-2])
                    if t == PK_: vm.wait(mark[TK + KN])
                    if t == PV_: vm.wait(mark[PV_ - 1])
                    self.barrier()
                    ps = self.o.get("pstamp")
                    if ps is not None and 0 <= t - int(ps) + 1 < 13: self.stamp(17 + t - int(ps) + 1); vm.issue(2)
                    if TZ <= t < TZ + 4: PB.append(lambda t=t: self.publish(SF, 1, RDBG, True, idx=t - TZ))
                    if t == PK_: PB.append(lambda: (fkoff(), self.publish(40, 1)))
                    if t == PV_: PB.append(lambda: (fkoff(), self.publish(40, 3)))
                    pend = take(t)
                    if t == NS - 3: pend += [lambda i=i: k0(i) for i in range(4)]
                    nd = len(pend) // (DS + 1)
                else:
                    nd = -(-len(pend) // max(1, (3 if t == 0 else DS) - k))
                D, pend = pend[:nd], pend[nd:]
                fl = []
                if not (t == NS - 1 and k == 3):
                    L, nt = reads(t, k+1) if k < 3 else reads(t+1, 0)
                    fl.append((0, max(3, n - 2) if n > 4 else 3, L))
                if PB: fl.append((1, 2, PB))
                if D: fl.append((0, n, D))
                if side.get((t, k)): fl.append((0, n, side[(t, k)]))
                if late.get((t, k)): fl.append((n - 2, n, late[(t, k)]))
                self.stream(M, fl); toks = nt
                if k == 2: mark[t] = vm.issued
                if t == TS and k == 0:
                    self.oob_sel(); I("v_lshl_add_u32 v13, v0, 2, s99"); td = self.poll_issue(14, 13, "0", RDBG)
                if t == NS - 4 and k == 0:
                    self.oob_sel(); I("v_and_b32 v13, 7, v0"); I("v_lshl_add_u32 v13, v13, 2, s99")
                    I(f"s_lshl_b32 s53, s{SHEAD}, 7"); I(f"s_add_u32 s53, s53, {FK_OFF}")
                    tp = self.poll_issue(15, 13, "s53")
            if t == TK: self.stamp(2)
            if t == TV: self.stamp(13)
        assert not items
        self.stamp(3)
        I("v_mov_b32 v62, v13")
        self.poll_issue(63, 62, "s53")
        for tile in range(4):
            rt, dt = tile >> 1, tile & 1; b = ACC["Q"] + 16*tile
            for i in range(8): I(f"v_cvt_pk_bf16_f32 v{b+i}, v{b+2*i}, v{b+2*i+1}")
            for half in range(2):
                I(f"ds_write_b128 v14, {v(b+4*half,4)} offset:{rt*8192+dt*2048+half*1024}"); lg.issue()
        self.attn_setup()
        vm.wait(vm.issued); w0only(lambda: self.poll_check(63, 62, "s53", 3))
        lg.wait(lg.issued); self.barrier()

    def attn_setup(self): self.attn(True)
    def attn(self, setup=False):
        a = self.a; I = self.I; vm = self.vm; lg = self.lg; stream = self.stream
        ML = 159744; QA_LDS = 65536; QB_LDS = 131072
        O = 192; QF = 160; NM = 144; S = [112, 128]; PP = [96, 104]; RING = 64; NR = 8; E = 56; PK = 16
        VK, VV, VL16, LRUN, LU, THR, NINF, VQ, TMP, LA = 4, 5, 6, 7, 8, 9, 10, 11, 12, 14
        SR, SG, SC1, SC2, SKO, SVO, SKM, SVM, STH = 32, 33, 34, 35, 36, 37, 38, 39, 42
        SMK, SFIN, SCA, SM1 = 54, 55, 59, 58
        DC = self.o.get("dmacost", 16); WEV = self.o.get("wev", 2)
        if setup:
            I(f"s_lshr_b32 s{SG}, s{SW}, 2"); I(f"s_mul_i32 s{SR}, s{SG}, 7"); I(f"s_xor_b32 s{SR}, s{SR}, s{SW}")
            I(f"v_lshlrev_b32 v{VL16}, 4, v0")
            I(f"s_lshl_b32 s44, s{SR}, 13"); I(f"s_add_u32 s44, s44, {QB_LDS}"); I(f"v_add_u32 v{VQ}, s44, v{VL16}")
            I(f"s_lshl_b32 s45, s{SG}, 16"); I(f"v_subrev_u32 v{TMP+1}, s45, v{VQ}")
            I(f"s_mov_b32 s{SC1}, s{SIDX}")
            I(f"s_lshl_b32 s{SC2}, s{SIDX}, 1"); I(f"s_sub_u32 s{SC2}, 14, s{SC2}")
            I(f"s_cmp_eq_u32 s{SG}, 1"); I(f"s_cselect_b32 s{SM1}, 0, -1")
            I(f"s_lshl_b32 s43, s{SW}, 12"); I(f"s_lshl_b32 s{SVO}, s{SHEAD}, 20"); I(f"s_add_u32 s{SVO}, s{SVO}, s43")
            I(f"s_add_u32 s{SKO}, s{SVO}, 0x10000"); I(f"s_add_u32 s{SVO}, s{SVO}, 0x8000")
            I(f"s_mov_b32 s{SKM}, s43"); I(f"s_add_u32 s{SVM}, s43, 0x18000")
            I(f"s_mov_b32 s{STH}, {f2u(4096.0)}"); I(f"v_mov_b32 v{NINF}, 0xff800000")
            I(f"v_and_b32 v{THR}, 31, v0"); I(f"s_lshl_b32 s44, s{SR}, 5"); I(f"v_add_u32 v{THR}, s44, v{THR}")
            I(f"v_lshrrev_b32 v{TMP}, 5, v0"); I(f"v_lshlrev_b32 v{TMP}, 2, v{TMP}"); I(f"v_sub_u32 v{THR}, v{THR}, v{TMP}")
            I(f"v_add_u32 v{VK}, 0x8000, v{VL16}")
            I(f"s_lshl_b32 s{SCA}, s{SIDX}, 2"); I(f"s_add_u32 s{SCA}, s{SCA}, s{SR}"); I(f"s_lshl_b32 s{SCA}, s{SCA}, 5"); I(f"s_add_u32 s{SCA}, s{SCA}, s{SHEAD}")
            I(f"s_lshl_b32 s{SCA}, s{SCA}, 13"); I(f"s_add_u32 s{SCA}, s{SCA}, {CTX_OFF}")
            I(f"s_mov_b32 s{SFIN}, 0")
            if self.o.get("map84", 1):
                I(f"s_lshr_b32 s56, s{SF}, 6"); I("s_lshl_b32 s56, s56, 3"); I(f"s_bfe_u32 s44, s{SF}, 0x30002"); I("s_add_u32 s56, s56, s44")
                I(f"s_bfe_u32 s57, s{SF}, 0x10005"); I("s_lshl_b32 s57, s57, 2"); I(f"s_and_b32 s44, s{SF}, 3"); I("s_add_u32 s57, s57, s44")
                I(f"s_and_b32 s40, s{SF}, 63"); I("s_lshl_b32 s40, s40, 16")
            else:
                I(f"s_mov_b32 s56, s{SHEAD}"); I(f"s_mov_b32 s57, s{SIDX}")
                I(f"s_and_b32 s40, s{SF}, 31"); I("s_lshl_b32 s40, s40, 17")
            I(f"s_lshl_b32 s44, s{SW}, 13"); I("s_add_u32 s40, s40, s44"); I(f"s_add_u32 s40, s40, {WOT_OFF}")
            self.srd(RB, "ssmk", 2*MB); self.srd(RA, "k", 2*MB); self.srd(RC, "v", 2*MB); self.srd(RD, "shift", 4096); self.srd(RE, "wo", 4*MB)
            I("s_mov_b32 s41, 0")
            if not self.o.get("noprio"):
                l = a.label("PR"); I(f"s_cmp_eq_u32 s{SG}, 1"); I(f"s_cbranch_scc0 {l}"); I("s_setprio 1"); a.L(l)
            return
        def loadq(va):
            qt = []
            for ds in range(8):
                I(f"ds_read_b128 {v(QF+4*ds,4)}, v{va} offset:{1024*ds}"); qt.append(lg.issue())
            return qt
        op = lambda t, c=4: (lambda: I(t), c)
        def dma4(kind):
            sm, so = (SKM, SKO) if kind == "k" else (SVM, SVO)
            def d(i):
                def f():
                    if i == 0: I(f"s_mov_b32 m0, s{sm}"); I(f"s_xor_b32 s{sm}, s{sm}, 0x8000")
                    if not (self.o.get("a_nodma") and i):
                        I(f"buffer_load_dwordx4 v{VL16}, s[{RWS}:{RWS+3}], s{so} offen offset:{1024*i}{self.ld} lds")
                    if i == 3: I(f"s_add_u32 s{so}, s{so}, 0x10000")
                return (f, DC + (8 if i == 0 else 4 if i == 3 else 0))
            return [d(i) for i in range(4)]
        self.ring_n = 0
        def rd(kind, sl, idx):
            h = {}
            def f():
                slot = self.ring_n % NR; self.ring_n += 1
                h["reg"] = RING + 4*slot
                I(f"ds_read_b128 {v(h['reg'],4)}, v{VK if kind == 'k' else VV} offset:{sl*8192+idx*1024}"); h["tok"] = lg.issue()
            return f, h
        def wait_for(R, i):
            if R[i][1]["tok"] <= lg.done: return
            j = i
            while j + 1 < len(R) and j + 1 < i + WEV and "tok" in R[j+1][1] and R[j+1][1]["tok"] > R[i][1]["tok"]: j += 1
            lg.wait(R[j][1]["tok"])
        def mf_qk(sb, ds, R, i, czero=False):
            wait_for(R, i)
            c = (("0" if czero else v(NM,16)) if ds == 0 else v(S[sb],16))
            I(f"{MFMA} {v(S[sb],16)}, {v(R[i][1]['reg'],4)}, {v(QF+4*ds,4)}, {c}")
        def mf_pv(pb, idx, R, i=None, reg=None):
            ks, dt = idx >> 2, idx & 3
            if reg is None: wait_for(R, i); reg = R[i][1]["reg"]
            I(f"{MFMA} {v(O+16*dt,16)}, {v(reg,4)}, {v(PP[pb]+4*ks,4)}, {v(O+16*dt,16)}")
        def sm_ops(sb):
            L = []
            ex = lambda i: op(f"v_exp_f32 v{E+(i&7)}, v{S[sb]+i}", 8)
            def post(j):
                r = []; e0, e1 = E + ((2*j) & 7), E + ((2*j+1) & 7)
                if j == 0: r.append(op(f"v_add_f32 v{LU}, v{e0}, v{e1}"))
                else: r += [op(f"v_add_f32 v{LU}, v{LU}, v{e0}"), op(f"v_add_f32 v{LU}, v{LU}, v{e1}")]
                r.insert(1 if j else 0, op(f"v_cvt_pk_bf16_f32 v{PP[sb]+j}, v{e0}, v{e1}"))
                return r
            L += [ex(0), ex(1)]
            for j in range(8):
                p = post(j)
                L += ([ex(2*j+2), p[0], ex(2*j+3)] + p[1:]) if j < 7 else p
            if self.o.get("a_nosm"): L = [(lambda: None, 0) if i > 3 else x for i, x in enumerate(L)]
            return L
        def sched(M, fixed, chain):
            n = len(M); fc = [sum(c for _, c in fixed.get(g, [])) for g in range(n)]
            tot = sum(c for _, c in chain)
            lo, hi = 0.0, 4000.0
            for _ in range(40):
                lev = (lo + hi) / 2
                if sum(max(0, lev - f) for f in fc) >= tot: hi = lev
                else: lo = lev
            k = 0; credit = 0.0
            for g in range(n):
                M[g]()
                for c, _ in fixed.get(g, []): c()
                credit += max(0, hi - fc[g])
                while k < len(chain) and (g == n - 1 or chain[k][1] <= credit + 2):
                    chain[k][0](); credit -= chain[k][1]; k += 1
        def put(fixed, g, items): fixed.setdefault(g, []).extend(items)
        SPL = self.o.get("spl", 26)
        ool = []
        def rarely(cmp_, body):
            lo = a.label("OOL"); lb = a.label("RET")
            I(cmp_); I(f"s_cbranch_scc1 {lo}"); a.L(lb)
            ool.append((lo, lb, body))
        def mask_ops(sb, koff):
            prs = [46, 48, 50, 52]; L = []
            if koff >= 64:
                L.append(op(f"v_subrev_u32 v{TMP+3}, 64, v{THR}")); tr = TMP + 3; koff -= 64
            elif koff < 0:
                L += [op(f"s_lshl_b32 s45, s{SG}, 6"), op(f"v_subrev_u32 v{TMP+3}, s45, v{THR}")]; tr = TMP + 3; koff = -koff - 1
            else: tr = THR
            for r0 in range(0, 16, 4):
                for r in range(r0, r0+4): L.append(op(f"v_cmp_lt_i32 s[{prs[r&3]}:{prs[r&3]+1}], v{tr}, {(r & 3) + 8*(r >> 2) + koff}"))
                for r in range(r0, r0+4): L.append(op(f"v_cndmask_b32 v{S[sb]+r}, v{S[sb]+r}, v{NINF}, s[{prs[r&3]}:{prs[r&3]+1}]"))
            return L
        def mask_body(sb, koff):
            for c, _ in mask_ops(sb, koff): c()
        def rowmax(sb, dst):
            b = S[sb]
            I(f"v_max3_f32 v{dst}, v{b}, v{b+1}, v{b+2}")
            for i in range(3, 15, 2): I(f"v_max3_f32 v{dst}, v{dst}, v{b+i}, v{b+i+1}")
            I(f"v_max_f32 v{dst}, v{dst}, v{b+15}"); I(f"v_mov_b32 v{dst+1}, v{dst}")
            I(f"v_permlane32_swap_b32 v{dst}, v{dst+1}"); I(f"v_max_f32 v{dst}, v{dst}, v{dst+1}")
        def init_max():
            rowmax(0, TMP)
            I(f"v_max_f32 v{TMP}, {f2u(-1e30)}, v{TMP}")
            for r in range(16): I(f"v_sub_f32 v{NM+r}, 0, v{TMP}")
            return [op(f"v_sub_f32 v{S[0]+r}, v{S[0]+r}, v{TMP}") for r in range(16)]
        rare = []
        def check(sb, other=True):
            def f():
                lr = a.label("RARE"); lb = a.label("BACK")
                I(f"v_cmp_nge_f32 vcc, s{STH}, v{LU}")
                if self.o.get("a_nocheck"): I("s_mov_b64 vcc, 0")
                I(f"s_cbranch_vccnz {lr}"); a.L(lb)
                I(f"v_add_f32 v{LRUN}, v{LRUN}, v{LU}")
                rare.append((lr, lb, sb, other))
            return f
        def fin_body():
            I(f"v_mov_b32 v{TMP}, v{LA}"); I(f"s_mov_b32 s{SFIN}, 2"); I("s_nop 0")
            I(f"v_permlane32_swap_b32 v{TMP}, v{LA}"); I(f"v_add_f32 v{TMP}, v{TMP}, v{LA}"); I(f"v_rcp_f32 v{TMP}, v{TMP}"); I(f"v_mov_b32 v{TMP+1}, v{TMP}")
            for q in range(8):
                for i in range(8*q, 8*q+8, 2): I(f"v_pk_mul_f32 {v(O+i,2)}, {v(O+i,2)}, {v(TMP,2)}")
                for i in range(4): I(f"v_cvt_pk_bf16_f32 v{PK+4*q+i}, v{O+8*q+2*i}, v{O+8*q+2*i+1}")
                for i in range(8*q, 8*q+8, 2): I(f"v_mov_b64 {v(O+i,2)}, 0")
        def st_body():
            I(f"s_add_u32 s44, s{SCA}, 4096"); I(f"s_mov_b32 s{SFIN}, 3")
            for q in range(8):
                I(f"buffer_store_dwordx4 {v(PK+4*q,4)}, v{VL16}, s[{RWS}:{RWS+3}], s{SCA if q < 4 else 44} offen offset:{1024*(q&3)}{self.st}")
        TR = [RING + 4*(2+i) for i in range(6)]
        def head(R, vmw, with_mfma=True, post=(), more=()):
            rf = [(f, 4) for f, h in R]; sm2 = sm_ops(0)[SPL:]
            nop = lambda: None
            def first():
                I("s_waitcnt lgkmcnt(4)"); mf_pv(1, 2, None, reg=TR[0])
            M = [first] + [lambda i=i: mf_pv(1, 2+i, None, reg=TR[i]) for i in range(1, 6)] if with_mfma else [nop]*6
            nb = self.o.get("nb", 4)
            more = list(more); m0 = len(more) // 3
            sched(M[:2], {}, sm2[:nb] + more[:m0])
            vmw(); I("s_waitcnt lgkmcnt(0)"); lg.mark_all_done(); self.barrier(); self.ring_n = 0
            fx = {0: rf[0:2], 1: rf[2:5], 2: rf[5:6], 3: rf[6:7] + [(nop, 12 + 8*len(post))]}
            sched(M[2:], fx, sm2[nb:] + more[m0:])
            check(0)()
            for p in post: p()
        def mk_reads():
            return ([rd("k", 0, i) for i in range(8)] + [rd("v", 0, i) for i in range(8)] +
                    [rd("k", 1, i) for i in range(8)] + [rd("v", 1, i) for i in range(8)])
        def mid(R, dmas, kx, mb=None, trans=False, endops=(), extra=None):
            rf = [(f, 4) for f, h in R]
            M = [lambda i=i: mf_qk(0, i, R, i, trans) for i in range(8)] + [lambda i=i: mf_pv(0, i, R, 8+i) for i in range(8)]
            fx = {}
            for g in range(16): put(fx, g, [rf[7+g]])
            D = sum((dma4(k) for k in dmas), [])
            DS = self.o.get("dstep", 2)
            spill = []
            for n, d in enumerate(D):
                g = n * DS * (2 if len(D) == 4 and not extra else 1)
                if g < 15: put(fx, g, [d])
                else: spill.append((g - 16 if g >= 16 else 0, d))
            put(fx, 15, [(lambda: None, 20)])
            if extra:
                X0 = self.o.get("x0", 8); ng = 16 - X0 + 9; per = -(-len(extra) // ng)
                put(fx, X0, [op("s_waitcnt vmcnt(4)")])
                for g in range(X0, 16): put(fx, g, extra[(g-X0)*per:(g-X0+1)*per])
                for g in range(9): spill += [(g, x) for x in extra[(16-X0+g)*per:(16-X0+g+1)*per]]
            sched(M, fx, sm_ops(1))
            check(1, other=not trans)()
            if mb: mb()
            pre = []
            if trans:
                I(f"v_mov_b32 v{LA}, v{LRUN}"); I(f"v_mov_b32 v{LRUN}, 0"); I(f"s_mov_b32 s{SFIN}, 1")
                pre = init_max()
            M = [lambda i=i: mf_qk(1, i, R, 16+i) for i in range(8)] + [lambda i=i: mf_pv(1, i, R, 24+i) for i in range(2)]
            fx = {}
            for g in range(9): put(fx, g, [rf[23+g]])
            for g, d in spill: put(fx, g, [d])
            put(fx, 8, [op(f"v_xor_b32 v{VV}, 0x10000, v{VK}")] + kx)
            for n, e in enumerate(endops): put(fx, 7 - n, [e])
            put(fx, 9, [(lambda: None, 16)])
            sched(M, fx, pre + sm_ops(0)[:SPL])
            assert [R[26+i][1]["reg"] for i in range(6)] == TR
        vm4 = lambda: I("s_waitcnt vmcnt(4)")
        vm0 = lambda: I("s_waitcnt vmcnt(0)")
        def vm08():
            lo = a.label("W8"); lb = a.label("W8R")
            I(f"s_cmp_eq_u32 s{SFIN}, 3"); I(f"s_cbranch_scc1 {lo}"); I("s_waitcnt vmcnt(%d)" % self.o.get("a_vm", 0)); a.L(lb)
            def b(): I("s_waitcnt vmcnt(8)"); I(f"s_mov_b32 s{SFIN}, 4")
            ool.append((lo, lb, b))
        m1 = lambda sb, ko: (lambda: rarely(f"s_cmp_eq_u32 s{SC1}, s{SM1}", lambda: mask_body(sb, ko)))
        fin = lambda: rarely(f"s_cmp_eq_u32 s{SFIN}, 1", fin_body)
        sta = (lambda: rarely(f"s_cmp_eq_u32 s{SFIN}, 2", st_body), 8)

        KR, VR, SH, WO, AD = 16, 23, 28, 32, 40
        def side_loads():
            L = []; E = lambda t: L.append(op(t)); V = lambda t: L.append(op(t, DC))
            E(f"v_lshrrev_b32 v{AD}, 5, v0"); E(f"v_and_b32 v{AD+1}, 31, v0"); E(f"v_lshlrev_b32 v{AD+2}, 12, v{AD}"); E(f"v_lshl_add_u32 v{AD+2}, v{AD+1}, 2, v{AD+2}")
            E(f"s_lshl_b32 s60, s{SF}, 14"); E(f"s_lshl_b32 s61, s{SW}, 7"); E("s_add_u32 s60, s60, s61"); E("s_add_u32 s61, s60, 8192")
            for j in range(8): V(f"buffer_load_dword v{WO+j}, v{AD+2}, s[{RE}:{RE+3}], s{60+(j>>2)} offen offset:{1024*(j&3)}")
            E("s_lshr_b32 s62, s2, 3"); E("s_lshl_b32 s62, s62, 16"); E(f"s_lshl_b32 s63, s{SW}, 13"); E("s_add_u32 s62, s62, s63")
            E("s_and_b32 s63, s2, 7"); E("s_lshl_b32 s63, s63, 7"); E("s_add_u32 s62, s62, s63"); E(f"v_add_u32 v{AD+3}, s62, v{AD+2}")
            for i in range(3): E(f"v_subrev_u32 v{AD+4+i}, {3072-1024*i}, v{AD+3}")
            E("s_lshl_b32 s63, s63, 2"); E(f"v_lshl_add_u32 v{AD+7}, v{AD+1}, 4, s63")
            for i in range(3): V(f"buffer_load_dword v{KR+i}, v{AD+4+i}, s[{RA}:{RA+3}], 0 offen")
            for i in range(4): V(f"buffer_load_dword v{KR+3+i}, v{AD+3}, s[{RA}:{RA+3}], 0 offen offset:{1024*i}")
            for i in range(4): V(f"buffer_load_dword v{VR+i}, v{AD+3}, s[{RC}:{RC+3}], 0 offen offset:{1024*i}")
            V(f"buffer_load_dwordx4 {v(SH,4)}, v{AD+7}, s[{RD}:{RD+3}], 0 offen")
            E(f"s_lshl_b32 s60, s{SF}, 13"); E(f"s_add_u32 s60, s60, s{SWK}"); E(f"v_and_b32 v27, 7, v0"); E("v_lshlrev_b32 v27, 7, v27")
            V(f"buffer_load_dword v1, v27, s[{RB}:{RB+3}], s60 offen")
            return L
        NSL = 21
        def side_math():
            L = []; E = lambda t: L.append(op(t)); V = lambda t: L.append(op(t, DC))
            W2 = 48
            E("s_mov_b32 s60, 0x05040100"); E("s_mov_b32 s61, 0x07060302")
            for j in range(4): E(f"v_perm_b32 v{W2+j}, v{WO+2*j+1}, v{WO+2*j}, s60")
            for j in range(4): E(f"v_perm_b32 v{W2+4+j}, v{WO+2*j+1}, v{WO+2*j}, s61")
            E(f"s_lshl_b32 s60, s{SW}, 8"); E(f"s_add_u32 s60, s60, s{SF}"); E("s_lshl_b32 s60, s60, 11"); E(f"s_add_u32 s60, s60, {WOT_OFF}")
            for mt in range(2): V(f"buffer_store_dwordx4 {v(W2+4*mt,4)}, v{VL16}, s[{RWS}:{RWS+3}], s60 offen offset:{1024*mt}{self.st}")
            KU, SU, OO, VU, PQ = 32, 42, 48, 39, 52
            for c in range(2):
                def unp(d, sreg, half): E(f"v_lshlrev_b32 v{d}, 16, v{sreg}" if half == 0 else f"v_and_b32 v{d}, 0xffff0000, v{sreg}")
                for i in range(7): unp(KU+i, KR+i, c)
                for j in range(4): unp(SU+j, SH + 2*c + (j >> 1), j & 1)
                for o in range(4):
                    E(f"v_mul_f32 v{OO+o}, v{KU+o}, v{SU+3}")
                    for j in (2, 1, 0): E(f"v_fmac_f32 v{OO+o}, v{KU+o+3-j}, v{SU+j}")
                    unp(VU, VR+o, c)
                    E(f"v_mul_f32 v{OO+o}, v{OO+o}, v{VU}")
                d = PQ + 2*(1-c)
                E(f"v_cvt_pk_bf16_f32 v{d}, v{OO+3}, v{OO+2}"); E(f"v_cvt_pk_bf16_f32 v{d+1}, v{OO+1}, v{OO}")
            E(f"v_lshlrev_b32 v{AD+1}, 5, v{AD+1}"); E(f"v_lshl_add_u32 v{AD+1}, v{AD}, 4, v{AD+1}")
            E(f"v_permlane32_swap_b32 v{PQ+2}, v{PQ}"); E(f"v_permlane32_swap_b32 v{PQ+3}, v{PQ+1}")
            E("s_lshr_b32 s60, s2, 3"); E("s_lshl_b32 s60, s60, 16"); E(f"s_lshl_b32 s61, s{SW}, 13"); E("s_add_u32 s60, s60, s61")
            E("s_and_b32 s61, s2, 7"); E("s_lshl_b32 s61, s61, 10"); E("s_add_u32 s60, s60, s61"); E(f"s_add_u32 s60, s60, {KVT_OFF}")
            V(f"buffer_store_dwordx4 {v(PQ,4)}, v{AD+1}, s[{RWS}:{RWS+3}], s60 offen{self.st}")
            return L
        def spub_body():
            l1 = a.label("SM"); l2 = a.label("SP")
            I("s_add_u32 s41, s41, 1"); I(f"s_add_u32 s44, s41, s{SG}"); I("s_cmp_lg_u32 s44, 2"); I(f"s_cbranch_scc1 {l1}")
            for c, _ in side_math(): c()
            a.L(l1)
            I("s_cmp_lg_u32 s41, 4"); I(f"s_cbranch_scc1 {l2}")
            I(f"s_lshl_b32 s44, s{SF}, 2"); I(f"s_add_u32 s44, s44, {FY_OFF}")
            sv = self.save(); self.publish(44, 2); self.restore(sv)
            a.L(l2)
        spub = lambda: rarely("s_cmp_lt_u32 s41, 4", spub_body)
        def snap():
            I(f"s_mov_b32 s61, {FY_OFF}"); I(f"buffer_load_dwordx4 v[52:55], v{VL16}, s[{RWS}:{RWS+3}], s61 offen sc1")
        def side_check():
            lo = a.label("SCK"); lb = a.label("SCR")
            def test():
                I("v_and_b32 v52, v52, v53"); I("v_and_b32 v54, v54, v55"); I("v_and_b32 v52, v52, v54"); I("v_and_b32 v52, 2, v52"); I("v_cmp_ne_u32 vcc, 2, v52")
            test(); I(f"s_cbranch_vccnz {lo}"); a.L(lb)
            def spin():
                lp = a.label("SPL")
                I("s_mov_b32 s99, 20000"); a.L(lp)
                I("s_sleep 2"); I(f"buffer_load_dwordx4 v[52:55], v{VL16}, s[{RWS}:{RWS+3}], s61 offen sc1"); I("s_waitcnt vmcnt(0)")
                test(); I(f"s_cbranch_vccz {lb}")
                I("s_sub_u32 s99, s99, 1"); I("s_cmp_lg_u32 s99, 0"); I(f"s_cbranch_scc1 {lp}")
            ool.append((lo, lb, spin))
        m2 = lambda sb, ko: (lambda: rarely(f"s_cmp_eq_u32 s{SC2}, 0", lambda: (snap(), mask_body(sb, ko))))
        LEV = a.label("EVEN"); LODM = a.label("ODDM"); LTRANS = a.label("TRANS"); LP2 = a.label("P2"); LP2B = a.label("P2B"); LDRAIN = a.label("DRAIN")
        self.stamp(8)
        self.ring_n = 0
        R = [rd("k", 0, i) for i in range(8)] + [rd("k", 1, i) for i in range(8)]
        for i in range(7):
            I(f"ds_read_b128 {v(QF+4*i,4)}, v{TMP+1} offset:{1024*i}"); lg.issue()
            R[i][0]()
        def q7():
            I(f"ds_read_b128 {v(QF+28,4)}, v{TMP+1} offset:{1024*7}"); lg.issue()
        D = dma4("v") + dma4("k")
        sched([lambda i=i: mf_qk(0, i, R, i, True) for i in range(8)], {g: ([(q7, 4)] if g == 0 else []) + [(R[7+g][0], 4), D[g]] for g in range(8)}, [])
        m1(0, 0)()
        pre = init_max()
        I(f"v_mov_b32 v{LRUN}, 0")
        fx = {}
        put(fx, 0, [(R[15][0], 4)]); put(fx, 4, [op(f"v_xor_b32 v{VV}, 0x10000, v{VK}"), op(f"v_xor_b32 v{VK}, 0x4000, v{VK}")])
        SLd = side_loads(); n8 = (len(SLd) + 7) // 8
        for g in range(8): put(fx, g, SLd[g*n8:(g+1)*n8])
        sched([lambda i=i: mf_qk(1, i, R, 8+i) for i in range(8)], fx, pre + sm_ops(0)[:SPL])
        R = mk_reads()
        head(R, lambda: I(f"s_waitcnt vmcnt({4+NSL})"), False, post=[m1(1, 32)])
        svm = self.save()
        I(f"s_branch {LODM}")
        a.L(LEV)
        R = mk_reads(); head(R, vm4)
        mid(R, "k", [op(f"v_xor_b32 v{VK}, 0x4000, v{VK}")], mb=m1(0, 0))
        R = mk_reads(); head(R, vm4, post=[m1(1, 32), spub])
        assert self.lg.issued - self.lg.done == svm[2] - svm[3]
        a.L(LODM)
        mid(R, "v", [op(f"v_xor_b32 v{VK}, 0xc000, v{VK}")], mb=m1(0, 64), endops=[op(f"s_sub_u32 s{SC1}, s{SC1}, 1")])
        I(f"s_cmp_lg_u32 s{SC1}, -1"); I(f"s_cbranch_scc1 {LEV}")
        I(f"s_cmp_eq_u32 s{SG}, 1"); I(f"s_cbranch_scc1 {LTRANS}")
        svt = self.save()
        R = mk_reads(); head(R, vm4)
        mid(R, "k", [op(f"v_xor_b32 v{VK}, 0x8000, v{VK}")], mb=m2(0, -1))
        a.L(LP2B)
        I(f"s_cmp_eq_u32 s{SC2}, 0"); I(f"s_cbranch_scc1 {LDRAIN}")
        a.L(LP2)
        R = mk_reads(); head(R, vm08, post=[spub, fin, lambda: I(f"s_sub_u32 s{SC2}, s{SC2}, 1")])
        mid(R, "kv", [op(f"v_xor_b32 v{VK}, 0x8000, v{VK}")], mb=m2(0, -1), endops=[sta])
        I(f"s_cmp_lg_u32 s{SC2}, 0"); I(f"s_cbranch_scc1 {LP2}")
        a.L(LDRAIN)
        self.stamp(10)
        R2 = [rd("v", 0, i) for i in range(8)] + [rd("v", 1, i) for i in range(8)]
        rf = [(f, 4) for f, h in R2]
        ts, ts2, ts3 = self.tail_setup()
        tsa = [x for x in ts if x[1] == 4]; tsl = [x for x in ts if x[1] != 4]
        for c, _ in tsa[:11]: c()
        head(R2, lambda: (vm08(), side_check(), [c() for c, _ in tsl]), post=[fin, sta[0]], more=mask_ops(1, -33))
        ts = tsa[11:]
        pre = []; E_ = lambda t: pre.append(op(t))
        E_(f"s_lshl_b32 s44, s{SW}, 9"); E_(f"s_add_u32 s44, s44, {ML}"); E_(f"v_lshrrev_b32 v54, 1, v{VL16}"); E_(f"v_add_u32 v54, s44, v54")
        E_(f"s_lshl_b32 s46, s{SW}, 13"); E_(f"v_add_u32 v55, s46, v{VL16}")
        E_(f"s_sub_u32 s54, 15, s{SIDX}"); E_(f"s_lshl_b32 s54, s54, 2"); E_(f"s_add_u32 s54, s54, s{SR}"); E_("s_lshl_b32 s54, s54, 5"); E_(f"s_add_u32 s54, s54, s{SHEAD}")
        E_("s_lshl_b32 s54, s54, 13"); E_(f"s_lshl_b32 s44, s{SG}, 12"); E_("s_add_u32 s54, s54, s44"); E_(f"s_add_u32 s54, s54, {CTX_OFF}")
        def lsum():
            L = [op(f"v_mov_b32 v{TMP}, v{LRUN}"), op("s_nop 0"), op(f"v_permlane32_swap_b32 v{TMP}, v{LRUN}"), op(f"v_add_f32 v{NM+1}, v{TMP}, v{LRUN}")]
            def wml():
                I(f"ds_write_b64 v54, {v(NM,2)}"); lg.issue()
            return L + [(wml, 4)]
        def osend(g, i):
            def f():
                I(f"ds_write_b128 v55, {v(O+32*(1-g)+4*i,4)} offset:{1024*i}"); lg.issue()
            return (f, 16)
        lj = a.label("MGJ"); LM = [a.label("MG0"), a.label("MG1")]; LFB = [a.label("FB0"), a.label("FB1")]; LSK = a.label("SKIP"); LS1 = a.label("SK1")
        I(f"s_lshl_b32 s45, s{SG}, 1"); I(f"s_sub_u32 s45, s{SR}, s45"); I("s_cmp_lt_i32 s45, 1"); I(f"s_cbranch_scc1 {LSK}")
        svd = self.save(); rnd = self.ring_n
        setup = ts + pre + ts3; n8 = (len(setup) + 7) // 8
        fx = {g: [rf[7+g]] + setup[g*n8:(g+1)*n8] for g in range(8)}
        sched([lambda i=i: mf_pv(0, i, R2, i) for i in range(8)], fx, sm_ops(1))
        check(1)()
        rf[15][0]()
        I(f"s_cmp_eq_u32 s{SG}, 1"); I(f"s_cbranch_scc1 {LFB[1]}")
        sv2 = self.save(); PR = 64
        for g in (0, 1):
            if g: a.L(LFB[1]); self.restore(sv2)
            own = O + 32*g; snd = O + 32*(1-g)
            sd = [2*(1-g), 2*(1-g)+1]; od = [2*g, 2*g+1]
            order = [sd[0], sd[1], 4+sd[0], 4+sd[1], od[0], od[1], 4+od[0], 4+od[1]]
            def mfb(idx):
                lg.wait(R2[8+idx][1]["tok"]); mf_pv(1, idx, None, reg=R2[8+idx][1]["reg"])
            fx = {5: [osend(g, 0), osend(g, 1)], 6: [osend(g, i) for i in (2, 3, 4)], 7: [osend(g, i) for i in (5, 6, 7)]}
            sched([lambda i=i: mfb(i) for i in order], fx, lsum() + self.tail_valu())
            a.L(LM[g])
            I(f"v_xor_b32 v54, 0xe00, v54"); I(f"v_xor_b32 v55, 0xe000, v55")
            I("s_waitcnt lgkmcnt(0)"); lg.mark_all_done(); self.barrier()
            I(f"ds_read_b64 {v(96,2)}, v54"); t0 = lg.issue()
            tk = []
            for i in range(8):
                I(f"ds_read_b128 {v(PR+4*i,4)}, v55 offset:{1024*i}"); tk.append(lg.issue())
            lg.wait(t0)
            I(f"v_min_f32 v98, v{NM}, v96"); I(f"v_sub_f32 v99, v98, v{NM}"); I(f"v_sub_f32 v100, v98, v96")
            I("v_exp_f32 v99, v99"); I("v_exp_f32 v100, v100")
            I(f"v_mul_f32 v101, v99, v{NM+1}"); I("v_fmac_f32 v101, v100, v97"); I("v_rcp_f32 v101, v101")
            I("v_mul_f32 v102, v99, v101"); I("v_mul_f32 v103, v99, v101"); I("v_mul_f32 v104, v100, v101"); I("v_mul_f32 v105, v100, v101")
            tw = self.tail_writes()
            for q in range(4):
                for i in range(8*q, 8*q+8, 2): I(f"v_pk_mul_f32 {v(own+i,2)}, {v(own+i,2)}, v[102:103]")
                lg.wait(tk[2*q+1])
                for c in tw[3*q:3*q+3]: c()
                for i in range(8*q, 8*q+8, 2): I(f"v_pk_fma_f32 {v(own+i,2)}, {v(PR+i,2)}, v[104:105], {v(own+i,2)}")
                for i in range(4): I(f"v_cvt_pk_bf16_f32 v{snd+4*q+i}, v{own+8*q+2*i}, v{own+8*q+2*i+1}")
                I(f"buffer_store_dwordx4 {v(snd+4*q,4)}, v{VL16}, s[{RWS}:{RWS+3}], s54 offen offset:{1024*q}{self.st}"); self.tctx = vm.issue()
            if not g: I(f"s_branch {lj}")
        def skip_path():
            keep = self.save(); tctx = self.tctx; th = self.th
            a.L(LSK); self.restore(svd); self.ring_n = rnd
            I("s_cmp_lt_i32 s45, 0"); I(f"s_cbranch_scc1 {LS1}")
            rf[7][0]()
            for i in range(8): mf_pv(0, i, R2[:8], i)
            a.L(LS1)
            for c, _ in setup + lsum() + self.tail_valu(): c()
            l1 = a.label("SG1"); I(f"s_cmp_eq_u32 s{SG}, 1"); I(f"s_cbranch_scc1 {l1}")
            for g in (0, 1):
                if g: a.L(l1)
                for i in range(8): osend(g, i)[0]()
                I(f"s_branch {LM[g]}")
            self.restore(keep); self.tctx = tctx; self.th = th
        a.L(lj)
        I("s_setprio 0")
        self.stamp(4)
        def cold():
            a.L(LTRANS)
            self.restore(svt)
            loadq(VQ); I("s_waitcnt lgkmcnt(0)")
            I(f"v_xor_b32 v{VK}, 0x4000, v{VK}")
            R = mk_reads(); head(R, vm4, more=mask_ops(1, 96))
            mid(R, "k", [op(f"v_xor_b32 v{VK}, 0x8000, v{VK}")], mb=m2(0, -1), trans=True)
            I(f"s_branch {LP2B}")
            skip_path()
            for (lo, lb, body) in ool:
                a.L(lo); body(); I(f"s_branch {lb}")
            for (lr, lb, sb, other) in rare:
                a.L(lr)
                I("s_nop 15")
                rowmax(sb, TMP)
                I(f"v_max_f32 v{TMP}, 0, v{TMP}"); I(f"v_exp_f32 v{TMP+1}, -v{TMP}")
                for r in range(16): I(f"v_sub_f32 v{NM+r}, v{NM+r}, v{TMP}")
                for r in range(16): I(f"v_sub_f32 v{S[sb]+r}, v{S[sb]+r}, v{TMP}")
                if other:
                    for r in range(16): I(f"v_sub_f32 v{S[1-sb]+r}, v{S[1-sb]+r}, v{TMP}")
                for r in range(64): I(f"v_mul_f32 v{O+r}, v{O+r}, v{TMP+1}")
                I(f"v_mul_f32 v{LRUN}, v{LRUN}, v{TMP+1}")
                for c, _ in sm_ops(sb): c()
                I("s_nop 1"); I(f"s_branch {lb}")
        self.attn_rare = cold

    HB = 65536; HC = 4416; XB = 136192; YB = 148480
    SC, SJ, SB, SCH, SHB_, SWO, SCX = 34, 35, 36, 37, 38, 39, 40
    WS_ = [16, 24, 32, 40, 176, 184, 56, 80, 88, 96, 104, 144, 152, 160]
    CS_ = [168, 112, 120, 128, 136, 64, 72]
    NL = 4
    def tail_setup(self):
        I = self.I; L = []; E = lambda t: L.append((lambda: I(t), 4))
        SC, SJ, SB, SCH, SHB_, SWO, SCX = self.SC, self.SJ, self.SB, self.SCH, self.SHB_, self.SWO, self.SCX
        self.wtok = {}; self.wslot = dict(enumerate(self.WS_))
        E(f"s_lshr_b32 s{SC}, s{SW}, 2"); E(f"s_and_b32 s{SJ}, s{SW}, 3")
        E(f"s_lshl_b32 s{SCH}, s{SF}, 1"); E(f"s_add_u32 s{SCH}, s{SCH}, s{SC}"); E(f"s_lshl_b32 s{SCH}, s{SCH}, 12")
        E(f"s_lshl_b32 s60, s{SJ}, 10"); E("v_add_u32 v50, s60, v6"); E("v_subrev_u32 v51, 16, v50")
        E(f"s_lshr_b32 s60, s{SCH}, 8"); E(f"s_add_u32 s60, s60, {KVT_OFF}"); E("v_lshlrev_b32 v49, 9, v50")
        def ld(t):
            def f(): I(t); self.th = self.vm.issue()
            L.append((f, 16))
        ld(f"buffer_load_dwordx4 {v(160,4)}, v51, s[{RB}:{RB+3}], s{SCH} offen")
        ld(f"buffer_load_dwordx4 {v(164,4)}, v50, s[{RB}:{RB+3}], s{SCH} offen")
        ld(f"buffer_load_dwordx4 {v(168,4)}, v49, s[{RWS}:{RWS+3}], s60 offen{self.ld}")
        E(f"s_lshl_b32 s{SWO}, s57, 19"); E(f"s_lshl_b32 s60, s{SW}, 16"); E(f"s_add_u32 s{SWO}, s{SWO}, s60"); E(f"s_add_u32 s{SWO}, s{SWO}, {WOT_OFF}")
        L2 = [(lambda i=i: self.wload(i), 36) for i in range(self.o.get("we", 0))]
        L3 = []; L, Lx = L3, L
        E = lambda t: L3.append((lambda: I(t), 4))
        E(f"s_mul_i32 s{SB}, s{SC}, 6144"); E(f"s_add_u32 s{SB}, s{SB}, {self.XB}")
        E(f"s_mul_i32 s{SHB_}, s{SC}, {8*self.HC}"); E(f"s_add_u32 s{SHB_}, s{SHB_}, {self.HB}")
        E(f"s_lshl_b32 s{SCX}, s56, 19"); E(f"s_lshl_b32 s60, s{SW}, 15"); E(f"s_add_u32 s{SCX}, s{SCX}, s60"); E(f"s_add_u32 s{SCX}, s{SCX}, {CTX_OFF}")
        return Lx, L2, L3
    def wreg(self, i):
        return self.WS_[i % len(self.WS_)]
    def wload(self, i):
        I = self.I; r = self.wslot[i]
        I(f"s_add_u32 s61, s{self.SWO}, {i*2048}")
        for mt in range(2):
            I(f"buffer_load_dwordx4 {v(r+4*mt,4)}, v6, s[{RWS}:{RWS+3}], s61 offen offset:{mt*1024}{self.ld}"); self.wtok[i] = self.vm.issue()
    def tail_valu(self):
        I = self.I; HC = self.HC; L = []; E = lambda t: L.append((lambda: I(t), 4))
        SJ, SB, SHB_ = self.SJ, self.SB, self.SHB_
        Ee, Eo, Oe, Oo = 160, 113, 122, 131
        E(f"s_add_u32 s60, s{SHB_}, 64"); E("v_add_u32 v138, s60, v50")
        E("v_and_b32 v51, 3, v0"); E("v_mul_u32_u24 v139, 1536, v51"); E("v_lshrrev_b32 v53, 6, v50"); E("v_lshl_add_u32 v139, v53, 4, v139")
        E(f"s_add_u32 s60, s{SB}, 512"); E("v_add_u32 v139, s60, v139")
        for r in range(2): E(f"v_mov_b64 {v(172+2*r,2)}, 0")
        E("v_bfe_u32 v140, v0, 2, 3"); E(f"v_mul_u32_u24 v140, {HC}, v140"); E("v_lshl_add_u32 v140, v51, 4, v140"); E(f"v_add_u32 v140, s{SHB_}, v140")
        E(f"s_mul_i32 s60, s{SJ}, 1536"); E(f"s_add_u32 s60, s60, s{SB}"); E("v_lshl_add_u32 v141, v0, 3, s60")
        E("s_waitcnt vmcnt(1)")
        for k in range(7): E(f"v_alignbit_b32 v{Oe+k}, v{Ee+k+1}, v{Ee+k}, 16")
        for k in range(1, 7): E(f"v_alignbit_b32 v{Oo+k}, v{Ee+k+1}, v{Ee+k}, 16")
        for k in range(1, 7): E(f"v_mov_b32 v{Eo+k}, v{Ee+k}")
        return L
    def tail_writes(self):
        I = self.I; lg = self.lg; HC = self.HC; L = []
        Ee, Eo, Oe, Oo = 160, 113, 122, 131
        def W(t, pre=None):
            def f():
                if pre: pre()
                I(t); lg.issue()
            L.append(f)
        for r in range(8):
            sft = 1 + r; k = sft >> 1
            base = ((Oe, Oo) if sft & 1 else (Ee, Eo))[k & 1]
            W(f"ds_write_b128 v138, {v(base+k,4)} offset:{r*HC}")
        W(f"ds_write_b128 v140, {v(172,4)}"); W(f"ds_write_b64 v141, {v(172,2)}")
        W(f"ds_write_b128 v139, {v(168,4)}", lambda: self.vm.wait(self.th))
        return L
    def tailp(self):
        a = self.a; I = self.I; vm = self.vm; lg = self.lg
        HB, HC, YB = self.HB, self.HC, self.YB
        SC, SJ, SB, SCH, SHB_, SWO, SCX = self.SC, self.SJ, self.SB, self.SCH, self.SHB_, self.SWO, self.SCX
        ACC = 192; FRS = [224, 240, 64]; RD_ = 224
        VL16, VA, VB, T, VP, VPA, VO, GR, VLW, XR = 6, 4, 5, 12, 7, 8, 9, 10, 11, 48
        OACC = 192
        NW, NCX, NL = len(self.WS_), len(self.CS_), self.o.get("nl", 0)
        wtok = self.wtok; ctok = {}; wslot = self.wslot; cslot = dict(enumerate(self.CS_))
        I(f"s_lshr_b32 s53, s56, 1"); I("s_lshl_b32 s53, s53, 10"); I(f"s_lshl_b32 s44, s{SW}, 7"); I("s_add_u32 s53, s53, s44"); I(f"s_add_u32 s53, s53, {FC_OFF}")
        I(f"v_and_b32 v{VPA}, 3, v0"); I(f"v_lshlrev_b32 v{VPA}, 2, v{VPA}")
        P0 = self.o.get("p0", 0)
        tc0 = self.poll_issue(VP, VPA, "s53") if P0 else self.tctx
        PUBN = self.o.get("pubn", 1)
        I(f"s_lshr_b32 s45, s{SHEAD}, 2"); I("s_lshl_b32 s45, s45, 7"); I(f"s_and_b32 s44, s{SHEAD}, 3"); I("s_lshl_b32 s44, s44, 2"); I("s_add_u32 s45, s45, s44")
        I(f"s_sub_u32 s44, 15, s{SIDX}"); I("s_lshl_b32 s44, s44, 10"); I("s_add_u32 s46, s44, s45"); I(f"s_add_u32 s46, s46, {FC_OFF}")
        I(f"s_lshl_b32 s44, s{SIDX}, 10"); I("s_add_u32 s47, s44, s45"); I(f"s_add_u32 s47, s47, {FC_OFF}")
        self.srd(RC, "out", 2*MB); self.srd(RD, "q", 2*MB)
        I(f"s_lshl_b32 s44, s{SF}, 2"); I(f"s_load_dword s55, s[{P['ssmD']}:{P['ssmD']+1}], s44")
        I(f"v_and_b32 v{T}, 31, v0"); I(f"v_lshrrev_b32 v{T+1}, 5, v0")
        I(f"v_and_b32 v{T+2}, 7, v0"); I(f"v_mul_u32_u24 v{VA}, {HC}, v{T+2}")
        I(f"v_bfe_u32 v{T+2}, v0, 3, 2"); I(f"v_sub_u32 v{T+2}, v{T+2}, v{T+1}"); I(f"v_lshl_add_u32 v{VA}, v{T+2}, 4, v{VA}")
        I(f"s_lshl_b32 s43, s{SJ}, 9"); I(f"s_add_u32 s43, s43, s{SHB_}"); I("s_add_u32 s43, s43, 32"); I(f"v_add_u32 v{VA}, s43, v{VA}")
        I(f"s_lshl_b32 s43, s{SJ}, 7"); I(f"s_sub_u32 s43, s{SB}, s43"); I("s_add_u32 s43, s43, 400")
        I(f"v_lshl_add_u32 v{VB}, v{T}, 4, s43"); I(f"v_mul_u32_u24 v{T+2}, 1536, v{T+1}"); I(f"v_add_u32 v{VB}, v{VB}, v{T+2}")
        I(f"s_lshl_b32 s51, s{SW}, 13"); I(f"v_add_u32 v{VLW}, s51, v{VL16}")
        I("s_waitcnt lgkmcnt(0)"); lg.mark_all_done(); self.barrier()
        self.stamp(5)
        def cload(i):
            r = cslot[i]
            I(f"s_add_u32 s62, s{SCX}, {(i//4)*4096}"); I("s_add_u32 s63, s62, 0x40000")
            for st in range(2):
                I(f"buffer_load_dwordx4 {v(r+4*st,4)}, v{VL16}, s[{RWS}:{RWS+3}], s{62+st} offen offset:{(i%4)*1024}{self.ld}"); ctok[i] = vm.issue()
        ltok = {}
        def lstage(j):
            I(f"s_add_u32 m0, s51, {j*2048}"); I(f"s_add_u32 s61, s{SWO}, {(NW+j)*2048}")
            for mt in range(2):
                I(f"buffer_load_dwordx4 v{VL16}, s[{RWS}:{RWS+3}], s61 offen offset:{mt*1024}{self.ld} lds"); ltok[j] = vm.issue()
        def early(lo, hi, level):
            le = a.label("NE")
            I(f"s_cmp_lg_u32 s50, {level}"); I(f"s_cbranch_scc1 {le}")
            sv = self.save()
            for i in range(lo, hi): cload(i)
            self.restore(sv); I(f"s_mov_b32 s50, {level+1}")
            a.L(le)
        def seen():
            I(f"v_and_b32 v{VP}, 1, v{VP}"); I(f"v_cmp_ne_u32 vcc, 1, v{VP}"); I("s_cmp_eq_u64 vcc, 0"); I("s_cselect_b32 s52, 1, 0"); I("s_max_u32 s50, s50, s52")
        I("s_mov_b32 s50, 0")
        wl = [lambda i=i: self.wload(i) for i in range(NW) if i not in wtok] + [lambda j=j: lstage(j) for j in range(NL)]
        steps = [(dd, ks) for dd in range(8) for ks in range(2)]
        toks = {}
        def reads(n):
            dd, ks = steps[n]; b = FRS[n % 3]
            def r(k, reg, addr, off):
                def f():
                    I(f"ds_read_b128 {v(reg,4)}, v{addr} offset:{off}"); toks[(n, k)] = lg.issue()
                return f
            return [r(0, b, VA, 64*dd + 32*(1-ks)), r(1, b+4, VB, ks*3072 + (7-dd)*16),
                    r(2, b+8, VB, ks*3072 + (7-dd)*16 + 512), r(3, b+12, VA, 64*dd + 32*(1-ks) + 2048)]
        for n in range(2):
            for f in reads(n): f()
        for n in range(16):
            b = FRS[n % 3]; L = reads(n+2) if n + 2 < 16 else []
            c0 = "0" if n == 0 else v(ACC,16); c1 = "0" if n == 0 else v(ACC+16,16)
            lg.wait(toks[(n,1)]); I(f"{MFMA} {v(ACC,16)}, {v(b,4)}, {v(b+4,4)}, {c0}")
            for f in L[0:2]: f()
            lg.wait(toks[(n,2)]); I(f"{MFMA} {v(ACC+16,16)}, {v(b,4)}, {v(b+8,4)}, {c1}")
            for f in L[2:3]: f()
            lg.wait(toks[(n,3)]); I(f"{MFMA} {v(ACC+16,16)}, {v(b+12,4)}, {v(b+4,4)}, {v(ACC+16,16)}")
            for f in L[3:4]: f()
            if n == PUBN:
                vm.wait(tc0); self.barrier(); self.publish(46); self.publish(47)
                if P0: seen()
            if n >= PUBN and n < 14:
                for _ in range(-(-len(wl) // (14 - n))): wl.pop(0)()
            if n == self.o.get("p1", 12): tc1 = self.poll_issue(VP, VPA, "s53")
            if n == 14 and P0: early(0, NCX - 2, 1)
        assert not wl
        I(f"s_add_u32 s43, s51, {HB}"); I(f"v_add_u32 v{T+2}, s43, v{VL16}")
        self.barrier()
        for i in range(8):
            I(f"ds_write_b128 v{T+2}, {v(ACC+4*i,4)} offset:{1024*i}"); lg.issue()
        I(f"s_lshl_b32 s43, s{SC}, 15"); I(f"s_lshl_b32 s44, s{SJ}, 11"); I("s_add_u32 s43, s43, s44"); I(f"s_add_u32 s43, s43, {HB}"); I(f"v_add_u32 v{T+2}, s43, v{VL16}")
        I(f"s_and_b32 s43, s{SJ}, 1"); I("s_mul_i32 s44, s43, 3072"); I(f"s_lshr_b32 s45, s{SJ}, 1"); I("s_lshl_b32 s41, s45, 9")
        I("s_add_u32 s44, s44, s41"); I(f"s_add_u32 s44, s44, s{SB}"); I("s_add_u32 s44, s44, 520")
        I(f"v_lshl_add_u32 v{T+3}, v{T}, 4, s44"); I(f"v_lshlrev_b32 v{VA}, 3, v{T+1}"); I(f"v_sub_u32 v{T+3}, v{T+3}, v{VA}")
        I(f"v_lshlrev_b32 v{VB}, 6, v{T}"); I(f"v_lshl_add_u32 v{VB}, v{T+1}, 4, v{VB}")
        I("s_lshl_b32 s45, s45, 11"); I("s_lshl_b32 s43, s43, 5"); I("s_add_u32 s45, s45, s43"); I(f"s_lshl_b32 s43, s{SC}, 12"); I("s_add_u32 s45, s45, s43")
        I(f"s_add_u32 s45, s45, {YB}"); I(f"v_add_u32 v{VB}, s45, v{VB}")
        I("s_lshl_b32 s43, s55, 16"); I("s_and_b32 s44, s55, 0xffff0000"); I(f"s_cmp_eq_u32 s{SC}, 0"); I("s_cselect_b32 s55, s43, s44")
        lg.wait(lg.issued); self.barrier()
        self.stamp(12)
        for p in range(4):
            for gq in range(2):
                I(f"ds_read_b128 {v(RD_+8*p+4*gq,4)}, v{T+2} offset:{8192*p+1024*gq}"); lg.issue()
        for gq in range(2):
            I(f"ds_read_b64 {v(ACC+2*gq,2)}, v{T+3} offset:{1536*gq}"); lg.issue()
        lk = a.label("SK"); I("s_cmp_lg_u32 s50, 0"); I(f"s_cbranch_scc1 {lk}")
        sv = self.save(); vm.wait(tc1); seen(); self.restore(sv); early(0, NCX - 2, 1)
        a.L(lk)
        early(NCX - 2, NCX, 2)
        lg.wait(lg.issued)
        for i in range(0, 8, 2):
            I(f"v_pk_add_f32 {v(RD_+i,2)}, {v(RD_+i,2)}, {v(RD_+8+i,2)}"); I(f"v_pk_add_f32 {v(RD_+16+i,2)}, {v(RD_+16+i,2)}, {v(RD_+24+i,2)}")
        for i in range(0, 8, 2): I(f"v_pk_add_f32 {v(RD_+i,2)}, {v(RD_+i,2)}, {v(RD_+16+i,2)}")
        for gq in range(2):
            for r in range(4):
                srcr = ACC + 2*gq + (1 - (r >> 1))
                I(f"v_lshlrev_b32 v{ACC+8}, 16, v{srcr}" if r & 1 else f"v_and_b32 v{ACC+8}, 0xffff0000, v{srcr}")
                I(f"v_fma_f32 v{RD_+4*gq+r}, v{ACC+8}, s55, v{RD_+4*gq+r}")
        for i in range(4): I(f"v_cvt_pk_bf16_f32 v{ACC+12+i}, v{RD_+2*i}, v{RD_+2*i+1}")
        I(f"v_permlane32_swap_b32 v{ACC+12}, v{ACC+14}"); I(f"v_permlane32_swap_b32 v{ACC+13}, v{ACC+15}")
        I(f"ds_write_b128 v{VB}, {v(ACC+12,4)}"); lg.issue()
        lg.wait(lg.issued); self.barrier()
        ly = a.label("NY")
        I(f"s_cmp_lg_u32 s{SW}, 0"); I(f"s_cbranch_scc1 {ly}")
        I(f"v_add_u32 v{T}, {YB}, v{VL16}")
        for i in range(8): I(f"ds_read_b128 {v(RD_+4*i,4)}, v{T} offset:{1024*i}")
        I(f"s_lshl_b32 s44, s{SF}, 13"); I(f"s_add_u32 s44, s44, {YT_OFF}"); I("s_add_u32 s45, s44, 4096")
        I("s_waitcnt lgkmcnt(0)")
        for i in range(8): I(f"buffer_store_dwordx4 {v(RD_+4*i,4)}, v{VL16}, s[{RWS}:{RWS+3}], s{44+(i>>2)} offen offset:{1024*(i&3)}{self.st}")
        a.L(ly)
        ll = a.label("NL")
        I("s_cmp_eq_u32 s50, 3"); I(f"s_cbranch_scc1 {ll}")
        self.poll_check(VP, VPA, "s53", 1)
        for i in range(NCX): cload(i)
        a.L(ll)
        self.stamp(6)
        YT = self.XB
        lrd = {}; ypub = False; ymark = vm.issued; free = []; fresh = []; nw = NW; nw2 = NW + NL; nc = NCX
        for i in range(32):
            if i % 4 == 0 and self.o.get("ostamp"): self.stamp(17 + i // 4)
            if i == 14:
                I(f"s_lshl_b32 s53, s57, 7"); I(f"s_lshl_b32 s42, s{SW}, 4"); I("s_add_u32 s53, s53, s42"); I(f"s_add_u32 s53, s53, {FY_OFF}")
                tf = self.poll_issue(VP, VPA, "s53")
            if i == 24:
                vm.wait(tf); self.poll_check(VP, VPA, "s53", 1)
                I(f"v_lshrrev_b32 v{T}, 3, v0"); I(f"v_and_b32 v{T+1}, 7, v0"); I(f"v_lshlrev_b32 v{T+1}, 4, v{T+1}")
                I(f"v_lshl_add_u32 v{T}, v{T}, 12, v{T+1}")
                I(f"s_add_u32 m0, s{SWK}, {YT}")
                I(f"s_lshl_b32 s44, s57, 18"); I(f"s_lshl_b32 s45, s{SW}, 15"); I("s_add_u32 s44, s44, s45")
                I(f"s_lshl_b32 s45, s56, 7"); I("s_add_u32 s44, s44, s45"); I(f"s_add_u32 s44, s44, {YT_OFF}")
                I(f"buffer_load_dwordx4 v{T}, s[{RWS}:{RWS+3}], s44 offen{self.ld} lds"); vm.issue()
                I(f"v_and_b32 v{T+1}, 15, v0"); I(f"s_lshr_b32 s48, s{SW}, 1"); I("s_lshl_b32 s48, s48, 4")
                I(f"s_lshl_b32 s45, s56, 6"); I("s_add_u32 s45, s45, s48"); I(f"v_add_u32 v{T+1}, s45, v{T+1}")
                I(f"v_lshlrev_b32 v{T+2}, 2, v{T+1}"); I(f"s_mov_b32 s45, {G_OFF}")
                I(f"buffer_load_dword v{GR}, v{T+2}, s[{RWS}:{RWS+3}], s45 offen{self.ld}"); vm.issue()
                I(f"v_lshrrev_b32 v{T+2}, 4, v0"); I(f"v_lshlrev_b32 v{T+2}, 4, v{T+2}"); I(f"v_lshl_add_u32 v{VO}, v{T+1}, 10, v{T+2}")
                I(f"s_and_b32 s49, s{SW}, 1"); I("s_lshl_b32 s49, s49, 6"); I(f"s_lshl_b32 s45, s57, 7"); I("s_add_u32 s49, s49, s45")
                I(f"buffer_load_dwordx4 {v(XR,4)}, v{VO}, s[{RD}:{RD+3}], s49 offen"); vm.issue()
            vm.wait(max(ctok[i], wtok.get(i, 0)))
            if i in lrd: lg.wait(lrd[i])
            if not ypub and vm.done > ymark:
                ypub = True
                I(f"s_lshl_b32 s44, s{SF}, 2"); I(f"s_add_u32 s44, s44, {FY_OFF}"); self.publish(44, 3)
            for mt in range(2):
                for st in range(2):
                    d = v(OACC + 16*(2*mt+st), 16)
                    I(f"{MFMA} {d}, {v(wslot[i]+4*mt,4)}, {v(cslot[i]+4*st,4)}, {'0' if i == 0 else d}")
            lagged, fresh = fresh, [wslot[i], cslot[i]]
            free += fresh
            while free:
                if nw < NW + NL and nw - i <= 3:
                    j = nw - NW; assert vm.done >= ltok[j]
                    r = free.pop(0); wslot[nw] = r
                    I("s_nop 3")
                    for mt in range(2):
                        I(f"ds_read_b128 {v(r+4*mt,4)}, v{VLW} offset:{j*2048+mt*1024}"); lrd[nw] = lg.issue()
                    nw += 1
                elif nc < 32 and (nc <= nw2 or nw2 >= 32):
                    cslot[nc] = free.pop(0); cload(nc); nc += 1
                elif nw2 < 32:
                    wslot[nw2] = free.pop(0); self.wload(nw2); nw2 += 1
                else: break
        self.stamp(7)
        I(f"v_and_b32 v{T}, 31, v0"); I(f"v_lshrrev_b32 v{T+1}, 5, v0"); I(f"v_and_b32 v{T+2}, 15, v0")
        I(f"v_lshlrev_b32 v{T+1}, 1, v{T+1}")
        I(f"v_xor_b32 v{T+1}, v{T+1}, v{T+2}"); I(f"v_lshlrev_b32 v{T+1}, 4, v{T+1}"); I(f"v_lshl_add_u32 v{T}, v{T}, 8, v{T+1}")
        I(f"v_add_u32 v{T}, s51, v{T}")
        for mt in range(2):
            for gq in range(4):
                I(f"v_xor_b32 v{T+1}, {(4*gq+mt)*16}, v{T}"); I(f"v_add_u32 v{T+3}, 0x10000, v{T+1}")
                for st in range(2):
                    I(f"ds_write_b128 v{T+1+2*st}, {v(OACC+16*(2*mt+st)+4*gq,4)}"); lg.issue()
        I(f"v_lshrrev_b32 v{T}, 4, v0"); I(f"s_and_b32 s41, s{SW}, 1"); I("s_lshl_b32 s42, s41, 3")
        I(f"v_lshl_add_u32 v{T+1}, v{T}, 1, s42"); I(f"v_xor_b32 v{T+1}, v{T+1}, v{T+2}"); I(f"v_lshlrev_b32 v{T+1}, 4, v{T+1}")
        I("s_and_b32 s43, s48, 16"); I(f"v_add_u32 v{T+3}, s43, v{T+2}"); I(f"v_lshl_add_u32 v24, v{T+3}, 8, v{T+1}")
        I("s_lshr_b32 s43, s48, 5"); I("s_lshl_b32 s43, s43, 16"); I("v_add_u32 v24, s43, v24"); I("v_xor_b32 v25, 16, v24")
        I("s_lshl_b32 s42, s41, 5"); I(f"v_lshl_add_u32 v{T}, v{T}, 3, s42"); I(f"v_bfe_u32 v{T+1}, v0, 2, 2")
        I(f"v_add_u32 v{T}, v{T}, v{T+1}"); I(f"v_lshlrev_b32 v{T}, 7, v{T}"); I(f"v_and_b32 v{T+1}, 3, v0")
        I(f"v_lshl_add_u32 v{T}, v{T+1}, 3, v{T}"); I("s_lshl_b32 s42, s48, 1"); I(f"s_add_u32 s42, s42, {YT}"); I(f"v_add_u32 v28, s42, v{T}")
        self.sync_all()
        CX = 128; tk = []
        I(f"ds_read_b64_tr_b16 {v(100,2)}, v28"); lg.issue()
        I(f"ds_read_b64_tr_b16 {v(102,2)}, v28 offset:512"); ty2 = lg.issue()
        for p in range(8):
            for hh in range(2):
                I(f"ds_read_b128 {v(CX+8*p+4*hh,4)}, v{24+hh} offset:{8192*p}"); lg.issue()
            tk.append(lg.issued)
            if p == 5:
                lg.wait(ty2)
                for e in range(8):
                    if e & 1: I(f"v_and_b32 v104, 0xffff0000, v{XR+(e>>1)}"); I(f"v_and_b32 v105, 0xffff0000, v{100+(e>>1)}")
                    else: I(f"v_lshlrev_b32 v104, 16, v{XR+(e>>1)}"); I(f"v_lshlrev_b32 v105, 16, v{100+(e>>1)}")
                    I(f"v_mul_f32 v{112+e}, v104, v105"); I(f"v_mul_f32 v{112+e}, v{112+e}, v{GR}")
                I(f"v_sub_f32 v{GR}, 1.0, v{GR}")
        for p in range(1, 8):
            lg.wait(tk[p])
            for e in range(0, 8, 2): I(f"v_pk_add_f32 {v(CX+e,2)}, {v(CX+e,2)}, {v(CX+8*p+e,2)}")
        for e in range(8): I(f"v_fmac_f32 v{112+e}, v{CX+4*(e&1)+(e>>1)}, v{GR}")
        for e in range(4): I(f"v_cvt_pk_bf16_f32 v{108+e}, v{112+2*e}, v{112+2*e+1}")
        I(f"buffer_store_dwordx4 {v(108,4)}, v{VO}, s[{RC}:{RC+3}], s49 offen{' sc1' if not self.o.get('outpl') else ' nt' if self.o.get('outnt') else ''}"); vm.issue()
        self.stamp(16)
        if self.o.get("echo"):
            lp = a.label("EC")
            I("s_sub_u32 s100, s100, s96")
            if self.o.get("cyc"): I("s_lshr_b32 s100, s100, 4")
            I("s_memrealtime s[96:97]"); I("s_waitcnt lgkmcnt(0)")
            a.L(lp)
            I("s_memrealtime s[98:99]"); I("s_waitcnt lgkmcnt(0)"); I("s_sub_u32 s98, s98, s96"); I("s_cmp_lt_u32 s98, s100"); I(f"s_cbranch_scc1 {lp}")
        if self.o.get("dbgout") is not None:
            l = a.label("DB")
            I(f"s_cmp_lg_u32 s2, {self.o['dbgout']}"); I(f"s_cbranch_scc1 {l}"); I(f"s_cmp_lg_u32 s{SW}, 0"); I(f"s_cbranch_scc1 {l}")
            I("s_waitcnt vmcnt(0)")
            order = [0, 1, 2, 3, 8, 10, 11, 4, 5, 12, 6, 7, 16]
            I("v_mov_b32 v20, 0")
            for j, i in enumerate(order):
                I(f"s_mov_b32 s44, {4*i}"); I(f"v_writelane_b32 v20, s44, {j}")
            I(f"s_lshl_b32 s44, s2, 11"); I(f"s_add_u32 s44, s44, {STAMP_OFF}")
            I(f"buffer_load_dword v21, v20, s[{RWS}:{RWS+3}], s44 offen sc1"); I("s_waitcnt vmcnt(0)")
            I("v_readfirstlane_b32 s45, v21"); I("v_subrev_u32 v21, s45, v21")
            self.srd(RDBG, "dbg", 64); I("v_lshlrev_b32 v22, 2, v0")
            I(f"buffer_store_dword v21, v22, s[{RDBG}:{RDBG+3}], 0 offen")
            a.L(l)

def build(opts):
    g = G(opts); k = NAME + "_kernel"
    g.begin(k); g.a.T("; MARK p"); g.proj(); g.a.T("; MARK a"); g.attn(); g.a.T("; MARK t"); g.tailp(); g.end(); g.a.T("; MARK a"); g.attn_rare(); g.a.T("; MARK t"); g.a.L("CODE_END"); g.a.I("s_endpgm")
    n = g.a.fix_hazards()
    txt = "; @launch grid=(256,1,1) block=(512,1,1) lds=163840\n"
    txt += '.amdgcn_target "amdgcn-amd-amdhsa--gfx950"\n.text\n' + g.a.text()
    txt += f""".section .rodata,"a"
.p2align 6
.amdhsa_kernel {k}
  .amdhsa_next_free_vgpr 256
  .amdhsa_next_free_sgpr 102
  .amdhsa_accum_offset 256
  .amdhsa_group_segment_fixed_size 0
  .amdhsa_kernarg_size 128
  .amdhsa_user_sgpr_count 2
  .amdhsa_user_sgpr_kernarg_segment_ptr 1
  .amdhsa_system_sgpr_workgroup_id_x 1
.end_amdhsa_kernel
"""
    print(f"instructions {sum(1 for it in g.a.items if it[0] == 'i')}, nops inserted {n}", file=sys.stderr)
    return txt

if __name__ == "__main__":
    opts = {}
    for x in sys.argv[2:]:
        if "=" in x: k_, v_ = x.split("="); opts[k_] = int(v_)
        else: opts[x] = True
    open(sys.argv[1], "w").write(build(opts))
```

```python
import sys, math, struct
sys.path.insert(0, "gen")
from asmlib import *

NAME = "gated_mix__ssm_conv_h3__compressed_kv_cla__prompt"
MB = 1 << 20
KV_OFF, Q_OFF, CTX_OFF, KVT_OFF, YT_OFF, G_OFF = 0, 32*MB, 48*MB, 64*MB, 66*MB, 68*MB
XC_OFF = 40*MB
WOT_OFF = 32*MB
FLG_OFF = 68*MB + 65536
FK_OFF, FY_OFF, FC_OFF = FLG_OFF, FLG_OFF + 4096, FLG_OFF + 8192
STAMP_OFF = 69*MB
WS_SIZE = 70*MB
P = dict(q=64, k=66, v=68, shift=70, ssmk=72, ssmD=74, bx=76, ckv=78, wq=80, wuk=82, wuv=84, wo=86, gate=88, out=90, dbg=92, ws=94)
SW, SHEAD, SIDX, SWK, SF = 3, 4, 5, 6, 7
RA, RB, RC, RWS, RD, RE, RT, RDBG = 8, 12, 16, 20, 24, 28, 56, 60
MFMA = "v_mfma_f32_32x32x16_bf16"
LOG2E = 1.4426950408889634
F_KV, F_CA, F_CB, F_Y = 1, 2, 4, 8
def f2u(x): return "0x%08x" % struct.unpack("<I", struct.pack("<f", x))[0]
def rep4(b): return b * 0x01010101

class G:
    def __init__(self, opts):
        self.a = Asm(); self.o = opts
        self.vm = Cnt(self.a, "vmcnt", 63); self.lg = Cnt(self.a, "lgkmcnt", 15)
        self.st = "" if opts.get("plainst") else (" sc1 nt" if opts.get("ntst") else " sc1"); self.ld = "" if opts.get("plainld") else " sc1"
    def I(self, t): self.a.I(t)
    def srd(self, r, ptr, nbytes):
        I = self.I
        I(f"s_mov_b32 s{r}, s{P[ptr]}"); I(f"s_mov_b32 s{r+1}, s{P[ptr]+1}")
        I(f"s_mov_b32 s{r+2}, {nbytes}"); I(f"s_mov_b32 s{r+3}, 0x00020000")
    def save(self): return (self.vm.issued, self.vm.done, self.lg.issued, self.lg.done)
    def restore(self, s_): self.vm.issued, self.vm.done, self.lg.issued, self.lg.done = s_
    def stream(self, mf, fills):
        n = len(mf); slots = [[] for _ in range(n + 1)]
        for (s0, e0, cl) in fills:
            m = e0 - s0
            for j, c in enumerate(cl): slots[s0 + 1 + (j * m) // len(cl)].append(c)
        for c in slots[0]: c()
        for i in range(n):
            mf[i]()
            for c in slots[i+1]: c()
    def stamp(self, i, dyn=None):
        if self.o.get("echo") == i:
            self.I("s_memtime s[100:101]" if self.o.get("cyc") else "s_memrealtime s[100:101]"); self.I("s_waitcnt lgkmcnt(0)")
        if not self.o.get("stamp"): return
        I = self.I
        I("s_memrealtime s[96:97]"); I("s_memtime s[100:101]")
        I("s_lshl_b32 s98, s2, 3"); I(f"s_add_u32 s98, s98, s{SW}"); I("s_lshl_b32 s98, s98, 8")
        I(f"s_add_u32 s98, s98, {STAMP_OFF + 4*i}")
        if dyn is not None:
            I(f"s_lshl_b32 s99, s{dyn}, 4"); I("s_add_u32 s98, s98, s99")
        I("s_waitcnt lgkmcnt(0)")
        I("v_mov_b32 v2, s96"); I("v_mov_b32 v3, 0")
        I(f"buffer_store_dword v2, v3, s[{RWS}:{RWS+3}], s98 offen")
        I("v_mov_b32 v2, s100")
        I(f"buffer_store_dword v2, v3, s[{RWS}:{RWS+3}], s98 offen offset:128")
    OOB = 0x40000000
    def publish(self, soff, val=1, srd=RWS, byte=False, idx=None):
        I = self.I
        self.oob_sel()
        if idx is not None: I(f"s_and_b32 s98, s{SIDX}, 3"); I(f"s_cmp_eq_u32 s98, {idx}"); I(f"s_cselect_b32 s99, s99, {self.OOB}")
        I(f"v_mov_b32 v2, {val}"); I("v_mov_b32 v3, s99")
        I(f"buffer_store_{'byte' if byte else 'dword'} v2, v3, s[{srd}:{srd+3}], s{soff} offen sc1"); self.vm.issue()
    def oob_sel(self):
        self.I(f"s_cmp_eq_u32 s{SW}, 0"); self.I(f"s_cselect_b32 s99, 0, {self.OOB}")
    def poll_issue(self, vd, vaddr, soff, srd=RWS):
        self.I(f"buffer_load_dword v{vd}, v{vaddr}, s[{srd}:{srd+3}], {soff} offen sc1"); return self.vm.issue()
    def poll_check(self, vd, vaddr, soff, want, srd=RWS):
        a = self.a; I = self.I
        l = a.label("PCK"); lp = a.label("POLL")
        I(f"s_mov_b32 s98, {want}"); I("s_mov_b32 s99, 20000")
        a.L(lp)
        I(f"v_and_b32 v{vd}, s98, v{vd}"); I(f"v_cmp_ne_u32 vcc, s98, v{vd}"); I(f"s_cbranch_vccz {l}")
        I("s_sleep 2")
        I(f"buffer_load_dword v{vd}, v{vaddr}, s[{srd}:{srd+3}], {soff} offen sc1")
        I("s_sub_u32 s99, s99, 1"); I("s_cmp_lg_u32 s99, 0"); I("s_waitcnt vmcnt(0)"); I(f"s_cbranch_scc1 {lp}")
        a.L(l)
    def barrier(self): self.I("s_barrier")
    def sync_all(self):
        self.I("s_waitcnt vmcnt(0) lgkmcnt(0)"); self.vm.mark_all_done(); self.lg.mark_all_done(); self.barrier()

    def begin(self, kname):
        a = self.a; I = self.I
        a.T(f".globl {kname}\n.p2align 8\n.type {kname},@function"); a.L(kname)
        self.endl = a.label("END")
        if self.o.get("stamp"): I("s_memrealtime s[30:31]")
        if self.o.get("echo"): I("s_memtime s[96:97]" if self.o.get("cyc") else "s_memrealtime s[96:97]")
        I("s_load_dwordx16 s[64:79], s[0:1], 0"); I("s_load_dwordx16 s[80:95], s[0:1], 64")
        I("s_cmp_ge_u32 s2, 256"); I(f"s_cbranch_scc1 {self.endl}")
        I("v_lshrrev_b32 v1, 6, v0"); I("v_and_b32 v0, 63, v0"); I(f"v_readfirstlane_b32 s{SW}, v1")
        I("s_and_b32 s7, s2, 7"); I("s_lshl_b32 s7, s7, 2")
        I(f"s_lshr_b32 s{SIDX}, s2, 3"); I(f"s_lshr_b32 s{SHEAD}, s{SIDX}, 3"); I(f"s_add_u32 s{SHEAD}, s{SHEAD}, s7")
        I(f"s_and_b32 s{SIDX}, s{SIDX}, 7"); I(f"s_lshl_b32 s{SWK}, s{SW}, 10")
        I(f"s_lshl_b32 s{SF}, s{SHEAD}, 3"); I(f"s_add_u32 s{SF}, s{SF}, s{SIDX}")
    def end(self):
        self.a.L(self.endl); self.I("s_endpgm")

    def proj(self):
        a = self.a; I = self.I; vm = self.vm; lg = self.lg
        QA_LDS = 65536
        ACC = {"K": 64, "V": 128, "Q": 64}; KP = 192
        FX = [16, 40]; FW = [24, 48]
        VXA = 4; VWA = 8; VOX, VOW = 10, 11; VST = 12; VXH = 224; T = 232
        NB = 0; XC = self.o.get("xc", 0)
        ST = [("KV", c) for c in range(NB)] + [("K", c) for c in range(NB, 8)] + [("V", c) for c in range(7, NB - 1, -1)] + [("Q", c) for c in range(8)]
        NS = len(ST); TK = 7; TV = NS - 9; TQ = NS - 8
        I("v_lshrrev_b32 v13, 3, v0"); I(f"s_lshl_b32 s40, s{SW}, 3"); I("v_add_u32 v13, s40, v13"); I("v_lshlrev_b32 v13, 10, v13")
        I("v_lshrrev_b32 v14, 4, v0"); I(f"s_and_b32 s40, s{SW}, 1"); I("s_lshl_b32 s40, s40, 2"); I("v_add_u32 v15, s40, v14")
        I("v_and_b32 v3, 7, v0"); I("v_xor_b32 v15, v15, v3"); I(f"v_lshl_add_u32 v{VOX}, v15, 4, v13")
        I(f"s_lshl_b32 s40, s{SW}, 2"); I("v_add_u32 v13, s40, v14"); I("v_lshlrev_b32 v13, 13, v13")
        I("v_lshlrev_b32 v15, 2, v14"); I("v_and_b32 v3, 15, v0"); I("v_xor_b32 v15, v15, v3")
        I("v_lshl_add_u32 v13, v15, 4, v13"); I(f"s_lshl_b32 s40, s{SHEAD}, 8"); I(f"v_add_u32 v{VOW}, s40, v13")
        I(f"v_lshlrev_b32 v{VST}, 4, v0")
        I(f"s_lshl_b32 s44, s{SIDX}, 18")
        for i in range(1, 4): I(f"s_add_u32 s{44+i}, s44, {65536*i}")
        ROT = self.o.get("rot", 2)
        if ROT == 0: I("s_mov_b32 s33, 0")
        elif ROT == 1: I(f"s_mov_b32 s33, s{SIDX}")
        elif ROT == 2: I(f"s_lshr_b32 s33, s{SHEAD}, 2"); I(f"s_add_u32 s33, s33, s{SIDX}")
        elif ROT == 3: I(f"s_lshr_b32 s33, s{SHEAD}, 2"); I(f"s_add_u32 s33, s33, s{SIDX}"); I(f"s_lshl_b32 s34, s{SHEAD}, 1"); I("s_add_u32 s33, s33, s34")
        elif ROT == 4: I(f"s_lshr_b32 s33, s{SHEAD}, 2")
        if self.o.get("rotq"): I(f"s_lshl_b32 s32, s{SHEAD}, 1"); I("s_add_u32 s32, s32, s33")
        else: I("s_mov_b32 s32, s33")
        I("s_waitcnt lgkmcnt(0)")
        if self.o.get("stamp"): I("s_memrealtime s[28:29]")
        self.srd(RA, "ckv", 2*MB); self.srd(RB, "wuk", 4*MB); self.srd(RC, "wuv", 4*MB)
        def xbase(t):
            k, c = ST[t]
            return (32768, 131072, 0)[((16 + c) if k == "Q" else (15 - c + NB)) % 3]
        units = [(t, m) for t in range(NS) for m in ST[t][0]]
        uidx = {u: i for i, u in enumerate(units)}
        def wbase(t, m): return 65536 + (uidx[(t, m)] % 4)*16384
        items = []
        lastx = {}
        for t in range(NS):
            k, c = ST[t]
            for m in k:
                u = uidx[(t, m)]
                def w(i, t=t, m=m, c=c):
                    if i == 0: I(f"s_add_u32 s34, s{32 if m == 'Q' else 33}, {c}"); I("s_and_b32 s34, s34, 7"); I("s_lshl_b32 s34, s34, 19")
                    I(f"s_add_u32 m0, s{SWK}, {wbase(t, m) + i*8192}"); I(f"s_add_u32 s41, s34, {i*262144}")
                    r = {"K": RB, "V": RC, "Q": RE}[m]
                    I(f"buffer_load_dwordx4 v{VOW}, s[{r}:{r+3}], s41 offen lds"); dtok[t] = vm.issue()
                items.append((t, units[u-4][0] if u >= 4 else -1, [lambda i=i, w=w: w(i) for i in range(2)]))
            key = ("Q" if k == "Q" else "C", c); prev = lastx.get(xbase(t))
            if prev is None or prev[1] != key:
                def x(i, t=t, k=k, c=c):
                    if i == 0: I(f"s_add_u32 s35, s{32 if k == 'Q' else 33}, {c}"); I("s_and_b32 s35, s35, 7"); I("s_lshl_b32 s35, s35, 7")
                    I(f"s_add_u32 m0, s{SWK}, {xbase(t) + i*8192}"); I(f"s_add_u32 s41, s{(48 if k == 'Q' else 44)+i}, s35")
                    r = (RWS if XC else RD) if k == "Q" else RA
                    I(f"buffer_load_dwordx4 v{VOX}, s[{r}:{r+3}], s41 offen{self.ld if (XC and k == 'Q') else ''} lds"); dtok[t] = vm.issue()
                items.append((t, prev[0] if prev else -1, [lambda i=i, x=x: x(i) for i in range(4)]))
            lastx[xbase(t)] = (t, key)
        dtok = {}
        def take(done, upto=99):
            out = []
            for it in list(items):
                if it[1] <= done and it[0] <= upto: out += it[2]; items.remove(it)
            return out
        for f in take(-1, 0): f()
        self.srd(RWS, "ws", WS_SIZE); self.srd(RDBG, "dbg", 256)
        self.stamp(31)
        if self.o.get("stamp"):
            I("v_mov_b32 v2, s30"); I("s_sub_u32 s98, s98, 124"); I(f"buffer_store_dword v2, v3, s[{RWS}:{RWS+3}], s98 offen")
            I("v_mov_b32 v2, s28"); I(f"buffer_store_dword v2, v3, s[{RWS}:{RWS+3}], s98 offen offset:120")
        I(f"s_lshl_b32 s48, s{SIDX}, 17"); I("s_add_u32 s49, s48, 65536")
        I(f"s_sub_u32 s50, 15, s{SIDX}"); I("s_lshl_b32 s50, s50, 17"); I("s_add_u32 s51, s50, 65536")
        if XC:
            for i in range(4): I(f"s_add_u32 s{48+i}, s{48+i}, {XC_OFF}")
        I(f"s_and_b32 s42, s{SW}, 3"); I("s_lshl_b32 s42, s42, 6"); I(f"s_lshr_b32 s43, s{SW}, 2"); I("s_lshl_b32 s43, s43, 1")
        I("v_and_b32 v13, 31, v0"); I("v_add_u32 v13, s42, v13")
        I("v_lshrrev_b32 v14, 1, v13"); I("v_and_b32 v14, 7, v14"); I("v_lshrrev_b32 v15, 5, v0")
        I("v_xor_b32 v14, v14, v15"); I("v_lshlrev_b32 v14, 4, v14"); I(f"v_lshl_add_u32 v{VXA}, v13, 7, v14")
        for k in range(1, 4): I(f"v_xor_b32 v{VXA+k}, {k<<5}, v{VXA}")
        for k in range(4): I(f"v_add_u32 v{VXH+k}, 0x20000, v{VXA+k}")
        I("v_bfe_u32 v13, v0, 2, 2"); I("v_lshl_add_u32 v14, v15, 3, v13"); I("v_lshlrev_b32 v14, 8, v14")
        I("v_bfe_u32 v15, v0, 4, 1"); I("v_lshl_add_u32 v14, v15, 5, v14")
        I("v_and_b32 v15, 3, v0"); I("v_lshl_add_u32 v14, v15, 3, v14"); I("v_add_u32 v14, 0x10000, v14")
        I("v_xor_b32 v13, s43, v13"); I(f"v_lshl_add_u32 v{VWA}, v13, 6, v14"); I(f"v_xor_b32 v{VWA+1}, 64, v{VWA}")
        I(f"s_lshl_b32 s54, s{SHEAD}, 4"); I(f"s_lshl_b32 s55, s{SIDX}, 1"); I("s_add_u32 s54, s54, s55")
        I(f"s_bfe_u32 s55, s{SW}, 0x10001"); I("s_add_u32 s54, s54, s55"); I("s_lshl_b32 s54, s54, 16")
        I(f"s_and_b32 s55, s{SW}, 1"); I("s_lshl_b32 s55, s55, 14"); I("s_add_u32 s54, s54, s55")
        I("s_lshl_b32 s55, s43, 10"); I("s_add_u32 s52, s54, s55"); I("s_add_u32 s52, s52, 0x8000")
        I("s_lshl_b32 s55, s43, 11"); I("s_add_u32 s54, s54, s55")
        XG = T; GW = T + 4; hl = {}
        def gate_loads():
            L = []
            def E(t): L.append(lambda: I(t))
            def V(t):
                def f(): I(t); hl["t"] = vm.issue()
                L.append(f)
            E(f"s_lshl_b32 s40, s{SHEAD}, 7"); E(f"s_lshl_b32 s39, s{SIDX}, 2"); E("s_add_u32 s40, s40, s39"); E(f"s_add_u32 s40, s40, {FK_OFF}")
            E(f"v_mov_b32 v13, s40")
            E(f"s_lshr_b32 s39, s{SHEAD}, 2"); E("s_lshl_b32 s39, s39, 7"); E(f"s_and_b32 s40, s{SHEAD}, 3"); E("s_lshl_b32 s40, s40, 2"); E("s_add_u32 s39, s39, s40")
            E(f"s_lshl_b32 s40, s{SIDX}, 10"); E("s_add_u32 s40, s40, s39"); E(f"s_add_u32 s40, s40, {FC_OFF}")
            E("v_writelane_b32 v13, s40, 1")
            E(f"s_sub_u32 s40, 15, s{SIDX}"); E("s_lshl_b32 s40, s40, 10"); E("s_add_u32 s40, s40, s39"); E(f"s_add_u32 s40, s40, {FC_OFF}")
            E("v_writelane_b32 v13, s40, 2")
            E(f"s_lshl_b32 s40, s{SF}, 2"); E(f"s_add_u32 s40, s40, {FY_OFF}"); E("v_writelane_b32 v13, s40, 3"); E("v_mov_b32 v14, 0")
            def oo(): self.oob_sel(); I("v_add_u32 v13, s99, v13")
            L.append(oo)
            V(f"buffer_store_dword v14, v13, s[{RWS}:{RWS+3}], 0 offen sc1")
            E("s_lshl_b32 s37, s2, 3"); E(f"s_add_u32 s37, s37, s{SW}"); E("s_lshl_b32 s38, s37, 10")
            L.append(lambda: self.srd(RD, "q", 2*MB)); L.append(lambda: self.srd(RE, "wq", 4*MB)); L.append(lambda: self.srd(RT, "gate", 1024))
            V(f"buffer_load_dwordx4 {v(XG,4)}, v{VST}, s[{RD}:{RD+3}], s38 offen")
            V(f"buffer_load_dwordx4 {v(GW,4)}, v{VST}, s[{RT}:{RT+3}], 0 offen")
            return L
        def gate_ops():
            L = []; E = lambda t: L.append(lambda: I(t)); Z = T + 8
            L.append(lambda: vm.wait(hl["t"]))
            def xs():
                I(f"s_add_u32 s38, s38, {XC_OFF}"); I(f"buffer_store_dwordx4 {v(XG,4)}, v{VST}, s[{RWS}:{RWS+3}], s38 offen{self.st}"); vm.issue()
            if XC: L.append(xs)
            E(f"v_dot2_f32_bf16 v{Z}, v{XG}, v{GW}, 0")
            for i in range(1, 4): E(f"v_dot2_f32_bf16 v{Z}, v{XG+i}, v{GW+i}, v{Z}")
            for m in ("quad_perm:[1,0,3,2] row_mask:0xf", "quad_perm:[2,3,0,1] row_mask:0xf", "row_half_mirror row_mask:0xf", "row_mirror row_mask:0xf",
                      "row_bcast:15 row_mask:0xa", "row_bcast:31 row_mask:0xc"):
                E(f"v_add_f32_dpp v{Z}, v{Z}, v{Z} {m} bank_mask:0xf")
            E(f"v_readlane_b32 s36, v{Z}, 63"); E(f"v_mov_b32 v{Z+1}, {f2u(-LOG2E)}"); E(f"v_mul_f32 v{Z}, s36, v{Z+1}")
            E(f"v_exp_f32 v{Z}, v{Z}"); E(f"v_add_f32 v{Z}, 1.0, v{Z}"); E(f"v_rcp_f32 v{Z}, v{Z}")
            E("s_lshl_b32 s38, s37, 2"); E(f"s_add_u32 s38, s38, {G_OFF}"); E(f"v_mov_b32 v{Z+1}, 0")
            def gs():
                I(f"buffer_store_dword v{Z}, v{Z+1}, s[{RWS}:{RWS+3}], s38 offen{self.st}"); vm.issue()
            L.append(gs)
            return L
        def reads(t, k):
            st = k & 1; toks = {}
            xb = xbase(t); va = VXA if xb < 65536 else VXH
            def rx(mt):
                I(f"ds_read_b128 {v(FX[st]+4*mt,4)}, v{va+k} offset:{(xb & 65535)+mt*4096}"); toks[("x",mt)] = lg.issue()
            def rw(j, dt, h):
                m = ST[t][0][j]
                I(f"ds_read_b64_tr_b16 {v(FW[st]+8*j+4*dt+2*h,2)}, v{VWA+dt} offset:{wbase(t, m)-65536+k*4096+h*1024}"); toks[("w",j,dt)] = lg.issue()
            L = [lambda: rx(0), lambda: rw(0,0,0), lambda: rw(0,0,1), lambda: rw(0,1,0), lambda: rw(0,1,1), lambda: rx(1)]
            if len(ST[t][0]) == 2: L += [lambda: rw(1,0,0), lambda: rw(1,0,1), lambda: rw(1,1,0), lambda: rw(1,1,1)]
            return L, toks
        seen = set()
        def mfs(t, k, toks):
            st = k & 1; L = []
            for j, m in enumerate(ST[t][0]):
                first = m not in seen; seen.add(m)
                for mt in range(2):
                    for dt in range(2):
                        def f(mt=mt, dt=dt, j=j, m=m, first=first):
                            lg.wait(max(toks[("x",mt)], toks[("w",j,dt)]))
                            d = v(ACC[m] + 16*(2*mt+dt), 16); X = v(FX[st]+4*mt,4); W = v(FW[st]+8*j+4*dt,4)
                            c = "0" if first else d
                            I(f"{MFMA} {d}, {X}, {W}, {c}" if m == "V" else f"{MFMA} {d}, {W}, {X}, {c}")
                        L.append(f)
            return L
        def kv_out(m):
            acc = ACC[m]; out = []
            for tile in range(4):
                rt, dt = tile >> 1, tile & 1; b = acc + 16*tile
                for half in range(2):
                    d = KP + 8*tile + 4*half if m == "K" else b + 4*half
                    pk = [lambda i=i, b=b, d=d, half=half: I(f"v_cvt_pk_bf16_f32 v{d+i}, v{b+8*half+2*i}, v{b+8*half+2*i+1}") for i in range(4)]
                    if m == "K": pk = [lambda i=i, b=b: I(f"v_mul_f32 v{b+i}, {f2u(LOG2E / math.sqrt(128.0))}, v{b+i}") for i in range(8*half, 8*half+8)] + pk
                    off = rt*8192 + (dt*2048 + half*1024 if m == "K" else half*4096 + dt*1024)
                    def st(d=d, off=off):
                        if self.o.get("nost"): return
                        I(f"s_add_u32 s41, s{54 if m == 'K' else 52}, {off}")
                        I(f"buffer_store_dwordx4 {v(d,4)}, v{VST}, s[{RWS}:{RWS+3}], s41 offen{self.st}"); vm.issue()
                    out.append((pk, st))
            return out
        side = {}; late = {}
        def spread(ops, t0, t1, dst=side, ks=(0, 1, 2)):
            sl = [(t, k) for t in range(t0, t1) for k in ks]; n = len(ops)
            for j, key in enumerate(sl): dst.setdefault(key, []).extend(ops[n*j//len(sl): n*(j+1)//len(sl)])
        PG = self.o.get("pg", 0)
        spread(gate_loads(), PG, PG + 1); spread(gate_ops(), PG + 2, PG + 3)
        def wtouch(r, half, wv):
            def f():
                I(f"s_cmp_eq_u32 s{SW}, {wv}"); I(f"s_cselect_b32 s99, 0, {self.OOB}")
                I(f"s_lshl_b32 s40, s{SIDX}, 19"); I(f"s_lshl_b32 s39, s{SHEAD}, 8"); I("s_add_u32 s40, s40, s39"); I(f"s_add_u32 s40, s40, {half*32*8192}")
                I("v_lshrrev_b32 v3, 1, v0"); I("v_lshlrev_b32 v3, 13, v3"); I("v_and_b32 v2, 1, v0"); I("v_lshl_add_u32 v3, v2, 7, v3"); I("v_add_u32 v3, s99, v3")
                I(f"buffer_load_dword v1, v3, s[{r}:{r+3}], s40 offen"); vm.issue()
            return f
        for nm, r, dflt in (("tk", RB, -1), ("tv", RC, 1), ("tq", RE, 3)):
            t0 = self.o.get(nm, dflt)
            if t0 >= 0:
                for half in range(2): side.setdefault((t0 + half, 2), []).append(wtouch(r, half, half))
        KN = self.o.get("kn", 8); VD = self.o.get("vd", 0); VN = self.o.get("vn", 5)
        KO = kv_out("K"); VO = kv_out("V")
        spread(sum((p for p, _ in KO), []), TK + 1, min(TK + 3, TQ), ks=(0, 1))
        npk = 2 * (min(TK + 3, TQ) - TK - 1)
        spread([s_ for _, s_ in KO], TK + 1, TK + 1 + KN, dst=late, ks=(2,))
        assert len(late[(TK + 1, 2)]) <= 8 * 2 // npk
        spread(sum((p for p, _ in VO), []), TQ, TQ + 1, ks=(0, 1))
        spread([s_ for _, s_ in VO], TQ + VD, TQ + VD + VN, dst=late, ks=(2,))
        PK_, PV_ = TK + KN + 2, TQ + VD + VN
        assert PK_ <= NS - 5 and PV_ <= NS - 2
        QE = []; EQ = lambda t: QE.append(lambda: I(t))
        EQ(f"s_and_b32 s55, s{SW}, 2"); EQ("s_lshl_b32 s55, s55, 15"); EQ(f"s_add_u32 s55, s55, {QA_LDS}")
        EQ(f"s_and_b32 s54, s{SW}, 1"); EQ("s_lshl_b32 s54, s54, 14"); EQ("s_add_u32 s55, s55, s54")
        EQ("s_lshl_b32 s54, s43, 11"); EQ("s_add_u32 s55, s55, s54"); EQ(f"v_add_u32 v14, s55, v{VST}")
        spread(QE, NS - 1, NS)
        spread([lambda r=r: I(f"v_mov_b64 {v(192+2*r,2)}, 0") for r in range(32)], NS - 1, NS)
        def fkoff():
            I(f"s_lshl_b32 s40, s{SHEAD}, 7"); I(f"s_lshl_b32 s41, s{SIDX}, 2"); I("s_add_u32 s40, s40, s41"); I(f"s_add_u32 s40, s40, {FK_OFF}")
        def w0only(fn):
            l = a.label("NP"); I(f"s_cmp_lg_u32 s{SW}, 0"); I(f"s_cbranch_scc1 {l}"); fn(); a.L(l)
        def k0(i):
            I(f"s_lshl_b32 s40, s{SW}, 12"); I("s_add_u32 m0, s40, 0x8000")
            I(f"s_lshl_b32 s41, s{SHEAD}, 20"); I("s_add_u32 s41, s41, s40")
            I(f"buffer_load_dwordx4 v{VST}, s[{RWS}:{RWS+3}], s41 offen offset:{1024*i}{self.ld} lds"); vm.issue()
        self.barrier()
        for f in take(-1, 1): f()
        vm.wait(dtok[0]); self.barrier()
        self.stamp(1)
        L, toks = reads(0, 0)
        for f in L: f()
        mark = {}; TZ = PG + 4; TS = 10; DS = self.o.get("dsteps", 3)
        pend = take(-1)
        for t in range(NS):
            for k in range(4):
                M = mfs(t, k, toks); n = len(M); PB = []
                if k == 3 and t < NS - 1:
                    assert not pend
                    if t == TS + 2: vm.wait(td); w0only(lambda: self.poll_check(14, 13, "0", rep4(1), RDBG))
                    if t == NS - 3: vm.wait(tp); w0only(lambda: self.poll_check(15, 13, "s53", 1))
                    lg.wait(lg.issued); vm.wait(dtok[t+1])
                    if t == TZ: vm.wait(mark[TZ-2])
                    if t == PK_: vm.wait(mark[TK + KN])
                    if t == PV_: vm.wait(mark[PV_ - 1])
                    self.barrier()
                    ps = self.o.get("pstamp")
                    if ps is not None and 0 <= t - int(ps) + 1 < 13: self.stamp(17 + t - int(ps) + 1); vm.issue(2)
                    if TZ <= t < TZ + 4: PB.append(lambda t=t: self.publish(SF, 1, RDBG, True, idx=t - TZ))
                    if t == PK_: PB.append(lambda: (fkoff(), self.publish(40, 1)))
                    if t == PV_: PB.append(lambda: (fkoff(), self.publish(40, 3)))
                    pend = take(t)
                    if t == NS - 3: pend += [lambda i=i: k0(i) for i in range(4)]
                    nd = len(pend) // (DS + 1)
                else:
                    nd = -(-len(pend) // max(1, (3 if t == 0 else DS) - k))
                D, pend = pend[:nd], pend[nd:]
                fl = []
                if not (t == NS - 1 and k == 3):
                    L, nt = reads(t, k+1) if k < 3 else reads(t+1, 0)
                    fl.append((0, max(3, n - 2) if n > 4 else 3, L))
                if PB: fl.append((1, 2, PB))
                if D: fl.append((0, n, D))
                if side.get((t, k)): fl.append((0, n, side[(t, k)]))
                if late.get((t, k)): fl.append((n - 2, n, late[(t, k)]))
                self.stream(M, fl); toks = nt
                if k == 2: mark[t] = vm.issued
                if t == TS and k == 0:
                    self.oob_sel(); I("v_lshl_add_u32 v13, v0, 2, s99"); td = self.poll_issue(14, 13, "0", RDBG)
                if t == NS - 4 and k == 0:
                    self.oob_sel(); I("v_and_b32 v13, 7, v0"); I("v_lshl_add_u32 v13, v13, 2, s99")
                    I(f"s_lshl_b32 s53, s{SHEAD}, 7"); I(f"s_add_u32 s53, s53, {FK_OFF}")
                    tp = self.poll_issue(15, 13, "s53")
            if t == TK: self.stamp(2)
            if t == TV: self.stamp(13)
        assert not items
        self.stamp(3)
        I("v_mov_b32 v62, v13")
        self.poll_issue(63, 62, "s53")
        for tile in range(4):
            rt, dt = tile >> 1, tile & 1; b = ACC["Q"] + 16*tile
            for i in range(8): I(f"v_cvt_pk_bf16_f32 v{b+i}, v{b+2*i}, v{b+2*i+1}")
            for half in range(2):
                I(f"ds_write_b128 v14, {v(b+4*half,4)} offset:{rt*8192+dt*2048+half*1024}"); lg.issue()
        self.attn_setup()
        vm.wait(vm.issued); w0only(lambda: self.poll_check(63, 62, "s53", 3))
        lg.wait(lg.issued); self.barrier()

    def attn_setup(self): self.attn(True)
    def attn(self, setup=False):
        a = self.a; I = self.I; vm = self.vm; lg = self.lg; stream = self.stream
        ML = 159744; QA_LDS = 65536; QB_LDS = 131072
        O = 192; QF = 160; NM = 144; S = [112, 128]; PP = [96, 104]; RING = 64; NR = 8; E = 56; PK = 16
        VK, VV, VL16, LRUN, LU, THR, NINF, VQ, TMP, LA = 4, 5, 6, 7, 8, 9, 10, 11, 12, 14
        SR, SG, SC1, SC2, SKO, SVO, SKM, SVM, STH = 32, 33, 34, 35, 36, 37, 38, 39, 42
        SMK, SFIN, SCA, SM1 = 54, 55, 59, 58
        DC = self.o.get("dmacost", 16); WEV = self.o.get("wev", 2)
        if setup:
            I(f"s_lshr_b32 s{SG}, s{SW}, 2"); I(f"s_mul_i32 s{SR}, s{SG}, 7"); I(f"s_xor_b32 s{SR}, s{SR}, s{SW}")
            I(f"v_lshlrev_b32 v{VL16}, 4, v0")
            I(f"s_lshl_b32 s44, s{SR}, 13"); I(f"s_add_u32 s44, s44, {QB_LDS}"); I(f"v_add_u32 v{VQ}, s44, v{VL16}")
            I(f"s_lshl_b32 s45, s{SG}, 16"); I(f"v_subrev_u32 v{TMP+1}, s45, v{VQ}")
            I(f"s_mov_b32 s{SC1}, s{SIDX}")
            I(f"s_lshl_b32 s{SC2}, s{SIDX}, 1"); I(f"s_sub_u32 s{SC2}, 14, s{SC2}")
            I(f"s_cmp_eq_u32 s{SG}, 1"); I(f"s_cselect_b32 s{SM1}, 0, -1")
            I(f"s_lshl_b32 s43, s{SW}, 12"); I(f"s_lshl_b32 s{SVO}, s{SHEAD}, 20"); I(f"s_add_u32 s{SVO}, s{SVO}, s43")
            I(f"s_add_u32 s{SKO}, s{SVO}, 0x10000"); I(f"s_add_u32 s{SVO}, s{SVO}, 0x8000")
            I(f"s_mov_b32 s{SKM}, s43"); I(f"s_add_u32 s{SVM}, s43, 0x18000")
            I(f"s_mov_b32 s{STH}, {f2u(4096.0)}"); I(f"v_mov_b32 v{NINF}, 0xff800000")
            I(f"v_and_b32 v{THR}, 31, v0"); I(f"s_lshl_b32 s44, s{SR}, 5"); I(f"v_add_u32 v{THR}, s44, v{THR}")
            I(f"v_lshrrev_b32 v{TMP}, 5, v0"); I(f"v_lshlrev_b32 v{TMP}, 2, v{TMP}"); I(f"v_sub_u32 v{THR}, v{THR}, v{TMP}")
            I(f"v_add_u32 v{VK}, 0x8000, v{VL16}")
            I(f"s_lshl_b32 s{SCA}, s{SIDX}, 2"); I(f"s_add_u32 s{SCA}, s{SCA}, s{SR}"); I(f"s_lshl_b32 s{SCA}, s{SCA}, 5"); I(f"s_add_u32 s{SCA}, s{SCA}, s{SHEAD}")
            I(f"s_lshl_b32 s{SCA}, s{SCA}, 13"); I(f"s_add_u32 s{SCA}, s{SCA}, {CTX_OFF}")
            I(f"s_mov_b32 s{SFIN}, 0")
            if self.o.get("map84", 1):
                I(f"s_lshr_b32 s56, s{SF}, 6"); I("s_lshl_b32 s56, s56, 3"); I(f"s_bfe_u32 s44, s{SF}, 0x30002"); I("s_add_u32 s56, s56, s44")
                I(f"s_bfe_u32 s57, s{SF}, 0x10005"); I("s_lshl_b32 s57, s57, 2"); I(f"s_and_b32 s44, s{SF}, 3"); I("s_add_u32 s57, s57, s44")
                I(f"s_and_b32 s40, s{SF}, 63"); I("s_lshl_b32 s40, s40, 16")
            else:
                I(f"s_mov_b32 s56, s{SHEAD}"); I(f"s_mov_b32 s57, s{SIDX}")
                I(f"s_and_b32 s40, s{SF}, 31"); I("s_lshl_b32 s40, s40, 17")
            I(f"s_lshl_b32 s44, s{SW}, 13"); I("s_add_u32 s40, s40, s44"); I(f"s_add_u32 s40, s40, {WOT_OFF}")
            self.srd(RB, "ssmk", 2*MB); self.srd(RA, "k", 2*MB); self.srd(RC, "v", 2*MB); self.srd(RD, "shift", 4096); self.srd(RE, "wo", 4*MB)
            I("s_mov_b32 s41, 0")
            if not self.o.get("noprio"):
                l = a.label("PR"); I(f"s_cmp_eq_u32 s{SG}, 1"); I(f"s_cbranch_scc0 {l}"); I("s_setprio 1"); a.L(l)
            return
        def loadq(va):
            qt = []
            for ds in range(8):
                I(f"ds_read_b128 {v(QF+4*ds,4)}, v{va} offset:{1024*ds}"); qt.append(lg.issue())
            return qt
        op = lambda t, c=4: (lambda: I(t), c)
        def dma4(kind):
            sm, so = (SKM, SKO) if kind == "k" else (SVM, SVO)
            def d(i):
                def f():
                    if i == 0: I(f"s_mov_b32 m0, s{sm}"); I(f"s_xor_b32 s{sm}, s{sm}, 0x8000")
                    if not (self.o.get("a_nodma") and i):
                        I(f"buffer_load_dwordx4 v{VL16}, s[{RWS}:{RWS+3}], s{so} offen offset:{1024*i}{self.ld} lds")
                    if i == 3: I(f"s_add_u32 s{so}, s{so}, 0x10000")
                return (f, DC + (8 if i == 0 else 4 if i == 3 else 0))
            return [d(i) for i in range(4)]
        self.ring_n = 0
        def rd(kind, sl, idx):
            h = {}
            def f():
                slot = self.ring_n % NR; self.ring_n += 1
                h["reg"] = RING + 4*slot
                I(f"ds_read_b128 {v(h['reg'],4)}, v{VK if kind == 'k' else VV} offset:{sl*8192+idx*1024}"); h["tok"] = lg.issue()
            return f, h
        def wait_for(R, i):
            if R[i][1]["tok"] <= lg.done: return
            j = i
            while j + 1 < len(R) and j + 1 < i + WEV and "tok" in R[j+1][1] and R[j+1][1]["tok"] > R[i][1]["tok"]: j += 1
            lg.wait(R[j][1]["tok"])
        def mf_qk(sb, ds, R, i, czero=False):
            wait_for(R, i)
            c = (("0" if czero else v(NM,16)) if ds == 0 else v(S[sb],16))
            I(f"{MFMA} {v(S[sb],16)}, {v(R[i][1]['reg'],4)}, {v(QF+4*ds,4)}, {c}")
        def mf_pv(pb, idx, R, i=None, reg=None):
            ks, dt = idx >> 2, idx & 3
            if reg is None: wait_for(R, i); reg = R[i][1]["reg"]
            I(f"{MFMA} {v(O+16*dt,16)}, {v(reg,4)}, {v(PP[pb]+4*ks,4)}, {v(O+16*dt,16)}")
        def sm_ops(sb):
            L = []
            ex = lambda i: op(f"v_exp_f32 v{E+(i&7)}, v{S[sb]+i}", 8)
            def post(j):
                r = []; e0, e1 = E + ((2*j) & 7), E + ((2*j+1) & 7)
                if j == 0: r.append(op(f"v_add_f32 v{LU}, v{e0}, v{e1}"))
                else: r += [op(f"v_add_f32 v{LU}, v{LU}, v{e0}"), op(f"v_add_f32 v{LU}, v{LU}, v{e1}")]
                r.insert(1 if j else 0, op(f"v_cvt_pk_bf16_f32 v{PP[sb]+j}, v{e0}, v{e1}"))
                return r
            L += [ex(0), ex(1)]
            for j in range(8):
                p = post(j)
                L += ([ex(2*j+2), p[0], ex(2*j+3)] + p[1:]) if j < 7 else p
            if self.o.get("a_nosm"): L = [(lambda: None, 0) if i > 3 else x for i, x in enumerate(L)]
            return L
        def sched(M, fixed, chain):
            n = len(M); fc = [sum(c for _, c in fixed.get(g, [])) for g in range(n)]
            tot = sum(c for _, c in chain)
            lo, hi = 0.0, 4000.0
            for _ in range(40):
                lev = (lo + hi) / 2
                if sum(max(0, lev - f) for f in fc) >= tot: hi = lev
                else: lo = lev
            k = 0; credit = 0.0
            for g in range(n):
                M[g]()
                for c, _ in fixed.get(g, []): c()
                credit += max(0, hi - fc[g])
                while k < len(chain) and (g == n - 1 or chain[k][1] <= credit + 2):
                    chain[k][0](); credit -= chain[k][1]; k += 1
        def put(fixed, g, items): fixed.setdefault(g, []).extend(items)
        SPL = self.o.get("spl", 26)
        ool = []
        def rarely(cmp_, body):
            lo = a.label("OOL"); lb = a.label("RET")
            I(cmp_); I(f"s_cbranch_scc1 {lo}"); a.L(lb)
            ool.append((lo, lb, body))
        def mask_ops(sb, koff):
            prs = [46, 48, 50, 52]; L = []
            if koff >= 64:
                L.append(op(f"v_subrev_u32 v{TMP+3}, 64, v{THR}")); tr = TMP + 3; koff -= 64
            elif koff < 0:
                L += [op(f"s_lshl_b32 s45, s{SG}, 6"), op(f"v_subrev_u32 v{TMP+3}, s45, v{THR}")]; tr = TMP + 3; koff = -koff - 1
            else: tr = THR
            for r0 in range(0, 16, 4):
                for r in range(r0, r0+4): L.append(op(f"v_cmp_lt_i32 s[{prs[r&3]}:{prs[r&3]+1}], v{tr}, {(r & 3) + 8*(r >> 2) + koff}"))
                for r in range(r0, r0+4): L.append(op(f"v_cndmask_b32 v{S[sb]+r}, v{S[sb]+r}, v{NINF}, s[{prs[r&3]}:{prs[r&3]+1}]"))
            return L
        def mask_body(sb, koff):
            for c, _ in mask_ops(sb, koff): c()
        def rowmax(sb, dst):
            b = S[sb]
            I(f"v_max3_f32 v{dst}, v{b}, v{b+1}, v{b+2}")
            for i in range(3, 15, 2): I(f"v_max3_f32 v{dst}, v{dst}, v{b+i}, v{b+i+1}")
            I(f"v_max_f32 v{dst}, v{dst}, v{b+15}"); I(f"v_mov_b32 v{dst+1}, v{dst}")
            I(f"v_permlane32_swap_b32 v{dst}, v{dst+1}"); I(f"v_max_f32 v{dst}, v{dst}, v{dst+1}")
        def init_max():
            rowmax(0, TMP)
            I(f"v_max_f32 v{TMP}, {f2u(-1e30)}, v{TMP}")
            for r in range(16): I(f"v_sub_f32 v{NM+r}, 0, v{TMP}")
            return [op(f"v_sub_f32 v{S[0]+r}, v{S[0]+r}, v{TMP}") for r in range(16)]
        rare = []
        def check(sb, other=True):
            def f():
                lr = a.label("RARE"); lb = a.label("BACK")
                I(f"v_cmp_nge_f32 vcc, s{STH}, v{LU}")
                if self.o.get("a_nocheck"): I("s_mov_b64 vcc, 0")
                I(f"s_cbranch_vccnz {lr}"); a.L(lb)
                I(f"v_add_f32 v{LRUN}, v{LRUN}, v{LU}")
                rare.append((lr, lb, sb, other))
            return f
        def fin_body():
            I(f"v_mov_b32 v{TMP}, v{LA}"); I(f"s_mov_b32 s{SFIN}, 2"); I("s_nop 0")
            I(f"v_permlane32_swap_b32 v{TMP}, v{LA}"); I(f"v_add_f32 v{TMP}, v{TMP}, v{LA}"); I(f"v_rcp_f32 v{TMP}, v{TMP}"); I(f"v_mov_b32 v{TMP+1}, v{TMP}")
            for q in range(8):
                for i in range(8*q, 8*q+8, 2): I(f"v_pk_mul_f32 {v(O+i,2)}, {v(O+i,2)}, {v(TMP,2)}")
                for i in range(4): I(f"v_cvt_pk_bf16_f32 v{PK+4*q+i}, v{O+8*q+2*i}, v{O+8*q+2*i+1}")
                for i in range(8*q, 8*q+8, 2): I(f"v_mov_b64 {v(O+i,2)}, 0")
        def st_body():
            I(f"s_add_u32 s44, s{SCA}, 4096"); I(f"s_mov_b32 s{SFIN}, 3")
            for q in range(8):
                I(f"buffer_store_dwordx4 {v(PK+4*q,4)}, v{VL16}, s[{RWS}:{RWS+3}], s{SCA if q < 4 else 44} offen offset:{1024*(q&3)}{self.st}")
        TR = [RING + 4*(2+i) for i in range(6)]
        def head(R, vmw, with_mfma=True, post=(), more=()):
            rf = [(f, 4) for f, h in R]; sm2 = sm_ops(0)[SPL:]
            nop = lambda: None
            def first():
                I("s_waitcnt lgkmcnt(4)"); mf_pv(1, 2, None, reg=TR[0])
            M = [first] + [lambda i=i: mf_pv(1, 2+i, None, reg=TR[i]) for i in range(1, 6)] if with_mfma else [nop]*6
            nb = self.o.get("nb", 4)
            more = list(more); m0 = len(more) // 3
            sched(M[:2], {}, sm2[:nb] + more[:m0])
            vmw(); I("s_waitcnt lgkmcnt(0)"); lg.mark_all_done(); self.barrier(); self.ring_n = 0
            fx = {0: rf[0:2], 1: rf[2:5], 2: rf[5:6], 3: rf[6:7] + [(nop, 12 + 8*len(post))]}
            sched(M[2:], fx, sm2[nb:] + more[m0:])
            check(0)()
            for p in post: p()
        def mk_reads():
            return ([rd("k", 0, i) for i in range(8)] + [rd("v", 0, i) for i in range(8)] +
                    [rd("k", 1, i) for i in range(8)] + [rd("v", 1, i) for i in range(8)])
        def mid(R, dmas, kx, mb=None, trans=False, endops=(), extra=None):
            rf = [(f, 4) for f, h in R]
            M = [lambda i=i: mf_qk(0, i, R, i, trans) for i in range(8)] + [lambda i=i: mf_pv(0, i, R, 8+i) for i in range(8)]
            fx = {}
            for g in range(16): put(fx, g, [rf[7+g]])
            D = sum((dma4(k) for k in dmas), [])
            DS = self.o.get("dstep", 2)
            spill = []
            for n, d in enumerate(D):
                g = n * DS * (2 if len(D) == 4 and not extra else 1)
                if g < 15: put(fx, g, [d])
                else: spill.append((g - 16 if g >= 16 else 0, d))
            put(fx, 15, [(lambda: None, 20)])
            if extra:
                X0 = self.o.get("x0", 8); ng = 16 - X0 + 9; per = -(-len(extra) // ng)
                put(fx, X0, [op("s_waitcnt vmcnt(4)")])
                for g in range(X0, 16): put(fx, g, extra[(g-X0)*per:(g-X0+1)*per])
                for g in range(9): spill += [(g, x) for x in extra[(16-X0+g)*per:(16-X0+g+1)*per]]
            sched(M, fx, sm_ops(1))
            check(1, other=not trans)()
            if mb: mb()
            pre = []
            if trans:
                I(f"v_mov_b32 v{LA}, v{LRUN}"); I(f"v_mov_b32 v{LRUN}, 0"); I(f"s_mov_b32 s{SFIN}, 1")
                pre = init_max()
            M = [lambda i=i: mf_qk(1, i, R, 16+i) for i in range(8)] + [lambda i=i: mf_pv(1, i, R, 24+i) for i in range(2)]
            fx = {}
            for g in range(9): put(fx, g, [rf[23+g]])
            for g, d in spill: put(fx, g, [d])
            put(fx, 8, [op(f"v_xor_b32 v{VV}, 0x10000, v{VK}")] + kx)
            for n, e in enumerate(endops): put(fx, 7 - n, [e])
            put(fx, 9, [(lambda: None, 16)])
            sched(M, fx, pre + sm_ops(0)[:SPL])
            assert [R[26+i][1]["reg"] for i in range(6)] == TR
        vm4 = lambda: I("s_waitcnt vmcnt(4)")
        vm0 = lambda: I("s_waitcnt vmcnt(0)")
        def vm08():
            lo = a.label("W8"); lb = a.label("W8R")
            I(f"s_cmp_eq_u32 s{SFIN}, 3"); I(f"s_cbranch_scc1 {lo}"); I("s_waitcnt vmcnt(%d)" % self.o.get("a_vm", 0)); a.L(lb)
            def b(): I("s_waitcnt vmcnt(8)"); I(f"s_mov_b32 s{SFIN}, 4")
            ool.append((lo, lb, b))
        m1 = lambda sb, ko: (lambda: rarely(f"s_cmp_eq_u32 s{SC1}, s{SM1}", lambda: mask_body(sb, ko)))
        fin = lambda: rarely(f"s_cmp_eq_u32 s{SFIN}, 1", fin_body)
        sta = (lambda: rarely(f"s_cmp_eq_u32 s{SFIN}, 2", st_body), 8)

        KR, VR, SH, WO, AD = 16, 23, 28, 32, 40
        def side_loads():
            L = []; E = lambda t: L.append(op(t)); V = lambda t: L.append(op(t, DC))
            E(f"v_lshrrev_b32 v{AD}, 5, v0"); E(f"v_and_b32 v{AD+1}, 31, v0"); E(f"v_lshlrev_b32 v{AD+2}, 12, v{AD}"); E(f"v_lshl_add_u32 v{AD+2}, v{AD+1}, 2, v{AD+2}")
            E(f"s_lshl_b32 s60, s{SF}, 14"); E(f"s_lshl_b32 s61, s{SW}, 7"); E("s_add_u32 s60, s60, s61"); E("s_add_u32 s61, s60, 8192")
            for j in range(8): V(f"buffer_load_dword v{WO+j}, v{AD+2}, s[{RE}:{RE+3}], s{60+(j>>2)} offen offset:{1024*(j&3)}")
            E("s_lshr_b32 s62, s2, 3"); E("s_lshl_b32 s62, s62, 16"); E(f"s_lshl_b32 s63, s{SW}, 13"); E("s_add_u32 s62, s62, s63")
            E("s_and_b32 s63, s2, 7"); E("s_lshl_b32 s63, s63, 7"); E("s_add_u32 s62, s62, s63"); E(f"v_add_u32 v{AD+3}, s62, v{AD+2}")
            for i in range(3): E(f"v_subrev_u32 v{AD+4+i}, {3072-1024*i}, v{AD+3}")
            E("s_lshl_b32 s63, s63, 2"); E(f"v_lshl_add_u32 v{AD+7}, v{AD+1}, 4, s63")
            for i in range(3): V(f"buffer_load_dword v{KR+i}, v{AD+4+i}, s[{RA}:{RA+3}], 0 offen")
            for i in range(4): V(f"buffer_load_dword v{KR+3+i}, v{AD+3}, s[{RA}:{RA+3}], 0 offen offset:{1024*i}")
            for i in range(4): V(f"buffer_load_dword v{VR+i}, v{AD+3}, s[{RC}:{RC+3}], 0 offen offset:{1024*i}")
            V(f"buffer_load_dwordx4 {v(SH,4)}, v{AD+7}, s[{RD}:{RD+3}], 0 offen")
            E(f"s_lshl_b32 s60, s{SF}, 13"); E(f"s_add_u32 s60, s60, s{SWK}"); E(f"v_and_b32 v27, 7, v0"); E("v_lshlrev_b32 v27, 7, v27")
            V(f"buffer_load_dword v1, v27, s[{RB}:{RB+3}], s60 offen")
            return L
        NSL = 21
        def side_math():
            L = []; E = lambda t: L.append(op(t)); V = lambda t: L.append(op(t, DC))
            W2 = 48
            E("s_mov_b32 s60, 0x05040100"); E("s_mov_b32 s61, 0x07060302")
            for j in range(4): E(f"v_perm_b32 v{W2+j}, v{WO+2*j+1}, v{WO+2*j}, s60")
            for j in range(4): E(f"v_perm_b32 v{W2+4+j}, v{WO+2*j+1}, v{WO+2*j}, s61")
            E(f"s_lshl_b32 s60, s{SW}, 8"); E(f"s_add_u32 s60, s60, s{SF}"); E("s_lshl_b32 s60, s60, 11"); E(f"s_add_u32 s60, s60, {WOT_OFF}")
            for mt in range(2): V(f"buffer_store_dwordx4 {v(W2+4*mt,4)}, v{VL16}, s[{RWS}:{RWS+3}], s60 offen offset:{1024*mt}{self.st}")
            KU, SU, OO, VU, PQ = 32, 42, 48, 39, 52
            for c in range(2):
                def unp(d, sreg, half): E(f"v_lshlrev_b32 v{d}, 16, v{sreg}" if half == 0 else f"v_and_b32 v{d}, 0xffff0000, v{sreg}")
                for i in range(7): unp(KU+i, KR+i, c)
                for j in range(4): unp(SU+j, SH + 2*c + (j >> 1), j & 1)
                for o in range(4):
                    E(f"v_mul_f32 v{OO+o}, v{KU+o}, v{SU+3}")
                    for j in (2, 1, 0): E(f"v_fmac_f32 v{OO+o}, v{KU+o+3-j}, v{SU+j}")
                    unp(VU, VR+o, c)
                    E(f"v_mul_f32 v{OO+o}, v{OO+o}, v{VU}")
                d = PQ + 2*(1-c)
                E(f"v_cvt_pk_bf16_f32 v{d}, v{OO+3}, v{OO+2}"); E(f"v_cvt_pk_bf16_f32 v{d+1}, v{OO+1}, v{OO}")
            E(f"v_lshlrev_b32 v{AD+1}, 5, v{AD+1}"); E(f"v_lshl_add_u32 v{AD+1}, v{AD}, 4, v{AD+1}")
            E(f"v_permlane32_swap_b32 v{PQ+2}, v{PQ}"); E(f"v_permlane32_swap_b32 v{PQ+3}, v{PQ+1}")
            E("s_lshr_b32 s60, s2, 3"); E("s_lshl_b32 s60, s60, 16"); E(f"s_lshl_b32 s61, s{SW}, 13"); E("s_add_u32 s60, s60, s61")
            E("s_and_b32 s61, s2, 7"); E("s_lshl_b32 s61, s61, 10"); E("s_add_u32 s60, s60, s61"); E(f"s_add_u32 s60, s60, {KVT_OFF}")
            V(f"buffer_store_dwordx4 {v(PQ,4)}, v{AD+1}, s[{RWS}:{RWS+3}], s60 offen{self.st}")
            return L
        def spub_body():
            l1 = a.label("SM"); l2 = a.label("SP")
            I("s_add_u32 s41, s41, 1"); I(f"s_add_u32 s44, s41, s{SG}"); I("s_cmp_lg_u32 s44, 2"); I(f"s_cbranch_scc1 {l1}")
            for c, _ in side_math(): c()
            a.L(l1)
            I("s_cmp_lg_u32 s41, 4"); I(f"s_cbranch_scc1 {l2}")
            I(f"s_lshl_b32 s44, s{SF}, 2"); I(f"s_add_u32 s44, s44, {FY_OFF}")
            sv = self.save(); self.publish(44, 2); self.restore(sv)
            a.L(l2)
        spub = lambda: rarely("s_cmp_lt_u32 s41, 4", spub_body)
        def snap():
            I(f"s_mov_b32 s61, {FY_OFF}"); I(f"buffer_load_dwordx4 v[52:55], v{VL16}, s[{RWS}:{RWS+3}], s61 offen sc1")
        def side_check():
            lo = a.label("SCK"); lb = a.label("SCR")
            def test():
                I("v_and_b32 v52, v52, v53"); I("v_and_b32 v54, v54, v55"); I("v_and_b32 v52, v52, v54"); I("v_and_b32 v52, 2, v52"); I("v_cmp_ne_u32 vcc, 2, v52")
            test(); I(f"s_cbranch_vccnz {lo}"); a.L(lb)
            def spin():
                lp = a.label("SPL")
                I("s_mov_b32 s99, 20000"); a.L(lp)
                I("s_sleep 2"); I(f"buffer_load_dwordx4 v[52:55], v{VL16}, s[{RWS}:{RWS+3}], s61 offen sc1"); I("s_waitcnt vmcnt(0)")
                test(); I(f"s_cbranch_vccz {lb}")
                I("s_sub_u32 s99, s99, 1"); I("s_cmp_lg_u32 s99, 0"); I(f"s_cbranch_scc1 {lp}")
            ool.append((lo, lb, spin))
        m2 = lambda sb, ko: (lambda: rarely(f"s_cmp_eq_u32 s{SC2}, 0", lambda: (snap(), mask_body(sb, ko))))
        LEV = a.label("EVEN"); LODM = a.label("ODDM"); LTRANS = a.label("TRANS"); LP2 = a.label("P2"); LP2B = a.label("P2B"); LDRAIN = a.label("DRAIN")
        self.stamp(8)
        self.ring_n = 0
        R = [rd("k", 0, i) for i in range(8)] + [rd("k", 1, i) for i in range(8)]
        for i in range(7):
            I(f"ds_read_b128 {v(QF+4*i,4)}, v{TMP+1} offset:{1024*i}"); lg.issue()
            R[i][0]()
        def q7():
            I(f"ds_read_b128 {v(QF+28,4)}, v{TMP+1} offset:{1024*7}"); lg.issue()
        D = dma4("v") + dma4("k")
        sched([lambda i=i: mf_qk(0, i, R, i, True) for i in range(8)], {g: ([(q7, 4)] if g == 0 else []) + [(R[7+g][0], 4), D[g]] for g in range(8)}, [])
        m1(0, 0)()
        pre = init_max()
        I(f"v_mov_b32 v{LRUN}, 0")
        fx = {}
        put(fx, 0, [(R[15][0], 4)]); put(fx, 4, [op(f"v_xor_b32 v{VV}, 0x10000, v{VK}"), op(f"v_xor_b32 v{VK}, 0x4000, v{VK}")])
        SLd = side_loads(); n8 = (len(SLd) + 7) // 8
        for g in range(8): put(fx, g, SLd[g*n8:(g+1)*n8])
        sched([lambda i=i: mf_qk(1, i, R, 8+i) for i in range(8)], fx, pre + sm_ops(0)[:SPL])
        R = mk_reads()
        head(R, lambda: I(f"s_waitcnt vmcnt({4+NSL})"), False, post=[m1(1, 32)])
        svm = self.save()
        I(f"s_branch {LODM}")
        a.L(LEV)
        R = mk_reads(); head(R, vm4)
        mid(R, "k", [op(f"v_xor_b32 v{VK}, 0x4000, v{VK}")], mb=m1(0, 0))
        R = mk_reads(); head(R, vm4, post=[m1(1, 32), spub])
        assert self.lg.issued - self.lg.done == svm[2] - svm[3]
        a.L(LODM)
        mid(R, "v", [op(f"v_xor_b32 v{VK}, 0xc000, v{VK}")], mb=m1(0, 64), endops=[op(f"s_sub_u32 s{SC1}, s{SC1}, 1")])
        I(f"s_cmp_lg_u32 s{SC1}, -1"); I(f"s_cbranch_scc1 {LEV}")
        I(f"s_cmp_eq_u32 s{SG}, 1"); I(f"s_cbranch_scc1 {LTRANS}")
        svt = self.save()
        R = mk_reads(); head(R, vm4)
        mid(R, "k", [op(f"v_xor_b32 v{VK}, 0x8000, v{VK}")], mb=m2(0, -1))
        a.L(LP2B)
        I(f"s_cmp_eq_u32 s{SC2}, 0"); I(f"s_cbranch_scc1 {LDRAIN}")
        a.L(LP2)
        R = mk_reads(); head(R, vm08, post=[spub, fin, lambda: I(f"s_sub_u32 s{SC2}, s{SC2}, 1")])
        mid(R, "kv", [op(f"v_xor_b32 v{VK}, 0x8000, v{VK}")], mb=m2(0, -1), endops=[sta])
        I(f"s_cmp_lg_u32 s{SC2}, 0"); I(f"s_cbranch_scc1 {LP2}")
        a.L(LDRAIN)
        self.stamp(10)
        R2 = [rd("v", 0, i) for i in range(8)] + [rd("v", 1, i) for i in range(8)]
        rf = [(f, 4) for f, h in R2]
        ts, ts2, ts3 = self.tail_setup()
        tsa = [x for x in ts if x[1] == 4]; tsl = [x for x in ts if x[1] != 4]
        for c, _ in tsa[:11]: c()
        head(R2, lambda: (vm08(), side_check(), [c() for c, _ in tsl]), post=[fin, sta[0]], more=mask_ops(1, -33))
        ts = tsa[11:]
        pre = []; E_ = lambda t: pre.append(op(t))
        E_(f"s_lshl_b32 s44, s{SW}, 9"); E_(f"s_add_u32 s44, s44, {ML}"); E_(f"v_lshrrev_b32 v54, 1, v{VL16}"); E_(f"v_add_u32 v54, s44, v54")
        E_(f"s_lshl_b32 s46, s{SW}, 13"); E_(f"v_add_u32 v55, s46, v{VL16}")
        E_(f"s_sub_u32 s54, 15, s{SIDX}"); E_(f"s_lshl_b32 s54, s54, 2"); E_(f"s_add_u32 s54, s54, s{SR}"); E_("s_lshl_b32 s54, s54, 5"); E_(f"s_add_u32 s54, s54, s{SHEAD}")
        E_("s_lshl_b32 s54, s54, 13"); E_(f"s_lshl_b32 s44, s{SG}, 12"); E_("s_add_u32 s54, s54, s44"); E_(f"s_add_u32 s54, s54, {CTX_OFF}")
        def lsum():
            L = [op(f"v_mov_b32 v{TMP}, v{LRUN}"), op("s_nop 0"), op(f"v_permlane32_swap_b32 v{TMP}, v{LRUN}"), op(f"v_add_f32 v{NM+1}, v{TMP}, v{LRUN}")]
            def wml():
                I(f"ds_write_b64 v54, {v(NM,2)}"); lg.issue()
            return L + [(wml, 4)]
        def osend(g, i):
            def f():
                I(f"ds_write_b128 v55, {v(O+32*(1-g)+4*i,4)} offset:{1024*i}"); lg.issue()
            return (f, 16)
        lj = a.label("MGJ"); LM = [a.label("MG0"), a.label("MG1")]; LFB = [a.label("FB0"), a.label("FB1")]; LSK = a.label("SKIP"); LS1 = a.label("SK1")
        I(f"s_lshl_b32 s45, s{SG}, 1"); I(f"s_sub_u32 s45, s{SR}, s45"); I("s_cmp_lt_i32 s45, 1"); I(f"s_cbranch_scc1 {LSK}")
        svd = self.save(); rnd = self.ring_n
        setup = ts + pre + ts3; n8 = (len(setup) + 7) // 8
        fx = {g: [rf[7+g]] + setup[g*n8:(g+1)*n8] for g in range(8)}
        sched([lambda i=i: mf_pv(0, i, R2, i) for i in range(8)], fx, sm_ops(1))
        check(1)()
        rf[15][0]()
        I(f"s_cmp_eq_u32 s{SG}, 1"); I(f"s_cbranch_scc1 {LFB[1]}")
        sv2 = self.save(); PR = 64
        for g in (0, 1):
            if g: a.L(LFB[1]); self.restore(sv2)
            own = O + 32*g; snd = O + 32*(1-g)
            sd = [2*(1-g), 2*(1-g)+1]; od = [2*g, 2*g+1]
            order = [sd[0], sd[1], 4+sd[0], 4+sd[1], od[0], od[1], 4+od[0], 4+od[1]]
            def mfb(idx):
                lg.wait(R2[8+idx][1]["tok"]); mf_pv(1, idx, None, reg=R2[8+idx][1]["reg"])
            fx = {5: [osend(g, 0), osend(g, 1)], 6: [osend(g, i) for i in (2, 3, 4)], 7: [osend(g, i) for i in (5, 6, 7)]}
            sched([lambda i=i: mfb(i) for i in order], fx, lsum() + self.tail_valu())
            a.L(LM[g])
            I(f"v_xor_b32 v54, 0xe00, v54"); I(f"v_xor_b32 v55, 0xe000, v55")
            I("s_waitcnt lgkmcnt(0)"); lg.mark_all_done(); self.barrier()
            I(f"ds_read_b64 {v(96,2)}, v54"); t0 = lg.issue()
            tk = []
            for i in range(8):
                I(f"ds_read_b128 {v(PR+4*i,4)}, v55 offset:{1024*i}"); tk.append(lg.issue())
            lg.wait(t0)
            I(f"v_min_f32 v98, v{NM}, v96"); I(f"v_sub_f32 v99, v98, v{NM}"); I(f"v_sub_f32 v100, v98, v96")
            I("v_exp_f32 v99, v99"); I("v_exp_f32 v100, v100")
            I(f"v_mul_f32 v101, v99, v{NM+1}"); I("v_fmac_f32 v101, v100, v97"); I("v_rcp_f32 v101, v101")
            I("v_mul_f32 v102, v99, v101"); I("v_mul_f32 v103, v99, v101"); I("v_mul_f32 v104, v100, v101"); I("v_mul_f32 v105, v100, v101")
            tw = self.tail_writes()
            for q in range(4):
                for i in range(8*q, 8*q+8, 2): I(f"v_pk_mul_f32 {v(own+i,2)}, {v(own+i,2)}, v[102:103]")
                lg.wait(tk[2*q+1])
                for c in tw[3*q:3*q+3]: c()
                for i in range(8*q, 8*q+8, 2): I(f"v_pk_fma_f32 {v(own+i,2)}, {v(PR+i,2)}, v[104:105], {v(own+i,2)}")
                for i in range(4): I(f"v_cvt_pk_bf16_f32 v{snd+4*q+i}, v{own+8*q+2*i}, v{own+8*q+2*i+1}")
                I(f"buffer_store_dwordx4 {v(snd+4*q,4)}, v{VL16}, s[{RWS}:{RWS+3}], s54 offen offset:{1024*q}{self.st}"); self.tctx = vm.issue()
            if not g: I(f"s_branch {lj}")
        def skip_path():
            keep = self.save(); tctx = self.tctx; th = self.th
            a.L(LSK); self.restore(svd); self.ring_n = rnd
            I("s_cmp_lt_i32 s45, 0"); I(f"s_cbranch_scc1 {LS1}")
            rf[7][0]()
            for i in range(8): mf_pv(0, i, R2[:8], i)
            a.L(LS1)
            for c, _ in setup + lsum() + self.tail_valu(): c()
            l1 = a.label("SG1"); I(f"s_cmp_eq_u32 s{SG}, 1"); I(f"s_cbranch_scc1 {l1}")
            for g in (0, 1):
                if g: a.L(l1)
                for i in range(8): osend(g, i)[0]()
                I(f"s_branch {LM[g]}")
            self.restore(keep); self.tctx = tctx; self.th = th
        a.L(lj)
        I("s_setprio 0")
        self.stamp(4)
        def cold():
            a.L(LTRANS)
            self.restore(svt)
            loadq(VQ); I("s_waitcnt lgkmcnt(0)")
            I(f"v_xor_b32 v{VK}, 0x4000, v{VK}")
            R = mk_reads(); head(R, vm4, more=mask_ops(1, 96))
            mid(R, "k", [op(f"v_xor_b32 v{VK}, 0x8000, v{VK}")], mb=m2(0, -1), trans=True)
            I(f"s_branch {LP2B}")
            skip_path()
            for (lo, lb, body) in ool:
                a.L(lo); body(); I(f"s_branch {lb}")
            for (lr, lb, sb, other) in rare:
                a.L(lr)
                I("s_nop 15")
                rowmax(sb, TMP)
                I(f"v_max_f32 v{TMP}, 0, v{TMP}"); I(f"v_exp_f32 v{TMP+1}, -v{TMP}")
                for r in range(16): I(f"v_sub_f32 v{NM+r}, v{NM+r}, v{TMP}")
                for r in range(16): I(f"v_sub_f32 v{S[sb]+r}, v{S[sb]+r}, v{TMP}")
                if other:
                    for r in range(16): I(f"v_sub_f32 v{S[1-sb]+r}, v{S[1-sb]+r}, v{TMP}")
                for r in range(64): I(f"v_mul_f32 v{O+r}, v{O+r}, v{TMP+1}")
                I(f"v_mul_f32 v{LRUN}, v{LRUN}, v{TMP+1}")
                for c, _ in sm_ops(sb): c()
                I("s_nop 1"); I(f"s_branch {lb}")
        self.attn_rare = cold

    HB = 65536; HC = 4416; XB = 136192; YB = 148480
    SC, SJ, SB, SCH, SHB_, SWO, SCX = 34, 35, 36, 37, 38, 39, 40
    WS_ = [16, 24, 32, 40, 176, 184, 56, 80, 88, 96, 104, 144, 152, 160]
    CS_ = [168, 112, 120, 128, 136, 64, 72]
    NL = 4
    def tail_setup(self):
        I = self.I; L = []; E = lambda t: L.append((lambda: I(t), 4))
        SC, SJ, SB, SCH, SHB_, SWO, SCX = self.SC, self.SJ, self.SB, self.SCH, self.SHB_, self.SWO, self.SCX
        self.wtok = {}; self.wslot = dict(enumerate(self.WS_))
        E(f"s_lshr_b32 s{SC}, s{SW}, 2"); E(f"s_and_b32 s{SJ}, s{SW}, 3")
        E(f"s_lshl_b32 s{SCH}, s{SF}, 1"); E(f"s_add_u32 s{SCH}, s{SCH}, s{SC}"); E(f"s_lshl_b32 s{SCH}, s{SCH}, 12")
        E(f"s_lshl_b32 s60, s{SJ}, 10"); E("v_add_u32 v50, s60, v6"); E("v_subrev_u32 v51, 16, v50")
        E(f"s_lshr_b32 s60, s{SCH}, 8"); E(f"s_add_u32 s60, s60, {KVT_OFF}"); E("v_lshlrev_b32 v49, 9, v50")
        def ld(t):
            def f(): I(t); self.th = self.vm.issue()
            L.append((f, 16))
        ld(f"buffer_load_dwordx4 {v(160,4)}, v51, s[{RB}:{RB+3}], s{SCH} offen")
        ld(f"buffer_load_dwordx4 {v(164,4)}, v50, s[{RB}:{RB+3}], s{SCH} offen")
        ld(f"buffer_load_dwordx4 {v(168,4)}, v49, s[{RWS}:{RWS+3}], s60 offen{self.ld}")
        E(f"s_lshl_b32 s{SWO}, s57, 19"); E(f"s_lshl_b32 s60, s{SW}, 16"); E(f"s_add_u32 s{SWO}, s{SWO}, s60"); E(f"s_add_u32 s{SWO}, s{SWO}, {WOT_OFF}")
        L2 = [(lambda i=i: self.wload(i), 36) for i in range(self.o.get("we", 0))]
        L3 = []; L, Lx = L3, L
        E = lambda t: L3.append((lambda: I(t), 4))
        E(f"s_mul_i32 s{SB}, s{SC}, 6144"); E(f"s_add_u32 s{SB}, s{SB}, {self.XB}")
        E(f"s_mul_i32 s{SHB_}, s{SC}, {8*self.HC}"); E(f"s_add_u32 s{SHB_}, s{SHB_}, {self.HB}")
        E(f"s_lshl_b32 s{SCX}, s56, 19"); E(f"s_lshl_b32 s60, s{SW}, 15"); E(f"s_add_u32 s{SCX}, s{SCX}, s60"); E(f"s_add_u32 s{SCX}, s{SCX}, {CTX_OFF}")
        return Lx, L2, L3
    def wreg(self, i):
        return self.WS_[i % len(self.WS_)]
    def wload(self, i):
        I = self.I; r = self.wslot[i]
        I(f"s_add_u32 s61, s{self.SWO}, {i*2048}")
        for mt in range(2):
            I(f"buffer_load_dwordx4 {v(r+4*mt,4)}, v6, s[{RWS}:{RWS+3}], s61 offen offset:{mt*1024}{self.ld}"); self.wtok[i] = self.vm.issue()
    def tail_valu(self):
        I = self.I; HC = self.HC; L = []; E = lambda t: L.append((lambda: I(t), 4))
        SJ, SB, SHB_ = self.SJ, self.SB, self.SHB_
        Ee, Eo, Oe, Oo = 160, 113, 122, 131
        E(f"s_add_u32 s60, s{SHB_}, 64"); E("v_add_u32 v138, s60, v50")
        E("v_and_b32 v51, 3, v0"); E("v_mul_u32_u24 v139, 1536, v51"); E("v_lshrrev_b32 v53, 6, v50"); E("v_lshl_add_u32 v139, v53, 4, v139")
        E(f"s_add_u32 s60, s{SB}, 512"); E("v_add_u32 v139, s60, v139")
        for r in range(2): E(f"v_mov_b64 {v(172+2*r,2)}, 0")
        E("v_bfe_u32 v140, v0, 2, 3"); E(f"v_mul_u32_u24 v140, {HC}, v140"); E("v_lshl_add_u32 v140, v51, 4, v140"); E(f"v_add_u32 v140, s{SHB_}, v140")
        E(f"s_mul_i32 s60, s{SJ}, 1536"); E(f"s_add_u32 s60, s60, s{SB}"); E("v_lshl_add_u32 v141, v0, 3, s60")
        E("s_waitcnt vmcnt(1)")
        for k in range(7): E(f"v_alignbit_b32 v{Oe+k}, v{Ee+k+1}, v{Ee+k}, 16")
        for k in range(1, 7): E(f"v_alignbit_b32 v{Oo+k}, v{Ee+k+1}, v{Ee+k}, 16")
        for k in range(1, 7): E(f"v_mov_b32 v{Eo+k}, v{Ee+k}")
        return L
    def tail_writes(self):
        I = self.I; lg = self.lg; HC = self.HC; L = []
        Ee, Eo, Oe, Oo = 160, 113, 122, 131
        def W(t, pre=None):
            def f():
                if pre: pre()
                I(t); lg.issue()
            L.append(f)
        for r in range(8):
            sft = 1 + r; k = sft >> 1
            base = ((Oe, Oo) if sft & 1 else (Ee, Eo))[k & 1]
            W(f"ds_write_b128 v138, {v(base+k,4)} offset:{r*HC}")
        W(f"ds_write_b128 v140, {v(172,4)}"); W(f"ds_write_b64 v141, {v(172,2)}")
        W(f"ds_write_b128 v139, {v(168,4)}", lambda: self.vm.wait(self.th))
        return L
    def tailp(self):
        a = self.a; I = self.I; vm = self.vm; lg = self.lg
        HB, HC, YB = self.HB, self.HC, self.YB
        SC, SJ, SB, SCH, SHB_, SWO, SCX = self.SC, self.SJ, self.SB, self.SCH, self.SHB_, self.SWO, self.SCX
        ACC = 192; FRS = [224, 240, 64]; RD_ = 224
        VL16, VA, VB, T, VP, VPA, VO, GR, VLW, XR = 6, 4, 5, 12, 7, 8, 9, 10, 11, 48
        OACC = 192
        NW, NCX, NL = len(self.WS_), len(self.CS_), self.o.get("nl", 0)
        wtok = self.wtok; ctok = {}; wslot = self.wslot; cslot = dict(enumerate(self.CS_))
        I(f"s_lshr_b32 s53, s56, 1"); I("s_lshl_b32 s53, s53, 10"); I(f"s_lshl_b32 s44, s{SW}, 7"); I("s_add_u32 s53, s53, s44"); I(f"s_add_u32 s53, s53, {FC_OFF}")
        I(f"v_and_b32 v{VPA}, 3, v0"); I(f"v_lshlrev_b32 v{VPA}, 2, v{VPA}")
        P0 = self.o.get("p0", 0)
        tc0 = self.poll_issue(VP, VPA, "s53") if P0 else self.tctx
        PUBN = self.o.get("pubn", 1)
        I(f"s_lshr_b32 s45, s{SHEAD}, 2"); I("s_lshl_b32 s45, s45, 7"); I(f"s_and_b32 s44, s{SHEAD}, 3"); I("s_lshl_b32 s44, s44, 2"); I("s_add_u32 s45, s45, s44")
        I(f"s_sub_u32 s44, 15, s{SIDX}"); I("s_lshl_b32 s44, s44, 10"); I("s_add_u32 s46, s44, s45"); I(f"s_add_u32 s46, s46, {FC_OFF}")
        I(f"s_lshl_b32 s44, s{SIDX}, 10"); I("s_add_u32 s47, s44, s45"); I(f"s_add_u32 s47, s47, {FC_OFF}")
        self.srd(RC, "out", 2*MB); self.srd(RD, "q", 2*MB)
        I(f"s_lshl_b32 s44, s{SF}, 2"); I(f"s_load_dword s55, s[{P['ssmD']}:{P['ssmD']+1}], s44")
        I(f"v_and_b32 v{T}, 31, v0"); I(f"v_lshrrev_b32 v{T+1}, 5, v0")
        I(f"v_and_b32 v{T+2}, 7, v0"); I(f"v_mul_u32_u24 v{VA}, {HC}, v{T+2}")
        I(f"v_bfe_u32 v{T+2}, v0, 3, 2"); I(f"v_sub_u32 v{T+2}, v{T+2}, v{T+1}"); I(f"v_lshl_add_u32 v{VA}, v{T+2}, 4, v{VA}")
        I(f"s_lshl_b32 s43, s{SJ}, 9"); I(f"s_add_u32 s43, s43, s{SHB_}"); I("s_add_u32 s43, s43, 32"); I(f"v_add_u32 v{VA}, s43, v{VA}")
        I(f"s_lshl_b32 s43, s{SJ}, 7"); I(f"s_sub_u32 s43, s{SB}, s43"); I("s_add_u32 s43, s43, 400")
        I(f"v_lshl_add_u32 v{VB}, v{T}, 4, s43"); I(f"v_mul_u32_u24 v{T+2}, 1536, v{T+1}"); I(f"v_add_u32 v{VB}, v{VB}, v{T+2}")
        I(f"s_lshl_b32 s51, s{SW}, 13"); I(f"v_add_u32 v{VLW}, s51, v{VL16}")
        I("s_waitcnt lgkmcnt(0)"); lg.mark_all_done(); self.barrier()
        self.stamp(5)
        def cload(i):
            r = cslot[i]
            I(f"s_add_u32 s62, s{SCX}, {(i//4)*4096}"); I("s_add_u32 s63, s62, 0x40000")
            for st in range(2):
                I(f"buffer_load_dwordx4 {v(r+4*st,4)}, v{VL16}, s[{RWS}:{RWS+3}], s{62+st} offen offset:{(i%4)*1024}{self.ld}"); ctok[i] = vm.issue()
        ltok = {}
        def lstage(j):
            I(f"s_add_u32 m0, s51, {j*2048}"); I(f"s_add_u32 s61, s{SWO}, {(NW+j)*2048}")
            for mt in range(2):
                I(f"buffer_load_dwordx4 v{VL16}, s[{RWS}:{RWS+3}], s61 offen offset:{mt*1024}{self.ld} lds"); ltok[j] = vm.issue()
        def early(lo, hi, level):
            le = a.label("NE")
            I(f"s_cmp_lg_u32 s50, {level}"); I(f"s_cbranch_scc1 {le}")
            sv = self.save()
            for i in range(lo, hi): cload(i)
            self.restore(sv); I(f"s_mov_b32 s50, {level+1}")
            a.L(le)
        def seen():
            I(f"v_and_b32 v{VP}, 1, v{VP}"); I(f"v_cmp_ne_u32 vcc, 1, v{VP}"); I("s_cmp_eq_u64 vcc, 0"); I("s_cselect_b32 s52, 1, 0"); I("s_max_u32 s50, s50, s52")
        I("s_mov_b32 s50, 0")
        wl = [lambda i=i: self.wload(i) for i in range(NW) if i not in wtok] + [lambda j=j: lstage(j) for j in range(NL)]
        steps = [(dd, ks) for dd in range(8) for ks in range(2)]
        toks = {}
        def reads(n):
            dd, ks = steps[n]; b = FRS[n % 3]
            def r(k, reg, addr, off):
                def f():
                    I(f"ds_read_b128 {v(reg,4)}, v{addr} offset:{off}"); toks[(n, k)] = lg.issue()
                return f
            return [r(0, b, VA, 64*dd + 32*(1-ks)), r(1, b+4, VB, ks*3072 + (7-dd)*16),
                    r(2, b+8, VB, ks*3072 + (7-dd)*16 + 512), r(3, b+12, VA, 64*dd + 32*(1-ks) + 2048)]
        for n in range(2):
            for f in reads(n): f()
        for n in range(16):
            b = FRS[n % 3]; L = reads(n+2) if n + 2 < 16 else []
            c0 = "0" if n == 0 else v(ACC,16); c1 = "0" if n == 0 else v(ACC+16,16)
            lg.wait(toks[(n,1)]); I(f"{MFMA} {v(ACC,16)}, {v(b,4)}, {v(b+4,4)}, {c0}")
            for f in L[0:2]: f()
            lg.wait(toks[(n,2)]); I(f"{MFMA} {v(ACC+16,16)}, {v(b,4)}, {v(b+8,4)}, {c1}")
            for f in L[2:3]: f()
            lg.wait(toks[(n,3)]); I(f"{MFMA} {v(ACC+16,16)}, {v(b+12,4)}, {v(b+4,4)}, {v(ACC+16,16)}")
            for f in L[3:4]: f()
            if n == PUBN:
                vm.wait(tc0); self.barrier(); self.publish(46); self.publish(47)
                if P0: seen()
            if n >= PUBN and n < 14:
                for _ in range(-(-len(wl) // (14 - n))): wl.pop(0)()
            if n == self.o.get("p1", 12): tc1 = self.poll_issue(VP, VPA, "s53")
            if n == 14 and P0: early(0, NCX - 2, 1)
        assert not wl
        I(f"s_add_u32 s43, s51, {HB}"); I(f"v_add_u32 v{T+2}, s43, v{VL16}")
        self.barrier()
        for i in range(8):
            I(f"ds_write_b128 v{T+2}, {v(ACC+4*i,4)} offset:{1024*i}"); lg.issue()
        I(f"s_lshl_b32 s43, s{SC}, 15"); I(f"s_lshl_b32 s44, s{SJ}, 11"); I("s_add_u32 s43, s43, s44"); I(f"s_add_u32 s43, s43, {HB}"); I(f"v_add_u32 v{T+2}, s43, v{VL16}")
        I(f"s_and_b32 s43, s{SJ}, 1"); I("s_mul_i32 s44, s43, 3072"); I(f"s_lshr_b32 s45, s{SJ}, 1"); I("s_lshl_b32 s41, s45, 9")
        I("s_add_u32 s44, s44, s41"); I(f"s_add_u32 s44, s44, s{SB}"); I("s_add_u32 s44, s44, 520")
        I(f"v_lshl_add_u32 v{T+3}, v{T}, 4, s44"); I(f"v_lshlrev_b32 v{VA}, 3, v{T+1}"); I(f"v_sub_u32 v{T+3}, v{T+3}, v{VA}")
        I(f"v_lshlrev_b32 v{VB}, 6, v{T}"); I(f"v_lshl_add_u32 v{VB}, v{T+1}, 4, v{VB}")
        I("s_lshl_b32 s45, s45, 11"); I("s_lshl_b32 s43, s43, 5"); I("s_add_u32 s45, s45, s43"); I(f"s_lshl_b32 s43, s{SC}, 12"); I("s_add_u32 s45, s45, s43")
        I(f"s_add_u32 s45, s45, {YB}"); I(f"v_add_u32 v{VB}, s45, v{VB}")
        I("s_lshl_b32 s43, s55, 16"); I("s_and_b32 s44, s55, 0xffff0000"); I(f"s_cmp_eq_u32 s{SC}, 0"); I("s_cselect_b32 s55, s43, s44")
        lg.wait(lg.issued); self.barrier()
        self.stamp(12)
        for p in range(4):
            for gq in range(2):
                I(f"ds_read_b128 {v(RD_+8*p+4*gq,4)}, v{T+2} offset:{8192*p+1024*gq}"); lg.issue()
        for gq in range(2):
            I(f"ds_read_b64 {v(ACC+2*gq,2)}, v{T+3} offset:{1536*gq}"); lg.issue()
        lk = a.label("SK"); I("s_cmp_lg_u32 s50, 0"); I(f"s_cbranch_scc1 {lk}")
        sv = self.save(); vm.wait(tc1); seen(); self.restore(sv); early(0, NCX - 2, 1)
        a.L(lk)
        early(NCX - 2, NCX, 2)
        lg.wait(lg.issued)
        for i in range(0, 8, 2):
            I(f"v_pk_add_f32 {v(RD_+i,2)}, {v(RD_+i,2)}, {v(RD_+8+i,2)}"); I(f"v_pk_add_f32 {v(RD_+16+i,2)}, {v(RD_+16+i,2)}, {v(RD_+24+i,2)}")
        for i in range(0, 8, 2): I(f"v_pk_add_f32 {v(RD_+i,2)}, {v(RD_+i,2)}, {v(RD_+16+i,2)}")
        for gq in range(2):
            for r in range(4):
                srcr = ACC + 2*gq + (1 - (r >> 1))
                I(f"v_lshlrev_b32 v{ACC+8}, 16, v{srcr}" if r & 1 else f"v_and_b32 v{ACC+8}, 0xffff0000, v{srcr}")
                I(f"v_fma_f32 v{RD_+4*gq+r}, v{ACC+8}, s55, v{RD_+4*gq+r}")
        for i in range(4): I(f"v_cvt_pk_bf16_f32 v{ACC+12+i}, v{RD_+2*i}, v{RD_+2*i+1}")
        I(f"v_permlane32_swap_b32 v{ACC+12}, v{ACC+14}"); I(f"v_permlane32_swap_b32 v{ACC+13}, v{ACC+15}")
        I(f"ds_write_b128 v{VB}, {v(ACC+12,4)}"); lg.issue()
        lg.wait(lg.issued); self.barrier()
        ly = a.label("NY")
        I(f"s_cmp_lg_u32 s{SW}, 0"); I(f"s_cbranch_scc1 {ly}")
        I(f"v_add_u32 v{T}, {YB}, v{VL16}")
        for i in range(8): I(f"ds_read_b128 {v(RD_+4*i,4)}, v{T} offset:{1024*i}")
        I(f"s_lshl_b32 s44, s{SF}, 13"); I(f"s_add_u32 s44, s44, {YT_OFF}"); I("s_add_u32 s45, s44, 4096")
        I("s_waitcnt lgkmcnt(0)")
        for i in range(8): I(f"buffer_store_dwordx4 {v(RD_+4*i,4)}, v{VL16}, s[{RWS}:{RWS+3}], s{44+(i>>2)} offen offset:{1024*(i&3)}{self.st}")
        a.L(ly)
        ll = a.label("NL")
        I("s_cmp_eq_u32 s50, 3"); I(f"s_cbranch_scc1 {ll}")
        self.poll_check(VP, VPA, "s53", 1)
        for i in range(NCX): cload(i)
        a.L(ll)
        self.stamp(6)
        YT = self.XB
        lrd = {}; ypub = False; ymark = vm.issued; free = []; fresh = []; nw = NW; nw2 = NW + NL; nc = NCX
        for i in range(32):
            if i % 4 == 0 and self.o.get("ostamp"): self.stamp(17 + i // 4)
            if i == 14:
                I(f"s_lshl_b32 s53, s57, 7"); I(f"s_lshl_b32 s42, s{SW}, 4"); I("s_add_u32 s53, s53, s42"); I(f"s_add_u32 s53, s53, {FY_OFF}")
                tf = self.poll_issue(VP, VPA, "s53")
            if i == 24:
                vm.wait(tf); self.poll_check(VP, VPA, "s53", 1)
                I(f"v_lshrrev_b32 v{T}, 3, v0"); I(f"v_and_b32 v{T+1}, 7, v0"); I(f"v_lshlrev_b32 v{T+1}, 4, v{T+1}")
                I(f"v_lshl_add_u32 v{T}, v{T}, 12, v{T+1}")
                I(f"s_add_u32 m0, s{SWK}, {YT}")
                I(f"s_lshl_b32 s44, s57, 18"); I(f"s_lshl_b32 s45, s{SW}, 15"); I("s_add_u32 s44, s44, s45")
                I(f"s_lshl_b32 s45, s56, 7"); I("s_add_u32 s44, s44, s45"); I(f"s_add_u32 s44, s44, {YT_OFF}")
                I(f"buffer_load_dwordx4 v{T}, s[{RWS}:{RWS+3}], s44 offen{self.ld} lds"); vm.issue()
                I(f"v_and_b32 v{T+1}, 15, v0"); I(f"s_lshr_b32 s48, s{SW}, 1"); I("s_lshl_b32 s48, s48, 4")
                I(f"s_lshl_b32 s45, s56, 6"); I("s_add_u32 s45, s45, s48"); I(f"v_add_u32 v{T+1}, s45, v{T+1}")
                I(f"v_lshlrev_b32 v{T+2}, 2, v{T+1}"); I(f"s_mov_b32 s45, {G_OFF}")
                I(f"buffer_load_dword v{GR}, v{T+2}, s[{RWS}:{RWS+3}], s45 offen{self.ld}"); vm.issue()
                I(f"v_lshrrev_b32 v{T+2}, 4, v0"); I(f"v_lshlrev_b32 v{T+2}, 4, v{T+2}"); I(f"v_lshl_add_u32 v{VO}, v{T+1}, 10, v{T+2}")
                I(f"s_and_b32 s49, s{SW}, 1"); I("s_lshl_b32 s49, s49, 6"); I(f"s_lshl_b32 s45, s57, 7"); I("s_add_u32 s49, s49, s45")
                I(f"buffer_load_dwordx4 {v(XR,4)}, v{VO}, s[{RD}:{RD+3}], s49 offen"); vm.issue()
            vm.wait(max(ctok[i], wtok.get(i, 0)))
            if i in lrd: lg.wait(lrd[i])
            if not ypub and vm.done > ymark:
                ypub = True
                I(f"s_lshl_b32 s44, s{SF}, 2"); I(f"s_add_u32 s44, s44, {FY_OFF}"); self.publish(44, 3)
            for mt in range(2):
                for st in range(2):
                    d = v(OACC + 16*(2*mt+st), 16)
                    I(f"{MFMA} {d}, {v(wslot[i]+4*mt,4)}, {v(cslot[i]+4*st,4)}, {'0' if i == 0 else d}")
            lagged, fresh = fresh, [wslot[i], cslot[i]]
            free += fresh
            while free:
                if nw < NW + NL and nw - i <= 3:
                    j = nw - NW; assert vm.done >= ltok[j]
                    r = free.pop(0); wslot[nw] = r
                    I("s_nop 3")
                    for mt in range(2):
                        I(f"ds_read_b128 {v(r+4*mt,4)}, v{VLW} offset:{j*2048+mt*1024}"); lrd[nw] = lg.issue()
                    nw += 1
                elif nc < 32 and (nc <= nw2 or nw2 >= 32):
                    cslot[nc] = free.pop(0); cload(nc); nc += 1
                elif nw2 < 32:
                    wslot[nw2] = free.pop(0); self.wload(nw2); nw2 += 1
                else: break
        self.stamp(7)
        I(f"v_and_b32 v{T}, 31, v0"); I(f"v_lshrrev_b32 v{T+1}, 5, v0"); I(f"v_and_b32 v{T+2}, 15, v0")
        I(f"v_lshlrev_b32 v{T+1}, 1, v{T+1}")
        I(f"v_xor_b32 v{T+1}, v{T+1}, v{T+2}"); I(f"v_lshlrev_b32 v{T+1}, 4, v{T+1}"); I(f"v_lshl_add_u32 v{T}, v{T}, 8, v{T+1}")
        I(f"v_add_u32 v{T}, s51, v{T}")
        for mt in range(2):
            for gq in range(4):
                I(f"v_xor_b32 v{T+1}, {(4*gq+mt)*16}, v{T}"); I(f"v_add_u32 v{T+3}, 0x10000, v{T+1}")
                for st in range(2):
                    I(f"ds_write_b128 v{T+1+2*st}, {v(OACC+16*(2*mt+st)+4*gq,4)}"); lg.issue()
        I(f"v_lshrrev_b32 v{T}, 4, v0"); I(f"s_and_b32 s41, s{SW}, 1"); I("s_lshl_b32 s42, s41, 3")
        I(f"v_lshl_add_u32 v{T+1}, v{T}, 1, s42"); I(f"v_xor_b32 v{T+1}, v{T+1}, v{T+2}"); I(f"v_lshlrev_b32 v{T+1}, 4, v{T+1}")
        I("s_and_b32 s43, s48, 16"); I(f"v_add_u32 v{T+3}, s43, v{T+2}"); I(f"v_lshl_add_u32 v24, v{T+3}, 8, v{T+1}")
        I("s_lshr_b32 s43, s48, 5"); I("s_lshl_b32 s43, s43, 16"); I("v_add_u32 v24, s43, v24"); I("v_xor_b32 v25, 16, v24")
        I("s_lshl_b32 s42, s41, 5"); I(f"v_lshl_add_u32 v{T}, v{T}, 3, s42"); I(f"v_bfe_u32 v{T+1}, v0, 2, 2")
        I(f"v_add_u32 v{T}, v{T}, v{T+1}"); I(f"v_lshlrev_b32 v{T}, 7, v{T}"); I(f"v_and_b32 v{T+1}, 3, v0")
        I(f"v_lshl_add_u32 v{T}, v{T+1}, 3, v{T}"); I("s_lshl_b32 s42, s48, 1"); I(f"s_add_u32 s42, s42, {YT}"); I(f"v_add_u32 v28, s42, v{T}")
        self.sync_all()
        CX = 128; tk = []
        I(f"ds_read_b64_tr_b16 {v(100,2)}, v28"); lg.issue()
        I(f"ds_read_b64_tr_b16 {v(102,2)}, v28 offset:512"); ty2 = lg.issue()
        for p in range(8):
            for hh in range(2):
                I(f"ds_read_b128 {v(CX+8*p+4*hh,4)}, v{24+hh} offset:{8192*p}"); lg.issue()
            tk.append(lg.issued)
            if p == 5:
                lg.wait(ty2)
                for e in range(8):
                    if e & 1: I(f"v_and_b32 v104, 0xffff0000, v{XR+(e>>1)}"); I(f"v_and_b32 v105, 0xffff0000, v{100+(e>>1)}")
                    else: I(f"v_lshlrev_b32 v104, 16, v{XR+(e>>1)}"); I(f"v_lshlrev_b32 v105, 16, v{100+(e>>1)}")
                    I(f"v_mul_f32 v{112+e}, v104, v105"); I(f"v_mul_f32 v{112+e}, v{112+e}, v{GR}")
                I(f"v_sub_f32 v{GR}, 1.0, v{GR}")
        for p in range(1, 8):
            lg.wait(tk[p])
            for e in range(0, 8, 2): I(f"v_pk_add_f32 {v(CX+e,2)}, {v(CX+e,2)}, {v(CX+8*p+e,2)}")
        for e in range(8): I(f"v_fmac_f32 v{112+e}, v{CX+4*(e&1)+(e>>1)}, v{GR}")
        for e in range(4): I(f"v_cvt_pk_bf16_f32 v{108+e}, v{112+2*e}, v{112+2*e+1}")
        I(f"buffer_store_dwordx4 {v(108,4)}, v{VO}, s[{RC}:{RC+3}], s49 offen{' sc1' if not self.o.get('outpl') else ' nt' if self.o.get('outnt') else ''}"); vm.issue()
        self.stamp(16)
        if self.o.get("echo"):
            lp = a.label("EC")
            I("s_sub_u32 s100, s100, s96")
            if self.o.get("cyc"): I("s_lshr_b32 s100, s100, 4")
            I("s_memrealtime s[96:97]"); I("s_waitcnt lgkmcnt(0)")
            a.L(lp)
            I("s_memrealtime s[98:99]"); I("s_waitcnt lgkmcnt(0)"); I("s_sub_u32 s98, s98, s96"); I("s_cmp_lt_u32 s98, s100"); I(f"s_cbranch_scc1 {lp}")
        if self.o.get("dbgout") is not None:
            l = a.label("DB")
            I(f"s_cmp_lg_u32 s2, {self.o['dbgout']}"); I(f"s_cbranch_scc1 {l}"); I(f"s_cmp_lg_u32 s{SW}, 0"); I(f"s_cbranch_scc1 {l}")
            I("s_waitcnt vmcnt(0)")
            order = [0, 1, 2, 3, 8, 10, 11, 4, 5, 12, 6, 7, 16]
            I("v_mov_b32 v20, 0")
            for j, i in enumerate(order):
                I(f"s_mov_b32 s44, {4*i}"); I(f"v_writelane_b32 v20, s44, {j}")
            I(f"s_lshl_b32 s44, s2, 11"); I(f"s_add_u32 s44, s44, {STAMP_OFF}")
            I(f"buffer_load_dword v21, v20, s[{RWS}:{RWS+3}], s44 offen sc1"); I("s_waitcnt vmcnt(0)")
            I("v_readfirstlane_b32 s45, v21"); I("v_subrev_u32 v21, s45, v21")
            self.srd(RDBG, "dbg", 64); I("v_lshlrev_b32 v22, 2, v0")
            I(f"buffer_store_dword v21, v22, s[{RDBG}:{RDBG+3}], 0 offen")
            a.L(l)

def build(opts):
    g = G(opts); k = NAME + "_kernel"
    g.begin(k); g.a.T("; MARK p"); g.proj(); g.a.T("; MARK a"); g.attn(); g.a.T("; MARK t"); g.tailp(); g.end(); g.a.T("; MARK a"); g.attn_rare(); g.a.T("; MARK t"); g.a.L("CODE_END"); g.a.I("s_endpgm")
    n = g.a.fix_hazards()
    txt = "; @launch grid=(256,1,1) block=(512,1,1) lds=163840\n"
    txt += '.amdgcn_target "amdgcn-amd-amdhsa--gfx950"\n.text\n' + g.a.text()
    txt += f""".section .rodata,"a"
.p2align 6
.amdhsa_kernel {k}
  .amdhsa_next_free_vgpr 256
  .amdhsa_next_free_sgpr 102
  .amdhsa_accum_offset 256
  .amdhsa_group_segment_fixed_size 0
  .amdhsa_kernarg_size 128
  .amdhsa_user_sgpr_count 2
  .amdhsa_user_sgpr_kernarg_segment_ptr 1
  .amdhsa_system_sgpr_workgroup_id_x 1
.end_amdhsa_kernel
"""
    print(f"instructions {sum(1 for it in g.a.items if it[0] == 'i')}, nops inserted {n}", file=sys.stderr)
    return txt

if __name__ == "__main__":
    opts = {}
    for x in sys.argv[2:]:
        if "=" in x: k_, v_ = x.split("="); opts[k_] = int(v_)
        else: opts[x] = True
    open(sys.argv[1], "w").write(build(opts))
```

```python
import sys, math, struct
sys.path.insert(0, "gen")
from asmlib import *

NAME = "gated_mix__ssm_conv_h3__compressed_kv_cla__prompt"
MB = 1 << 20
KV_OFF, Q_OFF, CTX_OFF, KVT_OFF, YT_OFF, G_OFF = 0, 32*MB, 48*MB, 64*MB, 66*MB, 68*MB
XC_OFF = 40*MB
WOT_OFF = 32*MB
FLG_OFF = 68*MB + 65536
FK_OFF, FY_OFF, FC_OFF = FLG_OFF, FLG_OFF + 4096, FLG_OFF + 8192
STAMP_OFF = 69*MB
WS_SIZE = 70*MB
P = dict(q=64, k=66, v=68, shift=70, ssmk=72, ssmD=74, bx=76, ckv=78, wq=80, wuk=82, wuv=84, wo=86, gate=88, out=90, dbg=92, ws=94)
SW, SHEAD, SIDX, SWK, SF = 3, 4, 5, 6, 7
RA, RB, RC, RWS, RD, RE, RT, RDBG = 8, 12, 16, 20, 24, 28, 56, 60
MFMA = "v_mfma_f32_32x32x16_bf16"
LOG2E = 1.4426950408889634
F_KV, F_CA, F_CB, F_Y = 1, 2, 4, 8
def f2u(x): return "0x%08x" % struct.unpack("<I", struct.pack("<f", x))[0]
def rep4(b): return b * 0x01010101

class G:
    def __init__(self, opts):
        self.a = Asm(); self.o = opts
        self.vm = Cnt(self.a, "vmcnt", 63); self.lg = Cnt(self.a, "lgkmcnt", 15)
        self.st = "" if opts.get("plainst") else (" sc1 nt" if opts.get("ntst") else " sc1"); self.ld = "" if opts.get("plainld") else " sc1"
    def I(self, t): self.a.I(t)
    def srd(self, r, ptr, nbytes):
        I = self.I
        I(f"s_mov_b32 s{r}, s{P[ptr]}"); I(f"s_mov_b32 s{r+1}, s{P[ptr]+1}")
        I(f"s_mov_b32 s{r+2}, {nbytes}"); I(f"s_mov_b32 s{r+3}, 0x00020000")
    def save(self): return (self.vm.issued, self.vm.done, self.lg.issued, self.lg.done)
    def restore(self, s_): self.vm.issued, self.vm.done, self.lg.issued, self.lg.done = s_
    def stream(self, mf, fills):
        n = len(mf); slots = [[] for _ in range(n + 1)]
        for (s0, e0, cl) in fills:
            m = e0 - s0
            for j, c in enumerate(cl): slots[s0 + 1 + (j * m) // len(cl)].append(c)
        for c in slots[0]: c()
        for i in range(n):
            mf[i]()
            for c in slots[i+1]: c()
    def stamp(self, i, dyn=None):
        if self.o.get("echo") == i:
            self.I("s_memtime s[100:101]" if self.o.get("cyc") else "s_memrealtime s[100:101]"); self.I("s_waitcnt lgkmcnt(0)")
        if not self.o.get("stamp"): return
        I = self.I
        I("s_memrealtime s[96:97]"); I("s_memtime s[100:101]")
        I("s_lshl_b32 s98, s2, 3"); I(f"s_add_u32 s98, s98, s{SW}"); I("s_lshl_b32 s98, s98, 8")
        I(f"s_add_u32 s98, s98, {STAMP_OFF + 4*i}")
        if dyn is not None:
            I(f"s_lshl_b32 s99, s{dyn}, 4"); I("s_add_u32 s98, s98, s99")
        I("s_waitcnt lgkmcnt(0)")
        I("v_mov_b32 v2, s96"); I("v_mov_b32 v3, 0")
        I(f"buffer_store_dword v2, v3, s[{RWS}:{RWS+3}], s98 offen")
        I("v_mov_b32 v2, s100")
        I(f"buffer_store_dword v2, v3, s[{RWS}:{RWS+3}], s98 offen offset:128")
    OOB = 0x40000000
    def publish(self, soff, val=1, srd=RWS, byte=False, idx=None):
        I = self.I
        self.oob_sel()
        if idx is not None: I(f"s_and_b32 s98, s{SIDX}, 3"); I(f"s_cmp_eq_u32 s98, {idx}"); I(f"s_cselect_b32 s99, s99, {self.OOB}")
        I(f"v_mov_b32 v2, {val}"); I("v_mov_b32 v3, s99")
        I(f"buffer_store_{'byte' if byte else 'dword'} v2, v3, s[{srd}:{srd+3}], s{soff} offen sc1"); self.vm.issue()
    def oob_sel(self):
        self.I(f"s_cmp_eq_u32 s{SW}, 0"); self.I(f"s_cselect_b32 s99, 0, {self.OOB}")
    def poll_issue(self, vd, vaddr, soff, srd=RWS):
        self.I(f"buffer_load_dword v{vd}, v{vaddr}, s[{srd}:{srd+3}], {soff} offen sc1"); return self.vm.issue()
    def poll_check(self, vd, vaddr, soff, want, srd=RWS):
        a = self.a; I = self.I
        l = a.label("PCK"); lp = a.label("POLL")
        I(f"s_mov_b32 s98, {want}"); I("s_mov_b32 s99, 20000")
        a.L(lp)
        I(f"v_and_b32 v{vd}, s98, v{vd}"); I(f"v_cmp_ne_u32 vcc, s98, v{vd}"); I(f"s_cbranch_vccz {l}")
        I("s_sleep 2")
        I(f"buffer_load_dword v{vd}, v{vaddr}, s[{srd}:{srd+3}], {soff} offen sc1")
        I("s_sub_u32 s99, s99, 1"); I("s_cmp_lg_u32 s99, 0"); I("s_waitcnt vmcnt(0)"); I(f"s_cbranch_scc1 {lp}")
        a.L(l)
    def barrier(self): self.I("s_barrier")
    def sync_all(self):
        self.I("s_waitcnt vmcnt(0) lgkmcnt(0)"); self.vm.mark_all_done(); self.lg.mark_all_done(); self.barrier()

    def begin(self, kname):
        a = self.a; I = self.I
        a.T(f".globl {kname}\n.p2align 8\n.type {kname},@function"); a.L(kname)
        self.endl = a.label("END")
        if self.o.get("stamp"): I("s_memrealtime s[30:31]")
        if self.o.get("echo"): I("s_memtime s[96:97]" if self.o.get("cyc") else "s_memrealtime s[96:97]")
        I("s_load_dwordx16 s[64:79], s[0:1], 0"); I("s_load_dwordx16 s[80:95], s[0:1], 64")
        I("s_cmp_ge_u32 s2, 256"); I(f"s_cbranch_scc1 {self.endl}")
        I("v_lshrrev_b32 v1, 6, v0"); I("v_and_b32 v0, 63, v0"); I(f"v_readfirstlane_b32 s{SW}, v1")
        I("s_and_b32 s7, s2, 7"); I("s_lshl_b32 s7, s7, 2")
        I(f"s_lshr_b32 s{SIDX}, s2, 3"); I(f"s_lshr_b32 s{SHEAD}, s{SIDX}, 3"); I(f"s_add_u32 s{SHEAD}, s{SHEAD}, s7")
        I(f"s_and_b32 s{SIDX}, s{SIDX}, 7"); I(f"s_lshl_b32 s{SWK}, s{SW}, 10")
        I(f"s_lshl_b32 s{SF}, s{SHEAD}, 3"); I(f"s_add_u32 s{SF}, s{SF}, s{SIDX}")
    def end(self):
        self.a.L(self.endl); self.I("s_endpgm")

    def proj(self):
        a = self.a; I = self.I; vm = self.vm; lg = self.lg
        QA_LDS = 65536
        ACC = {"K": 64, "V": 128, "Q": 64}
        FX = [16, 24]; FW = [192, 32]
        VWA = 4; VSK, VSV, VOX, VOW, VST = 8, 9, 10, 11, 12; VXA = 224; T = 232
        NB = 0; XC = self.o.get("xc", 0)
        ST = [("KV", c) for c in range(NB)] + [("K", c) for c in range(NB, 8)] + [("V", c) for c in range(7, NB - 1, -1)] + [("Q", c) for c in range(8)]
        NS = len(ST); TK = 7; TV = NS - 9; TQ = NS - 8
        I("v_lshrrev_b32 v13, 3, v0"); I(f"s_lshl_b32 s40, s{SW}, 3"); I("v_add_u32 v13, s40, v13"); I("v_lshlrev_b32 v13, 10, v13")
        I(f"s_lshr_b32 s41, s{SW}, 1"); I(f"s_xor_b32 s40, s41, s{SW}"); I("s_and_b32 s40, s40, 1"); I("s_lshl_b32 s40, s40, 2")
        I("v_lshrrev_b32 v14, 4, v0"); I("v_add_u32 v15, s40, v14")
        I("v_and_b32 v3, 7, v0"); I("v_xor_b32 v15, v15, v3"); I(f"v_lshl_add_u32 v{VOX}, v15, 4, v13")
        I(f"s_lshl_b32 s40, s{SW}, 2"); I("v_add_u32 v13, s40, v14"); I("v_lshlrev_b32 v13, 13, v13")
        I("s_and_b32 s41, s41, 1"); I("s_lshl_b32 s41, s41, 3"); I("v_lshl_add_u32 v15, v14, 1, s41"); I("v_and_b32 v3, 15, v0"); I("v_xor_b32 v15, v15, v3")
        I("v_lshl_add_u32 v13, v15, 4, v13"); I(f"s_lshl_b32 s40, s{SHEAD}, 8"); I(f"v_add_u32 v{VOW}, s40, v13")
        I(f"v_lshlrev_b32 v{VST}, 4, v0")
        I(f"s_lshl_b32 s44, s{SIDX}, 18")
        for i in range(1, 4): I(f"s_add_u32 s{44+i}, s44, {65536*i}")
        ROT = self.o.get("rot", 2)
        if ROT == 0: I("s_mov_b32 s33, 0")
        elif ROT == 1: I(f"s_mov_b32 s33, s{SIDX}")
        elif ROT == 2: I(f"s_lshr_b32 s33, s{SHEAD}, 2"); I(f"s_add_u32 s33, s33, s{SIDX}")
        elif ROT == 3: I(f"s_lshr_b32 s33, s{SHEAD}, 2"); I(f"s_add_u32 s33, s33, s{SIDX}"); I(f"s_lshl_b32 s34, s{SHEAD}, 1"); I("s_add_u32 s33, s33, s34")
        elif ROT == 4: I(f"s_lshr_b32 s33, s{SHEAD}, 2")
        if self.o.get("rotq"): I(f"s_lshl_b32 s32, s{SHEAD}, 1"); I("s_add_u32 s32, s32, s33")
        else: I("s_mov_b32 s32, s33")
        I("s_waitcnt lgkmcnt(0)")
        if self.o.get("stamp"): I("s_memrealtime s[28:29]")
        self.srd(RA, "ckv", 2*MB); self.srd(RB, "wuk", 4*MB); self.srd(RC, "wuv", 4*MB)
        def xbase(t):
            k, c = ST[t]
            return (32768, 131072, 0)[((16 + c) if k == "Q" else (15 - c + NB)) % 3]
        units = [(t, m) for t in range(NS) for m in ST[t][0]]
        uidx = {u: i for i, u in enumerate(units)}
        def wbase(t, m): return 65536 + (uidx[(t, m)] % 4)*16384
        items = []
        lastx = {}
        for t in range(NS):
            k, c = ST[t]
            for m in k:
                u = uidx[(t, m)]
                def w(i, t=t, m=m, c=c):
                    if i == 0: I(f"s_add_u32 s34, s{32 if m == 'Q' else 33}, {c}"); I("s_and_b32 s34, s34, 7"); I("s_lshl_b32 s34, s34, 19")
                    I(f"s_add_u32 m0, s{SWK}, {wbase(t, m) + i*8192}"); I(f"s_add_u32 s41, s34, {i*262144}")
                    r = {"K": RB, "V": RC, "Q": RE}[m]
                    I(f"buffer_load_dwordx4 v{VOW}, s[{r}:{r+3}], s41 offen lds"); dtok[t] = vm.issue()
                items.append((t, units[u-4][0] if u >= 4 else -1, [lambda i=i, w=w: w(i) for i in range(2)]))
            key = ("Q" if k == "Q" else "C", c); prev = lastx.get(xbase(t))
            if prev is None or prev[1] != key:
                def x(i, t=t, k=k, c=c):
                    if i == 0: I(f"s_add_u32 s35, s{32 if k == 'Q' else 33}, {c}"); I("s_and_b32 s35, s35, 7"); I("s_lshl_b32 s35, s35, 7")
                    I(f"s_add_u32 m0, s{SWK}, {xbase(t) + i*8192}"); I(f"s_add_u32 s41, s{(48 if k == 'Q' else 44)+i}, s35")
                    r = (RWS if XC else RD) if k == "Q" else RA
                    I(f"buffer_load_dwordx4 v{VOX}, s[{r}:{r+3}], s41 offen{self.ld if (XC and k == 'Q') else ''} lds"); dtok[t] = vm.issue()
                items.append((t, prev[0] if prev else -1, [lambda i=i, x=x: x(i) for i in range(4)]))
            lastx[xbase(t)] = (t, key)
        dtok = {}
        def take(done, upto=99):
            out = []
            for it in list(items):
                if it[1] <= done and it[0] <= upto: out += it[2]; items.remove(it)
            return out
        for f in take(-1, 0): f()
        self.srd(RWS, "ws", WS_SIZE); self.srd(RDBG, "dbg", 256)
        self.stamp(31)
        if self.o.get("stamp"):
            I("v_mov_b32 v2, s30"); I("s_sub_u32 s98, s98, 124"); I(f"buffer_store_dword v2, v3, s[{RWS}:{RWS+3}], s98 offen")
            I("v_mov_b32 v2, s28"); I(f"buffer_store_dword v2, v3, s[{RWS}:{RWS+3}], s98 offen offset:120")
        I(f"s_lshl_b32 s48, s{SIDX}, 17"); I("s_add_u32 s49, s48, 65536")
        I(f"s_sub_u32 s50, 15, s{SIDX}"); I("s_lshl_b32 s50, s50, 17"); I("s_add_u32 s51, s50, 65536")
        if XC:
            for i in range(4): I(f"s_add_u32 s{48+i}, s{48+i}, {XC_OFF}")
        I(f"s_and_b32 s42, s{SW}, 3"); I("s_lshl_b32 s42, s42, 6"); I(f"s_lshr_b32 s43, s{SW}, 2"); I("s_lshl_b32 s43, s43, 1")
        I("v_and_b32 v13, 15, v0"); I("v_lshrrev_b32 v15, 4, v0")
        I("v_lshrrev_b32 v14, 1, v13"); I("v_xor_b32 v14, v14, v15"); I("v_lshlrev_b32 v14, 4, v14")
        I("v_add_u32 v3, s42, v13"); I(f"v_lshl_add_u32 v{VXA}, v3, 7, v14")
        I("v_and_b32 v2, 8, v13"); I("v_add_u32 v3, v3, v2"); I(f"v_lshl_add_u32 v{VXA+4}, v3, 7, v14")
        for pt in range(2):
            b = VXA + 4*pt
            I(f"v_xor_b32 v{b+1}, 64, v{b}"); I(f"v_add_u32 v{b+2}, 0x20000, v{b}"); I(f"v_add_u32 v{b+3}, 0x20000, v{b+1}")
        I("v_lshlrev_b32 v3, 4, v13"); I("v_and_b32 v2, 1, v15"); I("v_lshl_add_u32 v3, v2, 9, v3"); I("v_lshrrev_b32 v14, 1, v15")
        I(f"v_lshl_add_u32 v{VSK}, v14, 10, v3"); I(f"v_lshl_add_u32 v{VSV}, v14, 12, v3")
        I("v_bfe_u32 v13, v0, 2, 2"); I("v_lshl_add_u32 v14, v15, 3, v13"); I("v_lshlrev_b32 v14, 8, v14")
        I("v_and_b32 v3, 3, v0"); I("v_lshl_add_u32 v14, v3, 3, v14"); I("v_add_u32 v14, 0x10000, v14")
        I("v_lshl_add_u32 v13, v2, 2, v13"); I("s_lshl_b32 s40, s43, 1"); I("v_xor_b32 v13, s40, v13"); I(f"v_lshl_add_u32 v{VWA}, v13, 5, v14")
        for dt in range(1, 4): I(f"v_xor_b32 v{VWA+dt}, {dt << 5}, v{VWA}")
        I(f"s_lshl_b32 s54, s{SHEAD}, 4"); I(f"s_lshl_b32 s55, s{SIDX}, 1"); I("s_add_u32 s54, s54, s55")
        I(f"s_bfe_u32 s55, s{SW}, 0x10001"); I("s_add_u32 s54, s54, s55"); I("s_lshl_b32 s54, s54, 16")
        I(f"s_and_b32 s55, s{SW}, 1"); I("s_lshl_b32 s55, s55, 14"); I("s_add_u32 s54, s54, s55")
        I("s_lshl_b32 s55, s43, 10"); I("s_add_u32 s52, s54, s55"); I("s_add_u32 s52, s52, 0x8000")
        I("s_lshl_b32 s55, s43, 11"); I("s_add_u32 s54, s54, s55")
        XG = T; GW = T + 4; hl = {}
        def gate_loads():
            L = []
            def E(t): L.append(lambda: I(t))
            def V(t):
                def f(): I(t); hl["t"] = vm.issue()
                L.append(f)
            E(f"s_lshl_b32 s40, s{SHEAD}, 7"); E(f"s_lshl_b32 s39, s{SIDX}, 2"); E("s_add_u32 s40, s40, s39"); E(f"s_add_u32 s40, s40, {FK_OFF}")
            E(f"v_mov_b32 v13, s40")
            E(f"s_lshr_b32 s39, s{SHEAD}, 2"); E("s_lshl_b32 s39, s39, 7"); E(f"s_and_b32 s40, s{SHEAD}, 3"); E("s_lshl_b32 s40, s40, 2"); E("s_add_u32 s39, s39, s40")
            E(f"s_lshl_b32 s40, s{SIDX}, 10"); E("s_add_u32 s40, s40, s39"); E(f"s_add_u32 s40, s40, {FC_OFF}")
            E("v_writelane_b32 v13, s40, 1")
            E(f"s_sub_u32 s40, 15, s{SIDX}"); E("s_lshl_b32 s40, s40, 10"); E("s_add_u32 s40, s40, s39"); E(f"s_add_u32 s40, s40, {FC_OFF}")
            E("v_writelane_b32 v13, s40, 2")
            E(f"s_lshl_b32 s40, s{SF}, 2"); E(f"s_add_u32 s40, s40, {FY_OFF}"); E("v_writelane_b32 v13, s40, 3"); E("v_mov_b32 v14, 0")
            def oo(): self.oob_sel(); I("v_add_u32 v13, s99, v13")
            L.append(oo)
            V(f"buffer_store_dword v14, v13, s[{RWS}:{RWS+3}], 0 offen sc1")
            E("s_lshl_b32 s37, s2, 3"); E(f"s_add_u32 s37, s37, s{SW}"); E("s_lshl_b32 s38, s37, 10")
            L.append(lambda: self.srd(RD, "q", 2*MB)); L.append(lambda: self.srd(RE, "wq", 4*MB)); L.append(lambda: self.srd(RT, "gate", 1024))
            V(f"buffer_load_dwordx4 {v(XG,4)}, v{VST}, s[{RD}:{RD+3}], s38 offen")
            V(f"buffer_load_dwordx4 {v(GW,4)}, v{VST}, s[{RT}:{RT+3}], 0 offen")
            return L
        def gate_ops():
            L = []; E = lambda t: L.append(lambda: I(t)); Z = T + 8
            L.append(lambda: vm.wait(hl["t"]))
            def xs():
                I(f"s_add_u32 s38, s38, {XC_OFF}"); I(f"buffer_store_dwordx4 {v(XG,4)}, v{VST}, s[{RWS}:{RWS+3}], s38 offen{self.st}"); vm.issue()
            if XC: L.append(xs)
            E(f"v_dot2_f32_bf16 v{Z}, v{XG}, v{GW}, 0")
            for i in range(1, 4): E(f"v_dot2_f32_bf16 v{Z}, v{XG+i}, v{GW+i}, v{Z}")
            for m in ("quad_perm:[1,0,3,2] row_mask:0xf", "quad_perm:[2,3,0,1] row_mask:0xf", "row_half_mirror row_mask:0xf", "row_mirror row_mask:0xf",
                      "row_bcast:15 row_mask:0xa", "row_bcast:31 row_mask:0xc"):
                E(f"v_add_f32_dpp v{Z}, v{Z}, v{Z} {m} bank_mask:0xf")
            E(f"v_readlane_b32 s36, v{Z}, 63"); E(f"v_mov_b32 v{Z+1}, {f2u(-LOG2E)}"); E(f"v_mul_f32 v{Z}, s36, v{Z+1}")
            E(f"v_exp_f32 v{Z}, v{Z}"); E(f"v_add_f32 v{Z}, 1.0, v{Z}"); E(f"v_rcp_f32 v{Z}, v{Z}")
            E("s_lshl_b32 s38, s37, 2"); E(f"s_add_u32 s38, s38, {G_OFF}"); E(f"v_mov_b32 v{Z+1}, 0")
            def gs():
                I(f"buffer_store_dword v{Z}, v{Z+1}, s[{RWS}:{RWS+3}], s38 offen{self.st}"); vm.issue()
            L.append(gs)
            return L
        toks = {}
        def rdx(t, mt):
            m = ST[t][0]; xb = xbase(t); pt = 1 if m == "V" else 0
            off = (xb & 65535) + ((mt >> 1)*4096 + (mt & 1)*1024 if pt else mt*2048)
            def f(kk):
                va = VXA + 4*pt + 2*(xb >> 17) + (kk ^ (mt & 1))
                I(f"ds_read_b128 {v(FX[mt & 1]+4*kk,4)}, v{va} offset:{off}"); toks[("x", t, mt, kk)] = lg.issue()
            return [lambda: f(0), lambda: f(1)]
        def rdw(t, dt):
            m = ST[t][0]
            def f(kk, h):
                I(f"ds_read_b64_tr_b16 {v(FW[t & 1]+8*dt+4*kk+2*h,2)}, v{VWA+dt} offset:{wbase(t, m)-65536+kk*8192+h*1024}"); toks[("w", t, dt, kk)] = lg.issue()
            return [lambda kk=kk, h=h: f(kk, h) for kk in range(2) for h in range(2)]
        def atile(m, mt, dt): return ACC[m] + (4*(((mt >> 1)*4 + dt)*2 + (mt & 1)) if m == "V" else 4*(mt*4 + dt))
        def mfs(t, mt):
            m = ST[t][0]; first = t == 0 or ST[t-1][0] != m; L = []
            order = [(dt, kk) for dt in range(4) for kk in range(2)] if not self.o.get("nochain") else [(dt, kk) for kk in range(2) for dt in range(4)]
            for dt, kk in order:
                def f(dt=dt, kk=kk):
                    lg.wait(max(toks[("x", t, mt, kk)], toks[("w", t, dt, kk)]))
                    d = v(atile(m, mt, dt), 4); X = v(FX[mt & 1]+4*kk, 4); W = v(FW[t & 1]+8*dt+4*kk, 4)
                    c = "0" if (first and kk == 0) else d
                    I(f"v_mfma_f32_16x16x32_bf16 {d}, {X}, {W}, {c}" if m == "V" else f"v_mfma_f32_16x16x32_bf16 {d}, {W}, {X}, {c}")
                L.append(f)
            return L
        def pieces(m):
            if m == "V": return [(atile(m, 2*p, dt), p*8192 + (dt >> 1)*1024 + (dt & 1)*256) for p in range(2) for dt in range(4)]
            return [(atile(m, mt, 2*j), (mt >> 1)*8192 + j*2048 + (mt & 1)*256) for mt in range(4) for j in range(2)]
        def kv_out(m):
            out = []
            for b, off in pieces(m):
                pk = [lambda i=i, b=b: I(f"v_cvt_pk_bf16_f32 v{b+i}, v{b+2*i}, v{b+2*i+1}") for i in range(4)]
                if m == "K": pk = [lambda i=i, b=b: I(f"v_mul_f32 v{b+i}, {f2u(LOG2E / math.sqrt(128.0))}, v{b+i}") for i in range(8)] + pk
                def st(b=b, off=off):
                    I(f"s_add_u32 s41, s{54 if m == 'K' else 52}, {off}")
                    I(f"buffer_store_dwordx4 {v(b,4)}, v{VSK if m == 'K' else VSV}, s[{RWS}:{RWS+3}], s41 offen{self.st}"); vm.issue()
                out.append((pk, st))
            return out
        side = {}; late = {}
        def spread(ops, t0, t1, dst=side, ks=(0, 1, 2)):
            sl = [(t, k) for t in range(t0, t1) for k in ks]; n = len(ops)
            for j, key in enumerate(sl): dst.setdefault(key, []).extend(ops[n*j//len(sl): n*(j+1)//len(sl)])
        PG = self.o.get("pg", 0)
        spread(gate_loads(), PG, PG + 1); spread(gate_ops(), PG + 2, PG + 3)
        def wtouch(r, half, wv):
            def f():
                I(f"s_cmp_eq_u32 s{SW}, {wv}"); I(f"s_cselect_b32 s99, 0, {self.OOB}")
                I(f"s_lshl_b32 s40, s{SIDX}, 19"); I(f"s_lshl_b32 s39, s{SHEAD}, 8"); I("s_add_u32 s40, s40, s39"); I(f"s_add_u32 s40, s40, {half*32*8192}")
                I("v_lshrrev_b32 v3, 1, v0"); I("v_lshlrev_b32 v3, 13, v3"); I("v_and_b32 v2, 1, v0"); I("v_lshl_add_u32 v3, v2, 7, v3"); I("v_add_u32 v3, s99, v3")
                I(f"buffer_load_dword v1, v3, s[{r}:{r+3}], s40 offen"); vm.issue()
            return f
        for nm, r, dflt in (("tk", RB, -1), ("tv", RC, 1), ("tq", RE, 3)):
            t0 = self.o.get(nm, dflt)
            if t0 >= 0:
                for half in range(2): side.setdefault((t0 + half, 2), []).append(wtouch(r, half, half))
        KN = self.o.get("kn", 8); VD = self.o.get("vd", 0); VN = self.o.get("vn", 5)
        KO = kv_out("K"); VO = kv_out("V")
        spread(sum((p for p, _ in KO), []), TK + 1, min(TK + 3, TQ), ks=(0, 1))
        npk = 2 * (min(TK + 3, TQ) - TK - 1)
        spread([s_ for _, s_ in KO], TK + 1, TK + 1 + KN, dst=late, ks=(2,))
        assert len(late[(TK + 1, 2)]) <= 8 * 2 // npk
        spread(sum((p for p, _ in VO), []), TQ, TQ + 1, ks=(0, 1))
        spread([s_ for _, s_ in VO], TQ + VD, TQ + VD + VN, dst=late, ks=(2,))
        PK_, PV_ = TK + KN + 2, TQ + VD + VN
        assert PK_ <= NS - 5 and PV_ <= NS - 2
        QE = []; EQ = lambda t: QE.append(lambda: I(t))
        EQ(f"s_and_b32 s55, s{SW}, 2"); EQ("s_lshl_b32 s55, s55, 15"); EQ(f"s_add_u32 s55, s55, {QA_LDS}")
        EQ(f"s_and_b32 s54, s{SW}, 1"); EQ("s_lshl_b32 s54, s54, 14"); EQ("s_add_u32 s55, s55, s54")
        EQ("s_lshl_b32 s54, s43, 11"); EQ("s_add_u32 s55, s55, s54"); EQ(f"v_add_u32 v14, s55, v{VSK}")
        spread(QE, NS - 1, NS)
        spread([lambda r=r: I(f"v_mov_b64 {v(192+2*r,2)}, 0") for r in range(32) if not 16 <= r < 20], NS - 1, NS)
        side.setdefault((NS - 1, 3), []).extend([lambda r=r: I(f"v_mov_b64 {v(192+2*r,2)}, 0") for r in range(16, 20)])
        def fkoff():
            I(f"s_lshl_b32 s40, s{SHEAD}, 7"); I(f"s_lshl_b32 s41, s{SIDX}, 2"); I("s_add_u32 s40, s40, s41"); I(f"s_add_u32 s40, s40, {FK_OFF}")
        def w0only(fn):
            l = a.label("NP"); I(f"s_cmp_lg_u32 s{SW}, 0"); I(f"s_cbranch_scc1 {l}"); fn(); a.L(l)
        def k0(i):
            I(f"s_lshl_b32 s40, s{SW}, 12"); I("s_add_u32 m0, s40, 0x8000")
            I(f"s_lshl_b32 s41, s{SHEAD}, 20"); I("s_add_u32 s41, s41, s40")
            I(f"buffer_load_dwordx4 v{VST}, s[{RWS}:{RWS+3}], s41 offen offset:{1024*i}{self.ld} lds"); vm.issue()
        self.barrier()
        for f in take(-1, 1): f()
        vm.wait(dtok[0]); self.barrier()
        self.stamp(1)
        def first_reads(t):
            x = rdx(t, 0); w = [rdw(t, dt) for dt in range(4)]
            return [x[0]] + w[0][:2] + [x[1]] + w[0][2:] + w[1], w[2] + w[3]
        L, rest = first_reads(0)
        for f in L: f()
        mark = {}; TZ = PG + 4; TS = 10; DS = self.o.get("dsteps", 3)
        pend = take(-1)
        for t in range(NS):
            for k in range(4):
                M = mfs(t, k); n = len(M); PB = []
                if k == 3 and t < NS - 1:
                    assert not pend
                    if t == TS + 2: vm.wait(td); w0only(lambda: self.poll_check(14, 13, "0", rep4(1), RDBG))
                    if t == NS - 3: vm.wait(tp); w0only(lambda: self.poll_check(15, 13, "s53", 1))
                    lg.wait(lg.issued); vm.wait(dtok[t+1])
                    if t == TZ: vm.wait(mark[TZ-2])
                    if t == PK_: vm.wait(mark[TK + KN])
                    if t == PV_: vm.wait(mark[PV_ - 1])
                    self.barrier()
                    ps = self.o.get("pstamp")
                    if ps is not None and 0 <= t - int(ps) + 1 < 13: self.stamp(17 + t - int(ps) + 1); vm.issue(2)
                    if TZ <= t < TZ + 4: PB.append(lambda t=t: self.publish(SF, 1, RDBG, True, idx=t - TZ))
                    if t == PK_: PB.append(lambda: (fkoff(), self.publish(40, 1)))
                    if t == PV_: PB.append(lambda: (fkoff(), self.publish(40, 3)))
                    pend = take(t)
                    if t == NS - 3: pend += [lambda i=i: k0(i) for i in range(4)]
                    nd = len(pend) // (DS + 1)
                else:
                    nd = -(-len(pend) // max(1, (3 if t == 0 else DS) - k))
                D, pend = pend[:nd], pend[nd:]
                fl = []
                if not (t == NS - 1 and k == 3):
                    if k == 3:
                        L, rest = first_reads(t+1); nr = self.o.get("nr", 4)
                        fl.append((0, 7, L + rest[:nr])); rest = rest[nr:]
                    else:
                        if k == 0 and rest: fl.append((-1, 2, rest))
                        fl.append((2, 4, rdx(t, k+1)))
                if PB: fl.append((1, 2, PB))
                if D: fl.append((0, n, D))
                if side.get((t, k)): fl.append((0, n, side[(t, k)]))
                if late.get((t, k)): fl.append((n - 2, n, late[(t, k)]))
                self.stream(M, fl)
                if k == 2: mark[t] = vm.issued
                if t == TS and k == 0:
                    self.oob_sel(); I("v_lshl_add_u32 v13, v0, 2, s99"); td = self.poll_issue(14, 13, "0", RDBG)
                if t == NS - 4 and k == 0:
                    self.oob_sel(); I("v_and_b32 v13, 7, v0"); I("v_lshl_add_u32 v13, v13, 2, s99")
                    I(f"s_lshl_b32 s53, s{SHEAD}, 7"); I(f"s_add_u32 s53, s53, {FK_OFF}")
                    tp = self.poll_issue(15, 13, "s53")
            if t == TK: self.stamp(2)
            if t == TV: self.stamp(13)
        assert not items
        self.stamp(3)
        I("v_mov_b32 v16, v13")
        self.poll_issue(17, 16, "s53")
        for b, off in pieces("Q"):
            for i in range(4): I(f"v_cvt_pk_bf16_f32 v{b+i}, v{b+2*i}, v{b+2*i+1}")
            I(f"ds_write_b128 v14, {v(b,4)} offset:{off}"); lg.issue()
        self.attn_setup()
        vm.wait(vm.issued); w0only(lambda: self.poll_check(17, 16, "s53", 3))
        lg.wait(lg.issued); self.barrier()

    def attn_setup(self): self.attn(True)
    def attn(self, setup=False):
        a = self.a; I = self.I; vm = self.vm; lg = self.lg; stream = self.stream
        ML = 159744; QA_LDS = 65536; QB_LDS = 131072
        O = 192; QF = 160; NM = 144; S = [112, 128]; PP = [96, 104]; RING = 64; NR = 8; E = 56; PK = 16
        VK, VV, VL16, LRUN, LU, THR, NINF, VQ, TMP, LA = 4, 5, 6, 7, 8, 9, 10, 11, 12, 14
        SR, SG, SC1, SC2, SKO, SVO, SKM, SVM, STH = 32, 33, 34, 35, 36, 37, 38, 39, 42
        SMK, SFIN, SCA, SM1 = 54, 55, 59, 58
        DC = self.o.get("dmacost", 16); WEV = self.o.get("wev", 2)
        if setup:
            I(f"s_lshr_b32 s{SG}, s{SW}, 2"); I(f"s_mul_i32 s{SR}, s{SG}, 7"); I(f"s_xor_b32 s{SR}, s{SR}, s{SW}")
            I(f"v_lshlrev_b32 v{VL16}, 4, v0")
            I(f"s_lshl_b32 s44, s{SR}, 13"); I(f"s_add_u32 s44, s44, {QB_LDS}"); I(f"v_add_u32 v{VQ}, s44, v{VL16}")
            I(f"s_lshl_b32 s45, s{SG}, 16"); I(f"v_subrev_u32 v{TMP+1}, s45, v{VQ}")
            I(f"s_mov_b32 s{SC1}, s{SIDX}")
            I(f"s_lshl_b32 s{SC2}, s{SIDX}, 1"); I(f"s_sub_u32 s{SC2}, 14, s{SC2}")
            I(f"s_cmp_eq_u32 s{SG}, 1"); I(f"s_cselect_b32 s{SM1}, 0, -1")
            I(f"s_lshl_b32 s43, s{SW}, 12"); I(f"s_lshl_b32 s{SVO}, s{SHEAD}, 20"); I(f"s_add_u32 s{SVO}, s{SVO}, s43")
            I(f"s_add_u32 s{SKO}, s{SVO}, 0x10000"); I(f"s_add_u32 s{SVO}, s{SVO}, 0x8000")
            I(f"s_mov_b32 s{SKM}, s43"); I(f"s_add_u32 s{SVM}, s43, 0x18000")
            I(f"s_mov_b32 s{STH}, {f2u(4096.0)}"); I(f"v_mov_b32 v{NINF}, 0xff800000")
            I(f"v_and_b32 v{THR}, 31, v0"); I(f"s_lshl_b32 s44, s{SR}, 5"); I(f"v_add_u32 v{THR}, s44, v{THR}")
            I(f"v_lshrrev_b32 v{TMP}, 5, v0"); I(f"v_lshlrev_b32 v{TMP}, 2, v{TMP}"); I(f"v_sub_u32 v{THR}, v{THR}, v{TMP}")
            I(f"v_add_u32 v{VK}, 0x8000, v{VL16}")
            I(f"s_lshl_b32 s{SCA}, s{SIDX}, 2"); I(f"s_add_u32 s{SCA}, s{SCA}, s{SR}"); I(f"s_lshl_b32 s{SCA}, s{SCA}, 5"); I(f"s_add_u32 s{SCA}, s{SCA}, s{SHEAD}")
            I(f"s_lshl_b32 s{SCA}, s{SCA}, 13"); I(f"s_add_u32 s{SCA}, s{SCA}, {CTX_OFF}")
            I(f"s_mov_b32 s{SFIN}, 0")
            if self.o.get("map84", 1):
                I(f"s_lshr_b32 s56, s{SF}, 6"); I("s_lshl_b32 s56, s56, 3"); I(f"s_bfe_u32 s44, s{SF}, 0x30002"); I("s_add_u32 s56, s56, s44")
                I(f"s_bfe_u32 s57, s{SF}, 0x10005"); I("s_lshl_b32 s57, s57, 2"); I(f"s_and_b32 s44, s{SF}, 3"); I("s_add_u32 s57, s57, s44")
                I(f"s_and_b32 s40, s{SF}, 63"); I("s_lshl_b32 s40, s40, 16")
            else:
                I(f"s_mov_b32 s56, s{SHEAD}"); I(f"s_mov_b32 s57, s{SIDX}")
                I(f"s_and_b32 s40, s{SF}, 31"); I("s_lshl_b32 s40, s40, 17")
            I(f"s_lshl_b32 s44, s{SW}, 13"); I("s_add_u32 s40, s40, s44"); I(f"s_add_u32 s40, s40, {WOT_OFF}")
            self.srd(RB, "ssmk", 2*MB); self.srd(RA, "k", 2*MB); self.srd(RC, "v", 2*MB); self.srd(RD, "shift", 4096); self.srd(RE, "wo", 4*MB)
            I("s_mov_b32 s41, 0")
            if not self.o.get("noprio"):
                l = a.label("PR"); I(f"s_cmp_eq_u32 s{SG}, 1"); I(f"s_cbranch_scc0 {l}"); I("s_setprio 1"); a.L(l)
            return
        def loadq(va):
            qt = []
            for ds in range(8):
                I(f"ds_read_b128 {v(QF+4*ds,4)}, v{va} offset:{1024*ds}"); qt.append(lg.issue())
            return qt
        op = lambda t, c=4: (lambda: I(t), c)
        def dma4(kind):
            sm, so = (SKM, SKO) if kind == "k" else (SVM, SVO)
            def d(i):
                def f():
                    if i == 0: I(f"s_mov_b32 m0, s{sm}"); I(f"s_xor_b32 s{sm}, s{sm}, 0x8000")
                    if not (self.o.get("a_nodma") and i):
                        I(f"buffer_load_dwordx4 v{VL16}, s[{RWS}:{RWS+3}], s{so} offen offset:{1024*i}{self.ld} lds")
                    if i == 3: I(f"s_add_u32 s{so}, s{so}, 0x10000")
                return (f, DC + (8 if i == 0 else 4 if i == 3 else 0))
            return [d(i) for i in range(4)]
        self.ring_n = 0
        def rd(kind, sl, idx):
            h = {}
            def f():
                slot = self.ring_n % NR; self.ring_n += 1
                h["reg"] = RING + 4*slot
                I(f"ds_read_b128 {v(h['reg'],4)}, v{VK if kind == 'k' else VV} offset:{sl*8192+idx*1024}"); h["tok"] = lg.issue()
            return f, h
        def wait_for(R, i):
            if R[i][1]["tok"] <= lg.done: return
            j = i
            while j + 1 < len(R) and j + 1 < i + WEV and "tok" in R[j+1][1] and R[j+1][1]["tok"] > R[i][1]["tok"]: j += 1
            lg.wait(R[j][1]["tok"])
        def mf_qk(sb, ds, R, i, czero=False):
            wait_for(R, i)
            c = (("0" if czero else v(NM,16)) if ds == 0 else v(S[sb],16))
            I(f"{MFMA} {v(S[sb],16)}, {v(R[i][1]['reg'],4)}, {v(QF+4*ds,4)}, {c}")
        def mf_pv(pb, idx, R, i=None, reg=None):
            ks, dt = idx >> 2, idx & 3
            if reg is None: wait_for(R, i); reg = R[i][1]["reg"]
            I(f"{MFMA} {v(O+16*dt,16)}, {v(reg,4)}, {v(PP[pb]+4*ks,4)}, {v(O+16*dt,16)}")
        def sm_ops(sb):
            L = []
            ex = lambda i: op(f"v_exp_f32 v{E+(i&7)}, v{S[sb]+i}", 8)
            def post(j):
                r = []; e0, e1 = E + ((2*j) & 7), E + ((2*j+1) & 7)
                if j == 0: r.append(op(f"v_add_f32 v{LU}, v{e0}, v{e1}"))
                else: r += [op(f"v_add_f32 v{LU}, v{LU}, v{e0}"), op(f"v_add_f32 v{LU}, v{LU}, v{e1}")]
                r.insert(1 if j else 0, op(f"v_cvt_pk_bf16_f32 v{PP[sb]+j}, v{e0}, v{e1}"))
                return r
            L += [ex(0), ex(1)]
            for j in range(8):
                p = post(j)
                L += ([ex(2*j+2), p[0], ex(2*j+3)] + p[1:]) if j < 7 else p
            if self.o.get("a_nosm"): L = [(lambda: None, 0) if i > 3 else x for i, x in enumerate(L)]
            return L
        def sched(M, fixed, chain):
            n = len(M); fc = [sum(c for _, c in fixed.get(g, [])) for g in range(n)]
            tot = sum(c for _, c in chain)
            lo, hi = 0.0, 4000.0
            for _ in range(40):
                lev = (lo + hi) / 2
                if sum(max(0, lev - f) for f in fc) >= tot: hi = lev
                else: lo = lev
            k = 0; credit = 0.0
            for g in range(n):
                M[g]()
                for c, _ in fixed.get(g, []): c()
                credit += max(0, hi - fc[g])
                while k < len(chain) and (g == n - 1 or chain[k][1] <= credit + 2):
                    chain[k][0](); credit -= chain[k][1]; k += 1
        def put(fixed, g, items): fixed.setdefault(g, []).extend(items)
        SPL = self.o.get("spl", 26)
        ool = []
        def rarely(cmp_, body):
            lo = a.label("OOL"); lb = a.label("RET")
            I(cmp_); I(f"s_cbranch_scc1 {lo}"); a.L(lb)
            ool.append((lo, lb, body))
        def mask_ops(sb, koff):
            prs = [46, 48, 50, 52]; L = []
            if koff >= 64:
                L.append(op(f"v_subrev_u32 v{TMP+3}, 64, v{THR}")); tr = TMP + 3; koff -= 64
            elif koff < 0:
                L += [op(f"s_lshl_b32 s45, s{SG}, 6"), op(f"v_subrev_u32 v{TMP+3}, s45, v{THR}")]; tr = TMP + 3; koff = -koff - 1
            else: tr = THR
            for r0 in range(0, 16, 4):
                for r in range(r0, r0+4): L.append(op(f"v_cmp_lt_i32 s[{prs[r&3]}:{prs[r&3]+1}], v{tr}, {(r & 3) + 8*(r >> 2) + koff}"))
                for r in range(r0, r0+4): L.append(op(f"v_cndmask_b32 v{S[sb]+r}, v{S[sb]+r}, v{NINF}, s[{prs[r&3]}:{prs[r&3]+1}]"))
            return L
        def mask_body(sb, koff):
            for c, _ in mask_ops(sb, koff): c()
        def rowmax(sb, dst):
            b = S[sb]
            I(f"v_max3_f32 v{dst}, v{b}, v{b+1}, v{b+2}")
            for i in range(3, 15, 2): I(f"v_max3_f32 v{dst}, v{dst}, v{b+i}, v{b+i+1}")
            I(f"v_max_f32 v{dst}, v{dst}, v{b+15}"); I(f"v_mov_b32 v{dst+1}, v{dst}")
            I(f"v_permlane32_swap_b32 v{dst}, v{dst+1}"); I(f"v_max_f32 v{dst}, v{dst}, v{dst+1}")
        def init_max():
            rowmax(0, TMP)
            I(f"v_max_f32 v{TMP}, {f2u(-1e30)}, v{TMP}")
            for r in range(16): I(f"v_sub_f32 v{NM+r}, 0, v{TMP}")
            return [op(f"v_sub_f32 v{S[0]+r}, v{S[0]+r}, v{TMP}") for r in range(16)]
        rare = []
        def check(sb, other=True):
            def f():
                lr = a.label("RARE"); lb = a.label("BACK")
                I(f"v_cmp_nge_f32 vcc, s{STH}, v{LU}")
                if self.o.get("a_nocheck"): I("s_mov_b64 vcc, 0")
                I(f"s_cbranch_vccnz {lr}"); a.L(lb)
                I(f"v_add_f32 v{LRUN}, v{LRUN}, v{LU}")
                rare.append((lr, lb, sb, other))
            return f
        def fin_body():
            I(f"v_mov_b32 v{TMP}, v{LA}"); I(f"s_mov_b32 s{SFIN}, 2"); I("s_nop 0")
            I(f"v_permlane32_swap_b32 v{TMP}, v{LA}"); I(f"v_add_f32 v{TMP}, v{TMP}, v{LA}"); I(f"v_rcp_f32 v{TMP}, v{TMP}"); I(f"v_mov_b32 v{TMP+1}, v{TMP}")
            for q in range(8):
                for i in range(8*q, 8*q+8, 2): I(f"v_pk_mul_f32 {v(O+i,2)}, {v(O+i,2)}, {v(TMP,2)}")
                for i in range(4): I(f"v_cvt_pk_bf16_f32 v{PK+4*q+i}, v{O+8*q+2*i}, v{O+8*q+2*i+1}")
                for i in range(8*q, 8*q+8, 2): I(f"v_mov_b64 {v(O+i,2)}, 0")
        def st_body():
            I(f"s_add_u32 s44, s{SCA}, 4096"); I(f"s_mov_b32 s{SFIN}, 3")
            for q in range(8):
                I(f"buffer_store_dwordx4 {v(PK+4*q,4)}, v{VL16}, s[{RWS}:{RWS+3}], s{SCA if q < 4 else 44} offen offset:{1024*(q&3)}{self.st}")
        TR = [RING + 4*(2+i) for i in range(6)]
        def head(R, vmw, with_mfma=True, post=(), more=()):
            rf = [(f, 4) for f, h in R]; sm2 = sm_ops(0)[SPL:]
            nop = lambda: None
            def first():
                I("s_waitcnt lgkmcnt(4)"); mf_pv(1, 2, None, reg=TR[0])
            M = [first] + [lambda i=i: mf_pv(1, 2+i, None, reg=TR[i]) for i in range(1, 6)] if with_mfma else [nop]*6
            nb = self.o.get("nb", 4)
            more = list(more); m0 = len(more) // 3
            sched(M[:2], {}, sm2[:nb] + more[:m0])
            vmw(); I("s_waitcnt lgkmcnt(0)"); lg.mark_all_done(); self.barrier(); self.ring_n = 0
            fx = {0: rf[0:2], 1: rf[2:5], 2: rf[5:6], 3: rf[6:7] + [(nop, 12 + 8*len(post))]}
            sched(M[2:], fx, sm2[nb:] + more[m0:])
            check(0)()
            for p in post: p()
        def mk_reads():
            return ([rd("k", 0, i) for i in range(8)] + [rd("v", 0, i) for i in range(8)] +
                    [rd("k", 1, i) for i in range(8)] + [rd("v", 1, i) for i in range(8)])
        def mid(R, dmas, kx, mb=None, trans=False, endops=(), extra=None):
            rf = [(f, 4) for f, h in R]
            M = [lambda i=i: mf_qk(0, i, R, i, trans) for i in range(8)] + [lambda i=i: mf_pv(0, i, R, 8+i) for i in range(8)]
            fx = {}
            for g in range(16): put(fx, g, [rf[7+g]])
            D = sum((dma4(k) for k in dmas), [])
            DS = self.o.get("dstep", 2)
            spill = []
            for n, d in enumerate(D):
                g = n * DS * (2 if len(D) == 4 and not extra else 1)
                if g < 15: put(fx, g, [d])
                else: spill.append((g - 16 if g >= 16 else 0, d))
            put(fx, 15, [(lambda: None, 20)])
            if extra:
                X0 = self.o.get("x0", 8); ng = 16 - X0 + 9; per = -(-len(extra) // ng)
                put(fx, X0, [op("s_waitcnt vmcnt(4)")])
                for g in range(X0, 16): put(fx, g, extra[(g-X0)*per:(g-X0+1)*per])
                for g in range(9): spill += [(g, x) for x in extra[(16-X0+g)*per:(16-X0+g+1)*per]]
            sched(M, fx, sm_ops(1))
            check(1, other=not trans)()
            if mb: mb()
            pre = []
            if trans:
                I(f"v_mov_b32 v{LA}, v{LRUN}"); I(f"v_mov_b32 v{LRUN}, 0"); I(f"s_mov_b32 s{SFIN}, 1")
                pre = init_max()
            M = [lambda i=i: mf_qk(1, i, R, 16+i) for i in range(8)] + [lambda i=i: mf_pv(1, i, R, 24+i) for i in range(2)]
            fx = {}
            for g in range(9): put(fx, g, [rf[23+g]])
            for g, d in spill: put(fx, g, [d])
            put(fx, 8, [op(f"v_xor_b32 v{VV}, 0x10000, v{VK}")] + kx)
            for n, e in enumerate(endops): put(fx, 7 - n, [e])
            put(fx, 9, [(lambda: None, 16)])
            sched(M, fx, pre + sm_ops(0)[:SPL])
            assert [R[26+i][1]["reg"] for i in range(6)] == TR
        vm4 = lambda: I("s_waitcnt vmcnt(4)")
        vm0 = lambda: I("s_waitcnt vmcnt(0)")
        def vm08():
            lo = a.label("W8"); lb = a.label("W8R")
            I(f"s_cmp_eq_u32 s{SFIN}, 3"); I(f"s_cbranch_scc1 {lo}"); I("s_waitcnt vmcnt(%d)" % self.o.get("a_vm", 0)); a.L(lb)
            def b(): I("s_waitcnt vmcnt(8)"); I(f"s_mov_b32 s{SFIN}, 4")
            ool.append((lo, lb, b))
        m1 = lambda sb, ko: (lambda: rarely(f"s_cmp_eq_u32 s{SC1}, s{SM1}", lambda: mask_body(sb, ko)))
        fin = lambda: rarely(f"s_cmp_eq_u32 s{SFIN}, 1", fin_body)
        sta = (lambda: rarely(f"s_cmp_eq_u32 s{SFIN}, 2", st_body), 8)

        KR, VR, SH, WO, AD = 16, 23, 28, 32, 40
        def side_loads():
            L = []; E = lambda t: L.append(op(t)); V = lambda t: L.append(op(t, DC))
            E(f"v_lshrrev_b32 v{AD}, 5, v0"); E(f"v_and_b32 v{AD+1}, 31, v0"); E(f"v_lshlrev_b32 v{AD+2}, 12, v{AD}"); E(f"v_lshl_add_u32 v{AD+2}, v{AD+1}, 2, v{AD+2}")
            E(f"s_lshl_b32 s60, s{SF}, 14"); E(f"s_lshl_b32 s61, s{SW}, 7"); E("s_add_u32 s60, s60, s61"); E("s_add_u32 s61, s60, 8192")
            for j in range(8): V(f"buffer_load_dword v{WO+j}, v{AD+2}, s[{RE}:{RE+3}], s{60+(j>>2)} offen offset:{1024*(j&3)}")
            E("s_lshr_b32 s62, s2, 3"); E("s_lshl_b32 s62, s62, 16"); E(f"s_lshl_b32 s63, s{SW}, 13"); E("s_add_u32 s62, s62, s63")
            E("s_and_b32 s63, s2, 7"); E("s_lshl_b32 s63, s63, 7"); E("s_add_u32 s62, s62, s63"); E(f"v_add_u32 v{AD+3}, s62, v{AD+2}")
            for i in range(3): E(f"v_subrev_u32 v{AD+4+i}, {3072-1024*i}, v{AD+3}")
            E("s_lshl_b32 s63, s63, 2"); E(f"v_lshl_add_u32 v{AD+7}, v{AD+1}, 4, s63")
            for i in range(3): V(f"buffer_load_dword v{KR+i}, v{AD+4+i}, s[{RA}:{RA+3}], 0 offen")
            for i in range(4): V(f"buffer_load_dword v{KR+3+i}, v{AD+3}, s[{RA}:{RA+3}], 0 offen offset:{1024*i}")
            for i in range(4): V(f"buffer_load_dword v{VR+i}, v{AD+3}, s[{RC}:{RC+3}], 0 offen offset:{1024*i}")
            V(f"buffer_load_dwordx4 {v(SH,4)}, v{AD+7}, s[{RD}:{RD+3}], 0 offen")
            E(f"s_lshl_b32 s60, s{SF}, 13"); E(f"s_add_u32 s60, s60, s{SWK}"); E(f"v_and_b32 v27, 7, v0"); E("v_lshlrev_b32 v27, 7, v27")
            V(f"buffer_load_dword v1, v27, s[{RB}:{RB+3}], s60 offen")
            return L
        NSL = 21
        def side_math():
            L = []; E = lambda t: L.append(op(t)); V = lambda t: L.append(op(t, DC))
            W2 = 48
            E("s_mov_b32 s60, 0x05040100"); E("s_mov_b32 s61, 0x07060302")
            for j in range(4): E(f"v_perm_b32 v{W2+j}, v{WO+2*j+1}, v{WO+2*j}, s60")
            for j in range(4): E(f"v_perm_b32 v{W2+4+j}, v{WO+2*j+1}, v{WO+2*j}, s61")
            E(f"s_lshl_b32 s60, s{SW}, 8"); E(f"s_add_u32 s60, s60, s{SF}"); E("s_lshl_b32 s60, s60, 11"); E(f"s_add_u32 s60, s60, {WOT_OFF}")
            for mt in range(2): V(f"buffer_store_dwordx4 {v(W2+4*mt,4)}, v{VL16}, s[{RWS}:{RWS+3}], s60 offen offset:{1024*mt}{self.st}")
            KU, SU, OO, VU, PQ = 32, 42, 48, 39, 52
            for c in range(2):
                def unp(d, sreg, half): E(f"v_lshlrev_b32 v{d}, 16, v{sreg}" if half == 0 else f"v_and_b32 v{d}, 0xffff0000, v{sreg}")
                for i in range(7): unp(KU+i, KR+i, c)
                for j in range(4): unp(SU+j, SH + 2*c + (j >> 1), j & 1)
                for o in range(4):
                    E(f"v_mul_f32 v{OO+o}, v{KU+o}, v{SU+3}")
                    for j in (2, 1, 0): E(f"v_fmac_f32 v{OO+o}, v{KU+o+3-j}, v{SU+j}")
                    unp(VU, VR+o, c)
                    E(f"v_mul_f32 v{OO+o}, v{OO+o}, v{VU}")
                d = PQ + 2*(1-c)
                E(f"v_cvt_pk_bf16_f32 v{d}, v{OO+3}, v{OO+2}"); E(f"v_cvt_pk_bf16_f32 v{d+1}, v{OO+1}, v{OO}")
            E(f"v_lshlrev_b32 v{AD+1}, 5, v{AD+1}"); E(f"v_lshl_add_u32 v{AD+1}, v{AD}, 4, v{AD+1}")
            E(f"v_permlane32_swap_b32 v{PQ+2}, v{PQ}"); E(f"v_permlane32_swap_b32 v{PQ+3}, v{PQ+1}")
            E("s_lshr_b32 s60, s2, 3"); E("s_lshl_b32 s60, s60, 16"); E(f"s_lshl_b32 s61, s{SW}, 13"); E("s_add_u32 s60, s60, s61")
            E("s_and_b32 s61, s2, 7"); E("s_lshl_b32 s61, s61, 10"); E("s_add_u32 s60, s60, s61"); E(f"s_add_u32 s60, s60, {KVT_OFF}")
            V(f"buffer_store_dwordx4 {v(PQ,4)}, v{AD+1}, s[{RWS}:{RWS+3}], s60 offen{self.st}")
            return L
        def spub_body():
            l1 = a.label("SM"); l2 = a.label("SP")
            I("s_add_u32 s41, s41, 1"); I(f"s_add_u32 s44, s41, s{SG}"); I("s_cmp_lg_u32 s44, 2"); I(f"s_cbranch_scc1 {l1}")
            for c, _ in side_math(): c()
            a.L(l1)
            I("s_cmp_lg_u32 s41, 4"); I(f"s_cbranch_scc1 {l2}")
            I(f"s_lshl_b32 s44, s{SF}, 2"); I(f"s_add_u32 s44, s44, {FY_OFF}")
            sv = self.save(); self.publish(44, 2); self.restore(sv)
            a.L(l2)
        spub = lambda: rarely("s_cmp_lt_u32 s41, 4", spub_body)
        def snap():
            I(f"s_mov_b32 s61, {FY_OFF}"); I(f"buffer_load_dwordx4 v[52:55], v{VL16}, s[{RWS}:{RWS+3}], s61 offen sc1")
        def side_check():
            lo = a.label("SCK"); lb = a.label("SCR")
            def test():
                I("v_and_b32 v52, v52, v53"); I("v_and_b32 v54, v54, v55"); I("v_and_b32 v52, v52, v54"); I("v_and_b32 v52, 2, v52"); I("v_cmp_ne_u32 vcc, 2, v52")
            test(); I(f"s_cbranch_vccnz {lo}"); a.L(lb)
            def spin():
                lp = a.label("SPL")
                I("s_mov_b32 s99, 20000"); a.L(lp)
                I("s_sleep 2"); I(f"buffer_load_dwordx4 v[52:55], v{VL16}, s[{RWS}:{RWS+3}], s61 offen sc1"); I("s_waitcnt vmcnt(0)")
                test(); I(f"s_cbranch_vccz {lb}")
                I("s_sub_u32 s99, s99, 1"); I("s_cmp_lg_u32 s99, 0"); I(f"s_cbranch_scc1 {lp}")
            ool.append((lo, lb, spin))
        m2 = lambda sb, ko: (lambda: rarely(f"s_cmp_eq_u32 s{SC2}, 0", lambda: (snap(), mask_body(sb, ko))))
        LEV = a.label("EVEN"); LODM = a.label("ODDM"); LTRANS = a.label("TRANS"); LP2 = a.label("P2"); LP2B = a.label("P2B"); LDRAIN = a.label("DRAIN")
        self.stamp(8)
        self.ring_n = 0
        R = [rd("k", 0, i) for i in range(8)] + [rd("k", 1, i) for i in range(8)]
        for i in range(7):
            I(f"ds_read_b128 {v(QF+4*i,4)}, v{TMP+1} offset:{1024*i}"); lg.issue()
            R[i][0]()
        def q7():
            I(f"ds_read_b128 {v(QF+28,4)}, v{TMP+1} offset:{1024*7}"); lg.issue()
        D = dma4("v") + dma4("k")
        sched([lambda i=i: mf_qk(0, i, R, i, True) for i in range(8)], {g: ([(q7, 4)] if g == 0 else []) + [(R[7+g][0], 4), D[g]] for g in range(8)}, [])
        m1(0, 0)()
        pre = init_max()
        I(f"v_mov_b32 v{LRUN}, 0")
        fx = {}
        put(fx, 0, [(R[15][0], 4)]); put(fx, 4, [op(f"v_xor_b32 v{VV}, 0x10000, v{VK}"), op(f"v_xor_b32 v{VK}, 0x4000, v{VK}")])
        SLd = side_loads(); n8 = (len(SLd) + 7) // 8
        for g in range(8): put(fx, g, SLd[g*n8:(g+1)*n8])
        sched([lambda i=i: mf_qk(1, i, R, 8+i) for i in range(8)], fx, pre + sm_ops(0)[:SPL])
        R = mk_reads()
        head(R, lambda: I(f"s_waitcnt vmcnt({4+NSL})"), False, post=[m1(1, 32)])
        svm = self.save()
        I(f"s_branch {LODM}")
        a.L(LEV)
        R = mk_reads(); head(R, vm4)
        mid(R, "k", [op(f"v_xor_b32 v{VK}, 0x4000, v{VK}")], mb=m1(0, 0))
        R = mk_reads(); head(R, vm4, post=[m1(1, 32), spub])
        assert self.lg.issued - self.lg.done == svm[2] - svm[3]
        a.L(LODM)
        mid(R, "v", [op(f"v_xor_b32 v{VK}, 0xc000, v{VK}")], mb=m1(0, 64), endops=[op(f"s_sub_u32 s{SC1}, s{SC1}, 1")])
        I(f"s_cmp_lg_u32 s{SC1}, -1"); I(f"s_cbranch_scc1 {LEV}")
        I(f"s_cmp_eq_u32 s{SG}, 1"); I(f"s_cbranch_scc1 {LTRANS}")
        svt = self.save()
        R = mk_reads(); head(R, vm4)
        mid(R, "k", [op(f"v_xor_b32 v{VK}, 0x8000, v{VK}")], mb=m2(0, -1))
        a.L(LP2B)
        I(f"s_cmp_eq_u32 s{SC2}, 0"); I(f"s_cbranch_scc1 {LDRAIN}")
        a.L(LP2)
        R = mk_reads(); head(R, vm08, post=[spub, fin, lambda: I(f"s_sub_u32 s{SC2}, s{SC2}, 1")])
        mid(R, "kv", [op(f"v_xor_b32 v{VK}, 0x8000, v{VK}")], mb=m2(0, -1), endops=[sta])
        I(f"s_cmp_lg_u32 s{SC2}, 0"); I(f"s_cbranch_scc1 {LP2}")
        a.L(LDRAIN)
        self.stamp(10)
        R2 = [rd("v", 0, i) for i in range(8)] + [rd("v", 1, i) for i in range(8)]
        rf = [(f, 4) for f, h in R2]
        ts, ts2, ts3 = self.tail_setup()
        tsa = [x for x in ts if x[1] == 4]; tsl = [x for x in ts if x[1] != 4]
        for c, _ in tsa[:11]: c()
        head(R2, lambda: (vm08(), side_check(), [c() for c, _ in tsl]), post=[fin, sta[0]], more=mask_ops(1, -33))
        ts = tsa[11:]
        pre = []; E_ = lambda t: pre.append(op(t))
        E_(f"s_lshl_b32 s44, s{SW}, 9"); E_(f"s_add_u32 s44, s44, {ML}"); E_(f"v_lshrrev_b32 v54, 1, v{VL16}"); E_(f"v_add_u32 v54, s44, v54")
        E_(f"s_lshl_b32 s46, s{SW}, 13"); E_(f"v_add_u32 v55, s46, v{VL16}")
        E_(f"s_sub_u32 s54, 15, s{SIDX}"); E_(f"s_lshl_b32 s54, s54, 2"); E_(f"s_add_u32 s54, s54, s{SR}"); E_("s_lshl_b32 s54, s54, 5"); E_(f"s_add_u32 s54, s54, s{SHEAD}")
        E_("s_lshl_b32 s54, s54, 13"); E_(f"s_lshl_b32 s44, s{SG}, 12"); E_("s_add_u32 s54, s54, s44"); E_(f"s_add_u32 s54, s54, {CTX_OFF}")
        def lsum():
            L = [op(f"v_mov_b32 v{TMP}, v{LRUN}"), op("s_nop 0"), op(f"v_permlane32_swap_b32 v{TMP}, v{LRUN}"), op(f"v_add_f32 v{NM+1}, v{TMP}, v{LRUN}")]
            def wml():
                I(f"ds_write_b64 v54, {v(NM,2)}"); lg.issue()
            return L + [(wml, 4)]
        def osend(g, i):
            def f():
                I(f"ds_write_b128 v55, {v(O+32*(1-g)+4*i,4)} offset:{1024*i}"); lg.issue()
            return (f, 16)
        lj = a.label("MGJ"); LM = [a.label("MG0"), a.label("MG1")]; LFB = [a.label("FB0"), a.label("FB1")]; LSK = a.label("SKIP"); LS1 = a.label("SK1")
        I(f"s_lshl_b32 s45, s{SG}, 1"); I(f"s_sub_u32 s45, s{SR}, s45"); I("s_cmp_lt_i32 s45, 1"); I(f"s_cbranch_scc1 {LSK}")
        svd = self.save(); rnd = self.ring_n
        setup = ts + pre + ts3; n8 = (len(setup) + 7) // 8
        fx = {g: [rf[7+g]] + setup[g*n8:(g+1)*n8] for g in range(8)}
        sched([lambda i=i: mf_pv(0, i, R2, i) for i in range(8)], fx, sm_ops(1))
        check(1)()
        rf[15][0]()
        I(f"s_cmp_eq_u32 s{SG}, 1"); I(f"s_cbranch_scc1 {LFB[1]}")
        sv2 = self.save(); PR = 64
        for g in (0, 1):
            if g: a.L(LFB[1]); self.restore(sv2)
            own = O + 32*g; snd = O + 32*(1-g)
            sd = [2*(1-g), 2*(1-g)+1]; od = [2*g, 2*g+1]
            order = [sd[0], sd[1], 4+sd[0], 4+sd[1], od[0], od[1], 4+od[0], 4+od[1]]
            def mfb(idx):
                lg.wait(R2[8+idx][1]["tok"]); mf_pv(1, idx, None, reg=R2[8+idx][1]["reg"])
            fx = {5: [osend(g, 0), osend(g, 1)], 6: [osend(g, i) for i in (2, 3, 4)], 7: [osend(g, i) for i in (5, 6, 7)]}
            sched([lambda i=i: mfb(i) for i in order], fx, lsum() + self.tail_valu())
            a.L(LM[g])
            I(f"v_xor_b32 v54, 0xe00, v54"); I(f"v_xor_b32 v55, 0xe000, v55")
            I("s_waitcnt lgkmcnt(0)"); lg.mark_all_done(); self.barrier()
            I(f"ds_read_b64 {v(96,2)}, v54"); t0 = lg.issue()
            tk = []
            for i in range(8):
                I(f"ds_read_b128 {v(PR+4*i,4)}, v55 offset:{1024*i}"); tk.append(lg.issue())
            lg.wait(t0)
            I(f"v_min_f32 v98, v{NM}, v96"); I(f"v_sub_f32 v99, v98, v{NM}"); I(f"v_sub_f32 v100, v98, v96")
            I("v_exp_f32 v99, v99"); I("v_exp_f32 v100, v100")
            I(f"v_mul_f32 v101, v99, v{NM+1}"); I("v_fmac_f32 v101, v100, v97"); I("v_rcp_f32 v101, v101")
            I("v_mul_f32 v102, v99, v101"); I("v_mul_f32 v103, v99, v101"); I("v_mul_f32 v104, v100, v101"); I("v_mul_f32 v105, v100, v101")
            tw = self.tail_writes()
            for q in range(4):
                for i in range(8*q, 8*q+8, 2): I(f"v_pk_mul_f32 {v(own+i,2)}, {v(own+i,2)}, v[102:103]")
                lg.wait(tk[2*q+1])
                for c in tw[3*q:3*q+3]: c()
                for i in range(8*q, 8*q+8, 2): I(f"v_pk_fma_f32 {v(own+i,2)}, {v(PR+i,2)}, v[104:105], {v(own+i,2)}")
                for i in range(4): I(f"v_cvt_pk_bf16_f32 v{snd+4*q+i}, v{own+8*q+2*i}, v{own+8*q+2*i+1}")
                I(f"buffer_store_dwordx4 {v(snd+4*q,4)}, v{VL16}, s[{RWS}:{RWS+3}], s54 offen offset:{1024*q}{self.st}"); self.tctx = vm.issue()
            if not g: I(f"s_branch {lj}")
        def skip_path():
            keep = self.save(); tctx = self.tctx; th = self.th
            a.L(LSK); self.restore(svd); self.ring_n = rnd
            I("s_cmp_lt_i32 s45, 0"); I(f"s_cbranch_scc1 {LS1}")
            rf[7][0]()
            for i in range(8): mf_pv(0, i, R2[:8], i)
            a.L(LS1)
            for c, _ in setup + lsum() + self.tail_valu(): c()
            l1 = a.label("SG1"); I(f"s_cmp_eq_u32 s{SG}, 1"); I(f"s_cbranch_scc1 {l1}")
            for g in (0, 1):
                if g: a.L(l1)
                for i in range(8): osend(g, i)[0]()
                I(f"s_branch {LM[g]}")
            self.restore(keep); self.tctx = tctx; self.th = th
        a.L(lj)
        I("s_setprio 0")
        self.stamp(4)
        def cold():
            a.L(LTRANS)
            self.restore(svt)
            loadq(VQ); I("s_waitcnt lgkmcnt(0)")
            I(f"v_xor_b32 v{VK}, 0x4000, v{VK}")
            R = mk_reads(); head(R, vm4, more=mask_ops(1, 96))
            mid(R, "k", [op(f"v_xor_b32 v{VK}, 0x8000, v{VK}")], mb=m2(0, -1), trans=True)
            I(f"s_branch {LP2B}")
            skip_path()
            for (lo, lb, body) in ool:
                a.L(lo); body(); I(f"s_branch {lb}")
            for (lr, lb, sb, other) in rare:
                a.L(lr)
                I("s_nop 15")
                rowmax(sb, TMP)
                I(f"v_max_f32 v{TMP}, 0, v{TMP}"); I(f"v_exp_f32 v{TMP+1}, -v{TMP}")
                for r in range(16): I(f"v_sub_f32 v{NM+r}, v{NM+r}, v{TMP}")
                for r in range(16): I(f"v_sub_f32 v{S[sb]+r}, v{S[sb]+r}, v{TMP}")
                if other:
                    for r in range(16): I(f"v_sub_f32 v{S[1-sb]+r}, v{S[1-sb]+r}, v{TMP}")
                for r in range(64): I(f"v_mul_f32 v{O+r}, v{O+r}, v{TMP+1}")
                I(f"v_mul_f32 v{LRUN}, v{LRUN}, v{TMP+1}")
                for c, _ in sm_ops(sb): c()
                I("s_nop 1"); I(f"s_branch {lb}")
        self.attn_rare = cold

    HB = 65536; HC = 4416; XB = 136192; YB = 148480
    SC, SJ, SB, SCH, SHB_, SWO, SCX = 34, 35, 36, 37, 38, 39, 40
    WS_ = [16, 24, 32, 40, 176, 184, 56, 80, 88, 96, 104, 144, 152, 160]
    CS_ = [168, 112, 120, 128, 136, 64, 72]
    NL = 4
    def tail_setup(self):
        I = self.I; L = []; E = lambda t: L.append((lambda: I(t), 4))
        SC, SJ, SB, SCH, SHB_, SWO, SCX = self.SC, self.SJ, self.SB, self.SCH, self.SHB_, self.SWO, self.SCX
        self.wtok = {}; self.wslot = dict(enumerate(self.WS_))
        E(f"s_lshr_b32 s{SC}, s{SW}, 2"); E(f"s_and_b32 s{SJ}, s{SW}, 3")
        E(f"s_lshl_b32 s{SCH}, s{SF}, 1"); E(f"s_add_u32 s{SCH}, s{SCH}, s{SC}"); E(f"s_lshl_b32 s{SCH}, s{SCH}, 12")
        E(f"s_lshl_b32 s60, s{SJ}, 10"); E("v_add_u32 v50, s60, v6"); E("v_subrev_u32 v51, 16, v50")
        E(f"s_lshr_b32 s60, s{SCH}, 8"); E(f"s_add_u32 s60, s60, {KVT_OFF}"); E("v_lshlrev_b32 v49, 9, v50")
        def ld(t):
            def f(): I(t); self.th = self.vm.issue()
            L.append((f, 16))
        ld(f"buffer_load_dwordx4 {v(160,4)}, v51, s[{RB}:{RB+3}], s{SCH} offen")
        ld(f"buffer_load_dwordx4 {v(164,4)}, v50, s[{RB}:{RB+3}], s{SCH} offen")
        ld(f"buffer_load_dwordx4 {v(168,4)}, v49, s[{RWS}:{RWS+3}], s60 offen{self.ld}")
        E(f"s_lshl_b32 s{SWO}, s57, 19"); E(f"s_lshl_b32 s60, s{SW}, 16"); E(f"s_add_u32 s{SWO}, s{SWO}, s60"); E(f"s_add_u32 s{SWO}, s{SWO}, {WOT_OFF}")
        L2 = [(lambda i=i: self.wload(i), 36) for i in range(self.o.get("we", 0))]
        L3 = []; L, Lx = L3, L
        E = lambda t: L3.append((lambda: I(t), 4))
        E(f"s_mul_i32 s{SB}, s{SC}, 6144"); E(f"s_add_u32 s{SB}, s{SB}, {self.XB}")
        E(f"s_mul_i32 s{SHB_}, s{SC}, {8*self.HC}"); E(f"s_add_u32 s{SHB_}, s{SHB_}, {self.HB}")
        E(f"s_lshl_b32 s{SCX}, s56, 19"); E(f"s_lshl_b32 s60, s{SW}, 15"); E(f"s_add_u32 s{SCX}, s{SCX}, s60"); E(f"s_add_u32 s{SCX}, s{SCX}, {CTX_OFF}")
        return Lx, L2, L3
    def wreg(self, i):
        return self.WS_[i % len(self.WS_)]
    def wload(self, i):
        I = self.I; r = self.wslot[i]
        I(f"s_add_u32 s61, s{self.SWO}, {i*2048}")
        for mt in range(2):
            I(f"buffer_load_dwordx4 {v(r+4*mt,4)}, v6, s[{RWS}:{RWS+3}], s61 offen offset:{mt*1024}{self.ld}"); self.wtok[i] = self.vm.issue()
    def tail_valu(self):
        I = self.I; HC = self.HC; L = []; E = lambda t: L.append((lambda: I(t), 4))
        SJ, SB, SHB_ = self.SJ, self.SB, self.SHB_
        Ee, Eo, Oe, Oo = 160, 113, 122, 131
        E(f"s_add_u32 s60, s{SHB_}, 64"); E("v_add_u32 v138, s60, v50")
        E("v_and_b32 v51, 3, v0"); E("v_mul_u32_u24 v139, 1536, v51"); E("v_lshrrev_b32 v53, 6, v50"); E("v_lshl_add_u32 v139, v53, 4, v139")
        E(f"s_add_u32 s60, s{SB}, 512"); E("v_add_u32 v139, s60, v139")
        for r in range(2): E(f"v_mov_b64 {v(172+2*r,2)}, 0")
        E("v_bfe_u32 v140, v0, 2, 3"); E(f"v_mul_u32_u24 v140, {HC}, v140"); E("v_lshl_add_u32 v140, v51, 4, v140"); E(f"v_add_u32 v140, s{SHB_}, v140")
        E(f"s_mul_i32 s60, s{SJ}, 1536"); E(f"s_add_u32 s60, s60, s{SB}"); E("v_lshl_add_u32 v141, v0, 3, s60")
        E("s_waitcnt vmcnt(1)")
        for k in range(7): E(f"v_alignbit_b32 v{Oe+k}, v{Ee+k+1}, v{Ee+k}, 16")
        for k in range(1, 7): E(f"v_alignbit_b32 v{Oo+k}, v{Ee+k+1}, v{Ee+k}, 16")
        for k in range(1, 7): E(f"v_mov_b32 v{Eo+k}, v{Ee+k}")
        return L
    def tail_writes(self):
        I = self.I; lg = self.lg; HC = self.HC; L = []
        Ee, Eo, Oe, Oo = 160, 113, 122, 131
        def W(t, pre=None):
            def f():
                if pre: pre()
                I(t); lg.issue()
            L.append(f)
        for r in range(8):
            sft = 1 + r; k = sft >> 1
            base = ((Oe, Oo) if sft & 1 else (Ee, Eo))[k & 1]
            W(f"ds_write_b128 v138, {v(base+k,4)} offset:{r*HC}")
        W(f"ds_write_b128 v140, {v(172,4)}"); W(f"ds_write_b64 v141, {v(172,2)}")
        W(f"ds_write_b128 v139, {v(168,4)}", lambda: self.vm.wait(self.th))
        return L
    def tailp(self):
        a = self.a; I = self.I; vm = self.vm; lg = self.lg
        HB, HC, YB = self.HB, self.HC, self.YB
        SC, SJ, SB, SCH, SHB_, SWO, SCX = self.SC, self.SJ, self.SB, self.SCH, self.SHB_, self.SWO, self.SCX
        ACC = 192; FRS = [224, 240, 64]; RD_ = 224
        VL16, VA, VB, T, VP, VPA, VO, GR, VLW, XR = 6, 4, 5, 12, 7, 8, 9, 10, 11, 48
        OACC = 192
        NW, NCX, NL = len(self.WS_), len(self.CS_), self.o.get("nl", 0)
        wtok = self.wtok; ctok = {}; wslot = self.wslot; cslot = dict(enumerate(self.CS_))
        I(f"s_lshr_b32 s53, s56, 1"); I("s_lshl_b32 s53, s53, 10"); I(f"s_lshl_b32 s44, s{SW}, 7"); I("s_add_u32 s53, s53, s44"); I(f"s_add_u32 s53, s53, {FC_OFF}")
        I(f"v_and_b32 v{VPA}, 3, v0"); I(f"v_lshlrev_b32 v{VPA}, 2, v{VPA}")
        P0 = self.o.get("p0", 0)
        tc0 = self.poll_issue(VP, VPA, "s53") if P0 else self.tctx
        PUBN = self.o.get("pubn", 1)
        I(f"s_lshr_b32 s45, s{SHEAD}, 2"); I("s_lshl_b32 s45, s45, 7"); I(f"s_and_b32 s44, s{SHEAD}, 3"); I("s_lshl_b32 s44, s44, 2"); I("s_add_u32 s45, s45, s44")
        I(f"s_sub_u32 s44, 15, s{SIDX}"); I("s_lshl_b32 s44, s44, 10"); I("s_add_u32 s46, s44, s45"); I(f"s_add_u32 s46, s46, {FC_OFF}")
        I(f"s_lshl_b32 s44, s{SIDX}, 10"); I("s_add_u32 s47, s44, s45"); I(f"s_add_u32 s47, s47, {FC_OFF}")
        self.srd(RC, "out", 2*MB); self.srd(RD, "q", 2*MB)
        I(f"s_lshl_b32 s44, s{SF}, 2"); I(f"s_load_dword s55, s[{P['ssmD']}:{P['ssmD']+1}], s44")
        I(f"v_and_b32 v{T}, 31, v0"); I(f"v_lshrrev_b32 v{T+1}, 5, v0")
        I(f"v_and_b32 v{T+2}, 7, v0"); I(f"v_mul_u32_u24 v{VA}, {HC}, v{T+2}")
        I(f"v_bfe_u32 v{T+2}, v0, 3, 2"); I(f"v_sub_u32 v{T+2}, v{T+2}, v{T+1}"); I(f"v_lshl_add_u32 v{VA}, v{T+2}, 4, v{VA}")
        I(f"s_lshl_b32 s43, s{SJ}, 9"); I(f"s_add_u32 s43, s43, s{SHB_}"); I("s_add_u32 s43, s43, 32"); I(f"v_add_u32 v{VA}, s43, v{VA}")
        I(f"s_lshl_b32 s43, s{SJ}, 7"); I(f"s_sub_u32 s43, s{SB}, s43"); I("s_add_u32 s43, s43, 400")
        I(f"v_lshl_add_u32 v{VB}, v{T}, 4, s43"); I(f"v_mul_u32_u24 v{T+2}, 1536, v{T+1}"); I(f"v_add_u32 v{VB}, v{VB}, v{T+2}")
        I(f"s_lshl_b32 s51, s{SW}, 13"); I(f"v_add_u32 v{VLW}, s51, v{VL16}")
        I("s_waitcnt lgkmcnt(0)"); lg.mark_all_done(); self.barrier()
        self.stamp(5)
        def cload(i):
            r = cslot[i]
            I(f"s_add_u32 s62, s{SCX}, {(i//4)*4096}"); I("s_add_u32 s63, s62, 0x40000")
            for st in range(2):
                I(f"buffer_load_dwordx4 {v(r+4*st,4)}, v{VL16}, s[{RWS}:{RWS+3}], s{62+st} offen offset:{(i%4)*1024}{self.ld}"); ctok[i] = vm.issue()
        ltok = {}
        def lstage(j):
            I(f"s_add_u32 m0, s51, {j*2048}"); I(f"s_add_u32 s61, s{SWO}, {(NW+j)*2048}")
            for mt in range(2):
                I(f"buffer_load_dwordx4 v{VL16}, s[{RWS}:{RWS+3}], s61 offen offset:{mt*1024}{self.ld} lds"); ltok[j] = vm.issue()
        def early(lo, hi, level):
            le = a.label("NE")
            I(f"s_cmp_lg_u32 s50, {level}"); I(f"s_cbranch_scc1 {le}")
            sv = self.save()
            for i in range(lo, hi): cload(i)
            self.restore(sv); I(f"s_mov_b32 s50, {level+1}")
            a.L(le)
        def seen():
            I(f"v_and_b32 v{VP}, 1, v{VP}"); I(f"v_cmp_ne_u32 vcc, 1, v{VP}"); I("s_cmp_eq_u64 vcc, 0"); I("s_cselect_b32 s52, 1, 0"); I("s_max_u32 s50, s50, s52")
        I("s_mov_b32 s50, 0")
        wl = [lambda i=i: self.wload(i) for i in range(NW) if i not in wtok] + [lambda j=j: lstage(j) for j in range(NL)]
        steps = [(dd, ks) for dd in range(8) for ks in range(2)]
        toks = {}
        def reads(n):
            dd, ks = steps[n]; b = FRS[n % 3]
            def r(k, reg, addr, off):
                def f():
                    I(f"ds_read_b128 {v(reg,4)}, v{addr} offset:{off}"); toks[(n, k)] = lg.issue()
                return f
            return [r(0, b, VA, 64*dd + 32*(1-ks)), r(1, b+4, VB, ks*3072 + (7-dd)*16),
                    r(2, b+8, VB, ks*3072 + (7-dd)*16 + 512), r(3, b+12, VA, 64*dd + 32*(1-ks) + 2048)]
        for n in range(2):
            for f in reads(n): f()
        for n in range(16):
            b = FRS[n % 3]; L = reads(n+2) if n + 2 < 16 else []
            c0 = "0" if n == 0 else v(ACC,16); c1 = "0" if n == 0 else v(ACC+16,16)
            lg.wait(toks[(n,1)]); I(f"{MFMA} {v(ACC,16)}, {v(b,4)}, {v(b+4,4)}, {c0}")
            for f in L[0:2]: f()
            lg.wait(toks[(n,2)]); I(f"{MFMA} {v(ACC+16,16)}, {v(b,4)}, {v(b+8,4)}, {c1}")
            for f in L[2:3]: f()
            lg.wait(toks[(n,3)]); I(f"{MFMA} {v(ACC+16,16)}, {v(b+12,4)}, {v(b+4,4)}, {v(ACC+16,16)}")
            for f in L[3:4]: f()
            if n == PUBN:
                vm.wait(tc0); self.barrier(); self.publish(46); self.publish(47)
                if P0: seen()
            if n >= PUBN and n < 14:
                for _ in range(-(-len(wl) // (14 - n))): wl.pop(0)()
            if n == self.o.get("p1", 12): tc1 = self.poll_issue(VP, VPA, "s53")
            if n == 14 and P0: early(0, NCX - 2, 1)
        assert not wl
        I(f"s_add_u32 s43, s51, {HB}"); I(f"v_add_u32 v{T+2}, s43, v{VL16}")
        self.barrier()
        for i in range(8):
            I(f"ds_write_b128 v{T+2}, {v(ACC+4*i,4)} offset:{1024*i}"); lg.issue()
        I(f"s_lshl_b32 s43, s{SC}, 15"); I(f"s_lshl_b32 s44, s{SJ}, 11"); I("s_add_u32 s43, s43, s44"); I(f"s_add_u32 s43, s43, {HB}"); I(f"v_add_u32 v{T+2}, s43, v{VL16}")
        I(f"s_and_b32 s43, s{SJ}, 1"); I("s_mul_i32 s44, s43, 3072"); I(f"s_lshr_b32 s45, s{SJ}, 1"); I("s_lshl_b32 s41, s45, 9")
        I("s_add_u32 s44, s44, s41"); I(f"s_add_u32 s44, s44, s{SB}"); I("s_add_u32 s44, s44, 520")
        I(f"v_lshl_add_u32 v{T+3}, v{T}, 4, s44"); I(f"v_lshlrev_b32 v{VA}, 3, v{T+1}"); I(f"v_sub_u32 v{T+3}, v{T+3}, v{VA}")
        I(f"v_lshlrev_b32 v{VB}, 6, v{T}"); I(f"v_lshl_add_u32 v{VB}, v{T+1}, 4, v{VB}")
        I("s_lshl_b32 s45, s45, 11"); I("s_lshl_b32 s43, s43, 5"); I("s_add_u32 s45, s45, s43"); I(f"s_lshl_b32 s43, s{SC}, 12"); I("s_add_u32 s45, s45, s43")
        I(f"s_add_u32 s45, s45, {YB}"); I(f"v_add_u32 v{VB}, s45, v{VB}")
        I("s_lshl_b32 s43, s55, 16"); I("s_and_b32 s44, s55, 0xffff0000"); I(f"s_cmp_eq_u32 s{SC}, 0"); I("s_cselect_b32 s55, s43, s44")
        lg.wait(lg.issued); self.barrier()
        self.stamp(12)
        for p in range(4):
            for gq in range(2):
                I(f"ds_read_b128 {v(RD_+8*p+4*gq,4)}, v{T+2} offset:{8192*p+1024*gq}"); lg.issue()
        for gq in range(2):
            I(f"ds_read_b64 {v(ACC+2*gq,2)}, v{T+3} offset:{1536*gq}"); lg.issue()
        lk = a.label("SK"); I("s_cmp_lg_u32 s50, 0"); I(f"s_cbranch_scc1 {lk}")
        sv = self.save(); vm.wait(tc1); seen(); self.restore(sv); early(0, NCX - 2, 1)
        a.L(lk)
        early(NCX - 2, NCX, 2)
        lg.wait(lg.issued)
        for i in range(0, 8, 2):
            I(f"v_pk_add_f32 {v(RD_+i,2)}, {v(RD_+i,2)}, {v(RD_+8+i,2)}"); I(f"v_pk_add_f32 {v(RD_+16+i,2)}, {v(RD_+16+i,2)}, {v(RD_+24+i,2)}")
        for i in range(0, 8, 2): I(f"v_pk_add_f32 {v(RD_+i,2)}, {v(RD_+i,2)}, {v(RD_+16+i,2)}")
        for gq in range(2):
            for r in range(4):
                srcr = ACC + 2*gq + (1 - (r >> 1))
                I(f"v_lshlrev_b32 v{ACC+8}, 16, v{srcr}" if r & 1 else f"v_and_b32 v{ACC+8}, 0xffff0000, v{srcr}")
                I(f"v_fma_f32 v{RD_+4*gq+r}, v{ACC+8}, s55, v{RD_+4*gq+r}")
        for i in range(4): I(f"v_cvt_pk_bf16_f32 v{ACC+12+i}, v{RD_+2*i}, v{RD_+2*i+1}")
        I(f"v_permlane32_swap_b32 v{ACC+12}, v{ACC+14}"); I(f"v_permlane32_swap_b32 v{ACC+13}, v{ACC+15}")
        I(f"ds_write_b128 v{VB}, {v(ACC+12,4)}"); lg.issue()
        lg.wait(lg.issued); self.barrier()
        ly = a.label("NY")
        I(f"s_cmp_lg_u32 s{SW}, 0"); I(f"s_cbranch_scc1 {ly}")
        I(f"v_add_u32 v{T}, {YB}, v{VL16}")
        for i in range(8): I(f"ds_read_b128 {v(RD_+4*i,4)}, v{T} offset:{1024*i}")
        I(f"s_lshl_b32 s44, s{SF}, 13"); I(f"s_add_u32 s44, s44, {YT_OFF}"); I("s_add_u32 s45, s44, 4096")
        I("s_waitcnt lgkmcnt(0)")
        for i in range(8): I(f"buffer_store_dwordx4 {v(RD_+4*i,4)}, v{VL16}, s[{RWS}:{RWS+3}], s{44+(i>>2)} offen offset:{1024*(i&3)}{self.st}")
        a.L(ly)
        ll = a.label("NL")
        I("s_cmp_eq_u32 s50, 3"); I(f"s_cbranch_scc1 {ll}")
        self.poll_check(VP, VPA, "s53", 1)
        for i in range(NCX): cload(i)
        a.L(ll)
        self.stamp(6)
        YT = self.XB
        lrd = {}; ypub = False; ymark = vm.issued; free = []; fresh = []; nw = NW; nw2 = NW + NL; nc = NCX
        for i in range(32):
            if i % 4 == 0 and self.o.get("ostamp"): self.stamp(17 + i // 4)
            if i == 14:
                I(f"s_lshl_b32 s53, s57, 7"); I(f"s_lshl_b32 s42, s{SW}, 4"); I("s_add_u32 s53, s53, s42"); I(f"s_add_u32 s53, s53, {FY_OFF}")
                tf = self.poll_issue(VP, VPA, "s53")
            if i == 24:
                vm.wait(tf); self.poll_check(VP, VPA, "s53", 1)
                I(f"v_lshrrev_b32 v{T}, 3, v0"); I(f"v_and_b32 v{T+1}, 7, v0"); I(f"v_lshlrev_b32 v{T+1}, 4, v{T+1}")
                I(f"v_lshl_add_u32 v{T}, v{T}, 12, v{T+1}")
                I(f"s_add_u32 m0, s{SWK}, {YT}")
                I(f"s_lshl_b32 s44, s57, 18"); I(f"s_lshl_b32 s45, s{SW}, 15"); I("s_add_u32 s44, s44, s45")
                I(f"s_lshl_b32 s45, s56, 7"); I("s_add_u32 s44, s44, s45"); I(f"s_add_u32 s44, s44, {YT_OFF}")
                I(f"buffer_load_dwordx4 v{T}, s[{RWS}:{RWS+3}], s44 offen{self.ld} lds"); vm.issue()
                I(f"v_and_b32 v{T+1}, 15, v0"); I(f"s_lshr_b32 s48, s{SW}, 1"); I("s_lshl_b32 s48, s48, 4")
                I(f"s_lshl_b32 s45, s56, 6"); I("s_add_u32 s45, s45, s48"); I(f"v_add_u32 v{T+1}, s45, v{T+1}")
                I(f"v_lshlrev_b32 v{T+2}, 2, v{T+1}"); I(f"s_mov_b32 s45, {G_OFF}")
                I(f"buffer_load_dword v{GR}, v{T+2}, s[{RWS}:{RWS+3}], s45 offen{self.ld}"); vm.issue()
                I(f"v_lshrrev_b32 v{T+2}, 4, v0"); I(f"v_lshlrev_b32 v{T+2}, 4, v{T+2}"); I(f"v_lshl_add_u32 v{VO}, v{T+1}, 10, v{T+2}")
                I(f"s_and_b32 s49, s{SW}, 1"); I("s_lshl_b32 s49, s49, 6"); I(f"s_lshl_b32 s45, s57, 7"); I("s_add_u32 s49, s49, s45")
                I(f"buffer_load_dwordx4 {v(XR,4)}, v{VO}, s[{RD}:{RD+3}], s49 offen"); vm.issue()
            vm.wait(max(ctok[i], wtok.get(i, 0)))
            if i in lrd: lg.wait(lrd[i])
            if not ypub and vm.done > ymark:
                ypub = True
                I(f"s_lshl_b32 s44, s{SF}, 2"); I(f"s_add_u32 s44, s44, {FY_OFF}"); self.publish(44, 3)
            for mt in range(2):
                for st in range(2):
                    d = v(OACC + 16*(2*mt+st), 16)
                    I(f"{MFMA} {d}, {v(wslot[i]+4*mt,4)}, {v(cslot[i]+4*st,4)}, {'0' if i == 0 else d}")
            lagged, fresh = fresh, [wslot[i], cslot[i]]
            free += fresh
            while free:
                if nw < NW + NL and nw - i <= 3:
                    j = nw - NW; assert vm.done >= ltok[j]
                    r = free.pop(0); wslot[nw] = r
                    I("s_nop 3")
                    for mt in range(2):
                        I(f"ds_read_b128 {v(r+4*mt,4)}, v{VLW} offset:{j*2048+mt*1024}"); lrd[nw] = lg.issue()
                    nw += 1
                elif nc < 32 and (nc <= nw2 or nw2 >= 32):
                    cslot[nc] = free.pop(0); cload(nc); nc += 1
                elif nw2 < 32:
                    wslot[nw2] = free.pop(0); self.wload(nw2); nw2 += 1
                else: break
        self.stamp(7)
        I(f"v_and_b32 v{T}, 31, v0"); I(f"v_lshrrev_b32 v{T+1}, 5, v0"); I(f"v_and_b32 v{T+2}, 15, v0")
        I(f"v_lshlrev_b32 v{T+1}, 1, v{T+1}")
        I(f"v_xor_b32 v{T+1}, v{T+1}, v{T+2}"); I(f"v_lshlrev_b32 v{T+1}, 4, v{T+1}"); I(f"v_lshl_add_u32 v{T}, v{T}, 8, v{T+1}")
        I(f"v_add_u32 v{T}, s51, v{T}")
        for mt in range(2):
            for gq in range(4):
                I(f"v_xor_b32 v{T+1}, {(4*gq+mt)*16}, v{T}"); I(f"v_add_u32 v{T+3}, 0x10000, v{T+1}")
                for st in range(2):
                    I(f"ds_write_b128 v{T+1+2*st}, {v(OACC+16*(2*mt+st)+4*gq,4)}"); lg.issue()
        I(f"v_lshrrev_b32 v{T}, 4, v0"); I(f"s_and_b32 s41, s{SW}, 1"); I("s_lshl_b32 s42, s41, 3")
        I(f"v_lshl_add_u32 v{T+1}, v{T}, 1, s42"); I(f"v_xor_b32 v{T+1}, v{T+1}, v{T+2}"); I(f"v_lshlrev_b32 v{T+1}, 4, v{T+1}")
        I("s_and_b32 s43, s48, 16"); I(f"v_add_u32 v{T+3}, s43, v{T+2}"); I(f"v_lshl_add_u32 v24, v{T+3}, 8, v{T+1}")
        I("s_lshr_b32 s43, s48, 5"); I("s_lshl_b32 s43, s43, 16"); I("v_add_u32 v24, s43, v24"); I("v_xor_b32 v25, 16, v24")
        I("s_lshl_b32 s42, s41, 5"); I(f"v_lshl_add_u32 v{T}, v{T}, 3, s42"); I(f"v_bfe_u32 v{T+1}, v0, 2, 2")
        I(f"v_add_u32 v{T}, v{T}, v{T+1}"); I(f"v_lshlrev_b32 v{T}, 7, v{T}"); I(f"v_and_b32 v{T+1}, 3, v0")
        I(f"v_lshl_add_u32 v{T}, v{T+1}, 3, v{T}"); I("s_lshl_b32 s42, s48, 1"); I(f"s_add_u32 s42, s42, {YT}"); I(f"v_add_u32 v28, s42, v{T}")
        self.sync_all()
        CX = 128; tk = []
        I(f"ds_read_b64_tr_b16 {v(100,2)}, v28"); lg.issue()
        I(f"ds_read_b64_tr_b16 {v(102,2)}, v28 offset:512"); ty2 = lg.issue()
        for p in range(8):
            for hh in range(2):
                I(f"ds_read_b128 {v(CX+8*p+4*hh,4)}, v{24+hh} offset:{8192*p}"); lg.issue()
            tk.append(lg.issued)
            if p == 5:
                lg.wait(ty2)
                for e in range(8):
                    if e & 1: I(f"v_and_b32 v104, 0xffff0000, v{XR+(e>>1)}"); I(f"v_and_b32 v105, 0xffff0000, v{100+(e>>1)}")
                    else: I(f"v_lshlrev_b32 v104, 16, v{XR+(e>>1)}"); I(f"v_lshlrev_b32 v105, 16, v{100+(e>>1)}")
                    I(f"v_mul_f32 v{112+e}, v104, v105"); I(f"v_mul_f32 v{112+e}, v{112+e}, v{GR}")
                I(f"v_sub_f32 v{GR}, 1.0, v{GR}")
        for p in range(1, 8):
            lg.wait(tk[p])
            for e in range(0, 8, 2): I(f"v_pk_add_f32 {v(CX+e,2)}, {v(CX+e,2)}, {v(CX+8*p+e,2)}")
        for e in range(8): I(f"v_fmac_f32 v{112+e}, v{CX+4*(e&1)+(e>>1)}, v{GR}")
        for e in range(4): I(f"v_cvt_pk_bf16_f32 v{108+e}, v{112+2*e}, v{112+2*e+1}")
        I(f"buffer_store_dwordx4 {v(108,4)}, v{VO}, s[{RC}:{RC+3}], s49 offen{' sc1' if not self.o.get('outpl') else ' nt' if self.o.get('outnt') else ''}"); vm.issue()
        self.stamp(16)
        if self.o.get("echo"):
            lp = a.label("EC")
            I("s_sub_u32 s100, s100, s96")
            if self.o.get("cyc"): I("s_lshr_b32 s100, s100, 4")
            I("s_memrealtime s[96:97]"); I("s_waitcnt lgkmcnt(0)")
            a.L(lp)
            I("s_memrealtime s[98:99]"); I("s_waitcnt lgkmcnt(0)"); I("s_sub_u32 s98, s98, s96"); I("s_cmp_lt_u32 s98, s100"); I(f"s_cbranch_scc1 {lp}")
        if self.o.get("dbgout") is not None:
            l = a.label("DB")
            I(f"s_cmp_lg_u32 s2, {self.o['dbgout']}"); I(f"s_cbranch_scc1 {l}"); I(f"s_cmp_lg_u32 s{SW}, 0"); I(f"s_cbranch_scc1 {l}")
            I("s_waitcnt vmcnt(0)")
            order = [0, 1, 2, 3, 8, 10, 11, 4, 5, 12, 6, 7, 16]
            I("v_mov_b32 v20, 0")
            for j, i in enumerate(order):
                I(f"s_mov_b32 s44, {4*i}"); I(f"v_writelane_b32 v20, s44, {j}")
            I(f"s_lshl_b32 s44, s2, 11"); I(f"s_add_u32 s44, s44, {STAMP_OFF}")
            I(f"buffer_load_dword v21, v20, s[{RWS}:{RWS+3}], s44 offen sc1"); I("s_waitcnt vmcnt(0)")
            I("v_readfirstlane_b32 s45, v21"); I("v_subrev_u32 v21, s45, v21")
            self.srd(RDBG, "dbg", 64); I("v_lshlrev_b32 v22, 2, v0")
            I(f"buffer_store_dword v21, v22, s[{RDBG}:{RDBG+3}], 0 offen")
            a.L(l)

def build(opts):
    g = G(opts); k = NAME + "_kernel"
    g.begin(k); g.a.T("; MARK p"); g.proj(); g.a.T("; MARK a"); g.attn(); g.a.T("; MARK t"); g.tailp(); g.end(); g.a.T("; MARK a"); g.attn_rare(); g.a.T("; MARK t"); g.a.L("CODE_END"); g.a.I("s_endpgm")
    n = g.a.fix_hazards()
    txt = "; @launch grid=(256,1,1) block=(512,1,1) lds=163840\n"
    txt += '.amdgcn_target "amdgcn-amd-amdhsa--gfx950"\n.text\n' + g.a.text()
    txt += f""".section .rodata,"a"
.p2align 6
.amdhsa_kernel {k}
  .amdhsa_next_free_vgpr 256
  .amdhsa_next_free_sgpr 102
  .amdhsa_accum_offset 256
  .amdhsa_group_segment_fixed_size 0
  .amdhsa_kernarg_size 128
  .amdhsa_user_sgpr_count 2
  .amdhsa_user_sgpr_kernarg_segment_ptr 1
  .amdhsa_system_sgpr_workgroup_id_x 1
.end_amdhsa_kernel
"""
    print(f"instructions {sum(1 for it in g.a.items if it[0] == 'i')}, nops inserted {n}", file=sys.stderr)
    return txt

if __name__ == "__main__":
    opts = {}
    for x in sys.argv[2:]:
        if "=" in x: k_, v_ = x.split("="); opts[k_] = int(v_)
        else: opts[x] = True
    open(sys.argv[1], "w").write(build(opts))
```

```python
import sys, math, struct
sys.path.insert(0, "gen")
from asmlib import *

NAME = "gated_mix__ssm_conv_h3__compressed_kv_cla__prompt"
MB = 1 << 20
KV_OFF, Q_OFF, CTX_OFF, KVT_OFF, YT_OFF, G_OFF = 0, 32*MB, 48*MB, 64*MB, 66*MB, 68*MB
XC_OFF = 40*MB
WOT_OFF = 32*MB
FLG_OFF = 68*MB + 65536
FK_OFF, FY_OFF, FC_OFF = FLG_OFF, FLG_OFF + 4096, FLG_OFF + 8192
STAMP_OFF = 69*MB
WS_SIZE = 70*MB
P = dict(q=64, k=66, v=68, shift=70, ssmk=72, ssmD=74, bx=76, ckv=78, wq=80, wuk=82, wuv=84, wo=86, gate=88, out=90, dbg=92, ws=94)
SW, SHEAD, SIDX, SWK, SF = 3, 4, 5, 6, 7
RA, RB, RC, RWS, RD, RE, RT, RDBG = 8, 12, 16, 20, 24, 28, 56, 60
MFMA = "v_mfma_f32_32x32x16_bf16"
LOG2E = 1.4426950408889634
F_KV, F_CA, F_CB, F_Y = 1, 2, 4, 8
def f2u(x): return "0x%08x" % struct.unpack("<I", struct.pack("<f", x))[0]
def rep4(b): return b * 0x01010101

class G:
    def __init__(self, opts):
        self.a = Asm(); self.o = opts
        self.vm = Cnt(self.a, "vmcnt", 63); self.lg = Cnt(self.a, "lgkmcnt", 15)
        self.st = "" if opts.get("plainst") else (" sc1 nt" if opts.get("ntst") else " sc1"); self.ld = "" if opts.get("plainld") else " sc1"
    def I(self, t): self.a.I(t)
    def srd(self, r, ptr, nbytes):
        I = self.I
        I(f"s_mov_b32 s{r}, s{P[ptr]}"); I(f"s_mov_b32 s{r+1}, s{P[ptr]+1}")
        I(f"s_mov_b32 s{r+2}, {nbytes}"); I(f"s_mov_b32 s{r+3}, 0x00020000")
    def save(self): return (self.vm.issued, self.vm.done, self.lg.issued, self.lg.done)
    def restore(self, s_): self.vm.issued, self.vm.done, self.lg.issued, self.lg.done = s_
    def stream(self, mf, fills):
        n = len(mf); slots = [[] for _ in range(n + 1)]
        for (s0, e0, cl) in fills:
            m = e0 - s0
            for j, c in enumerate(cl): slots[s0 + 1 + (j * m) // len(cl)].append(c)
        for c in slots[0]: c()
        for i in range(n):
            mf[i]()
            for c in slots[i+1]: c()
    def stamp(self, i, dyn=None):
        if self.o.get("echo") == i:
            self.I("s_memtime s[100:101]" if self.o.get("cyc") else "s_memrealtime s[100:101]"); self.I("s_waitcnt lgkmcnt(0)")
        if not self.o.get("stamp"): return
        I = self.I
        I("s_memrealtime s[96:97]"); I("s_memtime s[100:101]")
        I("s_lshl_b32 s98, s2, 3"); I(f"s_add_u32 s98, s98, s{SW}"); I("s_lshl_b32 s98, s98, 8")
        I(f"s_add_u32 s98, s98, {STAMP_OFF + 4*i}")
        if dyn is not None:
            I(f"s_lshl_b32 s99, s{dyn}, 4"); I("s_add_u32 s98, s98, s99")
        I("s_waitcnt lgkmcnt(0)")
        I("v_mov_b32 v2, s96"); I("v_mov_b32 v3, 0")
        I(f"buffer_store_dword v2, v3, s[{RWS}:{RWS+3}], s98 offen")
        I("v_mov_b32 v2, s100")
        I(f"buffer_store_dword v2, v3, s[{RWS}:{RWS+3}], s98 offen offset:128")
    OOB = 0x40000000
    def publish(self, soff, val=1, srd=RWS, byte=False, idx=None):
        I = self.I
        self.oob_sel()
        if idx is not None: I(f"s_and_b32 s98, s{SIDX}, 3"); I(f"s_cmp_eq_u32 s98, {idx}"); I(f"s_cselect_b32 s99, s99, {self.OOB}")
        I(f"v_mov_b32 v2, {val}"); I("v_mov_b32 v3, s99")
        I(f"buffer_store_{'byte' if byte else 'dword'} v2, v3, s[{srd}:{srd+3}], s{soff} offen sc1"); self.vm.issue()
    def oob_sel(self):
        self.I(f"s_cmp_eq_u32 s{SW}, 0"); self.I(f"s_cselect_b32 s99, 0, {self.OOB}")
    def poll_issue(self, vd, vaddr, soff, srd=RWS):
        self.I(f"buffer_load_dword v{vd}, v{vaddr}, s[{srd}:{srd+3}], {soff} offen sc1"); return self.vm.issue()
    def poll_check(self, vd, vaddr, soff, want, srd=RWS):
        a = self.a; I = self.I
        l = a.label("PCK"); lp = a.label("POLL")
        I(f"s_mov_b32 s98, {want}"); I("s_mov_b32 s99, 20000")
        a.L(lp)
        I(f"v_and_b32 v{vd}, s98, v{vd}"); I(f"v_cmp_ne_u32 vcc, s98, v{vd}"); I(f"s_cbranch_vccz {l}")
        I("s_sleep 2")
        I(f"buffer_load_dword v{vd}, v{vaddr}, s[{srd}:{srd+3}], {soff} offen sc1")
        I("s_sub_u32 s99, s99, 1"); I("s_cmp_lg_u32 s99, 0"); I("s_waitcnt vmcnt(0)"); I(f"s_cbranch_scc1 {lp}")
        a.L(l)
    def barrier(self): self.I("s_barrier")
    def sync_all(self):
        self.I("s_waitcnt vmcnt(0) lgkmcnt(0)"); self.vm.mark_all_done(); self.lg.mark_all_done(); self.barrier()

    def begin(self, kname):
        a = self.a; I = self.I
        a.T(f".globl {kname}\n.p2align 8\n.type {kname},@function"); a.L(kname)
        self.endl = a.label("END")
        if self.o.get("stamp"): I("s_memrealtime s[30:31]")
        if self.o.get("echo"): I("s_memtime s[96:97]" if self.o.get("cyc") else "s_memrealtime s[96:97]")
        I("s_load_dwordx16 s[64:79], s[0:1], 0"); I("s_load_dwordx16 s[80:95], s[0:1], 64")
        I("s_cmp_ge_u32 s2, 256"); I(f"s_cbranch_scc1 {self.endl}")
        I("v_lshrrev_b32 v1, 6, v0"); I("v_and_b32 v0, 63, v0"); I(f"v_readfirstlane_b32 s{SW}, v1")
        I("s_and_b32 s7, s2, 7"); I("s_lshl_b32 s7, s7, 2")
        I(f"s_lshr_b32 s{SIDX}, s2, 3"); I(f"s_lshr_b32 s{SHEAD}, s{SIDX}, 3"); I(f"s_add_u32 s{SHEAD}, s{SHEAD}, s7")
        I(f"s_and_b32 s{SIDX}, s{SIDX}, 7"); I(f"s_lshl_b32 s{SWK}, s{SW}, 10")
        I(f"s_lshl_b32 s{SF}, s{SHEAD}, 3"); I(f"s_add_u32 s{SF}, s{SF}, s{SIDX}")
    def end(self):
        self.a.L(self.endl); self.I("s_endpgm")

    def proj(self):
        a = self.a; I = self.I; vm = self.vm; lg = self.lg
        QA_LDS = 65536
        ACC = {"K": 64, "V": 128, "Q": 64}
        FX = [16, 24]; FW = [192, 32]
        VWA = 4; VSK, VSV, VOX, VOW, VST = 8, 9, 10, 11, 12; VXA = 224; T = 232
        NB = 0; XC = self.o.get("xc", 0)
        ST = [("KV", c) for c in range(NB)] + [("K", c) for c in range(NB, 8)] + [("V", c) for c in range(7, NB - 1, -1)] + [("Q", c) for c in range(8)]
        NS = len(ST); TK = 7; TV = NS - 9; TQ = NS - 8
        I("v_lshrrev_b32 v13, 3, v0"); I(f"s_lshl_b32 s40, s{SW}, 3"); I("v_add_u32 v13, s40, v13"); I("v_lshlrev_b32 v13, 10, v13")
        I(f"s_lshr_b32 s41, s{SW}, 1"); I(f"s_xor_b32 s40, s41, s{SW}"); I("s_and_b32 s40, s40, 1"); I("s_lshl_b32 s40, s40, 2")
        I("v_lshrrev_b32 v14, 4, v0"); I("v_add_u32 v15, s40, v14")
        I("v_and_b32 v3, 7, v0"); I("v_xor_b32 v15, v15, v3"); I(f"v_lshl_add_u32 v{VOX}, v15, 4, v13")
        I(f"s_lshl_b32 s40, s{SW}, 2"); I("v_add_u32 v13, s40, v14"); I("v_lshlrev_b32 v13, 13, v13")
        I("s_and_b32 s41, s41, 1"); I("s_lshl_b32 s41, s41, 3"); I("v_lshl_add_u32 v15, v14, 1, s41"); I("v_and_b32 v3, 15, v0"); I("v_xor_b32 v15, v15, v3")
        I("v_lshl_add_u32 v13, v15, 4, v13"); I(f"s_lshl_b32 s40, s{SHEAD}, 8"); I(f"v_add_u32 v{VOW}, s40, v13")
        I(f"v_lshlrev_b32 v{VST}, 4, v0")
        I(f"s_lshl_b32 s44, s{SIDX}, 18")
        for i in range(1, 4): I(f"s_add_u32 s{44+i}, s44, {65536*i}")
        ROT = self.o.get("rot", 2)
        if ROT == 0: I("s_mov_b32 s33, 0")
        elif ROT == 1: I(f"s_mov_b32 s33, s{SIDX}")
        elif ROT == 2: I(f"s_lshr_b32 s33, s{SHEAD}, 2"); I(f"s_add_u32 s33, s33, s{SIDX}")
        elif ROT == 3: I(f"s_lshr_b32 s33, s{SHEAD}, 2"); I(f"s_add_u32 s33, s33, s{SIDX}"); I(f"s_lshl_b32 s34, s{SHEAD}, 1"); I("s_add_u32 s33, s33, s34")
        elif ROT == 4: I(f"s_lshr_b32 s33, s{SHEAD}, 2")
        if self.o.get("rotq"): I(f"s_lshl_b32 s32, s{SHEAD}, 1"); I("s_add_u32 s32, s32, s33")
        else: I("s_mov_b32 s32, s33")
        I("s_waitcnt lgkmcnt(0)")
        if self.o.get("stamp"): I("s_memrealtime s[28:29]")
        self.srd(RA, "ckv", 2*MB); self.srd(RB, "wuk", 4*MB); self.srd(RC, "wuv", 4*MB)
        def xbase(t):
            k, c = ST[t]
            return (32768, 131072, 0)[((16 + c) if k == "Q" else (15 - c + NB)) % 3]
        units = [(t, m) for t in range(NS) for m in ST[t][0]]
        uidx = {u: i for i, u in enumerate(units)}
        def wbase(t, m): return 65536 + (uidx[(t, m)] % 4)*16384
        items = []
        lastx = {}
        for t in range(NS):
            k, c = ST[t]
            for m in k:
                u = uidx[(t, m)]
                def w(i, t=t, m=m, c=c):
                    if i == 0: I(f"s_add_u32 s34, s{32 if m == 'Q' else 33}, {c}"); I("s_and_b32 s34, s34, 7"); I("s_lshl_b32 s34, s34, 19")
                    I(f"s_add_u32 m0, s{SWK}, {wbase(t, m) + i*8192}"); I(f"s_add_u32 s41, s34, {i*262144}")
                    r = {"K": RB, "V": RC, "Q": RE}[m]
                    I(f"buffer_load_dwordx4 v{VOW}, s[{r}:{r+3}], s41 offen lds"); dtok[t] = vm.issue()
                items.append((t, units[u-4][0] if u >= 4 else -1, [lambda i=i, w=w: w(i) for i in range(2)]))
            key = ("Q" if k == "Q" else "C", c); prev = lastx.get(xbase(t))
            if prev is None or prev[1] != key:
                def x(i, t=t, k=k, c=c):
                    if i == 0: I(f"s_add_u32 s35, s{32 if k == 'Q' else 33}, {c}"); I("s_and_b32 s35, s35, 7"); I("s_lshl_b32 s35, s35, 7")
                    I(f"s_add_u32 m0, s{SWK}, {xbase(t) + i*8192}"); I(f"s_add_u32 s41, s{(48 if k == 'Q' else 44)+i}, s35")
                    r = (RWS if XC else RD) if k == "Q" else RA
                    I(f"buffer_load_dwordx4 v{VOX}, s[{r}:{r+3}], s41 offen{self.ld if (XC and k == 'Q') else ''} lds"); dtok[t] = vm.issue()
                items.append((t, prev[0] if prev else -1, [lambda i=i, x=x: x(i) for i in range(4)]))
            lastx[xbase(t)] = (t, key)
        dtok = {}
        def take(done, upto=99):
            out = []
            for it in list(items):
                if it[1] <= done and it[0] <= upto: out += it[2]; items.remove(it)
            return out
        for f in take(-1, 0): f()
        self.srd(RWS, "ws", WS_SIZE); self.srd(RDBG, "dbg", 256)
        self.stamp(31)
        if self.o.get("stamp"):
            I("v_mov_b32 v2, s30"); I("s_sub_u32 s98, s98, 124"); I(f"buffer_store_dword v2, v3, s[{RWS}:{RWS+3}], s98 offen")
            I("v_mov_b32 v2, s28"); I(f"buffer_store_dword v2, v3, s[{RWS}:{RWS+3}], s98 offen offset:120")
        I(f"s_lshl_b32 s48, s{SIDX}, 17"); I("s_add_u32 s49, s48, 65536")
        I(f"s_sub_u32 s50, 15, s{SIDX}"); I("s_lshl_b32 s50, s50, 17"); I("s_add_u32 s51, s50, 65536")
        if XC:
            for i in range(4): I(f"s_add_u32 s{48+i}, s{48+i}, {XC_OFF}")
        I(f"s_and_b32 s42, s{SW}, 3"); I("s_lshl_b32 s42, s42, 6"); I(f"s_lshr_b32 s43, s{SW}, 2"); I("s_lshl_b32 s43, s43, 1")
        I("v_and_b32 v13, 15, v0"); I("v_lshrrev_b32 v15, 4, v0")
        I("v_lshrrev_b32 v14, 1, v13"); I("v_xor_b32 v14, v14, v15"); I("v_lshlrev_b32 v14, 4, v14")
        I("v_add_u32 v3, s42, v13"); I(f"v_lshl_add_u32 v{VXA}, v3, 7, v14")
        I("v_and_b32 v2, 8, v13"); I("v_add_u32 v3, v3, v2"); I(f"v_lshl_add_u32 v{VXA+4}, v3, 7, v14")
        for pt in range(2):
            b = VXA + 4*pt
            I(f"v_xor_b32 v{b+1}, 64, v{b}"); I(f"v_add_u32 v{b+2}, 0x20000, v{b}"); I(f"v_add_u32 v{b+3}, 0x20000, v{b+1}")
        I("v_lshlrev_b32 v3, 4, v13"); I("v_and_b32 v2, 1, v15"); I("v_lshl_add_u32 v3, v2, 9, v3"); I("v_lshrrev_b32 v14, 1, v15")
        I(f"v_lshl_add_u32 v{VSK}, v14, 10, v3"); I(f"v_lshl_add_u32 v{VSV}, v14, 12, v3")
        I("v_bfe_u32 v13, v0, 2, 2"); I("v_lshl_add_u32 v14, v15, 3, v13"); I("v_lshlrev_b32 v14, 8, v14")
        I("v_and_b32 v3, 3, v0"); I("v_lshl_add_u32 v14, v3, 3, v14"); I("v_add_u32 v14, 0x10000, v14")
        I("v_lshl_add_u32 v13, v2, 2, v13"); I("s_lshl_b32 s40, s43, 1"); I("v_xor_b32 v13, s40, v13"); I(f"v_lshl_add_u32 v{VWA}, v13, 5, v14")
        for dt in range(1, 4): I(f"v_xor_b32 v{VWA+dt}, {dt << 5}, v{VWA}")
        I(f"s_lshl_b32 s54, s{SHEAD}, 4"); I(f"s_lshl_b32 s55, s{SIDX}, 1"); I("s_add_u32 s54, s54, s55")
        I(f"s_bfe_u32 s55, s{SW}, 0x10001"); I("s_add_u32 s54, s54, s55"); I("s_lshl_b32 s54, s54, 16")
        I(f"s_and_b32 s55, s{SW}, 1"); I("s_lshl_b32 s55, s55, 14"); I("s_add_u32 s54, s54, s55")
        I("s_lshl_b32 s55, s43, 11"); I("s_add_u32 s52, s54, s55"); I("s_add_u32 s52, s52, 0x8000")
        I("s_lshl_b32 s55, s43, 10"); I("s_add_u32 s54, s54, s55")
        XG = T; GW = T + 4; hl = {}
        def gate_loads():
            L = []
            def E(t): L.append(lambda: I(t))
            def V(t):
                def f(): I(t); hl["t"] = vm.issue()
                L.append(f)
            E(f"s_lshl_b32 s40, s{SHEAD}, 7"); E(f"s_lshl_b32 s39, s{SIDX}, 2"); E("s_add_u32 s40, s40, s39"); E(f"s_add_u32 s40, s40, {FK_OFF}")
            E(f"v_mov_b32 v13, s40")
            E(f"s_lshr_b32 s39, s{SHEAD}, 2"); E("s_lshl_b32 s39, s39, 7"); E(f"s_and_b32 s40, s{SHEAD}, 3"); E("s_lshl_b32 s40, s40, 2"); E("s_add_u32 s39, s39, s40")
            E(f"s_lshl_b32 s40, s{SIDX}, 10"); E("s_add_u32 s40, s40, s39"); E(f"s_add_u32 s40, s40, {FC_OFF}")
            E("v_writelane_b32 v13, s40, 1")
            E(f"s_sub_u32 s40, 15, s{SIDX}"); E("s_lshl_b32 s40, s40, 10"); E("s_add_u32 s40, s40, s39"); E(f"s_add_u32 s40, s40, {FC_OFF}")
            E("v_writelane_b32 v13, s40, 2")
            E(f"s_lshl_b32 s40, s{SF}, 2"); E(f"s_add_u32 s40, s40, {FY_OFF}"); E("v_writelane_b32 v13, s40, 3"); E("v_mov_b32 v14, 0")
            def oo(): self.oob_sel(); I("v_add_u32 v13, s99, v13")
            L.append(oo)
            V(f"buffer_store_dword v14, v13, s[{RWS}:{RWS+3}], 0 offen sc1")
            E("s_lshl_b32 s37, s2, 3"); E(f"s_add_u32 s37, s37, s{SW}"); E("s_lshl_b32 s38, s37, 10")
            L.append(lambda: self.srd(RD, "q", 2*MB)); L.append(lambda: self.srd(RE, "wq", 4*MB)); L.append(lambda: self.srd(RT, "gate", 1024))
            V(f"buffer_load_dwordx4 {v(XG,4)}, v{VST}, s[{RD}:{RD+3}], s38 offen")
            V(f"buffer_load_dwordx4 {v(GW,4)}, v{VST}, s[{RT}:{RT+3}], 0 offen")
            return L
        def gate_ops():
            L = []; E = lambda t: L.append(lambda: I(t)); Z = T + 8
            L.append(lambda: vm.wait(hl["t"]))
            def xs():
                I(f"s_add_u32 s38, s38, {XC_OFF}"); I(f"buffer_store_dwordx4 {v(XG,4)}, v{VST}, s[{RWS}:{RWS+3}], s38 offen{self.st}"); vm.issue()
            if XC: L.append(xs)
            E(f"v_dot2_f32_bf16 v{Z}, v{XG}, v{GW}, 0")
            for i in range(1, 4): E(f"v_dot2_f32_bf16 v{Z}, v{XG+i}, v{GW+i}, v{Z}")
            for m in ("quad_perm:[1,0,3,2] row_mask:0xf", "quad_perm:[2,3,0,1] row_mask:0xf", "row_half_mirror row_mask:0xf", "row_mirror row_mask:0xf",
                      "row_bcast:15 row_mask:0xa", "row_bcast:31 row_mask:0xc"):
                E(f"v_add_f32_dpp v{Z}, v{Z}, v{Z} {m} bank_mask:0xf")
            E(f"v_readlane_b32 s36, v{Z}, 63"); E(f"v_mov_b32 v{Z+1}, {f2u(-LOG2E)}"); E(f"v_mul_f32 v{Z}, s36, v{Z+1}")
            E(f"v_exp_f32 v{Z}, v{Z}"); E(f"v_add_f32 v{Z}, 1.0, v{Z}"); E(f"v_rcp_f32 v{Z}, v{Z}")
            E("s_lshl_b32 s38, s37, 2"); E(f"s_add_u32 s38, s38, {G_OFF}"); E(f"v_mov_b32 v{Z+1}, 0")
            def gs():
                I(f"buffer_store_dword v{Z}, v{Z+1}, s[{RWS}:{RWS+3}], s38 offen{self.st}"); vm.issue()
            L.append(gs)
            return L
        toks = {}
        def rdx(t, mt):
            m = ST[t][0]; xb = xbase(t); pt = 0
            off = (xb & 65535) + ((mt >> 1)*4096 + (mt & 1)*1024 if pt else mt*2048)
            def f(kk):
                va = VXA + 4*pt + 2*(xb >> 17) + (kk ^ (mt & 1))
                I(f"ds_read_b128 {v(FX[mt & 1]+4*kk,4)}, v{va} offset:{off}"); toks[("x", t, mt, kk)] = lg.issue()
            return [lambda: f(0), lambda: f(1)]
        def rdw(t, dt):
            m = ST[t][0]
            def f(kk, h):
                I(f"ds_read_b64_tr_b16 {v(FW[t & 1]+8*dt+4*kk+2*h,2)}, v{VWA+dt} offset:{wbase(t, m)-65536+kk*8192+h*1024}"); toks[("w", t, dt, kk)] = lg.issue()
            return [lambda kk=kk, h=h: f(kk, h) for kk in range(2) for h in range(2)]
        def atile(m, mt, dt): return ACC[m] + (4*(((mt >> 1)*4 + dt)*2 + (mt & 1)) if m == "V" else 4*(mt*4 + dt))
        def mfs(t, mt):
            m = ST[t][0]; first = t == 0 or ST[t-1][0] != m; L = []
            order = [(dt, kk) for dt in range(4) for kk in range(2)] if not self.o.get("nochain") else [(dt, kk) for kk in range(2) for dt in range(4)]
            for dt, kk in order:
                def f(dt=dt, kk=kk):
                    lg.wait(max(toks[("x", t, mt, kk)], toks[("w", t, dt, kk)]))
                    d = v(atile(m, mt, dt), 4); X = v(FX[mt & 1]+4*kk, 4); W = v(FW[t & 1]+8*dt+4*kk, 4)
                    c = "0" if (first and kk == 0) else d
                    I(f"v_mfma_f32_16x16x32_bf16 {d}, {X}, {W}, {c}" if m == "V" else f"v_mfma_f32_16x16x32_bf16 {d}, {W}, {X}, {c}")
                L.append(f)
            return L
        def pieces(m):
            if m == "V": return [(atile(m, 2*p, dt), p*8192 + dt*1024) for p in range(2) for dt in range(4)]
            return [(atile(m, mt, 2*j), mt*4096 + j*1024) for mt in range(4) for j in range(2)]
        def kv_out(m):
            out = []
            for b, off in pieces(m):
                pk = [lambda i=i, b=b: I(f"v_cvt_pk_bf16_f32 v{b+i}, v{b+2*i}, v{b+2*i+1}") for i in range(4)]
                if m == "K": pk = [lambda i=i, b=b: I(f"v_mul_f32 v{b+i}, {f2u(LOG2E / math.sqrt(128.0))}, v{b+i}") for i in range(8)] + pk
                def st(b=b, off=off):
                    I(f"s_add_u32 s41, s{54 if m == 'K' else 52}, {off}")
                    I(f"buffer_store_dwordx4 {v(b,4)}, v{VST}, s[{RWS}:{RWS+3}], s41 offen{self.st}"); vm.issue()
                out.append((pk, st))
            return out
        side = {}; late = {}
        def spread(ops, t0, t1, dst=side, ks=(0, 1, 2)):
            sl = [(t, k) for t in range(t0, t1) for k in ks]; n = len(ops)
            for j, key in enumerate(sl): dst.setdefault(key, []).extend(ops[n*j//len(sl): n*(j+1)//len(sl)])
        PG = self.o.get("pg", 0)
        spread(gate_loads(), PG, PG + 1); spread(gate_ops(), PG + 2, PG + 3)
        def wtouch(r, half, wv):
            def f():
                I(f"s_cmp_eq_u32 s{SW}, {wv}"); I(f"s_cselect_b32 s99, 0, {self.OOB}")
                I(f"s_lshl_b32 s40, s{SIDX}, 19"); I(f"s_lshl_b32 s39, s{SHEAD}, 8"); I("s_add_u32 s40, s40, s39"); I(f"s_add_u32 s40, s40, {half*32*8192}")
                I("v_lshrrev_b32 v3, 1, v0"); I("v_lshlrev_b32 v3, 13, v3"); I("v_and_b32 v2, 1, v0"); I("v_lshl_add_u32 v3, v2, 7, v3"); I("v_add_u32 v3, s99, v3")
                I(f"buffer_load_dword v1, v3, s[{r}:{r+3}], s40 offen"); vm.issue()
            return f
        for nm, r, dflt in (("tk", RB, -1), ("tv", RC, 1), ("tq", RE, 3)):
            t0 = self.o.get(nm, dflt)
            if t0 >= 0:
                for half in range(2): side.setdefault((t0 + half, 2), []).append(wtouch(r, half, half))
        KN = self.o.get("kn", 8); VD = self.o.get("vd", 0); VN = self.o.get("vn", 5)
        KO = kv_out("K"); VO = kv_out("V")
        spread(sum((p for p, _ in KO), []), TK + 1, min(TK + 3, TQ), ks=(0, 1))
        npk = 2 * (min(TK + 3, TQ) - TK - 1)
        spread([s_ for _, s_ in KO], TK + 1, TK + 1 + KN, dst=late, ks=(2,))
        assert len(late[(TK + 1, 2)]) <= 8 * 2 // npk
        spread(sum((p for p, _ in VO), []), TQ, TQ + 1, ks=(0, 1))
        spread([s_ for _, s_ in VO], TQ + VD, TQ + VD + VN, dst=late, ks=(2,))
        PK_, PV_ = TK + KN + 2, TQ + VD + VN
        assert PK_ <= NS - 5 and PV_ <= NS - 2
        QE = []; EQ = lambda t: QE.append(lambda: I(t))
        EQ(f"s_and_b32 s55, s{SW}, 2"); EQ("s_lshl_b32 s55, s55, 15"); EQ(f"s_add_u32 s55, s55, {QA_LDS}")
        EQ(f"s_and_b32 s54, s{SW}, 1"); EQ("s_lshl_b32 s54, s54, 14"); EQ("s_add_u32 s55, s55, s54")
        EQ("s_lshl_b32 s54, s43, 10"); EQ("s_add_u32 s55, s55, s54"); EQ(f"v_add_u32 v14, s55, v{VST}")
        spread(QE, NS - 1, NS)
        spread([lambda r=r: I(f"v_mov_b64 {v(192+2*r,2)}, 0") for r in range(32) if not 16 <= r < 20], NS - 1, NS)
        side.setdefault((NS - 1, 3), []).extend([lambda r=r: I(f"v_mov_b64 {v(192+2*r,2)}, 0") for r in range(16, 20)])
        def fkoff():
            I(f"s_lshl_b32 s40, s{SHEAD}, 7"); I(f"s_lshl_b32 s41, s{SIDX}, 2"); I("s_add_u32 s40, s40, s41"); I(f"s_add_u32 s40, s40, {FK_OFF}")
        def w0only(fn):
            l = a.label("NP"); I(f"s_cmp_lg_u32 s{SW}, 0"); I(f"s_cbranch_scc1 {l}"); fn(); a.L(l)
        def k0(i):
            I(f"s_lshl_b32 s40, s{SW}, 12"); I("s_add_u32 m0, s40, 0x8000")
            I(f"s_lshl_b32 s41, s{SHEAD}, 20"); I("s_add_u32 s41, s41, s40")
            I(f"buffer_load_dwordx4 v{VST}, s[{RWS}:{RWS+3}], s41 offen offset:{1024*i}{self.ld} lds"); vm.issue()
        self.barrier()
        for f in take(-1, 1): f()
        vm.wait(dtok[0]); self.barrier()
        self.stamp(1)
        def first_reads(t):
            x = rdx(t, 0); w = [rdw(t, dt) for dt in range(4)]
            return [x[0]] + w[0][:2] + [x[1]] + w[0][2:] + w[1], w[2] + w[3]
        L, rest = first_reads(0)
        for f in L: f()
        mark = {}; TZ = PG + 4; TS = 10; DS = self.o.get("dsteps", 3)
        pend = take(-1)
        for t in range(NS):
            for k in range(4):
                M = mfs(t, k); n = len(M); PB = []
                if k == 3 and t < NS - 1:
                    assert not pend
                    if t == TS + 2: vm.wait(td); w0only(lambda: self.poll_check(14, 13, "0", rep4(1), RDBG))
                    if t == NS - 3: vm.wait(tp); w0only(lambda: self.poll_check(15, 13, "s53", 1))
                    lg.wait(lg.issued); vm.wait(dtok[t+1])
                    if t == TZ: vm.wait(mark[TZ-2])
                    if t == PK_: vm.wait(mark[TK + KN])
                    if t == PV_: vm.wait(mark[PV_ - 1])
                    self.barrier()
                    ps = self.o.get("pstamp")
                    if ps is not None and 0 <= t - int(ps) + 1 < 13: self.stamp(17 + t - int(ps) + 1); vm.issue(2)
                    if TZ <= t < TZ + 4: PB.append(lambda t=t: self.publish(SF, 1, RDBG, True, idx=t - TZ))
                    if t == PK_: PB.append(lambda: (fkoff(), self.publish(40, 1)))
                    if t == PV_: PB.append(lambda: (fkoff(), self.publish(40, 3)))
                    pend = take(t)
                    if t == NS - 3: pend += [lambda i=i: k0(i) for i in range(4)]
                    nd = len(pend) // (DS + 1)
                else:
                    nd = -(-len(pend) // max(1, (3 if t == 0 else DS) - k))
                D, pend = pend[:nd], pend[nd:]
                fl = []
                if not (t == NS - 1 and k == 3):
                    if k == 3:
                        L, rest = first_reads(t+1); nr = self.o.get("nr", 4)
                        fl.append((0, 7, L + rest[:nr])); rest = rest[nr:]
                    else:
                        if k == 0 and rest: fl.append((-1, 2, rest))
                        fl.append((2, 4, rdx(t, k+1)))
                if PB: fl.append((1, 2, PB))
                if D: fl.append((0, n, D))
                if side.get((t, k)): fl.append((0, n, side[(t, k)]))
                if late.get((t, k)): fl.append((n - 2, n, late[(t, k)]))
                self.stream(M, fl)
                if k == 2: mark[t] = vm.issued
                if t == TS and k == 0:
                    self.oob_sel(); I("v_lshl_add_u32 v13, v0, 2, s99"); td = self.poll_issue(14, 13, "0", RDBG)
                if t == NS - 4 and k == 0:
                    self.oob_sel(); I("v_and_b32 v13, 7, v0"); I("v_lshl_add_u32 v13, v13, 2, s99")
                    I(f"s_lshl_b32 s53, s{SHEAD}, 7"); I(f"s_add_u32 s53, s53, {FK_OFF}")
                    tp = self.poll_issue(15, 13, "s53")
            if t == TK: self.stamp(2)
            if t == TV: self.stamp(13)
        assert not items
        self.stamp(3)
        I("v_mov_b32 v16, v13")
        self.poll_issue(17, 16, "s53")
        for b, off in pieces("Q"):
            for i in range(4): I(f"v_cvt_pk_bf16_f32 v{b+i}, v{b+2*i}, v{b+2*i+1}")
            I(f"ds_write_b128 v14, {v(b,4)} offset:{off}"); lg.issue()
        self.attn_setup()
        vm.wait(vm.issued); w0only(lambda: self.poll_check(17, 16, "s53", 3))
        lg.wait(lg.issued); self.barrier()

    def attn_setup(self): self.attn(True)
    def attn(self, setup=False):
        a = self.a; I = self.I; vm = self.vm; lg = self.lg
        M16 = "v_mfma_f32_16x16x32_bf16"
        ML = 155648; QA_LDS = 65536; QB_LDS = 131072
        O = 192; QF = 160; NM = 144; S = [112, 128]; PP = [96, 104]; RING = 64; NR = 8; E = 56; PK = 16
        VK, VV, VL16, VSC, LM, THR, NINF, VQ, TMP = 4, 5, 6, 7, 8, 9, 10, 11, 12
        LS, ONES, BIAS = 152, 60, 11.0
        SR, SG, SC1, SC2, SKO, SVO, SKM, SVM, STH = 32, 33, 34, 35, 36, 37, 38, 39, 42
        SFIN, SCA, SM1 = 55, 59, 58
        DC = self.o.get("dmacost", 16); WEV = self.o.get("wev", 4)
        if setup:
            I(f"s_lshr_b32 s{SG}, s{SW}, 2"); I(f"s_mul_i32 s{SR}, s{SG}, 7"); I(f"s_xor_b32 s{SR}, s{SR}, s{SW}")
            I(f"v_lshlrev_b32 v{VL16}, 4, v0")
            I(f"s_lshl_b32 s44, s{SR}, 13"); I(f"s_add_u32 s44, s44, {QB_LDS}"); I(f"v_add_u32 v{VQ}, s44, v{VL16}")
            I(f"s_lshl_b32 s45, s{SG}, 16"); I(f"v_subrev_u32 v{TMP+1}, s45, v{VQ}")
            I(f"s_mov_b32 s{SC1}, s{SIDX}")
            I(f"s_lshl_b32 s{SC2}, s{SIDX}, 1"); I(f"s_sub_u32 s{SC2}, 14, s{SC2}")
            I(f"s_cmp_eq_u32 s{SG}, 1"); I(f"s_cselect_b32 s{SM1}, 0, -1")
            I(f"s_lshl_b32 s43, s{SW}, 12"); I(f"s_lshl_b32 s{SVO}, s{SHEAD}, 20"); I(f"s_add_u32 s{SVO}, s{SVO}, s43")
            I(f"s_add_u32 s{SKO}, s{SVO}, 0x10000"); I(f"s_add_u32 s{SVO}, s{SVO}, 0x8000")
            I(f"s_mov_b32 s{SKM}, s43"); I(f"s_add_u32 s{SVM}, s43, 0x18000")
            I(f"s_mov_b32 s{STH}, 0x40004000"); I(f"v_mov_b32 v{NINF}, 0xff800000")
            for r in range(4): I(f"v_mov_b32 v{ONES+r}, 0x3f803f80"); I(f"v_mov_b64 {v(LS+2*r,2)}, 0")
            I(f"v_and_b32 v{THR}, 15, v0"); I(f"v_lshlrev_b32 v{VSC}, 4, v{THR}"); I(f"s_lshl_b32 s44, s{SR}, 5"); I(f"v_add_u32 v{THR}, s44, v{THR}")
            I(f"v_lshrrev_b32 v{TMP}, 4, v0"); I(f"v_lshl_add_u32 v{VSC}, v{TMP}, 9, v{VSC}"); I(f"v_lshlrev_b32 v{TMP}, 2, v{TMP}"); I(f"v_sub_u32 v{THR}, v{THR}, v{TMP}")
            I(f"v_add_u32 v{VK}, 0x8000, v{VL16}")
            I(f"s_lshl_b32 s{SCA}, s{SIDX}, 2"); I(f"s_add_u32 s{SCA}, s{SCA}, s{SR}"); I(f"s_lshl_b32 s{SCA}, s{SCA}, 5"); I(f"s_add_u32 s{SCA}, s{SCA}, s{SHEAD}")
            I(f"s_lshl_b32 s{SCA}, s{SCA}, 13"); I(f"s_add_u32 s{SCA}, s{SCA}, {CTX_OFF}")
            I(f"s_mov_b32 s{SFIN}, 0")
            if self.o.get("map84", 1):
                I(f"s_lshr_b32 s56, s{SF}, 6"); I("s_lshl_b32 s56, s56, 3"); I(f"s_bfe_u32 s44, s{SF}, 0x30002"); I("s_add_u32 s56, s56, s44")
                I(f"s_bfe_u32 s57, s{SF}, 0x10005"); I("s_lshl_b32 s57, s57, 2"); I(f"s_and_b32 s44, s{SF}, 3"); I("s_add_u32 s57, s57, s44")
                I(f"s_and_b32 s40, s{SF}, 63"); I("s_lshl_b32 s40, s40, 16")
            else:
                I(f"s_mov_b32 s56, s{SHEAD}"); I(f"s_mov_b32 s57, s{SIDX}")
                I(f"s_and_b32 s40, s{SF}, 31"); I("s_lshl_b32 s40, s40, 17")
            I(f"s_lshl_b32 s44, s{SW}, 13"); I("s_add_u32 s40, s40, s44"); I(f"s_add_u32 s40, s40, {WOT_OFF}")
            self.srd(RB, "ssmk", 2*MB); self.srd(RA, "k", 2*MB); self.srd(RC, "v", 2*MB); self.srd(RD, "shift", 4096); self.srd(RE, "wo", 4*MB)
            I("s_mov_b32 s41, 0")
            CL = self.o.get("cl", 8)
            I(f"s_lshr_b32 s40, {1 << (CL+2)}, s{SG}"); I(f"s_or_b32 s40, s40, {1 << CL}")
            I(f"s_lshl_b32 s44, 2, s{SW}"); I("s_and_b32 s44, s44, 30"); I("s_or_b32 s40, s40, s44")
            I(f"s_cmp_eq_u32 s{SW}, 0"); I(f"s_cselect_b32 s44, {(1 << 5) | (1 << (CL+4))}, 0"); I("s_or_b32 s40, s40, s44")
            if not self.o.get("noprio"):
                l = a.label("PR"); I(f"s_cmp_eq_u32 s{SG}, 1"); I(f"s_cbranch_scc0 {l}"); I("s_setprio 1"); a.L(l)
            return
        op = lambda t, c=4: (lambda: I(t), c)
        nop = lambda: None
        def loadq(va):
            for ds in range(8):
                I(f"ds_read_b128 {v(QF+4*ds,4)}, v{va} offset:{1024*ds}"); lg.issue()
        def dma4(kind):
            sm, so = (SKM, SKO) if kind == "k" else (SVM, SVO)
            def d(i):
                def f():
                    if i == 0: I(f"s_mov_b32 m0, s{sm}"); I(f"s_xor_b32 s{sm}, s{sm}, 0x8000")
                    I(f"buffer_load_dwordx4 v{VL16}, s[{RWS}:{RWS+3}], s{so} offen offset:{1024*i}{self.ld} lds")
                    if i == 3: I(f"s_add_u32 s{so}, s{so}, 0x10000")
                return (f, DC + (8 if i == 0 else 4 if i == 3 else 0))
            return [d(i) for i in range(4)]
        self.ring_n = 0
        def rd(kind, sl, idx):
            h = {}
            def f():
                slot = self.ring_n % NR; self.ring_n += 1
                h["reg"] = RING + 4*slot
                I(f"ds_read_b128 {v(h['reg'],4)}, v{VK if kind == 'k' else VV} offset:{sl*8192+idx*1024}"); h["tok"] = lg.issue()
            return f, h
        def wait_for(R, i):
            if R[i][1]["tok"] <= lg.done: return
            j = i
            while j + 1 < len(R) and j + 1 < i + WEV and "tok" in R[j+1][1] and R[j+1][1]["tok"] > R[i][1]["tok"]: j += 1
            lg.wait(R[j][1]["tok"])
        def otile(dt, qt): return O + 16*(dt >> 1) + 8*qt + 4*(dt & 1)
        def qk(sb, R, base, czero=False):
            def f(m):
                kt, qt, dd = m >> 3, (m >> 2) & 1, m & 3; i = base + 4*kt + dd
                wait_for(R, i); d = v(S[sb] + 8*qt + 4*kt, 4)
                c = ("0" if czero else v(NM + 4*qt, 4)) if dd == 0 else d
                I(f"{M16} {d}, {v(R[i][1]['reg'],4)}, {v(QF + 16*qt + 4*dd, 4)}, {c}")
            return [lambda m=m: f(m) for m in range(16)]
        def pv1(pb, dt, qt, reg): I(f"{M16} {v(otile(dt, qt),4)}, {v(reg,4)}, {v(PP[pb]+4*qt,4)}, {v(otile(dt, qt),4)}")
        def pv(pb, R, base, dts=range(8), exact=False):
            def f(dt, qt):
                if exact: lg.wait(R[base+dt][1]["tok"])
                else: wait_for(R, base + dt)
                pv1(pb, dt, qt, R[base+dt][1]["reg"])
            ls = [lambda qt=qt: I(f"{M16} {v(LS+4*qt,4)}, {v(ONES,4)}, {v(PP[pb]+4*qt,4)}, {v(LS+4*qt,4)}") for qt in range(2)]
            return ls + [lambda dt=dt, qt=qt: f(dt, qt) for dt in dts for qt in range(2)]
        def sm_ops(sb):
            ex = lambda i: op(f"v_exp_f32 v{E+(i&3)}, v{S[sb]+i}", 8)
            cv = lambda j: op(f"v_cvt_pk_bf16_f32 v{PP[sb]+j}, v{E+((2*j)&3)}, v{E+((2*j+1)&3)}")
            p = PP[sb]; L = [ex(0), ex(1)]
            ors = {2: f"v_or3_b32 v{LM}, v{p}, v{p+1}, v{p+2}", 4: f"v_or3_b32 v{LM}, v{LM}, v{p+3}, v{p+4}", 6: f"v_or3_b32 v{LM}, v{LM}, v{p+5}, v{p+6}"}
            for j in range(8):
                L += [ex(2*j+2), cv(j), ex(2*j+3)] if j < 7 else [op("s_nop 0"), cv(j)]
                if j in ors: L.append(op(ors[j]))
            L = [x for i, x in enumerate(L) if i != len(L) - 2]
            L += [op(f"v_or_b32 v{LM}, v{LM}, v{p+7}"), op(f"v_and_b32 v{LM}, s{STH}, v{LM}")]
            return L
        def sched(M, fixed, chain):
            n = len(M); fc = [sum(c for _, c in fixed.get(g, [])) for g in range(n)]
            tot = sum(c for _, c in chain); lo, hi = 0.0, 4000.0
            for _ in range(40):
                lev = (lo + hi) / 2
                if sum(max(0, lev - f) for f in fc) >= tot: hi = lev
                else: lo = lev
            k = 0; credit = 0.0
            for g in range(n):
                M[g]()
                for c, _ in fixed.get(g, []): c()
                credit += max(0, hi - fc[g])
                while k < len(chain) and (g == n - 1 or chain[k][1] <= credit + 2):
                    chain[k][0](); credit -= chain[k][1]; k += 1
        def put(fixed, g, items): fixed.setdefault(g, []).extend(items)
        SPL = self.o.get("spl", 18)
        ool = []
        def rarely(cmp_, body):
            lo = a.label("OOL"); lb = a.label("RET")
            I(cmp_); I(f"s_cbranch_scc1 {lo}"); a.L(lb)
            ool.append((lo, lb, body))
        def mask_ops(sb, koff):
            prs = [46, 48, 50, 52]; L = []
            if koff >= 64:
                L.append(op(f"v_subrev_u32 v{TMP+3}, 64, v{THR}")); tr = TMP + 3; koff -= 64
            elif koff < 0:
                L += [op(f"s_lshl_b32 s45, s{SG}, 6"), op(f"v_subrev_u32 v{TMP+3}, s45, v{THR}")]; tr = TMP + 3; koff = -koff - 1
            else: tr = THR
            for r0 in range(0, 16, 4):
                qt, kt = r0 >> 3, (r0 >> 2) & 1
                for r in range(4): L.append(op(f"v_cmp_lt_i32 s[{prs[r]}:{prs[r]+1}], v{tr}, {16*kt + r + koff - 16*qt}"))
                for r in range(4): L.append(op(f"v_cndmask_b32 v{S[sb]+r0+r}, v{S[sb]+r0+r}, v{NINF}, s[{prs[r]}:{prs[r]+1}]"))
            return L
        def mask_body(sb, koff):
            for c, _ in mask_ops(sb, koff): c()
        def xred(x, y, t0, t1, o):
            L = []
            for sw in ("v_permlane16_swap_b32", "v_permlane32_swap_b32"):
                L += [op(f"v_mov_b32 v{t0}, v{x}"), op(f"v_mov_b32 v{t1}, v{y}"), op("s_nop 0"), op(f"{sw} v{t0}, v{x}"), op(f"{sw} v{t1}, v{y}"),
                      op(f"{o} v{x}, v{x}, v{t0}"), op(f"{o} v{y}, v{y}, v{t1}")]
            return L
        def rowmax(sb):
            for qt in range(2):
                b = S[sb] + 8*qt; d = TMP + qt
                I(f"v_max3_f32 v{d}, v{b}, v{b+1}, v{b+2}"); I(f"v_max3_f32 v{d}, v{d}, v{b+3}, v{b+4}"); I(f"v_max3_f32 v{d}, v{d}, v{b+5}, v{b+6}"); I(f"v_max_f32 v{d}, v{d}, v{b+7}")
            for c, _ in xred(TMP, TMP+1, TMP+2, TMP+3, "v_max_f32"): c()
        def init_max():
            rowmax(0)
            for qt in range(2): I(f"v_max_f32 v{TMP+qt}, {f2u(-1e30)}, v{TMP+qt}"); I(f"v_add_f32 v{TMP+qt}, {f2u(BIAS)}, v{TMP+qt}")
            for r in range(8): I(f"v_sub_f32 v{NM+r}, 0, v{TMP+(r>>2)}")
            return [op(f"v_sub_f32 v{S[0]+r}, v{S[0]+r}, v{TMP+(r>>3)}") for r in range(16)]
        rare = []
        def check(sb, other=True):
            lr = a.label("RARE"); lb = a.label("BACK")
            I(f"v_cmp_ne_u32 vcc, 0, v{LM}")
            if self.o.get("a_nocheck"): I("s_mov_b64 vcc, 0")
            I(f"s_cbranch_vccnz {lr}"); a.L(lb)
            rare.append((lr, lb, sb, other))
        def fin_body():
            I(f"s_mov_b32 s{SFIN}, 2")
            I(f"v_rcp_f32 v{TMP}, v{LS}"); I(f"v_rcp_f32 v{TMP+2}, v{LS+4}"); I(f"v_mov_b32 v{TMP+1}, v{TMP}"); I(f"v_mov_b32 v{TMP+3}, v{TMP+2}")
            for r in range(4): I(f"v_mov_b64 {v(LS+2*r,2)}, 0")
            for q in range(8):
                for i in range(8*q, 8*q+8, 2): I(f"v_pk_mul_f32 {v(O+i,2)}, {v(O+i,2)}, {v(TMP+2*(q&1),2)}")
                for i in range(4): I(f"v_cvt_pk_bf16_f32 v{PK+4*q+i}, v{O+8*q+2*i}, v{O+8*q+2*i+1}")
                for i in range(8*q, 8*q+8, 2): I(f"v_mov_b64 {v(O+i,2)}, 0")
        coff = lambda q: ((q >> 1) & 1)*2048 + (q & 1)*256
        def st_body():
            I(f"s_add_u32 s44, s{SCA}, 4096"); I(f"s_mov_b32 s{SFIN}, 3")
            for q in range(8):
                I(f"buffer_store_dwordx4 {v(PK+4*q,4)}, v{VSC}, s[{RWS}:{RWS+3}], s{SCA if q < 4 else 44} offen offset:{coff(q)}{self.st}")
        TR = [RING + 4*(2+i) for i in range(6)]
        def head(R, vmw, with_mfma=True, post=(), more=()):
            rf = [(f, 4) for f, h in R]; sm2 = sm_ops(0)[SPL:]
            M = [lambda dt=dt, qt=qt: pv1(1, dt, qt, TR[dt-2]) for dt in range(2, 8) for qt in range(2)] if with_mfma else [nop]*12
            if with_mfma: I("s_waitcnt lgkmcnt(4)")
            nb = self.o.get("nb", 4); more = list(more); m0 = len(more) // 3
            sched(M[:4], {}, sm2[:nb] + more[:m0])
            vmw(); I("s_waitcnt lgkmcnt(0)"); lg.mark_all_done(); self.barrier(); self.ring_n = 0
            fx = {0: rf[0:2], 1: rf[2:4], 2: rf[4:5], 4: rf[5:6], 6: rf[6:7], 7: [(nop, 8 + 8*len(post))]}
            sched(M[4:], fx, sm2[nb:] + more[m0:])
            check(0)
            for p in post: p()
        def mk_reads():
            return ([rd("k", 0, i) for i in range(8)] + [rd("v", 0, i) for i in range(8)] +
                    [rd("k", 1, i) for i in range(8)] + [rd("v", 1, i) for i in range(8)])
        def last_use(F):
            b = (0, 18, 34, 52)[F >> 3]; f = F & 7
            return b + (2*f + 1 if (F >> 3) & 1 else 8*(f >> 2) + 4 + (f & 3))
        def mid(R, dmas, kx, mb=None, trans=False, endops=(), early=(), g=0):
            rf = [(f, 4) for f, h in R]
            fa = {0: [rf[7]]}; fb = {}
            G_ = g
            for g, e in zip((1, 3, 9, 11), early): put(fa, g, [e])
            for F in range(8, 32):
                g = last_use(F - 8) + 1
                put(fa, g, [rf[F]]) if g < 34 else put(fb, g - 34, [rf[F]])
            D = sum((dma4(k) for k in dmas), [])
            st_ = self.o.get("gst", 4); of_ = self.o.get("gof", 2)
            gaps = [2 + of_*G_*2 + 2*st_*n for n in range(4)] if len(D) == 4 else [2 + of_*G_ + st_*n for n in range(8)]
            for g, d in zip(gaps, D): put(fa, g, [d]) if g < 33 else put(fb, g - 33, [d])
            put(fa, 33, [(nop, 16)])
            sched(qk(0, R, 0, trans) + pv(0, R, 8), fa, sm_ops(1))
            check(1, other=not trans)
            if mb: mb()
            pre = []
            if trans:
                I(f"s_mov_b32 s{SFIN}, 1")
                pre = init_max()
            put(fb, 18, [op(f"v_xor_b32 v{VV}, 0x10000, v{VK}")] + kx)
            for n, e in enumerate(endops): put(fb, 11 - n, [e])
            put(fb, 21, [(nop, 12)])
            sched(qk(1, R, 16) + pv(1, R, 24, range(2)), fb, pre + sm_ops(0)[:SPL])
            assert [R[26+i][1]["reg"] for i in range(6)] == TR
        vm4 = lambda: I("s_waitcnt vmcnt(4)")
        def vm08():
            lo = a.label("W8"); lb = a.label("W8R")
            I(f"s_cmp_eq_u32 s{SFIN}, 3"); I(f"s_cbranch_scc1 {lo}"); I("s_waitcnt vmcnt(0)"); a.L(lb)
            def b(): I("s_waitcnt vmcnt(8)"); I(f"s_mov_b32 s{SFIN}, 4")
            ool.append((lo, lb, b))
        m1 = lambda sb, ko: (lambda: rarely(f"s_cmp_eq_u32 s{SC1}, s{SM1}", lambda: mask_body(sb, ko)))
        fin = lambda: rarely(f"s_cmp_eq_u32 s{SFIN}, 1", fin_body)
        sta = (lambda: rarely(f"s_cmp_eq_u32 s{SFIN}, 2", st_body), 8)
        KR, VR, SH, WO, AD = 16, 23, 28, 32, 40
        def side_loads():
            L = []; E = lambda t: L.append(op(t)); V = lambda t: L.append(op(t, DC))
            E(f"v_lshrrev_b32 v{AD}, 5, v0"); E(f"v_and_b32 v{AD+1}, 31, v0"); E(f"v_lshlrev_b32 v{AD+2}, 12, v{AD}"); E(f"v_lshl_add_u32 v{AD+2}, v{AD+1}, 2, v{AD+2}")
            E(f"s_lshr_b32 s60, s{SF}, 1"); E("s_lshl_b32 s60, s60, 15"); E(f"s_and_b32 s61, s{SF}, 1"); E("s_lshl_b32 s61, s61, 13"); E("s_add_u32 s60, s60, s61")
            E(f"s_lshl_b32 s61, s{SW}, 7"); E("s_add_u32 s60, s60, s61"); E("s_add_u32 s61, s60, 16384")
            for j in range(8): V(f"buffer_load_dword v{WO+j}, v{AD+2}, s[{RE}:{RE+3}], s{60+(j>>2)} offen offset:{1024*(j&3)}")
            E("s_lshr_b32 s62, s2, 3"); E("s_lshl_b32 s62, s62, 16"); E(f"s_lshl_b32 s63, s{SW}, 13"); E("s_add_u32 s62, s62, s63")
            E("s_and_b32 s63, s2, 7"); E("s_lshl_b32 s63, s63, 7"); E("s_add_u32 s62, s62, s63"); E(f"v_add_u32 v{AD+3}, s62, v{AD+2}")
            for i in range(3): E(f"v_subrev_u32 v{AD+4+i}, {3072-1024*i}, v{AD+3}")
            E("s_lshl_b32 s63, s63, 2"); E(f"v_lshl_add_u32 v{AD+7}, v{AD+1}, 4, s63")
            for i in range(3): V(f"buffer_load_dword v{KR+i}, v{AD+4+i}, s[{RA}:{RA+3}], 0 offen")
            for i in range(4): V(f"buffer_load_dword v{KR+3+i}, v{AD+3}, s[{RA}:{RA+3}], 0 offen offset:{1024*i}")
            for i in range(4): V(f"buffer_load_dword v{VR+i}, v{AD+3}, s[{RC}:{RC+3}], 0 offen offset:{1024*i}")
            V(f"buffer_load_dwordx4 {v(SH,4)}, v{AD+7}, s[{RD}:{RD+3}], 0 offen")
            return L
        NSL = 21
        def side_math():
            L = []; E = lambda t: L.append(op(t)); V = lambda t: L.append(op(t, DC))
            W2 = 48
            E("s_mov_b32 s60, 0x05040100"); E("s_mov_b32 s61, 0x07060302")
            for j in range(4): E(f"v_perm_b32 v{W2+j}, v{WO+2*j+1}, v{WO+2*j}, s60")
            for j in range(4): E(f"v_perm_b32 v{W2+4+j}, v{WO+2*j+1}, v{WO+2*j}, s61")
            E(f"s_lshl_b32 s60, s{SW}, 8"); E(f"s_add_u32 s60, s60, s{SF}"); E("s_lshl_b32 s60, s60, 11"); E(f"s_add_u32 s60, s60, {WOT_OFF}")
            for mt in range(2): V(f"buffer_store_dwordx4 {v(W2+4*mt,4)}, v{VL16}, s[{RWS}:{RWS+3}], s60 offen offset:{1024*mt}{self.st}")
            KU, SU, OO, VU, PQ = 32, 42, 48, 39, 52
            for c in range(2):
                def unp(d, sreg, half): E(f"v_lshlrev_b32 v{d}, 16, v{sreg}" if half == 0 else f"v_and_b32 v{d}, 0xffff0000, v{sreg}")
                for i in range(7): unp(KU+i, KR+i, c)
                for j in range(4): unp(SU+j, SH + 2*c + (j >> 1), j & 1)
                for o in range(4):
                    E(f"v_mul_f32 v{OO+o}, v{KU+o}, v{SU+3}")
                    for j in (2, 1, 0): E(f"v_fmac_f32 v{OO+o}, v{KU+o+3-j}, v{SU+j}")
                    unp(VU, VR+o, c)
                    E(f"v_mul_f32 v{OO+o}, v{OO+o}, v{VU}")
                d = PQ + 2*(1-c)
                E(f"v_cvt_pk_bf16_f32 v{d}, v{OO+3}, v{OO+2}"); E(f"v_cvt_pk_bf16_f32 v{d+1}, v{OO+1}, v{OO}")
            E(f"v_lshlrev_b32 v{AD+1}, 5, v{AD+1}"); E(f"v_lshl_add_u32 v{AD+1}, v{AD}, 4, v{AD+1}")
            E(f"v_permlane32_swap_b32 v{PQ+2}, v{PQ}"); E(f"v_permlane32_swap_b32 v{PQ+3}, v{PQ+1}")
            E("s_lshr_b32 s60, s2, 3"); E("s_lshl_b32 s60, s60, 16"); E(f"s_lshl_b32 s61, s{SW}, 13"); E("s_add_u32 s60, s60, s61")
            E("s_and_b32 s61, s2, 7"); E("s_lshl_b32 s61, s61, 10"); E("s_add_u32 s60, s60, s61"); E(f"s_add_u32 s60, s60, {KVT_OFF}")
            V(f"buffer_store_dwordx4 {v(PQ,4)}, v{AD+1}, s[{RWS}:{RWS+3}], s60 offen{self.st}")
            return L
        CL = self.o.get("cl", 8)
        def touch(k):
            if k in (1, 2):
                I(f"s_lshr_b32 s60, s{SF}, 1"); I("s_lshl_b32 s60, s60, 15"); I(f"s_and_b32 s61, s{SF}, 1"); I("s_lshl_b32 s61, s61, 13"); I("s_add_u32 s60, s60, s61")
                if k == 2: I("s_add_u32 s60, s60, 16384")
                I("v_lshlrev_b32 v16, 7, v0"); r = RE
            elif k in (3, 4):
                I("s_lshr_b32 s60, s2, 3"); I("s_lshl_b32 s60, s60, 16"); I("s_and_b32 s61, s2, 7"); I("s_lshl_b32 s61, s61, 7"); I("s_add_u32 s60, s60, s61")
                I("v_lshlrev_b32 v16, 10, v0"); r = RA if k == 3 else RC
            else:
                I(f"s_lshl_b32 s60, s{SF}, 13"); I("v_lshlrev_b32 v16, 7, v0"); r = RB
            I(f"buffer_load_dword v1, v16, s[{r}:{r+3}], s60 offen")
        LSITE = a.label("SITE")
        def site_code():
            a.L(LSITE)
            def ret(): I("s_nop 1"); I("s_setpc_b64 s[76:77]")
            l = a.label("SN"); I(f"s_cmp_lg_u32 s41, {CL}"); I(f"s_cbranch_scc1 {l}")
            for c, _ in side_loads(): c()
            ret(); a.L(l)
            l = a.label("SN"); I(f"s_add_u32 s44, s41, s{SG}"); I(f"s_cmp_lg_u32 s44, {CL+2}"); I(f"s_cbranch_scc1 {l}")
            for c, _ in side_math(): c()
            ret(); a.L(l)
            for k in range(1, 6):
                l = a.label("SN")
                I(f"s_cmp_lg_u32 s41, {k}"); I(f"s_cbranch_scc1 {l}")
                touch(k); ret(); a.L(l)
            I(f"s_lshl_b32 s44, s{SF}, 2"); I(f"s_add_u32 s44, s44, {FY_OFF}")
            sv = self.save(); self.publish(44, 2); self.restore(sv)
            ret()
        def spf():
            I("s_add_u32 s41, s41, 1"); rarely("s_bitcmp1_b32 s40, s41", lambda: I(f"s_call_b64 s[76:77], {LSITE}"))
        spub = (spf, 12)
        def snap():
            I(f"s_mov_b32 s61, {FY_OFF}"); I(f"buffer_load_dwordx4 v[52:55], v{VL16}, s[{RWS}:{RWS+3}], s61 offen sc1")
        def side_check():
            lo = a.label("SCK"); lb = a.label("SCR")
            def test():
                I("v_and_b32 v52, v52, v53"); I("v_and_b32 v54, v54, v55"); I("v_and_b32 v52, v52, v54"); I("v_and_b32 v52, 2, v52"); I("v_cmp_ne_u32 vcc, 2, v52")
            test(); I(f"s_cbranch_vccnz {lo}"); a.L(lb)
            def spin():
                lp = a.label("SPL")
                I("s_mov_b32 s99, 20000"); a.L(lp)
                I("s_sleep 2"); I(f"buffer_load_dwordx4 v[52:55], v{VL16}, s[{RWS}:{RWS+3}], s61 offen sc1"); I("s_waitcnt vmcnt(0)")
                test(); I(f"s_cbranch_vccz {lb}")
                I("s_sub_u32 s99, s99, 1"); I("s_cmp_lg_u32 s99, 0"); I(f"s_cbranch_scc1 {lp}")
            ool.append((lo, lb, spin))
        m2 = lambda sb, ko: (lambda: rarely(f"s_cmp_eq_u32 s{SC2}, 0", lambda: (snap(), mask_body(sb, ko))))
        LEV = a.label("EVEN"); LODM = a.label("ODDM"); LTRANS = a.label("TRANS"); LP2 = a.label("P2"); LP2B = a.label("P2B"); LDRAIN = a.label("DRAIN")
        self.stamp(8)
        self.ring_n = 0
        R = [rd("k", 0, i) for i in range(8)] + [rd("k", 1, i) for i in range(8)]
        def qrd(i):
            I(f"ds_read_b128 {v(QF+4*i,4)}, v{TMP+1} offset:{1024*i}"); return lg.issue()
        for i in range(4): qrd(i); R[i][0]()
        for i in range(4, 8): tq = qrd(i)
        D = dma4("v") + dma4("k")
        fx = {g: [(R[4+g][0], 4)] for g in range(4)}
        put(fx, 3, [(lambda: lg.wait(tq), 4)])
        for F in range(8, 15): put(fx, last_use(F - 8) + 1, [(R[F][0], 4)])
        for n, d in enumerate(D): put(fx, 2*n, [d])
        sched(qk(0, R, 0, True), fx, [])
        m1(0, 0)()
        pre = init_max()
        fx = {0: [(R[15][0], 4)], 8: [op(f"v_xor_b32 v{VV}, 0x10000, v{VK}"), op(f"v_xor_b32 v{VK}, 0x4000, v{VK}")]}
        sched(qk(1, R, 8), fx, pre + sm_ops(0)[:SPL])
        R = mk_reads()
        head(R, vm4, False, post=[m1(1, 32)])
        svm = self.save()
        self.stamp(9)
        LOD = [a.label("ODD0"), a.label("ODD1")]
        I(f"s_cmp_eq_u32 s{SG}, 1"); I(f"s_cbranch_scc1 {LOD[1]}"); I(f"s_branch {LOD[0]}")
        vm0 = lambda: I("s_waitcnt vmcnt(0)")
        def loops(g):
            LEV = a.label("EVEN"); LP2 = a.label("P2")
            mm = (lambda sb, ko: m1(sb, ko)) if g else (lambda sb, ko: None)
            a.L(LEV)
            R = mk_reads(); head(R, vm4)
            mid(R, "k", [op(f"v_xor_b32 v{VK}, 0x4000, v{VK}")], mb=mm(0, 0), early=[spub], g=g)
            R = mk_reads(); head(R, vm4, post=[m1(1, 32)] if g else [])
            assert self.lg.issued - self.lg.done == svm[2] - svm[3]
            a.L(LOD[g])
            mid(R, "v", [op(f"v_xor_b32 v{VK}, 0xc000, v{VK}")], mb=mm(0, 64), endops=[op(f"s_sub_u32 s{SC1}, s{SC1}, 1")], early=[spub], g=g)
            I(f"s_cmp_lg_u32 s{SC1}, -1"); I(f"s_cbranch_scc1 {LEV}")
            self.stamp(14)
            if g:
                loadq(VQ); I("s_waitcnt lgkmcnt(0)"); I(f"v_xor_b32 v{VK}, 0x4000, v{VK}")
            R = mk_reads(); head(R, vm4, more=mask_ops(1, 96) if g else ())
            mid(R, "k", [op(f"v_xor_b32 v{VK}, 0x8000, v{VK}")], mb=m2(0, -1), trans=bool(g), early=[spub], g=g)
            self.stamp(15)
            I(f"s_cmp_eq_u32 s{SC2}, 0"); I(f"s_cbranch_scc1 {LDRAIN}")
            a.L(LP2)
            R = mk_reads(); head(R, vm08 if g else vm0)
            mid(R, "kv", [op(f"v_xor_b32 v{VK}, 0x8000, v{VK}")], mb=m2(0, -1), endops=[sta] if g else [],
                early=[spub] + ([(fin, 8)] if g else []) + [op(f"s_sub_u32 s{SC2}, s{SC2}, 1")], g=g)
            I(f"s_cmp_lg_u32 s{SC2}, 0"); I(f"s_cbranch_scc1 {LP2}")
        loops(1); I(f"s_branch {LDRAIN}")
        loops(0)
        a.L(LDRAIN)
        self.stamp(10)
        R2 = [rd("v", 0, i) for i in range(8)] + [rd("v", 1, i) for i in range(8)]
        rf = [(f, 4) for f, h in R2]
        ts, ts2, ts3 = self.tail_setup()
        tsa = [x for x in ts if x[1] == 4]; tsl = [x for x in ts if x[1] != 4]
        for c, _ in tsa[:11]: c()
        head(R2, lambda: (vm08(), side_check(), [c() for c, _ in tsl]), post=[fin, sta[0]], more=mask_ops(1, -33))
        ts = tsa[11:]
        pre = []; E_ = lambda t: pre.append(op(t))
        E_(f"s_add_u32 s44, s{SWK}, {ML}"); E_(f"v_add_u32 v54, s44, v{VL16}")
        E_(f"s_lshl_b32 s46, s{SW}, 13"); E_(f"v_add_u32 v55, s46, v{VL16}")
        E_(f"s_sub_u32 s54, 15, s{SIDX}"); E_(f"s_lshl_b32 s54, s54, 2"); E_(f"s_add_u32 s54, s54, s{SR}"); E_("s_lshl_b32 s54, s54, 5"); E_(f"s_add_u32 s54, s54, s{SHEAD}")
        E_("s_lshl_b32 s54, s54, 13"); E_(f"s_lshl_b32 s44, s{SG}, 12"); E_("s_add_u32 s54, s54, s44"); E_(f"s_add_u32 s54, s54, {CTX_OFF}")
        def lsum():
            def wml():
                I(f"ds_write_b128 v54, {v(150,4)}"); lg.issue()
            return [op(f"v_mov_b32 v150, v{NM}"), op(f"v_mov_b32 v{LS+1}, v{LS+4}"), (wml, 4)]
        def osend(g, i):
            def f():
                I(f"ds_write_b128 v55, {v(O+32*(1-g)+4*i,4)} offset:{1024*i}"); lg.issue()
            return (f, 16)
        lj = a.label("MGJ"); LMG = [a.label("MG0"), a.label("MG1")]; LFB = a.label("FB1"); LSK = a.label("SKIP"); LS1 = a.label("SK1")
        I(f"s_lshl_b32 s45, s{SG}, 1"); I(f"s_sub_u32 s45, s{SR}, s45"); I("s_cmp_lt_i32 s45, 1"); I(f"s_cbranch_scc1 {LSK}")
        svd = self.save(); rnd = self.ring_n
        setup_ = ts + pre + ts3; n8 = (len(setup_) + 15) // 16
        fx = {g: setup_[g*n8:(g+1)*n8] for g in range(16)}
        for F in range(7, 15): put(fx, 2*(F - 7) + (2 if F > 7 else 0), [rf[F]])
        sched(pv(0, R2, 0), fx, sm_ops(1))
        check(1)
        rf[15][0]()
        I(f"s_cmp_eq_u32 s{SG}, 1"); I(f"s_cbranch_scc1 {LFB}")
        sv2 = self.save(); PR = 64
        for g in (0, 1):
            if g: a.L(LFB); self.restore(sv2)
            own = O + 32*g; snd = O + 32*(1-g)
            dts = list(range(4*(1-g), 4*(1-g)+4)) + list(range(4*g, 4*g+4))
            fx = {10 + i: [osend(g, i)] for i in range(8)}
            put(fx, 8, lsum())
            sched(pv(1, R2, 8, dts, True), fx, self.tail_valu())
            a.L(LMG[g])
            I(f"v_xor_b32 v54, 0x1c00, v54"); I(f"v_xor_b32 v55, 0xe000, v55")
            I("s_waitcnt lgkmcnt(0)"); lg.mark_all_done(); self.barrier()
            I(f"ds_read_b128 {v(96,4)}, v54"); t0 = lg.issue()
            tk = []
            for i in range(8):
                I(f"ds_read_b128 {v(PR+4*i,4)}, v55 offset:{1024*i}"); tk.append(lg.issue())
            lg.wait(t0)
            for q in range(2):
                I(f"v_min_f32 v100, v{150+q}, v{96+q}"); I(f"v_sub_f32 v101, v100, v{150+q}"); I(f"v_sub_f32 v102, v100, v{96+q}")
                I("v_exp_f32 v101, v101"); I("v_exp_f32 v102, v102")
                I(f"v_mul_f32 v103, v101, v{LS+q}"); I(f"v_fmac_f32 v103, v102, v{98+q}"); I("v_rcp_f32 v103, v103")
                b = 104 + 4*q
                I(f"v_mul_f32 v{b}, v101, v103"); I(f"v_mul_f32 v{b+1}, v101, v103"); I(f"v_mul_f32 v{b+2}, v102, v103"); I(f"v_mul_f32 v{b+3}, v102, v103")
            tw = self.tail_writes()
            for q in range(4):
                b = 104 + 4*(q & 1)
                for i in range(8*q, 8*q+8, 2): I(f"v_pk_mul_f32 {v(own+i,2)}, {v(own+i,2)}, {v(b,2)}")
                lg.wait(tk[2*q+1])
                for c in tw[3*q:3*q+3]: c()
                for i in range(8*q, 8*q+8, 2): I(f"v_pk_fma_f32 {v(own+i,2)}, {v(PR+i,2)}, {v(b+2,2)}, {v(own+i,2)}")
                for i in range(4): I(f"v_cvt_pk_bf16_f32 v{snd+4*q+i}, v{own+8*q+2*i}, v{own+8*q+2*i+1}")
                I(f"buffer_store_dwordx4 {v(snd+4*q,4)}, v{VSC}, s[{RWS}:{RWS+3}], s54 offen offset:{coff(q)}{self.st}"); self.tctx = vm.issue()
            if not g: I(f"s_branch {lj}")
        def skip_path():
            keep = self.save(); tctx = self.tctx; th = self.th
            a.L(LSK); self.restore(svd); self.ring_n = rnd
            I("s_cmp_lt_i32 s45, 0"); I(f"s_cbranch_scc1 {LS1}")
            rf[7][0]()
            for f in pv(0, R2[:8], 0): f()
            a.L(LS1)
            for c, _ in setup_ + lsum() + self.tail_valu(): c()
            l1 = a.label("SG1"); I(f"s_cmp_eq_u32 s{SG}, 1"); I(f"s_cbranch_scc1 {l1}")
            for g in (0, 1):
                if g: a.L(l1)
                for i in range(8): osend(g, i)[0]()
                I(f"s_branch {LMG[g]}")
            self.restore(keep); self.tctx = tctx; self.th = th
        a.L(lj)
        I("s_setprio 0")
        self.stamp(4)
        def cold():
            skip_path()
            site_code()
            for (lo, lb, body) in ool:
                a.L(lo); body(); I(f"s_branch {lb}")
            for (lr, lb, sb, other) in rare:
                a.L(lr)
                I("s_nop 15")
                rowmax(sb)
                for q in range(2): I(f"v_add_f32 v{TMP+q}, {f2u(BIAS)}, v{TMP+q}"); I(f"v_max_f32 v{TMP+q}, 0, v{TMP+q}"); I(f"v_exp_f32 v{TMP+2+q}, -v{TMP+q}")
                for r in range(8): I(f"v_sub_f32 v{NM+r}, v{NM+r}, v{TMP+(r>>2)}")
                for r in range(16): I(f"v_sub_f32 v{S[sb]+r}, v{S[sb]+r}, v{TMP+(r>>3)}")
                if other:
                    for r in range(16): I(f"v_sub_f32 v{S[1-sb]+r}, v{S[1-sb]+r}, v{TMP+(r>>3)}")
                for r in range(64): I(f"v_mul_f32 v{O+r}, v{O+r}, v{TMP+2+((r>>3)&1)}")
                for r in range(8): I(f"v_mul_f32 v{LS+r}, v{LS+r}, v{TMP+2+(r>>2)}")
                for c, _ in sm_ops(sb): c()
                I("s_nop 1"); I(f"s_branch {lb}")
        self.attn_rare = cold

    HB = 65536; HC = 4416; XB = 136192; YB = 148480
    SC, SJ, SB, SCH, SHB_, SWO, SCX = 34, 35, 36, 37, 38, 39, 40
    WS_ = [16, 24, 32, 40, 176, 184, 56, 80, 88, 96, 104, 144, 152, 160]
    CS_ = [168, 112, 120, 128, 136, 64, 72]
    NL = 4
    def tail_setup(self):
        I = self.I; L = []; E = lambda t: L.append((lambda: I(t), 4))
        SC, SJ, SB, SCH, SHB_, SWO, SCX = self.SC, self.SJ, self.SB, self.SCH, self.SHB_, self.SWO, self.SCX
        self.wtok = {}; self.wslot = dict(enumerate(self.WS_))
        E(f"s_lshr_b32 s{SC}, s{SW}, 2"); E(f"s_and_b32 s{SJ}, s{SW}, 3")
        E(f"s_lshl_b32 s{SCH}, s{SF}, 1"); E(f"s_add_u32 s{SCH}, s{SCH}, s{SC}"); E(f"s_lshl_b32 s{SCH}, s{SCH}, 12")
        E(f"s_lshl_b32 s60, s{SJ}, 10"); E("v_add_u32 v50, s60, v6"); E("v_subrev_u32 v51, 16, v50")
        E(f"s_lshr_b32 s60, s{SCH}, 8"); E(f"s_add_u32 s60, s60, {KVT_OFF}"); E("v_lshlrev_b32 v49, 9, v50")
        def ld(t):
            def f(): I(t); self.th = self.vm.issue()
            L.append((f, 16))
        ld(f"buffer_load_dwordx4 {v(160,4)}, v51, s[{RB}:{RB+3}], s{SCH} offen")
        ld(f"buffer_load_dwordx4 {v(164,4)}, v50, s[{RB}:{RB+3}], s{SCH} offen")
        ld(f"buffer_load_dwordx4 {v(168,4)}, v49, s[{RWS}:{RWS+3}], s60 offen{self.ld}")
        E(f"s_lshl_b32 s{SWO}, s57, 19" if not self.o.get("samew") else f"s_mov_b32 s{SWO}, 0"); E(f"s_lshl_b32 s60, s{SW}, 16"); E(f"s_add_u32 s{SWO}, s{SWO}, s60"); E(f"s_add_u32 s{SWO}, s{SWO}, {WOT_OFF}")
        L2 = [(lambda i=i: self.wload(i), 36) for i in range(self.o.get("we", 0))]
        L3 = []; L, Lx = L3, L
        E = lambda t: L3.append((lambda: I(t), 4))
        E(f"s_mul_i32 s{SB}, s{SC}, 6144"); E(f"s_add_u32 s{SB}, s{SB}, {self.XB}")
        E(f"s_mul_i32 s{SHB_}, s{SC}, {8*self.HC}"); E(f"s_add_u32 s{SHB_}, s{SHB_}, {self.HB}")
        E(f"s_lshl_b32 s{SCX}, s56, 19" if not self.o.get("samec") else f"s_mov_b32 s{SCX}, 0"); E(f"s_lshl_b32 s60, s{SW}, 15"); E(f"s_add_u32 s{SCX}, s{SCX}, s60"); E(f"s_add_u32 s{SCX}, s{SCX}, {CTX_OFF}")
        return Lx, L2, L3
    def wreg(self, i):
        return self.WS_[i % len(self.WS_)]
    def wload(self, i):
        I = self.I; r = self.wslot[i]
        I(f"s_add_u32 s61, s{self.SWO}, {i*2048}")
        for mt in range(2):
            I(f"buffer_load_dwordx4 {v(r+4*mt,4)}, v6, s[{RWS}:{RWS+3}], s61 offen offset:{mt*1024}{self.ld}"); self.wtok[i] = self.vm.issue()
    def tail_valu(self):
        I = self.I; HC = self.HC; L = []; E = lambda t: L.append((lambda: I(t), 4))
        SJ, SB, SHB_ = self.SJ, self.SB, self.SHB_
        Ee, Eo, Oe, Oo = 160, 113, 122, 131
        E(f"s_add_u32 s60, s{SHB_}, 64"); E("v_add_u32 v138, s60, v50")
        E("v_and_b32 v51, 3, v0"); E("v_mul_u32_u24 v139, 1536, v51"); E("v_lshrrev_b32 v53, 6, v50"); E("v_lshl_add_u32 v139, v53, 4, v139")
        E(f"s_add_u32 s60, s{SB}, 512"); E("v_add_u32 v139, s60, v139")
        for r in range(2): E(f"v_mov_b64 {v(172+2*r,2)}, 0")
        E("v_bfe_u32 v140, v0, 2, 3"); E(f"v_mul_u32_u24 v140, {HC}, v140"); E("v_lshl_add_u32 v140, v51, 4, v140"); E(f"v_add_u32 v140, s{SHB_}, v140")
        E(f"s_mul_i32 s60, s{SJ}, 1536"); E(f"s_add_u32 s60, s60, s{SB}"); E("v_lshl_add_u32 v141, v0, 3, s60")
        E("s_waitcnt vmcnt(1)")
        for k in range(7): E(f"v_alignbit_b32 v{Oe+k}, v{Ee+k+1}, v{Ee+k}, 16")
        for k in range(1, 7): E(f"v_alignbit_b32 v{Oo+k}, v{Ee+k+1}, v{Ee+k}, 16")
        for k in range(1, 7): E(f"v_mov_b32 v{Eo+k}, v{Ee+k}")
        return L
    def tail_writes(self):
        I = self.I; lg = self.lg; HC = self.HC; L = []
        Ee, Eo, Oe, Oo = 160, 113, 122, 131
        def W(t, pre=None):
            def f():
                if pre: pre()
                I(t); lg.issue()
            L.append(f)
        for r in range(8):
            sft = 1 + r; k = sft >> 1
            base = ((Oe, Oo) if sft & 1 else (Ee, Eo))[k & 1]
            W(f"ds_write_b128 v138, {v(base+k,4)} offset:{r*HC}")
        W(f"ds_write_b128 v140, {v(172,4)}"); W(f"ds_write_b64 v141, {v(172,2)}")
        W(f"ds_write_b128 v139, {v(168,4)}", lambda: self.vm.wait(self.th))
        return L
    def tailp(self):
        a = self.a; I = self.I; vm = self.vm; lg = self.lg
        HB, HC, YB = self.HB, self.HC, self.YB
        SC, SJ, SB, SCH, SHB_, SWO, SCX = self.SC, self.SJ, self.SB, self.SCH, self.SHB_, self.SWO, self.SCX
        ACC = 192; FRS = [224, 240, 64]; RD_ = 224
        VL16, VA, VB, T, VP, VPA, VO, GR, VLW, XR = 6, 4, 5, 12, 7, 8, 9, 10, 11, 48
        OACC = 192
        NW, NCX, NL = len(self.WS_), len(self.CS_), self.o.get("nl", 0)
        wtok = self.wtok; ctok = {}; wslot = self.wslot; cslot = dict(enumerate(self.CS_))
        I(f"s_lshr_b32 s53, s56, 1"); I("s_lshl_b32 s53, s53, 10"); I(f"s_lshl_b32 s44, s{SW}, 7"); I("s_add_u32 s53, s53, s44"); I(f"s_add_u32 s53, s53, {FC_OFF}")
        I(f"v_and_b32 v{VPA}, 3, v0"); I(f"v_lshlrev_b32 v{VPA}, 2, v{VPA}")
        P0 = self.o.get("p0", 0)
        tc0 = self.poll_issue(VP, VPA, "s53") if P0 else self.tctx
        PUBN = self.o.get("pubn", 1)
        I(f"s_lshr_b32 s45, s{SHEAD}, 2"); I("s_lshl_b32 s45, s45, 7"); I(f"s_and_b32 s44, s{SHEAD}, 3"); I("s_lshl_b32 s44, s44, 2"); I("s_add_u32 s45, s45, s44")
        I(f"s_sub_u32 s44, 15, s{SIDX}"); I("s_lshl_b32 s44, s44, 10"); I("s_add_u32 s46, s44, s45"); I(f"s_add_u32 s46, s46, {FC_OFF}")
        I(f"s_lshl_b32 s44, s{SIDX}, 10"); I("s_add_u32 s47, s44, s45"); I(f"s_add_u32 s47, s47, {FC_OFF}")
        self.srd(RC, "out", 2*MB); self.srd(RD, "q", 2*MB)
        I(f"s_lshl_b32 s44, s{SF}, 2"); I(f"s_load_dword s55, s[{P['ssmD']}:{P['ssmD']+1}], s44")
        I(f"v_and_b32 v{T}, 31, v0"); I(f"v_lshrrev_b32 v{T+1}, 5, v0")
        I(f"v_and_b32 v{T+2}, 7, v0"); I(f"v_mul_u32_u24 v{VA}, {HC}, v{T+2}")
        I(f"v_bfe_u32 v{T+2}, v0, 3, 2"); I(f"v_sub_u32 v{T+2}, v{T+2}, v{T+1}"); I(f"v_lshl_add_u32 v{VA}, v{T+2}, 4, v{VA}")
        I(f"s_lshl_b32 s43, s{SJ}, 9"); I(f"s_add_u32 s43, s43, s{SHB_}"); I("s_add_u32 s43, s43, 32"); I(f"v_add_u32 v{VA}, s43, v{VA}")
        I(f"s_lshl_b32 s43, s{SJ}, 7"); I(f"s_sub_u32 s43, s{SB}, s43"); I("s_add_u32 s43, s43, 400")
        I(f"v_lshl_add_u32 v{VB}, v{T}, 4, s43"); I(f"v_mul_u32_u24 v{T+2}, 1536, v{T+1}"); I(f"v_add_u32 v{VB}, v{VB}, v{T+2}")
        I(f"s_lshl_b32 s51, s{SW}, 13"); I(f"v_add_u32 v{VLW}, s51, v{VL16}")
        I("s_waitcnt lgkmcnt(0)"); lg.mark_all_done(); self.barrier()
        self.stamp(5)
        def cload(i):
            r = cslot[i]
            I(f"s_add_u32 s62, s{SCX}, {(i//4)*4096}"); I("s_add_u32 s63, s62, 0x40000")
            for st in range(2):
                I(f"buffer_load_dwordx4 {v(r+4*st,4)}, v{VL16}, s[{RWS}:{RWS+3}], s{62+st} offen offset:{(i%4)*1024}{self.ld}"); ctok[i] = vm.issue()
        ltok = {}
        def lstage(j):
            I(f"s_add_u32 m0, s51, {j*2048}"); I(f"s_add_u32 s61, s{SWO}, {(NW+j)*2048}")
            for mt in range(2):
                I(f"buffer_load_dwordx4 v{VL16}, s[{RWS}:{RWS+3}], s61 offen offset:{mt*1024}{self.ld} lds"); ltok[j] = vm.issue()
        def early(lo, hi, level):
            le = a.label("NE")
            I(f"s_cmp_lg_u32 s50, {level}"); I(f"s_cbranch_scc1 {le}")
            sv = self.save()
            for i in range(lo, hi): cload(i)
            self.restore(sv); I(f"s_mov_b32 s50, {level+1}")
            a.L(le)
        def seen():
            I(f"v_and_b32 v{VP}, 1, v{VP}"); I(f"v_cmp_ne_u32 vcc, 1, v{VP}"); I("s_cmp_eq_u64 vcc, 0"); I("s_cselect_b32 s52, 1, 0"); I("s_max_u32 s50, s50, s52")
        I("s_mov_b32 s50, 0")
        wl = [lambda i=i: self.wload(i) for i in range(NW) if i not in wtok] + [lambda j=j: lstage(j) for j in range(NL)]
        steps = [(dd, ks) for dd in range(8) for ks in range(2)]
        toks = {}
        def reads(n):
            dd, ks = steps[n]; b = FRS[n % 3]
            def r(k, reg, addr, off):
                def f():
                    I(f"ds_read_b128 {v(reg,4)}, v{addr} offset:{off}"); toks[(n, k)] = lg.issue()
                return f
            return [r(0, b, VA, 64*dd + 32*(1-ks)), r(1, b+4, VB, ks*3072 + (7-dd)*16),
                    r(2, b+8, VB, ks*3072 + (7-dd)*16 + 512), r(3, b+12, VA, 64*dd + 32*(1-ks) + 2048)]
        for n in range(2):
            for f in reads(n): f()
        for n in range(16):
            b = FRS[n % 3]; L = reads(n+2) if n + 2 < 16 else []
            c0 = "0" if n == 0 else v(ACC,16); c1 = "0" if n == 0 else v(ACC+16,16)
            lg.wait(toks[(n,1)]); I(f"{MFMA} {v(ACC,16)}, {v(b,4)}, {v(b+4,4)}, {c0}")
            for f in L[0:2]: f()
            lg.wait(toks[(n,2)]); I(f"{MFMA} {v(ACC+16,16)}, {v(b,4)}, {v(b+8,4)}, {c1}")
            for f in L[2:3]: f()
            lg.wait(toks[(n,3)]); I(f"{MFMA} {v(ACC+16,16)}, {v(b+12,4)}, {v(b+4,4)}, {v(ACC+16,16)}")
            for f in L[3:4]: f()
            if n == PUBN:
                vm.wait(tc0); self.barrier(); self.publish(46); self.publish(47)
                if P0: seen()
            if n >= PUBN and n < 14:
                for _ in range(-(-len(wl) // (14 - n))): wl.pop(0)()
            if n == self.o.get("p1", 12): tc1 = self.poll_issue(VP, VPA, "s53")
            if n == 14 and P0: early(0, NCX - 2, 1)
        assert not wl
        I(f"s_add_u32 s43, s51, {HB}"); I(f"v_add_u32 v{T+2}, s43, v{VL16}")
        self.barrier()
        for i in range(8):
            I(f"ds_write_b128 v{T+2}, {v(ACC+4*i,4)} offset:{1024*i}"); lg.issue()
        I(f"s_lshl_b32 s43, s{SC}, 15"); I(f"s_lshl_b32 s44, s{SJ}, 11"); I("s_add_u32 s43, s43, s44"); I(f"s_add_u32 s43, s43, {HB}"); I(f"v_add_u32 v{T+2}, s43, v{VL16}")
        I(f"s_and_b32 s43, s{SJ}, 1"); I("s_mul_i32 s44, s43, 3072"); I(f"s_lshr_b32 s45, s{SJ}, 1"); I("s_lshl_b32 s41, s45, 9")
        I("s_add_u32 s44, s44, s41"); I(f"s_add_u32 s44, s44, s{SB}"); I("s_add_u32 s44, s44, 520")
        I(f"v_lshl_add_u32 v{T+3}, v{T}, 4, s44"); I(f"v_lshlrev_b32 v{VA}, 3, v{T+1}"); I(f"v_sub_u32 v{T+3}, v{T+3}, v{VA}")
        I(f"v_lshlrev_b32 v{VB}, 6, v{T}"); I(f"v_lshl_add_u32 v{VB}, v{T+1}, 4, v{VB}")
        I("s_lshl_b32 s45, s45, 11"); I("s_lshl_b32 s43, s43, 5"); I("s_add_u32 s45, s45, s43"); I(f"s_lshl_b32 s43, s{SC}, 12"); I("s_add_u32 s45, s45, s43")
        I(f"s_add_u32 s45, s45, {YB}"); I(f"v_add_u32 v{VB}, s45, v{VB}")
        I("s_lshl_b32 s43, s55, 16"); I("s_and_b32 s44, s55, 0xffff0000"); I(f"s_cmp_eq_u32 s{SC}, 0"); I("s_cselect_b32 s55, s43, s44")
        lg.wait(lg.issued); self.barrier()
        self.stamp(12)
        for p in range(4):
            for gq in range(2):
                I(f"ds_read_b128 {v(RD_+8*p+4*gq,4)}, v{T+2} offset:{8192*p+1024*gq}"); lg.issue()
        for gq in range(2):
            I(f"ds_read_b64 {v(ACC+2*gq,2)}, v{T+3} offset:{1536*gq}"); lg.issue()
        lk = a.label("SK"); I("s_cmp_lg_u32 s50, 0"); I(f"s_cbranch_scc1 {lk}")
        sv = self.save(); vm.wait(tc1); seen(); self.restore(sv); early(0, NCX - 2, 1)
        a.L(lk)
        early(NCX - 2, NCX, 2)
        lg.wait(lg.issued)
        for i in range(0, 8, 2):
            I(f"v_pk_add_f32 {v(RD_+i,2)}, {v(RD_+i,2)}, {v(RD_+8+i,2)}"); I(f"v_pk_add_f32 {v(RD_+16+i,2)}, {v(RD_+16+i,2)}, {v(RD_+24+i,2)}")
        for i in range(0, 8, 2): I(f"v_pk_add_f32 {v(RD_+i,2)}, {v(RD_+i,2)}, {v(RD_+16+i,2)}")
        for gq in range(2):
            for r in range(4):
                srcr = ACC + 2*gq + (1 - (r >> 1))
                I(f"v_lshlrev_b32 v{ACC+8}, 16, v{srcr}" if r & 1 else f"v_and_b32 v{ACC+8}, 0xffff0000, v{srcr}")
                I(f"v_fma_f32 v{RD_+4*gq+r}, v{ACC+8}, s55, v{RD_+4*gq+r}")
        for i in range(4): I(f"v_cvt_pk_bf16_f32 v{ACC+12+i}, v{RD_+2*i}, v{RD_+2*i+1}")
        I(f"v_permlane32_swap_b32 v{ACC+12}, v{ACC+14}"); I(f"v_permlane32_swap_b32 v{ACC+13}, v{ACC+15}")
        I(f"ds_write_b128 v{VB}, {v(ACC+12,4)}"); lg.issue()
        lg.wait(lg.issued); self.barrier()
        ly = a.label("NY")
        I(f"s_cmp_lg_u32 s{SW}, 0"); I(f"s_cbranch_scc1 {ly}")
        I(f"v_add_u32 v{T}, {YB}, v{VL16}")
        for i in range(8): I(f"ds_read_b128 {v(RD_+4*i,4)}, v{T} offset:{1024*i}")
        I(f"s_lshl_b32 s44, s{SF}, 13"); I(f"s_add_u32 s44, s44, {YT_OFF}"); I("s_add_u32 s45, s44, 4096")
        I("s_waitcnt lgkmcnt(0)")
        for i in range(8): I(f"buffer_store_dwordx4 {v(RD_+4*i,4)}, v{VL16}, s[{RWS}:{RWS+3}], s{44+(i>>2)} offen offset:{1024*(i&3)}{self.st}")
        a.L(ly)
        ll = a.label("NL")
        I("s_cmp_eq_u32 s50, 3"); I(f"s_cbranch_scc1 {ll}")
        self.poll_check(VP, VPA, "s53", 1)
        for i in range(NCX): cload(i)
        a.L(ll)
        self.stamp(6)
        YT = self.XB
        lrd = {}; ypub = False; ymark = vm.issued; free = []; fresh = []; nw = NW; nw2 = NW + NL; nc = NCX
        for i in range(32):
            if i % 4 == 0 and self.o.get("ostamp"): self.stamp(17 + i // 4)
            if i == 14:
                I(f"s_lshl_b32 s53, s57, 7"); I(f"s_lshl_b32 s42, s{SW}, 4"); I("s_add_u32 s53, s53, s42"); I(f"s_add_u32 s53, s53, {FY_OFF}")
                tf = self.poll_issue(VP, VPA, "s53")
            if i == 24:
                vm.wait(tf); self.poll_check(VP, VPA, "s53", 1)
                I(f"v_lshrrev_b32 v{T}, 3, v0"); I(f"v_and_b32 v{T+1}, 7, v0"); I(f"v_lshlrev_b32 v{T+1}, 4, v{T+1}")
                I(f"v_lshl_add_u32 v{T}, v{T}, 12, v{T+1}")
                I(f"s_add_u32 m0, s{SWK}, {YT}")
                I(f"s_lshl_b32 s44, s57, 18"); I(f"s_lshl_b32 s45, s{SW}, 15"); I("s_add_u32 s44, s44, s45")
                I(f"s_lshl_b32 s45, s56, 7"); I("s_add_u32 s44, s44, s45"); I(f"s_add_u32 s44, s44, {YT_OFF}")
                I(f"buffer_load_dwordx4 v{T}, s[{RWS}:{RWS+3}], s44 offen{self.ld} lds"); vm.issue()
                I(f"v_and_b32 v{T+1}, 15, v0"); I(f"s_lshr_b32 s48, s{SW}, 1"); I("s_lshl_b32 s48, s48, 4")
                I(f"s_lshl_b32 s45, s56, 6"); I("s_add_u32 s45, s45, s48"); I(f"v_add_u32 v{T+1}, s45, v{T+1}")
                I(f"v_lshlrev_b32 v{T+2}, 2, v{T+1}"); I(f"s_mov_b32 s45, {G_OFF}")
                I(f"buffer_load_dword v{GR}, v{T+2}, s[{RWS}:{RWS+3}], s45 offen{self.ld}"); vm.issue()
                I(f"v_lshrrev_b32 v{T+2}, 4, v0"); I(f"v_lshlrev_b32 v{T+2}, 4, v{T+2}"); I(f"v_lshl_add_u32 v{VO}, v{T+1}, 10, v{T+2}")
                I(f"s_and_b32 s49, s{SW}, 1"); I("s_lshl_b32 s49, s49, 6"); I(f"s_lshl_b32 s45, s57, 7"); I("s_add_u32 s49, s49, s45")
                I(f"buffer_load_dwordx4 {v(XR,4)}, v{VO}, s[{RD}:{RD+3}], s49 offen"); vm.issue()
            vm.wait(max(ctok[i], wtok.get(i, 0)))
            if i in lrd: lg.wait(lrd[i])
            if not ypub and vm.done > ymark:
                ypub = True
                I(f"s_lshl_b32 s44, s{SF}, 2"); I(f"s_add_u32 s44, s44, {FY_OFF}"); self.publish(44, 3)
            for mt in range(2):
                for st in range(2):
                    d = v(OACC + 16*(2*mt+st), 16)
                    I(f"{MFMA} {d}, {v(wslot[i]+4*mt,4)}, {v(cslot[i]+4*st,4)}, {'0' if i == 0 else d}")
            lagged, fresh = fresh, [wslot[i], cslot[i]]
            free += fresh
            while free:
                if nw < NW + NL and nw - i <= 3:
                    j = nw - NW; assert vm.done >= ltok[j]
                    r = free.pop(0); wslot[nw] = r
                    I("s_nop 3")
                    for mt in range(2):
                        I(f"ds_read_b128 {v(r+4*mt,4)}, v{VLW} offset:{j*2048+mt*1024}"); lrd[nw] = lg.issue()
                    nw += 1
                elif nc < 32 and (nc <= nw2 or nw2 >= 32):
                    cslot[nc] = free.pop(0); cload(nc); nc += 1
                elif nw2 < 32:
                    wslot[nw2] = free.pop(0); self.wload(nw2); nw2 += 1
                else: break
        self.stamp(7)
        I(f"v_and_b32 v{T}, 31, v0"); I(f"v_lshrrev_b32 v{T+1}, 5, v0"); I(f"v_and_b32 v{T+2}, 15, v0")
        I(f"v_lshlrev_b32 v{T+1}, 1, v{T+1}")
        I(f"v_xor_b32 v{T+1}, v{T+1}, v{T+2}"); I(f"v_lshlrev_b32 v{T+1}, 4, v{T+1}"); I(f"v_lshl_add_u32 v{T}, v{T}, 8, v{T+1}")
        I(f"v_add_u32 v{T}, s51, v{T}")
        for mt in range(2):
            for gq in range(4):
                I(f"v_xor_b32 v{T+1}, {(4*gq+mt)*16}, v{T}"); I(f"v_add_u32 v{T+3}, 0x10000, v{T+1}")
                for st in range(2):
                    I(f"ds_write_b128 v{T+1+2*st}, {v(OACC+16*(2*mt+st)+4*gq,4)}"); lg.issue()
        I(f"v_lshrrev_b32 v{T}, 4, v0"); I(f"s_and_b32 s41, s{SW}, 1"); I("s_lshl_b32 s42, s41, 3")
        I(f"v_lshl_add_u32 v{T+1}, v{T}, 1, s42"); I(f"v_xor_b32 v{T+1}, v{T+1}, v{T+2}"); I(f"v_lshlrev_b32 v{T+1}, 4, v{T+1}")
        I("s_and_b32 s43, s48, 16"); I(f"v_add_u32 v{T+3}, s43, v{T+2}"); I(f"v_lshl_add_u32 v24, v{T+3}, 8, v{T+1}")
        I("s_lshr_b32 s43, s48, 5"); I("s_lshl_b32 s43, s43, 16"); I("v_add_u32 v24, s43, v24"); I("v_xor_b32 v25, 16, v24")
        I("s_lshl_b32 s42, s41, 5"); I(f"v_lshl_add_u32 v{T}, v{T}, 3, s42"); I(f"v_bfe_u32 v{T+1}, v0, 2, 2")
        I(f"v_add_u32 v{T}, v{T}, v{T+1}"); I(f"v_lshlrev_b32 v{T}, 7, v{T}"); I(f"v_and_b32 v{T+1}, 3, v0")
        I(f"v_lshl_add_u32 v{T}, v{T+1}, 3, v{T}"); I("s_lshl_b32 s42, s48, 1"); I(f"s_add_u32 s42, s42, {YT}"); I(f"v_add_u32 v28, s42, v{T}")
        self.sync_all()
        CX = 128; tk = []
        I(f"ds_read_b64_tr_b16 {v(100,2)}, v28"); lg.issue()
        I(f"ds_read_b64_tr_b16 {v(102,2)}, v28 offset:512"); ty2 = lg.issue()
        for p in range(8):
            for hh in range(2):
                I(f"ds_read_b128 {v(CX+8*p+4*hh,4)}, v{24+hh} offset:{8192*p}"); lg.issue()
            tk.append(lg.issued)
            if p == 5:
                lg.wait(ty2)
                for e in range(8):
                    if e & 1: I(f"v_and_b32 v104, 0xffff0000, v{XR+(e>>1)}"); I(f"v_and_b32 v105, 0xffff0000, v{100+(e>>1)}")
                    else: I(f"v_lshlrev_b32 v104, 16, v{XR+(e>>1)}"); I(f"v_lshlrev_b32 v105, 16, v{100+(e>>1)}")
                    I(f"v_mul_f32 v{112+e}, v104, v105"); I(f"v_mul_f32 v{112+e}, v{112+e}, v{GR}")
                I(f"v_sub_f32 v{GR}, 1.0, v{GR}")
        for p in range(1, 8):
            lg.wait(tk[p])
            for e in range(0, 8, 2): I(f"v_pk_add_f32 {v(CX+e,2)}, {v(CX+e,2)}, {v(CX+8*p+e,2)}")
        for e in range(8): I(f"v_fmac_f32 v{112+e}, v{CX+4*(e&1)+(e>>1)}, v{GR}")
        for e in range(4): I(f"v_cvt_pk_bf16_f32 v{108+e}, v{112+2*e}, v{112+2*e+1}")
        I(f"buffer_store_dwordx4 {v(108,4)}, v{VO}, s[{RC}:{RC+3}], s49 offen{' sc1' if not self.o.get('outpl') else ' nt' if self.o.get('outnt') else ''}"); vm.issue()
        self.stamp(16)
        if self.o.get("echo"):
            lp = a.label("EC")
            I("s_sub_u32 s100, s100, s96")
            if self.o.get("cyc"): I("s_lshr_b32 s100, s100, 4")
            I("s_memrealtime s[96:97]"); I("s_waitcnt lgkmcnt(0)")
            a.L(lp)
            I("s_memrealtime s[98:99]"); I("s_waitcnt lgkmcnt(0)"); I("s_sub_u32 s98, s98, s96"); I("s_cmp_lt_u32 s98, s100"); I(f"s_cbranch_scc1 {lp}")
        if self.o.get("dbgout") is not None:
            l = a.label("DB")
            I(f"s_cmp_lg_u32 s2, {self.o['dbgout']}"); I(f"s_cbranch_scc1 {l}"); I(f"s_cmp_lg_u32 s{SW}, 0"); I(f"s_cbranch_scc1 {l}")
            I("s_waitcnt vmcnt(0)")
            order = [0, 1, 2, 3, 8, 10, 11, 4, 5, 12, 6, 7, 16]
            I("v_mov_b32 v20, 0")
            for j, i in enumerate(order):
                I(f"s_mov_b32 s44, {4*i}"); I(f"v_writelane_b32 v20, s44, {j}")
            I(f"s_lshl_b32 s44, s2, 11"); I(f"s_add_u32 s44, s44, {STAMP_OFF}")
            I(f"buffer_load_dword v21, v20, s[{RWS}:{RWS+3}], s44 offen sc1"); I("s_waitcnt vmcnt(0)")
            I("v_readfirstlane_b32 s45, v21"); I("v_subrev_u32 v21, s45, v21")
            self.srd(RDBG, "dbg", 64); I("v_lshlrev_b32 v22, 2, v0")
            I(f"buffer_store_dword v21, v22, s[{RDBG}:{RDBG+3}], 0 offen")
            a.L(l)

def build(opts):
    g = G(opts); k = NAME + "_kernel"
    g.begin(k); g.a.T("; MARK p"); g.proj(); g.a.T("; MARK a"); g.attn(); g.a.T("; MARK t"); g.tailp(); g.end(); g.a.T("; MARK a"); g.attn_rare(); g.a.T("; MARK t"); g.a.L("CODE_END"); g.a.I("s_endpgm")
    n = g.a.fix_hazards()
    txt = "; @launch grid=(256,1,1) block=(512,1,1) lds=163840\n"
    txt += '.amdgcn_target "amdgcn-amd-amdhsa--gfx950"\n.text\n' + g.a.text()
    txt += f""".section .rodata,"a"
.p2align 6
.amdhsa_kernel {k}
  .amdhsa_next_free_vgpr 256
  .amdhsa_next_free_sgpr 102
  .amdhsa_accum_offset 256
  .amdhsa_group_segment_fixed_size 0
  .amdhsa_kernarg_size 128
  .amdhsa_user_sgpr_count 2
  .amdhsa_user_sgpr_kernarg_segment_ptr 1
  .amdhsa_system_sgpr_workgroup_id_x 1
.end_amdhsa_kernel
"""
    print(f"instructions {sum(1 for it in g.a.items if it[0] == 'i')}, nops inserted {n}", file=sys.stderr)
    return txt

if __name__ == "__main__":
    opts = {}
    for x in sys.argv[2:]:
        if "=" in x: k_, v_ = x.split("="); opts[k_] = int(v_)
        else: opts[x] = True
    open(sys.argv[1], "w").write(build(opts))
```

```python
import sys, math, struct
sys.path.insert(0, "gen")
from asmlib import *

NAME = "gated_mix__ssm_conv_h3__compressed_kv_cla__prompt"
MB = 1 << 20
KV_OFF, Q_OFF, CTX_OFF, KVT_OFF, YT_OFF, G_OFF = 0, 32*MB, 48*MB, 64*MB, 66*MB, 68*MB
XC_OFF = 40*MB
WOT_OFF = 32*MB
FLG_OFF = 68*MB + 65536
FK_OFF, FY_OFF, FC_OFF = FLG_OFF, FLG_OFF + 4096, FLG_OFF + 8192
STAMP_OFF = 69*MB
WS_SIZE = 70*MB
P = dict(q=64, k=66, v=68, shift=70, ssmk=72, ssmD=74, bx=76, ckv=78, wq=80, wuk=82, wuv=84, wo=86, gate=88, out=90, dbg=92, ws=94)
SW, SHEAD, SIDX, SWK, SF = 3, 4, 5, 6, 7
RA, RB, RC, RWS, RD, RE, RT, RDBG = 8, 12, 16, 20, 24, 28, 56, 60
MFMA = "v_mfma_f32_32x32x16_bf16"
LOG2E = 1.4426950408889634
F_KV, F_CA, F_CB, F_Y = 1, 2, 4, 8
def f2u(x): return "0x%08x" % struct.unpack("<I", struct.pack("<f", x))[0]
def rep4(b): return b * 0x01010101

class G:
    def __init__(self, opts):
        self.a = Asm(); self.o = opts
        self.vm = Cnt(self.a, "vmcnt", 63); self.lg = Cnt(self.a, "lgkmcnt", 15)
        self.st = "" if opts.get("plainst") else (" sc1 nt" if opts.get("ntst") else " sc1"); self.ld = "" if opts.get("plainld") else " sc1"
    def I(self, t): self.a.I(t)
    def srd(self, r, ptr, nbytes):
        I = self.I
        I(f"s_mov_b32 s{r}, s{P[ptr]}"); I(f"s_mov_b32 s{r+1}, s{P[ptr]+1}")
        I(f"s_mov_b32 s{r+2}, {nbytes}"); I(f"s_mov_b32 s{r+3}, 0x00020000")
    def save(self): return (self.vm.issued, self.vm.done, self.lg.issued, self.lg.done)
    def restore(self, s_): self.vm.issued, self.vm.done, self.lg.issued, self.lg.done = s_
    def stream(self, mf, fills):
        n = len(mf); slots = [[] for _ in range(n + 1)]
        for (s0, e0, cl) in fills:
            m = e0 - s0
            for j, c in enumerate(cl): slots[s0 + 1 + (j * m) // len(cl)].append(c)
        for c in slots[0]: c()
        for i in range(n):
            mf[i]()
            for c in slots[i+1]: c()
    def stamp(self, i, dyn=None):
        if self.o.get("echo") == i:
            self.I("s_memtime s[100:101]" if self.o.get("cyc") else "s_memrealtime s[100:101]"); self.I("s_waitcnt lgkmcnt(0)")
        if not self.o.get("stamp"): return
        I = self.I
        I("s_memrealtime s[96:97]"); I("s_memtime s[100:101]")
        I("s_lshl_b32 s98, s2, 3"); I(f"s_add_u32 s98, s98, s{SW}"); I("s_lshl_b32 s98, s98, 8")
        I(f"s_add_u32 s98, s98, {STAMP_OFF + 4*i}")
        if dyn is not None:
            I(f"s_lshl_b32 s99, s{dyn}, 4"); I("s_add_u32 s98, s98, s99")
        I("s_waitcnt lgkmcnt(0)")
        I("v_mov_b32 v2, s96"); I("v_mov_b32 v3, 0")
        I(f"buffer_store_dword v2, v3, s[{RWS}:{RWS+3}], s98 offen")
        I("v_mov_b32 v2, s100")
        I(f"buffer_store_dword v2, v3, s[{RWS}:{RWS+3}], s98 offen offset:128")
    OOB = 0x40000000
    def publish(self, soff, val=1, srd=RWS, byte=False, idx=None):
        I = self.I
        self.oob_sel()
        if idx is not None: I(f"s_and_b32 s98, s{SIDX}, 3"); I(f"s_cmp_eq_u32 s98, {idx}"); I(f"s_cselect_b32 s99, s99, {self.OOB}")
        I(f"v_mov_b32 v2, {val}"); I("v_mov_b32 v3, s99")
        I(f"buffer_store_{'byte' if byte else 'dword'} v2, v3, s[{srd}:{srd+3}], s{soff} offen sc1"); self.vm.issue()
    def oob_sel(self):
        self.I(f"s_cmp_eq_u32 s{SW}, 0"); self.I(f"s_cselect_b32 s99, 0, {self.OOB}")
    def poll_issue(self, vd, vaddr, soff, srd=RWS):
        self.I(f"buffer_load_dword v{vd}, v{vaddr}, s[{srd}:{srd+3}], {soff} offen sc1"); return self.vm.issue()
    def poll_check(self, vd, vaddr, soff, want, srd=RWS):
        a = self.a; I = self.I
        l = a.label("PCK"); lp = a.label("POLL")
        I(f"s_mov_b32 s98, {want}"); I("s_mov_b32 s99, 20000")
        a.L(lp)
        I(f"v_and_b32 v{vd}, s98, v{vd}"); I(f"v_cmp_ne_u32 vcc, s98, v{vd}"); I(f"s_cbranch_vccz {l}")
        I("s_sleep 2")
        I(f"buffer_load_dword v{vd}, v{vaddr}, s[{srd}:{srd+3}], {soff} offen sc1")
        I("s_sub_u32 s99, s99, 1"); I("s_cmp_lg_u32 s99, 0"); I("s_waitcnt vmcnt(0)"); I(f"s_cbranch_scc1 {lp}")
        a.L(l)
    def barrier(self): self.I("s_barrier")
    def sync_all(self):
        self.I("s_waitcnt vmcnt(0) lgkmcnt(0)"); self.vm.mark_all_done(); self.lg.mark_all_done(); self.barrier()

    def begin(self, kname):
        a = self.a; I = self.I
        a.T(f".globl {kname}\n.p2align 8\n.type {kname},@function"); a.L(kname)
        self.endl = a.label("END")
        if self.o.get("stamp"): I("s_memrealtime s[30:31]")
        if self.o.get("echo"): I("s_memtime s[96:97]" if self.o.get("cyc") else "s_memrealtime s[96:97]")
        I("s_load_dwordx16 s[64:79], s[0:1], 0"); I("s_load_dwordx16 s[80:95], s[0:1], 64")
        I("s_cmp_ge_u32 s2, 256"); I(f"s_cbranch_scc1 {self.endl}")
        I("v_lshrrev_b32 v1, 6, v0"); I("v_and_b32 v0, 63, v0"); I(f"v_readfirstlane_b32 s{SW}, v1")
        I("s_and_b32 s7, s2, 7"); I("s_lshl_b32 s7, s7, 2")
        I(f"s_lshr_b32 s{SIDX}, s2, 3"); I(f"s_lshr_b32 s{SHEAD}, s{SIDX}, 3"); I(f"s_add_u32 s{SHEAD}, s{SHEAD}, s7")
        I(f"s_and_b32 s{SIDX}, s{SIDX}, 7"); I(f"s_lshl_b32 s{SWK}, s{SW}, 10")
        I(f"s_lshl_b32 s{SF}, s{SHEAD}, 3"); I(f"s_add_u32 s{SF}, s{SF}, s{SIDX}")
    def end(self):
        self.a.L(self.endl); self.I("s_endpgm")

    def proj(self):
        a = self.a; I = self.I; vm = self.vm; lg = self.lg
        QA_LDS = 65536
        ACC = {"K": 64, "V": 128, "Q": 64}
        FX = [16, 24]; FW = [192, 32]
        VWA = 4; VSK, VSV, VOX, VOW, VST = 8, 9, 10, 11, 12; VXA = 224; T = 232
        NB = 0; XC = self.o.get("xc", 0)
        ST = [("KV", c) for c in range(NB)] + [("K", c) for c in range(NB, 8)] + [("V", c) for c in range(7, NB - 1, -1)] + [("Q", c) for c in range(8)]
        NS = len(ST); TK = 7; TV = NS - 9; TQ = NS - 8
        I("v_lshrrev_b32 v13, 3, v0"); I(f"s_lshl_b32 s40, s{SW}, 3"); I("v_add_u32 v13, s40, v13"); I("v_lshlrev_b32 v13, 10, v13")
        I(f"s_lshr_b32 s41, s{SW}, 1"); I(f"s_xor_b32 s40, s41, s{SW}"); I("s_and_b32 s40, s40, 1"); I("s_lshl_b32 s40, s40, 2")
        I("v_lshrrev_b32 v14, 4, v0"); I("v_add_u32 v15, s40, v14")
        I("v_and_b32 v3, 7, v0"); I("v_xor_b32 v15, v15, v3"); I(f"v_lshl_add_u32 v{VOX}, v15, 4, v13")
        I(f"s_lshl_b32 s40, s{SW}, 2"); I("v_add_u32 v13, s40, v14"); I("v_lshlrev_b32 v13, 13, v13")
        I("s_and_b32 s41, s41, 1"); I("s_lshl_b32 s41, s41, 3"); I("v_lshl_add_u32 v15, v14, 1, s41"); I("v_and_b32 v3, 15, v0"); I("v_xor_b32 v15, v15, v3")
        I("v_lshl_add_u32 v13, v15, 4, v13"); I(f"s_lshl_b32 s40, s{SHEAD}, 8"); I(f"v_add_u32 v{VOW}, s40, v13")
        I(f"v_lshlrev_b32 v{VST}, 4, v0")
        I(f"s_lshl_b32 s44, s{SIDX}, 18")
        for i in range(1, 4): I(f"s_add_u32 s{44+i}, s44, {65536*i}")
        ROT = self.o.get("rot", 2)
        if ROT == 0: I("s_mov_b32 s33, 0")
        elif ROT == 1: I(f"s_mov_b32 s33, s{SIDX}")
        elif ROT == 2: I(f"s_lshr_b32 s33, s{SHEAD}, 2"); I(f"s_add_u32 s33, s33, s{SIDX}")
        elif ROT == 3: I(f"s_lshr_b32 s33, s{SHEAD}, 2"); I(f"s_add_u32 s33, s33, s{SIDX}"); I(f"s_lshl_b32 s34, s{SHEAD}, 1"); I("s_add_u32 s33, s33, s34")
        elif ROT == 4: I(f"s_lshr_b32 s33, s{SHEAD}, 2")
        if self.o.get("rotq"): I(f"s_lshl_b32 s32, s{SHEAD}, 1"); I("s_add_u32 s32, s32, s33")
        else: I("s_mov_b32 s32, s33")
        I("s_waitcnt lgkmcnt(0)")
        if self.o.get("stamp"): I("s_memrealtime s[28:29]")
        self.srd(RA, "ckv", 2*MB); self.srd(RB, "wuk", 4*MB); self.srd(RC, "wuv", 4*MB)
        def xbase(t):
            k, c = ST[t]
            return (32768, 131072, 0)[((16 + c) if k == "Q" else (15 - c + NB)) % 3]
        units = [(t, m) for t in range(NS) for m in ST[t][0]]
        uidx = {u: i for i, u in enumerate(units)}
        def wbase(t, m): return 65536 + (uidx[(t, m)] % 4)*16384
        items = []
        lastx = {}
        for t in range(NS):
            k, c = ST[t]
            for m in k:
                u = uidx[(t, m)]
                def w(i, t=t, m=m, c=c):
                    if i == 0: I(f"s_add_u32 s34, s{32 if m == 'Q' else 33}, {c}"); I("s_and_b32 s34, s34, 7"); I("s_lshl_b32 s34, s34, 19")
                    I(f"s_add_u32 m0, s{SWK}, {wbase(t, m) + i*8192}"); I(f"s_add_u32 s41, s34, {i*262144}")
                    r = {"K": RB, "V": RC, "Q": RE}[m]
                    I(f"buffer_load_dwordx4 v{VOW}, s[{r}:{r+3}], s41 offen lds"); dtok[t] = vm.issue()
                items.append((t, units[u-4][0] if u >= 4 else -1, [lambda i=i, w=w: w(i) for i in range(2)]))
            key = ("Q" if k == "Q" else "C", c); prev = lastx.get(xbase(t))
            if prev is None or prev[1] != key:
                def x(i, t=t, k=k, c=c):
                    if i == 0: I(f"s_add_u32 s35, s{32 if k == 'Q' else 33}, {c}"); I("s_and_b32 s35, s35, 7"); I("s_lshl_b32 s35, s35, 7")
                    I(f"s_add_u32 m0, s{SWK}, {xbase(t) + i*8192}"); I(f"s_add_u32 s41, s{(48 if k == 'Q' else 44)+i}, s35")
                    r = (RWS if XC else RD) if k == "Q" else RA
                    I(f"buffer_load_dwordx4 v{VOX}, s[{r}:{r+3}], s41 offen{self.ld if (XC and k == 'Q') else ''} lds"); dtok[t] = vm.issue()
                items.append((t, prev[0] if prev else -1, [lambda i=i, x=x: x(i) for i in range(4)]))
            lastx[xbase(t)] = (t, key)
        dtok = {}
        def take(done, upto=99):
            out = []
            for it in list(items):
                if it[1] <= done and it[0] <= upto: out += it[2]; items.remove(it)
            return out
        for f in take(-1, 0): f()
        self.srd(RWS, "ws", WS_SIZE); self.srd(RDBG, "dbg", 256)
        self.stamp(31)
        if self.o.get("stamp"):
            I("v_mov_b32 v2, s30"); I("s_sub_u32 s98, s98, 124"); I(f"buffer_store_dword v2, v3, s[{RWS}:{RWS+3}], s98 offen")
            I("v_mov_b32 v2, s28"); I(f"buffer_store_dword v2, v3, s[{RWS}:{RWS+3}], s98 offen offset:120")
        I(f"s_lshl_b32 s48, s{SIDX}, 17"); I("s_add_u32 s49, s48, 65536")
        I(f"s_sub_u32 s50, 15, s{SIDX}"); I("s_lshl_b32 s50, s50, 17"); I("s_add_u32 s51, s50, 65536")
        if XC:
            for i in range(4): I(f"s_add_u32 s{48+i}, s{48+i}, {XC_OFF}")
        I(f"s_and_b32 s42, s{SW}, 3"); I("s_lshl_b32 s42, s42, 6"); I(f"s_lshr_b32 s43, s{SW}, 2"); I("s_lshl_b32 s43, s43, 1")
        I("v_and_b32 v13, 15, v0"); I("v_lshrrev_b32 v15, 4, v0")
        I("v_lshrrev_b32 v14, 1, v13"); I("v_xor_b32 v14, v14, v15"); I("v_lshlrev_b32 v14, 4, v14")
        I("v_add_u32 v3, s42, v13"); I(f"v_lshl_add_u32 v{VXA}, v3, 7, v14")
        I("v_and_b32 v2, 8, v13"); I("v_add_u32 v3, v3, v2"); I(f"v_lshl_add_u32 v{VXA+4}, v3, 7, v14")
        for pt in range(2):
            b = VXA + 4*pt
            I(f"v_xor_b32 v{b+1}, 64, v{b}"); I(f"v_add_u32 v{b+2}, 0x20000, v{b}"); I(f"v_add_u32 v{b+3}, 0x20000, v{b+1}")
        I("v_lshlrev_b32 v3, 4, v13"); I("v_and_b32 v2, 1, v15"); I("v_lshl_add_u32 v3, v2, 9, v3"); I("v_lshrrev_b32 v14, 1, v15")
        I(f"v_lshl_add_u32 v{VSK}, v14, 10, v3"); I(f"v_lshl_add_u32 v{VSV}, v14, 12, v3")
        I("v_bfe_u32 v13, v0, 2, 2"); I("v_lshl_add_u32 v14, v15, 3, v13"); I("v_lshlrev_b32 v14, 8, v14")
        I("v_and_b32 v3, 3, v0"); I("v_lshl_add_u32 v14, v3, 3, v14"); I("v_add_u32 v14, 0x10000, v14")
        I("v_lshl_add_u32 v13, v2, 2, v13"); I("s_lshl_b32 s40, s43, 1"); I("v_xor_b32 v13, s40, v13"); I(f"v_lshl_add_u32 v{VWA}, v13, 5, v14")
        for dt in range(1, 4): I(f"v_xor_b32 v{VWA+dt}, {dt << 5}, v{VWA}")
        I(f"s_lshl_b32 s54, s{SHEAD}, 4"); I(f"s_lshl_b32 s55, s{SIDX}, 1"); I("s_add_u32 s54, s54, s55")
        I(f"s_bfe_u32 s55, s{SW}, 0x10001"); I("s_add_u32 s54, s54, s55"); I("s_lshl_b32 s54, s54, 16")
        I(f"s_and_b32 s55, s{SW}, 1"); I("s_lshl_b32 s55, s55, 14"); I("s_add_u32 s54, s54, s55")
        I("s_lshl_b32 s55, s43, 11"); I("s_add_u32 s52, s54, s55"); I("s_add_u32 s52, s52, 0x8000")
        I("s_lshl_b32 s55, s43, 10"); I("s_add_u32 s54, s54, s55")
        XG = T; GW = T + 4; hl = {}
        def gate_loads():
            L = []
            def E(t): L.append(lambda: I(t))
            def V(t):
                def f(): I(t); hl["t"] = vm.issue()
                L.append(f)
            E(f"s_lshl_b32 s40, s{SHEAD}, 7"); E(f"s_lshl_b32 s39, s{SIDX}, 2"); E("s_add_u32 s40, s40, s39"); E(f"s_add_u32 s40, s40, {FK_OFF}")
            E(f"v_mov_b32 v13, s40")
            E(f"s_lshr_b32 s39, s{SHEAD}, 2"); E("s_lshl_b32 s39, s39, 7"); E(f"s_and_b32 s40, s{SHEAD}, 3"); E("s_lshl_b32 s40, s40, 2"); E("s_add_u32 s39, s39, s40")
            E(f"s_lshl_b32 s40, s{SIDX}, 10"); E("s_add_u32 s40, s40, s39"); E(f"s_add_u32 s40, s40, {FC_OFF}")
            E("v_writelane_b32 v13, s40, 1")
            E(f"s_sub_u32 s40, 15, s{SIDX}"); E("s_lshl_b32 s40, s40, 10"); E("s_add_u32 s40, s40, s39"); E(f"s_add_u32 s40, s40, {FC_OFF}")
            E("v_writelane_b32 v13, s40, 2")
            E(f"s_lshl_b32 s40, s{SF}, 2"); E(f"s_add_u32 s40, s40, {FY_OFF}"); E("v_writelane_b32 v13, s40, 3"); E("v_mov_b32 v14, 0")
            def oo(): self.oob_sel(); I("v_add_u32 v13, s99, v13")
            L.append(oo)
            V(f"buffer_store_dword v14, v13, s[{RWS}:{RWS+3}], 0 offen sc1")
            E("s_lshl_b32 s37, s2, 3"); E(f"s_add_u32 s37, s37, s{SW}"); E("s_lshl_b32 s38, s37, 10")
            L.append(lambda: self.srd(RD, "q", 2*MB)); L.append(lambda: self.srd(RE, "wq", 4*MB)); L.append(lambda: self.srd(RT, "gate", 1024))
            V(f"buffer_load_dwordx4 {v(XG,4)}, v{VST}, s[{RD}:{RD+3}], s38 offen")
            V(f"buffer_load_dwordx4 {v(GW,4)}, v{VST}, s[{RT}:{RT+3}], 0 offen")
            return L
        def gate_ops():
            L = []; E = lambda t: L.append(lambda: I(t)); Z = T + 8
            L.append(lambda: vm.wait(hl["t"]))
            def xs():
                I(f"s_add_u32 s38, s38, {XC_OFF}"); I(f"buffer_store_dwordx4 {v(XG,4)}, v{VST}, s[{RWS}:{RWS+3}], s38 offen{self.st}"); vm.issue()
            if XC: L.append(xs)
            E(f"v_dot2_f32_bf16 v{Z}, v{XG}, v{GW}, 0")
            for i in range(1, 4): E(f"v_dot2_f32_bf16 v{Z}, v{XG+i}, v{GW+i}, v{Z}")
            for m in ("quad_perm:[1,0,3,2] row_mask:0xf", "quad_perm:[2,3,0,1] row_mask:0xf", "row_half_mirror row_mask:0xf", "row_mirror row_mask:0xf",
                      "row_bcast:15 row_mask:0xa", "row_bcast:31 row_mask:0xc"):
                E(f"v_add_f32_dpp v{Z}, v{Z}, v{Z} {m} bank_mask:0xf")
            E(f"v_readlane_b32 s36, v{Z}, 63"); E(f"v_mov_b32 v{Z+1}, {f2u(-LOG2E)}"); E(f"v_mul_f32 v{Z}, s36, v{Z+1}")
            E(f"v_exp_f32 v{Z}, v{Z}"); E(f"v_add_f32 v{Z}, 1.0, v{Z}"); E(f"v_rcp_f32 v{Z}, v{Z}")
            E("s_lshl_b32 s38, s37, 2"); E(f"s_add_u32 s38, s38, {G_OFF}"); E(f"v_mov_b32 v{Z+1}, 0")
            def gs():
                I(f"buffer_store_dword v{Z}, v{Z+1}, s[{RWS}:{RWS+3}], s38 offen{self.st}"); vm.issue()
            L.append(gs)
            return L
        toks = {}
        def rdx(t, mt):
            m = ST[t][0]; xb = xbase(t); pt = 0
            off = (xb & 65535) + ((mt >> 1)*4096 + (mt & 1)*1024 if pt else mt*2048)
            def f(kk):
                va = VXA + 4*pt + 2*(xb >> 17) + (kk ^ (mt & 1))
                I(f"ds_read_b128 {v(FX[mt & 1]+4*kk,4)}, v{va} offset:{off}"); toks[("x", t, mt, kk)] = lg.issue()
            return [lambda: f(0), lambda: f(1)]
        def rdw(t, dt):
            m = ST[t][0]
            def f(kk, h):
                I(f"ds_read_b64_tr_b16 {v(FW[t & 1]+8*dt+4*kk+2*h,2)}, v{VWA+dt} offset:{wbase(t, m)-65536+kk*8192+h*1024}"); toks[("w", t, dt, kk)] = lg.issue()
            return [lambda kk=kk, h=h: f(kk, h) for kk in range(2) for h in range(2)]
        def atile(m, mt, dt): return ACC[m] + (4*(((mt >> 1)*4 + dt)*2 + (mt & 1)) if m == "V" else 4*(mt*4 + dt))
        def mfs(t, mt):
            m = ST[t][0]; first = t == 0 or ST[t-1][0] != m; L = []
            order = [(dt, kk) for dt in range(4) for kk in range(2)] if not self.o.get("nochain") else [(dt, kk) for kk in range(2) for dt in range(4)]
            for dt, kk in order:
                def f(dt=dt, kk=kk):
                    lg.wait(max(toks[("x", t, mt, kk)], toks[("w", t, dt, kk)]))
                    d = v(atile(m, mt, dt), 4); X = v(FX[mt & 1]+4*kk, 4); W = v(FW[t & 1]+8*dt+4*kk, 4)
                    c = "0" if (first and kk == 0) else d
                    I(f"v_mfma_f32_16x16x32_bf16 {d}, {X}, {W}, {c}" if m == "V" else f"v_mfma_f32_16x16x32_bf16 {d}, {W}, {X}, {c}")
                L.append(f)
            return L
        def pieces(m):
            if m == "V": return [(atile(m, 2*p, dt), p*8192 + dt*1024) for p in range(2) for dt in range(4)]
            return [(atile(m, mt, 2*j), mt*4096 + j*1024) for mt in range(4) for j in range(2)]
        def kv_out(m):
            out = []
            for b, off in pieces(m):
                pk = [lambda i=i, b=b: I(f"v_cvt_pk_bf16_f32 v{b+i}, v{b+2*i}, v{b+2*i+1}") for i in range(4)]
                if m == "K": pk = [lambda i=i, b=b: I(f"v_mul_f32 v{b+i}, {f2u(LOG2E / math.sqrt(128.0))}, v{b+i}") for i in range(8)] + pk
                def st(b=b, off=off):
                    I(f"s_add_u32 s41, s{54 if m == 'K' else 52}, {off}")
                    I(f"buffer_store_dwordx4 {v(b,4)}, v{VST}, s[{RWS}:{RWS+3}], s41 offen{self.st}"); vm.issue()
                out.append((pk, st))
            return out
        side = {}; late = {}
        def spread(ops, t0, t1, dst=side, ks=(0, 1, 2)):
            sl = [(t, k) for t in range(t0, t1) for k in ks]; n = len(ops)
            for j, key in enumerate(sl): dst.setdefault(key, []).extend(ops[n*j//len(sl): n*(j+1)//len(sl)])
        PG = self.o.get("pg", 0)
        spread(gate_loads(), PG, PG + 1); spread(gate_ops(), PG + 2, PG + 3)
        def wtouch(r, half, wv):
            def f():
                I(f"s_cmp_eq_u32 s{SW}, {wv}"); I(f"s_cselect_b32 s99, 0, {self.OOB}")
                I(f"s_lshl_b32 s40, s{SIDX}, 19"); I(f"s_lshl_b32 s39, s{SHEAD}, 8"); I("s_add_u32 s40, s40, s39"); I(f"s_add_u32 s40, s40, {half*32*8192}")
                I("v_lshrrev_b32 v3, 1, v0"); I("v_lshlrev_b32 v3, 13, v3"); I("v_and_b32 v2, 1, v0"); I("v_lshl_add_u32 v3, v2, 7, v3"); I("v_add_u32 v3, s99, v3")
                I(f"buffer_load_dword v1, v3, s[{r}:{r+3}], s40 offen"); vm.issue()
            return f
        for nm, r, dflt in (("tk", RB, -1), ("tv", RC, 1), ("tq", RE, 3)):
            t0 = self.o.get(nm, dflt)
            if t0 >= 0:
                for half in range(2): side.setdefault((t0 + half, 2), []).append(wtouch(r, half, half))
        KN = self.o.get("kn", 8); VD = self.o.get("vd", 0); VN = self.o.get("vn", 5)
        KO = kv_out("K"); VO = kv_out("V")
        spread(sum((p for p, _ in KO), []), TK + 1, min(TK + 3, TQ), ks=(0, 1))
        npk = 2 * (min(TK + 3, TQ) - TK - 1)
        spread([s_ for _, s_ in KO], TK + 1, TK + 1 + KN, dst=late, ks=(2,))
        assert len(late[(TK + 1, 2)]) <= 8 * 2 // npk
        spread(sum((p for p, _ in VO), []), TQ, TQ + 1, ks=(0, 1))
        spread([s_ for _, s_ in VO], TQ + VD, TQ + VD + VN, dst=late, ks=(2,))
        PK_, PV_ = TK + KN + 2, TQ + VD + VN
        assert PK_ <= NS - 5 and PV_ <= NS - 2
        QE = []; EQ = lambda t: QE.append(lambda: I(t))
        EQ(f"s_and_b32 s55, s{SW}, 2"); EQ("s_lshl_b32 s55, s55, 15"); EQ(f"s_add_u32 s55, s55, {QA_LDS}")
        EQ(f"s_and_b32 s54, s{SW}, 1"); EQ("s_lshl_b32 s54, s54, 14"); EQ("s_add_u32 s55, s55, s54")
        EQ("s_lshl_b32 s54, s43, 10"); EQ("s_add_u32 s55, s55, s54"); EQ(f"v_add_u32 v14, s55, v{VST}")
        spread(QE, NS - 1, NS)
        spread([lambda r=r: I(f"v_mov_b64 {v(192+2*r,2)}, 0") for r in range(32) if not 16 <= r < 20], NS - 1, NS)
        side.setdefault((NS - 1, 3), []).extend([lambda r=r: I(f"v_mov_b64 {v(192+2*r,2)}, 0") for r in range(16, 20)])
        def fkoff():
            I(f"s_lshl_b32 s40, s{SHEAD}, 7"); I(f"s_lshl_b32 s41, s{SIDX}, 2"); I("s_add_u32 s40, s40, s41"); I(f"s_add_u32 s40, s40, {FK_OFF}")
        def w0only(fn):
            l = a.label("NP"); I(f"s_cmp_lg_u32 s{SW}, 0"); I(f"s_cbranch_scc1 {l}"); fn(); a.L(l)
        def k0(i):
            I(f"s_lshl_b32 s40, s{SW}, 12"); I("s_add_u32 m0, s40, 0x8000")
            I(f"s_lshl_b32 s41, s{SHEAD}, 20"); I("s_add_u32 s41, s41, s40")
            I(f"buffer_load_dwordx4 v{VST}, s[{RWS}:{RWS+3}], s41 offen offset:{1024*i}{self.ld} lds"); vm.issue()
        self.barrier()
        for f in take(-1, 1): f()
        vm.wait(dtok[0]); self.barrier()
        self.stamp(1)
        def first_reads(t):
            x = rdx(t, 0); w = [rdw(t, dt) for dt in range(4)]
            return [x[0]] + w[0][:2] + [x[1]] + w[0][2:] + w[1], w[2] + w[3]
        L, rest = first_reads(0)
        for f in L: f()
        mark = {}; TZ = PG + 4; TS = 10; DS = self.o.get("dsteps", 3)
        pend = take(-1)
        for t in range(NS):
            for k in range(4):
                M = mfs(t, k); n = len(M); PB = []
                if k == 3 and t < NS - 1:
                    assert not pend
                    if t == TS + 2: vm.wait(td); w0only(lambda: self.poll_check(14, 13, "0", rep4(1), RDBG))
                    if t == NS - 3: vm.wait(tp); w0only(lambda: self.poll_check(15, 13, "s53", 1))
                    lg.wait(lg.issued); vm.wait(dtok[t+1])
                    if t == TZ: vm.wait(mark[TZ-2])
                    if t == PK_: vm.wait(mark[TK + KN])
                    if t == PV_: vm.wait(mark[PV_ - 1])
                    self.barrier()
                    ps = self.o.get("pstamp")
                    if ps is not None and 0 <= t - int(ps) + 1 < 13: self.stamp(17 + t - int(ps) + 1); vm.issue(2)
                    if TZ <= t < TZ + 4: PB.append(lambda t=t: self.publish(SF, 1, RDBG, True, idx=t - TZ))
                    if t == PK_: PB.append(lambda: (fkoff(), self.publish(40, 1)))
                    if t == PV_: PB.append(lambda: (fkoff(), self.publish(40, 3)))
                    pend = take(t)
                    if t == NS - 3: pend += [lambda i=i: k0(i) for i in range(4)]
                    nd = len(pend) // (DS + 1)
                else:
                    nd = -(-len(pend) // max(1, (3 if t == 0 else DS) - k))
                D, pend = pend[:nd], pend[nd:]
                fl = []
                if not (t == NS - 1 and k == 3):
                    if k == 3:
                        L, rest = first_reads(t+1); nr = self.o.get("nr", 4)
                        fl.append((0, 7, L + rest[:nr])); rest = rest[nr:]
                    else:
                        if k == 0 and rest: fl.append((-1, 2, rest))
                        fl.append((2, 4, rdx(t, k+1)))
                if PB: fl.append((1, 2, PB))
                if D: fl.append((0, n, D))
                if side.get((t, k)): fl.append((0, n, side[(t, k)]))
                if late.get((t, k)): fl.append((n - 2, n, late[(t, k)]))
                self.stream(M, fl)
                if k == 2: mark[t] = vm.issued
                if t == TS and k == 0:
                    self.oob_sel(); I("v_lshl_add_u32 v13, v0, 2, s99"); td = self.poll_issue(14, 13, "0", RDBG)
                if t == NS - 4 and k == 0:
                    self.oob_sel(); I("v_and_b32 v13, 7, v0"); I("v_lshl_add_u32 v13, v13, 2, s99")
                    I(f"s_lshl_b32 s53, s{SHEAD}, 7"); I(f"s_add_u32 s53, s53, {FK_OFF}")
                    tp = self.poll_issue(15, 13, "s53")
            if t == TK: self.stamp(2)
            if t == TV: self.stamp(13)
        assert not items
        self.stamp(3)
        I("v_mov_b32 v16, v13")
        self.poll_issue(17, 16, "s53")
        for b, off in pieces("Q"):
            for i in range(4): I(f"v_cvt_pk_bf16_f32 v{b+i}, v{b+2*i}, v{b+2*i+1}")
            I(f"ds_write_b128 v14, {v(b,4)} offset:{off}"); lg.issue()
        self.attn_setup()
        vm.wait(vm.issued); w0only(lambda: self.poll_check(17, 16, "s53", 3))
        lg.wait(lg.issued); self.barrier()

    def attn_setup(self): self.attn(True)
    def attn(self, setup=False):
        a = self.a; I = self.I; vm = self.vm; lg = self.lg
        M16 = "v_mfma_f32_16x16x32_bf16"
        ML = 155648; QA_LDS = 65536; QB_LDS = 131072
        O = 192; QF = 160; NM = 144; S = [112, 128]; PP = [96, 104]; RING = 64; NR = 8; E = 56; PK = 16
        VK, VV, VL16, VSC, LM, THR, NINF, VQ, TMP = 4, 5, 6, 7, 8, 9, 10, 11, 12
        LS, ONES, BIAS = 152, 60, 11.0
        SR, SG, SC1, SC2, SKO, SVO, SKM, SVM, STH = 32, 33, 34, 35, 36, 37, 38, 39, 42
        SFIN, SCA, SM1 = 55, 59, 58
        DC = self.o.get("dmacost", 16); WEV = self.o.get("wev", 4)
        if setup:
            I(f"s_lshr_b32 s{SG}, s{SW}, 2"); I(f"s_mul_i32 s{SR}, s{SG}, 7"); I(f"s_xor_b32 s{SR}, s{SR}, s{SW}")
            I(f"v_lshlrev_b32 v{VL16}, 4, v0")
            I(f"s_lshl_b32 s44, s{SR}, 13"); I(f"s_add_u32 s44, s44, {QB_LDS}"); I(f"v_add_u32 v{VQ}, s44, v{VL16}")
            I(f"s_lshl_b32 s45, s{SG}, 16"); I(f"v_subrev_u32 v{TMP+1}, s45, v{VQ}")
            I(f"s_mov_b32 s{SC1}, s{SIDX}")
            I(f"s_lshl_b32 s{SC2}, s{SIDX}, 1"); I(f"s_sub_u32 s{SC2}, 14, s{SC2}")
            I(f"s_cmp_eq_u32 s{SG}, 1"); I(f"s_cselect_b32 s{SM1}, 0, -1")
            I(f"s_lshl_b32 s43, s{SW}, 12"); I(f"s_lshl_b32 s{SVO}, s{SHEAD}, 20"); I(f"s_add_u32 s{SVO}, s{SVO}, s43")
            I(f"s_add_u32 s{SKO}, s{SVO}, 0x10000"); I(f"s_add_u32 s{SVO}, s{SVO}, 0x8000")
            I(f"s_mov_b32 s{SKM}, s43"); I(f"s_add_u32 s{SVM}, s43, 0x18000")
            I(f"s_mov_b32 s{STH}, 0x40004000"); I(f"v_mov_b32 v{NINF}, 0xff800000")
            for r in range(4): I(f"v_mov_b32 v{ONES+r}, 0x3f803f80"); I(f"v_mov_b64 {v(LS+2*r,2)}, 0")
            I(f"v_and_b32 v{THR}, 15, v0"); I(f"v_lshlrev_b32 v{VSC}, 4, v{THR}"); I(f"s_lshl_b32 s44, s{SR}, 5"); I(f"v_add_u32 v{THR}, s44, v{THR}")
            I(f"v_lshrrev_b32 v{TMP}, 4, v0"); I(f"v_lshl_add_u32 v{VSC}, v{TMP}, 9, v{VSC}"); I(f"v_lshlrev_b32 v{TMP}, 2, v{TMP}"); I(f"v_sub_u32 v{THR}, v{THR}, v{TMP}")
            I(f"v_add_u32 v{VK}, 0x8000, v{VL16}")
            I(f"s_lshl_b32 s{SCA}, s{SIDX}, 2"); I(f"s_add_u32 s{SCA}, s{SCA}, s{SR}"); I(f"s_lshl_b32 s{SCA}, s{SCA}, 5"); I(f"s_add_u32 s{SCA}, s{SCA}, s{SHEAD}")
            I(f"s_lshl_b32 s{SCA}, s{SCA}, 13"); I(f"s_add_u32 s{SCA}, s{SCA}, {CTX_OFF}")
            I(f"s_mov_b32 s{SFIN}, 0")
            if self.o.get("map84", 1):
                I(f"s_lshr_b32 s56, s{SF}, 6"); I("s_lshl_b32 s56, s56, 3"); I(f"s_bfe_u32 s44, s{SF}, 0x30002"); I("s_add_u32 s56, s56, s44")
                I(f"s_bfe_u32 s57, s{SF}, 0x10005"); I("s_lshl_b32 s57, s57, 2"); I(f"s_and_b32 s44, s{SF}, 3"); I("s_add_u32 s57, s57, s44")
                I(f"s_and_b32 s40, s{SF}, 63"); I("s_lshl_b32 s40, s40, 16")
            else:
                I(f"s_mov_b32 s56, s{SHEAD}"); I(f"s_mov_b32 s57, s{SIDX}")
                I(f"s_and_b32 s40, s{SF}, 31"); I("s_lshl_b32 s40, s40, 17")
            I(f"s_lshl_b32 s44, s{SW}, 13"); I("s_add_u32 s40, s40, s44"); I(f"s_add_u32 s40, s40, {WOT_OFF}")
            self.srd(RB, "ssmk", 2*MB); self.srd(RA, "k", 2*MB); self.srd(RC, "v", 2*MB); self.srd(RD, "shift", 4096); self.srd(RE, "wo", 4*MB)
            I("s_mov_b32 s41, 0")
            CL = self.o.get("cl", 8)
            I(f"s_lshr_b32 s40, {1 << (CL+2)}, s{SG}"); I(f"s_or_b32 s40, s40, {1 << CL}")
            I(f"s_lshl_b32 s44, 2, s{SW}"); I("s_and_b32 s44, s44, 30"); I("s_or_b32 s40, s40, s44")
            I(f"s_cmp_eq_u32 s{SW}, 0"); I(f"s_cselect_b32 s44, {(1 << 5) | (1 << (CL+4))}, 0"); I("s_or_b32 s40, s40, s44")
            if not self.o.get("noprio"):
                l = a.label("PR"); I(f"s_cmp_eq_u32 s{SG}, 1"); I(f"s_cbranch_scc0 {l}"); I("s_setprio 1"); a.L(l)
            return
        op = lambda t, c=4: (lambda: I(t), c)
        nop = lambda: None
        def loadq(va):
            for ds in range(8):
                I(f"ds_read_b128 {v(QF+4*ds,4)}, v{va} offset:{1024*ds}"); lg.issue()
        def dma4(kind):
            sm, so = (SKM, SKO) if kind == "k" else (SVM, SVO)
            def d(i):
                def f():
                    if i == 0: I(f"s_mov_b32 m0, s{sm}"); I(f"s_xor_b32 s{sm}, s{sm}, 0x8000")
                    I(f"buffer_load_dwordx4 v{VL16}, s[{RWS}:{RWS+3}], s{so} offen offset:{1024*i}{self.ld} lds")
                    if i == 3: I(f"s_add_u32 s{so}, s{so}, 0x10000")
                return (f, DC + (8 if i == 0 else 4 if i == 3 else 0))
            return [d(i) for i in range(4)]
        self.ring_n = 0
        def rd(kind, sl, idx):
            h = {}
            def f():
                slot = self.ring_n % NR; self.ring_n += 1
                h["reg"] = RING + 4*slot
                I(f"ds_read_b128 {v(h['reg'],4)}, v{VK if kind == 'k' else VV} offset:{sl*8192+idx*1024}"); h["tok"] = lg.issue()
            return f, h
        def wait_for(R, i):
            if R[i][1]["tok"] <= lg.done: return
            j = i
            while j + 1 < len(R) and j + 1 < i + WEV and "tok" in R[j+1][1] and R[j+1][1]["tok"] > R[i][1]["tok"]: j += 1
            lg.wait(R[j][1]["tok"])
        def otile(dt, qt): return O + 16*(dt >> 1) + 8*qt + 4*(dt & 1)
        def qk(sb, R, base, czero=False):
            def f(m):
                kt, qt, dd = m >> 3, (m >> 2) & 1, m & 3; i = base + 4*kt + dd
                wait_for(R, i); d = v(S[sb] + 8*qt + 4*kt, 4)
                c = ("0" if czero else v(NM + 4*qt, 4)) if dd == 0 else d
                I(f"{M16} {d}, {v(R[i][1]['reg'],4)}, {v(QF + 16*qt + 4*dd, 4)}, {c}")
            return [lambda m=m: f(m) for m in range(16)]
        def pv1(pb, dt, qt, reg): I(f"{M16} {v(otile(dt, qt),4)}, {v(reg,4)}, {v(PP[pb]+4*qt,4)}, {v(otile(dt, qt),4)}")
        def pv(pb, R, base, dts=range(8), exact=False):
            def f(dt, qt):
                if exact: lg.wait(R[base+dt][1]["tok"])
                else: wait_for(R, base + dt)
                pv1(pb, dt, qt, R[base+dt][1]["reg"])
            ls = [lambda qt=qt: I(f"{M16} {v(LS+4*qt,4)}, {v(ONES,4)}, {v(PP[pb]+4*qt,4)}, {v(LS+4*qt,4)}") for qt in range(2)]
            return ls + [lambda dt=dt, qt=qt: f(dt, qt) for dt in dts for qt in range(2)]
        def sm_ops(sb):
            ex = lambda i: op(f"v_exp_f32 v{E+(i&3)}, v{S[sb]+i}", 8)
            cv = lambda j: op(f"v_cvt_pk_bf16_f32 v{PP[sb]+j}, v{E+((2*j)&3)}, v{E+((2*j+1)&3)}")
            p = PP[sb]; L = [ex(0), ex(1)]
            ors = {2: f"v_or3_b32 v{LM}, v{p}, v{p+1}, v{p+2}", 4: f"v_or3_b32 v{LM}, v{LM}, v{p+3}, v{p+4}", 6: f"v_or3_b32 v{LM}, v{LM}, v{p+5}, v{p+6}"}
            for j in range(8):
                L += [ex(2*j+2), cv(j), ex(2*j+3)] if j < 7 else [op("s_nop 0"), cv(j)]
                if j in ors: L.append(op(ors[j]))
            L = [x for i, x in enumerate(L) if i != len(L) - 2]
            L += [op(f"v_or_b32 v{LM}, v{LM}, v{p+7}"), op(f"v_and_b32 v{LM}, s{STH}, v{LM}")]
            return L
        def sched(M, fixed, chain):
            n = len(M); fc = [sum(c for _, c in fixed.get(g, [])) for g in range(n)]
            tot = sum(c for _, c in chain); lo, hi = 0.0, 4000.0
            for _ in range(40):
                lev = (lo + hi) / 2
                if sum(max(0, lev - f) for f in fc) >= tot: hi = lev
                else: lo = lev
            k = 0; credit = 0.0
            for g in range(n):
                M[g]()
                for c, _ in fixed.get(g, []): c()
                credit += max(0, hi - fc[g])
                while k < len(chain) and (g == n - 1 or chain[k][1] <= credit + 2):
                    chain[k][0](); credit -= chain[k][1]; k += 1
        def put(fixed, g, items): fixed.setdefault(g, []).extend(items)
        SPL = self.o.get("spl", 18)
        ool = []
        def rarely(cmp_, body):
            lo = a.label("OOL"); lb = a.label("RET")
            I(cmp_); I(f"s_cbranch_scc1 {lo}"); a.L(lb)
            ool.append((lo, lb, body))
        def mask_ops(sb, koff):
            prs = [46, 48, 50, 52]; L = []
            if koff >= 64:
                L.append(op(f"v_subrev_u32 v{TMP+3}, 64, v{THR}")); tr = TMP + 3; koff -= 64
            elif koff < 0:
                L += [op(f"s_lshl_b32 s45, s{SG}, 6"), op(f"v_subrev_u32 v{TMP+3}, s45, v{THR}")]; tr = TMP + 3; koff = -koff - 1
            else: tr = THR
            for r0 in range(0, 16, 4):
                qt, kt = r0 >> 3, (r0 >> 2) & 1
                for r in range(4): L.append(op(f"v_cmp_lt_i32 s[{prs[r]}:{prs[r]+1}], v{tr}, {16*kt + r + koff - 16*qt}"))
                for r in range(4): L.append(op(f"v_cndmask_b32 v{S[sb]+r0+r}, v{S[sb]+r0+r}, v{NINF}, s[{prs[r]}:{prs[r]+1}]"))
            return L
        def mask_body(sb, koff):
            for c, _ in mask_ops(sb, koff): c()
        def xred(x, y, t0, t1, o):
            L = []
            for sw in ("v_permlane16_swap_b32", "v_permlane32_swap_b32"):
                L += [op(f"v_mov_b32 v{t0}, v{x}"), op(f"v_mov_b32 v{t1}, v{y}"), op("s_nop 0"), op(f"{sw} v{t0}, v{x}"), op(f"{sw} v{t1}, v{y}"),
                      op(f"{o} v{x}, v{x}, v{t0}"), op(f"{o} v{y}, v{y}, v{t1}")]
            return L
        def rowmax(sb):
            for qt in range(2):
                b = S[sb] + 8*qt; d = TMP + qt
                I(f"v_max3_f32 v{d}, v{b}, v{b+1}, v{b+2}"); I(f"v_max3_f32 v{d}, v{d}, v{b+3}, v{b+4}"); I(f"v_max3_f32 v{d}, v{d}, v{b+5}, v{b+6}"); I(f"v_max_f32 v{d}, v{d}, v{b+7}")
            for c, _ in xred(TMP, TMP+1, TMP+2, TMP+3, "v_max_f32"): c()
        def init_max():
            rowmax(0)
            for qt in range(2): I(f"v_max_f32 v{TMP+qt}, {f2u(-1e30)}, v{TMP+qt}"); I(f"v_add_f32 v{TMP+qt}, {f2u(BIAS)}, v{TMP+qt}")
            for r in range(8): I(f"v_sub_f32 v{NM+r}, 0, v{TMP+(r>>2)}")
            return [op(f"v_sub_f32 v{S[0]+r}, v{S[0]+r}, v{TMP+(r>>3)}") for r in range(16)]
        rare = []
        def check(sb, other=True):
            lr = a.label("RARE"); lb = a.label("BACK")
            I(f"v_cmp_ne_u32 vcc, 0, v{LM}")
            if self.o.get("a_nocheck"): I("s_mov_b64 vcc, 0")
            I(f"s_cbranch_vccnz {lr}"); a.L(lb)
            rare.append((lr, lb, sb, other))
        def fin_body():
            I(f"s_mov_b32 s{SFIN}, 2")
            I(f"v_rcp_f32 v{TMP}, v{LS}"); I(f"v_rcp_f32 v{TMP+2}, v{LS+4}"); I(f"v_mov_b32 v{TMP+1}, v{TMP}"); I(f"v_mov_b32 v{TMP+3}, v{TMP+2}")
            for r in range(4): I(f"v_mov_b64 {v(LS+2*r,2)}, 0")
            for q in range(8):
                for i in range(8*q, 8*q+8, 2): I(f"v_pk_mul_f32 {v(O+i,2)}, {v(O+i,2)}, {v(TMP+2*(q&1),2)}")
                for i in range(4): I(f"v_cvt_pk_bf16_f32 v{PK+4*q+i}, v{O+8*q+2*i}, v{O+8*q+2*i+1}")
                for i in range(8*q, 8*q+8, 2): I(f"v_mov_b64 {v(O+i,2)}, 0")
        coff = lambda q: ((q >> 1) & 1)*2048 + (q & 1)*256
        def st_body():
            I(f"s_add_u32 s44, s{SCA}, 4096"); I(f"s_mov_b32 s{SFIN}, 3")
            for q in range(8):
                I(f"buffer_store_dwordx4 {v(PK+4*q,4)}, v{VSC}, s[{RWS}:{RWS+3}], s{SCA if q < 4 else 44} offen offset:{coff(q)}{self.st}")
        TR = [RING + 4*(2+i) for i in range(6)]
        def head(R, vmw, with_mfma=True, post=(), more=(), pre=None):
            rf = [(f, 4) for f, h in R]; sm2 = sm_ops(0)[SPL:]
            M = [lambda dt=dt, qt=qt: pv1(1, dt, qt, TR[dt-2]) for dt in range(2, 8) for qt in range(2)] if with_mfma else [nop]*12
            if with_mfma: I("s_waitcnt lgkmcnt(4)")
            nb = self.o.get("nb", 4); more = list(more); m0 = len(more) // 3
            if pre is not None: more = list(pre) + more; m0 = len(pre)
            sched(M[:4], {}, sm2[:nb] + more[:m0])
            vmw(); I("s_waitcnt lgkmcnt(0)"); lg.mark_all_done(); self.barrier(); self.ring_n = 0
            fx = {0: rf[0:2], 1: rf[2:4], 2: rf[4:5], 4: rf[5:6], 6: rf[6:7], 7: [(nop, 8 + 8*len(post))]}
            sched(M[4:], fx, sm2[nb:] + more[m0:])
            check(0)
            for p in post: p()
        def mk_reads():
            return ([rd("k", 0, i) for i in range(8)] + [rd("v", 0, i) for i in range(8)] +
                    [rd("k", 1, i) for i in range(8)] + [rd("v", 1, i) for i in range(8)])
        def last_use(F):
            b = (0, 18, 34, 52)[F >> 3]; f = F & 7
            return b + (2*f + 1 if (F >> 3) & 1 else 8*(f >> 2) + 4 + (f & 3))
        def mid(R, dmas, kx, mb=None, trans=False, endops=(), early=(), g=0):
            rf = [(f, 4) for f, h in R]
            fa = {0: [rf[7]]}; fb = {}
            G_ = g
            for g, e in zip((1, 3, 9, 11), early): put(fa, g, [e])
            for F in range(8, 32):
                g = last_use(F - 8) + 1
                put(fa, g, [rf[F]]) if g < 34 else put(fb, g - 34, [rf[F]])
            D = sum((dma4(k) for k in dmas), [])
            st_ = self.o.get("gst", 4); of_ = self.o.get("gof", 2)
            gaps = [2 + of_*G_*2 + 2*st_*n for n in range(4)] if len(D) == 4 else [2 + of_*G_ + st_*n for n in range(8)]
            for g, d in zip(gaps, D): put(fa, g, [d]) if g < 33 else put(fb, g - 33, [d])
            PT = self.o.get("pt", 0)
            if PT and G_ == 0:
                pts = {1: [(0, 24, 2), (1, 21, 0)], 2: [(0, 8, 2), (0, 24, 0), (1, 7, 2), (1, 21, 0)], 3: [(0, 0, 2), (0, 8, 0), (0, 16, 2), (0, 24, 0), (0, 32, 2), (1, 7, 0), (1, 15, 2), (1, 21, 0)],
                       4: [(0, 16, 2), (1, 21, 0)], 5: [(0, 32, 2), (1, 21, 0)]}[PT]
                for part, g, p in pts: put(fb if part else fa, g, [op(f"s_setprio {p}")])
            put(fa, 33, [(nop, 16)])
            sched(qk(0, R, 0, trans) + pv(0, R, 8), fa, sm_ops(1))
            check(1, other=not trans)
            if mb: mb()
            pre = []
            if trans:
                I(f"s_mov_b32 s{SFIN}, 1")
                pre = init_max()
            put(fb, 18, [op(f"v_xor_b32 v{VV}, 0x10000, v{VK}")] + kx)
            for n, e in enumerate(endops): put(fb, 11 - n, [e])
            put(fb, 21, [(nop, 12)])
            sched(qk(1, R, 16) + pv(1, R, 24, range(2)), fb, pre + sm_ops(0)[:SPL])
            assert [R[26+i][1]["reg"] for i in range(6)] == TR
        vm4 = lambda: I("s_waitcnt vmcnt(4)")
        def vm08():
            lo = a.label("W8"); lb = a.label("W8R")
            I(f"s_cmp_eq_u32 s{SFIN}, 3"); I(f"s_cbranch_scc1 {lo}"); I("s_waitcnt vmcnt(0)"); a.L(lb)
            def b(): I("s_waitcnt vmcnt(8)"); I(f"s_mov_b32 s{SFIN}, 4")
            ool.append((lo, lb, b))
        m1 = lambda sb, ko: (lambda: rarely(f"s_cmp_eq_u32 s{SC1}, s{SM1}", lambda: mask_body(sb, ko)))
        fin = lambda: rarely(f"s_cmp_eq_u32 s{SFIN}, 1", fin_body)
        sta = (lambda: rarely(f"s_cmp_eq_u32 s{SFIN}, 2", st_body), 8)
        KR, VR, SH, WO, AD = 16, 23, 28, 32, 40
        def side_loads():
            L = []; E = lambda t: L.append(op(t)); V = lambda t: L.append(op(t, DC))
            E(f"v_lshrrev_b32 v{AD}, 5, v0"); E(f"v_and_b32 v{AD+1}, 31, v0"); E(f"v_lshlrev_b32 v{AD+2}, 12, v{AD}"); E(f"v_lshl_add_u32 v{AD+2}, v{AD+1}, 2, v{AD+2}")
            E(f"s_lshr_b32 s60, s{SF}, 1"); E("s_lshl_b32 s60, s60, 15"); E(f"s_and_b32 s61, s{SF}, 1"); E("s_lshl_b32 s61, s61, 13"); E("s_add_u32 s60, s60, s61")
            E(f"s_lshl_b32 s61, s{SW}, 7"); E("s_add_u32 s60, s60, s61"); E("s_add_u32 s61, s60, 16384")
            for j in range(8): V(f"buffer_load_dword v{WO+j}, v{AD+2}, s[{RE}:{RE+3}], s{60+(j>>2)} offen offset:{1024*(j&3)}")
            E("s_lshr_b32 s62, s2, 3"); E("s_lshl_b32 s62, s62, 16"); E(f"s_lshl_b32 s63, s{SW}, 13"); E("s_add_u32 s62, s62, s63")
            E("s_and_b32 s63, s2, 7"); E("s_lshl_b32 s63, s63, 7"); E("s_add_u32 s62, s62, s63"); E(f"v_add_u32 v{AD+3}, s62, v{AD+2}")
            for i in range(3): E(f"v_subrev_u32 v{AD+4+i}, {3072-1024*i}, v{AD+3}")
            E("s_lshl_b32 s63, s63, 2"); E(f"v_lshl_add_u32 v{AD+7}, v{AD+1}, 4, s63")
            for i in range(3): V(f"buffer_load_dword v{KR+i}, v{AD+4+i}, s[{RA}:{RA+3}], 0 offen")
            for i in range(4): V(f"buffer_load_dword v{KR+3+i}, v{AD+3}, s[{RA}:{RA+3}], 0 offen offset:{1024*i}")
            for i in range(4): V(f"buffer_load_dword v{VR+i}, v{AD+3}, s[{RC}:{RC+3}], 0 offen offset:{1024*i}")
            V(f"buffer_load_dwordx4 {v(SH,4)}, v{AD+7}, s[{RD}:{RD+3}], 0 offen")
            return L
        NSL = 21
        def side_math():
            L = []; E = lambda t: L.append(op(t)); V = lambda t: L.append(op(t, DC))
            W2 = 48
            E("s_mov_b32 s60, 0x05040100"); E("s_mov_b32 s61, 0x07060302")
            for j in range(4): E(f"v_perm_b32 v{W2+j}, v{WO+2*j+1}, v{WO+2*j}, s60")
            for j in range(4): E(f"v_perm_b32 v{W2+4+j}, v{WO+2*j+1}, v{WO+2*j}, s61")
            E(f"s_lshl_b32 s60, s{SW}, 8"); E(f"s_add_u32 s60, s60, s{SF}"); E("s_lshl_b32 s60, s60, 11"); E(f"s_add_u32 s60, s60, {WOT_OFF}")
            for mt in range(2): V(f"buffer_store_dwordx4 {v(W2+4*mt,4)}, v{VL16}, s[{RWS}:{RWS+3}], s60 offen offset:{1024*mt}{self.st}")
            KU, SU, OO, VU, PQ = 32, 42, 48, 39, 52
            for c in range(2):
                def unp(d, sreg, half): E(f"v_lshlrev_b32 v{d}, 16, v{sreg}" if half == 0 else f"v_and_b32 v{d}, 0xffff0000, v{sreg}")
                for i in range(7): unp(KU+i, KR+i, c)
                for j in range(4): unp(SU+j, SH + 2*c + (j >> 1), j & 1)
                for o in range(4):
                    E(f"v_mul_f32 v{OO+o}, v{KU+o}, v{SU+3}")
                    for j in (2, 1, 0): E(f"v_fmac_f32 v{OO+o}, v{KU+o+3-j}, v{SU+j}")
                    unp(VU, VR+o, c)
                    E(f"v_mul_f32 v{OO+o}, v{OO+o}, v{VU}")
                d = PQ + 2*(1-c)
                E(f"v_cvt_pk_bf16_f32 v{d}, v{OO+3}, v{OO+2}"); E(f"v_cvt_pk_bf16_f32 v{d+1}, v{OO+1}, v{OO}")
            E(f"v_lshlrev_b32 v{AD+1}, 5, v{AD+1}"); E(f"v_lshl_add_u32 v{AD+1}, v{AD}, 4, v{AD+1}")
            E(f"v_permlane32_swap_b32 v{PQ+2}, v{PQ}"); E(f"v_permlane32_swap_b32 v{PQ+3}, v{PQ+1}")
            E("s_lshr_b32 s60, s2, 3"); E("s_lshl_b32 s60, s60, 16"); E(f"s_lshl_b32 s61, s{SW}, 13"); E("s_add_u32 s60, s60, s61")
            E("s_and_b32 s61, s2, 7"); E("s_lshl_b32 s61, s61, 10"); E("s_add_u32 s60, s60, s61"); E(f"s_add_u32 s60, s60, {KVT_OFF}")
            V(f"buffer_store_dwordx4 {v(PQ,4)}, v{AD+1}, s[{RWS}:{RWS+3}], s60 offen{self.st}")
            return L
        CL = self.o.get("cl", 8)
        def touch(k):
            if k in (1, 2):
                I(f"s_lshr_b32 s60, s{SF}, 1"); I("s_lshl_b32 s60, s60, 15"); I(f"s_and_b32 s61, s{SF}, 1"); I("s_lshl_b32 s61, s61, 13"); I("s_add_u32 s60, s60, s61")
                if k == 2: I("s_add_u32 s60, s60, 16384")
                I("v_lshlrev_b32 v16, 7, v0"); r = RE
            elif k in (3, 4):
                I("s_lshr_b32 s60, s2, 3"); I("s_lshl_b32 s60, s60, 16"); I("s_and_b32 s61, s2, 7"); I("s_lshl_b32 s61, s61, 7"); I("s_add_u32 s60, s60, s61")
                I("v_lshlrev_b32 v16, 10, v0"); r = RA if k == 3 else RC
            else:
                I(f"s_lshl_b32 s60, s{SF}, 13"); I("v_lshlrev_b32 v16, 7, v0"); r = RB
            I(f"buffer_load_dword v1, v16, s[{r}:{r+3}], s60 offen")
        LSITE = a.label("SITE")
        def site_code():
            a.L(LSITE)
            def ret(): I("s_nop 1"); I("s_setpc_b64 s[76:77]")
            l = a.label("SN"); I(f"s_cmp_lg_u32 s41, {CL}"); I(f"s_cbranch_scc1 {l}")
            for c, _ in side_loads(): c()
            ret(); a.L(l)
            l = a.label("SN"); I(f"s_add_u32 s44, s41, s{SG}"); I(f"s_cmp_lg_u32 s44, {CL+2}"); I(f"s_cbranch_scc1 {l}")
            for c, _ in side_math(): c()
            ret(); a.L(l)
            for k in range(1, 6):
                l = a.label("SN")
                I(f"s_cmp_lg_u32 s41, {k}"); I(f"s_cbranch_scc1 {l}")
                touch(k); ret(); a.L(l)
            I(f"s_lshl_b32 s44, s{SF}, 2"); I(f"s_add_u32 s44, s44, {FY_OFF}")
            sv = self.save(); self.publish(44, 2); self.restore(sv)
            ret()
        def spf():
            I("s_add_u32 s41, s41, 1"); rarely("s_bitcmp1_b32 s40, s41", lambda: I(f"s_call_b64 s[76:77], {LSITE}"))
        spub = (spf, 12)
        def snap():
            I(f"s_mov_b32 s61, {FY_OFF}"); I(f"buffer_load_dwordx4 v[52:55], v{VL16}, s[{RWS}:{RWS+3}], s61 offen sc1")
        def side_check():
            lo = a.label("SCK"); lb = a.label("SCR")
            def test():
                I("v_and_b32 v52, v52, v53"); I("v_and_b32 v54, v54, v55"); I("v_and_b32 v52, v52, v54"); I("v_and_b32 v52, 2, v52"); I("v_cmp_ne_u32 vcc, 2, v52")
            test(); I(f"s_cbranch_vccnz {lo}"); a.L(lb)
            def spin():
                lp = a.label("SPL")
                I("s_mov_b32 s99, 20000"); a.L(lp)
                I("s_sleep 2"); I(f"buffer_load_dwordx4 v[52:55], v{VL16}, s[{RWS}:{RWS+3}], s61 offen sc1"); I("s_waitcnt vmcnt(0)")
                test(); I(f"s_cbranch_vccz {lb}")
                I("s_sub_u32 s99, s99, 1"); I("s_cmp_lg_u32 s99, 0"); I(f"s_cbranch_scc1 {lp}")
            ool.append((lo, lb, spin))
        m2 = lambda sb, ko: (lambda: rarely(f"s_cmp_eq_u32 s{SC2}, 0", lambda: (snap(), mask_body(sb, ko))))
        LEV = a.label("EVEN"); LODM = a.label("ODDM"); LTRANS = a.label("TRANS"); LP2 = a.label("P2"); LP2B = a.label("P2B"); LDRAIN = a.label("DRAIN")
        self.stamp(8)
        self.ring_n = 0
        R = [rd("k", 0, i) for i in range(8)] + [rd("k", 1, i) for i in range(8)]
        def qrd(i):
            I(f"ds_read_b128 {v(QF+4*i,4)}, v{TMP+1} offset:{1024*i}"); return lg.issue()
        for i in range(4): qrd(i); R[i][0]()
        for i in range(4, 8): tq = qrd(i)
        D = dma4("v") + dma4("k")
        fx = {g: [(R[4+g][0], 4)] for g in range(4)}
        put(fx, 3, [(lambda: lg.wait(tq), 4)])
        for F in range(8, 15): put(fx, last_use(F - 8) + 1, [(R[F][0], 4)])
        for n, d in enumerate(D): put(fx, 2*n, [d])
        sched(qk(0, R, 0, True), fx, [])
        m1(0, 0)()
        pre = init_max()
        fx = {0: [(R[15][0], 4)], 8: [op(f"v_xor_b32 v{VV}, 0x10000, v{VK}"), op(f"v_xor_b32 v{VK}, 0x4000, v{VK}")]}
        sched(qk(1, R, 8), fx, pre + sm_ops(0)[:SPL])
        R = mk_reads()
        head(R, vm4, False, post=[m1(1, 32)])
        svm = self.save()
        self.stamp(9)
        LOD = [a.label("ODD0"), a.label("ODD1")]
        I(f"s_cmp_eq_u32 s{SG}, 1"); I(f"s_cbranch_scc1 {LOD[1]}"); I(f"s_branch {LOD[0]}")
        vm0 = lambda: I("s_waitcnt vmcnt(0)")
        def loops(g):
            LEV = a.label("EVEN"); LP2 = a.label("P2")
            mm = (lambda sb, ko: m1(sb, ko)) if g else (lambda sb, ko: None)
            a.L(LEV)
            R = mk_reads(); head(R, vm4)
            mid(R, "k", [op(f"v_xor_b32 v{VK}, 0x4000, v{VK}")], mb=mm(0, 0), early=[spub], g=g)
            R = mk_reads(); head(R, vm4, post=[m1(1, 32)] if g else [])
            assert self.lg.issued - self.lg.done == svm[2] - svm[3]
            a.L(LOD[g])
            mid(R, "v", [op(f"v_xor_b32 v{VK}, 0xc000, v{VK}")], mb=mm(0, 64), endops=[op(f"s_sub_u32 s{SC1}, s{SC1}, 1")], early=[spub], g=g)
            I(f"s_cmp_lg_u32 s{SC1}, -1"); I(f"s_cbranch_scc1 {LEV}")
            self.stamp(14)
            if g:
                loadq(VQ); I("s_waitcnt lgkmcnt(0)"); I(f"v_xor_b32 v{VK}, 0x4000, v{VK}")
            R = mk_reads(); head(R, vm4, more=mask_ops(1, 96) if g else ())
            mid(R, "k", [op(f"v_xor_b32 v{VK}, 0x8000, v{VK}")], mb=m2(0, -1), trans=bool(g), early=[spub], g=g)
            self.stamp(15)
            I(f"s_cmp_eq_u32 s{SC2}, 0"); I(f"s_cbranch_scc1 {LDRAIN}")
            a.L(LP2)
            R = mk_reads(); head(R, vm08 if g else vm0)
            mid(R, "kv", [op(f"v_xor_b32 v{VK}, 0x8000, v{VK}")], mb=m2(0, -1), endops=[sta] if g else [],
                early=[spub] + ([(fin, 8)] if g else []) + [op(f"s_sub_u32 s{SC2}, s{SC2}, 1")], g=g)
            I(f"s_cmp_lg_u32 s{SC2}, 0"); I(f"s_cbranch_scc1 {LP2}")
        loops(1); I(f"s_branch {LDRAIN}")
        loops(0)
        a.L(LDRAIN)
        self.stamp(10)
        R2 = [rd("v", 0, i) for i in range(8)] + [rd("v", 1, i) for i in range(8)]
        rf = [(f, 4) for f, h in R2]
        ts, ts2, ts3 = self.tail_setup()
        tsa = [x for x in ts if x[1] == 4]; tsl = [x for x in ts if x[1] != 4]
        mk_ = mask_ops(1, -33)
        head(R2, lambda: (vm08(), side_check(), tsl[0][0](), tsl[1][0]()), post=[fin, sta[0]], pre=tsa[:8], more=tsa[8:16] + [tsl[2]] + mk_)
        ts = tsa[16:]
        if self.o.get("dst"): self.stamp(17)
        pre = []; E_ = lambda t: pre.append(op(t))
        E_(f"s_add_u32 s44, s{SWK}, {ML}"); E_(f"v_add_u32 v54, s44, v{VL16}")
        E_(f"s_lshl_b32 s46, s{SW}, 13"); E_(f"v_add_u32 v55, s46, v{VL16}")
        E_(f"s_sub_u32 s54, 15, s{SIDX}"); E_(f"s_lshl_b32 s54, s54, 2"); E_(f"s_add_u32 s54, s54, s{SR}"); E_("s_lshl_b32 s54, s54, 5"); E_(f"s_add_u32 s54, s54, s{SHEAD}")
        E_("s_lshl_b32 s54, s54, 13"); E_(f"s_lshl_b32 s44, s{SG}, 12"); E_("s_add_u32 s54, s54, s44"); E_(f"s_add_u32 s54, s54, {CTX_OFF}")
        def lsum():
            def wml():
                I(f"ds_write_b128 v54, {v(150,4)}"); lg.issue()
            return [op(f"v_mov_b32 v150, v{NM}"), op(f"v_mov_b32 v{LS+1}, v{LS+4}"), (wml, 4)]
        def osend(g, i):
            def f():
                I(f"ds_write_b128 v55, {v(O+32*(1-g)+4*i,4)} offset:{1024*i}"); lg.issue()
            return (f, 16)
        lj = a.label("MGJ"); LMG = [a.label("MG0"), a.label("MG1")]; LFB = a.label("FB1"); LSK = a.label("SKIP"); LS1 = a.label("SK1")
        I(f"s_lshl_b32 s45, s{SG}, 1"); I(f"s_sub_u32 s45, s{SR}, s45"); I("s_cmp_lt_i32 s45, 1"); I(f"s_cbranch_scc1 {LSK}")
        svd = self.save(); rnd = self.ring_n
        setup_ = ts + pre + ts3; n8 = (len(setup_) + 15) // 16
        fx = {g: setup_[g*n8:(g+1)*n8] for g in range(16)}
        for F in range(7, 15): put(fx, 2*(F - 7) + (2 if F > 7 else 0), [rf[F]])
        sched(pv(0, R2, 0), fx, sm_ops(1))
        check(1)
        rf[15][0]()
        if self.o.get("dst"): self.stamp(20)
        I(f"s_cmp_eq_u32 s{SG}, 1"); I(f"s_cbranch_scc1 {LFB}")
        sv2 = self.save(); PR = 64
        for g in (0, 1):
            if g: a.L(LFB); self.restore(sv2)
            own = O + 32*g; snd = O + 32*(1-g)
            dts = list(range(4*(1-g), 4*(1-g)+4)) + list(range(4*g, 4*g+4))
            fx = {10 + i: [osend(g, i)] for i in range(8)}
            put(fx, 8, lsum())
            sched(pv(1, R2, 8, dts, True), fx, self.tail_valu())
            a.L(LMG[g])
            if self.o.get("dst"): self.stamp(18)
            I(f"v_xor_b32 v54, 0x1c00, v54"); I(f"v_xor_b32 v55, 0xe000, v55")
            I("s_waitcnt lgkmcnt(0)"); lg.mark_all_done(); self.barrier()
            if self.o.get("dst"): self.stamp(19)
            I(f"ds_read_b128 {v(96,4)}, v54"); t0 = lg.issue()
            tk = []
            for i in range(8):
                I(f"ds_read_b128 {v(PR+4*i,4)}, v55 offset:{1024*i}"); tk.append(lg.issue())
            lg.wait(t0)
            for q in range(2):
                I(f"v_min_f32 v100, v{150+q}, v{96+q}"); I(f"v_sub_f32 v101, v100, v{150+q}"); I(f"v_sub_f32 v102, v100, v{96+q}")
                I("v_exp_f32 v101, v101"); I("v_exp_f32 v102, v102")
                I(f"v_mul_f32 v103, v101, v{LS+q}"); I(f"v_fmac_f32 v103, v102, v{98+q}"); I("v_rcp_f32 v103, v103")
                b = 104 + 4*q
                I(f"v_mul_f32 v{b}, v101, v103"); I(f"v_mul_f32 v{b+1}, v101, v103"); I(f"v_mul_f32 v{b+2}, v102, v103"); I(f"v_mul_f32 v{b+3}, v102, v103")
            tw = self.tail_writes()
            for q in range(4):
                b = 104 + 4*(q & 1)
                for i in range(8*q, 8*q+8, 2): I(f"v_pk_mul_f32 {v(own+i,2)}, {v(own+i,2)}, {v(b,2)}")
                lg.wait(tk[2*q+1])
                if not self.o.get("twe"):
                    for c in tw[3*q:3*q+3]: c()
                for i in range(8*q, 8*q+8, 2): I(f"v_pk_fma_f32 {v(own+i,2)}, {v(PR+i,2)}, {v(b+2,2)}, {v(own+i,2)}")
                for i in range(4): I(f"v_cvt_pk_bf16_f32 v{snd+4*q+i}, v{own+8*q+2*i}, v{own+8*q+2*i+1}")
                I(f"buffer_store_dwordx4 {v(snd+4*q,4)}, v{VSC}, s[{RWS}:{RWS+3}], s54 offen offset:{coff(q)}{self.st}"); self.tctx = vm.issue()
            if self.o.get("twe"):
                for c in tw: c()
            if not g: I(f"s_branch {lj}")
        def skip_path():
            keep = self.save(); tctx = self.tctx; th = self.th
            a.L(LSK); self.restore(svd); self.ring_n = rnd
            I("s_cmp_lt_i32 s45, 0"); I(f"s_cbranch_scc1 {LS1}")
            rf[7][0]()
            for f in pv(0, R2[:8], 0): f()
            a.L(LS1)
            for c, _ in setup_ + lsum() + self.tail_valu(): c()
            l1 = a.label("SG1"); I(f"s_cmp_eq_u32 s{SG}, 1"); I(f"s_cbranch_scc1 {l1}")
            for g in (0, 1):
                if g: a.L(l1)
                for i in range(8): osend(g, i)[0]()
                I(f"s_branch {LMG[g]}")
            self.restore(keep); self.tctx = tctx; self.th = th
        a.L(lj)
        I("s_setprio 0")
        self.stamp(4)
        def cold():
            skip_path()
            site_code()
            for (lo, lb, body) in ool:
                a.L(lo); body(); I(f"s_branch {lb}")
            for (lr, lb, sb, other) in rare:
                a.L(lr)
                I("s_nop 15")
                rowmax(sb)
                for q in range(2): I(f"v_add_f32 v{TMP+q}, {f2u(BIAS)}, v{TMP+q}"); I(f"v_max_f32 v{TMP+q}, 0, v{TMP+q}"); I(f"v_exp_f32 v{TMP+2+q}, -v{TMP+q}")
                for r in range(8): I(f"v_sub_f32 v{NM+r}, v{NM+r}, v{TMP+(r>>2)}")
                for r in range(16): I(f"v_sub_f32 v{S[sb]+r}, v{S[sb]+r}, v{TMP+(r>>3)}")
                if other:
                    for r in range(16): I(f"v_sub_f32 v{S[1-sb]+r}, v{S[1-sb]+r}, v{TMP+(r>>3)}")
                for r in range(64): I(f"v_mul_f32 v{O+r}, v{O+r}, v{TMP+2+((r>>3)&1)}")
                for r in range(8): I(f"v_mul_f32 v{LS+r}, v{LS+r}, v{TMP+2+(r>>2)}")
                for c, _ in sm_ops(sb): c()
                I("s_nop 1"); I(f"s_branch {lb}")
        self.attn_rare = cold

    HB = 65536; HC = 4416; XB = 136192; YB = 148480
    SC, SJ, SB, SCH, SHB_, SWO, SCX = 34, 35, 36, 37, 38, 39, 40
    WS_ = [16, 24, 32, 40, 176, 184, 56, 80, 88, 96, 104, 144, 152, 160]
    CS_ = [168, 112, 120, 128, 136, 64, 72]
    NL = 4
    def tail_setup(self):
        I = self.I; L = []; E = lambda t: L.append((lambda: I(t), 4))
        SC, SJ, SB, SCH, SHB_, SWO, SCX = self.SC, self.SJ, self.SB, self.SCH, self.SHB_, self.SWO, self.SCX
        self.wtok = {}; self.wslot = dict(enumerate(self.WS_))
        E(f"s_lshr_b32 s{SC}, s{SW}, 2"); E(f"s_and_b32 s{SJ}, s{SW}, 3")
        E(f"s_lshl_b32 s{SCH}, s{SF}, 1"); E(f"s_add_u32 s{SCH}, s{SCH}, s{SC}"); E(f"s_lshl_b32 s{SCH}, s{SCH}, 12")
        E(f"s_lshl_b32 s60, s{SJ}, 10"); E("v_add_u32 v50, s60, v6"); E("v_subrev_u32 v51, 16, v50")
        E(f"s_lshl_b32 s63, s{SW}, 18"); E(f"s_lshl_b32 s62, s{SF}, 5"); E("s_add_u32 s63, s63, s62"); E(f"s_add_u32 s63, s63, {KVT_OFF}")
        E("v_lshrrev_b32 v48, 1, v0"); E("v_and_b32 v158, 1, v0" if False else "v_and_b32 v3, 1, v0"); E("v_lshlrev_b32 v49, 13, v48"); E("v_lshl_add_u32 v49, v3, 4, v49")
        def ld(t):
            def f(): I(t); self.th = self.vm.issue()
            L.append((f, 16))
        ld(f"buffer_load_dwordx4 {v(160,4)}, v51, s[{RB}:{RB+3}], s{SCH} offen")
        ld(f"buffer_load_dwordx4 {v(164,4)}, v50, s[{RB}:{RB+3}], s{SCH} offen")
        ld(f"buffer_load_dwordx4 {v(168,4)}, v49, s[{RWS}:{RWS+3}], s63 offen{self.ld}")
        E(f"s_lshl_b32 s{SWO}, s57, 19" if not self.o.get("samew") else f"s_mov_b32 s{SWO}, 0"); E(f"s_lshl_b32 s60, s{SW}, 16"); E(f"s_add_u32 s{SWO}, s{SWO}, s60"); E(f"s_add_u32 s{SWO}, s{SWO}, {WOT_OFF}")
        L2 = [(lambda i=i: self.wload(i), 36) for i in range(self.o.get("we", 0))]
        L3 = []; L, Lx = L3, L
        E = lambda t: L3.append((lambda: I(t), 4))
        E(f"s_mul_i32 s{SB}, s{SC}, 6144"); E(f"s_add_u32 s{SB}, s{SB}, {self.XB}")
        E(f"s_mul_i32 s{SHB_}, s{SC}, {8*self.HC}"); E(f"s_add_u32 s{SHB_}, s{SHB_}, {self.HB}")
        E(f"s_lshl_b32 s{SCX}, s56, 19" if not self.o.get("samec") else f"s_mov_b32 s{SCX}, 0"); E(f"s_lshl_b32 s60, s{SW}, 15"); E(f"s_add_u32 s{SCX}, s{SCX}, s60"); E(f"s_add_u32 s{SCX}, s{SCX}, {CTX_OFF}")
        return Lx, L2, L3
    def wreg(self, i):
        return self.WS_[i % len(self.WS_)]
    def wload(self, i):
        I = self.I; r = self.wslot[i]
        I(f"s_add_u32 s61, s{self.SWO}, {i*2048}")
        for mt in range(2):
            I(f"buffer_load_dwordx4 {v(r+4*mt,4)}, v6, s[{RWS}:{RWS+3}], s61 offen offset:{mt*1024}{self.ld}"); self.wtok[i] = self.vm.issue()
    def tail_valu(self):
        I = self.I; HC = self.HC; L = []; E = lambda t: L.append((lambda: I(t), 4))
        SJ, SB, SHB_ = self.SJ, self.SB, self.SHB_
        Ee, Eo, Oe, Oo = 160, 113, 122, 131
        E(f"s_add_u32 s60, s{SHB_}, 64"); E("v_add_u32 v138, s60, v50")
        E("v_and_b32 v51, 3, v48"); E("v_mul_u32_u24 v139, 1536, v51"); E("v_lshrrev_b32 v53, 2, v48"); E("v_lshl_add_u32 v139, v53, 4, v139")
        E("v_and_b32 v53, 1, v0"); E("v_mul_u32_u24 v53, 6144, v53"); E(f"s_lshl_b32 s60, s{SW}, 7"); E(f"s_add_u32 s60, s60, {self.XB + 512}"); E("v_add3_u32 v139, v139, v53, s60")
        E("v_and_b32 v51, 3, v0")
        for r in range(2): E(f"v_mov_b64 {v(172+2*r,2)}, 0")
        E("v_bfe_u32 v140, v0, 2, 3"); E(f"v_mul_u32_u24 v140, {HC}, v140"); E("v_lshl_add_u32 v140, v51, 4, v140"); E(f"v_add_u32 v140, s{SHB_}, v140")
        E(f"s_mul_i32 s60, s{SJ}, 1536"); E(f"s_add_u32 s60, s60, s{SB}"); E("v_lshl_add_u32 v141, v0, 3, s60")
        E("s_waitcnt vmcnt(1)")
        for k in range(7): E(f"v_alignbit_b32 v{Oe+k}, v{Ee+k+1}, v{Ee+k}, 16")
        for k in range(1, 7): E(f"v_alignbit_b32 v{Oo+k}, v{Ee+k+1}, v{Ee+k}, 16")
        for k in range(1, 7): E(f"v_mov_b32 v{Eo+k}, v{Ee+k}")
        return L
    def tail_writes(self):
        I = self.I; lg = self.lg; HC = self.HC; L = []
        Ee, Eo, Oe, Oo = 160, 113, 122, 131
        def W(t, pre=None):
            def f():
                if pre: pre()
                I(t); lg.issue()
            L.append(f)
        for r in range(8):
            sft = 1 + r; k = sft >> 1
            base = ((Oe, Oo) if sft & 1 else (Ee, Eo))[k & 1]
            W(f"ds_write_b128 v138, {v(base+k,4)} offset:{r*HC}")
        W(f"ds_write_b128 v140, {v(172,4)}"); W(f"ds_write_b64 v141, {v(172,2)}")
        W(f"ds_write_b128 v139, {v(168,4)}", lambda: self.vm.wait(self.th))
        return L
    def tailp(self):
        a = self.a; I = self.I; vm = self.vm; lg = self.lg
        HB, HC, YB = self.HB, self.HC, self.YB
        SC, SJ, SB, SCH, SHB_, SWO, SCX = self.SC, self.SJ, self.SB, self.SCH, self.SHB_, self.SWO, self.SCX
        ACC = 192; FRS = [224, 240, 64]; RD_ = 224
        VL16, VA, VB, T, VP, VPA, VO, GR, VLW, XR = 6, 4, 5, 12, 7, 8, 9, 10, 11, 48
        OACC = 192
        NW, NCX, NL = len(self.WS_), len(self.CS_), self.o.get("nl", 0)
        wtok = self.wtok; ctok = {}; wslot = self.wslot; cslot = dict(enumerate(self.CS_))
        I(f"s_lshr_b32 s53, s56, 1"); I("s_lshl_b32 s53, s53, 10"); I(f"s_lshl_b32 s44, s{SW}, 7"); I("s_add_u32 s53, s53, s44"); I(f"s_add_u32 s53, s53, {FC_OFF}")
        I(f"v_and_b32 v{VPA}, 3, v0"); I(f"v_lshlrev_b32 v{VPA}, 2, v{VPA}")
        P0 = self.o.get("p0", 0)
        tc0 = self.poll_issue(VP, VPA, "s53") if P0 else self.tctx
        PUBN = self.o.get("pubn", 1)
        I(f"s_lshr_b32 s45, s{SHEAD}, 2"); I("s_lshl_b32 s45, s45, 7"); I(f"s_and_b32 s44, s{SHEAD}, 3"); I("s_lshl_b32 s44, s44, 2"); I("s_add_u32 s45, s45, s44")
        I(f"s_sub_u32 s44, 15, s{SIDX}"); I("s_lshl_b32 s44, s44, 10"); I("s_add_u32 s46, s44, s45"); I(f"s_add_u32 s46, s46, {FC_OFF}")
        I(f"s_lshl_b32 s44, s{SIDX}, 10"); I("s_add_u32 s47, s44, s45"); I(f"s_add_u32 s47, s47, {FC_OFF}")
        self.srd(RC, "out", 2*MB); self.srd(RD, "q", 2*MB)
        I(f"s_lshl_b32 s44, s{SF}, 2"); I(f"s_load_dword s55, s[{P['ssmD']}:{P['ssmD']+1}], s44")
        I(f"v_and_b32 v{T}, 31, v0"); I(f"v_lshrrev_b32 v{T+1}, 5, v0")
        I(f"v_and_b32 v{T+2}, 7, v0"); I(f"v_mul_u32_u24 v{VA}, {HC}, v{T+2}")
        I(f"v_bfe_u32 v{T+2}, v0, 3, 2"); I(f"v_sub_u32 v{T+2}, v{T+2}, v{T+1}"); I(f"v_lshl_add_u32 v{VA}, v{T+2}, 4, v{VA}")
        I(f"s_lshl_b32 s43, s{SJ}, 9"); I(f"s_add_u32 s43, s43, s{SHB_}"); I("s_add_u32 s43, s43, 32"); I(f"v_add_u32 v{VA}, s43, v{VA}")
        I(f"s_lshl_b32 s43, s{SJ}, 7"); I(f"s_sub_u32 s43, s{SB}, s43"); I("s_add_u32 s43, s43, 400")
        I(f"v_lshl_add_u32 v{VB}, v{T}, 4, s43"); I(f"v_mul_u32_u24 v{T+2}, 1536, v{T+1}"); I(f"v_add_u32 v{VB}, v{VB}, v{T+2}")
        I(f"s_lshl_b32 s51, s{SW}, 13"); I(f"v_add_u32 v{VLW}, s51, v{VL16}")
        I("s_waitcnt lgkmcnt(0)"); lg.mark_all_done(); self.barrier()
        self.stamp(5)
        def cload(i):
            r = cslot[i]
            I(f"s_add_u32 s62, s{SCX}, {(i//4)*4096}"); I("s_add_u32 s63, s62, 0x40000")
            for st in range(2):
                I(f"buffer_load_dwordx4 {v(r+4*st,4)}, v{VL16}, s[{RWS}:{RWS+3}], s{62+st} offen offset:{(i%4)*1024}{self.ld}"); ctok[i] = vm.issue()
        ltok = {}
        def lstage(j):
            I(f"s_add_u32 m0, s51, {j*2048}"); I(f"s_add_u32 s61, s{SWO}, {(NW+j)*2048}")
            for mt in range(2):
                I(f"buffer_load_dwordx4 v{VL16}, s[{RWS}:{RWS+3}], s61 offen offset:{mt*1024}{self.ld} lds"); ltok[j] = vm.issue()
        def early(lo, hi, level):
            le = a.label("NE")
            I(f"s_cmp_lg_u32 s50, {level}"); I(f"s_cbranch_scc1 {le}")
            sv = self.save()
            for i in range(lo, hi): cload(i)
            self.restore(sv); I(f"s_mov_b32 s50, {level+1}")
            a.L(le)
        def seen():
            I(f"v_and_b32 v{VP}, 1, v{VP}"); I(f"v_cmp_ne_u32 vcc, 1, v{VP}"); I("s_cmp_eq_u64 vcc, 0"); I("s_cselect_b32 s52, 1, 0"); I("s_max_u32 s50, s50, s52")
        I("s_mov_b32 s50, 0")
        wl = [lambda i=i: self.wload(i) for i in range(NW) if i not in wtok] + [lambda j=j: lstage(j) for j in range(NL)]
        steps = [(dd, ks) for dd in range(8) for ks in range(2)]
        toks = {}
        def reads(n):
            dd, ks = steps[n]; b = FRS[n % 3]
            def r(k, reg, addr, off):
                def f():
                    I(f"ds_read_b128 {v(reg,4)}, v{addr} offset:{off}"); toks[(n, k)] = lg.issue()
                return f
            return [r(0, b, VA, 64*dd + 32*(1-ks)), r(1, b+4, VB, ks*3072 + (7-dd)*16),
                    r(2, b+8, VB, ks*3072 + (7-dd)*16 + 512), r(3, b+12, VA, 64*dd + 32*(1-ks) + 2048)]
        for n in range(2):
            for f in reads(n): f()
        for n in range(16):
            b = FRS[n % 3]; L = reads(n+2) if n + 2 < 16 else []
            c0 = "0" if n == 0 else v(ACC,16); c1 = "0" if n == 0 else v(ACC+16,16)
            lg.wait(toks[(n,1)]); I(f"{MFMA} {v(ACC,16)}, {v(b,4)}, {v(b+4,4)}, {c0}")
            for f in L[0:2]: f()
            lg.wait(toks[(n,2)]); I(f"{MFMA} {v(ACC+16,16)}, {v(b,4)}, {v(b+8,4)}, {c1}")
            for f in L[2:3]: f()
            lg.wait(toks[(n,3)]); I(f"{MFMA} {v(ACC+16,16)}, {v(b+12,4)}, {v(b+4,4)}, {v(ACC+16,16)}")
            for f in L[3:4]: f()
            if n == PUBN:
                vm.wait(tc0); self.barrier(); self.publish(46); self.publish(47)
                if P0: seen()
            if n >= PUBN and n < 14:
                for _ in range(-(-len(wl) // (14 - n))): wl.pop(0)()
            if n == self.o.get("p1", 12): tc1 = self.poll_issue(VP, VPA, "s53")
            if n == 14 and P0: early(0, NCX - 2, 1)
        assert not wl
        I(f"s_add_u32 s43, s51, {HB}"); I(f"v_add_u32 v{T+2}, s43, v{VL16}")
        self.barrier()
        for i in range(8):
            I(f"ds_write_b128 v{T+2}, {v(ACC+4*i,4)} offset:{1024*i}"); lg.issue()
        I(f"s_lshl_b32 s43, s{SC}, 15"); I(f"s_lshl_b32 s44, s{SJ}, 11"); I("s_add_u32 s43, s43, s44"); I(f"s_add_u32 s43, s43, {HB}"); I(f"v_add_u32 v{T+2}, s43, v{VL16}")
        I(f"s_and_b32 s43, s{SJ}, 1"); I("s_mul_i32 s44, s43, 3072"); I(f"s_lshr_b32 s45, s{SJ}, 1"); I("s_lshl_b32 s41, s45, 9")
        I("s_add_u32 s44, s44, s41"); I(f"s_add_u32 s44, s44, s{SB}"); I("s_add_u32 s44, s44, 520")
        I(f"v_lshl_add_u32 v{T+3}, v{T}, 4, s44"); I(f"v_lshlrev_b32 v{VA}, 3, v{T+1}"); I(f"v_sub_u32 v{T+3}, v{T+3}, v{VA}")
        I(f"v_lshlrev_b32 v{VB}, 6, v{T}"); I(f"v_lshl_add_u32 v{VB}, v{T+1}, 4, v{VB}")
        I("s_lshl_b32 s45, s45, 11"); I("s_lshl_b32 s43, s43, 5"); I("s_add_u32 s45, s45, s43"); I(f"s_lshl_b32 s43, s{SC}, 12"); I("s_add_u32 s45, s45, s43")
        I(f"s_add_u32 s45, s45, {YB}"); I(f"v_add_u32 v{VB}, s45, v{VB}")
        I("s_lshl_b32 s43, s55, 16"); I("s_and_b32 s44, s55, 0xffff0000"); I(f"s_cmp_eq_u32 s{SC}, 0"); I("s_cselect_b32 s55, s43, s44")
        lg.wait(lg.issued); self.barrier()
        self.stamp(12)
        for p in range(4):
            for gq in range(2):
                I(f"ds_read_b128 {v(RD_+8*p+4*gq,4)}, v{T+2} offset:{8192*p+1024*gq}"); lg.issue()
        for gq in range(2):
            I(f"ds_read_b64 {v(ACC+2*gq,2)}, v{T+3} offset:{1536*gq}"); lg.issue()
        lk = a.label("SK"); I("s_cmp_lg_u32 s50, 0"); I(f"s_cbranch_scc1 {lk}")
        sv = self.save(); vm.wait(tc1); seen(); self.restore(sv); early(0, NCX - 2, 1)
        a.L(lk)
        early(NCX - 2, NCX, 2)
        lg.wait(lg.issued)
        for i in range(0, 8, 2):
            I(f"v_pk_add_f32 {v(RD_+i,2)}, {v(RD_+i,2)}, {v(RD_+8+i,2)}"); I(f"v_pk_add_f32 {v(RD_+16+i,2)}, {v(RD_+16+i,2)}, {v(RD_+24+i,2)}")
        for i in range(0, 8, 2): I(f"v_pk_add_f32 {v(RD_+i,2)}, {v(RD_+i,2)}, {v(RD_+16+i,2)}")
        for gq in range(2):
            for r in range(4):
                srcr = ACC + 2*gq + (1 - (r >> 1))
                I(f"v_lshlrev_b32 v{ACC+8}, 16, v{srcr}" if r & 1 else f"v_and_b32 v{ACC+8}, 0xffff0000, v{srcr}")
                I(f"v_fma_f32 v{RD_+4*gq+r}, v{ACC+8}, s55, v{RD_+4*gq+r}")
        for i in range(4): I(f"v_cvt_pk_bf16_f32 v{ACC+12+i}, v{RD_+2*i}, v{RD_+2*i+1}")
        I(f"v_permlane32_swap_b32 v{ACC+12}, v{ACC+14}"); I(f"v_permlane32_swap_b32 v{ACC+13}, v{ACC+15}")
        I(f"ds_write_b128 v{VB}, {v(ACC+12,4)}"); lg.issue()
        lg.wait(lg.issued); self.barrier()
        ly = a.label("NY")
        I(f"s_cmp_lg_u32 s{SW}, 0"); I(f"s_cbranch_scc1 {ly}")
        I(f"v_add_u32 v{T}, {YB}, v{VL16}")
        for i in range(8): I(f"ds_read_b128 {v(RD_+4*i,4)}, v{T} offset:{1024*i}")
        I(f"s_lshl_b32 s44, s{SF}, 13"); I(f"s_add_u32 s44, s44, {YT_OFF}"); I("s_add_u32 s45, s44, 4096")
        I("s_waitcnt lgkmcnt(0)")
        for i in range(8): I(f"buffer_store_dwordx4 {v(RD_+4*i,4)}, v{VL16}, s[{RWS}:{RWS+3}], s{44+(i>>2)} offen offset:{1024*(i&3)}{self.st}")
        a.L(ly)
        ll = a.label("NL")
        I("s_cmp_eq_u32 s50, 3"); I(f"s_cbranch_scc1 {ll}")
        self.poll_check(VP, VPA, "s53", 1)
        for i in range(NCX): cload(i)
        a.L(ll)
        self.stamp(6)
        YT = self.XB
        lrd = {}; ypub = False; ymark = vm.issued; free = []; fresh = []; nw = NW; nw2 = NW + NL; nc = NCX
        for i in range(32):
            if i % 4 == 0 and self.o.get("ostamp"): self.stamp(17 + i // 4)
            if i == 14:
                I(f"s_lshl_b32 s53, s57, 7"); I(f"s_lshl_b32 s42, s{SW}, 4"); I("s_add_u32 s53, s53, s42"); I(f"s_add_u32 s53, s53, {FY_OFF}")
                tf = self.poll_issue(VP, VPA, "s53")
            if i == 24:
                vm.wait(tf); self.poll_check(VP, VPA, "s53", 1)
                I(f"v_lshrrev_b32 v{T}, 3, v0"); I(f"v_and_b32 v{T+1}, 7, v0"); I(f"v_lshlrev_b32 v{T+1}, 4, v{T+1}")
                I(f"v_lshl_add_u32 v{T}, v{T}, 12, v{T+1}")
                I(f"s_add_u32 m0, s{SWK}, {YT}")
                I(f"s_lshl_b32 s44, s57, 18"); I(f"s_lshl_b32 s45, s{SW}, 15"); I("s_add_u32 s44, s44, s45")
                I(f"s_lshl_b32 s45, s56, 7"); I("s_add_u32 s44, s44, s45"); I(f"s_add_u32 s44, s44, {YT_OFF}")
                I(f"buffer_load_dwordx4 v{T}, s[{RWS}:{RWS+3}], s44 offen{self.ld} lds"); vm.issue()
                I(f"v_and_b32 v{T+1}, 15, v0"); I(f"s_lshr_b32 s48, s{SW}, 1"); I("s_lshl_b32 s48, s48, 4")
                I(f"s_lshl_b32 s45, s56, 6"); I("s_add_u32 s45, s45, s48"); I(f"v_add_u32 v{T+1}, s45, v{T+1}")
                I(f"v_lshlrev_b32 v{T+2}, 2, v{T+1}"); I(f"s_mov_b32 s45, {G_OFF}")
                I(f"buffer_load_dword v{GR}, v{T+2}, s[{RWS}:{RWS+3}], s45 offen{self.ld}"); vm.issue()
                I(f"v_lshrrev_b32 v{T+2}, 4, v0"); I(f"v_lshlrev_b32 v{T+2}, 4, v{T+2}"); I(f"v_lshl_add_u32 v{VO}, v{T+1}, 10, v{T+2}")
                I(f"s_and_b32 s49, s{SW}, 1"); I("s_lshl_b32 s49, s49, 6"); I(f"s_lshl_b32 s45, s57, 7"); I("s_add_u32 s49, s49, s45")
                I(f"buffer_load_dwordx4 {v(XR,4)}, v{VO}, s[{RD}:{RD+3}], s49 offen"); vm.issue()
            vm.wait(max(ctok[i], wtok.get(i, 0)))
            if i in lrd: lg.wait(lrd[i])
            if not ypub and vm.done > ymark:
                ypub = True
                I(f"s_lshl_b32 s44, s{SF}, 2"); I(f"s_add_u32 s44, s44, {FY_OFF}"); self.publish(44, 3)
            for mt in range(2):
                for st in range(2):
                    d = v(OACC + 16*(2*mt+st), 16)
                    I(f"{MFMA} {d}, {v(wslot[i]+4*mt,4)}, {v(cslot[i]+4*st,4)}, {'0' if i == 0 else d}")
            lagged, fresh = fresh, [wslot[i], cslot[i]]
            free += fresh
            while free:
                if nw < NW + NL and nw - i <= 3:
                    j = nw - NW; assert vm.done >= ltok[j]
                    r = free.pop(0); wslot[nw] = r
                    I("s_nop 3")
                    for mt in range(2):
                        I(f"ds_read_b128 {v(r+4*mt,4)}, v{VLW} offset:{j*2048+mt*1024}"); lrd[nw] = lg.issue()
                    nw += 1
                elif nc < 32 and (nc <= nw2 or nw2 >= 32):
                    cslot[nc] = free.pop(0); cload(nc); nc += 1
                elif nw2 < 32:
                    wslot[nw2] = free.pop(0); self.wload(nw2); nw2 += 1
                else: break
        self.stamp(7)
        I(f"v_and_b32 v{T}, 31, v0"); I(f"v_lshrrev_b32 v{T+1}, 5, v0"); I(f"v_and_b32 v{T+2}, 15, v0")
        I(f"v_lshlrev_b32 v{T+1}, 1, v{T+1}")
        I(f"v_xor_b32 v{T+1}, v{T+1}, v{T+2}"); I(f"v_lshlrev_b32 v{T+1}, 4, v{T+1}"); I(f"v_lshl_add_u32 v{T}, v{T}, 8, v{T+1}")
        I(f"v_add_u32 v{T}, s51, v{T}")
        for mt in range(2):
            for gq in range(4):
                I(f"v_xor_b32 v{T+1}, {(4*gq+mt)*16}, v{T}"); I(f"v_add_u32 v{T+3}, 0x10000, v{T+1}")
                for st in range(2):
                    I(f"ds_write_b128 v{T+1+2*st}, {v(OACC+16*(2*mt+st)+4*gq,4)}"); lg.issue()
        I(f"v_lshrrev_b32 v{T}, 4, v0"); I(f"s_and_b32 s41, s{SW}, 1"); I("s_lshl_b32 s42, s41, 3")
        I(f"v_lshl_add_u32 v{T+1}, v{T}, 1, s42"); I(f"v_xor_b32 v{T+1}, v{T+1}, v{T+2}"); I(f"v_lshlrev_b32 v{T+1}, 4, v{T+1}")
        I("s_and_b32 s43, s48, 16"); I(f"v_add_u32 v{T+3}, s43, v{T+2}"); I(f"v_lshl_add_u32 v24, v{T+3}, 8, v{T+1}")
        I("s_lshr_b32 s43, s48, 5"); I("s_lshl_b32 s43, s43, 16"); I("v_add_u32 v24, s43, v24"); I("v_xor_b32 v25, 16, v24")
        I("s_lshl_b32 s42, s41, 5"); I(f"v_lshl_add_u32 v{T}, v{T}, 3, s42"); I(f"v_bfe_u32 v{T+1}, v0, 2, 2")
        I(f"v_add_u32 v{T}, v{T}, v{T+1}"); I(f"v_lshlrev_b32 v{T}, 7, v{T}"); I(f"v_and_b32 v{T+1}, 3, v0")
        I(f"v_lshl_add_u32 v{T}, v{T+1}, 3, v{T}"); I("s_lshl_b32 s42, s48, 1"); I(f"s_add_u32 s42, s42, {YT}"); I(f"v_add_u32 v28, s42, v{T}")
        self.sync_all()
        CX = 128; tk = []
        I(f"ds_read_b64_tr_b16 {v(100,2)}, v28"); lg.issue()
        I(f"ds_read_b64_tr_b16 {v(102,2)}, v28 offset:512"); ty2 = lg.issue()
        for p in range(8):
            for hh in range(2):
                I(f"ds_read_b128 {v(CX+8*p+4*hh,4)}, v{24+hh} offset:{8192*p}"); lg.issue()
            tk.append(lg.issued)
            if p == 5:
                lg.wait(ty2)
                for e in range(8):
                    if e & 1: I(f"v_and_b32 v104, 0xffff0000, v{XR+(e>>1)}"); I(f"v_and_b32 v105, 0xffff0000, v{100+(e>>1)}")
                    else: I(f"v_lshlrev_b32 v104, 16, v{XR+(e>>1)}"); I(f"v_lshlrev_b32 v105, 16, v{100+(e>>1)}")
                    I(f"v_mul_f32 v{112+e}, v104, v105"); I(f"v_mul_f32 v{112+e}, v{112+e}, v{GR}")
                I(f"v_sub_f32 v{GR}, 1.0, v{GR}")
        for p in range(1, 8):
            lg.wait(tk[p])
            for e in range(0, 8, 2): I(f"v_pk_add_f32 {v(CX+e,2)}, {v(CX+e,2)}, {v(CX+8*p+e,2)}")
        for e in range(8): I(f"v_fmac_f32 v{112+e}, v{CX+4*(e&1)+(e>>1)}, v{GR}")
        for e in range(4): I(f"v_cvt_pk_bf16_f32 v{108+e}, v{112+2*e}, v{112+2*e+1}")
        I(f"buffer_store_dwordx4 {v(108,4)}, v{VO}, s[{RC}:{RC+3}], s49 offen{' sc1' if not self.o.get('outpl') else ' nt' if self.o.get('outnt') else ''}"); vm.issue()
        self.stamp(16)
        if self.o.get("echo"):
            lp = a.label("EC")
            I("s_sub_u32 s100, s100, s96")
            if self.o.get("cyc"): I("s_lshr_b32 s100, s100, 4")
            I("s_memrealtime s[96:97]"); I("s_waitcnt lgkmcnt(0)")
            a.L(lp)
            I("s_memrealtime s[98:99]"); I("s_waitcnt lgkmcnt(0)"); I("s_sub_u32 s98, s98, s96"); I("s_cmp_lt_u32 s98, s100"); I(f"s_cbranch_scc1 {lp}")
        if self.o.get("dbgout") is not None:
            l = a.label("DB")
            I(f"s_cmp_lg_u32 s2, {self.o['dbgout']}"); I(f"s_cbranch_scc1 {l}"); I(f"s_cmp_lg_u32 s{SW}, 0"); I(f"s_cbranch_scc1 {l}")
            I("s_waitcnt vmcnt(0)")
            order = [0, 1, 2, 3, 8, 10, 11, 4, 5, 12, 6, 7, 16]
            I("v_mov_b32 v20, 0")
            for j, i in enumerate(order):
                I(f"s_mov_b32 s44, {4*i}"); I(f"v_writelane_b32 v20, s44, {j}")
            I(f"s_lshl_b32 s44, s2, 11"); I(f"s_add_u32 s44, s44, {STAMP_OFF}")
            I(f"buffer_load_dword v21, v20, s[{RWS}:{RWS+3}], s44 offen sc1"); I("s_waitcnt vmcnt(0)")
            I("v_readfirstlane_b32 s45, v21"); I("v_subrev_u32 v21, s45, v21")
            self.srd(RDBG, "dbg", 64); I("v_lshlrev_b32 v22, 2, v0")
            I(f"buffer_store_dword v21, v22, s[{RDBG}:{RDBG+3}], 0 offen")
            a.L(l)

def build(opts):
    g = G(opts); k = NAME + "_kernel"
    g.begin(k); g.a.T("; MARK p"); g.proj(); g.a.T("; MARK a"); g.attn(); g.a.T("; MARK t"); g.tailp(); g.end(); g.a.T("; MARK a"); g.attn_rare(); g.a.T("; MARK t"); g.a.L("CODE_END"); g.a.I("s_endpgm")
    n = g.a.fix_hazards()
    txt = "; @launch grid=(256,1,1) block=(512,1,1) lds=163840\n"
    txt += '.amdgcn_target "amdgcn-amd-amdhsa--gfx950"\n.text\n' + g.a.text()
    txt += f""".section .rodata,"a"
.p2align 6
.amdhsa_kernel {k}
  .amdhsa_next_free_vgpr 256
  .amdhsa_next_free_sgpr 102
  .amdhsa_accum_offset 256
  .amdhsa_group_segment_fixed_size 0
  .amdhsa_kernarg_size 128
  .amdhsa_user_sgpr_count 2
  .amdhsa_user_sgpr_kernarg_segment_ptr 1
  .amdhsa_system_sgpr_workgroup_id_x 1
.end_amdhsa_kernel
"""
    print(f"instructions {sum(1 for it in g.a.items if it[0] == 'i')}, nops inserted {n}", file=sys.stderr)
    return txt

if __name__ == "__main__":
    opts = {}
    for x in sys.argv[2:]:
        if "=" in x: k_, v_ = x.split("="); opts[k_] = int(v_)
        else: opts[x] = True
    open(sys.argv[1], "w").write(build(opts))
```

```python
import sys, math, struct
sys.path.insert(0, "gen")
from asmlib import *

NAME = "gated_mix__ssm_conv_h3__compressed_kv_cla__prompt"
MB = 1 << 20
KV_OFF, Q_OFF, CTX_OFF, KVT_OFF, YT_OFF, G_OFF = 0, 32*MB, 48*MB, 64*MB, 66*MB, 68*MB
XC_OFF = 40*MB
WOT_OFF = 32*MB
FLG_OFF = 68*MB + 65536
FK_OFF, FY_OFF, FC_OFF = FLG_OFF, FLG_OFF + 4096, FLG_OFF + 8192
STAMP_OFF = 69*MB
WS_SIZE = 70*MB
P = dict(q=64, k=66, v=68, shift=70, ssmk=72, ssmD=74, bx=76, ckv=78, wq=80, wuk=82, wuv=84, wo=86, gate=88, out=90, dbg=92, ws=94)
SW, SHEAD, SIDX, SWK, SF = 3, 4, 5, 6, 7
RA, RB, RC, RWS, RD, RE, RT, RDBG = 8, 12, 16, 20, 24, 28, 56, 60
MFMA = "v_mfma_f32_32x32x16_bf16"
LOG2E = 1.4426950408889634
F_KV, F_CA, F_CB, F_Y = 1, 2, 4, 8
def f2u(x): return "0x%08x" % struct.unpack("<I", struct.pack("<f", x))[0]
def rep4(b): return b * 0x01010101

class G:
    def __init__(self, opts):
        self.a = Asm(); self.o = opts
        self.GSH, self.FSH = (8, 10) if opts.get("lin") else (11, 8)
        self.vm = Cnt(self.a, "vmcnt", 63); self.lg = Cnt(self.a, "lgkmcnt", 15)
        self.st = "" if opts.get("plainst") else (" sc1 nt" if opts.get("ntst") else " sc1"); self.ld = "" if opts.get("plainld") else " sc1"
    def I(self, t): self.a.I(t)
    def srd(self, r, ptr, nbytes):
        I = self.I
        I(f"s_mov_b32 s{r}, s{P[ptr]}"); I(f"s_mov_b32 s{r+1}, s{P[ptr]+1}")
        I(f"s_mov_b32 s{r+2}, {nbytes}"); I(f"s_mov_b32 s{r+3}, 0x00020000")
    def save(self): return (self.vm.issued, self.vm.done, self.lg.issued, self.lg.done)
    def restore(self, s_): self.vm.issued, self.vm.done, self.lg.issued, self.lg.done = s_
    def stream(self, mf, fills):
        n = len(mf); slots = [[] for _ in range(n + 1)]
        for (s0, e0, cl) in fills:
            m = e0 - s0
            for j, c in enumerate(cl): slots[s0 + 1 + (j * m) // len(cl)].append(c)
        for c in slots[0]: c()
        for i in range(n):
            mf[i]()
            for c in slots[i+1]: c()
    def stamp(self, i, dyn=None):
        if self.o.get("echo") == i:
            self.I("s_memtime s[100:101]" if self.o.get("cyc") else "s_memrealtime s[100:101]"); self.I("s_waitcnt lgkmcnt(0)")
        if not self.o.get("stamp"): return
        I = self.I
        I("s_memrealtime s[96:97]"); I("s_memtime s[100:101]")
        I("s_lshl_b32 s98, s2, 3"); I(f"s_add_u32 s98, s98, s{SW}"); I("s_lshl_b32 s98, s98, 8")
        I(f"s_add_u32 s98, s98, {STAMP_OFF + 4*i}")
        if dyn is not None:
            I(f"s_lshl_b32 s99, s{dyn}, 4"); I("s_add_u32 s98, s98, s99")
        I("s_waitcnt lgkmcnt(0)")
        I("v_mov_b32 v2, s96"); I("v_mov_b32 v3, 0")
        I(f"buffer_store_dword v2, v3, s[{RWS}:{RWS+3}], s98 offen")
        I("v_mov_b32 v2, s100")
        I(f"buffer_store_dword v2, v3, s[{RWS}:{RWS+3}], s98 offen offset:128")
    OOB = 0x40000000
    def publish(self, soff, val=1, srd=RWS, byte=False, idx=None):
        I = self.I
        self.oob_sel()
        if idx is not None: I(f"s_and_b32 s98, s{SIDX}, 3"); I(f"s_cmp_eq_u32 s98, {idx}"); I(f"s_cselect_b32 s99, s99, {self.OOB}")
        I(f"v_mov_b32 v2, {val}"); I("v_mov_b32 v3, s99")
        I(f"buffer_store_{'byte' if byte else 'dword'} v2, v3, s[{srd}:{srd+3}], s{soff} offen sc1"); self.vm.issue()
    def oob_sel(self):
        self.I(f"s_cmp_eq_u32 s{SW}, 0"); self.I(f"s_cselect_b32 s99, 0, {self.OOB}")
    def poll_issue(self, vd, vaddr, soff, srd=RWS):
        self.I(f"buffer_load_dword v{vd}, v{vaddr}, s[{srd}:{srd+3}], {soff} offen sc1"); return self.vm.issue()
    def poll_check(self, vd, vaddr, soff, want, srd=RWS):
        a = self.a; I = self.I
        l = a.label("PCK"); lp = a.label("POLL")
        I(f"s_mov_b32 s98, {want}"); I("s_mov_b32 s99, 20000")
        a.L(lp)
        I(f"v_and_b32 v{vd}, s98, v{vd}"); I(f"v_cmp_ne_u32 vcc, s98, v{vd}"); I(f"s_cbranch_vccz {l}")
        I("s_sleep 2")
        I(f"buffer_load_dword v{vd}, v{vaddr}, s[{srd}:{srd+3}], {soff} offen sc1")
        I("s_sub_u32 s99, s99, 1"); I("s_cmp_lg_u32 s99, 0"); I("s_waitcnt vmcnt(0)"); I(f"s_cbranch_scc1 {lp}")
        a.L(l)
    def barrier(self): self.I("s_barrier")
    def sync_all(self):
        self.I("s_waitcnt vmcnt(0) lgkmcnt(0)"); self.vm.mark_all_done(); self.lg.mark_all_done(); self.barrier()

    def begin(self, kname):
        a = self.a; I = self.I
        a.T(f".globl {kname}\n.p2align 8\n.type {kname},@function"); a.L(kname)
        self.endl = a.label("END")
        if self.o.get("stamp"): I("s_memrealtime s[30:31]")
        if self.o.get("echo"): I("s_memtime s[96:97]" if self.o.get("cyc") else "s_memrealtime s[96:97]")
        I("s_load_dwordx16 s[64:79], s[0:1], 0"); I("s_load_dwordx16 s[80:95], s[0:1], 64")
        I("s_cmp_ge_u32 s2, 256"); I(f"s_cbranch_scc1 {self.endl}")
        I("v_lshrrev_b32 v1, 6, v0"); I("v_and_b32 v0, 63, v0"); I(f"v_readfirstlane_b32 s{SW}, v1")
        I("s_and_b32 s7, s2, 7"); I("s_lshl_b32 s7, s7, 2")
        I(f"s_lshr_b32 s{SIDX}, s2, 3"); I(f"s_lshr_b32 s{SHEAD}, s{SIDX}, 3"); I(f"s_add_u32 s{SHEAD}, s{SHEAD}, s7")
        I(f"s_and_b32 s{SIDX}, s{SIDX}, 7"); I(f"s_lshl_b32 s{SWK}, s{SW}, 10")
        I(f"s_lshl_b32 s{SF}, s{SHEAD}, 3"); I(f"s_add_u32 s{SF}, s{SF}, s{SIDX}")
    def end(self):
        self.a.L(self.endl); self.I("s_endpgm")

    def proj(self):
        a = self.a; I = self.I; vm = self.vm; lg = self.lg
        QA_LDS = 65536
        ACC = {"K": 64, "V": 128, "Q": 64}
        FX = [16, 24]; FW = [192, 32]
        VWA = 4; VSK, VSV, VOX, VOW, VST = 8, 9, 10, 11, 12; VXA = 224; T = 232
        NB = 0; XC = self.o.get("xc", 0)
        ST = [("KV", c) for c in range(NB)] + [("K", c) for c in range(NB, 8)] + [("V", c) for c in range(7, NB - 1, -1)] + [("Q", c) for c in range(8)]
        NS = len(ST); TK = 7; TV = NS - 9; TQ = NS - 8
        I("v_lshrrev_b32 v13, 3, v0"); I(f"s_lshl_b32 s40, s{SW}, 3"); I("v_add_u32 v13, s40, v13"); I("v_lshlrev_b32 v13, 10, v13")
        I(f"s_lshr_b32 s41, s{SW}, 1"); I(f"s_xor_b32 s40, s41, s{SW}"); I("s_and_b32 s40, s40, 1"); I("s_lshl_b32 s40, s40, 2")
        I("v_lshrrev_b32 v14, 4, v0"); I("v_add_u32 v15, s40, v14")
        I("v_and_b32 v3, 7, v0"); I("v_xor_b32 v15, v15, v3"); I(f"v_lshl_add_u32 v{VOX}, v15, 4, v13")
        I(f"s_lshl_b32 s40, s{SW}, 2"); I("v_add_u32 v13, s40, v14"); I("v_lshlrev_b32 v13, 13, v13")
        I("s_and_b32 s41, s41, 1"); I("s_lshl_b32 s41, s41, 3"); I("v_lshl_add_u32 v15, v14, 1, s41"); I("v_and_b32 v3, 15, v0"); I("v_xor_b32 v15, v15, v3")
        I("v_lshl_add_u32 v13, v15, 4, v13"); I(f"s_lshl_b32 s40, s{SHEAD}, 8"); I(f"v_add_u32 v{VOW}, s40, v13")
        I(f"v_lshlrev_b32 v{VST}, 4, v0")
        I(f"s_lshl_b32 s44, s{SIDX}, 18")
        for i in range(1, 4): I(f"s_add_u32 s{44+i}, s44, {65536*i}")
        ROT = self.o.get("rot", 2)
        if ROT == 0: I("s_mov_b32 s33, 0")
        elif ROT == 1: I(f"s_mov_b32 s33, s{SIDX}")
        elif ROT == 2: I(f"s_lshr_b32 s33, s{SHEAD}, 2"); I(f"s_add_u32 s33, s33, s{SIDX}")
        elif ROT == 3: I(f"s_lshr_b32 s33, s{SHEAD}, 2"); I(f"s_add_u32 s33, s33, s{SIDX}"); I(f"s_lshl_b32 s34, s{SHEAD}, 1"); I("s_add_u32 s33, s33, s34")
        elif ROT == 4: I(f"s_lshr_b32 s33, s{SHEAD}, 2")
        if self.o.get("rotq"): I(f"s_lshl_b32 s32, s{SHEAD}, 1"); I("s_add_u32 s32, s32, s33")
        else: I("s_mov_b32 s32, s33")
        I("s_waitcnt lgkmcnt(0)")
        if self.o.get("stamp"): I("s_memrealtime s[28:29]")
        self.srd(RA, "ckv", 2*MB); self.srd(RB, "wuk", 4*MB); self.srd(RC, "wuv", 4*MB)
        def xbase(t):
            k, c = ST[t]
            return (32768, 131072, 0)[((16 + c) if k == "Q" else (15 - c + NB)) % 3]
        units = [(t, m) for t in range(NS) for m in ST[t][0]]
        uidx = {u: i for i, u in enumerate(units)}
        def wbase(t, m): return 65536 + (uidx[(t, m)] % 4)*16384
        items = []
        lastx = {}
        for t in range(NS):
            k, c = ST[t]
            for m in k:
                u = uidx[(t, m)]
                def w(i, t=t, m=m, c=c):
                    if i == 0: I(f"s_add_u32 s34, s{32 if m == 'Q' else 33}, {c}"); I("s_and_b32 s34, s34, 7"); I("s_lshl_b32 s34, s34, 19")
                    I(f"s_add_u32 m0, s{SWK}, {wbase(t, m) + i*8192}"); I(f"s_add_u32 s41, s34, {i*262144}")
                    r = {"K": RB, "V": RC, "Q": RE}[m]
                    I(f"buffer_load_dwordx4 v{VOW}, s[{r}:{r+3}], s41 offen lds"); dtok[t] = vm.issue()
                items.append((t, units[u-4][0] if u >= 4 else -1, [lambda i=i, w=w: w(i) for i in range(2)]))
            key = ("Q" if k == "Q" else "C", c); prev = lastx.get(xbase(t))
            if prev is None or prev[1] != key:
                def x(i, t=t, k=k, c=c):
                    if i == 0: I(f"s_add_u32 s35, s{32 if k == 'Q' else 33}, {c}"); I("s_and_b32 s35, s35, 7"); I("s_lshl_b32 s35, s35, 7")
                    I(f"s_add_u32 m0, s{SWK}, {xbase(t) + i*8192}"); I(f"s_add_u32 s41, s{(48 if k == 'Q' else 44)+i}, s35")
                    r = (RWS if XC else RD) if k == "Q" else RA
                    I(f"buffer_load_dwordx4 v{VOX}, s[{r}:{r+3}], s41 offen{self.ld if (XC and k == 'Q') else ''} lds"); dtok[t] = vm.issue()
                items.append((t, prev[0] if prev else -1, [lambda i=i, x=x: x(i) for i in range(4)]))
            lastx[xbase(t)] = (t, key)
        dtok = {}
        def take(done, upto=99):
            out = []
            for it in list(items):
                if it[1] <= done and it[0] <= upto: out += it[2]; items.remove(it)
            return out
        for f in take(-1, 0): f()
        self.srd(RWS, "ws", WS_SIZE); self.srd(RDBG, "dbg", 256)
        if self.o.get("wsoff"): I(f"s_add_u32 s{RWS}, s{RWS}, {self.o['wsoff']*MB}"); I(f"s_addc_u32 s{RWS+1}, s{RWS+1}, 0")
        self.stamp(31)
        if self.o.get("stamp"):
            I("v_mov_b32 v2, s30"); I("s_sub_u32 s98, s98, 124"); I(f"buffer_store_dword v2, v3, s[{RWS}:{RWS+3}], s98 offen")
            I("v_mov_b32 v2, s28"); I(f"buffer_store_dword v2, v3, s[{RWS}:{RWS+3}], s98 offen offset:120")
        I(f"s_lshl_b32 s48, s{SIDX}, 17"); I("s_add_u32 s49, s48, 65536")
        I(f"s_sub_u32 s50, 15, s{SIDX}"); I("s_lshl_b32 s50, s50, 17"); I("s_add_u32 s51, s50, 65536")
        if XC:
            for i in range(4): I(f"s_add_u32 s{48+i}, s{48+i}, {XC_OFF}")
        I(f"s_and_b32 s42, s{SW}, 3"); I("s_lshl_b32 s42, s42, 6"); I(f"s_lshr_b32 s43, s{SW}, 2"); I("s_lshl_b32 s43, s43, 1")
        I("v_and_b32 v13, 15, v0"); I("v_lshrrev_b32 v15, 4, v0")
        I("v_lshrrev_b32 v14, 1, v13"); I("v_xor_b32 v14, v14, v15"); I("v_lshlrev_b32 v14, 4, v14")
        I("v_add_u32 v3, s42, v13"); I(f"v_lshl_add_u32 v{VXA}, v3, 7, v14")
        I("v_and_b32 v2, 8, v13"); I("v_add_u32 v3, v3, v2"); I(f"v_lshl_add_u32 v{VXA+4}, v3, 7, v14")
        for pt in range(2):
            b = VXA + 4*pt
            I(f"v_xor_b32 v{b+1}, 64, v{b}"); I(f"v_add_u32 v{b+2}, 0x20000, v{b}"); I(f"v_add_u32 v{b+3}, 0x20000, v{b+1}")
        I("v_lshlrev_b32 v3, 4, v13"); I("v_and_b32 v2, 1, v15"); I("v_lshl_add_u32 v3, v2, 9, v3"); I("v_lshrrev_b32 v14, 1, v15")
        I("v_lshlrev_b32 v3, 4, v13"); I(f"v_lshl_add_u32 v{VSK}, v15, {self.GSH}, v3")
        I("v_bfe_u32 v13, v0, 2, 2"); I("v_lshl_add_u32 v14, v15, 3, v13"); I("v_lshlrev_b32 v14, 8, v14")
        I("v_and_b32 v3, 3, v0"); I("v_lshl_add_u32 v14, v3, 3, v14"); I("v_add_u32 v14, 0x10000, v14")
        I("v_lshl_add_u32 v13, v2, 2, v13"); I("s_lshl_b32 s40, s43, 1"); I("v_xor_b32 v13, s40, v13"); I(f"v_lshl_add_u32 v{VWA}, v13, 5, v14")
        for dt in range(1, 4): I(f"v_xor_b32 v{VWA+dt}, {dt << 5}, v{VWA}")
        I(f"s_lshl_b32 s54, s{SHEAD}, 4"); I(f"s_lshl_b32 s55, s{SIDX}, 1"); I("s_add_u32 s54, s54, s55")
        I(f"s_bfe_u32 s55, s{SW}, 0x10001"); I("s_add_u32 s54, s54, s55"); I("s_lshl_b32 s54, s54, 16")
        I(f"s_and_b32 s55, s{SW}, 1"); I("s_lshl_b32 s55, s55, 14"); I("s_add_u32 s54, s54, s55")
        I(f"s_lshl_b32 s55, s43, {self.FSH+1}"); I("s_add_u32 s52, s54, s55"); I("s_add_u32 s52, s52, 0x8000")
        I(f"s_lshl_b32 s55, s43, {self.FSH}"); I("s_add_u32 s54, s54, s55")
        XG = T; GW = T + 4; hl = {}
        def gate_loads():
            L = []
            def E(t): L.append(lambda: I(t))
            def V(t):
                def f(): I(t); hl["t"] = vm.issue()
                L.append(f)
            E(f"s_lshl_b32 s40, s{SHEAD}, 7"); E(f"s_lshl_b32 s39, s{SIDX}, 2"); E("s_add_u32 s40, s40, s39"); E(f"s_add_u32 s40, s40, {FK_OFF}")
            E(f"v_mov_b32 v13, s40")
            E(f"s_lshr_b32 s39, s{SHEAD}, 2"); E("s_lshl_b32 s39, s39, 7"); E(f"s_and_b32 s40, s{SHEAD}, 3"); E("s_lshl_b32 s40, s40, 2"); E("s_add_u32 s39, s39, s40")
            E(f"s_lshl_b32 s40, s{SIDX}, 10"); E("s_add_u32 s40, s40, s39"); E(f"s_add_u32 s40, s40, {FC_OFF}")
            E("v_writelane_b32 v13, s40, 1")
            E(f"s_sub_u32 s40, 15, s{SIDX}"); E("s_lshl_b32 s40, s40, 10"); E("s_add_u32 s40, s40, s39"); E(f"s_add_u32 s40, s40, {FC_OFF}")
            E("v_writelane_b32 v13, s40, 2")
            E(f"s_lshl_b32 s40, s{SF}, 2"); E(f"s_add_u32 s40, s40, {FY_OFF}"); E("v_writelane_b32 v13, s40, 3"); E("v_mov_b32 v14, 0")
            def oo(): self.oob_sel(); I("v_add_u32 v13, s99, v13")
            L.append(oo)
            V(f"buffer_store_dword v14, v13, s[{RWS}:{RWS+3}], 0 offen sc1")
            E("s_lshl_b32 s37, s2, 3"); E(f"s_add_u32 s37, s37, s{SW}"); E("s_lshl_b32 s38, s37, 10")
            L.append(lambda: self.srd(RD, "q", 2*MB)); L.append(lambda: self.srd(RE, "wq", 4*MB)); L.append(lambda: self.srd(RT, "gate", 1024))
            V(f"buffer_load_dwordx4 {v(XG,4)}, v{VST}, s[{RD}:{RD+3}], s38 offen")
            V(f"buffer_load_dwordx4 {v(GW,4)}, v{VST}, s[{RT}:{RT+3}], 0 offen")
            return L
        def gate_ops():
            L = []; E = lambda t: L.append(lambda: I(t)); Z = T + 8
            L.append(lambda: vm.wait(hl["t"]))
            def xs():
                I(f"s_add_u32 s38, s38, {XC_OFF}"); I(f"buffer_store_dwordx4 {v(XG,4)}, v{VST}, s[{RWS}:{RWS+3}], s38 offen{self.st}"); vm.issue()
            if XC: L.append(xs)
            E(f"v_dot2_f32_bf16 v{Z}, v{XG}, v{GW}, 0")
            for i in range(1, 4): E(f"v_dot2_f32_bf16 v{Z}, v{XG+i}, v{GW+i}, v{Z}")
            for m in ("quad_perm:[1,0,3,2] row_mask:0xf", "quad_perm:[2,3,0,1] row_mask:0xf", "row_half_mirror row_mask:0xf", "row_mirror row_mask:0xf",
                      "row_bcast:15 row_mask:0xa", "row_bcast:31 row_mask:0xc"):
                E(f"v_add_f32_dpp v{Z}, v{Z}, v{Z} {m} bank_mask:0xf")
            E(f"v_readlane_b32 s36, v{Z}, 63"); E(f"v_mov_b32 v{Z+1}, {f2u(-LOG2E)}"); E(f"v_mul_f32 v{Z}, s36, v{Z+1}")
            E(f"v_exp_f32 v{Z}, v{Z}"); E(f"v_add_f32 v{Z}, 1.0, v{Z}"); E(f"v_rcp_f32 v{Z}, v{Z}")
            E("s_lshl_b32 s38, s37, 2"); E(f"s_add_u32 s38, s38, {G_OFF}"); E(f"v_mov_b32 v{Z+1}, 0")
            def gs():
                I(f"buffer_store_dword v{Z}, v{Z+1}, s[{RWS}:{RWS+3}], s38 offen{self.st}"); vm.issue()
            L.append(gs)
            return L
        toks = {}
        def rdx(t, mt):
            m = ST[t][0]; xb = xbase(t); pt = 0
            off = (xb & 65535) + ((mt >> 1)*4096 + (mt & 1)*1024 if pt else mt*2048)
            def f(kk):
                va = VXA + 4*pt + 2*(xb >> 17) + (kk ^ (mt & 1))
                I(f"ds_read_b128 {v(FX[mt & 1]+4*kk,4)}, v{va} offset:{off}"); toks[("x", t, mt, kk)] = lg.issue()
            return [lambda: f(0), lambda: f(1)]
        def rdw(t, dt):
            m = ST[t][0]
            def f(kk, h):
                I(f"ds_read_b64_tr_b16 {v(FW[t & 1]+8*dt+4*kk+2*h,2)}, v{VWA+dt} offset:{wbase(t, m)-65536+kk*8192+h*1024}"); toks[("w", t, dt, kk)] = lg.issue()
            return [lambda kk=kk, h=h: f(kk, h) for kk in range(2) for h in range(2)]
        def atile(m, mt, dt): return ACC[m] + (4*(((mt >> 1)*4 + dt)*2 + (mt & 1)) if m == "V" else 4*(mt*4 + dt))
        def mfs(t, mt):
            m = ST[t][0]; first = t == 0 or ST[t-1][0] != m; L = []
            order = [(dt, kk) for dt in range(4) for kk in range(2)] if not self.o.get("nochain") else [(dt, kk) for kk in range(2) for dt in range(4)]
            for dt, kk in order:
                def f(dt=dt, kk=kk):
                    lg.wait(max(toks[("x", t, mt, kk)], toks[("w", t, dt, kk)]))
                    d = v(atile(m, mt, dt), 4); X = v(FX[mt & 1]+4*kk, 4); W = v(FW[t & 1]+8*dt+4*kk, 4)
                    c = "0" if (first and kk == 0) else d
                    I(f"v_mfma_f32_16x16x32_bf16 {d}, {X}, {W}, {c}" if m == "V" else f"v_mfma_f32_16x16x32_bf16 {d}, {W}, {X}, {c}")
                L.append(f)
            return L
        def pieces(m):
            fs = 1024 if m == "Q" else 1 << self.FSH
            if m == "V": return [(atile(m, 2*p, dt), p*8192 + dt*fs) for p in range(2) for dt in range(4)]
            return [(atile(m, mt, 2*j), (mt >> 1)*8192 + ((mt & 1)*4 + j)*fs) for mt in range(4) for j in range(2)]
        def kv_out(m):
            out = []
            for b, off in pieces(m):
                pk = [lambda i=i, b=b: I(f"v_cvt_pk_bf16_f32 v{b+i}, v{b+2*i}, v{b+2*i+1}") for i in range(4)]
                if m == "K": pk = [lambda i=i, b=b: I(f"v_mul_f32 v{b+i}, {f2u(LOG2E / math.sqrt(128.0))}, v{b+i}") for i in range(8)] + pk
                def st(b=b, off=off):
                    I(f"s_add_u32 s41, s{54 if m == 'K' else 52}, {off}")
                    I(f"buffer_store_dwordx4 {v(b,4)}, v{VSK}, s[{RWS}:{RWS+3}], s41 offen{self.st}"); vm.issue()
                out.append((pk, st))
            return out
        side = {}; late = {}
        def spread(ops, t0, t1, dst=side, ks=(0, 1, 2)):
            sl = [(t, k) for t in range(t0, t1) for k in ks]; n = len(ops)
            for j, key in enumerate(sl): dst.setdefault(key, []).extend(ops[n*j//len(sl): n*(j+1)//len(sl)])
        PG = self.o.get("pg", 0)
        spread(gate_loads(), PG, PG + 1); spread(gate_ops(), PG + 2, PG + 3)
        def wtouch(r, half, wv):
            def f():
                I(f"s_cmp_eq_u32 s{SW}, {wv}"); I(f"s_cselect_b32 s99, 0, {self.OOB}")
                I(f"s_lshl_b32 s40, s{SIDX}, 19"); I(f"s_lshl_b32 s39, s{SHEAD}, 8"); I("s_add_u32 s40, s40, s39"); I(f"s_add_u32 s40, s40, {half*32*8192}")
                I("v_lshrrev_b32 v3, 1, v0"); I("v_lshlrev_b32 v3, 13, v3"); I("v_and_b32 v2, 1, v0"); I("v_lshl_add_u32 v3, v2, 7, v3"); I("v_add_u32 v3, s99, v3")
                I(f"buffer_load_dword v1, v3, s[{r}:{r+3}], s40 offen"); vm.issue()
            return f
        for nm, r, dflt in (("tk", RB, -1), ("tv", RC, 1), ("tq", RE, 3)):
            t0 = self.o.get(nm, dflt)
            if t0 >= 0:
                for half in range(2): side.setdefault((t0 + half, 2), []).append(wtouch(r, half, half))
        KN = self.o.get("kn", 8); VD = self.o.get("vd", 0); VN = self.o.get("vn", 5)
        KO = kv_out("K"); VO = kv_out("V")
        spread(sum((p for p, _ in KO), []), TK + 1, min(TK + 3, TQ), ks=(0, 1))
        npk = 2 * (min(TK + 3, TQ) - TK - 1)
        spread([s_ for _, s_ in KO], TK + 1, TK + 1 + KN, dst=late, ks=(2,))
        assert len(late[(TK + 1, 2)]) <= 8 * 2 // npk
        spread(sum((p for p, _ in VO), []), TQ, TQ + 1, ks=(0, 1))
        spread([s_ for _, s_ in VO], TQ + VD, TQ + VD + VN, dst=late, ks=(2,))
        PK_, PV_ = TK + KN + 2, TQ + VD + VN
        assert PK_ <= NS - 5 and PV_ <= NS - 2
        QE = []; EQ = lambda t: QE.append(lambda: I(t))
        EQ(f"s_and_b32 s55, s{SW}, 2"); EQ("s_lshl_b32 s55, s55, 15"); EQ(f"s_add_u32 s55, s55, {QA_LDS}")
        EQ(f"s_and_b32 s54, s{SW}, 1"); EQ("s_lshl_b32 s54, s54, 14"); EQ("s_add_u32 s55, s55, s54")
        EQ("s_lshl_b32 s54, s43, 10"); EQ("s_add_u32 s55, s55, s54"); EQ(f"v_add_u32 v14, s55, v{VST}")
        spread(QE, NS - 1, NS)
        spread([lambda r=r: I(f"v_mov_b64 {v(192+2*r,2)}, 0") for r in range(32) if not 16 <= r < 20], NS - 1, NS)
        side.setdefault((NS - 1, 3), []).extend([lambda r=r: I(f"v_mov_b64 {v(192+2*r,2)}, 0") for r in range(16, 20)])
        def fkoff():
            I(f"s_lshl_b32 s40, s{SHEAD}, 7"); I(f"s_lshl_b32 s41, s{SIDX}, 2"); I("s_add_u32 s40, s40, s41"); I(f"s_add_u32 s40, s40, {FK_OFF}")
        def w0only(fn):
            l = a.label("NP"); I(f"s_cmp_lg_u32 s{SW}, 0"); I(f"s_cbranch_scc1 {l}"); fn(); a.L(l)
        def k0(i):
            I(f"s_lshl_b32 s40, s{SW}, 12"); I("s_add_u32 m0, s40, 0x8000")
            I(f"s_lshl_b32 s41, s{SHEAD}, 20"); I("s_add_u32 s41, s41, s40")
            I(f"buffer_load_dwordx4 v{VST}, s[{RWS}:{RWS+3}], s41 offen offset:{1024*i}{self.ld} lds"); vm.issue()
        self.barrier()
        for f in take(-1, 1): f()
        vm.wait(dtok[0]); self.barrier()
        self.stamp(1)
        def first_reads(t):
            x = rdx(t, 0); w = [rdw(t, dt) for dt in range(4)]
            return [x[0]] + w[0][:2] + [x[1]] + w[0][2:] + w[1], w[2] + w[3]
        L, rest = first_reads(0)
        for f in L: f()
        mark = {}; TZ = PG + 4; TS = 10; DS = self.o.get("dsteps", 3)
        pend = take(-1)
        for t in range(NS):
            for k in range(4):
                M = mfs(t, k); n = len(M); PB = []
                if k == 3 and t < NS - 1:
                    assert not pend
                    if t == TS + 2: vm.wait(td); w0only(lambda: self.poll_check(14, 13, "0", rep4(1), RDBG))
                    if t == NS - 3: vm.wait(tp); w0only(lambda: self.poll_check(15, 13, "s53", 1))
                    lg.wait(lg.issued); vm.wait(dtok[t+1])
                    if t == TZ: vm.wait(mark[TZ-2])
                    if t == PK_: vm.wait(mark[TK + KN])
                    if t == PV_: vm.wait(mark[PV_ - 1])
                    self.barrier()
                    ps = self.o.get("pstamp")
                    if ps is not None and 0 <= t - int(ps) + 1 < 13: self.stamp(17 + t - int(ps) + 1); vm.issue(2)
                    if TZ <= t < TZ + 4: PB.append(lambda t=t: self.publish(SF, 1, RDBG, True, idx=t - TZ))
                    if t == PK_: PB.append(lambda: (fkoff(), self.publish(40, 1)))
                    if t == PV_: PB.append(lambda: (fkoff(), self.publish(40, 3)))
                    pend = take(t)
                    if t == NS - 3: pend += [lambda i=i: k0(i) for i in range(4)]
                    nd = len(pend) // (DS + 1)
                else:
                    nd = -(-len(pend) // max(1, (3 if t == 0 else DS) - k))
                D, pend = pend[:nd], pend[nd:]
                fl = []
                if not (t == NS - 1 and k == 3):
                    if k == 3:
                        L, rest = first_reads(t+1); nr = self.o.get("nr", 4)
                        fl.append((0, 7, L + rest[:nr])); rest = rest[nr:]
                    else:
                        if k == 0 and rest: fl.append((-1, 2, rest))
                        fl.append((2, 4, rdx(t, k+1)))
                if PB: fl.append((1, 2, PB))
                if D: fl.append((0, n, D))
                if side.get((t, k)): fl.append((0, n, side[(t, k)]))
                if late.get((t, k)): fl.append((n - 2, n, late[(t, k)]))
                self.stream(M, fl)
                if k == 2: mark[t] = vm.issued
                if t == TS and k == 0:
                    self.oob_sel(); I("v_lshl_add_u32 v13, v0, 2, s99"); td = self.poll_issue(14, 13, "0", RDBG)
                if t == NS - 4 and k == 0:
                    self.oob_sel(); I("v_and_b32 v13, 7, v0"); I("v_lshl_add_u32 v13, v13, 2, s99")
                    I(f"s_lshl_b32 s53, s{SHEAD}, 7"); I(f"s_add_u32 s53, s53, {FK_OFF}")
                    tp = self.poll_issue(15, 13, "s53")
            if t == TK: self.stamp(2)
            if t == TV: self.stamp(13)
        assert not items
        self.stamp(3)
        I("v_mov_b32 v16, v13")
        self.poll_issue(17, 16, "s53")
        for b, off in pieces("Q"):
            for i in range(4): I(f"v_cvt_pk_bf16_f32 v{b+i}, v{b+2*i}, v{b+2*i+1}")
            I(f"ds_write_b128 v14, {v(b,4)} offset:{off}"); lg.issue()
        self.attn_setup()
        vm.wait(vm.issued); w0only(lambda: self.poll_check(17, 16, "s53", 3))
        lg.wait(lg.issued); self.barrier()

    def attn_setup(self): self.attn(True)
    def attn(self, setup=False):
        a = self.a; I = self.I; vm = self.vm; lg = self.lg
        M16 = "v_mfma_f32_16x16x32_bf16"
        ML = 155648; QA_LDS = 65536; QB_LDS = 131072
        O = 192; QF = 160; NM = 144; S = [112, 128]; PP = [96, 104]; RING = 64; NR = 8; E = 56; PK = 16
        VK, VV, VL16, VSC, LM, THR, NINF, VQ, TMP = 4, 5, 6, 7, 8, 9, 10, 11, 12
        LS, ONES, BIAS = 152, 60, 11.0
        SR, SG, SC1, SC2, SKO, SVO, SKM, SVM, STH = 32, 33, 34, 35, 36, 37, 38, 39, 42
        SFIN, SCA, SM1 = 55, 59, 58
        DC = self.o.get("dmacost", 16); WEV = self.o.get("wev", 4)
        if setup:
            I(f"s_lshr_b32 s{SG}, s{SW}, 2"); I(f"s_mul_i32 s{SR}, s{SG}, 7"); I(f"s_xor_b32 s{SR}, s{SR}, s{SW}")
            I(f"v_lshlrev_b32 v{VL16}, 4, v0")
            I(f"s_lshl_b32 s44, s{SR}, 13"); I(f"s_add_u32 s44, s44, {QB_LDS}"); I(f"v_add_u32 v{VQ}, s44, v{VL16}")
            I(f"s_lshl_b32 s45, s{SG}, 16"); I(f"v_subrev_u32 v{TMP+1}, s45, v{VQ}")
            I(f"s_mov_b32 s{SC1}, s{SIDX}")
            I(f"s_lshl_b32 s{SC2}, s{SIDX}, 1"); I(f"s_sub_u32 s{SC2}, 14, s{SC2}")
            I(f"s_cmp_eq_u32 s{SG}, 1"); I(f"s_cselect_b32 s{SM1}, 0, -1")
            I(f"s_lshl_b32 s43, s{SW}, 12"); I(f"s_lshl_b32 s{SVO}, s{SHEAD}, 20"); I(f"s_add_u32 s{SVO}, s{SVO}, s43")
            I(f"s_add_u32 s{SKO}, s{SVO}, 0x10000"); I(f"s_add_u32 s{SVO}, s{SVO}, 0x8000")
            I(f"s_mov_b32 s{SKM}, s43"); I(f"s_add_u32 s{SVM}, s43, 0x18000")
            I(f"s_mov_b32 s{STH}, 0x40004000"); I(f"v_mov_b32 v{NINF}, 0xff800000")
            for r in range(4): I(f"v_mov_b32 v{ONES+r}, 0x3f803f80"); I(f"v_mov_b64 {v(LS+2*r,2)}, 0")
            I(f"v_and_b32 v{THR}, 15, v0"); I(f"v_lshlrev_b32 v{VSC}, 4, v{THR}"); I(f"s_lshl_b32 s44, s{SR}, 5"); I(f"v_add_u32 v{THR}, s44, v{THR}")
            I(f"v_lshrrev_b32 v{TMP}, 4, v0"); I(f"v_lshl_add_u32 v{VSC}, v{TMP}, 9, v{VSC}"); I(f"v_lshlrev_b32 v{TMP}, 2, v{TMP}"); I(f"v_sub_u32 v{THR}, v{THR}, v{TMP}")
            I(f"v_and_b32 v{VK}, 15, v0"); I(f"v_lshlrev_b32 v{VK}, 4, v{VK}"); I(f"v_lshrrev_b32 v{TMP}, 4, v0"); I(f"v_lshl_add_u32 v{VK}, v{TMP}, {self.GSH}, v{VK}"); I(f"v_add_u32 v{VK}, 0x8000, v{VK}")
            I(f"s_lshl_b32 s{SCA}, s{SIDX}, 2"); I(f"s_add_u32 s{SCA}, s{SCA}, s{SR}"); I(f"s_lshl_b32 s{SCA}, s{SCA}, 5"); I(f"s_add_u32 s{SCA}, s{SCA}, s{SHEAD}")
            I(f"s_lshl_b32 s{SCA}, s{SCA}, 13"); I(f"s_add_u32 s{SCA}, s{SCA}, {CTX_OFF}")
            I(f"s_mov_b32 s{SFIN}, 0")
            if self.o.get("map84", 1):
                I(f"s_lshr_b32 s56, s{SF}, 6"); I("s_lshl_b32 s56, s56, 3"); I(f"s_bfe_u32 s44, s{SF}, 0x30002"); I("s_add_u32 s56, s56, s44")
                I(f"s_bfe_u32 s57, s{SF}, 0x10005"); I("s_lshl_b32 s57, s57, 2"); I(f"s_and_b32 s44, s{SF}, 3"); I("s_add_u32 s57, s57, s44")
                I(f"s_and_b32 s40, s{SF}, 63"); I("s_lshl_b32 s40, s40, 16")
            else:
                I(f"s_mov_b32 s56, s{SHEAD}"); I(f"s_mov_b32 s57, s{SIDX}")
                I(f"s_and_b32 s40, s{SF}, 31"); I("s_lshl_b32 s40, s40, 17")
            I(f"s_lshl_b32 s44, s{SW}, 13"); I("s_add_u32 s40, s40, s44"); I(f"s_add_u32 s40, s40, {WOT_OFF}")
            self.srd(RB, "ssmk", 2*MB); self.srd(RA, "k", 2*MB); self.srd(RC, "v", 2*MB); self.srd(RD, "shift", 4096); self.srd(RE, "wo", 4*MB)
            I("s_mov_b32 s41, 0")
            CL = self.o.get("cl", 8)
            I(f"s_lshr_b32 s40, {1 << (CL+2)}, s{SG}"); I(f"s_or_b32 s40, s40, {1 << CL}")
            I(f"s_lshl_b32 s44, 2, s{SW}"); I("s_and_b32 s44, s44, 30"); I("s_or_b32 s40, s40, s44")
            I(f"s_cmp_eq_u32 s{SW}, 0"); I(f"s_cselect_b32 s44, {(1 << 5) | (1 << (CL+4))}, 0"); I("s_or_b32 s40, s40, s44")
            if not self.o.get("noprio"):
                l = a.label("PR"); I(f"s_cmp_eq_u32 s{SG}, 1"); I(f"s_cbranch_scc0 {l}"); I("s_setprio 1"); a.L(l)
            return
        op = lambda t, c=4: (lambda: I(t), c)
        nop = lambda: None
        def loadq(va):
            for ds in range(8):
                I(f"ds_read_b128 {v(QF+4*ds,4)}, v{va} offset:{1024*ds}"); lg.issue()
        def dma4(kind):
            sm, so = (SKM, SKO) if kind == "k" else (SVM, SVO)
            def d(i):
                def f():
                    if i == 0: I(f"s_mov_b32 m0, s{sm}"); I(f"s_xor_b32 s{sm}, s{sm}, 0x8000")
                    I(f"buffer_load_dwordx4 v{VL16}, s[{RWS}:{RWS+3}], s{so} offen offset:{1024*i}{self.ld} lds")
                    if i == 3: I(f"s_add_u32 s{so}, s{so}, 0x10000")
                return (f, DC + (8 if i == 0 else 4 if i == 3 else 0))
            return [d(i) for i in range(4)]
        self.ring_n = 0
        def rd(kind, sl, idx):
            h = {}
            def f():
                slot = self.ring_n % NR; self.ring_n += 1
                h["reg"] = RING + 4*slot
                I(f"ds_read_b128 {v(h['reg'],4)}, v{VK if kind == 'k' else VV} offset:{sl*8192+(idx << self.FSH)}"); h["tok"] = lg.issue()
            return f, h
        def wait_for(R, i):
            if R[i][1]["tok"] <= lg.done: return
            j = i
            while j + 1 < len(R) and j + 1 < i + WEV and "tok" in R[j+1][1] and R[j+1][1]["tok"] > R[i][1]["tok"]: j += 1
            lg.wait(R[j][1]["tok"])
        def otile(dt, qt): return O + 16*(dt >> 1) + 8*qt + 4*(dt & 1)
        def qk(sb, R, base, czero=False):
            def f(m):
                kt, qt, dd = m >> 3, (m >> 2) & 1, m & 3; i = base + 4*kt + dd
                wait_for(R, i); d = v(S[sb] + 8*qt + 4*kt, 4)
                c = ("0" if czero else v(NM + 4*qt, 4)) if dd == 0 else d
                I(f"{M16} {d}, {v(R[i][1]['reg'],4)}, {v(QF + 16*qt + 4*dd, 4)}, {c}")
            return [lambda m=m: f(m) for m in range(16)]
        def pv1(pb, dt, qt, reg): I(f"{M16} {v(otile(dt, qt),4)}, {v(reg,4)}, {v(PP[pb]+4*qt,4)}, {v(otile(dt, qt),4)}")
        def pv(pb, R, base, dts=range(8), exact=False):
            def f(dt, qt):
                if exact: lg.wait(R[base+dt][1]["tok"])
                else: wait_for(R, base + dt)
                pv1(pb, dt, qt, R[base+dt][1]["reg"])
            ls = [lambda qt=qt: I(f"{M16} {v(LS+4*qt,4)}, {v(ONES,4)}, {v(PP[pb]+4*qt,4)}, {v(LS+4*qt,4)}") for qt in range(2)]
            return ls + [lambda dt=dt, qt=qt: f(dt, qt) for dt in dts for qt in range(2)]
        def sm_ops(sb):
            ex = lambda i: op(f"v_exp_f32 v{E+(i&3)}, v{S[sb]+i}", 8)
            cv = lambda j: op(f"v_cvt_pk_bf16_f32 v{PP[sb]+j}, v{E+((2*j)&3)}, v{E+((2*j+1)&3)}")
            p = PP[sb]; L = [ex(0), ex(1)]
            ors = {2: f"v_or3_b32 v{LM}, v{p}, v{p+1}, v{p+2}", 4: f"v_or3_b32 v{LM}, v{LM}, v{p+3}, v{p+4}", 6: f"v_or3_b32 v{LM}, v{LM}, v{p+5}, v{p+6}"}
            for j in range(8):
                L += [ex(2*j+2), cv(j), ex(2*j+3)] if j < 7 else [op("s_nop 0"), cv(j)]
                if j in ors: L.append(op(ors[j]))
            L = [x for i, x in enumerate(L) if i != len(L) - 2]
            L += [op(f"v_or_b32 v{LM}, v{LM}, v{p+7}"), op(f"v_and_b32 v{LM}, s{STH}, v{LM}")]
            return L
        def sched(M, fixed, chain):
            n = len(M); fc = [sum(c for _, c in fixed.get(g, [])) for g in range(n)]
            tot = sum(c for _, c in chain); lo, hi = 0.0, 4000.0
            for _ in range(40):
                lev = (lo + hi) / 2
                if sum(max(0, lev - f) for f in fc) >= tot: hi = lev
                else: lo = lev
            k = 0; credit = 0.0
            for g in range(n):
                M[g]()
                for c, _ in fixed.get(g, []): c()
                credit += max(0, hi - fc[g])
                while k < len(chain) and (g == n - 1 or chain[k][1] <= credit + 2):
                    chain[k][0](); credit -= chain[k][1]; k += 1
        def put(fixed, g, items): fixed.setdefault(g, []).extend(items)
        SPL = self.o.get("spl", 18)
        ool = []
        def rarely(cmp_, body):
            lo = a.label("OOL"); lb = a.label("RET")
            I(cmp_); I(f"s_cbranch_scc1 {lo}"); a.L(lb)
            ool.append((lo, lb, body))
        def mask_ops(sb, koff):
            prs = [46, 48, 50, 52]; L = []
            if koff >= 64:
                L.append(op(f"v_subrev_u32 v{TMP+3}, 64, v{THR}")); tr = TMP + 3; koff -= 64
            elif koff < 0:
                L += [op(f"s_lshl_b32 s45, s{SG}, 6"), op(f"v_subrev_u32 v{TMP+3}, s45, v{THR}")]; tr = TMP + 3; koff = -koff - 1
            else: tr = THR
            for r0 in range(0, 16, 4):
                qt, kt = r0 >> 3, (r0 >> 2) & 1
                for r in range(4): L.append(op(f"v_cmp_lt_i32 s[{prs[r]}:{prs[r]+1}], v{tr}, {16*kt + r + koff - 16*qt}"))
                for r in range(4): L.append(op(f"v_cndmask_b32 v{S[sb]+r0+r}, v{S[sb]+r0+r}, v{NINF}, s[{prs[r]}:{prs[r]+1}]"))
            return L
        def mask_body(sb, koff):
            for c, _ in mask_ops(sb, koff): c()
        def xred(x, y, t0, t1, o):
            L = []
            for sw in ("v_permlane16_swap_b32", "v_permlane32_swap_b32"):
                L += [op(f"v_mov_b32 v{t0}, v{x}"), op(f"v_mov_b32 v{t1}, v{y}"), op("s_nop 0"), op(f"{sw} v{t0}, v{x}"), op(f"{sw} v{t1}, v{y}"),
                      op(f"{o} v{x}, v{x}, v{t0}"), op(f"{o} v{y}, v{y}, v{t1}")]
            return L
        def rowmax(sb):
            for qt in range(2):
                b = S[sb] + 8*qt; d = TMP + qt
                I(f"v_max3_f32 v{d}, v{b}, v{b+1}, v{b+2}"); I(f"v_max3_f32 v{d}, v{d}, v{b+3}, v{b+4}"); I(f"v_max3_f32 v{d}, v{d}, v{b+5}, v{b+6}"); I(f"v_max_f32 v{d}, v{d}, v{b+7}")
            for c, _ in xred(TMP, TMP+1, TMP+2, TMP+3, "v_max_f32"): c()
        def init_max():
            rowmax(0)
            for qt in range(2): I(f"v_max_f32 v{TMP+qt}, {f2u(-1e30)}, v{TMP+qt}"); I(f"v_add_f32 v{TMP+qt}, {f2u(BIAS)}, v{TMP+qt}")
            for r in range(8): I(f"v_sub_f32 v{NM+r}, 0, v{TMP+(r>>2)}")
            return [op(f"v_sub_f32 v{S[0]+r}, v{S[0]+r}, v{TMP+(r>>3)}") for r in range(16)]
        rare = []
        def check(sb, other=True):
            lr = a.label("RARE"); lb = a.label("BACK")
            I(f"v_cmp_ne_u32 vcc, 0, v{LM}")
            if self.o.get("a_nocheck"): I("s_mov_b64 vcc, 0")
            I(f"s_cbranch_vccnz {lr}"); a.L(lb)
            rare.append((lr, lb, sb, other))
        def fin_body():
            I(f"s_mov_b32 s{SFIN}, 2")
            I(f"v_rcp_f32 v{TMP}, v{LS}"); I(f"v_rcp_f32 v{TMP+2}, v{LS+4}"); I(f"v_mov_b32 v{TMP+1}, v{TMP}"); I(f"v_mov_b32 v{TMP+3}, v{TMP+2}")
            for r in range(4): I(f"v_mov_b64 {v(LS+2*r,2)}, 0")
            for q in range(8):
                for i in range(8*q, 8*q+8, 2): I(f"v_pk_mul_f32 {v(O+i,2)}, {v(O+i,2)}, {v(TMP+2*(q&1),2)}")
                for i in range(4): I(f"v_cvt_pk_bf16_f32 v{PK+4*q+i}, v{O+8*q+2*i}, v{O+8*q+2*i+1}")
                for i in range(8*q, 8*q+8, 2): I(f"v_mov_b64 {v(O+i,2)}, 0")
        coff = lambda q: ((q >> 1) & 1)*2048 + (q & 1)*256
        def st_body():
            I(f"s_add_u32 s44, s{SCA}, 4096"); I(f"s_mov_b32 s{SFIN}, 3")
            for q in range(8):
                I(f"buffer_store_dwordx4 {v(PK+4*q,4)}, v{VSC}, s[{RWS}:{RWS+3}], s{SCA if q < 4 else 44} offen offset:{coff(q)}{self.st}")
        TR = [RING + 4*(2+i) for i in range(6)]
        def head(R, vmw, with_mfma=True, post=(), more=(), pre=None):
            rf = [(f, 4) for f, h in R]; sm2 = sm_ops(0)[SPL:]
            M = [lambda dt=dt, qt=qt: pv1(1, dt, qt, TR[dt-2]) for dt in range(2, 8) for qt in range(2)] if with_mfma else [nop]*12
            if with_mfma: I("s_waitcnt lgkmcnt(4)")
            nb = self.o.get("nb", 4); more = list(more); m0 = len(more) // 3
            if pre is not None: more = list(pre) + more; m0 = len(pre)
            sched(M[:4], {}, sm2[:nb] + more[:m0])
            vmw(); I("s_waitcnt lgkmcnt(0)"); lg.mark_all_done(); self.barrier(); self.ring_n = 0
            fx = {0: rf[0:2], 1: rf[2:4], 2: rf[4:5], 4: rf[5:6], 6: rf[6:7], 7: [(nop, 8 + 8*len(post))]}
            sched(M[4:], fx, sm2[nb:] + more[m0:])
            check(0)
            for p in post: p()
        def mk_reads():
            return ([rd("k", 0, i) for i in range(8)] + [rd("v", 0, i) for i in range(8)] +
                    [rd("k", 1, i) for i in range(8)] + [rd("v", 1, i) for i in range(8)])
        def last_use(F):
            b = (0, 18, 34, 52)[F >> 3]; f = F & 7
            return b + (2*f + 1 if (F >> 3) & 1 else 8*(f >> 2) + 4 + (f & 3))
        def mid(R, dmas, kx, mb=None, trans=False, endops=(), early=(), g=0):
            rf = [(f, 4) for f, h in R]
            fa = {0: [rf[7]]}; fb = {}
            G_ = g
            for g, e in zip((1, 3, 9, 11), early): put(fa, g, [e])
            for F in range(8, 32):
                g = last_use(F - 8) + 1
                put(fa, g, [rf[F]]) if g < 34 else put(fb, g - 34, [rf[F]])
            D = sum((dma4(k) for k in dmas), [])
            st_ = self.o.get("gst", 4); of_ = self.o.get("gof", 2)
            gaps = [2 + of_*G_*2 + 2*st_*n for n in range(4)] if len(D) == 4 else [2 + of_*G_ + st_*n for n in range(8)]
            for g, d in zip(gaps, D): put(fa, g, [d]) if g < 33 else put(fb, g - 33, [d])
            PT = self.o.get("pt", 0)
            if PT and G_ == 0:
                pts = {1: [(0, 24, 2), (1, 21, 0)], 2: [(0, 8, 2), (0, 24, 0), (1, 7, 2), (1, 21, 0)], 3: [(0, 0, 2), (0, 8, 0), (0, 16, 2), (0, 24, 0), (0, 32, 2), (1, 7, 0), (1, 15, 2), (1, 21, 0)],
                       4: [(0, 16, 2), (1, 21, 0)], 5: [(0, 32, 2), (1, 21, 0)]}[PT]
                for part, g, p in pts: put(fb if part else fa, g, [op(f"s_setprio {p}")])
            put(fa, 33, [(nop, 16)])
            sched(qk(0, R, 0, trans) + pv(0, R, 8), fa, sm_ops(1))
            check(1, other=not trans)
            if mb: mb()
            pre = []
            if trans:
                I(f"s_mov_b32 s{SFIN}, 1")
                pre = init_max()
            put(fb, 18, [op(f"v_xor_b32 v{VV}, 0x10000, v{VK}")] + kx)
            for n, e in enumerate(endops): put(fb, 11 - n, [e])
            put(fb, 21, [(nop, 12)])
            sched(qk(1, R, 16) + pv(1, R, 24, range(2)), fb, pre + sm_ops(0)[:SPL])
            assert [R[26+i][1]["reg"] for i in range(6)] == TR
        vm4 = lambda: I("s_waitcnt vmcnt(4)")
        def vm08():
            lo = a.label("W8"); lb = a.label("W8R")
            I(f"s_cmp_eq_u32 s{SFIN}, 3"); I(f"s_cbranch_scc1 {lo}"); I("s_waitcnt vmcnt(0)"); a.L(lb)
            def b(): I("s_waitcnt vmcnt(8)"); I(f"s_mov_b32 s{SFIN}, 4")
            ool.append((lo, lb, b))
        m1 = lambda sb, ko: (lambda: rarely(f"s_cmp_eq_u32 s{SC1}, s{SM1}", lambda: mask_body(sb, ko)))
        fin = lambda: rarely(f"s_cmp_eq_u32 s{SFIN}, 1", fin_body)
        sta = (lambda: rarely(f"s_cmp_eq_u32 s{SFIN}, 2", st_body), 8)
        KR, VR, SH, WO, AD = 16, 23, 28, 32, 40
        def side_loads():
            L = []; E = lambda t: L.append(op(t)); V = lambda t: L.append(op(t, DC))
            E(f"v_lshrrev_b32 v{AD}, 5, v0"); E(f"v_and_b32 v{AD+1}, 31, v0"); E(f"v_lshlrev_b32 v{AD+2}, 12, v{AD}"); E(f"v_lshl_add_u32 v{AD+2}, v{AD+1}, 2, v{AD+2}")
            E(f"s_lshr_b32 s60, s{SF}, 1"); E("s_lshl_b32 s60, s60, 15"); E(f"s_and_b32 s61, s{SF}, 1"); E("s_lshl_b32 s61, s61, 13"); E("s_add_u32 s60, s60, s61")
            E(f"s_lshl_b32 s61, s{SW}, 7"); E("s_add_u32 s60, s60, s61"); E("s_add_u32 s61, s60, 16384")
            for j in range(8): V(f"buffer_load_dword v{WO+j}, v{AD+2}, s[{RE}:{RE+3}], s{60+(j>>2)} offen offset:{1024*(j&3)}")
            E("s_lshr_b32 s62, s2, 3"); E("s_lshl_b32 s62, s62, 16"); E(f"s_lshl_b32 s63, s{SW}, 13"); E("s_add_u32 s62, s62, s63")
            E("s_and_b32 s63, s2, 7"); E("s_lshl_b32 s63, s63, 7"); E("s_add_u32 s62, s62, s63"); E(f"v_add_u32 v{AD+3}, s62, v{AD+2}")
            for i in range(3): E(f"v_subrev_u32 v{AD+4+i}, {3072-1024*i}, v{AD+3}")
            E("s_lshl_b32 s63, s63, 2"); E(f"v_lshl_add_u32 v{AD+7}, v{AD+1}, 4, s63")
            for i in range(3): V(f"buffer_load_dword v{KR+i}, v{AD+4+i}, s[{RA}:{RA+3}], 0 offen")
            for i in range(4): V(f"buffer_load_dword v{KR+3+i}, v{AD+3}, s[{RA}:{RA+3}], 0 offen offset:{1024*i}")
            for i in range(4): V(f"buffer_load_dword v{VR+i}, v{AD+3}, s[{RC}:{RC+3}], 0 offen offset:{1024*i}")
            V(f"buffer_load_dwordx4 {v(SH,4)}, v{AD+7}, s[{RD}:{RD+3}], 0 offen")
            return L
        NSL = 21
        def side_math():
            L = []; E = lambda t: L.append(op(t)); V = lambda t: L.append(op(t, DC))
            W2 = 48
            E("s_mov_b32 s60, 0x05040100"); E("s_mov_b32 s61, 0x07060302")
            for j in range(4): E(f"v_perm_b32 v{W2+j}, v{WO+2*j+1}, v{WO+2*j}, s60")
            for j in range(4): E(f"v_perm_b32 v{W2+4+j}, v{WO+2*j+1}, v{WO+2*j}, s61")
            E(f"s_lshl_b32 s60, s{SW}, 8"); E(f"s_add_u32 s60, s60, s{SF}"); E("s_lshl_b32 s60, s60, 11"); E(f"s_add_u32 s60, s60, {WOT_OFF}")
            for mt in range(2): V(f"buffer_store_dwordx4 {v(W2+4*mt,4)}, v{VL16}, s[{RWS}:{RWS+3}], s60 offen offset:{1024*mt}{self.st}")
            KU, SU, OO, VU, PQ = 32, 42, 48, 39, 52
            for c in range(2):
                def unp(d, sreg, half): E(f"v_lshlrev_b32 v{d}, 16, v{sreg}" if half == 0 else f"v_and_b32 v{d}, 0xffff0000, v{sreg}")
                for i in range(7): unp(KU+i, KR+i, c)
                for j in range(4): unp(SU+j, SH + 2*c + (j >> 1), j & 1)
                for o in range(4):
                    E(f"v_mul_f32 v{OO+o}, v{KU+o}, v{SU+3}")
                    for j in (2, 1, 0): E(f"v_fmac_f32 v{OO+o}, v{KU+o+3-j}, v{SU+j}")
                    unp(VU, VR+o, c)
                    E(f"v_mul_f32 v{OO+o}, v{OO+o}, v{VU}")
                d = PQ + 2*(1-c)
                E(f"v_cvt_pk_bf16_f32 v{d}, v{OO+3}, v{OO+2}"); E(f"v_cvt_pk_bf16_f32 v{d+1}, v{OO+1}, v{OO}")
            E(f"v_lshlrev_b32 v{AD+1}, 5, v{AD+1}"); E(f"v_lshl_add_u32 v{AD+1}, v{AD}, 4, v{AD+1}")
            E(f"v_permlane32_swap_b32 v{PQ+2}, v{PQ}"); E(f"v_permlane32_swap_b32 v{PQ+3}, v{PQ+1}")
            E("s_lshr_b32 s60, s2, 3"); E("s_lshl_b32 s60, s60, 16"); E(f"s_lshl_b32 s61, s{SW}, 13"); E("s_add_u32 s60, s60, s61")
            E("s_and_b32 s61, s2, 7"); E("s_lshl_b32 s61, s61, 10"); E("s_add_u32 s60, s60, s61"); E(f"s_add_u32 s60, s60, {KVT_OFF}")
            V(f"buffer_store_dwordx4 {v(PQ,4)}, v{AD+1}, s[{RWS}:{RWS+3}], s60 offen{self.st}")
            return L
        CL = self.o.get("cl", 8)
        def touch(k):
            if k in (1, 2):
                I(f"s_lshr_b32 s60, s{SF}, 1"); I("s_lshl_b32 s60, s60, 15"); I(f"s_and_b32 s61, s{SF}, 1"); I("s_lshl_b32 s61, s61, 13"); I("s_add_u32 s60, s60, s61")
                if k == 2: I("s_add_u32 s60, s60, 16384")
                I("v_lshlrev_b32 v16, 7, v0"); r = RE
            elif k in (3, 4):
                I("s_lshr_b32 s60, s2, 3"); I("s_lshl_b32 s60, s60, 16"); I("s_and_b32 s61, s2, 7"); I("s_lshl_b32 s61, s61, 7"); I("s_add_u32 s60, s60, s61")
                I("v_lshlrev_b32 v16, 10, v0"); r = RA if k == 3 else RC
            else:
                I(f"s_lshl_b32 s60, s{SF}, 13"); I("v_lshlrev_b32 v16, 7, v0"); r = RB
            I(f"buffer_load_dword v1, v16, s[{r}:{r+3}], s60 offen")
        LSITE = a.label("SITE")
        def site_code():
            a.L(LSITE)
            def ret(): I("s_nop 1"); I("s_setpc_b64 s[76:77]")
            l = a.label("SN"); I(f"s_cmp_lg_u32 s41, {CL}"); I(f"s_cbranch_scc1 {l}")
            for c, _ in side_loads(): c()
            ret(); a.L(l)
            l = a.label("SN"); I(f"s_add_u32 s44, s41, s{SG}"); I(f"s_cmp_lg_u32 s44, {CL+2}"); I(f"s_cbranch_scc1 {l}")
            for c, _ in side_math(): c()
            ret(); a.L(l)
            for k in range(1, 6):
                l = a.label("SN")
                I(f"s_cmp_lg_u32 s41, {k}"); I(f"s_cbranch_scc1 {l}")
                touch(k); ret(); a.L(l)
            I(f"s_lshl_b32 s44, s{SF}, 2"); I(f"s_add_u32 s44, s44, {FY_OFF}")
            sv = self.save(); self.publish(44, 2); self.restore(sv)
            ret()
        def spf():
            I("s_add_u32 s41, s41, 1"); rarely("s_bitcmp1_b32 s40, s41", lambda: I(f"s_call_b64 s[76:77], {LSITE}"))
        spub = (spf, 12)
        def snap():
            I(f"s_mov_b32 s61, {FY_OFF}"); I(f"buffer_load_dwordx4 v[52:55], v{VL16}, s[{RWS}:{RWS+3}], s61 offen sc1")
        def side_check():
            lo = a.label("SCK"); lb = a.label("SCR")
            def test():
                I("v_and_b32 v52, v52, v53"); I("v_and_b32 v54, v54, v55"); I("v_and_b32 v52, v52, v54"); I("v_and_b32 v52, 2, v52"); I("v_cmp_ne_u32 vcc, 2, v52")
            test(); I(f"s_cbranch_vccnz {lo}"); a.L(lb)
            def spin():
                lp = a.label("SPL")
                I("s_mov_b32 s99, 20000"); a.L(lp)
                I("s_sleep 2"); I(f"buffer_load_dwordx4 v[52:55], v{VL16}, s[{RWS}:{RWS+3}], s61 offen sc1"); I("s_waitcnt vmcnt(0)")
                test(); I(f"s_cbranch_vccz {lb}")
                I("s_sub_u32 s99, s99, 1"); I("s_cmp_lg_u32 s99, 0"); I(f"s_cbranch_scc1 {lp}")
            ool.append((lo, lb, spin))
        m2 = lambda sb, ko: (lambda: rarely(f"s_cmp_eq_u32 s{SC2}, 0", lambda: (snap(), mask_body(sb, ko))))
        LEV = a.label("EVEN"); LODM = a.label("ODDM"); LTRANS = a.label("TRANS"); LP2 = a.label("P2"); LP2B = a.label("P2B"); LDRAIN = a.label("DRAIN")
        self.stamp(8)
        self.ring_n = 0
        R = [rd("k", 0, i) for i in range(8)] + [rd("k", 1, i) for i in range(8)]
        def qrd(i):
            I(f"ds_read_b128 {v(QF+4*i,4)}, v{TMP+1} offset:{1024*i}"); return lg.issue()
        for i in range(4): qrd(i); R[i][0]()
        for i in range(4, 8): tq = qrd(i)
        D = dma4("v") + dma4("k")
        fx = {g: [(R[4+g][0], 4)] for g in range(4)}
        put(fx, 3, [(lambda: lg.wait(tq), 4)])
        for F in range(8, 15): put(fx, last_use(F - 8) + 1, [(R[F][0], 4)])
        for n, d in enumerate(D): put(fx, 2*n, [d])
        sched(qk(0, R, 0, True), fx, [])
        m1(0, 0)()
        pre = init_max()
        fx = {0: [(R[15][0], 4)], 8: [op(f"v_xor_b32 v{VV}, 0x10000, v{VK}"), op(f"v_xor_b32 v{VK}, 0x4000, v{VK}")]}
        sched(qk(1, R, 8), fx, pre + sm_ops(0)[:SPL])
        R = mk_reads()
        head(R, vm4, False, post=[m1(1, 32)])
        svm = self.save()
        self.stamp(9)
        LOD = [a.label("ODD0"), a.label("ODD1")]
        I(f"s_cmp_eq_u32 s{SG}, 1"); I(f"s_cbranch_scc1 {LOD[1]}"); I(f"s_branch {LOD[0]}")
        vm0 = lambda: I("s_waitcnt vmcnt(0)")
        def loops(g):
            LEV = a.label("EVEN"); LP2 = a.label("P2")
            mm = (lambda sb, ko: m1(sb, ko)) if g else (lambda sb, ko: None)
            a.L(LEV)
            R = mk_reads(); head(R, vm4)
            mid(R, "k", [op(f"v_xor_b32 v{VK}, 0x4000, v{VK}")], mb=mm(0, 0), early=[spub], g=g)
            R = mk_reads(); head(R, vm4, post=[m1(1, 32)] if g else [])
            assert self.lg.issued - self.lg.done == svm[2] - svm[3]
            a.L(LOD[g])
            mid(R, "v", [op(f"v_xor_b32 v{VK}, 0xc000, v{VK}")], mb=mm(0, 64), endops=[op(f"s_sub_u32 s{SC1}, s{SC1}, 1")], early=[spub], g=g)
            I(f"s_cmp_lg_u32 s{SC1}, -1"); I(f"s_cbranch_scc1 {LEV}")
            self.stamp(14)
            if g:
                loadq(VQ); I("s_waitcnt lgkmcnt(0)"); I(f"v_xor_b32 v{VK}, 0x4000, v{VK}")
            R = mk_reads(); head(R, vm4, more=mask_ops(1, 96) if g else ())
            mid(R, "k", [op(f"v_xor_b32 v{VK}, 0x8000, v{VK}")], mb=m2(0, -1), trans=bool(g), early=[spub], g=g)
            self.stamp(15)
            I(f"s_cmp_eq_u32 s{SC2}, 0"); I(f"s_cbranch_scc1 {LDRAIN}")
            a.L(LP2)
            R = mk_reads(); head(R, vm08 if g else vm0)
            mid(R, "kv", [op(f"v_xor_b32 v{VK}, 0x8000, v{VK}")], mb=m2(0, -1), endops=[sta] if g else [],
                early=[spub] + ([(fin, 8)] if g else []) + [op(f"s_sub_u32 s{SC2}, s{SC2}, 1")], g=g)
            I(f"s_cmp_lg_u32 s{SC2}, 0"); I(f"s_cbranch_scc1 {LP2}")
        loops(1); I(f"s_branch {LDRAIN}")
        loops(0)
        a.L(LDRAIN)
        self.stamp(10)
        R2 = [rd("v", 0, i) for i in range(8)] + [rd("v", 1, i) for i in range(8)]
        rf = [(f, 4) for f, h in R2]
        ts, ts2, ts3 = self.tail_setup()
        tsa = [x for x in ts if x[1] == 4]; tsl = [x for x in ts if x[1] != 4]
        mk_ = mask_ops(1, -33)
        head(R2, lambda: (vm08(), side_check(), tsl[0][0](), tsl[1][0]()), post=[fin, sta[0]], pre=tsa[:8], more=tsa[8:16] + [tsl[2]] + mk_)
        ts = tsa[16:]
        if self.o.get("dst"): self.stamp(17)
        pre = []; E_ = lambda t: pre.append(op(t))
        E_(f"s_add_u32 s44, s{SWK}, {ML}"); E_(f"v_add_u32 v54, s44, v{VL16}")
        E_(f"s_lshl_b32 s46, s{SW}, 13"); E_(f"v_add_u32 v55, s46, v{VL16}")
        E_(f"s_sub_u32 s54, 15, s{SIDX}"); E_(f"s_lshl_b32 s54, s54, 2"); E_(f"s_add_u32 s54, s54, s{SR}"); E_("s_lshl_b32 s54, s54, 5"); E_(f"s_add_u32 s54, s54, s{SHEAD}")
        E_("s_lshl_b32 s54, s54, 13"); E_(f"s_lshl_b32 s44, s{SG}, 12"); E_("s_add_u32 s54, s54, s44"); E_(f"s_add_u32 s54, s54, {CTX_OFF}")
        def lsum():
            def wml():
                I(f"ds_write_b128 v54, {v(150,4)}"); lg.issue()
            return [op(f"v_mov_b32 v150, v{NM}"), op(f"v_mov_b32 v{LS+1}, v{LS+4}"), (wml, 4)]
        def osend(g, i):
            def f():
                I(f"ds_write_b128 v55, {v(O+32*(1-g)+4*i,4)} offset:{1024*i}"); lg.issue()
            return (f, 16)
        lj = a.label("MGJ"); LMG = [a.label("MG0"), a.label("MG1")]; LFB = a.label("FB1"); LSK = a.label("SKIP"); LS1 = a.label("SK1")
        I(f"s_lshl_b32 s45, s{SG}, 1"); I(f"s_sub_u32 s45, s{SR}, s45"); I("s_cmp_lt_i32 s45, 1"); I(f"s_cbranch_scc1 {LSK}")
        svd = self.save(); rnd = self.ring_n
        setup_ = ts + pre + ts3; n8 = (len(setup_) + 15) // 16
        fx = {g: setup_[g*n8:(g+1)*n8] for g in range(16)}
        for F in range(7, 15): put(fx, 2*(F - 7) + (2 if F > 7 else 0), [rf[F]])
        sched(pv(0, R2, 0), fx, sm_ops(1))
        check(1)
        rf[15][0]()
        if self.o.get("dst"): self.stamp(20)
        I(f"s_cmp_eq_u32 s{SG}, 1"); I(f"s_cbranch_scc1 {LFB}")
        sv2 = self.save(); PR = 64
        for g in (0, 1):
            if g: a.L(LFB); self.restore(sv2)
            own = O + 32*g; snd = O + 32*(1-g)
            dts = list(range(4*(1-g), 4*(1-g)+4)) + list(range(4*g, 4*g+4))
            fx = {10 + i: [osend(g, i)] for i in range(8)}
            put(fx, 8, lsum())
            sched(pv(1, R2, 8, dts, True), fx, self.tail_valu())
            a.L(LMG[g])
            if self.o.get("dst"): self.stamp(18)
            I(f"v_xor_b32 v54, 0x1c00, v54"); I(f"v_xor_b32 v55, 0xe000, v55")
            I("s_waitcnt lgkmcnt(0)"); lg.mark_all_done(); self.barrier()
            if self.o.get("dst"): self.stamp(19)
            I(f"ds_read_b128 {v(96,4)}, v54"); t0 = lg.issue()
            tk = []
            for i in range(8):
                I(f"ds_read_b128 {v(PR+4*i,4)}, v55 offset:{1024*i}"); tk.append(lg.issue())
            lg.wait(t0)
            for q in range(2):
                I(f"v_min_f32 v100, v{150+q}, v{96+q}"); I(f"v_sub_f32 v101, v100, v{150+q}"); I(f"v_sub_f32 v102, v100, v{96+q}")
                I("v_exp_f32 v101, v101"); I("v_exp_f32 v102, v102")
                I(f"v_mul_f32 v103, v101, v{LS+q}"); I(f"v_fmac_f32 v103, v102, v{98+q}"); I("v_rcp_f32 v103, v103")
                b = 104 + 4*q
                I(f"v_mul_f32 v{b}, v101, v103"); I(f"v_mul_f32 v{b+1}, v101, v103"); I(f"v_mul_f32 v{b+2}, v102, v103"); I(f"v_mul_f32 v{b+3}, v102, v103")
            tw = self.tail_writes()
            for q in range(4):
                b = 104 + 4*(q & 1)
                for i in range(8*q, 8*q+8, 2): I(f"v_pk_mul_f32 {v(own+i,2)}, {v(own+i,2)}, {v(b,2)}")
                lg.wait(tk[2*q+1])
                if not self.o.get("twe"):
                    for c in tw[3*q:3*q+3]: c()
                for i in range(8*q, 8*q+8, 2): I(f"v_pk_fma_f32 {v(own+i,2)}, {v(PR+i,2)}, {v(b+2,2)}, {v(own+i,2)}")
                for i in range(4): I(f"v_cvt_pk_bf16_f32 v{snd+4*q+i}, v{own+8*q+2*i}, v{own+8*q+2*i+1}")
                I(f"buffer_store_dwordx4 {v(snd+4*q,4)}, v{VSC}, s[{RWS}:{RWS+3}], s54 offen offset:{coff(q)}{self.st}"); self.tctx = vm.issue()
            if self.o.get("twe"):
                for c in tw: c()
            if not g: I(f"s_branch {lj}")
        def skip_path():
            keep = self.save(); tctx = self.tctx; th = self.th
            a.L(LSK); self.restore(svd); self.ring_n = rnd
            I("s_cmp_lt_i32 s45, 0"); I(f"s_cbranch_scc1 {LS1}")
            rf[7][0]()
            for f in pv(0, R2[:8], 0): f()
            a.L(LS1)
            for c, _ in setup_ + lsum() + self.tail_valu(): c()
            l1 = a.label("SG1"); I(f"s_cmp_eq_u32 s{SG}, 1"); I(f"s_cbranch_scc1 {l1}")
            for g in (0, 1):
                if g: a.L(l1)
                for i in range(8): osend(g, i)[0]()
                I(f"s_branch {LMG[g]}")
            self.restore(keep); self.tctx = tctx; self.th = th
        a.L(lj)
        I("s_setprio 0")
        self.stamp(4)
        def cold():
            skip_path()
            site_code()
            for (lo, lb, body) in ool:
                a.L(lo); body(); I(f"s_branch {lb}")
            for (lr, lb, sb, other) in rare:
                a.L(lr)
                I("s_nop 15")
                rowmax(sb)
                for q in range(2): I(f"v_add_f32 v{TMP+q}, {f2u(BIAS)}, v{TMP+q}"); I(f"v_max_f32 v{TMP+q}, 0, v{TMP+q}"); I(f"v_exp_f32 v{TMP+2+q}, -v{TMP+q}")
                for r in range(8): I(f"v_sub_f32 v{NM+r}, v{NM+r}, v{TMP+(r>>2)}")
                for r in range(16): I(f"v_sub_f32 v{S[sb]+r}, v{S[sb]+r}, v{TMP+(r>>3)}")
                if other:
                    for r in range(16): I(f"v_sub_f32 v{S[1-sb]+r}, v{S[1-sb]+r}, v{TMP+(r>>3)}")
                for r in range(64): I(f"v_mul_f32 v{O+r}, v{O+r}, v{TMP+2+((r>>3)&1)}")
                for r in range(8): I(f"v_mul_f32 v{LS+r}, v{LS+r}, v{TMP+2+(r>>2)}")
                for c, _ in sm_ops(sb): c()
                I("s_nop 1"); I(f"s_branch {lb}")
        self.attn_rare = cold

    HB = 65536; HC = 4416; XB = 136192; YB = 148480
    SC, SJ, SB, SCH, SHB_, SWO, SCX = 34, 35, 36, 37, 38, 39, 40
    WS_ = [16, 24, 32, 40, 176, 184, 56, 80, 88, 96, 104, 144, 152, 160]
    CS_ = [168, 112, 120, 128, 136, 64, 72]
    NL = 4
    def tail_setup(self):
        I = self.I; L = []; E = lambda t: L.append((lambda: I(t), 4))
        SC, SJ, SB, SCH, SHB_, SWO, SCX = self.SC, self.SJ, self.SB, self.SCH, self.SHB_, self.SWO, self.SCX
        self.wtok = {}; self.wslot = dict(enumerate(self.WS_))
        E(f"s_lshr_b32 s{SC}, s{SW}, 2"); E(f"s_and_b32 s{SJ}, s{SW}, 3")
        E(f"s_lshl_b32 s{SCH}, s{SF}, 1"); E(f"s_add_u32 s{SCH}, s{SCH}, s{SC}"); E(f"s_lshl_b32 s{SCH}, s{SCH}, 12")
        E(f"s_lshl_b32 s60, s{SJ}, 10"); E("v_add_u32 v50, s60, v6"); E("v_subrev_u32 v51, 16, v50")
        E(f"s_lshl_b32 s63, s{SW}, 18"); E(f"s_lshl_b32 s62, s{SF}, 5"); E("s_add_u32 s63, s63, s62"); E(f"s_add_u32 s63, s63, {KVT_OFF}")
        E("v_lshrrev_b32 v48, 1, v0"); E("v_and_b32 v158, 1, v0" if False else "v_and_b32 v3, 1, v0"); E("v_lshlrev_b32 v49, 13, v48"); E("v_lshl_add_u32 v49, v3, 4, v49")
        def ld(t):
            def f(): I(t); self.th = self.vm.issue()
            L.append((f, 16))
        ld(f"buffer_load_dwordx4 {v(160,4)}, v51, s[{RB}:{RB+3}], s{SCH} offen")
        ld(f"buffer_load_dwordx4 {v(164,4)}, v50, s[{RB}:{RB+3}], s{SCH} offen")
        ld(f"buffer_load_dwordx4 {v(168,4)}, v49, s[{RWS}:{RWS+3}], s63 offen{self.ld}")
        E(f"s_lshl_b32 s{SWO}, s57, 19" if not self.o.get("samew") else f"s_mov_b32 s{SWO}, 0"); E(f"s_lshl_b32 s60, s{SW}, 16"); E(f"s_add_u32 s{SWO}, s{SWO}, s60"); E(f"s_add_u32 s{SWO}, s{SWO}, {WOT_OFF}")
        L2 = [(lambda i=i: self.wload(i), 36) for i in range(self.o.get("we", 0))]
        L3 = []; L, Lx = L3, L
        E = lambda t: L3.append((lambda: I(t), 4))
        E(f"s_mul_i32 s{SB}, s{SC}, 6144"); E(f"s_add_u32 s{SB}, s{SB}, {self.XB}")
        E(f"s_mul_i32 s{SHB_}, s{SC}, {8*self.HC}"); E(f"s_add_u32 s{SHB_}, s{SHB_}, {self.HB}")
        E(f"s_lshl_b32 s{SCX}, s56, 19" if not self.o.get("samec") else f"s_mov_b32 s{SCX}, 0"); E(f"s_lshl_b32 s60, s{SW}, 15"); E(f"s_add_u32 s{SCX}, s{SCX}, s60"); E(f"s_add_u32 s{SCX}, s{SCX}, {CTX_OFF}")
        return Lx, L2, L3
    def wreg(self, i):
        return self.WS_[i % len(self.WS_)]
    def wload(self, i):
        I = self.I; r = self.wslot[i]
        I(f"s_add_u32 s61, s{self.SWO}, {i*2048}")
        for mt in range(2):
            I(f"buffer_load_dwordx4 {v(r+4*mt,4)}, v6, s[{RWS}:{RWS+3}], s61 offen offset:{mt*1024}{self.ld}"); self.wtok[i] = self.vm.issue()
    def tail_valu(self):
        I = self.I; HC = self.HC; L = []; E = lambda t: L.append((lambda: I(t), 4))
        SJ, SB, SHB_ = self.SJ, self.SB, self.SHB_
        Ee, Eo, Oe, Oo = 160, 113, 122, 131
        E(f"s_add_u32 s60, s{SHB_}, 64"); E("v_add_u32 v138, s60, v50")
        E("v_and_b32 v51, 3, v48"); E("v_mul_u32_u24 v139, 1536, v51"); E("v_lshrrev_b32 v53, 2, v48"); E("v_lshl_add_u32 v139, v53, 4, v139")
        E("v_and_b32 v53, 1, v0"); E("v_mul_u32_u24 v53, 6144, v53"); E(f"s_lshl_b32 s60, s{SW}, 7"); E(f"s_add_u32 s60, s60, {self.XB + 512}"); E("v_add3_u32 v139, v139, v53, s60")
        E("v_and_b32 v51, 3, v0")
        for r in range(2): E(f"v_mov_b64 {v(172+2*r,2)}, 0")
        E("v_bfe_u32 v140, v0, 2, 3"); E(f"v_mul_u32_u24 v140, {HC}, v140"); E("v_lshl_add_u32 v140, v51, 4, v140"); E(f"v_add_u32 v140, s{SHB_}, v140")
        E(f"s_mul_i32 s60, s{SJ}, 1536"); E(f"s_add_u32 s60, s60, s{SB}"); E("v_lshl_add_u32 v141, v0, 3, s60")
        E("s_waitcnt vmcnt(1)")
        for k in range(7): E(f"v_alignbit_b32 v{Oe+k}, v{Ee+k+1}, v{Ee+k}, 16")
        for k in range(1, 7): E(f"v_alignbit_b32 v{Oo+k}, v{Ee+k+1}, v{Ee+k}, 16")
        for k in range(1, 7): E(f"v_mov_b32 v{Eo+k}, v{Ee+k}")
        return L
    def tail_writes(self):
        I = self.I; lg = self.lg; HC = self.HC; L = []
        Ee, Eo, Oe, Oo = 160, 113, 122, 131
        def W(t, pre=None):
            def f():
                if pre: pre()
                I(t); lg.issue()
            L.append(f)
        for r in range(8):
            sft = 1 + r; k = sft >> 1
            base = ((Oe, Oo) if sft & 1 else (Ee, Eo))[k & 1]
            W(f"ds_write_b128 v138, {v(base+k,4)} offset:{r*HC}")
        W(f"ds_write_b128 v140, {v(172,4)}"); W(f"ds_write_b64 v141, {v(172,2)}")
        W(f"ds_write_b128 v139, {v(168,4)}", lambda: self.vm.wait(self.th))
        return L
    def tailp(self):
        a = self.a; I = self.I; vm = self.vm; lg = self.lg
        HB, HC, YB = self.HB, self.HC, self.YB
        SC, SJ, SB, SCH, SHB_, SWO, SCX = self.SC, self.SJ, self.SB, self.SCH, self.SHB_, self.SWO, self.SCX
        ACC = 192; FRS = [224, 240, 64]; RD_ = 224
        VL16, VA, VB, T, VP, VPA, VO, GR, VLW, XR = 6, 4, 5, 12, 7, 8, 9, 10, 11, 48
        OACC = 192
        NW, NCX, NL = len(self.WS_), len(self.CS_), self.o.get("nl", 0)
        wtok = self.wtok; ctok = {}; wslot = self.wslot; cslot = dict(enumerate(self.CS_))
        I(f"s_lshr_b32 s53, s56, 1"); I("s_lshl_b32 s53, s53, 10"); I(f"s_lshl_b32 s44, s{SW}, 7"); I("s_add_u32 s53, s53, s44"); I(f"s_add_u32 s53, s53, {FC_OFF}")
        I(f"v_and_b32 v{VPA}, 3, v0"); I(f"v_lshlrev_b32 v{VPA}, 2, v{VPA}")
        P0 = self.o.get("p0", 0)
        tc0 = self.poll_issue(VP, VPA, "s53") if P0 else self.tctx
        PUBN = self.o.get("pubn", 1)
        I(f"s_lshr_b32 s45, s{SHEAD}, 2"); I("s_lshl_b32 s45, s45, 7"); I(f"s_and_b32 s44, s{SHEAD}, 3"); I("s_lshl_b32 s44, s44, 2"); I("s_add_u32 s45, s45, s44")
        I(f"s_sub_u32 s44, 15, s{SIDX}"); I("s_lshl_b32 s44, s44, 10"); I("s_add_u32 s46, s44, s45"); I(f"s_add_u32 s46, s46, {FC_OFF}")
        I(f"s_lshl_b32 s44, s{SIDX}, 10"); I("s_add_u32 s47, s44, s45"); I(f"s_add_u32 s47, s47, {FC_OFF}")
        self.srd(RC, "out", 2*MB); self.srd(RD, "q", 2*MB)
        I(f"s_lshl_b32 s44, s{SF}, 2"); I(f"s_load_dword s55, s[{P['ssmD']}:{P['ssmD']+1}], s44")
        I(f"v_and_b32 v{T}, 31, v0"); I(f"v_lshrrev_b32 v{T+1}, 5, v0")
        I(f"v_and_b32 v{T+2}, 7, v0"); I(f"v_mul_u32_u24 v{VA}, {HC}, v{T+2}")
        I(f"v_bfe_u32 v{T+2}, v0, 3, 2"); I(f"v_sub_u32 v{T+2}, v{T+2}, v{T+1}"); I(f"v_lshl_add_u32 v{VA}, v{T+2}, 4, v{VA}")
        I(f"s_lshl_b32 s43, s{SJ}, 9"); I(f"s_add_u32 s43, s43, s{SHB_}"); I("s_add_u32 s43, s43, 32"); I(f"v_add_u32 v{VA}, s43, v{VA}")
        I(f"s_lshl_b32 s43, s{SJ}, 7"); I(f"s_sub_u32 s43, s{SB}, s43"); I("s_add_u32 s43, s43, 400")
        I(f"v_lshl_add_u32 v{VB}, v{T}, 4, s43"); I(f"v_mul_u32_u24 v{T+2}, 1536, v{T+1}"); I(f"v_add_u32 v{VB}, v{VB}, v{T+2}")
        I(f"s_lshl_b32 s51, s{SW}, 13"); I(f"v_add_u32 v{VLW}, s51, v{VL16}")
        I("s_waitcnt lgkmcnt(0)"); lg.mark_all_done(); self.barrier()
        self.stamp(5)
        def cload(i):
            r = cslot[i]
            I(f"s_add_u32 s62, s{SCX}, {(i//4)*4096}"); I("s_add_u32 s63, s62, 0x40000")
            for st in range(2):
                I(f"buffer_load_dwordx4 {v(r+4*st,4)}, v{VL16}, s[{RWS}:{RWS+3}], s{62+st} offen offset:{(i%4)*1024}{self.ld}"); ctok[i] = vm.issue()
        ltok = {}
        def lstage(j):
            I(f"s_add_u32 m0, s51, {j*2048}"); I(f"s_add_u32 s61, s{SWO}, {(NW+j)*2048}")
            for mt in range(2):
                I(f"buffer_load_dwordx4 v{VL16}, s[{RWS}:{RWS+3}], s61 offen offset:{mt*1024}{self.ld} lds"); ltok[j] = vm.issue()
        def early(lo, hi, level):
            le = a.label("NE")
            I(f"s_cmp_lg_u32 s50, {level}"); I(f"s_cbranch_scc1 {le}")
            sv = self.save()
            for i in range(lo, hi): cload(i)
            self.restore(sv); I(f"s_mov_b32 s50, {level+1}")
            a.L(le)
        def seen():
            I(f"v_and_b32 v{VP}, 1, v{VP}"); I(f"v_cmp_ne_u32 vcc, 1, v{VP}"); I("s_cmp_eq_u64 vcc, 0"); I("s_cselect_b32 s52, 1, 0"); I("s_max_u32 s50, s50, s52")
        I("s_mov_b32 s50, 0")
        wl = [lambda i=i: self.wload(i) for i in range(NW) if i not in wtok] + [lambda j=j: lstage(j) for j in range(NL)]
        steps = [(dd, ks) for dd in range(8) for ks in range(2)]
        toks = {}
        def reads(n):
            dd, ks = steps[n]; b = FRS[n % 3]
            def r(k, reg, addr, off):
                def f():
                    I(f"ds_read_b128 {v(reg,4)}, v{addr} offset:{off}"); toks[(n, k)] = lg.issue()
                return f
            return [r(0, b, VA, 64*dd + 32*(1-ks)), r(1, b+4, VB, ks*3072 + (7-dd)*16),
                    r(2, b+8, VB, ks*3072 + (7-dd)*16 + 512), r(3, b+12, VA, 64*dd + 32*(1-ks) + 2048)]
        for n in range(2):
            for f in reads(n): f()
        for n in range(16):
            b = FRS[n % 3]; L = reads(n+2) if n + 2 < 16 else []
            c0 = "0" if n == 0 else v(ACC,16); c1 = "0" if n == 0 else v(ACC+16,16)
            lg.wait(toks[(n,1)]); I(f"{MFMA} {v(ACC,16)}, {v(b,4)}, {v(b+4,4)}, {c0}")
            for f in L[0:2]: f()
            lg.wait(toks[(n,2)]); I(f"{MFMA} {v(ACC+16,16)}, {v(b,4)}, {v(b+8,4)}, {c1}")
            for f in L[2:3]: f()
            lg.wait(toks[(n,3)]); I(f"{MFMA} {v(ACC+16,16)}, {v(b+12,4)}, {v(b+4,4)}, {v(ACC+16,16)}")
            for f in L[3:4]: f()
            if n == PUBN:
                vm.wait(tc0); self.barrier(); self.publish(46); self.publish(47)
                if P0: seen()
            if n >= PUBN and n < 14:
                for _ in range(-(-len(wl) // (14 - n))): wl.pop(0)()
            if n == self.o.get("p1", 12): tc1 = self.poll_issue(VP, VPA, "s53")
            if n == 14 and P0: early(0, NCX - 2, 1)
        assert not wl
        I(f"s_add_u32 s43, s51, {HB}"); I(f"v_add_u32 v{T+2}, s43, v{VL16}")
        self.barrier()
        for i in range(8):
            I(f"ds_write_b128 v{T+2}, {v(ACC+4*i,4)} offset:{1024*i}"); lg.issue()
        I(f"s_lshl_b32 s43, s{SC}, 15"); I(f"s_lshl_b32 s44, s{SJ}, 11"); I("s_add_u32 s43, s43, s44"); I(f"s_add_u32 s43, s43, {HB}"); I(f"v_add_u32 v{T+2}, s43, v{VL16}")
        I(f"s_and_b32 s43, s{SJ}, 1"); I("s_mul_i32 s44, s43, 3072"); I(f"s_lshr_b32 s45, s{SJ}, 1"); I("s_lshl_b32 s41, s45, 9")
        I("s_add_u32 s44, s44, s41"); I(f"s_add_u32 s44, s44, s{SB}"); I("s_add_u32 s44, s44, 520")
        I(f"v_lshl_add_u32 v{T+3}, v{T}, 4, s44"); I(f"v_lshlrev_b32 v{VA}, 3, v{T+1}"); I(f"v_sub_u32 v{T+3}, v{T+3}, v{VA}")
        I(f"v_lshlrev_b32 v{VB}, 6, v{T}"); I(f"v_lshl_add_u32 v{VB}, v{T+1}, 4, v{VB}")
        I("s_lshl_b32 s45, s45, 11"); I("s_lshl_b32 s43, s43, 5"); I("s_add_u32 s45, s45, s43"); I(f"s_lshl_b32 s43, s{SC}, 12"); I("s_add_u32 s45, s45, s43")
        I(f"s_add_u32 s45, s45, {YB}"); I(f"v_add_u32 v{VB}, s45, v{VB}")
        I("s_lshl_b32 s43, s55, 16"); I("s_and_b32 s44, s55, 0xffff0000"); I(f"s_cmp_eq_u32 s{SC}, 0"); I("s_cselect_b32 s55, s43, s44")
        lg.wait(lg.issued); self.barrier()
        self.stamp(12)
        for p in range(4):
            for gq in range(2):
                I(f"ds_read_b128 {v(RD_+8*p+4*gq,4)}, v{T+2} offset:{8192*p+1024*gq}"); lg.issue()
        for gq in range(2):
            I(f"ds_read_b64 {v(ACC+2*gq,2)}, v{T+3} offset:{1536*gq}"); lg.issue()
        lk = a.label("SK"); I("s_cmp_lg_u32 s50, 0"); I(f"s_cbranch_scc1 {lk}")
        sv = self.save(); vm.wait(tc1); seen(); self.restore(sv); early(0, NCX - 2, 1)
        a.L(lk)
        early(NCX - 2, NCX, 2)
        lg.wait(lg.issued)
        for i in range(0, 8, 2):
            I(f"v_pk_add_f32 {v(RD_+i,2)}, {v(RD_+i,2)}, {v(RD_+8+i,2)}"); I(f"v_pk_add_f32 {v(RD_+16+i,2)}, {v(RD_+16+i,2)}, {v(RD_+24+i,2)}")
        for i in range(0, 8, 2): I(f"v_pk_add_f32 {v(RD_+i,2)}, {v(RD_+i,2)}, {v(RD_+16+i,2)}")
        for gq in range(2):
            for r in range(4):
                srcr = ACC + 2*gq + (1 - (r >> 1))
                I(f"v_lshlrev_b32 v{ACC+8}, 16, v{srcr}" if r & 1 else f"v_and_b32 v{ACC+8}, 0xffff0000, v{srcr}")
                I(f"v_fma_f32 v{RD_+4*gq+r}, v{ACC+8}, s55, v{RD_+4*gq+r}")
        for i in range(4): I(f"v_cvt_pk_bf16_f32 v{ACC+12+i}, v{RD_+2*i}, v{RD_+2*i+1}")
        I(f"v_permlane32_swap_b32 v{ACC+12}, v{ACC+14}"); I(f"v_permlane32_swap_b32 v{ACC+13}, v{ACC+15}")
        I(f"ds_write_b128 v{VB}, {v(ACC+12,4)}"); lg.issue()
        lg.wait(lg.issued); self.barrier()
        ly = a.label("NY")
        I(f"s_cmp_lg_u32 s{SW}, 0"); I(f"s_cbranch_scc1 {ly}")
        I(f"v_add_u32 v{T}, {YB}, v{VL16}")
        for i in range(8): I(f"ds_read_b128 {v(RD_+4*i,4)}, v{T} offset:{1024*i}")
        I(f"s_lshl_b32 s44, s{SF}, 13"); I(f"s_add_u32 s44, s44, {YT_OFF}"); I("s_add_u32 s45, s44, 4096")
        I("s_waitcnt lgkmcnt(0)")
        for i in range(8): I(f"buffer_store_dwordx4 {v(RD_+4*i,4)}, v{VL16}, s[{RWS}:{RWS+3}], s{44+(i>>2)} offen offset:{1024*(i&3)}{self.st}")
        a.L(ly)
        ll = a.label("NL")
        I("s_cmp_eq_u32 s50, 3"); I(f"s_cbranch_scc1 {ll}")
        self.poll_check(VP, VPA, "s53", 1)
        for i in range(NCX): cload(i)
        a.L(ll)
        self.stamp(6)
        YT = self.XB
        lrd = {}; ypub = False; ymark = vm.issued; free = []; fresh = []; nw = NW; nw2 = NW + NL; nc = NCX
        for i in range(32):
            if i % 4 == 0 and self.o.get("ostamp"): self.stamp(17 + i // 4)
            if i == 14:
                I(f"s_lshl_b32 s53, s57, 7"); I(f"s_lshl_b32 s42, s{SW}, 4"); I("s_add_u32 s53, s53, s42"); I(f"s_add_u32 s53, s53, {FY_OFF}")
                tf = self.poll_issue(VP, VPA, "s53")
            if i == 24:
                vm.wait(tf); self.poll_check(VP, VPA, "s53", 1)
                I(f"v_lshrrev_b32 v{T}, 3, v0"); I(f"v_and_b32 v{T+1}, 7, v0"); I(f"v_lshlrev_b32 v{T+1}, 4, v{T+1}")
                I(f"v_lshl_add_u32 v{T}, v{T}, 12, v{T+1}")
                I(f"s_add_u32 m0, s{SWK}, {YT}")
                I(f"s_lshl_b32 s44, s57, 18"); I(f"s_lshl_b32 s45, s{SW}, 15"); I("s_add_u32 s44, s44, s45")
                I(f"s_lshl_b32 s45, s56, 7"); I("s_add_u32 s44, s44, s45"); I(f"s_add_u32 s44, s44, {YT_OFF}")
                I(f"buffer_load_dwordx4 v{T}, s[{RWS}:{RWS+3}], s44 offen{self.ld} lds"); vm.issue()
                I(f"v_and_b32 v{T+1}, 15, v0"); I(f"s_lshr_b32 s48, s{SW}, 1"); I("s_lshl_b32 s48, s48, 4")
                I(f"s_lshl_b32 s45, s56, 6"); I("s_add_u32 s45, s45, s48"); I(f"v_add_u32 v{T+1}, s45, v{T+1}")
                I(f"v_lshlrev_b32 v{T+2}, 2, v{T+1}"); I(f"s_mov_b32 s45, {G_OFF}")
                I(f"buffer_load_dword v{GR}, v{T+2}, s[{RWS}:{RWS+3}], s45 offen{self.ld}"); vm.issue()
                I(f"v_lshrrev_b32 v{T+2}, 4, v0"); I(f"v_lshlrev_b32 v{T+2}, 4, v{T+2}"); I(f"v_lshl_add_u32 v{VO}, v{T+1}, 10, v{T+2}")
                I(f"s_and_b32 s49, s{SW}, 1"); I("s_lshl_b32 s49, s49, 6"); I(f"s_lshl_b32 s45, s57, 7"); I("s_add_u32 s49, s49, s45")
                I(f"buffer_load_dwordx4 {v(XR,4)}, v{VO}, s[{RD}:{RD+3}], s49 offen"); vm.issue()
            vm.wait(max(ctok[i], wtok.get(i, 0)))
            if i in lrd: lg.wait(lrd[i])
            if not ypub and vm.done > ymark:
                ypub = True
                I(f"s_lshl_b32 s44, s{SF}, 2"); I(f"s_add_u32 s44, s44, {FY_OFF}"); self.publish(44, 3)
            for mt in range(2):
                for st in range(2):
                    d = v(OACC + 16*(2*mt+st), 16)
                    I(f"{MFMA} {d}, {v(wslot[i]+4*mt,4)}, {v(cslot[i]+4*st,4)}, {'0' if i == 0 else d}")
            lagged, fresh = fresh, [wslot[i], cslot[i]]
            free += fresh
            while free:
                if nw < NW + NL and nw - i <= 3:
                    j = nw - NW; assert vm.done >= ltok[j]
                    r = free.pop(0); wslot[nw] = r
                    I("s_nop 3")
                    for mt in range(2):
                        I(f"ds_read_b128 {v(r+4*mt,4)}, v{VLW} offset:{j*2048+mt*1024}"); lrd[nw] = lg.issue()
                    nw += 1
                elif nc < 32 and (nc <= nw2 or nw2 >= 32):
                    cslot[nc] = free.pop(0); cload(nc); nc += 1
                elif nw2 < 32:
                    wslot[nw2] = free.pop(0); self.wload(nw2); nw2 += 1
                else: break
        self.stamp(7)
        I(f"v_and_b32 v{T}, 31, v0"); I(f"v_lshrrev_b32 v{T+1}, 5, v0"); I(f"v_and_b32 v{T+2}, 15, v0")
        I(f"v_lshlrev_b32 v{T+1}, 1, v{T+1}")
        I(f"v_xor_b32 v{T+1}, v{T+1}, v{T+2}"); I(f"v_lshlrev_b32 v{T+1}, 4, v{T+1}"); I(f"v_lshl_add_u32 v{T}, v{T}, 8, v{T+1}")
        I(f"v_add_u32 v{T}, s51, v{T}")
        for mt in range(2):
            for gq in range(4):
                I(f"v_xor_b32 v{T+1}, {(4*gq+mt)*16}, v{T}"); I(f"v_add_u32 v{T+3}, 0x10000, v{T+1}")
                for st in range(2):
                    I(f"ds_write_b128 v{T+1+2*st}, {v(OACC+16*(2*mt+st)+4*gq,4)}"); lg.issue()
        I(f"v_lshrrev_b32 v{T}, 4, v0"); I(f"s_and_b32 s41, s{SW}, 1"); I("s_lshl_b32 s42, s41, 3")
        I(f"v_lshl_add_u32 v{T+1}, v{T}, 1, s42"); I(f"v_xor_b32 v{T+1}, v{T+1}, v{T+2}"); I(f"v_lshlrev_b32 v{T+1}, 4, v{T+1}")
        I("s_and_b32 s43, s48, 16"); I(f"v_add_u32 v{T+3}, s43, v{T+2}"); I(f"v_lshl_add_u32 v24, v{T+3}, 8, v{T+1}")
        I("s_lshr_b32 s43, s48, 5"); I("s_lshl_b32 s43, s43, 16"); I("v_add_u32 v24, s43, v24"); I("v_xor_b32 v25, 16, v24")
        I("s_lshl_b32 s42, s41, 5"); I(f"v_lshl_add_u32 v{T}, v{T}, 3, s42"); I(f"v_bfe_u32 v{T+1}, v0, 2, 2")
        I(f"v_add_u32 v{T}, v{T}, v{T+1}"); I(f"v_lshlrev_b32 v{T}, 7, v{T}"); I(f"v_and_b32 v{T+1}, 3, v0")
        I(f"v_lshl_add_u32 v{T}, v{T+1}, 3, v{T}"); I("s_lshl_b32 s42, s48, 1"); I(f"s_add_u32 s42, s42, {YT}"); I(f"v_add_u32 v28, s42, v{T}")
        self.sync_all()
        CX = 128; tk = []
        I(f"ds_read_b64_tr_b16 {v(100,2)}, v28"); lg.issue()
        I(f"ds_read_b64_tr_b16 {v(102,2)}, v28 offset:512"); ty2 = lg.issue()
        for p in range(8):
            for hh in range(2):
                I(f"ds_read_b128 {v(CX+8*p+4*hh,4)}, v{24+hh} offset:{8192*p}"); lg.issue()
            tk.append(lg.issued)
            if p == 5:
                lg.wait(ty2)
                for e in range(8):
                    if e & 1: I(f"v_and_b32 v104, 0xffff0000, v{XR+(e>>1)}"); I(f"v_and_b32 v105, 0xffff0000, v{100+(e>>1)}")
                    else: I(f"v_lshlrev_b32 v104, 16, v{XR+(e>>1)}"); I(f"v_lshlrev_b32 v105, 16, v{100+(e>>1)}")
                    I(f"v_mul_f32 v{112+e}, v104, v105"); I(f"v_mul_f32 v{112+e}, v{112+e}, v{GR}")
                I(f"v_sub_f32 v{GR}, 1.0, v{GR}")
        for p in range(1, 8):
            lg.wait(tk[p])
            for e in range(0, 8, 2): I(f"v_pk_add_f32 {v(CX+e,2)}, {v(CX+e,2)}, {v(CX+8*p+e,2)}")
        for e in range(8): I(f"v_fmac_f32 v{112+e}, v{CX+4*(e&1)+(e>>1)}, v{GR}")
        for e in range(4): I(f"v_cvt_pk_bf16_f32 v{108+e}, v{112+2*e}, v{112+2*e+1}")
        I(f"buffer_store_dwordx4 {v(108,4)}, v{VO}, s[{RC}:{RC+3}], s49 offen{' sc1' if not self.o.get('outpl') else ' nt' if self.o.get('outnt') else ''}"); vm.issue()
        self.stamp(16)
        if self.o.get("echo"):
            lp = a.label("EC")
            I("s_sub_u32 s100, s100, s96")
            if self.o.get("cyc"): I("s_lshr_b32 s100, s100, 4")
            I("s_memrealtime s[96:97]"); I("s_waitcnt lgkmcnt(0)")
            a.L(lp)
            I("s_memrealtime s[98:99]"); I("s_waitcnt lgkmcnt(0)"); I("s_sub_u32 s98, s98, s96"); I("s_cmp_lt_u32 s98, s100"); I(f"s_cbranch_scc1 {lp}")
        if self.o.get("dbgout") is not None:
            l = a.label("DB")
            I(f"s_cmp_lg_u32 s2, {self.o['dbgout']}"); I(f"s_cbranch_scc1 {l}"); I(f"s_cmp_lg_u32 s{SW}, 0"); I(f"s_cbranch_scc1 {l}")
            I("s_waitcnt vmcnt(0)")
            order = [0, 1, 2, 3, 8, 10, 11, 4, 5, 12, 6, 7, 16]
            I("v_mov_b32 v20, 0")
            for j, i in enumerate(order):
                I(f"s_mov_b32 s44, {4*i}"); I(f"v_writelane_b32 v20, s44, {j}")
            I(f"s_lshl_b32 s44, s2, 11"); I(f"s_add_u32 s44, s44, {STAMP_OFF}")
            I(f"buffer_load_dword v21, v20, s[{RWS}:{RWS+3}], s44 offen sc1"); I("s_waitcnt vmcnt(0)")
            I("v_readfirstlane_b32 s45, v21"); I("v_subrev_u32 v21, s45, v21")
            self.srd(RDBG, "dbg", 64); I("v_lshlrev_b32 v22, 2, v0")
            I(f"buffer_store_dword v21, v22, s[{RDBG}:{RDBG+3}], 0 offen")
            a.L(l)

def build(opts):
    g = G(opts); k = NAME + "_kernel"
    g.begin(k); g.a.T("; MARK p"); g.proj(); g.a.T("; MARK a"); g.attn(); g.a.T("; MARK t"); g.tailp(); g.end(); g.a.T("; MARK a"); g.attn_rare(); g.a.T("; MARK t"); g.a.L("CODE_END"); g.a.I("s_endpgm")
    n = g.a.fix_hazards()
    txt = "; @launch grid=(256,1,1) block=(512,1,1) lds=163840\n"
    txt += '.amdgcn_target "amdgcn-amd-amdhsa--gfx950"\n.text\n' + g.a.text()
    txt += f""".section .rodata,"a"
.p2align 6
.amdhsa_kernel {k}
  .amdhsa_next_free_vgpr 256
  .amdhsa_next_free_sgpr 102
  .amdhsa_accum_offset 256
  .amdhsa_group_segment_fixed_size 0
  .amdhsa_kernarg_size 128
  .amdhsa_user_sgpr_count 2
  .amdhsa_user_sgpr_kernarg_segment_ptr 1
  .amdhsa_system_sgpr_workgroup_id_x 1
.end_amdhsa_kernel
"""
    print(f"instructions {sum(1 for it in g.a.items if it[0] == 'i')}, nops inserted {n}", file=sys.stderr)
    return txt

if __name__ == "__main__":
    opts = {}
    for x in sys.argv[2:]:
        if "=" in x: k_, v_ = x.split("="); opts[k_] = int(v_)
        else: opts[x] = True
    open(sys.argv[1], "w").write(build(opts))
```

```python
import sys, math, struct
sys.path.insert(0, "gen")
from asmlib import *

NAME = "gated_mix__ssm_conv_h3__compressed_kv_cla__prompt"
MB = 1 << 20
KV_OFF, Q_OFF, CTX_OFF, KVT_OFF, YT_OFF, G_OFF = 0, 32*MB, 48*MB, 64*MB, 66*MB, 68*MB
XC_OFF = 40*MB
PP_OFF = 40*MB
WOT_OFF = 32*MB
FLG_OFF = 68*MB + 65536
FK_OFF, FY_OFF, FC_OFF, FP_OFF = FLG_OFF, FLG_OFF + 4096, FLG_OFF + 8192, FLG_OFF + 32768
STAMP_OFF = 69*MB
WS_SIZE = 70*MB
P = dict(q=64, k=66, v=68, shift=70, ssmk=72, ssmD=74, bx=76, ckv=78, wq=80, wuk=82, wuv=84, wo=86, gate=88, out=90, dbg=92, ws=94)
SW, SHEAD, SIDX, SWK, SF = 3, 4, 5, 6, 7
RA, RB, RC, RWS, RD, RE, RT, RDBG = 8, 12, 16, 20, 24, 28, 56, 60
MFMA = "v_mfma_f32_32x32x16_bf16"
LOG2E = 1.4426950408889634
F_KV, F_CA, F_CB, F_Y = 1, 2, 4, 8
def f2u(x): return "0x%08x" % struct.unpack("<I", struct.pack("<f", x))[0]
def rep4(b): return b * 0x01010101

class G:
    def __init__(self, opts):
        self.a = Asm(); self.o = opts
        self.GSH, self.FSH = (8, 10) if opts.get("lin") else (11, 8)
        self.vm = Cnt(self.a, "vmcnt", 63); self.lg = Cnt(self.a, "lgkmcnt", 15)
        self.st = "" if opts.get("plainst") else (" sc1 nt" if opts.get("ntst") else " sc1"); self.ld = "" if opts.get("plainld") else " sc1"
    def I(self, t): self.a.I(t)
    def srd(self, r, ptr, nbytes):
        I = self.I
        I(f"s_mov_b32 s{r}, s{P[ptr]}"); I(f"s_mov_b32 s{r+1}, s{P[ptr]+1}")
        I(f"s_mov_b32 s{r+2}, {nbytes}"); I(f"s_mov_b32 s{r+3}, 0x00020000")
    def save(self): return (self.vm.issued, self.vm.done, self.lg.issued, self.lg.done)
    def restore(self, s_): self.vm.issued, self.vm.done, self.lg.issued, self.lg.done = s_
    def stream(self, mf, fills):
        n = len(mf); slots = [[] for _ in range(n + 1)]
        for (s0, e0, cl) in fills:
            m = e0 - s0
            for j, c in enumerate(cl): slots[s0 + 1 + (j * m) // len(cl)].append(c)
        for c in slots[0]: c()
        for i in range(n):
            mf[i]()
            for c in slots[i+1]: c()
    def stamp(self, i, dyn=None):
        if self.o.get("echo") == i:
            self.I("s_memtime s[100:101]" if self.o.get("cyc") else "s_memrealtime s[100:101]"); self.I("s_waitcnt lgkmcnt(0)")
        if not self.o.get("stamp"): return
        I = self.I
        I("s_memrealtime s[96:97]"); I("s_memtime s[100:101]")
        I("s_lshl_b32 s98, s2, 3"); I(f"s_add_u32 s98, s98, s{SW}"); I("s_lshl_b32 s98, s98, 8")
        I(f"s_add_u32 s98, s98, {STAMP_OFF + 4*i}")
        if dyn is not None:
            I(f"s_lshl_b32 s99, s{dyn}, 4"); I("s_add_u32 s98, s98, s99")
        I("s_waitcnt lgkmcnt(0)")
        I("v_mov_b32 v2, s96"); I("v_mov_b32 v3, 0")
        I(f"buffer_store_dword v2, v3, s[{RWS}:{RWS+3}], s98 offen")
        I("v_mov_b32 v2, s100")
        I(f"buffer_store_dword v2, v3, s[{RWS}:{RWS+3}], s98 offen offset:128")
    OOB = 0x40000000
    def publish(self, soff, val=1, srd=RWS, byte=False, idx=None):
        I = self.I
        self.oob_sel()
        if idx is not None: I(f"s_and_b32 s98, s{SIDX}, 3"); I(f"s_cmp_eq_u32 s98, {idx}"); I(f"s_cselect_b32 s99, s99, {self.OOB}")
        I(f"v_mov_b32 v2, {val}"); I("v_mov_b32 v3, s99")
        I(f"buffer_store_{'byte' if byte else 'dword'} v2, v3, s[{srd}:{srd+3}], s{soff} offen sc1"); self.vm.issue()
    def oob_sel(self):
        self.I(f"s_cmp_eq_u32 s{SW}, 0"); self.I(f"s_cselect_b32 s99, 0, {self.OOB}")
    def poll_issue(self, vd, vaddr, soff, srd=RWS):
        self.I(f"buffer_load_dword v{vd}, v{vaddr}, s[{srd}:{srd+3}], {soff} offen sc1"); return self.vm.issue()
    def poll_check(self, vd, vaddr, soff, want, srd=RWS):
        a = self.a; I = self.I
        l = a.label("PCK"); lp = a.label("POLL")
        I(f"s_mov_b32 s98, {want}"); I("s_mov_b32 s99, 20000")
        a.L(lp)
        I(f"v_and_b32 v{vd}, s98, v{vd}"); I(f"v_cmp_ne_u32 vcc, s98, v{vd}"); I(f"s_cbranch_vccz {l}")
        I("s_sleep 2")
        I(f"buffer_load_dword v{vd}, v{vaddr}, s[{srd}:{srd+3}], {soff} offen sc1")
        I("s_sub_u32 s99, s99, 1"); I("s_cmp_lg_u32 s99, 0"); I("s_waitcnt vmcnt(0)"); I(f"s_cbranch_scc1 {lp}")
        a.L(l)
    def barrier(self): self.I("s_barrier")
    def sync_all(self):
        self.I("s_waitcnt vmcnt(0) lgkmcnt(0)"); self.vm.mark_all_done(); self.lg.mark_all_done(); self.barrier()

    def begin(self, kname):
        a = self.a; I = self.I
        a.T(f".globl {kname}\n.p2align 8\n.type {kname},@function"); a.L(kname)
        self.endl = a.label("END")
        if self.o.get("stamp"): I("s_memrealtime s[30:31]")
        if self.o.get("echo"): I("s_memtime s[96:97]" if self.o.get("cyc") else "s_memrealtime s[96:97]")
        I("s_load_dwordx16 s[64:79], s[0:1], 0"); I("s_load_dwordx16 s[80:95], s[0:1], 64")
        I("s_cmp_ge_u32 s2, 256"); I(f"s_cbranch_scc1 {self.endl}")
        I("v_lshrrev_b32 v1, 6, v0"); I("v_and_b32 v0, 63, v0"); I(f"v_readfirstlane_b32 s{SW}, v1")
        I("s_and_b32 s7, s2, 7"); I("s_lshl_b32 s7, s7, 2")
        I(f"s_lshr_b32 s{SIDX}, s2, 3"); I(f"s_lshr_b32 s{SHEAD}, s{SIDX}, 3"); I(f"s_add_u32 s{SHEAD}, s{SHEAD}, s7")
        I(f"s_and_b32 s{SIDX}, s{SIDX}, 7"); I(f"s_lshl_b32 s{SWK}, s{SW}, 10")
        I(f"s_lshl_b32 s{SF}, s{SHEAD}, 3"); I(f"s_add_u32 s{SF}, s{SF}, s{SIDX}")
    def end(self):
        self.a.L(self.endl); self.I("s_endpgm")

    def proj(self):
        a = self.a; I = self.I; vm = self.vm; lg = self.lg
        QA_LDS = 65536
        ACC = {"K": 64, "V": 128, "Q": 64}
        FX = [16, 24]; FW = [192, 32]
        VWA = 4; VSK, VSV, VOX, VOW, VST = 8, 9, 10, 11, 12; VXA = 224; T = 232
        NB = 0; XC = self.o.get("xc", 0)
        ST = [("KV", c) for c in range(NB)] + [("K", c) for c in range(NB, 8)] + [("V", c) for c in range(7, NB - 1, -1)] + [("Q", c) for c in range(8)]
        NS = len(ST); TK = 7; TV = NS - 9; TQ = NS - 8
        I("v_lshrrev_b32 v13, 3, v0"); I(f"s_lshl_b32 s40, s{SW}, 3"); I("v_add_u32 v13, s40, v13"); I("v_lshlrev_b32 v13, 10, v13")
        I(f"s_lshr_b32 s41, s{SW}, 1"); I(f"s_xor_b32 s40, s41, s{SW}"); I("s_and_b32 s40, s40, 1"); I("s_lshl_b32 s40, s40, 2")
        I("v_lshrrev_b32 v14, 4, v0"); I("v_add_u32 v15, s40, v14")
        I("v_and_b32 v3, 7, v0"); I("v_xor_b32 v15, v15, v3"); I(f"v_lshl_add_u32 v{VOX}, v15, 4, v13")
        I(f"s_lshl_b32 s40, s{SW}, 2"); I("v_add_u32 v13, s40, v14"); I("v_lshlrev_b32 v13, 13, v13")
        I("s_and_b32 s41, s41, 1"); I("s_lshl_b32 s41, s41, 3"); I("v_lshl_add_u32 v15, v14, 1, s41"); I("v_and_b32 v3, 15, v0"); I("v_xor_b32 v15, v15, v3")
        I("v_lshl_add_u32 v13, v15, 4, v13"); I(f"s_lshl_b32 s40, s{SHEAD}, 8"); I(f"v_add_u32 v{VOW}, s40, v13")
        I(f"v_lshlrev_b32 v{VST}, 4, v0")
        I(f"s_lshl_b32 s44, s{SIDX}, 18")
        for i in range(1, 4): I(f"s_add_u32 s{44+i}, s44, {65536*i}")
        ROT = self.o.get("rot", 2)
        if ROT == 0: I("s_mov_b32 s33, 0")
        elif ROT == 1: I(f"s_mov_b32 s33, s{SIDX}")
        elif ROT == 2: I(f"s_lshr_b32 s33, s{SHEAD}, 2"); I(f"s_add_u32 s33, s33, s{SIDX}")
        elif ROT == 3: I(f"s_lshr_b32 s33, s{SHEAD}, 2"); I(f"s_add_u32 s33, s33, s{SIDX}"); I(f"s_lshl_b32 s34, s{SHEAD}, 1"); I("s_add_u32 s33, s33, s34")
        elif ROT == 4: I(f"s_lshr_b32 s33, s{SHEAD}, 2")
        if self.o.get("rotq"): I(f"s_lshl_b32 s32, s{SHEAD}, 1"); I("s_add_u32 s32, s32, s33")
        else: I("s_mov_b32 s32, s33")
        I("s_waitcnt lgkmcnt(0)")
        if self.o.get("stamp"): I("s_memrealtime s[28:29]")
        self.srd(RA, "ckv", 2*MB); self.srd(RB, "wuk", 4*MB); self.srd(RC, "wuv", 4*MB)
        def xbase(t):
            k, c = ST[t]
            return (32768, 131072, 0)[((16 + c) if k == "Q" else (15 - c + NB)) % 3]
        units = [(t, m) for t in range(NS) for m in ST[t][0]]
        uidx = {u: i for i, u in enumerate(units)}
        def wbase(t, m): return 65536 + (uidx[(t, m)] % 4)*16384
        items = []
        lastx = {}
        for t in range(NS):
            k, c = ST[t]
            for m in k:
                u = uidx[(t, m)]
                def w(i, t=t, m=m, c=c):
                    if i == 0: I(f"s_add_u32 s34, s{32 if m == 'Q' else 33}, {c}"); I("s_and_b32 s34, s34, 7"); I("s_lshl_b32 s34, s34, 19")
                    I(f"s_add_u32 m0, s{SWK}, {wbase(t, m) + i*8192}"); I(f"s_add_u32 s41, s34, {i*262144}")
                    r = {"K": RB, "V": RC, "Q": RE}[m]
                    I(f"buffer_load_dwordx4 v{VOW}, s[{r}:{r+3}], s41 offen lds"); dtok[t] = vm.issue()
                items.append((t, units[u-4][0] if u >= 4 else -1, [lambda i=i, w=w: w(i) for i in range(2)]))
            key = ("Q" if k == "Q" else "C", c); prev = lastx.get(xbase(t))
            if prev is None or prev[1] != key:
                def x(i, t=t, k=k, c=c):
                    if i == 0: I(f"s_add_u32 s35, s{32 if k == 'Q' else 33}, {c}"); I("s_and_b32 s35, s35, 7"); I("s_lshl_b32 s35, s35, 7")
                    I(f"s_add_u32 m0, s{SWK}, {xbase(t) + i*8192}"); I(f"s_add_u32 s41, s{(48 if k == 'Q' else 44)+i}, s35")
                    r = (RWS if XC else RD) if k == "Q" else RA
                    I(f"buffer_load_dwordx4 v{VOX}, s[{r}:{r+3}], s41 offen{self.ld if (XC and k == 'Q') else ''} lds"); dtok[t] = vm.issue()
                items.append((t, prev[0] if prev else -1, [lambda i=i, x=x: x(i) for i in range(4)]))
            lastx[xbase(t)] = (t, key)
        dtok = {}
        def take(done, upto=99):
            out = []
            for it in list(items):
                if it[1] <= done and it[0] <= upto: out += it[2]; items.remove(it)
            return out
        for f in take(-1, 0): f()
        self.srd(RWS, "ws", WS_SIZE); self.srd(RDBG, "dbg", 256)
        if self.o.get("wsoff"): I(f"s_add_u32 s{RWS}, s{RWS}, {self.o['wsoff']*MB}"); I(f"s_addc_u32 s{RWS+1}, s{RWS+1}, 0")
        self.stamp(31)
        if self.o.get("stamp"):
            I("v_mov_b32 v2, s30"); I("s_sub_u32 s98, s98, 124"); I(f"buffer_store_dword v2, v3, s[{RWS}:{RWS+3}], s98 offen")
            I("v_mov_b32 v2, s28"); I(f"buffer_store_dword v2, v3, s[{RWS}:{RWS+3}], s98 offen offset:120")
        I(f"s_lshl_b32 s48, s{SIDX}, 17"); I("s_add_u32 s49, s48, 65536")
        I(f"s_sub_u32 s50, 15, s{SIDX}"); I("s_lshl_b32 s50, s50, 17"); I("s_add_u32 s51, s50, 65536")
        if XC:
            for i in range(4): I(f"s_add_u32 s{48+i}, s{48+i}, {XC_OFF}")
        I(f"s_and_b32 s42, s{SW}, 3"); I("s_lshl_b32 s42, s42, 6"); I(f"s_lshr_b32 s43, s{SW}, 2"); I("s_lshl_b32 s43, s43, 1")
        I("v_and_b32 v13, 15, v0"); I("v_lshrrev_b32 v15, 4, v0")
        I("v_lshrrev_b32 v14, 1, v13"); I("v_xor_b32 v14, v14, v15"); I("v_lshlrev_b32 v14, 4, v14")
        I("v_add_u32 v3, s42, v13"); I(f"v_lshl_add_u32 v{VXA}, v3, 7, v14")
        I("v_and_b32 v2, 8, v13"); I("v_add_u32 v3, v3, v2"); I(f"v_lshl_add_u32 v{VXA+4}, v3, 7, v14")
        for pt in range(2):
            b = VXA + 4*pt
            I(f"v_xor_b32 v{b+1}, 64, v{b}"); I(f"v_add_u32 v{b+2}, 0x20000, v{b}"); I(f"v_add_u32 v{b+3}, 0x20000, v{b+1}")
        I("v_lshlrev_b32 v3, 4, v13"); I("v_and_b32 v2, 1, v15"); I("v_lshl_add_u32 v3, v2, 9, v3"); I("v_lshrrev_b32 v14, 1, v15")
        I("v_lshlrev_b32 v3, 4, v13"); I(f"v_lshl_add_u32 v{VSK}, v15, {self.GSH}, v3")
        I("v_bfe_u32 v13, v0, 2, 2"); I("v_lshl_add_u32 v14, v15, 3, v13"); I("v_lshlrev_b32 v14, 8, v14")
        I("v_and_b32 v3, 3, v0"); I("v_lshl_add_u32 v14, v3, 3, v14"); I("v_add_u32 v14, 0x10000, v14")
        I("v_lshl_add_u32 v13, v2, 2, v13"); I("s_lshl_b32 s40, s43, 1"); I("v_xor_b32 v13, s40, v13"); I(f"v_lshl_add_u32 v{VWA}, v13, 5, v14")
        for dt in range(1, 4): I(f"v_xor_b32 v{VWA+dt}, {dt << 5}, v{VWA}")
        I(f"s_lshl_b32 s54, s{SHEAD}, 4"); I(f"s_lshl_b32 s55, s{SIDX}, 1"); I("s_add_u32 s54, s54, s55")
        I(f"s_bfe_u32 s55, s{SW}, 0x10001"); I("s_add_u32 s54, s54, s55"); I("s_lshl_b32 s54, s54, 16")
        I(f"s_and_b32 s55, s{SW}, 1"); I("s_lshl_b32 s55, s55, 14"); I("s_add_u32 s54, s54, s55")
        I(f"s_lshl_b32 s55, s43, {self.FSH+1}"); I("s_add_u32 s52, s54, s55"); I("s_add_u32 s52, s52, 0x8000")
        I(f"s_lshl_b32 s55, s43, {self.FSH}"); I("s_add_u32 s54, s54, s55")
        XG = T; GW = T + 4; hl = {}
        def gate_loads():
            L = []
            def E(t): L.append(lambda: I(t))
            def V(t):
                def f(): I(t); hl["t"] = vm.issue()
                L.append(f)
            E(f"s_lshl_b32 s40, s{SHEAD}, 7"); E(f"s_lshl_b32 s39, s{SIDX}, 2"); E("s_add_u32 s40, s40, s39"); E(f"s_add_u32 s40, s40, {FK_OFF}")
            E(f"s_lshl_b32 s39, s{SF}, 7"); E(f"s_add_u32 s39, s39, {FP_OFF}"); E("v_and_b32 v13, 7, v0"); E("v_lshl_add_u32 v13, v13, 2, s39")
            E("v_writelane_b32 v13, s40, 0")
            E(f"s_lshr_b32 s39, s{SHEAD}, 2"); E("s_lshl_b32 s39, s39, 7"); E(f"s_and_b32 s40, s{SHEAD}, 3"); E("s_lshl_b32 s40, s40, 2"); E("s_add_u32 s39, s39, s40")
            E(f"s_lshl_b32 s40, s{SIDX}, 10"); E("s_add_u32 s40, s40, s39"); E(f"s_add_u32 s40, s40, {FC_OFF}")
            E("v_writelane_b32 v13, s40, 1")
            E(f"s_sub_u32 s40, 15, s{SIDX}"); E("s_lshl_b32 s40, s40, 10"); E("s_add_u32 s40, s40, s39"); E(f"s_add_u32 s40, s40, {FC_OFF}")
            E("v_writelane_b32 v13, s40, 2")
            E(f"s_lshl_b32 s40, s{SF}, 2"); E(f"s_add_u32 s40, s40, {FY_OFF}"); E("v_writelane_b32 v13, s40, 3"); E("v_mov_b32 v14, 0")
            def oo(): self.oob_sel(); I("v_add_u32 v13, s99, v13")
            L.append(oo)
            V(f"buffer_store_dword v14, v13, s[{RWS}:{RWS+3}], 0 offen sc1")
            E("s_lshl_b32 s37, s2, 3"); E(f"s_add_u32 s37, s37, s{SW}"); E("s_lshl_b32 s38, s37, 10")
            L.append(lambda: self.srd(RD, "q", 2*MB)); L.append(lambda: self.srd(RE, "wq", 4*MB)); L.append(lambda: self.srd(RT, "gate", 1024))
            V(f"buffer_load_dwordx4 {v(XG,4)}, v{VST}, s[{RD}:{RD+3}], s38 offen")
            V(f"buffer_load_dwordx4 {v(GW,4)}, v{VST}, s[{RT}:{RT+3}], 0 offen")
            return L
        def gate_ops():
            L = []; E = lambda t: L.append(lambda: I(t)); Z = T + 8
            L.append(lambda: vm.wait(hl["t"]))
            def xs():
                I(f"s_add_u32 s38, s38, {XC_OFF}"); I(f"buffer_store_dwordx4 {v(XG,4)}, v{VST}, s[{RWS}:{RWS+3}], s38 offen{self.st}"); vm.issue()
            if XC: L.append(xs)
            E(f"v_dot2_f32_bf16 v{Z}, v{XG}, v{GW}, 0")
            for i in range(1, 4): E(f"v_dot2_f32_bf16 v{Z}, v{XG+i}, v{GW+i}, v{Z}")
            for m in ("quad_perm:[1,0,3,2] row_mask:0xf", "quad_perm:[2,3,0,1] row_mask:0xf", "row_half_mirror row_mask:0xf", "row_mirror row_mask:0xf",
                      "row_bcast:15 row_mask:0xa", "row_bcast:31 row_mask:0xc"):
                E(f"v_add_f32_dpp v{Z}, v{Z}, v{Z} {m} bank_mask:0xf")
            E(f"v_readlane_b32 s36, v{Z}, 63"); E(f"v_mov_b32 v{Z+1}, {f2u(-LOG2E)}"); E(f"v_mul_f32 v{Z}, s36, v{Z+1}")
            E(f"v_exp_f32 v{Z}, v{Z}"); E(f"v_add_f32 v{Z}, 1.0, v{Z}"); E(f"v_rcp_f32 v{Z}, v{Z}")
            E("s_lshl_b32 s38, s37, 2"); E(f"s_add_u32 s38, s38, {G_OFF}"); E(f"v_mov_b32 v{Z+1}, 0")
            def gs():
                I(f"buffer_store_dword v{Z}, v{Z+1}, s[{RWS}:{RWS+3}], s38 offen{self.st}"); vm.issue()
            L.append(gs)
            return L
        toks = {}
        def rdx(t, mt):
            m = ST[t][0]; xb = xbase(t); pt = 0
            off = (xb & 65535) + ((mt >> 1)*4096 + (mt & 1)*1024 if pt else mt*2048)
            def f(kk):
                va = VXA + 4*pt + 2*(xb >> 17) + (kk ^ (mt & 1))
                I(f"ds_read_b128 {v(FX[mt & 1]+4*kk,4)}, v{va} offset:{off}"); toks[("x", t, mt, kk)] = lg.issue()
            return [lambda: f(0), lambda: f(1)]
        def rdw(t, dt):
            m = ST[t][0]
            def f(kk, h):
                I(f"ds_read_b64_tr_b16 {v(FW[t & 1]+8*dt+4*kk+2*h,2)}, v{VWA+dt} offset:{wbase(t, m)-65536+kk*8192+h*1024}"); toks[("w", t, dt, kk)] = lg.issue()
            return [lambda kk=kk, h=h: f(kk, h) for kk in range(2) for h in range(2)]
        def atile(m, mt, dt): return ACC[m] + (4*(((mt >> 1)*4 + dt)*2 + (mt & 1)) if m == "V" else 4*(mt*4 + dt))
        def mfs(t, mt):
            m = ST[t][0]; first = t == 0 or ST[t-1][0] != m; L = []
            order = [(dt, kk) for dt in range(4) for kk in range(2)] if not self.o.get("nochain") else [(dt, kk) for kk in range(2) for dt in range(4)]
            for dt, kk in order:
                def f(dt=dt, kk=kk):
                    lg.wait(max(toks[("x", t, mt, kk)], toks[("w", t, dt, kk)]))
                    d = v(atile(m, mt, dt), 4); X = v(FX[mt & 1]+4*kk, 4); W = v(FW[t & 1]+8*dt+4*kk, 4)
                    c = "0" if (first and kk == 0) else d
                    I(f"v_mfma_f32_16x16x32_bf16 {d}, {X}, {W}, {c}" if m == "V" else f"v_mfma_f32_16x16x32_bf16 {d}, {W}, {X}, {c}")
                L.append(f)
            return L
        def pieces(m):
            fs = 1024 if m == "Q" else 1 << self.FSH
            if m == "V": return [(atile(m, 2*p, dt), p*8192 + dt*fs) for p in range(2) for dt in range(4)]
            return [(atile(m, mt, 2*j), (mt >> 1)*8192 + ((mt & 1)*4 + j)*fs) for mt in range(4) for j in range(2)]
        def kv_out(m):
            out = []
            for b, off in pieces(m):
                pk = [lambda i=i, b=b: I(f"v_cvt_pk_bf16_f32 v{b+i}, v{b+2*i}, v{b+2*i+1}") for i in range(4)]
                if m == "K": pk = [lambda i=i, b=b: I(f"v_mul_f32 v{b+i}, {f2u(LOG2E / math.sqrt(128.0))}, v{b+i}") for i in range(8)] + pk
                def st(b=b, off=off):
                    if self.o.get("nost"): return
                    I(f"s_add_u32 s41, s{54 if m == 'K' else 52}, {off}")
                    I(f"buffer_store_dwordx4 {v(b,4)}, v{VSK}, s[{RWS}:{RWS+3}], s41 offen{self.st}"); vm.issue()
                out.append((pk, st))
            return out
        side = {}; late = {}
        def spread(ops, t0, t1, dst=side, ks=(0, 1, 2)):
            sl = [(t, k) for t in range(t0, t1) for k in ks]; n = len(ops)
            for j, key in enumerate(sl): dst.setdefault(key, []).extend(ops[n*j//len(sl): n*(j+1)//len(sl)])
        PG = self.o.get("pg", 0)
        spread(gate_loads(), PG, PG + 1); spread(gate_ops(), PG + 2, PG + 3)
        def wtouch(r, half, wv):
            def f():
                I(f"s_cmp_eq_u32 s{SW}, {wv}"); I(f"s_cselect_b32 s99, 0, {self.OOB}")
                I(f"s_lshl_b32 s40, s{SIDX}, 19"); I(f"s_lshl_b32 s39, s{SHEAD}, 8"); I("s_add_u32 s40, s40, s39"); I(f"s_add_u32 s40, s40, {half*32*8192}")
                I("v_lshrrev_b32 v3, 1, v0"); I("v_lshlrev_b32 v3, 13, v3"); I("v_and_b32 v2, 1, v0"); I("v_lshl_add_u32 v3, v2, 7, v3"); I("v_add_u32 v3, s99, v3")
                I(f"buffer_load_dword v1, v3, s[{r}:{r+3}], s40 offen"); vm.issue()
            return f
        for nm, r, dflt in (("tk", RB, -1), ("tv", RC, 1), ("tq", RE, 3)):
            t0 = self.o.get(nm, dflt)
            if t0 >= 0:
                for half in range(2): side.setdefault((t0 + half, 2), []).append(wtouch(r, half, half))
        KN = self.o.get("kn", 8); VD = self.o.get("vd", 0); VN = self.o.get("vn", 5)
        KO = kv_out("K"); VO = kv_out("V")
        spread(sum((p for p, _ in KO), []), TK + 1, min(TK + 3, TQ), ks=(0, 1))
        npk = 2 * (min(TK + 3, TQ) - TK - 1)
        spread([s_ for _, s_ in KO], TK + 1, TK + 1 + KN, dst=late, ks=(2,))
        assert len(late[(TK + 1, 2)]) <= 8 * 2 // npk
        spread(sum((p for p, _ in VO), []), TQ, TQ + 1, ks=(0, 1))
        spread([s_ for _, s_ in VO], TQ + VD, TQ + VD + VN, dst=late, ks=(2,))
        PK_, PV_ = TK + KN + 2, TQ + VD + VN
        assert PK_ <= NS - 5 and PV_ <= NS - 2
        QE = []; EQ = lambda t: QE.append(lambda: I(t))
        EQ(f"s_and_b32 s55, s{SW}, 2"); EQ("s_lshl_b32 s55, s55, 15"); EQ(f"s_add_u32 s55, s55, {QA_LDS}")
        EQ(f"s_and_b32 s54, s{SW}, 1"); EQ("s_lshl_b32 s54, s54, 14"); EQ("s_add_u32 s55, s55, s54")
        EQ("s_lshl_b32 s54, s43, 10"); EQ("s_add_u32 s55, s55, s54"); EQ(f"v_add_u32 v14, s55, v{VST}")
        spread(QE, NS - 1, NS)
        spread([lambda r=r: I(f"v_mov_b64 {v(192+2*r,2)}, 0") for r in range(32) if not 16 <= r < 20], NS - 1, NS)
        side.setdefault((NS - 1, 3), []).extend([lambda r=r: I(f"v_mov_b64 {v(192+2*r,2)}, 0") for r in range(16, 20)])
        def fkoff():
            I(f"s_lshl_b32 s40, s{SHEAD}, 7"); I(f"s_lshl_b32 s41, s{SIDX}, 2"); I("s_add_u32 s40, s40, s41"); I(f"s_add_u32 s40, s40, {FK_OFF}")
        def w0only(fn):
            l = a.label("NP"); I(f"s_cmp_lg_u32 s{SW}, 0"); I(f"s_cbranch_scc1 {l}"); fn(); a.L(l)
        def k0(i):
            I(f"s_lshl_b32 s40, s{SW}, 12"); I("s_add_u32 m0, s40, 0x8000")
            I(f"s_lshl_b32 s41, s{SHEAD}, 20"); I("s_add_u32 s41, s41, s40")
            I(f"buffer_load_dwordx4 v{VST}, s[{RWS}:{RWS+3}], s41 offen offset:{1024*i}{self.ld} lds"); vm.issue()
        self.barrier()
        for f in take(-1, 1): f()
        vm.wait(dtok[0]); self.barrier()
        self.stamp(1)
        def first_reads(t):
            x = rdx(t, 0); w = [rdw(t, dt) for dt in range(4)]
            return [x[0]] + w[0][:2] + [x[1]] + w[0][2:] + w[1], w[2] + w[3]
        L, rest = first_reads(0)
        for f in L: f()
        mark = {}; TZ = PG + 4; TS = 10; DS = self.o.get("dsteps", 3)
        pend = take(-1)
        for t in range(NS):
            for k in range(4):
                M = mfs(t, k); n = len(M); PB = []
                if k == 3 and t < NS - 1:
                    assert not pend
                    if t == TS + 2: vm.wait(td); w0only(lambda: self.poll_check(14, 13, "0", rep4(1), RDBG))
                    if t == NS - 3: vm.wait(tp); w0only(lambda: self.poll_check(15, 13, "s53", 1))
                    lg.wait(lg.issued); vm.wait(dtok[t+1])
                    if t == TZ: vm.wait(mark[TZ-2])
                    if t == PK_: vm.wait(mark[TK + KN])
                    if t == PV_: vm.wait(mark[PV_ - 1])
                    self.barrier()
                    ps = self.o.get("pstamp")
                    if ps is not None and 0 <= t - int(ps) + 1 < 13: self.stamp(17 + t - int(ps) + 1); vm.issue(2)
                    if TZ <= t < TZ + 4: PB.append(lambda t=t: self.publish(SF, 1, RDBG, True, idx=t - TZ))
                    if t == PK_: PB.append(lambda: (fkoff(), self.publish(40, 1)))
                    if t == PV_: PB.append(lambda: (fkoff(), self.publish(40, 3)))
                    pend = take(t)
                    if t == NS - 3: pend += [lambda i=i: k0(i) for i in range(4)]
                    nd = len(pend) // (DS + 1)
                else:
                    nd = -(-len(pend) // max(1, (3 if t == 0 else DS) - k))
                D, pend = pend[:nd], pend[nd:]
                fl = []
                if not (t == NS - 1 and k == 3):
                    if k == 3:
                        L, rest = first_reads(t+1); nr = self.o.get("nr", 4)
                        fl.append((0, 7, L + rest[:nr])); rest = rest[nr:]
                    else:
                        if k == 0 and rest: fl.append((-1, 2, rest))
                        fl.append((2, 4, rdx(t, k+1)))
                if PB: fl.append((1, 2, PB))
                if D: fl.append((0, n, D))
                if side.get((t, k)): fl.append((0, n, side[(t, k)]))
                if late.get((t, k)): fl.append((n - 2, n, late[(t, k)]))
                self.stream(M, fl)
                if k == 2: mark[t] = vm.issued
                if t == TS and k == 0:
                    self.oob_sel(); I("v_lshl_add_u32 v13, v0, 2, s99"); td = self.poll_issue(14, 13, "0", RDBG)
                if t == NS - 4 and k == 0:
                    self.oob_sel(); I("v_and_b32 v13, 7, v0"); I("v_lshl_add_u32 v13, v13, 2, s99")
                    I(f"s_lshl_b32 s53, s{SHEAD}, 7"); I(f"s_add_u32 s53, s53, {FK_OFF}")
                    tp = self.poll_issue(15, 13, "s53")
            if t == TK: self.stamp(2)
            if t == TV: self.stamp(13)
        assert not items
        self.stamp(3)
        I("v_mov_b32 v16, v13")
        self.poll_issue(17, 16, "s53")
        for b, off in pieces("Q"):
            for i in range(4): I(f"v_cvt_pk_bf16_f32 v{b+i}, v{b+2*i}, v{b+2*i+1}")
            I(f"ds_write_b128 v14, {v(b,4)} offset:{off}"); lg.issue()
        self.attn_setup()
        vm.wait(vm.issued); w0only(lambda: self.poll_check(17, 16, "s53", 3))
        lg.wait(lg.issued); self.barrier()

    def attn_setup(self): self.attn(True)
    def attn(self, setup=False):
        a = self.a; I = self.I; vm = self.vm; lg = self.lg
        M16 = "v_mfma_f32_16x16x32_bf16"
        ML = 155648; QA_LDS = 65536; QB_LDS = 131072
        O = 192; QF = 160; NM = 144; S = [112, 128]; PP = [96, 104]; RING = 64; NR = 8; E = 56; PK = 16
        VK, VV, VL16, VSC, LM, THR, NINF, VQ, TMP = 4, 5, 6, 7, 8, 9, 10, 11, 12
        LS, ONES, BIAS = 152, 60, 11.0
        SR, SG, SC1, SC2, SKO, SVO, SKM, SVM, STH = 32, 33, 34, 35, 36, 37, 38, 39, 42
        SFIN, SCA, SM1 = 55, 59, 58
        DC = self.o.get("dmacost", 16); WEV = self.o.get("wev", 4)
        if setup:
            I(f"s_lshr_b32 s{SG}, s{SW}, 2"); I(f"s_mul_i32 s{SR}, s{SG}, 7"); I(f"s_xor_b32 s{SR}, s{SR}, s{SW}")
            I(f"v_lshlrev_b32 v{VL16}, 4, v0")
            I(f"s_lshl_b32 s44, s{SR}, 13"); I(f"s_add_u32 s44, s44, {QB_LDS}"); I(f"v_add_u32 v{VQ}, s44, v{VL16}")
            I(f"s_lshl_b32 s45, s{SG}, 16"); I(f"v_subrev_u32 v{TMP+1}, s45, v{VQ}")
            I(f"s_mov_b32 s{SC1}, s{SIDX}")
            I(f"s_lshl_b32 s{SC2}, s{SIDX}, 1"); I(f"s_sub_u32 s{SC2}, 14, s{SC2}")
            I(f"s_cmp_eq_u32 s{SG}, 1"); I(f"s_cselect_b32 s{SM1}, 0, -1")
            I(f"s_lshl_b32 s43, s{SW}, 12"); I(f"s_lshl_b32 s{SVO}, s{SHEAD}, 20"); I(f"s_add_u32 s{SVO}, s{SVO}, s43")
            I(f"s_add_u32 s{SKO}, s{SVO}, 0x10000"); I(f"s_add_u32 s{SVO}, s{SVO}, 0x8000")
            I(f"s_mov_b32 s{SKM}, s43"); I(f"s_add_u32 s{SVM}, s43, 0x18000")
            I(f"s_mov_b32 s{STH}, 0x40004000"); I(f"v_mov_b32 v{NINF}, 0xff800000")
            for r in range(4): I(f"v_mov_b32 v{ONES+r}, 0x3f803f80"); I(f"v_mov_b64 {v(LS+2*r,2)}, 0")
            I(f"v_and_b32 v{THR}, 15, v0"); I(f"v_lshlrev_b32 v{VSC}, 4, v{THR}"); I(f"s_lshl_b32 s44, s{SR}, 5"); I(f"v_add_u32 v{THR}, s44, v{THR}")
            I(f"v_lshrrev_b32 v{TMP}, 4, v0"); I(f"v_lshl_add_u32 v{VSC}, v{TMP}, 9, v{VSC}"); I(f"v_lshlrev_b32 v{TMP}, 2, v{TMP}"); I(f"v_sub_u32 v{THR}, v{THR}, v{TMP}")
            I(f"v_and_b32 v{VK}, 15, v0"); I(f"v_lshlrev_b32 v{VK}, 4, v{VK}"); I(f"v_lshrrev_b32 v{TMP}, 4, v0"); I(f"v_lshl_add_u32 v{VK}, v{TMP}, {self.GSH}, v{VK}"); I(f"v_add_u32 v{VK}, 0x8000, v{VK}")
            I(f"s_lshl_b32 s{SCA}, s{SIDX}, 2"); I(f"s_add_u32 s{SCA}, s{SCA}, s{SR}"); I(f"s_lshl_b32 s{SCA}, s{SCA}, 5"); I(f"s_add_u32 s{SCA}, s{SCA}, s{SHEAD}")
            I(f"s_lshl_b32 s{SCA}, s{SCA}, 13"); I(f"s_add_u32 s{SCA}, s{SCA}, {CTX_OFF}")
            I(f"s_mov_b32 s{SFIN}, 0")
            I(f"s_lshr_b32 s56, s{SF}, 6"); I("s_lshl_b32 s56, s56, 2"); I(f"s_bfe_u32 s44, s{SF}, 0x20003"); I("s_add_u32 s56, s56, s44"); I("s_lshl_b32 s56, s56, 1")
            I(f"s_bfe_u32 s44, s{SF}, 0x10005"); I("s_add_u32 s56, s56, s44"); I(f"s_and_b32 s57, s{SF}, 7")
            self.srd(RB, "ssmk", 2*MB); self.srd(RA, "k", 2*MB); self.srd(RC, "v", 2*MB); self.srd(RD, "shift", 4096); self.srd(RE, "wo", 4*MB)
            I("s_mov_b32 s41, 0")
            CL = self.o.get("cl", 8)
            I(f"s_lshr_b32 s40, {1 << (CL+2)}, s{SG}"); I(f"s_or_b32 s40, s40, {1 << CL}")
            I(f"s_lshl_b32 s44, 2, s{SW}"); I("s_and_b32 s44, s44, 30"); I("s_or_b32 s40, s40, s44")
            I(f"s_cmp_eq_u32 s{SW}, 0"); I(f"s_cselect_b32 s44, {(1 << 5) | (1 << (CL+4))}, 0"); I("s_or_b32 s40, s40, s44")
            if not self.o.get("noprio"):
                l = a.label("PR"); I(f"s_cmp_eq_u32 s{SG}, 1"); I(f"s_cbranch_scc0 {l}"); I("s_setprio 1"); a.L(l)
            return
        op = lambda t, c=4: (lambda: I(t), c)
        nop = lambda: None
        def loadq(va):
            for ds in range(8):
                I(f"ds_read_b128 {v(QF+4*ds,4)}, v{va} offset:{1024*ds}"); lg.issue()
        def dma4(kind):
            sm, so = (SKM, SKO) if kind == "k" else (SVM, SVO)
            def d(i):
                def f():
                    if i == 0: I(f"s_mov_b32 m0, s{sm}"); I(f"s_xor_b32 s{sm}, s{sm}, 0x8000")
                    I(f"buffer_load_dwordx4 v{VL16}, s[{RWS}:{RWS+3}], s{so} offen offset:{1024*i}{self.ld} lds")
                    if i == 3: I(f"s_add_u32 s{so}, s{so}, 0x10000")
                return (f, DC + (8 if i == 0 else 4 if i == 3 else 0))
            return [d(i) for i in range(4)]
        self.ring_n = 0
        def rd(kind, sl, idx):
            h = {}
            def f():
                slot = self.ring_n % NR; self.ring_n += 1
                h["reg"] = RING + 4*slot
                I(f"ds_read_b128 {v(h['reg'],4)}, v{VK if kind == 'k' else VV} offset:{sl*8192+(idx << self.FSH)}"); h["tok"] = lg.issue()
            return f, h
        def wait_for(R, i):
            if R[i][1]["tok"] <= lg.done: return
            j = i
            while j + 1 < len(R) and j + 1 < i + WEV and "tok" in R[j+1][1] and R[j+1][1]["tok"] > R[i][1]["tok"]: j += 1
            lg.wait(R[j][1]["tok"])
        def otile(dt, qt): return O + 16*(dt >> 1) + 8*qt + 4*(dt & 1)
        def qk(sb, R, base, czero=False):
            def f(m):
                kt, qt, dd = m >> 3, (m >> 2) & 1, m & 3; i = base + 4*kt + dd
                wait_for(R, i); d = v(S[sb] + 8*qt + 4*kt, 4)
                c = ("0" if czero else v(NM + 4*qt, 4)) if dd == 0 else d
                I(f"{M16} {d}, {v(R[i][1]['reg'],4)}, {v(QF + 16*qt + 4*dd, 4)}, {c}")
            return [lambda m=m: f(m) for m in range(16)]
        def pv1(pb, dt, qt, reg): I(f"{M16} {v(otile(dt, qt),4)}, {v(reg,4)}, {v(PP[pb]+4*qt,4)}, {v(otile(dt, qt),4)}")
        def pv(pb, R, base, dts=range(8), exact=False):
            def f(dt, qt):
                if exact: lg.wait(R[base+dt][1]["tok"])
                else: wait_for(R, base + dt)
                pv1(pb, dt, qt, R[base+dt][1]["reg"])
            ls = [lambda qt=qt: I(f"{M16} {v(LS+4*qt,4)}, {v(ONES,4)}, {v(PP[pb]+4*qt,4)}, {v(LS+4*qt,4)}") for qt in range(2)]
            return ls + [lambda dt=dt, qt=qt: f(dt, qt) for dt in dts for qt in range(2)]
        def sm_ops(sb):
            ex = lambda i: op(f"v_exp_f32 v{E+(i&3)}, v{S[sb]+i}", 8)
            cv = lambda j: op(f"v_cvt_pk_bf16_f32 v{PP[sb]+j}, v{E+((2*j)&3)}, v{E+((2*j+1)&3)}")
            p = PP[sb]; L = [ex(0), ex(1)]
            ors = {2: f"v_or3_b32 v{LM}, v{p}, v{p+1}, v{p+2}", 4: f"v_or3_b32 v{LM}, v{LM}, v{p+3}, v{p+4}", 6: f"v_or3_b32 v{LM}, v{LM}, v{p+5}, v{p+6}"}
            for j in range(8):
                L += [ex(2*j+2), cv(j), ex(2*j+3)] if j < 7 else [op("s_nop 0"), cv(j)]
                if j in ors: L.append(op(ors[j]))
            L = [x for i, x in enumerate(L) if i != len(L) - 2]
            L += [op(f"v_or_b32 v{LM}, v{LM}, v{p+7}"), op(f"v_and_b32 v{LM}, s{STH}, v{LM}")]
            return L
        def sched(M, fixed, chain):
            n = len(M); fc = [sum(c for _, c in fixed.get(g, [])) for g in range(n)]
            tot = sum(c for _, c in chain); lo, hi = 0.0, 4000.0
            for _ in range(40):
                lev = (lo + hi) / 2
                if sum(max(0, lev - f) for f in fc) >= tot: hi = lev
                else: lo = lev
            k = 0; credit = 0.0
            for g in range(n):
                M[g]()
                for c, _ in fixed.get(g, []): c()
                credit += max(0, hi - fc[g])
                while k < len(chain) and (g == n - 1 or chain[k][1] <= credit + 2):
                    chain[k][0](); credit -= chain[k][1]; k += 1
        def put(fixed, g, items): fixed.setdefault(g, []).extend(items)
        SPL = self.o.get("spl", 18)
        ool = []
        def rarely(cmp_, body):
            lo = a.label("OOL"); lb = a.label("RET")
            I(cmp_); I(f"s_cbranch_scc1 {lo}"); a.L(lb)
            ool.append((lo, lb, body))
        def mask_ops(sb, koff):
            prs = [46, 48, 50, 52]; L = []
            if koff >= 64:
                L.append(op(f"v_subrev_u32 v{TMP+3}, 64, v{THR}")); tr = TMP + 3; koff -= 64
            elif koff < 0:
                L += [op(f"s_lshl_b32 s45, s{SG}, 6"), op(f"v_subrev_u32 v{TMP+3}, s45, v{THR}")]; tr = TMP + 3; koff = -koff - 1
            else: tr = THR
            for r0 in range(0, 16, 4):
                qt, kt = r0 >> 3, (r0 >> 2) & 1
                for r in range(4): L.append(op(f"v_cmp_lt_i32 s[{prs[r]}:{prs[r]+1}], v{tr}, {16*kt + r + koff - 16*qt}"))
                for r in range(4): L.append(op(f"v_cndmask_b32 v{S[sb]+r0+r}, v{S[sb]+r0+r}, v{NINF}, s[{prs[r]}:{prs[r]+1}]"))
            return L
        def mask_body(sb, koff):
            for c, _ in mask_ops(sb, koff): c()
        def xred(x, y, t0, t1, o):
            L = []
            for sw in ("v_permlane16_swap_b32", "v_permlane32_swap_b32"):
                L += [op(f"v_mov_b32 v{t0}, v{x}"), op(f"v_mov_b32 v{t1}, v{y}"), op("s_nop 0"), op(f"{sw} v{t0}, v{x}"), op(f"{sw} v{t1}, v{y}"),
                      op(f"{o} v{x}, v{x}, v{t0}"), op(f"{o} v{y}, v{y}, v{t1}")]
            return L
        def rowmax(sb):
            for qt in range(2):
                b = S[sb] + 8*qt; d = TMP + qt
                I(f"v_max3_f32 v{d}, v{b}, v{b+1}, v{b+2}"); I(f"v_max3_f32 v{d}, v{d}, v{b+3}, v{b+4}"); I(f"v_max3_f32 v{d}, v{d}, v{b+5}, v{b+6}"); I(f"v_max_f32 v{d}, v{d}, v{b+7}")
            for c, _ in xred(TMP, TMP+1, TMP+2, TMP+3, "v_max_f32"): c()
        def init_max():
            rowmax(0)
            for qt in range(2): I(f"v_max_f32 v{TMP+qt}, {f2u(-1e30)}, v{TMP+qt}"); I(f"v_add_f32 v{TMP+qt}, {f2u(BIAS)}, v{TMP+qt}")
            for r in range(8): I(f"v_sub_f32 v{NM+r}, 0, v{TMP+(r>>2)}")
            return [op(f"v_sub_f32 v{S[0]+r}, v{S[0]+r}, v{TMP+(r>>3)}") for r in range(16)]
        rare = []
        def check(sb, other=True):
            lr = a.label("RARE"); lb = a.label("BACK")
            I(f"v_cmp_ne_u32 vcc, 0, v{LM}")
            if self.o.get("a_nocheck"): I("s_mov_b64 vcc, 0")
            I(f"s_cbranch_vccnz {lr}"); a.L(lb)
            rare.append((lr, lb, sb, other))
        def fin_body():
            I(f"s_mov_b32 s{SFIN}, 2")
            I(f"v_rcp_f32 v{TMP}, v{LS}"); I(f"v_rcp_f32 v{TMP+2}, v{LS+4}"); I(f"v_mov_b32 v{TMP+1}, v{TMP}"); I(f"v_mov_b32 v{TMP+3}, v{TMP+2}")
            for r in range(4): I(f"v_mov_b64 {v(LS+2*r,2)}, 0")
            for q in range(8):
                for i in range(8*q, 8*q+8, 2): I(f"v_pk_mul_f32 {v(O+i,2)}, {v(O+i,2)}, {v(TMP+2*(q&1),2)}")
                for i in range(4): I(f"v_cvt_pk_bf16_f32 v{PK+4*q+i}, v{O+8*q+2*i}, v{O+8*q+2*i+1}")
                for i in range(8*q, 8*q+8, 2): I(f"v_mov_b64 {v(O+i,2)}, 0")
        coff = lambda q: ((q >> 1) & 1)*2048 + (q & 1)*256
        def st_body():
            I(f"s_add_u32 s44, s{SCA}, 4096"); I(f"s_mov_b32 s{SFIN}, 3")
            for q in range(8):
                I(f"buffer_store_dwordx4 {v(PK+4*q,4)}, v{VSC}, s[{RWS}:{RWS+3}], s{SCA if q < 4 else 44} offen offset:{coff(q)}{self.st}")
        TR = [RING + 4*(2+i) for i in range(6)]
        def head(R, vmw, with_mfma=True, post=(), more=(), pre=None):
            rf = [(f, 4) for f, h in R]; sm2 = sm_ops(0)[SPL:]
            M = [lambda dt=dt, qt=qt: pv1(1, dt, qt, TR[dt-2]) for dt in range(2, 8) for qt in range(2)] if with_mfma else [nop]*12
            if with_mfma: I("s_waitcnt lgkmcnt(4)")
            nb = self.o.get("nb", 4); more = list(more); m0 = len(more) // 3
            if pre is not None: more = list(pre) + more; m0 = len(pre)
            sched(M[:4], {}, sm2[:nb] + more[:m0])
            vmw(); I("s_waitcnt lgkmcnt(0)"); lg.mark_all_done(); self.barrier(); self.ring_n = 0
            fx = {0: rf[0:2], 1: rf[2:4], 2: rf[4:5], 4: rf[5:6], 6: rf[6:7], 7: [(nop, 8 + 8*len(post))]}
            sched(M[4:], fx, sm2[nb:] + more[m0:])
            check(0)
            for p in post: p()
        def mk_reads():
            return ([rd("k", 0, i) for i in range(8)] + [rd("v", 0, i) for i in range(8)] +
                    [rd("k", 1, i) for i in range(8)] + [rd("v", 1, i) for i in range(8)])
        def last_use(F):
            b = (0, 18, 34, 52)[F >> 3]; f = F & 7
            return b + (2*f + 1 if (F >> 3) & 1 else 8*(f >> 2) + 4 + (f & 3))
        def mid(R, dmas, kx, mb=None, trans=False, endops=(), early=(), g=0):
            rf = [(f, 4) for f, h in R]
            fa = {0: [rf[7]]}; fb = {}
            G_ = g
            for g, e in zip((1, 3, 9, 11), early): put(fa, g, [e])
            for F in range(8, 32):
                g = last_use(F - 8) + 1
                put(fa, g, [rf[F]]) if g < 34 else put(fb, g - 34, [rf[F]])
            D = sum((dma4(k) for k in dmas), [])
            st_ = self.o.get("gst", 4); of_ = self.o.get("gof", 2)
            gaps = [2 + of_*G_*2 + 2*st_*n for n in range(4)] if len(D) == 4 else [2 + of_*G_ + st_*n for n in range(8)]
            for g, d in zip(gaps, D): put(fa, g, [d]) if g < 33 else put(fb, g - 33, [d])
            PT = self.o.get("pt", 0)
            if PT and G_ == 0:
                pts = {1: [(0, 24, 2), (1, 21, 0)], 2: [(0, 8, 2), (0, 24, 0), (1, 7, 2), (1, 21, 0)], 3: [(0, 0, 2), (0, 8, 0), (0, 16, 2), (0, 24, 0), (0, 32, 2), (1, 7, 0), (1, 15, 2), (1, 21, 0)],
                       4: [(0, 16, 2), (1, 21, 0)], 5: [(0, 32, 2), (1, 21, 0)]}[PT]
                for part, g, p in pts: put(fb if part else fa, g, [op(f"s_setprio {p}")])
            put(fa, 33, [(nop, 16)])
            sched(qk(0, R, 0, trans) + pv(0, R, 8), fa, sm_ops(1))
            check(1, other=not trans)
            if mb: mb()
            pre = []
            if trans:
                I(f"s_mov_b32 s{SFIN}, 1")
                pre = init_max()
            put(fb, 18, [op(f"v_xor_b32 v{VV}, 0x10000, v{VK}")] + kx)
            for n, e in enumerate(endops): put(fb, 11 - n, [e])
            put(fb, 21, [(nop, 12)])
            sched(qk(1, R, 16) + pv(1, R, 24, range(2)), fb, pre + sm_ops(0)[:SPL])
            assert [R[26+i][1]["reg"] for i in range(6)] == TR
        vm4 = lambda: I("s_waitcnt vmcnt(4)")
        def vm08():
            lo = a.label("W8"); lb = a.label("W8R")
            I(f"s_cmp_eq_u32 s{SFIN}, 3"); I(f"s_cbranch_scc1 {lo}"); I("s_waitcnt vmcnt(0)"); a.L(lb)
            def b(): I("s_waitcnt vmcnt(8)"); I(f"s_mov_b32 s{SFIN}, 4")
            ool.append((lo, lb, b))
        m1 = lambda sb, ko: (lambda: rarely(f"s_cmp_eq_u32 s{SC1}, s{SM1}", lambda: mask_body(sb, ko)))
        fin = lambda: rarely(f"s_cmp_eq_u32 s{SFIN}, 1", fin_body)
        sta = (lambda: rarely(f"s_cmp_eq_u32 s{SFIN}, 2", st_body), 8)
        KR, VR, SH, WO, AD = 16, 23, 28, 32, 40
        def side_loads():
            L = []; E = lambda t: L.append(op(t)); V = lambda t: L.append(op(t, DC))
            E(f"v_lshrrev_b32 v{AD}, 5, v0"); E(f"v_and_b32 v{AD+1}, 31, v0"); E(f"v_lshlrev_b32 v{AD+2}, 12, v{AD}"); E(f"v_lshl_add_u32 v{AD+2}, v{AD+1}, 2, v{AD+2}")
            E(f"s_lshr_b32 s60, s{SF}, 1"); E("s_lshl_b32 s60, s60, 15"); E(f"s_and_b32 s61, s{SF}, 1"); E("s_lshl_b32 s61, s61, 13"); E("s_add_u32 s60, s60, s61")
            E(f"s_lshl_b32 s61, s{SW}, 7"); E("s_add_u32 s60, s60, s61"); E("s_add_u32 s61, s60, 16384")
            for j in range(8): V(f"buffer_load_dword v{WO+j}, v{AD+2}, s[{RE}:{RE+3}], s{60+(j>>2)} offen offset:{1024*(j&3)}")
            E("s_lshr_b32 s62, s2, 3"); E("s_lshl_b32 s62, s62, 16"); E(f"s_lshl_b32 s63, s{SW}, 13"); E("s_add_u32 s62, s62, s63")
            E("s_and_b32 s63, s2, 7"); E("s_lshl_b32 s63, s63, 7"); E("s_add_u32 s62, s62, s63"); E(f"v_add_u32 v{AD+3}, s62, v{AD+2}")
            for i in range(3): E(f"v_subrev_u32 v{AD+4+i}, {3072-1024*i}, v{AD+3}")
            E("s_lshl_b32 s63, s63, 2"); E(f"v_lshl_add_u32 v{AD+7}, v{AD+1}, 4, s63")
            for i in range(3): V(f"buffer_load_dword v{KR+i}, v{AD+4+i}, s[{RA}:{RA+3}], 0 offen")
            for i in range(4): V(f"buffer_load_dword v{KR+3+i}, v{AD+3}, s[{RA}:{RA+3}], 0 offen offset:{1024*i}")
            for i in range(4): V(f"buffer_load_dword v{VR+i}, v{AD+3}, s[{RC}:{RC+3}], 0 offen offset:{1024*i}")
            V(f"buffer_load_dwordx4 {v(SH,4)}, v{AD+7}, s[{RD}:{RD+3}], 0 offen")
            return L
        NSL = 21
        def side_math():
            L = []; E = lambda t: L.append(op(t)); V = lambda t: L.append(op(t, DC))
            W2 = 48
            E("s_mov_b32 s60, 0x05040100"); E("s_mov_b32 s61, 0x07060302")
            for j in range(4): E(f"v_perm_b32 v{W2+j}, v{WO+2*j+1}, v{WO+2*j}, s60")
            for j in range(4): E(f"v_perm_b32 v{W2+4+j}, v{WO+2*j+1}, v{WO+2*j}, s61")
            E(f"s_lshl_b32 s60, s{SW}, 8"); E(f"s_add_u32 s60, s60, s{SF}"); E("s_lshl_b32 s60, s60, 11"); E(f"s_add_u32 s60, s60, {WOT_OFF}")
            for mt in range(2): V(f"buffer_store_dwordx4 {v(W2+4*mt,4)}, v{VL16}, s[{RWS}:{RWS+3}], s60 offen offset:{1024*mt}{self.st}")
            KU, SU, OO, VU, PQ = 32, 42, 48, 39, 52
            for c in range(2):
                def unp(d, sreg, half): E(f"v_lshlrev_b32 v{d}, 16, v{sreg}" if half == 0 else f"v_and_b32 v{d}, 0xffff0000, v{sreg}")
                for i in range(7): unp(KU+i, KR+i, c)
                for j in range(4): unp(SU+j, SH + 2*c + (j >> 1), j & 1)
                for o in range(4):
                    E(f"v_mul_f32 v{OO+o}, v{KU+o}, v{SU+3}")
                    for j in (2, 1, 0): E(f"v_fmac_f32 v{OO+o}, v{KU+o+3-j}, v{SU+j}")
                    unp(VU, VR+o, c)
                    E(f"v_mul_f32 v{OO+o}, v{OO+o}, v{VU}")
                d = PQ + 2*(1-c)
                E(f"v_cvt_pk_bf16_f32 v{d}, v{OO+3}, v{OO+2}"); E(f"v_cvt_pk_bf16_f32 v{d+1}, v{OO+1}, v{OO}")
            E(f"v_lshlrev_b32 v{AD+1}, 5, v{AD+1}"); E(f"v_lshl_add_u32 v{AD+1}, v{AD}, 4, v{AD+1}")
            E(f"v_permlane32_swap_b32 v{PQ+2}, v{PQ}"); E(f"v_permlane32_swap_b32 v{PQ+3}, v{PQ+1}")
            E("s_lshr_b32 s60, s2, 3"); E("s_lshl_b32 s60, s60, 16"); E(f"s_lshl_b32 s61, s{SW}, 13"); E("s_add_u32 s60, s60, s61")
            E("s_and_b32 s61, s2, 7"); E("s_lshl_b32 s61, s61, 10"); E("s_add_u32 s60, s60, s61"); E(f"s_add_u32 s60, s60, {KVT_OFF}")
            V(f"buffer_store_dwordx4 {v(PQ,4)}, v{AD+1}, s[{RWS}:{RWS+3}], s60 offen{self.st}")
            return L
        CL = self.o.get("cl", 8)
        def touch(k):
            if k in (1, 2):
                I(f"s_lshr_b32 s60, s{SF}, 1"); I("s_lshl_b32 s60, s60, 15"); I(f"s_and_b32 s61, s{SF}, 1"); I("s_lshl_b32 s61, s61, 13"); I("s_add_u32 s60, s60, s61")
                if k == 2: I("s_add_u32 s60, s60, 16384")
                I("v_lshlrev_b32 v16, 7, v0"); r = RE
            elif k in (3, 4):
                I("s_lshr_b32 s60, s2, 3"); I("s_lshl_b32 s60, s60, 16"); I("s_and_b32 s61, s2, 7"); I("s_lshl_b32 s61, s61, 7"); I("s_add_u32 s60, s60, s61")
                I("v_lshlrev_b32 v16, 10, v0"); r = RA if k == 3 else RC
            else:
                I(f"s_lshl_b32 s60, s{SF}, 13"); I("v_lshlrev_b32 v16, 7, v0"); r = RB
            I(f"buffer_load_dword v1, v16, s[{r}:{r+3}], s60 offen")
        LSITE = a.label("SITE")
        def site_code():
            a.L(LSITE)
            def ret(): I("s_nop 1"); I("s_setpc_b64 s[76:77]")
            l = a.label("SN"); I(f"s_cmp_lg_u32 s41, {CL}"); I(f"s_cbranch_scc1 {l}")
            for c, _ in side_loads(): c()
            ret(); a.L(l)
            l = a.label("SN"); I(f"s_add_u32 s44, s41, s{SG}"); I(f"s_cmp_lg_u32 s44, {CL+2}"); I(f"s_cbranch_scc1 {l}")
            for c, _ in side_math(): c()
            ret(); a.L(l)
            for k in range(1, 6):
                l = a.label("SN")
                I(f"s_cmp_lg_u32 s41, {k}"); I(f"s_cbranch_scc1 {l}")
                touch(k); ret(); a.L(l)
            I(f"s_lshl_b32 s44, s{SF}, 2"); I(f"s_add_u32 s44, s44, {FY_OFF}")
            sv = self.save(); self.publish(44, 2); self.restore(sv)
            ret()
        def spf():
            I("s_add_u32 s41, s41, 1"); rarely("s_bitcmp1_b32 s40, s41", lambda: I(f"s_call_b64 s[76:77], {LSITE}"))
        spub = (spf, 12)
        def snap():
            I(f"s_mov_b32 s61, {FY_OFF}"); I(f"buffer_load_dwordx4 v[52:55], v{VL16}, s[{RWS}:{RWS+3}], s61 offen sc1")
        def side_check():
            lo = a.label("SCK"); lb = a.label("SCR")
            def test():
                I("v_and_b32 v52, v52, v53"); I("v_and_b32 v54, v54, v55"); I("v_and_b32 v52, v52, v54"); I("v_and_b32 v52, 2, v52"); I("v_cmp_ne_u32 vcc, 2, v52")
            test(); I(f"s_cbranch_vccnz {lo}"); a.L(lb)
            def spin():
                lp = a.label("SPL")
                I("s_mov_b32 s99, 20000"); a.L(lp)
                I("s_sleep 2"); I(f"buffer_load_dwordx4 v[52:55], v{VL16}, s[{RWS}:{RWS+3}], s61 offen sc1"); I("s_waitcnt vmcnt(0)")
                test(); I(f"s_cbranch_vccz {lb}")
                I("s_sub_u32 s99, s99, 1"); I("s_cmp_lg_u32 s99, 0"); I(f"s_cbranch_scc1 {lp}")
            ool.append((lo, lb, spin))
        m2 = lambda sb, ko: (lambda: rarely(f"s_cmp_eq_u32 s{SC2}, 0", lambda: (snap(), mask_body(sb, ko))))
        LEV = a.label("EVEN"); LODM = a.label("ODDM"); LTRANS = a.label("TRANS"); LP2 = a.label("P2"); LP2B = a.label("P2B"); LDRAIN = a.label("DRAIN")
        self.stamp(8)
        self.ring_n = 0
        R = [rd("k", 0, i) for i in range(8)] + [rd("k", 1, i) for i in range(8)]
        def qrd(i):
            I(f"ds_read_b128 {v(QF+4*i,4)}, v{TMP+1} offset:{1024*i}"); return lg.issue()
        for i in range(4): qrd(i); R[i][0]()
        for i in range(4, 8): tq = qrd(i)
        D = dma4("v") + dma4("k")
        fx = {g: [(R[4+g][0], 4)] for g in range(4)}
        put(fx, 3, [(lambda: lg.wait(tq), 4)])
        for F in range(8, 15): put(fx, last_use(F - 8) + 1, [(R[F][0], 4)])
        for n, d in enumerate(D): put(fx, 2*n, [d])
        sched(qk(0, R, 0, True), fx, [])
        m1(0, 0)()
        pre = init_max()
        fx = {0: [(R[15][0], 4)], 8: [op(f"v_xor_b32 v{VV}, 0x10000, v{VK}"), op(f"v_xor_b32 v{VK}, 0x4000, v{VK}")]}
        sched(qk(1, R, 8), fx, pre + sm_ops(0)[:SPL])
        R = mk_reads()
        head(R, vm4, False, post=[m1(1, 32)])
        svm = self.save()
        self.stamp(9)
        LOD = [a.label("ODD0"), a.label("ODD1")]
        I(f"s_cmp_eq_u32 s{SG}, 1"); I(f"s_cbranch_scc1 {LOD[1]}"); I(f"s_branch {LOD[0]}")
        vm0 = lambda: I("s_waitcnt vmcnt(0)")
        def loops(g):
            LEV = a.label("EVEN"); LP2 = a.label("P2")
            mm = (lambda sb, ko: m1(sb, ko)) if g else (lambda sb, ko: None)
            a.L(LEV)
            R = mk_reads(); head(R, vm4)
            mid(R, "k", [op(f"v_xor_b32 v{VK}, 0x4000, v{VK}")], mb=mm(0, 0), early=[spub], g=g)
            R = mk_reads(); head(R, vm4, post=[m1(1, 32)] if g else [])
            assert self.lg.issued - self.lg.done == svm[2] - svm[3]
            a.L(LOD[g])
            mid(R, "v", [op(f"v_xor_b32 v{VK}, 0xc000, v{VK}")], mb=mm(0, 64), endops=[op(f"s_sub_u32 s{SC1}, s{SC1}, 1")], early=[spub], g=g)
            I(f"s_cmp_lg_u32 s{SC1}, -1"); I(f"s_cbranch_scc1 {LEV}")
            self.stamp(14)
            if g:
                loadq(VQ); I("s_waitcnt lgkmcnt(0)"); I(f"v_xor_b32 v{VK}, 0x4000, v{VK}")
            R = mk_reads(); head(R, vm4, more=mask_ops(1, 96) if g else ())
            mid(R, "k", [op(f"v_xor_b32 v{VK}, 0x8000, v{VK}")], mb=m2(0, -1), trans=bool(g), early=[spub], g=g)
            self.stamp(15)
            I(f"s_cmp_eq_u32 s{SC2}, 0"); I(f"s_cbranch_scc1 {LDRAIN}")
            a.L(LP2)
            R = mk_reads(); head(R, vm08 if g else vm0)
            mid(R, "kv", [op(f"v_xor_b32 v{VK}, 0x8000, v{VK}")], mb=m2(0, -1), endops=[sta] if g else [],
                early=[spub] + ([(fin, 8)] if g else []) + [op(f"s_sub_u32 s{SC2}, s{SC2}, 1")], g=g)
            I(f"s_cmp_lg_u32 s{SC2}, 0"); I(f"s_cbranch_scc1 {LP2}")
        loops(1); I(f"s_branch {LDRAIN}")
        loops(0)
        a.L(LDRAIN)
        self.stamp(10)
        R2 = [rd("v", 0, i) for i in range(8)] + [rd("v", 1, i) for i in range(8)]
        rf = [(f, 4) for f, h in R2]
        ts, ts2, ts3 = self.tail_setup()
        tsa = [x for x in ts if x[1] == 4]; tsl = [x for x in ts if x[1] != 4]
        mk_ = mask_ops(1, -33)
        head(R2, lambda: (vm08(), side_check(), tsl[0][0](), tsl[1][0]()), post=[fin, sta[0]], pre=tsa[:8], more=tsa[8:16] + [tsl[2]] + mk_)
        ts = tsa[16:]
        if self.o.get("dst"): self.stamp(17)
        pre = []; E_ = lambda t: pre.append(op(t))
        E_(f"s_add_u32 s44, s{SWK}, {ML}"); E_(f"v_add_u32 v54, s44, v{VL16}")
        E_(f"s_lshl_b32 s46, s{SW}, 13"); E_(f"v_add_u32 v55, s46, v{VL16}")
        E_(f"s_sub_u32 s54, 15, s{SIDX}"); E_(f"s_lshl_b32 s54, s54, 2"); E_(f"s_add_u32 s54, s54, s{SR}"); E_("s_lshl_b32 s54, s54, 5"); E_(f"s_add_u32 s54, s54, s{SHEAD}")
        E_("s_lshl_b32 s54, s54, 13"); E_(f"s_lshl_b32 s44, s{SG}, 12"); E_("s_add_u32 s54, s54, s44"); E_(f"s_add_u32 s54, s54, {CTX_OFF}")
        def lsum():
            def wml():
                I(f"ds_write_b128 v54, {v(150,4)}"); lg.issue()
            return [op(f"v_mov_b32 v150, v{NM}"), op(f"v_mov_b32 v{LS+1}, v{LS+4}"), (wml, 4)]
        def osend(g, i):
            def f():
                I(f"ds_write_b128 v55, {v(O+32*(1-g)+4*i,4)} offset:{1024*i}"); lg.issue()
            return (f, 16)
        lj = a.label("MGJ"); LMG = [a.label("MG0"), a.label("MG1")]; LFB = a.label("FB1"); LSK = a.label("SKIP"); LS1 = a.label("SK1")
        I(f"s_lshl_b32 s45, s{SG}, 1"); I(f"s_sub_u32 s45, s{SR}, s45"); I("s_cmp_lt_i32 s45, 1"); I(f"s_cbranch_scc1 {LSK}")
        svd = self.save(); rnd = self.ring_n
        setup_ = ts + pre + ts3; n8 = (len(setup_) + 15) // 16
        fx = {g: setup_[g*n8:(g+1)*n8] for g in range(16)}
        for F in range(7, 15): put(fx, 2*(F - 7) + (2 if F > 7 else 0), [rf[F]])
        sched(pv(0, R2, 0), fx, sm_ops(1))
        check(1)
        rf[15][0]()
        if self.o.get("dst"): self.stamp(20)
        I(f"s_cmp_eq_u32 s{SG}, 1"); I(f"s_cbranch_scc1 {LFB}")
        sv2 = self.save(); PR = 64
        for g in (0, 1):
            if g: a.L(LFB); self.restore(sv2)
            own = O + 32*g; snd = O + 32*(1-g)
            dts = list(range(4*(1-g), 4*(1-g)+4)) + list(range(4*g, 4*g+4))
            fx = {10 + i: [osend(g, i)] for i in range(8)}
            put(fx, 8, lsum())
            sched(pv(1, R2, 8, dts, True), fx, self.tail_valu())
            a.L(LMG[g])
            if self.o.get("dst"): self.stamp(18)
            I(f"v_xor_b32 v54, 0x1c00, v54"); I(f"v_xor_b32 v55, 0xe000, v55")
            I("s_waitcnt lgkmcnt(0)"); lg.mark_all_done(); self.barrier()
            if self.o.get("dst"): self.stamp(19)
            I(f"ds_read_b128 {v(96,4)}, v54"); t0 = lg.issue()
            tk = []
            for i in range(8):
                I(f"ds_read_b128 {v(PR+4*i,4)}, v55 offset:{1024*i}"); tk.append(lg.issue())
            lg.wait(t0)
            for q in range(2):
                I(f"v_min_f32 v100, v{150+q}, v{96+q}"); I(f"v_sub_f32 v101, v100, v{150+q}"); I(f"v_sub_f32 v102, v100, v{96+q}")
                I("v_exp_f32 v101, v101"); I("v_exp_f32 v102, v102")
                I(f"v_mul_f32 v103, v101, v{LS+q}"); I(f"v_fmac_f32 v103, v102, v{98+q}"); I("v_rcp_f32 v103, v103")
                b = 104 + 4*q
                I(f"v_mul_f32 v{b}, v101, v103"); I(f"v_mul_f32 v{b+1}, v101, v103"); I(f"v_mul_f32 v{b+2}, v102, v103"); I(f"v_mul_f32 v{b+3}, v102, v103")
            tw = self.tail_writes()
            for q in range(4):
                b = 104 + 4*(q & 1)
                for i in range(8*q, 8*q+8, 2): I(f"v_pk_mul_f32 {v(own+i,2)}, {v(own+i,2)}, {v(b,2)}")
                lg.wait(tk[2*q+1])
                if not self.o.get("twe"):
                    for c in tw[3*q:3*q+3]: c()
                for i in range(8*q, 8*q+8, 2): I(f"v_pk_fma_f32 {v(own+i,2)}, {v(PR+i,2)}, {v(b+2,2)}, {v(own+i,2)}")
                for i in range(4): I(f"v_cvt_pk_bf16_f32 v{snd+4*q+i}, v{own+8*q+2*i}, v{own+8*q+2*i+1}")
                I(f"buffer_store_dwordx4 {v(snd+4*q,4)}, v{VSC}, s[{RWS}:{RWS+3}], s54 offen offset:{coff(q)}{self.st}"); self.tctx = vm.issue()
            if self.o.get("twe"):
                for c in tw: c()
            if not g: I(f"s_branch {lj}")
        def skip_path():
            keep = self.save(); tctx = self.tctx; th = self.th
            a.L(LSK); self.restore(svd); self.ring_n = rnd
            I("s_cmp_lt_i32 s45, 0"); I(f"s_cbranch_scc1 {LS1}")
            rf[7][0]()
            for f in pv(0, R2[:8], 0): f()
            a.L(LS1)
            for c, _ in setup_ + lsum() + self.tail_valu(): c()
            l1 = a.label("SG1"); I(f"s_cmp_eq_u32 s{SG}, 1"); I(f"s_cbranch_scc1 {l1}")
            for g in (0, 1):
                if g: a.L(l1)
                for i in range(8): osend(g, i)[0]()
                I(f"s_branch {LMG[g]}")
            self.restore(keep); self.tctx = tctx; self.th = th
        a.L(lj)
        I("s_setprio 0")
        self.stamp(4)
        def cold():
            skip_path()
            site_code()
            for (lo, lb, body) in ool:
                a.L(lo); body(); I(f"s_branch {lb}")
            for (lr, lb, sb, other) in rare:
                a.L(lr)
                I("s_nop 15")
                rowmax(sb)
                for q in range(2): I(f"v_add_f32 v{TMP+q}, {f2u(BIAS)}, v{TMP+q}"); I(f"v_max_f32 v{TMP+q}, 0, v{TMP+q}"); I(f"v_exp_f32 v{TMP+2+q}, -v{TMP+q}")
                for r in range(8): I(f"v_sub_f32 v{NM+r}, v{NM+r}, v{TMP+(r>>2)}")
                for r in range(16): I(f"v_sub_f32 v{S[sb]+r}, v{S[sb]+r}, v{TMP+(r>>3)}")
                if other:
                    for r in range(16): I(f"v_sub_f32 v{S[1-sb]+r}, v{S[1-sb]+r}, v{TMP+(r>>3)}")
                for r in range(64): I(f"v_mul_f32 v{O+r}, v{O+r}, v{TMP+2+((r>>3)&1)}")
                for r in range(8): I(f"v_mul_f32 v{LS+r}, v{LS+r}, v{TMP+2+(r>>2)}")
                for c, _ in sm_ops(sb): c()
                I("s_nop 1"); I(f"s_branch {lb}")
        self.attn_rare = cold

    HB = 65536; HC = 4416; XB = 136192; YB = 148480
    SC, SJ, SB, SCH, SHB_, SWO, SCX = 34, 35, 36, 37, 38, 39, 40
    WS_ = [16, 24, 32, 40, 176, 184, 56, 80, 88, 96, 104, 144, 152, 160]
    CS_ = [168, 112, 120, 128, 136, 64, 72]
    NL = 4
    def tail_setup(self):
        I = self.I; L = []; E = lambda t: L.append((lambda: I(t), 4))
        SC, SJ, SB, SCH, SHB_, SWO, SCX = self.SC, self.SJ, self.SB, self.SCH, self.SHB_, self.SWO, self.SCX
        self.wtok = {}; self.wslot = dict(enumerate(self.WS_))
        E(f"s_lshr_b32 s{SC}, s{SW}, 2"); E(f"s_and_b32 s{SJ}, s{SW}, 3")
        E(f"s_lshl_b32 s{SCH}, s{SF}, 1"); E(f"s_add_u32 s{SCH}, s{SCH}, s{SC}"); E(f"s_lshl_b32 s{SCH}, s{SCH}, 12")
        E(f"s_lshl_b32 s60, s{SJ}, 10"); E("v_add_u32 v50, s60, v6"); E("v_subrev_u32 v51, 16, v50")
        E(f"s_lshl_b32 s63, s{SW}, 18"); E(f"s_lshl_b32 s62, s{SF}, 5"); E("s_add_u32 s63, s63, s62"); E(f"s_add_u32 s63, s63, {KVT_OFF}")
        E("v_lshrrev_b32 v48, 1, v0"); E("v_and_b32 v158, 1, v0" if False else "v_and_b32 v3, 1, v0"); E("v_lshlrev_b32 v49, 13, v48"); E("v_lshl_add_u32 v49, v3, 4, v49")
        def ld(t):
            def f(): I(t); self.th = self.vm.issue()
            L.append((f, 16))
        ld(f"buffer_load_dwordx4 {v(160,4)}, v51, s[{RB}:{RB+3}], s{SCH} offen")
        ld(f"buffer_load_dwordx4 {v(164,4)}, v50, s[{RB}:{RB+3}], s{SCH} offen")
        ld(f"buffer_load_dwordx4 {v(168,4)}, v49, s[{RWS}:{RWS+3}], s63 offen{self.ld}")
        E(f"s_lshl_b32 s{SWO}, s57, 19"); E(f"s_lshl_b32 s60, s{SW}, 15"); E(f"s_add_u32 s{SWO}, s{SWO}, s60"); E(f"s_add_u32 s{SWO}, s{SWO}, {WOT_OFF}")
        E("s_and_b32 s60, s56, 1"); E("s_lshl_b32 s60, s60, 18"); E(f"s_add_u32 s{SWO}, s{SWO}, s60")
        L2 = [(lambda i=i: self.wload(i), 36) for i in range(self.o.get("we", 0))]
        L3 = []; L, Lx = L3, L
        E = lambda t: L3.append((lambda: I(t), 4))
        E(f"s_mul_i32 s{SB}, s{SC}, 6144"); E(f"s_add_u32 s{SB}, s{SB}, {self.XB}")
        E(f"s_mul_i32 s{SHB_}, s{SC}, {8*self.HC}"); E(f"s_add_u32 s{SHB_}, s{SHB_}, {self.HB}")
        E(f"s_xor_b32 s{SCX}, s56, 1"); E(f"s_lshl_b32 s{SCX}, s{SCX}, 19"); E(f"s_lshl_b32 s60, s{SW}, 14"); E(f"s_add_u32 s{SCX}, s{SCX}, s60"); E(f"s_add_u32 s{SCX}, s{SCX}, {CTX_OFF}")
        E("s_and_b32 s60, s56, 1"); E("s_lshl_b32 s60, s60, 17"); E(f"s_add_u32 s{SCX}, s{SCX}, s60")
        return Lx, L2, L3
    def wreg(self, i):
        return self.WS_[i % len(self.WS_)]
    def wload(self, i):
        I = self.I; r = self.wslot[i]
        I(f"s_add_u32 s61, s{self.SWO}, {i*2048}")
        for mt in range(2):
            I(f"buffer_load_dwordx4 {v(r+4*mt,4)}, v6, s[{RWS}:{RWS+3}], s61 offen offset:{mt*1024}{self.ld}"); self.wtok[i] = self.vm.issue()
    def tail_valu(self):
        I = self.I; HC = self.HC; L = []; E = lambda t: L.append((lambda: I(t), 4))
        SJ, SB, SHB_ = self.SJ, self.SB, self.SHB_
        Ee, Eo, Oe, Oo = 160, 113, 122, 131
        E(f"s_add_u32 s60, s{SHB_}, 64"); E("v_add_u32 v138, s60, v50")
        E("v_and_b32 v51, 3, v48"); E("v_mul_u32_u24 v139, 1536, v51"); E("v_lshrrev_b32 v53, 2, v48"); E("v_lshl_add_u32 v139, v53, 4, v139")
        E("v_and_b32 v53, 1, v0"); E("v_mul_u32_u24 v53, 6144, v53"); E(f"s_lshl_b32 s60, s{SW}, 7"); E(f"s_add_u32 s60, s60, {self.XB + 512}"); E("v_add3_u32 v139, v139, v53, s60")
        E("v_and_b32 v51, 3, v0")
        for r in range(2): E(f"v_mov_b64 {v(172+2*r,2)}, 0")
        E("v_bfe_u32 v140, v0, 2, 3"); E(f"v_mul_u32_u24 v140, {HC}, v140"); E("v_lshl_add_u32 v140, v51, 4, v140"); E(f"v_add_u32 v140, s{SHB_}, v140")
        E(f"s_mul_i32 s60, s{SJ}, 1536"); E(f"s_add_u32 s60, s60, s{SB}"); E("v_lshl_add_u32 v141, v0, 3, s60")
        E("s_waitcnt vmcnt(1)")
        for k in range(7): E(f"v_alignbit_b32 v{Oe+k}, v{Ee+k+1}, v{Ee+k}, 16")
        for k in range(1, 7): E(f"v_alignbit_b32 v{Oo+k}, v{Ee+k+1}, v{Ee+k}, 16")
        for k in range(1, 7): E(f"v_mov_b32 v{Eo+k}, v{Ee+k}")
        return L
    def tail_writes(self):
        I = self.I; lg = self.lg; HC = self.HC; L = []
        Ee, Eo, Oe, Oo = 160, 113, 122, 131
        def W(t, pre=None):
            def f():
                if pre: pre()
                I(t); lg.issue()
            L.append(f)
        for r in range(8):
            sft = 1 + r; k = sft >> 1
            base = ((Oe, Oo) if sft & 1 else (Ee, Eo))[k & 1]
            W(f"ds_write_b128 v138, {v(base+k,4)} offset:{r*HC}")
        W(f"ds_write_b128 v140, {v(172,4)}"); W(f"ds_write_b64 v141, {v(172,2)}")
        W(f"ds_write_b128 v139, {v(168,4)}", lambda: self.vm.wait(self.th))
        return L
    def tailp(self):
        a = self.a; I = self.I; vm = self.vm; lg = self.lg
        HB, HC, YB = self.HB, self.HC, self.YB
        SC, SJ, SB, SCH, SHB_, SWO, SCX = self.SC, self.SJ, self.SB, self.SCH, self.SHB_, self.SWO, self.SCX
        ACC = 192; FRS = [224, 240, 64]; RD_ = 224; OACC = 192; YT = self.XB
        VL16, VA, VB, T, VP, VPA, VO, GR, VW1 = 6, 4, 5, 12, 7, 8, 9, 10, 11
        WSL = [16, 24, 32, 40, 48, 56] + list(range(80, 160, 8)); CSL = [160, 168, 176, 184, 64, 72]
        assert len(WSL) == 16
        I(f"s_lshr_b32 s53, s56, 1"); I("s_lshl_b32 s53, s53, 10"); I("s_and_b32 s44, s56, 1"); I("s_lshl_b32 s44, s44, 9"); I("s_add_u32 s53, s53, s44")
        I(f"s_lshr_b32 s44, s{SW}, 1"); I("s_lshl_b32 s44, s44, 7"); I("s_add_u32 s53, s53, s44"); I(f"s_and_b32 s44, s{SW}, 1"); I("s_lshl_b32 s44, s44, 3")
        I("s_add_u32 s53, s53, s44"); I(f"s_add_u32 s53, s53, {FC_OFF}")
        I(f"v_and_b32 v{VPA}, 1, v0"); I(f"v_lshlrev_b32 v{VPA}, 2, v{VPA}")
        PUBN = self.o.get("pubn", 1)
        I(f"s_lshr_b32 s45, s{SHEAD}, 2"); I("s_lshl_b32 s45, s45, 7"); I(f"s_and_b32 s44, s{SHEAD}, 3"); I("s_lshl_b32 s44, s44, 2"); I("s_add_u32 s45, s45, s44")
        I(f"s_sub_u32 s44, 15, s{SIDX}"); I("s_lshl_b32 s44, s44, 10"); I("s_add_u32 s46, s44, s45"); I(f"s_add_u32 s46, s46, {FC_OFF}")
        I(f"s_lshl_b32 s44, s{SIDX}, 10"); I("s_add_u32 s47, s44, s45"); I(f"s_add_u32 s47, s47, {FC_OFF}")
        self.srd(RC, "out", 2*MB); self.srd(RD, "q", 2*MB)
        I(f"s_lshl_b32 s44, s{SF}, 2"); I(f"s_load_dword s55, s[{P['ssmD']}:{P['ssmD']+1}], s44")
        I(f"v_and_b32 v{T}, 31, v0"); I(f"v_lshrrev_b32 v{T+1}, 5, v0")
        I(f"v_and_b32 v{T+2}, 7, v0"); I(f"v_mul_u32_u24 v{VA}, {HC}, v{T+2}")
        I(f"v_bfe_u32 v{T+2}, v0, 3, 2"); I(f"v_sub_u32 v{T+2}, v{T+2}, v{T+1}"); I(f"v_lshl_add_u32 v{VA}, v{T+2}, 4, v{VA}")
        I(f"s_lshl_b32 s43, s{SJ}, 9"); I(f"s_add_u32 s43, s43, s{SHB_}"); I("s_add_u32 s43, s43, 32"); I(f"v_add_u32 v{VA}, s43, v{VA}")
        I(f"s_lshl_b32 s43, s{SJ}, 7"); I(f"s_sub_u32 s43, s{SB}, s43"); I("s_add_u32 s43, s43, 400")
        I(f"v_lshl_add_u32 v{VB}, v{T}, 4, s43"); I(f"v_mul_u32_u24 v{T+2}, 1536, v{T+1}"); I(f"v_add_u32 v{VB}, v{VB}, v{T+2}")
        I(f"s_lshl_b32 s51, s{SW}, 13"); I(f"s_xor_b32 s52, s{SCX}, 0x80000")
        I("s_waitcnt lgkmcnt(0)"); lg.mark_all_done(); self.barrier()
        self.stamp(5)
        wtok = {}; ctok = {}; cslot = dict(enumerate(CSL))
        def wload(k):
            I(f"s_add_u32 s61, s{SWO}, {k*2048}")
            for mt in range(2):
                I(f"buffer_load_dwordx4 {v(WSL[k]+4*mt,4)}, v{VL16}, s[{RWS}:{RWS+3}], s61 offen offset:{mt*1024}{self.ld}"); wtok[k] = vm.issue()
        def cload(i):
            k = i & 15
            if k % 4 == 0: I(f"s_add_u32 s62, s{52 if i >= 16 else SCX}, {(k//4)*4096}"); I("s_add_u32 s63, s62, 0x40000")
            for st in range(2):
                I(f"buffer_load_dwordx4 {v(cslot[i]+4*st,4)}, v{VL16}, s[{RWS}:{RWS+3}], s{62+st} offen offset:{(k%4)*1024}{self.ld}"); ctok[i] = vm.issue()
        wl = list(range(16))
        steps = [(dd, ks) for dd in range(8) for ks in range(2)]
        toks = {}
        def reads(n):
            dd, ks = steps[n]; b = FRS[n % 3]
            def r(k, reg, addr, off):
                def f():
                    I(f"ds_read_b128 {v(reg,4)}, v{addr} offset:{off}"); toks[(n, k)] = lg.issue()
                return f
            return [r(0, b, VA, 64*dd + 32*(1-ks)), r(1, b+4, VB, ks*3072 + (7-dd)*16),
                    r(2, b+8, VB, ks*3072 + (7-dd)*16 + 512), r(3, b+12, VA, 64*dd + 32*(1-ks) + 2048)]
        for n in range(2):
            for f in reads(n): f()
        for n in range(16):
            b = FRS[n % 3]; L = reads(n+2) if n + 2 < 16 else []
            c0 = "0" if n == 0 else v(ACC,16); c1 = "0" if n == 0 else v(ACC+16,16)
            lg.wait(toks[(n,1)]); I(f"{MFMA} {v(ACC,16)}, {v(b,4)}, {v(b+4,4)}, {c0}")
            for f in L[0:2]: f()
            lg.wait(toks[(n,2)]); I(f"{MFMA} {v(ACC+16,16)}, {v(b,4)}, {v(b+8,4)}, {c1}")
            for f in L[2:3]: f()
            lg.wait(toks[(n,3)]); I(f"{MFMA} {v(ACC+16,16)}, {v(b+12,4)}, {v(b+4,4)}, {v(ACC+16,16)}")
            for f in L[3:4]: f()
            if n == PUBN:
                vm.wait(self.tctx); self.barrier(); self.publish(46); self.publish(47)
            if n >= PUBN and len(wl) > self.o.get("wkeep", 2): wload(wl.pop(0))
            if n == self.o.get("p1", 12): tc1 = self.poll_issue(VP, VPA, "s53")
        I(f"v_add_u32 v{T+2}, s51, v{VL16}")
        for i in range(8):
            I(f"ds_write_b128 v{T+2}, {v(ACC+4*i,4)} offset:{1024*i}"); lg.issue()
        while wl: wload(wl.pop(0))
        I(f"s_lshl_b32 s43, s{SC}, 15"); I(f"s_lshl_b32 s44, s{SJ}, 11"); I("s_add_u32 s43, s43, s44"); I(f"v_add_u32 v{T+2}, s43, v{VL16}")
        I(f"s_and_b32 s43, s{SJ}, 1"); I("s_mul_i32 s44, s43, 3072"); I(f"s_lshr_b32 s45, s{SJ}, 1"); I("s_lshl_b32 s41, s45, 9")
        I("s_add_u32 s44, s44, s41"); I(f"s_add_u32 s44, s44, s{SB}"); I("s_add_u32 s44, s44, 520")
        I(f"v_lshl_add_u32 v{T+3}, v{T}, 4, s44"); I(f"v_lshlrev_b32 v{VA}, 3, v{T+1}"); I(f"v_sub_u32 v{T+3}, v{T+3}, v{VA}")
        I(f"v_lshlrev_b32 v{VB}, 6, v{T}"); I(f"v_lshl_add_u32 v{VB}, v{T+1}, 4, v{VB}")
        I("s_lshl_b32 s45, s45, 11"); I("s_lshl_b32 s43, s43, 5"); I("s_add_u32 s45, s45, s43"); I(f"s_lshl_b32 s43, s{SC}, 12"); I("s_add_u32 s45, s45, s43")
        I(f"s_add_u32 s45, s45, {YB}"); I(f"v_add_u32 v{VB}, s45, v{VB}")
        I("s_lshl_b32 s43, s55, 16"); I("s_and_b32 s44, s55, 0xffff0000"); I(f"s_cmp_eq_u32 s{SC}, 0"); I("s_cselect_b32 s55, s43, s44")
        lg.wait(lg.issued); self.barrier()
        self.stamp(12)
        for p in range(4):
            for gq in range(2):
                I(f"ds_read_b128 {v(RD_+8*p+4*gq,4)}, v{T+2} offset:{8192*p+1024*gq}"); lg.issue()
        for gq in range(2):
            I(f"ds_read_b64 {v(ACC+2*gq,2)}, v{T+3} offset:{1536*gq}"); lg.issue()
        le = a.label("NE")
        vm.wait(tc1); I(f"v_and_b32 v{VP}, 1, v{VP}"); I(f"v_cmp_ne_u32 vcc, 1, v{VP}"); I("s_mov_b32 s50, 0"); I(f"s_cbranch_vccnz {le}")
        sv = self.save(); I("s_mov_b32 s50, 1")
        for i in range(len(CSL)): cload(i)
        self.restore(sv); a.L(le)
        lg.wait(lg.issued)
        for i in range(0, 8, 2):
            I(f"v_pk_add_f32 {v(RD_+i,2)}, {v(RD_+i,2)}, {v(RD_+8+i,2)}"); I(f"v_pk_add_f32 {v(RD_+16+i,2)}, {v(RD_+16+i,2)}, {v(RD_+24+i,2)}")
        for i in range(0, 8, 2): I(f"v_pk_add_f32 {v(RD_+i,2)}, {v(RD_+i,2)}, {v(RD_+16+i,2)}")
        for gq in range(2):
            for r in range(4):
                srcr = ACC + 2*gq + (1 - (r >> 1))
                I(f"v_lshlrev_b32 v{ACC+8}, 16, v{srcr}" if r & 1 else f"v_and_b32 v{ACC+8}, 0xffff0000, v{srcr}")
                I(f"v_fma_f32 v{RD_+4*gq+r}, v{ACC+8}, s55, v{RD_+4*gq+r}")
        for i in range(4): I(f"v_cvt_pk_bf16_f32 v{ACC+12+i}, v{RD_+2*i}, v{RD_+2*i+1}")
        I(f"v_permlane32_swap_b32 v{ACC+12}, v{ACC+14}"); I(f"v_permlane32_swap_b32 v{ACC+13}, v{ACC+15}")
        I(f"ds_write_b128 v{VB}, {v(ACC+12,4)}"); lg.issue()
        I(f"v_and_b32 v{T+2}, 15, v0"); I(f"v_lshlrev_b32 v{T+1}, 1, v{T+1}"); I(f"v_xor_b32 v{T+1}, v{T+1}, v{T+2}"); I(f"v_lshlrev_b32 v{T+1}, 4, v{T+1}")
        I(f"v_lshl_add_u32 v{VA}, v{T}, 8, v{T+1}"); I(f"v_add_u32 v{VA}, s51, v{VA}")
        I(f"s_lshr_b32 s48, s{SW}, 1"); I("s_lshl_b32 s48, s48, 4"); I(f"s_and_b32 s41, s{SW}, 1"); I("s_lshl_b32 s42, s41, 3")
        I(f"v_lshrrev_b32 v{T}, 4, v0"); I(f"v_lshl_add_u32 v{T+1}, v{T}, 1, s42"); I(f"v_xor_b32 v{T+1}, v{T+1}, v{T+2}"); I(f"v_lshlrev_b32 v{T+1}, 4, v{T+1}")
        I("s_and_b32 s43, s48, 16"); I(f"v_add_u32 v{T+3}, s43, v{T+2}"); I(f"v_lshl_add_u32 v{VW1}, v{T+3}, 8, v{T+1}")
        I("s_lshr_b32 s43, s48, 5"); I("s_lshl_b32 s43, s43, 16"); I(f"v_add_u32 v{VW1}, s43, v{VW1}")
        lg.wait(lg.issued); I(f"v_xor_b32 v{VB}, 16, v{VW1}"); self.barrier()
        ly = a.label("NY")
        I(f"s_cmp_lg_u32 s{SW}, 0"); I(f"s_cbranch_scc1 {ly}")
        I(f"v_add_u32 v{T}, {YB}, v{VL16}")
        for i in range(8): I(f"ds_read_b128 {v(RD_+4*i,4)}, v{T} offset:{1024*i}")
        I(f"s_lshl_b32 s44, s{SF}, 13"); I(f"s_add_u32 s44, s44, {YT_OFF}"); I("s_add_u32 s45, s44, 4096")
        I("s_waitcnt lgkmcnt(0)")
        for i in range(8): I(f"buffer_store_dwordx4 {v(RD_+4*i,4)}, v{VL16}, s[{RWS}:{RWS+3}], s{44+(i>>2)} offen offset:{1024*(i&3)}{self.st}")
        a.L(ly)
        ll = a.label("NL")
        I("s_cmp_eq_u32 s50, 1"); I(f"s_cbranch_scc1 {ll}")
        self.poll_check(VP, VPA, "s53", 1)
        for i in range(len(CSL)): cload(i)
        a.L(ll)
        self.stamp(6)
        def put_partials():
            for mt in range(2):
                for gq in range(4):
                    I(f"v_xor_b32 v{T+1}, {(4*gq+mt)*16}, v{VA}"); I(f"v_add_u32 v{T+3}, 0x10000, v{T+1}")
                    for st in range(2):
                        I(f"ds_write_b128 v{T+1+2*st}, {v(OACC+16*(2*mt+st)+4*gq,4)}"); lg.issue()
        def sum_partials(mid=None):
            tk = []
            for p in range(8):
                for hh in range(2):
                    I(f"ds_read_b128 {v(OACC+8*p+4*hh,4)}, v{(VW1, VB)[hh]} offset:{8192*p}"); lg.issue()
                tk.append(lg.issued)
                if p == 5 and mid: mid()
            for p in range(1, 8):
                lg.wait(tk[p])
                for e in range(0, 8, 2): I(f"v_pk_add_f32 {v(OACC+e,2)}, {v(OACC+e,2)}, {v(OACC+8*p+e,2)}")
        ymark = vm.issued; ypub = False; pmark = None; ppub = False; free = []; nc = len(CSL); XR = WSL[0]; PR_ = WSL[1]
        for i in range(32):
            k = i & 15
            if i == 16:
                if self.o.get("ostamp"): self.stamp(17)
                put_partials(); lg.wait(lg.issued); self.barrier()
                if self.o.get("ostamp"): self.stamp(18)
                sum_partials()
                if self.o.get("ostamp"): self.stamp(19)
                I(f"s_lshl_b32 s44, s{SF}, 14"); I(f"s_lshl_b32 s45, s{SW}, 11"); I("s_add_u32 s54, s44, s45"); I(f"s_add_u32 s54, s54, {PP_OFF}")
                for hh in range(2):
                    I(f"buffer_store_dwordx4 {v(OACC+4*hh,4)}, v{VL16}, s[{RWS}:{RWS+3}], s54 offen offset:{1024*hh}{self.st}"); pmark = vm.issue()
                I(f"s_lshl_b32 s53, s57, 7"); I(f"s_lshl_b32 s42, s{SW}, 4"); I("s_add_u32 s53, s53, s42"); I(f"s_add_u32 s53, s53, {FY_OFF}")
                I(f"v_and_b32 v{VPA}, 3, v0"); I(f"v_lshlrev_b32 v{VPA}, 2, v{VPA}")
                tf = self.poll_issue(VP, VPA, "s53")
            if i == 18:
                I(f"v_and_b32 v{T+1}, 15, v0"); I(f"s_lshl_b32 s45, s56, 6"); I("s_add_u32 s45, s45, s48"); I(f"v_add_u32 v{T+1}, s45, v{T+1}")
                I(f"v_lshlrev_b32 v{T+2}, 2, v{T+1}"); I(f"s_mov_b32 s45, {G_OFF}")
                I(f"buffer_load_dword v{GR}, v{T+2}, s[{RWS}:{RWS+3}], s45 offen{self.ld}"); vm.issue()
                I(f"v_lshrrev_b32 v{T+2}, 4, v0"); I(f"v_lshlrev_b32 v{T+2}, 4, v{T+2}"); I(f"v_lshl_add_u32 v{VO}, v{T+1}, 10, v{T+2}")
                I("s_lshl_b32 s49, s41, 6"); I(f"s_lshl_b32 s45, s57, 7"); I("s_add_u32 s49, s49, s45")
                I(f"buffer_load_dwordx4 {v(XR,4)}, v{VO}, s[{RD}:{RD+3}], s49 offen"); vm.issue()
            if i == self.o.get("b2", 22): self.barrier()
            if i == 24:
                vm.wait(tf); self.poll_check(VP, VPA, "s53", 1)
                I(f"v_lshrrev_b32 v{T}, 3, v0"); I(f"v_and_b32 v{T+1}, 7, v0"); I(f"v_lshlrev_b32 v{T+1}, 4, v{T+1}")
                I(f"v_lshl_add_u32 v{T}, v{T}, 12, v{T+1}")
                I(f"s_add_u32 m0, s{SWK}, {YT}")
                I(f"s_lshl_b32 s44, s57, 18"); I(f"s_lshl_b32 s45, s{SW}, 15"); I("s_add_u32 s44, s44, s45")
                I(f"s_lshl_b32 s45, s56, 7"); I("s_add_u32 s44, s44, s45"); I(f"s_add_u32 s44, s44, {YT_OFF}")
                I(f"buffer_load_dwordx4 v{T}, s[{RWS}:{RWS+3}], s44 offen{self.ld} lds"); vm.issue()
            if i == 29:
                I(f"s_xor_b32 s53, s{SF}, 32"); I("s_lshl_b32 s53, s53, 7"); I(f"s_lshl_b32 s42, s{SW}, 2"); I("s_add_u32 s53, s53, s42"); I(f"s_add_u32 s53, s53, {FP_OFF}")
                I(f"v_mov_b32 v{VPA}, 0"); tp = self.poll_issue(VP, VPA, "s53")
            vm.wait(max(ctok[i], wtok[k]))
            if not ypub and vm.done > ymark:
                ypub = True; I(f"s_lshl_b32 s44, s{SF}, 2"); I(f"s_add_u32 s44, s44, {FY_OFF}"); self.publish(44, 3)
            if pmark and not ppub and vm.done >= pmark:
                ppub = True
                I(f"s_lshl_b32 s44, s{SF}, 7"); I(f"s_lshl_b32 s45, s{SW}, 2"); I("s_add_u32 s44, s44, s45"); I(f"s_add_u32 s44, s44, {FP_OFF}")
                I("v_mov_b32 v2, 1"); I("v_mov_b32 v3, 0"); I(f"buffer_store_dword v2, v3, s[{RWS}:{RWS+3}], s44 offen sc1"); vm.issue()
            for mt in range(2):
                for st in range(2):
                    d = v(OACC + 16*(2*mt+st), 16)
                    I(f"{MFMA} {d}, {v(WSL[k]+4*mt,4)}, {v(cslot[i]+4*st,4)}, {'0' if k == 0 else d}")
            free.append(cslot[i])
            if i >= 18: free.append(WSL[k])
            while free and nc < 32:
                cslot[nc] = free.pop(0); cload(nc); nc += 1
        assert ypub and ppub
        self.stamp(7)
        put_partials()
        vm.wait(tp); self.poll_check(VP, VPA, "s53", 1)
        if self.o.get("ostamp"): self.stamp(20)
        I("s_xor_b32 s54, s54, 0x80000")
        for hh in range(2):
            I(f"buffer_load_dwordx4 {v(PR_+4*hh,4)}, v{VL16}, s[{RWS}:{RWS+3}], s54 offen offset:{1024*hh}{self.ld}"); tpp = vm.issue()
        I(f"v_lshrrev_b32 v{T}, 4, v0"); I("s_lshl_b32 s42, s41, 5"); I(f"v_lshl_add_u32 v{T}, v{T}, 3, s42"); I(f"v_bfe_u32 v{T+1}, v0, 2, 2")
        I(f"v_add_u32 v{T}, v{T}, v{T+1}"); I(f"v_lshlrev_b32 v{T}, 7, v{T}"); I(f"v_and_b32 v{T+1}, 3, v0")
        I(f"v_lshl_add_u32 v{T}, v{T+1}, 3, v{T}"); I("s_lshl_b32 s42, s48, 1"); I(f"s_add_u32 s42, s42, {YT}"); I(f"v_add_u32 v{T}, s42, v{T}")
        lg.wait(lg.issued); self.barrier()
        I(f"ds_read_b64_tr_b16 {v(100,2)}, v{T}"); lg.issue()
        I(f"ds_read_b64_tr_b16 {v(102,2)}, v{T} offset:512"); ty2 = lg.issue()
        def mix():
            lg.wait(ty2)
            for e in range(8):
                if e & 1: I(f"v_and_b32 v104, 0xffff0000, v{XR+(e>>1)}"); I(f"v_and_b32 v105, 0xffff0000, v{100+(e>>1)}")
                else: I(f"v_lshlrev_b32 v104, 16, v{XR+(e>>1)}"); I(f"v_lshlrev_b32 v105, 16, v{100+(e>>1)}")
                I(f"v_mul_f32 v{112+e}, v104, v105"); I(f"v_mul_f32 v{112+e}, v{112+e}, v{GR}")
            I(f"v_sub_f32 v{GR}, 1.0, v{GR}")
        sum_partials(mix)
        vm.wait(tpp)
        for e in range(0, 8, 2): I(f"v_pk_add_f32 {v(OACC+e,2)}, {v(OACC+e,2)}, {v(PR_+e,2)}")
        for e in range(8): I(f"v_fmac_f32 v{112+e}, v{OACC+4*(e&1)+(e>>1)}, v{GR}")
        for e in range(4): I(f"v_cvt_pk_bf16_f32 v{108+e}, v{112+2*e}, v{112+2*e+1}")
        I(f"buffer_store_dwordx4 {v(108,4)}, v{VO}, s[{RC}:{RC+3}], s49 offen sc1"); vm.issue()
        self.stamp(16)
        if self.o.get("echo"):
            lp = a.label("EC")
            I("s_sub_u32 s100, s100, s96")
            if self.o.get("cyc"): I("s_lshr_b32 s100, s100, 4")
            I("s_memrealtime s[96:97]"); I("s_waitcnt lgkmcnt(0)")
            a.L(lp)
            I("s_memrealtime s[98:99]"); I("s_waitcnt lgkmcnt(0)"); I("s_sub_u32 s98, s98, s96"); I("s_cmp_lt_u32 s98, s100"); I(f"s_cbranch_scc1 {lp}")
        if self.o.get("dbgout") is not None:
            l = a.label("DB")
            I(f"s_cmp_lg_u32 s2, {self.o['dbgout']}"); I(f"s_cbranch_scc1 {l}"); I(f"s_cmp_lg_u32 s{SW}, 0"); I(f"s_cbranch_scc1 {l}")
            I("s_waitcnt vmcnt(0)")
            order = [0, 1, 2, 3, 8, 10, 11, 4, 5, 12, 6, 7, 16]
            I("v_mov_b32 v20, 0")
            for j, i in enumerate(order):
                I(f"s_mov_b32 s44, {4*i}"); I(f"v_writelane_b32 v20, s44, {j}")
            I(f"s_lshl_b32 s44, s2, 11"); I(f"s_add_u32 s44, s44, {STAMP_OFF}")
            I(f"buffer_load_dword v21, v20, s[{RWS}:{RWS+3}], s44 offen sc1"); I("s_waitcnt vmcnt(0)")
            I("v_readfirstlane_b32 s45, v21"); I("v_subrev_u32 v21, s45, v21")
            self.srd(RDBG, "dbg", 64); I("v_lshlrev_b32 v22, 2, v0")
            I(f"buffer_store_dword v21, v22, s[{RDBG}:{RDBG+3}], 0 offen")
            a.L(l)

def build(opts):
    g = G(opts); k = NAME + "_kernel"
    g.begin(k); g.a.T("; MARK p"); g.proj(); g.a.T("; MARK a"); g.attn(); g.a.T("; MARK t"); g.tailp(); g.end(); g.a.T("; MARK a"); g.attn_rare(); g.a.T("; MARK t"); g.a.L("CODE_END"); g.a.I("s_endpgm")
    n = g.a.fix_hazards()
    txt = "; @launch grid=(256,1,1) block=(512,1,1) lds=163840\n"
    txt += '.amdgcn_target "amdgcn-amd-amdhsa--gfx950"\n.text\n' + g.a.text()
    txt += f""".section .rodata,"a"
.p2align 6
.amdhsa_kernel {k}
  .amdhsa_next_free_vgpr 256
  .amdhsa_next_free_sgpr 102
  .amdhsa_accum_offset 256
  .amdhsa_group_segment_fixed_size 0
  .amdhsa_kernarg_size 128
  .amdhsa_user_sgpr_count 2
  .amdhsa_user_sgpr_kernarg_segment_ptr 1
  .amdhsa_system_sgpr_workgroup_id_x 1
.end_amdhsa_kernel
"""
    print(f"instructions {sum(1 for it in g.a.items if it[0] == 'i')}, nops inserted {n}", file=sys.stderr)
    return txt

if __name__ == "__main__":
    opts = {}
    for x in sys.argv[2:]:
        if "=" in x: k_, v_ = x.split("="); opts[k_] = int(v_)
        else: opts[x] = True
    open(sys.argv[1], "w").write(build(opts))
```

```python
import sys, math, struct
sys.path.insert(0, "gen")
from asmlib import *

NAME = "gated_mix__ssm_conv_h3__compressed_kv_cla__prompt"
MB = 1 << 20
KV_OFF, Q_OFF, CTX_OFF, KVT_OFF, YT_OFF, G_OFF = 0, 32*MB, 48*MB, 64*MB, 66*MB, 68*MB
XC_OFF = 40*MB
PP_OFF = 40*MB
WOT_OFF = 32*MB
FLG_OFF = 68*MB + 65536
FK_OFF, FY_OFF, FC_OFF, FP_OFF = FLG_OFF, FLG_OFF + 4096, FLG_OFF + 8192, FLG_OFF + 32768
STAMP_OFF = 69*MB
WS_SIZE = 70*MB
P = dict(q=64, k=66, v=68, shift=70, ssmk=72, ssmD=74, bx=76, ckv=78, wq=80, wuk=82, wuv=84, wo=86, gate=88, out=90, dbg=92, ws=94)
SW, SHEAD, SIDX, SWK, SF = 3, 4, 5, 6, 7
RA, RB, RC, RWS, RD, RE, RT, RDBG = 8, 12, 16, 20, 24, 28, 56, 60
MFMA = "v_mfma_f32_32x32x16_bf16"
LOG2E = 1.4426950408889634
F_KV, F_CA, F_CB, F_Y = 1, 2, 4, 8
def f2u(x): return "0x%08x" % struct.unpack("<I", struct.pack("<f", x))[0]
def rep4(b): return b * 0x01010101

class G:
    def __init__(self, opts):
        self.a = Asm(); self.o = opts
        self.GSH, self.FSH = (8, 10) if opts.get("lin") else (11, 8)
        self.vm = Cnt(self.a, "vmcnt", 63); self.lg = Cnt(self.a, "lgkmcnt", 15)
        self.st = "" if opts.get("plainst") else (" sc1 nt" if opts.get("ntst") else " sc1"); self.ld = "" if opts.get("plainld") else " sc1"
    def I(self, t): self.a.I(t)
    def srd(self, r, ptr, nbytes):
        I = self.I
        I(f"s_mov_b32 s{r}, s{P[ptr]}"); I(f"s_mov_b32 s{r+1}, s{P[ptr]+1}")
        I(f"s_mov_b32 s{r+2}, {nbytes}"); I(f"s_mov_b32 s{r+3}, 0x00020000")
    def save(self): return (self.vm.issued, self.vm.done, self.lg.issued, self.lg.done)
    def restore(self, s_): self.vm.issued, self.vm.done, self.lg.issued, self.lg.done = s_
    def stream(self, mf, fills):
        n = len(mf); slots = [[] for _ in range(n + 1)]
        for (s0, e0, cl) in fills:
            m = e0 - s0
            for j, c in enumerate(cl): slots[s0 + 1 + (j * m) // len(cl)].append(c)
        for c in slots[0]: c()
        for i in range(n):
            mf[i]()
            for c in slots[i+1]: c()
    def stamp(self, i, dyn=None):
        if self.o.get("echo") == i:
            self.I("s_memtime s[100:101]" if self.o.get("cyc") else "s_memrealtime s[100:101]"); self.I("s_waitcnt lgkmcnt(0)")
        if not self.o.get("stamp"): return
        I = self.I
        I("s_memrealtime s[96:97]"); I("s_memtime s[100:101]")
        I("s_lshl_b32 s98, s2, 3"); I(f"s_add_u32 s98, s98, s{SW}"); I("s_lshl_b32 s98, s98, 8")
        I(f"s_add_u32 s98, s98, {STAMP_OFF + 4*i}")
        if dyn is not None:
            I(f"s_lshl_b32 s99, s{dyn}, 4"); I("s_add_u32 s98, s98, s99")
        I("s_waitcnt lgkmcnt(0)")
        I("v_mov_b32 v2, s96"); I("v_mov_b32 v3, 0")
        I(f"buffer_store_dword v2, v3, s[{RWS}:{RWS+3}], s98 offen")
        I("v_mov_b32 v2, s100")
        I(f"buffer_store_dword v2, v3, s[{RWS}:{RWS+3}], s98 offen offset:128")
    OOB = 0x40000000
    def publish(self, soff, val=1, srd=RWS, byte=False, idx=None):
        I = self.I
        self.oob_sel()
        if idx is not None: I(f"s_and_b32 s98, s{SIDX}, 3"); I(f"s_cmp_eq_u32 s98, {idx}"); I(f"s_cselect_b32 s99, s99, {self.OOB}")
        I(f"v_mov_b32 v2, {val}"); I("v_mov_b32 v3, s99")
        I(f"buffer_store_{'byte' if byte else 'dword'} v2, v3, s[{srd}:{srd+3}], s{soff} offen sc1"); self.vm.issue()
    def oob_sel(self):
        self.I(f"s_cmp_eq_u32 s{SW}, 0"); self.I(f"s_cselect_b32 s99, 0, {self.OOB}")
    def poll_issue(self, vd, vaddr, soff, srd=RWS):
        self.I(f"buffer_load_dword v{vd}, v{vaddr}, s[{srd}:{srd+3}], {soff} offen sc1"); return self.vm.issue()
    def poll_check(self, vd, vaddr, soff, want, srd=RWS):
        a = self.a; I = self.I
        l = a.label("PCK"); lp = a.label("POLL")
        I(f"s_mov_b32 s98, {want}"); I("s_mov_b32 s99, 20000")
        a.L(lp)
        I(f"v_and_b32 v{vd}, s98, v{vd}"); I(f"v_cmp_ne_u32 vcc, s98, v{vd}"); I(f"s_cbranch_vccz {l}")
        I("s_sleep 2")
        I(f"buffer_load_dword v{vd}, v{vaddr}, s[{srd}:{srd+3}], {soff} offen sc1")
        I("s_sub_u32 s99, s99, 1"); I("s_cmp_lg_u32 s99, 0"); I("s_waitcnt vmcnt(0)"); I(f"s_cbranch_scc1 {lp}")
        a.L(l)
    def barrier(self): self.I("s_barrier")
    def sync_all(self):
        self.I("s_waitcnt vmcnt(0) lgkmcnt(0)"); self.vm.mark_all_done(); self.lg.mark_all_done(); self.barrier()

    def begin(self, kname):
        a = self.a; I = self.I
        a.T(f".globl {kname}\n.p2align 8\n.type {kname},@function"); a.L(kname)
        self.endl = a.label("END")
        if self.o.get("stamp"): I("s_memrealtime s[30:31]")
        if self.o.get("echo"): I("s_memtime s[96:97]" if self.o.get("cyc") else "s_memrealtime s[96:97]")
        I("s_load_dwordx16 s[64:79], s[0:1], 0"); I("s_load_dwordx16 s[80:95], s[0:1], 64")
        I("s_cmp_ge_u32 s2, 256"); I(f"s_cbranch_scc1 {self.endl}")
        I("v_lshrrev_b32 v1, 6, v0"); I("v_and_b32 v0, 63, v0"); I(f"v_readfirstlane_b32 s{SW}, v1")
        I("s_and_b32 s7, s2, 7"); I("s_lshl_b32 s7, s7, 2")
        I(f"s_lshr_b32 s{SIDX}, s2, 3"); I(f"s_lshr_b32 s{SHEAD}, s{SIDX}, 3"); I(f"s_add_u32 s{SHEAD}, s{SHEAD}, s7")
        I(f"s_and_b32 s{SIDX}, s{SIDX}, 7"); I(f"s_lshl_b32 s{SWK}, s{SW}, 10")
        I(f"s_lshl_b32 s{SF}, s{SHEAD}, 3"); I(f"s_add_u32 s{SF}, s{SF}, s{SIDX}")
    def end(self):
        self.a.L(self.endl); self.I("s_endpgm")

    def proj(self):
        a = self.a; I = self.I; vm = self.vm; lg = self.lg
        QA_LDS = 65536
        ACC = {"K": 64, "V": 128, "Q": 64}
        FX = [16, 24]; FW = [192, 32]
        VWA = 4; VSK, VSV, VOX, VOW, VST = 8, 9, 10, 11, 12; VXA = 224; T = 232
        NB = 0; XC = self.o.get("xc", 0)
        ST = [("KV", c) for c in range(NB)] + [("K", c) for c in range(NB, 8)] + [("V", c) for c in range(7, NB - 1, -1)] + [("Q", c) for c in range(8)]
        NS = len(ST); TK = 7; TV = NS - 9; TQ = NS - 8
        I("v_lshrrev_b32 v13, 3, v0"); I(f"s_lshl_b32 s40, s{SW}, 3"); I("v_add_u32 v13, s40, v13"); I("v_lshlrev_b32 v13, 10, v13")
        I(f"s_lshr_b32 s41, s{SW}, 1"); I(f"s_xor_b32 s40, s41, s{SW}"); I("s_and_b32 s40, s40, 1"); I("s_lshl_b32 s40, s40, 2")
        I("v_lshrrev_b32 v14, 4, v0"); I("v_add_u32 v15, s40, v14")
        I("v_and_b32 v3, 7, v0"); I("v_xor_b32 v15, v15, v3"); I(f"v_lshl_add_u32 v{VOX}, v15, 4, v13")
        I(f"s_lshl_b32 s40, s{SW}, 2"); I("v_add_u32 v13, s40, v14"); I("v_lshlrev_b32 v13, 13, v13")
        I("s_and_b32 s41, s41, 1"); I("s_lshl_b32 s41, s41, 3"); I("v_lshl_add_u32 v15, v14, 1, s41"); I("v_and_b32 v3, 15, v0"); I("v_xor_b32 v15, v15, v3")
        I("v_lshl_add_u32 v13, v15, 4, v13"); I(f"s_lshl_b32 s40, s{SHEAD}, 8"); I(f"v_add_u32 v{VOW}, s40, v13")
        I(f"v_lshlrev_b32 v{VST}, 4, v0")
        I(f"s_lshl_b32 s44, s{SIDX}, 18")
        for i in range(1, 4): I(f"s_add_u32 s{44+i}, s44, {65536*i}")
        ROT = self.o.get("rot", 2)
        if ROT == 0: I("s_mov_b32 s33, 0")
        elif ROT == 1: I(f"s_mov_b32 s33, s{SIDX}")
        elif ROT == 2: I(f"s_lshr_b32 s33, s{SHEAD}, 2"); I(f"s_add_u32 s33, s33, s{SIDX}")
        elif ROT == 3: I(f"s_lshr_b32 s33, s{SHEAD}, 2"); I(f"s_add_u32 s33, s33, s{SIDX}"); I(f"s_lshl_b32 s34, s{SHEAD}, 1"); I("s_add_u32 s33, s33, s34")
        elif ROT == 4: I(f"s_lshr_b32 s33, s{SHEAD}, 2")
        if self.o.get("rotq"): I(f"s_lshl_b32 s32, s{SHEAD}, 1"); I("s_add_u32 s32, s32, s33")
        else: I("s_mov_b32 s32, s33")
        I("s_waitcnt lgkmcnt(0)")
        if self.o.get("stamp"): I("s_memrealtime s[28:29]")
        self.srd(RA, "ckv", 2*MB); self.srd(RB, "wuk", 4*MB); self.srd(RC, "wuv", 4*MB)
        def xbase(t):
            k, c = ST[t]
            return (32768, 131072, 0)[((16 + c) if k == "Q" else (15 - c + NB)) % 3]
        units = [(t, m) for t in range(NS) for m in ST[t][0]]
        uidx = {u: i for i, u in enumerate(units)}
        def wbase(t, m): return 65536 + (uidx[(t, m)] % 4)*16384
        items = []
        lastx = {}
        for t in range(NS):
            k, c = ST[t]
            for m in k:
                u = uidx[(t, m)]
                def w(i, t=t, m=m, c=c):
                    if i == 0: I(f"s_add_u32 s34, s{32 if m == 'Q' else 33}, {c}"); I("s_and_b32 s34, s34, 7"); I("s_lshl_b32 s34, s34, 19")
                    I(f"s_add_u32 m0, s{SWK}, {wbase(t, m) + i*8192}"); I(f"s_add_u32 s41, s34, {i*262144}")
                    r = {"K": RB, "V": RC, "Q": RE}[m]
                    I(f"buffer_load_dwordx4 v{VOW}, s[{r}:{r+3}], s41 offen lds"); dtok[t] = vm.issue()
                items.append((t, units[u-4][0] if u >= 4 else -1, [lambda i=i, w=w: w(i) for i in range(2)]))
            key = ("Q" if k == "Q" else "C", c); prev = lastx.get(xbase(t))
            if prev is None or prev[1] != key:
                def x(i, t=t, k=k, c=c):
                    if i == 0: I(f"s_add_u32 s35, s{32 if k == 'Q' else 33}, {c}"); I("s_and_b32 s35, s35, 7"); I("s_lshl_b32 s35, s35, 7")
                    I(f"s_add_u32 m0, s{SWK}, {xbase(t) + i*8192}"); I(f"s_add_u32 s41, s{(48 if k == 'Q' else 44)+i}, s35")
                    r = (RWS if XC else RD) if k == "Q" else RA
                    I(f"buffer_load_dwordx4 v{VOX}, s[{r}:{r+3}], s41 offen{self.ld if (XC and k == 'Q') else ''} lds"); dtok[t] = vm.issue()
                items.append((t, prev[0] if prev else -1, [lambda i=i, x=x: x(i) for i in range(4)]))
            lastx[xbase(t)] = (t, key)
        dtok = {}
        def take(done, upto=99):
            out = []
            for it in list(items):
                if it[1] <= done and it[0] <= upto: out += it[2]; items.remove(it)
            return out
        for f in take(-1, 0): f()
        self.srd(RWS, "ws", WS_SIZE); self.srd(RDBG, "dbg", 256)
        if self.o.get("wsoff"): I(f"s_add_u32 s{RWS}, s{RWS}, {self.o['wsoff']*MB}"); I(f"s_addc_u32 s{RWS+1}, s{RWS+1}, 0")
        self.stamp(31)
        if self.o.get("stamp"):
            I("v_mov_b32 v2, s30"); I("s_sub_u32 s98, s98, 124"); I(f"buffer_store_dword v2, v3, s[{RWS}:{RWS+3}], s98 offen")
            I("v_mov_b32 v2, s28"); I(f"buffer_store_dword v2, v3, s[{RWS}:{RWS+3}], s98 offen offset:120")
        I(f"s_lshl_b32 s48, s{SIDX}, 17"); I("s_add_u32 s49, s48, 65536")
        I(f"s_sub_u32 s50, 15, s{SIDX}"); I("s_lshl_b32 s50, s50, 17"); I("s_add_u32 s51, s50, 65536")
        if XC:
            for i in range(4): I(f"s_add_u32 s{48+i}, s{48+i}, {XC_OFF}")
        I(f"s_and_b32 s42, s{SW}, 3"); I("s_lshl_b32 s42, s42, 6"); I(f"s_lshr_b32 s43, s{SW}, 2"); I("s_lshl_b32 s43, s43, 1")
        I("v_and_b32 v13, 15, v0"); I("v_lshrrev_b32 v15, 4, v0")
        I("v_lshrrev_b32 v14, 1, v13"); I("v_xor_b32 v14, v14, v15"); I("v_lshlrev_b32 v14, 4, v14")
        I("v_add_u32 v3, s42, v13"); I(f"v_lshl_add_u32 v{VXA}, v3, 7, v14")
        I("v_and_b32 v2, 8, v13"); I("v_add_u32 v3, v3, v2"); I(f"v_lshl_add_u32 v{VXA+4}, v3, 7, v14")
        for pt in range(2):
            b = VXA + 4*pt
            I(f"v_xor_b32 v{b+1}, 64, v{b}"); I(f"v_add_u32 v{b+2}, 0x20000, v{b}"); I(f"v_add_u32 v{b+3}, 0x20000, v{b+1}")
        I("v_lshlrev_b32 v3, 4, v13"); I("v_and_b32 v2, 1, v15"); I("v_lshl_add_u32 v3, v2, 9, v3"); I("v_lshrrev_b32 v14, 1, v15")
        I("v_lshlrev_b32 v3, 4, v13"); I(f"v_lshl_add_u32 v{VSK}, v15, {self.GSH}, v3")
        I("v_bfe_u32 v13, v0, 2, 2"); I("v_lshl_add_u32 v14, v15, 3, v13"); I("v_lshlrev_b32 v14, 8, v14")
        I("v_and_b32 v3, 3, v0"); I("v_lshl_add_u32 v14, v3, 3, v14"); I("v_add_u32 v14, 0x10000, v14")
        I("v_lshl_add_u32 v13, v2, 2, v13"); I("s_lshl_b32 s40, s43, 1"); I("v_xor_b32 v13, s40, v13"); I(f"v_lshl_add_u32 v{VWA}, v13, 5, v14")
        for dt in range(1, 4): I(f"v_xor_b32 v{VWA+dt}, {dt << 5}, v{VWA}")
        I(f"s_lshl_b32 s54, s{SHEAD}, 4"); I(f"s_lshl_b32 s55, s{SIDX}, 1"); I("s_add_u32 s54, s54, s55")
        I(f"s_bfe_u32 s55, s{SW}, 0x10001"); I("s_add_u32 s54, s54, s55"); I("s_lshl_b32 s54, s54, 16")
        I(f"s_and_b32 s55, s{SW}, 1"); I("s_lshl_b32 s55, s55, 14"); I("s_add_u32 s54, s54, s55")
        I(f"s_lshl_b32 s55, s43, {self.FSH+1}"); I("s_add_u32 s52, s54, s55"); I("s_add_u32 s52, s52, 0x8000")
        I(f"s_lshl_b32 s55, s43, {self.FSH}"); I("s_add_u32 s54, s54, s55")
        XG = T; GW = T + 4; hl = {}
        def gate_loads():
            L = []
            def E(t): L.append(lambda: I(t))
            def V(t):
                def f(): I(t); hl["t"] = vm.issue()
                L.append(f)
            E(f"s_lshl_b32 s40, s{SHEAD}, 7"); E(f"s_lshl_b32 s39, s{SIDX}, 2"); E("s_add_u32 s40, s40, s39"); E(f"s_add_u32 s40, s40, {FK_OFF}")
            E(f"s_lshl_b32 s39, s{SF}, 7"); E(f"s_add_u32 s39, s39, {FP_OFF}"); E("v_and_b32 v13, 7, v0"); E("v_lshl_add_u32 v13, v13, 2, s39")
            E("v_writelane_b32 v13, s40, 0")
            E(f"s_lshr_b32 s39, s{SHEAD}, 2"); E("s_lshl_b32 s39, s39, 7"); E(f"s_and_b32 s40, s{SHEAD}, 3"); E("s_lshl_b32 s40, s40, 2"); E("s_add_u32 s39, s39, s40")
            E(f"s_lshl_b32 s40, s{SIDX}, 10"); E("s_add_u32 s40, s40, s39"); E(f"s_add_u32 s40, s40, {FC_OFF}")
            E("v_writelane_b32 v13, s40, 1")
            E(f"s_sub_u32 s40, 15, s{SIDX}"); E("s_lshl_b32 s40, s40, 10"); E("s_add_u32 s40, s40, s39"); E(f"s_add_u32 s40, s40, {FC_OFF}")
            E("v_writelane_b32 v13, s40, 2")
            E(f"s_lshl_b32 s40, s{SF}, 2"); E(f"s_add_u32 s40, s40, {FY_OFF}"); E("v_writelane_b32 v13, s40, 3"); E("v_mov_b32 v14, 0")
            def oo(): self.oob_sel(); I("v_add_u32 v13, s99, v13")
            L.append(oo)
            V(f"buffer_store_dword v14, v13, s[{RWS}:{RWS+3}], 0 offen sc1")
            E("s_lshl_b32 s37, s2, 3"); E(f"s_add_u32 s37, s37, s{SW}"); E("s_lshl_b32 s38, s37, 10")
            L.append(lambda: self.srd(RD, "q", 2*MB)); L.append(lambda: self.srd(RE, "wq", 4*MB)); L.append(lambda: self.srd(RT, "gate", 1024))
            V(f"buffer_load_dwordx4 {v(XG,4)}, v{VST}, s[{RD}:{RD+3}], s38 offen")
            V(f"buffer_load_dwordx4 {v(GW,4)}, v{VST}, s[{RT}:{RT+3}], 0 offen")
            return L
        def gate_ops():
            L = []; E = lambda t: L.append(lambda: I(t)); Z = T + 8
            L.append(lambda: vm.wait(hl["t"]))
            def xs():
                I(f"s_add_u32 s38, s38, {XC_OFF}"); I(f"buffer_store_dwordx4 {v(XG,4)}, v{VST}, s[{RWS}:{RWS+3}], s38 offen{self.st}"); vm.issue()
            if XC: L.append(xs)
            E(f"v_dot2_f32_bf16 v{Z}, v{XG}, v{GW}, 0")
            for i in range(1, 4): E(f"v_dot2_f32_bf16 v{Z}, v{XG+i}, v{GW+i}, v{Z}")
            for m in ("quad_perm:[1,0,3,2] row_mask:0xf", "quad_perm:[2,3,0,1] row_mask:0xf", "row_half_mirror row_mask:0xf", "row_mirror row_mask:0xf",
                      "row_bcast:15 row_mask:0xa", "row_bcast:31 row_mask:0xc"):
                E(f"v_add_f32_dpp v{Z}, v{Z}, v{Z} {m} bank_mask:0xf")
            E(f"v_readlane_b32 s36, v{Z}, 63"); E(f"v_mov_b32 v{Z+1}, {f2u(-LOG2E)}"); E(f"v_mul_f32 v{Z}, s36, v{Z+1}")
            E(f"v_exp_f32 v{Z}, v{Z}"); E(f"v_add_f32 v{Z}, 1.0, v{Z}"); E(f"v_rcp_f32 v{Z}, v{Z}")
            E("s_lshl_b32 s38, s37, 2"); E(f"s_add_u32 s38, s38, {G_OFF}"); E(f"v_mov_b32 v{Z+1}, 0")
            def gs():
                I(f"buffer_store_dword v{Z}, v{Z+1}, s[{RWS}:{RWS+3}], s38 offen{self.st}"); vm.issue()
            L.append(gs)
            return L
        toks = {}
        def rdx(t, mt):
            m = ST[t][0]; xb = xbase(t); pt = 0
            off = (xb & 65535) + ((mt >> 1)*4096 + (mt & 1)*1024 if pt else mt*2048)
            def f(kk):
                va = VXA + 4*pt + 2*(xb >> 17) + (kk ^ (mt & 1))
                I(f"ds_read_b128 {v(FX[mt & 1]+4*kk,4)}, v{va} offset:{off}"); toks[("x", t, mt, kk)] = lg.issue()
            return [lambda: f(0), lambda: f(1)]
        def rdw(t, dt):
            m = ST[t][0]
            def f(kk, h):
                I(f"ds_read_b64_tr_b16 {v(FW[t & 1]+8*dt+4*kk+2*h,2)}, v{VWA+dt} offset:{wbase(t, m)-65536+kk*8192+h*1024}"); toks[("w", t, dt, kk)] = lg.issue()
            return [lambda kk=kk, h=h: f(kk, h) for kk in range(2) for h in range(2)]
        def atile(m, mt, dt): return ACC[m] + (4*(((mt >> 1)*4 + dt)*2 + (mt & 1)) if m == "V" else 4*(mt*4 + dt))
        def mfs(t, mt):
            m = ST[t][0]; first = t == 0 or ST[t-1][0] != m; L = []
            order = [(dt, kk) for dt in range(4) for kk in range(2)] if not self.o.get("nochain") else [(dt, kk) for kk in range(2) for dt in range(4)]
            for dt, kk in order:
                def f(dt=dt, kk=kk):
                    lg.wait(max(toks[("x", t, mt, kk)], toks[("w", t, dt, kk)]))
                    d = v(atile(m, mt, dt), 4); X = v(FX[mt & 1]+4*kk, 4); W = v(FW[t & 1]+8*dt+4*kk, 4)
                    c = "0" if (first and kk == 0) else d
                    I(f"v_mfma_f32_16x16x32_bf16 {d}, {X}, {W}, {c}" if m == "V" else f"v_mfma_f32_16x16x32_bf16 {d}, {W}, {X}, {c}")
                L.append(f)
            return L
        def pieces(m):
            fs = 1024 if m == "Q" else 1 << self.FSH
            if m == "V": return [(atile(m, 2*p, dt), p*8192 + dt*fs) for p in range(2) for dt in range(4)]
            return [(atile(m, mt, 2*j), (mt >> 1)*8192 + ((mt & 1)*4 + j)*fs) for mt in range(4) for j in range(2)]
        def kv_out(m):
            out = []
            for b, off in pieces(m):
                pk = [lambda i=i, b=b: I(f"v_cvt_pk_bf16_f32 v{b+i}, v{b+2*i}, v{b+2*i+1}") for i in range(4)]
                if m == "K": pk = [lambda i=i, b=b: I(f"v_mul_f32 v{b+i}, {f2u(LOG2E / math.sqrt(128.0))}, v{b+i}") for i in range(8)] + pk
                def st(b=b, off=off):
                    if self.o.get("nost"): return
                    I(f"s_add_u32 s41, s{54 if m == 'K' else 52}, {off}")
                    I(f"buffer_store_dwordx4 {v(b,4)}, v{VSK}, s[{RWS}:{RWS+3}], s41 offen{self.st}"); vm.issue()
                out.append((pk, st))
            return out
        side = {}; late = {}
        def spread(ops, t0, t1, dst=side, ks=(0, 1, 2)):
            sl = [(t, k) for t in range(t0, t1) for k in ks]; n = len(ops)
            for j, key in enumerate(sl): dst.setdefault(key, []).extend(ops[n*j//len(sl): n*(j+1)//len(sl)])
        PG = self.o.get("pg", 0)
        spread(gate_loads(), PG, PG + 1); spread(gate_ops(), PG + 2, PG + 3)
        def wtouch(r, half, wv):
            def f():
                I(f"s_cmp_eq_u32 s{SW}, {wv}"); I(f"s_cselect_b32 s99, 0, {self.OOB}")
                I(f"s_lshl_b32 s40, s{SIDX}, 19"); I(f"s_lshl_b32 s39, s{SHEAD}, 8"); I("s_add_u32 s40, s40, s39"); I(f"s_add_u32 s40, s40, {half*32*8192}")
                I("v_lshrrev_b32 v3, 1, v0"); I("v_lshlrev_b32 v3, 13, v3"); I("v_and_b32 v2, 1, v0"); I("v_lshl_add_u32 v3, v2, 7, v3"); I("v_add_u32 v3, s99, v3")
                I(f"buffer_load_dword v1, v3, s[{r}:{r+3}], s40 offen"); vm.issue()
            return f
        for nm, r, dflt in (("tk", RB, -1), ("tv", RC, 1), ("tq", RE, 3)):
            t0 = self.o.get(nm, dflt)
            if t0 >= 0:
                for half in range(2): side.setdefault((t0 + half, 2), []).append(wtouch(r, half, half))
        KN = self.o.get("kn", 8); VD = self.o.get("vd", 0); VN = self.o.get("vn", 5)
        KO = kv_out("K"); VO = kv_out("V")
        spread(sum((p for p, _ in KO), []), TK + 1, min(TK + 3, TQ), ks=(0, 1))
        npk = 2 * (min(TK + 3, TQ) - TK - 1)
        spread([s_ for _, s_ in KO], TK + 1, TK + 1 + KN, dst=late, ks=(2,))
        assert len(late[(TK + 1, 2)]) <= 8 * 2 // npk
        spread(sum((p for p, _ in VO), []), TQ, TQ + 1, ks=(0, 1))
        spread([s_ for _, s_ in VO], TQ + VD, TQ + VD + VN, dst=late, ks=(2,))
        PK_, PV_ = TK + KN + 2, TQ + VD + VN
        assert PK_ <= NS - 5 and PV_ <= NS - 2
        QE = []; EQ = lambda t: QE.append(lambda: I(t))
        EQ(f"s_and_b32 s55, s{SW}, 2"); EQ("s_lshl_b32 s55, s55, 15"); EQ(f"s_add_u32 s55, s55, {QA_LDS}")
        EQ(f"s_and_b32 s54, s{SW}, 1"); EQ("s_lshl_b32 s54, s54, 14"); EQ("s_add_u32 s55, s55, s54")
        EQ("s_lshl_b32 s54, s43, 10"); EQ("s_add_u32 s55, s55, s54"); EQ(f"v_add_u32 v14, s55, v{VST}")
        spread(QE, NS - 1, NS)
        spread([lambda r=r: I(f"v_mov_b64 {v(192+2*r,2)}, 0") for r in range(32) if not 16 <= r < 20], NS - 1, NS)
        side.setdefault((NS - 1, 3), []).extend([lambda r=r: I(f"v_mov_b64 {v(192+2*r,2)}, 0") for r in range(16, 20)])
        def fkoff():
            I(f"s_lshl_b32 s40, s{SHEAD}, 7"); I(f"s_lshl_b32 s41, s{SIDX}, 2"); I("s_add_u32 s40, s40, s41"); I(f"s_add_u32 s40, s40, {FK_OFF}")
        def w0only(fn):
            l = a.label("NP"); I(f"s_cmp_lg_u32 s{SW}, 0"); I(f"s_cbranch_scc1 {l}"); fn(); a.L(l)
        def k0(i):
            I(f"s_lshl_b32 s40, s{SW}, 12"); I("s_add_u32 m0, s40, 0x8000")
            I(f"s_lshl_b32 s41, s{SHEAD}, 20"); I("s_add_u32 s41, s41, s40")
            I(f"buffer_load_dwordx4 v{VST}, s[{RWS}:{RWS+3}], s41 offen offset:{1024*i}{self.ld} lds"); vm.issue()
        self.barrier()
        for f in take(-1, 1): f()
        vm.wait(dtok[0]); self.barrier()
        self.stamp(1)
        def first_reads(t):
            x = rdx(t, 0); w = [rdw(t, dt) for dt in range(4)]
            return [x[0]] + w[0][:2] + [x[1]] + w[0][2:] + w[1], w[2] + w[3]
        L, rest = first_reads(0)
        for f in L: f()
        mark = {}; TZ = PG + 4; TS = 10; DS = self.o.get("dsteps", 3)
        pend = take(-1)
        for t in range(NS):
            for k in range(4):
                M = mfs(t, k); n = len(M); PB = []
                if k == 3 and t < NS - 1:
                    assert not pend
                    if t == TS + 2: vm.wait(td); w0only(lambda: self.poll_check(14, 13, "0", rep4(1), RDBG))
                    if t == NS - 3: vm.wait(tp); w0only(lambda: self.poll_check(15, 13, "s53", 1))
                    lg.wait(lg.issued); vm.wait(dtok[t+1])
                    if t == TZ: vm.wait(mark[TZ-2])
                    if t == PK_: vm.wait(mark[TK + KN])
                    if t == PV_: vm.wait(mark[PV_ - 1])
                    self.barrier()
                    ps = self.o.get("pstamp")
                    if ps is not None and 0 <= t - int(ps) + 1 < 13: self.stamp(17 + t - int(ps) + 1); vm.issue(2)
                    if TZ <= t < TZ + 4: PB.append(lambda t=t: self.publish(SF, 1, RDBG, True, idx=t - TZ))
                    if t == PK_: PB.append(lambda: (fkoff(), self.publish(40, 1)))
                    if t == PV_: PB.append(lambda: (fkoff(), self.publish(40, 3)))
                    pend = take(t)
                    if t == NS - 3: pend += [lambda i=i: k0(i) for i in range(4)]
                    nd = len(pend) // (DS + 1)
                else:
                    nd = -(-len(pend) // max(1, (3 if t == 0 else DS) - k))
                D, pend = pend[:nd], pend[nd:]
                fl = []
                if not (t == NS - 1 and k == 3):
                    if k == 3:
                        L, rest = first_reads(t+1); nr = self.o.get("nr", 4)
                        fl.append((0, 7, L + rest[:nr])); rest = rest[nr:]
                    else:
                        if k == 0 and rest: fl.append((-1, 2, rest))
                        fl.append((2, 4, rdx(t, k+1)))
                if PB: fl.append((1, 2, PB))
                if D: fl.append((0, n, D))
                if side.get((t, k)): fl.append((0, n, side[(t, k)]))
                if late.get((t, k)): fl.append((n - 2, n, late[(t, k)]))
                self.stream(M, fl)
                if k == 2: mark[t] = vm.issued
                if t == TS and k == 0:
                    self.oob_sel(); I("v_lshl_add_u32 v13, v0, 2, s99"); td = self.poll_issue(14, 13, "0", RDBG)
                if t == NS - 4 and k == 0:
                    self.oob_sel(); I("v_and_b32 v13, 7, v0"); I("v_lshl_add_u32 v13, v13, 2, s99")
                    I(f"s_lshl_b32 s53, s{SHEAD}, 7"); I(f"s_add_u32 s53, s53, {FK_OFF}")
                    tp = self.poll_issue(15, 13, "s53")
            if t == TK: self.stamp(2)
            if t == TV: self.stamp(13)
        assert not items
        self.stamp(3)
        I("v_mov_b32 v16, v13")
        self.poll_issue(17, 16, "s53")
        for b, off in pieces("Q"):
            for i in range(4): I(f"v_cvt_pk_bf16_f32 v{b+i}, v{b+2*i}, v{b+2*i+1}")
            I(f"ds_write_b128 v14, {v(b,4)} offset:{off}"); lg.issue()
        self.attn_setup()
        vm.wait(vm.issued); w0only(lambda: self.poll_check(17, 16, "s53", 3))
        lg.wait(lg.issued); self.barrier()

    def attn_setup(self): self.attn(True)
    def attn(self, setup=False):
        a = self.a; I = self.I; vm = self.vm; lg = self.lg
        M16 = "v_mfma_f32_16x16x32_bf16"
        ML = 155648; QA_LDS = 65536; QB_LDS = 131072
        O = 192; QF = 160; NM = 144; S = [112, 128]; PP = [96, 104]; RING = 64; NR = 8; E = 56; PK = 16
        VK, VV, VL16, VSC, LM, THR, NINF, VQ, TMP = 4, 5, 6, 7, 8, 9, 10, 11, 12
        LS, ONES, BIAS = 152, 60, 11.0
        SR, SG, SC1, SC2, SKO, SVO, SKM, SVM, STH = 32, 33, 34, 35, 36, 37, 38, 39, 42
        SFIN, SCA, SM1 = 55, 59, 58
        DC = self.o.get("dmacost", 16); WEV = self.o.get("wev", 4)
        if setup:
            I(f"s_lshr_b32 s{SG}, s{SW}, 2"); I(f"s_mul_i32 s{SR}, s{SG}, 7"); I(f"s_xor_b32 s{SR}, s{SR}, s{SW}")
            I(f"v_lshlrev_b32 v{VL16}, 4, v0")
            I(f"s_lshl_b32 s44, s{SR}, 13"); I(f"s_add_u32 s44, s44, {QB_LDS}"); I(f"v_add_u32 v{VQ}, s44, v{VL16}")
            I(f"s_lshl_b32 s45, s{SG}, 16"); I(f"v_subrev_u32 v{TMP+1}, s45, v{VQ}")
            I(f"s_mov_b32 s{SC1}, s{SIDX}")
            I(f"s_lshl_b32 s{SC2}, s{SIDX}, 1"); I(f"s_sub_u32 s{SC2}, 14, s{SC2}")
            I(f"s_cmp_eq_u32 s{SG}, 1"); I(f"s_cselect_b32 s{SM1}, 0, -1")
            I(f"s_lshl_b32 s43, s{SW}, 12"); I(f"s_lshl_b32 s{SVO}, s{SHEAD}, 20"); I(f"s_add_u32 s{SVO}, s{SVO}, s43")
            I(f"s_add_u32 s{SKO}, s{SVO}, 0x10000"); I(f"s_add_u32 s{SVO}, s{SVO}, 0x8000")
            I(f"s_mov_b32 s{SKM}, s43"); I(f"s_add_u32 s{SVM}, s43, 0x18000")
            I(f"s_mov_b32 s{STH}, 0x40004000"); I(f"v_mov_b32 v{NINF}, 0xff800000")
            for r in range(4): I(f"v_mov_b32 v{ONES+r}, 0x3f803f80"); I(f"v_mov_b64 {v(LS+2*r,2)}, 0")
            I(f"v_and_b32 v{THR}, 15, v0"); I(f"v_lshlrev_b32 v{VSC}, 4, v{THR}"); I(f"s_lshl_b32 s44, s{SR}, 5"); I(f"v_add_u32 v{THR}, s44, v{THR}")
            I(f"v_lshrrev_b32 v{TMP}, 4, v0"); I(f"v_lshl_add_u32 v{VSC}, v{TMP}, 9, v{VSC}"); I(f"v_lshlrev_b32 v{TMP}, 2, v{TMP}"); I(f"v_sub_u32 v{THR}, v{THR}, v{TMP}")
            I(f"v_and_b32 v{VK}, 15, v0"); I(f"v_lshlrev_b32 v{VK}, 4, v{VK}"); I(f"v_lshrrev_b32 v{TMP}, 4, v0"); I(f"v_lshl_add_u32 v{VK}, v{TMP}, {self.GSH}, v{VK}"); I(f"v_add_u32 v{VK}, 0x8000, v{VK}")
            I(f"s_lshl_b32 s{SCA}, s{SIDX}, 2"); I(f"s_add_u32 s{SCA}, s{SCA}, s{SR}"); I(f"s_lshl_b32 s{SCA}, s{SCA}, 5"); I(f"s_add_u32 s{SCA}, s{SCA}, s{SHEAD}")
            I(f"s_lshl_b32 s{SCA}, s{SCA}, 13"); I(f"s_add_u32 s{SCA}, s{SCA}, {CTX_OFF}")
            I(f"s_mov_b32 s{SFIN}, 0")
            I(f"s_lshr_b32 s56, s{SF}, 6"); I("s_lshl_b32 s56, s56, 2"); I(f"s_bfe_u32 s44, s{SF}, 0x20003"); I("s_add_u32 s56, s56, s44"); I("s_lshl_b32 s56, s56, 1")
            I(f"s_bfe_u32 s44, s{SF}, 0x10005"); I("s_add_u32 s56, s56, s44"); I(f"s_and_b32 s57, s{SF}, 7")
            self.srd(RB, "ssmk", 2*MB); self.srd(RA, "k", 2*MB); self.srd(RC, "v", 2*MB); self.srd(RD, "shift", 4096); self.srd(RE, "wo", 4*MB)
            I("s_mov_b32 s41, 0")
            CL = self.o.get("cl", 8)
            I(f"s_lshr_b32 s40, {1 << (CL+2)}, s{SG}"); I(f"s_or_b32 s40, s40, {1 << CL}")
            I(f"s_lshl_b32 s44, 2, s{SW}"); I("s_and_b32 s44, s44, 30"); I("s_or_b32 s40, s40, s44")
            I(f"s_cmp_eq_u32 s{SW}, 0"); I(f"s_cselect_b32 s44, {(1 << 5) | (1 << (CL+4))}, 0"); I("s_or_b32 s40, s40, s44")
            if not self.o.get("noprio"):
                l = a.label("PR"); I(f"s_cmp_eq_u32 s{SG}, 1"); I(f"s_cbranch_scc0 {l}"); I("s_setprio 1"); a.L(l)
            return
        op = lambda t, c=4: (lambda: I(t), c)
        nop = lambda: None
        def loadq(va):
            for ds in range(8):
                I(f"ds_read_b128 {v(QF+4*ds,4)}, v{va} offset:{1024*ds}"); lg.issue()
        def dma4(kind):
            sm, so = (SKM, SKO) if kind == "k" else (SVM, SVO)
            def d(i):
                def f():
                    if i == 0: I(f"s_mov_b32 m0, s{sm}"); I(f"s_xor_b32 s{sm}, s{sm}, 0x8000")
                    I(f"buffer_load_dwordx4 v{VL16}, s[{RWS}:{RWS+3}], s{so} offen offset:{1024*i}{self.ld} lds")
                    if i == 3: I(f"s_add_u32 s{so}, s{so}, 0x10000")
                return (f, DC + (8 if i == 0 else 4 if i == 3 else 0))
            return [d(i) for i in range(4)]
        self.ring_n = 0
        def rd(kind, sl, idx):
            h = {}
            def f():
                slot = self.ring_n % NR; self.ring_n += 1
                h["reg"] = RING + 4*slot
                I(f"ds_read_b128 {v(h['reg'],4)}, v{VK if kind == 'k' else VV} offset:{sl*8192+(idx << self.FSH)}"); h["tok"] = lg.issue()
            return f, h
        def wait_for(R, i):
            if R[i][1]["tok"] <= lg.done: return
            j = i
            while j + 1 < len(R) and j + 1 < i + WEV and "tok" in R[j+1][1] and R[j+1][1]["tok"] > R[i][1]["tok"]: j += 1
            lg.wait(R[j][1]["tok"])
        def otile(dt, qt): return O + 16*(dt >> 1) + 8*qt + 4*(dt & 1)
        def qk(sb, R, base, czero=False):
            def f(m):
                kt, qt, dd = m >> 3, (m >> 2) & 1, m & 3; i = base + 4*kt + dd
                wait_for(R, i); d = v(S[sb] + 8*qt + 4*kt, 4)
                c = ("0" if czero else v(NM + 4*qt, 4)) if dd == 0 else d
                I(f"{M16} {d}, {v(R[i][1]['reg'],4)}, {v(QF + 16*qt + 4*dd, 4)}, {c}")
            return [lambda m=m: f(m) for m in range(16)]
        def pv1(pb, dt, qt, reg): I(f"{M16} {v(otile(dt, qt),4)}, {v(reg,4)}, {v(PP[pb]+4*qt,4)}, {v(otile(dt, qt),4)}")
        def pv(pb, R, base, dts=range(8), exact=False):
            def f(dt, qt):
                if exact: lg.wait(R[base+dt][1]["tok"])
                else: wait_for(R, base + dt)
                pv1(pb, dt, qt, R[base+dt][1]["reg"])
            ls = [lambda qt=qt: I(f"{M16} {v(LS+4*qt,4)}, {v(ONES,4)}, {v(PP[pb]+4*qt,4)}, {v(LS+4*qt,4)}") for qt in range(2)]
            return ls + [lambda dt=dt, qt=qt: f(dt, qt) for dt in dts for qt in range(2)]
        def sm_ops(sb):
            ex = lambda i: op(f"v_exp_f32 v{E+(i&3)}, v{S[sb]+i}", 8)
            cv = lambda j: op(f"v_cvt_pk_bf16_f32 v{PP[sb]+j}, v{E+((2*j)&3)}, v{E+((2*j+1)&3)}")
            p = PP[sb]; L = [ex(0), ex(1)]
            ors = {2: f"v_or3_b32 v{LM}, v{p}, v{p+1}, v{p+2}", 4: f"v_or3_b32 v{LM}, v{LM}, v{p+3}, v{p+4}", 6: f"v_or3_b32 v{LM}, v{LM}, v{p+5}, v{p+6}"}
            for j in range(8):
                L += [ex(2*j+2), cv(j), ex(2*j+3)] if j < 7 else [op("s_nop 0"), cv(j)]
                if j in ors: L.append(op(ors[j]))
            L = [x for i, x in enumerate(L) if i != len(L) - 2]
            L += [op(f"v_or_b32 v{LM}, v{LM}, v{p+7}"), op(f"v_and_b32 v{LM}, s{STH}, v{LM}")]
            return L
        def sched(M, fixed, chain):
            n = len(M); fc = [sum(c for _, c in fixed.get(g, [])) for g in range(n)]
            tot = sum(c for _, c in chain); lo, hi = 0.0, 4000.0
            for _ in range(40):
                lev = (lo + hi) / 2
                if sum(max(0, lev - f) for f in fc) >= tot: hi = lev
                else: lo = lev
            k = 0; credit = 0.0
            for g in range(n):
                M[g]()
                for c, _ in fixed.get(g, []): c()
                credit += max(0, hi - fc[g])
                while k < len(chain) and (g == n - 1 or chain[k][1] <= credit + 2):
                    chain[k][0](); credit -= chain[k][1]; k += 1
        def put(fixed, g, items): fixed.setdefault(g, []).extend(items)
        SPL = self.o.get("spl", 18)
        ool = []
        def rarely(cmp_, body):
            lo = a.label("OOL"); lb = a.label("RET")
            I(cmp_); I(f"s_cbranch_scc1 {lo}"); a.L(lb)
            ool.append((lo, lb, body))
        def mask_ops(sb, koff):
            prs = [46, 48, 50, 52]; L = []
            if koff >= 64:
                L.append(op(f"v_subrev_u32 v{TMP+3}, 64, v{THR}")); tr = TMP + 3; koff -= 64
            elif koff < 0:
                L += [op(f"s_lshl_b32 s45, s{SG}, 6"), op(f"v_subrev_u32 v{TMP+3}, s45, v{THR}")]; tr = TMP + 3; koff = -koff - 1
            else: tr = THR
            for r0 in range(0, 16, 4):
                qt, kt = r0 >> 3, (r0 >> 2) & 1
                for r in range(4): L.append(op(f"v_cmp_lt_i32 s[{prs[r]}:{prs[r]+1}], v{tr}, {16*kt + r + koff - 16*qt}"))
                for r in range(4): L.append(op(f"v_cndmask_b32 v{S[sb]+r0+r}, v{S[sb]+r0+r}, v{NINF}, s[{prs[r]}:{prs[r]+1}]"))
            return L
        def mask_body(sb, koff):
            for c, _ in mask_ops(sb, koff): c()
        def xred(x, y, t0, t1, o):
            L = []
            for sw in ("v_permlane16_swap_b32", "v_permlane32_swap_b32"):
                L += [op(f"v_mov_b32 v{t0}, v{x}"), op(f"v_mov_b32 v{t1}, v{y}"), op("s_nop 0"), op(f"{sw} v{t0}, v{x}"), op(f"{sw} v{t1}, v{y}"),
                      op(f"{o} v{x}, v{x}, v{t0}"), op(f"{o} v{y}, v{y}, v{t1}")]
            return L
        def rowmax(sb):
            for qt in range(2):
                b = S[sb] + 8*qt; d = TMP + qt
                I(f"v_max3_f32 v{d}, v{b}, v{b+1}, v{b+2}"); I(f"v_max3_f32 v{d}, v{d}, v{b+3}, v{b+4}"); I(f"v_max3_f32 v{d}, v{d}, v{b+5}, v{b+6}"); I(f"v_max_f32 v{d}, v{d}, v{b+7}")
            for c, _ in xred(TMP, TMP+1, TMP+2, TMP+3, "v_max_f32"): c()
        def init_max():
            rowmax(0)
            for qt in range(2): I(f"v_max_f32 v{TMP+qt}, {f2u(-1e30)}, v{TMP+qt}"); I(f"v_add_f32 v{TMP+qt}, {f2u(BIAS)}, v{TMP+qt}")
            for r in range(8): I(f"v_sub_f32 v{NM+r}, 0, v{TMP+(r>>2)}")
            return [op(f"v_sub_f32 v{S[0]+r}, v{S[0]+r}, v{TMP+(r>>3)}") for r in range(16)]
        rare = []
        def check(sb, other=True):
            lr = a.label("RARE"); lb = a.label("BACK")
            I(f"v_cmp_ne_u32 vcc, 0, v{LM}")
            if self.o.get("a_nocheck"): I("s_mov_b64 vcc, 0")
            I(f"s_cbranch_vccnz {lr}"); a.L(lb)
            rare.append((lr, lb, sb, other))
        def fin_body():
            I(f"s_mov_b32 s{SFIN}, 2")
            I(f"v_rcp_f32 v{TMP}, v{LS}"); I(f"v_rcp_f32 v{TMP+2}, v{LS+4}"); I(f"v_mov_b32 v{TMP+1}, v{TMP}"); I(f"v_mov_b32 v{TMP+3}, v{TMP+2}")
            for r in range(4): I(f"v_mov_b64 {v(LS+2*r,2)}, 0")
            for q in range(8):
                for i in range(8*q, 8*q+8, 2): I(f"v_pk_mul_f32 {v(O+i,2)}, {v(O+i,2)}, {v(TMP+2*(q&1),2)}")
                for i in range(4): I(f"v_cvt_pk_bf16_f32 v{PK+4*q+i}, v{O+8*q+2*i}, v{O+8*q+2*i+1}")
                for i in range(8*q, 8*q+8, 2): I(f"v_mov_b64 {v(O+i,2)}, 0")
        coff = lambda q: ((q >> 1) & 1)*2048 + (q & 1)*256
        def st_body():
            I(f"s_add_u32 s44, s{SCA}, 4096"); I(f"s_mov_b32 s{SFIN}, 3")
            for q in range(8):
                I(f"buffer_store_dwordx4 {v(PK+4*q,4)}, v{VSC}, s[{RWS}:{RWS+3}], s{SCA if q < 4 else 44} offen offset:{coff(q)}{self.st}")
        TR = [RING + 4*(2+i) for i in range(6)]
        def head(R, vmw, with_mfma=True, post=(), more=(), pre=None):
            rf = [(f, 4) for f, h in R]; sm2 = sm_ops(0)[SPL:]
            M = [lambda dt=dt, qt=qt: pv1(1, dt, qt, TR[dt-2]) for dt in range(2, 8) for qt in range(2)] if with_mfma else [nop]*12
            if with_mfma: I("s_waitcnt lgkmcnt(4)")
            nb = self.o.get("nb", 4); more = list(more); m0 = len(more) // 3
            if pre is not None: more = list(pre) + more; m0 = len(pre)
            sched(M[:4], {}, sm2[:nb] + more[:m0])
            vmw(); I("s_waitcnt lgkmcnt(0)"); lg.mark_all_done(); self.barrier(); self.ring_n = 0
            fx = {0: rf[0:2], 1: rf[2:4], 2: rf[4:5], 4: rf[5:6], 6: rf[6:7], 7: [(nop, 8 + 8*len(post))]}
            sched(M[4:], fx, sm2[nb:] + more[m0:])
            check(0)
            for p in post: p()
        def mk_reads():
            return ([rd("k", 0, i) for i in range(8)] + [rd("v", 0, i) for i in range(8)] +
                    [rd("k", 1, i) for i in range(8)] + [rd("v", 1, i) for i in range(8)])
        def last_use(F):
            b = (0, 18, 34, 52)[F >> 3]; f = F & 7
            return b + (2*f + 1 if (F >> 3) & 1 else 8*(f >> 2) + 4 + (f & 3))
        def mid(R, dmas, kx, mb=None, trans=False, endops=(), early=(), g=0):
            rf = [(f, 4) for f, h in R]
            fa = {0: [rf[7]]}; fb = {}
            G_ = g
            for g, e in zip((1, 3, 9, 11), early): put(fa, g, [e])
            for F in range(8, 32):
                g = last_use(F - 8) + 1
                put(fa, g, [rf[F]]) if g < 34 else put(fb, g - 34, [rf[F]])
            D = sum((dma4(k) for k in dmas), [])
            st_ = self.o.get("gst", 4); of_ = self.o.get("gof", 2)
            gaps = [2 + of_*G_*2 + 2*st_*n for n in range(4)] if len(D) == 4 else [2 + of_*G_ + st_*n for n in range(8)]
            for g, d in zip(gaps, D): put(fa, g, [d]) if g < 33 else put(fb, g - 33, [d])
            PT = self.o.get("pt", 0)
            if PT and G_ == 0:
                pts = {1: [(0, 24, 2), (1, 21, 0)], 2: [(0, 8, 2), (0, 24, 0), (1, 7, 2), (1, 21, 0)], 3: [(0, 0, 2), (0, 8, 0), (0, 16, 2), (0, 24, 0), (0, 32, 2), (1, 7, 0), (1, 15, 2), (1, 21, 0)],
                       4: [(0, 16, 2), (1, 21, 0)], 5: [(0, 32, 2), (1, 21, 0)]}[PT]
                for part, g, p in pts: put(fb if part else fa, g, [op(f"s_setprio {p}")])
            put(fa, 33, [(nop, 16)])
            sched(qk(0, R, 0, trans) + pv(0, R, 8), fa, sm_ops(1))
            check(1, other=not trans)
            if mb: mb()
            pre = []
            if trans:
                I(f"s_mov_b32 s{SFIN}, 1")
                pre = init_max()
            put(fb, 18, [op(f"v_xor_b32 v{VV}, 0x10000, v{VK}")] + kx)
            for n, e in enumerate(endops): put(fb, 11 - n, [e])
            put(fb, 21, [(nop, 12)])
            sched(qk(1, R, 16) + pv(1, R, 24, range(2)), fb, pre + sm_ops(0)[:SPL])
            assert [R[26+i][1]["reg"] for i in range(6)] == TR
        vm4 = lambda: I("s_waitcnt vmcnt(4)")
        def vm08():
            lo = a.label("W8"); lb = a.label("W8R")
            I(f"s_cmp_eq_u32 s{SFIN}, 3"); I(f"s_cbranch_scc1 {lo}"); I("s_waitcnt vmcnt(0)"); a.L(lb)
            def b(): I("s_waitcnt vmcnt(8)"); I(f"s_mov_b32 s{SFIN}, 4")
            ool.append((lo, lb, b))
        m1 = lambda sb, ko: (lambda: rarely(f"s_cmp_eq_u32 s{SC1}, s{SM1}", lambda: mask_body(sb, ko)))
        fin = lambda: rarely(f"s_cmp_eq_u32 s{SFIN}, 1", fin_body)
        sta = (lambda: rarely(f"s_cmp_eq_u32 s{SFIN}, 2", st_body), 8)
        KR, VR, SH, WO, AD = 16, 23, 28, 32, 40
        def side_loads():
            L = []; E = lambda t: L.append(op(t)); V = lambda t: L.append(op(t, DC))
            E(f"v_lshrrev_b32 v{AD}, 5, v0"); E(f"v_and_b32 v{AD+1}, 31, v0"); E(f"v_lshlrev_b32 v{AD+2}, 12, v{AD}"); E(f"v_lshl_add_u32 v{AD+2}, v{AD+1}, 2, v{AD+2}")
            E(f"s_lshr_b32 s60, s{SF}, 1"); E("s_lshl_b32 s60, s60, 15"); E(f"s_and_b32 s61, s{SF}, 1"); E("s_lshl_b32 s61, s61, 13"); E("s_add_u32 s60, s60, s61")
            E(f"s_lshl_b32 s61, s{SW}, 7"); E("s_add_u32 s60, s60, s61"); E("s_add_u32 s61, s60, 16384")
            for j in range(8): V(f"buffer_load_dword v{WO+j}, v{AD+2}, s[{RE}:{RE+3}], s{60+(j>>2)} offen offset:{1024*(j&3)}")
            E("s_lshr_b32 s62, s2, 3"); E("s_lshl_b32 s62, s62, 16"); E(f"s_lshl_b32 s63, s{SW}, 13"); E("s_add_u32 s62, s62, s63")
            E("s_and_b32 s63, s2, 7"); E("s_lshl_b32 s63, s63, 7"); E("s_add_u32 s62, s62, s63"); E(f"v_add_u32 v{AD+3}, s62, v{AD+2}")
            for i in range(3): E(f"v_subrev_u32 v{AD+4+i}, {3072-1024*i}, v{AD+3}")
            E("s_lshl_b32 s63, s63, 2"); E(f"v_lshl_add_u32 v{AD+7}, v{AD+1}, 4, s63")
            for i in range(3): V(f"buffer_load_dword v{KR+i}, v{AD+4+i}, s[{RA}:{RA+3}], 0 offen")
            for i in range(4): V(f"buffer_load_dword v{KR+3+i}, v{AD+3}, s[{RA}:{RA+3}], 0 offen offset:{1024*i}")
            for i in range(4): V(f"buffer_load_dword v{VR+i}, v{AD+3}, s[{RC}:{RC+3}], 0 offen offset:{1024*i}")
            V(f"buffer_load_dwordx4 {v(SH,4)}, v{AD+7}, s[{RD}:{RD+3}], 0 offen")
            return L
        NSL = 21
        def side_math():
            L = []; E = lambda t: L.append(op(t)); V = lambda t: L.append(op(t, DC))
            W2 = 48
            E("s_mov_b32 s60, 0x05040100"); E("s_mov_b32 s61, 0x07060302")
            for j in range(4): E(f"v_perm_b32 v{W2+j}, v{WO+2*j+1}, v{WO+2*j}, s60")
            for j in range(4): E(f"v_perm_b32 v{W2+4+j}, v{WO+2*j+1}, v{WO+2*j}, s61")
            E(f"s_lshl_b32 s60, s{SW}, 8"); E(f"s_add_u32 s60, s60, s{SF}"); E("s_lshl_b32 s60, s60, 11"); E(f"s_add_u32 s60, s60, {WOT_OFF}")
            for mt in range(2): V(f"buffer_store_dwordx4 {v(W2+4*mt,4)}, v{VL16}, s[{RWS}:{RWS+3}], s60 offen offset:{1024*mt}{self.st}")
            KU, SU, OO, VU, PQ = 32, 42, 48, 39, 52
            for c in range(2):
                def unp(d, sreg, half): E(f"v_lshlrev_b32 v{d}, 16, v{sreg}" if half == 0 else f"v_and_b32 v{d}, 0xffff0000, v{sreg}")
                for i in range(7): unp(KU+i, KR+i, c)
                for j in range(4): unp(SU+j, SH + 2*c + (j >> 1), j & 1)
                for o in range(4):
                    E(f"v_mul_f32 v{OO+o}, v{KU+o}, v{SU+3}")
                    for j in (2, 1, 0): E(f"v_fmac_f32 v{OO+o}, v{KU+o+3-j}, v{SU+j}")
                    unp(VU, VR+o, c)
                    E(f"v_mul_f32 v{OO+o}, v{OO+o}, v{VU}")
                d = PQ + 2*(1-c)
                E(f"v_cvt_pk_bf16_f32 v{d}, v{OO+3}, v{OO+2}"); E(f"v_cvt_pk_bf16_f32 v{d+1}, v{OO+1}, v{OO}")
            E(f"v_lshlrev_b32 v{AD+1}, 5, v{AD+1}"); E(f"v_lshl_add_u32 v{AD+1}, v{AD}, 4, v{AD+1}")
            E(f"v_permlane32_swap_b32 v{PQ+2}, v{PQ}"); E(f"v_permlane32_swap_b32 v{PQ+3}, v{PQ+1}")
            E("s_lshr_b32 s60, s2, 3"); E("s_lshl_b32 s60, s60, 16"); E(f"s_lshl_b32 s61, s{SW}, 13"); E("s_add_u32 s60, s60, s61")
            E("s_and_b32 s61, s2, 7"); E("s_lshl_b32 s61, s61, 10"); E("s_add_u32 s60, s60, s61"); E(f"s_add_u32 s60, s60, {KVT_OFF}")
            V(f"buffer_store_dwordx4 {v(PQ,4)}, v{AD+1}, s[{RWS}:{RWS+3}], s60 offen{self.st}")
            return L
        CL = self.o.get("cl", 8)
        def touch(k):
            if k in (1, 2):
                I(f"s_lshr_b32 s60, s{SF}, 1"); I("s_lshl_b32 s60, s60, 15"); I(f"s_and_b32 s61, s{SF}, 1"); I("s_lshl_b32 s61, s61, 13"); I("s_add_u32 s60, s60, s61")
                if k == 2: I("s_add_u32 s60, s60, 16384")
                I("v_lshlrev_b32 v16, 7, v0"); r = RE
            elif k in (3, 4):
                I("s_lshr_b32 s60, s2, 3"); I("s_lshl_b32 s60, s60, 16"); I("s_and_b32 s61, s2, 7"); I("s_lshl_b32 s61, s61, 7"); I("s_add_u32 s60, s60, s61")
                I("v_lshlrev_b32 v16, 10, v0"); r = RA if k == 3 else RC
            else:
                I(f"s_lshl_b32 s60, s{SF}, 13"); I("v_lshlrev_b32 v16, 7, v0"); r = RB
            I(f"buffer_load_dword v1, v16, s[{r}:{r+3}], s60 offen")
        LSITE = a.label("SITE")
        def site_code():
            a.L(LSITE)
            def ret(): I("s_nop 1"); I("s_setpc_b64 s[76:77]")
            l = a.label("SN"); I(f"s_cmp_lg_u32 s41, {CL}"); I(f"s_cbranch_scc1 {l}")
            for c, _ in side_loads(): c()
            ret(); a.L(l)
            l = a.label("SN"); I(f"s_add_u32 s44, s41, s{SG}"); I(f"s_cmp_lg_u32 s44, {CL+2}"); I(f"s_cbranch_scc1 {l}")
            for c, _ in side_math(): c()
            ret(); a.L(l)
            for k in range(1, 6):
                l = a.label("SN")
                I(f"s_cmp_lg_u32 s41, {k}"); I(f"s_cbranch_scc1 {l}")
                touch(k); ret(); a.L(l)
            I(f"s_lshl_b32 s44, s{SF}, 2"); I(f"s_add_u32 s44, s44, {FY_OFF}")
            sv = self.save(); self.publish(44, 2); self.restore(sv)
            ret()
        def spf():
            I("s_add_u32 s41, s41, 1"); rarely("s_bitcmp1_b32 s40, s41", lambda: I(f"s_call_b64 s[76:77], {LSITE}"))
        spub = (spf, 12)
        def snap():
            I(f"s_mov_b32 s61, {FY_OFF}"); I(f"buffer_load_dwordx4 v[52:55], v{VL16}, s[{RWS}:{RWS+3}], s61 offen sc1")
        def side_check():
            lo = a.label("SCK"); lb = a.label("SCR")
            def test():
                I("v_and_b32 v52, v52, v53"); I("v_and_b32 v54, v54, v55"); I("v_and_b32 v52, v52, v54"); I("v_and_b32 v52, 2, v52"); I("v_cmp_ne_u32 vcc, 2, v52")
            test(); I(f"s_cbranch_vccnz {lo}"); a.L(lb)
            def spin():
                lp = a.label("SPL")
                I("s_mov_b32 s99, 20000"); a.L(lp)
                I("s_sleep 2"); I(f"buffer_load_dwordx4 v[52:55], v{VL16}, s[{RWS}:{RWS+3}], s61 offen sc1"); I("s_waitcnt vmcnt(0)")
                test(); I(f"s_cbranch_vccz {lb}")
                I("s_sub_u32 s99, s99, 1"); I("s_cmp_lg_u32 s99, 0"); I(f"s_cbranch_scc1 {lp}")
            ool.append((lo, lb, spin))
        m2 = lambda sb, ko: (lambda: rarely(f"s_cmp_eq_u32 s{SC2}, 0", lambda: (snap(), mask_body(sb, ko))))
        LEV = a.label("EVEN"); LODM = a.label("ODDM"); LTRANS = a.label("TRANS"); LP2 = a.label("P2"); LP2B = a.label("P2B"); LDRAIN = a.label("DRAIN")
        self.stamp(8)
        self.ring_n = 0
        R = [rd("k", 0, i) for i in range(8)] + [rd("k", 1, i) for i in range(8)]
        def qrd(i):
            I(f"ds_read_b128 {v(QF+4*i,4)}, v{TMP+1} offset:{1024*i}"); return lg.issue()
        for i in range(4): qrd(i); R[i][0]()
        for i in range(4, 8): tq = qrd(i)
        D = dma4("v") + dma4("k")
        fx = {g: [(R[4+g][0], 4)] for g in range(4)}
        put(fx, 3, [(lambda: lg.wait(tq), 4)])
        for F in range(8, 15): put(fx, last_use(F - 8) + 1, [(R[F][0], 4)])
        for n, d in enumerate(D): put(fx, 2*n, [d])
        sched(qk(0, R, 0, True), fx, [])
        m1(0, 0)()
        pre = init_max()
        fx = {0: [(R[15][0], 4)], 8: [op(f"v_xor_b32 v{VV}, 0x10000, v{VK}"), op(f"v_xor_b32 v{VK}, 0x4000, v{VK}")]}
        sched(qk(1, R, 8), fx, pre + sm_ops(0)[:SPL])
        R = mk_reads()
        head(R, vm4, False, post=[m1(1, 32)])
        svm = self.save()
        self.stamp(9)
        LOD = [a.label("ODD0"), a.label("ODD1")]
        I(f"s_cmp_eq_u32 s{SG}, 1"); I(f"s_cbranch_scc1 {LOD[1]}"); I(f"s_branch {LOD[0]}")
        vm0 = lambda: I("s_waitcnt vmcnt(0)")
        def loops(g):
            LEV = a.label("EVEN"); LP2 = a.label("P2")
            mm = (lambda sb, ko: m1(sb, ko)) if g else (lambda sb, ko: None)
            a.L(LEV)
            R = mk_reads(); head(R, vm4)
            mid(R, "k", [op(f"v_xor_b32 v{VK}, 0x4000, v{VK}")], mb=mm(0, 0), early=[spub], g=g)
            R = mk_reads(); head(R, vm4, post=[m1(1, 32)] if g else [])
            assert self.lg.issued - self.lg.done == svm[2] - svm[3]
            a.L(LOD[g])
            mid(R, "v", [op(f"v_xor_b32 v{VK}, 0xc000, v{VK}")], mb=mm(0, 64), endops=[op(f"s_sub_u32 s{SC1}, s{SC1}, 1")], early=[spub], g=g)
            I(f"s_cmp_lg_u32 s{SC1}, -1"); I(f"s_cbranch_scc1 {LEV}")
            self.stamp(14)
            if g:
                loadq(VQ); I("s_waitcnt lgkmcnt(0)"); I(f"v_xor_b32 v{VK}, 0x4000, v{VK}")
            R = mk_reads(); head(R, vm4, more=mask_ops(1, 96) if g else ())
            mid(R, "k", [op(f"v_xor_b32 v{VK}, 0x8000, v{VK}")], mb=m2(0, -1), trans=bool(g), early=[spub], g=g)
            self.stamp(15)
            I(f"s_cmp_eq_u32 s{SC2}, 0"); I(f"s_cbranch_scc1 {LDRAIN}")
            a.L(LP2)
            R = mk_reads(); head(R, vm08 if g else vm0)
            mid(R, "kv", [op(f"v_xor_b32 v{VK}, 0x8000, v{VK}")], mb=m2(0, -1), endops=[sta] if g else [],
                early=[spub] + ([(fin, 8)] if g else []) + [op(f"s_sub_u32 s{SC2}, s{SC2}, 1")], g=g)
            I(f"s_cmp_lg_u32 s{SC2}, 0"); I(f"s_cbranch_scc1 {LP2}")
        loops(1); I(f"s_branch {LDRAIN}")
        loops(0)
        a.L(LDRAIN)
        self.stamp(10)
        R2 = [rd("v", 0, i) for i in range(8)] + [rd("v", 1, i) for i in range(8)]
        rf = [(f, 4) for f, h in R2]
        ts, ts2, ts3 = self.tail_setup()
        tsa = [x for x in ts if x[1] == 4]; tsl = [x for x in ts if x[1] != 4]
        mk_ = mask_ops(1, -33)
        head(R2, lambda: (vm08(), side_check(), tsl[0][0](), tsl[1][0]()), post=[fin, sta[0]], pre=tsa[:8], more=tsa[8:16] + [tsl[2]] + mk_)
        ts = tsa[16:]
        if self.o.get("dst"): self.stamp(17)
        pre = []; E_ = lambda t: pre.append(op(t))
        E_(f"s_add_u32 s44, s{SWK}, {ML}"); E_(f"v_add_u32 v54, s44, v{VL16}")
        E_(f"s_lshl_b32 s46, s{SW}, 13"); E_(f"v_add_u32 v55, s46, v{VL16}")
        E_(f"s_sub_u32 s54, 15, s{SIDX}"); E_(f"s_lshl_b32 s54, s54, 2"); E_(f"s_add_u32 s54, s54, s{SR}"); E_("s_lshl_b32 s54, s54, 5"); E_(f"s_add_u32 s54, s54, s{SHEAD}")
        E_("s_lshl_b32 s54, s54, 13"); E_(f"s_lshl_b32 s44, s{SG}, 12"); E_("s_add_u32 s54, s54, s44"); E_(f"s_add_u32 s54, s54, {CTX_OFF}")
        def lsum():
            def wml():
                I(f"ds_write_b128 v54, {v(150,4)}"); lg.issue()
            return [op(f"v_mov_b32 v150, v{NM}"), op(f"v_mov_b32 v{LS+1}, v{LS+4}"), (wml, 4)]
        def osend(g, i):
            def f():
                I(f"ds_write_b128 v55, {v(O+32*(1-g)+4*i,4)} offset:{1024*i}"); lg.issue()
            return (f, 16)
        lj = a.label("MGJ"); LMG = [a.label("MG0"), a.label("MG1")]; LFB = a.label("FB1"); LSK = a.label("SKIP"); LS1 = a.label("SK1")
        for c, _ in ts: c()
        I(f"s_lshl_b32 s45, s{SG}, 1"); I(f"s_sub_u32 s45, s{SR}, s45"); I("s_cmp_lt_i32 s45, 1"); I(f"s_cbranch_scc1 {LSK}")
        svd = self.save(); rnd = self.ring_n
        mix_ = pre + ts3; setup_ = []
        for n in range(max(len(ts2), 1)): setup_ += ts2[n:n+1] + mix_[len(mix_)*n//max(len(ts2),1): len(mix_)*(n+1)//max(len(ts2),1)]
        n8 = (len(setup_) + 17) // 18
        fx = {g: setup_[g*n8:(g+1)*n8] for g in range(18)}
        for F in range(7, 15): put(fx, 2*(F - 7) + (2 if F > 7 else 0), [rf[F]])
        sched(pv(0, R2, 0), fx, sm_ops(1))
        check(1)
        rf[15][0]()
        if self.o.get("dst"): self.stamp(20)
        I(f"s_cmp_eq_u32 s{SG}, 1"); I(f"s_cbranch_scc1 {LFB}")
        sv2 = self.save(); PR = 64
        for g in (0, 1):
            if g: a.L(LFB); self.restore(sv2)
            own = O + 32*g; snd = O + 32*(1-g)
            dts = list(range(4*(1-g), 4*(1-g)+4)) + list(range(4*g, 4*g+4))
            fx = {10 + i: [osend(g, i)] for i in range(8)}
            put(fx, 8, lsum())
            sched(pv(1, R2, 8, dts, True), fx, self.tail_valu())
            a.L(LMG[g])
            if self.o.get("dst"): self.stamp(18)
            I(f"v_xor_b32 v54, 0x1c00, v54"); I(f"v_xor_b32 v55, 0xe000, v55")
            I("s_waitcnt lgkmcnt(0)"); lg.mark_all_done(); self.barrier()
            if self.o.get("dst"): self.stamp(19)
            I(f"ds_read_b128 {v(96,4)}, v54"); t0 = lg.issue()
            tk = []
            for i in range(8):
                I(f"ds_read_b128 {v(PR+4*i,4)}, v55 offset:{1024*i}"); tk.append(lg.issue())
            lg.wait(t0)
            for q in range(2):
                I(f"v_min_f32 v100, v{150+q}, v{96+q}"); I(f"v_sub_f32 v101, v100, v{150+q}"); I(f"v_sub_f32 v102, v100, v{96+q}")
                I("v_exp_f32 v101, v101"); I("v_exp_f32 v102, v102")
                I(f"v_mul_f32 v103, v101, v{LS+q}"); I(f"v_fmac_f32 v103, v102, v{98+q}"); I("v_rcp_f32 v103, v103")
                b = 104 + 4*q
                I(f"v_mul_f32 v{b}, v101, v103"); I(f"v_mul_f32 v{b+1}, v101, v103"); I(f"v_mul_f32 v{b+2}, v102, v103"); I(f"v_mul_f32 v{b+3}, v102, v103")
            tw = self.tail_writes()
            for q in range(4):
                b = 104 + 4*(q & 1)
                for i in range(8*q, 8*q+8, 2): I(f"v_pk_mul_f32 {v(own+i,2)}, {v(own+i,2)}, {v(b,2)}")
                lg.wait(tk[2*q+1])
                if not self.o.get("twe"):
                    for c in tw[3*q:3*q+3]: c()
                for i in range(8*q, 8*q+8, 2): I(f"v_pk_fma_f32 {v(own+i,2)}, {v(PR+i,2)}, {v(b+2,2)}, {v(own+i,2)}")
                for i in range(4): I(f"v_cvt_pk_bf16_f32 v{snd+4*q+i}, v{own+8*q+2*i}, v{own+8*q+2*i+1}")
                I(f"buffer_store_dwordx4 {v(snd+4*q,4)}, v{VSC}, s[{RWS}:{RWS+3}], s54 offen offset:{coff(q)}{self.st}"); self.tctx = vm.issue()
            if self.o.get("twe"):
                for c in tw: c()
            if not g: I(f"s_branch {lj}")
        def skip_path():
            keep = self.save(); tctx = self.tctx; th = self.th; wt = dict(self.wtok)
            a.L(LSK); self.restore(svd); self.ring_n = rnd
            I("s_cmp_lt_i32 s45, 0"); I(f"s_cbranch_scc1 {LS1}")
            rf[7][0]()
            for f in pv(0, R2[:8], 0): f()
            a.L(LS1)
            for c, _ in setup_ + lsum() + self.tail_valu(): c()
            l1 = a.label("SG1"); I(f"s_cmp_eq_u32 s{SG}, 1"); I(f"s_cbranch_scc1 {l1}")
            for g in (0, 1):
                if g: a.L(l1)
                for i in range(8): osend(g, i)[0]()
                I(f"s_branch {LMG[g]}")
            self.restore(keep); self.tctx = tctx; self.th = th; self.wtok = wt
        a.L(lj)
        I("s_setprio 0")
        self.stamp(4)
        def cold():
            skip_path()
            site_code()
            for (lo, lb, body) in ool:
                a.L(lo); body(); I(f"s_branch {lb}")
            for (lr, lb, sb, other) in rare:
                a.L(lr)
                I("s_nop 15")
                rowmax(sb)
                for q in range(2): I(f"v_add_f32 v{TMP+q}, {f2u(BIAS)}, v{TMP+q}"); I(f"v_max_f32 v{TMP+q}, 0, v{TMP+q}"); I(f"v_exp_f32 v{TMP+2+q}, -v{TMP+q}")
                for r in range(8): I(f"v_sub_f32 v{NM+r}, v{NM+r}, v{TMP+(r>>2)}")
                for r in range(16): I(f"v_sub_f32 v{S[sb]+r}, v{S[sb]+r}, v{TMP+(r>>3)}")
                if other:
                    for r in range(16): I(f"v_sub_f32 v{S[1-sb]+r}, v{S[1-sb]+r}, v{TMP+(r>>3)}")
                for r in range(64): I(f"v_mul_f32 v{O+r}, v{O+r}, v{TMP+2+((r>>3)&1)}")
                for r in range(8): I(f"v_mul_f32 v{LS+r}, v{LS+r}, v{TMP+2+(r>>2)}")
                for c, _ in sm_ops(sb): c()
                I("s_nop 1"); I(f"s_branch {lb}")
        self.attn_rare = cold

    HB = 65536; HC = 4416; XB = 136192; YB = 148480
    SC, SJ, SB, SCH, SHB_, SWO, SCX = 34, 35, 36, 37, 38, 39, 40
    WS_ = [16, 24, 32, 40, 176, 184, 48, 56] + list(range(80, 144, 8))
    def tail_setup(self):
        I = self.I; L = []; E = lambda t: L.append((lambda: I(t), 4))
        SC, SJ, SB, SCH, SHB_, SWO, SCX = self.SC, self.SJ, self.SB, self.SCH, self.SHB_, self.SWO, self.SCX
        self.wtok = {}; self.wslot = dict(enumerate(self.WS_))
        E(f"s_lshr_b32 s{SC}, s{SW}, 2"); E(f"s_and_b32 s{SJ}, s{SW}, 3")
        E(f"s_lshl_b32 s{SCH}, s{SF}, 1"); E(f"s_add_u32 s{SCH}, s{SCH}, s{SC}"); E(f"s_lshl_b32 s{SCH}, s{SCH}, 12")
        E(f"s_lshl_b32 s60, s{SJ}, 10"); E("v_add_u32 v50, s60, v6"); E("v_subrev_u32 v51, 16, v50")
        E(f"s_lshl_b32 s63, s{SW}, 18"); E(f"s_lshl_b32 s62, s{SF}, 5"); E("s_add_u32 s63, s63, s62"); E(f"s_add_u32 s63, s63, {KVT_OFF}")
        E("v_lshrrev_b32 v48, 1, v0"); E("v_and_b32 v158, 1, v0" if False else "v_and_b32 v3, 1, v0"); E("v_lshlrev_b32 v49, 13, v48"); E("v_lshl_add_u32 v49, v3, 4, v49")
        def ld(t):
            def f(): I(t); self.th = self.vm.issue()
            L.append((f, 16))
        ld(f"buffer_load_dwordx4 {v(160,4)}, v51, s[{RB}:{RB+3}], s{SCH} offen")
        ld(f"buffer_load_dwordx4 {v(164,4)}, v50, s[{RB}:{RB+3}], s{SCH} offen")
        ld(f"buffer_load_dwordx4 {v(168,4)}, v49, s[{RWS}:{RWS+3}], s63 offen{self.ld}")
        E(f"s_lshl_b32 s{SWO}, s57, 19"); E(f"s_lshl_b32 s60, s{SW}, 15"); E(f"s_add_u32 s{SWO}, s{SWO}, s60"); E(f"s_add_u32 s{SWO}, s{SWO}, {WOT_OFF}")
        E("s_and_b32 s60, s56, 1"); E("s_lshl_b32 s60, s60, 18"); E(f"s_add_u32 s{SWO}, s{SWO}, s60")
        def w1(i, mt):
            if mt == 0: I(f"s_add_u32 s61, s{SWO}, {i*2048}")
            I(f"buffer_load_dwordx4 {v(self.WS_[i]+4*mt,4)}, v6, s[{RWS}:{RWS+3}], s61 offen offset:{mt*1024}{self.ld}"); self.wtok[i] = self.vm.issue()
        L2 = [(lambda i=i, mt=mt: w1(i, mt), 16) for i in range(self.o.get("we", 6)) for mt in range(2)]
        L3 = []; L, Lx = L3, L
        E = lambda t: L3.append((lambda: I(t), 4))
        E(f"s_mul_i32 s{SB}, s{SC}, 6144"); E(f"s_add_u32 s{SB}, s{SB}, {self.XB}")
        E(f"s_mul_i32 s{SHB_}, s{SC}, {8*self.HC}"); E(f"s_add_u32 s{SHB_}, s{SHB_}, {self.HB}")
        E(f"s_xor_b32 s{SCX}, s56, 1"); E(f"s_lshl_b32 s{SCX}, s{SCX}, 19"); E(f"s_lshl_b32 s60, s{SW}, 14"); E(f"s_add_u32 s{SCX}, s{SCX}, s60"); E(f"s_add_u32 s{SCX}, s{SCX}, {CTX_OFF}")
        E("s_and_b32 s60, s56, 1"); E("s_lshl_b32 s60, s60, 17"); E(f"s_add_u32 s{SCX}, s{SCX}, s60")
        return Lx, L2, L3
    def wreg(self, i):
        return self.WS_[i % len(self.WS_)]
    def wload(self, i):
        I = self.I; r = self.wslot[i]
        I(f"s_add_u32 s61, s{self.SWO}, {i*2048}")
        for mt in range(2):
            I(f"buffer_load_dwordx4 {v(r+4*mt,4)}, v6, s[{RWS}:{RWS+3}], s61 offen offset:{mt*1024}{self.ld}"); self.wtok[i] = self.vm.issue()
    def tail_valu(self):
        I = self.I; HC = self.HC; L = []; E = lambda t: L.append((lambda: I(t), 4))
        SJ, SB, SHB_ = self.SJ, self.SB, self.SHB_
        Ee, Eo, Oe, Oo = 160, 113, 122, 131
        E(f"s_add_u32 s60, s{SHB_}, 64"); E("v_add_u32 v138, s60, v50")
        E("v_and_b32 v51, 3, v48"); E("v_mul_u32_u24 v139, 1536, v51"); E("v_lshrrev_b32 v53, 2, v48"); E("v_lshl_add_u32 v139, v53, 4, v139")
        E("v_and_b32 v53, 1, v0"); E("v_mul_u32_u24 v53, 6144, v53"); E(f"s_lshl_b32 s60, s{SW}, 7"); E(f"s_add_u32 s60, s60, {self.XB + 512}"); E("v_add3_u32 v139, v139, v53, s60")
        E("v_and_b32 v51, 3, v0")
        for r in range(2): E(f"v_mov_b64 {v(172+2*r,2)}, 0")
        E("v_bfe_u32 v140, v0, 2, 3"); E(f"v_mul_u32_u24 v140, {HC}, v140"); E("v_lshl_add_u32 v140, v51, 4, v140"); E(f"v_add_u32 v140, s{SHB_}, v140")
        E(f"s_mul_i32 s60, s{SJ}, 1536"); E(f"s_add_u32 s60, s60, s{SB}"); E("v_lshl_add_u32 v141, v0, 3, s60")
        L.append((lambda: self.vm.wait(self.th - 1), 4))
        for k in range(7): E(f"v_alignbit_b32 v{Oe+k}, v{Ee+k+1}, v{Ee+k}, 16")
        for k in range(1, 7): E(f"v_alignbit_b32 v{Oo+k}, v{Ee+k+1}, v{Ee+k}, 16")
        for k in range(1, 7): E(f"v_mov_b32 v{Eo+k}, v{Ee+k}")
        return L
    def tail_writes(self):
        I = self.I; lg = self.lg; HC = self.HC; L = []
        Ee, Eo, Oe, Oo = 160, 113, 122, 131
        def W(t, pre=None):
            def f():
                if pre: pre()
                I(t); lg.issue()
            L.append(f)
        for r in range(8):
            sft = 1 + r; k = sft >> 1
            base = ((Oe, Oo) if sft & 1 else (Ee, Eo))[k & 1]
            W(f"ds_write_b128 v138, {v(base+k,4)} offset:{r*HC}")
        W(f"ds_write_b128 v140, {v(172,4)}"); W(f"ds_write_b64 v141, {v(172,2)}")
        W(f"ds_write_b128 v139, {v(168,4)}", lambda: self.vm.wait(self.th))
        return L
    def tailp(self):
        a = self.a; I = self.I; vm = self.vm; lg = self.lg
        HB, HC, YB = self.HB, self.HC, self.YB
        SC, SJ, SB, SCH, SHB_, SWO, SCX = self.SC, self.SJ, self.SB, self.SCH, self.SHB_, self.SWO, self.SCX
        ACC = 192; FRS = [224, 240, 64]; RD_ = 224; OACC = 192; YT = self.XB
        VL16, VA, VB, T, VP, VPA, VO, GR, VW1 = 6, 4, 5, 12, 7, 8, 9, 10, 11
        WSL = self.WS_; CSL = [160, 168, 144, 152, 64, 72]
        assert len(WSL) == 16
        I(f"s_lshr_b32 s53, s56, 1"); I("s_lshl_b32 s53, s53, 10"); I("s_and_b32 s44, s56, 1"); I("s_lshl_b32 s44, s44, 9"); I("s_add_u32 s53, s53, s44")
        I(f"s_lshr_b32 s44, s{SW}, 1"); I("s_lshl_b32 s44, s44, 7"); I("s_add_u32 s53, s53, s44"); I(f"s_and_b32 s44, s{SW}, 1"); I("s_lshl_b32 s44, s44, 3")
        I("s_add_u32 s53, s53, s44"); I(f"s_add_u32 s53, s53, {FC_OFF}")
        I(f"v_and_b32 v{VPA}, 1, v0"); I(f"v_lshlrev_b32 v{VPA}, 2, v{VPA}")
        PUBN = self.o.get("pubn", 1)
        I(f"s_lshr_b32 s45, s{SHEAD}, 2"); I("s_lshl_b32 s45, s45, 7"); I(f"s_and_b32 s44, s{SHEAD}, 3"); I("s_lshl_b32 s44, s44, 2"); I("s_add_u32 s45, s45, s44")
        I(f"s_sub_u32 s44, 15, s{SIDX}"); I("s_lshl_b32 s44, s44, 10"); I("s_add_u32 s46, s44, s45"); I(f"s_add_u32 s46, s46, {FC_OFF}")
        I(f"s_lshl_b32 s44, s{SIDX}, 10"); I("s_add_u32 s47, s44, s45"); I(f"s_add_u32 s47, s47, {FC_OFF}")
        self.srd(RC, "out", 2*MB); self.srd(RD, "q", 2*MB)
        I(f"s_lshl_b32 s44, s{SF}, 2"); I(f"s_load_dword s55, s[{P['ssmD']}:{P['ssmD']+1}], s44")
        I(f"v_and_b32 v{T}, 31, v0"); I(f"v_lshrrev_b32 v{T+1}, 5, v0")
        I(f"v_and_b32 v{T+2}, 7, v0"); I(f"v_mul_u32_u24 v{VA}, {HC}, v{T+2}")
        I(f"v_bfe_u32 v{T+2}, v0, 3, 2"); I(f"v_sub_u32 v{T+2}, v{T+2}, v{T+1}"); I(f"v_lshl_add_u32 v{VA}, v{T+2}, 4, v{VA}")
        I(f"s_lshl_b32 s43, s{SJ}, 9"); I(f"s_add_u32 s43, s43, s{SHB_}"); I("s_add_u32 s43, s43, 32"); I(f"v_add_u32 v{VA}, s43, v{VA}")
        I(f"s_lshl_b32 s43, s{SJ}, 7"); I(f"s_sub_u32 s43, s{SB}, s43"); I("s_add_u32 s43, s43, 400")
        I(f"v_lshl_add_u32 v{VB}, v{T}, 4, s43"); I(f"v_mul_u32_u24 v{T+2}, 1536, v{T+1}"); I(f"v_add_u32 v{VB}, v{VB}, v{T+2}")
        I(f"s_lshl_b32 s51, s{SW}, 13"); I(f"s_xor_b32 s52, s{SCX}, 0x80000")
        I("s_waitcnt lgkmcnt(0)"); lg.mark_all_done(); self.barrier()
        self.stamp(5)
        wtok = dict(self.wtok); ctok = {}; cslot = dict(enumerate(CSL))
        def wload(k):
            I(f"s_add_u32 s61, s{SWO}, {k*2048}")
            for mt in range(2):
                I(f"buffer_load_dwordx4 {v(WSL[k]+4*mt,4)}, v{VL16}, s[{RWS}:{RWS+3}], s61 offen offset:{mt*1024}{self.ld}"); wtok[k] = vm.issue()
        def cload(i):
            k = i & 15
            if k % 4 == 0: I(f"s_add_u32 s62, s{52 if i >= 16 else SCX}, {(k//4)*4096}"); I("s_add_u32 s63, s62, 0x40000")
            for st in range(2):
                I(f"buffer_load_dwordx4 {v(cslot[i]+4*st,4)}, v{VL16}, s[{RWS}:{RWS+3}], s{62+st} offen offset:{(k%4)*1024}{self.ld}"); ctok[i] = vm.issue()
        wl = [k for k in range(16) if k not in wtok]
        steps = [(dd, ks) for dd in range(8) for ks in range(2)]
        toks = {}
        def reads(n):
            dd, ks = steps[n]; b = FRS[n % 3]
            def r(k, reg, addr, off):
                def f():
                    I(f"ds_read_b128 {v(reg,4)}, v{addr} offset:{off}"); toks[(n, k)] = lg.issue()
                return f
            return [r(0, b, VA, 64*dd + 32*(1-ks)), r(1, b+4, VB, ks*3072 + (7-dd)*16),
                    r(2, b+8, VB, ks*3072 + (7-dd)*16 + 512), r(3, b+12, VA, 64*dd + 32*(1-ks) + 2048)]
        for n in range(2):
            for f in reads(n): f()
        for n in range(16):
            b = FRS[n % 3]; L = reads(n+2) if n + 2 < 16 else []
            c0 = "0" if n == 0 else v(ACC,16); c1 = "0" if n == 0 else v(ACC+16,16)
            lg.wait(toks[(n,1)]); I(f"{MFMA} {v(ACC,16)}, {v(b,4)}, {v(b+4,4)}, {c0}")
            for f in L[0:2]: f()
            lg.wait(toks[(n,2)]); I(f"{MFMA} {v(ACC+16,16)}, {v(b,4)}, {v(b+8,4)}, {c1}")
            for f in L[2:3]: f()
            lg.wait(toks[(n,3)]); I(f"{MFMA} {v(ACC+16,16)}, {v(b+12,4)}, {v(b+4,4)}, {v(ACC+16,16)}")
            for f in L[3:4]: f()
            if n == PUBN:
                vm.wait(self.tctx); self.barrier(); self.publish(46); self.publish(47)
            if n >= self.o.get("wst", PUBN) and len(wl) > self.o.get("wkeep", 2): wload(wl.pop(0))
            if n == self.o.get("p1", 12): tc1 = self.poll_issue(VP, VPA, "s53")
        I(f"v_add_u32 v{T+2}, s51, v{VL16}")
        for i in range(8):
            I(f"ds_write_b128 v{T+2}, {v(ACC+4*i,4)} offset:{1024*i}"); lg.issue()
        while wl: wload(wl.pop(0))
        I(f"s_lshl_b32 s43, s{SC}, 15"); I(f"s_lshl_b32 s44, s{SJ}, 11"); I("s_add_u32 s43, s43, s44"); I(f"v_add_u32 v{T+2}, s43, v{VL16}")
        I(f"s_and_b32 s43, s{SJ}, 1"); I("s_mul_i32 s44, s43, 3072"); I(f"s_lshr_b32 s45, s{SJ}, 1"); I("s_lshl_b32 s41, s45, 9")
        I("s_add_u32 s44, s44, s41"); I(f"s_add_u32 s44, s44, s{SB}"); I("s_add_u32 s44, s44, 520")
        I(f"v_lshl_add_u32 v{T+3}, v{T}, 4, s44"); I(f"v_lshlrev_b32 v{VA}, 3, v{T+1}"); I(f"v_sub_u32 v{T+3}, v{T+3}, v{VA}")
        I(f"v_lshlrev_b32 v{VB}, 6, v{T}"); I(f"v_lshl_add_u32 v{VB}, v{T+1}, 4, v{VB}")
        I("s_lshl_b32 s45, s45, 11"); I("s_lshl_b32 s43, s43, 5"); I("s_add_u32 s45, s45, s43"); I(f"s_lshl_b32 s43, s{SC}, 12"); I("s_add_u32 s45, s45, s43")
        I(f"s_add_u32 s45, s45, {YB}"); I(f"v_add_u32 v{VB}, s45, v{VB}")
        I("s_lshl_b32 s43, s55, 16"); I("s_and_b32 s44, s55, 0xffff0000"); I(f"s_cmp_eq_u32 s{SC}, 0"); I("s_cselect_b32 s55, s43, s44")
        lg.wait(lg.issued); self.barrier()
        self.stamp(12)
        for p in range(4):
            for gq in range(2):
                I(f"ds_read_b128 {v(RD_+8*p+4*gq,4)}, v{T+2} offset:{8192*p+1024*gq}"); lg.issue()
        for gq in range(2):
            I(f"ds_read_b64 {v(ACC+2*gq,2)}, v{T+3} offset:{1536*gq}"); lg.issue()
        le = a.label("NE")
        vm.wait(tc1); I(f"v_and_b32 v{VP}, 1, v{VP}"); I(f"v_cmp_ne_u32 vcc, 1, v{VP}"); I("s_mov_b32 s50, 0"); I(f"s_cbranch_vccnz {le}")
        sv = self.save(); I("s_mov_b32 s50, 1")
        for i in range(len(CSL)): cload(i)
        self.restore(sv); a.L(le)
        lg.wait(lg.issued)
        for i in range(0, 8, 2):
            I(f"v_pk_add_f32 {v(RD_+i,2)}, {v(RD_+i,2)}, {v(RD_+8+i,2)}"); I(f"v_pk_add_f32 {v(RD_+16+i,2)}, {v(RD_+16+i,2)}, {v(RD_+24+i,2)}")
        for i in range(0, 8, 2): I(f"v_pk_add_f32 {v(RD_+i,2)}, {v(RD_+i,2)}, {v(RD_+16+i,2)}")
        for gq in range(2):
            for r in range(4):
                srcr = ACC + 2*gq + (1 - (r >> 1))
                I(f"v_lshlrev_b32 v{ACC+8}, 16, v{srcr}" if r & 1 else f"v_and_b32 v{ACC+8}, 0xffff0000, v{srcr}")
                I(f"v_fma_f32 v{RD_+4*gq+r}, v{ACC+8}, s55, v{RD_+4*gq+r}")
        for i in range(4): I(f"v_cvt_pk_bf16_f32 v{ACC+12+i}, v{RD_+2*i}, v{RD_+2*i+1}")
        I(f"v_permlane32_swap_b32 v{ACC+12}, v{ACC+14}"); I(f"v_permlane32_swap_b32 v{ACC+13}, v{ACC+15}")
        I(f"ds_write_b128 v{VB}, {v(ACC+12,4)}"); lg.issue()
        I(f"v_and_b32 v{T+2}, 15, v0"); I(f"v_lshlrev_b32 v{T+1}, 1, v{T+1}"); I(f"v_xor_b32 v{T+1}, v{T+1}, v{T+2}"); I(f"v_lshlrev_b32 v{T+1}, 4, v{T+1}")
        I(f"v_lshl_add_u32 v{VA}, v{T}, 8, v{T+1}"); I(f"v_add_u32 v{VA}, s51, v{VA}")
        I(f"s_lshr_b32 s48, s{SW}, 1"); I("s_lshl_b32 s48, s48, 4"); I(f"s_and_b32 s41, s{SW}, 1"); I("s_lshl_b32 s42, s41, 3")
        I(f"v_lshrrev_b32 v{T}, 4, v0"); I(f"v_lshl_add_u32 v{T+1}, v{T}, 1, s42"); I(f"v_xor_b32 v{T+1}, v{T+1}, v{T+2}"); I(f"v_lshlrev_b32 v{T+1}, 4, v{T+1}")
        I("s_and_b32 s43, s48, 16"); I(f"v_add_u32 v{T+3}, s43, v{T+2}"); I(f"v_lshl_add_u32 v{VW1}, v{T+3}, 8, v{T+1}")
        I("s_lshr_b32 s43, s48, 5"); I("s_lshl_b32 s43, s43, 16"); I(f"v_add_u32 v{VW1}, s43, v{VW1}")
        lg.wait(lg.issued); I(f"v_xor_b32 v{VB}, 16, v{VW1}"); self.barrier()
        ly = a.label("NY")
        I(f"s_cmp_lg_u32 s{SW}, 0"); I(f"s_cbranch_scc1 {ly}")
        I(f"v_add_u32 v{T}, {YB}, v{VL16}")
        for i in range(8): I(f"ds_read_b128 {v(RD_+4*i,4)}, v{T} offset:{1024*i}")
        I(f"s_lshl_b32 s44, s{SF}, 13"); I(f"s_add_u32 s44, s44, {YT_OFF}"); I("s_add_u32 s45, s44, 4096")
        I("s_waitcnt lgkmcnt(0)")
        for i in range(8): I(f"buffer_store_dwordx4 {v(RD_+4*i,4)}, v{VL16}, s[{RWS}:{RWS+3}], s{44+(i>>2)} offen offset:{1024*(i&3)}{self.st}")
        a.L(ly)
        ll = a.label("NL")
        I("s_cmp_eq_u32 s50, 1"); I(f"s_cbranch_scc1 {ll}")
        self.poll_check(VP, VPA, "s53", 1)
        for i in range(len(CSL)): cload(i)
        a.L(ll)
        self.stamp(6)
        def put_partials():
            for mt in range(2):
                for gq in range(4):
                    I(f"v_xor_b32 v{T+1}, {(4*gq+mt)*16}, v{VA}"); I(f"v_add_u32 v{T+3}, 0x10000, v{T+1}")
                    for st in range(2):
                        I(f"ds_write_b128 v{T+1+2*st}, {v(OACC+16*(2*mt+st)+4*gq,4)}"); lg.issue()
        def sum_partials(mid=None):
            tk = []
            for p in range(8):
                for hh in range(2):
                    I(f"ds_read_b128 {v(OACC+8*p+4*hh,4)}, v{(VW1, VB)[hh]} offset:{8192*p}"); lg.issue()
                tk.append(lg.issued)
                if p == 5 and mid: mid()
            for p in range(1, 8):
                lg.wait(tk[p])
                for e in range(0, 8, 2): I(f"v_pk_add_f32 {v(OACC+e,2)}, {v(OACC+e,2)}, {v(OACC+8*p+e,2)}")
        ymark = vm.issued; ypub = False; pmark = None; ppub = False; free = []; nc = len(CSL); XR = WSL[0]; PR_ = WSL[1]
        for i in range(32):
            k = i & 15
            if i == 16:
                if self.o.get("ostamp"): self.stamp(17)
                put_partials(); lg.wait(lg.issued); self.barrier()
                if self.o.get("ostamp"): self.stamp(18)
                sum_partials()
                if self.o.get("ostamp"): self.stamp(19)
                I(f"s_lshl_b32 s44, s{SF}, 14"); I(f"s_lshl_b32 s45, s{SW}, 11"); I("s_add_u32 s54, s44, s45"); I(f"s_add_u32 s54, s54, {PP_OFF}")
                for hh in range(2):
                    I(f"buffer_store_dwordx4 {v(OACC+4*hh,4)}, v{VL16}, s[{RWS}:{RWS+3}], s54 offen offset:{1024*hh}{self.st}"); pmark = vm.issue()
                I(f"s_lshl_b32 s53, s57, 7"); I(f"s_lshl_b32 s42, s{SW}, 4"); I("s_add_u32 s53, s53, s42"); I(f"s_add_u32 s53, s53, {FY_OFF}")
                I(f"v_and_b32 v{VPA}, 3, v0"); I(f"v_lshlrev_b32 v{VPA}, 2, v{VPA}")
                tf = self.poll_issue(VP, VPA, "s53")
            if i == 18:
                I(f"v_and_b32 v{T+1}, 15, v0"); I(f"s_lshl_b32 s45, s56, 6"); I("s_add_u32 s45, s45, s48"); I(f"v_add_u32 v{T+1}, s45, v{T+1}")
                I(f"v_lshlrev_b32 v{T+2}, 2, v{T+1}"); I(f"s_mov_b32 s45, {G_OFF}")
                I(f"buffer_load_dword v{GR}, v{T+2}, s[{RWS}:{RWS+3}], s45 offen{self.ld}"); vm.issue()
                I(f"v_lshrrev_b32 v{T+2}, 4, v0"); I(f"v_lshlrev_b32 v{T+2}, 4, v{T+2}"); I(f"v_lshl_add_u32 v{VO}, v{T+1}, 10, v{T+2}")
                I("s_lshl_b32 s49, s41, 6"); I(f"s_lshl_b32 s45, s57, 7"); I("s_add_u32 s49, s49, s45")
                I(f"buffer_load_dwordx4 {v(XR,4)}, v{VO}, s[{RD}:{RD+3}], s49 offen"); vm.issue()
            if i == self.o.get("b2", 22): self.barrier()
            if i == 24:
                vm.wait(tf); self.poll_check(VP, VPA, "s53", 1)
                I(f"v_lshrrev_b32 v{T}, 3, v0"); I(f"v_and_b32 v{T+1}, 7, v0"); I(f"v_lshlrev_b32 v{T+1}, 4, v{T+1}")
                I(f"v_lshl_add_u32 v{T}, v{T}, 12, v{T+1}")
                I(f"s_add_u32 m0, s{SWK}, {YT}")
                I(f"s_lshl_b32 s44, s57, 18"); I(f"s_lshl_b32 s45, s{SW}, 15"); I("s_add_u32 s44, s44, s45")
                I(f"s_lshl_b32 s45, s56, 7"); I("s_add_u32 s44, s44, s45"); I(f"s_add_u32 s44, s44, {YT_OFF}")
                I(f"buffer_load_dwordx4 v{T}, s[{RWS}:{RWS+3}], s44 offen{self.ld} lds"); vm.issue()
            if i == 29:
                I(f"s_xor_b32 s53, s{SF}, 32"); I("s_lshl_b32 s53, s53, 7"); I(f"s_lshl_b32 s42, s{SW}, 2"); I("s_add_u32 s53, s53, s42"); I(f"s_add_u32 s53, s53, {FP_OFF}")
                I(f"v_mov_b32 v{VPA}, 0"); tp = self.poll_issue(VP, VPA, "s53")
            vm.wait(max(ctok[i], wtok[k]))
            if not ypub and vm.done > ymark:
                ypub = True; I(f"s_lshl_b32 s44, s{SF}, 2"); I(f"s_add_u32 s44, s44, {FY_OFF}"); self.publish(44, 3)
            if pmark and not ppub and vm.done >= pmark:
                ppub = True
                I(f"s_lshl_b32 s44, s{SF}, 7"); I(f"s_lshl_b32 s45, s{SW}, 2"); I("s_add_u32 s44, s44, s45"); I(f"s_add_u32 s44, s44, {FP_OFF}")
                I("v_mov_b32 v2, 1"); I("v_mov_b32 v3, 0"); I(f"buffer_store_dword v2, v3, s[{RWS}:{RWS+3}], s44 offen sc1"); vm.issue()
            for mt in range(2):
                for st in range(2):
                    d = v(OACC + 16*(2*mt+st), 16)
                    I(f"{MFMA} {d}, {v(WSL[k]+4*mt,4)}, {v(cslot[i]+4*st,4)}, {'0' if k == 0 else d}")
            free.append(cslot[i])
            if i >= 18: free.append(WSL[k])
            while free and nc < 32:
                cslot[nc] = free.pop(0); cload(nc); nc += 1
        assert ypub and ppub
        self.stamp(7)
        put_partials()
        vm.wait(tp); self.poll_check(VP, VPA, "s53", 1)
        if self.o.get("ostamp"): self.stamp(20)
        I("s_xor_b32 s54, s54, 0x80000")
        for hh in range(2):
            I(f"buffer_load_dwordx4 {v(PR_+4*hh,4)}, v{VL16}, s[{RWS}:{RWS+3}], s54 offen offset:{1024*hh}{self.ld}"); tpp = vm.issue()
        I(f"v_lshrrev_b32 v{T}, 4, v0"); I("s_lshl_b32 s42, s41, 5"); I(f"v_lshl_add_u32 v{T}, v{T}, 3, s42"); I(f"v_bfe_u32 v{T+1}, v0, 2, 2")
        I(f"v_add_u32 v{T}, v{T}, v{T+1}"); I(f"v_lshlrev_b32 v{T}, 7, v{T}"); I(f"v_and_b32 v{T+1}, 3, v0")
        I(f"v_lshl_add_u32 v{T}, v{T+1}, 3, v{T}"); I("s_lshl_b32 s42, s48, 1"); I(f"s_add_u32 s42, s42, {YT}"); I(f"v_add_u32 v{T}, s42, v{T}")
        lg.wait(lg.issued); self.barrier()
        I(f"ds_read_b64_tr_b16 {v(100,2)}, v{T}"); lg.issue()
        I(f"ds_read_b64_tr_b16 {v(102,2)}, v{T} offset:512"); ty2 = lg.issue()
        def mix():
            lg.wait(ty2)
            for e in range(8):
                if e & 1: I(f"v_and_b32 v104, 0xffff0000, v{XR+(e>>1)}"); I(f"v_and_b32 v105, 0xffff0000, v{100+(e>>1)}")
                else: I(f"v_lshlrev_b32 v104, 16, v{XR+(e>>1)}"); I(f"v_lshlrev_b32 v105, 16, v{100+(e>>1)}")
                I(f"v_mul_f32 v{112+e}, v104, v105"); I(f"v_mul_f32 v{112+e}, v{112+e}, v{GR}")
            I(f"v_sub_f32 v{GR}, 1.0, v{GR}")
        sum_partials(mix)
        vm.wait(tpp)
        for e in range(0, 8, 2): I(f"v_pk_add_f32 {v(OACC+e,2)}, {v(OACC+e,2)}, {v(PR_+e,2)}")
        for e in range(8): I(f"v_fmac_f32 v{112+e}, v{OACC+4*(e&1)+(e>>1)}, v{GR}")
        for e in range(4): I(f"v_cvt_pk_bf16_f32 v{108+e}, v{112+2*e}, v{112+2*e+1}")
        I(f"buffer_store_dwordx4 {v(108,4)}, v{VO}, s[{RC}:{RC+3}], s49 offen sc1"); vm.issue()
        self.stamp(16)
        if self.o.get("echo"):
            lp = a.label("EC")
            I("s_sub_u32 s100, s100, s96")
            if self.o.get("cyc"): I("s_lshr_b32 s100, s100, 4")
            I("s_memrealtime s[96:97]"); I("s_waitcnt lgkmcnt(0)")
            a.L(lp)
            I("s_memrealtime s[98:99]"); I("s_waitcnt lgkmcnt(0)"); I("s_sub_u32 s98, s98, s96"); I("s_cmp_lt_u32 s98, s100"); I(f"s_cbranch_scc1 {lp}")
        if self.o.get("dbgout") is not None:
            l = a.label("DB")
            I(f"s_cmp_lg_u32 s2, {self.o['dbgout']}"); I(f"s_cbranch_scc1 {l}"); I(f"s_cmp_lg_u32 s{SW}, 0"); I(f"s_cbranch_scc1 {l}")
            I("s_waitcnt vmcnt(0)")
            order = [0, 1, 2, 3, 8, 10, 11, 4, 5, 12, 6, 7, 16]
            I("v_mov_b32 v20, 0")
            for j, i in enumerate(order):
                I(f"s_mov_b32 s44, {4*i}"); I(f"v_writelane_b32 v20, s44, {j}")
            I(f"s_lshl_b32 s44, s2, 11"); I(f"s_add_u32 s44, s44, {STAMP_OFF}")
            I(f"buffer_load_dword v21, v20, s[{RWS}:{RWS+3}], s44 offen sc1"); I("s_waitcnt vmcnt(0)")
            I("v_readfirstlane_b32 s45, v21"); I("v_subrev_u32 v21, s45, v21")
            self.srd(RDBG, "dbg", 64); I("v_lshlrev_b32 v22, 2, v0")
            I(f"buffer_store_dword v21, v22, s[{RDBG}:{RDBG+3}], 0 offen")
            a.L(l)

def build(opts):
    g = G(opts); k = NAME + "_kernel"
    g.begin(k); g.a.T("; MARK p"); g.proj(); g.a.T("; MARK a"); g.attn(); g.a.T("; MARK t"); g.tailp(); g.end(); g.a.T("; MARK a"); g.attn_rare(); g.a.T("; MARK t"); g.a.L("CODE_END"); g.a.I("s_endpgm")
    n = g.a.fix_hazards()
    txt = "; @launch grid=(256,1,1) block=(512,1,1) lds=163840\n"
    txt += '.amdgcn_target "amdgcn-amd-amdhsa--gfx950"\n.text\n' + g.a.text()
    txt += f""".section .rodata,"a"
.p2align 6
.amdhsa_kernel {k}
  .amdhsa_next_free_vgpr 256
  .amdhsa_next_free_sgpr 102
  .amdhsa_accum_offset 256
  .amdhsa_group_segment_fixed_size 0
  .amdhsa_kernarg_size 128
  .amdhsa_user_sgpr_count 2
  .amdhsa_user_sgpr_kernarg_segment_ptr 1
  .amdhsa_system_sgpr_workgroup_id_x 1
.end_amdhsa_kernel
"""
    print(f"instructions {sum(1 for it in g.a.items if it[0] == 'i')}, nops inserted {n}", file=sys.stderr)
    return txt

if __name__ == "__main__":
    opts = {}
    for x in sys.argv[2:]:
        if "=" in x: k_, v_ = x.split("="); opts[k_] = int(v_)
        else: opts[x] = True
    open(sys.argv[1], "w").write(build(opts))
```

```python
import sys, math, struct
sys.path.insert(0, "gen")
from asmlib import *

NAME = "gated_mix__ssm_conv_h3__compressed_kv_cla__prompt"
MB = 1 << 20
KV_OFF, Q_OFF, CTX_OFF, KVT_OFF, YT_OFF, G_OFF = 0, 32*MB, 48*MB, 64*MB, 66*MB, 68*MB
XC_OFF = 40*MB
PP_OFF = 40*MB
WOT_OFF = 32*MB
FLG_OFF = 68*MB + 65536
FK_OFF, FY_OFF, FC_OFF, FP_OFF = FLG_OFF, FLG_OFF + 4096, FLG_OFF + 8192, FLG_OFF + 32768
STAMP_OFF = 69*MB
WS_SIZE = 70*MB
P = dict(q=64, k=66, v=68, shift=70, ssmk=72, ssmD=74, bx=76, ckv=78, wq=80, wuk=82, wuv=84, wo=86, gate=88, out=90, dbg=92, ws=94)
SW, SHEAD, SIDX, SWK, SF = 3, 4, 5, 6, 7
RA, RB, RC, RWS, RD, RE, RT, RDBG = 8, 12, 16, 20, 24, 28, 56, 60
MFMA = "v_mfma_f32_32x32x16_bf16"
LOG2E = 1.4426950408889634
F_KV, F_CA, F_CB, F_Y = 1, 2, 4, 8
def f2u(x): return "0x%08x" % struct.unpack("<I", struct.pack("<f", x))[0]
def rep4(b): return b * 0x01010101

class G:
    def __init__(self, opts):
        self.a = Asm(); self.o = opts
        self.GSH, self.FSH = (8, 10) if opts.get("lin") else (11, 8)
        self.vm = Cnt(self.a, "vmcnt", 63); self.lg = Cnt(self.a, "lgkmcnt", 15)
        self.st = "" if opts.get("plainst") else (" sc1 nt" if opts.get("ntst") else " sc1"); self.ld = "" if opts.get("plainld") else " sc1"
    def I(self, t): self.a.I(t)
    def srd(self, r, ptr, nbytes):
        I = self.I
        I(f"s_mov_b32 s{r}, s{P[ptr]}"); I(f"s_mov_b32 s{r+1}, s{P[ptr]+1}")
        I(f"s_mov_b32 s{r+2}, {nbytes}"); I(f"s_mov_b32 s{r+3}, 0x00020000")
    def save(self): return (self.vm.issued, self.vm.done, self.lg.issued, self.lg.done)
    def restore(self, s_): self.vm.issued, self.vm.done, self.lg.issued, self.lg.done = s_
    def stream(self, mf, fills):
        n = len(mf); slots = [[] for _ in range(n + 1)]
        for (s0, e0, cl) in fills:
            m = e0 - s0
            for j, c in enumerate(cl): slots[s0 + 1 + (j * m) // len(cl)].append(c)
        for c in slots[0]: c()
        for i in range(n):
            mf[i]()
            for c in slots[i+1]: c()
    def stamp(self, i, dyn=None):
        if self.o.get("echo") == i:
            self.I("s_memtime s[100:101]" if self.o.get("cyc") else "s_memrealtime s[100:101]"); self.I("s_waitcnt lgkmcnt(0)")
        if not self.o.get("stamp"): return
        I = self.I
        I("s_memrealtime s[96:97]"); I("s_memtime s[100:101]")
        I("s_lshl_b32 s98, s2, 3"); I(f"s_add_u32 s98, s98, s{SW}"); I("s_lshl_b32 s98, s98, 8")
        I(f"s_add_u32 s98, s98, {STAMP_OFF + 4*i}")
        if dyn is not None:
            I(f"s_lshl_b32 s99, s{dyn}, 4"); I("s_add_u32 s98, s98, s99")
        I("s_waitcnt lgkmcnt(0)")
        I("v_mov_b32 v2, s96"); I("v_mov_b32 v3, 0")
        I(f"buffer_store_dword v2, v3, s[{RWS}:{RWS+3}], s98 offen")
        I("v_mov_b32 v2, s100")
        I(f"buffer_store_dword v2, v3, s[{RWS}:{RWS+3}], s98 offen offset:128")
    OOB = 0x40000000
    def publish(self, soff, val=1, srd=RWS, byte=False, idx=None):
        I = self.I
        self.oob_sel()
        if idx is not None: I(f"s_and_b32 s98, s{SIDX}, 3"); I(f"s_cmp_eq_u32 s98, {idx}"); I(f"s_cselect_b32 s99, s99, {self.OOB}")
        I(f"v_mov_b32 v2, {val}"); I("v_mov_b32 v3, s99")
        I(f"buffer_store_{'byte' if byte else 'dword'} v2, v3, s[{srd}:{srd+3}], s{soff} offen sc1"); self.vm.issue()
    def oob_sel(self):
        self.I(f"s_cmp_eq_u32 s{SW}, 0"); self.I(f"s_cselect_b32 s99, 0, {self.OOB}")
    def poll_issue(self, vd, vaddr, soff, srd=RWS):
        self.I(f"buffer_load_dword v{vd}, v{vaddr}, s[{srd}:{srd+3}], {soff} offen sc1"); return self.vm.issue()
    def poll_check(self, vd, vaddr, soff, want, srd=RWS):
        a = self.a; I = self.I
        l = a.label("PCK"); lp = a.label("POLL")
        I(f"s_mov_b32 s98, {want}"); I("s_mov_b32 s99, 20000")
        a.L(lp)
        I(f"v_and_b32 v{vd}, s98, v{vd}"); I(f"v_cmp_ne_u32 vcc, s98, v{vd}"); I(f"s_cbranch_vccz {l}")
        I("s_sleep 2")
        I(f"buffer_load_dword v{vd}, v{vaddr}, s[{srd}:{srd+3}], {soff} offen sc1")
        I("s_sub_u32 s99, s99, 1"); I("s_cmp_lg_u32 s99, 0"); I("s_waitcnt vmcnt(0)"); I(f"s_cbranch_scc1 {lp}")
        a.L(l)
    def barrier(self): self.I("s_barrier")
    def sync_all(self):
        self.I("s_waitcnt vmcnt(0) lgkmcnt(0)"); self.vm.mark_all_done(); self.lg.mark_all_done(); self.barrier()

    def begin(self, kname):
        a = self.a; I = self.I
        a.T(f".globl {kname}\n.p2align 8\n.type {kname},@function"); a.L(kname)
        self.endl = a.label("END")
        if self.o.get("stamp"): I("s_memrealtime s[30:31]")
        if self.o.get("echo"): I("s_memtime s[96:97]" if self.o.get("cyc") else "s_memrealtime s[96:97]")
        I("s_load_dwordx16 s[64:79], s[0:1], 0"); I("s_load_dwordx16 s[80:95], s[0:1], 64")
        I("s_cmp_ge_u32 s2, 256"); I(f"s_cbranch_scc1 {self.endl}")
        I("v_lshrrev_b32 v1, 6, v0"); I("v_and_b32 v0, 63, v0"); I(f"v_readfirstlane_b32 s{SW}, v1")
        I("s_and_b32 s7, s2, 7"); I("s_lshl_b32 s7, s7, 2")
        I(f"s_lshr_b32 s{SIDX}, s2, 3"); I(f"s_lshr_b32 s{SHEAD}, s{SIDX}, 3"); I(f"s_add_u32 s{SHEAD}, s{SHEAD}, s7")
        I(f"s_and_b32 s{SIDX}, s{SIDX}, 7"); I(f"s_lshl_b32 s{SWK}, s{SW}, 10")
        I(f"s_lshl_b32 s{SF}, s{SHEAD}, 3"); I(f"s_add_u32 s{SF}, s{SF}, s{SIDX}")
    def end(self):
        self.a.L(self.endl); self.I("s_endpgm")

    def proj(self):
        a = self.a; I = self.I; vm = self.vm; lg = self.lg
        QA_LDS = 65536
        ACC = {"K": 64, "V": 128, "Q": 64}
        FX = [16, 24]; FW = [192, 32]
        VWA = 4; VSK, VSV, VOX, VOW, VST = 8, 9, 10, 11, 12; VXA = 224; T = 232
        NB = 0; XC = self.o.get("xc", 0)
        ST = [("KV", c) for c in range(NB)] + [("K", c) for c in range(NB, 8)] + [("V", c) for c in range(7, NB - 1, -1)] + [("Q", c) for c in range(8)]
        NS = len(ST); TK = 7; TV = NS - 9; TQ = NS - 8
        I("v_lshrrev_b32 v13, 3, v0"); I(f"s_lshl_b32 s40, s{SW}, 3"); I("v_add_u32 v13, s40, v13"); I("v_lshlrev_b32 v13, 10, v13")
        I(f"s_lshr_b32 s41, s{SW}, 1"); I(f"s_xor_b32 s40, s41, s{SW}"); I("s_and_b32 s40, s40, 1"); I("s_lshl_b32 s40, s40, 2")
        I("v_lshrrev_b32 v14, 4, v0"); I("v_add_u32 v15, s40, v14")
        I("v_and_b32 v3, 7, v0"); I("v_xor_b32 v15, v15, v3"); I(f"v_lshl_add_u32 v{VOX}, v15, 4, v13")
        I(f"s_lshl_b32 s40, s{SW}, 2"); I("v_add_u32 v13, s40, v14"); I("v_lshlrev_b32 v13, 13, v13")
        I("s_and_b32 s41, s41, 1"); I("s_lshl_b32 s41, s41, 3"); I("v_lshl_add_u32 v15, v14, 1, s41"); I("v_and_b32 v3, 15, v0"); I("v_xor_b32 v15, v15, v3")
        I("v_lshl_add_u32 v13, v15, 4, v13"); I(f"s_lshl_b32 s40, s{SHEAD}, 8"); I(f"v_add_u32 v{VOW}, s40, v13")
        I(f"v_lshlrev_b32 v{VST}, 4, v0")
        I(f"s_lshl_b32 s44, s{SIDX}, 18")
        for i in range(1, 4): I(f"s_add_u32 s{44+i}, s44, {65536*i}")
        ROT = self.o.get("rot", 2)
        if ROT == 0: I("s_mov_b32 s33, 0")
        elif ROT == 1: I(f"s_mov_b32 s33, s{SIDX}")
        elif ROT == 2: I(f"s_lshr_b32 s33, s{SHEAD}, 2"); I(f"s_add_u32 s33, s33, s{SIDX}")
        elif ROT == 3: I(f"s_lshr_b32 s33, s{SHEAD}, 2"); I(f"s_add_u32 s33, s33, s{SIDX}"); I(f"s_lshl_b32 s34, s{SHEAD}, 1"); I("s_add_u32 s33, s33, s34")
        elif ROT == 4: I(f"s_lshr_b32 s33, s{SHEAD}, 2")
        if self.o.get("rotq"): I(f"s_lshl_b32 s32, s{SHEAD}, 1"); I("s_add_u32 s32, s32, s33")
        else: I("s_mov_b32 s32, s33")
        I("s_waitcnt lgkmcnt(0)")
        if self.o.get("stamp"): I("s_memrealtime s[28:29]")
        self.srd(RA, "ckv", 2*MB); self.srd(RB, "wuk", 4*MB); self.srd(RC, "wuv", 4*MB)
        def xbase(t):
            k, c = ST[t]
            return (32768, 131072, 0)[((16 + c) if k == "Q" else (15 - c + NB)) % 3]
        units = [(t, m) for t in range(NS) for m in ST[t][0]]
        uidx = {u: i for i, u in enumerate(units)}
        def wbase(t, m): return 65536 + (uidx[(t, m)] % 4)*16384
        items = []
        lastx = {}
        for t in range(NS):
            k, c = ST[t]
            for m in k:
                u = uidx[(t, m)]
                def w(i, t=t, m=m, c=c):
                    if i == 0: I(f"s_add_u32 s34, s{32 if m == 'Q' else 33}, {c}"); I("s_and_b32 s34, s34, 7"); I("s_lshl_b32 s34, s34, 19")
                    I(f"s_add_u32 m0, s{SWK}, {wbase(t, m) + i*8192}"); I(f"s_add_u32 s41, s34, {i*262144}")
                    r = {"K": RB, "V": RC, "Q": RE}[m]
                    I(f"buffer_load_dwordx4 v{VOW}, s[{r}:{r+3}], s41 offen lds"); dtok[t] = vm.issue()
                items.append((t, units[u-4][0] if u >= 4 else -1, [lambda i=i, w=w: w(i) for i in range(2)]))
            key = ("Q" if k == "Q" else "C", c); prev = lastx.get(xbase(t))
            if prev is None or prev[1] != key:
                def x(i, t=t, k=k, c=c):
                    if i == 0: I(f"s_add_u32 s35, s{32 if k == 'Q' else 33}, {c}"); I("s_and_b32 s35, s35, 7"); I("s_lshl_b32 s35, s35, 7")
                    I(f"s_add_u32 m0, s{SWK}, {xbase(t) + i*8192}"); I(f"s_add_u32 s41, s{(48 if k == 'Q' else 44)+i}, s35")
                    r = (RWS if XC else RD) if k == "Q" else RA
                    I(f"buffer_load_dwordx4 v{VOX}, s[{r}:{r+3}], s41 offen{self.ld if (XC and k == 'Q') else ''} lds"); dtok[t] = vm.issue()
                items.append((t, prev[0] if prev else -1, [lambda i=i, x=x: x(i) for i in range(4)]))
            lastx[xbase(t)] = (t, key)
        dtok = {}
        def take(done, upto=99):
            out = []
            for it in list(items):
                if it[1] <= done and it[0] <= upto: out += it[2]; items.remove(it)
            return out
        for f in take(-1, 0): f()
        self.srd(RWS, "ws", WS_SIZE); self.srd(RDBG, "dbg", 256)
        if self.o.get("wsoff"): I(f"s_add_u32 s{RWS}, s{RWS}, {self.o['wsoff']*MB}"); I(f"s_addc_u32 s{RWS+1}, s{RWS+1}, 0")
        self.stamp(31)
        if self.o.get("stamp"):
            I("v_mov_b32 v2, s30"); I("s_sub_u32 s98, s98, 124"); I(f"buffer_store_dword v2, v3, s[{RWS}:{RWS+3}], s98 offen")
            I("v_mov_b32 v2, s28"); I(f"buffer_store_dword v2, v3, s[{RWS}:{RWS+3}], s98 offen offset:120")
        I(f"s_lshl_b32 s48, s{SIDX}, 17"); I("s_add_u32 s49, s48, 65536")
        I(f"s_sub_u32 s50, 15, s{SIDX}"); I("s_lshl_b32 s50, s50, 17"); I("s_add_u32 s51, s50, 65536")
        if XC:
            for i in range(4): I(f"s_add_u32 s{48+i}, s{48+i}, {XC_OFF}")
        I(f"s_and_b32 s42, s{SW}, 3"); I("s_lshl_b32 s42, s42, 6"); I(f"s_lshr_b32 s43, s{SW}, 2"); I("s_lshl_b32 s43, s43, 1")
        I("v_and_b32 v13, 15, v0"); I("v_lshrrev_b32 v15, 4, v0")
        I("v_lshrrev_b32 v14, 1, v13"); I("v_xor_b32 v14, v14, v15"); I("v_lshlrev_b32 v14, 4, v14")
        I("v_add_u32 v3, s42, v13"); I(f"v_lshl_add_u32 v{VXA}, v3, 7, v14")
        I("v_and_b32 v2, 8, v13"); I("v_add_u32 v3, v3, v2"); I(f"v_lshl_add_u32 v{VXA+4}, v3, 7, v14")
        for pt in range(2):
            b = VXA + 4*pt
            I(f"v_xor_b32 v{b+1}, 64, v{b}"); I(f"v_add_u32 v{b+2}, 0x20000, v{b}"); I(f"v_add_u32 v{b+3}, 0x20000, v{b+1}")
        I("v_lshlrev_b32 v3, 4, v13"); I("v_and_b32 v2, 1, v15"); I("v_lshl_add_u32 v3, v2, 9, v3"); I("v_lshrrev_b32 v14, 1, v15")
        I("v_lshlrev_b32 v3, 4, v13"); I(f"v_lshl_add_u32 v{VSK}, v15, {self.GSH}, v3")
        I("v_bfe_u32 v13, v0, 2, 2"); I("v_lshl_add_u32 v14, v15, 3, v13"); I("v_lshlrev_b32 v14, 8, v14")
        I("v_and_b32 v3, 3, v0"); I("v_lshl_add_u32 v14, v3, 3, v14"); I("v_add_u32 v14, 0x10000, v14")
        I("v_lshl_add_u32 v13, v2, 2, v13"); I("s_lshl_b32 s40, s43, 1"); I("v_xor_b32 v13, s40, v13"); I(f"v_lshl_add_u32 v{VWA}, v13, 5, v14")
        for dt in range(1, 4): I(f"v_xor_b32 v{VWA+dt}, {dt << 5}, v{VWA}")
        I(f"s_lshl_b32 s54, s{SHEAD}, 4"); I(f"s_lshl_b32 s55, s{SIDX}, 1"); I("s_add_u32 s54, s54, s55")
        I(f"s_bfe_u32 s55, s{SW}, 0x10001"); I("s_add_u32 s54, s54, s55"); I("s_lshl_b32 s54, s54, 16")
        I(f"s_and_b32 s55, s{SW}, 1"); I("s_lshl_b32 s55, s55, 14"); I("s_add_u32 s54, s54, s55")
        I(f"s_lshl_b32 s55, s43, {self.FSH+1}"); I("s_add_u32 s52, s54, s55"); I("s_add_u32 s52, s52, 0x8000")
        I(f"s_lshl_b32 s55, s43, {self.FSH}"); I("s_add_u32 s54, s54, s55")
        XG = T; GW = T + 4; hl = {}
        def gate_loads():
            L = []
            def E(t): L.append(lambda: I(t))
            def V(t):
                def f(): I(t); hl["t"] = vm.issue()
                L.append(f)
            E(f"s_lshl_b32 s40, s{SHEAD}, 7"); E(f"s_lshl_b32 s39, s{SIDX}, 2"); E("s_add_u32 s40, s40, s39"); E(f"s_add_u32 s40, s40, {FK_OFF}")
            E(f"s_lshl_b32 s39, s{SF}, 7"); E(f"s_add_u32 s39, s39, {FP_OFF}"); E("v_and_b32 v13, 7, v0"); E("v_lshl_add_u32 v13, v13, 2, s39")
            E("v_writelane_b32 v13, s40, 0")
            E(f"s_lshr_b32 s39, s{SHEAD}, 2"); E("s_lshl_b32 s39, s39, 7"); E(f"s_and_b32 s40, s{SHEAD}, 3"); E("s_lshl_b32 s40, s40, 2"); E("s_add_u32 s39, s39, s40")
            E(f"s_lshl_b32 s40, s{SIDX}, 10"); E("s_add_u32 s40, s40, s39"); E(f"s_add_u32 s40, s40, {FC_OFF}")
            E("v_writelane_b32 v13, s40, 1")
            E(f"s_sub_u32 s40, 15, s{SIDX}"); E("s_lshl_b32 s40, s40, 10"); E("s_add_u32 s40, s40, s39"); E(f"s_add_u32 s40, s40, {FC_OFF}")
            E("v_writelane_b32 v13, s40, 2")
            E(f"s_lshl_b32 s40, s{SF}, 2"); E(f"s_add_u32 s40, s40, {FY_OFF}"); E("v_writelane_b32 v13, s40, 3"); E("v_mov_b32 v14, 0")
            def oo(): self.oob_sel(); I("v_add_u32 v13, s99, v13")
            L.append(oo)
            V(f"buffer_store_dword v14, v13, s[{RWS}:{RWS+3}], 0 offen sc1")
            E("s_lshl_b32 s37, s2, 3"); E(f"s_add_u32 s37, s37, s{SW}"); E("s_lshl_b32 s38, s37, 10")
            L.append(lambda: self.srd(RD, "q", 2*MB)); L.append(lambda: self.srd(RE, "wq", 4*MB)); L.append(lambda: self.srd(RT, "gate", 1024))
            V(f"buffer_load_dwordx4 {v(XG,4)}, v{VST}, s[{RD}:{RD+3}], s38 offen")
            V(f"buffer_load_dwordx4 {v(GW,4)}, v{VST}, s[{RT}:{RT+3}], 0 offen")
            return L
        def gate_ops():
            L = []; E = lambda t: L.append(lambda: I(t)); Z = T + 8
            L.append(lambda: vm.wait(hl["t"]))
            def xs():
                I(f"s_add_u32 s38, s38, {XC_OFF}"); I(f"buffer_store_dwordx4 {v(XG,4)}, v{VST}, s[{RWS}:{RWS+3}], s38 offen{self.st}"); vm.issue()
            if XC: L.append(xs)
            E(f"v_dot2_f32_bf16 v{Z}, v{XG}, v{GW}, 0")
            for i in range(1, 4): E(f"v_dot2_f32_bf16 v{Z}, v{XG+i}, v{GW+i}, v{Z}")
            for m in ("quad_perm:[1,0,3,2] row_mask:0xf", "quad_perm:[2,3,0,1] row_mask:0xf", "row_half_mirror row_mask:0xf", "row_mirror row_mask:0xf",
                      "row_bcast:15 row_mask:0xa", "row_bcast:31 row_mask:0xc"):
                E(f"v_add_f32_dpp v{Z}, v{Z}, v{Z} {m} bank_mask:0xf")
            E(f"v_readlane_b32 s36, v{Z}, 63"); E(f"v_mov_b32 v{Z+1}, {f2u(-LOG2E)}"); E(f"v_mul_f32 v{Z}, s36, v{Z+1}")
            E(f"v_exp_f32 v{Z}, v{Z}"); E(f"v_add_f32 v{Z}, 1.0, v{Z}"); E(f"v_rcp_f32 v{Z}, v{Z}")
            E("s_lshl_b32 s38, s37, 2"); E(f"s_add_u32 s38, s38, {G_OFF}"); E(f"v_mov_b32 v{Z+1}, 0")
            def gs():
                I(f"buffer_store_dword v{Z}, v{Z+1}, s[{RWS}:{RWS+3}], s38 offen{self.st}"); vm.issue()
            L.append(gs)
            return L
        toks = {}
        def rdx(t, mt):
            m = ST[t][0]; xb = xbase(t); pt = 0
            off = (xb & 65535) + ((mt >> 1)*4096 + (mt & 1)*1024 if pt else mt*2048)
            def f(kk):
                va = VXA + 4*pt + 2*(xb >> 17) + (kk ^ (mt & 1))
                I(f"ds_read_b128 {v(FX[mt & 1]+4*kk,4)}, v{va} offset:{off}"); toks[("x", t, mt, kk)] = lg.issue()
            return [lambda: f(0), lambda: f(1)]
        def rdw(t, dt):
            m = ST[t][0]
            def f(kk, h):
                I(f"ds_read_b64_tr_b16 {v(FW[t & 1]+8*dt+4*kk+2*h,2)}, v{VWA+dt} offset:{wbase(t, m)-65536+kk*8192+h*1024}"); toks[("w", t, dt, kk)] = lg.issue()
            return [lambda kk=kk, h=h: f(kk, h) for kk in range(2) for h in range(2)]
        def atile(m, mt, dt): return ACC[m] + (4*(((mt >> 1)*4 + dt)*2 + (mt & 1)) if m == "V" else 4*(mt*4 + dt))
        def mfs(t, mt):
            m = ST[t][0]; first = t == 0 or ST[t-1][0] != m; L = []
            order = [(dt, kk) for dt in range(4) for kk in range(2)] if not self.o.get("nochain") else [(dt, kk) for kk in range(2) for dt in range(4)]
            for dt, kk in order:
                def f(dt=dt, kk=kk):
                    lg.wait(max(toks[("x", t, mt, kk)], toks[("w", t, dt, kk)]))
                    d = v(atile(m, mt, dt), 4); X = v(FX[mt & 1]+4*kk, 4); W = v(FW[t & 1]+8*dt+4*kk, 4)
                    c = "0" if (first and kk == 0) else d
                    I(f"v_mfma_f32_16x16x32_bf16 {d}, {X}, {W}, {c}" if m == "V" else f"v_mfma_f32_16x16x32_bf16 {d}, {W}, {X}, {c}")
                L.append(f)
            return L
        def pieces(m):
            fs = 1024 if m == "Q" else 1 << self.FSH
            if m == "V": return [(atile(m, 2*p, dt), p*8192 + dt*fs) for p in range(2) for dt in range(4)]
            return [(atile(m, mt, 2*j), (mt >> 1)*8192 + ((mt & 1)*4 + j)*fs) for mt in range(4) for j in range(2)]
        def kv_out(m):
            out = []
            for b, off in pieces(m):
                pk = [lambda i=i, b=b: I(f"v_cvt_pk_bf16_f32 v{b+i}, v{b+2*i}, v{b+2*i+1}") for i in range(4)]
                if m == "K": pk = [lambda i=i, b=b: I(f"v_mul_f32 v{b+i}, {f2u(LOG2E / math.sqrt(128.0))}, v{b+i}") for i in range(8)] + pk
                def st(b=b, off=off):
                    if self.o.get("nost"): return
                    I(f"s_add_u32 s41, s{54 if m == 'K' else 52}, {off}")
                    I(f"buffer_store_dwordx4 {v(b,4)}, v{VSK}, s[{RWS}:{RWS+3}], s41 offen{self.st}"); vm.issue()
                out.append((pk, st))
            return out
        side = {}; late = {}
        def spread(ops, t0, t1, dst=side, ks=(0, 1, 2)):
            sl = [(t, k) for t in range(t0, t1) for k in ks]; n = len(ops)
            for j, key in enumerate(sl): dst.setdefault(key, []).extend(ops[n*j//len(sl): n*(j+1)//len(sl)])
        PG = self.o.get("pg", 0)
        spread(gate_loads(), PG, PG + 1); spread(gate_ops(), PG + 2, PG + 3)
        def wtouch(r, half, wv):
            def f():
                I(f"s_cmp_eq_u32 s{SW}, {wv}"); I(f"s_cselect_b32 s99, 0, {self.OOB}")
                I(f"s_lshl_b32 s40, s{SIDX}, 19"); I(f"s_lshl_b32 s39, s{SHEAD}, 8"); I("s_add_u32 s40, s40, s39"); I(f"s_add_u32 s40, s40, {half*32*8192}")
                I("v_lshrrev_b32 v3, 1, v0"); I("v_lshlrev_b32 v3, 13, v3"); I("v_and_b32 v2, 1, v0"); I("v_lshl_add_u32 v3, v2, 7, v3"); I("v_add_u32 v3, s99, v3")
                I(f"buffer_load_dword v1, v3, s[{r}:{r+3}], s40 offen"); vm.issue()
            return f
        for nm, r, dflt in (("tk", RB, -1), ("tv", RC, 1), ("tq", RE, 3)):
            t0 = self.o.get(nm, dflt)
            if t0 >= 0:
                for half in range(2): side.setdefault((t0 + half, 2), []).append(wtouch(r, half, half))
        KN = self.o.get("kn", 8); VD = self.o.get("vd", 0); VN = self.o.get("vn", 5)
        KO = kv_out("K"); VO = kv_out("V")
        spread(sum((p for p, _ in KO), []), TK + 1, min(TK + 3, TQ), ks=(0, 1))
        npk = 2 * (min(TK + 3, TQ) - TK - 1)
        spread([s_ for _, s_ in KO], TK + 1, TK + 1 + KN, dst=late, ks=(2,))
        assert len(late[(TK + 1, 2)]) <= 8 * 2 // npk
        spread(sum((p for p, _ in VO), []), TQ, TQ + 1, ks=(0, 1))
        spread([s_ for _, s_ in VO], TQ + VD, TQ + VD + VN, dst=late, ks=(2,))
        PK_, PV_ = TK + KN + 2, TQ + VD + VN
        assert PK_ <= NS - 5 and PV_ <= NS - 2
        QE = []; EQ = lambda t: QE.append(lambda: I(t))
        EQ(f"s_and_b32 s55, s{SW}, 2"); EQ("s_lshl_b32 s55, s55, 15"); EQ(f"s_add_u32 s55, s55, {QA_LDS}")
        EQ(f"s_and_b32 s54, s{SW}, 1"); EQ("s_lshl_b32 s54, s54, 14"); EQ("s_add_u32 s55, s55, s54")
        EQ("s_lshl_b32 s54, s43, 10"); EQ("s_add_u32 s55, s55, s54"); EQ(f"v_add_u32 v14, s55, v{VST}")
        spread(QE, NS - 1, NS)
        spread([lambda: self.srd(RB, "ssmk", 2*MB), lambda: self.srd(RA, "k", 2*MB), lambda: self.srd(RC, "v", 2*MB), lambda: self.srd(RD, "shift", 4096), lambda: self.srd(RE, "wo", 4*MB)], NS - 2, NS - 1)
        spread([lambda r=r: I(f"v_mov_b64 {v(192+2*r,2)}, 0") for r in range(32) if not 16 <= r < 20], NS - 1, NS)
        side.setdefault((NS - 1, 3), []).extend([lambda r=r: I(f"v_mov_b64 {v(192+2*r,2)}, 0") for r in range(16, 20)])
        def fkoff():
            I(f"s_lshl_b32 s40, s{SHEAD}, 7"); I(f"s_lshl_b32 s41, s{SIDX}, 2"); I("s_add_u32 s40, s40, s41"); I(f"s_add_u32 s40, s40, {FK_OFF}")
        def w0only(fn):
            l = a.label("NP"); I(f"s_cmp_lg_u32 s{SW}, 0"); I(f"s_cbranch_scc1 {l}"); fn(); a.L(l)
        def k0(i):
            I(f"s_lshl_b32 s40, s{SW}, 12"); I("s_add_u32 m0, s40, 0x8000")
            I(f"s_lshl_b32 s41, s{SHEAD}, 20"); I("s_add_u32 s41, s41, s40")
            I(f"buffer_load_dwordx4 v{VST}, s[{RWS}:{RWS+3}], s41 offen offset:{1024*i}{self.ld} lds"); vm.issue()
        self.barrier()
        for f in take(-1, 1): f()
        vm.wait(dtok[0]); self.barrier()
        self.stamp(1)
        def first_reads(t):
            x = rdx(t, 0); w = [rdw(t, dt) for dt in range(4)]
            return [x[0]] + w[0][:2] + [x[1]] + w[0][2:] + w[1], w[2] + w[3]
        L, rest = first_reads(0)
        for f in L: f()
        VPK = self.o.get("vpk", 1); mark = {}; TZ = PG + 4; TS = 10; DS = self.o.get("dsteps", 3)
        pend = take(-1)
        for t in range(NS):
            for k in range(4):
                M = mfs(t, k); n = len(M); PB = []
                if k == 3 and t < NS - 1:
                    assert not pend
                    if t == TS + 2: vm.wait(td); w0only(lambda: self.poll_check(14, 13, "0", rep4(1), RDBG))
                    if t == NS - 3: vm.wait(tp); w0only(lambda: self.poll_check(15, 13, "s53", 1))
                    lg.wait(lg.issued); vm.wait(dtok[t+1])
                    if t == TZ: vm.wait(mark[TZ-2])
                    if t == PK_: vm.wait(mark[TK + KN])
                    if t == PV_: vm.wait(mark[PV_ - 1])
                    self.barrier()
                    ps = self.o.get("pstamp")
                    if ps is not None and 0 <= t - int(ps) + 1 < 13: self.stamp(17 + t - int(ps) + 1); vm.issue(2)
                    if TZ <= t < TZ + 4: PB.append(lambda t=t: self.publish(SF, 1, RDBG, True, idx=t - TZ))
                    if t == PK_: PB.append(lambda: (fkoff(), self.publish(40, 1)))
                    if t == PV_: PB.append(lambda: (fkoff(), self.publish(40, 3)))
                    pend = take(t)
                    if t == NS - 3: pend += [lambda i=i: k0(i) for i in range(4)]
                    nd = len(pend) // (DS + 1)
                else:
                    nd = -(-len(pend) // max(1, (3 if t == 0 else DS) - k))
                D, pend = pend[:nd], pend[nd:]
                fl = []
                if not (t == NS - 1 and k == 3):
                    if k == 3:
                        L, rest = first_reads(t+1); nr = self.o.get("nr", 4)
                        fl.append((0, 7, L + rest[:nr])); rest = rest[nr:]
                    else:
                        if k == 0 and rest: fl.append((-1, 2, rest))
                        fl.append((2, 4, rdx(t, k+1)))
                if PB: fl.append((1, 2, PB))
                if D: fl.append((0, n, D))
                if side.get((t, k)): fl.append((0, n, side[(t, k)]))
                if late.get((t, k)): fl.append((n - 2, n, late[(t, k)]))
                self.stream(M, fl)
                if k == 2: mark[t] = vm.issued
                if t == TS and k == 0:
                    self.oob_sel(); I("v_lshl_add_u32 v13, v0, 2, s99"); td = self.poll_issue(14, 13, "0", RDBG)
                if t == NS - 4 and k == 0:
                    self.oob_sel(); I("v_and_b32 v13, 7, v0"); I("v_lshl_add_u32 v13, v13, 2, s99")
                    I(f"s_lshl_b32 s53, s{SHEAD}, 7"); I(f"s_add_u32 s53, s53, {FK_OFF}")
                    tp = self.poll_issue(15, 13, "s53")
                if t == NS - 1 and k == VPK: self.poll_issue(15, 13, "s53")
            if t == TK: self.stamp(2)
            if t == TV: self.stamp(13)
        assert not items
        self.stamp(3)
        I("v_mov_b32 v16, v13")
        if VPK > 3: self.poll_issue(15, 13, "s53")
        for b, off in pieces("Q"):
            for i in range(4): I(f"v_cvt_pk_bf16_f32 v{b+i}, v{b+2*i}, v{b+2*i+1}")
            I(f"ds_write_b128 v14, {v(b,4)} offset:{off}"); lg.issue()
        self.attn_setup()
        vm.wait(vm.issued); w0only(lambda: self.poll_check(15, 16, "s53", 3))
        lg.wait(lg.issued); self.barrier()

    def attn_setup(self): self.attn(True)
    def attn(self, setup=False):
        a = self.a; I = self.I; vm = self.vm; lg = self.lg
        M16 = "v_mfma_f32_16x16x32_bf16"
        ML = 155648; QA_LDS = 65536; QB_LDS = 131072
        O = 192; QF = 160; NM = 144; S = [112, 128]; PP = [96, 104]; RING = 64; NR = 8; E = 56; PK = 16
        VK, VV, VL16, VSC, LM, THR, NINF, VQ, TMP = 4, 5, 6, 7, 8, 9, 10, 11, 12
        LS, ONES, BIAS = 152, 60, 11.0
        SR, SG, SC1, SC2, SKO, SVO, SKM, SVM, STH = 32, 33, 34, 35, 36, 37, 38, 39, 42
        SFIN, SCA, SM1 = 55, 59, 58
        DC = self.o.get("dmacost", 16); WEV = self.o.get("wev", 4)
        if setup:
            I(f"s_lshr_b32 s{SG}, s{SW}, 2"); I(f"s_mul_i32 s{SR}, s{SG}, 7"); I(f"s_xor_b32 s{SR}, s{SR}, s{SW}")
            I(f"v_lshlrev_b32 v{VL16}, 4, v0")
            I(f"s_lshl_b32 s44, s{SR}, 13"); I(f"s_add_u32 s44, s44, {QB_LDS}"); I(f"v_add_u32 v{VQ}, s44, v{VL16}")
            I(f"s_lshl_b32 s45, s{SG}, 16"); I(f"v_subrev_u32 v{TMP+1}, s45, v{VQ}")
            I(f"s_mov_b32 s{SC1}, s{SIDX}")
            I(f"s_lshl_b32 s{SC2}, s{SIDX}, 1"); I(f"s_sub_u32 s{SC2}, 14, s{SC2}")
            I(f"s_cmp_eq_u32 s{SG}, 1"); I(f"s_cselect_b32 s{SM1}, 0, -1")
            I(f"s_lshl_b32 s43, s{SW}, 12"); I(f"s_lshl_b32 s{SVO}, s{SHEAD}, 20"); I(f"s_add_u32 s{SVO}, s{SVO}, s43")
            I(f"s_add_u32 s{SKO}, s{SVO}, 0x10000"); I(f"s_add_u32 s{SVO}, s{SVO}, 0x8000")
            I(f"s_mov_b32 s{SKM}, s43"); I(f"s_add_u32 s{SVM}, s43, 0x18000")
            I(f"s_mov_b32 s{STH}, 0x40004000"); I(f"v_mov_b32 v{NINF}, 0xff800000")
            for r in range(4): I(f"v_mov_b32 v{ONES+r}, 0x3f803f80"); I(f"v_mov_b64 {v(LS+2*r,2)}, 0")
            I(f"v_and_b32 v{THR}, 15, v0"); I(f"v_lshlrev_b32 v{VSC}, 4, v{THR}"); I(f"s_lshl_b32 s44, s{SR}, 5"); I(f"v_add_u32 v{THR}, s44, v{THR}")
            I(f"v_lshrrev_b32 v{TMP}, 4, v0"); I(f"v_lshl_add_u32 v{VSC}, v{TMP}, 9, v{VSC}"); I(f"v_lshlrev_b32 v{TMP}, 2, v{TMP}"); I(f"v_sub_u32 v{THR}, v{THR}, v{TMP}")
            I(f"v_and_b32 v{VK}, 15, v0"); I(f"v_lshlrev_b32 v{VK}, 4, v{VK}"); I(f"v_lshrrev_b32 v{TMP}, 4, v0"); I(f"v_lshl_add_u32 v{VK}, v{TMP}, {self.GSH}, v{VK}"); I(f"v_add_u32 v{VK}, 0x8000, v{VK}")
            I(f"s_lshl_b32 s{SCA}, s{SIDX}, 2"); I(f"s_add_u32 s{SCA}, s{SCA}, s{SR}"); I(f"s_lshl_b32 s{SCA}, s{SCA}, 5"); I(f"s_add_u32 s{SCA}, s{SCA}, s{SHEAD}")
            I(f"s_lshl_b32 s{SCA}, s{SCA}, 13"); I(f"s_add_u32 s{SCA}, s{SCA}, {CTX_OFF}")
            I(f"s_mov_b32 s{SFIN}, 0")
            I(f"s_lshr_b32 s56, s{SF}, 6"); I("s_lshl_b32 s56, s56, 2"); I(f"s_bfe_u32 s44, s{SF}, 0x20003"); I("s_add_u32 s56, s56, s44"); I("s_lshl_b32 s56, s56, 1")
            I(f"s_bfe_u32 s44, s{SF}, 0x10005"); I("s_add_u32 s56, s56, s44"); I(f"s_and_b32 s57, s{SF}, 7")
            I("s_mov_b32 s41, 0")
            CL = self.o.get("cl", 8)
            I(f"s_lshr_b32 s40, {1 << (CL+2)}, s{SG}"); I(f"s_or_b32 s40, s40, {1 << CL}")
            I(f"s_lshl_b32 s44, 2, s{SW}"); I("s_and_b32 s44, s44, 30"); I("s_or_b32 s40, s40, s44")
            I(f"s_cmp_eq_u32 s{SW}, 0"); I(f"s_cselect_b32 s44, {(1 << 5) | (1 << (CL+4))}, 0"); I("s_or_b32 s40, s40, s44")
            if not self.o.get("noprio"):
                l = a.label("PR"); I(f"s_cmp_eq_u32 s{SG}, 1"); I(f"s_cbranch_scc0 {l}"); I("s_setprio 1"); a.L(l)
            return
        op = lambda t, c=4: (lambda: I(t), c)
        nop = lambda: None
        def loadq(va):
            for ds in range(8):
                I(f"ds_read_b128 {v(QF+4*ds,4)}, v{va} offset:{1024*ds}"); lg.issue()
        def dma4(kind):
            sm, so = (SKM, SKO) if kind == "k" else (SVM, SVO)
            def d(i):
                def f():
                    if i == 0: I(f"s_mov_b32 m0, s{sm}"); I(f"s_xor_b32 s{sm}, s{sm}, 0x8000")
                    I(f"buffer_load_dwordx4 v{VL16}, s[{RWS}:{RWS+3}], s{so} offen offset:{1024*i}{self.ld} lds")
                    if i == 3: I(f"s_add_u32 s{so}, s{so}, 0x10000")
                return (f, DC + (8 if i == 0 else 4 if i == 3 else 0))
            return [d(i) for i in range(4)]
        self.ring_n = 0
        def rd(kind, sl, idx):
            h = {}
            def f():
                slot = self.ring_n % NR; self.ring_n += 1
                h["reg"] = RING + 4*slot
                I(f"ds_read_b128 {v(h['reg'],4)}, v{VK if kind == 'k' else VV} offset:{sl*8192+(idx << self.FSH)}"); h["tok"] = lg.issue()
            return f, h
        def wait_for(R, i):
            if R[i][1]["tok"] <= lg.done: return
            j = i
            while j + 1 < len(R) and j + 1 < i + WEV and "tok" in R[j+1][1] and R[j+1][1]["tok"] > R[i][1]["tok"]: j += 1
            lg.wait(R[j][1]["tok"])
        def otile(dt, qt): return O + 16*(dt >> 1) + 8*qt + 4*(dt & 1)
        def qk(sb, R, base, czero=False):
            def f(m):
                kt, qt, dd = m >> 3, (m >> 2) & 1, m & 3; i = base + 4*kt + dd
                wait_for(R, i); d = v(S[sb] + 8*qt + 4*kt, 4)
                c = ("0" if czero else v(NM + 4*qt, 4)) if dd == 0 else d
                I(f"{M16} {d}, {v(R[i][1]['reg'],4)}, {v(QF + 16*qt + 4*dd, 4)}, {c}")
            return [lambda m=m: f(m) for m in range(16)]
        def pv1(pb, dt, qt, reg): I(f"{M16} {v(otile(dt, qt),4)}, {v(reg,4)}, {v(PP[pb]+4*qt,4)}, {v(otile(dt, qt),4)}")
        def pv(pb, R, base, dts=range(8), exact=False):
            def f(dt, qt):
                if exact: lg.wait(R[base+dt][1]["tok"])
                else: wait_for(R, base + dt)
                pv1(pb, dt, qt, R[base+dt][1]["reg"])
            ls = [lambda qt=qt: I(f"{M16} {v(LS+4*qt,4)}, {v(ONES,4)}, {v(PP[pb]+4*qt,4)}, {v(LS+4*qt,4)}") for qt in range(2)]
            return ls + [lambda dt=dt, qt=qt: f(dt, qt) for dt in dts for qt in range(2)]
        def sm_ops(sb):
            ex = lambda i: op(f"v_exp_f32 v{E+(i&3)}, v{S[sb]+i}", 8)
            cv = lambda j: op(f"v_cvt_pk_bf16_f32 v{PP[sb]+j}, v{E+((2*j)&3)}, v{E+((2*j+1)&3)}")
            p = PP[sb]; L = [ex(0), ex(1)]
            ors = {2: f"v_or3_b32 v{LM}, v{p}, v{p+1}, v{p+2}", 4: f"v_or3_b32 v{LM}, v{LM}, v{p+3}, v{p+4}", 6: f"v_or3_b32 v{LM}, v{LM}, v{p+5}, v{p+6}"}
            for j in range(8):
                L += [ex(2*j+2), cv(j), ex(2*j+3)] if j < 7 else [op("s_nop 0"), cv(j)]
                if j in ors: L.append(op(ors[j]))
            L = [x for i, x in enumerate(L) if i != len(L) - 2]
            L += [op(f"v_or_b32 v{LM}, v{LM}, v{p+7}"), op(f"v_and_b32 v{LM}, s{STH}, v{LM}")]
            return L
        def sched(M, fixed, chain):
            n = len(M); fc = [sum(c for _, c in fixed.get(g, [])) for g in range(n)]
            tot = sum(c for _, c in chain); lo, hi = 0.0, 4000.0
            for _ in range(40):
                lev = (lo + hi) / 2
                if sum(max(0, lev - f) for f in fc) >= tot: hi = lev
                else: lo = lev
            k = 0; credit = 0.0
            for g in range(n):
                M[g]()
                for c, _ in fixed.get(g, []): c()
                credit += max(0, hi - fc[g])
                while k < len(chain) and (g == n - 1 or chain[k][1] <= credit + 2):
                    chain[k][0](); credit -= chain[k][1]; k += 1
        def put(fixed, g, items): fixed.setdefault(g, []).extend(items)
        SPL = self.o.get("spl", 18)
        ool = []
        def rarely(cmp_, body):
            lo = a.label("OOL"); lb = a.label("RET")
            I(cmp_); I(f"s_cbranch_scc1 {lo}"); a.L(lb)
            ool.append((lo, lb, body))
        def mask_ops(sb, koff):
            prs = [46, 48, 50, 52]; L = []
            if koff >= 64:
                L.append(op(f"v_subrev_u32 v{TMP+3}, 64, v{THR}")); tr = TMP + 3; koff -= 64
            elif koff < 0:
                L += [op(f"s_lshl_b32 s45, s{SG}, 6"), op(f"v_subrev_u32 v{TMP+3}, s45, v{THR}")]; tr = TMP + 3; koff = -koff - 1
            else: tr = THR
            for r0 in range(0, 16, 4):
                qt, kt = r0 >> 3, (r0 >> 2) & 1
                for r in range(4): L.append(op(f"v_cmp_lt_i32 s[{prs[r]}:{prs[r]+1}], v{tr}, {16*kt + r + koff - 16*qt}"))
                for r in range(4): L.append(op(f"v_cndmask_b32 v{S[sb]+r0+r}, v{S[sb]+r0+r}, v{NINF}, s[{prs[r]}:{prs[r]+1}]"))
            return L
        def mask_body(sb, koff):
            for c, _ in mask_ops(sb, koff): c()
        def xred(x, y, t0, t1, o):
            L = []
            for sw in ("v_permlane16_swap_b32", "v_permlane32_swap_b32"):
                L += [op(f"v_mov_b32 v{t0}, v{x}"), op(f"v_mov_b32 v{t1}, v{y}"), op("s_nop 0"), op(f"{sw} v{t0}, v{x}"), op(f"{sw} v{t1}, v{y}"),
                      op(f"{o} v{x}, v{x}, v{t0}"), op(f"{o} v{y}, v{y}, v{t1}")]
            return L
        def rowmax(sb):
            for qt in range(2):
                b = S[sb] + 8*qt; d = TMP + qt
                I(f"v_max3_f32 v{d}, v{b}, v{b+1}, v{b+2}"); I(f"v_max3_f32 v{d}, v{d}, v{b+3}, v{b+4}"); I(f"v_max3_f32 v{d}, v{d}, v{b+5}, v{b+6}"); I(f"v_max_f32 v{d}, v{d}, v{b+7}")
            for c, _ in xred(TMP, TMP+1, TMP+2, TMP+3, "v_max_f32"): c()
        def init_max():
            rowmax(0)
            for qt in range(2): I(f"v_max_f32 v{TMP+qt}, {f2u(-1e30)}, v{TMP+qt}"); I(f"v_add_f32 v{TMP+qt}, {f2u(BIAS)}, v{TMP+qt}")
            for r in range(8): I(f"v_sub_f32 v{NM+r}, 0, v{TMP+(r>>2)}")
            return [op(f"v_sub_f32 v{S[0]+r}, v{S[0]+r}, v{TMP+(r>>3)}") for r in range(16)]
        rare = []
        def check(sb, other=True):
            lr = a.label("RARE"); lb = a.label("BACK")
            I(f"v_cmp_ne_u32 vcc, 0, v{LM}")
            if self.o.get("a_nocheck"): I("s_mov_b64 vcc, 0")
            I(f"s_cbranch_vccnz {lr}"); a.L(lb)
            rare.append((lr, lb, sb, other))
        def fin_body():
            I(f"s_mov_b32 s{SFIN}, 2")
            I(f"v_rcp_f32 v{TMP}, v{LS}"); I(f"v_rcp_f32 v{TMP+2}, v{LS+4}"); I(f"v_mov_b32 v{TMP+1}, v{TMP}"); I(f"v_mov_b32 v{TMP+3}, v{TMP+2}")
            for r in range(4): I(f"v_mov_b64 {v(LS+2*r,2)}, 0")
            for q in range(8):
                for i in range(8*q, 8*q+8, 2): I(f"v_pk_mul_f32 {v(O+i,2)}, {v(O+i,2)}, {v(TMP+2*(q&1),2)}")
                for i in range(4): I(f"v_cvt_pk_bf16_f32 v{PK+4*q+i}, v{O+8*q+2*i}, v{O+8*q+2*i+1}")
                for i in range(8*q, 8*q+8, 2): I(f"v_mov_b64 {v(O+i,2)}, 0")
        coff = lambda q: (q & 3)*1024
        def st_body():
            I(f"s_add_u32 s44, s{SCA}, 4096"); I(f"s_mov_b32 s{SFIN}, 3")
            for q in range(8):
                I(f"buffer_store_dwordx4 {v(PK+4*q,4)}, v{VL16}, s[{RWS}:{RWS+3}], s{SCA if q < 4 else 44} offen offset:{coff(q)}{self.st}")
        TR = [RING + 4*(2+i) for i in range(6)]
        def head(R, vmw, with_mfma=True, post=(), more=(), pre=None):
            rf = [(f, 4) for f, h in R]; sm2 = sm_ops(0)[SPL:]
            M = [lambda dt=dt, qt=qt: pv1(1, dt, qt, TR[dt-2]) for dt in range(2, 8) for qt in range(2)] if with_mfma else [nop]*12
            if with_mfma: I("s_waitcnt lgkmcnt(4)")
            nb = self.o.get("nb", 4); more = list(more); m0 = len(more) // 3
            if pre is not None: more = list(pre) + more; m0 = len(pre)
            sched(M[:4], {}, sm2[:nb] + more[:m0])
            vmw(); I("s_waitcnt lgkmcnt(0)"); lg.mark_all_done(); self.barrier(); self.ring_n = 0
            fx = {0: rf[0:2], 1: rf[2:4], 2: rf[4:5], 4: rf[5:6], 6: rf[6:7], 7: [(nop, 8 + 8*len(post))]}
            sched(M[4:], fx, sm2[nb:] + more[m0:])
            check(0)
            for p in post: p()
        def mk_reads():
            return ([rd("k", 0, i) for i in range(8)] + [rd("v", 0, i) for i in range(8)] +
                    [rd("k", 1, i) for i in range(8)] + [rd("v", 1, i) for i in range(8)])
        def last_use(F):
            b = (0, 18, 34, 52)[F >> 3]; f = F & 7
            return b + (2*f + 1 if (F >> 3) & 1 else 8*(f >> 2) + 4 + (f & 3))
        def mid(R, dmas, kx, mb=None, trans=False, endops=(), early=(), g=0):
            rf = [(f, 4) for f, h in R]
            fa = {0: [rf[7]]}; fb = {}
            G_ = g
            for g, e in zip((1, 3, 9, 11), early): put(fa, g, [e])
            for F in range(8, 32):
                g = last_use(F - 8) + 1
                put(fa, g, [rf[F]]) if g < 34 else put(fb, g - 34, [rf[F]])
            D = sum((dma4(k) for k in dmas), [])
            st_ = self.o.get("gst", 4); of_ = self.o.get("gof", 2)
            gaps = [2 + of_*G_*2 + 2*st_*n for n in range(4)] if len(D) == 4 else [2 + of_*G_ + st_*n for n in range(8)]
            for g, d in zip(gaps, D): put(fa, g, [d]) if g < 33 else put(fb, g - 33, [d])
            PT = self.o.get("pt", 0)
            if PT and G_ == 0:
                pts = {1: [(0, 24, 2), (1, 21, 0)], 2: [(0, 8, 2), (0, 24, 0), (1, 7, 2), (1, 21, 0)], 3: [(0, 0, 2), (0, 8, 0), (0, 16, 2), (0, 24, 0), (0, 32, 2), (1, 7, 0), (1, 15, 2), (1, 21, 0)],
                       4: [(0, 16, 2), (1, 21, 0)], 5: [(0, 32, 2), (1, 21, 0)]}[PT]
                for part, g, p in pts: put(fb if part else fa, g, [op(f"s_setprio {p}")])
            put(fa, 33, [(nop, 16)])
            sched(qk(0, R, 0, trans) + pv(0, R, 8), fa, sm_ops(1))
            check(1, other=not trans)
            if mb: mb()
            pre = []
            if trans:
                I(f"s_mov_b32 s{SFIN}, 1")
                pre = init_max()
            put(fb, 18, [op(f"v_xor_b32 v{VV}, 0x10000, v{VK}")] + kx)
            for n, e in enumerate(endops): put(fb, 11 - n, [e])
            put(fb, 21, [(nop, 12)])
            sched(qk(1, R, 16) + pv(1, R, 24, range(2)), fb, pre + sm_ops(0)[:SPL])
            assert [R[26+i][1]["reg"] for i in range(6)] == TR
        vm4 = lambda: I("s_waitcnt vmcnt(4)")
        def vm08():
            lo = a.label("W8"); lb = a.label("W8R")
            I(f"s_cmp_eq_u32 s{SFIN}, 3"); I(f"s_cbranch_scc1 {lo}"); I("s_waitcnt vmcnt(0)"); a.L(lb)
            def b(): I("s_waitcnt vmcnt(8)"); I(f"s_mov_b32 s{SFIN}, 4")
            ool.append((lo, lb, b))
        m1 = lambda sb, ko: (lambda: rarely(f"s_cmp_eq_u32 s{SC1}, s{SM1}", lambda: mask_body(sb, ko)))
        fin = lambda: rarely(f"s_cmp_eq_u32 s{SFIN}, 1", fin_body)
        sta = (lambda: rarely(f"s_cmp_eq_u32 s{SFIN}, 2", st_body), 8)
        KR, VR, SH, WO, AD = 16, 23, 28, 32, 40
        def side_loads():
            L = []; E = lambda t: L.append(op(t)); V = lambda t: L.append(op(t, DC))
            E(f"v_lshrrev_b32 v{AD}, 5, v0"); E(f"v_and_b32 v{AD+1}, 31, v0"); E(f"v_lshlrev_b32 v{AD+2}, 12, v{AD}"); E(f"v_lshl_add_u32 v{AD+2}, v{AD+1}, 2, v{AD+2}")
            E(f"s_lshr_b32 s60, s{SF}, 1"); E("s_lshl_b32 s60, s60, 15"); E(f"s_and_b32 s61, s{SF}, 1"); E("s_lshl_b32 s61, s61, 9"); E("s_add_u32 s60, s60, s61")
            E(f"s_lshl_b32 s61, s{SW}, 6"); E("s_add_u32 s60, s60, s61"); E("s_add_u32 s61, s60, 16384")
            E(f"v_lshrrev_b32 v{AD+3}, 4, v0"); E(f"v_lshlrev_b32 v{AD+3}, 12, v{AD+3}"); E(f"v_and_b32 v{AD+4}, 15, v0"); E(f"v_lshl_add_u32 v{AD+3}, v{AD+4}, 2, v{AD+3}")
            for j in range(8): V(f"buffer_load_dword v{WO+j}, v{AD+3}, s[{RE}:{RE+3}], s{60+(j>>2)} offen offset:{1024*(j&3)}")
            E("s_lshr_b32 s62, s2, 3"); E("s_lshl_b32 s62, s62, 16"); E(f"s_lshl_b32 s63, s{SW}, 13"); E("s_add_u32 s62, s62, s63")
            E("s_and_b32 s63, s2, 7"); E("s_lshl_b32 s63, s63, 7"); E("s_add_u32 s62, s62, s63"); E(f"v_add_u32 v{AD+3}, s62, v{AD+2}")
            for i in range(3): E(f"v_subrev_u32 v{AD+4+i}, {3072-1024*i}, v{AD+3}")
            E("s_lshl_b32 s63, s63, 2"); E(f"v_lshl_add_u32 v{AD+7}, v{AD+1}, 4, s63")
            for i in range(3): V(f"buffer_load_dword v{KR+i}, v{AD+4+i}, s[{RA}:{RA+3}], 0 offen")
            for i in range(4): V(f"buffer_load_dword v{KR+3+i}, v{AD+3}, s[{RA}:{RA+3}], 0 offen offset:{1024*i}")
            for i in range(4): V(f"buffer_load_dword v{VR+i}, v{AD+3}, s[{RC}:{RC+3}], 0 offen offset:{1024*i}")
            V(f"buffer_load_dwordx4 {v(SH,4)}, v{AD+7}, s[{RD}:{RD+3}], 0 offen")
            return L
        NSL = 21
        def side_math():
            L = []; E = lambda t: L.append(op(t)); V = lambda t: L.append(op(t, DC))
            W2 = 48
            E("s_mov_b32 s60, 0x05040100"); E("s_mov_b32 s61, 0x07060302")
            for j in range(4): E(f"v_perm_b32 v{W2+j}, v{WO+2*j+1}, v{WO+2*j}, s60")
            for j in range(4): E(f"v_perm_b32 v{W2+4+j}, v{WO+2*j+1}, v{WO+2*j}, s61")
            E(f"s_and_b32 s60, s{SF}, 1"); E("s_lshl_b32 s60, s60, 2"); E(f"s_lshr_b32 s61, s{SW}, 1"); E("s_add_u32 s60, s60, s61"); E("s_lshl_b32 s60, s60, 19")
            E(f"s_lshr_b32 s61, s{SF}, 1"); E("s_lshl_b32 s61, s61, 12"); E("s_add_u32 s60, s60, s61"); E(f"s_and_b32 s61, s{SW}, 1"); E("s_lshl_b32 s61, s61, 11")
            E("s_add_u32 s60, s60, s61"); E(f"s_add_u32 s60, s60, {WOT_OFF}")
            for mt in range(2): V(f"buffer_store_dwordx4 {v(W2+4*mt,4)}, v{VL16}, s[{RWS}:{RWS+3}], s60 offen offset:{1024*mt}{self.st}")
            KU, SU, OO, VU, PQ = 32, 42, 48, 39, 52
            for c in range(2):
                def unp(d, sreg, half): E(f"v_lshlrev_b32 v{d}, 16, v{sreg}" if half == 0 else f"v_and_b32 v{d}, 0xffff0000, v{sreg}")
                for i in range(7): unp(KU+i, KR+i, c)
                for j in range(4): unp(SU+j, SH + 2*c + (j >> 1), j & 1)
                for o in range(4):
                    E(f"v_mul_f32 v{OO+o}, v{KU+o}, v{SU+3}")
                    for j in (2, 1, 0): E(f"v_fmac_f32 v{OO+o}, v{KU+o+3-j}, v{SU+j}")
                    unp(VU, VR+o, c)
                    E(f"v_mul_f32 v{OO+o}, v{OO+o}, v{VU}")
                d = PQ + 2*(1-c)
                E(f"v_cvt_pk_bf16_f32 v{d}, v{OO+3}, v{OO+2}"); E(f"v_cvt_pk_bf16_f32 v{d+1}, v{OO+1}, v{OO}")
            E(f"v_lshlrev_b32 v{AD+1}, 5, v{AD+1}"); E(f"v_lshl_add_u32 v{AD+1}, v{AD}, 4, v{AD+1}")
            E(f"v_permlane32_swap_b32 v{PQ+2}, v{PQ}"); E(f"v_permlane32_swap_b32 v{PQ+3}, v{PQ+1}")
            E("s_lshr_b32 s60, s2, 3"); E("s_lshl_b32 s60, s60, 16"); E(f"s_lshl_b32 s61, s{SW}, 13"); E("s_add_u32 s60, s60, s61")
            E("s_and_b32 s61, s2, 7"); E("s_lshl_b32 s61, s61, 10"); E("s_add_u32 s60, s60, s61"); E(f"s_add_u32 s60, s60, {KVT_OFF}")
            V(f"buffer_store_dwordx4 {v(PQ,4)}, v{AD+1}, s[{RWS}:{RWS+3}], s60 offen{self.st}")
            return L
        CL = self.o.get("cl", 8)
        def touch(k):
            if k in (1, 2):
                I(f"s_lshl_b32 s60, s{SF}, 14")
                if k == 2: I("s_add_u32 s60, s60, 8192")
                I("v_lshlrev_b32 v16, 7, v0"); r = RE
            elif k in (3, 4):
                I("s_lshr_b32 s60, s2, 3"); I("s_lshl_b32 s60, s60, 16"); I("s_and_b32 s61, s2, 7"); I("s_lshl_b32 s61, s61, 7"); I("s_add_u32 s60, s60, s61")
                I("v_lshlrev_b32 v16, 10, v0"); r = RA if k == 3 else RC
            else:
                I(f"s_lshl_b32 s60, s{SF}, 13"); I("v_lshlrev_b32 v16, 7, v0"); r = RB
            I(f"buffer_load_dword v1, v16, s[{r}:{r+3}], s60 offen")
        LSITE = a.label("SITE")
        def site_code():
            a.L(LSITE)
            def ret(): I("s_nop 1"); I("s_setpc_b64 s[76:77]")
            l = a.label("SN"); I(f"s_cmp_lg_u32 s41, {CL}"); I(f"s_cbranch_scc1 {l}")
            for c, _ in side_loads(): c()
            ret(); a.L(l)
            l = a.label("SN"); I(f"s_add_u32 s44, s41, s{SG}"); I(f"s_cmp_lg_u32 s44, {CL+2}"); I(f"s_cbranch_scc1 {l}")
            for c, _ in side_math(): c()
            ret(); a.L(l)
            for k in range(1, 6):
                l = a.label("SN")
                I(f"s_cmp_lg_u32 s41, {k}"); I(f"s_cbranch_scc1 {l}")
                touch(k); ret(); a.L(l)
            I(f"s_lshl_b32 s44, s{SF}, 2"); I(f"s_add_u32 s44, s44, {FY_OFF}")
            sv = self.save(); self.publish(44, 2); self.restore(sv)
            ret()
        def spf():
            I("s_add_u32 s41, s41, 1"); rarely("s_bitcmp1_b32 s40, s41", lambda: I(f"s_call_b64 s[76:77], {LSITE}"))
        spub = (spf, 12)
        def snap():
            I(f"s_mov_b32 s61, {FY_OFF}"); I(f"buffer_load_dwordx4 v[52:55], v{VL16}, s[{RWS}:{RWS+3}], s61 offen sc1")
        def side_check():
            lo = a.label("SCK"); lb = a.label("SCR")
            def test():
                I("v_and_b32 v52, v52, v53"); I("v_and_b32 v54, v54, v55"); I("v_and_b32 v52, v52, v54"); I("v_and_b32 v52, 2, v52"); I("v_cmp_ne_u32 vcc, 2, v52")
            test(); I(f"s_cbranch_vccnz {lo}"); a.L(lb)
            def spin():
                lp = a.label("SPL")
                I("s_mov_b32 s99, 20000"); a.L(lp)
                I("s_sleep 2"); I(f"buffer_load_dwordx4 v[52:55], v{VL16}, s[{RWS}:{RWS+3}], s61 offen sc1"); I("s_waitcnt vmcnt(0)")
                test(); I(f"s_cbranch_vccz {lb}")
                I("s_sub_u32 s99, s99, 1"); I("s_cmp_lg_u32 s99, 0"); I(f"s_cbranch_scc1 {lp}")
            ool.append((lo, lb, spin))
        m2 = lambda sb, ko: (lambda: rarely(f"s_cmp_eq_u32 s{SC2}, 0", lambda: (snap(), mask_body(sb, ko))))
        LEV = a.label("EVEN"); LODM = a.label("ODDM"); LTRANS = a.label("TRANS"); LP2 = a.label("P2"); LP2B = a.label("P2B"); LDRAIN = a.label("DRAIN")
        self.stamp(8)
        self.ring_n = 0
        R = [rd("k", 0, i) for i in range(8)] + [rd("k", 1, i) for i in range(8)]
        def qrd(i):
            I(f"ds_read_b128 {v(QF+4*i,4)}, v{TMP+1} offset:{1024*i}"); return lg.issue()
        for i in range(4): qrd(i); R[i][0]()
        for i in range(4, 8): tq = qrd(i)
        D = dma4("v") + dma4("k")
        fx = {g: [(R[4+g][0], 4)] for g in range(4)}
        put(fx, 3, [(lambda: lg.wait(tq), 4)])
        for F in range(8, 15): put(fx, last_use(F - 8) + 1, [(R[F][0], 4)])
        for n, d in enumerate(D): put(fx, 2*n, [d])
        sched(qk(0, R, 0, True), fx, [])
        m1(0, 0)()
        pre = init_max()
        fx = {0: [(R[15][0], 4)], 8: [op(f"v_xor_b32 v{VV}, 0x10000, v{VK}"), op(f"v_xor_b32 v{VK}, 0x4000, v{VK}")]}
        sched(qk(1, R, 8), fx, pre + sm_ops(0)[:SPL])
        R = mk_reads()
        head(R, vm4, False, post=[m1(1, 32)])
        svm = self.save()
        self.stamp(9)
        LOD = [a.label("ODD0"), a.label("ODD1")]
        I(f"s_cmp_eq_u32 s{SG}, 1"); I(f"s_cbranch_scc1 {LOD[1]}"); I(f"s_branch {LOD[0]}")
        vm0 = lambda: I("s_waitcnt vmcnt(0)")
        def loops(g):
            LEV = a.label("EVEN"); LP2 = a.label("P2")
            mm = (lambda sb, ko: m1(sb, ko)) if g else (lambda sb, ko: None)
            a.L(LEV)
            R = mk_reads(); head(R, vm4)
            mid(R, "k", [op(f"v_xor_b32 v{VK}, 0x4000, v{VK}")], mb=mm(0, 0), early=[spub], g=g)
            R = mk_reads(); head(R, vm4, post=[m1(1, 32)] if g else [])
            assert self.lg.issued - self.lg.done == svm[2] - svm[3]
            a.L(LOD[g])
            mid(R, "v", [op(f"v_xor_b32 v{VK}, 0xc000, v{VK}")], mb=mm(0, 64), endops=[op(f"s_sub_u32 s{SC1}, s{SC1}, 1")], early=[spub], g=g)
            I(f"s_cmp_lg_u32 s{SC1}, -1"); I(f"s_cbranch_scc1 {LEV}")
            self.stamp(14)
            if g:
                loadq(VQ); I("s_waitcnt lgkmcnt(0)"); I(f"v_xor_b32 v{VK}, 0x4000, v{VK}")
            R = mk_reads(); head(R, vm4, more=mask_ops(1, 96) if g else ())
            mid(R, "k", [op(f"v_xor_b32 v{VK}, 0x8000, v{VK}")], mb=m2(0, -1), trans=bool(g), early=[spub], g=g)
            self.stamp(15)
            I(f"s_cmp_eq_u32 s{SC2}, 0"); I(f"s_cbranch_scc1 {LDRAIN}")
            a.L(LP2)
            R = mk_reads(); head(R, vm08 if g else vm0)
            mid(R, "kv", [op(f"v_xor_b32 v{VK}, 0x8000, v{VK}")], mb=m2(0, -1), endops=[sta] if g else [],
                early=[spub] + ([(fin, 8)] if g else []) + [op(f"s_sub_u32 s{SC2}, s{SC2}, 1")], g=g)
            I(f"s_cmp_lg_u32 s{SC2}, 0"); I(f"s_cbranch_scc1 {LP2}")
        loops(1); I(f"s_branch {LDRAIN}")
        loops(0)
        a.L(LDRAIN)
        self.stamp(10)
        R2 = [rd("v", 0, i) for i in range(8)] + [rd("v", 1, i) for i in range(8)]
        rf = [(f, 4) for f, h in R2]
        ts, ts2, ts3 = self.tail_setup()
        tsa = [x for x in ts if x[1] == 4]; tsl = [x for x in ts if x[1] != 4]
        mk_ = mask_ops(1, -33)
        head(R2, lambda: (vm08(), side_check(), tsl[0][0](), tsl[1][0]()), post=[fin, sta[0]], pre=tsa[:8], more=tsa[8:16] + [tsl[2]] + mk_)
        ts = tsa[16:]
        if self.o.get("dst"): self.stamp(17)
        pre = []; E_ = lambda t: pre.append(op(t))
        E_(f"s_add_u32 s44, s{SWK}, {ML}"); E_(f"v_add_u32 v54, s44, v{VL16}")
        E_(f"s_lshl_b32 s46, s{SW}, 13"); E_(f"v_add_u32 v55, s46, v{VL16}")
        E_(f"s_sub_u32 s54, 15, s{SIDX}"); E_(f"s_lshl_b32 s54, s54, 2"); E_(f"s_add_u32 s54, s54, s{SR}"); E_("s_lshl_b32 s54, s54, 5"); E_(f"s_add_u32 s54, s54, s{SHEAD}")
        E_("s_lshl_b32 s54, s54, 13"); E_(f"s_lshl_b32 s44, s{SG}, 12"); E_("s_add_u32 s54, s54, s44"); E_(f"s_add_u32 s54, s54, {CTX_OFF}")
        def lsum():
            def wml():
                I(f"ds_write_b128 v54, {v(150,4)}"); lg.issue()
            return [op(f"v_mov_b32 v150, v{NM}"), op(f"v_mov_b32 v{LS+1}, v{LS+4}"), (wml, 4)]
        def osend(g, i):
            def f():
                I(f"ds_write_b128 v55, {v(O+32*(1-g)+4*i,4)} offset:{1024*i}"); lg.issue()
            return (f, 16)
        lj = a.label("MGJ"); LMG = [a.label("MG0"), a.label("MG1")]; LFB = a.label("FB1"); LSK = a.label("SKIP"); LS1 = a.label("SK1")
        I(f"s_lshl_b32 s45, s{SG}, 1"); I(f"s_sub_u32 s45, s{SR}, s45"); I("s_cmp_lt_i32 s45, 1"); I(f"s_cbranch_scc1 {LSK}")
        svd = self.save(); rnd = self.ring_n
        setup_ = ts + pre + ts3; n8 = (len(setup_) + 15) // 16
        fx = {g: setup_[g*n8:(g+1)*n8] for g in range(16)}
        for F in range(7, 15): put(fx, 2*(F - 7) + (2 if F > 7 else 0), [rf[F]])
        sched(pv(0, R2, 0), fx, sm_ops(1))
        check(1)
        rf[15][0]()
        if self.o.get("dst"): self.stamp(20)
        I(f"s_cmp_eq_u32 s{SG}, 1"); I(f"s_cbranch_scc1 {LFB}")
        sv2 = self.save(); PR = 64
        for g in (0, 1):
            if g: a.L(LFB); self.restore(sv2)
            own = O + 32*g; snd = O + 32*(1-g)
            dts = list(range(4*(1-g), 4*(1-g)+4)) + list(range(4*g, 4*g+4))
            fx = {10 + i: [osend(g, i)] for i in range(8)}
            put(fx, 8, lsum())
            sched(pv(1, R2, 8, dts, True), fx, self.tail_valu())
            a.L(LMG[g])
            if self.o.get("dst"): self.stamp(18)
            I(f"v_xor_b32 v54, 0x1c00, v54"); I(f"v_xor_b32 v55, 0xe000, v55")
            I("s_waitcnt lgkmcnt(0)"); lg.mark_all_done(); self.barrier()
            if self.o.get("dst"): self.stamp(19)
            I(f"ds_read_b128 {v(96,4)}, v54"); t0 = lg.issue()
            tk = []
            for i in range(8):
                I(f"ds_read_b128 {v(PR+4*i,4)}, v55 offset:{1024*i}"); tk.append(lg.issue())
            lg.wait(t0)
            for q in range(2):
                I(f"v_min_f32 v100, v{150+q}, v{96+q}"); I(f"v_sub_f32 v101, v100, v{150+q}"); I(f"v_sub_f32 v102, v100, v{96+q}")
                I("v_exp_f32 v101, v101"); I("v_exp_f32 v102, v102")
                I(f"v_mul_f32 v103, v101, v{LS+q}"); I(f"v_fmac_f32 v103, v102, v{98+q}"); I("v_rcp_f32 v103, v103")
                b = 104 + 4*q
                I(f"v_mul_f32 v{b}, v101, v103"); I(f"v_mul_f32 v{b+1}, v101, v103"); I(f"v_mul_f32 v{b+2}, v102, v103"); I(f"v_mul_f32 v{b+3}, v102, v103")
            tw = self.tail_writes()
            for q in range(4):
                b = 104 + 4*(q & 1)
                for i in range(8*q, 8*q+8, 2): I(f"v_pk_mul_f32 {v(own+i,2)}, {v(own+i,2)}, {v(b,2)}")
                lg.wait(tk[2*q+1])
                if not self.o.get("twe"):
                    for c in tw[3*q:3*q+3]: c()
                for i in range(8*q, 8*q+8, 2): I(f"v_pk_fma_f32 {v(own+i,2)}, {v(PR+i,2)}, {v(b+2,2)}, {v(own+i,2)}")
                for i in range(4): I(f"v_cvt_pk_bf16_f32 v{snd+4*q+i}, v{own+8*q+2*i}, v{own+8*q+2*i+1}")
                I(f"buffer_store_dwordx4 {v(snd+4*q,4)}, v{VL16}, s[{RWS}:{RWS+3}], s54 offen offset:{coff(q)}{self.st}"); self.tctx = vm.issue()
            if self.o.get("twe"):
                for c in tw: c()
            if not g: I(f"s_branch {lj}")
        def skip_path():
            keep = self.save(); tctx = self.tctx; th = self.th
            a.L(LSK); self.restore(svd); self.ring_n = rnd
            I("s_cmp_lt_i32 s45, 0"); I(f"s_cbranch_scc1 {LS1}")
            rf[7][0]()
            for f in pv(0, R2[:8], 0): f()
            a.L(LS1)
            for c, _ in setup_ + lsum() + self.tail_valu(): c()
            l1 = a.label("SG1"); I(f"s_cmp_eq_u32 s{SG}, 1"); I(f"s_cbranch_scc1 {l1}")
            for g in (0, 1):
                if g: a.L(l1)
                for i in range(8): osend(g, i)[0]()
                I(f"s_branch {LMG[g]}")
            self.restore(keep); self.tctx = tctx; self.th = th
        a.L(lj)
        I("s_setprio 0")
        self.stamp(4)
        def cold():
            skip_path()
            site_code()
            for (lo, lb, body) in ool:
                a.L(lo); body(); I(f"s_branch {lb}")
            for (lr, lb, sb, other) in rare:
                a.L(lr)
                I("s_nop 15")
                rowmax(sb)
                for q in range(2): I(f"v_add_f32 v{TMP+q}, {f2u(BIAS)}, v{TMP+q}"); I(f"v_max_f32 v{TMP+q}, 0, v{TMP+q}"); I(f"v_exp_f32 v{TMP+2+q}, -v{TMP+q}")
                for r in range(8): I(f"v_sub_f32 v{NM+r}, v{NM+r}, v{TMP+(r>>2)}")
                for r in range(16): I(f"v_sub_f32 v{S[sb]+r}, v{S[sb]+r}, v{TMP+(r>>3)}")
                if other:
                    for r in range(16): I(f"v_sub_f32 v{S[1-sb]+r}, v{S[1-sb]+r}, v{TMP+(r>>3)}")
                for r in range(64): I(f"v_mul_f32 v{O+r}, v{O+r}, v{TMP+2+((r>>3)&1)}")
                for r in range(8): I(f"v_mul_f32 v{LS+r}, v{LS+r}, v{TMP+2+(r>>2)}")
                for c, _ in sm_ops(sb): c()
                I("s_nop 1"); I(f"s_branch {lb}")
        self.attn_rare = cold

    HB = 65536; HC = 4416; XB = 136192; YB = 148480
    SC, SJ, SB, SCH, SHB_, SWO, SCX = 34, 35, 36, 37, 38, 39, 40
    WS_ = [16, 24, 32, 40, 176, 184, 56, 80, 88, 96, 104, 144, 152, 160]
    CS_ = [168, 112, 120, 128, 136, 64, 72]
    NL = 4
    def tail_setup(self):
        I = self.I; L = []; E = lambda t: L.append((lambda: I(t), 4))
        SC, SJ, SB, SCH, SHB_, SWO, SCX = self.SC, self.SJ, self.SB, self.SCH, self.SHB_, self.SWO, self.SCX
        self.wtok = {}; self.wslot = dict(enumerate(self.WS_))
        E(f"s_lshr_b32 s{SC}, s{SW}, 2"); E(f"s_and_b32 s{SJ}, s{SW}, 3")
        E(f"s_lshl_b32 s{SCH}, s{SF}, 1"); E(f"s_add_u32 s{SCH}, s{SCH}, s{SC}"); E(f"s_lshl_b32 s{SCH}, s{SCH}, 12")
        E(f"s_lshl_b32 s60, s{SJ}, 10"); E("v_add_u32 v50, s60, v6"); E("v_subrev_u32 v51, 16, v50")
        E(f"s_lshl_b32 s63, s{SW}, 18"); E(f"s_lshl_b32 s62, s{SF}, 5"); E("s_add_u32 s63, s63, s62"); E(f"s_add_u32 s63, s63, {KVT_OFF}")
        E("v_lshrrev_b32 v48, 1, v0"); E("v_and_b32 v158, 1, v0" if False else "v_and_b32 v3, 1, v0"); E("v_lshlrev_b32 v49, 13, v48"); E("v_lshl_add_u32 v49, v3, 4, v49")
        def ld(t):
            def f(): I(t); self.th = self.vm.issue()
            L.append((f, 16))
        ld(f"buffer_load_dwordx4 {v(160,4)}, v51, s[{RB}:{RB+3}], s{SCH} offen")
        ld(f"buffer_load_dwordx4 {v(164,4)}, v50, s[{RB}:{RB+3}], s{SCH} offen")
        ld(f"buffer_load_dwordx4 {v(168,4)}, v49, s[{RWS}:{RWS+3}], s63 offen{self.ld}")
        E(f"s_lshl_b32 s{SWO}, s57, 19"); E(f"s_lshl_b32 s60, s{SW}, 15"); E(f"s_add_u32 s{SWO}, s{SWO}, s60"); E(f"s_add_u32 s{SWO}, s{SWO}, {WOT_OFF}")
        E("s_and_b32 s60, s56, 1"); E("s_lshl_b32 s60, s60, 18"); E(f"s_add_u32 s{SWO}, s{SWO}, s60")
        L2 = [(lambda i=i: self.wload(i), 36) for i in range(self.o.get("we", 0))]
        L3 = []; L, Lx = L3, L
        E = lambda t: L3.append((lambda: I(t), 4))
        E(f"s_mul_i32 s{SB}, s{SC}, 6144"); E(f"s_add_u32 s{SB}, s{SB}, {self.XB}")
        E(f"s_mul_i32 s{SHB_}, s{SC}, {8*self.HC}"); E(f"s_add_u32 s{SHB_}, s{SHB_}, {self.HB}")
        E(f"s_xor_b32 s{SCX}, s56, 1"); E(f"s_lshl_b32 s{SCX}, s{SCX}, 19"); E(f"s_lshl_b32 s60, s{SW}, 14"); E(f"s_add_u32 s{SCX}, s{SCX}, s60"); E(f"s_add_u32 s{SCX}, s{SCX}, {CTX_OFF}")
        E("s_and_b32 s60, s56, 1"); E("s_lshl_b32 s60, s60, 17"); E(f"s_add_u32 s{SCX}, s{SCX}, s60")
        return Lx, L2, L3
    def wreg(self, i):
        return self.WS_[i % len(self.WS_)]
    def wload(self, i):
        I = self.I; r = self.wslot[i]
        I(f"s_add_u32 s61, s{self.SWO}, {i*2048}")
        for mt in range(2):
            I(f"buffer_load_dwordx4 {v(r+4*mt,4)}, v6, s[{RWS}:{RWS+3}], s61 offen offset:{mt*1024}{self.ld}"); self.wtok[i] = self.vm.issue()
    def tail_valu(self):
        I = self.I; HC = self.HC; L = []; E = lambda t: L.append((lambda: I(t), 4))
        SJ, SB, SHB_ = self.SJ, self.SB, self.SHB_
        Ee, Eo, Oe, Oo = 160, 113, 122, 131
        E(f"s_add_u32 s60, s{SHB_}, 64"); E("v_add_u32 v138, s60, v50")
        E("v_and_b32 v51, 3, v48"); E("v_mul_u32_u24 v139, 1536, v51"); E("v_lshrrev_b32 v53, 2, v48"); E("v_lshl_add_u32 v139, v53, 4, v139")
        E("v_and_b32 v53, 1, v0"); E("v_mul_u32_u24 v53, 6144, v53"); E(f"s_lshl_b32 s60, s{SW}, 7"); E(f"s_add_u32 s60, s60, {self.XB + 512}"); E("v_add3_u32 v139, v139, v53, s60")
        E("v_and_b32 v51, 3, v0")
        for r in range(2): E(f"v_mov_b64 {v(172+2*r,2)}, 0")
        E("v_bfe_u32 v140, v0, 2, 3"); E(f"v_mul_u32_u24 v140, {HC}, v140"); E("v_lshl_add_u32 v140, v51, 4, v140"); E(f"v_add_u32 v140, s{SHB_}, v140")
        E(f"s_mul_i32 s60, s{SJ}, 1536"); E(f"s_add_u32 s60, s60, s{SB}"); E("v_lshl_add_u32 v141, v0, 3, s60")
        E("s_waitcnt vmcnt(1)")
        for k in range(7): E(f"v_alignbit_b32 v{Oe+k}, v{Ee+k+1}, v{Ee+k}, 16")
        for k in range(1, 7): E(f"v_alignbit_b32 v{Oo+k}, v{Ee+k+1}, v{Ee+k}, 16")
        for k in range(1, 7): E(f"v_mov_b32 v{Eo+k}, v{Ee+k}")
        return L
    def tail_writes(self):
        I = self.I; lg = self.lg; HC = self.HC; L = []
        Ee, Eo, Oe, Oo = 160, 113, 122, 131
        def W(t, pre=None):
            def f():
                if pre: pre()
                I(t); lg.issue()
            L.append(f)
        for r in range(8):
            sft = 1 + r; k = sft >> 1
            base = ((Oe, Oo) if sft & 1 else (Ee, Eo))[k & 1]
            W(f"ds_write_b128 v138, {v(base+k,4)} offset:{r*HC}")
        W(f"ds_write_b128 v140, {v(172,4)}"); W(f"ds_write_b64 v141, {v(172,2)}")
        W(f"ds_write_b128 v139, {v(168,4)}", lambda: self.vm.wait(self.th))
        return L
    def tailp(self):
        a = self.a; I = self.I; vm = self.vm; lg = self.lg
        HB, HC, YB = self.HB, self.HC, self.YB
        SC, SJ, SB, SCH, SHB_, SWO, SCX = self.SC, self.SJ, self.SB, self.SCH, self.SHB_, self.SWO, self.SCX
        ACC = 192; FRS = [224, 240, 64]; RD_ = 224; OACC = 192; YT = self.XB
        VL16, VA, VB, T, VP, VPA, VO, GR, VW1 = 6, 4, 5, 12, 7, 8, 9, 10, 11
        WSL = [16, 24, 32, 40, 48, 56] + list(range(80, 160, 8)); CSL = [160, 168, 176, 184, 64, 72]
        assert len(WSL) == 16
        I(f"s_lshr_b32 s53, s56, 1"); I("s_lshl_b32 s53, s53, 10"); I("s_and_b32 s44, s56, 1"); I("s_lshl_b32 s44, s44, 9"); I("s_add_u32 s53, s53, s44")
        I(f"s_lshr_b32 s44, s{SW}, 1"); I("s_lshl_b32 s44, s44, 7"); I("s_add_u32 s53, s53, s44"); I(f"s_and_b32 s44, s{SW}, 1"); I("s_lshl_b32 s44, s44, 3")
        I("s_add_u32 s53, s53, s44"); I(f"s_add_u32 s53, s53, {FC_OFF}")
        I(f"v_and_b32 v{VPA}, 1, v0"); I(f"v_lshlrev_b32 v{VPA}, 2, v{VPA}")
        PUBN = self.o.get("pubn", 1)
        I(f"s_lshr_b32 s45, s{SHEAD}, 2"); I("s_lshl_b32 s45, s45, 7"); I(f"s_and_b32 s44, s{SHEAD}, 3"); I("s_lshl_b32 s44, s44, 2"); I("s_add_u32 s45, s45, s44")
        I(f"s_sub_u32 s44, 15, s{SIDX}"); I("s_lshl_b32 s44, s44, 10"); I("s_add_u32 s46, s44, s45"); I(f"s_add_u32 s46, s46, {FC_OFF}")
        I(f"s_lshl_b32 s44, s{SIDX}, 10"); I("s_add_u32 s47, s44, s45"); I(f"s_add_u32 s47, s47, {FC_OFF}")
        self.srd(RC, "out", 2*MB); self.srd(RD, "q", 2*MB)
        I(f"s_lshl_b32 s44, s{SF}, 2"); I(f"s_load_dword s55, s[{P['ssmD']}:{P['ssmD']+1}], s44")
        I(f"v_and_b32 v{T}, 31, v0"); I(f"v_lshrrev_b32 v{T+1}, 5, v0")
        I(f"v_and_b32 v{T+2}, 7, v0"); I(f"v_mul_u32_u24 v{VA}, {HC}, v{T+2}")
        I(f"v_bfe_u32 v{T+2}, v0, 3, 2"); I(f"v_sub_u32 v{T+2}, v{T+2}, v{T+1}"); I(f"v_lshl_add_u32 v{VA}, v{T+2}, 4, v{VA}")
        I(f"s_lshl_b32 s43, s{SJ}, 9"); I(f"s_add_u32 s43, s43, s{SHB_}"); I("s_add_u32 s43, s43, 32"); I(f"v_add_u32 v{VA}, s43, v{VA}")
        I(f"s_lshl_b32 s43, s{SJ}, 7"); I(f"s_sub_u32 s43, s{SB}, s43"); I("s_add_u32 s43, s43, 400")
        I(f"v_lshl_add_u32 v{VB}, v{T}, 4, s43"); I(f"v_mul_u32_u24 v{T+2}, 1536, v{T+1}"); I(f"v_add_u32 v{VB}, v{VB}, v{T+2}")
        I(f"s_lshl_b32 s51, s{SW}, 13"); I(f"s_xor_b32 s52, s{SCX}, 0x80000")
        I("s_waitcnt lgkmcnt(0)"); lg.mark_all_done(); self.barrier()
        self.stamp(5)
        wtok = {}; ctok = {}; cslot = dict(enumerate(CSL))
        def wload(k):
            I(f"s_add_u32 s61, s{SWO}, {k*2048}")
            for mt in range(2):
                I(f"buffer_load_dwordx4 {v(WSL[k]+4*mt,4)}, v{VL16}, s[{RWS}:{RWS+3}], s61 offen offset:{mt*1024}{self.ld}"); wtok[k] = vm.issue()
        def cload(i):
            k = i & 15
            if k % 4 == 0: I(f"s_add_u32 s62, s{52 if i >= 16 else SCX}, {(k//4)*4096}"); I("s_add_u32 s63, s62, 0x40000")
            for qt in range(2):
                I(f"buffer_load_dwordx4 {v(cslot[i]+4*qt,4)}, v{VL16}, s[{RWS}:{RWS+3}], s{62+(k&1)} offen offset:{((k>>1)&1)*2048+qt*1024}{self.ld}"); ctok[i] = vm.issue()
        wl = list(range(16))
        steps = [(dd, ks) for dd in range(8) for ks in range(2)]
        toks = {}
        def reads(n):
            dd, ks = steps[n]; b = FRS[n % 3]
            def r(k, reg, addr, off):
                def f():
                    I(f"ds_read_b128 {v(reg,4)}, v{addr} offset:{off}"); toks[(n, k)] = lg.issue()
                return f
            return [r(0, b, VA, 64*dd + 32*(1-ks)), r(1, b+4, VB, ks*3072 + (7-dd)*16),
                    r(2, b+8, VB, ks*3072 + (7-dd)*16 + 512), r(3, b+12, VA, 64*dd + 32*(1-ks) + 2048)]
        for n in range(2):
            for f in reads(n): f()
        for n in range(16):
            b = FRS[n % 3]; L = reads(n+2) if n + 2 < 16 else []
            c0 = "0" if n == 0 else v(ACC,16); c1 = "0" if n == 0 else v(ACC+16,16)
            lg.wait(toks[(n,1)]); I(f"{MFMA} {v(ACC,16)}, {v(b,4)}, {v(b+4,4)}, {c0}")
            for f in L[0:2]: f()
            lg.wait(toks[(n,2)]); I(f"{MFMA} {v(ACC+16,16)}, {v(b,4)}, {v(b+8,4)}, {c1}")
            for f in L[2:3]: f()
            lg.wait(toks[(n,3)]); I(f"{MFMA} {v(ACC+16,16)}, {v(b+12,4)}, {v(b+4,4)}, {v(ACC+16,16)}")
            for f in L[3:4]: f()
            if n == PUBN:
                vm.wait(self.tctx); self.barrier(); self.publish(46); self.publish(47)
            if n >= self.o.get("wst", PUBN) and len(wl) > self.o.get("wkeep", 2): wload(wl.pop(0))
            if n == self.o.get("p1", 12): tc1 = self.poll_issue(VP, VPA, "s53")
        I(f"v_add_u32 v{T+2}, s51, v{VL16}")
        for i in range(8):
            I(f"ds_write_b128 v{T+2}, {v(ACC+4*i,4)} offset:{1024*i}"); lg.issue()
        while wl: wload(wl.pop(0))
        I(f"s_lshl_b32 s43, s{SC}, 15"); I(f"s_lshl_b32 s44, s{SJ}, 11"); I("s_add_u32 s43, s43, s44"); I(f"v_add_u32 v{T+2}, s43, v{VL16}")
        I(f"s_and_b32 s43, s{SJ}, 1"); I("s_mul_i32 s44, s43, 3072"); I(f"s_lshr_b32 s45, s{SJ}, 1"); I("s_lshl_b32 s41, s45, 9")
        I("s_add_u32 s44, s44, s41"); I(f"s_add_u32 s44, s44, s{SB}"); I("s_add_u32 s44, s44, 520")
        I(f"v_lshl_add_u32 v{T+3}, v{T}, 4, s44"); I(f"v_lshlrev_b32 v{VA}, 3, v{T+1}"); I(f"v_sub_u32 v{T+3}, v{T+3}, v{VA}")
        I(f"v_lshlrev_b32 v{VB}, 6, v{T}"); I(f"v_lshl_add_u32 v{VB}, v{T+1}, 4, v{VB}")
        I("s_lshl_b32 s45, s45, 11"); I("s_lshl_b32 s43, s43, 5"); I("s_add_u32 s45, s45, s43"); I(f"s_lshl_b32 s43, s{SC}, 12"); I("s_add_u32 s45, s45, s43")
        I(f"s_add_u32 s45, s45, {YB}"); I(f"v_add_u32 v{VB}, s45, v{VB}")
        I("s_lshl_b32 s43, s55, 16"); I("s_and_b32 s44, s55, 0xffff0000"); I(f"s_cmp_eq_u32 s{SC}, 0"); I("s_cselect_b32 s55, s43, s44")
        lg.wait(lg.issued); self.barrier()
        self.stamp(12)
        for p in range(4):
            for gq in range(2):
                I(f"ds_read_b128 {v(RD_+8*p+4*gq,4)}, v{T+2} offset:{8192*p+1024*gq}"); lg.issue()
        for gq in range(2):
            I(f"ds_read_b64 {v(ACC+2*gq,2)}, v{T+3} offset:{1536*gq}"); lg.issue()
        le = a.label("NE")
        vm.wait(tc1); I(f"v_and_b32 v{VP}, 1, v{VP}"); I(f"v_cmp_ne_u32 vcc, 1, v{VP}"); I("s_mov_b32 s50, 0"); I(f"s_cbranch_vccnz {le}")
        sv = self.save(); I("s_mov_b32 s50, 1")
        for i in range(len(CSL)): cload(i)
        self.restore(sv); a.L(le)
        lg.wait(lg.issued)
        for i in range(0, 8, 2):
            I(f"v_pk_add_f32 {v(RD_+i,2)}, {v(RD_+i,2)}, {v(RD_+8+i,2)}"); I(f"v_pk_add_f32 {v(RD_+16+i,2)}, {v(RD_+16+i,2)}, {v(RD_+24+i,2)}")
        for i in range(0, 8, 2): I(f"v_pk_add_f32 {v(RD_+i,2)}, {v(RD_+i,2)}, {v(RD_+16+i,2)}")
        for gq in range(2):
            for r in range(4):
                srcr = ACC + 2*gq + (1 - (r >> 1))
                I(f"v_lshlrev_b32 v{ACC+8}, 16, v{srcr}" if r & 1 else f"v_and_b32 v{ACC+8}, 0xffff0000, v{srcr}")
                I(f"v_fma_f32 v{RD_+4*gq+r}, v{ACC+8}, s55, v{RD_+4*gq+r}")
        for i in range(4): I(f"v_cvt_pk_bf16_f32 v{ACC+12+i}, v{RD_+2*i}, v{RD_+2*i+1}")
        I(f"v_permlane32_swap_b32 v{ACC+12}, v{ACC+14}"); I(f"v_permlane32_swap_b32 v{ACC+13}, v{ACC+15}")
        I(f"ds_write_b128 v{VB}, {v(ACC+12,4)}"); lg.issue()
        I(f"v_and_b32 v{T+2}, 15, v0"); I(f"v_lshrrev_b32 v{T+1}, 4, v0"); I(f"v_lshlrev_b32 v{T+1}, 1, v{T+1}"); I(f"v_xor_b32 v{T+1}, v{T+1}, v{T+2}"); I(f"v_lshlrev_b32 v{T+1}, 4, v{T+1}")
        I(f"v_lshl_add_u32 v{VA}, v{T+2}, 8, v{T+1}"); I(f"v_add_u32 v{VA}, s51, v{VA}")
        I(f"s_lshr_b32 s48, s{SW}, 1"); I("s_lshl_b32 s48, s48, 4"); I(f"s_and_b32 s41, s{SW}, 1"); I("s_lshl_b32 s42, s41, 3")
        I(f"v_lshrrev_b32 v{T}, 4, v0"); I(f"v_lshl_add_u32 v{T+1}, v{T}, 1, s42"); I(f"v_xor_b32 v{T+1}, v{T+1}, v{T+2}"); I(f"v_lshlrev_b32 v{T+1}, 4, v{T+1}")
        I("s_and_b32 s43, s48, 16"); I(f"v_add_u32 v{T+3}, s43, v{T+2}"); I(f"v_lshl_add_u32 v{VW1}, v{T+3}, 8, v{T+1}")
        I("s_lshr_b32 s43, s48, 5"); I("s_lshl_b32 s43, s43, 16"); I(f"v_add_u32 v{VW1}, s43, v{VW1}")
        lg.wait(lg.issued); I(f"v_xor_b32 v{VB}, 16, v{VW1}"); self.barrier()
        ly = a.label("NY")
        I(f"s_cmp_lg_u32 s{SW}, 0"); I(f"s_cbranch_scc1 {ly}")
        I(f"v_add_u32 v{T}, {YB}, v{VL16}")
        for i in range(8): I(f"ds_read_b128 {v(RD_+4*i,4)}, v{T} offset:{1024*i}")
        I(f"s_lshl_b32 s44, s{SF}, 13"); I(f"s_add_u32 s44, s44, {YT_OFF}"); I("s_add_u32 s45, s44, 4096")
        I("s_waitcnt lgkmcnt(0)")
        for i in range(8): I(f"buffer_store_dwordx4 {v(RD_+4*i,4)}, v{VL16}, s[{RWS}:{RWS+3}], s{44+(i>>2)} offen offset:{1024*(i&3)}{self.st}")
        a.L(ly)
        ll = a.label("NL")
        I("s_cmp_eq_u32 s50, 1"); I(f"s_cbranch_scc1 {ll}")
        self.poll_check(VP, VPA, "s53", 1)
        for i in range(len(CSL)): cload(i)
        a.L(ll)
        self.stamp(6)
        def put_partials():
            for mt in range(4):
                I(f"v_xor_b32 v{T+1}, {(8*(mt>>1)+(mt&1))*16}, v{VA}"); I(f"v_add_u32 v{T+3}, 0x10000, v{T+1}")
                for st in range(2):
                    for qt in range(2):
                        I(f"ds_write_b128 v{T+1+2*st}, {v(OACC+32*st+8*mt+4*qt,4)} offset:{4096*qt}"); lg.issue()
        def sum_partials(mid=None):
            tk = []
            for p in range(8):
                for hh in range(2):
                    I(f"ds_read_b128 {v(OACC+8*p+4*hh,4)}, v{(VW1, VB)[hh]} offset:{8192*p}"); lg.issue()
                tk.append(lg.issued)
                if p == 5 and mid: mid()
            for p in range(1, 8):
                lg.wait(tk[p])
                for e in range(0, 8, 2): I(f"v_pk_add_f32 {v(OACC+e,2)}, {v(OACC+e,2)}, {v(OACC+8*p+e,2)}")
        ymark = vm.issued; ypub = False; pmark = None; ppub = False; free = []; nc = len(CSL); XR = WSL[0]; PR_ = WSL[1]
        for i in range(32):
            k = i & 15
            if i == 16:
                if self.o.get("ostamp"): self.stamp(17)
                put_partials(); lg.wait(lg.issued); self.barrier()
                if self.o.get("ostamp"): self.stamp(18)
                sum_partials()
                if self.o.get("ostamp"): self.stamp(19)
                I(f"s_lshl_b32 s44, s{SF}, 14"); I(f"s_lshl_b32 s45, s{SW}, 11"); I("s_add_u32 s54, s44, s45"); I(f"s_add_u32 s54, s54, {PP_OFF}")
                for hh in range(2):
                    I(f"buffer_store_dwordx4 {v(OACC+4*hh,4)}, v{VL16}, s[{RWS}:{RWS+3}], s54 offen offset:{1024*hh}{self.st}"); pmark = vm.issue()
                I(f"s_lshl_b32 s53, s57, 7"); I(f"s_lshl_b32 s42, s{SW}, 4"); I("s_add_u32 s53, s53, s42"); I(f"s_add_u32 s53, s53, {FY_OFF}")
                I(f"v_and_b32 v{VPA}, 3, v0"); I(f"v_lshlrev_b32 v{VPA}, 2, v{VPA}")
                tf = self.poll_issue(VP, VPA, "s53")
            if i == 18:
                I(f"v_and_b32 v{T+1}, 15, v0"); I(f"s_lshl_b32 s45, s56, 6"); I("s_add_u32 s45, s45, s48"); I(f"v_add_u32 v{T+1}, s45, v{T+1}")
                I(f"v_lshlrev_b32 v{T+2}, 2, v{T+1}"); I(f"s_mov_b32 s45, {G_OFF}")
                I(f"buffer_load_dword v{GR}, v{T+2}, s[{RWS}:{RWS+3}], s45 offen{self.ld}"); vm.issue()
                I(f"v_lshrrev_b32 v{T+2}, 4, v0"); I(f"v_lshlrev_b32 v{T+2}, 4, v{T+2}"); I(f"v_lshl_add_u32 v{VO}, v{T+1}, 10, v{T+2}")
                I("s_lshl_b32 s49, s41, 6"); I(f"s_lshl_b32 s45, s57, 7"); I("s_add_u32 s49, s49, s45")
                I(f"buffer_load_dwordx4 {v(XR,4)}, v{VO}, s[{RD}:{RD+3}], s49 offen"); vm.issue()
            if i == self.o.get("b2", 22): self.barrier()
            if i == 24:
                vm.wait(tf); self.poll_check(VP, VPA, "s53", 1)
                I(f"v_lshrrev_b32 v{T}, 3, v0"); I(f"v_and_b32 v{T+1}, 7, v0"); I(f"v_lshlrev_b32 v{T+1}, 4, v{T+1}")
                I(f"v_lshl_add_u32 v{T}, v{T}, 12, v{T+1}")
                I(f"s_add_u32 m0, s{SWK}, {YT}")
                I(f"s_lshl_b32 s44, s57, 18"); I(f"s_lshl_b32 s45, s{SW}, 15"); I("s_add_u32 s44, s44, s45")
                I(f"s_lshl_b32 s45, s56, 7"); I("s_add_u32 s44, s44, s45"); I(f"s_add_u32 s44, s44, {YT_OFF}")
                I(f"buffer_load_dwordx4 v{T}, s[{RWS}:{RWS+3}], s44 offen{self.ld} lds"); vm.issue()
            if i == 29:
                I(f"s_xor_b32 s53, s{SF}, 32"); I("s_lshl_b32 s53, s53, 7"); I(f"s_lshl_b32 s42, s{SW}, 2"); I("s_add_u32 s53, s53, s42"); I(f"s_add_u32 s53, s53, {FP_OFF}")
                I(f"v_mov_b32 v{VPA}, 0"); tp = self.poll_issue(VP, VPA, "s53")
            vm.wait(max(ctok[i], wtok[k | 1]))
            if not ypub and vm.done > ymark:
                ypub = True; I(f"s_lshl_b32 s44, s{SF}, 2"); I(f"s_add_u32 s44, s44, {FY_OFF}"); self.publish(44, 3)
            if pmark and not ppub and vm.done >= pmark:
                ppub = True
                I(f"s_lshl_b32 s44, s{SF}, 7"); I(f"s_lshl_b32 s45, s{SW}, 2"); I("s_add_u32 s44, s44, s45"); I(f"s_add_u32 s44, s44, {FP_OFF}")
                I("v_mov_b32 v2, 1"); I("v_mov_b32 v3, 0"); I(f"buffer_store_dword v2, v3, s[{RWS}:{RWS+3}], s44 offen sc1"); vm.issue()
            for mt in range(4):
                for qt in range(2):
                    d = v(OACC + 32*(k & 1) + 8*mt + 4*qt, 4)
                    I(f"v_mfma_f32_16x16x32_bf16 {d}, {v(WSL[(k & ~1) + (mt >> 1)]+4*(mt & 1),4)}, {v(cslot[i]+4*qt,4)}, {'0' if k < 2 else d}")
            free.append(cslot[i])
            if i >= 18 and k & 1: free.extend([WSL[k-1], WSL[k]])
            while free and nc < 32:
                cslot[nc] = free.pop(0); cload(nc); nc += 1
        assert ypub and ppub
        self.stamp(7)
        put_partials()
        vm.wait(tp); self.poll_check(VP, VPA, "s53", 1)
        if self.o.get("ostamp"): self.stamp(20)
        I("s_xor_b32 s54, s54, 0x80000")
        for hh in range(2):
            I(f"buffer_load_dwordx4 {v(PR_+4*hh,4)}, v{VL16}, s[{RWS}:{RWS+3}], s54 offen offset:{1024*hh}{self.ld}"); tpp = vm.issue()
        I(f"v_lshrrev_b32 v{T}, 4, v0"); I("s_lshl_b32 s42, s41, 5"); I(f"v_lshl_add_u32 v{T}, v{T}, 3, s42"); I(f"v_bfe_u32 v{T+1}, v0, 2, 2")
        I(f"v_add_u32 v{T}, v{T}, v{T+1}"); I(f"v_lshlrev_b32 v{T}, 7, v{T}"); I(f"v_and_b32 v{T+1}, 3, v0")
        I(f"v_lshl_add_u32 v{T}, v{T+1}, 3, v{T}"); I("s_lshl_b32 s42, s48, 1"); I(f"s_add_u32 s42, s42, {YT}"); I(f"v_add_u32 v{T}, s42, v{T}")
        lg.wait(lg.issued); self.barrier()
        I(f"ds_read_b64_tr_b16 {v(100,2)}, v{T}"); lg.issue()
        I(f"ds_read_b64_tr_b16 {v(102,2)}, v{T} offset:512"); ty2 = lg.issue()
        def mix():
            lg.wait(ty2)
            for e in range(8):
                if e & 1: I(f"v_and_b32 v104, 0xffff0000, v{XR+(e>>1)}"); I(f"v_and_b32 v105, 0xffff0000, v{100+(e>>1)}")
                else: I(f"v_lshlrev_b32 v104, 16, v{XR+(e>>1)}"); I(f"v_lshlrev_b32 v105, 16, v{100+(e>>1)}")
                I(f"v_mul_f32 v{112+e}, v104, v105"); I(f"v_mul_f32 v{112+e}, v{112+e}, v{GR}")
            I(f"v_sub_f32 v{GR}, 1.0, v{GR}")
        sum_partials(mix)
        vm.wait(tpp)
        for e in range(0, 8, 2): I(f"v_pk_add_f32 {v(OACC+e,2)}, {v(OACC+e,2)}, {v(PR_+e,2)}")
        for e in range(8): I(f"v_fmac_f32 v{112+e}, v{OACC+4*(e&1)+(e>>1)}, v{GR}")
        for e in range(4): I(f"v_cvt_pk_bf16_f32 v{108+e}, v{112+2*e}, v{112+2*e+1}")
        I(f"buffer_store_dwordx4 {v(108,4)}, v{VO}, s[{RC}:{RC+3}], s49 offen sc1"); vm.issue()
        self.stamp(16)
        if self.o.get("echo"):
            lp = a.label("EC")
            I("s_sub_u32 s100, s100, s96")
            if self.o.get("cyc"): I("s_lshr_b32 s100, s100, 4")
            I("s_memrealtime s[96:97]"); I("s_waitcnt lgkmcnt(0)")
            a.L(lp)
            I("s_memrealtime s[98:99]"); I("s_waitcnt lgkmcnt(0)"); I("s_sub_u32 s98, s98, s96"); I("s_cmp_lt_u32 s98, s100"); I(f"s_cbranch_scc1 {lp}")
        if self.o.get("dbgout") is not None:
            l = a.label("DB")
            I(f"s_cmp_lg_u32 s2, {self.o['dbgout']}"); I(f"s_cbranch_scc1 {l}"); I(f"s_cmp_lg_u32 s{SW}, 0"); I(f"s_cbranch_scc1 {l}")
            I("s_waitcnt vmcnt(0)")
            order = [0, 1, 2, 3, 8, 10, 11, 4, 5, 12, 6, 7, 16]
            I("v_mov_b32 v20, 0")
            for j, i in enumerate(order):
                I(f"s_mov_b32 s44, {4*i}"); I(f"v_writelane_b32 v20, s44, {j}")
            I(f"s_lshl_b32 s44, s2, 11"); I(f"s_add_u32 s44, s44, {STAMP_OFF}")
            I(f"buffer_load_dword v21, v20, s[{RWS}:{RWS+3}], s44 offen sc1"); I("s_waitcnt vmcnt(0)")
            I("v_readfirstlane_b32 s45, v21"); I("v_subrev_u32 v21, s45, v21")
            self.srd(RDBG, "dbg", 64); I("v_lshlrev_b32 v22, 2, v0")
            I(f"buffer_store_dword v21, v22, s[{RDBG}:{RDBG+3}], 0 offen")
            a.L(l)

def build(opts):
    g = G(opts); k = NAME + "_kernel"
    g.begin(k); g.a.T("; MARK p"); g.proj(); g.a.T("; MARK a"); g.attn(); g.a.T("; MARK t"); g.tailp(); g.end(); g.a.T("; MARK a"); g.attn_rare(); g.a.T("; MARK t"); g.a.L("CODE_END"); g.a.I("s_endpgm")
    n = g.a.fix_hazards()
    txt = "; @launch grid=(256,1,1) block=(512,1,1) lds=163840\n"
    txt += '.amdgcn_target "amdgcn-amd-amdhsa--gfx950"\n.text\n' + g.a.text()
    txt += f""".section .rodata,"a"
.p2align 6
.amdhsa_kernel {k}
  .amdhsa_next_free_vgpr 256
  .amdhsa_next_free_sgpr 102
  .amdhsa_accum_offset 256
  .amdhsa_group_segment_fixed_size 0
  .amdhsa_kernarg_size 128
  .amdhsa_user_sgpr_count 2
  .amdhsa_user_sgpr_kernarg_segment_ptr 1
  .amdhsa_system_sgpr_workgroup_id_x 1
.end_amdhsa_kernel
"""
    print(f"instructions {sum(1 for it in g.a.items if it[0] == 'i')}, nops inserted {n}", file=sys.stderr)
    return txt

if __name__ == "__main__":
    opts = {}
    for x in sys.argv[2:]:
        if "=" in x: k_, v_ = x.split("="); opts[k_] = int(v_)
        else: opts[x] = True
    open(sys.argv[1], "w").write(build(opts))
```

```python
import sys, math, struct
sys.path.insert(0, "gen")
from asmlib import *

NAME = "gated_mix__ssm_conv_h3__compressed_kv_cla__prompt"
MB = 1 << 20
KV_OFF, Q_OFF, CTX_OFF, KVT_OFF, YT_OFF, G_OFF = 0, 32*MB, 48*MB, 64*MB, 66*MB, 68*MB
XC_OFF = 40*MB
PP_OFF = 40*MB
WOT_OFF = 32*MB
FLG_OFF = 68*MB + 65536
FK_OFF, FY_OFF, FC_OFF, FP_OFF = FLG_OFF, FLG_OFF + 4096, FLG_OFF + 8192, FLG_OFF + 32768
STAMP_OFF = 69*MB
WS_SIZE = 70*MB
P = dict(q=64, k=66, v=68, shift=70, ssmk=72, ssmD=74, bx=76, ckv=78, wq=80, wuk=82, wuv=84, wo=86, gate=88, out=90, dbg=92, ws=94)
SW, SHEAD, SIDX, SWK, SF = 3, 4, 5, 6, 7
RA, RB, RC, RWS, RD, RE, RT, RDBG = 8, 12, 16, 20, 24, 28, 56, 60
MFMA = "v_mfma_f32_32x32x16_bf16"
LOG2E = 1.4426950408889634
F_KV, F_CA, F_CB, F_Y = 1, 2, 4, 8
def f2u(x): return "0x%08x" % struct.unpack("<I", struct.pack("<f", x))[0]
def rep4(b): return b * 0x01010101

class G:
    def __init__(self, opts):
        self.a = Asm(); self.o = opts
        self.GSH, self.FSH = (8, 10) if opts.get("lin") else (11, 8)
        self.vm = Cnt(self.a, "vmcnt", 63); self.lg = Cnt(self.a, "lgkmcnt", 15)
        self.st = "" if opts.get("plainst") else (" sc1 nt" if opts.get("ntst") else " sc1"); self.ld = "" if opts.get("plainld") else " sc1"
    def I(self, t): self.a.I(t)
    def srd(self, r, ptr, nbytes):
        I = self.I
        I(f"s_mov_b32 s{r}, s{P[ptr]}"); I(f"s_mov_b32 s{r+1}, s{P[ptr]+1}")
        I(f"s_mov_b32 s{r+2}, {nbytes}"); I(f"s_mov_b32 s{r+3}, 0x00020000")
    def save(self): return (self.vm.issued, self.vm.done, self.lg.issued, self.lg.done)
    def restore(self, s_): self.vm.issued, self.vm.done, self.lg.issued, self.lg.done = s_
    def stream(self, mf, fills):
        n = len(mf); slots = [[] for _ in range(n + 1)]
        for (s0, e0, cl) in fills:
            m = e0 - s0
            for j, c in enumerate(cl): slots[s0 + 1 + (j * m) // len(cl)].append(c)
        for c in slots[0]: c()
        for i in range(n):
            mf[i]()
            for c in slots[i+1]: c()
    def stamp(self, i, dyn=None):
        if self.o.get("echo") == i:
            self.I("s_memtime s[100:101]" if self.o.get("cyc") else "s_memrealtime s[100:101]"); self.I("s_waitcnt lgkmcnt(0)")
        if not self.o.get("stamp"): return
        I = self.I
        I("s_memrealtime s[96:97]"); I("s_memtime s[100:101]")
        I("s_lshl_b32 s98, s2, 3"); I(f"s_add_u32 s98, s98, s{SW}"); I("s_lshl_b32 s98, s98, 8")
        I(f"s_add_u32 s98, s98, {STAMP_OFF + 4*i}")
        if dyn is not None:
            I(f"s_lshl_b32 s99, s{dyn}, 4"); I("s_add_u32 s98, s98, s99")
        I("s_waitcnt lgkmcnt(0)")
        I("v_mov_b32 v2, s96"); I("v_mov_b32 v3, 0")
        I(f"buffer_store_dword v2, v3, s[{RWS}:{RWS+3}], s98 offen")
        I("v_mov_b32 v2, s100")
        I(f"buffer_store_dword v2, v3, s[{RWS}:{RWS+3}], s98 offen offset:128")
    OOB = 0x40000000
    def publish(self, soff, val=1, srd=RWS, byte=False, idx=None):
        I = self.I
        self.oob_sel()
        if idx is not None: I(f"s_and_b32 s98, s{SIDX}, 3"); I(f"s_cmp_eq_u32 s98, {idx}"); I(f"s_cselect_b32 s99, s99, {self.OOB}")
        I(f"v_mov_b32 v2, {val}"); I("v_mov_b32 v3, s99")
        I(f"buffer_store_{'byte' if byte else 'dword'} v2, v3, s[{srd}:{srd+3}], s{soff} offen sc1"); self.vm.issue()
    def oob_sel(self):
        self.I(f"s_cmp_eq_u32 s{SW}, 0"); self.I(f"s_cselect_b32 s99, 0, {self.OOB}")
    def poll_issue(self, vd, vaddr, soff, srd=RWS):
        self.I(f"buffer_load_dword v{vd}, v{vaddr}, s[{srd}:{srd+3}], {soff} offen sc1"); return self.vm.issue()
    def poll_check(self, vd, vaddr, soff, want, srd=RWS):
        a = self.a; I = self.I
        l = a.label("PCK"); lp = a.label("POLL")
        I(f"s_mov_b32 s98, {want}"); I("s_mov_b32 s99, 20000")
        a.L(lp)
        I(f"v_and_b32 v{vd}, s98, v{vd}"); I(f"v_cmp_ne_u32 vcc, s98, v{vd}"); I(f"s_cbranch_vccz {l}")
        I("s_sleep 2")
        I(f"buffer_load_dword v{vd}, v{vaddr}, s[{srd}:{srd+3}], {soff} offen sc1")
        I("s_sub_u32 s99, s99, 1"); I("s_cmp_lg_u32 s99, 0"); I("s_waitcnt vmcnt(0)"); I(f"s_cbranch_scc1 {lp}")
        a.L(l)
    def barrier(self): self.I("s_barrier")
    def sync_all(self):
        self.I("s_waitcnt vmcnt(0) lgkmcnt(0)"); self.vm.mark_all_done(); self.lg.mark_all_done(); self.barrier()

    def begin(self, kname):
        a = self.a; I = self.I
        a.T(f".globl {kname}\n.p2align 8\n.type {kname},@function"); a.L(kname)
        self.endl = a.label("END")
        if self.o.get("stamp"): I("s_memrealtime s[30:31]")
        if self.o.get("echo"): I("s_memtime s[96:97]" if self.o.get("cyc") else "s_memrealtime s[96:97]")
        I("s_load_dwordx16 s[64:79], s[0:1], 0"); I("s_load_dwordx16 s[80:95], s[0:1], 64")
        I("s_cmp_ge_u32 s2, 256"); I(f"s_cbranch_scc1 {self.endl}")
        I("v_lshrrev_b32 v1, 6, v0"); I("v_and_b32 v0, 63, v0"); I(f"v_readfirstlane_b32 s{SW}, v1")
        I("s_and_b32 s7, s2, 7"); I("s_lshl_b32 s7, s7, 2")
        I(f"s_lshr_b32 s{SIDX}, s2, 3"); I(f"s_lshr_b32 s{SHEAD}, s{SIDX}, 3"); I(f"s_add_u32 s{SHEAD}, s{SHEAD}, s7")
        I(f"s_and_b32 s{SIDX}, s{SIDX}, 7"); I(f"s_lshl_b32 s{SWK}, s{SW}, 10")
        I(f"s_lshl_b32 s{SF}, s{SHEAD}, 3"); I(f"s_add_u32 s{SF}, s{SF}, s{SIDX}")
    def end(self):
        self.a.L(self.endl); self.I("s_endpgm")

    def proj(self):
        a = self.a; I = self.I; vm = self.vm; lg = self.lg
        QA_LDS = 65536
        ACC = {"K": 64, "V": 128, "Q": 64}
        FX = [16, 24]; FW = [192, 32]
        VWA = 4; VSK, VSV, VOX, VOW, VST = 8, 9, 10, 11, 12; VXA = 224; T = 232
        NB = 0; XC = self.o.get("xc", 0)
        ST = [("KV", c) for c in range(NB)] + [("K", c) for c in range(NB, 8)] + [("V", c) for c in range(7, NB - 1, -1)] + [("Q", c) for c in range(8)]
        NS = len(ST); TK = 7; TV = NS - 9; TQ = NS - 8
        I("v_lshrrev_b32 v13, 3, v0"); I(f"s_lshl_b32 s40, s{SW}, 3"); I("v_add_u32 v13, s40, v13"); I("v_lshlrev_b32 v13, 10, v13")
        I(f"s_lshr_b32 s41, s{SW}, 1"); I(f"s_xor_b32 s40, s41, s{SW}"); I("s_and_b32 s40, s40, 1"); I("s_lshl_b32 s40, s40, 2")
        I("v_lshrrev_b32 v14, 4, v0"); I("v_add_u32 v15, s40, v14")
        I("v_and_b32 v3, 7, v0"); I("v_xor_b32 v15, v15, v3"); I(f"v_lshl_add_u32 v{VOX}, v15, 4, v13")
        I(f"s_lshl_b32 s40, s{SW}, 2"); I("v_add_u32 v13, s40, v14"); I("v_lshlrev_b32 v13, 13, v13")
        I("s_and_b32 s41, s41, 1"); I("s_lshl_b32 s41, s41, 3"); I("v_lshl_add_u32 v15, v14, 1, s41"); I("v_and_b32 v3, 15, v0"); I("v_xor_b32 v15, v15, v3")
        I("v_lshl_add_u32 v13, v15, 4, v13"); I(f"s_lshl_b32 s40, s{SHEAD}, 8"); I(f"v_add_u32 v{VOW}, s40, v13")
        I(f"v_lshlrev_b32 v{VST}, 4, v0")
        I(f"s_lshl_b32 s44, s{SIDX}, 18")
        for i in range(1, 4): I(f"s_add_u32 s{44+i}, s44, {65536*i}")
        ROT = self.o.get("rot", 2)
        if ROT == 0: I("s_mov_b32 s33, 0")
        elif ROT == 1: I(f"s_mov_b32 s33, s{SIDX}")
        elif ROT == 2: I(f"s_lshr_b32 s33, s{SHEAD}, 2"); I(f"s_add_u32 s33, s33, s{SIDX}")
        elif ROT == 3: I(f"s_lshr_b32 s33, s{SHEAD}, 2"); I(f"s_add_u32 s33, s33, s{SIDX}"); I(f"s_lshl_b32 s34, s{SHEAD}, 1"); I("s_add_u32 s33, s33, s34")
        elif ROT == 4: I(f"s_lshr_b32 s33, s{SHEAD}, 2")
        if self.o.get("rotq"): I(f"s_lshl_b32 s32, s{SHEAD}, 1"); I("s_add_u32 s32, s32, s33")
        else: I("s_mov_b32 s32, s33")
        I("s_waitcnt lgkmcnt(0)")
        if self.o.get("stamp"): I("s_memrealtime s[28:29]")
        self.srd(RA, "ckv", 2*MB); self.srd(RB, "wuk", 4*MB); self.srd(RC, "wuv", 4*MB)
        def xbase(t):
            k, c = ST[t]
            return (32768, 131072, 0)[((16 + c) if k == "Q" else (15 - c + NB)) % 3]
        units = [(t, m) for t in range(NS) for m in ST[t][0]]
        uidx = {u: i for i, u in enumerate(units)}
        def wbase(t, m): return 65536 + (uidx[(t, m)] % 4)*16384
        items = []
        lastx = {}
        for t in range(NS):
            k, c = ST[t]
            for m in k:
                u = uidx[(t, m)]
                def w(i, t=t, m=m, c=c):
                    if i == 0: I(f"s_add_u32 s34, s{32 if m == 'Q' else 33}, {c}"); I("s_and_b32 s34, s34, 7"); I("s_lshl_b32 s34, s34, 19")
                    I(f"s_add_u32 m0, s{SWK}, {wbase(t, m) + i*8192}"); I(f"s_add_u32 s41, s34, {i*262144}")
                    r = {"K": RB, "V": RC, "Q": RE}[m]
                    I(f"buffer_load_dwordx4 v{VOW}, s[{r}:{r+3}], s41 offen lds"); dtok[t] = vm.issue()
                items.append((t, units[u-4][0] if u >= 4 else -1, [lambda i=i, w=w: w(i) for i in range(2)]))
            key = ("Q" if k == "Q" else "C", c); prev = lastx.get(xbase(t))
            if prev is None or prev[1] != key:
                def x(i, t=t, k=k, c=c):
                    if i == 0: I(f"s_add_u32 s35, s{32 if k == 'Q' else 33}, {c}"); I("s_and_b32 s35, s35, 7"); I("s_lshl_b32 s35, s35, 7")
                    I(f"s_add_u32 m0, s{SWK}, {xbase(t) + i*8192}"); I(f"s_add_u32 s41, s{(48 if k == 'Q' else 44)+i}, s35")
                    r = (RWS if XC else RD) if k == "Q" else RA
                    I(f"buffer_load_dwordx4 v{VOX}, s[{r}:{r+3}], s41 offen{self.ld if (XC and k == 'Q') else ''} lds"); dtok[t] = vm.issue()
                items.append((t, prev[0] if prev else -1, [lambda i=i, x=x: x(i) for i in range(4)]))
            lastx[xbase(t)] = (t, key)
        dtok = {}
        def take(done, upto=99):
            out = []
            for it in list(items):
                if it[1] <= done and it[0] <= upto: out += it[2]; items.remove(it)
            return out
        for f in take(-1, 0): f()
        self.srd(RWS, "ws", WS_SIZE); self.srd(RDBG, "dbg", 256)
        if self.o.get("wsoff"): I(f"s_add_u32 s{RWS}, s{RWS}, {self.o['wsoff']*MB}"); I(f"s_addc_u32 s{RWS+1}, s{RWS+1}, 0")
        self.stamp(31)
        if self.o.get("stamp"):
            I("v_mov_b32 v2, s30"); I("s_sub_u32 s98, s98, 124"); I(f"buffer_store_dword v2, v3, s[{RWS}:{RWS+3}], s98 offen")
            I("v_mov_b32 v2, s28"); I(f"buffer_store_dword v2, v3, s[{RWS}:{RWS+3}], s98 offen offset:120")
        I(f"s_lshl_b32 s48, s{SIDX}, 17"); I("s_add_u32 s49, s48, 65536")
        I(f"s_sub_u32 s50, 15, s{SIDX}"); I("s_lshl_b32 s50, s50, 17"); I("s_add_u32 s51, s50, 65536")
        if XC:
            for i in range(4): I(f"s_add_u32 s{48+i}, s{48+i}, {XC_OFF}")
        I(f"s_and_b32 s42, s{SW}, 3"); I("s_lshl_b32 s42, s42, 6"); I(f"s_lshr_b32 s43, s{SW}, 2"); I("s_lshl_b32 s43, s43, 1")
        I("v_and_b32 v13, 15, v0"); I("v_lshrrev_b32 v15, 4, v0")
        I("v_lshrrev_b32 v14, 1, v13"); I("v_xor_b32 v14, v14, v15"); I("v_lshlrev_b32 v14, 4, v14")
        I("v_add_u32 v3, s42, v13"); I(f"v_lshl_add_u32 v{VXA}, v3, 7, v14")
        I("v_and_b32 v2, 8, v13"); I("v_add_u32 v3, v3, v2"); I(f"v_lshl_add_u32 v{VXA+4}, v3, 7, v14")
        for pt in range(2):
            b = VXA + 4*pt
            I(f"v_xor_b32 v{b+1}, 64, v{b}"); I(f"v_add_u32 v{b+2}, 0x20000, v{b}"); I(f"v_add_u32 v{b+3}, 0x20000, v{b+1}")
        I("v_lshlrev_b32 v3, 4, v13"); I("v_and_b32 v2, 1, v15"); I("v_lshl_add_u32 v3, v2, 9, v3"); I("v_lshrrev_b32 v14, 1, v15")
        I("v_lshlrev_b32 v3, 4, v13"); I(f"v_lshl_add_u32 v{VSK}, v15, {self.GSH}, v3")
        I("v_bfe_u32 v13, v0, 2, 2"); I("v_lshl_add_u32 v14, v15, 3, v13"); I("v_lshlrev_b32 v14, 8, v14")
        I("v_and_b32 v3, 3, v0"); I("v_lshl_add_u32 v14, v3, 3, v14"); I("v_add_u32 v14, 0x10000, v14")
        I("v_lshl_add_u32 v13, v2, 2, v13"); I("s_lshl_b32 s40, s43, 1"); I("v_xor_b32 v13, s40, v13"); I(f"v_lshl_add_u32 v{VWA}, v13, 5, v14")
        for dt in range(1, 4): I(f"v_xor_b32 v{VWA+dt}, {dt << 5}, v{VWA}")
        I(f"s_lshl_b32 s54, s{SHEAD}, 4"); I(f"s_lshl_b32 s55, s{SIDX}, 1"); I("s_add_u32 s54, s54, s55")
        I(f"s_bfe_u32 s55, s{SW}, 0x10001"); I("s_add_u32 s54, s54, s55"); I("s_lshl_b32 s54, s54, 16")
        I(f"s_and_b32 s55, s{SW}, 1"); I("s_lshl_b32 s55, s55, 14"); I("s_add_u32 s54, s54, s55")
        I(f"s_lshl_b32 s55, s43, {self.FSH+1}"); I("s_add_u32 s52, s54, s55"); I("s_add_u32 s52, s52, 0x8000")
        I(f"s_lshl_b32 s55, s43, {self.FSH}"); I("s_add_u32 s54, s54, s55")
        XG = T; GW = T + 4; hl = {}
        def gate_loads():
            L = []
            def E(t): L.append(lambda: I(t))
            def V(t):
                def f(): I(t); hl["t"] = vm.issue()
                L.append(f)
            E(f"s_lshl_b32 s40, s{SHEAD}, 7"); E(f"s_lshl_b32 s39, s{SIDX}, 2"); E("s_add_u32 s40, s40, s39"); E(f"s_add_u32 s40, s40, {FK_OFF}")
            E(f"s_lshl_b32 s39, s{SF}, 7"); E(f"s_add_u32 s39, s39, {FP_OFF}"); E("v_and_b32 v13, 7, v0"); E("v_lshl_add_u32 v13, v13, 2, s39")
            E("v_writelane_b32 v13, s40, 0")
            E(f"s_lshr_b32 s39, s{SHEAD}, 2"); E("s_lshl_b32 s39, s39, 7"); E(f"s_and_b32 s40, s{SHEAD}, 3"); E("s_lshl_b32 s40, s40, 2"); E("s_add_u32 s39, s39, s40")
            E(f"s_lshl_b32 s40, s{SIDX}, 10"); E("s_add_u32 s40, s40, s39"); E(f"s_add_u32 s40, s40, {FC_OFF}")
            E("v_writelane_b32 v13, s40, 1")
            E(f"s_sub_u32 s40, 15, s{SIDX}"); E("s_lshl_b32 s40, s40, 10"); E("s_add_u32 s40, s40, s39"); E(f"s_add_u32 s40, s40, {FC_OFF}")
            E("v_writelane_b32 v13, s40, 2")
            E(f"s_lshl_b32 s40, s{SF}, 2"); E(f"s_add_u32 s40, s40, {FY_OFF}"); E("v_writelane_b32 v13, s40, 3"); E("v_mov_b32 v14, 0")
            def oo(): self.oob_sel(); I("v_add_u32 v13, s99, v13")
            L.append(oo)
            V(f"buffer_store_dword v14, v13, s[{RWS}:{RWS+3}], 0 offen sc1")
            E("s_lshl_b32 s37, s2, 3"); E(f"s_add_u32 s37, s37, s{SW}"); E("s_lshl_b32 s38, s37, 10")
            L.append(lambda: self.srd(RD, "q", 2*MB)); L.append(lambda: self.srd(RE, "wq", 4*MB)); L.append(lambda: self.srd(RT, "gate", 1024))
            V(f"buffer_load_dwordx4 {v(XG,4)}, v{VST}, s[{RD}:{RD+3}], s38 offen")
            V(f"buffer_load_dwordx4 {v(GW,4)}, v{VST}, s[{RT}:{RT+3}], 0 offen")
            return L
        def gate_ops():
            L = []; E = lambda t: L.append(lambda: I(t)); Z = T + 8
            L.append(lambda: vm.wait(hl["t"]))
            def xs():
                I(f"s_add_u32 s38, s38, {XC_OFF}"); I(f"buffer_store_dwordx4 {v(XG,4)}, v{VST}, s[{RWS}:{RWS+3}], s38 offen{self.st}"); vm.issue()
            if XC: L.append(xs)
            E(f"v_dot2_f32_bf16 v{Z}, v{XG}, v{GW}, 0")
            for i in range(1, 4): E(f"v_dot2_f32_bf16 v{Z}, v{XG+i}, v{GW+i}, v{Z}")
            for m in ("quad_perm:[1,0,3,2] row_mask:0xf", "quad_perm:[2,3,0,1] row_mask:0xf", "row_half_mirror row_mask:0xf", "row_mirror row_mask:0xf",
                      "row_bcast:15 row_mask:0xa", "row_bcast:31 row_mask:0xc"):
                E(f"v_add_f32_dpp v{Z}, v{Z}, v{Z} {m} bank_mask:0xf")
            E(f"v_readlane_b32 s36, v{Z}, 63"); E(f"v_mov_b32 v{Z+1}, {f2u(-LOG2E)}"); E(f"v_mul_f32 v{Z}, s36, v{Z+1}")
            E(f"v_exp_f32 v{Z}, v{Z}"); E(f"v_add_f32 v{Z}, 1.0, v{Z}"); E(f"v_rcp_f32 v{Z}, v{Z}")
            E("s_lshl_b32 s38, s37, 2"); E(f"s_add_u32 s38, s38, {G_OFF}"); E(f"v_mov_b32 v{Z+1}, 0")
            def gs():
                I(f"buffer_store_dword v{Z}, v{Z+1}, s[{RWS}:{RWS+3}], s38 offen{self.st}"); vm.issue()
            L.append(gs)
            return L
        toks = {}
        def rdx(t, mt):
            m = ST[t][0]; xb = xbase(t); pt = 0
            off = (xb & 65535) + ((mt >> 1)*4096 + (mt & 1)*1024 if pt else mt*2048)
            def f(kk):
                va = VXA + 4*pt + 2*(xb >> 17) + (kk ^ (mt & 1))
                I(f"ds_read_b128 {v(FX[mt & 1]+4*kk,4)}, v{va} offset:{off}"); toks[("x", t, mt, kk)] = lg.issue()
            return [lambda: f(0), lambda: f(1)]
        def rdw(t, dt):
            m = ST[t][0]
            def f(kk, h):
                I(f"ds_read_b64_tr_b16 {v(FW[t & 1]+8*dt+4*kk+2*h,2)}, v{VWA+dt} offset:{wbase(t, m)-65536+kk*8192+h*1024}"); toks[("w", t, dt, kk)] = lg.issue()
            return [lambda kk=kk, h=h: f(kk, h) for kk in range(2) for h in range(2)]
        def atile(m, mt, dt): return ACC[m] + (4*(((mt >> 1)*4 + dt)*2 + (mt & 1)) if m == "V" else 4*(mt*4 + dt))
        def mfs(t, mt):
            m = ST[t][0]; first = t == 0 or ST[t-1][0] != m; L = []
            order = [(dt, kk) for dt in range(4) for kk in range(2)] if not self.o.get("nochain") else [(dt, kk) for kk in range(2) for dt in range(4)]
            for dt, kk in order:
                def f(dt=dt, kk=kk):
                    lg.wait(max(toks[("x", t, mt, kk)], toks[("w", t, dt, kk)]))
                    d = v(atile(m, mt, dt), 4); X = v(FX[mt & 1]+4*kk, 4); W = v(FW[t & 1]+8*dt+4*kk, 4)
                    c = "0" if (first and kk == 0) else d
                    I(f"v_mfma_f32_16x16x32_bf16 {d}, {X}, {W}, {c}" if m == "V" else f"v_mfma_f32_16x16x32_bf16 {d}, {W}, {X}, {c}")
                L.append(f)
            return L
        def pieces(m):
            fs = 1024 if m == "Q" else 1 << self.FSH
            if m == "V": return [(atile(m, 2*p, dt), p*8192 + dt*fs) for p in range(2) for dt in range(4)]
            return [(atile(m, mt, 2*j), (mt >> 1)*8192 + ((mt & 1)*4 + j)*fs) for mt in range(4) for j in range(2)]
        def kv_out(m):
            out = []
            for b, off in pieces(m):
                pk = [lambda i=i, b=b: I(f"v_cvt_pk_bf16_f32 v{b+i}, v{b+2*i}, v{b+2*i+1}") for i in range(4)]
                if m == "K": pk = [lambda i=i, b=b: I(f"v_mul_f32 v{b+i}, {f2u(LOG2E / math.sqrt(128.0))}, v{b+i}") for i in range(8)] + pk
                def st(b=b, off=off):
                    if self.o.get("nost"): return
                    I(f"s_add_u32 s41, s{54 if m == 'K' else 52}, {off}")
                    I(f"buffer_store_dwordx4 {v(b,4)}, v{VSK}, s[{RWS}:{RWS+3}], s41 offen{self.st}"); vm.issue()
                out.append((pk, st))
            return out
        side = {}; late = {}
        def spread(ops, t0, t1, dst=side, ks=(0, 1, 2)):
            sl = [(t, k) for t in range(t0, t1) for k in ks]; n = len(ops)
            for j, key in enumerate(sl): dst.setdefault(key, []).extend(ops[n*j//len(sl): n*(j+1)//len(sl)])
        PG = self.o.get("pg", 0)
        spread(gate_loads(), PG, PG + 1); spread(gate_ops(), PG + 2, PG + 3)
        def wtouch(r, half, wv):
            def f():
                I(f"s_cmp_eq_u32 s{SW}, {wv}"); I(f"s_cselect_b32 s99, 0, {self.OOB}")
                I(f"s_lshl_b32 s40, s{SIDX}, 19"); I(f"s_lshl_b32 s39, s{SHEAD}, 8"); I("s_add_u32 s40, s40, s39"); I(f"s_add_u32 s40, s40, {half*32*8192}")
                I("v_lshrrev_b32 v3, 1, v0"); I("v_lshlrev_b32 v3, 13, v3"); I("v_and_b32 v2, 1, v0"); I("v_lshl_add_u32 v3, v2, 7, v3"); I("v_add_u32 v3, s99, v3")
                I(f"buffer_load_dword v1, v3, s[{r}:{r+3}], s40 offen"); vm.issue()
            return f
        for nm, r, dflt in (("tk", RB, -1), ("tv", RC, 1), ("tq", RE, 3)):
            t0 = self.o.get(nm, dflt)
            if t0 >= 0:
                for half in range(2): side.setdefault((t0 + half, 2), []).append(wtouch(r, half, half))
        KN = self.o.get("kn", 8); VD = self.o.get("vd", 0); VN = self.o.get("vn", 5)
        KO = kv_out("K"); VO = kv_out("V")
        spread(sum((p for p, _ in KO), []), TK + 1, min(TK + 3, TQ), ks=(0, 1))
        npk = 2 * (min(TK + 3, TQ) - TK - 1)
        spread([s_ for _, s_ in KO], TK + 1, TK + 1 + KN, dst=late, ks=(2,))
        assert len(late[(TK + 1, 2)]) <= 8 * 2 // npk
        spread(sum((p for p, _ in VO), []), TQ, TQ + 1, ks=(0, 1))
        spread([s_ for _, s_ in VO], TQ + VD, TQ + VD + VN, dst=late, ks=(2,))
        PK_, PV_ = TK + KN + 2, TQ + VD + VN
        assert PK_ <= NS - 5 and PV_ <= NS - 2
        QE = []; EQ = lambda t: QE.append(lambda: I(t))
        EQ(f"s_and_b32 s55, s{SW}, 2"); EQ("s_lshl_b32 s55, s55, 15"); EQ(f"s_add_u32 s55, s55, {QA_LDS}")
        EQ(f"s_and_b32 s54, s{SW}, 1"); EQ("s_lshl_b32 s54, s54, 14"); EQ("s_add_u32 s55, s55, s54")
        EQ("s_lshl_b32 s54, s43, 10"); EQ("s_add_u32 s55, s55, s54"); EQ(f"v_add_u32 v14, s55, v{VST}")
        spread(QE, NS - 1, NS)
        spread([lambda: self.srd(RB, "ssmk", 2*MB), lambda: self.srd(RA, "k", 2*MB), lambda: self.srd(RC, "v", 2*MB), lambda: self.srd(RD, "shift", 4096), lambda: self.srd(RE, "wo", 4*MB)], NS - 2, NS - 1)
        spread([lambda r=r: I(f"v_mov_b64 {v(192+2*r,2)}, 0") for r in range(32) if not 16 <= r < 20], NS - 1, NS)
        side.setdefault((NS - 1, 3), []).extend([lambda r=r: I(f"v_mov_b64 {v(192+2*r,2)}, 0") for r in range(16, 20)])
        def fkoff():
            I(f"s_lshl_b32 s40, s{SHEAD}, 7"); I(f"s_lshl_b32 s41, s{SIDX}, 2"); I("s_add_u32 s40, s40, s41"); I(f"s_add_u32 s40, s40, {FK_OFF}")
        def w0only(fn):
            l = a.label("NP"); I(f"s_cmp_lg_u32 s{SW}, 0"); I(f"s_cbranch_scc1 {l}"); fn(); a.L(l)
        def k0(i):
            I(f"s_lshl_b32 s40, s{SW}, 12"); I("s_add_u32 m0, s40, 0x8000")
            I(f"s_lshl_b32 s41, s{SHEAD}, 20"); I("s_add_u32 s41, s41, s40")
            I(f"buffer_load_dwordx4 v{VST}, s[{RWS}:{RWS+3}], s41 offen offset:{1024*i}{self.ld} lds"); vm.issue()
        self.barrier()
        for f in take(-1, 1): f()
        vm.wait(dtok[0]); self.barrier()
        self.stamp(1)
        def first_reads(t):
            x = rdx(t, 0); w = [rdw(t, dt) for dt in range(4)]
            return [x[0]] + w[0][:2] + [x[1]] + w[0][2:] + w[1], w[2] + w[3]
        L, rest = first_reads(0)
        for f in L: f()
        VPK = self.o.get("vpk", 2); mark = {}; TZ = PG + 4; TS = 10; DS = self.o.get("dsteps", 3)
        pend = take(-1)
        for t in range(NS):
            for k in range(4):
                M = mfs(t, k); n = len(M); PB = []
                if k == 3 and t < NS - 1:
                    assert not pend
                    if t == TS + 2: vm.wait(td); w0only(lambda: self.poll_check(14, 13, "0", rep4(1), RDBG))
                    if t == NS - 3: vm.wait(tp); w0only(lambda: self.poll_check(15, 13, "s53", 1))
                    lg.wait(lg.issued); vm.wait(dtok[t+1])
                    if t == TZ: vm.wait(mark[TZ-2])
                    if t == PK_: vm.wait(mark[TK + KN])
                    if t == PV_: vm.wait(mark[PV_ - 1])
                    self.barrier()
                    ps = self.o.get("pstamp")
                    if ps is not None and 0 <= t - int(ps) + 1 < 13: self.stamp(17 + t - int(ps) + 1); vm.issue(2)
                    if TZ <= t < TZ + 4: PB.append(lambda t=t: self.publish(SF, 1, RDBG, True, idx=t - TZ))
                    if t == PK_: PB.append(lambda: (fkoff(), self.publish(40, 1)))
                    if t == PV_: PB.append(lambda: (fkoff(), self.publish(40, 3)))
                    pend = take(t)
                    if t == NS - 3: pend += [lambda i=i: k0(i) for i in range(4)]
                    nd = len(pend) // (DS + 1)
                else:
                    nd = -(-len(pend) // max(1, (3 if t == 0 else DS) - k))
                D, pend = pend[:nd], pend[nd:]
                fl = []
                if not (t == NS - 1 and k == 3):
                    if k == 3:
                        L, rest = first_reads(t+1); nr = self.o.get("nr", 4)
                        fl.append((0, 7, L + rest[:nr])); rest = rest[nr:]
                    else:
                        if k == 0 and rest: fl.append((-1, 2, rest))
                        fl.append((2, 4, rdx(t, k+1)))
                if PB: fl.append((1, 2, PB))
                if D: fl.append((0, n, D))
                if side.get((t, k)): fl.append((0, n, side[(t, k)]))
                if late.get((t, k)): fl.append((n - 2, n, late[(t, k)]))
                self.stream(M, fl)
                if k == 2: mark[t] = vm.issued
                if t == TS and k == 0:
                    self.oob_sel(); I("v_lshl_add_u32 v13, v0, 2, s99"); td = self.poll_issue(14, 13, "0", RDBG)
                if t == NS - 4 and k == 0:
                    self.oob_sel(); I("v_and_b32 v13, 7, v0"); I("v_lshl_add_u32 v13, v13, 2, s99")
                    I(f"s_lshl_b32 s53, s{SHEAD}, 7"); I(f"s_add_u32 s53, s53, {FK_OFF}")
                    tp = self.poll_issue(15, 13, "s53")
                if t == NS - 1 and k == VPK: self.poll_issue(15, 13, "s53")
            if t == TK: self.stamp(2)
            if t == TV: self.stamp(13)
        assert not items
        self.stamp(3)
        I("v_mov_b32 v16, v13")
        if VPK > 3: self.poll_issue(15, 13, "s53")
        for b, off in pieces("Q"):
            for i in range(4): I(f"v_cvt_pk_bf16_f32 v{b+i}, v{b+2*i}, v{b+2*i+1}")
            I(f"ds_write_b128 v14, {v(b,4)} offset:{off}"); lg.issue()
        self.attn_setup()
        vm.wait(vm.issued); w0only(lambda: self.poll_check(15, 16, "s53", 3))
        lg.wait(lg.issued); self.barrier()

    def attn_setup(self): self.attn(True)
    def attn(self, setup=False):
        a = self.a; I = self.I; vm = self.vm; lg = self.lg
        M16 = "v_mfma_f32_16x16x32_bf16"
        ML = 155648; QA_LDS = 65536; QB_LDS = 131072
        O = 192; QF = 160; NM = 144; S = [112, 128]; PP = [96, 104]; RING = 64; NR = 8; E = 56; PK = 16
        VK, VV, VL16, VSC, LM, THR, NINF, VQ, TMP = 4, 5, 6, 7, 8, 9, 10, 11, 12
        LS, ONES, BIAS = 152, 60, 11.0
        SR, SG, SC1, SC2, SKO, SVO, SKM, SVM, STH = 32, 33, 34, 35, 36, 37, 38, 39, 42
        SFIN, SCA, SM1 = 55, 59, 58
        DC = self.o.get("dmacost", 16); WEV = self.o.get("wev", 4)
        if setup:
            I(f"s_lshr_b32 s{SG}, s{SW}, 2"); I(f"s_mul_i32 s{SR}, s{SG}, 7"); I(f"s_xor_b32 s{SR}, s{SR}, s{SW}")
            I(f"v_lshlrev_b32 v{VL16}, 4, v0")
            I(f"s_lshl_b32 s44, s{SR}, 13"); I(f"s_add_u32 s44, s44, {QB_LDS}"); I(f"v_add_u32 v{VQ}, s44, v{VL16}")
            I(f"s_lshl_b32 s45, s{SG}, 16"); I(f"v_subrev_u32 v{TMP+1}, s45, v{VQ}")
            I(f"s_mov_b32 s{SC1}, s{SIDX}")
            I(f"s_lshl_b32 s{SC2}, s{SIDX}, 1"); I(f"s_sub_u32 s{SC2}, 14, s{SC2}")
            I(f"s_cmp_eq_u32 s{SG}, 1"); I(f"s_cselect_b32 s{SM1}, 0, -1")
            I(f"s_lshl_b32 s43, s{SW}, 12"); I(f"s_lshl_b32 s{SVO}, s{SHEAD}, 20"); I(f"s_add_u32 s{SVO}, s{SVO}, s43")
            I(f"s_add_u32 s{SKO}, s{SVO}, 0x10000"); I(f"s_add_u32 s{SVO}, s{SVO}, 0x8000")
            I(f"s_mov_b32 s{SKM}, s43"); I(f"s_add_u32 s{SVM}, s43, 0x18000")
            I(f"s_mov_b32 s{STH}, 0x40004000"); I(f"v_mov_b32 v{NINF}, 0xff800000")
            for r in range(4): I(f"v_mov_b32 v{ONES+r}, 0x3f803f80"); I(f"v_mov_b64 {v(LS+2*r,2)}, 0")
            I(f"v_and_b32 v{THR}, 15, v0"); I(f"v_lshlrev_b32 v{VSC}, 4, v{THR}"); I(f"s_lshl_b32 s44, s{SR}, 5"); I(f"v_add_u32 v{THR}, s44, v{THR}")
            I(f"v_lshrrev_b32 v{TMP}, 4, v0"); I(f"v_lshl_add_u32 v{VSC}, v{TMP}, 9, v{VSC}"); I(f"v_lshlrev_b32 v{TMP}, 2, v{TMP}"); I(f"v_sub_u32 v{THR}, v{THR}, v{TMP}")
            I(f"v_and_b32 v{VK}, 15, v0"); I(f"v_lshlrev_b32 v{VK}, 4, v{VK}"); I(f"v_lshrrev_b32 v{TMP}, 4, v0"); I(f"v_lshl_add_u32 v{VK}, v{TMP}, {self.GSH}, v{VK}"); I(f"v_add_u32 v{VK}, 0x8000, v{VK}")
            I(f"s_lshl_b32 s{SCA}, s{SIDX}, 2"); I(f"s_add_u32 s{SCA}, s{SCA}, s{SR}"); I(f"s_lshl_b32 s{SCA}, s{SCA}, 5"); I(f"s_add_u32 s{SCA}, s{SCA}, s{SHEAD}")
            I(f"s_lshl_b32 s{SCA}, s{SCA}, 13"); I(f"s_add_u32 s{SCA}, s{SCA}, {CTX_OFF}")
            I(f"s_mov_b32 s{SFIN}, 0")
            I(f"s_lshr_b32 s56, s{SF}, 6"); I("s_lshl_b32 s56, s56, 2"); I(f"s_bfe_u32 s44, s{SF}, 0x20003"); I("s_add_u32 s56, s56, s44"); I("s_lshl_b32 s56, s56, 1")
            I(f"s_bfe_u32 s44, s{SF}, 0x10005"); I("s_add_u32 s56, s56, s44"); I(f"s_and_b32 s57, s{SF}, 7")
            I("s_mov_b32 s41, 0")
            CL = self.o.get("cl", 8)
            I(f"s_lshr_b32 s40, {1 << (CL+2)}, s{SG}"); I(f"s_or_b32 s40, s40, {1 << CL}")
            I(f"s_lshl_b32 s44, 2, s{SW}"); I("s_and_b32 s44, s44, 30"); I("s_or_b32 s40, s40, s44")
            I(f"s_cmp_eq_u32 s{SW}, 0"); I(f"s_cselect_b32 s44, {(1 << 5) | (1 << (CL+4))}, 0"); I("s_or_b32 s40, s40, s44")
            if not self.o.get("noprio"):
                l = a.label("PR"); I(f"s_cmp_eq_u32 s{SG}, 1"); I(f"s_cbranch_scc0 {l}"); I("s_setprio 1"); a.L(l)
            return
        op = lambda t, c=4: (lambda: I(t), c)
        nop = lambda: None
        def loadq(va):
            for ds in range(8):
                I(f"ds_read_b128 {v(QF+4*ds,4)}, v{va} offset:{1024*ds}"); lg.issue()
        def dma4(kind):
            sm, so = (SKM, SKO) if kind == "k" else (SVM, SVO)
            def d(i):
                def f():
                    if i == 0: I(f"s_mov_b32 m0, s{sm}"); I(f"s_xor_b32 s{sm}, s{sm}, 0x8000")
                    I(f"buffer_load_dwordx4 v{VL16}, s[{RWS}:{RWS+3}], s{so} offen offset:{1024*i}{self.ld} lds")
                    if i == 3: I(f"s_add_u32 s{so}, s{so}, 0x10000")
                return (f, DC + (8 if i == 0 else 4 if i == 3 else 0))
            return [d(i) for i in range(4)]
        self.ring_n = 0
        def rd(kind, sl, idx):
            h = {}
            def f():
                slot = self.ring_n % NR; self.ring_n += 1
                h["reg"] = RING + 4*slot
                I(f"ds_read_b128 {v(h['reg'],4)}, v{VK if kind == 'k' else VV} offset:{sl*8192+(idx << self.FSH)}"); h["tok"] = lg.issue()
            return f, h
        def wait_for(R, i):
            if R[i][1]["tok"] <= lg.done: return
            j = i
            while j + 1 < len(R) and j + 1 < i + WEV and "tok" in R[j+1][1] and R[j+1][1]["tok"] > R[i][1]["tok"]: j += 1
            lg.wait(R[j][1]["tok"])
        def otile(dt, qt): return O + 16*(dt >> 1) + 8*qt + 4*(dt & 1)
        def qk(sb, R, base, czero=False):
            def f(m):
                kt, qt, dd = m >> 3, (m >> 2) & 1, m & 3; i = base + 4*kt + dd
                wait_for(R, i); d = v(S[sb] + 8*qt + 4*kt, 4)
                c = ("0" if czero else v(NM + 4*qt, 4)) if dd == 0 else d
                I(f"{M16} {d}, {v(R[i][1]['reg'],4)}, {v(QF + 16*qt + 4*dd, 4)}, {c}")
            return [lambda m=m: f(m) for m in range(16)]
        def pv1(pb, dt, qt, reg): I(f"{M16} {v(otile(dt, qt),4)}, {v(reg,4)}, {v(PP[pb]+4*qt,4)}, {v(otile(dt, qt),4)}")
        def pv(pb, R, base, dts=range(8), exact=False):
            def f(dt, qt):
                if exact: lg.wait(R[base+dt][1]["tok"])
                else: wait_for(R, base + dt)
                pv1(pb, dt, qt, R[base+dt][1]["reg"])
            ls = [lambda qt=qt: I(f"{M16} {v(LS+4*qt,4)}, {v(ONES,4)}, {v(PP[pb]+4*qt,4)}, {v(LS+4*qt,4)}") for qt in range(2)]
            return ls + [lambda dt=dt, qt=qt: f(dt, qt) for dt in dts for qt in range(2)]
        def sm_ops(sb):
            ex = lambda i: op(f"v_exp_f32 v{E+(i&3)}, v{S[sb]+i}", 8)
            cv = lambda j: op(f"v_cvt_pk_bf16_f32 v{PP[sb]+j}, v{E+((2*j)&3)}, v{E+((2*j+1)&3)}")
            p = PP[sb]; L = [ex(0), ex(1)]
            ors = {2: f"v_or3_b32 v{LM}, v{p}, v{p+1}, v{p+2}", 4: f"v_or3_b32 v{LM}, v{LM}, v{p+3}, v{p+4}", 6: f"v_or3_b32 v{LM}, v{LM}, v{p+5}, v{p+6}"}
            for j in range(8):
                L += [ex(2*j+2), cv(j), ex(2*j+3)] if j < 7 else [op("s_nop 0"), cv(j)]
                if j in ors: L.append(op(ors[j]))
            L = [x for i, x in enumerate(L) if i != len(L) - 2]
            L += [op(f"v_or_b32 v{LM}, v{LM}, v{p+7}"), op(f"v_and_b32 v{LM}, s{STH}, v{LM}")]
            return L
        def sched(M, fixed, chain):
            n = len(M); fc = [sum(c for _, c in fixed.get(g, [])) for g in range(n)]
            tot = sum(c for _, c in chain); lo, hi = 0.0, 4000.0
            for _ in range(40):
                lev = (lo + hi) / 2
                if sum(max(0, lev - f) for f in fc) >= tot: hi = lev
                else: lo = lev
            k = 0; credit = 0.0
            for g in range(n):
                M[g]()
                for c, _ in fixed.get(g, []): c()
                credit += max(0, hi - fc[g])
                while k < len(chain) and (g == n - 1 or chain[k][1] <= credit + 2):
                    chain[k][0](); credit -= chain[k][1]; k += 1
        def put(fixed, g, items): fixed.setdefault(g, []).extend(items)
        SPL = self.o.get("spl", 18)
        ool = []
        def rarely(cmp_, body):
            lo = a.label("OOL"); lb = a.label("RET")
            I(cmp_); I(f"s_cbranch_scc1 {lo}"); a.L(lb)
            ool.append((lo, lb, body))
        def mask_ops(sb, koff):
            prs = [46, 48, 50, 52]; L = []
            if koff >= 64:
                L.append(op(f"v_subrev_u32 v{TMP+3}, 64, v{THR}")); tr = TMP + 3; koff -= 64
            elif koff < 0:
                L += [op(f"s_lshl_b32 s45, s{SG}, 6"), op(f"v_subrev_u32 v{TMP+3}, s45, v{THR}")]; tr = TMP + 3; koff = -koff - 1
            else: tr = THR
            for r0 in range(0, 16, 4):
                qt, kt = r0 >> 3, (r0 >> 2) & 1
                for r in range(4): L.append(op(f"v_cmp_lt_i32 s[{prs[r]}:{prs[r]+1}], v{tr}, {16*kt + r + koff - 16*qt}"))
                for r in range(4): L.append(op(f"v_cndmask_b32 v{S[sb]+r0+r}, v{S[sb]+r0+r}, v{NINF}, s[{prs[r]}:{prs[r]+1}]"))
            return L
        def mask_body(sb, koff):
            for c, _ in mask_ops(sb, koff): c()
        def xred(x, y, t0, t1, o):
            L = []
            for sw in ("v_permlane16_swap_b32", "v_permlane32_swap_b32"):
                L += [op(f"v_mov_b32 v{t0}, v{x}"), op(f"v_mov_b32 v{t1}, v{y}"), op("s_nop 0"), op(f"{sw} v{t0}, v{x}"), op(f"{sw} v{t1}, v{y}"),
                      op(f"{o} v{x}, v{x}, v{t0}"), op(f"{o} v{y}, v{y}, v{t1}")]
            return L
        def rowmax(sb):
            for qt in range(2):
                b = S[sb] + 8*qt; d = TMP + qt
                I(f"v_max3_f32 v{d}, v{b}, v{b+1}, v{b+2}"); I(f"v_max3_f32 v{d}, v{d}, v{b+3}, v{b+4}"); I(f"v_max3_f32 v{d}, v{d}, v{b+5}, v{b+6}"); I(f"v_max_f32 v{d}, v{d}, v{b+7}")
            for c, _ in xred(TMP, TMP+1, TMP+2, TMP+3, "v_max_f32"): c()
        def init_max():
            rowmax(0)
            for qt in range(2): I(f"v_max_f32 v{TMP+qt}, {f2u(-1e30)}, v{TMP+qt}"); I(f"v_add_f32 v{TMP+qt}, {f2u(BIAS)}, v{TMP+qt}")
            for r in range(8): I(f"v_sub_f32 v{NM+r}, 0, v{TMP+(r>>2)}")
            return [op(f"v_sub_f32 v{S[0]+r}, v{S[0]+r}, v{TMP+(r>>3)}") for r in range(16)]
        rare = []
        def check(sb, other=True):
            lr = a.label("RARE"); lb = a.label("BACK")
            I(f"v_cmp_ne_u32 vcc, 0, v{LM}")
            if self.o.get("a_nocheck"): I("s_mov_b64 vcc, 0")
            I(f"s_cbranch_vccnz {lr}"); a.L(lb)
            rare.append((lr, lb, sb, other))
        def fin_body():
            I(f"s_mov_b32 s{SFIN}, 2")
            I(f"v_rcp_f32 v{TMP}, v{LS}"); I(f"v_rcp_f32 v{TMP+2}, v{LS+4}"); I(f"v_mov_b32 v{TMP+1}, v{TMP}"); I(f"v_mov_b32 v{TMP+3}, v{TMP+2}")
            for r in range(4): I(f"v_mov_b64 {v(LS+2*r,2)}, 0")
            for q in range(8):
                for i in range(8*q, 8*q+8, 2): I(f"v_pk_mul_f32 {v(O+i,2)}, {v(O+i,2)}, {v(TMP+2*(q&1),2)}")
                for i in range(4): I(f"v_cvt_pk_bf16_f32 v{PK+4*q+i}, v{O+8*q+2*i}, v{O+8*q+2*i+1}")
                for i in range(8*q, 8*q+8, 2): I(f"v_mov_b64 {v(O+i,2)}, 0")
        coff = lambda q: (q & 3)*1024
        def st_body():
            I(f"s_add_u32 s44, s{SCA}, 4096"); I(f"s_mov_b32 s{SFIN}, 3")
            for q in range(8):
                I(f"buffer_store_dwordx4 {v(PK+4*q,4)}, v{VL16}, s[{RWS}:{RWS+3}], s{SCA if q < 4 else 44} offen offset:{coff(q)}{self.st}")
        TR = [RING + 4*(2+i) for i in range(6)]
        def head(R, vmw, with_mfma=True, post=(), more=(), pre=None):
            rf = [(f, 4) for f, h in R]; sm2 = sm_ops(0)[SPL:]
            M = [lambda dt=dt, qt=qt: pv1(1, dt, qt, TR[dt-2]) for dt in range(2, 8) for qt in range(2)] if with_mfma else [nop]*12
            if with_mfma: I("s_waitcnt lgkmcnt(4)")
            nb = self.o.get("nb", 4); more = list(more); m0 = len(more) // 3
            if pre is not None: more = list(pre) + more; m0 = len(pre)
            sched(M[:4], {}, sm2[:nb] + more[:m0])
            vmw(); I("s_waitcnt lgkmcnt(0)"); lg.mark_all_done(); self.barrier(); self.ring_n = 0
            fx = {0: rf[0:2], 1: rf[2:4], 2: rf[4:5], 4: rf[5:6], 6: rf[6:7], 7: [(nop, 8 + 8*len(post))]}
            sched(M[4:], fx, sm2[nb:] + more[m0:])
            check(0)
            for p in post: p()
        def mk_reads():
            return ([rd("k", 0, i) for i in range(8)] + [rd("v", 0, i) for i in range(8)] +
                    [rd("k", 1, i) for i in range(8)] + [rd("v", 1, i) for i in range(8)])
        def last_use(F):
            b = (0, 18, 34, 52)[F >> 3]; f = F & 7
            return b + (2*f + 1 if (F >> 3) & 1 else 8*(f >> 2) + 4 + (f & 3))
        def mid(R, dmas, kx, mb=None, trans=False, endops=(), early=(), g=0):
            rf = [(f, 4) for f, h in R]
            fa = {0: [rf[7]]}; fb = {}
            G_ = g
            for g, e in zip((1, 3, 9, 11), early): put(fa, g, [e])
            for F in range(8, 32):
                g = last_use(F - 8) + 1
                put(fa, g, [rf[F]]) if g < 34 else put(fb, g - 34, [rf[F]])
            D = sum((dma4(k) for k in dmas), [])
            st_ = self.o.get("gst", 4); of_ = self.o.get("gof", 2)
            gaps = [2 + of_*G_*2 + 2*st_*n for n in range(4)] if len(D) == 4 else [2 + of_*G_ + st_*n for n in range(8)]
            for g, d in zip(gaps, D): put(fa, g, [d]) if g < 33 else put(fb, g - 33, [d])
            PT = self.o.get("pt", 0)
            if PT and G_ == 0:
                pts = {1: [(0, 24, 2), (1, 21, 0)], 2: [(0, 8, 2), (0, 24, 0), (1, 7, 2), (1, 21, 0)], 3: [(0, 0, 2), (0, 8, 0), (0, 16, 2), (0, 24, 0), (0, 32, 2), (1, 7, 0), (1, 15, 2), (1, 21, 0)],
                       4: [(0, 16, 2), (1, 21, 0)], 5: [(0, 32, 2), (1, 21, 0)]}[PT]
                for part, g, p in pts: put(fb if part else fa, g, [op(f"s_setprio {p}")])
            put(fa, 33, [(nop, 16)])
            sched(qk(0, R, 0, trans) + pv(0, R, 8), fa, sm_ops(1))
            check(1, other=not trans)
            if mb: mb()
            pre = []
            if trans:
                I(f"s_mov_b32 s{SFIN}, 1")
                pre = init_max()
            put(fb, 18, [op(f"v_xor_b32 v{VV}, 0x10000, v{VK}")] + kx)
            for n, e in enumerate(endops): put(fb, 11 - n, [e])
            put(fb, 21, [(nop, 12)])
            sched(qk(1, R, 16) + pv(1, R, 24, range(2)), fb, pre + sm_ops(0)[:SPL])
            assert [R[26+i][1]["reg"] for i in range(6)] == TR
        vm4 = lambda: I("s_waitcnt vmcnt(4)")
        def vm08():
            lo = a.label("W8"); lb = a.label("W8R")
            I(f"s_cmp_eq_u32 s{SFIN}, 3"); I(f"s_cbranch_scc1 {lo}"); I("s_waitcnt vmcnt(0)"); a.L(lb)
            def b(): I("s_waitcnt vmcnt(8)"); I(f"s_mov_b32 s{SFIN}, 4")
            ool.append((lo, lb, b))
        m1 = lambda sb, ko: (lambda: rarely(f"s_cmp_eq_u32 s{SC1}, s{SM1}", lambda: mask_body(sb, ko)))
        fin = lambda: rarely(f"s_cmp_eq_u32 s{SFIN}, 1", fin_body)
        sta = (lambda: rarely(f"s_cmp_eq_u32 s{SFIN}, 2", st_body), 8)
        KR, VR, SH, WO, AD = 16, 23, 28, 32, 40
        def side_loads():
            L = []; E = lambda t: L.append(op(t)); V = lambda t: L.append(op(t, DC))
            E(f"v_lshrrev_b32 v{AD}, 5, v0"); E(f"v_and_b32 v{AD+1}, 31, v0"); E(f"v_lshlrev_b32 v{AD+2}, 12, v{AD}"); E(f"v_lshl_add_u32 v{AD+2}, v{AD+1}, 2, v{AD+2}")
            E(f"s_lshr_b32 s60, s{SF}, 1"); E("s_lshl_b32 s60, s60, 15"); E(f"s_and_b32 s61, s{SF}, 1"); E("s_lshl_b32 s61, s61, 9"); E("s_add_u32 s60, s60, s61")
            E(f"s_lshl_b32 s61, s{SW}, 6"); E("s_add_u32 s60, s60, s61"); E("s_add_u32 s61, s60, 16384")
            E(f"v_lshrrev_b32 v{AD+3}, 4, v0"); E(f"v_lshlrev_b32 v{AD+3}, 12, v{AD+3}"); E(f"v_and_b32 v{AD+4}, 15, v0"); E(f"v_lshl_add_u32 v{AD+3}, v{AD+4}, 2, v{AD+3}")
            for j in range(8): V(f"buffer_load_dword v{WO+j}, v{AD+3}, s[{RE}:{RE+3}], s{60+(j>>2)} offen offset:{1024*(j&3)}")
            E("s_lshr_b32 s62, s2, 3"); E("s_lshl_b32 s62, s62, 16"); E(f"s_lshl_b32 s63, s{SW}, 13"); E("s_add_u32 s62, s62, s63")
            E("s_and_b32 s63, s2, 7"); E("s_lshl_b32 s63, s63, 7"); E("s_add_u32 s62, s62, s63"); E(f"v_add_u32 v{AD+3}, s62, v{AD+2}")
            for i in range(3): E(f"v_subrev_u32 v{AD+4+i}, {3072-1024*i}, v{AD+3}")
            E("s_lshl_b32 s63, s63, 2"); E(f"v_lshl_add_u32 v{AD+7}, v{AD+1}, 4, s63")
            for i in range(3): V(f"buffer_load_dword v{KR+i}, v{AD+4+i}, s[{RA}:{RA+3}], 0 offen")
            for i in range(4): V(f"buffer_load_dword v{KR+3+i}, v{AD+3}, s[{RA}:{RA+3}], 0 offen offset:{1024*i}")
            for i in range(4): V(f"buffer_load_dword v{VR+i}, v{AD+3}, s[{RC}:{RC+3}], 0 offen offset:{1024*i}")
            V(f"buffer_load_dwordx4 {v(SH,4)}, v{AD+7}, s[{RD}:{RD+3}], 0 offen")
            return L
        NSL = 21
        def side_math():
            L = []; E = lambda t: L.append(op(t)); V = lambda t: L.append(op(t, DC))
            W2 = 48
            E("s_mov_b32 s60, 0x05040100"); E("s_mov_b32 s61, 0x07060302")
            for j in range(4): E(f"v_perm_b32 v{W2+j}, v{WO+2*j+1}, v{WO+2*j}, s60")
            for j in range(4): E(f"v_perm_b32 v{W2+4+j}, v{WO+2*j+1}, v{WO+2*j}, s61")
            E(f"s_and_b32 s60, s{SF}, 1"); E("s_lshl_b32 s60, s60, 2"); E(f"s_lshr_b32 s61, s{SW}, 1"); E("s_add_u32 s60, s60, s61"); E("s_lshl_b32 s60, s60, 19")
            E(f"s_lshr_b32 s61, s{SF}, 1"); E("s_lshl_b32 s61, s61, 12"); E("s_add_u32 s60, s60, s61"); E(f"s_and_b32 s61, s{SW}, 1"); E("s_lshl_b32 s61, s61, 11")
            E("s_add_u32 s60, s60, s61"); E(f"s_add_u32 s60, s60, {WOT_OFF}")
            for mt in range(2): V(f"buffer_store_dwordx4 {v(W2+4*mt,4)}, v{VL16}, s[{RWS}:{RWS+3}], s60 offen offset:{1024*mt}{self.st}")
            KU, SU, OO, VU, PQ = 32, 42, 48, 39, 52
            for c in range(2):
                def unp(d, sreg, half): E(f"v_lshlrev_b32 v{d}, 16, v{sreg}" if half == 0 else f"v_and_b32 v{d}, 0xffff0000, v{sreg}")
                for i in range(7): unp(KU+i, KR+i, c)
                for j in range(4): unp(SU+j, SH + 2*c + (j >> 1), j & 1)
                for o in range(4):
                    E(f"v_mul_f32 v{OO+o}, v{KU+o}, v{SU+3}")
                    for j in (2, 1, 0): E(f"v_fmac_f32 v{OO+o}, v{KU+o+3-j}, v{SU+j}")
                    unp(VU, VR+o, c)
                    E(f"v_mul_f32 v{OO+o}, v{OO+o}, v{VU}")
                d = PQ + 2*(1-c)
                E(f"v_cvt_pk_bf16_f32 v{d}, v{OO+3}, v{OO+2}"); E(f"v_cvt_pk_bf16_f32 v{d+1}, v{OO+1}, v{OO}")
            E(f"v_lshlrev_b32 v{AD+1}, 5, v{AD+1}"); E(f"v_lshl_add_u32 v{AD+1}, v{AD}, 4, v{AD+1}")
            E(f"v_permlane32_swap_b32 v{PQ+2}, v{PQ}"); E(f"v_permlane32_swap_b32 v{PQ+3}, v{PQ+1}")
            E("s_lshr_b32 s60, s2, 3"); E("s_lshl_b32 s60, s60, 16"); E(f"s_lshl_b32 s61, s{SW}, 13"); E("s_add_u32 s60, s60, s61")
            E("s_and_b32 s61, s2, 7"); E("s_lshl_b32 s61, s61, 10"); E("s_add_u32 s60, s60, s61"); E(f"s_add_u32 s60, s60, {KVT_OFF}")
            V(f"buffer_store_dwordx4 {v(PQ,4)}, v{AD+1}, s[{RWS}:{RWS+3}], s60 offen{self.st}")
            return L
        CL = self.o.get("cl", 8)
        def touch(k):
            if k in (1, 2):
                I(f"s_lshl_b32 s60, s{SF}, 14")
                if k == 2: I("s_add_u32 s60, s60, 8192")
                I("v_lshlrev_b32 v16, 7, v0"); r = RE
            elif k in (3, 4):
                I("s_lshr_b32 s60, s2, 3"); I("s_lshl_b32 s60, s60, 16"); I("s_and_b32 s61, s2, 7"); I("s_lshl_b32 s61, s61, 7"); I("s_add_u32 s60, s60, s61")
                I("v_lshlrev_b32 v16, 10, v0"); r = RA if k == 3 else RC
            else:
                I(f"s_lshl_b32 s60, s{SF}, 13"); I("v_lshlrev_b32 v16, 7, v0"); r = RB
            I(f"buffer_load_dword v1, v16, s[{r}:{r+3}], s60 offen")
        LSITE = a.label("SITE")
        def site_code():
            a.L(LSITE)
            def ret(): I("s_nop 1"); I("s_setpc_b64 s[76:77]")
            l = a.label("SN"); I(f"s_cmp_lg_u32 s41, {CL}"); I(f"s_cbranch_scc1 {l}")
            for c, _ in side_loads(): c()
            ret(); a.L(l)
            l = a.label("SN"); I(f"s_add_u32 s44, s41, s{SG}"); I(f"s_cmp_lg_u32 s44, {CL+2}"); I(f"s_cbranch_scc1 {l}")
            for c, _ in side_math(): c()
            ret(); a.L(l)
            for k in range(1, 6):
                l = a.label("SN")
                I(f"s_cmp_lg_u32 s41, {k}"); I(f"s_cbranch_scc1 {l}")
                touch(k); ret(); a.L(l)
            I(f"s_lshl_b32 s44, s{SF}, 2"); I(f"s_add_u32 s44, s44, {FY_OFF}")
            sv = self.save(); self.publish(44, 2); self.restore(sv)
            ret()
        def spf():
            I("s_add_u32 s41, s41, 1"); rarely("s_bitcmp1_b32 s40, s41", lambda: I(f"s_call_b64 s[76:77], {LSITE}"))
        spub = (spf, 12)
        def snap():
            I(f"s_mov_b32 s61, {FY_OFF}"); I(f"buffer_load_dwordx4 v[52:55], v{VL16}, s[{RWS}:{RWS+3}], s61 offen sc1")
        def side_check():
            lo = a.label("SCK"); lb = a.label("SCR")
            def test():
                I("v_and_b32 v52, v52, v53"); I("v_and_b32 v54, v54, v55"); I("v_and_b32 v52, v52, v54"); I("v_and_b32 v52, 2, v52"); I("v_cmp_ne_u32 vcc, 2, v52")
            test(); I(f"s_cbranch_vccnz {lo}"); a.L(lb)
            def spin():
                lp = a.label("SPL")
                I("s_mov_b32 s99, 20000"); a.L(lp)
                I("s_sleep 2"); I(f"buffer_load_dwordx4 v[52:55], v{VL16}, s[{RWS}:{RWS+3}], s61 offen sc1"); I("s_waitcnt vmcnt(0)")
                test(); I(f"s_cbranch_vccz {lb}")
                I("s_sub_u32 s99, s99, 1"); I("s_cmp_lg_u32 s99, 0"); I(f"s_cbranch_scc1 {lp}")
            ool.append((lo, lb, spin))
        m2 = lambda sb, ko: (lambda: rarely(f"s_cmp_eq_u32 s{SC2}, 0", lambda: (snap(), mask_body(sb, ko))))
        LEV = a.label("EVEN"); LODM = a.label("ODDM"); LTRANS = a.label("TRANS"); LP2 = a.label("P2"); LP2B = a.label("P2B"); LDRAIN = a.label("DRAIN")
        self.stamp(8)
        self.ring_n = 0
        R = [rd("k", 0, i) for i in range(8)] + [rd("k", 1, i) for i in range(8)]
        def qrd(i):
            I(f"ds_read_b128 {v(QF+4*i,4)}, v{TMP+1} offset:{1024*i}"); return lg.issue()
        for i in range(4): qrd(i); R[i][0]()
        for i in range(4, 8): tq = qrd(i)
        D = dma4("v") + dma4("k")
        fx = {g: [(R[4+g][0], 4)] for g in range(4)}
        put(fx, 3, [(lambda: lg.wait(tq), 4)])
        for F in range(8, 15): put(fx, last_use(F - 8) + 1, [(R[F][0], 4)])
        for n, d in enumerate(D): put(fx, 2*n, [d])
        sched(qk(0, R, 0, True), fx, [])
        m1(0, 0)()
        pre = init_max()
        fx = {0: [(R[15][0], 4)], 8: [op(f"v_xor_b32 v{VV}, 0x10000, v{VK}"), op(f"v_xor_b32 v{VK}, 0x4000, v{VK}")]}
        sched(qk(1, R, 8), fx, pre + sm_ops(0)[:SPL])
        R = mk_reads()
        head(R, vm4, False, post=[m1(1, 32)])
        svm = self.save()
        self.stamp(9)
        LOD = [a.label("ODD0"), a.label("ODD1")]
        I(f"s_cmp_eq_u32 s{SG}, 1"); I(f"s_cbranch_scc1 {LOD[1]}"); I(f"s_branch {LOD[0]}")
        vm0 = lambda: I("s_waitcnt vmcnt(0)")
        def loops(g):
            LEV = a.label("EVEN"); LP2 = a.label("P2")
            mm = (lambda sb, ko: m1(sb, ko)) if g else (lambda sb, ko: None)
            a.L(LEV)
            R = mk_reads(); head(R, vm4)
            mid(R, "k", [op(f"v_xor_b32 v{VK}, 0x4000, v{VK}")], mb=mm(0, 0), early=[spub], g=g)
            R = mk_reads(); head(R, vm4, post=[m1(1, 32)] if g else [])
            assert self.lg.issued - self.lg.done == svm[2] - svm[3]
            a.L(LOD[g])
            mid(R, "v", [op(f"v_xor_b32 v{VK}, 0xc000, v{VK}")], mb=mm(0, 64), endops=[op(f"s_sub_u32 s{SC1}, s{SC1}, 1")], early=[spub], g=g)
            I(f"s_cmp_lg_u32 s{SC1}, -1"); I(f"s_cbranch_scc1 {LEV}")
            self.stamp(14)
            if g:
                loadq(VQ); I("s_waitcnt lgkmcnt(0)"); I(f"v_xor_b32 v{VK}, 0x4000, v{VK}")
            R = mk_reads(); head(R, vm4, more=mask_ops(1, 96) if g else ())
            mid(R, "k", [op(f"v_xor_b32 v{VK}, 0x8000, v{VK}")], mb=m2(0, -1), trans=bool(g), early=[spub], g=g)
            self.stamp(15)
            I(f"s_cmp_eq_u32 s{SC2}, 0"); I(f"s_cbranch_scc1 {LDRAIN}")
            a.L(LP2)
            R = mk_reads(); head(R, vm08 if g else vm0)
            mid(R, "kv", [op(f"v_xor_b32 v{VK}, 0x8000, v{VK}")], mb=m2(0, -1), endops=[sta] if g else [],
                early=[spub] + ([(fin, 8)] if g else []) + [op(f"s_sub_u32 s{SC2}, s{SC2}, 1")], g=g)
            I(f"s_cmp_lg_u32 s{SC2}, 0"); I(f"s_cbranch_scc1 {LP2}")
        loops(1); I(f"s_branch {LDRAIN}")
        loops(0)
        a.L(LDRAIN)
        self.stamp(10)
        R2 = [rd("v", 0, i) for i in range(8)] + [rd("v", 1, i) for i in range(8)]
        rf = [(f, 4) for f, h in R2]
        ts, ts2, ts3 = self.tail_setup()
        tsa = [x for x in ts if x[1] == 4]; tsl = [x for x in ts if x[1] != 4]
        mk_ = mask_ops(1, -33)
        head(R2, lambda: (vm08(), side_check(), tsl[0][0](), tsl[1][0]()), post=[fin, sta[0]], pre=tsa[:8], more=tsa[8:16] + [tsl[2]] + mk_)
        ts = tsa[16:]
        if self.o.get("dst"): self.stamp(17)
        pre = []; E_ = lambda t: pre.append(op(t))
        E_(f"s_add_u32 s44, s{SWK}, {ML}"); E_(f"v_add_u32 v54, s44, v{VL16}")
        E_(f"s_lshl_b32 s46, s{SW}, 13"); E_(f"v_add_u32 v55, s46, v{VL16}")
        E_(f"s_sub_u32 s54, 15, s{SIDX}"); E_(f"s_lshl_b32 s54, s54, 2"); E_(f"s_add_u32 s54, s54, s{SR}"); E_("s_lshl_b32 s54, s54, 5"); E_(f"s_add_u32 s54, s54, s{SHEAD}")
        E_("s_lshl_b32 s54, s54, 13"); E_(f"s_lshl_b32 s44, s{SG}, 12"); E_("s_add_u32 s54, s54, s44"); E_(f"s_add_u32 s54, s54, {CTX_OFF}")
        def lsum():
            def wml():
                I(f"ds_write_b128 v54, {v(150,4)}"); lg.issue()
            return [op(f"v_mov_b32 v150, v{NM}"), op(f"v_mov_b32 v{LS+1}, v{LS+4}"), (wml, 4)]
        def osend(g, i):
            def f():
                I(f"ds_write_b128 v55, {v(O+32*(1-g)+4*i,4)} offset:{1024*i}"); lg.issue()
            return (f, 16)
        lj = a.label("MGJ"); LMG = [a.label("MG0"), a.label("MG1")]; LFB = a.label("FB1"); LSK = a.label("SKIP"); LS1 = a.label("SK1")
        for c, _ in ts: c()
        I(f"s_lshl_b32 s45, s{SG}, 1"); I(f"s_sub_u32 s45, s{SR}, s45"); I("s_cmp_lt_i32 s45, 1"); I(f"s_cbranch_scc1 {LSK}")
        svd = self.save(); rnd = self.ring_n
        WA_ = self.o.get("wa", 6); tsA, tsB = ts2[:WA_], ts2[WA_:]
        setup_ = pre + ts3; n8 = (len(setup_) + 17) // 18
        fx = {g: setup_[g*n8:(g+1)*n8] for g in range(18)}
        for n, x in enumerate(tsA): put(fx, 1 + n * 17 // max(1, len(tsA)), [x])
        for F in range(7, 15): put(fx, 2*(F - 7) + (2 if F > 7 else 0), [rf[F]])
        sched(pv(0, R2, 0), fx, sm_ops(1))
        check(1)
        rf[15][0]()
        if self.o.get("dst"): self.stamp(20)
        I(f"s_cmp_eq_u32 s{SG}, 1"); I(f"s_cbranch_scc1 {LFB}")
        sv2 = self.save(); PR = 64
        for g in (0, 1):
            if g: a.L(LFB); self.restore(sv2)
            own = O + 32*g; snd = O + 32*(1-g)
            dts = list(range(4*(1-g), 4*(1-g)+4)) + list(range(4*g, 4*g+4))
            fx = {10 + i: [osend(g, i)] for i in range(8)}
            put(fx, 8, lsum())
            for n, x in enumerate(tsB): put(fx, n * 10 // max(1, len(tsB)), [x])
            sched(pv(1, R2, 8, dts, True), fx, self.tail_valu())
            a.L(LMG[g])
            if self.o.get("dst"): self.stamp(18)
            I(f"v_xor_b32 v54, 0x1c00, v54"); I(f"v_xor_b32 v55, 0xe000, v55")
            I("s_waitcnt lgkmcnt(0)"); lg.mark_all_done(); self.barrier()
            if self.o.get("dst"): self.stamp(19)
            I(f"ds_read_b128 {v(96,4)}, v54"); t0 = lg.issue()
            tk = []
            for i in range(8):
                I(f"ds_read_b128 {v(PR+4*i,4)}, v55 offset:{1024*i}"); tk.append(lg.issue())
            lg.wait(t0)
            for q in range(2):
                I(f"v_min_f32 v100, v{150+q}, v{96+q}"); I(f"v_sub_f32 v101, v100, v{150+q}"); I(f"v_sub_f32 v102, v100, v{96+q}")
                I("v_exp_f32 v101, v101"); I("v_exp_f32 v102, v102")
                I(f"v_mul_f32 v103, v101, v{LS+q}"); I(f"v_fmac_f32 v103, v102, v{98+q}"); I("v_rcp_f32 v103, v103")
                b = 104 + 4*q
                I(f"v_mul_f32 v{b}, v101, v103"); I(f"v_mul_f32 v{b+1}, v101, v103"); I(f"v_mul_f32 v{b+2}, v102, v103"); I(f"v_mul_f32 v{b+3}, v102, v103")
            tw = self.tail_writes()
            for q in range(4):
                b = 104 + 4*(q & 1)
                for i in range(8*q, 8*q+8, 2): I(f"v_pk_mul_f32 {v(own+i,2)}, {v(own+i,2)}, {v(b,2)}")
                lg.wait(tk[2*q+1])
                if not self.o.get("twe"):
                    for c in tw[3*q:3*q+3]: c()
                for i in range(8*q, 8*q+8, 2): I(f"v_pk_fma_f32 {v(own+i,2)}, {v(PR+i,2)}, {v(b+2,2)}, {v(own+i,2)}")
                for i in range(4): I(f"v_cvt_pk_bf16_f32 v{snd+4*q+i}, v{own+8*q+2*i}, v{own+8*q+2*i+1}")
                I(f"buffer_store_dwordx4 {v(snd+4*q,4)}, v{VL16}, s[{RWS}:{RWS+3}], s54 offen offset:{coff(q)}{self.st}"); self.tctx = vm.issue()
            if self.o.get("twe"):
                for c in tw: c()
            if not g: I(f"s_branch {lj}")
        def skip_path():
            keep = self.save(); tctx = self.tctx; th = self.th; wt = dict(self.wtok)
            a.L(LSK); self.restore(svd); self.ring_n = rnd
            I("s_cmp_lt_i32 s45, 0"); I(f"s_cbranch_scc1 {LS1}")
            rf[7][0]()
            for f in pv(0, R2[:8], 0): f()
            a.L(LS1)
            for c, _ in setup_ + ts2 + lsum() + self.tail_valu(): c()
            l1 = a.label("SG1"); I(f"s_cmp_eq_u32 s{SG}, 1"); I(f"s_cbranch_scc1 {l1}")
            for g in (0, 1):
                if g: a.L(l1)
                for i in range(8): osend(g, i)[0]()
                I(f"s_branch {LMG[g]}")
            self.restore(keep); self.tctx = tctx; self.th = th; self.wtok = wt
        a.L(lj)
        I("s_setprio 0")
        self.stamp(4)
        def cold():
            skip_path()
            site_code()
            for (lo, lb, body) in ool:
                a.L(lo); body(); I(f"s_branch {lb}")
            for (lr, lb, sb, other) in rare:
                a.L(lr)
                I("s_nop 15")
                rowmax(sb)
                for q in range(2): I(f"v_add_f32 v{TMP+q}, {f2u(BIAS)}, v{TMP+q}"); I(f"v_max_f32 v{TMP+q}, 0, v{TMP+q}"); I(f"v_exp_f32 v{TMP+2+q}, -v{TMP+q}")
                for r in range(8): I(f"v_sub_f32 v{NM+r}, v{NM+r}, v{TMP+(r>>2)}")
                for r in range(16): I(f"v_sub_f32 v{S[sb]+r}, v{S[sb]+r}, v{TMP+(r>>3)}")
                if other:
                    for r in range(16): I(f"v_sub_f32 v{S[1-sb]+r}, v{S[1-sb]+r}, v{TMP+(r>>3)}")
                for r in range(64): I(f"v_mul_f32 v{O+r}, v{O+r}, v{TMP+2+((r>>3)&1)}")
                for r in range(8): I(f"v_mul_f32 v{LS+r}, v{LS+r}, v{TMP+2+(r>>2)}")
                for c, _ in sm_ops(sb): c()
                I("s_nop 1"); I(f"s_branch {lb}")
        self.attn_rare = cold

    HB = 65536; HC = 4416; XB = 136192; YB = 148480
    SC, SJ, SB, SCH, SHB_, SWO, SCX = 34, 35, 36, 37, 38, 39, 40
    WS_ = [16, 24, 32, 40, 176, 184, 48, 56] + list(range(80, 144, 8))
    def tail_setup(self):
        I = self.I; L = []; E = lambda t: L.append((lambda: I(t), 4))
        SC, SJ, SB, SCH, SHB_, SWO, SCX = self.SC, self.SJ, self.SB, self.SCH, self.SHB_, self.SWO, self.SCX
        self.wtok = {}; self.wslot = dict(enumerate(self.WS_))
        E(f"s_lshr_b32 s{SC}, s{SW}, 2"); E(f"s_and_b32 s{SJ}, s{SW}, 3")
        E(f"s_lshl_b32 s{SCH}, s{SF}, 1"); E(f"s_add_u32 s{SCH}, s{SCH}, s{SC}"); E(f"s_lshl_b32 s{SCH}, s{SCH}, 12")
        E(f"s_lshl_b32 s60, s{SJ}, 10"); E("v_add_u32 v50, s60, v6"); E("v_subrev_u32 v51, 16, v50")
        E(f"s_lshl_b32 s63, s{SW}, 18"); E(f"s_lshl_b32 s62, s{SF}, 5"); E("s_add_u32 s63, s63, s62"); E(f"s_add_u32 s63, s63, {KVT_OFF}")
        E("v_lshrrev_b32 v48, 1, v0"); E("v_and_b32 v158, 1, v0" if False else "v_and_b32 v3, 1, v0"); E("v_lshlrev_b32 v49, 13, v48"); E("v_lshl_add_u32 v49, v3, 4, v49")
        def ld(t):
            def f(): I(t); self.th = self.vm.issue()
            L.append((f, 16))
        ld(f"buffer_load_dwordx4 {v(160,4)}, v51, s[{RB}:{RB+3}], s{SCH} offen")
        ld(f"buffer_load_dwordx4 {v(164,4)}, v50, s[{RB}:{RB+3}], s{SCH} offen")
        ld(f"buffer_load_dwordx4 {v(168,4)}, v49, s[{RWS}:{RWS+3}], s63 offen{self.ld}")
        E(f"s_lshl_b32 s{SWO}, s57, 19"); E(f"s_lshl_b32 s60, s{SW}, 15"); E(f"s_add_u32 s{SWO}, s{SWO}, s60"); E(f"s_add_u32 s{SWO}, s{SWO}, {WOT_OFF}")
        E("s_and_b32 s60, s56, 1"); E("s_lshl_b32 s60, s60, 18"); E(f"s_add_u32 s{SWO}, s{SWO}, s60")
        TR_ = self.o.get("trot", 1)
        if TR_ == 0: E("s_mov_b32 s58, 0")
        elif TR_ == 1: E("s_mov_b32 s58, s57")
        else: E("s_and_b32 s58, s56, 6"); E("s_add_u32 s58, s58, s57")
        def w1(i, mt):
            if mt == 0 and i % 2 == 0: self.wadr(i)
            I(f"buffer_load_dwordx4 {v(self.WS_[i]+4*mt,4)}, v6, s[{RWS}:{RWS+3}], s59 offen offset:{(i&1)*2048+mt*1024}{self.ld}"); self.wtok[i] = self.vm.issue()
        L2 = [(lambda i=i, mt=mt: w1(i, mt), 16) for i in range(self.o.get("we", 6)) for mt in range(2)]
        L3 = []; L, Lx = L3, L
        E = lambda t: L3.append((lambda: I(t), 4))
        E(f"s_mul_i32 s{SB}, s{SC}, 6144"); E(f"s_add_u32 s{SB}, s{SB}, {self.XB}")
        E(f"s_mul_i32 s{SHB_}, s{SC}, {8*self.HC}"); E(f"s_add_u32 s{SHB_}, s{SHB_}, {self.HB}")
        E(f"s_xor_b32 s{SCX}, s56, 1"); E(f"s_lshl_b32 s{SCX}, s{SCX}, 19"); E(f"s_lshl_b32 s60, s{SW}, 14"); E(f"s_add_u32 s{SCX}, s{SCX}, s60"); E(f"s_add_u32 s{SCX}, s{SCX}, {CTX_OFF}")
        E("s_and_b32 s60, s56, 1"); E("s_lshl_b32 s60, s60, 17"); E(f"s_add_u32 s{SCX}, s{SCX}, s60")
        return Lx, L2, L3
    def wreg(self, i):
        return self.WS_[i % len(self.WS_)]
    def wload(self, i):
        I = self.I; r = self.wslot[i]
        I(f"s_add_u32 s61, s{self.SWO}, {i*2048}")
        for mt in range(2):
            I(f"buffer_load_dwordx4 {v(r+4*mt,4)}, v6, s[{RWS}:{RWS+3}], s61 offen offset:{mt*1024}{self.ld}"); self.wtok[i] = self.vm.issue()
    def wadr(self, i):
        I = self.I
        I(f"s_add_u32 s59, s58, {i >> 1}"); I("s_and_b32 s59, s59, 7"); I("s_lshl_b32 s59, s59, 12"); I(f"s_add_u32 s59, s59, s{self.SWO}")
    def tail_valu(self):
        I = self.I; HC = self.HC; L = []; E = lambda t: L.append((lambda: I(t), 4))
        SJ, SB, SHB_ = self.SJ, self.SB, self.SHB_
        Ee, Eo, Oe, Oo = 160, 113, 122, 131
        E(f"s_add_u32 s60, s{SHB_}, 64"); E("v_add_u32 v138, s60, v50")
        E("v_and_b32 v51, 3, v48"); E("v_mul_u32_u24 v139, 1536, v51"); E("v_lshrrev_b32 v53, 2, v48"); E("v_lshl_add_u32 v139, v53, 4, v139")
        E("v_and_b32 v53, 1, v0"); E("v_mul_u32_u24 v53, 6144, v53"); E(f"s_lshl_b32 s60, s{SW}, 7"); E(f"s_add_u32 s60, s60, {self.XB + 512}"); E("v_add3_u32 v139, v139, v53, s60")
        E("v_and_b32 v51, 3, v0")
        for r in range(2): E(f"v_mov_b64 {v(172+2*r,2)}, 0")
        E("v_bfe_u32 v140, v0, 2, 3"); E(f"v_mul_u32_u24 v140, {HC}, v140"); E("v_lshl_add_u32 v140, v51, 4, v140"); E(f"v_add_u32 v140, s{SHB_}, v140")
        E(f"s_mul_i32 s60, s{SJ}, 1536"); E(f"s_add_u32 s60, s60, s{SB}"); E("v_lshl_add_u32 v141, v0, 3, s60")
        L.append((lambda: self.vm.wait(self.th - 1), 4))
        for k in range(7): E(f"v_alignbit_b32 v{Oe+k}, v{Ee+k+1}, v{Ee+k}, 16")
        for k in range(1, 7): E(f"v_alignbit_b32 v{Oo+k}, v{Ee+k+1}, v{Ee+k}, 16")
        for k in range(1, 7): E(f"v_mov_b32 v{Eo+k}, v{Ee+k}")
        return L
    def tail_writes(self):
        I = self.I; lg = self.lg; HC = self.HC; L = []
        Ee, Eo, Oe, Oo = 160, 113, 122, 131
        def W(t, pre=None):
            def f():
                if pre: pre()
                I(t); lg.issue()
            L.append(f)
        for r in range(8):
            sft = 1 + r; k = sft >> 1
            base = ((Oe, Oo) if sft & 1 else (Ee, Eo))[k & 1]
            W(f"ds_write_b128 v138, {v(base+k,4)} offset:{r*HC}")
        W(f"ds_write_b128 v140, {v(172,4)}"); W(f"ds_write_b64 v141, {v(172,2)}")
        W(f"ds_write_b128 v139, {v(168,4)}", lambda: self.vm.wait(self.th))
        return L
    def tailp(self):
        a = self.a; I = self.I; vm = self.vm; lg = self.lg
        HB, HC, YB = self.HB, self.HC, self.YB
        SC, SJ, SB, SCH, SHB_, SWO, SCX = self.SC, self.SJ, self.SB, self.SCH, self.SHB_, self.SWO, self.SCX
        ACC = 192; FRS = [224, 240, 64]; RD_ = 224; OACC = 192; YT = self.XB
        VL16, VA, VB, T, VP, VPA, VO, GR, VW1 = 6, 4, 5, 12, 7, 8, 9, 10, 11
        WSL = self.WS_; CSL = [144, 152, 160, 168, 64, 72]
        assert len(WSL) == 16
        I(f"s_lshr_b32 s53, s56, 1"); I("s_lshl_b32 s53, s53, 10"); I("s_and_b32 s44, s56, 1"); I("s_lshl_b32 s44, s44, 9"); I("s_add_u32 s53, s53, s44")
        I(f"s_lshr_b32 s44, s{SW}, 1"); I("s_lshl_b32 s44, s44, 7"); I("s_add_u32 s53, s53, s44"); I(f"s_and_b32 s44, s{SW}, 1"); I("s_lshl_b32 s44, s44, 3")
        I("s_add_u32 s53, s53, s44"); I(f"s_add_u32 s53, s53, {FC_OFF}")
        I(f"v_and_b32 v{VPA}, 1, v0"); I(f"v_lshlrev_b32 v{VPA}, 2, v{VPA}")
        PUBN = self.o.get("pubn", 4)
        I(f"s_lshr_b32 s45, s{SHEAD}, 2"); I("s_lshl_b32 s45, s45, 7"); I(f"s_and_b32 s44, s{SHEAD}, 3"); I("s_lshl_b32 s44, s44, 2"); I("s_add_u32 s45, s45, s44")
        I(f"s_sub_u32 s44, 15, s{SIDX}"); I("s_lshl_b32 s44, s44, 10"); I("s_add_u32 s46, s44, s45"); I(f"s_add_u32 s46, s46, {FC_OFF}")
        I(f"s_lshl_b32 s44, s{SIDX}, 10"); I("s_add_u32 s47, s44, s45"); I(f"s_add_u32 s47, s47, {FC_OFF}")
        self.srd(RC, "out", 2*MB); self.srd(RD, "q", 2*MB)
        I(f"s_lshl_b32 s44, s{SF}, 2"); I(f"s_load_dword s55, s[{P['ssmD']}:{P['ssmD']+1}], s44")
        I(f"v_and_b32 v{T}, 15, v0"); I(f"v_lshrrev_b32 v{T+1}, 4, v0")
        I(f"v_and_b32 v{T+2}, 7, v0"); I(f"v_mul_u32_u24 v{VA}, {HC}, v{T+2}")
        I(f"v_bfe_u32 v{T+2}, v0, 3, 1"); I(f"v_sub_u32 v{T+2}, v{T+2}, v{T+1}"); I(f"v_lshl_add_u32 v{VA}, v{T+2}, 4, v{VA}")
        I(f"s_lshl_b32 s43, s{SJ}, 8"); I(f"s_add_u32 s43, s43, s{SHB_}"); I("s_add_u32 s43, s43, 64"); I(f"v_add_u32 v{VA}, s43, v{VA}")
        I(f"s_lshl_b32 s43, s{SJ}, 6"); I(f"s_sub_u32 s43, s{SB}, s43"); I(f"s_add_u32 s43, s43, {(32-3)*16}")
        I(f"v_lshl_add_u32 v{VB}, v{T}, 4, s43"); I(f"v_mul_u32_u24 v{T+2}, 1536, v{T+1}"); I(f"v_add_u32 v{VB}, v{VB}, v{T+2}")
        I(f"s_lshl_b32 s51, s{SW}, 13"); I(f"s_xor_b32 s52, s{SCX}, 0x80000")
        I("s_waitcnt lgkmcnt(0)"); lg.mark_all_done(); self.barrier()
        self.stamp(5)
        wtok = dict(self.wtok); ctok = {}; cslot = dict(enumerate(CSL))
        def wload(k):
            if k % 2 == 0: self.wadr(k)
            for mt in range(2):
                I(f"buffer_load_dwordx4 {v(WSL[k]+4*mt,4)}, v{VL16}, s[{RWS}:{RWS+3}], s59 offen offset:{(k&1)*2048+mt*1024}{self.ld}"); wtok[k] = vm.issue()
        def cload(i):
            I(f"s_add_u32 s62, s58, {i & 7}"); I("s_and_b32 s62, s62, 7"); I("s_lshl_b32 s62, s62, 11"); I(f"s_add_u32 s62, s62, s{52 if i >= 16 else SCX}")
            if i & 8: I("s_add_u32 s62, s62, 0x40000")
            for qt in range(2):
                I(f"buffer_load_dwordx4 {v(cslot[i]+4*qt,4)}, v{VL16}, s[{RWS}:{RWS+3}], s62 offen offset:{qt*1024}{self.ld}"); ctok[i] = vm.issue()
        wl = [k for k in range(16) if k not in wtok]
        BS = [224, 240]; AS = list(range(160, 176, 4)) + list(range(64, 80, 4)); NA = len(AS)
        seq = [(dd, m, bt) for dd in range(4) for (m, bt) in ((0, 0), (3, 0), (0, 1), (3, 1), (1, 0), (2, 0), (1, 1), (2, 1))]
        atok = {}; btok = {}
        def rda(n):
            if n >= len(seq): return
            dd, m, bt = seq[n]
            I(f"ds_read_b128 {v(AS[n % NA],4)}, v{VA} offset:{64*dd + 1024*m + 32*bt}"); atok[n] = lg.issue()
        def rdb(dd, n):
            if dd >= 4: return
            I(f"ds_read_b128 {v(BS[dd & 1]+4*n,4)}, v{VB} offset:{(3-dd)*16 + 256*n}"); btok[(dd, n)] = lg.issue()
        rda(0)
        for n in range(4): rdb(0, n)
        for n in range(1, NA - 1): rda(n)
        seen = set()
        for n, (dd, m, bt) in enumerate(seq):
            for nn in range(4 - m):
                lg.wait(max(atok[n], btok[(dd, nn)]))
                key = (m + nn, bt); d = v(ACC + 8*key[0] + 4*bt, 4)
                I(f"v_mfma_f32_16x16x32_bf16 {d}, {v(AS[n % NA],4)}, {v(BS[dd & 1]+4*nn,4)}, {d if key in seen else '0'}"); seen.add(key)
                if nn == 0:
                    rda(n + NA - 1)
                    if 1 <= (n & 7) <= 4: rdb(dd + 1, (n & 7) - 1)
            if n & 1:
                h_ = n >> 1
                if h_ == PUBN:
                    vm.wait(self.tctx); self.barrier(); self.publish(46); self.publish(47)
                if h_ >= self.o.get("wst", 2) and len(wl) > self.o.get("wkeep", 2): wload(wl.pop(0))
                if h_ == self.o.get("p1", 12): tc1 = self.poll_issue(VP, VPA, "s53")
        I(f"v_add_u32 v{T+2}, s51, v{VL16}")
        for i in range(8):
            I(f"ds_write_b128 v{T+2}, {v(ACC+4*i,4)} offset:{1024*i}"); lg.issue()
        while wl: wload(wl.pop(0))
        I(f"s_lshl_b32 s43, s{SC}, 15"); I(f"s_lshl_b32 s44, s{SJ}, 11"); I("s_add_u32 s43, s43, s44"); I(f"v_add_u32 v{T+2}, s43, v{VL16}")
        I(f"s_lshl_b32 s44, s{SJ}, 8"); I(f"s_add_u32 s44, s44, s{SB}"); I("s_add_u32 s44, s44, 520")
        I(f"v_lshl_add_u32 v{T+3}, v{T}, 4, s44"); I(f"v_and_b32 v{VA}, 1, v{T+1}"); I(f"v_lshlrev_b32 v{VA}, 3, v{VA}"); I(f"v_sub_u32 v{T+3}, v{T+3}, v{VA}")
        I(f"v_lshrrev_b32 v{VA}, 1, v{T+1}"); I(f"v_mul_u32_u24 v{VA}, 1536, v{VA}"); I(f"v_add_u32 v{T+3}, v{T+3}, v{VA}")
        I(f"v_lshlrev_b32 v{VB}, 6, v{T}"); I(f"v_lshl_add_u32 v{VB}, v{T+1}, 3, v{VB}")
        I(f"s_add_u32 s45, s{SWK}, {YB}"); I(f"v_add_u32 v{VB}, s45, v{VB}")
        I("s_lshl_b32 s43, s55, 16"); I("s_and_b32 s44, s55, 0xffff0000"); I(f"s_cmp_eq_u32 s{SC}, 0"); I("s_cselect_b32 s55, s43, s44")
        lg.wait(lg.issued); self.barrier()
        self.stamp(12)
        for p in range(4):
            for gq in range(2):
                I(f"ds_read_b128 {v(RD_+8*p+4*gq,4)}, v{T+2} offset:{8192*p+1024*gq}"); lg.issue()
        for gq in range(2):
            I(f"ds_read_b64 {v(ACC+2*gq,2)}, v{T+3} offset:{3072*gq}"); lg.issue()
        le = a.label("NE")
        vm.wait(tc1); I(f"v_and_b32 v{VP}, 1, v{VP}"); I(f"v_cmp_ne_u32 vcc, 1, v{VP}"); I("s_mov_b32 s50, 0"); I(f"s_cbranch_vccnz {le}")
        sv = self.save(); I("s_mov_b32 s50, 1")
        for i in range(len(CSL)): cload(i)
        self.restore(sv); a.L(le)
        lg.wait(lg.issued)
        for i in range(0, 8, 2):
            I(f"v_pk_add_f32 {v(RD_+i,2)}, {v(RD_+i,2)}, {v(RD_+8+i,2)}"); I(f"v_pk_add_f32 {v(RD_+16+i,2)}, {v(RD_+16+i,2)}, {v(RD_+24+i,2)}")
        for i in range(0, 8, 2): I(f"v_pk_add_f32 {v(RD_+i,2)}, {v(RD_+i,2)}, {v(RD_+16+i,2)}")
        for gq in range(2):
            for r in range(4):
                srcr = ACC + 2*gq + (1 - (r >> 1))
                I(f"v_lshlrev_b32 v{ACC+8}, 16, v{srcr}" if r & 1 else f"v_and_b32 v{ACC+8}, 0xffff0000, v{srcr}")
                I(f"v_fma_f32 v{RD_+4*gq+r}, v{ACC+8}, s55, v{RD_+4*gq+r}")
        for i in range(4): I(f"v_cvt_pk_bf16_f32 v{ACC+12+i}, v{RD_+2*i}, v{RD_+2*i+1}")
        for gq in range(2):
            I(f"ds_write_b64 v{VB}, {v(ACC+12+2*gq,2)} offset:{32*gq}"); lg.issue()
        I(f"v_and_b32 v{T+2}, 15, v0"); I(f"v_lshrrev_b32 v{T+1}, 4, v0"); I(f"v_lshlrev_b32 v{T+1}, 1, v{T+1}"); I(f"v_xor_b32 v{T+1}, v{T+1}, v{T+2}"); I(f"v_lshlrev_b32 v{T+1}, 4, v{T+1}")
        I(f"v_lshl_add_u32 v{VA}, v{T+2}, 8, v{T+1}"); I(f"v_add_u32 v{VA}, s51, v{VA}")
        I(f"s_lshr_b32 s48, s{SW}, 1"); I("s_lshl_b32 s48, s48, 4"); I(f"s_and_b32 s41, s{SW}, 1"); I("s_lshl_b32 s42, s41, 3")
        I(f"v_lshrrev_b32 v{T}, 4, v0"); I(f"v_lshl_add_u32 v{T+1}, v{T}, 1, s42"); I(f"v_xor_b32 v{T+1}, v{T+1}, v{T+2}"); I(f"v_lshlrev_b32 v{T+1}, 4, v{T+1}")
        I("s_and_b32 s43, s48, 16"); I(f"v_add_u32 v{T+3}, s43, v{T+2}"); I(f"v_lshl_add_u32 v{VW1}, v{T+3}, 8, v{T+1}")
        I("s_lshr_b32 s43, s48, 5"); I("s_lshl_b32 s43, s43, 16"); I(f"v_add_u32 v{VW1}, s43, v{VW1}")
        lg.wait(lg.issued); I(f"v_xor_b32 v{VB}, 16, v{VW1}"); self.barrier()
        ly = a.label("NY")
        I(f"s_cmp_lg_u32 s{SW}, 0"); I(f"s_cbranch_scc1 {ly}")
        I(f"v_add_u32 v{T}, {YB}, v{VL16}")
        for i in range(8): I(f"ds_read_b128 {v(RD_+4*i,4)}, v{T} offset:{1024*i}")
        I(f"s_lshl_b32 s44, s{SF}, 13"); I(f"s_add_u32 s44, s44, {YT_OFF}"); I("s_add_u32 s45, s44, 4096")
        I("s_waitcnt lgkmcnt(0)")
        for i in range(8): I(f"buffer_store_dwordx4 {v(RD_+4*i,4)}, v{VL16}, s[{RWS}:{RWS+3}], s{44+(i>>2)} offen offset:{1024*(i&3)}{self.st}")
        a.L(ly)
        ll = a.label("NL")
        I("s_cmp_eq_u32 s50, 1"); I(f"s_cbranch_scc1 {ll}")
        self.poll_check(VP, VPA, "s53", 1)
        for i in range(len(CSL)): cload(i)
        a.L(ll)
        self.stamp(6)
        def put_ops(st):
            L = []
            for mt in range(4):
                def f(mt=mt):
                    I(f"v_xor_b32 v{T+3}, {(8*(mt>>1)+(mt&1))*16 + 0x10000*st}, v{VA}")
                    for qt in range(2):
                        I(f"ds_write_b128 v{T+3}, {v(OACC+32*st+8*mt+4*qt,4)} offset:{4096*qt}"); lg.issue()
                L.append(f)
            return L
        def sum_partials(mid=None):
            tk = []
            for p in range(8):
                for hh in range(2):
                    I(f"ds_read_b128 {v(OACC+8*p+4*hh,4)}, v{(VW1, VB)[hh]} offset:{8192*p}"); lg.issue()
                tk.append(lg.issued)
                if p == 5 and mid: mid()
            for p in range(1, 8):
                lg.wait(tk[p])
                for e in range(0, 8, 2): I(f"v_pk_add_f32 {v(OACC+e,2)}, {v(OACC+e,2)}, {v(OACC+8*p+e,2)}")
        ymark = vm.issued; ypub = False; pm = {}; ppub = False; free = []; nc = len(CSL); XR = WSL[0]; PR_ = WSL[1]
        TS = [OACC + 32 + 8*n for n in range(4)]; ptk = {}
        def prd(p):
            r = TS[0] if p == 0 else TS[1 + (p - 1) % 3]
            for hh in range(2):
                I(f"ds_read_b128 {v(r+4*hh,4)}, v{(VW1, VB)[hh]} offset:{8192*p}"); ptk[p] = lg.issue()
        def padd(p):
            lg.wait(ptk[p]); r = TS[1 + (p - 1) % 3]
            for e in range(0, 8, 2): I(f"v_pk_add_f32 {v(TS[0]+e,2)}, {v(TS[0]+e,2)}, {v(r+e,2)}")
            if p + 3 < 8: prd(p + 3)
        def pst():
            I(f"s_lshl_b32 s44, s{SF}, 14"); I(f"s_lshl_b32 s45, s{SW}, 11"); I("s_add_u32 s54, s44, s45"); I(f"s_add_u32 s54, s54, {PP_OFF}")
            for hh in range(2):
                I(f"buffer_store_dwordx4 {v(TS[0]+4*hh,4)}, v{VL16}, s[{RWS}:{RWS+3}], s54 offen offset:{1024*hh}{self.st}"); pm["t"] = vm.issue()
        B1 = self.o.get("b1", 18); PS = self.o.get("ps", 21)
        for i2 in range(0, 32, 2):
            st = (i2 >> 3) & 1; J = i2 & 7; fill = []
            if i2 in (8, 24): fill = put_ops(0)
            if i2 == 16: fill = put_ops(1)
            if i2 == 24: self.barrier()
            if i2 == B1:
                lg.wait(lg.issued); self.barrier()
                for p in range(4): prd(p)
                fill = [lambda p=p: padd(p) for p in range(1, 8)]
                I(f"s_lshl_b32 s53, s57, 7"); I(f"s_lshl_b32 s42, s{SW}, 4"); I("s_add_u32 s53, s53, s42"); I(f"s_add_u32 s53, s53, {FY_OFF}")
                I(f"v_and_b32 v{VPA}, 3, v0"); I(f"v_lshlrev_b32 v{VPA}, 2, v{VPA}")
                tf = self.poll_issue(VP, VPA, "s53")
            if i2 == 26:
                I(f"v_and_b32 v{T+1}, 15, v0"); I(f"s_lshl_b32 s45, s56, 6"); I("s_add_u32 s45, s45, s48"); I(f"v_add_u32 v{T+1}, s45, v{T+1}")
                I(f"v_lshlrev_b32 v{T+2}, 2, v{T+1}"); I(f"s_mov_b32 s45, {G_OFF}")
                I(f"buffer_load_dword v{GR}, v{T+2}, s[{RWS}:{RWS+3}], s45 offen{self.ld}"); vm.issue()
                I(f"v_lshrrev_b32 v{T+2}, 4, v0"); I(f"v_lshlrev_b32 v{T+2}, 4, v{T+2}"); I(f"v_lshl_add_u32 v{VO}, v{T+1}, 10, v{T+2}")
                I("s_lshl_b32 s49, s41, 6"); I(f"s_lshl_b32 s45, s57, 7"); I("s_add_u32 s49, s49, s45")
                I(f"buffer_load_dwordx4 {v(XR,4)}, v{VO}, s[{RD}:{RD+3}], s49 offen"); vm.issue()
                vm.wait(tf); self.poll_check(VP, VPA, "s53", 1)
                I(f"v_lshrrev_b32 v{T}, 3, v0"); I(f"v_and_b32 v{T+1}, 7, v0"); I(f"v_lshlrev_b32 v{T+1}, 4, v{T+1}")
                I(f"v_lshl_add_u32 v{T}, v{T}, 12, v{T+1}")
                I(f"s_add_u32 m0, s{SWK}, {YT}")
                I(f"s_lshl_b32 s44, s57, 18"); I(f"s_lshl_b32 s45, s{SW}, 15"); I("s_add_u32 s44, s44, s45")
                I(f"s_lshl_b32 s45, s56, 7"); I("s_add_u32 s44, s44, s45"); I(f"s_add_u32 s44, s44, {YT_OFF}")
                I(f"buffer_load_dwordx4 v{T}, s[{RWS}:{RWS+3}], s44 offen{self.ld} lds"); vm.issue()
            vm.wait(max(ctok[i2+1], wtok[2*J+3]))
            if not ypub and vm.done > ymark:
                ypub = True; I(f"s_lshl_b32 s44, s{SF}, 2"); I(f"s_add_u32 s44, s44, {FY_OFF}"); self.publish(44, 3)
            if pm and not ppub and vm.done >= pm["t"]:
                ppub = True
                I(f"s_lshl_b32 s44, s{SF}, 7"); I(f"s_lshl_b32 s45, s{SW}, 2"); I("s_add_u32 s44, s44, s45"); I(f"s_add_u32 s44, s44, {FP_OFF}")
                I("v_mov_b32 v2, 1"); I("v_mov_b32 v3, 0"); I(f"buffer_store_dword v2, v3, s[{RWS}:{RWS+3}], s44 offen sc1"); vm.issue()
            if i2 == 30:
                I(f"s_xor_b32 s53, s{SF}, 32"); I("s_lshl_b32 s53, s53, 7"); I(f"s_lshl_b32 s42, s{SW}, 2"); I("s_add_u32 s53, s53, s42"); I(f"s_add_u32 s53, s53, {FP_OFF}")
                I(f"v_mov_b32 v{VPA}, 0")
            M = []
            for mt in range(4):
                for qt in range(2):
                    for u in range(2):
                        d = v(OACC + 32*st + 8*mt + 4*qt, 4)
                        M.append(lambda d=d, mt=mt, qt=qt, u=u: I(f"v_mfma_f32_16x16x32_bf16 {d}, {v(WSL[2*(J+u) + (mt >> 1)]+4*(mt & 1),4)}, {v(cslot[i2+u]+4*qt,4)}, {'0' if J + u == 0 else d}"))
            self.stream(M, [(1, 16, fill)] if fill else [])
            free += [cslot[i2], cslot[i2+1]]
            while free and nc < 32:
                cslot[nc] = free.pop(0); cload(nc); nc += 1
            if i2 + 1 == PS or i2 == PS: pst()
        assert ypub and ppub
        self.stamp(7)
        tp = self.poll_issue(VP, VPA, "s53")
        for f in put_ops(1): f()
        vm.wait(tp); self.poll_check(VP, VPA, "s53", 1)
        if self.o.get("ostamp"): self.stamp(20)
        I("s_xor_b32 s54, s54, 0x80000")
        for hh in range(2):
            I(f"buffer_load_dwordx4 {v(PR_+4*hh,4)}, v{VL16}, s[{RWS}:{RWS+3}], s54 offen offset:{1024*hh}{self.ld}"); tpp = vm.issue()
        I(f"v_lshrrev_b32 v{T}, 4, v0"); I("s_lshl_b32 s42, s41, 5"); I(f"v_lshl_add_u32 v{T}, v{T}, 3, s42"); I(f"v_bfe_u32 v{T+1}, v0, 2, 2")
        I(f"v_add_u32 v{T}, v{T}, v{T+1}"); I(f"v_lshlrev_b32 v{T}, 7, v{T}"); I(f"v_and_b32 v{T+1}, 3, v0")
        I(f"v_lshl_add_u32 v{T}, v{T+1}, 3, v{T}"); I("s_lshl_b32 s42, s48, 1"); I(f"s_add_u32 s42, s42, {YT}"); I(f"v_add_u32 v{T}, s42, v{T}")
        lg.wait(lg.issued); self.barrier()
        I(f"ds_read_b64_tr_b16 {v(100,2)}, v{T}"); lg.issue()
        I(f"ds_read_b64_tr_b16 {v(102,2)}, v{T} offset:512"); ty2 = lg.issue()
        def mix():
            lg.wait(ty2)
            for e in range(8):
                if e & 1: I(f"v_and_b32 v104, 0xffff0000, v{XR+(e>>1)}"); I(f"v_and_b32 v105, 0xffff0000, v{100+(e>>1)}")
                else: I(f"v_lshlrev_b32 v104, 16, v{XR+(e>>1)}"); I(f"v_lshlrev_b32 v105, 16, v{100+(e>>1)}")
                I(f"v_mul_f32 v{112+e}, v104, v105"); I(f"v_mul_f32 v{112+e}, v{112+e}, v{GR}")
            I(f"v_sub_f32 v{GR}, 1.0, v{GR}")
        sum_partials(mix)
        vm.wait(tpp)
        for e in range(0, 8, 2): I(f"v_pk_add_f32 {v(OACC+e,2)}, {v(OACC+e,2)}, {v(PR_+e,2)}")
        for e in range(8): I(f"v_fmac_f32 v{112+e}, v{OACC+4*(e&1)+(e>>1)}, v{GR}")
        for e in range(4): I(f"v_cvt_pk_bf16_f32 v{108+e}, v{112+2*e}, v{112+2*e+1}")
        I(f"buffer_store_dwordx4 {v(108,4)}, v{VO}, s[{RC}:{RC+3}], s49 offen sc1"); vm.issue()
        self.stamp(16)
        if self.o.get("echo"):
            lp = a.label("EC")
            I("s_sub_u32 s100, s100, s96")
            if self.o.get("cyc"): I("s_lshr_b32 s100, s100, 4")
            I("s_memrealtime s[96:97]"); I("s_waitcnt lgkmcnt(0)")
            a.L(lp)
            I("s_memrealtime s[98:99]"); I("s_waitcnt lgkmcnt(0)"); I("s_sub_u32 s98, s98, s96"); I("s_cmp_lt_u32 s98, s100"); I(f"s_cbranch_scc1 {lp}")
        if self.o.get("dbgout") is not None:
            l = a.label("DB")
            I(f"s_cmp_lg_u32 s2, {self.o['dbgout']}"); I(f"s_cbranch_scc1 {l}"); I(f"s_cmp_lg_u32 s{SW}, 0"); I(f"s_cbranch_scc1 {l}")
            I("s_waitcnt vmcnt(0)")
            order = [0, 1, 2, 3, 8, 10, 11, 4, 5, 12, 6, 7, 16]
            I("v_mov_b32 v20, 0")
            for j, i in enumerate(order):
                I(f"s_mov_b32 s44, {4*i}"); I(f"v_writelane_b32 v20, s44, {j}")
            I(f"s_lshl_b32 s44, s2, 11"); I(f"s_add_u32 s44, s44, {STAMP_OFF}")
            I(f"buffer_load_dword v21, v20, s[{RWS}:{RWS+3}], s44 offen sc1"); I("s_waitcnt vmcnt(0)")
            I("v_readfirstlane_b32 s45, v21"); I("v_subrev_u32 v21, s45, v21")
            self.srd(RDBG, "dbg", 64); I("v_lshlrev_b32 v22, 2, v0")
            I(f"buffer_store_dword v21, v22, s[{RDBG}:{RDBG+3}], 0 offen")
            a.L(l)

def build(opts):
    g = G(opts); k = NAME + "_kernel"
    g.begin(k); g.a.T("; MARK p"); g.proj(); g.a.T("; MARK a"); g.attn(); g.a.T("; MARK t"); g.tailp(); g.end(); g.a.T("; MARK a"); g.attn_rare(); g.a.T("; MARK t"); g.a.L("CODE_END"); g.a.I("s_endpgm")
    n = g.a.fix_hazards()
    txt = "; @launch grid=(256,1,1) block=(512,1,1) lds=163840\n"
    txt += '.amdgcn_target "amdgcn-amd-amdhsa--gfx950"\n.text\n' + g.a.text()
    txt += f""".section .rodata,"a"
.p2align 6
.amdhsa_kernel {k}
  .amdhsa_next_free_vgpr 256
  .amdhsa_next_free_sgpr 102
  .amdhsa_accum_offset 256
  .amdhsa_group_segment_fixed_size 0
  .amdhsa_kernarg_size 128
  .amdhsa_user_sgpr_count 2
  .amdhsa_user_sgpr_kernarg_segment_ptr 1
  .amdhsa_system_sgpr_workgroup_id_x 1
.end_amdhsa_kernel
"""
    print(f"instructions {sum(1 for it in g.a.items if it[0] == 'i')}, nops inserted {n}", file=sys.stderr)
    return txt

if __name__ == "__main__":
    opts = {}
    for x in sys.argv[2:]:
        if "=" in x: k_, v_ = x.split("="); opts[k_] = int(v_)
        else: opts[x] = True
    open(sys.argv[1], "w").write(build(opts))
```

```python
import sys, math, struct
sys.path.insert(0, "gen")
from asmlib import *

NAME = "gated_mix__ssm_conv_h3__compressed_kv_cla__prompt"
MB = 1 << 20
KV_OFF, Q_OFF, CTX_OFF, KVT_OFF, YT_OFF, G_OFF = 0, 32*MB, 48*MB, 64*MB, 66*MB, 68*MB
XC_OFF = 40*MB
PP_OFF = 40*MB
WOT_OFF = 32*MB
FLG_OFF = 68*MB + 65536
FK_OFF, FY_OFF, FC_OFF, FP_OFF = FLG_OFF, FLG_OFF + 4096, FLG_OFF + 8192, FLG_OFF + 32768
STAMP_OFF = 69*MB
WS_SIZE = 70*MB
P = dict(q=64, k=66, v=68, shift=70, ssmk=72, ssmD=74, bx=76, ckv=78, wq=80, wuk=82, wuv=84, wo=86, gate=88, out=90, dbg=92, ws=94)
SW, SHEAD, SIDX, SWK, SF = 3, 4, 5, 6, 7
RA, RB, RC, RWS, RD, RE, RT, RDBG = 8, 12, 16, 20, 24, 28, 56, 60
MFMA = "v_mfma_f32_32x32x16_bf16"
LOG2E = 1.4426950408889634
F_KV, F_CA, F_CB, F_Y = 1, 2, 4, 8
def f2u(x): return "0x%08x" % struct.unpack("<I", struct.pack("<f", x))[0]
def rep4(b): return b * 0x01010101

class G:
    def __init__(self, opts):
        self.a = Asm(); self.o = opts
        self.GSH, self.FSH = (8, 10) if opts.get("lin") else (11, 8)
        self.vm = Cnt(self.a, "vmcnt", 63); self.lg = Cnt(self.a, "lgkmcnt", 15)
        self.st = "" if opts.get("plainst") else (" sc1 nt" if opts.get("ntst") else " sc1"); self.ld = "" if opts.get("plainld") else " sc1"
    def I(self, t): self.a.I(t)
    def srd(self, r, ptr, nbytes):
        I = self.I
        I(f"s_mov_b32 s{r}, s{P[ptr]}"); I(f"s_mov_b32 s{r+1}, s{P[ptr]+1}")
        I(f"s_mov_b32 s{r+2}, {nbytes}"); I(f"s_mov_b32 s{r+3}, 0x00020000")
    def save(self): return (self.vm.issued, self.vm.done, self.lg.issued, self.lg.done)
    def restore(self, s_): self.vm.issued, self.vm.done, self.lg.issued, self.lg.done = s_
    def stream(self, mf, fills):
        n = len(mf); slots = [[] for _ in range(n + 1)]
        for (s0, e0, cl) in fills:
            m = e0 - s0
            for j, c in enumerate(cl): slots[s0 + 1 + (j * m) // len(cl)].append(c)
        for c in slots[0]: c()
        for i in range(n):
            mf[i]()
            for c in slots[i+1]: c()
    def stamp(self, i, dyn=None):
        if self.o.get("echo") == i:
            self.I("s_memtime s[100:101]" if self.o.get("cyc") else "s_memrealtime s[100:101]"); self.I("s_waitcnt lgkmcnt(0)")
        if not self.o.get("stamp"): return
        I = self.I
        I("s_memrealtime s[96:97]"); I("s_memtime s[100:101]")
        I("s_lshl_b32 s98, s2, 3"); I(f"s_add_u32 s98, s98, s{SW}"); I("s_lshl_b32 s98, s98, 8")
        I(f"s_add_u32 s98, s98, {STAMP_OFF + 4*i}")
        if dyn is not None:
            I(f"s_lshl_b32 s99, s{dyn}, 4"); I("s_add_u32 s98, s98, s99")
        I("s_waitcnt lgkmcnt(0)")
        I("v_mov_b32 v2, s96"); I("v_mov_b32 v3, 0")
        I(f"buffer_store_dword v2, v3, s[{RWS}:{RWS+3}], s98 offen")
        I("v_mov_b32 v2, s100")
        I(f"buffer_store_dword v2, v3, s[{RWS}:{RWS+3}], s98 offen offset:128")
    OOB = 0x40000000
    def publish(self, soff, val=1, srd=RWS, byte=False, idx=None):
        I = self.I
        self.oob_sel()
        if idx is not None: I(f"s_and_b32 s98, s{SIDX}, 3"); I(f"s_cmp_eq_u32 s98, {idx}"); I(f"s_cselect_b32 s99, s99, {self.OOB}")
        I(f"v_mov_b32 v2, {val}"); I("v_mov_b32 v3, s99")
        I(f"buffer_store_{'byte' if byte else 'dword'} v2, v3, s[{srd}:{srd+3}], s{soff} offen sc1"); self.vm.issue()
    def oob_sel(self):
        self.I(f"s_cmp_eq_u32 s{SW}, 0"); self.I(f"s_cselect_b32 s99, 0, {self.OOB}")
    def poll_issue(self, vd, vaddr, soff, srd=RWS):
        self.I(f"buffer_load_dword v{vd}, v{vaddr}, s[{srd}:{srd+3}], {soff} offen sc1"); return self.vm.issue()
    def poll_check(self, vd, vaddr, soff, want, srd=RWS):
        a = self.a; I = self.I
        l = a.label("PCK"); lp = a.label("POLL")
        I(f"s_mov_b32 s98, {want}"); I("s_mov_b32 s99, 20000")
        a.L(lp)
        I(f"v_and_b32 v{vd}, s98, v{vd}"); I(f"v_cmp_ne_u32 vcc, s98, v{vd}"); I(f"s_cbranch_vccz {l}")
        I("s_sleep 2")
        I(f"buffer_load_dword v{vd}, v{vaddr}, s[{srd}:{srd+3}], {soff} offen sc1")
        I("s_sub_u32 s99, s99, 1"); I("s_cmp_lg_u32 s99, 0"); I("s_waitcnt vmcnt(0)"); I(f"s_cbranch_scc1 {lp}")
        a.L(l)
    def barrier(self): self.I("s_barrier")
    def sync_all(self):
        self.I("s_waitcnt vmcnt(0) lgkmcnt(0)"); self.vm.mark_all_done(); self.lg.mark_all_done(); self.barrier()

    def begin(self, kname):
        a = self.a; I = self.I
        a.T(f".globl {kname}\n.p2align 8\n.type {kname},@function"); a.L(kname)
        self.endl = a.label("END")
        if self.o.get("stamp"): I("s_memrealtime s[30:31]")
        if self.o.get("echo"): I("s_memtime s[96:97]" if self.o.get("cyc") else "s_memrealtime s[96:97]")
        I("s_load_dwordx16 s[64:79], s[0:1], 0"); I("s_load_dwordx16 s[80:95], s[0:1], 64")
        I("s_cmp_ge_u32 s2, 256"); I(f"s_cbranch_scc1 {self.endl}")
        I("v_lshrrev_b32 v1, 6, v0"); I("v_and_b32 v0, 63, v0"); I(f"v_readfirstlane_b32 s{SW}, v1")
        I("s_and_b32 s7, s2, 7"); I("s_lshl_b32 s7, s7, 2")
        I(f"s_lshr_b32 s{SIDX}, s2, 3"); I(f"s_lshr_b32 s{SHEAD}, s{SIDX}, 3"); I(f"s_add_u32 s{SHEAD}, s{SHEAD}, s7")
        I(f"s_and_b32 s{SIDX}, s{SIDX}, 7"); I(f"s_lshl_b32 s{SWK}, s{SW}, 10")
        I(f"s_lshl_b32 s{SF}, s{SHEAD}, 3"); I(f"s_add_u32 s{SF}, s{SF}, s{SIDX}")
    def end(self):
        self.a.L(self.endl); self.I("s_endpgm")

    def proj(self):
        a = self.a; I = self.I; vm = self.vm; lg = self.lg
        M16 = "v_mfma_f32_16x16x32_bf16"; QA_LDS = 65536; NS = 24; fs = 1 << self.FSH
        AX, AW, VSK, VOX, VOW, VST = 4, 6, 8, 10, 11, 12
        XS = [24, 32, 16]; PKD = 40; ACC = 64; WR = 128; T = 40
        QACC = 128; FX = [16, 24]; FW = [192, 32]; VXA = 224; VWA = 228
        I("v_lshrrev_b32 v13, 3, v0"); I(f"s_lshl_b32 s40, s{SW}, 3"); I("v_add_u32 v13, s40, v13"); I("v_lshlrev_b32 v13, 10, v13")
        I(f"s_lshr_b32 s41, s{SW}, 1"); I(f"s_xor_b32 s40, s41, s{SW}"); I("s_and_b32 s40, s40, 1"); I("s_lshl_b32 s40, s40, 2")
        I("v_lshrrev_b32 v14, 4, v0"); I("v_add_u32 v15, s40, v14")
        I("v_and_b32 v3, 7, v0"); I("v_xor_b32 v15, v15, v3"); I(f"v_lshl_add_u32 v{VOX}, v15, 4, v13")
        I(f"s_lshl_b32 s40, s{SW}, 2"); I("v_add_u32 v13, s40, v14"); I("v_lshlrev_b32 v13, 13, v13")
        I("s_and_b32 s41, s41, 1"); I("s_lshl_b32 s41, s41, 3"); I("v_lshl_add_u32 v15, v14, 1, s41"); I("v_and_b32 v3, 15, v0"); I("v_xor_b32 v15, v15, v3")
        I("v_lshl_add_u32 v13, v15, 4, v13"); I(f"s_lshl_b32 s40, s{SHEAD}, 8"); I(f"v_add_u32 v{VOW}, s40, v13")
        I(f"v_lshlrev_b32 v{VST}, 4, v0")
        I(f"s_lshl_b32 s44, s{SIDX}, 18")
        for i in range(1, 4): I(f"s_add_u32 s{44+i}, s44, {65536*i}")
        ROT = self.o.get("rot", 2)
        if ROT == 0: I("s_mov_b32 s33, 0")
        elif ROT == 1: I(f"s_mov_b32 s33, s{SIDX}")
        elif ROT == 2: I(f"s_lshr_b32 s33, s{SHEAD}, 2"); I(f"s_add_u32 s33, s33, s{SIDX}")
        elif ROT == 3: I(f"s_lshr_b32 s33, s{SHEAD}, 2"); I(f"s_add_u32 s33, s33, s{SIDX}"); I(f"s_lshl_b32 s34, s{SHEAD}, 1"); I("s_add_u32 s33, s33, s34")
        elif ROT == 4: I(f"s_lshr_b32 s33, s{SHEAD}, 2")
        if self.o.get("rotq"): I(f"s_lshl_b32 s32, s{SHEAD}, 1"); I("s_add_u32 s32, s32, s33")
        else: I("s_mov_b32 s32, s33")
        I("s_waitcnt lgkmcnt(0)")
        if self.o.get("stamp"): I("s_memrealtime s[28:29]")
        self.srd(RA, "ckv", 2*MB); self.srd(RB, "wuk", 4*MB); self.srd(RC, "wuv", 4*MB)
        def xq(c): return (32768, 131072, 0)[(16 + c) % 3]
        items = []; last = {}; dtok = {}
        def add(t, base, n, fn):
            us = range(base >> 14, (base + n*8192) >> 14)
            items.append((t, max(last.get(u, -1) for u in us), [lambda i=i: fn(i) for i in range(n)]))
            for u in us: last[u] = t
        def wdma(t, base, r):
            def f(i):
                if i == 0: I(f"s_add_u32 s34, s33, {t & 7}"); I("s_and_b32 s34, s34, 7"); I("s_lshl_b32 s34, s34, 19")
                I(f"s_add_u32 m0, s{SWK}, {base + i*8192}"); I(f"s_add_u32 s41, s34, {i*262144}")
                I(f"buffer_load_dwordx4 v{VOW}, s[{r}:{r+3}], s41 offen lds"); dtok[t] = vm.issue()
            add(t, base, 2, f)
        def xdma(t, base, n, s0, r):
            def f(i):
                if i == 0: I(f"s_add_u32 s35, s33, {t & 7}"); I("s_and_b32 s35, s35, 7"); I("s_lshl_b32 s35, s35, 7")
                I(f"s_add_u32 m0, s{SWK}, {base + i*8192}"); I(f"s_add_u32 s41, s{s0+i}, s35")
                I(f"buffer_load_dwordx4 v{VOX}, s[{r}:{r+3}], s41 offen lds"); dtok[t] = vm.issue()
            add(t, base, n, f)
        for t in range(NS):
            if t < 8: wdma(t, 65536 + (t % 3)*16384, RB); wdma(t, 114688 + (t % 3)*16384, RC)
            if t < 16: xdma(t, (t % 4)*16384, 2, 44 + 2*(t >> 3), RA)
            else: wdma(t, 65536 + (t % 4)*16384, RE); xdma(t, xq(t - 16), 4, 48, RD)
        def take(done, upto=99, cap=99):
            out = []
            for it in list(items):
                if it[1] <= done and it[0] <= upto and (len(out) + len(it[2]) <= cap or it[0] <= done + 3): out += it[2]; items.remove(it)
            return out
        for f in take(-1, 0): f()
        self.srd(RWS, "ws", WS_SIZE); self.srd(RDBG, "dbg", 256)
        self.stamp(31)
        if self.o.get("stamp"):
            I("v_mov_b32 v2, s30"); I("s_sub_u32 s98, s98, 124"); I(f"buffer_store_dword v2, v3, s[{RWS}:{RWS+3}], s98 offen")
            I("v_mov_b32 v2, s28"); I(f"buffer_store_dword v2, v3, s[{RWS}:{RWS+3}], s98 offen offset:120")
        I(f"s_lshl_b32 s48, s{SIDX}, 17"); I("s_add_u32 s49, s48, 65536")
        I(f"s_sub_u32 s50, 15, s{SIDX}"); I("s_lshl_b32 s50, s50, 17"); I("s_add_u32 s51, s50, 65536")
        I(f"s_and_b32 s42, s{SW}, 3"); I(f"s_lshr_b32 s43, s{SW}, 2")
        I("v_and_b32 v13, 15, v0"); I("v_lshrrev_b32 v15, 4, v0")
        I("v_lshrrev_b32 v14, 1, v13"); I("v_xor_b32 v14, v14, v15"); I("v_lshlrev_b32 v14, 4, v14")
        I(f"v_lshl_add_u32 v{AX}, v13, 7, v14"); I(f"v_xor_b32 v{AX+1}, 64, v{AX}")
        I("v_lshlrev_b32 v3, 4, v13"); I(f"v_lshl_add_u32 v{VSK}, v15, {self.GSH}, v3")
        I("v_and_b32 v2, 1, v15"); I("v_bfe_u32 v13, v0, 2, 2"); I("v_lshl_add_u32 v14, v15, 3, v13"); I("v_lshlrev_b32 v14, 8, v14")
        I("v_and_b32 v3, 3, v0"); I("v_lshl_add_u32 v14, v3, 3, v14"); I("v_lshl_add_u32 v13, v2, 2, v13"); I("v_lshl_add_u32 v9, v13, 5, v14"); I("v_add_u32 v9, 0x10000, v9")
        I("s_lshl_b32 s40, s42, 6"); I(f"v_xor_b32 v{AW}, s40, v9"); I("s_mul_i32 s40, s43, 49152"); I(f"v_add_u32 v{AW}, s40, v{AW}"); I(f"v_xor_b32 v{AW+1}, 32, v{AW}")
        I(f"s_lshl_b32 s54, s{SF}, 17"); I("s_lshl_b32 s55, s43, 15"); I("s_add_u32 s54, s54, s55")
        I(f"s_add_u32 s55, s43, {self.FSH}"); I("s_lshl_b32 s55, s42, s55"); I("s_add_u32 s54, s54, s55")
        I("s_cmp_eq_u32 s43, 0"); I(f"s_cselect_b32 s32, {f2u(LOG2E / math.sqrt(128.0))}, 1.0"); I("s_lshl_b32 s55, s43, 1"); I(f"s_lshr_b32 s52, {4*fs}, s55")
        XG = T; GW = T + 4; hl = {}
        def gate_loads():
            L = []
            def E(t): L.append(lambda: I(t))
            def V(t):
                def f(): I(t); hl["t"] = vm.issue()
                L.append(f)
            E(f"s_lshl_b32 s40, s{SHEAD}, 7"); E(f"s_lshl_b32 s39, s{SIDX}, 2"); E("s_add_u32 s40, s40, s39"); E(f"s_add_u32 s40, s40, {FK_OFF}")
            E(f"s_lshl_b32 s39, s{SF}, 7"); E(f"s_add_u32 s39, s39, {FP_OFF}"); E("v_and_b32 v13, 7, v0"); E("v_lshl_add_u32 v13, v13, 2, s39")
            E("v_writelane_b32 v13, s40, 0")
            E(f"s_lshr_b32 s39, s{SHEAD}, 2"); E("s_lshl_b32 s39, s39, 7"); E(f"s_and_b32 s40, s{SHEAD}, 3"); E("s_lshl_b32 s40, s40, 2"); E("s_add_u32 s39, s39, s40")
            E(f"s_lshl_b32 s40, s{SIDX}, 10"); E("s_add_u32 s40, s40, s39"); E(f"s_add_u32 s40, s40, {FC_OFF}")
            E("v_writelane_b32 v13, s40, 1")
            E(f"s_sub_u32 s40, 15, s{SIDX}"); E("s_lshl_b32 s40, s40, 10"); E("s_add_u32 s40, s40, s39"); E(f"s_add_u32 s40, s40, {FC_OFF}")
            E("v_writelane_b32 v13, s40, 2")
            E(f"s_lshl_b32 s40, s{SF}, 2"); E(f"s_add_u32 s40, s40, {FY_OFF}"); E("v_writelane_b32 v13, s40, 3"); E("v_mov_b32 v14, 0")
            def oo(): self.oob_sel(); I("v_add_u32 v13, s99, v13")
            L.append(oo)
            V(f"buffer_store_dword v14, v13, s[{RWS}:{RWS+3}], 0 offen sc1")
            E("s_lshl_b32 s37, s2, 3"); E(f"s_add_u32 s37, s37, s{SW}"); E("s_lshl_b32 s38, s37, 10")
            L.append(lambda: self.srd(RD, "q", 2*MB)); L.append(lambda: self.srd(RE, "wq", 4*MB)); L.append(lambda: self.srd(RT, "gate", 1024))
            V(f"buffer_load_dwordx4 {v(XG,4)}, v{VST}, s[{RD}:{RD+3}], s38 offen")
            V(f"buffer_load_dwordx4 {v(GW,4)}, v{VST}, s[{RT}:{RT+3}], 0 offen")
            return L
        def gate_ops():
            L = []; E = lambda t: L.append(lambda: I(t)); Z = T + 8
            L.append(lambda: vm.wait(hl["t"]))
            def xs():
                I(f"s_add_u32 s38, s38, {XC_OFF}"); I(f"buffer_store_dwordx4 {v(XG,4)}, v{VST}, s[{RWS}:{RWS+3}], s38 offen{self.st}"); vm.issue()
            E(f"v_dot2_f32_bf16 v{Z}, v{XG}, v{GW}, 0")
            for i in range(1, 4): E(f"v_dot2_f32_bf16 v{Z}, v{XG+i}, v{GW+i}, v{Z}")
            for m in ("quad_perm:[1,0,3,2] row_mask:0xf", "quad_perm:[2,3,0,1] row_mask:0xf", "row_half_mirror row_mask:0xf", "row_mirror row_mask:0xf",
                      "row_bcast:15 row_mask:0xa", "row_bcast:31 row_mask:0xc"):
                E(f"v_add_f32_dpp v{Z}, v{Z}, v{Z} {m} bank_mask:0xf")
            E(f"v_readlane_b32 s36, v{Z}, 63"); E(f"v_mov_b32 v{Z+1}, {f2u(-LOG2E)}"); E(f"v_mul_f32 v{Z}, s36, v{Z+1}")
            E(f"v_exp_f32 v{Z}, v{Z}"); E(f"v_add_f32 v{Z}, 1.0, v{Z}"); E(f"v_rcp_f32 v{Z}, v{Z}")
            E("s_lshl_b32 s38, s37, 2"); E(f"s_add_u32 s38, s38, {G_OFF}"); E(f"v_mov_b32 v{Z+1}, 0")
            def gs():
                I(f"buffer_store_dword v{Z}, v{Z+1}, s[{RWS}:{RWS+3}], s38 offen{self.st}"); vm.issue()
            L.append(gs)
            return L
        toks = {}
        def rdx(n):
            t, mt = n >> 3, n & 7
            def f(kk):
                I(f"ds_read_b128 {v(XS[n % 3]+4*kk,4)}, v{AX + (kk ^ (mt & 1))} offset:{(t % 4)*16384 + mt*2048}"); toks[("x", n, kk)] = lg.issue()
            return [lambda: f(0), lambda: f(1)]
        def rdw(t):
            def f(dt, kk, h):
                I(f"ds_read_b64_tr_b16 {v(WR+16*t+8*dt+4*kk+2*h,2)}, v{AW+dt} offset:{(t % 3)*16384+kk*8192+h*1024}"); toks[("w", t, dt, kk)] = lg.issue()
            return [lambda dt=dt, kk=kk, h=h: f(dt, kk, h) for dt in range(2) for kk in range(2) for h in range(2)]
        def mfs(t, k, role):
            L = []
            for e in range(2):
                n = 8*t + 2*k + e
                for dt in range(2):
                    for kk in range(2):
                        def f(e=e, n=n, dt=dt, kk=kk):
                            lg.wait(max(toks[("x", n, kk)], toks[("w", t & 7, dt, kk)]))
                            d = v(ACC + 16*k + (8*dt + 4*e if role else 8*e + 4*dt), 4); X = v(XS[n % 3]+4*kk, 4); W = v(WR+16*(t & 7)+8*dt+4*kk, 4)
                            c = "0" if (t & 7) == 0 and kk == 0 else d
                            I(f"{M16} {d}, {X}, {W}, {c}" if role else f"{M16} {d}, {W}, {X}, {c}")
                        L.append(f)
            return L
        def qrx(t, mt):
            xb = xq(t - 16)
            def f(kk):
                I(f"ds_read_b128 {v(FX[mt & 1]+4*kk,4)}, v{VXA + 2*(xb >> 17) + (kk ^ (mt & 1))} offset:{(xb & 65535) + mt*2048}"); toks[("qx", t, mt, kk)] = lg.issue()
            return [lambda: f(0), lambda: f(1)]
        def qrw(t, dt):
            def f(kk, h):
                I(f"ds_read_b64_tr_b16 {v(FW[t & 1]+8*dt+4*kk+2*h,2)}, v{VWA+dt} offset:{(t % 4)*16384+kk*8192+h*1024}"); toks[("qw", t, dt, kk)] = lg.issue()
            return [lambda kk=kk, h=h: f(kk, h) for kk in range(2) for h in range(2)]
        def qmfs(t, mt):
            L = []
            for dt in range(4):
                for kk in range(2):
                    def f(dt=dt, kk=kk):
                        lg.wait(max(toks[("qx", t, mt, kk)], toks[("qw", t, dt, kk)]))
                        d = v(QACC + 4*(mt*4 + dt), 4)
                        I(f"{M16} {d}, {v(FW[t & 1]+8*dt+4*kk, 4)}, {v(FX[mt & 1]+4*kk, 4)}, {'0' if t == 16 and kk == 0 else d}")
                    L.append(f)
            return L
        def piece(ph, p):
            b = ACC + 8*p; d = b if (ph or p < 2) else PKD + 4*(p - 2)
            pk = [lambda i=i: I(f"v_mul_f32 v{b+i}, s32, v{b+i}") for i in range(8)] + [lambda i=i: I(f"v_cvt_pk_bf16_f32 v{d+i}, v{b+2*i}, v{b+2*i+1}") for i in range(4)]
            def st():
                if self.o.get("nost"): return
                I(f"s_add_u32 s41, s54, {ph*65536 + (p >> 1)*8192}")
                if p & 1: I("s_add_u32 s41, s41, s52")
                I(f"buffer_store_dwordx4 {v(d,4)}, v{VSK}, s[{RWS}:{RWS+3}], s41 offen{self.st}"); vm.issue()
            return pk, st
        side = {}; late = {}
        def spread(ops, t0, t1, dst=side, ks=(0, 1, 2)):
            sl = [(t, k) for t in range(t0, t1) for k in ks]; n = len(ops)
            for j, key in enumerate(sl): dst.setdefault(key, []).extend(ops[n*j//len(sl): n*(j+1)//len(sl)])
        PG = self.o.get("pg", 0)
        spread(gate_loads(), PG, PG + 1); spread(gate_ops(), PG + 2, PG + 3)
        def wtouch(r, half, wv):
            def f():
                I(f"s_cmp_eq_u32 s{SW}, {wv}"); I(f"s_cselect_b32 s99, 0, {self.OOB}")
                I(f"s_lshl_b32 s40, s{SIDX}, 19"); I(f"s_lshl_b32 s39, s{SHEAD}, 8"); I("s_add_u32 s40, s40, s39"); I(f"s_add_u32 s40, s40, {half*32*8192}")
                I("v_lshrrev_b32 v3, 1, v0"); I("v_lshlrev_b32 v3, 13, v3"); I("v_and_b32 v2, 1, v0"); I("v_lshl_add_u32 v3, v2, 7, v3"); I("v_add_u32 v3, s99, v3")
                I(f"buffer_load_dword v1, v3, s[{r}:{r+3}], s40 offen"); vm.issue()
            return f
        t0 = self.o.get("tq", 5)
        if t0 >= 0:
            for half in range(2): side.setdefault((t0 + half, 2), []).append(wtouch(RE, half, half))
        def btouch(j):
            def f():
                I(f"s_cmp_eq_u32 s{SW}, {j+2}"); I(f"s_cselect_b32 s99, 0, {self.OOB}"); I("v_lshl_add_u32 v3, v0, 7, s99")
                I(f"s_and_b32 s40, s{SHEAD}, 3"); I("s_lshl_b32 s40, s40, 15"); I("s_add_u32 s40, s40, s46"); I(f"s_add_u32 s40, s40, {j*8192}")
                I(f"buffer_load_dword v1, v3, s[{RA}:{RA+3}], s40 offen"); vm.issue()
            return f
        tb = self.o.get("tb", 2)
        if tb >= 0:
            for j in range(4): side.setdefault((tb + j // self.o.get("tbn", 1), 1), []).append(btouch(j))
        PA = [piece(0, p) for p in range(8)]; PB_ = [piece(1, p) for p in range(8)]
        for p, key in enumerate(((7, 1), (7, 2), (7, 2), (7, 3), (8, 0), (8, 0), (8, 1), (8, 2))): side.setdefault(key, []).extend(PA[p][0])
        late.setdefault((7, 2), []).append(PA[0][1]); late.setdefault((7, 3), []).append(PA[1][1])
        KN = self.o.get("kn", 6); VN = self.o.get("vn", 5)
        spread([s_ for _, s_ in PA[2:]], 9, 9 + KN, dst=late, ks=(2,))
        for p, key in enumerate(((15, 1), (15, 2), (16, 0), (16, 1), (17, 0), (17, 1), (18, 0), (18, 1))): side.setdefault(key, []).extend(PB_[p][0])
        spread([s_ for _, s_ in PB_], 15, 16 + VN, dst=late, ks=(2,))
        PK_, PV_ = 9 + KN + 1, 16 + VN
        QS = []; EQ = lambda t: QS.append(lambda: I(t))
        EQ("s_lshl_b32 s40, s42, 13"); EQ(f"v_add_u32 v{VXA}, s40, v{AX}"); EQ(f"v_xor_b32 v{VXA+1}, 64, v{VXA}"); EQ(f"v_add_u32 v{VXA+2}, 0x20000, v{VXA}"); EQ(f"v_add_u32 v{VXA+3}, 0x20000, v{VXA+1}")
        EQ("s_lshl_b32 s40, s43, 7"); EQ(f"v_xor_b32 v{VWA}, s40, v9")
        for dt in range(1, 4): EQ(f"v_xor_b32 v{VWA+dt}, {dt << 5}, v{VWA}")
        side.setdefault((15, 0), []).extend(QS)
        QE = []; EQ = lambda t: QE.append(lambda: I(t))
        EQ(f"s_and_b32 s55, s{SW}, 2"); EQ("s_lshl_b32 s55, s55, 15"); EQ(f"s_add_u32 s55, s55, {QA_LDS}")
        EQ(f"s_and_b32 s54, s{SW}, 1"); EQ("s_lshl_b32 s54, s54, 14"); EQ("s_add_u32 s55, s55, s54")
        EQ("s_lshl_b32 s54, s43, 11"); EQ("s_add_u32 s55, s55, s54"); EQ(f"v_add_u32 v14, s55, v{VST}")
        spread(QE, NS - 1, NS)
        spread([lambda: self.srd(RB, "ssmk", 2*MB), lambda: self.srd(RA, "k", 2*MB), lambda: self.srd(RC, "v", 2*MB), lambda: self.srd(RD, "shift", 4096), lambda: self.srd(RE, "wo", 4*MB)], NS - 2, NS - 1)
        spread([lambda r=r: I(f"v_mov_b64 {v(192+2*r,2)}, 0") for r in range(32) if not 16 <= r < 20], NS - 1, NS)
        side.setdefault((NS - 1, 3), []).extend([lambda r=r: I(f"v_mov_b64 {v(192+2*r,2)}, 0") for r in range(16, 20)])
        def fkoff():
            I(f"s_lshl_b32 s40, s{SHEAD}, 7"); I(f"s_lshl_b32 s41, s{SIDX}, 2"); I("s_add_u32 s40, s40, s41"); I(f"s_add_u32 s40, s40, {FK_OFF}")
        def w0only(fn):
            l = a.label("NP"); I(f"s_cmp_lg_u32 s{SW}, 0"); I(f"s_cbranch_scc1 {l}"); fn(); a.L(l)
        def k0(i):
            I(f"s_lshl_b32 s40, s{SW}, 12"); I("s_add_u32 m0, s40, 0x8000")
            I(f"s_lshl_b32 s41, s{SHEAD}, 20"); I("s_add_u32 s41, s41, s40")
            I(f"buffer_load_dwordx4 v{VST}, s[{RWS}:{RWS+3}], s41 offen offset:{1024*i}{self.ld} lds"); vm.issue()
        self.barrier()
        for f in take(-1, 1): f()
        vm.wait(dtok[0]); self.barrier()
        self.stamp(1)
        x0 = rdx(0); w0 = rdw(0)
        for f in [x0[0]] + w0[:2] + [x0[1]] + w0[2:] + rdx(1): f()
        VPK = self.o.get("vpk", 2); mark = {}; TZ = PG + 4; TS = 16; DS = self.o.get("dsteps", 3); CAP = self.o.get("cap", 4)
        S_ = dict(pend=take(-1, 2), rest=[])
        def stage(t, role):
            for k in range(4):
                M = mfs(t, k, role) if t < 16 else qmfs(t, k); n = 8; PB = []
                if k == 3 and t < NS - 1:
                    assert not S_["pend"]
                    if t == TS + 2: vm.wait(S_["td"]); w0only(lambda: self.poll_check(14, 13, "0", rep4(1), RDBG))
                    if t == NS - 3: vm.wait(S_["tp"]); w0only(lambda: self.poll_check(15, 13, "s53", 1))
                    lg.wait(lg.issued); vm.wait(dtok[t+1])
                    if t == TZ: vm.wait(mark[TZ-2])
                    if t == PK_: vm.wait(mark[PK_ - 2])
                    if t == PV_: vm.wait(mark[PV_ - 1])
                    self.barrier()
                    ps = self.o.get("pstamp")
                    if ps is not None and 0 <= t - int(ps) + 1 < 13: self.stamp(17 + t - int(ps) + 1); vm.issue(2)
                    if TZ <= t < TZ + 4: PB.append(lambda t=t: self.publish(SF, 1, RDBG, True, idx=t - TZ))
                    if t == PK_: PB.append(lambda: (fkoff(), self.publish(40, 1)))
                    if t == PV_: PB.append(lambda: (fkoff(), self.publish(40, 3)))
                    S_["pend"] = take(t, cap=CAP if t < 14 else 6)
                    if t == NS - 3: S_["pend"] += [lambda i=i: k0(i) for i in range(4)]
                    nd = len(S_["pend"]) // (DS + 1)
                else:
                    nd = -(-len(S_["pend"]) // max(1, (3 if t == 0 else DS) - k))
                D, S_["pend"] = S_["pend"][:nd], S_["pend"][nd:]
                fl = []
                if t < 15 or (t == 15 and k < 3):
                    nn = 8*t + 2*k
                    fl += [(0, 2, rdx(nn + 2)), (4, 6, rdx(nn + 3))]
                    if k == 3 and t < 7: fl.append((0, 7, rdw(t + 1)))
                elif k == 3:
                    if t < NS - 1:
                        x = qrx(t+1, 0); w = [qrw(t+1, dt) for dt in range(4)]
                        fl.append((0, 7, [x[0]] + w[0][:2] + [x[1]] + w[0][2:] + w[1] + w[2])); S_["rest"] = w[3]
                else:
                    if k == 0: fl.append((-1, 2, S_["rest"]))
                    fl.append((2, 4, qrx(t, k+1)))
                if PB: fl.append((1, 2, PB))
                if D: fl.append((0, n, D))
                if side.get((t, k)): fl.append((0, n - 1 if late.get((t, k)) else n, side[(t, k)]))
                if late.get((t, k)): fl.append((n - 1, n, late[(t, k)]))
                self.stream(M, fl)
                if k == 2: mark[t] = vm.issued
                if t == TS and k == 0:
                    self.oob_sel(); I("v_lshl_add_u32 v13, v0, 2, s99"); S_["td"] = self.poll_issue(14, 13, "0", RDBG)
                if t == NS - 4 and k == 0:
                    self.oob_sel(); I("v_and_b32 v13, 7, v0"); I("v_lshl_add_u32 v13, v13, 2, s99")
                    I(f"s_lshl_b32 s53, s{SHEAD}, 7"); I(f"s_add_u32 s53, s53, {FK_OFF}")
                    S_["tp"] = self.poll_issue(15, 13, "s53")
                if t == NS - 1 and k == VPK: self.poll_issue(15, 13, "s53")
            if t == 7: self.stamp(2)
        LV = a.label("ROLEV"); LJ = a.label("ROLEJ")
        I("s_cmp_eq_u32 s43, 1"); I(f"s_cbranch_scc1 {LV}")
        sv = (self.save(), list(items), dict(dtok), dict(toks), dict(S_), dict(hl))
        for role in (0, 1):
            if role:
                a.L(LV); self.restore(sv[0]); items[:] = sv[1]; dtok.clear(); dtok.update(sv[2]); toks.clear(); toks.update(sv[3]); S_.update(sv[4])
            for t in range(16): stage(t, role)
            if not role: I(f"s_branch {LJ}")
        a.L(LJ)
        self.stamp(13)
        for t in range(16, NS): stage(t, 0)
        assert not items
        self.stamp(3)
        I("v_mov_b32 v16, v13")
        for mt in range(4):
            for j in range(2):
                b = QACC + 4*(mt*4 + 2*j)
                for i in range(4): I(f"v_cvt_pk_bf16_f32 v{64+8*mt+4*j+i}, v{b+2*i}, v{b+2*i+1}")
                I(f"ds_write_b128 v14, {v(64+8*mt+4*j,4)} offset:{mt*4096 + j*1024}"); lg.issue()
        self.attn_setup()
        vm.wait(vm.issued); w0only(lambda: self.poll_check(15, 16, "s53", 3))
        lg.wait(lg.issued); self.barrier()

    def attn_setup(self): self.attn(True)
    def attn(self, setup=False):
        a = self.a; I = self.I; vm = self.vm; lg = self.lg
        M16 = "v_mfma_f32_16x16x32_bf16"
        ML = 155648; QA_LDS = 65536; QB_LDS = 131072
        O = 192; QF = 160; NM = 144; S = [112, 128]; PP = [96, 104]; RING = 64; NR = 8; E = 56; PK = 16
        VK, VV, VL16, VSC, LM, THR, NINF, VQ, TMP = 4, 5, 6, 7, 8, 9, 10, 11, 12
        LS, ONES, BIAS = 152, 60, 11.0
        SR, SG, SC1, SC2, SKO, SVO, SKM, SVM, STH = 32, 33, 34, 35, 36, 37, 38, 39, 42
        SFIN, SCA, SM1 = 55, 59, 58
        DC = self.o.get("dmacost", 16); WEV = self.o.get("wev", 4)
        if setup:
            I(f"s_lshr_b32 s{SG}, s{SW}, 2"); I(f"s_mul_i32 s{SR}, s{SG}, 7"); I(f"s_xor_b32 s{SR}, s{SR}, s{SW}")
            I(f"v_lshlrev_b32 v{VL16}, 4, v0")
            I(f"s_lshl_b32 s44, s{SR}, 13"); I(f"s_add_u32 s44, s44, {QB_LDS}"); I(f"v_add_u32 v{VQ}, s44, v{VL16}")
            I(f"s_lshl_b32 s45, s{SG}, 16"); I(f"v_subrev_u32 v{TMP+1}, s45, v{VQ}")
            I(f"s_mov_b32 s{SC1}, s{SIDX}")
            I(f"s_lshl_b32 s{SC2}, s{SIDX}, 1"); I(f"s_sub_u32 s{SC2}, 14, s{SC2}")
            I(f"s_cmp_eq_u32 s{SG}, 1"); I(f"s_cselect_b32 s{SM1}, 0, -1")
            I(f"s_lshl_b32 s43, s{SW}, 12"); I(f"s_lshl_b32 s{SVO}, s{SHEAD}, 20"); I(f"s_add_u32 s{SVO}, s{SVO}, s43")
            I(f"s_add_u32 s{SKO}, s{SVO}, 0x10000"); I(f"s_add_u32 s{SVO}, s{SVO}, 0x8000")
            I(f"s_mov_b32 s{SKM}, s43"); I(f"s_add_u32 s{SVM}, s43, 0x18000")
            I(f"s_mov_b32 s{STH}, 0x40004000"); I(f"v_mov_b32 v{NINF}, 0xff800000")
            for r in range(4): I(f"v_mov_b32 v{ONES+r}, 0x3f803f80"); I(f"v_mov_b64 {v(LS+2*r,2)}, 0")
            I(f"v_and_b32 v{THR}, 15, v0"); I(f"v_lshlrev_b32 v{VSC}, 4, v{THR}"); I(f"s_lshl_b32 s44, s{SR}, 5"); I(f"v_add_u32 v{THR}, s44, v{THR}")
            I(f"v_lshrrev_b32 v{TMP}, 4, v0"); I(f"v_lshl_add_u32 v{VSC}, v{TMP}, 9, v{VSC}"); I(f"v_lshlrev_b32 v{TMP}, 2, v{TMP}"); I(f"v_sub_u32 v{THR}, v{THR}, v{TMP}")
            I(f"v_and_b32 v{VK}, 15, v0"); I(f"v_lshlrev_b32 v{VK}, 4, v{VK}"); I(f"v_lshrrev_b32 v{TMP}, 4, v0"); I(f"v_lshl_add_u32 v{VK}, v{TMP}, {self.GSH}, v{VK}"); I(f"v_add_u32 v{VK}, 0x8000, v{VK}")
            I(f"s_lshl_b32 s{SCA}, s{SIDX}, 2"); I(f"s_add_u32 s{SCA}, s{SCA}, s{SR}"); I(f"s_lshl_b32 s{SCA}, s{SCA}, 5"); I(f"s_add_u32 s{SCA}, s{SCA}, s{SHEAD}")
            I(f"s_lshl_b32 s{SCA}, s{SCA}, 13"); I(f"s_add_u32 s{SCA}, s{SCA}, {CTX_OFF}")
            I(f"s_mov_b32 s{SFIN}, 0")
            I(f"s_lshr_b32 s56, s{SF}, 6"); I("s_lshl_b32 s56, s56, 2"); I(f"s_bfe_u32 s44, s{SF}, 0x20003"); I("s_add_u32 s56, s56, s44"); I("s_lshl_b32 s56, s56, 1")
            I(f"s_bfe_u32 s44, s{SF}, 0x10005"); I("s_add_u32 s56, s56, s44"); I(f"s_and_b32 s57, s{SF}, 7")
            I("s_mov_b32 s41, 0")
            CL = self.o.get("cl", 8)
            I(f"s_lshr_b32 s40, {1 << (CL+2)}, s{SG}"); I(f"s_or_b32 s40, s40, {1 << CL}")
            I(f"s_lshl_b32 s44, 2, s{SW}"); I("s_and_b32 s44, s44, 30"); I("s_or_b32 s40, s40, s44")
            I(f"s_cmp_eq_u32 s{SW}, 0"); I(f"s_cselect_b32 s44, {(1 << 5) | (1 << (CL+4))}, 0"); I("s_or_b32 s40, s40, s44")
            if not self.o.get("noprio"):
                l = a.label("PR"); I(f"s_cmp_eq_u32 s{SG}, 1"); I(f"s_cbranch_scc0 {l}"); I("s_setprio 1"); a.L(l)
            return
        op = lambda t, c=4: (lambda: I(t), c)
        nop = lambda: None
        def loadq(va):
            for ds in range(8):
                I(f"ds_read_b128 {v(QF+4*ds,4)}, v{va} offset:{1024*ds}"); lg.issue()
        def dma4(kind):
            sm, so = (SKM, SKO) if kind == "k" else (SVM, SVO)
            def d(i):
                def f():
                    if i == 0: I(f"s_mov_b32 m0, s{sm}"); I(f"s_xor_b32 s{sm}, s{sm}, 0x8000")
                    I(f"buffer_load_dwordx4 v{VL16}, s[{RWS}:{RWS+3}], s{so} offen offset:{1024*i}{self.ld} lds")
                    if i == 3: I(f"s_add_u32 s{so}, s{so}, 0x10000")
                return (f, DC + (8 if i == 0 else 4 if i == 3 else 0))
            return [d(i) for i in range(4)]
        self.ring_n = 0
        def rd(kind, sl, idx):
            h = {}
            def f():
                slot = self.ring_n % NR; self.ring_n += 1
                h["reg"] = RING + 4*slot
                I(f"ds_read_b128 {v(h['reg'],4)}, v{VK if kind == 'k' else VV} offset:{sl*8192+(idx << self.FSH)}"); h["tok"] = lg.issue()
            return f, h
        def wait_for(R, i):
            if R[i][1]["tok"] <= lg.done: return
            j = i
            while j + 1 < len(R) and j + 1 < i + WEV and "tok" in R[j+1][1] and R[j+1][1]["tok"] > R[i][1]["tok"]: j += 1
            lg.wait(R[j][1]["tok"])
        def otile(dt, qt): return O + 16*(dt >> 1) + 8*qt + 4*(dt & 1)
        def qk(sb, R, base, czero=False):
            def f(m):
                kt, qt, dd = m >> 3, (m >> 2) & 1, m & 3; i = base + 4*kt + dd
                wait_for(R, i); d = v(S[sb] + 8*qt + 4*kt, 4)
                c = ("0" if czero else v(NM + 4*qt, 4)) if dd == 0 else d
                I(f"{M16} {d}, {v(R[i][1]['reg'],4)}, {v(QF + 16*qt + 4*dd, 4)}, {c}")
            return [lambda m=m: f(m) for m in range(16)]
        def pv1(pb, dt, qt, reg): I(f"{M16} {v(otile(dt, qt),4)}, {v(reg,4)}, {v(PP[pb]+4*qt,4)}, {v(otile(dt, qt),4)}")
        def pv(pb, R, base, dts=range(8), exact=False):
            def f(dt, qt):
                if exact: lg.wait(R[base+dt][1]["tok"])
                else: wait_for(R, base + dt)
                pv1(pb, dt, qt, R[base+dt][1]["reg"])
            ls = [lambda qt=qt: I(f"{M16} {v(LS+4*qt,4)}, {v(ONES,4)}, {v(PP[pb]+4*qt,4)}, {v(LS+4*qt,4)}") for qt in range(2)]
            return ls + [lambda dt=dt, qt=qt: f(dt, qt) for dt in dts for qt in range(2)]
        def sm_ops(sb):
            ex = lambda i: op(f"v_exp_f32 v{E+(i&3)}, v{S[sb]+i}", 8)
            cv = lambda j: op(f"v_cvt_pk_bf16_f32 v{PP[sb]+j}, v{E+((2*j)&3)}, v{E+((2*j+1)&3)}")
            p = PP[sb]; L = [ex(0), ex(1)]
            ors = {2: f"v_or3_b32 v{LM}, v{p}, v{p+1}, v{p+2}", 4: f"v_or3_b32 v{LM}, v{LM}, v{p+3}, v{p+4}", 6: f"v_or3_b32 v{LM}, v{LM}, v{p+5}, v{p+6}"}
            for j in range(8):
                L += [ex(2*j+2), cv(j), ex(2*j+3)] if j < 7 else [op("s_nop 0"), cv(j)]
                if j in ors: L.append(op(ors[j]))
            L = [x for i, x in enumerate(L) if i != len(L) - 2]
            L += [op(f"v_or_b32 v{LM}, v{LM}, v{p+7}"), op(f"v_and_b32 v{LM}, s{STH}, v{LM}")]
            return L
        def sched(M, fixed, chain):
            n = len(M); fc = [sum(c for _, c in fixed.get(g, [])) for g in range(n)]
            tot = sum(c for _, c in chain); lo, hi = 0.0, 4000.0
            for _ in range(40):
                lev = (lo + hi) / 2
                if sum(max(0, lev - f) for f in fc) >= tot: hi = lev
                else: lo = lev
            k = 0; credit = 0.0
            for g in range(n):
                M[g]()
                for c, _ in fixed.get(g, []): c()
                credit += max(0, hi - fc[g])
                while k < len(chain) and (g == n - 1 or chain[k][1] <= credit + 2):
                    chain[k][0](); credit -= chain[k][1]; k += 1
        def put(fixed, g, items): fixed.setdefault(g, []).extend(items)
        SPL = self.o.get("spl", 18)
        ool = []
        def rarely(cmp_, body):
            lo = a.label("OOL"); lb = a.label("RET")
            I(cmp_); I(f"s_cbranch_scc1 {lo}"); a.L(lb)
            ool.append((lo, lb, body))
        def mask_ops(sb, koff):
            prs = [46, 48, 50, 52]; L = []
            if koff >= 64:
                L.append(op(f"v_subrev_u32 v{TMP+3}, 64, v{THR}")); tr = TMP + 3; koff -= 64
            elif koff < 0:
                L += [op(f"s_lshl_b32 s45, s{SG}, 6"), op(f"v_subrev_u32 v{TMP+3}, s45, v{THR}")]; tr = TMP + 3; koff = -koff - 1
            else: tr = THR
            for r0 in range(0, 16, 4):
                qt, kt = r0 >> 3, (r0 >> 2) & 1
                for r in range(4): L.append(op(f"v_cmp_lt_i32 s[{prs[r]}:{prs[r]+1}], v{tr}, {16*kt + r + koff - 16*qt}"))
                for r in range(4): L.append(op(f"v_cndmask_b32 v{S[sb]+r0+r}, v{S[sb]+r0+r}, v{NINF}, s[{prs[r]}:{prs[r]+1}]"))
            return L
        def mask_body(sb, koff):
            for c, _ in mask_ops(sb, koff): c()
        def xred(x, y, t0, t1, o):
            L = []
            for sw in ("v_permlane16_swap_b32", "v_permlane32_swap_b32"):
                L += [op(f"v_mov_b32 v{t0}, v{x}"), op(f"v_mov_b32 v{t1}, v{y}"), op("s_nop 0"), op(f"{sw} v{t0}, v{x}"), op(f"{sw} v{t1}, v{y}"),
                      op(f"{o} v{x}, v{x}, v{t0}"), op(f"{o} v{y}, v{y}, v{t1}")]
            return L
        def rowmax(sb):
            for qt in range(2):
                b = S[sb] + 8*qt; d = TMP + qt
                I(f"v_max3_f32 v{d}, v{b}, v{b+1}, v{b+2}"); I(f"v_max3_f32 v{d}, v{d}, v{b+3}, v{b+4}"); I(f"v_max3_f32 v{d}, v{d}, v{b+5}, v{b+6}"); I(f"v_max_f32 v{d}, v{d}, v{b+7}")
            for c, _ in xred(TMP, TMP+1, TMP+2, TMP+3, "v_max_f32"): c()
        def init_max():
            rowmax(0)
            for qt in range(2): I(f"v_max_f32 v{TMP+qt}, {f2u(-1e30)}, v{TMP+qt}"); I(f"v_add_f32 v{TMP+qt}, {f2u(BIAS)}, v{TMP+qt}")
            for r in range(8): I(f"v_sub_f32 v{NM+r}, 0, v{TMP+(r>>2)}")
            return [op(f"v_sub_f32 v{S[0]+r}, v{S[0]+r}, v{TMP+(r>>3)}") for r in range(16)]
        rare = []
        def check(sb, other=True):
            lr = a.label("RARE"); lb = a.label("BACK")
            I(f"v_cmp_ne_u32 vcc, 0, v{LM}")
            if self.o.get("a_nocheck"): I("s_mov_b64 vcc, 0")
            I(f"s_cbranch_vccnz {lr}"); a.L(lb)
            rare.append((lr, lb, sb, other))
        def fin_body():
            I(f"s_mov_b32 s{SFIN}, 2")
            I(f"v_rcp_f32 v{TMP}, v{LS}"); I(f"v_rcp_f32 v{TMP+2}, v{LS+4}"); I(f"v_mov_b32 v{TMP+1}, v{TMP}"); I(f"v_mov_b32 v{TMP+3}, v{TMP+2}")
            for r in range(4): I(f"v_mov_b64 {v(LS+2*r,2)}, 0")
            for q in range(8):
                for i in range(8*q, 8*q+8, 2): I(f"v_pk_mul_f32 {v(O+i,2)}, {v(O+i,2)}, {v(TMP+2*(q&1),2)}")
                for i in range(4): I(f"v_cvt_pk_bf16_f32 v{PK+4*q+i}, v{O+8*q+2*i}, v{O+8*q+2*i+1}")
                for i in range(8*q, 8*q+8, 2): I(f"v_mov_b64 {v(O+i,2)}, 0")
        coff = lambda q: (q & 3)*1024
        def st_body():
            I(f"s_add_u32 s44, s{SCA}, 4096"); I(f"s_mov_b32 s{SFIN}, 3")
            for q in range(8):
                I(f"buffer_store_dwordx4 {v(PK+4*q,4)}, v{VL16}, s[{RWS}:{RWS+3}], s{SCA if q < 4 else 44} offen offset:{coff(q)}{self.st}")
        TR = [RING + 4*(2+i) for i in range(6)]
        def head(R, vmw, with_mfma=True, post=(), more=(), pre=None):
            rf = [(f, 4) for f, h in R]; sm2 = sm_ops(0)[SPL:]
            M = [lambda dt=dt, qt=qt: pv1(1, dt, qt, TR[dt-2]) for dt in range(2, 8) for qt in range(2)] if with_mfma else [nop]*12
            if with_mfma: I("s_waitcnt lgkmcnt(4)")
            nb = self.o.get("nb", 4); more = list(more); m0 = len(more) // 3
            if pre is not None: more = list(pre) + more; m0 = len(pre)
            sched(M[:4], {}, sm2[:nb] + more[:m0])
            vmw(); I("s_waitcnt lgkmcnt(0)"); lg.mark_all_done(); self.barrier(); self.ring_n = 0
            fx = {0: rf[0:2], 1: rf[2:4], 2: rf[4:5], 4: rf[5:6], 6: rf[6:7], 7: [(nop, 8 + 8*len(post))]}
            sched(M[4:], fx, sm2[nb:] + more[m0:])
            check(0)
            for p in post: p()
        def mk_reads():
            return ([rd("k", 0, i) for i in range(8)] + [rd("v", 0, i) for i in range(8)] +
                    [rd("k", 1, i) for i in range(8)] + [rd("v", 1, i) for i in range(8)])
        def last_use(F):
            b = (0, 18, 34, 52)[F >> 3]; f = F & 7
            return b + (2*f + 1 if (F >> 3) & 1 else 8*(f >> 2) + 4 + (f & 3))
        def mid(R, dmas, kx, mb=None, trans=False, endops=(), early=(), g=0):
            rf = [(f, 4) for f, h in R]
            fa = {0: [rf[7]]}; fb = {}
            G_ = g
            for g, e in zip((1, 3, 9, 11), early): put(fa, g, [e])
            for F in range(8, 32):
                g = last_use(F - 8) + 1
                put(fa, g, [rf[F]]) if g < 34 else put(fb, g - 34, [rf[F]])
            D = sum((dma4(k) for k in dmas), [])
            st_ = self.o.get("gst", 4); of_ = self.o.get("gof", 2)
            gaps = [2 + of_*G_*2 + 2*st_*n for n in range(4)] if len(D) == 4 else [2 + of_*G_ + st_*n for n in range(8)]
            for g, d in zip(gaps, D): put(fa, g, [d]) if g < 33 else put(fb, g - 33, [d])
            PT = self.o.get("pt", 0)
            if PT and G_ == 0:
                pts = {1: [(0, 24, 2), (1, 21, 0)], 2: [(0, 8, 2), (0, 24, 0), (1, 7, 2), (1, 21, 0)], 3: [(0, 0, 2), (0, 8, 0), (0, 16, 2), (0, 24, 0), (0, 32, 2), (1, 7, 0), (1, 15, 2), (1, 21, 0)],
                       4: [(0, 16, 2), (1, 21, 0)], 5: [(0, 32, 2), (1, 21, 0)]}[PT]
                for part, g, p in pts: put(fb if part else fa, g, [op(f"s_setprio {p}")])
            put(fa, 33, [(nop, 16)])
            sched(qk(0, R, 0, trans) + pv(0, R, 8), fa, sm_ops(1))
            check(1, other=not trans)
            if mb: mb()
            pre = []
            if trans:
                I(f"s_mov_b32 s{SFIN}, 1")
                pre = init_max()
            put(fb, 18, [op(f"v_xor_b32 v{VV}, 0x10000, v{VK}")] + kx)
            for n, e in enumerate(endops): put(fb, 11 - n, [e])
            put(fb, 21, [(nop, 12)])
            sched(qk(1, R, 16) + pv(1, R, 24, range(2)), fb, pre + sm_ops(0)[:SPL])
            assert [R[26+i][1]["reg"] for i in range(6)] == TR
        vm4 = lambda: I("s_waitcnt vmcnt(4)")
        def vm08():
            lo = a.label("W8"); lb = a.label("W8R")
            I(f"s_cmp_eq_u32 s{SFIN}, 3"); I(f"s_cbranch_scc1 {lo}"); I("s_waitcnt vmcnt(0)"); a.L(lb)
            def b(): I("s_waitcnt vmcnt(8)"); I(f"s_mov_b32 s{SFIN}, 4")
            ool.append((lo, lb, b))
        m1 = lambda sb, ko: (lambda: rarely(f"s_cmp_eq_u32 s{SC1}, s{SM1}", lambda: mask_body(sb, ko)))
        fin = lambda: rarely(f"s_cmp_eq_u32 s{SFIN}, 1", fin_body)
        sta = (lambda: rarely(f"s_cmp_eq_u32 s{SFIN}, 2", st_body), 8)
        KR, VR, SH, WO, AD = 16, 23, 28, 32, 40
        def side_loads():
            L = []; E = lambda t: L.append(op(t)); V = lambda t: L.append(op(t, DC))
            E(f"v_lshrrev_b32 v{AD}, 5, v0"); E(f"v_and_b32 v{AD+1}, 31, v0"); E(f"v_lshlrev_b32 v{AD+2}, 12, v{AD}"); E(f"v_lshl_add_u32 v{AD+2}, v{AD+1}, 2, v{AD+2}")
            E(f"s_lshr_b32 s60, s{SF}, 1"); E("s_lshl_b32 s60, s60, 15"); E(f"s_and_b32 s61, s{SF}, 1"); E("s_lshl_b32 s61, s61, 9"); E("s_add_u32 s60, s60, s61")
            E(f"s_lshl_b32 s61, s{SW}, 6"); E("s_add_u32 s60, s60, s61"); E("s_add_u32 s61, s60, 16384")
            E(f"v_lshrrev_b32 v{AD+3}, 4, v0"); E(f"v_lshlrev_b32 v{AD+3}, 12, v{AD+3}"); E(f"v_and_b32 v{AD+4}, 15, v0"); E(f"v_lshl_add_u32 v{AD+3}, v{AD+4}, 2, v{AD+3}")
            for j in range(8): V(f"buffer_load_dword v{WO+j}, v{AD+3}, s[{RE}:{RE+3}], s{60+(j>>2)} offen offset:{1024*(j&3)}")
            E("s_lshr_b32 s62, s2, 3"); E("s_lshl_b32 s62, s62, 16"); E(f"s_lshl_b32 s63, s{SW}, 13"); E("s_add_u32 s62, s62, s63")
            E("s_and_b32 s63, s2, 7"); E("s_lshl_b32 s63, s63, 7"); E("s_add_u32 s62, s62, s63"); E(f"v_add_u32 v{AD+3}, s62, v{AD+2}")
            for i in range(3): E(f"v_subrev_u32 v{AD+4+i}, {3072-1024*i}, v{AD+3}")
            E("s_lshl_b32 s63, s63, 2"); E(f"v_lshl_add_u32 v{AD+7}, v{AD+1}, 4, s63")
            for i in range(3): V(f"buffer_load_dword v{KR+i}, v{AD+4+i}, s[{RA}:{RA+3}], 0 offen")
            for i in range(4): V(f"buffer_load_dword v{KR+3+i}, v{AD+3}, s[{RA}:{RA+3}], 0 offen offset:{1024*i}")
            for i in range(4): V(f"buffer_load_dword v{VR+i}, v{AD+3}, s[{RC}:{RC+3}], 0 offen offset:{1024*i}")
            V(f"buffer_load_dwordx4 {v(SH,4)}, v{AD+7}, s[{RD}:{RD+3}], 0 offen")
            return L
        NSL = 21
        def side_math():
            L = []; E = lambda t: L.append(op(t)); V = lambda t: L.append(op(t, DC))
            W2 = 48
            E("s_mov_b32 s60, 0x05040100"); E("s_mov_b32 s61, 0x07060302")
            for j in range(4): E(f"v_perm_b32 v{W2+j}, v{WO+2*j+1}, v{WO+2*j}, s60")
            for j in range(4): E(f"v_perm_b32 v{W2+4+j}, v{WO+2*j+1}, v{WO+2*j}, s61")
            E(f"s_and_b32 s60, s{SF}, 1"); E("s_lshl_b32 s60, s60, 2"); E(f"s_lshr_b32 s61, s{SW}, 1"); E("s_add_u32 s60, s60, s61"); E("s_lshl_b32 s60, s60, 19")
            E(f"s_lshr_b32 s61, s{SF}, 1"); E("s_lshl_b32 s61, s61, 12"); E("s_add_u32 s60, s60, s61"); E(f"s_and_b32 s61, s{SW}, 1"); E("s_lshl_b32 s61, s61, 11")
            E("s_add_u32 s60, s60, s61"); E(f"s_add_u32 s60, s60, {WOT_OFF}")
            for mt in range(2): V(f"buffer_store_dwordx4 {v(W2+4*mt,4)}, v{VL16}, s[{RWS}:{RWS+3}], s60 offen offset:{1024*mt}{self.st}")
            KU, SU, OO, VU, PQ = 32, 42, 48, 39, 52
            for c in range(2):
                def unp(d, sreg, half): E(f"v_lshlrev_b32 v{d}, 16, v{sreg}" if half == 0 else f"v_and_b32 v{d}, 0xffff0000, v{sreg}")
                for i in range(7): unp(KU+i, KR+i, c)
                for j in range(4): unp(SU+j, SH + 2*c + (j >> 1), j & 1)
                for o in range(4):
                    E(f"v_mul_f32 v{OO+o}, v{KU+o}, v{SU+3}")
                    for j in (2, 1, 0): E(f"v_fmac_f32 v{OO+o}, v{KU+o+3-j}, v{SU+j}")
                    unp(VU, VR+o, c)
                    E(f"v_mul_f32 v{OO+o}, v{OO+o}, v{VU}")
                d = PQ + 2*(1-c)
                E(f"v_cvt_pk_bf16_f32 v{d}, v{OO+3}, v{OO+2}"); E(f"v_cvt_pk_bf16_f32 v{d+1}, v{OO+1}, v{OO}")
            E(f"v_lshlrev_b32 v{AD+1}, 5, v{AD+1}"); E(f"v_lshl_add_u32 v{AD+1}, v{AD}, 4, v{AD+1}")
            E(f"v_permlane32_swap_b32 v{PQ+2}, v{PQ}"); E(f"v_permlane32_swap_b32 v{PQ+3}, v{PQ+1}")
            E("s_lshr_b32 s60, s2, 3"); E("s_lshl_b32 s60, s60, 16"); E(f"s_lshl_b32 s61, s{SW}, 13"); E("s_add_u32 s60, s60, s61")
            E("s_and_b32 s61, s2, 7"); E("s_lshl_b32 s61, s61, 10"); E("s_add_u32 s60, s60, s61"); E(f"s_add_u32 s60, s60, {KVT_OFF}")
            V(f"buffer_store_dwordx4 {v(PQ,4)}, v{AD+1}, s[{RWS}:{RWS+3}], s60 offen{self.st}")
            return L
        CL = self.o.get("cl", 8)
        def touch(k):
            if k in (1, 2):
                I(f"s_lshl_b32 s60, s{SF}, 14")
                if k == 2: I("s_add_u32 s60, s60, 8192")
                I("v_lshlrev_b32 v16, 7, v0"); r = RE
            elif k in (3, 4):
                I("s_lshr_b32 s60, s2, 3"); I("s_lshl_b32 s60, s60, 16"); I("s_and_b32 s61, s2, 7"); I("s_lshl_b32 s61, s61, 7"); I("s_add_u32 s60, s60, s61")
                I("v_lshlrev_b32 v16, 10, v0"); r = RA if k == 3 else RC
            else:
                I(f"s_lshl_b32 s60, s{SF}, 13"); I("v_lshlrev_b32 v16, 7, v0"); r = RB
            I(f"buffer_load_dword v1, v16, s[{r}:{r+3}], s60 offen")
        LSITE = a.label("SITE")
        def site_code():
            a.L(LSITE)
            def ret(): I("s_nop 1"); I("s_setpc_b64 s[76:77]")
            l = a.label("SN"); I(f"s_cmp_lg_u32 s41, {CL}"); I(f"s_cbranch_scc1 {l}")
            for c, _ in side_loads(): c()
            ret(); a.L(l)
            l = a.label("SN"); I(f"s_add_u32 s44, s41, s{SG}"); I(f"s_cmp_lg_u32 s44, {CL+2}"); I(f"s_cbranch_scc1 {l}")
            for c, _ in side_math(): c()
            ret(); a.L(l)
            for k in range(1, 6):
                l = a.label("SN")
                I(f"s_cmp_lg_u32 s41, {k}"); I(f"s_cbranch_scc1 {l}")
                touch(k); ret(); a.L(l)
            I(f"s_lshl_b32 s44, s{SF}, 2"); I(f"s_add_u32 s44, s44, {FY_OFF}")
            sv = self.save(); self.publish(44, 2); self.restore(sv)
            ret()
        def spf():
            I("s_add_u32 s41, s41, 1"); rarely("s_bitcmp1_b32 s40, s41", lambda: I(f"s_call_b64 s[76:77], {LSITE}"))
        spub = (spf, 12)
        def snap():
            I(f"s_mov_b32 s61, {FY_OFF}"); I(f"buffer_load_dwordx4 v[52:55], v{VL16}, s[{RWS}:{RWS+3}], s61 offen sc1")
        def side_check():
            lo = a.label("SCK"); lb = a.label("SCR")
            def test():
                I("v_and_b32 v52, v52, v53"); I("v_and_b32 v54, v54, v55"); I("v_and_b32 v52, v52, v54"); I("v_and_b32 v52, 2, v52"); I("v_cmp_ne_u32 vcc, 2, v52")
            test(); I(f"s_cbranch_vccnz {lo}"); a.L(lb)
            def spin():
                lp = a.label("SPL")
                I("s_mov_b32 s99, 20000"); a.L(lp)
                I("s_sleep 2"); I(f"buffer_load_dwordx4 v[52:55], v{VL16}, s[{RWS}:{RWS+3}], s61 offen sc1"); I("s_waitcnt vmcnt(0)")
                test(); I(f"s_cbranch_vccz {lb}")
                I("s_sub_u32 s99, s99, 1"); I("s_cmp_lg_u32 s99, 0"); I(f"s_cbranch_scc1 {lp}")
            ool.append((lo, lb, spin))
        m2 = lambda sb, ko: (lambda: rarely(f"s_cmp_eq_u32 s{SC2}, 0", lambda: (snap(), mask_body(sb, ko))))
        LEV = a.label("EVEN"); LODM = a.label("ODDM"); LTRANS = a.label("TRANS"); LP2 = a.label("P2"); LP2B = a.label("P2B"); LDRAIN = a.label("DRAIN")
        self.stamp(8)
        self.ring_n = 0
        R = [rd("k", 0, i) for i in range(8)] + [rd("k", 1, i) for i in range(8)]
        def qrd(i):
            I(f"ds_read_b128 {v(QF+4*i,4)}, v{TMP+1} offset:{1024*i}"); return lg.issue()
        for i in range(4): qrd(i); R[i][0]()
        for i in range(4, 8): tq = qrd(i)
        D = dma4("v") + dma4("k")
        fx = {g: [(R[4+g][0], 4)] for g in range(4)}
        put(fx, 3, [(lambda: lg.wait(tq), 4)])
        for F in range(8, 15): put(fx, last_use(F - 8) + 1, [(R[F][0], 4)])
        for n, d in enumerate(D): put(fx, 2*n, [d])
        sched(qk(0, R, 0, True), fx, [])
        m1(0, 0)()
        pre = init_max()
        fx = {0: [(R[15][0], 4)], 8: [op(f"v_xor_b32 v{VV}, 0x10000, v{VK}"), op(f"v_xor_b32 v{VK}, 0x4000, v{VK}")]}
        sched(qk(1, R, 8), fx, pre + sm_ops(0)[:SPL])
        R = mk_reads()
        head(R, vm4, False, post=[m1(1, 32)])
        svm = self.save()
        self.stamp(9)
        LOD = [a.label("ODD0"), a.label("ODD1")]
        I(f"s_cmp_eq_u32 s{SG}, 1"); I(f"s_cbranch_scc1 {LOD[1]}"); I(f"s_branch {LOD[0]}")
        vm0 = lambda: I("s_waitcnt vmcnt(0)")
        def loops(g):
            LEV = a.label("EVEN"); LP2 = a.label("P2")
            mm = (lambda sb, ko: m1(sb, ko)) if g else (lambda sb, ko: None)
            a.L(LEV)
            R = mk_reads(); head(R, vm4)
            mid(R, "k", [op(f"v_xor_b32 v{VK}, 0x4000, v{VK}")], mb=mm(0, 0), early=[spub], g=g)
            R = mk_reads(); head(R, vm4, post=[m1(1, 32)] if g else [])
            assert self.lg.issued - self.lg.done == svm[2] - svm[3]
            a.L(LOD[g])
            mid(R, "v", [op(f"v_xor_b32 v{VK}, 0xc000, v{VK}")], mb=mm(0, 64), endops=[op(f"s_sub_u32 s{SC1}, s{SC1}, 1")], early=[spub], g=g)
            I(f"s_cmp_lg_u32 s{SC1}, -1"); I(f"s_cbranch_scc1 {LEV}")
            self.stamp(14)
            if g:
                loadq(VQ); I("s_waitcnt lgkmcnt(0)"); I(f"v_xor_b32 v{VK}, 0x4000, v{VK}")
            R = mk_reads(); head(R, vm4, more=mask_ops(1, 96) if g else ())
            mid(R, "k", [op(f"v_xor_b32 v{VK}, 0x8000, v{VK}")], mb=m2(0, -1), trans=bool(g), early=[spub], g=g)
            self.stamp(15)
            I(f"s_cmp_eq_u32 s{SC2}, 0"); I(f"s_cbranch_scc1 {LDRAIN}")
            a.L(LP2)
            R = mk_reads(); head(R, vm08 if g else vm0)
            mid(R, "kv", [op(f"v_xor_b32 v{VK}, 0x8000, v{VK}")], mb=m2(0, -1), endops=[sta] if g else [],
                early=[spub] + ([(fin, 8)] if g else []) + [op(f"s_sub_u32 s{SC2}, s{SC2}, 1")], g=g)
            I(f"s_cmp_lg_u32 s{SC2}, 0"); I(f"s_cbranch_scc1 {LP2}")
        loops(1); I(f"s_branch {LDRAIN}")
        loops(0)
        a.L(LDRAIN)
        self.stamp(10)
        R2 = [rd("v", 0, i) for i in range(8)] + [rd("v", 1, i) for i in range(8)]
        rf = [(f, 4) for f, h in R2]
        ts, ts2, ts3 = self.tail_setup()
        tsa = [x for x in ts if x[1] == 4]; tsl = [x for x in ts if x[1] != 4]
        mk_ = mask_ops(1, -33)
        head(R2, lambda: (vm08(), side_check(), tsl[0][0](), tsl[1][0]()), post=[fin, sta[0]], pre=tsa[:8], more=tsa[8:16] + [tsl[2]] + mk_)
        ts = tsa[16:]
        if self.o.get("dst"): self.stamp(17)
        pre = []; E_ = lambda t: pre.append(op(t))
        E_(f"s_add_u32 s44, s{SWK}, {ML}"); E_(f"v_add_u32 v54, s44, v{VL16}")
        E_(f"s_lshl_b32 s46, s{SW}, 13"); E_(f"v_add_u32 v55, s46, v{VL16}")
        E_(f"s_sub_u32 s54, 15, s{SIDX}"); E_(f"s_lshl_b32 s54, s54, 2"); E_(f"s_add_u32 s54, s54, s{SR}"); E_("s_lshl_b32 s54, s54, 5"); E_(f"s_add_u32 s54, s54, s{SHEAD}")
        E_("s_lshl_b32 s54, s54, 13"); E_(f"s_lshl_b32 s44, s{SG}, 12"); E_("s_add_u32 s54, s54, s44"); E_(f"s_add_u32 s54, s54, {CTX_OFF}")
        def lsum():
            def wml():
                I(f"ds_write_b128 v54, {v(150,4)}"); lg.issue()
            return [op(f"v_mov_b32 v150, v{NM}"), op(f"v_mov_b32 v{LS+1}, v{LS+4}"), (wml, 4)]
        def osend(g, i):
            def f():
                I(f"ds_write_b128 v55, {v(O+32*(1-g)+4*i,4)} offset:{1024*i}"); lg.issue()
            return (f, 16)
        lj = a.label("MGJ"); LMG = [a.label("MG0"), a.label("MG1")]; LFB = a.label("FB1"); LSK = a.label("SKIP"); LS1 = a.label("SK1")
        for c, _ in ts: c()
        I(f"s_lshl_b32 s45, s{SG}, 1"); I(f"s_sub_u32 s45, s{SR}, s45"); I("s_cmp_lt_i32 s45, 1"); I(f"s_cbranch_scc1 {LSK}")
        svd = self.save(); rnd = self.ring_n
        WA_ = self.o.get("wa", 6); tsA, tsB = ts2[:WA_], ts2[WA_:]
        setup_ = pre + ts3; n8 = (len(setup_) + 17) // 18
        fx = {g: setup_[g*n8:(g+1)*n8] for g in range(18)}
        for n, x in enumerate(tsA): put(fx, 1 + n * 17 // max(1, len(tsA)), [x])
        for F in range(7, 15): put(fx, 2*(F - 7) + (2 if F > 7 else 0), [rf[F]])
        sched(pv(0, R2, 0), fx, sm_ops(1))
        check(1)
        rf[15][0]()
        if self.o.get("dst"): self.stamp(20)
        I(f"s_cmp_eq_u32 s{SG}, 1"); I(f"s_cbranch_scc1 {LFB}")
        sv2 = self.save(); PR = 64
        for g in (0, 1):
            if g: a.L(LFB); self.restore(sv2)
            own = O + 32*g; snd = O + 32*(1-g)
            dts = list(range(4*(1-g), 4*(1-g)+4)) + list(range(4*g, 4*g+4))
            fx = {10 + i: [osend(g, i)] for i in range(8)}
            put(fx, 8, lsum())
            for n, x in enumerate(tsB): put(fx, n * 10 // max(1, len(tsB)), [x])
            sched(pv(1, R2, 8, dts, True), fx, self.tail_valu())
            a.L(LMG[g])
            if self.o.get("dst"): self.stamp(18)
            I(f"v_xor_b32 v54, 0x1c00, v54"); I(f"v_xor_b32 v55, 0xe000, v55")
            I("s_waitcnt lgkmcnt(0)"); lg.mark_all_done(); self.barrier()
            if self.o.get("dst"): self.stamp(19)
            I(f"ds_read_b128 {v(96,4)}, v54"); t0 = lg.issue()
            tk = []
            for i in range(8):
                I(f"ds_read_b128 {v(PR+4*i,4)}, v55 offset:{1024*i}"); tk.append(lg.issue())
            lg.wait(t0)
            for q in range(2):
                I(f"v_min_f32 v100, v{150+q}, v{96+q}"); I(f"v_sub_f32 v101, v100, v{150+q}"); I(f"v_sub_f32 v102, v100, v{96+q}")
                I("v_exp_f32 v101, v101"); I("v_exp_f32 v102, v102")
                I(f"v_mul_f32 v103, v101, v{LS+q}"); I(f"v_fmac_f32 v103, v102, v{98+q}"); I("v_rcp_f32 v103, v103")
                b = 104 + 4*q
                I(f"v_mul_f32 v{b}, v101, v103"); I(f"v_mul_f32 v{b+1}, v101, v103"); I(f"v_mul_f32 v{b+2}, v102, v103"); I(f"v_mul_f32 v{b+3}, v102, v103")
            tw = self.tail_writes()
            for q in range(4):
                b = 104 + 4*(q & 1)
                for i in range(8*q, 8*q+8, 2): I(f"v_pk_mul_f32 {v(own+i,2)}, {v(own+i,2)}, {v(b,2)}")
                lg.wait(tk[2*q+1])
                if not self.o.get("twe"):
                    for c in tw[3*q:3*q+3]: c()
                for i in range(8*q, 8*q+8, 2): I(f"v_pk_fma_f32 {v(own+i,2)}, {v(PR+i,2)}, {v(b+2,2)}, {v(own+i,2)}")
                for i in range(4): I(f"v_cvt_pk_bf16_f32 v{snd+4*q+i}, v{own+8*q+2*i}, v{own+8*q+2*i+1}")
                I(f"buffer_store_dwordx4 {v(snd+4*q,4)}, v{VL16}, s[{RWS}:{RWS+3}], s54 offen offset:{coff(q)}{self.st}"); self.tctx = vm.issue()
            if self.o.get("twe"):
                for c in tw: c()
            if not g: I(f"s_branch {lj}")
        def skip_path():
            keep = self.save(); tctx = self.tctx; th = self.th; wt = dict(self.wtok)
            a.L(LSK); self.restore(svd); self.ring_n = rnd
            I("s_cmp_lt_i32 s45, 0"); I(f"s_cbranch_scc1 {LS1}")
            rf[7][0]()
            for f in pv(0, R2[:8], 0): f()
            a.L(LS1)
            for c, _ in setup_ + ts2 + lsum() + self.tail_valu(): c()
            l1 = a.label("SG1"); I(f"s_cmp_eq_u32 s{SG}, 1"); I(f"s_cbranch_scc1 {l1}")
            for g in (0, 1):
                if g: a.L(l1)
                for i in range(8): osend(g, i)[0]()
                I(f"s_branch {LMG[g]}")
            self.restore(keep); self.tctx = tctx; self.th = th; self.wtok = wt
        a.L(lj)
        I("s_setprio 0")
        self.stamp(4)
        def cold():
            skip_path()
            site_code()
            for (lo, lb, body) in ool:
                a.L(lo); body(); I(f"s_branch {lb}")
            for (lr, lb, sb, other) in rare:
                a.L(lr)
                I("s_nop 15")
                rowmax(sb)
                for q in range(2): I(f"v_add_f32 v{TMP+q}, {f2u(BIAS)}, v{TMP+q}"); I(f"v_max_f32 v{TMP+q}, 0, v{TMP+q}"); I(f"v_exp_f32 v{TMP+2+q}, -v{TMP+q}")
                for r in range(8): I(f"v_sub_f32 v{NM+r}, v{NM+r}, v{TMP+(r>>2)}")
                for r in range(16): I(f"v_sub_f32 v{S[sb]+r}, v{S[sb]+r}, v{TMP+(r>>3)}")
                if other:
                    for r in range(16): I(f"v_sub_f32 v{S[1-sb]+r}, v{S[1-sb]+r}, v{TMP+(r>>3)}")
                for r in range(64): I(f"v_mul_f32 v{O+r}, v{O+r}, v{TMP+2+((r>>3)&1)}")
                for r in range(8): I(f"v_mul_f32 v{LS+r}, v{LS+r}, v{TMP+2+(r>>2)}")
                for c, _ in sm_ops(sb): c()
                I("s_nop 1"); I(f"s_branch {lb}")
        self.attn_rare = cold

    HB = 65536; HC = 4416; XB = 136192; YB = 148480
    SC, SJ, SB, SCH, SHB_, SWO, SCX = 34, 35, 36, 37, 38, 39, 40
    WS_ = [16, 24, 32, 40, 176, 184, 48, 56] + list(range(80, 144, 8))
    def tail_setup(self):
        I = self.I; L = []; E = lambda t: L.append((lambda: I(t), 4))
        SC, SJ, SB, SCH, SHB_, SWO, SCX = self.SC, self.SJ, self.SB, self.SCH, self.SHB_, self.SWO, self.SCX
        self.wtok = {}; self.wslot = dict(enumerate(self.WS_))
        E(f"s_lshr_b32 s{SC}, s{SW}, 2"); E(f"s_and_b32 s{SJ}, s{SW}, 3")
        E(f"s_lshl_b32 s{SCH}, s{SF}, 1"); E(f"s_add_u32 s{SCH}, s{SCH}, s{SC}"); E(f"s_lshl_b32 s{SCH}, s{SCH}, 12")
        E(f"s_lshl_b32 s60, s{SJ}, 10"); E("v_add_u32 v50, s60, v6"); E("v_subrev_u32 v51, 16, v50")
        E(f"s_lshl_b32 s63, s{SW}, 18"); E(f"s_lshl_b32 s62, s{SF}, 5"); E("s_add_u32 s63, s63, s62"); E(f"s_add_u32 s63, s63, {KVT_OFF}")
        E("v_lshrrev_b32 v48, 1, v0"); E("v_and_b32 v158, 1, v0" if False else "v_and_b32 v3, 1, v0"); E("v_lshlrev_b32 v49, 13, v48"); E("v_lshl_add_u32 v49, v3, 4, v49")
        def ld(t):
            def f(): I(t); self.th = self.vm.issue()
            L.append((f, 16))
        ld(f"buffer_load_dwordx4 {v(160,4)}, v51, s[{RB}:{RB+3}], s{SCH} offen")
        ld(f"buffer_load_dwordx4 {v(164,4)}, v50, s[{RB}:{RB+3}], s{SCH} offen")
        ld(f"buffer_load_dwordx4 {v(168,4)}, v49, s[{RWS}:{RWS+3}], s63 offen{self.ld}")
        E(f"s_lshl_b32 s{SWO}, s57, 19"); E(f"s_lshl_b32 s60, s{SW}, 15"); E(f"s_add_u32 s{SWO}, s{SWO}, s60"); E(f"s_add_u32 s{SWO}, s{SWO}, {WOT_OFF}")
        E("s_and_b32 s60, s56, 1"); E("s_lshl_b32 s60, s60, 18"); E(f"s_add_u32 s{SWO}, s{SWO}, s60")
        TR_ = self.o.get("trot", 1)
        if TR_ == 0: E("s_mov_b32 s58, 0")
        elif TR_ == 1: E("s_mov_b32 s58, s57")
        else: E("s_and_b32 s58, s56, 6"); E("s_add_u32 s58, s58, s57")
        def w1(i, mt):
            if mt == 0 and i % 2 == 0: self.wadr(i)
            I(f"buffer_load_dwordx4 {v(self.WS_[i]+4*mt,4)}, v6, s[{RWS}:{RWS+3}], s59 offen offset:{(i&1)*2048+mt*1024}{self.ld}"); self.wtok[i] = self.vm.issue()
        L2 = [(lambda i=i, mt=mt: w1(i, mt), 16) for i in range(self.o.get("we", 6)) for mt in range(2)]
        L3 = []; L, Lx = L3, L
        E = lambda t: L3.append((lambda: I(t), 4))
        E(f"s_mul_i32 s{SB}, s{SC}, 6144"); E(f"s_add_u32 s{SB}, s{SB}, {self.XB}")
        E(f"s_mul_i32 s{SHB_}, s{SC}, {8*self.HC}"); E(f"s_add_u32 s{SHB_}, s{SHB_}, {self.HB}")
        E(f"s_xor_b32 s{SCX}, s56, 1"); E(f"s_lshl_b32 s{SCX}, s{SCX}, 19"); E(f"s_lshl_b32 s60, s{SW}, 14"); E(f"s_add_u32 s{SCX}, s{SCX}, s60"); E(f"s_add_u32 s{SCX}, s{SCX}, {CTX_OFF}")
        E("s_and_b32 s60, s56, 1"); E("s_lshl_b32 s60, s60, 17"); E(f"s_add_u32 s{SCX}, s{SCX}, s60")
        return Lx, L2, L3
    def wreg(self, i):
        return self.WS_[i % len(self.WS_)]
    def wload(self, i):
        I = self.I; r = self.wslot[i]
        I(f"s_add_u32 s61, s{self.SWO}, {i*2048}")
        for mt in range(2):
            I(f"buffer_load_dwordx4 {v(r+4*mt,4)}, v6, s[{RWS}:{RWS+3}], s61 offen offset:{mt*1024}{self.ld}"); self.wtok[i] = self.vm.issue()
    def wadr(self, i):
        I = self.I
        I(f"s_add_u32 s59, s58, {i >> 1}"); I("s_and_b32 s59, s59, 7"); I("s_lshl_b32 s59, s59, 12"); I(f"s_add_u32 s59, s59, s{self.SWO}")
    def tail_valu(self):
        I = self.I; HC = self.HC; L = []; E = lambda t: L.append((lambda: I(t), 4))
        SJ, SB, SHB_ = self.SJ, self.SB, self.SHB_
        Ee, Eo, Oe, Oo = 160, 113, 122, 131
        E(f"s_add_u32 s60, s{SHB_}, 64"); E("v_add_u32 v138, s60, v50")
        E("v_and_b32 v51, 3, v48"); E("v_mul_u32_u24 v139, 1536, v51"); E("v_lshrrev_b32 v53, 2, v48"); E("v_lshl_add_u32 v139, v53, 4, v139")
        E("v_and_b32 v53, 1, v0"); E("v_mul_u32_u24 v53, 6144, v53"); E(f"s_lshl_b32 s60, s{SW}, 7"); E(f"s_add_u32 s60, s60, {self.XB + 512}"); E("v_add3_u32 v139, v139, v53, s60")
        E("v_and_b32 v51, 3, v0")
        for r in range(2): E(f"v_mov_b64 {v(172+2*r,2)}, 0")
        E("v_bfe_u32 v140, v0, 2, 3"); E(f"v_mul_u32_u24 v140, {HC}, v140"); E("v_lshl_add_u32 v140, v51, 4, v140"); E(f"v_add_u32 v140, s{SHB_}, v140")
        E(f"s_mul_i32 s60, s{SJ}, 1536"); E(f"s_add_u32 s60, s60, s{SB}"); E("v_lshl_add_u32 v141, v0, 3, s60")
        L.append((lambda: self.vm.wait(self.th - 1), 4))
        for k in range(7): E(f"v_alignbit_b32 v{Oe+k}, v{Ee+k+1}, v{Ee+k}, 16")
        for k in range(1, 7): E(f"v_alignbit_b32 v{Oo+k}, v{Ee+k+1}, v{Ee+k}, 16")
        for k in range(1, 7): E(f"v_mov_b32 v{Eo+k}, v{Ee+k}")
        return L
    def tail_writes(self):
        I = self.I; lg = self.lg; HC = self.HC; L = []
        Ee, Eo, Oe, Oo = 160, 113, 122, 131
        def W(t, pre=None):
            def f():
                if pre: pre()
                I(t); lg.issue()
            L.append(f)
        for r in range(8):
            sft = 1 + r; k = sft >> 1
            base = ((Oe, Oo) if sft & 1 else (Ee, Eo))[k & 1]
            W(f"ds_write_b128 v138, {v(base+k,4)} offset:{r*HC}")
        W(f"ds_write_b128 v140, {v(172,4)}"); W(f"ds_write_b64 v141, {v(172,2)}")
        W(f"ds_write_b128 v139, {v(168,4)}", lambda: self.vm.wait(self.th))
        return L
    def tailp(self):
        a = self.a; I = self.I; vm = self.vm; lg = self.lg
        HB, HC, YB = self.HB, self.HC, self.YB
        SC, SJ, SB, SCH, SHB_, SWO, SCX = self.SC, self.SJ, self.SB, self.SCH, self.SHB_, self.SWO, self.SCX
        ACC = 192; FRS = [224, 240, 64]; RD_ = 224; OACC = 192; YT = self.XB
        VL16, VA, VB, T, VP, VPA, VO, GR, VW1 = 6, 4, 5, 12, 7, 8, 9, 10, 11
        WSL = self.WS_; CSL = [144, 152, 160, 168, 64, 72]
        assert len(WSL) == 16
        I(f"s_lshr_b32 s53, s56, 1"); I("s_lshl_b32 s53, s53, 10"); I("s_and_b32 s44, s56, 1"); I("s_lshl_b32 s44, s44, 9"); I("s_add_u32 s53, s53, s44")
        I(f"s_lshr_b32 s44, s{SW}, 1"); I("s_lshl_b32 s44, s44, 7"); I("s_add_u32 s53, s53, s44"); I(f"s_and_b32 s44, s{SW}, 1"); I("s_lshl_b32 s44, s44, 3")
        I("s_add_u32 s53, s53, s44"); I(f"s_add_u32 s53, s53, {FC_OFF}")
        I(f"v_and_b32 v{VPA}, 1, v0"); I(f"v_lshlrev_b32 v{VPA}, 2, v{VPA}")
        PUBN = self.o.get("pubn", 4)
        I(f"s_lshr_b32 s45, s{SHEAD}, 2"); I("s_lshl_b32 s45, s45, 7"); I(f"s_and_b32 s44, s{SHEAD}, 3"); I("s_lshl_b32 s44, s44, 2"); I("s_add_u32 s45, s45, s44")
        I(f"s_sub_u32 s44, 15, s{SIDX}"); I("s_lshl_b32 s44, s44, 10"); I("s_add_u32 s46, s44, s45"); I(f"s_add_u32 s46, s46, {FC_OFF}")
        I(f"s_lshl_b32 s44, s{SIDX}, 10"); I("s_add_u32 s47, s44, s45"); I(f"s_add_u32 s47, s47, {FC_OFF}")
        self.srd(RC, "out", 2*MB); self.srd(RD, "q", 2*MB)
        I(f"s_lshl_b32 s44, s{SF}, 2"); I(f"s_load_dword s55, s[{P['ssmD']}:{P['ssmD']+1}], s44")
        I(f"v_and_b32 v{T}, 15, v0"); I(f"v_lshrrev_b32 v{T+1}, 4, v0")
        I(f"v_and_b32 v{T+2}, 7, v0"); I(f"v_mul_u32_u24 v{VA}, {HC}, v{T+2}")
        I(f"v_bfe_u32 v{T+2}, v0, 3, 1"); I(f"v_sub_u32 v{T+2}, v{T+2}, v{T+1}"); I(f"v_lshl_add_u32 v{VA}, v{T+2}, 4, v{VA}")
        I(f"s_lshl_b32 s43, s{SJ}, 8"); I(f"s_add_u32 s43, s43, s{SHB_}"); I("s_add_u32 s43, s43, 64"); I(f"v_add_u32 v{VA}, s43, v{VA}")
        I(f"s_lshl_b32 s43, s{SJ}, 6"); I(f"s_sub_u32 s43, s{SB}, s43"); I(f"s_add_u32 s43, s43, {(32-3)*16}")
        I(f"v_lshl_add_u32 v{VB}, v{T}, 4, s43"); I(f"v_mul_u32_u24 v{T+2}, 1536, v{T+1}"); I(f"v_add_u32 v{VB}, v{VB}, v{T+2}")
        I(f"s_lshl_b32 s51, s{SW}, 13"); I(f"s_xor_b32 s52, s{SCX}, 0x80000")
        I("s_waitcnt lgkmcnt(0)"); lg.mark_all_done(); self.barrier()
        self.stamp(5)
        wtok = dict(self.wtok); ctok = {}; cslot = dict(enumerate(CSL))
        def wload(k):
            if k % 2 == 0: self.wadr(k)
            for mt in range(2):
                I(f"buffer_load_dwordx4 {v(WSL[k]+4*mt,4)}, v{VL16}, s[{RWS}:{RWS+3}], s59 offen offset:{(k&1)*2048+mt*1024}{self.ld}"); wtok[k] = vm.issue()
        def cload(i):
            I(f"s_add_u32 s62, s58, {i & 7}"); I("s_and_b32 s62, s62, 7"); I("s_lshl_b32 s62, s62, 11"); I(f"s_add_u32 s62, s62, s{52 if i >= 16 else SCX}")
            if i & 8: I("s_add_u32 s62, s62, 0x40000")
            for qt in range(2):
                I(f"buffer_load_dwordx4 {v(cslot[i]+4*qt,4)}, v{VL16}, s[{RWS}:{RWS+3}], s62 offen offset:{qt*1024}{self.ld}"); ctok[i] = vm.issue()
        wl = [k for k in range(16) if k not in wtok]
        BS = [224, 240]; AS = list(range(160, 176, 4)) + list(range(64, 80, 4)); NA = len(AS)
        seq = [(dd, m, bt) for dd in range(4) for (m, bt) in ((0, 0), (3, 0), (0, 1), (3, 1), (1, 0), (2, 0), (1, 1), (2, 1))]
        atok = {}; btok = {}
        def rda(n):
            if n >= len(seq): return
            dd, m, bt = seq[n]
            I(f"ds_read_b128 {v(AS[n % NA],4)}, v{VA} offset:{64*dd + 1024*m + 32*bt}"); atok[n] = lg.issue()
        def rdb(dd, n):
            if dd >= 4: return
            I(f"ds_read_b128 {v(BS[dd & 1]+4*n,4)}, v{VB} offset:{(3-dd)*16 + 256*n}"); btok[(dd, n)] = lg.issue()
        rda(0)
        for n in range(4): rdb(0, n)
        for n in range(1, NA - 1): rda(n)
        seen = set()
        for n, (dd, m, bt) in enumerate(seq):
            for nn in range(4 - m):
                lg.wait(max(atok[n], btok[(dd, nn)]))
                key = (m + nn, bt); d = v(ACC + 8*key[0] + 4*bt, 4)
                I(f"v_mfma_f32_16x16x32_bf16 {d}, {v(AS[n % NA],4)}, {v(BS[dd & 1]+4*nn,4)}, {d if key in seen else '0'}"); seen.add(key)
                if nn == 0:
                    rda(n + NA - 1)
                    if 1 <= (n & 7) <= 4: rdb(dd + 1, (n & 7) - 1)
            if n & 1:
                h_ = n >> 1
                if h_ == PUBN:
                    vm.wait(self.tctx); self.barrier(); self.publish(46); self.publish(47)
                if h_ >= self.o.get("wst", 2) and len(wl) > self.o.get("wkeep", 2): wload(wl.pop(0))
                if h_ == self.o.get("p1", 12): tc1 = self.poll_issue(VP, VPA, "s53")
        I(f"v_add_u32 v{T+2}, s51, v{VL16}")
        for i in range(8):
            I(f"ds_write_b128 v{T+2}, {v(ACC+4*i,4)} offset:{1024*i}"); lg.issue()
        while wl: wload(wl.pop(0))
        I(f"s_lshl_b32 s43, s{SC}, 15"); I(f"s_lshl_b32 s44, s{SJ}, 11"); I("s_add_u32 s43, s43, s44"); I(f"v_add_u32 v{T+2}, s43, v{VL16}")
        I(f"s_lshl_b32 s44, s{SJ}, 8"); I(f"s_add_u32 s44, s44, s{SB}"); I("s_add_u32 s44, s44, 520")
        I(f"v_lshl_add_u32 v{T+3}, v{T}, 4, s44"); I(f"v_and_b32 v{VA}, 1, v{T+1}"); I(f"v_lshlrev_b32 v{VA}, 3, v{VA}"); I(f"v_sub_u32 v{T+3}, v{T+3}, v{VA}")
        I(f"v_lshrrev_b32 v{VA}, 1, v{T+1}"); I(f"v_mul_u32_u24 v{VA}, 1536, v{VA}"); I(f"v_add_u32 v{T+3}, v{T+3}, v{VA}")
        I(f"v_lshlrev_b32 v{VB}, 6, v{T}"); I(f"v_lshl_add_u32 v{VB}, v{T+1}, 3, v{VB}")
        I(f"s_add_u32 s45, s{SWK}, {YB}"); I(f"v_add_u32 v{VB}, s45, v{VB}")
        I("s_lshl_b32 s43, s55, 16"); I("s_and_b32 s44, s55, 0xffff0000"); I(f"s_cmp_eq_u32 s{SC}, 0"); I("s_cselect_b32 s55, s43, s44")
        lg.wait(lg.issued); self.barrier()
        self.stamp(12)
        for p in range(4):
            for gq in range(2):
                I(f"ds_read_b128 {v(RD_+8*p+4*gq,4)}, v{T+2} offset:{8192*p+1024*gq}"); lg.issue()
        for gq in range(2):
            I(f"ds_read_b64 {v(ACC+2*gq,2)}, v{T+3} offset:{3072*gq}"); lg.issue()
        le = a.label("NE")
        vm.wait(tc1); I(f"v_and_b32 v{VP}, 1, v{VP}"); I(f"v_cmp_ne_u32 vcc, 1, v{VP}"); I("s_mov_b32 s50, 0"); I(f"s_cbranch_vccnz {le}")
        sv = self.save(); I("s_mov_b32 s50, 1")
        for i in range(len(CSL)): cload(i)
        self.restore(sv); a.L(le)
        lg.wait(lg.issued)
        for i in range(0, 8, 2):
            I(f"v_pk_add_f32 {v(RD_+i,2)}, {v(RD_+i,2)}, {v(RD_+8+i,2)}"); I(f"v_pk_add_f32 {v(RD_+16+i,2)}, {v(RD_+16+i,2)}, {v(RD_+24+i,2)}")
        for i in range(0, 8, 2): I(f"v_pk_add_f32 {v(RD_+i,2)}, {v(RD_+i,2)}, {v(RD_+16+i,2)}")
        for gq in range(2):
            for r in range(4):
                srcr = ACC + 2*gq + (1 - (r >> 1))
                I(f"v_lshlrev_b32 v{ACC+8}, 16, v{srcr}" if r & 1 else f"v_and_b32 v{ACC+8}, 0xffff0000, v{srcr}")
                I(f"v_fma_f32 v{RD_+4*gq+r}, v{ACC+8}, s55, v{RD_+4*gq+r}")
        for i in range(4): I(f"v_cvt_pk_bf16_f32 v{ACC+12+i}, v{RD_+2*i}, v{RD_+2*i+1}")
        for gq in range(2):
            I(f"ds_write_b64 v{VB}, {v(ACC+12+2*gq,2)} offset:{32*gq}"); lg.issue()
        I(f"v_and_b32 v{T+2}, 15, v0"); I(f"v_lshrrev_b32 v{T+1}, 4, v0"); I(f"v_lshlrev_b32 v{T+1}, 1, v{T+1}"); I(f"v_xor_b32 v{T+1}, v{T+1}, v{T+2}"); I(f"v_lshlrev_b32 v{T+1}, 4, v{T+1}")
        I(f"v_lshl_add_u32 v{VA}, v{T+2}, 8, v{T+1}"); I(f"v_add_u32 v{VA}, s51, v{VA}")
        I(f"s_lshr_b32 s48, s{SW}, 1"); I("s_lshl_b32 s48, s48, 4"); I(f"s_and_b32 s41, s{SW}, 1"); I("s_lshl_b32 s42, s41, 3")
        I(f"v_lshrrev_b32 v{T}, 4, v0"); I(f"v_lshl_add_u32 v{T+1}, v{T}, 1, s42"); I(f"v_xor_b32 v{T+1}, v{T+1}, v{T+2}"); I(f"v_lshlrev_b32 v{T+1}, 4, v{T+1}")
        I("s_and_b32 s43, s48, 16"); I(f"v_add_u32 v{T+3}, s43, v{T+2}"); I(f"v_lshl_add_u32 v{VW1}, v{T+3}, 8, v{T+1}")
        I("s_lshr_b32 s43, s48, 5"); I("s_lshl_b32 s43, s43, 16"); I(f"v_add_u32 v{VW1}, s43, v{VW1}")
        lg.wait(lg.issued); I(f"v_xor_b32 v{VB}, 16, v{VW1}"); self.barrier()
        ly = a.label("NY")
        I(f"s_cmp_lg_u32 s{SW}, 0"); I(f"s_cbranch_scc1 {ly}")
        I(f"v_add_u32 v{T}, {YB}, v{VL16}")
        for i in range(8): I(f"ds_read_b128 {v(RD_+4*i,4)}, v{T} offset:{1024*i}")
        I(f"s_lshl_b32 s44, s{SF}, 13"); I(f"s_add_u32 s44, s44, {YT_OFF}"); I("s_add_u32 s45, s44, 4096")
        I("s_waitcnt lgkmcnt(0)")
        for i in range(8): I(f"buffer_store_dwordx4 {v(RD_+4*i,4)}, v{VL16}, s[{RWS}:{RWS+3}], s{44+(i>>2)} offen offset:{1024*(i&3)}{self.st}")
        a.L(ly)
        ll = a.label("NL")
        I("s_cmp_eq_u32 s50, 1"); I(f"s_cbranch_scc1 {ll}")
        self.poll_check(VP, VPA, "s53", 1)
        for i in range(len(CSL)): cload(i)
        a.L(ll)
        self.stamp(6)
        def put_ops(st):
            L = []
            for mt in range(4):
                def f(mt=mt):
                    I(f"v_xor_b32 v{T+3}, {(8*(mt>>1)+(mt&1))*16 + 0x10000*st}, v{VA}")
                    for qt in range(2):
                        I(f"ds_write_b128 v{T+3}, {v(OACC+32*st+8*mt+4*qt,4)} offset:{4096*qt}"); lg.issue()
                L.append(f)
            return L
        def sum_partials(mid=None):
            tk = []
            for p in range(8):
                for hh in range(2):
                    I(f"ds_read_b128 {v(OACC+8*p+4*hh,4)}, v{(VW1, VB)[hh]} offset:{8192*p}"); lg.issue()
                tk.append(lg.issued)
                if p == 5 and mid: mid()
            for p in range(1, 8):
                lg.wait(tk[p])
                for e in range(0, 8, 2): I(f"v_pk_add_f32 {v(OACC+e,2)}, {v(OACC+e,2)}, {v(OACC+8*p+e,2)}")
        ymark = vm.issued; ypub = False; pm = {}; ppub = False; free = []; nc = len(CSL); XR = WSL[0]; PR_ = WSL[1]
        TS = [OACC + 32 + 8*n for n in range(4)]; ptk = {}
        def prd(p):
            r = TS[0] if p == 0 else TS[1 + (p - 1) % 3]
            for hh in range(2):
                I(f"ds_read_b128 {v(r+4*hh,4)}, v{(VW1, VB)[hh]} offset:{8192*p}"); ptk[p] = lg.issue()
        def padd(p):
            lg.wait(ptk[p]); r = TS[1 + (p - 1) % 3]
            for e in range(0, 8, 2): I(f"v_pk_add_f32 {v(TS[0]+e,2)}, {v(TS[0]+e,2)}, {v(r+e,2)}")
            if p + 3 < 8: prd(p + 3)
        def pst():
            I(f"s_lshl_b32 s44, s{SF}, 14"); I(f"s_lshl_b32 s45, s{SW}, 11"); I("s_add_u32 s54, s44, s45"); I(f"s_add_u32 s54, s54, {PP_OFF}")
            for hh in range(2):
                I(f"buffer_store_dwordx4 {v(TS[0]+4*hh,4)}, v{VL16}, s[{RWS}:{RWS+3}], s54 offen offset:{1024*hh}{self.st}"); pm["t"] = vm.issue()
        B1 = self.o.get("b1", 18); PS = self.o.get("ps", 21)
        for i2 in range(0, 32, 2):
            st = (i2 >> 3) & 1; J = i2 & 7; fill = []
            if i2 in (8, 24): fill = put_ops(0)
            if i2 == 16: fill = put_ops(1)
            if i2 == 24: self.barrier()
            if i2 == B1:
                lg.wait(lg.issued); self.barrier()
                for p in range(4): prd(p)
                fill = [lambda p=p: padd(p) for p in range(1, 8)]
                I(f"s_lshl_b32 s53, s57, 7"); I(f"s_lshl_b32 s42, s{SW}, 4"); I("s_add_u32 s53, s53, s42"); I(f"s_add_u32 s53, s53, {FY_OFF}")
                I(f"v_and_b32 v{VPA}, 3, v0"); I(f"v_lshlrev_b32 v{VPA}, 2, v{VPA}")
                tf = self.poll_issue(VP, VPA, "s53")
            if i2 == 26:
                I(f"v_and_b32 v{T+1}, 15, v0"); I(f"s_lshl_b32 s45, s56, 6"); I("s_add_u32 s45, s45, s48"); I(f"v_add_u32 v{T+1}, s45, v{T+1}")
                I(f"v_lshlrev_b32 v{T+2}, 2, v{T+1}"); I(f"s_mov_b32 s45, {G_OFF}")
                I(f"buffer_load_dword v{GR}, v{T+2}, s[{RWS}:{RWS+3}], s45 offen{self.ld}"); vm.issue()
                I(f"v_lshrrev_b32 v{T+2}, 4, v0"); I(f"v_lshlrev_b32 v{T+2}, 4, v{T+2}"); I(f"v_lshl_add_u32 v{VO}, v{T+1}, 10, v{T+2}")
                I("s_lshl_b32 s49, s41, 6"); I(f"s_lshl_b32 s45, s57, 7"); I("s_add_u32 s49, s49, s45")
                I(f"buffer_load_dwordx4 {v(XR,4)}, v{VO}, s[{RD}:{RD+3}], s49 offen"); vm.issue()
                vm.wait(tf); self.poll_check(VP, VPA, "s53", 1)
                I(f"v_lshrrev_b32 v{T}, 3, v0"); I(f"v_and_b32 v{T+1}, 7, v0"); I(f"v_lshlrev_b32 v{T+1}, 4, v{T+1}")
                I(f"v_lshl_add_u32 v{T}, v{T}, 12, v{T+1}")
                I(f"s_add_u32 m0, s{SWK}, {YT}")
                I(f"s_lshl_b32 s44, s57, 18"); I(f"s_lshl_b32 s45, s{SW}, 15"); I("s_add_u32 s44, s44, s45")
                I(f"s_lshl_b32 s45, s56, 7"); I("s_add_u32 s44, s44, s45"); I(f"s_add_u32 s44, s44, {YT_OFF}")
                I(f"buffer_load_dwordx4 v{T}, s[{RWS}:{RWS+3}], s44 offen{self.ld} lds"); vm.issue()
            vm.wait(max(ctok[i2+1], wtok[2*J+3]))
            if not ypub and vm.done > ymark:
                ypub = True; I(f"s_lshl_b32 s44, s{SF}, 2"); I(f"s_add_u32 s44, s44, {FY_OFF}"); self.publish(44, 3)
            if pm and not ppub and vm.done >= pm["t"]:
                ppub = True
                I(f"s_lshl_b32 s44, s{SF}, 7"); I(f"s_lshl_b32 s45, s{SW}, 2"); I("s_add_u32 s44, s44, s45"); I(f"s_add_u32 s44, s44, {FP_OFF}")
                I("v_mov_b32 v2, 1"); I("v_mov_b32 v3, 0"); I(f"buffer_store_dword v2, v3, s[{RWS}:{RWS+3}], s44 offen sc1"); vm.issue()
            if i2 == 30:
                I(f"s_xor_b32 s53, s{SF}, 32"); I("s_lshl_b32 s53, s53, 7"); I(f"s_lshl_b32 s42, s{SW}, 2"); I("s_add_u32 s53, s53, s42"); I(f"s_add_u32 s53, s53, {FP_OFF}")
                I(f"v_mov_b32 v{VPA}, 0")
            M = []
            for mt in range(4):
                for qt in range(2):
                    for u in range(2):
                        d = v(OACC + 32*st + 8*mt + 4*qt, 4)
                        M.append(lambda d=d, mt=mt, qt=qt, u=u: I(f"v_mfma_f32_16x16x32_bf16 {d}, {v(WSL[2*(J+u) + (mt >> 1)]+4*(mt & 1),4)}, {v(cslot[i2+u]+4*qt,4)}, {'0' if J + u == 0 else d}"))
            self.stream(M, [(1, 16, fill)] if fill else [])
            free += [cslot[i2], cslot[i2+1]]
            while free and nc < 32:
                cslot[nc] = free.pop(0); cload(nc); nc += 1
            if i2 + 1 == PS or i2 == PS: pst()
        assert ypub and ppub
        self.stamp(7)
        tp = self.poll_issue(VP, VPA, "s53")
        for f in put_ops(1): f()
        vm.wait(tp); self.poll_check(VP, VPA, "s53", 1)
        if self.o.get("ostamp"): self.stamp(20)
        I("s_xor_b32 s54, s54, 0x80000")
        for hh in range(2):
            I(f"buffer_load_dwordx4 {v(PR_+4*hh,4)}, v{VL16}, s[{RWS}:{RWS+3}], s54 offen offset:{1024*hh}{self.ld}"); tpp = vm.issue()
        I(f"v_lshrrev_b32 v{T}, 4, v0"); I("s_lshl_b32 s42, s41, 5"); I(f"v_lshl_add_u32 v{T}, v{T}, 3, s42"); I(f"v_bfe_u32 v{T+1}, v0, 2, 2")
        I(f"v_add_u32 v{T}, v{T}, v{T+1}"); I(f"v_lshlrev_b32 v{T}, 7, v{T}"); I(f"v_and_b32 v{T+1}, 3, v0")
        I(f"v_lshl_add_u32 v{T}, v{T+1}, 3, v{T}"); I("s_lshl_b32 s42, s48, 1"); I(f"s_add_u32 s42, s42, {YT}"); I(f"v_add_u32 v{T}, s42, v{T}")
        lg.wait(lg.issued); self.barrier()
        I(f"ds_read_b64_tr_b16 {v(100,2)}, v{T}"); lg.issue()
        I(f"ds_read_b64_tr_b16 {v(102,2)}, v{T} offset:512"); ty2 = lg.issue()
        def mix():
            lg.wait(ty2)
            for e in range(8):
                if e & 1: I(f"v_and_b32 v104, 0xffff0000, v{XR+(e>>1)}"); I(f"v_and_b32 v105, 0xffff0000, v{100+(e>>1)}")
                else: I(f"v_lshlrev_b32 v104, 16, v{XR+(e>>1)}"); I(f"v_lshlrev_b32 v105, 16, v{100+(e>>1)}")
                I(f"v_mul_f32 v{112+e}, v104, v105"); I(f"v_mul_f32 v{112+e}, v{112+e}, v{GR}")
            I(f"v_sub_f32 v{GR}, 1.0, v{GR}")
        sum_partials(mix)
        vm.wait(tpp)
        for e in range(0, 8, 2): I(f"v_pk_add_f32 {v(OACC+e,2)}, {v(OACC+e,2)}, {v(PR_+e,2)}")
        for e in range(8): I(f"v_fmac_f32 v{112+e}, v{OACC+4*(e&1)+(e>>1)}, v{GR}")
        for e in range(4): I(f"v_cvt_pk_bf16_f32 v{108+e}, v{112+2*e}, v{112+2*e+1}")
        I(f"buffer_store_dwordx4 {v(108,4)}, v{VO}, s[{RC}:{RC+3}], s49 offen sc1"); vm.issue()
        self.stamp(16)
        if self.o.get("echo"):
            lp = a.label("EC")
            I("s_sub_u32 s100, s100, s96")
            if self.o.get("cyc"): I("s_lshr_b32 s100, s100, 4")
            I("s_memrealtime s[96:97]"); I("s_waitcnt lgkmcnt(0)")
            a.L(lp)
            I("s_memrealtime s[98:99]"); I("s_waitcnt lgkmcnt(0)"); I("s_sub_u32 s98, s98, s96"); I("s_cmp_lt_u32 s98, s100"); I(f"s_cbranch_scc1 {lp}")
        if self.o.get("dbgout") is not None:
            l = a.label("DB")
            I(f"s_cmp_lg_u32 s2, {self.o['dbgout']}"); I(f"s_cbranch_scc1 {l}"); I(f"s_cmp_lg_u32 s{SW}, 0"); I(f"s_cbranch_scc1 {l}")
            I("s_waitcnt vmcnt(0)")
            order = [0, 1, 2, 3, 8, 10, 11, 4, 5, 12, 6, 7, 16]
            I("v_mov_b32 v20, 0")
            for j, i in enumerate(order):
                I(f"s_mov_b32 s44, {4*i}"); I(f"v_writelane_b32 v20, s44, {j}")
            I(f"s_lshl_b32 s44, s2, 11"); I(f"s_add_u32 s44, s44, {STAMP_OFF}")
            I(f"buffer_load_dword v21, v20, s[{RWS}:{RWS+3}], s44 offen sc1"); I("s_waitcnt vmcnt(0)")
            I("v_readfirstlane_b32 s45, v21"); I("v_subrev_u32 v21, s45, v21")
            self.srd(RDBG, "dbg", 64); I("v_lshlrev_b32 v22, 2, v0")
            I(f"buffer_store_dword v21, v22, s[{RDBG}:{RDBG+3}], 0 offen")
            a.L(l)

def build(opts):
    g = G(opts); k = NAME + "_kernel"
    g.begin(k); g.a.T("; MARK p"); g.proj(); g.a.T("; MARK a"); g.attn(); g.a.T("; MARK t"); g.tailp(); g.end(); g.a.T("; MARK a"); g.attn_rare(); g.a.T("; MARK t"); g.a.L("CODE_END"); g.a.I("s_endpgm")
    n = g.a.fix_hazards()
    txt = "; @launch grid=(256,1,1) block=(512,1,1) lds=163840\n"
    txt += '.amdgcn_target "amdgcn-amd-amdhsa--gfx950"\n.text\n' + g.a.text()
    txt += f""".section .rodata,"a"
.p2align 6
.amdhsa_kernel {k}
  .amdhsa_next_free_vgpr 256
  .amdhsa_next_free_sgpr 102
  .amdhsa_accum_offset 256
  .amdhsa_group_segment_fixed_size 0
  .amdhsa_kernarg_size 128
  .amdhsa_user_sgpr_count 2
  .amdhsa_user_sgpr_kernarg_segment_ptr 1
  .amdhsa_system_sgpr_workgroup_id_x 1
.end_amdhsa_kernel
"""
    print(f"instructions {sum(1 for it in g.a.items if it[0] == 'i')}, nops inserted {n}", file=sys.stderr)
    return txt

if __name__ == "__main__":
    opts = {}
    for x in sys.argv[2:]:
        if "=" in x: k_, v_ = x.split("="); opts[k_] = int(v_)
        else: opts[x] = True
    open(sys.argv[1], "w").write(build(opts))
```

```python
import sys, math, struct
sys.path.insert(0, "gen")
from asmlib import *

NAME = "gated_mix__ssm_conv_h3__compressed_kv_cla__prompt"
MB = 1 << 20
KV_OFF, Q_OFF, CTX_OFF, KVT_OFF, YT_OFF, G_OFF = 0, 32*MB, 48*MB, 64*MB, 66*MB, 68*MB
XC_OFF = 40*MB
PP_OFF = 40*MB
WOT_OFF = 32*MB
FLG_OFF = 68*MB + 65536
FK_OFF, FY_OFF, FC_OFF, FP_OFF = FLG_OFF, FLG_OFF + 4096, FLG_OFF + 8192, FLG_OFF + 32768
STAMP_OFF = 69*MB
WS_SIZE = 70*MB
P = dict(q=64, k=66, v=68, shift=70, ssmk=72, ssmD=74, bx=76, ckv=78, wq=80, wuk=82, wuv=84, wo=86, gate=88, out=90, dbg=92, ws=94)
SW, SHEAD, SIDX, SWK, SF = 3, 4, 5, 6, 7
RA, RB, RC, RWS, RD, RE, RT, RDBG = 8, 12, 16, 20, 24, 28, 56, 60
MFMA = "v_mfma_f32_32x32x16_bf16"
LOG2E = 1.4426950408889634
F_KV, F_CA, F_CB, F_Y = 1, 2, 4, 8
def f2u(x): return "0x%08x" % struct.unpack("<I", struct.pack("<f", x))[0]
def rep4(b): return b * 0x01010101

class G:
    def __init__(self, opts):
        self.a = Asm(); self.o = opts
        self.GSH, self.FSH = (8, 10) if opts.get("lin") else (11, 8)
        self.vm = Cnt(self.a, "vmcnt", 63); self.lg = Cnt(self.a, "lgkmcnt", 15)
        self.st = "" if opts.get("plainst") else (" sc1 nt" if opts.get("ntst") else " sc1"); self.ld = "" if opts.get("plainld") else " sc1"
    def I(self, t): self.a.I(t)
    def srd(self, r, ptr, nbytes):
        I = self.I
        I(f"s_mov_b32 s{r}, s{P[ptr]}"); I(f"s_mov_b32 s{r+1}, s{P[ptr]+1}")
        I(f"s_mov_b32 s{r+2}, {nbytes}"); I(f"s_mov_b32 s{r+3}, 0x00020000")
    def save(self): return (self.vm.issued, self.vm.done, self.lg.issued, self.lg.done)
    def restore(self, s_): self.vm.issued, self.vm.done, self.lg.issued, self.lg.done = s_
    def stream(self, mf, fills):
        n = len(mf); slots = [[] for _ in range(n + 1)]
        for (s0, e0, cl) in fills:
            m = e0 - s0
            for j, c in enumerate(cl): slots[s0 + 1 + (j * m) // len(cl)].append(c)
        for c in slots[0]: c()
        for i in range(n):
            mf[i]()
            for c in slots[i+1]: c()
    def stamp(self, i, dyn=None):
        if self.o.get("echo") == i:
            self.I("s_memtime s[100:101]" if self.o.get("cyc") else "s_memrealtime s[100:101]"); self.I("s_waitcnt lgkmcnt(0)")
        if not self.o.get("stamp"): return
        I = self.I
        I("s_memrealtime s[96:97]"); I("s_memtime s[100:101]")
        I("s_lshl_b32 s98, s2, 3"); I(f"s_add_u32 s98, s98, s{SW}"); I("s_lshl_b32 s98, s98, 8")
        I(f"s_add_u32 s98, s98, {STAMP_OFF + 4*i}")
        if dyn is not None:
            I(f"s_lshl_b32 s99, s{dyn}, 4"); I("s_add_u32 s98, s98, s99")
        I("s_waitcnt lgkmcnt(0)")
        I("v_mov_b32 v2, s96"); I("v_mov_b32 v3, 0")
        I(f"buffer_store_dword v2, v3, s[{RWS}:{RWS+3}], s98 offen")
        I("v_mov_b32 v2, s100")
        I(f"buffer_store_dword v2, v3, s[{RWS}:{RWS+3}], s98 offen offset:128")
    OOB = 0x40000000
    def publish(self, soff, val=1, srd=RWS, byte=False, idx=None):
        I = self.I
        self.oob_sel()
        if idx is not None: I(f"s_and_b32 s98, s{SIDX}, 3"); I(f"s_cmp_eq_u32 s98, {idx}"); I(f"s_cselect_b32 s99, s99, {self.OOB}")
        I(f"v_mov_b32 v2, {val}"); I("v_mov_b32 v3, s99")
        I(f"buffer_store_{'byte' if byte else 'dword'} v2, v3, s[{srd}:{srd+3}], s{soff} offen sc1"); self.vm.issue()
    def oob_sel(self):
        self.I(f"s_cmp_eq_u32 s{SW}, 0"); self.I(f"s_cselect_b32 s99, 0, {self.OOB}")
    def poll_issue(self, vd, vaddr, soff, srd=RWS):
        self.I(f"buffer_load_dword v{vd}, v{vaddr}, s[{srd}:{srd+3}], {soff} offen sc1"); return self.vm.issue()
    def poll_check(self, vd, vaddr, soff, want, srd=RWS):
        a = self.a; I = self.I
        l = a.label("PCK"); lp = a.label("POLL")
        I(f"s_mov_b32 s98, {want}"); I("s_mov_b32 s99, 20000")
        a.L(lp)
        I(f"v_and_b32 v{vd}, s98, v{vd}"); I(f"v_cmp_ne_u32 vcc, s98, v{vd}"); I(f"s_cbranch_vccz {l}")
        I("s_sleep 2")
        I(f"buffer_load_dword v{vd}, v{vaddr}, s[{srd}:{srd+3}], {soff} offen sc1")
        I("s_sub_u32 s99, s99, 1"); I("s_cmp_lg_u32 s99, 0"); I("s_waitcnt vmcnt(0)"); I(f"s_cbranch_scc1 {lp}")
        a.L(l)
    def phys(self, d, s_, t, E=None):
        I = E or self.I; p = self.o.get("hperm", 0)
        if p == 0: I(f"s_mov_b32 s{d}, s{s_}")
        elif p == 1: I(f"s_and_b32 s{t}, s{s_}, 3"); I(f"s_lshl_b32 s{t}, s{t}, 3"); I(f"s_lshr_b32 s{d}, s{s_}, 2"); I(f"s_or_b32 s{d}, s{d}, s{t}")
        elif p >= 32:
            I(f"s_lshr_b32 s{t}, s{s_}, 3"); I(f"s_add_u32 s{t}, s{t}, {p - 32}"); I(f"s_and_b32 s{t}, s{t}, 3")
            I(f"s_and_b32 s{d}, s{s_}, 7"); I(f"s_lshl_b32 s{d}, s{d}, 2"); I(f"s_or_b32 s{d}, s{d}, s{t}")
        else: I(f"s_mul_i32 s{t}, s{s_}, {p}"); I(f"s_and_b32 s{d}, s{t}, 31")
    def barrier(self): self.I("s_barrier")
    def sync_all(self):
        self.I("s_waitcnt vmcnt(0) lgkmcnt(0)"); self.vm.mark_all_done(); self.lg.mark_all_done(); self.barrier()

    def begin(self, kname):
        a = self.a; I = self.I
        a.T(f".globl {kname}\n.p2align 8\n.type {kname},@function"); a.L(kname)
        self.endl = a.label("END")
        if self.o.get("stamp"): I("s_memrealtime s[30:31]")
        if self.o.get("echo"): I("s_memtime s[96:97]" if self.o.get("cyc") else "s_memrealtime s[96:97]")
        I("s_load_dwordx16 s[64:79], s[0:1], 0"); I("s_load_dwordx16 s[80:95], s[0:1], 64")
        I("s_cmp_ge_u32 s2, 256"); I(f"s_cbranch_scc1 {self.endl}")
        I("v_lshrrev_b32 v1, 6, v0"); I("v_and_b32 v0, 63, v0"); I(f"v_readfirstlane_b32 s{SW}, v1")
        I("s_and_b32 s7, s2, 7"); I("s_lshl_b32 s7, s7, 2")
        I(f"s_lshr_b32 s{SIDX}, s2, 3"); I(f"s_lshr_b32 s{SHEAD}, s{SIDX}, 3"); I(f"s_add_u32 s{SHEAD}, s{SHEAD}, s7")
        I(f"s_and_b32 s{SIDX}, s{SIDX}, 7"); I(f"s_lshl_b32 s{SWK}, s{SW}, 10")
        I(f"s_lshl_b32 s{SF}, s{SHEAD}, 3"); I(f"s_add_u32 s{SF}, s{SF}, s{SIDX}")
    def end(self):
        self.a.L(self.endl); self.I("s_endpgm")

    def proj(self):
        a = self.a; I = self.I; vm = self.vm; lg = self.lg
        QA_LDS = 65536
        ACC = {"K": 64, "V": 128, "Q": 64}
        FX = [16, 24]; FW = [192, 32]
        VWA = 4; VSK, VSV, VOX, VOW, VST = 8, 9, 10, 11, 12; VXA = 224; T = 232
        NB = 0; XC = self.o.get("xc", 0)
        ST = [("KV", c) for c in range(NB)] + [("K", c) for c in range(NB, 8)] + [("V", c) for c in range(7, NB - 1, -1)] + [("Q", c) for c in range(8)]
        NS = len(ST); TK = 7; TV = NS - 9; TQ = NS - 8
        I("v_lshrrev_b32 v13, 3, v0"); I(f"s_lshl_b32 s40, s{SW}, 3"); I("v_add_u32 v13, s40, v13"); I("v_lshlrev_b32 v13, 10, v13")
        I(f"s_lshr_b32 s41, s{SW}, 1"); I(f"s_xor_b32 s40, s41, s{SW}"); I("s_and_b32 s40, s40, 1"); I("s_lshl_b32 s40, s40, 2")
        I("v_lshrrev_b32 v14, 4, v0"); I("v_add_u32 v15, s40, v14")
        I("v_and_b32 v3, 7, v0"); I("v_xor_b32 v15, v15, v3"); I(f"v_lshl_add_u32 v{VOX}, v15, 4, v13")
        I(f"s_lshl_b32 s40, s{SW}, 2"); I("v_add_u32 v13, s40, v14"); I("v_lshlrev_b32 v13, 13, v13")
        I("s_and_b32 s41, s41, 1"); I("s_lshl_b32 s41, s41, 3"); I("v_lshl_add_u32 v15, v14, 1, s41"); I("v_and_b32 v3, 15, v0"); I("v_xor_b32 v15, v15, v3")
        I("v_lshl_add_u32 v13, v15, 4, v13"); self.phys(40, SHEAD, 41); I("s_lshl_b32 s40, s40, 8"); I(f"v_add_u32 v{VOW}, s40, v13")
        I(f"v_lshlrev_b32 v{VST}, 4, v0")
        I(f"s_lshl_b32 s44, s{SIDX}, 18")
        for i in range(1, 4): I(f"s_add_u32 s{44+i}, s44, {65536*i}")
        ROT = self.o.get("rot", 2)
        if ROT == 0: I("s_mov_b32 s33, 0")
        elif ROT == 1: I(f"s_mov_b32 s33, s{SIDX}")
        elif ROT == 2: I(f"s_lshr_b32 s33, s{SHEAD}, 2"); I(f"s_add_u32 s33, s33, s{SIDX}")
        elif ROT == 3: I(f"s_lshr_b32 s33, s{SHEAD}, 2"); I(f"s_add_u32 s33, s33, s{SIDX}"); I(f"s_lshl_b32 s34, s{SHEAD}, 1"); I("s_add_u32 s33, s33, s34")
        elif ROT == 4: I(f"s_lshr_b32 s33, s{SHEAD}, 2")
        if self.o.get("rotq"): I(f"s_lshl_b32 s32, s{SHEAD}, 1"); I("s_add_u32 s32, s32, s33")
        else: I("s_mov_b32 s32, s33")
        I("s_waitcnt lgkmcnt(0)")
        if self.o.get("stamp"): I("s_memrealtime s[28:29]")
        self.srd(RA, "ckv", 2*MB); self.srd(RB, "wuk", 4*MB); self.srd(RC, "wuv", 4*MB)
        def xbase(t):
            k, c = ST[t]
            return (32768, 131072, 0)[((16 + c) if k == "Q" else (15 - c + NB)) % 3]
        units = [(t, m) for t in range(NS) for m in ST[t][0]]
        uidx = {u: i for i, u in enumerate(units)}
        def wbase(t, m): return 65536 + (uidx[(t, m)] % 4)*16384
        items = []
        lastx = {}
        for t in range(NS):
            k, c = ST[t]
            for m in k:
                u = uidx[(t, m)]
                def w(i, t=t, m=m, c=c):
                    if i == 0: I(f"s_add_u32 s34, s{32 if m == 'Q' else 33}, {c}"); I("s_and_b32 s34, s34, 7"); I("s_lshl_b32 s34, s34, 19")
                    I(f"s_add_u32 m0, s{SWK}, {wbase(t, m) + i*8192}"); I(f"s_add_u32 s41, s34, {i*262144}")
                    r = {"K": RB, "V": RC, "Q": RE}[m]
                    I(f"buffer_load_dwordx4 v{VOW}, s[{r}:{r+3}], s41 offen lds"); dtok[t] = vm.issue()
                items.append((t, units[u-4][0] if u >= 4 else -1, [lambda i=i, w=w: w(i) for i in range(2)]))
            key = ("Q" if k == "Q" else "C", c); prev = lastx.get(xbase(t))
            if prev is None or prev[1] != key:
                def x(i, t=t, k=k, c=c):
                    if i == 0: I(f"s_add_u32 s35, s{32 if k == 'Q' else 33}, {c}"); I("s_and_b32 s35, s35, 7"); I("s_lshl_b32 s35, s35, 7")
                    I(f"s_add_u32 m0, s{SWK}, {xbase(t) + i*8192}"); I(f"s_add_u32 s41, s{(48 if k == 'Q' else 44)+i}, s35")
                    r = (RWS if XC else RD) if k == "Q" else RA
                    I(f"buffer_load_dwordx4 v{VOX}, s[{r}:{r+3}], s41 offen{self.ld if (XC and k == 'Q') else ''} lds"); dtok[t] = vm.issue()
                items.append((t, prev[0] if prev else -1, [lambda i=i, x=x: x(i) for i in range(4)]))
            lastx[xbase(t)] = (t, key)
        dtok = {}
        def take(done, upto=99):
            out = []
            for it in list(items):
                if it[1] <= done and it[0] <= upto: out += it[2]; items.remove(it)
            return out
        for f in take(-1, 0): f()
        self.srd(RWS, "ws", WS_SIZE); self.srd(RDBG, "dbg", 256)
        if self.o.get("wsoff"): I(f"s_add_u32 s{RWS}, s{RWS}, {self.o['wsoff']*MB}"); I(f"s_addc_u32 s{RWS+1}, s{RWS+1}, 0")
        self.stamp(31)
        if self.o.get("stamp"):
            I("v_mov_b32 v2, s30"); I("s_sub_u32 s98, s98, 124"); I(f"buffer_store_dword v2, v3, s[{RWS}:{RWS+3}], s98 offen")
            I("v_mov_b32 v2, s28"); I(f"buffer_store_dword v2, v3, s[{RWS}:{RWS+3}], s98 offen offset:120")
        I(f"s_lshl_b32 s48, s{SIDX}, 17"); I("s_add_u32 s49, s48, 65536")
        I(f"s_sub_u32 s50, 15, s{SIDX}"); I("s_lshl_b32 s50, s50, 17"); I("s_add_u32 s51, s50, 65536")
        if XC:
            for i in range(4): I(f"s_add_u32 s{48+i}, s{48+i}, {XC_OFF}")
        I(f"s_and_b32 s42, s{SW}, 3"); I("s_lshl_b32 s42, s42, 6"); I(f"s_lshr_b32 s43, s{SW}, 2"); I("s_lshl_b32 s43, s43, 1")
        I("v_and_b32 v13, 15, v0"); I("v_lshrrev_b32 v15, 4, v0")
        I("v_lshrrev_b32 v14, 1, v13"); I("v_xor_b32 v14, v14, v15"); I("v_lshlrev_b32 v14, 4, v14")
        I("v_add_u32 v3, s42, v13"); I(f"v_lshl_add_u32 v{VXA}, v3, 7, v14")
        I("v_and_b32 v2, 8, v13"); I("v_add_u32 v3, v3, v2"); I(f"v_lshl_add_u32 v{VXA+4}, v3, 7, v14")
        for pt in range(2):
            b = VXA + 4*pt
            I(f"v_xor_b32 v{b+1}, 64, v{b}"); I(f"v_add_u32 v{b+2}, 0x20000, v{b}"); I(f"v_add_u32 v{b+3}, 0x20000, v{b+1}")
        I("v_lshlrev_b32 v3, 4, v13"); I("v_and_b32 v2, 1, v15"); I("v_lshl_add_u32 v3, v2, 9, v3"); I("v_lshrrev_b32 v14, 1, v15")
        I("v_lshlrev_b32 v3, 4, v13"); I(f"v_lshl_add_u32 v{VSK}, v15, {self.GSH}, v3")
        I("v_bfe_u32 v13, v0, 2, 2"); I("v_lshl_add_u32 v14, v15, 3, v13"); I("v_lshlrev_b32 v14, 8, v14")
        I("v_and_b32 v3, 3, v0"); I("v_lshl_add_u32 v14, v3, 3, v14"); I("v_add_u32 v14, 0x10000, v14")
        I("v_lshl_add_u32 v13, v2, 2, v13"); I("s_lshl_b32 s40, s43, 1"); I("v_xor_b32 v13, s40, v13"); I(f"v_lshl_add_u32 v{VWA}, v13, 5, v14")
        for dt in range(1, 4): I(f"v_xor_b32 v{VWA+dt}, {dt << 5}, v{VWA}")
        I(f"s_lshl_b32 s54, s{SHEAD}, 4"); I(f"s_lshl_b32 s55, s{SIDX}, 1"); I("s_add_u32 s54, s54, s55")
        I(f"s_bfe_u32 s55, s{SW}, 0x10001"); I("s_add_u32 s54, s54, s55"); I("s_lshl_b32 s54, s54, 16")
        I(f"s_and_b32 s55, s{SW}, 1"); I("s_lshl_b32 s55, s55, 14"); I("s_add_u32 s54, s54, s55")
        I(f"s_lshl_b32 s55, s43, {self.FSH+1}"); I("s_add_u32 s52, s54, s55"); I("s_add_u32 s52, s52, 0x8000")
        I(f"s_lshl_b32 s55, s43, {self.FSH}"); I("s_add_u32 s54, s54, s55")
        XG = T; GW = T + 4; hl = {}
        def gate_loads():
            L = []
            def E(t): L.append(lambda: I(t))
            def V(t):
                def f(): I(t); hl["t"] = vm.issue()
                L.append(f)
            E(f"s_lshl_b32 s40, s{SHEAD}, 7"); E(f"s_lshl_b32 s39, s{SIDX}, 2"); E("s_add_u32 s40, s40, s39"); E(f"s_add_u32 s40, s40, {FK_OFF}")
            E(f"s_lshl_b32 s39, s{SF}, 7"); E(f"s_add_u32 s39, s39, {FP_OFF}"); E("v_and_b32 v13, 7, v0"); E("v_lshl_add_u32 v13, v13, 2, s39")
            E("v_writelane_b32 v13, s40, 0")
            E(f"s_lshr_b32 s39, s{SHEAD}, 2"); E("s_lshl_b32 s39, s39, 7"); E(f"s_and_b32 s40, s{SHEAD}, 3"); E("s_lshl_b32 s40, s40, 2"); E("s_add_u32 s39, s39, s40")
            E(f"s_lshl_b32 s40, s{SIDX}, 10"); E("s_add_u32 s40, s40, s39"); E(f"s_add_u32 s40, s40, {FC_OFF}")
            E("v_writelane_b32 v13, s40, 1")
            E(f"s_sub_u32 s40, 15, s{SIDX}"); E("s_lshl_b32 s40, s40, 10"); E("s_add_u32 s40, s40, s39"); E(f"s_add_u32 s40, s40, {FC_OFF}")
            E("v_writelane_b32 v13, s40, 2")
            E(f"s_lshl_b32 s40, s{SF}, 2"); E(f"s_add_u32 s40, s40, {FY_OFF}"); E("v_writelane_b32 v13, s40, 3"); E("v_mov_b32 v14, 0")
            def oo(): self.oob_sel(); I("v_add_u32 v13, s99, v13")
            L.append(oo)
            V(f"buffer_store_dword v14, v13, s[{RWS}:{RWS+3}], 0 offen sc1")
            E("s_lshl_b32 s37, s2, 3"); E(f"s_add_u32 s37, s37, s{SW}"); E("s_lshl_b32 s38, s37, 10")
            L.append(lambda: self.srd(RD, "q", 2*MB)); L.append(lambda: self.srd(RE, "wq", 4*MB)); L.append(lambda: self.srd(RT, "gate", 1024))
            V(f"buffer_load_dwordx4 {v(XG,4)}, v{VST}, s[{RD}:{RD+3}], s38 offen")
            V(f"buffer_load_dwordx4 {v(GW,4)}, v{VST}, s[{RT}:{RT+3}], 0 offen")
            return L
        def gate_ops():
            L = []; E = lambda t: L.append(lambda: I(t)); Z = T + 8
            L.append(lambda: vm.wait(hl["t"]))
            def xs():
                I(f"s_add_u32 s38, s38, {XC_OFF}"); I(f"buffer_store_dwordx4 {v(XG,4)}, v{VST}, s[{RWS}:{RWS+3}], s38 offen{self.st}"); vm.issue()
            if XC: L.append(xs)
            E(f"v_dot2_f32_bf16 v{Z}, v{XG}, v{GW}, 0")
            for i in range(1, 4): E(f"v_dot2_f32_bf16 v{Z}, v{XG+i}, v{GW+i}, v{Z}")
            for m in ("quad_perm:[1,0,3,2] row_mask:0xf", "quad_perm:[2,3,0,1] row_mask:0xf", "row_half_mirror row_mask:0xf", "row_mirror row_mask:0xf",
                      "row_bcast:15 row_mask:0xa", "row_bcast:31 row_mask:0xc"):
                E(f"v_add_f32_dpp v{Z}, v{Z}, v{Z} {m} bank_mask:0xf")
            E(f"v_readlane_b32 s36, v{Z}, 63"); E(f"v_mov_b32 v{Z+1}, {f2u(-LOG2E)}"); E(f"v_mul_f32 v{Z}, s36, v{Z+1}")
            E(f"v_exp_f32 v{Z}, v{Z}"); E(f"v_add_f32 v{Z}, 1.0, v{Z}"); E(f"v_rcp_f32 v{Z}, v{Z}")
            E("s_lshl_b32 s38, s37, 2"); E(f"s_add_u32 s38, s38, {G_OFF}"); E(f"v_mov_b32 v{Z+1}, 0")
            def gs():
                I(f"buffer_store_dword v{Z}, v{Z+1}, s[{RWS}:{RWS+3}], s38 offen{self.st}"); vm.issue()
            L.append(gs)
            return L
        toks = {}
        def rdx(t, mt):
            m = ST[t][0]; xb = xbase(t); pt = 0
            off = (xb & 65535) + ((mt >> 1)*4096 + (mt & 1)*1024 if pt else mt*2048)
            def f(kk):
                va = VXA + 4*pt + 2*(xb >> 17) + (kk ^ (mt & 1))
                I(f"ds_read_b128 {v(FX[mt & 1]+4*kk,4)}, v{va} offset:{off}"); toks[("x", t, mt, kk)] = lg.issue()
            return [lambda: f(0), lambda: f(1)]
        def rdw(t, dt):
            m = ST[t][0]
            def f(kk, h):
                I(f"ds_read_b64_tr_b16 {v(FW[t & 1]+8*dt+4*kk+2*h,2)}, v{VWA+dt} offset:{wbase(t, m)-65536+kk*8192+h*1024}"); toks[("w", t, dt, kk)] = lg.issue()
            return [lambda kk=kk, h=h: f(kk, h) for kk in range(2) for h in range(2)]
        def atile(m, mt, dt): return ACC[m] + (4*(((mt >> 1)*4 + dt)*2 + (mt & 1)) if m == "V" else 4*(mt*4 + dt))
        def mfs(t, mt):
            m = ST[t][0]; first = t == 0 or ST[t-1][0] != m; L = []
            order = [(dt, kk) for dt in range(4) for kk in range(2)] if not self.o.get("nochain") else [(dt, kk) for kk in range(2) for dt in range(4)]
            for dt, kk in order:
                def f(dt=dt, kk=kk):
                    lg.wait(max(toks[("x", t, mt, kk)], toks[("w", t, dt, kk)]))
                    d = v(atile(m, mt, dt), 4); X = v(FX[mt & 1]+4*kk, 4); W = v(FW[t & 1]+8*dt+4*kk, 4)
                    c = "0" if (first and kk == 0) else d
                    I(f"v_mfma_f32_16x16x32_bf16 {d}, {X}, {W}, {c}" if m == "V" else f"v_mfma_f32_16x16x32_bf16 {d}, {W}, {X}, {c}")
                L.append(f)
            return L
        def pieces(m):
            fs = 1024 if m == "Q" else 1 << self.FSH
            if m == "V": return [(atile(m, 2*p, dt), p*8192 + dt*fs) for p in range(2) for dt in range(4)]
            return [(atile(m, mt, 2*j), (mt >> 1)*8192 + ((mt & 1)*4 + j)*fs) for mt in range(4) for j in range(2)]
        def kv_out(m):
            out = []
            for b, off in pieces(m):
                pk = [lambda i=i, b=b: I(f"v_cvt_pk_bf16_f32 v{b+i}, v{b+2*i}, v{b+2*i+1}") for i in range(4)]
                if m == "K": pk = [lambda i=i, b=b: I(f"v_mul_f32 v{b+i}, {f2u(LOG2E / math.sqrt(128.0))}, v{b+i}") for i in range(8)] + pk
                def st(b=b, off=off):
                    if self.o.get("nost"): return
                    I(f"s_add_u32 s41, s{54 if m == 'K' else 52}, {off}")
                    I(f"buffer_store_dwordx4 {v(b,4)}, v{VSK}, s[{RWS}:{RWS+3}], s41 offen{self.st}"); vm.issue()
                out.append((pk, st))
            return out
        side = {}; late = {}
        def spread(ops, t0, t1, dst=side, ks=(0, 1, 2)):
            sl = [(t, k) for t in range(t0, t1) for k in ks]; n = len(ops)
            for j, key in enumerate(sl): dst.setdefault(key, []).extend(ops[n*j//len(sl): n*(j+1)//len(sl)])
        PG = self.o.get("pg", 0)
        spread(gate_loads(), PG, PG + 1); spread(gate_ops(), PG + 2, PG + 3)
        def wtouch(r, half, wv):
            def f():
                I(f"s_cmp_eq_u32 s{SW}, {wv}"); I(f"s_cselect_b32 s99, 0, {self.OOB}")
                self.phys(39, SHEAD, 40); I("s_lshl_b32 s39, s39, 8"); I(f"s_lshl_b32 s40, s{SIDX}, 19"); I("s_add_u32 s40, s40, s39"); I(f"s_add_u32 s40, s40, {half*32*8192}")
                I("v_lshrrev_b32 v3, 1, v0"); I("v_lshlrev_b32 v3, 13, v3"); I("v_and_b32 v2, 1, v0"); I("v_lshl_add_u32 v3, v2, 7, v3"); I("v_add_u32 v3, s99, v3")
                I(f"buffer_load_dword v1, v3, s[{r}:{r+3}], s40 offen"); vm.issue()
            return f
        for nm, r, dflt in (("tk", RB, -1), ("tv", RC, 1), ("tq", RE, 3)):
            t0 = self.o.get(nm, dflt)
            if t0 >= 0:
                for half in range(2): side.setdefault((t0 + half, 2), []).append(wtouch(r, half, half))
        KN = self.o.get("kn", 8); VD = self.o.get("vd", 0); VN = self.o.get("vn", 5)
        KO = kv_out("K"); VO = kv_out("V")
        spread(sum((p for p, _ in KO), []), TK + 1, min(TK + 3, TQ), ks=(0, 1))
        npk = 2 * (min(TK + 3, TQ) - TK - 1)
        spread([s_ for _, s_ in KO], TK + 1, TK + 1 + KN, dst=late, ks=(2,))
        assert len(late[(TK + 1, 2)]) <= 8 * 2 // npk
        spread(sum((p for p, _ in VO), []), TQ, TQ + 1, ks=(0, 1))
        spread([s_ for _, s_ in VO], TQ + VD, TQ + VD + VN, dst=late, ks=(2,))
        PK_, PV_ = TK + KN + 2, TQ + VD + VN
        assert PK_ <= NS - 5 and PV_ <= NS - 2
        QE = []; EQ = lambda t: QE.append(lambda: I(t))
        EQ(f"s_and_b32 s55, s{SW}, 2"); EQ("s_lshl_b32 s55, s55, 15"); EQ(f"s_add_u32 s55, s55, {QA_LDS}")
        EQ(f"s_and_b32 s54, s{SW}, 1"); EQ("s_lshl_b32 s54, s54, 14"); EQ("s_add_u32 s55, s55, s54")
        EQ("s_lshl_b32 s54, s43, 10"); EQ("s_add_u32 s55, s55, s54"); EQ(f"v_add_u32 v14, s55, v{VST}")
        spread(QE, NS - 1, NS)
        spread([lambda: self.srd(RB, "ssmk", 2*MB), lambda: self.srd(RA, "k", 2*MB), lambda: self.srd(RC, "v", 2*MB), lambda: self.srd(RD, "shift", 4096), lambda: self.srd(RE, "wo", 4*MB)], NS - 2, NS - 1)
        spread([lambda r=r: I(f"v_mov_b64 {v(192+2*r,2)}, 0") for r in range(32) if not 16 <= r < 20], NS - 1, NS)
        side.setdefault((NS - 1, 3), []).extend([lambda r=r: I(f"v_mov_b64 {v(192+2*r,2)}, 0") for r in range(16, 20)])
        def fkoff():
            I(f"s_lshl_b32 s40, s{SHEAD}, 7"); I(f"s_lshl_b32 s41, s{SIDX}, 2"); I("s_add_u32 s40, s40, s41"); I(f"s_add_u32 s40, s40, {FK_OFF}")
        def w0only(fn):
            l = a.label("NP"); I(f"s_cmp_lg_u32 s{SW}, 0"); I(f"s_cbranch_scc1 {l}"); fn(); a.L(l)
        def k0(i):
            I(f"s_lshl_b32 s40, s{SW}, 12"); I("s_add_u32 m0, s40, 0x8000")
            I(f"s_lshl_b32 s41, s{SHEAD}, 20"); I("s_add_u32 s41, s41, s40")
            I(f"buffer_load_dwordx4 v{VST}, s[{RWS}:{RWS+3}], s41 offen offset:{1024*i}{self.ld} lds"); vm.issue()
        self.barrier()
        for f in take(-1, 1): f()
        vm.wait(dtok[0]); self.barrier()
        self.stamp(1)
        def first_reads(t):
            x = rdx(t, 0); w = [rdw(t, dt) for dt in range(4)]
            return [x[0]] + w[0][:2] + [x[1]] + w[0][2:] + w[1], w[2] + w[3]
        L, rest = first_reads(0)
        for f in L: f()
        VPK = self.o.get("vpk", 2); mark = {}; TZ = PG + 4; TS = 10; DS = self.o.get("dsteps", 3)
        pend = take(-1)
        for t in range(NS):
            for k in range(4):
                M = mfs(t, k); n = len(M); PB = []
                if k == 3 and t < NS - 1:
                    assert not pend
                    if t == TS + 2: vm.wait(td); w0only(lambda: self.poll_check(14, 13, "0", rep4(1), RDBG))
                    if t == NS - 3: vm.wait(tp); w0only(lambda: self.poll_check(15, 13, "s53", 1))
                    lg.wait(lg.issued); vm.wait(dtok[t+1])
                    if t == TZ: vm.wait(mark[TZ-2])
                    if t == PK_: vm.wait(mark[TK + KN])
                    if t == PV_: vm.wait(mark[PV_ - 1])
                    self.barrier()
                    ps = self.o.get("pstamp")
                    if ps is not None and 0 <= t - int(ps) + 1 < 13: self.stamp(17 + t - int(ps) + 1); vm.issue(2)
                    if TZ <= t < TZ + 4: PB.append(lambda t=t: self.publish(SF, 1, RDBG, True, idx=t - TZ))
                    if t == PK_: PB.append(lambda: (fkoff(), self.publish(40, 1)))
                    if t == PV_: PB.append(lambda: (fkoff(), self.publish(40, 3)))
                    pend = take(t)
                    if t == NS - 3: pend += [lambda i=i: k0(i) for i in range(4)]
                    nd = len(pend) // (DS + 1)
                else:
                    nd = -(-len(pend) // max(1, (3 if t == 0 else DS) - k))
                D, pend = pend[:nd], pend[nd:]
                fl = []
                if not (t == NS - 1 and k == 3):
                    if k == 3:
                        L, rest = first_reads(t+1); nr = self.o.get("nr", 4)
                        fl.append((0, 7, L + rest[:nr])); rest = rest[nr:]
                    else:
                        if k == 0 and rest: fl.append((-1, 2, rest))
                        fl.append((2, 4, rdx(t, k+1)))
                if PB: fl.append((1, 2, PB))
                if D: fl.append((0, n, D))
                if side.get((t, k)): fl.append((0, n, side[(t, k)]))
                if late.get((t, k)): fl.append((n - 2, n, late[(t, k)]))
                self.stream(M, fl)
                if k == 2: mark[t] = vm.issued
                if t == TS and k == 0:
                    self.oob_sel(); I("v_lshl_add_u32 v13, v0, 2, s99"); td = self.poll_issue(14, 13, "0", RDBG)
                if t == NS - 4 and k == 0:
                    self.oob_sel(); I("v_and_b32 v13, 7, v0"); I("v_lshl_add_u32 v13, v13, 2, s99")
                    I(f"s_lshl_b32 s53, s{SHEAD}, 7"); I(f"s_add_u32 s53, s53, {FK_OFF}")
                    tp = self.poll_issue(15, 13, "s53")
                if t == NS - 1 and k == VPK: self.poll_issue(15, 13, "s53")
            if t == TK: self.stamp(2)
            if t == TV: self.stamp(13)
        assert not items
        self.stamp(3)
        I("v_mov_b32 v16, v13")
        if VPK > 3: self.poll_issue(15, 13, "s53")
        for b, off in pieces("Q"):
            for i in range(4): I(f"v_cvt_pk_bf16_f32 v{b+i}, v{b+2*i}, v{b+2*i+1}")
            I(f"ds_write_b128 v14, {v(b,4)} offset:{off}"); lg.issue()
        self.attn_setup()
        vm.wait(vm.issued); w0only(lambda: self.poll_check(15, 16, "s53", 3))
        lg.wait(lg.issued); self.barrier()

    def attn_setup(self): self.attn(True)
    def attn(self, setup=False):
        a = self.a; I = self.I; vm = self.vm; lg = self.lg
        M16 = "v_mfma_f32_16x16x32_bf16"
        ML = 155648; QA_LDS = 65536; QB_LDS = 131072
        O = 192; QF = 160; NM = 144; S = [112, 128]; PP = [96, 104]; RING = 64; NR = 8; E = 56; PK = 16
        VK, VV, VL16, VSC, LM, THR, NINF, VQ, TMP = 4, 5, 6, 7, 8, 9, 10, 11, 12
        LS, ONES, BIAS = 152, 60, 11.0
        SR, SG, SC1, SC2, SKO, SVO, SKM, SVM, STH = 32, 33, 34, 35, 36, 37, 38, 39, 42
        SFIN, SCA, SM1 = 55, 59, 58
        DC = self.o.get("dmacost", 16); WEV = self.o.get("wev", 4)
        if setup:
            I(f"s_lshr_b32 s{SG}, s{SW}, 2"); I(f"s_mul_i32 s{SR}, s{SG}, 7"); I(f"s_xor_b32 s{SR}, s{SR}, s{SW}")
            I(f"v_lshlrev_b32 v{VL16}, 4, v0")
            I(f"s_lshl_b32 s44, s{SR}, 13"); I(f"s_add_u32 s44, s44, {QB_LDS}"); I(f"v_add_u32 v{VQ}, s44, v{VL16}")
            I(f"s_lshl_b32 s45, s{SG}, 16"); I(f"v_subrev_u32 v{TMP+1}, s45, v{VQ}")
            I(f"s_mov_b32 s{SC1}, s{SIDX}")
            I(f"s_lshl_b32 s{SC2}, s{SIDX}, 1"); I(f"s_sub_u32 s{SC2}, 14, s{SC2}")
            I(f"s_cmp_eq_u32 s{SG}, 1"); I(f"s_cselect_b32 s{SM1}, 0, -1")
            I(f"s_lshl_b32 s43, s{SW}, 12"); I(f"s_lshl_b32 s{SVO}, s{SHEAD}, 20"); I(f"s_add_u32 s{SVO}, s{SVO}, s43")
            I(f"s_add_u32 s{SKO}, s{SVO}, 0x10000"); I(f"s_add_u32 s{SVO}, s{SVO}, 0x8000")
            I(f"s_mov_b32 s{SKM}, s43"); I(f"s_add_u32 s{SVM}, s43, 0x18000")
            I(f"s_mov_b32 s{STH}, 0x40004000"); I(f"v_mov_b32 v{NINF}, 0xff800000")
            for r in range(4): I(f"v_mov_b32 v{ONES+r}, 0x3f803f80"); I(f"v_mov_b64 {v(LS+2*r,2)}, 0")
            I(f"v_and_b32 v{THR}, 15, v0"); I(f"v_lshlrev_b32 v{VSC}, 4, v{THR}"); I(f"s_lshl_b32 s44, s{SR}, 5"); I(f"v_add_u32 v{THR}, s44, v{THR}")
            I(f"v_lshrrev_b32 v{TMP}, 4, v0"); I(f"v_lshl_add_u32 v{VSC}, v{TMP}, 9, v{VSC}"); I(f"v_lshlrev_b32 v{TMP}, 2, v{TMP}"); I(f"v_sub_u32 v{THR}, v{THR}, v{TMP}")
            I(f"v_and_b32 v{VK}, 15, v0"); I(f"v_lshlrev_b32 v{VK}, 4, v{VK}"); I(f"v_lshrrev_b32 v{TMP}, 4, v0"); I(f"v_lshl_add_u32 v{VK}, v{TMP}, {self.GSH}, v{VK}"); I(f"v_add_u32 v{VK}, 0x8000, v{VK}")
            I(f"s_lshl_b32 s{SCA}, s{SIDX}, 2"); I(f"s_add_u32 s{SCA}, s{SCA}, s{SR}"); I(f"s_lshl_b32 s{SCA}, s{SCA}, 5"); I(f"s_add_u32 s{SCA}, s{SCA}, s{SHEAD}")
            I(f"s_lshl_b32 s{SCA}, s{SCA}, 13"); I(f"s_add_u32 s{SCA}, s{SCA}, {CTX_OFF}")
            I(f"s_mov_b32 s{SFIN}, 0")
            I(f"s_lshr_b32 s56, s{SF}, 6"); I("s_lshl_b32 s56, s56, 2"); I(f"s_bfe_u32 s44, s{SF}, 0x20003"); I("s_add_u32 s56, s56, s44"); I("s_lshl_b32 s56, s56, 1")
            I(f"s_bfe_u32 s44, s{SF}, 0x10005"); I("s_add_u32 s56, s56, s44"); I(f"s_and_b32 s57, s{SF}, 7")
            I("s_mov_b32 s41, 0")
            CL = self.o.get("cl", 8)
            I(f"s_lshr_b32 s40, {1 << (CL+2)}, s{SG}"); I(f"s_or_b32 s40, s40, {1 << CL}")
            I(f"s_lshl_b32 s44, 2, s{SW}"); I("s_and_b32 s44, s44, 30"); I("s_or_b32 s40, s40, s44")
            I(f"s_cmp_eq_u32 s{SW}, 0"); I(f"s_cselect_b32 s44, {(1 << 5) | (1 << (CL+4))}, 0"); I("s_or_b32 s40, s40, s44")
            if not self.o.get("noprio"):
                l = a.label("PR"); I(f"s_cmp_eq_u32 s{SG}, 1"); I(f"s_cbranch_scc0 {l}"); I("s_setprio 1"); a.L(l)
            return
        op = lambda t, c=4: (lambda: I(t), c)
        nop = lambda: None
        def loadq(va):
            for ds in range(8):
                I(f"ds_read_b128 {v(QF+4*ds,4)}, v{va} offset:{1024*ds}"); lg.issue()
        def dma4(kind):
            sm, so = (SKM, SKO) if kind == "k" else (SVM, SVO)
            def d(i):
                def f():
                    if i == 0: I(f"s_mov_b32 m0, s{sm}"); I(f"s_xor_b32 s{sm}, s{sm}, 0x8000")
                    I(f"buffer_load_dwordx4 v{VL16}, s[{RWS}:{RWS+3}], s{so} offen offset:{1024*i}{self.ld} lds")
                    if i == 3: I(f"s_add_u32 s{so}, s{so}, 0x10000")
                return (f, DC + (8 if i == 0 else 4 if i == 3 else 0))
            return [d(i) for i in range(4)]
        self.ring_n = 0
        def rd(kind, sl, idx):
            h = {}
            def f():
                slot = self.ring_n % NR; self.ring_n += 1
                h["reg"] = RING + 4*slot
                I(f"ds_read_b128 {v(h['reg'],4)}, v{VK if kind == 'k' else VV} offset:{sl*8192+(idx << self.FSH)}"); h["tok"] = lg.issue()
            return f, h
        def wait_for(R, i):
            if R[i][1]["tok"] <= lg.done: return
            j = i
            while j + 1 < len(R) and j + 1 < i + WEV and "tok" in R[j+1][1] and R[j+1][1]["tok"] > R[i][1]["tok"]: j += 1
            lg.wait(R[j][1]["tok"])
        def otile(dt, qt): return O + 16*(dt >> 1) + 8*qt + 4*(dt & 1)
        def qk(sb, R, base, czero=False):
            def f(m):
                kt, qt, dd = m >> 3, (m >> 2) & 1, m & 3; i = base + 4*kt + dd
                wait_for(R, i); d = v(S[sb] + 8*qt + 4*kt, 4)
                c = ("0" if czero else v(NM + 4*qt, 4)) if dd == 0 else d
                I(f"{M16} {d}, {v(R[i][1]['reg'],4)}, {v(QF + 16*qt + 4*dd, 4)}, {c}")
            return [lambda m=m: f(m) for m in range(16)]
        def pv1(pb, dt, qt, reg): I(f"{M16} {v(otile(dt, qt),4)}, {v(reg,4)}, {v(PP[pb]+4*qt,4)}, {v(otile(dt, qt),4)}")
        def pv(pb, R, base, dts=range(8), exact=False):
            def f(dt, qt):
                if exact: lg.wait(R[base+dt][1]["tok"])
                else: wait_for(R, base + dt)
                pv1(pb, dt, qt, R[base+dt][1]["reg"])
            ls = [lambda qt=qt: I(f"{M16} {v(LS+4*qt,4)}, {v(ONES,4)}, {v(PP[pb]+4*qt,4)}, {v(LS+4*qt,4)}") for qt in range(2)]
            return ls + [lambda dt=dt, qt=qt: f(dt, qt) for dt in dts for qt in range(2)]
        def sm_ops(sb):
            ex = lambda i: op(f"v_exp_f32 v{E+(i&3)}, v{S[sb]+i}", 8)
            cv = lambda j: op(f"v_cvt_pk_bf16_f32 v{PP[sb]+j}, v{E+((2*j)&3)}, v{E+((2*j+1)&3)}")
            p = PP[sb]; L = [ex(0), ex(1)]
            ors = {2: f"v_or3_b32 v{LM}, v{p}, v{p+1}, v{p+2}", 4: f"v_or3_b32 v{LM}, v{LM}, v{p+3}, v{p+4}", 6: f"v_or3_b32 v{LM}, v{LM}, v{p+5}, v{p+6}"}
            for j in range(8):
                L += [ex(2*j+2), cv(j), ex(2*j+3)] if j < 7 else [op("s_nop 0"), cv(j)]
                if j in ors: L.append(op(ors[j]))
            L = [x for i, x in enumerate(L) if i != len(L) - 2]
            L += [op(f"v_or_b32 v{LM}, v{LM}, v{p+7}"), op(f"v_and_b32 v{LM}, s{STH}, v{LM}")]
            return L
        def sched(M, fixed, chain):
            n = len(M); fc = [sum(c for _, c in fixed.get(g, [])) for g in range(n)]
            tot = sum(c for _, c in chain); lo, hi = 0.0, 4000.0
            for _ in range(40):
                lev = (lo + hi) / 2
                if sum(max(0, lev - f) for f in fc) >= tot: hi = lev
                else: lo = lev
            k = 0; credit = 0.0
            for g in range(n):
                M[g]()
                for c, _ in fixed.get(g, []): c()
                credit += max(0, hi - fc[g])
                while k < len(chain) and (g == n - 1 or chain[k][1] <= credit + 2):
                    chain[k][0](); credit -= chain[k][1]; k += 1
        def put(fixed, g, items): fixed.setdefault(g, []).extend(items)
        SPL = self.o.get("spl", 18)
        ool = []
        def rarely(cmp_, body):
            lo = a.label("OOL"); lb = a.label("RET")
            I(cmp_); I(f"s_cbranch_scc1 {lo}"); a.L(lb)
            ool.append((lo, lb, body))
        def mask_ops(sb, koff):
            prs = [46, 48, 50, 52]; L = []
            if koff >= 64:
                L.append(op(f"v_subrev_u32 v{TMP+3}, 64, v{THR}")); tr = TMP + 3; koff -= 64
            elif koff < 0:
                L += [op(f"s_lshl_b32 s45, s{SG}, 6"), op(f"v_subrev_u32 v{TMP+3}, s45, v{THR}")]; tr = TMP + 3; koff = -koff - 1
            else: tr = THR
            for r0 in range(0, 16, 4):
                qt, kt = r0 >> 3, (r0 >> 2) & 1
                for r in range(4): L.append(op(f"v_cmp_lt_i32 s[{prs[r]}:{prs[r]+1}], v{tr}, {16*kt + r + koff - 16*qt}"))
                for r in range(4): L.append(op(f"v_cndmask_b32 v{S[sb]+r0+r}, v{S[sb]+r0+r}, v{NINF}, s[{prs[r]}:{prs[r]+1}]"))
            return L
        def mask_body(sb, koff):
            for c, _ in mask_ops(sb, koff): c()
        def xred(x, y, t0, t1, o):
            L = []
            for sw in ("v_permlane16_swap_b32", "v_permlane32_swap_b32"):
                L += [op(f"v_mov_b32 v{t0}, v{x}"), op(f"v_mov_b32 v{t1}, v{y}"), op("s_nop 0"), op(f"{sw} v{t0}, v{x}"), op(f"{sw} v{t1}, v{y}"),
                      op(f"{o} v{x}, v{x}, v{t0}"), op(f"{o} v{y}, v{y}, v{t1}")]
            return L
        def rowmax(sb):
            for qt in range(2):
                b = S[sb] + 8*qt; d = TMP + qt
                I(f"v_max3_f32 v{d}, v{b}, v{b+1}, v{b+2}"); I(f"v_max3_f32 v{d}, v{d}, v{b+3}, v{b+4}"); I(f"v_max3_f32 v{d}, v{d}, v{b+5}, v{b+6}"); I(f"v_max_f32 v{d}, v{d}, v{b+7}")
            for c, _ in xred(TMP, TMP+1, TMP+2, TMP+3, "v_max_f32"): c()
        def init_max():
            rowmax(0)
            for qt in range(2): I(f"v_max_f32 v{TMP+qt}, {f2u(-1e30)}, v{TMP+qt}"); I(f"v_add_f32 v{TMP+qt}, {f2u(BIAS)}, v{TMP+qt}")
            for r in range(8): I(f"v_sub_f32 v{NM+r}, 0, v{TMP+(r>>2)}")
            return [op(f"v_sub_f32 v{S[0]+r}, v{S[0]+r}, v{TMP+(r>>3)}") for r in range(16)]
        rare = []
        def check(sb, other=True):
            lr = a.label("RARE"); lb = a.label("BACK")
            I(f"v_cmp_ne_u32 vcc, 0, v{LM}")
            if self.o.get("a_nocheck"): I("s_mov_b64 vcc, 0")
            I(f"s_cbranch_vccnz {lr}"); a.L(lb)
            rare.append((lr, lb, sb, other))
        def fin_body():
            I(f"s_mov_b32 s{SFIN}, 2")
            I(f"v_rcp_f32 v{TMP}, v{LS}"); I(f"v_rcp_f32 v{TMP+2}, v{LS+4}"); I(f"v_mov_b32 v{TMP+1}, v{TMP}"); I(f"v_mov_b32 v{TMP+3}, v{TMP+2}")
            for r in range(4): I(f"v_mov_b64 {v(LS+2*r,2)}, 0")
            for q in range(8):
                for i in range(8*q, 8*q+8, 2): I(f"v_pk_mul_f32 {v(O+i,2)}, {v(O+i,2)}, {v(TMP+2*(q&1),2)}")
                for i in range(4): I(f"v_cvt_pk_bf16_f32 v{PK+4*q+i}, v{O+8*q+2*i}, v{O+8*q+2*i+1}")
                for i in range(8*q, 8*q+8, 2): I(f"v_mov_b64 {v(O+i,2)}, 0")
        coff = lambda q: (q & 3)*1024
        def st_body():
            I(f"s_add_u32 s44, s{SCA}, 4096"); I(f"s_mov_b32 s{SFIN}, 3")
            for q in range(8):
                I(f"buffer_store_dwordx4 {v(PK+4*q,4)}, v{VL16}, s[{RWS}:{RWS+3}], s{SCA if q < 4 else 44} offen offset:{coff(q)}{self.st}")
        TR = [RING + 4*(2+i) for i in range(6)]
        def head(R, vmw, with_mfma=True, post=(), more=(), pre=None):
            rf = [(f, 4) for f, h in R]; sm2 = sm_ops(0)[SPL:]
            M = [lambda dt=dt, qt=qt: pv1(1, dt, qt, TR[dt-2]) for dt in range(2, 8) for qt in range(2)] if with_mfma else [nop]*12
            if with_mfma: I("s_waitcnt lgkmcnt(4)")
            nb = self.o.get("nb", 4); more = list(more); m0 = len(more) // 3
            if pre is not None: more = list(pre) + more; m0 = len(pre)
            sched(M[:4], {}, sm2[:nb] + more[:m0])
            vmw(); I("s_waitcnt lgkmcnt(0)"); lg.mark_all_done(); self.barrier(); self.ring_n = 0
            fx = {0: rf[0:2], 1: rf[2:4], 2: rf[4:5], 4: rf[5:6], 6: rf[6:7], 7: [(nop, 8 + 8*len(post))]}
            sched(M[4:], fx, sm2[nb:] + more[m0:])
            check(0)
            for p in post: p()
        def mk_reads():
            return ([rd("k", 0, i) for i in range(8)] + [rd("v", 0, i) for i in range(8)] +
                    [rd("k", 1, i) for i in range(8)] + [rd("v", 1, i) for i in range(8)])
        def last_use(F):
            b = (0, 18, 34, 52)[F >> 3]; f = F & 7
            return b + (2*f + 1 if (F >> 3) & 1 else 8*(f >> 2) + 4 + (f & 3))
        def mid(R, dmas, kx, mb=None, trans=False, endops=(), early=(), g=0):
            rf = [(f, 4) for f, h in R]
            fa = {0: [rf[7]]}; fb = {}
            G_ = g
            for g, e in zip((1, 3, 9, 11), early): put(fa, g, [e])
            for F in range(8, 32):
                g = last_use(F - 8) + 1
                put(fa, g, [rf[F]]) if g < 34 else put(fb, g - 34, [rf[F]])
            D = sum((dma4(k) for k in dmas), [])
            st_ = self.o.get("gst", 4); of_ = self.o.get("gof", 2)
            gaps = [2 + of_*G_*2 + 2*st_*n for n in range(4)] if len(D) == 4 else [2 + of_*G_ + st_*n for n in range(8)]
            for g, d in zip(gaps, D): put(fa, g, [d]) if g < 33 else put(fb, g - 33, [d])
            PT = self.o.get("pt", 0)
            if PT and G_ == 0:
                pts = {1: [(0, 24, 2), (1, 21, 0)], 2: [(0, 8, 2), (0, 24, 0), (1, 7, 2), (1, 21, 0)], 3: [(0, 0, 2), (0, 8, 0), (0, 16, 2), (0, 24, 0), (0, 32, 2), (1, 7, 0), (1, 15, 2), (1, 21, 0)],
                       4: [(0, 16, 2), (1, 21, 0)], 5: [(0, 32, 2), (1, 21, 0)]}[PT]
                for part, g, p in pts: put(fb if part else fa, g, [op(f"s_setprio {p}")])
            put(fa, 33, [(nop, 16)])
            sched(qk(0, R, 0, trans) + pv(0, R, 8), fa, sm_ops(1))
            check(1, other=not trans)
            if mb: mb()
            pre = []
            if trans:
                I(f"s_mov_b32 s{SFIN}, 1")
                pre = init_max()
            put(fb, 18, [op(f"v_xor_b32 v{VV}, 0x10000, v{VK}")] + kx)
            for n, e in enumerate(endops): put(fb, 11 - n, [e])
            put(fb, 21, [(nop, 12)])
            sched(qk(1, R, 16) + pv(1, R, 24, range(2)), fb, pre + sm_ops(0)[:SPL])
            assert [R[26+i][1]["reg"] for i in range(6)] == TR
        vm4 = lambda: I("s_waitcnt vmcnt(4)")
        def vm08():
            lo = a.label("W8"); lb = a.label("W8R")
            I(f"s_cmp_eq_u32 s{SFIN}, 3"); I(f"s_cbranch_scc1 {lo}"); I("s_waitcnt vmcnt(0)"); a.L(lb)
            def b(): I("s_waitcnt vmcnt(8)"); I(f"s_mov_b32 s{SFIN}, 4")
            ool.append((lo, lb, b))
        m1 = lambda sb, ko: (lambda: rarely(f"s_cmp_eq_u32 s{SC1}, s{SM1}", lambda: mask_body(sb, ko)))
        fin = lambda: rarely(f"s_cmp_eq_u32 s{SFIN}, 1", fin_body)
        sta = (lambda: rarely(f"s_cmp_eq_u32 s{SFIN}, 2", st_body), 8)
        KR, VR, SH, WO, AD = 16, 23, 28, 32, 40
        def side_loads():
            L = []; E = lambda t: L.append(op(t)); V = lambda t: L.append(op(t, DC))
            E(f"v_lshrrev_b32 v{AD}, 5, v0"); E(f"v_and_b32 v{AD+1}, 31, v0"); E(f"v_lshlrev_b32 v{AD+2}, 12, v{AD}"); E(f"v_lshl_add_u32 v{AD+2}, v{AD+1}, 2, v{AD+2}")
            self.phys(60, SHEAD, 61, E); E("s_lshl_b32 s60, s60, 17"); E(f"s_lshr_b32 s61, s{SIDX}, 1"); E("s_lshl_b32 s61, s61, 15"); E("s_add_u32 s60, s60, s61")
            E(f"s_and_b32 s61, s{SF}, 1"); E("s_lshl_b32 s61, s61, 9"); E("s_add_u32 s60, s60, s61")
            E(f"s_lshl_b32 s61, s{SW}, 6"); E("s_add_u32 s60, s60, s61"); E("s_add_u32 s61, s60, 16384")
            E(f"v_lshrrev_b32 v{AD+3}, 4, v0"); E(f"v_lshlrev_b32 v{AD+3}, 12, v{AD+3}"); E(f"v_and_b32 v{AD+4}, 15, v0"); E(f"v_lshl_add_u32 v{AD+3}, v{AD+4}, 2, v{AD+3}")
            for j in range(8): V(f"buffer_load_dword v{WO+j}, v{AD+3}, s[{RE}:{RE+3}], s{60+(j>>2)} offen offset:{1024*(j&3)}")
            E("s_lshr_b32 s62, s2, 3"); E("s_lshl_b32 s62, s62, 16"); E(f"s_lshl_b32 s63, s{SW}, 13"); E("s_add_u32 s62, s62, s63")
            E("s_and_b32 s63, s2, 7"); E("s_lshl_b32 s63, s63, 7"); E("s_add_u32 s62, s62, s63"); E(f"v_add_u32 v{AD+3}, s62, v{AD+2}")
            for i in range(3): E(f"v_subrev_u32 v{AD+4+i}, {3072-1024*i}, v{AD+3}")
            E("s_lshl_b32 s63, s63, 2"); E(f"v_lshl_add_u32 v{AD+7}, v{AD+1}, 4, s63")
            for i in range(3): V(f"buffer_load_dword v{KR+i}, v{AD+4+i}, s[{RA}:{RA+3}], 0 offen")
            for i in range(4): V(f"buffer_load_dword v{KR+3+i}, v{AD+3}, s[{RA}:{RA+3}], 0 offen offset:{1024*i}")
            for i in range(4): V(f"buffer_load_dword v{VR+i}, v{AD+3}, s[{RC}:{RC+3}], 0 offen offset:{1024*i}")
            V(f"buffer_load_dwordx4 {v(SH,4)}, v{AD+7}, s[{RD}:{RD+3}], 0 offen")
            return L
        NSL = 21
        def side_math():
            L = []; E = lambda t: L.append(op(t)); V = lambda t: L.append(op(t, DC))
            W2 = 48
            E("s_mov_b32 s60, 0x05040100"); E("s_mov_b32 s61, 0x07060302")
            for j in range(4): E(f"v_perm_b32 v{W2+j}, v{WO+2*j+1}, v{WO+2*j}, s60")
            for j in range(4): E(f"v_perm_b32 v{W2+4+j}, v{WO+2*j+1}, v{WO+2*j}, s61")
            E(f"s_and_b32 s60, s{SF}, 1"); E("s_lshl_b32 s60, s60, 2"); E(f"s_lshr_b32 s61, s{SW}, 1"); E("s_add_u32 s60, s60, s61"); E("s_lshl_b32 s60, s60, 19")
            E(f"s_lshr_b32 s61, s{SF}, 1"); E("s_lshl_b32 s61, s61, 12"); E("s_add_u32 s60, s60, s61"); E(f"s_and_b32 s61, s{SW}, 1"); E("s_lshl_b32 s61, s61, 11")
            E("s_add_u32 s60, s60, s61"); E(f"s_add_u32 s60, s60, {WOT_OFF}")
            for mt in range(2): V(f"buffer_store_dwordx4 {v(W2+4*mt,4)}, v{VL16}, s[{RWS}:{RWS+3}], s60 offen offset:{1024*mt}{self.st}")
            KU, SU, OO, VU, PQ = 32, 42, 48, 39, 52
            for c in range(2):
                def unp(d, sreg, half): E(f"v_lshlrev_b32 v{d}, 16, v{sreg}" if half == 0 else f"v_and_b32 v{d}, 0xffff0000, v{sreg}")
                for i in range(7): unp(KU+i, KR+i, c)
                for j in range(4): unp(SU+j, SH + 2*c + (j >> 1), j & 1)
                for o in range(4):
                    E(f"v_mul_f32 v{OO+o}, v{KU+o}, v{SU+3}")
                    for j in (2, 1, 0): E(f"v_fmac_f32 v{OO+o}, v{KU+o+3-j}, v{SU+j}")
                    unp(VU, VR+o, c)
                    E(f"v_mul_f32 v{OO+o}, v{OO+o}, v{VU}")
                d = PQ + 2*(1-c)
                E(f"v_cvt_pk_bf16_f32 v{d}, v{OO+3}, v{OO+2}"); E(f"v_cvt_pk_bf16_f32 v{d+1}, v{OO+1}, v{OO}")
            E(f"v_lshlrev_b32 v{AD+1}, 5, v{AD+1}"); E(f"v_lshl_add_u32 v{AD+1}, v{AD}, 4, v{AD+1}")
            E(f"v_permlane32_swap_b32 v{PQ+2}, v{PQ}"); E(f"v_permlane32_swap_b32 v{PQ+3}, v{PQ+1}")
            E("s_lshr_b32 s60, s2, 3"); E("s_lshl_b32 s60, s60, 16"); E(f"s_lshl_b32 s61, s{SW}, 13"); E("s_add_u32 s60, s60, s61")
            E("s_and_b32 s61, s2, 7"); E("s_lshl_b32 s61, s61, 10"); E("s_add_u32 s60, s60, s61"); E(f"s_add_u32 s60, s60, {KVT_OFF}")
            V(f"buffer_store_dwordx4 {v(PQ,4)}, v{AD+1}, s[{RWS}:{RWS+3}], s60 offen{self.st}")
            return L
        CL = self.o.get("cl", 8)
        def touch(k):
            if k in (1, 2):
                self.phys(60, SHEAD, 61); I("s_lshl_b32 s60, s60, 17"); I(f"s_lshl_b32 s61, s{SIDX}, 14"); I("s_add_u32 s60, s60, s61")
                if k == 2: I("s_add_u32 s60, s60, 8192")
                I("v_lshlrev_b32 v16, 7, v0"); r = RE
            elif k in (3, 4):
                I("s_lshr_b32 s60, s2, 3"); I("s_lshl_b32 s60, s60, 16"); I("s_and_b32 s61, s2, 7"); I("s_lshl_b32 s61, s61, 7"); I("s_add_u32 s60, s60, s61")
                I("v_lshlrev_b32 v16, 10, v0"); r = RA if k == 3 else RC
            else:
                I(f"s_lshl_b32 s60, s{SF}, 13"); I("v_lshlrev_b32 v16, 7, v0"); r = RB
            I(f"buffer_load_dword v1, v16, s[{r}:{r+3}], s60 offen")
        LSITE = a.label("SITE")
        def site_code():
            a.L(LSITE)
            def ret(): I("s_nop 1"); I("s_setpc_b64 s[76:77]")
            l = a.label("SN"); I(f"s_cmp_lg_u32 s41, {CL}"); I(f"s_cbranch_scc1 {l}")
            for c, _ in side_loads(): c()
            ret(); a.L(l)
            l = a.label("SN"); I(f"s_add_u32 s44, s41, s{SG}"); I(f"s_cmp_lg_u32 s44, {CL+2}"); I(f"s_cbranch_scc1 {l}")
            for c, _ in side_math(): c()
            ret(); a.L(l)
            for k in range(1, 6):
                l = a.label("SN")
                I(f"s_cmp_lg_u32 s41, {k}"); I(f"s_cbranch_scc1 {l}")
                touch(k); ret(); a.L(l)
            I(f"s_lshl_b32 s44, s{SF}, 2"); I(f"s_add_u32 s44, s44, {FY_OFF}")
            sv = self.save(); self.publish(44, 2); self.restore(sv)
            ret()
        def spf():
            I("s_add_u32 s41, s41, 1"); rarely("s_bitcmp1_b32 s40, s41", lambda: I(f"s_call_b64 s[76:77], {LSITE}"))
        spub = (spf, 12)
        def snap():
            I(f"s_mov_b32 s61, {FY_OFF}"); I(f"buffer_load_dwordx4 v[52:55], v{VL16}, s[{RWS}:{RWS+3}], s61 offen sc1")
        def side_check():
            lo = a.label("SCK"); lb = a.label("SCR")
            def test():
                I("v_and_b32 v52, v52, v53"); I("v_and_b32 v54, v54, v55"); I("v_and_b32 v52, v52, v54"); I("v_and_b32 v52, 2, v52"); I("v_cmp_ne_u32 vcc, 2, v52")
            test(); I(f"s_cbranch_vccnz {lo}"); a.L(lb)
            def spin():
                lp = a.label("SPL")
                I("s_mov_b32 s99, 20000"); a.L(lp)
                I("s_sleep 2"); I(f"buffer_load_dwordx4 v[52:55], v{VL16}, s[{RWS}:{RWS+3}], s61 offen sc1"); I("s_waitcnt vmcnt(0)")
                test(); I(f"s_cbranch_vccz {lb}")
                I("s_sub_u32 s99, s99, 1"); I("s_cmp_lg_u32 s99, 0"); I(f"s_cbranch_scc1 {lp}")
            ool.append((lo, lb, spin))
        m2 = lambda sb, ko: (lambda: rarely(f"s_cmp_eq_u32 s{SC2}, 0", lambda: (snap(), mask_body(sb, ko))))
        LEV = a.label("EVEN"); LODM = a.label("ODDM"); LTRANS = a.label("TRANS"); LP2 = a.label("P2"); LP2B = a.label("P2B"); LDRAIN = a.label("DRAIN")
        self.stamp(8)
        self.ring_n = 0
        R = [rd("k", 0, i) for i in range(8)] + [rd("k", 1, i) for i in range(8)]
        def qrd(i):
            I(f"ds_read_b128 {v(QF+4*i,4)}, v{TMP+1} offset:{1024*i}"); return lg.issue()
        for i in range(4): qrd(i); R[i][0]()
        for i in range(4, 8): tq = qrd(i)
        D = dma4("v") + dma4("k")
        fx = {g: [(R[4+g][0], 4)] for g in range(4)}
        put(fx, 3, [(lambda: lg.wait(tq), 4)])
        for F in range(8, 15): put(fx, last_use(F - 8) + 1, [(R[F][0], 4)])
        for n, d in enumerate(D): put(fx, 2*n, [d])
        sched(qk(0, R, 0, True), fx, [])
        m1(0, 0)()
        pre = init_max()
        fx = {0: [(R[15][0], 4)], 8: [op(f"v_xor_b32 v{VV}, 0x10000, v{VK}"), op(f"v_xor_b32 v{VK}, 0x4000, v{VK}")]}
        sched(qk(1, R, 8), fx, pre + sm_ops(0)[:SPL])
        R = mk_reads()
        head(R, vm4, False, post=[m1(1, 32)])
        svm = self.save()
        self.stamp(9)
        LOD = [a.label("ODD0"), a.label("ODD1")]
        I(f"s_cmp_eq_u32 s{SG}, 1"); I(f"s_cbranch_scc1 {LOD[1]}"); I(f"s_branch {LOD[0]}")
        vm0 = lambda: I("s_waitcnt vmcnt(0)")
        def loops(g):
            LEV = a.label("EVEN"); LP2 = a.label("P2")
            mm = (lambda sb, ko: m1(sb, ko)) if g else (lambda sb, ko: None)
            a.L(LEV)
            R = mk_reads(); head(R, vm4)
            mid(R, "k", [op(f"v_xor_b32 v{VK}, 0x4000, v{VK}")], mb=mm(0, 0), early=[spub], g=g)
            R = mk_reads(); head(R, vm4, post=[m1(1, 32)] if g else [])
            assert self.lg.issued - self.lg.done == svm[2] - svm[3]
            a.L(LOD[g])
            mid(R, "v", [op(f"v_xor_b32 v{VK}, 0xc000, v{VK}")], mb=mm(0, 64), endops=[op(f"s_sub_u32 s{SC1}, s{SC1}, 1")], early=[spub], g=g)
            I(f"s_cmp_lg_u32 s{SC1}, -1"); I(f"s_cbranch_scc1 {LEV}")
            self.stamp(14)
            if g:
                loadq(VQ); I("s_waitcnt lgkmcnt(0)"); I(f"v_xor_b32 v{VK}, 0x4000, v{VK}")
            R = mk_reads(); head(R, vm4, more=mask_ops(1, 96) if g else ())
            mid(R, "k", [op(f"v_xor_b32 v{VK}, 0x8000, v{VK}")], mb=m2(0, -1), trans=bool(g), early=[spub], g=g)
            self.stamp(15)
            I(f"s_cmp_eq_u32 s{SC2}, 0"); I(f"s_cbranch_scc1 {LDRAIN}")
            a.L(LP2)
            R = mk_reads(); head(R, vm08 if g else vm0)
            mid(R, "kv", [op(f"v_xor_b32 v{VK}, 0x8000, v{VK}")], mb=m2(0, -1), endops=[sta] if g else [],
                early=[spub] + ([(fin, 8)] if g else []) + [op(f"s_sub_u32 s{SC2}, s{SC2}, 1")], g=g)
            I(f"s_cmp_lg_u32 s{SC2}, 0"); I(f"s_cbranch_scc1 {LP2}")
        loops(1); I(f"s_branch {LDRAIN}")
        loops(0)
        a.L(LDRAIN)
        self.stamp(10)
        R2 = [rd("v", 0, i) for i in range(8)] + [rd("v", 1, i) for i in range(8)]
        rf = [(f, 4) for f, h in R2]
        ts, ts2, ts3 = self.tail_setup()
        tsa = [x for x in ts if x[1] == 4]; tsl = [x for x in ts if x[1] != 4]
        mk_ = mask_ops(1, -33)
        head(R2, lambda: (vm08(), side_check(), tsl[0][0](), tsl[1][0]()), post=[fin, sta[0]], pre=tsa[:8], more=tsa[8:16] + [tsl[2]] + mk_)
        ts = tsa[16:]
        if self.o.get("dst"): self.stamp(17)
        pre = []; E_ = lambda t: pre.append(op(t))
        E_(f"s_add_u32 s44, s{SWK}, {ML}"); E_(f"v_add_u32 v54, s44, v{VL16}")
        E_(f"s_lshl_b32 s46, s{SW}, 13"); E_(f"v_add_u32 v55, s46, v{VL16}")
        E_(f"s_sub_u32 s54, 15, s{SIDX}"); E_(f"s_lshl_b32 s54, s54, 2"); E_(f"s_add_u32 s54, s54, s{SR}"); E_("s_lshl_b32 s54, s54, 5"); E_(f"s_add_u32 s54, s54, s{SHEAD}")
        E_("s_lshl_b32 s54, s54, 13"); E_(f"s_lshl_b32 s44, s{SG}, 12"); E_("s_add_u32 s54, s54, s44"); E_(f"s_add_u32 s54, s54, {CTX_OFF}")
        def lsum():
            def wml():
                I(f"ds_write_b128 v54, {v(150,4)}"); lg.issue()
            return [op(f"v_mov_b32 v150, v{NM}"), op(f"v_mov_b32 v{LS+1}, v{LS+4}"), (wml, 4)]
        def osend(g, i):
            def f():
                I(f"ds_write_b128 v55, {v(O+32*(1-g)+4*i,4)} offset:{1024*i}"); lg.issue()
            return (f, 16)
        lj = a.label("MGJ"); LMG = [a.label("MG0"), a.label("MG1")]; LFB = a.label("FB1"); LSK = a.label("SKIP"); LS1 = a.label("SK1")
        for c, _ in ts: c()
        I(f"s_lshl_b32 s45, s{SG}, 1"); I(f"s_sub_u32 s45, s{SR}, s45"); I("s_cmp_lt_i32 s45, 1"); I(f"s_cbranch_scc1 {LSK}")
        svd = self.save(); rnd = self.ring_n
        WA_ = self.o.get("wa", 6); tsA, tsB = ts2[:WA_], ts2[WA_:]
        setup_ = pre + ts3; n8 = (len(setup_) + 17) // 18
        fx = {g: setup_[g*n8:(g+1)*n8] for g in range(18)}
        for n, x in enumerate(tsA): put(fx, 1 + n * 17 // max(1, len(tsA)), [x])
        for F in range(7, 15): put(fx, 2*(F - 7) + (2 if F > 7 else 0), [rf[F]])
        sched(pv(0, R2, 0), fx, sm_ops(1))
        check(1)
        rf[15][0]()
        if self.o.get("dst"): self.stamp(20)
        I(f"s_cmp_eq_u32 s{SG}, 1"); I(f"s_cbranch_scc1 {LFB}")
        sv2 = self.save(); PR = 64
        for g in (0, 1):
            if g: a.L(LFB); self.restore(sv2)
            own = O + 32*g; snd = O + 32*(1-g)
            dts = list(range(4*(1-g), 4*(1-g)+4)) + list(range(4*g, 4*g+4))
            fx = {10 + i: [osend(g, i)] for i in range(8)}
            put(fx, 8, lsum())
            for n, x in enumerate(tsB): put(fx, n * 10 // max(1, len(tsB)), [x])
            sched(pv(1, R2, 8, dts, True), fx, self.tail_valu())
            a.L(LMG[g])
            if self.o.get("dst"): self.stamp(18)
            I(f"v_xor_b32 v54, 0x1c00, v54"); I(f"v_xor_b32 v55, 0xe000, v55")
            I("s_waitcnt lgkmcnt(0)"); lg.mark_all_done(); self.barrier()
            if self.o.get("dst"): self.stamp(19)
            I(f"ds_read_b128 {v(96,4)}, v54"); t0 = lg.issue()
            tk = []
            for i in range(8):
                I(f"ds_read_b128 {v(PR+4*i,4)}, v55 offset:{1024*i}"); tk.append(lg.issue())
            lg.wait(t0)
            for q in range(2):
                I(f"v_min_f32 v100, v{150+q}, v{96+q}"); I(f"v_sub_f32 v101, v100, v{150+q}"); I(f"v_sub_f32 v102, v100, v{96+q}")
                I("v_exp_f32 v101, v101"); I("v_exp_f32 v102, v102")
                I(f"v_mul_f32 v103, v101, v{LS+q}"); I(f"v_fmac_f32 v103, v102, v{98+q}"); I("v_rcp_f32 v103, v103")
                b = 104 + 4*q
                I(f"v_mul_f32 v{b}, v101, v103"); I(f"v_mul_f32 v{b+1}, v101, v103"); I(f"v_mul_f32 v{b+2}, v102, v103"); I(f"v_mul_f32 v{b+3}, v102, v103")
            tw = self.tail_writes()
            for q in range(4):
                b = 104 + 4*(q & 1)
                for i in range(8*q, 8*q+8, 2): I(f"v_pk_mul_f32 {v(own+i,2)}, {v(own+i,2)}, {v(b,2)}")
                lg.wait(tk[2*q+1])
                if not self.o.get("twe"):
                    for c in tw[3*q:3*q+3]: c()
                for i in range(8*q, 8*q+8, 2): I(f"v_pk_fma_f32 {v(own+i,2)}, {v(PR+i,2)}, {v(b+2,2)}, {v(own+i,2)}")
                for i in range(4): I(f"v_cvt_pk_bf16_f32 v{snd+4*q+i}, v{own+8*q+2*i}, v{own+8*q+2*i+1}")
                I(f"buffer_store_dwordx4 {v(snd+4*q,4)}, v{VL16}, s[{RWS}:{RWS+3}], s54 offen offset:{coff(q)}{self.st}"); self.tctx = vm.issue()
            if self.o.get("twe"):
                for c in tw: c()
            if not g: I(f"s_branch {lj}")
        def skip_path():
            keep = self.save(); tctx = self.tctx; th = self.th; wt = dict(self.wtok)
            a.L(LSK); self.restore(svd); self.ring_n = rnd
            I("s_cmp_lt_i32 s45, 0"); I(f"s_cbranch_scc1 {LS1}")
            rf[7][0]()
            for f in pv(0, R2[:8], 0): f()
            a.L(LS1)
            for c, _ in setup_ + ts2 + lsum() + self.tail_valu(): c()
            l1 = a.label("SG1"); I(f"s_cmp_eq_u32 s{SG}, 1"); I(f"s_cbranch_scc1 {l1}")
            for g in (0, 1):
                if g: a.L(l1)
                for i in range(8): osend(g, i)[0]()
                I(f"s_branch {LMG[g]}")
            self.restore(keep); self.tctx = tctx; self.th = th; self.wtok = wt
        a.L(lj)
        I("s_setprio 0")
        self.stamp(4)
        def cold():
            skip_path()
            site_code()
            for (lo, lb, body) in ool:
                a.L(lo); body(); I(f"s_branch {lb}")
            for (lr, lb, sb, other) in rare:
                a.L(lr)
                I("s_nop 15")
                rowmax(sb)
                for q in range(2): I(f"v_add_f32 v{TMP+q}, {f2u(BIAS)}, v{TMP+q}"); I(f"v_max_f32 v{TMP+q}, 0, v{TMP+q}"); I(f"v_exp_f32 v{TMP+2+q}, -v{TMP+q}")
                for r in range(8): I(f"v_sub_f32 v{NM+r}, v{NM+r}, v{TMP+(r>>2)}")
                for r in range(16): I(f"v_sub_f32 v{S[sb]+r}, v{S[sb]+r}, v{TMP+(r>>3)}")
                if other:
                    for r in range(16): I(f"v_sub_f32 v{S[1-sb]+r}, v{S[1-sb]+r}, v{TMP+(r>>3)}")
                for r in range(64): I(f"v_mul_f32 v{O+r}, v{O+r}, v{TMP+2+((r>>3)&1)}")
                for r in range(8): I(f"v_mul_f32 v{LS+r}, v{LS+r}, v{TMP+2+(r>>2)}")
                for c, _ in sm_ops(sb): c()
                I("s_nop 1"); I(f"s_branch {lb}")
        self.attn_rare = cold

    HB = 65536; HC = 4416; XB = 136192; YB = 148480
    SC, SJ, SB, SCH, SHB_, SWO, SCX = 34, 35, 36, 37, 38, 39, 40
    WS_ = [16, 24, 32, 40, 176, 184, 48, 56] + list(range(80, 144, 8))
    def tail_setup(self):
        I = self.I; L = []; E = lambda t: L.append((lambda: I(t), 4))
        SC, SJ, SB, SCH, SHB_, SWO, SCX = self.SC, self.SJ, self.SB, self.SCH, self.SHB_, self.SWO, self.SCX
        self.wtok = {}; self.wslot = dict(enumerate(self.WS_))
        E(f"s_lshr_b32 s{SC}, s{SW}, 2"); E(f"s_and_b32 s{SJ}, s{SW}, 3")
        E(f"s_lshl_b32 s{SCH}, s{SF}, 1"); E(f"s_add_u32 s{SCH}, s{SCH}, s{SC}"); E(f"s_lshl_b32 s{SCH}, s{SCH}, 12")
        E(f"s_lshl_b32 s60, s{SJ}, 10"); E("v_add_u32 v50, s60, v6"); E("v_subrev_u32 v51, 16, v50")
        E(f"s_lshl_b32 s63, s{SW}, 18"); E(f"s_lshl_b32 s62, s{SF}, 5"); E("s_add_u32 s63, s63, s62"); E(f"s_add_u32 s63, s63, {KVT_OFF}")
        E("v_lshrrev_b32 v48, 1, v0"); E("v_and_b32 v158, 1, v0" if False else "v_and_b32 v3, 1, v0"); E("v_lshlrev_b32 v49, 13, v48"); E("v_lshl_add_u32 v49, v3, 4, v49")
        def ld(t):
            def f(): I(t); self.th = self.vm.issue()
            L.append((f, 16))
        ld(f"buffer_load_dwordx4 {v(160,4)}, v51, s[{RB}:{RB+3}], s{SCH} offen")
        ld(f"buffer_load_dwordx4 {v(164,4)}, v50, s[{RB}:{RB+3}], s{SCH} offen")
        ld(f"buffer_load_dwordx4 {v(168,4)}, v49, s[{RWS}:{RWS+3}], s63 offen{self.ld}")
        E(f"s_lshl_b32 s{SWO}, s57, 19"); E(f"s_lshl_b32 s60, s{SW}, 15"); E(f"s_add_u32 s{SWO}, s{SWO}, s60"); E(f"s_add_u32 s{SWO}, s{SWO}, {WOT_OFF}")
        E("s_and_b32 s60, s56, 1"); E("s_lshl_b32 s60, s60, 18"); E(f"s_add_u32 s{SWO}, s{SWO}, s60")
        TR_ = self.o.get("trot", 1)
        if TR_ == 0: E("s_mov_b32 s58, 0")
        elif TR_ == 1: E("s_mov_b32 s58, s57")
        else: E("s_and_b32 s58, s56, 6"); E("s_add_u32 s58, s58, s57")
        def w1(i, mt):
            if mt == 0 and i % 2 == 0: self.wadr(i)
            I(f"buffer_load_dwordx4 {v(self.WS_[i]+4*mt,4)}, v6, s[{RWS}:{RWS+3}], s59 offen offset:{(i&1)*2048+mt*1024}{self.ld}"); self.wtok[i] = self.vm.issue()
        L2 = [(lambda i=i, mt=mt: w1(i, mt), 16) for i in range(self.o.get("we", 6)) for mt in range(2)]
        L3 = []; L, Lx = L3, L
        E = lambda t: L3.append((lambda: I(t), 4))
        E(f"s_mul_i32 s{SB}, s{SC}, 6144"); E(f"s_add_u32 s{SB}, s{SB}, {self.XB}")
        E(f"s_mul_i32 s{SHB_}, s{SC}, {8*self.HC}"); E(f"s_add_u32 s{SHB_}, s{SHB_}, {self.HB}")
        E(f"s_xor_b32 s{SCX}, s56, 1"); E(f"s_lshl_b32 s{SCX}, s{SCX}, 19"); E(f"s_lshl_b32 s60, s{SW}, 14"); E(f"s_add_u32 s{SCX}, s{SCX}, s60"); E(f"s_add_u32 s{SCX}, s{SCX}, {CTX_OFF}")
        E("s_and_b32 s60, s56, 1"); E("s_lshl_b32 s60, s60, 17"); E(f"s_add_u32 s{SCX}, s{SCX}, s60")
        return Lx, L2, L3
    def wreg(self, i):
        return self.WS_[i % len(self.WS_)]
    def wload(self, i):
        I = self.I; r = self.wslot[i]
        I(f"s_add_u32 s61, s{self.SWO}, {i*2048}")
        for mt in range(2):
            I(f"buffer_load_dwordx4 {v(r+4*mt,4)}, v6, s[{RWS}:{RWS+3}], s61 offen offset:{mt*1024}{self.ld}"); self.wtok[i] = self.vm.issue()
    def wadr(self, i):
        I = self.I
        I(f"s_add_u32 s59, s58, {i >> 1}"); I("s_and_b32 s59, s59, 7"); I("s_lshl_b32 s59, s59, 12"); I(f"s_add_u32 s59, s59, s{self.SWO}")
    def tail_valu(self):
        I = self.I; HC = self.HC; L = []; E = lambda t: L.append((lambda: I(t), 4))
        SJ, SB, SHB_ = self.SJ, self.SB, self.SHB_
        Ee, Eo, Oe, Oo = 160, 113, 122, 131
        E(f"s_add_u32 s60, s{SHB_}, 64"); E("v_add_u32 v138, s60, v50")
        E("v_and_b32 v51, 3, v48"); E("v_mul_u32_u24 v139, 1536, v51"); E("v_lshrrev_b32 v53, 2, v48"); E("v_lshl_add_u32 v139, v53, 4, v139")
        E("v_and_b32 v53, 1, v0"); E("v_mul_u32_u24 v53, 6144, v53"); E(f"s_lshl_b32 s60, s{SW}, 7"); E(f"s_add_u32 s60, s60, {self.XB + 512}"); E("v_add3_u32 v139, v139, v53, s60")
        E("v_and_b32 v51, 3, v0")
        for r in range(2): E(f"v_mov_b64 {v(172+2*r,2)}, 0")
        E("v_bfe_u32 v140, v0, 2, 3"); E(f"v_mul_u32_u24 v140, {HC}, v140"); E("v_lshl_add_u32 v140, v51, 4, v140"); E(f"v_add_u32 v140, s{SHB_}, v140")
        E(f"s_mul_i32 s60, s{SJ}, 1536"); E(f"s_add_u32 s60, s60, s{SB}"); E("v_lshl_add_u32 v141, v0, 3, s60")
        L.append((lambda: self.vm.wait(self.th - 1), 4))
        for k in range(7): E(f"v_alignbit_b32 v{Oe+k}, v{Ee+k+1}, v{Ee+k}, 16")
        for k in range(1, 7): E(f"v_alignbit_b32 v{Oo+k}, v{Ee+k+1}, v{Ee+k}, 16")
        for k in range(1, 7): E(f"v_mov_b32 v{Eo+k}, v{Ee+k}")
        return L
    def tail_writes(self):
        I = self.I; lg = self.lg; HC = self.HC; L = []
        Ee, Eo, Oe, Oo = 160, 113, 122, 131
        def W(t, pre=None):
            def f():
                if pre: pre()
                I(t); lg.issue()
            L.append(f)
        for r in range(8):
            sft = 1 + r; k = sft >> 1
            base = ((Oe, Oo) if sft & 1 else (Ee, Eo))[k & 1]
            W(f"ds_write_b128 v138, {v(base+k,4)} offset:{r*HC}")
        W(f"ds_write_b128 v140, {v(172,4)}"); W(f"ds_write_b64 v141, {v(172,2)}")
        W(f"ds_write_b128 v139, {v(168,4)}", lambda: self.vm.wait(self.th))
        return L
    def tailp(self):
        a = self.a; I = self.I; vm = self.vm; lg = self.lg
        HB, HC, YB = self.HB, self.HC, self.YB
        SC, SJ, SB, SCH, SHB_, SWO, SCX = self.SC, self.SJ, self.SB, self.SCH, self.SHB_, self.SWO, self.SCX
        ACC = 192; FRS = [224, 240, 64]; RD_ = 224; OACC = 192; YT = self.XB
        VL16, VA, VB, T, VP, VPA, VO, GR, VW1 = 6, 4, 5, 12, 7, 8, 9, 10, 11
        WSL = self.WS_; CSL = [144, 152, 160, 168, 64, 72]
        assert len(WSL) == 16
        I(f"s_lshr_b32 s53, s56, 1"); I("s_lshl_b32 s53, s53, 10"); I("s_and_b32 s44, s56, 1"); I("s_lshl_b32 s44, s44, 9"); I("s_add_u32 s53, s53, s44")
        I(f"s_lshr_b32 s44, s{SW}, 1"); I("s_lshl_b32 s44, s44, 7"); I("s_add_u32 s53, s53, s44"); I(f"s_and_b32 s44, s{SW}, 1"); I("s_lshl_b32 s44, s44, 3")
        I("s_add_u32 s53, s53, s44"); I(f"s_add_u32 s53, s53, {FC_OFF}")
        I(f"v_and_b32 v{VPA}, 1, v0"); I(f"v_lshlrev_b32 v{VPA}, 2, v{VPA}")
        PUBN = self.o.get("pubn", 4)
        I(f"s_lshr_b32 s45, s{SHEAD}, 2"); I("s_lshl_b32 s45, s45, 7"); I(f"s_and_b32 s44, s{SHEAD}, 3"); I("s_lshl_b32 s44, s44, 2"); I("s_add_u32 s45, s45, s44")
        I(f"s_sub_u32 s44, 15, s{SIDX}"); I("s_lshl_b32 s44, s44, 10"); I("s_add_u32 s46, s44, s45"); I(f"s_add_u32 s46, s46, {FC_OFF}")
        I(f"s_lshl_b32 s44, s{SIDX}, 10"); I("s_add_u32 s47, s44, s45"); I(f"s_add_u32 s47, s47, {FC_OFF}")
        self.srd(RC, "out", 2*MB); self.srd(RD, "q", 2*MB)
        I(f"s_lshl_b32 s44, s{SF}, 2"); I(f"s_load_dword s55, s[{P['ssmD']}:{P['ssmD']+1}], s44")
        I(f"v_and_b32 v{T}, 15, v0"); I(f"v_lshrrev_b32 v{T+1}, 4, v0")
        I(f"v_and_b32 v{T+2}, 7, v0"); I(f"v_mul_u32_u24 v{VA}, {HC}, v{T+2}")
        I(f"v_bfe_u32 v{T+2}, v0, 3, 1"); I(f"v_sub_u32 v{T+2}, v{T+2}, v{T+1}"); I(f"v_lshl_add_u32 v{VA}, v{T+2}, 4, v{VA}")
        I(f"s_lshl_b32 s43, s{SJ}, 8"); I(f"s_add_u32 s43, s43, s{SHB_}"); I("s_add_u32 s43, s43, 64"); I(f"v_add_u32 v{VA}, s43, v{VA}")
        I(f"s_lshl_b32 s43, s{SJ}, 6"); I(f"s_sub_u32 s43, s{SB}, s43"); I(f"s_add_u32 s43, s43, {(32-3)*16}")
        I(f"v_lshl_add_u32 v{VB}, v{T}, 4, s43"); I(f"v_mul_u32_u24 v{T+2}, 1536, v{T+1}"); I(f"v_add_u32 v{VB}, v{VB}, v{T+2}")
        I(f"s_lshl_b32 s51, s{SW}, 13"); I(f"s_xor_b32 s52, s{SCX}, 0x80000")
        I("s_waitcnt lgkmcnt(0)"); lg.mark_all_done(); self.barrier()
        self.stamp(5)
        wtok = dict(self.wtok); ctok = {}; cslot = dict(enumerate(CSL))
        def wload(k):
            if k % 2 == 0: self.wadr(k)
            for mt in range(2):
                I(f"buffer_load_dwordx4 {v(WSL[k]+4*mt,4)}, v{VL16}, s[{RWS}:{RWS+3}], s59 offen offset:{(k&1)*2048+mt*1024}{self.ld}"); wtok[k] = vm.issue()
        def cload(i):
            I(f"s_add_u32 s62, s58, {i & 7}"); I("s_and_b32 s62, s62, 7"); I("s_lshl_b32 s62, s62, 11"); I(f"s_add_u32 s62, s62, s{52 if i >= 16 else SCX}")
            if i & 8: I("s_add_u32 s62, s62, 0x40000")
            for qt in range(2):
                I(f"buffer_load_dwordx4 {v(cslot[i]+4*qt,4)}, v{VL16}, s[{RWS}:{RWS+3}], s62 offen offset:{qt*1024}{self.ld}"); ctok[i] = vm.issue()
        wl = [k for k in range(16) if k not in wtok]
        BS = [224, 240]; AS = list(range(160, 176, 4)) + list(range(64, 80, 4)); NA = len(AS)
        seq = [(dd, m, bt) for dd in range(4) for (m, bt) in ((0, 0), (3, 0), (0, 1), (3, 1), (1, 0), (2, 0), (1, 1), (2, 1))]
        atok = {}; btok = {}
        def rda(n):
            if n >= len(seq): return
            dd, m, bt = seq[n]
            I(f"ds_read_b128 {v(AS[n % NA],4)}, v{VA} offset:{64*dd + 1024*m + 32*bt}"); atok[n] = lg.issue()
        def rdb(dd, n):
            if dd >= 4: return
            I(f"ds_read_b128 {v(BS[dd & 1]+4*n,4)}, v{VB} offset:{(3-dd)*16 + 256*n}"); btok[(dd, n)] = lg.issue()
        rda(0)
        for n in range(4): rdb(0, n)
        for n in range(1, NA - 1): rda(n)
        seen = set()
        for n, (dd, m, bt) in enumerate(seq):
            for nn in range(4 - m):
                lg.wait(max(atok[n], btok[(dd, nn)]))
                key = (m + nn, bt); d = v(ACC + 8*key[0] + 4*bt, 4)
                I(f"v_mfma_f32_16x16x32_bf16 {d}, {v(AS[n % NA],4)}, {v(BS[dd & 1]+4*nn,4)}, {d if key in seen else '0'}"); seen.add(key)
                if nn == 0:
                    rda(n + NA - 1)
                    if 1 <= (n & 7) <= 4: rdb(dd + 1, (n & 7) - 1)
            if n & 1:
                h_ = n >> 1
                if h_ == PUBN:
                    vm.wait(self.tctx); self.barrier(); self.publish(46); self.publish(47)
                if h_ >= self.o.get("wst", 2) and len(wl) > self.o.get("wkeep", 2): wload(wl.pop(0))
                if h_ == self.o.get("p1", 12): tc1 = self.poll_issue(VP, VPA, "s53")
        I(f"v_add_u32 v{T+2}, s51, v{VL16}")
        for i in range(8):
            I(f"ds_write_b128 v{T+2}, {v(ACC+4*i,4)} offset:{1024*i}"); lg.issue()
        while wl: wload(wl.pop(0))
        I(f"s_lshl_b32 s43, s{SC}, 15"); I(f"s_lshl_b32 s44, s{SJ}, 11"); I("s_add_u32 s43, s43, s44"); I(f"v_add_u32 v{T+2}, s43, v{VL16}")
        I(f"s_lshl_b32 s44, s{SJ}, 8"); I(f"s_add_u32 s44, s44, s{SB}"); I("s_add_u32 s44, s44, 520")
        I(f"v_lshl_add_u32 v{T+3}, v{T}, 4, s44"); I(f"v_and_b32 v{VA}, 1, v{T+1}"); I(f"v_lshlrev_b32 v{VA}, 3, v{VA}"); I(f"v_sub_u32 v{T+3}, v{T+3}, v{VA}")
        I(f"v_lshrrev_b32 v{VA}, 1, v{T+1}"); I(f"v_mul_u32_u24 v{VA}, 1536, v{VA}"); I(f"v_add_u32 v{T+3}, v{T+3}, v{VA}")
        I(f"v_lshlrev_b32 v{VB}, 6, v{T}"); I(f"v_lshl_add_u32 v{VB}, v{T+1}, 3, v{VB}")
        I(f"s_add_u32 s45, s{SWK}, {YB}"); I(f"v_add_u32 v{VB}, s45, v{VB}")
        I("s_lshl_b32 s43, s55, 16"); I("s_and_b32 s44, s55, 0xffff0000"); I(f"s_cmp_eq_u32 s{SC}, 0"); I("s_cselect_b32 s55, s43, s44")
        lg.wait(lg.issued); self.barrier()
        self.stamp(12)
        for p in range(4):
            for gq in range(2):
                I(f"ds_read_b128 {v(RD_+8*p+4*gq,4)}, v{T+2} offset:{8192*p+1024*gq}"); lg.issue()
        for gq in range(2):
            I(f"ds_read_b64 {v(ACC+2*gq,2)}, v{T+3} offset:{3072*gq}"); lg.issue()
        le = a.label("NE")
        vm.wait(tc1); I(f"v_and_b32 v{VP}, 1, v{VP}"); I(f"v_cmp_ne_u32 vcc, 1, v{VP}"); I("s_mov_b32 s50, 0"); I(f"s_cbranch_vccnz {le}")
        sv = self.save(); I("s_mov_b32 s50, 1")
        for i in range(len(CSL)): cload(i)
        self.restore(sv); a.L(le)
        lg.wait(lg.issued)
        for i in range(0, 8, 2):
            I(f"v_pk_add_f32 {v(RD_+i,2)}, {v(RD_+i,2)}, {v(RD_+8+i,2)}"); I(f"v_pk_add_f32 {v(RD_+16+i,2)}, {v(RD_+16+i,2)}, {v(RD_+24+i,2)}")
        for i in range(0, 8, 2): I(f"v_pk_add_f32 {v(RD_+i,2)}, {v(RD_+i,2)}, {v(RD_+16+i,2)}")
        for gq in range(2):
            for r in range(4):
                srcr = ACC + 2*gq + (1 - (r >> 1))
                I(f"v_lshlrev_b32 v{ACC+8}, 16, v{srcr}" if r & 1 else f"v_and_b32 v{ACC+8}, 0xffff0000, v{srcr}")
                I(f"v_fma_f32 v{RD_+4*gq+r}, v{ACC+8}, s55, v{RD_+4*gq+r}")
        for i in range(4): I(f"v_cvt_pk_bf16_f32 v{ACC+12+i}, v{RD_+2*i}, v{RD_+2*i+1}")
        for gq in range(2):
            I(f"ds_write_b64 v{VB}, {v(ACC+12+2*gq,2)} offset:{32*gq}"); lg.issue()
        I(f"v_and_b32 v{T+2}, 15, v0"); I(f"v_lshrrev_b32 v{T+1}, 4, v0"); I(f"v_lshlrev_b32 v{T+1}, 1, v{T+1}"); I(f"v_xor_b32 v{T+1}, v{T+1}, v{T+2}"); I(f"v_lshlrev_b32 v{T+1}, 4, v{T+1}")
        I(f"v_lshl_add_u32 v{VA}, v{T+2}, 8, v{T+1}"); I(f"v_add_u32 v{VA}, s51, v{VA}")
        I(f"s_lshr_b32 s48, s{SW}, 1"); I("s_lshl_b32 s48, s48, 4"); I(f"s_and_b32 s41, s{SW}, 1"); I("s_lshl_b32 s42, s41, 3")
        I(f"v_lshrrev_b32 v{T}, 4, v0"); I(f"v_lshl_add_u32 v{T+1}, v{T}, 1, s42"); I(f"v_xor_b32 v{T+1}, v{T+1}, v{T+2}"); I(f"v_lshlrev_b32 v{T+1}, 4, v{T+1}")
        I("s_and_b32 s43, s48, 16"); I(f"v_add_u32 v{T+3}, s43, v{T+2}"); I(f"v_lshl_add_u32 v{VW1}, v{T+3}, 8, v{T+1}")
        I("s_lshr_b32 s43, s48, 5"); I("s_lshl_b32 s43, s43, 16"); I(f"v_add_u32 v{VW1}, s43, v{VW1}")
        lg.wait(lg.issued); I(f"v_xor_b32 v{VB}, 16, v{VW1}"); self.barrier()
        ly = a.label("NY")
        I(f"s_cmp_lg_u32 s{SW}, 0"); I(f"s_cbranch_scc1 {ly}")
        I(f"v_add_u32 v{T}, {YB}, v{VL16}")
        for i in range(8): I(f"ds_read_b128 {v(RD_+4*i,4)}, v{T} offset:{1024*i}")
        I(f"s_lshl_b32 s44, s{SF}, 13"); I(f"s_add_u32 s44, s44, {YT_OFF}"); I("s_add_u32 s45, s44, 4096")
        I("s_waitcnt lgkmcnt(0)")
        for i in range(8): I(f"buffer_store_dwordx4 {v(RD_+4*i,4)}, v{VL16}, s[{RWS}:{RWS+3}], s{44+(i>>2)} offen offset:{1024*(i&3)}{self.st}")
        a.L(ly)
        ll = a.label("NL")
        I("s_cmp_eq_u32 s50, 1"); I(f"s_cbranch_scc1 {ll}")
        self.poll_check(VP, VPA, "s53", 1)
        for i in range(len(CSL)): cload(i)
        a.L(ll)
        self.stamp(6)
        def put_ops(st):
            L = []
            for mt in range(4):
                def f(mt=mt):
                    I(f"v_xor_b32 v{T+3}, {(8*(mt>>1)+(mt&1))*16 + 0x10000*st}, v{VA}")
                    for qt in range(2):
                        I(f"ds_write_b128 v{T+3}, {v(OACC+32*st+8*mt+4*qt,4)} offset:{4096*qt}"); lg.issue()
                L.append(f)
            return L
        def sum_partials(mid=None):
            tk = []
            for p in range(8):
                for hh in range(2):
                    I(f"ds_read_b128 {v(OACC+8*p+4*hh,4)}, v{(VW1, VB)[hh]} offset:{8192*p}"); lg.issue()
                tk.append(lg.issued)
                if p == 5 and mid: mid()
            for p in range(1, 8):
                lg.wait(tk[p])
                for e in range(0, 8, 2): I(f"v_pk_add_f32 {v(OACC+e,2)}, {v(OACC+e,2)}, {v(OACC+8*p+e,2)}")
        ymark = vm.issued; ypub = False; pm = {}; ppub = False; free = []; nc = len(CSL); XR = WSL[0]; PR_ = WSL[1]
        TS = [OACC + 32 + 8*n for n in range(4)]; ptk = {}
        def prd(p):
            r = TS[0] if p == 0 else TS[1 + (p - 1) % 3]
            for hh in range(2):
                I(f"ds_read_b128 {v(r+4*hh,4)}, v{(VW1, VB)[hh]} offset:{8192*p}"); ptk[p] = lg.issue()
        def padd(p):
            lg.wait(ptk[p]); r = TS[1 + (p - 1) % 3]
            for e in range(0, 8, 2): I(f"v_pk_add_f32 {v(TS[0]+e,2)}, {v(TS[0]+e,2)}, {v(r+e,2)}")
            if p + 3 < 8: prd(p + 3)
        def pst():
            I(f"s_lshl_b32 s44, s{SF}, 14"); I(f"s_lshl_b32 s45, s{SW}, 11"); I("s_add_u32 s54, s44, s45"); I(f"s_add_u32 s54, s54, {PP_OFF}")
            for hh in range(2):
                I(f"buffer_store_dwordx4 {v(TS[0]+4*hh,4)}, v{VL16}, s[{RWS}:{RWS+3}], s54 offen offset:{1024*hh}{self.st}"); pm["t"] = vm.issue()
        B1 = self.o.get("b1", 18); PS = self.o.get("ps", 21)
        for i2 in range(0, 32, 2):
            st = (i2 >> 3) & 1; J = i2 & 7; fill = []
            if i2 in (8, 24): fill = put_ops(0)
            if i2 == 16: fill = put_ops(1)
            if i2 == 24: self.barrier()
            if i2 == B1:
                lg.wait(lg.issued); self.barrier()
                for p in range(4): prd(p)
                fill = [lambda p=p: padd(p) for p in range(1, 8)]
                I(f"s_lshl_b32 s53, s57, 7"); I(f"s_lshl_b32 s42, s{SW}, 4"); I("s_add_u32 s53, s53, s42"); I(f"s_add_u32 s53, s53, {FY_OFF}")
                I(f"v_and_b32 v{VPA}, 3, v0"); I(f"v_lshlrev_b32 v{VPA}, 2, v{VPA}")
                tf = self.poll_issue(VP, VPA, "s53")
            if i2 == 26:
                I(f"v_and_b32 v{T+1}, 15, v0"); I(f"s_lshl_b32 s45, s56, 6"); I("s_add_u32 s45, s45, s48"); I(f"v_add_u32 v{T+1}, s45, v{T+1}")
                I(f"v_lshlrev_b32 v{T+2}, 2, v{T+1}"); I(f"s_mov_b32 s45, {G_OFF}")
                I(f"buffer_load_dword v{GR}, v{T+2}, s[{RWS}:{RWS+3}], s45 offen{self.ld}"); vm.issue()
                I(f"v_lshrrev_b32 v{T+2}, 4, v0"); I(f"v_lshlrev_b32 v{T+2}, 4, v{T+2}"); I(f"v_lshl_add_u32 v{VO}, v{T+1}, 10, v{T+2}")
                I("s_lshl_b32 s49, s41, 6"); I(f"s_lshl_b32 s45, s57, 7"); I("s_add_u32 s49, s49, s45")
                I(f"buffer_load_dwordx4 {v(XR,4)}, v{VO}, s[{RD}:{RD+3}], s49 offen"); vm.issue()
                vm.wait(tf); self.poll_check(VP, VPA, "s53", 1)
                I(f"v_lshrrev_b32 v{T}, 3, v0"); I(f"v_and_b32 v{T+1}, 7, v0"); I(f"v_lshlrev_b32 v{T+1}, 4, v{T+1}")
                I(f"v_lshl_add_u32 v{T}, v{T}, 12, v{T+1}")
                I(f"s_add_u32 m0, s{SWK}, {YT}")
                I(f"s_lshl_b32 s44, s57, 18"); I(f"s_lshl_b32 s45, s{SW}, 15"); I("s_add_u32 s44, s44, s45")
                I(f"s_lshl_b32 s45, s56, 7"); I("s_add_u32 s44, s44, s45"); I(f"s_add_u32 s44, s44, {YT_OFF}")
                I(f"buffer_load_dwordx4 v{T}, s[{RWS}:{RWS+3}], s44 offen{self.ld} lds"); vm.issue()
            vm.wait(max(ctok[i2+1], wtok[2*J+3]))
            if not ypub and vm.done > ymark:
                ypub = True; I(f"s_lshl_b32 s44, s{SF}, 2"); I(f"s_add_u32 s44, s44, {FY_OFF}"); self.publish(44, 3)
            if pm and not ppub and vm.done >= pm["t"]:
                ppub = True
                I(f"s_lshl_b32 s44, s{SF}, 7"); I(f"s_lshl_b32 s45, s{SW}, 2"); I("s_add_u32 s44, s44, s45"); I(f"s_add_u32 s44, s44, {FP_OFF}")
                I("v_mov_b32 v2, 1"); I("v_mov_b32 v3, 0"); I(f"buffer_store_dword v2, v3, s[{RWS}:{RWS+3}], s44 offen sc1"); vm.issue()
            if i2 == 30:
                I(f"s_xor_b32 s53, s{SF}, 32"); I("s_lshl_b32 s53, s53, 7"); I(f"s_lshl_b32 s42, s{SW}, 2"); I("s_add_u32 s53, s53, s42"); I(f"s_add_u32 s53, s53, {FP_OFF}")
                I(f"v_mov_b32 v{VPA}, 0")
                if self.o.get("pe"): tp = self.poll_issue(VP, VPA, "s53")
            M = []
            for mt in range(4):
                for qt in range(2):
                    for u in range(2):
                        d = v(OACC + 32*st + 8*mt + 4*qt, 4)
                        M.append(lambda d=d, mt=mt, qt=qt, u=u: I(f"v_mfma_f32_16x16x32_bf16 {d}, {v(WSL[2*(J+u) + (mt >> 1)]+4*(mt & 1),4)}, {v(cslot[i2+u]+4*qt,4)}, {'0' if J + u == 0 else d}"))
            self.stream(M, [(1, 16, fill)] if fill else [])
            free += [cslot[i2], cslot[i2+1]]
            while free and nc < 32:
                cslot[nc] = free.pop(0); cload(nc); nc += 1
            if i2 + 1 == PS or i2 == PS: pst()
        assert ypub and ppub
        self.stamp(7)
        if not self.o.get("pe"):
            tp = self.poll_issue(VP, VPA, "s53")
            for f in put_ops(1): f()
        vm.wait(tp); self.poll_check(VP, VPA, "s53", 1)
        if self.o.get("ostamp"): self.stamp(20)
        I("s_xor_b32 s54, s54, 0x80000")
        for hh in range(2):
            I(f"buffer_load_dwordx4 {v(PR_+4*hh,4)}, v{VL16}, s[{RWS}:{RWS+3}], s54 offen offset:{1024*hh}{self.ld}"); tpp = vm.issue()
        if self.o.get("pe"):
            for f in put_ops(1): f()
        I(f"v_lshrrev_b32 v{T}, 4, v0"); I("s_lshl_b32 s42, s41, 5"); I(f"v_lshl_add_u32 v{T}, v{T}, 3, s42"); I(f"v_bfe_u32 v{T+1}, v0, 2, 2")
        I(f"v_add_u32 v{T}, v{T}, v{T+1}"); I(f"v_lshlrev_b32 v{T}, 7, v{T}"); I(f"v_and_b32 v{T+1}, 3, v0")
        I(f"v_lshl_add_u32 v{T}, v{T+1}, 3, v{T}"); I("s_lshl_b32 s42, s48, 1"); I(f"s_add_u32 s42, s42, {YT}"); I(f"v_add_u32 v{T}, s42, v{T}")
        lg.wait(lg.issued); self.barrier()
        I(f"ds_read_b64_tr_b16 {v(100,2)}, v{T}"); lg.issue()
        I(f"ds_read_b64_tr_b16 {v(102,2)}, v{T} offset:512"); ty2 = lg.issue()
        def mix():
            lg.wait(ty2)
            for e in range(8):
                if e & 1: I(f"v_and_b32 v104, 0xffff0000, v{XR+(e>>1)}"); I(f"v_and_b32 v105, 0xffff0000, v{100+(e>>1)}")
                else: I(f"v_lshlrev_b32 v104, 16, v{XR+(e>>1)}"); I(f"v_lshlrev_b32 v105, 16, v{100+(e>>1)}")
                I(f"v_mul_f32 v{112+e}, v104, v105"); I(f"v_mul_f32 v{112+e}, v{112+e}, v{GR}")
            I(f"v_sub_f32 v{GR}, 1.0, v{GR}")
        sum_partials(mix)
        vm.wait(tpp)
        for e in range(0, 8, 2): I(f"v_pk_add_f32 {v(OACC+e,2)}, {v(OACC+e,2)}, {v(PR_+e,2)}")
        for e in range(8): I(f"v_fmac_f32 v{112+e}, v{OACC+4*(e&1)+(e>>1)}, v{GR}")
        for e in range(4): I(f"v_cvt_pk_bf16_f32 v{108+e}, v{112+2*e}, v{112+2*e+1}")
        I(f"buffer_store_dwordx4 {v(108,4)}, v{VO}, s[{RC}:{RC+3}], s49 offen sc1"); vm.issue()
        self.stamp(16)
        if self.o.get("echo"):
            lp = a.label("EC")
            I("s_sub_u32 s100, s100, s96")
            if self.o.get("cyc"): I("s_lshr_b32 s100, s100, 4")
            I("s_memrealtime s[96:97]"); I("s_waitcnt lgkmcnt(0)")
            a.L(lp)
            I("s_memrealtime s[98:99]"); I("s_waitcnt lgkmcnt(0)"); I("s_sub_u32 s98, s98, s96"); I("s_cmp_lt_u32 s98, s100"); I(f"s_cbranch_scc1 {lp}")
        if self.o.get("dbgout") is not None:
            l = a.label("DB")
            I(f"s_cmp_lg_u32 s2, {self.o['dbgout']}"); I(f"s_cbranch_scc1 {l}"); I(f"s_cmp_lg_u32 s{SW}, 0"); I(f"s_cbranch_scc1 {l}")
            I("s_waitcnt vmcnt(0)")
            order = [0, 1, 2, 3, 8, 10, 11, 4, 5, 12, 6, 7, 16]
            I("v_mov_b32 v20, 0")
            for j, i in enumerate(order):
                I(f"s_mov_b32 s44, {4*i}"); I(f"v_writelane_b32 v20, s44, {j}")
            I(f"s_lshl_b32 s44, s2, 11"); I(f"s_add_u32 s44, s44, {STAMP_OFF}")
            I(f"buffer_load_dword v21, v20, s[{RWS}:{RWS+3}], s44 offen sc1"); I("s_waitcnt vmcnt(0)")
            I("v_readfirstlane_b32 s45, v21"); I("v_subrev_u32 v21, s45, v21")
            self.srd(RDBG, "dbg", 64); I("v_lshlrev_b32 v22, 2, v0")
            I(f"buffer_store_dword v21, v22, s[{RDBG}:{RDBG+3}], 0 offen")
            a.L(l)

def build(opts):
    g = G(opts); k = NAME + "_kernel"
    g.begin(k); g.a.T("; MARK p"); g.proj(); g.a.T("; MARK a"); g.attn(); g.a.T("; MARK t"); g.tailp(); g.end(); g.a.T("; MARK a"); g.attn_rare(); g.a.T("; MARK t"); g.a.L("CODE_END"); g.a.I("s_endpgm")
    n = g.a.fix_hazards()
    txt = "; @launch grid=(256,1,1) block=(512,1,1) lds=163840\n"
    txt += '.amdgcn_target "amdgcn-amd-amdhsa--gfx950"\n.text\n' + g.a.text()
    txt += f""".section .rodata,"a"
.p2align 6
.amdhsa_kernel {k}
  .amdhsa_next_free_vgpr 256
  .amdhsa_next_free_sgpr 102
  .amdhsa_accum_offset 256
  .amdhsa_group_segment_fixed_size 0
  .amdhsa_kernarg_size 128
  .amdhsa_user_sgpr_count 2
  .amdhsa_user_sgpr_kernarg_segment_ptr 1
  .amdhsa_system_sgpr_workgroup_id_x 1
.end_amdhsa_kernel
"""
    print(f"instructions {sum(1 for it in g.a.items if it[0] == 'i')}, nops inserted {n}", file=sys.stderr)
    return txt

if __name__ == "__main__":
    opts = {}
    for x in sys.argv[2:]:
        if "=" in x: k_, v_ = x.split("="); opts[k_] = int(v_)
        else: opts[x] = True
    open(sys.argv[1], "w").write(build(opts))
```

```python
import sys, math, struct
sys.path.insert(0, "gen")
from asmlib import *

NAME = "gated_mix__ssm_conv_h3__compressed_kv_cla__prompt"
MB = 1 << 20
KV_OFF, Q_OFF, CTX_OFF, KVT_OFF, YT_OFF, G_OFF = 0, 32*MB, 48*MB, 64*MB, 66*MB, 68*MB
XC_OFF = 40*MB
PP_OFF = 40*MB
WOT_OFF = 32*MB
FLG_OFF = 68*MB + 65536
FK_OFF, FY_OFF, FC_OFF, FP_OFF = FLG_OFF, FLG_OFF + 4096, FLG_OFF + 8192, FLG_OFF + 32768
STAMP_OFF = 69*MB
WS_SIZE = 70*MB
P = dict(q=64, k=66, v=68, shift=70, ssmk=72, ssmD=74, bx=76, ckv=78, wq=80, wuk=82, wuv=84, wo=86, gate=88, out=90, dbg=92, ws=94)
SW, SHEAD, SIDX, SWK, SF = 3, 4, 5, 6, 7
RA, RB, RC, RWS, RD, RE, RT, RDBG = 8, 12, 16, 20, 24, 28, 56, 60
MFMA = "v_mfma_f32_32x32x16_bf16"
LOG2E = 1.4426950408889634
F_KV, F_CA, F_CB, F_Y = 1, 2, 4, 8
def f2u(x): return "0x%08x" % struct.unpack("<I", struct.pack("<f", x))[0]
def rep4(b): return b * 0x01010101

class G:
    def __init__(self, opts):
        self.a = Asm(); self.o = opts
        self.GSH, self.FSH = (8, 10) if opts.get("lin") else (11, 8)
        self.vm = Cnt(self.a, "vmcnt", 63); self.lg = Cnt(self.a, "lgkmcnt", 15)
        self.st = "" if opts.get("plainst") else (" sc1 nt" if opts.get("ntst") else " sc1"); self.ld = "" if opts.get("plainld") else " sc1"
    def I(self, t): self.a.I(t)
    def srd(self, r, ptr, nbytes):
        I = self.I
        I(f"s_mov_b32 s{r}, s{P[ptr]}"); I(f"s_mov_b32 s{r+1}, s{P[ptr]+1}")
        I(f"s_mov_b32 s{r+2}, {nbytes}"); I(f"s_mov_b32 s{r+3}, 0x00020000")
    def save(self): return (self.vm.issued, self.vm.done, self.lg.issued, self.lg.done)
    def restore(self, s_): self.vm.issued, self.vm.done, self.lg.issued, self.lg.done = s_
    def stream(self, mf, fills):
        n = len(mf); slots = [[] for _ in range(n + 1)]
        for (s0, e0, cl) in fills:
            m = e0 - s0
            for j, c in enumerate(cl): slots[s0 + 1 + (j * m) // len(cl)].append(c)
        for c in slots[0]: c()
        for i in range(n):
            mf[i]()
            for c in slots[i+1]: c()
    def stamp(self, i, dyn=None):
        if self.o.get("echo") == i:
            self.I("s_memtime s[100:101]" if self.o.get("cyc") else "s_memrealtime s[100:101]"); self.I("s_waitcnt lgkmcnt(0)")
        if not self.o.get("stamp"): return
        I = self.I
        I("s_memrealtime s[96:97]"); I("s_memtime s[100:101]")
        I("s_lshl_b32 s98, s2, 3"); I(f"s_add_u32 s98, s98, s{SW}"); I("s_lshl_b32 s98, s98, 8")
        I(f"s_add_u32 s98, s98, {STAMP_OFF + 4*i}")
        if dyn is not None:
            I(f"s_lshl_b32 s99, s{dyn}, 4"); I("s_add_u32 s98, s98, s99")
        I("s_waitcnt lgkmcnt(0)")
        I("v_mov_b32 v2, s96"); I("v_mov_b32 v3, 0")
        I(f"buffer_store_dword v2, v3, s[{RWS}:{RWS+3}], s98 offen")
        I("v_mov_b32 v2, s100")
        I(f"buffer_store_dword v2, v3, s[{RWS}:{RWS+3}], s98 offen offset:128")
    OOB = 0x40000000
    def publish(self, soff, val=1, srd=RWS, byte=False, idx=None):
        I = self.I
        self.oob_sel()
        if idx is not None: I(f"s_and_b32 s98, s{SIDX}, 3"); I(f"s_cmp_eq_u32 s98, {idx}"); I(f"s_cselect_b32 s99, s99, {self.OOB}")
        I(f"v_mov_b32 v2, {val}"); I("v_mov_b32 v3, s99")
        I(f"buffer_store_{'byte' if byte else 'dword'} v2, v3, s[{srd}:{srd+3}], s{soff} offen sc1"); self.vm.issue()
    def oob_sel(self):
        self.I(f"s_cmp_eq_u32 s{SW}, 0"); self.I(f"s_cselect_b32 s99, 0, {self.OOB}")
    def poll_issue(self, vd, vaddr, soff, srd=RWS):
        self.I(f"buffer_load_dword v{vd}, v{vaddr}, s[{srd}:{srd+3}], {soff} offen sc1"); return self.vm.issue()
    def poll_check(self, vd, vaddr, soff, want, srd=RWS):
        a = self.a; I = self.I
        l = a.label("PCK"); lp = a.label("POLL")
        I(f"s_mov_b32 s98, {want}"); I("s_mov_b32 s99, 20000")
        a.L(lp)
        I(f"v_and_b32 v{vd}, s98, v{vd}"); I(f"v_cmp_ne_u32 vcc, s98, v{vd}"); I(f"s_cbranch_vccz {l}")
        I("s_sleep 2")
        I(f"buffer_load_dword v{vd}, v{vaddr}, s[{srd}:{srd+3}], {soff} offen sc1")
        I("s_sub_u32 s99, s99, 1"); I("s_cmp_lg_u32 s99, 0"); I("s_waitcnt vmcnt(0)"); I(f"s_cbranch_scc1 {lp}")
        a.L(l)
    def phys(self, d, s_, t, E=None):
        I = E or self.I; p = self.o.get("hperm", 0)
        if p == 0: I(f"s_mov_b32 s{d}, s{s_}")
        elif p == 1: I(f"s_and_b32 s{t}, s{s_}, 3"); I(f"s_lshl_b32 s{t}, s{t}, 3"); I(f"s_lshr_b32 s{d}, s{s_}, 2"); I(f"s_or_b32 s{d}, s{d}, s{t}")
        else: I(f"s_mul_i32 s{t}, s{s_}, {p}"); I(f"s_and_b32 s{d}, s{t}, 31")
    def barrier(self): self.I("s_barrier")
    def sync_all(self):
        self.I("s_waitcnt vmcnt(0) lgkmcnt(0)"); self.vm.mark_all_done(); self.lg.mark_all_done(); self.barrier()

    def begin(self, kname):
        a = self.a; I = self.I
        a.T(f".globl {kname}\n.p2align 8\n.type {kname},@function"); a.L(kname)
        self.endl = a.label("END")
        if self.o.get("stamp"): I("s_memrealtime s[30:31]")
        if self.o.get("echo"): I("s_memtime s[96:97]" if self.o.get("cyc") else "s_memrealtime s[96:97]")
        I("s_load_dwordx16 s[64:79], s[0:1], 0"); I("s_load_dwordx16 s[80:95], s[0:1], 64")
        I("s_cmp_ge_u32 s2, 256"); I(f"s_cbranch_scc1 {self.endl}")
        I("v_lshrrev_b32 v1, 6, v0"); I("v_and_b32 v0, 63, v0"); I(f"v_readfirstlane_b32 s{SW}, v1")
        I("s_and_b32 s7, s2, 7"); I("s_lshl_b32 s7, s7, 2")
        I(f"s_lshr_b32 s{SIDX}, s2, 3"); I(f"s_lshr_b32 s{SHEAD}, s{SIDX}, 3"); I(f"s_add_u32 s{SHEAD}, s{SHEAD}, s7")
        I(f"s_and_b32 s{SIDX}, s{SIDX}, 7"); I(f"s_lshl_b32 s{SWK}, s{SW}, 10")
        I(f"s_lshl_b32 s{SF}, s{SHEAD}, 3"); I(f"s_add_u32 s{SF}, s{SF}, s{SIDX}")
    def end(self):
        self.a.L(self.endl); self.I("s_endpgm")

    def proj(self):
        a = self.a; I = self.I; vm = self.vm; lg = self.lg
        M16 = "v_mfma_f32_16x16x32_bf16"; QA_LDS = 65536; NS = 24; fs = 1 << self.FSH
        AX, AW, VSK, VOX, VOW, VST = 4, 6, 8, 10, 11, 12
        XS = [24, 32, 16]; PKD = 40; ACC = 64; WR = 128; T = 40
        QACC = 128; FX = [16, 24]; FW = [192, 32]; VXA = 224; VWA = 228
        I("v_lshrrev_b32 v13, 3, v0"); I(f"s_lshl_b32 s40, s{SW}, 3"); I("v_add_u32 v13, s40, v13"); I("v_lshlrev_b32 v13, 10, v13")
        I(f"s_lshr_b32 s41, s{SW}, 1"); I(f"s_xor_b32 s40, s41, s{SW}"); I("s_and_b32 s40, s40, 1"); I("s_lshl_b32 s40, s40, 2")
        I("v_lshrrev_b32 v14, 4, v0"); I("v_add_u32 v15, s40, v14")
        I("v_and_b32 v3, 7, v0"); I("v_xor_b32 v15, v15, v3"); I(f"v_lshl_add_u32 v{VOX}, v15, 4, v13")
        I(f"s_lshl_b32 s40, s{SW}, 2"); I("v_add_u32 v13, s40, v14"); I("v_lshlrev_b32 v13, 13, v13")
        I("s_and_b32 s41, s41, 1"); I("s_lshl_b32 s41, s41, 3"); I("v_lshl_add_u32 v15, v14, 1, s41"); I("v_and_b32 v3, 15, v0"); I("v_xor_b32 v15, v15, v3")
        I("v_lshl_add_u32 v13, v15, 4, v13"); self.phys(40, SHEAD, 41); I("s_lshl_b32 s40, s40, 8"); I(f"v_add_u32 v{VOW}, s40, v13")
        I(f"v_lshlrev_b32 v{VST}, 4, v0")
        I(f"s_lshl_b32 s44, s{SIDX}, 18")
        for i in range(1, 4): I(f"s_add_u32 s{44+i}, s44, {65536*i}")
        ROT = self.o.get("rot", 2)
        if ROT == 0: I("s_mov_b32 s33, 0")
        elif ROT == 1: I(f"s_mov_b32 s33, s{SIDX}")
        elif ROT == 2: I(f"s_lshr_b32 s33, s{SHEAD}, 2"); I(f"s_add_u32 s33, s33, s{SIDX}")
        elif ROT == 3: I(f"s_lshr_b32 s33, s{SHEAD}, 2"); I(f"s_add_u32 s33, s33, s{SIDX}"); I(f"s_lshl_b32 s34, s{SHEAD}, 1"); I("s_add_u32 s33, s33, s34")
        elif ROT == 4: I(f"s_lshr_b32 s33, s{SHEAD}, 2")
        if self.o.get("rotq"): I(f"s_lshl_b32 s32, s{SHEAD}, 1"); I("s_add_u32 s32, s32, s33")
        else: I("s_mov_b32 s32, s33")
        I("s_waitcnt lgkmcnt(0)")
        if self.o.get("stamp"): I("s_memrealtime s[28:29]")
        self.srd(RA, "ckv", 2*MB); self.srd(RB, "wuk", 4*MB); self.srd(RC, "wuv", 4*MB)
        def xq(c): return (32768, 131072, 0)[(16 + c) % 3]
        items = []; last = {}; dtok = {}
        def add(t, base, n, fn):
            us = range(base >> 14, (base + n*8192) >> 14)
            items.append((t, max(last.get(u, -1) for u in us), [lambda i=i: fn(i) for i in range(n)]))
            for u in us: last[u] = t
        def wdma(t, base, r):
            def f(i):
                if i == 0: I(f"s_add_u32 s34, s33, {t & 7}"); I("s_and_b32 s34, s34, 7"); I("s_lshl_b32 s34, s34, 19")
                I(f"s_add_u32 m0, s{SWK}, {base + i*8192}"); I(f"s_add_u32 s41, s34, {i*262144}")
                I(f"buffer_load_dwordx4 v{VOW}, s[{r}:{r+3}], s41 offen lds"); dtok[t] = vm.issue()
            add(t, base, 2, f)
        def xdma(t, base, n, s0, r):
            def f(i):
                if i == 0: I(f"s_add_u32 s35, s33, {t & 7}"); I("s_and_b32 s35, s35, 7"); I("s_lshl_b32 s35, s35, 7")
                I(f"s_add_u32 m0, s{SWK}, {base + i*8192}"); I(f"s_add_u32 s41, s{s0+i}, s35")
                I(f"buffer_load_dwordx4 v{VOX}, s[{r}:{r+3}], s41 offen lds"); dtok[t] = vm.issue()
            add(t, base, n, f)
        for t in range(NS):
            if t < 8: wdma(t, 65536 + (t % 3)*16384, RB); wdma(t, 114688 + (t % 3)*16384, RC)
            if t < 16: xdma(t, (t % 4)*16384, 2, 44 + 2*(t >> 3), RA)
            else: wdma(t, 65536 + (t % 4)*16384, RE); xdma(t, xq(t - 16), 4, 48, RD)
        def take(done, upto=99, cap=99):
            out = []
            for it in list(items):
                if it[1] <= done and it[0] <= upto and (len(out) + len(it[2]) <= cap or it[0] <= done + 3): out += it[2]; items.remove(it)
            return out
        for f in take(-1, 0): f()
        self.srd(RWS, "ws", WS_SIZE); self.srd(RDBG, "dbg", 256)
        self.stamp(31)
        if self.o.get("stamp"):
            I("v_mov_b32 v2, s30"); I("s_sub_u32 s98, s98, 124"); I(f"buffer_store_dword v2, v3, s[{RWS}:{RWS+3}], s98 offen")
            I("v_mov_b32 v2, s28"); I(f"buffer_store_dword v2, v3, s[{RWS}:{RWS+3}], s98 offen offset:120")
        I(f"s_lshl_b32 s48, s{SIDX}, 17"); I("s_add_u32 s49, s48, 65536")
        I(f"s_sub_u32 s50, 15, s{SIDX}"); I("s_lshl_b32 s50, s50, 17"); I("s_add_u32 s51, s50, 65536")
        I(f"s_and_b32 s42, s{SW}, 3"); I(f"s_lshr_b32 s43, s{SW}, 2")
        I("v_and_b32 v13, 15, v0"); I("v_lshrrev_b32 v15, 4, v0")
        I("v_lshrrev_b32 v14, 1, v13"); I("v_xor_b32 v14, v14, v15"); I("v_lshlrev_b32 v14, 4, v14")
        I(f"v_lshl_add_u32 v{AX}, v13, 7, v14"); I(f"v_xor_b32 v{AX+1}, 64, v{AX}")
        I("v_lshlrev_b32 v3, 4, v13"); I(f"v_lshl_add_u32 v{VSK}, v15, {self.GSH}, v3")
        I("v_and_b32 v2, 1, v15"); I("v_bfe_u32 v13, v0, 2, 2"); I("v_lshl_add_u32 v14, v15, 3, v13"); I("v_lshlrev_b32 v14, 8, v14")
        I("v_and_b32 v3, 3, v0"); I("v_lshl_add_u32 v14, v3, 3, v14"); I("v_lshl_add_u32 v13, v2, 2, v13"); I("v_lshl_add_u32 v9, v13, 5, v14"); I("v_add_u32 v9, 0x10000, v9")
        I("s_lshl_b32 s40, s42, 6"); I(f"v_xor_b32 v{AW}, s40, v9"); I("s_mul_i32 s40, s43, 49152"); I(f"v_add_u32 v{AW}, s40, v{AW}"); I(f"v_xor_b32 v{AW+1}, 32, v{AW}")
        I(f"s_lshl_b32 s54, s{SF}, 17"); I("s_lshl_b32 s55, s43, 15"); I("s_add_u32 s54, s54, s55")
        I(f"s_add_u32 s55, s43, {self.FSH}"); I("s_lshl_b32 s55, s42, s55"); I("s_add_u32 s54, s54, s55")
        I("s_cmp_eq_u32 s43, 0"); I(f"s_cselect_b32 s32, {f2u(LOG2E / math.sqrt(128.0))}, 1.0"); I("s_lshl_b32 s55, s43, 1"); I(f"s_lshr_b32 s52, {4*fs}, s55")
        XG = T; GW = T + 4; hl = {}
        def gate_loads():
            L = []
            def E(t): L.append(lambda: I(t))
            def V(t):
                def f(): I(t); hl["t"] = vm.issue()
                L.append(f)
            E(f"s_lshl_b32 s40, s{SHEAD}, 7"); E(f"s_lshl_b32 s39, s{SIDX}, 2"); E("s_add_u32 s40, s40, s39"); E(f"s_add_u32 s40, s40, {FK_OFF}")
            E(f"s_lshl_b32 s39, s{SF}, 7"); E(f"s_add_u32 s39, s39, {FP_OFF}"); E("v_and_b32 v13, 7, v0"); E("v_lshl_add_u32 v13, v13, 2, s39")
            E("v_writelane_b32 v13, s40, 0")
            E(f"s_lshr_b32 s39, s{SHEAD}, 2"); E("s_lshl_b32 s39, s39, 7"); E(f"s_and_b32 s40, s{SHEAD}, 3"); E("s_lshl_b32 s40, s40, 2"); E("s_add_u32 s39, s39, s40")
            E(f"s_lshl_b32 s40, s{SIDX}, 10"); E("s_add_u32 s40, s40, s39"); E(f"s_add_u32 s40, s40, {FC_OFF}")
            E("v_writelane_b32 v13, s40, 1")
            E(f"s_sub_u32 s40, 15, s{SIDX}"); E("s_lshl_b32 s40, s40, 10"); E("s_add_u32 s40, s40, s39"); E(f"s_add_u32 s40, s40, {FC_OFF}")
            E("v_writelane_b32 v13, s40, 2")
            E(f"s_lshl_b32 s40, s{SF}, 2"); E(f"s_add_u32 s40, s40, {FY_OFF}"); E("v_writelane_b32 v13, s40, 3"); E("v_mov_b32 v14, 0")
            def oo(): self.oob_sel(); I("v_add_u32 v13, s99, v13")
            L.append(oo)
            V(f"buffer_store_dword v14, v13, s[{RWS}:{RWS+3}], 0 offen sc1")
            E("s_lshl_b32 s37, s2, 3"); E(f"s_add_u32 s37, s37, s{SW}"); E("s_lshl_b32 s38, s37, 10")
            L.append(lambda: self.srd(RD, "q", 2*MB)); L.append(lambda: self.srd(RE, "wq", 4*MB)); L.append(lambda: self.srd(RT, "gate", 1024))
            V(f"buffer_load_dwordx4 {v(XG,4)}, v{VST}, s[{RD}:{RD+3}], s38 offen")
            V(f"buffer_load_dwordx4 {v(GW,4)}, v{VST}, s[{RT}:{RT+3}], 0 offen")
            return L
        def gate_ops():
            L = []; E = lambda t: L.append(lambda: I(t)); Z = T + 8
            L.append(lambda: vm.wait(hl["t"]))
            def xs():
                I(f"s_add_u32 s38, s38, {XC_OFF}"); I(f"buffer_store_dwordx4 {v(XG,4)}, v{VST}, s[{RWS}:{RWS+3}], s38 offen{self.st}"); vm.issue()
            E(f"v_dot2_f32_bf16 v{Z}, v{XG}, v{GW}, 0")
            for i in range(1, 4): E(f"v_dot2_f32_bf16 v{Z}, v{XG+i}, v{GW+i}, v{Z}")
            for m in ("quad_perm:[1,0,3,2] row_mask:0xf", "quad_perm:[2,3,0,1] row_mask:0xf", "row_half_mirror row_mask:0xf", "row_mirror row_mask:0xf",
                      "row_bcast:15 row_mask:0xa", "row_bcast:31 row_mask:0xc"):
                E(f"v_add_f32_dpp v{Z}, v{Z}, v{Z} {m} bank_mask:0xf")
            E(f"v_readlane_b32 s36, v{Z}, 63"); E(f"v_mov_b32 v{Z+1}, {f2u(-LOG2E)}"); E(f"v_mul_f32 v{Z}, s36, v{Z+1}")
            E(f"v_exp_f32 v{Z}, v{Z}"); E(f"v_add_f32 v{Z}, 1.0, v{Z}"); E(f"v_rcp_f32 v{Z}, v{Z}")
            E("s_lshl_b32 s38, s37, 2"); E(f"s_add_u32 s38, s38, {G_OFF}"); E(f"v_mov_b32 v{Z+1}, 0")
            def gs():
                I(f"buffer_store_dword v{Z}, v{Z+1}, s[{RWS}:{RWS+3}], s38 offen{self.st}"); vm.issue()
            L.append(gs)
            return L
        toks = {}
        def rdx(n):
            t, mt = n >> 3, n & 7
            def f(kk):
                I(f"ds_read_b128 {v(XS[n % 3]+4*kk,4)}, v{AX + (kk ^ (mt & 1))} offset:{(t % 4)*16384 + mt*2048}"); toks[("x", n, kk)] = lg.issue()
            return [lambda: f(0), lambda: f(1)]
        def rdw(t):
            def f(dt, kk, h):
                I(f"ds_read_b64_tr_b16 {v(WR+16*t+8*dt+4*kk+2*h,2)}, v{AW+dt} offset:{(t % 3)*16384+kk*8192+h*1024}"); toks[("w", t, dt, kk)] = lg.issue()
            return [lambda dt=dt, kk=kk, h=h: f(dt, kk, h) for dt in range(2) for kk in range(2) for h in range(2)]
        def mfs(t, k, role):
            L = []
            for e in range(2):
                n = 8*t + 2*k + e
                for dt in range(2):
                    for kk in range(2):
                        def f(e=e, n=n, dt=dt, kk=kk):
                            lg.wait(max(toks[("x", n, kk)], toks[("w", t & 7, dt, kk)]))
                            d = v(ACC + 16*k + (8*dt + 4*e if role else 8*e + 4*dt), 4); X = v(XS[n % 3]+4*kk, 4); W = v(WR+16*(t & 7)+8*dt+4*kk, 4)
                            c = "0" if (t & 7) == 0 and kk == 0 else d
                            I(f"{M16} {d}, {X}, {W}, {c}" if role else f"{M16} {d}, {W}, {X}, {c}")
                        L.append(f)
            return L
        def qrx(t, mt):
            xb = xq(t - 16)
            def f(kk):
                I(f"ds_read_b128 {v(FX[mt & 1]+4*kk,4)}, v{VXA + 2*(xb >> 17) + (kk ^ (mt & 1))} offset:{(xb & 65535) + mt*2048}"); toks[("qx", t, mt, kk)] = lg.issue()
            return [lambda: f(0), lambda: f(1)]
        def qrw(t, dt):
            def f(kk, h):
                I(f"ds_read_b64_tr_b16 {v(FW[t & 1]+8*dt+4*kk+2*h,2)}, v{VWA+dt} offset:{(t % 4)*16384+kk*8192+h*1024}"); toks[("qw", t, dt, kk)] = lg.issue()
            return [lambda kk=kk, h=h: f(kk, h) for kk in range(2) for h in range(2)]
        def qmfs(t, mt):
            L = []
            for dt in range(4):
                for kk in range(2):
                    def f(dt=dt, kk=kk):
                        lg.wait(max(toks[("qx", t, mt, kk)], toks[("qw", t, dt, kk)]))
                        d = v(QACC + 4*(mt*4 + dt), 4)
                        I(f"{M16} {d}, {v(FW[t & 1]+8*dt+4*kk, 4)}, {v(FX[mt & 1]+4*kk, 4)}, {'0' if t == 16 and kk == 0 else d}")
                    L.append(f)
            return L
        def piece(ph, p):
            b = ACC + 8*p; d = b if (ph or p < 2) else PKD + 4*(p - 2)
            pk = [lambda i=i: I(f"v_mul_f32 v{b+i}, s32, v{b+i}") for i in range(8)] + [lambda i=i: I(f"v_cvt_pk_bf16_f32 v{d+i}, v{b+2*i}, v{b+2*i+1}") for i in range(4)]
            def st():
                if self.o.get("nost"): return
                I(f"s_add_u32 s41, s54, {ph*65536 + (p >> 1)*8192}")
                if p & 1: I("s_add_u32 s41, s41, s52")
                I(f"buffer_store_dwordx4 {v(d,4)}, v{VSK}, s[{RWS}:{RWS+3}], s41 offen{self.st}"); vm.issue()
            return pk, st
        side = {}; late = {}
        def spread(ops, t0, t1, dst=side, ks=(0, 1, 2)):
            sl = [(t, k) for t in range(t0, t1) for k in ks]; n = len(ops)
            for j, key in enumerate(sl): dst.setdefault(key, []).extend(ops[n*j//len(sl): n*(j+1)//len(sl)])
        PG = self.o.get("pg", 0)
        spread(gate_loads(), PG, PG + 1); spread(gate_ops(), PG + 2, PG + 3)
        def wtouch(r, half, wv):
            def f():
                I(f"s_cmp_eq_u32 s{SW}, {wv}"); I(f"s_cselect_b32 s99, 0, {self.OOB}")
                self.phys(39, SHEAD, 40); I("s_lshl_b32 s39, s39, 8"); I(f"s_lshl_b32 s40, s{SIDX}, 19"); I("s_add_u32 s40, s40, s39"); I(f"s_add_u32 s40, s40, {half*32*8192}")
                I("v_lshrrev_b32 v3, 1, v0"); I("v_lshlrev_b32 v3, 13, v3"); I("v_and_b32 v2, 1, v0"); I("v_lshl_add_u32 v3, v2, 7, v3"); I("v_add_u32 v3, s99, v3")
                I(f"buffer_load_dword v1, v3, s[{r}:{r+3}], s40 offen"); vm.issue()
            return f
        t0 = self.o.get("tq", 5)
        if t0 >= 0:
            for half in range(2): side.setdefault((t0 + half, 2), []).append(wtouch(RE, half, half))
        def btouch(j):
            def f():
                I(f"s_cmp_eq_u32 s{SW}, {j+2}"); I(f"s_cselect_b32 s99, 0, {self.OOB}"); I("v_lshl_add_u32 v3, v0, 7, s99")
                I(f"s_and_b32 s40, s{SHEAD}, 3"); I("s_lshl_b32 s40, s40, 15"); I("s_add_u32 s40, s40, s46"); I(f"s_add_u32 s40, s40, {j*8192}")
                I(f"buffer_load_dword v1, v3, s[{RA}:{RA+3}], s40 offen"); vm.issue()
            return f
        tb = self.o.get("tb", 2)
        if tb >= 0:
            for j in range(4): side.setdefault((tb + j // self.o.get("tbn", 1), 1), []).append(btouch(j))
        PA = [piece(0, p) for p in range(8)]; PB_ = [piece(1, p) for p in range(8)]
        for p, key in enumerate(((7, 1), (7, 2), (7, 2), (7, 3), (8, 0), (8, 0), (8, 1), (8, 2))): side.setdefault(key, []).extend(PA[p][0])
        late.setdefault((7, 2), []).append(PA[0][1]); late.setdefault((7, 3), []).append(PA[1][1])
        KN = self.o.get("kn", 6); VN = self.o.get("vn", 5)
        spread([s_ for _, s_ in PA[2:]], 9, 9 + KN, dst=late, ks=(2,))
        for p, key in enumerate(((15, 1), (15, 2), (16, 0), (16, 1), (17, 0), (17, 1), (18, 0), (18, 1))): side.setdefault(key, []).extend(PB_[p][0])
        spread([s_ for _, s_ in PB_], 15, 16 + VN, dst=late, ks=(2,))
        PK_, PV_ = 9 + KN + 1, 16 + VN
        QS = []; EQ = lambda t: QS.append(lambda: I(t))
        EQ("s_lshl_b32 s40, s42, 13"); EQ(f"v_add_u32 v{VXA}, s40, v{AX}"); EQ(f"v_xor_b32 v{VXA+1}, 64, v{VXA}"); EQ(f"v_add_u32 v{VXA+2}, 0x20000, v{VXA}"); EQ(f"v_add_u32 v{VXA+3}, 0x20000, v{VXA+1}")
        EQ("s_lshl_b32 s40, s43, 7"); EQ(f"v_xor_b32 v{VWA}, s40, v9")
        for dt in range(1, 4): EQ(f"v_xor_b32 v{VWA+dt}, {dt << 5}, v{VWA}")
        side.setdefault((15, 0), []).extend(QS)
        QE = []; EQ = lambda t: QE.append(lambda: I(t))
        EQ(f"s_and_b32 s55, s{SW}, 2"); EQ("s_lshl_b32 s55, s55, 15"); EQ(f"s_add_u32 s55, s55, {QA_LDS}")
        EQ(f"s_and_b32 s54, s{SW}, 1"); EQ("s_lshl_b32 s54, s54, 14"); EQ("s_add_u32 s55, s55, s54")
        EQ("s_lshl_b32 s54, s43, 11"); EQ("s_add_u32 s55, s55, s54"); EQ(f"v_add_u32 v14, s55, v{VST}")
        spread(QE, NS - 1, NS)
        spread([lambda: self.srd(RB, "ssmk", 2*MB), lambda: self.srd(RA, "k", 2*MB), lambda: self.srd(RC, "v", 2*MB), lambda: self.srd(RD, "shift", 4096), lambda: self.srd(RE, "wo", 4*MB)], NS - 2, NS - 1)
        spread([lambda r=r: I(f"v_mov_b64 {v(192+2*r,2)}, 0") for r in range(32) if not 16 <= r < 20], NS - 1, NS)
        side.setdefault((NS - 1, 3), []).extend([lambda r=r: I(f"v_mov_b64 {v(192+2*r,2)}, 0") for r in range(16, 20)])
        def fkoff():
            I(f"s_lshl_b32 s40, s{SHEAD}, 7"); I(f"s_lshl_b32 s41, s{SIDX}, 2"); I("s_add_u32 s40, s40, s41"); I(f"s_add_u32 s40, s40, {FK_OFF}")
        def w0only(fn):
            l = a.label("NP"); I(f"s_cmp_lg_u32 s{SW}, 0"); I(f"s_cbranch_scc1 {l}"); fn(); a.L(l)
        def k0(i):
            I(f"s_lshl_b32 s40, s{SW}, 12"); I("s_add_u32 m0, s40, 0x8000")
            I(f"s_lshl_b32 s41, s{SHEAD}, 20"); I("s_add_u32 s41, s41, s40")
            I(f"buffer_load_dwordx4 v{VST}, s[{RWS}:{RWS+3}], s41 offen offset:{1024*i}{self.ld} lds"); vm.issue()
        self.barrier()
        for f in take(-1, 1): f()
        vm.wait(dtok[0]); self.barrier()
        self.stamp(1)
        x0 = rdx(0); w0 = rdw(0)
        for f in [x0[0]] + w0[:2] + [x0[1]] + w0[2:] + rdx(1): f()
        VPK = self.o.get("vpk", 2); mark = {}; TZ = PG + 4; TS = 16; DS = self.o.get("dsteps", 3); CAP = self.o.get("cap", 4)
        S_ = dict(pend=take(-1, 2), rest=[])
        def stage(t, role):
            for k in range(4):
                M = mfs(t, k, role) if t < 16 else qmfs(t, k); n = 8; PB = []
                if k == 3 and t < NS - 1:
                    assert not S_["pend"]
                    if t == TS + 2: vm.wait(S_["td"]); w0only(lambda: self.poll_check(14, 13, "0", rep4(1), RDBG))
                    if t == NS - 3: vm.wait(S_["tp"]); w0only(lambda: self.poll_check(15, 13, "s53", 1))
                    lg.wait(lg.issued); vm.wait(dtok[t+1])
                    if t == TZ: vm.wait(mark[TZ-2])
                    if t == PK_: vm.wait(mark[PK_ - 2])
                    if t == PV_: vm.wait(mark[PV_ - 1])
                    self.barrier()
                    ps = self.o.get("pstamp")
                    if ps is not None and 0 <= t - int(ps) + 1 < 13: self.stamp(17 + t - int(ps) + 1); vm.issue(2)
                    if TZ <= t < TZ + 4: PB.append(lambda t=t: self.publish(SF, 1, RDBG, True, idx=t - TZ))
                    if t == PK_: PB.append(lambda: (fkoff(), self.publish(40, 1)))
                    if t == PV_: PB.append(lambda: (fkoff(), self.publish(40, 3)))
                    S_["pend"] = take(t, cap=CAP if t < 14 else 6)
                    if t == NS - 3: S_["pend"] += [lambda i=i: k0(i) for i in range(4)]
                    nd = len(S_["pend"]) // (DS + 1)
                else:
                    nd = -(-len(S_["pend"]) // max(1, (3 if t == 0 else DS) - k))
                D, S_["pend"] = S_["pend"][:nd], S_["pend"][nd:]
                fl = []
                if t < 15 or (t == 15 and k < 3):
                    nn = 8*t + 2*k
                    fl += [(0, 2, rdx(nn + 2)), (4, 6, rdx(nn + 3))]
                    if k == 3 and t < 7: fl.append((0, 7, rdw(t + 1)))
                elif k == 3:
                    if t < NS - 1:
                        x = qrx(t+1, 0); w = [qrw(t+1, dt) for dt in range(4)]
                        fl.append((0, 7, [x[0]] + w[0][:2] + [x[1]] + w[0][2:] + w[1] + w[2])); S_["rest"] = w[3]
                else:
                    if k == 0: fl.append((-1, 2, S_["rest"]))
                    fl.append((2, 4, qrx(t, k+1)))
                if PB: fl.append((1, 2, PB))
                if D: fl.append((0, n, D))
                if side.get((t, k)): fl.append((0, n - 1 if late.get((t, k)) else n, side[(t, k)]))
                if late.get((t, k)): fl.append((n - 1, n, late[(t, k)]))
                self.stream(M, fl)
                if k == 2: mark[t] = vm.issued
                if t == TS and k == 0:
                    self.oob_sel(); I("v_lshl_add_u32 v13, v0, 2, s99"); S_["td"] = self.poll_issue(14, 13, "0", RDBG)
                if t == NS - 4 and k == 0:
                    self.oob_sel(); I("v_and_b32 v13, 7, v0"); I("v_lshl_add_u32 v13, v13, 2, s99")
                    I(f"s_lshl_b32 s53, s{SHEAD}, 7"); I(f"s_add_u32 s53, s53, {FK_OFF}")
                    S_["tp"] = self.poll_issue(15, 13, "s53")
                if t == NS - 1 and k == VPK: self.poll_issue(15, 13, "s53")
            if t == 7: self.stamp(2)
        LV = a.label("ROLEV"); LJ = a.label("ROLEJ")
        I("s_cmp_eq_u32 s43, 1"); I(f"s_cbranch_scc1 {LV}")
        sv = (self.save(), list(items), dict(dtok), dict(toks), dict(S_), dict(hl))
        for role in (0, 1):
            if role:
                a.L(LV); self.restore(sv[0]); items[:] = sv[1]; dtok.clear(); dtok.update(sv[2]); toks.clear(); toks.update(sv[3]); S_.update(sv[4])
            for t in range(16): stage(t, role)
            if not role: I(f"s_branch {LJ}")
        a.L(LJ)
        self.stamp(13)
        for t in range(16, NS): stage(t, 0)
        assert not items
        self.stamp(3)
        I("v_mov_b32 v16, v13")
        for mt in range(4):
            for j in range(2):
                b = QACC + 4*(mt*4 + 2*j)
                for i in range(4): I(f"v_cvt_pk_bf16_f32 v{64+8*mt+4*j+i}, v{b+2*i}, v{b+2*i+1}")
                I(f"ds_write_b128 v14, {v(64+8*mt+4*j,4)} offset:{mt*4096 + j*1024}"); lg.issue()
        self.attn_setup()
        vm.wait(vm.issued); w0only(lambda: self.poll_check(15, 16, "s53", 3))
        lg.wait(lg.issued); self.barrier()

    def attn_setup(self): self.attn(True)
    def attn(self, setup=False):
        a = self.a; I = self.I; vm = self.vm; lg = self.lg
        M16 = "v_mfma_f32_16x16x32_bf16"
        ML = 155648; QA_LDS = 65536; QB_LDS = 131072
        O = 192; QF = 160; NM = 144; S = [112, 128]; PP = [96, 104]; RING = 64; NR = 8; E = 56; PK = 16
        VK, VV, VL16, VSC, LM, THR, NINF, VQ, TMP = 4, 5, 6, 7, 8, 9, 10, 11, 12
        LS, ONES, BIAS = 152, 60, 11.0
        SR, SG, SC1, SC2, SKO, SVO, SKM, SVM, STH = 32, 33, 34, 35, 36, 37, 38, 39, 42
        SFIN, SCA, SM1 = 55, 59, 58
        DC = self.o.get("dmacost", 16); WEV = self.o.get("wev", 4)
        if setup:
            I(f"s_lshr_b32 s{SG}, s{SW}, 2"); I(f"s_mul_i32 s{SR}, s{SG}, 7"); I(f"s_xor_b32 s{SR}, s{SR}, s{SW}")
            I(f"v_lshlrev_b32 v{VL16}, 4, v0")
            I(f"s_lshl_b32 s44, s{SR}, 13"); I(f"s_add_u32 s44, s44, {QB_LDS}"); I(f"v_add_u32 v{VQ}, s44, v{VL16}")
            I(f"s_lshl_b32 s45, s{SG}, 16"); I(f"v_subrev_u32 v{TMP+1}, s45, v{VQ}")
            I(f"s_mov_b32 s{SC1}, s{SIDX}")
            I(f"s_lshl_b32 s{SC2}, s{SIDX}, 1"); I(f"s_sub_u32 s{SC2}, 14, s{SC2}")
            I(f"s_cmp_eq_u32 s{SG}, 1"); I(f"s_cselect_b32 s{SM1}, 0, -1")
            I(f"s_lshl_b32 s43, s{SW}, 12"); I(f"s_lshl_b32 s{SVO}, s{SHEAD}, 20"); I(f"s_add_u32 s{SVO}, s{SVO}, s43")
            I(f"s_add_u32 s{SKO}, s{SVO}, 0x10000"); I(f"s_add_u32 s{SVO}, s{SVO}, 0x8000")
            I(f"s_mov_b32 s{SKM}, s43"); I(f"s_add_u32 s{SVM}, s43, 0x18000")
            I(f"s_mov_b32 s{STH}, 0x40004000"); I(f"v_mov_b32 v{NINF}, 0xff800000")
            for r in range(4): I(f"v_mov_b32 v{ONES+r}, 0x3f803f80"); I(f"v_mov_b64 {v(LS+2*r,2)}, 0")
            I(f"v_and_b32 v{THR}, 15, v0"); I(f"v_lshlrev_b32 v{VSC}, 4, v{THR}"); I(f"s_lshl_b32 s44, s{SR}, 5"); I(f"v_add_u32 v{THR}, s44, v{THR}")
            I(f"v_lshrrev_b32 v{TMP}, 4, v0"); I(f"v_lshl_add_u32 v{VSC}, v{TMP}, 9, v{VSC}"); I(f"v_lshlrev_b32 v{TMP}, 2, v{TMP}"); I(f"v_sub_u32 v{THR}, v{THR}, v{TMP}")
            I(f"v_and_b32 v{VK}, 15, v0"); I(f"v_lshlrev_b32 v{VK}, 4, v{VK}"); I(f"v_lshrrev_b32 v{TMP}, 4, v0"); I(f"v_lshl_add_u32 v{VK}, v{TMP}, {self.GSH}, v{VK}"); I(f"v_add_u32 v{VK}, 0x8000, v{VK}")
            I(f"s_lshl_b32 s{SCA}, s{SIDX}, 2"); I(f"s_add_u32 s{SCA}, s{SCA}, s{SR}"); I(f"s_lshl_b32 s{SCA}, s{SCA}, 5"); I(f"s_add_u32 s{SCA}, s{SCA}, s{SHEAD}")
            I(f"s_lshl_b32 s{SCA}, s{SCA}, 13"); I(f"s_add_u32 s{SCA}, s{SCA}, {CTX_OFF}")
            I(f"s_mov_b32 s{SFIN}, 0")
            I(f"s_lshr_b32 s56, s{SF}, 6"); I("s_lshl_b32 s56, s56, 2"); I(f"s_bfe_u32 s44, s{SF}, 0x20003"); I("s_add_u32 s56, s56, s44"); I("s_lshl_b32 s56, s56, 1")
            I(f"s_bfe_u32 s44, s{SF}, 0x10005"); I("s_add_u32 s56, s56, s44"); I(f"s_and_b32 s57, s{SF}, 7")
            I("s_mov_b32 s41, 0")
            CL = self.o.get("cl", 8)
            I(f"s_lshr_b32 s40, {1 << (CL+2)}, s{SG}"); I(f"s_or_b32 s40, s40, {1 << CL}")
            I(f"s_lshl_b32 s44, 2, s{SW}"); I("s_and_b32 s44, s44, 30"); I("s_or_b32 s40, s40, s44")
            I(f"s_cmp_eq_u32 s{SW}, 0"); I(f"s_cselect_b32 s44, {(1 << 5) | (1 << (CL+4))}, 0"); I("s_or_b32 s40, s40, s44")
            if not self.o.get("noprio"):
                l = a.label("PR"); I(f"s_cmp_eq_u32 s{SG}, 1"); I(f"s_cbranch_scc0 {l}"); I("s_setprio 1"); a.L(l)
            return
        op = lambda t, c=4: (lambda: I(t), c)
        nop = lambda: None
        def loadq(va):
            for ds in range(8):
                I(f"ds_read_b128 {v(QF+4*ds,4)}, v{va} offset:{1024*ds}"); lg.issue()
        def dma4(kind):
            sm, so = (SKM, SKO) if kind == "k" else (SVM, SVO)
            def d(i):
                def f():
                    if i == 0: I(f"s_mov_b32 m0, s{sm}"); I(f"s_xor_b32 s{sm}, s{sm}, 0x8000")
                    I(f"buffer_load_dwordx4 v{VL16}, s[{RWS}:{RWS+3}], s{so} offen offset:{1024*i}{self.ld} lds")
                    if i == 3: I(f"s_add_u32 s{so}, s{so}, 0x10000")
                return (f, DC + (8 if i == 0 else 4 if i == 3 else 0))
            return [d(i) for i in range(4)]
        self.ring_n = 0
        def rd(kind, sl, idx):
            h = {}
            def f():
                slot = self.ring_n % NR; self.ring_n += 1
                h["reg"] = RING + 4*slot
                I(f"ds_read_b128 {v(h['reg'],4)}, v{VK if kind == 'k' else VV} offset:{sl*8192+(idx << self.FSH)}"); h["tok"] = lg.issue()
            return f, h
        def wait_for(R, i):
            if R[i][1]["tok"] <= lg.done: return
            j = i
            while j + 1 < len(R) and j + 1 < i + WEV and "tok" in R[j+1][1] and R[j+1][1]["tok"] > R[i][1]["tok"]: j += 1
            lg.wait(R[j][1]["tok"])
        def otile(dt, qt): return O + 16*(dt >> 1) + 8*qt + 4*(dt & 1)
        def qk(sb, R, base, czero=False):
            def f(m):
                kt, qt, dd = m >> 3, (m >> 2) & 1, m & 3; i = base + 4*kt + dd
                wait_for(R, i); d = v(S[sb] + 8*qt + 4*kt, 4)
                c = ("0" if czero else v(NM + 4*qt, 4)) if dd == 0 else d
                I(f"{M16} {d}, {v(R[i][1]['reg'],4)}, {v(QF + 16*qt + 4*dd, 4)}, {c}")
            return [lambda m=m: f(m) for m in range(16)]
        def pv1(pb, dt, qt, reg): I(f"{M16} {v(otile(dt, qt),4)}, {v(reg,4)}, {v(PP[pb]+4*qt,4)}, {v(otile(dt, qt),4)}")
        def pv(pb, R, base, dts=range(8), exact=False):
            def f(dt, qt):
                if exact: lg.wait(R[base+dt][1]["tok"])
                else: wait_for(R, base + dt)
                pv1(pb, dt, qt, R[base+dt][1]["reg"])
            ls = [lambda qt=qt: I(f"{M16} {v(LS+4*qt,4)}, {v(ONES,4)}, {v(PP[pb]+4*qt,4)}, {v(LS+4*qt,4)}") for qt in range(2)]
            return ls + [lambda dt=dt, qt=qt: f(dt, qt) for dt in dts for qt in range(2)]
        def sm_ops(sb):
            ex = lambda i: op(f"v_exp_f32 v{E+(i&3)}, v{S[sb]+i}", 8)
            cv = lambda j: op(f"v_cvt_pk_bf16_f32 v{PP[sb]+j}, v{E+((2*j)&3)}, v{E+((2*j+1)&3)}")
            p = PP[sb]; L = [ex(0), ex(1)]
            ors = {2: f"v_or3_b32 v{LM}, v{p}, v{p+1}, v{p+2}", 4: f"v_or3_b32 v{LM}, v{LM}, v{p+3}, v{p+4}", 6: f"v_or3_b32 v{LM}, v{LM}, v{p+5}, v{p+6}"}
            for j in range(8):
                L += [ex(2*j+2), cv(j), ex(2*j+3)] if j < 7 else [op("s_nop 0"), cv(j)]
                if j in ors: L.append(op(ors[j]))
            L = [x for i, x in enumerate(L) if i != len(L) - 2]
            L += [op(f"v_or_b32 v{LM}, v{LM}, v{p+7}"), op(f"v_and_b32 v{LM}, s{STH}, v{LM}")]
            return L
        def sched(M, fixed, chain):
            n = len(M); fc = [sum(c for _, c in fixed.get(g, [])) for g in range(n)]
            tot = sum(c for _, c in chain); lo, hi = 0.0, 4000.0
            for _ in range(40):
                lev = (lo + hi) / 2
                if sum(max(0, lev - f) for f in fc) >= tot: hi = lev
                else: lo = lev
            k = 0; credit = 0.0
            for g in range(n):
                M[g]()
                for c, _ in fixed.get(g, []): c()
                credit += max(0, hi - fc[g])
                while k < len(chain) and (g == n - 1 or chain[k][1] <= credit + 2):
                    chain[k][0](); credit -= chain[k][1]; k += 1
        def put(fixed, g, items): fixed.setdefault(g, []).extend(items)
        SPL = self.o.get("spl", 18)
        ool = []
        def rarely(cmp_, body):
            lo = a.label("OOL"); lb = a.label("RET")
            I(cmp_); I(f"s_cbranch_scc1 {lo}"); a.L(lb)
            ool.append((lo, lb, body))
        def mask_ops(sb, koff):
            prs = [46, 48, 50, 52]; L = []
            if koff >= 64:
                L.append(op(f"v_subrev_u32 v{TMP+3}, 64, v{THR}")); tr = TMP + 3; koff -= 64
            elif koff < 0:
                L += [op(f"s_lshl_b32 s45, s{SG}, 6"), op(f"v_subrev_u32 v{TMP+3}, s45, v{THR}")]; tr = TMP + 3; koff = -koff - 1
            else: tr = THR
            for r0 in range(0, 16, 4):
                qt, kt = r0 >> 3, (r0 >> 2) & 1
                for r in range(4): L.append(op(f"v_cmp_lt_i32 s[{prs[r]}:{prs[r]+1}], v{tr}, {16*kt + r + koff - 16*qt}"))
                for r in range(4): L.append(op(f"v_cndmask_b32 v{S[sb]+r0+r}, v{S[sb]+r0+r}, v{NINF}, s[{prs[r]}:{prs[r]+1}]"))
            return L
        def mask_body(sb, koff):
            for c, _ in mask_ops(sb, koff): c()
        def xred(x, y, t0, t1, o):
            L = []
            for sw in ("v_permlane16_swap_b32", "v_permlane32_swap_b32"):
                L += [op(f"v_mov_b32 v{t0}, v{x}"), op(f"v_mov_b32 v{t1}, v{y}"), op("s_nop 0"), op(f"{sw} v{t0}, v{x}"), op(f"{sw} v{t1}, v{y}"),
                      op(f"{o} v{x}, v{x}, v{t0}"), op(f"{o} v{y}, v{y}, v{t1}")]
            return L
        def rowmax(sb):
            for qt in range(2):
                b = S[sb] + 8*qt; d = TMP + qt
                I(f"v_max3_f32 v{d}, v{b}, v{b+1}, v{b+2}"); I(f"v_max3_f32 v{d}, v{d}, v{b+3}, v{b+4}"); I(f"v_max3_f32 v{d}, v{d}, v{b+5}, v{b+6}"); I(f"v_max_f32 v{d}, v{d}, v{b+7}")
            for c, _ in xred(TMP, TMP+1, TMP+2, TMP+3, "v_max_f32"): c()
        def init_max():
            rowmax(0)
            for qt in range(2): I(f"v_max_f32 v{TMP+qt}, {f2u(-1e30)}, v{TMP+qt}"); I(f"v_add_f32 v{TMP+qt}, {f2u(BIAS)}, v{TMP+qt}")
            for r in range(8): I(f"v_sub_f32 v{NM+r}, 0, v{TMP+(r>>2)}")
            return [op(f"v_sub_f32 v{S[0]+r}, v{S[0]+r}, v{TMP+(r>>3)}") for r in range(16)]
        rare = []
        def check(sb, other=True):
            lr = a.label("RARE"); lb = a.label("BACK")
            I(f"v_cmp_ne_u32 vcc, 0, v{LM}")
            if self.o.get("a_nocheck"): I("s_mov_b64 vcc, 0")
            I(f"s_cbranch_vccnz {lr}"); a.L(lb)
            rare.append((lr, lb, sb, other))
        def fin_body():
            I(f"s_mov_b32 s{SFIN}, 2")
            I(f"v_rcp_f32 v{TMP}, v{LS}"); I(f"v_rcp_f32 v{TMP+2}, v{LS+4}"); I(f"v_mov_b32 v{TMP+1}, v{TMP}"); I(f"v_mov_b32 v{TMP+3}, v{TMP+2}")
            for r in range(4): I(f"v_mov_b64 {v(LS+2*r,2)}, 0")
            for q in range(8):
                for i in range(8*q, 8*q+8, 2): I(f"v_pk_mul_f32 {v(O+i,2)}, {v(O+i,2)}, {v(TMP+2*(q&1),2)}")
                for i in range(4): I(f"v_cvt_pk_bf16_f32 v{PK+4*q+i}, v{O+8*q+2*i}, v{O+8*q+2*i+1}")
                for i in range(8*q, 8*q+8, 2): I(f"v_mov_b64 {v(O+i,2)}, 0")
        coff = lambda q: (q & 3)*1024
        def st_body():
            I(f"s_add_u32 s44, s{SCA}, 4096"); I(f"s_mov_b32 s{SFIN}, 3")
            for q in range(8):
                I(f"buffer_store_dwordx4 {v(PK+4*q,4)}, v{VL16}, s[{RWS}:{RWS+3}], s{SCA if q < 4 else 44} offen offset:{coff(q)}{self.st}")
        TR = [RING + 4*(2+i) for i in range(6)]
        def head(R, vmw, with_mfma=True, post=(), more=(), pre=None):
            rf = [(f, 4) for f, h in R]; sm2 = sm_ops(0)[SPL:]
            M = [lambda dt=dt, qt=qt: pv1(1, dt, qt, TR[dt-2]) for dt in range(2, 8) for qt in range(2)] if with_mfma else [nop]*12
            if with_mfma: I("s_waitcnt lgkmcnt(4)")
            nb = self.o.get("nb", 4); more = list(more); m0 = len(more) // 3
            if pre is not None: more = list(pre) + more; m0 = len(pre)
            sched(M[:4], {}, sm2[:nb] + more[:m0])
            vmw(); I("s_waitcnt lgkmcnt(0)"); lg.mark_all_done(); self.barrier(); self.ring_n = 0
            fx = {0: rf[0:2], 1: rf[2:4], 2: rf[4:5], 4: rf[5:6], 6: rf[6:7], 7: [(nop, 8 + 8*len(post))]}
            sched(M[4:], fx, sm2[nb:] + more[m0:])
            check(0)
            for p in post: p()
        def mk_reads():
            return ([rd("k", 0, i) for i in range(8)] + [rd("v", 0, i) for i in range(8)] +
                    [rd("k", 1, i) for i in range(8)] + [rd("v", 1, i) for i in range(8)])
        def last_use(F):
            b = (0, 18, 34, 52)[F >> 3]; f = F & 7
            return b + (2*f + 1 if (F >> 3) & 1 else 8*(f >> 2) + 4 + (f & 3))
        def mid(R, dmas, kx, mb=None, trans=False, endops=(), early=(), g=0):
            rf = [(f, 4) for f, h in R]
            fa = {0: [rf[7]]}; fb = {}
            G_ = g
            for g, e in zip((1, 3, 9, 11), early): put(fa, g, [e])
            for F in range(8, 32):
                g = last_use(F - 8) + 1
                put(fa, g, [rf[F]]) if g < 34 else put(fb, g - 34, [rf[F]])
            D = sum((dma4(k) for k in dmas), [])
            st_ = self.o.get("gst", 4); of_ = self.o.get("gof", 2)
            gaps = [2 + of_*G_*2 + 2*st_*n for n in range(4)] if len(D) == 4 else [2 + of_*G_ + st_*n for n in range(8)]
            for g, d in zip(gaps, D): put(fa, g, [d]) if g < 33 else put(fb, g - 33, [d])
            PT = self.o.get("pt", 0)
            if PT and G_ == 0:
                pts = {1: [(0, 24, 2), (1, 21, 0)], 2: [(0, 8, 2), (0, 24, 0), (1, 7, 2), (1, 21, 0)], 3: [(0, 0, 2), (0, 8, 0), (0, 16, 2), (0, 24, 0), (0, 32, 2), (1, 7, 0), (1, 15, 2), (1, 21, 0)],
                       4: [(0, 16, 2), (1, 21, 0)], 5: [(0, 32, 2), (1, 21, 0)]}[PT]
                for part, g, p in pts: put(fb if part else fa, g, [op(f"s_setprio {p}")])
            put(fa, 33, [(nop, 16)])
            sched(qk(0, R, 0, trans) + pv(0, R, 8), fa, sm_ops(1))
            check(1, other=not trans)
            if mb: mb()
            pre = []
            if trans:
                I(f"s_mov_b32 s{SFIN}, 1")
                pre = init_max()
            put(fb, 18, [op(f"v_xor_b32 v{VV}, 0x10000, v{VK}")] + kx)
            for n, e in enumerate(endops): put(fb, 11 - n, [e])
            put(fb, 21, [(nop, 12)])
            sched(qk(1, R, 16) + pv(1, R, 24, range(2)), fb, pre + sm_ops(0)[:SPL])
            assert [R[26+i][1]["reg"] for i in range(6)] == TR
        vm4 = lambda: I("s_waitcnt vmcnt(4)")
        def vm08():
            lo = a.label("W8"); lb = a.label("W8R")
            I(f"s_cmp_eq_u32 s{SFIN}, 3"); I(f"s_cbranch_scc1 {lo}"); I("s_waitcnt vmcnt(0)"); a.L(lb)
            def b(): I("s_waitcnt vmcnt(8)"); I(f"s_mov_b32 s{SFIN}, 4")
            ool.append((lo, lb, b))
        m1 = lambda sb, ko: (lambda: rarely(f"s_cmp_eq_u32 s{SC1}, s{SM1}", lambda: mask_body(sb, ko)))
        fin = lambda: rarely(f"s_cmp_eq_u32 s{SFIN}, 1", fin_body)
        sta = (lambda: rarely(f"s_cmp_eq_u32 s{SFIN}, 2", st_body), 8)
        KR, VR, SH, WO, AD = 16, 23, 28, 32, 40
        def side_loads():
            L = []; E = lambda t: L.append(op(t)); V = lambda t: L.append(op(t, DC))
            E(f"v_lshrrev_b32 v{AD}, 5, v0"); E(f"v_and_b32 v{AD+1}, 31, v0"); E(f"v_lshlrev_b32 v{AD+2}, 12, v{AD}"); E(f"v_lshl_add_u32 v{AD+2}, v{AD+1}, 2, v{AD+2}")
            self.phys(60, SHEAD, 61, E); E("s_lshl_b32 s60, s60, 17"); E(f"s_lshr_b32 s61, s{SIDX}, 1"); E("s_lshl_b32 s61, s61, 15"); E("s_add_u32 s60, s60, s61")
            E(f"s_and_b32 s61, s{SF}, 1"); E("s_lshl_b32 s61, s61, 9"); E("s_add_u32 s60, s60, s61")
            E(f"s_lshl_b32 s61, s{SW}, 6"); E("s_add_u32 s60, s60, s61"); E("s_add_u32 s61, s60, 16384")
            E(f"v_lshrrev_b32 v{AD+3}, 4, v0"); E(f"v_lshlrev_b32 v{AD+3}, 12, v{AD+3}"); E(f"v_and_b32 v{AD+4}, 15, v0"); E(f"v_lshl_add_u32 v{AD+3}, v{AD+4}, 2, v{AD+3}")
            for j in range(8): V(f"buffer_load_dword v{WO+j}, v{AD+3}, s[{RE}:{RE+3}], s{60+(j>>2)} offen offset:{1024*(j&3)}")
            E("s_lshr_b32 s62, s2, 3"); E("s_lshl_b32 s62, s62, 16"); E(f"s_lshl_b32 s63, s{SW}, 13"); E("s_add_u32 s62, s62, s63")
            E("s_and_b32 s63, s2, 7"); E("s_lshl_b32 s63, s63, 7"); E("s_add_u32 s62, s62, s63"); E(f"v_add_u32 v{AD+3}, s62, v{AD+2}")
            for i in range(3): E(f"v_subrev_u32 v{AD+4+i}, {3072-1024*i}, v{AD+3}")
            E("s_lshl_b32 s63, s63, 2"); E(f"v_lshl_add_u32 v{AD+7}, v{AD+1}, 4, s63")
            for i in range(3): V(f"buffer_load_dword v{KR+i}, v{AD+4+i}, s[{RA}:{RA+3}], 0 offen")
            for i in range(4): V(f"buffer_load_dword v{KR+3+i}, v{AD+3}, s[{RA}:{RA+3}], 0 offen offset:{1024*i}")
            for i in range(4): V(f"buffer_load_dword v{VR+i}, v{AD+3}, s[{RC}:{RC+3}], 0 offen offset:{1024*i}")
            V(f"buffer_load_dwordx4 {v(SH,4)}, v{AD+7}, s[{RD}:{RD+3}], 0 offen")
            return L
        NSL = 21
        def side_math():
            L = []; E = lambda t: L.append(op(t)); V = lambda t: L.append(op(t, DC))
            W2 = 48
            E("s_mov_b32 s60, 0x05040100"); E("s_mov_b32 s61, 0x07060302")
            for j in range(4): E(f"v_perm_b32 v{W2+j}, v{WO+2*j+1}, v{WO+2*j}, s60")
            for j in range(4): E(f"v_perm_b32 v{W2+4+j}, v{WO+2*j+1}, v{WO+2*j}, s61")
            E(f"s_and_b32 s60, s{SF}, 1"); E("s_lshl_b32 s60, s60, 2"); E(f"s_lshr_b32 s61, s{SW}, 1"); E("s_add_u32 s60, s60, s61"); E("s_lshl_b32 s60, s60, 19")
            E(f"s_lshr_b32 s61, s{SF}, 1"); E("s_lshl_b32 s61, s61, 12"); E("s_add_u32 s60, s60, s61"); E(f"s_and_b32 s61, s{SW}, 1"); E("s_lshl_b32 s61, s61, 11")
            E("s_add_u32 s60, s60, s61"); E(f"s_add_u32 s60, s60, {WOT_OFF}")
            for mt in range(2): V(f"buffer_store_dwordx4 {v(W2+4*mt,4)}, v{VL16}, s[{RWS}:{RWS+3}], s60 offen offset:{1024*mt}{self.st}")
            KU, SU, OO, VU, PQ = 32, 42, 48, 39, 52
            for c in range(2):
                def unp(d, sreg, half): E(f"v_lshlrev_b32 v{d}, 16, v{sreg}" if half == 0 else f"v_and_b32 v{d}, 0xffff0000, v{sreg}")
                for i in range(7): unp(KU+i, KR+i, c)
                for j in range(4): unp(SU+j, SH + 2*c + (j >> 1), j & 1)
                for o in range(4):
                    E(f"v_mul_f32 v{OO+o}, v{KU+o}, v{SU+3}")
                    for j in (2, 1, 0): E(f"v_fmac_f32 v{OO+o}, v{KU+o+3-j}, v{SU+j}")
                    unp(VU, VR+o, c)
                    E(f"v_mul_f32 v{OO+o}, v{OO+o}, v{VU}")
                d = PQ + 2*(1-c)
                E(f"v_cvt_pk_bf16_f32 v{d}, v{OO+3}, v{OO+2}"); E(f"v_cvt_pk_bf16_f32 v{d+1}, v{OO+1}, v{OO}")
            E(f"v_lshlrev_b32 v{AD+1}, 5, v{AD+1}"); E(f"v_lshl_add_u32 v{AD+1}, v{AD}, 4, v{AD+1}")
            E(f"v_permlane32_swap_b32 v{PQ+2}, v{PQ}"); E(f"v_permlane32_swap_b32 v{PQ+3}, v{PQ+1}")
            E("s_lshr_b32 s60, s2, 3"); E("s_lshl_b32 s60, s60, 16"); E(f"s_lshl_b32 s61, s{SW}, 13"); E("s_add_u32 s60, s60, s61")
            E("s_and_b32 s61, s2, 7"); E("s_lshl_b32 s61, s61, 10"); E("s_add_u32 s60, s60, s61"); E(f"s_add_u32 s60, s60, {KVT_OFF}")
            V(f"buffer_store_dwordx4 {v(PQ,4)}, v{AD+1}, s[{RWS}:{RWS+3}], s60 offen{self.st}")
            return L
        CL = self.o.get("cl", 8)
        def touch(k):
            if k in (1, 2):
                self.phys(60, SHEAD, 61); I("s_lshl_b32 s60, s60, 17"); I(f"s_lshl_b32 s61, s{SIDX}, 14"); I("s_add_u32 s60, s60, s61")
                if k == 2: I("s_add_u32 s60, s60, 8192")
                I("v_lshlrev_b32 v16, 7, v0"); r = RE
            elif k in (3, 4):
                I("s_lshr_b32 s60, s2, 3"); I("s_lshl_b32 s60, s60, 16"); I("s_and_b32 s61, s2, 7"); I("s_lshl_b32 s61, s61, 7"); I("s_add_u32 s60, s60, s61")
                I("v_lshlrev_b32 v16, 10, v0"); r = RA if k == 3 else RC
            else:
                I(f"s_lshl_b32 s60, s{SF}, 13"); I("v_lshlrev_b32 v16, 7, v0"); r = RB
            I(f"buffer_load_dword v1, v16, s[{r}:{r+3}], s60 offen")
        LSITE = a.label("SITE")
        def site_code():
            a.L(LSITE)
            def ret(): I("s_nop 1"); I("s_setpc_b64 s[76:77]")
            l = a.label("SN"); I(f"s_cmp_lg_u32 s41, {CL}"); I(f"s_cbranch_scc1 {l}")
            for c, _ in side_loads(): c()
            ret(); a.L(l)
            l = a.label("SN"); I(f"s_add_u32 s44, s41, s{SG}"); I(f"s_cmp_lg_u32 s44, {CL+2}"); I(f"s_cbranch_scc1 {l}")
            for c, _ in side_math(): c()
            ret(); a.L(l)
            for k in range(1, 6):
                l = a.label("SN")
                I(f"s_cmp_lg_u32 s41, {k}"); I(f"s_cbranch_scc1 {l}")
                touch(k); ret(); a.L(l)
            I(f"s_lshl_b32 s44, s{SF}, 2"); I(f"s_add_u32 s44, s44, {FY_OFF}")
            sv = self.save(); self.publish(44, 2); self.restore(sv)
            ret()
        def spf():
            I("s_add_u32 s41, s41, 1"); rarely("s_bitcmp1_b32 s40, s41", lambda: I(f"s_call_b64 s[76:77], {LSITE}"))
        spub = (spf, 12)
        def snap():
            I(f"s_mov_b32 s61, {FY_OFF}"); I(f"buffer_load_dwordx4 v[52:55], v{VL16}, s[{RWS}:{RWS+3}], s61 offen sc1")
        def side_check():
            lo = a.label("SCK"); lb = a.label("SCR")
            def test():
                I("v_and_b32 v52, v52, v53"); I("v_and_b32 v54, v54, v55"); I("v_and_b32 v52, v52, v54"); I("v_and_b32 v52, 2, v52"); I("v_cmp_ne_u32 vcc, 2, v52")
            test(); I(f"s_cbranch_vccnz {lo}"); a.L(lb)
            def spin():
                lp = a.label("SPL")
                I("s_mov_b32 s99, 20000"); a.L(lp)
                I("s_sleep 2"); I(f"buffer_load_dwordx4 v[52:55], v{VL16}, s[{RWS}:{RWS+3}], s61 offen sc1"); I("s_waitcnt vmcnt(0)")
                test(); I(f"s_cbranch_vccz {lb}")
                I("s_sub_u32 s99, s99, 1"); I("s_cmp_lg_u32 s99, 0"); I(f"s_cbranch_scc1 {lp}")
            ool.append((lo, lb, spin))
        m2 = lambda sb, ko: (lambda: rarely(f"s_cmp_eq_u32 s{SC2}, 0", lambda: (snap(), mask_body(sb, ko))))
        LEV = a.label("EVEN"); LODM = a.label("ODDM"); LTRANS = a.label("TRANS"); LP2 = a.label("P2"); LP2B = a.label("P2B"); LDRAIN = a.label("DRAIN")
        self.stamp(8)
        self.ring_n = 0
        R = [rd("k", 0, i) for i in range(8)] + [rd("k", 1, i) for i in range(8)]
        def qrd(i):
            I(f"ds_read_b128 {v(QF+4*i,4)}, v{TMP+1} offset:{1024*i}"); return lg.issue()
        for i in range(4): qrd(i); R[i][0]()
        for i in range(4, 8): tq = qrd(i)
        D = dma4("v") + dma4("k")
        fx = {g: [(R[4+g][0], 4)] for g in range(4)}
        put(fx, 3, [(lambda: lg.wait(tq), 4)])
        for F in range(8, 15): put(fx, last_use(F - 8) + 1, [(R[F][0], 4)])
        for n, d in enumerate(D): put(fx, 2*n, [d])
        sched(qk(0, R, 0, True), fx, [])
        m1(0, 0)()
        pre = init_max()
        fx = {0: [(R[15][0], 4)], 8: [op(f"v_xor_b32 v{VV}, 0x10000, v{VK}"), op(f"v_xor_b32 v{VK}, 0x4000, v{VK}")]}
        sched(qk(1, R, 8), fx, pre + sm_ops(0)[:SPL])
        R = mk_reads()
        head(R, vm4, False, post=[m1(1, 32)])
        svm = self.save()
        self.stamp(9)
        LOD = [a.label("ODD0"), a.label("ODD1")]
        I(f"s_cmp_eq_u32 s{SG}, 1"); I(f"s_cbranch_scc1 {LOD[1]}"); I(f"s_branch {LOD[0]}")
        vm0 = lambda: I("s_waitcnt vmcnt(0)")
        def loops(g):
            LEV = a.label("EVEN"); LP2 = a.label("P2")
            mm = (lambda sb, ko: m1(sb, ko)) if g else (lambda sb, ko: None)
            a.L(LEV)
            R = mk_reads(); head(R, vm4)
            mid(R, "k", [op(f"v_xor_b32 v{VK}, 0x4000, v{VK}")], mb=mm(0, 0), early=[spub], g=g)
            R = mk_reads(); head(R, vm4, post=[m1(1, 32)] if g else [])
            assert self.lg.issued - self.lg.done == svm[2] - svm[3]
            a.L(LOD[g])
            mid(R, "v", [op(f"v_xor_b32 v{VK}, 0xc000, v{VK}")], mb=mm(0, 64), endops=[op(f"s_sub_u32 s{SC1}, s{SC1}, 1")], early=[spub], g=g)
            I(f"s_cmp_lg_u32 s{SC1}, -1"); I(f"s_cbranch_scc1 {LEV}")
            self.stamp(14)
            if g:
                loadq(VQ); I("s_waitcnt lgkmcnt(0)"); I(f"v_xor_b32 v{VK}, 0x4000, v{VK}")
            R = mk_reads(); head(R, vm4, more=mask_ops(1, 96) if g else ())
            mid(R, "k", [op(f"v_xor_b32 v{VK}, 0x8000, v{VK}")], mb=m2(0, -1), trans=bool(g), early=[spub], g=g)
            self.stamp(15)
            I(f"s_cmp_eq_u32 s{SC2}, 0"); I(f"s_cbranch_scc1 {LDRAIN}")
            a.L(LP2)
            R = mk_reads(); head(R, vm08 if g else vm0)
            mid(R, "kv", [op(f"v_xor_b32 v{VK}, 0x8000, v{VK}")], mb=m2(0, -1), endops=[sta] if g else [],
                early=[spub] + ([(fin, 8)] if g else []) + [op(f"s_sub_u32 s{SC2}, s{SC2}, 1")], g=g)
            I(f"s_cmp_lg_u32 s{SC2}, 0"); I(f"s_cbranch_scc1 {LP2}")
        loops(1); I(f"s_branch {LDRAIN}")
        loops(0)
        a.L(LDRAIN)
        self.stamp(10)
        R2 = [rd("v", 0, i) for i in range(8)] + [rd("v", 1, i) for i in range(8)]
        rf = [(f, 4) for f, h in R2]
        ts, ts2, ts3 = self.tail_setup()
        tsa = [x for x in ts if x[1] == 4]; tsl = [x for x in ts if x[1] != 4]
        mk_ = mask_ops(1, -33)
        head(R2, lambda: (vm08(), side_check(), tsl[0][0](), tsl[1][0]()), post=[fin, sta[0]], pre=tsa[:8], more=tsa[8:16] + [tsl[2]] + mk_)
        ts = tsa[16:]
        if self.o.get("dst"): self.stamp(17)
        pre = []; E_ = lambda t: pre.append(op(t))
        E_(f"s_add_u32 s44, s{SWK}, {ML}"); E_(f"v_add_u32 v54, s44, v{VL16}")
        E_(f"s_lshl_b32 s46, s{SW}, 13"); E_(f"v_add_u32 v55, s46, v{VL16}")
        E_(f"s_sub_u32 s54, 15, s{SIDX}"); E_(f"s_lshl_b32 s54, s54, 2"); E_(f"s_add_u32 s54, s54, s{SR}"); E_("s_lshl_b32 s54, s54, 5"); E_(f"s_add_u32 s54, s54, s{SHEAD}")
        E_("s_lshl_b32 s54, s54, 13"); E_(f"s_lshl_b32 s44, s{SG}, 12"); E_("s_add_u32 s54, s54, s44"); E_(f"s_add_u32 s54, s54, {CTX_OFF}")
        def lsum():
            def wml():
                I(f"ds_write_b128 v54, {v(150,4)}"); lg.issue()
            return [op(f"v_mov_b32 v150, v{NM}"), op(f"v_mov_b32 v{LS+1}, v{LS+4}"), (wml, 4)]
        def osend(g, i):
            def f():
                I(f"ds_write_b128 v55, {v(O+32*(1-g)+4*i,4)} offset:{1024*i}"); lg.issue()
            return (f, 16)
        lj = a.label("MGJ"); LMG = [a.label("MG0"), a.label("MG1")]; LFB = a.label("FB1"); LSK = a.label("SKIP"); LS1 = a.label("SK1")
        for c, _ in ts: c()
        I(f"s_lshl_b32 s45, s{SG}, 1"); I(f"s_sub_u32 s45, s{SR}, s45"); I("s_cmp_lt_i32 s45, 1"); I(f"s_cbranch_scc1 {LSK}")
        svd = self.save(); rnd = self.ring_n
        WA_ = self.o.get("wa", 6); tsA, tsB = ts2[:WA_], ts2[WA_:]
        setup_ = pre + ts3; n8 = (len(setup_) + 17) // 18
        fx = {g: setup_[g*n8:(g+1)*n8] for g in range(18)}
        for n, x in enumerate(tsA): put(fx, 1 + n * 17 // max(1, len(tsA)), [x])
        for F in range(7, 15): put(fx, 2*(F - 7) + (2 if F > 7 else 0), [rf[F]])
        sched(pv(0, R2, 0), fx, sm_ops(1))
        check(1)
        rf[15][0]()
        if self.o.get("dst"): self.stamp(20)
        I(f"s_cmp_eq_u32 s{SG}, 1"); I(f"s_cbranch_scc1 {LFB}")
        sv2 = self.save(); PR = 64
        for g in (0, 1):
            if g: a.L(LFB); self.restore(sv2)
            own = O + 32*g; snd = O + 32*(1-g)
            dts = list(range(4*(1-g), 4*(1-g)+4)) + list(range(4*g, 4*g+4))
            fx = {10 + i: [osend(g, i)] for i in range(8)}
            put(fx, 8, lsum())
            for n, x in enumerate(tsB): put(fx, n * 10 // max(1, len(tsB)), [x])
            sched(pv(1, R2, 8, dts, True), fx, self.tail_valu())
            a.L(LMG[g])
            if self.o.get("dst"): self.stamp(18)
            I(f"v_xor_b32 v54, 0x1c00, v54"); I(f"v_xor_b32 v55, 0xe000, v55")
            I("s_waitcnt lgkmcnt(0)"); lg.mark_all_done(); self.barrier()
            if self.o.get("dst"): self.stamp(19)
            I(f"ds_read_b128 {v(96,4)}, v54"); t0 = lg.issue()
            tk = []
            for i in range(8):
                I(f"ds_read_b128 {v(PR+4*i,4)}, v55 offset:{1024*i}"); tk.append(lg.issue())
            lg.wait(t0)
            for q in range(2):
                I(f"v_min_f32 v100, v{150+q}, v{96+q}"); I(f"v_sub_f32 v101, v100, v{150+q}"); I(f"v_sub_f32 v102, v100, v{96+q}")
                I("v_exp_f32 v101, v101"); I("v_exp_f32 v102, v102")
                I(f"v_mul_f32 v103, v101, v{LS+q}"); I(f"v_fmac_f32 v103, v102, v{98+q}"); I("v_rcp_f32 v103, v103")
                b = 104 + 4*q
                I(f"v_mul_f32 v{b}, v101, v103"); I(f"v_mul_f32 v{b+1}, v101, v103"); I(f"v_mul_f32 v{b+2}, v102, v103"); I(f"v_mul_f32 v{b+3}, v102, v103")
            tw = self.tail_writes()
            for q in range(4):
                b = 104 + 4*(q & 1)
                for i in range(8*q, 8*q+8, 2): I(f"v_pk_mul_f32 {v(own+i,2)}, {v(own+i,2)}, {v(b,2)}")
                lg.wait(tk[2*q+1])
                if not self.o.get("twe"):
                    for c in tw[3*q:3*q+3]: c()
                for i in range(8*q, 8*q+8, 2): I(f"v_pk_fma_f32 {v(own+i,2)}, {v(PR+i,2)}, {v(b+2,2)}, {v(own+i,2)}")
                for i in range(4): I(f"v_cvt_pk_bf16_f32 v{snd+4*q+i}, v{own+8*q+2*i}, v{own+8*q+2*i+1}")
                I(f"buffer_store_dwordx4 {v(snd+4*q,4)}, v{VL16}, s[{RWS}:{RWS+3}], s54 offen offset:{coff(q)}{self.st}"); self.tctx = vm.issue()
            if self.o.get("twe"):
                for c in tw: c()
            if not g: I(f"s_branch {lj}")
        def skip_path():
            keep = self.save(); tctx = self.tctx; th = self.th; wt = dict(self.wtok)
            a.L(LSK); self.restore(svd); self.ring_n = rnd
            I("s_cmp_lt_i32 s45, 0"); I(f"s_cbranch_scc1 {LS1}")
            rf[7][0]()
            for f in pv(0, R2[:8], 0): f()
            a.L(LS1)
            for c, _ in setup_ + ts2 + lsum() + self.tail_valu(): c()
            l1 = a.label("SG1"); I(f"s_cmp_eq_u32 s{SG}, 1"); I(f"s_cbranch_scc1 {l1}")
            for g in (0, 1):
                if g: a.L(l1)
                for i in range(8): osend(g, i)[0]()
                I(f"s_branch {LMG[g]}")
            self.restore(keep); self.tctx = tctx; self.th = th; self.wtok = wt
        a.L(lj)
        I("s_setprio 0")
        self.stamp(4)
        def cold():
            skip_path()
            site_code()
            for (lo, lb, body) in ool:
                a.L(lo); body(); I(f"s_branch {lb}")
            for (lr, lb, sb, other) in rare:
                a.L(lr)
                I("s_nop 15")
                rowmax(sb)
                for q in range(2): I(f"v_add_f32 v{TMP+q}, {f2u(BIAS)}, v{TMP+q}"); I(f"v_max_f32 v{TMP+q}, 0, v{TMP+q}"); I(f"v_exp_f32 v{TMP+2+q}, -v{TMP+q}")
                for r in range(8): I(f"v_sub_f32 v{NM+r}, v{NM+r}, v{TMP+(r>>2)}")
                for r in range(16): I(f"v_sub_f32 v{S[sb]+r}, v{S[sb]+r}, v{TMP+(r>>3)}")
                if other:
                    for r in range(16): I(f"v_sub_f32 v{S[1-sb]+r}, v{S[1-sb]+r}, v{TMP+(r>>3)}")
                for r in range(64): I(f"v_mul_f32 v{O+r}, v{O+r}, v{TMP+2+((r>>3)&1)}")
                for r in range(8): I(f"v_mul_f32 v{LS+r}, v{LS+r}, v{TMP+2+(r>>2)}")
                for c, _ in sm_ops(sb): c()
                I("s_nop 1"); I(f"s_branch {lb}")
        self.attn_rare = cold

    HB = 65536; HC = 4416; XB = 136192; YB = 148480
    SC, SJ, SB, SCH, SHB_, SWO, SCX = 34, 35, 36, 37, 38, 39, 40
    WS_ = [16, 24, 32, 40, 176, 184, 48, 56] + list(range(80, 144, 8))
    def tail_setup(self):
        I = self.I; L = []; E = lambda t: L.append((lambda: I(t), 4))
        SC, SJ, SB, SCH, SHB_, SWO, SCX = self.SC, self.SJ, self.SB, self.SCH, self.SHB_, self.SWO, self.SCX
        self.wtok = {}; self.wslot = dict(enumerate(self.WS_))
        E(f"s_lshr_b32 s{SC}, s{SW}, 2"); E(f"s_and_b32 s{SJ}, s{SW}, 3")
        E(f"s_lshl_b32 s{SCH}, s{SF}, 1"); E(f"s_add_u32 s{SCH}, s{SCH}, s{SC}"); E(f"s_lshl_b32 s{SCH}, s{SCH}, 12")
        E(f"s_lshl_b32 s60, s{SJ}, 10"); E("v_add_u32 v50, s60, v6"); E("v_subrev_u32 v51, 16, v50")
        E(f"s_lshl_b32 s63, s{SW}, 18"); E(f"s_lshl_b32 s62, s{SF}, 5"); E("s_add_u32 s63, s63, s62"); E(f"s_add_u32 s63, s63, {KVT_OFF}")
        E("v_lshrrev_b32 v48, 1, v0"); E("v_and_b32 v158, 1, v0" if False else "v_and_b32 v3, 1, v0"); E("v_lshlrev_b32 v49, 13, v48"); E("v_lshl_add_u32 v49, v3, 4, v49")
        def ld(t):
            def f(): I(t); self.th = self.vm.issue()
            L.append((f, 16))
        ld(f"buffer_load_dwordx4 {v(160,4)}, v51, s[{RB}:{RB+3}], s{SCH} offen")
        ld(f"buffer_load_dwordx4 {v(164,4)}, v50, s[{RB}:{RB+3}], s{SCH} offen")
        ld(f"buffer_load_dwordx4 {v(168,4)}, v49, s[{RWS}:{RWS+3}], s63 offen{self.ld}")
        E(f"s_lshl_b32 s{SWO}, s57, 19"); E(f"s_lshl_b32 s60, s{SW}, 15"); E(f"s_add_u32 s{SWO}, s{SWO}, s60"); E(f"s_add_u32 s{SWO}, s{SWO}, {WOT_OFF}")
        E("s_and_b32 s60, s56, 1"); E("s_lshl_b32 s60, s60, 18"); E(f"s_add_u32 s{SWO}, s{SWO}, s60")
        TR_ = self.o.get("trot", 1)
        if TR_ == 0: E("s_mov_b32 s58, 0")
        elif TR_ == 1: E("s_mov_b32 s58, s57")
        else: E("s_and_b32 s58, s56, 6"); E("s_add_u32 s58, s58, s57")
        def w1(i, mt):
            if mt == 0 and i % 2 == 0: self.wadr(i)
            I(f"buffer_load_dwordx4 {v(self.WS_[i]+4*mt,4)}, v6, s[{RWS}:{RWS+3}], s59 offen offset:{(i&1)*2048+mt*1024}{self.ld}"); self.wtok[i] = self.vm.issue()
        L2 = [(lambda i=i, mt=mt: w1(i, mt), 16) for i in range(self.o.get("we", 6)) for mt in range(2)]
        L3 = []; L, Lx = L3, L
        E = lambda t: L3.append((lambda: I(t), 4))
        E(f"s_mul_i32 s{SB}, s{SC}, 6144"); E(f"s_add_u32 s{SB}, s{SB}, {self.XB}")
        E(f"s_mul_i32 s{SHB_}, s{SC}, {8*self.HC}"); E(f"s_add_u32 s{SHB_}, s{SHB_}, {self.HB}")
        E(f"s_xor_b32 s{SCX}, s56, 1"); E(f"s_lshl_b32 s{SCX}, s{SCX}, 19"); E(f"s_lshl_b32 s60, s{SW}, 14"); E(f"s_add_u32 s{SCX}, s{SCX}, s60"); E(f"s_add_u32 s{SCX}, s{SCX}, {CTX_OFF}")
        E("s_and_b32 s60, s56, 1"); E("s_lshl_b32 s60, s60, 17"); E(f"s_add_u32 s{SCX}, s{SCX}, s60")
        return Lx, L2, L3
    def wreg(self, i):
        return self.WS_[i % len(self.WS_)]
    def wload(self, i):
        I = self.I; r = self.wslot[i]
        I(f"s_add_u32 s61, s{self.SWO}, {i*2048}")
        for mt in range(2):
            I(f"buffer_load_dwordx4 {v(r+4*mt,4)}, v6, s[{RWS}:{RWS+3}], s61 offen offset:{mt*1024}{self.ld}"); self.wtok[i] = self.vm.issue()
    def wadr(self, i):
        I = self.I
        I(f"s_add_u32 s59, s58, {i >> 1}"); I("s_and_b32 s59, s59, 7"); I("s_lshl_b32 s59, s59, 12"); I(f"s_add_u32 s59, s59, s{self.SWO}")
    def tail_valu(self):
        I = self.I; HC = self.HC; L = []; E = lambda t: L.append((lambda: I(t), 4))
        SJ, SB, SHB_ = self.SJ, self.SB, self.SHB_
        Ee, Eo, Oe, Oo = 160, 113, 122, 131
        E(f"s_add_u32 s60, s{SHB_}, 64"); E("v_add_u32 v138, s60, v50")
        E("v_and_b32 v51, 3, v48"); E("v_mul_u32_u24 v139, 1536, v51"); E("v_lshrrev_b32 v53, 2, v48"); E("v_lshl_add_u32 v139, v53, 4, v139")
        E("v_and_b32 v53, 1, v0"); E("v_mul_u32_u24 v53, 6144, v53"); E(f"s_lshl_b32 s60, s{SW}, 7"); E(f"s_add_u32 s60, s60, {self.XB + 512}"); E("v_add3_u32 v139, v139, v53, s60")
        E("v_and_b32 v51, 3, v0")
        for r in range(2): E(f"v_mov_b64 {v(172+2*r,2)}, 0")
        E("v_bfe_u32 v140, v0, 2, 3"); E(f"v_mul_u32_u24 v140, {HC}, v140"); E("v_lshl_add_u32 v140, v51, 4, v140"); E(f"v_add_u32 v140, s{SHB_}, v140")
        E(f"s_mul_i32 s60, s{SJ}, 1536"); E(f"s_add_u32 s60, s60, s{SB}"); E("v_lshl_add_u32 v141, v0, 3, s60")
        L.append((lambda: self.vm.wait(self.th - 1), 4))
        for k in range(7): E(f"v_alignbit_b32 v{Oe+k}, v{Ee+k+1}, v{Ee+k}, 16")
        for k in range(1, 7): E(f"v_alignbit_b32 v{Oo+k}, v{Ee+k+1}, v{Ee+k}, 16")
        for k in range(1, 7): E(f"v_mov_b32 v{Eo+k}, v{Ee+k}")
        return L
    def tail_writes(self):
        I = self.I; lg = self.lg; HC = self.HC; L = []
        Ee, Eo, Oe, Oo = 160, 113, 122, 131
        def W(t, pre=None):
            def f():
                if pre: pre()
                I(t); lg.issue()
            L.append(f)
        for r in range(8):
            sft = 1 + r; k = sft >> 1
            base = ((Oe, Oo) if sft & 1 else (Ee, Eo))[k & 1]
            W(f"ds_write_b128 v138, {v(base+k,4)} offset:{r*HC}")
        W(f"ds_write_b128 v140, {v(172,4)}"); W(f"ds_write_b64 v141, {v(172,2)}")
        W(f"ds_write_b128 v139, {v(168,4)}", lambda: self.vm.wait(self.th))
        return L
    def tailp(self):
        a = self.a; I = self.I; vm = self.vm; lg = self.lg
        HB, HC, YB = self.HB, self.HC, self.YB
        SC, SJ, SB, SCH, SHB_, SWO, SCX = self.SC, self.SJ, self.SB, self.SCH, self.SHB_, self.SWO, self.SCX
        ACC = 192; FRS = [224, 240, 64]; RD_ = 224; OACC = 192; YT = self.XB
        VL16, VA, VB, T, VP, VPA, VO, GR, VW1 = 6, 4, 5, 12, 7, 8, 9, 10, 11
        WSL = self.WS_; CSL = [144, 152, 160, 168, 64, 72]
        assert len(WSL) == 16
        I(f"s_lshr_b32 s53, s56, 1"); I("s_lshl_b32 s53, s53, 10"); I("s_and_b32 s44, s56, 1"); I("s_lshl_b32 s44, s44, 9"); I("s_add_u32 s53, s53, s44")
        I(f"s_lshr_b32 s44, s{SW}, 1"); I("s_lshl_b32 s44, s44, 7"); I("s_add_u32 s53, s53, s44"); I(f"s_and_b32 s44, s{SW}, 1"); I("s_lshl_b32 s44, s44, 3")
        I("s_add_u32 s53, s53, s44"); I(f"s_add_u32 s53, s53, {FC_OFF}")
        I(f"v_and_b32 v{VPA}, 1, v0"); I(f"v_lshlrev_b32 v{VPA}, 2, v{VPA}")
        PUBN = self.o.get("pubn", 4)
        I(f"s_lshr_b32 s45, s{SHEAD}, 2"); I("s_lshl_b32 s45, s45, 7"); I(f"s_and_b32 s44, s{SHEAD}, 3"); I("s_lshl_b32 s44, s44, 2"); I("s_add_u32 s45, s45, s44")
        I(f"s_sub_u32 s44, 15, s{SIDX}"); I("s_lshl_b32 s44, s44, 10"); I("s_add_u32 s46, s44, s45"); I(f"s_add_u32 s46, s46, {FC_OFF}")
        I(f"s_lshl_b32 s44, s{SIDX}, 10"); I("s_add_u32 s47, s44, s45"); I(f"s_add_u32 s47, s47, {FC_OFF}")
        self.srd(RC, "out", 2*MB); self.srd(RD, "q", 2*MB)
        I(f"s_lshl_b32 s44, s{SF}, 2"); I(f"s_load_dword s55, s[{P['ssmD']}:{P['ssmD']+1}], s44")
        I(f"v_and_b32 v{T}, 15, v0"); I(f"v_lshrrev_b32 v{T+1}, 4, v0")
        I(f"v_and_b32 v{T+2}, 7, v0"); I(f"v_mul_u32_u24 v{VA}, {HC}, v{T+2}")
        I(f"v_bfe_u32 v{T+2}, v0, 3, 1"); I(f"v_sub_u32 v{T+2}, v{T+2}, v{T+1}"); I(f"v_lshl_add_u32 v{VA}, v{T+2}, 4, v{VA}")
        I(f"s_lshl_b32 s43, s{SJ}, 8"); I(f"s_add_u32 s43, s43, s{SHB_}"); I("s_add_u32 s43, s43, 64"); I(f"v_add_u32 v{VA}, s43, v{VA}")
        I(f"s_lshl_b32 s43, s{SJ}, 6"); I(f"s_sub_u32 s43, s{SB}, s43"); I(f"s_add_u32 s43, s43, {(32-3)*16}")
        I(f"v_lshl_add_u32 v{VB}, v{T}, 4, s43"); I(f"v_mul_u32_u24 v{T+2}, 1536, v{T+1}"); I(f"v_add_u32 v{VB}, v{VB}, v{T+2}")
        I(f"s_lshl_b32 s51, s{SW}, 13"); I(f"s_xor_b32 s52, s{SCX}, 0x80000")
        I("s_waitcnt lgkmcnt(0)"); lg.mark_all_done(); self.barrier()
        self.stamp(5)
        wtok = dict(self.wtok); ctok = {}; cslot = dict(enumerate(CSL))
        def wload(k):
            if k % 2 == 0: self.wadr(k)
            for mt in range(2):
                I(f"buffer_load_dwordx4 {v(WSL[k]+4*mt,4)}, v{VL16}, s[{RWS}:{RWS+3}], s59 offen offset:{(k&1)*2048+mt*1024}{self.ld}"); wtok[k] = vm.issue()
        def cload(i):
            I(f"s_add_u32 s62, s58, {i & 7}"); I("s_and_b32 s62, s62, 7"); I("s_lshl_b32 s62, s62, 11"); I(f"s_add_u32 s62, s62, s{52 if i >= 16 else SCX}")
            if i & 8: I("s_add_u32 s62, s62, 0x40000")
            for qt in range(2):
                I(f"buffer_load_dwordx4 {v(cslot[i]+4*qt,4)}, v{VL16}, s[{RWS}:{RWS+3}], s62 offen offset:{qt*1024}{self.ld}"); ctok[i] = vm.issue()
        wl = [k for k in range(16) if k not in wtok]
        BS = [224, 240]; AS = list(range(160, 176, 4)) + list(range(64, 80, 4)); NA = len(AS)
        seq = [(dd, m, bt) for dd in range(4) for (m, bt) in ((0, 0), (3, 0), (0, 1), (3, 1), (1, 0), (2, 0), (1, 1), (2, 1))]
        atok = {}; btok = {}
        def rda(n):
            if n >= len(seq): return
            dd, m, bt = seq[n]
            I(f"ds_read_b128 {v(AS[n % NA],4)}, v{VA} offset:{64*dd + 1024*m + 32*bt}"); atok[n] = lg.issue()
        def rdb(dd, n):
            if dd >= 4: return
            I(f"ds_read_b128 {v(BS[dd & 1]+4*n,4)}, v{VB} offset:{(3-dd)*16 + 256*n}"); btok[(dd, n)] = lg.issue()
        rda(0)
        for n in range(4): rdb(0, n)
        for n in range(1, NA - 1): rda(n)
        seen = set()
        for n, (dd, m, bt) in enumerate(seq):
            for nn in range(4 - m):
                lg.wait(max(atok[n], btok[(dd, nn)]))
                key = (m + nn, bt); d = v(ACC + 8*key[0] + 4*bt, 4)
                I(f"v_mfma_f32_16x16x32_bf16 {d}, {v(AS[n % NA],4)}, {v(BS[dd & 1]+4*nn,4)}, {d if key in seen else '0'}"); seen.add(key)
                if nn == 0:
                    rda(n + NA - 1)
                    if 1 <= (n & 7) <= 4: rdb(dd + 1, (n & 7) - 1)
            if n & 1:
                h_ = n >> 1
                if h_ == PUBN:
                    vm.wait(self.tctx); self.barrier(); self.publish(46); self.publish(47)
                if h_ >= self.o.get("wst", 2) and len(wl) > self.o.get("wkeep", 2): wload(wl.pop(0))
                if h_ == self.o.get("p1", 12): tc1 = self.poll_issue(VP, VPA, "s53")
        I(f"v_add_u32 v{T+2}, s51, v{VL16}")
        for i in range(8):
            I(f"ds_write_b128 v{T+2}, {v(ACC+4*i,4)} offset:{1024*i}"); lg.issue()
        while wl: wload(wl.pop(0))
        I(f"s_lshl_b32 s43, s{SC}, 15"); I(f"s_lshl_b32 s44, s{SJ}, 11"); I("s_add_u32 s43, s43, s44"); I(f"v_add_u32 v{T+2}, s43, v{VL16}")
        I(f"s_lshl_b32 s44, s{SJ}, 8"); I(f"s_add_u32 s44, s44, s{SB}"); I("s_add_u32 s44, s44, 520")
        I(f"v_lshl_add_u32 v{T+3}, v{T}, 4, s44"); I(f"v_and_b32 v{VA}, 1, v{T+1}"); I(f"v_lshlrev_b32 v{VA}, 3, v{VA}"); I(f"v_sub_u32 v{T+3}, v{T+3}, v{VA}")
        I(f"v_lshrrev_b32 v{VA}, 1, v{T+1}"); I(f"v_mul_u32_u24 v{VA}, 1536, v{VA}"); I(f"v_add_u32 v{T+3}, v{T+3}, v{VA}")
        I(f"v_lshlrev_b32 v{VB}, 6, v{T}"); I(f"v_lshl_add_u32 v{VB}, v{T+1}, 3, v{VB}")
        I(f"s_add_u32 s45, s{SWK}, {YB}"); I(f"v_add_u32 v{VB}, s45, v{VB}")
        I("s_lshl_b32 s43, s55, 16"); I("s_and_b32 s44, s55, 0xffff0000"); I(f"s_cmp_eq_u32 s{SC}, 0"); I("s_cselect_b32 s55, s43, s44")
        lg.wait(lg.issued); self.barrier()
        self.stamp(12)
        for p in range(4):
            for gq in range(2):
                I(f"ds_read_b128 {v(RD_+8*p+4*gq,4)}, v{T+2} offset:{8192*p+1024*gq}"); lg.issue()
        for gq in range(2):
            I(f"ds_read_b64 {v(ACC+2*gq,2)}, v{T+3} offset:{3072*gq}"); lg.issue()
        le = a.label("NE")
        vm.wait(tc1); I(f"v_and_b32 v{VP}, 1, v{VP}"); I(f"v_cmp_ne_u32 vcc, 1, v{VP}"); I("s_mov_b32 s50, 0"); I(f"s_cbranch_vccnz {le}")
        sv = self.save(); I("s_mov_b32 s50, 1")
        for i in range(len(CSL)): cload(i)
        self.restore(sv); a.L(le)
        lg.wait(lg.issued)
        for i in range(0, 8, 2):
            I(f"v_pk_add_f32 {v(RD_+i,2)}, {v(RD_+i,2)}, {v(RD_+8+i,2)}"); I(f"v_pk_add_f32 {v(RD_+16+i,2)}, {v(RD_+16+i,2)}, {v(RD_+24+i,2)}")
        for i in range(0, 8, 2): I(f"v_pk_add_f32 {v(RD_+i,2)}, {v(RD_+i,2)}, {v(RD_+16+i,2)}")
        for gq in range(2):
            for r in range(4):
                srcr = ACC + 2*gq + (1 - (r >> 1))
                I(f"v_lshlrev_b32 v{ACC+8}, 16, v{srcr}" if r & 1 else f"v_and_b32 v{ACC+8}, 0xffff0000, v{srcr}")
                I(f"v_fma_f32 v{RD_+4*gq+r}, v{ACC+8}, s55, v{RD_+4*gq+r}")
        for i in range(4): I(f"v_cvt_pk_bf16_f32 v{ACC+12+i}, v{RD_+2*i}, v{RD_+2*i+1}")
        for gq in range(2):
            I(f"ds_write_b64 v{VB}, {v(ACC+12+2*gq,2)} offset:{32*gq}"); lg.issue()
        I(f"v_and_b32 v{T+2}, 15, v0"); I(f"v_lshrrev_b32 v{T+1}, 4, v0"); I(f"v_lshlrev_b32 v{T+1}, 1, v{T+1}"); I(f"v_xor_b32 v{T+1}, v{T+1}, v{T+2}"); I(f"v_lshlrev_b32 v{T+1}, 4, v{T+1}")
        I(f"v_lshl_add_u32 v{VA}, v{T+2}, 8, v{T+1}"); I(f"v_add_u32 v{VA}, s51, v{VA}")
        I(f"s_lshr_b32 s48, s{SW}, 1"); I("s_lshl_b32 s48, s48, 4"); I(f"s_and_b32 s41, s{SW}, 1"); I("s_lshl_b32 s42, s41, 3")
        I(f"v_lshrrev_b32 v{T}, 4, v0"); I(f"v_lshl_add_u32 v{T+1}, v{T}, 1, s42"); I(f"v_xor_b32 v{T+1}, v{T+1}, v{T+2}"); I(f"v_lshlrev_b32 v{T+1}, 4, v{T+1}")
        I("s_and_b32 s43, s48, 16"); I(f"v_add_u32 v{T+3}, s43, v{T+2}"); I(f"v_lshl_add_u32 v{VW1}, v{T+3}, 8, v{T+1}")
        I("s_lshr_b32 s43, s48, 5"); I("s_lshl_b32 s43, s43, 16"); I(f"v_add_u32 v{VW1}, s43, v{VW1}")
        lg.wait(lg.issued); I(f"v_xor_b32 v{VB}, 16, v{VW1}"); self.barrier()
        ly = a.label("NY")
        I(f"s_cmp_lg_u32 s{SW}, 0"); I(f"s_cbranch_scc1 {ly}")
        I(f"v_add_u32 v{T}, {YB}, v{VL16}")
        for i in range(8): I(f"ds_read_b128 {v(RD_+4*i,4)}, v{T} offset:{1024*i}")
        I(f"s_lshl_b32 s44, s{SF}, 13"); I(f"s_add_u32 s44, s44, {YT_OFF}"); I("s_add_u32 s45, s44, 4096")
        I("s_waitcnt lgkmcnt(0)")
        for i in range(8): I(f"buffer_store_dwordx4 {v(RD_+4*i,4)}, v{VL16}, s[{RWS}:{RWS+3}], s{44+(i>>2)} offen offset:{1024*(i&3)}{self.st}")
        a.L(ly)
        ll = a.label("NL")
        I("s_cmp_eq_u32 s50, 1"); I(f"s_cbranch_scc1 {ll}")
        self.poll_check(VP, VPA, "s53", 1)
        for i in range(len(CSL)): cload(i)
        a.L(ll)
        self.stamp(6)
        def put_ops(st):
            L = []
            for mt in range(4):
                def f(mt=mt):
                    I(f"v_xor_b32 v{T+3}, {(8*(mt>>1)+(mt&1))*16 + 0x10000*st}, v{VA}")
                    for qt in range(2):
                        I(f"ds_write_b128 v{T+3}, {v(OACC+32*st+8*mt+4*qt,4)} offset:{4096*qt}"); lg.issue()
                L.append(f)
            return L
        def sum_partials(mid=None):
            tk = []
            for p in range(8):
                for hh in range(2):
                    I(f"ds_read_b128 {v(OACC+8*p+4*hh,4)}, v{(VW1, VB)[hh]} offset:{8192*p}"); lg.issue()
                tk.append(lg.issued)
                if p == 5 and mid: mid()
            for p in range(1, 8):
                lg.wait(tk[p])
                for e in range(0, 8, 2): I(f"v_pk_add_f32 {v(OACC+e,2)}, {v(OACC+e,2)}, {v(OACC+8*p+e,2)}")
        ymark = vm.issued; ypub = False; pm = {}; ppub = False; free = []; nc = len(CSL); XR = WSL[0]; PR_ = WSL[1]
        TS = [OACC + 32 + 8*n for n in range(4)]; ptk = {}
        def prd(p):
            r = TS[0] if p == 0 else TS[1 + (p - 1) % 3]
            for hh in range(2):
                I(f"ds_read_b128 {v(r+4*hh,4)}, v{(VW1, VB)[hh]} offset:{8192*p}"); ptk[p] = lg.issue()
        def padd(p):
            lg.wait(ptk[p]); r = TS[1 + (p - 1) % 3]
            for e in range(0, 8, 2): I(f"v_pk_add_f32 {v(TS[0]+e,2)}, {v(TS[0]+e,2)}, {v(r+e,2)}")
            if p + 3 < 8: prd(p + 3)
        def pst():
            I(f"s_lshl_b32 s44, s{SF}, 14"); I(f"s_lshl_b32 s45, s{SW}, 11"); I("s_add_u32 s54, s44, s45"); I(f"s_add_u32 s54, s54, {PP_OFF}")
            for hh in range(2):
                I(f"buffer_store_dwordx4 {v(TS[0]+4*hh,4)}, v{VL16}, s[{RWS}:{RWS+3}], s54 offen offset:{1024*hh}{self.st}"); pm["t"] = vm.issue()
        B1 = self.o.get("b1", 18); PS = self.o.get("ps", 21)
        for i2 in range(0, 32, 2):
            st = (i2 >> 3) & 1; J = i2 & 7; fill = []
            if i2 in (8, 24): fill = put_ops(0)
            if i2 == 16: fill = put_ops(1)
            if i2 == 24: self.barrier()
            if i2 == B1:
                lg.wait(lg.issued); self.barrier()
                for p in range(4): prd(p)
                fill = [lambda p=p: padd(p) for p in range(1, 8)]
                I(f"s_lshl_b32 s53, s57, 7"); I(f"s_lshl_b32 s42, s{SW}, 4"); I("s_add_u32 s53, s53, s42"); I(f"s_add_u32 s53, s53, {FY_OFF}")
                I(f"v_and_b32 v{VPA}, 3, v0"); I(f"v_lshlrev_b32 v{VPA}, 2, v{VPA}")
                tf = self.poll_issue(VP, VPA, "s53")
            if i2 == 26:
                I(f"v_and_b32 v{T+1}, 15, v0"); I(f"s_lshl_b32 s45, s56, 6"); I("s_add_u32 s45, s45, s48"); I(f"v_add_u32 v{T+1}, s45, v{T+1}")
                I(f"v_lshlrev_b32 v{T+2}, 2, v{T+1}"); I(f"s_mov_b32 s45, {G_OFF}")
                I(f"buffer_load_dword v{GR}, v{T+2}, s[{RWS}:{RWS+3}], s45 offen{self.ld}"); vm.issue()
                I(f"v_lshrrev_b32 v{T+2}, 4, v0"); I(f"v_lshlrev_b32 v{T+2}, 4, v{T+2}"); I(f"v_lshl_add_u32 v{VO}, v{T+1}, 10, v{T+2}")
                I("s_lshl_b32 s49, s41, 6"); I(f"s_lshl_b32 s45, s57, 7"); I("s_add_u32 s49, s49, s45")
                I(f"buffer_load_dwordx4 {v(XR,4)}, v{VO}, s[{RD}:{RD+3}], s49 offen"); vm.issue()
                vm.wait(tf); self.poll_check(VP, VPA, "s53", 1)
                I(f"v_lshrrev_b32 v{T}, 3, v0"); I(f"v_and_b32 v{T+1}, 7, v0"); I(f"v_lshlrev_b32 v{T+1}, 4, v{T+1}")
                I(f"v_lshl_add_u32 v{T}, v{T}, 12, v{T+1}")
                I(f"s_add_u32 m0, s{SWK}, {YT}")
                I(f"s_lshl_b32 s44, s57, 18"); I(f"s_lshl_b32 s45, s{SW}, 15"); I("s_add_u32 s44, s44, s45")
                I(f"s_lshl_b32 s45, s56, 7"); I("s_add_u32 s44, s44, s45"); I(f"s_add_u32 s44, s44, {YT_OFF}")
                I(f"buffer_load_dwordx4 v{T}, s[{RWS}:{RWS+3}], s44 offen{self.ld} lds"); vm.issue()
            vm.wait(max(ctok[i2+1], wtok[2*J+3]))
            if not ypub and vm.done > ymark:
                ypub = True; I(f"s_lshl_b32 s44, s{SF}, 2"); I(f"s_add_u32 s44, s44, {FY_OFF}"); self.publish(44, 3)
            if pm and not ppub and vm.done >= pm["t"]:
                ppub = True
                I(f"s_lshl_b32 s44, s{SF}, 7"); I(f"s_lshl_b32 s45, s{SW}, 2"); I("s_add_u32 s44, s44, s45"); I(f"s_add_u32 s44, s44, {FP_OFF}")
                I("v_mov_b32 v2, 1"); I("v_mov_b32 v3, 0"); I(f"buffer_store_dword v2, v3, s[{RWS}:{RWS+3}], s44 offen sc1"); vm.issue()
            if i2 == 30:
                I(f"s_xor_b32 s53, s{SF}, 32"); I("s_lshl_b32 s53, s53, 7"); I(f"s_lshl_b32 s42, s{SW}, 2"); I("s_add_u32 s53, s53, s42"); I(f"s_add_u32 s53, s53, {FP_OFF}")
                I(f"v_mov_b32 v{VPA}, 0")
            M = []
            for mt in range(4):
                for qt in range(2):
                    for u in range(2):
                        d = v(OACC + 32*st + 8*mt + 4*qt, 4)
                        M.append(lambda d=d, mt=mt, qt=qt, u=u: I(f"v_mfma_f32_16x16x32_bf16 {d}, {v(WSL[2*(J+u) + (mt >> 1)]+4*(mt & 1),4)}, {v(cslot[i2+u]+4*qt,4)}, {'0' if J + u == 0 else d}"))
            self.stream(M, [(1, 16, fill)] if fill else [])
            free += [cslot[i2], cslot[i2+1]]
            while free and nc < 32:
                cslot[nc] = free.pop(0); cload(nc); nc += 1
            if i2 + 1 == PS or i2 == PS: pst()
        assert ypub and ppub
        self.stamp(7)
        tp = self.poll_issue(VP, VPA, "s53")
        for f in put_ops(1): f()
        vm.wait(tp); self.poll_check(VP, VPA, "s53", 1)
        if self.o.get("ostamp"): self.stamp(20)
        I("s_xor_b32 s54, s54, 0x80000")
        for hh in range(2):
            I(f"buffer_load_dwordx4 {v(PR_+4*hh,4)}, v{VL16}, s[{RWS}:{RWS+3}], s54 offen offset:{1024*hh}{self.ld}"); tpp = vm.issue()
        I(f"v_lshrrev_b32 v{T}, 4, v0"); I("s_lshl_b32 s42, s41, 5"); I(f"v_lshl_add_u32 v{T}, v{T}, 3, s42"); I(f"v_bfe_u32 v{T+1}, v0, 2, 2")
        I(f"v_add_u32 v{T}, v{T}, v{T+1}"); I(f"v_lshlrev_b32 v{T}, 7, v{T}"); I(f"v_and_b32 v{T+1}, 3, v0")
        I(f"v_lshl_add_u32 v{T}, v{T+1}, 3, v{T}"); I("s_lshl_b32 s42, s48, 1"); I(f"s_add_u32 s42, s42, {YT}"); I(f"v_add_u32 v{T}, s42, v{T}")
        lg.wait(lg.issued); self.barrier()
        I(f"ds_read_b64_tr_b16 {v(100,2)}, v{T}"); lg.issue()
        I(f"ds_read_b64_tr_b16 {v(102,2)}, v{T} offset:512"); ty2 = lg.issue()
        def mix():
            lg.wait(ty2)
            for e in range(8):
                if e & 1: I(f"v_and_b32 v104, 0xffff0000, v{XR+(e>>1)}"); I(f"v_and_b32 v105, 0xffff0000, v{100+(e>>1)}")
                else: I(f"v_lshlrev_b32 v104, 16, v{XR+(e>>1)}"); I(f"v_lshlrev_b32 v105, 16, v{100+(e>>1)}")
                I(f"v_mul_f32 v{112+e}, v104, v105"); I(f"v_mul_f32 v{112+e}, v{112+e}, v{GR}")
            I(f"v_sub_f32 v{GR}, 1.0, v{GR}")
        sum_partials(mix)
        vm.wait(tpp)
        for e in range(0, 8, 2): I(f"v_pk_add_f32 {v(OACC+e,2)}, {v(OACC+e,2)}, {v(PR_+e,2)}")
        for e in range(8): I(f"v_fmac_f32 v{112+e}, v{OACC+4*(e&1)+(e>>1)}, v{GR}")
        for e in range(4): I(f"v_cvt_pk_bf16_f32 v{108+e}, v{112+2*e}, v{112+2*e+1}")
        I(f"buffer_store_dwordx4 {v(108,4)}, v{VO}, s[{RC}:{RC+3}], s49 offen sc1"); vm.issue()
        self.stamp(16)
        if self.o.get("echo"):
            lp = a.label("EC")
            I("s_sub_u32 s100, s100, s96")
            if self.o.get("cyc"): I("s_lshr_b32 s100, s100, 4")
            I("s_memrealtime s[96:97]"); I("s_waitcnt lgkmcnt(0)")
            a.L(lp)
            I("s_memrealtime s[98:99]"); I("s_waitcnt lgkmcnt(0)"); I("s_sub_u32 s98, s98, s96"); I("s_cmp_lt_u32 s98, s100"); I(f"s_cbranch_scc1 {lp}")
        if self.o.get("dbgout") is not None:
            l = a.label("DB")
            I(f"s_cmp_lg_u32 s2, {self.o['dbgout']}"); I(f"s_cbranch_scc1 {l}"); I(f"s_cmp_lg_u32 s{SW}, 0"); I(f"s_cbranch_scc1 {l}")
            I("s_waitcnt vmcnt(0)")
            order = [0, 1, 2, 3, 8, 10, 11, 4, 5, 12, 6, 7, 16]
            I("v_mov_b32 v20, 0")
            for j, i in enumerate(order):
                I(f"s_mov_b32 s44, {4*i}"); I(f"v_writelane_b32 v20, s44, {j}")
            I(f"s_lshl_b32 s44, s2, 11"); I(f"s_add_u32 s44, s44, {STAMP_OFF}")
            I(f"buffer_load_dword v21, v20, s[{RWS}:{RWS+3}], s44 offen sc1"); I("s_waitcnt vmcnt(0)")
            I("v_readfirstlane_b32 s45, v21"); I("v_subrev_u32 v21, s45, v21")
            self.srd(RDBG, "dbg", 64); I("v_lshlrev_b32 v22, 2, v0")
            I(f"buffer_store_dword v21, v22, s[{RDBG}:{RDBG+3}], 0 offen")
            a.L(l)

def build(opts):
    g = G(opts); k = NAME + "_kernel"
    g.begin(k); g.a.T("; MARK p"); g.proj(); g.a.T("; MARK a"); g.attn(); g.a.T("; MARK t"); g.tailp(); g.end(); g.a.T("; MARK a"); g.attn_rare(); g.a.T("; MARK t"); g.a.L("CODE_END"); g.a.I("s_endpgm")
    n = g.a.fix_hazards()
    txt = "; @launch grid=(256,1,1) block=(512,1,1) lds=163840\n"
    txt += '.amdgcn_target "amdgcn-amd-amdhsa--gfx950"\n.text\n' + g.a.text()
    txt += f""".section .rodata,"a"
.p2align 6
.amdhsa_kernel {k}
  .amdhsa_next_free_vgpr 256
  .amdhsa_next_free_sgpr 102
  .amdhsa_accum_offset 256
  .amdhsa_group_segment_fixed_size 0
  .amdhsa_kernarg_size 128
  .amdhsa_user_sgpr_count 2
  .amdhsa_user_sgpr_kernarg_segment_ptr 1
  .amdhsa_system_sgpr_workgroup_id_x 1
.end_amdhsa_kernel
"""
    print(f"instructions {sum(1 for it in g.a.items if it[0] == 'i')}, nops inserted {n}", file=sys.stderr)
    return txt

if __name__ == "__main__":
    opts = {}
    for x in sys.argv[2:]:
        if "=" in x: k_, v_ = x.split("="); opts[k_] = int(v_)
        else: opts[x] = True
    open(sys.argv[1], "w").write(build(opts))
```

```python
import sys, math, struct
sys.path.insert(0, "gen")
from asmlib import *

NAME = "gated_mix__ssm_conv_h3__compressed_kv_cla__prompt"
MB = 1 << 20
KV_OFF, Q_OFF, CTX_OFF, KVT_OFF, YT_OFF, G_OFF = 0, 32*MB, 48*MB, 64*MB, 66*MB, 68*MB
XC_OFF = 40*MB
PP_OFF = 40*MB
WOT_OFF = 32*MB
FLG_OFF = 68*MB + 65536
FK_OFF, FY_OFF, FC_OFF, FP_OFF = FLG_OFF, FLG_OFF + 4096, FLG_OFF + 8192, FLG_OFF + 32768
STAMP_OFF = 69*MB
WS_SIZE = 70*MB
P = dict(q=64, k=66, v=68, shift=70, ssmk=72, ssmD=74, bx=76, ckv=78, wq=80, wuk=82, wuv=84, wo=86, gate=88, out=90, dbg=92, ws=94)
SW, SHEAD, SIDX, SWK, SF = 3, 4, 5, 6, 7
RA, RB, RC, RWS, RD, RE, RT, RDBG = 8, 12, 16, 20, 24, 28, 56, 60
MFMA = "v_mfma_f32_32x32x16_bf16"
LOG2E = 1.4426950408889634
F_KV, F_CA, F_CB, F_Y = 1, 2, 4, 8
def f2u(x): return "0x%08x" % struct.unpack("<I", struct.pack("<f", x))[0]
def rep4(b): return b * 0x01010101

class G:
    def __init__(self, opts):
        self.a = Asm(); self.o = opts
        self.GSH, self.FSH = (8, 10) if opts.get("lin") else (11, 8)
        self.vm = Cnt(self.a, "vmcnt", 63); self.lg = Cnt(self.a, "lgkmcnt", 15)
        self.st = "" if opts.get("plainst") else (" sc1 nt" if opts.get("ntst") else " sc1"); self.ld = "" if opts.get("plainld") else " sc1"
    def I(self, t): self.a.I(t)
    def srd(self, r, ptr, nbytes):
        I = self.I
        I(f"s_mov_b32 s{r}, s{P[ptr]}"); I(f"s_mov_b32 s{r+1}, s{P[ptr]+1}")
        I(f"s_mov_b32 s{r+2}, {nbytes}"); I(f"s_mov_b32 s{r+3}, 0x00020000")
    def save(self): return (self.vm.issued, self.vm.done, self.lg.issued, self.lg.done)
    def restore(self, s_): self.vm.issued, self.vm.done, self.lg.issued, self.lg.done = s_
    def stream(self, mf, fills):
        n = len(mf); slots = [[] for _ in range(n + 1)]
        for (s0, e0, cl) in fills:
            m = e0 - s0
            for j, c in enumerate(cl): slots[s0 + 1 + (j * m) // len(cl)].append(c)
        for c in slots[0]: c()
        for i in range(n):
            mf[i]()
            for c in slots[i+1]: c()
    def stamp(self, i, dyn=None):
        if self.o.get("echo") == i:
            self.I("s_memtime s[100:101]" if self.o.get("cyc") else "s_memrealtime s[100:101]"); self.I("s_waitcnt lgkmcnt(0)")
        if not self.o.get("stamp"): return
        I = self.I
        I("s_memrealtime s[96:97]"); I("s_memtime s[100:101]")
        I("s_lshl_b32 s98, s2, 3"); I(f"s_add_u32 s98, s98, s{SW}"); I("s_lshl_b32 s98, s98, 8")
        I(f"s_add_u32 s98, s98, {STAMP_OFF + 4*i}")
        if dyn is not None:
            I(f"s_lshl_b32 s99, s{dyn}, 4"); I("s_add_u32 s98, s98, s99")
        I("s_waitcnt lgkmcnt(0)")
        I("v_mov_b32 v2, s96"); I("v_mov_b32 v3, 0")
        I(f"buffer_store_dword v2, v3, s[{RWS}:{RWS+3}], s98 offen")
        I("v_mov_b32 v2, s100")
        I(f"buffer_store_dword v2, v3, s[{RWS}:{RWS+3}], s98 offen offset:128")
    OOB = 0x40000000
    def publish(self, soff, val=1, srd=RWS, byte=False, idx=None):
        I = self.I
        self.oob_sel()
        if idx is not None: I(f"s_and_b32 s98, s{SIDX}, 3"); I(f"s_cmp_eq_u32 s98, {idx}"); I(f"s_cselect_b32 s99, s99, {self.OOB}")
        I(f"v_mov_b32 v2, {val}"); I("v_mov_b32 v3, s99")
        I(f"buffer_store_{'byte' if byte else 'dword'} v2, v3, s[{srd}:{srd+3}], s{soff} offen sc1"); self.vm.issue()
    def oob_sel(self):
        self.I(f"s_cmp_eq_u32 s{SW}, 0"); self.I(f"s_cselect_b32 s99, 0, {self.OOB}")
    def poll_issue(self, vd, vaddr, soff, srd=RWS):
        self.I(f"buffer_load_dword v{vd}, v{vaddr}, s[{srd}:{srd+3}], {soff} offen sc1"); return self.vm.issue()
    def poll_check(self, vd, vaddr, soff, want, srd=RWS):
        a = self.a; I = self.I
        l = a.label("PCK"); lp = a.label("POLL")
        I(f"s_mov_b32 s98, {want}"); I("s_mov_b32 s99, 20000")
        a.L(lp)
        I(f"v_and_b32 v{vd}, s98, v{vd}"); I(f"v_cmp_ne_u32 vcc, s98, v{vd}"); I(f"s_cbranch_vccz {l}")
        I("s_sleep 2")
        I(f"buffer_load_dword v{vd}, v{vaddr}, s[{srd}:{srd+3}], {soff} offen sc1")
        I("s_sub_u32 s99, s99, 1"); I("s_cmp_lg_u32 s99, 0"); I("s_waitcnt vmcnt(0)"); I(f"s_cbranch_scc1 {lp}")
        a.L(l)
    def phys(self, d, s_, t, E=None):
        I = E or self.I; p = self.o.get("hperm", 0)
        if p == 0: I(f"s_mov_b32 s{d}, s{s_}")
        elif p == 1: I(f"s_and_b32 s{t}, s{s_}, 3"); I(f"s_lshl_b32 s{t}, s{t}, 3"); I(f"s_lshr_b32 s{d}, s{s_}, 2"); I(f"s_or_b32 s{d}, s{d}, s{t}")
        elif p >= 32:
            I(f"s_lshr_b32 s{t}, s{s_}, 3"); I(f"s_add_u32 s{t}, s{t}, {p - 32}"); I(f"s_and_b32 s{t}, s{t}, 3")
            I(f"s_and_b32 s{d}, s{s_}, 7"); I(f"s_lshl_b32 s{d}, s{d}, 2"); I(f"s_or_b32 s{d}, s{d}, s{t}")
        else: I(f"s_mul_i32 s{t}, s{s_}, {p}"); I(f"s_and_b32 s{d}, s{t}, 31")
    def barrier(self): self.I("s_barrier")
    def sync_all(self):
        self.I("s_waitcnt vmcnt(0) lgkmcnt(0)"); self.vm.mark_all_done(); self.lg.mark_all_done(); self.barrier()

    def begin(self, kname):
        a = self.a; I = self.I
        a.T(f".globl {kname}\n.p2align 8\n.type {kname},@function"); a.L(kname)
        self.endl = a.label("END")
        if self.o.get("stamp"): I("s_memrealtime s[30:31]")
        if self.o.get("echo"): I("s_memtime s[96:97]" if self.o.get("cyc") else "s_memrealtime s[96:97]")
        I("s_load_dwordx16 s[64:79], s[0:1], 0"); I("s_load_dwordx16 s[80:95], s[0:1], 64")
        I("s_cmp_ge_u32 s2, 256"); I(f"s_cbranch_scc1 {self.endl}")
        I("v_lshrrev_b32 v1, 6, v0"); I("v_and_b32 v0, 63, v0"); I(f"v_readfirstlane_b32 s{SW}, v1")
        I("s_and_b32 s7, s2, 7"); I("s_lshl_b32 s7, s7, 2")
        I(f"s_lshr_b32 s{SIDX}, s2, 3"); I(f"s_lshr_b32 s{SHEAD}, s{SIDX}, 3"); I(f"s_add_u32 s{SHEAD}, s{SHEAD}, s7")
        I(f"s_and_b32 s{SIDX}, s{SIDX}, 7"); I(f"s_lshl_b32 s{SWK}, s{SW}, 10")
        I(f"s_lshl_b32 s{SF}, s{SHEAD}, 3"); I(f"s_add_u32 s{SF}, s{SF}, s{SIDX}")
    def end(self):
        self.a.L(self.endl); self.I("s_endpgm")

    def proj(self):
        a = self.a; I = self.I; vm = self.vm; lg = self.lg
        QA_LDS = 65536
        ACC = {"K": 64, "V": 128, "Q": 64}
        FX = [16, 24]; FW = [192, 32]
        VWA = 4; VSK, VSV, VOX, VOW, VST = 8, 9, 10, 11, 12; VXA = 224; T = 232
        NB = 0; XC = self.o.get("xc", 0)
        ST = [("KV", c) for c in range(NB)] + [("K", c) for c in range(NB, 8)] + [("V", c) for c in range(7, NB - 1, -1)] + [("Q", c) for c in range(8)]
        NS = len(ST); TK = 7; TV = NS - 9; TQ = NS - 8
        I("v_lshrrev_b32 v13, 3, v0"); I(f"s_lshl_b32 s40, s{SW}, 3"); I("v_add_u32 v13, s40, v13"); I("v_lshlrev_b32 v13, 10, v13")
        I(f"s_lshr_b32 s41, s{SW}, 1"); I(f"s_xor_b32 s40, s41, s{SW}"); I("s_and_b32 s40, s40, 1"); I("s_lshl_b32 s40, s40, 2")
        I("v_lshrrev_b32 v14, 4, v0"); I("v_add_u32 v15, s40, v14")
        I("v_and_b32 v3, 7, v0"); I("v_xor_b32 v15, v15, v3"); I(f"v_lshl_add_u32 v{VOX}, v15, 4, v13")
        I(f"s_lshl_b32 s40, s{SW}, 2"); I("v_add_u32 v13, s40, v14"); I("v_lshlrev_b32 v13, 13, v13")
        I("s_and_b32 s41, s41, 1"); I("s_lshl_b32 s41, s41, 3"); I("v_lshl_add_u32 v15, v14, 1, s41"); I("v_and_b32 v3, 15, v0"); I("v_xor_b32 v15, v15, v3")
        I("v_lshl_add_u32 v13, v15, 4, v13"); self.phys(40, SHEAD, 41); I("s_lshl_b32 s40, s40, 8"); I(f"v_add_u32 v{VOW}, s40, v13")
        I(f"v_lshlrev_b32 v{VST}, 4, v0")
        I(f"s_lshl_b32 s44, s{SIDX}, 18")
        for i in range(1, 4): I(f"s_add_u32 s{44+i}, s44, {65536*i}")
        ROT = self.o.get("rot", 2)
        if ROT == 0: I("s_mov_b32 s33, 0")
        elif ROT == 1: I(f"s_mov_b32 s33, s{SIDX}")
        elif ROT == 2: I(f"s_lshr_b32 s33, s{SHEAD}, 2"); I(f"s_add_u32 s33, s33, s{SIDX}")
        elif ROT == 3: I(f"s_lshr_b32 s33, s{SHEAD}, 2"); I(f"s_add_u32 s33, s33, s{SIDX}"); I(f"s_lshl_b32 s34, s{SHEAD}, 1"); I("s_add_u32 s33, s33, s34")
        elif ROT == 4: I(f"s_lshr_b32 s33, s{SHEAD}, 2")
        if self.o.get("rotq"): I(f"s_lshl_b32 s32, s{SHEAD}, 1"); I("s_add_u32 s32, s32, s33")
        else: I("s_mov_b32 s32, s33")
        I("s_waitcnt lgkmcnt(0)")
        if self.o.get("stamp"): I("s_memrealtime s[28:29]")
        self.srd(RA, "ckv", 2*MB); self.srd(RB, "wuk", 4*MB); self.srd(RC, "wuv", 4*MB)
        def xbase(t):
            k, c = ST[t]
            return (32768, 131072, 0)[((16 + c) if k == "Q" else (15 - c + NB)) % 3]
        units = [(t, m) for t in range(NS) for m in ST[t][0]]
        uidx = {u: i for i, u in enumerate(units)}
        def wbase(t, m): return 65536 + (uidx[(t, m)] % 4)*16384
        items = []
        lastx = {}
        for t in range(NS):
            k, c = ST[t]
            for m in k:
                u = uidx[(t, m)]
                def w(i, t=t, m=m, c=c):
                    if i == 0: I(f"s_add_u32 s34, s{32 if m == 'Q' else 33}, {c}"); I("s_and_b32 s34, s34, 7"); I("s_lshl_b32 s34, s34, 19")
                    I(f"s_add_u32 m0, s{SWK}, {wbase(t, m) + i*8192}"); I(f"s_add_u32 s41, s34, {i*262144}")
                    r = {"K": RB, "V": RC, "Q": RE}[m]
                    I(f"buffer_load_dwordx4 v{VOW}, s[{r}:{r+3}], s41 offen lds"); dtok[t] = vm.issue()
                items.append((t, units[u-4][0] if u >= 4 else -1, [lambda i=i, w=w: w(i) for i in range(2)]))
            key = ("Q" if k == "Q" else "C", c); prev = lastx.get(xbase(t))
            if prev is None or prev[1] != key:
                def x(i, t=t, k=k, c=c):
                    if i == 0: I(f"s_add_u32 s35, s{32 if k == 'Q' else 33}, {c}"); I("s_and_b32 s35, s35, 7"); I("s_lshl_b32 s35, s35, 7")
                    I(f"s_add_u32 m0, s{SWK}, {xbase(t) + i*8192}"); I(f"s_add_u32 s41, s{(48 if k == 'Q' else 44)+i}, s35")
                    r = (RWS if XC else RD) if k == "Q" else RA
                    I(f"buffer_load_dwordx4 v{VOX}, s[{r}:{r+3}], s41 offen{self.ld if (XC and k == 'Q') else ''} lds"); dtok[t] = vm.issue()
                items.append((t, prev[0] if prev else -1, [lambda i=i, x=x: x(i) for i in range(4)]))
            lastx[xbase(t)] = (t, key)
        dtok = {}
        def take(done, upto=99):
            out = []
            for it in list(items):
                if it[1] <= done and it[0] <= upto: out += it[2]; items.remove(it)
            return out
        for f in take(-1, 0): f()
        self.srd(RWS, "ws", WS_SIZE); self.srd(RDBG, "dbg", 256)
        if self.o.get("wsoff"): I(f"s_add_u32 s{RWS}, s{RWS}, {self.o['wsoff']*MB}"); I(f"s_addc_u32 s{RWS+1}, s{RWS+1}, 0")
        self.stamp(31)
        if self.o.get("stamp"):
            I("v_mov_b32 v2, s30"); I("s_sub_u32 s98, s98, 124"); I(f"buffer_store_dword v2, v3, s[{RWS}:{RWS+3}], s98 offen")
            I("v_mov_b32 v2, s28"); I(f"buffer_store_dword v2, v3, s[{RWS}:{RWS+3}], s98 offen offset:120")
        I(f"s_lshl_b32 s48, s{SIDX}, 17"); I("s_add_u32 s49, s48, 65536")
        I(f"s_sub_u32 s50, 15, s{SIDX}"); I("s_lshl_b32 s50, s50, 17"); I("s_add_u32 s51, s50, 65536")
        if XC:
            for i in range(4): I(f"s_add_u32 s{48+i}, s{48+i}, {XC_OFF}")
        I(f"s_and_b32 s42, s{SW}, 3"); I("s_lshl_b32 s42, s42, 6"); I(f"s_lshr_b32 s43, s{SW}, 2"); I("s_lshl_b32 s43, s43, 1")
        I("v_and_b32 v13, 15, v0"); I("v_lshrrev_b32 v15, 4, v0")
        I("v_lshrrev_b32 v14, 1, v13"); I("v_xor_b32 v14, v14, v15"); I("v_lshlrev_b32 v14, 4, v14")
        I("v_add_u32 v3, s42, v13"); I(f"v_lshl_add_u32 v{VXA}, v3, 7, v14")
        I("v_and_b32 v2, 8, v13"); I("v_add_u32 v3, v3, v2"); I(f"v_lshl_add_u32 v{VXA+4}, v3, 7, v14")
        for pt in range(2):
            b = VXA + 4*pt
            I(f"v_xor_b32 v{b+1}, 64, v{b}"); I(f"v_add_u32 v{b+2}, 0x20000, v{b}"); I(f"v_add_u32 v{b+3}, 0x20000, v{b+1}")
        I("v_lshlrev_b32 v3, 4, v13"); I("v_and_b32 v2, 1, v15"); I("v_lshl_add_u32 v3, v2, 9, v3"); I("v_lshrrev_b32 v14, 1, v15")
        I("v_lshlrev_b32 v3, 4, v13"); I(f"v_lshl_add_u32 v{VSK}, v15, {self.GSH}, v3")
        I("v_bfe_u32 v13, v0, 2, 2"); I("v_lshl_add_u32 v14, v15, 3, v13"); I("v_lshlrev_b32 v14, 8, v14")
        I("v_and_b32 v3, 3, v0"); I("v_lshl_add_u32 v14, v3, 3, v14"); I("v_add_u32 v14, 0x10000, v14")
        I("v_lshl_add_u32 v13, v2, 2, v13"); I("s_lshl_b32 s40, s43, 1"); I("v_xor_b32 v13, s40, v13"); I(f"v_lshl_add_u32 v{VWA}, v13, 5, v14")
        for dt in range(1, 4): I(f"v_xor_b32 v{VWA+dt}, {dt << 5}, v{VWA}")
        I(f"s_lshl_b32 s54, s{SHEAD}, 4"); I(f"s_lshl_b32 s55, s{SIDX}, 1"); I("s_add_u32 s54, s54, s55")
        I(f"s_bfe_u32 s55, s{SW}, 0x10001"); I("s_add_u32 s54, s54, s55"); I("s_lshl_b32 s54, s54, 16")
        I(f"s_and_b32 s55, s{SW}, 1"); I("s_lshl_b32 s55, s55, 14"); I("s_add_u32 s54, s54, s55")
        I(f"s_lshl_b32 s55, s43, {self.FSH+1}"); I("s_add_u32 s52, s54, s55"); I("s_add_u32 s52, s52, 0x8000")
        I(f"s_lshl_b32 s55, s43, {self.FSH}"); I("s_add_u32 s54, s54, s55")
        XG = T; GW = T + 4; hl = {}
        def gate_loads():
            L = []
            def E(t): L.append(lambda: I(t))
            def V(t):
                def f(): I(t); hl["t"] = vm.issue()
                L.append(f)
            E(f"s_lshl_b32 s40, s{SHEAD}, 7"); E(f"s_lshl_b32 s39, s{SIDX}, 2"); E("s_add_u32 s40, s40, s39"); E(f"s_add_u32 s40, s40, {FK_OFF}")
            E(f"s_lshl_b32 s39, s{SF}, 7"); E(f"s_add_u32 s39, s39, {FP_OFF}"); E("v_and_b32 v13, 7, v0"); E("v_lshl_add_u32 v13, v13, 2, s39")
            E("v_writelane_b32 v13, s40, 0")
            E(f"s_lshr_b32 s39, s{SHEAD}, 2"); E("s_lshl_b32 s39, s39, 7"); E(f"s_and_b32 s40, s{SHEAD}, 3"); E("s_lshl_b32 s40, s40, 2"); E("s_add_u32 s39, s39, s40")
            E(f"s_lshl_b32 s40, s{SIDX}, 10"); E("s_add_u32 s40, s40, s39"); E(f"s_add_u32 s40, s40, {FC_OFF}")
            E("v_writelane_b32 v13, s40, 1")
            E(f"s_sub_u32 s40, 15, s{SIDX}"); E("s_lshl_b32 s40, s40, 10"); E("s_add_u32 s40, s40, s39"); E(f"s_add_u32 s40, s40, {FC_OFF}")
            E("v_writelane_b32 v13, s40, 2")
            E(f"s_lshl_b32 s40, s{SF}, 2"); E(f"s_add_u32 s40, s40, {FY_OFF}"); E("v_writelane_b32 v13, s40, 3"); E("v_mov_b32 v14, 0")
            def oo(): self.oob_sel(); I("v_add_u32 v13, s99, v13")
            L.append(oo)
            V(f"buffer_store_dword v14, v13, s[{RWS}:{RWS+3}], 0 offen sc1")
            E("s_lshl_b32 s37, s2, 3"); E(f"s_add_u32 s37, s37, s{SW}"); E("s_lshl_b32 s38, s37, 10")
            L.append(lambda: self.srd(RD, "q", 2*MB)); L.append(lambda: self.srd(RE, "wq", 4*MB)); L.append(lambda: self.srd(RT, "gate", 1024))
            V(f"buffer_load_dwordx4 {v(XG,4)}, v{VST}, s[{RD}:{RD+3}], s38 offen")
            V(f"buffer_load_dwordx4 {v(GW,4)}, v{VST}, s[{RT}:{RT+3}], 0 offen")
            return L
        def gate_ops():
            L = []; E = lambda t: L.append(lambda: I(t)); Z = T + 8
            L.append(lambda: vm.wait(hl["t"]))
            def xs():
                I(f"s_add_u32 s38, s38, {XC_OFF}"); I(f"buffer_store_dwordx4 {v(XG,4)}, v{VST}, s[{RWS}:{RWS+3}], s38 offen{self.st}"); vm.issue()
            if XC: L.append(xs)
            E(f"v_dot2_f32_bf16 v{Z}, v{XG}, v{GW}, 0")
            for i in range(1, 4): E(f"v_dot2_f32_bf16 v{Z}, v{XG+i}, v{GW+i}, v{Z}")
            for m in ("quad_perm:[1,0,3,2] row_mask:0xf", "quad_perm:[2,3,0,1] row_mask:0xf", "row_half_mirror row_mask:0xf", "row_mirror row_mask:0xf",
                      "row_bcast:15 row_mask:0xa", "row_bcast:31 row_mask:0xc"):
                E(f"v_add_f32_dpp v{Z}, v{Z}, v{Z} {m} bank_mask:0xf")
            E(f"v_readlane_b32 s36, v{Z}, 63"); E(f"v_mov_b32 v{Z+1}, {f2u(-LOG2E)}"); E(f"v_mul_f32 v{Z}, s36, v{Z+1}")
            E(f"v_exp_f32 v{Z}, v{Z}"); E(f"v_add_f32 v{Z}, 1.0, v{Z}"); E(f"v_rcp_f32 v{Z}, v{Z}")
            E("s_lshl_b32 s38, s37, 2"); E(f"s_add_u32 s38, s38, {G_OFF}"); E(f"v_mov_b32 v{Z+1}, 0")
            def gs():
                I(f"buffer_store_dword v{Z}, v{Z+1}, s[{RWS}:{RWS+3}], s38 offen{self.st}"); vm.issue()
            L.append(gs)
            return L
        toks = {}
        def rdx(t, mt):
            m = ST[t][0]; xb = xbase(t); pt = 0
            off = (xb & 65535) + ((mt >> 1)*4096 + (mt & 1)*1024 if pt else mt*2048)
            def f(kk):
                va = VXA + 4*pt + 2*(xb >> 17) + (kk ^ (mt & 1))
                I(f"ds_read_b128 {v(FX[mt & 1]+4*kk,4)}, v{va} offset:{off}"); toks[("x", t, mt, kk)] = lg.issue()
            return [lambda: f(0), lambda: f(1)]
        def rdw(t, dt):
            m = ST[t][0]
            def f(kk, h):
                I(f"ds_read_b64_tr_b16 {v(FW[t & 1]+8*dt+4*kk+2*h,2)}, v{VWA+dt} offset:{wbase(t, m)-65536+kk*8192+h*1024}"); toks[("w", t, dt, kk)] = lg.issue()
            return [lambda kk=kk, h=h: f(kk, h) for kk in range(2) for h in range(2)]
        def atile(m, mt, dt): return ACC[m] + (4*(((mt >> 1)*4 + dt)*2 + (mt & 1)) if m == "V" else 4*(mt*4 + dt))
        def mfs(t, mt):
            m = ST[t][0]; first = t == 0 or ST[t-1][0] != m; L = []
            order = [(dt, kk) for dt in range(4) for kk in range(2)] if not self.o.get("nochain") else [(dt, kk) for kk in range(2) for dt in range(4)]
            for dt, kk in order:
                def f(dt=dt, kk=kk):
                    lg.wait(max(toks[("x", t, mt, kk)], toks[("w", t, dt, kk)]))
                    d = v(atile(m, mt, dt), 4); X = v(FX[mt & 1]+4*kk, 4); W = v(FW[t & 1]+8*dt+4*kk, 4)
                    c = "0" if (first and kk == 0) else d
                    I(f"v_mfma_f32_16x16x32_bf16 {d}, {X}, {W}, {c}" if m == "V" else f"v_mfma_f32_16x16x32_bf16 {d}, {W}, {X}, {c}")
                L.append(f)
            return L
        def pieces(m):
            fs = 1024 if m == "Q" else 1 << self.FSH
            if m == "V": return [(atile(m, 2*p, dt), p*8192 + dt*fs) for p in range(2) for dt in range(4)]
            return [(atile(m, mt, 2*j), (mt >> 1)*8192 + ((mt & 1)*4 + j)*fs) for mt in range(4) for j in range(2)]
        def kv_out(m):
            out = []
            for b, off in pieces(m):
                pk = [lambda i=i, b=b: I(f"v_cvt_pk_bf16_f32 v{b+i}, v{b+2*i}, v{b+2*i+1}") for i in range(4)]
                if m == "K": pk = [lambda i=i, b=b: I(f"v_mul_f32 v{b+i}, {f2u(LOG2E / math.sqrt(128.0))}, v{b+i}") for i in range(8)] + pk
                def st(b=b, off=off):
                    if self.o.get("nost"): return
                    I(f"s_add_u32 s41, s{54 if m == 'K' else 52}, {off}")
                    I(f"buffer_store_dwordx4 {v(b,4)}, v{VSK}, s[{RWS}:{RWS+3}], s41 offen{self.st}"); vm.issue()
                out.append((pk, st))
            return out
        side = {}; late = {}
        def spread(ops, t0, t1, dst=side, ks=(0, 1, 2)):
            sl = [(t, k) for t in range(t0, t1) for k in ks]; n = len(ops)
            for j, key in enumerate(sl): dst.setdefault(key, []).extend(ops[n*j//len(sl): n*(j+1)//len(sl)])
        PG = self.o.get("pg", 0)
        spread(gate_loads(), PG, PG + 1); spread(gate_ops(), PG + 2, PG + 3)
        def wtouch(r, half, wv):
            def f():
                I(f"s_cmp_eq_u32 s{SW}, {wv}"); I(f"s_cselect_b32 s99, 0, {self.OOB}")
                self.phys(39, SHEAD, 40); I("s_lshl_b32 s39, s39, 8"); I(f"s_lshl_b32 s40, s{SIDX}, 19"); I("s_add_u32 s40, s40, s39"); I(f"s_add_u32 s40, s40, {half*32*8192}")
                I("v_lshrrev_b32 v3, 1, v0"); I("v_lshlrev_b32 v3, 13, v3"); I("v_and_b32 v2, 1, v0"); I("v_lshl_add_u32 v3, v2, 7, v3"); I("v_add_u32 v3, s99, v3")
                I(f"buffer_load_dword v1, v3, s[{r}:{r+3}], s40 offen"); vm.issue()
            return f
        for nm, r, dflt in (("tk", RB, -1), ("tv", RC, 1), ("tq", RE, 3)):
            t0 = self.o.get(nm, dflt)
            if t0 >= 0:
                for half in range(2): side.setdefault((t0 + half, 2), []).append(wtouch(r, half, half))
        KN = self.o.get("kn", 8); VD = self.o.get("vd", 0); VN = self.o.get("vn", 5)
        KO = kv_out("K"); VO = kv_out("V")
        spread(sum((p for p, _ in KO), []), TK + 1, min(TK + 3, TQ), ks=(0, 1))
        npk = 2 * (min(TK + 3, TQ) - TK - 1)
        spread([s_ for _, s_ in KO], TK + 1, TK + 1 + KN, dst=late, ks=(2,))
        assert len(late[(TK + 1, 2)]) <= 8 * 2 // npk
        spread(sum((p for p, _ in VO), []), TQ, TQ + 1, ks=(0, 1))
        spread([s_ for _, s_ in VO], TQ + VD, TQ + VD + VN, dst=late, ks=(2,))
        PK_, PV_ = TK + KN + 2, TQ + VD + VN
        assert PK_ <= NS - 5 and PV_ <= NS - 2
        QE = []; EQ = lambda t: QE.append(lambda: I(t))
        EQ(f"s_and_b32 s55, s{SW}, 2"); EQ("s_lshl_b32 s55, s55, 15"); EQ(f"s_add_u32 s55, s55, {QA_LDS}")
        EQ(f"s_and_b32 s54, s{SW}, 1"); EQ("s_lshl_b32 s54, s54, 14"); EQ("s_add_u32 s55, s55, s54")
        EQ("s_lshl_b32 s54, s43, 10"); EQ("s_add_u32 s55, s55, s54"); EQ(f"v_add_u32 v14, s55, v{VST}")
        spread(QE, NS - 1, NS)
        spread([lambda: self.srd(RB, "ssmk", 2*MB), lambda: self.srd(RA, "k", 2*MB), lambda: self.srd(RC, "v", 2*MB), lambda: self.srd(RD, "shift", 4096), lambda: self.srd(RE, "wo", 4*MB)], NS - 2, NS - 1)
        spread([lambda r=r: I(f"v_mov_b64 {v(192+2*r,2)}, 0") for r in range(32) if not 16 <= r < 20], NS - 1, NS)
        side.setdefault((NS - 1, 3), []).extend([lambda r=r: I(f"v_mov_b64 {v(192+2*r,2)}, 0") for r in range(16, 20)])
        def fkoff():
            I(f"s_lshl_b32 s40, s{SHEAD}, 7"); I(f"s_lshl_b32 s41, s{SIDX}, 2"); I("s_add_u32 s40, s40, s41"); I(f"s_add_u32 s40, s40, {FK_OFF}")
        def w0only(fn):
            l = a.label("NP"); I(f"s_cmp_lg_u32 s{SW}, 0"); I(f"s_cbranch_scc1 {l}"); fn(); a.L(l)
        def k0(i):
            I(f"s_lshl_b32 s40, s{SW}, 12"); I("s_add_u32 m0, s40, 0x8000")
            I(f"s_lshl_b32 s41, s{SHEAD}, 20"); I("s_add_u32 s41, s41, s40")
            I(f"buffer_load_dwordx4 v{VST}, s[{RWS}:{RWS+3}], s41 offen offset:{1024*i}{self.ld} lds"); vm.issue()
        self.barrier()
        for f in take(-1, 1): f()
        vm.wait(dtok[0]); self.barrier()
        self.stamp(1)
        def first_reads(t):
            x = rdx(t, 0); w = [rdw(t, dt) for dt in range(4)]
            return [x[0]] + w[0][:2] + [x[1]] + w[0][2:] + w[1], w[2] + w[3]
        L, rest = first_reads(0)
        for f in L: f()
        VPK = self.o.get("vpk", 2); mark = {}; TZ = PG + 4; TS = 10; DS = self.o.get("dsteps", 3)
        pend = take(-1)
        for t in range(NS):
            for k in range(4):
                M = mfs(t, k); n = len(M); PB = []
                if k == 3 and t < NS - 1:
                    assert not pend
                    if t == TS + 2: vm.wait(td); w0only(lambda: self.poll_check(14, 13, "0", rep4(1), RDBG))
                    if t == NS - 3: vm.wait(tp); w0only(lambda: self.poll_check(15, 13, "s53", 1))
                    lg.wait(lg.issued); vm.wait(dtok[t+1])
                    if t == TZ: vm.wait(mark[TZ-2])
                    if t == PK_: vm.wait(mark[TK + KN])
                    if t == PV_: vm.wait(mark[PV_ - 1])
                    self.barrier()
                    ps = self.o.get("pstamp")
                    if ps is not None and 0 <= t - int(ps) + 1 < 13: self.stamp(17 + t - int(ps) + 1); vm.issue(2)
                    if TZ <= t < TZ + 4: PB.append(lambda t=t: self.publish(SF, 1, RDBG, True, idx=t - TZ))
                    if t == PK_: PB.append(lambda: (fkoff(), self.publish(40, 1)))
                    if t == PV_: PB.append(lambda: (fkoff(), self.publish(40, 3)))
                    pend = take(t)
                    if t == NS - 3: pend += [lambda i=i: k0(i) for i in range(4)]
                    nd = len(pend) // (DS + 1)
                else:
                    nd = -(-len(pend) // max(1, (3 if t == 0 else DS) - k))
                D, pend = pend[:nd], pend[nd:]
                fl = []
                if not (t == NS - 1 and k == 3):
                    if k == 3:
                        L, rest = first_reads(t+1); nr = self.o.get("nr", 4)
                        fl.append((0, 7, L + rest[:nr])); rest = rest[nr:]
                    else:
                        if k == 0 and rest: fl.append((-1, 2, rest))
                        fl.append((2, 4, rdx(t, k+1)))
                if PB: fl.append((1, 2, PB))
                if D: fl.append((0, n, D))
                if side.get((t, k)): fl.append((0, n, side[(t, k)]))
                if late.get((t, k)): fl.append((n - 2, n, late[(t, k)]))
                self.stream(M, fl)
                if k == 2: mark[t] = vm.issued
                if t == TS and k == 0:
                    self.oob_sel(); I("v_lshl_add_u32 v13, v0, 2, s99"); td = self.poll_issue(14, 13, "0", RDBG)
                if t == NS - 4 and k == 0:
                    self.oob_sel(); I("v_and_b32 v13, 7, v0"); I("v_lshl_add_u32 v13, v13, 2, s99")
                    I(f"s_lshl_b32 s53, s{SHEAD}, 7"); I(f"s_add_u32 s53, s53, {FK_OFF}")
                    tp = self.poll_issue(15, 13, "s53")
                if t == NS - 1 and k == VPK: self.poll_issue(15, 13, "s53")
            if t == TK: self.stamp(2)
            if t == TV: self.stamp(13)
        assert not items
        self.stamp(3)
        I("v_mov_b32 v16, v13")
        if VPK > 3: self.poll_issue(15, 13, "s53")
        for b, off in pieces("Q"):
            for i in range(4): I(f"v_cvt_pk_bf16_f32 v{b+i}, v{b+2*i}, v{b+2*i+1}")
            I(f"ds_write_b128 v14, {v(b,4)} offset:{off}"); lg.issue()
        self.attn_setup()
        vm.wait(vm.issued); w0only(lambda: self.poll_check(15, 16, "s53", 3))
        lg.wait(lg.issued); self.barrier()

    def attn_setup(self): self.attn(True)
    def attn(self, setup=False):
        a = self.a; I = self.I; vm = self.vm; lg = self.lg
        M16 = "v_mfma_f32_16x16x32_bf16"
        ML = 155648; QA_LDS = 65536; QB_LDS = 131072
        O = 192; QF = 160; NM = 144; S = [112, 128]; PP = [96, 104]; RING = 64; NR = 8; E = 56; PK = 16
        VK, VV, VL16, VSC, LM, THR, NINF, VQ, TMP = 4, 5, 6, 7, 8, 9, 10, 11, 12
        LS, ONES, BIAS = 152, 60, 11.0
        SR, SG, SC1, SC2, SKO, SVO, SKM, SVM, STH = 32, 33, 34, 35, 36, 37, 38, 39, 42
        SFIN, SCA, SM1 = 55, 59, 58
        DC = self.o.get("dmacost", 16); WEV = self.o.get("wev", 4)
        if setup:
            I(f"s_lshr_b32 s{SG}, s{SW}, 2"); I(f"s_mul_i32 s{SR}, s{SG}, 7"); I(f"s_xor_b32 s{SR}, s{SR}, s{SW}")
            I(f"v_lshlrev_b32 v{VL16}, 4, v0")
            I(f"s_lshl_b32 s44, s{SR}, 13"); I(f"s_add_u32 s44, s44, {QB_LDS}"); I(f"v_add_u32 v{VQ}, s44, v{VL16}")
            I(f"s_lshl_b32 s45, s{SG}, 16"); I(f"v_subrev_u32 v{TMP+1}, s45, v{VQ}")
            I(f"s_mov_b32 s{SC1}, s{SIDX}")
            I(f"s_lshl_b32 s{SC2}, s{SIDX}, 1"); I(f"s_sub_u32 s{SC2}, 14, s{SC2}")
            I(f"s_cmp_eq_u32 s{SG}, 1"); I(f"s_cselect_b32 s{SM1}, 0, -1")
            I(f"s_lshl_b32 s43, s{SW}, 12"); I(f"s_lshl_b32 s{SVO}, s{SHEAD}, 20"); I(f"s_add_u32 s{SVO}, s{SVO}, s43")
            I(f"s_add_u32 s{SKO}, s{SVO}, 0x10000"); I(f"s_add_u32 s{SVO}, s{SVO}, 0x8000")
            I(f"s_mov_b32 s{SKM}, s43"); I(f"s_add_u32 s{SVM}, s43, 0x18000")
            I(f"s_mov_b32 s{STH}, 0x40004000"); I(f"v_mov_b32 v{NINF}, 0xff800000")
            for r in range(4): I(f"v_mov_b32 v{ONES+r}, 0x3f803f80"); I(f"v_mov_b64 {v(LS+2*r,2)}, 0")
            I(f"v_and_b32 v{THR}, 15, v0"); I(f"v_lshlrev_b32 v{VSC}, 4, v{THR}"); I(f"s_lshl_b32 s44, s{SR}, 5"); I(f"v_add_u32 v{THR}, s44, v{THR}")
            I(f"v_lshrrev_b32 v{TMP}, 4, v0"); I(f"v_lshl_add_u32 v{VSC}, v{TMP}, 9, v{VSC}"); I(f"v_lshlrev_b32 v{TMP}, 2, v{TMP}"); I(f"v_sub_u32 v{THR}, v{THR}, v{TMP}")
            I(f"v_and_b32 v{VK}, 15, v0"); I(f"v_lshlrev_b32 v{VK}, 4, v{VK}"); I(f"v_lshrrev_b32 v{TMP}, 4, v0"); I(f"v_lshl_add_u32 v{VK}, v{TMP}, {self.GSH}, v{VK}"); I(f"v_add_u32 v{VK}, 0x8000, v{VK}")
            I(f"s_lshl_b32 s{SCA}, s{SIDX}, 2"); I(f"s_add_u32 s{SCA}, s{SCA}, s{SR}"); I(f"s_lshl_b32 s{SCA}, s{SCA}, 5"); I(f"s_add_u32 s{SCA}, s{SCA}, s{SHEAD}")
            I(f"s_lshl_b32 s{SCA}, s{SCA}, 13"); I(f"s_add_u32 s{SCA}, s{SCA}, {CTX_OFF}")
            I(f"s_mov_b32 s{SFIN}, 0")
            I(f"s_lshr_b32 s56, s{SF}, 6"); I("s_lshl_b32 s56, s56, 2"); I(f"s_bfe_u32 s44, s{SF}, 0x20003"); I("s_add_u32 s56, s56, s44"); I("s_lshl_b32 s56, s56, 1")
            I(f"s_bfe_u32 s44, s{SF}, 0x10005"); I("s_add_u32 s56, s56, s44"); I(f"s_and_b32 s57, s{SF}, 7")
            I("s_mov_b32 s41, 0")
            CL = self.o.get("cl", 8)
            I(f"s_lshr_b32 s40, {1 << (CL+2)}, s{SG}"); I(f"s_or_b32 s40, s40, {1 << CL}")
            I(f"s_lshl_b32 s44, 2, s{SW}"); I("s_and_b32 s44, s44, 30"); I("s_or_b32 s40, s40, s44")
            I(f"s_cmp_eq_u32 s{SW}, 0"); I(f"s_cselect_b32 s44, {(1 << 5) | (1 << (CL+4))}, 0"); I("s_or_b32 s40, s40, s44")
            if not self.o.get("noprio"):
                l = a.label("PR"); I(f"s_cmp_eq_u32 s{SG}, 1"); I(f"s_cbranch_scc0 {l}"); I("s_setprio 1"); a.L(l)
            return
        op = lambda t, c=4: (lambda: I(t), c)
        nop = lambda: None
        def loadq(va):
            for ds in range(8):
                I(f"ds_read_b128 {v(QF+4*ds,4)}, v{va} offset:{1024*ds}"); lg.issue()
        def dma4(kind):
            sm, so = (SKM, SKO) if kind == "k" else (SVM, SVO)
            def d(i):
                def f():
                    if i == 0: I(f"s_mov_b32 m0, s{sm}"); I(f"s_xor_b32 s{sm}, s{sm}, 0x8000")
                    I(f"buffer_load_dwordx4 v{VL16}, s[{RWS}:{RWS+3}], s{so} offen offset:{1024*i}{self.ld} lds")
                    if i == 3: I(f"s_add_u32 s{so}, s{so}, 0x10000")
                return (f, DC + (8 if i == 0 else 4 if i == 3 else 0))
            return [d(i) for i in range(4)]
        self.ring_n = 0
        def rd(kind, sl, idx):
            h = {}
            def f():
                slot = self.ring_n % NR; self.ring_n += 1
                h["reg"] = RING + 4*slot
                I(f"ds_read_b128 {v(h['reg'],4)}, v{VK if kind == 'k' else VV} offset:{sl*8192+(idx << self.FSH)}"); h["tok"] = lg.issue()
            return f, h
        def wait_for(R, i):
            if R[i][1]["tok"] <= lg.done: return
            j = i
            while j + 1 < len(R) and j + 1 < i + WEV and "tok" in R[j+1][1] and R[j+1][1]["tok"] > R[i][1]["tok"]: j += 1
            lg.wait(R[j][1]["tok"])
        def otile(dt, qt): return O + 16*(dt >> 1) + 8*qt + 4*(dt & 1)
        def qk(sb, R, base, czero=False):
            def f(m):
                kt, qt, dd = m >> 3, (m >> 2) & 1, m & 3; i = base + 4*kt + dd
                wait_for(R, i); d = v(S[sb] + 8*qt + 4*kt, 4)
                c = ("0" if czero else v(NM + 4*qt, 4)) if dd == 0 else d
                I(f"{M16} {d}, {v(R[i][1]['reg'],4)}, {v(QF + 16*qt + 4*dd, 4)}, {c}")
            return [lambda m=m: f(m) for m in range(16)]
        def pv1(pb, dt, qt, reg): I(f"{M16} {v(otile(dt, qt),4)}, {v(reg,4)}, {v(PP[pb]+4*qt,4)}, {v(otile(dt, qt),4)}")
        def pv(pb, R, base, dts=range(8), exact=False):
            def f(dt, qt):
                if exact: lg.wait(R[base+dt][1]["tok"])
                else: wait_for(R, base + dt)
                pv1(pb, dt, qt, R[base+dt][1]["reg"])
            ls = [lambda qt=qt: I(f"{M16} {v(LS+4*qt,4)}, {v(ONES,4)}, {v(PP[pb]+4*qt,4)}, {v(LS+4*qt,4)}") for qt in range(2)]
            return ls + [lambda dt=dt, qt=qt: f(dt, qt) for dt in dts for qt in range(2)]
        def sm_ops(sb):
            ex = lambda i: op(f"v_exp_f32 v{E+(i&3)}, v{S[sb]+i}", 8)
            cv = lambda j: op(f"v_cvt_pk_bf16_f32 v{PP[sb]+j}, v{E+((2*j)&3)}, v{E+((2*j+1)&3)}")
            p = PP[sb]; L = [ex(0), ex(1)]
            ors = {2: f"v_or3_b32 v{LM}, v{p}, v{p+1}, v{p+2}", 4: f"v_or3_b32 v{LM}, v{LM}, v{p+3}, v{p+4}", 6: f"v_or3_b32 v{LM}, v{LM}, v{p+5}, v{p+6}"}
            for j in range(8):
                L += [ex(2*j+2), cv(j), ex(2*j+3)] if j < 7 else [op("s_nop 0"), cv(j)]
                if j in ors: L.append(op(ors[j]))
            L = [x for i, x in enumerate(L) if i != len(L) - 2]
            L += [op(f"v_or_b32 v{LM}, v{LM}, v{p+7}"), op(f"v_and_b32 v{LM}, s{STH}, v{LM}")]
            return L
        def sched(M, fixed, chain):
            n = len(M); fc = [sum(c for _, c in fixed.get(g, [])) for g in range(n)]
            tot = sum(c for _, c in chain); lo, hi = 0.0, 4000.0
            for _ in range(40):
                lev = (lo + hi) / 2
                if sum(max(0, lev - f) for f in fc) >= tot: hi = lev
                else: lo = lev
            k = 0; credit = 0.0
            for g in range(n):
                M[g]()
                for c, _ in fixed.get(g, []): c()
                credit += max(0, hi - fc[g])
                while k < len(chain) and (g == n - 1 or chain[k][1] <= credit + 2):
                    chain[k][0](); credit -= chain[k][1]; k += 1
        def put(fixed, g, items): fixed.setdefault(g, []).extend(items)
        SPL = self.o.get("spl", 18)
        ool = []
        def rarely(cmp_, body):
            lo = a.label("OOL"); lb = a.label("RET")
            I(cmp_); I(f"s_cbranch_scc1 {lo}"); a.L(lb)
            ool.append((lo, lb, body))
        def mask_ops(sb, koff):
            prs = [46, 48, 50, 52]; L = []
            if koff >= 64:
                L.append(op(f"v_subrev_u32 v{TMP+3}, 64, v{THR}")); tr = TMP + 3; koff -= 64
            elif koff < 0:
                L += [op(f"s_lshl_b32 s45, s{SG}, 6"), op(f"v_subrev_u32 v{TMP+3}, s45, v{THR}")]; tr = TMP + 3; koff = -koff - 1
            else: tr = THR
            for r0 in range(0, 16, 4):
                qt, kt = r0 >> 3, (r0 >> 2) & 1
                for r in range(4): L.append(op(f"v_cmp_lt_i32 s[{prs[r]}:{prs[r]+1}], v{tr}, {16*kt + r + koff - 16*qt}"))
                for r in range(4): L.append(op(f"v_cndmask_b32 v{S[sb]+r0+r}, v{S[sb]+r0+r}, v{NINF}, s[{prs[r]}:{prs[r]+1}]"))
            return L
        def mask_body(sb, koff):
            for c, _ in mask_ops(sb, koff): c()
        def xred(x, y, t0, t1, o):
            L = []
            for sw in ("v_permlane16_swap_b32", "v_permlane32_swap_b32"):
                L += [op(f"v_mov_b32 v{t0}, v{x}"), op(f"v_mov_b32 v{t1}, v{y}"), op("s_nop 0"), op(f"{sw} v{t0}, v{x}"), op(f"{sw} v{t1}, v{y}"),
                      op(f"{o} v{x}, v{x}, v{t0}"), op(f"{o} v{y}, v{y}, v{t1}")]
            return L
        def rowmax(sb):
            for qt in range(2):
                b = S[sb] + 8*qt; d = TMP + qt
                I(f"v_max3_f32 v{d}, v{b}, v{b+1}, v{b+2}"); I(f"v_max3_f32 v{d}, v{d}, v{b+3}, v{b+4}"); I(f"v_max3_f32 v{d}, v{d}, v{b+5}, v{b+6}"); I(f"v_max_f32 v{d}, v{d}, v{b+7}")
            for c, _ in xred(TMP, TMP+1, TMP+2, TMP+3, "v_max_f32"): c()
        def init_max():
            rowmax(0)
            for qt in range(2): I(f"v_max_f32 v{TMP+qt}, {f2u(-1e30)}, v{TMP+qt}"); I(f"v_add_f32 v{TMP+qt}, {f2u(BIAS)}, v{TMP+qt}")
            for r in range(8): I(f"v_sub_f32 v{NM+r}, 0, v{TMP+(r>>2)}")
            return [op(f"v_sub_f32 v{S[0]+r}, v{S[0]+r}, v{TMP+(r>>3)}") for r in range(16)]
        rare = []
        def check(sb, other=True):
            lr = a.label("RARE"); lb = a.label("BACK")
            I(f"v_cmp_ne_u32 vcc, 0, v{LM}")
            if self.o.get("a_nocheck"): I("s_mov_b64 vcc, 0")
            I(f"s_cbranch_vccnz {lr}"); a.L(lb)
            rare.append((lr, lb, sb, other))
        def fin_body():
            I(f"s_mov_b32 s{SFIN}, 2")
            I(f"v_rcp_f32 v{TMP}, v{LS}"); I(f"v_rcp_f32 v{TMP+2}, v{LS+4}"); I(f"v_mov_b32 v{TMP+1}, v{TMP}"); I(f"v_mov_b32 v{TMP+3}, v{TMP+2}")
            for r in range(4): I(f"v_mov_b64 {v(LS+2*r,2)}, 0")
            for q in range(8):
                for i in range(8*q, 8*q+8, 2): I(f"v_pk_mul_f32 {v(O+i,2)}, {v(O+i,2)}, {v(TMP+2*(q&1),2)}")
                for i in range(4): I(f"v_cvt_pk_bf16_f32 v{PK+4*q+i}, v{O+8*q+2*i}, v{O+8*q+2*i+1}")
                for i in range(8*q, 8*q+8, 2): I(f"v_mov_b64 {v(O+i,2)}, 0")
        coff = lambda q: (q & 3)*1024
        def st_body():
            I(f"s_add_u32 s44, s{SCA}, 4096"); I(f"s_mov_b32 s{SFIN}, 3")
            for q in range(8):
                I(f"buffer_store_dwordx4 {v(PK+4*q,4)}, v{VL16}, s[{RWS}:{RWS+3}], s{SCA if q < 4 else 44} offen offset:{coff(q)}{self.st}")
        TR = [RING + 4*(2+i) for i in range(6)]
        def head(R, vmw, with_mfma=True, post=(), more=(), pre=None):
            rf = [(f, 4) for f, h in R]; sm2 = sm_ops(0)[SPL:]
            M = [lambda dt=dt, qt=qt: pv1(1, dt, qt, TR[dt-2]) for dt in range(2, 8) for qt in range(2)] if with_mfma else [nop]*12
            if with_mfma: I("s_waitcnt lgkmcnt(4)")
            nb = self.o.get("nb", 4); more = list(more); m0 = len(more) // 3
            if pre is not None: more = list(pre) + more; m0 = len(pre)
            sched(M[:4], {}, sm2[:nb] + more[:m0])
            vmw(); I("s_waitcnt lgkmcnt(0)"); lg.mark_all_done(); self.barrier(); self.ring_n = 0
            fx = {0: rf[0:2], 1: rf[2:4], 2: rf[4:5], 4: rf[5:6], 6: rf[6:7], 7: [(nop, 8 + 8*len(post))]}
            sched(M[4:], fx, sm2[nb:] + more[m0:])
            check(0)
            for p in post: p()
        def mk_reads():
            return ([rd("k", 0, i) for i in range(8)] + [rd("v", 0, i) for i in range(8)] +
                    [rd("k", 1, i) for i in range(8)] + [rd("v", 1, i) for i in range(8)])
        def last_use(F):
            b = (0, 18, 34, 52)[F >> 3]; f = F & 7
            return b + (2*f + 1 if (F >> 3) & 1 else 8*(f >> 2) + 4 + (f & 3))
        def mid(R, dmas, kx, mb=None, trans=False, endops=(), early=(), g=0):
            rf = [(f, 4) for f, h in R]
            fa = {0: [rf[7]]}; fb = {}
            G_ = g
            for g, e in zip((1, 3, 9, 11), early): put(fa, g, [e])
            for F in range(8, 32):
                g = last_use(F - 8) + 1
                put(fa, g, [rf[F]]) if g < 34 else put(fb, g - 34, [rf[F]])
            D = sum((dma4(k) for k in dmas), [])
            st_ = self.o.get("gst", 4); of_ = self.o.get("gof", 2)
            gaps = [2 + of_*G_*2 + 2*st_*n for n in range(4)] if len(D) == 4 else [2 + of_*G_ + st_*n for n in range(8)]
            for g, d in zip(gaps, D): put(fa, g, [d]) if g < 33 else put(fb, g - 33, [d])
            PT = self.o.get("pt", 0)
            if PT and G_ == 0:
                pts = {1: [(0, 24, 2), (1, 21, 0)], 2: [(0, 8, 2), (0, 24, 0), (1, 7, 2), (1, 21, 0)], 3: [(0, 0, 2), (0, 8, 0), (0, 16, 2), (0, 24, 0), (0, 32, 2), (1, 7, 0), (1, 15, 2), (1, 21, 0)],
                       4: [(0, 16, 2), (1, 21, 0)], 5: [(0, 32, 2), (1, 21, 0)]}[PT]
                for part, g, p in pts: put(fb if part else fa, g, [op(f"s_setprio {p}")])
            put(fa, 33, [(nop, 16)])
            sched(qk(0, R, 0, trans) + pv(0, R, 8), fa, sm_ops(1))
            check(1, other=not trans)
            if mb: mb()
            pre = []
            if trans:
                I(f"s_mov_b32 s{SFIN}, 1")
                pre = init_max()
            put(fb, 18, [op(f"v_xor_b32 v{VV}, 0x10000, v{VK}")] + kx)
            for n, e in enumerate(endops): put(fb, 11 - n, [e])
            put(fb, 21, [(nop, 12)])
            sched(qk(1, R, 16) + pv(1, R, 24, range(2)), fb, pre + sm_ops(0)[:SPL])
            assert [R[26+i][1]["reg"] for i in range(6)] == TR
        vm4 = lambda: I("s_waitcnt vmcnt(4)")
        def vm08():
            lo = a.label("W8"); lb = a.label("W8R")
            I(f"s_cmp_eq_u32 s{SFIN}, 3"); I(f"s_cbranch_scc1 {lo}"); I("s_waitcnt vmcnt(0)"); a.L(lb)
            def b(): I("s_waitcnt vmcnt(8)"); I(f"s_mov_b32 s{SFIN}, 4")
            ool.append((lo, lb, b))
        m1 = lambda sb, ko: (lambda: rarely(f"s_cmp_eq_u32 s{SC1}, s{SM1}", lambda: mask_body(sb, ko)))
        fin = lambda: rarely(f"s_cmp_eq_u32 s{SFIN}, 1", fin_body)
        sta = (lambda: rarely(f"s_cmp_eq_u32 s{SFIN}, 2", st_body), 8)
        KR, VR, SH, WO, AD = 16, 23, 28, 32, 40
        def side_loads():
            L = []; E = lambda t: L.append(op(t)); V = lambda t: L.append(op(t, DC))
            E(f"v_lshrrev_b32 v{AD}, 5, v0"); E(f"v_and_b32 v{AD+1}, 31, v0"); E(f"v_lshlrev_b32 v{AD+2}, 12, v{AD}"); E(f"v_lshl_add_u32 v{AD+2}, v{AD+1}, 2, v{AD+2}")
            self.phys(60, SHEAD, 61, E); E("s_lshl_b32 s60, s60, 17"); E(f"s_lshr_b32 s61, s{SIDX}, 1"); E("s_lshl_b32 s61, s61, 15"); E("s_add_u32 s60, s60, s61")
            E(f"s_and_b32 s61, s{SF}, 1"); E("s_lshl_b32 s61, s61, 9"); E("s_add_u32 s60, s60, s61")
            E(f"s_lshl_b32 s61, s{SW}, 6"); E("s_add_u32 s60, s60, s61"); E("s_add_u32 s61, s60, 16384")
            E(f"v_lshrrev_b32 v{AD+3}, 4, v0"); E(f"v_lshlrev_b32 v{AD+3}, 12, v{AD+3}"); E(f"v_and_b32 v{AD+4}, 15, v0"); E(f"v_lshl_add_u32 v{AD+3}, v{AD+4}, 2, v{AD+3}")
            for j in range(8): V(f"buffer_load_dword v{WO+j}, v{AD+3}, s[{RE}:{RE+3}], s{60+(j>>2)} offen offset:{1024*(j&3)}")
            E("s_lshr_b32 s62, s2, 3"); E("s_lshl_b32 s62, s62, 16"); E(f"s_lshl_b32 s63, s{SW}, 13"); E("s_add_u32 s62, s62, s63")
            E("s_and_b32 s63, s2, 7"); E("s_lshl_b32 s63, s63, 7"); E("s_add_u32 s62, s62, s63"); E(f"v_add_u32 v{AD+3}, s62, v{AD+2}")
            for i in range(3): E(f"v_subrev_u32 v{AD+4+i}, {3072-1024*i}, v{AD+3}")
            E("s_lshl_b32 s63, s63, 2"); E(f"v_lshl_add_u32 v{AD+7}, v{AD+1}, 4, s63")
            for i in range(3): V(f"buffer_load_dword v{KR+i}, v{AD+4+i}, s[{RA}:{RA+3}], 0 offen")
            for i in range(4): V(f"buffer_load_dword v{KR+3+i}, v{AD+3}, s[{RA}:{RA+3}], 0 offen offset:{1024*i}")
            for i in range(4): V(f"buffer_load_dword v{VR+i}, v{AD+3}, s[{RC}:{RC+3}], 0 offen offset:{1024*i}")
            V(f"buffer_load_dwordx4 {v(SH,4)}, v{AD+7}, s[{RD}:{RD+3}], 0 offen")
            return L
        NSL = 21
        def side_math():
            L = []; E = lambda t: L.append(op(t)); V = lambda t: L.append(op(t, DC))
            W2 = 48
            E("s_mov_b32 s60, 0x05040100"); E("s_mov_b32 s61, 0x07060302")
            for j in range(4): E(f"v_perm_b32 v{W2+j}, v{WO+2*j+1}, v{WO+2*j}, s60")
            for j in range(4): E(f"v_perm_b32 v{W2+4+j}, v{WO+2*j+1}, v{WO+2*j}, s61")
            E(f"s_and_b32 s60, s{SF}, 1"); E("s_lshl_b32 s60, s60, 2"); E(f"s_lshr_b32 s61, s{SW}, 1"); E("s_add_u32 s60, s60, s61"); E("s_lshl_b32 s60, s60, 19")
            E(f"s_lshr_b32 s61, s{SF}, 1"); E("s_lshl_b32 s61, s61, 12"); E("s_add_u32 s60, s60, s61"); E(f"s_and_b32 s61, s{SW}, 1"); E("s_lshl_b32 s61, s61, 11")
            E("s_add_u32 s60, s60, s61"); E(f"s_add_u32 s60, s60, {WOT_OFF}")
            for mt in range(2): V(f"buffer_store_dwordx4 {v(W2+4*mt,4)}, v{VL16}, s[{RWS}:{RWS+3}], s60 offen offset:{1024*mt}{self.st}")
            KU, SU, OO, VU, PQ = 32, 42, 48, 39, 52
            for c in range(2):
                def unp(d, sreg, half): E(f"v_lshlrev_b32 v{d}, 16, v{sreg}" if half == 0 else f"v_and_b32 v{d}, 0xffff0000, v{sreg}")
                for i in range(7): unp(KU+i, KR+i, c)
                for j in range(4): unp(SU+j, SH + 2*c + (j >> 1), j & 1)
                for o in range(4):
                    E(f"v_mul_f32 v{OO+o}, v{KU+o}, v{SU+3}")
                    for j in (2, 1, 0): E(f"v_fmac_f32 v{OO+o}, v{KU+o+3-j}, v{SU+j}")
                    unp(VU, VR+o, c)
                    E(f"v_mul_f32 v{OO+o}, v{OO+o}, v{VU}")
                d = PQ + 2*(1-c)
                E(f"v_cvt_pk_bf16_f32 v{d}, v{OO+3}, v{OO+2}"); E(f"v_cvt_pk_bf16_f32 v{d+1}, v{OO+1}, v{OO}")
            E(f"v_lshlrev_b32 v{AD+1}, 5, v{AD+1}"); E(f"v_lshl_add_u32 v{AD+1}, v{AD}, 4, v{AD+1}")
            E(f"v_permlane32_swap_b32 v{PQ+2}, v{PQ}"); E(f"v_permlane32_swap_b32 v{PQ+3}, v{PQ+1}")
            E("s_lshr_b32 s60, s2, 3"); E("s_lshl_b32 s60, s60, 16"); E(f"s_lshl_b32 s61, s{SW}, 13"); E("s_add_u32 s60, s60, s61")
            E("s_and_b32 s61, s2, 7"); E("s_lshl_b32 s61, s61, 10"); E("s_add_u32 s60, s60, s61"); E(f"s_add_u32 s60, s60, {KVT_OFF}")
            V(f"buffer_store_dwordx4 {v(PQ,4)}, v{AD+1}, s[{RWS}:{RWS+3}], s60 offen{self.st}")
            return L
        CL = self.o.get("cl", 8)
        def touch(k):
            if k in (1, 2):
                self.phys(60, SHEAD, 61); I("s_lshl_b32 s60, s60, 17"); I(f"s_lshl_b32 s61, s{SIDX}, 14"); I("s_add_u32 s60, s60, s61")
                if k == 2: I("s_add_u32 s60, s60, 8192")
                I("v_lshlrev_b32 v16, 7, v0"); r = RE
            elif k in (3, 4):
                I("s_lshr_b32 s60, s2, 3"); I("s_lshl_b32 s60, s60, 16"); I("s_and_b32 s61, s2, 7"); I("s_lshl_b32 s61, s61, 7"); I("s_add_u32 s60, s60, s61")
                I("v_lshlrev_b32 v16, 10, v0"); r = RA if k == 3 else RC
            else:
                I(f"s_lshl_b32 s60, s{SF}, 13"); I("v_lshlrev_b32 v16, 7, v0"); r = RB
            I(f"buffer_load_dword v1, v16, s[{r}:{r+3}], s60 offen")
        LSITE = a.label("SITE")
        def site_code():
            a.L(LSITE)
            def ret(): I("s_nop 1"); I("s_setpc_b64 s[76:77]")
            l = a.label("SN"); I(f"s_cmp_lg_u32 s41, {CL}"); I(f"s_cbranch_scc1 {l}")
            for c, _ in side_loads(): c()
            ret(); a.L(l)
            l = a.label("SN"); I(f"s_add_u32 s44, s41, s{SG}"); I(f"s_cmp_lg_u32 s44, {CL+2}"); I(f"s_cbranch_scc1 {l}")
            for c, _ in side_math(): c()
            ret(); a.L(l)
            for k in range(1, 6):
                l = a.label("SN")
                I(f"s_cmp_lg_u32 s41, {k}"); I(f"s_cbranch_scc1 {l}")
                touch(k); ret(); a.L(l)
            I(f"s_lshl_b32 s44, s{SF}, 2"); I(f"s_add_u32 s44, s44, {FY_OFF}")
            sv = self.save(); self.publish(44, 2); self.restore(sv)
            ret()
        def spf():
            I("s_add_u32 s41, s41, 1"); rarely("s_bitcmp1_b32 s40, s41", lambda: I(f"s_call_b64 s[76:77], {LSITE}"))
        spub = (spf, 12)
        def snap():
            I(f"s_mov_b32 s61, {FY_OFF}"); I(f"buffer_load_dwordx4 v[52:55], v{VL16}, s[{RWS}:{RWS+3}], s61 offen sc1")
        def side_check():
            lo = a.label("SCK"); lb = a.label("SCR")
            def test():
                I("v_and_b32 v52, v52, v53"); I("v_and_b32 v54, v54, v55"); I("v_and_b32 v52, v52, v54"); I("v_and_b32 v52, 2, v52"); I("v_cmp_ne_u32 vcc, 2, v52")
            test(); I(f"s_cbranch_vccnz {lo}"); a.L(lb)
            def spin():
                lp = a.label("SPL")
                I("s_mov_b32 s99, 20000"); a.L(lp)
                I("s_sleep 2"); I(f"buffer_load_dwordx4 v[52:55], v{VL16}, s[{RWS}:{RWS+3}], s61 offen sc1"); I("s_waitcnt vmcnt(0)")
                test(); I(f"s_cbranch_vccz {lb}")
                I("s_sub_u32 s99, s99, 1"); I("s_cmp_lg_u32 s99, 0"); I(f"s_cbranch_scc1 {lp}")
            ool.append((lo, lb, spin))
        m2 = lambda sb, ko: (lambda: rarely(f"s_cmp_eq_u32 s{SC2}, 0", lambda: (snap(), mask_body(sb, ko))))
        LEV = a.label("EVEN"); LODM = a.label("ODDM"); LTRANS = a.label("TRANS"); LP2 = a.label("P2"); LP2B = a.label("P2B"); LDRAIN = a.label("DRAIN")
        self.stamp(8)
        self.ring_n = 0
        R = [rd("k", 0, i) for i in range(8)] + [rd("k", 1, i) for i in range(8)]
        def qrd(i):
            I(f"ds_read_b128 {v(QF+4*i,4)}, v{TMP+1} offset:{1024*i}"); return lg.issue()
        for i in range(4): qrd(i); R[i][0]()
        for i in range(4, 8): tq = qrd(i)
        D = dma4("v") + dma4("k")
        fx = {g: [(R[4+g][0], 4)] for g in range(4)}
        put(fx, 3, [(lambda: lg.wait(tq), 4)])
        for F in range(8, 15): put(fx, last_use(F - 8) + 1, [(R[F][0], 4)])
        for n, d in enumerate(D): put(fx, 2*n, [d])
        sched(qk(0, R, 0, True), fx, [])
        m1(0, 0)()
        pre = init_max()
        fx = {0: [(R[15][0], 4)], 8: [op(f"v_xor_b32 v{VV}, 0x10000, v{VK}"), op(f"v_xor_b32 v{VK}, 0x4000, v{VK}")]}
        sched(qk(1, R, 8), fx, pre + sm_ops(0)[:SPL])
        R = mk_reads()
        head(R, vm4, False, post=[m1(1, 32)])
        svm = self.save()
        self.stamp(9)
        LOD = [a.label("ODD0"), a.label("ODD1")]
        I(f"s_cmp_eq_u32 s{SG}, 1"); I(f"s_cbranch_scc1 {LOD[1]}"); I(f"s_branch {LOD[0]}")
        vm0 = lambda: I("s_waitcnt vmcnt(0)")
        def loops(g):
            LEV = a.label("EVEN"); LP2 = a.label("P2")
            mm = (lambda sb, ko: m1(sb, ko)) if g else (lambda sb, ko: None)
            a.L(LEV)
            R = mk_reads(); head(R, vm4)
            mid(R, "k", [op(f"v_xor_b32 v{VK}, 0x4000, v{VK}")], mb=mm(0, 0), early=[spub], g=g)
            R = mk_reads(); head(R, vm4, post=[m1(1, 32)] if g else [])
            assert self.lg.issued - self.lg.done == svm[2] - svm[3]
            a.L(LOD[g])
            mid(R, "v", [op(f"v_xor_b32 v{VK}, 0xc000, v{VK}")], mb=mm(0, 64), endops=[op(f"s_sub_u32 s{SC1}, s{SC1}, 1")], early=[spub], g=g)
            I(f"s_cmp_lg_u32 s{SC1}, -1"); I(f"s_cbranch_scc1 {LEV}")
            self.stamp(14)
            if g:
                loadq(VQ); I("s_waitcnt lgkmcnt(0)"); I(f"v_xor_b32 v{VK}, 0x4000, v{VK}")
            R = mk_reads(); head(R, vm4, more=mask_ops(1, 96) if g else ())
            mid(R, "k", [op(f"v_xor_b32 v{VK}, 0x8000, v{VK}")], mb=m2(0, -1), trans=bool(g), early=[spub], g=g)
            self.stamp(15)
            I(f"s_cmp_eq_u32 s{SC2}, 0"); I(f"s_cbranch_scc1 {LDRAIN}")
            a.L(LP2)
            R = mk_reads(); head(R, vm08 if g else vm0)
            mid(R, "kv", [op(f"v_xor_b32 v{VK}, 0x8000, v{VK}")], mb=m2(0, -1), endops=[sta] if g else [],
                early=[spub] + ([(fin, 8)] if g else []) + [op(f"s_sub_u32 s{SC2}, s{SC2}, 1")], g=g)
            I(f"s_cmp_lg_u32 s{SC2}, 0"); I(f"s_cbranch_scc1 {LP2}")
        loops(1); I(f"s_branch {LDRAIN}")
        loops(0)
        a.L(LDRAIN)
        self.stamp(10)
        R2 = [rd("v", 0, i) for i in range(8)] + [rd("v", 1, i) for i in range(8)]
        rf = [(f, 4) for f, h in R2]
        ts, ts2, ts3 = self.tail_setup()
        tsa = [x for x in ts if x[1] == 4]; tsl = [x for x in ts if x[1] != 4]
        mk_ = mask_ops(1, -33)
        head(R2, lambda: (vm08(), side_check(), tsl[0][0](), tsl[1][0]()), post=[fin, sta[0]], pre=tsa[:8], more=tsa[8:16] + [tsl[2]] + mk_)
        ts = tsa[16:]
        if self.o.get("dst"): self.stamp(17)
        pre = []; E_ = lambda t: pre.append(op(t))
        E_(f"s_add_u32 s44, s{SWK}, {ML}"); E_(f"v_add_u32 v54, s44, v{VL16}")
        E_(f"s_lshl_b32 s46, s{SW}, 13"); E_(f"v_add_u32 v55, s46, v{VL16}")
        E_(f"s_sub_u32 s54, 15, s{SIDX}"); E_(f"s_lshl_b32 s54, s54, 2"); E_(f"s_add_u32 s54, s54, s{SR}"); E_("s_lshl_b32 s54, s54, 5"); E_(f"s_add_u32 s54, s54, s{SHEAD}")
        E_("s_lshl_b32 s54, s54, 13"); E_(f"s_lshl_b32 s44, s{SG}, 12"); E_("s_add_u32 s54, s54, s44"); E_(f"s_add_u32 s54, s54, {CTX_OFF}")
        def lsum():
            def wml():
                I(f"ds_write_b128 v54, {v(150,4)}"); lg.issue()
            return [op(f"v_mov_b32 v150, v{NM}"), op(f"v_mov_b32 v{LS+1}, v{LS+4}"), (wml, 4)]
        def osend(g, i):
            def f():
                I(f"ds_write_b128 v55, {v(O+32*(1-g)+4*i,4)} offset:{1024*i}"); lg.issue()
            return (f, 16)
        lj = a.label("MGJ"); LMG = [a.label("MG0"), a.label("MG1")]; LFB = a.label("FB1"); LSK = a.label("SKIP"); LS1 = a.label("SK1")
        for c, _ in ts: c()
        I(f"s_lshl_b32 s45, s{SG}, 1"); I(f"s_sub_u32 s45, s{SR}, s45"); I("s_cmp_lt_i32 s45, 1"); I(f"s_cbranch_scc1 {LSK}")
        svd = self.save(); rnd = self.ring_n
        WA_ = self.o.get("wa", 6); tsA, tsB = ts2[:WA_], ts2[WA_:]
        setup_ = pre + ts3; n8 = (len(setup_) + 17) // 18
        fx = {g: setup_[g*n8:(g+1)*n8] for g in range(18)}
        for n, x in enumerate(tsA): put(fx, 1 + n * 17 // max(1, len(tsA)), [x])
        for F in range(7, 15): put(fx, 2*(F - 7) + (2 if F > 7 else 0), [rf[F]])
        sched(pv(0, R2, 0), fx, sm_ops(1))
        check(1)
        rf[15][0]()
        if self.o.get("dst"): self.stamp(20)
        I(f"s_cmp_eq_u32 s{SG}, 1"); I(f"s_cbranch_scc1 {LFB}")
        sv2 = self.save(); PR = 64
        for g in (0, 1):
            if g: a.L(LFB); self.restore(sv2)
            own = O + 32*g; snd = O + 32*(1-g)
            dts = list(range(4*(1-g), 4*(1-g)+4)) + list(range(4*g, 4*g+4))
            fx = {10 + i: [osend(g, i)] for i in range(8)}
            put(fx, 8, lsum())
            for n, x in enumerate(tsB): put(fx, n * 10 // max(1, len(tsB)), [x])
            sched(pv(1, R2, 8, dts, True), fx, self.tail_valu())
            a.L(LMG[g])
            if self.o.get("dst"): self.stamp(18)
            I(f"v_xor_b32 v54, 0x1c00, v54"); I(f"v_xor_b32 v55, 0xe000, v55")
            I("s_waitcnt lgkmcnt(0)"); lg.mark_all_done(); self.barrier()
            if self.o.get("dst"): self.stamp(19)
            I(f"ds_read_b128 {v(96,4)}, v54"); t0 = lg.issue()
            tk = []
            for i in range(8):
                I(f"ds_read_b128 {v(PR+4*i,4)}, v55 offset:{1024*i}"); tk.append(lg.issue())
            lg.wait(t0)
            for q in range(2):
                I(f"v_min_f32 v100, v{150+q}, v{96+q}"); I(f"v_sub_f32 v101, v100, v{150+q}"); I(f"v_sub_f32 v102, v100, v{96+q}")
                I("v_exp_f32 v101, v101"); I("v_exp_f32 v102, v102")
                I(f"v_mul_f32 v103, v101, v{LS+q}"); I(f"v_fmac_f32 v103, v102, v{98+q}"); I("v_rcp_f32 v103, v103")
                b = 104 + 4*q
                I(f"v_mul_f32 v{b}, v101, v103"); I(f"v_mul_f32 v{b+1}, v101, v103"); I(f"v_mul_f32 v{b+2}, v102, v103"); I(f"v_mul_f32 v{b+3}, v102, v103")
            tw = self.tail_writes()
            for q in range(4):
                b = 104 + 4*(q & 1)
                for i in range(8*q, 8*q+8, 2): I(f"v_pk_mul_f32 {v(own+i,2)}, {v(own+i,2)}, {v(b,2)}")
                lg.wait(tk[2*q+1])
                if not self.o.get("twe"):
                    for c in tw[3*q:3*q+3]: c()
                for i in range(8*q, 8*q+8, 2): I(f"v_pk_fma_f32 {v(own+i,2)}, {v(PR+i,2)}, {v(b+2,2)}, {v(own+i,2)}")
                for i in range(4): I(f"v_cvt_pk_bf16_f32 v{snd+4*q+i}, v{own+8*q+2*i}, v{own+8*q+2*i+1}")
                I(f"buffer_store_dwordx4 {v(snd+4*q,4)}, v{VL16}, s[{RWS}:{RWS+3}], s54 offen offset:{coff(q)}{self.st}"); self.tctx = vm.issue()
            if self.o.get("twe"):
                for c in tw: c()
            if not g: I(f"s_branch {lj}")
        def skip_path():
            keep = self.save(); tctx = self.tctx; th = self.th; wt = dict(self.wtok)
            a.L(LSK); self.restore(svd); self.ring_n = rnd
            I("s_cmp_lt_i32 s45, 0"); I(f"s_cbranch_scc1 {LS1}")
            rf[7][0]()
            for f in pv(0, R2[:8], 0): f()
            a.L(LS1)
            for c, _ in setup_ + ts2 + lsum() + self.tail_valu(): c()
            l1 = a.label("SG1"); I(f"s_cmp_eq_u32 s{SG}, 1"); I(f"s_cbranch_scc1 {l1}")
            for g in (0, 1):
                if g: a.L(l1)
                for i in range(8): osend(g, i)[0]()
                I(f"s_branch {LMG[g]}")
            self.restore(keep); self.tctx = tctx; self.th = th; self.wtok = wt
        a.L(lj)
        I("s_setprio 0")
        self.stamp(4)
        def cold():
            skip_path()
            site_code()
            for (lo, lb, body) in ool:
                a.L(lo); body(); I(f"s_branch {lb}")
            for (lr, lb, sb, other) in rare:
                a.L(lr)
                I("s_nop 15")
                rowmax(sb)
                for q in range(2): I(f"v_add_f32 v{TMP+q}, {f2u(BIAS)}, v{TMP+q}"); I(f"v_max_f32 v{TMP+q}, 0, v{TMP+q}"); I(f"v_exp_f32 v{TMP+2+q}, -v{TMP+q}")
                for r in range(8): I(f"v_sub_f32 v{NM+r}, v{NM+r}, v{TMP+(r>>2)}")
                for r in range(16): I(f"v_sub_f32 v{S[sb]+r}, v{S[sb]+r}, v{TMP+(r>>3)}")
                if other:
                    for r in range(16): I(f"v_sub_f32 v{S[1-sb]+r}, v{S[1-sb]+r}, v{TMP+(r>>3)}")
                for r in range(64): I(f"v_mul_f32 v{O+r}, v{O+r}, v{TMP+2+((r>>3)&1)}")
                for r in range(8): I(f"v_mul_f32 v{LS+r}, v{LS+r}, v{TMP+2+(r>>2)}")
                for c, _ in sm_ops(sb): c()
                I("s_nop 1"); I(f"s_branch {lb}")
        self.attn_rare = cold

    HB = 65536; HC = 4416; XB = 136192; YB = 148480
    SC, SJ, SB, SCH, SHB_, SWO, SCX = 34, 35, 36, 37, 38, 39, 40
    WS_ = [16, 24, 32, 40, 176, 184, 48, 56] + list(range(80, 144, 8))
    def tail_setup(self):
        I = self.I; L = []; E = lambda t: L.append((lambda: I(t), 4))
        SC, SJ, SB, SCH, SHB_, SWO, SCX = self.SC, self.SJ, self.SB, self.SCH, self.SHB_, self.SWO, self.SCX
        self.wtok = {}; self.wslot = dict(enumerate(self.WS_))
        E(f"s_lshr_b32 s{SC}, s{SW}, 2"); E(f"s_and_b32 s{SJ}, s{SW}, 3")
        E(f"s_lshl_b32 s{SCH}, s{SF}, 1"); E(f"s_add_u32 s{SCH}, s{SCH}, s{SC}"); E(f"s_lshl_b32 s{SCH}, s{SCH}, 12")
        E(f"s_lshl_b32 s60, s{SJ}, 10"); E("v_add_u32 v50, s60, v6"); E("v_subrev_u32 v51, 16, v50")
        E(f"s_lshl_b32 s63, s{SW}, 18"); E(f"s_lshl_b32 s62, s{SF}, 5"); E("s_add_u32 s63, s63, s62"); E(f"s_add_u32 s63, s63, {KVT_OFF}")
        E("v_lshrrev_b32 v48, 1, v0"); E("v_and_b32 v158, 1, v0" if False else "v_and_b32 v3, 1, v0"); E("v_lshlrev_b32 v49, 13, v48"); E("v_lshl_add_u32 v49, v3, 4, v49")
        def ld(t):
            def f(): I(t); self.th = self.vm.issue()
            L.append((f, 16))
        ld(f"buffer_load_dwordx4 {v(160,4)}, v51, s[{RB}:{RB+3}], s{SCH} offen")
        ld(f"buffer_load_dwordx4 {v(164,4)}, v50, s[{RB}:{RB+3}], s{SCH} offen")
        ld(f"buffer_load_dwordx4 {v(168,4)}, v49, s[{RWS}:{RWS+3}], s63 offen{self.ld}")
        E(f"s_lshl_b32 s{SWO}, s57, 19"); E(f"s_lshl_b32 s60, s{SW}, 15"); E(f"s_add_u32 s{SWO}, s{SWO}, s60"); E(f"s_add_u32 s{SWO}, s{SWO}, {WOT_OFF}")
        E("s_and_b32 s60, s56, 1"); E("s_lshl_b32 s60, s60, 18"); E(f"s_add_u32 s{SWO}, s{SWO}, s60")
        TR_ = self.o.get("trot", 1)
        if TR_ == 0: E("s_mov_b32 s58, 0")
        elif TR_ == 1: E("s_mov_b32 s58, s57")
        else: E("s_and_b32 s58, s56, 6"); E("s_add_u32 s58, s58, s57")
        def w1(i, mt):
            if mt == 0 and i % 2 == 0: self.wadr(i)
            I(f"buffer_load_dwordx4 {v(self.WS_[i]+4*mt,4)}, v6, s[{RWS}:{RWS+3}], s59 offen offset:{(i&1)*2048+mt*1024}{self.ld}"); self.wtok[i] = self.vm.issue()
        L2 = [(lambda i=i, mt=mt: w1(i, mt), 16) for i in range(self.o.get("we", 6)) for mt in range(2)]
        L3 = []; L, Lx = L3, L
        E = lambda t: L3.append((lambda: I(t), 4))
        E(f"s_mul_i32 s{SB}, s{SC}, 6144"); E(f"s_add_u32 s{SB}, s{SB}, {self.XB}")
        E(f"s_mul_i32 s{SHB_}, s{SC}, {8*self.HC}"); E(f"s_add_u32 s{SHB_}, s{SHB_}, {self.HB}")
        E(f"s_xor_b32 s{SCX}, s56, 1"); E(f"s_lshl_b32 s{SCX}, s{SCX}, 19"); E(f"s_lshl_b32 s60, s{SW}, 14"); E(f"s_add_u32 s{SCX}, s{SCX}, s60"); E(f"s_add_u32 s{SCX}, s{SCX}, {CTX_OFF}")
        E("s_and_b32 s60, s56, 1"); E("s_lshl_b32 s60, s60, 17"); E(f"s_add_u32 s{SCX}, s{SCX}, s60")
        return Lx, L2, L3
    def wreg(self, i):
        return self.WS_[i % len(self.WS_)]
    def wload(self, i):
        I = self.I; r = self.wslot[i]
        I(f"s_add_u32 s61, s{self.SWO}, {i*2048}")
        for mt in range(2):
            I(f"buffer_load_dwordx4 {v(r+4*mt,4)}, v6, s[{RWS}:{RWS+3}], s61 offen offset:{mt*1024}{self.ld}"); self.wtok[i] = self.vm.issue()
    def wadr(self, i):
        I = self.I
        I(f"s_add_u32 s59, s58, {i >> 1}"); I("s_and_b32 s59, s59, 7"); I("s_lshl_b32 s59, s59, 12"); I(f"s_add_u32 s59, s59, s{self.SWO}")
    def tail_valu(self):
        I = self.I; HC = self.HC; L = []; E = lambda t: L.append((lambda: I(t), 4))
        SJ, SB, SHB_ = self.SJ, self.SB, self.SHB_
        Ee, Eo, Oe, Oo = 160, 113, 122, 131
        E(f"s_add_u32 s60, s{SHB_}, 64"); E("v_add_u32 v138, s60, v50")
        E("v_and_b32 v51, 3, v48"); E("v_mul_u32_u24 v139, 1536, v51"); E("v_lshrrev_b32 v53, 2, v48"); E("v_lshl_add_u32 v139, v53, 4, v139")
        E("v_and_b32 v53, 1, v0"); E("v_mul_u32_u24 v53, 6144, v53"); E(f"s_lshl_b32 s60, s{SW}, 7"); E(f"s_add_u32 s60, s60, {self.XB + 512}"); E("v_add3_u32 v139, v139, v53, s60")
        E("v_and_b32 v51, 3, v0")
        for r in range(2): E(f"v_mov_b64 {v(172+2*r,2)}, 0")
        E("v_bfe_u32 v140, v0, 2, 3"); E(f"v_mul_u32_u24 v140, {HC}, v140"); E("v_lshl_add_u32 v140, v51, 4, v140"); E(f"v_add_u32 v140, s{SHB_}, v140")
        E(f"s_mul_i32 s60, s{SJ}, 1536"); E(f"s_add_u32 s60, s60, s{SB}"); E("v_lshl_add_u32 v141, v0, 3, s60")
        L.append((lambda: self.vm.wait(self.th - 1), 4))
        for k in range(7): E(f"v_alignbit_b32 v{Oe+k}, v{Ee+k+1}, v{Ee+k}, 16")
        for k in range(1, 7): E(f"v_alignbit_b32 v{Oo+k}, v{Ee+k+1}, v{Ee+k}, 16")
        for k in range(1, 7): E(f"v_mov_b32 v{Eo+k}, v{Ee+k}")
        return L
    def tail_writes(self):
        I = self.I; lg = self.lg; HC = self.HC; L = []
        Ee, Eo, Oe, Oo = 160, 113, 122, 131
        def W(t, pre=None):
            def f():
                if pre: pre()
                I(t); lg.issue()
            L.append(f)
        for r in range(8):
            sft = 1 + r; k = sft >> 1
            base = ((Oe, Oo) if sft & 1 else (Ee, Eo))[k & 1]
            W(f"ds_write_b128 v138, {v(base+k,4)} offset:{r*HC}")
        W(f"ds_write_b128 v140, {v(172,4)}"); W(f"ds_write_b64 v141, {v(172,2)}")
        W(f"ds_write_b128 v139, {v(168,4)}", lambda: self.vm.wait(self.th))
        return L
    def tailp(self):
        a = self.a; I = self.I; vm = self.vm; lg = self.lg
        HB, HC, YB = self.HB, self.HC, self.YB
        SC, SJ, SB, SCH, SHB_, SWO, SCX = self.SC, self.SJ, self.SB, self.SCH, self.SHB_, self.SWO, self.SCX
        ACC = 192; FRS = [224, 240, 64]; RD_ = 224; OACC = 192; YT = self.XB
        VL16, VA, VB, T, VP, VPA, VO, GR, VW1 = 6, 4, 5, 12, 7, 8, 9, 10, 11
        WSL = self.WS_; CSL = [144, 152, 160, 168, 64, 72]
        assert len(WSL) == 16
        I(f"s_lshr_b32 s53, s56, 1"); I("s_lshl_b32 s53, s53, 10"); I("s_and_b32 s44, s56, 1"); I("s_lshl_b32 s44, s44, 9"); I("s_add_u32 s53, s53, s44")
        I(f"s_lshr_b32 s44, s{SW}, 1"); I("s_lshl_b32 s44, s44, 7"); I("s_add_u32 s53, s53, s44"); I(f"s_and_b32 s44, s{SW}, 1"); I("s_lshl_b32 s44, s44, 3")
        I("s_add_u32 s53, s53, s44"); I(f"s_add_u32 s53, s53, {FC_OFF}")
        I(f"v_and_b32 v{VPA}, 1, v0"); I(f"v_lshlrev_b32 v{VPA}, 2, v{VPA}")
        PUBN = self.o.get("pubn", 4)
        I(f"s_lshr_b32 s45, s{SHEAD}, 2"); I("s_lshl_b32 s45, s45, 7"); I(f"s_and_b32 s44, s{SHEAD}, 3"); I("s_lshl_b32 s44, s44, 2"); I("s_add_u32 s45, s45, s44")
        I(f"s_sub_u32 s44, 15, s{SIDX}"); I("s_lshl_b32 s44, s44, 10"); I("s_add_u32 s46, s44, s45"); I(f"s_add_u32 s46, s46, {FC_OFF}")
        I(f"s_lshl_b32 s44, s{SIDX}, 10"); I("s_add_u32 s47, s44, s45"); I(f"s_add_u32 s47, s47, {FC_OFF}")
        self.srd(RC, "out", 2*MB); self.srd(RD, "q", 2*MB)
        I(f"s_lshl_b32 s44, s{SF}, 2"); I(f"s_load_dword s55, s[{P['ssmD']}:{P['ssmD']+1}], s44")
        I(f"v_and_b32 v{T}, 15, v0"); I(f"v_lshrrev_b32 v{T+1}, 4, v0")
        I(f"v_and_b32 v{T+2}, 7, v0"); I(f"v_mul_u32_u24 v{VA}, {HC}, v{T+2}")
        I(f"v_bfe_u32 v{T+2}, v0, 3, 1"); I(f"v_sub_u32 v{T+2}, v{T+2}, v{T+1}"); I(f"v_lshl_add_u32 v{VA}, v{T+2}, 4, v{VA}")
        I(f"s_lshl_b32 s43, s{SJ}, 8"); I(f"s_add_u32 s43, s43, s{SHB_}"); I("s_add_u32 s43, s43, 64"); I(f"v_add_u32 v{VA}, s43, v{VA}")
        I(f"s_lshl_b32 s43, s{SJ}, 6"); I(f"s_sub_u32 s43, s{SB}, s43"); I(f"s_add_u32 s43, s43, {(32-3)*16}")
        I(f"v_lshl_add_u32 v{VB}, v{T}, 4, s43"); I(f"v_mul_u32_u24 v{T+2}, 1536, v{T+1}"); I(f"v_add_u32 v{VB}, v{VB}, v{T+2}")
        I(f"s_lshl_b32 s51, s{SW}, 13"); I(f"s_xor_b32 s52, s{SCX}, 0x80000")
        I("s_waitcnt lgkmcnt(0)"); lg.mark_all_done(); self.barrier()
        self.stamp(5)
        wtok = dict(self.wtok); ctok = {}; cslot = dict(enumerate(CSL))
        def wload(k):
            if k % 2 == 0: self.wadr(k)
            for mt in range(2):
                I(f"buffer_load_dwordx4 {v(WSL[k]+4*mt,4)}, v{VL16}, s[{RWS}:{RWS+3}], s59 offen offset:{(k&1)*2048+mt*1024}{self.ld}"); wtok[k] = vm.issue()
        def cload(i):
            I(f"s_add_u32 s62, s58, {i & 7}"); I("s_and_b32 s62, s62, 7"); I("s_lshl_b32 s62, s62, 11"); I(f"s_add_u32 s62, s62, s{52 if i >= 16 else SCX}")
            if i & 8: I("s_add_u32 s62, s62, 0x40000")
            for qt in range(2):
                I(f"buffer_load_dwordx4 {v(cslot[i]+4*qt,4)}, v{VL16}, s[{RWS}:{RWS+3}], s62 offen offset:{qt*1024}{self.ld}"); ctok[i] = vm.issue()
        wl = [k for k in range(16) if k not in wtok]
        BS = [224, 240]; AS = list(range(160, 176, 4)) + list(range(64, 80, 4)); NA = len(AS)
        seq = [(dd, m, bt) for dd in range(4) for (m, bt) in ((0, 0), (3, 0), (0, 1), (3, 1), (1, 0), (2, 0), (1, 1), (2, 1))]
        atok = {}; btok = {}
        def rda(n):
            if n >= len(seq): return
            dd, m, bt = seq[n]
            I(f"ds_read_b128 {v(AS[n % NA],4)}, v{VA} offset:{64*dd + 1024*m + 32*bt}"); atok[n] = lg.issue()
        def rdb(dd, n):
            if dd >= 4: return
            I(f"ds_read_b128 {v(BS[dd & 1]+4*n,4)}, v{VB} offset:{(3-dd)*16 + 256*n}"); btok[(dd, n)] = lg.issue()
        rda(0)
        for n in range(4): rdb(0, n)
        for n in range(1, NA - 1): rda(n)
        seen = set()
        for n, (dd, m, bt) in enumerate(seq):
            for nn in range(4 - m):
                lg.wait(max(atok[n], btok[(dd, nn)]))
                key = (m + nn, bt); d = v(ACC + 8*key[0] + 4*bt, 4)
                I(f"v_mfma_f32_16x16x32_bf16 {d}, {v(AS[n % NA],4)}, {v(BS[dd & 1]+4*nn,4)}, {d if key in seen else '0'}"); seen.add(key)
                if nn == 0:
                    rda(n + NA - 1)
                    if 1 <= (n & 7) <= 4: rdb(dd + 1, (n & 7) - 1)
            if n & 1:
                h_ = n >> 1
                if h_ == PUBN:
                    vm.wait(self.tctx); self.barrier(); self.publish(46); self.publish(47)
                if h_ >= self.o.get("wst", 2) and len(wl) > self.o.get("wkeep", 2): wload(wl.pop(0))
                if h_ == self.o.get("p1", 12): tc1 = self.poll_issue(VP, VPA, "s53")
        I(f"v_add_u32 v{T+2}, s51, v{VL16}")
        for i in range(8):
            I(f"ds_write_b128 v{T+2}, {v(ACC+4*i,4)} offset:{1024*i}"); lg.issue()
        while wl: wload(wl.pop(0))
        I(f"s_lshl_b32 s43, s{SC}, 15"); I(f"s_lshl_b32 s44, s{SJ}, 11"); I("s_add_u32 s43, s43, s44"); I(f"v_add_u32 v{T+2}, s43, v{VL16}")
        I(f"s_lshl_b32 s44, s{SJ}, 8"); I(f"s_add_u32 s44, s44, s{SB}"); I("s_add_u32 s44, s44, 520")
        I(f"v_lshl_add_u32 v{T+3}, v{T}, 4, s44"); I(f"v_and_b32 v{VA}, 1, v{T+1}"); I(f"v_lshlrev_b32 v{VA}, 3, v{VA}"); I(f"v_sub_u32 v{T+3}, v{T+3}, v{VA}")
        I(f"v_lshrrev_b32 v{VA}, 1, v{T+1}"); I(f"v_mul_u32_u24 v{VA}, 1536, v{VA}"); I(f"v_add_u32 v{T+3}, v{T+3}, v{VA}")
        I(f"v_lshlrev_b32 v{VB}, 6, v{T}"); I(f"v_lshl_add_u32 v{VB}, v{T+1}, 3, v{VB}")
        I(f"s_add_u32 s45, s{SWK}, {YB}"); I(f"v_add_u32 v{VB}, s45, v{VB}")
        I("s_lshl_b32 s43, s55, 16"); I("s_and_b32 s44, s55, 0xffff0000"); I(f"s_cmp_eq_u32 s{SC}, 0"); I("s_cselect_b32 s55, s43, s44")
        lg.wait(lg.issued); self.barrier()
        self.stamp(12)
        for p in range(4):
            for gq in range(2):
                I(f"ds_read_b128 {v(RD_+8*p+4*gq,4)}, v{T+2} offset:{8192*p+1024*gq}"); lg.issue()
        for gq in range(2):
            I(f"ds_read_b64 {v(ACC+2*gq,2)}, v{T+3} offset:{3072*gq}"); lg.issue()
        le = a.label("NE")
        vm.wait(tc1); I(f"v_and_b32 v{VP}, 1, v{VP}"); I(f"v_cmp_ne_u32 vcc, 1, v{VP}"); I("s_mov_b32 s50, 0"); I(f"s_cbranch_vccnz {le}")
        sv = self.save(); I("s_mov_b32 s50, 1")
        for i in range(len(CSL)): cload(i)
        self.restore(sv); a.L(le)
        lg.wait(lg.issued)
        for i in range(0, 8, 2):
            I(f"v_pk_add_f32 {v(RD_+i,2)}, {v(RD_+i,2)}, {v(RD_+8+i,2)}"); I(f"v_pk_add_f32 {v(RD_+16+i,2)}, {v(RD_+16+i,2)}, {v(RD_+24+i,2)}")
        for i in range(0, 8, 2): I(f"v_pk_add_f32 {v(RD_+i,2)}, {v(RD_+i,2)}, {v(RD_+16+i,2)}")
        for gq in range(2):
            for r in range(4):
                srcr = ACC + 2*gq + (1 - (r >> 1))
                I(f"v_lshlrev_b32 v{ACC+8}, 16, v{srcr}" if r & 1 else f"v_and_b32 v{ACC+8}, 0xffff0000, v{srcr}")
                I(f"v_fma_f32 v{RD_+4*gq+r}, v{ACC+8}, s55, v{RD_+4*gq+r}")
        for i in range(4): I(f"v_cvt_pk_bf16_f32 v{ACC+12+i}, v{RD_+2*i}, v{RD_+2*i+1}")
        for gq in range(2):
            I(f"ds_write_b64 v{VB}, {v(ACC+12+2*gq,2)} offset:{32*gq}"); lg.issue()
        I(f"v_and_b32 v{T+2}, 15, v0"); I(f"v_lshrrev_b32 v{T+1}, 4, v0"); I(f"v_lshlrev_b32 v{T+1}, 1, v{T+1}"); I(f"v_xor_b32 v{T+1}, v{T+1}, v{T+2}"); I(f"v_lshlrev_b32 v{T+1}, 4, v{T+1}")
        I(f"v_lshl_add_u32 v{VA}, v{T+2}, 8, v{T+1}"); I(f"v_add_u32 v{VA}, s51, v{VA}")
        I(f"s_lshr_b32 s48, s{SW}, 1"); I("s_lshl_b32 s48, s48, 4"); I(f"s_and_b32 s41, s{SW}, 1"); I("s_lshl_b32 s42, s41, 3")
        I(f"v_lshrrev_b32 v{T}, 4, v0"); I(f"v_lshl_add_u32 v{T+1}, v{T}, 1, s42"); I(f"v_xor_b32 v{T+1}, v{T+1}, v{T+2}"); I(f"v_lshlrev_b32 v{T+1}, 4, v{T+1}")
        I("s_and_b32 s43, s48, 16"); I(f"v_add_u32 v{T+3}, s43, v{T+2}"); I(f"v_lshl_add_u32 v{VW1}, v{T+3}, 8, v{T+1}")
        I("s_lshr_b32 s43, s48, 5"); I("s_lshl_b32 s43, s43, 16"); I(f"v_add_u32 v{VW1}, s43, v{VW1}")
        lg.wait(lg.issued); I(f"v_xor_b32 v{VB}, 16, v{VW1}"); self.barrier()
        ly = a.label("NY")
        I(f"s_cmp_lg_u32 s{SW}, 0"); I(f"s_cbranch_scc1 {ly}")
        I(f"v_add_u32 v{T}, {YB}, v{VL16}")
        for i in range(8): I(f"ds_read_b128 {v(RD_+4*i,4)}, v{T} offset:{1024*i}")
        I(f"s_lshl_b32 s44, s{SF}, 13"); I(f"s_add_u32 s44, s44, {YT_OFF}"); I("s_add_u32 s45, s44, 4096")
        I("s_waitcnt lgkmcnt(0)")
        for i in range(8): I(f"buffer_store_dwordx4 {v(RD_+4*i,4)}, v{VL16}, s[{RWS}:{RWS+3}], s{44+(i>>2)} offen offset:{1024*(i&3)}{self.st}")
        a.L(ly)
        ll = a.label("NL")
        I("s_cmp_eq_u32 s50, 1"); I(f"s_cbranch_scc1 {ll}")
        self.poll_check(VP, VPA, "s53", 1)
        for i in range(len(CSL)): cload(i)
        a.L(ll)
        self.stamp(6)
        def put_ops(st):
            L = []
            for mt in range(4):
                def f(mt=mt):
                    I(f"v_xor_b32 v{T+3}, {(8*(mt>>1)+(mt&1))*16 + 0x10000*st}, v{VA}")
                    for qt in range(2):
                        I(f"ds_write_b128 v{T+3}, {v(OACC+32*st+8*mt+4*qt,4)} offset:{4096*qt}"); lg.issue()
                L.append(f)
            return L
        def sum_partials(mid=None):
            tk = []
            for p in range(8):
                for hh in range(2):
                    I(f"ds_read_b128 {v(OACC+8*p+4*hh,4)}, v{(VW1, VB)[hh]} offset:{8192*p}"); lg.issue()
                tk.append(lg.issued)
                if p == 5 and mid: mid()
            for p in range(1, 8):
                lg.wait(tk[p])
                for e in range(0, 8, 2): I(f"v_pk_add_f32 {v(OACC+e,2)}, {v(OACC+e,2)}, {v(OACC+8*p+e,2)}")
        ymark = vm.issued; ypub = False; pm = {}; ppub = False; free = []; nc = len(CSL); XR = WSL[0]; PR_ = WSL[1]
        TS = [OACC + 32 + 8*n for n in range(4)]; ptk = {}
        def prd(p):
            r = TS[0] if p == 0 else TS[1 + (p - 1) % 3]
            for hh in range(2):
                I(f"ds_read_b128 {v(r+4*hh,4)}, v{(VW1, VB)[hh]} offset:{8192*p}"); ptk[p] = lg.issue()
        def padd(p):
            lg.wait(ptk[p]); r = TS[1 + (p - 1) % 3]
            for e in range(0, 8, 2): I(f"v_pk_add_f32 {v(TS[0]+e,2)}, {v(TS[0]+e,2)}, {v(r+e,2)}")
            if p + 3 < 8: prd(p + 3)
        def pst():
            I(f"s_lshl_b32 s44, s{SF}, 14"); I(f"s_lshl_b32 s45, s{SW}, 11"); I("s_add_u32 s54, s44, s45"); I(f"s_add_u32 s54, s54, {PP_OFF}")
            for hh in range(2):
                I(f"buffer_store_dwordx4 {v(TS[0]+4*hh,4)}, v{VL16}, s[{RWS}:{RWS+3}], s54 offen offset:{1024*hh}{self.st}"); pm["t"] = vm.issue()
        B1 = self.o.get("b1", 18); PS = self.o.get("ps", 21)
        for i2 in range(0, 32, 2):
            st = (i2 >> 3) & 1; J = i2 & 7; fill = []
            if i2 in (8, 24): fill = put_ops(0)
            if i2 == 16: fill = put_ops(1)
            if i2 == 24: self.barrier()
            if i2 == B1:
                lg.wait(lg.issued); self.barrier()
                for p in range(4): prd(p)
                fill = [lambda p=p: padd(p) for p in range(1, 8)]
                I(f"s_lshl_b32 s53, s57, 7"); I(f"s_lshl_b32 s42, s{SW}, 4"); I("s_add_u32 s53, s53, s42"); I(f"s_add_u32 s53, s53, {FY_OFF}")
                I(f"v_and_b32 v{VPA}, 3, v0"); I(f"v_lshlrev_b32 v{VPA}, 2, v{VPA}")
                tf = self.poll_issue(VP, VPA, "s53")
            if i2 == 26:
                I(f"v_and_b32 v{T+1}, 15, v0"); I(f"s_lshl_b32 s45, s56, 6"); I("s_add_u32 s45, s45, s48"); I(f"v_add_u32 v{T+1}, s45, v{T+1}")
                I(f"v_lshlrev_b32 v{T+2}, 2, v{T+1}"); I(f"s_mov_b32 s45, {G_OFF}")
                I(f"buffer_load_dword v{GR}, v{T+2}, s[{RWS}:{RWS+3}], s45 offen{self.ld}"); vm.issue()
                I(f"v_lshrrev_b32 v{T+2}, 4, v0"); I(f"v_lshlrev_b32 v{T+2}, 4, v{T+2}"); I(f"v_lshl_add_u32 v{VO}, v{T+1}, 10, v{T+2}")
                I("s_lshl_b32 s49, s41, 6"); I(f"s_lshl_b32 s45, s57, 7"); I("s_add_u32 s49, s49, s45")
                I(f"buffer_load_dwordx4 {v(XR,4)}, v{VO}, s[{RD}:{RD+3}], s49 offen"); vm.issue()
                vm.wait(tf); self.poll_check(VP, VPA, "s53", 1)
                I(f"v_lshrrev_b32 v{T}, 3, v0"); I(f"v_and_b32 v{T+1}, 7, v0"); I(f"v_lshlrev_b32 v{T+1}, 4, v{T+1}")
                I(f"v_lshl_add_u32 v{T}, v{T}, 12, v{T+1}")
                I(f"s_add_u32 m0, s{SWK}, {YT}")
                I(f"s_lshl_b32 s44, s57, 18"); I(f"s_lshl_b32 s45, s{SW}, 15"); I("s_add_u32 s44, s44, s45")
                I(f"s_lshl_b32 s45, s56, 7"); I("s_add_u32 s44, s44, s45"); I(f"s_add_u32 s44, s44, {YT_OFF}")
                I(f"buffer_load_dwordx4 v{T}, s[{RWS}:{RWS+3}], s44 offen{self.ld} lds"); vm.issue()
            vm.wait(max(ctok[i2+1], wtok[2*J+3]))
            if not ypub and vm.done > ymark:
                ypub = True; I(f"s_lshl_b32 s44, s{SF}, 2"); I(f"s_add_u32 s44, s44, {FY_OFF}"); self.publish(44, 3)
            if pm and not ppub and vm.done >= pm["t"]:
                ppub = True
                I(f"s_lshl_b32 s44, s{SF}, 7"); I(f"s_lshl_b32 s45, s{SW}, 2"); I("s_add_u32 s44, s44, s45"); I(f"s_add_u32 s44, s44, {FP_OFF}")
                I("v_mov_b32 v2, 1"); I("v_mov_b32 v3, 0"); I(f"buffer_store_dword v2, v3, s[{RWS}:{RWS+3}], s44 offen sc1"); vm.issue()
            if i2 == 30:
                I(f"s_xor_b32 s53, s{SF}, 32"); I("s_lshl_b32 s53, s53, 7"); I(f"s_lshl_b32 s42, s{SW}, 2"); I("s_add_u32 s53, s53, s42"); I(f"s_add_u32 s53, s53, {FP_OFF}")
                I(f"v_mov_b32 v{VPA}, 0")
                if self.o.get("pe"): tp = self.poll_issue(VP, VPA, "s53")
            M = []
            for mt in range(4):
                for qt in range(2):
                    for u in range(2):
                        d = v(OACC + 32*st + 8*mt + 4*qt, 4)
                        M.append(lambda d=d, mt=mt, qt=qt, u=u: I(f"v_mfma_f32_16x16x32_bf16 {d}, {v(WSL[2*(J+u) + (mt >> 1)]+4*(mt & 1),4)}, {v(cslot[i2+u]+4*qt,4)}, {'0' if J + u == 0 else d}"))
            self.stream(M, [(1, 16, fill)] if fill else [])
            free += [cslot[i2], cslot[i2+1]]
            while free and nc < 32:
                cslot[nc] = free.pop(0); cload(nc); nc += 1
            if i2 + 1 == PS or i2 == PS: pst()
        assert ypub and ppub
        self.stamp(7)
        if not self.o.get("pe"):
            tp = self.poll_issue(VP, VPA, "s53")
            for f in put_ops(1): f()
        vm.wait(tp); self.poll_check(VP, VPA, "s53", 1)
        if self.o.get("ostamp"): self.stamp(20)
        I("s_xor_b32 s54, s54, 0x80000")
        for hh in range(2):
            I(f"buffer_load_dwordx4 {v(PR_+4*hh,4)}, v{VL16}, s[{RWS}:{RWS+3}], s54 offen offset:{1024*hh}{self.ld}"); tpp = vm.issue()
        if self.o.get("pe"):
            for f in put_ops(1): f()
        I(f"v_lshrrev_b32 v{T}, 4, v0"); I("s_lshl_b32 s42, s41, 5"); I(f"v_lshl_add_u32 v{T}, v{T}, 3, s42"); I(f"v_bfe_u32 v{T+1}, v0, 2, 2")
        I(f"v_add_u32 v{T}, v{T}, v{T+1}"); I(f"v_lshlrev_b32 v{T}, 7, v{T}"); I(f"v_and_b32 v{T+1}, 3, v0")
        I(f"v_lshl_add_u32 v{T}, v{T+1}, 3, v{T}"); I("s_lshl_b32 s42, s48, 1"); I(f"s_add_u32 s42, s42, {YT}"); I(f"v_add_u32 v{T}, s42, v{T}")
        lg.wait(lg.issued); self.barrier()
        I(f"ds_read_b64_tr_b16 {v(100,2)}, v{T}"); lg.issue()
        I(f"ds_read_b64_tr_b16 {v(102,2)}, v{T} offset:512"); ty2 = lg.issue()
        def mix():
            lg.wait(ty2)
            for e in range(8):
                if e & 1: I(f"v_and_b32 v104, 0xffff0000, v{XR+(e>>1)}"); I(f"v_and_b32 v105, 0xffff0000, v{100+(e>>1)}")
                else: I(f"v_lshlrev_b32 v104, 16, v{XR+(e>>1)}"); I(f"v_lshlrev_b32 v105, 16, v{100+(e>>1)}")
                I(f"v_mul_f32 v{112+e}, v104, v105"); I(f"v_mul_f32 v{112+e}, v{112+e}, v{GR}")
            I(f"v_sub_f32 v{GR}, 1.0, v{GR}")
        sum_partials(mix)
        vm.wait(tpp)
        for e in range(0, 8, 2): I(f"v_pk_add_f32 {v(OACC+e,2)}, {v(OACC+e,2)}, {v(PR_+e,2)}")
        for e in range(8): I(f"v_fmac_f32 v{112+e}, v{OACC+4*(e&1)+(e>>1)}, v{GR}")
        for e in range(4): I(f"v_cvt_pk_bf16_f32 v{108+e}, v{112+2*e}, v{112+2*e+1}")
        I(f"buffer_store_dwordx4 {v(108,4)}, v{VO}, s[{RC}:{RC+3}], s49 offen sc1"); vm.issue()
        self.stamp(16)
        if self.o.get("echo"):
            lp = a.label("EC")
            I("s_sub_u32 s100, s100, s96")
            if self.o.get("cyc"): I("s_lshr_b32 s100, s100, 4")
            I("s_memrealtime s[96:97]"); I("s_waitcnt lgkmcnt(0)")
            a.L(lp)
            I("s_memrealtime s[98:99]"); I("s_waitcnt lgkmcnt(0)"); I("s_sub_u32 s98, s98, s96"); I("s_cmp_lt_u32 s98, s100"); I(f"s_cbranch_scc1 {lp}")
        if self.o.get("dbgout") is not None:
            l = a.label("DB")
            I(f"s_cmp_lg_u32 s2, {self.o['dbgout']}"); I(f"s_cbranch_scc1 {l}"); I(f"s_cmp_lg_u32 s{SW}, 0"); I(f"s_cbranch_scc1 {l}")
            I("s_waitcnt vmcnt(0)")
            order = [0, 1, 2, 3, 8, 10, 11, 4, 5, 12, 6, 7, 16]
            I("v_mov_b32 v20, 0")
            for j, i in enumerate(order):
                I(f"s_mov_b32 s44, {4*i}"); I(f"v_writelane_b32 v20, s44, {j}")
            I(f"s_lshl_b32 s44, s2, 11"); I(f"s_add_u32 s44, s44, {STAMP_OFF}")
            I(f"buffer_load_dword v21, v20, s[{RWS}:{RWS+3}], s44 offen sc1"); I("s_waitcnt vmcnt(0)")
            I("v_readfirstlane_b32 s45, v21"); I("v_subrev_u32 v21, s45, v21")
            self.srd(RDBG, "dbg", 64); I("v_lshlrev_b32 v22, 2, v0")
            I(f"buffer_store_dword v21, v22, s[{RDBG}:{RDBG+3}], 0 offen")
            a.L(l)

HEADER = """; One persistent launch, one 8-wave workgroup per CU (generated by gen/gen_final.py, hand-designed schedule).
"""
def build(opts):
    g = G(opts); k = NAME + "_kernel"
    g.begin(k); g.a.T("; MARK p"); g.proj(); g.a.T("; MARK a"); g.attn(); g.a.T("; MARK t"); g.tailp(); g.end(); g.a.T("; MARK a"); g.attn_rare(); g.a.T("; MARK t"); g.a.L("CODE_END"); g.a.I("s_endpgm")
    n = g.a.fix_hazards()
    txt = "; @launch grid=(256,1,1) block=(512,1,1) lds=163840\n" + HEADER
    txt += '.amdgcn_target "amdgcn-amd-amdhsa--gfx950"\n.text\n' + g.a.text()
    txt += f""".section .rodata,"a"
.p2align 6
.amdhsa_kernel {k}
  .amdhsa_next_free_vgpr 256
  .amdhsa_next_free_sgpr 102
  .amdhsa_accum_offset 256
  .amdhsa_group_segment_fixed_size 0
  .amdhsa_kernarg_size 128
  .amdhsa_user_sgpr_count 2
  .amdhsa_user_sgpr_kernarg_segment_ptr 1
  .amdhsa_system_sgpr_workgroup_id_x 1
.end_amdhsa_kernel
"""
    print(f"instructions {sum(1 for it in g.a.items if it[0] == 'i')}, nops inserted {n}", file=sys.stderr)
    return txt

if __name__ == "__main__":
    opts = {}
    for x in sys.argv[2:]:
        if "=" in x: k_, v_ = x.split("="); opts[k_] = int(v_)
        else: opts[x] = True
    open(sys.argv[1], "w").write(build(opts))
```

```python
import sys, math, struct
sys.path.insert(0, "gen")
from asmlib import *

NAME = "gated_mix__ssm_conv_h3__compressed_kv_cla__prompt"
MB = 1 << 20
KV_OFF, Q_OFF, CTX_OFF, KVT_OFF, YT_OFF, G_OFF = 0, 32*MB, 48*MB, 64*MB, 66*MB, 68*MB
XC_OFF = 40*MB
PP_OFF = 40*MB
WOT_OFF = 32*MB
FLG_OFF = 68*MB + 65536
FK_OFF, FY_OFF, FC_OFF, FP_OFF = FLG_OFF, FLG_OFF + 4096, FLG_OFF + 8192, FLG_OFF + 32768
STAMP_OFF = 69*MB
WS_SIZE = 70*MB
P = dict(q=64, k=66, v=68, shift=70, ssmk=72, ssmD=74, bx=76, ckv=78, wq=80, wuk=82, wuv=84, wo=86, gate=88, out=90, dbg=92, ws=94)
SW, SHEAD, SIDX, SWK, SF = 3, 4, 5, 6, 7
RA, RB, RC, RWS, RD, RE, RT, RDBG = 8, 12, 16, 20, 24, 28, 56, 60
MFMA = "v_mfma_f32_32x32x16_bf16"
LOG2E = 1.4426950408889634
F_KV, F_CA, F_CB, F_Y = 1, 2, 4, 8
def f2u(x): return "0x%08x" % struct.unpack("<I", struct.pack("<f", x))[0]
def rep4(b): return b * 0x01010101

class G:
    def __init__(self, opts):
        self.a = Asm(); self.o = opts
        self.GSH, self.FSH = (8, 10) if opts.get("lin") else (11, 8)
        self.vm = Cnt(self.a, "vmcnt", 63); self.lg = Cnt(self.a, "lgkmcnt", 15)
        self.st = "" if opts.get("plainst") else (" sc1 nt" if opts.get("ntst") else " sc1"); self.ld = "" if opts.get("plainld") else " sc1"
    def I(self, t): self.a.I(t)
    def srd(self, r, ptr, nbytes):
        I = self.I
        I(f"s_mov_b32 s{r}, s{P[ptr]}"); I(f"s_mov_b32 s{r+1}, s{P[ptr]+1}")
        I(f"s_mov_b32 s{r+2}, {nbytes}"); I(f"s_mov_b32 s{r+3}, 0x00020000")
    def save(self): return (self.vm.issued, self.vm.done, self.lg.issued, self.lg.done)
    def restore(self, s_): self.vm.issued, self.vm.done, self.lg.issued, self.lg.done = s_
    def stream(self, mf, fills):
        n = len(mf); slots = [[] for _ in range(n + 1)]
        for (s0, e0, cl) in fills:
            m = e0 - s0
            for j, c in enumerate(cl): slots[s0 + 1 + (j * m) // len(cl)].append(c)
        for c in slots[0]: c()
        for i in range(n):
            mf[i]()
            for c in slots[i+1]: c()
    def stamp(self, i, dyn=None):
        if self.o.get("echo") == i:
            self.I("s_memtime s[100:101]" if self.o.get("cyc") else "s_memrealtime s[100:101]"); self.I("s_waitcnt lgkmcnt(0)")
        if not self.o.get("stamp"): return
        I = self.I
        I("s_memrealtime s[96:97]"); I("s_memtime s[100:101]")
        I("s_lshl_b32 s98, s2, 3"); I(f"s_add_u32 s98, s98, s{SW}"); I("s_lshl_b32 s98, s98, 8")
        I(f"s_add_u32 s98, s98, {STAMP_OFF + 4*i}")
        if dyn is not None:
            I(f"s_lshl_b32 s99, s{dyn}, 4"); I("s_add_u32 s98, s98, s99")
        I("s_waitcnt lgkmcnt(0)")
        I("v_mov_b32 v2, s96"); I("v_mov_b32 v3, 0")
        I(f"buffer_store_dword v2, v3, s[{RWS}:{RWS+3}], s98 offen")
        I("v_mov_b32 v2, s100")
        I(f"buffer_store_dword v2, v3, s[{RWS}:{RWS+3}], s98 offen offset:128")
    OOB = 0x40000000
    def publish(self, soff, val=1, srd=RWS, byte=False, idx=None):
        I = self.I
        self.oob_sel()
        if idx is not None: I(f"s_and_b32 s98, s{SIDX}, 3"); I(f"s_cmp_eq_u32 s98, {idx}"); I(f"s_cselect_b32 s99, s99, {self.OOB}")
        I(f"v_mov_b32 v2, {val}"); I("v_mov_b32 v3, s99")
        I(f"buffer_store_{'byte' if byte else 'dword'} v2, v3, s[{srd}:{srd+3}], s{soff} offen sc1"); self.vm.issue()
    def oob_sel(self):
        self.I(f"s_cmp_eq_u32 s{SW}, 0"); self.I(f"s_cselect_b32 s99, 0, {self.OOB}")
    def poll_issue(self, vd, vaddr, soff, srd=RWS):
        self.I(f"buffer_load_dword v{vd}, v{vaddr}, s[{srd}:{srd+3}], {soff} offen sc1"); return self.vm.issue()
    def poll_check(self, vd, vaddr, soff, want, srd=RWS):
        a = self.a; I = self.I
        l = a.label("PCK"); lp = a.label("POLL")
        I(f"s_mov_b32 s98, {want}"); I("s_mov_b32 s99, 20000")
        a.L(lp)
        I(f"v_and_b32 v{vd}, s98, v{vd}"); I(f"v_cmp_ne_u32 vcc, s98, v{vd}"); I(f"s_cbranch_vccz {l}")
        I("s_sleep 2")
        I(f"buffer_load_dword v{vd}, v{vaddr}, s[{srd}:{srd+3}], {soff} offen sc1")
        I("s_sub_u32 s99, s99, 1"); I("s_cmp_lg_u32 s99, 0"); I("s_waitcnt vmcnt(0)"); I(f"s_cbranch_scc1 {lp}")
        a.L(l)
    def phys(self, d, s_, t, E=None):
        I = E or self.I; p = self.o.get("hperm", 0)
        if p == 0: I(f"s_mov_b32 s{d}, s{s_}")
        elif p == 1: I(f"s_and_b32 s{t}, s{s_}, 3"); I(f"s_lshl_b32 s{t}, s{t}, 3"); I(f"s_lshr_b32 s{d}, s{s_}, 2"); I(f"s_or_b32 s{d}, s{d}, s{t}")
        elif p >= 32:
            I(f"s_lshr_b32 s{t}, s{s_}, 3"); I(f"s_add_u32 s{t}, s{t}, {p - 32}"); I(f"s_and_b32 s{t}, s{t}, 3")
            I(f"s_and_b32 s{d}, s{s_}, 7"); I(f"s_lshl_b32 s{d}, s{d}, 2"); I(f"s_or_b32 s{d}, s{d}, s{t}")
        else: I(f"s_mul_i32 s{t}, s{s_}, {p}"); I(f"s_and_b32 s{d}, s{t}, 31")
    def barrier(self): self.I("s_barrier")
    def sync_all(self):
        self.I("s_waitcnt vmcnt(0) lgkmcnt(0)"); self.vm.mark_all_done(); self.lg.mark_all_done(); self.barrier()

    def begin(self, kname):
        a = self.a; I = self.I
        a.T(f".globl {kname}\n.p2align 8\n.type {kname},@function"); a.L(kname)
        self.endl = a.label("END")
        if self.o.get("stamp"): I("s_memrealtime s[30:31]")
        if self.o.get("echo"): I("s_memtime s[96:97]" if self.o.get("cyc") else "s_memrealtime s[96:97]")
        I("s_load_dwordx16 s[64:79], s[0:1], 0"); I("s_load_dwordx16 s[80:95], s[0:1], 64")
        I("s_cmp_ge_u32 s2, 256"); I(f"s_cbranch_scc1 {self.endl}")
        I("v_lshrrev_b32 v1, 6, v0"); I("v_and_b32 v0, 63, v0"); I(f"v_readfirstlane_b32 s{SW}, v1")
        I("s_and_b32 s7, s2, 7"); I("s_lshl_b32 s7, s7, 2")
        I(f"s_lshr_b32 s{SIDX}, s2, 3"); I(f"s_lshr_b32 s{SHEAD}, s{SIDX}, 3"); I(f"s_add_u32 s{SHEAD}, s{SHEAD}, s7")
        I(f"s_and_b32 s{SIDX}, s{SIDX}, 7"); I(f"s_lshl_b32 s{SWK}, s{SW}, 10")
        I(f"s_lshl_b32 s{SF}, s{SHEAD}, 3"); I(f"s_add_u32 s{SF}, s{SF}, s{SIDX}")
    def end(self):
        self.a.L(self.endl); self.I("s_endpgm")

    def proj(self):
        a = self.a; I = self.I; vm = self.vm; lg = self.lg
        QA_LDS = 65536
        ACC = {"K": 64, "V": 128, "Q": 64}
        FX = [16, 24]; FW = [192, 32]
        VWA = 4; VSK, VSV, VOX, VOW, VST = 8, 9, 10, 11, 12; VXA = 224; T = 232
        NB = 0; XC = self.o.get("xc", 0)
        ST = [("KV", c) for c in range(NB)] + [("K", c) for c in range(NB, 8)] + [("V", c) for c in range(7, NB - 1, -1)] + [("Q", c) for c in range(8)]
        NS = len(ST); TK = 7; TV = NS - 9; TQ = NS - 8
        I("v_lshrrev_b32 v13, 3, v0"); I(f"s_lshl_b32 s40, s{SW}, 3"); I("v_add_u32 v13, s40, v13"); I("v_lshlrev_b32 v13, 10, v13")
        I(f"s_lshr_b32 s41, s{SW}, 1"); I(f"s_xor_b32 s40, s41, s{SW}"); I("s_and_b32 s40, s40, 1"); I("s_lshl_b32 s40, s40, 2")
        I("v_lshrrev_b32 v14, 4, v0"); I("v_add_u32 v15, s40, v14")
        I("v_and_b32 v3, 7, v0"); I("v_xor_b32 v15, v15, v3"); I(f"v_lshl_add_u32 v{VOX}, v15, 4, v13")
        I(f"s_lshl_b32 s40, s{SW}, 2"); I("v_add_u32 v13, s40, v14"); I("v_lshlrev_b32 v13, 13, v13")
        I("s_and_b32 s41, s41, 1"); I("s_lshl_b32 s41, s41, 3"); I("v_lshl_add_u32 v15, v14, 1, s41"); I("v_and_b32 v3, 15, v0"); I("v_xor_b32 v15, v15, v3")
        I("v_lshl_add_u32 v13, v15, 4, v13"); self.phys(40, SHEAD, 41); I("s_lshl_b32 s40, s40, 8"); I(f"v_add_u32 v{VOW}, s40, v13")
        I(f"v_lshlrev_b32 v{VST}, 4, v0")
        I(f"s_lshl_b32 s44, s{SIDX}, 18")
        for i in range(1, 4): I(f"s_add_u32 s{44+i}, s44, {65536*i}")
        ROT = self.o.get("rot", 2)
        if ROT == 0: I("s_mov_b32 s33, 0")
        elif ROT == 1: I(f"s_mov_b32 s33, s{SIDX}")
        elif ROT == 2: I(f"s_lshr_b32 s33, s{SHEAD}, 2"); I(f"s_add_u32 s33, s33, s{SIDX}")
        elif ROT == 3: I(f"s_lshr_b32 s33, s{SHEAD}, 2"); I(f"s_add_u32 s33, s33, s{SIDX}"); I(f"s_lshl_b32 s34, s{SHEAD}, 1"); I("s_add_u32 s33, s33, s34")
        elif ROT == 4: I(f"s_lshr_b32 s33, s{SHEAD}, 2")
        if self.o.get("rotq"): I(f"s_lshl_b32 s32, s{SHEAD}, 1"); I("s_add_u32 s32, s32, s33")
        else: I("s_mov_b32 s32, s33")
        I("s_waitcnt lgkmcnt(0)")
        if self.o.get("stamp"): I("s_memrealtime s[28:29]")
        self.srd(RA, "ckv", 2*MB); self.srd(RB, "wuk", 4*MB); self.srd(RC, "wuv", 4*MB)
        def xbase(t):
            k, c = ST[t]
            return (32768, 131072, 0)[((16 + c) if k == "Q" else (15 - c + NB)) % 3]
        units = [(t, m) for t in range(NS) for m in ST[t][0]]
        uidx = {u: i for i, u in enumerate(units)}
        def wbase(t, m): return 65536 + (uidx[(t, m)] % 4)*16384
        WE = self.o.get("wearly", 2)
        def wn(t): return t - 1 if t >= WE else t
        items = []
        lastx = {}
        for t in range(NS):
            k, c = ST[t]
            for m in k:
                u = uidx[(t, m)]
                def w(i, t=t, m=m, c=c):
                    if i == 0: I(f"s_add_u32 s34, s{32 if m == 'Q' else 33}, {c}"); I("s_and_b32 s34, s34, 7"); I("s_lshl_b32 s34, s34, 19")
                    I(f"s_add_u32 m0, s{SWK}, {wbase(t, m) + i*8192}"); I(f"s_add_u32 s41, s34, {i*262144}")
                    r = {"K": RB, "V": RC, "Q": RE}[m]
                    if self.o.get("nodma") and t > 4: dtok[wn(t)] = vm.issued; return
                    I(f"buffer_load_dwordx4 v{VOW}, s[{r}:{r+3}], s41 offen lds"); dtok[wn(t)] = vm.issue()
                items.append((wn(t), wn(units[u-4][0]) if u >= 4 else -1, [lambda i=i, w=w: w(i) for i in range(2)]))
            key = ("Q" if k == "Q" else "C", c); prev = lastx.get(xbase(t))
            if prev is None or prev[1] != key:
                def x(i, t=t, k=k, c=c):
                    if i == 0: I(f"s_add_u32 s35, s{32 if k == 'Q' else 33}, {c}"); I("s_and_b32 s35, s35, 7"); I("s_lshl_b32 s35, s35, 7")
                    I(f"s_add_u32 m0, s{SWK}, {xbase(t) + i*8192}"); I(f"s_add_u32 s41, s{(48 if k == 'Q' else 44)+i}, s35")
                    r = (RWS if XC else RD) if k == "Q" else RA
                    if self.o.get("nodma") and t > 4: dtok[t] = vm.issued; return
                    I(f"buffer_load_dwordx4 v{VOX}, s[{r}:{r+3}], s41 offen{self.ld if (XC and k == 'Q') else ''} lds"); dtok[t] = vm.issue()
                items.append((t, prev[0] if prev else -1, [lambda i=i, x=x: x(i) for i in range(4)]))
            lastx[xbase(t)] = (t, key)
        items.sort(key=lambda it: it[0])
        dtok = {}
        def take(done, upto=99):
            out = []
            for it in list(items):
                if it[1] <= done and it[0] <= upto: out += it[2]; items.remove(it)
            return out
        for f in take(-1, 0): f()
        self.srd(RWS, "ws", WS_SIZE); self.srd(RDBG, "dbg", 256)
        if self.o.get("wsoff"): I(f"s_add_u32 s{RWS}, s{RWS}, {self.o['wsoff']*MB}"); I(f"s_addc_u32 s{RWS+1}, s{RWS+1}, 0")
        self.stamp(31)
        if self.o.get("stamp"):
            I("v_mov_b32 v2, s30"); I("s_sub_u32 s98, s98, 124"); I(f"buffer_store_dword v2, v3, s[{RWS}:{RWS+3}], s98 offen")
            I("v_mov_b32 v2, s28"); I(f"buffer_store_dword v2, v3, s[{RWS}:{RWS+3}], s98 offen offset:120")
        I(f"s_lshl_b32 s48, s{SIDX}, 17"); I("s_add_u32 s49, s48, 65536")
        I(f"s_sub_u32 s50, 15, s{SIDX}"); I("s_lshl_b32 s50, s50, 17"); I("s_add_u32 s51, s50, 65536")
        if XC:
            for i in range(4): I(f"s_add_u32 s{48+i}, s{48+i}, {XC_OFF}")
        I(f"s_and_b32 s42, s{SW}, 3"); I("s_lshl_b32 s42, s42, 6"); I(f"s_lshr_b32 s43, s{SW}, 2"); I("s_lshl_b32 s43, s43, 1")
        I("v_and_b32 v13, 15, v0"); I("v_lshrrev_b32 v15, 4, v0")
        I("v_lshrrev_b32 v14, 1, v13"); I("v_xor_b32 v14, v14, v15"); I("v_lshlrev_b32 v14, 4, v14")
        I("v_add_u32 v3, s42, v13"); I(f"v_lshl_add_u32 v{VXA}, v3, 7, v14")
        I("v_and_b32 v2, 8, v13"); I("v_add_u32 v3, v3, v2"); I(f"v_lshl_add_u32 v{VXA+4}, v3, 7, v14")
        for pt in range(2):
            b = VXA + 4*pt
            I(f"v_xor_b32 v{b+1}, 64, v{b}"); I(f"v_add_u32 v{b+2}, 0x20000, v{b}"); I(f"v_add_u32 v{b+3}, 0x20000, v{b+1}")
        I("v_lshlrev_b32 v3, 4, v13"); I("v_and_b32 v2, 1, v15"); I("v_lshl_add_u32 v3, v2, 9, v3"); I("v_lshrrev_b32 v14, 1, v15")
        I("v_lshlrev_b32 v3, 4, v13"); I(f"v_lshl_add_u32 v{VSK}, v15, {self.GSH}, v3")
        I("v_bfe_u32 v13, v0, 2, 2"); I("v_lshl_add_u32 v14, v15, 3, v13"); I("v_lshlrev_b32 v14, 8, v14")
        I("v_and_b32 v3, 3, v0"); I("v_lshl_add_u32 v14, v3, 3, v14"); I("v_add_u32 v14, 0x10000, v14")
        I("v_lshl_add_u32 v13, v2, 2, v13"); I("s_lshl_b32 s40, s43, 1"); I("v_xor_b32 v13, s40, v13"); I(f"v_lshl_add_u32 v{VWA}, v13, 5, v14")
        for dt in range(1, 4): I(f"v_xor_b32 v{VWA+dt}, {dt << 5}, v{VWA}")
        I(f"s_lshl_b32 s54, s{SHEAD}, 4"); I(f"s_lshl_b32 s55, s{SIDX}, 1"); I("s_add_u32 s54, s54, s55")
        I(f"s_bfe_u32 s55, s{SW}, 0x10001"); I("s_add_u32 s54, s54, s55"); I("s_lshl_b32 s54, s54, 16")
        I(f"s_and_b32 s55, s{SW}, 1"); I("s_lshl_b32 s55, s55, 14"); I("s_add_u32 s54, s54, s55")
        I(f"s_lshl_b32 s55, s43, {self.FSH+1}"); I("s_add_u32 s52, s54, s55"); I("s_add_u32 s52, s52, 0x8000")
        I(f"s_lshl_b32 s55, s43, {self.FSH}"); I("s_add_u32 s54, s54, s55")
        XG = T; GW = T + 4; hl = {}
        def gate_loads():
            L = []
            def E(t): L.append(lambda: I(t))
            def V(t):
                def f(): I(t); hl["t"] = vm.issue()
                L.append(f)
            E(f"s_lshl_b32 s40, s{SHEAD}, 7"); E(f"s_lshl_b32 s39, s{SIDX}, 2"); E("s_add_u32 s40, s40, s39"); E(f"s_add_u32 s40, s40, {FK_OFF}")
            E(f"s_lshl_b32 s39, s{SF}, 7"); E(f"s_add_u32 s39, s39, {FP_OFF}"); E("v_and_b32 v13, 7, v0"); E("v_lshl_add_u32 v13, v13, 2, s39")
            E("v_writelane_b32 v13, s40, 0")
            E(f"s_lshr_b32 s39, s{SHEAD}, 2"); E("s_lshl_b32 s39, s39, 7"); E(f"s_and_b32 s40, s{SHEAD}, 3"); E("s_lshl_b32 s40, s40, 2"); E("s_add_u32 s39, s39, s40")
            E(f"s_lshl_b32 s40, s{SIDX}, 10"); E("s_add_u32 s40, s40, s39"); E(f"s_add_u32 s40, s40, {FC_OFF}")
            E("v_writelane_b32 v13, s40, 1")
            E(f"s_sub_u32 s40, 15, s{SIDX}"); E("s_lshl_b32 s40, s40, 10"); E("s_add_u32 s40, s40, s39"); E(f"s_add_u32 s40, s40, {FC_OFF}")
            E("v_writelane_b32 v13, s40, 2")
            E(f"s_lshl_b32 s40, s{SF}, 2"); E(f"s_add_u32 s40, s40, {FY_OFF}"); E("v_writelane_b32 v13, s40, 3"); E("v_mov_b32 v14, 0")
            def oo(): self.oob_sel(); I("v_add_u32 v13, s99, v13")
            L.append(oo)
            V(f"buffer_store_dword v14, v13, s[{RWS}:{RWS+3}], 0 offen sc1")
            E("s_lshl_b32 s37, s2, 3"); E(f"s_add_u32 s37, s37, s{SW}"); E("s_lshl_b32 s38, s37, 10")
            L.append(lambda: self.srd(RD, "q", 2*MB)); L.append(lambda: self.srd(RE, "wq", 4*MB)); L.append(lambda: self.srd(RT, "gate", 1024))
            V(f"buffer_load_dwordx4 {v(XG,4)}, v{VST}, s[{RD}:{RD+3}], s38 offen")
            V(f"buffer_load_dwordx4 {v(GW,4)}, v{VST}, s[{RT}:{RT+3}], 0 offen")
            return L
        def gate_ops():
            L = []; E = lambda t: L.append(lambda: I(t)); Z = T + 8
            L.append(lambda: vm.wait(hl["t"]))
            def xs():
                I(f"s_add_u32 s38, s38, {XC_OFF}"); I(f"buffer_store_dwordx4 {v(XG,4)}, v{VST}, s[{RWS}:{RWS+3}], s38 offen{self.st}"); vm.issue()
            if XC: L.append(xs)
            E(f"v_dot2_f32_bf16 v{Z}, v{XG}, v{GW}, 0")
            for i in range(1, 4): E(f"v_dot2_f32_bf16 v{Z}, v{XG+i}, v{GW+i}, v{Z}")
            for m in ("quad_perm:[1,0,3,2] row_mask:0xf", "quad_perm:[2,3,0,1] row_mask:0xf", "row_half_mirror row_mask:0xf", "row_mirror row_mask:0xf",
                      "row_bcast:15 row_mask:0xa", "row_bcast:31 row_mask:0xc"):
                E(f"v_add_f32_dpp v{Z}, v{Z}, v{Z} {m} bank_mask:0xf")
            E(f"v_readlane_b32 s36, v{Z}, 63"); E(f"v_mov_b32 v{Z+1}, {f2u(-LOG2E)}"); E(f"v_mul_f32 v{Z}, s36, v{Z+1}")
            E(f"v_exp_f32 v{Z}, v{Z}"); E(f"v_add_f32 v{Z}, 1.0, v{Z}"); E(f"v_rcp_f32 v{Z}, v{Z}")
            E("s_lshl_b32 s38, s37, 2"); E(f"s_add_u32 s38, s38, {G_OFF}"); E(f"v_mov_b32 v{Z+1}, 0")
            def gs():
                I(f"buffer_store_dword v{Z}, v{Z+1}, s[{RWS}:{RWS+3}], s38 offen{self.st}"); vm.issue()
            L.append(gs)
            return L
        toks = {}
        def rdx(t, mt):
            m = ST[t][0]; xb = xbase(t); pt = 0
            off = (xb & 65535) + ((mt >> 1)*4096 + (mt & 1)*1024 if pt else mt*2048)
            def f(kk):
                va = VXA + 4*pt + 2*(xb >> 17) + (kk ^ (mt & 1))
                I(f"ds_read_b128 {v(FX[mt & 1]+4*kk,4)}, v{va} offset:{off}"); toks[("x", t, mt, kk)] = lg.issue()
            return [lambda: f(0), lambda: f(1)]
        def rdw(t, dt):
            m = ST[t][0]
            def f(kk, h):
                I(f"ds_read_b64_tr_b16 {v(FW[t & 1]+8*dt+4*kk+2*h,2)}, v{VWA+dt} offset:{wbase(t, m)-65536+kk*8192+h*1024}"); toks[("w", t, dt, kk)] = lg.issue()
            return [lambda kk=kk, h=h: f(kk, h) for kk in range(2) for h in range(2)]
        def atile(m, mt, dt): return ACC[m] + (4*(((mt >> 1)*4 + dt)*2 + (mt & 1)) if m == "V" else 4*(mt*4 + dt))
        def mfs(t, mt):
            m = ST[t][0]; first = t == 0 or ST[t-1][0] != m; L = []
            order = [(dt, kk) for dt in range(4) for kk in range(2)] if not self.o.get("nochain") else [(dt, kk) for kk in range(2) for dt in range(4)]
            for dt, kk in order:
                def f(dt=dt, kk=kk):
                    lg.wait(max(toks[("x", t, mt, kk)], toks[("w", t, dt, kk)]))
                    d = v(atile(m, mt, dt), 4); X = v(FX[mt & 1]+4*kk, 4); W = v(FW[t & 1]+8*dt+4*kk, 4)
                    c = "0" if (first and kk == 0) else d
                    I(f"v_mfma_f32_16x16x32_bf16 {d}, {X}, {W}, {c}" if m == "V" else f"v_mfma_f32_16x16x32_bf16 {d}, {W}, {X}, {c}")
                L.append(f)
            return L
        def pieces(m):
            fs = 1024 if m == "Q" else 1 << self.FSH
            if m == "V": return [(atile(m, 2*p, dt), p*8192 + dt*fs) for p in range(2) for dt in range(4)]
            return [(atile(m, mt, 2*j), (mt >> 1)*8192 + ((mt & 1)*4 + j)*fs) for mt in range(4) for j in range(2)]
        def kv_out(m):
            out = []
            for b, off in pieces(m):
                pk = [lambda i=i, b=b: I(f"v_cvt_pk_bf16_f32 v{b+i}, v{b+2*i}, v{b+2*i+1}") for i in range(4)]
                if m == "K": pk = [lambda i=i, b=b: I(f"v_mul_f32 v{b+i}, {f2u(LOG2E / math.sqrt(128.0))}, v{b+i}") for i in range(8)] + pk
                def st(b=b, off=off):
                    if self.o.get("nost"): return
                    I(f"s_add_u32 s41, s{54 if m == 'K' else 52}, {off}")
                    I(f"buffer_store_dwordx4 {v(b,4)}, v{VSK}, s[{RWS}:{RWS+3}], s41 offen{self.st}"); vm.issue()
                out.append((pk, st))
            return out
        side = {}; late = {}
        def spread(ops, t0, t1, dst=side, ks=(0, 1, 2)):
            sl = [(t, k) for t in range(t0, t1) for k in ks]; n = len(ops)
            for j, key in enumerate(sl): dst.setdefault(key, []).extend(ops[n*j//len(sl): n*(j+1)//len(sl)])
        PG = self.o.get("pg", 0)
        spread(gate_loads(), PG, PG + 1); spread(gate_ops(), PG + 2, PG + 3)
        def wtouch(r, half, wv):
            def f():
                I(f"s_cmp_eq_u32 s{SW}, {wv}"); I(f"s_cselect_b32 s99, 0, {self.OOB}")
                self.phys(39, SHEAD, 40); I("s_lshl_b32 s39, s39, 8"); I(f"s_lshl_b32 s40, s{SIDX}, 19"); I("s_add_u32 s40, s40, s39"); I(f"s_add_u32 s40, s40, {half*32*8192}")
                I("v_lshrrev_b32 v3, 1, v0"); I("v_lshlrev_b32 v3, 13, v3"); I("v_and_b32 v2, 1, v0"); I("v_lshl_add_u32 v3, v2, 7, v3"); I("v_add_u32 v3, s99, v3")
                I(f"buffer_load_dword v1, v3, s[{r}:{r+3}], s40 offen"); vm.issue()
            return f
        for nm, r, dflt in (("tk", RB, -1), ("tv", RC, 1), ("tq", RE, 3)):
            t0 = self.o.get(nm, dflt)
            if t0 >= 0:
                for half in range(2): side.setdefault((t0 + half, 2), []).append(wtouch(r, half, half))
        KN = self.o.get("kn", 8); VD = self.o.get("vd", 0); VN = self.o.get("vn", 5)
        KO = kv_out("K"); VO = kv_out("V"); SK = self.o.get("sk", 2); SG_ = self.o.get("sgp", 6)
        spread(sum((p for p, _ in KO), []), TK + 1, min(TK + 3, TQ), ks=(0, 1))
        npk = 2 * (min(TK + 3, TQ) - TK - 1)
        spread([s_ for _, s_ in KO], TK + 1, TK + 1 + KN, dst=late, ks=(SK,))
        spread(sum((p for p, _ in VO), []), TQ, TQ + 1, ks=(0, 1))
        spread([s_ for _, s_ in VO], TQ + VD, TQ + VD + VN, dst=late, ks=(SK,))
        PK_, PV_ = TK + KN + 2, TQ + VD + VN
        assert PK_ <= NS - 5 and PV_ <= NS - 2
        QE = []; EQ = lambda t: QE.append(lambda: I(t))
        EQ(f"s_and_b32 s55, s{SW}, 2"); EQ("s_lshl_b32 s55, s55, 15"); EQ(f"s_add_u32 s55, s55, {QA_LDS}")
        EQ(f"s_and_b32 s54, s{SW}, 1"); EQ("s_lshl_b32 s54, s54, 14"); EQ("s_add_u32 s55, s55, s54")
        EQ("s_lshl_b32 s54, s43, 10"); EQ("s_add_u32 s55, s55, s54"); EQ(f"v_add_u32 v14, s55, v{VST}")
        spread(QE, NS - 1, NS)
        spread([lambda: self.srd(RB, "ssmk", 2*MB), lambda: self.srd(RA, "k", 2*MB), lambda: self.srd(RC, "v", 2*MB), lambda: self.srd(RD, "shift", 4096), lambda: self.srd(RE, "wo", 4*MB)], NS - 2, NS - 1)
        spread([lambda r=r: I(f"v_mov_b64 {v(192+2*r,2)}, 0") for r in range(32) if not 16 <= r < 20], NS - 1, NS)
        side.setdefault((NS - 1, 3), []).extend([lambda r=r: I(f"v_mov_b64 {v(192+2*r,2)}, 0") for r in range(16, 20)])
        def fkoff():
            I(f"s_lshl_b32 s40, s{SHEAD}, 7"); I(f"s_lshl_b32 s41, s{SIDX}, 2"); I("s_add_u32 s40, s40, s41"); I(f"s_add_u32 s40, s40, {FK_OFF}")
        def w0only(fn):
            l = a.label("NP"); I(f"s_cmp_lg_u32 s{SW}, 0"); I(f"s_cbranch_scc1 {l}"); fn(); a.L(l)
        def k0(i):
            I(f"s_lshl_b32 s40, s{SW}, 12"); I("s_add_u32 m0, s40, 0x8000")
            I(f"s_lshl_b32 s41, s{SHEAD}, 20"); I("s_add_u32 s41, s41, s40")
            I(f"buffer_load_dwordx4 v{VST}, s[{RWS}:{RWS+3}], s41 offen offset:{1024*i}{self.ld} lds"); vm.issue()
        self.barrier()
        for f in take(-1, 1): f()
        vm.wait(dtok[0]); self.barrier()
        self.stamp(1)
        def first_reads(t):
            x = rdx(t, 0); w = [rdw(t, dt) for dt in range(4)]
            return [x[0]] + w[0][:2] + [x[1]] + w[0][2:] + w[1], w[2] + w[3]
        L, rest = first_reads(0)
        for f in L: f()
        VPK = self.o.get("vpk", 2); mark = {}; TZ = PG + 4; TS = 10; DS = self.o.get("dsteps", 3)
        pend = take(-1)
        for t in range(NS):
            for k in range(4):
                M = mfs(t, k); n = len(M); PB = []
                if k == 3 and t < NS - 1:
                    assert not pend
                    if t == TS + 2: vm.wait(td); w0only(lambda: self.poll_check(14, 13, "0", rep4(1), RDBG))
                    if t == NS - 3: vm.wait(tp); w0only(lambda: self.poll_check(15, 13, "s53", 1))
                    lg.wait(lg.issued)
                    if not (self.o.get("nowait") and t > 4): vm.wait(dtok.get(t+1, 0))
                    if t == TZ: vm.wait(mark[TZ-2])
                    if t == PK_: vm.wait(mark[TK + KN])
                    if t == PV_: vm.wait(mark[PV_ - 1])
                    self.barrier()
                    ps = self.o.get("pstamp")
                    if ps is not None and 0 <= t - int(ps) + 1 < 13: self.stamp(17 + t - int(ps) + 1); vm.issue(2)
                    if TZ <= t < TZ + 4: PB.append(lambda t=t: self.publish(SF, 1, RDBG, True, idx=t - TZ))
                    if t == PK_: PB.append(lambda: (fkoff(), self.publish(40, 1)))
                    if t == PV_: PB.append(lambda: (fkoff(), self.publish(40, 3)))
                    pend = take(t)
                    if t == NS - 3: pend += [lambda i=i: k0(i) for i in range(4)]
                    nd = len(pend) // (DS + 1)
                else:
                    nd = -(-len(pend) // max(1, (3 if t == 0 else DS) - k))
                D, pend = pend[:nd], pend[nd:]
                fl = []
                if not (t == NS - 1 and k == 3):
                    if k == 3:
                        if t + 1 >= WE: fl.append((0, 2, rdx(t+1, 0))); rest = []
                        else:
                            L, rest = first_reads(t+1); nr = self.o.get("nr", 4)
                            fl.append((0, 7, L + rest[:nr])); rest = rest[nr:]
                    else:
                        if k == 0 and rest: fl.append((-1, 2, rest))
                        fl.append((0, 2, rdx(t, k+1)) if not (k == 0 and rest) else (2, 4, rdx(t, k+1)))
                        if WE <= t + 1 < NS:
                            wr = sum((rdw(t+1, dt) for dt in range(4)), [])
                            fl.append((2, 8 if k < 2 else 6, wr[(0, 6, 12)[k]:(6, 12, 16)[k]]))
                if PB: fl.append((1, 2, PB))
                if D: fl.append((0, n, D))
                if side.get((t, k)): fl.append((0, n, side[(t, k)]))
                if late.get((t, k)): fl.append((SG_, min(n, SG_ + 4), late[(t, k)]))
                self.stream(M, fl)
                if k == 2: mark[t] = vm.issued
                if t == TS and k == 0:
                    self.oob_sel(); I("v_lshl_add_u32 v13, v0, 2, s99"); td = self.poll_issue(14, 13, "0", RDBG)
                if t == NS - 4 and k == 0:
                    self.oob_sel(); I("v_and_b32 v13, 7, v0"); I("v_lshl_add_u32 v13, v13, 2, s99")
                    I(f"s_lshl_b32 s53, s{SHEAD}, 7"); I(f"s_add_u32 s53, s53, {FK_OFF}")
                    tp = self.poll_issue(15, 13, "s53")
                if t == NS - 1 and k == VPK: self.poll_issue(15, 13, "s53")
            if t == TK: self.stamp(2)
            if t == TV: self.stamp(13)
        assert not items
        self.stamp(3)
        I("v_mov_b32 v16, v13")
        if VPK > 3: self.poll_issue(15, 13, "s53")
        for b, off in pieces("Q"):
            for i in range(4): I(f"v_cvt_pk_bf16_f32 v{b+i}, v{b+2*i}, v{b+2*i+1}")
            I(f"ds_write_b128 v14, {v(b,4)} offset:{off}"); lg.issue()
        self.attn_setup()
        vm.wait(vm.issued); w0only(lambda: self.poll_check(15, 16, "s53", 3))
        lg.wait(lg.issued); self.barrier()

    def attn_setup(self): self.attn(True)
    def attn(self, setup=False):
        a = self.a; I = self.I; vm = self.vm; lg = self.lg
        M16 = "v_mfma_f32_16x16x32_bf16"
        ML = 155648; QA_LDS = 65536; QB_LDS = 131072
        O = 192; QF = 160; NM = 144; S = [112, 128]; PP = [96, 104]; RING = 64; NR = 8; E = 56; PK = 16
        VK, VV, VL16, VSC, LM, THR, NINF, VQ, TMP = 4, 5, 6, 7, 8, 9, 10, 11, 12
        LS, ONES, BIAS = 152, 60, 11.0
        SR, SG, SC1, SC2, SKO, SVO, SKM, SVM, STH = 32, 33, 34, 35, 36, 37, 38, 39, 42
        SFIN, SCA, SM1 = 55, 59, 58
        DC = self.o.get("dmacost", 16); WEV = self.o.get("wev", 4)
        if setup:
            I(f"s_lshr_b32 s{SG}, s{SW}, 2"); I(f"s_mul_i32 s{SR}, s{SG}, 7"); I(f"s_xor_b32 s{SR}, s{SR}, s{SW}")
            I(f"v_lshlrev_b32 v{VL16}, 4, v0")
            I(f"s_lshl_b32 s44, s{SR}, 13"); I(f"s_add_u32 s44, s44, {QB_LDS}"); I(f"v_add_u32 v{VQ}, s44, v{VL16}")
            I(f"s_lshl_b32 s45, s{SG}, 16"); I(f"v_subrev_u32 v{TMP+1}, s45, v{VQ}")
            I(f"s_mov_b32 s{SC1}, s{SIDX}")
            I(f"s_lshl_b32 s{SC2}, s{SIDX}, 1"); I(f"s_sub_u32 s{SC2}, 14, s{SC2}")
            I(f"s_cmp_eq_u32 s{SG}, 1"); I(f"s_cselect_b32 s{SM1}, 0, -1")
            I(f"s_lshl_b32 s43, s{SW}, 12"); I(f"s_lshl_b32 s{SVO}, s{SHEAD}, 20"); I(f"s_add_u32 s{SVO}, s{SVO}, s43")
            I(f"s_add_u32 s{SKO}, s{SVO}, 0x10000"); I(f"s_add_u32 s{SVO}, s{SVO}, 0x8000")
            I(f"s_mov_b32 s{SKM}, s43"); I(f"s_add_u32 s{SVM}, s43, 0x18000")
            I(f"s_mov_b32 s{STH}, 0x40004000"); I(f"v_mov_b32 v{NINF}, 0xff800000")
            for r in range(4): I(f"v_mov_b32 v{ONES+r}, 0x3f803f80"); I(f"v_mov_b64 {v(LS+2*r,2)}, 0")
            I(f"v_and_b32 v{THR}, 15, v0"); I(f"v_lshlrev_b32 v{VSC}, 4, v{THR}"); I(f"s_lshl_b32 s44, s{SR}, 5"); I(f"v_add_u32 v{THR}, s44, v{THR}")
            I(f"v_lshrrev_b32 v{TMP}, 4, v0"); I(f"v_lshl_add_u32 v{VSC}, v{TMP}, 9, v{VSC}"); I(f"v_lshlrev_b32 v{TMP}, 2, v{TMP}"); I(f"v_sub_u32 v{THR}, v{THR}, v{TMP}")
            I(f"v_and_b32 v{VK}, 15, v0"); I(f"v_lshlrev_b32 v{VK}, 4, v{VK}"); I(f"v_lshrrev_b32 v{TMP}, 4, v0"); I(f"v_lshl_add_u32 v{VK}, v{TMP}, {self.GSH}, v{VK}"); I(f"v_add_u32 v{VK}, 0x8000, v{VK}")
            I(f"s_lshl_b32 s{SCA}, s{SIDX}, 2"); I(f"s_add_u32 s{SCA}, s{SCA}, s{SR}"); I(f"s_lshl_b32 s{SCA}, s{SCA}, 5"); I(f"s_add_u32 s{SCA}, s{SCA}, s{SHEAD}")
            I(f"s_lshl_b32 s{SCA}, s{SCA}, 13"); I(f"s_add_u32 s{SCA}, s{SCA}, {CTX_OFF}")
            I(f"s_mov_b32 s{SFIN}, 0")
            I(f"s_lshr_b32 s56, s{SF}, 6"); I("s_lshl_b32 s56, s56, 2"); I(f"s_bfe_u32 s44, s{SF}, 0x20003"); I("s_add_u32 s56, s56, s44"); I("s_lshl_b32 s56, s56, 1")
            I(f"s_bfe_u32 s44, s{SF}, 0x10005"); I("s_add_u32 s56, s56, s44"); I(f"s_and_b32 s57, s{SF}, 7")
            I("s_mov_b32 s41, 0")
            CL = self.o.get("cl", 8)
            I(f"s_lshr_b32 s40, {1 << (CL+2)}, s{SG}"); I(f"s_or_b32 s40, s40, {1 << CL}")
            I(f"s_lshl_b32 s44, 2, s{SW}"); I("s_and_b32 s44, s44, 30"); I("s_or_b32 s40, s40, s44")
            I(f"s_cmp_eq_u32 s{SW}, 0"); I(f"s_cselect_b32 s44, {(1 << 5) | (1 << (CL+4))}, 0"); I("s_or_b32 s40, s40, s44")
            if not self.o.get("noprio"):
                l = a.label("PR"); I(f"s_cmp_eq_u32 s{SG}, 1"); I(f"s_cbranch_scc0 {l}"); I("s_setprio 1"); a.L(l)
            return
        op = lambda t, c=4: (lambda: I(t), c)
        nop = lambda: None
        def loadq(va):
            for ds in range(8):
                I(f"ds_read_b128 {v(QF+4*ds,4)}, v{va} offset:{1024*ds}"); lg.issue()
        def dma4(kind):
            sm, so = (SKM, SKO) if kind == "k" else (SVM, SVO)
            def d(i):
                def f():
                    if i == 0: I(f"s_mov_b32 m0, s{sm}"); I(f"s_xor_b32 s{sm}, s{sm}, 0x8000")
                    I(f"buffer_load_dwordx4 v{VL16}, s[{RWS}:{RWS+3}], s{so} offen offset:{1024*i}{self.ld} lds")
                    if i == 3: I(f"s_add_u32 s{so}, s{so}, 0x10000")
                return (f, DC + (8 if i == 0 else 4 if i == 3 else 0))
            return [d(i) for i in range(4)]
        self.ring_n = 0
        def rd(kind, sl, idx):
            h = {}
            def f():
                slot = self.ring_n % NR; self.ring_n += 1
                h["reg"] = RING + 4*slot
                I(f"ds_read_b128 {v(h['reg'],4)}, v{VK if kind == 'k' else VV} offset:{sl*8192+(idx << self.FSH)}"); h["tok"] = lg.issue()
            return f, h
        def wait_for(R, i):
            if R[i][1]["tok"] <= lg.done: return
            j = i
            while j + 1 < len(R) and j + 1 < i + WEV and "tok" in R[j+1][1] and R[j+1][1]["tok"] > R[i][1]["tok"]: j += 1
            lg.wait(R[j][1]["tok"])
        def otile(dt, qt): return O + 16*(dt >> 1) + 8*qt + 4*(dt & 1)
        def qk(sb, R, base, czero=False):
            def f(m):
                kt, qt, dd = m >> 3, (m >> 2) & 1, m & 3; i = base + 4*kt + dd
                wait_for(R, i); d = v(S[sb] + 8*qt + 4*kt, 4)
                c = ("0" if czero else v(NM + 4*qt, 4)) if dd == 0 else d
                I(f"{M16} {d}, {v(R[i][1]['reg'],4)}, {v(QF + 16*qt + 4*dd, 4)}, {c}")
            return [lambda m=m: f(m) for m in range(16)]
        def pv1(pb, dt, qt, reg): I(f"{M16} {v(otile(dt, qt),4)}, {v(reg,4)}, {v(PP[pb]+4*qt,4)}, {v(otile(dt, qt),4)}")
        def pv(pb, R, base, dts=range(8), exact=False):
            def f(dt, qt):
                if exact: lg.wait(R[base+dt][1]["tok"])
                else: wait_for(R, base + dt)
                pv1(pb, dt, qt, R[base+dt][1]["reg"])
            ls = [lambda qt=qt: I(f"{M16} {v(LS+4*qt,4)}, {v(ONES,4)}, {v(PP[pb]+4*qt,4)}, {v(LS+4*qt,4)}") for qt in range(2)]
            return ls + [lambda dt=dt, qt=qt: f(dt, qt) for dt in dts for qt in range(2)]
        def sm_ops(sb):
            ex = lambda i: op(f"v_exp_f32 v{E+(i&3)}, v{S[sb]+i}", 8)
            cv = lambda j: op(f"v_cvt_pk_bf16_f32 v{PP[sb]+j}, v{E+((2*j)&3)}, v{E+((2*j+1)&3)}")
            p = PP[sb]; L = [ex(0), ex(1)]
            ors = {2: f"v_or3_b32 v{LM}, v{p}, v{p+1}, v{p+2}", 4: f"v_or3_b32 v{LM}, v{LM}, v{p+3}, v{p+4}", 6: f"v_or3_b32 v{LM}, v{LM}, v{p+5}, v{p+6}"}
            for j in range(8):
                L += [ex(2*j+2), cv(j), ex(2*j+3)] if j < 7 else [op("s_nop 0"), cv(j)]
                if j in ors: L.append(op(ors[j]))
            L = [x for i, x in enumerate(L) if i != len(L) - 2]
            L += [op(f"v_or_b32 v{LM}, v{LM}, v{p+7}"), op(f"v_and_b32 v{LM}, s{STH}, v{LM}")]
            return L
        def sched(M, fixed, chain):
            n = len(M); fc = [sum(c for _, c in fixed.get(g, [])) for g in range(n)]
            tot = sum(c for _, c in chain); lo, hi = 0.0, 4000.0
            for _ in range(40):
                lev = (lo + hi) / 2
                if sum(max(0, lev - f) for f in fc) >= tot: hi = lev
                else: lo = lev
            k = 0; credit = 0.0
            for g in range(n):
                M[g]()
                for c, _ in fixed.get(g, []): c()
                credit += max(0, hi - fc[g])
                while k < len(chain) and (g == n - 1 or chain[k][1] <= credit + 2):
                    chain[k][0](); credit -= chain[k][1]; k += 1
        def put(fixed, g, items): fixed.setdefault(g, []).extend(items)
        SPL = self.o.get("spl", 18)
        ool = []
        def rarely(cmp_, body):
            lo = a.label("OOL"); lb = a.label("RET")
            I(cmp_); I(f"s_cbranch_scc1 {lo}"); a.L(lb)
            ool.append((lo, lb, body))
        def mask_ops(sb, koff):
            prs = [46, 48, 50, 52]; L = []
            if koff >= 64:
                L.append(op(f"v_subrev_u32 v{TMP+3}, 64, v{THR}")); tr = TMP + 3; koff -= 64
            elif koff < 0:
                L += [op(f"s_lshl_b32 s45, s{SG}, 6"), op(f"v_subrev_u32 v{TMP+3}, s45, v{THR}")]; tr = TMP + 3; koff = -koff - 1
            else: tr = THR
            for r0 in range(0, 16, 4):
                qt, kt = r0 >> 3, (r0 >> 2) & 1
                for r in range(4): L.append(op(f"v_cmp_lt_i32 s[{prs[r]}:{prs[r]+1}], v{tr}, {16*kt + r + koff - 16*qt}"))
                for r in range(4): L.append(op(f"v_cndmask_b32 v{S[sb]+r0+r}, v{S[sb]+r0+r}, v{NINF}, s[{prs[r]}:{prs[r]+1}]"))
            return L
        def mask_body(sb, koff):
            for c, _ in mask_ops(sb, koff): c()
        def xred(x, y, t0, t1, o):
            L = []
            for sw in ("v_permlane16_swap_b32", "v_permlane32_swap_b32"):
                L += [op(f"v_mov_b32 v{t0}, v{x}"), op(f"v_mov_b32 v{t1}, v{y}"), op("s_nop 0"), op(f"{sw} v{t0}, v{x}"), op(f"{sw} v{t1}, v{y}"),
                      op(f"{o} v{x}, v{x}, v{t0}"), op(f"{o} v{y}, v{y}, v{t1}")]
            return L
        def rowmax(sb):
            for qt in range(2):
                b = S[sb] + 8*qt; d = TMP + qt
                I(f"v_max3_f32 v{d}, v{b}, v{b+1}, v{b+2}"); I(f"v_max3_f32 v{d}, v{d}, v{b+3}, v{b+4}"); I(f"v_max3_f32 v{d}, v{d}, v{b+5}, v{b+6}"); I(f"v_max_f32 v{d}, v{d}, v{b+7}")
            for c, _ in xred(TMP, TMP+1, TMP+2, TMP+3, "v_max_f32"): c()
        def init_max():
            rowmax(0)
            for qt in range(2): I(f"v_max_f32 v{TMP+qt}, {f2u(-1e30)}, v{TMP+qt}"); I(f"v_add_f32 v{TMP+qt}, {f2u(BIAS)}, v{TMP+qt}")
            for r in range(8): I(f"v_sub_f32 v{NM+r}, 0, v{TMP+(r>>2)}")
            return [op(f"v_sub_f32 v{S[0]+r}, v{S[0]+r}, v{TMP+(r>>3)}") for r in range(16)]
        rare = []
        def check(sb, other=True):
            lr = a.label("RARE"); lb = a.label("BACK")
            I(f"v_cmp_ne_u32 vcc, 0, v{LM}")
            if self.o.get("a_nocheck"): I("s_mov_b64 vcc, 0")
            I(f"s_cbranch_vccnz {lr}"); a.L(lb)
            rare.append((lr, lb, sb, other))
        def fin_body():
            I(f"s_mov_b32 s{SFIN}, 2")
            I(f"v_rcp_f32 v{TMP}, v{LS}"); I(f"v_rcp_f32 v{TMP+2}, v{LS+4}"); I(f"v_mov_b32 v{TMP+1}, v{TMP}"); I(f"v_mov_b32 v{TMP+3}, v{TMP+2}")
            for r in range(4): I(f"v_mov_b64 {v(LS+2*r,2)}, 0")
            for q in range(8):
                for i in range(8*q, 8*q+8, 2): I(f"v_pk_mul_f32 {v(O+i,2)}, {v(O+i,2)}, {v(TMP+2*(q&1),2)}")
                for i in range(4): I(f"v_cvt_pk_bf16_f32 v{PK+4*q+i}, v{O+8*q+2*i}, v{O+8*q+2*i+1}")
                for i in range(8*q, 8*q+8, 2): I(f"v_mov_b64 {v(O+i,2)}, 0")
        coff = lambda q: (q & 3)*1024
        def st_body():
            I(f"s_add_u32 s44, s{SCA}, 4096"); I(f"s_mov_b32 s{SFIN}, 3")
            for q in range(8):
                I(f"buffer_store_dwordx4 {v(PK+4*q,4)}, v{VL16}, s[{RWS}:{RWS+3}], s{SCA if q < 4 else 44} offen offset:{coff(q)}{self.st}")
        TR = [RING + 4*(2+i) for i in range(6)]
        def head(R, vmw, with_mfma=True, post=(), more=(), pre=None):
            rf = [(f, 4) for f, h in R]; sm2 = sm_ops(0)[SPL:]
            M = [lambda dt=dt, qt=qt: pv1(1, dt, qt, TR[dt-2]) for dt in range(2, 8) for qt in range(2)] if with_mfma else [nop]*12
            if with_mfma: I("s_waitcnt lgkmcnt(4)")
            nb = self.o.get("nb", 4); more = list(more); m0 = len(more) // 3
            if pre is not None: more = list(pre) + more; m0 = len(pre)
            sched(M[:4], {}, sm2[:nb] + more[:m0])
            vmw(); I("s_waitcnt lgkmcnt(0)"); lg.mark_all_done(); self.barrier(); self.ring_n = 0
            fx = {0: rf[0:2], 1: rf[2:4], 2: rf[4:5], 4: rf[5:6], 6: rf[6:7], 7: [(nop, 8 + 8*len(post))]}
            sched(M[4:], fx, sm2[nb:] + more[m0:])
            check(0)
            for p in post: p()
        def mk_reads():
            return ([rd("k", 0, i) for i in range(8)] + [rd("v", 0, i) for i in range(8)] +
                    [rd("k", 1, i) for i in range(8)] + [rd("v", 1, i) for i in range(8)])
        def last_use(F):
            b = (0, 18, 34, 52)[F >> 3]; f = F & 7
            return b + (2*f + 1 if (F >> 3) & 1 else 8*(f >> 2) + 4 + (f & 3))
        def mid(R, dmas, kx, mb=None, trans=False, endops=(), early=(), g=0):
            rf = [(f, 4) for f, h in R]
            fa = {0: [rf[7]]}; fb = {}
            G_ = g
            for g, e in zip((1, 3, 9, 11), early): put(fa, g, [e])
            for F in range(8, 32):
                g = last_use(F - 8) + 1
                put(fa, g, [rf[F]]) if g < 34 else put(fb, g - 34, [rf[F]])
            D = sum((dma4(k) for k in dmas), [])
            st_ = self.o.get("gst", 4); of_ = self.o.get("gof", 2)
            gaps = [2 + of_*G_*2 + 2*st_*n for n in range(4)] if len(D) == 4 else [2 + of_*G_ + st_*n for n in range(8)]
            for g, d in zip(gaps, D): put(fa, g, [d]) if g < 33 else put(fb, g - 33, [d])
            PT = self.o.get("pt", 0)
            if PT and G_ == 0:
                pts = {1: [(0, 24, 2), (1, 21, 0)], 2: [(0, 8, 2), (0, 24, 0), (1, 7, 2), (1, 21, 0)], 3: [(0, 0, 2), (0, 8, 0), (0, 16, 2), (0, 24, 0), (0, 32, 2), (1, 7, 0), (1, 15, 2), (1, 21, 0)],
                       4: [(0, 16, 2), (1, 21, 0)], 5: [(0, 32, 2), (1, 21, 0)]}[PT]
                for part, g, p in pts: put(fb if part else fa, g, [op(f"s_setprio {p}")])
            put(fa, 33, [(nop, 16)])
            sched(qk(0, R, 0, trans) + pv(0, R, 8), fa, sm_ops(1))
            check(1, other=not trans)
            if mb: mb()
            pre = []
            if trans:
                I(f"s_mov_b32 s{SFIN}, 1")
                pre = init_max()
            put(fb, 18, [op(f"v_xor_b32 v{VV}, 0x10000, v{VK}")] + kx)
            for n, e in enumerate(endops): put(fb, 11 - n, [e])
            put(fb, 21, [(nop, 12)])
            sched(qk(1, R, 16) + pv(1, R, 24, range(2)), fb, pre + sm_ops(0)[:SPL])
            assert [R[26+i][1]["reg"] for i in range(6)] == TR
        vm4 = lambda: I("s_waitcnt vmcnt(4)")
        def vm08():
            lo = a.label("W8"); lb = a.label("W8R")
            I(f"s_cmp_eq_u32 s{SFIN}, 3"); I(f"s_cbranch_scc1 {lo}"); I("s_waitcnt vmcnt(0)"); a.L(lb)
            def b(): I("s_waitcnt vmcnt(8)"); I(f"s_mov_b32 s{SFIN}, 4")
            ool.append((lo, lb, b))
        m1 = lambda sb, ko: (lambda: rarely(f"s_cmp_eq_u32 s{SC1}, s{SM1}", lambda: mask_body(sb, ko)))
        fin = lambda: rarely(f"s_cmp_eq_u32 s{SFIN}, 1", fin_body)
        sta = (lambda: rarely(f"s_cmp_eq_u32 s{SFIN}, 2", st_body), 8)
        KR, VR, SH, WO, AD = 16, 23, 28, 32, 40
        def side_loads():
            L = []; E = lambda t: L.append(op(t)); V = lambda t: L.append(op(t, DC))
            E(f"v_lshrrev_b32 v{AD}, 5, v0"); E(f"v_and_b32 v{AD+1}, 31, v0"); E(f"v_lshlrev_b32 v{AD+2}, 12, v{AD}"); E(f"v_lshl_add_u32 v{AD+2}, v{AD+1}, 2, v{AD+2}")
            self.phys(60, SHEAD, 61, E); E("s_lshl_b32 s60, s60, 17"); E(f"s_lshr_b32 s61, s{SIDX}, 1"); E("s_lshl_b32 s61, s61, 15"); E("s_add_u32 s60, s60, s61")
            E(f"s_and_b32 s61, s{SF}, 1"); E("s_lshl_b32 s61, s61, 9"); E("s_add_u32 s60, s60, s61")
            E(f"s_lshl_b32 s61, s{SW}, 6"); E("s_add_u32 s60, s60, s61"); E("s_add_u32 s61, s60, 16384")
            E(f"v_lshrrev_b32 v{AD+3}, 4, v0"); E(f"v_lshlrev_b32 v{AD+3}, 12, v{AD+3}"); E(f"v_and_b32 v{AD+4}, 15, v0"); E(f"v_lshl_add_u32 v{AD+3}, v{AD+4}, 2, v{AD+3}")
            for j in range(8): V(f"buffer_load_dword v{WO+j}, v{AD+3}, s[{RE}:{RE+3}], s{60+(j>>2)} offen offset:{1024*(j&3)}")
            E("s_lshr_b32 s62, s2, 3"); E("s_lshl_b32 s62, s62, 16"); E(f"s_lshl_b32 s63, s{SW}, 13"); E("s_add_u32 s62, s62, s63")
            E("s_and_b32 s63, s2, 7"); E("s_lshl_b32 s63, s63, 7"); E("s_add_u32 s62, s62, s63"); E(f"v_add_u32 v{AD+3}, s62, v{AD+2}")
            for i in range(3): E(f"v_subrev_u32 v{AD+4+i}, {3072-1024*i}, v{AD+3}")
            E("s_lshl_b32 s63, s63, 2"); E(f"v_lshl_add_u32 v{AD+7}, v{AD+1}, 4, s63")
            for i in range(3): V(f"buffer_load_dword v{KR+i}, v{AD+4+i}, s[{RA}:{RA+3}], 0 offen")
            for i in range(4): V(f"buffer_load_dword v{KR+3+i}, v{AD+3}, s[{RA}:{RA+3}], 0 offen offset:{1024*i}")
            for i in range(4): V(f"buffer_load_dword v{VR+i}, v{AD+3}, s[{RC}:{RC+3}], 0 offen offset:{1024*i}")
            V(f"buffer_load_dwordx4 {v(SH,4)}, v{AD+7}, s[{RD}:{RD+3}], 0 offen")
            return L
        NSL = 21
        def side_math():
            L = []; E = lambda t: L.append(op(t)); V = lambda t: L.append(op(t, DC))
            W2 = 48
            E("s_mov_b32 s60, 0x05040100"); E("s_mov_b32 s61, 0x07060302")
            for j in range(4): E(f"v_perm_b32 v{W2+j}, v{WO+2*j+1}, v{WO+2*j}, s60")
            for j in range(4): E(f"v_perm_b32 v{W2+4+j}, v{WO+2*j+1}, v{WO+2*j}, s61")
            E(f"s_and_b32 s60, s{SF}, 1"); E("s_lshl_b32 s60, s60, 2"); E(f"s_lshr_b32 s61, s{SW}, 1"); E("s_add_u32 s60, s60, s61"); E("s_lshl_b32 s60, s60, 19")
            E(f"s_lshr_b32 s61, s{SF}, 1"); E("s_lshl_b32 s61, s61, 12"); E("s_add_u32 s60, s60, s61"); E(f"s_and_b32 s61, s{SW}, 1"); E("s_lshl_b32 s61, s61, 11")
            E("s_add_u32 s60, s60, s61"); E(f"s_add_u32 s60, s60, {WOT_OFF}")
            for mt in range(2): V(f"buffer_store_dwordx4 {v(W2+4*mt,4)}, v{VL16}, s[{RWS}:{RWS+3}], s60 offen offset:{1024*mt}{self.st}")
            KU, SU, OO, VU, PQ = 32, 42, 48, 39, 52
            for c in range(2):
                def unp(d, sreg, half): E(f"v_lshlrev_b32 v{d}, 16, v{sreg}" if half == 0 else f"v_and_b32 v{d}, 0xffff0000, v{sreg}")
                for i in range(7): unp(KU+i, KR+i, c)
                for j in range(4): unp(SU+j, SH + 2*c + (j >> 1), j & 1)
                for o in range(4):
                    E(f"v_mul_f32 v{OO+o}, v{KU+o}, v{SU+3}")
                    for j in (2, 1, 0): E(f"v_fmac_f32 v{OO+o}, v{KU+o+3-j}, v{SU+j}")
                    unp(VU, VR+o, c)
                    E(f"v_mul_f32 v{OO+o}, v{OO+o}, v{VU}")
                d = PQ + 2*(1-c)
                E(f"v_cvt_pk_bf16_f32 v{d}, v{OO+3}, v{OO+2}"); E(f"v_cvt_pk_bf16_f32 v{d+1}, v{OO+1}, v{OO}")
            E(f"v_lshlrev_b32 v{AD+1}, 5, v{AD+1}"); E(f"v_lshl_add_u32 v{AD+1}, v{AD}, 4, v{AD+1}")
            E(f"v_permlane32_swap_b32 v{PQ+2}, v{PQ}"); E(f"v_permlane32_swap_b32 v{PQ+3}, v{PQ+1}")
            E("s_lshr_b32 s60, s2, 3"); E("s_lshl_b32 s60, s60, 16"); E(f"s_lshl_b32 s61, s{SW}, 13"); E("s_add_u32 s60, s60, s61")
            E("s_and_b32 s61, s2, 7"); E("s_lshl_b32 s61, s61, 10"); E("s_add_u32 s60, s60, s61"); E(f"s_add_u32 s60, s60, {KVT_OFF}")
            V(f"buffer_store_dwordx4 {v(PQ,4)}, v{AD+1}, s[{RWS}:{RWS+3}], s60 offen{self.st}")
            return L
        CL = self.o.get("cl", 8)
        def touch(k):
            if k in (1, 2):
                self.phys(60, SHEAD, 61); I("s_lshl_b32 s60, s60, 17"); I(f"s_lshl_b32 s61, s{SIDX}, 14"); I("s_add_u32 s60, s60, s61")
                if k == 2: I("s_add_u32 s60, s60, 8192")
                I("v_lshlrev_b32 v16, 7, v0"); r = RE
            elif k in (3, 4):
                I("s_lshr_b32 s60, s2, 3"); I("s_lshl_b32 s60, s60, 16"); I("s_and_b32 s61, s2, 7"); I("s_lshl_b32 s61, s61, 7"); I("s_add_u32 s60, s60, s61")
                I("v_lshlrev_b32 v16, 10, v0"); r = RA if k == 3 else RC
            else:
                I(f"s_lshl_b32 s60, s{SF}, 13"); I("v_lshlrev_b32 v16, 7, v0"); r = RB
            I(f"buffer_load_dword v1, v16, s[{r}:{r+3}], s60 offen")
        LSITE = a.label("SITE")
        def site_code():
            a.L(LSITE)
            def ret(): I("s_nop 1"); I("s_setpc_b64 s[76:77]")
            l = a.label("SN"); I(f"s_cmp_lg_u32 s41, {CL}"); I(f"s_cbranch_scc1 {l}")
            for c, _ in side_loads(): c()
            ret(); a.L(l)
            l = a.label("SN"); I(f"s_add_u32 s44, s41, s{SG}"); I(f"s_cmp_lg_u32 s44, {CL+2}"); I(f"s_cbranch_scc1 {l}")
            for c, _ in side_math(): c()
            ret(); a.L(l)
            for k in range(1, 6):
                l = a.label("SN")
                I(f"s_cmp_lg_u32 s41, {k}"); I(f"s_cbranch_scc1 {l}")
                touch(k); ret(); a.L(l)
            I(f"s_lshl_b32 s44, s{SF}, 2"); I(f"s_add_u32 s44, s44, {FY_OFF}")
            sv = self.save(); self.publish(44, 2); self.restore(sv)
            ret()
        def spf():
            I("s_add_u32 s41, s41, 1"); rarely("s_bitcmp1_b32 s40, s41", lambda: I(f"s_call_b64 s[76:77], {LSITE}"))
        spub = (spf, 12)
        def snap():
            I(f"s_mov_b32 s61, {FY_OFF}"); I(f"buffer_load_dwordx4 v[52:55], v{VL16}, s[{RWS}:{RWS+3}], s61 offen sc1")
        def side_check():
            lo = a.label("SCK"); lb = a.label("SCR")
            def test():
                I("v_and_b32 v52, v52, v53"); I("v_and_b32 v54, v54, v55"); I("v_and_b32 v52, v52, v54"); I("v_and_b32 v52, 2, v52"); I("v_cmp_ne_u32 vcc, 2, v52")
            test(); I(f"s_cbranch_vccnz {lo}"); a.L(lb)
            def spin():
                lp = a.label("SPL")
                I("s_mov_b32 s99, 20000"); a.L(lp)
                I("s_sleep 2"); I(f"buffer_load_dwordx4 v[52:55], v{VL16}, s[{RWS}:{RWS+3}], s61 offen sc1"); I("s_waitcnt vmcnt(0)")
                test(); I(f"s_cbranch_vccz {lb}")
                I("s_sub_u32 s99, s99, 1"); I("s_cmp_lg_u32 s99, 0"); I(f"s_cbranch_scc1 {lp}")
            ool.append((lo, lb, spin))
        m2 = lambda sb, ko: (lambda: rarely(f"s_cmp_eq_u32 s{SC2}, 0", lambda: (snap(), mask_body(sb, ko))))
        LEV = a.label("EVEN"); LODM = a.label("ODDM"); LTRANS = a.label("TRANS"); LP2 = a.label("P2"); LP2B = a.label("P2B"); LDRAIN = a.label("DRAIN")
        self.stamp(8)
        self.ring_n = 0
        R = [rd("k", 0, i) for i in range(8)] + [rd("k", 1, i) for i in range(8)]
        def qrd(i):
            I(f"ds_read_b128 {v(QF+4*i,4)}, v{TMP+1} offset:{1024*i}"); return lg.issue()
        for i in range(4): qrd(i); R[i][0]()
        for i in range(4, 8): tq = qrd(i)
        D = dma4("v") + dma4("k")
        fx = {g: [(R[4+g][0], 4)] for g in range(4)}
        put(fx, 3, [(lambda: lg.wait(tq), 4)])
        for F in range(8, 15): put(fx, last_use(F - 8) + 1, [(R[F][0], 4)])
        for n, d in enumerate(D): put(fx, 2*n, [d])
        sched(qk(0, R, 0, True), fx, [])
        m1(0, 0)()
        pre = init_max()
        fx = {0: [(R[15][0], 4)], 8: [op(f"v_xor_b32 v{VV}, 0x10000, v{VK}"), op(f"v_xor_b32 v{VK}, 0x4000, v{VK}")]}
        sched(qk(1, R, 8), fx, pre + sm_ops(0)[:SPL])
        R = mk_reads()
        head(R, vm4, False, post=[m1(1, 32)])
        svm = self.save()
        self.stamp(9)
        LOD = [a.label("ODD0"), a.label("ODD1")]
        I(f"s_cmp_eq_u32 s{SG}, 1"); I(f"s_cbranch_scc1 {LOD[1]}"); I(f"s_branch {LOD[0]}")
        vm0 = lambda: I("s_waitcnt vmcnt(0)")
        def loops(g):
            LEV = a.label("EVEN"); LP2 = a.label("P2")
            mm = (lambda sb, ko: m1(sb, ko)) if g else (lambda sb, ko: None)
            a.L(LEV)
            R = mk_reads(); head(R, vm4)
            mid(R, "k", [op(f"v_xor_b32 v{VK}, 0x4000, v{VK}")], mb=mm(0, 0), early=[spub], g=g)
            R = mk_reads(); head(R, vm4, post=[m1(1, 32)] if g else [])
            assert self.lg.issued - self.lg.done == svm[2] - svm[3]
            a.L(LOD[g])
            mid(R, "v", [op(f"v_xor_b32 v{VK}, 0xc000, v{VK}")], mb=mm(0, 64), endops=[op(f"s_sub_u32 s{SC1}, s{SC1}, 1")], early=[spub], g=g)
            I(f"s_cmp_lg_u32 s{SC1}, -1"); I(f"s_cbranch_scc1 {LEV}")
            self.stamp(14)
            if g:
                loadq(VQ); I("s_waitcnt lgkmcnt(0)"); I(f"v_xor_b32 v{VK}, 0x4000, v{VK}")
            R = mk_reads(); head(R, vm4, more=mask_ops(1, 96) if g else ())
            mid(R, "k", [op(f"v_xor_b32 v{VK}, 0x8000, v{VK}")], mb=m2(0, -1), trans=bool(g), early=[spub], g=g)
            self.stamp(15)
            I(f"s_cmp_eq_u32 s{SC2}, 0"); I(f"s_cbranch_scc1 {LDRAIN}")
            a.L(LP2)
            R = mk_reads(); head(R, vm08 if g else vm0)
            mid(R, "kv", [op(f"v_xor_b32 v{VK}, 0x8000, v{VK}")], mb=m2(0, -1), endops=[sta] if g else [],
                early=[spub] + ([(fin, 8)] if g else []) + [op(f"s_sub_u32 s{SC2}, s{SC2}, 1")], g=g)
            I(f"s_cmp_lg_u32 s{SC2}, 0"); I(f"s_cbranch_scc1 {LP2}")
        loops(1); I(f"s_branch {LDRAIN}")
        loops(0)
        a.L(LDRAIN)
        self.stamp(10)
        R2 = [rd("v", 0, i) for i in range(8)] + [rd("v", 1, i) for i in range(8)]
        rf = [(f, 4) for f, h in R2]
        ts, ts2, ts3 = self.tail_setup()
        tsa = [x for x in ts if x[1] == 4]; tsl = [x for x in ts if x[1] != 4]
        mk_ = mask_ops(1, -33)
        head(R2, lambda: (vm08(), side_check(), tsl[0][0](), tsl[1][0]()), post=[fin, sta[0]], pre=tsa[:8], more=tsa[8:16] + [tsl[2]] + mk_)
        ts = tsa[16:]
        if self.o.get("dst"): self.stamp(17)
        pre = []; E_ = lambda t: pre.append(op(t))
        E_(f"s_add_u32 s44, s{SWK}, {ML}"); E_(f"v_add_u32 v54, s44, v{VL16}")
        E_(f"s_lshl_b32 s46, s{SW}, 13"); E_(f"v_add_u32 v55, s46, v{VL16}")
        E_(f"s_sub_u32 s54, 15, s{SIDX}"); E_(f"s_lshl_b32 s54, s54, 2"); E_(f"s_add_u32 s54, s54, s{SR}"); E_("s_lshl_b32 s54, s54, 5"); E_(f"s_add_u32 s54, s54, s{SHEAD}")
        E_("s_lshl_b32 s54, s54, 13"); E_(f"s_lshl_b32 s44, s{SG}, 12"); E_("s_add_u32 s54, s54, s44"); E_(f"s_add_u32 s54, s54, {CTX_OFF}")
        def lsum():
            def wml():
                I(f"ds_write_b128 v54, {v(150,4)}"); lg.issue()
            return [op(f"v_mov_b32 v150, v{NM}"), op(f"v_mov_b32 v{LS+1}, v{LS+4}"), (wml, 4)]
        def osend(g, i):
            def f():
                I(f"ds_write_b128 v55, {v(O+32*(1-g)+4*i,4)} offset:{1024*i}"); lg.issue()
            return (f, 16)
        lj = a.label("MGJ"); LMG = [a.label("MG0"), a.label("MG1")]; LFB = a.label("FB1"); LSK = a.label("SKIP"); LS1 = a.label("SK1")
        for c, _ in ts: c()
        I(f"s_lshl_b32 s45, s{SG}, 1"); I(f"s_sub_u32 s45, s{SR}, s45"); I("s_cmp_lt_i32 s45, 1"); I(f"s_cbranch_scc1 {LSK}")
        svd = self.save(); rnd = self.ring_n
        WA_ = self.o.get("wa", 6); tsA, tsB = ts2[:WA_], ts2[WA_:]
        setup_ = pre + ts3; n8 = (len(setup_) + 17) // 18
        fx = {g: setup_[g*n8:(g+1)*n8] for g in range(18)}
        for n, x in enumerate(tsA): put(fx, 1 + n * 17 // max(1, len(tsA)), [x])
        for F in range(7, 15): put(fx, 2*(F - 7) + (2 if F > 7 else 0), [rf[F]])
        sched(pv(0, R2, 0), fx, sm_ops(1))
        check(1)
        rf[15][0]()
        if self.o.get("dst"): self.stamp(20)
        I(f"s_cmp_eq_u32 s{SG}, 1"); I(f"s_cbranch_scc1 {LFB}")
        sv2 = self.save(); PR = 64
        for g in (0, 1):
            if g: a.L(LFB); self.restore(sv2)
            own = O + 32*g; snd = O + 32*(1-g)
            dts = list(range(4*(1-g), 4*(1-g)+4)) + list(range(4*g, 4*g+4))
            fx = {10 + i: [osend(g, i)] for i in range(8)}
            put(fx, 8, lsum())
            for n, x in enumerate(tsB): put(fx, n * 10 // max(1, len(tsB)), [x])
            sched(pv(1, R2, 8, dts, True), fx, self.tail_valu())
            a.L(LMG[g])
            if self.o.get("dst"): self.stamp(18)
            I(f"v_xor_b32 v54, 0x1c00, v54"); I(f"v_xor_b32 v55, 0xe000, v55")
            I("s_waitcnt lgkmcnt(0)"); lg.mark_all_done(); self.barrier()
            if self.o.get("dst"): self.stamp(19)
            I(f"ds_read_b128 {v(96,4)}, v54"); t0 = lg.issue()
            tk = []
            for i in range(8):
                I(f"ds_read_b128 {v(PR+4*i,4)}, v55 offset:{1024*i}"); tk.append(lg.issue())
            lg.wait(t0)
            for q in range(2):
                I(f"v_min_f32 v100, v{150+q}, v{96+q}"); I(f"v_sub_f32 v101, v100, v{150+q}"); I(f"v_sub_f32 v102, v100, v{96+q}")
                I("v_exp_f32 v101, v101"); I("v_exp_f32 v102, v102")
                I(f"v_mul_f32 v103, v101, v{LS+q}"); I(f"v_fmac_f32 v103, v102, v{98+q}"); I("v_rcp_f32 v103, v103")
                b = 104 + 4*q
                I(f"v_mul_f32 v{b}, v101, v103"); I(f"v_mul_f32 v{b+1}, v101, v103"); I(f"v_mul_f32 v{b+2}, v102, v103"); I(f"v_mul_f32 v{b+3}, v102, v103")
            tw = self.tail_writes()
            for q in range(4):
                b = 104 + 4*(q & 1)
                for i in range(8*q, 8*q+8, 2): I(f"v_pk_mul_f32 {v(own+i,2)}, {v(own+i,2)}, {v(b,2)}")
                lg.wait(tk[2*q+1])
                if not self.o.get("twe"):
                    for c in tw[3*q:3*q+3]: c()
                for i in range(8*q, 8*q+8, 2): I(f"v_pk_fma_f32 {v(own+i,2)}, {v(PR+i,2)}, {v(b+2,2)}, {v(own+i,2)}")
                for i in range(4): I(f"v_cvt_pk_bf16_f32 v{snd+4*q+i}, v{own+8*q+2*i}, v{own+8*q+2*i+1}")
                I(f"buffer_store_dwordx4 {v(snd+4*q,4)}, v{VL16}, s[{RWS}:{RWS+3}], s54 offen offset:{coff(q)}{self.st}"); self.tctx = vm.issue()
            if self.o.get("twe"):
                for c in tw: c()
            if not g: I(f"s_branch {lj}")
        def skip_path():
            keep = self.save(); tctx = self.tctx; th = self.th; wt = dict(self.wtok)
            a.L(LSK); self.restore(svd); self.ring_n = rnd
            I("s_cmp_lt_i32 s45, 0"); I(f"s_cbranch_scc1 {LS1}")
            rf[7][0]()
            for f in pv(0, R2[:8], 0): f()
            a.L(LS1)
            for c, _ in setup_ + ts2 + lsum() + self.tail_valu(): c()
            l1 = a.label("SG1"); I(f"s_cmp_eq_u32 s{SG}, 1"); I(f"s_cbranch_scc1 {l1}")
            for g in (0, 1):
                if g: a.L(l1)
                for i in range(8): osend(g, i)[0]()
                I(f"s_branch {LMG[g]}")
            self.restore(keep); self.tctx = tctx; self.th = th; self.wtok = wt
        a.L(lj)
        I("s_setprio 0")
        self.stamp(4)
        def cold():
            skip_path()
            site_code()
            for (lo, lb, body) in ool:
                a.L(lo); body(); I(f"s_branch {lb}")
            for (lr, lb, sb, other) in rare:
                a.L(lr)
                I("s_nop 15")
                rowmax(sb)
                for q in range(2): I(f"v_add_f32 v{TMP+q}, {f2u(BIAS)}, v{TMP+q}"); I(f"v_max_f32 v{TMP+q}, 0, v{TMP+q}"); I(f"v_exp_f32 v{TMP+2+q}, -v{TMP+q}")
                for r in range(8): I(f"v_sub_f32 v{NM+r}, v{NM+r}, v{TMP+(r>>2)}")
                for r in range(16): I(f"v_sub_f32 v{S[sb]+r}, v{S[sb]+r}, v{TMP+(r>>3)}")
                if other:
                    for r in range(16): I(f"v_sub_f32 v{S[1-sb]+r}, v{S[1-sb]+r}, v{TMP+(r>>3)}")
                for r in range(64): I(f"v_mul_f32 v{O+r}, v{O+r}, v{TMP+2+((r>>3)&1)}")
                for r in range(8): I(f"v_mul_f32 v{LS+r}, v{LS+r}, v{TMP+2+(r>>2)}")
                for c, _ in sm_ops(sb): c()
                I("s_nop 1"); I(f"s_branch {lb}")
        self.attn_rare = cold

    HB = 65536; HC = 4416; XB = 136192; YB = 148480
    SC, SJ, SB, SCH, SHB_, SWO, SCX = 34, 35, 36, 37, 38, 39, 40
    WS_ = [16, 24, 32, 40, 176, 184, 48, 56] + list(range(80, 144, 8))
    def tail_setup(self):
        I = self.I; L = []; E = lambda t: L.append((lambda: I(t), 4))
        SC, SJ, SB, SCH, SHB_, SWO, SCX = self.SC, self.SJ, self.SB, self.SCH, self.SHB_, self.SWO, self.SCX
        self.wtok = {}; self.wslot = dict(enumerate(self.WS_))
        E(f"s_lshr_b32 s{SC}, s{SW}, 2"); E(f"s_and_b32 s{SJ}, s{SW}, 3")
        E(f"s_lshl_b32 s{SCH}, s{SF}, 1"); E(f"s_add_u32 s{SCH}, s{SCH}, s{SC}"); E(f"s_lshl_b32 s{SCH}, s{SCH}, 12")
        E(f"s_lshl_b32 s60, s{SJ}, 10"); E("v_add_u32 v50, s60, v6"); E("v_subrev_u32 v51, 16, v50")
        E(f"s_lshl_b32 s63, s{SW}, 18"); E(f"s_lshl_b32 s62, s{SF}, 5"); E("s_add_u32 s63, s63, s62"); E(f"s_add_u32 s63, s63, {KVT_OFF}")
        E("v_lshrrev_b32 v48, 1, v0"); E("v_and_b32 v158, 1, v0" if False else "v_and_b32 v3, 1, v0"); E("v_lshlrev_b32 v49, 13, v48"); E("v_lshl_add_u32 v49, v3, 4, v49")
        def ld(t):
            def f(): I(t); self.th = self.vm.issue()
            L.append((f, 16))
        ld(f"buffer_load_dwordx4 {v(160,4)}, v51, s[{RB}:{RB+3}], s{SCH} offen")
        ld(f"buffer_load_dwordx4 {v(164,4)}, v50, s[{RB}:{RB+3}], s{SCH} offen")
        ld(f"buffer_load_dwordx4 {v(168,4)}, v49, s[{RWS}:{RWS+3}], s63 offen{self.ld}")
        E(f"s_lshl_b32 s{SWO}, s57, 19"); E(f"s_lshl_b32 s60, s{SW}, 15"); E(f"s_add_u32 s{SWO}, s{SWO}, s60"); E(f"s_add_u32 s{SWO}, s{SWO}, {WOT_OFF}")
        E("s_and_b32 s60, s56, 1"); E("s_lshl_b32 s60, s60, 18"); E(f"s_add_u32 s{SWO}, s{SWO}, s60")
        TR_ = self.o.get("trot", 1)
        if TR_ == 0: E("s_mov_b32 s58, 0")
        elif TR_ == 1: E("s_mov_b32 s58, s57")
        else: E("s_and_b32 s58, s56, 6"); E("s_add_u32 s58, s58, s57")
        def w1(i, mt):
            if mt == 0 and i % 2 == 0: self.wadr(i)
            I(f"buffer_load_dwordx4 {v(self.WS_[i]+4*mt,4)}, v6, s[{RWS}:{RWS+3}], s59 offen offset:{(i&1)*2048+mt*1024}{self.ld}"); self.wtok[i] = self.vm.issue()
        L2 = [(lambda i=i, mt=mt: w1(i, mt), 16) for i in range(self.o.get("we", 6)) for mt in range(2)]
        L3 = []; L, Lx = L3, L
        E = lambda t: L3.append((lambda: I(t), 4))
        E(f"s_mul_i32 s{SB}, s{SC}, 6144"); E(f"s_add_u32 s{SB}, s{SB}, {self.XB}")
        E(f"s_mul_i32 s{SHB_}, s{SC}, {8*self.HC}"); E(f"s_add_u32 s{SHB_}, s{SHB_}, {self.HB}")
        E(f"s_xor_b32 s{SCX}, s56, 1"); E(f"s_lshl_b32 s{SCX}, s{SCX}, 19"); E(f"s_lshl_b32 s60, s{SW}, 14"); E(f"s_add_u32 s{SCX}, s{SCX}, s60"); E(f"s_add_u32 s{SCX}, s{SCX}, {CTX_OFF}")
        E("s_and_b32 s60, s56, 1"); E("s_lshl_b32 s60, s60, 17"); E(f"s_add_u32 s{SCX}, s{SCX}, s60")
        return Lx, L2, L3
    def wreg(self, i):
        return self.WS_[i % len(self.WS_)]
    def wload(self, i):
        I = self.I; r = self.wslot[i]
        I(f"s_add_u32 s61, s{self.SWO}, {i*2048}")
        for mt in range(2):
            I(f"buffer_load_dwordx4 {v(r+4*mt,4)}, v6, s[{RWS}:{RWS+3}], s61 offen offset:{mt*1024}{self.ld}"); self.wtok[i] = self.vm.issue()
    def wadr(self, i):
        I = self.I
        I(f"s_add_u32 s59, s58, {i >> 1}"); I("s_and_b32 s59, s59, 7"); I("s_lshl_b32 s59, s59, 12"); I(f"s_add_u32 s59, s59, s{self.SWO}")
    def tail_valu(self):
        I = self.I; HC = self.HC; L = []; E = lambda t: L.append((lambda: I(t), 4))
        SJ, SB, SHB_ = self.SJ, self.SB, self.SHB_
        Ee, Eo, Oe, Oo = 160, 113, 122, 131
        E(f"s_add_u32 s60, s{SHB_}, 64"); E("v_add_u32 v138, s60, v50")
        E("v_and_b32 v51, 3, v48"); E("v_mul_u32_u24 v139, 1536, v51"); E("v_lshrrev_b32 v53, 2, v48"); E("v_lshl_add_u32 v139, v53, 4, v139")
        E("v_and_b32 v53, 1, v0"); E("v_mul_u32_u24 v53, 6144, v53"); E(f"s_lshl_b32 s60, s{SW}, 7"); E(f"s_add_u32 s60, s60, {self.XB + 512}"); E("v_add3_u32 v139, v139, v53, s60")
        E("v_and_b32 v51, 3, v0")
        for r in range(2): E(f"v_mov_b64 {v(172+2*r,2)}, 0")
        E("v_bfe_u32 v140, v0, 2, 3"); E(f"v_mul_u32_u24 v140, {HC}, v140"); E("v_lshl_add_u32 v140, v51, 4, v140"); E(f"v_add_u32 v140, s{SHB_}, v140")
        E(f"s_mul_i32 s60, s{SJ}, 1536"); E(f"s_add_u32 s60, s60, s{SB}"); E("v_lshl_add_u32 v141, v0, 3, s60")
        L.append((lambda: self.vm.wait(self.th - 1), 4))
        for k in range(7): E(f"v_alignbit_b32 v{Oe+k}, v{Ee+k+1}, v{Ee+k}, 16")
        for k in range(1, 7): E(f"v_alignbit_b32 v{Oo+k}, v{Ee+k+1}, v{Ee+k}, 16")
        for k in range(1, 7): E(f"v_mov_b32 v{Eo+k}, v{Ee+k}")
        return L
    def tail_writes(self):
        I = self.I; lg = self.lg; HC = self.HC; L = []
        Ee, Eo, Oe, Oo = 160, 113, 122, 131
        def W(t, pre=None):
            def f():
                if pre: pre()
                I(t); lg.issue()
            L.append(f)
        for r in range(8):
            sft = 1 + r; k = sft >> 1
            base = ((Oe, Oo) if sft & 1 else (Ee, Eo))[k & 1]
            W(f"ds_write_b128 v138, {v(base+k,4)} offset:{r*HC}")
        W(f"ds_write_b128 v140, {v(172,4)}"); W(f"ds_write_b64 v141, {v(172,2)}")
        W(f"ds_write_b128 v139, {v(168,4)}", lambda: self.vm.wait(self.th))
        return L
    def tailp(self):
        a = self.a; I = self.I; vm = self.vm; lg = self.lg
        HB, HC, YB = self.HB, self.HC, self.YB
        SC, SJ, SB, SCH, SHB_, SWO, SCX = self.SC, self.SJ, self.SB, self.SCH, self.SHB_, self.SWO, self.SCX
        ACC = 192; FRS = [224, 240, 64]; RD_ = 224; OACC = 192; YT = self.XB
        VL16, VA, VB, T, VP, VPA, VO, GR, VW1 = 6, 4, 5, 12, 7, 8, 9, 10, 11
        WSL = self.WS_; CSL = [144, 152, 160, 168, 64, 72]
        assert len(WSL) == 16
        I(f"s_lshr_b32 s53, s56, 1"); I("s_lshl_b32 s53, s53, 10"); I("s_and_b32 s44, s56, 1"); I("s_lshl_b32 s44, s44, 9"); I("s_add_u32 s53, s53, s44")
        I(f"s_lshr_b32 s44, s{SW}, 1"); I("s_lshl_b32 s44, s44, 7"); I("s_add_u32 s53, s53, s44"); I(f"s_and_b32 s44, s{SW}, 1"); I("s_lshl_b32 s44, s44, 3")
        I("s_add_u32 s53, s53, s44"); I(f"s_add_u32 s53, s53, {FC_OFF}")
        I(f"v_and_b32 v{VPA}, 1, v0"); I(f"v_lshlrev_b32 v{VPA}, 2, v{VPA}")
        PUBN = self.o.get("pubn", 4)
        I(f"s_lshr_b32 s45, s{SHEAD}, 2"); I("s_lshl_b32 s45, s45, 7"); I(f"s_and_b32 s44, s{SHEAD}, 3"); I("s_lshl_b32 s44, s44, 2"); I("s_add_u32 s45, s45, s44")
        I(f"s_sub_u32 s44, 15, s{SIDX}"); I("s_lshl_b32 s44, s44, 10"); I("s_add_u32 s46, s44, s45"); I(f"s_add_u32 s46, s46, {FC_OFF}")
        I(f"s_lshl_b32 s44, s{SIDX}, 10"); I("s_add_u32 s47, s44, s45"); I(f"s_add_u32 s47, s47, {FC_OFF}")
        self.srd(RC, "out", 2*MB); self.srd(RD, "q", 2*MB)
        I(f"s_lshl_b32 s44, s{SF}, 2"); I(f"s_load_dword s55, s[{P['ssmD']}:{P['ssmD']+1}], s44")
        I(f"v_and_b32 v{T}, 15, v0"); I(f"v_lshrrev_b32 v{T+1}, 4, v0")
        I(f"v_and_b32 v{T+2}, 7, v0"); I(f"v_mul_u32_u24 v{VA}, {HC}, v{T+2}")
        I(f"v_bfe_u32 v{T+2}, v0, 3, 1"); I(f"v_sub_u32 v{T+2}, v{T+2}, v{T+1}"); I(f"v_lshl_add_u32 v{VA}, v{T+2}, 4, v{VA}")
        I(f"s_lshl_b32 s43, s{SJ}, 8"); I(f"s_add_u32 s43, s43, s{SHB_}"); I("s_add_u32 s43, s43, 64"); I(f"v_add_u32 v{VA}, s43, v{VA}")
        I(f"s_lshl_b32 s43, s{SJ}, 6"); I(f"s_sub_u32 s43, s{SB}, s43"); I(f"s_add_u32 s43, s43, {(32-3)*16}")
        I(f"v_lshl_add_u32 v{VB}, v{T}, 4, s43"); I(f"v_mul_u32_u24 v{T+2}, 1536, v{T+1}"); I(f"v_add_u32 v{VB}, v{VB}, v{T+2}")
        I(f"s_lshl_b32 s51, s{SW}, 13"); I(f"s_xor_b32 s52, s{SCX}, 0x80000")
        I("s_waitcnt lgkmcnt(0)"); lg.mark_all_done(); self.barrier()
        self.stamp(5)
        wtok = dict(self.wtok); ctok = {}; cslot = dict(enumerate(CSL))
        def wload(k):
            if k % 2 == 0: self.wadr(k)
            for mt in range(2):
                I(f"buffer_load_dwordx4 {v(WSL[k]+4*mt,4)}, v{VL16}, s[{RWS}:{RWS+3}], s59 offen offset:{(k&1)*2048+mt*1024}{self.ld}"); wtok[k] = vm.issue()
        def cload(i):
            I(f"s_add_u32 s62, s58, {i & 7}"); I("s_and_b32 s62, s62, 7"); I("s_lshl_b32 s62, s62, 11"); I(f"s_add_u32 s62, s62, s{52 if i >= 16 else SCX}")
            if i & 8: I("s_add_u32 s62, s62, 0x40000")
            for qt in range(2):
                I(f"buffer_load_dwordx4 {v(cslot[i]+4*qt,4)}, v{VL16}, s[{RWS}:{RWS+3}], s62 offen offset:{qt*1024}{self.ld}"); ctok[i] = vm.issue()
        wl = [k for k in range(16) if k not in wtok]
        BS = [224, 240]; AS = list(range(160, 176, 4)) + list(range(64, 80, 4)); NA = len(AS)
        seq = [(dd, m, bt) for dd in range(4) for (m, bt) in ((0, 0), (3, 0), (0, 1), (3, 1), (1, 0), (2, 0), (1, 1), (2, 1))]
        atok = {}; btok = {}
        def rda(n):
            if n >= len(seq): return
            dd, m, bt = seq[n]
            I(f"ds_read_b128 {v(AS[n % NA],4)}, v{VA} offset:{64*dd + 1024*m + 32*bt}"); atok[n] = lg.issue()
        def rdb(dd, n):
            if dd >= 4: return
            I(f"ds_read_b128 {v(BS[dd & 1]+4*n,4)}, v{VB} offset:{(3-dd)*16 + 256*n}"); btok[(dd, n)] = lg.issue()
        rda(0)
        for n in range(4): rdb(0, n)
        for n in range(1, NA - 1): rda(n)
        seen = set()
        for n, (dd, m, bt) in enumerate(seq):
            for nn in range(4 - m):
                lg.wait(max(atok[n], btok[(dd, nn)]))
                key = (m + nn, bt); d = v(ACC + 8*key[0] + 4*bt, 4)
                I(f"v_mfma_f32_16x16x32_bf16 {d}, {v(AS[n % NA],4)}, {v(BS[dd & 1]+4*nn,4)}, {d if key in seen else '0'}"); seen.add(key)
                if nn == 0:
                    rda(n + NA - 1)
                    if 1 <= (n & 7) <= 4: rdb(dd + 1, (n & 7) - 1)
            if n & 1:
                h_ = n >> 1
                if h_ == PUBN:
                    vm.wait(self.tctx); self.barrier(); self.publish(46); self.publish(47)
                if h_ >= self.o.get("wst", 2) and len(wl) > self.o.get("wkeep", 2): wload(wl.pop(0))
                if h_ == self.o.get("p1", 12): tc1 = self.poll_issue(VP, VPA, "s53")
        I(f"v_add_u32 v{T+2}, s51, v{VL16}")
        for i in range(8):
            I(f"ds_write_b128 v{T+2}, {v(ACC+4*i,4)} offset:{1024*i}"); lg.issue()
        while wl: wload(wl.pop(0))
        I(f"s_lshl_b32 s43, s{SC}, 15"); I(f"s_lshl_b32 s44, s{SJ}, 11"); I("s_add_u32 s43, s43, s44"); I(f"v_add_u32 v{T+2}, s43, v{VL16}")
        I(f"s_lshl_b32 s44, s{SJ}, 8"); I(f"s_add_u32 s44, s44, s{SB}"); I("s_add_u32 s44, s44, 520")
        I(f"v_lshl_add_u32 v{T+3}, v{T}, 4, s44"); I(f"v_and_b32 v{VA}, 1, v{T+1}"); I(f"v_lshlrev_b32 v{VA}, 3, v{VA}"); I(f"v_sub_u32 v{T+3}, v{T+3}, v{VA}")
        I(f"v_lshrrev_b32 v{VA}, 1, v{T+1}"); I(f"v_mul_u32_u24 v{VA}, 1536, v{VA}"); I(f"v_add_u32 v{T+3}, v{T+3}, v{VA}")
        I(f"v_lshlrev_b32 v{VB}, 6, v{T}"); I(f"v_lshl_add_u32 v{VB}, v{T+1}, 3, v{VB}")
        I(f"s_add_u32 s45, s{SWK}, {YB}"); I(f"v_add_u32 v{VB}, s45, v{VB}")
        I("s_lshl_b32 s43, s55, 16"); I("s_and_b32 s44, s55, 0xffff0000"); I(f"s_cmp_eq_u32 s{SC}, 0"); I("s_cselect_b32 s55, s43, s44")
        lg.wait(lg.issued); self.barrier()
        self.stamp(12)
        for p in range(4):
            for gq in range(2):
                I(f"ds_read_b128 {v(RD_+8*p+4*gq,4)}, v{T+2} offset:{8192*p+1024*gq}"); lg.issue()
        for gq in range(2):
            I(f"ds_read_b64 {v(ACC+2*gq,2)}, v{T+3} offset:{3072*gq}"); lg.issue()
        le = a.label("NE")
        vm.wait(tc1); I(f"v_and_b32 v{VP}, 1, v{VP}"); I(f"v_cmp_ne_u32 vcc, 1, v{VP}"); I("s_mov_b32 s50, 0"); I(f"s_cbranch_vccnz {le}")
        sv = self.save(); I("s_mov_b32 s50, 1")
        for i in range(len(CSL)): cload(i)
        self.restore(sv); a.L(le)
        lg.wait(lg.issued)
        for i in range(0, 8, 2):
            I(f"v_pk_add_f32 {v(RD_+i,2)}, {v(RD_+i,2)}, {v(RD_+8+i,2)}"); I(f"v_pk_add_f32 {v(RD_+16+i,2)}, {v(RD_+16+i,2)}, {v(RD_+24+i,2)}")
        for i in range(0, 8, 2): I(f"v_pk_add_f32 {v(RD_+i,2)}, {v(RD_+i,2)}, {v(RD_+16+i,2)}")
        for gq in range(2):
            for r in range(4):
                srcr = ACC + 2*gq + (1 - (r >> 1))
                I(f"v_lshlrev_b32 v{ACC+8}, 16, v{srcr}" if r & 1 else f"v_and_b32 v{ACC+8}, 0xffff0000, v{srcr}")
                I(f"v_fma_f32 v{RD_+4*gq+r}, v{ACC+8}, s55, v{RD_+4*gq+r}")
        for i in range(4): I(f"v_cvt_pk_bf16_f32 v{ACC+12+i}, v{RD_+2*i}, v{RD_+2*i+1}")
        for gq in range(2):
            I(f"ds_write_b64 v{VB}, {v(ACC+12+2*gq,2)} offset:{32*gq}"); lg.issue()
        I(f"v_and_b32 v{T+2}, 15, v0"); I(f"v_lshrrev_b32 v{T+1}, 4, v0"); I(f"v_lshlrev_b32 v{T+1}, 1, v{T+1}"); I(f"v_xor_b32 v{T+1}, v{T+1}, v{T+2}"); I(f"v_lshlrev_b32 v{T+1}, 4, v{T+1}")
        I(f"v_lshl_add_u32 v{VA}, v{T+2}, 8, v{T+1}"); I(f"v_add_u32 v{VA}, s51, v{VA}")
        I(f"s_lshr_b32 s48, s{SW}, 1"); I("s_lshl_b32 s48, s48, 4"); I(f"s_and_b32 s41, s{SW}, 1"); I("s_lshl_b32 s42, s41, 3")
        I(f"v_lshrrev_b32 v{T}, 4, v0"); I(f"v_lshl_add_u32 v{T+1}, v{T}, 1, s42"); I(f"v_xor_b32 v{T+1}, v{T+1}, v{T+2}"); I(f"v_lshlrev_b32 v{T+1}, 4, v{T+1}")
        I("s_and_b32 s43, s48, 16"); I(f"v_add_u32 v{T+3}, s43, v{T+2}"); I(f"v_lshl_add_u32 v{VW1}, v{T+3}, 8, v{T+1}")
        I("s_lshr_b32 s43, s48, 5"); I("s_lshl_b32 s43, s43, 16"); I(f"v_add_u32 v{VW1}, s43, v{VW1}")
        lg.wait(lg.issued); I(f"v_xor_b32 v{VB}, 16, v{VW1}"); self.barrier()
        ly = a.label("NY")
        I(f"s_cmp_lg_u32 s{SW}, 0"); I(f"s_cbranch_scc1 {ly}")
        I(f"v_add_u32 v{T}, {YB}, v{VL16}")
        for i in range(8): I(f"ds_read_b128 {v(RD_+4*i,4)}, v{T} offset:{1024*i}")
        I(f"s_lshl_b32 s44, s{SF}, 13"); I(f"s_add_u32 s44, s44, {YT_OFF}"); I("s_add_u32 s45, s44, 4096")
        I("s_waitcnt lgkmcnt(0)")
        for i in range(8): I(f"buffer_store_dwordx4 {v(RD_+4*i,4)}, v{VL16}, s[{RWS}:{RWS+3}], s{44+(i>>2)} offen offset:{1024*(i&3)}{self.st}")
        a.L(ly)
        ll = a.label("NL")
        I("s_cmp_eq_u32 s50, 1"); I(f"s_cbranch_scc1 {ll}")
        self.poll_check(VP, VPA, "s53", 1)
        for i in range(len(CSL)): cload(i)
        a.L(ll)
        self.stamp(6)
        def put_ops(st):
            L = []
            for mt in range(4):
                def f(mt=mt):
                    I(f"v_xor_b32 v{T+3}, {(8*(mt>>1)+(mt&1))*16 + 0x10000*st}, v{VA}")
                    for qt in range(2):
                        I(f"ds_write_b128 v{T+3}, {v(OACC+32*st+8*mt+4*qt,4)} offset:{4096*qt}"); lg.issue()
                L.append(f)
            return L
        def sum_partials(mid=None):
            tk = []
            for p in range(8):
                for hh in range(2):
                    I(f"ds_read_b128 {v(OACC+8*p+4*hh,4)}, v{(VW1, VB)[hh]} offset:{8192*p}"); lg.issue()
                tk.append(lg.issued)
                if p == 5 and mid: mid()
            for p in range(1, 8):
                lg.wait(tk[p])
                for e in range(0, 8, 2): I(f"v_pk_add_f32 {v(OACC+e,2)}, {v(OACC+e,2)}, {v(OACC+8*p+e,2)}")
        ymark = vm.issued; ypub = False; pm = {}; ppub = False; free = []; nc = len(CSL); XR = WSL[0]; PR_ = WSL[1]
        TS = [OACC + 32 + 8*n for n in range(4)]; ptk = {}
        def prd(p):
            r = TS[0] if p == 0 else TS[1 + (p - 1) % 3]
            for hh in range(2):
                I(f"ds_read_b128 {v(r+4*hh,4)}, v{(VW1, VB)[hh]} offset:{8192*p}"); ptk[p] = lg.issue()
        def padd(p):
            lg.wait(ptk[p]); r = TS[1 + (p - 1) % 3]
            for e in range(0, 8, 2): I(f"v_pk_add_f32 {v(TS[0]+e,2)}, {v(TS[0]+e,2)}, {v(r+e,2)}")
            if p + 3 < 8: prd(p + 3)
        def pst():
            I(f"s_lshl_b32 s44, s{SF}, 14"); I(f"s_lshl_b32 s45, s{SW}, 11"); I("s_add_u32 s54, s44, s45"); I(f"s_add_u32 s54, s54, {PP_OFF}")
            for hh in range(2):
                I(f"buffer_store_dwordx4 {v(TS[0]+4*hh,4)}, v{VL16}, s[{RWS}:{RWS+3}], s54 offen offset:{1024*hh}{self.st}"); pm["t"] = vm.issue()
        B1 = self.o.get("b1", 18); PS = self.o.get("ps", 21)
        for i2 in range(0, 32, 2):
            st = (i2 >> 3) & 1; J = i2 & 7; fill = []
            if i2 in (8, 24): fill = put_ops(0)
            if i2 == 16: fill = put_ops(1)
            if i2 == 24: self.barrier()
            if i2 == B1:
                lg.wait(lg.issued); self.barrier()
                for p in range(4): prd(p)
                fill = [lambda p=p: padd(p) for p in range(1, 8)]
                I(f"s_lshl_b32 s53, s57, 7"); I(f"s_lshl_b32 s42, s{SW}, 4"); I("s_add_u32 s53, s53, s42"); I(f"s_add_u32 s53, s53, {FY_OFF}")
                I(f"v_and_b32 v{VPA}, 3, v0"); I(f"v_lshlrev_b32 v{VPA}, 2, v{VPA}")
                tf = self.poll_issue(VP, VPA, "s53")
            if i2 == 26:
                I(f"v_and_b32 v{T+1}, 15, v0"); I(f"s_lshl_b32 s45, s56, 6"); I("s_add_u32 s45, s45, s48"); I(f"v_add_u32 v{T+1}, s45, v{T+1}")
                I(f"v_lshlrev_b32 v{T+2}, 2, v{T+1}"); I(f"s_mov_b32 s45, {G_OFF}")
                I(f"buffer_load_dword v{GR}, v{T+2}, s[{RWS}:{RWS+3}], s45 offen{self.ld}"); vm.issue()
                I(f"v_lshrrev_b32 v{T+2}, 4, v0"); I(f"v_lshlrev_b32 v{T+2}, 4, v{T+2}"); I(f"v_lshl_add_u32 v{VO}, v{T+1}, 10, v{T+2}")
                I("s_lshl_b32 s49, s41, 6"); I(f"s_lshl_b32 s45, s57, 7"); I("s_add_u32 s49, s49, s45")
                I(f"buffer_load_dwordx4 {v(XR,4)}, v{VO}, s[{RD}:{RD+3}], s49 offen"); vm.issue()
                vm.wait(tf); self.poll_check(VP, VPA, "s53", 1)
                I(f"v_lshrrev_b32 v{T}, 3, v0"); I(f"v_and_b32 v{T+1}, 7, v0"); I(f"v_lshlrev_b32 v{T+1}, 4, v{T+1}")
                I(f"v_lshl_add_u32 v{T}, v{T}, 12, v{T+1}")
                I(f"s_add_u32 m0, s{SWK}, {YT}")
                I(f"s_lshl_b32 s44, s57, 18"); I(f"s_lshl_b32 s45, s{SW}, 15"); I("s_add_u32 s44, s44, s45")
                I(f"s_lshl_b32 s45, s56, 7"); I("s_add_u32 s44, s44, s45"); I(f"s_add_u32 s44, s44, {YT_OFF}")
                I(f"buffer_load_dwordx4 v{T}, s[{RWS}:{RWS+3}], s44 offen{self.ld} lds"); vm.issue()
            vm.wait(max(ctok[i2+1], wtok[2*J+3]))
            if not ypub and vm.done > ymark:
                ypub = True; I(f"s_lshl_b32 s44, s{SF}, 2"); I(f"s_add_u32 s44, s44, {FY_OFF}"); self.publish(44, 3)
            if pm and not ppub and vm.done >= pm["t"]:
                ppub = True
                I(f"s_lshl_b32 s44, s{SF}, 7"); I(f"s_lshl_b32 s45, s{SW}, 2"); I("s_add_u32 s44, s44, s45"); I(f"s_add_u32 s44, s44, {FP_OFF}")
                I("v_mov_b32 v2, 1"); I("v_mov_b32 v3, 0"); I(f"buffer_store_dword v2, v3, s[{RWS}:{RWS+3}], s44 offen sc1"); vm.issue()
            if i2 == 30:
                I(f"s_xor_b32 s53, s{SF}, 32"); I("s_lshl_b32 s53, s53, 7"); I(f"s_lshl_b32 s42, s{SW}, 2"); I("s_add_u32 s53, s53, s42"); I(f"s_add_u32 s53, s53, {FP_OFF}")
                I(f"v_mov_b32 v{VPA}, 0")
                if self.o.get("pe"): tp = self.poll_issue(VP, VPA, "s53")
            M = []
            for mt in range(4):
                for qt in range(2):
                    for u in range(2):
                        d = v(OACC + 32*st + 8*mt + 4*qt, 4)
                        M.append(lambda d=d, mt=mt, qt=qt, u=u: I(f"v_mfma_f32_16x16x32_bf16 {d}, {v(WSL[2*(J+u) + (mt >> 1)]+4*(mt & 1),4)}, {v(cslot[i2+u]+4*qt,4)}, {'0' if J + u == 0 else d}"))
            self.stream(M, [(1, 16, fill)] if fill else [])
            free += [cslot[i2], cslot[i2+1]]
            while free and nc < 32:
                cslot[nc] = free.pop(0); cload(nc); nc += 1
            if i2 + 1 == PS or i2 == PS: pst()
        assert ypub and ppub
        self.stamp(7)
        if not self.o.get("pe"):
            tp = self.poll_issue(VP, VPA, "s53")
            for f in put_ops(1): f()
        vm.wait(tp); self.poll_check(VP, VPA, "s53", 1)
        if self.o.get("ostamp"): self.stamp(20)
        I("s_xor_b32 s54, s54, 0x80000")
        for hh in range(2):
            I(f"buffer_load_dwordx4 {v(PR_+4*hh,4)}, v{VL16}, s[{RWS}:{RWS+3}], s54 offen offset:{1024*hh}{self.ld}"); tpp = vm.issue()
        if self.o.get("pe"):
            for f in put_ops(1): f()
        I(f"v_lshrrev_b32 v{T}, 4, v0"); I("s_lshl_b32 s42, s41, 5"); I(f"v_lshl_add_u32 v{T}, v{T}, 3, s42"); I(f"v_bfe_u32 v{T+1}, v0, 2, 2")
        I(f"v_add_u32 v{T}, v{T}, v{T+1}"); I(f"v_lshlrev_b32 v{T}, 7, v{T}"); I(f"v_and_b32 v{T+1}, 3, v0")
        I(f"v_lshl_add_u32 v{T}, v{T+1}, 3, v{T}"); I("s_lshl_b32 s42, s48, 1"); I(f"s_add_u32 s42, s42, {YT}"); I(f"v_add_u32 v{T}, s42, v{T}")
        lg.wait(lg.issued); self.barrier()
        I(f"ds_read_b64_tr_b16 {v(100,2)}, v{T}"); lg.issue()
        I(f"ds_read_b64_tr_b16 {v(102,2)}, v{T} offset:512"); ty2 = lg.issue()
        def mix():
            lg.wait(ty2)
            for e in range(8):
                if e & 1: I(f"v_and_b32 v104, 0xffff0000, v{XR+(e>>1)}"); I(f"v_and_b32 v105, 0xffff0000, v{100+(e>>1)}")
                else: I(f"v_lshlrev_b32 v104, 16, v{XR+(e>>1)}"); I(f"v_lshlrev_b32 v105, 16, v{100+(e>>1)}")
                I(f"v_mul_f32 v{112+e}, v104, v105"); I(f"v_mul_f32 v{112+e}, v{112+e}, v{GR}")
            I(f"v_sub_f32 v{GR}, 1.0, v{GR}")
        sum_partials(mix)
        vm.wait(tpp)
        for e in range(0, 8, 2): I(f"v_pk_add_f32 {v(OACC+e,2)}, {v(OACC+e,2)}, {v(PR_+e,2)}")
        for e in range(8): I(f"v_fmac_f32 v{112+e}, v{OACC+4*(e&1)+(e>>1)}, v{GR}")
        for e in range(4): I(f"v_cvt_pk_bf16_f32 v{108+e}, v{112+2*e}, v{112+2*e+1}")
        I(f"buffer_store_dwordx4 {v(108,4)}, v{VO}, s[{RC}:{RC+3}], s49 offen sc1"); vm.issue()
        self.stamp(16)
        if self.o.get("echo"):
            lp = a.label("EC")
            I("s_sub_u32 s100, s100, s96")
            if self.o.get("cyc"): I("s_lshr_b32 s100, s100, 4")
            I("s_memrealtime s[96:97]"); I("s_waitcnt lgkmcnt(0)")
            a.L(lp)
            I("s_memrealtime s[98:99]"); I("s_waitcnt lgkmcnt(0)"); I("s_sub_u32 s98, s98, s96"); I("s_cmp_lt_u32 s98, s100"); I(f"s_cbranch_scc1 {lp}")
        if self.o.get("dbgout") is not None:
            l = a.label("DB")
            I(f"s_cmp_lg_u32 s2, {self.o['dbgout']}"); I(f"s_cbranch_scc1 {l}"); I(f"s_cmp_lg_u32 s{SW}, 0"); I(f"s_cbranch_scc1 {l}")
            I("s_waitcnt vmcnt(0)")
            order = [0, 1, 2, 3, 8, 10, 11, 4, 5, 12, 6, 7, 16]
            I("v_mov_b32 v20, 0")
            for j, i in enumerate(order):
                I(f"s_mov_b32 s44, {4*i}"); I(f"v_writelane_b32 v20, s44, {j}")
            I(f"s_lshl_b32 s44, s2, 11"); I(f"s_add_u32 s44, s44, {STAMP_OFF}")
            I(f"buffer_load_dword v21, v20, s[{RWS}:{RWS+3}], s44 offen sc1"); I("s_waitcnt vmcnt(0)")
            I("v_readfirstlane_b32 s45, v21"); I("v_subrev_u32 v21, s45, v21")
            self.srd(RDBG, "dbg", 64); I("v_lshlrev_b32 v22, 2, v0")
            I(f"buffer_store_dword v21, v22, s[{RDBG}:{RDBG+3}], 0 offen")
            a.L(l)

HEADER = """; One persistent launch, one 8-wave workgroup per CU (generated by gen/gen_final.py, hand-designed schedule).
"""
def build(opts):
    g = G(opts); k = NAME + "_kernel"
    g.begin(k); g.a.T("; MARK p"); g.proj(); g.a.T("; MARK a"); g.attn(); g.a.T("; MARK t"); g.tailp(); g.end(); g.a.T("; MARK a"); g.attn_rare(); g.a.T("; MARK t"); g.a.L("CODE_END"); g.a.I("s_endpgm")
    n = g.a.fix_hazards()
    txt = "; @launch grid=(256,1,1) block=(512,1,1) lds=163840\n" + HEADER
    txt += '.amdgcn_target "amdgcn-amd-amdhsa--gfx950"\n.text\n' + g.a.text()
    txt += f""".section .rodata,"a"
.p2align 6
.amdhsa_kernel {k}
  .amdhsa_next_free_vgpr 256
  .amdhsa_next_free_sgpr 102
  .amdhsa_accum_offset 256
  .amdhsa_group_segment_fixed_size 0
  .amdhsa_kernarg_size 128
  .amdhsa_user_sgpr_count 2
  .amdhsa_user_sgpr_kernarg_segment_ptr 1
  .amdhsa_system_sgpr_workgroup_id_x 1
.end_amdhsa_kernel
"""
    print(f"instructions {sum(1 for it in g.a.items if it[0] == 'i')}, nops inserted {n}", file=sys.stderr)
    return txt

if __name__ == "__main__":
    opts = {}
    for x in sys.argv[2:]:
        if "=" in x: k_, v_ = x.split("="); opts[k_] = int(v_)
        else: opts[x] = True
    open(sys.argv[1], "w").write(build(opts))
```

```python
import sys, math, struct
sys.path.insert(0, "gen")
from asmlib import *

NAME = "gated_mix__ssm_conv_h3__compressed_kv_cla__prompt"
MB = 1 << 20
KV_OFF, Q_OFF, CTX_OFF, KVT_OFF, YT_OFF, G_OFF = 0, 32*MB, 48*MB, 64*MB, 66*MB, 68*MB
XC_OFF = 40*MB
PP_OFF = 40*MB
WOT_OFF = 32*MB
FLG_OFF = 68*MB + 65536
FK_OFF, FY_OFF, FC_OFF, FP_OFF = FLG_OFF, FLG_OFF + 4096, FLG_OFF + 8192, FLG_OFF + 32768
STAMP_OFF = 69*MB
WS_SIZE = 70*MB
P = dict(q=64, k=66, v=68, shift=70, ssmk=72, ssmD=74, bx=76, ckv=78, wq=80, wuk=82, wuv=84, wo=86, gate=88, out=90, dbg=92, ws=94)
SW, SHEAD, SIDX, SWK, SF = 3, 4, 5, 6, 7
RA, RB, RC, RWS, RD, RE, RT, RDBG = 8, 12, 16, 20, 24, 28, 56, 60
MFMA = "v_mfma_f32_32x32x16_bf16"
LOG2E = 1.4426950408889634
F_KV, F_CA, F_CB, F_Y = 1, 2, 4, 8
def f2u(x): return "0x%08x" % struct.unpack("<I", struct.pack("<f", x))[0]
def rep4(b): return b * 0x01010101

class G:
    def __init__(self, opts):
        self.a = Asm(); self.o = opts
        self.GSH, self.FSH = (8, 10) if opts.get("lin") else (11, 8)
        self.vm = Cnt(self.a, "vmcnt", 63); self.lg = Cnt(self.a, "lgkmcnt", 15)
        self.st = "" if opts.get("plainst") else (" sc1 nt" if opts.get("ntst") else " sc1"); self.ld = "" if opts.get("plainld") else " sc1"
    def I(self, t): self.a.I(t)
    def srd(self, r, ptr, nbytes):
        I = self.I
        I(f"s_mov_b32 s{r}, s{P[ptr]}"); I(f"s_mov_b32 s{r+1}, s{P[ptr]+1}")
        I(f"s_mov_b32 s{r+2}, {nbytes}"); I(f"s_mov_b32 s{r+3}, 0x00020000")
    def save(self): return (self.vm.issued, self.vm.done, self.lg.issued, self.lg.done)
    def restore(self, s_): self.vm.issued, self.vm.done, self.lg.issued, self.lg.done = s_
    def stream(self, mf, fills):
        n = len(mf); slots = [[] for _ in range(n + 1)]
        for (s0, e0, cl) in fills:
            m = e0 - s0
            for j, c in enumerate(cl): slots[s0 + 1 + (j * m) // len(cl)].append(c)
        for c in slots[0]: c()
        for i in range(n):
            mf[i]()
            for c in slots[i+1]: c()
    def stamp(self, i, dyn=None):
        if self.o.get("echo") == i:
            self.I("s_memtime s[100:101]" if self.o.get("cyc") else "s_memrealtime s[100:101]"); self.I("s_waitcnt lgkmcnt(0)")
        if not self.o.get("stamp"): return
        I = self.I
        I("s_memrealtime s[96:97]"); I("s_memtime s[100:101]")
        I("s_lshl_b32 s98, s2, 3"); I(f"s_add_u32 s98, s98, s{SW}"); I("s_lshl_b32 s98, s98, 8")
        I(f"s_add_u32 s98, s98, {STAMP_OFF + 4*i}")
        if dyn is not None:
            I(f"s_lshl_b32 s99, s{dyn}, 4"); I("s_add_u32 s98, s98, s99")
        I("s_waitcnt lgkmcnt(0)")
        I("v_mov_b32 v2, s96"); I("v_mov_b32 v3, 0")
        I(f"buffer_store_dword v2, v3, s[{RWS}:{RWS+3}], s98 offen")
        I("v_mov_b32 v2, s100")
        I(f"buffer_store_dword v2, v3, s[{RWS}:{RWS+3}], s98 offen offset:128")
    OOB = 0x40000000
    def publish(self, soff, val=1, srd=RWS, byte=False, idx=None):
        I = self.I
        self.oob_sel()
        if idx is not None: I(f"s_and_b32 s98, s{SIDX}, 3"); I(f"s_cmp_eq_u32 s98, {idx}"); I(f"s_cselect_b32 s99, s99, {self.OOB}")
        I(f"v_mov_b32 v2, {val}"); I("v_mov_b32 v3, s99")
        I(f"buffer_store_{'byte' if byte else 'dword'} v2, v3, s[{srd}:{srd+3}], s{soff} offen sc1"); self.vm.issue()
    def oob_sel(self):
        self.I(f"s_cmp_eq_u32 s{SW}, 0"); self.I(f"s_cselect_b32 s99, 0, {self.OOB}")
    def poll_issue(self, vd, vaddr, soff, srd=RWS):
        self.I(f"buffer_load_dword v{vd}, v{vaddr}, s[{srd}:{srd+3}], {soff} offen sc1"); return self.vm.issue()
    def poll_check(self, vd, vaddr, soff, want, srd=RWS):
        a = self.a; I = self.I
        l = a.label("PCK"); lp = a.label("POLL")
        I(f"s_mov_b32 s98, {want}"); I("s_mov_b32 s99, 20000")
        a.L(lp)
        I(f"v_and_b32 v{vd}, s98, v{vd}"); I(f"v_cmp_ne_u32 vcc, s98, v{vd}"); I(f"s_cbranch_vccz {l}")
        I("s_sleep 2")
        I(f"buffer_load_dword v{vd}, v{vaddr}, s[{srd}:{srd+3}], {soff} offen sc1")
        I("s_sub_u32 s99, s99, 1"); I("s_cmp_lg_u32 s99, 0"); I("s_waitcnt vmcnt(0)"); I(f"s_cbranch_scc1 {lp}")
        a.L(l)
    def phys(self, d, s_, t, E=None):
        I = E or self.I; p = self.o.get("hperm", 0)
        if p == 0: I(f"s_mov_b32 s{d}, s{s_}")
        elif p == 1: I(f"s_and_b32 s{t}, s{s_}, 3"); I(f"s_lshl_b32 s{t}, s{t}, 3"); I(f"s_lshr_b32 s{d}, s{s_}, 2"); I(f"s_or_b32 s{d}, s{d}, s{t}")
        elif p >= 32:
            I(f"s_lshr_b32 s{t}, s{s_}, 3"); I(f"s_add_u32 s{t}, s{t}, {p - 32}"); I(f"s_and_b32 s{t}, s{t}, 3")
            I(f"s_and_b32 s{d}, s{s_}, 7"); I(f"s_lshl_b32 s{d}, s{d}, 2"); I(f"s_or_b32 s{d}, s{d}, s{t}")
        else: I(f"s_mul_i32 s{t}, s{s_}, {p}"); I(f"s_and_b32 s{d}, s{t}, 31")
    def barrier(self): self.I("s_barrier")
    def sync_all(self):
        self.I("s_waitcnt vmcnt(0) lgkmcnt(0)"); self.vm.mark_all_done(); self.lg.mark_all_done(); self.barrier()

    def begin(self, kname):
        a = self.a; I = self.I
        a.T(f".globl {kname}\n.p2align 8\n.type {kname},@function"); a.L(kname)
        self.endl = a.label("END")
        if self.o.get("stamp"): I("s_memrealtime s[30:31]")
        if self.o.get("echo"): I("s_memtime s[96:97]" if self.o.get("cyc") else "s_memrealtime s[96:97]")
        I("s_load_dwordx16 s[64:79], s[0:1], 0"); I("s_load_dwordx16 s[80:95], s[0:1], 64")
        I("s_cmp_ge_u32 s2, 256"); I(f"s_cbranch_scc1 {self.endl}")
        I("v_lshrrev_b32 v1, 6, v0"); I("v_and_b32 v0, 63, v0"); I(f"v_readfirstlane_b32 s{SW}, v1")
        I("s_and_b32 s7, s2, 7"); I("s_lshl_b32 s7, s7, 2")
        I(f"s_lshr_b32 s{SIDX}, s2, 3"); I(f"s_lshr_b32 s{SHEAD}, s{SIDX}, 3"); I(f"s_add_u32 s{SHEAD}, s{SHEAD}, s7")
        I(f"s_and_b32 s{SIDX}, s{SIDX}, 7"); I(f"s_lshl_b32 s{SWK}, s{SW}, 10")
        I(f"s_lshl_b32 s{SF}, s{SHEAD}, 3"); I(f"s_add_u32 s{SF}, s{SF}, s{SIDX}")
    def end(self):
        self.a.L(self.endl); self.I("s_endpgm")

    def proj(self):
        a = self.a; I = self.I; vm = self.vm; lg = self.lg
        QA_LDS = 65536
        ACC = {"K": 64, "V": 128, "Q": 64}
        FX = [16, 24]; FW = [192, 32]
        VWA = 4; VSK, VSV, VOX, VOW, VST = 8, 9, 10, 11, 12; VXA = 224; T = 232
        NB = 0; XC = self.o.get("xc", 0)
        ST = [("KV", c) for c in range(NB)] + [("K", c) for c in range(NB, 8)] + [("V", c) for c in range(7, NB - 1, -1)] + [("Q", c) for c in range(8)]
        NS = len(ST); TK = 7; TV = NS - 9; TQ = NS - 8
        I("v_lshrrev_b32 v13, 3, v0"); I(f"s_lshl_b32 s40, s{SW}, 3"); I("v_add_u32 v13, s40, v13"); I("v_lshlrev_b32 v13, 10, v13")
        I(f"s_lshr_b32 s41, s{SW}, 1"); I(f"s_xor_b32 s40, s41, s{SW}"); I("s_and_b32 s40, s40, 1"); I("s_lshl_b32 s40, s40, 2")
        I("v_lshrrev_b32 v14, 4, v0"); I("v_add_u32 v15, s40, v14")
        I("v_and_b32 v3, 7, v0"); I("v_xor_b32 v15, v15, v3"); I(f"v_lshl_add_u32 v{VOX}, v15, 4, v13")
        I(f"s_lshl_b32 s40, s{SW}, 2"); I("v_add_u32 v13, s40, v14"); I("v_lshlrev_b32 v13, 13, v13")
        I("s_and_b32 s41, s41, 1"); I("s_lshl_b32 s41, s41, 3"); I("v_lshl_add_u32 v15, v14, 1, s41"); I("v_and_b32 v3, 15, v0"); I("v_xor_b32 v15, v15, v3")
        I("v_lshl_add_u32 v13, v15, 4, v13"); self.phys(40, SHEAD, 41); I("s_lshl_b32 s40, s40, 8"); I(f"v_add_u32 v{VOW}, s40, v13")
        I(f"v_lshlrev_b32 v{VST}, 4, v0")
        I(f"s_lshl_b32 s44, s{SIDX}, 18")
        for i in range(1, 4): I(f"s_add_u32 s{44+i}, s44, {65536*i}")
        ROT = self.o.get("rot", 2)
        if ROT == 0: I("s_mov_b32 s33, 0")
        elif ROT == 1: I(f"s_mov_b32 s33, s{SIDX}")
        elif ROT == 2: I(f"s_lshr_b32 s33, s{SHEAD}, 2"); I(f"s_add_u32 s33, s33, s{SIDX}")
        elif ROT == 3: I(f"s_lshr_b32 s33, s{SHEAD}, 2"); I(f"s_add_u32 s33, s33, s{SIDX}"); I(f"s_lshl_b32 s34, s{SHEAD}, 1"); I("s_add_u32 s33, s33, s34")
        elif ROT == 4: I(f"s_lshr_b32 s33, s{SHEAD}, 2")
        if self.o.get("rotq"): I(f"s_lshl_b32 s32, s{SHEAD}, 1"); I("s_add_u32 s32, s32, s33")
        else: I("s_mov_b32 s32, s33")
        I("s_waitcnt lgkmcnt(0)")
        if self.o.get("stamp"): I("s_memrealtime s[28:29]")
        self.srd(RA, "ckv", 2*MB); self.srd(RB, "wuk", 4*MB); self.srd(RC, "wuv", 4*MB)
        def xbase(t):
            k, c = ST[t]
            return (32768, 131072, 0)[((16 + c) if k == "Q" else (15 - c + NB)) % 3]
        units = [(t, m) for t in range(NS) for m in ST[t][0]]
        uidx = {u: i for i, u in enumerate(units)}
        def wbase(t, m): return 65536 + (uidx[(t, m)] % 4)*16384
        WE = self.o.get("wearly", 2)
        def wn(t): return t - 1 if t >= WE else t
        items = []
        lastx = {}
        for t in range(NS):
            k, c = ST[t]
            for m in k:
                u = uidx[(t, m)]
                def w(i, t=t, m=m, c=c):
                    if i == 0: I(f"s_add_u32 s34, s{32 if m == 'Q' else 33}, {c}"); I("s_and_b32 s34, s34, 7"); I("s_lshl_b32 s34, s34, 19")
                    I(f"s_add_u32 m0, s{SWK}, {wbase(t, m) + i*8192}"); I(f"s_add_u32 s41, s34, {i*262144}")
                    r = {"K": RB, "V": RC, "Q": RE}[m]
                    if self.o.get("nodma") and t > 4: dtok[wn(t)] = vm.issued; return
                    I(f"buffer_load_dwordx4 v{VOW}, s[{r}:{r+3}], s41 offen lds"); dtok[wn(t)] = vm.issue()
                items.append((wn(t), wn(units[u-4][0]) if u >= 4 else -1, [lambda i=i, w=w: w(i) for i in range(2)]))
            key = ("Q" if k == "Q" else "C", c); prev = lastx.get(xbase(t))
            if prev is None or prev[1] != key:
                def x(i, t=t, k=k, c=c):
                    if i == 0: I(f"s_add_u32 s35, s{32 if k == 'Q' else 33}, {c}"); I("s_and_b32 s35, s35, 7"); I("s_lshl_b32 s35, s35, 7")
                    I(f"s_add_u32 m0, s{SWK}, {xbase(t) + i*8192}"); I(f"s_add_u32 s41, s{(48 if k == 'Q' else 44)+i}, s35")
                    r = (RWS if XC else RD) if k == "Q" else RA
                    if self.o.get("nodma") and t > 4: dtok[t] = vm.issued; return
                    I(f"buffer_load_dwordx4 v{VOX}, s[{r}:{r+3}], s41 offen{self.ld if (XC and k == 'Q') else ''} lds"); dtok[t] = vm.issue()
                items.append((t, prev[0] if prev else -1, [lambda i=i, x=x: x(i) for i in range(4)]))
            lastx[xbase(t)] = (t, key)
        items.sort(key=lambda it: it[0])
        dtok = {}
        def take(done, upto=99):
            out = []
            for it in list(items):
                if it[1] <= done and it[0] <= upto: out += it[2]; items.remove(it)
            return out
        for f in take(-1, 0): f()
        self.srd(RWS, "ws", WS_SIZE); self.srd(RDBG, "dbg", 256)
        if self.o.get("wsoff"): I(f"s_add_u32 s{RWS}, s{RWS}, {self.o['wsoff']*MB}"); I(f"s_addc_u32 s{RWS+1}, s{RWS+1}, 0")
        self.stamp(31)
        if self.o.get("stamp"):
            I("v_mov_b32 v2, s30"); I("s_sub_u32 s98, s98, 124"); I(f"buffer_store_dword v2, v3, s[{RWS}:{RWS+3}], s98 offen")
            I("v_mov_b32 v2, s28"); I(f"buffer_store_dword v2, v3, s[{RWS}:{RWS+3}], s98 offen offset:120")
        I(f"s_lshl_b32 s48, s{SIDX}, 17"); I("s_add_u32 s49, s48, 65536")
        I(f"s_sub_u32 s50, 15, s{SIDX}"); I("s_lshl_b32 s50, s50, 17"); I("s_add_u32 s51, s50, 65536")
        if XC:
            for i in range(4): I(f"s_add_u32 s{48+i}, s{48+i}, {XC_OFF}")
        I(f"s_and_b32 s42, s{SW}, 3"); I("s_lshl_b32 s42, s42, 6"); I(f"s_lshr_b32 s43, s{SW}, 2"); I("s_lshl_b32 s43, s43, 1")
        I("v_and_b32 v13, 15, v0"); I("v_lshrrev_b32 v15, 4, v0")
        I("v_lshrrev_b32 v14, 1, v13"); I("v_xor_b32 v14, v14, v15"); I("v_lshlrev_b32 v14, 4, v14")
        I("v_add_u32 v3, s42, v13"); I(f"v_lshl_add_u32 v{VXA}, v3, 7, v14")
        I("v_and_b32 v2, 8, v13"); I("v_add_u32 v3, v3, v2"); I(f"v_lshl_add_u32 v{VXA+4}, v3, 7, v14")
        for pt in range(2):
            b = VXA + 4*pt
            I(f"v_xor_b32 v{b+1}, 64, v{b}"); I(f"v_add_u32 v{b+2}, 0x20000, v{b}"); I(f"v_add_u32 v{b+3}, 0x20000, v{b+1}")
        I("v_lshlrev_b32 v3, 4, v13"); I("v_and_b32 v2, 1, v15"); I("v_lshl_add_u32 v3, v2, 9, v3"); I("v_lshrrev_b32 v14, 1, v15")
        I("v_lshlrev_b32 v3, 4, v13"); I(f"v_lshl_add_u32 v{VSK}, v15, {self.GSH}, v3")
        I("v_bfe_u32 v13, v0, 2, 2"); I("v_lshl_add_u32 v14, v15, 3, v13"); I("v_lshlrev_b32 v14, 8, v14")
        I("v_and_b32 v3, 3, v0"); I("v_lshl_add_u32 v14, v3, 3, v14"); I("v_add_u32 v14, 0x10000, v14")
        I("v_lshl_add_u32 v13, v2, 2, v13"); I("s_lshl_b32 s40, s43, 1"); I("v_xor_b32 v13, s40, v13"); I(f"v_lshl_add_u32 v{VWA}, v13, 5, v14")
        for dt in range(1, 4): I(f"v_xor_b32 v{VWA+dt}, {dt << 5}, v{VWA}")
        I(f"s_lshl_b32 s54, s{SHEAD}, 4"); I(f"s_lshl_b32 s55, s{SIDX}, 1"); I("s_add_u32 s54, s54, s55")
        I(f"s_bfe_u32 s55, s{SW}, 0x10001"); I("s_add_u32 s54, s54, s55"); I("s_lshl_b32 s54, s54, 16")
        I(f"s_and_b32 s55, s{SW}, 1"); I("s_lshl_b32 s55, s55, 14"); I("s_add_u32 s54, s54, s55")
        I(f"s_lshl_b32 s55, s43, {self.FSH+1}"); I("s_add_u32 s52, s54, s55"); I("s_add_u32 s52, s52, 0x8000")
        I(f"s_lshl_b32 s55, s43, {self.FSH}"); I("s_add_u32 s54, s54, s55")
        XG = T; GW = T + 4; hl = {}
        def gate_loads():
            L = []
            def E(t): L.append(lambda: I(t))
            def V(t):
                def f(): I(t); hl["t"] = vm.issue()
                L.append(f)
            E(f"s_lshl_b32 s40, s{SHEAD}, 7"); E(f"s_lshl_b32 s39, s{SIDX}, 2"); E("s_add_u32 s40, s40, s39"); E(f"s_add_u32 s40, s40, {FK_OFF}")
            E(f"s_lshl_b32 s39, s{SF}, 7"); E(f"s_add_u32 s39, s39, {FP_OFF}"); E("v_and_b32 v13, 7, v0"); E("v_lshl_add_u32 v13, v13, 2, s39")
            E("v_writelane_b32 v13, s40, 0")
            E(f"s_lshr_b32 s39, s{SHEAD}, 2"); E("s_lshl_b32 s39, s39, 7"); E(f"s_and_b32 s40, s{SHEAD}, 3"); E("s_lshl_b32 s40, s40, 2"); E("s_add_u32 s39, s39, s40")
            E(f"s_lshl_b32 s40, s{SIDX}, 10"); E("s_add_u32 s40, s40, s39"); E(f"s_add_u32 s40, s40, {FC_OFF}")
            E("v_writelane_b32 v13, s40, 1")
            E(f"s_sub_u32 s40, 15, s{SIDX}"); E("s_lshl_b32 s40, s40, 10"); E("s_add_u32 s40, s40, s39"); E(f"s_add_u32 s40, s40, {FC_OFF}")
            E("v_writelane_b32 v13, s40, 2")
            E(f"s_lshl_b32 s40, s{SF}, 2"); E(f"s_add_u32 s40, s40, {FY_OFF}"); E("v_writelane_b32 v13, s40, 3"); E("v_mov_b32 v14, 0")
            def oo(): self.oob_sel(); I("v_add_u32 v13, s99, v13")
            L.append(oo)
            V(f"buffer_store_dword v14, v13, s[{RWS}:{RWS+3}], 0 offen sc1")
            E("s_lshl_b32 s37, s2, 3"); E(f"s_add_u32 s37, s37, s{SW}"); E("s_lshl_b32 s38, s37, 10")
            L.append(lambda: self.srd(RD, "q", 2*MB)); L.append(lambda: self.srd(RE, "wq", 4*MB)); L.append(lambda: self.srd(RT, "gate", 1024))
            V(f"buffer_load_dwordx4 {v(XG,4)}, v{VST}, s[{RD}:{RD+3}], s38 offen")
            V(f"buffer_load_dwordx4 {v(GW,4)}, v{VST}, s[{RT}:{RT+3}], 0 offen")
            return L
        def gate_ops():
            L = []; E = lambda t: L.append(lambda: I(t)); Z = T + 8
            L.append(lambda: vm.wait(hl["t"]))
            def xs():
                I(f"s_add_u32 s38, s38, {XC_OFF}"); I(f"buffer_store_dwordx4 {v(XG,4)}, v{VST}, s[{RWS}:{RWS+3}], s38 offen{self.st}"); vm.issue()
            if XC: L.append(xs)
            E(f"v_dot2_f32_bf16 v{Z}, v{XG}, v{GW}, 0")
            for i in range(1, 4): E(f"v_dot2_f32_bf16 v{Z}, v{XG+i}, v{GW+i}, v{Z}")
            for m in ("quad_perm:[1,0,3,2] row_mask:0xf", "quad_perm:[2,3,0,1] row_mask:0xf", "row_half_mirror row_mask:0xf", "row_mirror row_mask:0xf",
                      "row_bcast:15 row_mask:0xa", "row_bcast:31 row_mask:0xc"):
                E(f"v_add_f32_dpp v{Z}, v{Z}, v{Z} {m} bank_mask:0xf")
            E(f"v_readlane_b32 s36, v{Z}, 63"); E(f"v_mov_b32 v{Z+1}, {f2u(-LOG2E)}"); E(f"v_mul_f32 v{Z}, s36, v{Z+1}")
            E(f"v_exp_f32 v{Z}, v{Z}"); E(f"v_add_f32 v{Z}, 1.0, v{Z}"); E(f"v_rcp_f32 v{Z}, v{Z}")
            E("s_lshl_b32 s38, s37, 2"); E(f"s_add_u32 s38, s38, {G_OFF}"); E(f"v_mov_b32 v{Z+1}, 0")
            def gs():
                I(f"buffer_store_dword v{Z}, v{Z+1}, s[{RWS}:{RWS+3}], s38 offen{self.st}"); vm.issue()
            L.append(gs)
            return L
        toks = {}
        def rdx(t, mt):
            m = ST[t][0]; xb = xbase(t); pt = 0
            off = (xb & 65535) + ((mt >> 1)*4096 + (mt & 1)*1024 if pt else mt*2048)
            def f(kk):
                va = VXA + 4*pt + 2*(xb >> 17) + (kk ^ (mt & 1))
                I(f"ds_read_b128 {v(FX[mt & 1]+4*kk,4)}, v{va} offset:{off}"); toks[("x", t, mt, kk)] = lg.issue()
            return [lambda: f(0), lambda: f(1)]
        def rdw(t, dt):
            m = ST[t][0]
            def f(kk, h):
                I(f"ds_read_b64_tr_b16 {v(FW[t & 1]+8*dt+4*kk+2*h,2)}, v{VWA+dt} offset:{wbase(t, m)-65536+kk*8192+h*1024}"); toks[("w", t, dt, kk)] = lg.issue()
            return [lambda kk=kk, h=h: f(kk, h) for kk in range(2) for h in range(2)]
        def atile(m, mt, dt): return ACC[m] + (4*(((mt >> 1)*4 + dt)*2 + (mt & 1)) if m == "V" else 4*(mt*4 + dt))
        def mfs(t, mt):
            m = ST[t][0]; first = t == 0 or ST[t-1][0] != m; L = []
            order = [(dt, kk) for dt in range(4) for kk in range(2)] if not self.o.get("nochain") else [(dt, kk) for kk in range(2) for dt in range(4)]
            for dt, kk in order:
                def f(dt=dt, kk=kk):
                    lg.wait(max(toks[("x", t, mt, kk)], toks[("w", t, dt, kk)]))
                    d = v(atile(m, mt, dt), 4); X = v(FX[mt & 1]+4*kk, 4); W = v(FW[t & 1]+8*dt+4*kk, 4)
                    c = "0" if (first and kk == 0) else d
                    I(f"v_mfma_f32_16x16x32_bf16 {d}, {X}, {W}, {c}" if m == "V" else f"v_mfma_f32_16x16x32_bf16 {d}, {W}, {X}, {c}")
                L.append(f)
            return L
        def pieces(m):
            fs = 1024 if m == "Q" else 1 << self.FSH
            if m == "V": return [(atile(m, 2*p, dt), p*8192 + dt*fs) for p in range(2) for dt in range(4)]
            return [(atile(m, mt, 2*j), (mt >> 1)*8192 + ((mt & 1)*4 + j)*fs) for mt in range(4) for j in range(2)]
        def kv_out(m):
            out = []
            for b, off in pieces(m):
                pk = [lambda i=i, b=b: I(f"v_cvt_pk_bf16_f32 v{b+i}, v{b+2*i}, v{b+2*i+1}") for i in range(4)]
                if m == "K": pk = [lambda i=i, b=b: I(f"v_mul_f32 v{b+i}, {f2u(LOG2E / math.sqrt(128.0))}, v{b+i}") for i in range(8)] + pk
                def st(b=b, off=off):
                    if self.o.get("nost"): return
                    I(f"s_add_u32 s41, s{54 if m == 'K' else 52}, {off}")
                    I(f"buffer_store_dwordx4 {v(b,4)}, v{VSK}, s[{RWS}:{RWS+3}], s41 offen{self.st}"); vm.issue()
                out.append((pk, st))
            return out
        side = {}; late = {}
        def spread(ops, t0, t1, dst=side, ks=(0, 1, 2)):
            sl = [(t, k) for t in range(t0, t1) for k in ks]; n = len(ops)
            for j, key in enumerate(sl): dst.setdefault(key, []).extend(ops[n*j//len(sl): n*(j+1)//len(sl)])
        PG = self.o.get("pg", 0)
        spread(gate_loads(), PG, PG + 1); spread(gate_ops(), PG + 2, PG + 3)
        def wtouch(r, half, wv):
            def f():
                I(f"s_cmp_eq_u32 s{SW}, {wv}"); I(f"s_cselect_b32 s99, 0, {self.OOB}")
                self.phys(39, SHEAD, 40); I("s_lshl_b32 s39, s39, 8"); I(f"s_lshl_b32 s40, s{SIDX}, 19"); I("s_add_u32 s40, s40, s39"); I(f"s_add_u32 s40, s40, {half*32*8192}")
                I("v_lshrrev_b32 v3, 1, v0"); I("v_lshlrev_b32 v3, 13, v3"); I("v_and_b32 v2, 1, v0"); I("v_lshl_add_u32 v3, v2, 7, v3"); I("v_add_u32 v3, s99, v3")
                I(f"buffer_load_dword v1, v3, s[{r}:{r+3}], s40 offen"); vm.issue()
            return f
        for nm, r, dflt in (("tk", RB, -1), ("tv", RC, 1), ("tq", RE, 3)):
            t0 = self.o.get(nm, dflt)
            if t0 >= 0:
                for half in range(2): side.setdefault((t0 + half, 2), []).append(wtouch(r, half, half))
        KN = self.o.get("kn", 8); VD = self.o.get("vd", 0); VN = self.o.get("vn", 5)
        KO = kv_out("K"); VO = kv_out("V"); SK = self.o.get("sk", 2); SG_ = self.o.get("sgp", 6)
        spread(sum((p for p, _ in KO), []), TK + 1, min(TK + 3, TQ), ks=(0, 1))
        npk = 2 * (min(TK + 3, TQ) - TK - 1)
        spread([s_ for _, s_ in KO], TK + 1, TK + 1 + KN, dst=late, ks=(SK,))
        spread(sum((p for p, _ in VO), []), TQ, TQ + 1, ks=(0, 1))
        spread([s_ for _, s_ in VO], TQ + VD, TQ + VD + VN, dst=late, ks=(SK,))
        PK_, PV_ = TK + KN + 2, TQ + VD + VN
        assert PK_ <= NS - 5 and PV_ <= NS - 2
        QE = []; EQ = lambda t: QE.append(lambda: I(t))
        EQ(f"s_and_b32 s55, s{SW}, 2"); EQ("s_lshl_b32 s55, s55, 15"); EQ(f"s_add_u32 s55, s55, {QA_LDS}")
        EQ(f"s_and_b32 s54, s{SW}, 1"); EQ("s_lshl_b32 s54, s54, 14"); EQ("s_add_u32 s55, s55, s54")
        EQ("s_lshl_b32 s54, s43, 10"); EQ("s_add_u32 s55, s55, s54"); EQ(f"v_add_u32 v14, s55, v{VST}")
        def codetouch():
            lp = a.label("PC")
            I(f"s_getpc_b64 s[{RT}:{RT+1}]"); a.L(lp)
            I(f"s_mov_b32 s{RT+2}, HOT_END-{lp}"); I(f"s_mov_b32 s{RT+3}, 0x00020000")
            I(f"s_cmp_eq_u32 s{SW}, 7"); I(f"s_cselect_b32 s99, 0, {self.OOB}"); I(f"s_lshl_b32 s40, s{SIDX}, 13"); I("s_add_u32 s99, s99, s40")
            I("v_lshl_add_u32 v3, v0, 7, s99")
            I(f"buffer_load_dword v1, v3, s[{RT}:{RT+3}], 0 offen"); vm.issue()
        if self.o.get("ct2", 22) >= 0: side.setdefault((self.o.get("ct2", 22), 2), []).append(codetouch)
        spread(QE, NS - 1, NS)
        spread([lambda: self.srd(RB, "ssmk", 2*MB), lambda: self.srd(RA, "k", 2*MB), lambda: self.srd(RC, "v", 2*MB), lambda: self.srd(RD, "shift", 4096), lambda: self.srd(RE, "wo", 4*MB)], NS - 2, NS - 1)
        spread([lambda r=r: I(f"v_mov_b64 {v(192+2*r,2)}, 0") for r in range(32) if not 16 <= r < 20], NS - 1, NS)
        side.setdefault((NS - 1, 3), []).extend([lambda r=r: I(f"v_mov_b64 {v(192+2*r,2)}, 0") for r in range(16, 20)])
        def fkoff():
            I(f"s_lshl_b32 s40, s{SHEAD}, 7"); I(f"s_lshl_b32 s41, s{SIDX}, 2"); I("s_add_u32 s40, s40, s41"); I(f"s_add_u32 s40, s40, {FK_OFF}")
        def w0only(fn):
            l = a.label("NP"); I(f"s_cmp_lg_u32 s{SW}, 0"); I(f"s_cbranch_scc1 {l}"); fn(); a.L(l)
        def k0(i):
            I(f"s_lshl_b32 s40, s{SW}, 12"); I("s_add_u32 m0, s40, 0x8000")
            I(f"s_lshl_b32 s41, s{SHEAD}, 20"); I("s_add_u32 s41, s41, s40")
            I(f"buffer_load_dwordx4 v{VST}, s[{RWS}:{RWS+3}], s41 offen offset:{1024*i}{self.ld} lds"); vm.issue()
        self.barrier()
        for f in take(-1, 1): f()
        vm.wait(dtok[0]); self.barrier()
        self.stamp(1)
        def first_reads(t):
            x = rdx(t, 0); w = [rdw(t, dt) for dt in range(4)]
            return [x[0]] + w[0][:2] + [x[1]] + w[0][2:] + w[1], w[2] + w[3]
        L, rest = first_reads(0)
        for f in L: f()
        VPK = self.o.get("vpk", 2); mark = {}; TZ = PG + 4; TS = 10; DS = self.o.get("dsteps", 3)
        pend = take(-1)
        for t in range(NS):
            for k in range(4):
                M = mfs(t, k); n = len(M); PB = []
                if k == 3 and t < NS - 1:
                    assert not pend
                    if t == TS + 2: vm.wait(td); w0only(lambda: self.poll_check(14, 13, "0", rep4(1), RDBG))
                    if t == NS - 3: vm.wait(tp); w0only(lambda: self.poll_check(15, 13, "s53", 1))
                    lg.wait(lg.issued)
                    if not (self.o.get("nowait") and t > 4): vm.wait(dtok.get(t+1, 0))
                    if t == TZ: vm.wait(mark[TZ-2])
                    if t == PK_: vm.wait(mark[TK + KN])
                    if t == PV_: vm.wait(mark[PV_ - 1])
                    self.barrier()
                    ps = self.o.get("pstamp")
                    if ps is not None and 0 <= t - int(ps) + 1 < 13: self.stamp(17 + t - int(ps) + 1); vm.issue(2)
                    if TZ <= t < TZ + 4: PB.append(lambda t=t: self.publish(SF, 1, RDBG, True, idx=t - TZ))
                    if t == PK_: PB.append(lambda: (fkoff(), self.publish(40, 1)))
                    if t == PV_: PB.append(lambda: (fkoff(), self.publish(40, 3)))
                    pend = take(t)
                    if t == NS - 3: pend += [lambda i=i: k0(i) for i in range(4)]
                    nd = len(pend) // (DS + 1)
                else:
                    nd = -(-len(pend) // max(1, (3 if t == 0 else DS) - k))
                D, pend = pend[:nd], pend[nd:]
                fl = []
                if not (t == NS - 1 and k == 3):
                    if k == 3:
                        if t + 1 >= WE: fl.append((0, 2, rdx(t+1, 0))); rest = []
                        else:
                            L, rest = first_reads(t+1); nr = self.o.get("nr", 4)
                            fl.append((0, 7, L + rest[:nr])); rest = rest[nr:]
                    else:
                        if k == 0 and rest: fl.append((-1, 2, rest))
                        fl.append((0, 2, rdx(t, k+1)) if not (k == 0 and rest) else (2, 4, rdx(t, k+1)))
                        if WE <= t + 1 < NS:
                            wr = sum((rdw(t+1, dt) for dt in range(4)), [])
                            fl.append((2, 8 if k < 2 else 6, wr[(0, 6, 12)[k]:(6, 12, 16)[k]]))
                if PB: fl.append((1, 2, PB))
                if D: fl.append((0, n, D))
                if side.get((t, k)): fl.append((0, n, side[(t, k)]))
                if late.get((t, k)): fl.append((SG_, min(n, SG_ + 4), late[(t, k)]))
                self.stream(M, fl)
                if k == 2: mark[t] = vm.issued
                if t == TS and k == 0:
                    self.oob_sel(); I("v_lshl_add_u32 v13, v0, 2, s99"); td = self.poll_issue(14, 13, "0", RDBG)
                if t == NS - 4 and k == 0:
                    self.oob_sel(); I("v_and_b32 v13, 7, v0"); I("v_lshl_add_u32 v13, v13, 2, s99")
                    I(f"s_lshl_b32 s53, s{SHEAD}, 7"); I(f"s_add_u32 s53, s53, {FK_OFF}")
                    tp = self.poll_issue(15, 13, "s53")
                if t == NS - 1 and k == VPK: self.poll_issue(15, 13, "s53")
            if t == TK: self.stamp(2)
            if t == TV: self.stamp(13)
        assert not items
        self.stamp(3)
        I("v_mov_b32 v16, v13")
        if VPK > 3: self.poll_issue(15, 13, "s53")
        for b, off in pieces("Q"):
            for i in range(4): I(f"v_cvt_pk_bf16_f32 v{b+i}, v{b+2*i}, v{b+2*i+1}")
            I(f"ds_write_b128 v14, {v(b,4)} offset:{off}"); lg.issue()
        self.attn_setup()
        vm.wait(vm.issued); w0only(lambda: self.poll_check(15, 16, "s53", 3))
        lg.wait(lg.issued); self.barrier()

    def attn_setup(self): self.attn(True)
    def attn(self, setup=False):
        a = self.a; I = self.I; vm = self.vm; lg = self.lg
        M16 = "v_mfma_f32_16x16x32_bf16"
        ML = 155648; QA_LDS = 65536; QB_LDS = 131072
        O = 192; QF = 160; NM = 144; S = [112, 128]; PP = [96, 104]; RING = 64; NR = 8; E = 56; PK = 16
        VK, VV, VL16, VSC, LM, THR, NINF, VQ, TMP = 4, 5, 6, 7, 8, 9, 10, 11, 12
        LS, ONES, BIAS = 152, 60, 11.0
        SR, SG, SC1, SC2, SKO, SVO, SKM, SVM, STH = 32, 33, 34, 35, 36, 37, 38, 39, 42
        SFIN, SCA, SM1 = 55, 59, 58
        DC = self.o.get("dmacost", 16); WEV = self.o.get("wev", 4)
        if setup:
            I(f"s_lshr_b32 s{SG}, s{SW}, 2"); I(f"s_mul_i32 s{SR}, s{SG}, 7"); I(f"s_xor_b32 s{SR}, s{SR}, s{SW}")
            I(f"v_lshlrev_b32 v{VL16}, 4, v0")
            I(f"s_lshl_b32 s44, s{SR}, 13"); I(f"s_add_u32 s44, s44, {QB_LDS}"); I(f"v_add_u32 v{VQ}, s44, v{VL16}")
            I(f"s_lshl_b32 s45, s{SG}, 16"); I(f"v_subrev_u32 v{TMP+1}, s45, v{VQ}")
            I(f"s_mov_b32 s{SC1}, s{SIDX}")
            I(f"s_lshl_b32 s{SC2}, s{SIDX}, 1"); I(f"s_sub_u32 s{SC2}, 14, s{SC2}")
            I(f"s_cmp_eq_u32 s{SG}, 1"); I(f"s_cselect_b32 s{SM1}, 0, -1")
            I(f"s_lshl_b32 s43, s{SW}, 12"); I(f"s_lshl_b32 s{SVO}, s{SHEAD}, 20"); I(f"s_add_u32 s{SVO}, s{SVO}, s43")
            I(f"s_add_u32 s{SKO}, s{SVO}, 0x10000"); I(f"s_add_u32 s{SVO}, s{SVO}, 0x8000")
            I(f"s_mov_b32 s{SKM}, s43"); I(f"s_add_u32 s{SVM}, s43, 0x18000")
            I(f"s_mov_b32 s{STH}, 0x40004000"); I(f"v_mov_b32 v{NINF}, 0xff800000")
            for r in range(4): I(f"v_mov_b32 v{ONES+r}, 0x3f803f80"); I(f"v_mov_b64 {v(LS+2*r,2)}, 0")
            I(f"v_and_b32 v{THR}, 15, v0"); I(f"v_lshlrev_b32 v{VSC}, 4, v{THR}"); I(f"s_lshl_b32 s44, s{SR}, 5"); I(f"v_add_u32 v{THR}, s44, v{THR}")
            I(f"v_lshrrev_b32 v{TMP}, 4, v0"); I(f"v_lshl_add_u32 v{VSC}, v{TMP}, 9, v{VSC}"); I(f"v_lshlrev_b32 v{TMP}, 2, v{TMP}"); I(f"v_sub_u32 v{THR}, v{THR}, v{TMP}")
            I(f"v_and_b32 v{VK}, 15, v0"); I(f"v_lshlrev_b32 v{VK}, 4, v{VK}"); I(f"v_lshrrev_b32 v{TMP}, 4, v0"); I(f"v_lshl_add_u32 v{VK}, v{TMP}, {self.GSH}, v{VK}"); I(f"v_add_u32 v{VK}, 0x8000, v{VK}")
            I(f"s_lshl_b32 s{SCA}, s{SIDX}, 2"); I(f"s_add_u32 s{SCA}, s{SCA}, s{SR}"); I(f"s_lshl_b32 s{SCA}, s{SCA}, 5"); I(f"s_add_u32 s{SCA}, s{SCA}, s{SHEAD}")
            I(f"s_lshl_b32 s{SCA}, s{SCA}, 13"); I(f"s_add_u32 s{SCA}, s{SCA}, {CTX_OFF}")
            I(f"s_mov_b32 s{SFIN}, 0")
            I(f"s_lshr_b32 s56, s{SF}, 6"); I("s_lshl_b32 s56, s56, 2"); I(f"s_bfe_u32 s44, s{SF}, 0x20003"); I("s_add_u32 s56, s56, s44"); I("s_lshl_b32 s56, s56, 1")
            I(f"s_bfe_u32 s44, s{SF}, 0x10005"); I("s_add_u32 s56, s56, s44"); I(f"s_and_b32 s57, s{SF}, 7")
            I("s_mov_b32 s41, 0")
            CL = self.o.get("cl", 8)
            I(f"s_lshr_b32 s40, {1 << (CL+2)}, s{SG}"); I(f"s_or_b32 s40, s40, {1 << CL}")
            TO = self.o.get("to", 0)
            I(f"s_lshl_b32 s44, {2 << TO}, s{SW}"); I(f"s_and_b32 s44, s44, {30 << TO}"); I("s_or_b32 s40, s40, s44")
            I(f"s_cmp_eq_u32 s{SW}, 0"); I(f"s_cselect_b32 s44, {(1 << (5 + TO)) | (1 << (CL+4))}, 0"); I("s_or_b32 s40, s40, s44")
            if not self.o.get("noprio"):
                l = a.label("PR"); I(f"s_cmp_eq_u32 s{SG}, 1"); I(f"s_cbranch_scc0 {l}"); I("s_setprio 1"); a.L(l)
            return
        op = lambda t, c=4: (lambda: I(t), c)
        nop = lambda: None
        def loadq(va):
            for ds in range(8):
                I(f"ds_read_b128 {v(QF+4*ds,4)}, v{va} offset:{1024*ds}"); lg.issue()
        def dma4(kind):
            sm, so = (SKM, SKO) if kind == "k" else (SVM, SVO)
            def d(i):
                def f():
                    if i == 0: I(f"s_mov_b32 m0, s{sm}"); I(f"s_xor_b32 s{sm}, s{sm}, 0x8000")
                    I(f"buffer_load_dwordx4 v{VL16}, s[{RWS}:{RWS+3}], s{so} offen offset:{1024*i}{self.ld} lds")
                    if i == 3: I(f"s_add_u32 s{so}, s{so}, 0x10000")
                return (f, DC + (8 if i == 0 else 4 if i == 3 else 0))
            return [d(i) for i in range(4)]
        self.ring_n = 0
        def rd(kind, sl, idx):
            h = {}
            def f():
                slot = self.ring_n % NR; self.ring_n += 1
                h["reg"] = RING + 4*slot
                I(f"ds_read_b128 {v(h['reg'],4)}, v{VK if kind == 'k' else VV} offset:{sl*8192+(idx << self.FSH)}"); h["tok"] = lg.issue()
            return f, h
        def wait_for(R, i):
            if R[i][1]["tok"] <= lg.done: return
            j = i
            while j + 1 < len(R) and j + 1 < i + WEV and "tok" in R[j+1][1] and R[j+1][1]["tok"] > R[i][1]["tok"]: j += 1
            lg.wait(R[j][1]["tok"])
        def otile(dt, qt): return O + 16*(dt >> 1) + 8*qt + 4*(dt & 1)
        def qk(sb, R, base, czero=False):
            def f(m):
                kt, qt, dd = m >> 3, (m >> 2) & 1, m & 3; i = base + 4*kt + dd
                wait_for(R, i); d = v(S[sb] + 8*qt + 4*kt, 4)
                c = ("0" if czero else v(NM + 4*qt, 4)) if dd == 0 else d
                I(f"{M16} {d}, {v(R[i][1]['reg'],4)}, {v(QF + 16*qt + 4*dd, 4)}, {c}")
            return [lambda m=m: f(m) for m in range(16)]
        def pv1(pb, dt, qt, reg): I(f"{M16} {v(otile(dt, qt),4)}, {v(reg,4)}, {v(PP[pb]+4*qt,4)}, {v(otile(dt, qt),4)}")
        def pv(pb, R, base, dts=range(8), exact=False):
            def f(dt, qt):
                if exact: lg.wait(R[base+dt][1]["tok"])
                else: wait_for(R, base + dt)
                pv1(pb, dt, qt, R[base+dt][1]["reg"])
            ls = [lambda qt=qt: I(f"{M16} {v(LS+4*qt,4)}, {v(ONES,4)}, {v(PP[pb]+4*qt,4)}, {v(LS+4*qt,4)}") for qt in range(2)]
            return ls + [lambda dt=dt, qt=qt: f(dt, qt) for dt in dts for qt in range(2)]
        def sm_ops(sb):
            ex = lambda i: op(f"v_exp_f32 v{E+(i&3)}, v{S[sb]+i}", 8)
            cv = lambda j: op(f"v_cvt_pk_bf16_f32 v{PP[sb]+j}, v{E+((2*j)&3)}, v{E+((2*j+1)&3)}")
            p = PP[sb]; L = [ex(0), ex(1)]
            ors = {2: f"v_or3_b32 v{LM}, v{p}, v{p+1}, v{p+2}", 4: f"v_or3_b32 v{LM}, v{LM}, v{p+3}, v{p+4}", 6: f"v_or3_b32 v{LM}, v{LM}, v{p+5}, v{p+6}"}
            for j in range(8):
                L += [ex(2*j+2), cv(j), ex(2*j+3)] if j < 7 else [op("s_nop 0"), cv(j)]
                if j in ors: L.append(op(ors[j]))
            L = [x for i, x in enumerate(L) if i != len(L) - 2]
            L += [op(f"v_or_b32 v{LM}, v{LM}, v{p+7}"), op(f"v_and_b32 v{LM}, s{STH}, v{LM}")]
            return L
        def sched(M, fixed, chain):
            n = len(M); fc = [sum(c for _, c in fixed.get(g, [])) for g in range(n)]
            tot = sum(c for _, c in chain); lo, hi = 0.0, 4000.0
            for _ in range(40):
                lev = (lo + hi) / 2
                if sum(max(0, lev - f) for f in fc) >= tot: hi = lev
                else: lo = lev
            k = 0; credit = 0.0
            for g in range(n):
                M[g]()
                for c, _ in fixed.get(g, []): c()
                credit += max(0, hi - fc[g])
                while k < len(chain) and (g == n - 1 or chain[k][1] <= credit + 2):
                    chain[k][0](); credit -= chain[k][1]; k += 1
        def put(fixed, g, items): fixed.setdefault(g, []).extend(items)
        SPL = self.o.get("spl", 18)
        ool = []
        def rarely(cmp_, body):
            lo = a.label("OOL"); lb = a.label("RET")
            I(cmp_); I(f"s_cbranch_scc1 {lo}"); a.L(lb)
            ool.append((lo, lb, body))
        def mask_ops(sb, koff):
            prs = [46, 48, 50, 52]; L = []
            if koff >= 64:
                L.append(op(f"v_subrev_u32 v{TMP+3}, 64, v{THR}")); tr = TMP + 3; koff -= 64
            elif koff < 0:
                L += [op(f"s_lshl_b32 s45, s{SG}, 6"), op(f"v_subrev_u32 v{TMP+3}, s45, v{THR}")]; tr = TMP + 3; koff = -koff - 1
            else: tr = THR
            for r0 in range(0, 16, 4):
                qt, kt = r0 >> 3, (r0 >> 2) & 1
                for r in range(4): L.append(op(f"v_cmp_lt_i32 s[{prs[r]}:{prs[r]+1}], v{tr}, {16*kt + r + koff - 16*qt}"))
                for r in range(4): L.append(op(f"v_cndmask_b32 v{S[sb]+r0+r}, v{S[sb]+r0+r}, v{NINF}, s[{prs[r]}:{prs[r]+1}]"))
            return L
        def mask_body(sb, koff):
            for c, _ in mask_ops(sb, koff): c()
        def xred(x, y, t0, t1, o):
            L = []
            for sw in ("v_permlane16_swap_b32", "v_permlane32_swap_b32"):
                L += [op(f"v_mov_b32 v{t0}, v{x}"), op(f"v_mov_b32 v{t1}, v{y}"), op("s_nop 0"), op(f"{sw} v{t0}, v{x}"), op(f"{sw} v{t1}, v{y}"),
                      op(f"{o} v{x}, v{x}, v{t0}"), op(f"{o} v{y}, v{y}, v{t1}")]
            return L
        def rowmax(sb):
            for qt in range(2):
                b = S[sb] + 8*qt; d = TMP + qt
                I(f"v_max3_f32 v{d}, v{b}, v{b+1}, v{b+2}"); I(f"v_max3_f32 v{d}, v{d}, v{b+3}, v{b+4}"); I(f"v_max3_f32 v{d}, v{d}, v{b+5}, v{b+6}"); I(f"v_max_f32 v{d}, v{d}, v{b+7}")
            for c, _ in xred(TMP, TMP+1, TMP+2, TMP+3, "v_max_f32"): c()
        def init_max():
            rowmax(0)
            for qt in range(2): I(f"v_max_f32 v{TMP+qt}, {f2u(-1e30)}, v{TMP+qt}"); I(f"v_add_f32 v{TMP+qt}, {f2u(BIAS)}, v{TMP+qt}")
            for r in range(8): I(f"v_sub_f32 v{NM+r}, 0, v{TMP+(r>>2)}")
            return [op(f"v_sub_f32 v{S[0]+r}, v{S[0]+r}, v{TMP+(r>>3)}") for r in range(16)]
        rare = []
        def check(sb, other=True):
            lr = a.label("RARE"); lb = a.label("BACK")
            I(f"v_cmp_ne_u32 vcc, 0, v{LM}")
            if self.o.get("a_nocheck"): I("s_mov_b64 vcc, 0")
            I(f"s_cbranch_vccnz {lr}"); a.L(lb)
            rare.append((lr, lb, sb, other))
        def fin_body():
            I(f"s_mov_b32 s{SFIN}, 2")
            I(f"v_rcp_f32 v{TMP}, v{LS}"); I(f"v_rcp_f32 v{TMP+2}, v{LS+4}"); I(f"v_mov_b32 v{TMP+1}, v{TMP}"); I(f"v_mov_b32 v{TMP+3}, v{TMP+2}")
            for r in range(4): I(f"v_mov_b64 {v(LS+2*r,2)}, 0")
            for q in range(8):
                for i in range(8*q, 8*q+8, 2): I(f"v_pk_mul_f32 {v(O+i,2)}, {v(O+i,2)}, {v(TMP+2*(q&1),2)}")
                for i in range(4): I(f"v_cvt_pk_bf16_f32 v{PK+4*q+i}, v{O+8*q+2*i}, v{O+8*q+2*i+1}")
                for i in range(8*q, 8*q+8, 2): I(f"v_mov_b64 {v(O+i,2)}, 0")
        coff = lambda q: (q & 3)*1024
        def st_body():
            I(f"s_add_u32 s44, s{SCA}, 4096"); I(f"s_mov_b32 s{SFIN}, 3")
            for q in range(8):
                I(f"buffer_store_dwordx4 {v(PK+4*q,4)}, v{VL16}, s[{RWS}:{RWS+3}], s{SCA if q < 4 else 44} offen offset:{coff(q)}{self.st}")
        TR = [RING + 4*(2+i) for i in range(6)]
        def head(R, vmw, with_mfma=True, post=(), more=(), pre=None):
            rf = [(f, 4) for f, h in R]; sm2 = sm_ops(0)[SPL:]
            M = [lambda dt=dt, qt=qt: pv1(1, dt, qt, TR[dt-2]) for dt in range(2, 8) for qt in range(2)] if with_mfma else [nop]*12
            if with_mfma: I("s_waitcnt lgkmcnt(4)")
            nb = self.o.get("nb", 4); more = list(more); m0 = len(more) // 3
            if pre is not None: more = list(pre) + more; m0 = len(pre)
            sched(M[:4], {}, sm2[:nb] + more[:m0])
            vmw(); I("s_waitcnt lgkmcnt(0)"); lg.mark_all_done(); self.barrier(); self.ring_n = 0
            fx = {0: rf[0:2], 1: rf[2:4], 2: rf[4:5], 4: rf[5:6], 6: rf[6:7], 7: [(nop, 8 + 8*len(post))]}
            sched(M[4:], fx, sm2[nb:] + more[m0:])
            check(0)
            for p in post: p()
        def mk_reads():
            return ([rd("k", 0, i) for i in range(8)] + [rd("v", 0, i) for i in range(8)] +
                    [rd("k", 1, i) for i in range(8)] + [rd("v", 1, i) for i in range(8)])
        def last_use(F):
            b = (0, 18, 34, 52)[F >> 3]; f = F & 7
            return b + (2*f + 1 if (F >> 3) & 1 else 8*(f >> 2) + 4 + (f & 3))
        def mid(R, dmas, kx, mb=None, trans=False, endops=(), early=(), g=0):
            rf = [(f, 4) for f, h in R]
            fa = {0: [rf[7]]}; fb = {}
            G_ = g
            for g, e in zip((1, 3, 9, 11), early): put(fa, g, [e])
            for F in range(8, 32):
                g = last_use(F - 8) + 1
                put(fa, g, [rf[F]]) if g < 34 else put(fb, g - 34, [rf[F]])
            D = sum((dma4(k) for k in dmas), [])
            st_ = self.o.get("gst", 4); of_ = self.o.get("gof", 2)
            gaps = [2 + of_*G_*2 + 2*st_*n for n in range(4)] if len(D) == 4 else [2 + of_*G_ + st_*n for n in range(8)]
            for g, d in zip(gaps, D): put(fa, g, [d]) if g < 33 else put(fb, g - 33, [d])
            PT = self.o.get("pt", 0)
            if PT and G_ == 0:
                pts = {1: [(0, 24, 2), (1, 21, 0)], 2: [(0, 8, 2), (0, 24, 0), (1, 7, 2), (1, 21, 0)], 3: [(0, 0, 2), (0, 8, 0), (0, 16, 2), (0, 24, 0), (0, 32, 2), (1, 7, 0), (1, 15, 2), (1, 21, 0)],
                       4: [(0, 16, 2), (1, 21, 0)], 5: [(0, 32, 2), (1, 21, 0)]}[PT]
                for part, g, p in pts: put(fb if part else fa, g, [op(f"s_setprio {p}")])
            put(fa, 33, [(nop, 16)])
            sched(qk(0, R, 0, trans) + pv(0, R, 8), fa, sm_ops(1))
            check(1, other=not trans)
            if mb: mb()
            pre = []
            if trans:
                I(f"s_mov_b32 s{SFIN}, 1")
                pre = init_max()
            put(fb, 18, [op(f"v_xor_b32 v{VV}, 0x10000, v{VK}")] + kx)
            for n, e in enumerate(endops): put(fb, 11 - n, [e])
            put(fb, 21, [(nop, 12)])
            sched(qk(1, R, 16) + pv(1, R, 24, range(2)), fb, pre + sm_ops(0)[:SPL])
            assert [R[26+i][1]["reg"] for i in range(6)] == TR
        vm4 = lambda: I("s_waitcnt vmcnt(4)")
        def vm08():
            lo = a.label("W8"); lb = a.label("W8R")
            I(f"s_cmp_eq_u32 s{SFIN}, 3"); I(f"s_cbranch_scc1 {lo}"); I("s_waitcnt vmcnt(0)"); a.L(lb)
            def b(): I("s_waitcnt vmcnt(8)"); I(f"s_mov_b32 s{SFIN}, 4")
            ool.append((lo, lb, b))
        m1 = lambda sb, ko: (lambda: rarely(f"s_cmp_eq_u32 s{SC1}, s{SM1}", lambda: mask_body(sb, ko)))
        fin = lambda: rarely(f"s_cmp_eq_u32 s{SFIN}, 1", fin_body)
        sta = (lambda: rarely(f"s_cmp_eq_u32 s{SFIN}, 2", st_body), 8)
        KR, VR, SH, WO, AD = 16, 23, 28, 32, 40
        def side_loads():
            L = []; E = lambda t: L.append(op(t)); V = lambda t: L.append(op(t, DC))
            E(f"v_lshrrev_b32 v{AD}, 5, v0"); E(f"v_and_b32 v{AD+1}, 31, v0"); E(f"v_lshlrev_b32 v{AD+2}, 12, v{AD}"); E(f"v_lshl_add_u32 v{AD+2}, v{AD+1}, 2, v{AD+2}")
            self.phys(60, SHEAD, 61, E); E("s_lshl_b32 s60, s60, 17"); E(f"s_lshr_b32 s61, s{SIDX}, 1"); E("s_lshl_b32 s61, s61, 15"); E("s_add_u32 s60, s60, s61")
            E(f"s_and_b32 s61, s{SF}, 1"); E("s_lshl_b32 s61, s61, 9"); E("s_add_u32 s60, s60, s61")
            E(f"s_lshl_b32 s61, s{SW}, 6"); E("s_add_u32 s60, s60, s61"); E("s_add_u32 s61, s60, 16384")
            E(f"v_lshrrev_b32 v{AD+3}, 4, v0"); E(f"v_lshlrev_b32 v{AD+3}, 12, v{AD+3}"); E(f"v_and_b32 v{AD+4}, 15, v0"); E(f"v_lshl_add_u32 v{AD+3}, v{AD+4}, 2, v{AD+3}")
            for j in range(8): V(f"buffer_load_dword v{WO+j}, v{AD+3}, s[{RE}:{RE+3}], s{60+(j>>2)} offen offset:{1024*(j&3)}")
            E("s_lshr_b32 s62, s2, 3"); E("s_lshl_b32 s62, s62, 16"); E(f"s_lshl_b32 s63, s{SW}, 13"); E("s_add_u32 s62, s62, s63")
            E("s_and_b32 s63, s2, 7"); E("s_lshl_b32 s63, s63, 7"); E("s_add_u32 s62, s62, s63"); E(f"v_add_u32 v{AD+3}, s62, v{AD+2}")
            for i in range(3): E(f"v_subrev_u32 v{AD+4+i}, {3072-1024*i}, v{AD+3}")
            E("s_lshl_b32 s63, s63, 2"); E(f"v_lshl_add_u32 v{AD+7}, v{AD+1}, 4, s63")
            for i in range(3): V(f"buffer_load_dword v{KR+i}, v{AD+4+i}, s[{RA}:{RA+3}], 0 offen")
            for i in range(4): V(f"buffer_load_dword v{KR+3+i}, v{AD+3}, s[{RA}:{RA+3}], 0 offen offset:{1024*i}")
            for i in range(4): V(f"buffer_load_dword v{VR+i}, v{AD+3}, s[{RC}:{RC+3}], 0 offen offset:{1024*i}")
            V(f"buffer_load_dwordx4 {v(SH,4)}, v{AD+7}, s[{RD}:{RD+3}], 0 offen")
            return L
        NSL = 21
        def side_math():
            L = []; E = lambda t: L.append(op(t)); V = lambda t: L.append(op(t, DC))
            W2 = 48
            E("s_mov_b32 s60, 0x05040100"); E("s_mov_b32 s61, 0x07060302")
            for j in range(4): E(f"v_perm_b32 v{W2+j}, v{WO+2*j+1}, v{WO+2*j}, s60")
            for j in range(4): E(f"v_perm_b32 v{W2+4+j}, v{WO+2*j+1}, v{WO+2*j}, s61")
            E(f"s_and_b32 s60, s{SF}, 1"); E("s_lshl_b32 s60, s60, 2"); E(f"s_lshr_b32 s61, s{SW}, 1"); E("s_add_u32 s60, s60, s61"); E("s_lshl_b32 s60, s60, 19")
            E(f"s_lshr_b32 s61, s{SF}, 1"); E("s_lshl_b32 s61, s61, 12"); E("s_add_u32 s60, s60, s61"); E(f"s_and_b32 s61, s{SW}, 1"); E("s_lshl_b32 s61, s61, 11")
            E("s_add_u32 s60, s60, s61"); E(f"s_add_u32 s60, s60, {WOT_OFF}")
            for mt in range(2): V(f"buffer_store_dwordx4 {v(W2+4*mt,4)}, v{VL16}, s[{RWS}:{RWS+3}], s60 offen offset:{1024*mt}{self.st}")
            KU, SU, OO, VU, PQ = 32, 42, 48, 39, 52
            for c in range(2):
                def unp(d, sreg, half): E(f"v_lshlrev_b32 v{d}, 16, v{sreg}" if half == 0 else f"v_and_b32 v{d}, 0xffff0000, v{sreg}")
                for i in range(7): unp(KU+i, KR+i, c)
                for j in range(4): unp(SU+j, SH + 2*c + (j >> 1), j & 1)
                for o in range(4):
                    E(f"v_mul_f32 v{OO+o}, v{KU+o}, v{SU+3}")
                    for j in (2, 1, 0): E(f"v_fmac_f32 v{OO+o}, v{KU+o+3-j}, v{SU+j}")
                    unp(VU, VR+o, c)
                    E(f"v_mul_f32 v{OO+o}, v{OO+o}, v{VU}")
                d = PQ + 2*(1-c)
                E(f"v_cvt_pk_bf16_f32 v{d}, v{OO+3}, v{OO+2}"); E(f"v_cvt_pk_bf16_f32 v{d+1}, v{OO+1}, v{OO}")
            E(f"v_lshlrev_b32 v{AD+1}, 5, v{AD+1}"); E(f"v_lshl_add_u32 v{AD+1}, v{AD}, 4, v{AD+1}")
            E(f"v_permlane32_swap_b32 v{PQ+2}, v{PQ}"); E(f"v_permlane32_swap_b32 v{PQ+3}, v{PQ+1}")
            E("s_lshr_b32 s60, s2, 3"); E("s_lshl_b32 s60, s60, 16"); E(f"s_lshl_b32 s61, s{SW}, 13"); E("s_add_u32 s60, s60, s61")
            E("s_and_b32 s61, s2, 7"); E("s_lshl_b32 s61, s61, 10"); E("s_add_u32 s60, s60, s61"); E(f"s_add_u32 s60, s60, {KVT_OFF}")
            V(f"buffer_store_dwordx4 {v(PQ,4)}, v{AD+1}, s[{RWS}:{RWS+3}], s60 offen{self.st}")
            return L
        CL = self.o.get("cl", 8)
        def touch(k):
            if k in (1, 2):
                self.phys(60, SHEAD, 61); I("s_lshl_b32 s60, s60, 17"); I(f"s_lshl_b32 s61, s{SIDX}, 14"); I("s_add_u32 s60, s60, s61")
                if k == 2: I("s_add_u32 s60, s60, 8192")
                I("v_lshlrev_b32 v16, 7, v0"); r = RE
            elif k in (3, 4):
                I("s_lshr_b32 s60, s2, 3"); I("s_lshl_b32 s60, s60, 16"); I("s_and_b32 s61, s2, 7"); I("s_lshl_b32 s61, s61, 7"); I("s_add_u32 s60, s60, s61")
                I("v_lshlrev_b32 v16, 10, v0"); r = RA if k == 3 else RC
            else:
                I(f"s_lshl_b32 s60, s{SF}, 13"); I("v_lshlrev_b32 v16, 7, v0"); r = RB
            I(f"buffer_load_dword v1, v16, s[{r}:{r+3}], s60 offen")
        LSITE = a.label("SITE")
        def site_code():
            a.L(LSITE)
            def ret(): I("s_nop 1"); I("s_setpc_b64 s[76:77]")
            l = a.label("SN"); I(f"s_cmp_lg_u32 s41, {CL}"); I(f"s_cbranch_scc1 {l}")
            for c, _ in side_loads(): c()
            ret(); a.L(l)
            l = a.label("SN"); I(f"s_add_u32 s44, s41, s{SG}"); I(f"s_cmp_lg_u32 s44, {CL+2}"); I(f"s_cbranch_scc1 {l}")
            for c, _ in side_math(): c()
            ret(); a.L(l)
            for k in range(1, 6):
                l = a.label("SN")
                I(f"s_cmp_lg_u32 s41, {k + self.o.get('to', 0)}"); I(f"s_cbranch_scc1 {l}")
                touch(k); ret(); a.L(l)
            I(f"s_lshl_b32 s44, s{SF}, 2"); I(f"s_add_u32 s44, s44, {FY_OFF}")
            sv = self.save(); self.publish(44, 2); self.restore(sv)
            ret()
        def spf():
            I("s_add_u32 s41, s41, 1"); rarely("s_bitcmp1_b32 s40, s41", lambda: I(f"s_call_b64 s[76:77], {LSITE}"))
        spub = (spf, 12)
        def snap():
            I(f"s_mov_b32 s61, {FY_OFF}"); I(f"buffer_load_dwordx4 v[52:55], v{VL16}, s[{RWS}:{RWS+3}], s61 offen sc1")
        def side_check():
            lo = a.label("SCK"); lb = a.label("SCR")
            def test():
                I("v_and_b32 v52, v52, v53"); I("v_and_b32 v54, v54, v55"); I("v_and_b32 v52, v52, v54"); I("v_and_b32 v52, 2, v52"); I("v_cmp_ne_u32 vcc, 2, v52")
            test(); I(f"s_cbranch_vccnz {lo}"); a.L(lb)
            def spin():
                lp = a.label("SPL")
                I("s_mov_b32 s99, 20000"); a.L(lp)
                I("s_sleep 2"); I(f"buffer_load_dwordx4 v[52:55], v{VL16}, s[{RWS}:{RWS+3}], s61 offen sc1"); I("s_waitcnt vmcnt(0)")
                test(); I(f"s_cbranch_vccz {lb}")
                I("s_sub_u32 s99, s99, 1"); I("s_cmp_lg_u32 s99, 0"); I(f"s_cbranch_scc1 {lp}")
            ool.append((lo, lb, spin))
        m2 = lambda sb, ko: (lambda: rarely(f"s_cmp_eq_u32 s{SC2}, 0", lambda: (snap(), mask_body(sb, ko))))
        LEV = a.label("EVEN"); LODM = a.label("ODDM"); LTRANS = a.label("TRANS"); LP2 = a.label("P2"); LP2B = a.label("P2B"); LDRAIN = a.label("DRAIN")
        self.stamp(8)
        self.ring_n = 0
        R = [rd("k", 0, i) for i in range(8)] + [rd("k", 1, i) for i in range(8)]
        def qrd(i):
            I(f"ds_read_b128 {v(QF+4*i,4)}, v{TMP+1} offset:{1024*i}"); return lg.issue()
        for i in range(4): qrd(i); R[i][0]()
        for i in range(4, 8): tq = qrd(i)
        D = dma4("v") + dma4("k")
        fx = {g: [(R[4+g][0], 4)] for g in range(4)}
        put(fx, 3, [(lambda: lg.wait(tq), 4)])
        for F in range(8, 15): put(fx, last_use(F - 8) + 1, [(R[F][0], 4)])
        for n, d in enumerate(D): put(fx, 2*n, [d])
        sched(qk(0, R, 0, True), fx, [])
        m1(0, 0)()
        pre = init_max()
        fx = {0: [(R[15][0], 4)], 8: [op(f"v_xor_b32 v{VV}, 0x10000, v{VK}"), op(f"v_xor_b32 v{VK}, 0x4000, v{VK}")]}
        sched(qk(1, R, 8), fx, pre + sm_ops(0)[:SPL])
        R = mk_reads()
        head(R, vm4, False, post=[m1(1, 32)])
        svm = self.save()
        self.stamp(9)
        LOD = [a.label("ODD0"), a.label("ODD1")]
        I(f"s_cmp_eq_u32 s{SG}, 1"); I(f"s_cbranch_scc1 {LOD[1]}"); I(f"s_branch {LOD[0]}")
        vm0 = lambda: I("s_waitcnt vmcnt(0)")
        def loops(g):
            LEV = a.label("EVEN"); LP2 = a.label("P2")
            mm = (lambda sb, ko: m1(sb, ko)) if g else (lambda sb, ko: None)
            a.L(LEV)
            R = mk_reads(); head(R, vm4)
            mid(R, "k", [op(f"v_xor_b32 v{VK}, 0x4000, v{VK}")], mb=mm(0, 0), early=[spub], g=g)
            R = mk_reads(); head(R, vm4, post=[m1(1, 32)] if g else [])
            assert self.lg.issued - self.lg.done == svm[2] - svm[3]
            a.L(LOD[g])
            mid(R, "v", [op(f"v_xor_b32 v{VK}, 0xc000, v{VK}")], mb=mm(0, 64), endops=[op(f"s_sub_u32 s{SC1}, s{SC1}, 1")], early=[spub], g=g)
            I(f"s_cmp_lg_u32 s{SC1}, -1"); I(f"s_cbranch_scc1 {LEV}")
            self.stamp(14)
            if g:
                loadq(VQ); I("s_waitcnt lgkmcnt(0)"); I(f"v_xor_b32 v{VK}, 0x4000, v{VK}")
            R = mk_reads(); head(R, vm4, more=mask_ops(1, 96) if g else ())
            mid(R, "k", [op(f"v_xor_b32 v{VK}, 0x8000, v{VK}")], mb=m2(0, -1), trans=bool(g), early=[spub], g=g)
            self.stamp(15)
            I(f"s_cmp_eq_u32 s{SC2}, 0"); I(f"s_cbranch_scc1 {LDRAIN}")
            a.L(LP2)
            R = mk_reads(); head(R, vm08 if g else vm0)
            mid(R, "kv", [op(f"v_xor_b32 v{VK}, 0x8000, v{VK}")], mb=m2(0, -1), endops=[sta] if g else [],
                early=[spub] + ([(fin, 8)] if g else []) + [op(f"s_sub_u32 s{SC2}, s{SC2}, 1")], g=g)
            I(f"s_cmp_lg_u32 s{SC2}, 0"); I(f"s_cbranch_scc1 {LP2}")
        loops(1); I(f"s_branch {LDRAIN}")
        loops(0)
        a.L(LDRAIN)
        self.stamp(10)
        R2 = [rd("v", 0, i) for i in range(8)] + [rd("v", 1, i) for i in range(8)]
        rf = [(f, 4) for f, h in R2]
        ts, ts2, ts3 = self.tail_setup()
        tsa = [x for x in ts if x[1] == 4]; tsl = [x for x in ts if x[1] != 4]
        mk_ = mask_ops(1, -33)
        head(R2, lambda: (vm08(), side_check(), tsl[0][0](), tsl[1][0]()), post=[fin, sta[0]], pre=tsa[:8], more=tsa[8:16] + [tsl[2]] + mk_)
        ts = tsa[16:]
        if self.o.get("dst"): self.stamp(17)
        pre = []; E_ = lambda t: pre.append(op(t))
        E_(f"s_add_u32 s44, s{SWK}, {ML}"); E_(f"v_add_u32 v54, s44, v{VL16}")
        E_(f"s_lshl_b32 s46, s{SW}, 13"); E_(f"v_add_u32 v55, s46, v{VL16}")
        E_(f"s_sub_u32 s54, 15, s{SIDX}"); E_(f"s_lshl_b32 s54, s54, 2"); E_(f"s_add_u32 s54, s54, s{SR}"); E_("s_lshl_b32 s54, s54, 5"); E_(f"s_add_u32 s54, s54, s{SHEAD}")
        E_("s_lshl_b32 s54, s54, 13"); E_(f"s_lshl_b32 s44, s{SG}, 12"); E_("s_add_u32 s54, s54, s44"); E_(f"s_add_u32 s54, s54, {CTX_OFF}")
        def lsum():
            def wml():
                I(f"ds_write_b128 v54, {v(150,4)}"); lg.issue()
            return [op(f"v_mov_b32 v150, v{NM}"), op(f"v_mov_b32 v{LS+1}, v{LS+4}"), (wml, 4)]
        def osend(g, i):
            def f():
                I(f"ds_write_b128 v55, {v(O+32*(1-g)+4*i,4)} offset:{1024*i}"); lg.issue()
            return (f, 16)
        lj = a.label("MGJ"); LMG = [a.label("MG0"), a.label("MG1")]; LFB = a.label("FB1"); LSK = a.label("SKIP"); LS1 = a.label("SK1")
        for c, _ in ts: c()
        I(f"s_lshl_b32 s45, s{SG}, 1"); I(f"s_sub_u32 s45, s{SR}, s45"); I("s_cmp_lt_i32 s45, 1"); I(f"s_cbranch_scc1 {LSK}")
        svd = self.save(); rnd = self.ring_n
        WA_ = self.o.get("wa", 6); tsA, tsB = ts2[:WA_], ts2[WA_:]
        setup_ = pre + ts3; n8 = (len(setup_) + 17) // 18
        fx = {g: setup_[g*n8:(g+1)*n8] for g in range(18)}
        for n, x in enumerate(tsA): put(fx, 1 + n * 17 // max(1, len(tsA)), [x])
        for F in range(7, 15): put(fx, 2*(F - 7) + (2 if F > 7 else 0), [rf[F]])
        sched(pv(0, R2, 0), fx, sm_ops(1))
        check(1)
        rf[15][0]()
        if self.o.get("dst"): self.stamp(20)
        I(f"s_cmp_eq_u32 s{SG}, 1"); I(f"s_cbranch_scc1 {LFB}")
        sv2 = self.save(); PR = 64
        for g in (0, 1):
            if g: a.L(LFB); self.restore(sv2)
            own = O + 32*g; snd = O + 32*(1-g)
            dts = list(range(4*(1-g), 4*(1-g)+4)) + list(range(4*g, 4*g+4))
            fx = {10 + i: [osend(g, i)] for i in range(8)}
            put(fx, 8, lsum())
            for n, x in enumerate(tsB): put(fx, n * 10 // max(1, len(tsB)), [x])
            sched(pv(1, R2, 8, dts, True), fx, self.tail_valu())
            a.L(LMG[g])
            if self.o.get("dst"): self.stamp(18)
            I(f"v_xor_b32 v54, 0x1c00, v54"); I(f"v_xor_b32 v55, 0xe000, v55")
            I("s_waitcnt lgkmcnt(0)"); lg.mark_all_done(); self.barrier()
            if self.o.get("dst"): self.stamp(19)
            I(f"ds_read_b128 {v(96,4)}, v54"); t0 = lg.issue()
            tk = []
            for i in range(8):
                I(f"ds_read_b128 {v(PR+4*i,4)}, v55 offset:{1024*i}"); tk.append(lg.issue())
            lg.wait(t0)
            for q in range(2):
                I(f"v_min_f32 v100, v{150+q}, v{96+q}"); I(f"v_sub_f32 v101, v100, v{150+q}"); I(f"v_sub_f32 v102, v100, v{96+q}")
                I("v_exp_f32 v101, v101"); I("v_exp_f32 v102, v102")
                I(f"v_mul_f32 v103, v101, v{LS+q}"); I(f"v_fmac_f32 v103, v102, v{98+q}"); I("v_rcp_f32 v103, v103")
                b = 104 + 4*q
                I(f"v_mul_f32 v{b}, v101, v103"); I(f"v_mul_f32 v{b+1}, v101, v103"); I(f"v_mul_f32 v{b+2}, v102, v103"); I(f"v_mul_f32 v{b+3}, v102, v103")
            tw = self.tail_writes()
            for q in range(4):
                b = 104 + 4*(q & 1)
                for i in range(8*q, 8*q+8, 2): I(f"v_pk_mul_f32 {v(own+i,2)}, {v(own+i,2)}, {v(b,2)}")
                lg.wait(tk[2*q+1])
                if not self.o.get("twe"):
                    for c in tw[3*q:3*q+3]: c()
                for i in range(8*q, 8*q+8, 2): I(f"v_pk_fma_f32 {v(own+i,2)}, {v(PR+i,2)}, {v(b+2,2)}, {v(own+i,2)}")
                for i in range(4): I(f"v_cvt_pk_bf16_f32 v{snd+4*q+i}, v{own+8*q+2*i}, v{own+8*q+2*i+1}")
                I(f"buffer_store_dwordx4 {v(snd+4*q,4)}, v{VL16}, s[{RWS}:{RWS+3}], s54 offen offset:{coff(q)}{self.st}"); self.tctx = vm.issue()
            if self.o.get("twe"):
                for c in tw: c()
            if not g: I(f"s_branch {lj}")
        def skip_path():
            keep = self.save(); tctx = self.tctx; th = self.th; wt = dict(self.wtok)
            a.L(LSK); self.restore(svd); self.ring_n = rnd
            I("s_cmp_lt_i32 s45, 0"); I(f"s_cbranch_scc1 {LS1}")
            rf[7][0]()
            for f in pv(0, R2[:8], 0): f()
            a.L(LS1)
            for c, _ in setup_ + ts2 + lsum() + self.tail_valu(): c()
            l1 = a.label("SG1"); I(f"s_cmp_eq_u32 s{SG}, 1"); I(f"s_cbranch_scc1 {l1}")
            for g in (0, 1):
                if g: a.L(l1)
                for i in range(8): osend(g, i)[0]()
                I(f"s_branch {LMG[g]}")
            self.restore(keep); self.tctx = tctx; self.th = th; self.wtok = wt
        a.L(lj)
        I("s_setprio 0")
        self.stamp(4)
        def cold():
            skip_path()
            site_code()
            for (lo, lb, body) in ool:
                a.L(lo); body(); I(f"s_branch {lb}")
            a.L("HOT_END")
            for (lr, lb, sb, other) in rare:
                a.L(lr)
                I("s_nop 15")
                rowmax(sb)
                for q in range(2): I(f"v_add_f32 v{TMP+q}, {f2u(BIAS)}, v{TMP+q}"); I(f"v_max_f32 v{TMP+q}, 0, v{TMP+q}"); I(f"v_exp_f32 v{TMP+2+q}, -v{TMP+q}")
                for r in range(8): I(f"v_sub_f32 v{NM+r}, v{NM+r}, v{TMP+(r>>2)}")
                for r in range(16): I(f"v_sub_f32 v{S[sb]+r}, v{S[sb]+r}, v{TMP+(r>>3)}")
                if other:
                    for r in range(16): I(f"v_sub_f32 v{S[1-sb]+r}, v{S[1-sb]+r}, v{TMP+(r>>3)}")
                for r in range(64): I(f"v_mul_f32 v{O+r}, v{O+r}, v{TMP+2+((r>>3)&1)}")
                for r in range(8): I(f"v_mul_f32 v{LS+r}, v{LS+r}, v{TMP+2+(r>>2)}")
                for c, _ in sm_ops(sb): c()
                I("s_nop 1"); I(f"s_branch {lb}")
        self.attn_rare = cold

    HB = 65536; HC = 4416; XB = 136192; YB = 148480
    SC, SJ, SB, SCH, SHB_, SWO, SCX = 34, 35, 36, 37, 38, 39, 40
    WS_ = [16, 24, 32, 40, 176, 184, 48, 56] + list(range(80, 144, 8))
    def tail_setup(self):
        I = self.I; L = []; E = lambda t: L.append((lambda: I(t), 4))
        SC, SJ, SB, SCH, SHB_, SWO, SCX = self.SC, self.SJ, self.SB, self.SCH, self.SHB_, self.SWO, self.SCX
        self.wtok = {}; self.wslot = dict(enumerate(self.WS_))
        E(f"s_lshr_b32 s{SC}, s{SW}, 2"); E(f"s_and_b32 s{SJ}, s{SW}, 3")
        E(f"s_lshl_b32 s{SCH}, s{SF}, 1"); E(f"s_add_u32 s{SCH}, s{SCH}, s{SC}"); E(f"s_lshl_b32 s{SCH}, s{SCH}, 12")
        E(f"s_lshl_b32 s60, s{SJ}, 10"); E("v_add_u32 v50, s60, v6"); E("v_subrev_u32 v51, 16, v50")
        E(f"s_lshl_b32 s63, s{SW}, 18"); E(f"s_lshl_b32 s62, s{SF}, 5"); E("s_add_u32 s63, s63, s62"); E(f"s_add_u32 s63, s63, {KVT_OFF}")
        E("v_lshrrev_b32 v48, 1, v0"); E("v_and_b32 v158, 1, v0" if False else "v_and_b32 v3, 1, v0"); E("v_lshlrev_b32 v49, 13, v48"); E("v_lshl_add_u32 v49, v3, 4, v49")
        def ld(t):
            def f(): I(t); self.th = self.vm.issue()
            L.append((f, 16))
        ld(f"buffer_load_dwordx4 {v(160,4)}, v51, s[{RB}:{RB+3}], s{SCH} offen")
        ld(f"buffer_load_dwordx4 {v(164,4)}, v50, s[{RB}:{RB+3}], s{SCH} offen")
        ld(f"buffer_load_dwordx4 {v(168,4)}, v49, s[{RWS}:{RWS+3}], s63 offen{self.ld}")
        E(f"s_lshl_b32 s{SWO}, s57, 19"); E(f"s_lshl_b32 s60, s{SW}, 15"); E(f"s_add_u32 s{SWO}, s{SWO}, s60"); E(f"s_add_u32 s{SWO}, s{SWO}, {WOT_OFF}")
        E("s_and_b32 s60, s56, 1"); E("s_lshl_b32 s60, s60, 18"); E(f"s_add_u32 s{SWO}, s{SWO}, s60")
        TR_ = self.o.get("trot", 1)
        if TR_ == 0: E("s_mov_b32 s58, 0")
        elif TR_ == 1: E("s_mov_b32 s58, s57")
        else: E("s_and_b32 s58, s56, 6"); E("s_add_u32 s58, s58, s57")
        def w1(i, mt):
            if mt == 0 and i % 2 == 0: self.wadr(i)
            I(f"buffer_load_dwordx4 {v(self.WS_[i]+4*mt,4)}, v6, s[{RWS}:{RWS+3}], s59 offen offset:{(i&1)*2048+mt*1024}{self.ld}"); self.wtok[i] = self.vm.issue()
        L2 = [(lambda i=i, mt=mt: w1(i, mt), 16) for i in range(self.o.get("we", 6)) for mt in range(2)]
        L3 = []; L, Lx = L3, L
        E = lambda t: L3.append((lambda: I(t), 4))
        E(f"s_mul_i32 s{SB}, s{SC}, 6144"); E(f"s_add_u32 s{SB}, s{SB}, {self.XB}")
        E(f"s_mul_i32 s{SHB_}, s{SC}, {8*self.HC}"); E(f"s_add_u32 s{SHB_}, s{SHB_}, {self.HB}")
        E(f"s_xor_b32 s{SCX}, s56, 1"); E(f"s_lshl_b32 s{SCX}, s{SCX}, 19"); E(f"s_lshl_b32 s60, s{SW}, 14"); E(f"s_add_u32 s{SCX}, s{SCX}, s60"); E(f"s_add_u32 s{SCX}, s{SCX}, {CTX_OFF}")
        E("s_and_b32 s60, s56, 1"); E("s_lshl_b32 s60, s60, 17"); E(f"s_add_u32 s{SCX}, s{SCX}, s60")
        return Lx, L2, L3
    def wreg(self, i):
        return self.WS_[i % len(self.WS_)]
    def wload(self, i):
        I = self.I; r = self.wslot[i]
        I(f"s_add_u32 s61, s{self.SWO}, {i*2048}")
        for mt in range(2):
            I(f"buffer_load_dwordx4 {v(r+4*mt,4)}, v6, s[{RWS}:{RWS+3}], s61 offen offset:{mt*1024}{self.ld}"); self.wtok[i] = self.vm.issue()
    def wadr(self, i):
        I = self.I
        I(f"s_add_u32 s59, s58, {i >> 1}"); I("s_and_b32 s59, s59, 7"); I("s_lshl_b32 s59, s59, 12"); I(f"s_add_u32 s59, s59, s{self.SWO}")
    def tail_valu(self):
        I = self.I; HC = self.HC; L = []; E = lambda t: L.append((lambda: I(t), 4))
        SJ, SB, SHB_ = self.SJ, self.SB, self.SHB_
        Ee, Eo, Oe, Oo = 160, 113, 122, 131
        E(f"s_add_u32 s60, s{SHB_}, 64"); E("v_add_u32 v138, s60, v50")
        E("v_and_b32 v51, 3, v48"); E("v_mul_u32_u24 v139, 1536, v51"); E("v_lshrrev_b32 v53, 2, v48"); E("v_lshl_add_u32 v139, v53, 4, v139")
        E("v_and_b32 v53, 1, v0"); E("v_mul_u32_u24 v53, 6144, v53"); E(f"s_lshl_b32 s60, s{SW}, 7"); E(f"s_add_u32 s60, s60, {self.XB + 512}"); E("v_add3_u32 v139, v139, v53, s60")
        E("v_and_b32 v51, 3, v0")
        for r in range(2): E(f"v_mov_b64 {v(172+2*r,2)}, 0")
        E("v_bfe_u32 v140, v0, 2, 3"); E(f"v_mul_u32_u24 v140, {HC}, v140"); E("v_lshl_add_u32 v140, v51, 4, v140"); E(f"v_add_u32 v140, s{SHB_}, v140")
        E(f"s_mul_i32 s60, s{SJ}, 1536"); E(f"s_add_u32 s60, s60, s{SB}"); E("v_lshl_add_u32 v141, v0, 3, s60")
        L.append((lambda: self.vm.wait(self.th - 1), 4))
        for k in range(7): E(f"v_alignbit_b32 v{Oe+k}, v{Ee+k+1}, v{Ee+k}, 16")
        for k in range(1, 7): E(f"v_alignbit_b32 v{Oo+k}, v{Ee+k+1}, v{Ee+k}, 16")
        for k in range(1, 7): E(f"v_mov_b32 v{Eo+k}, v{Ee+k}")
        return L
    def tail_writes(self):
        I = self.I; lg = self.lg; HC = self.HC; L = []
        Ee, Eo, Oe, Oo = 160, 113, 122, 131
        def W(t, pre=None):
            def f():
                if pre: pre()
                I(t); lg.issue()
            L.append(f)
        for r in range(8):
            sft = 1 + r; k = sft >> 1
            base = ((Oe, Oo) if sft & 1 else (Ee, Eo))[k & 1]
            W(f"ds_write_b128 v138, {v(base+k,4)} offset:{r*HC}")
        W(f"ds_write_b128 v140, {v(172,4)}"); W(f"ds_write_b64 v141, {v(172,2)}")
        W(f"ds_write_b128 v139, {v(168,4)}", lambda: self.vm.wait(self.th))
        return L
    def tailp(self):
        a = self.a; I = self.I; vm = self.vm; lg = self.lg
        HB, HC, YB = self.HB, self.HC, self.YB
        SC, SJ, SB, SCH, SHB_, SWO, SCX = self.SC, self.SJ, self.SB, self.SCH, self.SHB_, self.SWO, self.SCX
        ACC = 192; FRS = [224, 240, 64]; RD_ = 224; OACC = 192; YT = self.XB
        VL16, VA, VB, T, VP, VPA, VO, GR, VW1 = 6, 4, 5, 12, 7, 8, 9, 10, 11
        WSL = self.WS_; CSL = [144, 152, 160, 168, 64, 72]
        assert len(WSL) == 16
        I(f"s_lshr_b32 s53, s56, 1"); I("s_lshl_b32 s53, s53, 10"); I("s_and_b32 s44, s56, 1"); I("s_lshl_b32 s44, s44, 9"); I("s_add_u32 s53, s53, s44")
        I(f"s_lshr_b32 s44, s{SW}, 1"); I("s_lshl_b32 s44, s44, 7"); I("s_add_u32 s53, s53, s44"); I(f"s_and_b32 s44, s{SW}, 1"); I("s_lshl_b32 s44, s44, 3")
        I("s_add_u32 s53, s53, s44"); I(f"s_add_u32 s53, s53, {FC_OFF}")
        I(f"v_and_b32 v{VPA}, 1, v0"); I(f"v_lshlrev_b32 v{VPA}, 2, v{VPA}")
        PUBN = self.o.get("pubn", 4)
        I(f"s_lshr_b32 s45, s{SHEAD}, 2"); I("s_lshl_b32 s45, s45, 7"); I(f"s_and_b32 s44, s{SHEAD}, 3"); I("s_lshl_b32 s44, s44, 2"); I("s_add_u32 s45, s45, s44")
        I(f"s_sub_u32 s44, 15, s{SIDX}"); I("s_lshl_b32 s44, s44, 10"); I("s_add_u32 s46, s44, s45"); I(f"s_add_u32 s46, s46, {FC_OFF}")
        I(f"s_lshl_b32 s44, s{SIDX}, 10"); I("s_add_u32 s47, s44, s45"); I(f"s_add_u32 s47, s47, {FC_OFF}")
        self.srd(RC, "out", 2*MB); self.srd(RD, "q", 2*MB)
        I(f"s_lshl_b32 s44, s{SF}, 2"); I(f"s_load_dword s55, s[{P['ssmD']}:{P['ssmD']+1}], s44")
        I(f"v_and_b32 v{T}, 15, v0"); I(f"v_lshrrev_b32 v{T+1}, 4, v0")
        I(f"v_and_b32 v{T+2}, 7, v0"); I(f"v_mul_u32_u24 v{VA}, {HC}, v{T+2}")
        I(f"v_bfe_u32 v{T+2}, v0, 3, 1"); I(f"v_sub_u32 v{T+2}, v{T+2}, v{T+1}"); I(f"v_lshl_add_u32 v{VA}, v{T+2}, 4, v{VA}")
        I(f"s_lshl_b32 s43, s{SJ}, 8"); I(f"s_add_u32 s43, s43, s{SHB_}"); I("s_add_u32 s43, s43, 64"); I(f"v_add_u32 v{VA}, s43, v{VA}")
        I(f"s_lshl_b32 s43, s{SJ}, 6"); I(f"s_sub_u32 s43, s{SB}, s43"); I(f"s_add_u32 s43, s43, {(32-3)*16}")
        I(f"v_lshl_add_u32 v{VB}, v{T}, 4, s43"); I(f"v_mul_u32_u24 v{T+2}, 1536, v{T+1}"); I(f"v_add_u32 v{VB}, v{VB}, v{T+2}")
        I(f"s_lshl_b32 s51, s{SW}, 13"); I(f"s_xor_b32 s52, s{SCX}, 0x80000")
        I("s_waitcnt lgkmcnt(0)"); lg.mark_all_done(); self.barrier()
        self.stamp(5)
        wtok = dict(self.wtok); ctok = {}; cslot = dict(enumerate(CSL))
        def wload(k):
            if k % 2 == 0: self.wadr(k)
            for mt in range(2):
                I(f"buffer_load_dwordx4 {v(WSL[k]+4*mt,4)}, v{VL16}, s[{RWS}:{RWS+3}], s59 offen offset:{(k&1)*2048+mt*1024}{self.ld}"); wtok[k] = vm.issue()
        def cload(i):
            I(f"s_add_u32 s62, s58, {i & 7}"); I("s_and_b32 s62, s62, 7"); I("s_lshl_b32 s62, s62, 11"); I(f"s_add_u32 s62, s62, s{52 if i >= 16 else SCX}")
            if i & 8: I("s_add_u32 s62, s62, 0x40000")
            for qt in range(2):
                I(f"buffer_load_dwordx4 {v(cslot[i]+4*qt,4)}, v{VL16}, s[{RWS}:{RWS+3}], s62 offen offset:{qt*1024}{self.ld}"); ctok[i] = vm.issue()
        wl = [k for k in range(16) if k not in wtok]
        BS = [224, 240]; AS = list(range(160, 176, 4)) + list(range(64, 80, 4)); NA = len(AS)
        seq = [(dd, m, bt) for dd in range(4) for (m, bt) in ((0, 0), (3, 0), (0, 1), (3, 1), (1, 0), (2, 0), (1, 1), (2, 1))]
        atok = {}; btok = {}
        def rda(n):
            if n >= len(seq): return
            dd, m, bt = seq[n]
            I(f"ds_read_b128 {v(AS[n % NA],4)}, v{VA} offset:{64*dd + 1024*m + 32*bt}"); atok[n] = lg.issue()
        def rdb(dd, n):
            if dd >= 4: return
            I(f"ds_read_b128 {v(BS[dd & 1]+4*n,4)}, v{VB} offset:{(3-dd)*16 + 256*n}"); btok[(dd, n)] = lg.issue()
        rda(0)
        for n in range(4): rdb(0, n)
        for n in range(1, NA - 1): rda(n)
        seen = set()
        for n, (dd, m, bt) in enumerate(seq):
            for nn in range(4 - m):
                lg.wait(max(atok[n], btok[(dd, nn)]))
                key = (m + nn, bt); d = v(ACC + 8*key[0] + 4*bt, 4)
                I(f"v_mfma_f32_16x16x32_bf16 {d}, {v(AS[n % NA],4)}, {v(BS[dd & 1]+4*nn,4)}, {d if key in seen else '0'}"); seen.add(key)
                if nn == 0:
                    rda(n + NA - 1)
                    if 1 <= (n & 7) <= 4: rdb(dd + 1, (n & 7) - 1)
            if n & 1:
                h_ = n >> 1
                if h_ == PUBN:
                    vm.wait(self.tctx); self.barrier(); self.publish(46); self.publish(47)
                if h_ >= self.o.get("wst", 2) and len(wl) > self.o.get("wkeep", 2): wload(wl.pop(0))
                if h_ == self.o.get("p1", 12): tc1 = self.poll_issue(VP, VPA, "s53")
        I(f"v_add_u32 v{T+2}, s51, v{VL16}")
        for i in range(8):
            I(f"ds_write_b128 v{T+2}, {v(ACC+4*i,4)} offset:{1024*i}"); lg.issue()
        while wl: wload(wl.pop(0))
        I(f"s_lshl_b32 s43, s{SC}, 15"); I(f"s_lshl_b32 s44, s{SJ}, 11"); I("s_add_u32 s43, s43, s44"); I(f"v_add_u32 v{T+2}, s43, v{VL16}")
        I(f"s_lshl_b32 s44, s{SJ}, 8"); I(f"s_add_u32 s44, s44, s{SB}"); I("s_add_u32 s44, s44, 520")
        I(f"v_lshl_add_u32 v{T+3}, v{T}, 4, s44"); I(f"v_and_b32 v{VA}, 1, v{T+1}"); I(f"v_lshlrev_b32 v{VA}, 3, v{VA}"); I(f"v_sub_u32 v{T+3}, v{T+3}, v{VA}")
        I(f"v_lshrrev_b32 v{VA}, 1, v{T+1}"); I(f"v_mul_u32_u24 v{VA}, 1536, v{VA}"); I(f"v_add_u32 v{T+3}, v{T+3}, v{VA}")
        I(f"v_lshlrev_b32 v{VB}, 6, v{T}"); I(f"v_lshl_add_u32 v{VB}, v{T+1}, 3, v{VB}")
        I(f"s_add_u32 s45, s{SWK}, {YB}"); I(f"v_add_u32 v{VB}, s45, v{VB}")
        I("s_lshl_b32 s43, s55, 16"); I("s_and_b32 s44, s55, 0xffff0000"); I(f"s_cmp_eq_u32 s{SC}, 0"); I("s_cselect_b32 s55, s43, s44")
        lg.wait(lg.issued); self.barrier()
        self.stamp(12)
        for p in range(4):
            for gq in range(2):
                I(f"ds_read_b128 {v(RD_+8*p+4*gq,4)}, v{T+2} offset:{8192*p+1024*gq}"); lg.issue()
        for gq in range(2):
            I(f"ds_read_b64 {v(ACC+2*gq,2)}, v{T+3} offset:{3072*gq}"); lg.issue()
        le = a.label("NE")
        vm.wait(tc1); I(f"v_and_b32 v{VP}, 1, v{VP}"); I(f"v_cmp_ne_u32 vcc, 1, v{VP}"); I("s_mov_b32 s50, 0"); I(f"s_cbranch_vccnz {le}")
        sv = self.save(); I("s_mov_b32 s50, 1")
        for i in range(len(CSL)): cload(i)
        self.restore(sv); a.L(le)
        lg.wait(lg.issued)
        for i in range(0, 8, 2):
            I(f"v_pk_add_f32 {v(RD_+i,2)}, {v(RD_+i,2)}, {v(RD_+8+i,2)}"); I(f"v_pk_add_f32 {v(RD_+16+i,2)}, {v(RD_+16+i,2)}, {v(RD_+24+i,2)}")
        for i in range(0, 8, 2): I(f"v_pk_add_f32 {v(RD_+i,2)}, {v(RD_+i,2)}, {v(RD_+16+i,2)}")
        for gq in range(2):
            for r in range(4):
                srcr = ACC + 2*gq + (1 - (r >> 1))
                I(f"v_lshlrev_b32 v{ACC+8}, 16, v{srcr}" if r & 1 else f"v_and_b32 v{ACC+8}, 0xffff0000, v{srcr}")
                I(f"v_fma_f32 v{RD_+4*gq+r}, v{ACC+8}, s55, v{RD_+4*gq+r}")
        for i in range(4): I(f"v_cvt_pk_bf16_f32 v{ACC+12+i}, v{RD_+2*i}, v{RD_+2*i+1}")
        for gq in range(2):
            I(f"ds_write_b64 v{VB}, {v(ACC+12+2*gq,2)} offset:{32*gq}"); lg.issue()
        I(f"v_and_b32 v{T+2}, 15, v0"); I(f"v_lshrrev_b32 v{T+1}, 4, v0"); I(f"v_lshlrev_b32 v{T+1}, 1, v{T+1}"); I(f"v_xor_b32 v{T+1}, v{T+1}, v{T+2}"); I(f"v_lshlrev_b32 v{T+1}, 4, v{T+1}")
        I(f"v_lshl_add_u32 v{VA}, v{T+2}, 8, v{T+1}"); I(f"v_add_u32 v{VA}, s51, v{VA}")
        I(f"s_lshr_b32 s48, s{SW}, 1"); I("s_lshl_b32 s48, s48, 4"); I(f"s_and_b32 s41, s{SW}, 1"); I("s_lshl_b32 s42, s41, 3")
        I(f"v_lshrrev_b32 v{T}, 4, v0"); I(f"v_lshl_add_u32 v{T+1}, v{T}, 1, s42"); I(f"v_xor_b32 v{T+1}, v{T+1}, v{T+2}"); I(f"v_lshlrev_b32 v{T+1}, 4, v{T+1}")
        I("s_and_b32 s43, s48, 16"); I(f"v_add_u32 v{T+3}, s43, v{T+2}"); I(f"v_lshl_add_u32 v{VW1}, v{T+3}, 8, v{T+1}")
        I("s_lshr_b32 s43, s48, 5"); I("s_lshl_b32 s43, s43, 16"); I(f"v_add_u32 v{VW1}, s43, v{VW1}")
        lg.wait(lg.issued); I(f"v_xor_b32 v{VB}, 16, v{VW1}"); self.barrier()
        ly = a.label("NY")
        I(f"s_cmp_lg_u32 s{SW}, 0"); I(f"s_cbranch_scc1 {ly}")
        I(f"v_add_u32 v{T}, {YB}, v{VL16}")
        for i in range(8): I(f"ds_read_b128 {v(RD_+4*i,4)}, v{T} offset:{1024*i}")
        I(f"s_lshl_b32 s44, s{SF}, 13"); I(f"s_add_u32 s44, s44, {YT_OFF}"); I("s_add_u32 s45, s44, 4096")
        I("s_waitcnt lgkmcnt(0)")
        for i in range(8): I(f"buffer_store_dwordx4 {v(RD_+4*i,4)}, v{VL16}, s[{RWS}:{RWS+3}], s{44+(i>>2)} offen offset:{1024*(i&3)}{self.st}")
        a.L(ly)
        ll = a.label("NL")
        I("s_cmp_eq_u32 s50, 1"); I(f"s_cbranch_scc1 {ll}")
        self.poll_check(VP, VPA, "s53", 1)
        for i in range(len(CSL)): cload(i)
        a.L(ll)
        self.stamp(6)
        def put_ops(st):
            L = []
            for mt in range(4):
                def f(mt=mt):
                    I(f"v_xor_b32 v{T+3}, {(8*(mt>>1)+(mt&1))*16 + 0x10000*st}, v{VA}")
                    for qt in range(2):
                        I(f"ds_write_b128 v{T+3}, {v(OACC+32*st+8*mt+4*qt,4)} offset:{4096*qt}"); lg.issue()
                L.append(f)
            return L
        def sum_partials(mid=None):
            tk = []
            for p in range(8):
                for hh in range(2):
                    I(f"ds_read_b128 {v(OACC+8*p+4*hh,4)}, v{(VW1, VB)[hh]} offset:{8192*p}"); lg.issue()
                tk.append(lg.issued)
                if p == 5 and mid: mid()
            for p in range(1, 8):
                lg.wait(tk[p])
                for e in range(0, 8, 2): I(f"v_pk_add_f32 {v(OACC+e,2)}, {v(OACC+e,2)}, {v(OACC+8*p+e,2)}")
        ymark = vm.issued; ypub = False; pm = {}; ppub = False; free = []; nc = len(CSL); XR = WSL[0]; PR_ = WSL[1]
        TS = [OACC + 32 + 8*n for n in range(4)]; ptk = {}
        def prd(p):
            r = TS[0] if p == 0 else TS[1 + (p - 1) % 3]
            for hh in range(2):
                I(f"ds_read_b128 {v(r+4*hh,4)}, v{(VW1, VB)[hh]} offset:{8192*p}"); ptk[p] = lg.issue()
        def padd(p):
            lg.wait(ptk[p]); r = TS[1 + (p - 1) % 3]
            for e in range(0, 8, 2): I(f"v_pk_add_f32 {v(TS[0]+e,2)}, {v(TS[0]+e,2)}, {v(r+e,2)}")
            if p + 3 < 8: prd(p + 3)
        def pst():
            I(f"s_lshl_b32 s44, s{SF}, 14"); I(f"s_lshl_b32 s45, s{SW}, 11"); I("s_add_u32 s54, s44, s45"); I(f"s_add_u32 s54, s54, {PP_OFF}")
            for hh in range(2):
                I(f"buffer_store_dwordx4 {v(TS[0]+4*hh,4)}, v{VL16}, s[{RWS}:{RWS+3}], s54 offen offset:{1024*hh}{self.st}"); pm["t"] = vm.issue()
        B1 = self.o.get("b1", 18); PS = self.o.get("ps", 21)
        for i2 in range(0, 32, 2):
            st = (i2 >> 3) & 1; J = i2 & 7; fill = []
            if i2 in (8, 24): fill = put_ops(0)
            if i2 == 16: fill = put_ops(1)
            if i2 == 24: self.barrier()
            if i2 == B1:
                lg.wait(lg.issued); self.barrier()
                for p in range(4): prd(p)
                fill = [lambda p=p: padd(p) for p in range(1, 8)]
                I(f"s_lshl_b32 s53, s57, 7"); I(f"s_lshl_b32 s42, s{SW}, 4"); I("s_add_u32 s53, s53, s42"); I(f"s_add_u32 s53, s53, {FY_OFF}")
                I(f"v_and_b32 v{VPA}, 3, v0"); I(f"v_lshlrev_b32 v{VPA}, 2, v{VPA}")
                tf = self.poll_issue(VP, VPA, "s53")
            if i2 == 26:
                I(f"v_and_b32 v{T+1}, 15, v0"); I(f"s_lshl_b32 s45, s56, 6"); I("s_add_u32 s45, s45, s48"); I(f"v_add_u32 v{T+1}, s45, v{T+1}")
                I(f"v_lshlrev_b32 v{T+2}, 2, v{T+1}"); I(f"s_mov_b32 s45, {G_OFF}")
                I(f"buffer_load_dword v{GR}, v{T+2}, s[{RWS}:{RWS+3}], s45 offen{self.ld}"); vm.issue()
                I(f"v_lshrrev_b32 v{T+2}, 4, v0"); I(f"v_lshlrev_b32 v{T+2}, 4, v{T+2}"); I(f"v_lshl_add_u32 v{VO}, v{T+1}, 10, v{T+2}")
                I("s_lshl_b32 s49, s41, 6"); I(f"s_lshl_b32 s45, s57, 7"); I("s_add_u32 s49, s49, s45")
                I(f"buffer_load_dwordx4 {v(XR,4)}, v{VO}, s[{RD}:{RD+3}], s49 offen"); vm.issue()
                vm.wait(tf); self.poll_check(VP, VPA, "s53", 1)
                I(f"v_lshrrev_b32 v{T}, 3, v0"); I(f"v_and_b32 v{T+1}, 7, v0"); I(f"v_lshlrev_b32 v{T+1}, 4, v{T+1}")
                I(f"v_lshl_add_u32 v{T}, v{T}, 12, v{T+1}")
                I(f"s_add_u32 m0, s{SWK}, {YT}")
                I(f"s_lshl_b32 s44, s57, 18"); I(f"s_lshl_b32 s45, s{SW}, 15"); I("s_add_u32 s44, s44, s45")
                I(f"s_lshl_b32 s45, s56, 7"); I("s_add_u32 s44, s44, s45"); I(f"s_add_u32 s44, s44, {YT_OFF}")
                I(f"buffer_load_dwordx4 v{T}, s[{RWS}:{RWS+3}], s44 offen{self.ld} lds"); vm.issue()
            vm.wait(max(ctok[i2+1], wtok[2*J+3]))
            if not ypub and vm.done > ymark:
                ypub = True; I(f"s_lshl_b32 s44, s{SF}, 2"); I(f"s_add_u32 s44, s44, {FY_OFF}"); self.publish(44, 3)
            if pm and not ppub and vm.done >= pm["t"]:
                ppub = True
                I(f"s_lshl_b32 s44, s{SF}, 7"); I(f"s_lshl_b32 s45, s{SW}, 2"); I("s_add_u32 s44, s44, s45"); I(f"s_add_u32 s44, s44, {FP_OFF}")
                I("v_mov_b32 v2, 1"); I("v_mov_b32 v3, 0"); I(f"buffer_store_dword v2, v3, s[{RWS}:{RWS+3}], s44 offen sc1"); vm.issue()
            if i2 == 30:
                I(f"s_xor_b32 s53, s{SF}, 32"); I("s_lshl_b32 s53, s53, 7"); I(f"s_lshl_b32 s42, s{SW}, 2"); I("s_add_u32 s53, s53, s42"); I(f"s_add_u32 s53, s53, {FP_OFF}")
                I(f"v_mov_b32 v{VPA}, 0")
                if self.o.get("pe"): tp = self.poll_issue(VP, VPA, "s53")
            M = []
            for mt in range(4):
                for qt in range(2):
                    for u in range(2):
                        d = v(OACC + 32*st + 8*mt + 4*qt, 4)
                        M.append(lambda d=d, mt=mt, qt=qt, u=u: I(f"v_mfma_f32_16x16x32_bf16 {d}, {v(WSL[2*(J+u) + (mt >> 1)]+4*(mt & 1),4)}, {v(cslot[i2+u]+4*qt,4)}, {'0' if J + u == 0 else d}"))
            self.stream(M, [(1, 16, fill)] if fill else [])
            free += [cslot[i2], cslot[i2+1]]
            while free and nc < 32:
                cslot[nc] = free.pop(0); cload(nc); nc += 1
            if i2 + 1 == PS or i2 == PS: pst()
        assert ypub and ppub
        self.stamp(7)
        if not self.o.get("pe"):
            tp = self.poll_issue(VP, VPA, "s53")
            for f in put_ops(1): f()
        vm.wait(tp); self.poll_check(VP, VPA, "s53", 1)
        if self.o.get("ostamp"): self.stamp(20)
        I("s_xor_b32 s54, s54, 0x80000")
        for hh in range(2):
            I(f"buffer_load_dwordx4 {v(PR_+4*hh,4)}, v{VL16}, s[{RWS}:{RWS+3}], s54 offen offset:{1024*hh}{self.ld}"); tpp = vm.issue()
        if self.o.get("pe"):
            for f in put_ops(1): f()
        I(f"v_lshrrev_b32 v{T}, 4, v0"); I("s_lshl_b32 s42, s41, 5"); I(f"v_lshl_add_u32 v{T}, v{T}, 3, s42"); I(f"v_bfe_u32 v{T+1}, v0, 2, 2")
        I(f"v_add_u32 v{T}, v{T}, v{T+1}"); I(f"v_lshlrev_b32 v{T}, 7, v{T}"); I(f"v_and_b32 v{T+1}, 3, v0")
        I(f"v_lshl_add_u32 v{T}, v{T+1}, 3, v{T}"); I("s_lshl_b32 s42, s48, 1"); I(f"s_add_u32 s42, s42, {YT}"); I(f"v_add_u32 v{T}, s42, v{T}")
        lg.wait(lg.issued); self.barrier()
        I(f"ds_read_b64_tr_b16 {v(100,2)}, v{T}"); lg.issue()
        I(f"ds_read_b64_tr_b16 {v(102,2)}, v{T} offset:512"); ty2 = lg.issue()
        def mix():
            lg.wait(ty2)
            for e in range(8):
                if e & 1: I(f"v_and_b32 v104, 0xffff0000, v{XR+(e>>1)}"); I(f"v_and_b32 v105, 0xffff0000, v{100+(e>>1)}")
                else: I(f"v_lshlrev_b32 v104, 16, v{XR+(e>>1)}"); I(f"v_lshlrev_b32 v105, 16, v{100+(e>>1)}")
                I(f"v_mul_f32 v{112+e}, v104, v105"); I(f"v_mul_f32 v{112+e}, v{112+e}, v{GR}")
            I(f"v_sub_f32 v{GR}, 1.0, v{GR}")
        sum_partials(mix)
        vm.wait(tpp)
        for e in range(0, 8, 2): I(f"v_pk_add_f32 {v(OACC+e,2)}, {v(OACC+e,2)}, {v(PR_+e,2)}")
        for e in range(8): I(f"v_fmac_f32 v{112+e}, v{OACC+4*(e&1)+(e>>1)}, v{GR}")
        for e in range(4): I(f"v_cvt_pk_bf16_f32 v{108+e}, v{112+2*e}, v{112+2*e+1}")
        I(f"buffer_store_dwordx4 {v(108,4)}, v{VO}, s[{RC}:{RC+3}], s49 offen sc1"); vm.issue()
        self.stamp(16)
        if self.o.get("echo"):
            lp = a.label("EC")
            I("s_sub_u32 s100, s100, s96")
            if self.o.get("cyc"): I("s_lshr_b32 s100, s100, 4")
            I("s_memrealtime s[96:97]"); I("s_waitcnt lgkmcnt(0)")
            a.L(lp)
            I("s_memrealtime s[98:99]"); I("s_waitcnt lgkmcnt(0)"); I("s_sub_u32 s98, s98, s96"); I("s_cmp_lt_u32 s98, s100"); I(f"s_cbranch_scc1 {lp}")
        if self.o.get("dbgout") is not None:
            l = a.label("DB")
            I(f"s_cmp_lg_u32 s2, {self.o['dbgout']}"); I(f"s_cbranch_scc1 {l}"); I(f"s_cmp_lg_u32 s{SW}, 0"); I(f"s_cbranch_scc1 {l}")
            I("s_waitcnt vmcnt(0)")
            order = [0, 1, 2, 3, 8, 10, 11, 4, 5, 12, 6, 7, 16]
            I("v_mov_b32 v20, 0")
            for j, i in enumerate(order):
                I(f"s_mov_b32 s44, {4*i}"); I(f"v_writelane_b32 v20, s44, {j}")
            I(f"s_lshl_b32 s44, s2, 11"); I(f"s_add_u32 s44, s44, {STAMP_OFF}")
            I(f"buffer_load_dword v21, v20, s[{RWS}:{RWS+3}], s44 offen sc1"); I("s_waitcnt vmcnt(0)")
            I("v_readfirstlane_b32 s45, v21"); I("v_subrev_u32 v21, s45, v21")
            self.srd(RDBG, "dbg", 64); I("v_lshlrev_b32 v22, 2, v0")
            I(f"buffer_store_dword v21, v22, s[{RDBG}:{RDBG+3}], 0 offen")
            a.L(l)

HEADER = """; One persistent launch, one 8-wave workgroup per CU (generated by gen/gen_final.py, hand-designed schedule).
"""
def build(opts):
    g = G(opts); k = NAME + "_kernel"
    g.begin(k); g.a.T("; MARK p"); g.proj(); g.a.T("; MARK a"); g.attn(); g.a.T("; MARK t"); g.tailp(); g.end(); g.a.T("; MARK a"); g.attn_rare(); g.a.T("; MARK t"); g.a.L("CODE_END"); g.a.I("s_endpgm")
    n = g.a.fix_hazards()
    txt = "; @launch grid=(256,1,1) block=(512,1,1) lds=163840\n" + HEADER
    txt += '.amdgcn_target "amdgcn-amd-amdhsa--gfx950"\n.text\n' + g.a.text()
    txt += f""".section .rodata,"a"
.p2align 6
.amdhsa_kernel {k}
  .amdhsa_next_free_vgpr 256
  .amdhsa_next_free_sgpr 102
  .amdhsa_accum_offset 256
  .amdhsa_group_segment_fixed_size 0
  .amdhsa_kernarg_size 128
  .amdhsa_user_sgpr_count 2
  .amdhsa_user_sgpr_kernarg_segment_ptr 1
  .amdhsa_system_sgpr_workgroup_id_x 1
.end_amdhsa_kernel
"""
    print(f"instructions {sum(1 for it in g.a.items if it[0] == 'i')}, nops inserted {n}", file=sys.stderr)
    return txt

if __name__ == "__main__":
    opts = {}
    for x in sys.argv[2:]:
        if "=" in x: k_, v_ = x.split("="); opts[k_] = int(v_)
        else: opts[x] = True
    open(sys.argv[1], "w").write(build(opts))
```

```python
import sys, math, struct
sys.path.insert(0, "gen")
from asmlib import *

NAME = "gated_mix__ssm_conv_h3__compressed_kv_cla__prompt"
MB = 1 << 20
KV_OFF, Q_OFF, CTX_OFF, KVT_OFF, YT_OFF, G_OFF = 0, 32*MB, 48*MB, 64*MB, 66*MB, 68*MB
XC_OFF = 40*MB
PP_OFF = 40*MB
WOT_OFF = 32*MB
FLG_OFF = 68*MB + 65536
FK_OFF, FY_OFF, FC_OFF, FP_OFF = FLG_OFF, FLG_OFF + 4096, FLG_OFF + 8192, FLG_OFF + 32768
STAMP_OFF = 69*MB
WS_SIZE = 70*MB
P = dict(q=64, k=66, v=68, shift=70, ssmk=72, ssmD=74, bx=76, ckv=78, wq=80, wuk=82, wuv=84, wo=86, gate=88, out=90, dbg=92, ws=94)
SW, SHEAD, SIDX, SWK, SF = 3, 4, 5, 6, 7
RA, RB, RC, RWS, RD, RE, RT, RDBG = 8, 12, 16, 20, 24, 28, 56, 60
MFMA = "v_mfma_f32_32x32x16_bf16"
LOG2E = 1.4426950408889634
F_KV, F_CA, F_CB, F_Y = 1, 2, 4, 8
def f2u(x): return "0x%08x" % struct.unpack("<I", struct.pack("<f", x))[0]
def rep4(b): return b * 0x01010101

class G:
    def __init__(self, opts):
        self.a = Asm(); self.o = opts
        self.GSH, self.FSH = (8, 10) if opts.get("lin") else (11, 8)
        self.vm = Cnt(self.a, "vmcnt", 63); self.lg = Cnt(self.a, "lgkmcnt", 15)
        self.st = "" if opts.get("plainst") else (" sc1 nt" if opts.get("ntst") else " sc1"); self.ld = "" if opts.get("plainld") else " sc1"
    def I(self, t): self.a.I(t)
    def srd(self, r, ptr, nbytes):
        I = self.I
        I(f"s_mov_b32 s{r}, s{P[ptr]}"); I(f"s_mov_b32 s{r+1}, s{P[ptr]+1}")
        I(f"s_mov_b32 s{r+2}, {nbytes}"); I(f"s_mov_b32 s{r+3}, 0x00020000")
    def save(self): return (self.vm.issued, self.vm.done, self.lg.issued, self.lg.done)
    def restore(self, s_): self.vm.issued, self.vm.done, self.lg.issued, self.lg.done = s_
    def stream(self, mf, fills):
        n = len(mf); slots = [[] for _ in range(n + 1)]
        for (s0, e0, cl) in fills:
            m = e0 - s0
            for j, c in enumerate(cl): slots[s0 + 1 + (j * m) // len(cl)].append(c)
        for c in slots[0]: c()
        for i in range(n):
            mf[i]()
            for c in slots[i+1]: c()
    def stamp(self, i, dyn=None):
        if self.o.get("echo") == i:
            self.I("s_memtime s[100:101]" if self.o.get("cyc") else "s_memrealtime s[100:101]"); self.I("s_waitcnt lgkmcnt(0)")
        if not self.o.get("stamp"): return
        I = self.I
        I("s_memrealtime s[96:97]"); I("s_memtime s[100:101]")
        I("s_lshl_b32 s98, s2, 3"); I(f"s_add_u32 s98, s98, s{SW}"); I("s_lshl_b32 s98, s98, 8")
        I(f"s_add_u32 s98, s98, {STAMP_OFF + 4*i}")
        if dyn is not None:
            I(f"s_lshl_b32 s99, s{dyn}, 4"); I("s_add_u32 s98, s98, s99")
        I("s_waitcnt lgkmcnt(0)")
        I("v_mov_b32 v2, s96"); I("v_mov_b32 v3, 0")
        I(f"buffer_store_dword v2, v3, s[{RWS}:{RWS+3}], s98 offen")
        I("v_mov_b32 v2, s100")
        I(f"buffer_store_dword v2, v3, s[{RWS}:{RWS+3}], s98 offen offset:128")
    OOB = 0x40000000
    def publish(self, soff, val=1, srd=RWS, byte=False, idx=None):
        I = self.I
        self.oob_sel()
        if idx is not None: I(f"s_and_b32 s98, s{SIDX}, 3"); I(f"s_cmp_eq_u32 s98, {idx}"); I(f"s_cselect_b32 s99, s99, {self.OOB}")
        I(f"v_mov_b32 v2, {val}"); I("v_mov_b32 v3, s99")
        I(f"buffer_store_{'byte' if byte else 'dword'} v2, v3, s[{srd}:{srd+3}], s{soff} offen sc1"); self.vm.issue()
    def oob_sel(self):
        self.I(f"s_cmp_eq_u32 s{SW}, 0"); self.I(f"s_cselect_b32 s99, 0, {self.OOB}")
    def poll_issue(self, vd, vaddr, soff, srd=RWS):
        self.I(f"buffer_load_dword v{vd}, v{vaddr}, s[{srd}:{srd+3}], {soff} offen sc1"); return self.vm.issue()
    def poll_check(self, vd, vaddr, soff, want, srd=RWS):
        a = self.a; I = self.I
        l = a.label("PCK"); lp = a.label("POLL")
        I(f"s_mov_b32 s98, {want}"); I("s_mov_b32 s99, 20000")
        a.L(lp)
        I(f"v_and_b32 v{vd}, s98, v{vd}"); I(f"v_cmp_ne_u32 vcc, s98, v{vd}"); I(f"s_cbranch_vccz {l}")
        I("s_sleep 2")
        I(f"buffer_load_dword v{vd}, v{vaddr}, s[{srd}:{srd+3}], {soff} offen sc1")
        I("s_sub_u32 s99, s99, 1"); I("s_cmp_lg_u32 s99, 0"); I("s_waitcnt vmcnt(0)"); I(f"s_cbranch_scc1 {lp}")
        a.L(l)
    def phys(self, d, s_, t, E=None):
        I = E or self.I; p = self.o.get("hperm", 0)
        if p == 0: I(f"s_mov_b32 s{d}, s{s_}")
        elif p == 1: I(f"s_and_b32 s{t}, s{s_}, 3"); I(f"s_lshl_b32 s{t}, s{t}, 3"); I(f"s_lshr_b32 s{d}, s{s_}, 2"); I(f"s_or_b32 s{d}, s{d}, s{t}")
        elif p >= 32:
            I(f"s_lshr_b32 s{t}, s{s_}, 3"); I(f"s_add_u32 s{t}, s{t}, {p - 32}"); I(f"s_and_b32 s{t}, s{t}, 3")
            I(f"s_and_b32 s{d}, s{s_}, 7"); I(f"s_lshl_b32 s{d}, s{d}, 2"); I(f"s_or_b32 s{d}, s{d}, s{t}")
        else: I(f"s_mul_i32 s{t}, s{s_}, {p}"); I(f"s_and_b32 s{d}, s{t}, 31")
    def barrier(self): self.I("s_barrier")
    def sync_all(self):
        self.I("s_waitcnt vmcnt(0) lgkmcnt(0)"); self.vm.mark_all_done(); self.lg.mark_all_done(); self.barrier()

    def begin(self, kname):
        a = self.a; I = self.I
        a.T(f".globl {kname}\n.p2align 8\n.type {kname},@function"); a.L(kname)
        self.endl = a.label("END")
        if self.o.get("stamp"): I("s_memrealtime s[30:31]")
        if self.o.get("echo"): I("s_memtime s[96:97]" if self.o.get("cyc") else "s_memrealtime s[96:97]")
        I("s_load_dwordx16 s[64:79], s[0:1], 0"); I("s_load_dwordx16 s[80:95], s[0:1], 64")
        I("s_cmp_ge_u32 s2, 256"); I(f"s_cbranch_scc1 {self.endl}")
        I("v_lshrrev_b32 v1, 6, v0"); I("v_and_b32 v0, 63, v0"); I(f"v_readfirstlane_b32 s{SW}, v1")
        I("s_and_b32 s7, s2, 7"); I("s_lshl_b32 s7, s7, 2")
        I(f"s_lshr_b32 s{SIDX}, s2, 3"); I(f"s_lshr_b32 s{SHEAD}, s{SIDX}, 3"); I(f"s_add_u32 s{SHEAD}, s{SHEAD}, s7")
        I(f"s_and_b32 s{SIDX}, s{SIDX}, 7"); I(f"s_lshl_b32 s{SWK}, s{SW}, 10")
        I(f"s_lshl_b32 s{SF}, s{SHEAD}, 3"); I(f"s_add_u32 s{SF}, s{SF}, s{SIDX}")
    def end(self):
        self.a.L(self.endl); self.I("s_endpgm")

    def proj(self):
        a = self.a; I = self.I; vm = self.vm; lg = self.lg
        QA_LDS = 65536
        ACC = {"K": 64, "V": 128, "Q": 64}
        FX = [16, 24]; FW = [192, 32]
        VWA = 4; VSK, VSV, VOX, VOW, VST = 8, 9, 10, 11, 12; VXA = 224; T = 232
        NB = 0; XC = self.o.get("xc", 0)
        ST = [("KV", c) for c in range(NB)] + [("K", c) for c in range(NB, 8)] + [("V", c) for c in range(7, NB - 1, -1)] + [("Q", c) for c in range(8)]
        NS = len(ST); TK = 7; TV = NS - 9; TQ = NS - 8
        I("v_lshrrev_b32 v13, 3, v0"); I(f"s_lshl_b32 s40, s{SW}, 3"); I("v_add_u32 v13, s40, v13"); I("v_lshlrev_b32 v13, 10, v13")
        I(f"s_lshr_b32 s41, s{SW}, 1"); I(f"s_xor_b32 s40, s41, s{SW}"); I("s_and_b32 s40, s40, 1"); I("s_lshl_b32 s40, s40, 2")
        I("v_lshrrev_b32 v14, 4, v0"); I("v_add_u32 v15, s40, v14")
        I("v_and_b32 v3, 7, v0"); I("v_xor_b32 v15, v15, v3"); I(f"v_lshl_add_u32 v{VOX}, v15, 4, v13")
        I(f"s_lshl_b32 s40, s{SW}, 2"); I("v_add_u32 v13, s40, v14"); I("v_lshlrev_b32 v13, 13, v13")
        I("s_and_b32 s41, s41, 1"); I("s_lshl_b32 s41, s41, 3"); I("v_lshl_add_u32 v15, v14, 1, s41"); I("v_and_b32 v3, 15, v0"); I("v_xor_b32 v15, v15, v3")
        I("v_lshl_add_u32 v13, v15, 4, v13"); self.phys(40, SHEAD, 41); I("s_lshl_b32 s40, s40, 8"); I(f"v_add_u32 v{VOW}, s40, v13")
        I(f"v_lshlrev_b32 v{VST}, 4, v0")
        I(f"s_lshl_b32 s44, s{SIDX}, 18")
        for i in range(1, 4): I(f"s_add_u32 s{44+i}, s44, {65536*i}")
        ROT = self.o.get("rot", 2)
        if ROT == 0: I("s_mov_b32 s33, 0")
        elif ROT == 1: I(f"s_mov_b32 s33, s{SIDX}")
        elif ROT == 2: I(f"s_lshr_b32 s33, s{SHEAD}, 2"); I(f"s_add_u32 s33, s33, s{SIDX}")
        elif ROT == 3: I(f"s_lshr_b32 s33, s{SHEAD}, 2"); I(f"s_add_u32 s33, s33, s{SIDX}"); I(f"s_lshl_b32 s34, s{SHEAD}, 1"); I("s_add_u32 s33, s33, s34")
        elif ROT == 4: I(f"s_lshr_b32 s33, s{SHEAD}, 2")
        if self.o.get("rotq"): I(f"s_lshl_b32 s32, s{SHEAD}, 1"); I("s_add_u32 s32, s32, s33")
        else: I("s_mov_b32 s32, s33")
        I("s_waitcnt lgkmcnt(0)")
        if self.o.get("stamp"): I("s_memrealtime s[28:29]")
        self.srd(RA, "ckv", 2*MB); self.srd(RB, "wuk", 4*MB); self.srd(RC, "wuv", 4*MB)
        def xbase(t):
            k, c = ST[t]
            return (32768, 131072, 0)[((16 + c) if k == "Q" else (15 - c + NB)) % 3]
        units = [(t, m) for t in range(NS) for m in ST[t][0]]
        uidx = {u: i for i, u in enumerate(units)}
        def wbase(t, m): return 65536 + (uidx[(t, m)] % 4)*16384
        WE = self.o.get("wearly", 2)
        def wn(t): return t - 1 if t >= WE else t
        items = []
        lastx = {}
        for t in range(NS):
            k, c = ST[t]
            for m in k:
                u = uidx[(t, m)]
                def w(i, t=t, m=m, c=c):
                    if i == 0: I(f"s_add_u32 s34, s{32 if m == 'Q' else 33}, {c}"); I("s_and_b32 s34, s34, 7"); I("s_lshl_b32 s34, s34, 19")
                    I(f"s_add_u32 m0, s{SWK}, {wbase(t, m) + i*8192}"); I(f"s_add_u32 s41, s34, {i*262144}")
                    r = {"K": RB, "V": RC, "Q": RE}[m]
                    if self.o.get("nodma") and t > 4: dtok[wn(t)] = vm.issued; return
                    I(f"buffer_load_dwordx4 v{VOW}, s[{r}:{r+3}], s41 offen lds"); dtok[wn(t)] = vm.issue()
                items.append((wn(t), wn(units[u-4][0]) if u >= 4 else -1, [lambda i=i, w=w: w(i) for i in range(2)]))
            key = ("Q" if k == "Q" else "C", c); prev = lastx.get(xbase(t))
            if prev is None or prev[1] != key:
                def x(i, t=t, k=k, c=c):
                    if i == 0: I(f"s_add_u32 s35, s{32 if k == 'Q' else 33}, {c}"); I("s_and_b32 s35, s35, 7"); I("s_lshl_b32 s35, s35, 7")
                    I(f"s_add_u32 m0, s{SWK}, {xbase(t) + i*8192}"); I(f"s_add_u32 s41, s{(48 if k == 'Q' else 44)+i}, s35")
                    r = (RWS if XC else RD) if k == "Q" else RA
                    if self.o.get("nodma") and t > 4: dtok[t] = vm.issued; return
                    I(f"buffer_load_dwordx4 v{VOX}, s[{r}:{r+3}], s41 offen{self.ld if (XC and k == 'Q') else ''} lds"); dtok[t] = vm.issue()
                items.append((t, prev[0] if prev else -1, [lambda i=i, x=x: x(i) for i in range(4)]))
            lastx[xbase(t)] = (t, key)
        items.sort(key=lambda it: it[0])
        dtok = {}
        def take(done, upto=99):
            out = []
            for it in list(items):
                if it[1] <= done and it[0] <= upto: out += it[2]; items.remove(it)
            return out
        for f in take(-1, 0): f()
        self.srd(RWS, "ws", WS_SIZE); self.srd(RDBG, "dbg", 256)
        if self.o.get("wsoff"): I(f"s_add_u32 s{RWS}, s{RWS}, {self.o['wsoff']*MB}"); I(f"s_addc_u32 s{RWS+1}, s{RWS+1}, 0")
        self.stamp(31)
        if self.o.get("stamp"):
            I("v_mov_b32 v2, s30"); I("s_sub_u32 s98, s98, 124"); I(f"buffer_store_dword v2, v3, s[{RWS}:{RWS+3}], s98 offen")
            I("v_mov_b32 v2, s28"); I(f"buffer_store_dword v2, v3, s[{RWS}:{RWS+3}], s98 offen offset:120")
        I(f"s_lshl_b32 s48, s{SIDX}, 17"); I("s_add_u32 s49, s48, 65536")
        I(f"s_sub_u32 s50, 15, s{SIDX}"); I("s_lshl_b32 s50, s50, 17"); I("s_add_u32 s51, s50, 65536")
        if XC:
            for i in range(4): I(f"s_add_u32 s{48+i}, s{48+i}, {XC_OFF}")
        I(f"s_and_b32 s42, s{SW}, 3"); I("s_lshl_b32 s42, s42, 6"); I(f"s_lshr_b32 s43, s{SW}, 2"); I("s_lshl_b32 s43, s43, 1")
        I("v_and_b32 v13, 15, v0"); I("v_lshrrev_b32 v15, 4, v0")
        I("v_lshrrev_b32 v14, 1, v13"); I("v_xor_b32 v14, v14, v15"); I("v_lshlrev_b32 v14, 4, v14")
        I("v_add_u32 v3, s42, v13"); I(f"v_lshl_add_u32 v{VXA}, v3, 7, v14")
        I("v_and_b32 v2, 8, v13"); I("v_add_u32 v3, v3, v2"); I(f"v_lshl_add_u32 v{VXA+4}, v3, 7, v14")
        for pt in range(2):
            b = VXA + 4*pt
            I(f"v_xor_b32 v{b+1}, 64, v{b}"); I(f"v_add_u32 v{b+2}, 0x20000, v{b}"); I(f"v_add_u32 v{b+3}, 0x20000, v{b+1}")
        I("v_lshlrev_b32 v3, 4, v13"); I("v_and_b32 v2, 1, v15"); I("v_lshl_add_u32 v3, v2, 9, v3"); I("v_lshrrev_b32 v14, 1, v15")
        I("v_lshlrev_b32 v3, 4, v13"); I(f"v_lshl_add_u32 v{VSK}, v15, {self.GSH}, v3")
        I("v_bfe_u32 v13, v0, 2, 2"); I("v_lshl_add_u32 v14, v15, 3, v13"); I("v_lshlrev_b32 v14, 8, v14")
        I("v_and_b32 v3, 3, v0"); I("v_lshl_add_u32 v14, v3, 3, v14"); I("v_add_u32 v14, 0x10000, v14")
        I("v_lshl_add_u32 v13, v2, 2, v13"); I("s_lshl_b32 s40, s43, 1"); I("v_xor_b32 v13, s40, v13"); I(f"v_lshl_add_u32 v{VWA}, v13, 5, v14")
        for dt in range(1, 4): I(f"v_xor_b32 v{VWA+dt}, {dt << 5}, v{VWA}")
        I(f"s_lshl_b32 s54, s{SHEAD}, 4"); I(f"s_lshl_b32 s55, s{SIDX}, 1"); I("s_add_u32 s54, s54, s55")
        I(f"s_bfe_u32 s55, s{SW}, 0x10001"); I("s_add_u32 s54, s54, s55"); I("s_lshl_b32 s54, s54, 16")
        I(f"s_and_b32 s55, s{SW}, 1"); I("s_lshl_b32 s55, s55, 14"); I("s_add_u32 s54, s54, s55")
        I(f"s_lshl_b32 s55, s43, {self.FSH+1}"); I("s_add_u32 s52, s54, s55"); I("s_add_u32 s52, s52, 0x8000")
        I(f"s_lshl_b32 s55, s43, {self.FSH}"); I("s_add_u32 s54, s54, s55")
        XG = T; GW = T + 4; hl = {}
        def gate_loads():
            L = []
            def E(t): L.append(lambda: I(t))
            def V(t):
                def f(): I(t); hl["t"] = vm.issue()
                L.append(f)
            E(f"s_lshl_b32 s40, s{SHEAD}, 7"); E(f"s_lshl_b32 s39, s{SIDX}, 2"); E("s_add_u32 s40, s40, s39"); E(f"s_add_u32 s40, s40, {FK_OFF}")
            E(f"s_lshl_b32 s39, s{SF}, 7"); E(f"s_add_u32 s39, s39, {FP_OFF}"); E("v_and_b32 v13, 7, v0"); E("v_lshl_add_u32 v13, v13, 2, s39")
            E("v_writelane_b32 v13, s40, 0")
            E(f"s_lshr_b32 s39, s{SHEAD}, 2"); E("s_lshl_b32 s39, s39, 7"); E(f"s_and_b32 s40, s{SHEAD}, 3"); E("s_lshl_b32 s40, s40, 2"); E("s_add_u32 s39, s39, s40")
            E(f"s_lshl_b32 s40, s{SIDX}, 10"); E("s_add_u32 s40, s40, s39"); E(f"s_add_u32 s40, s40, {FC_OFF}")
            E("v_writelane_b32 v13, s40, 1")
            E(f"s_sub_u32 s40, 15, s{SIDX}"); E("s_lshl_b32 s40, s40, 10"); E("s_add_u32 s40, s40, s39"); E(f"s_add_u32 s40, s40, {FC_OFF}")
            E("v_writelane_b32 v13, s40, 2")
            E(f"s_lshl_b32 s40, s{SF}, 2"); E(f"s_add_u32 s40, s40, {FY_OFF}"); E("v_writelane_b32 v13, s40, 3"); E("v_mov_b32 v14, 0")
            def oo(): self.oob_sel(); I("v_add_u32 v13, s99, v13")
            L.append(oo)
            V(f"buffer_store_dword v14, v13, s[{RWS}:{RWS+3}], 0 offen sc1")
            E("s_lshl_b32 s37, s2, 3"); E(f"s_add_u32 s37, s37, s{SW}"); E("s_lshl_b32 s38, s37, 10")
            L.append(lambda: self.srd(RD, "q", 2*MB)); L.append(lambda: self.srd(RE, "wq", 4*MB)); L.append(lambda: self.srd(RT, "gate", 1024))
            V(f"buffer_load_dwordx4 {v(XG,4)}, v{VST}, s[{RD}:{RD+3}], s38 offen")
            V(f"buffer_load_dwordx4 {v(GW,4)}, v{VST}, s[{RT}:{RT+3}], 0 offen")
            return L
        def gate_ops():
            L = []; E = lambda t: L.append(lambda: I(t)); Z = T + 8
            L.append(lambda: vm.wait(hl["t"]))
            def xs():
                I(f"s_add_u32 s38, s38, {XC_OFF}"); I(f"buffer_store_dwordx4 {v(XG,4)}, v{VST}, s[{RWS}:{RWS+3}], s38 offen{self.st}"); vm.issue()
            if XC: L.append(xs)
            E(f"v_dot2_f32_bf16 v{Z}, v{XG}, v{GW}, 0")
            for i in range(1, 4): E(f"v_dot2_f32_bf16 v{Z}, v{XG+i}, v{GW+i}, v{Z}")
            for m in ("quad_perm:[1,0,3,2] row_mask:0xf", "quad_perm:[2,3,0,1] row_mask:0xf", "row_half_mirror row_mask:0xf", "row_mirror row_mask:0xf",
                      "row_bcast:15 row_mask:0xa", "row_bcast:31 row_mask:0xc"):
                E(f"v_add_f32_dpp v{Z}, v{Z}, v{Z} {m} bank_mask:0xf")
            E(f"v_readlane_b32 s36, v{Z}, 63"); E(f"v_mov_b32 v{Z+1}, {f2u(-LOG2E)}"); E(f"v_mul_f32 v{Z}, s36, v{Z+1}")
            E(f"v_exp_f32 v{Z}, v{Z}"); E(f"v_add_f32 v{Z}, 1.0, v{Z}"); E(f"v_rcp_f32 v{Z}, v{Z}")
            E("s_lshl_b32 s38, s37, 2"); E(f"s_add_u32 s38, s38, {G_OFF}"); E(f"v_mov_b32 v{Z+1}, 0")
            def gs():
                I(f"buffer_store_dword v{Z}, v{Z+1}, s[{RWS}:{RWS+3}], s38 offen{self.st}"); vm.issue()
            L.append(gs)
            return L
        toks = {}
        def rdx(t, mt):
            m = ST[t][0]; xb = xbase(t); pt = 0
            off = (xb & 65535) + ((mt >> 1)*4096 + (mt & 1)*1024 if pt else mt*2048)
            def f(kk):
                va = VXA + 4*pt + 2*(xb >> 17) + (kk ^ (mt & 1))
                I(f"ds_read_b128 {v(FX[mt & 1]+4*kk,4)}, v{va} offset:{off}"); toks[("x", t, mt, kk)] = lg.issue()
            return [lambda: f(0), lambda: f(1)]
        def rdw(t, dt):
            m = ST[t][0]
            def f(kk, h):
                I(f"ds_read_b64_tr_b16 {v(FW[t & 1]+8*dt+4*kk+2*h,2)}, v{VWA+dt} offset:{wbase(t, m)-65536+kk*8192+h*1024}"); toks[("w", t, dt, kk)] = lg.issue()
            return [lambda kk=kk, h=h: f(kk, h) for kk in range(2) for h in range(2)]
        def atile(m, mt, dt): return ACC[m] + (4*(((mt >> 1)*4 + dt)*2 + (mt & 1)) if m == "V" else 4*(mt*4 + dt))
        def mfs(t, mt):
            m = ST[t][0]; first = t == 0 or ST[t-1][0] != m; L = []
            order = [(dt, kk) for dt in range(4) for kk in range(2)] if not self.o.get("nochain") else [(dt, kk) for kk in range(2) for dt in range(4)]
            for dt, kk in order:
                def f(dt=dt, kk=kk):
                    lg.wait(max(toks[("x", t, mt, kk)], toks[("w", t, dt, kk)]))
                    d = v(atile(m, mt, dt), 4); X = v(FX[mt & 1]+4*kk, 4); W = v(FW[t & 1]+8*dt+4*kk, 4)
                    c = "0" if (first and kk == 0) else d
                    I(f"v_mfma_f32_16x16x32_bf16 {d}, {X}, {W}, {c}" if m == "V" else f"v_mfma_f32_16x16x32_bf16 {d}, {W}, {X}, {c}")
                L.append(f)
            return L
        def pieces(m):
            fs = 1024 if m == "Q" else 1 << self.FSH
            if m == "V": return [(atile(m, 2*p, dt), p*8192 + dt*fs) for p in range(2) for dt in range(4)]
            return [(atile(m, mt, 2*j), (mt >> 1)*8192 + ((mt & 1)*4 + j)*fs) for mt in range(4) for j in range(2)]
        def kv_out(m):
            out = []
            for b, off in pieces(m):
                pk = [lambda i=i, b=b: I(f"v_cvt_pk_bf16_f32 v{b+i}, v{b+2*i}, v{b+2*i+1}") for i in range(4)]
                if m == "K": pk = [lambda i=i, b=b: I(f"v_mul_f32 v{b+i}, {f2u(LOG2E / math.sqrt(128.0))}, v{b+i}") for i in range(8)] + pk
                def st(b=b, off=off):
                    if self.o.get("nost"): return
                    I(f"s_add_u32 s41, s{54 if m == 'K' else 52}, {off}")
                    I(f"buffer_store_dwordx4 {v(b,4)}, v{VSK}, s[{RWS}:{RWS+3}], s41 offen{self.st}"); vm.issue()
                out.append((pk, st))
            return out
        side = {}; late = {}
        def spread(ops, t0, t1, dst=side, ks=(0, 1, 2)):
            sl = [(t, k) for t in range(t0, t1) for k in ks]; n = len(ops)
            for j, key in enumerate(sl): dst.setdefault(key, []).extend(ops[n*j//len(sl): n*(j+1)//len(sl)])
        PG = self.o.get("pg", 0)
        spread(gate_loads(), PG, PG + 1); spread(gate_ops(), PG + 2, PG + 3)
        def wtouch(r, half, wv):
            def f():
                I(f"s_cmp_eq_u32 s{SW}, {wv}"); I(f"s_cselect_b32 s99, 0, {self.OOB}")
                self.phys(39, SHEAD, 40); I("s_lshl_b32 s39, s39, 8"); I(f"s_lshl_b32 s40, s{SIDX}, 19"); I("s_add_u32 s40, s40, s39"); I(f"s_add_u32 s40, s40, {half*32*8192}")
                I("v_lshrrev_b32 v3, 1, v0"); I("v_lshlrev_b32 v3, 13, v3"); I("v_and_b32 v2, 1, v0"); I("v_lshl_add_u32 v3, v2, 7, v3"); I("v_add_u32 v3, s99, v3")
                I(f"buffer_load_dword v1, v3, s[{r}:{r+3}], s40 offen"); vm.issue()
            return f
        for nm, r, dflt in (("tk", RB, -1), ("tv", RC, 1), ("tq", RE, 3)):
            t0 = self.o.get(nm, dflt)
            if t0 >= 0:
                for half in range(2): side.setdefault((t0 + half, 2), []).append(wtouch(r, half, half))
        KN = self.o.get("kn", 8); VD = self.o.get("vd", 0); VN = self.o.get("vn", 5)
        KO = kv_out("K"); VO = kv_out("V"); SK = self.o.get("sk", 2); SG_ = self.o.get("sgp", 6)
        spread(sum((p for p, _ in KO), []), TK + 1, min(TK + 3, TQ), ks=(0, 1))
        npk = 2 * (min(TK + 3, TQ) - TK - 1)
        spread([s_ for _, s_ in KO], TK + 1, TK + 1 + KN, dst=late, ks=(SK,))
        spread(sum((p for p, _ in VO), []), TQ, TQ + 1, ks=(0, 1))
        spread([s_ for _, s_ in VO], TQ + VD, TQ + VD + VN, dst=late, ks=(SK,))
        PK_, PV_ = TK + KN + 2, TQ + VD + VN
        assert PK_ <= NS - 5 and PV_ <= NS - 2
        QE = []; EQ = lambda t: QE.append(lambda: I(t))
        EQ(f"s_and_b32 s55, s{SW}, 2"); EQ("s_lshl_b32 s55, s55, 15"); EQ(f"s_add_u32 s55, s55, {QA_LDS}")
        EQ(f"s_and_b32 s54, s{SW}, 1"); EQ("s_lshl_b32 s54, s54, 14"); EQ("s_add_u32 s55, s55, s54")
        EQ("s_lshl_b32 s54, s43, 10"); EQ("s_add_u32 s55, s55, s54"); EQ(f"v_add_u32 v14, s55, v{VST}")
        spread(QE, NS - 1, NS)
        spread([lambda: self.srd(RB, "ssmk", 2*MB), lambda: self.srd(RA, "k", 2*MB), lambda: self.srd(RC, "v", 2*MB), lambda: self.srd(RD, "shift", 4096), lambda: self.srd(RE, "wo", 4*MB)], NS - 2, NS - 1)
        spread([lambda r=r: I(f"v_mov_b64 {v(192+2*r,2)}, 0") for r in range(32) if not 16 <= r < 20], NS - 1, NS)
        side.setdefault((NS - 1, 3), []).extend([lambda r=r: I(f"v_mov_b64 {v(192+2*r,2)}, 0") for r in range(16, 20)])
        def fkoff():
            I(f"s_lshl_b32 s40, s{SHEAD}, 7"); I(f"s_lshl_b32 s41, s{SIDX}, 2"); I("s_add_u32 s40, s40, s41"); I(f"s_add_u32 s40, s40, {FK_OFF}")
        def w0only(fn):
            l = a.label("NP"); I(f"s_cmp_lg_u32 s{SW}, 0"); I(f"s_cbranch_scc1 {l}"); fn(); a.L(l)
        def k0(i):
            I(f"s_lshl_b32 s40, s{SW}, 12"); I("s_add_u32 m0, s40, 0x8000")
            I(f"s_lshl_b32 s41, s{SHEAD}, 20"); I("s_add_u32 s41, s41, s40")
            I(f"buffer_load_dwordx4 v{VST}, s[{RWS}:{RWS+3}], s41 offen offset:{1024*i}{self.ld} lds"); vm.issue()
        self.barrier()
        for f in take(-1, 1): f()
        vm.wait(dtok[0]); self.barrier()
        self.stamp(1)
        def first_reads(t):
            x = rdx(t, 0); w = [rdw(t, dt) for dt in range(4)]
            return [x[0]] + w[0][:2] + [x[1]] + w[0][2:] + w[1], w[2] + w[3]
        L, rest = first_reads(0)
        for f in L: f()
        VPK = self.o.get("vpk", 2); mark = {}; TZ = PG + 4; TS = 10; DS = self.o.get("dsteps", 3)
        pend = take(-1)
        for t in range(NS):
            for k in range(4):
                M = mfs(t, k); n = len(M); PB = []
                if k == 3 and t < NS - 1:
                    assert not pend
                    if t == TS + 2: vm.wait(td); w0only(lambda: self.poll_check(14, 13, "0", rep4(1), RDBG))
                    if t == NS - 3: vm.wait(tp); w0only(lambda: self.poll_check(15, 13, "s53", 1))
                    lg.wait(lg.issued)
                    if not (self.o.get("nowait") and t > 4): vm.wait(dtok.get(t+1, 0))
                    if t == TZ: vm.wait(mark[TZ-2])
                    if t == PK_: vm.wait(mark[TK + KN])
                    if t == PV_: vm.wait(mark[PV_ - 1])
                    self.barrier()
                    ps = self.o.get("pstamp")
                    if ps is not None and 0 <= t - int(ps) + 1 < 13: self.stamp(17 + t - int(ps) + 1); vm.issue(2)
                    if TZ <= t < TZ + 4: PB.append(lambda t=t: self.publish(SF, 1, RDBG, True, idx=t - TZ))
                    if t == PK_: PB.append(lambda: (fkoff(), self.publish(40, 1)))
                    if t == PV_: PB.append(lambda: (fkoff(), self.publish(40, 3)))
                    pend = take(t)
                    if t == NS - 3: pend += [lambda i=i: k0(i) for i in range(4)]
                    nd = len(pend) // (DS + 1)
                else:
                    nd = -(-len(pend) // max(1, (3 if t == 0 else DS) - k))
                D, pend = pend[:nd], pend[nd:]
                fl = []
                if not (t == NS - 1 and k == 3):
                    if k == 3:
                        if t + 1 >= WE: fl.append((0, 2, rdx(t+1, 0))); rest = []
                        else:
                            L, rest = first_reads(t+1); nr = self.o.get("nr", 4)
                            fl.append((0, 7, L + rest[:nr])); rest = rest[nr:]
                    else:
                        if k == 0 and rest: fl.append((-1, 2, rest))
                        fl.append((0, 2, rdx(t, k+1)) if not (k == 0 and rest) else (2, 4, rdx(t, k+1)))
                        if WE <= t + 1 < NS:
                            wr = sum((rdw(t+1, dt) for dt in range(4)), [])
                            fl.append((2, 8 if k < 2 else 6, wr[(0, 6, 12)[k]:(6, 12, 16)[k]]))
                if PB: fl.append((1, 2, PB))
                if D: fl.append((0, n, D))
                if side.get((t, k)): fl.append((0, n, side[(t, k)]))
                if late.get((t, k)): fl.append((SG_, min(n, SG_ + 4), late[(t, k)]))
                self.stream(M, fl)
                if k == 2: mark[t] = vm.issued
                if t == TS and k == 0:
                    self.oob_sel(); I("v_lshl_add_u32 v13, v0, 2, s99"); td = self.poll_issue(14, 13, "0", RDBG)
                if t == NS - 4 and k == 0:
                    self.oob_sel(); I("v_and_b32 v13, 7, v0"); I("v_lshl_add_u32 v13, v13, 2, s99")
                    I(f"s_lshl_b32 s53, s{SHEAD}, 7"); I(f"s_add_u32 s53, s53, {FK_OFF}")
                    tp = self.poll_issue(15, 13, "s53")
                if t == NS - 1 and k == VPK: self.poll_issue(15, 13, "s53")
            if t == TK: self.stamp(2)
            if t == TV: self.stamp(13)
        assert not items
        self.stamp(3)
        I("v_mov_b32 v16, v13")
        if VPK > 3: self.poll_issue(15, 13, "s53")
        for b, off in pieces("Q"):
            for i in range(4): I(f"v_cvt_pk_bf16_f32 v{b+i}, v{b+2*i}, v{b+2*i+1}")
            I(f"ds_write_b128 v14, {v(b,4)} offset:{off}"); lg.issue()
        self.attn_setup()
        vm.wait(vm.issued); w0only(lambda: self.poll_check(15, 16, "s53", 3))
        lg.wait(lg.issued); self.barrier()

    def attn_setup(self): self.attn(True)
    def attn(self, setup=False):
        a = self.a; I = self.I; vm = self.vm; lg = self.lg
        M16 = "v_mfma_f32_16x16x32_bf16"
        ML = 155648; QA_LDS = 65536; QB_LDS = 131072
        O = 192; QF = 160; NM = 144; S = [112, 128]; PP = [96, 104]; RING = 64; NR = 8; E = 56; PK = 16
        VK, VV, VL16, VSC, LM, THR, NINF, VQ, TMP = 4, 5, 6, 7, 8, 9, 10, 11, 12
        LS, ONES, BIAS = 152, 60, 11.0
        SR, SG, SC1, SC2, SKO, SVO, SKM, SVM, STH = 32, 33, 34, 35, 36, 37, 38, 39, 42
        SFIN, SCA, SM1 = 55, 59, 58
        DC = self.o.get("dmacost", 16); WEV = self.o.get("wev", 4)
        if setup:
            I(f"s_lshr_b32 s{SG}, s{SW}, 2"); I(f"s_mul_i32 s{SR}, s{SG}, 7"); I(f"s_xor_b32 s{SR}, s{SR}, s{SW}")
            I(f"v_lshlrev_b32 v{VL16}, 4, v0")
            I(f"s_lshl_b32 s44, s{SR}, 13"); I(f"s_add_u32 s44, s44, {QB_LDS}"); I(f"v_add_u32 v{VQ}, s44, v{VL16}")
            I(f"s_lshl_b32 s45, s{SG}, 16"); I(f"v_subrev_u32 v{TMP+1}, s45, v{VQ}")
            I(f"s_mov_b32 s{SC1}, s{SIDX}")
            I(f"s_lshl_b32 s{SC2}, s{SIDX}, 1"); I(f"s_sub_u32 s{SC2}, 14, s{SC2}")
            I(f"s_cmp_eq_u32 s{SG}, 1"); I(f"s_cselect_b32 s{SM1}, 0, -1")
            I(f"s_lshl_b32 s43, s{SW}, 12"); I(f"s_lshl_b32 s{SVO}, s{SHEAD}, 20"); I(f"s_add_u32 s{SVO}, s{SVO}, s43")
            I(f"s_add_u32 s{SKO}, s{SVO}, 0x10000"); I(f"s_add_u32 s{SVO}, s{SVO}, 0x8000")
            I(f"s_mov_b32 s{SKM}, s43"); I(f"s_add_u32 s{SVM}, s43, 0x18000")
            I(f"s_mov_b32 s{STH}, 0x40004000"); I(f"v_mov_b32 v{NINF}, 0xff800000")
            for r in range(4): I(f"v_mov_b32 v{ONES+r}, 0x3f803f80"); I(f"v_mov_b64 {v(LS+2*r,2)}, 0")
            I(f"v_and_b32 v{THR}, 15, v0"); I(f"v_lshlrev_b32 v{VSC}, 4, v{THR}"); I(f"s_lshl_b32 s44, s{SR}, 5"); I(f"v_add_u32 v{THR}, s44, v{THR}")
            I(f"v_lshrrev_b32 v{TMP}, 4, v0"); I(f"v_lshl_add_u32 v{VSC}, v{TMP}, 9, v{VSC}"); I(f"v_lshlrev_b32 v{TMP}, 2, v{TMP}"); I(f"v_sub_u32 v{THR}, v{THR}, v{TMP}")
            I(f"v_and_b32 v{VK}, 15, v0"); I(f"v_lshlrev_b32 v{VK}, 4, v{VK}"); I(f"v_lshrrev_b32 v{TMP}, 4, v0"); I(f"v_lshl_add_u32 v{VK}, v{TMP}, {self.GSH}, v{VK}"); I(f"v_add_u32 v{VK}, 0x8000, v{VK}")
            I(f"s_lshl_b32 s{SCA}, s{SIDX}, 2"); I(f"s_add_u32 s{SCA}, s{SCA}, s{SR}"); I(f"s_lshl_b32 s{SCA}, s{SCA}, 5"); I(f"s_add_u32 s{SCA}, s{SCA}, s{SHEAD}")
            I(f"s_lshl_b32 s{SCA}, s{SCA}, 13"); I(f"s_add_u32 s{SCA}, s{SCA}, {CTX_OFF}")
            I(f"s_mov_b32 s{SFIN}, 0")
            I(f"s_lshr_b32 s56, s{SF}, 6"); I("s_lshl_b32 s56, s56, 2"); I(f"s_bfe_u32 s44, s{SF}, 0x20003"); I("s_add_u32 s56, s56, s44"); I("s_lshl_b32 s56, s56, 1")
            I(f"s_bfe_u32 s44, s{SF}, 0x10005"); I("s_add_u32 s56, s56, s44"); I(f"s_and_b32 s57, s{SF}, 7")
            I("s_mov_b32 s41, 0")
            CL = self.o.get("cl", 8)
            I(f"s_lshr_b32 s40, {1 << (CL+2)}, s{SG}"); I(f"s_or_b32 s40, s40, {1 << CL}")
            TO = self.o.get("to", 0)
            I(f"s_lshl_b32 s44, {2 << TO}, s{SW}"); I(f"s_and_b32 s44, s44, {self.o.get('tm', 30) << TO}"); I("s_or_b32 s40, s40, s44")
            I(f"s_cmp_eq_u32 s{SW}, 0"); I(f"s_cselect_b32 s44, {(1 << (5 + TO)) | (1 << (CL+4))}, 0"); I("s_or_b32 s40, s40, s44")
            if not self.o.get("noprio"):
                l = a.label("PR"); I(f"s_cmp_eq_u32 s{SG}, 1"); I(f"s_cbranch_scc0 {l}"); I("s_setprio 1"); a.L(l)
            return
        op = lambda t, c=4: (lambda: I(t), c)
        nop = lambda: None
        def loadq(va):
            for ds in range(8):
                I(f"ds_read_b128 {v(QF+4*ds,4)}, v{va} offset:{1024*ds}"); lg.issue()
        def dma4(kind):
            sm, so = (SKM, SKO) if kind == "k" else (SVM, SVO)
            def d(i):
                def f():
                    if i == 0: I(f"s_mov_b32 m0, s{sm}"); I(f"s_xor_b32 s{sm}, s{sm}, 0x8000")
                    I(f"buffer_load_dwordx4 v{VL16}, s[{RWS}:{RWS+3}], s{so} offen offset:{1024*i}{self.ld} lds")
                    if i == 3: I(f"s_add_u32 s{so}, s{so}, 0x10000")
                return (f, DC + (8 if i == 0 else 4 if i == 3 else 0))
            return [d(i) for i in range(4)]
        self.ring_n = 0
        def rd(kind, sl, idx):
            h = {}
            def f():
                slot = self.ring_n % NR; self.ring_n += 1
                h["reg"] = RING + 4*slot
                I(f"ds_read_b128 {v(h['reg'],4)}, v{VK if kind == 'k' else VV} offset:{sl*8192+(idx << self.FSH)}"); h["tok"] = lg.issue()
            return f, h
        def wait_for(R, i):
            if R[i][1]["tok"] <= lg.done: return
            j = i
            while j + 1 < len(R) and j + 1 < i + WEV and "tok" in R[j+1][1] and R[j+1][1]["tok"] > R[i][1]["tok"]: j += 1
            lg.wait(R[j][1]["tok"])
        def otile(dt, qt): return O + 16*(dt >> 1) + 8*qt + 4*(dt & 1)
        def qk(sb, R, base, czero=False):
            def f(m):
                kt, qt, dd = m >> 3, (m >> 2) & 1, m & 3; i = base + 4*kt + dd
                wait_for(R, i); d = v(S[sb] + 8*qt + 4*kt, 4)
                c = ("0" if czero else v(NM + 4*qt, 4)) if dd == 0 else d
                I(f"{M16} {d}, {v(R[i][1]['reg'],4)}, {v(QF + 16*qt + 4*dd, 4)}, {c}")
            return [lambda m=m: f(m) for m in range(16)]
        def pv1(pb, dt, qt, reg): I(f"{M16} {v(otile(dt, qt),4)}, {v(reg,4)}, {v(PP[pb]+4*qt,4)}, {v(otile(dt, qt),4)}")
        def pv(pb, R, base, dts=range(8), exact=False):
            def f(dt, qt):
                if exact: lg.wait(R[base+dt][1]["tok"])
                else: wait_for(R, base + dt)
                pv1(pb, dt, qt, R[base+dt][1]["reg"])
            ls = [lambda qt=qt: I(f"{M16} {v(LS+4*qt,4)}, {v(ONES,4)}, {v(PP[pb]+4*qt,4)}, {v(LS+4*qt,4)}") for qt in range(2)]
            return ls + [lambda dt=dt, qt=qt: f(dt, qt) for dt in dts for qt in range(2)]
        def sm_ops(sb):
            ex = lambda i: op(f"v_exp_f32 v{E+(i&3)}, v{S[sb]+i}", 8)
            cv = lambda j: op(f"v_cvt_pk_bf16_f32 v{PP[sb]+j}, v{E+((2*j)&3)}, v{E+((2*j+1)&3)}")
            p = PP[sb]; L = [ex(0), ex(1)]
            ors = {2: f"v_or3_b32 v{LM}, v{p}, v{p+1}, v{p+2}", 4: f"v_or3_b32 v{LM}, v{LM}, v{p+3}, v{p+4}", 6: f"v_or3_b32 v{LM}, v{LM}, v{p+5}, v{p+6}"}
            for j in range(8):
                L += [ex(2*j+2), cv(j), ex(2*j+3)] if j < 7 else [op("s_nop 0"), cv(j)]
                if j in ors: L.append(op(ors[j]))
            L = [x for i, x in enumerate(L) if i != len(L) - 2]
            L += [op(f"v_or_b32 v{LM}, v{LM}, v{p+7}"), op(f"v_and_b32 v{LM}, s{STH}, v{LM}")]
            return L
        def sched(M, fixed, chain):
            n = len(M); fc = [sum(c for _, c in fixed.get(g, [])) for g in range(n)]
            tot = sum(c for _, c in chain); lo, hi = 0.0, 4000.0
            for _ in range(40):
                lev = (lo + hi) / 2
                if sum(max(0, lev - f) for f in fc) >= tot: hi = lev
                else: lo = lev
            k = 0; credit = 0.0
            for g in range(n):
                M[g]()
                for c, _ in fixed.get(g, []): c()
                credit += max(0, hi - fc[g])
                while k < len(chain) and (g == n - 1 or chain[k][1] <= credit + 2):
                    chain[k][0](); credit -= chain[k][1]; k += 1
        def put(fixed, g, items): fixed.setdefault(g, []).extend(items)
        SPL = self.o.get("spl", 18)
        ool = []
        def rarely(cmp_, body):
            lo = a.label("OOL"); lb = a.label("RET")
            I(cmp_); I(f"s_cbranch_scc1 {lo}"); a.L(lb)
            ool.append((lo, lb, body))
        def mask_ops(sb, koff):
            prs = [46, 48, 50, 52]; L = []
            if koff >= 64:
                L.append(op(f"v_subrev_u32 v{TMP+3}, 64, v{THR}")); tr = TMP + 3; koff -= 64
            elif koff < 0:
                L += [op(f"s_lshl_b32 s45, s{SG}, 6"), op(f"v_subrev_u32 v{TMP+3}, s45, v{THR}")]; tr = TMP + 3; koff = -koff - 1
            else: tr = THR
            for r0 in range(0, 16, 4):
                qt, kt = r0 >> 3, (r0 >> 2) & 1
                for r in range(4): L.append(op(f"v_cmp_lt_i32 s[{prs[r]}:{prs[r]+1}], v{tr}, {16*kt + r + koff - 16*qt}"))
                for r in range(4): L.append(op(f"v_cndmask_b32 v{S[sb]+r0+r}, v{S[sb]+r0+r}, v{NINF}, s[{prs[r]}:{prs[r]+1}]"))
            return L
        def mask_body(sb, koff):
            for c, _ in mask_ops(sb, koff): c()
        def xred(x, y, t0, t1, o):
            L = []
            for sw in ("v_permlane16_swap_b32", "v_permlane32_swap_b32"):
                L += [op(f"v_mov_b32 v{t0}, v{x}"), op(f"v_mov_b32 v{t1}, v{y}"), op("s_nop 0"), op(f"{sw} v{t0}, v{x}"), op(f"{sw} v{t1}, v{y}"),
                      op(f"{o} v{x}, v{x}, v{t0}"), op(f"{o} v{y}, v{y}, v{t1}")]
            return L
        def rowmax(sb):
            for qt in range(2):
                b = S[sb] + 8*qt; d = TMP + qt
                I(f"v_max3_f32 v{d}, v{b}, v{b+1}, v{b+2}"); I(f"v_max3_f32 v{d}, v{d}, v{b+3}, v{b+4}"); I(f"v_max3_f32 v{d}, v{d}, v{b+5}, v{b+6}"); I(f"v_max_f32 v{d}, v{d}, v{b+7}")
            for c, _ in xred(TMP, TMP+1, TMP+2, TMP+3, "v_max_f32"): c()
        def init_max():
            rowmax(0)
            for qt in range(2): I(f"v_max_f32 v{TMP+qt}, {f2u(-1e30)}, v{TMP+qt}"); I(f"v_add_f32 v{TMP+qt}, {f2u(BIAS)}, v{TMP+qt}")
            for r in range(8): I(f"v_sub_f32 v{NM+r}, 0, v{TMP+(r>>2)}")
            return [op(f"v_sub_f32 v{S[0]+r}, v{S[0]+r}, v{TMP+(r>>3)}") for r in range(16)]
        rare = []
        def check(sb, other=True):
            lr = a.label("RARE"); lb = a.label("BACK")
            I(f"v_cmp_ne_u32 vcc, 0, v{LM}")
            if self.o.get("a_nocheck"): I("s_mov_b64 vcc, 0")
            I(f"s_cbranch_vccnz {lr}"); a.L(lb)
            rare.append((lr, lb, sb, other))
        def fin_body():
            I(f"s_mov_b32 s{SFIN}, 2")
            I(f"v_rcp_f32 v{TMP}, v{LS}"); I(f"v_rcp_f32 v{TMP+2}, v{LS+4}"); I(f"v_mov_b32 v{TMP+1}, v{TMP}"); I(f"v_mov_b32 v{TMP+3}, v{TMP+2}")
            for r in range(4): I(f"v_mov_b64 {v(LS+2*r,2)}, 0")
            for q in range(8):
                for i in range(8*q, 8*q+8, 2): I(f"v_pk_mul_f32 {v(O+i,2)}, {v(O+i,2)}, {v(TMP+2*(q&1),2)}")
                for i in range(4): I(f"v_cvt_pk_bf16_f32 v{PK+4*q+i}, v{O+8*q+2*i}, v{O+8*q+2*i+1}")
                for i in range(8*q, 8*q+8, 2): I(f"v_mov_b64 {v(O+i,2)}, 0")
        coff = lambda q: (q & 3)*1024
        def st_body():
            I(f"s_add_u32 s44, s{SCA}, 4096"); I(f"s_mov_b32 s{SFIN}, 3")
            for q in range(8):
                I(f"buffer_store_dwordx4 {v(PK+4*q,4)}, v{VL16}, s[{RWS}:{RWS+3}], s{SCA if q < 4 else 44} offen offset:{coff(q)}{self.st}")
        TR = [RING + 4*(2+i) for i in range(6)]
        def head(R, vmw, with_mfma=True, post=(), more=(), pre=None):
            rf = [(f, 4) for f, h in R]; sm2 = sm_ops(0)[SPL:]
            M = [lambda dt=dt, qt=qt: pv1(1, dt, qt, TR[dt-2]) for dt in range(2, 8) for qt in range(2)] if with_mfma else [nop]*12
            if with_mfma: I("s_waitcnt lgkmcnt(4)")
            nb = self.o.get("nb", 4); more = list(more); m0 = len(more) // 3
            if pre is not None: more = list(pre) + more; m0 = len(pre)
            sched(M[:4], {}, sm2[:nb] + more[:m0])
            vmw(); I("s_waitcnt lgkmcnt(0)"); lg.mark_all_done(); self.barrier(); self.ring_n = 0
            fx = {0: rf[0:2], 1: rf[2:4], 2: rf[4:5], 4: rf[5:6], 6: rf[6:7], 7: [(nop, 8 + 8*len(post))]}
            sched(M[4:], fx, sm2[nb:] + more[m0:])
            check(0)
            for p in post: p()
        def mk_reads():
            return ([rd("k", 0, i) for i in range(8)] + [rd("v", 0, i) for i in range(8)] +
                    [rd("k", 1, i) for i in range(8)] + [rd("v", 1, i) for i in range(8)])
        def last_use(F):
            b = (0, 18, 34, 52)[F >> 3]; f = F & 7
            return b + (2*f + 1 if (F >> 3) & 1 else 8*(f >> 2) + 4 + (f & 3))
        def mid(R, dmas, kx, mb=None, trans=False, endops=(), early=(), g=0):
            rf = [(f, 4) for f, h in R]
            fa = {0: [rf[7]]}; fb = {}
            G_ = g
            for g, e in zip((1, 3, 9, 11), early): put(fa, g, [e])
            for F in range(8, 32):
                g = last_use(F - 8) + 1
                put(fa, g, [rf[F]]) if g < 34 else put(fb, g - 34, [rf[F]])
            D = sum((dma4(k) for k in dmas), [])
            st_ = self.o.get("gst", 4); of_ = self.o.get("gof", 2)
            gaps = [2 + of_*G_*2 + 2*st_*n for n in range(4)] if len(D) == 4 else [2 + of_*G_ + st_*n for n in range(8)]
            for g, d in zip(gaps, D): put(fa, g, [d]) if g < 33 else put(fb, g - 33, [d])
            PT = self.o.get("pt", 0)
            if PT and G_ == 0:
                pts = {1: [(0, 24, 2), (1, 21, 0)], 2: [(0, 8, 2), (0, 24, 0), (1, 7, 2), (1, 21, 0)], 3: [(0, 0, 2), (0, 8, 0), (0, 16, 2), (0, 24, 0), (0, 32, 2), (1, 7, 0), (1, 15, 2), (1, 21, 0)],
                       4: [(0, 16, 2), (1, 21, 0)], 5: [(0, 32, 2), (1, 21, 0)]}[PT]
                for part, g, p in pts: put(fb if part else fa, g, [op(f"s_setprio {p}")])
            put(fa, 33, [(nop, 16)])
            sched(qk(0, R, 0, trans) + pv(0, R, 8), fa, sm_ops(1))
            check(1, other=not trans)
            if mb: mb()
            pre = []
            if trans:
                I(f"s_mov_b32 s{SFIN}, 1")
                pre = init_max()
            put(fb, 18, [op(f"v_xor_b32 v{VV}, 0x10000, v{VK}")] + kx)
            for n, e in enumerate(endops): put(fb, 11 - n, [e])
            put(fb, 21, [(nop, 12)])
            sched(qk(1, R, 16) + pv(1, R, 24, range(2)), fb, pre + sm_ops(0)[:SPL])
            assert [R[26+i][1]["reg"] for i in range(6)] == TR
        vm4 = lambda: I("s_waitcnt vmcnt(4)")
        def vm08():
            lo = a.label("W8"); lb = a.label("W8R")
            I(f"s_cmp_eq_u32 s{SFIN}, 3"); I(f"s_cbranch_scc1 {lo}"); I("s_waitcnt vmcnt(0)"); a.L(lb)
            def b(): I("s_waitcnt vmcnt(8)"); I(f"s_mov_b32 s{SFIN}, 4")
            ool.append((lo, lb, b))
        m1 = lambda sb, ko: (lambda: rarely(f"s_cmp_eq_u32 s{SC1}, s{SM1}", lambda: mask_body(sb, ko)))
        fin = lambda: rarely(f"s_cmp_eq_u32 s{SFIN}, 1", fin_body)
        sta = (lambda: rarely(f"s_cmp_eq_u32 s{SFIN}, 2", st_body), 8)
        KR, VR, SH, WO, AD = 16, 23, 28, 32, 40
        def side_loads():
            L = []; E = lambda t: L.append(op(t)); V = lambda t: L.append(op(t, DC))
            E(f"v_lshrrev_b32 v{AD}, 5, v0"); E(f"v_and_b32 v{AD+1}, 31, v0"); E(f"v_lshlrev_b32 v{AD+2}, 12, v{AD}"); E(f"v_lshl_add_u32 v{AD+2}, v{AD+1}, 2, v{AD+2}")
            self.phys(60, SHEAD, 61, E); E("s_lshl_b32 s60, s60, 17"); E(f"s_lshr_b32 s61, s{SIDX}, 1"); E("s_lshl_b32 s61, s61, 15"); E("s_add_u32 s60, s60, s61")
            E(f"s_and_b32 s61, s{SF}, 1"); E("s_lshl_b32 s61, s61, 9"); E("s_add_u32 s60, s60, s61")
            E(f"s_lshl_b32 s61, s{SW}, 6"); E("s_add_u32 s60, s60, s61"); E("s_add_u32 s61, s60, 16384")
            E(f"v_lshrrev_b32 v{AD+3}, 4, v0"); E(f"v_lshlrev_b32 v{AD+3}, 12, v{AD+3}"); E(f"v_and_b32 v{AD+4}, 15, v0"); E(f"v_lshl_add_u32 v{AD+3}, v{AD+4}, 2, v{AD+3}")
            for j in range(8): V(f"buffer_load_dword v{WO+j}, v{AD+3}, s[{RE}:{RE+3}], s{60+(j>>2)} offen offset:{1024*(j&3)}")
            E("s_lshr_b32 s62, s2, 3"); E("s_lshl_b32 s62, s62, 16"); E(f"s_lshl_b32 s63, s{SW}, 13"); E("s_add_u32 s62, s62, s63")
            E("s_and_b32 s63, s2, 7"); E("s_lshl_b32 s63, s63, 7"); E("s_add_u32 s62, s62, s63"); E(f"v_add_u32 v{AD+3}, s62, v{AD+2}")
            for i in range(3): E(f"v_subrev_u32 v{AD+4+i}, {3072-1024*i}, v{AD+3}")
            E("s_lshl_b32 s63, s63, 2"); E(f"v_lshl_add_u32 v{AD+7}, v{AD+1}, 4, s63")
            for i in range(3): V(f"buffer_load_dword v{KR+i}, v{AD+4+i}, s[{RA}:{RA+3}], 0 offen")
            for i in range(4): V(f"buffer_load_dword v{KR+3+i}, v{AD+3}, s[{RA}:{RA+3}], 0 offen offset:{1024*i}")
            for i in range(4): V(f"buffer_load_dword v{VR+i}, v{AD+3}, s[{RC}:{RC+3}], 0 offen offset:{1024*i}")
            V(f"buffer_load_dwordx4 {v(SH,4)}, v{AD+7}, s[{RD}:{RD+3}], 0 offen")
            return L
        NSL = 21
        def side_math():
            L = []; E = lambda t: L.append(op(t)); V = lambda t: L.append(op(t, DC))
            W2 = 48
            E("s_mov_b32 s60, 0x05040100"); E("s_mov_b32 s61, 0x07060302")
            for j in range(4): E(f"v_perm_b32 v{W2+j}, v{WO+2*j+1}, v{WO+2*j}, s60")
            for j in range(4): E(f"v_perm_b32 v{W2+4+j}, v{WO+2*j+1}, v{WO+2*j}, s61")
            E(f"s_and_b32 s60, s{SF}, 1"); E("s_lshl_b32 s60, s60, 2"); E(f"s_lshr_b32 s61, s{SW}, 1"); E("s_add_u32 s60, s60, s61"); E("s_lshl_b32 s60, s60, 19")
            E(f"s_lshr_b32 s61, s{SF}, 1"); E("s_lshl_b32 s61, s61, 12"); E("s_add_u32 s60, s60, s61"); E(f"s_and_b32 s61, s{SW}, 1"); E("s_lshl_b32 s61, s61, 11")
            E("s_add_u32 s60, s60, s61"); E(f"s_add_u32 s60, s60, {WOT_OFF}")
            for mt in range(2): V(f"buffer_store_dwordx4 {v(W2+4*mt,4)}, v{VL16}, s[{RWS}:{RWS+3}], s60 offen offset:{1024*mt}{self.st}")
            KU, SU, OO, VU, PQ = 32, 42, 48, 39, 52
            for c in range(2):
                def unp(d, sreg, half): E(f"v_lshlrev_b32 v{d}, 16, v{sreg}" if half == 0 else f"v_and_b32 v{d}, 0xffff0000, v{sreg}")
                for i in range(7): unp(KU+i, KR+i, c)
                for j in range(4): unp(SU+j, SH + 2*c + (j >> 1), j & 1)
                for o in range(4):
                    E(f"v_mul_f32 v{OO+o}, v{KU+o}, v{SU+3}")
                    for j in (2, 1, 0): E(f"v_fmac_f32 v{OO+o}, v{KU+o+3-j}, v{SU+j}")
                    unp(VU, VR+o, c)
                    E(f"v_mul_f32 v{OO+o}, v{OO+o}, v{VU}")
                d = PQ + 2*(1-c)
                E(f"v_cvt_pk_bf16_f32 v{d}, v{OO+3}, v{OO+2}"); E(f"v_cvt_pk_bf16_f32 v{d+1}, v{OO+1}, v{OO}")
            E(f"v_lshlrev_b32 v{AD+1}, 5, v{AD+1}"); E(f"v_lshl_add_u32 v{AD+1}, v{AD}, 4, v{AD+1}")
            E(f"v_permlane32_swap_b32 v{PQ+2}, v{PQ}"); E(f"v_permlane32_swap_b32 v{PQ+3}, v{PQ+1}")
            E("s_lshr_b32 s60, s2, 3"); E("s_lshl_b32 s60, s60, 16"); E(f"s_lshl_b32 s61, s{SW}, 13"); E("s_add_u32 s60, s60, s61")
            E("s_and_b32 s61, s2, 7"); E("s_lshl_b32 s61, s61, 10"); E("s_add_u32 s60, s60, s61"); E(f"s_add_u32 s60, s60, {KVT_OFF}")
            V(f"buffer_store_dwordx4 {v(PQ,4)}, v{AD+1}, s[{RWS}:{RWS+3}], s60 offen{self.st}")
            return L
        CL = self.o.get("cl", 8)
        def touch(k):
            if k in (1, 2):
                self.phys(60, SHEAD, 61); I("s_lshl_b32 s60, s60, 17"); I(f"s_lshl_b32 s61, s{SIDX}, 14"); I("s_add_u32 s60, s60, s61")
                if k == 2: I("s_add_u32 s60, s60, 8192")
                I("v_lshlrev_b32 v16, 7, v0"); r = RE
            elif k in (3, 4):
                I("s_lshr_b32 s60, s2, 3"); I("s_lshl_b32 s60, s60, 16"); I("s_and_b32 s61, s2, 7"); I("s_lshl_b32 s61, s61, 7"); I("s_add_u32 s60, s60, s61")
                I("v_lshlrev_b32 v16, 10, v0"); r = RA if k == 3 else RC
            else:
                I(f"s_lshl_b32 s60, s{SF}, 13"); I("v_lshlrev_b32 v16, 7, v0"); r = RB
            I(f"buffer_load_dword v1, v16, s[{r}:{r+3}], s60 offen")
        LSITE = a.label("SITE")
        def site_code():
            a.L(LSITE)
            def ret(): I("s_nop 1"); I("s_setpc_b64 s[76:77]")
            l = a.label("SN"); I(f"s_cmp_lg_u32 s41, {CL}"); I(f"s_cbranch_scc1 {l}")
            for c, _ in side_loads(): c()
            ret(); a.L(l)
            l = a.label("SN"); I(f"s_add_u32 s44, s41, s{SG}"); I(f"s_cmp_lg_u32 s44, {CL+2}"); I(f"s_cbranch_scc1 {l}")
            for c, _ in side_math(): c()
            ret(); a.L(l)
            for k in range(1, 6):
                l = a.label("SN")
                I(f"s_cmp_lg_u32 s41, {k + self.o.get('to', 0)}"); I(f"s_cbranch_scc1 {l}")
                touch(k); ret(); a.L(l)
            I(f"s_lshl_b32 s44, s{SF}, 2"); I(f"s_add_u32 s44, s44, {FY_OFF}")
            sv = self.save(); self.publish(44, 2); self.restore(sv)
            ret()
        def spf():
            I("s_add_u32 s41, s41, 1"); rarely("s_bitcmp1_b32 s40, s41", lambda: I(f"s_call_b64 s[76:77], {LSITE}"))
        spub = (spf, 12)
        def snap():
            I(f"s_mov_b32 s61, {FY_OFF}"); I(f"buffer_load_dwordx4 v[52:55], v{VL16}, s[{RWS}:{RWS+3}], s61 offen sc1")
        def side_check():
            lo = a.label("SCK"); lb = a.label("SCR")
            def test():
                I("v_and_b32 v52, v52, v53"); I("v_and_b32 v54, v54, v55"); I("v_and_b32 v52, v52, v54"); I("v_and_b32 v52, 2, v52"); I("v_cmp_ne_u32 vcc, 2, v52")
            test(); I(f"s_cbranch_vccnz {lo}"); a.L(lb)
            def spin():
                lp = a.label("SPL")
                I("s_mov_b32 s99, 20000"); a.L(lp)
                I("s_sleep 2"); I(f"buffer_load_dwordx4 v[52:55], v{VL16}, s[{RWS}:{RWS+3}], s61 offen sc1"); I("s_waitcnt vmcnt(0)")
                test(); I(f"s_cbranch_vccz {lb}")
                I("s_sub_u32 s99, s99, 1"); I("s_cmp_lg_u32 s99, 0"); I(f"s_cbranch_scc1 {lp}")
            ool.append((lo, lb, spin))
        m2 = lambda sb, ko: (lambda: rarely(f"s_cmp_eq_u32 s{SC2}, 0", lambda: (snap(), mask_body(sb, ko))))
        LEV = a.label("EVEN"); LODM = a.label("ODDM"); LTRANS = a.label("TRANS"); LP2 = a.label("P2"); LP2B = a.label("P2B"); LDRAIN = a.label("DRAIN")
        self.stamp(8)
        self.ring_n = 0
        R = [rd("k", 0, i) for i in range(8)] + [rd("k", 1, i) for i in range(8)]
        def qrd(i):
            I(f"ds_read_b128 {v(QF+4*i,4)}, v{TMP+1} offset:{1024*i}"); return lg.issue()
        for i in range(4): qrd(i); R[i][0]()
        for i in range(4, 8): tq = qrd(i)
        D = dma4("v") + dma4("k")
        fx = {g: [(R[4+g][0], 4)] for g in range(4)}
        put(fx, 3, [(lambda: lg.wait(tq), 4)])
        for F in range(8, 15): put(fx, last_use(F - 8) + 1, [(R[F][0], 4)])
        for n, d in enumerate(D): put(fx, 2*n, [d])
        sched(qk(0, R, 0, True), fx, [])
        m1(0, 0)()
        pre = init_max()
        fx = {0: [(R[15][0], 4)], 8: [op(f"v_xor_b32 v{VV}, 0x10000, v{VK}"), op(f"v_xor_b32 v{VK}, 0x4000, v{VK}")]}
        sched(qk(1, R, 8), fx, pre + sm_ops(0)[:SPL])
        R = mk_reads()
        head(R, vm4, False, post=[m1(1, 32)])
        svm = self.save()
        self.stamp(9)
        LOD = [a.label("ODD0"), a.label("ODD1")]
        I(f"s_cmp_eq_u32 s{SG}, 1"); I(f"s_cbranch_scc1 {LOD[1]}"); I(f"s_branch {LOD[0]}")
        vm0 = lambda: I("s_waitcnt vmcnt(0)")
        def loops(g):
            LEV = a.label("EVEN"); LP2 = a.label("P2")
            mm = (lambda sb, ko: m1(sb, ko)) if g else (lambda sb, ko: None)
            a.L(LEV)
            R = mk_reads(); head(R, vm4)
            mid(R, "k", [op(f"v_xor_b32 v{VK}, 0x4000, v{VK}")], mb=mm(0, 0), early=[spub], g=g)
            R = mk_reads(); head(R, vm4, post=[m1(1, 32)] if g else [])
            assert self.lg.issued - self.lg.done == svm[2] - svm[3]
            a.L(LOD[g])
            mid(R, "v", [op(f"v_xor_b32 v{VK}, 0xc000, v{VK}")], mb=mm(0, 64), endops=[op(f"s_sub_u32 s{SC1}, s{SC1}, 1")], early=[spub], g=g)
            I(f"s_cmp_lg_u32 s{SC1}, -1"); I(f"s_cbranch_scc1 {LEV}")
            self.stamp(14)
            if g:
                loadq(VQ); I("s_waitcnt lgkmcnt(0)"); I(f"v_xor_b32 v{VK}, 0x4000, v{VK}")
            R = mk_reads(); head(R, vm4, more=mask_ops(1, 96) if g else ())
            mid(R, "k", [op(f"v_xor_b32 v{VK}, 0x8000, v{VK}")], mb=m2(0, -1), trans=bool(g), early=[spub], g=g)
            self.stamp(15)
            I(f"s_cmp_eq_u32 s{SC2}, 0"); I(f"s_cbranch_scc1 {LDRAIN}")
            a.L(LP2)
            R = mk_reads(); head(R, vm08 if g else vm0)
            mid(R, "kv", [op(f"v_xor_b32 v{VK}, 0x8000, v{VK}")], mb=m2(0, -1), endops=[sta] if g else [],
                early=[spub] + ([(fin, 8)] if g else []) + [op(f"s_sub_u32 s{SC2}, s{SC2}, 1")], g=g)
            I(f"s_cmp_lg_u32 s{SC2}, 0"); I(f"s_cbranch_scc1 {LP2}")
        loops(1); I(f"s_branch {LDRAIN}")
        loops(0)
        a.L(LDRAIN)
        self.stamp(10)
        R2 = [rd("v", 0, i) for i in range(8)] + [rd("v", 1, i) for i in range(8)]
        rf = [(f, 4) for f, h in R2]
        ts, ts2, ts3 = self.tail_setup()
        tsa = [x for x in ts if x[1] == 4]; tsl = [x for x in ts if x[1] != 4]
        mk_ = mask_ops(1, -33)
        head(R2, lambda: (vm08(), side_check(), tsl[0][0](), tsl[1][0]()), post=[fin, sta[0]], pre=tsa[:8], more=tsa[8:16] + [tsl[2]] + mk_)
        ts = tsa[16:]
        if self.o.get("dst"): self.stamp(17)
        pre = []; E_ = lambda t: pre.append(op(t))
        E_(f"s_add_u32 s44, s{SWK}, {ML}"); E_(f"v_add_u32 v54, s44, v{VL16}")
        E_(f"s_lshl_b32 s46, s{SW}, 13"); E_(f"v_add_u32 v55, s46, v{VL16}")
        E_(f"s_sub_u32 s54, 15, s{SIDX}"); E_(f"s_lshl_b32 s54, s54, 2"); E_(f"s_add_u32 s54, s54, s{SR}"); E_("s_lshl_b32 s54, s54, 5"); E_(f"s_add_u32 s54, s54, s{SHEAD}")
        E_("s_lshl_b32 s54, s54, 13"); E_(f"s_lshl_b32 s44, s{SG}, 12"); E_("s_add_u32 s54, s54, s44"); E_(f"s_add_u32 s54, s54, {CTX_OFF}")
        def lsum():
            def wml():
                I(f"ds_write_b128 v54, {v(150,4)}"); lg.issue()
            return [op(f"v_mov_b32 v150, v{NM}"), op(f"v_mov_b32 v{LS+1}, v{LS+4}"), (wml, 4)]
        def osend(g, i):
            def f():
                I(f"ds_write_b128 v55, {v(O+32*(1-g)+4*i,4)} offset:{1024*i}"); lg.issue()
            return (f, 16)
        lj = a.label("MGJ"); LMG = [a.label("MG0"), a.label("MG1")]; LFB = a.label("FB1"); LSK = a.label("SKIP"); LS1 = a.label("SK1")
        for c, _ in ts: c()
        I(f"s_lshl_b32 s45, s{SG}, 1"); I(f"s_sub_u32 s45, s{SR}, s45"); I("s_cmp_lt_i32 s45, 1"); I(f"s_cbranch_scc1 {LSK}")
        svd = self.save(); rnd = self.ring_n
        WA_ = self.o.get("wa", 6); tsA, tsB = ts2[:WA_], ts2[WA_:]
        setup_ = pre + ts3; n8 = (len(setup_) + 17) // 18
        fx = {g: setup_[g*n8:(g+1)*n8] for g in range(18)}
        for n, x in enumerate(tsA): put(fx, 1 + n * 17 // max(1, len(tsA)), [x])
        for F in range(7, 15): put(fx, 2*(F - 7) + (2 if F > 7 else 0), [rf[F]])
        sched(pv(0, R2, 0), fx, sm_ops(1))
        check(1)
        rf[15][0]()
        if self.o.get("dst"): self.stamp(20)
        I(f"s_cmp_eq_u32 s{SG}, 1"); I(f"s_cbranch_scc1 {LFB}")
        sv2 = self.save(); PR = 64
        for g in (0, 1):
            if g: a.L(LFB); self.restore(sv2)
            own = O + 32*g; snd = O + 32*(1-g)
            dts = list(range(4*(1-g), 4*(1-g)+4)) + list(range(4*g, 4*g+4))
            fx = {10 + i: [osend(g, i)] for i in range(8)}
            put(fx, 8, lsum())
            for n, x in enumerate(tsB): put(fx, n * 10 // max(1, len(tsB)), [x])
            sched(pv(1, R2, 8, dts, True), fx, self.tail_valu())
            a.L(LMG[g])
            if self.o.get("dst"): self.stamp(18)
            I(f"v_xor_b32 v54, 0x1c00, v54"); I(f"v_xor_b32 v55, 0xe000, v55")
            I("s_waitcnt lgkmcnt(0)"); lg.mark_all_done(); self.barrier()
            if self.o.get("dst"): self.stamp(19)
            I(f"ds_read_b128 {v(96,4)}, v54"); t0 = lg.issue()
            tk = []
            for i in range(8):
                I(f"ds_read_b128 {v(PR+4*i,4)}, v55 offset:{1024*i}"); tk.append(lg.issue())
            lg.wait(t0)
            for q in range(2):
                I(f"v_min_f32 v100, v{150+q}, v{96+q}"); I(f"v_sub_f32 v101, v100, v{150+q}"); I(f"v_sub_f32 v102, v100, v{96+q}")
                I("v_exp_f32 v101, v101"); I("v_exp_f32 v102, v102")
                I(f"v_mul_f32 v103, v101, v{LS+q}"); I(f"v_fmac_f32 v103, v102, v{98+q}"); I("v_rcp_f32 v103, v103")
                b = 104 + 4*q
                I(f"v_mul_f32 v{b}, v101, v103"); I(f"v_mul_f32 v{b+1}, v101, v103"); I(f"v_mul_f32 v{b+2}, v102, v103"); I(f"v_mul_f32 v{b+3}, v102, v103")
            tw = self.tail_writes()
            for q in range(4):
                b = 104 + 4*(q & 1)
                for i in range(8*q, 8*q+8, 2): I(f"v_pk_mul_f32 {v(own+i,2)}, {v(own+i,2)}, {v(b,2)}")
                lg.wait(tk[2*q+1])
                if not self.o.get("twe"):
                    for c in tw[3*q:3*q+3]: c()
                for i in range(8*q, 8*q+8, 2): I(f"v_pk_fma_f32 {v(own+i,2)}, {v(PR+i,2)}, {v(b+2,2)}, {v(own+i,2)}")
                for i in range(4): I(f"v_cvt_pk_bf16_f32 v{snd+4*q+i}, v{own+8*q+2*i}, v{own+8*q+2*i+1}")
                I(f"buffer_store_dwordx4 {v(snd+4*q,4)}, v{VL16}, s[{RWS}:{RWS+3}], s54 offen offset:{coff(q)}{self.st}"); self.tctx = vm.issue()
            if self.o.get("twe"):
                for c in tw: c()
            if not g: I(f"s_branch {lj}")
        def skip_path():
            keep = self.save(); tctx = self.tctx; th = self.th; wt = dict(self.wtok)
            a.L(LSK); self.restore(svd); self.ring_n = rnd
            I("s_cmp_lt_i32 s45, 0"); I(f"s_cbranch_scc1 {LS1}")
            rf[7][0]()
            for f in pv(0, R2[:8], 0): f()
            a.L(LS1)
            for c, _ in setup_ + ts2 + lsum() + self.tail_valu(): c()
            l1 = a.label("SG1"); I(f"s_cmp_eq_u32 s{SG}, 1"); I(f"s_cbranch_scc1 {l1}")
            for g in (0, 1):
                if g: a.L(l1)
                for i in range(8): osend(g, i)[0]()
                I(f"s_branch {LMG[g]}")
            self.restore(keep); self.tctx = tctx; self.th = th; self.wtok = wt
        a.L(lj)
        I("s_setprio 0")
        self.stamp(4)
        def cold():
            skip_path()
            site_code()
            for (lo, lb, body) in ool:
                a.L(lo); body(); I(f"s_branch {lb}")
            for (lr, lb, sb, other) in rare:
                a.L(lr)
                I("s_nop 15")
                rowmax(sb)
                for q in range(2): I(f"v_add_f32 v{TMP+q}, {f2u(BIAS)}, v{TMP+q}"); I(f"v_max_f32 v{TMP+q}, 0, v{TMP+q}"); I(f"v_exp_f32 v{TMP+2+q}, -v{TMP+q}")
                for r in range(8): I(f"v_sub_f32 v{NM+r}, v{NM+r}, v{TMP+(r>>2)}")
                for r in range(16): I(f"v_sub_f32 v{S[sb]+r}, v{S[sb]+r}, v{TMP+(r>>3)}")
                if other:
                    for r in range(16): I(f"v_sub_f32 v{S[1-sb]+r}, v{S[1-sb]+r}, v{TMP+(r>>3)}")
                for r in range(64): I(f"v_mul_f32 v{O+r}, v{O+r}, v{TMP+2+((r>>3)&1)}")
                for r in range(8): I(f"v_mul_f32 v{LS+r}, v{LS+r}, v{TMP+2+(r>>2)}")
                for c, _ in sm_ops(sb): c()
                I("s_nop 1"); I(f"s_branch {lb}")
        self.attn_rare = cold

    HB = 65536; HC = 4416; XB = 136192; YB = 148480
    SC, SJ, SB, SCH, SHB_, SWO, SCX = 34, 35, 36, 37, 38, 39, 40
    WS_ = [16, 24, 32, 40, 176, 184, 48, 56] + list(range(80, 144, 8))
    def tail_setup(self):
        I = self.I; L = []; E = lambda t: L.append((lambda: I(t), 4))
        SC, SJ, SB, SCH, SHB_, SWO, SCX = self.SC, self.SJ, self.SB, self.SCH, self.SHB_, self.SWO, self.SCX
        self.wtok = {}; self.wslot = dict(enumerate(self.WS_))
        E(f"s_lshr_b32 s{SC}, s{SW}, 2"); E(f"s_and_b32 s{SJ}, s{SW}, 3")
        E(f"s_lshl_b32 s{SCH}, s{SF}, 1"); E(f"s_add_u32 s{SCH}, s{SCH}, s{SC}"); E(f"s_lshl_b32 s{SCH}, s{SCH}, 12")
        E(f"s_lshl_b32 s60, s{SJ}, 10"); E("v_add_u32 v50, s60, v6"); E("v_subrev_u32 v51, 16, v50")
        E(f"s_lshl_b32 s63, s{SW}, 18"); E(f"s_lshl_b32 s62, s{SF}, 5"); E("s_add_u32 s63, s63, s62"); E(f"s_add_u32 s63, s63, {KVT_OFF}")
        E("v_lshrrev_b32 v48, 1, v0"); E("v_and_b32 v158, 1, v0" if False else "v_and_b32 v3, 1, v0"); E("v_lshlrev_b32 v49, 13, v48"); E("v_lshl_add_u32 v49, v3, 4, v49")
        def ld(t):
            def f(): I(t); self.th = self.vm.issue()
            L.append((f, 16))
        ld(f"buffer_load_dwordx4 {v(160,4)}, v51, s[{RB}:{RB+3}], s{SCH} offen")
        ld(f"buffer_load_dwordx4 {v(164,4)}, v50, s[{RB}:{RB+3}], s{SCH} offen")
        ld(f"buffer_load_dwordx4 {v(168,4)}, v49, s[{RWS}:{RWS+3}], s63 offen{self.ld}")
        E(f"s_lshl_b32 s{SWO}, s57, 19"); E(f"s_lshl_b32 s60, s{SW}, 15"); E(f"s_add_u32 s{SWO}, s{SWO}, s60"); E(f"s_add_u32 s{SWO}, s{SWO}, {WOT_OFF}")
        E("s_and_b32 s60, s56, 1"); E("s_lshl_b32 s60, s60, 18"); E(f"s_add_u32 s{SWO}, s{SWO}, s60")
        TR_ = self.o.get("trot", 1)
        if TR_ == 0: E("s_mov_b32 s58, 0")
        elif TR_ == 1: E("s_mov_b32 s58, s57")
        else: E("s_and_b32 s58, s56, 6"); E("s_add_u32 s58, s58, s57")
        def w1(i, mt):
            if mt == 0 and i % 2 == 0: self.wadr(i)
            I(f"buffer_load_dwordx4 {v(self.WS_[i]+4*mt,4)}, v6, s[{RWS}:{RWS+3}], s59 offen offset:{(i&1)*2048+mt*1024}{self.ld}"); self.wtok[i] = self.vm.issue()
        L2 = [(lambda i=i, mt=mt: w1(i, mt), 16) for i in range(self.o.get("we", 6)) for mt in range(2)]
        L3 = []; L, Lx = L3, L
        E = lambda t: L3.append((lambda: I(t), 4))
        E(f"s_mul_i32 s{SB}, s{SC}, 6144"); E(f"s_add_u32 s{SB}, s{SB}, {self.XB}")
        E(f"s_mul_i32 s{SHB_}, s{SC}, {8*self.HC}"); E(f"s_add_u32 s{SHB_}, s{SHB_}, {self.HB}")
        E(f"s_xor_b32 s{SCX}, s56, 1"); E(f"s_lshl_b32 s{SCX}, s{SCX}, 19"); E(f"s_lshl_b32 s60, s{SW}, 14"); E(f"s_add_u32 s{SCX}, s{SCX}, s60"); E(f"s_add_u32 s{SCX}, s{SCX}, {CTX_OFF}")
        E("s_and_b32 s60, s56, 1"); E("s_lshl_b32 s60, s60, 17"); E(f"s_add_u32 s{SCX}, s{SCX}, s60")
        return Lx, L2, L3
    def wreg(self, i):
        return self.WS_[i % len(self.WS_)]
    def wload(self, i):
        I = self.I; r = self.wslot[i]
        I(f"s_add_u32 s61, s{self.SWO}, {i*2048}")
        for mt in range(2):
            I(f"buffer_load_dwordx4 {v(r+4*mt,4)}, v6, s[{RWS}:{RWS+3}], s61 offen offset:{mt*1024}{self.ld}"); self.wtok[i] = self.vm.issue()
    def wadr(self, i):
        I = self.I
        I(f"s_add_u32 s59, s58, {i >> 1}"); I("s_and_b32 s59, s59, 7"); I("s_lshl_b32 s59, s59, 12"); I(f"s_add_u32 s59, s59, s{self.SWO}")
    def tail_valu(self):
        I = self.I; HC = self.HC; L = []; E = lambda t: L.append((lambda: I(t), 4))
        SJ, SB, SHB_ = self.SJ, self.SB, self.SHB_
        Ee, Eo, Oe, Oo = 160, 113, 122, 131
        E(f"s_add_u32 s60, s{SHB_}, 64"); E("v_add_u32 v138, s60, v50")
        E("v_and_b32 v51, 3, v48"); E("v_mul_u32_u24 v139, 1536, v51"); E("v_lshrrev_b32 v53, 2, v48"); E("v_lshl_add_u32 v139, v53, 4, v139")
        E("v_and_b32 v53, 1, v0"); E("v_mul_u32_u24 v53, 6144, v53"); E(f"s_lshl_b32 s60, s{SW}, 7"); E(f"s_add_u32 s60, s60, {self.XB + 512}"); E("v_add3_u32 v139, v139, v53, s60")
        E("v_and_b32 v51, 3, v0")
        for r in range(2): E(f"v_mov_b64 {v(172+2*r,2)}, 0")
        E("v_bfe_u32 v140, v0, 2, 3"); E(f"v_mul_u32_u24 v140, {HC}, v140"); E("v_lshl_add_u32 v140, v51, 4, v140"); E(f"v_add_u32 v140, s{SHB_}, v140")
        E(f"s_mul_i32 s60, s{SJ}, 1536"); E(f"s_add_u32 s60, s60, s{SB}"); E("v_lshl_add_u32 v141, v0, 3, s60")
        L.append((lambda: self.vm.wait(self.th - 1), 4))
        for k in range(7): E(f"v_alignbit_b32 v{Oe+k}, v{Ee+k+1}, v{Ee+k}, 16")
        for k in range(1, 7): E(f"v_alignbit_b32 v{Oo+k}, v{Ee+k+1}, v{Ee+k}, 16")
        for k in range(1, 7): E(f"v_mov_b32 v{Eo+k}, v{Ee+k}")
        return L
    def tail_writes(self):
        I = self.I; lg = self.lg; HC = self.HC; L = []
        Ee, Eo, Oe, Oo = 160, 113, 122, 131
        def W(t, pre=None):
            def f():
                if pre: pre()
                I(t); lg.issue()
            L.append(f)
        for r in range(8):
            sft = 1 + r; k = sft >> 1
            base = ((Oe, Oo) if sft & 1 else (Ee, Eo))[k & 1]
            W(f"ds_write_b128 v138, {v(base+k,4)} offset:{r*HC}")
        W(f"ds_write_b128 v140, {v(172,4)}"); W(f"ds_write_b64 v141, {v(172,2)}")
        W(f"ds_write_b128 v139, {v(168,4)}", lambda: self.vm.wait(self.th))
        return L
    def tailp(self):
        a = self.a; I = self.I; vm = self.vm; lg = self.lg
        HB, HC, YB = self.HB, self.HC, self.YB
        SC, SJ, SB, SCH, SHB_, SWO, SCX = self.SC, self.SJ, self.SB, self.SCH, self.SHB_, self.SWO, self.SCX
        ACC = 192; FRS = [224, 240, 64]; RD_ = 224; OACC = 192; YT = self.XB
        VL16, VA, VB, T, VP, VPA, VO, GR, VW1 = 6, 4, 5, 12, 7, 8, 9, 10, 11
        WSL = self.WS_; CSL = [144, 152, 160, 168, 64, 72]
        assert len(WSL) == 16
        I(f"s_lshr_b32 s53, s56, 1"); I("s_lshl_b32 s53, s53, 10"); I("s_and_b32 s44, s56, 1"); I("s_lshl_b32 s44, s44, 9"); I("s_add_u32 s53, s53, s44")
        I(f"s_lshr_b32 s44, s{SW}, 1"); I("s_lshl_b32 s44, s44, 7"); I("s_add_u32 s53, s53, s44"); I(f"s_and_b32 s44, s{SW}, 1"); I("s_lshl_b32 s44, s44, 3")
        I("s_add_u32 s53, s53, s44"); I(f"s_add_u32 s53, s53, {FC_OFF}")
        I(f"v_and_b32 v{VPA}, 1, v0"); I(f"v_lshlrev_b32 v{VPA}, 2, v{VPA}")
        PUBN = self.o.get("pubn", 4)
        I(f"s_lshr_b32 s45, s{SHEAD}, 2"); I("s_lshl_b32 s45, s45, 7"); I(f"s_and_b32 s44, s{SHEAD}, 3"); I("s_lshl_b32 s44, s44, 2"); I("s_add_u32 s45, s45, s44")
        I(f"s_sub_u32 s44, 15, s{SIDX}"); I("s_lshl_b32 s44, s44, 10"); I("s_add_u32 s46, s44, s45"); I(f"s_add_u32 s46, s46, {FC_OFF}")
        I(f"s_lshl_b32 s44, s{SIDX}, 10"); I("s_add_u32 s47, s44, s45"); I(f"s_add_u32 s47, s47, {FC_OFF}")
        self.srd(RC, "out", 2*MB); self.srd(RD, "q", 2*MB)
        I(f"s_lshl_b32 s44, s{SF}, 2"); I(f"s_load_dword s55, s[{P['ssmD']}:{P['ssmD']+1}], s44")
        I(f"v_and_b32 v{T}, 15, v0"); I(f"v_lshrrev_b32 v{T+1}, 4, v0")
        I(f"v_and_b32 v{T+2}, 7, v0"); I(f"v_mul_u32_u24 v{VA}, {HC}, v{T+2}")
        I(f"v_bfe_u32 v{T+2}, v0, 3, 1"); I(f"v_sub_u32 v{T+2}, v{T+2}, v{T+1}"); I(f"v_lshl_add_u32 v{VA}, v{T+2}, 4, v{VA}")
        I(f"s_lshl_b32 s43, s{SJ}, 8"); I(f"s_add_u32 s43, s43, s{SHB_}"); I("s_add_u32 s43, s43, 64"); I(f"v_add_u32 v{VA}, s43, v{VA}")
        I(f"s_lshl_b32 s43, s{SJ}, 6"); I(f"s_sub_u32 s43, s{SB}, s43"); I(f"s_add_u32 s43, s43, {(32-3)*16}")
        I(f"v_lshl_add_u32 v{VB}, v{T}, 4, s43"); I(f"v_mul_u32_u24 v{T+2}, 1536, v{T+1}"); I(f"v_add_u32 v{VB}, v{VB}, v{T+2}")
        I(f"s_lshl_b32 s51, s{SW}, 13"); I(f"s_xor_b32 s52, s{SCX}, 0x80000")
        I("s_waitcnt lgkmcnt(0)"); lg.mark_all_done(); self.barrier()
        self.stamp(5)
        wtok = dict(self.wtok); ctok = {}; cslot = dict(enumerate(CSL))
        def wload(k):
            if k % 2 == 0: self.wadr(k)
            for mt in range(2):
                I(f"buffer_load_dwordx4 {v(WSL[k]+4*mt,4)}, v{VL16}, s[{RWS}:{RWS+3}], s59 offen offset:{(k&1)*2048+mt*1024}{self.ld}"); wtok[k] = vm.issue()
        def cload(i):
            I(f"s_add_u32 s62, s58, {i & 7}"); I("s_and_b32 s62, s62, 7"); I("s_lshl_b32 s62, s62, 11"); I(f"s_add_u32 s62, s62, s{52 if i >= 16 else SCX}")
            if i & 8: I("s_add_u32 s62, s62, 0x40000")
            for qt in range(2):
                I(f"buffer_load_dwordx4 {v(cslot[i]+4*qt,4)}, v{VL16}, s[{RWS}:{RWS+3}], s62 offen offset:{qt*1024}{self.ld}"); ctok[i] = vm.issue()
        wl = [k for k in range(16) if k not in wtok]
        BS = [224, 240]; AS = list(range(160, 176, 4)) + list(range(64, 80, 4)); NA = len(AS)
        seq = [(dd, m, bt) for dd in range(4) for (m, bt) in ((0, 0), (3, 0), (0, 1), (3, 1), (1, 0), (2, 0), (1, 1), (2, 1))]
        atok = {}; btok = {}
        def rda(n):
            if n >= len(seq): return
            dd, m, bt = seq[n]
            I(f"ds_read_b128 {v(AS[n % NA],4)}, v{VA} offset:{64*dd + 1024*m + 32*bt}"); atok[n] = lg.issue()
        def rdb(dd, n):
            if dd >= 4: return
            I(f"ds_read_b128 {v(BS[dd & 1]+4*n,4)}, v{VB} offset:{(3-dd)*16 + 256*n}"); btok[(dd, n)] = lg.issue()
        rda(0)
        for n in range(4): rdb(0, n)
        for n in range(1, NA - 1): rda(n)
        seen = set()
        for n, (dd, m, bt) in enumerate(seq):
            for nn in range(4 - m):
                lg.wait(max(atok[n], btok[(dd, nn)]))
                key = (m + nn, bt); d = v(ACC + 8*key[0] + 4*bt, 4)
                I(f"v_mfma_f32_16x16x32_bf16 {d}, {v(AS[n % NA],4)}, {v(BS[dd & 1]+4*nn,4)}, {d if key in seen else '0'}"); seen.add(key)
                if nn == 0:
                    rda(n + NA - 1)
                    if 1 <= (n & 7) <= 4: rdb(dd + 1, (n & 7) - 1)
            if n & 1:
                h_ = n >> 1
                if h_ == PUBN:
                    vm.wait(self.tctx); self.barrier(); self.publish(46); self.publish(47)
                if h_ >= self.o.get("wst", 2) and len(wl) > self.o.get("wkeep", 2): wload(wl.pop(0))
                if h_ == self.o.get("p1", 12): tc1 = self.poll_issue(VP, VPA, "s53")
        I(f"v_add_u32 v{T+2}, s51, v{VL16}")
        for i in range(8):
            I(f"ds_write_b128 v{T+2}, {v(ACC+4*i,4)} offset:{1024*i}"); lg.issue()
        while wl: wload(wl.pop(0))
        I(f"s_lshl_b32 s43, s{SC}, 15"); I(f"s_lshl_b32 s44, s{SJ}, 11"); I("s_add_u32 s43, s43, s44"); I(f"v_add_u32 v{T+2}, s43, v{VL16}")
        I(f"s_lshl_b32 s44, s{SJ}, 8"); I(f"s_add_u32 s44, s44, s{SB}"); I("s_add_u32 s44, s44, 520")
        I(f"v_lshl_add_u32 v{T+3}, v{T}, 4, s44"); I(f"v_and_b32 v{VA}, 1, v{T+1}"); I(f"v_lshlrev_b32 v{VA}, 3, v{VA}"); I(f"v_sub_u32 v{T+3}, v{T+3}, v{VA}")
        I(f"v_lshrrev_b32 v{VA}, 1, v{T+1}"); I(f"v_mul_u32_u24 v{VA}, 1536, v{VA}"); I(f"v_add_u32 v{T+3}, v{T+3}, v{VA}")
        I(f"v_lshlrev_b32 v{VB}, 6, v{T}"); I(f"v_lshl_add_u32 v{VB}, v{T+1}, 3, v{VB}")
        I(f"s_add_u32 s45, s{SWK}, {YB}"); I(f"v_add_u32 v{VB}, s45, v{VB}")
        I("s_lshl_b32 s43, s55, 16"); I("s_and_b32 s44, s55, 0xffff0000"); I(f"s_cmp_eq_u32 s{SC}, 0"); I("s_cselect_b32 s55, s43, s44")
        lg.wait(lg.issued); self.barrier()
        self.stamp(12)
        for p in range(4):
            for gq in range(2):
                I(f"ds_read_b128 {v(RD_+8*p+4*gq,4)}, v{T+2} offset:{8192*p+1024*gq}"); lg.issue()
        for gq in range(2):
            I(f"ds_read_b64 {v(ACC+2*gq,2)}, v{T+3} offset:{3072*gq}"); lg.issue()
        le = a.label("NE")
        vm.wait(tc1); I(f"v_and_b32 v{VP}, 1, v{VP}"); I(f"v_cmp_ne_u32 vcc, 1, v{VP}"); I("s_mov_b32 s50, 0"); I(f"s_cbranch_vccnz {le}")
        sv = self.save(); I("s_mov_b32 s50, 1")
        for i in range(len(CSL)): cload(i)
        self.restore(sv); a.L(le)
        lg.wait(lg.issued)
        for i in range(0, 8, 2):
            I(f"v_pk_add_f32 {v(RD_+i,2)}, {v(RD_+i,2)}, {v(RD_+8+i,2)}"); I(f"v_pk_add_f32 {v(RD_+16+i,2)}, {v(RD_+16+i,2)}, {v(RD_+24+i,2)}")
        for i in range(0, 8, 2): I(f"v_pk_add_f32 {v(RD_+i,2)}, {v(RD_+i,2)}, {v(RD_+16+i,2)}")
        for gq in range(2):
            for r in range(4):
                srcr = ACC + 2*gq + (1 - (r >> 1))
                I(f"v_lshlrev_b32 v{ACC+8}, 16, v{srcr}" if r & 1 else f"v_and_b32 v{ACC+8}, 0xffff0000, v{srcr}")
                I(f"v_fma_f32 v{RD_+4*gq+r}, v{ACC+8}, s55, v{RD_+4*gq+r}")
        for i in range(4): I(f"v_cvt_pk_bf16_f32 v{ACC+12+i}, v{RD_+2*i}, v{RD_+2*i+1}")
        for gq in range(2):
            I(f"ds_write_b64 v{VB}, {v(ACC+12+2*gq,2)} offset:{32*gq}"); lg.issue()
        I(f"v_and_b32 v{T+2}, 15, v0"); I(f"v_lshrrev_b32 v{T+1}, 4, v0"); I(f"v_lshlrev_b32 v{T+1}, 1, v{T+1}"); I(f"v_xor_b32 v{T+1}, v{T+1}, v{T+2}"); I(f"v_lshlrev_b32 v{T+1}, 4, v{T+1}")
        I(f"v_lshl_add_u32 v{VA}, v{T+2}, 8, v{T+1}"); I(f"v_add_u32 v{VA}, s51, v{VA}")
        I(f"s_lshr_b32 s48, s{SW}, 1"); I("s_lshl_b32 s48, s48, 4"); I(f"s_and_b32 s41, s{SW}, 1"); I("s_lshl_b32 s42, s41, 3")
        I(f"v_lshrrev_b32 v{T}, 4, v0"); I(f"v_lshl_add_u32 v{T+1}, v{T}, 1, s42"); I(f"v_xor_b32 v{T+1}, v{T+1}, v{T+2}"); I(f"v_lshlrev_b32 v{T+1}, 4, v{T+1}")
        I("s_and_b32 s43, s48, 16"); I(f"v_add_u32 v{T+3}, s43, v{T+2}"); I(f"v_lshl_add_u32 v{VW1}, v{T+3}, 8, v{T+1}")
        I("s_lshr_b32 s43, s48, 5"); I("s_lshl_b32 s43, s43, 16"); I(f"v_add_u32 v{VW1}, s43, v{VW1}")
        lg.wait(lg.issued); I(f"v_xor_b32 v{VB}, 16, v{VW1}"); self.barrier()
        ly = a.label("NY")
        I(f"s_cmp_lg_u32 s{SW}, 0"); I(f"s_cbranch_scc1 {ly}")
        I(f"v_add_u32 v{T}, {YB}, v{VL16}")
        for i in range(8): I(f"ds_read_b128 {v(RD_+4*i,4)}, v{T} offset:{1024*i}")
        I(f"s_lshl_b32 s44, s{SF}, 13"); I(f"s_add_u32 s44, s44, {YT_OFF}"); I("s_add_u32 s45, s44, 4096")
        I("s_waitcnt lgkmcnt(0)")
        for i in range(8): I(f"buffer_store_dwordx4 {v(RD_+4*i,4)}, v{VL16}, s[{RWS}:{RWS+3}], s{44+(i>>2)} offen offset:{1024*(i&3)}{self.st}")
        a.L(ly)
        ll = a.label("NL")
        I("s_cmp_eq_u32 s50, 1"); I(f"s_cbranch_scc1 {ll}")
        self.poll_check(VP, VPA, "s53", 1)
        for i in range(len(CSL)): cload(i)
        a.L(ll)
        self.stamp(6)
        def put_ops(st):
            L = []
            for mt in range(4):
                def f(mt=mt):
                    I(f"v_xor_b32 v{T+3}, {(8*(mt>>1)+(mt&1))*16 + 0x10000*st}, v{VA}")
                    for qt in range(2):
                        I(f"ds_write_b128 v{T+3}, {v(OACC+32*st+8*mt+4*qt,4)} offset:{4096*qt}"); lg.issue()
                L.append(f)
            return L
        def sum_partials(mid=None):
            tk = []
            for p in range(8):
                for hh in range(2):
                    I(f"ds_read_b128 {v(OACC+8*p+4*hh,4)}, v{(VW1, VB)[hh]} offset:{8192*p}"); lg.issue()
                tk.append(lg.issued)
                if p == 5 and mid: mid()
            for p in range(1, 8):
                lg.wait(tk[p])
                for e in range(0, 8, 2): I(f"v_pk_add_f32 {v(OACC+e,2)}, {v(OACC+e,2)}, {v(OACC+8*p+e,2)}")
        ymark = vm.issued; ypub = False; pm = {}; ppub = False; free = []; nc = len(CSL); XR = WSL[0]; PR_ = WSL[1]
        TS = [OACC + 32 + 8*n for n in range(4)]; ptk = {}
        def prd(p):
            r = TS[0] if p == 0 else TS[1 + (p - 1) % 3]
            for hh in range(2):
                I(f"ds_read_b128 {v(r+4*hh,4)}, v{(VW1, VB)[hh]} offset:{8192*p}"); ptk[p] = lg.issue()
        def padd(p):
            lg.wait(ptk[p]); r = TS[1 + (p - 1) % 3]
            for e in range(0, 8, 2): I(f"v_pk_add_f32 {v(TS[0]+e,2)}, {v(TS[0]+e,2)}, {v(r+e,2)}")
            if p + 3 < 8: prd(p + 3)
        def pst():
            I(f"s_lshl_b32 s44, s{SF}, 14"); I(f"s_lshl_b32 s45, s{SW}, 11"); I("s_add_u32 s54, s44, s45"); I(f"s_add_u32 s54, s54, {PP_OFF}")
            for hh in range(2):
                I(f"buffer_store_dwordx4 {v(TS[0]+4*hh,4)}, v{VL16}, s[{RWS}:{RWS+3}], s54 offen offset:{1024*hh}{self.st}"); pm["t"] = vm.issue()
        B1 = self.o.get("b1", 18); PS = self.o.get("ps", 21)
        for i2 in range(0, 32, 2):
            st = (i2 >> 3) & 1; J = i2 & 7; fill = []
            if i2 in (8, 24): fill = put_ops(0)
            if i2 == 16: fill = put_ops(1)
            if i2 == 24: self.barrier()
            if i2 == B1:
                lg.wait(lg.issued); self.barrier()
                for p in range(4): prd(p)
                fill = [lambda p=p: padd(p) for p in range(1, 8)]
                I(f"s_lshl_b32 s53, s57, 7"); I(f"s_lshl_b32 s42, s{SW}, 4"); I("s_add_u32 s53, s53, s42"); I(f"s_add_u32 s53, s53, {FY_OFF}")
                I(f"v_and_b32 v{VPA}, 3, v0"); I(f"v_lshlrev_b32 v{VPA}, 2, v{VPA}")
                tf = self.poll_issue(VP, VPA, "s53")
            if i2 == 26:
                I(f"v_and_b32 v{T+1}, 15, v0"); I(f"s_lshl_b32 s45, s56, 6"); I("s_add_u32 s45, s45, s48"); I(f"v_add_u32 v{T+1}, s45, v{T+1}")
                I(f"v_lshlrev_b32 v{T+2}, 2, v{T+1}"); I(f"s_mov_b32 s45, {G_OFF}")
                I(f"buffer_load_dword v{GR}, v{T+2}, s[{RWS}:{RWS+3}], s45 offen{self.ld}"); vm.issue()
                I(f"v_lshrrev_b32 v{T+2}, 4, v0"); I(f"v_lshlrev_b32 v{T+2}, 4, v{T+2}"); I(f"v_lshl_add_u32 v{VO}, v{T+1}, 10, v{T+2}")
                I("s_lshl_b32 s49, s41, 6"); I(f"s_lshl_b32 s45, s57, 7"); I("s_add_u32 s49, s49, s45")
                I(f"buffer_load_dwordx4 {v(XR,4)}, v{VO}, s[{RD}:{RD+3}], s49 offen"); vm.issue()
                vm.wait(tf); self.poll_check(VP, VPA, "s53", 1)
                I(f"v_lshrrev_b32 v{T}, 3, v0"); I(f"v_and_b32 v{T+1}, 7, v0"); I(f"v_lshlrev_b32 v{T+1}, 4, v{T+1}")
                I(f"v_lshl_add_u32 v{T}, v{T}, 12, v{T+1}")
                I(f"s_add_u32 m0, s{SWK}, {YT}")
                I(f"s_lshl_b32 s44, s57, 18"); I(f"s_lshl_b32 s45, s{SW}, 15"); I("s_add_u32 s44, s44, s45")
                I(f"s_lshl_b32 s45, s56, 7"); I("s_add_u32 s44, s44, s45"); I(f"s_add_u32 s44, s44, {YT_OFF}")
                I(f"buffer_load_dwordx4 v{T}, s[{RWS}:{RWS+3}], s44 offen{self.ld} lds"); vm.issue()
            vm.wait(max(ctok[i2+1], wtok[2*J+3]))
            if not ypub and vm.done > ymark:
                ypub = True; I(f"s_lshl_b32 s44, s{SF}, 2"); I(f"s_add_u32 s44, s44, {FY_OFF}"); self.publish(44, 3)
            if pm and not ppub and vm.done >= pm["t"]:
                ppub = True
                I(f"s_lshl_b32 s44, s{SF}, 7"); I(f"s_lshl_b32 s45, s{SW}, 2"); I("s_add_u32 s44, s44, s45"); I(f"s_add_u32 s44, s44, {FP_OFF}")
                I("v_mov_b32 v2, 1"); I("v_mov_b32 v3, 0"); I(f"buffer_store_dword v2, v3, s[{RWS}:{RWS+3}], s44 offen sc1"); vm.issue()
            if i2 == 30:
                I(f"s_xor_b32 s53, s{SF}, 32"); I("s_lshl_b32 s53, s53, 7"); I(f"s_lshl_b32 s42, s{SW}, 2"); I("s_add_u32 s53, s53, s42"); I(f"s_add_u32 s53, s53, {FP_OFF}")
                I(f"v_mov_b32 v{VPA}, 0")
                if self.o.get("pe"): tp = self.poll_issue(VP, VPA, "s53")
            M = []
            for mt in range(4):
                for qt in range(2):
                    for u in range(2):
                        d = v(OACC + 32*st + 8*mt + 4*qt, 4)
                        M.append(lambda d=d, mt=mt, qt=qt, u=u: I(f"v_mfma_f32_16x16x32_bf16 {d}, {v(WSL[2*(J+u) + (mt >> 1)]+4*(mt & 1),4)}, {v(cslot[i2+u]+4*qt,4)}, {'0' if J + u == 0 else d}"))
            self.stream(M, [(1, 16, fill)] if fill else [])
            free += [cslot[i2], cslot[i2+1]]
            while free and nc < 32:
                cslot[nc] = free.pop(0); cload(nc); nc += 1
            if i2 + 1 == PS or i2 == PS: pst()
        assert ypub and ppub
        self.stamp(7)
        if not self.o.get("pe"):
            tp = self.poll_issue(VP, VPA, "s53")
            for f in put_ops(1): f()
        vm.wait(tp); self.poll_check(VP, VPA, "s53", 1)
        if self.o.get("ostamp"): self.stamp(20)
        I("s_xor_b32 s54, s54, 0x80000")
        for hh in range(2):
            I(f"buffer_load_dwordx4 {v(PR_+4*hh,4)}, v{VL16}, s[{RWS}:{RWS+3}], s54 offen offset:{1024*hh}{self.ld}"); tpp = vm.issue()
        if self.o.get("pe"):
            for f in put_ops(1): f()
        I(f"v_lshrrev_b32 v{T}, 4, v0"); I("s_lshl_b32 s42, s41, 5"); I(f"v_lshl_add_u32 v{T}, v{T}, 3, s42"); I(f"v_bfe_u32 v{T+1}, v0, 2, 2")
        I(f"v_add_u32 v{T}, v{T}, v{T+1}"); I(f"v_lshlrev_b32 v{T}, 7, v{T}"); I(f"v_and_b32 v{T+1}, 3, v0")
        I(f"v_lshl_add_u32 v{T}, v{T+1}, 3, v{T}"); I("s_lshl_b32 s42, s48, 1"); I(f"s_add_u32 s42, s42, {YT}"); I(f"v_add_u32 v{T}, s42, v{T}")
        lg.wait(lg.issued); self.barrier()
        I(f"ds_read_b64_tr_b16 {v(100,2)}, v{T}"); lg.issue()
        I(f"ds_read_b64_tr_b16 {v(102,2)}, v{T} offset:512"); ty2 = lg.issue()
        def mix():
            lg.wait(ty2)
            for e in range(8):
                if e & 1: I(f"v_and_b32 v104, 0xffff0000, v{XR+(e>>1)}"); I(f"v_and_b32 v105, 0xffff0000, v{100+(e>>1)}")
                else: I(f"v_lshlrev_b32 v104, 16, v{XR+(e>>1)}"); I(f"v_lshlrev_b32 v105, 16, v{100+(e>>1)}")
                I(f"v_mul_f32 v{112+e}, v104, v105"); I(f"v_mul_f32 v{112+e}, v{112+e}, v{GR}")
            I(f"v_sub_f32 v{GR}, 1.0, v{GR}")
        sum_partials(mix)
        vm.wait(tpp)
        for e in range(0, 8, 2): I(f"v_pk_add_f32 {v(OACC+e,2)}, {v(OACC+e,2)}, {v(PR_+e,2)}")
        for e in range(8): I(f"v_fmac_f32 v{112+e}, v{OACC+4*(e&1)+(e>>1)}, v{GR}")
        for e in range(4): I(f"v_cvt_pk_bf16_f32 v{108+e}, v{112+2*e}, v{112+2*e+1}")
        I(f"buffer_store_dwordx4 {v(108,4)}, v{VO}, s[{RC}:{RC+3}], s49 offen sc1"); vm.issue()
        self.stamp(16)
        if self.o.get("echo"):
            lp = a.label("EC")
            I("s_sub_u32 s100, s100, s96")
            if self.o.get("cyc"): I("s_lshr_b32 s100, s100, 4")
            I("s_memrealtime s[96:97]"); I("s_waitcnt lgkmcnt(0)")
            a.L(lp)
            I("s_memrealtime s[98:99]"); I("s_waitcnt lgkmcnt(0)"); I("s_sub_u32 s98, s98, s96"); I("s_cmp_lt_u32 s98, s100"); I(f"s_cbranch_scc1 {lp}")
        if self.o.get("dbgout") is not None:
            l = a.label("DB")
            I(f"s_cmp_lg_u32 s2, {self.o['dbgout']}"); I(f"s_cbranch_scc1 {l}"); I(f"s_cmp_lg_u32 s{SW}, 0"); I(f"s_cbranch_scc1 {l}")
            I("s_waitcnt vmcnt(0)")
            order = [0, 1, 2, 3, 8, 10, 11, 4, 5, 12, 6, 7, 16]
            I("v_mov_b32 v20, 0")
            for j, i in enumerate(order):
                I(f"s_mov_b32 s44, {4*i}"); I(f"v_writelane_b32 v20, s44, {j}")
            I(f"s_lshl_b32 s44, s2, 11"); I(f"s_add_u32 s44, s44, {STAMP_OFF}")
            I(f"buffer_load_dword v21, v20, s[{RWS}:{RWS+3}], s44 offen sc1"); I("s_waitcnt vmcnt(0)")
            I("v_readfirstlane_b32 s45, v21"); I("v_subrev_u32 v21, s45, v21")
            self.srd(RDBG, "dbg", 64); I("v_lshlrev_b32 v22, 2, v0")
            I(f"buffer_store_dword v21, v22, s[{RDBG}:{RDBG+3}], 0 offen")
            a.L(l)

HEADER = """; One persistent launch, one 8-wave workgroup per CU (generated by gen/gen_final.py, hand-designed schedule).
"""
def build(opts):
    g = G(opts); k = NAME + "_kernel"
    g.begin(k); g.a.T("; MARK p"); g.proj(); g.a.T("; MARK a"); g.attn(); g.a.T("; MARK t"); g.tailp(); g.end(); g.a.T("; MARK a"); g.attn_rare(); g.a.T("; MARK t"); g.a.L("CODE_END"); g.a.I("s_endpgm")
    n = g.a.fix_hazards()
    txt = "; @launch grid=(256,1,1) block=(512,1,1) lds=163840\n" + HEADER
    txt += '.amdgcn_target "amdgcn-amd-amdhsa--gfx950"\n.text\n' + g.a.text()
    txt += f""".section .rodata,"a"
.p2align 6
.amdhsa_kernel {k}
  .amdhsa_next_free_vgpr 256
  .amdhsa_next_free_sgpr 102
  .amdhsa_accum_offset 256
  .amdhsa_group_segment_fixed_size 0
  .amdhsa_kernarg_size 128
  .amdhsa_user_sgpr_count 2
  .amdhsa_user_sgpr_kernarg_segment_ptr 1
  .amdhsa_system_sgpr_workgroup_id_x 1
.end_amdhsa_kernel
"""
    print(f"instructions {sum(1 for it in g.a.items if it[0] == 'i')}, nops inserted {n}", file=sys.stderr)
    return txt

if __name__ == "__main__":
    opts = {}
    for x in sys.argv[2:]:
        if "=" in x: k_, v_ = x.split("="); opts[k_] = int(v_)
        else: opts[x] = True
    open(sys.argv[1], "w").write(build(opts))
```

```python
import sys, math, struct
sys.path.insert(0, "gen")
from asmlib import *

NAME = "gated_mix__ssm_conv_h3__compressed_kv_cla__prompt"
MB = 1 << 20
KV_OFF, Q_OFF, CTX_OFF, KVT_OFF, YT_OFF, G_OFF = 0, 32*MB, 48*MB, 64*MB, 66*MB, 68*MB
XC_OFF = 40*MB
PP_OFF = 40*MB
WOT_OFF = 32*MB
FLG_OFF = 68*MB + 65536
FK_OFF, FY_OFF, FC_OFF, FP_OFF = FLG_OFF, FLG_OFF + 4096, FLG_OFF + 8192, FLG_OFF + 32768
STAMP_OFF = 69*MB
WS_SIZE = 70*MB
P = dict(q=64, k=66, v=68, shift=70, ssmk=72, ssmD=74, bx=76, ckv=78, wq=80, wuk=82, wuv=84, wo=86, gate=88, out=90, dbg=92, ws=94)
SW, SHEAD, SIDX, SWK, SF = 3, 4, 5, 6, 7
RA, RB, RC, RWS, RD, RE, RT, RDBG = 8, 12, 16, 20, 24, 28, 56, 60
MFMA = "v_mfma_f32_32x32x16_bf16"
LOG2E = 1.4426950408889634
F_KV, F_CA, F_CB, F_Y = 1, 2, 4, 8
def f2u(x): return "0x%08x" % struct.unpack("<I", struct.pack("<f", x))[0]
def rep4(b): return b * 0x01010101

class G:
    def __init__(self, opts):
        self.a = Asm(); self.o = opts
        self.GSH, self.FSH = (8, 10) if opts.get("lin") else (11, 8)
        self.vm = Cnt(self.a, "vmcnt", 63); self.lg = Cnt(self.a, "lgkmcnt", 15)
        self.st = "" if opts.get("plainst") else (" sc1 nt" if opts.get("ntst") else " sc1"); self.ld = "" if opts.get("plainld") else " sc1"
    def I(self, t): self.a.I(t)
    def srd(self, r, ptr, nbytes):
        I = self.I
        I(f"s_mov_b32 s{r}, s{P[ptr]}"); I(f"s_mov_b32 s{r+1}, s{P[ptr]+1}")
        I(f"s_mov_b32 s{r+2}, {nbytes}"); I(f"s_mov_b32 s{r+3}, 0x00020000")
    def save(self): return (self.vm.issued, self.vm.done, self.lg.issued, self.lg.done)
    def restore(self, s_): self.vm.issued, self.vm.done, self.lg.issued, self.lg.done = s_
    def stream(self, mf, fills):
        n = len(mf); slots = [[] for _ in range(n + 1)]
        for (s0, e0, cl) in fills:
            m = e0 - s0
            for j, c in enumerate(cl): slots[s0 + 1 + (j * m) // len(cl)].append(c)
        for c in slots[0]: c()
        for i in range(n):
            mf[i]()
            for c in slots[i+1]: c()
    def stamp(self, i, dyn=None):
        if self.o.get("echo") == i:
            self.I("s_memtime s[100:101]" if self.o.get("cyc") else "s_memrealtime s[100:101]"); self.I("s_waitcnt lgkmcnt(0)")
        if not self.o.get("stamp"): return
        I = self.I
        I("s_memrealtime s[96:97]"); I("s_memtime s[100:101]")
        I("s_lshl_b32 s98, s2, 3"); I(f"s_add_u32 s98, s98, s{SW}"); I("s_lshl_b32 s98, s98, 8")
        I(f"s_add_u32 s98, s98, {STAMP_OFF + 4*i}")
        if dyn is not None:
            I(f"s_lshl_b32 s99, s{dyn}, 4"); I("s_add_u32 s98, s98, s99")
        I("s_waitcnt lgkmcnt(0)")
        I("v_mov_b32 v2, s96"); I("v_mov_b32 v3, 0")
        I(f"buffer_store_dword v2, v3, s[{RWS}:{RWS+3}], s98 offen")
        I("v_mov_b32 v2, s100")
        I(f"buffer_store_dword v2, v3, s[{RWS}:{RWS+3}], s98 offen offset:128")
    OOB = 0x40000000
    def publish(self, soff, val=1, srd=RWS, byte=False, idx=None):
        I = self.I
        self.oob_sel()
        if idx is not None: I(f"s_and_b32 s98, s{SIDX}, 3"); I(f"s_cmp_eq_u32 s98, {idx}"); I(f"s_cselect_b32 s99, s99, {self.OOB}")
        I(f"v_mov_b32 v2, {val}"); I("v_mov_b32 v3, s99")
        I(f"buffer_store_{'byte' if byte else 'dword'} v2, v3, s[{srd}:{srd+3}], s{soff} offen sc1"); self.vm.issue()
    def oob_sel(self):
        self.I(f"s_cmp_eq_u32 s{SW}, 0"); self.I(f"s_cselect_b32 s99, 0, {self.OOB}")
    def poll_issue(self, vd, vaddr, soff, srd=RWS):
        self.I(f"buffer_load_dword v{vd}, v{vaddr}, s[{srd}:{srd+3}], {soff} offen sc1"); return self.vm.issue()
    def poll_check(self, vd, vaddr, soff, want, srd=RWS):
        a = self.a; I = self.I
        l = a.label("PCK"); lp = a.label("POLL")
        I(f"s_mov_b32 s98, {want}"); I("s_mov_b32 s99, 20000")
        a.L(lp)
        I(f"v_and_b32 v{vd}, s98, v{vd}"); I(f"v_cmp_ne_u32 vcc, s98, v{vd}"); I(f"s_cbranch_vccz {l}")
        I("s_sleep 2")
        I(f"buffer_load_dword v{vd}, v{vaddr}, s[{srd}:{srd+3}], {soff} offen sc1")
        I("s_sub_u32 s99, s99, 1"); I("s_cmp_lg_u32 s99, 0"); I("s_waitcnt vmcnt(0)"); I(f"s_cbranch_scc1 {lp}")
        a.L(l)
    def phys(self, d, s_, t, E=None):
        I = E or self.I; p = self.o.get("hperm", 0)
        if p == 0: I(f"s_mov_b32 s{d}, s{s_}")
        elif p == 1: I(f"s_and_b32 s{t}, s{s_}, 3"); I(f"s_lshl_b32 s{t}, s{t}, 3"); I(f"s_lshr_b32 s{d}, s{s_}, 2"); I(f"s_or_b32 s{d}, s{d}, s{t}")
        elif p >= 32:
            I(f"s_lshr_b32 s{t}, s{s_}, 3"); I(f"s_add_u32 s{t}, s{t}, {p - 32}"); I(f"s_and_b32 s{t}, s{t}, 3")
            I(f"s_and_b32 s{d}, s{s_}, 7"); I(f"s_lshl_b32 s{d}, s{d}, 2"); I(f"s_or_b32 s{d}, s{d}, s{t}")
        else: I(f"s_mul_i32 s{t}, s{s_}, {p}"); I(f"s_and_b32 s{d}, s{t}, 31")
    def barrier(self): self.I("s_barrier")
    def sync_all(self):
        self.I("s_waitcnt vmcnt(0) lgkmcnt(0)"); self.vm.mark_all_done(); self.lg.mark_all_done(); self.barrier()

    def begin(self, kname):
        a = self.a; I = self.I
        a.T(f".globl {kname}\n.p2align 8\n.type {kname},@function"); a.L(kname)
        self.endl = a.label("END")
        if self.o.get("stamp"): I("s_memrealtime s[30:31]")
        if self.o.get("echo"): I("s_memtime s[96:97]" if self.o.get("cyc") else "s_memrealtime s[96:97]")
        I("s_load_dwordx16 s[64:79], s[0:1], 0"); I("s_load_dwordx16 s[80:95], s[0:1], 64")
        I("s_cmp_ge_u32 s2, 256"); I(f"s_cbranch_scc1 {self.endl}")
        I("v_lshrrev_b32 v1, 6, v0"); I("v_and_b32 v0, 63, v0"); I(f"v_readfirstlane_b32 s{SW}, v1")
        I("s_and_b32 s7, s2, 7"); I("s_lshl_b32 s7, s7, 2")
        I(f"s_lshr_b32 s{SIDX}, s2, 3"); I(f"s_lshr_b32 s{SHEAD}, s{SIDX}, 3"); I(f"s_add_u32 s{SHEAD}, s{SHEAD}, s7")
        I(f"s_and_b32 s{SIDX}, s{SIDX}, 7"); I(f"s_lshl_b32 s{SWK}, s{SW}, 10")
        I(f"s_lshl_b32 s{SF}, s{SHEAD}, 3"); I(f"s_add_u32 s{SF}, s{SF}, s{SIDX}")
    def end(self):
        self.a.L(self.endl); self.I("s_endpgm")

    def proj(self):
        a = self.a; I = self.I; vm = self.vm; lg = self.lg
        QA_LDS = 65536
        ACC = {"K": 64, "V": 128, "Q": 64}
        FX = [16, 24]; FW = [192, 32]
        VWA = 4; VSK, VSV, VOX, VOW, VST = 8, 9, 10, 11, 12; VXA = 224; T = 232
        NB = 0; XC = self.o.get("xc", 0)
        ST = [("KV", c) for c in range(NB)] + [("K", c) for c in range(NB, 8)] + [("V", c) for c in range(7, NB - 1, -1)] + [("Q", c) for c in range(8)]
        NS = len(ST); TK = 7; TV = NS - 9; TQ = NS - 8
        I("v_lshrrev_b32 v13, 3, v0"); I(f"s_lshl_b32 s40, s{SW}, 3"); I("v_add_u32 v13, s40, v13"); I("v_lshlrev_b32 v13, 10, v13")
        I(f"s_lshr_b32 s41, s{SW}, 1"); I(f"s_xor_b32 s40, s41, s{SW}"); I("s_and_b32 s40, s40, 1"); I("s_lshl_b32 s40, s40, 2")
        I("v_lshrrev_b32 v14, 4, v0"); I("v_add_u32 v15, s40, v14")
        I("v_and_b32 v3, 7, v0"); I("v_xor_b32 v15, v15, v3"); I(f"v_lshl_add_u32 v{VOX}, v15, 4, v13")
        I(f"s_lshl_b32 s40, s{SW}, 2"); I("v_add_u32 v13, s40, v14"); I("v_lshlrev_b32 v13, 13, v13")
        I("s_and_b32 s41, s41, 1"); I("s_lshl_b32 s41, s41, 3"); I("v_lshl_add_u32 v15, v14, 1, s41"); I("v_and_b32 v3, 15, v0"); I("v_xor_b32 v15, v15, v3")
        I("v_lshl_add_u32 v13, v15, 4, v13"); self.phys(40, SHEAD, 41); I("s_lshl_b32 s40, s40, 8"); I(f"v_add_u32 v{VOW}, s40, v13")
        I(f"v_lshlrev_b32 v{VST}, 4, v0")
        I(f"s_lshl_b32 s44, s{SIDX}, 18")
        for i in range(1, 4): I(f"s_add_u32 s{44+i}, s44, {65536*i}")
        ROT = self.o.get("rot", 2)
        if ROT == 0: I("s_mov_b32 s33, 0")
        elif ROT == 1: I(f"s_mov_b32 s33, s{SIDX}")
        elif ROT == 2: I(f"s_lshr_b32 s33, s{SHEAD}, 2"); I(f"s_add_u32 s33, s33, s{SIDX}")
        elif ROT == 3: I(f"s_lshr_b32 s33, s{SHEAD}, 2"); I(f"s_add_u32 s33, s33, s{SIDX}"); I(f"s_lshl_b32 s34, s{SHEAD}, 1"); I("s_add_u32 s33, s33, s34")
        elif ROT == 4: I(f"s_lshr_b32 s33, s{SHEAD}, 2")
        if self.o.get("rotq"): I(f"s_lshl_b32 s32, s{SHEAD}, 1"); I("s_add_u32 s32, s32, s33")
        else: I("s_mov_b32 s32, s33")
        I("s_waitcnt lgkmcnt(0)")
        if self.o.get("stamp"): I("s_memrealtime s[28:29]")
        self.srd(RA, "ckv", 2*MB); self.srd(RB, "wuk", 4*MB); self.srd(RC, "wuv", 4*MB)
        def xbase(t):
            k, c = ST[t]
            return (32768, 131072, 0)[((16 + c) if k == "Q" else (15 - c + NB)) % 3]
        units = [(t, m) for t in range(NS) for m in ST[t][0]]
        uidx = {u: i for i, u in enumerate(units)}
        def wbase(t, m): return 65536 + (uidx[(t, m)] % 4)*16384
        WE = self.o.get("wearly", 2)
        def wn(t): return t - 1 if t >= WE else t
        items = []
        lastx = {}
        for t in range(NS):
            k, c = ST[t]
            for m in k:
                u = uidx[(t, m)]
                def w(i, t=t, m=m, c=c):
                    if i == 0: I(f"s_add_u32 s34, s{32 if m == 'Q' else 33}, {c}"); I("s_and_b32 s34, s34, 7"); I("s_lshl_b32 s34, s34, 19")
                    I(f"s_add_u32 m0, s{SWK}, {wbase(t, m) + i*8192}"); I(f"s_add_u32 s41, s34, {i*262144}")
                    r = {"K": RB, "V": RC, "Q": RE}[m]
                    if self.o.get("nodma") and t > 4: dtok[wn(t)] = vm.issued; return
                    I(f"buffer_load_dwordx4 v{VOW}, s[{r}:{r+3}], s41 offen lds"); dtok[wn(t)] = vm.issue()
                items.append((wn(t), wn(units[u-4][0]) if u >= 4 else -1, [lambda i=i, w=w: w(i) for i in range(2)]))
            key = ("Q" if k == "Q" else "C", c); prev = lastx.get(xbase(t))
            if prev is None or prev[1] != key:
                def x(i, t=t, k=k, c=c):
                    if i == 0: I(f"s_add_u32 s35, s{32 if k == 'Q' else 33}, {c}"); I("s_and_b32 s35, s35, 7"); I("s_lshl_b32 s35, s35, 7")
                    I(f"s_add_u32 m0, s{SWK}, {xbase(t) + i*8192}"); I(f"s_add_u32 s41, s{(48 if k == 'Q' else 44)+i}, s35")
                    r = (RWS if XC else RD) if k == "Q" else RA
                    if self.o.get("nodma") and t > 4: dtok[t] = vm.issued; return
                    I(f"buffer_load_dwordx4 v{VOX}, s[{r}:{r+3}], s41 offen{self.ld if (XC and k == 'Q') else ''} lds"); dtok[t] = vm.issue()
                items.append((t, prev[0] if prev else -1, [lambda i=i, x=x: x(i) for i in range(4)]))
            lastx[xbase(t)] = (t, key)
        items.sort(key=lambda it: it[0])
        dtok = {}
        def take(done, upto=99):
            out = []
            for it in list(items):
                if it[1] <= done and it[0] <= upto: out += it[2]; items.remove(it)
            return out
        for f in take(-1, 0): f()
        self.srd(RWS, "ws", WS_SIZE); self.srd(RDBG, "dbg", 256)
        if self.o.get("wsoff"): I(f"s_add_u32 s{RWS}, s{RWS}, {self.o['wsoff']*MB}"); I(f"s_addc_u32 s{RWS+1}, s{RWS+1}, 0")
        self.stamp(31)
        if self.o.get("stamp"):
            I("v_mov_b32 v2, s30"); I("s_sub_u32 s98, s98, 124"); I(f"buffer_store_dword v2, v3, s[{RWS}:{RWS+3}], s98 offen")
            I("v_mov_b32 v2, s28"); I(f"buffer_store_dword v2, v3, s[{RWS}:{RWS+3}], s98 offen offset:120")
        I(f"s_lshl_b32 s48, s{SIDX}, 17"); I("s_add_u32 s49, s48, 65536")
        I(f"s_sub_u32 s50, 15, s{SIDX}"); I("s_lshl_b32 s50, s50, 17"); I("s_add_u32 s51, s50, 65536")
        if XC:
            for i in range(4): I(f"s_add_u32 s{48+i}, s{48+i}, {XC_OFF}")
        I(f"s_and_b32 s42, s{SW}, 3"); I("s_lshl_b32 s42, s42, 6"); I(f"s_lshr_b32 s43, s{SW}, 2"); I("s_lshl_b32 s43, s43, 1")
        I("v_and_b32 v13, 15, v0"); I("v_lshrrev_b32 v15, 4, v0")
        I("v_lshrrev_b32 v14, 1, v13"); I("v_xor_b32 v14, v14, v15"); I("v_lshlrev_b32 v14, 4, v14")
        I("v_add_u32 v3, s42, v13"); I(f"v_lshl_add_u32 v{VXA}, v3, 7, v14")
        I("v_and_b32 v2, 8, v13"); I("v_add_u32 v3, v3, v2"); I(f"v_lshl_add_u32 v{VXA+4}, v3, 7, v14")
        for pt in range(2):
            b = VXA + 4*pt
            I(f"v_xor_b32 v{b+1}, 64, v{b}"); I(f"v_add_u32 v{b+2}, 0x20000, v{b}"); I(f"v_add_u32 v{b+3}, 0x20000, v{b+1}")
        I("v_lshlrev_b32 v3, 4, v13"); I("v_and_b32 v2, 1, v15"); I("v_lshl_add_u32 v3, v2, 9, v3"); I("v_lshrrev_b32 v14, 1, v15")
        I("v_lshlrev_b32 v3, 4, v13"); I(f"v_lshl_add_u32 v{VSK}, v15, {self.GSH}, v3")
        I("v_bfe_u32 v13, v0, 2, 2"); I("v_lshl_add_u32 v14, v15, 3, v13"); I("v_lshlrev_b32 v14, 8, v14")
        I("v_and_b32 v3, 3, v0"); I("v_lshl_add_u32 v14, v3, 3, v14"); I("v_add_u32 v14, 0x10000, v14")
        I("v_lshl_add_u32 v13, v2, 2, v13"); I("s_lshl_b32 s40, s43, 1"); I("v_xor_b32 v13, s40, v13"); I(f"v_lshl_add_u32 v{VWA}, v13, 5, v14")
        for dt in range(1, 4): I(f"v_xor_b32 v{VWA+dt}, {dt << 5}, v{VWA}")
        I(f"s_lshl_b32 s54, s{SHEAD}, 4"); I(f"s_lshl_b32 s55, s{SIDX}, 1"); I("s_add_u32 s54, s54, s55")
        I(f"s_bfe_u32 s55, s{SW}, 0x10001"); I("s_add_u32 s54, s54, s55"); I("s_lshl_b32 s54, s54, 16")
        I(f"s_and_b32 s55, s{SW}, 1"); I("s_lshl_b32 s55, s55, 14"); I("s_add_u32 s54, s54, s55")
        I(f"s_lshl_b32 s55, s43, {self.FSH+1}"); I("s_add_u32 s52, s54, s55"); I("s_add_u32 s52, s52, 0x8000")
        I(f"s_lshl_b32 s55, s43, {self.FSH}"); I("s_add_u32 s54, s54, s55")
        XG = T; GW = T + 4; hl = {}
        def gate_loads():
            L = []
            def E(t): L.append(lambda: I(t))
            def V(t):
                def f(): I(t); hl["t"] = vm.issue()
                L.append(f)
            E(f"s_lshl_b32 s40, s{SHEAD}, 7"); E(f"s_lshl_b32 s39, s{SIDX}, 2"); E("s_add_u32 s40, s40, s39"); E(f"s_add_u32 s40, s40, {FK_OFF}")
            E(f"s_lshl_b32 s39, s{SF}, 7"); E(f"s_add_u32 s39, s39, {FP_OFF}"); E("v_and_b32 v13, 7, v0"); E("v_lshl_add_u32 v13, v13, 2, s39")
            E("v_writelane_b32 v13, s40, 0")
            E(f"s_lshr_b32 s39, s{SHEAD}, 2"); E("s_lshl_b32 s39, s39, 7"); E(f"s_and_b32 s40, s{SHEAD}, 3"); E("s_lshl_b32 s40, s40, 2"); E("s_add_u32 s39, s39, s40")
            E(f"s_lshl_b32 s40, s{SIDX}, 10"); E("s_add_u32 s40, s40, s39"); E(f"s_add_u32 s40, s40, {FC_OFF}")
            E("v_writelane_b32 v13, s40, 1")
            E(f"s_sub_u32 s40, 15, s{SIDX}"); E("s_lshl_b32 s40, s40, 10"); E("s_add_u32 s40, s40, s39"); E(f"s_add_u32 s40, s40, {FC_OFF}")
            E("v_writelane_b32 v13, s40, 2")
            E(f"s_lshl_b32 s40, s{SF}, 2"); E(f"s_add_u32 s40, s40, {FY_OFF}"); E("v_writelane_b32 v13, s40, 3"); E("v_mov_b32 v14, 0")
            def oo(): self.oob_sel(); I("v_add_u32 v13, s99, v13")
            L.append(oo)
            V(f"buffer_store_dword v14, v13, s[{RWS}:{RWS+3}], 0 offen sc1")
            E("s_lshl_b32 s37, s2, 3"); E(f"s_add_u32 s37, s37, s{SW}"); E("s_lshl_b32 s38, s37, 10")
            L.append(lambda: self.srd(RD, "q", 2*MB)); L.append(lambda: self.srd(RE, "wq", 4*MB)); L.append(lambda: self.srd(RT, "gate", 1024))
            V(f"buffer_load_dwordx4 {v(XG,4)}, v{VST}, s[{RD}:{RD+3}], s38 offen")
            V(f"buffer_load_dwordx4 {v(GW,4)}, v{VST}, s[{RT}:{RT+3}], 0 offen")
            return L
        def gate_ops():
            L = []; E = lambda t: L.append(lambda: I(t)); Z = T + 8
            L.append(lambda: vm.wait(hl["t"]))
            def xs():
                I(f"s_add_u32 s38, s38, {XC_OFF}"); I(f"buffer_store_dwordx4 {v(XG,4)}, v{VST}, s[{RWS}:{RWS+3}], s38 offen{self.st}"); vm.issue()
            if XC: L.append(xs)
            E(f"v_dot2_f32_bf16 v{Z}, v{XG}, v{GW}, 0")
            for i in range(1, 4): E(f"v_dot2_f32_bf16 v{Z}, v{XG+i}, v{GW+i}, v{Z}")
            for m in ("quad_perm:[1,0,3,2] row_mask:0xf", "quad_perm:[2,3,0,1] row_mask:0xf", "row_half_mirror row_mask:0xf", "row_mirror row_mask:0xf",
                      "row_bcast:15 row_mask:0xa", "row_bcast:31 row_mask:0xc"):
                E(f"v_add_f32_dpp v{Z}, v{Z}, v{Z} {m} bank_mask:0xf")
            E(f"v_readlane_b32 s36, v{Z}, 63"); E(f"v_mov_b32 v{Z+1}, {f2u(-LOG2E)}"); E(f"v_mul_f32 v{Z}, s36, v{Z+1}")
            E(f"v_exp_f32 v{Z}, v{Z}"); E(f"v_add_f32 v{Z}, 1.0, v{Z}"); E(f"v_rcp_f32 v{Z}, v{Z}")
            E("s_lshl_b32 s38, s37, 2"); E(f"s_add_u32 s38, s38, {G_OFF}"); E(f"v_mov_b32 v{Z+1}, 0")
            def gs():
                I(f"buffer_store_dword v{Z}, v{Z+1}, s[{RWS}:{RWS+3}], s38 offen{self.st}"); vm.issue()
            L.append(gs)
            return L
        toks = {}
        def rdx(t, mt):
            m = ST[t][0]; xb = xbase(t); pt = 0
            off = (xb & 65535) + ((mt >> 1)*4096 + (mt & 1)*1024 if pt else mt*2048)
            def f(kk):
                va = VXA + 4*pt + 2*(xb >> 17) + (kk ^ (mt & 1))
                I(f"ds_read_b128 {v(FX[mt & 1]+4*kk,4)}, v{va} offset:{off}"); toks[("x", t, mt, kk)] = lg.issue()
            return [lambda: f(0), lambda: f(1)]
        def rdw(t, dt):
            m = ST[t][0]
            def f(kk, h):
                I(f"ds_read_b64_tr_b16 {v(FW[t & 1]+8*dt+4*kk+2*h,2)}, v{VWA+dt} offset:{wbase(t, m)-65536+kk*8192+h*1024}"); toks[("w", t, dt, kk)] = lg.issue()
            return [lambda kk=kk, h=h: f(kk, h) for kk in range(2) for h in range(2)]
        def atile(m, mt, dt): return ACC[m] + (4*(((mt >> 1)*4 + dt)*2 + (mt & 1)) if m == "V" else 4*(mt*4 + dt))
        def mfs(t, mt):
            m = ST[t][0]; first = t == 0 or ST[t-1][0] != m; L = []
            order = [(dt, kk) for dt in range(4) for kk in range(2)] if not self.o.get("nochain") else [(dt, kk) for kk in range(2) for dt in range(4)]
            for dt, kk in order:
                def f(dt=dt, kk=kk):
                    lg.wait(max(toks[("x", t, mt, kk)], toks[("w", t, dt, kk)]))
                    d = v(atile(m, mt, dt), 4); X = v(FX[mt & 1]+4*kk, 4); W = v(FW[t & 1]+8*dt+4*kk, 4)
                    c = "0" if (first and kk == 0) else d
                    I(f"v_mfma_f32_16x16x32_bf16 {d}, {X}, {W}, {c}" if m == "V" else f"v_mfma_f32_16x16x32_bf16 {d}, {W}, {X}, {c}")
                L.append(f)
            return L
        def pieces(m):
            fs = 1024 if m == "Q" else 1 << self.FSH
            if m == "V": return [(atile(m, 2*p, dt), p*8192 + dt*fs) for p in range(2) for dt in range(4)]
            return [(atile(m, mt, 2*j), (mt >> 1)*8192 + ((mt & 1)*4 + j)*fs) for mt in range(4) for j in range(2)]
        def kv_out(m):
            out = []
            for b, off in pieces(m):
                pk = [lambda i=i, b=b: I(f"v_cvt_pk_bf16_f32 v{b+i}, v{b+2*i}, v{b+2*i+1}") for i in range(4)]
                if m == "K": pk = [lambda i=i, b=b: I(f"v_mul_f32 v{b+i}, {f2u(LOG2E / math.sqrt(128.0))}, v{b+i}") for i in range(8)] + pk
                def st(b=b, off=off):
                    if self.o.get("nost"): return
                    I(f"s_add_u32 s41, s{54 if m == 'K' else 52}, {off}")
                    I(f"buffer_store_dwordx4 {v(b,4)}, v{VSK}, s[{RWS}:{RWS+3}], s41 offen{self.st}"); vm.issue()
                out.append((pk, st))
            return out
        side = {}; late = {}
        def spread(ops, t0, t1, dst=side, ks=(0, 1, 2)):
            sl = [(t, k) for t in range(t0, t1) for k in ks]; n = len(ops)
            for j, key in enumerate(sl): dst.setdefault(key, []).extend(ops[n*j//len(sl): n*(j+1)//len(sl)])
        PG = self.o.get("pg", 0)
        spread(gate_loads(), PG, PG + 1); spread(gate_ops(), PG + 2, PG + 3)
        def wtouch(r, half, wv):
            def f():
                I(f"s_cmp_eq_u32 s{SW}, {wv}"); I(f"s_cselect_b32 s99, 0, {self.OOB}")
                self.phys(39, SHEAD, 40); I("s_lshl_b32 s39, s39, 8"); I(f"s_lshl_b32 s40, s{SIDX}, 19"); I("s_add_u32 s40, s40, s39"); I(f"s_add_u32 s40, s40, {half*32*8192}")
                I("v_lshrrev_b32 v3, 1, v0"); I("v_lshlrev_b32 v3, 13, v3"); I("v_and_b32 v2, 1, v0"); I("v_lshl_add_u32 v3, v2, 7, v3"); I("v_add_u32 v3, s99, v3")
                I(f"buffer_load_dword v1, v3, s[{r}:{r+3}], s40 offen"); vm.issue()
            return f
        for nm, r, dflt in (("tk", RB, -1), ("tv", RC, 1), ("tq", RE, 3)):
            t0 = self.o.get(nm, dflt)
            if t0 >= 0:
                for half in range(2): side.setdefault((t0 + half, 2), []).append(wtouch(r, half, half))
        KN = self.o.get("kn", 8); VD = self.o.get("vd", 0); VN = self.o.get("vn", 5)
        KO = kv_out("K"); VO = kv_out("V"); SK = self.o.get("sk", 2); SG_ = self.o.get("sgp", 6)
        spread(sum((p for p, _ in KO), []), TK + 1, min(TK + 3, TQ), ks=(0, 1))
        npk = 2 * (min(TK + 3, TQ) - TK - 1)
        spread([s_ for _, s_ in KO], TK + 1, TK + 1 + KN, dst=late, ks=(SK,))
        spread(sum((p for p, _ in VO), []), TQ, TQ + 1, ks=(0, 1))
        spread([s_ for _, s_ in VO], TQ + VD, TQ + VD + VN, dst=late, ks=(SK,))
        PK_, PV_ = TK + KN + 2, TQ + VD + VN
        assert PK_ <= NS - 5 and PV_ <= NS - 2
        QE = []; EQ = lambda t: QE.append(lambda: I(t))
        EQ(f"s_and_b32 s55, s{SW}, 2"); EQ("s_lshl_b32 s55, s55, 15"); EQ(f"s_add_u32 s55, s55, {QA_LDS}")
        EQ(f"s_and_b32 s54, s{SW}, 1"); EQ("s_lshl_b32 s54, s54, 14"); EQ("s_add_u32 s55, s55, s54")
        EQ("s_lshl_b32 s54, s43, 10"); EQ("s_add_u32 s55, s55, s54"); EQ(f"v_add_u32 v14, s55, v{VST}")
        def codetouch():
            lp = a.label("PC")
            I("s_getpc_b64 s[36:37]"); a.L(lp)
            I(f"s_and_b32 s40, s{SIDX}, 3"); I("s_lshl_b32 s40, s40, 13"); I(f"s_add_u32 s40, s40, s{SWK}")
            I("v_and_b32 v2, 7, v0"); I("v_lshl_add_u32 v2, v2, 7, s40"); I(f"v_min_u32 v2, HOT_END-{lp}-4, v2")
            I("v_mov_b32 v3, s37"); I("v_add_co_u32 v2, vcc, s36, v2"); I("v_addc_co_u32 v3, vcc, 0, v3, vcc")
            I("global_load_dword v1, v[2:3], off"); vm.issue()
        if self.o.get("ct2", 20) >= 0: side.setdefault((self.o.get("ct2", 20), 1), []).append(codetouch)
        spread(QE, NS - 1, NS)
        spread([lambda: self.srd(RB, "ssmk", 2*MB), lambda: self.srd(RA, "k", 2*MB), lambda: self.srd(RC, "v", 2*MB), lambda: self.srd(RD, "shift", 4096), lambda: self.srd(RE, "wo", 4*MB)], NS - 2, NS - 1)
        spread([lambda r=r: I(f"v_mov_b64 {v(192+2*r,2)}, 0") for r in range(32) if not 16 <= r < 20], NS - 1, NS)
        side.setdefault((NS - 1, 3), []).extend([lambda r=r: I(f"v_mov_b64 {v(192+2*r,2)}, 0") for r in range(16, 20)])
        def fkoff():
            I(f"s_lshl_b32 s40, s{SHEAD}, 7"); I(f"s_lshl_b32 s41, s{SIDX}, 2"); I("s_add_u32 s40, s40, s41"); I(f"s_add_u32 s40, s40, {FK_OFF}")
        def w0only(fn):
            l = a.label("NP"); I(f"s_cmp_lg_u32 s{SW}, 0"); I(f"s_cbranch_scc1 {l}"); fn(); a.L(l)
        def k0(i):
            I(f"s_lshl_b32 s40, s{SW}, 12"); I("s_add_u32 m0, s40, 0x8000")
            I(f"s_lshl_b32 s41, s{SHEAD}, 20"); I("s_add_u32 s41, s41, s40")
            I(f"buffer_load_dwordx4 v{VST}, s[{RWS}:{RWS+3}], s41 offen offset:{1024*i}{self.ld} lds"); vm.issue()
        self.barrier()
        for f in take(-1, 1): f()
        vm.wait(dtok[0]); self.barrier()
        self.stamp(1)
        def first_reads(t):
            x = rdx(t, 0); w = [rdw(t, dt) for dt in range(4)]
            return [x[0]] + w[0][:2] + [x[1]] + w[0][2:] + w[1], w[2] + w[3]
        L, rest = first_reads(0)
        for f in L: f()
        VPK = self.o.get("vpk", 2); mark = {}; TZ = PG + 4; TS = 10; DS = self.o.get("dsteps", 3)
        pend = take(-1)
        for t in range(NS):
            for k in range(4):
                M = mfs(t, k); n = len(M); PB = []
                if k == 3 and t < NS - 1:
                    assert not pend
                    if t == TS + 2: vm.wait(td); w0only(lambda: self.poll_check(14, 13, "0", rep4(1), RDBG))
                    if t == NS - 3: vm.wait(tp); w0only(lambda: self.poll_check(15, 13, "s53", 1))
                    lg.wait(lg.issued)
                    if not (self.o.get("nowait") and t > 4): vm.wait(dtok.get(t+1, 0))
                    if t == TZ: vm.wait(mark[TZ-2])
                    if t == PK_: vm.wait(mark[TK + KN])
                    if t == PV_: vm.wait(mark[PV_ - 1])
                    self.barrier()
                    ps = self.o.get("pstamp")
                    if ps is not None and 0 <= t - int(ps) + 1 < 13: self.stamp(17 + t - int(ps) + 1); vm.issue(2)
                    if TZ <= t < TZ + 4: PB.append(lambda t=t: self.publish(SF, 1, RDBG, True, idx=t - TZ))
                    if t == PK_: PB.append(lambda: (fkoff(), self.publish(40, 1)))
                    if t == PV_: PB.append(lambda: (fkoff(), self.publish(40, 3)))
                    pend = take(t)
                    if t == NS - 3: pend += [lambda i=i: k0(i) for i in range(4)]
                    nd = len(pend) // (DS + 1)
                else:
                    nd = -(-len(pend) // max(1, (3 if t == 0 else DS) - k))
                D, pend = pend[:nd], pend[nd:]
                fl = []
                if not (t == NS - 1 and k == 3):
                    if k == 3:
                        if t + 1 >= WE: fl.append((0, 2, rdx(t+1, 0))); rest = []
                        else:
                            L, rest = first_reads(t+1); nr = self.o.get("nr", 4)
                            fl.append((0, 7, L + rest[:nr])); rest = rest[nr:]
                    else:
                        if k == 0 and rest: fl.append((-1, 2, rest))
                        fl.append((0, 2, rdx(t, k+1)) if not (k == 0 and rest) else (2, 4, rdx(t, k+1)))
                        if WE <= t + 1 < NS:
                            wr = sum((rdw(t+1, dt) for dt in range(4)), [])
                            fl.append((2, 8 if k < 2 else 6, wr[(0, 6, 12)[k]:(6, 12, 16)[k]]))
                if PB: fl.append((1, 2, PB))
                if D: fl.append((0, n, D))
                if side.get((t, k)): fl.append((0, n, side[(t, k)]))
                if late.get((t, k)): fl.append((SG_, min(n, SG_ + 4), late[(t, k)]))
                self.stream(M, fl)
                if k == 2: mark[t] = vm.issued
                if t == TS and k == 0:
                    self.oob_sel(); I("v_lshl_add_u32 v13, v0, 2, s99"); td = self.poll_issue(14, 13, "0", RDBG)
                if t == NS - 4 and k == 0:
                    self.oob_sel(); I("v_and_b32 v13, 7, v0"); I("v_lshl_add_u32 v13, v13, 2, s99")
                    I(f"s_lshl_b32 s53, s{SHEAD}, 7"); I(f"s_add_u32 s53, s53, {FK_OFF}")
                    tp = self.poll_issue(15, 13, "s53")
                if t == NS - 1 and k == VPK: self.poll_issue(15, 13, "s53")
            if t == TK: self.stamp(2)
            if t == TV: self.stamp(13)
        assert not items
        self.stamp(3)
        I("v_mov_b32 v16, v13")
        if VPK > 3: self.poll_issue(15, 13, "s53")
        for b, off in pieces("Q"):
            for i in range(4): I(f"v_cvt_pk_bf16_f32 v{b+i}, v{b+2*i}, v{b+2*i+1}")
            I(f"ds_write_b128 v14, {v(b,4)} offset:{off}"); lg.issue()
        self.attn_setup()
        vm.wait(vm.issued); w0only(lambda: self.poll_check(15, 16, "s53", 3))
        lg.wait(lg.issued); self.barrier()

    def attn_setup(self): self.attn(True)
    def attn(self, setup=False):
        a = self.a; I = self.I; vm = self.vm; lg = self.lg
        M16 = "v_mfma_f32_16x16x32_bf16"
        ML = 155648; QA_LDS = 65536; QB_LDS = 131072
        O = 192; QF = 160; NM = 144; S = [112, 128]; PP = [96, 104]; RING = 64; NR = 8; E = 56; PK = 16
        VK, VV, VL16, VSC, LM, THR, NINF, VQ, TMP = 4, 5, 6, 7, 8, 9, 10, 11, 12
        LS, ONES, BIAS = 152, 60, 11.0
        SR, SG, SC1, SC2, SKO, SVO, SKM, SVM, STH = 32, 33, 34, 35, 36, 37, 38, 39, 42
        SFIN, SCA, SM1 = 55, 59, 58
        DC = self.o.get("dmacost", 16); WEV = self.o.get("wev", 4)
        if setup:
            I(f"s_lshr_b32 s{SG}, s{SW}, 2"); I(f"s_mul_i32 s{SR}, s{SG}, 7"); I(f"s_xor_b32 s{SR}, s{SR}, s{SW}")
            I(f"v_lshlrev_b32 v{VL16}, 4, v0")
            I(f"s_lshl_b32 s44, s{SR}, 13"); I(f"s_add_u32 s44, s44, {QB_LDS}"); I(f"v_add_u32 v{VQ}, s44, v{VL16}")
            I(f"s_lshl_b32 s45, s{SG}, 16"); I(f"v_subrev_u32 v{TMP+1}, s45, v{VQ}")
            I(f"s_mov_b32 s{SC1}, s{SIDX}")
            I(f"s_lshl_b32 s{SC2}, s{SIDX}, 1"); I(f"s_sub_u32 s{SC2}, 14, s{SC2}")
            I(f"s_cmp_eq_u32 s{SG}, 1"); I(f"s_cselect_b32 s{SM1}, 0, -1")
            I(f"s_lshl_b32 s43, s{SW}, 12"); I(f"s_lshl_b32 s{SVO}, s{SHEAD}, 20"); I(f"s_add_u32 s{SVO}, s{SVO}, s43")
            I(f"s_add_u32 s{SKO}, s{SVO}, 0x10000"); I(f"s_add_u32 s{SVO}, s{SVO}, 0x8000")
            I(f"s_mov_b32 s{SKM}, s43"); I(f"s_add_u32 s{SVM}, s43, 0x18000")
            I(f"s_mov_b32 s{STH}, 0x40004000"); I(f"v_mov_b32 v{NINF}, 0xff800000")
            for r in range(4): I(f"v_mov_b32 v{ONES+r}, 0x3f803f80"); I(f"v_mov_b64 {v(LS+2*r,2)}, 0")
            I(f"v_and_b32 v{THR}, 15, v0"); I(f"v_lshlrev_b32 v{VSC}, 4, v{THR}"); I(f"s_lshl_b32 s44, s{SR}, 5"); I(f"v_add_u32 v{THR}, s44, v{THR}")
            I(f"v_lshrrev_b32 v{TMP}, 4, v0"); I(f"v_lshl_add_u32 v{VSC}, v{TMP}, 9, v{VSC}"); I(f"v_lshlrev_b32 v{TMP}, 2, v{TMP}"); I(f"v_sub_u32 v{THR}, v{THR}, v{TMP}")
            I(f"v_and_b32 v{VK}, 15, v0"); I(f"v_lshlrev_b32 v{VK}, 4, v{VK}"); I(f"v_lshrrev_b32 v{TMP}, 4, v0"); I(f"v_lshl_add_u32 v{VK}, v{TMP}, {self.GSH}, v{VK}"); I(f"v_add_u32 v{VK}, 0x8000, v{VK}")
            I(f"s_lshl_b32 s{SCA}, s{SIDX}, 2"); I(f"s_add_u32 s{SCA}, s{SCA}, s{SR}"); I(f"s_lshl_b32 s{SCA}, s{SCA}, 5"); I(f"s_add_u32 s{SCA}, s{SCA}, s{SHEAD}")
            I(f"s_lshl_b32 s{SCA}, s{SCA}, 13"); I(f"s_add_u32 s{SCA}, s{SCA}, {CTX_OFF}")
            I(f"s_mov_b32 s{SFIN}, 0")
            I(f"s_lshr_b32 s56, s{SF}, 6"); I("s_lshl_b32 s56, s56, 2"); I(f"s_bfe_u32 s44, s{SF}, 0x20003"); I("s_add_u32 s56, s56, s44"); I("s_lshl_b32 s56, s56, 1")
            I(f"s_bfe_u32 s44, s{SF}, 0x10005"); I("s_add_u32 s56, s56, s44"); I(f"s_and_b32 s57, s{SF}, 7")
            I("s_mov_b32 s41, 0")
            CL = self.o.get("cl", 8)
            I(f"s_lshr_b32 s40, {1 << (CL+2)}, s{SG}"); I(f"s_or_b32 s40, s40, {1 << CL}")
            TO = self.o.get("to", 0)
            I(f"s_lshl_b32 s44, {2 << TO}, s{SW}"); I(f"s_and_b32 s44, s44, {self.o.get('tm', 30) << TO}"); I("s_or_b32 s40, s40, s44")
            I(f"s_cmp_eq_u32 s{SW}, 0"); I(f"s_cselect_b32 s44, {(1 << (5 + TO)) | (1 << (CL+4))}, 0"); I("s_or_b32 s40, s40, s44")
            if not self.o.get("noprio"):
                l = a.label("PR"); I(f"s_cmp_eq_u32 s{SG}, 1"); I(f"s_cbranch_scc0 {l}"); I("s_setprio 1"); a.L(l)
            return
        op = lambda t, c=4: (lambda: I(t), c)
        nop = lambda: None
        def loadq(va):
            for ds in range(8):
                I(f"ds_read_b128 {v(QF+4*ds,4)}, v{va} offset:{1024*ds}"); lg.issue()
        def dma4(kind):
            sm, so = (SKM, SKO) if kind == "k" else (SVM, SVO)
            def d(i):
                def f():
                    if i == 0: I(f"s_mov_b32 m0, s{sm}"); I(f"s_xor_b32 s{sm}, s{sm}, 0x8000")
                    I(f"buffer_load_dwordx4 v{VL16}, s[{RWS}:{RWS+3}], s{so} offen offset:{1024*i}{self.ld} lds")
                    if i == 3: I(f"s_add_u32 s{so}, s{so}, 0x10000")
                return (f, DC + (8 if i == 0 else 4 if i == 3 else 0))
            return [d(i) for i in range(4)]
        self.ring_n = 0
        def rd(kind, sl, idx):
            h = {}
            def f():
                slot = self.ring_n % NR; self.ring_n += 1
                h["reg"] = RING + 4*slot
                I(f"ds_read_b128 {v(h['reg'],4)}, v{VK if kind == 'k' else VV} offset:{sl*8192+(idx << self.FSH)}"); h["tok"] = lg.issue()
            return f, h
        def wait_for(R, i):
            if R[i][1]["tok"] <= lg.done: return
            j = i
            while j + 1 < len(R) and j + 1 < i + WEV and "tok" in R[j+1][1] and R[j+1][1]["tok"] > R[i][1]["tok"]: j += 1
            lg.wait(R[j][1]["tok"])
        def otile(dt, qt): return O + 16*(dt >> 1) + 8*qt + 4*(dt & 1)
        def qk(sb, R, base, czero=False):
            def f(m):
                kt, qt, dd = m >> 3, (m >> 2) & 1, m & 3; i = base + 4*kt + dd
                wait_for(R, i); d = v(S[sb] + 8*qt + 4*kt, 4)
                c = ("0" if czero else v(NM + 4*qt, 4)) if dd == 0 else d
                I(f"{M16} {d}, {v(R[i][1]['reg'],4)}, {v(QF + 16*qt + 4*dd, 4)}, {c}")
            return [lambda m=m: f(m) for m in range(16)]
        def pv1(pb, dt, qt, reg): I(f"{M16} {v(otile(dt, qt),4)}, {v(reg,4)}, {v(PP[pb]+4*qt,4)}, {v(otile(dt, qt),4)}")
        def pv(pb, R, base, dts=range(8), exact=False):
            def f(dt, qt):
                if exact: lg.wait(R[base+dt][1]["tok"])
                else: wait_for(R, base + dt)
                pv1(pb, dt, qt, R[base+dt][1]["reg"])
            ls = [lambda qt=qt: I(f"{M16} {v(LS+4*qt,4)}, {v(ONES,4)}, {v(PP[pb]+4*qt,4)}, {v(LS+4*qt,4)}") for qt in range(2)]
            return ls + [lambda dt=dt, qt=qt: f(dt, qt) for dt in dts for qt in range(2)]
        def sm_ops(sb):
            ex = lambda i: op(f"v_exp_f32 v{E+(i&3)}, v{S[sb]+i}", 8)
            cv = lambda j: op(f"v_cvt_pk_bf16_f32 v{PP[sb]+j}, v{E+((2*j)&3)}, v{E+((2*j+1)&3)}")
            p = PP[sb]; L = [ex(0), ex(1)]
            ors = {2: f"v_or3_b32 v{LM}, v{p}, v{p+1}, v{p+2}", 4: f"v_or3_b32 v{LM}, v{LM}, v{p+3}, v{p+4}", 6: f"v_or3_b32 v{LM}, v{LM}, v{p+5}, v{p+6}"}
            for j in range(8):
                L += [ex(2*j+2), cv(j), ex(2*j+3)] if j < 7 else [op("s_nop 0"), cv(j)]
                if j in ors: L.append(op(ors[j]))
            L = [x for i, x in enumerate(L) if i != len(L) - 2]
            L += [op(f"v_or_b32 v{LM}, v{LM}, v{p+7}"), op(f"v_and_b32 v{LM}, s{STH}, v{LM}")]
            return L
        def sched(M, fixed, chain):
            n = len(M); fc = [sum(c for _, c in fixed.get(g, [])) for g in range(n)]
            tot = sum(c for _, c in chain); lo, hi = 0.0, 4000.0
            for _ in range(40):
                lev = (lo + hi) / 2
                if sum(max(0, lev - f) for f in fc) >= tot: hi = lev
                else: lo = lev
            k = 0; credit = 0.0
            for g in range(n):
                M[g]()
                for c, _ in fixed.get(g, []): c()
                credit += max(0, hi - fc[g])
                while k < len(chain) and (g == n - 1 or chain[k][1] <= credit + 2):
                    chain[k][0](); credit -= chain[k][1]; k += 1
        def put(fixed, g, items): fixed.setdefault(g, []).extend(items)
        SPL = self.o.get("spl", 18)
        ool = []
        def rarely(cmp_, body):
            lo = a.label("OOL"); lb = a.label("RET")
            I(cmp_); I(f"s_cbranch_scc1 {lo}"); a.L(lb)
            ool.append((lo, lb, body))
        def mask_ops(sb, koff):
            prs = [46, 48, 50, 52]; L = []
            if koff >= 64:
                L.append(op(f"v_subrev_u32 v{TMP+3}, 64, v{THR}")); tr = TMP + 3; koff -= 64
            elif koff < 0:
                L += [op(f"s_lshl_b32 s45, s{SG}, 6"), op(f"v_subrev_u32 v{TMP+3}, s45, v{THR}")]; tr = TMP + 3; koff = -koff - 1
            else: tr = THR
            for r0 in range(0, 16, 4):
                qt, kt = r0 >> 3, (r0 >> 2) & 1
                for r in range(4): L.append(op(f"v_cmp_lt_i32 s[{prs[r]}:{prs[r]+1}], v{tr}, {16*kt + r + koff - 16*qt}"))
                for r in range(4): L.append(op(f"v_cndmask_b32 v{S[sb]+r0+r}, v{S[sb]+r0+r}, v{NINF}, s[{prs[r]}:{prs[r]+1}]"))
            return L
        def mask_body(sb, koff):
            for c, _ in mask_ops(sb, koff): c()
        def xred(x, y, t0, t1, o):
            L = []
            for sw in ("v_permlane16_swap_b32", "v_permlane32_swap_b32"):
                L += [op(f"v_mov_b32 v{t0}, v{x}"), op(f"v_mov_b32 v{t1}, v{y}"), op("s_nop 0"), op(f"{sw} v{t0}, v{x}"), op(f"{sw} v{t1}, v{y}"),
                      op(f"{o} v{x}, v{x}, v{t0}"), op(f"{o} v{y}, v{y}, v{t1}")]
            return L
        def rowmax(sb):
            for qt in range(2):
                b = S[sb] + 8*qt; d = TMP + qt
                I(f"v_max3_f32 v{d}, v{b}, v{b+1}, v{b+2}"); I(f"v_max3_f32 v{d}, v{d}, v{b+3}, v{b+4}"); I(f"v_max3_f32 v{d}, v{d}, v{b+5}, v{b+6}"); I(f"v_max_f32 v{d}, v{d}, v{b+7}")
            for c, _ in xred(TMP, TMP+1, TMP+2, TMP+3, "v_max_f32"): c()
        def init_max():
            rowmax(0)
            for qt in range(2): I(f"v_max_f32 v{TMP+qt}, {f2u(-1e30)}, v{TMP+qt}"); I(f"v_add_f32 v{TMP+qt}, {f2u(BIAS)}, v{TMP+qt}")
            for r in range(8): I(f"v_sub_f32 v{NM+r}, 0, v{TMP+(r>>2)}")
            return [op(f"v_sub_f32 v{S[0]+r}, v{S[0]+r}, v{TMP+(r>>3)}") for r in range(16)]
        rare = []
        def check(sb, other=True):
            lr = a.label("RARE"); lb = a.label("BACK")
            I(f"v_cmp_ne_u32 vcc, 0, v{LM}")
            if self.o.get("a_nocheck"): I("s_mov_b64 vcc, 0")
            I(f"s_cbranch_vccnz {lr}"); a.L(lb)
            rare.append((lr, lb, sb, other))
        def fin_body():
            I(f"s_mov_b32 s{SFIN}, 2")
            I(f"v_rcp_f32 v{TMP}, v{LS}"); I(f"v_rcp_f32 v{TMP+2}, v{LS+4}"); I(f"v_mov_b32 v{TMP+1}, v{TMP}"); I(f"v_mov_b32 v{TMP+3}, v{TMP+2}")
            for r in range(4): I(f"v_mov_b64 {v(LS+2*r,2)}, 0")
            for q in range(8):
                for i in range(8*q, 8*q+8, 2): I(f"v_pk_mul_f32 {v(O+i,2)}, {v(O+i,2)}, {v(TMP+2*(q&1),2)}")
                for i in range(4): I(f"v_cvt_pk_bf16_f32 v{PK+4*q+i}, v{O+8*q+2*i}, v{O+8*q+2*i+1}")
                for i in range(8*q, 8*q+8, 2): I(f"v_mov_b64 {v(O+i,2)}, 0")
        coff = lambda q: (q & 3)*1024
        def st_body():
            I(f"s_add_u32 s44, s{SCA}, 4096"); I(f"s_mov_b32 s{SFIN}, 3")
            for q in range(8):
                I(f"buffer_store_dwordx4 {v(PK+4*q,4)}, v{VL16}, s[{RWS}:{RWS+3}], s{SCA if q < 4 else 44} offen offset:{coff(q)}{self.st}")
        TR = [RING + 4*(2+i) for i in range(6)]
        def head(R, vmw, with_mfma=True, post=(), more=(), pre=None):
            rf = [(f, 4) for f, h in R]; sm2 = sm_ops(0)[SPL:]
            M = [lambda dt=dt, qt=qt: pv1(1, dt, qt, TR[dt-2]) for dt in range(2, 8) for qt in range(2)] if with_mfma else [nop]*12
            if with_mfma: I("s_waitcnt lgkmcnt(4)")
            nb = self.o.get("nb", 4); more = list(more); m0 = len(more) // 3
            if pre is not None: more = list(pre) + more; m0 = len(pre)
            sched(M[:4], {}, sm2[:nb] + more[:m0])
            vmw(); I("s_waitcnt lgkmcnt(0)"); lg.mark_all_done(); self.barrier(); self.ring_n = 0
            fx = {0: rf[0:2], 1: rf[2:4], 2: rf[4:5], 4: rf[5:6], 6: rf[6:7], 7: [(nop, 8 + 8*len(post))]}
            sched(M[4:], fx, sm2[nb:] + more[m0:])
            check(0)
            for p in post: p()
        def mk_reads():
            return ([rd("k", 0, i) for i in range(8)] + [rd("v", 0, i) for i in range(8)] +
                    [rd("k", 1, i) for i in range(8)] + [rd("v", 1, i) for i in range(8)])
        def last_use(F):
            b = (0, 18, 34, 52)[F >> 3]; f = F & 7
            return b + (2*f + 1 if (F >> 3) & 1 else 8*(f >> 2) + 4 + (f & 3))
        def mid(R, dmas, kx, mb=None, trans=False, endops=(), early=(), g=0):
            rf = [(f, 4) for f, h in R]
            fa = {0: [rf[7]]}; fb = {}
            G_ = g
            for g, e in zip((1, 3, 9, 11), early): put(fa, g, [e])
            for F in range(8, 32):
                g = last_use(F - 8) + 1
                put(fa, g, [rf[F]]) if g < 34 else put(fb, g - 34, [rf[F]])
            D = sum((dma4(k) for k in dmas), [])
            st_ = self.o.get("gst", 4); of_ = self.o.get("gof", 2)
            gaps = [2 + of_*G_*2 + 2*st_*n for n in range(4)] if len(D) == 4 else [2 + of_*G_ + st_*n for n in range(8)]
            for g, d in zip(gaps, D): put(fa, g, [d]) if g < 33 else put(fb, g - 33, [d])
            PT = self.o.get("pt", 0)
            if PT and G_ == 0:
                pts = {1: [(0, 24, 2), (1, 21, 0)], 2: [(0, 8, 2), (0, 24, 0), (1, 7, 2), (1, 21, 0)], 3: [(0, 0, 2), (0, 8, 0), (0, 16, 2), (0, 24, 0), (0, 32, 2), (1, 7, 0), (1, 15, 2), (1, 21, 0)],
                       4: [(0, 16, 2), (1, 21, 0)], 5: [(0, 32, 2), (1, 21, 0)]}[PT]
                for part, g, p in pts: put(fb if part else fa, g, [op(f"s_setprio {p}")])
            put(fa, 33, [(nop, 16)])
            sched(qk(0, R, 0, trans) + pv(0, R, 8), fa, sm_ops(1))
            check(1, other=not trans)
            if mb: mb()
            pre = []
            if trans:
                I(f"s_mov_b32 s{SFIN}, 1")
                pre = init_max()
            put(fb, 18, [op(f"v_xor_b32 v{VV}, 0x10000, v{VK}")] + kx)
            for n, e in enumerate(endops): put(fb, 11 - n, [e])
            put(fb, 21, [(nop, 12)])
            sched(qk(1, R, 16) + pv(1, R, 24, range(2)), fb, pre + sm_ops(0)[:SPL])
            assert [R[26+i][1]["reg"] for i in range(6)] == TR
        vm4 = lambda: I("s_waitcnt vmcnt(4)")
        def vm08():
            lo = a.label("W8"); lb = a.label("W8R")
            I(f"s_cmp_eq_u32 s{SFIN}, 3"); I(f"s_cbranch_scc1 {lo}"); I("s_waitcnt vmcnt(0)"); a.L(lb)
            def b(): I("s_waitcnt vmcnt(8)"); I(f"s_mov_b32 s{SFIN}, 4")
            ool.append((lo, lb, b))
        m1 = lambda sb, ko: (lambda: rarely(f"s_cmp_eq_u32 s{SC1}, s{SM1}", lambda: mask_body(sb, ko)))
        fin = lambda: rarely(f"s_cmp_eq_u32 s{SFIN}, 1", fin_body)
        sta = (lambda: rarely(f"s_cmp_eq_u32 s{SFIN}, 2", st_body), 8)
        KR, VR, SH, WO, AD = 16, 23, 28, 32, 40
        def side_loads():
            L = []; E = lambda t: L.append(op(t)); V = lambda t: L.append(op(t, DC))
            E(f"v_lshrrev_b32 v{AD}, 5, v0"); E(f"v_and_b32 v{AD+1}, 31, v0"); E(f"v_lshlrev_b32 v{AD+2}, 12, v{AD}"); E(f"v_lshl_add_u32 v{AD+2}, v{AD+1}, 2, v{AD+2}")
            self.phys(60, SHEAD, 61, E); E("s_lshl_b32 s60, s60, 17"); E(f"s_lshr_b32 s61, s{SIDX}, 1"); E("s_lshl_b32 s61, s61, 15"); E("s_add_u32 s60, s60, s61")
            E(f"s_and_b32 s61, s{SF}, 1"); E("s_lshl_b32 s61, s61, 9"); E("s_add_u32 s60, s60, s61")
            E(f"s_lshl_b32 s61, s{SW}, 6"); E("s_add_u32 s60, s60, s61"); E("s_add_u32 s61, s60, 16384")
            E(f"v_lshrrev_b32 v{AD+3}, 4, v0"); E(f"v_lshlrev_b32 v{AD+3}, 12, v{AD+3}"); E(f"v_and_b32 v{AD+4}, 15, v0"); E(f"v_lshl_add_u32 v{AD+3}, v{AD+4}, 2, v{AD+3}")
            for j in range(8): V(f"buffer_load_dword v{WO+j}, v{AD+3}, s[{RE}:{RE+3}], s{60+(j>>2)} offen offset:{1024*(j&3)}")
            E("s_lshr_b32 s62, s2, 3"); E("s_lshl_b32 s62, s62, 16"); E(f"s_lshl_b32 s63, s{SW}, 13"); E("s_add_u32 s62, s62, s63")
            E("s_and_b32 s63, s2, 7"); E("s_lshl_b32 s63, s63, 7"); E("s_add_u32 s62, s62, s63"); E(f"v_add_u32 v{AD+3}, s62, v{AD+2}")
            for i in range(3): E(f"v_subrev_u32 v{AD+4+i}, {3072-1024*i}, v{AD+3}")
            E("s_lshl_b32 s63, s63, 2"); E(f"v_lshl_add_u32 v{AD+7}, v{AD+1}, 4, s63")
            for i in range(3): V(f"buffer_load_dword v{KR+i}, v{AD+4+i}, s[{RA}:{RA+3}], 0 offen")
            for i in range(4): V(f"buffer_load_dword v{KR+3+i}, v{AD+3}, s[{RA}:{RA+3}], 0 offen offset:{1024*i}")
            for i in range(4): V(f"buffer_load_dword v{VR+i}, v{AD+3}, s[{RC}:{RC+3}], 0 offen offset:{1024*i}")
            V(f"buffer_load_dwordx4 {v(SH,4)}, v{AD+7}, s[{RD}:{RD+3}], 0 offen")
            return L
        NSL = 21
        def side_math():
            L = []; E = lambda t: L.append(op(t)); V = lambda t: L.append(op(t, DC))
            W2 = 48
            E("s_mov_b32 s60, 0x05040100"); E("s_mov_b32 s61, 0x07060302")
            for j in range(4): E(f"v_perm_b32 v{W2+j}, v{WO+2*j+1}, v{WO+2*j}, s60")
            for j in range(4): E(f"v_perm_b32 v{W2+4+j}, v{WO+2*j+1}, v{WO+2*j}, s61")
            E(f"s_and_b32 s60, s{SF}, 1"); E("s_lshl_b32 s60, s60, 2"); E(f"s_lshr_b32 s61, s{SW}, 1"); E("s_add_u32 s60, s60, s61"); E("s_lshl_b32 s60, s60, 19")
            E(f"s_lshr_b32 s61, s{SF}, 1"); E("s_lshl_b32 s61, s61, 12"); E("s_add_u32 s60, s60, s61"); E(f"s_and_b32 s61, s{SW}, 1"); E("s_lshl_b32 s61, s61, 11")
            E("s_add_u32 s60, s60, s61"); E(f"s_add_u32 s60, s60, {WOT_OFF}")
            for mt in range(2): V(f"buffer_store_dwordx4 {v(W2+4*mt,4)}, v{VL16}, s[{RWS}:{RWS+3}], s60 offen offset:{1024*mt}{self.st}")
            KU, SU, OO, VU, PQ = 32, 42, 48, 39, 52
            for c in range(2):
                def unp(d, sreg, half): E(f"v_lshlrev_b32 v{d}, 16, v{sreg}" if half == 0 else f"v_and_b32 v{d}, 0xffff0000, v{sreg}")
                for i in range(7): unp(KU+i, KR+i, c)
                for j in range(4): unp(SU+j, SH + 2*c + (j >> 1), j & 1)
                for o in range(4):
                    E(f"v_mul_f32 v{OO+o}, v{KU+o}, v{SU+3}")
                    for j in (2, 1, 0): E(f"v_fmac_f32 v{OO+o}, v{KU+o+3-j}, v{SU+j}")
                    unp(VU, VR+o, c)
                    E(f"v_mul_f32 v{OO+o}, v{OO+o}, v{VU}")
                d = PQ + 2*(1-c)
                E(f"v_cvt_pk_bf16_f32 v{d}, v{OO+3}, v{OO+2}"); E(f"v_cvt_pk_bf16_f32 v{d+1}, v{OO+1}, v{OO}")
            E(f"v_lshlrev_b32 v{AD+1}, 5, v{AD+1}"); E(f"v_lshl_add_u32 v{AD+1}, v{AD}, 4, v{AD+1}")
            E(f"v_permlane32_swap_b32 v{PQ+2}, v{PQ}"); E(f"v_permlane32_swap_b32 v{PQ+3}, v{PQ+1}")
            E("s_lshr_b32 s60, s2, 3"); E("s_lshl_b32 s60, s60, 16"); E(f"s_lshl_b32 s61, s{SW}, 13"); E("s_add_u32 s60, s60, s61")
            E("s_and_b32 s61, s2, 7"); E("s_lshl_b32 s61, s61, 10"); E("s_add_u32 s60, s60, s61"); E(f"s_add_u32 s60, s60, {KVT_OFF}")
            V(f"buffer_store_dwordx4 {v(PQ,4)}, v{AD+1}, s[{RWS}:{RWS+3}], s60 offen{self.st}")
            return L
        CL = self.o.get("cl", 8)
        def touch(k):
            if k in (1, 2):
                self.phys(60, SHEAD, 61); I("s_lshl_b32 s60, s60, 17"); I(f"s_lshl_b32 s61, s{SIDX}, 14"); I("s_add_u32 s60, s60, s61")
                if k == 2: I("s_add_u32 s60, s60, 8192")
                I("v_lshlrev_b32 v16, 7, v0"); r = RE
            elif k in (3, 4):
                I("s_lshr_b32 s60, s2, 3"); I("s_lshl_b32 s60, s60, 16"); I("s_and_b32 s61, s2, 7"); I("s_lshl_b32 s61, s61, 7"); I("s_add_u32 s60, s60, s61")
                I("v_lshlrev_b32 v16, 10, v0"); r = RA if k == 3 else RC
            else:
                I(f"s_lshl_b32 s60, s{SF}, 13"); I("v_lshlrev_b32 v16, 7, v0"); r = RB
            I(f"buffer_load_dword v1, v16, s[{r}:{r+3}], s60 offen")
        LSITE = a.label("SITE")
        stubs = []
        def site_code():
            a.T(".p2align 6")
            for lo, lb in stubs:
                a.L(lo); I(f"s_call_b64 s[76:77], {LSITE}"); I(f"s_branch {lb}")
            a.L(LSITE)
            def ret(): I("s_nop 1"); I("s_setpc_b64 s[76:77]")
            ll = a.label("SL"); lm = a.label("SM"); lp = a.label("SP"); TO = self.o.get("to", 0)
            I(f"s_cmp_eq_u32 s41, {CL}"); I(f"s_cbranch_scc1 {ll}")
            I(f"s_cmp_eq_u32 s41, {CL+4}"); I(f"s_cbranch_scc1 {lp}")
            I(f"s_cmp_gt_u32 s41, {CL}"); I(f"s_cbranch_scc1 {lm}")
            lk = {k: a.label("ST") for k in range(2, 6)}
            for k in range(2, 6): I(f"s_cmp_eq_u32 s41, {k + TO}"); I(f"s_cbranch_scc1 {lk[k]}")
            for k in range(1, 6):
                if k > 1: a.L(lk[k])
                touch(k); ret()
            a.L(lp)
            I(f"s_lshl_b32 s44, s{SF}, 2"); I(f"s_add_u32 s44, s44, {FY_OFF}")
            sv = self.save(); self.publish(44, 2); self.restore(sv)
            ret()
            a.L(ll)
            for c, _ in side_loads(): c()
            ret(); a.L(lm)
            for c, _ in side_math(): c()
            ret()
        def spf():
            lo = a.label("STUB"); lb = a.label("RET")
            I("s_add_u32 s41, s41, 1"); I("s_bitcmp1_b32 s40, s41"); I(f"s_cbranch_scc1 {lo}"); a.L(lb); stubs.append((lo, lb))
        spub = (spf, 12)
        def snap():
            I(f"s_mov_b32 s61, {FY_OFF}"); I(f"buffer_load_dwordx4 v[52:55], v{VL16}, s[{RWS}:{RWS+3}], s61 offen sc1")
        def side_check():
            lo = a.label("SCK"); lb = a.label("SCR")
            def test():
                I("v_and_b32 v52, v52, v53"); I("v_and_b32 v54, v54, v55"); I("v_and_b32 v52, v52, v54"); I("v_and_b32 v52, 2, v52"); I("v_cmp_ne_u32 vcc, 2, v52")
            test(); I(f"s_cbranch_vccnz {lo}"); a.L(lb)
            def spin():
                lp = a.label("SPL")
                I("s_mov_b32 s99, 20000"); a.L(lp)
                I("s_sleep 2"); I(f"buffer_load_dwordx4 v[52:55], v{VL16}, s[{RWS}:{RWS+3}], s61 offen sc1"); I("s_waitcnt vmcnt(0)")
                test(); I(f"s_cbranch_vccz {lb}")
                I("s_sub_u32 s99, s99, 1"); I("s_cmp_lg_u32 s99, 0"); I(f"s_cbranch_scc1 {lp}")
            ool.append((lo, lb, spin))
        m2 = lambda sb, ko: (lambda: rarely(f"s_cmp_eq_u32 s{SC2}, 0", lambda: (snap(), mask_body(sb, ko))))
        LEV = a.label("EVEN"); LODM = a.label("ODDM"); LTRANS = a.label("TRANS"); LP2 = a.label("P2"); LP2B = a.label("P2B"); LDRAIN = a.label("DRAIN")
        self.stamp(8)
        self.ring_n = 0
        R = [rd("k", 0, i) for i in range(8)] + [rd("k", 1, i) for i in range(8)]
        def qrd(i):
            I(f"ds_read_b128 {v(QF+4*i,4)}, v{TMP+1} offset:{1024*i}"); return lg.issue()
        for i in range(4): qrd(i); R[i][0]()
        for i in range(4, 8): tq = qrd(i)
        D = dma4("v") + dma4("k")
        fx = {g: [(R[4+g][0], 4)] for g in range(4)}
        put(fx, 3, [(lambda: lg.wait(tq), 4)])
        for F in range(8, 15): put(fx, last_use(F - 8) + 1, [(R[F][0], 4)])
        for n, d in enumerate(D): put(fx, 2*n, [d])
        sched(qk(0, R, 0, True), fx, [])
        m1(0, 0)()
        pre = init_max()
        fx = {0: [(R[15][0], 4)], 8: [op(f"v_xor_b32 v{VV}, 0x10000, v{VK}"), op(f"v_xor_b32 v{VK}, 0x4000, v{VK}")]}
        sched(qk(1, R, 8), fx, pre + sm_ops(0)[:SPL])
        R = mk_reads()
        head(R, vm4, False, post=[m1(1, 32)])
        svm = self.save()
        self.stamp(9)
        LOD = [a.label("ODD0"), a.label("ODD1")]
        I(f"s_cmp_eq_u32 s{SG}, 1"); I(f"s_cbranch_scc1 {LOD[1]}"); I(f"s_branch {LOD[0]}")
        vm0 = lambda: I("s_waitcnt vmcnt(0)")
        def loops(g):
            LEV = a.label("EVEN"); LP2 = a.label("P2")
            mm = (lambda sb, ko: m1(sb, ko)) if g else (lambda sb, ko: None)
            a.L(LEV)
            R = mk_reads(); head(R, vm4)
            mid(R, "k", [op(f"v_xor_b32 v{VK}, 0x4000, v{VK}")], mb=mm(0, 0), early=[spub], g=g)
            R = mk_reads(); head(R, vm4, post=[m1(1, 32)] if g else [])
            assert self.lg.issued - self.lg.done == svm[2] - svm[3]
            a.L(LOD[g])
            mid(R, "v", [op(f"v_xor_b32 v{VK}, 0xc000, v{VK}")], mb=mm(0, 64), endops=[op(f"s_sub_u32 s{SC1}, s{SC1}, 1")], early=[spub], g=g)
            I(f"s_cmp_lg_u32 s{SC1}, -1"); I(f"s_cbranch_scc1 {LEV}")
            self.stamp(14)
            if g:
                loadq(VQ); I("s_waitcnt lgkmcnt(0)"); I(f"v_xor_b32 v{VK}, 0x4000, v{VK}")
            R = mk_reads(); head(R, vm4, more=mask_ops(1, 96) if g else ())
            mid(R, "k", [op(f"v_xor_b32 v{VK}, 0x8000, v{VK}")], mb=m2(0, -1), trans=bool(g), early=[spub], g=g)
            self.stamp(15)
            I(f"s_cmp_eq_u32 s{SC2}, 0"); I(f"s_cbranch_scc1 {LDRAIN}")
            a.L(LP2)
            R = mk_reads(); head(R, vm08 if g else vm0)
            mid(R, "kv", [op(f"v_xor_b32 v{VK}, 0x8000, v{VK}")], mb=m2(0, -1), endops=[sta] if g else [],
                early=[spub] + ([(fin, 8)] if g else []) + [op(f"s_sub_u32 s{SC2}, s{SC2}, 1")], g=g)
            I(f"s_cmp_lg_u32 s{SC2}, 0"); I(f"s_cbranch_scc1 {LP2}")
        loops(1); I(f"s_branch {LDRAIN}")
        loops(0)
        a.L(LDRAIN)
        self.stamp(10)
        R2 = [rd("v", 0, i) for i in range(8)] + [rd("v", 1, i) for i in range(8)]
        rf = [(f, 4) for f, h in R2]
        ts, ts2, ts3 = self.tail_setup()
        tsa = [x for x in ts if x[1] == 4]; tsl = [x for x in ts if x[1] != 4]
        mk_ = mask_ops(1, -33)
        head(R2, lambda: (vm08(), side_check(), tsl[0][0](), tsl[1][0]()), post=[fin, sta[0]], pre=tsa[:8], more=tsa[8:16] + [tsl[2]] + mk_)
        ts = tsa[16:]
        if self.o.get("dst"): self.stamp(17)
        pre = []; E_ = lambda t: pre.append(op(t))
        E_(f"s_add_u32 s44, s{SWK}, {ML}"); E_(f"v_add_u32 v54, s44, v{VL16}")
        E_(f"s_lshl_b32 s46, s{SW}, 13"); E_(f"v_add_u32 v55, s46, v{VL16}")
        E_(f"s_sub_u32 s54, 15, s{SIDX}"); E_(f"s_lshl_b32 s54, s54, 2"); E_(f"s_add_u32 s54, s54, s{SR}"); E_("s_lshl_b32 s54, s54, 5"); E_(f"s_add_u32 s54, s54, s{SHEAD}")
        E_("s_lshl_b32 s54, s54, 13"); E_(f"s_lshl_b32 s44, s{SG}, 12"); E_("s_add_u32 s54, s54, s44"); E_(f"s_add_u32 s54, s54, {CTX_OFF}")
        def lsum():
            def wml():
                I(f"ds_write_b128 v54, {v(150,4)}"); lg.issue()
            return [op(f"v_mov_b32 v150, v{NM}"), op(f"v_mov_b32 v{LS+1}, v{LS+4}"), (wml, 4)]
        def osend(g, i):
            def f():
                I(f"ds_write_b128 v55, {v(O+32*(1-g)+4*i,4)} offset:{1024*i}"); lg.issue()
            return (f, 16)
        lj = a.label("MGJ"); LMG = [a.label("MG0"), a.label("MG1")]; LFB = a.label("FB1"); LSK = a.label("SKIP"); LS1 = a.label("SK1")
        for c, _ in ts: c()
        I(f"s_lshl_b32 s45, s{SG}, 1"); I(f"s_sub_u32 s45, s{SR}, s45"); I("s_cmp_lt_i32 s45, 1"); I(f"s_cbranch_scc1 {LSK}")
        svd = self.save(); rnd = self.ring_n
        WA_ = self.o.get("wa", 6); tsA, tsB = ts2[:WA_], ts2[WA_:]
        setup_ = pre + ts3; n8 = (len(setup_) + 17) // 18
        fx = {g: setup_[g*n8:(g+1)*n8] for g in range(18)}
        for n, x in enumerate(tsA): put(fx, 1 + n * 17 // max(1, len(tsA)), [x])
        for F in range(7, 15): put(fx, 2*(F - 7) + (2 if F > 7 else 0), [rf[F]])
        sched(pv(0, R2, 0), fx, sm_ops(1))
        check(1)
        rf[15][0]()
        if self.o.get("dst"): self.stamp(20)
        I(f"s_cmp_eq_u32 s{SG}, 1"); I(f"s_cbranch_scc1 {LFB}")
        sv2 = self.save(); PR = 64
        for g in (0, 1):
            if g: a.L(LFB); self.restore(sv2)
            own = O + 32*g; snd = O + 32*(1-g)
            dts = list(range(4*(1-g), 4*(1-g)+4)) + list(range(4*g, 4*g+4))
            fx = {10 + i: [osend(g, i)] for i in range(8)}
            put(fx, 8, lsum())
            for n, x in enumerate(tsB): put(fx, n * 10 // max(1, len(tsB)), [x])
            sched(pv(1, R2, 8, dts, True), fx, self.tail_valu())
            a.L(LMG[g])
            if self.o.get("dst"): self.stamp(18)
            I(f"v_xor_b32 v54, 0x1c00, v54"); I(f"v_xor_b32 v55, 0xe000, v55")
            I("s_waitcnt lgkmcnt(0)"); lg.mark_all_done(); self.barrier()
            if self.o.get("dst"): self.stamp(19)
            I(f"ds_read_b128 {v(96,4)}, v54"); t0 = lg.issue()
            tk = []
            for i in range(8):
                I(f"ds_read_b128 {v(PR+4*i,4)}, v55 offset:{1024*i}"); tk.append(lg.issue())
            lg.wait(t0)
            for q in range(2):
                I(f"v_min_f32 v100, v{150+q}, v{96+q}"); I(f"v_sub_f32 v101, v100, v{150+q}"); I(f"v_sub_f32 v102, v100, v{96+q}")
                I("v_exp_f32 v101, v101"); I("v_exp_f32 v102, v102")
                I(f"v_mul_f32 v103, v101, v{LS+q}"); I(f"v_fmac_f32 v103, v102, v{98+q}"); I("v_rcp_f32 v103, v103")
                b = 104 + 4*q
                I(f"v_mul_f32 v{b}, v101, v103"); I(f"v_mul_f32 v{b+1}, v101, v103"); I(f"v_mul_f32 v{b+2}, v102, v103"); I(f"v_mul_f32 v{b+3}, v102, v103")
            tw = self.tail_writes()
            for q in range(4):
                b = 104 + 4*(q & 1)
                for i in range(8*q, 8*q+8, 2): I(f"v_pk_mul_f32 {v(own+i,2)}, {v(own+i,2)}, {v(b,2)}")
                lg.wait(tk[2*q+1])
                if not self.o.get("twe"):
                    for c in tw[3*q:3*q+3]: c()
                for i in range(8*q, 8*q+8, 2): I(f"v_pk_fma_f32 {v(own+i,2)}, {v(PR+i,2)}, {v(b+2,2)}, {v(own+i,2)}")
                for i in range(4): I(f"v_cvt_pk_bf16_f32 v{snd+4*q+i}, v{own+8*q+2*i}, v{own+8*q+2*i+1}")
                I(f"buffer_store_dwordx4 {v(snd+4*q,4)}, v{VL16}, s[{RWS}:{RWS+3}], s54 offen offset:{coff(q)}{self.st}"); self.tctx = vm.issue()
            if self.o.get("twe"):
                for c in tw: c()
            if not g: I(f"s_branch {lj}")
        def skip_path():
            keep = self.save(); tctx = self.tctx; th = self.th; wt = dict(self.wtok)
            a.L(LSK); self.restore(svd); self.ring_n = rnd
            I("s_cmp_lt_i32 s45, 0"); I(f"s_cbranch_scc1 {LS1}")
            rf[7][0]()
            for f in pv(0, R2[:8], 0): f()
            a.L(LS1)
            for c, _ in setup_ + ts2 + lsum() + self.tail_valu(): c()
            l1 = a.label("SG1"); I(f"s_cmp_eq_u32 s{SG}, 1"); I(f"s_cbranch_scc1 {l1}")
            for g in (0, 1):
                if g: a.L(l1)
                for i in range(8): osend(g, i)[0]()
                I(f"s_branch {LMG[g]}")
            self.restore(keep); self.tctx = tctx; self.th = th; self.wtok = wt
        a.L(lj)
        I("s_setprio 0")
        self.stamp(4)
        def cold():
            skip_path()
            site_code()
            for (lo, lb, body) in ool:
                a.L(lo); body(); I(f"s_branch {lb}")
            a.L("HOT_END")
            for (lr, lb, sb, other) in rare:
                a.L(lr)
                I("s_nop 15")
                rowmax(sb)
                for q in range(2): I(f"v_add_f32 v{TMP+q}, {f2u(BIAS)}, v{TMP+q}"); I(f"v_max_f32 v{TMP+q}, 0, v{TMP+q}"); I(f"v_exp_f32 v{TMP+2+q}, -v{TMP+q}")
                for r in range(8): I(f"v_sub_f32 v{NM+r}, v{NM+r}, v{TMP+(r>>2)}")
                for r in range(16): I(f"v_sub_f32 v{S[sb]+r}, v{S[sb]+r}, v{TMP+(r>>3)}")
                if other:
                    for r in range(16): I(f"v_sub_f32 v{S[1-sb]+r}, v{S[1-sb]+r}, v{TMP+(r>>3)}")
                for r in range(64): I(f"v_mul_f32 v{O+r}, v{O+r}, v{TMP+2+((r>>3)&1)}")
                for r in range(8): I(f"v_mul_f32 v{LS+r}, v{LS+r}, v{TMP+2+(r>>2)}")
                for c, _ in sm_ops(sb): c()
                I("s_nop 1"); I(f"s_branch {lb}")
        self.attn_rare = cold

    HB = 65536; HC = 4416; XB = 136192; YB = 148480
    SC, SJ, SB, SCH, SHB_, SWO, SCX = 34, 35, 36, 37, 38, 39, 40
    WS_ = [16, 24, 32, 40, 176, 184, 48, 56] + list(range(80, 144, 8))
    def tail_setup(self):
        I = self.I; L = []; E = lambda t: L.append((lambda: I(t), 4))
        SC, SJ, SB, SCH, SHB_, SWO, SCX = self.SC, self.SJ, self.SB, self.SCH, self.SHB_, self.SWO, self.SCX
        self.wtok = {}; self.wslot = dict(enumerate(self.WS_))
        E(f"s_lshr_b32 s{SC}, s{SW}, 2"); E(f"s_and_b32 s{SJ}, s{SW}, 3")
        E(f"s_lshl_b32 s{SCH}, s{SF}, 1"); E(f"s_add_u32 s{SCH}, s{SCH}, s{SC}"); E(f"s_lshl_b32 s{SCH}, s{SCH}, 12")
        E(f"s_lshl_b32 s60, s{SJ}, 10"); E("v_add_u32 v50, s60, v6"); E("v_subrev_u32 v51, 16, v50")
        E(f"s_lshl_b32 s63, s{SW}, 18"); E(f"s_lshl_b32 s62, s{SF}, 5"); E("s_add_u32 s63, s63, s62"); E(f"s_add_u32 s63, s63, {KVT_OFF}")
        E("v_lshrrev_b32 v48, 1, v0"); E("v_and_b32 v158, 1, v0" if False else "v_and_b32 v3, 1, v0"); E("v_lshlrev_b32 v49, 13, v48"); E("v_lshl_add_u32 v49, v3, 4, v49")
        def ld(t):
            def f(): I(t); self.th = self.vm.issue()
            L.append((f, 16))
        ld(f"buffer_load_dwordx4 {v(160,4)}, v51, s[{RB}:{RB+3}], s{SCH} offen")
        ld(f"buffer_load_dwordx4 {v(164,4)}, v50, s[{RB}:{RB+3}], s{SCH} offen")
        ld(f"buffer_load_dwordx4 {v(168,4)}, v49, s[{RWS}:{RWS+3}], s63 offen{self.ld}")
        E(f"s_lshl_b32 s{SWO}, s57, 19"); E(f"s_lshl_b32 s60, s{SW}, 15"); E(f"s_add_u32 s{SWO}, s{SWO}, s60"); E(f"s_add_u32 s{SWO}, s{SWO}, {WOT_OFF}")
        E("s_and_b32 s60, s56, 1"); E("s_lshl_b32 s60, s60, 18"); E(f"s_add_u32 s{SWO}, s{SWO}, s60")
        TR_ = self.o.get("trot", 1)
        if TR_ == 0: E("s_mov_b32 s58, 0")
        elif TR_ == 1: E("s_mov_b32 s58, s57")
        else: E("s_and_b32 s58, s56, 6"); E("s_add_u32 s58, s58, s57")
        def w1(i, mt):
            if mt == 0 and i % 2 == 0: self.wadr(i)
            I(f"buffer_load_dwordx4 {v(self.WS_[i]+4*mt,4)}, v6, s[{RWS}:{RWS+3}], s59 offen offset:{(i&1)*2048+mt*1024}{self.ld}"); self.wtok[i] = self.vm.issue()
        L2 = [(lambda i=i, mt=mt: w1(i, mt), 16) for i in range(self.o.get("we", 6)) for mt in range(2)]
        L3 = []; L, Lx = L3, L
        E = lambda t: L3.append((lambda: I(t), 4))
        E(f"s_mul_i32 s{SB}, s{SC}, 6144"); E(f"s_add_u32 s{SB}, s{SB}, {self.XB}")
        E(f"s_mul_i32 s{SHB_}, s{SC}, {8*self.HC}"); E(f"s_add_u32 s{SHB_}, s{SHB_}, {self.HB}")
        E(f"s_xor_b32 s{SCX}, s56, 1"); E(f"s_lshl_b32 s{SCX}, s{SCX}, 19"); E(f"s_lshl_b32 s60, s{SW}, 14"); E(f"s_add_u32 s{SCX}, s{SCX}, s60"); E(f"s_add_u32 s{SCX}, s{SCX}, {CTX_OFF}")
        E("s_and_b32 s60, s56, 1"); E("s_lshl_b32 s60, s60, 17"); E(f"s_add_u32 s{SCX}, s{SCX}, s60")
        return Lx, L2, L3
    def wreg(self, i):
        return self.WS_[i % len(self.WS_)]
    def wload(self, i):
        I = self.I; r = self.wslot[i]
        I(f"s_add_u32 s61, s{self.SWO}, {i*2048}")
        for mt in range(2):
            I(f"buffer_load_dwordx4 {v(r+4*mt,4)}, v6, s[{RWS}:{RWS+3}], s61 offen offset:{mt*1024}{self.ld}"); self.wtok[i] = self.vm.issue()
    def wadr(self, i):
        I = self.I
        I(f"s_add_u32 s59, s58, {i >> 1}"); I("s_and_b32 s59, s59, 7"); I("s_lshl_b32 s59, s59, 12"); I(f"s_add_u32 s59, s59, s{self.SWO}")
    def tail_valu(self):
        I = self.I; HC = self.HC; L = []; E = lambda t: L.append((lambda: I(t), 4))
        SJ, SB, SHB_ = self.SJ, self.SB, self.SHB_
        Ee, Eo, Oe, Oo = 160, 113, 122, 131
        E(f"s_add_u32 s60, s{SHB_}, 64"); E("v_add_u32 v138, s60, v50")
        E("v_and_b32 v51, 3, v48"); E("v_mul_u32_u24 v139, 1536, v51"); E("v_lshrrev_b32 v53, 2, v48"); E("v_lshl_add_u32 v139, v53, 4, v139")
        E("v_and_b32 v53, 1, v0"); E("v_mul_u32_u24 v53, 6144, v53"); E(f"s_lshl_b32 s60, s{SW}, 7"); E(f"s_add_u32 s60, s60, {self.XB + 512}"); E("v_add3_u32 v139, v139, v53, s60")
        E("v_and_b32 v51, 3, v0")
        for r in range(2): E(f"v_mov_b64 {v(172+2*r,2)}, 0")
        E("v_bfe_u32 v140, v0, 2, 3"); E(f"v_mul_u32_u24 v140, {HC}, v140"); E("v_lshl_add_u32 v140, v51, 4, v140"); E(f"v_add_u32 v140, s{SHB_}, v140")
        E(f"s_mul_i32 s60, s{SJ}, 1536"); E(f"s_add_u32 s60, s60, s{SB}"); E("v_lshl_add_u32 v141, v0, 3, s60")
        L.append((lambda: self.vm.wait(self.th - 1), 4))
        for k in range(7): E(f"v_alignbit_b32 v{Oe+k}, v{Ee+k+1}, v{Ee+k}, 16")
        for k in range(1, 7): E(f"v_alignbit_b32 v{Oo+k}, v{Ee+k+1}, v{Ee+k}, 16")
        for k in range(1, 7): E(f"v_mov_b32 v{Eo+k}, v{Ee+k}")
        return L
    def tail_writes(self):
        I = self.I; lg = self.lg; HC = self.HC; L = []
        Ee, Eo, Oe, Oo = 160, 113, 122, 131
        def W(t, pre=None):
            def f():
                if pre: pre()
                I(t); lg.issue()
            L.append(f)
        for r in range(8):
            sft = 1 + r; k = sft >> 1
            base = ((Oe, Oo) if sft & 1 else (Ee, Eo))[k & 1]
            W(f"ds_write_b128 v138, {v(base+k,4)} offset:{r*HC}")
        W(f"ds_write_b128 v140, {v(172,4)}"); W(f"ds_write_b64 v141, {v(172,2)}")
        W(f"ds_write_b128 v139, {v(168,4)}", lambda: self.vm.wait(self.th))
        return L
    def tailp(self):
        a = self.a; I = self.I; vm = self.vm; lg = self.lg
        HB, HC, YB = self.HB, self.HC, self.YB
        SC, SJ, SB, SCH, SHB_, SWO, SCX = self.SC, self.SJ, self.SB, self.SCH, self.SHB_, self.SWO, self.SCX
        ACC = 192; FRS = [224, 240, 64]; RD_ = 224; OACC = 192; YT = self.XB
        VL16, VA, VB, T, VP, VPA, VO, GR, VW1 = 6, 4, 5, 12, 7, 8, 9, 10, 11
        WSL = self.WS_; CSL = [144, 152, 160, 168, 64, 72]
        assert len(WSL) == 16
        I(f"s_lshr_b32 s53, s56, 1"); I("s_lshl_b32 s53, s53, 10"); I("s_and_b32 s44, s56, 1"); I("s_lshl_b32 s44, s44, 9"); I("s_add_u32 s53, s53, s44")
        I(f"s_lshr_b32 s44, s{SW}, 1"); I("s_lshl_b32 s44, s44, 7"); I("s_add_u32 s53, s53, s44"); I(f"s_and_b32 s44, s{SW}, 1"); I("s_lshl_b32 s44, s44, 3")
        I("s_add_u32 s53, s53, s44"); I(f"s_add_u32 s53, s53, {FC_OFF}")
        I(f"v_and_b32 v{VPA}, 1, v0"); I(f"v_lshlrev_b32 v{VPA}, 2, v{VPA}")
        PUBN = self.o.get("pubn", 4)
        I(f"s_lshr_b32 s45, s{SHEAD}, 2"); I("s_lshl_b32 s45, s45, 7"); I(f"s_and_b32 s44, s{SHEAD}, 3"); I("s_lshl_b32 s44, s44, 2"); I("s_add_u32 s45, s45, s44")
        I(f"s_sub_u32 s44, 15, s{SIDX}"); I("s_lshl_b32 s44, s44, 10"); I("s_add_u32 s46, s44, s45"); I(f"s_add_u32 s46, s46, {FC_OFF}")
        I(f"s_lshl_b32 s44, s{SIDX}, 10"); I("s_add_u32 s47, s44, s45"); I(f"s_add_u32 s47, s47, {FC_OFF}")
        self.srd(RC, "out", 2*MB); self.srd(RD, "q", 2*MB)
        I(f"s_lshl_b32 s44, s{SF}, 2"); I(f"s_load_dword s55, s[{P['ssmD']}:{P['ssmD']+1}], s44")
        I(f"v_and_b32 v{T}, 15, v0"); I(f"v_lshrrev_b32 v{T+1}, 4, v0")
        I(f"v_and_b32 v{T+2}, 7, v0"); I(f"v_mul_u32_u24 v{VA}, {HC}, v{T+2}")
        I(f"v_bfe_u32 v{T+2}, v0, 3, 1"); I(f"v_sub_u32 v{T+2}, v{T+2}, v{T+1}"); I(f"v_lshl_add_u32 v{VA}, v{T+2}, 4, v{VA}")
        I(f"s_lshl_b32 s43, s{SJ}, 8"); I(f"s_add_u32 s43, s43, s{SHB_}"); I("s_add_u32 s43, s43, 64"); I(f"v_add_u32 v{VA}, s43, v{VA}")
        I(f"s_lshl_b32 s43, s{SJ}, 6"); I(f"s_sub_u32 s43, s{SB}, s43"); I(f"s_add_u32 s43, s43, {(32-3)*16}")
        I(f"v_lshl_add_u32 v{VB}, v{T}, 4, s43"); I(f"v_mul_u32_u24 v{T+2}, 1536, v{T+1}"); I(f"v_add_u32 v{VB}, v{VB}, v{T+2}")
        I(f"s_lshl_b32 s51, s{SW}, 13"); I(f"s_xor_b32 s52, s{SCX}, 0x80000")
        I("s_waitcnt lgkmcnt(0)"); lg.mark_all_done(); self.barrier()
        self.stamp(5)
        wtok = dict(self.wtok); ctok = {}; cslot = dict(enumerate(CSL))
        def wload(k):
            if k % 2 == 0: self.wadr(k)
            for mt in range(2):
                I(f"buffer_load_dwordx4 {v(WSL[k]+4*mt,4)}, v{VL16}, s[{RWS}:{RWS+3}], s59 offen offset:{(k&1)*2048+mt*1024}{self.ld}"); wtok[k] = vm.issue()
        def cload(i):
            I(f"s_add_u32 s62, s58, {i & 7}"); I("s_and_b32 s62, s62, 7"); I("s_lshl_b32 s62, s62, 11"); I(f"s_add_u32 s62, s62, s{52 if i >= 16 else SCX}")
            if i & 8: I("s_add_u32 s62, s62, 0x40000")
            for qt in range(2):
                I(f"buffer_load_dwordx4 {v(cslot[i]+4*qt,4)}, v{VL16}, s[{RWS}:{RWS+3}], s62 offen offset:{qt*1024}{self.ld}"); ctok[i] = vm.issue()
        wl = [k for k in range(16) if k not in wtok]
        BS = [224, 240]; AS = list(range(160, 176, 4)) + list(range(64, 80, 4)); NA = len(AS)
        seq = [(dd, m, bt) for dd in range(4) for (m, bt) in ((0, 0), (3, 0), (0, 1), (3, 1), (1, 0), (2, 0), (1, 1), (2, 1))]
        atok = {}; btok = {}
        def rda(n):
            if n >= len(seq): return
            dd, m, bt = seq[n]
            I(f"ds_read_b128 {v(AS[n % NA],4)}, v{VA} offset:{64*dd + 1024*m + 32*bt}"); atok[n] = lg.issue()
        def rdb(dd, n):
            if dd >= 4: return
            I(f"ds_read_b128 {v(BS[dd & 1]+4*n,4)}, v{VB} offset:{(3-dd)*16 + 256*n}"); btok[(dd, n)] = lg.issue()
        rda(0)
        for n in range(4): rdb(0, n)
        for n in range(1, NA - 1): rda(n)
        seen = set()
        for n, (dd, m, bt) in enumerate(seq):
            for nn in range(4 - m):
                lg.wait(max(atok[n], btok[(dd, nn)]))
                key = (m + nn, bt); d = v(ACC + 8*key[0] + 4*bt, 4)
                I(f"v_mfma_f32_16x16x32_bf16 {d}, {v(AS[n % NA],4)}, {v(BS[dd & 1]+4*nn,4)}, {d if key in seen else '0'}"); seen.add(key)
                if nn == 0:
                    rda(n + NA - 1)
                    if 1 <= (n & 7) <= 4: rdb(dd + 1, (n & 7) - 1)
            if n & 1:
                h_ = n >> 1
                if h_ == PUBN:
                    vm.wait(self.tctx); self.barrier(); self.publish(46); self.publish(47)
                if h_ >= self.o.get("wst", 2) and len(wl) > self.o.get("wkeep", 2): wload(wl.pop(0))
                if h_ == self.o.get("p1", 12): tc1 = self.poll_issue(VP, VPA, "s53")
        I(f"v_add_u32 v{T+2}, s51, v{VL16}")
        for i in range(8):
            I(f"ds_write_b128 v{T+2}, {v(ACC+4*i,4)} offset:{1024*i}"); lg.issue()
        while wl: wload(wl.pop(0))
        I(f"s_lshl_b32 s43, s{SC}, 15"); I(f"s_lshl_b32 s44, s{SJ}, 11"); I("s_add_u32 s43, s43, s44"); I(f"v_add_u32 v{T+2}, s43, v{VL16}")
        I(f"s_lshl_b32 s44, s{SJ}, 8"); I(f"s_add_u32 s44, s44, s{SB}"); I("s_add_u32 s44, s44, 520")
        I(f"v_lshl_add_u32 v{T+3}, v{T}, 4, s44"); I(f"v_and_b32 v{VA}, 1, v{T+1}"); I(f"v_lshlrev_b32 v{VA}, 3, v{VA}"); I(f"v_sub_u32 v{T+3}, v{T+3}, v{VA}")
        I(f"v_lshrrev_b32 v{VA}, 1, v{T+1}"); I(f"v_mul_u32_u24 v{VA}, 1536, v{VA}"); I(f"v_add_u32 v{T+3}, v{T+3}, v{VA}")
        I(f"v_lshlrev_b32 v{VB}, 6, v{T}"); I(f"v_lshl_add_u32 v{VB}, v{T+1}, 3, v{VB}")
        I(f"s_add_u32 s45, s{SWK}, {YB}"); I(f"v_add_u32 v{VB}, s45, v{VB}")
        I("s_lshl_b32 s43, s55, 16"); I("s_and_b32 s44, s55, 0xffff0000"); I(f"s_cmp_eq_u32 s{SC}, 0"); I("s_cselect_b32 s55, s43, s44")
        lg.wait(lg.issued); self.barrier()
        self.stamp(12)
        for p in range(4):
            for gq in range(2):
                I(f"ds_read_b128 {v(RD_+8*p+4*gq,4)}, v{T+2} offset:{8192*p+1024*gq}"); lg.issue()
        for gq in range(2):
            I(f"ds_read_b64 {v(ACC+2*gq,2)}, v{T+3} offset:{3072*gq}"); lg.issue()
        le = a.label("NE")
        vm.wait(tc1); I(f"v_and_b32 v{VP}, 1, v{VP}"); I(f"v_cmp_ne_u32 vcc, 1, v{VP}"); I("s_mov_b32 s50, 0"); I(f"s_cbranch_vccnz {le}")
        sv = self.save(); I("s_mov_b32 s50, 1")
        for i in range(len(CSL)): cload(i)
        self.restore(sv); a.L(le)
        lg.wait(lg.issued)
        for i in range(0, 8, 2):
            I(f"v_pk_add_f32 {v(RD_+i,2)}, {v(RD_+i,2)}, {v(RD_+8+i,2)}"); I(f"v_pk_add_f32 {v(RD_+16+i,2)}, {v(RD_+16+i,2)}, {v(RD_+24+i,2)}")
        for i in range(0, 8, 2): I(f"v_pk_add_f32 {v(RD_+i,2)}, {v(RD_+i,2)}, {v(RD_+16+i,2)}")
        for gq in range(2):
            for r in range(4):
                srcr = ACC + 2*gq + (1 - (r >> 1))
                I(f"v_lshlrev_b32 v{ACC+8}, 16, v{srcr}" if r & 1 else f"v_and_b32 v{ACC+8}, 0xffff0000, v{srcr}")
                I(f"v_fma_f32 v{RD_+4*gq+r}, v{ACC+8}, s55, v{RD_+4*gq+r}")
        for i in range(4): I(f"v_cvt_pk_bf16_f32 v{ACC+12+i}, v{RD_+2*i}, v{RD_+2*i+1}")
        for gq in range(2):
            I(f"ds_write_b64 v{VB}, {v(ACC+12+2*gq,2)} offset:{32*gq}"); lg.issue()
        I(f"v_and_b32 v{T+2}, 15, v0"); I(f"v_lshrrev_b32 v{T+1}, 4, v0"); I(f"v_lshlrev_b32 v{T+1}, 1, v{T+1}"); I(f"v_xor_b32 v{T+1}, v{T+1}, v{T+2}"); I(f"v_lshlrev_b32 v{T+1}, 4, v{T+1}")
        I(f"v_lshl_add_u32 v{VA}, v{T+2}, 8, v{T+1}"); I(f"v_add_u32 v{VA}, s51, v{VA}")
        I(f"s_lshr_b32 s48, s{SW}, 1"); I("s_lshl_b32 s48, s48, 4"); I(f"s_and_b32 s41, s{SW}, 1"); I("s_lshl_b32 s42, s41, 3")
        I(f"v_lshrrev_b32 v{T}, 4, v0"); I(f"v_lshl_add_u32 v{T+1}, v{T}, 1, s42"); I(f"v_xor_b32 v{T+1}, v{T+1}, v{T+2}"); I(f"v_lshlrev_b32 v{T+1}, 4, v{T+1}")
        I("s_and_b32 s43, s48, 16"); I(f"v_add_u32 v{T+3}, s43, v{T+2}"); I(f"v_lshl_add_u32 v{VW1}, v{T+3}, 8, v{T+1}")
        I("s_lshr_b32 s43, s48, 5"); I("s_lshl_b32 s43, s43, 16"); I(f"v_add_u32 v{VW1}, s43, v{VW1}")
        lg.wait(lg.issued); I(f"v_xor_b32 v{VB}, 16, v{VW1}"); self.barrier()
        ly = a.label("NY")
        I(f"s_cmp_lg_u32 s{SW}, 0"); I(f"s_cbranch_scc1 {ly}")
        I(f"v_add_u32 v{T}, {YB}, v{VL16}")
        for i in range(8): I(f"ds_read_b128 {v(RD_+4*i,4)}, v{T} offset:{1024*i}")
        I(f"s_lshl_b32 s44, s{SF}, 13"); I(f"s_add_u32 s44, s44, {YT_OFF}"); I("s_add_u32 s45, s44, 4096")
        I("s_waitcnt lgkmcnt(0)")
        for i in range(8): I(f"buffer_store_dwordx4 {v(RD_+4*i,4)}, v{VL16}, s[{RWS}:{RWS+3}], s{44+(i>>2)} offen offset:{1024*(i&3)}{self.st}")
        a.L(ly)
        ll = a.label("NL")
        I("s_cmp_eq_u32 s50, 1"); I(f"s_cbranch_scc1 {ll}")
        self.poll_check(VP, VPA, "s53", 1)
        for i in range(len(CSL)): cload(i)
        a.L(ll)
        self.stamp(6)
        def put_ops(st):
            L = []
            for mt in range(4):
                def f(mt=mt):
                    I(f"v_xor_b32 v{T+3}, {(8*(mt>>1)+(mt&1))*16 + 0x10000*st}, v{VA}")
                    for qt in range(2):
                        I(f"ds_write_b128 v{T+3}, {v(OACC+32*st+8*mt+4*qt,4)} offset:{4096*qt}"); lg.issue()
                L.append(f)
            return L
        def sum_partials(mid=None):
            tk = []
            for p in range(8):
                for hh in range(2):
                    I(f"ds_read_b128 {v(OACC+8*p+4*hh,4)}, v{(VW1, VB)[hh]} offset:{8192*p}"); lg.issue()
                tk.append(lg.issued)
                if p == 5 and mid: mid()
            for p in range(1, 8):
                lg.wait(tk[p])
                for e in range(0, 8, 2): I(f"v_pk_add_f32 {v(OACC+e,2)}, {v(OACC+e,2)}, {v(OACC+8*p+e,2)}")
        ymark = vm.issued; ypub = False; pm = {}; ppub = False; free = []; nc = len(CSL); XR = WSL[0]; PR_ = WSL[1]
        TS = [OACC + 32 + 8*n for n in range(4)]; ptk = {}
        def prd(p):
            r = TS[0] if p == 0 else TS[1 + (p - 1) % 3]
            for hh in range(2):
                I(f"ds_read_b128 {v(r+4*hh,4)}, v{(VW1, VB)[hh]} offset:{8192*p}"); ptk[p] = lg.issue()
        def padd(p):
            lg.wait(ptk[p]); r = TS[1 + (p - 1) % 3]
            for e in range(0, 8, 2): I(f"v_pk_add_f32 {v(TS[0]+e,2)}, {v(TS[0]+e,2)}, {v(r+e,2)}")
            if p + 3 < 8: prd(p + 3)
        def pst():
            I(f"s_lshl_b32 s44, s{SF}, 14"); I(f"s_lshl_b32 s45, s{SW}, 11"); I("s_add_u32 s54, s44, s45"); I(f"s_add_u32 s54, s54, {PP_OFF}")
            for hh in range(2):
                I(f"buffer_store_dwordx4 {v(TS[0]+4*hh,4)}, v{VL16}, s[{RWS}:{RWS+3}], s54 offen offset:{1024*hh}{self.st}"); pm["t"] = vm.issue()
        B1 = self.o.get("b1", 18); PS = self.o.get("ps", 21)
        for i2 in range(0, 32, 2):
            st = (i2 >> 3) & 1; J = i2 & 7; fill = []
            if i2 in (8, 24): fill = put_ops(0)
            if i2 == 16: fill = put_ops(1)
            if i2 == 24: self.barrier()
            if i2 == B1:
                lg.wait(lg.issued); self.barrier()
                for p in range(4): prd(p)
                fill = [lambda p=p: padd(p) for p in range(1, 8)]
                I(f"s_lshl_b32 s53, s57, 7"); I(f"s_lshl_b32 s42, s{SW}, 4"); I("s_add_u32 s53, s53, s42"); I(f"s_add_u32 s53, s53, {FY_OFF}")
                I(f"v_and_b32 v{VPA}, 3, v0"); I(f"v_lshlrev_b32 v{VPA}, 2, v{VPA}")
                tf = self.poll_issue(VP, VPA, "s53")
            if i2 == 26:
                I(f"v_and_b32 v{T+1}, 15, v0"); I(f"s_lshl_b32 s45, s56, 6"); I("s_add_u32 s45, s45, s48"); I(f"v_add_u32 v{T+1}, s45, v{T+1}")
                I(f"v_lshlrev_b32 v{T+2}, 2, v{T+1}"); I(f"s_mov_b32 s45, {G_OFF}")
                I(f"buffer_load_dword v{GR}, v{T+2}, s[{RWS}:{RWS+3}], s45 offen{self.ld}"); vm.issue()
                I(f"v_lshrrev_b32 v{T+2}, 4, v0"); I(f"v_lshlrev_b32 v{T+2}, 4, v{T+2}"); I(f"v_lshl_add_u32 v{VO}, v{T+1}, 10, v{T+2}")
                I("s_lshl_b32 s49, s41, 6"); I(f"s_lshl_b32 s45, s57, 7"); I("s_add_u32 s49, s49, s45")
                I(f"buffer_load_dwordx4 {v(XR,4)}, v{VO}, s[{RD}:{RD+3}], s49 offen"); vm.issue()
                vm.wait(tf); self.poll_check(VP, VPA, "s53", 1)
                I(f"v_lshrrev_b32 v{T}, 3, v0"); I(f"v_and_b32 v{T+1}, 7, v0"); I(f"v_lshlrev_b32 v{T+1}, 4, v{T+1}")
                I(f"v_lshl_add_u32 v{T}, v{T}, 12, v{T+1}")
                I(f"s_add_u32 m0, s{SWK}, {YT}")
                I(f"s_lshl_b32 s44, s57, 18"); I(f"s_lshl_b32 s45, s{SW}, 15"); I("s_add_u32 s44, s44, s45")
                I(f"s_lshl_b32 s45, s56, 7"); I("s_add_u32 s44, s44, s45"); I(f"s_add_u32 s44, s44, {YT_OFF}")
                I(f"buffer_load_dwordx4 v{T}, s[{RWS}:{RWS+3}], s44 offen{self.ld} lds"); vm.issue()
            vm.wait(max(ctok[i2+1], wtok[2*J+3]))
            if not ypub and vm.done > ymark:
                ypub = True; I(f"s_lshl_b32 s44, s{SF}, 2"); I(f"s_add_u32 s44, s44, {FY_OFF}"); self.publish(44, 3)
            if pm and not ppub and vm.done >= pm["t"]:
                ppub = True
                I(f"s_lshl_b32 s44, s{SF}, 7"); I(f"s_lshl_b32 s45, s{SW}, 2"); I("s_add_u32 s44, s44, s45"); I(f"s_add_u32 s44, s44, {FP_OFF}")
                I("v_mov_b32 v2, 1"); I("v_mov_b32 v3, 0"); I(f"buffer_store_dword v2, v3, s[{RWS}:{RWS+3}], s44 offen sc1"); vm.issue()
            if i2 == 30:
                I(f"s_xor_b32 s53, s{SF}, 32"); I("s_lshl_b32 s53, s53, 7"); I(f"s_lshl_b32 s42, s{SW}, 2"); I("s_add_u32 s53, s53, s42"); I(f"s_add_u32 s53, s53, {FP_OFF}")
                I(f"v_mov_b32 v{VPA}, 0")
                if self.o.get("pe"): tp = self.poll_issue(VP, VPA, "s53")
            M = []
            for mt in range(4):
                for qt in range(2):
                    for u in range(2):
                        d = v(OACC + 32*st + 8*mt + 4*qt, 4)
                        M.append(lambda d=d, mt=mt, qt=qt, u=u: I(f"v_mfma_f32_16x16x32_bf16 {d}, {v(WSL[2*(J+u) + (mt >> 1)]+4*(mt & 1),4)}, {v(cslot[i2+u]+4*qt,4)}, {'0' if J + u == 0 else d}"))
            self.stream(M, [(1, 16, fill)] if fill else [])
            free += [cslot[i2], cslot[i2+1]]
            while free and nc < 32:
                cslot[nc] = free.pop(0); cload(nc); nc += 1
            if i2 + 1 == PS or i2 == PS: pst()
        assert ypub and ppub
        self.stamp(7)
        if not self.o.get("pe"):
            tp = self.poll_issue(VP, VPA, "s53")
            for f in put_ops(1): f()
        vm.wait(tp); self.poll_check(VP, VPA, "s53", 1)
        if self.o.get("ostamp"): self.stamp(20)
        I("s_xor_b32 s54, s54, 0x80000")
        for hh in range(2):
            I(f"buffer_load_dwordx4 {v(PR_+4*hh,4)}, v{VL16}, s[{RWS}:{RWS+3}], s54 offen offset:{1024*hh}{self.ld}"); tpp = vm.issue()
        if self.o.get("pe"):
            for f in put_ops(1): f()
        I(f"v_lshrrev_b32 v{T}, 4, v0"); I("s_lshl_b32 s42, s41, 5"); I(f"v_lshl_add_u32 v{T}, v{T}, 3, s42"); I(f"v_bfe_u32 v{T+1}, v0, 2, 2")
        I(f"v_add_u32 v{T}, v{T}, v{T+1}"); I(f"v_lshlrev_b32 v{T}, 7, v{T}"); I(f"v_and_b32 v{T+1}, 3, v0")
        I(f"v_lshl_add_u32 v{T}, v{T+1}, 3, v{T}"); I("s_lshl_b32 s42, s48, 1"); I(f"s_add_u32 s42, s42, {YT}"); I(f"v_add_u32 v{T}, s42, v{T}")
        lg.wait(lg.issued); self.barrier()
        I(f"ds_read_b64_tr_b16 {v(100,2)}, v{T}"); lg.issue()
        I(f"ds_read_b64_tr_b16 {v(102,2)}, v{T} offset:512"); ty2 = lg.issue()
        def mix():
            lg.wait(ty2)
            for e in range(8):
                if e & 1: I(f"v_and_b32 v104, 0xffff0000, v{XR+(e>>1)}"); I(f"v_and_b32 v105, 0xffff0000, v{100+(e>>1)}")
                else: I(f"v_lshlrev_b32 v104, 16, v{XR+(e>>1)}"); I(f"v_lshlrev_b32 v105, 16, v{100+(e>>1)}")
                I(f"v_mul_f32 v{112+e}, v104, v105"); I(f"v_mul_f32 v{112+e}, v{112+e}, v{GR}")
            I(f"v_sub_f32 v{GR}, 1.0, v{GR}")
        sum_partials(mix)
        vm.wait(tpp)
        for e in range(0, 8, 2): I(f"v_pk_add_f32 {v(OACC+e,2)}, {v(OACC+e,2)}, {v(PR_+e,2)}")
        for e in range(8): I(f"v_fmac_f32 v{112+e}, v{OACC+4*(e&1)+(e>>1)}, v{GR}")
        for e in range(4): I(f"v_cvt_pk_bf16_f32 v{108+e}, v{112+2*e}, v{112+2*e+1}")
        I(f"buffer_store_dwordx4 {v(108,4)}, v{VO}, s[{RC}:{RC+3}], s49 offen sc1"); vm.issue()
        self.stamp(16)
        if self.o.get("echo"):
            lp = a.label("EC")
            I("s_sub_u32 s100, s100, s96")
            if self.o.get("cyc"): I("s_lshr_b32 s100, s100, 4")
            I("s_memrealtime s[96:97]"); I("s_waitcnt lgkmcnt(0)")
            a.L(lp)
            I("s_memrealtime s[98:99]"); I("s_waitcnt lgkmcnt(0)"); I("s_sub_u32 s98, s98, s96"); I("s_cmp_lt_u32 s98, s100"); I(f"s_cbranch_scc1 {lp}")
        if self.o.get("dbgout") is not None:
            l = a.label("DB")
            I(f"s_cmp_lg_u32 s2, {self.o['dbgout']}"); I(f"s_cbranch_scc1 {l}"); I(f"s_cmp_lg_u32 s{SW}, 0"); I(f"s_cbranch_scc1 {l}")
            I("s_waitcnt vmcnt(0)")
            order = [0, 1, 2, 3, 8, 10, 11, 4, 5, 12, 6, 7, 16]
            I("v_mov_b32 v20, 0")
            for j, i in enumerate(order):
                I(f"s_mov_b32 s44, {4*i}"); I(f"v_writelane_b32 v20, s44, {j}")
            I(f"s_lshl_b32 s44, s2, 11"); I(f"s_add_u32 s44, s44, {STAMP_OFF}")
            I(f"buffer_load_dword v21, v20, s[{RWS}:{RWS+3}], s44 offen sc1"); I("s_waitcnt vmcnt(0)")
            I("v_readfirstlane_b32 s45, v21"); I("v_subrev_u32 v21, s45, v21")
            self.srd(RDBG, "dbg", 64); I("v_lshlrev_b32 v22, 2, v0")
            I(f"buffer_store_dword v21, v22, s[{RDBG}:{RDBG+3}], 0 offen")
            a.L(l)

HEADER = """; One persistent launch, one 8-wave workgroup per CU (generated by gen/gen_final.py, hand-designed schedule).
"""
def build(opts):
    g = G(opts); k = NAME + "_kernel"
    g.begin(k); g.a.T("; MARK p"); g.proj(); g.a.T("; MARK a"); g.attn(); g.a.T("; MARK t"); g.tailp(); g.end(); g.a.T("; MARK a"); g.attn_rare(); g.a.T("; MARK t"); g.a.L("CODE_END"); g.a.I("s_endpgm")
    n = g.a.fix_hazards()
    txt = "; @launch grid=(256,1,1) block=(512,1,1) lds=163840\n" + HEADER
    txt += '.amdgcn_target "amdgcn-amd-amdhsa--gfx950"\n.text\n' + g.a.text()
    txt += f""".section .rodata,"a"
.p2align 6
.amdhsa_kernel {k}
  .amdhsa_next_free_vgpr 256
  .amdhsa_next_free_sgpr 102
  .amdhsa_accum_offset 256
  .amdhsa_group_segment_fixed_size 0
  .amdhsa_kernarg_size 128
  .amdhsa_user_sgpr_count 2
  .amdhsa_user_sgpr_kernarg_segment_ptr 1
  .amdhsa_system_sgpr_workgroup_id_x 1
.end_amdhsa_kernel
"""
    print(f"instructions {sum(1 for it in g.a.items if it[0] == 'i')}, nops inserted {n}", file=sys.stderr)
    return txt

if __name__ == "__main__":
    opts = {}
    for x in sys.argv[2:]:
        if "=" in x: k_, v_ = x.split("="); opts[k_] = int(v_)
        else: opts[x] = True
    open(sys.argv[1], "w").write(build(opts))
```

```python
import sys, math, struct
sys.path.insert(0, "gen")
from asmlib import *

NAME = "gated_mix__ssm_conv_h3__compressed_kv_cla__prompt"
MB = 1 << 20
KV_OFF, Q_OFF, CTX_OFF, KVT_OFF, YT_OFF, G_OFF = 0, 32*MB, 48*MB, 64*MB, 66*MB, 68*MB
XC_OFF = 40*MB
PP_OFF = 40*MB
WOT_OFF = 32*MB
FLG_OFF = 68*MB + 65536
FK_OFF, FY_OFF, FC_OFF, FP_OFF = FLG_OFF, FLG_OFF + 4096, FLG_OFF + 8192, FLG_OFF + 32768
STAMP_OFF = 69*MB
WS_SIZE = 70*MB
P = dict(q=64, k=66, v=68, shift=70, ssmk=72, ssmD=74, bx=76, ckv=78, wq=80, wuk=82, wuv=84, wo=86, gate=88, out=90, dbg=92, ws=94)
SW, SHEAD, SIDX, SWK, SF = 3, 4, 5, 6, 7
RA, RB, RC, RWS, RD, RE, RT, RDBG = 8, 12, 16, 20, 24, 28, 56, 60
MFMA = "v_mfma_f32_32x32x16_bf16"
LOG2E = 1.4426950408889634
F_KV, F_CA, F_CB, F_Y = 1, 2, 4, 8
def f2u(x): return "0x%08x" % struct.unpack("<I", struct.pack("<f", x))[0]
def rep4(b): return b * 0x01010101

class G:
    def __init__(self, opts):
        self.a = Asm(); self.o = opts
        self.GSH, self.FSH = (8, 10) if opts.get("lin") else (11, 8)
        self.vm = Cnt(self.a, "vmcnt", 63); self.lg = Cnt(self.a, "lgkmcnt", 15)
        self.st = "" if opts.get("plainst") else (" sc1 nt" if opts.get("ntst") else " sc1"); self.ld = "" if opts.get("plainld") else " sc1"
    def I(self, t): self.a.I(t)
    def srd(self, r, ptr, nbytes):
        I = self.I
        I(f"s_mov_b32 s{r}, s{P[ptr]}"); I(f"s_mov_b32 s{r+1}, s{P[ptr]+1}")
        I(f"s_mov_b32 s{r+2}, {nbytes}"); I(f"s_mov_b32 s{r+3}, 0x00020000")
    def save(self): return (self.vm.issued, self.vm.done, self.lg.issued, self.lg.done)
    def restore(self, s_): self.vm.issued, self.vm.done, self.lg.issued, self.lg.done = s_
    def stream(self, mf, fills):
        n = len(mf); slots = [[] for _ in range(n + 1)]
        for (s0, e0, cl) in fills:
            m = e0 - s0
            for j, c in enumerate(cl): slots[s0 + 1 + (j * m) // len(cl)].append(c)
        for c in slots[0]: c()
        for i in range(n):
            mf[i]()
            for c in slots[i+1]: c()
    def stamp(self, i, dyn=None):
        if self.o.get("echo") == i:
            self.I("s_memtime s[100:101]" if self.o.get("cyc") else "s_memrealtime s[100:101]"); self.I("s_waitcnt lgkmcnt(0)")
        if not self.o.get("stamp"): return
        I = self.I
        I("s_memrealtime s[96:97]"); I("s_memtime s[100:101]")
        I("s_lshl_b32 s98, s2, 3"); I(f"s_add_u32 s98, s98, s{SW}"); I("s_lshl_b32 s98, s98, 8")
        I(f"s_add_u32 s98, s98, {STAMP_OFF + 4*i}")
        if dyn is not None:
            I(f"s_lshl_b32 s99, s{dyn}, 4"); I("s_add_u32 s98, s98, s99")
        I("s_waitcnt lgkmcnt(0)")
        I("v_mov_b32 v2, s96"); I("v_mov_b32 v3, 0")
        I(f"buffer_store_dword v2, v3, s[{RWS}:{RWS+3}], s98 offen")
        I("v_mov_b32 v2, s100")
        I(f"buffer_store_dword v2, v3, s[{RWS}:{RWS+3}], s98 offen offset:128")
    OOB = 0x40000000
    def publish(self, soff, val=1, srd=RWS, byte=False, idx=None):
        I = self.I
        self.oob_sel()
        if idx is not None: I(f"s_and_b32 s98, s{SIDX}, 3"); I(f"s_cmp_eq_u32 s98, {idx}"); I(f"s_cselect_b32 s99, s99, {self.OOB}")
        I(f"v_mov_b32 v2, {val}"); I("v_mov_b32 v3, s99")
        I(f"buffer_store_{'byte' if byte else 'dword'} v2, v3, s[{srd}:{srd+3}], s{soff} offen sc1"); self.vm.issue()
    def oob_sel(self):
        self.I(f"s_cmp_eq_u32 s{SW}, 0"); self.I(f"s_cselect_b32 s99, 0, {self.OOB}")
    def poll_issue(self, vd, vaddr, soff, srd=RWS):
        self.I(f"buffer_load_dword v{vd}, v{vaddr}, s[{srd}:{srd+3}], {soff} offen sc1"); return self.vm.issue()
    def poll_check(self, vd, vaddr, soff, want, srd=RWS):
        a = self.a; I = self.I
        l = a.label("PCK"); lp = a.label("POLL")
        I(f"s_mov_b32 s98, {want}"); I("s_mov_b32 s99, 20000")
        a.L(lp)
        I(f"v_and_b32 v{vd}, s98, v{vd}"); I(f"v_cmp_ne_u32 vcc, s98, v{vd}"); I(f"s_cbranch_vccz {l}")
        I("s_sleep 2")
        I(f"buffer_load_dword v{vd}, v{vaddr}, s[{srd}:{srd+3}], {soff} offen sc1")
        I("s_sub_u32 s99, s99, 1"); I("s_cmp_lg_u32 s99, 0"); I("s_waitcnt vmcnt(0)"); I(f"s_cbranch_scc1 {lp}")
        a.L(l)
    def phys(self, d, s_, t, E=None):
        I = E or self.I; p = self.o.get("hperm", 0)
        if p == 0: I(f"s_mov_b32 s{d}, s{s_}")
        elif p == 1: I(f"s_and_b32 s{t}, s{s_}, 3"); I(f"s_lshl_b32 s{t}, s{t}, 3"); I(f"s_lshr_b32 s{d}, s{s_}, 2"); I(f"s_or_b32 s{d}, s{d}, s{t}")
        elif p >= 32:
            I(f"s_lshr_b32 s{t}, s{s_}, 3"); I(f"s_add_u32 s{t}, s{t}, {p - 32}"); I(f"s_and_b32 s{t}, s{t}, 3")
            I(f"s_and_b32 s{d}, s{s_}, 7"); I(f"s_lshl_b32 s{d}, s{d}, 2"); I(f"s_or_b32 s{d}, s{d}, s{t}")
        else: I(f"s_mul_i32 s{t}, s{s_}, {p}"); I(f"s_and_b32 s{d}, s{t}, 31")
    def barrier(self): self.I("s_barrier")
    def sync_all(self):
        self.I("s_waitcnt vmcnt(0) lgkmcnt(0)"); self.vm.mark_all_done(); self.lg.mark_all_done(); self.barrier()

    def begin(self, kname):
        a = self.a; I = self.I
        a.T(f".globl {kname}\n.p2align 8\n.type {kname},@function"); a.L(kname)
        self.endl = a.label("END")
        if self.o.get("stamp"): I("s_memrealtime s[30:31]")
        if self.o.get("echo"): I("s_memtime s[96:97]" if self.o.get("cyc") else "s_memrealtime s[96:97]")
        I("s_load_dwordx16 s[64:79], s[0:1], 0"); I("s_load_dwordx16 s[80:95], s[0:1], 64")
        I("s_cmp_ge_u32 s2, 256"); I(f"s_cbranch_scc1 {self.endl}")
        I("v_lshrrev_b32 v1, 6, v0"); I("v_and_b32 v0, 63, v0"); I(f"v_readfirstlane_b32 s{SW}, v1")
        I("s_and_b32 s7, s2, 7"); I("s_lshl_b32 s7, s7, 2")
        I(f"s_lshr_b32 s{SIDX}, s2, 3"); I(f"s_lshr_b32 s{SHEAD}, s{SIDX}, 3"); I(f"s_add_u32 s{SHEAD}, s{SHEAD}, s7")
        I(f"s_and_b32 s{SIDX}, s{SIDX}, 7"); I(f"s_lshl_b32 s{SWK}, s{SW}, 10")
        I(f"s_lshl_b32 s{SF}, s{SHEAD}, 3"); I(f"s_add_u32 s{SF}, s{SF}, s{SIDX}")
    def end(self):
        self.a.L(self.endl); self.I("s_endpgm")

    def proj(self):
        a = self.a; I = self.I; vm = self.vm; lg = self.lg
        QA_LDS = 65536
        ACC = {"K": 64, "V": 128, "Q": 64}
        FX = [16, 24]; FW = [192, 32]
        VWA = 4; VSK, VSV, VOX, VOW, VST = 8, 9, 10, 11, 12; VXA = 224; T = 232
        NB = 0; XC = self.o.get("xc", 0)
        ST = [("KV", c) for c in range(NB)] + [("K", c) for c in range(NB, 8)] + [("V", c) for c in range(7, NB - 1, -1)] + [("Q", c) for c in range(8)]
        NS = len(ST); TK = 7; TV = NS - 9; TQ = NS - 8
        I("v_lshrrev_b32 v13, 3, v0"); I(f"s_lshl_b32 s40, s{SW}, 3"); I("v_add_u32 v13, s40, v13"); I("v_lshlrev_b32 v13, 10, v13")
        I(f"s_lshr_b32 s41, s{SW}, 1"); I(f"s_xor_b32 s40, s41, s{SW}"); I("s_and_b32 s40, s40, 1"); I("s_lshl_b32 s40, s40, 2")
        I("v_lshrrev_b32 v14, 4, v0"); I("v_add_u32 v15, s40, v14")
        I("v_and_b32 v3, 7, v0"); I("v_xor_b32 v15, v15, v3"); I(f"v_lshl_add_u32 v{VOX}, v15, 4, v13")
        I(f"s_lshl_b32 s40, s{SW}, 2"); I("v_add_u32 v13, s40, v14"); I("v_lshlrev_b32 v13, 13, v13")
        I("s_and_b32 s41, s41, 1"); I("s_lshl_b32 s41, s41, 3"); I("v_lshl_add_u32 v15, v14, 1, s41"); I("v_and_b32 v3, 15, v0"); I("v_xor_b32 v15, v15, v3")
        I("v_lshl_add_u32 v13, v15, 4, v13"); self.phys(40, SHEAD, 41); I("s_lshl_b32 s40, s40, 8"); I(f"v_add_u32 v{VOW}, s40, v13")
        I(f"v_lshlrev_b32 v{VST}, 4, v0")
        I(f"s_lshl_b32 s44, s{SIDX}, 18")
        for i in range(1, 4): I(f"s_add_u32 s{44+i}, s44, {65536*i}")
        ROT = self.o.get("rot", 2)
        if ROT == 0: I("s_mov_b32 s33, 0")
        elif ROT == 1: I(f"s_mov_b32 s33, s{SIDX}")
        elif ROT == 2: I(f"s_lshr_b32 s33, s{SHEAD}, 2"); I(f"s_add_u32 s33, s33, s{SIDX}")
        elif ROT == 3: I(f"s_lshr_b32 s33, s{SHEAD}, 2"); I(f"s_add_u32 s33, s33, s{SIDX}"); I(f"s_lshl_b32 s34, s{SHEAD}, 1"); I("s_add_u32 s33, s33, s34")
        elif ROT == 4: I(f"s_lshr_b32 s33, s{SHEAD}, 2")
        if self.o.get("rotq"): I(f"s_lshl_b32 s32, s{SHEAD}, 1"); I("s_add_u32 s32, s32, s33")
        else: I("s_mov_b32 s32, s33")
        I("s_waitcnt lgkmcnt(0)")
        if self.o.get("stamp"): I("s_memrealtime s[28:29]")
        self.srd(RA, "ckv", 2*MB); self.srd(RB, "wuk", 4*MB); self.srd(RC, "wuv", 4*MB)
        def xbase(t):
            k, c = ST[t]
            return (32768, 131072, 0)[((16 + c) if k == "Q" else (15 - c + NB)) % 3]
        units = [(t, m) for t in range(NS) for m in ST[t][0]]
        uidx = {u: i for i, u in enumerate(units)}
        def wbase(t, m): return 65536 + (uidx[(t, m)] % 4)*16384
        WE = self.o.get("wearly", 2)
        def wn(t): return t - 1 if t >= WE else t
        items = []
        lastx = {}
        for t in range(NS):
            k, c = ST[t]
            for m in k:
                u = uidx[(t, m)]
                def w(i, t=t, m=m, c=c):
                    if i == 0: I(f"s_add_u32 s34, s{32 if m == 'Q' else 33}, {c}"); I("s_and_b32 s34, s34, 7"); I("s_lshl_b32 s34, s34, 19")
                    I(f"s_add_u32 m0, s{SWK}, {wbase(t, m) + i*8192}"); I(f"s_add_u32 s41, s34, {i*262144}")
                    r = {"K": RB, "V": RC, "Q": RE}[m]
                    if self.o.get("nodma") and t > 4: dtok[wn(t)] = vm.issued; return
                    I(f"buffer_load_dwordx4 v{VOW}, s[{r}:{r+3}], s41 offen lds"); dtok[wn(t)] = vm.issue()
                items.append((wn(t), wn(units[u-4][0]) if u >= 4 else -1, [lambda i=i, w=w: w(i) for i in range(2)]))
            key = ("Q" if k == "Q" else "C", c); prev = lastx.get(xbase(t))
            if prev is None or prev[1] != key:
                def x(i, t=t, k=k, c=c):
                    if i == 0: I(f"s_add_u32 s35, s{32 if k == 'Q' else 33}, {c}"); I("s_and_b32 s35, s35, 7"); I("s_lshl_b32 s35, s35, 7")
                    I(f"s_add_u32 m0, s{SWK}, {xbase(t) + i*8192}"); I(f"s_add_u32 s41, s{(48 if k == 'Q' else 44)+i}, s35")
                    r = (RWS if XC else RD) if k == "Q" else RA
                    if self.o.get("nodma") and t > 4: dtok[t] = vm.issued; return
                    I(f"buffer_load_dwordx4 v{VOX}, s[{r}:{r+3}], s41 offen{self.ld if (XC and k == 'Q') else ''} lds"); dtok[t] = vm.issue()
                items.append((t, prev[0] if prev else -1, [lambda i=i, x=x: x(i) for i in range(4)]))
            lastx[xbase(t)] = (t, key)
        items.sort(key=lambda it: it[0])
        dtok = {}
        def take(done, upto=99):
            out = []
            for it in list(items):
                if it[1] <= done and it[0] <= upto: out += it[2]; items.remove(it)
            return out
        for f in take(-1, 0): f()
        self.srd(RWS, "ws", WS_SIZE); self.srd(RDBG, "dbg", 256)
        if self.o.get("wsoff"): I(f"s_add_u32 s{RWS}, s{RWS}, {self.o['wsoff']*MB}"); I(f"s_addc_u32 s{RWS+1}, s{RWS+1}, 0")
        self.stamp(31)
        if self.o.get("stamp"):
            I("v_mov_b32 v2, s30"); I("s_sub_u32 s98, s98, 124"); I(f"buffer_store_dword v2, v3, s[{RWS}:{RWS+3}], s98 offen")
            I("v_mov_b32 v2, s28"); I(f"buffer_store_dword v2, v3, s[{RWS}:{RWS+3}], s98 offen offset:120")
        I(f"s_lshl_b32 s48, s{SIDX}, 17"); I("s_add_u32 s49, s48, 65536")
        I(f"s_sub_u32 s50, 15, s{SIDX}"); I("s_lshl_b32 s50, s50, 17"); I("s_add_u32 s51, s50, 65536")
        if XC:
            for i in range(4): I(f"s_add_u32 s{48+i}, s{48+i}, {XC_OFF}")
        I(f"s_and_b32 s42, s{SW}, 3"); I("s_lshl_b32 s42, s42, 6"); I(f"s_lshr_b32 s43, s{SW}, 2"); I("s_lshl_b32 s43, s43, 1")
        I("v_and_b32 v13, 15, v0"); I("v_lshrrev_b32 v15, 4, v0")
        I("v_lshrrev_b32 v14, 1, v13"); I("v_xor_b32 v14, v14, v15"); I("v_lshlrev_b32 v14, 4, v14")
        I("v_add_u32 v3, s42, v13"); I(f"v_lshl_add_u32 v{VXA}, v3, 7, v14")
        I("v_and_b32 v2, 8, v13"); I("v_add_u32 v3, v3, v2"); I(f"v_lshl_add_u32 v{VXA+4}, v3, 7, v14")
        for pt in range(2):
            b = VXA + 4*pt
            I(f"v_xor_b32 v{b+1}, 64, v{b}"); I(f"v_add_u32 v{b+2}, 0x20000, v{b}"); I(f"v_add_u32 v{b+3}, 0x20000, v{b+1}")
        I("v_lshlrev_b32 v3, 4, v13"); I("v_and_b32 v2, 1, v15"); I("v_lshl_add_u32 v3, v2, 9, v3"); I("v_lshrrev_b32 v14, 1, v15")
        I("v_lshlrev_b32 v3, 4, v13"); I(f"v_lshl_add_u32 v{VSK}, v15, {self.GSH}, v3")
        I("v_bfe_u32 v13, v0, 2, 2"); I("v_lshl_add_u32 v14, v15, 3, v13"); I("v_lshlrev_b32 v14, 8, v14")
        I("v_and_b32 v3, 3, v0"); I("v_lshl_add_u32 v14, v3, 3, v14"); I("v_add_u32 v14, 0x10000, v14")
        I("v_lshl_add_u32 v13, v2, 2, v13"); I("s_lshl_b32 s40, s43, 1"); I("v_xor_b32 v13, s40, v13"); I(f"v_lshl_add_u32 v{VWA}, v13, 5, v14")
        for dt in range(1, 4): I(f"v_xor_b32 v{VWA+dt}, {dt << 5}, v{VWA}")
        I(f"s_lshl_b32 s54, s{SHEAD}, 4"); I(f"s_lshl_b32 s55, s{SIDX}, 1"); I("s_add_u32 s54, s54, s55")
        I(f"s_bfe_u32 s55, s{SW}, 0x10001"); I("s_add_u32 s54, s54, s55"); I("s_lshl_b32 s54, s54, 16")
        I(f"s_and_b32 s55, s{SW}, 1"); I("s_lshl_b32 s55, s55, 14"); I("s_add_u32 s54, s54, s55")
        I(f"s_lshl_b32 s55, s43, {self.FSH+1}"); I("s_add_u32 s52, s54, s55"); I("s_add_u32 s52, s52, 0x8000")
        I(f"s_lshl_b32 s55, s43, {self.FSH}"); I("s_add_u32 s54, s54, s55")
        XG = T; GW = T + 4; hl = {}
        def gate_loads():
            L = []
            def E(t): L.append(lambda: I(t))
            def V(t):
                def f(): I(t); hl["t"] = vm.issue()
                L.append(f)
            E(f"s_lshl_b32 s40, s{SHEAD}, 7"); E(f"s_lshl_b32 s39, s{SIDX}, 2"); E("s_add_u32 s40, s40, s39"); E(f"s_add_u32 s40, s40, {FK_OFF}")
            E(f"s_lshl_b32 s39, s{SF}, 7"); E(f"s_add_u32 s39, s39, {FP_OFF}"); E("v_and_b32 v13, 7, v0"); E("v_lshl_add_u32 v13, v13, 2, s39")
            E("v_writelane_b32 v13, s40, 0")
            E(f"s_lshr_b32 s39, s{SHEAD}, 2"); E("s_lshl_b32 s39, s39, 7"); E(f"s_and_b32 s40, s{SHEAD}, 3"); E("s_lshl_b32 s40, s40, 2"); E("s_add_u32 s39, s39, s40")
            E(f"s_lshl_b32 s40, s{SIDX}, 10"); E("s_add_u32 s40, s40, s39"); E(f"s_add_u32 s40, s40, {FC_OFF}")
            E("v_writelane_b32 v13, s40, 1")
            E(f"s_sub_u32 s40, 15, s{SIDX}"); E("s_lshl_b32 s40, s40, 10"); E("s_add_u32 s40, s40, s39"); E(f"s_add_u32 s40, s40, {FC_OFF}")
            E("v_writelane_b32 v13, s40, 2")
            E(f"s_lshl_b32 s40, s{SF}, 2"); E(f"s_add_u32 s40, s40, {FY_OFF}"); E("v_writelane_b32 v13, s40, 3"); E("v_mov_b32 v14, 0")
            def oo(): self.oob_sel(); I("v_add_u32 v13, s99, v13")
            L.append(oo)
            V(f"buffer_store_dword v14, v13, s[{RWS}:{RWS+3}], 0 offen sc1")
            E("s_lshl_b32 s37, s2, 3"); E(f"s_add_u32 s37, s37, s{SW}"); E("s_lshl_b32 s38, s37, 10")
            L.append(lambda: self.srd(RD, "q", 2*MB)); L.append(lambda: self.srd(RE, "wq", 4*MB)); L.append(lambda: self.srd(RT, "gate", 1024))
            V(f"buffer_load_dwordx4 {v(XG,4)}, v{VST}, s[{RD}:{RD+3}], s38 offen")
            V(f"buffer_load_dwordx4 {v(GW,4)}, v{VST}, s[{RT}:{RT+3}], 0 offen")
            return L
        def gate_ops():
            L = []; E = lambda t: L.append(lambda: I(t)); Z = T + 8
            L.append(lambda: vm.wait(hl["t"]))
            def xs():
                I(f"s_add_u32 s38, s38, {XC_OFF}"); I(f"buffer_store_dwordx4 {v(XG,4)}, v{VST}, s[{RWS}:{RWS+3}], s38 offen{self.st}"); vm.issue()
            if XC: L.append(xs)
            E(f"v_dot2_f32_bf16 v{Z}, v{XG}, v{GW}, 0")
            for i in range(1, 4): E(f"v_dot2_f32_bf16 v{Z}, v{XG+i}, v{GW+i}, v{Z}")
            for m in ("quad_perm:[1,0,3,2] row_mask:0xf", "quad_perm:[2,3,0,1] row_mask:0xf", "row_half_mirror row_mask:0xf", "row_mirror row_mask:0xf",
                      "row_bcast:15 row_mask:0xa", "row_bcast:31 row_mask:0xc"):
                E(f"v_add_f32_dpp v{Z}, v{Z}, v{Z} {m} bank_mask:0xf")
            E(f"v_readlane_b32 s36, v{Z}, 63"); E(f"v_mov_b32 v{Z+1}, {f2u(-LOG2E)}"); E(f"v_mul_f32 v{Z}, s36, v{Z+1}")
            E(f"v_exp_f32 v{Z}, v{Z}"); E(f"v_add_f32 v{Z}, 1.0, v{Z}"); E(f"v_rcp_f32 v{Z}, v{Z}")
            E("s_lshl_b32 s38, s37, 2"); E(f"s_add_u32 s38, s38, {G_OFF}"); E(f"v_mov_b32 v{Z+1}, 0")
            def gs():
                I(f"buffer_store_dword v{Z}, v{Z+1}, s[{RWS}:{RWS+3}], s38 offen{self.st}"); vm.issue()
            L.append(gs)
            return L
        toks = {}
        def rdx(t, mt):
            m = ST[t][0]; xb = xbase(t); pt = 0
            off = (xb & 65535) + ((mt >> 1)*4096 + (mt & 1)*1024 if pt else mt*2048)
            def f(kk):
                va = VXA + 4*pt + 2*(xb >> 17) + (kk ^ (mt & 1))
                I(f"ds_read_b128 {v(FX[mt & 1]+4*kk,4)}, v{va} offset:{off}"); toks[("x", t, mt, kk)] = lg.issue()
            return [lambda: f(0), lambda: f(1)]
        def rdw(t, dt):
            m = ST[t][0]
            def f(kk, h):
                I(f"ds_read_b64_tr_b16 {v(FW[t & 1]+8*dt+4*kk+2*h,2)}, v{VWA+dt} offset:{wbase(t, m)-65536+kk*8192+h*1024}"); toks[("w", t, dt, kk)] = lg.issue()
            return [lambda kk=kk, h=h: f(kk, h) for kk in range(2) for h in range(2)]
        def atile(m, mt, dt): return ACC[m] + (4*(((mt >> 1)*4 + dt)*2 + (mt & 1)) if m == "V" else 4*(mt*4 + dt))
        def mfs(t, mt):
            m = ST[t][0]; first = t == 0 or ST[t-1][0] != m; L = []
            order = [(dt, kk) for dt in range(4) for kk in range(2)] if not self.o.get("nochain") else [(dt, kk) for kk in range(2) for dt in range(4)]
            for dt, kk in order:
                def f(dt=dt, kk=kk):
                    lg.wait(max(toks[("x", t, mt, kk)], toks[("w", t, dt, kk)]))
                    d = v(atile(m, mt, dt), 4); X = v(FX[mt & 1]+4*kk, 4); W = v(FW[t & 1]+8*dt+4*kk, 4)
                    c = "0" if (first and kk == 0) else d
                    I(f"v_mfma_f32_16x16x32_bf16 {d}, {X}, {W}, {c}" if m == "V" else f"v_mfma_f32_16x16x32_bf16 {d}, {W}, {X}, {c}")
                L.append(f)
            return L
        def pieces(m):
            fs = 1024 if m == "Q" else 1 << self.FSH
            if m == "V": return [(atile(m, 2*p, dt), p*8192 + dt*fs) for p in range(2) for dt in range(4)]
            return [(atile(m, mt, 2*j), (mt >> 1)*8192 + ((mt & 1)*4 + j)*fs) for mt in range(4) for j in range(2)]
        def kv_out(m):
            out = []
            for b, off in pieces(m):
                pk = [lambda i=i, b=b: I(f"v_cvt_pk_bf16_f32 v{b+i}, v{b+2*i}, v{b+2*i+1}") for i in range(4)]
                if m == "K": pk = [lambda i=i, b=b: I(f"v_mul_f32 v{b+i}, {f2u(LOG2E / math.sqrt(128.0))}, v{b+i}") for i in range(8)] + pk
                def st(b=b, off=off):
                    if self.o.get("nost"): return
                    I(f"s_add_u32 s41, s{54 if m == 'K' else 52}, {off}")
                    I(f"buffer_store_dwordx4 {v(b,4)}, v{VSK}, s[{RWS}:{RWS+3}], s41 offen{self.st}"); vm.issue()
                out.append((pk, st))
            return out
        side = {}; late = {}
        def spread(ops, t0, t1, dst=side, ks=(0, 1, 2)):
            sl = [(t, k) for t in range(t0, t1) for k in ks]; n = len(ops)
            for j, key in enumerate(sl): dst.setdefault(key, []).extend(ops[n*j//len(sl): n*(j+1)//len(sl)])
        PG = self.o.get("pg", 0)
        spread(gate_loads(), PG, PG + 1); spread(gate_ops(), PG + 2, PG + 3)
        def wtouch(r, half, wv):
            def f():
                I(f"s_cmp_eq_u32 s{SW}, {wv}"); I(f"s_cselect_b32 s99, 0, {self.OOB}")
                self.phys(39, SHEAD, 40); I("s_lshl_b32 s39, s39, 8"); I(f"s_lshl_b32 s40, s{SIDX}, 19"); I("s_add_u32 s40, s40, s39"); I(f"s_add_u32 s40, s40, {half*32*8192}")
                I("v_lshrrev_b32 v3, 1, v0"); I("v_lshlrev_b32 v3, 13, v3"); I("v_and_b32 v2, 1, v0"); I("v_lshl_add_u32 v3, v2, 7, v3"); I("v_add_u32 v3, s99, v3")
                I(f"buffer_load_dword v1, v3, s[{r}:{r+3}], s40 offen"); vm.issue()
            return f
        for nm, r, dflt in (("tk", RB, -1), ("tv", RC, 1), ("tq", RE, 3)):
            t0 = self.o.get(nm, dflt)
            if t0 >= 0:
                for half in range(2): side.setdefault((t0 + half, 2), []).append(wtouch(r, half, half))
        KN = self.o.get("kn", 8); VD = self.o.get("vd", 0); VN = self.o.get("vn", 5)
        KO = kv_out("K"); VO = kv_out("V"); SK = self.o.get("sk", 2); SG_ = self.o.get("sgp", 6)
        spread(sum((p for p, _ in KO), []), TK + 1, min(TK + 3, TQ), ks=(0, 1))
        npk = 2 * (min(TK + 3, TQ) - TK - 1)
        spread([s_ for _, s_ in KO], TK + 1, TK + 1 + KN, dst=late, ks=(SK,))
        spread(sum((p for p, _ in VO), []), TQ, TQ + 1, ks=(0, 1))
        spread([s_ for _, s_ in VO], TQ + VD, TQ + VD + VN, dst=late, ks=(SK,))
        PK_, PV_ = TK + KN + 2, TQ + VD + VN
        assert PK_ <= NS - 5 and PV_ <= NS - 2
        QE = []; EQ = lambda t: QE.append(lambda: I(t))
        EQ(f"s_and_b32 s55, s{SW}, 2"); EQ("s_lshl_b32 s55, s55, 15"); EQ(f"s_add_u32 s55, s55, {QA_LDS}")
        EQ(f"s_and_b32 s54, s{SW}, 1"); EQ("s_lshl_b32 s54, s54, 14"); EQ("s_add_u32 s55, s55, s54")
        EQ("s_lshl_b32 s54, s43, 10"); EQ("s_add_u32 s55, s55, s54"); EQ(f"v_add_u32 v14, s55, v{VST}")
        def codetouch():
            lp = a.label("PC")
            I("s_getpc_b64 s[36:37]"); a.L(lp)
            I(f"s_lshl_b32 s40, s{SIDX}, 13"); I(f"s_add_u32 s40, s40, s{SWK}")
            I("v_and_b32 v2, 7, v0"); I("v_lshl_add_u32 v2, v2, 7, s40"); I(f"v_min_u32 v2, HOT_END-{lp}-4, v2")
            I("v_mov_b32 v3, s37"); I("v_add_co_u32 v2, vcc, s36, v2"); I("v_addc_co_u32 v3, vcc, 0, v3, vcc")
            I("global_load_dword v1, v[2:3], off"); vm.issue()
        if self.o.get("ct2", -1) >= 0: side.setdefault((self.o.get("ct2"), 1), []).append(codetouch)
        spread(QE, NS - 1, NS)
        spread([lambda: self.srd(RB, "ssmk", 2*MB), lambda: self.srd(RA, "k", 2*MB), lambda: self.srd(RC, "v", 2*MB), lambda: self.srd(RD, "shift", 4096), lambda: self.srd(RE, "wo", 4*MB)], NS - 2, NS - 1)
        spread([lambda r=r: I(f"v_mov_b64 {v(192+2*r,2)}, 0") for r in range(32) if not 16 <= r < 20], NS - 1, NS)
        side.setdefault((NS - 1, 3), []).extend([lambda r=r: I(f"v_mov_b64 {v(192+2*r,2)}, 0") for r in range(16, 20)])
        def fkoff():
            I(f"s_lshl_b32 s40, s{SHEAD}, 7"); I(f"s_lshl_b32 s41, s{SIDX}, 2"); I("s_add_u32 s40, s40, s41"); I(f"s_add_u32 s40, s40, {FK_OFF}")
        def w0only(fn):
            l = a.label("NP"); I(f"s_cmp_lg_u32 s{SW}, 0"); I(f"s_cbranch_scc1 {l}"); fn(); a.L(l)
        def k0(i):
            I(f"s_lshl_b32 s40, s{SW}, 12"); I("s_add_u32 m0, s40, 0x8000")
            I(f"s_lshl_b32 s41, s{SHEAD}, 20"); I("s_add_u32 s41, s41, s40")
            I(f"buffer_load_dwordx4 v{VST}, s[{RWS}:{RWS+3}], s41 offen offset:{1024*i}{self.ld} lds"); vm.issue()
        self.barrier()
        for f in take(-1, 1): f()
        vm.wait(dtok[0]); self.barrier()
        self.stamp(1)
        def first_reads(t):
            x = rdx(t, 0); w = [rdw(t, dt) for dt in range(4)]
            return [x[0]] + w[0][:2] + [x[1]] + w[0][2:] + w[1], w[2] + w[3]
        L, rest = first_reads(0)
        for f in L: f()
        VPK = self.o.get("vpk", 2); mark = {}; TZ = PG + 4; TS = 10; DS = self.o.get("dsteps", 3)
        pend = take(-1)
        for t in range(NS):
            for k in range(4):
                M = mfs(t, k); n = len(M); PB = []
                if k == 3 and t < NS - 1:
                    assert not pend
                    if t == TS + 2: vm.wait(td); w0only(lambda: self.poll_check(14, 13, "0", rep4(1), RDBG))
                    if t == NS - 3: vm.wait(tp); w0only(lambda: self.poll_check(15, 13, "s53", 1))
                    lg.wait(lg.issued)
                    if not (self.o.get("nowait") and t > 4): vm.wait(dtok.get(t+1, 0))
                    if t == TZ: vm.wait(mark[TZ-2])
                    if t == PK_: vm.wait(mark[TK + KN])
                    if t == PV_: vm.wait(mark[PV_ - 1])
                    self.barrier()
                    ps = self.o.get("pstamp")
                    if ps is not None and 0 <= t - int(ps) + 1 < 13: self.stamp(17 + t - int(ps) + 1); vm.issue(2)
                    if TZ <= t < TZ + 4: PB.append(lambda t=t: self.publish(SF, 1, RDBG, True, idx=t - TZ))
                    if t == PK_: PB.append(lambda: (fkoff(), self.publish(40, 1)))
                    if t == PV_: PB.append(lambda: (fkoff(), self.publish(40, 3)))
                    pend = take(t)
                    if t == NS - 3: pend += [lambda i=i: k0(i) for i in range(4)]
                    nd = len(pend) // (DS + 1)
                else:
                    nd = -(-len(pend) // max(1, (3 if t == 0 else DS) - k))
                D, pend = pend[:nd], pend[nd:]
                fl = []
                if not (t == NS - 1 and k == 3):
                    if k == 3:
                        if t + 1 >= WE: fl.append((0, 2, rdx(t+1, 0))); rest = []
                        else:
                            L, rest = first_reads(t+1); nr = self.o.get("nr", 4)
                            fl.append((0, 7, L + rest[:nr])); rest = rest[nr:]
                    else:
                        if k == 0 and rest: fl.append((-1, 2, rest))
                        fl.append((0, 2, rdx(t, k+1)) if not (k == 0 and rest) else (2, 4, rdx(t, k+1)))
                        if WE <= t + 1 < NS:
                            wr = sum((rdw(t+1, dt) for dt in range(4)), [])
                            fl.append((2, 8 if k < 2 else 6, wr[(0, 6, 12)[k]:(6, 12, 16)[k]]))
                if PB: fl.append((1, 2, PB))
                if D: fl.append((0, n, D))
                if side.get((t, k)): fl.append((0, n, side[(t, k)]))
                if late.get((t, k)): fl.append((SG_, min(n, SG_ + 4), late[(t, k)]))
                self.stream(M, fl)
                if k == 2: mark[t] = vm.issued
                if t == TS and k == 0:
                    self.oob_sel(); I("v_lshl_add_u32 v13, v0, 2, s99"); td = self.poll_issue(14, 13, "0", RDBG)
                if t == NS - 4 and k == 0:
                    self.oob_sel(); I("v_and_b32 v13, 7, v0"); I("v_lshl_add_u32 v13, v13, 2, s99")
                    I(f"s_lshl_b32 s53, s{SHEAD}, 7"); I(f"s_add_u32 s53, s53, {FK_OFF}")
                    tp = self.poll_issue(15, 13, "s53")
                if t == NS - 1 and k == VPK: self.poll_issue(15, 13, "s53")
            if t == TK: self.stamp(2)
            if t == TV: self.stamp(13)
        assert not items
        self.stamp(3)
        I("v_mov_b32 v16, v13")
        if VPK > 3: self.poll_issue(15, 13, "s53")
        for b, off in pieces("Q"):
            for i in range(4): I(f"v_cvt_pk_bf16_f32 v{b+i}, v{b+2*i}, v{b+2*i+1}")
            I(f"ds_write_b128 v14, {v(b,4)} offset:{off}"); lg.issue()
        self.attn_setup()
        vm.wait(vm.issued); w0only(lambda: self.poll_check(15, 16, "s53", 3))
        lg.wait(lg.issued); self.barrier()

    def attn_setup(self): self.attn(True)
    def attn(self, setup=False):
        a = self.a; I = self.I; vm = self.vm; lg = self.lg
        M16 = "v_mfma_f32_16x16x32_bf16"
        ML = 155648; QA_LDS = 65536; QB_LDS = 131072
        O = 192; QF = 160; NM = 144; S = [112, 128]; PP = [96, 104]; RING = 64; NR = 8; E = 56; PK = 16
        VK, VV, VL16, VSC, LM, THR, NINF, VQ, TMP = 4, 5, 6, 7, 8, 9, 10, 11, 12
        LS, ONES, BIAS = 152, 60, 11.0
        SR, SG, SC1, SC2, SKO, SVO, SKM, SVM, STH = 32, 33, 34, 35, 36, 37, 38, 39, 42
        SFIN, SCA, SM1 = 55, 59, 58
        DC = self.o.get("dmacost", 16); WEV = self.o.get("wev", 4)
        if setup:
            I(f"s_lshr_b32 s{SG}, s{SW}, 2"); I(f"s_and_b32 s{SR}, s{SW}, 3")
            I(f"v_lshlrev_b32 v{VL16}, 4, v0")
            I(f"s_lshl_b32 s44, s{SR}, 12"); I(f"s_add_u32 s44, s44, {QB_LDS}"); I(f"v_add_u32 v{VQ}, s44, v{VL16}")
            I(f"s_lshl_b32 s45, s{SG}, 16"); I(f"v_subrev_u32 v{TMP+1}, s45, v{VQ}"); I(f"v_xor_b32 v{LM}, 0x7000, v{TMP+1}")
            I(f"s_mov_b32 s{SC1}, s{SIDX}")
            I(f"s_lshl_b32 s{SC2}, s{SIDX}, 1"); I(f"s_sub_u32 s{SC2}, 14, s{SC2}")
            I(f"s_cmp_eq_u32 s{SG}, 1"); I(f"s_cselect_b32 s{SM1}, 0, -1")
            I(f"s_lshl_b32 s43, s{SW}, 12"); I(f"s_lshl_b32 s{SVO}, s{SHEAD}, 20"); I(f"s_add_u32 s{SVO}, s{SVO}, s43")
            I(f"s_add_u32 s{SKO}, s{SVO}, 0x10000"); I(f"s_add_u32 s{SVO}, s{SVO}, 0x8000")
            I(f"s_mov_b32 s{SKM}, s43"); I(f"s_add_u32 s{SVM}, s43, 0x18000")
            I(f"s_mov_b32 s{STH}, 0x40004000"); I(f"v_mov_b32 v{NINF}, 0xff800000")
            for r in range(4): I(f"v_mov_b32 v{ONES+r}, 0x3f803f80"); I(f"v_mov_b64 {v(LS+2*r,2)}, 0")
            I(f"v_and_b32 v{THR}, 15, v0"); I(f"v_lshrrev_b32 v{TMP}, 4, v0"); I(f"v_lshlrev_b32 v{TMP}, 2, v{TMP}"); I(f"v_sub_u32 v{THR}, v{THR}, v{TMP}")
            I(f"s_lshl_b32 s44, s{SR}, 4"); I("s_sub_u32 s45, 112, s44"); I(f"v_add_u32 v{VSC}, s45, v{THR}"); I(f"v_add_u32 v{THR}, s44, v{THR}")
            I(f"v_and_b32 v{VK}, 15, v0"); I(f"v_lshlrev_b32 v{VK}, 4, v{VK}"); I(f"v_lshrrev_b32 v{TMP}, 4, v0"); I(f"v_lshl_add_u32 v{VK}, v{TMP}, {self.GSH}, v{VK}"); I(f"v_add_u32 v{VK}, 0x8000, v{VK}")
            I(f"s_lshr_b32 s44, s{SR}, 1"); I("s_lshl_b32 s44, s44, 18"); I(f"s_and_b32 s45, s{SR}, 1"); I("s_lshl_b32 s45, s45, 10"); I("s_add_u32 s44, s44, s45")
            I(f"s_lshl_b32 s45, s{SHEAD}, 13"); I("s_add_u32 s43, s44, s45"); I(f"s_add_u32 s43, s43, {CTX_OFF}")
            I(f"s_lshl_b32 s{SCA}, s{SIDX}, 20"); I(f"s_add_u32 s{SCA}, s{SCA}, s43")
            I(f"s_mov_b32 s{SFIN}, 0")
            I(f"s_lshr_b32 s56, s{SF}, 6"); I("s_lshl_b32 s56, s56, 2"); I(f"s_bfe_u32 s44, s{SF}, 0x20003"); I("s_add_u32 s56, s56, s44"); I("s_lshl_b32 s56, s56, 1")
            I(f"s_bfe_u32 s44, s{SF}, 0x10005"); I("s_add_u32 s56, s56, s44"); I(f"s_and_b32 s57, s{SF}, 7")
            I("s_mov_b32 s41, 0")
            CL = self.o.get("cl", 8)
            I(f"s_lshr_b32 s40, {1 << (CL+2)}, s{SG}"); I(f"s_or_b32 s40, s40, {1 << CL}")
            TO = self.o.get("to", 0)
            I(f"s_lshl_b32 s44, {2 << TO}, s{SW}"); I(f"s_and_b32 s44, s44, {self.o.get('tm', 30) << TO}"); I("s_or_b32 s40, s40, s44")
            I(f"s_cmp_eq_u32 s{SW}, 0"); I(f"s_cselect_b32 s44, {(1 << (5 + TO)) | (1 << (CL+4))}, 0"); I("s_or_b32 s40, s40, s44")
            if not self.o.get("noprio"):
                l = a.label("PR"); I(f"s_cmp_eq_u32 s{SG}, 1"); I(f"s_cbranch_scc0 {l}"); I("s_setprio 1"); a.L(l)
            return
        op = lambda t, c=4: (lambda: I(t), c)
        nop = lambda: None
        def loadq(va):
            I(f"v_xor_b32 v{TMP}, 0x7000, v{va}")
            for ds in range(8):
                I(f"ds_read_b128 {v(QF+4*ds,4)}, v{va if ds < 4 else TMP} offset:{1024*(ds&3)}"); lg.issue()
        def dma4(kind):
            sm, so = (SKM, SKO) if kind == "k" else (SVM, SVO)
            def d(i):
                def f():
                    if i == 0: I(f"s_mov_b32 m0, s{sm}"); I(f"s_xor_b32 s{sm}, s{sm}, 0x8000")
                    I(f"buffer_load_dwordx4 v{VL16}, s[{RWS}:{RWS+3}], s{so} offen offset:{1024*i}{self.ld} lds")
                    if i == 3: I(f"s_add_u32 s{so}, s{so}, 0x10000")
                return (f, DC + (8 if i == 0 else 4 if i == 3 else 0))
            return [d(i) for i in range(4)]
        self.ring_n = 0
        def rd(kind, sl, idx):
            h = {}
            def f():
                slot = self.ring_n % NR; self.ring_n += 1
                h["reg"] = RING + 4*slot
                I(f"ds_read_b128 {v(h['reg'],4)}, v{VK if kind == 'k' else VV} offset:{sl*8192+(idx << self.FSH)}"); h["tok"] = lg.issue()
            return f, h
        def wait_for(R, i):
            if R[i][1]["tok"] <= lg.done: return
            j = i
            while j + 1 < len(R) and j + 1 < i + WEV and "tok" in R[j+1][1] and R[j+1][1]["tok"] > R[i][1]["tok"]: j += 1
            lg.wait(R[j][1]["tok"])
        def otile(dt, qt): return O + 16*(dt >> 1) + 8*qt + 4*(dt & 1)
        def qk(sb, R, base, czero=False, half=False):
            def f(m):
                kt, qt, dd = m >> 3, (m >> 2) & 1, m & 3; i = base + 4*kt + dd
                wait_for(R, i); d = v(S[sb] + 8*qt + 4*kt, 4)
                c = ("0" if czero else v(NM + 4*qt, 4)) if dd == 0 else d
                I(f"{M16} {d}, {v(R[i][1]['reg'],4)}, {v(QF + 16*qt + 4*dd, 4)}, {c}")
            return [(lambda m=m: f(m)) if not (half and not m & 4) else nop for m in range(16)]
        def pv1(pb, dt, qt, reg): I(f"{M16} {v(otile(dt, qt),4)}, {v(reg,4)}, {v(PP[pb]+4*qt,4)}, {v(otile(dt, qt),4)}")
        def pv(pb, R, base, dts=range(8), exact=False, half=False):
            def f(dt, qt):
                if exact: lg.wait(R[base+dt][1]["tok"])
                else: wait_for(R, base + dt)
                pv1(pb, dt, qt, R[base+dt][1]["reg"])
            ls = [lambda qt=qt: I(f"{M16} {v(LS+4*qt,4)}, {v(ONES,4)}, {v(PP[pb]+4*qt,4)}, {v(LS+4*qt,4)}") for qt in range(2)]
            L = ls + [lambda dt=dt, qt=qt: f(dt, qt) for dt in dts for qt in range(2)]
            return [nop if half and not n & 1 else x for n, x in enumerate(L)]
        def sm_ops(sb):
            ex = lambda i: op(f"v_exp_f32 v{E+(i&3)}, v{S[sb]+i}", 8)
            cv = lambda j: op(f"v_cvt_pk_bf16_f32 v{PP[sb]+j}, v{E+((2*j)&3)}, v{E+((2*j+1)&3)}")
            p = PP[sb]; L = [ex(0), ex(1)]
            ors = {2: f"v_or3_b32 v{LM}, v{p}, v{p+1}, v{p+2}", 4: f"v_or3_b32 v{LM}, v{LM}, v{p+3}, v{p+4}", 6: f"v_or3_b32 v{LM}, v{LM}, v{p+5}, v{p+6}"}
            for j in range(8):
                L += [ex(2*j+2), cv(j), ex(2*j+3)] if j < 7 else [op("s_nop 0"), cv(j)]
                if j in ors: L.append(op(ors[j]))
            L = [x for i, x in enumerate(L) if i != len(L) - 2]
            L += [op(f"v_or_b32 v{LM}, v{LM}, v{p+7}"), op(f"v_and_b32 v{LM}, s{STH}, v{LM}")]
            return L
        def sm_half(sb):
            ex = lambda i: op(f"v_exp_f32 v{E+(i&3)}, v{S[sb]+i}", 8)
            cv = lambda j: op(f"v_cvt_pk_bf16_f32 v{PP[sb]+j}, v{E+((2*j)&3)}, v{E+((2*j+1)&3)}")
            p = PP[sb]
            return [ex(8), ex(9), ex(10), cv(4), ex(11), ex(12), cv(5), ex(13), ex(14), cv(6), ex(15), op(f"v_or3_b32 v{LM}, v{p+4}, v{p+5}, v{p+6}"), cv(7),
                    op(f"v_or_b32 v{LM}, v{LM}, v{p+7}"), op(f"v_and_b32 v{LM}, s{STH}, v{LM}")]
        SPH = 9
        def sched(M, fixed, chain):
            n = len(M); fc = [sum(c for _, c in fixed.get(g, [])) for g in range(n)]
            tot = sum(c for _, c in chain); lo, hi = 0.0, 4000.0
            for _ in range(40):
                lev = (lo + hi) / 2
                if sum(max(0, lev - f) for f in fc) >= tot: hi = lev
                else: lo = lev
            k = 0; credit = 0.0
            for g in range(n):
                M[g]()
                for c, _ in fixed.get(g, []): c()
                credit += max(0, hi - fc[g])
                while k < len(chain) and (g == n - 1 or chain[k][1] <= credit + 2):
                    chain[k][0](); credit -= chain[k][1]; k += 1
        def put(fixed, g, items): fixed.setdefault(g, []).extend(items)
        SPL = self.o.get("spl", 18)
        ool = []
        def rarely(cmp_, body):
            lo = a.label("OOL"); lb = a.label("RET")
            I(cmp_); I(f"s_cbranch_scc1 {lo}"); a.L(lb)
            ool.append((lo, lb, body))
        def mask_ops(sb, koff, half=False):
            prs = [46, 48, 50, 52]; L = []
            for qt in range(2):
                if half and qt == 0:
                    L += [op(f"v_mov_b32 v{S[sb]+r}, v{NINF}") for r in range(8)]; continue
                tr = (THR, VSC)[qt]; ko = koff
                if ko >= 32: L.append(op(f"v_subrev_u32 v{TMP+3}, {ko}, v{tr}" if ko <= 64 else f"v_subrev_u32 v{TMP+3}, 0x{ko:x}, v{tr}")); tr = TMP + 3; ko = 0
                for kt in range(2):
                    r0 = 8*qt + 4*kt
                    for r in range(4): L.append(op(f"v_cmp_lt_i32 s[{prs[r]}:{prs[r]+1}], v{tr}, {16*kt + r + ko}"))
                    for r in range(4): L.append(op(f"v_cndmask_b32 v{S[sb]+r0+r}, v{S[sb]+r0+r}, v{NINF}, s[{prs[r]}:{prs[r]+1}]"))
            return L
        def mask_body(sb, koff, half=False):
            for c, _ in mask_ops(sb, koff, half): c()
        def xred(x, y, t0, t1, o):
            L = []
            for sw in ("v_permlane16_swap_b32", "v_permlane32_swap_b32"):
                L += [op(f"v_mov_b32 v{t0}, v{x}"), op(f"v_mov_b32 v{t1}, v{y}"), op("s_nop 0"), op(f"{sw} v{t0}, v{x}"), op(f"{sw} v{t1}, v{y}"),
                      op(f"{o} v{x}, v{x}, v{t0}"), op(f"{o} v{y}, v{y}, v{t1}")]
            return L
        def rowmax(sb):
            for qt in range(2):
                b = S[sb] + 8*qt; d = TMP + qt
                I(f"v_max3_f32 v{d}, v{b}, v{b+1}, v{b+2}"); I(f"v_max3_f32 v{d}, v{d}, v{b+3}, v{b+4}"); I(f"v_max3_f32 v{d}, v{d}, v{b+5}, v{b+6}"); I(f"v_max_f32 v{d}, v{d}, v{b+7}")
            for c, _ in xred(TMP, TMP+1, TMP+2, TMP+3, "v_max_f32"): c()
        def init_max():
            rowmax(0)
            for qt in range(2): I(f"v_max_f32 v{TMP+qt}, {f2u(-1e30)}, v{TMP+qt}"); I(f"v_add_f32 v{TMP+qt}, {f2u(BIAS)}, v{TMP+qt}")
            for r in range(8): I(f"v_sub_f32 v{NM+r}, 0, v{TMP+(r>>2)}")
            return [op(f"v_sub_f32 v{S[0]+r}, v{S[0]+r}, v{TMP+(r>>3)}") for r in range(16)]
        rare = []
        def check(sb, other=True):
            lr = a.label("RARE"); lb = a.label("BACK")
            I(f"v_cmp_ne_u32 vcc, 0, v{LM}")
            if self.o.get("a_nocheck"): I("s_mov_b64 vcc, 0")
            I(f"s_cbranch_vccnz {lr}"); a.L(lb)
            rare.append((lr, lb, sb, other))
        def fin_body():
            I(f"s_mov_b32 s{SFIN}, 2")
            I(f"v_rcp_f32 v{TMP}, v{LS}"); I(f"v_rcp_f32 v{TMP+2}, v{LS+4}"); I(f"v_mov_b32 v{TMP+1}, v{TMP}"); I(f"v_mov_b32 v{TMP+3}, v{TMP+2}")
            for r in range(4): I(f"v_mov_b64 {v(LS+2*r,2)}, 0")
            for q in range(8):
                for i in range(8*q, 8*q+8, 2): I(f"v_pk_mul_f32 {v(O+i,2)}, {v(O+i,2)}, {v(TMP+2*(q&1),2)}")
                for i in range(4): I(f"v_cvt_pk_bf16_f32 v{PK+4*q+i}, v{O+8*q+2*i}, v{O+8*q+2*i+1}")
                for i in range(8*q, 8*q+8, 2): I(f"v_mov_b64 {v(O+i,2)}, 0")
        TX = 0xc0400
        def st_body():
            I(f"s_xor_b32 s45, s{SCA}, {TX}"); I(f"s_mov_b32 s44, s{SCA}"); I(f"s_mov_b32 s{SFIN}, 3")
            for q in range(8):
                if q == 4: I("s_add_u32 s44, s44, 4096"); I("s_add_u32 s45, s45, 4096")
                I(f"buffer_store_dwordx4 {v(PK+4*q,4)}, v{VL16}, s[{RWS}:{RWS+3}], s{44+(q&1)} offen offset:{((q>>1)&1)*2048}{self.st}")
        TR = [RING + 4*(2+i) for i in range(6)]
        def head(R, vmw, with_mfma=True, post=(), more=(), pre=None, hs=False):
            rf = [(f, 4) for f, h in R]; sm2 = sm_half(0)[SPH:] if hs else sm_ops(0)[SPL:]
            M = [lambda dt=dt, qt=qt: pv1(1, dt, qt, TR[dt-2]) for dt in range(2, 8) for qt in range(2)] if with_mfma else [nop]*12
            if with_mfma: I("s_waitcnt lgkmcnt(4)")
            nb = self.o.get("nb", 4); more = list(more); m0 = len(more) // 3
            if pre is not None: more = list(pre) + more; m0 = len(pre)
            sched(M[:4], {}, sm2[:nb] + more[:m0])
            vmw(); I("s_waitcnt lgkmcnt(0)"); lg.mark_all_done(); self.barrier(); self.ring_n = 0
            fx = {0: rf[0:2], 1: rf[2:4], 2: rf[4:5], 4: rf[5:6], 6: rf[6:7], 7: [(nop, 8 + 8*len(post))]}
            sched(M[4:], fx, sm2[nb:] + more[m0:])
            check(0)
            for p in post: p()
        def mk_reads():
            return ([rd("k", 0, i) for i in range(8)] + [rd("v", 0, i) for i in range(8)] +
                    [rd("k", 1, i) for i in range(8)] + [rd("v", 1, i) for i in range(8)])
        def last_use(F):
            b = (0, 18, 34, 52)[F >> 3]; f = F & 7
            return b + (2*f + 1 if (F >> 3) & 1 else 8*(f >> 2) + 4 + (f & 3))
        def mid(R, dmas, kx, mb=None, trans=False, endops=(), early=(), g=0, hq=False, hp=False):
            rf = [(f, 4) for f, h in R]
            fa = {0: [rf[7]]}; fb = {}
            G_ = g
            for g, e in zip((1, 3, 9, 11), early): put(fa, g, [e])
            for F in range(8, 32):
                g = last_use(F - 8) + 1
                put(fa, g, [rf[F]]) if g < 34 else put(fb, g - 34, [rf[F]])
            D = sum((dma4(k) for k in dmas), [])
            st_ = self.o.get("gst", 4); of_ = self.o.get("gof", 2)
            gaps = [2 + of_*G_*2 + 2*st_*n for n in range(4)] if len(D) == 4 else [2 + of_*G_ + st_*n for n in range(8)]
            for g, d in zip(gaps, D): put(fa, g, [d]) if g < 33 else put(fb, g - 33, [d])
            PT = self.o.get("pt", 0)
            if PT and G_ == 0:
                pts = {1: [(0, 24, 2), (1, 21, 0)], 2: [(0, 8, 2), (0, 24, 0), (1, 7, 2), (1, 21, 0)], 3: [(0, 0, 2), (0, 8, 0), (0, 16, 2), (0, 24, 0), (0, 32, 2), (1, 7, 0), (1, 15, 2), (1, 21, 0)],
                       4: [(0, 16, 2), (1, 21, 0)], 5: [(0, 32, 2), (1, 21, 0)]}[PT]
                for part, g, p in pts: put(fb if part else fa, g, [op(f"s_setprio {p}")])
            put(fa, 33, [(nop, 16)])
            zp = [op(f"v_mov_b64 {v(PP[1]+2*r,2)}, 0") for r in range(2)]
            sched(qk(0, R, 0, trans, hq) + pv(0, R, 8, half=hp), fa, zp + sm_half(1) if hp else sm_ops(1))
            check(1, other=not trans)
            if mb: mb()
            pre = []
            if trans:
                I(f"s_mov_b32 s{SFIN}, 1")
                pre = init_max()
            put(fb, 18, [op(f"v_xor_b32 v{VV}, 0x10000, v{VK}")] + kx)
            for n, e in enumerate(endops): put(fb, 11 - n, [e])
            put(fb, 21, [(nop, 12)])
            sched(qk(1, R, 16, half=hq) + pv(1, R, 24, range(2), half=hp), fb, pre + (sm_half(0)[:SPH] if hq else sm_ops(0)[:SPL]))
            assert [R[26+i][1]["reg"] for i in range(6)] == TR
        vm4 = lambda: I("s_waitcnt vmcnt(4)")
        def vm08():
            lo = a.label("W8"); lb = a.label("W8R")
            I(f"s_cmp_eq_u32 s{SFIN}, 3"); I(f"s_cbranch_scc1 {lo}"); I("s_waitcnt vmcnt(0)"); a.L(lb)
            def b(): I("s_waitcnt vmcnt(8)"); I(f"s_mov_b32 s{SFIN}, 4")
            ool.append((lo, lb, b))
        m1 = lambda sb, ko: (lambda: rarely(f"s_cmp_eq_u32 s{SC1}, s{SM1}", lambda: mask_body(sb, ko)))
        fin = lambda: rarely(f"s_cmp_eq_u32 s{SFIN}, 1", fin_body)
        sta = (lambda: rarely(f"s_cmp_eq_u32 s{SFIN}, 2", st_body), 8)
        KR, VR, SH, WO, AD = 16, 23, 28, 32, 40
        def side_loads():
            L = []; E = lambda t: L.append(op(t)); V = lambda t: L.append(op(t, DC))
            E(f"v_lshrrev_b32 v{AD}, 5, v0"); E(f"v_and_b32 v{AD+1}, 31, v0"); E(f"v_lshlrev_b32 v{AD+2}, 12, v{AD}"); E(f"v_lshl_add_u32 v{AD+2}, v{AD+1}, 2, v{AD+2}")
            self.phys(60, SHEAD, 61, E); E("s_lshl_b32 s60, s60, 17"); E(f"s_lshr_b32 s61, s{SIDX}, 1"); E("s_lshl_b32 s61, s61, 15"); E("s_add_u32 s60, s60, s61")
            E(f"s_and_b32 s61, s{SF}, 1"); E("s_lshl_b32 s61, s61, 9"); E("s_add_u32 s60, s60, s61")
            E(f"s_lshl_b32 s61, s{SW}, 6"); E("s_add_u32 s60, s60, s61"); E("s_add_u32 s61, s60, 16384")
            E(f"v_lshrrev_b32 v{AD+3}, 4, v0"); E(f"v_lshlrev_b32 v{AD+3}, 12, v{AD+3}"); E(f"v_and_b32 v{AD+4}, 15, v0"); E(f"v_lshl_add_u32 v{AD+3}, v{AD+4}, 2, v{AD+3}")
            for j in range(8): V(f"buffer_load_dword v{WO+j}, v{AD+3}, s[{RE}:{RE+3}], s{60+(j>>2)} offen offset:{1024*(j&3)}")
            E("s_lshr_b32 s62, s2, 3"); E("s_lshl_b32 s62, s62, 16"); E(f"s_lshl_b32 s63, s{SW}, 13"); E("s_add_u32 s62, s62, s63")
            E("s_and_b32 s63, s2, 7"); E("s_lshl_b32 s63, s63, 7"); E("s_add_u32 s62, s62, s63"); E(f"v_add_u32 v{AD+3}, s62, v{AD+2}")
            for i in range(3): E(f"v_subrev_u32 v{AD+4+i}, {3072-1024*i}, v{AD+3}")
            E("s_lshl_b32 s63, s63, 2"); E(f"v_lshl_add_u32 v{AD+7}, v{AD+1}, 4, s63")
            for i in range(3): V(f"buffer_load_dword v{KR+i}, v{AD+4+i}, s[{RA}:{RA+3}], 0 offen")
            for i in range(4): V(f"buffer_load_dword v{KR+3+i}, v{AD+3}, s[{RA}:{RA+3}], 0 offen offset:{1024*i}")
            for i in range(4): V(f"buffer_load_dword v{VR+i}, v{AD+3}, s[{RC}:{RC+3}], 0 offen offset:{1024*i}")
            V(f"buffer_load_dwordx4 {v(SH,4)}, v{AD+7}, s[{RD}:{RD+3}], 0 offen")
            return L
        NSL = 21
        def side_math():
            L = []; E = lambda t: L.append(op(t)); V = lambda t: L.append(op(t, DC))
            W2 = 48
            E("s_mov_b32 s60, 0x05040100"); E("s_mov_b32 s61, 0x07060302")
            for j in range(4): E(f"v_perm_b32 v{W2+j}, v{WO+2*j+1}, v{WO+2*j}, s60")
            for j in range(4): E(f"v_perm_b32 v{W2+4+j}, v{WO+2*j+1}, v{WO+2*j}, s61")
            E(f"s_and_b32 s60, s{SF}, 1"); E("s_lshl_b32 s60, s60, 2"); E(f"s_lshr_b32 s61, s{SW}, 1"); E("s_add_u32 s60, s60, s61"); E("s_lshl_b32 s60, s60, 19")
            E(f"s_lshr_b32 s61, s{SF}, 1"); E("s_lshl_b32 s61, s61, 12"); E("s_add_u32 s60, s60, s61"); E(f"s_and_b32 s61, s{SW}, 1"); E("s_lshl_b32 s61, s61, 11")
            E("s_add_u32 s60, s60, s61"); E(f"s_add_u32 s60, s60, {WOT_OFF}")
            for mt in range(2): V(f"buffer_store_dwordx4 {v(W2+4*mt,4)}, v{VL16}, s[{RWS}:{RWS+3}], s60 offen offset:{1024*mt}{self.st}")
            KU, SU, OO, VU, PQ = 32, 42, 48, 39, 52
            for c in range(2):
                def unp(d, sreg, half): E(f"v_lshlrev_b32 v{d}, 16, v{sreg}" if half == 0 else f"v_and_b32 v{d}, 0xffff0000, v{sreg}")
                for i in range(7): unp(KU+i, KR+i, c)
                for j in range(4): unp(SU+j, SH + 2*c + (j >> 1), j & 1)
                for o in range(4):
                    E(f"v_mul_f32 v{OO+o}, v{KU+o}, v{SU+3}")
                    for j in (2, 1, 0): E(f"v_fmac_f32 v{OO+o}, v{KU+o+3-j}, v{SU+j}")
                    unp(VU, VR+o, c)
                    E(f"v_mul_f32 v{OO+o}, v{OO+o}, v{VU}")
                d = PQ + 2*(1-c)
                E(f"v_cvt_pk_bf16_f32 v{d}, v{OO+3}, v{OO+2}"); E(f"v_cvt_pk_bf16_f32 v{d+1}, v{OO+1}, v{OO}")
            E(f"v_lshlrev_b32 v{AD+1}, 5, v{AD+1}"); E(f"v_lshl_add_u32 v{AD+1}, v{AD}, 4, v{AD+1}")
            E(f"v_permlane32_swap_b32 v{PQ+2}, v{PQ}"); E(f"v_permlane32_swap_b32 v{PQ+3}, v{PQ+1}")
            E("s_lshr_b32 s60, s2, 3"); E("s_lshl_b32 s60, s60, 16"); E(f"s_lshl_b32 s61, s{SW}, 13"); E("s_add_u32 s60, s60, s61")
            E("s_and_b32 s61, s2, 7"); E("s_lshl_b32 s61, s61, 10"); E("s_add_u32 s60, s60, s61"); E(f"s_add_u32 s60, s60, {KVT_OFF}")
            V(f"buffer_store_dwordx4 {v(PQ,4)}, v{AD+1}, s[{RWS}:{RWS+3}], s60 offen{self.st}")
            return L
        CL = self.o.get("cl", 8)
        def touch(k):
            if k in (1, 2):
                self.phys(60, SHEAD, 61); I("s_lshl_b32 s60, s60, 17"); I(f"s_lshl_b32 s61, s{SIDX}, 14"); I("s_add_u32 s60, s60, s61")
                if k == 2: I("s_add_u32 s60, s60, 8192")
                I("v_lshlrev_b32 v16, 7, v0"); r = RE
            elif k in (3, 4):
                I("s_lshr_b32 s60, s2, 3"); I("s_lshl_b32 s60, s60, 16"); I("s_and_b32 s61, s2, 7"); I("s_lshl_b32 s61, s61, 7"); I("s_add_u32 s60, s60, s61")
                I("v_lshlrev_b32 v16, 10, v0"); r = RA if k == 3 else RC
            else:
                I(f"s_lshl_b32 s60, s{SF}, 13"); I("v_lshlrev_b32 v16, 7, v0"); r = RB
            I(f"buffer_load_dword v1, v16, s[{r}:{r+3}], s60 offen")
        LSITE = a.label("SITE")
        def site_code():
            a.L(LSITE)
            def ret(): I("s_nop 1"); I("s_setpc_b64 s[76:77]")
            l = a.label("SN"); I(f"s_cmp_lg_u32 s41, {CL}"); I(f"s_cbranch_scc1 {l}")
            for c, _ in side_loads(): c()
            ret(); a.L(l)
            l = a.label("SN"); I(f"s_add_u32 s44, s41, s{SG}"); I(f"s_cmp_lg_u32 s44, {CL+2}"); I(f"s_cbranch_scc1 {l}")
            for c, _ in side_math(): c()
            ret(); a.L(l)
            for k in range(1, 6):
                l = a.label("SN")
                I(f"s_cmp_lg_u32 s41, {k + self.o.get('to', 0)}"); I(f"s_cbranch_scc1 {l}")
                touch(k); ret(); a.L(l)
            I(f"s_lshl_b32 s44, s{SF}, 2"); I(f"s_add_u32 s44, s44, {FY_OFF}")
            sv = self.save(); self.publish(44, 2); self.restore(sv)
            ret()
        def spf():
            I("s_add_u32 s41, s41, 1"); rarely("s_bitcmp1_b32 s40, s41", lambda: I(f"s_call_b64 s[76:77], {LSITE}"))
        spub = (spf, 12)
        def snap():
            I(f"s_mov_b32 s61, {FY_OFF}"); I(f"buffer_load_dwordx4 v[52:55], v{VL16}, s[{RWS}:{RWS+3}], s61 offen sc1")
        def side_check():
            lo = a.label("SCK"); lb = a.label("SCR")
            def test():
                I("v_and_b32 v52, v52, v53"); I("v_and_b32 v54, v54, v55"); I("v_and_b32 v52, v52, v54"); I("v_and_b32 v52, 2, v52"); I("v_cmp_ne_u32 vcc, 2, v52")
            test(); I(f"s_cbranch_vccnz {lo}"); a.L(lb)
            def spin():
                lp = a.label("SPL")
                I("s_mov_b32 s99, 20000"); a.L(lp)
                I("s_sleep 2"); I(f"buffer_load_dwordx4 v[52:55], v{VL16}, s[{RWS}:{RWS+3}], s61 offen sc1"); I("s_waitcnt vmcnt(0)")
                test(); I(f"s_cbranch_vccz {lb}")
                I("s_sub_u32 s99, s99, 1"); I("s_cmp_lg_u32 s99, 0"); I(f"s_cbranch_scc1 {lp}")
            ool.append((lo, lb, spin))
        m2 = lambda sb, ko: (lambda: rarely(f"s_cmp_eq_u32 s{SC2}, 0", lambda: (snap(), mask_body(sb, ko))))
        LEV = a.label("EVEN"); LODM = a.label("ODDM"); LTRANS = a.label("TRANS"); LP2 = a.label("P2"); LP2B = a.label("P2B"); LDRAIN = a.label("DRAIN")
        self.stamp(8)
        self.ring_n = 0
        R = [rd("k", 0, i) for i in range(8)] + [rd("k", 1, i) for i in range(8)]
        def qrd(i):
            I(f"ds_read_b128 {v(QF+4*i,4)}, v{TMP+1 if i < 4 else LM} offset:{1024*(i&3)}"); return lg.issue()
        for i in range(4): qrd(i); R[i][0]()
        for i in range(4, 8): tq = qrd(i)
        D = dma4("v") + dma4("k")
        fx = {g: [(R[4+g][0], 4)] for g in range(4)}
        put(fx, 3, [(lambda: lg.wait(tq), 4)])
        for F in range(8, 15): put(fx, last_use(F - 8) + 1, [(R[F][0], 4)])
        for n, d in enumerate(D): put(fx, 2*n, [d])
        sched(qk(0, R, 0, True), fx, [])
        m1(0, 0)()
        pre = init_max()
        fx = {0: [(R[15][0], 4)], 8: [op(f"v_xor_b32 v{VV}, 0x10000, v{VK}"), op(f"v_xor_b32 v{VK}, 0x4000, v{VK}")]}
        sched(qk(1, R, 8), fx, pre + sm_ops(0)[:SPL])
        R = mk_reads()
        head(R, vm4, False, post=[m1(1, 32)])
        svm = self.save()
        self.stamp(9)
        LOD = [a.label("ODD0"), a.label("ODD1")]
        I(f"s_cmp_eq_u32 s{SG}, 1"); I(f"s_cbranch_scc1 {LOD[1]}"); I(f"s_branch {LOD[0]}")
        vm0 = lambda: I("s_waitcnt vmcnt(0)")
        LDR = [a.label("DR0"), a.label("DR1"), a.label("DR1F")]
        x8 = lambda: [op(f"v_xor_b32 v{VK}, 0x8000, v{VK}")]
        dec2 = lambda: op(f"s_sub_u32 s{SC2}, s{SC2}, 1")
        def loops(g):
            LEV = a.label("EVEN"); LP2 = a.label("P2"); LLAST = a.label("OLAST")
            a.L(LEV)
            R = mk_reads(); head(R, vm4)
            mid(R, "k", [op(f"v_xor_b32 v{VK}, 0x4000, v{VK}")], mb=m1(0, 0) if g else None, early=[spub], g=g)
            R = mk_reads(); head(R, vm4, post=[m1(1, 32)] if g else [])
            assert self.lg.issued - self.lg.done == svm[2] - svm[3]
            a.L(LOD[g])
            if g: I(f"s_cmp_eq_u32 s{SC1}, 0"); I(f"s_cbranch_scc1 {LLAST}")
            sv = self.save(); rn = self.ring_n
            mid(R, "v", [op(f"v_xor_b32 v{VK}, 0xc000, v{VK}")], endops=[op(f"s_sub_u32 s{SC1}, s{SC1}, 1")], early=[spub], g=g)
            if g:
                I(f"s_branch {LEV}")
                a.L(LLAST); self.restore(sv); self.ring_n = rn
                mid(R, "v", [op(f"v_xor_b32 v{VK}, 0x8000, v{VK}")], mb=lambda: mask_body(0, 64, True), early=[spub], g=g, hq=True)
            else:
                I(f"s_cmp_lg_u32 s{SC1}, -1"); I(f"s_cbranch_scc1 {LEV}")
            self.stamp(14)
            if g: loadq(VQ); I("s_waitcnt lgkmcnt(0)")
            R = mk_reads(); head(R, vm4, more=mask_ops(1, 96, True) if g else (), hs=bool(g))
            mid(R, "k", x8(), mb=m2(0, 64*g), trans=bool(g), early=[spub], g=g, hp=bool(g))
            self.stamp(15)
            I(f"s_cmp_eq_u32 s{SC2}, 0"); I(f"s_cbranch_scc1 {LDR[2*g]}")
            a.L(LP2)
            R = mk_reads(); head(R, vm08 if g else vm0)
            if g:
                mid(R, "kv", x8(), endops=[sta], early=[spub, (fin, 8), dec2()], g=g)
                I(f"s_cmp_lg_u32 s{SC2}, 1"); I(f"s_cbranch_scc1 {LP2}")
                R = mk_reads(); head(R, vm08)
                mid(R, "kv", x8(), mb=lambda: (snap(), mask_body(0, 64, True)), g=g, hq=True)
            else:
                mid(R, "kv", x8(), mb=m2(0, 0), early=[spub, dec2()], g=g)
                I(f"s_cmp_lg_u32 s{SC2}, 0"); I(f"s_cbranch_scc1 {LP2}")
        lj = a.label("MGJ"); LH1 = a.label("DH1"); PR = 64
        def drain(g):
            ts, ts2, ts3 = self.tail_setup()
            tsa = [x for x in ts if x[1] == 4]; tsl = [x for x in ts if x[1] != 4]
            def dhead(hs):
                R2 = [rd("v", 0, i) for i in range(8)] + [rd("v", 1, i) for i in range(8)]
                self.stamp(10)
                head(R2, lambda: (vm0(), side_check(), tsl[0][0](), tsl[1][0]()), post=[] if (hs or not g) else [fin_body, st_body], pre=tsa[:8],
                     more=tsa[8:16] + [tsl[2]] + mask_ops(1, 32 + 64*g, bool(g)), hs=hs)
                return R2
            a.L(LDR[g]); sv = self.save()
            R2 = dhead(bool(g))
            if g:
                a.L(LH1)
                def alt():
                    keep = self.save(); th = self.th
                    a.L(LDR[2]); self.restore(sv); dhead(False); I(f"s_branch {LH1}")
                    self.restore(keep); self.th = th
                self.alt = alt
            rf = [(f, 4) for f, h in R2]
            for c, _ in tsa[16:]: c()
            pre = []; E_ = lambda t: pre.append(op(t))
            E_(f"s_add_u32 s44, s{SWK}, {ML}"); E_(f"v_add_u32 v54, s44, v{VL16}")
            E_(f"s_lshl_b32 s46, s{SW}, 13"); E_(f"v_add_u32 v55, s46, v{VL16}")
            E_(f"s_sub_u32 s46, 15, s{SIDX}"); E_("s_lshl_b32 s46, s46, 20"); E_("s_add_u32 s46, s46, s43"); E_(f"s_add_u32 s46, s46, {4096*g}"); E_(f"s_xor_b32 s47, s46, {TX}")
            WA_ = self.o.get("wa", 6); tsA, tsB = ts2[:WA_], ts2[WA_:]
            setup_ = pre + ts3; n8 = (len(setup_) + 17) // 18
            fx = {n: setup_[n*n8:(n+1)*n8] for n in range(18)}
            for n, x in enumerate(tsA): put(fx, 1 + n * 17 // max(1, len(tsA)), [x])
            for F in range(7, 15): put(fx, 2*(F - 7) + (2 if F > 7 else 0), [rf[F]])
            sched(pv(0, R2, 0, half=bool(g)), fx, sm_half(1) if g else sm_ops(1))
            check(1)
            rf[15][0]()
            own = O + 32*g; snd = O + 32*(1-g)
            def osend(i):
                I(f"ds_write_b128 v55, {v(snd+4*i,4)} offset:{1024*i}"); lg.issue()
            def wml():
                I(f"ds_write_b128 v54, {v(150,4)}"); lg.issue()
            dts = list(range(4*(1-g), 4*(1-g)+4)) + list(range(4*g, 4*g+4))
            fx = {10 + i: [(lambda i=i: osend(i), 16)] for i in range(8)}
            put(fx, 8, [op(f"v_mov_b32 v150, v{NM}"), op(f"v_mov_b32 v{LS+1}, v{LS+4}"), (wml, 4)])
            for n, x in enumerate(tsB): put(fx, n * 10 // max(1, len(tsB)), [x])
            sched(pv(1, R2, 8, dts, True, half=bool(g)), fx, self.tail_valu())
            I(f"v_xor_b32 v54, 0x1000, v54"); I(f"v_xor_b32 v55, 0x8000, v55")
            I("s_waitcnt lgkmcnt(0)"); lg.mark_all_done(); self.barrier()
            I(f"ds_read_b128 {v(96,4)}, v54"); t0 = lg.issue()
            tk = []
            for i in range(8):
                I(f"ds_read_b128 {v(PR+4*i,4)}, v55 offset:{1024*i}"); tk.append(lg.issue())
            lg.wait(t0)
            for q in range(2):
                I(f"v_min_f32 v100, v{150+q}, v{96+q}"); I(f"v_sub_f32 v101, v100, v{150+q}"); I(f"v_sub_f32 v102, v100, v{96+q}")
                I("v_exp_f32 v101, v101"); I("v_exp_f32 v102, v102")
                I(f"v_mul_f32 v103, v101, v{LS+q}"); I(f"v_fmac_f32 v103, v102, v{98+q}"); I("v_rcp_f32 v103, v103")
                b = 104 + 4*q
                I(f"v_mul_f32 v{b}, v101, v103"); I(f"v_mul_f32 v{b+1}, v101, v103"); I(f"v_mul_f32 v{b+2}, v102, v103"); I(f"v_mul_f32 v{b+3}, v102, v103")
            tw = self.tail_writes()
            for q in range(4):
                b = 104 + 4*(q & 1)
                for i in range(8*q, 8*q+8, 2): I(f"v_pk_mul_f32 {v(own+i,2)}, {v(own+i,2)}, {v(b,2)}")
                lg.wait(tk[2*q+1])
                for c in tw[3*q:3*q+3]: c()
                for i in range(8*q, 8*q+8, 2): I(f"v_pk_fma_f32 {v(own+i,2)}, {v(PR+i,2)}, {v(b+2,2)}, {v(own+i,2)}")
                for i in range(4): I(f"v_cvt_pk_bf16_f32 v{snd+4*q+i}, v{own+8*q+2*i}, v{own+8*q+2*i+1}")
                I(f"buffer_store_dwordx4 {v(snd+4*q,4)}, v{VL16}, s[{RWS}:{RWS+3}], s{46+(q&1)} offen offset:{(q>>1)*2048}{self.st}"); self.tctx = vm.issue()
        loops(1); drain(1); I(f"s_branch {lj}")
        loops(0); drain(0)
        a.L(lj)
        I("s_setprio 0")
        self.stamp(4)
        def cold():
            self.alt()
            site_code()
            for (lo, lb, body) in ool:
                a.L(lo); body(); I(f"s_branch {lb}")
            a.L("HOT_END")
            for (lr, lb, sb, other) in rare:
                a.L(lr)
                I("s_nop 15")
                rowmax(sb)
                for q in range(2): I(f"v_add_f32 v{TMP+q}, {f2u(BIAS)}, v{TMP+q}"); I(f"v_max_f32 v{TMP+q}, 0, v{TMP+q}"); I(f"v_exp_f32 v{TMP+2+q}, -v{TMP+q}")
                for r in range(8): I(f"v_sub_f32 v{NM+r}, v{NM+r}, v{TMP+(r>>2)}")
                for r in range(16): I(f"v_sub_f32 v{S[sb]+r}, v{S[sb]+r}, v{TMP+(r>>3)}")
                if other:
                    for r in range(16): I(f"v_sub_f32 v{S[1-sb]+r}, v{S[1-sb]+r}, v{TMP+(r>>3)}")
                for r in range(64): I(f"v_mul_f32 v{O+r}, v{O+r}, v{TMP+2+((r>>3)&1)}")
                for r in range(8): I(f"v_mul_f32 v{LS+r}, v{LS+r}, v{TMP+2+(r>>2)}")
                for c, _ in sm_ops(sb): c()
                I("s_nop 1"); I(f"s_branch {lb}")
        self.attn_rare = cold

    HB = 65536; HC = 4416; XB = 136192; YB = 148480
    SC, SJ, SB, SCH, SHB_, SWO, SCX = 34, 35, 36, 37, 38, 39, 40
    WS_ = [16, 24, 32, 40, 176, 184, 48, 56] + list(range(80, 144, 8))
    def tail_setup(self):
        I = self.I; L = []; E = lambda t: L.append((lambda: I(t), 4))
        SC, SJ, SB, SCH, SHB_, SWO, SCX = self.SC, self.SJ, self.SB, self.SCH, self.SHB_, self.SWO, self.SCX
        self.wtok = {}; self.wslot = dict(enumerate(self.WS_))
        E(f"s_lshr_b32 s{SC}, s{SW}, 2"); E(f"s_and_b32 s{SJ}, s{SW}, 3")
        E(f"s_lshl_b32 s{SCH}, s{SF}, 1"); E(f"s_add_u32 s{SCH}, s{SCH}, s{SC}"); E(f"s_lshl_b32 s{SCH}, s{SCH}, 12")
        E(f"s_lshl_b32 s60, s{SJ}, 10"); E("v_add_u32 v50, s60, v6"); E("v_subrev_u32 v51, 16, v50")
        E(f"s_lshl_b32 s63, s{SW}, 18"); E(f"s_lshl_b32 s62, s{SF}, 5"); E("s_add_u32 s63, s63, s62"); E(f"s_add_u32 s63, s63, {KVT_OFF}")
        E("v_lshrrev_b32 v48, 1, v0"); E("v_and_b32 v158, 1, v0" if False else "v_and_b32 v3, 1, v0"); E("v_lshlrev_b32 v49, 13, v48"); E("v_lshl_add_u32 v49, v3, 4, v49")
        def ld(t):
            def f(): I(t); self.th = self.vm.issue()
            L.append((f, 16))
        ld(f"buffer_load_dwordx4 {v(160,4)}, v51, s[{RB}:{RB+3}], s{SCH} offen")
        ld(f"buffer_load_dwordx4 {v(164,4)}, v50, s[{RB}:{RB+3}], s{SCH} offen")
        ld(f"buffer_load_dwordx4 {v(168,4)}, v49, s[{RWS}:{RWS+3}], s63 offen{self.ld}")
        E(f"s_lshl_b32 s{SWO}, s57, 19"); E(f"s_lshl_b32 s60, s{SW}, 15"); E(f"s_add_u32 s{SWO}, s{SWO}, s60"); E(f"s_add_u32 s{SWO}, s{SWO}, {WOT_OFF}")
        E("s_and_b32 s60, s56, 1"); E("s_lshl_b32 s60, s60, 18"); E(f"s_add_u32 s{SWO}, s{SWO}, s60")
        TR_ = self.o.get("trot", 1)
        if TR_ == 0: E("s_mov_b32 s58, 0")
        elif TR_ == 1: E("s_mov_b32 s58, s57")
        else: E("s_and_b32 s58, s56, 6"); E("s_add_u32 s58, s58, s57")
        def w1(i, mt):
            if mt == 0 and i % 2 == 0: self.wadr(i)
            I(f"buffer_load_dwordx4 {v(self.WS_[i]+4*mt,4)}, v6, s[{RWS}:{RWS+3}], s59 offen offset:{(i&1)*2048+mt*1024}{self.ld}"); self.wtok[i] = self.vm.issue()
        L2 = [(lambda i=i, mt=mt: w1(i, mt), 16) for i in range(self.o.get("we", 6)) for mt in range(2)]
        L3 = []; L, Lx = L3, L
        E = lambda t: L3.append((lambda: I(t), 4))
        E(f"s_mul_i32 s{SB}, s{SC}, 6144"); E(f"s_add_u32 s{SB}, s{SB}, {self.XB}")
        E(f"s_mul_i32 s{SHB_}, s{SC}, {8*self.HC}"); E(f"s_add_u32 s{SHB_}, s{SHB_}, {self.HB}")
        E(f"s_xor_b32 s{SCX}, s56, 1"); E(f"s_lshl_b32 s{SCX}, s{SCX}, 19"); E(f"s_lshl_b32 s60, s{SW}, 14"); E(f"s_add_u32 s{SCX}, s{SCX}, s60"); E(f"s_add_u32 s{SCX}, s{SCX}, {CTX_OFF}")
        E("s_and_b32 s60, s56, 1"); E("s_lshl_b32 s60, s60, 17"); E(f"s_add_u32 s{SCX}, s{SCX}, s60")
        return Lx, L2, L3
    def wreg(self, i):
        return self.WS_[i % len(self.WS_)]
    def wload(self, i):
        I = self.I; r = self.wslot[i]
        I(f"s_add_u32 s61, s{self.SWO}, {i*2048}")
        for mt in range(2):
            I(f"buffer_load_dwordx4 {v(r+4*mt,4)}, v6, s[{RWS}:{RWS+3}], s61 offen offset:{mt*1024}{self.ld}"); self.wtok[i] = self.vm.issue()
    def wadr(self, i):
        I = self.I
        I(f"s_add_u32 s59, s58, {i >> 1}"); I("s_and_b32 s59, s59, 7"); I("s_lshl_b32 s59, s59, 12"); I(f"s_add_u32 s59, s59, s{self.SWO}")
    def tail_valu(self):
        I = self.I; HC = self.HC; L = []; E = lambda t: L.append((lambda: I(t), 4))
        SJ, SB, SHB_ = self.SJ, self.SB, self.SHB_
        Ee, Eo, Oe, Oo = 160, 113, 122, 131
        E(f"s_add_u32 s60, s{SHB_}, 64"); E("v_add_u32 v138, s60, v50")
        E("v_and_b32 v51, 3, v48"); E("v_mul_u32_u24 v139, 1536, v51"); E("v_lshrrev_b32 v53, 2, v48"); E("v_lshl_add_u32 v139, v53, 4, v139")
        E("v_and_b32 v53, 1, v0"); E("v_mul_u32_u24 v53, 6144, v53"); E(f"s_lshl_b32 s60, s{SW}, 7"); E(f"s_add_u32 s60, s60, {self.XB + 512}"); E("v_add3_u32 v139, v139, v53, s60")
        E("v_and_b32 v51, 3, v0")
        for r in range(2): E(f"v_mov_b64 {v(172+2*r,2)}, 0")
        E("v_bfe_u32 v140, v0, 2, 3"); E(f"v_mul_u32_u24 v140, {HC}, v140"); E("v_lshl_add_u32 v140, v51, 4, v140"); E(f"v_add_u32 v140, s{SHB_}, v140")
        E(f"s_mul_i32 s60, s{SJ}, 1536"); E(f"s_add_u32 s60, s60, s{SB}"); E("v_lshl_add_u32 v141, v0, 3, s60")
        L.append((lambda: self.vm.wait(self.th - 1), 4))
        for k in range(7): E(f"v_alignbit_b32 v{Oe+k}, v{Ee+k+1}, v{Ee+k}, 16")
        for k in range(1, 7): E(f"v_alignbit_b32 v{Oo+k}, v{Ee+k+1}, v{Ee+k}, 16")
        for k in range(1, 7): E(f"v_mov_b32 v{Eo+k}, v{Ee+k}")
        return L
    def tail_writes(self):
        I = self.I; lg = self.lg; HC = self.HC; L = []
        Ee, Eo, Oe, Oo = 160, 113, 122, 131
        def W(t, pre=None):
            def f():
                if pre: pre()
                I(t); lg.issue()
            L.append(f)
        for r in range(8):
            sft = 1 + r; k = sft >> 1
            base = ((Oe, Oo) if sft & 1 else (Ee, Eo))[k & 1]
            W(f"ds_write_b128 v138, {v(base+k,4)} offset:{r*HC}")
        W(f"ds_write_b128 v140, {v(172,4)}"); W(f"ds_write_b64 v141, {v(172,2)}")
        W(f"ds_write_b128 v139, {v(168,4)}", lambda: self.vm.wait(self.th))
        return L
    def tailp(self):
        a = self.a; I = self.I; vm = self.vm; lg = self.lg
        HB, HC, YB = self.HB, self.HC, self.YB
        SC, SJ, SB, SCH, SHB_, SWO, SCX = self.SC, self.SJ, self.SB, self.SCH, self.SHB_, self.SWO, self.SCX
        ACC = 192; FRS = [224, 240, 64]; RD_ = 224; OACC = 192; YT = self.XB
        VL16, VA, VB, T, VP, VPA, VO, GR, VW1 = 6, 4, 5, 12, 7, 8, 9, 10, 11
        WSL = self.WS_; CSL = [144, 152, 160, 168, 64, 72]
        assert len(WSL) == 16
        I(f"s_lshr_b32 s53, s56, 1"); I("s_lshl_b32 s53, s53, 10"); I("s_and_b32 s44, s56, 1"); I("s_lshl_b32 s44, s44, 9"); I("s_add_u32 s53, s53, s44")
        I(f"s_lshr_b32 s44, s{SW}, 1"); I("s_lshl_b32 s44, s44, 7"); I("s_add_u32 s53, s53, s44"); I(f"s_and_b32 s44, s{SW}, 1"); I("s_lshl_b32 s44, s44, 3")
        I("s_add_u32 s53, s53, s44"); I(f"s_add_u32 s53, s53, {FC_OFF}")
        I(f"v_and_b32 v{VPA}, 1, v0"); I(f"v_lshlrev_b32 v{VPA}, 2, v{VPA}")
        PUBN = self.o.get("pubn", 4)
        I(f"s_lshr_b32 s45, s{SHEAD}, 2"); I("s_lshl_b32 s45, s45, 7"); I(f"s_and_b32 s44, s{SHEAD}, 3"); I("s_lshl_b32 s44, s44, 2"); I("s_add_u32 s45, s45, s44")
        I(f"s_sub_u32 s44, 15, s{SIDX}"); I("s_lshl_b32 s44, s44, 10"); I("s_add_u32 s46, s44, s45"); I(f"s_add_u32 s46, s46, {FC_OFF}")
        I(f"s_lshl_b32 s44, s{SIDX}, 10"); I("s_add_u32 s47, s44, s45"); I(f"s_add_u32 s47, s47, {FC_OFF}")
        self.srd(RC, "out", 2*MB); self.srd(RD, "q", 2*MB)
        I(f"s_lshl_b32 s44, s{SF}, 2"); I(f"s_load_dword s55, s[{P['ssmD']}:{P['ssmD']+1}], s44")
        I(f"v_and_b32 v{T}, 15, v0"); I(f"v_lshrrev_b32 v{T+1}, 4, v0")
        I(f"v_and_b32 v{T+2}, 7, v0"); I(f"v_mul_u32_u24 v{VA}, {HC}, v{T+2}")
        I(f"v_bfe_u32 v{T+2}, v0, 3, 1"); I(f"v_sub_u32 v{T+2}, v{T+2}, v{T+1}"); I(f"v_lshl_add_u32 v{VA}, v{T+2}, 4, v{VA}")
        I(f"s_lshl_b32 s43, s{SJ}, 8"); I(f"s_add_u32 s43, s43, s{SHB_}"); I("s_add_u32 s43, s43, 64"); I(f"v_add_u32 v{VA}, s43, v{VA}")
        I(f"s_lshl_b32 s43, s{SJ}, 6"); I(f"s_sub_u32 s43, s{SB}, s43"); I(f"s_add_u32 s43, s43, {(32-3)*16}")
        I(f"v_lshl_add_u32 v{VB}, v{T}, 4, s43"); I(f"v_mul_u32_u24 v{T+2}, 1536, v{T+1}"); I(f"v_add_u32 v{VB}, v{VB}, v{T+2}")
        I(f"s_lshl_b32 s51, s{SW}, 13"); I(f"s_xor_b32 s52, s{SCX}, 0x80000")
        I("s_waitcnt lgkmcnt(0)"); lg.mark_all_done(); self.barrier()
        self.stamp(5)
        wtok = dict(self.wtok); ctok = {}; cslot = dict(enumerate(CSL))
        def wload(k):
            if k % 2 == 0: self.wadr(k)
            for mt in range(2):
                I(f"buffer_load_dwordx4 {v(WSL[k]+4*mt,4)}, v{VL16}, s[{RWS}:{RWS+3}], s59 offen offset:{(k&1)*2048+mt*1024}{self.ld}"); wtok[k] = vm.issue()
        def cload(i):
            I(f"s_add_u32 s62, s58, {i & 7}"); I("s_and_b32 s62, s62, 7"); I("s_lshl_b32 s62, s62, 11"); I(f"s_add_u32 s62, s62, s{52 if i >= 16 else SCX}")
            if i & 8: I("s_add_u32 s62, s62, 0x40000")
            for qt in range(2):
                I(f"buffer_load_dwordx4 {v(cslot[i]+4*qt,4)}, v{VL16}, s[{RWS}:{RWS+3}], s62 offen offset:{qt*1024}{self.ld}"); ctok[i] = vm.issue()
        wl = [k for k in range(16) if k not in wtok]
        BS = [224, 240]; AS = list(range(160, 176, 4)) + list(range(64, 80, 4)); NA = len(AS)
        seq = [(dd, m, bt) for dd in range(4) for (m, bt) in ((0, 0), (3, 0), (0, 1), (3, 1), (1, 0), (2, 0), (1, 1), (2, 1))]
        atok = {}; btok = {}
        def rda(n):
            if n >= len(seq): return
            dd, m, bt = seq[n]
            I(f"ds_read_b128 {v(AS[n % NA],4)}, v{VA} offset:{64*dd + 1024*m + 32*bt}"); atok[n] = lg.issue()
        def rdb(dd, n):
            if dd >= 4: return
            I(f"ds_read_b128 {v(BS[dd & 1]+4*n,4)}, v{VB} offset:{(3-dd)*16 + 256*n}"); btok[(dd, n)] = lg.issue()
        rda(0)
        for n in range(4): rdb(0, n)
        for n in range(1, NA - 1): rda(n)
        seen = set()
        for n, (dd, m, bt) in enumerate(seq):
            for nn in range(4 - m):
                lg.wait(max(atok[n], btok[(dd, nn)]))
                key = (m + nn, bt); d = v(ACC + 8*key[0] + 4*bt, 4)
                I(f"v_mfma_f32_16x16x32_bf16 {d}, {v(AS[n % NA],4)}, {v(BS[dd & 1]+4*nn,4)}, {d if key in seen else '0'}"); seen.add(key)
                if nn == 0:
                    rda(n + NA - 1)
                    if 1 <= (n & 7) <= 4: rdb(dd + 1, (n & 7) - 1)
            if n & 1:
                h_ = n >> 1
                if h_ == PUBN:
                    vm.wait(self.tctx); self.barrier(); self.publish(46); self.publish(47)
                if h_ >= self.o.get("wst", 2) and len(wl) > self.o.get("wkeep", 2): wload(wl.pop(0))
                if h_ == self.o.get("p1", 12): tc1 = self.poll_issue(VP, VPA, "s53")
        I(f"v_add_u32 v{T+2}, s51, v{VL16}")
        for i in range(8):
            I(f"ds_write_b128 v{T+2}, {v(ACC+4*i,4)} offset:{1024*i}"); lg.issue()
        while wl: wload(wl.pop(0))
        I(f"s_lshl_b32 s43, s{SC}, 15"); I(f"s_lshl_b32 s44, s{SJ}, 11"); I("s_add_u32 s43, s43, s44"); I(f"v_add_u32 v{T+2}, s43, v{VL16}")
        I(f"s_lshl_b32 s44, s{SJ}, 8"); I(f"s_add_u32 s44, s44, s{SB}"); I("s_add_u32 s44, s44, 520")
        I(f"v_lshl_add_u32 v{T+3}, v{T}, 4, s44"); I(f"v_and_b32 v{VA}, 1, v{T+1}"); I(f"v_lshlrev_b32 v{VA}, 3, v{VA}"); I(f"v_sub_u32 v{T+3}, v{T+3}, v{VA}")
        I(f"v_lshrrev_b32 v{VA}, 1, v{T+1}"); I(f"v_mul_u32_u24 v{VA}, 1536, v{VA}"); I(f"v_add_u32 v{T+3}, v{T+3}, v{VA}")
        I(f"v_lshlrev_b32 v{VB}, 6, v{T}"); I(f"v_lshl_add_u32 v{VB}, v{T+1}, 3, v{VB}")
        I(f"s_add_u32 s45, s{SWK}, {YB}"); I(f"v_add_u32 v{VB}, s45, v{VB}")
        I("s_lshl_b32 s43, s55, 16"); I("s_and_b32 s44, s55, 0xffff0000"); I(f"s_cmp_eq_u32 s{SC}, 0"); I("s_cselect_b32 s55, s43, s44")
        lg.wait(lg.issued); self.barrier()
        self.stamp(12)
        for p in range(4):
            for gq in range(2):
                I(f"ds_read_b128 {v(RD_+8*p+4*gq,4)}, v{T+2} offset:{8192*p+1024*gq}"); lg.issue()
        for gq in range(2):
            I(f"ds_read_b64 {v(ACC+2*gq,2)}, v{T+3} offset:{3072*gq}"); lg.issue()
        le = a.label("NE")
        vm.wait(tc1); I(f"v_and_b32 v{VP}, 1, v{VP}"); I(f"v_cmp_ne_u32 vcc, 1, v{VP}"); I("s_mov_b32 s50, 0"); I(f"s_cbranch_vccnz {le}")
        sv = self.save(); I("s_mov_b32 s50, 1")
        for i in range(len(CSL)): cload(i)
        self.restore(sv); a.L(le)
        lg.wait(lg.issued)
        for i in range(0, 8, 2):
            I(f"v_pk_add_f32 {v(RD_+i,2)}, {v(RD_+i,2)}, {v(RD_+8+i,2)}"); I(f"v_pk_add_f32 {v(RD_+16+i,2)}, {v(RD_+16+i,2)}, {v(RD_+24+i,2)}")
        for i in range(0, 8, 2): I(f"v_pk_add_f32 {v(RD_+i,2)}, {v(RD_+i,2)}, {v(RD_+16+i,2)}")
        for gq in range(2):
            for r in range(4):
                srcr = ACC + 2*gq + (1 - (r >> 1))
                I(f"v_lshlrev_b32 v{ACC+8}, 16, v{srcr}" if r & 1 else f"v_and_b32 v{ACC+8}, 0xffff0000, v{srcr}")
                I(f"v_fma_f32 v{RD_+4*gq+r}, v{ACC+8}, s55, v{RD_+4*gq+r}")
        for i in range(4): I(f"v_cvt_pk_bf16_f32 v{ACC+12+i}, v{RD_+2*i}, v{RD_+2*i+1}")
        for gq in range(2):
            I(f"ds_write_b64 v{VB}, {v(ACC+12+2*gq,2)} offset:{32*gq}"); lg.issue()
        I(f"v_and_b32 v{T+2}, 15, v0"); I(f"v_lshrrev_b32 v{T+1}, 4, v0"); I(f"v_lshlrev_b32 v{T+1}, 1, v{T+1}"); I(f"v_xor_b32 v{T+1}, v{T+1}, v{T+2}"); I(f"v_lshlrev_b32 v{T+1}, 4, v{T+1}")
        I(f"v_lshl_add_u32 v{VA}, v{T+2}, 8, v{T+1}"); I(f"v_add_u32 v{VA}, s51, v{VA}")
        I(f"s_lshr_b32 s48, s{SW}, 1"); I("s_lshl_b32 s48, s48, 4"); I(f"s_and_b32 s41, s{SW}, 1"); I("s_lshl_b32 s42, s41, 3")
        I(f"v_lshrrev_b32 v{T}, 4, v0"); I(f"v_lshl_add_u32 v{T+1}, v{T}, 1, s42"); I(f"v_xor_b32 v{T+1}, v{T+1}, v{T+2}"); I(f"v_lshlrev_b32 v{T+1}, 4, v{T+1}")
        I("s_and_b32 s43, s48, 16"); I(f"v_add_u32 v{T+3}, s43, v{T+2}"); I(f"v_lshl_add_u32 v{VW1}, v{T+3}, 8, v{T+1}")
        I("s_lshr_b32 s43, s48, 5"); I("s_lshl_b32 s43, s43, 16"); I(f"v_add_u32 v{VW1}, s43, v{VW1}")
        lg.wait(lg.issued); I(f"v_xor_b32 v{VB}, 16, v{VW1}"); self.barrier()
        ly = a.label("NY")
        I(f"s_cmp_lg_u32 s{SW}, 0"); I(f"s_cbranch_scc1 {ly}")
        I(f"v_add_u32 v{T}, {YB}, v{VL16}")
        for i in range(8): I(f"ds_read_b128 {v(RD_+4*i,4)}, v{T} offset:{1024*i}")
        I(f"s_lshl_b32 s44, s{SF}, 13"); I(f"s_add_u32 s44, s44, {YT_OFF}"); I("s_add_u32 s45, s44, 4096")
        I("s_waitcnt lgkmcnt(0)")
        for i in range(8): I(f"buffer_store_dwordx4 {v(RD_+4*i,4)}, v{VL16}, s[{RWS}:{RWS+3}], s{44+(i>>2)} offen offset:{1024*(i&3)}{self.st}")
        a.L(ly)
        ll = a.label("NL")
        I("s_cmp_eq_u32 s50, 1"); I(f"s_cbranch_scc1 {ll}")
        self.poll_check(VP, VPA, "s53", 1)
        for i in range(len(CSL)): cload(i)
        a.L(ll)
        self.stamp(6)
        def put_ops(st):
            L = []
            for mt in range(4):
                def f(mt=mt):
                    I(f"v_xor_b32 v{T+3}, {(8*(mt>>1)+(mt&1))*16 + 0x10000*st}, v{VA}")
                    for qt in range(2):
                        I(f"ds_write_b128 v{T+3}, {v(OACC+32*st+8*mt+4*qt,4)} offset:{4096*qt}"); lg.issue()
                L.append(f)
            return L
        def sum_partials(mid=None):
            tk = []
            for p in range(8):
                for hh in range(2):
                    I(f"ds_read_b128 {v(OACC+8*p+4*hh,4)}, v{(VW1, VB)[hh]} offset:{8192*p}"); lg.issue()
                tk.append(lg.issued)
                if p == 5 and mid: mid()
            for p in range(1, 8):
                lg.wait(tk[p])
                for e in range(0, 8, 2): I(f"v_pk_add_f32 {v(OACC+e,2)}, {v(OACC+e,2)}, {v(OACC+8*p+e,2)}")
        ymark = vm.issued; ypub = False; pm = {}; ppub = False; free = []; nc = len(CSL); XR = WSL[0]; PR_ = WSL[1]
        TS = [OACC + 32 + 8*n for n in range(4)]; ptk = {}
        def prd(p):
            r = TS[0] if p == 0 else TS[1 + (p - 1) % 3]
            for hh in range(2):
                I(f"ds_read_b128 {v(r+4*hh,4)}, v{(VW1, VB)[hh]} offset:{8192*p}"); ptk[p] = lg.issue()
        def padd(p):
            lg.wait(ptk[p]); r = TS[1 + (p - 1) % 3]
            for e in range(0, 8, 2): I(f"v_pk_add_f32 {v(TS[0]+e,2)}, {v(TS[0]+e,2)}, {v(r+e,2)}")
            if p + 3 < 8: prd(p + 3)
        def pst():
            I(f"s_lshl_b32 s44, s{SF}, 14"); I(f"s_lshl_b32 s45, s{SW}, 11"); I("s_add_u32 s54, s44, s45"); I(f"s_add_u32 s54, s54, {PP_OFF}")
            for hh in range(2):
                I(f"buffer_store_dwordx4 {v(TS[0]+4*hh,4)}, v{VL16}, s[{RWS}:{RWS+3}], s54 offen offset:{1024*hh}{self.st}"); pm["t"] = vm.issue()
        B1 = self.o.get("b1", 18); PS = self.o.get("ps", 21)
        for i2 in range(0, 32, 2):
            st = (i2 >> 3) & 1; J = i2 & 7; fill = []
            if i2 in (8, 24): fill = put_ops(0)
            if i2 == 16: fill = put_ops(1)
            if i2 == 24: self.barrier()
            if i2 == B1:
                lg.wait(lg.issued); self.barrier()
                for p in range(4): prd(p)
                fill = [lambda p=p: padd(p) for p in range(1, 8)]
                I(f"s_lshl_b32 s53, s57, 7"); I(f"s_lshl_b32 s42, s{SW}, 4"); I("s_add_u32 s53, s53, s42"); I(f"s_add_u32 s53, s53, {FY_OFF}")
                I(f"v_and_b32 v{VPA}, 3, v0"); I(f"v_lshlrev_b32 v{VPA}, 2, v{VPA}")
                tf = self.poll_issue(VP, VPA, "s53")
            if i2 == 26:
                I(f"v_and_b32 v{T+1}, 15, v0"); I(f"s_lshl_b32 s45, s56, 6"); I("s_add_u32 s45, s45, s48"); I(f"v_add_u32 v{T+1}, s45, v{T+1}")
                I(f"v_lshlrev_b32 v{T+2}, 2, v{T+1}"); I(f"s_mov_b32 s45, {G_OFF}")
                I(f"buffer_load_dword v{GR}, v{T+2}, s[{RWS}:{RWS+3}], s45 offen{self.ld}"); vm.issue()
                I(f"v_lshrrev_b32 v{T+2}, 4, v0"); I(f"v_lshlrev_b32 v{T+2}, 4, v{T+2}"); I(f"v_lshl_add_u32 v{VO}, v{T+1}, 10, v{T+2}")
                I("s_lshl_b32 s49, s41, 6"); I(f"s_lshl_b32 s45, s57, 7"); I("s_add_u32 s49, s49, s45")
                I(f"buffer_load_dwordx4 {v(XR,4)}, v{VO}, s[{RD}:{RD+3}], s49 offen"); vm.issue()
                vm.wait(tf); self.poll_check(VP, VPA, "s53", 1)
                I(f"v_lshrrev_b32 v{T}, 3, v0"); I(f"v_and_b32 v{T+1}, 7, v0"); I(f"v_lshlrev_b32 v{T+1}, 4, v{T+1}")
                I(f"v_lshl_add_u32 v{T}, v{T}, 12, v{T+1}")
                I(f"s_add_u32 m0, s{SWK}, {YT}")
                I(f"s_lshl_b32 s44, s57, 18"); I(f"s_lshl_b32 s45, s{SW}, 15"); I("s_add_u32 s44, s44, s45")
                I(f"s_lshl_b32 s45, s56, 7"); I("s_add_u32 s44, s44, s45"); I(f"s_add_u32 s44, s44, {YT_OFF}")
                I(f"buffer_load_dwordx4 v{T}, s[{RWS}:{RWS+3}], s44 offen{self.ld} lds"); vm.issue()
            vm.wait(max(ctok[i2+1], wtok[2*J+3]))
            if not ypub and vm.done > ymark:
                ypub = True; I(f"s_lshl_b32 s44, s{SF}, 2"); I(f"s_add_u32 s44, s44, {FY_OFF}"); self.publish(44, 3)
            if pm and not ppub and vm.done >= pm["t"]:
                ppub = True
                I(f"s_lshl_b32 s44, s{SF}, 7"); I(f"s_lshl_b32 s45, s{SW}, 2"); I("s_add_u32 s44, s44, s45"); I(f"s_add_u32 s44, s44, {FP_OFF}")
                I("v_mov_b32 v2, 1"); I("v_mov_b32 v3, 0"); I(f"buffer_store_dword v2, v3, s[{RWS}:{RWS+3}], s44 offen sc1"); vm.issue()
            if i2 == 30:
                I(f"s_xor_b32 s53, s{SF}, 32"); I("s_lshl_b32 s53, s53, 7"); I(f"s_lshl_b32 s42, s{SW}, 2"); I("s_add_u32 s53, s53, s42"); I(f"s_add_u32 s53, s53, {FP_OFF}")
                I(f"v_mov_b32 v{VPA}, 0")
                if self.o.get("pe"): tp = self.poll_issue(VP, VPA, "s53")
            M = []
            for mt in range(4):
                for qt in range(2):
                    for u in range(2):
                        d = v(OACC + 32*st + 8*mt + 4*qt, 4)
                        M.append(lambda d=d, mt=mt, qt=qt, u=u: I(f"v_mfma_f32_16x16x32_bf16 {d}, {v(WSL[2*(J+u) + (mt >> 1)]+4*(mt & 1),4)}, {v(cslot[i2+u]+4*qt,4)}, {'0' if J + u == 0 else d}"))
            self.stream(M, [(1, 16, fill)] if fill else [])
            free += [cslot[i2], cslot[i2+1]]
            while free and nc < 32:
                cslot[nc] = free.pop(0); cload(nc); nc += 1
            if i2 + 1 == PS or i2 == PS: pst()
        assert ypub and ppub
        self.stamp(7)
        if not self.o.get("pe"):
            tp = self.poll_issue(VP, VPA, "s53")
            for f in put_ops(1): f()
        vm.wait(tp); self.poll_check(VP, VPA, "s53", 1)
        if self.o.get("ostamp"): self.stamp(20)
        I("s_xor_b32 s54, s54, 0x80000")
        for hh in range(2):
            I(f"buffer_load_dwordx4 {v(PR_+4*hh,4)}, v{VL16}, s[{RWS}:{RWS+3}], s54 offen offset:{1024*hh}{self.ld}"); tpp = vm.issue()
        if self.o.get("pe"):
            for f in put_ops(1): f()
        I(f"v_lshrrev_b32 v{T}, 4, v0"); I("s_lshl_b32 s42, s41, 5"); I(f"v_lshl_add_u32 v{T}, v{T}, 3, s42"); I(f"v_bfe_u32 v{T+1}, v0, 2, 2")
        I(f"v_add_u32 v{T}, v{T}, v{T+1}"); I(f"v_lshlrev_b32 v{T}, 7, v{T}"); I(f"v_and_b32 v{T+1}, 3, v0")
        I(f"v_lshl_add_u32 v{T}, v{T+1}, 3, v{T}"); I("s_lshl_b32 s42, s48, 1"); I(f"s_add_u32 s42, s42, {YT}"); I(f"v_add_u32 v{T}, s42, v{T}")
        lg.wait(lg.issued); self.barrier()
        I(f"ds_read_b64_tr_b16 {v(100,2)}, v{T}"); lg.issue()
        I(f"ds_read_b64_tr_b16 {v(102,2)}, v{T} offset:512"); ty2 = lg.issue()
        def mix():
            lg.wait(ty2)
            for e in range(8):
                if e & 1: I(f"v_and_b32 v104, 0xffff0000, v{XR+(e>>1)}"); I(f"v_and_b32 v105, 0xffff0000, v{100+(e>>1)}")
                else: I(f"v_lshlrev_b32 v104, 16, v{XR+(e>>1)}"); I(f"v_lshlrev_b32 v105, 16, v{100+(e>>1)}")
                I(f"v_mul_f32 v{112+e}, v104, v105"); I(f"v_mul_f32 v{112+e}, v{112+e}, v{GR}")
            I(f"v_sub_f32 v{GR}, 1.0, v{GR}")
        sum_partials(mix)
        vm.wait(tpp)
        for e in range(0, 8, 2): I(f"v_pk_add_f32 {v(OACC+e,2)}, {v(OACC+e,2)}, {v(PR_+e,2)}")
        for e in range(8): I(f"v_fmac_f32 v{112+e}, v{OACC+4*(e&1)+(e>>1)}, v{GR}")
        for e in range(4): I(f"v_cvt_pk_bf16_f32 v{108+e}, v{112+2*e}, v{112+2*e+1}")
        I(f"buffer_store_dwordx4 {v(108,4)}, v{VO}, s[{RC}:{RC+3}], s49 offen sc1"); vm.issue()
        self.stamp(16)
        if self.o.get("echo"):
            lp = a.label("EC")
            I("s_sub_u32 s100, s100, s96")
            if self.o.get("cyc"): I("s_lshr_b32 s100, s100, 4")
            I("s_memrealtime s[96:97]"); I("s_waitcnt lgkmcnt(0)")
            a.L(lp)
            I("s_memrealtime s[98:99]"); I("s_waitcnt lgkmcnt(0)"); I("s_sub_u32 s98, s98, s96"); I("s_cmp_lt_u32 s98, s100"); I(f"s_cbranch_scc1 {lp}")
        if self.o.get("dbgout") is not None:
            l = a.label("DB")
            I(f"s_cmp_lg_u32 s2, {self.o['dbgout']}"); I(f"s_cbranch_scc1 {l}"); I(f"s_cmp_lg_u32 s{SW}, 0"); I(f"s_cbranch_scc1 {l}")
            I("s_waitcnt vmcnt(0)")
            order = [0, 1, 2, 3, 8, 10, 11, 4, 5, 12, 6, 7, 16]
            I("v_mov_b32 v20, 0")
            for j, i in enumerate(order):
                I(f"s_mov_b32 s44, {4*i}"); I(f"v_writelane_b32 v20, s44, {j}")
            I(f"s_lshl_b32 s44, s2, 11"); I(f"s_add_u32 s44, s44, {STAMP_OFF}")
            I(f"buffer_load_dword v21, v20, s[{RWS}:{RWS+3}], s44 offen sc1"); I("s_waitcnt vmcnt(0)")
            I("v_readfirstlane_b32 s45, v21"); I("v_subrev_u32 v21, s45, v21")
            self.srd(RDBG, "dbg", 64); I("v_lshlrev_b32 v22, 2, v0")
            I(f"buffer_store_dword v21, v22, s[{RDBG}:{RDBG+3}], 0 offen")
            a.L(l)

HEADER = """; One persistent launch, one 8-wave workgroup per CU (generated by gen/gen_final.py, hand-designed schedule).
"""
def build(opts):
    g = G(opts); k = NAME + "_kernel"
    g.begin(k); g.a.T("; MARK p"); g.proj(); g.a.T("; MARK a"); g.attn(); g.a.T("; MARK t"); g.tailp(); g.end(); g.a.T("; MARK a"); g.attn_rare(); g.a.T("; MARK t"); g.a.L("CODE_END"); g.a.I("s_endpgm")
    n = g.a.fix_hazards()
    txt = "; @launch grid=(256,1,1) block=(512,1,1) lds=163840\n" + HEADER
    txt += '.amdgcn_target "amdgcn-amd-amdhsa--gfx950"\n.text\n' + g.a.text()
    txt += f""".section .rodata,"a"
.p2align 6
.amdhsa_kernel {k}
  .amdhsa_next_free_vgpr 256
  .amdhsa_next_free_sgpr 102
  .amdhsa_accum_offset 256
  .amdhsa_group_segment_fixed_size 0
  .amdhsa_kernarg_size 128
  .amdhsa_user_sgpr_count 2
  .amdhsa_user_sgpr_kernarg_segment_ptr 1
  .amdhsa_system_sgpr_workgroup_id_x 1
.end_amdhsa_kernel
"""
    print(f"instructions {sum(1 for it in g.a.items if it[0] == 'i')}, nops inserted {n}", file=sys.stderr)
    return txt

if __name__ == "__main__":
    opts = {}
    for x in sys.argv[2:]:
        if "=" in x: k_, v_ = x.split("="); opts[k_] = int(v_)
        else: opts[x] = True
    open(sys.argv[1], "w").write(build(opts))
```

```python
import sys, math, struct
sys.path.insert(0, "gen")
from asmlib import *

NAME = "gated_mix__ssm_conv_h3__compressed_kv_cla__prompt"
MB = 1 << 20
KV_OFF, Q_OFF, CTX_OFF, KVT_OFF, YT_OFF, G_OFF = 0, 32*MB, 48*MB, 64*MB, 66*MB, 68*MB
XC_OFF = 40*MB
PP_OFF = 40*MB
WOT_OFF = 32*MB
FLG_OFF = 68*MB + 65536
FK_OFF, FY_OFF, FC_OFF, FP_OFF = FLG_OFF, FLG_OFF + 4096, FLG_OFF + 8192, FLG_OFF + 32768
STAMP_OFF = 69*MB
WS_SIZE = 70*MB
P = dict(q=64, k=66, v=68, shift=70, ssmk=72, ssmD=74, bx=76, ckv=78, wq=80, wuk=82, wuv=84, wo=86, gate=88, out=90, dbg=92, ws=94)
SW, SHEAD, SIDX, SWK, SF = 3, 4, 5, 6, 7
RA, RB, RC, RWS, RD, RE, RT, RDBG = 8, 12, 16, 20, 24, 28, 56, 60
MFMA = "v_mfma_f32_32x32x16_bf16"
LOG2E = 1.4426950408889634
F_KV, F_CA, F_CB, F_Y = 1, 2, 4, 8
def f2u(x): return "0x%08x" % struct.unpack("<I", struct.pack("<f", x))[0]
def rep4(b): return b * 0x01010101

class G:
    def __init__(self, opts):
        self.a = Asm(); self.o = opts
        self.GSH, self.FSH = (8, 10) if opts.get("lin") else (11, 8)
        self.vm = Cnt(self.a, "vmcnt", 63); self.lg = Cnt(self.a, "lgkmcnt", 15)
        self.st = "" if opts.get("plainst") else (" sc1 nt" if opts.get("ntst") else " sc1"); self.ld = "" if opts.get("plainld") else " sc1"
    def I(self, t): self.a.I(t)
    def srd(self, r, ptr, nbytes):
        I = self.I
        I(f"s_mov_b32 s{r}, s{P[ptr]}"); I(f"s_mov_b32 s{r+1}, s{P[ptr]+1}")
        I(f"s_mov_b32 s{r+2}, {nbytes}"); I(f"s_mov_b32 s{r+3}, 0x00020000")
    def save(self): return (self.vm.issued, self.vm.done, self.lg.issued, self.lg.done)
    def restore(self, s_): self.vm.issued, self.vm.done, self.lg.issued, self.lg.done = s_
    def stream(self, mf, fills):
        n = len(mf); slots = [[] for _ in range(n + 1)]
        for (s0, e0, cl) in fills:
            m = e0 - s0
            for j, c in enumerate(cl): slots[s0 + 1 + (j * m) // len(cl)].append(c)
        for c in slots[0]: c()
        for i in range(n):
            mf[i]()
            for c in slots[i+1]: c()
    def stamp(self, i, dyn=None):
        if self.o.get("echo") == i:
            self.I("s_memtime s[100:101]" if self.o.get("cyc") else "s_memrealtime s[100:101]"); self.I("s_waitcnt lgkmcnt(0)")
        if not self.o.get("stamp"): return
        I = self.I
        I("s_memrealtime s[96:97]"); I("s_memtime s[100:101]")
        I("s_lshl_b32 s98, s2, 3"); I(f"s_add_u32 s98, s98, s{SW}"); I("s_lshl_b32 s98, s98, 8")
        I(f"s_add_u32 s98, s98, {STAMP_OFF + 4*i}")
        if dyn is not None:
            I(f"s_lshl_b32 s99, s{dyn}, 4"); I("s_add_u32 s98, s98, s99")
        I("s_waitcnt lgkmcnt(0)")
        I("v_mov_b32 v2, s96"); I("v_mov_b32 v3, 0")
        I(f"buffer_store_dword v2, v3, s[{RWS}:{RWS+3}], s98 offen")
        I("v_mov_b32 v2, s100")
        I(f"buffer_store_dword v2, v3, s[{RWS}:{RWS+3}], s98 offen offset:128")
    OOB = 0x40000000
    def publish(self, soff, val=1, srd=RWS, byte=False, idx=None):
        I = self.I
        self.oob_sel()
        if idx is not None: I(f"s_and_b32 s98, s{SIDX}, 3"); I(f"s_cmp_eq_u32 s98, {idx}"); I(f"s_cselect_b32 s99, s99, {self.OOB}")
        I(f"v_mov_b32 v2, {val}"); I("v_mov_b32 v3, s99")
        I(f"buffer_store_{'byte' if byte else 'dword'} v2, v3, s[{srd}:{srd+3}], s{soff} offen sc1"); self.vm.issue()
    def oob_sel(self):
        self.I(f"s_cmp_eq_u32 s{SW}, 0"); self.I(f"s_cselect_b32 s99, 0, {self.OOB}")
    def poll_issue(self, vd, vaddr, soff, srd=RWS):
        self.I(f"buffer_load_dword v{vd}, v{vaddr}, s[{srd}:{srd+3}], {soff} offen sc1"); return self.vm.issue()
    def poll_check(self, vd, vaddr, soff, want, srd=RWS):
        a = self.a; I = self.I
        l = a.label("PCK"); lp = a.label("POLL")
        I(f"s_mov_b32 s98, {want}"); I("s_mov_b32 s99, 20000")
        a.L(lp)
        I(f"v_and_b32 v{vd}, s98, v{vd}"); I(f"v_cmp_ne_u32 vcc, s98, v{vd}"); I(f"s_cbranch_vccz {l}")
        I("s_sleep 2")
        I(f"buffer_load_dword v{vd}, v{vaddr}, s[{srd}:{srd+3}], {soff} offen sc1")
        I("s_sub_u32 s99, s99, 1"); I("s_cmp_lg_u32 s99, 0"); I("s_waitcnt vmcnt(0)"); I(f"s_cbranch_scc1 {lp}")
        a.L(l)
    def phys(self, d, s_, t, E=None):
        I = E or self.I; p = self.o.get("hperm", 0)
        if p == 0: I(f"s_mov_b32 s{d}, s{s_}")
        elif p == 1: I(f"s_and_b32 s{t}, s{s_}, 3"); I(f"s_lshl_b32 s{t}, s{t}, 3"); I(f"s_lshr_b32 s{d}, s{s_}, 2"); I(f"s_or_b32 s{d}, s{d}, s{t}")
        elif p >= 32:
            I(f"s_lshr_b32 s{t}, s{s_}, 3"); I(f"s_add_u32 s{t}, s{t}, {p - 32}"); I(f"s_and_b32 s{t}, s{t}, 3")
            I(f"s_and_b32 s{d}, s{s_}, 7"); I(f"s_lshl_b32 s{d}, s{d}, 2"); I(f"s_or_b32 s{d}, s{d}, s{t}")
        else: I(f"s_mul_i32 s{t}, s{s_}, {p}"); I(f"s_and_b32 s{d}, s{t}, 31")
    def code_prefetch(self, start, end, msk, sp, st):
        I = self.I; lp = self.a.label("PC")
        I(f"s_getpc_b64 s[{sp}:{sp+1}]"); self.a.L(lp)
        if start: I(f"s_sub_u32 s{sp}, s{sp}, {lp}-{start}"); I(f"s_subb_u32 s{sp+1}, s{sp+1}, 0")
        I(f"s_and_b32 s{st}, s{SIDX}, {msk}"); I(f"s_lshl_b32 s{st}, s{st}, 13"); I(f"s_add_u32 s{st}, s{st}, s{SWK}")
        I("v_and_b32 v2, 7, v0"); I(f"v_lshl_add_u32 v2, v2, 7, s{st}"); I(f"v_min_u32 v2, {end}-{start or lp}-4, v2")
        I(f"v_mov_b32 v3, s{sp+1}"); I(f"v_add_co_u32 v2, vcc, s{sp}, v2"); I("v_addc_co_u32 v3, vcc, 0, v3, vcc")
        I("global_load_dword v1, v[2:3], off")
    def barrier(self): self.I("s_barrier")
    def sync_all(self):
        self.I("s_waitcnt vmcnt(0) lgkmcnt(0)"); self.vm.mark_all_done(); self.lg.mark_all_done(); self.barrier()

    def begin(self, kname):
        a = self.a; I = self.I
        a.T(f".globl {kname}\n.p2align 8\n.type {kname},@function"); a.L(kname)
        self.endl = a.label("END")
        if self.o.get("stamp"): I("s_memrealtime s[30:31]")
        if self.o.get("echo"): I("s_memtime s[96:97]" if self.o.get("cyc") else "s_memrealtime s[96:97]")
        I("s_load_dwordx16 s[64:79], s[0:1], 0"); I("s_load_dwordx16 s[80:95], s[0:1], 64")
        I("s_cmp_ge_u32 s2, 256"); I(f"s_cbranch_scc1 {self.endl}")
        I("v_lshrrev_b32 v1, 6, v0"); I("v_and_b32 v0, 63, v0"); I(f"v_readfirstlane_b32 s{SW}, v1")
        I("s_and_b32 s7, s2, 7"); I("s_lshl_b32 s7, s7, 2")
        I(f"s_lshr_b32 s{SIDX}, s2, 3"); I(f"s_lshr_b32 s{SHEAD}, s{SIDX}, 3"); I(f"s_add_u32 s{SHEAD}, s{SHEAD}, s7")
        I(f"s_and_b32 s{SIDX}, s{SIDX}, 7"); I(f"s_lshl_b32 s{SWK}, s{SW}, 10")
        I(f"s_lshl_b32 s{SF}, s{SHEAD}, 3"); I(f"s_add_u32 s{SF}, s{SF}, s{SIDX}")
    def end(self):
        self.a.L(self.endl); self.I("s_endpgm")

    def proj(self):
        a = self.a; I = self.I; vm = self.vm; lg = self.lg
        QA_LDS = 65536
        ACC = {"K": 64, "V": 128, "Q": 64}
        FX = [16, 24]; FW = [192, 32]
        VWA = 4; VSK, VSV, VOX, VOW, VST = 8, 9, 10, 11, 12; VXA = 224; T = 232
        NB = 0; XC = self.o.get("xc", 0)
        ST = [("KV", c) for c in range(NB)] + [("K", c) for c in range(NB, 8)] + [("V", c) for c in range(7, NB - 1, -1)] + [("Q", c) for c in range(8)]
        NS = len(ST); TK = 7; TV = NS - 9; TQ = NS - 8
        I("v_lshrrev_b32 v13, 3, v0"); I(f"s_lshl_b32 s40, s{SW}, 3"); I("v_add_u32 v13, s40, v13"); I("v_lshlrev_b32 v13, 10, v13")
        I(f"s_lshr_b32 s41, s{SW}, 1"); I(f"s_xor_b32 s40, s41, s{SW}"); I("s_and_b32 s40, s40, 1"); I("s_lshl_b32 s40, s40, 2")
        I("v_lshrrev_b32 v14, 4, v0"); I("v_add_u32 v15, s40, v14")
        I("v_and_b32 v3, 7, v0"); I("v_xor_b32 v15, v15, v3"); I(f"v_lshl_add_u32 v{VOX}, v15, 4, v13")
        I(f"s_lshl_b32 s40, s{SW}, 2"); I("v_add_u32 v13, s40, v14"); I("v_lshlrev_b32 v13, 13, v13")
        I("s_and_b32 s41, s41, 1"); I("s_lshl_b32 s41, s41, 3"); I("v_lshl_add_u32 v15, v14, 1, s41"); I("v_and_b32 v3, 15, v0"); I("v_xor_b32 v15, v15, v3")
        I("v_lshl_add_u32 v13, v15, 4, v13"); self.phys(40, SHEAD, 41); I("s_lshl_b32 s40, s40, 8"); I(f"v_add_u32 v{VOW}, s40, v13")
        I(f"v_lshlrev_b32 v{VST}, 4, v0")
        I(f"s_lshl_b32 s44, s{SIDX}, 18")
        for i in range(1, 4): I(f"s_add_u32 s{44+i}, s44, {65536*i}")
        ROT = self.o.get("rot", 2)
        if ROT == 0: I("s_mov_b32 s33, 0")
        elif ROT == 1: I(f"s_mov_b32 s33, s{SIDX}")
        elif ROT == 2: I(f"s_lshr_b32 s33, s{SHEAD}, 2"); I(f"s_add_u32 s33, s33, s{SIDX}")
        elif ROT == 3: I(f"s_lshr_b32 s33, s{SHEAD}, 2"); I(f"s_add_u32 s33, s33, s{SIDX}"); I(f"s_lshl_b32 s34, s{SHEAD}, 1"); I("s_add_u32 s33, s33, s34")
        elif ROT == 4: I(f"s_lshr_b32 s33, s{SHEAD}, 2")
        if self.o.get("rotq"): I(f"s_lshl_b32 s32, s{SHEAD}, 1"); I("s_add_u32 s32, s32, s33")
        else: I("s_mov_b32 s32, s33")
        I("s_waitcnt lgkmcnt(0)")
        if self.o.get("stamp"): I("s_memrealtime s[28:29]")
        self.srd(RA, "ckv", 2*MB); self.srd(RB, "wuk", 4*MB); self.srd(RC, "wuv", 4*MB)
        def xbase(t):
            k, c = ST[t]
            return (32768, 131072, 0)[((16 + c) if k == "Q" else (15 - c + NB)) % 3]
        units = [(t, m) for t in range(NS) for m in ST[t][0]]
        uidx = {u: i for i, u in enumerate(units)}
        def wbase(t, m): return 65536 + (uidx[(t, m)] % 4)*16384
        WE = self.o.get("wearly", 2)
        def wn(t): return t - 1 if t >= WE else t
        items = []
        lastx = {}
        for t in range(NS):
            k, c = ST[t]
            for m in k:
                u = uidx[(t, m)]
                def w(i, t=t, m=m, c=c):
                    if i == 0: I(f"s_add_u32 s34, s{32 if m == 'Q' else 33}, {c}"); I("s_and_b32 s34, s34, 7"); I("s_lshl_b32 s34, s34, 19")
                    I(f"s_add_u32 m0, s{SWK}, {wbase(t, m) + i*8192}"); I(f"s_add_u32 s41, s34, {i*262144}")
                    r = {"K": RB, "V": RC, "Q": RE}[m]
                    if self.o.get("nodma") and t > 4: dtok[wn(t)] = vm.issued; return
                    I(f"buffer_load_dwordx4 v{VOW}, s[{r}:{r+3}], s41 offen lds"); dtok[wn(t)] = vm.issue()
                items.append((wn(t), wn(units[u-4][0]) if u >= 4 else -1, [lambda i=i, w=w: w(i) for i in range(2)]))
            key = ("Q" if k == "Q" else "C", c); prev = lastx.get(xbase(t))
            if prev is None or prev[1] != key:
                def x(i, t=t, k=k, c=c):
                    if i == 0: I(f"s_add_u32 s35, s{32 if k == 'Q' else 33}, {c}"); I("s_and_b32 s35, s35, 7"); I("s_lshl_b32 s35, s35, 7")
                    I(f"s_add_u32 m0, s{SWK}, {xbase(t) + i*8192}"); I(f"s_add_u32 s41, s{(48 if k == 'Q' else 44)+i}, s35")
                    r = (RWS if XC else RD) if k == "Q" else RA
                    if self.o.get("nodma") and t > 4: dtok[t] = vm.issued; return
                    I(f"buffer_load_dwordx4 v{VOX}, s[{r}:{r+3}], s41 offen{self.ld if (XC and k == 'Q') else ''} lds"); dtok[t] = vm.issue()
                items.append((t, prev[0] if prev else -1, [lambda i=i, x=x: x(i) for i in range(4)]))
            lastx[xbase(t)] = (t, key)
        items.sort(key=lambda it: it[0])
        dtok = {}
        def take(done, upto=99):
            out = []
            for it in list(items):
                if it[1] <= done and it[0] <= upto: out += it[2]; items.remove(it)
            return out
        for f in take(-1, 0): f()
        self.srd(RWS, "ws", WS_SIZE); self.srd(RDBG, "dbg", 256)
        if self.o.get("wsoff"): I(f"s_add_u32 s{RWS}, s{RWS}, {self.o['wsoff']*MB}"); I(f"s_addc_u32 s{RWS+1}, s{RWS+1}, 0")
        self.stamp(31)
        if self.o.get("stamp"):
            I("v_mov_b32 v2, s30"); I("s_sub_u32 s98, s98, 124"); I(f"buffer_store_dword v2, v3, s[{RWS}:{RWS+3}], s98 offen")
            I("v_mov_b32 v2, s28"); I(f"buffer_store_dword v2, v3, s[{RWS}:{RWS+3}], s98 offen offset:120")
        I(f"s_lshl_b32 s48, s{SIDX}, 17"); I("s_add_u32 s49, s48, 65536")
        I(f"s_sub_u32 s50, 15, s{SIDX}"); I("s_lshl_b32 s50, s50, 17"); I("s_add_u32 s51, s50, 65536")
        if XC:
            for i in range(4): I(f"s_add_u32 s{48+i}, s{48+i}, {XC_OFF}")
        I(f"s_and_b32 s42, s{SW}, 3"); I("s_lshl_b32 s42, s42, 6"); I(f"s_lshr_b32 s43, s{SW}, 2"); I("s_lshl_b32 s43, s43, 1")
        I("v_and_b32 v13, 15, v0"); I("v_lshrrev_b32 v15, 4, v0")
        I("v_lshrrev_b32 v14, 1, v13"); I("v_xor_b32 v14, v14, v15"); I("v_lshlrev_b32 v14, 4, v14")
        I("v_add_u32 v3, s42, v13"); I(f"v_lshl_add_u32 v{VXA}, v3, 7, v14")
        I("v_and_b32 v2, 8, v13"); I("v_add_u32 v3, v3, v2"); I(f"v_lshl_add_u32 v{VXA+4}, v3, 7, v14")
        for pt in range(2):
            b = VXA + 4*pt
            I(f"v_xor_b32 v{b+1}, 64, v{b}"); I(f"v_add_u32 v{b+2}, 0x20000, v{b}"); I(f"v_add_u32 v{b+3}, 0x20000, v{b+1}")
        I("v_lshlrev_b32 v3, 4, v13"); I("v_and_b32 v2, 1, v15"); I("v_lshl_add_u32 v3, v2, 9, v3"); I("v_lshrrev_b32 v14, 1, v15")
        I("v_lshlrev_b32 v3, 4, v13"); I(f"v_lshl_add_u32 v{VSK}, v15, {self.GSH}, v3")
        I("v_bfe_u32 v13, v0, 2, 2"); I("v_lshl_add_u32 v14, v15, 3, v13"); I("v_lshlrev_b32 v14, 8, v14")
        I("v_and_b32 v3, 3, v0"); I("v_lshl_add_u32 v14, v3, 3, v14"); I("v_add_u32 v14, 0x10000, v14")
        I("v_lshl_add_u32 v13, v2, 2, v13"); I("s_lshl_b32 s40, s43, 1"); I("v_xor_b32 v13, s40, v13"); I(f"v_lshl_add_u32 v{VWA}, v13, 5, v14")
        for dt in range(1, 4): I(f"v_xor_b32 v{VWA+dt}, {dt << 5}, v{VWA}")
        I(f"s_lshl_b32 s54, s{SHEAD}, 4"); I(f"s_lshl_b32 s55, s{SIDX}, 1"); I("s_add_u32 s54, s54, s55")
        I(f"s_bfe_u32 s55, s{SW}, 0x10001"); I("s_add_u32 s54, s54, s55"); I("s_lshl_b32 s54, s54, 16")
        I(f"s_and_b32 s55, s{SW}, 1"); I("s_lshl_b32 s55, s55, 14"); I("s_add_u32 s54, s54, s55")
        I(f"s_lshl_b32 s55, s43, {self.FSH+1}"); I("s_add_u32 s52, s54, s55"); I("s_add_u32 s52, s52, 0x8000")
        I(f"s_lshl_b32 s55, s43, {self.FSH}"); I("s_add_u32 s54, s54, s55")
        XG = T; GW = T + 4; hl = {}
        def gate_loads():
            L = []
            def E(t): L.append(lambda: I(t))
            def V(t):
                def f(): I(t); hl["t"] = vm.issue()
                L.append(f)
            E(f"s_lshl_b32 s40, s{SHEAD}, 7"); E(f"s_lshl_b32 s39, s{SIDX}, 2"); E("s_add_u32 s40, s40, s39"); E(f"s_add_u32 s40, s40, {FK_OFF}")
            E(f"s_lshl_b32 s39, s{SF}, 7"); E(f"s_add_u32 s39, s39, {FP_OFF}"); E("v_and_b32 v13, 7, v0"); E("v_lshl_add_u32 v13, v13, 2, s39")
            E("v_writelane_b32 v13, s40, 0")
            E(f"s_lshr_b32 s39, s{SHEAD}, 2"); E("s_lshl_b32 s39, s39, 7"); E(f"s_and_b32 s40, s{SHEAD}, 3"); E("s_lshl_b32 s40, s40, 2"); E("s_add_u32 s39, s39, s40")
            E(f"s_lshl_b32 s40, s{SIDX}, 10"); E("s_add_u32 s40, s40, s39"); E(f"s_add_u32 s40, s40, {FC_OFF}")
            E("v_writelane_b32 v13, s40, 1")
            E(f"s_sub_u32 s40, 15, s{SIDX}"); E("s_lshl_b32 s40, s40, 10"); E("s_add_u32 s40, s40, s39"); E(f"s_add_u32 s40, s40, {FC_OFF}")
            E("v_writelane_b32 v13, s40, 2")
            E(f"s_lshl_b32 s40, s{SF}, 2"); E(f"s_add_u32 s40, s40, {FY_OFF}"); E("v_writelane_b32 v13, s40, 3"); E("v_mov_b32 v14, 0")
            def oo(): self.oob_sel(); I("v_add_u32 v13, s99, v13")
            L.append(oo)
            V(f"buffer_store_dword v14, v13, s[{RWS}:{RWS+3}], 0 offen sc1")
            E("s_lshl_b32 s37, s2, 3"); E(f"s_add_u32 s37, s37, s{SW}"); E("s_lshl_b32 s38, s37, 10")
            L.append(lambda: self.srd(RD, "q", 2*MB)); L.append(lambda: self.srd(RE, "wq", 4*MB)); L.append(lambda: self.srd(RT, "gate", 1024))
            V(f"buffer_load_dwordx4 {v(XG,4)}, v{VST}, s[{RD}:{RD+3}], s38 offen")
            V(f"buffer_load_dwordx4 {v(GW,4)}, v{VST}, s[{RT}:{RT+3}], 0 offen")
            return L
        def gate_ops():
            L = []; E = lambda t: L.append(lambda: I(t)); Z = T + 8
            L.append(lambda: vm.wait(hl["t"]))
            def xs():
                I(f"s_add_u32 s38, s38, {XC_OFF}"); I(f"buffer_store_dwordx4 {v(XG,4)}, v{VST}, s[{RWS}:{RWS+3}], s38 offen{self.st}"); vm.issue()
            if XC: L.append(xs)
            E(f"v_dot2_f32_bf16 v{Z}, v{XG}, v{GW}, 0")
            for i in range(1, 4): E(f"v_dot2_f32_bf16 v{Z}, v{XG+i}, v{GW+i}, v{Z}")
            for m in ("quad_perm:[1,0,3,2] row_mask:0xf", "quad_perm:[2,3,0,1] row_mask:0xf", "row_half_mirror row_mask:0xf", "row_mirror row_mask:0xf",
                      "row_bcast:15 row_mask:0xa", "row_bcast:31 row_mask:0xc"):
                E(f"v_add_f32_dpp v{Z}, v{Z}, v{Z} {m} bank_mask:0xf")
            E(f"v_readlane_b32 s36, v{Z}, 63"); E(f"v_mov_b32 v{Z+1}, {f2u(-LOG2E)}"); E(f"v_mul_f32 v{Z}, s36, v{Z+1}")
            E(f"v_exp_f32 v{Z}, v{Z}"); E(f"v_add_f32 v{Z}, 1.0, v{Z}"); E(f"v_rcp_f32 v{Z}, v{Z}")
            E("s_lshl_b32 s38, s37, 2"); E(f"s_add_u32 s38, s38, {G_OFF}"); E(f"v_mov_b32 v{Z+1}, 0")
            def gs():
                I(f"buffer_store_dword v{Z}, v{Z+1}, s[{RWS}:{RWS+3}], s38 offen{self.st}"); vm.issue()
            L.append(gs)
            return L
        toks = {}
        def rdx(t, mt):
            m = ST[t][0]; xb = xbase(t); pt = 0
            off = (xb & 65535) + ((mt >> 1)*4096 + (mt & 1)*1024 if pt else mt*2048)
            def f(kk):
                va = VXA + 4*pt + 2*(xb >> 17) + (kk ^ (mt & 1))
                I(f"ds_read_b128 {v(FX[mt & 1]+4*kk,4)}, v{va} offset:{off}"); toks[("x", t, mt, kk)] = lg.issue()
            return [lambda: f(0), lambda: f(1)]
        def rdw(t, dt):
            m = ST[t][0]
            def f(kk, h):
                I(f"ds_read_b64_tr_b16 {v(FW[t & 1]+8*dt+4*kk+2*h,2)}, v{VWA+dt} offset:{wbase(t, m)-65536+kk*8192+h*1024}"); toks[("w", t, dt, kk)] = lg.issue()
            return [lambda kk=kk, h=h: f(kk, h) for kk in range(2) for h in range(2)]
        def atile(m, mt, dt): return ACC[m] + (4*(((mt >> 1)*4 + dt)*2 + (mt & 1)) if m == "V" else 4*(mt*4 + dt))
        def mfs(t, mt):
            m = ST[t][0]; first = t == 0 or ST[t-1][0] != m; L = []
            order = [(dt, kk) for dt in range(4) for kk in range(2)] if not self.o.get("nochain") else [(dt, kk) for kk in range(2) for dt in range(4)]
            for dt, kk in order:
                def f(dt=dt, kk=kk):
                    lg.wait(max(toks[("x", t, mt, kk)], toks[("w", t, dt, kk)]))
                    d = v(atile(m, mt, dt), 4); X = v(FX[mt & 1]+4*kk, 4); W = v(FW[t & 1]+8*dt+4*kk, 4)
                    c = "0" if (first and kk == 0) else d
                    I(f"v_mfma_f32_16x16x32_bf16 {d}, {X}, {W}, {c}" if m == "V" else f"v_mfma_f32_16x16x32_bf16 {d}, {W}, {X}, {c}")
                L.append(f)
            return L
        def pieces(m):
            fs = 1024 if m == "Q" else 1 << self.FSH
            if m == "V": return [(atile(m, 2*p, dt), p*8192 + dt*fs) for p in range(2) for dt in range(4)]
            return [(atile(m, mt, 2*j), (mt >> 1)*8192 + ((mt & 1)*4 + j)*fs) for mt in range(4) for j in range(2)]
        def kv_out(m):
            out = []
            for b, off in pieces(m):
                pk = [lambda i=i, b=b: I(f"v_cvt_pk_bf16_f32 v{b+i}, v{b+2*i}, v{b+2*i+1}") for i in range(4)]
                if m == "K": pk = [lambda i=i, b=b: I(f"v_mul_f32 v{b+i}, {f2u(LOG2E / math.sqrt(128.0))}, v{b+i}") for i in range(8)] + pk
                def st(b=b, off=off):
                    if self.o.get("nost"): return
                    I(f"s_add_u32 s41, s{54 if m == 'K' else 52}, {off}")
                    I(f"buffer_store_dwordx4 {v(b,4)}, v{VSK}, s[{RWS}:{RWS+3}], s41 offen{self.st}"); vm.issue()
                out.append((pk, st))
            return out
        side = {}; late = {}
        def spread(ops, t0, t1, dst=side, ks=(0, 1, 2)):
            sl = [(t, k) for t in range(t0, t1) for k in ks]; n = len(ops)
            for j, key in enumerate(sl): dst.setdefault(key, []).extend(ops[n*j//len(sl): n*(j+1)//len(sl)])
        PG = self.o.get("pg", 0)
        spread(gate_loads(), PG, PG + 1); spread(gate_ops(), PG + 2, PG + 3)
        def wtouch(r, half, wv):
            def f():
                I(f"s_cmp_eq_u32 s{SW}, {wv}"); I(f"s_cselect_b32 s99, 0, {self.OOB}")
                self.phys(39, SHEAD, 40); I("s_lshl_b32 s39, s39, 8"); I(f"s_lshl_b32 s40, s{SIDX}, 19"); I("s_add_u32 s40, s40, s39"); I(f"s_add_u32 s40, s40, {half*32*8192}")
                I("v_lshrrev_b32 v3, 1, v0"); I("v_lshlrev_b32 v3, 13, v3"); I("v_and_b32 v2, 1, v0"); I("v_lshl_add_u32 v3, v2, 7, v3"); I("v_add_u32 v3, s99, v3")
                I(f"buffer_load_dword v1, v3, s[{r}:{r+3}], s40 offen"); vm.issue()
            return f
        for nm, r, dflt in (("tk", RB, -1), ("tv", RC, 1), ("tq", RE, 3)):
            t0 = self.o.get(nm, dflt)
            if t0 >= 0:
                for half in range(2): side.setdefault((t0 + half, 2), []).append(wtouch(r, half, half))
        KN = self.o.get("kn", 8); VD = self.o.get("vd", 0); VN = self.o.get("vn", 5)
        KO = kv_out("K"); VO = kv_out("V"); SK = self.o.get("sk", 2); SG_ = self.o.get("sgp", 6)
        spread(sum((p for p, _ in KO), []), TK + 1, min(TK + 3, TQ), ks=(0, 1))
        npk = 2 * (min(TK + 3, TQ) - TK - 1)
        spread([s_ for _, s_ in KO], TK + 1, TK + 1 + KN, dst=late, ks=(SK,))
        spread(sum((p for p, _ in VO), []), TQ, TQ + 1, ks=(0, 1))
        spread([s_ for _, s_ in VO], TQ + VD, TQ + VD + VN, dst=late, ks=(SK,))
        PK_, PV_ = TK + KN + 2, TQ + VD + VN
        assert PK_ <= NS - 5 and PV_ <= NS - 2
        QE = []; EQ = lambda t: QE.append(lambda: I(t))
        EQ(f"s_and_b32 s55, s{SW}, 2"); EQ("s_lshl_b32 s55, s55, 15"); EQ(f"s_add_u32 s55, s55, {QA_LDS}")
        EQ(f"s_and_b32 s54, s{SW}, 1"); EQ("s_lshl_b32 s54, s54, 14"); EQ("s_add_u32 s55, s55, s54")
        EQ("s_lshl_b32 s54, s43, 10"); EQ("s_add_u32 s55, s55, s54"); EQ(f"v_add_u32 v14, s55, v{VST}")
        if self.o.get("ct2", 21) >= 0: side.setdefault((self.o.get("ct2", 21), 1), []).append(lambda: (self.code_prefetch(None, "HOT_END", 7, 36, 40), vm.issue()))
        spread(QE, NS - 1, NS)
        spread([lambda: self.srd(RB, "ssmk", 2*MB), lambda: self.srd(RA, "k", 2*MB), lambda: self.srd(RC, "v", 2*MB), lambda: self.srd(RD, "shift", 4096), lambda: self.srd(RE, "wo", 4*MB)], NS - 2, NS - 1)
        spread([lambda r=r: I(f"v_mov_b64 {v(192+2*r,2)}, 0") for r in range(32) if not 16 <= r < 20], NS - 1, NS)
        side.setdefault((NS - 1, 3), []).extend([lambda r=r: I(f"v_mov_b64 {v(192+2*r,2)}, 0") for r in range(16, 20)])
        def fkoff():
            I(f"s_lshl_b32 s40, s{SHEAD}, 7"); I(f"s_lshl_b32 s41, s{SIDX}, 2"); I("s_add_u32 s40, s40, s41"); I(f"s_add_u32 s40, s40, {FK_OFF}")
        def w0only(fn):
            l = a.label("NP"); I(f"s_cmp_lg_u32 s{SW}, 0"); I(f"s_cbranch_scc1 {l}"); fn(); a.L(l)
        def k0(i):
            I(f"s_lshl_b32 s40, s{SW}, 12"); I("s_add_u32 m0, s40, 0x8000")
            I(f"s_lshl_b32 s41, s{SHEAD}, 20"); I("s_add_u32 s41, s41, s40")
            I(f"buffer_load_dwordx4 v{VST}, s[{RWS}:{RWS+3}], s41 offen offset:{1024*i}{self.ld} lds"); vm.issue()
        self.barrier()
        for f in take(-1, 1): f()
        vm.wait(dtok[0]); self.barrier()
        self.stamp(1)
        def first_reads(t):
            x = rdx(t, 0); w = [rdw(t, dt) for dt in range(4)]
            return [x[0]] + w[0][:2] + [x[1]] + w[0][2:] + w[1], w[2] + w[3]
        L, rest = first_reads(0)
        for f in L: f()
        VPK = self.o.get("vpk", 2); mark = {}; TZ = PG + 4; TS = 10; DS = self.o.get("dsteps", 3)
        pend = take(-1)
        for t in range(NS):
            for k in range(4):
                M = mfs(t, k); n = len(M); PB = []
                if k == 3 and t < NS - 1:
                    assert not pend
                    if t == TS + 2: vm.wait(td); w0only(lambda: self.poll_check(14, 13, "0", rep4(1), RDBG))
                    if t == NS - 3: vm.wait(tp); w0only(lambda: self.poll_check(15, 13, "s53", 1))
                    lg.wait(lg.issued)
                    if not (self.o.get("nowait") and t > 4): vm.wait(dtok.get(t+1, 0))
                    if t == TZ: vm.wait(mark[TZ-2])
                    if t == PK_: vm.wait(mark[TK + KN])
                    if t == PV_: vm.wait(mark[PV_ - 1])
                    self.barrier()
                    ps = self.o.get("pstamp")
                    if ps is not None and 0 <= t - int(ps) + 1 < 13: self.stamp(17 + t - int(ps) + 1); vm.issue(2)
                    if TZ <= t < TZ + 4: PB.append(lambda t=t: self.publish(SF, 1, RDBG, True, idx=t - TZ))
                    if t == PK_: PB.append(lambda: (fkoff(), self.publish(40, 1)))
                    if t == PV_: PB.append(lambda: (fkoff(), self.publish(40, 3)))
                    pend = take(t)
                    if t == NS - 3: pend += [lambda i=i: k0(i) for i in range(4)]
                    nd = len(pend) // (DS + 1)
                else:
                    nd = -(-len(pend) // max(1, (3 if t == 0 else DS) - k))
                D, pend = pend[:nd], pend[nd:]
                fl = []
                if not (t == NS - 1 and k == 3):
                    if k == 3:
                        if t + 1 >= WE: fl.append((0, 2, rdx(t+1, 0))); rest = []
                        else:
                            L, rest = first_reads(t+1); nr = self.o.get("nr", 4)
                            fl.append((0, 7, L + rest[:nr])); rest = rest[nr:]
                    else:
                        if k == 0 and rest: fl.append((-1, 2, rest))
                        fl.append((0, 2, rdx(t, k+1)) if not (k == 0 and rest) else (2, 4, rdx(t, k+1)))
                        if WE <= t + 1 < NS:
                            wr = sum((rdw(t+1, dt) for dt in range(4)), [])
                            fl.append((2, 8 if k < 2 else 6, wr[(0, 6, 12)[k]:(6, 12, 16)[k]]))
                if PB: fl.append((1, 2, PB))
                if D: fl.append((0, n, D))
                if side.get((t, k)): fl.append((0, n, side[(t, k)]))
                if late.get((t, k)): fl.append((SG_, min(n, SG_ + 4), late[(t, k)]))
                self.stream(M, fl)
                if k == 2: mark[t] = vm.issued
                if t == TS and k == 0:
                    self.oob_sel(); I("v_lshl_add_u32 v13, v0, 2, s99"); td = self.poll_issue(14, 13, "0", RDBG)
                if t == NS - 4 and k == 0:
                    self.oob_sel(); I("v_and_b32 v13, 7, v0"); I("v_lshl_add_u32 v13, v13, 2, s99")
                    I(f"s_lshl_b32 s53, s{SHEAD}, 7"); I(f"s_add_u32 s53, s53, {FK_OFF}")
                    tp = self.poll_issue(15, 13, "s53")
                if t == NS - 1 and k == VPK: self.poll_issue(15, 13, "s53")
            if t == TK: self.stamp(2)
            if t == TV: self.stamp(13)
        assert not items
        self.stamp(3)
        I("v_mov_b32 v16, v13")
        if VPK > 3: self.poll_issue(15, 13, "s53")
        for b, off in pieces("Q"):
            for i in range(4): I(f"v_cvt_pk_bf16_f32 v{b+i}, v{b+2*i}, v{b+2*i+1}")
            I(f"ds_write_b128 v14, {v(b,4)} offset:{off}"); lg.issue()
        self.attn_setup()
        vm.wait(vm.issued); w0only(lambda: self.poll_check(15, 16, "s53", 3))
        lg.wait(lg.issued); self.barrier()

    def attn_setup(self): self.attn(True)
    def attn(self, setup=False):
        a = self.a; I = self.I; vm = self.vm; lg = self.lg
        M16 = "v_mfma_f32_16x16x32_bf16"
        ML = 155648; QA_LDS = 65536; QB_LDS = 131072
        O = 192; QF = 160; NM = 144; S = [112, 128]; PP = [96, 104]; RING = 64; NR = 8; E = 56; PK = 16
        VK, VV, VL16, VSC, LM, THR, NINF, VQ, TMP = 4, 5, 6, 7, 8, 9, 10, 11, 12
        LS, ONES, BIAS = 152, 60, 11.0
        SR, SG, SC1, SC2, SKO, SVO, SKM, SVM, STH = 32, 33, 34, 35, 36, 37, 38, 39, 42
        SFIN, SCA, SM1 = 55, 59, 58
        DC = self.o.get("dmacost", 16); WEV = self.o.get("wev", 4)
        if setup:
            I(f"s_lshr_b32 s{SG}, s{SW}, 2"); I(f"s_and_b32 s{SR}, s{SW}, 3")
            I(f"v_lshlrev_b32 v{VL16}, 4, v0")
            I(f"s_lshl_b32 s44, s{SR}, 12"); I(f"s_add_u32 s44, s44, {QB_LDS}"); I(f"v_add_u32 v{VQ}, s44, v{VL16}")
            I(f"s_lshl_b32 s45, s{SG}, 16"); I(f"v_subrev_u32 v{TMP+1}, s45, v{VQ}"); I(f"v_xor_b32 v{LM}, 0x7000, v{TMP+1}")
            I(f"s_mov_b32 s{SC1}, s{SIDX}")
            I(f"s_lshl_b32 s{SC2}, s{SIDX}, 1"); I(f"s_sub_u32 s{SC2}, 14, s{SC2}")
            I(f"s_cmp_eq_u32 s{SG}, 1"); I(f"s_cselect_b32 s{SM1}, 0, -1")
            I(f"s_lshl_b32 s43, s{SW}, 12"); I(f"s_lshl_b32 s{SVO}, s{SHEAD}, 20"); I(f"s_add_u32 s{SVO}, s{SVO}, s43")
            I(f"s_add_u32 s{SKO}, s{SVO}, 0x10000"); I(f"s_add_u32 s{SVO}, s{SVO}, 0x8000")
            I(f"s_mov_b32 s{SKM}, s43"); I(f"s_add_u32 s{SVM}, s43, 0x18000")
            I(f"s_mov_b32 s{STH}, 0x40004000"); I(f"v_mov_b32 v{NINF}, 0xff800000")
            for r in range(4): I(f"v_mov_b32 v{ONES+r}, 0x3f803f80"); I(f"v_mov_b64 {v(LS+2*r,2)}, 0")
            I(f"v_and_b32 v{THR}, 15, v0"); I(f"v_lshrrev_b32 v{TMP}, 4, v0"); I(f"v_lshlrev_b32 v{TMP}, 2, v{TMP}"); I(f"v_sub_u32 v{THR}, v{THR}, v{TMP}")
            I(f"s_lshl_b32 s44, s{SR}, 4"); I("s_sub_u32 s45, 112, s44"); I(f"v_add_u32 v{VSC}, s45, v{THR}"); I(f"v_add_u32 v{THR}, s44, v{THR}")
            I(f"v_and_b32 v{VK}, 15, v0"); I(f"v_lshlrev_b32 v{VK}, 4, v{VK}"); I(f"v_lshrrev_b32 v{TMP}, 4, v0"); I(f"v_lshl_add_u32 v{VK}, v{TMP}, {self.GSH}, v{VK}"); I(f"v_add_u32 v{VK}, 0x8000, v{VK}")
            I(f"s_lshr_b32 s44, s{SR}, 1"); I("s_lshl_b32 s44, s44, 18"); I(f"s_and_b32 s45, s{SR}, 1"); I("s_lshl_b32 s45, s45, 10"); I("s_add_u32 s44, s44, s45")
            I(f"s_lshl_b32 s45, s{SHEAD}, 13"); I("s_add_u32 s43, s44, s45"); I(f"s_add_u32 s43, s43, {CTX_OFF}")
            I(f"s_lshl_b32 s{SCA}, s{SIDX}, 20"); I(f"s_add_u32 s{SCA}, s{SCA}, s43")
            I(f"s_mov_b32 s{SFIN}, 0")
            I(f"s_lshr_b32 s56, s{SF}, 6"); I("s_lshl_b32 s56, s56, 2"); I(f"s_bfe_u32 s44, s{SF}, 0x20003"); I("s_add_u32 s56, s56, s44"); I("s_lshl_b32 s56, s56, 1")
            I(f"s_bfe_u32 s44, s{SF}, 0x10005"); I("s_add_u32 s56, s56, s44"); I(f"s_and_b32 s57, s{SF}, 7")
            I("s_mov_b32 s41, 0")
            CL = self.o.get("cl", 8)
            I(f"s_lshr_b32 s40, {1 << (CL+2)}, s{SG}"); I(f"s_or_b32 s40, s40, {1 << CL}")
            TO = self.o.get("to", 0)
            I(f"s_lshl_b32 s44, {2 << TO}, s{SW}"); I(f"s_and_b32 s44, s44, {self.o.get('tm', 30) << TO}"); I("s_or_b32 s40, s40, s44")
            I(f"s_cmp_eq_u32 s{SW}, 0"); I(f"s_cselect_b32 s44, {(1 << (5 + TO)) | (1 << (CL+4))}, 0"); I("s_or_b32 s40, s40, s44")
            if not self.o.get("noprio"):
                l = a.label("PR"); I(f"s_cmp_eq_u32 s{SG}, 1"); I(f"s_cbranch_scc0 {l}"); I("s_setprio 1"); a.L(l)
            return
        op = lambda t, c=4: (lambda: I(t), c)
        nop = lambda: None
        def loadq(va):
            I(f"v_xor_b32 v{TMP}, 0x7000, v{va}")
            for ds in range(8):
                I(f"ds_read_b128 {v(QF+4*ds,4)}, v{va if ds < 4 else TMP} offset:{1024*(ds&3)}"); lg.issue()
        def dma4(kind):
            sm, so = (SKM, SKO) if kind == "k" else (SVM, SVO)
            def d(i):
                def f():
                    if i == 0: I(f"s_mov_b32 m0, s{sm}"); I(f"s_xor_b32 s{sm}, s{sm}, 0x8000")
                    I(f"buffer_load_dwordx4 v{VL16}, s[{RWS}:{RWS+3}], s{so} offen offset:{1024*i}{self.ld} lds")
                    if i == 3: I(f"s_add_u32 s{so}, s{so}, 0x10000")
                return (f, DC + (8 if i == 0 else 4 if i == 3 else 0))
            return [d(i) for i in range(4)]
        self.ring_n = 0
        def rd(kind, sl, idx):
            h = {}
            def f():
                slot = self.ring_n % NR; self.ring_n += 1
                h["reg"] = RING + 4*slot
                I(f"ds_read_b128 {v(h['reg'],4)}, v{VK if kind == 'k' else VV} offset:{sl*8192+(idx << self.FSH)}"); h["tok"] = lg.issue()
            return f, h
        def wait_for(R, i):
            if R[i][1]["tok"] <= lg.done: return
            j = i
            while j + 1 < len(R) and j + 1 < i + WEV and "tok" in R[j+1][1] and R[j+1][1]["tok"] > R[i][1]["tok"]: j += 1
            lg.wait(R[j][1]["tok"])
        def otile(dt, qt): return O + 16*(dt >> 1) + 8*qt + 4*(dt & 1)
        def qk(sb, R, base, czero=False, half=False):
            def f(m):
                kt, qt, dd = m >> 3, (m >> 2) & 1, m & 3; i = base + 4*kt + dd
                wait_for(R, i); d = v(S[sb] + 8*qt + 4*kt, 4)
                c = ("0" if czero else v(NM + 4*qt, 4)) if dd == 0 else d
                I(f"{M16} {d}, {v(R[i][1]['reg'],4)}, {v(QF + 16*qt + 4*dd, 4)}, {c}")
            return [(lambda m=m: f(m)) if not (half and not m & 4) else nop for m in range(16)]
        def pv1(pb, dt, qt, reg): I(f"{M16} {v(otile(dt, qt),4)}, {v(reg,4)}, {v(PP[pb]+4*qt,4)}, {v(otile(dt, qt),4)}")
        def pv(pb, R, base, dts=range(8), exact=False, half=False):
            def f(dt, qt):
                if exact: lg.wait(R[base+dt][1]["tok"])
                else: wait_for(R, base + dt)
                pv1(pb, dt, qt, R[base+dt][1]["reg"])
            ls = [lambda qt=qt: I(f"{M16} {v(LS+4*qt,4)}, {v(ONES,4)}, {v(PP[pb]+4*qt,4)}, {v(LS+4*qt,4)}") for qt in range(2)]
            L = ls + [lambda dt=dt, qt=qt: f(dt, qt) for dt in dts for qt in range(2)]
            return [nop if half and not n & 1 else x for n, x in enumerate(L)]
        def sm_ops(sb):
            ex = lambda i: op(f"v_exp_f32 v{E+(i&3)}, v{S[sb]+i}", 8)
            cv = lambda j: op(f"v_cvt_pk_bf16_f32 v{PP[sb]+j}, v{E+((2*j)&3)}, v{E+((2*j+1)&3)}")
            p = PP[sb]; L = [ex(0), ex(1)]
            ors = {2: f"v_or3_b32 v{LM}, v{p}, v{p+1}, v{p+2}", 4: f"v_or3_b32 v{LM}, v{LM}, v{p+3}, v{p+4}", 6: f"v_or3_b32 v{LM}, v{LM}, v{p+5}, v{p+6}"}
            for j in range(8):
                L += [ex(2*j+2), cv(j), ex(2*j+3)] if j < 7 else [op("s_nop 0"), cv(j)]
                if j in ors: L.append(op(ors[j]))
            L = [x for i, x in enumerate(L) if i != len(L) - 2]
            L += [op(f"v_or_b32 v{LM}, v{LM}, v{p+7}"), op(f"v_and_b32 v{LM}, s{STH}, v{LM}")]
            return L
        def sm_half(sb):
            ex = lambda i: op(f"v_exp_f32 v{E+(i&3)}, v{S[sb]+i}", 8)
            cv = lambda j: op(f"v_cvt_pk_bf16_f32 v{PP[sb]+j}, v{E+((2*j)&3)}, v{E+((2*j+1)&3)}")
            p = PP[sb]
            return [ex(8), ex(9), ex(10), cv(4), ex(11), ex(12), cv(5), ex(13), ex(14), cv(6), ex(15), op(f"v_or3_b32 v{LM}, v{p+4}, v{p+5}, v{p+6}"), cv(7),
                    op(f"v_or_b32 v{LM}, v{LM}, v{p+7}"), op(f"v_and_b32 v{LM}, s{STH}, v{LM}")]
        SPH = 9
        def sched(M, fixed, chain):
            n = len(M); fc = [sum(c for _, c in fixed.get(g, [])) for g in range(n)]
            tot = sum(c for _, c in chain); lo, hi = 0.0, 4000.0
            for _ in range(40):
                lev = (lo + hi) / 2
                if sum(max(0, lev - f) for f in fc) >= tot: hi = lev
                else: lo = lev
            k = 0; credit = 0.0
            for g in range(n):
                M[g]()
                for c, _ in fixed.get(g, []): c()
                credit += max(0, hi - fc[g])
                while k < len(chain) and (g == n - 1 or chain[k][1] <= credit + 2):
                    chain[k][0](); credit -= chain[k][1]; k += 1
        def put(fixed, g, items): fixed.setdefault(g, []).extend(items)
        SPL = self.o.get("spl", 18)
        ool = []
        def rarely(cmp_, body):
            lo = a.label("OOL"); lb = a.label("RET")
            I(cmp_); I(f"s_cbranch_scc1 {lo}"); a.L(lb)
            ool.append((lo, lb, body))
        def mask_ops(sb, koff, half=False):
            prs = [46, 48, 50, 52]; L = []
            for qt in range(2):
                if half and qt == 0:
                    L += [op(f"v_mov_b32 v{S[sb]+r}, v{NINF}") for r in range(8)]; continue
                tr = (THR, VSC)[qt]; ko = koff
                if ko >= 32: L.append(op(f"v_subrev_u32 v{TMP+3}, {ko}, v{tr}" if ko <= 64 else f"v_subrev_u32 v{TMP+3}, 0x{ko:x}, v{tr}")); tr = TMP + 3; ko = 0
                for kt in range(2):
                    r0 = 8*qt + 4*kt
                    for r in range(4): L.append(op(f"v_cmp_lt_i32 s[{prs[r]}:{prs[r]+1}], v{tr}, {16*kt + r + ko}"))
                    for r in range(4): L.append(op(f"v_cndmask_b32 v{S[sb]+r0+r}, v{S[sb]+r0+r}, v{NINF}, s[{prs[r]}:{prs[r]+1}]"))
            return L
        def mask_body(sb, koff, half=False):
            for c, _ in mask_ops(sb, koff, half): c()
        def xred(x, y, t0, t1, o):
            L = []
            for sw in ("v_permlane16_swap_b32", "v_permlane32_swap_b32"):
                L += [op(f"v_mov_b32 v{t0}, v{x}"), op(f"v_mov_b32 v{t1}, v{y}"), op("s_nop 0"), op(f"{sw} v{t0}, v{x}"), op(f"{sw} v{t1}, v{y}"),
                      op(f"{o} v{x}, v{x}, v{t0}"), op(f"{o} v{y}, v{y}, v{t1}")]
            return L
        def rowmax(sb):
            for qt in range(2):
                b = S[sb] + 8*qt; d = TMP + qt
                I(f"v_max3_f32 v{d}, v{b}, v{b+1}, v{b+2}"); I(f"v_max3_f32 v{d}, v{d}, v{b+3}, v{b+4}"); I(f"v_max3_f32 v{d}, v{d}, v{b+5}, v{b+6}"); I(f"v_max_f32 v{d}, v{d}, v{b+7}")
            for c, _ in xred(TMP, TMP+1, TMP+2, TMP+3, "v_max_f32"): c()
        def init_max():
            rowmax(0)
            for qt in range(2): I(f"v_max_f32 v{TMP+qt}, {f2u(-1e30)}, v{TMP+qt}"); I(f"v_add_f32 v{TMP+qt}, {f2u(BIAS)}, v{TMP+qt}")
            for r in range(8): I(f"v_sub_f32 v{NM+r}, 0, v{TMP+(r>>2)}")
            return [op(f"v_sub_f32 v{S[0]+r}, v{S[0]+r}, v{TMP+(r>>3)}") for r in range(16)]
        rare = []
        def check(sb, other=True):
            lr = a.label("RARE"); lb = a.label("BACK")
            I(f"v_cmp_ne_u32 vcc, 0, v{LM}")
            if self.o.get("a_nocheck"): I("s_mov_b64 vcc, 0")
            I(f"s_cbranch_vccnz {lr}"); a.L(lb)
            rare.append((lr, lb, sb, other))
        def fin_body():
            I(f"s_mov_b32 s{SFIN}, 2")
            I(f"v_rcp_f32 v{TMP}, v{LS}"); I(f"v_rcp_f32 v{TMP+2}, v{LS+4}"); I(f"v_mov_b32 v{TMP+1}, v{TMP}"); I(f"v_mov_b32 v{TMP+3}, v{TMP+2}")
            for r in range(4): I(f"v_mov_b64 {v(LS+2*r,2)}, 0")
            for q in range(8):
                for i in range(8*q, 8*q+8, 2): I(f"v_pk_mul_f32 {v(O+i,2)}, {v(O+i,2)}, {v(TMP+2*(q&1),2)}")
                for i in range(4): I(f"v_cvt_pk_bf16_f32 v{PK+4*q+i}, v{O+8*q+2*i}, v{O+8*q+2*i+1}")
                for i in range(8*q, 8*q+8, 2): I(f"v_mov_b64 {v(O+i,2)}, 0")
        TX = 0xc0400
        def st_body():
            I(f"s_xor_b32 s45, s{SCA}, {TX}"); I(f"s_mov_b32 s44, s{SCA}"); I(f"s_mov_b32 s{SFIN}, 3")
            for q in range(8):
                if q == 4: I("s_add_u32 s44, s44, 4096"); I("s_add_u32 s45, s45, 4096")
                I(f"buffer_store_dwordx4 {v(PK+4*q,4)}, v{VL16}, s[{RWS}:{RWS+3}], s{44+(q&1)} offen offset:{((q>>1)&1)*2048}{self.st}")
        TR = [RING + 4*(2+i) for i in range(6)]
        def head(R, vmw, with_mfma=True, post=(), more=(), pre=None, hs=False):
            rf = [(f, 4) for f, h in R]; sm2 = sm_half(0)[SPH:] if hs else sm_ops(0)[SPL:]
            M = [lambda dt=dt, qt=qt: pv1(1, dt, qt, TR[dt-2]) for dt in range(2, 8) for qt in range(2)] if with_mfma else [nop]*12
            if with_mfma: I("s_waitcnt lgkmcnt(4)")
            nb = self.o.get("nb", 4); more = list(more); m0 = len(more) // 3
            if pre is not None: more = list(pre) + more; m0 = len(pre)
            sched(M[:4], {}, sm2[:nb] + more[:m0])
            vmw(); I("s_waitcnt lgkmcnt(0)"); lg.mark_all_done(); self.barrier(); self.ring_n = 0
            fx = {0: rf[0:2], 1: rf[2:4], 2: rf[4:5], 4: rf[5:6], 6: rf[6:7], 7: [(nop, 8 + 8*len(post))]}
            sched(M[4:], fx, sm2[nb:] + more[m0:])
            check(0)
            for p in post: p()
        def mk_reads():
            return ([rd("k", 0, i) for i in range(8)] + [rd("v", 0, i) for i in range(8)] +
                    [rd("k", 1, i) for i in range(8)] + [rd("v", 1, i) for i in range(8)])
        def last_use(F):
            b = (0, 18, 34, 52)[F >> 3]; f = F & 7
            return b + (2*f + 1 if (F >> 3) & 1 else 8*(f >> 2) + 4 + (f & 3))
        def mid(R, dmas, kx, mb=None, trans=False, endops=(), early=(), g=0, hq=False, hp=False):
            rf = [(f, 4) for f, h in R]
            fa = {0: [rf[7]]}; fb = {}
            G_ = g
            for g, e in zip((1, 3, 9, 11), early): put(fa, g, [e])
            for F in range(8, 32):
                g = last_use(F - 8) + 1
                put(fa, g, [rf[F]]) if g < 34 else put(fb, g - 34, [rf[F]])
            D = sum((dma4(k) for k in dmas), [])
            st_ = self.o.get("gst", 4); of_ = self.o.get("gof", 2)
            gaps = [2 + of_*G_*2 + 2*st_*n for n in range(4)] if len(D) == 4 else [2 + of_*G_ + st_*n for n in range(8)]
            for g, d in zip(gaps, D): put(fa, g, [d]) if g < 33 else put(fb, g - 33, [d])
            PT = self.o.get("pt", 0)
            if PT and G_ == 0:
                pts = {1: [(0, 24, 2), (1, 21, 0)], 2: [(0, 8, 2), (0, 24, 0), (1, 7, 2), (1, 21, 0)], 3: [(0, 0, 2), (0, 8, 0), (0, 16, 2), (0, 24, 0), (0, 32, 2), (1, 7, 0), (1, 15, 2), (1, 21, 0)],
                       4: [(0, 16, 2), (1, 21, 0)], 5: [(0, 32, 2), (1, 21, 0)]}[PT]
                for part, g, p in pts: put(fb if part else fa, g, [op(f"s_setprio {p}")])
            put(fa, 33, [(nop, 16)])
            zp = [op(f"v_mov_b64 {v(PP[1]+2*r,2)}, 0") for r in range(2)]
            sched(qk(0, R, 0, trans, hq) + pv(0, R, 8, half=hp), fa, zp + sm_half(1) if hp else sm_ops(1))
            check(1, other=not trans)
            if mb: mb()
            pre = []
            if trans:
                I(f"s_mov_b32 s{SFIN}, 1")
                pre = init_max()
            put(fb, 18, [op(f"v_xor_b32 v{VV}, 0x10000, v{VK}")] + kx)
            for n, e in enumerate(endops): put(fb, 11 - n, [e])
            put(fb, 21, [(nop, 12)])
            sched(qk(1, R, 16, half=hq) + pv(1, R, 24, range(2), half=hp), fb, pre + (sm_half(0)[:SPH] if hq else sm_ops(0)[:SPL]))
            assert [R[26+i][1]["reg"] for i in range(6)] == TR
        vm4 = lambda: I("s_waitcnt vmcnt(4)")
        def vm08():
            lo = a.label("W8"); lb = a.label("W8R")
            I(f"s_cmp_eq_u32 s{SFIN}, 3"); I(f"s_cbranch_scc1 {lo}"); I("s_waitcnt vmcnt(0)"); a.L(lb)
            def b(): I("s_waitcnt vmcnt(8)"); I(f"s_mov_b32 s{SFIN}, 4")
            ool.append((lo, lb, b))
        m1 = lambda sb, ko: (lambda: rarely(f"s_cmp_eq_u32 s{SC1}, s{SM1}", lambda: mask_body(sb, ko)))
        fin = lambda: rarely(f"s_cmp_eq_u32 s{SFIN}, 1", fin_body)
        sta = (lambda: rarely(f"s_cmp_eq_u32 s{SFIN}, 2", st_body), 8)
        KR, VR, SH, WO, AD = 16, 23, 28, 32, 40
        def side_loads():
            L = []; E = lambda t: L.append(op(t)); V = lambda t: L.append(op(t, DC))
            E(f"v_lshrrev_b32 v{AD}, 5, v0"); E(f"v_and_b32 v{AD+1}, 31, v0"); E(f"v_lshlrev_b32 v{AD+2}, 12, v{AD}"); E(f"v_lshl_add_u32 v{AD+2}, v{AD+1}, 2, v{AD+2}")
            self.phys(60, SHEAD, 61, E); E("s_lshl_b32 s60, s60, 17"); E(f"s_lshr_b32 s61, s{SIDX}, 1"); E("s_lshl_b32 s61, s61, 15"); E("s_add_u32 s60, s60, s61")
            E(f"s_and_b32 s61, s{SF}, 1"); E("s_lshl_b32 s61, s61, 9"); E("s_add_u32 s60, s60, s61")
            E(f"s_lshl_b32 s61, s{SW}, 6"); E("s_add_u32 s60, s60, s61"); E("s_add_u32 s61, s60, 16384")
            E(f"v_lshrrev_b32 v{AD+3}, 4, v0"); E(f"v_lshlrev_b32 v{AD+3}, 12, v{AD+3}"); E(f"v_and_b32 v{AD+4}, 15, v0"); E(f"v_lshl_add_u32 v{AD+3}, v{AD+4}, 2, v{AD+3}")
            for j in range(8): V(f"buffer_load_dword v{WO+j}, v{AD+3}, s[{RE}:{RE+3}], s{60+(j>>2)} offen offset:{1024*(j&3)}")
            E("s_lshr_b32 s62, s2, 3"); E("s_lshl_b32 s62, s62, 16"); E(f"s_lshl_b32 s63, s{SW}, 13"); E("s_add_u32 s62, s62, s63")
            E("s_and_b32 s63, s2, 7"); E("s_lshl_b32 s63, s63, 7"); E("s_add_u32 s62, s62, s63"); E(f"v_add_u32 v{AD+3}, s62, v{AD+2}")
            for i in range(3): E(f"v_subrev_u32 v{AD+4+i}, {3072-1024*i}, v{AD+3}")
            E("s_lshl_b32 s63, s63, 2"); E(f"v_lshl_add_u32 v{AD+7}, v{AD+1}, 4, s63")
            for i in range(3): V(f"buffer_load_dword v{KR+i}, v{AD+4+i}, s[{RA}:{RA+3}], 0 offen")
            for i in range(4): V(f"buffer_load_dword v{KR+3+i}, v{AD+3}, s[{RA}:{RA+3}], 0 offen offset:{1024*i}")
            for i in range(4): V(f"buffer_load_dword v{VR+i}, v{AD+3}, s[{RC}:{RC+3}], 0 offen offset:{1024*i}")
            V(f"buffer_load_dwordx4 {v(SH,4)}, v{AD+7}, s[{RD}:{RD+3}], 0 offen")
            return L
        NSL = 21
        def side_math():
            L = []; E = lambda t: L.append(op(t)); V = lambda t: L.append(op(t, DC))
            W2 = 48
            E("s_mov_b32 s60, 0x05040100"); E("s_mov_b32 s61, 0x07060302")
            for j in range(4): E(f"v_perm_b32 v{W2+j}, v{WO+2*j+1}, v{WO+2*j}, s60")
            for j in range(4): E(f"v_perm_b32 v{W2+4+j}, v{WO+2*j+1}, v{WO+2*j}, s61")
            E(f"s_and_b32 s60, s{SF}, 1"); E("s_lshl_b32 s60, s60, 2"); E(f"s_lshr_b32 s61, s{SW}, 1"); E("s_add_u32 s60, s60, s61"); E("s_lshl_b32 s60, s60, 19")
            E(f"s_lshr_b32 s61, s{SF}, 1"); E("s_lshl_b32 s61, s61, 12"); E("s_add_u32 s60, s60, s61"); E(f"s_and_b32 s61, s{SW}, 1"); E("s_lshl_b32 s61, s61, 11")
            E("s_add_u32 s60, s60, s61"); E(f"s_add_u32 s60, s60, {WOT_OFF}")
            for mt in range(2): V(f"buffer_store_dwordx4 {v(W2+4*mt,4)}, v{VL16}, s[{RWS}:{RWS+3}], s60 offen offset:{1024*mt}{self.st}")
            KU, SU, OO, VU, PQ = 32, 42, 48, 39, 52
            for c in range(2):
                def unp(d, sreg, half): E(f"v_lshlrev_b32 v{d}, 16, v{sreg}" if half == 0 else f"v_and_b32 v{d}, 0xffff0000, v{sreg}")
                for i in range(7): unp(KU+i, KR+i, c)
                for j in range(4): unp(SU+j, SH + 2*c + (j >> 1), j & 1)
                for o in range(4):
                    E(f"v_mul_f32 v{OO+o}, v{KU+o}, v{SU+3}")
                    for j in (2, 1, 0): E(f"v_fmac_f32 v{OO+o}, v{KU+o+3-j}, v{SU+j}")
                    unp(VU, VR+o, c)
                    E(f"v_mul_f32 v{OO+o}, v{OO+o}, v{VU}")
                d = PQ + 2*(1-c)
                E(f"v_cvt_pk_bf16_f32 v{d}, v{OO+3}, v{OO+2}"); E(f"v_cvt_pk_bf16_f32 v{d+1}, v{OO+1}, v{OO}")
            E(f"v_lshlrev_b32 v{AD+1}, 5, v{AD+1}"); E(f"v_lshl_add_u32 v{AD+1}, v{AD}, 4, v{AD+1}")
            E(f"v_permlane32_swap_b32 v{PQ+2}, v{PQ}"); E(f"v_permlane32_swap_b32 v{PQ+3}, v{PQ+1}")
            E("s_lshr_b32 s60, s2, 3"); E("s_lshl_b32 s60, s60, 16"); E(f"s_lshl_b32 s61, s{SW}, 13"); E("s_add_u32 s60, s60, s61")
            E("s_and_b32 s61, s2, 7"); E("s_lshl_b32 s61, s61, 10"); E("s_add_u32 s60, s60, s61"); E(f"s_add_u32 s60, s60, {KVT_OFF}")
            V(f"buffer_store_dwordx4 {v(PQ,4)}, v{AD+1}, s[{RWS}:{RWS+3}], s60 offen{self.st}")
            return L
        CL = self.o.get("cl", 8)
        def touch(k):
            if k in (1, 2):
                self.phys(60, SHEAD, 61); I("s_lshl_b32 s60, s60, 17"); I(f"s_lshl_b32 s61, s{SIDX}, 14"); I("s_add_u32 s60, s60, s61")
                if k == 2: I("s_add_u32 s60, s60, 8192")
                I("v_lshlrev_b32 v16, 7, v0"); r = RE
            elif k in (3, 4):
                I("s_lshr_b32 s60, s2, 3"); I("s_lshl_b32 s60, s60, 16"); I("s_and_b32 s61, s2, 7"); I("s_lshl_b32 s61, s61, 7"); I("s_add_u32 s60, s60, s61")
                I("v_lshlrev_b32 v16, 10, v0"); r = RA if k == 3 else RC
            else:
                I(f"s_lshl_b32 s60, s{SF}, 13"); I("v_lshlrev_b32 v16, 7, v0"); r = RB
            I(f"buffer_load_dword v1, v16, s[{r}:{r+3}], s60 offen")
        LSITE = a.label("SITE")
        stubs = []
        def site_code():
            a.T(".p2align 6")
            for lo, lb in stubs:
                a.L(lo); I(f"s_call_b64 s[76:77], {LSITE}"); I(f"s_branch {lb}")
            a.L(LSITE)
            def ret(): I("s_nop 1"); I("s_setpc_b64 s[76:77]")
            ll = a.label("SL"); lm = a.label("SM"); lp = a.label("SP"); TO = self.o.get("to", 0)
            I(f"s_cmp_eq_u32 s41, {CL}"); I(f"s_cbranch_scc1 {ll}")
            I(f"s_cmp_eq_u32 s41, {CL+4}"); I(f"s_cbranch_scc1 {lp}")
            I(f"s_cmp_gt_u32 s41, {CL}"); I(f"s_cbranch_scc1 {lm}")
            lk = {k: a.label("ST") for k in range(2, 6)}
            for k in range(2, 6): I(f"s_cmp_eq_u32 s41, {k + TO}"); I(f"s_cbranch_scc1 {lk[k]}")
            for k in range(1, 6):
                if k > 1: a.L(lk[k])
                touch(k); ret()
            a.L(lp)
            I(f"s_lshl_b32 s44, s{SF}, 2"); I(f"s_add_u32 s44, s44, {FY_OFF}")
            sv = self.save(); self.publish(44, 2); self.restore(sv)
            ret()
            a.L(ll)
            for c, _ in side_loads(): c()
            ret(); a.L(lm)
            for c, _ in side_math(): c()
            if self.o.get("ct3", 1): self.code_prefetch("ATT_START", "HOT_END", 7, 62, 44)
            ret()
        def spf():
            lo = a.label("STUB"); lb = a.label("RET")
            I("s_add_u32 s41, s41, 1"); I("s_bitcmp1_b32 s40, s41"); I(f"s_cbranch_scc1 {lo}"); a.L(lb); stubs.append((lo, lb))
        spub = (spf, 12)
        def snap():
            I(f"s_mov_b32 s61, {FY_OFF}"); I(f"buffer_load_dwordx4 v[52:55], v{VL16}, s[{RWS}:{RWS+3}], s61 offen sc1")
        def side_check():
            lo = a.label("SCK"); lb = a.label("SCR")
            def test():
                I("v_and_b32 v52, v52, v53"); I("v_and_b32 v54, v54, v55"); I("v_and_b32 v52, v52, v54"); I("v_and_b32 v52, 2, v52"); I("v_cmp_ne_u32 vcc, 2, v52")
            test(); I(f"s_cbranch_vccnz {lo}"); a.L(lb)
            def spin():
                lp = a.label("SPL")
                I("s_mov_b32 s99, 20000"); a.L(lp)
                I("s_sleep 2"); I(f"buffer_load_dwordx4 v[52:55], v{VL16}, s[{RWS}:{RWS+3}], s61 offen sc1"); I("s_waitcnt vmcnt(0)")
                test(); I(f"s_cbranch_vccz {lb}")
                I("s_sub_u32 s99, s99, 1"); I("s_cmp_lg_u32 s99, 0"); I(f"s_cbranch_scc1 {lp}")
            ool.append((lo, lb, spin))
        m2 = lambda sb, ko: (lambda: rarely(f"s_cmp_eq_u32 s{SC2}, 0", lambda: (snap(), mask_body(sb, ko))))
        LEV = a.label("EVEN"); LODM = a.label("ODDM"); LTRANS = a.label("TRANS"); LP2 = a.label("P2"); LP2B = a.label("P2B"); LDRAIN = a.label("DRAIN")
        a.L("ATT_START")
        self.stamp(8)
        self.ring_n = 0
        R = [rd("k", 0, i) for i in range(8)] + [rd("k", 1, i) for i in range(8)]
        def qrd(i):
            I(f"ds_read_b128 {v(QF+4*i,4)}, v{TMP+1 if i < 4 else LM} offset:{1024*(i&3)}"); return lg.issue()
        for i in range(4): qrd(i); R[i][0]()
        for i in range(4, 8): tq = qrd(i)
        D = dma4("v") + dma4("k")
        fx = {g: [(R[4+g][0], 4)] for g in range(4)}
        put(fx, 3, [(lambda: lg.wait(tq), 4)])
        for F in range(8, 15): put(fx, last_use(F - 8) + 1, [(R[F][0], 4)])
        for n, d in enumerate(D): put(fx, 2*n, [d])
        sched(qk(0, R, 0, True), fx, [])
        m1(0, 0)()
        pre = init_max()
        fx = {0: [(R[15][0], 4)], 8: [op(f"v_xor_b32 v{VV}, 0x10000, v{VK}"), op(f"v_xor_b32 v{VK}, 0x4000, v{VK}")]}
        sched(qk(1, R, 8), fx, pre + sm_ops(0)[:SPL])
        R = mk_reads()
        head(R, vm4, False, post=[m1(1, 32)])
        svm = self.save()
        self.stamp(9)
        LOD = [a.label("ODD0"), a.label("ODD1")]
        I(f"s_cmp_eq_u32 s{SG}, 1"); I(f"s_cbranch_scc1 {LOD[1]}"); I(f"s_branch {LOD[0]}")
        vm0 = lambda: I("s_waitcnt vmcnt(0)")
        LDR = [a.label("DR0"), a.label("DR1"), a.label("DR1F")]
        x8 = lambda: [op(f"v_xor_b32 v{VK}, 0x8000, v{VK}")]
        dec2 = lambda: op(f"s_sub_u32 s{SC2}, s{SC2}, 1")
        def loops(g):
            LEV = a.label("EVEN"); LP2 = a.label("P2"); LLAST = a.label("OLAST")
            a.L(LEV)
            R = mk_reads(); head(R, vm4)
            mid(R, "k", [op(f"v_xor_b32 v{VK}, 0x4000, v{VK}")], mb=m1(0, 0) if g else None, early=[spub], g=g)
            R = mk_reads(); head(R, vm4, post=[m1(1, 32)] if g else [])
            assert self.lg.issued - self.lg.done == svm[2] - svm[3]
            a.L(LOD[g])
            if g: I(f"s_cmp_eq_u32 s{SC1}, 0"); I(f"s_cbranch_scc1 {LLAST}")
            sv = self.save(); rn = self.ring_n
            mid(R, "v", [op(f"v_xor_b32 v{VK}, 0xc000, v{VK}")], endops=[op(f"s_sub_u32 s{SC1}, s{SC1}, 1")], early=[spub], g=g)
            if g:
                I(f"s_branch {LEV}")
                a.L(LLAST); self.restore(sv); self.ring_n = rn
                mid(R, "v", [op(f"v_xor_b32 v{VK}, 0x8000, v{VK}")], mb=lambda: mask_body(0, 64, True), early=[spub], g=g, hq=True)
            else:
                I(f"s_cmp_lg_u32 s{SC1}, -1"); I(f"s_cbranch_scc1 {LEV}")
            self.stamp(14)
            if g: loadq(VQ); I("s_waitcnt lgkmcnt(0)")
            R = mk_reads(); head(R, vm4, more=mask_ops(1, 96, True) if g else (), hs=bool(g))
            mid(R, "k", x8(), mb=m2(0, 64*g), trans=bool(g), early=[spub], g=g, hp=bool(g))
            self.stamp(15)
            I(f"s_cmp_eq_u32 s{SC2}, 0"); I(f"s_cbranch_scc1 {LDR[2*g]}")
            a.L(LP2)
            R = mk_reads(); head(R, vm08 if g else vm0)
            if g:
                mid(R, "kv", x8(), endops=[sta], early=[spub, (fin, 8), dec2()], g=g)
                I(f"s_cmp_lg_u32 s{SC2}, 1"); I(f"s_cbranch_scc1 {LP2}")
                R = mk_reads(); head(R, vm08)
                mid(R, "kv", x8(), mb=lambda: (snap(), mask_body(0, 64, True)), g=g, hq=True)
            else:
                mid(R, "kv", x8(), mb=m2(0, 0), early=[spub, dec2()], g=g)
                I(f"s_cmp_lg_u32 s{SC2}, 0"); I(f"s_cbranch_scc1 {LP2}")
        lj = a.label("MGJ"); LH1 = a.label("DH1"); PR = 64
        def drain(g):
            ts, ts2, ts3 = self.tail_setup()
            tsa = [x for x in ts if x[1] == 4]; tsl = [x for x in ts if x[1] != 4]
            def dhead(hs):
                R2 = [rd("v", 0, i) for i in range(8)] + [rd("v", 1, i) for i in range(8)]
                self.stamp(10)
                head(R2, lambda: (vm0(), side_check(), tsl[0][0](), tsl[1][0]()), post=[] if (hs or not g) else [fin_body, st_body], pre=tsa[:8],
                     more=tsa[8:16] + [tsl[2]] + mask_ops(1, 32 + 64*g, bool(g)), hs=hs)
                return R2
            a.L(LDR[g]); sv = self.save()
            R2 = dhead(bool(g))
            if g:
                a.L(LH1)
                def alt():
                    keep = self.save(); th = self.th
                    a.L(LDR[2]); self.restore(sv); dhead(False); I(f"s_branch {LH1}")
                    self.restore(keep); self.th = th
                self.alt = alt
            rf = [(f, 4) for f, h in R2]
            for c, _ in tsa[16:]: c()
            pre = []; E_ = lambda t: pre.append(op(t))
            E_(f"s_add_u32 s44, s{SWK}, {ML}"); E_(f"v_add_u32 v54, s44, v{VL16}")
            E_(f"s_lshl_b32 s46, s{SW}, 13"); E_(f"v_add_u32 v55, s46, v{VL16}")
            E_(f"s_sub_u32 s46, 15, s{SIDX}"); E_("s_lshl_b32 s46, s46, 20"); E_("s_add_u32 s46, s46, s43"); E_(f"s_add_u32 s46, s46, {4096*g}"); E_(f"s_xor_b32 s47, s46, {TX}")
            WA_ = self.o.get("wa", 6); tsA, tsB = ts2[:WA_], ts2[WA_:]
            setup_ = pre + ts3; n8 = (len(setup_) + 17) // 18
            fx = {n: setup_[n*n8:(n+1)*n8] for n in range(18)}
            for n, x in enumerate(tsA): put(fx, 1 + n * 17 // max(1, len(tsA)), [x])
            for F in range(7, 15): put(fx, 2*(F - 7) + (2 if F > 7 else 0), [rf[F]])
            sched(pv(0, R2, 0, half=bool(g)), fx, sm_half(1) if g else sm_ops(1))
            check(1)
            rf[15][0]()
            own = O + 32*g; snd = O + 32*(1-g)
            def osend(i):
                I(f"ds_write_b128 v55, {v(snd+4*i,4)} offset:{1024*i}"); lg.issue()
            def wml():
                I(f"ds_write_b128 v54, {v(150,4)}"); lg.issue()
            dts = list(range(4*(1-g), 4*(1-g)+4)) + list(range(4*g, 4*g+4))
            fx = {10 + i: [(lambda i=i: osend(i), 16)] for i in range(8)}
            put(fx, 8, [op(f"v_mov_b32 v150, v{NM}"), op(f"v_mov_b32 v{LS+1}, v{LS+4}"), (wml, 4)])
            for n, x in enumerate(tsB): put(fx, n * 10 // max(1, len(tsB)), [x])
            sched(pv(1, R2, 8, dts, True, half=bool(g)), fx, self.tail_valu())
            I(f"v_xor_b32 v54, 0x1000, v54"); I(f"v_xor_b32 v55, 0x8000, v55")
            I("s_waitcnt lgkmcnt(0)"); lg.mark_all_done(); self.barrier()
            I(f"ds_read_b128 {v(96,4)}, v54"); t0 = lg.issue()
            tk = []
            for i in range(8):
                I(f"ds_read_b128 {v(PR+4*i,4)}, v55 offset:{1024*i}"); tk.append(lg.issue())
            lg.wait(t0)
            for q in range(2):
                I(f"v_min_f32 v100, v{150+q}, v{96+q}"); I(f"v_sub_f32 v101, v100, v{150+q}"); I(f"v_sub_f32 v102, v100, v{96+q}")
                I("v_exp_f32 v101, v101"); I("v_exp_f32 v102, v102")
                I(f"v_mul_f32 v103, v101, v{LS+q}"); I(f"v_fmac_f32 v103, v102, v{98+q}"); I("v_rcp_f32 v103, v103")
                b = 104 + 4*q
                I(f"v_mul_f32 v{b}, v101, v103"); I(f"v_mul_f32 v{b+1}, v101, v103"); I(f"v_mul_f32 v{b+2}, v102, v103"); I(f"v_mul_f32 v{b+3}, v102, v103")
            tw = self.tail_writes()
            for q in range(4):
                b = 104 + 4*(q & 1)
                for i in range(8*q, 8*q+8, 2): I(f"v_pk_mul_f32 {v(own+i,2)}, {v(own+i,2)}, {v(b,2)}")
                lg.wait(tk[2*q+1])
                for c in tw[3*q:3*q+3]: c()
                for i in range(8*q, 8*q+8, 2): I(f"v_pk_fma_f32 {v(own+i,2)}, {v(PR+i,2)}, {v(b+2,2)}, {v(own+i,2)}")
                for i in range(4): I(f"v_cvt_pk_bf16_f32 v{snd+4*q+i}, v{own+8*q+2*i}, v{own+8*q+2*i+1}")
                I(f"buffer_store_dwordx4 {v(snd+4*q,4)}, v{VL16}, s[{RWS}:{RWS+3}], s{46+(q&1)} offen offset:{(q>>1)*2048}{self.st}"); self.tctx = vm.issue()
        loops(1); drain(1); I(f"s_branch {lj}")
        loops(0); drain(0)
        a.L(lj)
        I("s_setprio 0")
        self.stamp(4)
        def cold():
            self.alt()
            site_code()
            for (lo, lb, body) in ool:
                a.L(lo); body(); I(f"s_branch {lb}")
            a.L("HOT_END")
            for (lr, lb, sb, other) in rare:
                a.L(lr)
                I("s_nop 15")
                rowmax(sb)
                for q in range(2): I(f"v_add_f32 v{TMP+q}, {f2u(BIAS)}, v{TMP+q}"); I(f"v_max_f32 v{TMP+q}, 0, v{TMP+q}"); I(f"v_exp_f32 v{TMP+2+q}, -v{TMP+q}")
                for r in range(8): I(f"v_sub_f32 v{NM+r}, v{NM+r}, v{TMP+(r>>2)}")
                for r in range(16): I(f"v_sub_f32 v{S[sb]+r}, v{S[sb]+r}, v{TMP+(r>>3)}")
                if other:
                    for r in range(16): I(f"v_sub_f32 v{S[1-sb]+r}, v{S[1-sb]+r}, v{TMP+(r>>3)}")
                for r in range(64): I(f"v_mul_f32 v{O+r}, v{O+r}, v{TMP+2+((r>>3)&1)}")
                for r in range(8): I(f"v_mul_f32 v{LS+r}, v{LS+r}, v{TMP+2+(r>>2)}")
                for c, _ in sm_ops(sb): c()
                I("s_nop 1"); I(f"s_branch {lb}")
        self.attn_rare = cold

    HB = 65536; HC = 4416; XB = 136192; YB = 148480
    SC, SJ, SB, SCH, SHB_, SWO, SCX = 34, 35, 36, 37, 38, 39, 40
    WS_ = [16, 24, 32, 40, 176, 184, 48, 56] + list(range(80, 144, 8))
    def tail_setup(self):
        I = self.I; L = []; E = lambda t: L.append((lambda: I(t), 4))
        SC, SJ, SB, SCH, SHB_, SWO, SCX = self.SC, self.SJ, self.SB, self.SCH, self.SHB_, self.SWO, self.SCX
        self.wtok = {}; self.wslot = dict(enumerate(self.WS_))
        E(f"s_lshr_b32 s{SC}, s{SW}, 2"); E(f"s_and_b32 s{SJ}, s{SW}, 3")
        E(f"s_lshl_b32 s{SCH}, s{SF}, 1"); E(f"s_add_u32 s{SCH}, s{SCH}, s{SC}"); E(f"s_lshl_b32 s{SCH}, s{SCH}, 12")
        E(f"s_lshl_b32 s60, s{SJ}, 10"); E("v_add_u32 v50, s60, v6"); E("v_subrev_u32 v51, 16, v50")
        E(f"s_lshl_b32 s63, s{SW}, 18"); E(f"s_lshl_b32 s62, s{SF}, 5"); E("s_add_u32 s63, s63, s62"); E(f"s_add_u32 s63, s63, {KVT_OFF}")
        E("v_lshrrev_b32 v48, 1, v0"); E("v_and_b32 v158, 1, v0" if False else "v_and_b32 v3, 1, v0"); E("v_lshlrev_b32 v49, 13, v48"); E("v_lshl_add_u32 v49, v3, 4, v49")
        def ld(t):
            def f(): I(t); self.th = self.vm.issue()
            L.append((f, 16))
        ld(f"buffer_load_dwordx4 {v(160,4)}, v51, s[{RB}:{RB+3}], s{SCH} offen")
        ld(f"buffer_load_dwordx4 {v(164,4)}, v50, s[{RB}:{RB+3}], s{SCH} offen")
        ld(f"buffer_load_dwordx4 {v(168,4)}, v49, s[{RWS}:{RWS+3}], s63 offen{self.ld}")
        E(f"s_lshl_b32 s{SWO}, s57, 19"); E(f"s_lshl_b32 s60, s{SW}, 15"); E(f"s_add_u32 s{SWO}, s{SWO}, s60"); E(f"s_add_u32 s{SWO}, s{SWO}, {WOT_OFF}")
        E("s_and_b32 s60, s56, 1"); E("s_lshl_b32 s60, s60, 18"); E(f"s_add_u32 s{SWO}, s{SWO}, s60")
        TR_ = self.o.get("trot", 1)
        if TR_ == 0: E("s_mov_b32 s58, 0")
        elif TR_ == 1: E("s_mov_b32 s58, s57")
        else: E("s_and_b32 s58, s56, 6"); E("s_add_u32 s58, s58, s57")
        def w1(i, mt):
            if mt == 0 and i % 2 == 0: self.wadr(i)
            I(f"buffer_load_dwordx4 {v(self.WS_[i]+4*mt,4)}, v6, s[{RWS}:{RWS+3}], s59 offen offset:{(i&1)*2048+mt*1024}{self.ld}"); self.wtok[i] = self.vm.issue()
        L2 = [(lambda i=i, mt=mt: w1(i, mt), 16) for i in range(self.o.get("we", 6)) for mt in range(2)]
        L3 = []; L, Lx = L3, L
        E = lambda t: L3.append((lambda: I(t), 4))
        E(f"s_mul_i32 s{SB}, s{SC}, 6144"); E(f"s_add_u32 s{SB}, s{SB}, {self.XB}")
        E(f"s_mul_i32 s{SHB_}, s{SC}, {8*self.HC}"); E(f"s_add_u32 s{SHB_}, s{SHB_}, {self.HB}")
        E(f"s_xor_b32 s{SCX}, s56, 1"); E(f"s_lshl_b32 s{SCX}, s{SCX}, 19"); E(f"s_lshl_b32 s60, s{SW}, 14"); E(f"s_add_u32 s{SCX}, s{SCX}, s60"); E(f"s_add_u32 s{SCX}, s{SCX}, {CTX_OFF}")
        E("s_and_b32 s60, s56, 1"); E("s_lshl_b32 s60, s60, 17"); E(f"s_add_u32 s{SCX}, s{SCX}, s60")
        return Lx, L2, L3
    def wreg(self, i):
        return self.WS_[i % len(self.WS_)]
    def wload(self, i):
        I = self.I; r = self.wslot[i]
        I(f"s_add_u32 s61, s{self.SWO}, {i*2048}")
        for mt in range(2):
            I(f"buffer_load_dwordx4 {v(r+4*mt,4)}, v6, s[{RWS}:{RWS+3}], s61 offen offset:{mt*1024}{self.ld}"); self.wtok[i] = self.vm.issue()
    def wadr(self, i):
        I = self.I
        I(f"s_add_u32 s59, s58, {i >> 1}"); I("s_and_b32 s59, s59, 7"); I("s_lshl_b32 s59, s59, 12"); I(f"s_add_u32 s59, s59, s{self.SWO}")
    def tail_valu(self):
        I = self.I; HC = self.HC; L = []; E = lambda t: L.append((lambda: I(t), 4))
        SJ, SB, SHB_ = self.SJ, self.SB, self.SHB_
        Ee, Eo, Oe, Oo = 160, 113, 122, 131
        E(f"s_add_u32 s60, s{SHB_}, 64"); E("v_add_u32 v138, s60, v50")
        E("v_and_b32 v51, 3, v48"); E("v_mul_u32_u24 v139, 1536, v51"); E("v_lshrrev_b32 v53, 2, v48"); E("v_lshl_add_u32 v139, v53, 4, v139")
        E("v_and_b32 v53, 1, v0"); E("v_mul_u32_u24 v53, 6144, v53"); E(f"s_lshl_b32 s60, s{SW}, 7"); E(f"s_add_u32 s60, s60, {self.XB + 512}"); E("v_add3_u32 v139, v139, v53, s60")
        E("v_and_b32 v51, 3, v0")
        for r in range(2): E(f"v_mov_b64 {v(172+2*r,2)}, 0")
        E("v_bfe_u32 v140, v0, 2, 3"); E(f"v_mul_u32_u24 v140, {HC}, v140"); E("v_lshl_add_u32 v140, v51, 4, v140"); E(f"v_add_u32 v140, s{SHB_}, v140")
        E(f"s_mul_i32 s60, s{SJ}, 1536"); E(f"s_add_u32 s60, s60, s{SB}"); E("v_lshl_add_u32 v141, v0, 3, s60")
        L.append((lambda: self.vm.wait(self.th - 1), 4))
        for k in range(7): E(f"v_alignbit_b32 v{Oe+k}, v{Ee+k+1}, v{Ee+k}, 16")
        for k in range(1, 7): E(f"v_alignbit_b32 v{Oo+k}, v{Ee+k+1}, v{Ee+k}, 16")
        for k in range(1, 7): E(f"v_mov_b32 v{Eo+k}, v{Ee+k}")
        return L
    def tail_writes(self):
        I = self.I; lg = self.lg; HC = self.HC; L = []
        Ee, Eo, Oe, Oo = 160, 113, 122, 131
        def W(t, pre=None):
            def f():
                if pre: pre()
                I(t); lg.issue()
            L.append(f)
        for r in range(8):
            sft = 1 + r; k = sft >> 1
            base = ((Oe, Oo) if sft & 1 else (Ee, Eo))[k & 1]
            W(f"ds_write_b128 v138, {v(base+k,4)} offset:{r*HC}")
        W(f"ds_write_b128 v140, {v(172,4)}"); W(f"ds_write_b64 v141, {v(172,2)}")
        W(f"ds_write_b128 v139, {v(168,4)}", lambda: self.vm.wait(self.th))
        return L
    def tailp(self):
        a = self.a; I = self.I; vm = self.vm; lg = self.lg
        HB, HC, YB = self.HB, self.HC, self.YB
        SC, SJ, SB, SCH, SHB_, SWO, SCX = self.SC, self.SJ, self.SB, self.SCH, self.SHB_, self.SWO, self.SCX
        ACC = 192; FRS = [224, 240, 64]; RD_ = 224; OACC = 192; YT = self.XB
        VL16, VA, VB, T, VP, VPA, VO, GR, VW1 = 6, 4, 5, 12, 7, 8, 9, 10, 11
        WSL = self.WS_; CSL = [144, 152, 160, 168, 64, 72]
        assert len(WSL) == 16
        I(f"s_lshr_b32 s53, s56, 1"); I("s_lshl_b32 s53, s53, 10"); I("s_and_b32 s44, s56, 1"); I("s_lshl_b32 s44, s44, 9"); I("s_add_u32 s53, s53, s44")
        I(f"s_lshr_b32 s44, s{SW}, 1"); I("s_lshl_b32 s44, s44, 7"); I("s_add_u32 s53, s53, s44"); I(f"s_and_b32 s44, s{SW}, 1"); I("s_lshl_b32 s44, s44, 3")
        I("s_add_u32 s53, s53, s44"); I(f"s_add_u32 s53, s53, {FC_OFF}")
        I(f"v_and_b32 v{VPA}, 1, v0"); I(f"v_lshlrev_b32 v{VPA}, 2, v{VPA}")
        PUBN = self.o.get("pubn", 4)
        I(f"s_lshr_b32 s45, s{SHEAD}, 2"); I("s_lshl_b32 s45, s45, 7"); I(f"s_and_b32 s44, s{SHEAD}, 3"); I("s_lshl_b32 s44, s44, 2"); I("s_add_u32 s45, s45, s44")
        I(f"s_sub_u32 s44, 15, s{SIDX}"); I("s_lshl_b32 s44, s44, 10"); I("s_add_u32 s46, s44, s45"); I(f"s_add_u32 s46, s46, {FC_OFF}")
        I(f"s_lshl_b32 s44, s{SIDX}, 10"); I("s_add_u32 s47, s44, s45"); I(f"s_add_u32 s47, s47, {FC_OFF}")
        self.srd(RC, "out", 2*MB); self.srd(RD, "q", 2*MB)
        I(f"s_lshl_b32 s44, s{SF}, 2"); I(f"s_load_dword s55, s[{P['ssmD']}:{P['ssmD']+1}], s44")
        I(f"v_and_b32 v{T}, 15, v0"); I(f"v_lshrrev_b32 v{T+1}, 4, v0")
        I(f"v_and_b32 v{T+2}, 7, v0"); I(f"v_mul_u32_u24 v{VA}, {HC}, v{T+2}")
        I(f"v_bfe_u32 v{T+2}, v0, 3, 1"); I(f"v_sub_u32 v{T+2}, v{T+2}, v{T+1}"); I(f"v_lshl_add_u32 v{VA}, v{T+2}, 4, v{VA}")
        I(f"s_lshl_b32 s43, s{SJ}, 8"); I(f"s_add_u32 s43, s43, s{SHB_}"); I("s_add_u32 s43, s43, 64"); I(f"v_add_u32 v{VA}, s43, v{VA}")
        I(f"s_lshl_b32 s43, s{SJ}, 6"); I(f"s_sub_u32 s43, s{SB}, s43"); I(f"s_add_u32 s43, s43, {(32-3)*16}")
        I(f"v_lshl_add_u32 v{VB}, v{T}, 4, s43"); I(f"v_mul_u32_u24 v{T+2}, 1536, v{T+1}"); I(f"v_add_u32 v{VB}, v{VB}, v{T+2}")
        I(f"s_lshl_b32 s51, s{SW}, 13"); I(f"s_xor_b32 s52, s{SCX}, 0x80000")
        I("s_waitcnt lgkmcnt(0)"); lg.mark_all_done(); self.barrier()
        self.stamp(5)
        wtok = dict(self.wtok); ctok = {}; cslot = dict(enumerate(CSL))
        def wload(k):
            if k % 2 == 0: self.wadr(k)
            for mt in range(2):
                I(f"buffer_load_dwordx4 {v(WSL[k]+4*mt,4)}, v{VL16}, s[{RWS}:{RWS+3}], s59 offen offset:{(k&1)*2048+mt*1024}{self.ld}"); wtok[k] = vm.issue()
        def cload(i):
            I(f"s_add_u32 s62, s58, {i & 7}"); I("s_and_b32 s62, s62, 7"); I("s_lshl_b32 s62, s62, 11"); I(f"s_add_u32 s62, s62, s{52 if i >= 16 else SCX}")
            if i & 8: I("s_add_u32 s62, s62, 0x40000")
            for qt in range(2):
                I(f"buffer_load_dwordx4 {v(cslot[i]+4*qt,4)}, v{VL16}, s[{RWS}:{RWS+3}], s62 offen offset:{qt*1024}{self.ld}"); ctok[i] = vm.issue()
        wl = [k for k in range(16) if k not in wtok]
        BS = [224, 240]; AS = list(range(160, 176, 4)) + list(range(64, 80, 4)); NA = len(AS)
        seq = [(dd, m, bt) for dd in range(4) for (m, bt) in ((0, 0), (3, 0), (0, 1), (3, 1), (1, 0), (2, 0), (1, 1), (2, 1))]
        atok = {}; btok = {}
        def rda(n):
            if n >= len(seq): return
            dd, m, bt = seq[n]
            I(f"ds_read_b128 {v(AS[n % NA],4)}, v{VA} offset:{64*dd + 1024*m + 32*bt}"); atok[n] = lg.issue()
        def rdb(dd, n):
            if dd >= 4: return
            I(f"ds_read_b128 {v(BS[dd & 1]+4*n,4)}, v{VB} offset:{(3-dd)*16 + 256*n}"); btok[(dd, n)] = lg.issue()
        rda(0)
        for n in range(4): rdb(0, n)
        for n in range(1, NA - 1): rda(n)
        seen = set()
        for n, (dd, m, bt) in enumerate(seq):
            for nn in range(4 - m):
                lg.wait(max(atok[n], btok[(dd, nn)]))
                key = (m + nn, bt); d = v(ACC + 8*key[0] + 4*bt, 4)
                I(f"v_mfma_f32_16x16x32_bf16 {d}, {v(AS[n % NA],4)}, {v(BS[dd & 1]+4*nn,4)}, {d if key in seen else '0'}"); seen.add(key)
                if nn == 0:
                    rda(n + NA - 1)
                    if 1 <= (n & 7) <= 4: rdb(dd + 1, (n & 7) - 1)
            if n & 1:
                h_ = n >> 1
                if h_ == PUBN:
                    vm.wait(self.tctx); self.barrier(); self.publish(46); self.publish(47)
                if h_ >= self.o.get("wst", 2) and len(wl) > self.o.get("wkeep", 2): wload(wl.pop(0))
                if h_ == self.o.get("p1", 12): tc1 = self.poll_issue(VP, VPA, "s53")
        I(f"v_add_u32 v{T+2}, s51, v{VL16}")
        for i in range(8):
            I(f"ds_write_b128 v{T+2}, {v(ACC+4*i,4)} offset:{1024*i}"); lg.issue()
        while wl: wload(wl.pop(0))
        I(f"s_lshl_b32 s43, s{SC}, 15"); I(f"s_lshl_b32 s44, s{SJ}, 11"); I("s_add_u32 s43, s43, s44"); I(f"v_add_u32 v{T+2}, s43, v{VL16}")
        I(f"s_lshl_b32 s44, s{SJ}, 8"); I(f"s_add_u32 s44, s44, s{SB}"); I("s_add_u32 s44, s44, 520")
        I(f"v_lshl_add_u32 v{T+3}, v{T}, 4, s44"); I(f"v_and_b32 v{VA}, 1, v{T+1}"); I(f"v_lshlrev_b32 v{VA}, 3, v{VA}"); I(f"v_sub_u32 v{T+3}, v{T+3}, v{VA}")
        I(f"v_lshrrev_b32 v{VA}, 1, v{T+1}"); I(f"v_mul_u32_u24 v{VA}, 1536, v{VA}"); I(f"v_add_u32 v{T+3}, v{T+3}, v{VA}")
        I(f"v_lshlrev_b32 v{VB}, 6, v{T}"); I(f"v_lshl_add_u32 v{VB}, v{T+1}, 3, v{VB}")
        I(f"s_add_u32 s45, s{SWK}, {YB}"); I(f"v_add_u32 v{VB}, s45, v{VB}")
        I("s_lshl_b32 s43, s55, 16"); I("s_and_b32 s44, s55, 0xffff0000"); I(f"s_cmp_eq_u32 s{SC}, 0"); I("s_cselect_b32 s55, s43, s44")
        lg.wait(lg.issued); self.barrier()
        self.stamp(12)
        for p in range(4):
            for gq in range(2):
                I(f"ds_read_b128 {v(RD_+8*p+4*gq,4)}, v{T+2} offset:{8192*p+1024*gq}"); lg.issue()
        for gq in range(2):
            I(f"ds_read_b64 {v(ACC+2*gq,2)}, v{T+3} offset:{3072*gq}"); lg.issue()
        le = a.label("NE")
        vm.wait(tc1); I(f"v_and_b32 v{VP}, 1, v{VP}"); I(f"v_cmp_ne_u32 vcc, 1, v{VP}"); I("s_mov_b32 s50, 0"); I(f"s_cbranch_vccnz {le}")
        sv = self.save(); I("s_mov_b32 s50, 1")
        for i in range(len(CSL)): cload(i)
        self.restore(sv); a.L(le)
        lg.wait(lg.issued)
        for i in range(0, 8, 2):
            I(f"v_pk_add_f32 {v(RD_+i,2)}, {v(RD_+i,2)}, {v(RD_+8+i,2)}"); I(f"v_pk_add_f32 {v(RD_+16+i,2)}, {v(RD_+16+i,2)}, {v(RD_+24+i,2)}")
        for i in range(0, 8, 2): I(f"v_pk_add_f32 {v(RD_+i,2)}, {v(RD_+i,2)}, {v(RD_+16+i,2)}")
        for gq in range(2):
            for r in range(4):
                srcr = ACC + 2*gq + (1 - (r >> 1))
                I(f"v_lshlrev_b32 v{ACC+8}, 16, v{srcr}" if r & 1 else f"v_and_b32 v{ACC+8}, 0xffff0000, v{srcr}")
                I(f"v_fma_f32 v{RD_+4*gq+r}, v{ACC+8}, s55, v{RD_+4*gq+r}")
        for i in range(4): I(f"v_cvt_pk_bf16_f32 v{ACC+12+i}, v{RD_+2*i}, v{RD_+2*i+1}")
        for gq in range(2):
            I(f"ds_write_b64 v{VB}, {v(ACC+12+2*gq,2)} offset:{32*gq}"); lg.issue()
        I(f"v_and_b32 v{T+2}, 15, v0"); I(f"v_lshrrev_b32 v{T+1}, 4, v0"); I(f"v_lshlrev_b32 v{T+1}, 1, v{T+1}"); I(f"v_xor_b32 v{T+1}, v{T+1}, v{T+2}"); I(f"v_lshlrev_b32 v{T+1}, 4, v{T+1}")
        I(f"v_lshl_add_u32 v{VA}, v{T+2}, 8, v{T+1}"); I(f"v_add_u32 v{VA}, s51, v{VA}")
        I(f"s_lshr_b32 s48, s{SW}, 1"); I("s_lshl_b32 s48, s48, 4"); I(f"s_and_b32 s41, s{SW}, 1"); I("s_lshl_b32 s42, s41, 3")
        I(f"v_lshrrev_b32 v{T}, 4, v0"); I(f"v_lshl_add_u32 v{T+1}, v{T}, 1, s42"); I(f"v_xor_b32 v{T+1}, v{T+1}, v{T+2}"); I(f"v_lshlrev_b32 v{T+1}, 4, v{T+1}")
        I("s_and_b32 s43, s48, 16"); I(f"v_add_u32 v{T+3}, s43, v{T+2}"); I(f"v_lshl_add_u32 v{VW1}, v{T+3}, 8, v{T+1}")
        I("s_lshr_b32 s43, s48, 5"); I("s_lshl_b32 s43, s43, 16"); I(f"v_add_u32 v{VW1}, s43, v{VW1}")
        lg.wait(lg.issued); I(f"v_xor_b32 v{VB}, 16, v{VW1}"); self.barrier()
        ly = a.label("NY")
        I(f"s_cmp_lg_u32 s{SW}, 0"); I(f"s_cbranch_scc1 {ly}")
        I(f"v_add_u32 v{T}, {YB}, v{VL16}")
        for i in range(8): I(f"ds_read_b128 {v(RD_+4*i,4)}, v{T} offset:{1024*i}")
        I(f"s_lshl_b32 s44, s{SF}, 13"); I(f"s_add_u32 s44, s44, {YT_OFF}"); I("s_add_u32 s45, s44, 4096")
        I("s_waitcnt lgkmcnt(0)")
        for i in range(8): I(f"buffer_store_dwordx4 {v(RD_+4*i,4)}, v{VL16}, s[{RWS}:{RWS+3}], s{44+(i>>2)} offen offset:{1024*(i&3)}{self.st}")
        a.L(ly)
        ll = a.label("NL")
        I("s_cmp_eq_u32 s50, 1"); I(f"s_cbranch_scc1 {ll}")
        self.poll_check(VP, VPA, "s53", 1)
        for i in range(len(CSL)): cload(i)
        a.L(ll)
        self.stamp(6)
        def put_ops(st):
            L = []
            for mt in range(4):
                def f(mt=mt):
                    I(f"v_xor_b32 v{T+3}, {(8*(mt>>1)+(mt&1))*16 + 0x10000*st}, v{VA}")
                    for qt in range(2):
                        I(f"ds_write_b128 v{T+3}, {v(OACC+32*st+8*mt+4*qt,4)} offset:{4096*qt}"); lg.issue()
                L.append(f)
            return L
        def sum_partials(mid=None):
            tk = []
            for p in range(8):
                for hh in range(2):
                    I(f"ds_read_b128 {v(OACC+8*p+4*hh,4)}, v{(VW1, VB)[hh]} offset:{8192*p}"); lg.issue()
                tk.append(lg.issued)
                if p == 5 and mid: mid()
            for p in range(1, 8):
                lg.wait(tk[p])
                for e in range(0, 8, 2): I(f"v_pk_add_f32 {v(OACC+e,2)}, {v(OACC+e,2)}, {v(OACC+8*p+e,2)}")
        ymark = vm.issued; ypub = False; pm = {}; ppub = False; free = []; nc = len(CSL); XR = WSL[0]; PR_ = WSL[1]
        TS = [OACC + 32 + 8*n for n in range(4)]; ptk = {}
        def prd(p):
            r = TS[0] if p == 0 else TS[1 + (p - 1) % 3]
            for hh in range(2):
                I(f"ds_read_b128 {v(r+4*hh,4)}, v{(VW1, VB)[hh]} offset:{8192*p}"); ptk[p] = lg.issue()
        def padd(p):
            lg.wait(ptk[p]); r = TS[1 + (p - 1) % 3]
            for e in range(0, 8, 2): I(f"v_pk_add_f32 {v(TS[0]+e,2)}, {v(TS[0]+e,2)}, {v(r+e,2)}")
            if p + 3 < 8: prd(p + 3)
        def pst():
            I(f"s_lshl_b32 s44, s{SF}, 14"); I(f"s_lshl_b32 s45, s{SW}, 11"); I("s_add_u32 s54, s44, s45"); I(f"s_add_u32 s54, s54, {PP_OFF}")
            for hh in range(2):
                I(f"buffer_store_dwordx4 {v(TS[0]+4*hh,4)}, v{VL16}, s[{RWS}:{RWS+3}], s54 offen offset:{1024*hh}{self.st}"); pm["t"] = vm.issue()
        B1 = self.o.get("b1", 18); PS = self.o.get("ps", 21)
        for i2 in range(0, 32, 2):
            st = (i2 >> 3) & 1; J = i2 & 7; fill = []
            if i2 in (8, 24): fill = put_ops(0)
            if i2 == 16: fill = put_ops(1)
            if i2 == 24: self.barrier()
            if i2 == B1:
                lg.wait(lg.issued); self.barrier()
                for p in range(4): prd(p)
                fill = [lambda p=p: padd(p) for p in range(1, 8)]
                I(f"s_lshl_b32 s53, s57, 7"); I(f"s_lshl_b32 s42, s{SW}, 4"); I("s_add_u32 s53, s53, s42"); I(f"s_add_u32 s53, s53, {FY_OFF}")
                I(f"v_and_b32 v{VPA}, 3, v0"); I(f"v_lshlrev_b32 v{VPA}, 2, v{VPA}")
                tf = self.poll_issue(VP, VPA, "s53")
            if i2 == 26:
                I(f"v_and_b32 v{T+1}, 15, v0"); I(f"s_lshl_b32 s45, s56, 6"); I("s_add_u32 s45, s45, s48"); I(f"v_add_u32 v{T+1}, s45, v{T+1}")
                I(f"v_lshlrev_b32 v{T+2}, 2, v{T+1}"); I(f"s_mov_b32 s45, {G_OFF}")
                I(f"buffer_load_dword v{GR}, v{T+2}, s[{RWS}:{RWS+3}], s45 offen{self.ld}"); vm.issue()
                I(f"v_lshrrev_b32 v{T+2}, 4, v0"); I(f"v_lshlrev_b32 v{T+2}, 4, v{T+2}"); I(f"v_lshl_add_u32 v{VO}, v{T+1}, 10, v{T+2}")
                I("s_lshl_b32 s49, s41, 6"); I(f"s_lshl_b32 s45, s57, 7"); I("s_add_u32 s49, s49, s45")
                I(f"buffer_load_dwordx4 {v(XR,4)}, v{VO}, s[{RD}:{RD+3}], s49 offen"); vm.issue()
                vm.wait(tf); self.poll_check(VP, VPA, "s53", 1)
                I(f"v_lshrrev_b32 v{T}, 3, v0"); I(f"v_and_b32 v{T+1}, 7, v0"); I(f"v_lshlrev_b32 v{T+1}, 4, v{T+1}")
                I(f"v_lshl_add_u32 v{T}, v{T}, 12, v{T+1}")
                I(f"s_add_u32 m0, s{SWK}, {YT}")
                I(f"s_lshl_b32 s44, s57, 18"); I(f"s_lshl_b32 s45, s{SW}, 15"); I("s_add_u32 s44, s44, s45")
                I(f"s_lshl_b32 s45, s56, 7"); I("s_add_u32 s44, s44, s45"); I(f"s_add_u32 s44, s44, {YT_OFF}")
                I(f"buffer_load_dwordx4 v{T}, s[{RWS}:{RWS+3}], s44 offen{self.ld} lds"); vm.issue()
            vm.wait(max(ctok[i2+1], wtok[2*J+3]))
            if not ypub and vm.done > ymark:
                ypub = True; I(f"s_lshl_b32 s44, s{SF}, 2"); I(f"s_add_u32 s44, s44, {FY_OFF}"); self.publish(44, 3)
            if pm and not ppub and vm.done >= pm["t"]:
                ppub = True
                I(f"s_lshl_b32 s44, s{SF}, 7"); I(f"s_lshl_b32 s45, s{SW}, 2"); I("s_add_u32 s44, s44, s45"); I(f"s_add_u32 s44, s44, {FP_OFF}")
                I("v_mov_b32 v2, 1"); I("v_mov_b32 v3, 0"); I(f"buffer_store_dword v2, v3, s[{RWS}:{RWS+3}], s44 offen sc1"); vm.issue()
            if i2 == 30:
                I(f"s_xor_b32 s53, s{SF}, 32"); I("s_lshl_b32 s53, s53, 7"); I(f"s_lshl_b32 s42, s{SW}, 2"); I("s_add_u32 s53, s53, s42"); I(f"s_add_u32 s53, s53, {FP_OFF}")
                I(f"v_mov_b32 v{VPA}, 0")
                if self.o.get("pe"): tp = self.poll_issue(VP, VPA, "s53")
            M = []
            for mt in range(4):
                for qt in range(2):
                    for u in range(2):
                        d = v(OACC + 32*st + 8*mt + 4*qt, 4)
                        M.append(lambda d=d, mt=mt, qt=qt, u=u: I(f"v_mfma_f32_16x16x32_bf16 {d}, {v(WSL[2*(J+u) + (mt >> 1)]+4*(mt & 1),4)}, {v(cslot[i2+u]+4*qt,4)}, {'0' if J + u == 0 else d}"))
            self.stream(M, [(1, 16, fill)] if fill else [])
            free += [cslot[i2], cslot[i2+1]]
            while free and nc < 32:
                cslot[nc] = free.pop(0); cload(nc); nc += 1
            if i2 + 1 == PS or i2 == PS: pst()
        assert ypub and ppub
        self.stamp(7)
        if not self.o.get("pe"):
            tp = self.poll_issue(VP, VPA, "s53")
            for f in put_ops(1): f()
        vm.wait(tp); self.poll_check(VP, VPA, "s53", 1)
        if self.o.get("ostamp"): self.stamp(20)
        I("s_xor_b32 s54, s54, 0x80000")
        for hh in range(2):
            I(f"buffer_load_dwordx4 {v(PR_+4*hh,4)}, v{VL16}, s[{RWS}:{RWS+3}], s54 offen offset:{1024*hh}{self.ld}"); tpp = vm.issue()
        if self.o.get("pe"):
            for f in put_ops(1): f()
        I(f"v_lshrrev_b32 v{T}, 4, v0"); I("s_lshl_b32 s42, s41, 5"); I(f"v_lshl_add_u32 v{T}, v{T}, 3, s42"); I(f"v_bfe_u32 v{T+1}, v0, 2, 2")
        I(f"v_add_u32 v{T}, v{T}, v{T+1}"); I(f"v_lshlrev_b32 v{T}, 7, v{T}"); I(f"v_and_b32 v{T+1}, 3, v0")
        I(f"v_lshl_add_u32 v{T}, v{T+1}, 3, v{T}"); I("s_lshl_b32 s42, s48, 1"); I(f"s_add_u32 s42, s42, {YT}"); I(f"v_add_u32 v{T}, s42, v{T}")
        lg.wait(lg.issued); self.barrier()
        I(f"ds_read_b64_tr_b16 {v(100,2)}, v{T}"); lg.issue()
        I(f"ds_read_b64_tr_b16 {v(102,2)}, v{T} offset:512"); ty2 = lg.issue()
        def mix():
            lg.wait(ty2)
            for e in range(8):
                if e & 1: I(f"v_and_b32 v104, 0xffff0000, v{XR+(e>>1)}"); I(f"v_and_b32 v105, 0xffff0000, v{100+(e>>1)}")
                else: I(f"v_lshlrev_b32 v104, 16, v{XR+(e>>1)}"); I(f"v_lshlrev_b32 v105, 16, v{100+(e>>1)}")
                I(f"v_mul_f32 v{112+e}, v104, v105"); I(f"v_mul_f32 v{112+e}, v{112+e}, v{GR}")
            I(f"v_sub_f32 v{GR}, 1.0, v{GR}")
        sum_partials(mix)
        vm.wait(tpp)
        for e in range(0, 8, 2): I(f"v_pk_add_f32 {v(OACC+e,2)}, {v(OACC+e,2)}, {v(PR_+e,2)}")
        for e in range(8): I(f"v_fmac_f32 v{112+e}, v{OACC+4*(e&1)+(e>>1)}, v{GR}")
        for e in range(4): I(f"v_cvt_pk_bf16_f32 v{108+e}, v{112+2*e}, v{112+2*e+1}")
        I(f"buffer_store_dwordx4 {v(108,4)}, v{VO}, s[{RC}:{RC+3}], s49 offen sc1"); vm.issue()
        self.stamp(16)
        if self.o.get("echo"):
            lp = a.label("EC")
            I("s_sub_u32 s100, s100, s96")
            if self.o.get("cyc"): I("s_lshr_b32 s100, s100, 4")
            I("s_memrealtime s[96:97]"); I("s_waitcnt lgkmcnt(0)")
            a.L(lp)
            I("s_memrealtime s[98:99]"); I("s_waitcnt lgkmcnt(0)"); I("s_sub_u32 s98, s98, s96"); I("s_cmp_lt_u32 s98, s100"); I(f"s_cbranch_scc1 {lp}")
        if self.o.get("dbgout") is not None:
            l = a.label("DB")
            I(f"s_cmp_lg_u32 s2, {self.o['dbgout']}"); I(f"s_cbranch_scc1 {l}"); I(f"s_cmp_lg_u32 s{SW}, 0"); I(f"s_cbranch_scc1 {l}")
            I("s_waitcnt vmcnt(0)")
            order = [0, 1, 2, 3, 8, 10, 11, 4, 5, 12, 6, 7, 16]
            I("v_mov_b32 v20, 0")
            for j, i in enumerate(order):
                I(f"s_mov_b32 s44, {4*i}"); I(f"v_writelane_b32 v20, s44, {j}")
            I(f"s_lshl_b32 s44, s2, 11"); I(f"s_add_u32 s44, s44, {STAMP_OFF}")
            I(f"buffer_load_dword v21, v20, s[{RWS}:{RWS+3}], s44 offen sc1"); I("s_waitcnt vmcnt(0)")
            I("v_readfirstlane_b32 s45, v21"); I("v_subrev_u32 v21, s45, v21")
            self.srd(RDBG, "dbg", 64); I("v_lshlrev_b32 v22, 2, v0")
            I(f"buffer_store_dword v21, v22, s[{RDBG}:{RDBG+3}], 0 offen")
            a.L(l)

HEADER = """; One persistent launch, one 8-wave workgroup per CU (generated by gen/gen_final.py, hand-designed schedule).
"""
def build(opts):
    g = G(opts); k = NAME + "_kernel"
    g.begin(k); g.a.T("; MARK p"); g.proj(); g.a.T("; MARK a"); g.attn(); g.a.T("; MARK t"); g.tailp(); g.end(); g.a.T("; MARK a"); g.attn_rare(); g.a.T("; MARK t"); g.a.L("CODE_END"); g.a.I("s_endpgm")
    n = g.a.fix_hazards()
    txt = "; @launch grid=(256,1,1) block=(512,1,1) lds=163840\n" + HEADER
    txt += '.amdgcn_target "amdgcn-amd-amdhsa--gfx950"\n.text\n' + g.a.text()
    txt += f""".section .rodata,"a"
.p2align 6
.amdhsa_kernel {k}
  .amdhsa_next_free_vgpr 256
  .amdhsa_next_free_sgpr 102
  .amdhsa_accum_offset 256
  .amdhsa_group_segment_fixed_size 0
  .amdhsa_kernarg_size 128
  .amdhsa_user_sgpr_count 2
  .amdhsa_user_sgpr_kernarg_segment_ptr 1
  .amdhsa_system_sgpr_workgroup_id_x 1
.end_amdhsa_kernel
"""
    print(f"instructions {sum(1 for it in g.a.items if it[0] == 'i')}, nops inserted {n}", file=sys.stderr)
    return txt

if __name__ == "__main__":
    opts = {}
    for x in sys.argv[2:]:
        if "=" in x: k_, v_ = x.split("="); opts[k_] = int(v_)
        else: opts[x] = True
    open(sys.argv[1], "w").write(build(opts))
```

```python
import sys, math, struct
sys.path.insert(0, "gen")
from asmlib import *

NAME = "gated_mix__ssm_conv_h3__compressed_kv_cla__prompt"
MB = 1 << 20
KV_OFF, Q_OFF, CTX_OFF, KVT_OFF, YT_OFF, G_OFF = 0, 32*MB, 48*MB, 64*MB, 66*MB, 68*MB
XC_OFF = 40*MB
PP_OFF = 40*MB
WOT_OFF = 32*MB
FLG_OFF = 68*MB + 65536
FK_OFF, FY_OFF, FC_OFF, FP_OFF = FLG_OFF, FLG_OFF + 4096, FLG_OFF + 8192, FLG_OFF + 32768
STAMP_OFF = 69*MB
WS_SIZE = 70*MB
P = dict(q=64, k=66, v=68, shift=70, ssmk=72, ssmD=74, bx=76, ckv=78, wq=80, wuk=82, wuv=84, wo=86, gate=88, out=90, dbg=92, ws=94)
SW, SHEAD, SIDX, SWK, SF = 3, 4, 5, 6, 7
RA, RB, RC, RWS, RD, RE, RT, RDBG = 8, 12, 16, 20, 24, 28, 56, 60
MFMA = "v_mfma_f32_32x32x16_bf16"
LOG2E = 1.4426950408889634
F_KV, F_CA, F_CB, F_Y = 1, 2, 4, 8
def f2u(x): return "0x%08x" % struct.unpack("<I", struct.pack("<f", x))[0]
def rep4(b): return b * 0x01010101

class G:
    def __init__(self, opts):
        self.a = Asm(); self.o = opts
        self.GSH, self.FSH = (8, 10) if opts.get("lin") else (11, 8)
        self.vm = Cnt(self.a, "vmcnt", 63); self.lg = Cnt(self.a, "lgkmcnt", 15)
        self.st = "" if opts.get("plainst") else (" sc1 nt" if opts.get("ntst") else " sc1"); self.ld = "" if opts.get("plainld") else " sc1"
    def I(self, t): self.a.I(t)
    def srd(self, r, ptr, nbytes):
        I = self.I
        I(f"s_mov_b32 s{r}, s{P[ptr]}"); I(f"s_mov_b32 s{r+1}, s{P[ptr]+1}")
        I(f"s_mov_b32 s{r+2}, {nbytes}"); I(f"s_mov_b32 s{r+3}, 0x00020000")
    def save(self): return (self.vm.issued, self.vm.done, self.lg.issued, self.lg.done)
    def restore(self, s_): self.vm.issued, self.vm.done, self.lg.issued, self.lg.done = s_
    def stream(self, mf, fills):
        n = len(mf); slots = [[] for _ in range(n + 1)]
        for (s0, e0, cl) in fills:
            m = e0 - s0
            for j, c in enumerate(cl): slots[s0 + 1 + (j * m) // len(cl)].append(c)
        for c in slots[0]: c()
        for i in range(n):
            mf[i]()
            for c in slots[i+1]: c()
    def stamp(self, i, dyn=None):
        if self.o.get("echo") == i:
            self.I("s_memtime s[100:101]" if self.o.get("cyc") else "s_memrealtime s[100:101]"); self.I("s_waitcnt lgkmcnt(0)")
        if not self.o.get("stamp"): return
        I = self.I
        I("s_memrealtime s[96:97]"); I("s_memtime s[100:101]")
        I("s_lshl_b32 s98, s2, 3"); I(f"s_add_u32 s98, s98, s{SW}"); I("s_lshl_b32 s98, s98, 8")
        I(f"s_add_u32 s98, s98, {STAMP_OFF + 4*i}")
        if dyn is not None:
            I(f"s_lshl_b32 s99, s{dyn}, 4"); I("s_add_u32 s98, s98, s99")
        I("s_waitcnt lgkmcnt(0)")
        I("v_mov_b32 v2, s96"); I("v_mov_b32 v3, 0")
        I(f"buffer_store_dword v2, v3, s[{RWS}:{RWS+3}], s98 offen")
        I("v_mov_b32 v2, s100")
        I(f"buffer_store_dword v2, v3, s[{RWS}:{RWS+3}], s98 offen offset:128")
    OOB = 0x40000000
    def publish(self, soff, val=1, srd=RWS, byte=False, idx=None):
        I = self.I
        self.oob_sel()
        if idx is not None: I(f"s_and_b32 s98, s{SIDX}, 3"); I(f"s_cmp_eq_u32 s98, {idx}"); I(f"s_cselect_b32 s99, s99, {self.OOB}")
        I(f"v_mov_b32 v2, {val}"); I("v_mov_b32 v3, s99")
        I(f"buffer_store_{'byte' if byte else 'dword'} v2, v3, s[{srd}:{srd+3}], s{soff} offen sc1"); self.vm.issue()
    def oob_sel(self):
        self.I(f"s_cmp_eq_u32 s{SW}, 0"); self.I(f"s_cselect_b32 s99, 0, {self.OOB}")
    def poll_issue(self, vd, vaddr, soff, srd=RWS):
        self.I(f"buffer_load_dword v{vd}, v{vaddr}, s[{srd}:{srd+3}], {soff} offen sc1"); return self.vm.issue()
    def poll_check(self, vd, vaddr, soff, want, srd=RWS):
        a = self.a; I = self.I
        l = a.label("PCK"); lp = a.label("POLL")
        I(f"s_mov_b32 s98, {want}"); I("s_mov_b32 s99, 20000")
        a.L(lp)
        I(f"v_and_b32 v{vd}, s98, v{vd}"); I(f"v_cmp_ne_u32 vcc, s98, v{vd}"); I(f"s_cbranch_vccz {l}")
        I("s_sleep 2")
        I(f"buffer_load_dword v{vd}, v{vaddr}, s[{srd}:{srd+3}], {soff} offen sc1")
        I("s_sub_u32 s99, s99, 1"); I("s_cmp_lg_u32 s99, 0"); I("s_waitcnt vmcnt(0)"); I(f"s_cbranch_scc1 {lp}")
        a.L(l)
    def phys(self, d, s_, t, E=None):
        I = E or self.I; p = self.o.get("hperm", 0)
        if p == 0: I(f"s_mov_b32 s{d}, s{s_}")
        elif p == 1: I(f"s_and_b32 s{t}, s{s_}, 3"); I(f"s_lshl_b32 s{t}, s{t}, 3"); I(f"s_lshr_b32 s{d}, s{s_}, 2"); I(f"s_or_b32 s{d}, s{d}, s{t}")
        elif p >= 32:
            I(f"s_lshr_b32 s{t}, s{s_}, 3"); I(f"s_add_u32 s{t}, s{t}, {p - 32}"); I(f"s_and_b32 s{t}, s{t}, 3")
            I(f"s_and_b32 s{d}, s{s_}, 7"); I(f"s_lshl_b32 s{d}, s{d}, 2"); I(f"s_or_b32 s{d}, s{d}, s{t}")
        else: I(f"s_mul_i32 s{t}, s{s_}, {p}"); I(f"s_and_b32 s{d}, s{t}, 31")
    def code_prefetch(self, start, end, msk, sp, st):
        I = self.I; lp = self.a.label("PC")
        I(f"s_getpc_b64 s[{sp}:{sp+1}]"); self.a.L(lp)
        if start: I(f"s_sub_u32 s{sp}, s{sp}, {lp}-{start}"); I(f"s_subb_u32 s{sp+1}, s{sp+1}, 0")
        I(f"s_and_b32 s{st}, s{SIDX}, {msk}"); I(f"s_lshl_b32 s{st}, s{st}, 13"); I(f"s_add_u32 s{st}, s{st}, s{SWK}")
        I("v_and_b32 v2, 7, v0"); I(f"v_lshl_add_u32 v2, v2, 7, s{st}"); I(f"v_min_u32 v2, {end}-{start or lp}-4, v2")
        I(f"v_mov_b32 v3, s{sp+1}"); I(f"v_add_co_u32 v2, vcc, s{sp}, v2"); I("v_addc_co_u32 v3, vcc, 0, v3, vcc")
        I("global_load_dword v1, v[2:3], off")
    def barrier(self): self.I("s_barrier")
    def sync_all(self):
        self.I("s_waitcnt vmcnt(0) lgkmcnt(0)"); self.vm.mark_all_done(); self.lg.mark_all_done(); self.barrier()

    def begin(self, kname):
        a = self.a; I = self.I
        a.T(f".globl {kname}\n.p2align 8\n.type {kname},@function"); a.L(kname)
        self.endl = a.label("END")
        if self.o.get("stamp"): I("s_memrealtime s[30:31]")
        if self.o.get("echo"): I("s_memtime s[96:97]" if self.o.get("cyc") else "s_memrealtime s[96:97]")
        I("s_load_dwordx16 s[64:79], s[0:1], 0"); I("s_load_dwordx16 s[80:95], s[0:1], 64")
        I("s_cmp_ge_u32 s2, 256"); I(f"s_cbranch_scc1 {self.endl}")
        I("v_lshrrev_b32 v1, 6, v0"); I("v_and_b32 v0, 63, v0"); I(f"v_readfirstlane_b32 s{SW}, v1")
        I("s_and_b32 s7, s2, 7"); I("s_lshl_b32 s7, s7, 2")
        I(f"s_lshr_b32 s{SIDX}, s2, 3"); I(f"s_lshr_b32 s{SHEAD}, s{SIDX}, 3"); I(f"s_add_u32 s{SHEAD}, s{SHEAD}, s7")
        I(f"s_and_b32 s{SIDX}, s{SIDX}, 7"); I(f"s_lshl_b32 s{SWK}, s{SW}, 10")
        I(f"s_lshl_b32 s{SF}, s{SHEAD}, 3"); I(f"s_add_u32 s{SF}, s{SF}, s{SIDX}")
    def end(self):
        self.a.L(self.endl); self.I("s_endpgm")

    def proj(self):
        a = self.a; I = self.I; vm = self.vm; lg = self.lg
        QA_LDS = 65536
        ACC = {"K": 64, "V": 128, "Q": 64}
        FX = [16, 24]; FW = [192, 32]
        VWA = 4; VSK, VSV, VOX, VOW, VST = 8, 9, 10, 11, 12; VXA = 224; T = 232
        NB = 0; XC = self.o.get("xc", 0)
        ST = [("KV", c) for c in range(NB)] + [("K", c) for c in range(NB, 8)] + [("V", c) for c in range(7, NB - 1, -1)] + [("Q", c) for c in range(8)]
        NS = len(ST); TK = 7; TV = NS - 9; TQ = NS - 8
        I("v_lshrrev_b32 v13, 3, v0"); I(f"s_lshl_b32 s40, s{SW}, 3"); I("v_add_u32 v13, s40, v13"); I("v_lshlrev_b32 v13, 10, v13")
        I(f"s_lshr_b32 s41, s{SW}, 1"); I(f"s_xor_b32 s40, s41, s{SW}"); I("s_and_b32 s40, s40, 1"); I("s_lshl_b32 s40, s40, 2")
        I("v_lshrrev_b32 v14, 4, v0"); I("v_add_u32 v15, s40, v14")
        I("v_and_b32 v3, 7, v0"); I("v_xor_b32 v15, v15, v3"); I(f"v_lshl_add_u32 v{VOX}, v15, 4, v13")
        I(f"s_lshl_b32 s40, s{SW}, 2"); I("v_add_u32 v13, s40, v14"); I("v_lshlrev_b32 v13, 13, v13")
        I("s_and_b32 s41, s41, 1"); I("s_lshl_b32 s41, s41, 3"); I("v_lshl_add_u32 v15, v14, 1, s41"); I("v_and_b32 v3, 15, v0"); I("v_xor_b32 v15, v15, v3")
        I("v_lshl_add_u32 v13, v15, 4, v13"); self.phys(40, SHEAD, 41); I("s_lshl_b32 s40, s40, 8"); I(f"v_add_u32 v{VOW}, s40, v13")
        I(f"v_lshlrev_b32 v{VST}, 4, v0")
        I(f"s_lshl_b32 s44, s{SIDX}, 18")
        for i in range(1, 4): I(f"s_add_u32 s{44+i}, s44, {65536*i}")
        ROT = self.o.get("rot", 2)
        if ROT == 0: I("s_mov_b32 s33, 0")
        elif ROT == 1: I(f"s_mov_b32 s33, s{SIDX}")
        elif ROT == 2: I(f"s_lshr_b32 s33, s{SHEAD}, 2"); I(f"s_add_u32 s33, s33, s{SIDX}")
        elif ROT == 3: I(f"s_lshr_b32 s33, s{SHEAD}, 2"); I(f"s_add_u32 s33, s33, s{SIDX}"); I(f"s_lshl_b32 s34, s{SHEAD}, 1"); I("s_add_u32 s33, s33, s34")
        elif ROT == 4: I(f"s_lshr_b32 s33, s{SHEAD}, 2")
        if self.o.get("rotq"): I(f"s_lshl_b32 s32, s{SHEAD}, 1"); I("s_add_u32 s32, s32, s33")
        else: I("s_mov_b32 s32, s33")
        I("s_waitcnt lgkmcnt(0)")
        if self.o.get("stamp"): I("s_memrealtime s[28:29]")
        self.srd(RA, "ckv", 2*MB); self.srd(RB, "wuk", 4*MB); self.srd(RC, "wuv", 4*MB)
        def xbase(t):
            k, c = ST[t]
            return (32768, 131072, 0)[((16 + c) if k == "Q" else (15 - c + NB)) % 3]
        units = [(t, m) for t in range(NS) for m in ST[t][0]]
        uidx = {u: i for i, u in enumerate(units)}
        def wbase(t, m): return 65536 + (uidx[(t, m)] % 4)*16384
        WE = self.o.get("wearly", 2)
        def wn(t): return t - 1 if t >= WE else t
        items = []
        lastx = {}
        for t in range(NS):
            k, c = ST[t]
            for m in k:
                u = uidx[(t, m)]
                def w(i, t=t, m=m, c=c):
                    if i == 0: I(f"s_add_u32 s34, s{32 if m == 'Q' else 33}, {c}"); I("s_and_b32 s34, s34, 7"); I("s_lshl_b32 s34, s34, 19")
                    I(f"s_add_u32 m0, s{SWK}, {wbase(t, m) + i*8192}"); I(f"s_add_u32 s41, s34, {i*262144}")
                    r = {"K": RB, "V": RC, "Q": RE}[m]
                    if self.o.get("nodma") and t > 4: dtok[wn(t)] = vm.issued; return
                    I(f"buffer_load_dwordx4 v{VOW}, s[{r}:{r+3}], s41 offen lds"); dtok[wn(t)] = vm.issue()
                items.append((wn(t), wn(units[u-4][0]) if u >= 4 else -1, [lambda i=i, w=w: w(i) for i in range(2)]))
            key = ("Q" if k == "Q" else "C", c); prev = lastx.get(xbase(t))
            if prev is None or prev[1] != key:
                def x(i, t=t, k=k, c=c):
                    if i == 0: I(f"s_add_u32 s35, s{32 if k == 'Q' else 33}, {c}"); I("s_and_b32 s35, s35, 7"); I("s_lshl_b32 s35, s35, 7")
                    I(f"s_add_u32 m0, s{SWK}, {xbase(t) + i*8192}"); I(f"s_add_u32 s41, s{(48 if k == 'Q' else 44)+i}, s35")
                    r = (RWS if XC else RD) if k == "Q" else RA
                    if self.o.get("nodma") and t > 4: dtok[t] = vm.issued; return
                    I(f"buffer_load_dwordx4 v{VOX}, s[{r}:{r+3}], s41 offen{self.ld if (XC and k == 'Q') else ''} lds"); dtok[t] = vm.issue()
                items.append((t, prev[0] if prev else -1, [lambda i=i, x=x: x(i) for i in range(4)]))
            lastx[xbase(t)] = (t, key)
        items.sort(key=lambda it: it[0])
        dtok = {}
        def take(done, upto=99):
            out = []
            for it in list(items):
                if it[1] <= done and it[0] <= upto: out += it[2]; items.remove(it)
            return out
        for f in take(-1, 0): f()
        self.srd(RWS, "ws", WS_SIZE); self.srd(RDBG, "dbg", 256)
        if self.o.get("wsoff"): I(f"s_add_u32 s{RWS}, s{RWS}, {self.o['wsoff']*MB}"); I(f"s_addc_u32 s{RWS+1}, s{RWS+1}, 0")
        self.stamp(31)
        if self.o.get("stamp"):
            I("v_mov_b32 v2, s30"); I("s_sub_u32 s98, s98, 124"); I(f"buffer_store_dword v2, v3, s[{RWS}:{RWS+3}], s98 offen")
            I("v_mov_b32 v2, s28"); I(f"buffer_store_dword v2, v3, s[{RWS}:{RWS+3}], s98 offen offset:120")
        I(f"s_lshl_b32 s48, s{SIDX}, 17"); I("s_add_u32 s49, s48, 65536")
        I(f"s_sub_u32 s50, 15, s{SIDX}"); I("s_lshl_b32 s50, s50, 17"); I("s_add_u32 s51, s50, 65536")
        if XC:
            for i in range(4): I(f"s_add_u32 s{48+i}, s{48+i}, {XC_OFF}")
        I(f"s_and_b32 s42, s{SW}, 3"); I("s_lshl_b32 s42, s42, 6"); I(f"s_lshr_b32 s43, s{SW}, 2"); I("s_lshl_b32 s43, s43, 1")
        I("v_and_b32 v13, 15, v0"); I("v_lshrrev_b32 v15, 4, v0")
        I("v_lshrrev_b32 v14, 1, v13"); I("v_xor_b32 v14, v14, v15"); I("v_lshlrev_b32 v14, 4, v14")
        I("v_add_u32 v3, s42, v13"); I(f"v_lshl_add_u32 v{VXA}, v3, 7, v14")
        I("v_and_b32 v2, 8, v13"); I("v_add_u32 v3, v3, v2"); I(f"v_lshl_add_u32 v{VXA+4}, v3, 7, v14")
        for pt in range(2):
            b = VXA + 4*pt
            I(f"v_xor_b32 v{b+1}, 64, v{b}"); I(f"v_add_u32 v{b+2}, 0x20000, v{b}"); I(f"v_add_u32 v{b+3}, 0x20000, v{b+1}")
        I("v_lshlrev_b32 v3, 4, v13"); I("v_and_b32 v2, 1, v15"); I("v_lshl_add_u32 v3, v2, 9, v3"); I("v_lshrrev_b32 v14, 1, v15")
        I("v_lshlrev_b32 v3, 4, v13"); I(f"v_lshl_add_u32 v{VSK}, v15, {self.GSH}, v3")
        I("v_bfe_u32 v13, v0, 2, 2"); I("v_lshl_add_u32 v14, v15, 3, v13"); I("v_lshlrev_b32 v14, 8, v14")
        I("v_and_b32 v3, 3, v0"); I("v_lshl_add_u32 v14, v3, 3, v14"); I("v_add_u32 v14, 0x10000, v14")
        I("v_lshl_add_u32 v13, v2, 2, v13"); I("s_lshl_b32 s40, s43, 1"); I("v_xor_b32 v13, s40, v13"); I(f"v_lshl_add_u32 v{VWA}, v13, 5, v14")
        for dt in range(1, 4): I(f"v_xor_b32 v{VWA+dt}, {dt << 5}, v{VWA}")
        I(f"s_lshl_b32 s54, s{SHEAD}, 4"); I(f"s_lshl_b32 s55, s{SIDX}, 1"); I("s_add_u32 s54, s54, s55")
        I(f"s_bfe_u32 s55, s{SW}, 0x10001"); I("s_add_u32 s54, s54, s55"); I("s_lshl_b32 s54, s54, 16")
        I(f"s_and_b32 s55, s{SW}, 1"); I("s_lshl_b32 s55, s55, 14"); I("s_add_u32 s54, s54, s55")
        I(f"s_lshl_b32 s55, s43, {self.FSH+1}"); I("s_add_u32 s52, s54, s55"); I("s_add_u32 s52, s52, 0x8000")
        I(f"s_lshl_b32 s55, s43, {self.FSH}"); I("s_add_u32 s54, s54, s55")
        XG = T; GW = T + 4; hl = {}
        def gate_loads():
            L = []
            def E(t): L.append(lambda: I(t))
            def V(t):
                def f(): I(t); hl["t"] = vm.issue()
                L.append(f)
            E(f"s_lshl_b32 s40, s{SHEAD}, 7"); E(f"s_lshl_b32 s39, s{SIDX}, 2"); E("s_add_u32 s40, s40, s39"); E(f"s_add_u32 s40, s40, {FK_OFF}")
            E(f"s_lshl_b32 s39, s{SF}, 7"); E(f"s_add_u32 s39, s39, {FP_OFF}"); E("v_and_b32 v13, 7, v0"); E("v_lshl_add_u32 v13, v13, 2, s39")
            E("v_writelane_b32 v13, s40, 0")
            E(f"s_lshr_b32 s39, s{SHEAD}, 2"); E("s_lshl_b32 s39, s39, 7"); E(f"s_and_b32 s40, s{SHEAD}, 3"); E("s_lshl_b32 s40, s40, 2"); E("s_add_u32 s39, s39, s40")
            E(f"s_lshl_b32 s40, s{SIDX}, 10"); E("s_add_u32 s40, s40, s39"); E(f"s_add_u32 s40, s40, {FC_OFF}")
            E("v_writelane_b32 v13, s40, 1")
            E(f"s_sub_u32 s40, 15, s{SIDX}"); E("s_lshl_b32 s40, s40, 10"); E("s_add_u32 s40, s40, s39"); E(f"s_add_u32 s40, s40, {FC_OFF}")
            E("v_writelane_b32 v13, s40, 2")
            E(f"s_lshl_b32 s40, s{SF}, 2"); E(f"s_add_u32 s40, s40, {FY_OFF}"); E("v_writelane_b32 v13, s40, 3"); E("v_mov_b32 v14, 0")
            def oo(): self.oob_sel(); I("v_add_u32 v13, s99, v13")
            L.append(oo)
            V(f"buffer_store_dword v14, v13, s[{RWS}:{RWS+3}], 0 offen sc1")
            E("s_lshl_b32 s37, s2, 3"); E(f"s_add_u32 s37, s37, s{SW}"); E("s_lshl_b32 s38, s37, 10")
            L.append(lambda: self.srd(RD, "q", 2*MB)); L.append(lambda: self.srd(RE, "wq", 4*MB)); L.append(lambda: self.srd(RT, "gate", 1024))
            V(f"buffer_load_dwordx4 {v(XG,4)}, v{VST}, s[{RD}:{RD+3}], s38 offen")
            V(f"buffer_load_dwordx4 {v(GW,4)}, v{VST}, s[{RT}:{RT+3}], 0 offen")
            return L
        def gate_ops():
            L = []; E = lambda t: L.append(lambda: I(t)); Z = T + 8
            L.append(lambda: vm.wait(hl["t"]))
            def xs():
                I(f"s_add_u32 s38, s38, {XC_OFF}"); I(f"buffer_store_dwordx4 {v(XG,4)}, v{VST}, s[{RWS}:{RWS+3}], s38 offen{self.st}"); vm.issue()
            if XC: L.append(xs)
            E(f"v_dot2_f32_bf16 v{Z}, v{XG}, v{GW}, 0")
            for i in range(1, 4): E(f"v_dot2_f32_bf16 v{Z}, v{XG+i}, v{GW+i}, v{Z}")
            for m in ("quad_perm:[1,0,3,2] row_mask:0xf", "quad_perm:[2,3,0,1] row_mask:0xf", "row_half_mirror row_mask:0xf", "row_mirror row_mask:0xf",
                      "row_bcast:15 row_mask:0xa", "row_bcast:31 row_mask:0xc"):
                E(f"v_add_f32_dpp v{Z}, v{Z}, v{Z} {m} bank_mask:0xf")
            E(f"v_readlane_b32 s36, v{Z}, 63"); E(f"v_mov_b32 v{Z+1}, {f2u(-LOG2E)}"); E(f"v_mul_f32 v{Z}, s36, v{Z+1}")
            E(f"v_exp_f32 v{Z}, v{Z}"); E(f"v_add_f32 v{Z}, 1.0, v{Z}"); E(f"v_rcp_f32 v{Z}, v{Z}")
            E("s_lshl_b32 s38, s37, 2"); E(f"s_add_u32 s38, s38, {G_OFF}"); E(f"v_mov_b32 v{Z+1}, 0")
            def gs():
                I(f"buffer_store_dword v{Z}, v{Z+1}, s[{RWS}:{RWS+3}], s38 offen{self.st}"); vm.issue()
            L.append(gs)
            return L
        toks = {}
        def rdx(t, mt):
            m = ST[t][0]; xb = xbase(t); pt = 0
            off = (xb & 65535) + ((mt >> 1)*4096 + (mt & 1)*1024 if pt else mt*2048)
            def f(kk):
                va = VXA + 4*pt + 2*(xb >> 17) + (kk ^ (mt & 1))
                I(f"ds_read_b128 {v(FX[mt & 1]+4*kk,4)}, v{va} offset:{off}"); toks[("x", t, mt, kk)] = lg.issue()
            return [lambda: f(0), lambda: f(1)]
        def rdw(t, dt):
            m = ST[t][0]
            def f(kk, h):
                I(f"ds_read_b64_tr_b16 {v(FW[t & 1]+8*dt+4*kk+2*h,2)}, v{VWA+dt} offset:{wbase(t, m)-65536+kk*8192+h*1024}"); toks[("w", t, dt, kk)] = lg.issue()
            return [lambda kk=kk, h=h: f(kk, h) for kk in range(2) for h in range(2)]
        def atile(m, mt, dt): return ACC[m] + (4*(((mt >> 1)*4 + dt)*2 + (mt & 1)) if m == "V" else 4*(mt*4 + dt))
        def mfs(t, mt):
            m = ST[t][0]; first = t == 0 or ST[t-1][0] != m; L = []
            order = [(dt, kk) for dt in range(4) for kk in range(2)] if not self.o.get("nochain") else [(dt, kk) for kk in range(2) for dt in range(4)]
            for dt, kk in order:
                def f(dt=dt, kk=kk):
                    lg.wait(max(toks[("x", t, mt, kk)], toks[("w", t, dt, kk)]))
                    d = v(atile(m, mt, dt), 4); X = v(FX[mt & 1]+4*kk, 4); W = v(FW[t & 1]+8*dt+4*kk, 4)
                    c = "0" if (first and kk == 0) else d
                    I(f"v_mfma_f32_16x16x32_bf16 {d}, {X}, {W}, {c}" if m == "V" else f"v_mfma_f32_16x16x32_bf16 {d}, {W}, {X}, {c}")
                L.append(f)
            return L
        def pieces(m):
            fs = 1024 if m == "Q" else 1 << self.FSH
            if m == "V": return [(atile(m, 2*p, dt), p*8192 + dt*fs) for p in range(2) for dt in range(4)]
            return [(atile(m, mt, 2*j), (mt >> 1)*8192 + ((mt & 1)*4 + j)*fs) for mt in range(4) for j in range(2)]
        def kv_out(m):
            out = []
            for b, off in pieces(m):
                pk = [lambda i=i, b=b: I(f"v_cvt_pk_bf16_f32 v{b+i}, v{b+2*i}, v{b+2*i+1}") for i in range(4)]
                if m == "K": pk = [lambda i=i, b=b: I(f"v_mul_f32 v{b+i}, {f2u(LOG2E / math.sqrt(128.0))}, v{b+i}") for i in range(8)] + pk
                def st(b=b, off=off):
                    if self.o.get("nost"): return
                    I(f"s_add_u32 s41, s{54 if m == 'K' else 52}, {off}")
                    I(f"buffer_store_dwordx4 {v(b,4)}, v{VSK}, s[{RWS}:{RWS+3}], s41 offen{self.st}"); vm.issue()
                out.append((pk, st))
            return out
        side = {}; late = {}
        def spread(ops, t0, t1, dst=side, ks=(0, 1, 2)):
            sl = [(t, k) for t in range(t0, t1) for k in ks]; n = len(ops)
            for j, key in enumerate(sl): dst.setdefault(key, []).extend(ops[n*j//len(sl): n*(j+1)//len(sl)])
        PG = self.o.get("pg", 0)
        spread(gate_loads(), PG, PG + 1); spread(gate_ops(), PG + 2, PG + 3)
        def wtouch(r, half, wv):
            def f():
                I(f"s_cmp_eq_u32 s{SW}, {wv}"); I(f"s_cselect_b32 s99, 0, {self.OOB}")
                self.phys(39, SHEAD, 40); I("s_lshl_b32 s39, s39, 8"); I(f"s_lshl_b32 s40, s{SIDX}, 19"); I("s_add_u32 s40, s40, s39"); I(f"s_add_u32 s40, s40, {half*32*8192}")
                I("v_lshrrev_b32 v3, 1, v0"); I("v_lshlrev_b32 v3, 13, v3"); I("v_and_b32 v2, 1, v0"); I("v_lshl_add_u32 v3, v2, 7, v3"); I("v_add_u32 v3, s99, v3")
                I(f"buffer_load_dword v1, v3, s[{r}:{r+3}], s40 offen"); vm.issue()
            return f
        for nm, r, dflt in (("tk", RB, -1), ("tv", RC, 1), ("tq", RE, 3)):
            t0 = self.o.get(nm, dflt)
            if t0 >= 0:
                for half in range(2): side.setdefault((t0 + half, 2), []).append(wtouch(r, half, half))
        KN = self.o.get("kn", 8); VD = self.o.get("vd", 0); VN = self.o.get("vn", 5)
        KO = kv_out("K"); VO = kv_out("V"); SK = self.o.get("sk", 2); SG_ = self.o.get("sgp", 6)
        spread(sum((p for p, _ in KO), []), TK + 1, min(TK + 3, TQ), ks=(0, 1))
        npk = 2 * (min(TK + 3, TQ) - TK - 1)
        spread([s_ for _, s_ in KO], TK + 1, TK + 1 + KN, dst=late, ks=(SK,))
        spread(sum((p for p, _ in VO), []), TQ, TQ + 1, ks=(0, 1))
        spread([s_ for _, s_ in VO], TQ + VD, TQ + VD + VN, dst=late, ks=(SK,))
        PK_, PV_ = TK + KN + 2, TQ + VD + VN
        assert PK_ <= NS - 5 and PV_ <= NS - 2
        QE = []; EQ = lambda t: QE.append(lambda: I(t))
        EQ(f"s_and_b32 s55, s{SW}, 2"); EQ("s_lshl_b32 s55, s55, 15"); EQ(f"s_add_u32 s55, s55, {QA_LDS}")
        EQ(f"s_and_b32 s54, s{SW}, 1"); EQ("s_lshl_b32 s54, s54, 14"); EQ("s_add_u32 s55, s55, s54")
        EQ("s_lshl_b32 s54, s43, 10"); EQ("s_add_u32 s55, s55, s54"); EQ(f"v_add_u32 v14, s55, v{VST}")
        if self.o.get("ct2", 21) >= 0: side.setdefault((self.o.get("ct2", 21), 1), []).append(lambda: (self.code_prefetch(None, "HOT_END", 7, 36, 40), vm.issue()))
        spread(QE, NS - 1, NS)
        spread([lambda: self.srd(RB, "ssmk", 2*MB), lambda: self.srd(RA, "k", 2*MB), lambda: self.srd(RC, "v", 2*MB), lambda: self.srd(RD, "shift", 4096), lambda: self.srd(RE, "wo", 4*MB)], NS - 2, NS - 1)
        spread([lambda r=r: I(f"v_mov_b64 {v(192+2*r,2)}, 0") for r in range(32) if not 16 <= r < 20], NS - 1, NS)
        side.setdefault((NS - 1, 3), []).extend([lambda r=r: I(f"v_mov_b64 {v(192+2*r,2)}, 0") for r in range(16, 20)])
        def fkoff():
            I(f"s_lshl_b32 s40, s{SHEAD}, 7"); I(f"s_lshl_b32 s41, s{SIDX}, 2"); I("s_add_u32 s40, s40, s41"); I(f"s_add_u32 s40, s40, {FK_OFF}")
        def w0only(fn):
            l = a.label("NP"); I(f"s_cmp_lg_u32 s{SW}, 0"); I(f"s_cbranch_scc1 {l}"); fn(); a.L(l)
        def k0(i):
            I(f"s_lshl_b32 s40, s{SW}, 12"); I("s_add_u32 m0, s40, 0x8000")
            I(f"s_lshl_b32 s41, s{SHEAD}, 20"); I("s_add_u32 s41, s41, s40")
            I(f"buffer_load_dwordx4 v{VST}, s[{RWS}:{RWS+3}], s41 offen offset:{1024*i}{self.ld} lds"); vm.issue()
        self.barrier()
        for f in take(-1, 1): f()
        vm.wait(dtok[0]); self.barrier()
        self.stamp(1)
        def first_reads(t):
            x = rdx(t, 0); w = [rdw(t, dt) for dt in range(4)]
            return [x[0]] + w[0][:2] + [x[1]] + w[0][2:] + w[1], w[2] + w[3]
        L, rest = first_reads(0)
        for f in L: f()
        VPK = self.o.get("vpk", 2); mark = {}; TZ = PG + 4; TS = 10; DS = self.o.get("dsteps", 3)
        pend = take(-1)
        for t in range(NS):
            for k in range(4):
                M = mfs(t, k); n = len(M); PB = []
                if k == 3 and t < NS - 1:
                    assert not pend
                    if t == TS + 2: vm.wait(td); w0only(lambda: self.poll_check(14, 13, "0", rep4(1), RDBG))
                    if t == NS - 3: vm.wait(tp); w0only(lambda: self.poll_check(15, 13, "s53", 1))
                    lg.wait(lg.issued)
                    if not (self.o.get("nowait") and t > 4): vm.wait(dtok.get(t+1, 0))
                    if t == TZ: vm.wait(mark[TZ-2])
                    if t == PK_: vm.wait(mark[TK + KN])
                    if t == PV_: vm.wait(mark[PV_ - 1])
                    self.barrier()
                    ps = self.o.get("pstamp")
                    if ps is not None and 0 <= t - int(ps) + 1 < 13: self.stamp(17 + t - int(ps) + 1); vm.issue(2)
                    if TZ <= t < TZ + 4: PB.append(lambda t=t: self.publish(SF, 1, RDBG, True, idx=t - TZ))
                    if t == PK_: PB.append(lambda: (fkoff(), self.publish(40, 1)))
                    if t == PV_: PB.append(lambda: (fkoff(), self.publish(40, 3)))
                    pend = take(t)
                    if t == NS - 3: pend += [lambda i=i: k0(i) for i in range(4)]
                    nd = len(pend) // (DS + 1)
                else:
                    nd = -(-len(pend) // max(1, (3 if t == 0 else DS) - k))
                D, pend = pend[:nd], pend[nd:]
                fl = []
                if not (t == NS - 1 and k == 3):
                    if k == 3:
                        if t + 1 >= WE: fl.append((0, 2, rdx(t+1, 0))); rest = []
                        else:
                            L, rest = first_reads(t+1); nr = self.o.get("nr", 4)
                            fl.append((0, 7, L + rest[:nr])); rest = rest[nr:]
                    else:
                        if k == 0 and rest: fl.append((-1, 2, rest))
                        fl.append((0, 2, rdx(t, k+1)) if not (k == 0 and rest) else (2, 4, rdx(t, k+1)))
                        if WE <= t + 1 < NS:
                            wr = sum((rdw(t+1, dt) for dt in range(4)), [])
                            fl.append((2, 8 if k < 2 else 6, wr[(0, 6, 12)[k]:(6, 12, 16)[k]]))
                if PB: fl.append((1, 2, PB))
                if D: fl.append((0, n, D))
                if side.get((t, k)): fl.append((0, n, side[(t, k)]))
                if late.get((t, k)): fl.append((SG_, min(n, SG_ + 4), late[(t, k)]))
                self.stream(M, fl)
                if k == 2: mark[t] = vm.issued
                if t == TS and k == 0:
                    self.oob_sel(); I("v_lshl_add_u32 v13, v0, 2, s99"); td = self.poll_issue(14, 13, "0", RDBG)
                if t == NS - 4 and k == 0:
                    self.oob_sel(); I("v_and_b32 v13, 7, v0"); I("v_lshl_add_u32 v13, v13, 2, s99")
                    I(f"s_lshl_b32 s53, s{SHEAD}, 7"); I(f"s_add_u32 s53, s53, {FK_OFF}")
                    tp = self.poll_issue(15, 13, "s53")
                if t == NS - 1 and k == VPK: self.poll_issue(15, 13, "s53")
            if t == TK: self.stamp(2)
            if t == TV: self.stamp(13)
        assert not items
        self.stamp(3)
        I("v_mov_b32 v16, v13")
        if VPK > 3: self.poll_issue(15, 13, "s53")
        for b, off in pieces("Q"):
            for i in range(4): I(f"v_cvt_pk_bf16_f32 v{b+i}, v{b+2*i}, v{b+2*i+1}")
            I(f"ds_write_b128 v14, {v(b,4)} offset:{off}"); lg.issue()
        self.attn_setup()
        vm.wait(vm.issued); w0only(lambda: self.poll_check(15, 16, "s53", 3))
        lg.wait(lg.issued); self.barrier()

    def attn_setup(self): self.attn(True)
    def attn(self, setup=False):
        a = self.a; I = self.I; vm = self.vm; lg = self.lg
        M16 = "v_mfma_f32_16x16x32_bf16"
        ML = 155648; QA_LDS = 65536; QB_LDS = 131072
        O = 192; QF = 160; NM = 144; S = [112, 128]; PP = [96, 104]; RING = 64; NR = 8; E = 56; PK = 16
        VK, VV, VL16, VSC, LM, THR, NINF, VQ, TMP = 4, 5, 6, 7, 8, 9, 10, 11, 12
        LS, ONES, BIAS = 152, 60, 11.0
        SR, SG, SC1, SC2, SKO, SVO, SKM, SVM, STH = 32, 33, 34, 35, 36, 37, 38, 39, 42
        SFIN, SCA, SM1 = 55, 59, 58
        DC = self.o.get("dmacost", 16); WEV = self.o.get("wev", 4)
        if setup:
            I(f"s_lshr_b32 s{SG}, s{SW}, 2"); I(f"s_and_b32 s{SR}, s{SW}, 3")
            I(f"v_lshlrev_b32 v{VL16}, 4, v0")
            I(f"s_lshl_b32 s44, s{SR}, 12"); I(f"s_add_u32 s44, s44, {QB_LDS}"); I(f"v_add_u32 v{VQ}, s44, v{VL16}")
            I(f"s_lshl_b32 s45, s{SG}, 16"); I(f"v_subrev_u32 v{TMP+1}, s45, v{VQ}"); I(f"v_xor_b32 v{LM}, 0x7000, v{TMP+1}")
            I(f"s_mov_b32 s{SC1}, s{SIDX}")
            I(f"s_lshl_b32 s{SC2}, s{SIDX}, 1"); I(f"s_sub_u32 s{SC2}, 14, s{SC2}")
            I(f"s_cmp_eq_u32 s{SG}, 1"); I(f"s_cselect_b32 s{SM1}, 0, -1")
            I(f"s_lshl_b32 s43, s{SW}, 12"); I(f"s_lshl_b32 s{SVO}, s{SHEAD}, 20"); I(f"s_add_u32 s{SVO}, s{SVO}, s43")
            I(f"s_add_u32 s{SKO}, s{SVO}, 0x10000"); I(f"s_add_u32 s{SVO}, s{SVO}, 0x8000")
            I(f"s_mov_b32 s{SKM}, s43"); I(f"s_add_u32 s{SVM}, s43, 0x18000")
            I(f"s_mov_b32 s{STH}, 0x40004000"); I(f"v_mov_b32 v{NINF}, 0xff800000")
            for r in range(4): I(f"v_mov_b32 v{ONES+r}, 0x3f803f80"); I(f"v_mov_b64 {v(LS+2*r,2)}, 0")
            I(f"v_and_b32 v{THR}, 15, v0"); I(f"v_lshrrev_b32 v{TMP}, 4, v0"); I(f"v_lshlrev_b32 v{TMP}, 2, v{TMP}"); I(f"v_sub_u32 v{THR}, v{THR}, v{TMP}")
            I(f"s_lshl_b32 s44, s{SR}, 4"); I("s_sub_u32 s45, 112, s44"); I(f"v_add_u32 v{VSC}, s45, v{THR}"); I(f"v_add_u32 v{THR}, s44, v{THR}")
            I(f"v_and_b32 v{VK}, 15, v0"); I(f"v_lshlrev_b32 v{VK}, 4, v{VK}"); I(f"v_lshrrev_b32 v{TMP}, 4, v0"); I(f"v_lshl_add_u32 v{VK}, v{TMP}, {self.GSH}, v{VK}"); I(f"v_add_u32 v{VK}, 0x8000, v{VK}")
            I(f"s_lshr_b32 s44, s{SR}, 1"); I("s_lshl_b32 s44, s44, 18"); I(f"s_and_b32 s45, s{SR}, 1"); I("s_lshl_b32 s45, s45, 10"); I("s_add_u32 s44, s44, s45")
            I(f"s_lshl_b32 s45, s{SHEAD}, 13"); I("s_add_u32 s43, s44, s45"); I(f"s_add_u32 s43, s43, {CTX_OFF}")
            I(f"s_lshl_b32 s{SCA}, s{SIDX}, 20"); I(f"s_add_u32 s{SCA}, s{SCA}, s43")
            I(f"s_mov_b32 s{SFIN}, 0")
            I(f"s_lshr_b32 s56, s{SF}, 6"); I("s_lshl_b32 s56, s56, 2"); I(f"s_bfe_u32 s44, s{SF}, 0x20003"); I("s_add_u32 s56, s56, s44"); I("s_lshl_b32 s56, s56, 1")
            I(f"s_bfe_u32 s44, s{SF}, 0x10005"); I("s_add_u32 s56, s56, s44"); I(f"s_and_b32 s57, s{SF}, 7")
            I("s_mov_b32 s41, 0")
            CL = self.o.get("cl", 8)
            I(f"s_lshr_b32 s40, {1 << (CL+2)}, s{SG}"); I(f"s_or_b32 s40, s40, {1 << CL}")
            TO = self.o.get("to", 0)
            I(f"s_lshl_b32 s44, {2 << TO}, s{SW}"); I(f"s_and_b32 s44, s44, {self.o.get('tm', 30) << TO}"); I("s_or_b32 s40, s40, s44")
            I(f"s_cmp_eq_u32 s{SW}, 0"); I(f"s_cselect_b32 s44, {(1 << (5 + TO)) | (1 << (CL+4))}, 0"); I("s_or_b32 s40, s40, s44")
            if not self.o.get("noprio"):
                l = a.label("PR"); I(f"s_cmp_eq_u32 s{SG}, 1"); I(f"s_cbranch_scc0 {l}"); I("s_setprio 1"); a.L(l)
            return
        op = lambda t, c=4: (lambda: I(t), c)
        nop = lambda: None
        def loadq(va):
            I(f"v_xor_b32 v{TMP}, 0x7000, v{va}")
            for ds in range(8):
                I(f"ds_read_b128 {v(QF+4*ds,4)}, v{va if ds < 4 else TMP} offset:{1024*(ds&3)}"); lg.issue()
        def dma4(kind):
            sm, so = (SKM, SKO) if kind == "k" else (SVM, SVO)
            def d(i):
                def f():
                    if i == 0: I(f"s_mov_b32 m0, s{sm}"); I(f"s_xor_b32 s{sm}, s{sm}, 0x8000")
                    I(f"buffer_load_dwordx4 v{VL16}, s[{RWS}:{RWS+3}], s{so} offen offset:{1024*i}{self.ld} lds")
                    if i == 3: I(f"s_add_u32 s{so}, s{so}, 0x10000")
                return (f, DC + (8 if i == 0 else 4 if i == 3 else 0))
            return [d(i) for i in range(4)]
        self.ring_n = 0
        def rd(kind, sl, idx):
            h = {}
            def f():
                slot = self.ring_n % NR; self.ring_n += 1
                h["reg"] = RING + 4*slot
                I(f"ds_read_b128 {v(h['reg'],4)}, v{VK if kind == 'k' else VV} offset:{sl*8192+(idx << self.FSH)}"); h["tok"] = lg.issue()
            return f, h
        def wait_for(R, i):
            if R[i][1]["tok"] <= lg.done: return
            j = i
            while j + 1 < len(R) and j + 1 < i + WEV and "tok" in R[j+1][1] and R[j+1][1]["tok"] > R[i][1]["tok"]: j += 1
            lg.wait(R[j][1]["tok"])
        def otile(dt, qt): return O + 16*(dt >> 1) + 8*qt + 4*(dt & 1)
        def qk(sb, R, base, czero=False, half=False):
            def f(m):
                kt, qt, dd = m >> 3, (m >> 2) & 1, m & 3; i = base + 4*kt + dd
                wait_for(R, i); d = v(S[sb] + 8*qt + 4*kt, 4)
                c = ("0" if czero else v(NM + 4*qt, 4)) if dd == 0 else d
                I(f"{M16} {d}, {v(R[i][1]['reg'],4)}, {v(QF + 16*qt + 4*dd, 4)}, {c}")
            return [(lambda m=m: f(m)) if not (half and not m & 4) else nop for m in range(16)]
        def pv1(pb, dt, qt, reg): I(f"{M16} {v(otile(dt, qt),4)}, {v(reg,4)}, {v(PP[pb]+4*qt,4)}, {v(otile(dt, qt),4)}")
        def pv(pb, R, base, dts=range(8), exact=False, half=False):
            def f(dt, qt):
                if exact: lg.wait(R[base+dt][1]["tok"])
                else: wait_for(R, base + dt)
                pv1(pb, dt, qt, R[base+dt][1]["reg"])
            ls = [lambda qt=qt: I(f"{M16} {v(LS+4*qt,4)}, {v(ONES,4)}, {v(PP[pb]+4*qt,4)}, {v(LS+4*qt,4)}") for qt in range(2)]
            L = ls + [lambda dt=dt, qt=qt: f(dt, qt) for dt in dts for qt in range(2)]
            return [nop if half and not n & 1 else x for n, x in enumerate(L)]
        def sm_ops(sb):
            ex = lambda i: op(f"v_exp_f32 v{E+(i&3)}, v{S[sb]+i}", 8)
            cv = lambda j: op(f"v_cvt_pk_bf16_f32 v{PP[sb]+j}, v{E+((2*j)&3)}, v{E+((2*j+1)&3)}")
            p = PP[sb]; L = [ex(0), ex(1)]
            ors = {2: f"v_or3_b32 v{LM}, v{p}, v{p+1}, v{p+2}", 4: f"v_or3_b32 v{LM}, v{LM}, v{p+3}, v{p+4}", 6: f"v_or3_b32 v{LM}, v{LM}, v{p+5}, v{p+6}"}
            for j in range(8):
                L += [ex(2*j+2), cv(j), ex(2*j+3)] if j < 7 else [op("s_nop 0"), cv(j)]
                if j in ors: L.append(op(ors[j]))
            L = [x for i, x in enumerate(L) if i != len(L) - 2]
            L += [op(f"v_or_b32 v{LM}, v{LM}, v{p+7}"), op(f"v_and_b32 v{LM}, s{STH}, v{LM}")]
            return L
        def sm_half(sb):
            ex = lambda i: op(f"v_exp_f32 v{E+(i&3)}, v{S[sb]+i}", 8)
            cv = lambda j: op(f"v_cvt_pk_bf16_f32 v{PP[sb]+j}, v{E+((2*j)&3)}, v{E+((2*j+1)&3)}")
            p = PP[sb]
            return [ex(8), ex(9), ex(10), cv(4), ex(11), ex(12), cv(5), ex(13), ex(14), cv(6), ex(15), op(f"v_or3_b32 v{LM}, v{p+4}, v{p+5}, v{p+6}"), cv(7),
                    op(f"v_or_b32 v{LM}, v{LM}, v{p+7}"), op(f"v_and_b32 v{LM}, s{STH}, v{LM}")]
        SPH = 9
        def sched(M, fixed, chain):
            n = len(M); fc = [sum(c for _, c in fixed.get(g, [])) for g in range(n)]
            tot = sum(c for _, c in chain); lo, hi = 0.0, 4000.0
            for _ in range(40):
                lev = (lo + hi) / 2
                if sum(max(0, lev - f) for f in fc) >= tot: hi = lev
                else: lo = lev
            k = 0; credit = 0.0
            for g in range(n):
                M[g]()
                for c, _ in fixed.get(g, []): c()
                credit += max(0, hi - fc[g])
                while k < len(chain) and (g == n - 1 or chain[k][1] <= credit + 2):
                    chain[k][0](); credit -= chain[k][1]; k += 1
        def put(fixed, g, items): fixed.setdefault(g, []).extend(items)
        SPL = self.o.get("spl", 18)
        ool = []
        def rarely(cmp_, body):
            lo = a.label("OOL"); lb = a.label("RET")
            I(cmp_); I(f"s_cbranch_scc1 {lo}"); a.L(lb)
            ool.append((lo, lb, body))
        def mask_ops(sb, koff, half=False):
            prs = [46, 48, 50, 52]; L = []
            for qt in range(2):
                if half and qt == 0:
                    L += [op(f"v_mov_b32 v{S[sb]+r}, v{NINF}") for r in range(8)]; continue
                tr = (THR, VSC)[qt]; ko = koff
                if ko >= 32: L.append(op(f"v_subrev_u32 v{TMP+3}, {ko}, v{tr}" if ko <= 64 else f"v_subrev_u32 v{TMP+3}, 0x{ko:x}, v{tr}")); tr = TMP + 3; ko = 0
                for kt in range(2):
                    r0 = 8*qt + 4*kt
                    for r in range(4): L.append(op(f"v_cmp_lt_i32 s[{prs[r]}:{prs[r]+1}], v{tr}, {16*kt + r + ko}"))
                    for r in range(4): L.append(op(f"v_cndmask_b32 v{S[sb]+r0+r}, v{S[sb]+r0+r}, v{NINF}, s[{prs[r]}:{prs[r]+1}]"))
            return L
        def mask_body(sb, koff, half=False):
            for c, _ in mask_ops(sb, koff, half): c()
        def xred(x, y, t0, t1, o):
            L = []
            for sw in ("v_permlane16_swap_b32", "v_permlane32_swap_b32"):
                L += [op(f"v_mov_b32 v{t0}, v{x}"), op(f"v_mov_b32 v{t1}, v{y}"), op("s_nop 0"), op(f"{sw} v{t0}, v{x}"), op(f"{sw} v{t1}, v{y}"),
                      op(f"{o} v{x}, v{x}, v{t0}"), op(f"{o} v{y}, v{y}, v{t1}")]
            return L
        def rowmax(sb):
            for qt in range(2):
                b = S[sb] + 8*qt; d = TMP + qt
                I(f"v_max3_f32 v{d}, v{b}, v{b+1}, v{b+2}"); I(f"v_max3_f32 v{d}, v{d}, v{b+3}, v{b+4}"); I(f"v_max3_f32 v{d}, v{d}, v{b+5}, v{b+6}"); I(f"v_max_f32 v{d}, v{d}, v{b+7}")
            for c, _ in xred(TMP, TMP+1, TMP+2, TMP+3, "v_max_f32"): c()
        def init_max():
            rowmax(0)
            for qt in range(2): I(f"v_max_f32 v{TMP+qt}, {f2u(-1e30)}, v{TMP+qt}"); I(f"v_add_f32 v{TMP+qt}, {f2u(BIAS)}, v{TMP+qt}")
            for r in range(8): I(f"v_sub_f32 v{NM+r}, 0, v{TMP+(r>>2)}")
            return [op(f"v_sub_f32 v{S[0]+r}, v{S[0]+r}, v{TMP+(r>>3)}") for r in range(16)]
        rare = []
        def check(sb, other=True):
            lr = a.label("RARE"); lb = a.label("BACK")
            I(f"v_cmp_ne_u32 vcc, 0, v{LM}")
            if self.o.get("a_nocheck"): I("s_mov_b64 vcc, 0")
            I(f"s_cbranch_vccnz {lr}"); a.L(lb)
            rare.append((lr, lb, sb, other))
        def fin_body():
            I(f"s_mov_b32 s{SFIN}, 2")
            I(f"v_rcp_f32 v{TMP}, v{LS}"); I(f"v_rcp_f32 v{TMP+2}, v{LS+4}"); I(f"v_mov_b32 v{TMP+1}, v{TMP}"); I(f"v_mov_b32 v{TMP+3}, v{TMP+2}")
            for r in range(4): I(f"v_mov_b64 {v(LS+2*r,2)}, 0")
            for q in range(8):
                for i in range(8*q, 8*q+8, 2): I(f"v_pk_mul_f32 {v(O+i,2)}, {v(O+i,2)}, {v(TMP+2*(q&1),2)}")
                for i in range(4): I(f"v_cvt_pk_bf16_f32 v{PK+4*q+i}, v{O+8*q+2*i}, v{O+8*q+2*i+1}")
                for i in range(8*q, 8*q+8, 2): I(f"v_mov_b64 {v(O+i,2)}, 0")
        TX = 0xc0400
        def st_body():
            I(f"s_xor_b32 s45, s{SCA}, {TX}"); I(f"s_mov_b32 s44, s{SCA}"); I(f"s_mov_b32 s{SFIN}, 3")
            for q in range(8):
                if q == 4: I("s_add_u32 s44, s44, 4096"); I("s_add_u32 s45, s45, 4096")
                I(f"buffer_store_dwordx4 {v(PK+4*q,4)}, v{VL16}, s[{RWS}:{RWS+3}], s{44+(q&1)} offen offset:{((q>>1)&1)*2048}{self.st}")
        TR = [RING + 4*(2+i) for i in range(6)]
        def head(R, vmw, with_mfma=True, post=(), more=(), pre=None, hs=False):
            rf = [(f, 4) for f, h in R]; sm2 = sm_half(0)[SPH:] if hs else sm_ops(0)[SPL:]
            M = [lambda dt=dt, qt=qt: pv1(1, dt, qt, TR[dt-2]) for dt in range(2, 8) for qt in range(2)] if with_mfma else [nop]*12
            if with_mfma: I("s_waitcnt lgkmcnt(4)")
            nb = self.o.get("nb", 4); more = list(more); m0 = len(more) // 3
            if pre is not None: more = list(pre) + more; m0 = len(pre)
            sched(M[:4], {}, sm2[:nb] + more[:m0])
            vmw(); I("s_waitcnt lgkmcnt(0)"); lg.mark_all_done(); self.barrier(); self.ring_n = 0
            fx = {0: rf[0:2], 1: rf[2:4], 2: rf[4:5], 4: rf[5:6], 6: rf[6:7], 7: [(nop, 8 + 8*len(post))]}
            sched(M[4:], fx, sm2[nb:] + more[m0:])
            check(0)
            for p in post: p()
        def mk_reads():
            return ([rd("k", 0, i) for i in range(8)] + [rd("v", 0, i) for i in range(8)] +
                    [rd("k", 1, i) for i in range(8)] + [rd("v", 1, i) for i in range(8)])
        def last_use(F):
            b = (0, 18, 34, 52)[F >> 3]; f = F & 7
            return b + (2*f + 1 if (F >> 3) & 1 else 8*(f >> 2) + 4 + (f & 3))
        def mid(R, dmas, kx, mb=None, trans=False, endops=(), early=(), g=0, hq=False, hp=False):
            rf = [(f, 4) for f, h in R]
            fa = {0: [rf[7]]}; fb = {}
            G_ = g
            for g, e in zip((1, 3, 9, 11), early): put(fa, g, [e])
            for F in range(8, 32):
                g = last_use(F - 8) + 1
                put(fa, g, [rf[F]]) if g < 34 else put(fb, g - 34, [rf[F]])
            D = sum((dma4(k) for k in dmas), [])
            st_ = self.o.get("gst", 4); of_ = self.o.get("gof", 2)
            gaps = [2 + of_*G_*2 + 2*st_*n for n in range(4)] if len(D) == 4 else [2 + of_*G_ + st_*n for n in range(8)]
            for g, d in zip(gaps, D): put(fa, g, [d]) if g < 33 else put(fb, g - 33, [d])
            PT = self.o.get("pt", 0)
            if PT and G_ == 0:
                pts = {1: [(0, 24, 2), (1, 21, 0)], 2: [(0, 8, 2), (0, 24, 0), (1, 7, 2), (1, 21, 0)], 3: [(0, 0, 2), (0, 8, 0), (0, 16, 2), (0, 24, 0), (0, 32, 2), (1, 7, 0), (1, 15, 2), (1, 21, 0)],
                       4: [(0, 16, 2), (1, 21, 0)], 5: [(0, 32, 2), (1, 21, 0)]}[PT]
                for part, g, p in pts: put(fb if part else fa, g, [op(f"s_setprio {p}")])
            put(fa, 33, [(nop, 16)])
            zp = [op(f"v_mov_b64 {v(PP[1]+2*r,2)}, 0") for r in range(2)]
            sched(qk(0, R, 0, trans, hq) + pv(0, R, 8, half=hp), fa, zp + sm_half(1) if hp else sm_ops(1))
            check(1, other=not trans)
            if mb: mb()
            pre = []
            if trans:
                I(f"s_mov_b32 s{SFIN}, 1")
                pre = init_max()
            put(fb, 18, [op(f"v_xor_b32 v{VV}, 0x10000, v{VK}")] + kx)
            for n, e in enumerate(endops): put(fb, 11 - n, [e])
            put(fb, 21, [(nop, 12)])
            sched(qk(1, R, 16, half=hq) + pv(1, R, 24, range(2), half=hp), fb, pre + (sm_half(0)[:SPH] if hq else sm_ops(0)[:SPL]))
            assert [R[26+i][1]["reg"] for i in range(6)] == TR
        vm4 = lambda: I("s_waitcnt vmcnt(4)")
        def vm08():
            lo = a.label("W8"); lb = a.label("W8R")
            I(f"s_cmp_eq_u32 s{SFIN}, 3"); I(f"s_cbranch_scc1 {lo}"); I("s_waitcnt vmcnt(0)"); a.L(lb)
            def b(): I("s_waitcnt vmcnt(8)"); I(f"s_mov_b32 s{SFIN}, 4")
            ool.append((lo, lb, b))
        m1 = lambda sb, ko: (lambda: rarely(f"s_cmp_eq_u32 s{SC1}, s{SM1}", lambda: mask_body(sb, ko)))
        fin = lambda: rarely(f"s_cmp_eq_u32 s{SFIN}, 1", fin_body)
        sta = (lambda: rarely(f"s_cmp_eq_u32 s{SFIN}, 2", st_body), 8)
        KR, VR, SH, WO, AD = 16, 23, 28, 32, 40
        def side_loads():
            L = []; E = lambda t: L.append(op(t)); V = lambda t: L.append(op(t, DC))
            E(f"v_lshrrev_b32 v{AD}, 5, v0"); E(f"v_and_b32 v{AD+1}, 31, v0"); E(f"v_lshlrev_b32 v{AD+2}, 12, v{AD}"); E(f"v_lshl_add_u32 v{AD+2}, v{AD+1}, 2, v{AD+2}")
            self.phys(60, SHEAD, 61, E); E("s_lshl_b32 s60, s60, 17"); E(f"s_lshr_b32 s61, s{SIDX}, 1"); E("s_lshl_b32 s61, s61, 15"); E("s_add_u32 s60, s60, s61")
            E(f"s_and_b32 s61, s{SF}, 1"); E("s_lshl_b32 s61, s61, 9"); E("s_add_u32 s60, s60, s61")
            E(f"s_lshl_b32 s61, s{SW}, 6"); E("s_add_u32 s60, s60, s61"); E("s_add_u32 s61, s60, 16384")
            E(f"v_lshrrev_b32 v{AD+3}, 4, v0"); E(f"v_lshlrev_b32 v{AD+3}, 12, v{AD+3}"); E(f"v_and_b32 v{AD+4}, 15, v0"); E(f"v_lshl_add_u32 v{AD+3}, v{AD+4}, 2, v{AD+3}")
            for j in range(8): V(f"buffer_load_dword v{WO+j}, v{AD+3}, s[{RE}:{RE+3}], s{60+(j>>2)} offen offset:{1024*(j&3)}")
            E("s_lshr_b32 s62, s2, 3"); E("s_lshl_b32 s62, s62, 16"); E(f"s_lshl_b32 s63, s{SW}, 13"); E("s_add_u32 s62, s62, s63")
            E("s_and_b32 s63, s2, 7"); E("s_lshl_b32 s63, s63, 7"); E("s_add_u32 s62, s62, s63"); E(f"v_add_u32 v{AD+3}, s62, v{AD+2}")
            for i in range(3): E(f"v_subrev_u32 v{AD+4+i}, {3072-1024*i}, v{AD+3}")
            E("s_lshl_b32 s63, s63, 2"); E(f"v_lshl_add_u32 v{AD+7}, v{AD+1}, 4, s63")
            for i in range(3): V(f"buffer_load_dword v{KR+i}, v{AD+4+i}, s[{RA}:{RA+3}], 0 offen")
            for i in range(4): V(f"buffer_load_dword v{KR+3+i}, v{AD+3}, s[{RA}:{RA+3}], 0 offen offset:{1024*i}")
            for i in range(4): V(f"buffer_load_dword v{VR+i}, v{AD+3}, s[{RC}:{RC+3}], 0 offen offset:{1024*i}")
            V(f"buffer_load_dwordx4 {v(SH,4)}, v{AD+7}, s[{RD}:{RD+3}], 0 offen")
            return L
        NSL = 21
        def side_math():
            L = []; E = lambda t: L.append(op(t)); V = lambda t: L.append(op(t, DC))
            W2 = 48
            E("s_mov_b32 s60, 0x05040100"); E("s_mov_b32 s61, 0x07060302")
            for j in range(4): E(f"v_perm_b32 v{W2+j}, v{WO+2*j+1}, v{WO+2*j}, s60")
            for j in range(4): E(f"v_perm_b32 v{W2+4+j}, v{WO+2*j+1}, v{WO+2*j}, s61")
            E(f"s_and_b32 s60, s{SF}, 1"); E("s_lshl_b32 s60, s60, 2"); E(f"s_lshr_b32 s61, s{SW}, 1"); E("s_add_u32 s60, s60, s61"); E("s_lshl_b32 s60, s60, 19")
            E(f"s_lshr_b32 s61, s{SF}, 1"); E("s_lshl_b32 s61, s61, 12"); E("s_add_u32 s60, s60, s61"); E(f"s_and_b32 s61, s{SW}, 1"); E("s_lshl_b32 s61, s61, 11")
            E("s_add_u32 s60, s60, s61"); E(f"s_add_u32 s60, s60, {WOT_OFF}")
            for mt in range(2): V(f"buffer_store_dwordx4 {v(W2+4*mt,4)}, v{VL16}, s[{RWS}:{RWS+3}], s60 offen offset:{1024*mt}{self.st}")
            KU, SU, OO, VU, PQ = 32, 42, 48, 39, 52
            for c in range(2):
                def unp(d, sreg, half): E(f"v_lshlrev_b32 v{d}, 16, v{sreg}" if half == 0 else f"v_and_b32 v{d}, 0xffff0000, v{sreg}")
                for i in range(7): unp(KU+i, KR+i, c)
                for j in range(4): unp(SU+j, SH + 2*c + (j >> 1), j & 1)
                for o in range(4):
                    E(f"v_mul_f32 v{OO+o}, v{KU+o}, v{SU+3}")
                    for j in (2, 1, 0): E(f"v_fmac_f32 v{OO+o}, v{KU+o+3-j}, v{SU+j}")
                    unp(VU, VR+o, c)
                    E(f"v_mul_f32 v{OO+o}, v{OO+o}, v{VU}")
                d = PQ + 2*(1-c)
                E(f"v_cvt_pk_bf16_f32 v{d}, v{OO+3}, v{OO+2}"); E(f"v_cvt_pk_bf16_f32 v{d+1}, v{OO+1}, v{OO}")
            E(f"v_lshlrev_b32 v{AD+1}, 5, v{AD+1}"); E(f"v_lshl_add_u32 v{AD+1}, v{AD}, 4, v{AD+1}")
            E(f"v_permlane32_swap_b32 v{PQ+2}, v{PQ}"); E(f"v_permlane32_swap_b32 v{PQ+3}, v{PQ+1}")
            E("s_lshr_b32 s60, s2, 3"); E("s_lshl_b32 s60, s60, 16"); E(f"s_lshl_b32 s61, s{SW}, 13"); E("s_add_u32 s60, s60, s61")
            E("s_and_b32 s61, s2, 7"); E("s_lshl_b32 s61, s61, 10"); E("s_add_u32 s60, s60, s61"); E(f"s_add_u32 s60, s60, {KVT_OFF}")
            V(f"buffer_store_dwordx4 {v(PQ,4)}, v{AD+1}, s[{RWS}:{RWS+3}], s60 offen{self.st}")
            return L
        CL = self.o.get("cl", 8)
        def touch(k):
            if k in (1, 2):
                self.phys(60, SHEAD, 61); I("s_lshl_b32 s60, s60, 17"); I(f"s_lshl_b32 s61, s{SIDX}, 14"); I("s_add_u32 s60, s60, s61")
                if k == 2: I("s_add_u32 s60, s60, 8192")
                I("v_lshlrev_b32 v16, 7, v0"); r = RE
            elif k in (3, 4):
                I("s_lshr_b32 s60, s2, 3"); I("s_lshl_b32 s60, s60, 16"); I("s_and_b32 s61, s2, 7"); I("s_lshl_b32 s61, s61, 7"); I("s_add_u32 s60, s60, s61")
                I("v_lshlrev_b32 v16, 10, v0"); r = RA if k == 3 else RC
            else:
                I(f"s_lshl_b32 s60, s{SF}, 13"); I("v_lshlrev_b32 v16, 7, v0"); r = RB
            I(f"buffer_load_dword v1, v16, s[{r}:{r+3}], s60 offen")
        LSITE = a.label("SITE")
        stubs = []
        def site_code():
            a.T(".p2align 6")
            for lo, lb in stubs:
                a.L(lo); I(f"s_call_b64 s[76:77], {LSITE}"); I(f"s_branch {lb}")
            a.L(LSITE)
            def ret(): I("s_nop 1"); I("s_setpc_b64 s[76:77]")
            ll = a.label("SL"); lm = a.label("SM"); lp = a.label("SP"); TO = self.o.get("to", 0)
            I(f"s_cmp_eq_u32 s41, {CL}"); I(f"s_cbranch_scc1 {ll}")
            I(f"s_cmp_eq_u32 s41, {CL+4}"); I(f"s_cbranch_scc1 {lp}")
            I(f"s_cmp_gt_u32 s41, {CL}"); I(f"s_cbranch_scc1 {lm}")
            lk = {k: a.label("ST") for k in range(2, 6)}
            for k in range(2, 6): I(f"s_cmp_eq_u32 s41, {k + TO}"); I(f"s_cbranch_scc1 {lk[k]}")
            for k in range(1, 6):
                if k > 1: a.L(lk[k])
                touch(k); ret()
            a.L(lp)
            I(f"s_lshl_b32 s44, s{SF}, 2"); I(f"s_add_u32 s44, s44, {FY_OFF}")
            sv = self.save(); self.publish(44, 2); self.restore(sv)
            ret()
            a.L(ll)
            for c, _ in side_loads(): c()
            ret(); a.L(lm)
            for c, _ in side_math(): c()
            if self.o.get("ct3", 0): self.code_prefetch("ATT_START", "HOT_END", 7, 62, 44)
            ret()
        def spf():
            lo = a.label("STUB"); lb = a.label("RET")
            I("s_add_u32 s41, s41, 1"); I("s_bitcmp1_b32 s40, s41"); I(f"s_cbranch_scc1 {lo}"); a.L(lb); stubs.append((lo, lb))
        spub = (spf, 12)
        def snap():
            I(f"s_mov_b32 s61, {FY_OFF}"); I(f"buffer_load_dwordx4 v[52:55], v{VL16}, s[{RWS}:{RWS+3}], s61 offen sc1")
        def side_check():
            lo = a.label("SCK"); lb = a.label("SCR")
            def test():
                I("v_and_b32 v52, v52, v53"); I("v_and_b32 v54, v54, v55"); I("v_and_b32 v52, v52, v54"); I("v_and_b32 v52, 2, v52"); I("v_cmp_ne_u32 vcc, 2, v52")
            test(); I(f"s_cbranch_vccnz {lo}"); a.L(lb)
            def spin():
                lp = a.label("SPL")
                I("s_mov_b32 s99, 20000"); a.L(lp)
                I("s_sleep 2"); I(f"buffer_load_dwordx4 v[52:55], v{VL16}, s[{RWS}:{RWS+3}], s61 offen sc1"); I("s_waitcnt vmcnt(0)")
                test(); I(f"s_cbranch_vccz {lb}")
                I("s_sub_u32 s99, s99, 1"); I("s_cmp_lg_u32 s99, 0"); I(f"s_cbranch_scc1 {lp}")
            ool.append((lo, lb, spin))
        m2 = lambda sb, ko: (lambda: rarely(f"s_cmp_eq_u32 s{SC2}, 0", lambda: (snap(), mask_body(sb, ko))))
        LEV = a.label("EVEN"); LODM = a.label("ODDM"); LTRANS = a.label("TRANS"); LP2 = a.label("P2"); LP2B = a.label("P2B"); LDRAIN = a.label("DRAIN")
        a.L("ATT_START")
        self.stamp(8)
        self.ring_n = 0
        R = [rd("k", 0, i) for i in range(8)] + [rd("k", 1, i) for i in range(8)]
        def qrd(i):
            I(f"ds_read_b128 {v(QF+4*i,4)}, v{TMP+1 if i < 4 else LM} offset:{1024*(i&3)}"); return lg.issue()
        for i in range(4): qrd(i); R[i][0]()
        for i in range(4, 8): tq = qrd(i)
        D = dma4("v") + dma4("k")
        fx = {g: [(R[4+g][0], 4)] for g in range(4)}
        put(fx, 3, [(lambda: lg.wait(tq), 4)])
        for F in range(8, 15): put(fx, last_use(F - 8) + 1, [(R[F][0], 4)])
        for n, d in enumerate(D): put(fx, 2*n, [d])
        sched(qk(0, R, 0, True), fx, [])
        m1(0, 0)()
        pre = init_max()
        fx = {0: [(R[15][0], 4)], 8: [op(f"v_xor_b32 v{VV}, 0x10000, v{VK}"), op(f"v_xor_b32 v{VK}, 0x4000, v{VK}")]}
        sched(qk(1, R, 8), fx, pre + sm_ops(0)[:SPL])
        R = mk_reads()
        head(R, vm4, False, post=[m1(1, 32)])
        svm = self.save()
        self.stamp(9)
        LOD = [a.label("ODD0"), a.label("ODD1")]
        I(f"s_cmp_eq_u32 s{SG}, 1"); I(f"s_cbranch_scc1 {LOD[1]}"); I(f"s_branch {LOD[0]}")
        vm0 = lambda: I("s_waitcnt vmcnt(0)")
        LDR = [a.label("DR0"), a.label("DR1"), a.label("DR1F")]
        x8 = lambda: [op(f"v_xor_b32 v{VK}, 0x8000, v{VK}")]
        dec2 = lambda: op(f"s_sub_u32 s{SC2}, s{SC2}, 1")
        def loops(g):
            LEV = a.label("EVEN"); LP2 = a.label("P2"); LLAST = a.label("OLAST")
            a.L(LEV)
            R = mk_reads(); head(R, vm4)
            mid(R, "k", [op(f"v_xor_b32 v{VK}, 0x4000, v{VK}")], mb=m1(0, 0) if g else None, early=[spub], g=g)
            R = mk_reads(); head(R, vm4, post=[m1(1, 32)] if g else [])
            assert self.lg.issued - self.lg.done == svm[2] - svm[3]
            a.L(LOD[g])
            if g: I(f"s_cmp_eq_u32 s{SC1}, 0"); I(f"s_cbranch_scc1 {LLAST}")
            sv = self.save(); rn = self.ring_n
            mid(R, "v", [op(f"v_xor_b32 v{VK}, 0xc000, v{VK}")], endops=[op(f"s_sub_u32 s{SC1}, s{SC1}, 1")], early=[spub], g=g)
            if g:
                I(f"s_branch {LEV}")
                a.L(LLAST); self.restore(sv); self.ring_n = rn
                mid(R, "v", [op(f"v_xor_b32 v{VK}, 0x8000, v{VK}")], mb=lambda: mask_body(0, 64, True), early=[spub], g=g, hq=True)
            else:
                I(f"s_cmp_lg_u32 s{SC1}, -1"); I(f"s_cbranch_scc1 {LEV}")
            self.stamp(14)
            if g: loadq(VQ); I("s_waitcnt lgkmcnt(0)")
            R = mk_reads(); head(R, vm4, more=mask_ops(1, 96, True) if g else (), hs=bool(g))
            mid(R, "k", x8(), mb=m2(0, 64*g), trans=bool(g), early=[spub], g=g, hp=bool(g))
            self.stamp(15)
            I(f"s_cmp_eq_u32 s{SC2}, 0"); I(f"s_cbranch_scc1 {LDR[2*g]}")
            a.L(LP2)
            R = mk_reads(); head(R, vm08 if g else vm0)
            if g:
                mid(R, "kv", x8(), endops=[sta], early=[spub, (fin, 8), dec2()], g=g)
                I(f"s_cmp_lg_u32 s{SC2}, 1"); I(f"s_cbranch_scc1 {LP2}")
                R = mk_reads(); head(R, vm08)
                mid(R, "kv", x8(), mb=lambda: (snap(), mask_body(0, 64, True)), g=g, hq=True)
            else:
                mid(R, "kv", x8(), mb=m2(0, 0), early=[spub, dec2()], g=g)
                I(f"s_cmp_lg_u32 s{SC2}, 0"); I(f"s_cbranch_scc1 {LP2}")
        lj = a.label("MGJ"); LH1 = a.label("DH1"); PR = 64
        def drain(g):
            ts, ts2, ts3 = self.tail_setup()
            tsa = [x for x in ts if x[1] == 4]; tsl = [x for x in ts if x[1] != 4]
            def dhead(hs):
                R2 = [rd("v", 0, i) for i in range(8)] + [rd("v", 1, i) for i in range(8)]
                self.stamp(10)
                head(R2, lambda: (vm0(), side_check(), tsl[0][0](), tsl[1][0]()), post=[] if (hs or not g) else [fin_body, st_body], pre=tsa[:8],
                     more=tsa[8:16] + [tsl[2]] + mask_ops(1, 32 + 64*g, bool(g)), hs=hs)
                return R2
            a.L(LDR[g]); sv = self.save()
            R2 = dhead(bool(g))
            if g:
                a.L(LH1)
                def alt():
                    keep = self.save(); th = self.th
                    a.L(LDR[2]); self.restore(sv); dhead(False); I(f"s_branch {LH1}")
                    self.restore(keep); self.th = th
                self.alt = alt
            rf = [(f, 4) for f, h in R2]
            for c, _ in tsa[16:]: c()
            pre = []; E_ = lambda t: pre.append(op(t))
            E_(f"s_add_u32 s44, s{SWK}, {ML}"); E_(f"v_add_u32 v54, s44, v{VL16}")
            E_(f"s_lshl_b32 s46, s{SW}, 13"); E_(f"v_add_u32 v55, s46, v{VL16}")
            E_(f"s_sub_u32 s46, 15, s{SIDX}"); E_("s_lshl_b32 s46, s46, 20"); E_("s_add_u32 s46, s46, s43"); E_(f"s_add_u32 s46, s46, {4096*g}"); E_(f"s_xor_b32 s47, s46, {TX}")
            WA_ = self.o.get("wa", 6); tsA, tsB = ts2[:WA_], ts2[WA_:]
            setup_ = pre + ts3; n8 = (len(setup_) + 17) // 18
            fx = {n: setup_[n*n8:(n+1)*n8] for n in range(18)}
            for n, x in enumerate(tsA): put(fx, 1 + n * 17 // max(1, len(tsA)), [x])
            for F in range(7, 15): put(fx, 2*(F - 7) + (2 if F > 7 else 0), [rf[F]])
            sched(pv(0, R2, 0, half=bool(g)), fx, sm_half(1) if g else sm_ops(1))
            check(1)
            rf[15][0]()
            own = O + 32*g; snd = O + 32*(1-g)
            def osend(i):
                I(f"ds_write_b128 v55, {v(snd+4*i,4)} offset:{1024*i}"); lg.issue()
            def wml():
                I(f"ds_write_b128 v54, {v(150,4)}"); lg.issue()
            dts = list(range(4*(1-g), 4*(1-g)+4)) + list(range(4*g, 4*g+4))
            fx = {10 + i: [(lambda i=i: osend(i), 16)] for i in range(8)}
            put(fx, 8, [op(f"v_mov_b32 v150, v{NM}"), op(f"v_mov_b32 v{LS+1}, v{LS+4}"), (wml, 4)])
            for n, x in enumerate(tsB): put(fx, n * 10 // max(1, len(tsB)), [x])
            sched(pv(1, R2, 8, dts, True, half=bool(g)), fx, self.tail_valu())
            I(f"v_xor_b32 v54, 0x1000, v54"); I(f"v_xor_b32 v55, 0x8000, v55")
            I("s_waitcnt lgkmcnt(0)"); lg.mark_all_done(); self.barrier()
            I(f"ds_read_b128 {v(96,4)}, v54"); t0 = lg.issue()
            tk = []
            for i in range(8):
                I(f"ds_read_b128 {v(PR+4*i,4)}, v55 offset:{1024*i}"); tk.append(lg.issue())
            lg.wait(t0)
            for q in range(2):
                I(f"v_min_f32 v100, v{150+q}, v{96+q}"); I(f"v_sub_f32 v101, v100, v{150+q}"); I(f"v_sub_f32 v102, v100, v{96+q}")
                I("v_exp_f32 v101, v101"); I("v_exp_f32 v102, v102")
                I(f"v_mul_f32 v103, v101, v{LS+q}"); I(f"v_fmac_f32 v103, v102, v{98+q}"); I("v_rcp_f32 v103, v103")
                b = 104 + 4*q
                I(f"v_mul_f32 v{b}, v101, v103"); I(f"v_mul_f32 v{b+1}, v101, v103"); I(f"v_mul_f32 v{b+2}, v102, v103"); I(f"v_mul_f32 v{b+3}, v102, v103")
            tw = self.tail_writes()
            for q in range(4):
                b = 104 + 4*(q & 1)
                for i in range(8*q, 8*q+8, 2): I(f"v_pk_mul_f32 {v(own+i,2)}, {v(own+i,2)}, {v(b,2)}")
                lg.wait(tk[2*q+1])
                for c in tw[3*q:3*q+3]: c()
                for i in range(8*q, 8*q+8, 2): I(f"v_pk_fma_f32 {v(own+i,2)}, {v(PR+i,2)}, {v(b+2,2)}, {v(own+i,2)}")
                for i in range(4): I(f"v_cvt_pk_bf16_f32 v{snd+4*q+i}, v{own+8*q+2*i}, v{own+8*q+2*i+1}")
                I(f"buffer_store_dwordx4 {v(snd+4*q,4)}, v{VL16}, s[{RWS}:{RWS+3}], s{46+(q&1)} offen offset:{(q>>1)*2048}{self.st}"); self.tctx = vm.issue()
        loops(1); drain(1); I(f"s_branch {lj}")
        loops(0); drain(0)
        a.L(lj)
        I("s_setprio 0")
        self.stamp(4)
        def cold():
            self.alt()
            site_code()
            for (lo, lb, body) in ool:
                a.L(lo); body(); I(f"s_branch {lb}")
            a.L("HOT_END")
            for (lr, lb, sb, other) in rare:
                a.L(lr)
                I("s_nop 15")
                rowmax(sb)
                for q in range(2): I(f"v_add_f32 v{TMP+q}, {f2u(BIAS)}, v{TMP+q}"); I(f"v_max_f32 v{TMP+q}, 0, v{TMP+q}"); I(f"v_exp_f32 v{TMP+2+q}, -v{TMP+q}")
                for r in range(8): I(f"v_sub_f32 v{NM+r}, v{NM+r}, v{TMP+(r>>2)}")
                for r in range(16): I(f"v_sub_f32 v{S[sb]+r}, v{S[sb]+r}, v{TMP+(r>>3)}")
                if other:
                    for r in range(16): I(f"v_sub_f32 v{S[1-sb]+r}, v{S[1-sb]+r}, v{TMP+(r>>3)}")
                for r in range(64): I(f"v_mul_f32 v{O+r}, v{O+r}, v{TMP+2+((r>>3)&1)}")
                for r in range(8): I(f"v_mul_f32 v{LS+r}, v{LS+r}, v{TMP+2+(r>>2)}")
                for c, _ in sm_ops(sb): c()
                I("s_nop 1"); I(f"s_branch {lb}")
        self.attn_rare = cold

    HB = 65536; HC = 4416; XB = 136192; YB = 148480
    SC, SJ, SB, SCH, SHB_, SWO, SCX = 34, 35, 36, 37, 38, 39, 40
    WS_ = [16, 24, 32, 40, 176, 184, 48, 56] + list(range(80, 144, 8))
    def tail_setup(self):
        I = self.I; L = []; E = lambda t: L.append((lambda: I(t), 4))
        SC, SJ, SB, SCH, SHB_, SWO, SCX = self.SC, self.SJ, self.SB, self.SCH, self.SHB_, self.SWO, self.SCX
        self.wtok = {}; self.wslot = dict(enumerate(self.WS_))
        E(f"s_lshr_b32 s{SC}, s{SW}, 2"); E(f"s_and_b32 s{SJ}, s{SW}, 3")
        E(f"s_lshl_b32 s{SCH}, s{SF}, 1"); E(f"s_add_u32 s{SCH}, s{SCH}, s{SC}"); E(f"s_lshl_b32 s{SCH}, s{SCH}, 12")
        E(f"s_lshl_b32 s60, s{SJ}, 10"); E("v_add_u32 v50, s60, v6"); E("v_subrev_u32 v51, 16, v50")
        E(f"s_lshl_b32 s63, s{SW}, 18"); E(f"s_lshl_b32 s62, s{SF}, 5"); E("s_add_u32 s63, s63, s62"); E(f"s_add_u32 s63, s63, {KVT_OFF}")
        E("v_lshrrev_b32 v48, 1, v0"); E("v_and_b32 v158, 1, v0" if False else "v_and_b32 v3, 1, v0"); E("v_lshlrev_b32 v49, 13, v48"); E("v_lshl_add_u32 v49, v3, 4, v49")
        def ld(t):
            def f(): I(t); self.th = self.vm.issue()
            L.append((f, 16))
        ld(f"buffer_load_dwordx4 {v(160,4)}, v51, s[{RB}:{RB+3}], s{SCH} offen")
        ld(f"buffer_load_dwordx4 {v(164,4)}, v50, s[{RB}:{RB+3}], s{SCH} offen")
        ld(f"buffer_load_dwordx4 {v(168,4)}, v49, s[{RWS}:{RWS+3}], s63 offen{self.ld}")
        E(f"s_lshl_b32 s{SWO}, s57, 19"); E(f"s_lshl_b32 s60, s{SW}, 15"); E(f"s_add_u32 s{SWO}, s{SWO}, s60"); E(f"s_add_u32 s{SWO}, s{SWO}, {WOT_OFF}")
        E("s_and_b32 s60, s56, 1"); E("s_lshl_b32 s60, s60, 18"); E(f"s_add_u32 s{SWO}, s{SWO}, s60")
        TR_ = self.o.get("trot", 1)
        if TR_ == 0: E("s_mov_b32 s58, 0")
        elif TR_ == 1: E("s_mov_b32 s58, s57")
        else: E("s_and_b32 s58, s56, 6"); E("s_add_u32 s58, s58, s57")
        def w1(i, mt):
            if mt == 0 and i % 2 == 0: self.wadr(i)
            I(f"buffer_load_dwordx4 {v(self.WS_[i]+4*mt,4)}, v6, s[{RWS}:{RWS+3}], s59 offen offset:{(i&1)*2048+mt*1024}{self.ld}"); self.wtok[i] = self.vm.issue()
        L2 = [(lambda i=i, mt=mt: w1(i, mt), 16) for i in range(self.o.get("we", 6)) for mt in range(2)]
        L3 = []; L, Lx = L3, L
        E = lambda t: L3.append((lambda: I(t), 4))
        E(f"s_mul_i32 s{SB}, s{SC}, 6144"); E(f"s_add_u32 s{SB}, s{SB}, {self.XB}")
        E(f"s_mul_i32 s{SHB_}, s{SC}, {8*self.HC}"); E(f"s_add_u32 s{SHB_}, s{SHB_}, {self.HB}")
        E(f"s_xor_b32 s{SCX}, s56, 1"); E(f"s_lshl_b32 s{SCX}, s{SCX}, 19"); E(f"s_lshl_b32 s60, s{SW}, 14"); E(f"s_add_u32 s{SCX}, s{SCX}, s60"); E(f"s_add_u32 s{SCX}, s{SCX}, {CTX_OFF}")
        E("s_and_b32 s60, s56, 1"); E("s_lshl_b32 s60, s60, 17"); E(f"s_add_u32 s{SCX}, s{SCX}, s60")
        return Lx, L2, L3
    def wreg(self, i):
        return self.WS_[i % len(self.WS_)]
    def wload(self, i):
        I = self.I; r = self.wslot[i]
        I(f"s_add_u32 s61, s{self.SWO}, {i*2048}")
        for mt in range(2):
            I(f"buffer_load_dwordx4 {v(r+4*mt,4)}, v6, s[{RWS}:{RWS+3}], s61 offen offset:{mt*1024}{self.ld}"); self.wtok[i] = self.vm.issue()
    def wadr(self, i):
        I = self.I
        I(f"s_add_u32 s59, s58, {i >> 1}"); I("s_and_b32 s59, s59, 7"); I("s_lshl_b32 s59, s59, 12"); I(f"s_add_u32 s59, s59, s{self.SWO}")
    def tail_valu(self):
        I = self.I; HC = self.HC; L = []; E = lambda t: L.append((lambda: I(t), 4))
        SJ, SB, SHB_ = self.SJ, self.SB, self.SHB_
        Ee, Eo, Oe, Oo = 160, 113, 122, 131
        E(f"s_add_u32 s60, s{SHB_}, 64"); E("v_add_u32 v138, s60, v50")
        E("v_and_b32 v51, 3, v48"); E("v_mul_u32_u24 v139, 1536, v51"); E("v_lshrrev_b32 v53, 2, v48"); E("v_lshl_add_u32 v139, v53, 4, v139")
        E("v_and_b32 v53, 1, v0"); E("v_mul_u32_u24 v53, 6144, v53"); E(f"s_lshl_b32 s60, s{SW}, 7"); E(f"s_add_u32 s60, s60, {self.XB + 512}"); E("v_add3_u32 v139, v139, v53, s60")
        E("v_and_b32 v51, 3, v0")
        for r in range(2): E(f"v_mov_b64 {v(172+2*r,2)}, 0")
        E("v_bfe_u32 v140, v0, 2, 3"); E(f"v_mul_u32_u24 v140, {HC}, v140"); E("v_lshl_add_u32 v140, v51, 4, v140"); E(f"v_add_u32 v140, s{SHB_}, v140")
        E(f"s_mul_i32 s60, s{SJ}, 1536"); E(f"s_add_u32 s60, s60, s{SB}"); E("v_lshl_add_u32 v141, v0, 3, s60")
        L.append((lambda: self.vm.wait(self.th - 1), 4))
        for k in range(7): E(f"v_alignbit_b32 v{Oe+k}, v{Ee+k+1}, v{Ee+k}, 16")
        for k in range(1, 7): E(f"v_alignbit_b32 v{Oo+k}, v{Ee+k+1}, v{Ee+k}, 16")
        for k in range(1, 7): E(f"v_mov_b32 v{Eo+k}, v{Ee+k}")
        return L
    def tail_writes(self):
        I = self.I; lg = self.lg; HC = self.HC; L = []
        Ee, Eo, Oe, Oo = 160, 113, 122, 131
        def W(t, pre=None):
            def f():
                if pre: pre()
                I(t); lg.issue()
            L.append(f)
        for r in range(8):
            sft = 1 + r; k = sft >> 1
            base = ((Oe, Oo) if sft & 1 else (Ee, Eo))[k & 1]
            W(f"ds_write_b128 v138, {v(base+k,4)} offset:{r*HC}")
        W(f"ds_write_b128 v140, {v(172,4)}"); W(f"ds_write_b64 v141, {v(172,2)}")
        W(f"ds_write_b128 v139, {v(168,4)}", lambda: self.vm.wait(self.th))
        return L
    def tailp(self):
        a = self.a; I = self.I; vm = self.vm; lg = self.lg
        HB, HC, YB = self.HB, self.HC, self.YB
        SC, SJ, SB, SCH, SHB_, SWO, SCX = self.SC, self.SJ, self.SB, self.SCH, self.SHB_, self.SWO, self.SCX
        ACC = 192; FRS = [224, 240, 64]; RD_ = 224; OACC = 192; YT = self.XB
        VL16, VA, VB, T, VP, VPA, VO, GR, VW1 = 6, 4, 5, 12, 7, 8, 9, 10, 11
        WSL = self.WS_; CSL = [144, 152, 160, 168, 64, 72]
        assert len(WSL) == 16
        I(f"s_lshr_b32 s53, s56, 1"); I("s_lshl_b32 s53, s53, 10"); I("s_and_b32 s44, s56, 1"); I("s_lshl_b32 s44, s44, 9"); I("s_add_u32 s53, s53, s44")
        I(f"s_lshr_b32 s44, s{SW}, 1"); I("s_lshl_b32 s44, s44, 7"); I("s_add_u32 s53, s53, s44"); I(f"s_and_b32 s44, s{SW}, 1"); I("s_lshl_b32 s44, s44, 3")
        I("s_add_u32 s53, s53, s44"); I(f"s_add_u32 s53, s53, {FC_OFF}")
        I(f"v_and_b32 v{VPA}, 1, v0"); I(f"v_lshlrev_b32 v{VPA}, 2, v{VPA}")
        PUBN = self.o.get("pubn", 4)
        I(f"s_lshr_b32 s45, s{SHEAD}, 2"); I("s_lshl_b32 s45, s45, 7"); I(f"s_and_b32 s44, s{SHEAD}, 3"); I("s_lshl_b32 s44, s44, 2"); I("s_add_u32 s45, s45, s44")
        I(f"s_sub_u32 s44, 15, s{SIDX}"); I("s_lshl_b32 s44, s44, 10"); I("s_add_u32 s46, s44, s45"); I(f"s_add_u32 s46, s46, {FC_OFF}")
        I(f"s_lshl_b32 s44, s{SIDX}, 10"); I("s_add_u32 s47, s44, s45"); I(f"s_add_u32 s47, s47, {FC_OFF}")
        self.srd(RC, "out", 2*MB); self.srd(RD, "q", 2*MB)
        I(f"s_lshl_b32 s44, s{SF}, 2"); I(f"s_load_dword s55, s[{P['ssmD']}:{P['ssmD']+1}], s44")
        I(f"v_and_b32 v{T}, 15, v0"); I(f"v_lshrrev_b32 v{T+1}, 4, v0")
        I(f"v_and_b32 v{T+2}, 7, v0"); I(f"v_mul_u32_u24 v{VA}, {HC}, v{T+2}")
        I(f"v_bfe_u32 v{T+2}, v0, 3, 1"); I(f"v_sub_u32 v{T+2}, v{T+2}, v{T+1}"); I(f"v_lshl_add_u32 v{VA}, v{T+2}, 4, v{VA}")
        I(f"s_lshl_b32 s43, s{SJ}, 8"); I(f"s_add_u32 s43, s43, s{SHB_}"); I("s_add_u32 s43, s43, 64"); I(f"v_add_u32 v{VA}, s43, v{VA}")
        I(f"s_lshl_b32 s43, s{SJ}, 6"); I(f"s_sub_u32 s43, s{SB}, s43"); I(f"s_add_u32 s43, s43, {(32-3)*16}")
        I(f"v_lshl_add_u32 v{VB}, v{T}, 4, s43"); I(f"v_mul_u32_u24 v{T+2}, 1536, v{T+1}"); I(f"v_add_u32 v{VB}, v{VB}, v{T+2}")
        I(f"s_lshl_b32 s51, s{SW}, 13"); I(f"s_xor_b32 s52, s{SCX}, 0x80000")
        I("s_waitcnt lgkmcnt(0)"); lg.mark_all_done(); self.barrier()
        self.stamp(5)
        wtok = dict(self.wtok); ctok = {}; cslot = dict(enumerate(CSL))
        def wload(k):
            if k % 2 == 0: self.wadr(k)
            for mt in range(2):
                I(f"buffer_load_dwordx4 {v(WSL[k]+4*mt,4)}, v{VL16}, s[{RWS}:{RWS+3}], s59 offen offset:{(k&1)*2048+mt*1024}{self.ld}"); wtok[k] = vm.issue()
        def cload(i):
            I(f"s_add_u32 s62, s58, {i & 7}"); I("s_and_b32 s62, s62, 7"); I("s_lshl_b32 s62, s62, 11"); I(f"s_add_u32 s62, s62, s{52 if i >= 16 else SCX}")
            if i & 8: I("s_add_u32 s62, s62, 0x40000")
            for qt in range(2):
                I(f"buffer_load_dwordx4 {v(cslot[i]+4*qt,4)}, v{VL16}, s[{RWS}:{RWS+3}], s62 offen offset:{qt*1024}{self.ld}"); ctok[i] = vm.issue()
        wl = [k for k in range(16) if k not in wtok]
        BS = [224, 240]; AS = list(range(160, 176, 4)) + list(range(64, 80, 4)); NA = len(AS)
        seq = [(dd, m, bt) for dd in range(4) for (m, bt) in ((0, 0), (3, 0), (0, 1), (3, 1), (1, 0), (2, 0), (1, 1), (2, 1))]
        atok = {}; btok = {}
        def rda(n):
            if n >= len(seq): return
            dd, m, bt = seq[n]
            I(f"ds_read_b128 {v(AS[n % NA],4)}, v{VA} offset:{64*dd + 1024*m + 32*bt}"); atok[n] = lg.issue()
        def rdb(dd, n):
            if dd >= 4: return
            I(f"ds_read_b128 {v(BS[dd & 1]+4*n,4)}, v{VB} offset:{(3-dd)*16 + 256*n}"); btok[(dd, n)] = lg.issue()
        rda(0)
        for n in range(4): rdb(0, n)
        for n in range(1, NA - 1): rda(n)
        seen = set()
        for n, (dd, m, bt) in enumerate(seq):
            for nn in range(4 - m):
                lg.wait(max(atok[n], btok[(dd, nn)]))
                key = (m + nn, bt); d = v(ACC + 8*key[0] + 4*bt, 4)
                I(f"v_mfma_f32_16x16x32_bf16 {d}, {v(AS[n % NA],4)}, {v(BS[dd & 1]+4*nn,4)}, {d if key in seen else '0'}"); seen.add(key)
                if nn == 0:
                    rda(n + NA - 1)
                    if 1 <= (n & 7) <= 4: rdb(dd + 1, (n & 7) - 1)
            if n & 1:
                h_ = n >> 1
                if h_ == PUBN:
                    vm.wait(self.tctx); self.barrier(); self.publish(46); self.publish(47)
                if h_ >= self.o.get("wst", 2) and len(wl) > self.o.get("wkeep", 2): wload(wl.pop(0))
                if h_ == self.o.get("p1", 12): tc1 = self.poll_issue(VP, VPA, "s53")
        I(f"v_add_u32 v{T+2}, s51, v{VL16}")
        for i in range(8):
            I(f"ds_write_b128 v{T+2}, {v(ACC+4*i,4)} offset:{1024*i}"); lg.issue()
        while wl: wload(wl.pop(0))
        I(f"s_lshl_b32 s43, s{SC}, 15"); I(f"s_lshl_b32 s44, s{SJ}, 11"); I("s_add_u32 s43, s43, s44"); I(f"v_add_u32 v{T+2}, s43, v{VL16}")
        I(f"s_lshl_b32 s44, s{SJ}, 8"); I(f"s_add_u32 s44, s44, s{SB}"); I("s_add_u32 s44, s44, 520")
        I(f"v_lshl_add_u32 v{T+3}, v{T}, 4, s44"); I(f"v_and_b32 v{VA}, 1, v{T+1}"); I(f"v_lshlrev_b32 v{VA}, 3, v{VA}"); I(f"v_sub_u32 v{T+3}, v{T+3}, v{VA}")
        I(f"v_lshrrev_b32 v{VA}, 1, v{T+1}"); I(f"v_mul_u32_u24 v{VA}, 1536, v{VA}"); I(f"v_add_u32 v{T+3}, v{T+3}, v{VA}")
        I(f"v_lshlrev_b32 v{VB}, 6, v{T}"); I(f"v_lshl_add_u32 v{VB}, v{T+1}, 3, v{VB}")
        I(f"s_add_u32 s45, s{SWK}, {YB}"); I(f"v_add_u32 v{VB}, s45, v{VB}")
        I("s_lshl_b32 s43, s55, 16"); I("s_and_b32 s44, s55, 0xffff0000"); I(f"s_cmp_eq_u32 s{SC}, 0"); I("s_cselect_b32 s55, s43, s44")
        lg.wait(lg.issued); self.barrier()
        self.stamp(12)
        for p in range(4):
            for gq in range(2):
                I(f"ds_read_b128 {v(RD_+8*p+4*gq,4)}, v{T+2} offset:{8192*p+1024*gq}"); lg.issue()
        for gq in range(2):
            I(f"ds_read_b64 {v(ACC+2*gq,2)}, v{T+3} offset:{3072*gq}"); lg.issue()
        le = a.label("NE")
        vm.wait(tc1); I(f"v_and_b32 v{VP}, 1, v{VP}"); I(f"v_cmp_ne_u32 vcc, 1, v{VP}"); I("s_mov_b32 s50, 0"); I(f"s_cbranch_vccnz {le}")
        sv = self.save(); I("s_mov_b32 s50, 1")
        for i in range(len(CSL)): cload(i)
        self.restore(sv); a.L(le)
        lg.wait(lg.issued)
        for i in range(0, 8, 2):
            I(f"v_pk_add_f32 {v(RD_+i,2)}, {v(RD_+i,2)}, {v(RD_+8+i,2)}"); I(f"v_pk_add_f32 {v(RD_+16+i,2)}, {v(RD_+16+i,2)}, {v(RD_+24+i,2)}")
        for i in range(0, 8, 2): I(f"v_pk_add_f32 {v(RD_+i,2)}, {v(RD_+i,2)}, {v(RD_+16+i,2)}")
        for gq in range(2):
            for r in range(4):
                srcr = ACC + 2*gq + (1 - (r >> 1))
                I(f"v_lshlrev_b32 v{ACC+8}, 16, v{srcr}" if r & 1 else f"v_and_b32 v{ACC+8}, 0xffff0000, v{srcr}")
                I(f"v_fma_f32 v{RD_+4*gq+r}, v{ACC+8}, s55, v{RD_+4*gq+r}")
        for i in range(4): I(f"v_cvt_pk_bf16_f32 v{ACC+12+i}, v{RD_+2*i}, v{RD_+2*i+1}")
        for gq in range(2):
            I(f"ds_write_b64 v{VB}, {v(ACC+12+2*gq,2)} offset:{32*gq}"); lg.issue()
        I(f"v_and_b32 v{T+2}, 15, v0"); I(f"v_lshrrev_b32 v{T+1}, 4, v0"); I(f"v_lshlrev_b32 v{T+1}, 1, v{T+1}"); I(f"v_xor_b32 v{T+1}, v{T+1}, v{T+2}"); I(f"v_lshlrev_b32 v{T+1}, 4, v{T+1}")
        I(f"v_lshl_add_u32 v{VA}, v{T+2}, 8, v{T+1}"); I(f"v_add_u32 v{VA}, s51, v{VA}")
        I(f"s_lshr_b32 s48, s{SW}, 1"); I("s_lshl_b32 s48, s48, 4"); I(f"s_and_b32 s41, s{SW}, 1"); I("s_lshl_b32 s42, s41, 3")
        I(f"v_lshrrev_b32 v{T}, 4, v0"); I(f"v_lshl_add_u32 v{T+1}, v{T}, 1, s42"); I(f"v_xor_b32 v{T+1}, v{T+1}, v{T+2}"); I(f"v_lshlrev_b32 v{T+1}, 4, v{T+1}")
        I("s_and_b32 s43, s48, 16"); I(f"v_add_u32 v{T+3}, s43, v{T+2}"); I(f"v_lshl_add_u32 v{VW1}, v{T+3}, 8, v{T+1}")
        I("s_lshr_b32 s43, s48, 5"); I("s_lshl_b32 s43, s43, 16"); I(f"v_add_u32 v{VW1}, s43, v{VW1}")
        lg.wait(lg.issued); I(f"v_xor_b32 v{VB}, 16, v{VW1}"); self.barrier()
        ly = a.label("NY")
        I(f"s_cmp_lg_u32 s{SW}, 0"); I(f"s_cbranch_scc1 {ly}")
        I(f"v_add_u32 v{T}, {YB}, v{VL16}")
        for i in range(8): I(f"ds_read_b128 {v(RD_+4*i,4)}, v{T} offset:{1024*i}")
        I(f"s_lshl_b32 s44, s{SF}, 13"); I(f"s_add_u32 s44, s44, {YT_OFF}"); I("s_add_u32 s45, s44, 4096")
        I("s_waitcnt lgkmcnt(0)")
        for i in range(8): I(f"buffer_store_dwordx4 {v(RD_+4*i,4)}, v{VL16}, s[{RWS}:{RWS+3}], s{44+(i>>2)} offen offset:{1024*(i&3)}{self.st}")
        a.L(ly)
        ll = a.label("NL")
        I("s_cmp_eq_u32 s50, 1"); I(f"s_cbranch_scc1 {ll}")
        self.poll_check(VP, VPA, "s53", 1)
        for i in range(len(CSL)): cload(i)
        a.L(ll)
        self.stamp(6)
        def put_ops(st):
            L = []
            for mt in range(4):
                def f(mt=mt):
                    I(f"v_xor_b32 v{T+3}, {(8*(mt>>1)+(mt&1))*16 + 0x10000*st}, v{VA}")
                    for qt in range(2):
                        I(f"ds_write_b128 v{T+3}, {v(OACC+32*st+8*mt+4*qt,4)} offset:{4096*qt}"); lg.issue()
                L.append(f)
            return L
        def sum_partials(mid=None):
            tk = []
            for p in range(8):
                for hh in range(2):
                    I(f"ds_read_b128 {v(OACC+8*p+4*hh,4)}, v{(VW1, VB)[hh]} offset:{8192*p}"); lg.issue()
                tk.append(lg.issued)
                if p == 5 and mid: mid()
            for p in range(1, 8):
                lg.wait(tk[p])
                for e in range(0, 8, 2): I(f"v_pk_add_f32 {v(OACC+e,2)}, {v(OACC+e,2)}, {v(OACC+8*p+e,2)}")
        ymark = vm.issued; ypub = False; pm = {}; ppub = False; free = []; nc = len(CSL); XR = WSL[0]; PR_ = WSL[1]
        TS = [OACC + 32 + 8*n for n in range(4)]; ptk = {}
        def prd(p):
            r = TS[0] if p == 0 else TS[1 + (p - 1) % 3]
            for hh in range(2):
                I(f"ds_read_b128 {v(r+4*hh,4)}, v{(VW1, VB)[hh]} offset:{8192*p}"); ptk[p] = lg.issue()
        def padd(p):
            lg.wait(ptk[p]); r = TS[1 + (p - 1) % 3]
            for e in range(0, 8, 2): I(f"v_pk_add_f32 {v(TS[0]+e,2)}, {v(TS[0]+e,2)}, {v(r+e,2)}")
            if p + 3 < 8: prd(p + 3)
        def pst():
            I(f"s_lshl_b32 s44, s{SF}, 14"); I(f"s_lshl_b32 s45, s{SW}, 11"); I("s_add_u32 s54, s44, s45"); I(f"s_add_u32 s54, s54, {PP_OFF}")
            for hh in range(2):
                I(f"buffer_store_dwordx4 {v(TS[0]+4*hh,4)}, v{VL16}, s[{RWS}:{RWS+3}], s54 offen offset:{1024*hh}{self.st}"); pm["t"] = vm.issue()
        B1 = self.o.get("b1", 18); PS = self.o.get("ps", 21)
        for i2 in range(0, 32, 2):
            st = (i2 >> 3) & 1; J = i2 & 7; fill = []
            if i2 in (8, 24): fill = put_ops(0)
            if i2 == 16: fill = put_ops(1)
            if i2 == 24: self.barrier()
            if i2 == B1:
                lg.wait(lg.issued); self.barrier()
                for p in range(4): prd(p)
                fill = [lambda p=p: padd(p) for p in range(1, 8)]
                I(f"s_lshl_b32 s53, s57, 7"); I(f"s_lshl_b32 s42, s{SW}, 4"); I("s_add_u32 s53, s53, s42"); I(f"s_add_u32 s53, s53, {FY_OFF}")
                I(f"v_and_b32 v{VPA}, 3, v0"); I(f"v_lshlrev_b32 v{VPA}, 2, v{VPA}")
                tf = self.poll_issue(VP, VPA, "s53")
            if i2 == 26:
                I(f"v_and_b32 v{T+1}, 15, v0"); I(f"s_lshl_b32 s45, s56, 6"); I("s_add_u32 s45, s45, s48"); I(f"v_add_u32 v{T+1}, s45, v{T+1}")
                I(f"v_lshlrev_b32 v{T+2}, 2, v{T+1}"); I(f"s_mov_b32 s45, {G_OFF}")
                I(f"buffer_load_dword v{GR}, v{T+2}, s[{RWS}:{RWS+3}], s45 offen{self.ld}"); vm.issue()
                I(f"v_lshrrev_b32 v{T+2}, 4, v0"); I(f"v_lshlrev_b32 v{T+2}, 4, v{T+2}"); I(f"v_lshl_add_u32 v{VO}, v{T+1}, 10, v{T+2}")
                I("s_lshl_b32 s49, s41, 6"); I(f"s_lshl_b32 s45, s57, 7"); I("s_add_u32 s49, s49, s45")
                I(f"buffer_load_dwordx4 {v(XR,4)}, v{VO}, s[{RD}:{RD+3}], s49 offen"); vm.issue()
                vm.wait(tf); self.poll_check(VP, VPA, "s53", 1)
                I(f"v_lshrrev_b32 v{T}, 3, v0"); I(f"v_and_b32 v{T+1}, 7, v0"); I(f"v_lshlrev_b32 v{T+1}, 4, v{T+1}")
                I(f"v_lshl_add_u32 v{T}, v{T}, 12, v{T+1}")
                I(f"s_add_u32 m0, s{SWK}, {YT}")
                I(f"s_lshl_b32 s44, s57, 18"); I(f"s_lshl_b32 s45, s{SW}, 15"); I("s_add_u32 s44, s44, s45")
                I(f"s_lshl_b32 s45, s56, 7"); I("s_add_u32 s44, s44, s45"); I(f"s_add_u32 s44, s44, {YT_OFF}")
                I(f"buffer_load_dwordx4 v{T}, s[{RWS}:{RWS+3}], s44 offen{self.ld} lds"); vm.issue()
            vm.wait(max(ctok[i2+1], wtok[2*J+3]))
            if not ypub and vm.done > ymark:
                ypub = True; I(f"s_lshl_b32 s44, s{SF}, 2"); I(f"s_add_u32 s44, s44, {FY_OFF}"); self.publish(44, 3)
            if pm and not ppub and vm.done >= pm["t"]:
                ppub = True
                I(f"s_lshl_b32 s44, s{SF}, 7"); I(f"s_lshl_b32 s45, s{SW}, 2"); I("s_add_u32 s44, s44, s45"); I(f"s_add_u32 s44, s44, {FP_OFF}")
                I("v_mov_b32 v2, 1"); I("v_mov_b32 v3, 0"); I(f"buffer_store_dword v2, v3, s[{RWS}:{RWS+3}], s44 offen sc1"); vm.issue()
            if i2 == 30:
                I(f"s_xor_b32 s53, s{SF}, 32"); I("s_lshl_b32 s53, s53, 7"); I(f"s_lshl_b32 s42, s{SW}, 2"); I("s_add_u32 s53, s53, s42"); I(f"s_add_u32 s53, s53, {FP_OFF}")
                I(f"v_mov_b32 v{VPA}, 0")
                if self.o.get("pe"): tp = self.poll_issue(VP, VPA, "s53")
            M = []
            for mt in range(4):
                for qt in range(2):
                    for u in range(2):
                        d = v(OACC + 32*st + 8*mt + 4*qt, 4)
                        M.append(lambda d=d, mt=mt, qt=qt, u=u: I(f"v_mfma_f32_16x16x32_bf16 {d}, {v(WSL[2*(J+u) + (mt >> 1)]+4*(mt & 1),4)}, {v(cslot[i2+u]+4*qt,4)}, {'0' if J + u == 0 else d}"))
            self.stream(M, [(1, 16, fill)] if fill else [])
            free += [cslot[i2], cslot[i2+1]]
            while free and nc < 32:
                cslot[nc] = free.pop(0); cload(nc); nc += 1
            if i2 + 1 == PS or i2 == PS: pst()
        assert ypub and ppub
        self.stamp(7)
        if not self.o.get("pe"):
            tp = self.poll_issue(VP, VPA, "s53")
            for f in put_ops(1): f()
        vm.wait(tp); self.poll_check(VP, VPA, "s53", 1)
        if self.o.get("ostamp"): self.stamp(20)
        I("s_xor_b32 s54, s54, 0x80000")
        for hh in range(2):
            I(f"buffer_load_dwordx4 {v(PR_+4*hh,4)}, v{VL16}, s[{RWS}:{RWS+3}], s54 offen offset:{1024*hh}{self.ld}"); tpp = vm.issue()
        if self.o.get("pe"):
            for f in put_ops(1): f()
        I(f"v_lshrrev_b32 v{T}, 4, v0"); I("s_lshl_b32 s42, s41, 5"); I(f"v_lshl_add_u32 v{T}, v{T}, 3, s42"); I(f"v_bfe_u32 v{T+1}, v0, 2, 2")
        I(f"v_add_u32 v{T}, v{T}, v{T+1}"); I(f"v_lshlrev_b32 v{T}, 7, v{T}"); I(f"v_and_b32 v{T+1}, 3, v0")
        I(f"v_lshl_add_u32 v{T}, v{T+1}, 3, v{T}"); I("s_lshl_b32 s42, s48, 1"); I(f"s_add_u32 s42, s42, {YT}"); I(f"v_add_u32 v{T}, s42, v{T}")
        lg.wait(lg.issued); self.barrier()
        I(f"ds_read_b64_tr_b16 {v(100,2)}, v{T}"); lg.issue()
        I(f"ds_read_b64_tr_b16 {v(102,2)}, v{T} offset:512"); ty2 = lg.issue()
        def mix():
            lg.wait(ty2)
            for e in range(8):
                if e & 1: I(f"v_and_b32 v104, 0xffff0000, v{XR+(e>>1)}"); I(f"v_and_b32 v105, 0xffff0000, v{100+(e>>1)}")
                else: I(f"v_lshlrev_b32 v104, 16, v{XR+(e>>1)}"); I(f"v_lshlrev_b32 v105, 16, v{100+(e>>1)}")
                I(f"v_mul_f32 v{112+e}, v104, v105"); I(f"v_mul_f32 v{112+e}, v{112+e}, v{GR}")
            I(f"v_sub_f32 v{GR}, 1.0, v{GR}")
        sum_partials(mix)
        vm.wait(tpp)
        for e in range(0, 8, 2): I(f"v_pk_add_f32 {v(OACC+e,2)}, {v(OACC+e,2)}, {v(PR_+e,2)}")
        for e in range(8): I(f"v_fmac_f32 v{112+e}, v{OACC+4*(e&1)+(e>>1)}, v{GR}")
        for e in range(4): I(f"v_cvt_pk_bf16_f32 v{108+e}, v{112+2*e}, v{112+2*e+1}")
        I(f"buffer_store_dwordx4 {v(108,4)}, v{VO}, s[{RC}:{RC+3}], s49 offen sc1"); vm.issue()
        self.stamp(16)
        if self.o.get("echo"):
            lp = a.label("EC")
            I("s_sub_u32 s100, s100, s96")
            if self.o.get("cyc"): I("s_lshr_b32 s100, s100, 4")
            I("s_memrealtime s[96:97]"); I("s_waitcnt lgkmcnt(0)")
            a.L(lp)
            I("s_memrealtime s[98:99]"); I("s_waitcnt lgkmcnt(0)"); I("s_sub_u32 s98, s98, s96"); I("s_cmp_lt_u32 s98, s100"); I(f"s_cbranch_scc1 {lp}")
        if self.o.get("dbgout") is not None:
            l = a.label("DB")
            I(f"s_cmp_lg_u32 s2, {self.o['dbgout']}"); I(f"s_cbranch_scc1 {l}"); I(f"s_cmp_lg_u32 s{SW}, 0"); I(f"s_cbranch_scc1 {l}")
            I("s_waitcnt vmcnt(0)")
            order = [0, 1, 2, 3, 8, 10, 11, 4, 5, 12, 6, 7, 16]
            I("v_mov_b32 v20, 0")
            for j, i in enumerate(order):
                I(f"s_mov_b32 s44, {4*i}"); I(f"v_writelane_b32 v20, s44, {j}")
            I(f"s_lshl_b32 s44, s2, 11"); I(f"s_add_u32 s44, s44, {STAMP_OFF}")
            I(f"buffer_load_dword v21, v20, s[{RWS}:{RWS+3}], s44 offen sc1"); I("s_waitcnt vmcnt(0)")
            I("v_readfirstlane_b32 s45, v21"); I("v_subrev_u32 v21, s45, v21")
            self.srd(RDBG, "dbg", 64); I("v_lshlrev_b32 v22, 2, v0")
            I(f"buffer_store_dword v21, v22, s[{RDBG}:{RDBG+3}], 0 offen")
            a.L(l)

HEADER = """; One persistent launch, one 8-wave workgroup per CU (generated by gen/gen_final.py, hand-designed schedule).
"""
def build(opts):
    g = G(opts); k = NAME + "_kernel"
    g.begin(k); g.a.T("; MARK p"); g.proj(); g.a.T("; MARK a"); g.attn(); g.a.T("; MARK t"); g.tailp(); g.end(); g.a.T("; MARK a"); g.attn_rare(); g.a.T("; MARK t"); g.a.L("CODE_END"); g.a.I("s_endpgm")
    n = g.a.fix_hazards()
    txt = "; @launch grid=(256,1,1) block=(512,1,1) lds=163840\n" + HEADER
    txt += '.amdgcn_target "amdgcn-amd-amdhsa--gfx950"\n.text\n' + g.a.text()
    txt += f""".section .rodata,"a"
.p2align 6
.amdhsa_kernel {k}
  .amdhsa_next_free_vgpr 256
  .amdhsa_next_free_sgpr 102
  .amdhsa_accum_offset 256
  .amdhsa_group_segment_fixed_size 0
  .amdhsa_kernarg_size 128
  .amdhsa_user_sgpr_count 2
  .amdhsa_user_sgpr_kernarg_segment_ptr 1
  .amdhsa_system_sgpr_workgroup_id_x 1
.end_amdhsa_kernel
"""
    print(f"instructions {sum(1 for it in g.a.items if it[0] == 'i')}, nops inserted {n}", file=sys.stderr)
    return txt

if __name__ == "__main__":
    opts = {}
    for x in sys.argv[2:]:
        if "=" in x: k_, v_ = x.split("="); opts[k_] = int(v_)
        else: opts[x] = True
    open(sys.argv[1], "w").write(build(opts))
```

```python
import sys, math, struct
sys.path.insert(0, "gen")
from asmlib import *

NAME = "gated_mix__ssm_conv_h3__compressed_kv_cla__prompt"
MB = 1 << 20
KV_OFF, Q_OFF, CTX_OFF, KVT_OFF, YT_OFF, G_OFF = 0, 32*MB, 48*MB, 64*MB, 66*MB, 68*MB
XC_OFF = 40*MB
PP_OFF = 40*MB
WOT_OFF = 32*MB
FLG_OFF = 68*MB + 65536
FK_OFF, FY_OFF, FC_OFF, FP_OFF = FLG_OFF, FLG_OFF + 4096, FLG_OFF + 8192, FLG_OFF + 32768
STAMP_OFF = 69*MB
WS_SIZE = 70*MB
P = dict(q=64, k=66, v=68, shift=70, ssmk=72, ssmD=74, bx=76, ckv=78, wq=80, wuk=82, wuv=84, wo=86, gate=88, out=90, dbg=92, ws=94)
SW, SHEAD, SIDX, SWK, SF = 3, 4, 5, 6, 7
RA, RB, RC, RWS, RD, RE, RT, RDBG = 8, 12, 16, 20, 24, 28, 56, 60
MFMA = "v_mfma_f32_32x32x16_bf16"
LOG2E = 1.4426950408889634
F_KV, F_CA, F_CB, F_Y = 1, 2, 4, 8
def f2u(x): return "0x%08x" % struct.unpack("<I", struct.pack("<f", x))[0]
def rep4(b): return b * 0x01010101

class G:
    def __init__(self, opts):
        self.a = Asm(); self.o = opts
        self.GSH, self.FSH = (8, 10) if opts.get("lin") else (11, 8)
        self.vm = Cnt(self.a, "vmcnt", 63); self.lg = Cnt(self.a, "lgkmcnt", 15)
        self.st = "" if opts.get("plainst") else (" sc1 nt" if opts.get("ntst") else " sc1"); self.ld = "" if opts.get("plainld") else " sc1"
    def I(self, t): self.a.I(t)
    def srd(self, r, ptr, nbytes):
        I = self.I
        I(f"s_mov_b32 s{r}, s{P[ptr]}"); I(f"s_mov_b32 s{r+1}, s{P[ptr]+1}")
        I(f"s_mov_b32 s{r+2}, {nbytes}"); I(f"s_mov_b32 s{r+3}, 0x00020000")
    def save(self): return (self.vm.issued, self.vm.done, self.lg.issued, self.lg.done)
    def restore(self, s_): self.vm.issued, self.vm.done, self.lg.issued, self.lg.done = s_
    def stream(self, mf, fills):
        n = len(mf); slots = [[] for _ in range(n + 1)]
        for (s0, e0, cl) in fills:
            m = e0 - s0
            for j, c in enumerate(cl): slots[s0 + 1 + (j * m) // len(cl)].append(c)
        for c in slots[0]: c()
        for i in range(n):
            mf[i]()
            for c in slots[i+1]: c()
    def stamp(self, i, dyn=None):
        if self.o.get("echo") == i:
            self.I("s_memtime s[100:101]" if self.o.get("cyc") else "s_memrealtime s[100:101]"); self.I("s_waitcnt lgkmcnt(0)")
        if not self.o.get("stamp"): return
        I = self.I
        I("s_memrealtime s[96:97]"); I("s_memtime s[100:101]")
        I("s_lshl_b32 s98, s2, 3"); I(f"s_add_u32 s98, s98, s{SW}"); I("s_lshl_b32 s98, s98, 8")
        I(f"s_add_u32 s98, s98, {STAMP_OFF + 4*i}")
        if dyn is not None:
            I(f"s_lshl_b32 s99, s{dyn}, 4"); I("s_add_u32 s98, s98, s99")
        I("s_waitcnt lgkmcnt(0)")
        I("v_mov_b32 v2, s96"); I("v_mov_b32 v3, 0")
        I(f"buffer_store_dword v2, v3, s[{RWS}:{RWS+3}], s98 offen")
        I("v_mov_b32 v2, s100")
        I(f"buffer_store_dword v2, v3, s[{RWS}:{RWS+3}], s98 offen offset:128")
    OOB = 0x40000000
    def publish(self, soff, val=1, srd=RWS, byte=False, idx=None):
        I = self.I
        self.oob_sel()
        if idx is not None: I(f"s_and_b32 s98, s{SIDX}, 3"); I(f"s_cmp_eq_u32 s98, {idx}"); I(f"s_cselect_b32 s99, s99, {self.OOB}")
        I(f"v_mov_b32 v2, {val}"); I("v_mov_b32 v3, s99")
        I(f"buffer_store_{'byte' if byte else 'dword'} v2, v3, s[{srd}:{srd+3}], s{soff} offen sc1"); self.vm.issue()
    def oob_sel(self):
        self.I(f"s_cmp_eq_u32 s{SW}, 0"); self.I(f"s_cselect_b32 s99, 0, {self.OOB}")
    def poll_issue(self, vd, vaddr, soff, srd=RWS):
        self.I(f"buffer_load_dword v{vd}, v{vaddr}, s[{srd}:{srd+3}], {soff} offen sc1"); return self.vm.issue()
    def poll_check(self, vd, vaddr, soff, want, srd=RWS):
        a = self.a; I = self.I
        l = a.label("PCK"); lp = a.label("POLL")
        I(f"s_mov_b32 s98, {want}"); I("s_mov_b32 s99, 20000")
        a.L(lp)
        I(f"v_and_b32 v{vd}, s98, v{vd}"); I(f"v_cmp_ne_u32 vcc, s98, v{vd}"); I(f"s_cbranch_vccz {l}")
        I("s_sleep 2")
        I(f"buffer_load_dword v{vd}, v{vaddr}, s[{srd}:{srd+3}], {soff} offen sc1")
        I("s_sub_u32 s99, s99, 1"); I("s_cmp_lg_u32 s99, 0"); I("s_waitcnt vmcnt(0)"); I(f"s_cbranch_scc1 {lp}")
        a.L(l)
    def phys(self, d, s_, t, E=None):
        I = E or self.I; p = self.o.get("hperm", 0)
        if p == 0: I(f"s_mov_b32 s{d}, s{s_}")
        elif p == 1: I(f"s_and_b32 s{t}, s{s_}, 3"); I(f"s_lshl_b32 s{t}, s{t}, 3"); I(f"s_lshr_b32 s{d}, s{s_}, 2"); I(f"s_or_b32 s{d}, s{d}, s{t}")
        elif p >= 32:
            I(f"s_lshr_b32 s{t}, s{s_}, 3"); I(f"s_add_u32 s{t}, s{t}, {p - 32}"); I(f"s_and_b32 s{t}, s{t}, 3")
            I(f"s_and_b32 s{d}, s{s_}, 7"); I(f"s_lshl_b32 s{d}, s{d}, 2"); I(f"s_or_b32 s{d}, s{d}, s{t}")
        else: I(f"s_mul_i32 s{t}, s{s_}, {p}"); I(f"s_and_b32 s{d}, s{t}, 31")
    def code_prefetch(self, start, end, msk, sp, st):
        I = self.I; lp = self.a.label("PC")
        I(f"s_getpc_b64 s[{sp}:{sp+1}]"); self.a.L(lp)
        if start: I(f"s_sub_u32 s{sp}, s{sp}, {lp}-{start}"); I(f"s_subb_u32 s{sp+1}, s{sp+1}, 0")
        I(f"s_and_b32 s{st}, s{SIDX}, {msk}"); I(f"s_lshl_b32 s{st}, s{st}, 13"); I(f"s_add_u32 s{st}, s{st}, s{SWK}")
        I("v_and_b32 v2, 7, v0"); I(f"v_lshl_add_u32 v2, v2, 7, s{st}"); I(f"v_min_u32 v2, {end}-{start or lp}-4, v2")
        I(f"v_mov_b32 v3, s{sp+1}"); I(f"v_add_co_u32 v2, vcc, s{sp}, v2"); I("v_addc_co_u32 v3, vcc, 0, v3, vcc")
        I("global_load_dword v1, v[2:3], off")
    def barrier(self): self.I("s_barrier")
    def sync_all(self):
        self.I("s_waitcnt vmcnt(0) lgkmcnt(0)"); self.vm.mark_all_done(); self.lg.mark_all_done(); self.barrier()

    def begin(self, kname):
        a = self.a; I = self.I
        a.T(f".globl {kname}\n.p2align 8\n.type {kname},@function"); a.L(kname)
        self.endl = a.label("END")
        if self.o.get("stamp"): I("s_memrealtime s[30:31]")
        if self.o.get("echo"): I("s_memtime s[96:97]" if self.o.get("cyc") else "s_memrealtime s[96:97]")
        I("s_load_dwordx16 s[64:79], s[0:1], 0"); I("s_load_dwordx16 s[80:95], s[0:1], 64")
        I("s_cmp_ge_u32 s2, 256"); I(f"s_cbranch_scc1 {self.endl}")
        I("v_lshrrev_b32 v1, 6, v0"); I("v_and_b32 v0, 63, v0"); I(f"v_readfirstlane_b32 s{SW}, v1")
        I("s_and_b32 s7, s2, 7"); I("s_lshl_b32 s7, s7, 2")
        I(f"s_lshr_b32 s{SIDX}, s2, 3"); I(f"s_lshr_b32 s{SHEAD}, s{SIDX}, 3"); I(f"s_add_u32 s{SHEAD}, s{SHEAD}, s7")
        I(f"s_and_b32 s{SIDX}, s{SIDX}, 7"); I(f"s_lshl_b32 s{SWK}, s{SW}, 10")
        I(f"s_lshl_b32 s{SF}, s{SHEAD}, 3"); I(f"s_add_u32 s{SF}, s{SF}, s{SIDX}")
    def end(self):
        self.a.L(self.endl); self.I("s_endpgm")

    def proj(self):
        a = self.a; I = self.I; vm = self.vm; lg = self.lg
        QA_LDS = 65536
        ACC = {"K": 64, "V": 128, "Q": 64}
        FX = [16, 24]; FW = [192, 32]
        VWA = 4; VSK, VSV, VOX, VOW, VST = 8, 9, 10, 11, 12; VXA = 224; T = 232
        NB = 0; XC = self.o.get("xc", 0)
        ST = [("KV", c) for c in range(NB)] + [("K", c) for c in range(NB, 8)] + [("V", c) for c in range(7, NB - 1, -1)] + [("Q", c) for c in range(8)]
        NS = len(ST); TK = 7; TV = NS - 9; TQ = NS - 8
        I("v_lshrrev_b32 v13, 3, v0"); I(f"s_lshl_b32 s40, s{SW}, 3"); I("v_add_u32 v13, s40, v13"); I("v_lshlrev_b32 v13, 10, v13")
        I(f"s_lshr_b32 s41, s{SW}, 1"); I(f"s_xor_b32 s40, s41, s{SW}"); I("s_and_b32 s40, s40, 1"); I("s_lshl_b32 s40, s40, 2")
        I("v_lshrrev_b32 v14, 4, v0"); I("v_add_u32 v15, s40, v14")
        I("v_and_b32 v3, 7, v0"); I("v_xor_b32 v15, v15, v3"); I(f"v_lshl_add_u32 v{VOX}, v15, 4, v13")
        I(f"s_lshl_b32 s40, s{SW}, 2"); I("v_add_u32 v13, s40, v14"); I("v_lshlrev_b32 v13, 13, v13")
        I("s_and_b32 s41, s41, 1"); I("s_lshl_b32 s41, s41, 3"); I("v_lshl_add_u32 v15, v14, 1, s41"); I("v_and_b32 v3, 15, v0"); I("v_xor_b32 v15, v15, v3")
        I("v_lshl_add_u32 v13, v15, 4, v13"); self.phys(40, SHEAD, 41); I("s_lshl_b32 s40, s40, 8"); I(f"v_add_u32 v{VOW}, s40, v13")
        I(f"v_lshlrev_b32 v{VST}, 4, v0")
        I(f"s_lshl_b32 s44, s{SIDX}, 18")
        for i in range(1, 4): I(f"s_add_u32 s{44+i}, s44, {65536*i}")
        ROT = self.o.get("rot", 2)
        if ROT == 0: I("s_mov_b32 s33, 0")
        elif ROT == 1: I(f"s_mov_b32 s33, s{SIDX}")
        elif ROT == 2: I(f"s_lshr_b32 s33, s{SHEAD}, 2"); I(f"s_add_u32 s33, s33, s{SIDX}")
        elif ROT == 3: I(f"s_lshr_b32 s33, s{SHEAD}, 2"); I(f"s_add_u32 s33, s33, s{SIDX}"); I(f"s_lshl_b32 s34, s{SHEAD}, 1"); I("s_add_u32 s33, s33, s34")
        elif ROT == 4: I(f"s_lshr_b32 s33, s{SHEAD}, 2")
        if self.o.get("rotq"): I(f"s_lshl_b32 s32, s{SHEAD}, 1"); I("s_add_u32 s32, s32, s33")
        else: I("s_mov_b32 s32, s33")
        I("s_waitcnt lgkmcnt(0)")
        if self.o.get("stamp"): I("s_memrealtime s[28:29]")
        self.srd(RA, "ckv", 2*MB); self.srd(RB, "wuk", 4*MB); self.srd(RC, "wuv", 4*MB)
        def xbase(t):
            k, c = ST[t]
            return (32768, 131072, 0)[((16 + c) if k == "Q" else (15 - c + NB)) % 3]
        units = [(t, m) for t in range(NS) for m in ST[t][0]]
        uidx = {u: i for i, u in enumerate(units)}
        def wbase(t, m): return 65536 + (uidx[(t, m)] % 4)*16384
        WE = self.o.get("wearly", 2)
        def wn(t): return t - 1 if t >= WE else t
        items = []
        lastx = {}
        for t in range(NS):
            k, c = ST[t]
            for m in k:
                u = uidx[(t, m)]
                def w(i, t=t, m=m, c=c):
                    if i == 0: I(f"s_add_u32 s34, s{32 if m == 'Q' else 33}, {c}"); I("s_and_b32 s34, s34, 7"); I("s_lshl_b32 s34, s34, 19")
                    I(f"s_add_u32 m0, s{SWK}, {wbase(t, m) + i*8192}"); I(f"s_add_u32 s41, s34, {i*262144}")
                    r = {"K": RB, "V": RC, "Q": RE}[m]
                    if self.o.get("nodma") and t > 4: dtok[wn(t)] = vm.issued; return
                    I(f"buffer_load_dwordx4 v{VOW}, s[{r}:{r+3}], s41 offen lds"); dtok[wn(t)] = vm.issue()
                items.append((wn(t), wn(units[u-4][0]) if u >= 4 else -1, [lambda i=i, w=w: w(i) for i in range(2)]))
            key = ("Q" if k == "Q" else "C", c); prev = lastx.get(xbase(t))
            if prev is None or prev[1] != key:
                def x(i, t=t, k=k, c=c):
                    if i == 0: I(f"s_add_u32 s35, s{32 if k == 'Q' else 33}, {c}"); I("s_and_b32 s35, s35, 7"); I("s_lshl_b32 s35, s35, 7")
                    I(f"s_add_u32 m0, s{SWK}, {xbase(t) + i*8192}"); I(f"s_add_u32 s41, s{(48 if k == 'Q' else 44)+i}, s35")
                    r = (RWS if XC else RD) if k == "Q" else RA
                    if self.o.get("nodma") and t > 4: dtok[t] = vm.issued; return
                    I(f"buffer_load_dwordx4 v{VOX}, s[{r}:{r+3}], s41 offen{self.ld if (XC and k == 'Q') else ''} lds"); dtok[t] = vm.issue()
                items.append((t, prev[0] if prev else -1, [lambda i=i, x=x: x(i) for i in range(4)]))
            lastx[xbase(t)] = (t, key)
        items.sort(key=lambda it: it[0])
        dtok = {}
        def take(done, upto=99):
            out = []
            for it in list(items):
                if it[1] <= done and it[0] <= upto: out += it[2]; items.remove(it)
            return out
        for f in take(-1, 0): f()
        self.srd(RWS, "ws", WS_SIZE); self.srd(RDBG, "dbg", 256)
        if self.o.get("wsoff"): I(f"s_add_u32 s{RWS}, s{RWS}, {self.o['wsoff']*MB}"); I(f"s_addc_u32 s{RWS+1}, s{RWS+1}, 0")
        self.stamp(31)
        if self.o.get("stamp"):
            I("v_mov_b32 v2, s30"); I("s_sub_u32 s98, s98, 124"); I(f"buffer_store_dword v2, v3, s[{RWS}:{RWS+3}], s98 offen")
            I("v_mov_b32 v2, s28"); I(f"buffer_store_dword v2, v3, s[{RWS}:{RWS+3}], s98 offen offset:120")
        I(f"s_lshl_b32 s48, s{SIDX}, 17"); I("s_add_u32 s49, s48, 65536")
        I(f"s_sub_u32 s50, 15, s{SIDX}"); I("s_lshl_b32 s50, s50, 17"); I("s_add_u32 s51, s50, 65536")
        if XC:
            for i in range(4): I(f"s_add_u32 s{48+i}, s{48+i}, {XC_OFF}")
        I(f"s_and_b32 s42, s{SW}, 3"); I("s_lshl_b32 s42, s42, 6"); I(f"s_lshr_b32 s43, s{SW}, 2"); I("s_lshl_b32 s43, s43, 1")
        I("v_and_b32 v13, 15, v0"); I("v_lshrrev_b32 v15, 4, v0")
        I("v_lshrrev_b32 v14, 1, v13"); I("v_xor_b32 v14, v14, v15"); I("v_lshlrev_b32 v14, 4, v14")
        I("v_add_u32 v3, s42, v13"); I(f"v_lshl_add_u32 v{VXA}, v3, 7, v14")
        I("v_and_b32 v2, 8, v13"); I("v_add_u32 v3, v3, v2"); I(f"v_lshl_add_u32 v{VXA+4}, v3, 7, v14")
        for pt in range(2):
            b = VXA + 4*pt
            I(f"v_xor_b32 v{b+1}, 64, v{b}"); I(f"v_add_u32 v{b+2}, 0x20000, v{b}"); I(f"v_add_u32 v{b+3}, 0x20000, v{b+1}")
        I("v_lshlrev_b32 v3, 4, v13"); I("v_and_b32 v2, 1, v15"); I("v_lshl_add_u32 v3, v2, 9, v3"); I("v_lshrrev_b32 v14, 1, v15")
        I("v_lshlrev_b32 v3, 4, v13"); I(f"v_lshl_add_u32 v{VSK}, v15, {self.GSH}, v3")
        I("v_bfe_u32 v13, v0, 2, 2"); I("v_lshl_add_u32 v14, v15, 3, v13"); I("v_lshlrev_b32 v14, 8, v14")
        I("v_and_b32 v3, 3, v0"); I("v_lshl_add_u32 v14, v3, 3, v14"); I("v_add_u32 v14, 0x10000, v14")
        I("v_lshl_add_u32 v13, v2, 2, v13"); I("s_lshl_b32 s40, s43, 1"); I("v_xor_b32 v13, s40, v13"); I(f"v_lshl_add_u32 v{VWA}, v13, 5, v14")
        for dt in range(1, 4): I(f"v_xor_b32 v{VWA+dt}, {dt << 5}, v{VWA}")
        I(f"s_lshl_b32 s54, s{SHEAD}, 4"); I(f"s_lshl_b32 s55, s{SIDX}, 1"); I("s_add_u32 s54, s54, s55")
        I(f"s_bfe_u32 s55, s{SW}, 0x10001"); I("s_add_u32 s54, s54, s55"); I("s_lshl_b32 s54, s54, 16")
        I(f"s_and_b32 s55, s{SW}, 1"); I("s_lshl_b32 s55, s55, 14"); I("s_add_u32 s54, s54, s55")
        I(f"s_lshl_b32 s55, s43, {self.FSH+1}"); I("s_add_u32 s52, s54, s55"); I("s_add_u32 s52, s52, 0x8000")
        I(f"s_lshl_b32 s55, s43, {self.FSH}"); I("s_add_u32 s54, s54, s55")
        XG = T; GW = T + 4; hl = {}
        def gate_loads():
            L = []
            def E(t): L.append(lambda: I(t))
            def V(t):
                def f(): I(t); hl["t"] = vm.issue()
                L.append(f)
            E(f"s_lshl_b32 s40, s{SHEAD}, 7"); E(f"s_lshl_b32 s39, s{SIDX}, 2"); E("s_add_u32 s40, s40, s39"); E(f"s_add_u32 s40, s40, {FK_OFF}")
            E(f"s_lshl_b32 s39, s{SF}, 7"); E(f"s_add_u32 s39, s39, {FP_OFF}"); E("v_and_b32 v13, 7, v0"); E("v_lshl_add_u32 v13, v13, 2, s39")
            E("v_writelane_b32 v13, s40, 0")
            E(f"s_lshr_b32 s39, s{SHEAD}, 2"); E("s_lshl_b32 s39, s39, 7"); E(f"s_and_b32 s40, s{SHEAD}, 3"); E("s_lshl_b32 s40, s40, 2"); E("s_add_u32 s39, s39, s40")
            E(f"s_lshl_b32 s40, s{SIDX}, 10"); E("s_add_u32 s40, s40, s39"); E(f"s_add_u32 s40, s40, {FC_OFF}")
            E("v_writelane_b32 v13, s40, 1")
            E(f"s_sub_u32 s40, 15, s{SIDX}"); E("s_lshl_b32 s40, s40, 10"); E("s_add_u32 s40, s40, s39"); E(f"s_add_u32 s40, s40, {FC_OFF}")
            E("v_writelane_b32 v13, s40, 2")
            E(f"s_lshl_b32 s40, s{SF}, 2"); E(f"s_add_u32 s40, s40, {FY_OFF}"); E("v_writelane_b32 v13, s40, 3"); E("v_mov_b32 v14, 0")
            def oo(): self.oob_sel(); I("v_add_u32 v13, s99, v13")
            L.append(oo)
            V(f"buffer_store_dword v14, v13, s[{RWS}:{RWS+3}], 0 offen sc1")
            E("s_lshl_b32 s37, s2, 3"); E(f"s_add_u32 s37, s37, s{SW}"); E("s_lshl_b32 s38, s37, 10")
            L.append(lambda: self.srd(RD, "q", 2*MB)); L.append(lambda: self.srd(RE, "wq", 4*MB)); L.append(lambda: self.srd(RT, "gate", 1024))
            V(f"buffer_load_dwordx4 {v(XG,4)}, v{VST}, s[{RD}:{RD+3}], s38 offen")
            V(f"buffer_load_dwordx4 {v(GW,4)}, v{VST}, s[{RT}:{RT+3}], 0 offen")
            return L
        def gate_ops():
            L = []; E = lambda t: L.append(lambda: I(t)); Z = T + 8
            L.append(lambda: vm.wait(hl["t"]))
            def xs():
                I(f"s_add_u32 s38, s38, {XC_OFF}"); I(f"buffer_store_dwordx4 {v(XG,4)}, v{VST}, s[{RWS}:{RWS+3}], s38 offen{self.st}"); vm.issue()
            if XC: L.append(xs)
            E(f"v_dot2_f32_bf16 v{Z}, v{XG}, v{GW}, 0")
            for i in range(1, 4): E(f"v_dot2_f32_bf16 v{Z}, v{XG+i}, v{GW+i}, v{Z}")
            for m in ("quad_perm:[1,0,3,2] row_mask:0xf", "quad_perm:[2,3,0,1] row_mask:0xf", "row_half_mirror row_mask:0xf", "row_mirror row_mask:0xf",
                      "row_bcast:15 row_mask:0xa", "row_bcast:31 row_mask:0xc"):
                E(f"v_add_f32_dpp v{Z}, v{Z}, v{Z} {m} bank_mask:0xf")
            E(f"v_readlane_b32 s36, v{Z}, 63"); E(f"v_mov_b32 v{Z+1}, {f2u(-LOG2E)}"); E(f"v_mul_f32 v{Z}, s36, v{Z+1}")
            E(f"v_exp_f32 v{Z}, v{Z}"); E(f"v_add_f32 v{Z}, 1.0, v{Z}"); E(f"v_rcp_f32 v{Z}, v{Z}")
            E("s_lshl_b32 s38, s37, 2"); E(f"s_add_u32 s38, s38, {G_OFF}"); E(f"v_mov_b32 v{Z+1}, 0")
            def gs():
                I(f"buffer_store_dword v{Z}, v{Z+1}, s[{RWS}:{RWS+3}], s38 offen{self.st}"); vm.issue()
            L.append(gs)
            return L
        toks = {}
        def rdx(t, mt):
            m = ST[t][0]; xb = xbase(t); pt = 0
            off = (xb & 65535) + ((mt >> 1)*4096 + (mt & 1)*1024 if pt else mt*2048)
            def f(kk):
                va = VXA + 4*pt + 2*(xb >> 17) + (kk ^ (mt & 1))
                I(f"ds_read_b128 {v(FX[mt & 1]+4*kk,4)}, v{va} offset:{off}"); toks[("x", t, mt, kk)] = lg.issue()
            return [lambda: f(0), lambda: f(1)]
        def rdw(t, dt):
            m = ST[t][0]
            def f(kk, h):
                I(f"ds_read_b64_tr_b16 {v(FW[t & 1]+8*dt+4*kk+2*h,2)}, v{VWA+dt} offset:{wbase(t, m)-65536+kk*8192+h*1024}"); toks[("w", t, dt, kk)] = lg.issue()
            return [lambda kk=kk, h=h: f(kk, h) for kk in range(2) for h in range(2)]
        def atile(m, mt, dt): return ACC[m] + (4*(((mt >> 1)*4 + dt)*2 + (mt & 1)) if m == "V" else 4*(mt*4 + dt))
        def mfs(t, mt):
            m = ST[t][0]; first = t == 0 or ST[t-1][0] != m; L = []
            order = [(dt, kk) for dt in range(4) for kk in range(2)] if not self.o.get("nochain") else [(dt, kk) for kk in range(2) for dt in range(4)]
            for dt, kk in order:
                def f(dt=dt, kk=kk):
                    lg.wait(max(toks[("x", t, mt, kk)], toks[("w", t, dt, kk)]))
                    d = v(atile(m, mt, dt), 4); X = v(FX[mt & 1]+4*kk, 4); W = v(FW[t & 1]+8*dt+4*kk, 4)
                    c = "0" if (first and kk == 0) else d
                    I(f"v_mfma_f32_16x16x32_bf16 {d}, {X}, {W}, {c}" if m == "V" else f"v_mfma_f32_16x16x32_bf16 {d}, {W}, {X}, {c}")
                L.append(f)
            return L
        def pieces(m):
            fs = 1024 if m == "Q" else 1 << self.FSH
            if m == "V": return [(atile(m, 2*p, dt), p*8192 + dt*fs) for p in range(2) for dt in range(4)]
            return [(atile(m, mt, 2*j), (mt >> 1)*8192 + ((mt & 1)*4 + j)*fs) for mt in range(4) for j in range(2)]
        def kv_out(m):
            out = []
            for b, off in pieces(m):
                pk = [lambda i=i, b=b: I(f"v_cvt_pk_bf16_f32 v{b+i}, v{b+2*i}, v{b+2*i+1}") for i in range(4)]
                if m == "K": pk = [lambda i=i, b=b: I(f"v_mul_f32 v{b+i}, {f2u(LOG2E / math.sqrt(128.0))}, v{b+i}") for i in range(8)] + pk
                def st(b=b, off=off):
                    if self.o.get("nost"): return
                    I(f"s_add_u32 s41, s{54 if m == 'K' else 52}, {off}")
                    I(f"buffer_store_dwordx4 {v(b,4)}, v{VSK}, s[{RWS}:{RWS+3}], s41 offen{self.st}"); vm.issue()
                out.append((pk, st))
            return out
        side = {}; late = {}
        def spread(ops, t0, t1, dst=side, ks=(0, 1, 2)):
            sl = [(t, k) for t in range(t0, t1) for k in ks]; n = len(ops)
            for j, key in enumerate(sl): dst.setdefault(key, []).extend(ops[n*j//len(sl): n*(j+1)//len(sl)])
        PG = self.o.get("pg", 0)
        spread(gate_loads(), PG, PG + 1); spread(gate_ops(), PG + 2, PG + 3)
        def wtouch(r, half, wv):
            def f():
                I(f"s_cmp_eq_u32 s{SW}, {wv}"); I(f"s_cselect_b32 s99, 0, {self.OOB}")
                self.phys(39, SHEAD, 40); I("s_lshl_b32 s39, s39, 8"); I(f"s_lshl_b32 s40, s{SIDX}, 19"); I("s_add_u32 s40, s40, s39"); I(f"s_add_u32 s40, s40, {half*32*8192}")
                I("v_lshrrev_b32 v3, 1, v0"); I("v_lshlrev_b32 v3, 13, v3"); I("v_and_b32 v2, 1, v0"); I("v_lshl_add_u32 v3, v2, 7, v3"); I("v_add_u32 v3, s99, v3")
                I(f"buffer_load_dword v1, v3, s[{r}:{r+3}], s40 offen"); vm.issue()
            return f
        for nm, r, dflt in (("tk", RB, -1), ("tv", RC, 1), ("tq", RE, 3)):
            t0 = self.o.get(nm, dflt)
            if t0 >= 0:
                for half in range(2): side.setdefault((t0 + half, 2), []).append(wtouch(r, half, half))
        KN = self.o.get("kn", 8); VD = self.o.get("vd", 0); VN = self.o.get("vn", 5)
        KO = kv_out("K"); VO = kv_out("V"); SK = self.o.get("sk", 2); SG_ = self.o.get("sgp", 6)
        spread(sum((p for p, _ in KO), []), TK + 1, min(TK + 3, TQ), ks=(0, 1))
        npk = 2 * (min(TK + 3, TQ) - TK - 1)
        spread([s_ for _, s_ in KO], TK + 1, TK + 1 + KN, dst=late, ks=(SK,))
        spread(sum((p for p, _ in VO), []), TQ, TQ + 1, ks=(0, 1))
        spread([s_ for _, s_ in VO], TQ + VD, TQ + VD + VN, dst=late, ks=(SK,))
        PK_, PV_ = TK + KN + 2, TQ + VD + VN
        assert PK_ <= NS - 5 and PV_ <= NS - 2
        QE = []; EQ = lambda t: QE.append(lambda: I(t))
        EQ(f"s_and_b32 s55, s{SW}, 2"); EQ("s_lshl_b32 s55, s55, 15"); EQ(f"s_add_u32 s55, s55, {QA_LDS}")
        EQ(f"s_and_b32 s54, s{SW}, 1"); EQ("s_lshl_b32 s54, s54, 14"); EQ("s_add_u32 s55, s55, s54")
        EQ("s_lshl_b32 s54, s43, 10"); EQ("s_add_u32 s55, s55, s54"); EQ(f"v_add_u32 v14, s55, v{VST}")
        if self.o.get("ct2", 21) >= 0: side.setdefault((self.o.get("ct2", 21), 1), []).append(lambda: (self.code_prefetch(None, "HOT_END", 7, 36, 40), vm.issue()))
        spread(QE, NS - 1, NS)
        spread([lambda: self.srd(RB, "ssmk", 2*MB), lambda: self.srd(RA, "k", 2*MB), lambda: self.srd(RC, "v", 2*MB), lambda: self.srd(RD, "shift", 4096), lambda: self.srd(RE, "wo", 4*MB)], NS - 2, NS - 1)
        spread([lambda r=r: I(f"v_mov_b64 {v(192+2*r,2)}, 0") for r in range(32) if not 16 <= r < 20], NS - 1, NS)
        side.setdefault((NS - 1, 3), []).extend([lambda r=r: I(f"v_mov_b64 {v(192+2*r,2)}, 0") for r in range(16, 20)])
        def fkoff():
            I(f"s_lshl_b32 s40, s{SHEAD}, 7"); I(f"s_lshl_b32 s41, s{SIDX}, 2"); I("s_add_u32 s40, s40, s41"); I(f"s_add_u32 s40, s40, {FK_OFF}")
        def w0only(fn):
            l = a.label("NP"); I(f"s_cmp_lg_u32 s{SW}, 0"); I(f"s_cbranch_scc1 {l}"); fn(); a.L(l)
        def k0(i):
            I(f"s_lshl_b32 s40, s{SW}, 12"); I("s_add_u32 m0, s40, 0x8000")
            I(f"s_lshl_b32 s41, s{SHEAD}, 20"); I("s_add_u32 s41, s41, s40")
            I(f"buffer_load_dwordx4 v{VST}, s[{RWS}:{RWS+3}], s41 offen offset:{1024*i}{self.ld} lds"); vm.issue()
        self.barrier()
        for f in take(-1, 1): f()
        vm.wait(dtok[0]); self.barrier()
        self.stamp(1)
        def first_reads(t):
            x = rdx(t, 0); w = [rdw(t, dt) for dt in range(4)]
            return [x[0]] + w[0][:2] + [x[1]] + w[0][2:] + w[1], w[2] + w[3]
        L, rest = first_reads(0)
        for f in L: f()
        VPK = self.o.get("vpk", 2); mark = {}; TZ = PG + 4; TS = 10; DS = self.o.get("dsteps", 3)
        pend = take(-1)
        for t in range(NS):
            for k in range(4):
                M = mfs(t, k); n = len(M); PB = []
                if k == 3 and t < NS - 1:
                    assert not pend
                    if t == TS + 2: vm.wait(td); w0only(lambda: self.poll_check(14, 13, "0", rep4(1), RDBG))
                    if t == NS - 3: vm.wait(tp); w0only(lambda: self.poll_check(15, 13, "s53", 1))
                    lg.wait(lg.issued)
                    if not (self.o.get("nowait") and t > 4): vm.wait(dtok.get(t+1, 0))
                    if t == TZ: vm.wait(mark[TZ-2])
                    if t == PK_: vm.wait(mark[TK + KN])
                    if t == PV_: vm.wait(mark[PV_ - 1])
                    self.barrier()
                    ps = self.o.get("pstamp")
                    if ps is not None and 0 <= t - int(ps) + 1 < 13: self.stamp(17 + t - int(ps) + 1); vm.issue(2)
                    if TZ <= t < TZ + 4: PB.append(lambda t=t: self.publish(SF, 1, RDBG, True, idx=t - TZ))
                    if t == PK_: PB.append(lambda: (fkoff(), self.publish(40, 1)))
                    if t == PV_: PB.append(lambda: (fkoff(), self.publish(40, 3)))
                    pend = take(t)
                    if t == NS - 3: pend += [lambda i=i: k0(i) for i in range(4)]
                    nd = len(pend) // (DS + 1)
                else:
                    nd = -(-len(pend) // max(1, (3 if t == 0 else DS) - k))
                D, pend = pend[:nd], pend[nd:]
                fl = []
                if not (t == NS - 1 and k == 3):
                    if k == 3:
                        if t + 1 >= WE: fl.append((0, 2, rdx(t+1, 0))); rest = []
                        else:
                            L, rest = first_reads(t+1); nr = self.o.get("nr", 4)
                            fl.append((0, 7, L + rest[:nr])); rest = rest[nr:]
                    else:
                        if k == 0 and rest: fl.append((-1, 2, rest))
                        fl.append((0, 2, rdx(t, k+1)) if not (k == 0 and rest) else (2, 4, rdx(t, k+1)))
                        if WE <= t + 1 < NS:
                            wr = sum((rdw(t+1, dt) for dt in range(4)), [])
                            fl.append((2, 8 if k < 2 else 6, wr[(0, 6, 12)[k]:(6, 12, 16)[k]]))
                if PB: fl.append((1, 2, PB))
                if D: fl.append((0, n, D))
                if side.get((t, k)): fl.append((0, n, side[(t, k)]))
                if late.get((t, k)): fl.append((SG_, min(n, SG_ + 4), late[(t, k)]))
                self.stream(M, fl)
                if k == 2: mark[t] = vm.issued
                if t == TS and k == 0:
                    self.oob_sel(); I("v_lshl_add_u32 v13, v0, 2, s99"); td = self.poll_issue(14, 13, "0", RDBG)
                if t == NS - 4 and k == 0:
                    self.oob_sel(); I("v_and_b32 v13, 7, v0"); I("v_lshl_add_u32 v13, v13, 2, s99")
                    I(f"s_lshl_b32 s53, s{SHEAD}, 7"); I(f"s_add_u32 s53, s53, {FK_OFF}")
                    tp = self.poll_issue(15, 13, "s53")
                if t == NS - 1 and k == VPK: self.poll_issue(15, 13, "s53")
            if t == TK: self.stamp(2)
            if t == TV: self.stamp(13)
        assert not items
        self.stamp(3)
        I("v_mov_b32 v16, v13")
        if VPK > 3: self.poll_issue(15, 13, "s53")
        for b, off in pieces("Q"):
            for i in range(4): I(f"v_cvt_pk_bf16_f32 v{b+i}, v{b+2*i}, v{b+2*i+1}")
            I(f"ds_write_b128 v14, {v(b,4)} offset:{off}"); lg.issue()
        self.attn_setup()
        vm.wait(vm.issued); w0only(lambda: self.poll_check(15, 16, "s53", 3))
        lg.wait(lg.issued); self.barrier()

    def attn_setup(self): self.attn(True)
    def attn(self, setup=False):
        a = self.a; I = self.I; vm = self.vm; lg = self.lg
        M16 = "v_mfma_f32_16x16x32_bf16"
        ML = 155648; QA_LDS = 65536; QB_LDS = 131072
        O = 192; QF = 160; NM = 144; S = [112, 128]; PP = [96, 104]; RING = 64; NR = 8; E = 56; PK = 16
        VK, VV, VL16, VSC, LM, THR, NINF, VQ, TMP = 4, 5, 6, 7, 8, 9, 10, 11, 12
        LS, ONES, BIAS = 152, 60, 11.0
        SR, SG, SC1, SC2, SKO, SVO, SKM, SVM, STH = 32, 33, 34, 35, 36, 37, 38, 39, 42
        SFIN, SCA, SM1 = 55, 59, 58
        DC = self.o.get("dmacost", 16); WEV = self.o.get("wev", 4)
        if setup:
            I(f"s_lshr_b32 s{SG}, s{SW}, 2"); I(f"s_and_b32 s{SR}, s{SW}, 3")
            I(f"v_lshlrev_b32 v{VL16}, 4, v0")
            I(f"s_lshl_b32 s44, s{SR}, 12"); I(f"s_add_u32 s44, s44, {QB_LDS}"); I(f"v_add_u32 v{VQ}, s44, v{VL16}")
            I(f"s_lshl_b32 s45, s{SG}, 16"); I(f"v_subrev_u32 v{TMP+1}, s45, v{VQ}"); I(f"v_xor_b32 v{LM}, 0x7000, v{TMP+1}")
            I(f"s_mov_b32 s{SC1}, s{SIDX}")
            I(f"s_lshl_b32 s{SC2}, s{SIDX}, 1"); I(f"s_sub_u32 s{SC2}, 14, s{SC2}")
            I(f"s_cmp_eq_u32 s{SG}, 1"); I(f"s_cselect_b32 s{SM1}, 0, -1")
            I(f"s_lshl_b32 s43, s{SW}, 12"); I(f"s_lshl_b32 s{SVO}, s{SHEAD}, 20"); I(f"s_add_u32 s{SVO}, s{SVO}, s43")
            I(f"s_add_u32 s{SKO}, s{SVO}, 0x10000"); I(f"s_add_u32 s{SVO}, s{SVO}, 0x8000")
            I(f"s_mov_b32 s{SKM}, s43"); I(f"s_add_u32 s{SVM}, s43, 0x18000")
            I(f"s_mov_b32 s{STH}, 0x40004000"); I(f"v_mov_b32 v{NINF}, 0xff800000")
            for r in range(4): I(f"v_mov_b32 v{ONES+r}, 0x3f803f80"); I(f"v_mov_b64 {v(LS+2*r,2)}, 0")
            I(f"v_and_b32 v{THR}, 15, v0"); I(f"v_lshrrev_b32 v{TMP}, 4, v0"); I(f"v_lshlrev_b32 v{TMP}, 2, v{TMP}"); I(f"v_sub_u32 v{THR}, v{THR}, v{TMP}")
            I(f"s_lshl_b32 s44, s{SR}, 4"); I("s_sub_u32 s45, 112, s44"); I(f"v_add_u32 v{VSC}, s45, v{THR}"); I(f"v_add_u32 v{THR}, s44, v{THR}")
            I(f"v_and_b32 v{VK}, 15, v0"); I(f"v_lshlrev_b32 v{VK}, 4, v{VK}"); I(f"v_lshrrev_b32 v{TMP}, 4, v0"); I(f"v_lshl_add_u32 v{VK}, v{TMP}, {self.GSH}, v{VK}"); I(f"v_add_u32 v{VK}, 0x8000, v{VK}")
            I(f"s_lshr_b32 s44, s{SR}, 1"); I("s_lshl_b32 s44, s44, 18"); I(f"s_and_b32 s45, s{SR}, 1"); I("s_lshl_b32 s45, s45, 10"); I("s_add_u32 s44, s44, s45")
            I(f"s_lshl_b32 s45, s{SHEAD}, 13"); I("s_add_u32 s43, s44, s45"); I(f"s_add_u32 s43, s43, {CTX_OFF}")
            I(f"s_lshl_b32 s{SCA}, s{SIDX}, 20"); I(f"s_add_u32 s{SCA}, s{SCA}, s43")
            I(f"s_mov_b32 s{SFIN}, 0")
            I(f"s_lshr_b32 s56, s{SF}, 6"); I("s_lshl_b32 s56, s56, 2"); I(f"s_bfe_u32 s44, s{SF}, 0x20003"); I("s_add_u32 s56, s56, s44"); I("s_lshl_b32 s56, s56, 1")
            I(f"s_bfe_u32 s44, s{SF}, 0x10005"); I("s_add_u32 s56, s56, s44"); I(f"s_and_b32 s57, s{SF}, 7")
            I("s_mov_b32 s41, 0")
            CL = self.o.get("cl", 8)
            I(f"s_lshr_b32 s40, {1 << (CL+2)}, s{SG}"); I(f"s_or_b32 s40, s40, {1 << CL}")
            TO = self.o.get("to", 0)
            I(f"s_lshl_b32 s44, {2 << TO}, s{SW}"); I(f"s_and_b32 s44, s44, {self.o.get('tm', 30) << TO}"); I("s_or_b32 s40, s40, s44")
            I(f"s_cmp_eq_u32 s{SW}, 0"); I(f"s_cselect_b32 s44, {(1 << (5 + TO)) | (1 << (CL+4))}, 0"); I("s_or_b32 s40, s40, s44")
            if not self.o.get("noprio"):
                l = a.label("PR"); I(f"s_cmp_eq_u32 s{SG}, 1"); I(f"s_cbranch_scc0 {l}"); I("s_setprio 1"); a.L(l)
            return
        op = lambda t, c=4: (lambda: I(t), c)
        nop = lambda: None
        def loadq(va):
            I(f"v_xor_b32 v{TMP}, 0x7000, v{va}")
            for ds in range(8):
                I(f"ds_read_b128 {v(QF+4*ds,4)}, v{va if ds < 4 else TMP} offset:{1024*(ds&3)}"); lg.issue()
        def dma4(kind):
            sm, so = (SKM, SKO) if kind == "k" else (SVM, SVO)
            def d(i):
                def f():
                    if i == 0: I(f"s_mov_b32 m0, s{sm}"); I(f"s_xor_b32 s{sm}, s{sm}, 0x8000")
                    I(f"buffer_load_dwordx4 v{VL16}, s[{RWS}:{RWS+3}], s{so} offen offset:{1024*i}{self.ld} lds")
                    if i == 3: I(f"s_add_u32 s{so}, s{so}, 0x10000")
                return (f, DC + (8 if i == 0 else 4 if i == 3 else 0))
            return [d(i) for i in range(4)]
        self.ring_n = 0
        def rd(kind, sl, idx):
            h = {}
            def f():
                slot = self.ring_n % NR; self.ring_n += 1
                h["reg"] = RING + 4*slot
                I(f"ds_read_b128 {v(h['reg'],4)}, v{VK if kind == 'k' else VV} offset:{sl*8192+(idx << self.FSH)}"); h["tok"] = lg.issue()
            return f, h
        def wait_for(R, i):
            if R[i][1]["tok"] <= lg.done: return
            j = i
            while j + 1 < len(R) and j + 1 < i + WEV and "tok" in R[j+1][1] and R[j+1][1]["tok"] > R[i][1]["tok"]: j += 1
            lg.wait(R[j][1]["tok"])
        def otile(dt, qt): return O + 16*(dt >> 1) + 8*qt + 4*(dt & 1)
        def qk(sb, R, base, czero=False, half=False):
            def f(m):
                kt, qt, dd = m >> 3, (m >> 2) & 1, m & 3; i = base + 4*kt + dd
                wait_for(R, i); d = v(S[sb] + 8*qt + 4*kt, 4)
                c = ("0" if czero else v(NM + 4*qt, 4)) if dd == 0 else d
                I(f"{M16} {d}, {v(R[i][1]['reg'],4)}, {v(QF + 16*qt + 4*dd, 4)}, {c}")
            return [(lambda m=m: f(m)) if not (half and not m & 4) else nop for m in range(16)]
        def pv1(pb, dt, qt, reg, z=False): I(f"{M16} {v(otile(dt, qt),4)}, {v(reg,4)}, {v(PP[pb]+4*qt,4)}, {'0' if z else v(otile(dt, qt),4)}")
        def pv(pb, R, base, dts=range(8), exact=False, half=False, z=False):
            def f(dt, qt):
                if exact: lg.wait(R[base+dt][1]["tok"])
                else: wait_for(R, base + dt)
                pv1(pb, dt, qt, R[base+dt][1]["reg"], z)
            ls = [lambda qt=qt: I(f"{M16} {v(LS+4*qt,4)}, {v(ONES,4)}, {v(PP[pb]+4*qt,4)}, {'0' if z else v(LS+4*qt,4)}") for qt in range(2)]
            L = ls + [lambda dt=dt, qt=qt: f(dt, qt) for dt in dts for qt in range(2)]
            return [nop if half and not n & 1 else x for n, x in enumerate(L)]
        def sm_ops(sb):
            ex = lambda i: op(f"v_exp_f32 v{E+(i&3)}, v{S[sb]+i}", 8)
            cv = lambda j: op(f"v_cvt_pk_bf16_f32 v{PP[sb]+j}, v{E+((2*j)&3)}, v{E+((2*j+1)&3)}")
            p = PP[sb]; L = [ex(0), ex(1)]
            ors = {2: f"v_or3_b32 v{LM}, v{p}, v{p+1}, v{p+2}", 4: f"v_or3_b32 v{LM}, v{LM}, v{p+3}, v{p+4}", 6: f"v_or3_b32 v{LM}, v{LM}, v{p+5}, v{p+6}"}
            for j in range(8):
                L += [ex(2*j+2), cv(j), ex(2*j+3)] if j < 7 else [op("s_nop 0"), cv(j)]
                if j in ors: L.append(op(ors[j]))
            L = [x for i, x in enumerate(L) if i != len(L) - 2]
            L += [op(f"v_or_b32 v{LM}, v{LM}, v{p+7}"), op(f"v_and_b32 v{LM}, s{STH}, v{LM}")]
            return L
        def sm_half(sb):
            ex = lambda i: op(f"v_exp_f32 v{E+(i&3)}, v{S[sb]+i}", 8)
            cv = lambda j: op(f"v_cvt_pk_bf16_f32 v{PP[sb]+j}, v{E+((2*j)&3)}, v{E+((2*j+1)&3)}")
            p = PP[sb]
            return [ex(8), ex(9), ex(10), cv(4), ex(11), ex(12), cv(5), ex(13), ex(14), cv(6), ex(15), op(f"v_or3_b32 v{LM}, v{p+4}, v{p+5}, v{p+6}"), cv(7),
                    op(f"v_or_b32 v{LM}, v{LM}, v{p+7}"), op(f"v_and_b32 v{LM}, s{STH}, v{LM}")]
        SPH = 9
        def sched(M, fixed, chain):
            n = len(M); fc = [sum(c for _, c in fixed.get(g, [])) for g in range(n)]
            tot = sum(c for _, c in chain); lo, hi = 0.0, 4000.0
            for _ in range(40):
                lev = (lo + hi) / 2
                if sum(max(0, lev - f) for f in fc) >= tot: hi = lev
                else: lo = lev
            k = 0; credit = 0.0
            for g in range(n):
                M[g]()
                for c, _ in fixed.get(g, []): c()
                credit += max(0, hi - fc[g])
                while k < len(chain) and (g == n - 1 or chain[k][1] <= credit + 2):
                    chain[k][0](); credit -= chain[k][1]; k += 1
        def put(fixed, g, items): fixed.setdefault(g, []).extend(items)
        SPL = self.o.get("spl", 18)
        ool = []
        def rarely(cmp_, body):
            lo = a.label("OOL"); lb = a.label("RET")
            I(cmp_); I(f"s_cbranch_scc1 {lo}"); a.L(lb)
            ool.append((lo, lb, body))
        def mask_ops(sb, koff, half=False):
            prs = [46, 48, 50, 52]; L = []
            for qt in range(2):
                if half and qt == 0:
                    L += [op(f"v_mov_b32 v{S[sb]+r}, v{NINF}") for r in range(8)]; continue
                tr = (THR, VSC)[qt]; ko = koff
                if ko >= 32: L.append(op(f"v_subrev_u32 v{TMP+3}, {ko}, v{tr}" if ko <= 64 else f"v_subrev_u32 v{TMP+3}, 0x{ko:x}, v{tr}")); tr = TMP + 3; ko = 0
                for kt in range(2):
                    r0 = 8*qt + 4*kt
                    for r in range(4): L.append(op(f"v_cmp_lt_i32 s[{prs[r]}:{prs[r]+1}], v{tr}, {16*kt + r + ko}"))
                    for r in range(4): L.append(op(f"v_cndmask_b32 v{S[sb]+r0+r}, v{S[sb]+r0+r}, v{NINF}, s[{prs[r]}:{prs[r]+1}]"))
            return L
        def mask_body(sb, koff, half=False):
            for c, _ in mask_ops(sb, koff, half): c()
        def xred(x, y, t0, t1, o):
            L = []
            for sw in ("v_permlane16_swap_b32", "v_permlane32_swap_b32"):
                L += [op(f"v_mov_b32 v{t0}, v{x}"), op(f"v_mov_b32 v{t1}, v{y}"), op("s_nop 0"), op(f"{sw} v{t0}, v{x}"), op(f"{sw} v{t1}, v{y}"),
                      op(f"{o} v{x}, v{x}, v{t0}"), op(f"{o} v{y}, v{y}, v{t1}")]
            return L
        def rowmax(sb):
            for qt in range(2):
                b = S[sb] + 8*qt; d = TMP + qt
                I(f"v_max3_f32 v{d}, v{b}, v{b+1}, v{b+2}"); I(f"v_max3_f32 v{d}, v{d}, v{b+3}, v{b+4}"); I(f"v_max3_f32 v{d}, v{d}, v{b+5}, v{b+6}"); I(f"v_max_f32 v{d}, v{d}, v{b+7}")
            for c, _ in xred(TMP, TMP+1, TMP+2, TMP+3, "v_max_f32"): c()
        def init_max():
            rowmax(0)
            for qt in range(2): I(f"v_max_f32 v{TMP+qt}, {f2u(-1e30)}, v{TMP+qt}"); I(f"v_add_f32 v{TMP+qt}, {f2u(BIAS)}, v{TMP+qt}")
            for r in range(8): I(f"v_sub_f32 v{NM+r}, 0, v{TMP+(r>>2)}")
            return [op(f"v_sub_f32 v{S[0]+r}, v{S[0]+r}, v{TMP+(r>>3)}") for r in range(16)]
        rare = []
        def check(sb, other=True):
            lr = a.label("RARE"); lb = a.label("BACK")
            I(f"v_cmp_ne_u32 vcc, 0, v{LM}")
            if self.o.get("a_nocheck"): I("s_mov_b64 vcc, 0")
            I(f"s_cbranch_vccnz {lr}"); a.L(lb)
            rare.append((lr, lb, sb, other))
        def fin_body():
            I(f"s_mov_b32 s{SFIN}, 2")
            I(f"v_rcp_f32 v{TMP}, v{LS}"); I(f"v_rcp_f32 v{TMP+2}, v{LS+4}"); I(f"v_mov_b32 v{TMP+1}, v{TMP}"); I(f"v_mov_b32 v{TMP+3}, v{TMP+2}")
            for r in range(4): I(f"v_mov_b64 {v(LS+2*r,2)}, 0")
            for q in range(8):
                for i in range(8*q, 8*q+8, 2): I(f"v_pk_mul_f32 {v(O+i,2)}, {v(O+i,2)}, {v(TMP+2*(q&1),2)}")
                for i in range(4): I(f"v_cvt_pk_bf16_f32 v{PK+4*q+i}, v{O+8*q+2*i}, v{O+8*q+2*i+1}")
                for i in range(8*q, 8*q+8, 2): I(f"v_mov_b64 {v(O+i,2)}, 0")
        TX = 0xc0400
        def st_body():
            I(f"s_xor_b32 s45, s{SCA}, {TX}"); I(f"s_mov_b32 s44, s{SCA}"); I(f"s_mov_b32 s{SFIN}, 3")
            for q in range(8):
                if q == 4: I("s_add_u32 s44, s44, 4096"); I("s_add_u32 s45, s45, 4096")
                I(f"buffer_store_dwordx4 {v(PK+4*q,4)}, v{VL16}, s[{RWS}:{RWS+3}], s{44+(q&1)} offen offset:{((q>>1)&1)*2048}{self.st}")
        TR = [RING + 4*(2+i) for i in range(6)]
        def head(R, vmw, with_mfma=True, post=(), more=(), pre=None, hs=False, ht=False):
            rf = [(f, 4) for f, h in R]; sm2 = sm_half(0)[SPH:] if hs else sm_ops(0)[SPL:]
            M = [lambda dt=dt, qt=qt: pv1(1, dt, qt, TR[dt-2]) for dt in range(2, 8) for qt in range(2)] if with_mfma else [nop]*12
            if ht: M = [nop if not n & 1 else x for n, x in enumerate(M)]
            if with_mfma: I("s_waitcnt lgkmcnt(4)")
            nb = self.o.get("nb", 4); more = list(more); m0 = len(more) // 3
            if pre is not None: more = list(pre) + more; m0 = len(pre)
            sched(M[:4], {}, sm2[:nb] + more[:m0])
            vmw(); I("s_waitcnt lgkmcnt(0)"); lg.mark_all_done(); self.barrier(); self.ring_n = 0
            fx = {0: rf[0:2], 1: rf[2:4], 2: rf[4:5], 4: rf[5:6], 6: rf[6:7], 7: [(nop, 8 + 8*len(post))]}
            sched(M[4:], fx, sm2[nb:] + more[m0:])
            check(0)
            for p in post: p()
        def mk_reads():
            return ([rd("k", 0, i) for i in range(8)] + [rd("v", 0, i) for i in range(8)] +
                    [rd("k", 1, i) for i in range(8)] + [rd("v", 1, i) for i in range(8)])
        def last_use(F):
            b = (0, 18, 34, 52)[F >> 3]; f = F & 7
            return b + (2*f + 1 if (F >> 3) & 1 else 8*(f >> 2) + 4 + (f & 3))
        def mid(R, dmas, kx, mb=None, trans=False, endops=(), early=(), g=0, hq=False, hp=False, finz=False):
            rf = [(f, 4) for f, h in R]
            fa = {0: [rf[7]]}; fb = {}
            G_ = g
            for g, e in zip((1, 3, 9, 11), early): put(fa, g, [e])
            for F in range(8, 32):
                g = last_use(F - 8) + 1
                put(fa, g, [rf[F]]) if g < 34 else put(fb, g - 34, [rf[F]])
            D = sum((dma4(k) for k in dmas), [])
            st_ = self.o.get("gst", 4); of_ = self.o.get("gof", 2)
            gaps = [2 + of_*G_*2 + 2*st_*n for n in range(4)] if len(D) == 4 else [2 + of_*G_ + st_*n for n in range(8)]
            for g, d in zip(gaps, D): put(fa, g, [d]) if g < 33 else put(fb, g - 33, [d])
            PT = self.o.get("pt", 0)
            if PT and G_ == 0:
                pts = {1: [(0, 24, 2), (1, 21, 0)], 2: [(0, 8, 2), (0, 24, 0), (1, 7, 2), (1, 21, 0)], 3: [(0, 0, 2), (0, 8, 0), (0, 16, 2), (0, 24, 0), (0, 32, 2), (1, 7, 0), (1, 15, 2), (1, 21, 0)],
                       4: [(0, 16, 2), (1, 21, 0)], 5: [(0, 32, 2), (1, 21, 0)]}[PT]
                for part, g, p in pts: put(fb if part else fa, g, [op(f"s_setprio {p}")])
            put(fa, 33, [(nop, 16)])
            zp = [op(f"v_mov_b64 {v(PP[1]+2*r,2)}, 0") for r in range(2)]
            if finz:
                put(fa, 0, [op(f"v_rcp_f32 v{TMP}, v{LS}", 8), op(f"v_rcp_f32 v{TMP+1}, v{LS+4}", 8)])
                ops = []
                for q in range(8):
                    for i in range(4):
                        b = O + 8*q + 2*i
                        ops += [op(f"v_mul_f32 v{b}, v{b}, v{TMP+(q&1)}"), op(f"v_mul_f32 v{b+1}, v{b+1}, v{TMP+(q&1)}"), op(f"v_cvt_pk_bf16_f32 v{PK+4*q+i}, v{b}, v{b+1}")]
                for n, x in enumerate(ops):
                    g = 2 + n * 27 // len(ops); assert g < 17 + 4*(n // 24)
                    put(fa, g, [x])
            sched(qk(0, R, 0, trans, hq) + pv(0, R, 8, half=hp, z=finz), fa, zp + sm_half(1) if hp else sm_ops(1))
            check(1, other=not trans)
            if mb: mb()
            pre = []
            if trans:
                I(f"s_mov_b32 s{SFIN}, 1")
                pre = init_max()
            put(fb, 18, [op(f"v_xor_b32 v{VV}, 0x10000, v{VK}")] + kx)
            for n, e in enumerate(endops): put(fb, 11 - n, [e])
            put(fb, 21, [(nop, 12)])
            sched(qk(1, R, 16, half=hq) + pv(1, R, 24, range(2), half=hp), fb, pre + (sm_half(0)[:SPH] if hq else sm_ops(0)[:SPL]))
            assert [R[26+i][1]["reg"] for i in range(6)] == TR
        vm4 = lambda: I("s_waitcnt vmcnt(4)")
        def vm08():
            lo = a.label("W8"); lb = a.label("W8R")
            I(f"s_cmp_eq_u32 s{SFIN}, 3"); I(f"s_cbranch_scc1 {lo}"); I("s_waitcnt vmcnt(0)"); a.L(lb)
            def b(): I("s_waitcnt vmcnt(8)"); I(f"s_mov_b32 s{SFIN}, 4")
            ool.append((lo, lb, b))
        m1 = lambda sb, ko: (lambda: rarely(f"s_cmp_eq_u32 s{SC1}, s{SM1}", lambda: mask_body(sb, ko)))
        fin = lambda: rarely(f"s_cmp_eq_u32 s{SFIN}, 1", fin_body)
        sta = (lambda: rarely(f"s_cmp_eq_u32 s{SFIN}, 2", st_body), 8)
        KR, VR, SH, WO, AD = 16, 23, 28, 32, 40
        def side_loads():
            L = []; E = lambda t: L.append(op(t)); V = lambda t: L.append(op(t, DC))
            E(f"v_lshrrev_b32 v{AD}, 5, v0"); E(f"v_and_b32 v{AD+1}, 31, v0"); E(f"v_lshlrev_b32 v{AD+2}, 12, v{AD}"); E(f"v_lshl_add_u32 v{AD+2}, v{AD+1}, 2, v{AD+2}")
            self.phys(60, SHEAD, 61, E); E("s_lshl_b32 s60, s60, 17"); E(f"s_lshr_b32 s61, s{SIDX}, 1"); E("s_lshl_b32 s61, s61, 15"); E("s_add_u32 s60, s60, s61")
            E(f"s_and_b32 s61, s{SF}, 1"); E("s_lshl_b32 s61, s61, 9"); E("s_add_u32 s60, s60, s61")
            E(f"s_lshl_b32 s61, s{SW}, 6"); E("s_add_u32 s60, s60, s61"); E("s_add_u32 s61, s60, 16384")
            E(f"v_lshrrev_b32 v{AD+3}, 4, v0"); E(f"v_lshlrev_b32 v{AD+3}, 12, v{AD+3}"); E(f"v_and_b32 v{AD+4}, 15, v0"); E(f"v_lshl_add_u32 v{AD+3}, v{AD+4}, 2, v{AD+3}")
            for j in range(8): V(f"buffer_load_dword v{WO+j}, v{AD+3}, s[{RE}:{RE+3}], s{60+(j>>2)} offen offset:{1024*(j&3)}")
            E("s_lshr_b32 s62, s2, 3"); E("s_lshl_b32 s62, s62, 16"); E(f"s_lshl_b32 s63, s{SW}, 13"); E("s_add_u32 s62, s62, s63")
            E("s_and_b32 s63, s2, 7"); E("s_lshl_b32 s63, s63, 7"); E("s_add_u32 s62, s62, s63"); E(f"v_add_u32 v{AD+3}, s62, v{AD+2}")
            for i in range(3): E(f"v_subrev_u32 v{AD+4+i}, {3072-1024*i}, v{AD+3}")
            E("s_lshl_b32 s63, s63, 2"); E(f"v_lshl_add_u32 v{AD+7}, v{AD+1}, 4, s63")
            for i in range(3): V(f"buffer_load_dword v{KR+i}, v{AD+4+i}, s[{RA}:{RA+3}], 0 offen")
            for i in range(4): V(f"buffer_load_dword v{KR+3+i}, v{AD+3}, s[{RA}:{RA+3}], 0 offen offset:{1024*i}")
            for i in range(4): V(f"buffer_load_dword v{VR+i}, v{AD+3}, s[{RC}:{RC+3}], 0 offen offset:{1024*i}")
            V(f"buffer_load_dwordx4 {v(SH,4)}, v{AD+7}, s[{RD}:{RD+3}], 0 offen")
            return L
        NSL = 21
        def side_math():
            L = []; E = lambda t: L.append(op(t)); V = lambda t: L.append(op(t, DC))
            W2 = 48
            E("s_mov_b32 s60, 0x05040100"); E("s_mov_b32 s61, 0x07060302")
            for j in range(4): E(f"v_perm_b32 v{W2+j}, v{WO+2*j+1}, v{WO+2*j}, s60")
            for j in range(4): E(f"v_perm_b32 v{W2+4+j}, v{WO+2*j+1}, v{WO+2*j}, s61")
            E(f"s_and_b32 s60, s{SF}, 1"); E("s_lshl_b32 s60, s60, 2"); E(f"s_lshr_b32 s61, s{SW}, 1"); E("s_add_u32 s60, s60, s61"); E("s_lshl_b32 s60, s60, 19")
            E(f"s_lshr_b32 s61, s{SF}, 1"); E("s_lshl_b32 s61, s61, 12"); E("s_add_u32 s60, s60, s61"); E(f"s_and_b32 s61, s{SW}, 1"); E("s_lshl_b32 s61, s61, 11")
            E("s_add_u32 s60, s60, s61"); E(f"s_add_u32 s60, s60, {WOT_OFF}")
            for mt in range(2): V(f"buffer_store_dwordx4 {v(W2+4*mt,4)}, v{VL16}, s[{RWS}:{RWS+3}], s60 offen offset:{1024*mt}{self.st}")
            KU, SU, OO, VU, PQ = 32, 42, 48, 39, 52
            for c in range(2):
                def unp(d, sreg, half): E(f"v_lshlrev_b32 v{d}, 16, v{sreg}" if half == 0 else f"v_and_b32 v{d}, 0xffff0000, v{sreg}")
                for i in range(7): unp(KU+i, KR+i, c)
                for j in range(4): unp(SU+j, SH + 2*c + (j >> 1), j & 1)
                for o in range(4):
                    E(f"v_mul_f32 v{OO+o}, v{KU+o}, v{SU+3}")
                    for j in (2, 1, 0): E(f"v_fmac_f32 v{OO+o}, v{KU+o+3-j}, v{SU+j}")
                    unp(VU, VR+o, c)
                    E(f"v_mul_f32 v{OO+o}, v{OO+o}, v{VU}")
                d = PQ + 2*(1-c)
                E(f"v_cvt_pk_bf16_f32 v{d}, v{OO+3}, v{OO+2}"); E(f"v_cvt_pk_bf16_f32 v{d+1}, v{OO+1}, v{OO}")
            E(f"v_lshlrev_b32 v{AD+1}, 5, v{AD+1}"); E(f"v_lshl_add_u32 v{AD+1}, v{AD}, 4, v{AD+1}")
            E(f"v_permlane32_swap_b32 v{PQ+2}, v{PQ}"); E(f"v_permlane32_swap_b32 v{PQ+3}, v{PQ+1}")
            E("s_lshr_b32 s60, s2, 3"); E("s_lshl_b32 s60, s60, 16"); E(f"s_lshl_b32 s61, s{SW}, 13"); E("s_add_u32 s60, s60, s61")
            E("s_and_b32 s61, s2, 7"); E("s_lshl_b32 s61, s61, 10"); E("s_add_u32 s60, s60, s61"); E(f"s_add_u32 s60, s60, {KVT_OFF}")
            V(f"buffer_store_dwordx4 {v(PQ,4)}, v{AD+1}, s[{RWS}:{RWS+3}], s60 offen{self.st}")
            return L
        CL = self.o.get("cl", 8)
        def touch(k):
            if k in (1, 2):
                self.phys(60, SHEAD, 61); I("s_lshl_b32 s60, s60, 17"); I(f"s_lshl_b32 s61, s{SIDX}, 14"); I("s_add_u32 s60, s60, s61")
                if k == 2: I("s_add_u32 s60, s60, 8192")
                I("v_lshlrev_b32 v16, 7, v0"); r = RE
            elif k in (3, 4):
                I("s_lshr_b32 s60, s2, 3"); I("s_lshl_b32 s60, s60, 16"); I("s_and_b32 s61, s2, 7"); I("s_lshl_b32 s61, s61, 7"); I("s_add_u32 s60, s60, s61")
                I("v_lshlrev_b32 v16, 10, v0"); r = RA if k == 3 else RC
            else:
                I(f"s_lshl_b32 s60, s{SF}, 13"); I("v_lshlrev_b32 v16, 7, v0"); r = RB
            I(f"buffer_load_dword v1, v16, s[{r}:{r+3}], s60 offen")
        LSITE = a.label("SITE")
        stubs = []
        def site_code():
            a.T(".p2align 6")
            for lo, lb in stubs:
                a.L(lo); I(f"s_call_b64 s[76:77], {LSITE}"); I(f"s_branch {lb}")
            a.L(LSITE)
            def ret(): I("s_nop 1"); I("s_setpc_b64 s[76:77]")
            ll = a.label("SL"); lm = a.label("SM"); lp = a.label("SP"); TO = self.o.get("to", 0)
            I(f"s_cmp_eq_u32 s41, {CL}"); I(f"s_cbranch_scc1 {ll}")
            I(f"s_cmp_eq_u32 s41, {CL+4}"); I(f"s_cbranch_scc1 {lp}")
            I(f"s_cmp_gt_u32 s41, {CL}"); I(f"s_cbranch_scc1 {lm}")
            lk = {k: a.label("ST") for k in range(2, 6)}
            for k in range(2, 6): I(f"s_cmp_eq_u32 s41, {k + TO}"); I(f"s_cbranch_scc1 {lk[k]}")
            for k in range(1, 6):
                if k > 1: a.L(lk[k])
                touch(k); ret()
            a.L(lp)
            I(f"s_lshl_b32 s44, s{SF}, 2"); I(f"s_add_u32 s44, s44, {FY_OFF}")
            sv = self.save(); self.publish(44, 2); self.restore(sv)
            ret()
            a.L(ll)
            for c, _ in side_loads(): c()
            ret(); a.L(lm)
            for c, _ in side_math(): c()
            if self.o.get("ct3", 0): self.code_prefetch("ATT_START", "HOT_END", 7, 62, 44)
            ret()
        def spf():
            lo = a.label("STUB"); lb = a.label("RET")
            I("s_add_u32 s41, s41, 1"); I("s_bitcmp1_b32 s40, s41"); I(f"s_cbranch_scc1 {lo}"); a.L(lb); stubs.append((lo, lb))
        spub = (spf, 12)
        def snap():
            I(f"s_mov_b32 s61, {FY_OFF}"); I(f"buffer_load_dwordx4 v[52:55], v{VL16}, s[{RWS}:{RWS+3}], s61 offen sc1")
        def side_check():
            lo = a.label("SCK"); lb = a.label("SCR")
            def test():
                I("v_and_b32 v52, v52, v53"); I("v_and_b32 v54, v54, v55"); I("v_and_b32 v52, v52, v54"); I("v_and_b32 v52, 2, v52"); I("v_cmp_ne_u32 vcc, 2, v52")
            test(); I(f"s_cbranch_vccnz {lo}"); a.L(lb)
            def spin():
                lp = a.label("SPL")
                I("s_mov_b32 s99, 20000"); a.L(lp)
                I("s_sleep 2"); I(f"buffer_load_dwordx4 v[52:55], v{VL16}, s[{RWS}:{RWS+3}], s61 offen sc1"); I("s_waitcnt vmcnt(0)")
                test(); I(f"s_cbranch_vccz {lb}")
                I("s_sub_u32 s99, s99, 1"); I("s_cmp_lg_u32 s99, 0"); I(f"s_cbranch_scc1 {lp}")
            ool.append((lo, lb, spin))
        m2 = lambda sb, ko: (lambda: rarely(f"s_cmp_eq_u32 s{SC2}, 0", lambda: (snap(), mask_body(sb, ko))))
        LEV = a.label("EVEN"); LODM = a.label("ODDM"); LTRANS = a.label("TRANS"); LP2 = a.label("P2"); LP2B = a.label("P2B"); LDRAIN = a.label("DRAIN")
        a.L("ATT_START")
        self.stamp(8)
        self.ring_n = 0
        R = [rd("k", 0, i) for i in range(8)] + [rd("k", 1, i) for i in range(8)]
        def qrd(i):
            I(f"ds_read_b128 {v(QF+4*i,4)}, v{TMP+1 if i < 4 else LM} offset:{1024*(i&3)}"); return lg.issue()
        for i in range(4): qrd(i); R[i][0]()
        for i in range(4, 8): tq = qrd(i)
        D = dma4("v") + dma4("k")
        fx = {g: [(R[4+g][0], 4)] for g in range(4)}
        put(fx, 3, [(lambda: lg.wait(tq), 4)])
        for F in range(8, 15): put(fx, last_use(F - 8) + 1, [(R[F][0], 4)])
        for n, d in enumerate(D): put(fx, 2*n, [d])
        sched(qk(0, R, 0, True), fx, [])
        m1(0, 0)()
        pre = init_max()
        fx = {0: [(R[15][0], 4)], 8: [op(f"v_xor_b32 v{VV}, 0x10000, v{VK}"), op(f"v_xor_b32 v{VK}, 0x4000, v{VK}")]}
        sched(qk(1, R, 8), fx, pre + sm_ops(0)[:SPL])
        R = mk_reads()
        head(R, vm4, False, post=[m1(1, 32)])
        svm = self.save()
        self.stamp(9)
        LOD = [a.label("ODD0"), a.label("ODD1")]
        I(f"s_cmp_eq_u32 s{SG}, 1"); I(f"s_cbranch_scc1 {LOD[1]}"); I(f"s_branch {LOD[0]}")
        vm0 = lambda: I("s_waitcnt vmcnt(0)")
        LDR = [a.label("DR0"), a.label("DR1"), a.label("DR1F")]
        x8 = lambda: [op(f"v_xor_b32 v{VK}, 0x8000, v{VK}")]
        dec2 = lambda: op(f"s_sub_u32 s{SC2}, s{SC2}, 1")
        def loops(g):
            LEV = a.label("EVEN"); LP2 = a.label("P2"); LLAST = a.label("OLAST")
            a.L(LEV)
            R = mk_reads(); head(R, vm4)
            mid(R, "k", [op(f"v_xor_b32 v{VK}, 0x4000, v{VK}")], mb=m1(0, 0) if g else None, early=[spub], g=g)
            R = mk_reads(); head(R, vm4, post=[m1(1, 32)] if g else [])
            assert self.lg.issued - self.lg.done == svm[2] - svm[3]
            a.L(LOD[g])
            if g: I(f"s_cmp_eq_u32 s{SC1}, 0"); I(f"s_cbranch_scc1 {LLAST}")
            sv = self.save(); rn = self.ring_n
            mid(R, "v", [op(f"v_xor_b32 v{VK}, 0xc000, v{VK}")], endops=[op(f"s_sub_u32 s{SC1}, s{SC1}, 1")], early=[spub], g=g)
            if g:
                I(f"s_branch {LEV}")
                a.L(LLAST); self.restore(sv); self.ring_n = rn
                mid(R, "v", [op(f"v_xor_b32 v{VK}, 0x8000, v{VK}")], mb=lambda: mask_body(0, 64, True), early=[spub], g=g, hq=True)
            else:
                I(f"s_cmp_lg_u32 s{SC1}, -1"); I(f"s_cbranch_scc1 {LEV}")
            self.stamp(14)
            if g: loadq(VQ); I("s_waitcnt lgkmcnt(0)")
            R = mk_reads(); head(R, vm4, more=mask_ops(1, 96, True) if g else (), hs=bool(g))
            mid(R, "k", x8(), mb=m2(0, 64*g), trans=bool(g), early=[spub], g=g, hp=bool(g))
            self.stamp(15)
            I(f"s_cmp_eq_u32 s{SC2}, 0"); I(f"s_cbranch_scc1 {LDR[2*g]}")
            FZ = self.o.get("fz", 1); LL = a.label("PLAST")
            if g and FZ:
                R = mk_reads(); head(R, vm0, ht=True)
                mid(R, "kv", x8(), endops=[(st_body, 64)], early=[spub, dec2()], g=g, finz=True)
                I(f"s_cmp_eq_u32 s{SC2}, 1"); I(f"s_cbranch_scc1 {LL}")
            a.L(LP2)
            R = mk_reads(); head(R, vm08 if g else vm0)
            if g:
                if FZ: mid(R, "kv", x8(), early=[spub, dec2()], g=g)
                else: mid(R, "kv", x8(), endops=[sta], early=[spub, (fin, 8), dec2()], g=g)
                I(f"s_cmp_lg_u32 s{SC2}, 1"); I(f"s_cbranch_scc1 {LP2}")
                a.L(LL)
                R = mk_reads(); head(R, vm08)
                mid(R, "v", x8(), mb=lambda: (snap(), mask_body(0, 64, True)), g=g, hq=True)
            else:
                mid(R, "kv", x8(), mb=m2(0, 0), early=[spub, dec2()], g=g)
                I(f"s_cmp_lg_u32 s{SC2}, 0"); I(f"s_cbranch_scc1 {LP2}")
        lj = a.label("MGJ"); LH1 = a.label("DH1"); PR = 64
        def drain(g):
            ts, ts2, ts3 = self.tail_setup()
            tsa = [x for x in ts if x[1] == 4]; tsl = [x for x in ts if x[1] != 4]
            def dhead(hs):
                R2 = [rd("v", 0, i) for i in range(8)] + [rd("v", 1, i) for i in range(8)]
                self.stamp(10)
                head(R2, lambda: (vm0(), side_check(), tsl[0][0](), tsl[1][0]()), post=[] if (hs or not g) else [fin_body, st_body], pre=tsa[:8],
                     more=tsa[8:16] + [tsl[2]] + mask_ops(1, 32 + 64*g, bool(g)), hs=hs)
                return R2
            a.L(LDR[g]); sv = self.save()
            R2 = dhead(bool(g))
            if g:
                a.L(LH1)
                def alt():
                    keep = self.save(); th = self.th
                    a.L(LDR[2]); self.restore(sv); dhead(False); I(f"s_branch {LH1}")
                    self.restore(keep); self.th = th
                self.alt = alt
            rf = [(f, 4) for f, h in R2]
            for c, _ in tsa[16:]: c()
            pre = []; E_ = lambda t: pre.append(op(t))
            E_(f"s_add_u32 s44, s{SWK}, {ML}"); E_(f"v_add_u32 v54, s44, v{VL16}")
            E_(f"s_lshl_b32 s46, s{SW}, 13"); E_(f"v_add_u32 v55, s46, v{VL16}")
            E_(f"s_sub_u32 s46, 15, s{SIDX}"); E_("s_lshl_b32 s46, s46, 20"); E_("s_add_u32 s46, s46, s43"); E_(f"s_add_u32 s46, s46, {4096*g}"); E_(f"s_xor_b32 s47, s46, {TX}")
            WA_ = self.o.get("wa", 6); tsA, tsB = ts2[:WA_], ts2[WA_:]
            setup_ = pre + ts3; n8 = (len(setup_) + 17) // 18
            fx = {n: setup_[n*n8:(n+1)*n8] for n in range(18)}
            for n, x in enumerate(tsA): put(fx, 1 + n * 17 // max(1, len(tsA)), [x])
            for F in range(7, 15): put(fx, 2*(F - 7) + (2 if F > 7 else 0), [rf[F]])
            sched(pv(0, R2, 0, half=bool(g)), fx, sm_half(1) if g else sm_ops(1))
            check(1)
            rf[15][0]()
            own = O + 32*g; snd = O + 32*(1-g)
            def osend(i):
                I(f"ds_write_b128 v55, {v(snd+4*i,4)} offset:{1024*i}"); lg.issue()
            def wml():
                I(f"ds_write_b128 v54, {v(150,4)}"); lg.issue()
            dts = list(range(4*(1-g), 4*(1-g)+4)) + list(range(4*g, 4*g+4))
            fx = {10 + i: [(lambda i=i: osend(i), 16)] for i in range(8)}
            put(fx, 8, [op(f"v_mov_b32 v150, v{NM}"), op(f"v_mov_b32 v{LS+1}, v{LS+4}"), (wml, 4)])
            for n, x in enumerate(tsB): put(fx, n * 10 // max(1, len(tsB)), [x])
            sched(pv(1, R2, 8, dts, True, half=bool(g)), fx, self.tail_valu())
            I(f"v_xor_b32 v54, 0x1000, v54"); I(f"v_xor_b32 v55, 0x8000, v55")
            I("s_waitcnt lgkmcnt(0)"); lg.mark_all_done(); self.barrier()
            I(f"ds_read_b128 {v(96,4)}, v54"); t0 = lg.issue()
            tk = []
            for i in range(8):
                I(f"ds_read_b128 {v(PR+4*i,4)}, v55 offset:{1024*i}"); tk.append(lg.issue())
            lg.wait(t0)
            for q in range(2):
                I(f"v_min_f32 v100, v{150+q}, v{96+q}"); I(f"v_sub_f32 v101, v100, v{150+q}"); I(f"v_sub_f32 v102, v100, v{96+q}")
                I("v_exp_f32 v101, v101"); I("v_exp_f32 v102, v102")
                I(f"v_mul_f32 v103, v101, v{LS+q}"); I(f"v_fmac_f32 v103, v102, v{98+q}"); I("v_rcp_f32 v103, v103")
                b = 104 + 4*q
                I(f"v_mul_f32 v{b}, v101, v103"); I(f"v_mul_f32 v{b+1}, v101, v103"); I(f"v_mul_f32 v{b+2}, v102, v103"); I(f"v_mul_f32 v{b+3}, v102, v103")
            tw = self.tail_writes()
            for q in range(4):
                b = 104 + 4*(q & 1)
                for i in range(8*q, 8*q+8, 2): I(f"v_pk_mul_f32 {v(own+i,2)}, {v(own+i,2)}, {v(b,2)}")
                lg.wait(tk[2*q+1])
                for c in tw[3*q:3*q+3]: c()
                for i in range(8*q, 8*q+8, 2): I(f"v_pk_fma_f32 {v(own+i,2)}, {v(PR+i,2)}, {v(b+2,2)}, {v(own+i,2)}")
                for i in range(4): I(f"v_cvt_pk_bf16_f32 v{snd+4*q+i}, v{own+8*q+2*i}, v{own+8*q+2*i+1}")
                I(f"buffer_store_dwordx4 {v(snd+4*q,4)}, v{VL16}, s[{RWS}:{RWS+3}], s{46+(q&1)} offen offset:{(q>>1)*2048}{self.st}"); self.tctx = vm.issue()
        loops(1); drain(1); I(f"s_branch {lj}")
        loops(0); drain(0)
        a.L(lj)
        I("s_setprio 0")
        self.stamp(4)
        def cold():
            self.alt()
            site_code()
            for (lo, lb, body) in ool:
                a.L(lo); body(); I(f"s_branch {lb}")
            a.L("HOT_END")
            for (lr, lb, sb, other) in rare:
                a.L(lr)
                I("s_nop 15")
                rowmax(sb)
                for q in range(2): I(f"v_add_f32 v{TMP+q}, {f2u(BIAS)}, v{TMP+q}"); I(f"v_max_f32 v{TMP+q}, 0, v{TMP+q}"); I(f"v_exp_f32 v{TMP+2+q}, -v{TMP+q}")
                for r in range(8): I(f"v_sub_f32 v{NM+r}, v{NM+r}, v{TMP+(r>>2)}")
                for r in range(16): I(f"v_sub_f32 v{S[sb]+r}, v{S[sb]+r}, v{TMP+(r>>3)}")
                if other:
                    for r in range(16): I(f"v_sub_f32 v{S[1-sb]+r}, v{S[1-sb]+r}, v{TMP+(r>>3)}")
                for r in range(64): I(f"v_mul_f32 v{O+r}, v{O+r}, v{TMP+2+((r>>3)&1)}")
                for r in range(8): I(f"v_mul_f32 v{LS+r}, v{LS+r}, v{TMP+2+(r>>2)}")
                for c, _ in sm_ops(sb): c()
                I("s_nop 1"); I(f"s_branch {lb}")
        self.attn_rare = cold

    HB = 65536; HC = 4416; XB = 136192; YB = 148480
    SC, SJ, SB, SCH, SHB_, SWO, SCX = 34, 35, 36, 37, 38, 39, 40
    WS_ = [16, 24, 32, 40, 176, 184, 48, 56] + list(range(80, 144, 8))
    def tail_setup(self):
        I = self.I; L = []; E = lambda t: L.append((lambda: I(t), 4))
        SC, SJ, SB, SCH, SHB_, SWO, SCX = self.SC, self.SJ, self.SB, self.SCH, self.SHB_, self.SWO, self.SCX
        self.wtok = {}; self.wslot = dict(enumerate(self.WS_))
        E(f"s_lshr_b32 s{SC}, s{SW}, 2"); E(f"s_and_b32 s{SJ}, s{SW}, 3")
        E(f"s_lshl_b32 s{SCH}, s{SF}, 1"); E(f"s_add_u32 s{SCH}, s{SCH}, s{SC}"); E(f"s_lshl_b32 s{SCH}, s{SCH}, 12")
        E(f"s_lshl_b32 s60, s{SJ}, 10"); E("v_add_u32 v50, s60, v6"); E("v_subrev_u32 v51, 16, v50")
        E(f"s_lshl_b32 s63, s{SW}, 18"); E(f"s_lshl_b32 s62, s{SF}, 5"); E("s_add_u32 s63, s63, s62"); E(f"s_add_u32 s63, s63, {KVT_OFF}")
        E("v_lshrrev_b32 v48, 1, v0"); E("v_and_b32 v158, 1, v0" if False else "v_and_b32 v3, 1, v0"); E("v_lshlrev_b32 v49, 13, v48"); E("v_lshl_add_u32 v49, v3, 4, v49")
        def ld(t):
            def f(): I(t); self.th = self.vm.issue()
            L.append((f, 16))
        ld(f"buffer_load_dwordx4 {v(160,4)}, v51, s[{RB}:{RB+3}], s{SCH} offen")
        ld(f"buffer_load_dwordx4 {v(164,4)}, v50, s[{RB}:{RB+3}], s{SCH} offen")
        ld(f"buffer_load_dwordx4 {v(168,4)}, v49, s[{RWS}:{RWS+3}], s63 offen{self.ld}")
        E(f"s_lshl_b32 s{SWO}, s57, 19"); E(f"s_lshl_b32 s60, s{SW}, 15"); E(f"s_add_u32 s{SWO}, s{SWO}, s60"); E(f"s_add_u32 s{SWO}, s{SWO}, {WOT_OFF}")
        E("s_and_b32 s60, s56, 1"); E("s_lshl_b32 s60, s60, 18"); E(f"s_add_u32 s{SWO}, s{SWO}, s60")
        TR_ = self.o.get("trot", 1)
        if TR_ == 0: E("s_mov_b32 s58, 0")
        elif TR_ == 1: E("s_mov_b32 s58, s57")
        else: E("s_and_b32 s58, s56, 6"); E("s_add_u32 s58, s58, s57")
        def w1(i, mt):
            if mt == 0 and i % 2 == 0: self.wadr(i)
            I(f"buffer_load_dwordx4 {v(self.WS_[i]+4*mt,4)}, v6, s[{RWS}:{RWS+3}], s59 offen offset:{(i&1)*2048+mt*1024}{self.ld}"); self.wtok[i] = self.vm.issue()
        L2 = [(lambda i=i, mt=mt: w1(i, mt), 16) for i in range(self.o.get("we", 6)) for mt in range(2)]
        L3 = []; L, Lx = L3, L
        E = lambda t: L3.append((lambda: I(t), 4))
        E(f"s_mul_i32 s{SB}, s{SC}, 6144"); E(f"s_add_u32 s{SB}, s{SB}, {self.XB}")
        E(f"s_mul_i32 s{SHB_}, s{SC}, {8*self.HC}"); E(f"s_add_u32 s{SHB_}, s{SHB_}, {self.HB}")
        E(f"s_xor_b32 s{SCX}, s56, 1"); E(f"s_lshl_b32 s{SCX}, s{SCX}, 19"); E(f"s_lshl_b32 s60, s{SW}, 14"); E(f"s_add_u32 s{SCX}, s{SCX}, s60"); E(f"s_add_u32 s{SCX}, s{SCX}, {CTX_OFF}")
        E("s_and_b32 s60, s56, 1"); E("s_lshl_b32 s60, s60, 17"); E(f"s_add_u32 s{SCX}, s{SCX}, s60")
        return Lx, L2, L3
    def wreg(self, i):
        return self.WS_[i % len(self.WS_)]
    def wload(self, i):
        I = self.I; r = self.wslot[i]
        I(f"s_add_u32 s61, s{self.SWO}, {i*2048}")
        for mt in range(2):
            I(f"buffer_load_dwordx4 {v(r+4*mt,4)}, v6, s[{RWS}:{RWS+3}], s61 offen offset:{mt*1024}{self.ld}"); self.wtok[i] = self.vm.issue()
    def wadr(self, i):
        I = self.I
        I(f"s_add_u32 s59, s58, {i >> 1}"); I("s_and_b32 s59, s59, 7"); I("s_lshl_b32 s59, s59, 12"); I(f"s_add_u32 s59, s59, s{self.SWO}")
    def tail_valu(self):
        I = self.I; HC = self.HC; L = []; E = lambda t: L.append((lambda: I(t), 4))
        SJ, SB, SHB_ = self.SJ, self.SB, self.SHB_
        Ee, Eo, Oe, Oo = 160, 113, 122, 131
        E(f"s_add_u32 s60, s{SHB_}, 64"); E("v_add_u32 v138, s60, v50")
        E("v_and_b32 v51, 3, v48"); E("v_mul_u32_u24 v139, 1536, v51"); E("v_lshrrev_b32 v53, 2, v48"); E("v_lshl_add_u32 v139, v53, 4, v139")
        E("v_and_b32 v53, 1, v0"); E("v_mul_u32_u24 v53, 6144, v53"); E(f"s_lshl_b32 s60, s{SW}, 7"); E(f"s_add_u32 s60, s60, {self.XB + 512}"); E("v_add3_u32 v139, v139, v53, s60")
        E("v_and_b32 v51, 3, v0")
        for r in range(2): E(f"v_mov_b64 {v(172+2*r,2)}, 0")
        E("v_bfe_u32 v140, v0, 2, 3"); E(f"v_mul_u32_u24 v140, {HC}, v140"); E("v_lshl_add_u32 v140, v51, 4, v140"); E(f"v_add_u32 v140, s{SHB_}, v140")
        E(f"s_mul_i32 s60, s{SJ}, 1536"); E(f"s_add_u32 s60, s60, s{SB}"); E("v_lshl_add_u32 v141, v0, 3, s60")
        L.append((lambda: self.vm.wait(self.th - 1), 4))
        for k in range(7): E(f"v_alignbit_b32 v{Oe+k}, v{Ee+k+1}, v{Ee+k}, 16")
        for k in range(1, 7): E(f"v_alignbit_b32 v{Oo+k}, v{Ee+k+1}, v{Ee+k}, 16")
        for k in range(1, 7): E(f"v_mov_b32 v{Eo+k}, v{Ee+k}")
        return L
    def tail_writes(self):
        I = self.I; lg = self.lg; HC = self.HC; L = []
        Ee, Eo, Oe, Oo = 160, 113, 122, 131
        def W(t, pre=None):
            def f():
                if pre: pre()
                I(t); lg.issue()
            L.append(f)
        for r in range(8):
            sft = 1 + r; k = sft >> 1
            base = ((Oe, Oo) if sft & 1 else (Ee, Eo))[k & 1]
            W(f"ds_write_b128 v138, {v(base+k,4)} offset:{r*HC}")
        W(f"ds_write_b128 v140, {v(172,4)}"); W(f"ds_write_b64 v141, {v(172,2)}")
        W(f"ds_write_b128 v139, {v(168,4)}", lambda: self.vm.wait(self.th))
        return L
    def tailp(self):
        a = self.a; I = self.I; vm = self.vm; lg = self.lg
        HB, HC, YB = self.HB, self.HC, self.YB
        SC, SJ, SB, SCH, SHB_, SWO, SCX = self.SC, self.SJ, self.SB, self.SCH, self.SHB_, self.SWO, self.SCX
        ACC = 192; FRS = [224, 240, 64]; RD_ = 224; OACC = 192; YT = self.XB
        VL16, VA, VB, T, VP, VPA, VO, GR, VW1 = 6, 4, 5, 12, 7, 8, 9, 10, 11
        WSL = self.WS_; CSL = [144, 152, 160, 168, 64, 72]
        assert len(WSL) == 16
        I(f"s_lshr_b32 s53, s56, 1"); I("s_lshl_b32 s53, s53, 10"); I("s_and_b32 s44, s56, 1"); I("s_lshl_b32 s44, s44, 9"); I("s_add_u32 s53, s53, s44")
        I(f"s_lshr_b32 s44, s{SW}, 1"); I("s_lshl_b32 s44, s44, 7"); I("s_add_u32 s53, s53, s44"); I(f"s_and_b32 s44, s{SW}, 1"); I("s_lshl_b32 s44, s44, 3")
        I("s_add_u32 s53, s53, s44"); I(f"s_add_u32 s53, s53, {FC_OFF}")
        I(f"v_and_b32 v{VPA}, 1, v0"); I(f"v_lshlrev_b32 v{VPA}, 2, v{VPA}")
        PUBN = self.o.get("pubn", 4)
        I(f"s_lshr_b32 s45, s{SHEAD}, 2"); I("s_lshl_b32 s45, s45, 7"); I(f"s_and_b32 s44, s{SHEAD}, 3"); I("s_lshl_b32 s44, s44, 2"); I("s_add_u32 s45, s45, s44")
        I(f"s_sub_u32 s44, 15, s{SIDX}"); I("s_lshl_b32 s44, s44, 10"); I("s_add_u32 s46, s44, s45"); I(f"s_add_u32 s46, s46, {FC_OFF}")
        I(f"s_lshl_b32 s44, s{SIDX}, 10"); I("s_add_u32 s47, s44, s45"); I(f"s_add_u32 s47, s47, {FC_OFF}")
        self.srd(RC, "out", 2*MB); self.srd(RD, "q", 2*MB)
        I(f"s_lshl_b32 s44, s{SF}, 2"); I(f"s_load_dword s55, s[{P['ssmD']}:{P['ssmD']+1}], s44")
        I(f"v_and_b32 v{T}, 15, v0"); I(f"v_lshrrev_b32 v{T+1}, 4, v0")
        I(f"v_and_b32 v{T+2}, 7, v0"); I(f"v_mul_u32_u24 v{VA}, {HC}, v{T+2}")
        I(f"v_bfe_u32 v{T+2}, v0, 3, 1"); I(f"v_sub_u32 v{T+2}, v{T+2}, v{T+1}"); I(f"v_lshl_add_u32 v{VA}, v{T+2}, 4, v{VA}")
        I(f"s_lshl_b32 s43, s{SJ}, 8"); I(f"s_add_u32 s43, s43, s{SHB_}"); I("s_add_u32 s43, s43, 64"); I(f"v_add_u32 v{VA}, s43, v{VA}")
        I(f"s_lshl_b32 s43, s{SJ}, 6"); I(f"s_sub_u32 s43, s{SB}, s43"); I(f"s_add_u32 s43, s43, {(32-3)*16}")
        I(f"v_lshl_add_u32 v{VB}, v{T}, 4, s43"); I(f"v_mul_u32_u24 v{T+2}, 1536, v{T+1}"); I(f"v_add_u32 v{VB}, v{VB}, v{T+2}")
        I(f"s_lshl_b32 s51, s{SW}, 13"); I(f"s_xor_b32 s52, s{SCX}, 0x80000")
        I("s_waitcnt lgkmcnt(0)"); lg.mark_all_done(); self.barrier()
        self.stamp(5)
        wtok = dict(self.wtok); ctok = {}; cslot = dict(enumerate(CSL))
        def wload(k):
            if k % 2 == 0: self.wadr(k)
            for mt in range(2):
                I(f"buffer_load_dwordx4 {v(WSL[k]+4*mt,4)}, v{VL16}, s[{RWS}:{RWS+3}], s59 offen offset:{(k&1)*2048+mt*1024}{self.ld}"); wtok[k] = vm.issue()
        def cload(i):
            I(f"s_add_u32 s62, s58, {i & 7}"); I("s_and_b32 s62, s62, 7"); I("s_lshl_b32 s62, s62, 11"); I(f"s_add_u32 s62, s62, s{52 if i >= 16 else SCX}")
            if i & 8: I("s_add_u32 s62, s62, 0x40000")
            for qt in range(2):
                I(f"buffer_load_dwordx4 {v(cslot[i]+4*qt,4)}, v{VL16}, s[{RWS}:{RWS+3}], s62 offen offset:{qt*1024}{self.ld}"); ctok[i] = vm.issue()
        wl = [k for k in range(16) if k not in wtok]
        BS = [224, 240]; AS = list(range(128, 144, 4)) + list(range(64, 80, 4)); NA = len(AS)
        seq = [(dd, m, bt) for dd in range(4) for (m, bt) in ((0, 0), (3, 0), (0, 1), (3, 1), (1, 0), (2, 0), (1, 1), (2, 1))]
        atok = {}; btok = {}
        def rda(n):
            if n >= len(seq): return
            dd, m, bt = seq[n]
            I(f"ds_read_b128 {v(AS[n % NA],4)}, v{VA} offset:{64*dd + 1024*m + 32*bt}"); atok[n] = lg.issue()
        def rdb(dd, n):
            if dd >= 4: return
            I(f"ds_read_b128 {v(BS[dd & 1]+4*n,4)}, v{VB} offset:{(3-dd)*16 + 256*n}"); btok[(dd, n)] = lg.issue()
        rda(0)
        for n in range(4): rdb(0, n)
        for n in range(1, NA - 1): rda(n)
        seen = set()
        for n, (dd, m, bt) in enumerate(seq):
            for nn in range(4 - m):
                lg.wait(max(atok[n], btok[(dd, nn)]))
                key = (m + nn, bt); d = v(ACC + 8*key[0] + 4*bt, 4)
                I(f"v_mfma_f32_16x16x32_bf16 {d}, {v(AS[n % NA],4)}, {v(BS[dd & 1]+4*nn,4)}, {d if key in seen else '0'}"); seen.add(key)
                if nn == 0:
                    rda(n + NA - 1)
                    if 1 <= (n & 7) <= 4: rdb(dd + 1, (n & 7) - 1)
            if n & 1:
                h_ = n >> 1
                if h_ == PUBN:
                    vm.wait(self.tctx); self.barrier(); self.publish(46); self.publish(47)
                if h_ >= self.o.get("wst", 2) and len(wl) > self.o.get("wkeep", 2): wload(wl.pop(0))
                if h_ == self.o.get("p0", 10): tc0 = self.poll_issue(VP, VPA, "s53")
                if h_ == self.o.get("e0", 14):
                    l0 = a.label("E0"); l1 = a.label("E1")
                    vm.wait(tc0); I(f"v_and_b32 v{VP}, 1, v{VP}"); I(f"v_cmp_ne_u32 vcc, 1, v{VP}"); I("s_mov_b32 s50, 0"); I(f"s_cbranch_vccnz {l0}")
                    sv = self.save(); I("s_mov_b32 s50, 2")
                    for i in range(4): cload(i)
                    self.restore(sv); a.L(l0)
                    tc1 = self.poll_issue(VP, VPA, "s53")
        I(f"v_add_u32 v{T+2}, s51, v{VL16}")
        for i in range(8):
            I(f"ds_write_b128 v{T+2}, {v(ACC+4*i,4)} offset:{1024*i}"); lg.issue()
        while wl: wload(wl.pop(0))
        I(f"s_lshl_b32 s43, s{SC}, 15"); I(f"s_lshl_b32 s44, s{SJ}, 11"); I("s_add_u32 s43, s43, s44"); I(f"v_add_u32 v{T+2}, s43, v{VL16}")
        I(f"s_lshl_b32 s44, s{SJ}, 8"); I(f"s_add_u32 s44, s44, s{SB}"); I("s_add_u32 s44, s44, 520")
        I(f"v_lshl_add_u32 v{T+3}, v{T}, 4, s44"); I(f"v_and_b32 v{VA}, 1, v{T+1}"); I(f"v_lshlrev_b32 v{VA}, 3, v{VA}"); I(f"v_sub_u32 v{T+3}, v{T+3}, v{VA}")
        I(f"v_lshrrev_b32 v{VA}, 1, v{T+1}"); I(f"v_mul_u32_u24 v{VA}, 1536, v{VA}"); I(f"v_add_u32 v{T+3}, v{T+3}, v{VA}")
        I(f"v_lshlrev_b32 v{VB}, 6, v{T}"); I(f"v_lshl_add_u32 v{VB}, v{T+1}, 3, v{VB}")
        I(f"s_add_u32 s45, s{SWK}, {YB}"); I(f"v_add_u32 v{VB}, s45, v{VB}")
        I("s_lshl_b32 s43, s55, 16"); I("s_and_b32 s44, s55, 0xffff0000"); I(f"s_cmp_eq_u32 s{SC}, 0"); I("s_cselect_b32 s55, s43, s44")
        lg.wait(lg.issued); self.barrier()
        self.stamp(12)
        for p in range(4):
            for gq in range(2):
                I(f"ds_read_b128 {v(RD_+8*p+4*gq,4)}, v{T+2} offset:{8192*p+1024*gq}"); lg.issue()
        for gq in range(2):
            I(f"ds_read_b64 {v(ACC+2*gq,2)}, v{T+3} offset:{3072*gq}"); lg.issue()
        le = a.label("NE"); l2 = a.label("E2")
        I("s_cmp_eq_u32 s50, 2"); I(f"s_cbranch_scc1 {l2}")
        sv = self.save()
        vm.wait(tc1); I(f"v_and_b32 v{VP}, 1, v{VP}"); I(f"v_cmp_ne_u32 vcc, 1, v{VP}"); I(f"s_cbranch_vccnz {le}")
        for i in range(4): cload(i)
        a.L(l2); I("s_mov_b32 s50, 1")
        for i in range(4, len(CSL)): cload(i)
        self.restore(sv); a.L(le)
        lg.wait(lg.issued)
        for i in range(0, 8, 2):
            I(f"v_pk_add_f32 {v(RD_+i,2)}, {v(RD_+i,2)}, {v(RD_+8+i,2)}"); I(f"v_pk_add_f32 {v(RD_+16+i,2)}, {v(RD_+16+i,2)}, {v(RD_+24+i,2)}")
        for i in range(0, 8, 2): I(f"v_pk_add_f32 {v(RD_+i,2)}, {v(RD_+i,2)}, {v(RD_+16+i,2)}")
        for gq in range(2):
            for r in range(4):
                srcr = ACC + 2*gq + (1 - (r >> 1))
                I(f"v_lshlrev_b32 v{ACC+8}, 16, v{srcr}" if r & 1 else f"v_and_b32 v{ACC+8}, 0xffff0000, v{srcr}")
                I(f"v_fma_f32 v{RD_+4*gq+r}, v{ACC+8}, s55, v{RD_+4*gq+r}")
        for i in range(4): I(f"v_cvt_pk_bf16_f32 v{ACC+12+i}, v{RD_+2*i}, v{RD_+2*i+1}")
        for gq in range(2):
            I(f"ds_write_b64 v{VB}, {v(ACC+12+2*gq,2)} offset:{32*gq}"); lg.issue()
        I(f"v_and_b32 v{T+2}, 15, v0"); I(f"v_lshrrev_b32 v{T+1}, 4, v0"); I(f"v_lshlrev_b32 v{T+1}, 1, v{T+1}"); I(f"v_xor_b32 v{T+1}, v{T+1}, v{T+2}"); I(f"v_lshlrev_b32 v{T+1}, 4, v{T+1}")
        I(f"v_lshl_add_u32 v{VA}, v{T+2}, 8, v{T+1}"); I(f"v_add_u32 v{VA}, s51, v{VA}")
        I(f"s_lshr_b32 s48, s{SW}, 1"); I("s_lshl_b32 s48, s48, 4"); I(f"s_and_b32 s41, s{SW}, 1"); I("s_lshl_b32 s42, s41, 3")
        I(f"v_lshrrev_b32 v{T}, 4, v0"); I(f"v_lshl_add_u32 v{T+1}, v{T}, 1, s42"); I(f"v_xor_b32 v{T+1}, v{T+1}, v{T+2}"); I(f"v_lshlrev_b32 v{T+1}, 4, v{T+1}")
        I("s_and_b32 s43, s48, 16"); I(f"v_add_u32 v{T+3}, s43, v{T+2}"); I(f"v_lshl_add_u32 v{VW1}, v{T+3}, 8, v{T+1}")
        I("s_lshr_b32 s43, s48, 5"); I("s_lshl_b32 s43, s43, 16"); I(f"v_add_u32 v{VW1}, s43, v{VW1}")
        I(f"v_xor_b32 v{VW1}, 0x10000, v{VW1}"); I(f"v_xor_b32 v{VA}, 0x10000, v{VA}")
        I(f"v_add_u32 v{T}, s45, v{VL16}"); I(f"ds_read_b128 {v(RD_,4)}, v{T}"); lg.issue()
        I(f"v_xor_b32 v{VB}, 16, v{VW1}")
        I(f"s_lshl_b32 s44, s{SF}, 13"); I(f"s_add_u32 s44, s44, s{SWK}"); I(f"s_add_u32 s44, s44, {YT_OFF}")
        lg.wait(lg.issued)
        I(f"buffer_store_dwordx4 {v(RD_,4)}, v{VL16}, s[{RWS}:{RWS+3}], s44 offen{self.st}"); vm.issue()
        ll = a.label("NL")
        I("s_cmp_eq_u32 s50, 1"); I(f"s_cbranch_scc1 {ll}")
        self.poll_check(VP, VPA, "s53", 1)
        for i in range(len(CSL)): cload(i)
        a.L(ll)
        self.stamp(6)
        def put_ops(st):
            L = []
            for mt in range(4):
                def f(mt=mt):
                    I(f"v_xor_b32 v{T+3}, {(8*(mt>>1)+(mt&1))*16 + 0x10000*st}, v{VA}")
                    for qt in range(2):
                        I(f"ds_write_b128 v{T+3}, {v(OACC+32*st+8*mt+4*qt,4)} offset:{4096*qt}"); lg.issue()
                L.append(f)
            return L
        def sum_partials(mid=None):
            tk = []
            for p in range(8):
                for hh in range(2):
                    I(f"ds_read_b128 {v(OACC+8*p+4*hh,4)}, v{(VW1, VB)[hh]} offset:{8192*p}"); lg.issue()
                tk.append(lg.issued)
                if p == 5 and mid: mid()
            for p in range(1, 8):
                lg.wait(tk[p])
                for e in range(0, 8, 2): I(f"v_pk_add_f32 {v(OACC+e,2)}, {v(OACC+e,2)}, {v(OACC+8*p+e,2)}")
        ymark = vm.issued; ypub = False; pm = {}; ppub = False; free = []; nc = len(CSL); XR = WSL[0]; PR_ = WSL[1]
        TS = [OACC + 32 + 8*n for n in range(4)]; ptk = {}
        def prd(p):
            r = TS[0] if p == 0 else TS[1 + (p - 1) % 3]
            for hh in range(2):
                I(f"ds_read_b128 {v(r+4*hh,4)}, v{(VW1, VB)[hh]} offset:{8192*p}"); ptk[p] = lg.issue()
        def padd(p):
            lg.wait(ptk[p]); r = TS[1 + (p - 1) % 3]
            for e in range(0, 8, 2): I(f"v_pk_add_f32 {v(TS[0]+e,2)}, {v(TS[0]+e,2)}, {v(r+e,2)}")
            if p + 3 < 8: prd(p + 3)
        def pst():
            I(f"s_lshl_b32 s44, s{SF}, 14"); I(f"s_lshl_b32 s45, s{SW}, 11"); I("s_add_u32 s54, s44, s45"); I(f"s_add_u32 s54, s54, {PP_OFF}")
            for hh in range(2):
                I(f"buffer_store_dwordx4 {v(TS[0]+4*hh,4)}, v{VL16}, s[{RWS}:{RWS+3}], s54 offen offset:{1024*hh}{self.st}"); pm["t"] = vm.issue()
        B1 = self.o.get("b1", 18); PS = self.o.get("ps", 21)
        for i2 in range(0, 32, 2):
            st = (i2 >> 3) & 1; J = i2 & 7; fill = []
            if i2 in (8, 24): fill = put_ops(0)
            if i2 == 16: fill = put_ops(1)
            if i2 == 24: self.barrier()
            if i2 == B1:
                lg.wait(lg.issued); self.barrier()
                for p in range(4): prd(p)
                fill = [lambda p=p: padd(p) for p in range(1, 8)]
                I(f"s_lshl_b32 s53, s57, 7"); I(f"s_lshl_b32 s42, s{SW}, 4"); I("s_add_u32 s53, s53, s42"); I(f"s_add_u32 s53, s53, {FY_OFF}")
                I(f"v_and_b32 v{VPA}, 3, v0"); I(f"v_lshlrev_b32 v{VPA}, 2, v{VPA}")
                tf = self.poll_issue(VP, VPA, "s53")
            if i2 == 26:
                I(f"v_and_b32 v{T+1}, 15, v0"); I(f"s_lshl_b32 s45, s56, 6"); I("s_add_u32 s45, s45, s48"); I(f"v_add_u32 v{T+1}, s45, v{T+1}")
                I(f"v_lshlrev_b32 v{T+2}, 2, v{T+1}"); I(f"s_mov_b32 s45, {G_OFF}")
                I(f"buffer_load_dword v{GR}, v{T+2}, s[{RWS}:{RWS+3}], s45 offen{self.ld}"); vm.issue()
                I(f"v_lshrrev_b32 v{T+2}, 4, v0"); I(f"v_lshlrev_b32 v{T+2}, 4, v{T+2}"); I(f"v_lshl_add_u32 v{VO}, v{T+1}, 10, v{T+2}")
                I("s_lshl_b32 s49, s41, 6"); I(f"s_lshl_b32 s45, s57, 7"); I("s_add_u32 s49, s49, s45")
                I(f"buffer_load_dwordx4 {v(XR,4)}, v{VO}, s[{RD}:{RD+3}], s49 offen"); vm.issue()
                vm.wait(tf); self.poll_check(VP, VPA, "s53", 1)
                I(f"v_lshrrev_b32 v{T}, 3, v0"); I(f"v_and_b32 v{T+1}, 7, v0"); I(f"v_lshlrev_b32 v{T+1}, 4, v{T+1}")
                I(f"v_lshl_add_u32 v{T}, v{T}, 12, v{T+1}")
                I(f"s_add_u32 m0, s{SWK}, {YT}")
                I(f"s_lshl_b32 s44, s57, 18"); I(f"s_lshl_b32 s45, s{SW}, 15"); I("s_add_u32 s44, s44, s45")
                I(f"s_lshl_b32 s45, s56, 7"); I("s_add_u32 s44, s44, s45"); I(f"s_add_u32 s44, s44, {YT_OFF}")
                I(f"buffer_load_dwordx4 v{T}, s[{RWS}:{RWS+3}], s44 offen{self.ld} lds"); vm.issue()
            vm.wait(max(ctok[i2+1], wtok[2*J+3]))
            if i2 == self.o.get("b0", 8):
                assert vm.done > ymark
                self.barrier()
                ypub = True; I(f"s_lshl_b32 s44, s{SF}, 2"); I(f"s_add_u32 s44, s44, {FY_OFF}"); self.publish(44, 3)
            if pm and not ppub and vm.done >= pm["t"]:
                ppub = True
                I(f"s_lshl_b32 s44, s{SF}, 7"); I(f"s_lshl_b32 s45, s{SW}, 2"); I("s_add_u32 s44, s44, s45"); I(f"s_add_u32 s44, s44, {FP_OFF}")
                I("v_mov_b32 v2, 1"); I("v_mov_b32 v3, 0"); I(f"buffer_store_dword v2, v3, s[{RWS}:{RWS+3}], s44 offen sc1"); vm.issue()
            if i2 == 30:
                I(f"s_xor_b32 s53, s{SF}, 32"); I("s_lshl_b32 s53, s53, 7"); I(f"s_lshl_b32 s42, s{SW}, 2"); I("s_add_u32 s53, s53, s42"); I(f"s_add_u32 s53, s53, {FP_OFF}")
                I(f"v_mov_b32 v{VPA}, 0")
                if self.o.get("pe"): tp = self.poll_issue(VP, VPA, "s53")
            M = []
            for mt in range(4):
                for qt in range(2):
                    for u in range(2):
                        d = v(OACC + 32*st + 8*mt + 4*qt, 4)
                        M.append(lambda d=d, mt=mt, qt=qt, u=u: I(f"v_mfma_f32_16x16x32_bf16 {d}, {v(WSL[2*(J+u) + (mt >> 1)]+4*(mt & 1),4)}, {v(cslot[i2+u]+4*qt,4)}, {'0' if J + u == 0 else d}"))
            self.stream(M, [(1, 16, fill)] if fill else [])
            free += [cslot[i2], cslot[i2+1]]
            while free and nc < 32:
                cslot[nc] = free.pop(0); cload(nc); nc += 1
            if i2 + 1 == PS or i2 == PS: pst()
        assert ypub and ppub
        self.stamp(7)
        if not self.o.get("pe"):
            tp = self.poll_issue(VP, VPA, "s53")
            for f in put_ops(1): f()
        vm.wait(tp); self.poll_check(VP, VPA, "s53", 1)
        if self.o.get("ostamp"): self.stamp(20)
        I("s_xor_b32 s54, s54, 0x80000")
        for hh in range(2):
            I(f"buffer_load_dwordx4 {v(PR_+4*hh,4)}, v{VL16}, s[{RWS}:{RWS+3}], s54 offen offset:{1024*hh}{self.ld}"); tpp = vm.issue()
        if self.o.get("pe"):
            for f in put_ops(1): f()
        I(f"v_lshrrev_b32 v{T}, 4, v0"); I("s_lshl_b32 s42, s41, 5"); I(f"v_lshl_add_u32 v{T}, v{T}, 3, s42"); I(f"v_bfe_u32 v{T+1}, v0, 2, 2")
        I(f"v_add_u32 v{T}, v{T}, v{T+1}"); I(f"v_lshlrev_b32 v{T}, 7, v{T}"); I(f"v_and_b32 v{T+1}, 3, v0")
        I(f"v_lshl_add_u32 v{T}, v{T+1}, 3, v{T}"); I("s_lshl_b32 s42, s48, 1"); I(f"s_add_u32 s42, s42, {YT}"); I(f"v_add_u32 v{T}, s42, v{T}")
        lg.wait(lg.issued); self.barrier()
        I(f"ds_read_b64_tr_b16 {v(100,2)}, v{T}"); lg.issue()
        I(f"ds_read_b64_tr_b16 {v(102,2)}, v{T} offset:512"); ty2 = lg.issue()
        def mix():
            lg.wait(ty2)
            for e in range(8):
                if e & 1: I(f"v_and_b32 v104, 0xffff0000, v{XR+(e>>1)}"); I(f"v_and_b32 v105, 0xffff0000, v{100+(e>>1)}")
                else: I(f"v_lshlrev_b32 v104, 16, v{XR+(e>>1)}"); I(f"v_lshlrev_b32 v105, 16, v{100+(e>>1)}")
                I(f"v_mul_f32 v{112+e}, v104, v105"); I(f"v_mul_f32 v{112+e}, v{112+e}, v{GR}")
            I(f"v_sub_f32 v{GR}, 1.0, v{GR}")
        sum_partials(mix)
        vm.wait(tpp)
        for e in range(0, 8, 2): I(f"v_pk_add_f32 {v(OACC+e,2)}, {v(OACC+e,2)}, {v(PR_+e,2)}")
        for e in range(8): I(f"v_fmac_f32 v{112+e}, v{OACC+4*(e&1)+(e>>1)}, v{GR}")
        for e in range(4): I(f"v_cvt_pk_bf16_f32 v{108+e}, v{112+2*e}, v{112+2*e+1}")
        I(f"buffer_store_dwordx4 {v(108,4)}, v{VO}, s[{RC}:{RC+3}], s49 offen sc1"); vm.issue()
        self.stamp(16)
        if self.o.get("echo"):
            lp = a.label("EC")
            I("s_sub_u32 s100, s100, s96")
            if self.o.get("cyc"): I("s_lshr_b32 s100, s100, 4")
            I("s_memrealtime s[96:97]"); I("s_waitcnt lgkmcnt(0)")
            a.L(lp)
            I("s_memrealtime s[98:99]"); I("s_waitcnt lgkmcnt(0)"); I("s_sub_u32 s98, s98, s96"); I("s_cmp_lt_u32 s98, s100"); I(f"s_cbranch_scc1 {lp}")
        if self.o.get("dbgout") is not None:
            l = a.label("DB")
            I(f"s_cmp_lg_u32 s2, {self.o['dbgout']}"); I(f"s_cbranch_scc1 {l}"); I(f"s_cmp_lg_u32 s{SW}, 0"); I(f"s_cbranch_scc1 {l}")
            I("s_waitcnt vmcnt(0)")
            order = [0, 1, 2, 3, 8, 10, 11, 4, 5, 12, 6, 7, 16]
            I("v_mov_b32 v20, 0")
            for j, i in enumerate(order):
                I(f"s_mov_b32 s44, {4*i}"); I(f"v_writelane_b32 v20, s44, {j}")
            I(f"s_lshl_b32 s44, s2, 11"); I(f"s_add_u32 s44, s44, {STAMP_OFF}")
            I(f"buffer_load_dword v21, v20, s[{RWS}:{RWS+3}], s44 offen sc1"); I("s_waitcnt vmcnt(0)")
            I("v_readfirstlane_b32 s45, v21"); I("v_subrev_u32 v21, s45, v21")
            self.srd(RDBG, "dbg", 64); I("v_lshlrev_b32 v22, 2, v0")
            I(f"buffer_store_dword v21, v22, s[{RDBG}:{RDBG+3}], 0 offen")
            a.L(l)

HEADER = """; One persistent launch, one 8-wave workgroup per CU (generated by gen/gen_final.py, hand-designed schedule).
"""
def build(opts):
    g = G(opts); k = NAME + "_kernel"
    g.begin(k); g.a.T("; MARK p"); g.proj(); g.a.T("; MARK a"); g.attn(); g.a.T("; MARK t"); g.tailp(); g.end(); g.a.T("; MARK a"); g.attn_rare(); g.a.T("; MARK t"); g.a.L("CODE_END"); g.a.I("s_endpgm")
    n = g.a.fix_hazards()
    txt = "; @launch grid=(256,1,1) block=(512,1,1) lds=163840\n" + HEADER
    txt += '.amdgcn_target "amdgcn-amd-amdhsa--gfx950"\n.text\n' + g.a.text()
    txt += f""".section .rodata,"a"
.p2align 6
.amdhsa_kernel {k}
  .amdhsa_next_free_vgpr 256
  .amdhsa_next_free_sgpr 102
  .amdhsa_accum_offset 256
  .amdhsa_group_segment_fixed_size 0
  .amdhsa_kernarg_size 128
  .amdhsa_user_sgpr_count 2
  .amdhsa_user_sgpr_kernarg_segment_ptr 1
  .amdhsa_system_sgpr_workgroup_id_x 1
.end_amdhsa_kernel
"""
    print(f"instructions {sum(1 for it in g.a.items if it[0] == 'i')}, nops inserted {n}", file=sys.stderr)
    return txt

if __name__ == "__main__":
    opts = {}
    for x in sys.argv[2:]:
        if "=" in x: k_, v_ = x.split("="); opts[k_] = int(v_)
        else: opts[x] = True
    open(sys.argv[1], "w").write(build(opts))
```

```python
import sys, math, struct
sys.path.insert(0, "gen")
from asmlib import *

NAME = "gated_mix__ssm_conv_h3__compressed_kv_cla__prompt"
MB = 1 << 20
KV_OFF, Q_OFF, CTX_OFF, KVT_OFF, YT_OFF, G_OFF = 0, 32*MB, 48*MB, 64*MB, 66*MB, 68*MB
XC_OFF = 40*MB
PP_OFF = 40*MB
WOT_OFF = 32*MB
FLG_OFF = 68*MB + 65536
FK_OFF, FY_OFF, FC_OFF, FP_OFF = FLG_OFF, FLG_OFF + 4096, FLG_OFF + 8192, FLG_OFF + 32768
STAMP_OFF = 69*MB
WS_SIZE = 70*MB
P = dict(q=64, k=66, v=68, shift=70, ssmk=72, ssmD=74, bx=76, ckv=78, wq=80, wuk=82, wuv=84, wo=86, gate=88, out=90, dbg=92, ws=94)
SW, SHEAD, SIDX, SWK, SF = 3, 4, 5, 6, 7
RA, RB, RC, RWS, RD, RE, RT, RDBG = 8, 12, 16, 20, 24, 28, 56, 60
MFMA = "v_mfma_f32_32x32x16_bf16"
LOG2E = 1.4426950408889634
F_KV, F_CA, F_CB, F_Y = 1, 2, 4, 8
def f2u(x): return "0x%08x" % struct.unpack("<I", struct.pack("<f", x))[0]
def rep4(b): return b * 0x01010101

class G:
    def __init__(self, opts):
        self.a = Asm(); self.o = opts
        self.GSH, self.FSH = (8, 10) if opts.get("lin") else (11, 8)
        self.vm = Cnt(self.a, "vmcnt", 63); self.lg = Cnt(self.a, "lgkmcnt", 15)
        self.st = "" if opts.get("plainst") else (" sc1 nt" if opts.get("ntst") else " sc1"); self.ld = "" if opts.get("plainld") else " sc1"
    def I(self, t): self.a.I(t)
    def srd(self, r, ptr, nbytes):
        I = self.I
        I(f"s_mov_b32 s{r}, s{P[ptr]}"); I(f"s_mov_b32 s{r+1}, s{P[ptr]+1}")
        I(f"s_mov_b32 s{r+2}, {nbytes}"); I(f"s_mov_b32 s{r+3}, 0x00020000")
    def save(self): return (self.vm.issued, self.vm.done, self.lg.issued, self.lg.done)
    def restore(self, s_): self.vm.issued, self.vm.done, self.lg.issued, self.lg.done = s_
    def stream(self, mf, fills):
        n = len(mf); slots = [[] for _ in range(n + 1)]
        for (s0, e0, cl) in fills:
            m = e0 - s0
            for j, c in enumerate(cl): slots[s0 + 1 + (j * m) // len(cl)].append(c)
        for c in slots[0]: c()
        for i in range(n):
            mf[i]()
            for c in slots[i+1]: c()
    def stamp(self, i, dyn=None):
        if self.o.get("echo") == i:
            self.I("s_memtime s[100:101]" if self.o.get("cyc") else "s_memrealtime s[100:101]"); self.I("s_waitcnt lgkmcnt(0)")
        if not self.o.get("stamp"): return
        I = self.I
        I("s_memrealtime s[96:97]"); I("s_memtime s[100:101]")
        I("s_lshl_b32 s98, s2, 3"); I(f"s_add_u32 s98, s98, s{SW}"); I("s_lshl_b32 s98, s98, 8")
        I(f"s_add_u32 s98, s98, {STAMP_OFF + 4*i}")
        if dyn is not None:
            I(f"s_lshl_b32 s99, s{dyn}, 4"); I("s_add_u32 s98, s98, s99")
        I("s_waitcnt lgkmcnt(0)")
        I("v_mov_b32 v2, s96"); I("v_mov_b32 v3, 0")
        I(f"buffer_store_dword v2, v3, s[{RWS}:{RWS+3}], s98 offen")
        I("v_mov_b32 v2, s100")
        I(f"buffer_store_dword v2, v3, s[{RWS}:{RWS+3}], s98 offen offset:128")
    OOB = 0x40000000
    def publish(self, soff, val=1, srd=RWS, byte=False, idx=None):
        I = self.I
        self.oob_sel()
        if idx is not None: I(f"s_and_b32 s98, s{SIDX}, 3"); I(f"s_cmp_eq_u32 s98, {idx}"); I(f"s_cselect_b32 s99, s99, {self.OOB}")
        I(f"v_mov_b32 v2, {val}"); I("v_mov_b32 v3, s99")
        I(f"buffer_store_{'byte' if byte else 'dword'} v2, v3, s[{srd}:{srd+3}], s{soff} offen sc1"); self.vm.issue()
    def oob_sel(self):
        self.I(f"s_cmp_eq_u32 s{SW}, 0"); self.I(f"s_cselect_b32 s99, 0, {self.OOB}")
    def poll_issue(self, vd, vaddr, soff, srd=RWS):
        self.I(f"buffer_load_dword v{vd}, v{vaddr}, s[{srd}:{srd+3}], {soff} offen sc1"); return self.vm.issue()
    def poll_check(self, vd, vaddr, soff, want, srd=RWS):
        a = self.a; I = self.I
        l = a.label("PCK"); lp = a.label("POLL")
        I(f"s_mov_b32 s98, {want}"); I("s_mov_b32 s99, 20000")
        a.L(lp)
        I(f"v_and_b32 v{vd}, s98, v{vd}"); I(f"v_cmp_ne_u32 vcc, s98, v{vd}"); I(f"s_cbranch_vccz {l}")
        I("s_sleep 2")
        I(f"buffer_load_dword v{vd}, v{vaddr}, s[{srd}:{srd+3}], {soff} offen sc1")
        I("s_sub_u32 s99, s99, 1"); I("s_cmp_lg_u32 s99, 0"); I("s_waitcnt vmcnt(0)"); I(f"s_cbranch_scc1 {lp}")
        a.L(l)
    def phys(self, d, s_, t, E=None):
        I = E or self.I; p = self.o.get("hperm", 0)
        if p == 0: I(f"s_mov_b32 s{d}, s{s_}")
        elif p == 1: I(f"s_and_b32 s{t}, s{s_}, 3"); I(f"s_lshl_b32 s{t}, s{t}, 3"); I(f"s_lshr_b32 s{d}, s{s_}, 2"); I(f"s_or_b32 s{d}, s{d}, s{t}")
        elif p >= 32:
            I(f"s_lshr_b32 s{t}, s{s_}, 3"); I(f"s_add_u32 s{t}, s{t}, {p - 32}"); I(f"s_and_b32 s{t}, s{t}, 3")
            I(f"s_and_b32 s{d}, s{s_}, 7"); I(f"s_lshl_b32 s{d}, s{d}, 2"); I(f"s_or_b32 s{d}, s{d}, s{t}")
        else: I(f"s_mul_i32 s{t}, s{s_}, {p}"); I(f"s_and_b32 s{d}, s{t}, 31")
    def code_prefetch(self, start, end, msk, sp, st):
        I = self.I; lp = self.a.label("PC")
        I(f"s_getpc_b64 s[{sp}:{sp+1}]"); self.a.L(lp)
        if start: I(f"s_sub_u32 s{sp}, s{sp}, {lp}-{start}"); I(f"s_subb_u32 s{sp+1}, s{sp+1}, 0")
        I(f"s_and_b32 s{st}, s{SIDX}, {msk}"); I(f"s_lshl_b32 s{st}, s{st}, 13"); I(f"s_add_u32 s{st}, s{st}, s{SWK}")
        I("v_and_b32 v2, 7, v0"); I(f"v_lshl_add_u32 v2, v2, 7, s{st}"); I(f"v_min_u32 v2, {end}-{start or lp}-4, v2")
        I(f"v_mov_b32 v3, s{sp+1}"); I(f"v_add_co_u32 v2, vcc, s{sp}, v2"); I("v_addc_co_u32 v3, vcc, 0, v3, vcc")
        I("global_load_dword v1, v[2:3], off")
    def barrier(self): self.I("s_barrier")
    def sync_all(self):
        self.I("s_waitcnt vmcnt(0) lgkmcnt(0)"); self.vm.mark_all_done(); self.lg.mark_all_done(); self.barrier()

    def begin(self, kname):
        a = self.a; I = self.I
        a.T(f".globl {kname}\n.p2align 8\n.type {kname},@function"); a.L(kname)
        self.endl = a.label("END")
        if self.o.get("stamp"): I("s_memrealtime s[30:31]")
        if self.o.get("echo"): I("s_memtime s[96:97]" if self.o.get("cyc") else "s_memrealtime s[96:97]")
        I("s_load_dwordx16 s[64:79], s[0:1], 0"); I("s_load_dwordx16 s[80:95], s[0:1], 64")
        I("s_cmp_ge_u32 s2, 256"); I(f"s_cbranch_scc1 {self.endl}")
        I("v_lshrrev_b32 v1, 6, v0"); I("v_and_b32 v0, 63, v0"); I(f"v_readfirstlane_b32 s{SW}, v1")
        I("s_and_b32 s7, s2, 7"); I("s_lshl_b32 s7, s7, 2")
        I(f"s_lshr_b32 s{SIDX}, s2, 3"); I(f"s_lshr_b32 s{SHEAD}, s{SIDX}, 3"); I(f"s_add_u32 s{SHEAD}, s{SHEAD}, s7")
        I(f"s_and_b32 s{SIDX}, s{SIDX}, 7"); I(f"s_lshl_b32 s{SWK}, s{SW}, 10")
        I(f"s_lshl_b32 s{SF}, s{SHEAD}, 3"); I(f"s_add_u32 s{SF}, s{SF}, s{SIDX}")
    def end(self):
        self.a.L(self.endl); self.I("s_endpgm")

    def proj(self):
        a = self.a; I = self.I; vm = self.vm; lg = self.lg
        QA_LDS = 65536
        ACC = {"K": 64, "V": 128, "Q": 64}
        FX = [16, 24]; FW = [192, 32]
        VWA = 4; VSK, VSV, VOX, VOW, VST = 8, 9, 10, 11, 12; VXA = 224; T = 232
        NB = 0; XC = self.o.get("xc", 0)
        ST = [("KV", c) for c in range(NB)] + [("K", c) for c in range(NB, 8)] + [("V", c) for c in range(7, NB - 1, -1)] + [("Q", c) for c in range(8)]
        NS = len(ST); TK = 7; TV = NS - 9; TQ = NS - 8
        I("v_lshrrev_b32 v13, 3, v0"); I(f"s_lshl_b32 s40, s{SW}, 3"); I("v_add_u32 v13, s40, v13"); I("v_lshlrev_b32 v13, 10, v13")
        I(f"s_lshr_b32 s41, s{SW}, 1"); I(f"s_xor_b32 s40, s41, s{SW}"); I("s_and_b32 s40, s40, 1"); I("s_lshl_b32 s40, s40, 2")
        I("v_lshrrev_b32 v14, 4, v0"); I("v_add_u32 v15, s40, v14")
        I("v_and_b32 v3, 7, v0"); I("v_xor_b32 v15, v15, v3"); I(f"v_lshl_add_u32 v{VOX}, v15, 4, v13")
        I(f"s_lshl_b32 s40, s{SW}, 2"); I("v_add_u32 v13, s40, v14"); I("v_lshlrev_b32 v13, 13, v13")
        I("s_and_b32 s41, s41, 1"); I("s_lshl_b32 s41, s41, 3"); I("v_lshl_add_u32 v15, v14, 1, s41"); I("v_and_b32 v3, 15, v0"); I("v_xor_b32 v15, v15, v3")
        I("v_lshl_add_u32 v13, v15, 4, v13"); self.phys(40, SHEAD, 41); I("s_lshl_b32 s40, s40, 8"); I(f"v_add_u32 v{VOW}, s40, v13")
        I(f"v_lshlrev_b32 v{VST}, 4, v0")
        I(f"s_lshl_b32 s44, s{SIDX}, 18")
        for i in range(1, 4): I(f"s_add_u32 s{44+i}, s44, {65536*i}")
        ROT = self.o.get("rot", 2)
        if ROT == 0: I("s_mov_b32 s33, 0")
        elif ROT == 1: I(f"s_mov_b32 s33, s{SIDX}")
        elif ROT == 2: I(f"s_lshr_b32 s33, s{SHEAD}, 2"); I(f"s_add_u32 s33, s33, s{SIDX}")
        elif ROT == 3: I(f"s_lshr_b32 s33, s{SHEAD}, 2"); I(f"s_add_u32 s33, s33, s{SIDX}"); I(f"s_lshl_b32 s34, s{SHEAD}, 1"); I("s_add_u32 s33, s33, s34")
        elif ROT == 4: I(f"s_lshr_b32 s33, s{SHEAD}, 2")
        if self.o.get("rotq"): I(f"s_lshl_b32 s32, s{SHEAD}, 1"); I("s_add_u32 s32, s32, s33")
        else: I("s_mov_b32 s32, s33")
        I("s_waitcnt lgkmcnt(0)")
        if self.o.get("stamp"): I("s_memrealtime s[28:29]")
        self.srd(RA, "ckv", 2*MB); self.srd(RB, "wuk", 4*MB); self.srd(RC, "wuv", 4*MB)
        def xbase(t):
            k, c = ST[t]
            return (32768, 131072, 0)[((16 + c) if k == "Q" else (15 - c + NB)) % 3]
        units = [(t, m) for t in range(NS) for m in ST[t][0]]
        uidx = {u: i for i, u in enumerate(units)}
        def wbase(t, m): return 65536 + (uidx[(t, m)] % 4)*16384
        WE = self.o.get("wearly", 2)
        def wn(t): return t - 1 if t >= WE else t
        items = []
        lastx = {}
        for t in range(NS):
            k, c = ST[t]
            for m in k:
                u = uidx[(t, m)]
                def w(i, t=t, m=m, c=c):
                    if i == 0: I(f"s_add_u32 s34, s{32 if m == 'Q' else 33}, {c}"); I("s_and_b32 s34, s34, 7"); I("s_lshl_b32 s34, s34, 19")
                    I(f"s_add_u32 m0, s{SWK}, {wbase(t, m) + i*8192}"); I(f"s_add_u32 s41, s34, {i*262144}")
                    r = {"K": RB, "V": RC, "Q": RE}[m]
                    if self.o.get("nodma") and t > 4: dtok[wn(t)] = vm.issued; return
                    I(f"buffer_load_dwordx4 v{VOW}, s[{r}:{r+3}], s41 offen lds"); dtok[wn(t)] = vm.issue()
                items.append((wn(t), wn(units[u-4][0]) if u >= 4 else -1, [lambda i=i, w=w: w(i) for i in range(2)]))
            key = ("Q" if k == "Q" else "C", c); prev = lastx.get(xbase(t))
            if prev is None or prev[1] != key:
                def x(i, t=t, k=k, c=c):
                    if i == 0: I(f"s_add_u32 s35, s{32 if k == 'Q' else 33}, {c}"); I("s_and_b32 s35, s35, 7"); I("s_lshl_b32 s35, s35, 7")
                    I(f"s_add_u32 m0, s{SWK}, {xbase(t) + i*8192}"); I(f"s_add_u32 s41, s{(48 if k == 'Q' else 44)+i}, s35")
                    r = (RWS if XC else RD) if k == "Q" else RA
                    if self.o.get("nodma") and t > 4: dtok[t] = vm.issued; return
                    I(f"buffer_load_dwordx4 v{VOX}, s[{r}:{r+3}], s41 offen{self.ld if (XC and k == 'Q') else ''} lds"); dtok[t] = vm.issue()
                items.append((t, prev[0] if prev else -1, [lambda i=i, x=x: x(i) for i in range(4)]))
            lastx[xbase(t)] = (t, key)
        items.sort(key=lambda it: it[0])
        dtok = {}
        def take(done, upto=99):
            out = []
            for it in list(items):
                if it[1] <= done and it[0] <= upto: out += it[2]; items.remove(it)
            return out
        for f in take(-1, 0): f()
        self.srd(RWS, "ws", WS_SIZE); self.srd(RDBG, "dbg", 256)
        if self.o.get("wsoff"): I(f"s_add_u32 s{RWS}, s{RWS}, {self.o['wsoff']*MB}"); I(f"s_addc_u32 s{RWS+1}, s{RWS+1}, 0")
        self.stamp(31)
        if self.o.get("stamp"):
            I("v_mov_b32 v2, s30"); I("s_sub_u32 s98, s98, 124"); I(f"buffer_store_dword v2, v3, s[{RWS}:{RWS+3}], s98 offen")
            I("v_mov_b32 v2, s28"); I(f"buffer_store_dword v2, v3, s[{RWS}:{RWS+3}], s98 offen offset:120")
        I(f"s_lshl_b32 s48, s{SIDX}, 17"); I("s_add_u32 s49, s48, 65536")
        I(f"s_sub_u32 s50, 15, s{SIDX}"); I("s_lshl_b32 s50, s50, 17"); I("s_add_u32 s51, s50, 65536")
        if XC:
            for i in range(4): I(f"s_add_u32 s{48+i}, s{48+i}, {XC_OFF}")
        I(f"s_and_b32 s42, s{SW}, 3"); I("s_lshl_b32 s42, s42, 6"); I(f"s_lshr_b32 s43, s{SW}, 2"); I("s_lshl_b32 s43, s43, 1")
        I("v_and_b32 v13, 15, v0"); I("v_lshrrev_b32 v15, 4, v0")
        I("v_lshrrev_b32 v14, 1, v13"); I("v_xor_b32 v14, v14, v15"); I("v_lshlrev_b32 v14, 4, v14")
        I("v_add_u32 v3, s42, v13"); I(f"v_lshl_add_u32 v{VXA}, v3, 7, v14")
        I("v_and_b32 v2, 8, v13"); I("v_add_u32 v3, v3, v2"); I(f"v_lshl_add_u32 v{VXA+4}, v3, 7, v14")
        for pt in range(2):
            b = VXA + 4*pt
            I(f"v_xor_b32 v{b+1}, 64, v{b}"); I(f"v_add_u32 v{b+2}, 0x20000, v{b}"); I(f"v_add_u32 v{b+3}, 0x20000, v{b+1}")
        I("v_lshlrev_b32 v3, 4, v13"); I("v_and_b32 v2, 1, v15"); I("v_lshl_add_u32 v3, v2, 9, v3"); I("v_lshrrev_b32 v14, 1, v15")
        I("v_lshlrev_b32 v3, 4, v13"); I(f"v_lshl_add_u32 v{VSK}, v15, {self.GSH}, v3")
        I("v_bfe_u32 v13, v0, 2, 2"); I("v_lshl_add_u32 v14, v15, 3, v13"); I("v_lshlrev_b32 v14, 8, v14")
        I("v_and_b32 v3, 3, v0"); I("v_lshl_add_u32 v14, v3, 3, v14"); I("v_add_u32 v14, 0x10000, v14")
        I("v_lshl_add_u32 v13, v2, 2, v13"); I("s_lshl_b32 s40, s43, 1"); I("v_xor_b32 v13, s40, v13"); I(f"v_lshl_add_u32 v{VWA}, v13, 5, v14")
        for dt in range(1, 4): I(f"v_xor_b32 v{VWA+dt}, {dt << 5}, v{VWA}")
        I(f"s_lshl_b32 s54, s{SHEAD}, 4"); I(f"s_lshl_b32 s55, s{SIDX}, 1"); I("s_add_u32 s54, s54, s55")
        I(f"s_bfe_u32 s55, s{SW}, 0x10001"); I("s_add_u32 s54, s54, s55"); I("s_lshl_b32 s54, s54, 16")
        I(f"s_and_b32 s55, s{SW}, 1"); I("s_lshl_b32 s55, s55, 14"); I("s_add_u32 s54, s54, s55")
        I(f"s_lshl_b32 s55, s43, {self.FSH+1}"); I("s_add_u32 s52, s54, s55"); I("s_add_u32 s52, s52, 0x8000")
        I(f"s_lshl_b32 s55, s43, {self.FSH}"); I("s_add_u32 s54, s54, s55")
        XG = T; GW = T + 4; hl = {}
        def gate_loads():
            L = []
            def E(t): L.append(lambda: I(t))
            def V(t):
                def f(): I(t); hl["t"] = vm.issue()
                L.append(f)
            E(f"s_lshl_b32 s40, s{SHEAD}, 7"); E(f"s_lshl_b32 s39, s{SIDX}, 2"); E("s_add_u32 s40, s40, s39"); E(f"s_add_u32 s40, s40, {FK_OFF}")
            E(f"s_lshl_b32 s39, s{SF}, 7"); E(f"s_add_u32 s39, s39, {FP_OFF}"); E("v_and_b32 v13, 7, v0"); E("v_lshl_add_u32 v13, v13, 2, s39")
            E("v_writelane_b32 v13, s40, 0")
            E(f"s_lshr_b32 s39, s{SHEAD}, 2"); E("s_lshl_b32 s39, s39, 7"); E(f"s_and_b32 s40, s{SHEAD}, 3"); E("s_lshl_b32 s40, s40, 2"); E("s_add_u32 s39, s39, s40")
            E(f"s_lshl_b32 s40, s{SIDX}, 10"); E("s_add_u32 s40, s40, s39"); E(f"s_add_u32 s40, s40, {FC_OFF}")
            E("v_writelane_b32 v13, s40, 1")
            E(f"s_sub_u32 s40, 15, s{SIDX}"); E("s_lshl_b32 s40, s40, 10"); E("s_add_u32 s40, s40, s39"); E(f"s_add_u32 s40, s40, {FC_OFF}")
            E("v_writelane_b32 v13, s40, 2")
            E(f"s_lshl_b32 s40, s{SF}, 2"); E(f"s_add_u32 s40, s40, {FY_OFF}"); E("v_writelane_b32 v13, s40, 3"); E("v_mov_b32 v14, 0")
            def oo(): self.oob_sel(); I("v_add_u32 v13, s99, v13")
            L.append(oo)
            V(f"buffer_store_dword v14, v13, s[{RWS}:{RWS+3}], 0 offen sc1")
            E("s_lshl_b32 s37, s2, 3"); E(f"s_add_u32 s37, s37, s{SW}"); E("s_lshl_b32 s38, s37, 10")
            L.append(lambda: self.srd(RD, "q", 2*MB)); L.append(lambda: self.srd(RE, "wq", 4*MB)); L.append(lambda: self.srd(RT, "gate", 1024))
            V(f"buffer_load_dwordx4 {v(XG,4)}, v{VST}, s[{RD}:{RD+3}], s38 offen")
            V(f"buffer_load_dwordx4 {v(GW,4)}, v{VST}, s[{RT}:{RT+3}], 0 offen")
            return L
        def gate_ops():
            L = []; E = lambda t: L.append(lambda: I(t)); Z = T + 8
            L.append(lambda: vm.wait(hl["t"]))
            def xs():
                I(f"s_add_u32 s38, s38, {XC_OFF}"); I(f"buffer_store_dwordx4 {v(XG,4)}, v{VST}, s[{RWS}:{RWS+3}], s38 offen{self.st}"); vm.issue()
            if XC: L.append(xs)
            E(f"v_dot2_f32_bf16 v{Z}, v{XG}, v{GW}, 0")
            for i in range(1, 4): E(f"v_dot2_f32_bf16 v{Z}, v{XG+i}, v{GW+i}, v{Z}")
            for m in ("quad_perm:[1,0,3,2] row_mask:0xf", "quad_perm:[2,3,0,1] row_mask:0xf", "row_half_mirror row_mask:0xf", "row_mirror row_mask:0xf",
                      "row_bcast:15 row_mask:0xa", "row_bcast:31 row_mask:0xc"):
                E(f"v_add_f32_dpp v{Z}, v{Z}, v{Z} {m} bank_mask:0xf")
            E(f"v_readlane_b32 s36, v{Z}, 63"); E(f"v_mov_b32 v{Z+1}, {f2u(-LOG2E)}"); E(f"v_mul_f32 v{Z}, s36, v{Z+1}")
            E(f"v_exp_f32 v{Z}, v{Z}"); E(f"v_add_f32 v{Z}, 1.0, v{Z}"); E(f"v_rcp_f32 v{Z}, v{Z}")
            E("s_lshl_b32 s38, s37, 2"); E(f"s_add_u32 s38, s38, {G_OFF}"); E(f"v_mov_b32 v{Z+1}, 0")
            def gs():
                I(f"buffer_store_dword v{Z}, v{Z+1}, s[{RWS}:{RWS+3}], s38 offen{self.st}"); vm.issue()
            L.append(gs)
            return L
        toks = {}
        def rdx(t, mt):
            m = ST[t][0]; xb = xbase(t); pt = 0
            off = (xb & 65535) + ((mt >> 1)*4096 + (mt & 1)*1024 if pt else mt*2048)
            def f(kk):
                va = VXA + 4*pt + 2*(xb >> 17) + (kk ^ (mt & 1))
                I(f"ds_read_b128 {v(FX[mt & 1]+4*kk,4)}, v{va} offset:{off}"); toks[("x", t, mt, kk)] = lg.issue()
            return [lambda: f(0), lambda: f(1)]
        def rdw(t, dt):
            m = ST[t][0]
            def f(kk, h):
                I(f"ds_read_b64_tr_b16 {v(FW[t & 1]+8*dt+4*kk+2*h,2)}, v{VWA+dt} offset:{wbase(t, m)-65536+kk*8192+h*1024}"); toks[("w", t, dt, kk)] = lg.issue()
            return [lambda kk=kk, h=h: f(kk, h) for kk in range(2) for h in range(2)]
        def atile(m, mt, dt): return ACC[m] + (4*(((mt >> 1)*4 + dt)*2 + (mt & 1)) if m == "V" else 4*(mt*4 + dt))
        def mfs(t, mt):
            m = ST[t][0]; first = t == 0 or ST[t-1][0] != m; L = []
            order = [(dt, kk) for dt in range(4) for kk in range(2)] if not self.o.get("nochain") else [(dt, kk) for kk in range(2) for dt in range(4)]
            for dt, kk in order:
                def f(dt=dt, kk=kk):
                    lg.wait(max(toks[("x", t, mt, kk)], toks[("w", t, dt, kk)]))
                    d = v(atile(m, mt, dt), 4); X = v(FX[mt & 1]+4*kk, 4); W = v(FW[t & 1]+8*dt+4*kk, 4)
                    c = "0" if (first and kk == 0) else d
                    I(f"v_mfma_f32_16x16x32_bf16 {d}, {X}, {W}, {c}" if m == "V" else f"v_mfma_f32_16x16x32_bf16 {d}, {W}, {X}, {c}")
                L.append(f)
            return L
        def pieces(m):
            fs = 1024 if m == "Q" else 1 << self.FSH
            if m == "V": return [(atile(m, 2*p, dt), p*8192 + dt*fs) for p in range(2) for dt in range(4)]
            return [(atile(m, mt, 2*j), (mt >> 1)*8192 + ((mt & 1)*4 + j)*fs) for mt in range(4) for j in range(2)]
        def kv_out(m):
            out = []
            for b, off in pieces(m):
                pk = [lambda i=i, b=b: I(f"v_cvt_pk_bf16_f32 v{b+i}, v{b+2*i}, v{b+2*i+1}") for i in range(4)]
                if m == "K": pk = [lambda i=i, b=b: I(f"v_mul_f32 v{b+i}, {f2u(LOG2E / math.sqrt(128.0))}, v{b+i}") for i in range(8)] + pk
                def st(b=b, off=off):
                    if self.o.get("nost"): return
                    I(f"s_add_u32 s41, s{54 if m == 'K' else 52}, {off}")
                    I(f"buffer_store_dwordx4 {v(b,4)}, v{VSK}, s[{RWS}:{RWS+3}], s41 offen{self.st}"); vm.issue()
                out.append((pk, st))
            return out
        side = {}; late = {}
        def spread(ops, t0, t1, dst=side, ks=(0, 1, 2)):
            sl = [(t, k) for t in range(t0, t1) for k in ks]; n = len(ops)
            for j, key in enumerate(sl): dst.setdefault(key, []).extend(ops[n*j//len(sl): n*(j+1)//len(sl)])
        PG = self.o.get("pg", 0)
        spread(gate_loads(), PG, PG + 1); spread(gate_ops(), PG + 2, PG + 3)
        def wtouch(r, half, wv):
            def f():
                I(f"s_cmp_eq_u32 s{SW}, {wv}"); I(f"s_cselect_b32 s99, 0, {self.OOB}")
                self.phys(39, SHEAD, 40); I("s_lshl_b32 s39, s39, 8"); I(f"s_lshl_b32 s40, s{SIDX}, 19"); I("s_add_u32 s40, s40, s39"); I(f"s_add_u32 s40, s40, {half*32*8192}")
                I("v_lshrrev_b32 v3, 1, v0"); I("v_lshlrev_b32 v3, 13, v3"); I("v_and_b32 v2, 1, v0"); I("v_lshl_add_u32 v3, v2, 7, v3"); I("v_add_u32 v3, s99, v3")
                I(f"buffer_load_dword v1, v3, s[{r}:{r+3}], s40 offen"); vm.issue()
            return f
        for nm, r, dflt in (("tk", RB, -1), ("tv", RC, 1), ("tq", RE, 3)):
            t0 = self.o.get(nm, dflt)
            if t0 >= 0:
                for half in range(2): side.setdefault((t0 + half, 2), []).append(wtouch(r, half, half))
        KN = self.o.get("kn", 8); VD = self.o.get("vd", 0); VN = self.o.get("vn", 5)
        KO = kv_out("K"); VO = kv_out("V"); SK = self.o.get("sk", 2); SG_ = self.o.get("sgp", 6)
        spread(sum((p for p, _ in KO), []), TK + 1, min(TK + 3, TQ), ks=(0, 1))
        npk = 2 * (min(TK + 3, TQ) - TK - 1)
        spread([s_ for _, s_ in KO], TK + 1, TK + 1 + KN, dst=late, ks=(SK,))
        spread(sum((p for p, _ in VO), []), TQ, TQ + 1, ks=(0, 1))
        spread([s_ for _, s_ in VO], TQ + VD, TQ + VD + VN, dst=late, ks=(SK,))
        PK_, PV_ = TK + KN + 2, TQ + VD + VN
        assert PK_ <= NS - 5 and PV_ <= NS - 2
        QE = []; EQ = lambda t: QE.append(lambda: I(t))
        EQ(f"s_and_b32 s55, s{SW}, 2"); EQ("s_lshl_b32 s55, s55, 15"); EQ(f"s_add_u32 s55, s55, {QA_LDS}")
        EQ(f"s_and_b32 s54, s{SW}, 1"); EQ("s_lshl_b32 s54, s54, 14"); EQ("s_add_u32 s55, s55, s54")
        EQ("s_lshl_b32 s54, s43, 10"); EQ("s_add_u32 s55, s55, s54"); EQ(f"v_add_u32 v14, s55, v{VST}")
        if self.o.get("ct2", 21) >= 0: side.setdefault((self.o.get("ct2", 21), 1), []).append(lambda: (self.code_prefetch(None, "HOT_END", 7, 36, 40), vm.issue()))
        spread(QE, NS - 1, NS)
        spread([lambda: self.srd(RB, "ssmk", 2*MB), lambda: self.srd(RA, "k", 2*MB), lambda: self.srd(RC, "v", 2*MB), lambda: self.srd(RD, "shift", 4096), lambda: self.srd(RE, "wo", 4*MB)], NS - 2, NS - 1)
        spread([lambda r=r: I(f"v_mov_b64 {v(192+2*r,2)}, 0") for r in range(32) if not 16 <= r < 20], NS - 1, NS)
        side.setdefault((NS - 1, 3), []).extend([lambda r=r: I(f"v_mov_b64 {v(192+2*r,2)}, 0") for r in range(16, 20)])
        def fkoff():
            I(f"s_lshl_b32 s40, s{SHEAD}, 7"); I(f"s_lshl_b32 s41, s{SIDX}, 2"); I("s_add_u32 s40, s40, s41"); I(f"s_add_u32 s40, s40, {FK_OFF}")
        def w0only(fn):
            l = a.label("NP"); I(f"s_cmp_lg_u32 s{SW}, 0"); I(f"s_cbranch_scc1 {l}"); fn(); a.L(l)
        def k0(i):
            I(f"s_lshl_b32 s40, s{SW}, 12"); I("s_add_u32 m0, s40, 0x8000")
            I(f"s_lshl_b32 s41, s{SHEAD}, 20"); I("s_add_u32 s41, s41, s40")
            I(f"buffer_load_dwordx4 v{VST}, s[{RWS}:{RWS+3}], s41 offen offset:{1024*i}{self.ld} lds"); vm.issue()
        self.barrier()
        for f in take(-1, 1): f()
        vm.wait(dtok[0]); self.barrier()
        self.stamp(1)
        def first_reads(t):
            x = rdx(t, 0); w = [rdw(t, dt) for dt in range(4)]
            return [x[0]] + w[0][:2] + [x[1]] + w[0][2:] + w[1], w[2] + w[3]
        L, rest = first_reads(0)
        for f in L: f()
        VPK = self.o.get("vpk", 2); mark = {}; TZ = PG + 4; TS = 10; DS = self.o.get("dsteps", 3)
        pend = take(-1)
        for t in range(NS):
            for k in range(4):
                M = mfs(t, k); n = len(M); PB = []
                if k == 3 and t < NS - 1:
                    assert not pend
                    if t == TS + 2: vm.wait(td); w0only(lambda: self.poll_check(14, 13, "0", rep4(1), RDBG))
                    if t == NS - 3: vm.wait(tp); w0only(lambda: self.poll_check(15, 13, "s53", 1))
                    lg.wait(lg.issued)
                    if not (self.o.get("nowait") and t > 4): vm.wait(dtok.get(t+1, 0))
                    if t == TZ: vm.wait(mark[TZ-2])
                    if t == PK_: vm.wait(mark[TK + KN])
                    if t == PV_: vm.wait(mark[PV_ - 1])
                    self.barrier()
                    ps = self.o.get("pstamp")
                    if ps is not None and 0 <= t - int(ps) + 1 < 13: self.stamp(17 + t - int(ps) + 1); vm.issue(2)
                    if TZ <= t < TZ + 4: PB.append(lambda t=t: self.publish(SF, 1, RDBG, True, idx=t - TZ))
                    if t == PK_: PB.append(lambda: (fkoff(), self.publish(40, 1)))
                    if t == PV_: PB.append(lambda: (fkoff(), self.publish(40, 3)))
                    pend = take(t)
                    if t == NS - 3: pend += [lambda i=i: k0(i) for i in range(4)]
                    nd = len(pend) // (DS + 1)
                else:
                    nd = -(-len(pend) // max(1, (3 if t == 0 else DS) - k))
                D, pend = pend[:nd], pend[nd:]
                fl = []
                if not (t == NS - 1 and k == 3):
                    if k == 3:
                        if t + 1 >= WE: fl.append((0, 2, rdx(t+1, 0))); rest = []
                        else:
                            L, rest = first_reads(t+1); nr = self.o.get("nr", 4)
                            fl.append((0, 7, L + rest[:nr])); rest = rest[nr:]
                    else:
                        if k == 0 and rest: fl.append((-1, 2, rest))
                        fl.append((0, 2, rdx(t, k+1)) if not (k == 0 and rest) else (2, 4, rdx(t, k+1)))
                        if WE <= t + 1 < NS:
                            wr = sum((rdw(t+1, dt) for dt in range(4)), [])
                            fl.append((2, 8 if k < 2 else 6, wr[(0, 6, 12)[k]:(6, 12, 16)[k]]))
                if PB: fl.append((1, 2, PB))
                if D: fl.append((0, n, D))
                if side.get((t, k)): fl.append((0, n, side[(t, k)]))
                if late.get((t, k)): fl.append((SG_, min(n, SG_ + 4), late[(t, k)]))
                self.stream(M, fl)
                if k == 2: mark[t] = vm.issued
                if t == TS and k == 0:
                    self.oob_sel(); I("v_lshl_add_u32 v13, v0, 2, s99"); td = self.poll_issue(14, 13, "0", RDBG)
                if t == NS - 4 and k == 0:
                    self.oob_sel(); I("v_and_b32 v13, 7, v0"); I("v_lshl_add_u32 v13, v13, 2, s99")
                    I(f"s_lshl_b32 s53, s{SHEAD}, 7"); I(f"s_add_u32 s53, s53, {FK_OFF}")
                    tp = self.poll_issue(15, 13, "s53")
                if t == NS - 1 and k == VPK: self.poll_issue(15, 13, "s53")
            if t == TK: self.stamp(2)
            if t == TV: self.stamp(13)
        assert not items
        self.stamp(3)
        I("v_mov_b32 v16, v13")
        if VPK > 3: self.poll_issue(15, 13, "s53")
        for b, off in pieces("Q"):
            for i in range(4): I(f"v_cvt_pk_bf16_f32 v{b+i}, v{b+2*i}, v{b+2*i+1}")
            I(f"ds_write_b128 v14, {v(b,4)} offset:{off}"); lg.issue()
        self.attn_setup()
        vm.wait(vm.issued); w0only(lambda: self.poll_check(15, 16, "s53", 3))
        lg.wait(lg.issued); self.barrier()

    def attn_setup(self): self.attn(True)
    def attn(self, setup=False):
        a = self.a; I = self.I; vm = self.vm; lg = self.lg
        M16 = "v_mfma_f32_16x16x32_bf16"
        ML = 155648; QA_LDS = 65536; QB_LDS = 131072
        O = 192; QF = 160; NM = 144; S = [112, 128]; PP = [96, 104]; RING = 64; NR = 8; E = 56; PK = 16
        VK, VV, VL16, VSC, LM, THR, NINF, VQ, TMP = 4, 5, 6, 7, 8, 9, 10, 11, 12
        LS, ONES, BIAS = 152, 60, 11.0
        SR, SG, SC1, SC2, SKO, SVO, SKM, SVM, STH = 32, 33, 34, 35, 36, 37, 38, 39, 42
        SFIN, SCA, SM1 = 55, 59, 58
        DC = self.o.get("dmacost", 16); WEV = self.o.get("wev", 4)
        if setup:
            I(f"s_lshr_b32 s{SG}, s{SW}, 2"); I(f"s_and_b32 s{SR}, s{SW}, 3")
            I(f"v_lshlrev_b32 v{VL16}, 4, v0")
            I(f"s_lshl_b32 s44, s{SR}, 12"); I(f"s_add_u32 s44, s44, {QB_LDS}"); I(f"v_add_u32 v{VQ}, s44, v{VL16}")
            I(f"s_lshl_b32 s45, s{SG}, 16"); I(f"v_subrev_u32 v{TMP+1}, s45, v{VQ}"); I(f"v_xor_b32 v{LM}, 0x7000, v{TMP+1}")
            I(f"s_mov_b32 s{SC1}, s{SIDX}")
            I(f"s_lshl_b32 s{SC2}, s{SIDX}, 1"); I(f"s_sub_u32 s{SC2}, 14, s{SC2}")
            I(f"s_cmp_eq_u32 s{SG}, 1"); I(f"s_cselect_b32 s{SM1}, 0, -1")
            I(f"s_lshl_b32 s43, s{SW}, 12"); I(f"s_lshl_b32 s{SVO}, s{SHEAD}, 20"); I(f"s_add_u32 s{SVO}, s{SVO}, s43")
            I(f"s_add_u32 s{SKO}, s{SVO}, 0x10000"); I(f"s_add_u32 s{SVO}, s{SVO}, 0x8000")
            I(f"s_mov_b32 s{SKM}, s43"); I(f"s_add_u32 s{SVM}, s43, 0x18000")
            I(f"s_mov_b32 s{STH}, 0x40004000"); I(f"v_mov_b32 v{NINF}, 0xff800000")
            for r in range(4): I(f"v_mov_b32 v{ONES+r}, 0x3f803f80"); I(f"v_mov_b64 {v(LS+2*r,2)}, 0")
            I(f"v_and_b32 v{THR}, 15, v0"); I(f"v_lshrrev_b32 v{TMP}, 4, v0"); I(f"v_lshlrev_b32 v{TMP}, 2, v{TMP}"); I(f"v_sub_u32 v{THR}, v{THR}, v{TMP}")
            I(f"s_lshl_b32 s44, s{SR}, 4"); I("s_sub_u32 s45, 112, s44"); I(f"v_add_u32 v{VSC}, s45, v{THR}"); I(f"v_add_u32 v{THR}, s44, v{THR}")
            I(f"v_and_b32 v{VK}, 15, v0"); I(f"v_lshlrev_b32 v{VK}, 4, v{VK}"); I(f"v_lshrrev_b32 v{TMP}, 4, v0"); I(f"v_lshl_add_u32 v{VK}, v{TMP}, {self.GSH}, v{VK}"); I(f"v_add_u32 v{VK}, 0x8000, v{VK}")
            I(f"s_lshr_b32 s44, s{SR}, 1"); I("s_lshl_b32 s44, s44, 18"); I(f"s_and_b32 s45, s{SR}, 1"); I("s_lshl_b32 s45, s45, 10"); I("s_add_u32 s44, s44, s45")
            I(f"s_lshl_b32 s45, s{SHEAD}, 13"); I("s_add_u32 s43, s44, s45"); I(f"s_add_u32 s43, s43, {CTX_OFF}")
            I(f"s_lshl_b32 s{SCA}, s{SIDX}, 20"); I(f"s_add_u32 s{SCA}, s{SCA}, s43")
            I(f"s_mov_b32 s{SFIN}, 0")
            I(f"s_lshr_b32 s56, s{SF}, 6"); I("s_lshl_b32 s56, s56, 2"); I(f"s_bfe_u32 s44, s{SF}, 0x20003"); I("s_add_u32 s56, s56, s44"); I("s_lshl_b32 s56, s56, 1")
            I(f"s_bfe_u32 s44, s{SF}, 0x10005"); I("s_add_u32 s56, s56, s44"); I(f"s_and_b32 s57, s{SF}, 7")
            I("s_mov_b32 s41, 0")
            CL = self.o.get("cl", 8)
            I(f"s_lshr_b32 s40, {1 << (CL+2)}, s{SG}"); I(f"s_or_b32 s40, s40, {1 << CL}")
            TO = self.o.get("to", 0)
            I(f"s_lshl_b32 s44, {2 << TO}, s{SW}"); I(f"s_and_b32 s44, s44, {self.o.get('tm', 30) << TO}"); I("s_or_b32 s40, s40, s44")
            I(f"s_cmp_eq_u32 s{SW}, 0"); I(f"s_cselect_b32 s44, {(1 << (5 + TO)) | (1 << (CL+4))}, 0"); I("s_or_b32 s40, s40, s44")
            if not self.o.get("noprio"):
                l = a.label("PR"); I(f"s_cmp_eq_u32 s{SG}, 1"); I(f"s_cbranch_scc0 {l}"); I("s_setprio 1"); a.L(l)
            return
        op = lambda t, c=4: (lambda: I(t), c)
        nop = lambda: None
        def loadq(va):
            I(f"v_xor_b32 v{TMP}, 0x7000, v{va}")
            for ds in range(8):
                I(f"ds_read_b128 {v(QF+4*ds,4)}, v{va if ds < 4 else TMP} offset:{1024*(ds&3)}"); lg.issue()
        def dma4(kind):
            sm, so = (SKM, SKO) if kind == "k" else (SVM, SVO)
            def d(i):
                def f():
                    if i == 0: I(f"s_mov_b32 m0, s{sm}"); I(f"s_xor_b32 s{sm}, s{sm}, 0x8000")
                    I(f"buffer_load_dwordx4 v{VL16}, s[{RWS}:{RWS+3}], s{so} offen offset:{1024*i}{self.ld} lds")
                    if i == 3: I(f"s_add_u32 s{so}, s{so}, 0x10000")
                return (f, DC + (8 if i == 0 else 4 if i == 3 else 0))
            return [d(i) for i in range(4)]
        self.ring_n = 0
        def rd(kind, sl, idx):
            h = {}
            def f():
                slot = self.ring_n % NR; self.ring_n += 1
                h["reg"] = RING + 4*slot
                I(f"ds_read_b128 {v(h['reg'],4)}, v{VK if kind == 'k' else VV} offset:{sl*8192+(idx << self.FSH)}"); h["tok"] = lg.issue()
            return f, h
        def wait_for(R, i):
            if R[i][1]["tok"] <= lg.done: return
            j = i
            while j + 1 < len(R) and j + 1 < i + WEV and "tok" in R[j+1][1] and R[j+1][1]["tok"] > R[i][1]["tok"]: j += 1
            lg.wait(R[j][1]["tok"])
        def otile(dt, qt): return O + 16*(dt >> 1) + 8*qt + 4*(dt & 1)
        def qk(sb, R, base, czero=False, half=False):
            def f(m):
                kt, qt, dd = m >> 3, (m >> 2) & 1, m & 3; i = base + 4*kt + dd
                wait_for(R, i); d = v(S[sb] + 8*qt + 4*kt, 4)
                c = ("0" if czero else v(NM + 4*qt, 4)) if dd == 0 else d
                I(f"{M16} {d}, {v(R[i][1]['reg'],4)}, {v(QF + 16*qt + 4*dd, 4)}, {c}")
            return [(lambda m=m: f(m)) if not (half and not m & 4) else nop for m in range(16)]
        def pv1(pb, dt, qt, reg): I(f"{M16} {v(otile(dt, qt),4)}, {v(reg,4)}, {v(PP[pb]+4*qt,4)}, {v(otile(dt, qt),4)}")
        def pv(pb, R, base, dts=range(8), exact=False, half=False):
            def f(dt, qt):
                if exact: lg.wait(R[base+dt][1]["tok"])
                else: wait_for(R, base + dt)
                pv1(pb, dt, qt, R[base+dt][1]["reg"])
            ls = [lambda qt=qt: I(f"{M16} {v(LS+4*qt,4)}, {v(ONES,4)}, {v(PP[pb]+4*qt,4)}, {v(LS+4*qt,4)}") for qt in range(2)]
            L = ls + [lambda dt=dt, qt=qt: f(dt, qt) for dt in dts for qt in range(2)]
            return [nop if half and not n & 1 else x for n, x in enumerate(L)]
        def sm_ops(sb):
            ex = lambda i: op(f"v_exp_f32 v{E+(i&3)}, v{S[sb]+i}", 8)
            cv = lambda j: op(f"v_cvt_pk_bf16_f32 v{PP[sb]+j}, v{E+((2*j)&3)}, v{E+((2*j+1)&3)}")
            p = PP[sb]; L = [ex(0), ex(1)]
            ors = {2: f"v_or3_b32 v{LM}, v{p}, v{p+1}, v{p+2}", 4: f"v_or3_b32 v{LM}, v{LM}, v{p+3}, v{p+4}", 6: f"v_or3_b32 v{LM}, v{LM}, v{p+5}, v{p+6}"}
            for j in range(8):
                L += [ex(2*j+2), cv(j), ex(2*j+3)] if j < 7 else [op("s_nop 0"), cv(j)]
                if j in ors: L.append(op(ors[j]))
            L = [x for i, x in enumerate(L) if i != len(L) - 2]
            L += [op(f"v_or_b32 v{LM}, v{LM}, v{p+7}"), op(f"v_and_b32 v{LM}, s{STH}, v{LM}")]
            return L
        def sm_half(sb):
            ex = lambda i: op(f"v_exp_f32 v{E+(i&3)}, v{S[sb]+i}", 8)
            cv = lambda j: op(f"v_cvt_pk_bf16_f32 v{PP[sb]+j}, v{E+((2*j)&3)}, v{E+((2*j+1)&3)}")
            p = PP[sb]
            return [ex(8), ex(9), ex(10), cv(4), ex(11), ex(12), cv(5), ex(13), ex(14), cv(6), ex(15), op(f"v_or3_b32 v{LM}, v{p+4}, v{p+5}, v{p+6}"), cv(7),
                    op(f"v_or_b32 v{LM}, v{LM}, v{p+7}"), op(f"v_and_b32 v{LM}, s{STH}, v{LM}")]
        SPH = 9
        def sched(M, fixed, chain):
            n = len(M); fc = [sum(c for _, c in fixed.get(g, [])) for g in range(n)]
            tot = sum(c for _, c in chain); lo, hi = 0.0, 4000.0
            for _ in range(40):
                lev = (lo + hi) / 2
                if sum(max(0, lev - f) for f in fc) >= tot: hi = lev
                else: lo = lev
            k = 0; credit = 0.0
            for g in range(n):
                M[g]()
                for c, _ in fixed.get(g, []): c()
                credit += max(0, hi - fc[g])
                while k < len(chain) and (g == n - 1 or chain[k][1] <= credit + 2):
                    chain[k][0](); credit -= chain[k][1]; k += 1
        def put(fixed, g, items): fixed.setdefault(g, []).extend(items)
        SPL = self.o.get("spl", 18)
        ool = []
        def rarely(cmp_, body):
            lo = a.label("OOL"); lb = a.label("RET")
            I(cmp_); I(f"s_cbranch_scc1 {lo}"); a.L(lb)
            ool.append((lo, lb, body))
        def mask_ops(sb, koff, half=False):
            prs = [46, 48, 50, 52]; L = []
            for qt in range(2):
                if half and qt == 0:
                    L += [op(f"v_mov_b32 v{S[sb]+r}, v{NINF}") for r in range(8)]; continue
                tr = (THR, VSC)[qt]; ko = koff
                if ko >= 32: L.append(op(f"v_subrev_u32 v{TMP+3}, {ko}, v{tr}" if ko <= 64 else f"v_subrev_u32 v{TMP+3}, 0x{ko:x}, v{tr}")); tr = TMP + 3; ko = 0
                for kt in range(2):
                    r0 = 8*qt + 4*kt
                    for r in range(4): L.append(op(f"v_cmp_lt_i32 s[{prs[r]}:{prs[r]+1}], v{tr}, {16*kt + r + ko}"))
                    for r in range(4): L.append(op(f"v_cndmask_b32 v{S[sb]+r0+r}, v{S[sb]+r0+r}, v{NINF}, s[{prs[r]}:{prs[r]+1}]"))
            return L
        def mask_body(sb, koff, half=False):
            for c, _ in mask_ops(sb, koff, half): c()
        def xred(x, y, t0, t1, o):
            L = []
            for sw in ("v_permlane16_swap_b32", "v_permlane32_swap_b32"):
                L += [op(f"v_mov_b32 v{t0}, v{x}"), op(f"v_mov_b32 v{t1}, v{y}"), op("s_nop 0"), op(f"{sw} v{t0}, v{x}"), op(f"{sw} v{t1}, v{y}"),
                      op(f"{o} v{x}, v{x}, v{t0}"), op(f"{o} v{y}, v{y}, v{t1}")]
            return L
        def rowmax(sb):
            for qt in range(2):
                b = S[sb] + 8*qt; d = TMP + qt
                I(f"v_max3_f32 v{d}, v{b}, v{b+1}, v{b+2}"); I(f"v_max3_f32 v{d}, v{d}, v{b+3}, v{b+4}"); I(f"v_max3_f32 v{d}, v{d}, v{b+5}, v{b+6}"); I(f"v_max_f32 v{d}, v{d}, v{b+7}")
            for c, _ in xred(TMP, TMP+1, TMP+2, TMP+3, "v_max_f32"): c()
        def init_max():
            rowmax(0)
            for qt in range(2): I(f"v_max_f32 v{TMP+qt}, {f2u(-1e30)}, v{TMP+qt}"); I(f"v_add_f32 v{TMP+qt}, {f2u(BIAS)}, v{TMP+qt}")
            for r in range(8): I(f"v_sub_f32 v{NM+r}, 0, v{TMP+(r>>2)}")
            return [op(f"v_sub_f32 v{S[0]+r}, v{S[0]+r}, v{TMP+(r>>3)}") for r in range(16)]
        rare = []
        def check(sb, other=True):
            lr = a.label("RARE"); lb = a.label("BACK")
            I(f"v_cmp_ne_u32 vcc, 0, v{LM}")
            if self.o.get("a_nocheck"): I("s_mov_b64 vcc, 0")
            I(f"s_cbranch_vccnz {lr}"); a.L(lb)
            rare.append((lr, lb, sb, other))
        def fin_body():
            I(f"s_mov_b32 s{SFIN}, 2")
            I(f"v_rcp_f32 v{TMP}, v{LS}"); I(f"v_rcp_f32 v{TMP+2}, v{LS+4}"); I(f"v_mov_b32 v{TMP+1}, v{TMP}"); I(f"v_mov_b32 v{TMP+3}, v{TMP+2}")
            for r in range(4): I(f"v_mov_b64 {v(LS+2*r,2)}, 0")
            for q in range(8):
                for i in range(8*q, 8*q+8, 2): I(f"v_pk_mul_f32 {v(O+i,2)}, {v(O+i,2)}, {v(TMP+2*(q&1),2)}")
                for i in range(4): I(f"v_cvt_pk_bf16_f32 v{PK+4*q+i}, v{O+8*q+2*i}, v{O+8*q+2*i+1}")
                for i in range(8*q, 8*q+8, 2): I(f"v_mov_b64 {v(O+i,2)}, 0")
        TX = 0xc0400
        def st_body():
            I(f"s_xor_b32 s45, s{SCA}, {TX}"); I(f"s_mov_b32 s44, s{SCA}"); I(f"s_mov_b32 s{SFIN}, 3")
            for q in range(8):
                if q == 4: I("s_add_u32 s44, s44, 4096"); I("s_add_u32 s45, s45, 4096")
                I(f"buffer_store_dwordx4 {v(PK+4*q,4)}, v{VL16}, s[{RWS}:{RWS+3}], s{44+(q&1)} offen offset:{((q>>1)&1)*2048}{self.st}")
        TR = [RING + 4*(2+i) for i in range(6)]
        def head(R, vmw, with_mfma=True, post=(), more=(), pre=None, hs=False):
            rf = [(f, 4) for f, h in R]; sm2 = sm_half(0)[SPH:] if hs else sm_ops(0)[SPL:]
            M = [lambda dt=dt, qt=qt: pv1(1, dt, qt, TR[dt-2]) for dt in range(2, 8) for qt in range(2)] if with_mfma else [nop]*12
            if with_mfma: I("s_waitcnt lgkmcnt(4)")
            nb = self.o.get("nb", 4); more = list(more); m0 = len(more) // 3
            if pre is not None: more = list(pre) + more; m0 = len(pre)
            sched(M[:4], {}, sm2[:nb] + more[:m0])
            vmw(); I("s_waitcnt lgkmcnt(0)"); lg.mark_all_done(); self.barrier(); self.ring_n = 0
            fx = {0: rf[0:2], 1: rf[2:4], 2: rf[4:5], 4: rf[5:6], 6: rf[6:7], 7: [(nop, 8 + 8*len(post))]}
            sched(M[4:], fx, sm2[nb:] + more[m0:])
            check(0)
            for p in post: p()
        def mk_reads():
            return ([rd("k", 0, i) for i in range(8)] + [rd("v", 0, i) for i in range(8)] +
                    [rd("k", 1, i) for i in range(8)] + [rd("v", 1, i) for i in range(8)])
        def last_use(F):
            b = (0, 18, 34, 52)[F >> 3]; f = F & 7
            return b + (2*f + 1 if (F >> 3) & 1 else 8*(f >> 2) + 4 + (f & 3))
        def mid(R, dmas, kx, mb=None, trans=False, endops=(), early=(), g=0, hq=False, hp=False):
            rf = [(f, 4) for f, h in R]
            fa = {0: [rf[7]]}; fb = {}
            G_ = g
            for g, e in zip((1, 3, 9, 11), early): put(fa, g, [e])
            for F in range(8, 32):
                g = last_use(F - 8) + 1
                put(fa, g, [rf[F]]) if g < 34 else put(fb, g - 34, [rf[F]])
            D = sum((dma4(k) for k in dmas), [])
            st_ = self.o.get("gst", 4); of_ = self.o.get("gof", 2)
            gaps = [2 + of_*G_*2 + 2*st_*n for n in range(4)] if len(D) == 4 else [2 + of_*G_ + st_*n for n in range(8)]
            for g, d in zip(gaps, D): put(fa, g, [d]) if g < 33 else put(fb, g - 33, [d])
            PT = self.o.get("pt", 0)
            if PT and G_ == 0:
                pts = {1: [(0, 24, 2), (1, 21, 0)], 2: [(0, 8, 2), (0, 24, 0), (1, 7, 2), (1, 21, 0)], 3: [(0, 0, 2), (0, 8, 0), (0, 16, 2), (0, 24, 0), (0, 32, 2), (1, 7, 0), (1, 15, 2), (1, 21, 0)],
                       4: [(0, 16, 2), (1, 21, 0)], 5: [(0, 32, 2), (1, 21, 0)]}[PT]
                for part, g, p in pts: put(fb if part else fa, g, [op(f"s_setprio {p}")])
            put(fa, 33, [(nop, 16)])
            zp = [op(f"v_mov_b64 {v(PP[1]+2*r,2)}, 0") for r in range(2)]
            sched(qk(0, R, 0, trans, hq) + pv(0, R, 8, half=hp), fa, zp + sm_half(1) if hp else sm_ops(1))
            check(1, other=not trans)
            if mb: mb()
            pre = []
            if trans:
                I(f"s_mov_b32 s{SFIN}, 1")
                pre = init_max()
            put(fb, 18, [op(f"v_xor_b32 v{VV}, 0x10000, v{VK}")] + kx)
            for n, e in enumerate(endops): put(fb, 11 - n, [e])
            put(fb, 21, [(nop, 12)])
            sched(qk(1, R, 16, half=hq) + pv(1, R, 24, range(2), half=hp), fb, pre + (sm_half(0)[:SPH] if hq else sm_ops(0)[:SPL]))
            assert [R[26+i][1]["reg"] for i in range(6)] == TR
        vm4 = lambda: I("s_waitcnt vmcnt(4)")
        def vm08():
            lo = a.label("W8"); lb = a.label("W8R")
            I(f"s_cmp_eq_u32 s{SFIN}, 3"); I(f"s_cbranch_scc1 {lo}"); I("s_waitcnt vmcnt(0)"); a.L(lb)
            def b(): I("s_waitcnt vmcnt(8)"); I(f"s_mov_b32 s{SFIN}, 4")
            ool.append((lo, lb, b))
        m1 = lambda sb, ko: (lambda: rarely(f"s_cmp_eq_u32 s{SC1}, s{SM1}", lambda: mask_body(sb, ko)))
        fin = lambda: rarely(f"s_cmp_eq_u32 s{SFIN}, 1", fin_body)
        sta = (lambda: rarely(f"s_cmp_eq_u32 s{SFIN}, 2", st_body), 8)
        KR, VR, SH, WO, AD = 16, 23, 28, 32, 40
        def side_loads():
            L = []; E = lambda t: L.append(op(t)); V = lambda t: L.append(op(t, DC))
            E(f"v_lshrrev_b32 v{AD}, 5, v0"); E(f"v_and_b32 v{AD+1}, 31, v0"); E(f"v_lshlrev_b32 v{AD+2}, 12, v{AD}"); E(f"v_lshl_add_u32 v{AD+2}, v{AD+1}, 2, v{AD+2}")
            self.phys(60, SHEAD, 61, E); E("s_lshl_b32 s60, s60, 17"); E(f"s_lshr_b32 s61, s{SIDX}, 1"); E("s_lshl_b32 s61, s61, 15"); E("s_add_u32 s60, s60, s61")
            E(f"s_and_b32 s61, s{SF}, 1"); E("s_lshl_b32 s61, s61, 9"); E("s_add_u32 s60, s60, s61")
            E(f"s_lshl_b32 s61, s{SW}, 6"); E("s_add_u32 s60, s60, s61"); E("s_add_u32 s61, s60, 16384")
            E(f"v_lshrrev_b32 v{AD+3}, 4, v0"); E(f"v_lshlrev_b32 v{AD+3}, 12, v{AD+3}"); E(f"v_and_b32 v{AD+4}, 15, v0"); E(f"v_lshl_add_u32 v{AD+3}, v{AD+4}, 2, v{AD+3}")
            for j in range(8): V(f"buffer_load_dword v{WO+j}, v{AD+3}, s[{RE}:{RE+3}], s{60+(j>>2)} offen offset:{1024*(j&3)}")
            E("s_lshr_b32 s62, s2, 3"); E("s_lshl_b32 s62, s62, 16"); E(f"s_lshl_b32 s63, s{SW}, 13"); E("s_add_u32 s62, s62, s63")
            E("s_and_b32 s63, s2, 7"); E("s_lshl_b32 s63, s63, 7"); E("s_add_u32 s62, s62, s63"); E(f"v_add_u32 v{AD+3}, s62, v{AD+2}")
            for i in range(3): E(f"v_subrev_u32 v{AD+4+i}, {3072-1024*i}, v{AD+3}")
            E("s_lshl_b32 s63, s63, 2"); E(f"v_lshl_add_u32 v{AD+7}, v{AD+1}, 4, s63")
            for i in range(3): V(f"buffer_load_dword v{KR+i}, v{AD+4+i}, s[{RA}:{RA+3}], 0 offen")
            for i in range(4): V(f"buffer_load_dword v{KR+3+i}, v{AD+3}, s[{RA}:{RA+3}], 0 offen offset:{1024*i}")
            for i in range(4): V(f"buffer_load_dword v{VR+i}, v{AD+3}, s[{RC}:{RC+3}], 0 offen offset:{1024*i}")
            V(f"buffer_load_dwordx4 {v(SH,4)}, v{AD+7}, s[{RD}:{RD+3}], 0 offen")
            return L
        NSL = 21
        def side_math():
            L = []; E = lambda t: L.append(op(t)); V = lambda t: L.append(op(t, DC))
            W2 = 48
            E("s_mov_b32 s60, 0x05040100"); E("s_mov_b32 s61, 0x07060302")
            for j in range(4): E(f"v_perm_b32 v{W2+j}, v{WO+2*j+1}, v{WO+2*j}, s60")
            for j in range(4): E(f"v_perm_b32 v{W2+4+j}, v{WO+2*j+1}, v{WO+2*j}, s61")
            E(f"s_and_b32 s60, s{SF}, 1"); E("s_lshl_b32 s60, s60, 2"); E(f"s_lshr_b32 s61, s{SW}, 1"); E("s_add_u32 s60, s60, s61"); E("s_lshl_b32 s60, s60, 19")
            E(f"s_lshr_b32 s61, s{SF}, 1"); E("s_lshl_b32 s61, s61, 12"); E("s_add_u32 s60, s60, s61"); E(f"s_and_b32 s61, s{SW}, 1"); E("s_lshl_b32 s61, s61, 11")
            E("s_add_u32 s60, s60, s61"); E(f"s_add_u32 s60, s60, {WOT_OFF}")
            for mt in range(2): V(f"buffer_store_dwordx4 {v(W2+4*mt,4)}, v{VL16}, s[{RWS}:{RWS+3}], s60 offen offset:{1024*mt}{self.st}")
            KU, SU, OO, VU, PQ = 32, 42, 48, 39, 52
            for c in range(2):
                def unp(d, sreg, half): E(f"v_lshlrev_b32 v{d}, 16, v{sreg}" if half == 0 else f"v_and_b32 v{d}, 0xffff0000, v{sreg}")
                for i in range(7): unp(KU+i, KR+i, c)
                for j in range(4): unp(SU+j, SH + 2*c + (j >> 1), j & 1)
                for o in range(4):
                    E(f"v_mul_f32 v{OO+o}, v{KU+o}, v{SU+3}")
                    for j in (2, 1, 0): E(f"v_fmac_f32 v{OO+o}, v{KU+o+3-j}, v{SU+j}")
                    unp(VU, VR+o, c)
                    E(f"v_mul_f32 v{OO+o}, v{OO+o}, v{VU}")
                d = PQ + 2*(1-c)
                E(f"v_cvt_pk_bf16_f32 v{d}, v{OO+3}, v{OO+2}"); E(f"v_cvt_pk_bf16_f32 v{d+1}, v{OO+1}, v{OO}")
            E(f"v_lshlrev_b32 v{AD+1}, 5, v{AD+1}"); E(f"v_lshl_add_u32 v{AD+1}, v{AD}, 4, v{AD+1}")
            E(f"v_permlane32_swap_b32 v{PQ+2}, v{PQ}"); E(f"v_permlane32_swap_b32 v{PQ+3}, v{PQ+1}")
            E("s_lshr_b32 s60, s2, 3"); E("s_lshl_b32 s60, s60, 16"); E(f"s_lshl_b32 s61, s{SW}, 13"); E("s_add_u32 s60, s60, s61")
            E("s_and_b32 s61, s2, 7"); E("s_lshl_b32 s61, s61, 10"); E("s_add_u32 s60, s60, s61"); E(f"s_add_u32 s60, s60, {KVT_OFF}")
            V(f"buffer_store_dwordx4 {v(PQ,4)}, v{AD+1}, s[{RWS}:{RWS+3}], s60 offen{self.st}")
            return L
        CL = self.o.get("cl", 8)
        def touch(k):
            if k in (1, 2):
                self.phys(60, SHEAD, 61); I("s_lshl_b32 s60, s60, 17"); I(f"s_lshl_b32 s61, s{SIDX}, 14"); I("s_add_u32 s60, s60, s61")
                if k == 2: I("s_add_u32 s60, s60, 8192")
                I("v_lshlrev_b32 v16, 7, v0"); r = RE
            elif k in (3, 4):
                I("s_lshr_b32 s60, s2, 3"); I("s_lshl_b32 s60, s60, 16"); I("s_and_b32 s61, s2, 7"); I("s_lshl_b32 s61, s61, 7"); I("s_add_u32 s60, s60, s61")
                I("v_lshlrev_b32 v16, 10, v0"); r = RA if k == 3 else RC
            else:
                I(f"s_lshl_b32 s60, s{SF}, 13"); I("v_lshlrev_b32 v16, 7, v0"); r = RB
            I(f"buffer_load_dword v1, v16, s[{r}:{r+3}], s60 offen")
        LSITE = a.label("SITE")
        stubs = []
        def site_code():
            a.T(".p2align 6")
            for lo, lb in stubs:
                a.L(lo); I(f"s_call_b64 s[76:77], {LSITE}"); I(f"s_branch {lb}")
            a.L(LSITE)
            def ret(): I("s_nop 1"); I("s_setpc_b64 s[76:77]")
            ll = a.label("SL"); lm = a.label("SM"); lp = a.label("SP"); TO = self.o.get("to", 0)
            I(f"s_cmp_eq_u32 s41, {CL}"); I(f"s_cbranch_scc1 {ll}")
            I(f"s_cmp_eq_u32 s41, {CL+4}"); I(f"s_cbranch_scc1 {lp}")
            I(f"s_cmp_gt_u32 s41, {CL}"); I(f"s_cbranch_scc1 {lm}")
            lk = {k: a.label("ST") for k in range(2, 6)}
            for k in range(2, 6): I(f"s_cmp_eq_u32 s41, {k + TO}"); I(f"s_cbranch_scc1 {lk[k]}")
            for k in range(1, 6):
                if k > 1: a.L(lk[k])
                touch(k); ret()
            a.L(lp)
            I(f"s_lshl_b32 s44, s{SF}, 2"); I(f"s_add_u32 s44, s44, {FY_OFF}")
            sv = self.save(); self.publish(44, 2); self.restore(sv)
            ret()
            a.L(ll)
            for c, _ in side_loads(): c()
            ret(); a.L(lm)
            for c, _ in side_math(): c()
            if self.o.get("ct3", 0): self.code_prefetch("ATT_START", "HOT_END", 7, 62, 44)
            ret()
        def spf():
            lo = a.label("STUB"); lb = a.label("RET")
            I("s_add_u32 s41, s41, 1"); I("s_bitcmp1_b32 s40, s41"); I(f"s_cbranch_scc1 {lo}"); a.L(lb); stubs.append((lo, lb))
        spub = (spf, 12)
        def snap():
            I(f"s_mov_b32 s61, {FY_OFF}"); I(f"buffer_load_dwordx4 v[52:55], v{VL16}, s[{RWS}:{RWS+3}], s61 offen sc1")
        def side_check():
            lo = a.label("SCK"); lb = a.label("SCR")
            def test():
                I("v_and_b32 v52, v52, v53"); I("v_and_b32 v54, v54, v55"); I("v_and_b32 v52, v52, v54"); I("v_and_b32 v52, 2, v52"); I("v_cmp_ne_u32 vcc, 2, v52")
            test(); I(f"s_cbranch_vccnz {lo}"); a.L(lb)
            def spin():
                lp = a.label("SPL")
                I("s_mov_b32 s99, 20000"); a.L(lp)
                I("s_sleep 2"); I(f"buffer_load_dwordx4 v[52:55], v{VL16}, s[{RWS}:{RWS+3}], s61 offen sc1"); I("s_waitcnt vmcnt(0)")
                test(); I(f"s_cbranch_vccz {lb}")
                I("s_sub_u32 s99, s99, 1"); I("s_cmp_lg_u32 s99, 0"); I(f"s_cbranch_scc1 {lp}")
            ool.append((lo, lb, spin))
        m2 = lambda sb, ko: (lambda: rarely(f"s_cmp_eq_u32 s{SC2}, 0", lambda: (snap(), mask_body(sb, ko))))
        LEV = a.label("EVEN"); LODM = a.label("ODDM"); LTRANS = a.label("TRANS"); LP2 = a.label("P2"); LP2B = a.label("P2B"); LDRAIN = a.label("DRAIN")
        a.L("ATT_START")
        self.stamp(8)
        self.ring_n = 0
        R = [rd("k", 0, i) for i in range(8)] + [rd("k", 1, i) for i in range(8)]
        def qrd(i):
            I(f"ds_read_b128 {v(QF+4*i,4)}, v{TMP+1 if i < 4 else LM} offset:{1024*(i&3)}"); return lg.issue()
        for i in range(4): qrd(i); R[i][0]()
        for i in range(4, 8): tq = qrd(i)
        D = dma4("v") + dma4("k")
        fx = {g: [(R[4+g][0], 4)] for g in range(4)}
        put(fx, 3, [(lambda: lg.wait(tq), 4)])
        for F in range(8, 15): put(fx, last_use(F - 8) + 1, [(R[F][0], 4)])
        for n, d in enumerate(D): put(fx, 2*n, [d])
        sched(qk(0, R, 0, True), fx, [])
        m1(0, 0)()
        pre = init_max()
        fx = {0: [(R[15][0], 4)], 8: [op(f"v_xor_b32 v{VV}, 0x10000, v{VK}"), op(f"v_xor_b32 v{VK}, 0x4000, v{VK}")]}
        sched(qk(1, R, 8), fx, pre + sm_ops(0)[:SPL])
        R = mk_reads()
        head(R, vm4, False, post=[m1(1, 32)])
        svm = self.save()
        self.stamp(9)
        LOD = [a.label("ODD0"), a.label("ODD1")]
        I(f"s_cmp_eq_u32 s{SG}, 1"); I(f"s_cbranch_scc1 {LOD[1]}"); I(f"s_branch {LOD[0]}")
        vm0 = lambda: I("s_waitcnt vmcnt(0)")
        LDR = [a.label("DR0"), a.label("DR1"), a.label("DR1F")]
        x8 = lambda: [op(f"v_xor_b32 v{VK}, 0x8000, v{VK}")]
        dec2 = lambda: op(f"s_sub_u32 s{SC2}, s{SC2}, 1")
        def loops(g):
            LEV = a.label("EVEN"); LP2 = a.label("P2"); LLAST = a.label("OLAST")
            a.L(LEV)
            R = mk_reads(); head(R, vm4)
            mid(R, "k", [op(f"v_xor_b32 v{VK}, 0x4000, v{VK}")], mb=m1(0, 0) if g else None, early=[spub], g=g)
            R = mk_reads(); head(R, vm4, post=[m1(1, 32)] if g else [])
            assert self.lg.issued - self.lg.done == svm[2] - svm[3]
            a.L(LOD[g])
            if g: I(f"s_cmp_eq_u32 s{SC1}, 0"); I(f"s_cbranch_scc1 {LLAST}")
            sv = self.save(); rn = self.ring_n
            mid(R, "v", [op(f"v_xor_b32 v{VK}, 0xc000, v{VK}")], endops=[op(f"s_sub_u32 s{SC1}, s{SC1}, 1")], early=[spub], g=g)
            if g:
                I(f"s_branch {LEV}")
                a.L(LLAST); self.restore(sv); self.ring_n = rn
                mid(R, "v", [op(f"v_xor_b32 v{VK}, 0x8000, v{VK}")], mb=lambda: mask_body(0, 64, True), early=[spub], g=g, hq=True)
            else:
                I(f"s_cmp_lg_u32 s{SC1}, -1"); I(f"s_cbranch_scc1 {LEV}")
            self.stamp(14)
            if g: loadq(VQ); I("s_waitcnt lgkmcnt(0)")
            R = mk_reads(); head(R, vm4, more=mask_ops(1, 96, True) if g else (), hs=bool(g))
            mid(R, "k", x8(), mb=m2(0, 64*g), trans=bool(g), early=[spub], g=g, hp=bool(g))
            self.stamp(15)
            I(f"s_cmp_eq_u32 s{SC2}, 0"); I(f"s_cbranch_scc1 {LDR[2*g]}")
            a.L(LP2)
            R = mk_reads(); head(R, vm08 if g else vm0)
            if g:
                mid(R, "kv", x8(), endops=[sta], early=[spub, (fin, 8), dec2()], g=g)
                I(f"s_cmp_lg_u32 s{SC2}, 1"); I(f"s_cbranch_scc1 {LP2}")
                R = mk_reads(); head(R, vm08)
                mid(R, "kv", x8(), mb=lambda: (snap(), mask_body(0, 64, True)), g=g, hq=True)
            else:
                mid(R, "kv", x8(), mb=m2(0, 0), early=[spub, dec2()], g=g)
                I(f"s_cmp_lg_u32 s{SC2}, 0"); I(f"s_cbranch_scc1 {LP2}")
        lj = a.label("MGJ"); LH1 = a.label("DH1"); PR = 64
        def drain(g):
            ts, ts2, ts3 = self.tail_setup()
            tsa = [x for x in ts if x[1] == 4]; tsl = [x for x in ts if x[1] != 4]
            def dhead(hs):
                R2 = [rd("v", 0, i) for i in range(8)] + [rd("v", 1, i) for i in range(8)]
                self.stamp(10)
                head(R2, lambda: (vm0(), side_check(), tsl[0][0](), tsl[1][0]()), post=[] if (hs or not g) else [fin_body, st_body], pre=tsa[:8],
                     more=tsa[8:16] + [tsl[2]] + mask_ops(1, 32 + 64*g, bool(g)), hs=hs)
                return R2
            a.L(LDR[g]); sv = self.save()
            R2 = dhead(bool(g))
            if g:
                a.L(LH1)
                def alt():
                    keep = self.save(); th = self.th
                    a.L(LDR[2]); self.restore(sv); dhead(False); I(f"s_branch {LH1}")
                    self.restore(keep); self.th = th
                self.alt = alt
            rf = [(f, 4) for f, h in R2]
            for c, _ in tsa[16:]: c()
            pre = []; E_ = lambda t: pre.append(op(t))
            E_(f"s_add_u32 s44, s{SWK}, {ML}"); E_(f"v_add_u32 v54, s44, v{VL16}")
            E_(f"s_lshl_b32 s46, s{SW}, 13"); E_(f"v_add_u32 v55, s46, v{VL16}")
            E_(f"s_sub_u32 s46, 15, s{SIDX}"); E_("s_lshl_b32 s46, s46, 20"); E_("s_add_u32 s46, s46, s43"); E_(f"s_add_u32 s46, s46, {4096*g}"); E_(f"s_xor_b32 s47, s46, {TX}")
            WA_ = self.o.get("wa", 6); tsA, tsB = ts2[:WA_], ts2[WA_:]
            setup_ = pre + ts3; n8 = (len(setup_) + 17) // 18
            fx = {n: setup_[n*n8:(n+1)*n8] for n in range(18)}
            for n, x in enumerate(tsA): put(fx, 1 + n * 17 // max(1, len(tsA)), [x])
            for F in range(7, 15): put(fx, 2*(F - 7) + (2 if F > 7 else 0), [rf[F]])
            sched(pv(0, R2, 0, half=bool(g)), fx, sm_half(1) if g else sm_ops(1))
            check(1)
            rf[15][0]()
            own = O + 32*g; snd = O + 32*(1-g)
            def osend(i):
                I(f"ds_write_b128 v55, {v(snd+4*i,4)} offset:{1024*i}"); lg.issue()
            def wml():
                I(f"ds_write_b128 v54, {v(150,4)}"); lg.issue()
            dts = list(range(4*(1-g), 4*(1-g)+4)) + list(range(4*g, 4*g+4))
            fx = {10 + i: [(lambda i=i: osend(i), 16)] for i in range(8)}
            put(fx, 8, [op(f"v_mov_b32 v150, v{NM}"), op(f"v_mov_b32 v{LS+1}, v{LS+4}"), (wml, 4)])
            for n, x in enumerate(tsB): put(fx, n * 10 // max(1, len(tsB)), [x])
            sched(pv(1, R2, 8, dts, True, half=bool(g)), fx, self.tail_valu())
            I(f"v_xor_b32 v54, 0x1000, v54"); I(f"v_xor_b32 v55, 0x8000, v55")
            I("s_waitcnt lgkmcnt(0)"); lg.mark_all_done(); self.barrier()
            I(f"ds_read_b128 {v(96,4)}, v54"); t0 = lg.issue()
            tk = []
            for i in range(8):
                I(f"ds_read_b128 {v(PR+4*i,4)}, v55 offset:{1024*i}"); tk.append(lg.issue())
            lg.wait(t0)
            for q in range(2):
                I(f"v_min_f32 v100, v{150+q}, v{96+q}"); I(f"v_sub_f32 v101, v100, v{150+q}"); I(f"v_sub_f32 v102, v100, v{96+q}")
                I("v_exp_f32 v101, v101"); I("v_exp_f32 v102, v102")
                I(f"v_mul_f32 v103, v101, v{LS+q}"); I(f"v_fmac_f32 v103, v102, v{98+q}"); I("v_rcp_f32 v103, v103")
                b = 104 + 4*q
                I(f"v_mul_f32 v{b}, v101, v103"); I(f"v_mul_f32 v{b+1}, v101, v103"); I(f"v_mul_f32 v{b+2}, v102, v103"); I(f"v_mul_f32 v{b+3}, v102, v103")
            tw = self.tail_writes()
            for q in range(4):
                b = 104 + 4*(q & 1)
                for i in range(8*q, 8*q+8, 2): I(f"v_pk_mul_f32 {v(own+i,2)}, {v(own+i,2)}, {v(b,2)}")
                lg.wait(tk[2*q+1])
                for c in tw[3*q:3*q+3]: c()
                for i in range(8*q, 8*q+8, 2): I(f"v_pk_fma_f32 {v(own+i,2)}, {v(PR+i,2)}, {v(b+2,2)}, {v(own+i,2)}")
                for i in range(4): I(f"v_cvt_pk_bf16_f32 v{snd+4*q+i}, v{own+8*q+2*i}, v{own+8*q+2*i+1}")
                I(f"buffer_store_dwordx4 {v(snd+4*q,4)}, v{VL16}, s[{RWS}:{RWS+3}], s{46+(q&1)} offen offset:{(q>>1)*2048}{self.st}"); self.tctx = vm.issue()
        loops(1); drain(1); I(f"s_branch {lj}")
        loops(0); drain(0)
        a.L(lj)
        I("s_setprio 0")
        self.stamp(4)
        def cold():
            self.alt()
            site_code()
            for (lo, lb, body) in ool:
                a.L(lo); body(); I(f"s_branch {lb}")
            a.L("HOT_END")
            for (lr, lb, sb, other) in rare:
                a.L(lr)
                I("s_nop 15")
                rowmax(sb)
                for q in range(2): I(f"v_add_f32 v{TMP+q}, {f2u(BIAS)}, v{TMP+q}"); I(f"v_max_f32 v{TMP+q}, 0, v{TMP+q}"); I(f"v_exp_f32 v{TMP+2+q}, -v{TMP+q}")
                for r in range(8): I(f"v_sub_f32 v{NM+r}, v{NM+r}, v{TMP+(r>>2)}")
                for r in range(16): I(f"v_sub_f32 v{S[sb]+r}, v{S[sb]+r}, v{TMP+(r>>3)}")
                if other:
                    for r in range(16): I(f"v_sub_f32 v{S[1-sb]+r}, v{S[1-sb]+r}, v{TMP+(r>>3)}")
                for r in range(64): I(f"v_mul_f32 v{O+r}, v{O+r}, v{TMP+2+((r>>3)&1)}")
                for r in range(8): I(f"v_mul_f32 v{LS+r}, v{LS+r}, v{TMP+2+(r>>2)}")
                for c, _ in sm_ops(sb): c()
                I("s_nop 1"); I(f"s_branch {lb}")
        self.attn_rare = cold

    HB = 65536; HC = 4416; XB = 136192; YB = 148480
    SC, SJ, SB, SCH, SHB_, SWO, SCX = 34, 35, 36, 37, 38, 39, 40
    WS_ = [16, 24, 32, 40, 176, 184, 48, 56] + list(range(80, 144, 8))
    def tail_setup(self):
        I = self.I; L = []; E = lambda t: L.append((lambda: I(t), 4))
        SC, SJ, SB, SCH, SHB_, SWO, SCX = self.SC, self.SJ, self.SB, self.SCH, self.SHB_, self.SWO, self.SCX
        self.wtok = {}; self.wslot = dict(enumerate(self.WS_))
        E(f"s_lshr_b32 s{SC}, s{SW}, 2"); E(f"s_and_b32 s{SJ}, s{SW}, 3")
        E(f"s_lshl_b32 s{SCH}, s{SF}, 1"); E(f"s_add_u32 s{SCH}, s{SCH}, s{SC}"); E(f"s_lshl_b32 s{SCH}, s{SCH}, 12")
        E(f"s_lshl_b32 s60, s{SJ}, 10"); E("v_add_u32 v50, s60, v6"); E("v_subrev_u32 v51, 16, v50")
        E(f"s_lshl_b32 s63, s{SW}, 18"); E(f"s_lshl_b32 s62, s{SF}, 5"); E("s_add_u32 s63, s63, s62"); E(f"s_add_u32 s63, s63, {KVT_OFF}")
        E("v_lshrrev_b32 v48, 1, v0"); E("v_and_b32 v158, 1, v0" if False else "v_and_b32 v3, 1, v0"); E("v_lshlrev_b32 v49, 13, v48"); E("v_lshl_add_u32 v49, v3, 4, v49")
        def ld(t):
            def f(): I(t); self.th = self.vm.issue()
            L.append((f, 16))
        ld(f"buffer_load_dwordx4 {v(160,4)}, v51, s[{RB}:{RB+3}], s{SCH} offen")
        ld(f"buffer_load_dwordx4 {v(164,4)}, v50, s[{RB}:{RB+3}], s{SCH} offen")
        ld(f"buffer_load_dwordx4 {v(168,4)}, v49, s[{RWS}:{RWS+3}], s63 offen{self.ld}")
        E(f"s_lshl_b32 s{SWO}, s57, 19"); E(f"s_lshl_b32 s60, s{SW}, 15"); E(f"s_add_u32 s{SWO}, s{SWO}, s60"); E(f"s_add_u32 s{SWO}, s{SWO}, {WOT_OFF}")
        E("s_and_b32 s60, s56, 1"); E("s_lshl_b32 s60, s60, 18"); E(f"s_add_u32 s{SWO}, s{SWO}, s60")
        TR_ = self.o.get("trot", 1)
        if TR_ == 0: E("s_mov_b32 s58, 0")
        elif TR_ == 1: E("s_mov_b32 s58, s57")
        else: E("s_and_b32 s58, s56, 6"); E("s_add_u32 s58, s58, s57")
        def w1(i, mt):
            if mt == 0 and i % 2 == 0: self.wadr(i)
            I(f"buffer_load_dwordx4 {v(self.WS_[i]+4*mt,4)}, v6, s[{RWS}:{RWS+3}], s59 offen offset:{(i&1)*2048+mt*1024}{self.ld}"); self.wtok[i] = self.vm.issue()
        L2 = [(lambda i=i, mt=mt: w1(i, mt), 16) for i in range(self.o.get("we", 6)) for mt in range(2)]
        L3 = []; L, Lx = L3, L
        E = lambda t: L3.append((lambda: I(t), 4))
        E(f"s_mul_i32 s{SB}, s{SC}, 6144"); E(f"s_add_u32 s{SB}, s{SB}, {self.XB}")
        E(f"s_mul_i32 s{SHB_}, s{SC}, {8*self.HC}"); E(f"s_add_u32 s{SHB_}, s{SHB_}, {self.HB}")
        E(f"s_xor_b32 s{SCX}, s56, 1"); E(f"s_lshl_b32 s{SCX}, s{SCX}, 19"); E(f"s_lshl_b32 s60, s{SW}, 14"); E(f"s_add_u32 s{SCX}, s{SCX}, s60"); E(f"s_add_u32 s{SCX}, s{SCX}, {CTX_OFF}")
        E("s_and_b32 s60, s56, 1"); E("s_lshl_b32 s60, s60, 17"); E(f"s_add_u32 s{SCX}, s{SCX}, s60")
        return Lx, L2, L3
    def wreg(self, i):
        return self.WS_[i % len(self.WS_)]
    def wload(self, i):
        I = self.I; r = self.wslot[i]
        I(f"s_add_u32 s61, s{self.SWO}, {i*2048}")
        for mt in range(2):
            I(f"buffer_load_dwordx4 {v(r+4*mt,4)}, v6, s[{RWS}:{RWS+3}], s61 offen offset:{mt*1024}{self.ld}"); self.wtok[i] = self.vm.issue()
    def wadr(self, i):
        I = self.I
        I(f"s_add_u32 s59, s58, {i >> 1}"); I("s_and_b32 s59, s59, 7"); I("s_lshl_b32 s59, s59, 12"); I(f"s_add_u32 s59, s59, s{self.SWO}")
    def tail_valu(self):
        I = self.I; HC = self.HC; L = []; E = lambda t: L.append((lambda: I(t), 4))
        SJ, SB, SHB_ = self.SJ, self.SB, self.SHB_
        Ee, Eo, Oe, Oo = 160, 113, 122, 131
        E(f"s_add_u32 s60, s{SHB_}, 64"); E("v_add_u32 v138, s60, v50")
        E("v_and_b32 v51, 3, v48"); E("v_mul_u32_u24 v139, 1536, v51"); E("v_lshrrev_b32 v53, 2, v48"); E("v_lshl_add_u32 v139, v53, 4, v139")
        E("v_and_b32 v53, 1, v0"); E("v_mul_u32_u24 v53, 6144, v53"); E(f"s_lshl_b32 s60, s{SW}, 7"); E(f"s_add_u32 s60, s60, {self.XB + 512}"); E("v_add3_u32 v139, v139, v53, s60")
        E("v_and_b32 v51, 3, v0")
        for r in range(2): E(f"v_mov_b64 {v(172+2*r,2)}, 0")
        E("v_bfe_u32 v140, v0, 2, 3"); E(f"v_mul_u32_u24 v140, {HC}, v140"); E("v_lshl_add_u32 v140, v51, 4, v140"); E(f"v_add_u32 v140, s{SHB_}, v140")
        E(f"s_mul_i32 s60, s{SJ}, 1536"); E(f"s_add_u32 s60, s60, s{SB}"); E("v_lshl_add_u32 v141, v0, 3, s60")
        L.append((lambda: self.vm.wait(self.th - 1), 4))
        for k in range(7): E(f"v_alignbit_b32 v{Oe+k}, v{Ee+k+1}, v{Ee+k}, 16")
        for k in range(1, 7): E(f"v_alignbit_b32 v{Oo+k}, v{Ee+k+1}, v{Ee+k}, 16")
        for k in range(1, 7): E(f"v_mov_b32 v{Eo+k}, v{Ee+k}")
        return L
    def tail_writes(self):
        I = self.I; lg = self.lg; HC = self.HC; L = []
        Ee, Eo, Oe, Oo = 160, 113, 122, 131
        def W(t, pre=None):
            def f():
                if pre: pre()
                I(t); lg.issue()
            L.append(f)
        for r in range(8):
            sft = 1 + r; k = sft >> 1
            base = ((Oe, Oo) if sft & 1 else (Ee, Eo))[k & 1]
            W(f"ds_write_b128 v138, {v(base+k,4)} offset:{r*HC}")
        W(f"ds_write_b128 v140, {v(172,4)}"); W(f"ds_write_b64 v141, {v(172,2)}")
        W(f"ds_write_b128 v139, {v(168,4)}", lambda: self.vm.wait(self.th))
        return L
    def tailp(self):
        a = self.a; I = self.I; vm = self.vm; lg = self.lg
        HB, HC, YB = self.HB, self.HC, self.YB
        SC, SJ, SB, SCH, SHB_, SWO, SCX = self.SC, self.SJ, self.SB, self.SCH, self.SHB_, self.SWO, self.SCX
        ACC = 192; FRS = [224, 240, 64]; RD_ = 224; OACC = 192; YT = self.XB
        VL16, VA, VB, T, VP, VPA, VO, GR, VW1 = 6, 4, 5, 12, 7, 8, 9, 10, 11
        WSL = self.WS_; CSL = [144, 152, 160, 168, 64, 72]
        assert len(WSL) == 16
        I(f"s_lshr_b32 s53, s56, 1"); I("s_lshl_b32 s53, s53, 10"); I("s_and_b32 s44, s56, 1"); I("s_lshl_b32 s44, s44, 9"); I("s_add_u32 s53, s53, s44")
        I(f"s_lshr_b32 s44, s{SW}, 1"); I("s_lshl_b32 s44, s44, 7"); I("s_add_u32 s53, s53, s44"); I(f"s_and_b32 s44, s{SW}, 1"); I("s_lshl_b32 s44, s44, 3")
        I("s_add_u32 s53, s53, s44"); I(f"s_add_u32 s53, s53, {FC_OFF}")
        I(f"v_and_b32 v{VPA}, 1, v0"); I(f"v_lshlrev_b32 v{VPA}, 2, v{VPA}")
        PUBN = self.o.get("pubn", 3)
        I(f"s_lshr_b32 s45, s{SHEAD}, 2"); I("s_lshl_b32 s45, s45, 7"); I(f"s_and_b32 s44, s{SHEAD}, 3"); I("s_lshl_b32 s44, s44, 2"); I("s_add_u32 s45, s45, s44")
        I(f"s_sub_u32 s44, 15, s{SIDX}"); I("s_lshl_b32 s44, s44, 10"); I("s_add_u32 s46, s44, s45"); I(f"s_add_u32 s46, s46, {FC_OFF}")
        I(f"s_lshl_b32 s44, s{SIDX}, 10"); I("s_add_u32 s47, s44, s45"); I(f"s_add_u32 s47, s47, {FC_OFF}")
        self.srd(RC, "out", 2*MB); self.srd(RD, "q", 2*MB)
        I(f"s_lshl_b32 s44, s{SF}, 2"); I(f"s_load_dword s55, s[{P['ssmD']}:{P['ssmD']+1}], s44")
        I(f"v_and_b32 v{T}, 15, v0"); I(f"v_lshrrev_b32 v{T+1}, 4, v0")
        I(f"v_and_b32 v{T+2}, 7, v0"); I(f"v_mul_u32_u24 v{VA}, {HC}, v{T+2}")
        I(f"v_bfe_u32 v{T+2}, v0, 3, 1"); I(f"v_sub_u32 v{T+2}, v{T+2}, v{T+1}"); I(f"v_lshl_add_u32 v{VA}, v{T+2}, 4, v{VA}")
        I(f"s_lshl_b32 s43, s{SJ}, 8"); I(f"s_add_u32 s43, s43, s{SHB_}"); I("s_add_u32 s43, s43, 64"); I(f"v_add_u32 v{VA}, s43, v{VA}")
        I(f"s_lshl_b32 s43, s{SJ}, 6"); I(f"s_sub_u32 s43, s{SB}, s43"); I(f"s_add_u32 s43, s43, {(32-3)*16}")
        I(f"v_lshl_add_u32 v{VB}, v{T}, 4, s43"); I(f"v_mul_u32_u24 v{T+2}, 1536, v{T+1}"); I(f"v_add_u32 v{VB}, v{VB}, v{T+2}")
        I(f"s_lshl_b32 s51, s{SW}, 13"); I(f"s_xor_b32 s52, s{SCX}, 0x80000")
        I("s_waitcnt lgkmcnt(0)"); lg.mark_all_done(); self.barrier()
        self.stamp(5)
        wtok = dict(self.wtok); ctok = {}; cslot = dict(enumerate(CSL))
        def wload(k):
            if k % 2 == 0: self.wadr(k)
            for mt in range(2):
                I(f"buffer_load_dwordx4 {v(WSL[k]+4*mt,4)}, v{VL16}, s[{RWS}:{RWS+3}], s59 offen offset:{(k&1)*2048+mt*1024}{self.ld}"); wtok[k] = vm.issue()
        def cload(i):
            I(f"s_add_u32 s62, s58, {i & 7}"); I("s_and_b32 s62, s62, 7"); I("s_lshl_b32 s62, s62, 11"); I(f"s_add_u32 s62, s62, s{52 if i >= 16 else SCX}")
            if i & 8: I("s_add_u32 s62, s62, 0x40000")
            for qt in range(2):
                I(f"buffer_load_dwordx4 {v(cslot[i]+4*qt,4)}, v{VL16}, s[{RWS}:{RWS+3}], s62 offen offset:{qt*1024}{self.ld}"); ctok[i] = vm.issue()
        wl = [k for k in range(16) if k not in wtok]
        BS = [224, 240]; AS = list(range(160, 176, 4)) + list(range(64, 80, 4)); NA = len(AS)
        seq = [(dd, m, bt) for dd in range(4) for (m, bt) in ((0, 0), (3, 0), (0, 1), (3, 1), (1, 0), (2, 0), (1, 1), (2, 1))]
        atok = {}; btok = {}
        def rda(n):
            if n >= len(seq): return
            dd, m, bt = seq[n]
            I(f"ds_read_b128 {v(AS[n % NA],4)}, v{VA} offset:{64*dd + 1024*m + 32*bt}"); atok[n] = lg.issue()
        def rdb(dd, n):
            if dd >= 4: return
            I(f"ds_read_b128 {v(BS[dd & 1]+4*n,4)}, v{VB} offset:{(3-dd)*16 + 256*n}"); btok[(dd, n)] = lg.issue()
        rda(0)
        for n in range(4): rdb(0, n)
        for n in range(1, NA - 1): rda(n)
        seen = set()
        for n, (dd, m, bt) in enumerate(seq):
            for nn in range(4 - m):
                lg.wait(max(atok[n], btok[(dd, nn)]))
                key = (m + nn, bt); d = v(ACC + 8*key[0] + 4*bt, 4)
                I(f"v_mfma_f32_16x16x32_bf16 {d}, {v(AS[n % NA],4)}, {v(BS[dd & 1]+4*nn,4)}, {d if key in seen else '0'}"); seen.add(key)
                if nn == 0:
                    rda(n + NA - 1)
                    if 1 <= (n & 7) <= 4: rdb(dd + 1, (n & 7) - 1)
            if n & 1:
                h_ = n >> 1
                if h_ == PUBN:
                    vm.wait(self.tctx); self.barrier(); self.publish(46); self.publish(47)
                if h_ >= self.o.get("wst", 1) and len(wl) > self.o.get("wkeep", 2): wload(wl.pop(0))
                if h_ == self.o.get("p1", 12): tc1 = self.poll_issue(VP, VPA, "s53")
        I(f"v_add_u32 v{T+2}, s51, v{VL16}")
        for i in range(8):
            I(f"ds_write_b128 v{T+2}, {v(ACC+4*i,4)} offset:{1024*i}"); lg.issue()
        while wl: wload(wl.pop(0))
        I(f"s_lshl_b32 s43, s{SC}, 15"); I(f"s_lshl_b32 s44, s{SJ}, 11"); I("s_add_u32 s43, s43, s44"); I(f"v_add_u32 v{T+2}, s43, v{VL16}")
        I(f"s_lshl_b32 s44, s{SJ}, 8"); I(f"s_add_u32 s44, s44, s{SB}"); I("s_add_u32 s44, s44, 520")
        I(f"v_lshl_add_u32 v{T+3}, v{T}, 4, s44"); I(f"v_and_b32 v{VA}, 1, v{T+1}"); I(f"v_lshlrev_b32 v{VA}, 3, v{VA}"); I(f"v_sub_u32 v{T+3}, v{T+3}, v{VA}")
        I(f"v_lshrrev_b32 v{VA}, 1, v{T+1}"); I(f"v_mul_u32_u24 v{VA}, 1536, v{VA}"); I(f"v_add_u32 v{T+3}, v{T+3}, v{VA}")
        I(f"v_lshlrev_b32 v{VB}, 6, v{T}"); I(f"v_lshl_add_u32 v{VB}, v{T+1}, 3, v{VB}")
        I(f"s_add_u32 s45, s{SWK}, {YB}"); I(f"v_add_u32 v{VB}, s45, v{VB}")
        I("s_lshl_b32 s43, s55, 16"); I("s_and_b32 s44, s55, 0xffff0000"); I(f"s_cmp_eq_u32 s{SC}, 0"); I("s_cselect_b32 s55, s43, s44")
        lg.wait(lg.issued); self.barrier()
        self.stamp(12)
        for p in range(4):
            for gq in range(2):
                I(f"ds_read_b128 {v(RD_+8*p+4*gq,4)}, v{T+2} offset:{8192*p+1024*gq}"); lg.issue()
        for gq in range(2):
            I(f"ds_read_b64 {v(ACC+2*gq,2)}, v{T+3} offset:{3072*gq}"); lg.issue()
        le = a.label("NE")
        vm.wait(tc1); I(f"v_and_b32 v{VP}, 1, v{VP}"); I(f"v_cmp_ne_u32 vcc, 1, v{VP}"); I("s_mov_b32 s50, 0"); I(f"s_cbranch_vccnz {le}")
        sv = self.save(); I("s_mov_b32 s50, 1")
        for i in range(len(CSL)): cload(i)
        self.restore(sv); a.L(le)
        lg.wait(lg.issued)
        for i in range(0, 8, 2):
            I(f"v_pk_add_f32 {v(RD_+i,2)}, {v(RD_+i,2)}, {v(RD_+8+i,2)}"); I(f"v_pk_add_f32 {v(RD_+16+i,2)}, {v(RD_+16+i,2)}, {v(RD_+24+i,2)}")
        for i in range(0, 8, 2): I(f"v_pk_add_f32 {v(RD_+i,2)}, {v(RD_+i,2)}, {v(RD_+16+i,2)}")
        for gq in range(2):
            for r in range(4):
                srcr = ACC + 2*gq + (1 - (r >> 1))
                I(f"v_lshlrev_b32 v{ACC+8}, 16, v{srcr}" if r & 1 else f"v_and_b32 v{ACC+8}, 0xffff0000, v{srcr}")
                I(f"v_fma_f32 v{RD_+4*gq+r}, v{ACC+8}, s55, v{RD_+4*gq+r}")
        for i in range(4): I(f"v_cvt_pk_bf16_f32 v{ACC+12+i}, v{RD_+2*i}, v{RD_+2*i+1}")
        for gq in range(2):
            I(f"ds_write_b64 v{VB}, {v(ACC+12+2*gq,2)} offset:{32*gq}"); lg.issue()
        I(f"v_and_b32 v{T+2}, 15, v0"); I(f"v_lshrrev_b32 v{T+1}, 4, v0"); I(f"v_lshlrev_b32 v{T+1}, 1, v{T+1}"); I(f"v_xor_b32 v{T+1}, v{T+1}, v{T+2}"); I(f"v_lshlrev_b32 v{T+1}, 4, v{T+1}")
        I(f"v_lshl_add_u32 v{VA}, v{T+2}, 8, v{T+1}"); I(f"v_add_u32 v{VA}, s51, v{VA}")
        I(f"s_lshr_b32 s48, s{SW}, 1"); I("s_lshl_b32 s48, s48, 4"); I(f"s_and_b32 s41, s{SW}, 1"); I("s_lshl_b32 s42, s41, 3")
        I(f"v_lshrrev_b32 v{T}, 4, v0"); I(f"v_lshl_add_u32 v{T+1}, v{T}, 1, s42"); I(f"v_xor_b32 v{T+1}, v{T+1}, v{T+2}"); I(f"v_lshlrev_b32 v{T+1}, 4, v{T+1}")
        I("s_and_b32 s43, s48, 16"); I(f"v_add_u32 v{T+3}, s43, v{T+2}"); I(f"v_lshl_add_u32 v{VW1}, v{T+3}, 8, v{T+1}")
        I("s_lshr_b32 s43, s48, 5"); I("s_lshl_b32 s43, s43, 16"); I(f"v_add_u32 v{VW1}, s43, v{VW1}")
        lg.wait(lg.issued); I(f"v_xor_b32 v{VB}, 16, v{VW1}"); self.barrier()
        ly = a.label("NY")
        I(f"s_cmp_lg_u32 s{SW}, 0"); I(f"s_cbranch_scc1 {ly}")
        I(f"v_add_u32 v{T}, {YB}, v{VL16}")
        for i in range(8): I(f"ds_read_b128 {v(RD_+4*i,4)}, v{T} offset:{1024*i}")
        I(f"s_lshl_b32 s44, s{SF}, 13"); I(f"s_add_u32 s44, s44, {YT_OFF}"); I("s_add_u32 s45, s44, 4096")
        I("s_waitcnt lgkmcnt(0)")
        for i in range(8): I(f"buffer_store_dwordx4 {v(RD_+4*i,4)}, v{VL16}, s[{RWS}:{RWS+3}], s{44+(i>>2)} offen offset:{1024*(i&3)}{self.st}")
        a.L(ly)
        ll = a.label("NL")
        I("s_cmp_eq_u32 s50, 1"); I(f"s_cbranch_scc1 {ll}")
        self.poll_check(VP, VPA, "s53", 1)
        for i in range(len(CSL)): cload(i)
        a.L(ll)
        self.stamp(6)
        def put_ops(st):
            L = []
            for mt in range(4):
                def f(mt=mt):
                    I(f"v_xor_b32 v{T+3}, {(8*(mt>>1)+(mt&1))*16 + 0x10000*st}, v{VA}")
                    for qt in range(2):
                        I(f"ds_write_b128 v{T+3}, {v(OACC+32*st+8*mt+4*qt,4)} offset:{4096*qt}"); lg.issue()
                L.append(f)
            return L
        def sum_partials(mid=None):
            tk = []
            for p in range(8):
                for hh in range(2):
                    I(f"ds_read_b128 {v(OACC+8*p+4*hh,4)}, v{(VW1, VB)[hh]} offset:{8192*p}"); lg.issue()
                tk.append(lg.issued)
                if p == 5 and mid: mid()
            for p in range(1, 8):
                lg.wait(tk[p])
                for e in range(0, 8, 2): I(f"v_pk_add_f32 {v(OACC+e,2)}, {v(OACC+e,2)}, {v(OACC+8*p+e,2)}")
        ymark = vm.issued; ypub = False; pm = {}; ppub = False; free = []; nc = len(CSL); XR = WSL[0]; PR_ = WSL[1]
        TS = [OACC + 32 + 8*n for n in range(4)]; ptk = {}
        def prd(p):
            r = TS[0] if p == 0 else TS[1 + (p - 1) % 3]
            for hh in range(2):
                I(f"ds_read_b128 {v(r+4*hh,4)}, v{(VW1, VB)[hh]} offset:{8192*p}"); ptk[p] = lg.issue()
        def padd(p):
            lg.wait(ptk[p]); r = TS[1 + (p - 1) % 3]
            for e in range(0, 8, 2): I(f"v_pk_add_f32 {v(TS[0]+e,2)}, {v(TS[0]+e,2)}, {v(r+e,2)}")
            if p + 3 < 8: prd(p + 3)
        def pst():
            I(f"s_lshl_b32 s44, s{SF}, 14"); I(f"s_lshl_b32 s45, s{SW}, 11"); I("s_add_u32 s54, s44, s45"); I(f"s_add_u32 s54, s54, {PP_OFF}")
            for hh in range(2):
                I(f"buffer_store_dwordx4 {v(TS[0]+4*hh,4)}, v{VL16}, s[{RWS}:{RWS+3}], s54 offen offset:{1024*hh}{self.st}"); pm["t"] = vm.issue()
        B1 = self.o.get("b1", 18); PS = self.o.get("ps", 21)
        for i2 in range(0, 32, 2):
            st = (i2 >> 3) & 1; J = i2 & 7; fill = []
            if i2 in (8, 24): fill = put_ops(0)
            if i2 == 16: fill = put_ops(1)
            if i2 == 24: self.barrier()
            if i2 == B1:
                lg.wait(lg.issued); self.barrier()
                for p in range(4): prd(p)
                fill = [lambda p=p: padd(p) for p in range(1, 8)]
                I(f"s_lshl_b32 s53, s57, 7"); I(f"s_lshl_b32 s42, s{SW}, 4"); I("s_add_u32 s53, s53, s42"); I(f"s_add_u32 s53, s53, {FY_OFF}")
                I(f"v_and_b32 v{VPA}, 3, v0"); I(f"v_lshlrev_b32 v{VPA}, 2, v{VPA}")
                tf = self.poll_issue(VP, VPA, "s53")
            if i2 == 26:
                I(f"v_and_b32 v{T+1}, 15, v0"); I(f"s_lshl_b32 s45, s56, 6"); I("s_add_u32 s45, s45, s48"); I(f"v_add_u32 v{T+1}, s45, v{T+1}")
                I(f"v_lshlrev_b32 v{T+2}, 2, v{T+1}"); I(f"s_mov_b32 s45, {G_OFF}")
                I(f"buffer_load_dword v{GR}, v{T+2}, s[{RWS}:{RWS+3}], s45 offen{self.ld}"); vm.issue()
                I(f"v_lshrrev_b32 v{T+2}, 4, v0"); I(f"v_lshlrev_b32 v{T+2}, 4, v{T+2}"); I(f"v_lshl_add_u32 v{VO}, v{T+1}, 10, v{T+2}")
                I("s_lshl_b32 s49, s41, 6"); I(f"s_lshl_b32 s45, s57, 7"); I("s_add_u32 s49, s49, s45")
                I(f"buffer_load_dwordx4 {v(XR,4)}, v{VO}, s[{RD}:{RD+3}], s49 offen"); vm.issue()
                vm.wait(tf); self.poll_check(VP, VPA, "s53", 1)
                I(f"v_lshrrev_b32 v{T}, 3, v0"); I(f"v_and_b32 v{T+1}, 7, v0"); I(f"v_lshlrev_b32 v{T+1}, 4, v{T+1}")
                I(f"v_lshl_add_u32 v{T}, v{T}, 12, v{T+1}")
                I(f"s_add_u32 m0, s{SWK}, {YT}")
                I(f"s_lshl_b32 s44, s57, 18"); I(f"s_lshl_b32 s45, s{SW}, 15"); I("s_add_u32 s44, s44, s45")
                I(f"s_lshl_b32 s45, s56, 7"); I("s_add_u32 s44, s44, s45"); I(f"s_add_u32 s44, s44, {YT_OFF}")
                I(f"buffer_load_dwordx4 v{T}, s[{RWS}:{RWS+3}], s44 offen{self.ld} lds"); vm.issue()
            vm.wait(max(ctok[i2+1], wtok[2*J+3]))
            if not ypub and vm.done > ymark:
                ypub = True; I(f"s_lshl_b32 s44, s{SF}, 2"); I(f"s_add_u32 s44, s44, {FY_OFF}"); self.publish(44, 3)
            if pm and not ppub and vm.done >= pm["t"]:
                ppub = True
                I(f"s_lshl_b32 s44, s{SF}, 7"); I(f"s_lshl_b32 s45, s{SW}, 2"); I("s_add_u32 s44, s44, s45"); I(f"s_add_u32 s44, s44, {FP_OFF}")
                I("v_mov_b32 v2, 1"); I("v_mov_b32 v3, 0"); I(f"buffer_store_dword v2, v3, s[{RWS}:{RWS+3}], s44 offen sc1"); vm.issue()
            if i2 == 30:
                I(f"s_xor_b32 s53, s{SF}, 32"); I("s_lshl_b32 s53, s53, 7"); I(f"s_lshl_b32 s42, s{SW}, 2"); I("s_add_u32 s53, s53, s42"); I(f"s_add_u32 s53, s53, {FP_OFF}")
                I(f"v_mov_b32 v{VPA}, 0")
                if self.o.get("pe"): tp = self.poll_issue(VP, VPA, "s53")
            M = []
            for mt in range(4):
                for qt in range(2):
                    for u in range(2):
                        d = v(OACC + 32*st + 8*mt + 4*qt, 4)
                        M.append(lambda d=d, mt=mt, qt=qt, u=u: I(f"v_mfma_f32_16x16x32_bf16 {d}, {v(WSL[2*(J+u) + (mt >> 1)]+4*(mt & 1),4)}, {v(cslot[i2+u]+4*qt,4)}, {'0' if J + u == 0 else d}"))
            self.stream(M, [(1, 16, fill)] if fill else [])
            free += [cslot[i2], cslot[i2+1]]
            while free and nc < 32:
                cslot[nc] = free.pop(0); cload(nc); nc += 1
            if i2 + 1 == PS or i2 == PS: pst()
        assert ypub and ppub
        self.stamp(7)
        if not self.o.get("pe"):
            tp = self.poll_issue(VP, VPA, "s53")
            for f in put_ops(1): f()
        vm.wait(tp); self.poll_check(VP, VPA, "s53", 1)
        if self.o.get("ostamp"): self.stamp(20)
        I("s_xor_b32 s54, s54, 0x80000")
        for hh in range(2):
            I(f"buffer_load_dwordx4 {v(PR_+4*hh,4)}, v{VL16}, s[{RWS}:{RWS+3}], s54 offen offset:{1024*hh}{self.ld}"); tpp = vm.issue()
        if self.o.get("pe"):
            for f in put_ops(1): f()
        I(f"v_lshrrev_b32 v{T}, 4, v0"); I("s_lshl_b32 s42, s41, 5"); I(f"v_lshl_add_u32 v{T}, v{T}, 3, s42"); I(f"v_bfe_u32 v{T+1}, v0, 2, 2")
        I(f"v_add_u32 v{T}, v{T}, v{T+1}"); I(f"v_lshlrev_b32 v{T}, 7, v{T}"); I(f"v_and_b32 v{T+1}, 3, v0")
        I(f"v_lshl_add_u32 v{T}, v{T+1}, 3, v{T}"); I("s_lshl_b32 s42, s48, 1"); I(f"s_add_u32 s42, s42, {YT}"); I(f"v_add_u32 v{T}, s42, v{T}")
        lg.wait(lg.issued); self.barrier()
        I(f"ds_read_b64_tr_b16 {v(100,2)}, v{T}"); lg.issue()
        I(f"ds_read_b64_tr_b16 {v(102,2)}, v{T} offset:512"); ty2 = lg.issue()
        def mix():
            lg.wait(ty2)
            for e in range(8):
                if e & 1: I(f"v_and_b32 v104, 0xffff0000, v{XR+(e>>1)}"); I(f"v_and_b32 v105, 0xffff0000, v{100+(e>>1)}")
                else: I(f"v_lshlrev_b32 v104, 16, v{XR+(e>>1)}"); I(f"v_lshlrev_b32 v105, 16, v{100+(e>>1)}")
                I(f"v_mul_f32 v{112+e}, v104, v105"); I(f"v_mul_f32 v{112+e}, v{112+e}, v{GR}")
            I(f"v_sub_f32 v{GR}, 1.0, v{GR}")
        sum_partials(mix)
        vm.wait(tpp)
        for e in range(0, 8, 2): I(f"v_pk_add_f32 {v(OACC+e,2)}, {v(OACC+e,2)}, {v(PR_+e,2)}")
        for e in range(8): I(f"v_fmac_f32 v{112+e}, v{OACC+4*(e&1)+(e>>1)}, v{GR}")
        for e in range(4): I(f"v_cvt_pk_bf16_f32 v{108+e}, v{112+2*e}, v{112+2*e+1}")
        I(f"buffer_store_dwordx4 {v(108,4)}, v{VO}, s[{RC}:{RC+3}], s49 offen sc1"); vm.issue()
        self.stamp(16)
        if self.o.get("echo"):
            lp = a.label("EC")
            I("s_sub_u32 s100, s100, s96")
            if self.o.get("cyc"): I("s_lshr_b32 s100, s100, 4")
            I("s_memrealtime s[96:97]"); I("s_waitcnt lgkmcnt(0)")
            a.L(lp)
            I("s_memrealtime s[98:99]"); I("s_waitcnt lgkmcnt(0)"); I("s_sub_u32 s98, s98, s96"); I("s_cmp_lt_u32 s98, s100"); I(f"s_cbranch_scc1 {lp}")
        if self.o.get("dbgout") is not None:
            l = a.label("DB")
            I(f"s_cmp_lg_u32 s2, {self.o['dbgout']}"); I(f"s_cbranch_scc1 {l}"); I(f"s_cmp_lg_u32 s{SW}, 0"); I(f"s_cbranch_scc1 {l}")
            I("s_waitcnt vmcnt(0)")
            order = [0, 1, 2, 3, 8, 10, 11, 4, 5, 12, 6, 7, 16]
            I("v_mov_b32 v20, 0")
            for j, i in enumerate(order):
                I(f"s_mov_b32 s44, {4*i}"); I(f"v_writelane_b32 v20, s44, {j}")
            I(f"s_lshl_b32 s44, s2, 11"); I(f"s_add_u32 s44, s44, {STAMP_OFF}")
            I(f"buffer_load_dword v21, v20, s[{RWS}:{RWS+3}], s44 offen sc1"); I("s_waitcnt vmcnt(0)")
            I("v_readfirstlane_b32 s45, v21"); I("v_subrev_u32 v21, s45, v21")
            self.srd(RDBG, "dbg", 64); I("v_lshlrev_b32 v22, 2, v0")
            I(f"buffer_store_dword v21, v22, s[{RDBG}:{RDBG+3}], 0 offen")
            a.L(l)

HEADER = """; One persistent launch, one 8-wave workgroup per CU (generated by gen/gen_final.py, hand-designed schedule).
"""
def build(opts):
    g = G(opts); k = NAME + "_kernel"
    g.begin(k); g.a.T("; MARK p"); g.proj(); g.a.T("; MARK a"); g.attn(); g.a.T("; MARK t"); g.tailp(); g.end(); g.a.T("; MARK a"); g.attn_rare(); g.a.T("; MARK t"); g.a.L("CODE_END"); g.a.I("s_endpgm")
    n = g.a.fix_hazards()
    txt = "; @launch grid=(256,1,1) block=(512,1,1) lds=163840\n" + HEADER
    txt += '.amdgcn_target "amdgcn-amd-amdhsa--gfx950"\n.text\n' + g.a.text()
    txt += f""".section .rodata,"a"
.p2align 6
.amdhsa_kernel {k}
  .amdhsa_next_free_vgpr 256
  .amdhsa_next_free_sgpr 102
  .amdhsa_accum_offset 256
  .amdhsa_group_segment_fixed_size 0
  .amdhsa_kernarg_size 128
  .amdhsa_user_sgpr_count 2
  .amdhsa_user_sgpr_kernarg_segment_ptr 1
  .amdhsa_system_sgpr_workgroup_id_x 1
.end_amdhsa_kernel
"""
    print(f"instructions {sum(1 for it in g.a.items if it[0] == 'i')}, nops inserted {n}", file=sys.stderr)
    return txt

if __name__ == "__main__":
    opts = {}
    for x in sys.argv[2:]:
        if "=" in x: k_, v_ = x.split("="); opts[k_] = int(v_)
        else: opts[x] = True
    open(sys.argv[1], "w").write(build(opts))
```
